```python
import torch

def _softmax(x, axis=-1):
    return torch.softmax(x, dim=axis)
def _gelu(x):
    return torch.nn.functional.gelu(x, approximate="tanh")
def _silu(x):
    return torch.nn.functional.silu(x)
def _sigmoid(x):
    return torch.sigmoid(x)
def _layernorm(x, axis=-1, eps=1e-5):
    m = x.mean(dim=axis, keepdim=True)
    v = x.var(dim=axis, keepdim=True, unbiased=False)
    return (x - m) / torch.sqrt(v + eps)
def _scatter_add(tgt, idx, src, axis=0):
    return tgt.clone().index_add_(axis, idx, src)
def _segment_sum(src, seg, n):
    out = torch.zeros((n,) + src.shape[1:], dtype=src.dtype)
    return out.index_add_(0, seg, src)
def _pad(x, pw):
    flat = tuple(v for pair in reversed(pw) for v in pair)
    return torch.nn.functional.pad(x, flat)

kernel_name = 'gated_mix__grouped_kv_mqa__geglu_ffn__prompt'

def setup_inputs():

    _w = (lambda a: (lambda t: t.to(torch.bfloat16) if t.is_floating_point() else t)(torch.as_tensor(a)))
    def _A_setup():
        B, S, D, H = 1, 2048, 512, 32
        Dh = D // H
        return {
            "x": _w((lambda *s: torch.randn(*s, dtype=torch.bfloat16) * 0.05)(B, S, D)),
            "wq": _w((lambda *s: torch.randn(*s, dtype=torch.bfloat16) * 0.8)(D, H * Dh)),
            "wk": _w((lambda *s: torch.randn(*s, dtype=torch.bfloat16) * 0.8)(D, Dh)),
            "wv": _w((lambda *s: torch.randn(*s, dtype=torch.bfloat16) * 0.05)(D, Dh)),
            "wo": _w((lambda *s: torch.randn(*s, dtype=torch.bfloat16) * 0.05)(H * Dh, D)),
        }
    _A_in = _A_setup()

    def _B_setup():
        B, S, D, F = 1, 2048, 512, 1792
        return {
            "x": _w((lambda *s: torch.randn(*s, dtype=torch.bfloat16) * 0.05)(B, S, D)),
            "w_gate": _w((lambda *s: torch.randn(*s, dtype=torch.bfloat16) * 0.05)(D, F)),
            "w_up": _w((lambda *s: torch.randn(*s, dtype=torch.bfloat16) * 0.05)(D, F)),
            "w_down": _w((lambda *s: torch.randn(*s, dtype=torch.bfloat16) * 0.05)(F, D)),
        }
    _B_in = _B_setup()

    return {
        "A_x": _A_in["x"],
        "A_wq": _A_in["wq"],
        "A_wk": _A_in["wk"],
        "A_wv": _A_in["wv"],
        "A_wo": _A_in["wo"],
        "B_x": _B_in["x"],
        "B_w_gate": _B_in["w_gate"],
        "B_w_up": _B_in["w_up"],
        "B_w_down": _B_in["w_down"],
        "gate_w": _w((lambda *s: torch.randn(*s, dtype=torch.bfloat16) * 0.05)(512) * 16.0),
    }

def reference(A_x, A_wq, A_wk, A_wv, A_wo, B_x, B_w_gate, B_w_up, B_w_down, gate_w):
    def _A_ref(x, wq, wk, wv, wo):
        B, S, D = x.shape
        H = 32
        Dh = D // H
        q = (lambda x, *d: x.permute(*d))((x @ wq).reshape(B, S, H, Dh), 0, 2, 1, 3)
        k = x @ wk
        v = x @ wv
        scores = torch.einsum("bhqd,bkd->bhqk", q, k) * (Dh ** -0.5)
        p = _softmax(scores, axis=-1)
        o = torch.einsum("bhqk,bkd->bhqd", p, v)
        return (lambda x, *d: x.permute(*d))(o, 0, 2, 1, 3).reshape(B, S, H * Dh) @ wo

    def _B_ref(x, w_gate, w_up, w_down):
        return (_gelu(x @ w_gate) * (x @ w_up)) @ w_down

    x = A_x
    g = _sigmoid((x * gate_w).sum(-1, keepdims=True))
    a = _A_ref(x, A_wq, A_wk, A_wv, A_wo)
    b = _B_ref(x, B_w_gate, B_w_up, B_w_down)
    return g * a + (1 - g) * b
```

```python
import sys, struct, math

NAME = "gated_mix__grouped_kv_mqa__geglu_ffn__prompt"

class Opt:
    diag = False
    mapmode = 1
    force_fb = False
    out_pol = ""
    code_pf = True

def f2u(x): return struct.unpack("<I", struct.pack("<f", x))[0]

WS_KV = 0
WS_G = 128 * 1024
WS_HFLAG = 192 * 1024
WS_OF = 1 << 20
WS_HF = 4 << 20
WS_STAMP = 12 << 20
WS_SIZE = 16 << 20
K1 = 1024
L_G, L_U, L_X, L_WQ = 0, 48 * K1, 96 * K1, 144 * K1
L_QX = 32 * K1
L_WD, L_WO, L_KV = 0, 64 * K1, 128 * K1
LL_X, LL_W, LL_GATE, LL_WQ = 0, 128 * K1, 144 * K1, 128 * K1
LDS_BYTES = 160 * K1

SX, SWG, SWU, SWQ, SWS, SWD, SWO, SOUT, SDBG, SWKV, SGATE, SKV = 4, 8, 12, 16, 20, 24, 28, 32, 36, 40, 44, 64
sTMPP = 48
sW, sHI, sLO, sG, sM, sT, sCB = 50, 51, 52, 53, 54, 55, 56
sWK = 57
sWH = 58
sK64 = 59
sVM = 60
sRET = 62
sA, sB, sC, sD = 68, 69, 70, 71
sOFFW, sOFFQ = 72, 73
sHOFF, sWDOFF, sKVOFF, sM0WD, sM0KV, sCNT = 72, 73, 74, 75, 76, 77
sOST, sOLD, sHST = 78, 79, 80
sWDW = 81
sSTAMP = 82

def srd(b): return "s[%d:%d]" % (b, b + 3)
def sp(b): return "s[%d:%d]" % (b, b + 1)
def v(b, n=1): return "v%d" % b if n == 1 else "v[%d:%d]" % (b, b + n - 1)

vL16 = 1
vT0, vT1, vT2, vT3 = 2, 3, 4, 5
vGP, vGC = 6, 7
vKVA = 8
vWDA = 9
vWDV = 10
vONE = 11
vZERO = 12
vFLA = 13
vPOLL = 14
vGA = 15
vQ = 16
vK0 = 20
vV1L = 24
vE = 28
vP = 32
vV = 40
vO = 56
vD = 72
vACC = 104
vS = 104
vH = 136
vAQ = 168
vKF = 168
vWF = 176
vFR = 184
vXA = 224
vWA = 232
vQA = 236
vDX, vDG, vDU, vDQ = 237, 238, 239, 240
vC0 = 242
NV = 256

class Asm:
    def __init__(self):
        self.l = []
        self.vm = []
        self.nstamp = 0
    def e(self, s):
        for x in s.split("\n"):
            x = x.strip()
            if x: self.l.append("    " + x)
    def lab(self, s): self.l.append(s + ":")
    def vmop(self, s, tag):
        self.e(s); self.vm.append(tag)
    def vmn(self, tags):
        if isinstance(tags, str): tags = [tags]
        last = -1
        for i, t in enumerate(self.vm):
            if t in tags: last = i
        return None if last < 0 else len(self.vm) - 1 - last
    def waitvm(self, tags, lgkm=False):
        n = self.vmn(tags)
        if n is None:
            if lgkm: self.e("s_waitcnt lgkmcnt(0)")
            return
        assert n < 64
        self.e("s_waitcnt vmcnt(%d)%s" % (n, " lgkmcnt(0)" if lgkm else ""))
        self.vm = self.vm[len(self.vm) - n:] if n else []
    def wait0(self, lgkm=False):
        self.e("s_waitcnt vmcnt(0)%s" % (" lgkmcnt(0)" if lgkm else "")); self.vm = []
    def stamp(self, i, real=False):
        if Opt.diag:
            self.e("s_waitcnt lgkmcnt(0)")
            self.e("%s %s" % ("s_memrealtime" if real else "s_memtime", sp(sSTAMP + 2 * i)))
            self.e("s_waitcnt lgkmcnt(0)")

def mfma(d, a, b, c):
    return "v_mfma_f32_32x32x16_bf16 %s, %s, %s, %s" % (v(d, 16), v(a, 4), v(b, 4), "0" if c is None else v(c, 16))
def rd128(d, a, off):
    assert 0 <= off < 65536
    return "ds_read_b128 %s, %s offset:%d" % (v(d, 4), v(a), off)
def rdtr(d, a, off):
    assert 0 <= off < 65536
    return "ds_read_b64_tr_b16 %s, %s offset:%d" % (v(d, 2), v(a), off)

def interleave(mf, fill, per=2):
    out = []
    fill = list(fill)
    for i, m in enumerate(mf):
        out.append(m)
        if i < len(mf) - 1:
            out += fill[:per]; fill = fill[per:]
    return out + fill

def prologue(a):
    a.e("s_cmp_ge_u32 s2, 256")
    a.e("s_cbranch_scc1 L_end")
    for reg, off in ((SX, 0), (SWG, 48), (SWU, 56), (SWQ, 8), (SWS, 96), (SWKV, 16), (sTMPP, 24), (SGATE, 72),
                     (SWD, 64), (SWO, 32), (SOUT, 80), (SDBG, 88), (SKV, 96)):
        a.e("s_load_dwordx2 %s, s[0:1], %d" % (sp(reg), off))
    if Opt.diag:
        a.e("s_memrealtime %s" % sp(sSTAMP))
        a.e("s_memtime %s" % sp(sSTAMP + 2))
    a.e("v_lshrrev_b32 v2, 6, v0")
    a.e("v_and_b32 v0, 63, v0")
    a.e("v_readfirstlane_b32 s%d, v2" % sW)
    a.e("v_lshlrev_b32 %s, 4, v0" % v(vL16))
    for reg, size in ((SX, 2048 * 1024), (SWG, 512 * 3584), (SWU, 512 * 3584), (SWQ, 512 * 1024), (SWS, WS_SIZE),
                      (SWKV, 16384), (SGATE, 1024), (SWD, 1792 * 1024), (SWO, 512 * 1024), (SOUT, 2048 * 1024),
                      (SDBG, 256), (SKV, 128 * 1024)):
        a.e("s_mov_b32 s%d, 0x%x" % (reg + 2, size))
        a.e("s_mov_b32 s%d, 0x20000" % (reg + 3))
    a.e("s_and_b32 s%d, s2, 7" % sA)
    a.e("s_lshr_b32 s%d, s2, 3" % sB)
    if Opt.mapmode == 0:
        a.e("s_lshl_b32 s%d, s%d, 1" % (sG, sA))
        a.e("s_and_b32 s%d, s%d, 1" % (sC, sB))
        a.e("s_add_u32 s%d, s%d, s%d" % (sG, sG, sC))
        a.e("s_lshr_b32 s%d, s%d, 1" % (sM, sB))
    elif Opt.mapmode == 1:
        a.e("s_and_b32 s%d, s%d, 1" % (sG, sA))
        a.e("s_lshl_b32 s%d, s%d, 3" % (sG, sG))
        a.e("s_and_b32 s%d, s%d, 7" % (sC, sB))
        a.e("s_add_u32 s%d, s%d, s%d" % (sG, sG, sC))
        a.e("s_lshr_b32 s%d, s%d, 1" % (sM, sA))
        a.e("s_lshl_b32 s%d, s%d, 2" % (sM, sM))
        a.e("s_lshr_b32 s%d, s%d, 3" % (sC, sB))
        a.e("s_add_u32 s%d, s%d, s%d" % (sM, sM, sC))
    else:
        a.e("s_and_b32 s%d, s%d, 3" % (sG, sA))
        a.e("s_lshl_b32 s%d, s%d, 2" % (sG, sG))
        a.e("s_and_b32 s%d, s%d, 3" % (sC, sB))
        a.e("s_add_u32 s%d, s%d, s%d" % (sG, sG, sC))
        a.e("s_lshr_b32 s%d, s%d, 2" % (sM, sA))
        a.e("s_lshl_b32 s%d, s%d, 3" % (sM, sM))
        a.e("s_lshr_b32 s%d, s%d, 2" % (sC, sB))
        a.e("s_add_u32 s%d, s%d, s%d" % (sM, sM, sC))
    a.e("s_lshl_b32 s%d, s%d, 2" % (sT, sA))
    a.e("s_and_b32 s%d, s%d, 3" % (sC, sB))
    a.e("s_add_u32 s%d, s%d, s%d" % (sT, sT, sC))
    a.e("s_lshr_b32 s%d, s%d, 2" % (sCB, sB))
    a.e("s_lshr_b32 s%d, s%d, 2" % (sHI, sW))
    a.e("s_and_b32 s%d, s%d, 3" % (sLO, sW))
    a.e("s_lshl_b32 s%d, s%d, 10" % (sWK, sW))
    a.e("s_lshl_b32 s%d, s%d, 9" % (sWH, sW))
    a.e("s_mov_b32 s%d, 0x10000" % sK64)
    a.e("s_mov_b32 s%d, 0xffff" % sVM)
    a.e("s_mov_b32 s%d, 0xffff" % (sVM + 1))
    if Opt.code_pf:
        a.e("s_cmp_lg_u32 s%d, s%d" % (sC, sW))
        a.e("s_cbranch_scc1 L_nopf")
        a.e("s_getpc_b64 %s" % sp(sRET))
        a.e("s_lshl_b32 s%d, s%d, 13" % (sD, sW))
        a.e("v_lshl_add_u32 v2, v0, 7, s%d" % sD)
        a.e("v_min_u32 v2, CODE_PF_MAX, v2")
        a.e("global_load_dword %s, v2, %s" % (v(vPOLL), sp(sRET)))
        a.lab("L_nopf")
    a.e("s_lshl_b32 s%d, s%d, 2" % (sA, sW))
    a.e("v_lshrrev_b32 v2, 4, v0")
    a.e("v_add_u32 v3, s%d, v2" % sA)
    a.e("v_xor_b32 v3, v3, v0")
    a.e("v_and_b32 v3, 7, v3")
    a.e("v_lshlrev_b32 v3, 4, v3")
    a.e("v_lshrrev_b32 v4, 3, v0")
    a.e("v_lshl_add_u32 v3, v4, 10, v3")
    a.e("s_lshl_b32 s%d, s%d, 17" % (sA, sG))
    a.e("s_lshl_b32 s%d, s%d, 13" % (sB, sW))
    a.e("s_add_u32 s%d, s%d, s%d" % (sA, sA, sB))
    a.e("v_add_u32 %s, s%d, v3" % (v(vDX), sA))
    a.e("s_cmp_ge_u32 s%d, 14" % sM)
    a.e("s_cbranch_scc1 L_light")

def setup_late(a):
    a.e("s_lshl_b32 s%d, s%d, 2" % (sA, sG))
    a.e("s_add_u32 s%d, s%d, s%d" % (sA, sA, sLO))
    a.e("s_lshl_b32 s%d, s%d, 5" % (sB, sA))
    a.e("s_lshl_b32 s%d, s%d, 1" % (sC, sM))
    a.e("s_add_u32 s%d, s%d, s%d" % (sB, sB, sC))
    a.e("s_add_u32 s%d, s%d, s%d" % (sB, sB, sHI))
    a.e("s_lshl_b32 s%d, s%d, 10" % (sB, sB))
    a.e("s_add_u32 s%d, s%d, 0x%x" % (sOST, sB, WS_OF))
    for i in range(4): a.e("v_mov_b32 %s, -1" % v(vP + i))
    a.vmop("buffer_store_dwordx4 %s, %s, %s, s%d offen sc1" % (v(vP, 4), v(vL16), srd(SWS), sOST), "oclr")
    a.e("s_mul_i32 s%d, s%d, 112" % (sB, sA))
    a.e("s_lshl_b32 s%d, s%d, 3" % (sC, sM))
    a.e("s_add_u32 s%d, s%d, s%d" % (sB, sB, sC))
    a.e("s_lshl_b32 s%d, s%d, 2" % (sC, sHI))
    a.e("s_add_u32 s%d, s%d, s%d" % (sB, sB, sC))
    a.e("s_and_b32 s%d, s%d, 1" % (sC, sLO))
    a.e("s_lshl_b32 s%d, s%d, 1" % (sC, sC))
    a.e("s_add_u32 s%d, s%d, s%d" % (sB, sB, sC))
    a.e("s_lshl_b32 s%d, s%d, 10" % (sB, sB))
    a.e("s_add_u32 s%d, s%d, 0x%x" % (sHST, sB, WS_HF))
    a.e("v_and_b32 v2, 31, v0")
    a.e("v_lshrrev_b32 v3, 5, v0")
    a.e("v_lshlrev_b32 %s, 2, v2" % v(vGA))
    a.e("v_bfe_u32 v4, v0, 1, 3")
    a.e("v_xor_b32 v4, v4, v3")
    a.e("v_lshlrev_b32 v4, 4, v4")
    a.e("v_lshl_add_u32 v4, v2, 7, v4")
    a.e("s_lshl_b32 s%d, s%d, 12" % (sA, sLO))
    a.e("v_add_u32 %s, s%d, v4" % (v(vXA), sA))
    a.e("v_bfe_u32 v2, v0, 2, 2")
    a.e("v_and_b32 v4, 3, v0")
    a.e("v_bfe_u32 v5, v0, 4, 1")
    a.e("v_lshl_add_u32 %s, v3, 3, v2" % v(vQA))
    a.e("v_lshlrev_b32 %s, 6, %s" % (v(vQA), v(vQA)))
    a.e("v_lshl_add_u32 %s, v5, 5, %s" % (v(vQA), v(vQA)))
    a.e("v_lshl_add_u32 %s, v4, 3, %s" % (v(vQA), v(vQA)))
    a.e("v_lshl_add_u32 %s, v3, 2, v2" % v(vWDA))
    a.e("v_lshlrev_b32 %s, 6, %s" % (v(vWDA), v(vWDA)))
    a.e("v_lshl_add_u32 %s, v5, 5, %s" % (v(vWDA), v(vWDA)))
    a.e("v_lshl_add_u32 %s, v4, 3, %s" % (v(vWDA), v(vWDA)))
    a.e("s_lshr_b32 s%d, s%d, 1" % (sA, sW))
    a.e("s_lshl_b32 s%d, s%d, 11" % (sA, sA))
    a.e("v_add_u32 %s, s%d, %s" % (v(vWDA), sA, v(vWDA)))

def setup_attn(a):
    a.e("v_add_u32 %s, 0x%x, %s" % (v(vKVA), L_KV, v(vL16)))
    a.e("v_bfe_u32 v2, v0, 2, 3")
    a.e("v_lshlrev_b32 v2, 10, v2")
    a.e("v_lshrrev_b32 v3, 5, v0")
    a.e("v_lshl_add_u32 v2, v3, 6, v2")
    a.e("v_and_b32 v3, 3, v0")
    a.e("v_lshl_add_u32 v2, v3, 4, v2")
    a.e("s_and_b32 s%d, s%d, 1" % (sA, sW))
    a.e("s_lshl_b32 s%d, s%d, 13" % (sA, sA))
    a.e("s_lshl_b32 s%d, s%d, 7" % (sB, sCB))
    a.e("s_add_u32 s%d, s%d, s%d" % (sA, sA, sB))
    a.e("v_add_u32 %s, s%d, v2" % (v(vWDV), sA))
    a.e("v_mov_b32 %s, 1" % v(vONE))
    a.e("v_mov_b32 %s, 0" % v(vZERO))
    a.e("v_min_u32 v2, 13, v0")
    a.e("v_lshlrev_b32 v2, 7, v2")
    a.e("s_lshr_b32 s%d, s%d, 1" % (sA, sT))
    a.e("s_lshl_b32 s%d, s%d, 11" % (sA, sA))
    a.e("s_add_u32 s%d, s%d, 0x%x" % (sA, sA, WS_HFLAG))
    a.e("v_add_u32 %s, s%d, v2" % (v(vFLA), sA))
    a.e("s_lshl_b32 s%d, s%d, 1" % (sA, sT))
    a.e("s_and_b32 s%d, s%d, 1" % (sB, sW))
    a.e("s_add_u32 s%d, s%d, s%d" % (sA, sA, sB))
    a.e("s_lshl_b32 s%d, s%d, 15" % (sB, sA))
    a.e("s_lshr_b32 s%d, s%d, 1" % (sC, sW))
    a.e("s_lshl_b32 s%d, s%d, 13" % (sC, sC))
    a.e("s_add_u32 s%d, s%d, s%d" % (sB, sB, sC))
    a.e("s_add_u32 s%d, s%d, 0x%x" % (sOLD, sB, WS_OF))
    for i in range(16): a.e("v_mov_b32 %s, 0x3f803f80" % v(vV + i))
    for i in range(4): a.e("v_mov_b32 %s, 0x3f803f80" % v(vV1L + i))
    for i in range(4): a.e("v_mov_b32 %s, 0" % v(vE + i))
    for i in range(4, 8): a.e("v_mov_b32 %s, 0" % v(vP + i))
    for i in range(16): a.e("v_mov_b32 %s, 0" % v(vO + i))
    for i in range(32): a.e("v_mov_b32 %s, 0" % v(vD + i))
    c0 = -2.0 * math.sqrt(2.0 / math.pi) * math.log2(math.e)
    a.e("v_mov_b32 %s, 0x%x" % (v(vC0), f2u(c0)))
    a.e("v_mov_b32 %s, 0x%x" % (v(vC0 + 1), f2u(c0 * 0.044715)))

def kv_first_loads(a):
    it = []
    for u in range(2):
        it.append(("s_add_u32 m0, s%d, 0x%x\ns_add_u32 s%d, s%d, 0x%x\nbuffer_load_dwordx4 %s, %s, s%d offen sc1 lds"
                   % (sWK, L_KV + u * 8192, sA, sWK, u * 8192, v(vL16), srd(SKV), sA), "kv%d" % u))
    it.append(("s_mov_b32 s%d, 0x%x\nbuffer_load_dwordx4 %s, %s, %s, s%d offen sc1"
               % (sA, 63 * 2048, v(vK0, 4), v(vL16), srd(SKV), sA), "k0"))
    it.append(("s_mov_b64 exec, %s\nbuffer_load_dwordx4 %s, %s, %s, 0 offen offset:%d sc1\ns_mov_b64 exec, -1"
               % (sp(sVM), v(vV1L, 4), v(vL16), srd(SKV), 1024 + 256), "k0"))
    it.append(("s_lshl_b32 s%d, s%d, 2\ns_add_u32 s%d, s%d, s%d\ns_lshl_b32 s%d, s%d, 7\ns_add_u32 s%d, s%d, 0x%x\n"
               "buffer_load_dword %s, %s, %s, s%d offen sc1"
               % (sA, sG, sA, sA, sLO, sA, sA, sA, sA, WS_G, v(vGP), v(vGA), srd(SWS), sA), "k0"))
    it.append(("s_lshl_b32 s%d, s%d, 1\ns_and_b32 s%d, s%d, 1\ns_add_u32 s%d, s%d, s%d\ns_lshl_b32 s%d, s%d, 7\ns_add_u32 s%d, s%d, 0x%x\n"
               "buffer_load_dword %s, %s, %s, s%d offen sc1"
               % (sA, sT, sB, sW, sA, sA, sB, sA, sA, sA, sA, WS_G, v(vGC), v(vGA), srd(SWS), sA), "k0"))
    return it

def spin_counter(a, name, first_loaded):
    a.e("s_cmp_lg_u32 s%d, 0" % sW)
    a.e("s_cbranch_scc1 L_%s_done" % name)
    a.e("s_mov_b32 s%d, 0x4000" % sB)
    if first_loaded: a.e("s_branch L_%s_chk" % name)
    a.lab("L_%s_re" % name)
    a.e("buffer_load_dword %s, off, %s, 0 sc1" % (v(vPOLL), srd(SDBG)))
    a.e("s_waitcnt vmcnt(0)")
    a.lab("L_%s_chk" % name)
    a.e("v_readfirstlane_b32 s%d, %s" % (sA, v(vPOLL)))
    a.e("s_cmp_ge_u32 s%d, 32" % sA)
    a.e("s_cbranch_scc1 L_%s_done" % name)
    a.e("s_sleep 4")
    a.e("s_sub_u32 s%d, s%d, 1" % (sB, sB))
    a.e("s_cmp_lg_u32 s%d, 0" % sB)
    a.e("s_cbranch_scc1 L_%s_re" % name)
    a.lab("L_%s_done" % name)

def phase1_F(a):
    a.e("v_bfe_u32 v3, v0, 1, 3")
    a.e("v_xor_b32 v3, v3, v2")
    a.e("v_lshlrev_b32 v3, 5, v3")
    a.e("v_and_b32 v4, 1, v0")
    a.e("v_lshl_add_u32 v3, v4, 4, v3")
    a.e("v_xor_b32 v4, 0x80, v3")
    a.e("v_mul_u32_u24 v5, 3584, v2")
    a.e("s_mul_i32 s%d, s%d, %d" % (sA, sW, 4 * 3584))
    a.e("s_lshl_b32 s%d, s%d, 8" % (sB, sM))
    a.e("s_add_u32 s%d, s%d, s%d" % (sA, sA, sB))
    a.e("v_add3_u32 %s, v3, v5, s%d" % (v(vDG), sA))
    a.e("v_add3_u32 %s, v4, v5, s%d" % (v(vDU), sA))
    a.e("v_lshrrev_b32 v3, 2, v0")
    a.e("v_lshlrev_b32 v3, 10, v3")
    a.e("v_and_b32 v4, 3, v0")
    a.e("v_lshl_add_u32 v3, v4, 4, v3")
    a.e("s_lshl_b32 s%d, s%d, 13" % (sA, sW))
    a.e("s_lshl_b32 s%d, s%d, 6" % (sB, sM))
    a.e("s_add_u32 s%d, s%d, s%d" % (sA, sA, sB))
    a.e("v_add_u32 %s, s%d, v3" % (v(vDQ), sA))
    a.e("s_mov_b32 s%d, 0" % sOFFW)
    a.e("s_mov_b32 s%d, 0" % sOFFQ)

    def dmas(c):
        s = c % 3
        t = "c%d" % c
        it = []
        def one(m0src, m0c, vo, rs, so, off=0, pre="s_nop 0", post=""):
            o = (" offset:%d" % off) if off else ""
            return ("s_add_u32 m0, s%d, 0x%x\n%s\nbuffer_load_dwordx4 %s, %s, %s offen%s lds\n%s"
                    % (m0src, m0c - off, pre, v(vo), srd(rs), so, o, post), t)
        adv = "s_add_u32 s%d, s%d, %d" % (sOFFW, sOFFW, 32 * 3584)
        it.append(one(sWK, L_X + s * 16384, vDX, SX, "0", c * 128))
        it.append(one(sWK, L_X + s * 16384 + 8192, vDX, SX, "s%d" % sK64, c * 128))
        it.append(one(sWK, L_G + s * 16384, vDG, SWG, "s%d" % sOFFW))
        it.append(one(sWK, L_U + s * 16384, vDU, SWU, "s%d" % sOFFW))
        it.append(one(sWK, L_G + s * 16384 + 8192, vDG, SWG, "s%d" % sOFFW, pre=adv))
        it.append(one(sWK, L_U + s * 16384 + 8192, vDU, SWU, "s%d" % sOFFW, post=adv))
        it.append(one(sWH, L_WQ + s * 4096, vDQ, SWQ, "s%d" % sOFFQ, pre="s_mov_b32 exec_hi, 0",
                      post="s_mov_b32 exec_hi, -1\ns_add_u32 s%d, s%d, s%d" % (sOFFQ, sOFFQ, sK64)))
        return it

    a.e("s_waitcnt lgkmcnt(0)")
    for c in range(3):
        for s, t in dmas(c): a.vmop(s, t)
    setup_late(a)
    a.e("v_lshl_add_u32 %s, v3, 3, v2" % v(vWA))
    a.e("v_lshlrev_b32 %s, 8, %s" % (v(vWA), v(vWA)))
    a.e("v_lshl_add_u32 %s, v4, 3, %s" % (v(vWA), v(vWA)))
    a.e("v_mul_u32_u24 v4, 0x%x, v5" % (L_U - L_G))
    a.e("v_add_u32 %s, v4, %s" % (v(vWA), v(vWA)))
    a.e("v_lshl_add_u32 v2, v5, 2, v2")
    a.e("s_lshl_b32 s%d, s%d, 2" % (sA, sHI))
    a.e("s_and_b32 s%d, s%d, 1" % (sB, sLO))
    a.e("s_lshl_b32 s%d, s%d, 1" % (sB, sB))
    a.e("s_add_u32 s%d, s%d, s%d" % (sA, sA, sB))
    a.e("v_xor_b32 v2, s%d, v2" % sA)
    a.e("v_lshl_add_u32 %s, v2, 5, %s" % (v(vWA), v(vWA)))
    a.e("s_lshl_b32 s%d, s%d, 13" % (sA, sHI))
    a.e("s_xor_b32 s%d, s%d, 0x2000" % (sB, sA))
    a.e("v_add_u32 %s, s%d, %s" % (v(vWA + 2), sB, v(vWA)))
    a.e("v_add_u32 %s, s%d, %s" % (v(vWA), sA, v(vWA)))
    a.e("v_xor_b32 %s, 32, %s" % (v(vWA + 1), v(vWA)))
    a.e("v_xor_b32 %s, 32, %s" % (v(vWA + 3), v(vWA + 2)))
    a.e("s_lshl_b32 s%d, s%d, 6" % (sA, sHI))
    a.e("s_add_u32 s%d, s%d, 0x%x" % (sA, sA, L_X))
    a.e("v_xor_b32 %s, s%d, %s" % (v(vXA), sA, v(vXA)))
    for s in range(1, 4): a.e("v_xor_b32 %s, %d, %s" % (v(vXA + s), 32 * s, v(vXA)))
    for s in range(4): a.e("v_xor_b32 %s, 0x1000, %s" % (v(vXA + 4 + s), v(vXA + s)))
    a.e("s_lshl_b32 s%d, s%d, 11" % (sA, sHI))
    a.e("s_add_u32 s%d, s%d, 0x%x" % (sA, sA, L_WQ))
    a.e("v_add_u32 %s, s%d, %s" % (v(vQA), sA, v(vQA)))
    setup_attn(a)

    def fr(k):
        b = vFR + 20 * (k % 2)
        return dict(x0=b, x1=b + 4, w0=b + 8, w1=b + 12, q=b + 16)
    def reads(k):
        c, s = divmod(k, 4); f = fr(k); sl = c % 3
        wo = sl * 16384 + (s & 1) * 4096
        wa = vWA + 2 * (s >> 1)
        r = [rdtr(f['w0'], wa, wo), rdtr(f['w0'] + 2, wa, wo + 1024),
             rd128(f['x0'], vXA + s, sl * 16384), rd128(f['x1'], vXA + 4 + s, sl * 16384),
             rdtr(f['w1'], wa + 1, wo), rdtr(f['w1'] + 2, wa + 1, wo + 1024)]
        if s < 2:
            r += [rdtr(f['q'], vQA, sl * 4096 + s * 1024), rdtr(f['q'] + 2, vQA, sl * 4096 + s * 1024 + 256)]
        return r
    a.stamp(2)
    a.waitvm("c0")
    a.e("s_barrier")
    a.stamp(3)
    for r in reads(0): a.e(r)
    pend = []
    for k in range(32):
        c, s = divmod(k, 4); f = fr(k)
        if s == 3 and c < 7:
            if c == 6:
                a.wait0(lgkm=True)
                spin_counter(a, "kvf", True)
            else:
                a.waitvm("c%d" % (c + 1), lgkm=True)
            a.e("s_barrier")
            if c + 3 < 8: pend += dmas(c + 3)
            if c == 6: pend += kv_first_loads(a)
        else:
            a.e("s_waitcnt lgkmcnt(0)")
        z = lambda x: None if k == 0 else x
        mf = [mfma(vACC, f['w0'], f['x0'], z(vACC)), mfma(vACC + 16, f['w0'], f['x1'], z(vACC + 16)),
              mfma(vACC + 32, f['w1'], f['x0'], z(vACC + 32)), mfma(vACC + 48, f['w1'], f['x1'], z(vACC + 48))]
        if s < 2: mf.append(mfma(vAQ, f['q'], f['x0'], z(vAQ)))
        for x in interleave(mf, reads(k + 1) if k < 31 else []): a.e(x)
        for s_, t_ in pend[:2]: a.vmop(s_, t_)
        pend = pend[2:]
        if k == 23:
            a.e("s_cmp_lg_u32 s%d, 0" % sW)
            a.e("s_cbranch_scc1 L_nopoll")
            a.e("buffer_load_dword %s, off, %s, 0 sc1" % (v(vPOLL), srd(SDBG)))
            a.lab("L_nopoll")
    assert not pend
    a.stamp(4)

def phase1_L(a):
    a.lab("L_light")
    a.vm = []
    a.e("s_waitcnt lgkmcnt(0)")
    a.e("s_cmp_eq_u32 s%d, 14" % sM)
    a.e("s_cselect_b32 s%d, s%d, s%d" % (SWKV, SWKV, sTMPP))
    a.e("s_cselect_b32 s%d, s%d, s%d" % (SWKV + 1, SWKV + 1, sTMPP + 1))
    for u in range(2):
        a.vmop("s_add_u32 m0, s%d, 0x%x\ns_add_u32 s%d, s%d, %d\nbuffer_load_dwordx4 %s, %s, s%d offen lds"
               % (sWK, LL_W + u * 8192, sA, sWK, u * 8192, v(vL16), srd(SWKV), sA), "w")
    a.vmop("s_mov_b32 m0, 0x%x\ns_nop 0\nbuffer_load_dwordx4 %s, %s, 0 offen lds" % (LL_GATE, v(vL16), srd(SGATE)), "w")
    for c in range(8):
        for h in range(2):
            a.vmop("s_add_u32 m0, s%d, 0x%x\ns_nop 0\nbuffer_load_dwordx4 %s, %s, %s offen offset:%d lds"
                   % (sWK, LL_X + c * 16384 + h * 8192 - c * 128, v(vDX), srd(SX), ("s%d" % sK64) if h else "0", c * 128),
                   "c%d" % c)
    setup_late(a)
    a.e("v_lshl_add_u32 %s, v3, 3, v2" % v(vWA))
    a.e("v_lshlrev_b32 %s, 5, %s" % (v(vWA), v(vWA)))
    a.e("v_lshl_add_u32 %s, v4, 3, %s" % (v(vWA), v(vWA)))
    a.e("v_add_u32 %s, 0x%x, %s" % (v(vWA), LL_W, v(vWA)))
    a.e("v_lshlrev_b32 %s, 4, v3" % v(vWA + 1))
    a.e("v_add_u32 %s, 0x%x, %s" % (v(vWA + 1), LL_GATE, v(vWA + 1)))
    for s in range(1, 4): a.e("v_xor_b32 %s, %d, %s" % (v(vXA + s), 32 * s, v(vXA)))
    for s in range(4): a.e("v_add_u32 %s, 0x10000, %s" % (v(vXA + 4 + s), v(vXA + s)))
    setup_attn(a)
    a.e("s_cmp_lg_u32 s%d, 14" % sM)
    a.e("s_cbranch_scc1 L_nozf")
    a.e("s_cmp_lg_u32 s%d, 4" % sW)
    a.e("s_cbranch_scc1 L_nozf")
    a.e("v_lshlrev_b32 v2, 7, v0")
    a.e("s_lshl_b32 s%d, s%d, 11" % (sA, sG))
    a.e("s_add_u32 s%d, s%d, 0x%x" % (sA, sA, WS_HFLAG))
    a.e("s_mov_b64 exec, 0xffff")
    a.e("buffer_store_dword %s, v2, %s, s%d offen sc1" % (v(vZERO), srd(SWS), sA))
    a.e("s_mov_b64 exec, -1")
    a.lab("L_nozf")
    a.stamp(2)
    vm0 = list(a.vm)
    a.e("s_cmp_lg_u32 s%d, 0" % sHI)
    a.e("s_cbranch_scc1 L_lB")
    a.e("s_not_b64 %s, %s" % (sp(sTMPP), sp(sVM)))
    a.e("s_cmp_lg_u32 s%d, 14" % sM)
    a.e("s_cbranch_scc1 L_lV")
    def chain(kind):
        a.vm = list(vm0)
        def fr(k):
            b = vFR + 8 * (k % 4)
            return b, b + 4
        def reads(k):
            c, s = divmod(k, 4); x, w = fr(k)
            r = [rd128(x, vXA + s + 4 * (c >> 2), (c & 3) * 16384), rdtr(w, vWA, k * 512), rdtr(w + 2, vWA, k * 512 + 128)]
            if kind == "K":
                r += ["s_mov_b64 exec, %s" % sp(sTMPP), rd128(w, vWA + 1, k * 32), "s_mov_b64 exec, -1"]
            return r
        for q in range(4):
            a.waitvm("c%d" % (2 * q + 1))
            a.e("s_barrier")
            if q == 0: a.stamp(3)
            nr = 4 if kind == "K" else 3
            for k in range(8 * q, 8 * q + 2):
                for r in reads(k): a.e(r)
            for k in range(8 * q, 8 * q + 8):
                if k + 2 < 8 * q + 8:
                    for r in reads(k + 2): a.e(r)
                left = min(2, 8 * q + 7 - k)
                a.e("s_waitcnt lgkmcnt(%d)" % (left * nr))
                x, w = fr(k)
                cc = None if k == 0 else vACC
                a.e(mfma(vACC, w, x, cc) if kind == "K" else mfma(vACC, x, w, cc))
        a.e("s_lshl_b32 s%d, s%d, 2" % (sA, sG))
        a.e("s_add_u32 s%d, s%d, s%d" % (sA, sA, sLO))
        a.e("s_nop 12")
        if kind == "K":
            a.e("s_mov_b32 s%d, 0x%x" % (sC, f2u(0.25 * math.log2(math.e))))
            for i in range(8): a.e("v_mul_f32 %s, s%d, %s" % (v(vACC + i), sC, v(vACC + i)))
            a.e("v_mul_f32 %s, 0x%x, %s" % (v(vACC + 8), f2u(-math.log2(math.e)), v(vACC + 8)))
            a.e("v_exp_f32 %s, %s" % (v(vACC + 8), v(vACC + 8)))
            for i in range(4): a.e("v_cvt_pk_bf16_f32 %s, %s, %s" % (v(vFR + i), v(vACC + 2 * i), v(vACC + 2 * i + 1)))
            a.e("v_add_f32 %s, 1.0, %s" % (v(vACC + 8), v(vACC + 8)))
            a.e("v_rcp_f32 %s, %s" % (v(vACC + 8), v(vACC + 8)))
            a.e("s_add_u32 s%d, s%d, 63" % (sB, sA))
            a.e("s_and_b32 s%d, s%d, 63" % (sB, sB))
            a.e("s_lshl_b32 s%d, s%d, 11" % (sB, sB))
            a.e("buffer_store_dwordx4 %s, %s, %s, s%d offen sc1" % (v(vFR, 4), v(vL16), srd(SKV), sB))
            a.e("s_lshl_b32 s%d, s%d, 7" % (sB, sA))
            a.e("s_add_u32 s%d, s%d, 0x%x" % (sB, sB, WS_G))
            a.e("s_mov_b32 exec_hi, 0")
            a.e("buffer_store_dword %s, %s, %s, s%d offen sc1" % (v(vACC + 8), v(vGA), srd(SWS), sB))
            a.e("s_mov_b64 exec, -1")
        else:
            for i in range(8): a.e("v_cvt_pk_bf16_f32 %s, %s, %s" % (v(vFR + i), v(vACC + 2 * i), v(vACC + 2 * i + 1)))
            a.e("v_bfe_u32 v2, v0, 4, 1")
            a.e("v_add_u32 v2, s%d, v2" % sA)
            a.e("v_and_b32 v2, 63, v2")
            a.e("v_lshl_add_u32 v2, v2, 11, %s" % v(vL16))
            for i in range(4): a.e("v_cndmask_b32 %s, %s, %s, %s" % (v(vFR + i), v(vFR + 4 + i), v(vFR + i), sp(sVM)))
            a.e("buffer_store_dwordx4 %s, v2, %s, 0 offen offset:1024 sc1" % (v(vFR, 4), srd(SKV)))
        a.e("s_branch L_lJ")
    chain("K")
    a.lab("L_lV")
    chain("V")
    a.lab("L_lB")
    a.vm = list(vm0)
    for q in range(4):
        a.waitvm("c%d" % (2 * q + 1))
        a.e("s_barrier")
        if q == 0: a.stamp(3)
    a.lab("L_lJ")
    a.e("v_lshrrev_b32 v3, 2, v0")
    a.e("v_lshlrev_b32 v3, 10, v3")
    a.e("v_and_b32 v4, 3, v0")
    a.e("v_lshl_add_u32 v3, v4, 4, v3")
    a.e("s_lshl_b32 s%d, s%d, 14" % (sA, sW))
    a.e("s_lshl_b32 s%d, s%d, 6" % (sB, sM))
    a.e("s_add_u32 s%d, s%d, s%d" % (sA, sA, sB))
    a.e("v_add_u32 %s, s%d, v3" % (v(vDQ), sA))
    a.wait0(lgkm=True)
    a.e("s_barrier")
    a.e("s_cmp_lg_u32 s%d, 0" % sW)
    a.e("s_cbranch_scc1 L_noat")
    a.e("s_mov_b64 exec, 1")
    a.e("buffer_atomic_add %s, off, %s, 0 sc1" % (v(vONE), srd(SDBG)))
    a.e("s_mov_b64 exec, -1")
    a.lab("L_noat")
    for p in range(4):
        a.e("s_add_u32 m0, s%d, 0x%x" % (sWK, LL_WQ + p * 8192))
        a.e("s_mov_b32 s%d, 0x%x" % (sA, p * 128 * 1024))
        a.e("buffer_load_dwordx4 %s, %s, s%d offen lds" % (v(vDQ), srd(SWQ), sA))
    a.e("s_lshl_b32 s%d, s%d, 16" % (sA, sHI))
    for s in range(4): a.e("v_add_u32 %s, s%d, %s" % (v(vXA + s), sA, v(vXA + s)))
    a.e("s_lshl_b32 s%d, s%d, 14" % (sA, sHI))
    a.e("s_add_u32 s%d, s%d, 0x%x" % (sA, sA, LL_WQ))
    a.e("v_add_u32 %s, s%d, %s" % (v(vQA), sA, v(vQA)))
    a.wait0()
    a.e("s_barrier")
    def fr(k):
        b = vFR + 8 * (k % 4)
        return b, b + 4
    def reads(k):
        c, s = divmod(k, 4); x, w = fr(k)
        return [rd128(x, vXA + s, c * 16384), rdtr(w, vQA, k * 1024), rdtr(w + 2, vQA, k * 1024 + 256)]
    for k in range(2):
        for r in reads(k): a.e(r)
    for k in range(16):
        if k + 2 < 16:
            for r in reads(k + 2): a.e(r)
        a.e("s_waitcnt lgkmcnt(%d)" % (3 * min(2, 15 - k)))
        x, w = fr(k)
        a.e(mfma(vAQ, w, x, None if k == 0 else vAQ))
    spin_counter(a, "kvl", False)
    a.e("s_barrier")
    for s, t in kv_first_loads(a): a.e(s)
    a.wait0()
    a.stamp(4)
    a.e("s_branch L_join")

def gelu_tile(a, ti):
    acc = vACC + 16 * ti
    t = vFR
    o = vFR + 8 + 4 * ti
    pk = lambda r: v(r, 2)
    for i in range(4): a.e("v_pk_mul_f32 %s, %s, %s" % (pk(t + 2 * i), pk(acc + 2 * i), pk(acc + 2 * i)))
    for i in range(4): a.e("v_pk_fma_f32 %s, %s, %s, %s op_sel:[0,1,0] op_sel_hi:[1,1,0]" % (pk(t + 2 * i), pk(t + 2 * i), pk(vC0), pk(vC0)))
    for i in range(4): a.e("v_pk_mul_f32 %s, %s, %s" % (pk(t + 2 * i), pk(t + 2 * i), pk(acc + 2 * i)))
    for i in range(8): a.e("v_exp_f32 %s, %s" % (v(t + i), v(t + i)))
    for i in range(4): a.e("v_pk_add_f32 %s, %s, 1.0 op_sel_hi:[1,0]" % (pk(t + 2 * i), pk(t + 2 * i)))
    for i in range(8): a.e("v_rcp_f32 %s, %s" % (v(t + i), v(t + i)))
    for i in range(4): a.e("v_pk_mul_f32 %s, %s, %s" % (pk(acc + 2 * i), pk(acc + 2 * i), pk(acc + 8 + 2 * i)))
    for i in range(4): a.e("v_pk_mul_f32 %s, %s, %s" % (pk(acc + 2 * i), pk(acc + 2 * i), pk(t + 2 * i)))
    for i in range(4): a.e("v_cvt_pk_bf16_f32 %s, %s, %s" % (v(o + i), v(acc + 2 * i), v(acc + 2 * i + 1)))
    aa, bb = ti >> 1, ti & 1
    a.vmop("buffer_store_dwordx4 %s, %s, %s, s%d offen offset:%d sc1" % (v(o, 4), v(vL16), srd(SWS), sD if bb else sHST, aa * 1024), "hst")

def gelu_sub(a):
    a.lab("L_gelu")
    a.e("s_bitcmp1_b32 s%d, 0" % sLO)
    a.e("s_cselect_b32 s%d, 0x%x, 0x%x" % (sD, (-112 * 1024) & 0xffffffff, 0))
    a.e("s_cselect_b32 s%d, 0, 0x%x" % (sC, 112 * 1024))
    a.e("s_add_u32 s%d, s%d, s%d" % (sD, sD, sC))
    a.e("s_add_u32 s%d, s%d, s%d" % (sD, sD, sHST))
    for ti in range(4): gelu_tile(a, ti)
    a.e("s_setpc_b64 %s" % sp(sRET))

def Yseg(hset, toggle=False):
    out = []
    for t in range(2):
        S, Sn = vS + 16 * t, vS + 16 * (1 - t)
        K, V0, V1 = vKF + 4 * t, vV + 8 * t, vV + 8 * t + 4
        for j in range(8):
            out.append("v_exp_f32 %s, %s" % (v(vE + 2 * (j % 2)), v(S + 2 * j)))
            out.append("v_exp_f32 %s, %s" % (v(vE + 2 * (j % 2) + 1), v(S + 2 * j + 1)))
            jj = (j - 1) % 8
            out.append("v_cvt_pk_bf16_f32 %s, %s, %s" % (v(vP + jj), v(vE + 2 * (jj % 2)), v(vE + 2 * (jj % 2) + 1)))
            if j == 1: out.append(mfma(vO, V1, vP + 4, vO))
            if j == 3: out.append(mfma(Sn, K, vQ, None))
            if hset is None:
                if j == 7: out.append(mfma(vO, V0, vP, vO))
            else:
                if j == 5: out.append(mfma(vO, V0, vP, vO))
                if j == 6 and t == 1 and toggle:
                    out.append("v_xor_b32 %s, 0x4000, %s" % (v(vKVA), v(vKVA)))
                    out.append("v_xor_b32 %s, 0x8000, %s" % (v(vWDA), v(vWDA)))
                if j == 7: out.append(mfma(vD + 16 * t, vWF + 4 * t, vH + 4 * hset, vD + 16 * t))
    return out

def kv_reads(off):
    r = [rd128(vKF, vKVA, off), rd128(vKF + 4, vKVA, off + 2048), "s_mov_b64 exec, %s" % sp(sVM)]
    for t in range(2):
        r += [rd128(vV + 8 * t, vKVA, off + 2048 * t + 1024), rd128(vV + 8 * t + 4, vKVA, off + 2048 * t + 1280)]
    r.append("s_mov_b64 exec, -1")
    return r
def wd_reads(dst, addr, off):
    r = []
    for c in range(2):
        r += [rdtr(dst + 4 * c, addr, off + 512 * c), rdtr(dst + 4 * c + 2, addr, off + 512 * c + 1024)]
    return r

def attention(a, role):
    A = role == "A"
    def kvdma(u):
        a.vmop("s_add_u32 m0, s%d, 0x%x\ns_add_u32 s%d, s%d, 0x%x\nbuffer_load_dwordx4 %s, %s, s%d offen sc1 lds"
               % (sWK, L_KV + (u % 4) * 8192, sA, sWK, u * 8192, v(vL16), srd(SKV), sA), "kv%d" % u)
    def wddma(sg):
        a.vmop("s_add_u32 m0, s%d, 0x%x\ns_add_u32 s%d, s%d, 0x%x\nbuffer_load_dwordx4 %s, %s, s%d offen lds"
               % (sWK, L_WD + ((sg + 3) % 8) * 8192, sA, sWDOFF, sg * 16384, v(vWDV), srd(SWD), sA), "wd%d" % sg)
    def wodma(j):
        a.vmop("s_add_u32 m0, s%d, 0x%x\ns_add_u32 s%d, s%d, 0x%x\nbuffer_load_dwordx4 %s, %s, s%d offen lds"
               % (sWK, L_WO + j * 8192, sA, sB, j * 16384, v(vWDV), srd(SWO), sA), "wo")
    def hload(sg, dst):
        a.vmop("s_add_u32 s%d, s%d, 0x%x\nbuffer_load_dwordx4 %s, %s, %s, s%d offen sc1"
               % (sA, sHOFF, sg * 1024, v(dst, 4), v(vL16), srd(SWS), sA), "h%d" % sg)
    for n in range(11):
        if not A and n == 0: a.e("s_barrier")
        tags = []
        if A and n % 2 == 1: tags.append("kv%d" % ((n + 1) // 2))
        if not A and n % 2 == 0: tags.append("kv%d" % ((n + 2) // 2))
        if n == 2: tags.append("hst")
        if n == 10: tags.append("wd0")
        if n == 8 and A:
            a.e("s_cmp_lg_u32 s%d, 0" % sW)
            a.e("s_cbranch_scc1 L_hf_done")
            a.e("s_mov_b32 s%d, 0x4000" % sB)
            a.e("s_waitcnt vmcnt(2)")
            a.lab("L_hf_chk")
            a.e("v_cmp_ne_u32 vcc, 1, %s" % v(vPOLL))
            a.e("s_cbranch_vccz L_hf_done")
            a.e("s_sleep 2")
            a.e("buffer_load_dword %s, %s, %s, 0 offen sc1" % (v(vPOLL), v(vFLA), srd(SWS)))
            a.e("s_sub_u32 s%d, s%d, 1" % (sB, sB))
            a.e("s_cmp_lg_u32 s%d, 0" % sB)
            a.e("s_waitcnt vmcnt(0)")
            a.e("s_cbranch_scc1 L_hf_chk")
            a.lab("L_hf_done")
        a.waitvm(tags)
        if n == 3 and not A:
            a.e("s_cmp_ge_u32 s%d, 14" % sM)
            a.e("s_cbranch_scc1 L_nohf")
            a.e("s_cmp_lg_u32 s%d, 4" % sW)
            a.e("s_cbranch_scc1 L_nohf")
            a.e("s_lshl_b32 s%d, s%d, 4" % (sA, sG))
            a.e("s_add_u32 s%d, s%d, s%d" % (sA, sA, sM))
            a.e("s_lshl_b32 s%d, s%d, 7" % (sA, sA))
            a.e("s_add_u32 s%d, s%d, 0x%x" % (sA, sA, WS_HFLAG))
            a.e("s_mov_b64 exec, 1")
            a.e("buffer_store_dword %s, off, %s, s%d sc1" % (v(vONE), srd(SWS), sA))
            a.e("s_mov_b64 exec, -1")
            a.lab("L_nohf")
        for r in kv_reads((n % 8) * 4096): a.e(r)
        if n == 7 and A:
            a.e("s_cmp_lg_u32 s%d, 0" % sW)
            a.e("s_cbranch_scc1 L_hf_nol")
            a.e("buffer_load_dword %s, %s, %s, 0 offen sc1" % (v(vPOLL), v(vFLA), srd(SWS)))
            a.lab("L_hf_nol")
        if n == 0:
            kvdma(2); kvdma(3)
            a.e("s_lshr_b32 s%d, s%d, 1" % (sC, sW))
            a.e("s_mul_i32 s%d, s%d, %d" % (sWDOFF, sC, 448 * 1024))
            a.e("s_lshl_b32 s%d, s%d, 1" % (sA, sT))
            a.e("s_and_b32 s%d, s%d, 1" % (sB, sW))
            a.e("s_add_u32 s%d, s%d, s%d" % (sA, sA, sB))
            a.e("s_mul_i32 s%d, s%d, 112" % (sA, sA))
            a.e("s_mul_i32 s%d, s%d, 28" % (sB, sC))
            a.e("s_add_u32 s%d, s%d, s%d" % (sA, sA, sB))
            a.e("s_lshl_b32 s%d, s%d, 10" % (sA, sA))
            a.e("s_add_u32 s%d, s%d, 0x%x" % (sHOFF, sA, WS_HF))
        if (A and n % 2 == 1 and n >= 3): kvdma((n + 5) // 2)
        if (not A and n % 2 == 0 and n >= 2): kvdma((n + 6) // 2)
        if 1 <= n <= 3:
            a.e("s_lshr_b32 s%d, s%d, 1" % (sB, sW))
            a.e("s_lshl_b32 s%d, s%d, 17" % (sB, sB))
            for j in {1: (0, 1, 2), 2: (3, 4, 5), 3: (6, 7)}[n]: wodma(j)
        if n >= 4: wddma(n - 4)
        if n == 9:
            hload(0, vH + 12); hload(1, vH + 0); hload(24, vH + 16); hload(25, vH + 20)
        if n == 10:
            hload(26, vH + 24); hload(27, vH + 28); hload(2, vH + 4)
        a.e("s_waitcnt lgkmcnt(0)")
        a.e("s_call_b64 %s, L_Y%s" % (sp(sRET), role))
    a.e("s_add_u32 s%d, s%d, 0x%x" % (sHOFF, sHOFF, 3 * 1024))
    a.e("s_add_u32 s%d, s%d, 0x%x" % (sWDOFF, sWDOFF, 7 * 16384))
    a.e("s_mov_b32 s%d, 0x%x" % (sM0WD, ((7 + 3) % 8) * 8192))
    u0 = 8 if A else 9
    a.e("s_add_u32 s%d, s%d, 0x%x" % (sKVOFF, sWK, u0 * 8192))
    a.e("s_mov_b32 s%d, 6" % sCNT)
    a.waitvm(["h0", "wd1", "kv6"] if A else ["h0", "wd1"])
    a.e("s_branch L_loop%s_in" % role)
    a.l.append(".p2align 6")
    a.lab("L_loop%s" % role)
    for p in range(4):
        a.e("s_waitcnt vmcnt(5)")
        if p == 3: a.lab("L_loop%s_in" % role)
        for r in kv_reads(p * 4096): a.e(r)
        for r in wd_reads(vWF, vWDA, p * 8192): a.e(r)
        a.e("buffer_load_dwordx4 %s, %s, %s, s%d offen sc1" % (v(vH + 4 * ((p + 3) % 4), 4), v(vL16), srd(SWS), sHOFF))
        a.e("s_add_u32 m0, s%d, s%d" % (sWK, sM0WD))
        a.e("s_add_u32 s%d, s%d, 0x400" % (sHOFF, sHOFF))
        a.e("buffer_load_dwordx4 %s, %s, s%d offen lds" % (v(vWDV), srd(SWD), sWDOFF))
        a.e("s_add_u32 s%d, s%d, 0x4000" % (sWDOFF, sWDOFF))
        a.e("s_add_u32 s%d, s%d, 0x2000" % (sM0WD, sM0WD))
        a.e("s_and_b32 s%d, s%d, 0xffff" % (sM0WD, sM0WD))
        if (p % 2 == 1) == A:
            a.e("s_and_b32 s%d, s%d, 0x7fff" % (sA, sKVOFF))
            a.e("s_add_u32 m0, s%d, 0x%x" % (sA, L_KV))
            a.e("s_nop 0")
            a.e("buffer_load_dwordx4 %s, %s, s%d offen sc1 lds" % (v(vL16), srd(SKV), sKVOFF))
            a.e("s_add_u32 s%d, s%d, 0x2000" % (sKVOFF, sKVOFF))
        if p == 3:
            a.e("s_sub_u32 s%d, s%d, 1" % (sCNT, sCNT))
            a.e("s_cmp_lg_u32 s%d, 0" % sCNT)
        a.e("s_waitcnt lgkmcnt(0)")
        if A: a.e("s_barrier")
        for x in Yseg(p, toggle=(p == 3)): a.e(x)
        if not A:
            if p == 3: a.e("s_cbranch_scc0 L_tail")
            a.e("s_barrier")
    a.e(("s_cbranch_scc1 L_loop%s" if A else "s_branch L_loop%s") % role)

def ysubs(a):
    for role in "AB":
        a.l.append(".p2align 6")
        a.lab("L_Y%s" % role)
        if role == "A": a.e("s_barrier")
        for x in Yseg(None): a.e(x)
        if role == "B": a.e("s_barrier")
        a.e("s_setpc_b64 %s" % sp(sRET))

def transition(a):
    a.lab("L_join")
    a.e("s_lshl_b32 s%d, s%d, 11" % (sA, sW))
    a.e("s_add_u32 s%d, s%d, 0x%x" % (sA, sA, L_QX))
    a.e("v_add_u32 v2, s%d, %s" % (sA, v(vL16)))
    a.e("v_xor_b32 v3, 0x2000, v2")
    a.e("s_cmp_lg_u32 s%d, 0" % sHI)
    a.e("s_cbranch_scc1 L_trB")
    vm0 = list(a.vm)
    for role in "AB":
        a.vm = list(vm0)
        A = role == "A"
        if not A: a.lab("L_trB")
        keep, send = (vAQ, vAQ + 8) if A else (vAQ + 8, vAQ)
        a.e("s_nop 7")
        a.e("ds_write_b128 v2, %s" % v(send, 4))
        a.e("ds_write_b128 v2, %s offset:1024" % v(send + 4, 4))
        a.e("s_waitcnt lgkmcnt(0)")
        a.e("s_barrier")
        a.e(rd128(send, 3, 0))
        a.e(rd128(send + 4, 3, 1024))
        if A: a.e("s_setprio 1")
        def qfin():
            a.e("s_waitcnt lgkmcnt(0)")
            for i in range(4): a.e("v_pk_add_f32 %s, %s, %s" % (v(keep + 2 * i, 2), v(keep + 2 * i, 2), v(send + 2 * i, 2)))
            for i in range(4): a.e("v_cvt_pk_bf16_f32 %s, %s, %s" % (v(vQ + i), v(keep + 2 * i), v(keep + 2 * i + 1)))
        def gelu():
            a.e("s_cmp_ge_u32 s%d, 14" % sM)
            a.e("s_cbranch_scc1 L_nog%s" % role)
            a.e("s_call_b64 %s, L_gelu" % sp(sRET))
            a.vm += ["hst"] * 4
            a.lab("L_nog%s" % role)
        if A:
            gelu(); qfin()
            a.waitvm(["k0", "kv0", "kv1"])
            a.e("s_barrier")
        else:
            a.waitvm(["k0", "kv0", "kv1"], lgkm=True)
            a.e("s_barrier")
            gelu(); qfin()
            a.e("s_nop 1")
        a.e(mfma(vS, vK0, vQ, None))
        a.stamp(5)
        attention(a, role)
        if A: a.e("s_branch L_tail")

def tail(a):
    a.lab("L_tail")
    a.e("v_cvt_pk_bf16_f32 %s, %s, %s" % (v(vP + 7), v(vE + 2), v(vE + 3)))
    a.stamp(6)
    a.e("s_setprio 0")
    a.e("s_mov_b32 s%d, 0x%x" % (sC, f2u(2.0 ** -16)))
    a.e(mfma(vO, vV1L, vP + 4, vO))
    a.e("s_mov_b32 s%d, 0x%x" % (sD, f2u(2.0 ** 100)))
    a.e("s_nop 10")
    t = vFR
    a.e("v_rcp_f32 %s, %s" % (v(t + 2), v(vO + 8)))
    a.e("v_pk_mul_f32 %s, %s, 0 op_sel_hi:[1,0]" % (v(t, 2), v(vO, 2)))
    for i in range(1, 4): a.e("v_pk_fma_f32 %s, %s, 0, %s op_sel_hi:[1,0,1]" % (v(t, 2), v(vO + 2 * i, 2), v(t, 2)))
    a.e("v_add_f32 %s, %s, %s" % (v(t), v(t), v(t + 1)))
    a.e("v_add_f32 %s, %s, %s" % (v(t), v(t), v(vO + 8)))
    a.e("v_cmp_nle_f32 vcc, s%d, %s" % (sC, v(t)))
    a.e("v_cmp_nge_f32 %s, s%d, %s" % (sp(sTMPP), sD, v(t)))
    a.e("s_or_b64 vcc, vcc, %s" % sp(sTMPP))
    a.e("s_branch L_fb" if Opt.force_fb else "s_cbranch_scc1 L_fb")
    a.lab("L_fbret")
    a.e("v_mul_f32 %s, %s, %s" % (v(t + 2), v(t + 2), v(vGP)))
    for i in range(4): a.e("v_pk_mul_f32 %s, %s, %s op_sel_hi:[1,0]" % (v(vO + 2 * i, 2), v(vO + 2 * i, 2), v(t + 2, 2)))
    for i in range(4): a.e("v_cvt_pk_bf16_f32 %s, %s, %s" % (v(vP + i), v(vO + 2 * i), v(vO + 2 * i + 1)))
    for i in range(4): a.e("v_min_u32 %s, -2, %s" % (v(vP + i), v(vP + i)))
    a.e("buffer_store_dwordx4 %s, %s, %s, s%d offen sc1" % (v(vP, 4), v(vL16), srd(SWS), sOST))
    a.e("s_waitcnt vmcnt(1)")
    a.e("s_barrier")
    hreg = {21: vH + 0, 22: vH + 4, 23: vH + 8, 24: vH + 16, 25: vH + 20, 26: vH + 24, 27: vH + 28}
    wf = [vFR, vFR + 8, vFR + 16]
    for i in range(2):
        for r in wd_reads(wf[i], vWDA, i * 8192): a.e(r)
    for i in range(7):
        if i + 2 < 7:
            for r in wd_reads(wf[(i + 2) % 3], vWDA, (i + 2) * 8192): a.e(r)
        a.e("s_waitcnt lgkmcnt(%d)" % (4 * min(2, 6 - i)))
        for c in range(2): a.e(mfma(vD + 16 * c, wf[i % 3] + 4 * c, hreg[21 + i], vD + 16 * c))
    a.e("s_barrier")
    a.e("v_add_u32 %s, 0x%x, %s" % (v(vWDA), L_WO, v(vWDA)))
    a.e("v_sub_f32 %s, 1.0, %s" % (v(vGC), v(vGC)))
    a.e("s_waitcnt vmcnt(0)")
    a.stamp(7)
    for j in range(8):
        if j == 4: a.e("s_add_u32 s%d, s%d, 0x1000" % (sA, sOLD))
        a.e("buffer_load_dwordx4 %s, %s, %s, s%d offen offset:%d sc1" % (v(vS + 4 * j, 4), v(vL16), srd(SWS), sOLD if j < 4 else sA, (j % 4) * 1024))
    for i in range(2):
        for r in wd_reads(wf[i], vWDA, i * 8192): a.e(r)
    for i in range(16): a.e("v_pk_mul_f32 %s, %s, %s op_sel:[0,1] op_sel_hi:[1,1]" % (v(vD + 2 * i, 2), v(vD + 2 * i, 2), v(vGP, 2)))
    aw = vXA
    ar = vWA
    a.e("v_and_b32 v2, 31, v0")
    a.e("v_lshrrev_b32 v3, 5, v0")
    a.e("v_and_b32 v4, 7, v0")
    a.e("v_xor_b32 v3, v3, v4")
    a.e("v_lshlrev_b32 v3, 4, v3")
    a.e("v_lshl_add_u32 v3, v2, 8, v3")
    a.e("s_and_b32 s%d, s%d, 1" % (sB, sW))
    a.e("s_lshl_b32 s%d, s%d, 15" % (sB, sB))
    a.e("s_lshr_b32 s%d, s%d, 1" % (sC, sW))
    a.e("s_lshl_b32 s%d, s%d, 13" % (sD, sC))
    a.e("s_add_u32 s%d, s%d, s%d" % (sD, sD, sB))
    a.e("v_add_u32 %s, s%d, v3" % (v(aw), sD))
    for j in range(1, 4): a.e("v_xor_b32 %s, %d, %s" % (v(aw + j), 32 * j, v(aw)))
    a.e("v_lshrrev_b32 v2, 3, v0")
    a.e("v_lshlrev_b32 v3, 1, v4")
    a.e("v_xor_b32 v3, v3, v2")
    a.e("v_lshlrev_b32 v3, 4, v3")
    a.e("v_lshl_add_u32 v3, v2, 8, v3")
    a.e("s_lshl_b32 s%d, s%d, 11" % (sD, sC))
    a.e("s_add_u32 s%d, s%d, s%d" % (sD, sD, sB))
    a.e("v_add_u32 %s, s%d, v3" % (v(ar), sD))
    a.e("v_xor_b32 %s, 16, %s" % (v(ar + 1), v(ar)))
    a.e("v_lshlrev_b32 v4, 4, v4")
    a.e("v_lshl_add_u32 %s, v2, 10, v4" % v(ar + 2))
    a.e("s_lshl_b32 s%d, s%d, 13" % (sC, sC))
    a.e("s_add_u32 s%d, s%d, s%d" % (sB, sB, sC))
    a.e("s_lshl_b32 s%d, s%d, 16" % (sC, sT))
    a.e("s_add_u32 s%d, s%d, s%d" % (sB, sB, sC))
    a.e("s_lshl_b32 s%d, s%d, 7" % (sC, sCB))
    a.e("s_add_u32 s%d, s%d, s%d" % (sCNT, sB, sC))
    a.e("s_mov_b32 s%d, 0x2000" % sB)
    for j in range(8):
        o = vS + 4 * j
        if j + 2 < 8:
            for r in wd_reads(wf[(j + 2) % 3], vWDA, (j + 2) * 8192): a.e(r)
        a.e("s_waitcnt vmcnt(%d)" % (7 - j))
        a.lab("L_ochk%d" % j)
        a.e("v_max3_u32 v2, %s, %s, %s" % (v(o), v(o + 1), v(o + 2)))
        a.e("v_max_u32 v2, v2, %s" % v(o + 3))
        a.e("v_cmp_eq_u32 vcc, -1, v2")
        a.e("s_cbranch_vccnz L_ore%d" % j)
        a.lab("L_ook%d" % j)
        a.e("s_waitcnt lgkmcnt(%d)" % (4 * min(2, 7 - j)))
        for c in range(2): a.e(mfma(vD + 16 * c, wf[j % 3] + 4 * c, o, vD + 16 * c))
    a.stamp(8)
    a.e("s_nop 10")
    for c in range(2):
        for j in range(4):
            a.e("ds_write_b128 %s, %s offset:%d" % (v(aw + j), v(vD + 16 * c + 4 * j, 4), 128 * c))
    a.e("s_waitcnt lgkmcnt(0)")
    a.e("s_barrier")
    for p in range(4):
        for h in range(2): a.e(rd128(vS + 8 * p + 4 * h, ar + h, p * 8192))
    for p in range(1, 4):
        a.e("s_waitcnt lgkmcnt(%d)" % (6 - 2 * p))
        for i in range(4): a.e("v_pk_add_f32 %s, %s, %s" % (v(vS + 2 * i, 2), v(vS + 2 * i, 2), v(vS + 8 * p + 2 * i, 2)))
    for i in range(4): a.e("v_cvt_pk_bf16_f32 %s, %s, %s" % (v(vP + i), v(vS + 2 * i), v(vS + 2 * i + 1)))
    a.e("buffer_store_dwordx4 %s, %s, %s, s%d offen %s" % (v(vP, 4), v(ar + 2), srd(SOUT), sCNT, Opt.out_pol))
    if Opt.diag:
        a.e("s_waitcnt vmcnt(0)")
        a.e("s_mov_b32 s%d, s%d" % (sSTAMP + 1, sB))
        a.e("s_memtime %s" % sp(sSTAMP + 18))
        a.e("s_memrealtime %s" % sp(sA))
        a.e("s_waitcnt lgkmcnt(0)")
        for i in range(10): a.e("v_mov_b32 %s, s%d" % (v(vS + i), sSTAMP + 2 * i))
        a.e("v_mov_b32 %s, s%d" % (v(vS + 10), sA))
        a.e("v_mov_b32 %s, s%d" % (v(vS + 11), sSTAMP + 1))
        a.e("s_lshl_b32 s%d, s2, 3" % sA)
        a.e("s_add_u32 s%d, s%d, s%d" % (sA, sA, sW))
        a.e("s_lshl_b32 s%d, s%d, 6" % (sA, sA))
        a.e("s_add_u32 s%d, s%d, 0x%x" % (sA, sA, WS_STAMP))
        a.e("s_mov_b64 exec, 1")
        for i in range(3): a.e("buffer_store_dwordx4 %s, off, %s, s%d offset:%d" % (v(vS + 4 * i, 4), srd(SWS), sA, 16 * i))
    a.lab("L_end")
    a.e("s_endpgm")
    for j in range(8):
        a.lab("L_ore%d" % j)
        a.e("s_sub_u32 s%d, s%d, 1" % (sB, sB))
        a.e("s_cbranch_scc1 L_ogive%d" % j)
        a.e("s_sleep 1")
        a.e("buffer_load_dwordx4 %s, %s, %s, s%d offen offset:%d sc1" % (v(vS + 4 * j, 4), v(vL16), srd(SWS), sOLD if j < 4 else sA, (j % 4) * 1024))
        a.e("s_waitcnt vmcnt(0)")
        a.e("s_branch L_ochk%d" % j)
        a.lab("L_ogive%d" % j)
        a.e("s_mov_b32 s%d, 0" % sB)
        a.e("s_branch L_ook%d" % j)

def fallback(a):
    a.lab("L_fb")
    m = vFR + 4
    a.e("v_mov_b32 %s, 0xff800000" % v(m))
    a.e("s_mov_b32 s%d, 0" % sA)
    a.lab("L_fb1")
    a.e("buffer_load_dwordx4 %s, %s, %s, s%d offen sc1" % (v(vKF, 4), v(vL16), srd(SKV), sA))
    a.e("s_waitcnt vmcnt(0)")
    a.e(mfma(vS, vKF, vQ, None))
    a.e("s_add_u32 s%d, s%d, 2048" % (sA, sA))
    a.e("s_nop 11")
    for i in range(8): a.e("v_max3_f32 %s, %s, %s, %s" % (v(m), v(m), v(vS + 2 * i), v(vS + 2 * i + 1)))
    a.e("s_cmp_lt_u32 s%d, 0x20000" % sA)
    a.e("s_cbranch_scc1 L_fb1")
    a.e("v_mov_b32 %s, %s" % (v(m + 1), v(m)))
    a.e("s_nop 1")
    a.e("v_permlane32_swap_b32 %s, %s" % (v(m), v(m + 1)))
    a.e("s_nop 1")
    a.e("v_max_f32 %s, %s, %s" % (v(m), v(m), v(m + 1)))
    for i in range(16): a.e("v_sub_f32 %s, 0, %s" % (v(vS + 16 + i), v(m)))
    for i in range(16): a.e("v_mov_b32 %s, 0" % v(vO + i))
    a.e("s_mov_b32 s%d, 0" % sA)
    a.lab("L_fb2")
    a.e("s_add_u32 s%d, s%d, 0x%x" % (sB, sA, 63 * 2048))
    a.e("s_and_b32 s%d, s%d, 0x1ffff" % (sB, sB))
    a.e("buffer_load_dwordx4 %s, %s, %s, s%d offen sc1" % (v(vKF, 4), v(vL16), srd(SKV), sB))
    a.e("s_add_u32 s%d, s%d, 2048" % (sB, sA))
    a.e("s_and_b32 s%d, s%d, 0x1ffff" % (sB, sB))
    a.e("s_mov_b64 exec, %s" % sp(sVM))
    a.e("buffer_load_dwordx4 %s, %s, %s, s%d offen offset:1024 sc1" % (v(vV, 4), v(vL16), srd(SKV), sA))
    a.e("buffer_load_dwordx4 %s, %s, %s, s%d offen offset:1280 sc1" % (v(vV + 4, 4), v(vL16), srd(SKV), sB))
    a.e("s_mov_b64 exec, -1")
    a.e("s_waitcnt vmcnt(0)")
    a.e(mfma(vS, vKF, vQ, vS + 16))
    a.e("s_add_u32 s%d, s%d, 2048" % (sA, sA))
    a.e("s_nop 11")
    for i in range(16): a.e("v_exp_f32 %s, %s" % (v(vS + i), v(vS + i)))
    for i in range(8): a.e("v_cvt_pk_bf16_f32 %s, %s, %s" % (v(vP + i), v(vS + 2 * i), v(vS + 2 * i + 1)))
    a.e("s_nop 1")
    a.e(mfma(vO, vV, vP, vO))
    a.e(mfma(vO, vV + 4, vP + 4, vO))
    a.e("s_cmp_lt_u32 s%d, 0x20000" % sA)
    a.e("s_cbranch_scc1 L_fb2")
    a.e("s_nop 11")
    a.e("v_rcp_f32 %s, %s" % (v(vFR + 2), v(vO + 8)))
    a.e("s_branch L_fbret")

def build():
    a = Asm()
    prologue(a)
    phase1_F(a)
    transition(a)
    tail(a)
    ysubs(a)
    vm = a.vm; gelu_sub(a); a.vm = vm
    phase1_L(a)
    fallback(a)
    a.lab("L_codeend")
    head = open("cdna_kernels/%s.s.ref" % NAME).read().split("\n")
    hdr = [l for l in head if l.startswith(";") and "@launch" not in l and "Override" not in l and "grid=" not in l]
    out = hdr + ["; @launch grid=(256,1,1) block=(512,1,1) lds=%d" % LDS_BYTES,
                 '.amdgcn_target "amdgcn-amd-amdhsa--gfx950"', ".text", ".globl %s_kernel" % NAME, ".p2align 8",
                 ".type %s_kernel,@function" % NAME,
                 ".set CODE_PF_MAX, L_codeend - L_nopf - 4" if Opt.code_pf else "",
                 "%s_kernel:" % NAME]
    out += a.l
    out += ['.section .rodata,"a"', ".p2align 6", ".amdhsa_kernel %s_kernel" % NAME,
            "  .amdhsa_next_free_vgpr %d" % NV, "  .amdhsa_next_free_sgpr 102", "  .amdhsa_accum_offset 256",
            "  .amdhsa_group_segment_fixed_size 0", "  .amdhsa_kernarg_size 104", "  .amdhsa_user_sgpr_count 2",
            "  .amdhsa_user_sgpr_kernarg_segment_ptr 1", "  .amdhsa_system_sgpr_workgroup_id_x 1", ".end_amdhsa_kernel", ""]
    return "\n".join(out)

if __name__ == "__main__":
    path = sys.argv[1]
    for kv in sys.argv[2:]:
        k, val = kv.split("=")
        cur = getattr(Opt, k)
        setattr(Opt, k, val if isinstance(cur, str) else type(cur)(int(val)))
    open(path, "w").write(build())
```

```python
import sys, struct, math

NAME = "gated_mix__grouped_kv_mqa__geglu_ffn__prompt"

class Opt:
    diag = False
    mapmode = 1
    force_fb = False
    out_pol = ""
    code_pf = True

def f2u(x): return struct.unpack("<I", struct.pack("<f", x))[0]

WS_KV = 0
WS_G = 128 * 1024
WS_HFLAG = 192 * 1024
WS_OF = 1 << 20
WS_HF = 4 << 20
WS_STAMP = 12 << 20
WS_SIZE = 16 << 20
K1 = 1024
L_G, L_U, L_X, L_WQ = 0, 48 * K1, 96 * K1, 144 * K1
L_QX = 32 * K1
L_WD, L_WO, L_KV = 0, 64 * K1, 128 * K1
LL_X, LL_W, LL_GATE, LL_WQ = 0, 128 * K1, 144 * K1, 128 * K1
LDS_BYTES = 160 * K1

SX, SWG, SWU, SWQ, SWS, SWD, SWO, SOUT, SDBG, SWKV, SGATE, SKV = 4, 8, 12, 16, 20, 24, 28, 32, 36, 40, 44, 64
sTMPP = 48
sW, sHI, sLO, sG, sM, sT, sCB = 50, 51, 52, 53, 54, 55, 56
sWK = 57
sWH = 58
sK64 = 59
sVM = 60
sRET = 62
sA, sB, sC, sD = 68, 69, 70, 71
sOFFW, sOFFQ = 72, 73
sHOFF, sWDOFF, sKVOFF, sM0WD, sM0KV, sCNT = 72, 73, 74, 75, 76, 77
sOST, sOLD, sHST = 78, 79, 80
sWDW = 81
sSTAMP = 82

def srd(b): return "s[%d:%d]" % (b, b + 3)
def sp(b): return "s[%d:%d]" % (b, b + 1)
def v(b, n=1): return "v%d" % b if n == 1 else "v[%d:%d]" % (b, b + n - 1)

vL16 = 1
vT0, vT1, vT2, vT3 = 2, 3, 4, 5
vGP, vGC = 6, 7
vKVA = 8
vWDA = 9
vWDV = 10
vONE = 11
vZERO = 12
vFLA = 13
vPOLL = 14
vGA = 15
vQ = 16
vK0 = 20
vV1L = 24
vE = 28
vP = 32
vV = 40
vO = 56
vD = 72
vACC = 104
vS = 104
vH = 136
vAQ = 168
vKF = 168
vWF = 176
vFR = 184
vXA = 224
vWA = 232
vQA = 236
vDX, vDG, vDU, vDQ = 237, 238, 239, 240
vC0 = 242
NV = 256

class Asm:
    def __init__(self):
        self.l = []
        self.vm = []
        self.nstamp = 0
    def e(self, s):
        for x in s.split("\n"):
            x = x.strip()
            if x: self.l.append("    " + x)
    def lab(self, s): self.l.append(s + ":")
    def vmop(self, s, tag):
        self.e(s); self.vm.append(tag)
    def vmn(self, tags):
        if isinstance(tags, str): tags = [tags]
        last = -1
        for i, t in enumerate(self.vm):
            if t in tags: last = i
        return None if last < 0 else len(self.vm) - 1 - last
    def waitvm(self, tags, lgkm=False):
        n = self.vmn(tags)
        if n is None:
            if lgkm: self.e("s_waitcnt lgkmcnt(0)")
            return
        assert n < 64
        self.e("s_waitcnt vmcnt(%d)%s" % (n, " lgkmcnt(0)" if lgkm else ""))
        self.vm = self.vm[len(self.vm) - n:] if n else []
    def wait0(self, lgkm=False):
        self.e("s_waitcnt vmcnt(0)%s" % (" lgkmcnt(0)" if lgkm else "")); self.vm = []
    def stamp(self, i, real=False):
        if Opt.diag:
            self.e("s_waitcnt lgkmcnt(0)")
            self.e("s_memtime %s" % sp(sSTAMP + 2 * i))
            self.e("s_memrealtime s[0:1]")
            self.e("s_waitcnt lgkmcnt(0)")
            self.e("s_mov_b32 s%d, s0" % (sSTAMP + 2 * i + 1))

def mfma(d, a, b, c):
    return "v_mfma_f32_32x32x16_bf16 %s, %s, %s, %s" % (v(d, 16), v(a, 4), v(b, 4), "0" if c is None else v(c, 16))
def rd128(d, a, off):
    assert 0 <= off < 65536
    return "ds_read_b128 %s, %s offset:%d" % (v(d, 4), v(a), off)
def rdtr(d, a, off):
    assert 0 <= off < 65536
    return "ds_read_b64_tr_b16 %s, %s offset:%d" % (v(d, 2), v(a), off)

def interleave(mf, fill, per=2):
    out = []
    fill = list(fill)
    for i, m in enumerate(mf):
        out.append(m)
        if i < len(mf) - 1:
            out += fill[:per]; fill = fill[per:]
    return out + fill

def prologue(a):
    a.e("s_cmp_ge_u32 s2, 256")
    a.e("s_cbranch_scc1 L_end")
    for reg, off in ((SX, 0), (SWG, 48), (SWU, 56), (SWQ, 8), (SWS, 96), (SWKV, 16), (sTMPP, 24), (SGATE, 72),
                     (SWD, 64), (SWO, 32), (SOUT, 80), (SDBG, 88), (SKV, 96)):
        a.e("s_load_dwordx2 %s, s[0:1], %d" % (sp(reg), off))
    if Opt.diag:
        a.e("s_memrealtime %s" % sp(sSTAMP))
        a.e("s_memtime %s" % sp(sSTAMP + 2))
    a.e("v_lshrrev_b32 v2, 6, v0")
    a.e("v_and_b32 v0, 63, v0")
    a.e("v_readfirstlane_b32 s%d, v2" % sW)
    a.e("v_lshlrev_b32 %s, 4, v0" % v(vL16))
    for reg, size in ((SX, 2048 * 1024), (SWG, 512 * 3584), (SWU, 512 * 3584), (SWQ, 512 * 1024), (SWS, WS_SIZE),
                      (SWKV, 16384), (SGATE, 1024), (SWD, 1792 * 1024), (SWO, 512 * 1024), (SOUT, 2048 * 1024),
                      (SDBG, 256), (SKV, 128 * 1024)):
        a.e("s_mov_b32 s%d, 0x%x" % (reg + 2, size))
        a.e("s_mov_b32 s%d, 0x20000" % (reg + 3))
    a.e("s_and_b32 s%d, s2, 7" % sA)
    a.e("s_lshr_b32 s%d, s2, 3" % sB)
    if Opt.mapmode == 0:
        a.e("s_lshl_b32 s%d, s%d, 1" % (sG, sA))
        a.e("s_and_b32 s%d, s%d, 1" % (sC, sB))
        a.e("s_add_u32 s%d, s%d, s%d" % (sG, sG, sC))
        a.e("s_lshr_b32 s%d, s%d, 1" % (sM, sB))
    elif Opt.mapmode == 1:
        a.e("s_and_b32 s%d, s%d, 1" % (sG, sA))
        a.e("s_lshl_b32 s%d, s%d, 3" % (sG, sG))
        a.e("s_and_b32 s%d, s%d, 7" % (sC, sB))
        a.e("s_add_u32 s%d, s%d, s%d" % (sG, sG, sC))
        a.e("s_lshr_b32 s%d, s%d, 1" % (sM, sA))
        a.e("s_lshl_b32 s%d, s%d, 2" % (sM, sM))
        a.e("s_lshr_b32 s%d, s%d, 3" % (sC, sB))
        a.e("s_add_u32 s%d, s%d, s%d" % (sM, sM, sC))
    else:
        a.e("s_and_b32 s%d, s%d, 3" % (sG, sA))
        a.e("s_lshl_b32 s%d, s%d, 2" % (sG, sG))
        a.e("s_and_b32 s%d, s%d, 3" % (sC, sB))
        a.e("s_add_u32 s%d, s%d, s%d" % (sG, sG, sC))
        a.e("s_lshr_b32 s%d, s%d, 2" % (sM, sA))
        a.e("s_lshl_b32 s%d, s%d, 3" % (sM, sM))
        a.e("s_lshr_b32 s%d, s%d, 2" % (sC, sB))
        a.e("s_add_u32 s%d, s%d, s%d" % (sM, sM, sC))
    a.e("s_lshl_b32 s%d, s%d, 2" % (sT, sA))
    a.e("s_and_b32 s%d, s%d, 3" % (sC, sB))
    a.e("s_add_u32 s%d, s%d, s%d" % (sT, sT, sC))
    a.e("s_lshr_b32 s%d, s%d, 2" % (sCB, sB))
    a.e("s_lshr_b32 s%d, s%d, 2" % (sHI, sW))
    a.e("s_and_b32 s%d, s%d, 3" % (sLO, sW))
    a.e("s_lshl_b32 s%d, s%d, 10" % (sWK, sW))
    a.e("s_lshl_b32 s%d, s%d, 9" % (sWH, sW))
    a.e("s_mov_b32 s%d, 0x10000" % sK64)
    a.e("s_mov_b32 s%d, 0xffff" % sVM)
    a.e("s_mov_b32 s%d, 0xffff" % (sVM + 1))
    if Opt.code_pf:
        a.e("s_cmp_lg_u32 s%d, s%d" % (sC, sW))
        a.e("s_cbranch_scc1 L_nopf")
        a.e("s_getpc_b64 %s" % sp(sRET))
        a.e("s_lshl_b32 s%d, s%d, 13" % (sD, sW))
        a.e("v_lshl_add_u32 v2, v0, 7, s%d" % sD)
        a.e("v_min_u32 v2, CODE_PF_MAX, v2")
        a.e("global_load_dword %s, v2, %s" % (v(vPOLL), sp(sRET)))
        a.lab("L_nopf")
    a.e("s_lshl_b32 s%d, s%d, 2" % (sA, sW))
    a.e("v_lshrrev_b32 v2, 4, v0")
    a.e("v_add_u32 v3, s%d, v2" % sA)
    a.e("v_xor_b32 v3, v3, v0")
    a.e("v_and_b32 v3, 7, v3")
    a.e("v_lshlrev_b32 v3, 4, v3")
    a.e("v_lshrrev_b32 v4, 3, v0")
    a.e("v_lshl_add_u32 v3, v4, 10, v3")
    a.e("s_lshl_b32 s%d, s%d, 17" % (sA, sG))
    a.e("s_lshl_b32 s%d, s%d, 13" % (sB, sW))
    a.e("s_add_u32 s%d, s%d, s%d" % (sA, sA, sB))
    a.e("v_add_u32 %s, s%d, v3" % (v(vDX), sA))
    a.e("s_cmp_ge_u32 s%d, 14" % sM)
    a.e("s_cbranch_scc1 L_light")

def setup_late(a):
    a.e("s_lshl_b32 s%d, s%d, 2" % (sA, sG))
    a.e("s_add_u32 s%d, s%d, s%d" % (sA, sA, sLO))
    a.e("s_lshl_b32 s%d, s%d, 5" % (sB, sA))
    a.e("s_lshl_b32 s%d, s%d, 1" % (sC, sM))
    a.e("s_add_u32 s%d, s%d, s%d" % (sB, sB, sC))
    a.e("s_add_u32 s%d, s%d, s%d" % (sB, sB, sHI))
    a.e("s_lshl_b32 s%d, s%d, 10" % (sB, sB))
    a.e("s_add_u32 s%d, s%d, 0x%x" % (sOST, sB, WS_OF))
    for i in range(4): a.e("v_mov_b32 %s, -1" % v(vP + i))
    a.vmop("buffer_store_dwordx4 %s, %s, %s, s%d offen sc1" % (v(vP, 4), v(vL16), srd(SWS), sOST), "oclr")
    a.e("s_mul_i32 s%d, s%d, 112" % (sB, sA))
    a.e("s_lshl_b32 s%d, s%d, 3" % (sC, sM))
    a.e("s_add_u32 s%d, s%d, s%d" % (sB, sB, sC))
    a.e("s_lshl_b32 s%d, s%d, 2" % (sC, sHI))
    a.e("s_add_u32 s%d, s%d, s%d" % (sB, sB, sC))
    a.e("s_and_b32 s%d, s%d, 1" % (sC, sLO))
    a.e("s_lshl_b32 s%d, s%d, 1" % (sC, sC))
    a.e("s_add_u32 s%d, s%d, s%d" % (sB, sB, sC))
    a.e("s_lshl_b32 s%d, s%d, 10" % (sB, sB))
    a.e("s_add_u32 s%d, s%d, 0x%x" % (sHST, sB, WS_HF))
    a.e("v_and_b32 v2, 31, v0")
    a.e("v_lshrrev_b32 v3, 5, v0")
    a.e("v_lshlrev_b32 %s, 2, v2" % v(vGA))
    a.e("v_bfe_u32 v4, v0, 1, 3")
    a.e("v_xor_b32 v4, v4, v3")
    a.e("v_lshlrev_b32 v4, 4, v4")
    a.e("v_lshl_add_u32 v4, v2, 7, v4")
    a.e("s_lshl_b32 s%d, s%d, 12" % (sA, sLO))
    a.e("v_add_u32 %s, s%d, v4" % (v(vXA), sA))
    a.e("v_bfe_u32 v2, v0, 2, 2")
    a.e("v_and_b32 v4, 3, v0")
    a.e("v_bfe_u32 v5, v0, 4, 1")
    a.e("v_lshl_add_u32 %s, v3, 3, v2" % v(vQA))
    a.e("v_lshlrev_b32 %s, 6, %s" % (v(vQA), v(vQA)))
    a.e("v_lshl_add_u32 %s, v5, 5, %s" % (v(vQA), v(vQA)))
    a.e("v_lshl_add_u32 %s, v4, 3, %s" % (v(vQA), v(vQA)))
    a.e("v_lshl_add_u32 %s, v3, 2, v2" % v(vWDA))
    a.e("v_lshlrev_b32 %s, 6, %s" % (v(vWDA), v(vWDA)))
    a.e("v_lshl_add_u32 %s, v5, 5, %s" % (v(vWDA), v(vWDA)))
    a.e("v_lshl_add_u32 %s, v4, 3, %s" % (v(vWDA), v(vWDA)))
    a.e("s_lshr_b32 s%d, s%d, 1" % (sA, sW))
    a.e("s_lshl_b32 s%d, s%d, 11" % (sA, sA))
    a.e("v_add_u32 %s, s%d, %s" % (v(vWDA), sA, v(vWDA)))

def setup_attn(a):
    a.e("v_add_u32 %s, 0x%x, %s" % (v(vKVA), L_KV, v(vL16)))
    a.e("v_bfe_u32 v2, v0, 2, 3")
    a.e("v_lshlrev_b32 v2, 10, v2")
    a.e("v_lshrrev_b32 v3, 5, v0")
    a.e("v_lshl_add_u32 v2, v3, 6, v2")
    a.e("v_and_b32 v3, 3, v0")
    a.e("v_lshl_add_u32 v2, v3, 4, v2")
    a.e("s_and_b32 s%d, s%d, 1" % (sA, sW))
    a.e("s_lshl_b32 s%d, s%d, 13" % (sA, sA))
    a.e("s_lshl_b32 s%d, s%d, 7" % (sB, sCB))
    a.e("s_add_u32 s%d, s%d, s%d" % (sA, sA, sB))
    a.e("v_add_u32 %s, s%d, v2" % (v(vWDV), sA))
    a.e("v_mov_b32 %s, 1" % v(vONE))
    a.e("v_mov_b32 %s, 0" % v(vZERO))
    a.e("v_min_u32 v2, 13, v0")
    a.e("v_lshlrev_b32 v2, 7, v2")
    a.e("s_lshr_b32 s%d, s%d, 1" % (sA, sT))
    a.e("s_lshl_b32 s%d, s%d, 11" % (sA, sA))
    a.e("s_add_u32 s%d, s%d, 0x%x" % (sA, sA, WS_HFLAG))
    a.e("v_add_u32 %s, s%d, v2" % (v(vFLA), sA))
    a.e("s_lshl_b32 s%d, s%d, 1" % (sA, sT))
    a.e("s_and_b32 s%d, s%d, 1" % (sB, sW))
    a.e("s_add_u32 s%d, s%d, s%d" % (sA, sA, sB))
    a.e("s_lshl_b32 s%d, s%d, 15" % (sB, sA))
    a.e("s_lshr_b32 s%d, s%d, 1" % (sC, sW))
    a.e("s_lshl_b32 s%d, s%d, 13" % (sC, sC))
    a.e("s_add_u32 s%d, s%d, s%d" % (sB, sB, sC))
    a.e("s_add_u32 s%d, s%d, 0x%x" % (sOLD, sB, WS_OF))
    for i in range(16): a.e("v_mov_b32 %s, 0x3f803f80" % v(vV + i))
    for i in range(4): a.e("v_mov_b32 %s, 0x3f803f80" % v(vV1L + i))
    for i in range(4): a.e("v_mov_b32 %s, 0" % v(vE + i))
    for i in range(4, 8): a.e("v_mov_b32 %s, 0" % v(vP + i))
    for i in range(16): a.e("v_mov_b32 %s, 0" % v(vO + i))
    for i in range(32): a.e("v_mov_b32 %s, 0" % v(vD + i))
    c0 = -2.0 * math.sqrt(2.0 / math.pi) * math.log2(math.e)
    a.e("v_mov_b32 %s, 0x%x" % (v(vC0), f2u(c0)))
    a.e("v_mov_b32 %s, 0x%x" % (v(vC0 + 1), f2u(c0 * 0.044715)))

def kv_first_loads(a):
    it = []
    for u in range(2):
        it.append(("s_add_u32 m0, s%d, 0x%x\ns_add_u32 s%d, s%d, 0x%x\nbuffer_load_dwordx4 %s, %s, s%d offen sc1 lds"
                   % (sWK, L_KV + u * 8192, sA, sWK, u * 8192, v(vL16), srd(SKV), sA), "kv%d" % u))
    it.append(("s_mov_b32 s%d, 0x%x\nbuffer_load_dwordx4 %s, %s, %s, s%d offen sc1"
               % (sA, 63 * 2048, v(vK0, 4), v(vL16), srd(SKV), sA), "k0"))
    it.append(("s_mov_b64 exec, %s\nbuffer_load_dwordx4 %s, %s, %s, 0 offen offset:%d sc1\ns_mov_b64 exec, -1"
               % (sp(sVM), v(vV1L, 4), v(vL16), srd(SKV), 1024 + 256), "k0"))
    it.append(("s_lshl_b32 s%d, s%d, 2\ns_add_u32 s%d, s%d, s%d\ns_lshl_b32 s%d, s%d, 7\ns_add_u32 s%d, s%d, 0x%x\n"
               "buffer_load_dword %s, %s, %s, s%d offen sc1"
               % (sA, sG, sA, sA, sLO, sA, sA, sA, sA, WS_G, v(vGP), v(vGA), srd(SWS), sA), "k0"))
    it.append(("s_lshl_b32 s%d, s%d, 1\ns_and_b32 s%d, s%d, 1\ns_add_u32 s%d, s%d, s%d\ns_lshl_b32 s%d, s%d, 7\ns_add_u32 s%d, s%d, 0x%x\n"
               "buffer_load_dword %s, %s, %s, s%d offen sc1"
               % (sA, sT, sB, sW, sA, sA, sB, sA, sA, sA, sA, WS_G, v(vGC), v(vGA), srd(SWS), sA), "k0"))
    return it

def spin_counter(a, name, first_loaded):
    a.e("s_cmp_lg_u32 s%d, 0" % sW)
    a.e("s_cbranch_scc1 L_%s_done" % name)
    a.e("s_mov_b32 s%d, 0x4000" % sB)
    if first_loaded: a.e("s_branch L_%s_chk" % name)
    a.lab("L_%s_re" % name)
    a.e("buffer_load_dword %s, off, %s, 0 sc1" % (v(vPOLL), srd(SDBG)))
    a.e("s_waitcnt vmcnt(0)")
    a.lab("L_%s_chk" % name)
    a.e("v_readfirstlane_b32 s%d, %s" % (sA, v(vPOLL)))
    a.e("s_cmp_ge_u32 s%d, 32" % sA)
    a.e("s_cbranch_scc1 L_%s_done" % name)
    a.e("s_sleep 4")
    a.e("s_sub_u32 s%d, s%d, 1" % (sB, sB))
    a.e("s_cmp_lg_u32 s%d, 0" % sB)
    a.e("s_cbranch_scc1 L_%s_re" % name)
    a.lab("L_%s_done" % name)

def phase1_F(a):
    a.e("v_bfe_u32 v3, v0, 1, 3")
    a.e("v_xor_b32 v3, v3, v2")
    a.e("v_lshlrev_b32 v3, 5, v3")
    a.e("v_and_b32 v4, 1, v0")
    a.e("v_lshl_add_u32 v3, v4, 4, v3")
    a.e("v_xor_b32 v4, 0x80, v3")
    a.e("v_mul_u32_u24 v5, 3584, v2")
    a.e("s_mul_i32 s%d, s%d, %d" % (sA, sW, 4 * 3584))
    a.e("s_lshl_b32 s%d, s%d, 8" % (sB, sM))
    a.e("s_add_u32 s%d, s%d, s%d" % (sA, sA, sB))
    a.e("v_add3_u32 %s, v3, v5, s%d" % (v(vDG), sA))
    a.e("v_add3_u32 %s, v4, v5, s%d" % (v(vDU), sA))
    a.e("v_lshrrev_b32 v3, 2, v0")
    a.e("v_lshlrev_b32 v3, 10, v3")
    a.e("v_and_b32 v4, 3, v0")
    a.e("v_lshl_add_u32 v3, v4, 4, v3")
    a.e("s_lshl_b32 s%d, s%d, 13" % (sA, sW))
    a.e("s_lshl_b32 s%d, s%d, 6" % (sB, sM))
    a.e("s_add_u32 s%d, s%d, s%d" % (sA, sA, sB))
    a.e("v_add_u32 %s, s%d, v3" % (v(vDQ), sA))
    a.e("s_mov_b32 s%d, 0" % sOFFW)
    a.e("s_mov_b32 s%d, 0" % sOFFQ)

    def dmas(c):
        s = c % 3
        t = "c%d" % c
        it = []
        def one(m0src, m0c, vo, rs, so, off=0, pre="s_nop 0", post=""):
            o = (" offset:%d" % off) if off else ""
            return ("s_add_u32 m0, s%d, 0x%x\n%s\nbuffer_load_dwordx4 %s, %s, %s offen%s lds\n%s"
                    % (m0src, m0c - off, pre, v(vo), srd(rs), so, o, post), t)
        adv = "s_add_u32 s%d, s%d, %d" % (sOFFW, sOFFW, 32 * 3584)
        it.append(one(sWK, L_X + s * 16384, vDX, SX, "0", c * 128))
        it.append(one(sWK, L_X + s * 16384 + 8192, vDX, SX, "s%d" % sK64, c * 128))
        it.append(one(sWK, L_G + s * 16384, vDG, SWG, "s%d" % sOFFW))
        it.append(one(sWK, L_U + s * 16384, vDU, SWU, "s%d" % sOFFW))
        it.append(one(sWK, L_G + s * 16384 + 8192, vDG, SWG, "s%d" % sOFFW, pre=adv))
        it.append(one(sWK, L_U + s * 16384 + 8192, vDU, SWU, "s%d" % sOFFW, post=adv))
        it.append(one(sWH, L_WQ + s * 4096, vDQ, SWQ, "s%d" % sOFFQ, pre="s_mov_b32 exec_hi, 0",
                      post="s_mov_b32 exec_hi, -1\ns_add_u32 s%d, s%d, s%d" % (sOFFQ, sOFFQ, sK64)))
        return it

    a.e("s_waitcnt lgkmcnt(0)")
    for c in range(3):
        for s, t in dmas(c): a.vmop(s, t)
    setup_late(a)
    a.e("v_lshl_add_u32 %s, v3, 3, v2" % v(vWA))
    a.e("v_lshlrev_b32 %s, 8, %s" % (v(vWA), v(vWA)))
    a.e("v_lshl_add_u32 %s, v4, 3, %s" % (v(vWA), v(vWA)))
    a.e("v_mul_u32_u24 v4, 0x%x, v5" % (L_U - L_G))
    a.e("v_add_u32 %s, v4, %s" % (v(vWA), v(vWA)))
    a.e("v_lshl_add_u32 v2, v5, 2, v2")
    a.e("s_lshl_b32 s%d, s%d, 2" % (sA, sHI))
    a.e("s_and_b32 s%d, s%d, 1" % (sB, sLO))
    a.e("s_lshl_b32 s%d, s%d, 1" % (sB, sB))
    a.e("s_add_u32 s%d, s%d, s%d" % (sA, sA, sB))
    a.e("v_xor_b32 v2, s%d, v2" % sA)
    a.e("v_lshl_add_u32 %s, v2, 5, %s" % (v(vWA), v(vWA)))
    a.e("s_lshl_b32 s%d, s%d, 13" % (sA, sHI))
    a.e("s_xor_b32 s%d, s%d, 0x2000" % (sB, sA))
    a.e("v_add_u32 %s, s%d, %s" % (v(vWA + 2), sB, v(vWA)))
    a.e("v_add_u32 %s, s%d, %s" % (v(vWA), sA, v(vWA)))
    a.e("v_xor_b32 %s, 32, %s" % (v(vWA + 1), v(vWA)))
    a.e("v_xor_b32 %s, 32, %s" % (v(vWA + 3), v(vWA + 2)))
    a.e("s_lshl_b32 s%d, s%d, 6" % (sA, sHI))
    a.e("s_add_u32 s%d, s%d, 0x%x" % (sA, sA, L_X))
    a.e("v_xor_b32 %s, s%d, %s" % (v(vXA), sA, v(vXA)))
    for s in range(1, 4): a.e("v_xor_b32 %s, %d, %s" % (v(vXA + s), 32 * s, v(vXA)))
    for s in range(4): a.e("v_xor_b32 %s, 0x1000, %s" % (v(vXA + 4 + s), v(vXA + s)))
    a.e("s_lshl_b32 s%d, s%d, 11" % (sA, sHI))
    a.e("s_add_u32 s%d, s%d, 0x%x" % (sA, sA, L_WQ))
    a.e("v_add_u32 %s, s%d, %s" % (v(vQA), sA, v(vQA)))
    setup_attn(a)

    def fr(k):
        b = vFR + 20 * (k % 2)
        return dict(x0=b, x1=b + 4, w0=b + 8, w1=b + 12, q=b + 16)
    def reads(k):
        c, s = divmod(k, 4); f = fr(k); sl = c % 3
        wo = sl * 16384 + (s & 1) * 4096
        wa = vWA + 2 * (s >> 1)
        r = [rdtr(f['w0'], wa, wo), rdtr(f['w0'] + 2, wa, wo + 1024),
             rd128(f['x0'], vXA + s, sl * 16384), rd128(f['x1'], vXA + 4 + s, sl * 16384),
             rdtr(f['w1'], wa + 1, wo), rdtr(f['w1'] + 2, wa + 1, wo + 1024)]
        if s < 2:
            r += [rdtr(f['q'], vQA, sl * 4096 + s * 1024), rdtr(f['q'] + 2, vQA, sl * 4096 + s * 1024 + 256)]
        return r
    a.stamp(2)
    a.waitvm("c0")
    a.e("s_barrier")
    a.stamp(3)
    for r in reads(0): a.e(r)
    pend = []
    for k in range(32):
        c, s = divmod(k, 4); f = fr(k)
        if s == 3 and c < 7:
            if c == 6:
                a.wait0(lgkm=True)
                spin_counter(a, "kvf", True)
            else:
                a.waitvm("c%d" % (c + 1), lgkm=True)
            a.e("s_barrier")
            if c + 3 < 8: pend += dmas(c + 3)
            if c == 6: pend += kv_first_loads(a)
        else:
            a.e("s_waitcnt lgkmcnt(0)")
        z = lambda x: None if k == 0 else x
        mf = [mfma(vACC, f['w0'], f['x0'], z(vACC)), mfma(vACC + 16, f['w0'], f['x1'], z(vACC + 16)),
              mfma(vACC + 32, f['w1'], f['x0'], z(vACC + 32)), mfma(vACC + 48, f['w1'], f['x1'], z(vACC + 48))]
        if s < 2: mf.append(mfma(vAQ, f['q'], f['x0'], z(vAQ)))
        for x in interleave(mf, reads(k + 1) if k < 31 else []): a.e(x)
        for s_, t_ in pend[:2]: a.vmop(s_, t_)
        pend = pend[2:]
        if k == 23:
            a.e("s_cmp_lg_u32 s%d, 0" % sW)
            a.e("s_cbranch_scc1 L_nopoll")
            a.e("buffer_load_dword %s, off, %s, 0 sc1" % (v(vPOLL), srd(SDBG)))
            a.lab("L_nopoll")
    assert not pend
    a.stamp(4)

def phase1_L(a):
    a.lab("L_light")
    a.vm = []
    a.e("s_waitcnt lgkmcnt(0)")
    a.e("s_cmp_eq_u32 s%d, 14" % sM)
    a.e("s_cselect_b32 s%d, s%d, s%d" % (SWKV, SWKV, sTMPP))
    a.e("s_cselect_b32 s%d, s%d, s%d" % (SWKV + 1, SWKV + 1, sTMPP + 1))
    for u in range(2):
        a.vmop("s_add_u32 m0, s%d, 0x%x\ns_add_u32 s%d, s%d, %d\nbuffer_load_dwordx4 %s, %s, s%d offen lds"
               % (sWK, LL_W + u * 8192, sA, sWK, u * 8192, v(vL16), srd(SWKV), sA), "w")
    a.vmop("s_mov_b32 m0, 0x%x\ns_nop 0\nbuffer_load_dwordx4 %s, %s, 0 offen lds" % (LL_GATE, v(vL16), srd(SGATE)), "w")
    for c in range(8):
        for h in range(2):
            a.vmop("s_add_u32 m0, s%d, 0x%x\ns_nop 0\nbuffer_load_dwordx4 %s, %s, %s offen offset:%d lds"
                   % (sWK, LL_X + c * 16384 + h * 8192 - c * 128, v(vDX), srd(SX), ("s%d" % sK64) if h else "0", c * 128),
                   "c%d" % c)
    setup_late(a)
    a.e("v_lshl_add_u32 %s, v3, 3, v2" % v(vWA))
    a.e("v_lshlrev_b32 %s, 5, %s" % (v(vWA), v(vWA)))
    a.e("v_lshl_add_u32 %s, v4, 3, %s" % (v(vWA), v(vWA)))
    a.e("v_add_u32 %s, 0x%x, %s" % (v(vWA), LL_W, v(vWA)))
    a.e("v_lshlrev_b32 %s, 4, v3" % v(vWA + 1))
    a.e("v_add_u32 %s, 0x%x, %s" % (v(vWA + 1), LL_GATE, v(vWA + 1)))
    for s in range(1, 4): a.e("v_xor_b32 %s, %d, %s" % (v(vXA + s), 32 * s, v(vXA)))
    for s in range(4): a.e("v_add_u32 %s, 0x10000, %s" % (v(vXA + 4 + s), v(vXA + s)))
    setup_attn(a)
    a.e("s_cmp_lg_u32 s%d, 14" % sM)
    a.e("s_cbranch_scc1 L_nozf")
    a.e("s_cmp_lg_u32 s%d, 4" % sW)
    a.e("s_cbranch_scc1 L_nozf")
    a.e("v_lshlrev_b32 v2, 7, v0")
    a.e("s_lshl_b32 s%d, s%d, 11" % (sA, sG))
    a.e("s_add_u32 s%d, s%d, 0x%x" % (sA, sA, WS_HFLAG))
    a.e("s_mov_b64 exec, 0xffff")
    a.e("buffer_store_dword %s, v2, %s, s%d offen sc1" % (v(vZERO), srd(SWS), sA))
    a.e("s_mov_b64 exec, -1")
    a.lab("L_nozf")
    a.stamp(2)
    vm0 = list(a.vm)
    a.e("s_cmp_lg_u32 s%d, 0" % sHI)
    a.e("s_cbranch_scc1 L_lB")
    a.e("s_not_b64 %s, %s" % (sp(sTMPP), sp(sVM)))
    a.e("s_cmp_lg_u32 s%d, 14" % sM)
    a.e("s_cbranch_scc1 L_lV")
    def chain(kind):
        a.vm = list(vm0)
        def fr(k):
            b = vFR + 8 * (k % 4)
            return b, b + 4
        def reads(k):
            c, s = divmod(k, 4); x, w = fr(k)
            r = [rd128(x, vXA + s + 4 * (c >> 2), (c & 3) * 16384), rdtr(w, vWA, k * 512), rdtr(w + 2, vWA, k * 512 + 128)]
            if kind == "K":
                r += ["s_mov_b64 exec, %s" % sp(sTMPP), rd128(w, vWA + 1, k * 32), "s_mov_b64 exec, -1"]
            return r
        for q in range(4):
            a.waitvm("c%d" % (2 * q + 1))
            a.e("s_barrier")
            if q == 0: a.stamp(3)
            nr = 4 if kind == "K" else 3
            for k in range(8 * q, 8 * q + 2):
                for r in reads(k): a.e(r)
            for k in range(8 * q, 8 * q + 8):
                if k + 2 < 8 * q + 8:
                    for r in reads(k + 2): a.e(r)
                left = min(2, 8 * q + 7 - k)
                a.e("s_waitcnt lgkmcnt(%d)" % (left * nr))
                x, w = fr(k)
                cc = None if k == 0 else vACC
                a.e(mfma(vACC, w, x, cc) if kind == "K" else mfma(vACC, x, w, cc))
        a.e("s_lshl_b32 s%d, s%d, 2" % (sA, sG))
        a.e("s_add_u32 s%d, s%d, s%d" % (sA, sA, sLO))
        a.e("s_nop 12")
        if kind == "K":
            a.e("s_mov_b32 s%d, 0x%x" % (sC, f2u(0.25 * math.log2(math.e))))
            for i in range(8): a.e("v_mul_f32 %s, s%d, %s" % (v(vACC + i), sC, v(vACC + i)))
            a.e("v_mul_f32 %s, 0x%x, %s" % (v(vACC + 8), f2u(-math.log2(math.e)), v(vACC + 8)))
            a.e("v_exp_f32 %s, %s" % (v(vACC + 8), v(vACC + 8)))
            for i in range(4): a.e("v_cvt_pk_bf16_f32 %s, %s, %s" % (v(vFR + i), v(vACC + 2 * i), v(vACC + 2 * i + 1)))
            a.e("v_add_f32 %s, 1.0, %s" % (v(vACC + 8), v(vACC + 8)))
            a.e("v_rcp_f32 %s, %s" % (v(vACC + 8), v(vACC + 8)))
            a.e("s_add_u32 s%d, s%d, 63" % (sB, sA))
            a.e("s_and_b32 s%d, s%d, 63" % (sB, sB))
            a.e("s_lshl_b32 s%d, s%d, 11" % (sB, sB))
            a.e("buffer_store_dwordx4 %s, %s, %s, s%d offen sc1" % (v(vFR, 4), v(vL16), srd(SKV), sB))
            a.e("s_lshl_b32 s%d, s%d, 7" % (sB, sA))
            a.e("s_add_u32 s%d, s%d, 0x%x" % (sB, sB, WS_G))
            a.e("s_mov_b32 exec_hi, 0")
            a.e("buffer_store_dword %s, %s, %s, s%d offen sc1" % (v(vACC + 8), v(vGA), srd(SWS), sB))
            a.e("s_mov_b64 exec, -1")
        else:
            for i in range(8): a.e("v_cvt_pk_bf16_f32 %s, %s, %s" % (v(vFR + i), v(vACC + 2 * i), v(vACC + 2 * i + 1)))
            a.e("v_bfe_u32 v2, v0, 4, 1")
            a.e("v_add_u32 v2, s%d, v2" % sA)
            a.e("v_and_b32 v2, 63, v2")
            a.e("v_lshl_add_u32 v2, v2, 11, %s" % v(vL16))
            for i in range(4): a.e("v_cndmask_b32 %s, %s, %s, %s" % (v(vFR + i), v(vFR + 4 + i), v(vFR + i), sp(sVM)))
            a.e("buffer_store_dwordx4 %s, v2, %s, 0 offen offset:1024 sc1" % (v(vFR, 4), srd(SKV)))
        a.e("s_branch L_lJ")
    chain("K")
    a.lab("L_lV")
    chain("V")
    a.lab("L_lB")
    a.vm = list(vm0)
    for q in range(4):
        a.waitvm("c%d" % (2 * q + 1))
        a.e("s_barrier")
        if q == 0: a.stamp(3)
    a.lab("L_lJ")
    a.e("v_lshrrev_b32 v3, 2, v0")
    a.e("v_lshlrev_b32 v3, 10, v3")
    a.e("v_and_b32 v4, 3, v0")
    a.e("v_lshl_add_u32 v3, v4, 4, v3")
    a.e("s_lshl_b32 s%d, s%d, 14" % (sA, sW))
    a.e("s_lshl_b32 s%d, s%d, 6" % (sB, sM))
    a.e("s_add_u32 s%d, s%d, s%d" % (sA, sA, sB))
    a.e("v_add_u32 %s, s%d, v3" % (v(vDQ), sA))
    a.wait0(lgkm=True)
    a.e("s_barrier")
    a.e("s_cmp_lg_u32 s%d, 0" % sW)
    a.e("s_cbranch_scc1 L_noat")
    a.e("s_mov_b64 exec, 1")
    a.e("buffer_atomic_add %s, off, %s, 0 sc1" % (v(vONE), srd(SDBG)))
    a.e("s_mov_b64 exec, -1")
    a.lab("L_noat")
    for p in range(4):
        a.e("s_add_u32 m0, s%d, 0x%x" % (sWK, LL_WQ + p * 8192))
        a.e("s_mov_b32 s%d, 0x%x" % (sA, p * 128 * 1024))
        a.e("buffer_load_dwordx4 %s, %s, s%d offen lds" % (v(vDQ), srd(SWQ), sA))
    a.e("s_lshl_b32 s%d, s%d, 16" % (sA, sHI))
    for s in range(4): a.e("v_add_u32 %s, s%d, %s" % (v(vXA + s), sA, v(vXA + s)))
    a.e("s_lshl_b32 s%d, s%d, 14" % (sA, sHI))
    a.e("s_add_u32 s%d, s%d, 0x%x" % (sA, sA, LL_WQ))
    a.e("v_add_u32 %s, s%d, %s" % (v(vQA), sA, v(vQA)))
    a.wait0()
    a.e("s_barrier")
    def fr(k):
        b = vFR + 8 * (k % 4)
        return b, b + 4
    def reads(k):
        c, s = divmod(k, 4); x, w = fr(k)
        return [rd128(x, vXA + s, c * 16384), rdtr(w, vQA, k * 1024), rdtr(w + 2, vQA, k * 1024 + 256)]
    for k in range(2):
        for r in reads(k): a.e(r)
    for k in range(16):
        if k + 2 < 16:
            for r in reads(k + 2): a.e(r)
        a.e("s_waitcnt lgkmcnt(%d)" % (3 * min(2, 15 - k)))
        x, w = fr(k)
        a.e(mfma(vAQ, w, x, None if k == 0 else vAQ))
    spin_counter(a, "kvl", False)
    a.e("s_barrier")
    for s, t in kv_first_loads(a): a.e(s)
    a.wait0()
    a.stamp(4)
    a.e("s_branch L_join")

def gelu_tile(a, ti):
    acc = vACC + 16 * ti
    t = vFR
    o = vFR + 8 + 4 * ti
    pk = lambda r: v(r, 2)
    for i in range(4): a.e("v_pk_mul_f32 %s, %s, %s" % (pk(t + 2 * i), pk(acc + 2 * i), pk(acc + 2 * i)))
    for i in range(4): a.e("v_pk_fma_f32 %s, %s, %s, %s op_sel:[0,1,0] op_sel_hi:[1,1,0]" % (pk(t + 2 * i), pk(t + 2 * i), pk(vC0), pk(vC0)))
    for i in range(4): a.e("v_pk_mul_f32 %s, %s, %s" % (pk(t + 2 * i), pk(t + 2 * i), pk(acc + 2 * i)))
    for i in range(8): a.e("v_exp_f32 %s, %s" % (v(t + i), v(t + i)))
    for i in range(4): a.e("v_pk_add_f32 %s, %s, 1.0 op_sel_hi:[1,0]" % (pk(t + 2 * i), pk(t + 2 * i)))
    for i in range(8): a.e("v_rcp_f32 %s, %s" % (v(t + i), v(t + i)))
    for i in range(4): a.e("v_pk_mul_f32 %s, %s, %s" % (pk(acc + 2 * i), pk(acc + 2 * i), pk(acc + 8 + 2 * i)))
    for i in range(4): a.e("v_pk_mul_f32 %s, %s, %s" % (pk(acc + 2 * i), pk(acc + 2 * i), pk(t + 2 * i)))
    for i in range(4): a.e("v_cvt_pk_bf16_f32 %s, %s, %s" % (v(o + i), v(acc + 2 * i), v(acc + 2 * i + 1)))
    aa, bb = ti >> 1, ti & 1
    a.vmop("buffer_store_dwordx4 %s, %s, %s, s%d offen offset:%d sc1" % (v(o, 4), v(vL16), srd(SWS), sD if bb else sHST, aa * 1024), "hst")

def gelu_sub(a):
    a.lab("L_gelu")
    a.e("s_bitcmp1_b32 s%d, 0" % sLO)
    a.e("s_cselect_b32 s%d, 0x%x, 0x%x" % (sD, (-112 * 1024) & 0xffffffff, 0))
    a.e("s_cselect_b32 s%d, 0, 0x%x" % (sC, 112 * 1024))
    a.e("s_add_u32 s%d, s%d, s%d" % (sD, sD, sC))
    a.e("s_add_u32 s%d, s%d, s%d" % (sD, sD, sHST))
    for ti in range(4): gelu_tile(a, ti)
    a.e("s_setpc_b64 %s" % sp(sRET))

def Yseg(hset, toggle=False):
    out = []
    for t in range(2):
        S, Sn = vS + 16 * t, vS + 16 * (1 - t)
        K, V0, V1 = vKF + 4 * t, vV + 8 * t, vV + 8 * t + 4
        for j in range(8):
            out.append("v_exp_f32 %s, %s" % (v(vE + 2 * (j % 2)), v(S + 2 * j)))
            out.append("v_exp_f32 %s, %s" % (v(vE + 2 * (j % 2) + 1), v(S + 2 * j + 1)))
            jj = (j - 1) % 8
            out.append("v_cvt_pk_bf16_f32 %s, %s, %s" % (v(vP + jj), v(vE + 2 * (jj % 2)), v(vE + 2 * (jj % 2) + 1)))
            if j == 1: out.append(mfma(vO, V1, vP + 4, vO))
            if j == 3: out.append(mfma(Sn, K, vQ, None))
            if hset is None:
                if j == 7: out.append(mfma(vO, V0, vP, vO))
            else:
                if j == 5: out.append(mfma(vO, V0, vP, vO))
                if j == 6 and t == 1 and toggle:
                    out.append("v_xor_b32 %s, 0x4000, %s" % (v(vKVA), v(vKVA)))
                    out.append("v_xor_b32 %s, 0x8000, %s" % (v(vWDA), v(vWDA)))
                if j == 7: out.append(mfma(vD + 16 * t, vWF + 4 * t, vH + 4 * hset, vD + 16 * t))
    return out

def kv_reads(off):
    r = [rd128(vKF, vKVA, off), rd128(vKF + 4, vKVA, off + 2048), "s_mov_b64 exec, %s" % sp(sVM)]
    for t in range(2):
        r += [rd128(vV + 8 * t, vKVA, off + 2048 * t + 1024), rd128(vV + 8 * t + 4, vKVA, off + 2048 * t + 1280)]
    r.append("s_mov_b64 exec, -1")
    return r
def wd_reads(dst, addr, off):
    r = []
    for c in range(2):
        r += [rdtr(dst + 4 * c, addr, off + 512 * c), rdtr(dst + 4 * c + 2, addr, off + 512 * c + 1024)]
    return r

def attention(a, role):
    A = role == "A"
    def kvdma(u):
        a.vmop("s_add_u32 m0, s%d, 0x%x\ns_add_u32 s%d, s%d, 0x%x\nbuffer_load_dwordx4 %s, %s, s%d offen sc1 lds"
               % (sWK, L_KV + (u % 4) * 8192, sA, sWK, u * 8192, v(vL16), srd(SKV), sA), "kv%d" % u)
    def wddma(sg):
        a.vmop("s_add_u32 m0, s%d, 0x%x\ns_add_u32 s%d, s%d, 0x%x\nbuffer_load_dwordx4 %s, %s, s%d offen lds"
               % (sWK, L_WD + ((sg + 3) % 8) * 8192, sA, sWDOFF, sg * 16384, v(vWDV), srd(SWD), sA), "wd%d" % sg)
    def wodma(j):
        a.vmop("s_add_u32 m0, s%d, 0x%x\ns_add_u32 s%d, s%d, 0x%x\nbuffer_load_dwordx4 %s, %s, s%d offen lds"
               % (sWK, L_WO + j * 8192, sA, sB, j * 16384, v(vWDV), srd(SWO), sA), "wo")
    def hload(sg, dst):
        a.vmop("s_add_u32 s%d, s%d, 0x%x\nbuffer_load_dwordx4 %s, %s, %s, s%d offen sc1"
               % (sA, sHOFF, sg * 1024, v(dst, 4), v(vL16), srd(SWS), sA), "h%d" % sg)
    for n in range(11):
        if not A and n == 0: a.e("s_barrier")
        tags = []
        if A and n % 2 == 1: tags.append("kv%d" % ((n + 1) // 2))
        if not A and n % 2 == 0: tags.append("kv%d" % ((n + 2) // 2))
        if n == 2: tags.append("hst")
        if n == 10: tags.append("wd0")
        if n == 8 and A:
            a.e("s_cmp_lg_u32 s%d, 0" % sW)
            a.e("s_cbranch_scc1 L_hf_done")
            a.e("s_mov_b32 s%d, 0x4000" % sB)
            a.e("s_waitcnt vmcnt(2)")
            a.lab("L_hf_chk")
            a.e("v_cmp_ne_u32 vcc, 1, %s" % v(vPOLL))
            a.e("s_cbranch_vccz L_hf_done")
            a.e("s_sleep 2")
            a.e("buffer_load_dword %s, %s, %s, 0 offen sc1" % (v(vPOLL), v(vFLA), srd(SWS)))
            a.e("s_sub_u32 s%d, s%d, 1" % (sB, sB))
            a.e("s_cmp_lg_u32 s%d, 0" % sB)
            a.e("s_waitcnt vmcnt(0)")
            a.e("s_cbranch_scc1 L_hf_chk")
            a.lab("L_hf_done")
        a.waitvm(tags)
        if n == 3 and not A:
            a.e("s_cmp_ge_u32 s%d, 14" % sM)
            a.e("s_cbranch_scc1 L_nohf")
            a.e("s_cmp_lg_u32 s%d, 4" % sW)
            a.e("s_cbranch_scc1 L_nohf")
            a.e("s_lshl_b32 s%d, s%d, 4" % (sA, sG))
            a.e("s_add_u32 s%d, s%d, s%d" % (sA, sA, sM))
            a.e("s_lshl_b32 s%d, s%d, 7" % (sA, sA))
            a.e("s_add_u32 s%d, s%d, 0x%x" % (sA, sA, WS_HFLAG))
            a.e("s_mov_b64 exec, 1")
            a.e("buffer_store_dword %s, off, %s, s%d sc1" % (v(vONE), srd(SWS), sA))
            a.e("s_mov_b64 exec, -1")
            a.lab("L_nohf")
        for r in kv_reads((n % 8) * 4096): a.e(r)
        if n == 7 and A:
            a.e("s_cmp_lg_u32 s%d, 0" % sW)
            a.e("s_cbranch_scc1 L_hf_nol")
            a.e("buffer_load_dword %s, %s, %s, 0 offen sc1" % (v(vPOLL), v(vFLA), srd(SWS)))
            a.lab("L_hf_nol")
        if n == 0:
            kvdma(2); kvdma(3)
            a.e("s_lshr_b32 s%d, s%d, 1" % (sC, sW))
            a.e("s_mul_i32 s%d, s%d, %d" % (sWDOFF, sC, 448 * 1024))
            a.e("s_lshl_b32 s%d, s%d, 1" % (sA, sT))
            a.e("s_and_b32 s%d, s%d, 1" % (sB, sW))
            a.e("s_add_u32 s%d, s%d, s%d" % (sA, sA, sB))
            a.e("s_mul_i32 s%d, s%d, 112" % (sA, sA))
            a.e("s_mul_i32 s%d, s%d, 28" % (sB, sC))
            a.e("s_add_u32 s%d, s%d, s%d" % (sA, sA, sB))
            a.e("s_lshl_b32 s%d, s%d, 10" % (sA, sA))
            a.e("s_add_u32 s%d, s%d, 0x%x" % (sHOFF, sA, WS_HF))
        if (A and n % 2 == 1 and n >= 3): kvdma((n + 5) // 2)
        if (not A and n % 2 == 0 and n >= 2): kvdma((n + 6) // 2)
        if 1 <= n <= 3:
            a.e("s_lshr_b32 s%d, s%d, 1" % (sB, sW))
            a.e("s_lshl_b32 s%d, s%d, 17" % (sB, sB))
            for j in {1: (0, 1, 2), 2: (3, 4, 5), 3: (6, 7)}[n]: wodma(j)
        if n >= 4: wddma(n - 4)
        if n == 9:
            hload(0, vH + 12); hload(1, vH + 0); hload(24, vH + 16); hload(25, vH + 20)
        if n == 10:
            hload(26, vH + 24); hload(27, vH + 28); hload(2, vH + 4)
        a.e("s_waitcnt lgkmcnt(0)")
        a.e("s_call_b64 %s, L_Y%s" % (sp(sRET), role))
    a.e("s_add_u32 s%d, s%d, 0x%x" % (sHOFF, sHOFF, 3 * 1024))
    a.e("s_add_u32 s%d, s%d, 0x%x" % (sWDOFF, sWDOFF, 7 * 16384))
    a.e("s_mov_b32 s%d, 0x%x" % (sM0WD, ((7 + 3) % 8) * 8192))
    u0 = 8 if A else 9
    a.e("s_add_u32 s%d, s%d, 0x%x" % (sKVOFF, sWK, u0 * 8192))
    a.e("s_mov_b32 s%d, 6" % sCNT)
    a.waitvm(["h0", "wd1", "kv6"] if A else ["h0", "wd1"])
    a.e("s_branch L_loop%s_in" % role)
    a.l.append(".p2align 6")
    a.lab("L_loop%s" % role)
    for p in range(4):
        a.e("s_waitcnt vmcnt(5)")
        if p == 3: a.lab("L_loop%s_in" % role)
        for r in kv_reads(p * 4096): a.e(r)
        for r in wd_reads(vWF, vWDA, p * 8192): a.e(r)
        a.e("buffer_load_dwordx4 %s, %s, %s, s%d offen sc1" % (v(vH + 4 * ((p + 3) % 4), 4), v(vL16), srd(SWS), sHOFF))
        a.e("s_add_u32 m0, s%d, s%d" % (sWK, sM0WD))
        a.e("s_add_u32 s%d, s%d, 0x400" % (sHOFF, sHOFF))
        a.e("buffer_load_dwordx4 %s, %s, s%d offen lds" % (v(vWDV), srd(SWD), sWDOFF))
        a.e("s_add_u32 s%d, s%d, 0x4000" % (sWDOFF, sWDOFF))
        a.e("s_add_u32 s%d, s%d, 0x2000" % (sM0WD, sM0WD))
        a.e("s_and_b32 s%d, s%d, 0xffff" % (sM0WD, sM0WD))
        if (p % 2 == 1) == A:
            a.e("s_and_b32 s%d, s%d, 0x7fff" % (sA, sKVOFF))
            a.e("s_add_u32 m0, s%d, 0x%x" % (sA, L_KV))
            a.e("s_nop 0")
            a.e("buffer_load_dwordx4 %s, %s, s%d offen sc1 lds" % (v(vL16), srd(SKV), sKVOFF))
            a.e("s_add_u32 s%d, s%d, 0x2000" % (sKVOFF, sKVOFF))
        if p == 3:
            a.e("s_sub_u32 s%d, s%d, 1" % (sCNT, sCNT))
            a.e("s_cmp_lg_u32 s%d, 0" % sCNT)
        a.e("s_waitcnt lgkmcnt(0)")
        if A: a.e("s_barrier")
        for x in Yseg(p, toggle=(p == 3)): a.e(x)
        if not A:
            if p == 3: a.e("s_cbranch_scc0 L_tail")
            a.e("s_barrier")
    a.e(("s_cbranch_scc1 L_loop%s" if A else "s_branch L_loop%s") % role)

def ysubs(a):
    for role in "AB":
        a.l.append(".p2align 6")
        a.lab("L_Y%s" % role)
        if role == "A": a.e("s_barrier")
        for x in Yseg(None): a.e(x)
        if role == "B": a.e("s_barrier")
        a.e("s_setpc_b64 %s" % sp(sRET))

def transition(a):
    a.lab("L_join")
    a.e("s_lshl_b32 s%d, s%d, 11" % (sA, sW))
    a.e("s_add_u32 s%d, s%d, 0x%x" % (sA, sA, L_QX))
    a.e("v_add_u32 v2, s%d, %s" % (sA, v(vL16)))
    a.e("v_xor_b32 v3, 0x2000, v2")
    a.e("s_cmp_lg_u32 s%d, 0" % sHI)
    a.e("s_cbranch_scc1 L_trB")
    vm0 = list(a.vm)
    for role in "AB":
        a.vm = list(vm0)
        A = role == "A"
        if not A: a.lab("L_trB")
        keep, send = (vAQ, vAQ + 8) if A else (vAQ + 8, vAQ)
        a.e("s_nop 7")
        a.e("ds_write_b128 v2, %s" % v(send, 4))
        a.e("ds_write_b128 v2, %s offset:1024" % v(send + 4, 4))
        a.e("s_waitcnt lgkmcnt(0)")
        a.e("s_barrier")
        a.e(rd128(send, 3, 0))
        a.e(rd128(send + 4, 3, 1024))
        if A: a.e("s_setprio 1")
        def qfin():
            a.e("s_waitcnt lgkmcnt(0)")
            for i in range(4): a.e("v_pk_add_f32 %s, %s, %s" % (v(keep + 2 * i, 2), v(keep + 2 * i, 2), v(send + 2 * i, 2)))
            for i in range(4): a.e("v_cvt_pk_bf16_f32 %s, %s, %s" % (v(vQ + i), v(keep + 2 * i), v(keep + 2 * i + 1)))
        def gelu():
            a.e("s_cmp_ge_u32 s%d, 14" % sM)
            a.e("s_cbranch_scc1 L_nog%s" % role)
            a.e("s_call_b64 %s, L_gelu" % sp(sRET))
            a.vm += ["hst"] * 4
            a.lab("L_nog%s" % role)
        if A:
            gelu(); qfin()
            a.waitvm(["k0", "kv0", "kv1"])
            a.e("s_barrier")
        else:
            a.waitvm(["k0", "kv0", "kv1"], lgkm=True)
            a.e("s_barrier")
            gelu(); qfin()
            a.e("s_nop 1")
        a.e(mfma(vS, vK0, vQ, None))
        a.stamp(5)
        attention(a, role)
        if A: a.e("s_branch L_tail")

def tail(a):
    a.lab("L_tail")
    a.e("v_cvt_pk_bf16_f32 %s, %s, %s" % (v(vP + 7), v(vE + 2), v(vE + 3)))
    a.stamp(6)
    a.e("s_setprio 0")
    a.e("s_mov_b32 s%d, 0x%x" % (sC, f2u(2.0 ** -16)))
    a.e(mfma(vO, vV1L, vP + 4, vO))
    a.e("s_mov_b32 s%d, 0x%x" % (sD, f2u(2.0 ** 100)))
    a.e("s_nop 10")
    t = vFR
    a.e("v_rcp_f32 %s, %s" % (v(t + 2), v(vO + 8)))
    a.e("v_pk_mul_f32 %s, %s, 0 op_sel_hi:[1,0]" % (v(t, 2), v(vO, 2)))
    for i in range(1, 4): a.e("v_pk_fma_f32 %s, %s, 0, %s op_sel_hi:[1,0,1]" % (v(t, 2), v(vO + 2 * i, 2), v(t, 2)))
    a.e("v_add_f32 %s, %s, %s" % (v(t), v(t), v(t + 1)))
    a.e("v_add_f32 %s, %s, %s" % (v(t), v(t), v(vO + 8)))
    a.e("v_cmp_nle_f32 vcc, s%d, %s" % (sC, v(t)))
    a.e("v_cmp_nge_f32 %s, s%d, %s" % (sp(sTMPP), sD, v(t)))
    a.e("s_or_b64 vcc, vcc, %s" % sp(sTMPP))
    a.e("s_branch L_fb" if Opt.force_fb else "s_cbranch_scc1 L_fb")
    a.lab("L_fbret")
    a.e("v_mul_f32 %s, %s, %s" % (v(t + 2), v(t + 2), v(vGP)))
    for i in range(4): a.e("v_pk_mul_f32 %s, %s, %s op_sel_hi:[1,0]" % (v(vO + 2 * i, 2), v(vO + 2 * i, 2), v(t + 2, 2)))
    for i in range(4): a.e("v_cvt_pk_bf16_f32 %s, %s, %s" % (v(vP + i), v(vO + 2 * i), v(vO + 2 * i + 1)))
    for i in range(4): a.e("v_min_u32 %s, -2, %s" % (v(vP + i), v(vP + i)))
    a.e("buffer_store_dwordx4 %s, %s, %s, s%d offen sc1" % (v(vP, 4), v(vL16), srd(SWS), sOST))
    a.e("s_waitcnt vmcnt(1)")
    a.e("s_barrier")
    hreg = {21: vH + 0, 22: vH + 4, 23: vH + 8, 24: vH + 16, 25: vH + 20, 26: vH + 24, 27: vH + 28}
    wf = [vFR, vFR + 8, vFR + 16]
    for i in range(2):
        for r in wd_reads(wf[i], vWDA, i * 8192): a.e(r)
    for i in range(7):
        if i + 2 < 7:
            for r in wd_reads(wf[(i + 2) % 3], vWDA, (i + 2) * 8192): a.e(r)
        a.e("s_waitcnt lgkmcnt(%d)" % (4 * min(2, 6 - i)))
        for c in range(2): a.e(mfma(vD + 16 * c, wf[i % 3] + 4 * c, hreg[21 + i], vD + 16 * c))
    a.e("s_barrier")
    a.e("v_add_u32 %s, 0x%x, %s" % (v(vWDA), L_WO, v(vWDA)))
    a.e("v_sub_f32 %s, 1.0, %s" % (v(vGC), v(vGC)))
    a.e("s_waitcnt vmcnt(0)")
    a.stamp(7)
    for j in range(8):
        if j == 4: a.e("s_add_u32 s%d, s%d, 0x1000" % (sA, sOLD))
        a.e("buffer_load_dwordx4 %s, %s, %s, s%d offen offset:%d sc1" % (v(vS + 4 * j, 4), v(vL16), srd(SWS), sOLD if j < 4 else sA, (j % 4) * 1024))
    for i in range(2):
        for r in wd_reads(wf[i], vWDA, i * 8192): a.e(r)
    for i in range(16): a.e("v_pk_mul_f32 %s, %s, %s op_sel:[0,1] op_sel_hi:[1,1]" % (v(vD + 2 * i, 2), v(vD + 2 * i, 2), v(vGP, 2)))
    aw = vXA
    ar = vWA
    a.e("v_and_b32 v2, 31, v0")
    a.e("v_lshrrev_b32 v3, 5, v0")
    a.e("v_and_b32 v4, 7, v0")
    a.e("v_xor_b32 v3, v3, v4")
    a.e("v_lshlrev_b32 v3, 4, v3")
    a.e("v_lshl_add_u32 v3, v2, 8, v3")
    a.e("s_and_b32 s%d, s%d, 1" % (sB, sW))
    a.e("s_lshl_b32 s%d, s%d, 15" % (sB, sB))
    a.e("s_lshr_b32 s%d, s%d, 1" % (sC, sW))
    a.e("s_lshl_b32 s%d, s%d, 13" % (sD, sC))
    a.e("s_add_u32 s%d, s%d, s%d" % (sD, sD, sB))
    a.e("v_add_u32 %s, s%d, v3" % (v(aw), sD))
    for j in range(1, 4): a.e("v_xor_b32 %s, %d, %s" % (v(aw + j), 32 * j, v(aw)))
    a.e("v_lshrrev_b32 v2, 3, v0")
    a.e("v_lshlrev_b32 v3, 1, v4")
    a.e("v_xor_b32 v3, v3, v2")
    a.e("v_lshlrev_b32 v3, 4, v3")
    a.e("v_lshl_add_u32 v3, v2, 8, v3")
    a.e("s_lshl_b32 s%d, s%d, 11" % (sD, sC))
    a.e("s_add_u32 s%d, s%d, s%d" % (sD, sD, sB))
    a.e("v_add_u32 %s, s%d, v3" % (v(ar), sD))
    a.e("v_xor_b32 %s, 16, %s" % (v(ar + 1), v(ar)))
    a.e("v_lshlrev_b32 v4, 4, v4")
    a.e("v_lshl_add_u32 %s, v2, 10, v4" % v(ar + 2))
    a.e("s_lshl_b32 s%d, s%d, 13" % (sC, sC))
    a.e("s_add_u32 s%d, s%d, s%d" % (sB, sB, sC))
    a.e("s_lshl_b32 s%d, s%d, 16" % (sC, sT))
    a.e("s_add_u32 s%d, s%d, s%d" % (sB, sB, sC))
    a.e("s_lshl_b32 s%d, s%d, 7" % (sC, sCB))
    a.e("s_add_u32 s%d, s%d, s%d" % (sCNT, sB, sC))
    a.e("s_mov_b32 s%d, 0x2000" % sB)
    for j in range(8):
        o = vS + 4 * j
        if j + 2 < 8:
            for r in wd_reads(wf[(j + 2) % 3], vWDA, (j + 2) * 8192): a.e(r)
        a.e("s_waitcnt vmcnt(%d)" % (7 - j))
        a.lab("L_ochk%d" % j)
        a.e("v_max3_u32 v2, %s, %s, %s" % (v(o), v(o + 1), v(o + 2)))
        a.e("v_max_u32 v2, v2, %s" % v(o + 3))
        a.e("v_cmp_eq_u32 vcc, -1, v2")
        a.e("s_cbranch_vccnz L_ore%d" % j)
        a.lab("L_ook%d" % j)
        a.e("s_waitcnt lgkmcnt(%d)" % (4 * min(2, 7 - j)))
        for c in range(2): a.e(mfma(vD + 16 * c, wf[j % 3] + 4 * c, o, vD + 16 * c))
    a.stamp(8)
    a.e("s_nop 10")
    for c in range(2):
        for j in range(4):
            a.e("ds_write_b128 %s, %s offset:%d" % (v(aw + j), v(vD + 16 * c + 4 * j, 4), 128 * c))
    a.e("s_waitcnt lgkmcnt(0)")
    a.e("s_barrier")
    for p in range(4):
        for h in range(2): a.e(rd128(vS + 8 * p + 4 * h, ar + h, p * 8192))
    for p in range(1, 4):
        a.e("s_waitcnt lgkmcnt(%d)" % (6 - 2 * p))
        for i in range(4): a.e("v_pk_add_f32 %s, %s, %s" % (v(vS + 2 * i, 2), v(vS + 2 * i, 2), v(vS + 8 * p + 2 * i, 2)))
    for i in range(4): a.e("v_cvt_pk_bf16_f32 %s, %s, %s" % (v(vP + i), v(vS + 2 * i), v(vS + 2 * i + 1)))
    a.e("buffer_store_dwordx4 %s, %s, %s, s%d offen %s" % (v(vP, 4), v(ar + 2), srd(SOUT), sCNT, Opt.out_pol))
    if Opt.diag:
        a.e("s_waitcnt vmcnt(0)")
        a.stamp(9)
        a.e("s_mov_b32 s%d, s%d" % (sSTAMP + 3, sSTAMP))
        a.e("s_mov_b32 s%d, s%d" % (sSTAMP, sB))
        a.e("s_getreg_b32 s%d, hwreg(HW_REG_XCC_ID)" % (sSTAMP + 1))
        for i in range(20): a.e("v_mov_b32 %s, s%d" % (v(vS + i), sSTAMP + i))
        a.e("s_lshl_b32 s%d, s2, 3" % sA)
        a.e("s_add_u32 s%d, s%d, s%d" % (sA, sA, sW))
        a.e("s_lshl_b32 s%d, s%d, 7" % (sA, sA))
        a.e("s_add_u32 s%d, s%d, 0x%x" % (sA, sA, WS_STAMP))
        a.e("s_mov_b64 exec, 1")
        for i in range(5): a.e("buffer_store_dwordx4 %s, off, %s, s%d offset:%d" % (v(vS + 4 * i, 4), srd(SWS), sA, 16 * i))
    a.lab("L_end")
    a.e("s_endpgm")
    for j in range(8):
        a.lab("L_ore%d" % j)
        a.e("s_sub_u32 s%d, s%d, 1" % (sB, sB))
        a.e("s_cbranch_scc1 L_ogive%d" % j)
        a.e("s_sleep 1")
        a.e("buffer_load_dwordx4 %s, %s, %s, s%d offen offset:%d sc1" % (v(vS + 4 * j, 4), v(vL16), srd(SWS), sOLD if j < 4 else sA, (j % 4) * 1024))
        a.e("s_waitcnt vmcnt(0)")
        a.e("s_branch L_ochk%d" % j)
        a.lab("L_ogive%d" % j)
        a.e("s_mov_b32 s%d, 0" % sB)
        a.e("s_branch L_ook%d" % j)

def fallback(a):
    a.lab("L_fb")
    m = vFR + 4
    a.e("v_mov_b32 %s, 0xff800000" % v(m))
    a.e("s_mov_b32 s%d, 0" % sA)
    a.lab("L_fb1")
    a.e("buffer_load_dwordx4 %s, %s, %s, s%d offen sc1" % (v(vKF, 4), v(vL16), srd(SKV), sA))
    a.e("s_waitcnt vmcnt(0)")
    a.e(mfma(vS, vKF, vQ, None))
    a.e("s_add_u32 s%d, s%d, 2048" % (sA, sA))
    a.e("s_nop 11")
    for i in range(8): a.e("v_max3_f32 %s, %s, %s, %s" % (v(m), v(m), v(vS + 2 * i), v(vS + 2 * i + 1)))
    a.e("s_cmp_lt_u32 s%d, 0x20000" % sA)
    a.e("s_cbranch_scc1 L_fb1")
    a.e("v_mov_b32 %s, %s" % (v(m + 1), v(m)))
    a.e("s_nop 1")
    a.e("v_permlane32_swap_b32 %s, %s" % (v(m), v(m + 1)))
    a.e("s_nop 1")
    a.e("v_max_f32 %s, %s, %s" % (v(m), v(m), v(m + 1)))
    for i in range(16): a.e("v_sub_f32 %s, 0, %s" % (v(vS + 16 + i), v(m)))
    for i in range(16): a.e("v_mov_b32 %s, 0" % v(vO + i))
    a.e("s_mov_b32 s%d, 0" % sA)
    a.lab("L_fb2")
    a.e("s_add_u32 s%d, s%d, 0x%x" % (sB, sA, 63 * 2048))
    a.e("s_and_b32 s%d, s%d, 0x1ffff" % (sB, sB))
    a.e("buffer_load_dwordx4 %s, %s, %s, s%d offen sc1" % (v(vKF, 4), v(vL16), srd(SKV), sB))
    a.e("s_add_u32 s%d, s%d, 2048" % (sB, sA))
    a.e("s_and_b32 s%d, s%d, 0x1ffff" % (sB, sB))
    a.e("s_mov_b64 exec, %s" % sp(sVM))
    a.e("buffer_load_dwordx4 %s, %s, %s, s%d offen offset:1024 sc1" % (v(vV, 4), v(vL16), srd(SKV), sA))
    a.e("buffer_load_dwordx4 %s, %s, %s, s%d offen offset:1280 sc1" % (v(vV + 4, 4), v(vL16), srd(SKV), sB))
    a.e("s_mov_b64 exec, -1")
    a.e("s_waitcnt vmcnt(0)")
    a.e(mfma(vS, vKF, vQ, vS + 16))
    a.e("s_add_u32 s%d, s%d, 2048" % (sA, sA))
    a.e("s_nop 11")
    for i in range(16): a.e("v_exp_f32 %s, %s" % (v(vS + i), v(vS + i)))
    for i in range(8): a.e("v_cvt_pk_bf16_f32 %s, %s, %s" % (v(vP + i), v(vS + 2 * i), v(vS + 2 * i + 1)))
    a.e("s_nop 1")
    a.e(mfma(vO, vV, vP, vO))
    a.e(mfma(vO, vV + 4, vP + 4, vO))
    a.e("s_cmp_lt_u32 s%d, 0x20000" % sA)
    a.e("s_cbranch_scc1 L_fb2")
    a.e("s_nop 11")
    a.e("v_rcp_f32 %s, %s" % (v(vFR + 2), v(vO + 8)))
    a.e("s_branch L_fbret")

def build():
    a = Asm()
    prologue(a)
    phase1_F(a)
    transition(a)
    tail(a)
    ysubs(a)
    vm = a.vm; gelu_sub(a); a.vm = vm
    phase1_L(a)
    fallback(a)
    a.lab("L_codeend")
    head = open("cdna_kernels/%s.s.ref" % NAME).read().split("\n")
    hdr = [l for l in head if l.startswith(";") and "@launch" not in l and "Override" not in l and "grid=" not in l]
    out = hdr + ["; @launch grid=(256,1,1) block=(512,1,1) lds=%d" % LDS_BYTES,
                 '.amdgcn_target "amdgcn-amd-amdhsa--gfx950"', ".text", ".globl %s_kernel" % NAME, ".p2align 8",
                 ".type %s_kernel,@function" % NAME,
                 ".set CODE_PF_MAX, L_codeend - L_nopf - 4" if Opt.code_pf else "",
                 "%s_kernel:" % NAME]
    out += a.l
    out += ['.section .rodata,"a"', ".p2align 6", ".amdhsa_kernel %s_kernel" % NAME,
            "  .amdhsa_next_free_vgpr %d" % NV, "  .amdhsa_next_free_sgpr 102", "  .amdhsa_accum_offset 256",
            "  .amdhsa_group_segment_fixed_size 0", "  .amdhsa_kernarg_size 104", "  .amdhsa_user_sgpr_count 2",
            "  .amdhsa_user_sgpr_kernarg_segment_ptr 1", "  .amdhsa_system_sgpr_workgroup_id_x 1", ".end_amdhsa_kernel", ""]
    return "\n".join(out)

if __name__ == "__main__":
    path = sys.argv[1]
    for kv in sys.argv[2:]:
        k, val = kv.split("=")
        cur = getattr(Opt, k)
        setattr(Opt, k, val if isinstance(cur, str) else type(cur)(int(val)))
    open(path, "w").write(build())
```

```python
import sys, struct, math

NAME = "gated_mix__grouped_kv_mqa__geglu_ffn__prompt"

class Opt:
    diag = False
    mapmode = 1
    force_fb = False
    out_pol = ""
    code_pf = True
    pin = -1
    pin_ns = 60000

def f2u(x): return struct.unpack("<I", struct.pack("<f", x))[0]

WS_KV = 0
WS_G = 128 * 1024
WS_HFLAG = 192 * 1024
WS_OF = 1 << 20
WS_HF = 4 << 20
WS_STAMP = 12 << 20
WS_SIZE = 16 << 20
K1 = 1024
L_G, L_U, L_X, L_WQ = 0, 48 * K1, 96 * K1, 144 * K1
L_QX = 32 * K1
L_WD, L_WO, L_KV = 0, 64 * K1, 128 * K1
LL_X, LL_W, LL_GATE, LL_WQ = 0, 128 * K1, 144 * K1, 128 * K1
LDS_BYTES = 160 * K1

SX, SWG, SWU, SWQ, SWS, SWD, SWO, SOUT, SDBG, SWKV, SGATE, SKV = 4, 8, 12, 16, 20, 24, 28, 32, 36, 40, 44, 64
sTMPP = 48
sW, sHI, sLO, sG, sM, sT, sCB = 50, 51, 52, 53, 54, 55, 56
sWK = 57
sWH = 58
sK64 = 59
sVM = 60
sRET = 62
sA, sB, sC, sD = 68, 69, 70, 71
sOFFW, sOFFQ = 72, 73
sHOFF, sWDOFF, sKVOFF, sM0WD, sM0KV, sCNT = 72, 73, 74, 75, 76, 77
sOST, sOLD, sHST = 78, 79, 80
sWDW = 81
sSTAMP = 82

def srd(b): return "s[%d:%d]" % (b, b + 3)
def sp(b): return "s[%d:%d]" % (b, b + 1)
def v(b, n=1): return "v%d" % b if n == 1 else "v[%d:%d]" % (b, b + n - 1)

vL16 = 1
vT0, vT1, vT2, vT3 = 2, 3, 4, 5
vGP, vGC = 6, 7
vKVA = 8
vWDA = 9
vWDV = 10
vONE = 11
vZERO = 12
vFLA = 13
vPOLL = 14
vGA = 15
vQ = 16
vK0 = 20
vV1L = 24
vE = 28
vP = 32
vV = 40
vO = 56
vD = 72
vACC = 104
vS = 104
vH = 136
vAQ = 168
vKF = 168
vWF = 176
vFR = 184
vXA = 224
vWA = 232
vQA = 236
vDX, vDG, vDU, vDQ = 237, 238, 239, 240
vC0 = 242
NV = 256

class Asm:
    def __init__(self):
        self.l = []
        self.vm = []
        self.nstamp = 0
    def e(self, s):
        for x in s.split("\n"):
            x = x.strip()
            if x: self.l.append("    " + x)
    def lab(self, s): self.l.append(s + ":")
    def vmop(self, s, tag):
        self.e(s); self.vm.append(tag)
    def vmn(self, tags):
        if isinstance(tags, str): tags = [tags]
        last = -1
        for i, t in enumerate(self.vm):
            if t in tags: last = i
        return None if last < 0 else len(self.vm) - 1 - last
    def waitvm(self, tags, lgkm=False):
        n = self.vmn(tags)
        if n is None:
            if lgkm: self.e("s_waitcnt lgkmcnt(0)")
            return
        assert n < 64
        self.e("s_waitcnt vmcnt(%d)%s" % (n, " lgkmcnt(0)" if lgkm else ""))
        self.vm = self.vm[len(self.vm) - n:] if n else []
    def wait0(self, lgkm=False):
        self.e("s_waitcnt vmcnt(0)%s" % (" lgkmcnt(0)" if lgkm else "")); self.vm = []
    def stamp(self, i, real=False):
        if Opt.pin == i:
            self.nstamp += 1
            self.e("s_waitcnt lgkmcnt(0)")
            self.e("s_cselect_b32 s%d, 1, 0" % (sSTAMP + 5))
            self.lab("L_pin%d" % self.nstamp)
            self.e("s_memrealtime s[0:1]")
            self.e("s_waitcnt lgkmcnt(0)")
            self.e("s_sub_u32 s0, s0, s%d" % sSTAMP)
            self.e("s_cmp_lt_u32 s0, %d" % (Opt.pin_ns // 10))
            self.e("s_cbranch_scc1 L_pin%d" % self.nstamp)
            self.e("s_cmp_lg_u32 s%d, 0" % (sSTAMP + 5))
        if Opt.diag:
            self.e("s_waitcnt lgkmcnt(0)")
            self.e("s_memtime %s" % sp(sSTAMP + 2 * i))
            self.e("s_memrealtime s[0:1]")
            self.e("s_waitcnt lgkmcnt(0)")
            self.e("s_mov_b32 s%d, s0" % (sSTAMP + 2 * i + 1))

def mfma(d, a, b, c):
    return "v_mfma_f32_32x32x16_bf16 %s, %s, %s, %s" % (v(d, 16), v(a, 4), v(b, 4), "0" if c is None else v(c, 16))
def rd128(d, a, off):
    assert 0 <= off < 65536
    return "ds_read_b128 %s, %s offset:%d" % (v(d, 4), v(a), off)
def rdtr(d, a, off):
    assert 0 <= off < 65536
    return "ds_read_b64_tr_b16 %s, %s offset:%d" % (v(d, 2), v(a), off)

def interleave(mf, fill, per=2):
    out = []
    fill = list(fill)
    for i, m in enumerate(mf):
        out.append(m)
        if i < len(mf) - 1:
            out += fill[:per]; fill = fill[per:]
    return out + fill

def prologue(a):
    a.e("s_cmp_ge_u32 s2, 256")
    a.e("s_cbranch_scc1 L_end")
    for reg, off in ((SX, 0), (SWG, 48), (SWU, 56), (SWQ, 8), (SWS, 96), (SWKV, 16), (sTMPP, 24), (SGATE, 72),
                     (SWD, 64), (SWO, 32), (SOUT, 80), (SDBG, 88), (SKV, 96)):
        a.e("s_load_dwordx2 %s, s[0:1], %d" % (sp(reg), off))
    if Opt.diag or Opt.pin >= 0:
        a.e("s_memrealtime %s" % sp(sSTAMP))
        a.e("s_memtime %s" % sp(sSTAMP + 2))
    a.e("v_lshrrev_b32 v2, 6, v0")
    a.e("v_and_b32 v0, 63, v0")
    a.e("v_readfirstlane_b32 s%d, v2" % sW)
    a.e("v_lshlrev_b32 %s, 4, v0" % v(vL16))
    for reg, size in ((SX, 2048 * 1024), (SWG, 512 * 3584), (SWU, 512 * 3584), (SWQ, 512 * 1024), (SWS, WS_SIZE),
                      (SWKV, 16384), (SGATE, 1024), (SWD, 1792 * 1024), (SWO, 512 * 1024), (SOUT, 2048 * 1024),
                      (SDBG, 256), (SKV, 128 * 1024)):
        a.e("s_mov_b32 s%d, 0x%x" % (reg + 2, size))
        a.e("s_mov_b32 s%d, 0x20000" % (reg + 3))
    a.e("s_and_b32 s%d, s2, 7" % sA)
    a.e("s_lshr_b32 s%d, s2, 3" % sB)
    if Opt.mapmode == 0:
        a.e("s_lshl_b32 s%d, s%d, 1" % (sG, sA))
        a.e("s_and_b32 s%d, s%d, 1" % (sC, sB))
        a.e("s_add_u32 s%d, s%d, s%d" % (sG, sG, sC))
        a.e("s_lshr_b32 s%d, s%d, 1" % (sM, sB))
    elif Opt.mapmode == 1:
        a.e("s_and_b32 s%d, s%d, 1" % (sG, sA))
        a.e("s_lshl_b32 s%d, s%d, 3" % (sG, sG))
        a.e("s_and_b32 s%d, s%d, 7" % (sC, sB))
        a.e("s_add_u32 s%d, s%d, s%d" % (sG, sG, sC))
        a.e("s_lshr_b32 s%d, s%d, 1" % (sM, sA))
        a.e("s_lshl_b32 s%d, s%d, 2" % (sM, sM))
        a.e("s_lshr_b32 s%d, s%d, 3" % (sC, sB))
        a.e("s_add_u32 s%d, s%d, s%d" % (sM, sM, sC))
    else:
        a.e("s_and_b32 s%d, s%d, 3" % (sG, sA))
        a.e("s_lshl_b32 s%d, s%d, 2" % (sG, sG))
        a.e("s_and_b32 s%d, s%d, 3" % (sC, sB))
        a.e("s_add_u32 s%d, s%d, s%d" % (sG, sG, sC))
        a.e("s_lshr_b32 s%d, s%d, 2" % (sM, sA))
        a.e("s_lshl_b32 s%d, s%d, 3" % (sM, sM))
        a.e("s_lshr_b32 s%d, s%d, 2" % (sC, sB))
        a.e("s_add_u32 s%d, s%d, s%d" % (sM, sM, sC))
    a.e("s_lshl_b32 s%d, s%d, 2" % (sT, sA))
    a.e("s_and_b32 s%d, s%d, 3" % (sC, sB))
    a.e("s_add_u32 s%d, s%d, s%d" % (sT, sT, sC))
    a.e("s_lshr_b32 s%d, s%d, 2" % (sCB, sB))
    a.e("s_lshr_b32 s%d, s%d, 2" % (sHI, sW))
    a.e("s_and_b32 s%d, s%d, 3" % (sLO, sW))
    a.e("s_lshl_b32 s%d, s%d, 10" % (sWK, sW))
    a.e("s_lshl_b32 s%d, s%d, 9" % (sWH, sW))
    a.e("s_mov_b32 s%d, 0x10000" % sK64)
    a.e("s_mov_b32 s%d, 0xffff" % sVM)
    a.e("s_mov_b32 s%d, 0xffff" % (sVM + 1))
    if Opt.code_pf:
        a.e("s_cmp_lg_u32 s%d, s%d" % (sC, sW))
        a.e("s_cbranch_scc1 L_nopf")
        a.e("s_getpc_b64 %s" % sp(sRET))
        a.e("s_lshl_b32 s%d, s%d, 13" % (sD, sW))
        a.e("v_lshl_add_u32 v2, v0, 7, s%d" % sD)
        a.e("v_min_u32 v2, CODE_PF_MAX, v2")
        a.e("global_load_dword %s, v2, %s" % (v(vPOLL), sp(sRET)))
        a.lab("L_nopf")
    a.e("s_lshl_b32 s%d, s%d, 2" % (sA, sW))
    a.e("v_lshrrev_b32 v2, 4, v0")
    a.e("v_add_u32 v3, s%d, v2" % sA)
    a.e("v_xor_b32 v3, v3, v0")
    a.e("v_and_b32 v3, 7, v3")
    a.e("v_lshlrev_b32 v3, 4, v3")
    a.e("v_lshrrev_b32 v4, 3, v0")
    a.e("v_lshl_add_u32 v3, v4, 10, v3")
    a.e("s_lshl_b32 s%d, s%d, 17" % (sA, sG))
    a.e("s_lshl_b32 s%d, s%d, 13" % (sB, sW))
    a.e("s_add_u32 s%d, s%d, s%d" % (sA, sA, sB))
    a.e("v_add_u32 %s, s%d, v3" % (v(vDX), sA))
    a.e("s_cmp_ge_u32 s%d, 14" % sM)
    a.e("s_cbranch_scc1 L_light")

def setup_late(a):
    a.e("s_lshl_b32 s%d, s%d, 2" % (sA, sG))
    a.e("s_add_u32 s%d, s%d, s%d" % (sA, sA, sLO))
    a.e("s_lshl_b32 s%d, s%d, 5" % (sB, sA))
    a.e("s_lshl_b32 s%d, s%d, 1" % (sC, sM))
    a.e("s_add_u32 s%d, s%d, s%d" % (sB, sB, sC))
    a.e("s_add_u32 s%d, s%d, s%d" % (sB, sB, sHI))
    a.e("s_lshl_b32 s%d, s%d, 10" % (sB, sB))
    a.e("s_add_u32 s%d, s%d, 0x%x" % (sOST, sB, WS_OF))
    for i in range(4): a.e("v_mov_b32 %s, -1" % v(vP + i))
    a.vmop("buffer_store_dwordx4 %s, %s, %s, s%d offen sc1" % (v(vP, 4), v(vL16), srd(SWS), sOST), "oclr")
    a.e("s_mul_i32 s%d, s%d, 112" % (sB, sA))
    a.e("s_lshl_b32 s%d, s%d, 3" % (sC, sM))
    a.e("s_add_u32 s%d, s%d, s%d" % (sB, sB, sC))
    a.e("s_lshl_b32 s%d, s%d, 2" % (sC, sHI))
    a.e("s_add_u32 s%d, s%d, s%d" % (sB, sB, sC))
    a.e("s_and_b32 s%d, s%d, 1" % (sC, sLO))
    a.e("s_lshl_b32 s%d, s%d, 1" % (sC, sC))
    a.e("s_add_u32 s%d, s%d, s%d" % (sB, sB, sC))
    a.e("s_lshl_b32 s%d, s%d, 10" % (sB, sB))
    a.e("s_add_u32 s%d, s%d, 0x%x" % (sHST, sB, WS_HF))
    a.e("v_and_b32 v2, 31, v0")
    a.e("v_lshrrev_b32 v3, 5, v0")
    a.e("v_lshlrev_b32 %s, 2, v2" % v(vGA))
    a.e("v_bfe_u32 v4, v0, 1, 3")
    a.e("v_xor_b32 v4, v4, v3")
    a.e("v_lshlrev_b32 v4, 4, v4")
    a.e("v_lshl_add_u32 v4, v2, 7, v4")
    a.e("s_lshl_b32 s%d, s%d, 12" % (sA, sLO))
    a.e("v_add_u32 %s, s%d, v4" % (v(vXA), sA))
    a.e("v_bfe_u32 v2, v0, 2, 2")
    a.e("v_and_b32 v4, 3, v0")
    a.e("v_bfe_u32 v5, v0, 4, 1")
    a.e("v_lshl_add_u32 %s, v3, 3, v2" % v(vQA))
    a.e("v_lshlrev_b32 %s, 6, %s" % (v(vQA), v(vQA)))
    a.e("v_lshl_add_u32 %s, v5, 5, %s" % (v(vQA), v(vQA)))
    a.e("v_lshl_add_u32 %s, v4, 3, %s" % (v(vQA), v(vQA)))
    a.e("v_lshl_add_u32 %s, v3, 2, v2" % v(vWDA))
    a.e("v_lshlrev_b32 %s, 6, %s" % (v(vWDA), v(vWDA)))
    a.e("v_lshl_add_u32 %s, v5, 5, %s" % (v(vWDA), v(vWDA)))
    a.e("v_lshl_add_u32 %s, v4, 3, %s" % (v(vWDA), v(vWDA)))
    a.e("s_lshr_b32 s%d, s%d, 1" % (sA, sW))
    a.e("s_lshl_b32 s%d, s%d, 11" % (sA, sA))
    a.e("v_add_u32 %s, s%d, %s" % (v(vWDA), sA, v(vWDA)))

def setup_attn(a):
    a.e("v_add_u32 %s, 0x%x, %s" % (v(vKVA), L_KV, v(vL16)))
    a.e("v_bfe_u32 v2, v0, 2, 3")
    a.e("v_lshlrev_b32 v2, 10, v2")
    a.e("v_lshrrev_b32 v3, 5, v0")
    a.e("v_lshl_add_u32 v2, v3, 6, v2")
    a.e("v_and_b32 v3, 3, v0")
    a.e("v_lshl_add_u32 v2, v3, 4, v2")
    a.e("s_and_b32 s%d, s%d, 1" % (sA, sW))
    a.e("s_lshl_b32 s%d, s%d, 13" % (sA, sA))
    a.e("s_lshl_b32 s%d, s%d, 7" % (sB, sCB))
    a.e("s_add_u32 s%d, s%d, s%d" % (sA, sA, sB))
    a.e("v_add_u32 %s, s%d, v2" % (v(vWDV), sA))
    a.e("v_mov_b32 %s, 1" % v(vONE))
    a.e("v_mov_b32 %s, 0" % v(vZERO))
    a.e("v_min_u32 v2, 13, v0")
    a.e("v_lshlrev_b32 v2, 7, v2")
    a.e("s_lshr_b32 s%d, s%d, 1" % (sA, sT))
    a.e("s_lshl_b32 s%d, s%d, 11" % (sA, sA))
    a.e("s_add_u32 s%d, s%d, 0x%x" % (sA, sA, WS_HFLAG))
    a.e("v_add_u32 %s, s%d, v2" % (v(vFLA), sA))
    a.e("s_lshl_b32 s%d, s%d, 1" % (sA, sT))
    a.e("s_and_b32 s%d, s%d, 1" % (sB, sW))
    a.e("s_add_u32 s%d, s%d, s%d" % (sA, sA, sB))
    a.e("s_lshl_b32 s%d, s%d, 15" % (sB, sA))
    a.e("s_lshr_b32 s%d, s%d, 1" % (sC, sW))
    a.e("s_lshl_b32 s%d, s%d, 13" % (sC, sC))
    a.e("s_add_u32 s%d, s%d, s%d" % (sB, sB, sC))
    a.e("s_add_u32 s%d, s%d, 0x%x" % (sOLD, sB, WS_OF))
    for i in range(16): a.e("v_mov_b32 %s, 0x3f803f80" % v(vV + i))
    for i in range(4): a.e("v_mov_b32 %s, 0x3f803f80" % v(vV1L + i))
    for i in range(4): a.e("v_mov_b32 %s, 0" % v(vE + i))
    for i in range(4, 8): a.e("v_mov_b32 %s, 0" % v(vP + i))
    for i in range(16): a.e("v_mov_b32 %s, 0" % v(vO + i))
    for i in range(32): a.e("v_mov_b32 %s, 0" % v(vD + i))
    c0 = -2.0 * math.sqrt(2.0 / math.pi) * math.log2(math.e)
    a.e("v_mov_b32 %s, 0x%x" % (v(vC0), f2u(c0)))
    a.e("v_mov_b32 %s, 0x%x" % (v(vC0 + 1), f2u(c0 * 0.044715)))

def kv_first_loads(a):
    it = []
    for u in range(2):
        it.append(("s_add_u32 m0, s%d, 0x%x\ns_add_u32 s%d, s%d, 0x%x\nbuffer_load_dwordx4 %s, %s, s%d offen sc1 lds"
                   % (sWK, L_KV + u * 8192, sA, sWK, u * 8192, v(vL16), srd(SKV), sA), "kv%d" % u))
    it.append(("s_mov_b32 s%d, 0x%x\nbuffer_load_dwordx4 %s, %s, %s, s%d offen sc1"
               % (sA, 63 * 2048, v(vK0, 4), v(vL16), srd(SKV), sA), "k0"))
    it.append(("s_mov_b64 exec, %s\nbuffer_load_dwordx4 %s, %s, %s, 0 offen offset:%d sc1\ns_mov_b64 exec, -1"
               % (sp(sVM), v(vV1L, 4), v(vL16), srd(SKV), 1024 + 256), "k0"))
    it.append(("s_lshl_b32 s%d, s%d, 2\ns_add_u32 s%d, s%d, s%d\ns_lshl_b32 s%d, s%d, 7\ns_add_u32 s%d, s%d, 0x%x\n"
               "buffer_load_dword %s, %s, %s, s%d offen sc1"
               % (sA, sG, sA, sA, sLO, sA, sA, sA, sA, WS_G, v(vGP), v(vGA), srd(SWS), sA), "k0"))
    it.append(("s_lshl_b32 s%d, s%d, 1\ns_and_b32 s%d, s%d, 1\ns_add_u32 s%d, s%d, s%d\ns_lshl_b32 s%d, s%d, 7\ns_add_u32 s%d, s%d, 0x%x\n"
               "buffer_load_dword %s, %s, %s, s%d offen sc1"
               % (sA, sT, sB, sW, sA, sA, sB, sA, sA, sA, sA, WS_G, v(vGC), v(vGA), srd(SWS), sA), "k0"))
    return it

def spin_counter(a, name, first_loaded):
    a.e("s_cmp_lg_u32 s%d, 0" % sW)
    a.e("s_cbranch_scc1 L_%s_done" % name)
    a.e("s_mov_b32 s%d, 0x4000" % sB)
    if first_loaded: a.e("s_branch L_%s_chk" % name)
    a.lab("L_%s_re" % name)
    a.e("buffer_load_dword %s, off, %s, 0 sc1" % (v(vPOLL), srd(SDBG)))
    a.e("s_waitcnt vmcnt(0)")
    a.lab("L_%s_chk" % name)
    a.e("v_readfirstlane_b32 s%d, %s" % (sA, v(vPOLL)))
    a.e("s_cmp_ge_u32 s%d, 32" % sA)
    a.e("s_cbranch_scc1 L_%s_done" % name)
    a.e("s_sleep 4")
    a.e("s_sub_u32 s%d, s%d, 1" % (sB, sB))
    a.e("s_cmp_lg_u32 s%d, 0" % sB)
    a.e("s_cbranch_scc1 L_%s_re" % name)
    a.lab("L_%s_done" % name)

def phase1_F(a):
    a.e("v_bfe_u32 v3, v0, 1, 3")
    a.e("v_xor_b32 v3, v3, v2")
    a.e("v_lshlrev_b32 v3, 5, v3")
    a.e("v_and_b32 v4, 1, v0")
    a.e("v_lshl_add_u32 v3, v4, 4, v3")
    a.e("v_xor_b32 v4, 0x80, v3")
    a.e("v_mul_u32_u24 v5, 3584, v2")
    a.e("s_mul_i32 s%d, s%d, %d" % (sA, sW, 4 * 3584))
    a.e("s_lshl_b32 s%d, s%d, 8" % (sB, sM))
    a.e("s_add_u32 s%d, s%d, s%d" % (sA, sA, sB))
    a.e("v_add3_u32 %s, v3, v5, s%d" % (v(vDG), sA))
    a.e("v_add3_u32 %s, v4, v5, s%d" % (v(vDU), sA))
    a.e("v_lshrrev_b32 v3, 2, v0")
    a.e("v_lshlrev_b32 v3, 10, v3")
    a.e("v_and_b32 v4, 3, v0")
    a.e("v_lshl_add_u32 v3, v4, 4, v3")
    a.e("s_lshl_b32 s%d, s%d, 13" % (sA, sW))
    a.e("s_lshl_b32 s%d, s%d, 6" % (sB, sM))
    a.e("s_add_u32 s%d, s%d, s%d" % (sA, sA, sB))
    a.e("v_add_u32 %s, s%d, v3" % (v(vDQ), sA))
    a.e("s_mov_b32 s%d, 0" % sOFFW)
    a.e("s_mov_b32 s%d, 0" % sOFFQ)

    def dmas(c):
        s = c % 3
        t = "c%d" % c
        it = []
        def one(m0src, m0c, vo, rs, so, off=0, pre="s_nop 0", post=""):
            o = (" offset:%d" % off) if off else ""
            return ("s_add_u32 m0, s%d, 0x%x\n%s\nbuffer_load_dwordx4 %s, %s, %s offen%s lds\n%s"
                    % (m0src, m0c - off, pre, v(vo), srd(rs), so, o, post), t)
        adv = "s_add_u32 s%d, s%d, %d" % (sOFFW, sOFFW, 32 * 3584)
        it.append(one(sWK, L_X + s * 16384, vDX, SX, "0", c * 128))
        it.append(one(sWK, L_X + s * 16384 + 8192, vDX, SX, "s%d" % sK64, c * 128))
        it.append(one(sWK, L_G + s * 16384, vDG, SWG, "s%d" % sOFFW))
        it.append(one(sWK, L_U + s * 16384, vDU, SWU, "s%d" % sOFFW))
        it.append(one(sWK, L_G + s * 16384 + 8192, vDG, SWG, "s%d" % sOFFW, pre=adv))
        it.append(one(sWK, L_U + s * 16384 + 8192, vDU, SWU, "s%d" % sOFFW, post=adv))
        it.append(one(sWH, L_WQ + s * 4096, vDQ, SWQ, "s%d" % sOFFQ, pre="s_mov_b32 exec_hi, 0",
                      post="s_mov_b32 exec_hi, -1\ns_add_u32 s%d, s%d, s%d" % (sOFFQ, sOFFQ, sK64)))
        return it

    a.e("s_waitcnt lgkmcnt(0)")
    for c in range(3):
        for s, t in dmas(c): a.vmop(s, t)
    setup_late(a)
    a.e("v_lshl_add_u32 %s, v3, 3, v2" % v(vWA))
    a.e("v_lshlrev_b32 %s, 8, %s" % (v(vWA), v(vWA)))
    a.e("v_lshl_add_u32 %s, v4, 3, %s" % (v(vWA), v(vWA)))
    a.e("v_mul_u32_u24 v4, 0x%x, v5" % (L_U - L_G))
    a.e("v_add_u32 %s, v4, %s" % (v(vWA), v(vWA)))
    a.e("v_lshl_add_u32 v2, v5, 2, v2")
    a.e("s_lshl_b32 s%d, s%d, 2" % (sA, sHI))
    a.e("s_and_b32 s%d, s%d, 1" % (sB, sLO))
    a.e("s_lshl_b32 s%d, s%d, 1" % (sB, sB))
    a.e("s_add_u32 s%d, s%d, s%d" % (sA, sA, sB))
    a.e("v_xor_b32 v2, s%d, v2" % sA)
    a.e("v_lshl_add_u32 %s, v2, 5, %s" % (v(vWA), v(vWA)))
    a.e("s_lshl_b32 s%d, s%d, 13" % (sA, sHI))
    a.e("s_xor_b32 s%d, s%d, 0x2000" % (sB, sA))
    a.e("v_add_u32 %s, s%d, %s" % (v(vWA + 2), sB, v(vWA)))
    a.e("v_add_u32 %s, s%d, %s" % (v(vWA), sA, v(vWA)))
    a.e("v_xor_b32 %s, 32, %s" % (v(vWA + 1), v(vWA)))
    a.e("v_xor_b32 %s, 32, %s" % (v(vWA + 3), v(vWA + 2)))
    a.e("s_lshl_b32 s%d, s%d, 6" % (sA, sHI))
    a.e("s_add_u32 s%d, s%d, 0x%x" % (sA, sA, L_X))
    a.e("v_xor_b32 %s, s%d, %s" % (v(vXA), sA, v(vXA)))
    for s in range(1, 4): a.e("v_xor_b32 %s, %d, %s" % (v(vXA + s), 32 * s, v(vXA)))
    for s in range(4): a.e("v_xor_b32 %s, 0x1000, %s" % (v(vXA + 4 + s), v(vXA + s)))
    a.e("s_lshl_b32 s%d, s%d, 11" % (sA, sHI))
    a.e("s_add_u32 s%d, s%d, 0x%x" % (sA, sA, L_WQ))
    a.e("v_add_u32 %s, s%d, %s" % (v(vQA), sA, v(vQA)))
    setup_attn(a)

    def fr(k):
        b = vFR + 20 * (k % 2)
        return dict(x0=b, x1=b + 4, w0=b + 8, w1=b + 12, q=b + 16)
    def reads(k):
        c, s = divmod(k, 4); f = fr(k); sl = c % 3
        wo = sl * 16384 + (s & 1) * 4096
        wa = vWA + 2 * (s >> 1)
        r = [rdtr(f['w0'], wa, wo), rdtr(f['w0'] + 2, wa, wo + 1024),
             rd128(f['x0'], vXA + s, sl * 16384), rd128(f['x1'], vXA + 4 + s, sl * 16384),
             rdtr(f['w1'], wa + 1, wo), rdtr(f['w1'] + 2, wa + 1, wo + 1024)]
        if s < 2:
            r += [rdtr(f['q'], vQA, sl * 4096 + s * 1024), rdtr(f['q'] + 2, vQA, sl * 4096 + s * 1024 + 256)]
        return r
    a.stamp(2)
    a.waitvm("c0")
    a.e("s_barrier")
    a.stamp(3)
    for r in reads(0): a.e(r)
    pend = []
    for k in range(32):
        c, s = divmod(k, 4); f = fr(k)
        if s == 3 and c < 7:
            if c == 6:
                a.wait0(lgkm=True)
                spin_counter(a, "kvf", True)
            else:
                a.waitvm("c%d" % (c + 1), lgkm=True)
            a.e("s_barrier")
            if c + 3 < 8: pend += dmas(c + 3)
            if c == 6: pend += kv_first_loads(a)
        else:
            a.e("s_waitcnt lgkmcnt(0)")
        z = lambda x: None if k == 0 else x
        mf = [mfma(vACC, f['w0'], f['x0'], z(vACC)), mfma(vACC + 16, f['w0'], f['x1'], z(vACC + 16)),
              mfma(vACC + 32, f['w1'], f['x0'], z(vACC + 32)), mfma(vACC + 48, f['w1'], f['x1'], z(vACC + 48))]
        if s < 2: mf.append(mfma(vAQ, f['q'], f['x0'], z(vAQ)))
        for x in interleave(mf, reads(k + 1) if k < 31 else []): a.e(x)
        for s_, t_ in pend[:2]: a.vmop(s_, t_)
        pend = pend[2:]
        if k == 23:
            a.e("s_cmp_lg_u32 s%d, 0" % sW)
            a.e("s_cbranch_scc1 L_nopoll")
            a.e("buffer_load_dword %s, off, %s, 0 sc1" % (v(vPOLL), srd(SDBG)))
            a.lab("L_nopoll")
    assert not pend
    a.stamp(4)

def phase1_L(a):
    a.lab("L_light")
    a.vm = []
    a.e("s_waitcnt lgkmcnt(0)")
    a.e("s_cmp_eq_u32 s%d, 14" % sM)
    a.e("s_cselect_b32 s%d, s%d, s%d" % (SWKV, SWKV, sTMPP))
    a.e("s_cselect_b32 s%d, s%d, s%d" % (SWKV + 1, SWKV + 1, sTMPP + 1))
    for u in range(2):
        a.vmop("s_add_u32 m0, s%d, 0x%x\ns_add_u32 s%d, s%d, %d\nbuffer_load_dwordx4 %s, %s, s%d offen lds"
               % (sWK, LL_W + u * 8192, sA, sWK, u * 8192, v(vL16), srd(SWKV), sA), "w")
    a.vmop("s_mov_b32 m0, 0x%x\ns_nop 0\nbuffer_load_dwordx4 %s, %s, 0 offen lds" % (LL_GATE, v(vL16), srd(SGATE)), "w")
    for c in range(8):
        for h in range(2):
            a.vmop("s_add_u32 m0, s%d, 0x%x\ns_nop 0\nbuffer_load_dwordx4 %s, %s, %s offen offset:%d lds"
                   % (sWK, LL_X + c * 16384 + h * 8192 - c * 128, v(vDX), srd(SX), ("s%d" % sK64) if h else "0", c * 128),
                   "c%d" % c)
    setup_late(a)
    a.e("v_lshl_add_u32 %s, v3, 3, v2" % v(vWA))
    a.e("v_lshlrev_b32 %s, 5, %s" % (v(vWA), v(vWA)))
    a.e("v_lshl_add_u32 %s, v4, 3, %s" % (v(vWA), v(vWA)))
    a.e("v_add_u32 %s, 0x%x, %s" % (v(vWA), LL_W, v(vWA)))
    a.e("v_lshlrev_b32 %s, 4, v3" % v(vWA + 1))
    a.e("v_add_u32 %s, 0x%x, %s" % (v(vWA + 1), LL_GATE, v(vWA + 1)))
    for s in range(1, 4): a.e("v_xor_b32 %s, %d, %s" % (v(vXA + s), 32 * s, v(vXA)))
    for s in range(4): a.e("v_add_u32 %s, 0x10000, %s" % (v(vXA + 4 + s), v(vXA + s)))
    setup_attn(a)
    a.e("s_cmp_lg_u32 s%d, 14" % sM)
    a.e("s_cbranch_scc1 L_nozf")
    a.e("s_cmp_lg_u32 s%d, 4" % sW)
    a.e("s_cbranch_scc1 L_nozf")
    a.e("v_lshlrev_b32 v2, 7, v0")
    a.e("s_lshl_b32 s%d, s%d, 11" % (sA, sG))
    a.e("s_add_u32 s%d, s%d, 0x%x" % (sA, sA, WS_HFLAG))
    a.e("s_mov_b64 exec, 0xffff")
    a.e("buffer_store_dword %s, v2, %s, s%d offen sc1" % (v(vZERO), srd(SWS), sA))
    a.e("s_mov_b64 exec, -1")
    a.lab("L_nozf")
    a.stamp(2)
    vm0 = list(a.vm)
    a.e("s_cmp_lg_u32 s%d, 0" % sHI)
    a.e("s_cbranch_scc1 L_lB")
    a.e("s_not_b64 %s, %s" % (sp(sTMPP), sp(sVM)))
    a.e("s_cmp_lg_u32 s%d, 14" % sM)
    a.e("s_cbranch_scc1 L_lV")
    def chain(kind):
        a.vm = list(vm0)
        def fr(k):
            b = vFR + 8 * (k % 4)
            return b, b + 4
        def reads(k):
            c, s = divmod(k, 4); x, w = fr(k)
            r = [rd128(x, vXA + s + 4 * (c >> 2), (c & 3) * 16384), rdtr(w, vWA, k * 512), rdtr(w + 2, vWA, k * 512 + 128)]
            if kind == "K":
                r += ["s_mov_b64 exec, %s" % sp(sTMPP), rd128(w, vWA + 1, k * 32), "s_mov_b64 exec, -1"]
            return r
        for q in range(4):
            a.waitvm("c%d" % (2 * q + 1))
            a.e("s_barrier")
            if q == 0: a.stamp(3)
            nr = 4 if kind == "K" else 3
            for k in range(8 * q, 8 * q + 2):
                for r in reads(k): a.e(r)
            for k in range(8 * q, 8 * q + 8):
                if k + 2 < 8 * q + 8:
                    for r in reads(k + 2): a.e(r)
                left = min(2, 8 * q + 7 - k)
                a.e("s_waitcnt lgkmcnt(%d)" % (left * nr))
                x, w = fr(k)
                cc = None if k == 0 else vACC
                a.e(mfma(vACC, w, x, cc) if kind == "K" else mfma(vACC, x, w, cc))
        a.e("s_lshl_b32 s%d, s%d, 2" % (sA, sG))
        a.e("s_add_u32 s%d, s%d, s%d" % (sA, sA, sLO))
        a.e("s_nop 12")
        if kind == "K":
            a.e("s_mov_b32 s%d, 0x%x" % (sC, f2u(0.25 * math.log2(math.e))))
            for i in range(8): a.e("v_mul_f32 %s, s%d, %s" % (v(vACC + i), sC, v(vACC + i)))
            a.e("v_mul_f32 %s, 0x%x, %s" % (v(vACC + 8), f2u(-math.log2(math.e)), v(vACC + 8)))
            a.e("v_exp_f32 %s, %s" % (v(vACC + 8), v(vACC + 8)))
            for i in range(4): a.e("v_cvt_pk_bf16_f32 %s, %s, %s" % (v(vFR + i), v(vACC + 2 * i), v(vACC + 2 * i + 1)))
            a.e("v_add_f32 %s, 1.0, %s" % (v(vACC + 8), v(vACC + 8)))
            a.e("v_rcp_f32 %s, %s" % (v(vACC + 8), v(vACC + 8)))
            a.e("s_add_u32 s%d, s%d, 63" % (sB, sA))
            a.e("s_and_b32 s%d, s%d, 63" % (sB, sB))
            a.e("s_lshl_b32 s%d, s%d, 11" % (sB, sB))
            a.e("buffer_store_dwordx4 %s, %s, %s, s%d offen sc1" % (v(vFR, 4), v(vL16), srd(SKV), sB))
            a.e("s_lshl_b32 s%d, s%d, 7" % (sB, sA))
            a.e("s_add_u32 s%d, s%d, 0x%x" % (sB, sB, WS_G))
            a.e("s_mov_b32 exec_hi, 0")
            a.e("buffer_store_dword %s, %s, %s, s%d offen sc1" % (v(vACC + 8), v(vGA), srd(SWS), sB))
            a.e("s_mov_b64 exec, -1")
        else:
            for i in range(8): a.e("v_cvt_pk_bf16_f32 %s, %s, %s" % (v(vFR + i), v(vACC + 2 * i), v(vACC + 2 * i + 1)))
            a.e("v_bfe_u32 v2, v0, 4, 1")
            a.e("v_add_u32 v2, s%d, v2" % sA)
            a.e("v_and_b32 v2, 63, v2")
            a.e("v_lshl_add_u32 v2, v2, 11, %s" % v(vL16))
            for i in range(4): a.e("v_cndmask_b32 %s, %s, %s, %s" % (v(vFR + i), v(vFR + 4 + i), v(vFR + i), sp(sVM)))
            a.e("buffer_store_dwordx4 %s, v2, %s, 0 offen offset:1024 sc1" % (v(vFR, 4), srd(SKV)))
        a.e("s_branch L_lJ")
    chain("K")
    a.lab("L_lV")
    chain("V")
    a.lab("L_lB")
    a.vm = list(vm0)
    for q in range(4):
        a.waitvm("c%d" % (2 * q + 1))
        a.e("s_barrier")
        if q == 0: a.stamp(3)
    a.lab("L_lJ")
    a.e("v_lshrrev_b32 v3, 2, v0")
    a.e("v_lshlrev_b32 v3, 10, v3")
    a.e("v_and_b32 v4, 3, v0")
    a.e("v_lshl_add_u32 v3, v4, 4, v3")
    a.e("s_lshl_b32 s%d, s%d, 14" % (sA, sW))
    a.e("s_lshl_b32 s%d, s%d, 6" % (sB, sM))
    a.e("s_add_u32 s%d, s%d, s%d" % (sA, sA, sB))
    a.e("v_add_u32 %s, s%d, v3" % (v(vDQ), sA))
    a.wait0(lgkm=True)
    a.e("s_barrier")
    a.e("s_cmp_lg_u32 s%d, 0" % sW)
    a.e("s_cbranch_scc1 L_noat")
    a.e("s_mov_b64 exec, 1")
    a.e("buffer_atomic_add %s, off, %s, 0 sc1" % (v(vONE), srd(SDBG)))
    a.e("s_mov_b64 exec, -1")
    a.lab("L_noat")
    for p in range(4):
        a.e("s_add_u32 m0, s%d, 0x%x" % (sWK, LL_WQ + p * 8192))
        a.e("s_mov_b32 s%d, 0x%x" % (sA, p * 128 * 1024))
        a.e("buffer_load_dwordx4 %s, %s, s%d offen lds" % (v(vDQ), srd(SWQ), sA))
    a.e("s_lshl_b32 s%d, s%d, 16" % (sA, sHI))
    for s in range(4): a.e("v_add_u32 %s, s%d, %s" % (v(vXA + s), sA, v(vXA + s)))
    a.e("s_lshl_b32 s%d, s%d, 14" % (sA, sHI))
    a.e("s_add_u32 s%d, s%d, 0x%x" % (sA, sA, LL_WQ))
    a.e("v_add_u32 %s, s%d, %s" % (v(vQA), sA, v(vQA)))
    a.wait0()
    a.e("s_barrier")
    def fr(k):
        b = vFR + 8 * (k % 4)
        return b, b + 4
    def reads(k):
        c, s = divmod(k, 4); x, w = fr(k)
        return [rd128(x, vXA + s, c * 16384), rdtr(w, vQA, k * 1024), rdtr(w + 2, vQA, k * 1024 + 256)]
    for k in range(2):
        for r in reads(k): a.e(r)
    for k in range(16):
        if k + 2 < 16:
            for r in reads(k + 2): a.e(r)
        a.e("s_waitcnt lgkmcnt(%d)" % (3 * min(2, 15 - k)))
        x, w = fr(k)
        a.e(mfma(vAQ, w, x, None if k == 0 else vAQ))
    spin_counter(a, "kvl", False)
    a.e("s_barrier")
    for s, t in kv_first_loads(a): a.e(s)
    a.wait0()
    a.stamp(4)
    a.e("s_branch L_join")

def gelu_tile(a, ti):
    acc = vACC + 16 * ti
    t = vFR
    o = vFR + 8 + 4 * ti
    pk = lambda r: v(r, 2)
    for i in range(4): a.e("v_pk_mul_f32 %s, %s, %s" % (pk(t + 2 * i), pk(acc + 2 * i), pk(acc + 2 * i)))
    for i in range(4): a.e("v_pk_fma_f32 %s, %s, %s, %s op_sel:[0,1,0] op_sel_hi:[1,1,0]" % (pk(t + 2 * i), pk(t + 2 * i), pk(vC0), pk(vC0)))
    for i in range(4): a.e("v_pk_mul_f32 %s, %s, %s" % (pk(t + 2 * i), pk(t + 2 * i), pk(acc + 2 * i)))
    for i in range(8): a.e("v_exp_f32 %s, %s" % (v(t + i), v(t + i)))
    for i in range(4): a.e("v_pk_add_f32 %s, %s, 1.0 op_sel_hi:[1,0]" % (pk(t + 2 * i), pk(t + 2 * i)))
    for i in range(8): a.e("v_rcp_f32 %s, %s" % (v(t + i), v(t + i)))
    for i in range(4): a.e("v_pk_mul_f32 %s, %s, %s" % (pk(acc + 2 * i), pk(acc + 2 * i), pk(acc + 8 + 2 * i)))
    for i in range(4): a.e("v_pk_mul_f32 %s, %s, %s" % (pk(acc + 2 * i), pk(acc + 2 * i), pk(t + 2 * i)))
    for i in range(4): a.e("v_cvt_pk_bf16_f32 %s, %s, %s" % (v(o + i), v(acc + 2 * i), v(acc + 2 * i + 1)))
    aa, bb = ti >> 1, ti & 1
    a.vmop("buffer_store_dwordx4 %s, %s, %s, s%d offen offset:%d sc1" % (v(o, 4), v(vL16), srd(SWS), sD if bb else sHST, aa * 1024), "hst")

def gelu_sub(a):
    a.lab("L_gelu")
    a.e("s_bitcmp1_b32 s%d, 0" % sLO)
    a.e("s_cselect_b32 s%d, 0x%x, 0x%x" % (sD, (-112 * 1024) & 0xffffffff, 0))
    a.e("s_cselect_b32 s%d, 0, 0x%x" % (sC, 112 * 1024))
    a.e("s_add_u32 s%d, s%d, s%d" % (sD, sD, sC))
    a.e("s_add_u32 s%d, s%d, s%d" % (sD, sD, sHST))
    for ti in range(4): gelu_tile(a, ti)
    a.e("s_setpc_b64 %s" % sp(sRET))

def Yseg(hset, toggle=False):
    out = []
    for t in range(2):
        S, Sn = vS + 16 * t, vS + 16 * (1 - t)
        K, V0, V1 = vKF + 4 * t, vV + 8 * t, vV + 8 * t + 4
        for j in range(8):
            out.append("v_exp_f32 %s, %s" % (v(vE + 2 * (j % 2)), v(S + 2 * j)))
            out.append("v_exp_f32 %s, %s" % (v(vE + 2 * (j % 2) + 1), v(S + 2 * j + 1)))
            jj = (j - 1) % 8
            out.append("v_cvt_pk_bf16_f32 %s, %s, %s" % (v(vP + jj), v(vE + 2 * (jj % 2)), v(vE + 2 * (jj % 2) + 1)))
            if j == 1: out.append(mfma(vO, V1, vP + 4, vO))
            if j == 3: out.append(mfma(Sn, K, vQ, None))
            if hset is None:
                if j == 7: out.append(mfma(vO, V0, vP, vO))
            else:
                if j == 5: out.append(mfma(vO, V0, vP, vO))
                if j == 6 and t == 1 and toggle:
                    out.append("v_xor_b32 %s, 0x4000, %s" % (v(vKVA), v(vKVA)))
                    out.append("v_xor_b32 %s, 0x8000, %s" % (v(vWDA), v(vWDA)))
                if j == 7: out.append(mfma(vD + 16 * t, vWF + 4 * t, vH + 4 * hset, vD + 16 * t))
    return out

def kv_reads(off):
    r = [rd128(vKF, vKVA, off), rd128(vKF + 4, vKVA, off + 2048), "s_mov_b64 exec, %s" % sp(sVM)]
    for t in range(2):
        r += [rd128(vV + 8 * t, vKVA, off + 2048 * t + 1024), rd128(vV + 8 * t + 4, vKVA, off + 2048 * t + 1280)]
    r.append("s_mov_b64 exec, -1")
    return r
def wd_reads(dst, addr, off):
    r = []
    for c in range(2):
        r += [rdtr(dst + 4 * c, addr, off + 512 * c), rdtr(dst + 4 * c + 2, addr, off + 512 * c + 1024)]
    return r

def attention(a, role):
    A = role == "A"
    def kvdma(u):
        a.vmop("s_add_u32 m0, s%d, 0x%x\ns_add_u32 s%d, s%d, 0x%x\nbuffer_load_dwordx4 %s, %s, s%d offen sc1 lds"
               % (sWK, L_KV + (u % 4) * 8192, sA, sWK, u * 8192, v(vL16), srd(SKV), sA), "kv%d" % u)
    def wddma(sg):
        a.vmop("s_add_u32 m0, s%d, 0x%x\ns_add_u32 s%d, s%d, 0x%x\nbuffer_load_dwordx4 %s, %s, s%d offen lds"
               % (sWK, L_WD + ((sg + 3) % 8) * 8192, sA, sWDOFF, sg * 16384, v(vWDV), srd(SWD), sA), "wd%d" % sg)
    def wodma(j):
        a.vmop("s_add_u32 m0, s%d, 0x%x\ns_add_u32 s%d, s%d, 0x%x\nbuffer_load_dwordx4 %s, %s, s%d offen lds"
               % (sWK, L_WO + j * 8192, sA, sB, j * 16384, v(vWDV), srd(SWO), sA), "wo")
    def hload(sg, dst):
        a.vmop("s_add_u32 s%d, s%d, 0x%x\nbuffer_load_dwordx4 %s, %s, %s, s%d offen sc1"
               % (sA, sHOFF, sg * 1024, v(dst, 4), v(vL16), srd(SWS), sA), "h%d" % sg)
    for n in range(11):
        if not A and n == 0: a.e("s_barrier")
        tags = []
        if A and n % 2 == 1: tags.append("kv%d" % ((n + 1) // 2))
        if not A and n % 2 == 0: tags.append("kv%d" % ((n + 2) // 2))
        if n == 2: tags.append("hst")
        if n == 10: tags.append("wd0")
        if n == 8 and A:
            a.e("s_cmp_lg_u32 s%d, 0" % sW)
            a.e("s_cbranch_scc1 L_hf_done")
            a.e("s_mov_b32 s%d, 0x4000" % sB)
            a.e("s_waitcnt vmcnt(2)")
            a.lab("L_hf_chk")
            a.e("v_cmp_ne_u32 vcc, 1, %s" % v(vPOLL))
            a.e("s_cbranch_vccz L_hf_done")
            a.e("s_sleep 2")
            a.e("buffer_load_dword %s, %s, %s, 0 offen sc1" % (v(vPOLL), v(vFLA), srd(SWS)))
            a.e("s_sub_u32 s%d, s%d, 1" % (sB, sB))
            a.e("s_cmp_lg_u32 s%d, 0" % sB)
            a.e("s_waitcnt vmcnt(0)")
            a.e("s_cbranch_scc1 L_hf_chk")
            a.lab("L_hf_done")
        a.waitvm(tags)
        if n == 3 and not A:
            a.e("s_cmp_ge_u32 s%d, 14" % sM)
            a.e("s_cbranch_scc1 L_nohf")
            a.e("s_cmp_lg_u32 s%d, 4" % sW)
            a.e("s_cbranch_scc1 L_nohf")
            a.e("s_lshl_b32 s%d, s%d, 4" % (sA, sG))
            a.e("s_add_u32 s%d, s%d, s%d" % (sA, sA, sM))
            a.e("s_lshl_b32 s%d, s%d, 7" % (sA, sA))
            a.e("s_add_u32 s%d, s%d, 0x%x" % (sA, sA, WS_HFLAG))
            a.e("s_mov_b64 exec, 1")
            a.e("buffer_store_dword %s, off, %s, s%d sc1" % (v(vONE), srd(SWS), sA))
            a.e("s_mov_b64 exec, -1")
            a.lab("L_nohf")
        for r in kv_reads((n % 8) * 4096): a.e(r)
        if n == 7 and A:
            a.e("s_cmp_lg_u32 s%d, 0" % sW)
            a.e("s_cbranch_scc1 L_hf_nol")
            a.e("buffer_load_dword %s, %s, %s, 0 offen sc1" % (v(vPOLL), v(vFLA), srd(SWS)))
            a.lab("L_hf_nol")
        if n == 0:
            kvdma(2); kvdma(3)
            a.e("s_lshr_b32 s%d, s%d, 1" % (sC, sW))
            a.e("s_mul_i32 s%d, s%d, %d" % (sWDOFF, sC, 448 * 1024))
            a.e("s_lshl_b32 s%d, s%d, 1" % (sA, sT))
            a.e("s_and_b32 s%d, s%d, 1" % (sB, sW))
            a.e("s_add_u32 s%d, s%d, s%d" % (sA, sA, sB))
            a.e("s_mul_i32 s%d, s%d, 112" % (sA, sA))
            a.e("s_mul_i32 s%d, s%d, 28" % (sB, sC))
            a.e("s_add_u32 s%d, s%d, s%d" % (sA, sA, sB))
            a.e("s_lshl_b32 s%d, s%d, 10" % (sA, sA))
            a.e("s_add_u32 s%d, s%d, 0x%x" % (sHOFF, sA, WS_HF))
        if (A and n % 2 == 1 and n >= 3): kvdma((n + 5) // 2)
        if (not A and n % 2 == 0 and n >= 2): kvdma((n + 6) // 2)
        if 1 <= n <= 3:
            a.e("s_lshr_b32 s%d, s%d, 1" % (sB, sW))
            a.e("s_lshl_b32 s%d, s%d, 17" % (sB, sB))
            for j in {1: (0, 1, 2), 2: (3, 4, 5), 3: (6, 7)}[n]: wodma(j)
        if n >= 4: wddma(n - 4)
        if n == 9:
            hload(0, vH + 12); hload(1, vH + 0); hload(24, vH + 16); hload(25, vH + 20)
        if n == 10:
            hload(26, vH + 24); hload(27, vH + 28); hload(2, vH + 4)
        a.e("s_waitcnt lgkmcnt(0)")
        a.e("s_call_b64 %s, L_Y%s" % (sp(sRET), role))
    a.e("s_add_u32 s%d, s%d, 0x%x" % (sHOFF, sHOFF, 3 * 1024))
    a.e("s_add_u32 s%d, s%d, 0x%x" % (sWDOFF, sWDOFF, 7 * 16384))
    a.e("s_mov_b32 s%d, 0x%x" % (sM0WD, ((7 + 3) % 8) * 8192))
    u0 = 8 if A else 9
    a.e("s_add_u32 s%d, s%d, 0x%x" % (sKVOFF, sWK, u0 * 8192))
    a.e("s_mov_b32 s%d, 6" % sCNT)
    a.waitvm(["h0", "wd1", "kv6"] if A else ["h0", "wd1"])
    a.e("s_branch L_loop%s_in" % role)
    a.l.append(".p2align 6")
    a.lab("L_loop%s" % role)
    for p in range(4):
        a.e("s_waitcnt vmcnt(5)")
        if p == 3: a.lab("L_loop%s_in" % role)
        for r in kv_reads(p * 4096): a.e(r)
        for r in wd_reads(vWF, vWDA, p * 8192): a.e(r)
        a.e("buffer_load_dwordx4 %s, %s, %s, s%d offen sc1" % (v(vH + 4 * ((p + 3) % 4), 4), v(vL16), srd(SWS), sHOFF))
        a.e("s_add_u32 m0, s%d, s%d" % (sWK, sM0WD))
        a.e("s_add_u32 s%d, s%d, 0x400" % (sHOFF, sHOFF))
        a.e("buffer_load_dwordx4 %s, %s, s%d offen lds" % (v(vWDV), srd(SWD), sWDOFF))
        a.e("s_add_u32 s%d, s%d, 0x4000" % (sWDOFF, sWDOFF))
        a.e("s_add_u32 s%d, s%d, 0x2000" % (sM0WD, sM0WD))
        a.e("s_and_b32 s%d, s%d, 0xffff" % (sM0WD, sM0WD))
        if (p % 2 == 1) == A:
            a.e("s_and_b32 s%d, s%d, 0x7fff" % (sA, sKVOFF))
            a.e("s_add_u32 m0, s%d, 0x%x" % (sA, L_KV))
            a.e("s_nop 0")
            a.e("buffer_load_dwordx4 %s, %s, s%d offen sc1 lds" % (v(vL16), srd(SKV), sKVOFF))
            a.e("s_add_u32 s%d, s%d, 0x2000" % (sKVOFF, sKVOFF))
        if p == 3:
            a.e("s_sub_u32 s%d, s%d, 1" % (sCNT, sCNT))
            a.e("s_cmp_lg_u32 s%d, 0" % sCNT)
        a.e("s_waitcnt lgkmcnt(0)")
        if A: a.e("s_barrier")
        for x in Yseg(p, toggle=(p == 3)): a.e(x)
        if not A:
            if p == 3: a.e("s_cbranch_scc0 L_tail")
            a.e("s_barrier")
    a.e(("s_cbranch_scc1 L_loop%s" if A else "s_branch L_loop%s") % role)

def ysubs(a):
    for role in "AB":
        a.l.append(".p2align 6")
        a.lab("L_Y%s" % role)
        if role == "A": a.e("s_barrier")
        for x in Yseg(None): a.e(x)
        if role == "B": a.e("s_barrier")
        a.e("s_setpc_b64 %s" % sp(sRET))

def transition(a):
    a.lab("L_join")
    a.e("s_lshl_b32 s%d, s%d, 11" % (sA, sW))
    a.e("s_add_u32 s%d, s%d, 0x%x" % (sA, sA, L_QX))
    a.e("v_add_u32 v2, s%d, %s" % (sA, v(vL16)))
    a.e("v_xor_b32 v3, 0x2000, v2")
    a.e("s_cmp_lg_u32 s%d, 0" % sHI)
    a.e("s_cbranch_scc1 L_trB")
    vm0 = list(a.vm)
    for role in "AB":
        a.vm = list(vm0)
        A = role == "A"
        if not A: a.lab("L_trB")
        keep, send = (vAQ, vAQ + 8) if A else (vAQ + 8, vAQ)
        a.e("s_nop 7")
        a.e("ds_write_b128 v2, %s" % v(send, 4))
        a.e("ds_write_b128 v2, %s offset:1024" % v(send + 4, 4))
        a.e("s_waitcnt lgkmcnt(0)")
        a.e("s_barrier")
        a.e(rd128(send, 3, 0))
        a.e(rd128(send + 4, 3, 1024))
        if A: a.e("s_setprio 1")
        def qfin():
            a.e("s_waitcnt lgkmcnt(0)")
            for i in range(4): a.e("v_pk_add_f32 %s, %s, %s" % (v(keep + 2 * i, 2), v(keep + 2 * i, 2), v(send + 2 * i, 2)))
            for i in range(4): a.e("v_cvt_pk_bf16_f32 %s, %s, %s" % (v(vQ + i), v(keep + 2 * i), v(keep + 2 * i + 1)))
        def gelu():
            a.e("s_cmp_ge_u32 s%d, 14" % sM)
            a.e("s_cbranch_scc1 L_nog%s" % role)
            a.e("s_call_b64 %s, L_gelu" % sp(sRET))
            a.vm += ["hst"] * 4
            a.lab("L_nog%s" % role)
        if A:
            gelu(); qfin()
            a.waitvm(["k0", "kv0", "kv1"])
            a.e("s_barrier")
        else:
            a.waitvm(["k0", "kv0", "kv1"], lgkm=True)
            a.e("s_barrier")
            gelu(); qfin()
            a.e("s_nop 1")
        a.e(mfma(vS, vK0, vQ, None))
        a.stamp(5)
        attention(a, role)
        if A: a.e("s_branch L_tail")

def tail(a):
    a.lab("L_tail")
    a.e("v_cvt_pk_bf16_f32 %s, %s, %s" % (v(vP + 7), v(vE + 2), v(vE + 3)))
    a.stamp(6)
    a.e("s_setprio 0")
    a.e("s_mov_b32 s%d, 0x%x" % (sC, f2u(2.0 ** -16)))
    a.e(mfma(vO, vV1L, vP + 4, vO))
    a.e("s_mov_b32 s%d, 0x%x" % (sD, f2u(2.0 ** 100)))
    a.e("s_nop 10")
    t = vFR
    a.e("v_rcp_f32 %s, %s" % (v(t + 2), v(vO + 8)))
    a.e("v_pk_mul_f32 %s, %s, 0 op_sel_hi:[1,0]" % (v(t, 2), v(vO, 2)))
    for i in range(1, 4): a.e("v_pk_fma_f32 %s, %s, 0, %s op_sel_hi:[1,0,1]" % (v(t, 2), v(vO + 2 * i, 2), v(t, 2)))
    a.e("v_add_f32 %s, %s, %s" % (v(t), v(t), v(t + 1)))
    a.e("v_add_f32 %s, %s, %s" % (v(t), v(t), v(vO + 8)))
    a.e("v_cmp_nle_f32 vcc, s%d, %s" % (sC, v(t)))
    a.e("v_cmp_nge_f32 %s, s%d, %s" % (sp(sTMPP), sD, v(t)))
    a.e("s_or_b64 vcc, vcc, %s" % sp(sTMPP))
    a.e("s_branch L_fb" if Opt.force_fb else "s_cbranch_scc1 L_fb")
    a.lab("L_fbret")
    a.e("v_mul_f32 %s, %s, %s" % (v(t + 2), v(t + 2), v(vGP)))
    for i in range(4): a.e("v_pk_mul_f32 %s, %s, %s op_sel_hi:[1,0]" % (v(vO + 2 * i, 2), v(vO + 2 * i, 2), v(t + 2, 2)))
    for i in range(4): a.e("v_cvt_pk_bf16_f32 %s, %s, %s" % (v(vP + i), v(vO + 2 * i), v(vO + 2 * i + 1)))
    for i in range(4): a.e("v_min_u32 %s, -2, %s" % (v(vP + i), v(vP + i)))
    a.e("buffer_store_dwordx4 %s, %s, %s, s%d offen sc1" % (v(vP, 4), v(vL16), srd(SWS), sOST))
    a.e("s_waitcnt vmcnt(1)")
    a.e("s_barrier")
    hreg = {21: vH + 0, 22: vH + 4, 23: vH + 8, 24: vH + 16, 25: vH + 20, 26: vH + 24, 27: vH + 28}
    wf = [vFR, vFR + 8, vFR + 16]
    for i in range(2):
        for r in wd_reads(wf[i], vWDA, i * 8192): a.e(r)
    for i in range(7):
        if i + 2 < 7:
            for r in wd_reads(wf[(i + 2) % 3], vWDA, (i + 2) * 8192): a.e(r)
        a.e("s_waitcnt lgkmcnt(%d)" % (4 * min(2, 6 - i)))
        for c in range(2): a.e(mfma(vD + 16 * c, wf[i % 3] + 4 * c, hreg[21 + i], vD + 16 * c))
    a.e("s_barrier")
    a.e("v_add_u32 %s, 0x%x, %s" % (v(vWDA), L_WO, v(vWDA)))
    a.e("v_sub_f32 %s, 1.0, %s" % (v(vGC), v(vGC)))
    a.e("s_waitcnt vmcnt(0)")
    a.stamp(7)
    for j in range(8):
        if j == 4: a.e("s_add_u32 s%d, s%d, 0x1000" % (sA, sOLD))
        a.e("buffer_load_dwordx4 %s, %s, %s, s%d offen offset:%d sc1" % (v(vS + 4 * j, 4), v(vL16), srd(SWS), sOLD if j < 4 else sA, (j % 4) * 1024))
    for i in range(2):
        for r in wd_reads(wf[i], vWDA, i * 8192): a.e(r)
    for i in range(16): a.e("v_pk_mul_f32 %s, %s, %s op_sel:[0,1] op_sel_hi:[1,1]" % (v(vD + 2 * i, 2), v(vD + 2 * i, 2), v(vGP, 2)))
    aw = vXA
    ar = vWA
    a.e("v_and_b32 v2, 31, v0")
    a.e("v_lshrrev_b32 v3, 5, v0")
    a.e("v_and_b32 v4, 7, v0")
    a.e("v_xor_b32 v3, v3, v4")
    a.e("v_lshlrev_b32 v3, 4, v3")
    a.e("v_lshl_add_u32 v3, v2, 8, v3")
    a.e("s_and_b32 s%d, s%d, 1" % (sB, sW))
    a.e("s_lshl_b32 s%d, s%d, 15" % (sB, sB))
    a.e("s_lshr_b32 s%d, s%d, 1" % (sC, sW))
    a.e("s_lshl_b32 s%d, s%d, 13" % (sD, sC))
    a.e("s_add_u32 s%d, s%d, s%d" % (sD, sD, sB))
    a.e("v_add_u32 %s, s%d, v3" % (v(aw), sD))
    for j in range(1, 4): a.e("v_xor_b32 %s, %d, %s" % (v(aw + j), 32 * j, v(aw)))
    a.e("v_lshrrev_b32 v2, 3, v0")
    a.e("v_lshlrev_b32 v3, 1, v4")
    a.e("v_xor_b32 v3, v3, v2")
    a.e("v_lshlrev_b32 v3, 4, v3")
    a.e("v_lshl_add_u32 v3, v2, 8, v3")
    a.e("s_lshl_b32 s%d, s%d, 11" % (sD, sC))
    a.e("s_add_u32 s%d, s%d, s%d" % (sD, sD, sB))
    a.e("v_add_u32 %s, s%d, v3" % (v(ar), sD))
    a.e("v_xor_b32 %s, 16, %s" % (v(ar + 1), v(ar)))
    a.e("v_lshlrev_b32 v4, 4, v4")
    a.e("v_lshl_add_u32 %s, v2, 10, v4" % v(ar + 2))
    a.e("s_lshl_b32 s%d, s%d, 13" % (sC, sC))
    a.e("s_add_u32 s%d, s%d, s%d" % (sB, sB, sC))
    a.e("s_lshl_b32 s%d, s%d, 16" % (sC, sT))
    a.e("s_add_u32 s%d, s%d, s%d" % (sB, sB, sC))
    a.e("s_lshl_b32 s%d, s%d, 7" % (sC, sCB))
    a.e("s_add_u32 s%d, s%d, s%d" % (sCNT, sB, sC))
    a.e("s_mov_b32 s%d, 0x2000" % sB)
    for j in range(8):
        o = vS + 4 * j
        if j + 2 < 8:
            for r in wd_reads(wf[(j + 2) % 3], vWDA, (j + 2) * 8192): a.e(r)
        a.e("s_waitcnt vmcnt(%d)" % (7 - j))
        a.lab("L_ochk%d" % j)
        a.e("v_max3_u32 v2, %s, %s, %s" % (v(o), v(o + 1), v(o + 2)))
        a.e("v_max_u32 v2, v2, %s" % v(o + 3))
        a.e("v_cmp_eq_u32 vcc, -1, v2")
        a.e("s_cbranch_vccnz L_ore%d" % j)
        a.lab("L_ook%d" % j)
        a.e("s_waitcnt lgkmcnt(%d)" % (4 * min(2, 7 - j)))
        for c in range(2): a.e(mfma(vD + 16 * c, wf[j % 3] + 4 * c, o, vD + 16 * c))
    a.stamp(8)
    a.e("s_nop 10")
    for c in range(2):
        for j in range(4):
            a.e("ds_write_b128 %s, %s offset:%d" % (v(aw + j), v(vD + 16 * c + 4 * j, 4), 128 * c))
    a.e("s_waitcnt lgkmcnt(0)")
    a.e("s_barrier")
    for p in range(4):
        for h in range(2): a.e(rd128(vS + 8 * p + 4 * h, ar + h, p * 8192))
    for p in range(1, 4):
        a.e("s_waitcnt lgkmcnt(%d)" % (6 - 2 * p))
        for i in range(4): a.e("v_pk_add_f32 %s, %s, %s" % (v(vS + 2 * i, 2), v(vS + 2 * i, 2), v(vS + 8 * p + 2 * i, 2)))
    for i in range(4): a.e("v_cvt_pk_bf16_f32 %s, %s, %s" % (v(vP + i), v(vS + 2 * i), v(vS + 2 * i + 1)))
    a.e("buffer_store_dwordx4 %s, %s, %s, s%d offen %s" % (v(vP, 4), v(ar + 2), srd(SOUT), sCNT, Opt.out_pol))
    if Opt.pin == 9:
        a.e("s_waitcnt vmcnt(0)")
        a.stamp(9)
    if Opt.diag:
        a.e("s_waitcnt vmcnt(0)")
        a.stamp(9)
        a.e("s_mov_b32 s%d, s%d" % (sSTAMP + 3, sSTAMP))
        a.e("s_mov_b32 s%d, s%d" % (sSTAMP, sB))
        a.e("s_getreg_b32 s%d, hwreg(HW_REG_XCC_ID)" % (sSTAMP + 1))
        for i in range(20): a.e("v_mov_b32 %s, s%d" % (v(vS + i), sSTAMP + i))
        a.e("s_lshl_b32 s%d, s2, 3" % sA)
        a.e("s_add_u32 s%d, s%d, s%d" % (sA, sA, sW))
        a.e("s_lshl_b32 s%d, s%d, 7" % (sA, sA))
        a.e("s_add_u32 s%d, s%d, 0x%x" % (sA, sA, WS_STAMP))
        a.e("s_mov_b64 exec, 1")
        for i in range(5): a.e("buffer_store_dwordx4 %s, off, %s, s%d offset:%d" % (v(vS + 4 * i, 4), srd(SWS), sA, 16 * i))
    a.lab("L_end")
    a.e("s_endpgm")
    for j in range(8):
        a.lab("L_ore%d" % j)
        a.e("s_sub_u32 s%d, s%d, 1" % (sB, sB))
        a.e("s_cbranch_scc1 L_ogive%d" % j)
        a.e("s_sleep 1")
        a.e("buffer_load_dwordx4 %s, %s, %s, s%d offen offset:%d sc1" % (v(vS + 4 * j, 4), v(vL16), srd(SWS), sOLD if j < 4 else sA, (j % 4) * 1024))
        a.e("s_waitcnt vmcnt(0)")
        a.e("s_branch L_ochk%d" % j)
        a.lab("L_ogive%d" % j)
        a.e("s_mov_b32 s%d, 0" % sB)
        a.e("s_branch L_ook%d" % j)

def fallback(a):
    a.lab("L_fb")
    m = vFR + 4
    a.e("v_mov_b32 %s, 0xff800000" % v(m))
    a.e("s_mov_b32 s%d, 0" % sA)
    a.lab("L_fb1")
    a.e("buffer_load_dwordx4 %s, %s, %s, s%d offen sc1" % (v(vKF, 4), v(vL16), srd(SKV), sA))
    a.e("s_waitcnt vmcnt(0)")
    a.e(mfma(vS, vKF, vQ, None))
    a.e("s_add_u32 s%d, s%d, 2048" % (sA, sA))
    a.e("s_nop 11")
    for i in range(8): a.e("v_max3_f32 %s, %s, %s, %s" % (v(m), v(m), v(vS + 2 * i), v(vS + 2 * i + 1)))
    a.e("s_cmp_lt_u32 s%d, 0x20000" % sA)
    a.e("s_cbranch_scc1 L_fb1")
    a.e("v_mov_b32 %s, %s" % (v(m + 1), v(m)))
    a.e("s_nop 1")
    a.e("v_permlane32_swap_b32 %s, %s" % (v(m), v(m + 1)))
    a.e("s_nop 1")
    a.e("v_max_f32 %s, %s, %s" % (v(m), v(m), v(m + 1)))
    for i in range(16): a.e("v_sub_f32 %s, 0, %s" % (v(vS + 16 + i), v(m)))
    for i in range(16): a.e("v_mov_b32 %s, 0" % v(vO + i))
    a.e("s_mov_b32 s%d, 0" % sA)
    a.lab("L_fb2")
    a.e("s_add_u32 s%d, s%d, 0x%x" % (sB, sA, 63 * 2048))
    a.e("s_and_b32 s%d, s%d, 0x1ffff" % (sB, sB))
    a.e("buffer_load_dwordx4 %s, %s, %s, s%d offen sc1" % (v(vKF, 4), v(vL16), srd(SKV), sB))
    a.e("s_add_u32 s%d, s%d, 2048" % (sB, sA))
    a.e("s_and_b32 s%d, s%d, 0x1ffff" % (sB, sB))
    a.e("s_mov_b64 exec, %s" % sp(sVM))
    a.e("buffer_load_dwordx4 %s, %s, %s, s%d offen offset:1024 sc1" % (v(vV, 4), v(vL16), srd(SKV), sA))
    a.e("buffer_load_dwordx4 %s, %s, %s, s%d offen offset:1280 sc1" % (v(vV + 4, 4), v(vL16), srd(SKV), sB))
    a.e("s_mov_b64 exec, -1")
    a.e("s_waitcnt vmcnt(0)")
    a.e(mfma(vS, vKF, vQ, vS + 16))
    a.e("s_add_u32 s%d, s%d, 2048" % (sA, sA))
    a.e("s_nop 11")
    for i in range(16): a.e("v_exp_f32 %s, %s" % (v(vS + i), v(vS + i)))
    for i in range(8): a.e("v_cvt_pk_bf16_f32 %s, %s, %s" % (v(vP + i), v(vS + 2 * i), v(vS + 2 * i + 1)))
    a.e("s_nop 1")
    a.e(mfma(vO, vV, vP, vO))
    a.e(mfma(vO, vV + 4, vP + 4, vO))
    a.e("s_cmp_lt_u32 s%d, 0x20000" % sA)
    a.e("s_cbranch_scc1 L_fb2")
    a.e("s_nop 11")
    a.e("v_rcp_f32 %s, %s" % (v(vFR + 2), v(vO + 8)))
    a.e("s_branch L_fbret")

def build():
    a = Asm()
    prologue(a)
    phase1_F(a)
    transition(a)
    tail(a)
    ysubs(a)
    vm = a.vm; gelu_sub(a); a.vm = vm
    phase1_L(a)
    fallback(a)
    a.lab("L_codeend")
    head = open("cdna_kernels/%s.s.ref" % NAME).read().split("\n")
    hdr = [l for l in head if l.startswith(";") and "@launch" not in l and "Override" not in l and "grid=" not in l]
    out = hdr + ["; @launch grid=(256,1,1) block=(512,1,1) lds=%d" % LDS_BYTES,
                 '.amdgcn_target "amdgcn-amd-amdhsa--gfx950"', ".text", ".globl %s_kernel" % NAME, ".p2align 8",
                 ".type %s_kernel,@function" % NAME,
                 ".set CODE_PF_MAX, L_codeend - L_nopf - 4" if Opt.code_pf else "",
                 "%s_kernel:" % NAME]
    out += a.l
    out += ['.section .rodata,"a"', ".p2align 6", ".amdhsa_kernel %s_kernel" % NAME,
            "  .amdhsa_next_free_vgpr %d" % NV, "  .amdhsa_next_free_sgpr 102", "  .amdhsa_accum_offset 256",
            "  .amdhsa_group_segment_fixed_size 0", "  .amdhsa_kernarg_size 104", "  .amdhsa_user_sgpr_count 2",
            "  .amdhsa_user_sgpr_kernarg_segment_ptr 1", "  .amdhsa_system_sgpr_workgroup_id_x 1", ".end_amdhsa_kernel", ""]
    return "\n".join(out)

if __name__ == "__main__":
    path = sys.argv[1]
    for kv in sys.argv[2:]:
        k, val = kv.split("=")
        cur = getattr(Opt, k)
        setattr(Opt, k, val if isinstance(cur, str) else type(cur)(int(val)))
    open(path, "w").write(build())
```

```python
import sys, struct, math

NAME = "gated_mix__grouped_kv_mqa__geglu_ffn__prompt"

class Opt:
    diag = False
    mapmode = 1
    force_fb = False
    out_pol = ""
    code_pf = True
    xrot = 0
    npre = 4
    stagger = 1
    npd = 2
    kdiag = 0
    fillpre = 0
    fillper = 10
    gsc = 3
    xmask = 1
    touch = 2
    rotg = 0
    rotm = 0
    startbar = 1
    pvz = 1
    pin = -1
    pin_ns = 60000

def f2u(x): return struct.unpack("<I", struct.pack("<f", x))[0]

WS_KV = 0
WS_G = 128 * 1024
WS_HFLAG = 192 * 1024
WS_OF = 1 << 20
WS_HF = 4 << 20
WS_STAMP = 12 << 20
WS_SIZE = 16 << 20
K1 = 1024
L_G, L_U, L_X, L_WQ = 0, 48 * K1, 96 * K1, 144 * K1
L_QX = 32 * K1
L_WD, L_WO, L_KV = 0, 64 * K1, 128 * K1
LL_X, LL_W, LL_GATE, LL_WQ = 0, 128 * K1, 144 * K1, 128 * K1
LDS_BYTES = 160 * K1

SX, SWG, SWU, SWQ, SWS, SWD, SWO, SOUT, SDBG, SWKV, SGATE, SKV = 4, 8, 12, 16, 20, 24, 28, 32, 36, 40, 44, 64
SWV = 72
sTMPP = 48
sW, sHI, sLO, sG, sM, sT, sCB = 50, 51, 52, 53, 54, 55, 56
sWK = 57
sWH = 58
sK64 = 59
sVM = 60
sRET = 62
sA, sB, sC, sD = 68, 69, 70, 71
sOFFW, sOFFQ, sCH, sXP = 72, 73, 74, 75
sHOFF, sWDOFF, sKVOFF, sM0WD, sM0KV, sCNT = 72, 73, 74, 75, 76, 77
sOST, sOLD, sHST = 78, 79, 80
sHP = 81
sSTAMP = 82

def srd(b): return "s[%d:%d]" % (b, b + 3)
def sp(b): return "s[%d:%d]" % (b, b + 1)
def v(b, n=1): return "v%d" % b if n == 1 else "v[%d:%d]" % (b, b + n - 1)

vL16 = 1
vT0, vT1, vT2, vT3 = 2, 3, 4, 5
vGP, vGC = 6, 7
vKVA = 8
vWDA = 9
vWDV = 10
vONE = 11
vZERO = 12
vFLA = 13
vPOLL = 14
vGA = 15
vQ = 16
vK0 = 20
vV1L = 24
vE = 28
vP = 32
vV = 40
vO = 56
vD = 72
vACC = 104
vS = 104
vH = 136
vAQ = 168
vKF = 168
vWF = 176
vFR = 184
vXA = 224
vWA = 232
vQA = 236
vDX, vDG, vDU, vDQ = 237, 238, 239, 240
vC0 = 242
NV = 256

class Asm:
    def __init__(self):
        self.l = []
        self.vm = []
        self.nstamp = 0
    def e(self, s):
        for x in s.split("\n"):
            x = x.strip()
            if x: self.l.append("    " + x)
    def lab(self, s): self.l.append(s + ":")
    def vmop(self, s, tag):
        self.e(s); self.vm.append(tag)
    def vmn(self, tags):
        if isinstance(tags, str): tags = [tags]
        last = -1
        for i, t in enumerate(self.vm):
            if t in tags: last = i
        return None if last < 0 else len(self.vm) - 1 - last
    def waitvm(self, tags, lgkm=False):
        n = self.vmn(tags)
        if n is None:
            if lgkm: self.e("s_waitcnt lgkmcnt(0)")
            return
        assert n < 64
        self.e("s_waitcnt vmcnt(%d)%s" % (n, " lgkmcnt(0)" if lgkm else ""))
        self.vm = self.vm[len(self.vm) - n:] if n else []
    def wait0(self, lgkm=False):
        self.e("s_waitcnt vmcnt(0)%s" % (" lgkmcnt(0)" if lgkm else "")); self.vm = []
    def stamp(self, i, real=False):
        if Opt.pin == i:
            self.nstamp += 1
            self.e("s_waitcnt lgkmcnt(0)")
            self.e("s_cselect_b32 s%d, 1, 0" % (sSTAMP + 5))
            self.lab("L_pin%d" % self.nstamp)
            self.e("s_memrealtime s[0:1]")
            self.e("s_waitcnt lgkmcnt(0)")
            self.e("s_sub_u32 s0, s0, s%d" % sSTAMP)
            self.e("s_cmp_lt_u32 s0, %d" % (Opt.pin_ns // 10))
            self.e("s_cbranch_scc1 L_pin%d" % self.nstamp)
            self.e("s_cmp_lg_u32 s%d, 0" % (sSTAMP + 5))
        if Opt.diag and not Opt.kdiag:
            self.e("s_waitcnt lgkmcnt(0)")
            self.e("s_memtime %s" % sp(sSTAMP + 2 * i))
            self.e("s_memrealtime s[0:1]")
            self.e("s_waitcnt lgkmcnt(0)")
            self.e("s_mov_b32 s%d, s0" % (sSTAMP + 2 * i + 1))

def kstamp(a, i):
    if Opt.diag and Opt.kdiag: a.e("s_memtime %s" % sp(sSTAMP + 2 * i))

def mfma(d, a, b, c):
    return "v_mfma_f32_32x32x16_bf16 %s, %s, %s, %s" % (v(d, 16), v(a, 4), v(b, 4), "0" if c is None else v(c, 16))
def rd128(d, a, off):
    assert 0 <= off < 65536
    return "ds_read_b128 %s, %s offset:%d" % (v(d, 4), v(a), off)
def rdtr(d, a, off):
    assert 0 <= off < 65536
    return "ds_read_b64_tr_b16 %s, %s offset:%d" % (v(d, 2), v(a), off)

def interleave(mf, fill, per=2):
    out = []
    fill = list(fill)
    for i, m in enumerate(mf):
        out.append(m)
        if i < len(mf) - 1:
            out += fill[:per]; fill = fill[per:]
    return out + fill

def srd_words(a, regs):
    sizes = {SX: 2048 * 1024, SWG: 512 * 3584, SWU: 512 * 3584, SWQ: 512 * 1024, SWS: WS_SIZE, SWKV: 16384, SWV: 16384,
             SGATE: 1024, SWD: 1792 * 1024, SWO: 512 * 1024, SOUT: 2048 * 1024, SDBG: 256, SKV: 128 * 1024}
    for reg in regs:
        a.e("s_mov_b32 s%d, 0x%x" % (reg + 2, sizes[reg]))
        a.e("s_mov_b32 s%d, 0x20000" % (reg + 3))

def prologue(a):
    a.e("s_cmp_ge_u32 s2, 256")
    a.e("s_cbranch_scc1 L_end")
    for reg, off in ((SX, 0), (SWG, 48), (SWU, 56), (SWQ, 8), (SWS, 96), (SWKV, 16), (sTMPP, 24), (SGATE, 72),
                     (SWD, 64), (SWO, 32), (SOUT, 80), (SDBG, 88), (SKV, 96)):
        a.e("s_load_dwordx2 %s, s[0:1], %d" % (sp(reg), off))
    if Opt.diag or Opt.pin >= 0:
        a.e("s_memrealtime %s" % sp(sSTAMP))
        a.e("s_memtime %s" % sp(sSTAMP + 2))
    a.e("v_lshrrev_b32 v2, 6, v0")
    a.e("v_and_b32 v0, 63, v0")
    a.e("v_readfirstlane_b32 s%d, v2" % sW)
    a.e("v_lshlrev_b32 %s, 4, v0" % v(vL16))
    srd_words(a, [SX, SWQ])
    a.e("s_and_b32 s%d, s2, 7" % sA)
    a.e("s_lshr_b32 s%d, s2, 3" % sB)
    a.e("s_lshl_b32 s%d, s%d, 2" % (sT, sA))
    a.e("s_and_b32 s%d, s%d, 3" % (sD, sB))
    a.e("s_add_u32 s%d, s%d, s%d" % (sT, sT, sD))
    a.e("s_lshr_b32 s%d, s%d, 2" % (sCB, sB))
    if Opt.xrot:
        a.e("s_add_u32 s%d, s%d, %d" % (sA, sA, Opt.xrot))
        a.e("s_and_b32 s%d, s%d, 7" % (sA, sA))
    if Opt.mapmode == 0:
        a.e("s_lshl_b32 s%d, s%d, 1" % (sG, sA))
        a.e("s_and_b32 s%d, s%d, 1" % (sC, sB))
        a.e("s_add_u32 s%d, s%d, s%d" % (sG, sG, sC))
        a.e("s_lshr_b32 s%d, s%d, 1" % (sM, sB))
        a.e("s_mov_b32 s%d, s%d" % (sHP, sM))
    elif Opt.mapmode in (1, 3):
        a.e("s_and_b32 s%d, s%d, 1" % (sG, sA))
        a.e("s_lshl_b32 s%d, s%d, 3" % (sG, sG))
        a.e("s_and_b32 s%d, s%d, 7" % (sC, sB))
        a.e("s_add_u32 s%d, s%d, s%d" % (sG, sG, sC))
        a.e("s_lshr_b32 s%d, s%d, 1" % (sA, sA))
        a.e("s_lshl_b32 s%d, s%d, 2" % (sHP, sA))
        a.e("s_lshr_b32 s%d, s%d, 3" % (sC, sB))
        a.e("s_add_u32 s%d, s%d, s%d" % (sHP, sHP, sC))
        if Opt.mapmode == 1:
            a.e("s_mov_b32 s%d, s%d" % (sM, sHP))
        else:
            a.e("s_sub_u32 s%d, s%d, s%d" % (sM, sHP, sA))
            a.e("s_lshr_b32 s%d, s%d, 1" % (sB, sB))
            a.e("s_and_b32 s%d, s%d, 2" % (sB, sB))
            a.e("s_add_u32 s%d, s%d, s%d" % (sB, sB, sA))
            a.e("s_and_b32 s%d, s%d, 3" % (sB, sB))
            a.e("s_add_u32 s%d, s%d, 12" % (sB, sB))
            a.e("s_cmp_eq_u32 s%d, 3" % sC)
            a.e("s_cselect_b32 s%d, s%d, s%d" % (sM, sB, sM))
    else:
        a.e("s_and_b32 s%d, s%d, 3" % (sG, sA))
        a.e("s_lshl_b32 s%d, s%d, 2" % (sG, sG))
        a.e("s_add_u32 s%d, s%d, s%d" % (sG, sG, sD))
        a.e("s_lshr_b32 s%d, s%d, 2" % (sM, sA))
        a.e("s_lshl_b32 s%d, s%d, 3" % (sM, sM))
        a.e("s_add_u32 s%d, s%d, s%d" % (sM, sM, sCB))
        a.e("s_mov_b32 s%d, s%d" % (sHP, sM))
    a.e("s_lshl_b32 s%d, s%d, 10" % (sWK, sW))
    a.e("s_mov_b32 s%d, 0x10000" % sK64)
    if Opt.code_pf:
        a.e("s_cmp_lg_u32 s%d, s%d" % (sD, sW))
        a.e("s_cbranch_scc1 L_nopf")
        a.e("s_getpc_b64 %s" % sp(sRET))
        a.e("s_lshl_b32 s%d, s%d, 13" % (sD, sW))
        a.e("v_lshl_add_u32 v2, v0, 7, s%d" % sD)
        a.e("v_min_u32 v2, CODE_PF_MAX, v2")
        a.e("global_load_dword %s, v2, %s" % (v(vPOLL), sp(sRET)))
        a.lab("L_nopf")
    a.e("s_lshl_b32 s%d, s%d, 2" % (sA, sW))
    a.e("v_lshrrev_b32 v2, 4, v0")
    a.e("v_add_u32 v3, s%d, v2" % sA)
    a.e("v_xor_b32 v3, v3, v0")
    a.e("v_and_b32 v3, 7, v3")
    a.e("v_lshlrev_b32 v3, 4, v3")
    a.e("v_lshrrev_b32 v4, 3, v0")
    a.e("v_lshl_add_u32 v3, v4, 10, v3")
    a.e("s_lshl_b32 s%d, s%d, 17" % (sA, sG))
    a.e("s_lshl_b32 s%d, s%d, 13" % (sB, sW))
    a.e("s_add_u32 s%d, s%d, s%d" % (sA, sA, sB))
    a.e("v_add_u32 %s, s%d, v3" % (v(vDX), sA))
    a.e("s_cmp_ge_u32 s%d, 14" % sM)
    a.e("s_cbranch_scc1 L_light")

def setup_rd(a):
    a.e("s_lshr_b32 s%d, s%d, 2" % (sHI, sW))
    a.e("s_and_b32 s%d, s%d, 3" % (sLO, sW))
    a.e("v_and_b32 v2, 31, v0")
    a.e("v_lshrrev_b32 v3, 5, v0")
    a.e("v_bfe_u32 v4, v0, 1, 3")
    a.e("v_xor_b32 v4, v4, v3")
    a.e("v_lshlrev_b32 v4, 4, v4")
    a.e("v_lshl_add_u32 %s, v2, 7, v4" % v(vXA))
    a.e("v_bfe_u32 v2, v0, 2, 2")
    a.e("v_and_b32 v4, 3, v0")
    a.e("v_bfe_u32 v5, v0, 4, 1")
    a.e("v_lshl_add_u32 %s, v3, 3, v2" % v(vQA))
    a.e("v_lshlrev_b32 %s, 6, %s" % (v(vQA), v(vQA)))
    a.e("v_lshl_add_u32 %s, v5, 5, %s" % (v(vQA), v(vQA)))
    a.e("v_lshl_add_u32 %s, v4, 3, %s" % (v(vQA), v(vQA)))

def setup_oclr(a):
    srd_words(a, [SWS, SKV, SDBG])
    a.e("s_mov_b32 s%d, 0xffff" % sVM)
    a.e("s_mov_b32 s%d, 0xffff" % (sVM + 1))
    a.e("s_lshl_b32 s%d, s%d, 2" % (sA, sG))
    a.e("s_add_u32 s%d, s%d, s%d" % (sA, sA, sLO))
    a.e("s_lshl_b32 s%d, s%d, 5" % (sB, sA))
    a.e("s_lshl_b32 s%d, s%d, 1" % (sC, sHP))
    a.e("s_add_u32 s%d, s%d, s%d" % (sB, sB, sC))
    a.e("s_add_u32 s%d, s%d, s%d" % (sB, sB, sHI))
    a.e("s_lshl_b32 s%d, s%d, 10" % (sB, sB))
    a.e("s_add_u32 s%d, s%d, 0x%x" % (sOST, sB, WS_OF))
    for i in range(4): a.e("v_mov_b32 %s, -1" % v(vP + i))
    a.vmop("buffer_store_dwordx4 %s, %s, %s, s%d offen sc1" % (v(vP, 4), v(vL16), srd(SWS), sOST), "oclr")
    a.e("v_mov_b32 %s, 1" % v(vONE))
    a.e("v_mov_b32 %s, 0" % v(vZERO))
    a.e("v_and_b32 %s, 31, v0" % v(vGA))
    a.e("v_lshlrev_b32 %s, 2, %s" % (v(vGA), v(vGA)))

def collect(fn):
    t = Asm(); t.marks = {}
    def vmop(s_, tag):
        t.e(s_); t.marks[len(t.l) - 1] = tag
    t.vmop = vmop
    fn(t)
    return [(x, t.marks.get(i)) for i, x in enumerate(t.l)]
def put(a, items):
    for x, tag in items:
        if tag: a.vmop(x, tag)
        else: a.e(x)

def setup_attn(a):
    srd_words(a, [SWD, SWO, SOUT])
    a.e("s_lshl_b32 s%d, s%d, 2" % (sA, sG))
    a.e("s_add_u32 s%d, s%d, s%d" % (sA, sA, sLO))
    a.e("s_mul_i32 s%d, s%d, 112" % (sB, sA))
    a.e("s_lshl_b32 s%d, s%d, 3" % (sC, sM))
    a.e("s_add_u32 s%d, s%d, s%d" % (sB, sB, sC))
    a.e("s_lshl_b32 s%d, s%d, 2" % (sC, sHI))
    a.e("s_add_u32 s%d, s%d, s%d" % (sB, sB, sC))
    a.e("s_and_b32 s%d, s%d, 1" % (sC, sLO))
    a.e("s_lshl_b32 s%d, s%d, 1" % (sC, sC))
    a.e("s_add_u32 s%d, s%d, s%d" % (sB, sB, sC))
    a.e("s_lshl_b32 s%d, s%d, 10" % (sB, sB))
    a.e("s_add_u32 s%d, s%d, 0x%x" % (sHST, sB, WS_HF))
    a.e("v_bfe_u32 v2, v0, 2, 2")
    a.e("v_lshrrev_b32 v3, 5, v0")
    a.e("v_lshl_add_u32 v2, v3, 2, v2")
    a.e("v_lshlrev_b32 v2, 6, v2")
    a.e("v_bfe_u32 v3, v0, 4, 1")
    a.e("v_lshl_add_u32 v2, v3, 5, v2")
    a.e("v_and_b32 v3, 3, v0")
    a.e("v_lshl_add_u32 v2, v3, 3, v2")
    a.e("s_lshr_b32 s%d, s%d, 1" % (sA, sW))
    a.e("s_lshl_b32 s%d, s%d, 11" % (sA, sA))
    a.e("v_add_u32 %s, s%d, v2" % (v(vWDA), sA))
    a.e("v_add_u32 %s, 0x%x, %s" % (v(vKVA), L_KV, v(vL16)))
    a.e("v_bfe_u32 v2, v0, 2, 3")
    a.e("v_lshlrev_b32 v2, 10, v2")
    a.e("v_lshrrev_b32 v3, 5, v0")
    a.e("v_lshl_add_u32 v2, v3, 6, v2")
    a.e("v_and_b32 v3, 3, v0")
    a.e("v_lshl_add_u32 v2, v3, 4, v2")
    a.e("s_and_b32 s%d, s%d, 1" % (sA, sW))
    a.e("s_lshl_b32 s%d, s%d, 13" % (sA, sA))
    a.e("s_lshl_b32 s%d, s%d, 7" % (sB, sCB))
    a.e("s_add_u32 s%d, s%d, s%d" % (sA, sA, sB))
    a.e("v_add_u32 %s, s%d, v2" % (v(vWDV), sA))
    a.e("v_min_u32 v2, 13, v0")
    a.e("v_lshlrev_b32 v2, 7, v2")
    a.e("s_lshr_b32 s%d, s%d, 1" % (sA, sT))
    a.e("s_lshl_b32 s%d, s%d, 11" % (sA, sA))
    a.e("s_add_u32 s%d, s%d, 0x%x" % (sA, sA, WS_HFLAG))
    a.e("v_add_u32 %s, s%d, v2" % (v(vFLA), sA))
    a.e("s_lshl_b32 s%d, s%d, 1" % (sA, sT))
    a.e("s_and_b32 s%d, s%d, 1" % (sB, sW))
    a.e("s_add_u32 s%d, s%d, s%d" % (sA, sA, sB))
    a.e("s_lshl_b32 s%d, s%d, 15" % (sB, sA))
    a.e("s_lshr_b32 s%d, s%d, 1" % (sC, sW))
    a.e("s_lshl_b32 s%d, s%d, 13" % (sC, sC))
    a.e("s_add_u32 s%d, s%d, s%d" % (sB, sB, sC))
    a.e("s_add_u32 s%d, s%d, 0x%x" % (sOLD, sB, WS_OF))
    if Opt.pvz:
        a.e("v_and_b32 v2, 27, v0")
        a.e("v_cmp_eq_u32 vcc, 16, v2")
        a.e("v_mov_b32 v3, 0x3f803f80")
        a.e("s_nop 0")
        a.e("v_cndmask_b32 v2, 0, v3, vcc")
    else:
        a.e("v_mov_b32 v2, 0x3f803f80")
    for i in range(16): a.e("v_mov_b32 %s, v2" % v(vV + i))
    for i in range(4): a.e("v_mov_b32 %s, v2" % v(vV1L + i))
    for i in range(4): a.e("v_mov_b32 %s, 0" % v(vE + i))
    for i in range(4, 8): a.e("v_mov_b32 %s, 0" % v(vP + i))
    for i in range(16): a.e("v_mov_b32 %s, 0" % v(vO + i))
    for i in range(32): a.e("v_mov_b32 %s, 0" % v(vD + i))
    c0 = -2.0 * math.sqrt(2.0 / math.pi) * math.log2(math.e)
    a.e("v_mov_b32 %s, 0x%x" % (v(vC0), f2u(c0)))
    a.e("v_mov_b32 %s, 0x%x" % (v(vC0 + 1), f2u(c0 * 0.044715)))

def kv_first_loads(a):
    it = []
    for u in range(2):
        it.append(("s_add_u32 m0, s%d, 0x%x\ns_add_u32 s%d, s%d, 0x%x\nbuffer_load_dwordx4 %s, %s, s%d offen sc1 lds"
                   % (sWK, L_KV + u * 8192, sA, sWK, u * 8192, v(vL16), srd(SKV), sA), "kv%d" % u))
    it.append(("s_mov_b32 s%d, 0x%x\nbuffer_load_dwordx4 %s, %s, %s, s%d offen sc1"
               % (sA, 63 * 2048, v(vK0, 4), v(vL16), srd(SKV), sA), "k0"))
    it.append(("s_mov_b64 exec, %s\nbuffer_load_dwordx4 %s, %s, %s, 0 offen offset:%d sc1\ns_mov_b64 exec, -1"
               % (sp(sVM), v(vV1L, 4), v(vL16), srd(SKV), 1024 + 256), "k0"))
    it.append(("s_lshl_b32 s%d, s%d, 2\ns_add_u32 s%d, s%d, s%d\ns_lshl_b32 s%d, s%d, 7\ns_add_u32 s%d, s%d, 0x%x\n"
               "buffer_load_dword %s, %s, %s, s%d offen sc1"
               % (sA, sG, sA, sA, sLO, sA, sA, sA, sA, WS_G, v(vGP), v(vGA), srd(SWS), sA), "k0"))
    it.append(("s_lshl_b32 s%d, s%d, 1\ns_and_b32 s%d, s%d, 1\ns_add_u32 s%d, s%d, s%d\ns_lshl_b32 s%d, s%d, 7\ns_add_u32 s%d, s%d, 0x%x\n"
               "buffer_load_dword %s, %s, %s, s%d offen sc1"
               % (sA, sT, sB, sW, sA, sA, sB, sA, sA, sA, sA, WS_G, v(vGC), v(vGA), srd(SWS), sA), "k0"))
    return it

def spin_counter(a, name, first_loaded):
    a.e("s_cmp_lg_u32 s%d, 0" % sW)
    a.e("s_cbranch_scc1 L_%s_done" % name)
    a.e("s_mov_b32 s%d, 0x4000" % sB)
    if first_loaded: a.e("s_branch L_%s_chk" % name)
    a.lab("L_%s_re" % name)
    a.e("buffer_load_dword %s, off, %s, 0 sc1" % (v(vPOLL), srd(SDBG)))
    a.e("s_waitcnt vmcnt(0)")
    a.lab("L_%s_chk" % name)
    a.e("v_readfirstlane_b32 s%d, %s" % (sA, v(vPOLL)))
    a.e("s_cmp_ge_u32 s%d, 32" % sA)
    a.e("s_cbranch_scc1 L_%s_done" % name)
    a.e("s_sleep 4")
    a.e("s_sub_u32 s%d, s%d, 1" % (sB, sB))
    a.e("s_cmp_lg_u32 s%d, 0" % sB)
    a.e("s_cbranch_scc1 L_%s_re" % name)
    a.lab("L_%s_done" % name)

def phase1_F(a):
    srd_words(a, [SWG, SWU])
    a.e("s_lshl_b32 s%d, s%d, 9" % (sWH, sW))
    a.e("v_bfe_u32 v3, v0, 1, 3")
    a.e("v_xor_b32 v3, v3, v2")
    a.e("v_lshlrev_b32 v3, 5, v3")
    a.e("v_and_b32 v4, 1, v0")
    a.e("v_lshl_add_u32 v3, v4, 4, v3")
    a.e("v_xor_b32 v4, 0x80, v3")
    a.e("v_mul_u32_u24 v5, 3584, v2")
    a.e("s_mul_i32 s%d, s%d, %d" % (sA, sW, 4 * 3584))
    a.e("s_lshl_b32 s%d, s%d, 8" % (sB, sM))
    a.e("s_add_u32 s%d, s%d, s%d" % (sA, sA, sB))
    a.e("v_add3_u32 %s, v3, v5, s%d" % (v(vDG), sA))
    a.e("v_add3_u32 %s, v4, v5, s%d" % (v(vDU), sA))
    a.e("v_lshrrev_b32 v3, 2, v0")
    a.e("v_lshlrev_b32 v3, 10, v3")
    a.e("v_and_b32 v4, 3, v0")
    a.e("v_lshl_add_u32 v3, v4, 4, v3")
    a.e("s_lshl_b32 s%d, s%d, 13" % (sA, sW))
    a.e("s_lshl_b32 s%d, s%d, 6" % (sB, sHP))
    a.e("s_add_u32 s%d, s%d, s%d" % (sA, sA, sB))
    a.e("v_add_u32 %s, s%d, v3" % (v(vDQ), sA))
    a.e("s_add_u32 s%d, s%d, s%d" % (sA, sG, sHP))
    a.e("s_and_b32 s%d, s%d, %d" % (sXP, sA, Opt.xmask))
    a.e("s_mov_b32 s%d, s%d" % (sCH, sXP))

    def dmas(c):
        s = c % 3
        t = "c%d" % c
        it = []
        def one(m0src, m0c, vo, rs, so, pre="s_nop 0", post=""):
            return ("s_add_u32 m0, s%d, 0x%x\n%s\nbuffer_load_dwordx4 %s, %s, s%d offen lds\n%s"
                    % (m0src, m0c, pre, v(vo), srd(rs), so, post), t)
        it.append(one(sWK, L_X + s * 16384, vDX, SX, sOFFQ, pre="s_lshl_b32 s%d, s%d, 7" % (sOFFQ, sCH)))
        it.append(one(sWK, L_X + s * 16384 + 8192, vDX, SX, sOFFQ, pre="s_add_u32 s%d, s%d, s%d" % (sOFFQ, sOFFQ, sK64)))
        it.append(one(sWK, L_G + s * 16384, vDG, SWG, sOFFW, pre="s_mul_i32 s%d, s%d, %d" % (sOFFW, sCH, 64 * 3584)))
        it.append(one(sWK, L_U + s * 16384, vDU, SWU, sOFFW, pre="s_lshl_b32 s%d, s%d, 16" % (sOFFQ, sCH)))
        it.append(one(sWK, L_G + s * 16384 + 8192, vDG, SWG, sOFFW, pre="s_add_u32 s%d, s%d, %d" % (sOFFW, sOFFW, 32 * 3584)))
        it.append(one(sWK, L_U + s * 16384 + 8192, vDU, SWU, sOFFW, pre="s_xor_b32 s%d, s%d, %d" % (sCH, sXP, c + 1)))
        it.append(one(sWH, L_WQ + s * 4096, vDQ, SWQ, sOFFQ, pre="s_mov_b32 exec_hi, 0",
                      post="s_mov_b32 exec_hi, -1"))
        return it

    def rdsetup(a):
        setup_rd(a)
        a.e("v_lshl_add_u32 %s, v3, 3, v2" % v(vWA))
        a.e("v_lshlrev_b32 %s, 8, %s" % (v(vWA), v(vWA)))
        a.e("v_lshl_add_u32 %s, v4, 3, %s" % (v(vWA), v(vWA)))
        a.e("v_mul_u32_u24 v4, 0x%x, v5" % (L_U - L_G))
        a.e("v_add_u32 %s, v4, %s" % (v(vWA), v(vWA)))
        a.e("v_lshl_add_u32 v2, v5, 2, v2")
        a.e("s_lshl_b32 s%d, s%d, 2" % (sA, sHI))
        a.e("s_and_b32 s%d, s%d, 1" % (sB, sLO))
        a.e("s_lshl_b32 s%d, s%d, 1" % (sB, sB))
        a.e("s_add_u32 s%d, s%d, s%d" % (sA, sA, sB))
        a.e("v_xor_b32 v2, s%d, v2" % sA)
        a.e("v_lshl_add_u32 %s, v2, 5, %s" % (v(vWA), v(vWA)))
        a.e("s_lshl_b32 s%d, s%d, 13" % (sA, sHI))
        a.e("s_xor_b32 s%d, s%d, 0x2000" % (sB, sA))
        a.e("v_add_u32 %s, s%d, %s" % (v(vWA + 2), sB, v(vWA)))
        a.e("v_add_u32 %s, s%d, %s" % (v(vWA), sA, v(vWA)))
        a.e("v_xor_b32 %s, 32, %s" % (v(vWA + 1), v(vWA)))
        a.e("v_xor_b32 %s, 32, %s" % (v(vWA + 3), v(vWA + 2)))
        a.e("s_lshl_b32 s%d, s%d, 6" % (sA, sHI))
        a.e("s_lshl_b32 s%d, s%d, 12" % (sB, sLO))
        a.e("s_add_u32 s%d, s%d, s%d" % (sA, sA, sB))
        a.e("s_add_u32 s%d, s%d, 0x%x" % (sA, sA, L_X))
        a.e("v_xor_b32 %s, s%d, %s" % (v(vXA), sA, v(vXA)))
        for s in range(1, 4): a.e("v_xor_b32 %s, %d, %s" % (v(vXA + s), 32 * s, v(vXA)))
        for s in range(4): a.e("v_xor_b32 %s, 0x1000, %s" % (v(vXA + 4 + s), v(vXA + s)))
        a.e("s_lshl_b32 s%d, s%d, 11" % (sA, sHI))
        a.e("s_add_u32 s%d, s%d, 0x%x" % (sA, sA, L_WQ))
        a.e("v_add_u32 %s, s%d, %s" % (v(vQA), sA, v(vQA)))

    a.e("s_waitcnt lgkmcnt(0)")
    a.stamp(2)
    put(a, dmas(0))
    if Opt.touch & 1:
        a.e("s_cmp_ge_u32 s%d, 3" % sW)
        a.e("s_cbranch_scc1 L_notouch")
        a.e("v_lshrrev_b32 v2, 1, v0")
        a.e("s_add_u32 s%d, s%d, 128" % (sA, sG))
        a.e("v_lshl_add_u32 v2, v2, 4, s%d" % sA)
        a.e("s_cmp_eq_u32 s%d, 2" % sW)
        a.e("s_cbranch_scc1 L_touchq")
        a.e("v_mul_u32_u24 v2, 3584, v2")
        a.e("v_and_b32 v3, 1, v0")
        a.e("v_lshl_add_u32 v2, v3, 7, v2")
        a.e("s_lshl_b32 s%d, s%d, 8" % (sA, sM))
        a.e("s_cmp_eq_u32 s%d, 1" % sW)
        a.e("s_cbranch_scc1 L_touchu")
        a.e("buffer_load_dword %s, v2, %s, s%d offen" % (v(vPOLL), srd(SWG), sA))
        a.e("s_branch L_notouch")
        a.lab("L_touchu")
        a.e("buffer_load_dword %s, v2, %s, s%d offen" % (v(vPOLL), srd(SWU), sA))
        a.e("s_branch L_notouch")
        a.lab("L_touchq")
        a.e("v_lshlrev_b32 v2, 10, v2")
        a.e("s_lshl_b32 s%d, s%d, 6" % (sA, sHP))
        a.e("buffer_load_dword %s, v2, %s, s%d offen" % (v(vPOLL), srd(SWQ), sA))
        a.lab("L_notouch")
    if Opt.startbar: a.e("s_barrier")
    pend = dmas(1) + dmas(2)
    st = collect(rdsetup)
    gap = len(st) // (Opt.npre + 1) + 1
    for i in range(Opt.npre):
        put(a, pend[:1]); pend = pend[1:]
        put(a, st[:gap]); st = st[gap:]
    put(a, st)
    fill = collect(setup_oclr) + collect(setup_attn)
    put(a, fill[:Opt.fillpre]); fill = fill[Opt.fillpre:]

    def fr(k):
        b = vFR + 20 * (k % 2)
        return dict(x0=b, x1=b + 4, w0=b + 8, w1=b + 12, q=b + 16)
    def reads(k):
        c, s = divmod(k, 4); f = fr(k); sl = c % 3
        wo = sl * 16384 + (s & 1) * 4096
        wa = vWA + 2 * (s >> 1)
        r = [rdtr(f['w0'], wa, wo), rdtr(f['w0'] + 2, wa, wo + 1024),
             rd128(f['x0'], vXA + s, sl * 16384), rd128(f['x1'], vXA + 4 + s, sl * 16384),
             rdtr(f['w1'], wa + 1, wo), rdtr(f['w1'] + 2, wa + 1, wo + 1024)]
        if s < 2:
            r += [rdtr(f['q'], vQA, sl * 4096 + s * 1024), rdtr(f['q'] + 2, vQA, sl * 4096 + s * 1024 + 256)]
        return r
    n0 = a.vmn("c0")
    if Opt.touch & 1:
        a.e("s_cmp_ge_u32 s%d, 3" % sW)
        a.e("s_cbranch_scc1 L_w0a")
        a.e("s_waitcnt vmcnt(%d)" % (n0 + 1))
        a.e("s_branch L_w0b")
        a.lab("L_w0a")
        a.waitvm("c0")
        a.lab("L_w0b")
    else:
        a.waitvm("c0")
    a.e("s_barrier")
    a.stamp(3)
    kstamp(a, 2)
    for r in reads(0): a.e(r)
    kpoll = 21 if Opt.stagger else 23
    for k in range(32):
        c, s = divmod(k, 4); f = fr(k)
        if s == 3 and c < 7:
            assert not any(t == "c%d" % (c + 1) for _, t in pend)
            if c == 6 and Opt.stagger:
                a.e("s_waitcnt lgkmcnt(0)")
                a.e("s_cmp_lg_u32 s%d, 0" % sHI)
                a.e("s_cbranch_scc1 L_st7")
                a.e("s_waitcnt vmcnt(0)")
                spin_counter(a, "kvf", True)
                a.e("s_barrier")
                a.e("s_setprio 1")
                for x, _ in kv_first_loads(a): a.e(x)
                a.lab("L_st7")
            else:
                if c == 6:
                    a.wait0(lgkm=True)
                    spin_counter(a, "kvf", True)
                else:
                    a.waitvm("c%d" % (c + 1), lgkm=True)
                a.e("s_barrier")
                if c + 3 < 8: pend += dmas(c + 3)
                if c == 6: pend += kv_first_loads(a)
            kstamp(a, 3 + c)
        else:
            a.e("s_waitcnt lgkmcnt(0)")
        z = lambda x: None if k == 0 else x
        mf = [mfma(vACC, f['w0'], f['x0'], z(vACC)), mfma(vACC + 16, f['w0'], f['x1'], z(vACC + 16)),
              mfma(vACC + 32, f['w1'], f['x0'], z(vACC + 32)), mfma(vACC + 48, f['w1'], f['x1'], z(vACC + 48))]
        if s < 2: mf.append(mfma(vAQ, f['q'], f['x0'], z(vAQ)))
        for x in interleave(mf, reads(k + 1) if k < 31 else []): a.e(x)
        npd = 3 if len(pend) > 7 or k < 3 else Opt.npd
        put(a, pend[:npd]); pend = pend[npd:]
        if k >= 4:
            put(a, fill[:Opt.fillper]); fill = fill[Opt.fillper:]
        if k == kpoll:
            assert not fill
            a.e("s_cmp_lg_u32 s%d, 0" % sW)
            a.e("s_cbranch_scc1 L_nopoll")
            a.e("buffer_load_dword %s, off, %s, 0 sc1" % (v(vPOLL), srd(SDBG)))
            a.lab("L_nopoll")
        if k == 23 and Opt.stagger:
            assert not pend
            a.e("s_cmp_eq_u32 s%d, 0" % sHI)
            a.e("s_cbranch_scc1 L_st6")
            a.wait0()
            a.e("s_barrier")
            put(a, kv_first_loads(a))
            a.lab("L_st6")
    assert not pend
    a.stamp(4)

def phase1_L(a):
    a.lab("L_light")
    a.vm = []
    srd_words(a, [SWKV, SWV, SGATE])
    a.e("s_sub_u32 s%d, s%d, 14" % (sCNT, sM))
    a.e("s_lshl_b32 s%d, s%d, 16" % (sOLD, sCNT))
    a.e("s_lshl_b32 s%d, s%d, 13" % (sHST, sCNT))
    a.e("s_add_u32 s%d, s%d, s%d" % (sWH, sHST, sWK))
    a.e("s_xor_b32 s%d, s%d, 0x2000" % (sHST, sHST))
    a.e("s_add_u32 s%d, s%d, 0x2000" % (sA, sWK))
    a.e("s_waitcnt lgkmcnt(0)")
    a.stamp(2)
    a.e("s_mov_b32 s%d, s%d" % (SWV, sTMPP))
    a.e("s_mov_b32 s%d, s%d" % (SWV + 1, sTMPP + 1))
    def xdma(c, base, so):
        a.vmop("s_add_u32 m0, s%d, 0x%x\ns_nop 0\nbuffer_load_dwordx4 %s, %s, s%d offen offset:%d lds"
               % (base, LL_X + c * 16384 - c * 128, v(vDX), srd(SX), so, c * 128), "c%d" % c)
    def wdma(u):
        for t, rs in enumerate((SWKV, SWV)):
            a.vmop("s_add_u32 m0, s%d, 0x%x\ns_nop 0\nbuffer_load_dwordx4 %s, %s, s%d offen lds"
                   % (sWK, LL_W + t * 16384 + u * 8192, v(vL16), srd(rs), sA if u else sWK), "w")
    wdma(0)
    a.vmop("s_mov_b32 m0, s%d\ns_nop 0\nbuffer_load_dwordx4 %s, %s, 0 offen lds" % (sHST, v(vL16), srd(SGATE)), "w")
    for c in range(8):
        if c == 4: wdma(1)
        xdma(c, sWH, sOLD)
        if c in (1, 3, 5): a.e("s_barrier")
    setup_rd(a)
    a.e("v_lshl_add_u32 %s, v3, 3, v2" % v(vWA))
    a.e("v_lshlrev_b32 %s, 5, %s" % (v(vWA), v(vWA)))
    a.e("v_lshl_add_u32 %s, v4, 3, %s" % (v(vWA), v(vWA)))
    a.e("s_lshr_b32 s%d, s%d, 1" % (sA, sLO))
    a.e("s_lshl_b32 s%d, s%d, 14" % (sA, sA))
    a.e("s_add_u32 s%d, s%d, 0x%x" % (sA, sA, LL_W))
    a.e("v_add_u32 %s, s%d, %s" % (v(vWA), sA, v(vWA)))
    a.e("v_lshl_add_u32 %s, v3, 4, s%d" % (v(vWA + 1), sHST))
    a.e("v_mov_b32 %s, %s" % (v(vWA + 2), v(vXA)))
    a.e("s_and_b32 s%d, s%d, 1" % (sA, sLO))
    a.e("s_lshl_b32 s%d, s%d, 1" % (sB, sCNT))
    a.e("s_add_u32 s%d, s%d, s%d" % (sCNT, sA, sB))
    a.e("s_lshl_b32 s%d, s%d, 12" % (sA, sCNT))
    a.e("v_add_u32 %s, s%d, %s" % (v(vXA), sA, v(vXA)))
    for s in range(1, 4): a.e("v_xor_b32 %s, %d, %s" % (v(vXA + s), 32 * s, v(vXA)))
    for s in range(4): a.e("v_add_u32 %s, 0x10000, %s" % (v(vXA + 4 + s), v(vXA + s)))
    setup_oclr(a)
    vm0 = list(a.vm)
    a.e("s_cmp_lg_u32 s%d, 0" % sHI)
    a.e("s_cbranch_scc1 L_lB")
    a.e("s_not_b64 %s, %s" % (sp(sTMPP), sp(sVM)))
    a.e("s_cmp_ge_u32 s%d, 2" % sLO)
    a.e("s_cbranch_scc1 L_lV")
    def chain(kind):
        a.vm = list(vm0)
        def fr(k):
            b = vFR + 8 * (k % 4)
            return b, b + 4
        def reads(k):
            c, s = divmod(k, 4); x, w = fr(k)
            r = [rd128(x, vXA + s + 4 * (c >> 2), (c & 3) * 16384), rdtr(w, vWA, k * 512), rdtr(w + 2, vWA, k * 512 + 128)]
            if kind == "K":
                r += ["s_mov_b64 exec, %s" % sp(sTMPP), rd128(w, vWA + 1, k * 32), "s_mov_b64 exec, -1"]
            return r
        for q in range(4):
            a.waitvm("c%d" % (2 * q + 1))
            a.e("s_barrier")
            nr = 4 if kind == "K" else 3
            for k in range(8 * q, 8 * q + 2):
                for r in reads(k): a.e(r)
            for k in range(8 * q, 8 * q + 8):
                if k + 2 < 8 * q + 8:
                    for r in reads(k + 2): a.e(r)
                left = min(2, 8 * q + 7 - k)
                a.e("s_waitcnt lgkmcnt(%d)" % (left * nr))
                x, w = fr(k)
                cc = None if k == 0 else vACC
                a.e(mfma(vACC, w, x, cc) if kind == "K" else mfma(vACC, x, w, cc))
        a.e("s_lshl_b32 s%d, s%d, 2" % (sA, sG))
        a.e("s_add_u32 s%d, s%d, s%d" % (sA, sA, sCNT))
        a.e("s_nop 12")
        if kind == "K":
            a.e("s_mov_b32 s%d, 0x%x" % (sC, f2u(0.25 * math.log2(math.e))))
            for i in range(8): a.e("v_mul_f32 %s, s%d, %s" % (v(vACC + i), sC, v(vACC + i)))
            a.e("v_mul_f32 %s, 0x%x, %s" % (v(vACC + 8), f2u(-math.log2(math.e)), v(vACC + 8)))
            a.e("v_exp_f32 %s, %s" % (v(vACC + 8), v(vACC + 8)))
            for i in range(4): a.e("v_cvt_pk_bf16_f32 %s, %s, %s" % (v(vFR + i), v(vACC + 2 * i), v(vACC + 2 * i + 1)))
            a.e("v_add_f32 %s, 1.0, %s" % (v(vACC + 8), v(vACC + 8)))
            a.e("v_rcp_f32 %s, %s" % (v(vACC + 8), v(vACC + 8)))
            a.e("s_add_u32 s%d, s%d, 63" % (sB, sA))
            a.e("s_and_b32 s%d, s%d, 63" % (sB, sB))
            a.e("s_lshl_b32 s%d, s%d, 11" % (sB, sB))
            a.e("buffer_store_dwordx4 %s, %s, %s, s%d offen sc1" % (v(vFR, 4), v(vL16), srd(SKV), sB))
            a.e("s_lshl_b32 s%d, s%d, 7" % (sB, sA))
            a.e("s_add_u32 s%d, s%d, 0x%x" % (sB, sB, WS_G))
            a.e("s_mov_b32 exec_hi, 0")
            a.e("buffer_store_dword %s, %s, %s, s%d offen sc1" % (v(vACC + 8), v(vGA), srd(SWS), sB))
            a.e("s_mov_b64 exec, -1")
        else:
            for i in range(8): a.e("v_cvt_pk_bf16_f32 %s, %s, %s" % (v(vFR + i), v(vACC + 2 * i), v(vACC + 2 * i + 1)))
            a.e("v_bfe_u32 v2, v0, 4, 1")
            a.e("v_add_u32 v2, s%d, v2" % sA)
            a.e("v_and_b32 v2, 63, v2")
            a.e("v_lshl_add_u32 v2, v2, 11, %s" % v(vL16))
            for i in range(4): a.e("v_cndmask_b32 %s, %s, %s, %s" % (v(vFR + i), v(vFR + 4 + i), v(vFR + i), sp(sVM)))
            a.e("buffer_store_dwordx4 %s, v2, %s, 0 offen offset:1024 sc1" % (v(vFR, 4), srd(SKV)))
        a.e("s_branch L_lJ")
    chain("K")
    a.lab("L_lV")
    chain("V")
    a.lab("L_lB")
    a.vm = list(vm0)
    a.e("s_cmp_lg_u32 s%d, 14" % sM)
    a.e("s_cbranch_scc1 L_nozf")
    a.e("s_cmp_lg_u32 s%d, 4" % sW)
    a.e("s_cbranch_scc1 L_nozf")
    a.e("v_lshlrev_b32 v2, 7, v0")
    a.e("s_lshl_b32 s%d, s%d, 11" % (sA, sG))
    a.e("s_add_u32 s%d, s%d, 0x%x" % (sA, sA, WS_HFLAG))
    a.e("s_mov_b64 exec, 0xffff")
    a.e("buffer_store_dword %s, v2, %s, s%d offen sc1" % (v(vZERO), srd(SWS), sA))
    a.e("s_mov_b64 exec, -1")
    a.lab("L_nozf")
    for q in range(4):
        a.waitvm("c%d" % (2 * q + 1))
        a.e("s_barrier")
    a.lab("L_lJ")
    a.e("v_lshrrev_b32 v3, 2, v0")
    a.e("v_lshlrev_b32 v3, 10, v3")
    a.e("v_and_b32 v4, 3, v0")
    a.e("v_lshl_add_u32 v3, v4, 4, v3")
    a.e("s_lshl_b32 s%d, s%d, 14" % (sA, sW))
    a.e("s_lshl_b32 s%d, s%d, 6" % (sB, sHP))
    a.e("s_add_u32 s%d, s%d, s%d" % (sA, sA, sB))
    a.e("v_add_u32 %s, s%d, v3" % (v(vDQ), sA))
    a.e("s_xor_b32 s%d, s%d, 0x2000" % (sWH, sWH))
    a.e("s_xor_b32 s%d, s%d, 0x10000" % (sOLD, sOLD))
    a.wait0(lgkm=True)
    a.e("s_barrier")
    a.e("s_cmp_lg_u32 s%d, 0" % sW)
    a.e("s_cbranch_scc1 L_noat")
    a.e("s_mov_b64 exec, 1")
    a.e("buffer_atomic_add %s, off, %s, 0 sc1" % (v(vONE), srd(SDBG)))
    a.e("s_mov_b64 exec, -1")
    a.lab("L_noat")
    a.stamp(3)
    for c in range(8): xdma(c, sWH, sOLD)
    for p in range(4):
        a.e("s_add_u32 m0, s%d, 0x%x" % (sWK, LL_WQ + p * 8192))
        a.e("s_mov_b32 s%d, 0x%x" % (sA, p * 128 * 1024))
        a.e("buffer_load_dwordx4 %s, %s, s%d offen lds" % (v(vDQ), srd(SWQ), sA))
    setup_attn(a)
    if Opt.touch & 2:
        a.e("s_lshl_b32 s%d, s%d, 1" % (sA, sG))
        a.e("s_add_u32 s%d, s%d, s%d" % (sA, sA, sM))
        a.e("s_sub_u32 s%d, s%d, 14" % (sA, sA))
        a.e("s_lshl_b32 s%d, s%d, 3" % (sA, sA))
        a.e("s_add_u32 s%d, s%d, s%d" % (sA, sA, sW))
        a.e("v_lshlrev_b32 v2, 15, v0")
        a.e("s_lshl_b32 s%d, s%d, 7" % (sA, sA))
        a.e("buffer_load_dword %s, v2, %s, s%d offen" % (v(vPOLL), srd(SWO), sA))
        a.e("buffer_load_dword %s, v2, %s, s%d offen" % (v(vPOLL), srd(SWD), sA))
    a.e("s_lshl_b32 s%d, s%d, 16" % (sA, sHI))
    a.e("s_lshl_b32 s%d, s%d, 12" % (sB, sLO))
    a.e("s_add_u32 s%d, s%d, s%d" % (sA, sA, sB))
    a.e("v_add_u32 %s, s%d, %s" % (v(vXA), sA, v(vWA + 2)))
    for s in range(1, 4): a.e("v_xor_b32 %s, %d, %s" % (v(vXA + s), 32 * s, v(vXA)))
    a.e("s_lshl_b32 s%d, s%d, 14" % (sA, sHI))
    a.e("s_add_u32 s%d, s%d, 0x%x" % (sA, sA, LL_WQ))
    a.e("v_add_u32 %s, s%d, %s" % (v(vQA), sA, v(vQA)))
    a.e("s_waitcnt vmcnt(%d)" % (2 if Opt.touch & 2 else 0))
    a.e("s_barrier")
    def fr(k):
        b = vFR + 8 * (k % 4)
        return b, b + 4
    def reads(k):
        c, s = divmod(k, 4); x, w = fr(k)
        return [rd128(x, vXA + s, c * 16384), rdtr(w, vQA, k * 1024), rdtr(w + 2, vQA, k * 1024 + 256)]
    for k in range(2):
        for r in reads(k): a.e(r)
    for k in range(16):
        if k + 2 < 16:
            for r in reads(k + 2): a.e(r)
        a.e("s_waitcnt lgkmcnt(%d)" % (3 * min(2, 15 - k)))
        x, w = fr(k)
        a.e(mfma(vAQ, w, x, None if k == 0 else vAQ))
    spin_counter(a, "kvl", False)
    a.e("s_barrier")
    for s, t in kv_first_loads(a): a.e(s)
    a.wait0()
    a.stamp(4)
    a.e("s_branch L_join")

def gelu_tile(a, ti, scalar=False):
    acc = vACC + 16 * ti
    t = vFR
    o = vFR + 8 + 4 * ti
    pk = lambda r: v(r, 2)
    if scalar:
        for i in range(8): a.e("v_mul_f32 %s, %s, %s" % (v(t + i), v(acc + i), v(acc + i)))
        for i in range(8): a.e("v_fma_f32 %s, %s, %s, %s" % (v(t + i), v(t + i), v(vC0 + 1), v(vC0)))
        for i in range(8): a.e("v_mul_f32 %s, %s, %s" % (v(t + i), v(t + i), v(acc + i)))
        for i in range(8): a.e("v_exp_f32 %s, %s" % (v(t + i), v(t + i)))
        for i in range(8): a.e("v_add_f32 %s, 1.0, %s" % (v(t + i), v(t + i)))
        for i in range(8): a.e("v_rcp_f32 %s, %s" % (v(t + i), v(t + i)))
        for i in range(8): a.e("v_mul_f32 %s, %s, %s" % (v(acc + i), v(acc + i), v(acc + 8 + i)))
        for i in range(8): a.e("v_mul_f32 %s, %s, %s" % (v(acc + i), v(acc + i), v(t + i)))
    R4, R8 = (range(0), range(0)) if scalar else (range(4), range(8))
    for i in R4: a.e("v_pk_mul_f32 %s, %s, %s" % (pk(t + 2 * i), pk(acc + 2 * i), pk(acc + 2 * i)))
    for i in R4: a.e("v_pk_fma_f32 %s, %s, %s, %s op_sel:[0,1,0] op_sel_hi:[1,1,0]" % (pk(t + 2 * i), pk(t + 2 * i), pk(vC0), pk(vC0)))
    for i in R4: a.e("v_pk_mul_f32 %s, %s, %s" % (pk(t + 2 * i), pk(t + 2 * i), pk(acc + 2 * i)))
    for i in R8: a.e("v_exp_f32 %s, %s" % (v(t + i), v(t + i)))
    for i in R4: a.e("v_pk_add_f32 %s, %s, 1.0 op_sel_hi:[1,0]" % (pk(t + 2 * i), pk(t + 2 * i)))
    for i in R8: a.e("v_rcp_f32 %s, %s" % (v(t + i), v(t + i)))
    for i in R4: a.e("v_pk_mul_f32 %s, %s, %s" % (pk(acc + 2 * i), pk(acc + 2 * i), pk(acc + 8 + 2 * i)))
    for i in R4: a.e("v_pk_mul_f32 %s, %s, %s" % (pk(acc + 2 * i), pk(acc + 2 * i), pk(t + 2 * i)))
    for i in range(4): a.e("v_cvt_pk_bf16_f32 %s, %s, %s" % (v(o + i), v(acc + 2 * i), v(acc + 2 * i + 1)))
    aa, bb = ti >> 1, ti & 1
    a.vmop("buffer_store_dwordx4 %s, %s, %s, s%d offen offset:%d sc1" % (v(o, 4), v(vL16), srd(SWS), sD if bb else sHST, aa * 1024), "hst")

def gelu_head(a):
    a.e("s_bitcmp1_b32 s%d, 0" % sLO)
    a.e("s_cselect_b32 s%d, 0x%x, 0x%x" % (sD, (-112 * 1024) & 0xffffffff, 0))
    a.e("s_cselect_b32 s%d, 0, 0x%x" % (sC, 112 * 1024))
    a.e("s_add_u32 s%d, s%d, s%d" % (sD, sD, sC))
    a.e("s_add_u32 s%d, s%d, s%d" % (sD, sD, sHST))

def gelu_sub(a):
    if Opt.stagger and Opt.gsc:
        a.lab("L_geluA")
        gelu_head(a)
        for ti in range(Opt.gsc): gelu_tile(a, ti, True)
        a.e("s_branch L_gelu%d" % Opt.gsc)
    else:
        a.lab("L_geluA")
    a.lab("L_geluB")
    gelu_head(a)
    for ti in range(4):
        gelu_tile(a, ti)
        a.lab("L_gelu%d" % (ti + 1))
    a.e("s_setpc_b64 %s" % sp(sRET))

def Yseg(hset, toggle=False):
    out = []
    for t in range(2):
        S, Sn = vS + 16 * t, vS + 16 * (1 - t)
        K, V0, V1 = vKF + 4 * t, vV + 8 * t, vV + 8 * t + 4
        for j in range(8):
            out.append("v_exp_f32 %s, %s" % (v(vE + 2 * (j % 2)), v(S + 2 * j)))
            out.append("v_exp_f32 %s, %s" % (v(vE + 2 * (j % 2) + 1), v(S + 2 * j + 1)))
            jj = (j - 1) % 8
            out.append("v_cvt_pk_bf16_f32 %s, %s, %s" % (v(vP + jj), v(vE + 2 * (jj % 2)), v(vE + 2 * (jj % 2) + 1)))
            if j == 1: out.append(mfma(vO, V1, vP + 4, vO))
            if j == 3: out.append(mfma(Sn, K, vQ, None))
            if hset is None:
                if j == 7: out.append(mfma(vO, V0, vP, vO))
            else:
                if j == 5: out.append(mfma(vO, V0, vP, vO))
                if j == 6 and t == 1 and toggle:
                    out.append("v_xor_b32 %s, 0x4000, %s" % (v(vKVA), v(vKVA)))
                    out.append("v_xor_b32 %s, 0x8000, %s" % (v(vWDA), v(vWDA)))
                if j == 7: out.append(mfma(vD + 16 * t, vWF + 4 * t, vH + 4 * hset, vD + 16 * t))
    return out

def kv_reads(off):
    r = [rd128(vKF, vKVA, off), rd128(vKF + 4, vKVA, off + 2048), "s_mov_b64 exec, %s" % sp(sVM)]
    for t in range(2):
        r += [rd128(vV + 8 * t, vKVA, off + 2048 * t + 1024), rd128(vV + 8 * t + 4, vKVA, off + 2048 * t + 1280)]
    r.append("s_mov_b64 exec, -1")
    return r
def wd_reads(dst, addr, off):
    r = []
    for c in range(2):
        r += [rdtr(dst + 4 * c, addr, off + 512 * c), rdtr(dst + 4 * c + 2, addr, off + 512 * c + 1024)]
    return r

def attention(a, role):
    A = role == "A"
    def kvdma(u):
        a.vmop("s_add_u32 m0, s%d, 0x%x\ns_add_u32 s%d, s%d, 0x%x\nbuffer_load_dwordx4 %s, %s, s%d offen sc1 lds"
               % (sWK, L_KV + (u % 4) * 8192, sA, sWK, u * 8192, v(vL16), srd(SKV), sA), "kv%d" % u)
    def wddma(sg):
        a.vmop("s_add_u32 m0, s%d, 0x%x\ns_add_u32 s%d, s%d, 0x%x\nbuffer_load_dwordx4 %s, %s, s%d offen lds"
               % (sWK, L_WD + ((sg + 3) % 8) * 8192, sA, sWDOFF, sg * 16384, v(vWDV), srd(SWD), sA), "wd%d" % sg)
    def wodma(j):
        a.vmop("s_add_u32 m0, s%d, 0x%x\ns_add_u32 s%d, s%d, 0x%x\nbuffer_load_dwordx4 %s, %s, s%d offen lds"
               % (sWK, L_WO + j * 8192, sA, sB, j * 16384, v(vWDV), srd(SWO), sA), "wo")
    def hload(sg, dst):
        a.vmop("s_add_u32 s%d, s%d, 0x%x\nbuffer_load_dwordx4 %s, %s, %s, s%d offen sc1"
               % (sA, sHOFF, sg * 1024, v(dst, 4), v(vL16), srd(SWS), sA), "h%d" % sg)
    for n in range(11):
        if not A and n == 0: a.e("s_barrier")
        tags = []
        if A and n % 2 == 1: tags.append("kv%d" % ((n + 1) // 2))
        if not A and n % 2 == 0: tags.append("kv%d" % ((n + 2) // 2))
        if n == 2: tags.append("hst")
        if n == 10: tags.append("wd0")
        if n == 8 and A:
            a.e("s_cmp_lg_u32 s%d, 0" % sW)
            a.e("s_cbranch_scc1 L_hf_done")
            a.e("s_mov_b32 s%d, 0x4000" % sB)
            a.e("s_waitcnt vmcnt(2)")
            a.lab("L_hf_chk")
            a.e("v_cmp_ne_u32 vcc, 1, %s" % v(vPOLL))
            a.e("s_cbranch_vccz L_hf_done")
            a.e("s_sleep 2")
            a.e("buffer_load_dword %s, %s, %s, 0 offen sc1" % (v(vPOLL), v(vFLA), srd(SWS)))
            a.e("s_sub_u32 s%d, s%d, 1" % (sB, sB))
            a.e("s_cmp_lg_u32 s%d, 0" % sB)
            a.e("s_waitcnt vmcnt(0)")
            a.e("s_cbranch_scc1 L_hf_chk")
            a.lab("L_hf_done")
        a.waitvm(tags)
        if n == 3 and not A:
            a.e("s_cmp_ge_u32 s%d, 14" % sM)
            a.e("s_cbranch_scc1 L_nohf")
            a.e("s_cmp_lg_u32 s%d, 4" % sW)
            a.e("s_cbranch_scc1 L_nohf")
            a.e("s_lshl_b32 s%d, s%d, 4" % (sA, sG))
            a.e("s_add_u32 s%d, s%d, s%d" % (sA, sA, sM))
            a.e("s_lshl_b32 s%d, s%d, 7" % (sA, sA))
            a.e("s_add_u32 s%d, s%d, 0x%x" % (sA, sA, WS_HFLAG))
            a.e("s_mov_b64 exec, 1")
            a.e("buffer_store_dword %s, off, %s, s%d sc1" % (v(vONE), srd(SWS), sA))
            a.e("s_mov_b64 exec, -1")
            a.lab("L_nohf")
        for r in kv_reads((n % 8) * 4096): a.e(r)
        if n == 7 and A:
            a.e("s_cmp_lg_u32 s%d, 0" % sW)
            a.e("s_cbranch_scc1 L_hf_nol")
            a.e("buffer_load_dword %s, %s, %s, 0 offen sc1" % (v(vPOLL), v(vFLA), srd(SWS)))
            a.lab("L_hf_nol")
        if n == 0:
            kvdma(2); kvdma(3)
            a.e("s_lshr_b32 s%d, s%d, 1" % (sC, sW))
            a.e("s_mul_i32 s%d, s%d, %d" % (sWDOFF, sC, 448 * 1024))
            a.e("s_lshl_b32 s%d, s%d, 1" % (sA, sT))
            a.e("s_and_b32 s%d, s%d, 1" % (sB, sW))
            a.e("s_add_u32 s%d, s%d, s%d" % (sA, sA, sB))
            a.e("s_mul_i32 s%d, s%d, 112" % (sA, sA))
            a.e("s_mul_i32 s%d, s%d, 28" % (sB, sC))
            a.e("s_add_u32 s%d, s%d, s%d" % (sA, sA, sB))
            a.e("s_lshl_b32 s%d, s%d, 10" % (sA, sA))
            a.e("s_add_u32 s%d, s%d, 0x%x" % (sHOFF, sA, WS_HF))
        if (A and n % 2 == 1 and n >= 3): kvdma((n + 5) // 2)
        if (not A and n % 2 == 0 and n >= 2): kvdma((n + 6) // 2)
        if 1 <= n <= 3:
            a.e("s_lshr_b32 s%d, s%d, 1" % (sB, sW))
            a.e("s_lshl_b32 s%d, s%d, 17" % (sB, sB))
            for j in {1: (0, 1, 2), 2: (3, 4, 5), 3: (6, 7)}[n]: wodma(j)
        if n >= 4: wddma(n - 4)
        if n == 9:
            hload(0, vH + 12); hload(1, vH + 0); hload(24, vH + 16); hload(25, vH + 20)
        if n == 10:
            hload(26, vH + 24); hload(27, vH + 28); hload(2, vH + 4)
        a.e("s_waitcnt lgkmcnt(0)")
        a.e("s_call_b64 %s, L_Y%s" % (sp(sRET), role))
    a.e("s_add_u32 s%d, s%d, 0x%x" % (sHOFF, sHOFF, 3 * 1024))
    a.e("s_add_u32 s%d, s%d, 0x%x" % (sWDOFF, sWDOFF, 7 * 16384))
    a.e("s_mov_b32 s%d, 0x%x" % (sM0WD, ((7 + 3) % 8) * 8192))
    u0 = 8 if A else 9
    a.e("s_add_u32 s%d, s%d, 0x%x" % (sKVOFF, sWK, u0 * 8192))
    a.e("s_mov_b32 s%d, 6" % sCNT)
    a.waitvm(["h0", "wd1", "kv6"] if A else ["h0", "wd1"])
    a.e("s_branch L_loop%s_in" % role)
    a.l.append(".p2align 6")
    a.lab("L_loop%s" % role)
    for p in range(4):
        a.e("s_waitcnt vmcnt(5)")
        if p == 3: a.lab("L_loop%s_in" % role)
        for r in kv_reads(p * 4096): a.e(r)
        for r in wd_reads(vWF, vWDA, p * 8192): a.e(r)
        a.e("buffer_load_dwordx4 %s, %s, %s, s%d offen sc1" % (v(vH + 4 * ((p + 3) % 4), 4), v(vL16), srd(SWS), sHOFF))
        a.e("s_add_u32 m0, s%d, s%d" % (sWK, sM0WD))
        a.e("s_add_u32 s%d, s%d, 0x400" % (sHOFF, sHOFF))
        a.e("buffer_load_dwordx4 %s, %s, s%d offen lds" % (v(vWDV), srd(SWD), sWDOFF))
        a.e("s_add_u32 s%d, s%d, 0x4000" % (sWDOFF, sWDOFF))
        a.e("s_add_u32 s%d, s%d, 0x2000" % (sM0WD, sM0WD))
        a.e("s_and_b32 s%d, s%d, 0xffff" % (sM0WD, sM0WD))
        if (p % 2 == 1) == A:
            a.e("s_and_b32 s%d, s%d, 0x7fff" % (sA, sKVOFF))
            a.e("s_add_u32 m0, s%d, 0x%x" % (sA, L_KV))
            a.e("s_nop 0")
            a.e("buffer_load_dwordx4 %s, %s, s%d offen sc1 lds" % (v(vL16), srd(SKV), sKVOFF))
            a.e("s_add_u32 s%d, s%d, 0x2000" % (sKVOFF, sKVOFF))
        if p == 3:
            a.e("s_sub_u32 s%d, s%d, 1" % (sCNT, sCNT))
            a.e("s_cmp_lg_u32 s%d, 0" % sCNT)
        a.e("s_waitcnt lgkmcnt(0)")
        if A: a.e("s_barrier")
        for x in Yseg(p, toggle=(p == 3)): a.e(x)
        if not A:
            if p == 3: a.e("s_cbranch_scc0 L_tail")
            a.e("s_barrier")
    a.e(("s_cbranch_scc1 L_loop%s" if A else "s_branch L_loop%s") % role)

def ysubs(a):
    for role in "AB":
        a.l.append(".p2align 6")
        a.lab("L_Y%s" % role)
        if role == "A": a.e("s_barrier")
        for x in Yseg(None): a.e(x)
        if role == "B": a.e("s_barrier")
        a.e("s_setpc_b64 %s" % sp(sRET))

def transition(a):
    a.lab("L_join")
    a.e("s_lshl_b32 s%d, s%d, 11" % (sA, sW))
    a.e("s_add_u32 s%d, s%d, 0x%x" % (sA, sA, L_QX))
    a.e("v_add_u32 v2, s%d, %s" % (sA, v(vL16)))
    a.e("v_xor_b32 v3, 0x2000, v2")
    a.e("s_cmp_lg_u32 s%d, 0" % sHI)
    a.e("s_cbranch_scc1 L_trB")
    vm0 = list(a.vm)
    for role in "AB":
        a.vm = list(vm0)
        A = role == "A"
        if not A: a.lab("L_trB")
        keep, send = (vAQ, vAQ + 8) if A else (vAQ + 8, vAQ)
        def qfin():
            a.e("s_waitcnt lgkmcnt(0)")
            for i in range(4): a.e("v_pk_add_f32 %s, %s, %s" % (v(keep + 2 * i, 2), v(keep + 2 * i, 2), v(send + 2 * i, 2)))
            for i in range(4): a.e("v_cvt_pk_bf16_f32 %s, %s, %s" % (v(vQ + i), v(keep + 2 * i), v(keep + 2 * i + 1)))
        def gelu():
            a.e("s_cmp_ge_u32 s%d, 14" % sM)
            a.e("s_cbranch_scc1 L_nog%s" % role)
            a.e("s_call_b64 %s, L_gelu%s" % (sp(sRET), role))
            a.vm += ["hst"] * 4
            a.lab("L_nog%s" % role)
        a.e("ds_write_b128 v2, %s" % v(send, 4))
        a.e("ds_write_b128 v2, %s offset:1024" % v(send + 4, 4))
        if Opt.stagger:
            if A:
                a.e("s_setprio 1")
                gelu()
            a.waitvm(["k0", "kv0", "kv1"], lgkm=True)
            a.e("s_barrier")
            a.e(rd128(send, 3, 0))
            a.e(rd128(send + 4, 3, 1024))
            if not A: gelu()
            qfin()
            a.e("s_nop 1")
        else:
            a.e("s_waitcnt lgkmcnt(0)")
            a.e("s_barrier")
            a.e(rd128(send, 3, 0))
            a.e(rd128(send + 4, 3, 1024))
            if A:
                a.e("s_setprio 1")
                gelu(); qfin()
                a.waitvm(["k0", "kv0", "kv1"])
                a.e("s_barrier")
            else:
                a.waitvm(["k0", "kv0", "kv1"], lgkm=True)
                a.e("s_barrier")
                gelu(); qfin()
                a.e("s_nop 1")
        a.e(mfma(vS, vK0, vQ, None))
        a.stamp(5)
        attention(a, role)
        if A: a.e("s_branch L_tail")

def tail(a):
    a.lab("L_tail")
    a.e("v_cvt_pk_bf16_f32 %s, %s, %s" % (v(vP + 7), v(vE + 2), v(vE + 3)))
    a.stamp(6)
    a.e("s_setprio 0")
    a.e("s_mov_b32 s%d, 0x%x" % (sC, f2u(2.0 ** -16)))
    a.e(mfma(vO, vV1L, vP + 4, vO))
    a.e("s_mov_b32 s%d, 0x%x" % (sD, f2u(2.0 ** 100)))
    a.e("s_nop 10")
    t = vFR
    a.e("v_rcp_f32 %s, %s" % (v(t + 2), v(vO + 8)))
    a.e("v_pk_mul_f32 %s, %s, 0 op_sel_hi:[1,0]" % (v(t, 2), v(vO, 2)))
    for i in range(1, 4): a.e("v_pk_fma_f32 %s, %s, 0, %s op_sel_hi:[1,0,1]" % (v(t, 2), v(vO + 2 * i, 2), v(t, 2)))
    a.e("v_add_f32 %s, %s, %s" % (v(t), v(t), v(t + 1)))
    a.e("v_add_f32 %s, %s, %s" % (v(t), v(t), v(vO + 8)))
    a.e("v_cmp_nle_f32 vcc, s%d, %s" % (sC, v(t)))
    a.e("v_cmp_nge_f32 %s, s%d, %s" % (sp(sTMPP), sD, v(t)))
    a.e("s_or_b64 vcc, vcc, %s" % sp(sTMPP))
    a.e("s_branch L_fb" if Opt.force_fb else "s_cbranch_scc1 L_fb")
    a.lab("L_fbret")
    a.e("v_mul_f32 %s, %s, %s" % (v(t + 2), v(t + 2), v(vGP)))
    for i in range(4): a.e("v_pk_mul_f32 %s, %s, %s op_sel_hi:[1,0]" % (v(vO + 2 * i, 2), v(vO + 2 * i, 2), v(t + 2, 2)))
    for i in range(4): a.e("v_cvt_pk_bf16_f32 %s, %s, %s" % (v(vP + i), v(vO + 2 * i), v(vO + 2 * i + 1)))
    for i in range(4): a.e("v_min_u32 %s, -2, %s" % (v(vP + i), v(vP + i)))
    a.e("buffer_store_dwordx4 %s, %s, %s, s%d offen sc1" % (v(vP, 4), v(vL16), srd(SWS), sOST))
    a.e("s_waitcnt vmcnt(1)")
    a.e("s_barrier")
    hreg = {21: vH + 0, 22: vH + 4, 23: vH + 8, 24: vH + 16, 25: vH + 20, 26: vH + 24, 27: vH + 28}
    wf = [vFR, vFR + 8, vFR + 16]
    for i in range(2):
        for r in wd_reads(wf[i], vWDA, i * 8192): a.e(r)
    for i in range(7):
        if i + 2 < 7:
            for r in wd_reads(wf[(i + 2) % 3], vWDA, (i + 2) * 8192): a.e(r)
        a.e("s_waitcnt lgkmcnt(%d)" % (4 * min(2, 6 - i)))
        for c in range(2): a.e(mfma(vD + 16 * c, wf[i % 3] + 4 * c, hreg[21 + i], vD + 16 * c))
    a.e("s_barrier")
    a.e("v_add_u32 %s, 0x%x, %s" % (v(vWDA), L_WO, v(vWDA)))
    a.e("v_sub_f32 %s, 1.0, %s" % (v(vGC), v(vGC)))
    a.e("s_waitcnt vmcnt(0)")
    a.stamp(7)
    for j in range(8):
        if j == 4: a.e("s_add_u32 s%d, s%d, 0x1000" % (sA, sOLD))
        a.e("buffer_load_dwordx4 %s, %s, %s, s%d offen offset:%d sc1" % (v(vS + 4 * j, 4), v(vL16), srd(SWS), sOLD if j < 4 else sA, (j % 4) * 1024))
    for i in range(2):
        for r in wd_reads(wf[i], vWDA, i * 8192): a.e(r)
    for i in range(16): a.e("v_pk_mul_f32 %s, %s, %s op_sel:[0,1] op_sel_hi:[1,1]" % (v(vD + 2 * i, 2), v(vD + 2 * i, 2), v(vGP, 2)))
    aw = vXA
    ar = vWA
    a.e("v_and_b32 v2, 31, v0")
    a.e("v_lshrrev_b32 v3, 5, v0")
    a.e("v_and_b32 v4, 7, v0")
    a.e("v_xor_b32 v3, v3, v4")
    a.e("v_lshlrev_b32 v3, 4, v3")
    a.e("v_lshl_add_u32 v3, v2, 8, v3")
    a.e("s_and_b32 s%d, s%d, 1" % (sB, sW))
    a.e("s_lshl_b32 s%d, s%d, 15" % (sB, sB))
    a.e("s_lshr_b32 s%d, s%d, 1" % (sC, sW))
    a.e("s_lshl_b32 s%d, s%d, 13" % (sD, sC))
    a.e("s_add_u32 s%d, s%d, s%d" % (sD, sD, sB))
    a.e("v_add_u32 %s, s%d, v3" % (v(aw), sD))
    for j in range(1, 4): a.e("v_xor_b32 %s, %d, %s" % (v(aw + j), 32 * j, v(aw)))
    a.e("v_lshrrev_b32 v2, 3, v0")
    a.e("v_lshlrev_b32 v3, 1, v4")
    a.e("v_xor_b32 v3, v3, v2")
    a.e("v_lshlrev_b32 v3, 4, v3")
    a.e("v_lshl_add_u32 v3, v2, 8, v3")
    a.e("s_lshl_b32 s%d, s%d, 11" % (sD, sC))
    a.e("s_add_u32 s%d, s%d, s%d" % (sD, sD, sB))
    a.e("v_add_u32 %s, s%d, v3" % (v(ar), sD))
    a.e("v_xor_b32 %s, 16, %s" % (v(ar + 1), v(ar)))
    a.e("v_lshlrev_b32 v4, 4, v4")
    a.e("v_lshl_add_u32 %s, v2, 10, v4" % v(ar + 2))
    a.e("s_lshl_b32 s%d, s%d, 13" % (sC, sC))
    a.e("s_add_u32 s%d, s%d, s%d" % (sB, sB, sC))
    a.e("s_lshl_b32 s%d, s%d, 16" % (sC, sT))
    a.e("s_add_u32 s%d, s%d, s%d" % (sB, sB, sC))
    a.e("s_lshl_b32 s%d, s%d, 7" % (sC, sCB))
    a.e("s_add_u32 s%d, s%d, s%d" % (sCNT, sB, sC))
    a.e("s_mov_b32 s%d, 0x2000" % sB)
    for j in range(8):
        o = vS + 4 * j
        if j + 2 < 8:
            for r in wd_reads(wf[(j + 2) % 3], vWDA, (j + 2) * 8192): a.e(r)
        a.lab("L_ochk%d" % j)
        a.e("s_waitcnt vmcnt(%d)" % (7 - j))
        a.e("v_max3_u32 v2, %s, %s, %s" % (v(o), v(o + 1), v(o + 2)))
        a.e("v_max_u32 v2, v2, %s" % v(o + 3))
        a.e("v_cmp_eq_u32 vcc, -1, v2")
        a.e("s_cbranch_vccnz L_ore%d" % j)
        a.lab("L_ook%d" % j)
        a.e("s_waitcnt lgkmcnt(%d)" % (4 * min(2, 7 - j)))
        for c in range(2): a.e(mfma(vD + 16 * c, wf[j % 3] + 4 * c, o, vD + 16 * c))
    a.stamp(8)
    a.e("s_nop 10")
    for c in range(2):
        for j in range(4):
            a.e("ds_write_b128 %s, %s offset:%d" % (v(aw + j), v(vD + 16 * c + 4 * j, 4), 128 * c))
    a.e("s_waitcnt lgkmcnt(0)")
    a.e("s_barrier")
    for p in range(4):
        for h in range(2): a.e(rd128(vS + 8 * p + 4 * h, ar + h, p * 8192))
    for p in range(1, 4):
        a.e("s_waitcnt lgkmcnt(%d)" % (6 - 2 * p))
        for i in range(4): a.e("v_pk_add_f32 %s, %s, %s" % (v(vS + 2 * i, 2), v(vS + 2 * i, 2), v(vS + 8 * p + 2 * i, 2)))
    for i in range(4): a.e("v_cvt_pk_bf16_f32 %s, %s, %s" % (v(vP + i), v(vS + 2 * i), v(vS + 2 * i + 1)))
    a.e("buffer_store_dwordx4 %s, %s, %s, s%d offen %s" % (v(vP, 4), v(ar + 2), srd(SOUT), sCNT, Opt.out_pol))
    if Opt.pin == 9:
        a.e("s_waitcnt vmcnt(0)")
        a.stamp(9)
    if Opt.diag:
        a.e("s_waitcnt vmcnt(0)")
        a.stamp(9)
        a.e("s_mov_b32 s%d, s%d" % (sSTAMP + 3, sSTAMP))
        a.e("s_mov_b32 s%d, s%d" % (sSTAMP, sB))
        a.e("s_getreg_b32 s%d, hwreg(HW_REG_XCC_ID)" % (sSTAMP + 1))
        for i in range(20): a.e("v_mov_b32 %s, s%d" % (v(vS + i), sSTAMP + i))
        a.e("s_lshl_b32 s%d, s2, 3" % sA)
        a.e("s_add_u32 s%d, s%d, s%d" % (sA, sA, sW))
        a.e("s_lshl_b32 s%d, s%d, 7" % (sA, sA))
        a.e("s_add_u32 s%d, s%d, 0x%x" % (sA, sA, WS_STAMP))
        a.e("s_mov_b64 exec, 1")
        for i in range(5): a.e("buffer_store_dwordx4 %s, off, %s, s%d offset:%d" % (v(vS + 4 * i, 4), srd(SWS), sA, 16 * i))
    a.lab("L_end")
    a.e("s_endpgm")
    for j in range(8):
        a.lab("L_ore%d" % j)
        a.e("s_sub_u32 s%d, s%d, 1" % (sB, sB))
        a.e("s_cbranch_scc1 L_ogive%d" % j)
        a.e("s_waitcnt vmcnt(0)")
        for i in range(j, 8):
            a.e("buffer_load_dwordx4 %s, %s, %s, s%d offen offset:%d sc1" % (v(vS + 4 * i, 4), v(vL16), srd(SWS), sOLD if i < 4 else sA, (i % 4) * 1024))
        a.e("s_branch L_ochk%d" % j)
        a.lab("L_ogive%d" % j)
        a.e("s_mov_b32 s%d, 0" % sB)
        a.e("s_branch L_ook%d" % j)

def fallback(a):
    a.lab("L_fb")
    m = vFR + 4
    a.e("v_mov_b32 %s, 0xff800000" % v(m))
    a.e("s_mov_b32 s%d, 0" % sA)
    a.lab("L_fb1")
    a.e("buffer_load_dwordx4 %s, %s, %s, s%d offen sc1" % (v(vKF, 4), v(vL16), srd(SKV), sA))
    a.e("s_waitcnt vmcnt(0)")
    a.e(mfma(vS, vKF, vQ, None))
    a.e("s_add_u32 s%d, s%d, 2048" % (sA, sA))
    a.e("s_nop 11")
    for i in range(8): a.e("v_max3_f32 %s, %s, %s, %s" % (v(m), v(m), v(vS + 2 * i), v(vS + 2 * i + 1)))
    a.e("s_cmp_lt_u32 s%d, 0x20000" % sA)
    a.e("s_cbranch_scc1 L_fb1")
    a.e("v_mov_b32 %s, %s" % (v(m + 1), v(m)))
    a.e("s_nop 1")
    a.e("v_permlane32_swap_b32 %s, %s" % (v(m), v(m + 1)))
    a.e("s_nop 1")
    a.e("v_max_f32 %s, %s, %s" % (v(m), v(m), v(m + 1)))
    for i in range(16): a.e("v_sub_f32 %s, 0, %s" % (v(vS + 16 + i), v(m)))
    for i in range(16): a.e("v_mov_b32 %s, 0" % v(vO + i))
    a.e("s_mov_b32 s%d, 0" % sA)
    a.lab("L_fb2")
    a.e("s_add_u32 s%d, s%d, 0x%x" % (sB, sA, 63 * 2048))
    a.e("s_and_b32 s%d, s%d, 0x1ffff" % (sB, sB))
    a.e("buffer_load_dwordx4 %s, %s, %s, s%d offen sc1" % (v(vKF, 4), v(vL16), srd(SKV), sB))
    a.e("s_add_u32 s%d, s%d, 2048" % (sB, sA))
    a.e("s_and_b32 s%d, s%d, 0x1ffff" % (sB, sB))
    a.e("s_mov_b64 exec, %s" % sp(sVM))
    a.e("buffer_load_dwordx4 %s, %s, %s, s%d offen offset:1024 sc1" % (v(vV, 4), v(vL16), srd(SKV), sA))
    a.e("buffer_load_dwordx4 %s, %s, %s, s%d offen offset:1280 sc1" % (v(vV + 4, 4), v(vL16), srd(SKV), sB))
    a.e("s_mov_b64 exec, -1")
    a.e("s_waitcnt vmcnt(0)")
    a.e(mfma(vS, vKF, vQ, vS + 16))
    a.e("s_add_u32 s%d, s%d, 2048" % (sA, sA))
    a.e("s_nop 11")
    for i in range(16): a.e("v_exp_f32 %s, %s" % (v(vS + i), v(vS + i)))
    for i in range(8): a.e("v_cvt_pk_bf16_f32 %s, %s, %s" % (v(vP + i), v(vS + 2 * i), v(vS + 2 * i + 1)))
    a.e("s_nop 1")
    a.e(mfma(vO, vV, vP, vO))
    a.e(mfma(vO, vV + 4, vP + 4, vO))
    a.e("s_cmp_lt_u32 s%d, 0x20000" % sA)
    a.e("s_cbranch_scc1 L_fb2")
    a.e("s_nop 11")
    a.e("v_rcp_f32 %s, %s" % (v(vFR + 2), v(vO + 8)))
    a.e("s_branch L_fbret")

def build():
    a = Asm()
    prologue(a)
    phase1_F(a)
    transition(a)
    tail(a)
    ysubs(a)
    vm = a.vm; gelu_sub(a); a.vm = vm
    phase1_L(a)
    fallback(a)
    a.lab("L_codeend")
    head = open("cdna_kernels/%s.s.ref" % NAME).read().split("\n")
    hdr = [l for l in head if l.startswith(";") and "@launch" not in l and "Override" not in l and "grid=" not in l]
    out = hdr + ["; @launch grid=(256,1,1) block=(512,1,1) lds=%d" % LDS_BYTES,
                 '.amdgcn_target "amdgcn-amd-amdhsa--gfx950"', ".text", ".globl %s_kernel" % NAME, ".p2align 8",
                 ".type %s_kernel,@function" % NAME,
                 ".set CODE_PF_MAX, L_codeend - L_nopf - 4" if Opt.code_pf else "",
                 "%s_kernel:" % NAME]
    out += ["; mapmode %d" % Opt.mapmode, "; xrot %d" % Opt.xrot]
    out += a.l
    out += ['.section .rodata,"a"', ".p2align 6", ".amdhsa_kernel %s_kernel" % NAME,
            "  .amdhsa_next_free_vgpr %d" % NV, "  .amdhsa_next_free_sgpr 102", "  .amdhsa_accum_offset 256",
            "  .amdhsa_group_segment_fixed_size 0", "  .amdhsa_kernarg_size 104", "  .amdhsa_user_sgpr_count 2",
            "  .amdhsa_user_sgpr_kernarg_segment_ptr 1", "  .amdhsa_system_sgpr_workgroup_id_x 1", ".end_amdhsa_kernel", ""]
    return "\n".join(out)

if __name__ == "__main__":
    path = sys.argv[1]
    for kv in sys.argv[2:]:
        k, val = kv.split("=")
        cur = getattr(Opt, k)
        setattr(Opt, k, val if isinstance(cur, str) else type(cur)(int(val)))
    open(path, "w").write(build())
```

```python
import sys, struct, math

NAME = "gated_mix__grouped_kv_mqa__geglu_ffn__prompt"

class Opt:
    diag = False
    mapmode = 1
    force_fb = False
    out_pol = ""
    code_pf = True
    xrot = 0
    npre = 7
    stagger = 1
    npd = 3
    kdiag = 0
    fillpre = 60
    fillper = 6
    gsc = 3
    xmask = 1
    touch = 2
    rotg = 0
    rotm = 0
    startbar = 1
    pvz = 1
    pin = -1
    pin_ns = 60000

def f2u(x): return struct.unpack("<I", struct.pack("<f", x))[0]

WS_KV = 0
WS_G = 128 * 1024
WS_HFLAG = 192 * 1024
WS_OF = 1 << 20
WS_HF = 4 << 20
WS_STAMP = 12 << 20
WS_SIZE = 16 << 20
K1 = 1024
L_G, L_U, L_X, L_WQ = 0, 48 * K1, 96 * K1, 144 * K1
L_QX = 32 * K1
L_WD, L_WO, L_KV = 0, 64 * K1, 128 * K1
LL_X, LL_W, LL_GATE, LL_WQ = 0, 128 * K1, 144 * K1, 128 * K1
LDS_BYTES = 160 * K1

SX, SWG, SWU, SWQ, SWS, SWD, SWO, SOUT, SDBG, SWKV, SGATE, SKV = 4, 8, 12, 16, 20, 24, 28, 32, 36, 40, 44, 64
SWV = 72
sTMPP = 48
sW, sHI, sLO, sG, sM, sT, sCB = 50, 51, 52, 53, 54, 55, 56
sWK = 57
sWH = 58
sK64 = 59
sVM = 60
sRET = 62
sA, sB, sC, sD = 68, 69, 70, 71
sOFFW, sOFFQ, sCH, sXP = 72, 73, 74, 75
sHOFF, sWDOFF, sKVOFF, sM0WD, sM0KV, sCNT = 72, 73, 74, 75, 76, 77
sOST, sOLD, sHST = 78, 79, 80
sHP = 81
sSTAMP = 82

def srd(b): return "s[%d:%d]" % (b, b + 3)
def sp(b): return "s[%d:%d]" % (b, b + 1)
def v(b, n=1): return "v%d" % b if n == 1 else "v[%d:%d]" % (b, b + n - 1)

vL16 = 1
vT0, vT1, vT2, vT3 = 2, 3, 4, 5
vGP, vGC = 6, 7
vKVA = 8
vWDA = 9
vWDV = 10
vONE = 11
vZERO = 12
vFLA = 13
vPOLL = 14
vGA = 15
vQ = 16
vK0 = 20
vV1L = 24
vE = 28
vP = 32
vV = 40
vO = 56
vD = 72
vACC = 104
vS = 104
vH = 136
vAQ = 168
vKF = 168
vWF = 176
vFR = 184
vXA = 224
vWA = 232
vQA = 236
vDX, vDG, vDU, vDQ = 237, 238, 239, 240
vC0 = 242
NV = 256

class Asm:
    def __init__(self):
        self.l = []
        self.vm = []
        self.nstamp = 0
    def e(self, s):
        for x in s.split("\n"):
            x = x.strip()
            if x: self.l.append("    " + x)
    def lab(self, s): self.l.append(s + ":")
    def vmop(self, s, tag):
        self.e(s); self.vm.append(tag)
    def vmn(self, tags):
        if isinstance(tags, str): tags = [tags]
        last = -1
        for i, t in enumerate(self.vm):
            if t in tags: last = i
        return None if last < 0 else len(self.vm) - 1 - last
    def waitvm(self, tags, lgkm=False):
        n = self.vmn(tags)
        if n is None:
            if lgkm: self.e("s_waitcnt lgkmcnt(0)")
            return
        assert n < 64
        self.e("s_waitcnt vmcnt(%d)%s" % (n, " lgkmcnt(0)" if lgkm else ""))
        self.vm = self.vm[len(self.vm) - n:] if n else []
    def wait0(self, lgkm=False):
        self.e("s_waitcnt vmcnt(0)%s" % (" lgkmcnt(0)" if lgkm else "")); self.vm = []
    def stamp(self, i, real=False):
        if Opt.pin == i:
            self.nstamp += 1
            self.e("s_waitcnt lgkmcnt(0)")
            self.e("s_cselect_b32 s%d, 1, 0" % (sSTAMP + 5))
            self.lab("L_pin%d" % self.nstamp)
            self.e("s_memrealtime s[0:1]")
            self.e("s_waitcnt lgkmcnt(0)")
            self.e("s_sub_u32 s0, s0, s%d" % sSTAMP)
            self.e("s_cmp_lt_u32 s0, %d" % (Opt.pin_ns // 10))
            self.e("s_cbranch_scc1 L_pin%d" % self.nstamp)
            self.e("s_cmp_lg_u32 s%d, 0" % (sSTAMP + 5))
        if Opt.diag and not Opt.kdiag:
            self.e("s_waitcnt lgkmcnt(0)")
            self.e("s_memtime %s" % sp(sSTAMP + 2 * i))
            self.e("s_memrealtime s[0:1]")
            self.e("s_waitcnt lgkmcnt(0)")
            self.e("s_mov_b32 s%d, s0" % (sSTAMP + 2 * i + 1))

def kstamp(a, i):
    if Opt.diag and Opt.kdiag: a.e("s_memtime %s" % sp(sSTAMP + 2 * i))

def mfma(d, a, b, c):
    return "v_mfma_f32_32x32x16_bf16 %s, %s, %s, %s" % (v(d, 16), v(a, 4), v(b, 4), "0" if c is None else v(c, 16))
def rd128(d, a, off):
    assert 0 <= off < 65536
    return "ds_read_b128 %s, %s offset:%d" % (v(d, 4), v(a), off)
def rdtr(d, a, off):
    assert 0 <= off < 65536
    return "ds_read_b64_tr_b16 %s, %s offset:%d" % (v(d, 2), v(a), off)

def interleave(mf, fill, per=2):
    out = []
    fill = list(fill)
    for i, m in enumerate(mf):
        out.append(m)
        if i < len(mf) - 1:
            out += fill[:per]; fill = fill[per:]
    return out + fill

def srd_words(a, regs):
    sizes = {SX: 2048 * 1024, SWG: 512 * 3584, SWU: 512 * 3584, SWQ: 512 * 1024, SWS: WS_SIZE, SWKV: 16384, SWV: 16384,
             SGATE: 1024, SWD: 1792 * 1024, SWO: 512 * 1024, SOUT: 2048 * 1024, SDBG: 256, SKV: 128 * 1024}
    for reg in regs:
        a.e("s_mov_b32 s%d, 0x%x" % (reg + 2, sizes[reg]))
        a.e("s_mov_b32 s%d, 0x20000" % (reg + 3))

def prologue(a):
    a.e("s_cmp_ge_u32 s2, 256")
    a.e("s_cbranch_scc1 L_end")
    for reg, off in ((SX, 0), (SWG, 48), (SWU, 56), (SWQ, 8), (SWS, 96), (SWKV, 16), (sTMPP, 24), (SGATE, 72),
                     (SWD, 64), (SWO, 32), (SOUT, 80), (SDBG, 88), (SKV, 96)):
        a.e("s_load_dwordx2 %s, s[0:1], %d" % (sp(reg), off))
    if Opt.diag or Opt.pin >= 0:
        a.e("s_memrealtime %s" % sp(sSTAMP))
        a.e("s_memtime %s" % sp(sSTAMP + 2))
    a.e("v_lshrrev_b32 v2, 6, v0")
    a.e("v_and_b32 v0, 63, v0")
    a.e("v_readfirstlane_b32 s%d, v2" % sW)
    a.e("v_lshlrev_b32 %s, 4, v0" % v(vL16))
    srd_words(a, [SX, SWQ])
    a.e("s_and_b32 s%d, s2, 7" % sA)
    a.e("s_lshr_b32 s%d, s2, 3" % sB)
    a.e("s_lshl_b32 s%d, s%d, 2" % (sT, sA))
    a.e("s_and_b32 s%d, s%d, 3" % (sD, sB))
    a.e("s_add_u32 s%d, s%d, s%d" % (sT, sT, sD))
    a.e("s_lshr_b32 s%d, s%d, 2" % (sCB, sB))
    if Opt.xrot:
        a.e("s_add_u32 s%d, s%d, %d" % (sA, sA, Opt.xrot))
        a.e("s_and_b32 s%d, s%d, 7" % (sA, sA))
    if Opt.mapmode == 0:
        a.e("s_lshl_b32 s%d, s%d, 1" % (sG, sA))
        a.e("s_and_b32 s%d, s%d, 1" % (sC, sB))
        a.e("s_add_u32 s%d, s%d, s%d" % (sG, sG, sC))
        a.e("s_lshr_b32 s%d, s%d, 1" % (sM, sB))
        a.e("s_mov_b32 s%d, s%d" % (sHP, sM))
    elif Opt.mapmode in (1, 3):
        a.e("s_and_b32 s%d, s%d, 1" % (sG, sA))
        a.e("s_lshl_b32 s%d, s%d, 3" % (sG, sG))
        a.e("s_and_b32 s%d, s%d, 7" % (sC, sB))
        a.e("s_add_u32 s%d, s%d, s%d" % (sG, sG, sC))
        a.e("s_lshr_b32 s%d, s%d, 1" % (sA, sA))
        a.e("s_lshl_b32 s%d, s%d, 2" % (sHP, sA))
        a.e("s_lshr_b32 s%d, s%d, 3" % (sC, sB))
        a.e("s_add_u32 s%d, s%d, s%d" % (sHP, sHP, sC))
        if Opt.mapmode == 1:
            a.e("s_mov_b32 s%d, s%d" % (sM, sHP))
        else:
            a.e("s_sub_u32 s%d, s%d, s%d" % (sM, sHP, sA))
            a.e("s_lshr_b32 s%d, s%d, 1" % (sB, sB))
            a.e("s_and_b32 s%d, s%d, 2" % (sB, sB))
            a.e("s_add_u32 s%d, s%d, s%d" % (sB, sB, sA))
            a.e("s_and_b32 s%d, s%d, 3" % (sB, sB))
            a.e("s_add_u32 s%d, s%d, 12" % (sB, sB))
            a.e("s_cmp_eq_u32 s%d, 3" % sC)
            a.e("s_cselect_b32 s%d, s%d, s%d" % (sM, sB, sM))
    else:
        a.e("s_and_b32 s%d, s%d, 3" % (sG, sA))
        a.e("s_lshl_b32 s%d, s%d, 2" % (sG, sG))
        a.e("s_add_u32 s%d, s%d, s%d" % (sG, sG, sD))
        a.e("s_lshr_b32 s%d, s%d, 2" % (sM, sA))
        a.e("s_lshl_b32 s%d, s%d, 3" % (sM, sM))
        a.e("s_add_u32 s%d, s%d, s%d" % (sM, sM, sCB))
        a.e("s_mov_b32 s%d, s%d" % (sHP, sM))
    a.e("s_lshl_b32 s%d, s%d, 10" % (sWK, sW))
    a.e("s_mov_b32 s%d, 0x10000" % sK64)
    if Opt.code_pf:
        a.e("s_cmp_lg_u32 s%d, s%d" % (sD, sW))
        a.e("s_cbranch_scc1 L_nopf")
        a.e("s_getpc_b64 %s" % sp(sRET))
        a.e("s_lshl_b32 s%d, s%d, 13" % (sD, sW))
        a.e("v_lshl_add_u32 v2, v0, 7, s%d" % sD)
        a.e("v_min_u32 v2, CODE_PF_MAX, v2")
        a.e("global_load_dword %s, v2, %s" % (v(vPOLL), sp(sRET)))
        a.lab("L_nopf")
    a.e("s_lshl_b32 s%d, s%d, 2" % (sA, sW))
    a.e("v_lshrrev_b32 v2, 4, v0")
    a.e("v_add_u32 v3, s%d, v2" % sA)
    a.e("v_xor_b32 v3, v3, v0")
    a.e("v_and_b32 v3, 7, v3")
    a.e("v_lshlrev_b32 v3, 4, v3")
    a.e("v_lshrrev_b32 v4, 3, v0")
    a.e("v_lshl_add_u32 v3, v4, 10, v3")
    a.e("s_lshl_b32 s%d, s%d, 17" % (sA, sG))
    a.e("s_lshl_b32 s%d, s%d, 13" % (sB, sW))
    a.e("s_add_u32 s%d, s%d, s%d" % (sA, sA, sB))
    a.e("v_add_u32 %s, s%d, v3" % (v(vDX), sA))
    a.e("s_cmp_ge_u32 s%d, 14" % sM)
    a.e("s_cbranch_scc1 L_light")

def setup_rd(a):
    a.e("s_lshr_b32 s%d, s%d, 2" % (sHI, sW))
    a.e("s_and_b32 s%d, s%d, 3" % (sLO, sW))
    a.e("v_and_b32 v2, 31, v0")
    a.e("v_lshrrev_b32 v3, 5, v0")
    a.e("v_bfe_u32 v4, v0, 1, 3")
    a.e("v_xor_b32 v4, v4, v3")
    a.e("v_lshlrev_b32 v4, 4, v4")
    a.e("v_lshl_add_u32 %s, v2, 7, v4" % v(vXA))
    a.e("v_bfe_u32 v2, v0, 2, 2")
    a.e("v_and_b32 v4, 3, v0")
    a.e("v_bfe_u32 v5, v0, 4, 1")
    a.e("v_lshl_add_u32 %s, v3, 3, v2" % v(vQA))
    a.e("v_lshlrev_b32 %s, 6, %s" % (v(vQA), v(vQA)))
    a.e("v_lshl_add_u32 %s, v5, 5, %s" % (v(vQA), v(vQA)))
    a.e("v_lshl_add_u32 %s, v4, 3, %s" % (v(vQA), v(vQA)))

def setup_oclr(a):
    srd_words(a, [SWS, SKV, SDBG])
    a.e("s_mov_b32 s%d, 0xffff" % sVM)
    a.e("s_mov_b32 s%d, 0xffff" % (sVM + 1))
    a.e("s_lshl_b32 s%d, s%d, 2" % (sA, sG))
    a.e("s_add_u32 s%d, s%d, s%d" % (sA, sA, sLO))
    a.e("s_lshl_b32 s%d, s%d, 5" % (sB, sA))
    a.e("s_lshl_b32 s%d, s%d, 1" % (sC, sHP))
    a.e("s_add_u32 s%d, s%d, s%d" % (sB, sB, sC))
    a.e("s_add_u32 s%d, s%d, s%d" % (sB, sB, sHI))
    a.e("s_lshl_b32 s%d, s%d, 10" % (sB, sB))
    a.e("s_add_u32 s%d, s%d, 0x%x" % (sOST, sB, WS_OF))
    for i in range(4): a.e("v_mov_b32 %s, -1" % v(vP + i))
    a.vmop("buffer_store_dwordx4 %s, %s, %s, s%d offen sc1" % (v(vP, 4), v(vL16), srd(SWS), sOST), "oclr")
    a.e("v_mov_b32 %s, 1" % v(vONE))
    a.e("v_mov_b32 %s, 0" % v(vZERO))
    a.e("v_and_b32 %s, 31, v0" % v(vGA))
    a.e("v_lshlrev_b32 %s, 2, %s" % (v(vGA), v(vGA)))

def collect(fn):
    t = Asm(); t.marks = {}
    def vmop(s_, tag):
        t.e(s_); t.marks[len(t.l) - 1] = tag
    t.vmop = vmop
    fn(t)
    return [(x, t.marks.get(i)) for i, x in enumerate(t.l)]
def put(a, items):
    for x, tag in items:
        if tag: a.vmop(x, tag)
        else: a.e(x)

def setup_attn(a):
    srd_words(a, [SWD, SWO, SOUT])
    a.e("s_lshl_b32 s%d, s%d, 2" % (sA, sG))
    a.e("s_add_u32 s%d, s%d, s%d" % (sA, sA, sLO))
    a.e("s_mul_i32 s%d, s%d, 112" % (sB, sA))
    a.e("s_lshl_b32 s%d, s%d, 3" % (sC, sM))
    a.e("s_add_u32 s%d, s%d, s%d" % (sB, sB, sC))
    a.e("s_lshl_b32 s%d, s%d, 2" % (sC, sHI))
    a.e("s_add_u32 s%d, s%d, s%d" % (sB, sB, sC))
    a.e("s_and_b32 s%d, s%d, 1" % (sC, sLO))
    a.e("s_lshl_b32 s%d, s%d, 1" % (sC, sC))
    a.e("s_add_u32 s%d, s%d, s%d" % (sB, sB, sC))
    a.e("s_lshl_b32 s%d, s%d, 10" % (sB, sB))
    a.e("s_add_u32 s%d, s%d, 0x%x" % (sHST, sB, WS_HF))
    a.e("v_bfe_u32 v2, v0, 2, 2")
    a.e("v_lshrrev_b32 v3, 5, v0")
    a.e("v_lshl_add_u32 v2, v3, 2, v2")
    a.e("v_lshlrev_b32 v2, 6, v2")
    a.e("v_bfe_u32 v3, v0, 4, 1")
    a.e("v_lshl_add_u32 v2, v3, 5, v2")
    a.e("v_and_b32 v3, 3, v0")
    a.e("v_lshl_add_u32 v2, v3, 3, v2")
    a.e("s_lshr_b32 s%d, s%d, 1" % (sA, sW))
    a.e("s_lshl_b32 s%d, s%d, 11" % (sA, sA))
    a.e("v_add_u32 %s, s%d, v2" % (v(vWDA), sA))
    a.e("v_add_u32 %s, 0x%x, %s" % (v(vKVA), L_KV, v(vL16)))
    a.e("v_bfe_u32 v2, v0, 2, 3")
    a.e("v_lshlrev_b32 v2, 10, v2")
    a.e("v_lshrrev_b32 v3, 5, v0")
    a.e("v_lshl_add_u32 v2, v3, 6, v2")
    a.e("v_and_b32 v3, 3, v0")
    a.e("v_lshl_add_u32 v2, v3, 4, v2")
    a.e("s_and_b32 s%d, s%d, 1" % (sA, sW))
    a.e("s_lshl_b32 s%d, s%d, 13" % (sA, sA))
    a.e("s_lshl_b32 s%d, s%d, 7" % (sB, sCB))
    a.e("s_add_u32 s%d, s%d, s%d" % (sA, sA, sB))
    a.e("v_add_u32 %s, s%d, v2" % (v(vWDV), sA))
    a.e("v_min_u32 v2, 13, v0")
    a.e("v_lshlrev_b32 v2, 7, v2")
    a.e("s_lshr_b32 s%d, s%d, 1" % (sA, sT))
    a.e("s_lshl_b32 s%d, s%d, 11" % (sA, sA))
    a.e("s_add_u32 s%d, s%d, 0x%x" % (sA, sA, WS_HFLAG))
    a.e("v_add_u32 %s, s%d, v2" % (v(vFLA), sA))
    a.e("s_lshl_b32 s%d, s%d, 1" % (sA, sT))
    a.e("s_and_b32 s%d, s%d, 1" % (sB, sW))
    a.e("s_add_u32 s%d, s%d, s%d" % (sA, sA, sB))
    a.e("s_lshl_b32 s%d, s%d, 15" % (sB, sA))
    a.e("s_lshr_b32 s%d, s%d, 1" % (sC, sW))
    a.e("s_lshl_b32 s%d, s%d, 13" % (sC, sC))
    a.e("s_add_u32 s%d, s%d, s%d" % (sB, sB, sC))
    a.e("s_add_u32 s%d, s%d, 0x%x" % (sOLD, sB, WS_OF))
    if Opt.pvz:
        a.e("v_and_b32 v2, 27, v0")
        a.e("v_cmp_eq_u32 vcc, 16, v2")
        a.e("v_mov_b32 v3, 0x3f803f80")
        a.e("s_nop 0")
        a.e("v_cndmask_b32 v2, 0, v3, vcc")
    else:
        a.e("v_mov_b32 v2, 0x3f803f80")
    for i in range(16): a.e("v_mov_b32 %s, v2" % v(vV + i))
    for i in range(4): a.e("v_mov_b32 %s, v2" % v(vV1L + i))
    for i in range(4): a.e("v_mov_b32 %s, 0" % v(vE + i))
    for i in range(4, 8): a.e("v_mov_b32 %s, 0" % v(vP + i))
    for i in range(16): a.e("v_mov_b32 %s, 0" % v(vO + i))
    for i in range(32): a.e("v_mov_b32 %s, 0" % v(vD + i))
    c0 = -2.0 * math.sqrt(2.0 / math.pi) * math.log2(math.e)
    a.e("v_mov_b32 %s, 0x%x" % (v(vC0), f2u(c0)))
    a.e("v_mov_b32 %s, 0x%x" % (v(vC0 + 1), f2u(c0 * 0.044715)))

def kv_first_loads(a):
    it = []
    for u in range(2):
        it.append(("s_add_u32 m0, s%d, 0x%x\ns_add_u32 s%d, s%d, 0x%x\nbuffer_load_dwordx4 %s, %s, s%d offen sc1 lds"
                   % (sWK, L_KV + u * 8192, sA, sWK, u * 8192, v(vL16), srd(SKV), sA), "kv%d" % u))
    it.append(("s_mov_b32 s%d, 0x%x\nbuffer_load_dwordx4 %s, %s, %s, s%d offen sc1"
               % (sA, 63 * 2048, v(vK0, 4), v(vL16), srd(SKV), sA), "k0"))
    it.append(("s_mov_b64 exec, %s\nbuffer_load_dwordx4 %s, %s, %s, 0 offen offset:%d sc1\ns_mov_b64 exec, -1"
               % (sp(sVM), v(vV1L, 4), v(vL16), srd(SKV), 1024 + 256), "k0"))
    it.append(("s_lshl_b32 s%d, s%d, 2\ns_add_u32 s%d, s%d, s%d\ns_lshl_b32 s%d, s%d, 7\ns_add_u32 s%d, s%d, 0x%x\n"
               "buffer_load_dword %s, %s, %s, s%d offen sc1"
               % (sA, sG, sA, sA, sLO, sA, sA, sA, sA, WS_G, v(vGP), v(vGA), srd(SWS), sA), "k0"))
    it.append(("s_lshl_b32 s%d, s%d, 1\ns_and_b32 s%d, s%d, 1\ns_add_u32 s%d, s%d, s%d\ns_lshl_b32 s%d, s%d, 7\ns_add_u32 s%d, s%d, 0x%x\n"
               "buffer_load_dword %s, %s, %s, s%d offen sc1"
               % (sA, sT, sB, sW, sA, sA, sB, sA, sA, sA, sA, WS_G, v(vGC), v(vGA), srd(SWS), sA), "k0"))
    return it

def spin_counter(a, name, first_loaded):
    a.e("s_cmp_lg_u32 s%d, 0" % sW)
    a.e("s_cbranch_scc1 L_%s_done" % name)
    a.e("s_mov_b32 s%d, 0x4000" % sB)
    if first_loaded: a.e("s_branch L_%s_chk" % name)
    a.lab("L_%s_re" % name)
    a.e("buffer_load_dword %s, off, %s, 0 sc1" % (v(vPOLL), srd(SDBG)))
    a.e("s_waitcnt vmcnt(0)")
    a.lab("L_%s_chk" % name)
    a.e("v_readfirstlane_b32 s%d, %s" % (sA, v(vPOLL)))
    a.e("s_cmp_ge_u32 s%d, 32" % sA)
    a.e("s_cbranch_scc1 L_%s_done" % name)
    a.e("s_sleep 4")
    a.e("s_sub_u32 s%d, s%d, 1" % (sB, sB))
    a.e("s_cmp_lg_u32 s%d, 0" % sB)
    a.e("s_cbranch_scc1 L_%s_re" % name)
    a.lab("L_%s_done" % name)

def phase1_F(a):
    srd_words(a, [SWG, SWU])
    a.e("s_lshl_b32 s%d, s%d, 9" % (sWH, sW))
    a.e("v_bfe_u32 v3, v0, 1, 3")
    a.e("v_xor_b32 v3, v3, v2")
    a.e("v_lshlrev_b32 v3, 5, v3")
    a.e("v_and_b32 v4, 1, v0")
    a.e("v_lshl_add_u32 v3, v4, 4, v3")
    a.e("v_xor_b32 v4, 0x80, v3")
    a.e("v_mul_u32_u24 v5, 3584, v2")
    a.e("s_mul_i32 s%d, s%d, %d" % (sA, sW, 4 * 3584))
    a.e("s_lshl_b32 s%d, s%d, 8" % (sB, sM))
    a.e("s_add_u32 s%d, s%d, s%d" % (sA, sA, sB))
    a.e("v_add3_u32 %s, v3, v5, s%d" % (v(vDG), sA))
    a.e("v_add3_u32 %s, v4, v5, s%d" % (v(vDU), sA))
    a.e("v_lshrrev_b32 v3, 2, v0")
    a.e("v_lshlrev_b32 v3, 10, v3")
    a.e("v_and_b32 v4, 3, v0")
    a.e("v_lshl_add_u32 v3, v4, 4, v3")
    a.e("s_lshl_b32 s%d, s%d, 13" % (sA, sW))
    a.e("s_lshl_b32 s%d, s%d, 6" % (sB, sHP))
    a.e("s_add_u32 s%d, s%d, s%d" % (sA, sA, sB))
    a.e("v_add_u32 %s, s%d, v3" % (v(vDQ), sA))
    a.e("s_add_u32 s%d, s%d, s%d" % (sA, sG, sHP))
    a.e("s_and_b32 s%d, s%d, %d" % (sXP, sA, Opt.xmask))
    a.e("s_mov_b32 s%d, s%d" % (sCH, sXP))

    def dmas(c):
        s = c % 3
        t = "c%d" % c
        it = []
        def one(m0src, m0c, vo, rs, so, pre="s_nop 0", post=""):
            return ("s_add_u32 m0, s%d, 0x%x\n%s\nbuffer_load_dwordx4 %s, %s, s%d offen lds\n%s"
                    % (m0src, m0c, pre, v(vo), srd(rs), so, post), t)
        it.append(one(sWK, L_X + s * 16384, vDX, SX, sOFFQ, pre="s_lshl_b32 s%d, s%d, 7" % (sOFFQ, sCH)))
        it.append(one(sWK, L_X + s * 16384 + 8192, vDX, SX, sOFFQ, pre="s_add_u32 s%d, s%d, s%d" % (sOFFQ, sOFFQ, sK64)))
        it.append(one(sWK, L_G + s * 16384, vDG, SWG, sOFFW, pre="s_mul_i32 s%d, s%d, %d" % (sOFFW, sCH, 64 * 3584)))
        it.append(one(sWK, L_U + s * 16384, vDU, SWU, sOFFW, pre="s_lshl_b32 s%d, s%d, 16" % (sOFFQ, sCH)))
        it.append(one(sWK, L_G + s * 16384 + 8192, vDG, SWG, sOFFW, pre="s_add_u32 s%d, s%d, %d" % (sOFFW, sOFFW, 32 * 3584)))
        it.append(one(sWK, L_U + s * 16384 + 8192, vDU, SWU, sOFFW, pre="s_xor_b32 s%d, s%d, %d" % (sCH, sXP, c + 1)))
        it.append(one(sWH, L_WQ + s * 4096, vDQ, SWQ, sOFFQ, pre="s_mov_b32 exec_hi, 0",
                      post="s_mov_b32 exec_hi, -1"))
        return it

    def rdsetup(a):
        setup_rd(a)
        a.e("v_lshl_add_u32 %s, v3, 3, v2" % v(vWA))
        a.e("v_lshlrev_b32 %s, 8, %s" % (v(vWA), v(vWA)))
        a.e("v_lshl_add_u32 %s, v4, 3, %s" % (v(vWA), v(vWA)))
        a.e("v_mul_u32_u24 v4, 0x%x, v5" % (L_U - L_G))
        a.e("v_add_u32 %s, v4, %s" % (v(vWA), v(vWA)))
        a.e("v_lshl_add_u32 v2, v5, 2, v2")
        a.e("s_lshl_b32 s%d, s%d, 2" % (sA, sHI))
        a.e("s_and_b32 s%d, s%d, 1" % (sB, sLO))
        a.e("s_lshl_b32 s%d, s%d, 1" % (sB, sB))
        a.e("s_add_u32 s%d, s%d, s%d" % (sA, sA, sB))
        a.e("v_xor_b32 v2, s%d, v2" % sA)
        a.e("v_lshl_add_u32 %s, v2, 5, %s" % (v(vWA), v(vWA)))
        a.e("s_lshl_b32 s%d, s%d, 13" % (sA, sHI))
        a.e("s_xor_b32 s%d, s%d, 0x2000" % (sB, sA))
        a.e("v_add_u32 %s, s%d, %s" % (v(vWA + 2), sB, v(vWA)))
        a.e("v_add_u32 %s, s%d, %s" % (v(vWA), sA, v(vWA)))
        a.e("v_xor_b32 %s, 32, %s" % (v(vWA + 1), v(vWA)))
        a.e("v_xor_b32 %s, 32, %s" % (v(vWA + 3), v(vWA + 2)))
        a.e("s_lshl_b32 s%d, s%d, 6" % (sA, sHI))
        a.e("s_lshl_b32 s%d, s%d, 12" % (sB, sLO))
        a.e("s_add_u32 s%d, s%d, s%d" % (sA, sA, sB))
        a.e("s_add_u32 s%d, s%d, 0x%x" % (sA, sA, L_X))
        a.e("v_xor_b32 %s, s%d, %s" % (v(vXA), sA, v(vXA)))
        for s in range(1, 4): a.e("v_xor_b32 %s, %d, %s" % (v(vXA + s), 32 * s, v(vXA)))
        for s in range(4): a.e("v_xor_b32 %s, 0x1000, %s" % (v(vXA + 4 + s), v(vXA + s)))
        a.e("s_lshl_b32 s%d, s%d, 11" % (sA, sHI))
        a.e("s_add_u32 s%d, s%d, 0x%x" % (sA, sA, L_WQ))
        a.e("v_add_u32 %s, s%d, %s" % (v(vQA), sA, v(vQA)))

    a.e("s_waitcnt lgkmcnt(0)")
    a.stamp(2)
    put(a, dmas(0))
    if Opt.touch & 1:
        a.e("s_cmp_ge_u32 s%d, 3" % sW)
        a.e("s_cbranch_scc1 L_notouch")
        a.e("v_lshrrev_b32 v2, 1, v0")
        a.e("s_add_u32 s%d, s%d, 128" % (sA, sG))
        a.e("v_lshl_add_u32 v2, v2, 4, s%d" % sA)
        a.e("s_cmp_eq_u32 s%d, 2" % sW)
        a.e("s_cbranch_scc1 L_touchq")
        a.e("v_mul_u32_u24 v2, 3584, v2")
        a.e("v_and_b32 v3, 1, v0")
        a.e("v_lshl_add_u32 v2, v3, 7, v2")
        a.e("s_lshl_b32 s%d, s%d, 8" % (sA, sM))
        a.e("s_cmp_eq_u32 s%d, 1" % sW)
        a.e("s_cbranch_scc1 L_touchu")
        a.e("buffer_load_dword %s, v2, %s, s%d offen" % (v(vPOLL), srd(SWG), sA))
        a.e("s_branch L_notouch")
        a.lab("L_touchu")
        a.e("buffer_load_dword %s, v2, %s, s%d offen" % (v(vPOLL), srd(SWU), sA))
        a.e("s_branch L_notouch")
        a.lab("L_touchq")
        a.e("v_lshlrev_b32 v2, 10, v2")
        a.e("s_lshl_b32 s%d, s%d, 6" % (sA, sHP))
        a.e("buffer_load_dword %s, v2, %s, s%d offen" % (v(vPOLL), srd(SWQ), sA))
        a.lab("L_notouch")
    if Opt.startbar: a.e("s_barrier")
    pend = dmas(1) + dmas(2)
    st = collect(rdsetup)
    gap = len(st) // (Opt.npre + 1) + 1
    for i in range(Opt.npre):
        put(a, pend[:1]); pend = pend[1:]
        put(a, st[:gap]); st = st[gap:]
    put(a, st)
    fill = collect(setup_oclr) + collect(setup_attn)
    put(a, fill[:Opt.fillpre]); fill = fill[Opt.fillpre:]

    def fr(k):
        b = vFR + 20 * (k % 2)
        return dict(x0=b, x1=b + 4, w0=b + 8, w1=b + 12, q=b + 16)
    def reads(k):
        c, s = divmod(k, 4); f = fr(k); sl = c % 3
        wo = sl * 16384 + (s & 1) * 4096
        wa = vWA + 2 * (s >> 1)
        r = [rdtr(f['w0'], wa, wo), rdtr(f['w0'] + 2, wa, wo + 1024),
             rd128(f['x0'], vXA + s, sl * 16384), rd128(f['x1'], vXA + 4 + s, sl * 16384),
             rdtr(f['w1'], wa + 1, wo), rdtr(f['w1'] + 2, wa + 1, wo + 1024)]
        if s < 2:
            r += [rdtr(f['q'], vQA, sl * 4096 + s * 1024), rdtr(f['q'] + 2, vQA, sl * 4096 + s * 1024 + 256)]
        return r
    n0 = a.vmn("c0")
    if Opt.touch & 1:
        a.e("s_cmp_ge_u32 s%d, 3" % sW)
        a.e("s_cbranch_scc1 L_w0a")
        a.e("s_waitcnt vmcnt(%d)" % (n0 + 1))
        a.e("s_branch L_w0b")
        a.lab("L_w0a")
        a.waitvm("c0")
        a.lab("L_w0b")
    else:
        a.waitvm("c0")
    a.e("s_barrier")
    a.stamp(3)
    kstamp(a, 2)
    for r in reads(0): a.e(r)
    kpoll = 21 if Opt.stagger else 23
    for k in range(32):
        c, s = divmod(k, 4); f = fr(k)
        if s == 3 and c < 7:
            assert not any(t == "c%d" % (c + 1) for _, t in pend)
            if c == 6 and Opt.stagger:
                a.e("s_waitcnt lgkmcnt(0)")
                a.e("s_cmp_lg_u32 s%d, 0" % sHI)
                a.e("s_cbranch_scc1 L_st7")
                a.e("s_waitcnt vmcnt(0)")
                spin_counter(a, "kvf", True)
                a.e("s_barrier")
                a.e("s_setprio 1")
                for x, _ in kv_first_loads(a): a.e(x)
                a.lab("L_st7")
            else:
                if c == 6:
                    a.wait0(lgkm=True)
                    spin_counter(a, "kvf", True)
                else:
                    a.waitvm("c%d" % (c + 1), lgkm=True)
                a.e("s_barrier")
                if c + 3 < 8: pend += dmas(c + 3)
                if c == 6: pend += kv_first_loads(a)
            kstamp(a, 3 + c)
        else:
            a.e("s_waitcnt lgkmcnt(0)")
        z = lambda x: None if k == 0 else x
        mf = [mfma(vACC, f['w0'], f['x0'], z(vACC)), mfma(vACC + 16, f['w0'], f['x1'], z(vACC + 16)),
              mfma(vACC + 32, f['w1'], f['x0'], z(vACC + 32)), mfma(vACC + 48, f['w1'], f['x1'], z(vACC + 48))]
        if s < 2: mf.append(mfma(vAQ, f['q'], f['x0'], z(vAQ)))
        for x in interleave(mf, reads(k + 1) if k < 31 else []): a.e(x)
        npd = 3 if len(pend) > 7 or k < 3 else Opt.npd
        put(a, pend[:npd]); pend = pend[npd:]
        if k >= 4:
            put(a, fill[:Opt.fillper]); fill = fill[Opt.fillper:]
        if k == kpoll:
            assert not fill
            a.e("s_cmp_lg_u32 s%d, 0" % sW)
            a.e("s_cbranch_scc1 L_nopoll")
            a.e("buffer_load_dword %s, off, %s, 0 sc1" % (v(vPOLL), srd(SDBG)))
            a.lab("L_nopoll")
        if k == 23 and Opt.stagger:
            assert not pend
            a.e("s_cmp_eq_u32 s%d, 0" % sHI)
            a.e("s_cbranch_scc1 L_st6")
            a.wait0()
            a.e("s_barrier")
            put(a, kv_first_loads(a))
            a.lab("L_st6")
    assert not pend
    a.stamp(4)

def phase1_L(a):
    a.lab("L_light")
    a.vm = []
    srd_words(a, [SWKV, SWV, SGATE])
    a.e("s_sub_u32 s%d, s%d, 14" % (sCNT, sM))
    a.e("s_lshl_b32 s%d, s%d, 16" % (sOLD, sCNT))
    a.e("s_lshl_b32 s%d, s%d, 13" % (sHST, sCNT))
    a.e("s_add_u32 s%d, s%d, s%d" % (sWH, sHST, sWK))
    a.e("s_xor_b32 s%d, s%d, 0x2000" % (sHST, sHST))
    a.e("s_add_u32 s%d, s%d, 0x2000" % (sA, sWK))
    a.e("s_waitcnt lgkmcnt(0)")
    a.stamp(2)
    a.e("s_mov_b32 s%d, s%d" % (SWV, sTMPP))
    a.e("s_mov_b32 s%d, s%d" % (SWV + 1, sTMPP + 1))
    def xdma(c, base, so):
        a.vmop("s_add_u32 m0, s%d, 0x%x\ns_nop 0\nbuffer_load_dwordx4 %s, %s, s%d offen offset:%d lds"
               % (base, LL_X + c * 16384 - c * 128, v(vDX), srd(SX), so, c * 128), "c%d" % c)
    def wdma(u):
        for t, rs in enumerate((SWKV, SWV)):
            a.vmop("s_add_u32 m0, s%d, 0x%x\ns_nop 0\nbuffer_load_dwordx4 %s, %s, s%d offen lds"
                   % (sWK, LL_W + t * 16384 + u * 8192, v(vL16), srd(rs), sA if u else sWK), "w")
    wdma(0)
    a.vmop("s_mov_b32 m0, s%d\ns_nop 0\nbuffer_load_dwordx4 %s, %s, 0 offen lds" % (sHST, v(vL16), srd(SGATE)), "w")
    for c in range(8):
        if c == 4: wdma(1)
        xdma(c, sWH, sOLD)
        if c in (1, 3, 5): a.e("s_barrier")
    setup_rd(a)
    a.e("v_lshl_add_u32 %s, v3, 3, v2" % v(vWA))
    a.e("v_lshlrev_b32 %s, 5, %s" % (v(vWA), v(vWA)))
    a.e("v_lshl_add_u32 %s, v4, 3, %s" % (v(vWA), v(vWA)))
    a.e("s_lshr_b32 s%d, s%d, 1" % (sA, sLO))
    a.e("s_lshl_b32 s%d, s%d, 14" % (sA, sA))
    a.e("s_add_u32 s%d, s%d, 0x%x" % (sA, sA, LL_W))
    a.e("v_add_u32 %s, s%d, %s" % (v(vWA), sA, v(vWA)))
    a.e("v_lshl_add_u32 %s, v3, 4, s%d" % (v(vWA + 1), sHST))
    a.e("v_mov_b32 %s, %s" % (v(vWA + 2), v(vXA)))
    a.e("s_and_b32 s%d, s%d, 1" % (sA, sLO))
    a.e("s_lshl_b32 s%d, s%d, 1" % (sB, sCNT))
    a.e("s_add_u32 s%d, s%d, s%d" % (sCNT, sA, sB))
    a.e("s_lshl_b32 s%d, s%d, 12" % (sA, sCNT))
    a.e("v_add_u32 %s, s%d, %s" % (v(vXA), sA, v(vXA)))
    for s in range(1, 4): a.e("v_xor_b32 %s, %d, %s" % (v(vXA + s), 32 * s, v(vXA)))
    for s in range(4): a.e("v_add_u32 %s, 0x10000, %s" % (v(vXA + 4 + s), v(vXA + s)))
    setup_oclr(a)
    vm0 = list(a.vm)
    a.e("s_cmp_lg_u32 s%d, 0" % sHI)
    a.e("s_cbranch_scc1 L_lB")
    a.e("s_not_b64 %s, %s" % (sp(sTMPP), sp(sVM)))
    a.e("s_cmp_ge_u32 s%d, 2" % sLO)
    a.e("s_cbranch_scc1 L_lV")
    def chain(kind):
        a.vm = list(vm0)
        def fr(k):
            b = vFR + 8 * (k % 4)
            return b, b + 4
        def reads(k):
            c, s = divmod(k, 4); x, w = fr(k)
            r = [rd128(x, vXA + s + 4 * (c >> 2), (c & 3) * 16384), rdtr(w, vWA, k * 512), rdtr(w + 2, vWA, k * 512 + 128)]
            if kind == "K":
                r += ["s_mov_b64 exec, %s" % sp(sTMPP), rd128(w, vWA + 1, k * 32), "s_mov_b64 exec, -1"]
            return r
        for q in range(4):
            a.waitvm("c%d" % (2 * q + 1))
            a.e("s_barrier")
            nr = 4 if kind == "K" else 3
            for k in range(8 * q, 8 * q + 2):
                for r in reads(k): a.e(r)
            for k in range(8 * q, 8 * q + 8):
                if k + 2 < 8 * q + 8:
                    for r in reads(k + 2): a.e(r)
                left = min(2, 8 * q + 7 - k)
                a.e("s_waitcnt lgkmcnt(%d)" % (left * nr))
                x, w = fr(k)
                cc = None if k == 0 else vACC
                a.e(mfma(vACC, w, x, cc) if kind == "K" else mfma(vACC, x, w, cc))
        a.e("s_lshl_b32 s%d, s%d, 2" % (sA, sG))
        a.e("s_add_u32 s%d, s%d, s%d" % (sA, sA, sCNT))
        a.e("s_nop 12")
        if kind == "K":
            a.e("s_mov_b32 s%d, 0x%x" % (sC, f2u(0.25 * math.log2(math.e))))
            for i in range(8): a.e("v_mul_f32 %s, s%d, %s" % (v(vACC + i), sC, v(vACC + i)))
            a.e("v_mul_f32 %s, 0x%x, %s" % (v(vACC + 8), f2u(-math.log2(math.e)), v(vACC + 8)))
            a.e("v_exp_f32 %s, %s" % (v(vACC + 8), v(vACC + 8)))
            for i in range(4): a.e("v_cvt_pk_bf16_f32 %s, %s, %s" % (v(vFR + i), v(vACC + 2 * i), v(vACC + 2 * i + 1)))
            a.e("v_add_f32 %s, 1.0, %s" % (v(vACC + 8), v(vACC + 8)))
            a.e("v_rcp_f32 %s, %s" % (v(vACC + 8), v(vACC + 8)))
            a.e("s_add_u32 s%d, s%d, 63" % (sB, sA))
            a.e("s_and_b32 s%d, s%d, 63" % (sB, sB))
            a.e("s_lshl_b32 s%d, s%d, 11" % (sB, sB))
            a.e("buffer_store_dwordx4 %s, %s, %s, s%d offen sc1" % (v(vFR, 4), v(vL16), srd(SKV), sB))
            a.e("s_lshl_b32 s%d, s%d, 7" % (sB, sA))
            a.e("s_add_u32 s%d, s%d, 0x%x" % (sB, sB, WS_G))
            a.e("s_mov_b32 exec_hi, 0")
            a.e("buffer_store_dword %s, %s, %s, s%d offen sc1" % (v(vACC + 8), v(vGA), srd(SWS), sB))
            a.e("s_mov_b64 exec, -1")
        else:
            for i in range(8): a.e("v_cvt_pk_bf16_f32 %s, %s, %s" % (v(vFR + i), v(vACC + 2 * i), v(vACC + 2 * i + 1)))
            a.e("v_bfe_u32 v2, v0, 4, 1")
            a.e("v_add_u32 v2, s%d, v2" % sA)
            a.e("v_and_b32 v2, 63, v2")
            a.e("v_lshl_add_u32 v2, v2, 11, %s" % v(vL16))
            for i in range(4): a.e("v_cndmask_b32 %s, %s, %s, %s" % (v(vFR + i), v(vFR + 4 + i), v(vFR + i), sp(sVM)))
            a.e("buffer_store_dwordx4 %s, v2, %s, 0 offen offset:1024 sc1" % (v(vFR, 4), srd(SKV)))
        a.e("s_branch L_lJ")
    chain("K")
    a.lab("L_lV")
    chain("V")
    a.lab("L_lB")
    a.vm = list(vm0)
    a.e("s_cmp_lg_u32 s%d, 14" % sM)
    a.e("s_cbranch_scc1 L_nozf")
    a.e("s_cmp_lg_u32 s%d, 4" % sW)
    a.e("s_cbranch_scc1 L_nozf")
    a.e("v_lshlrev_b32 v2, 7, v0")
    a.e("s_lshl_b32 s%d, s%d, 11" % (sA, sG))
    a.e("s_add_u32 s%d, s%d, 0x%x" % (sA, sA, WS_HFLAG))
    a.e("s_mov_b64 exec, 0xffff")
    a.e("buffer_store_dword %s, v2, %s, s%d offen sc1" % (v(vZERO), srd(SWS), sA))
    a.e("s_mov_b64 exec, -1")
    a.lab("L_nozf")
    for q in range(4):
        a.waitvm("c%d" % (2 * q + 1))
        a.e("s_barrier")
    a.lab("L_lJ")
    a.e("v_lshrrev_b32 v3, 2, v0")
    a.e("v_lshlrev_b32 v3, 10, v3")
    a.e("v_and_b32 v4, 3, v0")
    a.e("v_lshl_add_u32 v3, v4, 4, v3")
    a.e("s_lshl_b32 s%d, s%d, 14" % (sA, sW))
    a.e("s_lshl_b32 s%d, s%d, 6" % (sB, sHP))
    a.e("s_add_u32 s%d, s%d, s%d" % (sA, sA, sB))
    a.e("v_add_u32 %s, s%d, v3" % (v(vDQ), sA))
    a.e("s_xor_b32 s%d, s%d, 0x2000" % (sWH, sWH))
    a.e("s_xor_b32 s%d, s%d, 0x10000" % (sOLD, sOLD))
    a.wait0(lgkm=True)
    a.e("s_barrier")
    a.e("s_cmp_lg_u32 s%d, 0" % sW)
    a.e("s_cbranch_scc1 L_noat")
    a.e("s_mov_b64 exec, 1")
    a.e("buffer_atomic_add %s, off, %s, 0 sc1" % (v(vONE), srd(SDBG)))
    a.e("s_mov_b64 exec, -1")
    a.lab("L_noat")
    a.stamp(3)
    for c in range(8): xdma(c, sWH, sOLD)
    for p in range(4):
        a.e("s_add_u32 m0, s%d, 0x%x" % (sWK, LL_WQ + p * 8192))
        a.e("s_mov_b32 s%d, 0x%x" % (sA, p * 128 * 1024))
        a.e("buffer_load_dwordx4 %s, %s, s%d offen lds" % (v(vDQ), srd(SWQ), sA))
    setup_attn(a)
    if Opt.touch & 2:
        a.e("s_lshl_b32 s%d, s%d, 1" % (sA, sG))
        a.e("s_add_u32 s%d, s%d, s%d" % (sA, sA, sM))
        a.e("s_sub_u32 s%d, s%d, 14" % (sA, sA))
        a.e("s_lshl_b32 s%d, s%d, 3" % (sA, sA))
        a.e("s_add_u32 s%d, s%d, s%d" % (sA, sA, sW))
        a.e("v_lshlrev_b32 v2, 15, v0")
        a.e("s_lshl_b32 s%d, s%d, 7" % (sA, sA))
        a.e("buffer_load_dword %s, v2, %s, s%d offen" % (v(vPOLL), srd(SWO), sA))
        a.e("buffer_load_dword %s, v2, %s, s%d offen" % (v(vPOLL), srd(SWD), sA))
    a.e("s_lshl_b32 s%d, s%d, 16" % (sA, sHI))
    a.e("s_lshl_b32 s%d, s%d, 12" % (sB, sLO))
    a.e("s_add_u32 s%d, s%d, s%d" % (sA, sA, sB))
    a.e("v_add_u32 %s, s%d, %s" % (v(vXA), sA, v(vWA + 2)))
    for s in range(1, 4): a.e("v_xor_b32 %s, %d, %s" % (v(vXA + s), 32 * s, v(vXA)))
    a.e("s_lshl_b32 s%d, s%d, 14" % (sA, sHI))
    a.e("s_add_u32 s%d, s%d, 0x%x" % (sA, sA, LL_WQ))
    a.e("v_add_u32 %s, s%d, %s" % (v(vQA), sA, v(vQA)))
    a.e("s_waitcnt vmcnt(%d)" % (2 if Opt.touch & 2 else 0))
    a.e("s_barrier")
    def fr(k):
        b = vFR + 8 * (k % 4)
        return b, b + 4
    def reads(k):
        c, s = divmod(k, 4); x, w = fr(k)
        return [rd128(x, vXA + s, c * 16384), rdtr(w, vQA, k * 1024), rdtr(w + 2, vQA, k * 1024 + 256)]
    for k in range(2):
        for r in reads(k): a.e(r)
    for k in range(16):
        if k + 2 < 16:
            for r in reads(k + 2): a.e(r)
        a.e("s_waitcnt lgkmcnt(%d)" % (3 * min(2, 15 - k)))
        x, w = fr(k)
        a.e(mfma(vAQ, w, x, None if k == 0 else vAQ))
    spin_counter(a, "kvl", False)
    a.e("s_barrier")
    for s, t in kv_first_loads(a): a.e(s)
    a.wait0()
    a.stamp(4)
    a.e("s_branch L_join")

def gelu_tile(a, ti, scalar=False):
    acc = vACC + 16 * ti
    t = vFR
    o = vFR + 8 + 4 * ti
    pk = lambda r: v(r, 2)
    if scalar:
        for i in range(8): a.e("v_mul_f32 %s, %s, %s" % (v(t + i), v(acc + i), v(acc + i)))
        for i in range(8): a.e("v_fma_f32 %s, %s, %s, %s" % (v(t + i), v(t + i), v(vC0 + 1), v(vC0)))
        for i in range(8): a.e("v_mul_f32 %s, %s, %s" % (v(t + i), v(t + i), v(acc + i)))
        for i in range(8): a.e("v_exp_f32 %s, %s" % (v(t + i), v(t + i)))
        for i in range(8): a.e("v_add_f32 %s, 1.0, %s" % (v(t + i), v(t + i)))
        for i in range(8): a.e("v_rcp_f32 %s, %s" % (v(t + i), v(t + i)))
        for i in range(8): a.e("v_mul_f32 %s, %s, %s" % (v(acc + i), v(acc + i), v(acc + 8 + i)))
        for i in range(8): a.e("v_mul_f32 %s, %s, %s" % (v(acc + i), v(acc + i), v(t + i)))
    R4, R8 = (range(0), range(0)) if scalar else (range(4), range(8))
    for i in R4: a.e("v_pk_mul_f32 %s, %s, %s" % (pk(t + 2 * i), pk(acc + 2 * i), pk(acc + 2 * i)))
    for i in R4: a.e("v_pk_fma_f32 %s, %s, %s, %s op_sel:[0,1,0] op_sel_hi:[1,1,0]" % (pk(t + 2 * i), pk(t + 2 * i), pk(vC0), pk(vC0)))
    for i in R4: a.e("v_pk_mul_f32 %s, %s, %s" % (pk(t + 2 * i), pk(t + 2 * i), pk(acc + 2 * i)))
    for i in R8: a.e("v_exp_f32 %s, %s" % (v(t + i), v(t + i)))
    for i in R4: a.e("v_pk_add_f32 %s, %s, 1.0 op_sel_hi:[1,0]" % (pk(t + 2 * i), pk(t + 2 * i)))
    for i in R8: a.e("v_rcp_f32 %s, %s" % (v(t + i), v(t + i)))
    for i in R4: a.e("v_pk_mul_f32 %s, %s, %s" % (pk(acc + 2 * i), pk(acc + 2 * i), pk(acc + 8 + 2 * i)))
    for i in R4: a.e("v_pk_mul_f32 %s, %s, %s" % (pk(acc + 2 * i), pk(acc + 2 * i), pk(t + 2 * i)))
    for i in range(4): a.e("v_cvt_pk_bf16_f32 %s, %s, %s" % (v(o + i), v(acc + 2 * i), v(acc + 2 * i + 1)))
    aa, bb = ti >> 1, ti & 1
    a.vmop("buffer_store_dwordx4 %s, %s, %s, s%d offen offset:%d sc1" % (v(o, 4), v(vL16), srd(SWS), sD if bb else sHST, aa * 1024), "hst")

def gelu_head(a):
    a.e("s_bitcmp1_b32 s%d, 0" % sLO)
    a.e("s_cselect_b32 s%d, 0x%x, 0x%x" % (sD, (-112 * 1024) & 0xffffffff, 0))
    a.e("s_cselect_b32 s%d, 0, 0x%x" % (sC, 112 * 1024))
    a.e("s_add_u32 s%d, s%d, s%d" % (sD, sD, sC))
    a.e("s_add_u32 s%d, s%d, s%d" % (sD, sD, sHST))

def gelu_sub(a):
    if Opt.stagger and Opt.gsc:
        a.lab("L_geluA")
        gelu_head(a)
        for ti in range(Opt.gsc): gelu_tile(a, ti, True)
        a.e("s_branch L_gelu%d" % Opt.gsc)
    else:
        a.lab("L_geluA")
    a.lab("L_geluB")
    gelu_head(a)
    for ti in range(4):
        gelu_tile(a, ti)
        a.lab("L_gelu%d" % (ti + 1))
    a.e("s_setpc_b64 %s" % sp(sRET))

def Yseg(hset, toggle=False):
    out = []
    for t in range(2):
        S, Sn = vS + 16 * t, vS + 16 * (1 - t)
        K, V0, V1 = vKF + 4 * t, vV + 8 * t, vV + 8 * t + 4
        for j in range(8):
            out.append("v_exp_f32 %s, %s" % (v(vE + 2 * (j % 2)), v(S + 2 * j)))
            out.append("v_exp_f32 %s, %s" % (v(vE + 2 * (j % 2) + 1), v(S + 2 * j + 1)))
            jj = (j - 1) % 8
            out.append("v_cvt_pk_bf16_f32 %s, %s, %s" % (v(vP + jj), v(vE + 2 * (jj % 2)), v(vE + 2 * (jj % 2) + 1)))
            if j == 1: out.append(mfma(vO, V1, vP + 4, vO))
            if j == 3: out.append(mfma(Sn, K, vQ, None))
            if hset is None:
                if j == 7: out.append(mfma(vO, V0, vP, vO))
            else:
                if j == 5: out.append(mfma(vO, V0, vP, vO))
                if j == 6 and t == 1 and toggle:
                    out.append("v_xor_b32 %s, 0x4000, %s" % (v(vKVA), v(vKVA)))
                    out.append("v_xor_b32 %s, 0x8000, %s" % (v(vWDA), v(vWDA)))
                if j == 7: out.append(mfma(vD + 16 * t, vWF + 4 * t, vH + 4 * hset, vD + 16 * t))
    return out

def kv_reads(off):
    r = [rd128(vKF, vKVA, off), rd128(vKF + 4, vKVA, off + 2048), "s_mov_b64 exec, %s" % sp(sVM)]
    for t in range(2):
        r += [rd128(vV + 8 * t, vKVA, off + 2048 * t + 1024), rd128(vV + 8 * t + 4, vKVA, off + 2048 * t + 1280)]
    r.append("s_mov_b64 exec, -1")
    return r
def wd_reads(dst, addr, off):
    r = []
    for c in range(2):
        r += [rdtr(dst + 4 * c, addr, off + 512 * c), rdtr(dst + 4 * c + 2, addr, off + 512 * c + 1024)]
    return r

def attention(a, role):
    A = role == "A"
    def kvdma(u):
        a.vmop("s_add_u32 m0, s%d, 0x%x\ns_add_u32 s%d, s%d, 0x%x\nbuffer_load_dwordx4 %s, %s, s%d offen sc1 lds"
               % (sWK, L_KV + (u % 4) * 8192, sA, sWK, u * 8192, v(vL16), srd(SKV), sA), "kv%d" % u)
    def wddma(sg):
        a.vmop("s_add_u32 m0, s%d, 0x%x\ns_add_u32 s%d, s%d, 0x%x\nbuffer_load_dwordx4 %s, %s, s%d offen lds"
               % (sWK, L_WD + ((sg + 3) % 8) * 8192, sA, sWDOFF, sg * 16384, v(vWDV), srd(SWD), sA), "wd%d" % sg)
    def wodma(j):
        a.vmop("s_add_u32 m0, s%d, 0x%x\ns_add_u32 s%d, s%d, 0x%x\nbuffer_load_dwordx4 %s, %s, s%d offen lds"
               % (sWK, L_WO + j * 8192, sA, sB, j * 16384, v(vWDV), srd(SWO), sA), "wo")
    def hload(sg, dst):
        a.vmop("s_add_u32 s%d, s%d, 0x%x\nbuffer_load_dwordx4 %s, %s, %s, s%d offen sc1"
               % (sA, sHOFF, sg * 1024, v(dst, 4), v(vL16), srd(SWS), sA), "h%d" % sg)
    for n in range(11):
        if not A and n == 0: a.e("s_barrier")
        tags = []
        if A and n % 2 == 1: tags.append("kv%d" % ((n + 1) // 2))
        if not A and n % 2 == 0: tags.append("kv%d" % ((n + 2) // 2))
        if n == 2: tags.append("hst")
        if n == 10: tags.append("wd0")
        if n == 8 and A:
            a.e("s_cmp_lg_u32 s%d, 0" % sW)
            a.e("s_cbranch_scc1 L_hf_done")
            a.e("s_mov_b32 s%d, 0x4000" % sB)
            a.e("s_waitcnt vmcnt(2)")
            a.lab("L_hf_chk")
            a.e("v_cmp_ne_u32 vcc, 1, %s" % v(vPOLL))
            a.e("s_cbranch_vccz L_hf_done")
            a.e("s_sleep 2")
            a.e("buffer_load_dword %s, %s, %s, 0 offen sc1" % (v(vPOLL), v(vFLA), srd(SWS)))
            a.e("s_sub_u32 s%d, s%d, 1" % (sB, sB))
            a.e("s_cmp_lg_u32 s%d, 0" % sB)
            a.e("s_waitcnt vmcnt(0)")
            a.e("s_cbranch_scc1 L_hf_chk")
            a.lab("L_hf_done")
        a.waitvm(tags)
        if n == 3 and not A:
            a.e("s_cmp_ge_u32 s%d, 14" % sM)
            a.e("s_cbranch_scc1 L_nohf")
            a.e("s_cmp_lg_u32 s%d, 4" % sW)
            a.e("s_cbranch_scc1 L_nohf")
            a.e("s_lshl_b32 s%d, s%d, 4" % (sA, sG))
            a.e("s_add_u32 s%d, s%d, s%d" % (sA, sA, sM))
            a.e("s_lshl_b32 s%d, s%d, 7" % (sA, sA))
            a.e("s_add_u32 s%d, s%d, 0x%x" % (sA, sA, WS_HFLAG))
            a.e("s_mov_b64 exec, 1")
            a.e("buffer_store_dword %s, off, %s, s%d sc1" % (v(vONE), srd(SWS), sA))
            a.e("s_mov_b64 exec, -1")
            a.lab("L_nohf")
        for r in kv_reads((n % 8) * 4096): a.e(r)
        if n == 7 and A:
            a.e("s_cmp_lg_u32 s%d, 0" % sW)
            a.e("s_cbranch_scc1 L_hf_nol")
            a.e("buffer_load_dword %s, %s, %s, 0 offen sc1" % (v(vPOLL), v(vFLA), srd(SWS)))
            a.lab("L_hf_nol")
        if n == 0:
            kvdma(2); kvdma(3)
            a.e("s_lshr_b32 s%d, s%d, 1" % (sC, sW))
            a.e("s_mul_i32 s%d, s%d, %d" % (sWDOFF, sC, 448 * 1024))
            a.e("s_lshl_b32 s%d, s%d, 1" % (sA, sT))
            a.e("s_and_b32 s%d, s%d, 1" % (sB, sW))
            a.e("s_add_u32 s%d, s%d, s%d" % (sA, sA, sB))
            a.e("s_mul_i32 s%d, s%d, 112" % (sA, sA))
            a.e("s_mul_i32 s%d, s%d, 28" % (sB, sC))
            a.e("s_add_u32 s%d, s%d, s%d" % (sA, sA, sB))
            a.e("s_lshl_b32 s%d, s%d, 10" % (sA, sA))
            a.e("s_add_u32 s%d, s%d, 0x%x" % (sHOFF, sA, WS_HF))
        if (A and n % 2 == 1 and n >= 3): kvdma((n + 5) // 2)
        if (not A and n % 2 == 0 and n >= 2): kvdma((n + 6) // 2)
        if 1 <= n <= 3:
            a.e("s_lshr_b32 s%d, s%d, 1" % (sB, sW))
            a.e("s_lshl_b32 s%d, s%d, 17" % (sB, sB))
            for j in {1: (0, 1, 2), 2: (3, 4, 5), 3: (6, 7)}[n]: wodma(j)
        if n >= 4: wddma(n - 4)
        if n == 9:
            hload(0, vH + 12); hload(1, vH + 0); hload(24, vH + 16); hload(25, vH + 20)
        if n == 10:
            hload(26, vH + 24); hload(27, vH + 28); hload(2, vH + 4)
        a.e("s_waitcnt lgkmcnt(0)")
        a.e("s_call_b64 %s, L_Y%s" % (sp(sRET), role))
    a.e("s_add_u32 s%d, s%d, 0x%x" % (sHOFF, sHOFF, 3 * 1024))
    a.e("s_add_u32 s%d, s%d, 0x%x" % (sWDOFF, sWDOFF, 7 * 16384))
    a.e("s_mov_b32 s%d, 0x%x" % (sM0WD, ((7 + 3) % 8) * 8192))
    u0 = 8 if A else 9
    a.e("s_add_u32 s%d, s%d, 0x%x" % (sKVOFF, sWK, u0 * 8192))
    a.e("s_mov_b32 s%d, 6" % sCNT)
    a.waitvm(["h0", "wd1", "kv6"] if A else ["h0", "wd1"])
    a.e("s_branch L_loop%s_in" % role)
    a.l.append(".p2align 6")
    a.lab("L_loop%s" % role)
    for p in range(4):
        a.e("s_waitcnt vmcnt(5)")
        if p == 3: a.lab("L_loop%s_in" % role)
        for r in kv_reads(p * 4096): a.e(r)
        for r in wd_reads(vWF, vWDA, p * 8192): a.e(r)
        a.e("buffer_load_dwordx4 %s, %s, %s, s%d offen sc1" % (v(vH + 4 * ((p + 3) % 4), 4), v(vL16), srd(SWS), sHOFF))
        a.e("s_add_u32 m0, s%d, s%d" % (sWK, sM0WD))
        a.e("s_add_u32 s%d, s%d, 0x400" % (sHOFF, sHOFF))
        a.e("buffer_load_dwordx4 %s, %s, s%d offen lds" % (v(vWDV), srd(SWD), sWDOFF))
        a.e("s_add_u32 s%d, s%d, 0x4000" % (sWDOFF, sWDOFF))
        a.e("s_add_u32 s%d, s%d, 0x2000" % (sM0WD, sM0WD))
        a.e("s_and_b32 s%d, s%d, 0xffff" % (sM0WD, sM0WD))
        if (p % 2 == 1) == A:
            a.e("s_and_b32 s%d, s%d, 0x7fff" % (sA, sKVOFF))
            a.e("s_add_u32 m0, s%d, 0x%x" % (sA, L_KV))
            a.e("s_nop 0")
            a.e("buffer_load_dwordx4 %s, %s, s%d offen sc1 lds" % (v(vL16), srd(SKV), sKVOFF))
            a.e("s_add_u32 s%d, s%d, 0x2000" % (sKVOFF, sKVOFF))
        if p == 3:
            a.e("s_sub_u32 s%d, s%d, 1" % (sCNT, sCNT))
            a.e("s_cmp_lg_u32 s%d, 0" % sCNT)
        a.e("s_waitcnt lgkmcnt(0)")
        if A: a.e("s_barrier")
        for x in Yseg(p, toggle=(p == 3)): a.e(x)
        if not A:
            if p == 3: a.e("s_cbranch_scc0 L_tail")
            a.e("s_barrier")
    a.e(("s_cbranch_scc1 L_loop%s" if A else "s_branch L_loop%s") % role)

def ysubs(a):
    for role in "AB":
        a.l.append(".p2align 6")
        a.lab("L_Y%s" % role)
        if role == "A": a.e("s_barrier")
        for x in Yseg(None): a.e(x)
        if role == "B": a.e("s_barrier")
        a.e("s_setpc_b64 %s" % sp(sRET))

def transition(a):
    a.lab("L_join")
    a.e("s_lshl_b32 s%d, s%d, 11" % (sA, sW))
    a.e("s_add_u32 s%d, s%d, 0x%x" % (sA, sA, L_QX))
    a.e("v_add_u32 v2, s%d, %s" % (sA, v(vL16)))
    a.e("v_xor_b32 v3, 0x2000, v2")
    a.e("s_cmp_lg_u32 s%d, 0" % sHI)
    a.e("s_cbranch_scc1 L_trB")
    vm0 = list(a.vm)
    for role in "AB":
        a.vm = list(vm0)
        A = role == "A"
        if not A: a.lab("L_trB")
        keep, send = (vAQ, vAQ + 8) if A else (vAQ + 8, vAQ)
        def qfin():
            a.e("s_waitcnt lgkmcnt(0)")
            for i in range(4): a.e("v_pk_add_f32 %s, %s, %s" % (v(keep + 2 * i, 2), v(keep + 2 * i, 2), v(send + 2 * i, 2)))
            for i in range(4): a.e("v_cvt_pk_bf16_f32 %s, %s, %s" % (v(vQ + i), v(keep + 2 * i), v(keep + 2 * i + 1)))
        def gelu():
            a.e("s_cmp_ge_u32 s%d, 14" % sM)
            a.e("s_cbranch_scc1 L_nog%s" % role)
            a.e("s_call_b64 %s, L_gelu%s" % (sp(sRET), role))
            a.vm += ["hst"] * 4
            a.lab("L_nog%s" % role)
        a.e("ds_write_b128 v2, %s" % v(send, 4))
        a.e("ds_write_b128 v2, %s offset:1024" % v(send + 4, 4))
        if Opt.stagger:
            if A:
                a.e("s_setprio 1")
                gelu()
            a.waitvm(["k0", "kv0", "kv1"], lgkm=True)
            a.e("s_barrier")
            a.e(rd128(send, 3, 0))
            a.e(rd128(send + 4, 3, 1024))
            if not A: gelu()
            qfin()
            a.e("s_nop 1")
        else:
            a.e("s_waitcnt lgkmcnt(0)")
            a.e("s_barrier")
            a.e(rd128(send, 3, 0))
            a.e(rd128(send + 4, 3, 1024))
            if A:
                a.e("s_setprio 1")
                gelu(); qfin()
                a.waitvm(["k0", "kv0", "kv1"])
                a.e("s_barrier")
            else:
                a.waitvm(["k0", "kv0", "kv1"], lgkm=True)
                a.e("s_barrier")
                gelu(); qfin()
                a.e("s_nop 1")
        a.e(mfma(vS, vK0, vQ, None))
        a.stamp(5)
        attention(a, role)
        if A: a.e("s_branch L_tail")

def tail(a):
    a.lab("L_tail")
    a.e("v_cvt_pk_bf16_f32 %s, %s, %s" % (v(vP + 7), v(vE + 2), v(vE + 3)))
    a.stamp(6)
    a.e("s_setprio 0")
    a.e("s_mov_b32 s%d, 0x%x" % (sC, f2u(2.0 ** -16)))
    a.e(mfma(vO, vV1L, vP + 4, vO))
    a.e("s_mov_b32 s%d, 0x%x" % (sD, f2u(2.0 ** 100)))
    a.e("s_nop 10")
    t = vFR
    a.e("v_rcp_f32 %s, %s" % (v(t + 2), v(vO + 8)))
    a.e("v_pk_mul_f32 %s, %s, 0 op_sel_hi:[1,0]" % (v(t, 2), v(vO, 2)))
    for i in range(1, 4): a.e("v_pk_fma_f32 %s, %s, 0, %s op_sel_hi:[1,0,1]" % (v(t, 2), v(vO + 2 * i, 2), v(t, 2)))
    a.e("v_add_f32 %s, %s, %s" % (v(t), v(t), v(t + 1)))
    a.e("v_add_f32 %s, %s, %s" % (v(t), v(t), v(vO + 8)))
    a.e("v_cmp_nle_f32 vcc, s%d, %s" % (sC, v(t)))
    a.e("v_cmp_nge_f32 %s, s%d, %s" % (sp(sTMPP), sD, v(t)))
    a.e("s_or_b64 vcc, vcc, %s" % sp(sTMPP))
    a.e("s_branch L_fb" if Opt.force_fb else "s_cbranch_scc1 L_fb")
    a.lab("L_fbret")
    a.e("v_mul_f32 %s, %s, %s" % (v(t + 2), v(t + 2), v(vGP)))
    for i in range(4): a.e("v_pk_mul_f32 %s, %s, %s op_sel_hi:[1,0]" % (v(vO + 2 * i, 2), v(vO + 2 * i, 2), v(t + 2, 2)))
    for i in range(4): a.e("v_cvt_pk_bf16_f32 %s, %s, %s" % (v(vP + i), v(vO + 2 * i), v(vO + 2 * i + 1)))
    for i in range(4): a.e("v_min_u32 %s, -2, %s" % (v(vP + i), v(vP + i)))
    a.e("buffer_store_dwordx4 %s, %s, %s, s%d offen sc1" % (v(vP, 4), v(vL16), srd(SWS), sOST))
    a.e("s_waitcnt vmcnt(1)")
    a.e("s_barrier")
    hreg = {21: vH + 0, 22: vH + 4, 23: vH + 8, 24: vH + 16, 25: vH + 20, 26: vH + 24, 27: vH + 28}
    wf = [vFR, vFR + 8, vFR + 16]
    for i in range(2):
        for r in wd_reads(wf[i], vWDA, i * 8192): a.e(r)
    for i in range(7):
        if i + 2 < 7:
            for r in wd_reads(wf[(i + 2) % 3], vWDA, (i + 2) * 8192): a.e(r)
        a.e("s_waitcnt lgkmcnt(%d)" % (4 * min(2, 6 - i)))
        for c in range(2): a.e(mfma(vD + 16 * c, wf[i % 3] + 4 * c, hreg[21 + i], vD + 16 * c))
    a.e("s_barrier")
    a.e("v_add_u32 %s, 0x%x, %s" % (v(vWDA), L_WO, v(vWDA)))
    a.e("v_sub_f32 %s, 1.0, %s" % (v(vGC), v(vGC)))
    a.e("s_waitcnt vmcnt(0)")
    a.stamp(7)
    for j in range(8):
        if j == 4: a.e("s_add_u32 s%d, s%d, 0x1000" % (sA, sOLD))
        a.e("buffer_load_dwordx4 %s, %s, %s, s%d offen offset:%d sc1" % (v(vS + 4 * j, 4), v(vL16), srd(SWS), sOLD if j < 4 else sA, (j % 4) * 1024))
    for i in range(2):
        for r in wd_reads(wf[i], vWDA, i * 8192): a.e(r)
    for i in range(16): a.e("v_pk_mul_f32 %s, %s, %s op_sel:[0,1] op_sel_hi:[1,1]" % (v(vD + 2 * i, 2), v(vD + 2 * i, 2), v(vGP, 2)))
    aw = vXA
    ar = vWA
    a.e("v_and_b32 v2, 31, v0")
    a.e("v_lshrrev_b32 v3, 5, v0")
    a.e("v_and_b32 v4, 7, v0")
    a.e("v_xor_b32 v3, v3, v4")
    a.e("v_lshlrev_b32 v3, 4, v3")
    a.e("v_lshl_add_u32 v3, v2, 8, v3")
    a.e("s_and_b32 s%d, s%d, 1" % (sB, sW))
    a.e("s_lshl_b32 s%d, s%d, 15" % (sB, sB))
    a.e("s_lshr_b32 s%d, s%d, 1" % (sC, sW))
    a.e("s_lshl_b32 s%d, s%d, 13" % (sD, sC))
    a.e("s_add_u32 s%d, s%d, s%d" % (sD, sD, sB))
    a.e("v_add_u32 %s, s%d, v3" % (v(aw), sD))
    for j in range(1, 4): a.e("v_xor_b32 %s, %d, %s" % (v(aw + j), 32 * j, v(aw)))
    a.e("v_lshrrev_b32 v2, 3, v0")
    a.e("v_lshlrev_b32 v3, 1, v4")
    a.e("v_xor_b32 v3, v3, v2")
    a.e("v_lshlrev_b32 v3, 4, v3")
    a.e("v_lshl_add_u32 v3, v2, 8, v3")
    a.e("s_lshl_b32 s%d, s%d, 11" % (sD, sC))
    a.e("s_add_u32 s%d, s%d, s%d" % (sD, sD, sB))
    a.e("v_add_u32 %s, s%d, v3" % (v(ar), sD))
    a.e("v_xor_b32 %s, 16, %s" % (v(ar + 1), v(ar)))
    a.e("v_lshlrev_b32 v4, 4, v4")
    a.e("v_lshl_add_u32 %s, v2, 10, v4" % v(ar + 2))
    a.e("s_lshl_b32 s%d, s%d, 13" % (sC, sC))
    a.e("s_add_u32 s%d, s%d, s%d" % (sB, sB, sC))
    a.e("s_lshl_b32 s%d, s%d, 16" % (sC, sT))
    a.e("s_add_u32 s%d, s%d, s%d" % (sB, sB, sC))
    a.e("s_lshl_b32 s%d, s%d, 7" % (sC, sCB))
    a.e("s_add_u32 s%d, s%d, s%d" % (sCNT, sB, sC))
    a.e("s_mov_b32 s%d, 0x2000" % sB)
    for j in range(8):
        o = vS + 4 * j
        if j + 2 < 8:
            for r in wd_reads(wf[(j + 2) % 3], vWDA, (j + 2) * 8192): a.e(r)
        a.lab("L_ochk%d" % j)
        a.e("s_waitcnt vmcnt(%d)" % (7 - j))
        a.e("v_max3_u32 v2, %s, %s, %s" % (v(o), v(o + 1), v(o + 2)))
        a.e("v_max_u32 v2, v2, %s" % v(o + 3))
        a.e("v_cmp_eq_u32 vcc, -1, v2")
        a.e("s_cbranch_vccnz L_ore%d" % j)
        a.lab("L_ook%d" % j)
        a.e("s_waitcnt lgkmcnt(%d)" % (4 * min(2, 7 - j)))
        for c in range(2): a.e(mfma(vD + 16 * c, wf[j % 3] + 4 * c, o, vD + 16 * c))
    a.stamp(8)
    a.e("s_nop 10")
    for c in range(2):
        for j in range(4):
            a.e("ds_write_b128 %s, %s offset:%d" % (v(aw + j), v(vD + 16 * c + 4 * j, 4), 128 * c))
    a.e("s_waitcnt lgkmcnt(0)")
    a.e("s_barrier")
    for p in range(4):
        for h in range(2): a.e(rd128(vS + 8 * p + 4 * h, ar + h, p * 8192))
    for p in range(1, 4):
        a.e("s_waitcnt lgkmcnt(%d)" % (6 - 2 * p))
        for i in range(4): a.e("v_pk_add_f32 %s, %s, %s" % (v(vS + 2 * i, 2), v(vS + 2 * i, 2), v(vS + 8 * p + 2 * i, 2)))
    for i in range(4): a.e("v_cvt_pk_bf16_f32 %s, %s, %s" % (v(vP + i), v(vS + 2 * i), v(vS + 2 * i + 1)))
    a.e("buffer_store_dwordx4 %s, %s, %s, s%d offen %s" % (v(vP, 4), v(ar + 2), srd(SOUT), sCNT, Opt.out_pol))
    if Opt.pin == 9:
        a.e("s_waitcnt vmcnt(0)")
        a.stamp(9)
    if Opt.diag:
        a.e("s_waitcnt vmcnt(0)")
        a.stamp(9)
        a.e("s_mov_b32 s%d, s%d" % (sSTAMP + 3, sSTAMP))
        a.e("s_mov_b32 s%d, s%d" % (sSTAMP, sB))
        a.e("s_getreg_b32 s%d, hwreg(HW_REG_XCC_ID)" % (sSTAMP + 1))
        for i in range(20): a.e("v_mov_b32 %s, s%d" % (v(vS + i), sSTAMP + i))
        a.e("s_lshl_b32 s%d, s2, 3" % sA)
        a.e("s_add_u32 s%d, s%d, s%d" % (sA, sA, sW))
        a.e("s_lshl_b32 s%d, s%d, 7" % (sA, sA))
        a.e("s_add_u32 s%d, s%d, 0x%x" % (sA, sA, WS_STAMP))
        a.e("s_mov_b64 exec, 1")
        for i in range(5): a.e("buffer_store_dwordx4 %s, off, %s, s%d offset:%d" % (v(vS + 4 * i, 4), srd(SWS), sA, 16 * i))
    a.lab("L_end")
    a.e("s_endpgm")
    for j in range(8):
        a.lab("L_ore%d" % j)
        a.e("s_sub_u32 s%d, s%d, 1" % (sB, sB))
        a.e("s_cbranch_scc1 L_ogive%d" % j)
        a.e("s_waitcnt vmcnt(0)")
        for i in range(j, 8):
            a.e("buffer_load_dwordx4 %s, %s, %s, s%d offen offset:%d sc1" % (v(vS + 4 * i, 4), v(vL16), srd(SWS), sOLD if i < 4 else sA, (i % 4) * 1024))
        a.e("s_branch L_ochk%d" % j)
        a.lab("L_ogive%d" % j)
        a.e("s_mov_b32 s%d, 0" % sB)
        a.e("s_branch L_ook%d" % j)

def fallback(a):
    a.lab("L_fb")
    m = vFR + 4
    a.e("v_mov_b32 %s, 0xff800000" % v(m))
    a.e("s_mov_b32 s%d, 0" % sA)
    a.lab("L_fb1")
    a.e("buffer_load_dwordx4 %s, %s, %s, s%d offen sc1" % (v(vKF, 4), v(vL16), srd(SKV), sA))
    a.e("s_waitcnt vmcnt(0)")
    a.e(mfma(vS, vKF, vQ, None))
    a.e("s_add_u32 s%d, s%d, 2048" % (sA, sA))
    a.e("s_nop 11")
    for i in range(8): a.e("v_max3_f32 %s, %s, %s, %s" % (v(m), v(m), v(vS + 2 * i), v(vS + 2 * i + 1)))
    a.e("s_cmp_lt_u32 s%d, 0x20000" % sA)
    a.e("s_cbranch_scc1 L_fb1")
    a.e("v_mov_b32 %s, %s" % (v(m + 1), v(m)))
    a.e("s_nop 1")
    a.e("v_permlane32_swap_b32 %s, %s" % (v(m), v(m + 1)))
    a.e("s_nop 1")
    a.e("v_max_f32 %s, %s, %s" % (v(m), v(m), v(m + 1)))
    for i in range(16): a.e("v_sub_f32 %s, 0, %s" % (v(vS + 16 + i), v(m)))
    for i in range(16): a.e("v_mov_b32 %s, 0" % v(vO + i))
    a.e("s_mov_b32 s%d, 0" % sA)
    a.lab("L_fb2")
    a.e("s_add_u32 s%d, s%d, 0x%x" % (sB, sA, 63 * 2048))
    a.e("s_and_b32 s%d, s%d, 0x1ffff" % (sB, sB))
    a.e("buffer_load_dwordx4 %s, %s, %s, s%d offen sc1" % (v(vKF, 4), v(vL16), srd(SKV), sB))
    a.e("s_add_u32 s%d, s%d, 2048" % (sB, sA))
    a.e("s_and_b32 s%d, s%d, 0x1ffff" % (sB, sB))
    a.e("s_mov_b64 exec, %s" % sp(sVM))
    a.e("buffer_load_dwordx4 %s, %s, %s, s%d offen offset:1024 sc1" % (v(vV, 4), v(vL16), srd(SKV), sA))
    a.e("buffer_load_dwordx4 %s, %s, %s, s%d offen offset:1280 sc1" % (v(vV + 4, 4), v(vL16), srd(SKV), sB))
    a.e("s_mov_b64 exec, -1")
    a.e("s_waitcnt vmcnt(0)")
    a.e(mfma(vS, vKF, vQ, vS + 16))
    a.e("s_add_u32 s%d, s%d, 2048" % (sA, sA))
    a.e("s_nop 11")
    for i in range(16): a.e("v_exp_f32 %s, %s" % (v(vS + i), v(vS + i)))
    for i in range(8): a.e("v_cvt_pk_bf16_f32 %s, %s, %s" % (v(vP + i), v(vS + 2 * i), v(vS + 2 * i + 1)))
    a.e("s_nop 1")
    a.e(mfma(vO, vV, vP, vO))
    a.e(mfma(vO, vV + 4, vP + 4, vO))
    a.e("s_cmp_lt_u32 s%d, 0x20000" % sA)
    a.e("s_cbranch_scc1 L_fb2")
    a.e("s_nop 11")
    a.e("v_rcp_f32 %s, %s" % (v(vFR + 2), v(vO + 8)))
    a.e("s_branch L_fbret")

def build():
    a = Asm()
    prologue(a)
    phase1_F(a)
    transition(a)
    tail(a)
    ysubs(a)
    vm = a.vm; gelu_sub(a); a.vm = vm
    phase1_L(a)
    fallback(a)
    a.lab("L_codeend")
    head = open("cdna_kernels/%s.s.ref" % NAME).read().split("\n")
    hdr = [l for l in head if l.startswith(";") and "@launch" not in l and "Override" not in l and "grid=" not in l]
    out = hdr + ["; @launch grid=(256,1,1) block=(512,1,1) lds=%d" % LDS_BYTES,
                 '.amdgcn_target "amdgcn-amd-amdhsa--gfx950"', ".text", ".globl %s_kernel" % NAME, ".p2align 8",
                 ".type %s_kernel,@function" % NAME,
                 ".set CODE_PF_MAX, L_codeend - L_nopf - 4" if Opt.code_pf else "",
                 "%s_kernel:" % NAME]
    out += ["; mapmode %d" % Opt.mapmode, "; xrot %d" % Opt.xrot]
    out += a.l
    out += ['.section .rodata,"a"', ".p2align 6", ".amdhsa_kernel %s_kernel" % NAME,
            "  .amdhsa_next_free_vgpr %d" % NV, "  .amdhsa_next_free_sgpr 102", "  .amdhsa_accum_offset 256",
            "  .amdhsa_group_segment_fixed_size 0", "  .amdhsa_kernarg_size 104", "  .amdhsa_user_sgpr_count 2",
            "  .amdhsa_user_sgpr_kernarg_segment_ptr 1", "  .amdhsa_system_sgpr_workgroup_id_x 1", ".end_amdhsa_kernel", ""]
    return "\n".join(out)

if __name__ == "__main__":
    path = sys.argv[1]
    for kv in sys.argv[2:]:
        k, val = kv.split("=")
        cur = getattr(Opt, k)
        setattr(Opt, k, val if isinstance(cur, str) else type(cur)(int(val)))
    open(path, "w").write(build())
```

```python
import sys, struct, math

NAME = "gated_mix__grouped_kv_mqa__geglu_ffn__prompt"

class Opt:
    diag = False
    mapmode = 1
    force_fb = False
    out_pol = ""
    code_pf = True
    xrot = 0
    npre = 7
    stagger = 1
    npd = 3
    kdiag = 0
    fillpre = 60
    fillper = 6
    gsc = 3
    xmask = 1
    ntx = 0
    touch = 2
    rotg = 0
    rotm = 0
    startbar = 1
    pvz = 1
    pin = -1
    pin_ns = 60000

def f2u(x): return struct.unpack("<I", struct.pack("<f", x))[0]

WS_KV = 0
WS_G = 128 * 1024
WS_HFLAG = 192 * 1024
WS_OF = 1 << 20
WS_HF = 4 << 20
WS_STAMP = 12 << 20
WS_SIZE = 16 << 20
K1 = 1024
L_G, L_U, L_X, L_WQ = 0, 48 * K1, 96 * K1, 144 * K1
L_QX = 32 * K1
L_WD, L_WO, L_KV = 0, 64 * K1, 128 * K1
LL_X, LL_W, LL_GATE, LL_WQ = 0, 128 * K1, 144 * K1, 128 * K1
LDS_BYTES = 160 * K1

SX, SWG, SWU, SWQ, SWS, SWD, SWO, SOUT, SDBG, SWKV, SGATE, SKV = 4, 8, 12, 16, 20, 24, 28, 32, 36, 40, 44, 64
SWV = 72
sTMPP = 48
sW, sHI, sLO, sG, sM, sT, sCB = 50, 51, 52, 53, 54, 55, 56
sWK = 57
sWH = 58
sK64 = 59
sVM = 60
sRET = 62
sA, sB, sC, sD = 68, 69, 70, 71
sOFFW, sOFFQ, sCH, sXP = 72, 73, 74, 75
sHOFF, sWDOFF, sKVOFF, sM0WD, sM0KV, sCNT = 72, 73, 74, 75, 76, 77
sOST, sOLD, sHST = 78, 79, 80
sHP = 81
sSTAMP = 82

def srd(b): return "s[%d:%d]" % (b, b + 3)
def sp(b): return "s[%d:%d]" % (b, b + 1)
def v(b, n=1): return "v%d" % b if n == 1 else "v[%d:%d]" % (b, b + n - 1)

vL16 = 1
vT0, vT1, vT2, vT3 = 2, 3, 4, 5
vGP, vGC = 6, 7
vKVA = 8
vWDA = 9
vWDV = 10
vONE = 11
vZERO = 12
vFLA = 13
vPOLL = 14
vGA = 15
vQ = 16
vK0 = 20
vV1L = 24
vE = 28
vP = 32
vV = 40
vO = 56
vD = 72
vACC = 104
vS = 104
vH = 136
vAQ = 168
vKF = 168
vWF = 176
vFR = 184
vXA = 224
vWA = 232
vQA = 236
vDX, vDG, vDU, vDQ = 237, 238, 239, 240
vC0 = 242
NV = 256

class Asm:
    def __init__(self):
        self.l = []
        self.vm = []
        self.nstamp = 0
    def e(self, s):
        for x in s.split("\n"):
            x = x.strip()
            if x: self.l.append("    " + x)
    def lab(self, s): self.l.append(s + ":")
    def vmop(self, s, tag):
        self.e(s); self.vm.append(tag)
    def vmn(self, tags):
        if isinstance(tags, str): tags = [tags]
        last = -1
        for i, t in enumerate(self.vm):
            if t in tags: last = i
        return None if last < 0 else len(self.vm) - 1 - last
    def waitvm(self, tags, lgkm=False):
        n = self.vmn(tags)
        if n is None:
            if lgkm: self.e("s_waitcnt lgkmcnt(0)")
            return
        assert n < 64
        self.e("s_waitcnt vmcnt(%d)%s" % (n, " lgkmcnt(0)" if lgkm else ""))
        self.vm = self.vm[len(self.vm) - n:] if n else []
    def wait0(self, lgkm=False):
        self.e("s_waitcnt vmcnt(0)%s" % (" lgkmcnt(0)" if lgkm else "")); self.vm = []
    def stamp(self, i, real=False):
        if Opt.pin == i:
            self.nstamp += 1
            self.e("s_waitcnt lgkmcnt(0)")
            self.e("s_cselect_b32 s%d, 1, 0" % (sSTAMP + 5))
            self.lab("L_pin%d" % self.nstamp)
            self.e("s_memrealtime s[0:1]")
            self.e("s_waitcnt lgkmcnt(0)")
            self.e("s_sub_u32 s0, s0, s%d" % sSTAMP)
            self.e("s_cmp_lt_u32 s0, %d" % (Opt.pin_ns // 10))
            self.e("s_cbranch_scc1 L_pin%d" % self.nstamp)
            self.e("s_cmp_lg_u32 s%d, 0" % (sSTAMP + 5))
        if Opt.diag and not Opt.kdiag:
            self.e("s_waitcnt lgkmcnt(0)")
            self.e("s_memtime %s" % sp(sSTAMP + 2 * i))
            self.e("s_memrealtime s[0:1]")
            self.e("s_waitcnt lgkmcnt(0)")
            self.e("s_mov_b32 s%d, s0" % (sSTAMP + 2 * i + 1))

def kstamp(a, i):
    if Opt.diag and Opt.kdiag: a.e("s_memtime %s" % sp(sSTAMP + 2 * i))

def mfma(d, a, b, c):
    return "v_mfma_f32_32x32x16_bf16 %s, %s, %s, %s" % (v(d, 16), v(a, 4), v(b, 4), "0" if c is None else v(c, 16))
def rd128(d, a, off):
    assert 0 <= off < 65536
    return "ds_read_b128 %s, %s offset:%d" % (v(d, 4), v(a), off)
def rdtr(d, a, off):
    assert 0 <= off < 65536
    return "ds_read_b64_tr_b16 %s, %s offset:%d" % (v(d, 2), v(a), off)

def interleave(mf, fill, per=2):
    out = []
    fill = list(fill)
    for i, m in enumerate(mf):
        out.append(m)
        if i < len(mf) - 1:
            out += fill[:per]; fill = fill[per:]
    return out + fill

def srd_words(a, regs):
    sizes = {SX: 2048 * 1024, SWG: 512 * 3584, SWU: 512 * 3584, SWQ: 512 * 1024, SWS: WS_SIZE, SWKV: 16384, SWV: 16384,
             SGATE: 1024, SWD: 1792 * 1024, SWO: 512 * 1024, SOUT: 2048 * 1024, SDBG: 256, SKV: 128 * 1024}
    for reg in regs:
        a.e("s_mov_b32 s%d, 0x%x" % (reg + 2, sizes[reg]))
        a.e("s_mov_b32 s%d, 0x20000" % (reg + 3))

def prologue(a):
    a.e("s_cmp_ge_u32 s2, 256")
    a.e("s_cbranch_scc1 L_end")
    for reg, off in ((SX, 0), (SWG, 48), (SWU, 56), (SWQ, 8), (SWS, 96), (SWKV, 16), (sTMPP, 24), (SGATE, 72),
                     (SWD, 64), (SWO, 32), (SOUT, 80), (SDBG, 88), (SKV, 96)):
        a.e("s_load_dwordx2 %s, s[0:1], %d" % (sp(reg), off))
    if Opt.diag or Opt.pin >= 0:
        a.e("s_memrealtime %s" % sp(sSTAMP))
        a.e("s_memtime %s" % sp(sSTAMP + 2))
    a.e("v_lshrrev_b32 v2, 6, v0")
    a.e("v_and_b32 v0, 63, v0")
    a.e("v_readfirstlane_b32 s%d, v2" % sW)
    a.e("v_lshlrev_b32 %s, 4, v0" % v(vL16))
    srd_words(a, [SX, SWQ])
    a.e("s_and_b32 s%d, s2, 7" % sA)
    a.e("s_lshr_b32 s%d, s2, 3" % sB)
    a.e("s_lshl_b32 s%d, s%d, 2" % (sT, sA))
    a.e("s_and_b32 s%d, s%d, 3" % (sD, sB))
    a.e("s_add_u32 s%d, s%d, s%d" % (sT, sT, sD))
    a.e("s_lshr_b32 s%d, s%d, 2" % (sCB, sB))
    if Opt.xrot:
        a.e("s_add_u32 s%d, s%d, %d" % (sA, sA, Opt.xrot))
        a.e("s_and_b32 s%d, s%d, 7" % (sA, sA))
    if Opt.mapmode == 0:
        a.e("s_lshl_b32 s%d, s%d, 1" % (sG, sA))
        a.e("s_and_b32 s%d, s%d, 1" % (sC, sB))
        a.e("s_add_u32 s%d, s%d, s%d" % (sG, sG, sC))
        a.e("s_lshr_b32 s%d, s%d, 1" % (sM, sB))
        a.e("s_mov_b32 s%d, s%d" % (sHP, sM))
    elif Opt.mapmode in (1, 3):
        a.e("s_and_b32 s%d, s%d, 1" % (sG, sA))
        a.e("s_lshl_b32 s%d, s%d, 3" % (sG, sG))
        a.e("s_and_b32 s%d, s%d, 7" % (sC, sB))
        a.e("s_add_u32 s%d, s%d, s%d" % (sG, sG, sC))
        a.e("s_lshr_b32 s%d, s%d, 1" % (sA, sA))
        a.e("s_lshl_b32 s%d, s%d, 2" % (sHP, sA))
        a.e("s_lshr_b32 s%d, s%d, 3" % (sC, sB))
        a.e("s_add_u32 s%d, s%d, s%d" % (sHP, sHP, sC))
        if Opt.mapmode == 1:
            a.e("s_mov_b32 s%d, s%d" % (sM, sHP))
        else:
            a.e("s_sub_u32 s%d, s%d, s%d" % (sM, sHP, sA))
            a.e("s_lshr_b32 s%d, s%d, 1" % (sB, sB))
            a.e("s_and_b32 s%d, s%d, 2" % (sB, sB))
            a.e("s_add_u32 s%d, s%d, s%d" % (sB, sB, sA))
            a.e("s_and_b32 s%d, s%d, 3" % (sB, sB))
            a.e("s_add_u32 s%d, s%d, 12" % (sB, sB))
            a.e("s_cmp_eq_u32 s%d, 3" % sC)
            a.e("s_cselect_b32 s%d, s%d, s%d" % (sM, sB, sM))
    else:
        a.e("s_and_b32 s%d, s%d, 3" % (sG, sA))
        a.e("s_lshl_b32 s%d, s%d, 2" % (sG, sG))
        a.e("s_add_u32 s%d, s%d, s%d" % (sG, sG, sD))
        a.e("s_lshr_b32 s%d, s%d, 2" % (sM, sA))
        a.e("s_lshl_b32 s%d, s%d, 3" % (sM, sM))
        a.e("s_add_u32 s%d, s%d, s%d" % (sM, sM, sCB))
        a.e("s_mov_b32 s%d, s%d" % (sHP, sM))
    a.e("s_lshl_b32 s%d, s%d, 10" % (sWK, sW))
    a.e("s_mov_b32 s%d, 0x10000" % sK64)
    if Opt.code_pf:
        a.e("s_cmp_lg_u32 s%d, s%d" % (sD, sW))
        a.e("s_cbranch_scc1 L_nopf")
        a.e("s_getpc_b64 %s" % sp(sRET))
        a.e("s_lshl_b32 s%d, s%d, 13" % (sD, sW))
        a.e("v_lshl_add_u32 v2, v0, 7, s%d" % sD)
        a.e("v_min_u32 v2, CODE_PF_MAX, v2")
        a.e("global_load_dword %s, v2, %s" % (v(vPOLL), sp(sRET)))
        a.lab("L_nopf")
    a.e("s_lshl_b32 s%d, s%d, 2" % (sA, sW))
    a.e("v_lshrrev_b32 v2, 4, v0")
    a.e("v_add_u32 v3, s%d, v2" % sA)
    a.e("v_xor_b32 v3, v3, v0")
    a.e("v_and_b32 v3, 7, v3")
    a.e("v_lshlrev_b32 v3, 4, v3")
    a.e("v_lshrrev_b32 v4, 3, v0")
    a.e("v_lshl_add_u32 v3, v4, 10, v3")
    a.e("s_lshl_b32 s%d, s%d, 17" % (sA, sG))
    a.e("s_lshl_b32 s%d, s%d, 13" % (sB, sW))
    a.e("s_add_u32 s%d, s%d, s%d" % (sA, sA, sB))
    a.e("v_add_u32 %s, s%d, v3" % (v(vDX), sA))
    a.e("s_cmp_ge_u32 s%d, 14" % sM)
    a.e("s_cbranch_scc1 L_light")

def setup_rd(a):
    a.e("s_lshr_b32 s%d, s%d, 2" % (sHI, sW))
    a.e("s_and_b32 s%d, s%d, 3" % (sLO, sW))
    a.e("v_and_b32 v2, 31, v0")
    a.e("v_lshrrev_b32 v3, 5, v0")
    a.e("v_bfe_u32 v4, v0, 1, 3")
    a.e("v_xor_b32 v4, v4, v3")
    a.e("v_lshlrev_b32 v4, 4, v4")
    a.e("v_lshl_add_u32 %s, v2, 7, v4" % v(vXA))
    a.e("v_bfe_u32 v2, v0, 2, 2")
    a.e("v_and_b32 v4, 3, v0")
    a.e("v_bfe_u32 v5, v0, 4, 1")
    a.e("v_lshl_add_u32 %s, v3, 3, v2" % v(vQA))
    a.e("v_lshlrev_b32 %s, 6, %s" % (v(vQA), v(vQA)))
    a.e("v_lshl_add_u32 %s, v5, 5, %s" % (v(vQA), v(vQA)))
    a.e("v_lshl_add_u32 %s, v4, 3, %s" % (v(vQA), v(vQA)))

def setup_oclr(a):
    srd_words(a, [SWS, SKV, SDBG])
    a.e("s_mov_b32 s%d, 0xffff" % sVM)
    a.e("s_mov_b32 s%d, 0xffff" % (sVM + 1))
    a.e("s_lshl_b32 s%d, s%d, 2" % (sA, sG))
    a.e("s_add_u32 s%d, s%d, s%d" % (sA, sA, sLO))
    a.e("s_lshl_b32 s%d, s%d, 5" % (sB, sA))
    a.e("s_lshl_b32 s%d, s%d, 1" % (sC, sHP))
    a.e("s_add_u32 s%d, s%d, s%d" % (sB, sB, sC))
    a.e("s_add_u32 s%d, s%d, s%d" % (sB, sB, sHI))
    a.e("s_lshl_b32 s%d, s%d, 10" % (sB, sB))
    a.e("s_add_u32 s%d, s%d, 0x%x" % (sOST, sB, WS_OF))
    for i in range(4): a.e("v_mov_b32 %s, -1" % v(vP + i))
    a.vmop("buffer_store_dwordx4 %s, %s, %s, s%d offen sc1" % (v(vP, 4), v(vL16), srd(SWS), sOST), "oclr")
    a.e("v_mov_b32 %s, 1" % v(vONE))
    a.e("v_mov_b32 %s, 0" % v(vZERO))
    a.e("v_and_b32 %s, 31, v0" % v(vGA))
    a.e("v_lshlrev_b32 %s, 2, %s" % (v(vGA), v(vGA)))

def collect(fn):
    t = Asm(); t.marks = {}
    def vmop(s_, tag):
        t.e(s_); t.marks[len(t.l) - 1] = tag
    t.vmop = vmop
    fn(t)
    return [(x, t.marks.get(i)) for i, x in enumerate(t.l)]
def put(a, items):
    for x, tag in items:
        if tag: a.vmop(x, tag)
        else: a.e(x)

def setup_attn(a):
    srd_words(a, [SWD, SWO, SOUT])
    a.e("s_lshl_b32 s%d, s%d, 2" % (sA, sG))
    a.e("s_add_u32 s%d, s%d, s%d" % (sA, sA, sLO))
    a.e("s_mul_i32 s%d, s%d, 112" % (sB, sA))
    a.e("s_lshl_b32 s%d, s%d, 3" % (sC, sM))
    a.e("s_add_u32 s%d, s%d, s%d" % (sB, sB, sC))
    a.e("s_lshl_b32 s%d, s%d, 2" % (sC, sHI))
    a.e("s_add_u32 s%d, s%d, s%d" % (sB, sB, sC))
    a.e("s_and_b32 s%d, s%d, 1" % (sC, sLO))
    a.e("s_lshl_b32 s%d, s%d, 1" % (sC, sC))
    a.e("s_add_u32 s%d, s%d, s%d" % (sB, sB, sC))
    a.e("s_lshl_b32 s%d, s%d, 10" % (sB, sB))
    a.e("s_add_u32 s%d, s%d, 0x%x" % (sHST, sB, WS_HF))
    a.e("v_bfe_u32 v2, v0, 2, 2")
    a.e("v_lshrrev_b32 v3, 5, v0")
    a.e("v_lshl_add_u32 v2, v3, 2, v2")
    a.e("v_lshlrev_b32 v2, 6, v2")
    a.e("v_bfe_u32 v3, v0, 4, 1")
    a.e("v_lshl_add_u32 v2, v3, 5, v2")
    a.e("v_and_b32 v3, 3, v0")
    a.e("v_lshl_add_u32 v2, v3, 3, v2")
    a.e("s_lshr_b32 s%d, s%d, 1" % (sA, sW))
    a.e("s_lshl_b32 s%d, s%d, 11" % (sA, sA))
    a.e("v_add_u32 %s, s%d, v2" % (v(vWDA), sA))
    a.e("v_add_u32 %s, 0x%x, %s" % (v(vKVA), L_KV, v(vL16)))
    a.e("v_bfe_u32 v2, v0, 2, 3")
    a.e("v_lshlrev_b32 v2, 10, v2")
    a.e("v_lshrrev_b32 v3, 5, v0")
    a.e("v_lshl_add_u32 v2, v3, 6, v2")
    a.e("v_and_b32 v3, 3, v0")
    a.e("v_lshl_add_u32 v2, v3, 4, v2")
    a.e("s_and_b32 s%d, s%d, 1" % (sA, sW))
    a.e("s_lshl_b32 s%d, s%d, 13" % (sA, sA))
    a.e("s_lshl_b32 s%d, s%d, 7" % (sB, sCB))
    a.e("s_add_u32 s%d, s%d, s%d" % (sA, sA, sB))
    a.e("v_add_u32 %s, s%d, v2" % (v(vWDV), sA))
    a.e("v_min_u32 v2, 13, v0")
    a.e("v_lshlrev_b32 v2, 7, v2")
    a.e("s_lshr_b32 s%d, s%d, 1" % (sA, sT))
    a.e("s_lshl_b32 s%d, s%d, 11" % (sA, sA))
    a.e("s_add_u32 s%d, s%d, 0x%x" % (sA, sA, WS_HFLAG))
    a.e("v_add_u32 %s, s%d, v2" % (v(vFLA), sA))
    a.e("s_lshl_b32 s%d, s%d, 1" % (sA, sT))
    a.e("s_and_b32 s%d, s%d, 1" % (sB, sW))
    a.e("s_add_u32 s%d, s%d, s%d" % (sA, sA, sB))
    a.e("s_lshl_b32 s%d, s%d, 15" % (sB, sA))
    a.e("s_lshr_b32 s%d, s%d, 1" % (sC, sW))
    a.e("s_lshl_b32 s%d, s%d, 13" % (sC, sC))
    a.e("s_add_u32 s%d, s%d, s%d" % (sB, sB, sC))
    a.e("s_add_u32 s%d, s%d, 0x%x" % (sOLD, sB, WS_OF))
    if Opt.pvz:
        a.e("v_and_b32 v2, 27, v0")
        a.e("v_cmp_eq_u32 vcc, 16, v2")
        a.e("v_mov_b32 v3, 0x3f803f80")
        a.e("s_nop 0")
        a.e("v_cndmask_b32 v2, 0, v3, vcc")
    else:
        a.e("v_mov_b32 v2, 0x3f803f80")
    for i in range(16): a.e("v_mov_b32 %s, v2" % v(vV + i))
    for i in range(4): a.e("v_mov_b32 %s, v2" % v(vV1L + i))
    for i in range(4): a.e("v_mov_b32 %s, 0" % v(vE + i))
    for i in range(4, 8): a.e("v_mov_b32 %s, 0" % v(vP + i))
    for i in range(16): a.e("v_mov_b32 %s, 0" % v(vO + i))
    for i in range(32): a.e("v_mov_b32 %s, 0" % v(vD + i))
    c0 = -2.0 * math.sqrt(2.0 / math.pi) * math.log2(math.e)
    a.e("v_mov_b32 %s, 0x%x" % (v(vC0), f2u(c0)))
    a.e("v_mov_b32 %s, 0x%x" % (v(vC0 + 1), f2u(c0 * 0.044715)))

def kv_first_loads(a):
    it = []
    for u in range(2):
        it.append(("s_add_u32 m0, s%d, 0x%x\ns_add_u32 s%d, s%d, 0x%x\nbuffer_load_dwordx4 %s, %s, s%d offen sc1 lds"
                   % (sWK, L_KV + u * 8192, sA, sWK, u * 8192, v(vL16), srd(SKV), sA), "kv%d" % u))
    it.append(("s_mov_b32 s%d, 0x%x\nbuffer_load_dwordx4 %s, %s, %s, s%d offen sc1"
               % (sA, 63 * 2048, v(vK0, 4), v(vL16), srd(SKV), sA), "k0"))
    it.append(("s_mov_b64 exec, %s\nbuffer_load_dwordx4 %s, %s, %s, 0 offen offset:%d sc1\ns_mov_b64 exec, -1"
               % (sp(sVM), v(vV1L, 4), v(vL16), srd(SKV), 1024 + 256), "k0"))
    it.append(("s_lshl_b32 s%d, s%d, 2\ns_add_u32 s%d, s%d, s%d\ns_lshl_b32 s%d, s%d, 7\ns_add_u32 s%d, s%d, 0x%x\n"
               "buffer_load_dword %s, %s, %s, s%d offen sc1"
               % (sA, sG, sA, sA, sLO, sA, sA, sA, sA, WS_G, v(vGP), v(vGA), srd(SWS), sA), "k0"))
    it.append(("s_lshl_b32 s%d, s%d, 1\ns_and_b32 s%d, s%d, 1\ns_add_u32 s%d, s%d, s%d\ns_lshl_b32 s%d, s%d, 7\ns_add_u32 s%d, s%d, 0x%x\n"
               "buffer_load_dword %s, %s, %s, s%d offen sc1"
               % (sA, sT, sB, sW, sA, sA, sB, sA, sA, sA, sA, WS_G, v(vGC), v(vGA), srd(SWS), sA), "k0"))
    return it

def spin_counter(a, name, first_loaded):
    a.e("s_cmp_lg_u32 s%d, 0" % sW)
    a.e("s_cbranch_scc1 L_%s_done" % name)
    a.e("s_mov_b32 s%d, 0x4000" % sB)
    if first_loaded: a.e("s_branch L_%s_chk" % name)
    a.lab("L_%s_re" % name)
    a.e("buffer_load_dword %s, off, %s, 0 sc1" % (v(vPOLL), srd(SDBG)))
    a.e("s_waitcnt vmcnt(0)")
    a.lab("L_%s_chk" % name)
    a.e("v_readfirstlane_b32 s%d, %s" % (sA, v(vPOLL)))
    a.e("s_cmp_ge_u32 s%d, 32" % sA)
    a.e("s_cbranch_scc1 L_%s_done" % name)
    a.e("s_sleep 4")
    a.e("s_sub_u32 s%d, s%d, 1" % (sB, sB))
    a.e("s_cmp_lg_u32 s%d, 0" % sB)
    a.e("s_cbranch_scc1 L_%s_re" % name)
    a.lab("L_%s_done" % name)

def phase1_F(a):
    srd_words(a, [SWG, SWU])
    a.e("s_lshl_b32 s%d, s%d, 9" % (sWH, sW))
    a.e("v_bfe_u32 v3, v0, 1, 3")
    a.e("v_xor_b32 v3, v3, v2")
    a.e("v_lshlrev_b32 v3, 5, v3")
    a.e("v_and_b32 v4, 1, v0")
    a.e("v_lshl_add_u32 v3, v4, 4, v3")
    a.e("v_xor_b32 v4, 0x80, v3")
    a.e("v_mul_u32_u24 v5, 3584, v2")
    a.e("s_mul_i32 s%d, s%d, %d" % (sA, sW, 4 * 3584))
    a.e("s_lshl_b32 s%d, s%d, 8" % (sB, sM))
    a.e("s_add_u32 s%d, s%d, s%d" % (sA, sA, sB))
    a.e("v_add3_u32 %s, v3, v5, s%d" % (v(vDG), sA))
    a.e("v_add3_u32 %s, v4, v5, s%d" % (v(vDU), sA))
    a.e("v_lshrrev_b32 v3, 2, v0")
    a.e("v_lshlrev_b32 v3, 10, v3")
    a.e("v_and_b32 v4, 3, v0")
    a.e("v_lshl_add_u32 v3, v4, 4, v3")
    a.e("s_lshl_b32 s%d, s%d, 13" % (sA, sW))
    a.e("s_lshl_b32 s%d, s%d, 6" % (sB, sHP))
    a.e("s_add_u32 s%d, s%d, s%d" % (sA, sA, sB))
    a.e("v_add_u32 %s, s%d, v3" % (v(vDQ), sA))
    a.e("s_add_u32 s%d, s%d, s%d" % (sA, sG, sHP))
    a.e("s_and_b32 s%d, s%d, %d" % (sXP, sA, Opt.xmask))
    a.e("s_mov_b32 s%d, s%d" % (sCH, sXP))

    def dmas(c):
        s = c % 3
        t = "c%d" % c
        it = []
        def one(m0src, m0c, vo, rs, so, pre="s_nop 0", post=""):
            nt = " nt" if Opt.ntx & (1 if rs == SX else 2) else ""
            return ("s_add_u32 m0, s%d, 0x%x\n%s\nbuffer_load_dwordx4 %s, %s, s%d offen%s lds\n%s"
                    % (m0src, m0c, pre, v(vo), srd(rs), so, nt, post), t)
        it.append(one(sWK, L_X + s * 16384, vDX, SX, sOFFQ, pre="s_lshl_b32 s%d, s%d, 7" % (sOFFQ, sCH)))
        it.append(one(sWK, L_X + s * 16384 + 8192, vDX, SX, sOFFQ, pre="s_add_u32 s%d, s%d, s%d" % (sOFFQ, sOFFQ, sK64)))
        it.append(one(sWK, L_G + s * 16384, vDG, SWG, sOFFW, pre="s_mul_i32 s%d, s%d, %d" % (sOFFW, sCH, 64 * 3584)))
        it.append(one(sWK, L_U + s * 16384, vDU, SWU, sOFFW, pre="s_lshl_b32 s%d, s%d, 16" % (sOFFQ, sCH)))
        it.append(one(sWK, L_G + s * 16384 + 8192, vDG, SWG, sOFFW, pre="s_add_u32 s%d, s%d, %d" % (sOFFW, sOFFW, 32 * 3584)))
        it.append(one(sWK, L_U + s * 16384 + 8192, vDU, SWU, sOFFW, pre="s_xor_b32 s%d, s%d, %d" % (sCH, sXP, c + 1)))
        it.append(one(sWH, L_WQ + s * 4096, vDQ, SWQ, sOFFQ, pre="s_mov_b32 exec_hi, 0",
                      post="s_mov_b32 exec_hi, -1"))
        return it

    def rdsetup(a):
        setup_rd(a)
        a.e("v_lshl_add_u32 %s, v3, 3, v2" % v(vWA))
        a.e("v_lshlrev_b32 %s, 8, %s" % (v(vWA), v(vWA)))
        a.e("v_lshl_add_u32 %s, v4, 3, %s" % (v(vWA), v(vWA)))
        a.e("v_mul_u32_u24 v4, 0x%x, v5" % (L_U - L_G))
        a.e("v_add_u32 %s, v4, %s" % (v(vWA), v(vWA)))
        a.e("v_lshl_add_u32 v2, v5, 2, v2")
        a.e("s_lshl_b32 s%d, s%d, 2" % (sA, sHI))
        a.e("s_and_b32 s%d, s%d, 1" % (sB, sLO))
        a.e("s_lshl_b32 s%d, s%d, 1" % (sB, sB))
        a.e("s_add_u32 s%d, s%d, s%d" % (sA, sA, sB))
        a.e("v_xor_b32 v2, s%d, v2" % sA)
        a.e("v_lshl_add_u32 %s, v2, 5, %s" % (v(vWA), v(vWA)))
        a.e("s_lshl_b32 s%d, s%d, 13" % (sA, sHI))
        a.e("s_xor_b32 s%d, s%d, 0x2000" % (sB, sA))
        a.e("v_add_u32 %s, s%d, %s" % (v(vWA + 2), sB, v(vWA)))
        a.e("v_add_u32 %s, s%d, %s" % (v(vWA), sA, v(vWA)))
        a.e("v_xor_b32 %s, 32, %s" % (v(vWA + 1), v(vWA)))
        a.e("v_xor_b32 %s, 32, %s" % (v(vWA + 3), v(vWA + 2)))
        a.e("s_lshl_b32 s%d, s%d, 6" % (sA, sHI))
        a.e("s_lshl_b32 s%d, s%d, 12" % (sB, sLO))
        a.e("s_add_u32 s%d, s%d, s%d" % (sA, sA, sB))
        a.e("s_add_u32 s%d, s%d, 0x%x" % (sA, sA, L_X))
        a.e("v_xor_b32 %s, s%d, %s" % (v(vXA), sA, v(vXA)))
        for s in range(1, 4): a.e("v_xor_b32 %s, %d, %s" % (v(vXA + s), 32 * s, v(vXA)))
        for s in range(4): a.e("v_xor_b32 %s, 0x1000, %s" % (v(vXA + 4 + s), v(vXA + s)))
        a.e("s_lshl_b32 s%d, s%d, 11" % (sA, sHI))
        a.e("s_add_u32 s%d, s%d, 0x%x" % (sA, sA, L_WQ))
        a.e("v_add_u32 %s, s%d, %s" % (v(vQA), sA, v(vQA)))

    a.e("s_waitcnt lgkmcnt(0)")
    a.stamp(2)
    put(a, dmas(0))
    if Opt.touch & 1:
        a.e("s_cmp_ge_u32 s%d, 3" % sW)
        a.e("s_cbranch_scc1 L_notouch")
        a.e("v_lshrrev_b32 v2, 1, v0")
        a.e("s_add_u32 s%d, s%d, 128" % (sA, sG))
        a.e("v_lshl_add_u32 v2, v2, 4, s%d" % sA)
        a.e("s_cmp_eq_u32 s%d, 2" % sW)
        a.e("s_cbranch_scc1 L_touchq")
        a.e("v_mul_u32_u24 v2, 3584, v2")
        a.e("v_and_b32 v3, 1, v0")
        a.e("v_lshl_add_u32 v2, v3, 7, v2")
        a.e("s_lshl_b32 s%d, s%d, 8" % (sA, sM))
        a.e("s_cmp_eq_u32 s%d, 1" % sW)
        a.e("s_cbranch_scc1 L_touchu")
        a.e("buffer_load_dword %s, v2, %s, s%d offen" % (v(vPOLL), srd(SWG), sA))
        a.e("s_branch L_notouch")
        a.lab("L_touchu")
        a.e("buffer_load_dword %s, v2, %s, s%d offen" % (v(vPOLL), srd(SWU), sA))
        a.e("s_branch L_notouch")
        a.lab("L_touchq")
        a.e("v_lshlrev_b32 v2, 10, v2")
        a.e("s_lshl_b32 s%d, s%d, 6" % (sA, sHP))
        a.e("buffer_load_dword %s, v2, %s, s%d offen" % (v(vPOLL), srd(SWQ), sA))
        a.lab("L_notouch")
    if Opt.startbar: a.e("s_barrier")
    pend = dmas(1) + dmas(2)
    st = collect(rdsetup)
    gap = len(st) // (Opt.npre + 1) + 1
    for i in range(Opt.npre):
        put(a, pend[:1]); pend = pend[1:]
        put(a, st[:gap]); st = st[gap:]
    put(a, st)
    fill = collect(setup_oclr) + collect(setup_attn)
    put(a, fill[:Opt.fillpre]); fill = fill[Opt.fillpre:]

    def fr(k):
        b = vFR + 20 * (k % 2)
        return dict(x0=b, x1=b + 4, w0=b + 8, w1=b + 12, q=b + 16)
    def reads(k):
        c, s = divmod(k, 4); f = fr(k); sl = c % 3
        wo = sl * 16384 + (s & 1) * 4096
        wa = vWA + 2 * (s >> 1)
        r = [rdtr(f['w0'], wa, wo), rdtr(f['w0'] + 2, wa, wo + 1024),
             rd128(f['x0'], vXA + s, sl * 16384), rd128(f['x1'], vXA + 4 + s, sl * 16384),
             rdtr(f['w1'], wa + 1, wo), rdtr(f['w1'] + 2, wa + 1, wo + 1024)]
        if s < 2:
            r += [rdtr(f['q'], vQA, sl * 4096 + s * 1024), rdtr(f['q'] + 2, vQA, sl * 4096 + s * 1024 + 256)]
        return r
    n0 = a.vmn("c0")
    if Opt.touch & 1:
        a.e("s_cmp_ge_u32 s%d, 3" % sW)
        a.e("s_cbranch_scc1 L_w0a")
        a.e("s_waitcnt vmcnt(%d)" % (n0 + 1))
        a.e("s_branch L_w0b")
        a.lab("L_w0a")
        a.waitvm("c0")
        a.lab("L_w0b")
    else:
        a.waitvm("c0")
    a.e("s_barrier")
    a.stamp(3)
    kstamp(a, 2)
    for r in reads(0): a.e(r)
    kpoll = 21 if Opt.stagger else 23
    for k in range(32):
        c, s = divmod(k, 4); f = fr(k)
        if s == 3 and c < 7:
            assert not any(t == "c%d" % (c + 1) for _, t in pend)
            if c == 6 and Opt.stagger:
                a.e("s_waitcnt lgkmcnt(0)")
                a.e("s_cmp_lg_u32 s%d, 0" % sHI)
                a.e("s_cbranch_scc1 L_st7")
                a.e("s_waitcnt vmcnt(0)")
                spin_counter(a, "kvf", True)
                a.e("s_barrier")
                a.e("s_setprio 1")
                for x, _ in kv_first_loads(a): a.e(x)
                a.lab("L_st7")
            else:
                if c == 6:
                    a.wait0(lgkm=True)
                    spin_counter(a, "kvf", True)
                else:
                    a.waitvm("c%d" % (c + 1), lgkm=True)
                a.e("s_barrier")
                if c + 3 < 8: pend += dmas(c + 3)
                if c == 6: pend += kv_first_loads(a)
            kstamp(a, 3 + c)
        else:
            a.e("s_waitcnt lgkmcnt(0)")
        z = lambda x: None if k == 0 else x
        mf = [mfma(vACC, f['w0'], f['x0'], z(vACC)), mfma(vACC + 16, f['w0'], f['x1'], z(vACC + 16)),
              mfma(vACC + 32, f['w1'], f['x0'], z(vACC + 32)), mfma(vACC + 48, f['w1'], f['x1'], z(vACC + 48))]
        if s < 2: mf.append(mfma(vAQ, f['q'], f['x0'], z(vAQ)))
        for x in interleave(mf, reads(k + 1) if k < 31 else []): a.e(x)
        npd = 3 if len(pend) > 7 or k < 3 else Opt.npd
        put(a, pend[:npd]); pend = pend[npd:]
        if k >= 4:
            put(a, fill[:Opt.fillper]); fill = fill[Opt.fillper:]
        if k == kpoll:
            assert not fill
            a.e("s_cmp_lg_u32 s%d, 0" % sW)
            a.e("s_cbranch_scc1 L_nopoll")
            a.e("buffer_load_dword %s, off, %s, 0 sc1" % (v(vPOLL), srd(SDBG)))
            a.lab("L_nopoll")
        if k == 23 and Opt.stagger:
            assert not pend
            a.e("s_cmp_eq_u32 s%d, 0" % sHI)
            a.e("s_cbranch_scc1 L_st6")
            a.wait0()
            a.e("s_barrier")
            put(a, kv_first_loads(a))
            a.lab("L_st6")
    assert not pend
    a.stamp(4)

def phase1_L(a):
    a.lab("L_light")
    a.vm = []
    srd_words(a, [SWKV, SWV, SGATE])
    a.e("s_sub_u32 s%d, s%d, 14" % (sCNT, sM))
    a.e("s_lshl_b32 s%d, s%d, 16" % (sOLD, sCNT))
    a.e("s_lshl_b32 s%d, s%d, 13" % (sHST, sCNT))
    a.e("s_add_u32 s%d, s%d, s%d" % (sWH, sHST, sWK))
    a.e("s_xor_b32 s%d, s%d, 0x2000" % (sHST, sHST))
    a.e("s_add_u32 s%d, s%d, 0x2000" % (sA, sWK))
    a.e("s_waitcnt lgkmcnt(0)")
    a.stamp(2)
    a.e("s_mov_b32 s%d, s%d" % (SWV, sTMPP))
    a.e("s_mov_b32 s%d, s%d" % (SWV + 1, sTMPP + 1))
    def xdma(c, base, so):
        a.vmop("s_add_u32 m0, s%d, 0x%x\ns_nop 0\nbuffer_load_dwordx4 %s, %s, s%d offen offset:%d lds"
               % (base, LL_X + c * 16384 - c * 128, v(vDX), srd(SX), so, c * 128), "c%d" % c)
    def wdma(u):
        for t, rs in enumerate((SWKV, SWV)):
            a.vmop("s_add_u32 m0, s%d, 0x%x\ns_nop 0\nbuffer_load_dwordx4 %s, %s, s%d offen lds"
                   % (sWK, LL_W + t * 16384 + u * 8192, v(vL16), srd(rs), sA if u else sWK), "w")
    wdma(0)
    a.vmop("s_mov_b32 m0, s%d\ns_nop 0\nbuffer_load_dwordx4 %s, %s, 0 offen lds" % (sHST, v(vL16), srd(SGATE)), "w")
    for c in range(8):
        if c == 4: wdma(1)
        xdma(c, sWH, sOLD)
        if c in (1, 3, 5): a.e("s_barrier")
    setup_rd(a)
    a.e("v_lshl_add_u32 %s, v3, 3, v2" % v(vWA))
    a.e("v_lshlrev_b32 %s, 5, %s" % (v(vWA), v(vWA)))
    a.e("v_lshl_add_u32 %s, v4, 3, %s" % (v(vWA), v(vWA)))
    a.e("s_lshr_b32 s%d, s%d, 1" % (sA, sLO))
    a.e("s_lshl_b32 s%d, s%d, 14" % (sA, sA))
    a.e("s_add_u32 s%d, s%d, 0x%x" % (sA, sA, LL_W))
    a.e("v_add_u32 %s, s%d, %s" % (v(vWA), sA, v(vWA)))
    a.e("v_lshl_add_u32 %s, v3, 4, s%d" % (v(vWA + 1), sHST))
    a.e("v_mov_b32 %s, %s" % (v(vWA + 2), v(vXA)))
    a.e("s_and_b32 s%d, s%d, 1" % (sA, sLO))
    a.e("s_lshl_b32 s%d, s%d, 1" % (sB, sCNT))
    a.e("s_add_u32 s%d, s%d, s%d" % (sCNT, sA, sB))
    a.e("s_lshl_b32 s%d, s%d, 12" % (sA, sCNT))
    a.e("v_add_u32 %s, s%d, %s" % (v(vXA), sA, v(vXA)))
    for s in range(1, 4): a.e("v_xor_b32 %s, %d, %s" % (v(vXA + s), 32 * s, v(vXA)))
    for s in range(4): a.e("v_add_u32 %s, 0x10000, %s" % (v(vXA + 4 + s), v(vXA + s)))
    setup_oclr(a)
    vm0 = list(a.vm)
    a.e("s_cmp_lg_u32 s%d, 0" % sHI)
    a.e("s_cbranch_scc1 L_lB")
    a.e("s_not_b64 %s, %s" % (sp(sTMPP), sp(sVM)))
    a.e("s_cmp_ge_u32 s%d, 2" % sLO)
    a.e("s_cbranch_scc1 L_lV")
    def chain(kind):
        a.vm = list(vm0)
        def fr(k):
            b = vFR + 8 * (k % 4)
            return b, b + 4
        def reads(k):
            c, s = divmod(k, 4); x, w = fr(k)
            r = [rd128(x, vXA + s + 4 * (c >> 2), (c & 3) * 16384), rdtr(w, vWA, k * 512), rdtr(w + 2, vWA, k * 512 + 128)]
            if kind == "K":
                r += ["s_mov_b64 exec, %s" % sp(sTMPP), rd128(w, vWA + 1, k * 32), "s_mov_b64 exec, -1"]
            return r
        for q in range(4):
            a.waitvm("c%d" % (2 * q + 1))
            a.e("s_barrier")
            nr = 4 if kind == "K" else 3
            for k in range(8 * q, 8 * q + 2):
                for r in reads(k): a.e(r)
            for k in range(8 * q, 8 * q + 8):
                if k + 2 < 8 * q + 8:
                    for r in reads(k + 2): a.e(r)
                left = min(2, 8 * q + 7 - k)
                a.e("s_waitcnt lgkmcnt(%d)" % (left * nr))
                x, w = fr(k)
                cc = None if k == 0 else vACC
                a.e(mfma(vACC, w, x, cc) if kind == "K" else mfma(vACC, x, w, cc))
        a.e("s_lshl_b32 s%d, s%d, 2" % (sA, sG))
        a.e("s_add_u32 s%d, s%d, s%d" % (sA, sA, sCNT))
        a.e("s_nop 12")
        if kind == "K":
            a.e("s_mov_b32 s%d, 0x%x" % (sC, f2u(0.25 * math.log2(math.e))))
            for i in range(8): a.e("v_mul_f32 %s, s%d, %s" % (v(vACC + i), sC, v(vACC + i)))
            a.e("v_mul_f32 %s, 0x%x, %s" % (v(vACC + 8), f2u(-math.log2(math.e)), v(vACC + 8)))
            a.e("v_exp_f32 %s, %s" % (v(vACC + 8), v(vACC + 8)))
            for i in range(4): a.e("v_cvt_pk_bf16_f32 %s, %s, %s" % (v(vFR + i), v(vACC + 2 * i), v(vACC + 2 * i + 1)))
            a.e("v_add_f32 %s, 1.0, %s" % (v(vACC + 8), v(vACC + 8)))
            a.e("v_rcp_f32 %s, %s" % (v(vACC + 8), v(vACC + 8)))
            a.e("s_add_u32 s%d, s%d, 63" % (sB, sA))
            a.e("s_and_b32 s%d, s%d, 63" % (sB, sB))
            a.e("s_lshl_b32 s%d, s%d, 11" % (sB, sB))
            a.e("buffer_store_dwordx4 %s, %s, %s, s%d offen sc1" % (v(vFR, 4), v(vL16), srd(SKV), sB))
            a.e("s_lshl_b32 s%d, s%d, 7" % (sB, sA))
            a.e("s_add_u32 s%d, s%d, 0x%x" % (sB, sB, WS_G))
            a.e("s_mov_b32 exec_hi, 0")
            a.e("buffer_store_dword %s, %s, %s, s%d offen sc1" % (v(vACC + 8), v(vGA), srd(SWS), sB))
            a.e("s_mov_b64 exec, -1")
        else:
            for i in range(8): a.e("v_cvt_pk_bf16_f32 %s, %s, %s" % (v(vFR + i), v(vACC + 2 * i), v(vACC + 2 * i + 1)))
            a.e("v_bfe_u32 v2, v0, 4, 1")
            a.e("v_add_u32 v2, s%d, v2" % sA)
            a.e("v_and_b32 v2, 63, v2")
            a.e("v_lshl_add_u32 v2, v2, 11, %s" % v(vL16))
            for i in range(4): a.e("v_cndmask_b32 %s, %s, %s, %s" % (v(vFR + i), v(vFR + 4 + i), v(vFR + i), sp(sVM)))
            a.e("buffer_store_dwordx4 %s, v2, %s, 0 offen offset:1024 sc1" % (v(vFR, 4), srd(SKV)))
        a.e("s_branch L_lJ")
    chain("K")
    a.lab("L_lV")
    chain("V")
    a.lab("L_lB")
    a.vm = list(vm0)
    a.e("s_cmp_lg_u32 s%d, 14" % sM)
    a.e("s_cbranch_scc1 L_nozf")
    a.e("s_cmp_lg_u32 s%d, 4" % sW)
    a.e("s_cbranch_scc1 L_nozf")
    a.e("v_lshlrev_b32 v2, 7, v0")
    a.e("s_lshl_b32 s%d, s%d, 11" % (sA, sG))
    a.e("s_add_u32 s%d, s%d, 0x%x" % (sA, sA, WS_HFLAG))
    a.e("s_mov_b64 exec, 0xffff")
    a.e("buffer_store_dword %s, v2, %s, s%d offen sc1" % (v(vZERO), srd(SWS), sA))
    a.e("s_mov_b64 exec, -1")
    a.lab("L_nozf")
    for q in range(4):
        a.waitvm("c%d" % (2 * q + 1))
        a.e("s_barrier")
    a.lab("L_lJ")
    a.e("v_lshrrev_b32 v3, 2, v0")
    a.e("v_lshlrev_b32 v3, 10, v3")
    a.e("v_and_b32 v4, 3, v0")
    a.e("v_lshl_add_u32 v3, v4, 4, v3")
    a.e("s_lshl_b32 s%d, s%d, 14" % (sA, sW))
    a.e("s_lshl_b32 s%d, s%d, 6" % (sB, sHP))
    a.e("s_add_u32 s%d, s%d, s%d" % (sA, sA, sB))
    a.e("v_add_u32 %s, s%d, v3" % (v(vDQ), sA))
    a.e("s_xor_b32 s%d, s%d, 0x2000" % (sWH, sWH))
    a.e("s_xor_b32 s%d, s%d, 0x10000" % (sOLD, sOLD))
    a.wait0(lgkm=True)
    a.e("s_barrier")
    a.e("s_cmp_lg_u32 s%d, 0" % sW)
    a.e("s_cbranch_scc1 L_noat")
    a.e("s_mov_b64 exec, 1")
    a.e("buffer_atomic_add %s, off, %s, 0 sc1" % (v(vONE), srd(SDBG)))
    a.e("s_mov_b64 exec, -1")
    a.lab("L_noat")
    a.stamp(3)
    for c in range(8): xdma(c, sWH, sOLD)
    for p in range(4):
        a.e("s_add_u32 m0, s%d, 0x%x" % (sWK, LL_WQ + p * 8192))
        a.e("s_mov_b32 s%d, 0x%x" % (sA, p * 128 * 1024))
        a.e("buffer_load_dwordx4 %s, %s, s%d offen lds" % (v(vDQ), srd(SWQ), sA))
    setup_attn(a)
    if Opt.touch & 2:
        a.e("s_lshl_b32 s%d, s%d, 1" % (sA, sG))
        a.e("s_add_u32 s%d, s%d, s%d" % (sA, sA, sM))
        a.e("s_sub_u32 s%d, s%d, 14" % (sA, sA))
        a.e("s_lshl_b32 s%d, s%d, 3" % (sA, sA))
        a.e("s_add_u32 s%d, s%d, s%d" % (sA, sA, sW))
        a.e("v_lshlrev_b32 v2, 15, v0")
        a.e("s_lshl_b32 s%d, s%d, 7" % (sA, sA))
        a.e("buffer_load_dword %s, v2, %s, s%d offen" % (v(vPOLL), srd(SWO), sA))
        a.e("buffer_load_dword %s, v2, %s, s%d offen" % (v(vPOLL), srd(SWD), sA))
    a.e("s_lshl_b32 s%d, s%d, 16" % (sA, sHI))
    a.e("s_lshl_b32 s%d, s%d, 12" % (sB, sLO))
    a.e("s_add_u32 s%d, s%d, s%d" % (sA, sA, sB))
    a.e("v_add_u32 %s, s%d, %s" % (v(vXA), sA, v(vWA + 2)))
    for s in range(1, 4): a.e("v_xor_b32 %s, %d, %s" % (v(vXA + s), 32 * s, v(vXA)))
    a.e("s_lshl_b32 s%d, s%d, 14" % (sA, sHI))
    a.e("s_add_u32 s%d, s%d, 0x%x" % (sA, sA, LL_WQ))
    a.e("v_add_u32 %s, s%d, %s" % (v(vQA), sA, v(vQA)))
    a.e("s_waitcnt vmcnt(%d)" % (2 if Opt.touch & 2 else 0))
    a.e("s_barrier")
    def fr(k):
        b = vFR + 8 * (k % 4)
        return b, b + 4
    def reads(k):
        c, s = divmod(k, 4); x, w = fr(k)
        return [rd128(x, vXA + s, c * 16384), rdtr(w, vQA, k * 1024), rdtr(w + 2, vQA, k * 1024 + 256)]
    for k in range(2):
        for r in reads(k): a.e(r)
    for k in range(16):
        if k + 2 < 16:
            for r in reads(k + 2): a.e(r)
        a.e("s_waitcnt lgkmcnt(%d)" % (3 * min(2, 15 - k)))
        x, w = fr(k)
        a.e(mfma(vAQ, w, x, None if k == 0 else vAQ))
    spin_counter(a, "kvl", False)
    a.e("s_barrier")
    for s, t in kv_first_loads(a): a.e(s)
    a.wait0()
    a.stamp(4)
    a.e("s_branch L_join")

def gelu_tile(a, ti, scalar=False):
    acc = vACC + 16 * ti
    t = vFR
    o = vFR + 8 + 4 * ti
    pk = lambda r: v(r, 2)
    if scalar:
        for i in range(8): a.e("v_mul_f32 %s, %s, %s" % (v(t + i), v(acc + i), v(acc + i)))
        for i in range(8): a.e("v_fma_f32 %s, %s, %s, %s" % (v(t + i), v(t + i), v(vC0 + 1), v(vC0)))
        for i in range(8): a.e("v_mul_f32 %s, %s, %s" % (v(t + i), v(t + i), v(acc + i)))
        for i in range(8): a.e("v_exp_f32 %s, %s" % (v(t + i), v(t + i)))
        for i in range(8): a.e("v_add_f32 %s, 1.0, %s" % (v(t + i), v(t + i)))
        for i in range(8): a.e("v_rcp_f32 %s, %s" % (v(t + i), v(t + i)))
        for i in range(8): a.e("v_mul_f32 %s, %s, %s" % (v(acc + i), v(acc + i), v(acc + 8 + i)))
        for i in range(8): a.e("v_mul_f32 %s, %s, %s" % (v(acc + i), v(acc + i), v(t + i)))
    R4, R8 = (range(0), range(0)) if scalar else (range(4), range(8))
    for i in R4: a.e("v_pk_mul_f32 %s, %s, %s" % (pk(t + 2 * i), pk(acc + 2 * i), pk(acc + 2 * i)))
    for i in R4: a.e("v_pk_fma_f32 %s, %s, %s, %s op_sel:[0,1,0] op_sel_hi:[1,1,0]" % (pk(t + 2 * i), pk(t + 2 * i), pk(vC0), pk(vC0)))
    for i in R4: a.e("v_pk_mul_f32 %s, %s, %s" % (pk(t + 2 * i), pk(t + 2 * i), pk(acc + 2 * i)))
    for i in R8: a.e("v_exp_f32 %s, %s" % (v(t + i), v(t + i)))
    for i in R4: a.e("v_pk_add_f32 %s, %s, 1.0 op_sel_hi:[1,0]" % (pk(t + 2 * i), pk(t + 2 * i)))
    for i in R8: a.e("v_rcp_f32 %s, %s" % (v(t + i), v(t + i)))
    for i in R4: a.e("v_pk_mul_f32 %s, %s, %s" % (pk(acc + 2 * i), pk(acc + 2 * i), pk(acc + 8 + 2 * i)))
    for i in R4: a.e("v_pk_mul_f32 %s, %s, %s" % (pk(acc + 2 * i), pk(acc + 2 * i), pk(t + 2 * i)))
    for i in range(4): a.e("v_cvt_pk_bf16_f32 %s, %s, %s" % (v(o + i), v(acc + 2 * i), v(acc + 2 * i + 1)))
    aa, bb = ti >> 1, ti & 1
    a.vmop("buffer_store_dwordx4 %s, %s, %s, s%d offen offset:%d sc1" % (v(o, 4), v(vL16), srd(SWS), sD if bb else sHST, aa * 1024), "hst")

def gelu_head(a):
    a.e("s_bitcmp1_b32 s%d, 0" % sLO)
    a.e("s_cselect_b32 s%d, 0x%x, 0x%x" % (sD, (-112 * 1024) & 0xffffffff, 0))
    a.e("s_cselect_b32 s%d, 0, 0x%x" % (sC, 112 * 1024))
    a.e("s_add_u32 s%d, s%d, s%d" % (sD, sD, sC))
    a.e("s_add_u32 s%d, s%d, s%d" % (sD, sD, sHST))

def gelu_sub(a):
    if Opt.stagger and Opt.gsc:
        a.lab("L_geluA")
        gelu_head(a)
        for ti in range(Opt.gsc): gelu_tile(a, ti, True)
        a.e("s_branch L_gelu%d" % Opt.gsc)
    else:
        a.lab("L_geluA")
    a.lab("L_geluB")
    gelu_head(a)
    for ti in range(4):
        gelu_tile(a, ti)
        a.lab("L_gelu%d" % (ti + 1))
    a.e("s_setpc_b64 %s" % sp(sRET))

def Yseg(hset, toggle=False):
    out = []
    for t in range(2):
        S, Sn = vS + 16 * t, vS + 16 * (1 - t)
        K, V0, V1 = vKF + 4 * t, vV + 8 * t, vV + 8 * t + 4
        for j in range(8):
            out.append("v_exp_f32 %s, %s" % (v(vE + 2 * (j % 2)), v(S + 2 * j)))
            out.append("v_exp_f32 %s, %s" % (v(vE + 2 * (j % 2) + 1), v(S + 2 * j + 1)))
            jj = (j - 1) % 8
            out.append("v_cvt_pk_bf16_f32 %s, %s, %s" % (v(vP + jj), v(vE + 2 * (jj % 2)), v(vE + 2 * (jj % 2) + 1)))
            if j == 1: out.append(mfma(vO, V1, vP + 4, vO))
            if j == 3: out.append(mfma(Sn, K, vQ, None))
            if hset is None:
                if j == 7: out.append(mfma(vO, V0, vP, vO))
            else:
                if j == 5: out.append(mfma(vO, V0, vP, vO))
                if j == 6 and t == 1 and toggle:
                    out.append("v_xor_b32 %s, 0x4000, %s" % (v(vKVA), v(vKVA)))
                    out.append("v_xor_b32 %s, 0x8000, %s" % (v(vWDA), v(vWDA)))
                if j == 7: out.append(mfma(vD + 16 * t, vWF + 4 * t, vH + 4 * hset, vD + 16 * t))
    return out

def kv_reads(off):
    r = [rd128(vKF, vKVA, off), rd128(vKF + 4, vKVA, off + 2048), "s_mov_b64 exec, %s" % sp(sVM)]
    for t in range(2):
        r += [rd128(vV + 8 * t, vKVA, off + 2048 * t + 1024), rd128(vV + 8 * t + 4, vKVA, off + 2048 * t + 1280)]
    r.append("s_mov_b64 exec, -1")
    return r
def wd_reads(dst, addr, off):
    r = []
    for c in range(2):
        r += [rdtr(dst + 4 * c, addr, off + 512 * c), rdtr(dst + 4 * c + 2, addr, off + 512 * c + 1024)]
    return r

def attention(a, role):
    A = role == "A"
    def kvdma(u):
        a.vmop("s_add_u32 m0, s%d, 0x%x\ns_add_u32 s%d, s%d, 0x%x\nbuffer_load_dwordx4 %s, %s, s%d offen sc1 lds"
               % (sWK, L_KV + (u % 4) * 8192, sA, sWK, u * 8192, v(vL16), srd(SKV), sA), "kv%d" % u)
    def wddma(sg):
        a.vmop("s_add_u32 m0, s%d, 0x%x\ns_add_u32 s%d, s%d, 0x%x\nbuffer_load_dwordx4 %s, %s, s%d offen lds"
               % (sWK, L_WD + ((sg + 3) % 8) * 8192, sA, sWDOFF, sg * 16384, v(vWDV), srd(SWD), sA), "wd%d" % sg)
    def wodma(j):
        a.vmop("s_add_u32 m0, s%d, 0x%x\ns_add_u32 s%d, s%d, 0x%x\nbuffer_load_dwordx4 %s, %s, s%d offen lds"
               % (sWK, L_WO + j * 8192, sA, sB, j * 16384, v(vWDV), srd(SWO), sA), "wo")
    def hload(sg, dst):
        a.vmop("s_add_u32 s%d, s%d, 0x%x\nbuffer_load_dwordx4 %s, %s, %s, s%d offen sc1"
               % (sA, sHOFF, sg * 1024, v(dst, 4), v(vL16), srd(SWS), sA), "h%d" % sg)
    for n in range(11):
        if not A and n == 0: a.e("s_barrier")
        tags = []
        if A and n % 2 == 1: tags.append("kv%d" % ((n + 1) // 2))
        if not A and n % 2 == 0: tags.append("kv%d" % ((n + 2) // 2))
        if n == 2: tags.append("hst")
        if n == 10: tags.append("wd0")
        if n == 8 and A:
            a.e("s_cmp_lg_u32 s%d, 0" % sW)
            a.e("s_cbranch_scc1 L_hf_done")
            a.e("s_mov_b32 s%d, 0x4000" % sB)
            a.e("s_waitcnt vmcnt(2)")
            a.lab("L_hf_chk")
            a.e("v_cmp_ne_u32 vcc, 1, %s" % v(vPOLL))
            a.e("s_cbranch_vccz L_hf_done")
            a.e("s_sleep 2")
            a.e("buffer_load_dword %s, %s, %s, 0 offen sc1" % (v(vPOLL), v(vFLA), srd(SWS)))
            a.e("s_sub_u32 s%d, s%d, 1" % (sB, sB))
            a.e("s_cmp_lg_u32 s%d, 0" % sB)
            a.e("s_waitcnt vmcnt(0)")
            a.e("s_cbranch_scc1 L_hf_chk")
            a.lab("L_hf_done")
        a.waitvm(tags)
        if n == 3 and not A:
            a.e("s_cmp_ge_u32 s%d, 14" % sM)
            a.e("s_cbranch_scc1 L_nohf")
            a.e("s_cmp_lg_u32 s%d, 4" % sW)
            a.e("s_cbranch_scc1 L_nohf")
            a.e("s_lshl_b32 s%d, s%d, 4" % (sA, sG))
            a.e("s_add_u32 s%d, s%d, s%d" % (sA, sA, sM))
            a.e("s_lshl_b32 s%d, s%d, 7" % (sA, sA))
            a.e("s_add_u32 s%d, s%d, 0x%x" % (sA, sA, WS_HFLAG))
            a.e("s_mov_b64 exec, 1")
            a.e("buffer_store_dword %s, off, %s, s%d sc1" % (v(vONE), srd(SWS), sA))
            a.e("s_mov_b64 exec, -1")
            a.lab("L_nohf")
        for r in kv_reads((n % 8) * 4096): a.e(r)
        if n == 7 and A:
            a.e("s_cmp_lg_u32 s%d, 0" % sW)
            a.e("s_cbranch_scc1 L_hf_nol")
            a.e("buffer_load_dword %s, %s, %s, 0 offen sc1" % (v(vPOLL), v(vFLA), srd(SWS)))
            a.lab("L_hf_nol")
        if n == 0:
            kvdma(2); kvdma(3)
            a.e("s_lshr_b32 s%d, s%d, 1" % (sC, sW))
            a.e("s_mul_i32 s%d, s%d, %d" % (sWDOFF, sC, 448 * 1024))
            a.e("s_lshl_b32 s%d, s%d, 1" % (sA, sT))
            a.e("s_and_b32 s%d, s%d, 1" % (sB, sW))
            a.e("s_add_u32 s%d, s%d, s%d" % (sA, sA, sB))
            a.e("s_mul_i32 s%d, s%d, 112" % (sA, sA))
            a.e("s_mul_i32 s%d, s%d, 28" % (sB, sC))
            a.e("s_add_u32 s%d, s%d, s%d" % (sA, sA, sB))
            a.e("s_lshl_b32 s%d, s%d, 10" % (sA, sA))
            a.e("s_add_u32 s%d, s%d, 0x%x" % (sHOFF, sA, WS_HF))
        if (A and n % 2 == 1 and n >= 3): kvdma((n + 5) // 2)
        if (not A and n % 2 == 0 and n >= 2): kvdma((n + 6) // 2)
        if 1 <= n <= 3:
            a.e("s_lshr_b32 s%d, s%d, 1" % (sB, sW))
            a.e("s_lshl_b32 s%d, s%d, 17" % (sB, sB))
            for j in {1: (0, 1, 2), 2: (3, 4, 5), 3: (6, 7)}[n]: wodma(j)
        if n >= 4: wddma(n - 4)
        if n == 9:
            hload(0, vH + 12); hload(1, vH + 0); hload(24, vH + 16); hload(25, vH + 20)
        if n == 10:
            hload(26, vH + 24); hload(27, vH + 28); hload(2, vH + 4)
        a.e("s_waitcnt lgkmcnt(0)")
        a.e("s_call_b64 %s, L_Y%s" % (sp(sRET), role))
    a.e("s_add_u32 s%d, s%d, 0x%x" % (sHOFF, sHOFF, 3 * 1024))
    a.e("s_add_u32 s%d, s%d, 0x%x" % (sWDOFF, sWDOFF, 7 * 16384))
    a.e("s_mov_b32 s%d, 0x%x" % (sM0WD, ((7 + 3) % 8) * 8192))
    u0 = 8 if A else 9
    a.e("s_add_u32 s%d, s%d, 0x%x" % (sKVOFF, sWK, u0 * 8192))
    a.e("s_mov_b32 s%d, 6" % sCNT)
    a.waitvm(["h0", "wd1", "kv6"] if A else ["h0", "wd1"])
    a.e("s_branch L_loop%s_in" % role)
    a.l.append(".p2align 6")
    a.lab("L_loop%s" % role)
    for p in range(4):
        a.e("s_waitcnt vmcnt(5)")
        if p == 3: a.lab("L_loop%s_in" % role)
        for r in kv_reads(p * 4096): a.e(r)
        for r in wd_reads(vWF, vWDA, p * 8192): a.e(r)
        a.e("buffer_load_dwordx4 %s, %s, %s, s%d offen sc1" % (v(vH + 4 * ((p + 3) % 4), 4), v(vL16), srd(SWS), sHOFF))
        a.e("s_add_u32 m0, s%d, s%d" % (sWK, sM0WD))
        a.e("s_add_u32 s%d, s%d, 0x400" % (sHOFF, sHOFF))
        a.e("buffer_load_dwordx4 %s, %s, s%d offen lds" % (v(vWDV), srd(SWD), sWDOFF))
        a.e("s_add_u32 s%d, s%d, 0x4000" % (sWDOFF, sWDOFF))
        a.e("s_add_u32 s%d, s%d, 0x2000" % (sM0WD, sM0WD))
        a.e("s_and_b32 s%d, s%d, 0xffff" % (sM0WD, sM0WD))
        if (p % 2 == 1) == A:
            a.e("s_and_b32 s%d, s%d, 0x7fff" % (sA, sKVOFF))
            a.e("s_add_u32 m0, s%d, 0x%x" % (sA, L_KV))
            a.e("s_nop 0")
            a.e("buffer_load_dwordx4 %s, %s, s%d offen sc1 lds" % (v(vL16), srd(SKV), sKVOFF))
            a.e("s_add_u32 s%d, s%d, 0x2000" % (sKVOFF, sKVOFF))
        if p == 3:
            a.e("s_sub_u32 s%d, s%d, 1" % (sCNT, sCNT))
            a.e("s_cmp_lg_u32 s%d, 0" % sCNT)
        a.e("s_waitcnt lgkmcnt(0)")
        if A: a.e("s_barrier")
        for x in Yseg(p, toggle=(p == 3)): a.e(x)
        if not A:
            if p == 3: a.e("s_cbranch_scc0 L_tail")
            a.e("s_barrier")
    a.e(("s_cbranch_scc1 L_loop%s" if A else "s_branch L_loop%s") % role)

def ysubs(a):
    for role in "AB":
        a.l.append(".p2align 6")
        a.lab("L_Y%s" % role)
        if role == "A": a.e("s_barrier")
        for x in Yseg(None): a.e(x)
        if role == "B": a.e("s_barrier")
        a.e("s_setpc_b64 %s" % sp(sRET))

def transition(a):
    a.lab("L_join")
    a.e("s_lshl_b32 s%d, s%d, 11" % (sA, sW))
    a.e("s_add_u32 s%d, s%d, 0x%x" % (sA, sA, L_QX))
    a.e("v_add_u32 v2, s%d, %s" % (sA, v(vL16)))
    a.e("v_xor_b32 v3, 0x2000, v2")
    a.e("s_cmp_lg_u32 s%d, 0" % sHI)
    a.e("s_cbranch_scc1 L_trB")
    vm0 = list(a.vm)
    for role in "AB":
        a.vm = list(vm0)
        A = role == "A"
        if not A: a.lab("L_trB")
        keep, send = (vAQ, vAQ + 8) if A else (vAQ + 8, vAQ)
        def qfin():
            a.e("s_waitcnt lgkmcnt(0)")
            for i in range(4): a.e("v_pk_add_f32 %s, %s, %s" % (v(keep + 2 * i, 2), v(keep + 2 * i, 2), v(send + 2 * i, 2)))
            for i in range(4): a.e("v_cvt_pk_bf16_f32 %s, %s, %s" % (v(vQ + i), v(keep + 2 * i), v(keep + 2 * i + 1)))
        def gelu():
            a.e("s_cmp_ge_u32 s%d, 14" % sM)
            a.e("s_cbranch_scc1 L_nog%s" % role)
            a.e("s_call_b64 %s, L_gelu%s" % (sp(sRET), role))
            a.vm += ["hst"] * 4
            a.lab("L_nog%s" % role)
        a.e("ds_write_b128 v2, %s" % v(send, 4))
        a.e("ds_write_b128 v2, %s offset:1024" % v(send + 4, 4))
        if Opt.stagger:
            if A:
                a.e("s_setprio 1")
                gelu()
            a.waitvm(["k0", "kv0", "kv1"], lgkm=True)
            a.e("s_barrier")
            a.e(rd128(send, 3, 0))
            a.e(rd128(send + 4, 3, 1024))
            if not A: gelu()
            qfin()
            a.e("s_nop 1")
        else:
            a.e("s_waitcnt lgkmcnt(0)")
            a.e("s_barrier")
            a.e(rd128(send, 3, 0))
            a.e(rd128(send + 4, 3, 1024))
            if A:
                a.e("s_setprio 1")
                gelu(); qfin()
                a.waitvm(["k0", "kv0", "kv1"])
                a.e("s_barrier")
            else:
                a.waitvm(["k0", "kv0", "kv1"], lgkm=True)
                a.e("s_barrier")
                gelu(); qfin()
                a.e("s_nop 1")
        a.e(mfma(vS, vK0, vQ, None))
        a.stamp(5)
        attention(a, role)
        if A: a.e("s_branch L_tail")

def tail(a):
    a.lab("L_tail")
    a.e("v_cvt_pk_bf16_f32 %s, %s, %s" % (v(vP + 7), v(vE + 2), v(vE + 3)))
    a.stamp(6)
    a.e("s_setprio 0")
    a.e("s_mov_b32 s%d, 0x%x" % (sC, f2u(2.0 ** -16)))
    a.e(mfma(vO, vV1L, vP + 4, vO))
    a.e("s_mov_b32 s%d, 0x%x" % (sD, f2u(2.0 ** 100)))
    a.e("s_nop 10")
    t = vFR
    a.e("v_rcp_f32 %s, %s" % (v(t + 2), v(vO + 8)))
    a.e("v_pk_mul_f32 %s, %s, 0 op_sel_hi:[1,0]" % (v(t, 2), v(vO, 2)))
    for i in range(1, 4): a.e("v_pk_fma_f32 %s, %s, 0, %s op_sel_hi:[1,0,1]" % (v(t, 2), v(vO + 2 * i, 2), v(t, 2)))
    a.e("v_add_f32 %s, %s, %s" % (v(t), v(t), v(t + 1)))
    a.e("v_add_f32 %s, %s, %s" % (v(t), v(t), v(vO + 8)))
    a.e("v_cmp_nle_f32 vcc, s%d, %s" % (sC, v(t)))
    a.e("v_cmp_nge_f32 %s, s%d, %s" % (sp(sTMPP), sD, v(t)))
    a.e("s_or_b64 vcc, vcc, %s" % sp(sTMPP))
    a.e("s_branch L_fb" if Opt.force_fb else "s_cbranch_scc1 L_fb")
    a.lab("L_fbret")
    a.e("v_mul_f32 %s, %s, %s" % (v(t + 2), v(t + 2), v(vGP)))
    for i in range(4): a.e("v_pk_mul_f32 %s, %s, %s op_sel_hi:[1,0]" % (v(vO + 2 * i, 2), v(vO + 2 * i, 2), v(t + 2, 2)))
    for i in range(4): a.e("v_cvt_pk_bf16_f32 %s, %s, %s" % (v(vP + i), v(vO + 2 * i), v(vO + 2 * i + 1)))
    for i in range(4): a.e("v_min_u32 %s, -2, %s" % (v(vP + i), v(vP + i)))
    a.e("buffer_store_dwordx4 %s, %s, %s, s%d offen sc1" % (v(vP, 4), v(vL16), srd(SWS), sOST))
    a.e("s_waitcnt vmcnt(1)")
    a.e("s_barrier")
    hreg = {21: vH + 0, 22: vH + 4, 23: vH + 8, 24: vH + 16, 25: vH + 20, 26: vH + 24, 27: vH + 28}
    wf = [vFR, vFR + 8, vFR + 16]
    for i in range(2):
        for r in wd_reads(wf[i], vWDA, i * 8192): a.e(r)
    for i in range(7):
        if i + 2 < 7:
            for r in wd_reads(wf[(i + 2) % 3], vWDA, (i + 2) * 8192): a.e(r)
        a.e("s_waitcnt lgkmcnt(%d)" % (4 * min(2, 6 - i)))
        for c in range(2): a.e(mfma(vD + 16 * c, wf[i % 3] + 4 * c, hreg[21 + i], vD + 16 * c))
    a.e("s_barrier")
    a.e("v_add_u32 %s, 0x%x, %s" % (v(vWDA), L_WO, v(vWDA)))
    a.e("v_sub_f32 %s, 1.0, %s" % (v(vGC), v(vGC)))
    a.e("s_waitcnt vmcnt(0)")
    a.stamp(7)
    for j in range(8):
        if j == 4: a.e("s_add_u32 s%d, s%d, 0x1000" % (sA, sOLD))
        a.e("buffer_load_dwordx4 %s, %s, %s, s%d offen offset:%d sc1" % (v(vS + 4 * j, 4), v(vL16), srd(SWS), sOLD if j < 4 else sA, (j % 4) * 1024))
    for i in range(2):
        for r in wd_reads(wf[i], vWDA, i * 8192): a.e(r)
    for i in range(16): a.e("v_pk_mul_f32 %s, %s, %s op_sel:[0,1] op_sel_hi:[1,1]" % (v(vD + 2 * i, 2), v(vD + 2 * i, 2), v(vGP, 2)))
    aw = vXA
    ar = vWA
    a.e("v_and_b32 v2, 31, v0")
    a.e("v_lshrrev_b32 v3, 5, v0")
    a.e("v_and_b32 v4, 7, v0")
    a.e("v_xor_b32 v3, v3, v4")
    a.e("v_lshlrev_b32 v3, 4, v3")
    a.e("v_lshl_add_u32 v3, v2, 8, v3")
    a.e("s_and_b32 s%d, s%d, 1" % (sB, sW))
    a.e("s_lshl_b32 s%d, s%d, 15" % (sB, sB))
    a.e("s_lshr_b32 s%d, s%d, 1" % (sC, sW))
    a.e("s_lshl_b32 s%d, s%d, 13" % (sD, sC))
    a.e("s_add_u32 s%d, s%d, s%d" % (sD, sD, sB))
    a.e("v_add_u32 %s, s%d, v3" % (v(aw), sD))
    for j in range(1, 4): a.e("v_xor_b32 %s, %d, %s" % (v(aw + j), 32 * j, v(aw)))
    a.e("v_lshrrev_b32 v2, 3, v0")
    a.e("v_lshlrev_b32 v3, 1, v4")
    a.e("v_xor_b32 v3, v3, v2")
    a.e("v_lshlrev_b32 v3, 4, v3")
    a.e("v_lshl_add_u32 v3, v2, 8, v3")
    a.e("s_lshl_b32 s%d, s%d, 11" % (sD, sC))
    a.e("s_add_u32 s%d, s%d, s%d" % (sD, sD, sB))
    a.e("v_add_u32 %s, s%d, v3" % (v(ar), sD))
    a.e("v_xor_b32 %s, 16, %s" % (v(ar + 1), v(ar)))
    a.e("v_lshlrev_b32 v4, 4, v4")
    a.e("v_lshl_add_u32 %s, v2, 10, v4" % v(ar + 2))
    a.e("s_lshl_b32 s%d, s%d, 13" % (sC, sC))
    a.e("s_add_u32 s%d, s%d, s%d" % (sB, sB, sC))
    a.e("s_lshl_b32 s%d, s%d, 16" % (sC, sT))
    a.e("s_add_u32 s%d, s%d, s%d" % (sB, sB, sC))
    a.e("s_lshl_b32 s%d, s%d, 7" % (sC, sCB))
    a.e("s_add_u32 s%d, s%d, s%d" % (sCNT, sB, sC))
    a.e("s_mov_b32 s%d, 0x2000" % sB)
    for j in range(8):
        o = vS + 4 * j
        if j + 2 < 8:
            for r in wd_reads(wf[(j + 2) % 3], vWDA, (j + 2) * 8192): a.e(r)
        a.lab("L_ochk%d" % j)
        a.e("s_waitcnt vmcnt(%d)" % (7 - j))
        a.e("v_max3_u32 v2, %s, %s, %s" % (v(o), v(o + 1), v(o + 2)))
        a.e("v_max_u32 v2, v2, %s" % v(o + 3))
        a.e("v_cmp_eq_u32 vcc, -1, v2")
        a.e("s_cbranch_vccnz L_ore%d" % j)
        a.lab("L_ook%d" % j)
        a.e("s_waitcnt lgkmcnt(%d)" % (4 * min(2, 7 - j)))
        for c in range(2): a.e(mfma(vD + 16 * c, wf[j % 3] + 4 * c, o, vD + 16 * c))
    a.stamp(8)
    a.e("s_nop 10")
    for c in range(2):
        for j in range(4):
            a.e("ds_write_b128 %s, %s offset:%d" % (v(aw + j), v(vD + 16 * c + 4 * j, 4), 128 * c))
    a.e("s_waitcnt lgkmcnt(0)")
    a.e("s_barrier")
    for p in range(4):
        for h in range(2): a.e(rd128(vS + 8 * p + 4 * h, ar + h, p * 8192))
    for p in range(1, 4):
        a.e("s_waitcnt lgkmcnt(%d)" % (6 - 2 * p))
        for i in range(4): a.e("v_pk_add_f32 %s, %s, %s" % (v(vS + 2 * i, 2), v(vS + 2 * i, 2), v(vS + 8 * p + 2 * i, 2)))
    for i in range(4): a.e("v_cvt_pk_bf16_f32 %s, %s, %s" % (v(vP + i), v(vS + 2 * i), v(vS + 2 * i + 1)))
    a.e("buffer_store_dwordx4 %s, %s, %s, s%d offen %s" % (v(vP, 4), v(ar + 2), srd(SOUT), sCNT, Opt.out_pol))
    if Opt.pin == 9:
        a.e("s_waitcnt vmcnt(0)")
        a.stamp(9)
    if Opt.diag:
        a.e("s_waitcnt vmcnt(0)")
        a.stamp(9)
        a.e("s_mov_b32 s%d, s%d" % (sSTAMP + 3, sSTAMP))
        a.e("s_mov_b32 s%d, s%d" % (sSTAMP, sB))
        a.e("s_getreg_b32 s%d, hwreg(HW_REG_XCC_ID)" % (sSTAMP + 1))
        for i in range(20): a.e("v_mov_b32 %s, s%d" % (v(vS + i), sSTAMP + i))
        a.e("s_lshl_b32 s%d, s2, 3" % sA)
        a.e("s_add_u32 s%d, s%d, s%d" % (sA, sA, sW))
        a.e("s_lshl_b32 s%d, s%d, 7" % (sA, sA))
        a.e("s_add_u32 s%d, s%d, 0x%x" % (sA, sA, WS_STAMP))
        a.e("s_mov_b64 exec, 1")
        for i in range(5): a.e("buffer_store_dwordx4 %s, off, %s, s%d offset:%d" % (v(vS + 4 * i, 4), srd(SWS), sA, 16 * i))
    a.lab("L_end")
    a.e("s_endpgm")
    for j in range(8):
        a.lab("L_ore%d" % j)
        a.e("s_sub_u32 s%d, s%d, 1" % (sB, sB))
        a.e("s_cbranch_scc1 L_ogive%d" % j)
        a.e("s_waitcnt vmcnt(0)")
        for i in range(j, 8):
            a.e("buffer_load_dwordx4 %s, %s, %s, s%d offen offset:%d sc1" % (v(vS + 4 * i, 4), v(vL16), srd(SWS), sOLD if i < 4 else sA, (i % 4) * 1024))
        a.e("s_branch L_ochk%d" % j)
        a.lab("L_ogive%d" % j)
        a.e("s_mov_b32 s%d, 0" % sB)
        a.e("s_branch L_ook%d" % j)

def fallback(a):
    a.lab("L_fb")
    m = vFR + 4
    a.e("v_mov_b32 %s, 0xff800000" % v(m))
    a.e("s_mov_b32 s%d, 0" % sA)
    a.lab("L_fb1")
    a.e("buffer_load_dwordx4 %s, %s, %s, s%d offen sc1" % (v(vKF, 4), v(vL16), srd(SKV), sA))
    a.e("s_waitcnt vmcnt(0)")
    a.e(mfma(vS, vKF, vQ, None))
    a.e("s_add_u32 s%d, s%d, 2048" % (sA, sA))
    a.e("s_nop 11")
    for i in range(8): a.e("v_max3_f32 %s, %s, %s, %s" % (v(m), v(m), v(vS + 2 * i), v(vS + 2 * i + 1)))
    a.e("s_cmp_lt_u32 s%d, 0x20000" % sA)
    a.e("s_cbranch_scc1 L_fb1")
    a.e("v_mov_b32 %s, %s" % (v(m + 1), v(m)))
    a.e("s_nop 1")
    a.e("v_permlane32_swap_b32 %s, %s" % (v(m), v(m + 1)))
    a.e("s_nop 1")
    a.e("v_max_f32 %s, %s, %s" % (v(m), v(m), v(m + 1)))
    for i in range(16): a.e("v_sub_f32 %s, 0, %s" % (v(vS + 16 + i), v(m)))
    for i in range(16): a.e("v_mov_b32 %s, 0" % v(vO + i))
    a.e("s_mov_b32 s%d, 0" % sA)
    a.lab("L_fb2")
    a.e("s_add_u32 s%d, s%d, 0x%x" % (sB, sA, 63 * 2048))
    a.e("s_and_b32 s%d, s%d, 0x1ffff" % (sB, sB))
    a.e("buffer_load_dwordx4 %s, %s, %s, s%d offen sc1" % (v(vKF, 4), v(vL16), srd(SKV), sB))
    a.e("s_add_u32 s%d, s%d, 2048" % (sB, sA))
    a.e("s_and_b32 s%d, s%d, 0x1ffff" % (sB, sB))
    a.e("s_mov_b64 exec, %s" % sp(sVM))
    a.e("buffer_load_dwordx4 %s, %s, %s, s%d offen offset:1024 sc1" % (v(vV, 4), v(vL16), srd(SKV), sA))
    a.e("buffer_load_dwordx4 %s, %s, %s, s%d offen offset:1280 sc1" % (v(vV + 4, 4), v(vL16), srd(SKV), sB))
    a.e("s_mov_b64 exec, -1")
    a.e("s_waitcnt vmcnt(0)")
    a.e(mfma(vS, vKF, vQ, vS + 16))
    a.e("s_add_u32 s%d, s%d, 2048" % (sA, sA))
    a.e("s_nop 11")
    for i in range(16): a.e("v_exp_f32 %s, %s" % (v(vS + i), v(vS + i)))
    for i in range(8): a.e("v_cvt_pk_bf16_f32 %s, %s, %s" % (v(vP + i), v(vS + 2 * i), v(vS + 2 * i + 1)))
    a.e("s_nop 1")
    a.e(mfma(vO, vV, vP, vO))
    a.e(mfma(vO, vV + 4, vP + 4, vO))
    a.e("s_cmp_lt_u32 s%d, 0x20000" % sA)
    a.e("s_cbranch_scc1 L_fb2")
    a.e("s_nop 11")
    a.e("v_rcp_f32 %s, %s" % (v(vFR + 2), v(vO + 8)))
    a.e("s_branch L_fbret")

def build():
    a = Asm()
    prologue(a)
    phase1_F(a)
    transition(a)
    tail(a)
    ysubs(a)
    vm = a.vm; gelu_sub(a); a.vm = vm
    phase1_L(a)
    fallback(a)
    a.lab("L_codeend")
    il = a.l.index("L_light:")
    for i, x in enumerate(a.l):
        if x.endswith(" lds") and "sc1" not in x and " nt" not in x:
            if (Opt.ntx & 4 and (srd(SWD) in x or srd(SWO) in x)) or (Opt.ntx & 8 and i > il):
                a.l[i] = x[:-4] + " nt lds"
    head = open("cdna_kernels/%s.s.ref" % NAME).read().split("\n")
    hdr = [l for l in head if l.startswith(";") and "@launch" not in l and "Override" not in l and "grid=" not in l]
    out = hdr + ["; @launch grid=(256,1,1) block=(512,1,1) lds=%d" % LDS_BYTES,
                 '.amdgcn_target "amdgcn-amd-amdhsa--gfx950"', ".text", ".globl %s_kernel" % NAME, ".p2align 8",
                 ".type %s_kernel,@function" % NAME,
                 ".set CODE_PF_MAX, L_codeend - L_nopf - 4" if Opt.code_pf else "",
                 "%s_kernel:" % NAME]
    out += ["; mapmode %d" % Opt.mapmode, "; xrot %d" % Opt.xrot]
    out += a.l
    out += ['.section .rodata,"a"', ".p2align 6", ".amdhsa_kernel %s_kernel" % NAME,
            "  .amdhsa_next_free_vgpr %d" % NV, "  .amdhsa_next_free_sgpr 102", "  .amdhsa_accum_offset 256",
            "  .amdhsa_group_segment_fixed_size 0", "  .amdhsa_kernarg_size 104", "  .amdhsa_user_sgpr_count 2",
            "  .amdhsa_user_sgpr_kernarg_segment_ptr 1", "  .amdhsa_system_sgpr_workgroup_id_x 1", ".end_amdhsa_kernel", ""]
    return "\n".join(out)

if __name__ == "__main__":
    path = sys.argv[1]
    for kv in sys.argv[2:]:
        k, val = kv.split("=")
        cur = getattr(Opt, k)
        setattr(Opt, k, val if isinstance(cur, str) else type(cur)(int(val)))
    open(path, "w").write(build())
```

```python
import sys, struct, math

NAME = "gated_mix__grouped_kv_mqa__geglu_ffn__prompt"

class Opt:
    diag = False
    mapmode = 1
    force_fb = False
    out_pol = ""
    code_pf = True
    xrot = 0
    npre = 7
    stagger = 1
    npd = 3
    kdiag = 0
    fillpre = 60
    fillper = 6
    gsc = 3
    xmask = 1
    ntx = 0
    touch = 2
    rotg = 0
    rotm = 0
    startbar = 1
    pvz = 1
    pin = -1
    pin_ns = 60000
    probe = -1
    probe_l = 0

def f2u(x): return struct.unpack("<I", struct.pack("<f", x))[0]

WS_KV = 0
WS_G = 128 * 1024
WS_HFLAG = 192 * 1024
WS_OF = 1 << 20
WS_HF = 4 << 20
WS_STAMP = 12 << 20
WS_SIZE = 16 << 20
K1 = 1024
L_G, L_U, L_X, L_WQ = 0, 48 * K1, 96 * K1, 144 * K1
L_QX = 32 * K1
L_WD, L_WO, L_KV = 0, 64 * K1, 128 * K1
LL_X, LL_W, LL_GATE, LL_WQ = 0, 128 * K1, 144 * K1, 128 * K1
LDS_BYTES = 160 * K1

SX, SWG, SWU, SWQ, SWS, SWD, SWO, SOUT, SDBG, SWKV, SGATE, SKV = 4, 8, 12, 16, 20, 24, 28, 32, 36, 40, 44, 64
SWV = 72
sTMPP = 48
sW, sHI, sLO, sG, sM, sT, sCB = 50, 51, 52, 53, 54, 55, 56
sWK = 57
sWH = 58
sK64 = 59
sVM = 60
sRET = 62
sA, sB, sC, sD = 68, 69, 70, 71
sOFFW, sOFFQ, sCH, sXP = 72, 73, 74, 75
sHOFF, sWDOFF, sKVOFF, sM0WD, sM0KV, sCNT = 72, 73, 74, 75, 76, 77
sOST, sOLD, sHST = 78, 79, 80
sHP = 81
sSTAMP = 82

def srd(b): return "s[%d:%d]" % (b, b + 3)
def sp(b): return "s[%d:%d]" % (b, b + 1)
def v(b, n=1): return "v%d" % b if n == 1 else "v[%d:%d]" % (b, b + n - 1)

vL16 = 1
vT0, vT1, vT2, vT3 = 2, 3, 4, 5
vGP, vGC = 6, 7
vKVA = 8
vWDA = 9
vWDV = 10
vONE = 11
vZERO = 12
vFLA = 13
vPOLL = 14
vGA = 15
vQ = 16
vK0 = 20
vV1L = 24
vE = 28
vP = 32
vV = 40
vO = 56
vD = 72
vACC = 104
vS = 104
vH = 136
vAQ = 168
vKF = 168
vWF = 176
vFR = 184
vXA = 224
vWA = 232
vQA = 236
vDX, vDG, vDU, vDQ = 237, 238, 239, 240
vC0 = 242
NV = 256

class Asm:
    def __init__(self):
        self.l = []
        self.vm = []
        self.nstamp = 0
    def e(self, s):
        for x in s.split("\n"):
            x = x.strip()
            if x: self.l.append("    " + x)
    def lab(self, s): self.l.append(s + ":")
    def vmop(self, s, tag):
        self.e(s); self.vm.append(tag)
    def vmn(self, tags):
        if isinstance(tags, str): tags = [tags]
        last = -1
        for i, t in enumerate(self.vm):
            if t in tags: last = i
        return None if last < 0 else len(self.vm) - 1 - last
    def waitvm(self, tags, lgkm=False):
        n = self.vmn(tags)
        if n is None:
            if lgkm: self.e("s_waitcnt lgkmcnt(0)")
            return
        assert n < 64
        self.e("s_waitcnt vmcnt(%d)%s" % (n, " lgkmcnt(0)" if lgkm else ""))
        self.vm = self.vm[len(self.vm) - n:] if n else []
    def wait0(self, lgkm=False):
        self.e("s_waitcnt vmcnt(0)%s" % (" lgkmcnt(0)" if lgkm else "")); self.vm = []
    def stamp(self, i, real=False):
        if Opt.probe == i:
            self.e("s_waitcnt lgkmcnt(0)")
            self.e("s_memrealtime %s" % sp(sSTAMP + 4))
            self.e("s_waitcnt lgkmcnt(0)")
        if Opt.pin == i:
            self.nstamp += 1
            self.e("s_waitcnt lgkmcnt(0)")
            self.e("s_cselect_b32 s%d, 1, 0" % (sSTAMP + 5))
            self.lab("L_pin%d" % self.nstamp)
            self.e("s_memrealtime s[0:1]")
            self.e("s_waitcnt lgkmcnt(0)")
            self.e("s_sub_u32 s0, s0, s%d" % sSTAMP)
            self.e("s_cmp_lt_u32 s0, %d" % (Opt.pin_ns // 10))
            self.e("s_cbranch_scc1 L_pin%d" % self.nstamp)
            self.e("s_cmp_lg_u32 s%d, 0" % (sSTAMP + 5))
        if Opt.diag and not Opt.kdiag:
            self.e("s_waitcnt lgkmcnt(0)")
            self.e("s_memtime %s" % sp(sSTAMP + 2 * i))
            self.e("s_memrealtime s[0:1]")
            self.e("s_waitcnt lgkmcnt(0)")
            self.e("s_mov_b32 s%d, s0" % (sSTAMP + 2 * i + 1))

def kstamp(a, i):
    if Opt.diag and Opt.kdiag: a.e("s_memtime %s" % sp(sSTAMP + 2 * i))

def mfma(d, a, b, c):
    return "v_mfma_f32_32x32x16_bf16 %s, %s, %s, %s" % (v(d, 16), v(a, 4), v(b, 4), "0" if c is None else v(c, 16))
def rd128(d, a, off):
    assert 0 <= off < 65536
    return "ds_read_b128 %s, %s offset:%d" % (v(d, 4), v(a), off)
def rdtr(d, a, off):
    assert 0 <= off < 65536
    return "ds_read_b64_tr_b16 %s, %s offset:%d" % (v(d, 2), v(a), off)

def interleave(mf, fill, per=2):
    out = []
    fill = list(fill)
    for i, m in enumerate(mf):
        out.append(m)
        if i < len(mf) - 1:
            out += fill[:per]; fill = fill[per:]
    return out + fill

def srd_words(a, regs):
    sizes = {SX: 2048 * 1024, SWG: 512 * 3584, SWU: 512 * 3584, SWQ: 512 * 1024, SWS: WS_SIZE, SWKV: 16384, SWV: 16384,
             SGATE: 1024, SWD: 1792 * 1024, SWO: 512 * 1024, SOUT: 2048 * 1024, SDBG: 256, SKV: 128 * 1024}
    for reg in regs:
        a.e("s_mov_b32 s%d, 0x%x" % (reg + 2, sizes[reg]))
        a.e("s_mov_b32 s%d, 0x20000" % (reg + 3))

def prologue(a):
    a.e("s_cmp_ge_u32 s2, 256")
    a.e("s_cbranch_scc1 L_end")
    for reg, off in ((SX, 0), (SWG, 48), (SWU, 56), (SWQ, 8), (SWS, 96), (SWKV, 16), (sTMPP, 24), (SGATE, 72),
                     (SWD, 64), (SWO, 32), (SOUT, 80), (SDBG, 88), (SKV, 96)):
        a.e("s_load_dwordx2 %s, s[0:1], %d" % (sp(reg), off))
    if Opt.probe >= 0: a.e("s_memrealtime %s" % sp(sSTAMP + 4))
    if Opt.diag or Opt.pin >= 0 or Opt.probe >= 0:
        a.e("s_memrealtime %s" % sp(sSTAMP))
        a.e("s_memtime %s" % sp(sSTAMP + 2))
    a.e("v_lshrrev_b32 v2, 6, v0")
    a.e("v_and_b32 v0, 63, v0")
    a.e("v_readfirstlane_b32 s%d, v2" % sW)
    a.e("v_lshlrev_b32 %s, 4, v0" % v(vL16))
    srd_words(a, [SX, SWQ])
    a.e("s_and_b32 s%d, s2, 7" % sA)
    a.e("s_lshr_b32 s%d, s2, 3" % sB)
    a.e("s_lshl_b32 s%d, s%d, 2" % (sT, sA))
    a.e("s_and_b32 s%d, s%d, 3" % (sD, sB))
    a.e("s_add_u32 s%d, s%d, s%d" % (sT, sT, sD))
    a.e("s_lshr_b32 s%d, s%d, 2" % (sCB, sB))
    if Opt.xrot:
        a.e("s_add_u32 s%d, s%d, %d" % (sA, sA, Opt.xrot))
        a.e("s_and_b32 s%d, s%d, 7" % (sA, sA))
    if Opt.mapmode == 0:
        a.e("s_lshl_b32 s%d, s%d, 1" % (sG, sA))
        a.e("s_and_b32 s%d, s%d, 1" % (sC, sB))
        a.e("s_add_u32 s%d, s%d, s%d" % (sG, sG, sC))
        a.e("s_lshr_b32 s%d, s%d, 1" % (sM, sB))
        a.e("s_mov_b32 s%d, s%d" % (sHP, sM))
    elif Opt.mapmode in (1, 3):
        a.e("s_and_b32 s%d, s%d, 1" % (sG, sA))
        a.e("s_lshl_b32 s%d, s%d, 3" % (sG, sG))
        a.e("s_and_b32 s%d, s%d, 7" % (sC, sB))
        a.e("s_add_u32 s%d, s%d, s%d" % (sG, sG, sC))
        a.e("s_lshr_b32 s%d, s%d, 1" % (sA, sA))
        a.e("s_lshl_b32 s%d, s%d, 2" % (sHP, sA))
        a.e("s_lshr_b32 s%d, s%d, 3" % (sC, sB))
        a.e("s_add_u32 s%d, s%d, s%d" % (sHP, sHP, sC))
        if Opt.mapmode == 1:
            a.e("s_mov_b32 s%d, s%d" % (sM, sHP))
        else:
            a.e("s_sub_u32 s%d, s%d, s%d" % (sM, sHP, sA))
            a.e("s_lshr_b32 s%d, s%d, 1" % (sB, sB))
            a.e("s_and_b32 s%d, s%d, 2" % (sB, sB))
            a.e("s_add_u32 s%d, s%d, s%d" % (sB, sB, sA))
            a.e("s_and_b32 s%d, s%d, 3" % (sB, sB))
            a.e("s_add_u32 s%d, s%d, 12" % (sB, sB))
            a.e("s_cmp_eq_u32 s%d, 3" % sC)
            a.e("s_cselect_b32 s%d, s%d, s%d" % (sM, sB, sM))
    else:
        a.e("s_and_b32 s%d, s%d, 3" % (sG, sA))
        a.e("s_lshl_b32 s%d, s%d, 2" % (sG, sG))
        a.e("s_add_u32 s%d, s%d, s%d" % (sG, sG, sD))
        a.e("s_lshr_b32 s%d, s%d, 2" % (sM, sA))
        a.e("s_lshl_b32 s%d, s%d, 3" % (sM, sM))
        a.e("s_add_u32 s%d, s%d, s%d" % (sM, sM, sCB))
        a.e("s_mov_b32 s%d, s%d" % (sHP, sM))
    a.e("s_lshl_b32 s%d, s%d, 10" % (sWK, sW))
    a.e("s_mov_b32 s%d, 0x10000" % sK64)
    if Opt.code_pf:
        a.e("s_cmp_lg_u32 s%d, s%d" % (sD, sW))
        a.e("s_cbranch_scc1 L_nopf")
        a.e("s_getpc_b64 %s" % sp(sRET))
        a.e("s_lshl_b32 s%d, s%d, 13" % (sD, sW))
        a.e("v_lshl_add_u32 v2, v0, 7, s%d" % sD)
        a.e("v_min_u32 v2, CODE_PF_MAX, v2")
        a.e("global_load_dword %s, v2, %s" % (v(vPOLL), sp(sRET)))
        a.lab("L_nopf")
    a.e("s_lshl_b32 s%d, s%d, 2" % (sA, sW))
    a.e("v_lshrrev_b32 v2, 4, v0")
    a.e("v_add_u32 v3, s%d, v2" % sA)
    a.e("v_xor_b32 v3, v3, v0")
    a.e("v_and_b32 v3, 7, v3")
    a.e("v_lshlrev_b32 v3, 4, v3")
    a.e("v_lshrrev_b32 v4, 3, v0")
    a.e("v_lshl_add_u32 v3, v4, 10, v3")
    a.e("s_lshl_b32 s%d, s%d, 17" % (sA, sG))
    a.e("s_lshl_b32 s%d, s%d, 13" % (sB, sW))
    a.e("s_add_u32 s%d, s%d, s%d" % (sA, sA, sB))
    a.e("v_add_u32 %s, s%d, v3" % (v(vDX), sA))
    a.e("s_cmp_ge_u32 s%d, 14" % sM)
    a.e("s_cbranch_scc1 L_light")

def setup_rd(a):
    a.e("s_lshr_b32 s%d, s%d, 2" % (sHI, sW))
    a.e("s_and_b32 s%d, s%d, 3" % (sLO, sW))
    a.e("v_and_b32 v2, 31, v0")
    a.e("v_lshrrev_b32 v3, 5, v0")
    a.e("v_bfe_u32 v4, v0, 1, 3")
    a.e("v_xor_b32 v4, v4, v3")
    a.e("v_lshlrev_b32 v4, 4, v4")
    a.e("v_lshl_add_u32 %s, v2, 7, v4" % v(vXA))
    a.e("v_bfe_u32 v2, v0, 2, 2")
    a.e("v_and_b32 v4, 3, v0")
    a.e("v_bfe_u32 v5, v0, 4, 1")
    a.e("v_lshl_add_u32 %s, v3, 3, v2" % v(vQA))
    a.e("v_lshlrev_b32 %s, 6, %s" % (v(vQA), v(vQA)))
    a.e("v_lshl_add_u32 %s, v5, 5, %s" % (v(vQA), v(vQA)))
    a.e("v_lshl_add_u32 %s, v4, 3, %s" % (v(vQA), v(vQA)))

def setup_oclr(a):
    srd_words(a, [SWS, SKV, SDBG])
    a.e("s_mov_b32 s%d, 0xffff" % sVM)
    a.e("s_mov_b32 s%d, 0xffff" % (sVM + 1))
    a.e("s_lshl_b32 s%d, s%d, 2" % (sA, sG))
    a.e("s_add_u32 s%d, s%d, s%d" % (sA, sA, sLO))
    a.e("s_lshl_b32 s%d, s%d, 5" % (sB, sA))
    a.e("s_lshl_b32 s%d, s%d, 1" % (sC, sHP))
    a.e("s_add_u32 s%d, s%d, s%d" % (sB, sB, sC))
    a.e("s_add_u32 s%d, s%d, s%d" % (sB, sB, sHI))
    a.e("s_lshl_b32 s%d, s%d, 10" % (sB, sB))
    a.e("s_add_u32 s%d, s%d, 0x%x" % (sOST, sB, WS_OF))
    for i in range(4): a.e("v_mov_b32 %s, -1" % v(vP + i))
    a.vmop("buffer_store_dwordx4 %s, %s, %s, s%d offen sc1" % (v(vP, 4), v(vL16), srd(SWS), sOST), "oclr")
    a.e("v_mov_b32 %s, 1" % v(vONE))
    a.e("v_mov_b32 %s, 0" % v(vZERO))
    a.e("v_and_b32 %s, 31, v0" % v(vGA))
    a.e("v_lshlrev_b32 %s, 2, %s" % (v(vGA), v(vGA)))

def collect(fn):
    t = Asm(); t.marks = {}
    def vmop(s_, tag):
        t.e(s_); t.marks[len(t.l) - 1] = tag
    t.vmop = vmop
    fn(t)
    return [(x, t.marks.get(i)) for i, x in enumerate(t.l)]
def put(a, items):
    for x, tag in items:
        if tag: a.vmop(x, tag)
        else: a.e(x)

def setup_attn(a):
    srd_words(a, [SWD, SWO, SOUT])
    a.e("s_lshl_b32 s%d, s%d, 2" % (sA, sG))
    a.e("s_add_u32 s%d, s%d, s%d" % (sA, sA, sLO))
    a.e("s_mul_i32 s%d, s%d, 112" % (sB, sA))
    a.e("s_lshl_b32 s%d, s%d, 3" % (sC, sM))
    a.e("s_add_u32 s%d, s%d, s%d" % (sB, sB, sC))
    a.e("s_lshl_b32 s%d, s%d, 2" % (sC, sHI))
    a.e("s_add_u32 s%d, s%d, s%d" % (sB, sB, sC))
    a.e("s_and_b32 s%d, s%d, 1" % (sC, sLO))
    a.e("s_lshl_b32 s%d, s%d, 1" % (sC, sC))
    a.e("s_add_u32 s%d, s%d, s%d" % (sB, sB, sC))
    a.e("s_lshl_b32 s%d, s%d, 10" % (sB, sB))
    a.e("s_add_u32 s%d, s%d, 0x%x" % (sHST, sB, WS_HF))
    a.e("v_bfe_u32 v2, v0, 2, 2")
    a.e("v_lshrrev_b32 v3, 5, v0")
    a.e("v_lshl_add_u32 v2, v3, 2, v2")
    a.e("v_lshlrev_b32 v2, 6, v2")
    a.e("v_bfe_u32 v3, v0, 4, 1")
    a.e("v_lshl_add_u32 v2, v3, 5, v2")
    a.e("v_and_b32 v3, 3, v0")
    a.e("v_lshl_add_u32 v2, v3, 3, v2")
    a.e("s_lshr_b32 s%d, s%d, 1" % (sA, sW))
    a.e("s_lshl_b32 s%d, s%d, 11" % (sA, sA))
    a.e("v_add_u32 %s, s%d, v2" % (v(vWDA), sA))
    a.e("v_add_u32 %s, 0x%x, %s" % (v(vKVA), L_KV, v(vL16)))
    a.e("v_bfe_u32 v2, v0, 2, 3")
    a.e("v_lshlrev_b32 v2, 10, v2")
    a.e("v_lshrrev_b32 v3, 5, v0")
    a.e("v_lshl_add_u32 v2, v3, 6, v2")
    a.e("v_and_b32 v3, 3, v0")
    a.e("v_lshl_add_u32 v2, v3, 4, v2")
    a.e("s_and_b32 s%d, s%d, 1" % (sA, sW))
    a.e("s_lshl_b32 s%d, s%d, 13" % (sA, sA))
    a.e("s_lshl_b32 s%d, s%d, 7" % (sB, sCB))
    a.e("s_add_u32 s%d, s%d, s%d" % (sA, sA, sB))
    a.e("v_add_u32 %s, s%d, v2" % (v(vWDV), sA))
    a.e("v_min_u32 v2, 13, v0")
    a.e("v_lshlrev_b32 v2, 7, v2")
    a.e("s_lshr_b32 s%d, s%d, 1" % (sA, sT))
    a.e("s_lshl_b32 s%d, s%d, 11" % (sA, sA))
    a.e("s_add_u32 s%d, s%d, 0x%x" % (sA, sA, WS_HFLAG))
    a.e("v_add_u32 %s, s%d, v2" % (v(vFLA), sA))
    a.e("s_lshl_b32 s%d, s%d, 1" % (sA, sT))
    a.e("s_and_b32 s%d, s%d, 1" % (sB, sW))
    a.e("s_add_u32 s%d, s%d, s%d" % (sA, sA, sB))
    a.e("s_lshl_b32 s%d, s%d, 15" % (sB, sA))
    a.e("s_lshr_b32 s%d, s%d, 1" % (sC, sW))
    a.e("s_lshl_b32 s%d, s%d, 13" % (sC, sC))
    a.e("s_add_u32 s%d, s%d, s%d" % (sB, sB, sC))
    a.e("s_add_u32 s%d, s%d, 0x%x" % (sOLD, sB, WS_OF))
    if Opt.pvz:
        a.e("v_and_b32 v2, 27, v0")
        a.e("v_cmp_eq_u32 vcc, 16, v2")
        a.e("v_mov_b32 v3, 0x3f803f80")
        a.e("s_nop 0")
        a.e("v_cndmask_b32 v2, 0, v3, vcc")
    else:
        a.e("v_mov_b32 v2, 0x3f803f80")
    for i in range(16): a.e("v_mov_b32 %s, v2" % v(vV + i))
    for i in range(4): a.e("v_mov_b32 %s, v2" % v(vV1L + i))
    for i in range(4): a.e("v_mov_b32 %s, 0" % v(vE + i))
    for i in range(4, 8): a.e("v_mov_b32 %s, 0" % v(vP + i))
    for i in range(16): a.e("v_mov_b32 %s, 0" % v(vO + i))
    for i in range(32): a.e("v_mov_b32 %s, 0" % v(vD + i))
    c0 = -2.0 * math.sqrt(2.0 / math.pi) * math.log2(math.e)
    a.e("v_mov_b32 %s, 0x%x" % (v(vC0), f2u(c0)))
    a.e("v_mov_b32 %s, 0x%x" % (v(vC0 + 1), f2u(c0 * 0.044715)))

def kv_first_loads(a):
    it = []
    for u in range(2):
        it.append(("s_add_u32 m0, s%d, 0x%x\ns_add_u32 s%d, s%d, 0x%x\nbuffer_load_dwordx4 %s, %s, s%d offen sc1 lds"
                   % (sWK, L_KV + u * 8192, sA, sWK, u * 8192, v(vL16), srd(SKV), sA), "kv%d" % u))
    it.append(("s_mov_b32 s%d, 0x%x\nbuffer_load_dwordx4 %s, %s, %s, s%d offen sc1"
               % (sA, 63 * 2048, v(vK0, 4), v(vL16), srd(SKV), sA), "k0"))
    it.append(("s_mov_b64 exec, %s\nbuffer_load_dwordx4 %s, %s, %s, 0 offen offset:%d sc1\ns_mov_b64 exec, -1"
               % (sp(sVM), v(vV1L, 4), v(vL16), srd(SKV), 1024 + 256), "k0"))
    it.append(("s_lshl_b32 s%d, s%d, 2\ns_add_u32 s%d, s%d, s%d\ns_lshl_b32 s%d, s%d, 7\ns_add_u32 s%d, s%d, 0x%x\n"
               "buffer_load_dword %s, %s, %s, s%d offen sc1"
               % (sA, sG, sA, sA, sLO, sA, sA, sA, sA, WS_G, v(vGP), v(vGA), srd(SWS), sA), "k0"))
    it.append(("s_lshl_b32 s%d, s%d, 1\ns_and_b32 s%d, s%d, 1\ns_add_u32 s%d, s%d, s%d\ns_lshl_b32 s%d, s%d, 7\ns_add_u32 s%d, s%d, 0x%x\n"
               "buffer_load_dword %s, %s, %s, s%d offen sc1"
               % (sA, sT, sB, sW, sA, sA, sB, sA, sA, sA, sA, WS_G, v(vGC), v(vGA), srd(SWS), sA), "k0"))
    return it

def spin_counter(a, name, first_loaded):
    a.e("s_cmp_lg_u32 s%d, 0" % sW)
    a.e("s_cbranch_scc1 L_%s_done" % name)
    a.e("s_mov_b32 s%d, 0x4000" % sB)
    if first_loaded: a.e("s_branch L_%s_chk" % name)
    a.lab("L_%s_re" % name)
    a.e("buffer_load_dword %s, off, %s, 0 sc1" % (v(vPOLL), srd(SDBG)))
    a.e("s_waitcnt vmcnt(0)")
    a.lab("L_%s_chk" % name)
    a.e("v_readfirstlane_b32 s%d, %s" % (sA, v(vPOLL)))
    a.e("s_cmp_ge_u32 s%d, 32" % sA)
    a.e("s_cbranch_scc1 L_%s_done" % name)
    a.e("s_sleep 4")
    a.e("s_sub_u32 s%d, s%d, 1" % (sB, sB))
    a.e("s_cmp_lg_u32 s%d, 0" % sB)
    a.e("s_cbranch_scc1 L_%s_re" % name)
    a.lab("L_%s_done" % name)

def phase1_F(a):
    srd_words(a, [SWG, SWU])
    a.e("s_lshl_b32 s%d, s%d, 9" % (sWH, sW))
    a.e("v_bfe_u32 v3, v0, 1, 3")
    a.e("v_xor_b32 v3, v3, v2")
    a.e("v_lshlrev_b32 v3, 5, v3")
    a.e("v_and_b32 v4, 1, v0")
    a.e("v_lshl_add_u32 v3, v4, 4, v3")
    a.e("v_xor_b32 v4, 0x80, v3")
    a.e("v_mul_u32_u24 v5, 3584, v2")
    a.e("s_mul_i32 s%d, s%d, %d" % (sA, sW, 4 * 3584))
    a.e("s_lshl_b32 s%d, s%d, 8" % (sB, sM))
    a.e("s_add_u32 s%d, s%d, s%d" % (sA, sA, sB))
    a.e("v_add3_u32 %s, v3, v5, s%d" % (v(vDG), sA))
    a.e("v_add3_u32 %s, v4, v5, s%d" % (v(vDU), sA))
    a.e("v_lshrrev_b32 v3, 2, v0")
    a.e("v_lshlrev_b32 v3, 10, v3")
    a.e("v_and_b32 v4, 3, v0")
    a.e("v_lshl_add_u32 v3, v4, 4, v3")
    a.e("s_lshl_b32 s%d, s%d, 13" % (sA, sW))
    a.e("s_lshl_b32 s%d, s%d, 6" % (sB, sHP))
    a.e("s_add_u32 s%d, s%d, s%d" % (sA, sA, sB))
    a.e("v_add_u32 %s, s%d, v3" % (v(vDQ), sA))
    a.e("s_add_u32 s%d, s%d, s%d" % (sA, sG, sHP))
    a.e("s_and_b32 s%d, s%d, %d" % (sXP, sA, Opt.xmask))
    a.e("s_mov_b32 s%d, s%d" % (sCH, sXP))

    def dmas(c):
        s = c % 3
        t = "c%d" % c
        it = []
        def one(m0src, m0c, vo, rs, so, pre="s_nop 0", post=""):
            nt = " nt" if Opt.ntx & (1 if rs == SX else 2) else ""
            return ("s_add_u32 m0, s%d, 0x%x\n%s\nbuffer_load_dwordx4 %s, %s, s%d offen%s lds\n%s"
                    % (m0src, m0c, pre, v(vo), srd(rs), so, nt, post), t)
        it.append(one(sWK, L_X + s * 16384, vDX, SX, sOFFQ, pre="s_lshl_b32 s%d, s%d, 7" % (sOFFQ, sCH)))
        it.append(one(sWK, L_X + s * 16384 + 8192, vDX, SX, sOFFQ, pre="s_add_u32 s%d, s%d, s%d" % (sOFFQ, sOFFQ, sK64)))
        it.append(one(sWK, L_G + s * 16384, vDG, SWG, sOFFW, pre="s_mul_i32 s%d, s%d, %d" % (sOFFW, sCH, 64 * 3584)))
        it.append(one(sWK, L_U + s * 16384, vDU, SWU, sOFFW, pre="s_lshl_b32 s%d, s%d, 16" % (sOFFQ, sCH)))
        it.append(one(sWK, L_G + s * 16384 + 8192, vDG, SWG, sOFFW, pre="s_add_u32 s%d, s%d, %d" % (sOFFW, sOFFW, 32 * 3584)))
        it.append(one(sWK, L_U + s * 16384 + 8192, vDU, SWU, sOFFW, pre="s_xor_b32 s%d, s%d, %d" % (sCH, sXP, c + 1)))
        it.append(one(sWH, L_WQ + s * 4096, vDQ, SWQ, sOFFQ, pre="s_mov_b32 exec_hi, 0",
                      post="s_mov_b32 exec_hi, -1"))
        return it

    def rdsetup(a):
        setup_rd(a)
        a.e("v_lshl_add_u32 %s, v3, 3, v2" % v(vWA))
        a.e("v_lshlrev_b32 %s, 8, %s" % (v(vWA), v(vWA)))
        a.e("v_lshl_add_u32 %s, v4, 3, %s" % (v(vWA), v(vWA)))
        a.e("v_mul_u32_u24 v4, 0x%x, v5" % (L_U - L_G))
        a.e("v_add_u32 %s, v4, %s" % (v(vWA), v(vWA)))
        a.e("v_lshl_add_u32 v2, v5, 2, v2")
        a.e("s_lshl_b32 s%d, s%d, 2" % (sA, sHI))
        a.e("s_and_b32 s%d, s%d, 1" % (sB, sLO))
        a.e("s_lshl_b32 s%d, s%d, 1" % (sB, sB))
        a.e("s_add_u32 s%d, s%d, s%d" % (sA, sA, sB))
        a.e("v_xor_b32 v2, s%d, v2" % sA)
        a.e("v_lshl_add_u32 %s, v2, 5, %s" % (v(vWA), v(vWA)))
        a.e("s_lshl_b32 s%d, s%d, 13" % (sA, sHI))
        a.e("s_xor_b32 s%d, s%d, 0x2000" % (sB, sA))
        a.e("v_add_u32 %s, s%d, %s" % (v(vWA + 2), sB, v(vWA)))
        a.e("v_add_u32 %s, s%d, %s" % (v(vWA), sA, v(vWA)))
        a.e("v_xor_b32 %s, 32, %s" % (v(vWA + 1), v(vWA)))
        a.e("v_xor_b32 %s, 32, %s" % (v(vWA + 3), v(vWA + 2)))
        a.e("s_lshl_b32 s%d, s%d, 6" % (sA, sHI))
        a.e("s_lshl_b32 s%d, s%d, 12" % (sB, sLO))
        a.e("s_add_u32 s%d, s%d, s%d" % (sA, sA, sB))
        a.e("s_add_u32 s%d, s%d, 0x%x" % (sA, sA, L_X))
        a.e("v_xor_b32 %s, s%d, %s" % (v(vXA), sA, v(vXA)))
        for s in range(1, 4): a.e("v_xor_b32 %s, %d, %s" % (v(vXA + s), 32 * s, v(vXA)))
        for s in range(4): a.e("v_xor_b32 %s, 0x1000, %s" % (v(vXA + 4 + s), v(vXA + s)))
        a.e("s_lshl_b32 s%d, s%d, 11" % (sA, sHI))
        a.e("s_add_u32 s%d, s%d, 0x%x" % (sA, sA, L_WQ))
        a.e("v_add_u32 %s, s%d, %s" % (v(vQA), sA, v(vQA)))

    a.e("s_waitcnt lgkmcnt(0)")
    a.stamp(2)
    put(a, dmas(0))
    if Opt.touch & 1:
        a.e("s_cmp_ge_u32 s%d, 3" % sW)
        a.e("s_cbranch_scc1 L_notouch")
        a.e("v_lshrrev_b32 v2, 1, v0")
        a.e("s_add_u32 s%d, s%d, 128" % (sA, sG))
        a.e("v_lshl_add_u32 v2, v2, 4, s%d" % sA)
        a.e("s_cmp_eq_u32 s%d, 2" % sW)
        a.e("s_cbranch_scc1 L_touchq")
        a.e("v_mul_u32_u24 v2, 3584, v2")
        a.e("v_and_b32 v3, 1, v0")
        a.e("v_lshl_add_u32 v2, v3, 7, v2")
        a.e("s_lshl_b32 s%d, s%d, 8" % (sA, sM))
        a.e("s_cmp_eq_u32 s%d, 1" % sW)
        a.e("s_cbranch_scc1 L_touchu")
        a.e("buffer_load_dword %s, v2, %s, s%d offen" % (v(vPOLL), srd(SWG), sA))
        a.e("s_branch L_notouch")
        a.lab("L_touchu")
        a.e("buffer_load_dword %s, v2, %s, s%d offen" % (v(vPOLL), srd(SWU), sA))
        a.e("s_branch L_notouch")
        a.lab("L_touchq")
        a.e("v_lshlrev_b32 v2, 10, v2")
        a.e("s_lshl_b32 s%d, s%d, 6" % (sA, sHP))
        a.e("buffer_load_dword %s, v2, %s, s%d offen" % (v(vPOLL), srd(SWQ), sA))
        a.lab("L_notouch")
    if Opt.startbar: a.e("s_barrier")
    pend = dmas(1) + dmas(2)
    st = collect(rdsetup)
    gap = len(st) // (Opt.npre + 1) + 1
    for i in range(Opt.npre):
        put(a, pend[:1]); pend = pend[1:]
        put(a, st[:gap]); st = st[gap:]
    put(a, st)
    fill = collect(setup_oclr) + collect(setup_attn)
    put(a, fill[:Opt.fillpre]); fill = fill[Opt.fillpre:]

    def fr(k):
        b = vFR + 20 * (k % 2)
        return dict(x0=b, x1=b + 4, w0=b + 8, w1=b + 12, q=b + 16)
    def reads(k):
        c, s = divmod(k, 4); f = fr(k); sl = c % 3
        wo = sl * 16384 + (s & 1) * 4096
        wa = vWA + 2 * (s >> 1)
        r = [rdtr(f['w0'], wa, wo), rdtr(f['w0'] + 2, wa, wo + 1024),
             rd128(f['x0'], vXA + s, sl * 16384), rd128(f['x1'], vXA + 4 + s, sl * 16384),
             rdtr(f['w1'], wa + 1, wo), rdtr(f['w1'] + 2, wa + 1, wo + 1024)]
        if s < 2:
            r += [rdtr(f['q'], vQA, sl * 4096 + s * 1024), rdtr(f['q'] + 2, vQA, sl * 4096 + s * 1024 + 256)]
        return r
    n0 = a.vmn("c0")
    if Opt.touch & 1:
        a.e("s_cmp_ge_u32 s%d, 3" % sW)
        a.e("s_cbranch_scc1 L_w0a")
        a.e("s_waitcnt vmcnt(%d)" % (n0 + 1))
        a.e("s_branch L_w0b")
        a.lab("L_w0a")
        a.waitvm("c0")
        a.lab("L_w0b")
    else:
        a.waitvm("c0")
    a.e("s_barrier")
    a.stamp(3)
    kstamp(a, 2)
    for r in reads(0): a.e(r)
    kpoll = 21 if Opt.stagger else 23
    for k in range(32):
        c, s = divmod(k, 4); f = fr(k)
        if s == 3 and c < 7:
            assert not any(t == "c%d" % (c + 1) for _, t in pend)
            if c == 6 and Opt.stagger:
                a.e("s_waitcnt lgkmcnt(0)")
                a.e("s_cmp_lg_u32 s%d, 0" % sHI)
                a.e("s_cbranch_scc1 L_st7")
                a.e("s_waitcnt vmcnt(0)")
                spin_counter(a, "kvf", True)
                a.e("s_barrier")
                a.e("s_setprio 1")
                for x, _ in kv_first_loads(a): a.e(x)
                a.lab("L_st7")
            else:
                if c == 6:
                    a.wait0(lgkm=True)
                    spin_counter(a, "kvf", True)
                else:
                    a.waitvm("c%d" % (c + 1), lgkm=True)
                a.e("s_barrier")
                if c + 3 < 8: pend += dmas(c + 3)
                if c == 6: pend += kv_first_loads(a)
            kstamp(a, 3 + c)
        else:
            a.e("s_waitcnt lgkmcnt(0)")
        z = lambda x: None if k == 0 else x
        mf = [mfma(vACC, f['w0'], f['x0'], z(vACC)), mfma(vACC + 16, f['w0'], f['x1'], z(vACC + 16)),
              mfma(vACC + 32, f['w1'], f['x0'], z(vACC + 32)), mfma(vACC + 48, f['w1'], f['x1'], z(vACC + 48))]
        if s < 2: mf.append(mfma(vAQ, f['q'], f['x0'], z(vAQ)))
        for x in interleave(mf, reads(k + 1) if k < 31 else []): a.e(x)
        npd = 3 if len(pend) > 7 or k < 3 else Opt.npd
        put(a, pend[:npd]); pend = pend[npd:]
        if k >= 4:
            put(a, fill[:Opt.fillper]); fill = fill[Opt.fillper:]
        if k == kpoll:
            assert not fill
            a.e("s_cmp_lg_u32 s%d, 0" % sW)
            a.e("s_cbranch_scc1 L_nopoll")
            a.e("buffer_load_dword %s, off, %s, 0 sc1" % (v(vPOLL), srd(SDBG)))
            a.lab("L_nopoll")
        if k == 23 and Opt.stagger:
            assert not pend
            a.e("s_cmp_eq_u32 s%d, 0" % sHI)
            a.e("s_cbranch_scc1 L_st6")
            a.wait0()
            a.e("s_barrier")
            put(a, kv_first_loads(a))
            a.lab("L_st6")
    assert not pend
    a.stamp(4)

def phase1_L(a):
    a.lab("L_light")
    a.vm = []
    srd_words(a, [SWKV, SWV, SGATE])
    a.e("s_sub_u32 s%d, s%d, 14" % (sCNT, sM))
    a.e("s_lshl_b32 s%d, s%d, 16" % (sOLD, sCNT))
    a.e("s_lshl_b32 s%d, s%d, 13" % (sHST, sCNT))
    a.e("s_add_u32 s%d, s%d, s%d" % (sWH, sHST, sWK))
    a.e("s_xor_b32 s%d, s%d, 0x2000" % (sHST, sHST))
    a.e("s_add_u32 s%d, s%d, 0x2000" % (sA, sWK))
    a.e("s_waitcnt lgkmcnt(0)")
    a.stamp(2)
    a.e("s_mov_b32 s%d, s%d" % (SWV, sTMPP))
    a.e("s_mov_b32 s%d, s%d" % (SWV + 1, sTMPP + 1))
    def xdma(c, base, so):
        a.vmop("s_add_u32 m0, s%d, 0x%x\ns_nop 0\nbuffer_load_dwordx4 %s, %s, s%d offen offset:%d lds"
               % (base, LL_X + c * 16384 - c * 128, v(vDX), srd(SX), so, c * 128), "c%d" % c)
    def wdma(u):
        for t, rs in enumerate((SWKV, SWV)):
            a.vmop("s_add_u32 m0, s%d, 0x%x\ns_nop 0\nbuffer_load_dwordx4 %s, %s, s%d offen lds"
                   % (sWK, LL_W + t * 16384 + u * 8192, v(vL16), srd(rs), sA if u else sWK), "w")
    wdma(0)
    a.vmop("s_mov_b32 m0, s%d\ns_nop 0\nbuffer_load_dwordx4 %s, %s, 0 offen lds" % (sHST, v(vL16), srd(SGATE)), "w")
    for c in range(8):
        if c == 4: wdma(1)
        xdma(c, sWH, sOLD)
        if c in (1, 3, 5): a.e("s_barrier")
    setup_rd(a)
    a.e("v_lshl_add_u32 %s, v3, 3, v2" % v(vWA))
    a.e("v_lshlrev_b32 %s, 5, %s" % (v(vWA), v(vWA)))
    a.e("v_lshl_add_u32 %s, v4, 3, %s" % (v(vWA), v(vWA)))
    a.e("s_lshr_b32 s%d, s%d, 1" % (sA, sLO))
    a.e("s_lshl_b32 s%d, s%d, 14" % (sA, sA))
    a.e("s_add_u32 s%d, s%d, 0x%x" % (sA, sA, LL_W))
    a.e("v_add_u32 %s, s%d, %s" % (v(vWA), sA, v(vWA)))
    a.e("v_lshl_add_u32 %s, v3, 4, s%d" % (v(vWA + 1), sHST))
    a.e("v_mov_b32 %s, %s" % (v(vWA + 2), v(vXA)))
    a.e("s_and_b32 s%d, s%d, 1" % (sA, sLO))
    a.e("s_lshl_b32 s%d, s%d, 1" % (sB, sCNT))
    a.e("s_add_u32 s%d, s%d, s%d" % (sCNT, sA, sB))
    a.e("s_lshl_b32 s%d, s%d, 12" % (sA, sCNT))
    a.e("v_add_u32 %s, s%d, %s" % (v(vXA), sA, v(vXA)))
    for s in range(1, 4): a.e("v_xor_b32 %s, %d, %s" % (v(vXA + s), 32 * s, v(vXA)))
    for s in range(4): a.e("v_add_u32 %s, 0x10000, %s" % (v(vXA + 4 + s), v(vXA + s)))
    setup_oclr(a)
    vm0 = list(a.vm)
    a.e("s_cmp_lg_u32 s%d, 0" % sHI)
    a.e("s_cbranch_scc1 L_lB")
    a.e("s_not_b64 %s, %s" % (sp(sTMPP), sp(sVM)))
    a.e("s_cmp_ge_u32 s%d, 2" % sLO)
    a.e("s_cbranch_scc1 L_lV")
    def chain(kind):
        a.vm = list(vm0)
        def fr(k):
            b = vFR + 8 * (k % 4)
            return b, b + 4
        def reads(k):
            c, s = divmod(k, 4); x, w = fr(k)
            r = [rd128(x, vXA + s + 4 * (c >> 2), (c & 3) * 16384), rdtr(w, vWA, k * 512), rdtr(w + 2, vWA, k * 512 + 128)]
            if kind == "K":
                r += ["s_mov_b64 exec, %s" % sp(sTMPP), rd128(w, vWA + 1, k * 32), "s_mov_b64 exec, -1"]
            return r
        for q in range(4):
            a.waitvm("c%d" % (2 * q + 1))
            a.e("s_barrier")
            nr = 4 if kind == "K" else 3
            for k in range(8 * q, 8 * q + 2):
                for r in reads(k): a.e(r)
            for k in range(8 * q, 8 * q + 8):
                if k + 2 < 8 * q + 8:
                    for r in reads(k + 2): a.e(r)
                left = min(2, 8 * q + 7 - k)
                a.e("s_waitcnt lgkmcnt(%d)" % (left * nr))
                x, w = fr(k)
                cc = None if k == 0 else vACC
                a.e(mfma(vACC, w, x, cc) if kind == "K" else mfma(vACC, x, w, cc))
        a.e("s_lshl_b32 s%d, s%d, 2" % (sA, sG))
        a.e("s_add_u32 s%d, s%d, s%d" % (sA, sA, sCNT))
        a.e("s_nop 12")
        if kind == "K":
            a.e("s_mov_b32 s%d, 0x%x" % (sC, f2u(0.25 * math.log2(math.e))))
            for i in range(8): a.e("v_mul_f32 %s, s%d, %s" % (v(vACC + i), sC, v(vACC + i)))
            a.e("v_mul_f32 %s, 0x%x, %s" % (v(vACC + 8), f2u(-math.log2(math.e)), v(vACC + 8)))
            a.e("v_exp_f32 %s, %s" % (v(vACC + 8), v(vACC + 8)))
            for i in range(4): a.e("v_cvt_pk_bf16_f32 %s, %s, %s" % (v(vFR + i), v(vACC + 2 * i), v(vACC + 2 * i + 1)))
            a.e("v_add_f32 %s, 1.0, %s" % (v(vACC + 8), v(vACC + 8)))
            a.e("v_rcp_f32 %s, %s" % (v(vACC + 8), v(vACC + 8)))
            a.e("s_add_u32 s%d, s%d, 63" % (sB, sA))
            a.e("s_and_b32 s%d, s%d, 63" % (sB, sB))
            a.e("s_lshl_b32 s%d, s%d, 11" % (sB, sB))
            a.e("buffer_store_dwordx4 %s, %s, %s, s%d offen sc1" % (v(vFR, 4), v(vL16), srd(SKV), sB))
            a.e("s_lshl_b32 s%d, s%d, 7" % (sB, sA))
            a.e("s_add_u32 s%d, s%d, 0x%x" % (sB, sB, WS_G))
            a.e("s_mov_b32 exec_hi, 0")
            a.e("buffer_store_dword %s, %s, %s, s%d offen sc1" % (v(vACC + 8), v(vGA), srd(SWS), sB))
            a.e("s_mov_b64 exec, -1")
        else:
            for i in range(8): a.e("v_cvt_pk_bf16_f32 %s, %s, %s" % (v(vFR + i), v(vACC + 2 * i), v(vACC + 2 * i + 1)))
            a.e("v_bfe_u32 v2, v0, 4, 1")
            a.e("v_add_u32 v2, s%d, v2" % sA)
            a.e("v_and_b32 v2, 63, v2")
            a.e("v_lshl_add_u32 v2, v2, 11, %s" % v(vL16))
            for i in range(4): a.e("v_cndmask_b32 %s, %s, %s, %s" % (v(vFR + i), v(vFR + 4 + i), v(vFR + i), sp(sVM)))
            a.e("buffer_store_dwordx4 %s, v2, %s, 0 offen offset:1024 sc1" % (v(vFR, 4), srd(SKV)))
        a.e("s_branch L_lJ")
    chain("K")
    a.lab("L_lV")
    chain("V")
    a.lab("L_lB")
    a.vm = list(vm0)
    a.e("s_cmp_lg_u32 s%d, 14" % sM)
    a.e("s_cbranch_scc1 L_nozf")
    a.e("s_cmp_lg_u32 s%d, 4" % sW)
    a.e("s_cbranch_scc1 L_nozf")
    a.e("v_lshlrev_b32 v2, 7, v0")
    a.e("s_lshl_b32 s%d, s%d, 11" % (sA, sG))
    a.e("s_add_u32 s%d, s%d, 0x%x" % (sA, sA, WS_HFLAG))
    a.e("s_mov_b64 exec, 0xffff")
    a.e("buffer_store_dword %s, v2, %s, s%d offen sc1" % (v(vZERO), srd(SWS), sA))
    a.e("s_mov_b64 exec, -1")
    a.lab("L_nozf")
    for q in range(4):
        a.waitvm("c%d" % (2 * q + 1))
        a.e("s_barrier")
    a.lab("L_lJ")
    a.e("v_lshrrev_b32 v3, 2, v0")
    a.e("v_lshlrev_b32 v3, 10, v3")
    a.e("v_and_b32 v4, 3, v0")
    a.e("v_lshl_add_u32 v3, v4, 4, v3")
    a.e("s_lshl_b32 s%d, s%d, 14" % (sA, sW))
    a.e("s_lshl_b32 s%d, s%d, 6" % (sB, sHP))
    a.e("s_add_u32 s%d, s%d, s%d" % (sA, sA, sB))
    a.e("v_add_u32 %s, s%d, v3" % (v(vDQ), sA))
    a.e("s_xor_b32 s%d, s%d, 0x2000" % (sWH, sWH))
    a.e("s_xor_b32 s%d, s%d, 0x10000" % (sOLD, sOLD))
    a.wait0(lgkm=True)
    a.e("s_barrier")
    a.e("s_cmp_lg_u32 s%d, 0" % sW)
    a.e("s_cbranch_scc1 L_noat")
    a.e("s_mov_b64 exec, 1")
    a.e("buffer_atomic_add %s, off, %s, 0 sc1" % (v(vONE), srd(SDBG)))
    a.e("s_mov_b64 exec, -1")
    a.lab("L_noat")
    a.stamp(3)
    for c in range(8): xdma(c, sWH, sOLD)
    for p in range(4):
        a.e("s_add_u32 m0, s%d, 0x%x" % (sWK, LL_WQ + p * 8192))
        a.e("s_mov_b32 s%d, 0x%x" % (sA, p * 128 * 1024))
        a.e("buffer_load_dwordx4 %s, %s, s%d offen lds" % (v(vDQ), srd(SWQ), sA))
    setup_attn(a)
    if Opt.touch & 2:
        a.e("s_lshl_b32 s%d, s%d, 1" % (sA, sG))
        a.e("s_add_u32 s%d, s%d, s%d" % (sA, sA, sM))
        a.e("s_sub_u32 s%d, s%d, 14" % (sA, sA))
        a.e("s_lshl_b32 s%d, s%d, 3" % (sA, sA))
        a.e("s_add_u32 s%d, s%d, s%d" % (sA, sA, sW))
        a.e("v_lshlrev_b32 v2, 15, v0")
        a.e("s_lshl_b32 s%d, s%d, 7" % (sA, sA))
        a.e("buffer_load_dword %s, v2, %s, s%d offen" % (v(vPOLL), srd(SWO), sA))
        a.e("buffer_load_dword %s, v2, %s, s%d offen" % (v(vPOLL), srd(SWD), sA))
    a.e("s_lshl_b32 s%d, s%d, 16" % (sA, sHI))
    a.e("s_lshl_b32 s%d, s%d, 12" % (sB, sLO))
    a.e("s_add_u32 s%d, s%d, s%d" % (sA, sA, sB))
    a.e("v_add_u32 %s, s%d, %s" % (v(vXA), sA, v(vWA + 2)))
    for s in range(1, 4): a.e("v_xor_b32 %s, %d, %s" % (v(vXA + s), 32 * s, v(vXA)))
    a.e("s_lshl_b32 s%d, s%d, 14" % (sA, sHI))
    a.e("s_add_u32 s%d, s%d, 0x%x" % (sA, sA, LL_WQ))
    a.e("v_add_u32 %s, s%d, %s" % (v(vQA), sA, v(vQA)))
    a.e("s_waitcnt vmcnt(%d)" % (2 if Opt.touch & 2 else 0))
    a.e("s_barrier")
    def fr(k):
        b = vFR + 8 * (k % 4)
        return b, b + 4
    def reads(k):
        c, s = divmod(k, 4); x, w = fr(k)
        return [rd128(x, vXA + s, c * 16384), rdtr(w, vQA, k * 1024), rdtr(w + 2, vQA, k * 1024 + 256)]
    for k in range(2):
        for r in reads(k): a.e(r)
    for k in range(16):
        if k + 2 < 16:
            for r in reads(k + 2): a.e(r)
        a.e("s_waitcnt lgkmcnt(%d)" % (3 * min(2, 15 - k)))
        x, w = fr(k)
        a.e(mfma(vAQ, w, x, None if k == 0 else vAQ))
    spin_counter(a, "kvl", False)
    a.e("s_barrier")
    for s, t in kv_first_loads(a): a.e(s)
    a.wait0()
    a.stamp(4)
    a.e("s_branch L_join")

def gelu_tile(a, ti, scalar=False):
    acc = vACC + 16 * ti
    t = vFR
    o = vFR + 8 + 4 * ti
    pk = lambda r: v(r, 2)
    if scalar:
        for i in range(8): a.e("v_mul_f32 %s, %s, %s" % (v(t + i), v(acc + i), v(acc + i)))
        for i in range(8): a.e("v_fma_f32 %s, %s, %s, %s" % (v(t + i), v(t + i), v(vC0 + 1), v(vC0)))
        for i in range(8): a.e("v_mul_f32 %s, %s, %s" % (v(t + i), v(t + i), v(acc + i)))
        for i in range(8): a.e("v_exp_f32 %s, %s" % (v(t + i), v(t + i)))
        for i in range(8): a.e("v_add_f32 %s, 1.0, %s" % (v(t + i), v(t + i)))
        for i in range(8): a.e("v_rcp_f32 %s, %s" % (v(t + i), v(t + i)))
        for i in range(8): a.e("v_mul_f32 %s, %s, %s" % (v(acc + i), v(acc + i), v(acc + 8 + i)))
        for i in range(8): a.e("v_mul_f32 %s, %s, %s" % (v(acc + i), v(acc + i), v(t + i)))
    R4, R8 = (range(0), range(0)) if scalar else (range(4), range(8))
    for i in R4: a.e("v_pk_mul_f32 %s, %s, %s" % (pk(t + 2 * i), pk(acc + 2 * i), pk(acc + 2 * i)))
    for i in R4: a.e("v_pk_fma_f32 %s, %s, %s, %s op_sel:[0,1,0] op_sel_hi:[1,1,0]" % (pk(t + 2 * i), pk(t + 2 * i), pk(vC0), pk(vC0)))
    for i in R4: a.e("v_pk_mul_f32 %s, %s, %s" % (pk(t + 2 * i), pk(t + 2 * i), pk(acc + 2 * i)))
    for i in R8: a.e("v_exp_f32 %s, %s" % (v(t + i), v(t + i)))
    for i in R4: a.e("v_pk_add_f32 %s, %s, 1.0 op_sel_hi:[1,0]" % (pk(t + 2 * i), pk(t + 2 * i)))
    for i in R8: a.e("v_rcp_f32 %s, %s" % (v(t + i), v(t + i)))
    for i in R4: a.e("v_pk_mul_f32 %s, %s, %s" % (pk(acc + 2 * i), pk(acc + 2 * i), pk(acc + 8 + 2 * i)))
    for i in R4: a.e("v_pk_mul_f32 %s, %s, %s" % (pk(acc + 2 * i), pk(acc + 2 * i), pk(t + 2 * i)))
    for i in range(4): a.e("v_cvt_pk_bf16_f32 %s, %s, %s" % (v(o + i), v(acc + 2 * i), v(acc + 2 * i + 1)))
    aa, bb = ti >> 1, ti & 1
    a.vmop("buffer_store_dwordx4 %s, %s, %s, s%d offen offset:%d sc1" % (v(o, 4), v(vL16), srd(SWS), sD if bb else sHST, aa * 1024), "hst")

def gelu_head(a):
    a.e("s_bitcmp1_b32 s%d, 0" % sLO)
    a.e("s_cselect_b32 s%d, 0x%x, 0x%x" % (sD, (-112 * 1024) & 0xffffffff, 0))
    a.e("s_cselect_b32 s%d, 0, 0x%x" % (sC, 112 * 1024))
    a.e("s_add_u32 s%d, s%d, s%d" % (sD, sD, sC))
    a.e("s_add_u32 s%d, s%d, s%d" % (sD, sD, sHST))

def gelu_sub(a):
    if Opt.stagger and Opt.gsc:
        a.lab("L_geluA")
        gelu_head(a)
        for ti in range(Opt.gsc): gelu_tile(a, ti, True)
        a.e("s_branch L_gelu%d" % Opt.gsc)
    else:
        a.lab("L_geluA")
    a.lab("L_geluB")
    gelu_head(a)
    for ti in range(4):
        gelu_tile(a, ti)
        a.lab("L_gelu%d" % (ti + 1))
    a.e("s_setpc_b64 %s" % sp(sRET))

def Yseg(hset, toggle=False):
    out = []
    for t in range(2):
        S, Sn = vS + 16 * t, vS + 16 * (1 - t)
        K, V0, V1 = vKF + 4 * t, vV + 8 * t, vV + 8 * t + 4
        for j in range(8):
            out.append("v_exp_f32 %s, %s" % (v(vE + 2 * (j % 2)), v(S + 2 * j)))
            out.append("v_exp_f32 %s, %s" % (v(vE + 2 * (j % 2) + 1), v(S + 2 * j + 1)))
            jj = (j - 1) % 8
            out.append("v_cvt_pk_bf16_f32 %s, %s, %s" % (v(vP + jj), v(vE + 2 * (jj % 2)), v(vE + 2 * (jj % 2) + 1)))
            if j == 1: out.append(mfma(vO, V1, vP + 4, vO))
            if j == 3: out.append(mfma(Sn, K, vQ, None))
            if hset is None:
                if j == 7: out.append(mfma(vO, V0, vP, vO))
            else:
                if j == 5: out.append(mfma(vO, V0, vP, vO))
                if j == 6 and t == 1 and toggle:
                    out.append("v_xor_b32 %s, 0x4000, %s" % (v(vKVA), v(vKVA)))
                    out.append("v_xor_b32 %s, 0x8000, %s" % (v(vWDA), v(vWDA)))
                if j == 7: out.append(mfma(vD + 16 * t, vWF + 4 * t, vH + 4 * hset, vD + 16 * t))
    return out

def kv_reads(off):
    r = [rd128(vKF, vKVA, off), rd128(vKF + 4, vKVA, off + 2048), "s_mov_b64 exec, %s" % sp(sVM)]
    for t in range(2):
        r += [rd128(vV + 8 * t, vKVA, off + 2048 * t + 1024), rd128(vV + 8 * t + 4, vKVA, off + 2048 * t + 1280)]
    r.append("s_mov_b64 exec, -1")
    return r
def wd_reads(dst, addr, off):
    r = []
    for c in range(2):
        r += [rdtr(dst + 4 * c, addr, off + 512 * c), rdtr(dst + 4 * c + 2, addr, off + 512 * c + 1024)]
    return r

def attention(a, role):
    A = role == "A"
    def kvdma(u):
        a.vmop("s_add_u32 m0, s%d, 0x%x\ns_add_u32 s%d, s%d, 0x%x\nbuffer_load_dwordx4 %s, %s, s%d offen sc1 lds"
               % (sWK, L_KV + (u % 4) * 8192, sA, sWK, u * 8192, v(vL16), srd(SKV), sA), "kv%d" % u)
    def wddma(sg):
        a.vmop("s_add_u32 m0, s%d, 0x%x\ns_add_u32 s%d, s%d, 0x%x\nbuffer_load_dwordx4 %s, %s, s%d offen lds"
               % (sWK, L_WD + ((sg + 3) % 8) * 8192, sA, sWDOFF, sg * 16384, v(vWDV), srd(SWD), sA), "wd%d" % sg)
    def wodma(j):
        a.vmop("s_add_u32 m0, s%d, 0x%x\ns_add_u32 s%d, s%d, 0x%x\nbuffer_load_dwordx4 %s, %s, s%d offen lds"
               % (sWK, L_WO + j * 8192, sA, sB, j * 16384, v(vWDV), srd(SWO), sA), "wo")
    def hload(sg, dst):
        a.vmop("s_add_u32 s%d, s%d, 0x%x\nbuffer_load_dwordx4 %s, %s, %s, s%d offen sc1"
               % (sA, sHOFF, sg * 1024, v(dst, 4), v(vL16), srd(SWS), sA), "h%d" % sg)
    for n in range(11):
        if not A and n == 0: a.e("s_barrier")
        tags = []
        if A and n % 2 == 1: tags.append("kv%d" % ((n + 1) // 2))
        if not A and n % 2 == 0: tags.append("kv%d" % ((n + 2) // 2))
        if n == 2: tags.append("hst")
        if n == 10: tags.append("wd0")
        if n == 8 and A:
            a.e("s_cmp_lg_u32 s%d, 0" % sW)
            a.e("s_cbranch_scc1 L_hf_done")
            a.e("s_mov_b32 s%d, 0x4000" % sB)
            a.e("s_waitcnt vmcnt(2)")
            a.lab("L_hf_chk")
            a.e("v_cmp_ne_u32 vcc, 1, %s" % v(vPOLL))
            a.e("s_cbranch_vccz L_hf_done")
            a.e("s_sleep 2")
            a.e("buffer_load_dword %s, %s, %s, 0 offen sc1" % (v(vPOLL), v(vFLA), srd(SWS)))
            a.e("s_sub_u32 s%d, s%d, 1" % (sB, sB))
            a.e("s_cmp_lg_u32 s%d, 0" % sB)
            a.e("s_waitcnt vmcnt(0)")
            a.e("s_cbranch_scc1 L_hf_chk")
            a.lab("L_hf_done")
        a.waitvm(tags)
        if n == 3 and not A:
            a.e("s_cmp_ge_u32 s%d, 14" % sM)
            a.e("s_cbranch_scc1 L_nohf")
            a.e("s_cmp_lg_u32 s%d, 4" % sW)
            a.e("s_cbranch_scc1 L_nohf")
            a.e("s_lshl_b32 s%d, s%d, 4" % (sA, sG))
            a.e("s_add_u32 s%d, s%d, s%d" % (sA, sA, sM))
            a.e("s_lshl_b32 s%d, s%d, 7" % (sA, sA))
            a.e("s_add_u32 s%d, s%d, 0x%x" % (sA, sA, WS_HFLAG))
            a.e("s_mov_b64 exec, 1")
            a.e("buffer_store_dword %s, off, %s, s%d sc1" % (v(vONE), srd(SWS), sA))
            a.e("s_mov_b64 exec, -1")
            a.lab("L_nohf")
        for r in kv_reads((n % 8) * 4096): a.e(r)
        if n == 7 and A:
            a.e("s_cmp_lg_u32 s%d, 0" % sW)
            a.e("s_cbranch_scc1 L_hf_nol")
            a.e("buffer_load_dword %s, %s, %s, 0 offen sc1" % (v(vPOLL), v(vFLA), srd(SWS)))
            a.lab("L_hf_nol")
        if n == 0:
            kvdma(2); kvdma(3)
            a.e("s_lshr_b32 s%d, s%d, 1" % (sC, sW))
            a.e("s_mul_i32 s%d, s%d, %d" % (sWDOFF, sC, 448 * 1024))
            a.e("s_lshl_b32 s%d, s%d, 1" % (sA, sT))
            a.e("s_and_b32 s%d, s%d, 1" % (sB, sW))
            a.e("s_add_u32 s%d, s%d, s%d" % (sA, sA, sB))
            a.e("s_mul_i32 s%d, s%d, 112" % (sA, sA))
            a.e("s_mul_i32 s%d, s%d, 28" % (sB, sC))
            a.e("s_add_u32 s%d, s%d, s%d" % (sA, sA, sB))
            a.e("s_lshl_b32 s%d, s%d, 10" % (sA, sA))
            a.e("s_add_u32 s%d, s%d, 0x%x" % (sHOFF, sA, WS_HF))
        if (A and n % 2 == 1 and n >= 3): kvdma((n + 5) // 2)
        if (not A and n % 2 == 0 and n >= 2): kvdma((n + 6) // 2)
        if 1 <= n <= 3:
            a.e("s_lshr_b32 s%d, s%d, 1" % (sB, sW))
            a.e("s_lshl_b32 s%d, s%d, 17" % (sB, sB))
            for j in {1: (0, 1, 2), 2: (3, 4, 5), 3: (6, 7)}[n]: wodma(j)
        if n >= 4: wddma(n - 4)
        if n == 9:
            hload(0, vH + 12); hload(1, vH + 0); hload(24, vH + 16); hload(25, vH + 20)
        if n == 10:
            hload(26, vH + 24); hload(27, vH + 28); hload(2, vH + 4)
        a.e("s_waitcnt lgkmcnt(0)")
        a.e("s_call_b64 %s, L_Y%s" % (sp(sRET), role))
    a.e("s_add_u32 s%d, s%d, 0x%x" % (sHOFF, sHOFF, 3 * 1024))
    a.e("s_add_u32 s%d, s%d, 0x%x" % (sWDOFF, sWDOFF, 7 * 16384))
    a.e("s_mov_b32 s%d, 0x%x" % (sM0WD, ((7 + 3) % 8) * 8192))
    u0 = 8 if A else 9
    a.e("s_add_u32 s%d, s%d, 0x%x" % (sKVOFF, sWK, u0 * 8192))
    a.e("s_mov_b32 s%d, 6" % sCNT)
    a.waitvm(["h0", "wd1", "kv6"] if A else ["h0", "wd1"])
    a.e("s_branch L_loop%s_in" % role)
    a.l.append(".p2align 6")
    a.lab("L_loop%s" % role)
    for p in range(4):
        a.e("s_waitcnt vmcnt(5)")
        if p == 3: a.lab("L_loop%s_in" % role)
        for r in kv_reads(p * 4096): a.e(r)
        for r in wd_reads(vWF, vWDA, p * 8192): a.e(r)
        a.e("buffer_load_dwordx4 %s, %s, %s, s%d offen sc1" % (v(vH + 4 * ((p + 3) % 4), 4), v(vL16), srd(SWS), sHOFF))
        a.e("s_add_u32 m0, s%d, s%d" % (sWK, sM0WD))
        a.e("s_add_u32 s%d, s%d, 0x400" % (sHOFF, sHOFF))
        a.e("buffer_load_dwordx4 %s, %s, s%d offen lds" % (v(vWDV), srd(SWD), sWDOFF))
        a.e("s_add_u32 s%d, s%d, 0x4000" % (sWDOFF, sWDOFF))
        a.e("s_add_u32 s%d, s%d, 0x2000" % (sM0WD, sM0WD))
        a.e("s_and_b32 s%d, s%d, 0xffff" % (sM0WD, sM0WD))
        if (p % 2 == 1) == A:
            a.e("s_and_b32 s%d, s%d, 0x7fff" % (sA, sKVOFF))
            a.e("s_add_u32 m0, s%d, 0x%x" % (sA, L_KV))
            a.e("s_nop 0")
            a.e("buffer_load_dwordx4 %s, %s, s%d offen sc1 lds" % (v(vL16), srd(SKV), sKVOFF))
            a.e("s_add_u32 s%d, s%d, 0x2000" % (sKVOFF, sKVOFF))
        if p == 3:
            a.e("s_sub_u32 s%d, s%d, 1" % (sCNT, sCNT))
            a.e("s_cmp_lg_u32 s%d, 0" % sCNT)
        a.e("s_waitcnt lgkmcnt(0)")
        if A: a.e("s_barrier")
        for x in Yseg(p, toggle=(p == 3)): a.e(x)
        if not A:
            if p == 3: a.e("s_cbranch_scc0 L_tail")
            a.e("s_barrier")
    a.e(("s_cbranch_scc1 L_loop%s" if A else "s_branch L_loop%s") % role)

def ysubs(a):
    for role in "AB":
        a.l.append(".p2align 6")
        a.lab("L_Y%s" % role)
        if role == "A": a.e("s_barrier")
        for x in Yseg(None): a.e(x)
        if role == "B": a.e("s_barrier")
        a.e("s_setpc_b64 %s" % sp(sRET))

def transition(a):
    a.lab("L_join")
    a.e("s_lshl_b32 s%d, s%d, 11" % (sA, sW))
    a.e("s_add_u32 s%d, s%d, 0x%x" % (sA, sA, L_QX))
    a.e("v_add_u32 v2, s%d, %s" % (sA, v(vL16)))
    a.e("v_xor_b32 v3, 0x2000, v2")
    a.e("s_cmp_lg_u32 s%d, 0" % sHI)
    a.e("s_cbranch_scc1 L_trB")
    vm0 = list(a.vm)
    for role in "AB":
        a.vm = list(vm0)
        A = role == "A"
        if not A: a.lab("L_trB")
        keep, send = (vAQ, vAQ + 8) if A else (vAQ + 8, vAQ)
        def qfin():
            a.e("s_waitcnt lgkmcnt(0)")
            for i in range(4): a.e("v_pk_add_f32 %s, %s, %s" % (v(keep + 2 * i, 2), v(keep + 2 * i, 2), v(send + 2 * i, 2)))
            for i in range(4): a.e("v_cvt_pk_bf16_f32 %s, %s, %s" % (v(vQ + i), v(keep + 2 * i), v(keep + 2 * i + 1)))
        def gelu():
            a.e("s_cmp_ge_u32 s%d, 14" % sM)
            a.e("s_cbranch_scc1 L_nog%s" % role)
            a.e("s_call_b64 %s, L_gelu%s" % (sp(sRET), role))
            a.vm += ["hst"] * 4
            a.lab("L_nog%s" % role)
        a.e("ds_write_b128 v2, %s" % v(send, 4))
        a.e("ds_write_b128 v2, %s offset:1024" % v(send + 4, 4))
        if Opt.stagger:
            if A:
                a.e("s_setprio 1")
                gelu()
            a.waitvm(["k0", "kv0", "kv1"], lgkm=True)
            a.e("s_barrier")
            a.e(rd128(send, 3, 0))
            a.e(rd128(send + 4, 3, 1024))
            if not A: gelu()
            qfin()
            a.e("s_nop 1")
        else:
            a.e("s_waitcnt lgkmcnt(0)")
            a.e("s_barrier")
            a.e(rd128(send, 3, 0))
            a.e(rd128(send + 4, 3, 1024))
            if A:
                a.e("s_setprio 1")
                gelu(); qfin()
                a.waitvm(["k0", "kv0", "kv1"])
                a.e("s_barrier")
            else:
                a.waitvm(["k0", "kv0", "kv1"], lgkm=True)
                a.e("s_barrier")
                gelu(); qfin()
                a.e("s_nop 1")
        a.e(mfma(vS, vK0, vQ, None))
        a.stamp(5)
        attention(a, role)
        if A: a.e("s_branch L_tail")

def tail(a):
    a.lab("L_tail")
    a.e("v_cvt_pk_bf16_f32 %s, %s, %s" % (v(vP + 7), v(vE + 2), v(vE + 3)))
    a.stamp(6)
    a.e("s_setprio 0")
    a.e("s_mov_b32 s%d, 0x%x" % (sC, f2u(2.0 ** -16)))
    a.e(mfma(vO, vV1L, vP + 4, vO))
    a.e("s_mov_b32 s%d, 0x%x" % (sD, f2u(2.0 ** 100)))
    a.e("s_nop 10")
    t = vFR
    a.e("v_rcp_f32 %s, %s" % (v(t + 2), v(vO + 8)))
    a.e("v_pk_mul_f32 %s, %s, 0 op_sel_hi:[1,0]" % (v(t, 2), v(vO, 2)))
    for i in range(1, 4): a.e("v_pk_fma_f32 %s, %s, 0, %s op_sel_hi:[1,0,1]" % (v(t, 2), v(vO + 2 * i, 2), v(t, 2)))
    a.e("v_add_f32 %s, %s, %s" % (v(t), v(t), v(t + 1)))
    a.e("v_add_f32 %s, %s, %s" % (v(t), v(t), v(vO + 8)))
    a.e("v_cmp_nle_f32 vcc, s%d, %s" % (sC, v(t)))
    a.e("v_cmp_nge_f32 %s, s%d, %s" % (sp(sTMPP), sD, v(t)))
    a.e("s_or_b64 vcc, vcc, %s" % sp(sTMPP))
    a.e("s_branch L_fb" if Opt.force_fb else "s_cbranch_scc1 L_fb")
    a.lab("L_fbret")
    a.e("v_mul_f32 %s, %s, %s" % (v(t + 2), v(t + 2), v(vGP)))
    for i in range(4): a.e("v_pk_mul_f32 %s, %s, %s op_sel_hi:[1,0]" % (v(vO + 2 * i, 2), v(vO + 2 * i, 2), v(t + 2, 2)))
    for i in range(4): a.e("v_cvt_pk_bf16_f32 %s, %s, %s" % (v(vP + i), v(vO + 2 * i), v(vO + 2 * i + 1)))
    for i in range(4): a.e("v_min_u32 %s, -2, %s" % (v(vP + i), v(vP + i)))
    a.e("buffer_store_dwordx4 %s, %s, %s, s%d offen sc1" % (v(vP, 4), v(vL16), srd(SWS), sOST))
    a.e("s_waitcnt vmcnt(1)")
    a.e("s_barrier")
    hreg = {21: vH + 0, 22: vH + 4, 23: vH + 8, 24: vH + 16, 25: vH + 20, 26: vH + 24, 27: vH + 28}
    wf = [vFR, vFR + 8, vFR + 16]
    for i in range(2):
        for r in wd_reads(wf[i], vWDA, i * 8192): a.e(r)
    for i in range(7):
        if i + 2 < 7:
            for r in wd_reads(wf[(i + 2) % 3], vWDA, (i + 2) * 8192): a.e(r)
        a.e("s_waitcnt lgkmcnt(%d)" % (4 * min(2, 6 - i)))
        for c in range(2): a.e(mfma(vD + 16 * c, wf[i % 3] + 4 * c, hreg[21 + i], vD + 16 * c))
    a.e("s_barrier")
    a.e("v_add_u32 %s, 0x%x, %s" % (v(vWDA), L_WO, v(vWDA)))
    a.e("v_sub_f32 %s, 1.0, %s" % (v(vGC), v(vGC)))
    a.e("s_waitcnt vmcnt(0)")
    a.stamp(7)
    for j in range(8):
        if j == 4: a.e("s_add_u32 s%d, s%d, 0x1000" % (sA, sOLD))
        a.e("buffer_load_dwordx4 %s, %s, %s, s%d offen offset:%d sc1" % (v(vS + 4 * j, 4), v(vL16), srd(SWS), sOLD if j < 4 else sA, (j % 4) * 1024))
    for i in range(2):
        for r in wd_reads(wf[i], vWDA, i * 8192): a.e(r)
    for i in range(16): a.e("v_pk_mul_f32 %s, %s, %s op_sel:[0,1] op_sel_hi:[1,1]" % (v(vD + 2 * i, 2), v(vD + 2 * i, 2), v(vGP, 2)))
    aw = vXA
    ar = vWA
    a.e("v_and_b32 v2, 31, v0")
    a.e("v_lshrrev_b32 v3, 5, v0")
    a.e("v_and_b32 v4, 7, v0")
    a.e("v_xor_b32 v3, v3, v4")
    a.e("v_lshlrev_b32 v3, 4, v3")
    a.e("v_lshl_add_u32 v3, v2, 8, v3")
    a.e("s_and_b32 s%d, s%d, 1" % (sB, sW))
    a.e("s_lshl_b32 s%d, s%d, 15" % (sB, sB))
    a.e("s_lshr_b32 s%d, s%d, 1" % (sC, sW))
    a.e("s_lshl_b32 s%d, s%d, 13" % (sD, sC))
    a.e("s_add_u32 s%d, s%d, s%d" % (sD, sD, sB))
    a.e("v_add_u32 %s, s%d, v3" % (v(aw), sD))
    for j in range(1, 4): a.e("v_xor_b32 %s, %d, %s" % (v(aw + j), 32 * j, v(aw)))
    a.e("v_lshrrev_b32 v2, 3, v0")
    a.e("v_lshlrev_b32 v3, 1, v4")
    a.e("v_xor_b32 v3, v3, v2")
    a.e("v_lshlrev_b32 v3, 4, v3")
    a.e("v_lshl_add_u32 v3, v2, 8, v3")
    a.e("s_lshl_b32 s%d, s%d, 11" % (sD, sC))
    a.e("s_add_u32 s%d, s%d, s%d" % (sD, sD, sB))
    a.e("v_add_u32 %s, s%d, v3" % (v(ar), sD))
    a.e("v_xor_b32 %s, 16, %s" % (v(ar + 1), v(ar)))
    a.e("v_lshlrev_b32 v4, 4, v4")
    a.e("v_lshl_add_u32 %s, v2, 10, v4" % v(ar + 2))
    a.e("s_lshl_b32 s%d, s%d, 13" % (sC, sC))
    a.e("s_add_u32 s%d, s%d, s%d" % (sB, sB, sC))
    a.e("s_lshl_b32 s%d, s%d, 16" % (sC, sT))
    a.e("s_add_u32 s%d, s%d, s%d" % (sB, sB, sC))
    a.e("s_lshl_b32 s%d, s%d, 7" % (sC, sCB))
    a.e("s_add_u32 s%d, s%d, s%d" % (sCNT, sB, sC))
    a.e("s_mov_b32 s%d, 0x2000" % sB)
    for j in range(8):
        o = vS + 4 * j
        if j + 2 < 8:
            for r in wd_reads(wf[(j + 2) % 3], vWDA, (j + 2) * 8192): a.e(r)
        a.lab("L_ochk%d" % j)
        a.e("s_waitcnt vmcnt(%d)" % (7 - j))
        a.e("v_max3_u32 v2, %s, %s, %s" % (v(o), v(o + 1), v(o + 2)))
        a.e("v_max_u32 v2, v2, %s" % v(o + 3))
        a.e("v_cmp_eq_u32 vcc, -1, v2")
        a.e("s_cbranch_vccnz L_ore%d" % j)
        a.lab("L_ook%d" % j)
        a.e("s_waitcnt lgkmcnt(%d)" % (4 * min(2, 7 - j)))
        for c in range(2): a.e(mfma(vD + 16 * c, wf[j % 3] + 4 * c, o, vD + 16 * c))
    a.stamp(8)
    a.e("s_nop 10")
    for c in range(2):
        for j in range(4):
            a.e("ds_write_b128 %s, %s offset:%d" % (v(aw + j), v(vD + 16 * c + 4 * j, 4), 128 * c))
    a.e("s_waitcnt lgkmcnt(0)")
    a.e("s_barrier")
    for p in range(4):
        for h in range(2): a.e(rd128(vS + 8 * p + 4 * h, ar + h, p * 8192))
    for p in range(1, 4):
        a.e("s_waitcnt lgkmcnt(%d)" % (6 - 2 * p))
        for i in range(4): a.e("v_pk_add_f32 %s, %s, %s" % (v(vS + 2 * i, 2), v(vS + 2 * i, 2), v(vS + 8 * p + 2 * i, 2)))
    for i in range(4): a.e("v_cvt_pk_bf16_f32 %s, %s, %s" % (v(vP + i), v(vS + 2 * i), v(vS + 2 * i + 1)))
    a.e("buffer_store_dwordx4 %s, %s, %s, s%d offen %s" % (v(vP, 4), v(ar + 2), srd(SOUT), sCNT, Opt.out_pol))
    if Opt.probe >= 0:
        a.e("s_waitcnt vmcnt(0)")
        a.stamp(9)
        a.e("s_cmp_ge_u32 s%d, 14" % sM)
        a.e("s_cbranch_scc%d L_end" % (0 if Opt.probe_l else 1))
        a.lab("L_probe")
        a.e("s_memrealtime s[0:1]")
        a.e("s_waitcnt lgkmcnt(0)")
        a.e("s_sub_u32 s0, s0, s%d" % (sSTAMP + 4))
        a.e("s_cmp_lt_u32 s0, 4000")
        a.e("s_cbranch_scc1 L_probe")
    if Opt.pin == 9:
        a.e("s_waitcnt vmcnt(0)")
        a.stamp(9)
    if Opt.diag:
        a.e("s_waitcnt vmcnt(0)")
        a.stamp(9)
        a.e("s_mov_b32 s%d, s%d" % (sSTAMP + 3, sSTAMP))
        a.e("s_mov_b32 s%d, s%d" % (sSTAMP, sB))
        a.e("s_getreg_b32 s%d, hwreg(HW_REG_XCC_ID)" % (sSTAMP + 1))
        for i in range(20): a.e("v_mov_b32 %s, s%d" % (v(vS + i), sSTAMP + i))
        a.e("s_lshl_b32 s%d, s2, 3" % sA)
        a.e("s_add_u32 s%d, s%d, s%d" % (sA, sA, sW))
        a.e("s_lshl_b32 s%d, s%d, 7" % (sA, sA))
        a.e("s_add_u32 s%d, s%d, 0x%x" % (sA, sA, WS_STAMP))
        a.e("s_mov_b64 exec, 1")
        for i in range(5): a.e("buffer_store_dwordx4 %s, off, %s, s%d offset:%d" % (v(vS + 4 * i, 4), srd(SWS), sA, 16 * i))
    a.lab("L_end")
    a.e("s_endpgm")
    for j in range(8):
        a.lab("L_ore%d" % j)
        a.e("s_sub_u32 s%d, s%d, 1" % (sB, sB))
        a.e("s_cbranch_scc1 L_ogive%d" % j)
        a.e("s_waitcnt vmcnt(0)")
        for i in range(j, 8):
            a.e("buffer_load_dwordx4 %s, %s, %s, s%d offen offset:%d sc1" % (v(vS + 4 * i, 4), v(vL16), srd(SWS), sOLD if i < 4 else sA, (i % 4) * 1024))
        a.e("s_branch L_ochk%d" % j)
        a.lab("L_ogive%d" % j)
        a.e("s_mov_b32 s%d, 0" % sB)
        a.e("s_branch L_ook%d" % j)

def fallback(a):
    a.lab("L_fb")
    m = vFR + 4
    a.e("v_mov_b32 %s, 0xff800000" % v(m))
    a.e("s_mov_b32 s%d, 0" % sA)
    a.lab("L_fb1")
    a.e("buffer_load_dwordx4 %s, %s, %s, s%d offen sc1" % (v(vKF, 4), v(vL16), srd(SKV), sA))
    a.e("s_waitcnt vmcnt(0)")
    a.e(mfma(vS, vKF, vQ, None))
    a.e("s_add_u32 s%d, s%d, 2048" % (sA, sA))
    a.e("s_nop 11")
    for i in range(8): a.e("v_max3_f32 %s, %s, %s, %s" % (v(m), v(m), v(vS + 2 * i), v(vS + 2 * i + 1)))
    a.e("s_cmp_lt_u32 s%d, 0x20000" % sA)
    a.e("s_cbranch_scc1 L_fb1")
    a.e("v_mov_b32 %s, %s" % (v(m + 1), v(m)))
    a.e("s_nop 1")
    a.e("v_permlane32_swap_b32 %s, %s" % (v(m), v(m + 1)))
    a.e("s_nop 1")
    a.e("v_max_f32 %s, %s, %s" % (v(m), v(m), v(m + 1)))
    for i in range(16): a.e("v_sub_f32 %s, 0, %s" % (v(vS + 16 + i), v(m)))
    for i in range(16): a.e("v_mov_b32 %s, 0" % v(vO + i))
    a.e("s_mov_b32 s%d, 0" % sA)
    a.lab("L_fb2")
    a.e("s_add_u32 s%d, s%d, 0x%x" % (sB, sA, 63 * 2048))
    a.e("s_and_b32 s%d, s%d, 0x1ffff" % (sB, sB))
    a.e("buffer_load_dwordx4 %s, %s, %s, s%d offen sc1" % (v(vKF, 4), v(vL16), srd(SKV), sB))
    a.e("s_add_u32 s%d, s%d, 2048" % (sB, sA))
    a.e("s_and_b32 s%d, s%d, 0x1ffff" % (sB, sB))
    a.e("s_mov_b64 exec, %s" % sp(sVM))
    a.e("buffer_load_dwordx4 %s, %s, %s, s%d offen offset:1024 sc1" % (v(vV, 4), v(vL16), srd(SKV), sA))
    a.e("buffer_load_dwordx4 %s, %s, %s, s%d offen offset:1280 sc1" % (v(vV + 4, 4), v(vL16), srd(SKV), sB))
    a.e("s_mov_b64 exec, -1")
    a.e("s_waitcnt vmcnt(0)")
    a.e(mfma(vS, vKF, vQ, vS + 16))
    a.e("s_add_u32 s%d, s%d, 2048" % (sA, sA))
    a.e("s_nop 11")
    for i in range(16): a.e("v_exp_f32 %s, %s" % (v(vS + i), v(vS + i)))
    for i in range(8): a.e("v_cvt_pk_bf16_f32 %s, %s, %s" % (v(vP + i), v(vS + 2 * i), v(vS + 2 * i + 1)))
    a.e("s_nop 1")
    a.e(mfma(vO, vV, vP, vO))
    a.e(mfma(vO, vV + 4, vP + 4, vO))
    a.e("s_cmp_lt_u32 s%d, 0x20000" % sA)
    a.e("s_cbranch_scc1 L_fb2")
    a.e("s_nop 11")
    a.e("v_rcp_f32 %s, %s" % (v(vFR + 2), v(vO + 8)))
    a.e("s_branch L_fbret")

def build():
    a = Asm()
    prologue(a)
    phase1_F(a)
    transition(a)
    tail(a)
    ysubs(a)
    vm = a.vm; gelu_sub(a); a.vm = vm
    phase1_L(a)
    fallback(a)
    a.lab("L_codeend")
    il = a.l.index("L_light:")
    for i, x in enumerate(a.l):
        if x.endswith(" lds") and "sc1" not in x and " nt" not in x:
            if (Opt.ntx & 4 and (srd(SWD) in x or srd(SWO) in x)) or (Opt.ntx & 8 and i > il):
                a.l[i] = x[:-4] + " nt lds"
    head = open("cdna_kernels/%s.s.ref" % NAME).read().split("\n")
    hdr = [l for l in head if l.startswith(";") and "@launch" not in l and "Override" not in l and "grid=" not in l]
    out = hdr + ["; @launch grid=(256,1,1) block=(512,1,1) lds=%d" % LDS_BYTES,
                 '.amdgcn_target "amdgcn-amd-amdhsa--gfx950"', ".text", ".globl %s_kernel" % NAME, ".p2align 8",
                 ".type %s_kernel,@function" % NAME,
                 ".set CODE_PF_MAX, L_codeend - L_nopf - 4" if Opt.code_pf else "",
                 "%s_kernel:" % NAME]
    out += ["; mapmode %d" % Opt.mapmode, "; xrot %d" % Opt.xrot]
    out += a.l
    out += ['.section .rodata,"a"', ".p2align 6", ".amdhsa_kernel %s_kernel" % NAME,
            "  .amdhsa_next_free_vgpr %d" % NV, "  .amdhsa_next_free_sgpr 102", "  .amdhsa_accum_offset 256",
            "  .amdhsa_group_segment_fixed_size 0", "  .amdhsa_kernarg_size 104", "  .amdhsa_user_sgpr_count 2",
            "  .amdhsa_user_sgpr_kernarg_segment_ptr 1", "  .amdhsa_system_sgpr_workgroup_id_x 1", ".end_amdhsa_kernel", ""]
    return "\n".join(out)

if __name__ == "__main__":
    path = sys.argv[1]
    for kv in sys.argv[2:]:
        k, val = kv.split("=")
        cur = getattr(Opt, k)
        setattr(Opt, k, val if isinstance(cur, str) else type(cur)(int(val)))
    open(path, "w").write(build())
```

```python
import sys, struct, math

NAME = "gated_mix__grouped_kv_mqa__geglu_ffn__prompt"

class Opt:
    diag = False
    mapmode = 1
    force_fb = False
    out_pol = ""
    code_pf = True
    xrot = 0
    npre = 7
    stagger = 1
    npd = 3
    kdiag = 0
    fillpre = 60
    fillper = 6
    gsc = 3
    sched = 0
    xmask = 1
    ntx = 0
    touch = 2
    rotg = 0
    rotm = 0
    startbar = 1
    pvz = 1
    pin = -1
    pin_ns = 60000
    probe = -1
    probe_l = 0

def f2u(x): return struct.unpack("<I", struct.pack("<f", x))[0]

WS_KV = 0
WS_G = 128 * 1024
WS_HFLAG = 192 * 1024
WS_OF = 1 << 20
WS_HF = 4 << 20
WS_STAMP = 12 << 20
WS_SIZE = 16 << 20
K1 = 1024
L_G, L_U, L_X, L_WQ = 0, 48 * K1, 96 * K1, 144 * K1
L_QX = 32 * K1
L_WD, L_WO, L_KV = 0, 64 * K1, 128 * K1
LL_X, LL_W, LL_GATE, LL_WQ = 0, 128 * K1, 144 * K1, 128 * K1
LDS_BYTES = 160 * K1

SX, SWG, SWU, SWQ, SWS, SWD, SWO, SOUT, SDBG, SWKV, SGATE, SKV = 4, 8, 12, 16, 20, 24, 28, 32, 36, 40, 44, 64
SWV = 72
sTMPP = 48
sW, sHI, sLO, sG, sM, sT, sCB = 50, 51, 52, 53, 54, 55, 56
sWK = 57
sWH = 58
sK64 = 59
sVM = 60
sRET = 62
sA, sB, sC, sD = 68, 69, 70, 71
sOFFW, sOFFQ, sCH, sXP = 72, 73, 74, 75
sHOFF, sWDOFF, sKVOFF, sM0WD, sM0KV, sCNT = 72, 73, 74, 75, 76, 77
sOST, sOLD, sHST = 78, 79, 80
sHP = 81
sSTAMP = 82

def srd(b): return "s[%d:%d]" % (b, b + 3)
def sp(b): return "s[%d:%d]" % (b, b + 1)
def v(b, n=1): return "v%d" % b if n == 1 else "v[%d:%d]" % (b, b + n - 1)

vL16 = 1
vT0, vT1, vT2, vT3 = 2, 3, 4, 5
vGP, vGC = 6, 7
vKVA = 8
vWDA = 9
vWDV = 10
vONE = 11
vZERO = 12
vFLA = 13
vPOLL = 14
vGA = 15
vQ = 16
vK0 = 20
vV1L = 24
vE = 28
vP = 32
vV = 40
vO = 56
vD = 72
vACC = 104
vS = 104
vH = 136
vAQ = 168
vKF = 168
vWF = 176
vFR = 184
vXA = 224
vWA = 232
vQA = 236
vDX, vDG, vDU, vDQ = 237, 238, 239, 240
vC0 = 242
NV = 256

class Asm:
    def __init__(self):
        self.l = []
        self.vm = []
        self.nstamp = 0
    def e(self, s):
        for x in s.split("\n"):
            x = x.strip()
            if x: self.l.append("    " + x)
    def lab(self, s): self.l.append(s + ":")
    def vmop(self, s, tag):
        self.e(s); self.vm.append(tag)
    def vmn(self, tags):
        if isinstance(tags, str): tags = [tags]
        last = -1
        for i, t in enumerate(self.vm):
            if t in tags: last = i
        return None if last < 0 else len(self.vm) - 1 - last
    def waitvm(self, tags, lgkm=False):
        n = self.vmn(tags)
        if n is None:
            if lgkm: self.e("s_waitcnt lgkmcnt(0)")
            return
        assert n < 64
        self.e("s_waitcnt vmcnt(%d)%s" % (n, " lgkmcnt(0)" if lgkm else ""))
        self.vm = self.vm[len(self.vm) - n:] if n else []
    def wait0(self, lgkm=False):
        self.e("s_waitcnt vmcnt(0)%s" % (" lgkmcnt(0)" if lgkm else "")); self.vm = []
    def stamp(self, i, real=False):
        if Opt.probe == i:
            self.e("s_waitcnt lgkmcnt(0)")
            self.e("s_memrealtime %s" % sp(sSTAMP + 4))
            self.e("s_waitcnt lgkmcnt(0)")
        if Opt.pin == i:
            self.nstamp += 1
            self.e("s_waitcnt lgkmcnt(0)")
            self.e("s_cselect_b32 s%d, 1, 0" % (sSTAMP + 5))
            self.lab("L_pin%d" % self.nstamp)
            self.e("s_memrealtime s[0:1]")
            self.e("s_waitcnt lgkmcnt(0)")
            self.e("s_sub_u32 s0, s0, s%d" % sSTAMP)
            self.e("s_cmp_lt_u32 s0, %d" % (Opt.pin_ns // 10))
            self.e("s_cbranch_scc1 L_pin%d" % self.nstamp)
            self.e("s_cmp_lg_u32 s%d, 0" % (sSTAMP + 5))
        if Opt.diag and not Opt.kdiag:
            self.e("s_waitcnt lgkmcnt(0)")
            self.e("s_memtime %s" % sp(sSTAMP + 2 * i))
            self.e("s_memrealtime s[0:1]")
            self.e("s_waitcnt lgkmcnt(0)")
            self.e("s_mov_b32 s%d, s0" % (sSTAMP + 2 * i + 1))

def kstamp(a, i):
    if Opt.probe == 18 + i: a.e("s_memrealtime %s" % sp(sSTAMP + 4))
    if Opt.diag and Opt.kdiag: a.e("s_memtime %s" % sp(sSTAMP + 2 * i))

def mfma(d, a, b, c):
    return "v_mfma_f32_32x32x16_bf16 %s, %s, %s, %s" % (v(d, 16), v(a, 4), v(b, 4), "0" if c is None else v(c, 16))
def rd128(d, a, off):
    assert 0 <= off < 65536
    return "ds_read_b128 %s, %s offset:%d" % (v(d, 4), v(a), off)
def rdtr(d, a, off):
    assert 0 <= off < 65536
    return "ds_read_b64_tr_b16 %s, %s offset:%d" % (v(d, 2), v(a), off)

def interleave(mf, fill, per=2):
    out = []
    fill = list(fill)
    for i, m in enumerate(mf):
        out.append(m)
        if i < len(mf) - 1:
            out += fill[:per]; fill = fill[per:]
    return out + fill

def srd_words(a, regs):
    sizes = {SX: 2048 * 1024, SWG: 512 * 3584, SWU: 512 * 3584, SWQ: 512 * 1024, SWS: WS_SIZE, SWKV: 16384, SWV: 16384,
             SGATE: 1024, SWD: 1792 * 1024, SWO: 512 * 1024, SOUT: 2048 * 1024, SDBG: 256, SKV: 128 * 1024}
    for reg in regs:
        a.e("s_mov_b32 s%d, 0x%x" % (reg + 2, sizes[reg]))
        a.e("s_mov_b32 s%d, 0x20000" % (reg + 3))

def prologue(a):
    a.e("s_cmp_ge_u32 s2, 256")
    a.e("s_cbranch_scc1 L_end")
    for reg, off in ((SX, 0), (SWG, 48), (SWU, 56), (SWQ, 8), (SWS, 96), (SWKV, 16), (sTMPP, 24), (SGATE, 72),
                     (SWD, 64), (SWO, 32), (SOUT, 80), (SDBG, 88), (SKV, 96)):
        a.e("s_load_dwordx2 %s, s[0:1], %d" % (sp(reg), off))
    if Opt.probe >= 0: a.e("s_memrealtime %s" % sp(sSTAMP + 4))
    if Opt.diag or Opt.pin >= 0 or Opt.probe >= 0:
        a.e("s_memrealtime %s" % sp(sSTAMP))
        a.e("s_memtime %s" % sp(sSTAMP + 2))
    a.e("v_lshrrev_b32 v2, 6, v0")
    a.e("v_and_b32 v0, 63, v0")
    a.e("v_readfirstlane_b32 s%d, v2" % sW)
    a.e("v_lshlrev_b32 %s, 4, v0" % v(vL16))
    srd_words(a, [SX, SWQ])
    a.e("s_and_b32 s%d, s2, 7" % sA)
    a.e("s_lshr_b32 s%d, s2, 3" % sB)
    a.e("s_lshl_b32 s%d, s%d, 2" % (sT, sA))
    a.e("s_and_b32 s%d, s%d, 3" % (sD, sB))
    a.e("s_add_u32 s%d, s%d, s%d" % (sT, sT, sD))
    a.e("s_lshr_b32 s%d, s%d, 2" % (sCB, sB))
    if Opt.xrot:
        a.e("s_add_u32 s%d, s%d, %d" % (sA, sA, Opt.xrot))
        a.e("s_and_b32 s%d, s%d, 7" % (sA, sA))
    if Opt.mapmode == 0:
        a.e("s_lshl_b32 s%d, s%d, 1" % (sG, sA))
        a.e("s_and_b32 s%d, s%d, 1" % (sC, sB))
        a.e("s_add_u32 s%d, s%d, s%d" % (sG, sG, sC))
        a.e("s_lshr_b32 s%d, s%d, 1" % (sM, sB))
        a.e("s_mov_b32 s%d, s%d" % (sHP, sM))
    elif Opt.mapmode in (1, 3):
        a.e("s_and_b32 s%d, s%d, 1" % (sG, sA))
        a.e("s_lshl_b32 s%d, s%d, 3" % (sG, sG))
        a.e("s_and_b32 s%d, s%d, 7" % (sC, sB))
        a.e("s_add_u32 s%d, s%d, s%d" % (sG, sG, sC))
        a.e("s_lshr_b32 s%d, s%d, 1" % (sA, sA))
        a.e("s_lshl_b32 s%d, s%d, 2" % (sHP, sA))
        a.e("s_lshr_b32 s%d, s%d, 3" % (sC, sB))
        a.e("s_add_u32 s%d, s%d, s%d" % (sHP, sHP, sC))
        if Opt.mapmode == 1:
            a.e("s_mov_b32 s%d, s%d" % (sM, sHP))
        else:
            a.e("s_sub_u32 s%d, s%d, s%d" % (sM, sHP, sA))
            a.e("s_lshr_b32 s%d, s%d, 1" % (sB, sB))
            a.e("s_and_b32 s%d, s%d, 2" % (sB, sB))
            a.e("s_add_u32 s%d, s%d, s%d" % (sB, sB, sA))
            a.e("s_and_b32 s%d, s%d, 3" % (sB, sB))
            a.e("s_add_u32 s%d, s%d, 12" % (sB, sB))
            a.e("s_cmp_eq_u32 s%d, 3" % sC)
            a.e("s_cselect_b32 s%d, s%d, s%d" % (sM, sB, sM))
    else:
        a.e("s_and_b32 s%d, s%d, 3" % (sG, sA))
        a.e("s_lshl_b32 s%d, s%d, 2" % (sG, sG))
        a.e("s_add_u32 s%d, s%d, s%d" % (sG, sG, sD))
        a.e("s_lshr_b32 s%d, s%d, 2" % (sM, sA))
        a.e("s_lshl_b32 s%d, s%d, 3" % (sM, sM))
        a.e("s_add_u32 s%d, s%d, s%d" % (sM, sM, sCB))
        a.e("s_mov_b32 s%d, s%d" % (sHP, sM))
    a.e("s_lshl_b32 s%d, s%d, 10" % (sWK, sW))
    a.e("s_mov_b32 s%d, 0x10000" % sK64)
    if Opt.code_pf:
        a.e("s_cmp_lg_u32 s%d, s%d" % (sD, sW))
        a.e("s_cbranch_scc1 L_nopf")
        a.e("s_getpc_b64 %s" % sp(sRET))
        a.e("s_lshl_b32 s%d, s%d, 13" % (sD, sW))
        a.e("v_lshl_add_u32 v2, v0, 7, s%d" % sD)
        a.e("v_min_u32 v2, CODE_PF_MAX, v2")
        a.e("global_load_dword %s, v2, %s" % (v(vPOLL), sp(sRET)))
        a.lab("L_nopf")
    a.e("s_lshl_b32 s%d, s%d, 2" % (sA, sW))
    a.e("v_lshrrev_b32 v2, 4, v0")
    a.e("v_add_u32 v3, s%d, v2" % sA)
    a.e("v_xor_b32 v3, v3, v0")
    a.e("v_and_b32 v3, 7, v3")
    a.e("v_lshlrev_b32 v3, 4, v3")
    a.e("v_lshrrev_b32 v4, 3, v0")
    a.e("v_lshl_add_u32 v3, v4, 10, v3")
    a.e("s_lshl_b32 s%d, s%d, 17" % (sA, sG))
    a.e("s_lshl_b32 s%d, s%d, 13" % (sB, sW))
    a.e("s_add_u32 s%d, s%d, s%d" % (sA, sA, sB))
    a.e("v_add_u32 %s, s%d, v3" % (v(vDX), sA))
    a.e("s_cmp_ge_u32 s%d, 14" % sM)
    a.e("s_cbranch_scc1 L_light")

def setup_rd(a):
    a.e("s_lshr_b32 s%d, s%d, 2" % (sHI, sW))
    a.e("s_and_b32 s%d, s%d, 3" % (sLO, sW))
    a.e("v_and_b32 v2, 31, v0")
    a.e("v_lshrrev_b32 v3, 5, v0")
    a.e("v_bfe_u32 v4, v0, 1, 3")
    a.e("v_xor_b32 v4, v4, v3")
    a.e("v_lshlrev_b32 v4, 4, v4")
    a.e("v_lshl_add_u32 %s, v2, 7, v4" % v(vXA))
    a.e("v_bfe_u32 v2, v0, 2, 2")
    a.e("v_and_b32 v4, 3, v0")
    a.e("v_bfe_u32 v5, v0, 4, 1")
    a.e("v_lshl_add_u32 %s, v3, 3, v2" % v(vQA))
    a.e("v_lshlrev_b32 %s, 6, %s" % (v(vQA), v(vQA)))
    a.e("v_lshl_add_u32 %s, v5, 5, %s" % (v(vQA), v(vQA)))
    a.e("v_lshl_add_u32 %s, v4, 3, %s" % (v(vQA), v(vQA)))

def setup_oclr(a):
    srd_words(a, [SWS, SKV, SDBG])
    a.e("s_mov_b32 s%d, 0xffff" % sVM)
    a.e("s_mov_b32 s%d, 0xffff" % (sVM + 1))
    a.e("s_lshl_b32 s%d, s%d, 2" % (sA, sG))
    a.e("s_add_u32 s%d, s%d, s%d" % (sA, sA, sLO))
    a.e("s_lshl_b32 s%d, s%d, 5" % (sB, sA))
    a.e("s_lshl_b32 s%d, s%d, 1" % (sC, sHP))
    a.e("s_add_u32 s%d, s%d, s%d" % (sB, sB, sC))
    a.e("s_add_u32 s%d, s%d, s%d" % (sB, sB, sHI))
    a.e("s_lshl_b32 s%d, s%d, 10" % (sB, sB))
    a.e("s_add_u32 s%d, s%d, 0x%x" % (sOST, sB, WS_OF))
    for i in range(4): a.e("v_mov_b32 %s, -1" % v(vP + i))
    a.vmop("buffer_store_dwordx4 %s, %s, %s, s%d offen sc1" % (v(vP, 4), v(vL16), srd(SWS), sOST), "oclr")
    a.e("v_mov_b32 %s, 1" % v(vONE))
    a.e("v_mov_b32 %s, 0" % v(vZERO))
    a.e("v_and_b32 %s, 31, v0" % v(vGA))
    a.e("v_lshlrev_b32 %s, 2, %s" % (v(vGA), v(vGA)))

def collect(fn):
    t = Asm(); t.marks = {}
    def vmop(s_, tag):
        t.e(s_); t.marks[len(t.l) - 1] = tag
    t.vmop = vmop
    fn(t)
    return [(x, t.marks.get(i)) for i, x in enumerate(t.l)]
def put(a, items):
    for x, tag in items:
        if tag: a.vmop(x, tag)
        else: a.e(x)

def setup_attn(a):
    srd_words(a, [SWD, SWO, SOUT])
    a.e("s_lshl_b32 s%d, s%d, 2" % (sA, sG))
    a.e("s_add_u32 s%d, s%d, s%d" % (sA, sA, sLO))
    a.e("s_mul_i32 s%d, s%d, 112" % (sB, sA))
    a.e("s_lshl_b32 s%d, s%d, 3" % (sC, sM))
    a.e("s_add_u32 s%d, s%d, s%d" % (sB, sB, sC))
    a.e("s_lshl_b32 s%d, s%d, 2" % (sC, sHI))
    a.e("s_add_u32 s%d, s%d, s%d" % (sB, sB, sC))
    a.e("s_and_b32 s%d, s%d, 1" % (sC, sLO))
    a.e("s_lshl_b32 s%d, s%d, 1" % (sC, sC))
    a.e("s_add_u32 s%d, s%d, s%d" % (sB, sB, sC))
    a.e("s_lshl_b32 s%d, s%d, 10" % (sB, sB))
    a.e("s_add_u32 s%d, s%d, 0x%x" % (sHST, sB, WS_HF))
    a.e("v_bfe_u32 v2, v0, 2, 2")
    a.e("v_lshrrev_b32 v3, 5, v0")
    a.e("v_lshl_add_u32 v2, v3, 2, v2")
    a.e("v_lshlrev_b32 v2, 6, v2")
    a.e("v_bfe_u32 v3, v0, 4, 1")
    a.e("v_lshl_add_u32 v2, v3, 5, v2")
    a.e("v_and_b32 v3, 3, v0")
    a.e("v_lshl_add_u32 v2, v3, 3, v2")
    a.e("s_lshr_b32 s%d, s%d, 1" % (sA, sW))
    a.e("s_lshl_b32 s%d, s%d, 11" % (sA, sA))
    a.e("v_add_u32 %s, s%d, v2" % (v(vWDA), sA))
    a.e("v_add_u32 %s, 0x%x, %s" % (v(vKVA), L_KV, v(vL16)))
    a.e("v_bfe_u32 v2, v0, 2, 3")
    a.e("v_lshlrev_b32 v2, 10, v2")
    a.e("v_lshrrev_b32 v3, 5, v0")
    a.e("v_lshl_add_u32 v2, v3, 6, v2")
    a.e("v_and_b32 v3, 3, v0")
    a.e("v_lshl_add_u32 v2, v3, 4, v2")
    a.e("s_and_b32 s%d, s%d, 1" % (sA, sW))
    a.e("s_lshl_b32 s%d, s%d, 13" % (sA, sA))
    a.e("s_lshl_b32 s%d, s%d, 7" % (sB, sCB))
    a.e("s_add_u32 s%d, s%d, s%d" % (sA, sA, sB))
    a.e("v_add_u32 %s, s%d, v2" % (v(vWDV), sA))
    a.e("v_min_u32 v2, 13, v0")
    a.e("v_lshlrev_b32 v2, 7, v2")
    a.e("s_lshr_b32 s%d, s%d, 1" % (sA, sT))
    a.e("s_lshl_b32 s%d, s%d, 11" % (sA, sA))
    a.e("s_add_u32 s%d, s%d, 0x%x" % (sA, sA, WS_HFLAG))
    a.e("v_add_u32 %s, s%d, v2" % (v(vFLA), sA))
    a.e("s_lshl_b32 s%d, s%d, 1" % (sA, sT))
    a.e("s_and_b32 s%d, s%d, 1" % (sB, sW))
    a.e("s_add_u32 s%d, s%d, s%d" % (sA, sA, sB))
    a.e("s_lshl_b32 s%d, s%d, 15" % (sB, sA))
    a.e("s_lshr_b32 s%d, s%d, 1" % (sC, sW))
    a.e("s_lshl_b32 s%d, s%d, 13" % (sC, sC))
    a.e("s_add_u32 s%d, s%d, s%d" % (sB, sB, sC))
    a.e("s_add_u32 s%d, s%d, 0x%x" % (sOLD, sB, WS_OF))
    if Opt.pvz:
        a.e("v_and_b32 v2, 27, v0")
        a.e("v_cmp_eq_u32 vcc, 16, v2")
        a.e("v_mov_b32 v3, 0x3f803f80")
        a.e("s_nop 0")
        a.e("v_cndmask_b32 v2, 0, v3, vcc")
    else:
        a.e("v_mov_b32 v2, 0x3f803f80")
    for i in range(16): a.e("v_mov_b32 %s, v2" % v(vV + i))
    for i in range(4): a.e("v_mov_b32 %s, v2" % v(vV1L + i))
    for i in range(4): a.e("v_mov_b32 %s, 0" % v(vE + i))
    for i in range(4, 8): a.e("v_mov_b32 %s, 0" % v(vP + i))
    for i in range(16): a.e("v_mov_b32 %s, 0" % v(vO + i))
    for i in range(32): a.e("v_mov_b32 %s, 0" % v(vD + i))
    c0 = -2.0 * math.sqrt(2.0 / math.pi) * math.log2(math.e)
    a.e("v_mov_b32 %s, 0x%x" % (v(vC0), f2u(c0)))
    a.e("v_mov_b32 %s, 0x%x" % (v(vC0 + 1), f2u(c0 * 0.044715)))

def kv_first_loads(a):
    it = []
    for u in range(2):
        it.append(("s_add_u32 m0, s%d, 0x%x\ns_add_u32 s%d, s%d, 0x%x\nbuffer_load_dwordx4 %s, %s, s%d offen sc1 lds"
                   % (sWK, L_KV + u * 8192, sA, sWK, u * 8192, v(vL16), srd(SKV), sA), "kv%d" % u))
    it.append(("s_mov_b32 s%d, 0x%x\nbuffer_load_dwordx4 %s, %s, %s, s%d offen sc1"
               % (sA, 63 * 2048, v(vK0, 4), v(vL16), srd(SKV), sA), "k0"))
    it.append(("s_mov_b64 exec, %s\nbuffer_load_dwordx4 %s, %s, %s, 0 offen offset:%d sc1\ns_mov_b64 exec, -1"
               % (sp(sVM), v(vV1L, 4), v(vL16), srd(SKV), 1024 + 256), "k0"))
    it.append(("s_lshl_b32 s%d, s%d, 2\ns_add_u32 s%d, s%d, s%d\ns_lshl_b32 s%d, s%d, 7\ns_add_u32 s%d, s%d, 0x%x\n"
               "buffer_load_dword %s, %s, %s, s%d offen sc1"
               % (sA, sG, sA, sA, sLO, sA, sA, sA, sA, WS_G, v(vGP), v(vGA), srd(SWS), sA), "k0"))
    it.append(("s_lshl_b32 s%d, s%d, 1\ns_and_b32 s%d, s%d, 1\ns_add_u32 s%d, s%d, s%d\ns_lshl_b32 s%d, s%d, 7\ns_add_u32 s%d, s%d, 0x%x\n"
               "buffer_load_dword %s, %s, %s, s%d offen sc1"
               % (sA, sT, sB, sW, sA, sA, sB, sA, sA, sA, sA, WS_G, v(vGC), v(vGA), srd(SWS), sA), "k0"))
    return it

def spin_counter(a, name, first_loaded):
    a.e("s_cmp_lg_u32 s%d, 0" % sW)
    a.e("s_cbranch_scc1 L_%s_done" % name)
    a.e("s_mov_b32 s%d, 0x4000" % sB)
    if first_loaded: a.e("s_branch L_%s_chk" % name)
    a.lab("L_%s_re" % name)
    a.e("buffer_load_dword %s, off, %s, 0 sc1" % (v(vPOLL), srd(SDBG)))
    a.e("s_waitcnt vmcnt(0)")
    a.lab("L_%s_chk" % name)
    a.e("v_readfirstlane_b32 s%d, %s" % (sA, v(vPOLL)))
    a.e("s_cmp_ge_u32 s%d, 32" % sA)
    a.e("s_cbranch_scc1 L_%s_done" % name)
    a.e("s_sleep 4")
    a.e("s_sub_u32 s%d, s%d, 1" % (sB, sB))
    a.e("s_cmp_lg_u32 s%d, 0" % sB)
    a.e("s_cbranch_scc1 L_%s_re" % name)
    a.lab("L_%s_done" % name)

def phase1_F(a):
    srd_words(a, [SWG, SWU])
    a.e("s_lshl_b32 s%d, s%d, 9" % (sWH, sW))
    a.e("v_bfe_u32 v3, v0, 1, 3")
    a.e("v_xor_b32 v3, v3, v2")
    a.e("v_lshlrev_b32 v3, 5, v3")
    a.e("v_and_b32 v4, 1, v0")
    a.e("v_lshl_add_u32 v3, v4, 4, v3")
    a.e("v_xor_b32 v4, 0x80, v3")
    a.e("v_mul_u32_u24 v5, 3584, v2")
    a.e("s_mul_i32 s%d, s%d, %d" % (sA, sW, 4 * 3584))
    a.e("s_lshl_b32 s%d, s%d, 8" % (sB, sM))
    a.e("s_add_u32 s%d, s%d, s%d" % (sA, sA, sB))
    a.e("v_add3_u32 %s, v3, v5, s%d" % (v(vDG), sA))
    a.e("v_add3_u32 %s, v4, v5, s%d" % (v(vDU), sA))
    a.e("v_lshrrev_b32 v3, 2, v0")
    a.e("v_lshlrev_b32 v3, 10, v3")
    a.e("v_and_b32 v4, 3, v0")
    a.e("v_lshl_add_u32 v3, v4, 4, v3")
    a.e("s_lshl_b32 s%d, s%d, 13" % (sA, sW))
    a.e("s_lshl_b32 s%d, s%d, 6" % (sB, sHP))
    a.e("s_add_u32 s%d, s%d, s%d" % (sA, sA, sB))
    a.e("v_add_u32 %s, s%d, v3" % (v(vDQ), sA))
    SCHED = {1: ["01423567", "10253467", "23016457", "32104756"],
             2: ["02134657", "01324576", "10243567", "10235467"],
             3: ["01324657", "01243576", "12035467", "20134567"]}
    tabs = SCHED[Opt.sched] if Opt.sched else ["".join(str(c ^ (p & Opt.xmask)) for c in range(8)) for p in range(4)]
    for t_ in tabs: assert sorted(t_) == list("01234567")
    num = [int(t_[::-1], 16) for t_ in tabs]
    a.e("s_add_u32 s%d, s%d, s%d" % (sA, sG, sHP))
    a.e("s_mov_b32 s%d, 0x%x" % (sXP, num[0]))
    a.e("s_mov_b32 s%d, 0x%x" % (sB, num[2]))
    a.e("s_bitcmp1_b32 s%d, 0" % sA)
    a.e("s_cselect_b32 s%d, 0x%x, s%d" % (sXP, num[1], sXP))
    a.e("s_cselect_b32 s%d, 0x%x, s%d" % (sB, num[3], sB))
    a.e("s_bitcmp1_b32 s%d, 1" % sA)
    a.e("s_cselect_b32 s%d, s%d, s%d" % (sXP, sB, sXP))
    a.e("s_and_b32 s%d, s%d, 7" % (sCH, sXP))

    def dmas(c):
        s = c % 3
        t = "c%d" % c
        it = []
        def one(m0src, m0c, vo, rs, so, pre="s_nop 0", post=""):
            nt = " nt" if Opt.ntx & (1 if rs == SX else 2) else ""
            return ("s_add_u32 m0, s%d, 0x%x\n%s\nbuffer_load_dwordx4 %s, %s, s%d offen%s lds\n%s"
                    % (m0src, m0c, pre, v(vo), srd(rs), so, nt, post), t)
        it.append(one(sWK, L_X + s * 16384, vDX, SX, sOFFQ, pre="s_lshl_b32 s%d, s%d, 7" % (sOFFQ, sCH)))
        it.append(one(sWK, L_X + s * 16384 + 8192, vDX, SX, sOFFQ, pre="s_add_u32 s%d, s%d, s%d" % (sOFFQ, sOFFQ, sK64)))
        it.append(one(sWK, L_G + s * 16384, vDG, SWG, sOFFW, pre="s_mul_i32 s%d, s%d, %d" % (sOFFW, sCH, 64 * 3584)))
        it.append(one(sWK, L_U + s * 16384, vDU, SWU, sOFFW, pre="s_lshl_b32 s%d, s%d, 16" % (sOFFQ, sCH)))
        it.append(one(sWK, L_G + s * 16384 + 8192, vDG, SWG, sOFFW, pre="s_add_u32 s%d, s%d, %d" % (sOFFW, sOFFW, 32 * 3584)))
        it.append(one(sWK, L_U + s * 16384 + 8192, vDU, SWU, sOFFW, pre="s_bfe_u32 s%d, s%d, 0x%x" % (sCH, sXP, 0x30000 + 4 * ((c + 1) % 8))))
        it.append(one(sWH, L_WQ + s * 4096, vDQ, SWQ, sOFFQ, pre="s_mov_b32 exec_hi, 0",
                      post="s_mov_b32 exec_hi, -1"))
        return it

    def rdsetup(a):
        setup_rd(a)
        a.e("v_lshl_add_u32 %s, v3, 3, v2" % v(vWA))
        a.e("v_lshlrev_b32 %s, 8, %s" % (v(vWA), v(vWA)))
        a.e("v_lshl_add_u32 %s, v4, 3, %s" % (v(vWA), v(vWA)))
        a.e("v_mul_u32_u24 v4, 0x%x, v5" % (L_U - L_G))
        a.e("v_add_u32 %s, v4, %s" % (v(vWA), v(vWA)))
        a.e("v_lshl_add_u32 v2, v5, 2, v2")
        a.e("s_lshl_b32 s%d, s%d, 2" % (sA, sHI))
        a.e("s_and_b32 s%d, s%d, 1" % (sB, sLO))
        a.e("s_lshl_b32 s%d, s%d, 1" % (sB, sB))
        a.e("s_add_u32 s%d, s%d, s%d" % (sA, sA, sB))
        a.e("v_xor_b32 v2, s%d, v2" % sA)
        a.e("v_lshl_add_u32 %s, v2, 5, %s" % (v(vWA), v(vWA)))
        a.e("s_lshl_b32 s%d, s%d, 13" % (sA, sHI))
        a.e("s_xor_b32 s%d, s%d, 0x2000" % (sB, sA))
        a.e("v_add_u32 %s, s%d, %s" % (v(vWA + 2), sB, v(vWA)))
        a.e("v_add_u32 %s, s%d, %s" % (v(vWA), sA, v(vWA)))
        a.e("v_xor_b32 %s, 32, %s" % (v(vWA + 1), v(vWA)))
        a.e("v_xor_b32 %s, 32, %s" % (v(vWA + 3), v(vWA + 2)))
        a.e("s_lshl_b32 s%d, s%d, 6" % (sA, sHI))
        a.e("s_lshl_b32 s%d, s%d, 12" % (sB, sLO))
        a.e("s_add_u32 s%d, s%d, s%d" % (sA, sA, sB))
        a.e("s_add_u32 s%d, s%d, 0x%x" % (sA, sA, L_X))
        a.e("v_xor_b32 %s, s%d, %s" % (v(vXA), sA, v(vXA)))
        for s in range(1, 4): a.e("v_xor_b32 %s, %d, %s" % (v(vXA + s), 32 * s, v(vXA)))
        for s in range(4): a.e("v_xor_b32 %s, 0x1000, %s" % (v(vXA + 4 + s), v(vXA + s)))
        a.e("s_lshl_b32 s%d, s%d, 11" % (sA, sHI))
        a.e("s_add_u32 s%d, s%d, 0x%x" % (sA, sA, L_WQ))
        a.e("v_add_u32 %s, s%d, %s" % (v(vQA), sA, v(vQA)))

    a.e("s_waitcnt lgkmcnt(0)")
    a.stamp(2)
    put(a, dmas(0))
    if Opt.touch & 1:
        a.e("s_cmp_ge_u32 s%d, 3" % sW)
        a.e("s_cbranch_scc1 L_notouch")
        a.e("v_lshrrev_b32 v2, 1, v0")
        a.e("s_add_u32 s%d, s%d, 128" % (sA, sG))
        a.e("v_lshl_add_u32 v2, v2, 4, s%d" % sA)
        a.e("s_cmp_eq_u32 s%d, 2" % sW)
        a.e("s_cbranch_scc1 L_touchq")
        a.e("v_mul_u32_u24 v2, 3584, v2")
        a.e("v_and_b32 v3, 1, v0")
        a.e("v_lshl_add_u32 v2, v3, 7, v2")
        a.e("s_lshl_b32 s%d, s%d, 8" % (sA, sM))
        a.e("s_cmp_eq_u32 s%d, 1" % sW)
        a.e("s_cbranch_scc1 L_touchu")
        a.e("buffer_load_dword %s, v2, %s, s%d offen" % (v(vPOLL), srd(SWG), sA))
        a.e("s_branch L_notouch")
        a.lab("L_touchu")
        a.e("buffer_load_dword %s, v2, %s, s%d offen" % (v(vPOLL), srd(SWU), sA))
        a.e("s_branch L_notouch")
        a.lab("L_touchq")
        a.e("v_lshlrev_b32 v2, 10, v2")
        a.e("s_lshl_b32 s%d, s%d, 6" % (sA, sHP))
        a.e("buffer_load_dword %s, v2, %s, s%d offen" % (v(vPOLL), srd(SWQ), sA))
        a.lab("L_notouch")
    if Opt.startbar: a.e("s_barrier")
    pend = dmas(1) + dmas(2)
    st = collect(rdsetup)
    gap = len(st) // (Opt.npre + 1) + 1
    for i in range(Opt.npre):
        put(a, pend[:1]); pend = pend[1:]
        put(a, st[:gap]); st = st[gap:]
    put(a, st)
    fill = collect(setup_oclr) + collect(setup_attn)
    put(a, fill[:Opt.fillpre]); fill = fill[Opt.fillpre:]

    def fr(k):
        b = vFR + 20 * (k % 2)
        return dict(x0=b, x1=b + 4, w0=b + 8, w1=b + 12, q=b + 16)
    def reads(k):
        c, s = divmod(k, 4); f = fr(k); sl = c % 3
        wo = sl * 16384 + (s & 1) * 4096
        wa = vWA + 2 * (s >> 1)
        r = [rdtr(f['w0'], wa, wo), rdtr(f['w0'] + 2, wa, wo + 1024),
             rd128(f['x0'], vXA + s, sl * 16384), rd128(f['x1'], vXA + 4 + s, sl * 16384),
             rdtr(f['w1'], wa + 1, wo), rdtr(f['w1'] + 2, wa + 1, wo + 1024)]
        if s < 2:
            r += [rdtr(f['q'], vQA, sl * 4096 + s * 1024), rdtr(f['q'] + 2, vQA, sl * 4096 + s * 1024 + 256)]
        return r
    n0 = a.vmn("c0")
    if Opt.touch & 1:
        a.e("s_cmp_ge_u32 s%d, 3" % sW)
        a.e("s_cbranch_scc1 L_w0a")
        a.e("s_waitcnt vmcnt(%d)" % (n0 + 1))
        a.e("s_branch L_w0b")
        a.lab("L_w0a")
        a.waitvm("c0")
        a.lab("L_w0b")
    else:
        a.waitvm("c0")
    a.e("s_barrier")
    a.stamp(3)
    kstamp(a, 2)
    for r in reads(0): a.e(r)
    kpoll = 21 if Opt.stagger else 23
    for k in range(32):
        c, s = divmod(k, 4); f = fr(k)
        if s == 3 and c < 7:
            assert not any(t == "c%d" % (c + 1) for _, t in pend)
            if c == 6 and Opt.stagger:
                a.e("s_waitcnt lgkmcnt(0)")
                a.e("s_cmp_lg_u32 s%d, 0" % sHI)
                a.e("s_cbranch_scc1 L_st7")
                a.e("s_waitcnt vmcnt(0)")
                spin_counter(a, "kvf", True)
                a.e("s_barrier")
                a.e("s_setprio 1")
                for x, _ in kv_first_loads(a): a.e(x)
                a.lab("L_st7")
            else:
                if c == 6:
                    a.wait0(lgkm=True)
                    spin_counter(a, "kvf", True)
                else:
                    a.waitvm("c%d" % (c + 1), lgkm=True)
                a.e("s_barrier")
                if c + 3 < 8: pend += dmas(c + 3)
                if c == 6: pend += kv_first_loads(a)
            kstamp(a, 3 + c)
        else:
            a.e("s_waitcnt lgkmcnt(0)")
        z = lambda x: None if k == 0 else x
        mf = [mfma(vACC, f['w0'], f['x0'], z(vACC)), mfma(vACC + 16, f['w0'], f['x1'], z(vACC + 16)),
              mfma(vACC + 32, f['w1'], f['x0'], z(vACC + 32)), mfma(vACC + 48, f['w1'], f['x1'], z(vACC + 48))]
        if s < 2: mf.append(mfma(vAQ, f['q'], f['x0'], z(vAQ)))
        for x in interleave(mf, reads(k + 1) if k < 31 else []): a.e(x)
        npd = 3 if len(pend) > 7 or k < 3 else Opt.npd
        put(a, pend[:npd]); pend = pend[npd:]
        if k >= 4:
            put(a, fill[:Opt.fillper]); fill = fill[Opt.fillper:]
        if k == kpoll:
            assert not fill
            a.e("s_cmp_lg_u32 s%d, 0" % sW)
            a.e("s_cbranch_scc1 L_nopoll")
            a.e("buffer_load_dword %s, off, %s, 0 sc1" % (v(vPOLL), srd(SDBG)))
            a.lab("L_nopoll")
        if k == 23 and Opt.stagger:
            assert not pend
            a.e("s_cmp_eq_u32 s%d, 0" % sHI)
            a.e("s_cbranch_scc1 L_st6")
            a.wait0()
            a.e("s_barrier")
            put(a, kv_first_loads(a))
            a.lab("L_st6")
    assert not pend
    a.stamp(4)

def phase1_L(a):
    a.lab("L_light")
    a.vm = []
    srd_words(a, [SWKV, SWV, SGATE])
    a.e("s_sub_u32 s%d, s%d, 14" % (sCNT, sM))
    a.e("s_lshl_b32 s%d, s%d, 16" % (sOLD, sCNT))
    a.e("s_lshl_b32 s%d, s%d, 13" % (sHST, sCNT))
    a.e("s_add_u32 s%d, s%d, s%d" % (sWH, sHST, sWK))
    a.e("s_xor_b32 s%d, s%d, 0x2000" % (sHST, sHST))
    a.e("s_add_u32 s%d, s%d, 0x2000" % (sA, sWK))
    a.e("s_waitcnt lgkmcnt(0)")
    a.stamp(2)
    a.e("s_mov_b32 s%d, s%d" % (SWV, sTMPP))
    a.e("s_mov_b32 s%d, s%d" % (SWV + 1, sTMPP + 1))
    def xdma(c, base, so):
        a.vmop("s_add_u32 m0, s%d, 0x%x\ns_nop 0\nbuffer_load_dwordx4 %s, %s, s%d offen offset:%d lds"
               % (base, LL_X + c * 16384 - c * 128, v(vDX), srd(SX), so, c * 128), "c%d" % c)
    def wdma(u):
        for t, rs in enumerate((SWKV, SWV)):
            a.vmop("s_add_u32 m0, s%d, 0x%x\ns_nop 0\nbuffer_load_dwordx4 %s, %s, s%d offen lds"
                   % (sWK, LL_W + t * 16384 + u * 8192, v(vL16), srd(rs), sA if u else sWK), "w")
    wdma(0)
    a.vmop("s_mov_b32 m0, s%d\ns_nop 0\nbuffer_load_dwordx4 %s, %s, 0 offen lds" % (sHST, v(vL16), srd(SGATE)), "w")
    for c in range(8):
        if c == 4: wdma(1)
        xdma(c, sWH, sOLD)
        if c in (1, 3, 5): a.e("s_barrier")
    setup_rd(a)
    a.e("v_lshl_add_u32 %s, v3, 3, v2" % v(vWA))
    a.e("v_lshlrev_b32 %s, 5, %s" % (v(vWA), v(vWA)))
    a.e("v_lshl_add_u32 %s, v4, 3, %s" % (v(vWA), v(vWA)))
    a.e("s_lshr_b32 s%d, s%d, 1" % (sA, sLO))
    a.e("s_lshl_b32 s%d, s%d, 14" % (sA, sA))
    a.e("s_add_u32 s%d, s%d, 0x%x" % (sA, sA, LL_W))
    a.e("v_add_u32 %s, s%d, %s" % (v(vWA), sA, v(vWA)))
    a.e("v_lshl_add_u32 %s, v3, 4, s%d" % (v(vWA + 1), sHST))
    a.e("v_mov_b32 %s, %s" % (v(vWA + 2), v(vXA)))
    a.e("s_and_b32 s%d, s%d, 1" % (sA, sLO))
    a.e("s_lshl_b32 s%d, s%d, 1" % (sB, sCNT))
    a.e("s_add_u32 s%d, s%d, s%d" % (sCNT, sA, sB))
    a.e("s_lshl_b32 s%d, s%d, 12" % (sA, sCNT))
    a.e("v_add_u32 %s, s%d, %s" % (v(vXA), sA, v(vXA)))
    for s in range(1, 4): a.e("v_xor_b32 %s, %d, %s" % (v(vXA + s), 32 * s, v(vXA)))
    for s in range(4): a.e("v_add_u32 %s, 0x10000, %s" % (v(vXA + 4 + s), v(vXA + s)))
    setup_oclr(a)
    vm0 = list(a.vm)
    a.e("s_cmp_lg_u32 s%d, 0" % sHI)
    a.e("s_cbranch_scc1 L_lB")
    a.e("s_not_b64 %s, %s" % (sp(sTMPP), sp(sVM)))
    a.e("s_cmp_ge_u32 s%d, 2" % sLO)
    a.e("s_cbranch_scc1 L_lV")
    def chain(kind):
        a.vm = list(vm0)
        def fr(k):
            b = vFR + 8 * (k % 4)
            return b, b + 4
        def reads(k):
            c, s = divmod(k, 4); x, w = fr(k)
            r = [rd128(x, vXA + s + 4 * (c >> 2), (c & 3) * 16384), rdtr(w, vWA, k * 512), rdtr(w + 2, vWA, k * 512 + 128)]
            if kind == "K":
                r += ["s_mov_b64 exec, %s" % sp(sTMPP), rd128(w, vWA + 1, k * 32), "s_mov_b64 exec, -1"]
            return r
        for q in range(4):
            a.waitvm("c%d" % (2 * q + 1))
            a.e("s_barrier")
            nr = 4 if kind == "K" else 3
            for k in range(8 * q, 8 * q + 2):
                for r in reads(k): a.e(r)
            for k in range(8 * q, 8 * q + 8):
                if k + 2 < 8 * q + 8:
                    for r in reads(k + 2): a.e(r)
                left = min(2, 8 * q + 7 - k)
                a.e("s_waitcnt lgkmcnt(%d)" % (left * nr))
                x, w = fr(k)
                cc = None if k == 0 else vACC
                a.e(mfma(vACC, w, x, cc) if kind == "K" else mfma(vACC, x, w, cc))
        a.e("s_lshl_b32 s%d, s%d, 2" % (sA, sG))
        a.e("s_add_u32 s%d, s%d, s%d" % (sA, sA, sCNT))
        a.e("s_nop 12")
        if kind == "K":
            a.e("s_mov_b32 s%d, 0x%x" % (sC, f2u(0.25 * math.log2(math.e))))
            for i in range(8): a.e("v_mul_f32 %s, s%d, %s" % (v(vACC + i), sC, v(vACC + i)))
            a.e("v_mul_f32 %s, 0x%x, %s" % (v(vACC + 8), f2u(-math.log2(math.e)), v(vACC + 8)))
            a.e("v_exp_f32 %s, %s" % (v(vACC + 8), v(vACC + 8)))
            for i in range(4): a.e("v_cvt_pk_bf16_f32 %s, %s, %s" % (v(vFR + i), v(vACC + 2 * i), v(vACC + 2 * i + 1)))
            a.e("v_add_f32 %s, 1.0, %s" % (v(vACC + 8), v(vACC + 8)))
            a.e("v_rcp_f32 %s, %s" % (v(vACC + 8), v(vACC + 8)))
            a.e("s_add_u32 s%d, s%d, 63" % (sB, sA))
            a.e("s_and_b32 s%d, s%d, 63" % (sB, sB))
            a.e("s_lshl_b32 s%d, s%d, 11" % (sB, sB))
            a.e("buffer_store_dwordx4 %s, %s, %s, s%d offen sc1" % (v(vFR, 4), v(vL16), srd(SKV), sB))
            a.e("s_lshl_b32 s%d, s%d, 7" % (sB, sA))
            a.e("s_add_u32 s%d, s%d, 0x%x" % (sB, sB, WS_G))
            a.e("s_mov_b32 exec_hi, 0")
            a.e("buffer_store_dword %s, %s, %s, s%d offen sc1" % (v(vACC + 8), v(vGA), srd(SWS), sB))
            a.e("s_mov_b64 exec, -1")
        else:
            for i in range(8): a.e("v_cvt_pk_bf16_f32 %s, %s, %s" % (v(vFR + i), v(vACC + 2 * i), v(vACC + 2 * i + 1)))
            a.e("v_bfe_u32 v2, v0, 4, 1")
            a.e("v_add_u32 v2, s%d, v2" % sA)
            a.e("v_and_b32 v2, 63, v2")
            a.e("v_lshl_add_u32 v2, v2, 11, %s" % v(vL16))
            for i in range(4): a.e("v_cndmask_b32 %s, %s, %s, %s" % (v(vFR + i), v(vFR + 4 + i), v(vFR + i), sp(sVM)))
            a.e("buffer_store_dwordx4 %s, v2, %s, 0 offen offset:1024 sc1" % (v(vFR, 4), srd(SKV)))
        a.e("s_branch L_lJ")
    chain("K")
    a.lab("L_lV")
    chain("V")
    a.lab("L_lB")
    a.vm = list(vm0)
    a.e("s_cmp_lg_u32 s%d, 14" % sM)
    a.e("s_cbranch_scc1 L_nozf")
    a.e("s_cmp_lg_u32 s%d, 4" % sW)
    a.e("s_cbranch_scc1 L_nozf")
    a.e("v_lshlrev_b32 v2, 7, v0")
    a.e("s_lshl_b32 s%d, s%d, 11" % (sA, sG))
    a.e("s_add_u32 s%d, s%d, 0x%x" % (sA, sA, WS_HFLAG))
    a.e("s_mov_b64 exec, 0xffff")
    a.e("buffer_store_dword %s, v2, %s, s%d offen sc1" % (v(vZERO), srd(SWS), sA))
    a.e("s_mov_b64 exec, -1")
    a.lab("L_nozf")
    for q in range(4):
        a.waitvm("c%d" % (2 * q + 1))
        a.e("s_barrier")
    a.lab("L_lJ")
    a.e("v_lshrrev_b32 v3, 2, v0")
    a.e("v_lshlrev_b32 v3, 10, v3")
    a.e("v_and_b32 v4, 3, v0")
    a.e("v_lshl_add_u32 v3, v4, 4, v3")
    a.e("s_lshl_b32 s%d, s%d, 14" % (sA, sW))
    a.e("s_lshl_b32 s%d, s%d, 6" % (sB, sHP))
    a.e("s_add_u32 s%d, s%d, s%d" % (sA, sA, sB))
    a.e("v_add_u32 %s, s%d, v3" % (v(vDQ), sA))
    a.e("s_xor_b32 s%d, s%d, 0x2000" % (sWH, sWH))
    a.e("s_xor_b32 s%d, s%d, 0x10000" % (sOLD, sOLD))
    a.wait0(lgkm=True)
    a.e("s_barrier")
    a.e("s_cmp_lg_u32 s%d, 0" % sW)
    a.e("s_cbranch_scc1 L_noat")
    a.e("s_mov_b64 exec, 1")
    a.e("buffer_atomic_add %s, off, %s, 0 sc1" % (v(vONE), srd(SDBG)))
    a.e("s_mov_b64 exec, -1")
    a.lab("L_noat")
    a.stamp(3)
    for c in range(8): xdma(c, sWH, sOLD)
    for p in range(4):
        a.e("s_add_u32 m0, s%d, 0x%x" % (sWK, LL_WQ + p * 8192))
        a.e("s_mov_b32 s%d, 0x%x" % (sA, p * 128 * 1024))
        a.e("buffer_load_dwordx4 %s, %s, s%d offen lds" % (v(vDQ), srd(SWQ), sA))
    setup_attn(a)
    if Opt.touch & 2:
        a.e("s_lshl_b32 s%d, s%d, 1" % (sA, sG))
        a.e("s_add_u32 s%d, s%d, s%d" % (sA, sA, sM))
        a.e("s_sub_u32 s%d, s%d, 14" % (sA, sA))
        a.e("s_lshl_b32 s%d, s%d, 3" % (sA, sA))
        a.e("s_add_u32 s%d, s%d, s%d" % (sA, sA, sW))
        a.e("v_lshlrev_b32 v2, 15, v0")
        a.e("s_lshl_b32 s%d, s%d, 7" % (sA, sA))
        a.e("buffer_load_dword %s, v2, %s, s%d offen" % (v(vPOLL), srd(SWO), sA))
        a.e("buffer_load_dword %s, v2, %s, s%d offen" % (v(vPOLL), srd(SWD), sA))
    a.e("s_lshl_b32 s%d, s%d, 16" % (sA, sHI))
    a.e("s_lshl_b32 s%d, s%d, 12" % (sB, sLO))
    a.e("s_add_u32 s%d, s%d, s%d" % (sA, sA, sB))
    a.e("v_add_u32 %s, s%d, %s" % (v(vXA), sA, v(vWA + 2)))
    for s in range(1, 4): a.e("v_xor_b32 %s, %d, %s" % (v(vXA + s), 32 * s, v(vXA)))
    a.e("s_lshl_b32 s%d, s%d, 14" % (sA, sHI))
    a.e("s_add_u32 s%d, s%d, 0x%x" % (sA, sA, LL_WQ))
    a.e("v_add_u32 %s, s%d, %s" % (v(vQA), sA, v(vQA)))
    a.e("s_waitcnt vmcnt(%d)" % (2 if Opt.touch & 2 else 0))
    a.e("s_barrier")
    def fr(k):
        b = vFR + 8 * (k % 4)
        return b, b + 4
    def reads(k):
        c, s = divmod(k, 4); x, w = fr(k)
        return [rd128(x, vXA + s, c * 16384), rdtr(w, vQA, k * 1024), rdtr(w + 2, vQA, k * 1024 + 256)]
    for k in range(2):
        for r in reads(k): a.e(r)
    for k in range(16):
        if k + 2 < 16:
            for r in reads(k + 2): a.e(r)
        a.e("s_waitcnt lgkmcnt(%d)" % (3 * min(2, 15 - k)))
        x, w = fr(k)
        a.e(mfma(vAQ, w, x, None if k == 0 else vAQ))
    spin_counter(a, "kvl", False)
    a.e("s_barrier")
    for s, t in kv_first_loads(a): a.e(s)
    a.wait0()
    a.stamp(4)
    a.e("s_branch L_join")

def gelu_tile(a, ti, scalar=False):
    acc = vACC + 16 * ti
    t = vFR
    o = vFR + 8 + 4 * ti
    pk = lambda r: v(r, 2)
    if scalar:
        for i in range(8): a.e("v_mul_f32 %s, %s, %s" % (v(t + i), v(acc + i), v(acc + i)))
        for i in range(8): a.e("v_fma_f32 %s, %s, %s, %s" % (v(t + i), v(t + i), v(vC0 + 1), v(vC0)))
        for i in range(8): a.e("v_mul_f32 %s, %s, %s" % (v(t + i), v(t + i), v(acc + i)))
        for i in range(8): a.e("v_exp_f32 %s, %s" % (v(t + i), v(t + i)))
        for i in range(8): a.e("v_add_f32 %s, 1.0, %s" % (v(t + i), v(t + i)))
        for i in range(8): a.e("v_rcp_f32 %s, %s" % (v(t + i), v(t + i)))
        for i in range(8): a.e("v_mul_f32 %s, %s, %s" % (v(acc + i), v(acc + i), v(acc + 8 + i)))
        for i in range(8): a.e("v_mul_f32 %s, %s, %s" % (v(acc + i), v(acc + i), v(t + i)))
    R4, R8 = (range(0), range(0)) if scalar else (range(4), range(8))
    for i in R4: a.e("v_pk_mul_f32 %s, %s, %s" % (pk(t + 2 * i), pk(acc + 2 * i), pk(acc + 2 * i)))
    for i in R4: a.e("v_pk_fma_f32 %s, %s, %s, %s op_sel:[0,1,0] op_sel_hi:[1,1,0]" % (pk(t + 2 * i), pk(t + 2 * i), pk(vC0), pk(vC0)))
    for i in R4: a.e("v_pk_mul_f32 %s, %s, %s" % (pk(t + 2 * i), pk(t + 2 * i), pk(acc + 2 * i)))
    for i in R8: a.e("v_exp_f32 %s, %s" % (v(t + i), v(t + i)))
    for i in R4: a.e("v_pk_add_f32 %s, %s, 1.0 op_sel_hi:[1,0]" % (pk(t + 2 * i), pk(t + 2 * i)))
    for i in R8: a.e("v_rcp_f32 %s, %s" % (v(t + i), v(t + i)))
    for i in R4: a.e("v_pk_mul_f32 %s, %s, %s" % (pk(acc + 2 * i), pk(acc + 2 * i), pk(acc + 8 + 2 * i)))
    for i in R4: a.e("v_pk_mul_f32 %s, %s, %s" % (pk(acc + 2 * i), pk(acc + 2 * i), pk(t + 2 * i)))
    for i in range(4): a.e("v_cvt_pk_bf16_f32 %s, %s, %s" % (v(o + i), v(acc + 2 * i), v(acc + 2 * i + 1)))
    aa, bb = ti >> 1, ti & 1
    a.vmop("buffer_store_dwordx4 %s, %s, %s, s%d offen offset:%d sc1" % (v(o, 4), v(vL16), srd(SWS), sD if bb else sHST, aa * 1024), "hst")

def gelu_head(a):
    a.e("s_bitcmp1_b32 s%d, 0" % sLO)
    a.e("s_cselect_b32 s%d, 0x%x, 0x%x" % (sD, (-112 * 1024) & 0xffffffff, 0))
    a.e("s_cselect_b32 s%d, 0, 0x%x" % (sC, 112 * 1024))
    a.e("s_add_u32 s%d, s%d, s%d" % (sD, sD, sC))
    a.e("s_add_u32 s%d, s%d, s%d" % (sD, sD, sHST))

def gelu_sub(a):
    if Opt.stagger and Opt.gsc:
        a.lab("L_geluA")
        gelu_head(a)
        for ti in range(Opt.gsc): gelu_tile(a, ti, True)
        a.e("s_branch L_gelu%d" % Opt.gsc)
    else:
        a.lab("L_geluA")
    a.lab("L_geluB")
    gelu_head(a)
    for ti in range(4):
        gelu_tile(a, ti)
        a.lab("L_gelu%d" % (ti + 1))
    a.e("s_setpc_b64 %s" % sp(sRET))

def Yseg(hset, toggle=False):
    out = []
    for t in range(2):
        S, Sn = vS + 16 * t, vS + 16 * (1 - t)
        K, V0, V1 = vKF + 4 * t, vV + 8 * t, vV + 8 * t + 4
        for j in range(8):
            out.append("v_exp_f32 %s, %s" % (v(vE + 2 * (j % 2)), v(S + 2 * j)))
            out.append("v_exp_f32 %s, %s" % (v(vE + 2 * (j % 2) + 1), v(S + 2 * j + 1)))
            jj = (j - 1) % 8
            out.append("v_cvt_pk_bf16_f32 %s, %s, %s" % (v(vP + jj), v(vE + 2 * (jj % 2)), v(vE + 2 * (jj % 2) + 1)))
            if j == 1: out.append(mfma(vO, V1, vP + 4, vO))
            if j == 3: out.append(mfma(Sn, K, vQ, None))
            if hset is None:
                if j == 7: out.append(mfma(vO, V0, vP, vO))
            else:
                if j == 5: out.append(mfma(vO, V0, vP, vO))
                if j == 6 and t == 1 and toggle:
                    out.append("v_xor_b32 %s, 0x4000, %s" % (v(vKVA), v(vKVA)))
                    out.append("v_xor_b32 %s, 0x8000, %s" % (v(vWDA), v(vWDA)))
                if j == 7: out.append(mfma(vD + 16 * t, vWF + 4 * t, vH + 4 * hset, vD + 16 * t))
    return out

def kv_reads(off):
    r = [rd128(vKF, vKVA, off), rd128(vKF + 4, vKVA, off + 2048), "s_mov_b64 exec, %s" % sp(sVM)]
    for t in range(2):
        r += [rd128(vV + 8 * t, vKVA, off + 2048 * t + 1024), rd128(vV + 8 * t + 4, vKVA, off + 2048 * t + 1280)]
    r.append("s_mov_b64 exec, -1")
    return r
def wd_reads(dst, addr, off):
    r = []
    for c in range(2):
        r += [rdtr(dst + 4 * c, addr, off + 512 * c), rdtr(dst + 4 * c + 2, addr, off + 512 * c + 1024)]
    return r

def attention(a, role):
    A = role == "A"
    def kvdma(u):
        a.vmop("s_add_u32 m0, s%d, 0x%x\ns_add_u32 s%d, s%d, 0x%x\nbuffer_load_dwordx4 %s, %s, s%d offen sc1 lds"
               % (sWK, L_KV + (u % 4) * 8192, sA, sWK, u * 8192, v(vL16), srd(SKV), sA), "kv%d" % u)
    def wddma(sg):
        a.vmop("s_add_u32 m0, s%d, 0x%x\ns_add_u32 s%d, s%d, 0x%x\nbuffer_load_dwordx4 %s, %s, s%d offen lds"
               % (sWK, L_WD + ((sg + 3) % 8) * 8192, sA, sWDOFF, sg * 16384, v(vWDV), srd(SWD), sA), "wd%d" % sg)
    def wodma(j):
        a.vmop("s_add_u32 m0, s%d, 0x%x\ns_add_u32 s%d, s%d, 0x%x\nbuffer_load_dwordx4 %s, %s, s%d offen lds"
               % (sWK, L_WO + j * 8192, sA, sB, j * 16384, v(vWDV), srd(SWO), sA), "wo")
    def hload(sg, dst):
        a.vmop("s_add_u32 s%d, s%d, 0x%x\nbuffer_load_dwordx4 %s, %s, %s, s%d offen sc1"
               % (sA, sHOFF, sg * 1024, v(dst, 4), v(vL16), srd(SWS), sA), "h%d" % sg)
    for n in range(11):
        if not A and n == 0: a.e("s_barrier")
        tags = []
        if A and n % 2 == 1: tags.append("kv%d" % ((n + 1) // 2))
        if not A and n % 2 == 0: tags.append("kv%d" % ((n + 2) // 2))
        if n == 2: tags.append("hst")
        if n == 10: tags.append("wd0")
        if n == 8 and A:
            a.e("s_cmp_lg_u32 s%d, 0" % sW)
            a.e("s_cbranch_scc1 L_hf_done")
            a.e("s_mov_b32 s%d, 0x4000" % sB)
            a.e("s_waitcnt vmcnt(2)")
            a.lab("L_hf_chk")
            a.e("v_cmp_ne_u32 vcc, 1, %s" % v(vPOLL))
            a.e("s_cbranch_vccz L_hf_done")
            a.e("s_sleep 2")
            a.e("buffer_load_dword %s, %s, %s, 0 offen sc1" % (v(vPOLL), v(vFLA), srd(SWS)))
            a.e("s_sub_u32 s%d, s%d, 1" % (sB, sB))
            a.e("s_cmp_lg_u32 s%d, 0" % sB)
            a.e("s_waitcnt vmcnt(0)")
            a.e("s_cbranch_scc1 L_hf_chk")
            a.lab("L_hf_done")
        a.waitvm(tags)
        if n == 3 and not A:
            a.e("s_cmp_ge_u32 s%d, 14" % sM)
            a.e("s_cbranch_scc1 L_nohf")
            a.e("s_cmp_lg_u32 s%d, 4" % sW)
            a.e("s_cbranch_scc1 L_nohf")
            a.e("s_lshl_b32 s%d, s%d, 4" % (sA, sG))
            a.e("s_add_u32 s%d, s%d, s%d" % (sA, sA, sM))
            a.e("s_lshl_b32 s%d, s%d, 7" % (sA, sA))
            a.e("s_add_u32 s%d, s%d, 0x%x" % (sA, sA, WS_HFLAG))
            a.e("s_mov_b64 exec, 1")
            a.e("buffer_store_dword %s, off, %s, s%d sc1" % (v(vONE), srd(SWS), sA))
            a.e("s_mov_b64 exec, -1")
            a.lab("L_nohf")
        for r in kv_reads((n % 8) * 4096): a.e(r)
        if n == 7 and A:
            a.e("s_cmp_lg_u32 s%d, 0" % sW)
            a.e("s_cbranch_scc1 L_hf_nol")
            a.e("buffer_load_dword %s, %s, %s, 0 offen sc1" % (v(vPOLL), v(vFLA), srd(SWS)))
            a.lab("L_hf_nol")
        if n == 0:
            kvdma(2); kvdma(3)
            a.e("s_lshr_b32 s%d, s%d, 1" % (sC, sW))
            a.e("s_mul_i32 s%d, s%d, %d" % (sWDOFF, sC, 448 * 1024))
            a.e("s_lshl_b32 s%d, s%d, 1" % (sA, sT))
            a.e("s_and_b32 s%d, s%d, 1" % (sB, sW))
            a.e("s_add_u32 s%d, s%d, s%d" % (sA, sA, sB))
            a.e("s_mul_i32 s%d, s%d, 112" % (sA, sA))
            a.e("s_mul_i32 s%d, s%d, 28" % (sB, sC))
            a.e("s_add_u32 s%d, s%d, s%d" % (sA, sA, sB))
            a.e("s_lshl_b32 s%d, s%d, 10" % (sA, sA))
            a.e("s_add_u32 s%d, s%d, 0x%x" % (sHOFF, sA, WS_HF))
        if (A and n % 2 == 1 and n >= 3): kvdma((n + 5) // 2)
        if (not A and n % 2 == 0 and n >= 2): kvdma((n + 6) // 2)
        if 1 <= n <= 3:
            a.e("s_lshr_b32 s%d, s%d, 1" % (sB, sW))
            a.e("s_lshl_b32 s%d, s%d, 17" % (sB, sB))
            for j in {1: (0, 1, 2), 2: (3, 4, 5), 3: (6, 7)}[n]: wodma(j)
        if n >= 4: wddma(n - 4)
        if n == 9:
            hload(0, vH + 12); hload(1, vH + 0); hload(24, vH + 16); hload(25, vH + 20)
        if n == 10:
            hload(26, vH + 24); hload(27, vH + 28); hload(2, vH + 4)
        a.e("s_waitcnt lgkmcnt(0)")
        a.e("s_call_b64 %s, L_Y%s" % (sp(sRET), role))
    a.e("s_add_u32 s%d, s%d, 0x%x" % (sHOFF, sHOFF, 3 * 1024))
    a.e("s_add_u32 s%d, s%d, 0x%x" % (sWDOFF, sWDOFF, 7 * 16384))
    a.e("s_mov_b32 s%d, 0x%x" % (sM0WD, ((7 + 3) % 8) * 8192))
    u0 = 8 if A else 9
    a.e("s_add_u32 s%d, s%d, 0x%x" % (sKVOFF, sWK, u0 * 8192))
    a.e("s_mov_b32 s%d, 6" % sCNT)
    a.waitvm(["h0", "wd1", "kv6"] if A else ["h0", "wd1"])
    a.e("s_branch L_loop%s_in" % role)
    a.l.append(".p2align 6")
    a.lab("L_loop%s" % role)
    for p in range(4):
        a.e("s_waitcnt vmcnt(5)")
        if p == 3: a.lab("L_loop%s_in" % role)
        for r in kv_reads(p * 4096): a.e(r)
        for r in wd_reads(vWF, vWDA, p * 8192): a.e(r)
        a.e("buffer_load_dwordx4 %s, %s, %s, s%d offen sc1" % (v(vH + 4 * ((p + 3) % 4), 4), v(vL16), srd(SWS), sHOFF))
        a.e("s_add_u32 m0, s%d, s%d" % (sWK, sM0WD))
        a.e("s_add_u32 s%d, s%d, 0x400" % (sHOFF, sHOFF))
        a.e("buffer_load_dwordx4 %s, %s, s%d offen lds" % (v(vWDV), srd(SWD), sWDOFF))
        a.e("s_add_u32 s%d, s%d, 0x4000" % (sWDOFF, sWDOFF))
        a.e("s_add_u32 s%d, s%d, 0x2000" % (sM0WD, sM0WD))
        a.e("s_and_b32 s%d, s%d, 0xffff" % (sM0WD, sM0WD))
        if (p % 2 == 1) == A:
            a.e("s_and_b32 s%d, s%d, 0x7fff" % (sA, sKVOFF))
            a.e("s_add_u32 m0, s%d, 0x%x" % (sA, L_KV))
            a.e("s_nop 0")
            a.e("buffer_load_dwordx4 %s, %s, s%d offen sc1 lds" % (v(vL16), srd(SKV), sKVOFF))
            a.e("s_add_u32 s%d, s%d, 0x2000" % (sKVOFF, sKVOFF))
        if p == 3:
            a.e("s_sub_u32 s%d, s%d, 1" % (sCNT, sCNT))
            a.e("s_cmp_lg_u32 s%d, 0" % sCNT)
        a.e("s_waitcnt lgkmcnt(0)")
        if A: a.e("s_barrier")
        for x in Yseg(p, toggle=(p == 3)): a.e(x)
        if not A:
            if p == 3: a.e("s_cbranch_scc0 L_tail")
            a.e("s_barrier")
    a.e(("s_cbranch_scc1 L_loop%s" if A else "s_branch L_loop%s") % role)

def ysubs(a):
    for role in "AB":
        a.l.append(".p2align 6")
        a.lab("L_Y%s" % role)
        if role == "A": a.e("s_barrier")
        for x in Yseg(None): a.e(x)
        if role == "B": a.e("s_barrier")
        a.e("s_setpc_b64 %s" % sp(sRET))

def transition(a):
    a.lab("L_join")
    a.e("s_lshl_b32 s%d, s%d, 11" % (sA, sW))
    a.e("s_add_u32 s%d, s%d, 0x%x" % (sA, sA, L_QX))
    a.e("v_add_u32 v2, s%d, %s" % (sA, v(vL16)))
    a.e("v_xor_b32 v3, 0x2000, v2")
    a.e("s_cmp_lg_u32 s%d, 0" % sHI)
    a.e("s_cbranch_scc1 L_trB")
    vm0 = list(a.vm)
    for role in "AB":
        a.vm = list(vm0)
        A = role == "A"
        if not A: a.lab("L_trB")
        keep, send = (vAQ, vAQ + 8) if A else (vAQ + 8, vAQ)
        def qfin():
            a.e("s_waitcnt lgkmcnt(0)")
            for i in range(4): a.e("v_pk_add_f32 %s, %s, %s" % (v(keep + 2 * i, 2), v(keep + 2 * i, 2), v(send + 2 * i, 2)))
            for i in range(4): a.e("v_cvt_pk_bf16_f32 %s, %s, %s" % (v(vQ + i), v(keep + 2 * i), v(keep + 2 * i + 1)))
        def gelu():
            a.e("s_cmp_ge_u32 s%d, 14" % sM)
            a.e("s_cbranch_scc1 L_nog%s" % role)
            a.e("s_call_b64 %s, L_gelu%s" % (sp(sRET), role))
            a.vm += ["hst"] * 4
            a.lab("L_nog%s" % role)
        a.e("ds_write_b128 v2, %s" % v(send, 4))
        a.e("ds_write_b128 v2, %s offset:1024" % v(send + 4, 4))
        if Opt.stagger:
            if A:
                a.e("s_setprio 1")
                gelu()
            a.waitvm(["k0", "kv0", "kv1"], lgkm=True)
            a.e("s_barrier")
            a.e(rd128(send, 3, 0))
            a.e(rd128(send + 4, 3, 1024))
            if not A: gelu()
            qfin()
            a.e("s_nop 1")
        else:
            a.e("s_waitcnt lgkmcnt(0)")
            a.e("s_barrier")
            a.e(rd128(send, 3, 0))
            a.e(rd128(send + 4, 3, 1024))
            if A:
                a.e("s_setprio 1")
                gelu(); qfin()
                a.waitvm(["k0", "kv0", "kv1"])
                a.e("s_barrier")
            else:
                a.waitvm(["k0", "kv0", "kv1"], lgkm=True)
                a.e("s_barrier")
                gelu(); qfin()
                a.e("s_nop 1")
        a.e(mfma(vS, vK0, vQ, None))
        a.stamp(5)
        attention(a, role)
        if A: a.e("s_branch L_tail")

def tail(a):
    a.lab("L_tail")
    a.e("v_cvt_pk_bf16_f32 %s, %s, %s" % (v(vP + 7), v(vE + 2), v(vE + 3)))
    a.stamp(6)
    a.e("s_setprio 0")
    a.e("s_mov_b32 s%d, 0x%x" % (sC, f2u(2.0 ** -16)))
    a.e(mfma(vO, vV1L, vP + 4, vO))
    a.e("s_mov_b32 s%d, 0x%x" % (sD, f2u(2.0 ** 100)))
    a.e("s_nop 10")
    t = vFR
    a.e("v_rcp_f32 %s, %s" % (v(t + 2), v(vO + 8)))
    a.e("v_pk_mul_f32 %s, %s, 0 op_sel_hi:[1,0]" % (v(t, 2), v(vO, 2)))
    for i in range(1, 4): a.e("v_pk_fma_f32 %s, %s, 0, %s op_sel_hi:[1,0,1]" % (v(t, 2), v(vO + 2 * i, 2), v(t, 2)))
    a.e("v_add_f32 %s, %s, %s" % (v(t), v(t), v(t + 1)))
    a.e("v_add_f32 %s, %s, %s" % (v(t), v(t), v(vO + 8)))
    a.e("v_cmp_nle_f32 vcc, s%d, %s" % (sC, v(t)))
    a.e("v_cmp_nge_f32 %s, s%d, %s" % (sp(sTMPP), sD, v(t)))
    a.e("s_or_b64 vcc, vcc, %s" % sp(sTMPP))
    a.e("s_branch L_fb" if Opt.force_fb else "s_cbranch_scc1 L_fb")
    a.lab("L_fbret")
    a.e("v_mul_f32 %s, %s, %s" % (v(t + 2), v(t + 2), v(vGP)))
    for i in range(4): a.e("v_pk_mul_f32 %s, %s, %s op_sel_hi:[1,0]" % (v(vO + 2 * i, 2), v(vO + 2 * i, 2), v(t + 2, 2)))
    for i in range(4): a.e("v_cvt_pk_bf16_f32 %s, %s, %s" % (v(vP + i), v(vO + 2 * i), v(vO + 2 * i + 1)))
    for i in range(4): a.e("v_min_u32 %s, -2, %s" % (v(vP + i), v(vP + i)))
    a.e("buffer_store_dwordx4 %s, %s, %s, s%d offen sc1" % (v(vP, 4), v(vL16), srd(SWS), sOST))
    a.e("s_waitcnt vmcnt(1)")
    a.e("s_barrier")
    hreg = {21: vH + 0, 22: vH + 4, 23: vH + 8, 24: vH + 16, 25: vH + 20, 26: vH + 24, 27: vH + 28}
    wf = [vFR, vFR + 8, vFR + 16]
    for i in range(2):
        for r in wd_reads(wf[i], vWDA, i * 8192): a.e(r)
    for i in range(7):
        if i + 2 < 7:
            for r in wd_reads(wf[(i + 2) % 3], vWDA, (i + 2) * 8192): a.e(r)
        a.e("s_waitcnt lgkmcnt(%d)" % (4 * min(2, 6 - i)))
        for c in range(2): a.e(mfma(vD + 16 * c, wf[i % 3] + 4 * c, hreg[21 + i], vD + 16 * c))
    a.e("s_barrier")
    a.e("v_add_u32 %s, 0x%x, %s" % (v(vWDA), L_WO, v(vWDA)))
    a.e("v_sub_f32 %s, 1.0, %s" % (v(vGC), v(vGC)))
    a.e("s_waitcnt vmcnt(0)")
    a.stamp(7)
    for j in range(8):
        if j == 4: a.e("s_add_u32 s%d, s%d, 0x1000" % (sA, sOLD))
        a.e("buffer_load_dwordx4 %s, %s, %s, s%d offen offset:%d sc1" % (v(vS + 4 * j, 4), v(vL16), srd(SWS), sOLD if j < 4 else sA, (j % 4) * 1024))
    for i in range(2):
        for r in wd_reads(wf[i], vWDA, i * 8192): a.e(r)
    for i in range(16): a.e("v_pk_mul_f32 %s, %s, %s op_sel:[0,1] op_sel_hi:[1,1]" % (v(vD + 2 * i, 2), v(vD + 2 * i, 2), v(vGP, 2)))
    aw = vXA
    ar = vWA
    a.e("v_and_b32 v2, 31, v0")
    a.e("v_lshrrev_b32 v3, 5, v0")
    a.e("v_and_b32 v4, 7, v0")
    a.e("v_xor_b32 v3, v3, v4")
    a.e("v_lshlrev_b32 v3, 4, v3")
    a.e("v_lshl_add_u32 v3, v2, 8, v3")
    a.e("s_and_b32 s%d, s%d, 1" % (sB, sW))
    a.e("s_lshl_b32 s%d, s%d, 15" % (sB, sB))
    a.e("s_lshr_b32 s%d, s%d, 1" % (sC, sW))
    a.e("s_lshl_b32 s%d, s%d, 13" % (sD, sC))
    a.e("s_add_u32 s%d, s%d, s%d" % (sD, sD, sB))
    a.e("v_add_u32 %s, s%d, v3" % (v(aw), sD))
    for j in range(1, 4): a.e("v_xor_b32 %s, %d, %s" % (v(aw + j), 32 * j, v(aw)))
    a.e("v_lshrrev_b32 v2, 3, v0")
    a.e("v_lshlrev_b32 v3, 1, v4")
    a.e("v_xor_b32 v3, v3, v2")
    a.e("v_lshlrev_b32 v3, 4, v3")
    a.e("v_lshl_add_u32 v3, v2, 8, v3")
    a.e("s_lshl_b32 s%d, s%d, 11" % (sD, sC))
    a.e("s_add_u32 s%d, s%d, s%d" % (sD, sD, sB))
    a.e("v_add_u32 %s, s%d, v3" % (v(ar), sD))
    a.e("v_xor_b32 %s, 16, %s" % (v(ar + 1), v(ar)))
    a.e("v_lshlrev_b32 v4, 4, v4")
    a.e("v_lshl_add_u32 %s, v2, 10, v4" % v(ar + 2))
    a.e("s_lshl_b32 s%d, s%d, 13" % (sC, sC))
    a.e("s_add_u32 s%d, s%d, s%d" % (sB, sB, sC))
    a.e("s_lshl_b32 s%d, s%d, 16" % (sC, sT))
    a.e("s_add_u32 s%d, s%d, s%d" % (sB, sB, sC))
    a.e("s_lshl_b32 s%d, s%d, 7" % (sC, sCB))
    a.e("s_add_u32 s%d, s%d, s%d" % (sCNT, sB, sC))
    a.e("s_mov_b32 s%d, 0x2000" % sB)
    for j in range(8):
        o = vS + 4 * j
        if j + 2 < 8:
            for r in wd_reads(wf[(j + 2) % 3], vWDA, (j + 2) * 8192): a.e(r)
        a.lab("L_ochk%d" % j)
        a.e("s_waitcnt vmcnt(%d)" % (7 - j))
        a.e("v_max3_u32 v2, %s, %s, %s" % (v(o), v(o + 1), v(o + 2)))
        a.e("v_max_u32 v2, v2, %s" % v(o + 3))
        a.e("v_cmp_eq_u32 vcc, -1, v2")
        a.e("s_cbranch_vccnz L_ore%d" % j)
        a.lab("L_ook%d" % j)
        a.e("s_waitcnt lgkmcnt(%d)" % (4 * min(2, 7 - j)))
        for c in range(2): a.e(mfma(vD + 16 * c, wf[j % 3] + 4 * c, o, vD + 16 * c))
    a.stamp(8)
    a.e("s_nop 10")
    for c in range(2):
        for j in range(4):
            a.e("ds_write_b128 %s, %s offset:%d" % (v(aw + j), v(vD + 16 * c + 4 * j, 4), 128 * c))
    a.e("s_waitcnt lgkmcnt(0)")
    a.e("s_barrier")
    for p in range(4):
        for h in range(2): a.e(rd128(vS + 8 * p + 4 * h, ar + h, p * 8192))
    for p in range(1, 4):
        a.e("s_waitcnt lgkmcnt(%d)" % (6 - 2 * p))
        for i in range(4): a.e("v_pk_add_f32 %s, %s, %s" % (v(vS + 2 * i, 2), v(vS + 2 * i, 2), v(vS + 8 * p + 2 * i, 2)))
    for i in range(4): a.e("v_cvt_pk_bf16_f32 %s, %s, %s" % (v(vP + i), v(vS + 2 * i), v(vS + 2 * i + 1)))
    a.e("buffer_store_dwordx4 %s, %s, %s, s%d offen %s" % (v(vP, 4), v(ar + 2), srd(SOUT), sCNT, Opt.out_pol))
    if Opt.probe >= 0:
        a.e("s_waitcnt vmcnt(0)")
        a.stamp(9)
        a.e("s_cmp_ge_u32 s%d, 14" % sM)
        a.e("s_cbranch_scc%d L_end" % (0 if Opt.probe_l else 1))
        a.lab("L_probe")
        a.e("s_memrealtime s[0:1]")
        a.e("s_waitcnt lgkmcnt(0)")
        a.e("s_sub_u32 s0, s0, s%d" % (sSTAMP + 4))
        a.e("s_cmp_lt_u32 s0, 4000")
        a.e("s_cbranch_scc1 L_probe")
    if Opt.pin == 9:
        a.e("s_waitcnt vmcnt(0)")
        a.stamp(9)
    if Opt.diag:
        a.e("s_waitcnt vmcnt(0)")
        a.stamp(9)
        a.e("s_mov_b32 s%d, s%d" % (sSTAMP + 3, sSTAMP))
        a.e("s_mov_b32 s%d, s%d" % (sSTAMP, sB))
        a.e("s_getreg_b32 s%d, hwreg(HW_REG_XCC_ID)" % (sSTAMP + 1))
        for i in range(20): a.e("v_mov_b32 %s, s%d" % (v(vS + i), sSTAMP + i))
        a.e("s_lshl_b32 s%d, s2, 3" % sA)
        a.e("s_add_u32 s%d, s%d, s%d" % (sA, sA, sW))
        a.e("s_lshl_b32 s%d, s%d, 7" % (sA, sA))
        a.e("s_add_u32 s%d, s%d, 0x%x" % (sA, sA, WS_STAMP))
        a.e("s_mov_b64 exec, 1")
        for i in range(5): a.e("buffer_store_dwordx4 %s, off, %s, s%d offset:%d" % (v(vS + 4 * i, 4), srd(SWS), sA, 16 * i))
    a.lab("L_end")
    a.e("s_endpgm")
    for j in range(8):
        a.lab("L_ore%d" % j)
        a.e("s_sub_u32 s%d, s%d, 1" % (sB, sB))
        a.e("s_cbranch_scc1 L_ogive%d" % j)
        a.e("s_waitcnt vmcnt(0)")
        for i in range(j, 8):
            a.e("buffer_load_dwordx4 %s, %s, %s, s%d offen offset:%d sc1" % (v(vS + 4 * i, 4), v(vL16), srd(SWS), sOLD if i < 4 else sA, (i % 4) * 1024))
        a.e("s_branch L_ochk%d" % j)
        a.lab("L_ogive%d" % j)
        a.e("s_mov_b32 s%d, 0" % sB)
        a.e("s_branch L_ook%d" % j)

def fallback(a):
    a.lab("L_fb")
    m = vFR + 4
    a.e("v_mov_b32 %s, 0xff800000" % v(m))
    a.e("s_mov_b32 s%d, 0" % sA)
    a.lab("L_fb1")
    a.e("buffer_load_dwordx4 %s, %s, %s, s%d offen sc1" % (v(vKF, 4), v(vL16), srd(SKV), sA))
    a.e("s_waitcnt vmcnt(0)")
    a.e(mfma(vS, vKF, vQ, None))
    a.e("s_add_u32 s%d, s%d, 2048" % (sA, sA))
    a.e("s_nop 11")
    for i in range(8): a.e("v_max3_f32 %s, %s, %s, %s" % (v(m), v(m), v(vS + 2 * i), v(vS + 2 * i + 1)))
    a.e("s_cmp_lt_u32 s%d, 0x20000" % sA)
    a.e("s_cbranch_scc1 L_fb1")
    a.e("v_mov_b32 %s, %s" % (v(m + 1), v(m)))
    a.e("s_nop 1")
    a.e("v_permlane32_swap_b32 %s, %s" % (v(m), v(m + 1)))
    a.e("s_nop 1")
    a.e("v_max_f32 %s, %s, %s" % (v(m), v(m), v(m + 1)))
    for i in range(16): a.e("v_sub_f32 %s, 0, %s" % (v(vS + 16 + i), v(m)))
    for i in range(16): a.e("v_mov_b32 %s, 0" % v(vO + i))
    a.e("s_mov_b32 s%d, 0" % sA)
    a.lab("L_fb2")
    a.e("s_add_u32 s%d, s%d, 0x%x" % (sB, sA, 63 * 2048))
    a.e("s_and_b32 s%d, s%d, 0x1ffff" % (sB, sB))
    a.e("buffer_load_dwordx4 %s, %s, %s, s%d offen sc1" % (v(vKF, 4), v(vL16), srd(SKV), sB))
    a.e("s_add_u32 s%d, s%d, 2048" % (sB, sA))
    a.e("s_and_b32 s%d, s%d, 0x1ffff" % (sB, sB))
    a.e("s_mov_b64 exec, %s" % sp(sVM))
    a.e("buffer_load_dwordx4 %s, %s, %s, s%d offen offset:1024 sc1" % (v(vV, 4), v(vL16), srd(SKV), sA))
    a.e("buffer_load_dwordx4 %s, %s, %s, s%d offen offset:1280 sc1" % (v(vV + 4, 4), v(vL16), srd(SKV), sB))
    a.e("s_mov_b64 exec, -1")
    a.e("s_waitcnt vmcnt(0)")
    a.e(mfma(vS, vKF, vQ, vS + 16))
    a.e("s_add_u32 s%d, s%d, 2048" % (sA, sA))
    a.e("s_nop 11")
    for i in range(16): a.e("v_exp_f32 %s, %s" % (v(vS + i), v(vS + i)))
    for i in range(8): a.e("v_cvt_pk_bf16_f32 %s, %s, %s" % (v(vP + i), v(vS + 2 * i), v(vS + 2 * i + 1)))
    a.e("s_nop 1")
    a.e(mfma(vO, vV, vP, vO))
    a.e(mfma(vO, vV + 4, vP + 4, vO))
    a.e("s_cmp_lt_u32 s%d, 0x20000" % sA)
    a.e("s_cbranch_scc1 L_fb2")
    a.e("s_nop 11")
    a.e("v_rcp_f32 %s, %s" % (v(vFR + 2), v(vO + 8)))
    a.e("s_branch L_fbret")

def build():
    a = Asm()
    prologue(a)
    phase1_F(a)
    transition(a)
    tail(a)
    ysubs(a)
    vm = a.vm; gelu_sub(a); a.vm = vm
    phase1_L(a)
    fallback(a)
    a.lab("L_codeend")
    il = a.l.index("L_light:")
    for i, x in enumerate(a.l):
        if x.endswith(" lds") and "sc1" not in x and " nt" not in x:
            if (Opt.ntx & 4 and (srd(SWD) in x or srd(SWO) in x)) or (Opt.ntx & 8 and i > il):
                a.l[i] = x[:-4] + " nt lds"
    head = open("cdna_kernels/%s.s.ref" % NAME).read().split("\n")
    hdr = [l for l in head if l.startswith(";") and "@launch" not in l and "Override" not in l and "grid=" not in l]
    out = hdr + ["; @launch grid=(256,1,1) block=(512,1,1) lds=%d" % LDS_BYTES,
                 '.amdgcn_target "amdgcn-amd-amdhsa--gfx950"', ".text", ".globl %s_kernel" % NAME, ".p2align 8",
                 ".type %s_kernel,@function" % NAME,
                 ".set CODE_PF_MAX, L_codeend - L_nopf - 4" if Opt.code_pf else "",
                 "%s_kernel:" % NAME]
    out += ["; mapmode %d" % Opt.mapmode, "; xrot %d" % Opt.xrot]
    out += a.l
    out += ['.section .rodata,"a"', ".p2align 6", ".amdhsa_kernel %s_kernel" % NAME,
            "  .amdhsa_next_free_vgpr %d" % NV, "  .amdhsa_next_free_sgpr 102", "  .amdhsa_accum_offset 256",
            "  .amdhsa_group_segment_fixed_size 0", "  .amdhsa_kernarg_size 104", "  .amdhsa_user_sgpr_count 2",
            "  .amdhsa_user_sgpr_kernarg_segment_ptr 1", "  .amdhsa_system_sgpr_workgroup_id_x 1", ".end_amdhsa_kernel", ""]
    return "\n".join(out)

if __name__ == "__main__":
    path = sys.argv[1]
    for kv in sys.argv[2:]:
        k, val = kv.split("=")
        cur = getattr(Opt, k)
        setattr(Opt, k, val if isinstance(cur, str) else type(cur)(int(val)))
    open(path, "w").write(build())
```

```python
import sys, struct, math

NAME = "gated_mix__grouped_kv_mqa__geglu_ffn__prompt"

class Opt:
    diag = 0
    mapmode = 1
    force_fb = False
    out_pol = ""
    code_pf = True
    xrot = 0
    npre = 13
    stagger = 1
    rper = 2
    dma1 = 17
    kprio = 0
    dma0 = 8
    npd = 4
    kdiag = 0
    fillpre = 200
    fillper = 6
    gsc = 2
    sched = 2
    xmask = 1
    ntx = 0
    touch = 2
    rotg = 0
    rotm = 0
    startbar = 1
    pvz = 1
    pin = -1
    pin_ns = 60000
    probe = -1
    probe_l = 0

def f2u(x): return struct.unpack("<I", struct.pack("<f", x))[0]

WS_KV = 0
WS_G = 128 * 1024
WS_HFLAG = 192 * 1024
WS_OF = 1 << 20
WS_HF = 4 << 20
WS_STAMP = 12 << 20
WS_SIZE = 16 << 20
K1 = 1024
L_G, L_U, L_X, L_WQ = 0, 48 * K1, 96 * K1, 144 * K1
L_QX = 32 * K1
L_WD, L_WO, L_KV = 0, 64 * K1, 128 * K1
LL_X, LL_W, LL_GATE, LL_WQ = 0, 128 * K1, 144 * K1, 128 * K1
LDS_BYTES = 160 * K1

SX, SWG, SWU, SWQ, SWS, SWD, SWO, SOUT, SDBG, SWKV, SGATE, SKV = 4, 8, 12, 16, 20, 24, 28, 32, 36, 40, 44, 64
SWV = 72
sTMPP = 48
sW, sHI, sLO, sG, sM, sT, sCB = 50, 51, 52, 53, 54, 55, 56
sWK = 57
sWH = 58
sK64 = 59
sVM = 60
sRET = 62
sA, sB, sC, sD = 68, 69, 70, 71
sOFFW, sOFFQ, sCH, sXP = 72, 73, 74, 75
sHOFF, sWDOFF, sKVOFF, sM0WD, sM0KV, sCNT = 72, 73, 74, 75, 76, 77
sOST, sOLD, sHST = 78, 79, 80
sHP = 81
sSTAMP = 82

def srd(b): return "s[%d:%d]" % (b, b + 3)
def sp(b): return "s[%d:%d]" % (b, b + 1)
def v(b, n=1): return "v%d" % b if n == 1 else "v[%d:%d]" % (b, b + n - 1)

vL16 = 1
vT0, vT1, vT2, vT3 = 2, 3, 4, 5
vGP, vGC = 6, 7
vKVA = 8
vWDA = 9
vWDV = 10
vONE = 11
vZERO = 12
vFLA = 13
vPOLL = 14
vGA = 15
vQ = 16
vK0 = 20
vV1L = 24
vE = 28
vP = 32
vV = 40
vO = 56
vD = 72
vACC = 104
vS = 104
vH = 136
vAQ = vP
vF1 = 168
vKF = 168
vWF = 176
vFR = 184
vLX = 224
vXA = 240
vWA = 244
vQA = 248
vDX, vDG, vDQ = 249, 250, 251
vC0 = 252
vHA = 254
NV = 256

class Asm:
    def __init__(self):
        self.l = []
        self.vm = []
        self.nstamp = 0
    def e(self, s):
        for x in s.split("\n"):
            x = x.strip()
            if x: self.l.append("    " + x)
    def lab(self, s): self.l.append(s + ":")
    def vmop(self, s, tag):
        self.e(s); self.vm.append(tag)
    def vmn(self, tags):
        if isinstance(tags, str): tags = [tags]
        last = -1
        for i, t in enumerate(self.vm):
            if t in tags: last = i
        return None if last < 0 else len(self.vm) - 1 - last
    def waitvm(self, tags, lgkm=False):
        n = self.vmn(tags)
        if n is None:
            if lgkm: self.e("s_waitcnt lgkmcnt(0)")
            return
        assert n < 64
        self.e("s_waitcnt vmcnt(%d)%s" % (n, " lgkmcnt(0)" if lgkm else ""))
        self.vm = self.vm[len(self.vm) - n:] if n else []
    def wait0(self, lgkm=False):
        self.e("s_waitcnt vmcnt(0)%s" % (" lgkmcnt(0)" if lgkm else "")); self.vm = []
    def stamp(self, i, real=False):
        if Opt.probe == i:
            self.e("s_waitcnt lgkmcnt(0)")
            self.e("s_memrealtime %s" % sp(sSTAMP + 4))
            self.e("s_waitcnt lgkmcnt(0)")
        if Opt.pin == i:
            self.nstamp += 1
            self.e("s_waitcnt lgkmcnt(0)")
            self.e("s_cselect_b32 s%d, 1, 0" % (sSTAMP + 5))
            self.lab("L_pin%d" % self.nstamp)
            self.e("s_memrealtime s[0:1]")
            self.e("s_waitcnt lgkmcnt(0)")
            self.e("s_sub_u32 s0, s0, s%d" % sSTAMP)
            self.e("s_cmp_lt_u32 s0, %d" % (Opt.pin_ns // 10))
            self.e("s_cbranch_scc1 L_pin%d" % self.nstamp)
            self.e("s_cmp_lg_u32 s%d, 0" % (sSTAMP + 5))
        if Opt.diag and not Opt.kdiag and (Opt.diag == 1 or i == 9):
            self.e("s_waitcnt lgkmcnt(0)")
            self.e("s_memtime %s" % sp(sSTAMP + 2 * i))
            self.e("s_memrealtime s[0:1]")
            self.e("s_waitcnt lgkmcnt(0)")
            self.e("s_mov_b32 s%d, s0" % (sSTAMP + 2 * i + 1))

def kstamp(a, i):
    if Opt.probe == 18 + i: a.e("s_memrealtime %s" % sp(sSTAMP + 4))
    if Opt.diag and Opt.kdiag: a.e("s_memtime %s" % sp(sSTAMP + 2 * i))

def mfma(d, a, b, c):
    return "v_mfma_f32_32x32x16_bf16 %s, %s, %s, %s" % (v(d, 16), v(a, 4), v(b, 4), "0" if c is None else v(c, 16))
def mfma16(d, a, b, c):
    return "v_mfma_f32_16x16x32_bf16 %s, %s, %s, %s" % (v(d, 4), v(a, 4), v(b, 4), "0" if c is None else v(c, 4))
def rd128(d, a, off):
    assert 0 <= off < 65536
    return "ds_read_b128 %s, %s offset:%d" % (v(d, 4), v(a), off)
def rdtr(d, a, off):
    assert 0 <= off < 65536
    return "ds_read_b64_tr_b16 %s, %s offset:%d" % (v(d, 2), v(a), off)

def interleave(mf, fill, per=2):
    out = []
    fill = list(fill)
    for i, m in enumerate(mf):
        out.append(m)
        if i < len(mf) - 1:
            out += fill[:per]; fill = fill[per:]
    return out + fill

def srd_words(a, regs):
    sizes = {SX: 2048 * 1024, SWG: 512 * 3584, SWU: 512 * 3584, SWQ: 512 * 1024, SWS: WS_SIZE, SWKV: 16384, SWV: 16384,
             SGATE: 1024, SWD: 1792 * 1024, SWO: 512 * 1024, SOUT: 2048 * 1024, SDBG: 256, SKV: 128 * 1024}
    for reg in regs:
        a.e("s_mov_b32 s%d, 0x%x" % (reg + 2, sizes[reg]))
        a.e("s_mov_b32 s%d, 0x20000" % (reg + 3))

def prologue(a):
    a.e("s_cmp_ge_u32 s2, 256")
    a.e("s_cbranch_scc1 L_end")
    for reg, off in ((SX, 0), (SWG, 48), (SWU, 56), (SWQ, 8), (SWS, 96), (SWKV, 16), (sTMPP, 24), (SGATE, 72),
                     (SWD, 64), (SWO, 32), (SOUT, 80), (SDBG, 88), (SKV, 96)):
        a.e("s_load_dwordx2 %s, s[0:1], %d" % (sp(reg), off))
    if Opt.probe >= 0: a.e("s_memrealtime %s" % sp(sSTAMP + 4))
    if Opt.diag or Opt.pin >= 0 or Opt.probe >= 0:
        a.e("s_memrealtime %s" % sp(sSTAMP))
        a.e("s_memtime %s" % sp(sSTAMP + 2))
    a.e("v_lshrrev_b32 v2, 6, v0")
    a.e("v_and_b32 v0, 63, v0")
    a.e("v_readfirstlane_b32 s%d, v2" % sW)
    a.e("v_lshlrev_b32 %s, 4, v0" % v(vL16))
    srd_words(a, [SX, SWQ])
    a.e("s_and_b32 s%d, s2, 7" % sA)
    a.e("s_lshr_b32 s%d, s2, 3" % sB)
    a.e("s_lshl_b32 s%d, s%d, 2" % (sT, sA))
    a.e("s_and_b32 s%d, s%d, 3" % (sD, sB))
    a.e("s_add_u32 s%d, s%d, s%d" % (sT, sT, sD))
    a.e("s_lshr_b32 s%d, s%d, 2" % (sCB, sB))
    if Opt.xrot:
        a.e("s_add_u32 s%d, s%d, %d" % (sA, sA, Opt.xrot))
        a.e("s_and_b32 s%d, s%d, 7" % (sA, sA))
    if Opt.mapmode == 0:
        a.e("s_lshl_b32 s%d, s%d, 1" % (sG, sA))
        a.e("s_and_b32 s%d, s%d, 1" % (sC, sB))
        a.e("s_add_u32 s%d, s%d, s%d" % (sG, sG, sC))
        a.e("s_lshr_b32 s%d, s%d, 1" % (sM, sB))
        a.e("s_mov_b32 s%d, s%d" % (sHP, sM))
    elif Opt.mapmode in (1, 3):
        a.e("s_and_b32 s%d, s%d, 1" % (sG, sA))
        a.e("s_lshl_b32 s%d, s%d, 3" % (sG, sG))
        a.e("s_and_b32 s%d, s%d, 7" % (sC, sB))
        a.e("s_add_u32 s%d, s%d, s%d" % (sG, sG, sC))
        a.e("s_lshr_b32 s%d, s%d, 1" % (sA, sA))
        a.e("s_lshl_b32 s%d, s%d, 2" % (sHP, sA))
        a.e("s_lshr_b32 s%d, s%d, 3" % (sC, sB))
        a.e("s_add_u32 s%d, s%d, s%d" % (sHP, sHP, sC))
        if Opt.mapmode == 1:
            a.e("s_mov_b32 s%d, s%d" % (sM, sHP))
        else:
            a.e("s_sub_u32 s%d, s%d, s%d" % (sM, sHP, sA))
            a.e("s_lshr_b32 s%d, s%d, 1" % (sB, sB))
            a.e("s_and_b32 s%d, s%d, 2" % (sB, sB))
            a.e("s_add_u32 s%d, s%d, s%d" % (sB, sB, sA))
            a.e("s_and_b32 s%d, s%d, 3" % (sB, sB))
            a.e("s_add_u32 s%d, s%d, 12" % (sB, sB))
            a.e("s_cmp_eq_u32 s%d, 3" % sC)
            a.e("s_cselect_b32 s%d, s%d, s%d" % (sM, sB, sM))
    else:
        a.e("s_and_b32 s%d, s%d, 3" % (sG, sA))
        a.e("s_lshl_b32 s%d, s%d, 2" % (sG, sG))
        a.e("s_add_u32 s%d, s%d, s%d" % (sG, sG, sD))
        a.e("s_lshr_b32 s%d, s%d, 2" % (sM, sA))
        a.e("s_lshl_b32 s%d, s%d, 3" % (sM, sM))
        a.e("s_add_u32 s%d, s%d, s%d" % (sM, sM, sCB))
        a.e("s_mov_b32 s%d, s%d" % (sHP, sM))
    a.e("s_lshl_b32 s%d, s%d, 10" % (sWK, sW))
    a.e("s_mov_b32 s%d, 0x10000" % sK64)
    if Opt.code_pf:
        a.e("s_cmp_lg_u32 s%d, s%d" % (sD, sW))
        a.e("s_cbranch_scc1 L_nopf")
        a.e("s_getpc_b64 %s" % sp(sRET))
        a.e("s_lshl_b32 s%d, s%d, 13" % (sD, sW))
        a.e("v_lshl_add_u32 v2, v0, 7, s%d" % sD)
        a.e("v_min_u32 v2, CODE_PF_MAX, v2")
        a.e("global_load_dword %s, v2, %s" % (v(vPOLL), sp(sRET)))
        a.lab("L_nopf")
    a.e("s_lshl_b32 s%d, s%d, 2" % (sA, sW))
    a.e("v_lshrrev_b32 v2, 4, v0")
    a.e("v_add_u32 v3, s%d, v2" % sA)
    a.e("v_xor_b32 v3, v3, v0")
    a.e("v_and_b32 v3, 7, v3")
    a.e("v_lshlrev_b32 v3, 4, v3")
    a.e("v_lshrrev_b32 v4, 3, v0")
    a.e("v_lshl_add_u32 v3, v4, 10, v3")
    a.e("s_lshl_b32 s%d, s%d, 17" % (sA, sG))
    a.e("s_lshl_b32 s%d, s%d, 13" % (sB, sW))
    a.e("s_add_u32 s%d, s%d, s%d" % (sA, sA, sB))
    a.e("v_add_u32 %s, s%d, v3" % (v(vDX), sA))
    a.e("s_cmp_ge_u32 s%d, 14" % sM)
    a.e("s_cbranch_scc1 L_light")

def setup_rd(a):
    a.e("s_lshr_b32 s%d, s%d, 2" % (sHI, sW))
    a.e("s_and_b32 s%d, s%d, 3" % (sLO, sW))
    a.e("v_and_b32 v2, 15, v0")
    a.e("v_lshrrev_b32 v3, 4, v0")
    a.e("v_bfe_u32 v4, v0, 1, 3")
    a.e("v_xor_b32 v4, v4, v3")
    a.e("v_lshlrev_b32 v4, 4, v4")
    a.e("v_lshl_add_u32 %s, v2, 7, v4" % v(vXA))
    a.e("v_bfe_u32 v2, v0, 2, 2")
    a.e("v_and_b32 v4, 3, v0")
    a.e("v_lshl_add_u32 %s, v3, 3, v2" % v(vQA))
    a.e("v_lshlrev_b32 %s, 6, %s" % (v(vQA), v(vQA)))
    a.e("v_xor_b32 v5, s%d, v3" % sHI)
    a.e("v_and_b32 v5, 1, v5")
    a.e("v_lshl_add_u32 %s, v5, 5, %s" % (v(vQA), v(vQA)))
    a.e("v_lshl_add_u32 %s, v4, 3, %s" % (v(vQA), v(vQA)))

def setup_oclr(a):
    srd_words(a, [SWS, SKV, SDBG])
    a.e("s_mov_b32 s%d, 0xffff" % sVM)
    a.e("s_mov_b32 s%d, 0xffff" % (sVM + 1))
    a.e("s_lshl_b32 s%d, s%d, 2" % (sA, sG))
    a.e("s_add_u32 s%d, s%d, s%d" % (sA, sA, sLO))
    a.e("s_lshl_b32 s%d, s%d, 5" % (sB, sA))
    a.e("s_lshl_b32 s%d, s%d, 1" % (sC, sHP))
    a.e("s_add_u32 s%d, s%d, s%d" % (sB, sB, sC))
    a.e("s_add_u32 s%d, s%d, s%d" % (sB, sB, sHI))
    a.e("s_lshl_b32 s%d, s%d, 10" % (sB, sB))
    a.e("s_add_u32 s%d, s%d, 0x%x" % (sOST, sB, WS_OF))
    for i in range(4): a.e("v_mov_b32 %s, -1" % v(vQ + i))
    a.vmop("buffer_store_dwordx4 %s, %s, %s, s%d offen sc1" % (v(vQ, 4), v(vL16), srd(SWS), sOST), "oclr")
    a.e("v_mov_b32 %s, 1" % v(vONE))
    a.e("v_mov_b32 %s, 0" % v(vZERO))
    a.e("v_and_b32 %s, 31, v0" % v(vGA))
    a.e("v_lshlrev_b32 %s, 2, %s" % (v(vGA), v(vGA)))

def collect(fn):
    t = Asm(); t.marks = {}
    def vmop(s_, tag):
        t.e(s_); t.marks[len(t.l) - 1] = tag
    t.vmop = vmop
    fn(t)
    return [(x, t.marks.get(i)) for i, x in enumerate(t.l)]
def put(a, items):
    for x, tag in items:
        if tag: a.vmop(x, tag)
        else: a.e(x)

def setup_attn(a):
    srd_words(a, [SWD, SWO, SOUT])
    a.e("s_lshl_b32 s%d, s%d, 2" % (sA, sG))
    a.e("s_add_u32 s%d, s%d, s%d" % (sA, sA, sLO))
    a.e("s_mul_i32 s%d, s%d, 112" % (sB, sA))
    a.e("s_lshl_b32 s%d, s%d, 3" % (sC, sM))
    a.e("s_add_u32 s%d, s%d, s%d" % (sB, sB, sC))
    a.e("s_lshl_b32 s%d, s%d, 2" % (sC, sHI))
    a.e("s_add_u32 s%d, s%d, s%d" % (sB, sB, sC))
    a.e("s_and_b32 s%d, s%d, 1" % (sC, sLO))
    a.e("s_lshl_b32 s%d, s%d, 1" % (sC, sC))
    a.e("s_add_u32 s%d, s%d, s%d" % (sB, sB, sC))
    a.e("s_lshl_b32 s%d, s%d, 10" % (sB, sB))
    a.e("s_add_u32 s%d, s%d, 0x%x" % (sHST, sB, WS_HF))
    a.e("v_bfe_u32 v2, v0, 2, 2")
    a.e("v_lshrrev_b32 v3, 5, v0")
    a.e("v_lshl_add_u32 v2, v3, 2, v2")
    a.e("v_lshlrev_b32 v2, 6, v2")
    a.e("v_bfe_u32 v3, v0, 4, 1")
    a.e("v_lshl_add_u32 v2, v3, 5, v2")
    a.e("v_and_b32 v3, 3, v0")
    a.e("v_lshl_add_u32 v2, v3, 3, v2")
    a.e("s_lshr_b32 s%d, s%d, 1" % (sA, sW))
    a.e("s_lshl_b32 s%d, s%d, 11" % (sA, sA))
    a.e("v_add_u32 %s, s%d, v2" % (v(vWDA), sA))
    a.e("v_add_u32 %s, 0x%x, %s" % (v(vKVA), L_KV, v(vL16)))
    a.e("v_bfe_u32 v2, v0, 2, 3")
    a.e("v_lshlrev_b32 v2, 10, v2")
    a.e("v_lshrrev_b32 v3, 5, v0")
    a.e("v_lshl_add_u32 v2, v3, 6, v2")
    a.e("v_and_b32 v3, 3, v0")
    a.e("v_lshl_add_u32 v2, v3, 4, v2")
    a.e("s_lshl_b32 s%d, s%d, 7" % (sB, sCB))
    a.e("v_add_u32 %s, s%d, v2" % (v(vWDV), sB))
    a.e("v_min_u32 v2, 13, v0")
    a.e("v_lshlrev_b32 v2, 7, v2")
    a.e("s_lshr_b32 s%d, s%d, 1" % (sA, sT))
    a.e("s_lshl_b32 s%d, s%d, 11" % (sA, sA))
    a.e("s_add_u32 s%d, s%d, 0x%x" % (sA, sA, WS_HFLAG))
    a.e("v_add_u32 %s, s%d, v2" % (v(vFLA), sA))
    a.e("s_lshl_b32 s%d, s%d, 1" % (sA, sT))
    a.e("s_and_b32 s%d, s%d, 1" % (sB, sW))
    a.e("s_add_u32 s%d, s%d, s%d" % (sA, sA, sB))
    a.e("s_lshl_b32 s%d, s%d, 15" % (sB, sA))
    a.e("s_lshr_b32 s%d, s%d, 1" % (sC, sW))
    a.e("s_lshl_b32 s%d, s%d, 13" % (sC, sC))
    a.e("s_add_u32 s%d, s%d, s%d" % (sB, sB, sC))
    a.e("s_add_u32 s%d, s%d, 0x%x" % (sOLD, sB, WS_OF))
    if Opt.pvz:
        a.e("v_and_b32 v2, 27, v0")
        a.e("v_cmp_eq_u32 vcc, 16, v2")
        a.e("v_mov_b32 v3, 0x3f803f80")
        a.e("s_nop 0")
        a.e("v_cndmask_b32 v2, 0, v3, vcc")
    else:
        a.e("v_mov_b32 v2, 0x3f803f80")
    for i in range(16): a.e("v_mov_b32 %s, v2" % v(vV + i))
    for i in range(4): a.e("v_mov_b32 %s, v2" % v(vV1L + i))
    for i in range(4): a.e("v_mov_b32 %s, 0" % v(vE + i))
    a.e("v_lshrrev_b32 v2, 4, v0")
    a.e("v_lshl_add_u32 %s, v2, 8, %s" % (v(vHA), v(vL16)))
    for i in range(16): a.e("v_mov_b32 %s, 0" % v(vO + i))
    for i in range(32): a.e("v_mov_b32 %s, 0" % v(vD + i))
    c0 = -2.0 * math.sqrt(2.0 / math.pi) * math.log2(math.e)
    a.e("v_mov_b32 %s, 0x%x" % (v(vC0), f2u(c0)))
    a.e("v_mov_b32 %s, 0x%x" % (v(vC0 + 1), f2u(c0 * 0.044715)))

def kv_first_loads(a):
    it = []
    for u in range(2):
        it.append(("s_add_u32 m0, s%d, 0x%x\ns_add_u32 s%d, s%d, 0x%x\nbuffer_load_dwordx4 %s, %s, s%d offen sc1 lds"
                   % (sWK, L_KV + u * 8192, sA, sWK, u * 8192, v(vL16), srd(SKV), sA), "kv%d" % u))
    it.append(("s_mov_b32 s%d, 0x%x\nbuffer_load_dwordx4 %s, %s, %s, s%d offen sc1"
               % (sA, 63 * 2048, v(vK0, 4), v(vL16), srd(SKV), sA), "k0"))
    it.append(("s_mov_b64 exec, %s\nbuffer_load_dwordx4 %s, %s, %s, 0 offen offset:%d sc1\ns_mov_b64 exec, -1"
               % (sp(sVM), v(vV1L, 4), v(vL16), srd(SKV), 1024 + 256), "k0"))
    it.append(("s_lshl_b32 s%d, s%d, 2\ns_add_u32 s%d, s%d, s%d\ns_lshl_b32 s%d, s%d, 7\ns_add_u32 s%d, s%d, 0x%x\n"
               "buffer_load_dword %s, %s, %s, s%d offen sc1"
               % (sA, sG, sA, sA, sLO, sA, sA, sA, sA, WS_G, v(vGP), v(vGA), srd(SWS), sA), "k0"))
    it.append(("s_lshl_b32 s%d, s%d, 1\ns_and_b32 s%d, s%d, 1\ns_add_u32 s%d, s%d, s%d\ns_lshl_b32 s%d, s%d, 7\ns_add_u32 s%d, s%d, 0x%x\n"
               "buffer_load_dword %s, %s, %s, s%d offen sc1"
               % (sA, sT, sB, sW, sA, sA, sB, sA, sA, sA, sA, WS_G, v(vGC), v(vGA), srd(SWS), sA), "k0"))
    return it

def spin_counter(a, name, first_loaded):
    a.e("s_cmp_lg_u32 s%d, 0" % sW)
    a.e("s_cbranch_scc1 L_%s_done" % name)
    a.e("s_mov_b32 s%d, 0x4000" % sB)
    if first_loaded: a.e("s_branch L_%s_chk" % name)
    a.lab("L_%s_re" % name)
    a.e("buffer_load_dword %s, off, %s, 0 sc1" % (v(vPOLL), srd(SDBG)))
    a.e("s_waitcnt vmcnt(0)")
    a.lab("L_%s_chk" % name)
    a.e("v_readfirstlane_b32 s%d, %s" % (sA, v(vPOLL)))
    a.e("s_cmp_ge_u32 s%d, 32" % sA)
    a.e("s_cbranch_scc1 L_%s_done" % name)
    a.e("s_sleep 4")
    a.e("s_sub_u32 s%d, s%d, 1" % (sB, sB))
    a.e("s_cmp_lg_u32 s%d, 0" % sB)
    a.e("s_cbranch_scc1 L_%s_re" % name)
    a.lab("L_%s_done" % name)

def phase1_F(a):
    srd_words(a, [SWG, SWU])
    a.e("s_cmp_ge_u32 s%d, 4" % sW)
    a.e("s_cbranch_scc1 L_setB")
    a.e("s_lshl_b32 s%d, s%d, 1" % (sA, sW))
    a.e("s_and_b32 s%d, s%d, 4" % (sA, sA))
    a.e("v_bfe_u32 v3, v0, 1, 3")
    a.e("v_xor_b32 v3, v3, v2")
    a.e("v_xor_b32 v3, s%d, v3" % sA)
    a.e("v_lshlrev_b32 v3, 5, v3")
    a.e("v_and_b32 v4, 1, v0")
    a.e("v_lshl_add_u32 v3, v4, 4, v3")
    a.e("v_mul_u32_u24 v5, 3584, v2")
    a.e("s_mul_i32 s%d, s%d, %d" % (sA, sW, 4 * 3584))
    a.e("s_lshl_b32 s%d, s%d, 8" % (sB, sM))
    a.e("s_add_u32 s%d, s%d, s%d" % (sA, sA, sB))
    a.e("v_add3_u32 %s, v3, v5, s%d" % (v(vDG), sA))
    a.e("v_lshrrev_b32 v3, 2, v0")
    a.e("v_lshlrev_b32 v3, 10, v3")
    a.e("v_and_b32 v4, 2, v2")
    a.e("v_xor_b32 v4, v4, v0")
    a.e("v_and_b32 v4, 3, v4")
    a.e("v_lshl_add_u32 v3, v4, 4, v3")
    a.e("s_lshl_b32 s%d, s%d, 14" % (sA, sW))
    a.e("s_lshl_b32 s%d, s%d, 6" % (sB, sHP))
    a.e("s_add_u32 s%d, s%d, s%d" % (sA, sA, sB))
    a.e("v_add_u32 %s, s%d, v3" % (v(vDQ), sA))
    SCHED = {1: ["01423567", "10253467", "23016457", "32104756"],
             2: ["02134657", "01324576", "10243567", "10235467"],
             3: ["01324657", "01243576", "12035467", "20134567"]}
    tabs = SCHED[Opt.sched] if Opt.sched else ["".join(str(c ^ (p & Opt.xmask)) for c in range(8)) for p in range(4)]
    for t_ in tabs: assert sorted(t_) == list("01234567")
    num = [int(t_[::-1], 16) for t_ in tabs]
    a.e("s_add_u32 s%d, s%d, s%d" % (sA, sG, sHP))
    a.e("s_mov_b32 s%d, 0x%x" % (sXP, num[0]))
    a.e("s_mov_b32 s%d, 0x%x" % (sB, num[2]))
    a.e("s_bitcmp1_b32 s%d, 0" % sA)
    a.e("s_cselect_b32 s%d, 0x%x, s%d" % (sXP, num[1], sXP))
    a.e("s_cselect_b32 s%d, 0x%x, s%d" % (sB, num[3], sB))
    a.e("s_bitcmp1_b32 s%d, 1" % sA)
    a.e("s_cselect_b32 s%d, s%d, s%d" % (sXP, sB, sXP))
    a.e("s_and_b32 s%d, s%d, 7" % (sCH, sXP))

    def dmas(c):
        s = c % 3
        t = "c%d" % c
        it = []
        def one(m0src, m0c, vo, rs, so, pre="s_nop 0", post=""):
            nt = " nt" if Opt.ntx & (1 if rs == SX else 2) else ""
            return ("s_add_u32 m0, s%d, 0x%x\n%s\nbuffer_load_dwordx4 %s, %s, s%d offen%s lds\n%s"
                    % (m0src, m0c, pre, v(vo), srd(rs), so, nt, post), t)
        for j in range(4):
            it.append(one(sWK, L_X + s * 16384 + j * 4096, vDX, SX, sOFFQ,
                          pre=("s_add_u32 s%d, s%d, 0x8000" % (sOFFQ, sOFFQ)) if j else "s_lshl_b32 s%d, s%d, 7" % (sOFFQ, sCH)))
        for j in range(4):
            it.append(one(sWK, L_G + s * 16384 + j * 4096, vDG, SWG, sOFFW,
                          pre=("s_add_u32 s%d, s%d, %d" % (sOFFW, sOFFW, 16 * 3584)) if j else "s_mul_i32 s%d, s%d, %d" % (sOFFW, sCH, 64 * 3584)))
            it.append(one(sWK, L_U + s * 16384 + j * 4096, vDG, SWU, sOFFW,
                          pre="s_lshl_b32 s%d, s%d, 16" % (sOFFQ, sCH) if j == 0 else "s_nop 0"))
        it.append(one(sWK, L_WQ + s * 4096, vDQ, SWQ, sOFFQ, pre="s_bfe_u32 s%d, s%d, 0x%x" % (sCH, sXP, 0x30000 + 4 * ((c + 1) % 8))))
        return it

    def rdsetup(a):
        setup_rd(a)
        a.e("v_lshl_add_u32 %s, v3, 3, v2" % v(vWA))
        a.e("v_lshlrev_b32 %s, 8, %s" % (v(vWA), v(vWA)))
        a.e("v_lshl_add_u32 %s, v4, 3, %s" % (v(vWA), v(vWA)))
        a.e("v_and_b32 v5, 1, v3")
        a.e("v_lshl_add_u32 v2, v5, 2, v2")
        a.e("s_lshl_b32 s%d, s%d, 2" % (sA, sHI))
        a.e("s_and_b32 s%d, s%d, 1" % (sB, sLO))
        a.e("s_lshl_b32 s%d, s%d, 1" % (sB, sB))
        a.e("s_add_u32 s%d, s%d, s%d" % (sA, sA, sB))
        a.e("v_xor_b32 v2, s%d, v2" % sA)
        a.e("v_lshl_add_u32 %s, v2, 5, %s" % (v(vWA), v(vWA)))
        a.e("v_xor_b32 %s, 32, %s" % (v(vWA + 1), v(vWA)))
        a.e("v_add_u32 %s, 0x%x, %s" % (v(vWA + 2), L_U - L_G, v(vWA)))
        a.e("v_add_u32 %s, 0x%x, %s" % (v(vWA + 3), L_U - L_G, v(vWA + 1)))
        a.e("s_lshl_b32 s%d, s%d, 12" % (sA, sLO))
        a.e("s_add_u32 s%d, s%d, 0x%x" % (sA, sA, L_X))
        a.e("v_add_u32 %s, s%d, %s" % (v(vXA), sA, v(vXA)))
        a.e("v_xor_b32 %s, 0x1000, %s" % (v(vXA + 1), v(vXA)))
        a.e("v_xor_b32 %s, 64, %s" % (v(vXA + 2), v(vXA)))
        a.e("v_xor_b32 %s, 64, %s" % (v(vXA + 3), v(vXA + 1)))
        a.e("v_add_u32 %s, 0x%x, %s" % (v(vQA), L_WQ, v(vQA)))

    a.e("s_waitcnt lgkmcnt(0)")
    a.stamp(2)
    put(a, dmas(0))
    pend = dmas(1) + dmas(2)
    st = collect(rdsetup) + collect(setup_oclr) + collect(setup_attn)
    gap = len(st) // (Opt.npre + 1) + 1
    rest = list(st)
    for i in range(Opt.npre):
        put(a, rest[:gap]); rest = rest[gap:]
        put(a, pend[:1]); pend = pend[1:]
    put(a, rest)
    a.e("s_mov_b64 vcc, -1")
    a.e("s_branch L_k0")
    a.lab("L_setB")
    a.e("s_waitcnt lgkmcnt(0)")
    a.stamp(2)
    for x, _ in st: a.e(x)
    a.e("v_mov_b32 %s, 0" % v(vDG))
    a.e("v_mov_b32 %s, 0" % v(vDQ))
    a.e("s_mov_b64 vcc, 0")
    a.lab("L_k0")
    ool = []
    def dmablock(name, items):
        a.e("s_cbranch_vccnz L_%s" % name)
        a.lab("L_%s_r" % name)
        ool.append("L_%s:" % name)
        for x, t in items:
            ool.extend("    " + y.strip() for y in x.split("\n") if y.strip())
            a.vm.append(t)
        ool.append("    s_branch L_%s_r" % name)
    a.ool = ool

    def fr(k):
        b = vF1 + 36 * (k % 2)
        return dict(x=b, w=b + 16, q=b + 32)
    def reads(k):
        c, s = divmod(k, 2); f = fr(k); sl = c % 3
        wo = sl * 16384 + s * 8192
        W = lambda i: [rdtr(f['w'] + 4 * i, vWA + i, wo), rdtr(f['w'] + 4 * i + 2, vWA + i, wo + 1024)]
        X = [rd128(f['x'] + 4 * b, vXA + 2 * s + (b >> 1), sl * 16384 + (b & 1) * 2048) for b in range(4)]
        return W(0) + X + W(2) + W(1) + W(3) + [rdtr(f['q'], vQA, sl * 4096 + s * 2048), rdtr(f['q'] + 2, vQA, sl * 4096 + s * 2048 + 256)]
    a.waitvm("c0")
    a.e("s_barrier")
    a.stamp(3)
    if Opt.kdiag or Opt.probe >= 18:
        kstamp(a, 2)
        a.e("s_waitcnt lgkmcnt(0)")
    for r in reads(0): a.e(r)
    dmablock("d2", pend)
    for k in range(16):
        c, s = divmod(k, 2); f = fr(k)
        z = lambda x: None if k == 0 else x
        mf = []
        for n_, i in enumerate((0, 2, 1, 3)):
            for b in (range(4) if n_ % 2 == 0 else range(3, -1, -1)):
                d = vACC + 16 * b + 4 * i
                mf.append(mfma16(d, f['w'] + 4 * i, f['x'] + 4 * b, z(d)))
        for b in range(2): mf.append(mfma16(vAQ + 4 * b, f['q'], f['x'] + 4 * b, z(vAQ + 4 * b)))
        rds = reads(k + 1) if k < 15 else []
        if s == 0:
            a.e("s_waitcnt lgkmcnt(6)")
            for i, m in enumerate(mf):
                if i == 8: a.e("s_waitcnt lgkmcnt(8)")
                a.e(m)
                if i < len(rds): a.e(rds[i])
            continue
        a.e("s_waitcnt lgkmcnt(8)")
        for m in mf[:4]: a.e(m)
        if c == 7:
            a.e("s_waitcnt lgkmcnt(0)")
        elif c == 6 and Opt.stagger:
            a.e("s_waitcnt lgkmcnt(0)")
            a.e("s_cbranch_vccz L_st7")
            a.e("s_waitcnt vmcnt(0)")
            spin_counter(a, "kvf", True)
            a.e("s_barrier")
            a.e("s_setprio 1")
            for x, _ in kv_first_loads(a): a.e(x)
            a.lab("L_st7")
        elif c == 6:
            a.wait0(lgkm=True)
            spin_counter(a, "kvf", True)
            a.e("s_barrier")
            put(a, kv_first_loads(a))
        else:
            a.waitvm("c%d" % (c + 1), lgkm=True)
            a.e("s_barrier")
        if c < 7 and ((Opt.kdiag and Opt.diag) or Opt.probe == 21 + c):
            kstamp(a, 3 + c)
            a.e("s_waitcnt lgkmcnt(0)")
        for i, m in enumerate(mf[4:]):
            a.e(m)
            if i == 0 and c + 3 < 8:
                items = dmas(c + 3)
                if c == 4:
                    items.append(("s_cmp_lg_u32 s%d, 0\ns_cbranch_scc1 L_d7_r\nbuffer_load_dword %s, off, %s, 0 sc1"
                                  % (sW, v(vPOLL), srd(SDBG)), None))
                dmablock("d%d" % (c + 3), items)
                if c == 4: a.vm.pop()
            if i < len(rds): a.e(rds[i])
        if k == 11 and Opt.stagger:
            a.e("s_cbranch_vccnz L_st6")
            a.vm = []
            a.e("s_barrier")
            put(a, kv_first_loads(a))
            a.lab("L_st6")
    a.stamp(4)

def phase1_L(a):
    a.lab("L_light")
    a.vm = []
    srd_words(a, [SWKV, SWV, SGATE])
    a.e("s_sub_u32 s%d, s%d, 14" % (sCNT, sM))
    a.e("s_lshl_b32 s%d, s%d, 16" % (sOLD, sCNT))
    a.e("s_lshl_b32 s%d, s%d, 13" % (sHST, sCNT))
    a.e("s_add_u32 s%d, s%d, s%d" % (sWH, sHST, sWK))
    a.e("s_xor_b32 s%d, s%d, 0x2000" % (sHST, sHST))
    a.e("s_add_u32 s%d, s%d, 0x2000" % (sA, sWK))
    a.e("s_waitcnt lgkmcnt(0)")
    a.stamp(2)
    a.e("s_mov_b32 s%d, s%d" % (SWV, sTMPP))
    a.e("s_mov_b32 s%d, s%d" % (SWV + 1, sTMPP + 1))
    def xdma(c, base, so):
        a.vmop("s_add_u32 m0, s%d, 0x%x\ns_nop 0\nbuffer_load_dwordx4 %s, %s, s%d offen offset:%d lds"
               % (base, LL_X + c * 16384 - c * 128, v(vDX), srd(SX), so, c * 128), "c%d" % c)
    def wdma(u):
        for t, rs in enumerate((SWKV, SWV)):
            a.vmop("s_add_u32 m0, s%d, 0x%x\ns_nop 0\nbuffer_load_dwordx4 %s, %s, s%d offen lds"
                   % (sWK, LL_W + t * 16384 + u * 8192, v(vL16), srd(rs), sA if u else sWK), "w")
    wdma(0)
    a.vmop("s_mov_b32 m0, s%d\ns_nop 0\nbuffer_load_dwordx4 %s, %s, 0 offen lds" % (sHST, v(vL16), srd(SGATE)), "w")
    for c in range(8):
        if c == 4: wdma(1)
        xdma(c, sWH, sOLD)
        if c in (1, 3, 5): a.e("s_barrier")
    setup_rd(a)
    a.e("v_lshrrev_b32 v3, 5, v0")
    a.e("v_bfrev_b32 v5, v4")
    a.e("v_lshrrev_b32 v5, 30, v5")
    a.e("s_cmp_ge_u32 s%d, 2" % sLO)
    a.e("s_cselect_b64 vcc, -1, 0")
    a.e("v_cndmask_b32 v4, v5, v4, vcc")
    a.e("v_lshl_add_u32 %s, v3, 3, v2" % v(vWA))
    a.e("v_lshlrev_b32 %s, 5, %s" % (v(vWA), v(vWA)))
    a.e("v_lshl_add_u32 %s, v4, 3, %s" % (v(vWA), v(vWA)))
    a.e("s_lshr_b32 s%d, s%d, 1" % (sA, sLO))
    a.e("s_lshl_b32 s%d, s%d, 14" % (sA, sA))
    a.e("s_add_u32 s%d, s%d, 0x%x" % (sA, sA, LL_W))
    a.e("v_add_u32 %s, s%d, %s" % (v(vWA), sA, v(vWA)))
    a.e("v_lshl_add_u32 %s, v3, 4, s%d" % (v(vWA + 1), sHST))
    a.e("s_and_b32 s%d, s%d, 1" % (sA, sLO))
    a.e("s_lshl_b32 s%d, s%d, 1" % (sB, sCNT))
    a.e("s_add_u32 s%d, s%d, s%d" % (sCNT, sA, sB))
    a.e("s_lshl_b32 s%d, s%d, 12" % (sA, sCNT))
    a.e("v_and_b32 v2, 31, v0")
    a.e("v_bfe_u32 v4, v0, 1, 3")
    a.e("v_xor_b32 v4, v4, v3")
    a.e("v_lshlrev_b32 v4, 4, v4")
    a.e("v_lshl_add_u32 v4, v2, 7, v4")
    a.e("v_add_u32 %s, s%d, v4" % (v(vLX), sA))
    for s in range(1, 4): a.e("v_xor_b32 %s, %d, %s" % (v(vLX + s), 32 * s, v(vLX)))
    for s in range(4): a.e("v_add_u32 %s, 0x10000, %s" % (v(vLX + 4 + s), v(vLX + s)))
    setup_oclr(a)
    vm0 = list(a.vm)
    a.e("s_cmp_lg_u32 s%d, 0" % sHI)
    a.e("s_cbranch_scc1 L_lB")
    a.e("s_not_b64 %s, %s" % (sp(sTMPP), sp(sVM)))
    a.e("s_cmp_ge_u32 s%d, 2" % sLO)
    a.e("s_cbranch_scc1 L_lV")
    def chain(kind):
        a.vm = list(vm0)
        def fr(k):
            b = vFR + 8 * (k % 4)
            return b, b + 4
        def reads(k):
            c, s = divmod(k, 4); x, w = fr(k)
            r = [rd128(x, vLX + s + 4 * (c >> 2), (c & 3) * 16384), rdtr(w, vWA, k * 512), rdtr(w + 2, vWA, k * 512 + 128)]
            if kind == "K":
                r += ["s_mov_b64 exec, %s" % sp(sTMPP), rd128(w, vWA + 1, k * 32), "s_mov_b64 exec, -1"]
            return r
        for q in range(4):
            a.waitvm("c%d" % (2 * q + 1))
            a.e("s_barrier")
            nr = 4 if kind == "K" else 3
            for k in range(8 * q, 8 * q + 2):
                for r in reads(k): a.e(r)
            for k in range(8 * q, 8 * q + 8):
                if k + 2 < 8 * q + 8:
                    for r in reads(k + 2): a.e(r)
                left = min(2, 8 * q + 7 - k)
                a.e("s_waitcnt lgkmcnt(%d)" % (left * nr))
                x, w = fr(k)
                cc = None if k == 0 else vACC
                a.e(mfma(vACC, w, x, cc) if kind == "K" else mfma(vACC, x, w, cc))
        a.e("s_lshl_b32 s%d, s%d, 2" % (sA, sG))
        a.e("s_add_u32 s%d, s%d, s%d" % (sA, sA, sCNT))
        a.e("s_nop 12")
        if kind == "K":
            a.e("s_mov_b32 s%d, 0x%x" % (sC, f2u(0.25 * math.log2(math.e))))
            for i in range(8): a.e("v_mul_f32 %s, s%d, %s" % (v(vACC + i), sC, v(vACC + i)))
            a.e("v_mul_f32 %s, 0x%x, %s" % (v(vACC + 8), f2u(-math.log2(math.e)), v(vACC + 8)))
            a.e("v_exp_f32 %s, %s" % (v(vACC + 8), v(vACC + 8)))
            for i in range(4): a.e("v_cvt_pk_bf16_f32 %s, %s, %s" % (v(vFR + i), v(vACC + 2 * i), v(vACC + 2 * i + 1)))
            a.e("v_add_f32 %s, 1.0, %s" % (v(vACC + 8), v(vACC + 8)))
            a.e("v_rcp_f32 %s, %s" % (v(vACC + 8), v(vACC + 8)))
            a.e("s_add_u32 s%d, s%d, 63" % (sB, sA))
            a.e("s_and_b32 s%d, s%d, 63" % (sB, sB))
            a.e("s_lshl_b32 s%d, s%d, 11" % (sB, sB))
            a.e("buffer_store_dwordx4 %s, %s, %s, s%d offen sc1" % (v(vFR, 4), v(vL16), srd(SKV), sB))
            a.e("s_lshl_b32 s%d, s%d, 7" % (sB, sA))
            a.e("s_add_u32 s%d, s%d, 0x%x" % (sB, sB, WS_G))
            a.e("s_mov_b32 exec_hi, 0")
            a.e("buffer_store_dword %s, %s, %s, s%d offen sc1" % (v(vACC + 8), v(vGA), srd(SWS), sB))
            a.e("s_mov_b64 exec, -1")
        else:
            for i in range(8): a.e("v_cvt_pk_bf16_f32 %s, %s, %s" % (v(vFR + i), v(vACC + 2 * i), v(vACC + 2 * i + 1)))
            a.e("v_bfe_u32 v2, v0, 4, 1")
            a.e("v_add_u32 v2, s%d, v2" % sA)
            a.e("v_and_b32 v2, 63, v2")
            a.e("v_lshl_add_u32 v2, v2, 11, %s" % v(vL16))
            for i in range(4): a.e("v_cndmask_b32 %s, %s, %s, %s" % (v(vFR + i), v(vFR + 4 + i), v(vFR + i), sp(sVM)))
            a.e("buffer_store_dwordx4 %s, v2, %s, 0 offen offset:1024 sc1" % (v(vFR, 4), srd(SKV)))
        a.e("s_branch L_lJ")
    chain("K")
    a.lab("L_lV")
    chain("V")
    a.lab("L_lB")
    a.vm = list(vm0)
    a.e("s_cmp_lg_u32 s%d, 14" % sM)
    a.e("s_cbranch_scc1 L_nozf")
    a.e("s_cmp_lg_u32 s%d, 4" % sW)
    a.e("s_cbranch_scc1 L_nozf")
    a.e("v_lshlrev_b32 v2, 7, v0")
    a.e("s_lshl_b32 s%d, s%d, 11" % (sA, sG))
    a.e("s_add_u32 s%d, s%d, 0x%x" % (sA, sA, WS_HFLAG))
    a.e("s_mov_b64 exec, 0xffff")
    a.e("buffer_store_dword %s, v2, %s, s%d offen sc1" % (v(vZERO), srd(SWS), sA))
    a.e("s_mov_b64 exec, -1")
    a.lab("L_nozf")
    for q in range(4):
        a.waitvm("c%d" % (2 * q + 1))
        a.e("s_barrier")
    a.lab("L_lJ")
    a.e("v_lshrrev_b32 v3, 2, v0")
    a.e("v_lshlrev_b32 v3, 10, v3")
    a.e("v_lshrrev_b32 v4, 5, v0")
    a.e("v_lshlrev_b32 v4, 1, v4")
    a.e("v_xor_b32 v4, v4, v0")
    a.e("v_and_b32 v4, 3, v4")
    a.e("v_lshl_add_u32 v3, v4, 4, v3")
    a.e("s_lshl_b32 s%d, s%d, 14" % (sA, sW))
    a.e("s_lshl_b32 s%d, s%d, 6" % (sB, sHP))
    a.e("s_add_u32 s%d, s%d, s%d" % (sA, sA, sB))
    a.e("v_add_u32 %s, s%d, v3" % (v(vDQ), sA))
    a.e("s_xor_b32 s%d, s%d, 0x2000" % (sWH, sWH))
    a.e("s_xor_b32 s%d, s%d, 0x10000" % (sOLD, sOLD))
    a.wait0(lgkm=True)
    a.e("s_barrier")
    a.e("s_cmp_lg_u32 s%d, 0" % sW)
    a.e("s_cbranch_scc1 L_noat")
    a.e("s_mov_b64 exec, 1")
    a.e("buffer_atomic_add %s, off, %s, 0 sc1" % (v(vONE), srd(SDBG)))
    a.e("s_mov_b64 exec, -1")
    a.lab("L_noat")
    a.stamp(3)
    for c in range(8): xdma(c, sWH, sOLD)
    for p in range(4):
        a.e("s_add_u32 m0, s%d, 0x%x" % (sWK, LL_WQ + p * 8192))
        a.e("s_mov_b32 s%d, 0x%x" % (sA, p * 128 * 1024))
        a.e("buffer_load_dwordx4 %s, %s, s%d offen lds" % (v(vDQ), srd(SWQ), sA))
    setup_attn(a)
    if Opt.touch & 2:
        a.e("s_lshl_b32 s%d, s%d, 1" % (sA, sG))
        a.e("s_add_u32 s%d, s%d, s%d" % (sA, sA, sM))
        a.e("s_sub_u32 s%d, s%d, 14" % (sA, sA))
        a.e("s_lshl_b32 s%d, s%d, 3" % (sA, sA))
        a.e("s_add_u32 s%d, s%d, s%d" % (sA, sA, sW))
        a.e("v_lshlrev_b32 v2, 15, v0")
        a.e("s_lshl_b32 s%d, s%d, 7" % (sA, sA))
        a.e("buffer_load_dword %s, v2, %s, s%d offen" % (v(vPOLL), srd(SWO), sA))
        a.e("buffer_load_dword %s, v2, %s, s%d offen" % (v(vPOLL), srd(SWD), sA))
    a.e("s_lshl_b32 s%d, s%d, 12" % (sA, sLO))
    a.e("v_add_u32 %s, s%d, %s" % (v(vXA), sA, v(vXA)))
    a.e("v_xor_b32 %s, 64, %s" % (v(vXA + 1), v(vXA)))
    a.e("v_add_u32 %s, 0x10000, %s" % (v(vXA + 2), v(vXA)))
    a.e("v_add_u32 %s, 0x10000, %s" % (v(vXA + 3), v(vXA + 1)))
    a.e("v_add_u32 %s, 0x%x, %s" % (v(vQA), LL_WQ, v(vQA)))
    a.e("s_waitcnt vmcnt(%d)" % (2 if Opt.touch & 2 else 0))
    a.e("s_barrier")
    def fr(k): return vFR + 12 * (k % 3)
    def reads(k):
        c, s = divmod(k, 2); f = fr(k)
        return [rd128(f + 4 * b, vXA + s + 2 * (c >> 2), (c & 3) * 16384 + b * 2048) for b in range(2)] + \
               [rdtr(f + 8, vQA, k * 2048), rdtr(f + 10, vQA, k * 2048 + 256)]
    for k in range(2):
        for r in reads(k): a.e(r)
    for k in range(16):
        a.e("s_waitcnt lgkmcnt(%d)" % (4 * min(1, 15 - k)))
        for b in range(2): a.e(mfma16(vAQ + 4 * b, fr(k) + 8, fr(k) + 4 * b, None if k == 0 else vAQ + 4 * b))
        if k + 2 < 16:
            for r in reads(k + 2): a.e(r)
    spin_counter(a, "kvl", False)
    a.e("s_barrier")
    for s, t in kv_first_loads(a): a.e(s)
    a.wait0()
    a.stamp(4)
    a.e("s_branch L_join")

def gelu_tile(a, ti, scalar=False):
    acc = vACC + 16 * ti
    t = vFR
    o = vFR + 8 + 4 * ti
    pk = lambda r: v(r, 2)
    if scalar:
        for i in range(8): a.e("v_mul_f32 %s, %s, %s" % (v(t + i), v(acc + i), v(acc + i)))
        for i in range(8): a.e("v_fma_f32 %s, %s, %s, %s" % (v(t + i), v(t + i), v(vC0 + 1), v(vC0)))
        for i in range(8): a.e("v_mul_f32 %s, %s, %s" % (v(t + i), v(t + i), v(acc + i)))
        for i in range(8): a.e("v_exp_f32 %s, %s" % (v(t + i), v(t + i)))
        for i in range(8): a.e("v_add_f32 %s, 1.0, %s" % (v(t + i), v(t + i)))
        for i in range(8): a.e("v_rcp_f32 %s, %s" % (v(t + i), v(t + i)))
        for i in range(8): a.e("v_mul_f32 %s, %s, %s" % (v(acc + i), v(acc + i), v(acc + 8 + i)))
        for i in range(8): a.e("v_mul_f32 %s, %s, %s" % (v(acc + i), v(acc + i), v(t + i)))
    R4, R8 = (range(0), range(0)) if scalar else (range(4), range(8))
    for i in R4: a.e("v_pk_mul_f32 %s, %s, %s" % (pk(t + 2 * i), pk(acc + 2 * i), pk(acc + 2 * i)))
    for i in R4: a.e("v_pk_fma_f32 %s, %s, %s, %s op_sel:[0,1,0] op_sel_hi:[1,1,0]" % (pk(t + 2 * i), pk(t + 2 * i), pk(vC0), pk(vC0)))
    for i in R4: a.e("v_pk_mul_f32 %s, %s, %s" % (pk(t + 2 * i), pk(t + 2 * i), pk(acc + 2 * i)))
    for i in R8: a.e("v_exp_f32 %s, %s" % (v(t + i), v(t + i)))
    for i in R4: a.e("v_pk_add_f32 %s, %s, 1.0 op_sel_hi:[1,0]" % (pk(t + 2 * i), pk(t + 2 * i)))
    for i in R8: a.e("v_rcp_f32 %s, %s" % (v(t + i), v(t + i)))
    for i in R4: a.e("v_pk_mul_f32 %s, %s, %s" % (pk(acc + 2 * i), pk(acc + 2 * i), pk(acc + 8 + 2 * i)))
    for i in R4: a.e("v_pk_mul_f32 %s, %s, %s" % (pk(acc + 2 * i), pk(acc + 2 * i), pk(t + 2 * i)))
    for i in range(4): a.e("v_cvt_pk_bf16_f32 %s, %s, %s" % (v(o + i), v(acc + 2 * i), v(acc + 2 * i + 1)))
    a.vmop("buffer_store_dwordx4 %s, %s, %s, s%d offen offset:%d sc1" % (v(o, 4), v(vHA), srd(SWS), sD if ti >> 1 else sHST, (ti & 1) * 256), "hst")

def gelu_head(a):
    a.e("s_bitcmp1_b32 s%d, 0" % sLO)
    a.e("s_cselect_b32 s%d, 0x%x, 0x%x" % (sD, (-112 * 1024) & 0xffffffff, 0))
    a.e("s_cselect_b32 s%d, 0, 0x%x" % (sC, 112 * 1024))
    a.e("s_add_u32 s%d, s%d, s%d" % (sD, sD, sC))
    a.e("s_add_u32 s%d, s%d, s%d" % (sD, sD, sHST))

def gelu_sub(a):
    if Opt.stagger and Opt.gsc:
        a.lab("L_geluA")
        gelu_head(a)
        for ti in range(Opt.gsc): gelu_tile(a, ti, True)
        a.e("s_branch L_gelu%d" % Opt.gsc)
    else:
        a.lab("L_geluA")
    a.lab("L_geluB")
    gelu_head(a)
    for ti in range(4):
        gelu_tile(a, ti)
        a.lab("L_gelu%d" % (ti + 1))
    a.e("s_setpc_b64 %s" % sp(sRET))

def Yseg(hset, toggle=False):
    out = []
    for t in range(2):
        S, Sn = vS + 16 * t, vS + 16 * (1 - t)
        K, V0, V1 = vKF + 4 * t, vV + 8 * t, vV + 8 * t + 4
        for j in range(8):
            out.append("v_exp_f32 %s, %s" % (v(vE + 2 * (j % 2)), v(S + 2 * j)))
            out.append("v_exp_f32 %s, %s" % (v(vE + 2 * (j % 2) + 1), v(S + 2 * j + 1)))
            jj = (j - 1) % 8
            out.append("v_cvt_pk_bf16_f32 %s, %s, %s" % (v(vP + jj), v(vE + 2 * (jj % 2)), v(vE + 2 * (jj % 2) + 1)))
            if j == 1: out.append(mfma(vO, V1, vP + 4, vO))
            if j == 3: out.append(mfma(Sn, K, vQ, None))
            if hset is None:
                if j == 7: out.append(mfma(vO, V0, vP, vO))
            else:
                if j == 5: out.append(mfma(vO, V0, vP, vO))
                if j == 6 and t == 1 and toggle:
                    out.append("v_xor_b32 %s, 0x4000, %s" % (v(vKVA), v(vKVA)))
                    out.append("v_xor_b32 %s, 0x8000, %s" % (v(vWDA), v(vWDA)))
                if j == 7: out.append(mfma(vD + 16 * t, vWF + 4 * t, vH + 4 * hset, vD + 16 * t))
    return out

def kv_reads(off):
    r = [rd128(vKF, vKVA, off), rd128(vKF + 4, vKVA, off + 2048), "s_mov_b64 exec, %s" % sp(sVM)]
    for t in range(2):
        r += [rd128(vV + 8 * t, vKVA, off + 2048 * t + 1024), rd128(vV + 8 * t + 4, vKVA, off + 2048 * t + 1280)]
    r.append("s_mov_b64 exec, -1")
    return r
def wd_reads(dst, addr, off):
    r = []
    for c in range(2):
        r += [rdtr(dst + 4 * c, addr, off + 512 * c), rdtr(dst + 4 * c + 2, addr, off + 512 * c + 1024)]
    return r

def wdrow(sg): return (32 * (sg >> 1) + 8 * (sg & 1)) * 1024

def attention(a, role):
    A = role == "A"
    def kvdma(u):
        a.vmop("s_add_u32 m0, s%d, 0x%x\ns_add_u32 s%d, s%d, 0x%x\nbuffer_load_dwordx4 %s, %s, s%d offen sc1 lds"
               % (sWK, L_KV + (u % 4) * 8192, sA, sWK, u * 8192, v(vL16), srd(SKV), sA), "kv%d" % u)
    def wddma(sg):
        a.vmop("s_add_u32 m0, s%d, 0x%x\ns_add_u32 s%d, s%d, 0x%x\nbuffer_load_dwordx4 %s, %s, s%d offen lds"
               % (sWK, L_WD + ((sg + 3) % 8) * 8192, sA, sWDOFF, wdrow(sg), v(vWDV), srd(SWD), sA), "wd%d" % sg)
    def wodma(j):
        a.vmop("s_add_u32 m0, s%d, 0x%x\ns_add_u32 s%d, s%d, 0x%x\nbuffer_load_dwordx4 %s, %s, s%d offen lds"
               % (sWK, L_WO + j * 8192, sA, sB, j * 16384, v(vWDV), srd(SWO), sA), "wo")
    def hload(sg, dst):
        a.vmop("s_add_u32 s%d, s%d, 0x%x\nbuffer_load_dwordx4 %s, %s, %s, s%d offen sc1"
               % (sA, sHOFF, sg * 1024, v(dst, 4), v(vL16), srd(SWS), sA), "h%d" % sg)
    for n in range(11):
        if not A and n == 0: a.e("s_barrier")
        tags = []
        if A and n % 2 == 1: tags.append("kv%d" % ((n + 1) // 2))
        if not A and n % 2 == 0: tags.append("kv%d" % ((n + 2) // 2))
        if n == 2: tags.append("hst")
        if n == 10: tags.append("wd0")
        if n == 8 and A:
            a.e("s_cmp_lg_u32 s%d, 0" % sW)
            a.e("s_cbranch_scc1 L_hf_done")
            a.e("s_mov_b32 s%d, 0x4000" % sB)
            a.e("s_waitcnt vmcnt(2)")
            a.lab("L_hf_chk")
            a.e("v_cmp_ne_u32 vcc, 1, %s" % v(vPOLL))
            a.e("s_cbranch_vccz L_hf_done")
            a.e("s_sleep 2")
            a.e("buffer_load_dword %s, %s, %s, 0 offen sc1" % (v(vPOLL), v(vFLA), srd(SWS)))
            a.e("s_sub_u32 s%d, s%d, 1" % (sB, sB))
            a.e("s_cmp_lg_u32 s%d, 0" % sB)
            a.e("s_waitcnt vmcnt(0)")
            a.e("s_cbranch_scc1 L_hf_chk")
            a.lab("L_hf_done")
        a.waitvm(tags)
        if n == 3 and not A:
            a.e("s_cmp_ge_u32 s%d, 14" % sM)
            a.e("s_cbranch_scc1 L_nohf")
            a.e("s_cmp_lg_u32 s%d, 4" % sW)
            a.e("s_cbranch_scc1 L_nohf")
            a.e("s_lshl_b32 s%d, s%d, 4" % (sA, sG))
            a.e("s_add_u32 s%d, s%d, s%d" % (sA, sA, sM))
            a.e("s_lshl_b32 s%d, s%d, 7" % (sA, sA))
            a.e("s_add_u32 s%d, s%d, 0x%x" % (sA, sA, WS_HFLAG))
            a.e("s_mov_b64 exec, 1")
            a.e("buffer_store_dword %s, off, %s, s%d sc1" % (v(vONE), srd(SWS), sA))
            a.e("s_mov_b64 exec, -1")
            a.lab("L_nohf")
        for r in kv_reads((n % 8) * 4096): a.e(r)
        if n == 7 and A:
            a.e("s_cmp_lg_u32 s%d, 0" % sW)
            a.e("s_cbranch_scc1 L_hf_nol")
            a.e("buffer_load_dword %s, %s, %s, 0 offen sc1" % (v(vPOLL), v(vFLA), srd(SWS)))
            a.lab("L_hf_nol")
        if n == 0:
            kvdma(2); kvdma(3)
            a.e("s_lshr_b32 s%d, s%d, 1" % (sC, sW))
            a.e("s_mul_i32 s%d, s%d, %d" % (sWDOFF, sC, 448 * 1024))
            a.e("s_and_b32 s%d, s%d, 1" % (sB, sW))
            a.e("s_lshl_b32 s%d, s%d, 14" % (sA, sB))
            a.e("s_add_u32 s%d, s%d, s%d" % (sWDOFF, sWDOFF, sA))
            a.e("s_lshl_b32 s%d, s%d, 1" % (sA, sT))
            a.e("s_add_u32 s%d, s%d, s%d" % (sA, sA, sB))
            a.e("s_mul_i32 s%d, s%d, 112" % (sA, sA))
            a.e("s_mul_i32 s%d, s%d, 28" % (sB, sC))
            a.e("s_add_u32 s%d, s%d, s%d" % (sA, sA, sB))
            a.e("s_lshl_b32 s%d, s%d, 10" % (sA, sA))
            a.e("s_add_u32 s%d, s%d, 0x%x" % (sHOFF, sA, WS_HF))
        if (A and n % 2 == 1 and n >= 3): kvdma((n + 5) // 2)
        if (not A and n % 2 == 0 and n >= 2): kvdma((n + 6) // 2)
        if 1 <= n <= 3:
            a.e("s_lshr_b32 s%d, s%d, 1" % (sB, sW))
            a.e("s_lshl_b32 s%d, s%d, 17" % (sB, sB))
            a.e("s_and_b32 s%d, s%d, 1" % (sC, sW))
            a.e("s_lshl_b32 s%d, s%d, 13" % (sC, sC))
            a.e("s_add_u32 s%d, s%d, s%d" % (sB, sB, sC))
            for j in {1: (0, 1, 2), 2: (3, 4, 5), 3: (6, 7)}[n]: wodma(j)
        if n >= 4: wddma(n - 4)
        if n == 9:
            hload(0, vH + 12); hload(1, vH + 0); hload(24, vH + 16); hload(25, vH + 20)
        if n == 10:
            hload(26, vH + 24); hload(27, vH + 28); hload(2, vH + 4)
        a.e("s_waitcnt lgkmcnt(0)")
        a.e("s_call_b64 %s, L_Y%s" % (sp(sRET), role))
    a.e("s_add_u32 s%d, s%d, 0x%x" % (sHOFF, sHOFF, 3 * 1024))
    a.e("s_add_u32 s%d, s%d, 0x%x" % (sWDOFF, sWDOFF, wdrow(7)))
    a.e("s_mov_b32 s%d, 0x%x" % (sM0WD, ((7 + 3) % 8) * 8192))
    u0 = 8 if A else 9
    a.e("s_add_u32 s%d, s%d, 0x%x" % (sKVOFF, sWK, u0 * 8192))
    a.e("s_mov_b32 s%d, 6" % sCNT)
    a.waitvm(["h0", "wd1", "kv6"] if A else ["h0", "wd1"])
    a.e("s_branch L_loop%s_in" % role)
    a.l.append(".p2align 6")
    a.lab("L_loop%s" % role)
    for p in range(4):
        a.e("s_waitcnt vmcnt(5)")
        if p == 3: a.lab("L_loop%s_in" % role)
        for r in kv_reads(p * 4096): a.e(r)
        for r in wd_reads(vWF, vWDA, p * 8192): a.e(r)
        a.e("buffer_load_dwordx4 %s, %s, %s, s%d offen sc1" % (v(vH + 4 * ((p + 3) % 4), 4), v(vL16), srd(SWS), sHOFF))
        a.e("s_add_u32 m0, s%d, s%d" % (sWK, sM0WD))
        a.e("s_add_u32 s%d, s%d, 0x400" % (sHOFF, sHOFF))
        a.e("buffer_load_dwordx4 %s, %s, s%d offen lds" % (v(vWDV), srd(SWD), sWDOFF))
        a.e("s_add_u32 s%d, s%d, 0x%x" % (sWDOFF, sWDOFF, 0x6000 if p & 1 else 0x2000))
        a.e("s_add_u32 s%d, s%d, 0x2000" % (sM0WD, sM0WD))
        a.e("s_and_b32 s%d, s%d, 0xffff" % (sM0WD, sM0WD))
        if (p % 2 == 1) == A:
            a.e("s_and_b32 s%d, s%d, 0x7fff" % (sA, sKVOFF))
            a.e("s_add_u32 m0, s%d, 0x%x" % (sA, L_KV))
            a.e("s_nop 0")
            a.e("buffer_load_dwordx4 %s, %s, s%d offen sc1 lds" % (v(vL16), srd(SKV), sKVOFF))
            a.e("s_add_u32 s%d, s%d, 0x2000" % (sKVOFF, sKVOFF))
        if p == 3:
            a.e("s_sub_u32 s%d, s%d, 1" % (sCNT, sCNT))
            a.e("s_cmp_lg_u32 s%d, 0" % sCNT)
        a.e("s_waitcnt lgkmcnt(0)")
        if A: a.e("s_barrier")
        for x in Yseg(p, toggle=(p == 3)): a.e(x)
        if not A:
            if p == 3: a.e("s_cbranch_scc0 L_tail")
            a.e("s_barrier")
    a.e(("s_cbranch_scc1 L_loop%s" if A else "s_branch L_loop%s") % role)

def ysubs(a):
    for role in "AB":
        a.l.append(".p2align 6")
        a.lab("L_Y%s" % role)
        if role == "A": a.e("s_barrier")
        for x in Yseg(None): a.e(x)
        if role == "B": a.e("s_barrier")
        a.e("s_setpc_b64 %s" % sp(sRET))

def transition(a):
    a.lab("L_join")
    a.e("s_cmp_lg_u32 s%d, 0" % sHI)
    a.e("s_cbranch_scc1 L_trB")
    vm0 = list(a.vm)
    for role in "AB":
        a.vm = list(vm0)
        A = role == "A"
        if not A: a.lab("L_trB")
        def qfin():
            for i in range(4): a.e("v_cvt_pk_bf16_f32 %s, %s, %s" % (v(vQ + i), v(vAQ + 2 * i), v(vAQ + 2 * i + 1)))
            for i in range(4, 7): a.e("v_mov_b32 %s, 0" % v(vP + i))
            a.e("v_permlane16_swap_b32 %s, %s" % (v(vQ), v(vQ + 2)))
            a.e("v_permlane16_swap_b32 %s, %s" % (v(vQ + 1), v(vQ + 3)))
        def gelu():
            a.e("s_cmp_ge_u32 s%d, 14" % sM)
            a.e("s_cbranch_scc1 L_nog%s" % role)
            a.e("s_call_b64 %s, L_gelu%s" % (sp(sRET), role))
            a.vm += ["hst"] * 4
            a.lab("L_nog%s" % role)
        if A:
            a.e("s_setprio 1")
            gelu(); qfin()
            a.waitvm(["k0", "kv0", "kv1"])
            a.e("s_barrier")
        else:
            a.waitvm(["k0", "kv0", "kv1"])
            a.e("s_barrier")
            gelu(); qfin()
            a.e("s_nop 1")
        a.e(mfma(vS, vK0, vQ, None))
        a.stamp(5)
        attention(a, role)
        if A: a.e("s_branch L_tail")

def tail(a):
    a.lab("L_tail")
    a.e("v_cvt_pk_bf16_f32 %s, %s, %s" % (v(vP + 7), v(vE + 2), v(vE + 3)))
    a.stamp(6)
    a.e("s_setprio 0")
    a.e("s_mov_b32 s%d, 0x%x" % (sC, f2u(2.0 ** -16)))
    a.e(mfma(vO, vV1L, vP + 4, vO))
    a.e("s_mov_b32 s%d, 0x%x" % (sD, f2u(2.0 ** 100)))
    a.e("s_nop 10")
    t = vFR
    a.e("v_rcp_f32 %s, %s" % (v(t + 2), v(vO + 8)))
    a.e("v_pk_mul_f32 %s, %s, 0 op_sel_hi:[1,0]" % (v(t, 2), v(vO, 2)))
    for i in range(1, 4): a.e("v_pk_fma_f32 %s, %s, 0, %s op_sel_hi:[1,0,1]" % (v(t, 2), v(vO + 2 * i, 2), v(t, 2)))
    a.e("v_add_f32 %s, %s, %s" % (v(t), v(t), v(t + 1)))
    a.e("v_add_f32 %s, %s, %s" % (v(t), v(t), v(vO + 8)))
    a.e("v_cmp_nle_f32 vcc, s%d, %s" % (sC, v(t)))
    a.e("v_cmp_nge_f32 %s, s%d, %s" % (sp(sTMPP), sD, v(t)))
    a.e("s_or_b64 vcc, vcc, %s" % sp(sTMPP))
    a.e("s_branch L_fb" if Opt.force_fb else "s_cbranch_scc1 L_fb")
    a.lab("L_fbret")
    a.e("v_mul_f32 %s, %s, %s" % (v(t + 2), v(t + 2), v(vGP)))
    for i in range(4): a.e("v_pk_mul_f32 %s, %s, %s op_sel_hi:[1,0]" % (v(vO + 2 * i, 2), v(vO + 2 * i, 2), v(t + 2, 2)))
    for i in range(4): a.e("v_cvt_pk_bf16_f32 %s, %s, %s" % (v(vP + i), v(vO + 2 * i), v(vO + 2 * i + 1)))
    for i in range(4): a.e("v_min_u32 %s, -2, %s" % (v(vP + i), v(vP + i)))
    a.e("buffer_store_dwordx4 %s, %s, %s, s%d offen sc1" % (v(vP, 4), v(vL16), srd(SWS), sOST))
    a.e("s_waitcnt vmcnt(1)")
    a.e("s_barrier")
    hreg = {21: vH + 0, 22: vH + 4, 23: vH + 8, 24: vH + 16, 25: vH + 20, 26: vH + 24, 27: vH + 28}
    wf = [vFR, vFR + 8, vFR + 16]
    for i in range(2):
        for r in wd_reads(wf[i], vWDA, i * 8192): a.e(r)
    for i in range(7):
        if i + 2 < 7:
            for r in wd_reads(wf[(i + 2) % 3], vWDA, (i + 2) * 8192): a.e(r)
        a.e("s_waitcnt lgkmcnt(%d)" % (4 * min(2, 6 - i)))
        for c in range(2): a.e(mfma(vD + 16 * c, wf[i % 3] + 4 * c, hreg[21 + i], vD + 16 * c))
    a.e("s_barrier")
    a.e("v_add_u32 %s, 0x%x, %s" % (v(vWDA), L_WO, v(vWDA)))
    a.e("v_sub_f32 %s, 1.0, %s" % (v(vGC), v(vGC)))
    a.e("s_waitcnt vmcnt(0)")
    a.stamp(7)
    for j in range(8):
        if j == 4: a.e("s_add_u32 s%d, s%d, 0x1000" % (sA, sOLD))
        a.e("buffer_load_dwordx4 %s, %s, %s, s%d offen offset:%d sc1" % (v(vS + 4 * j, 4), v(vL16), srd(SWS), sOLD if j < 4 else sA, (j % 4) * 1024))
    for i in range(2):
        for r in wd_reads(wf[i], vWDA, i * 8192): a.e(r)
    for i in range(16): a.e("v_pk_mul_f32 %s, %s, %s op_sel:[0,1] op_sel_hi:[1,1]" % (v(vD + 2 * i, 2), v(vD + 2 * i, 2), v(vGP, 2)))
    aw = vXA
    ar = vWA
    a.e("v_and_b32 v2, 31, v0")
    a.e("v_lshrrev_b32 v3, 5, v0")
    a.e("v_and_b32 v4, 7, v0")
    a.e("v_xor_b32 v3, v3, v4")
    a.e("v_lshlrev_b32 v3, 4, v3")
    a.e("v_lshl_add_u32 v3, v2, 8, v3")
    a.e("s_and_b32 s%d, s%d, 1" % (sB, sW))
    a.e("s_lshl_b32 s%d, s%d, 15" % (sB, sB))
    a.e("s_lshr_b32 s%d, s%d, 1" % (sC, sW))
    a.e("s_lshl_b32 s%d, s%d, 13" % (sD, sC))
    a.e("s_add_u32 s%d, s%d, s%d" % (sD, sD, sB))
    a.e("v_add_u32 %s, s%d, v3" % (v(aw), sD))
    for j in range(1, 4): a.e("v_xor_b32 %s, %d, %s" % (v(aw + j), 32 * j, v(aw)))
    a.e("v_lshrrev_b32 v2, 3, v0")
    a.e("v_lshlrev_b32 v3, 1, v4")
    a.e("v_xor_b32 v3, v3, v2")
    a.e("v_lshlrev_b32 v3, 4, v3")
    a.e("v_lshl_add_u32 v3, v2, 8, v3")
    a.e("s_lshl_b32 s%d, s%d, 11" % (sD, sC))
    a.e("s_add_u32 s%d, s%d, s%d" % (sD, sD, sB))
    a.e("v_add_u32 %s, s%d, v3" % (v(ar), sD))
    a.e("v_xor_b32 %s, 16, %s" % (v(ar + 1), v(ar)))
    a.e("v_lshlrev_b32 v4, 4, v4")
    a.e("v_lshl_add_u32 %s, v2, 10, v4" % v(ar + 2))
    a.e("s_lshl_b32 s%d, s%d, 13" % (sC, sC))
    a.e("s_add_u32 s%d, s%d, s%d" % (sB, sB, sC))
    a.e("s_lshl_b32 s%d, s%d, 16" % (sC, sT))
    a.e("s_add_u32 s%d, s%d, s%d" % (sB, sB, sC))
    a.e("s_lshl_b32 s%d, s%d, 7" % (sC, sCB))
    a.e("s_add_u32 s%d, s%d, s%d" % (sCNT, sB, sC))
    a.e("s_mov_b32 s%d, 0x2000" % sB)
    for j in range(8):
        o = vS + 4 * j
        if j + 2 < 8:
            for r in wd_reads(wf[(j + 2) % 3], vWDA, (j + 2) * 8192): a.e(r)
        a.lab("L_ochk%d" % j)
        a.e("s_waitcnt vmcnt(%d)" % (7 - j))
        a.e("v_max3_u32 v2, %s, %s, %s" % (v(o), v(o + 1), v(o + 2)))
        a.e("v_max_u32 v2, v2, %s" % v(o + 3))
        a.e("v_cmp_eq_u32 vcc, -1, v2")
        a.e("s_cbranch_vccnz L_ore%d" % j)
        a.lab("L_ook%d" % j)
        a.e("s_waitcnt lgkmcnt(%d)" % (4 * min(2, 7 - j)))
        for c in range(2): a.e(mfma(vD + 16 * c, wf[j % 3] + 4 * c, o, vD + 16 * c))
    a.stamp(8)
    a.e("s_nop 10")
    for c in range(2):
        for j in range(4):
            a.e("ds_write_b128 %s, %s offset:%d" % (v(aw + j), v(vD + 16 * c + 4 * j, 4), 128 * c))
    a.e("s_waitcnt lgkmcnt(0)")
    a.e("s_barrier")
    for p in range(4):
        for h in range(2): a.e(rd128(vS + 8 * p + 4 * h, ar + h, p * 8192))
    for p in range(1, 4):
        a.e("s_waitcnt lgkmcnt(%d)" % (6 - 2 * p))
        for i in range(4): a.e("v_pk_add_f32 %s, %s, %s" % (v(vS + 2 * i, 2), v(vS + 2 * i, 2), v(vS + 8 * p + 2 * i, 2)))
    for i in range(4): a.e("v_cvt_pk_bf16_f32 %s, %s, %s" % (v(vP + i), v(vS + 2 * i), v(vS + 2 * i + 1)))
    a.e("buffer_store_dwordx4 %s, %s, %s, s%d offen %s" % (v(vP, 4), v(ar + 2), srd(SOUT), sCNT, Opt.out_pol))
    if Opt.probe >= 0:
        a.e("s_waitcnt vmcnt(0)")
        a.stamp(9)
        a.e("s_cmp_ge_u32 s%d, 14" % sM)
        a.e("s_cbranch_scc%d L_end" % (0 if Opt.probe_l else 1))
        a.lab("L_probe")
        a.e("s_memrealtime s[0:1]")
        a.e("s_waitcnt lgkmcnt(0)")
        a.e("s_sub_u32 s0, s0, s%d" % (sSTAMP + 4))
        a.e("s_cmp_lt_u32 s0, 4000")
        a.e("s_cbranch_scc1 L_probe")
    if Opt.pin == 9:
        a.e("s_waitcnt vmcnt(0)")
        a.stamp(9)
    if Opt.diag:
        a.e("s_waitcnt vmcnt(0)")
        a.stamp(9)
        a.e("s_mov_b32 s%d, s%d" % (sSTAMP + 3, sSTAMP))
        a.e("s_mov_b32 s%d, s%d" % (sSTAMP, sB))
        a.e("s_getreg_b32 s%d, hwreg(HW_REG_XCC_ID)" % (sSTAMP + 1))
        for i in range(20): a.e("v_mov_b32 %s, s%d" % (v(vS + i), sSTAMP + i))
        a.e("s_lshl_b32 s%d, s2, 3" % sA)
        a.e("s_add_u32 s%d, s%d, s%d" % (sA, sA, sW))
        a.e("s_lshl_b32 s%d, s%d, 7" % (sA, sA))
        a.e("s_add_u32 s%d, s%d, 0x%x" % (sA, sA, WS_STAMP))
        a.e("s_mov_b64 exec, 1")
        for i in range(5): a.e("buffer_store_dwordx4 %s, off, %s, s%d offset:%d" % (v(vS + 4 * i, 4), srd(SWS), sA, 16 * i))
    a.lab("L_end")
    a.e("s_endpgm")
    for j in range(8):
        a.lab("L_ore%d" % j)
        a.e("s_sub_u32 s%d, s%d, 1" % (sB, sB))
        a.e("s_cbranch_scc1 L_ogive%d" % j)
        a.e("s_waitcnt vmcnt(0)")
        for i in range(j, 8):
            a.e("buffer_load_dwordx4 %s, %s, %s, s%d offen offset:%d sc1" % (v(vS + 4 * i, 4), v(vL16), srd(SWS), sOLD if i < 4 else sA, (i % 4) * 1024))
        a.e("s_branch L_ochk%d" % j)
        a.lab("L_ogive%d" % j)
        a.e("s_mov_b32 s%d, 0" % sB)
        a.e("s_branch L_ook%d" % j)

def fallback(a):
    a.lab("L_fb")
    m = vFR + 4
    a.e("v_mov_b32 %s, 0xff800000" % v(m))
    a.e("s_mov_b32 s%d, 0" % sA)
    a.lab("L_fb1")
    a.e("buffer_load_dwordx4 %s, %s, %s, s%d offen sc1" % (v(vKF, 4), v(vL16), srd(SKV), sA))
    a.e("s_waitcnt vmcnt(0)")
    a.e(mfma(vS, vKF, vQ, None))
    a.e("s_add_u32 s%d, s%d, 2048" % (sA, sA))
    a.e("s_nop 11")
    for i in range(8): a.e("v_max3_f32 %s, %s, %s, %s" % (v(m), v(m), v(vS + 2 * i), v(vS + 2 * i + 1)))
    a.e("s_cmp_lt_u32 s%d, 0x20000" % sA)
    a.e("s_cbranch_scc1 L_fb1")
    a.e("v_mov_b32 %s, %s" % (v(m + 1), v(m)))
    a.e("s_nop 1")
    a.e("v_permlane32_swap_b32 %s, %s" % (v(m), v(m + 1)))
    a.e("s_nop 1")
    a.e("v_max_f32 %s, %s, %s" % (v(m), v(m), v(m + 1)))
    for i in range(16): a.e("v_sub_f32 %s, 0, %s" % (v(vS + 16 + i), v(m)))
    for i in range(16): a.e("v_mov_b32 %s, 0" % v(vO + i))
    a.e("s_mov_b32 s%d, 0" % sA)
    a.lab("L_fb2")
    a.e("s_add_u32 s%d, s%d, 0x%x" % (sB, sA, 63 * 2048))
    a.e("s_and_b32 s%d, s%d, 0x1ffff" % (sB, sB))
    a.e("buffer_load_dwordx4 %s, %s, %s, s%d offen sc1" % (v(vKF, 4), v(vL16), srd(SKV), sB))
    a.e("s_add_u32 s%d, s%d, 2048" % (sB, sA))
    a.e("s_and_b32 s%d, s%d, 0x1ffff" % (sB, sB))
    a.e("s_mov_b64 exec, %s" % sp(sVM))
    a.e("buffer_load_dwordx4 %s, %s, %s, s%d offen offset:1024 sc1" % (v(vV, 4), v(vL16), srd(SKV), sA))
    a.e("buffer_load_dwordx4 %s, %s, %s, s%d offen offset:1280 sc1" % (v(vV + 4, 4), v(vL16), srd(SKV), sB))
    a.e("s_mov_b64 exec, -1")
    a.e("s_waitcnt vmcnt(0)")
    a.e(mfma(vS, vKF, vQ, vS + 16))
    a.e("s_add_u32 s%d, s%d, 2048" % (sA, sA))
    a.e("s_nop 11")
    for i in range(16): a.e("v_exp_f32 %s, %s" % (v(vS + i), v(vS + i)))
    for i in range(8): a.e("v_cvt_pk_bf16_f32 %s, %s, %s" % (v(vP + i), v(vS + 2 * i), v(vS + 2 * i + 1)))
    a.e("s_nop 1")
    a.e(mfma(vO, vV, vP, vO))
    a.e(mfma(vO, vV + 4, vP + 4, vO))
    a.e("s_cmp_lt_u32 s%d, 0x20000" % sA)
    a.e("s_cbranch_scc1 L_fb2")
    a.e("s_nop 11")
    a.e("v_rcp_f32 %s, %s" % (v(vFR + 2), v(vO + 8)))
    a.e("s_branch L_fbret")

def build():
    a = Asm()
    prologue(a)
    phase1_F(a)
    transition(a)
    tail(a)
    a.l += a.ool
    ysubs(a)
    vm = a.vm; gelu_sub(a); a.vm = vm
    phase1_L(a)
    fallback(a)
    a.lab("L_codeend")
    il = a.l.index("L_light:")
    for i, x in enumerate(a.l):
        if x.endswith(" lds") and "sc1" not in x and " nt" not in x:
            if (Opt.ntx & 4 and (srd(SWD) in x or srd(SWO) in x)) or (Opt.ntx & 8 and i > il):
                a.l[i] = x[:-4] + " nt lds"
    head = open("cdna_kernels/%s.s.ref" % NAME).read().split("\n")
    hdr = [l for l in head if l.startswith(";") and "@launch" not in l and "Override" not in l and "grid=" not in l]
    out = hdr + ["; @launch grid=(256,1,1) block=(512,1,1) lds=%d" % LDS_BYTES,
                 '.amdgcn_target "amdgcn-amd-amdhsa--gfx950"', ".text", ".globl %s_kernel" % NAME, ".p2align 8",
                 ".type %s_kernel,@function" % NAME,
                 ".set CODE_PF_MAX, L_codeend - L_nopf - 4" if Opt.code_pf else "",
                 "%s_kernel:" % NAME]
    out += ["; mapmode %d" % Opt.mapmode, "; xrot %d" % Opt.xrot]
    out += a.l
    out += ['.section .rodata,"a"', ".p2align 6", ".amdhsa_kernel %s_kernel" % NAME,
            "  .amdhsa_next_free_vgpr %d" % NV, "  .amdhsa_next_free_sgpr 102", "  .amdhsa_accum_offset 256",
            "  .amdhsa_group_segment_fixed_size 0", "  .amdhsa_kernarg_size 104", "  .amdhsa_user_sgpr_count 2",
            "  .amdhsa_user_sgpr_kernarg_segment_ptr 1", "  .amdhsa_system_sgpr_workgroup_id_x 1", ".end_amdhsa_kernel", ""]
    return "\n".join(out)

if __name__ == "__main__":
    path = sys.argv[1]
    for kv in sys.argv[2:]:
        k, val = kv.split("=")
        cur = getattr(Opt, k)
        setattr(Opt, k, val if isinstance(cur, str) else type(cur)(int(val)))
    open(path, "w").write(build())
```

```python
import sys, struct, math

NAME = "gated_mix__grouped_kv_mqa__geglu_ffn__prompt"

class Opt:
    diag = 0
    mapmode = 1
    force_fb = False
    out_pol = ""
    code_pf = True
    xrot = 0
    pregap = 0
    ghx = 0
    qa = "088888"
    qb = "577777"
    npre = 8
    stagger = 1
    rper = 2
    dma1 = 17
    kprio = 0
    dma0 = 8
    npd = 4
    kdiag = 0
    fillpre = 0
    fillper = 4
    gsc = 2
    sched = 2
    xmask = 1
    ntx = 0
    touch = 2
    rotg = 0
    rotm = 0
    startbar = 1
    pvz = 1
    pin = -1
    pin_ns = 60000
    probe = -1
    probe_l = 0

def f2u(x): return struct.unpack("<I", struct.pack("<f", x))[0]

WS_KV = 0
WS_G = 128 * 1024
WS_HFLAG = 192 * 1024
WS_OF = 1 << 20
WS_HF = 4 << 20
WS_STAMP = 12 << 20
WS_SIZE = 16 << 20
K1 = 1024
L_G, L_U, L_X, L_WQ = 0, 48 * K1, 96 * K1, 144 * K1
L_QX = 32 * K1
L_WD, L_WO, L_KV = 0, 64 * K1, 128 * K1
LL_X, LL_W, LL_GATE, LL_WQ = 0, 128 * K1, 144 * K1, 128 * K1
LDS_BYTES = 160 * K1

SX, SWG, SWU, SWQ, SWS, SWD, SWO, SOUT, SDBG, SWKV, SGATE, SKV = 4, 8, 12, 16, 20, 24, 28, 32, 36, 40, 44, 64
SWV = 72
sTMPP = 48
sW, sHI, sLO, sG, sM, sT, sCB = 50, 51, 52, 53, 54, 55, 56
sWK = 57
sWH = 58
sK64 = 59
sVM = 60
sRET = 62
sA, sB, sC, sD = 68, 69, 70, 71
sOFFW, sOFFQ, sCH, sXP = 72, 73, 74, 75
sHOFF, sWDOFF, sKVOFF, sM0WD, sM0KV, sCNT = 72, 73, 74, 75, 76, 77
sOST, sOLD, sHST = 78, 79, 80
sHP = 81
sSTAMP = 82

def srd(b): return "s[%d:%d]" % (b, b + 3)
def sp(b): return "s[%d:%d]" % (b, b + 1)
def v(b, n=1): return "v%d" % b if n == 1 else "v[%d:%d]" % (b, b + n - 1)

vL16 = 1
vT0, vT1, vT2, vT3 = 2, 3, 4, 5
vGP, vGC = 6, 7
vKVA = 8
vWDA = 9
vWDV = 10
vONE = 11
vZERO = 12
vFLA = 13
vPOLL = 14
vGA = 15
vQ = 16
vK0 = 20
vV1L = 24
vE = 28
vP = 32
vV = 40
vO = 56
vD = 72
vACC = 104
vS = 104
vH = 136
vAQ = vP
vF1 = 168
vKF = 168
vWF = 176
vFR = 184
vLX = 224
vXA = 240
vWA = 244
vQA = 248
vDX, vDG, vDQ = 249, 250, 251
vC0 = 252
vHA = 254
NV = 256

class Asm:
    def __init__(self):
        self.l = []
        self.vm = []
        self.nstamp = 0
    def e(self, s):
        for x in s.split("\n"):
            x = x.strip()
            if x: self.l.append("    " + x)
    def lab(self, s): self.l.append(s + ":")
    def vmop(self, s, tag):
        self.e(s); self.vm.append(tag)
    def vmn(self, tags):
        if isinstance(tags, str): tags = [tags]
        last = -1
        for i, t in enumerate(self.vm):
            if t in tags: last = i
        return None if last < 0 else len(self.vm) - 1 - last
    def waitvm(self, tags, lgkm=False):
        n = self.vmn(tags)
        if n is None:
            if lgkm: self.e("s_waitcnt lgkmcnt(0)")
            return
        assert n < 64
        self.e("s_waitcnt vmcnt(%d)%s" % (n, " lgkmcnt(0)" if lgkm else ""))
        self.vm = self.vm[len(self.vm) - n:] if n else []
    def wait0(self, lgkm=False):
        self.e("s_waitcnt vmcnt(0)%s" % (" lgkmcnt(0)" if lgkm else "")); self.vm = []
    def stamp(self, i, real=False):
        if Opt.probe == i:
            self.e("s_waitcnt lgkmcnt(0)")
            self.e("s_memrealtime %s" % sp(sSTAMP + 4))
            self.e("s_waitcnt lgkmcnt(0)")
        if Opt.pin == i:
            self.nstamp += 1
            self.e("s_waitcnt lgkmcnt(0)")
            self.e("s_cselect_b32 s%d, 1, 0" % (sSTAMP + 5))
            self.lab("L_pin%d" % self.nstamp)
            self.e("s_memrealtime s[0:1]")
            self.e("s_waitcnt lgkmcnt(0)")
            self.e("s_sub_u32 s0, s0, s%d" % sSTAMP)
            self.e("s_cmp_lt_u32 s0, %d" % (Opt.pin_ns // 10))
            self.e("s_cbranch_scc1 L_pin%d" % self.nstamp)
            self.e("s_cmp_lg_u32 s%d, 0" % (sSTAMP + 5))
        if Opt.diag and not Opt.kdiag and (Opt.diag == 1 or i == 9):
            self.e("s_waitcnt lgkmcnt(0)")
            self.e("s_memtime %s" % sp(sSTAMP + 2 * i))
            self.e("s_memrealtime s[0:1]")
            self.e("s_waitcnt lgkmcnt(0)")
            self.e("s_mov_b32 s%d, s0" % (sSTAMP + 2 * i + 1))

def kstamp(a, i):
    if Opt.probe == 18 + i: a.e("s_memrealtime %s" % sp(sSTAMP + 4))
    if Opt.diag and Opt.kdiag: a.e("s_memtime %s" % sp(sSTAMP + 2 * i))

def mfma(d, a, b, c):
    return "v_mfma_f32_32x32x16_bf16 %s, %s, %s, %s" % (v(d, 16), v(a, 4), v(b, 4), "0" if c is None else v(c, 16))
def mfma16(d, a, b, c):
    return "v_mfma_f32_16x16x32_bf16 %s, %s, %s, %s" % (v(d, 4), v(a, 4), v(b, 4), "0" if c is None else v(c, 4))
def rd128(d, a, off):
    assert 0 <= off < 65536
    return "ds_read_b128 %s, %s offset:%d" % (v(d, 4), v(a), off)
def rdtr(d, a, off):
    assert 0 <= off < 65536
    return "ds_read_b64_tr_b16 %s, %s offset:%d" % (v(d, 2), v(a), off)

def interleave(mf, fill, per=2):
    out = []
    fill = list(fill)
    for i, m in enumerate(mf):
        out.append(m)
        if i < len(mf) - 1:
            out += fill[:per]; fill = fill[per:]
    return out + fill

def srd_words(a, regs):
    sizes = {SX: 2048 * 1024, SWG: 512 * 3584, SWU: 512 * 3584, SWQ: 512 * 1024, SWS: WS_SIZE, SWKV: 16384, SWV: 16384,
             SGATE: 1024, SWD: 1792 * 1024, SWO: 512 * 1024, SOUT: 2048 * 1024, SDBG: 256, SKV: 128 * 1024}
    for reg in regs:
        a.e("s_mov_b32 s%d, 0x%x" % (reg + 2, sizes[reg]))
        a.e("s_mov_b32 s%d, 0x20000" % (reg + 3))

def prologue(a):
    a.e("s_cmp_ge_u32 s2, 256")
    a.e("s_cbranch_scc1 L_end")
    for reg, off in ((SX, 0), (SWG, 48), (SWU, 56), (SWQ, 8), (SWS, 96), (SWKV, 16), (sTMPP, 24), (SGATE, 72),
                     (SWD, 64), (SWO, 32), (SOUT, 80), (SDBG, 88), (SKV, 96)):
        a.e("s_load_dwordx2 %s, s[0:1], %d" % (sp(reg), off))
    if Opt.probe >= 0: a.e("s_memrealtime %s" % sp(sSTAMP + 4))
    if Opt.diag or Opt.pin >= 0 or Opt.probe >= 0:
        a.e("s_memrealtime %s" % sp(sSTAMP))
        a.e("s_memtime %s" % sp(sSTAMP + 2))
    a.e("v_lshrrev_b32 v2, 6, v0")
    a.e("v_and_b32 v0, 63, v0")
    a.e("v_readfirstlane_b32 s%d, v2" % sW)
    a.e("v_lshlrev_b32 %s, 4, v0" % v(vL16))
    srd_words(a, [SX, SWQ])
    a.e("s_and_b32 s%d, s2, 7" % sA)
    a.e("s_lshr_b32 s%d, s2, 3" % sB)
    a.e("s_lshl_b32 s%d, s%d, 2" % (sT, sA))
    a.e("s_and_b32 s%d, s%d, 3" % (sD, sB))
    a.e("s_add_u32 s%d, s%d, s%d" % (sT, sT, sD))
    a.e("s_lshr_b32 s%d, s%d, 2" % (sCB, sB))
    if Opt.xrot:
        a.e("s_add_u32 s%d, s%d, %d" % (sA, sA, Opt.xrot))
        a.e("s_and_b32 s%d, s%d, 7" % (sA, sA))
    if Opt.mapmode == 0:
        a.e("s_lshl_b32 s%d, s%d, 1" % (sG, sA))
        a.e("s_and_b32 s%d, s%d, 1" % (sC, sB))
        a.e("s_add_u32 s%d, s%d, s%d" % (sG, sG, sC))
        a.e("s_lshr_b32 s%d, s%d, 1" % (sM, sB))
        a.e("s_mov_b32 s%d, s%d" % (sHP, sM))
    elif Opt.mapmode in (1, 3):
        a.e("s_and_b32 s%d, s%d, 1" % (sG, sA))
        a.e("s_lshl_b32 s%d, s%d, 3" % (sG, sG))
        a.e("s_and_b32 s%d, s%d, 7" % (sC, sB))
        a.e("s_add_u32 s%d, s%d, s%d" % (sG, sG, sC))
        a.e("s_lshr_b32 s%d, s%d, 1" % (sA, sA))
        a.e("s_lshl_b32 s%d, s%d, 2" % (sHP, sA))
        a.e("s_lshr_b32 s%d, s%d, 3" % (sC, sB))
        a.e("s_add_u32 s%d, s%d, s%d" % (sHP, sHP, sC))
        if Opt.mapmode == 1:
            a.e("s_mov_b32 s%d, s%d" % (sM, sHP))
        else:
            a.e("s_sub_u32 s%d, s%d, s%d" % (sM, sHP, sA))
            a.e("s_lshr_b32 s%d, s%d, 1" % (sB, sB))
            a.e("s_and_b32 s%d, s%d, 2" % (sB, sB))
            a.e("s_add_u32 s%d, s%d, s%d" % (sB, sB, sA))
            a.e("s_and_b32 s%d, s%d, 3" % (sB, sB))
            a.e("s_add_u32 s%d, s%d, 12" % (sB, sB))
            a.e("s_cmp_eq_u32 s%d, 3" % sC)
            a.e("s_cselect_b32 s%d, s%d, s%d" % (sM, sB, sM))
    else:
        a.e("s_and_b32 s%d, s%d, 3" % (sG, sA))
        a.e("s_lshl_b32 s%d, s%d, 2" % (sG, sG))
        a.e("s_add_u32 s%d, s%d, s%d" % (sG, sG, sD))
        a.e("s_lshr_b32 s%d, s%d, 2" % (sM, sA))
        a.e("s_lshl_b32 s%d, s%d, 3" % (sM, sM))
        a.e("s_add_u32 s%d, s%d, s%d" % (sM, sM, sCB))
        a.e("s_mov_b32 s%d, s%d" % (sHP, sM))
    a.e("s_lshl_b32 s%d, s%d, 10" % (sWK, sW))
    a.e("s_mov_b32 s%d, 0x10000" % sK64)
    if Opt.code_pf:
        a.e("s_cmp_lg_u32 s%d, s%d" % (sD, sW))
        a.e("s_cbranch_scc1 L_nopf")
        a.e("s_getpc_b64 %s" % sp(sRET))
        a.e("s_lshl_b32 s%d, s%d, 13" % (sD, sW))
        a.e("v_lshl_add_u32 v2, v0, 7, s%d" % sD)
        a.e("v_min_u32 v2, CODE_PF_MAX, v2")
        a.e("global_load_dword %s, v2, %s" % (v(vPOLL), sp(sRET)))
        a.lab("L_nopf")
    a.e("s_lshl_b32 s%d, s%d, 2" % (sA, sW))
    a.e("v_lshrrev_b32 v2, 4, v0")
    a.e("v_add_u32 v3, s%d, v2" % sA)
    a.e("v_xor_b32 v3, v3, v0")
    a.e("v_and_b32 v3, 7, v3")
    a.e("v_lshlrev_b32 v3, 4, v3")
    a.e("v_lshrrev_b32 v4, 3, v0")
    a.e("v_lshl_add_u32 v3, v4, 10, v3")
    a.e("s_lshl_b32 s%d, s%d, 17" % (sA, sG))
    a.e("s_lshl_b32 s%d, s%d, 13" % (sB, sW))
    a.e("s_add_u32 s%d, s%d, s%d" % (sA, sA, sB))
    a.e("v_add_u32 %s, s%d, v3" % (v(vDX), sA))
    a.e("s_cmp_ge_u32 s%d, 14" % sM)
    a.e("s_cbranch_scc1 L_light")

def setup_rd(a):
    a.e("s_lshr_b32 s%d, s%d, 2" % (sHI, sW))
    a.e("s_and_b32 s%d, s%d, 3" % (sLO, sW))
    a.e("v_and_b32 v2, 15, v0")
    a.e("v_lshrrev_b32 v3, 4, v0")
    a.e("v_bfe_u32 v4, v0, 1, 3")
    a.e("v_xor_b32 v4, v4, v3")
    a.e("v_lshlrev_b32 v4, 4, v4")
    a.e("v_lshl_add_u32 %s, v2, 7, v4" % v(vXA))
    a.e("v_bfe_u32 v2, v0, 2, 2")
    a.e("v_and_b32 v4, 3, v0")
    a.e("v_lshl_add_u32 %s, v3, 3, v2" % v(vQA))
    a.e("v_lshlrev_b32 %s, 6, %s" % (v(vQA), v(vQA)))
    a.e("v_xor_b32 v5, s%d, v3" % sHI)
    a.e("v_and_b32 v5, 1, v5")
    a.e("v_lshl_add_u32 %s, v5, 5, %s" % (v(vQA), v(vQA)))
    a.e("v_lshl_add_u32 %s, v4, 3, %s" % (v(vQA), v(vQA)))

def setup_oclr(a):
    srd_words(a, [SWS, SKV, SDBG])
    a.e("s_mov_b32 s%d, 0xffff" % sVM)
    a.e("s_mov_b32 s%d, 0xffff" % (sVM + 1))
    a.e("s_lshl_b32 s%d, s%d, 2" % (sA, sG))
    a.e("s_add_u32 s%d, s%d, s%d" % (sA, sA, sLO))
    a.e("s_lshl_b32 s%d, s%d, 5" % (sB, sA))
    a.e("s_lshl_b32 s%d, s%d, 1" % (sC, sHP))
    a.e("s_add_u32 s%d, s%d, s%d" % (sB, sB, sC))
    a.e("s_add_u32 s%d, s%d, s%d" % (sB, sB, sHI))
    a.e("s_lshl_b32 s%d, s%d, 10" % (sB, sB))
    a.e("s_add_u32 s%d, s%d, 0x%x" % (sOST, sB, WS_OF))
    for i in range(4): a.e("v_mov_b32 %s, -1" % v(vQ + i))
    a.vmop("buffer_store_dwordx4 %s, %s, %s, s%d offen sc1" % (v(vQ, 4), v(vL16), srd(SWS), sOST), "oclr")
    a.e("v_mov_b32 %s, 1" % v(vONE))
    a.e("v_mov_b32 %s, 0" % v(vZERO))
    a.e("v_and_b32 %s, 31, v0" % v(vGA))
    a.e("v_lshlrev_b32 %s, 2, %s" % (v(vGA), v(vGA)))

def collect(fn):
    t = Asm(); t.marks = {}
    def vmop(s_, tag):
        t.e(s_); t.marks[len(t.l) - 1] = tag
    t.vmop = vmop
    fn(t)
    return [(x, t.marks.get(i)) for i, x in enumerate(t.l)]
def put(a, items):
    for x, tag in items:
        if tag: a.vmop(x, tag)
        else: a.e(x)

def setup_attn(a):
    srd_words(a, [SWD, SWO, SOUT])
    a.e("s_lshl_b32 s%d, s%d, 2" % (sA, sG))
    a.e("s_add_u32 s%d, s%d, s%d" % (sA, sA, sLO))
    a.e("s_mul_i32 s%d, s%d, 112" % (sB, sA))
    a.e("s_lshl_b32 s%d, s%d, 3" % (sC, sM))
    a.e("s_add_u32 s%d, s%d, s%d" % (sB, sB, sC))
    a.e("s_lshl_b32 s%d, s%d, 2" % (sC, sHI))
    a.e("s_add_u32 s%d, s%d, s%d" % (sB, sB, sC))
    a.e("s_and_b32 s%d, s%d, 1" % (sC, sLO))
    a.e("s_lshl_b32 s%d, s%d, 1" % (sC, sC))
    a.e("s_add_u32 s%d, s%d, s%d" % (sB, sB, sC))
    a.e("s_lshl_b32 s%d, s%d, 10" % (sB, sB))
    a.e("s_add_u32 s%d, s%d, 0x%x" % (sHST, sB, WS_HF))
    a.e("v_bfe_u32 v2, v0, 2, 2")
    a.e("v_lshrrev_b32 v3, 5, v0")
    a.e("v_lshl_add_u32 v2, v3, 2, v2")
    a.e("v_lshlrev_b32 v2, 6, v2")
    a.e("v_bfe_u32 v3, v0, 4, 1")
    a.e("v_lshl_add_u32 v2, v3, 5, v2")
    a.e("v_and_b32 v3, 3, v0")
    a.e("v_lshl_add_u32 v2, v3, 3, v2")
    a.e("s_lshr_b32 s%d, s%d, 1" % (sA, sW))
    a.e("s_lshl_b32 s%d, s%d, 11" % (sA, sA))
    a.e("v_add_u32 %s, s%d, v2" % (v(vWDA), sA))
    a.e("v_add_u32 %s, 0x%x, %s" % (v(vKVA), L_KV, v(vL16)))
    a.e("v_bfe_u32 v2, v0, 2, 3")
    a.e("v_lshlrev_b32 v2, 10, v2")
    a.e("v_lshrrev_b32 v3, 5, v0")
    a.e("v_lshl_add_u32 v2, v3, 6, v2")
    a.e("v_and_b32 v3, 3, v0")
    a.e("v_lshl_add_u32 v2, v3, 4, v2")
    a.e("s_lshl_b32 s%d, s%d, 7" % (sB, sCB))
    a.e("v_add_u32 %s, s%d, v2" % (v(vWDV), sB))
    a.e("v_min_u32 v2, 13, v0")
    a.e("v_lshlrev_b32 v2, 7, v2")
    a.e("s_lshr_b32 s%d, s%d, 1" % (sA, sT))
    a.e("s_lshl_b32 s%d, s%d, 11" % (sA, sA))
    a.e("s_add_u32 s%d, s%d, 0x%x" % (sA, sA, WS_HFLAG))
    a.e("v_add_u32 %s, s%d, v2" % (v(vFLA), sA))
    a.e("s_lshl_b32 s%d, s%d, 1" % (sA, sT))
    a.e("s_and_b32 s%d, s%d, 1" % (sB, sW))
    a.e("s_add_u32 s%d, s%d, s%d" % (sA, sA, sB))
    a.e("s_lshl_b32 s%d, s%d, 15" % (sB, sA))
    a.e("s_lshr_b32 s%d, s%d, 1" % (sC, sW))
    a.e("s_lshl_b32 s%d, s%d, 13" % (sC, sC))
    a.e("s_add_u32 s%d, s%d, s%d" % (sB, sB, sC))
    a.e("s_add_u32 s%d, s%d, 0x%x" % (sOLD, sB, WS_OF))
    if Opt.pvz:
        a.e("s_mov_b32 s%d, 0x110000" % sA)
        a.e("s_mov_b32 s%d, 0x110000" % sB)
        a.e("v_mov_b32 v3, 0x3f803f80")
        a.e("v_cndmask_b32 v2, 0, v3, %s" % sp(sA))
    else:
        a.e("v_mov_b32 v2, 0x3f803f80")
    for i in range(16): a.e("v_mov_b32 %s, v2" % v(vV + i))
    for i in range(4): a.e("v_mov_b32 %s, v2" % v(vV1L + i))
    for i in range(4): a.e("v_mov_b32 %s, 0" % v(vE + i))
    a.e("v_lshrrev_b32 v2, 4, v0")
    a.e("v_lshl_add_u32 %s, v2, 8, %s" % (v(vHA), v(vL16)))
    for i in range(16): a.e("v_mov_b32 %s, 0" % v(vO + i))
    for i in range(32): a.e("v_mov_b32 %s, 0" % v(vD + i))
    c0 = -2.0 * math.sqrt(2.0 / math.pi) * math.log2(math.e)
    a.e("v_mov_b32 %s, 0x%x" % (v(vC0), f2u(c0)))
    a.e("v_mov_b32 %s, 0x%x" % (v(vC0 + 1), f2u(c0 * 0.044715)))

def kv_first_loads(a):
    it = []
    for u in range(2):
        it.append(("s_add_u32 m0, s%d, 0x%x\ns_add_u32 s%d, s%d, 0x%x\nbuffer_load_dwordx4 %s, %s, s%d offen sc1 lds"
                   % (sWK, L_KV + u * 8192, sA, sWK, u * 8192, v(vL16), srd(SKV), sA), "kv%d" % u))
    it.append(("s_mov_b32 s%d, 0x%x\nbuffer_load_dwordx4 %s, %s, %s, s%d offen sc1"
               % (sA, 63 * 2048, v(vK0, 4), v(vL16), srd(SKV), sA), "k0"))
    it.append(("s_mov_b64 exec, %s\nbuffer_load_dwordx4 %s, %s, %s, 0 offen offset:%d sc1\ns_mov_b64 exec, -1"
               % (sp(sVM), v(vV1L, 4), v(vL16), srd(SKV), 1024 + 256), "k0"))
    it.append(("s_lshl_b32 s%d, s%d, 2\ns_add_u32 s%d, s%d, s%d\ns_lshl_b32 s%d, s%d, 7\ns_add_u32 s%d, s%d, 0x%x\n"
               "buffer_load_dword %s, %s, %s, s%d offen sc1"
               % (sA, sG, sA, sA, sLO, sA, sA, sA, sA, WS_G, v(vGP), v(vGA), srd(SWS), sA), "k0"))
    it.append(("s_lshl_b32 s%d, s%d, 1\ns_and_b32 s%d, s%d, 1\ns_add_u32 s%d, s%d, s%d\ns_lshl_b32 s%d, s%d, 7\ns_add_u32 s%d, s%d, 0x%x\n"
               "buffer_load_dword %s, %s, %s, s%d offen sc1"
               % (sA, sT, sB, sW, sA, sA, sB, sA, sA, sA, sA, WS_G, v(vGC), v(vGA), srd(SWS), sA), "k0"))
    return it

def spin_counter(a, name, first_loaded):
    a.e("s_cmp_lg_u32 s%d, 0" % sW)
    a.e("s_cbranch_scc1 L_%s_done" % name)
    a.e("s_mov_b32 s%d, 0x4000" % sB)
    if first_loaded: a.e("s_branch L_%s_chk" % name)
    a.lab("L_%s_re" % name)
    a.e("buffer_load_dword %s, off, %s, 0 sc1" % (v(vPOLL), srd(SDBG)))
    a.e("s_waitcnt vmcnt(0)")
    a.lab("L_%s_chk" % name)
    a.e("v_readfirstlane_b32 s%d, %s" % (sA, v(vPOLL)))
    a.e("s_cmp_ge_u32 s%d, 32" % sA)
    a.e("s_cbranch_scc1 L_%s_done" % name)
    a.e("s_sleep 4")
    a.e("s_sub_u32 s%d, s%d, 1" % (sB, sB))
    a.e("s_cmp_lg_u32 s%d, 0" % sB)
    a.e("s_cbranch_scc1 L_%s_re" % name)
    a.lab("L_%s_done" % name)

def phase1_F(a):
    SCHED = {1: ["01423567", "10253467", "23016457", "32104756"],
             2: ["02134657", "01324576", "10243567", "10235467"],
             3: ["01324657", "01243576", "12035467", "20134567"]}
    tabs = SCHED[Opt.sched] if Opt.sched else ["".join(str(c ^ (p & Opt.xmask)) for c in range(8)) for p in range(4)]
    for t_ in tabs: assert sorted(t_) == list("01234567")
    num = [int(t_[::-1], 16) for t_ in tabs]
    a.e("s_add_u32 s%d, s%d, s%d" % (sA, sG, sHP))
    a.e("s_mov_b32 s%d, 0x%x" % (sXP, num[0]))
    a.e("s_mov_b32 s%d, 0x%x" % (sB, num[2]))
    a.e("s_bitcmp1_b32 s%d, 0" % sA)
    a.e("s_cselect_b32 s%d, 0x%x, s%d" % (sXP, num[1], sXP))
    a.e("s_cselect_b32 s%d, 0x%x, s%d" % (sB, num[3], sB))
    a.e("s_bitcmp1_b32 s%d, 1" % sA)
    a.e("s_cselect_b32 s%d, s%d, s%d" % (sXP, sB, sXP))
    if Opt.ghx:
        a.e("s_bitcmp1_b32 s%d, 3" % sG)
        a.e("s_cselect_b32 s%d, 0x44444444, 0" % sB)
        a.e("s_xor_b32 s%d, s%d, s%d" % (sXP, sXP, sB))
    a.e("s_and_b32 s%d, s%d, 3" % (sLO, sW))
    a.e("s_lshl_b32 s%d, s%d, 10" % (sWH, sLO))

    def wvoff(a):
        a.e("s_lshl_b32 s%d, s%d, 1" % (sA, sLO))
        a.e("s_and_b32 s%d, s%d, 4" % (sA, sA))
        a.e("v_lshrrev_b32 v2, 4, v0")
        a.e("v_bfe_u32 v3, v0, 1, 3")
        a.e("v_xor_b32 v3, v3, v2")
        a.e("v_xor_b32 v3, s%d, v3" % sA)
        a.e("v_lshlrev_b32 v3, 5, v3")
        a.e("v_and_b32 v4, 1, v0")
        a.e("v_lshl_add_u32 v3, v4, 4, v3")
        a.e("v_mul_u32_u24 v5, 3584, v2")
        a.e("s_mul_i32 s%d, s%d, %d" % (sA, sLO, 4 * 3584))
        a.e("s_lshl_b32 s%d, s%d, 8" % (sB, sM))
        a.e("s_add_u32 s%d, s%d, s%d" % (sA, sA, sB))
        a.e("v_add3_u32 %s, v3, v5, s%d" % (v(vDG), sA))
    def qvoff(a):
        a.e("v_lshrrev_b32 v3, 2, v0")
        a.e("v_lshlrev_b32 v3, 10, v3")
        a.e("v_bfe_u32 v4, v0, 4, 2")
        a.e("v_and_b32 v4, 2, v4")
        a.e("v_xor_b32 v4, v4, v0")
        a.e("v_and_b32 v4, 3, v4")
        a.e("v_lshl_add_u32 v3, v4, 4, v3")
        a.e("s_lshl_b32 s%d, s%d, 14" % (sA, sLO))
        a.e("s_lshl_b32 s%d, s%d, 6" % (sB, sHP))
        a.e("s_add_u32 s%d, s%d, s%d" % (sA, sA, sB))
        a.e("v_add_u32 %s, s%d, v3" % (v(vDQ), sA))

    ORDER = [("q", 0)] + [("x", j) for j in range(4)] + [(t_, j) for j in range(4) for t_ in "gu"]
    def block(items):
        out = []; lastc = None; lastw = None
        for c, kind, j in items:
            s = c % 3; pre = []
            if c != lastc:
                pre.append("s_bfe_u32 s%d, s%d, 0x%x" % (sCH, sXP, 0x30000 + 4 * c)); lastc = c; lastw = None
            fam = "w" if kind in "gu" else kind
            if lastw is None or lastw[0] != fam:
                pre.append({"q": "s_lshl_b32 s%d, s%d, 16" % (sOFFW, sCH), "x": "s_lshl_b32 s%d, s%d, 7" % (sOFFW, sCH),
                            "w": "s_mul_i32 s%d, s%d, %d" % (sOFFW, sCH, 64 * 3584)}[fam])
                lastw = (fam, 0)
            if lastw[1] != j:
                pre.append("s_add_u32 s%d, s%d, 0x%x" % (sOFFW, sOFFW, (j - lastw[1]) * (0x8000 if fam == "x" else 16 * 3584)))
                lastw = (fam, j)
            m0c, vo, rs = {"q": (L_WQ + s * 4096, vDQ, SWQ), "x": (L_X + s * 16384 + j * 4096, vDX, SX),
                           "g": (L_G + s * 16384 + j * 4096, vDG, SWG), "u": (L_U + s * 16384 + j * 4096, vDG, SWU)}[kind]
            nt = " nt" if Opt.ntx & (1 if rs == SX else 2) else ""
            out.append(("s_add_u32 m0, s%d, 0x%x\n%s\nbuffer_load_dwordx4 %s, %s, s%d offen%s lds"
                        % (sWH, m0c, "\n".join(pre) or "s_nop 0", v(vo), srd(rs), sOFFW, nt), "c%d" % c))
        return out
    def part(c, role): return [(c, k_, j) for k_, j in ORDER if (k_ in "gu") == (role == "A")]

    def rdsetup(a):
        setup_rd(a)
        a.e("v_lshl_add_u32 %s, v3, 3, v2" % v(vWA))
        a.e("v_lshlrev_b32 %s, 8, %s" % (v(vWA), v(vWA)))
        a.e("v_lshl_add_u32 %s, v4, 3, %s" % (v(vWA), v(vWA)))
        a.e("v_and_b32 v5, 1, v3")
        a.e("v_lshl_add_u32 v2, v5, 2, v2")
        a.e("s_lshl_b32 s%d, s%d, 2" % (sA, sHI))
        a.e("s_and_b32 s%d, s%d, 1" % (sB, sLO))
        a.e("s_lshl_b32 s%d, s%d, 1" % (sB, sB))
        a.e("s_add_u32 s%d, s%d, s%d" % (sA, sA, sB))
        a.e("v_xor_b32 v2, s%d, v2" % sA)
        a.e("v_lshl_add_u32 %s, v2, 5, %s" % (v(vWA), v(vWA)))
        a.e("v_xor_b32 %s, 32, %s" % (v(vWA + 1), v(vWA)))
        a.e("v_add_u32 %s, 0x%x, %s" % (v(vWA + 2), L_U - L_G, v(vWA)))
        a.e("v_add_u32 %s, 0x%x, %s" % (v(vWA + 3), L_U - L_G, v(vWA + 1)))
        a.e("s_lshl_b32 s%d, s%d, 12" % (sA, sLO))
        a.e("s_add_u32 s%d, s%d, 0x%x" % (sA, sA, L_X))
        a.e("v_add_u32 %s, s%d, %s" % (v(vXA), sA, v(vXA)))
        a.e("v_xor_b32 %s, 0x1000, %s" % (v(vXA + 1), v(vXA)))
        a.e("v_xor_b32 %s, 64, %s" % (v(vXA + 2), v(vXA)))
        a.e("v_xor_b32 %s, 64, %s" % (v(vXA + 3), v(vXA + 1)))
        a.e("v_add_u32 %s, 0x%x, %s" % (v(vQA), L_WQ, v(vQA)))

    srd_words(a, [SWG, SWU])
    a.e("s_cmp_ge_u32 s%d, 4" % sW)
    a.e("s_cbranch_scc1 L_setB")
    late = collect(setup_oclr) + collect(setup_attn)
    words = collect(lambda t: srd_words(t, [SWS, SKV, SDBG, SWD, SWO, SOUT]))
    late = [x for x in late if x not in words]
    words += [("v_mov_b32 %s, 0" % v(r_), None) for r_ in (vGA, vWDV, vFLA, vHA)]
    st = collect(rdsetup) + words + late[:Opt.fillpre]
    fills = {"A": late[Opt.fillpre:], "B": late[Opt.fillpre:]}
    vms = {}
    for role in "AB":
        a.vm = []
        if role == "A":
            wvoff(a)
        else:
            a.lab("L_setB")
            a.e("v_subrev_u32 %s, 0x8000, %s" % (v(vDX), v(vDX)))
            qvoff(a)
        a.e("s_waitcnt lgkmcnt(0)")
        a.stamp(2)
        put(a, block(part(0, role)))
        if Opt.startbar: a.e("s_barrier")
        npre = min(Opt.npre, 8) if role == "A" else 5
        pn = block(part(1, role)[:npre])
        rest = st + collect(qvoff if role == "A" else wvoff)
        gap = len(rest) // (npre + Opt.pregap) + 1
        for i in range(npre):
            put(a, pn[:1]); pn = pn[1:]
            put(a, rest[:gap]); rest = rest[gap:]
        put(a, rest)
        a.e("s_mov_b64 vcc, %d" % (-1 if role == "A" else 0))
        if role == "A":
            a.waitvm("c0")
            a.e("s_branch L_k0")
        else:
            a.e("s_setprio 1")
            a.waitvm("c0")
        vms[role] = a.vm
    stream = part(1, "A")[min(Opt.npre, 8):] + [(c, k_, j) for c in range(2, 8) for k_, j in ORDER]
    qa = [int(x, 16) for x in Opt.qa]; qb = [int(x, 16) for x in Opt.qb]
    def take(n, cmax):
        m = 0
        while m < n and m < len(stream) and stream[m][0] <= cmax: m += 1
        r_ = stream[:m]; del stream[:m]
        return block(r_)
    a.lab("L_k0")
    a.vm = vms["A"]
    ool = Asm()
    def dmablock(name, role, items, wait=None):
        a.e("s_cbranch_vcc%s L_%s" % ("nz" if role == "A" else "z", name))
        if wait: a.waitvm(wait, lgkm=True)
        a.lab("L_%s_r" % name)
        ool.lab("L_%s" % name)
        ool.vm = a.vm if role == "A" else vms["B"]
        for it_ in items:
            if it_[1] is None: put(ool, fills[role]); fills[role] = []
            put(ool, [it_])
            put(ool, fills[role][:Opt.fillper]); fills[role] = fills[role][Opt.fillper:]
        if name == "e7": put(ool, fills[role]); fills[role] = []
        if wait: ool.waitvm(wait, lgkm=True)
        if role == "B": vms["B"] = ool.vm
        ool.e("s_branch L_%s_r" % name)
    a.ool = ool.l

    def fr(k):
        b = vF1 + 36 * (k % 2)
        return dict(x=b, w=b + 16, q=b + 32)
    def reads(k):
        c, s = divmod(k, 2); f = fr(k); sl = c % 3
        wo = sl * 16384 + s * 8192
        W = lambda i: [rdtr(f['w'] + 4 * i, vWA + i, wo), rdtr(f['w'] + 4 * i + 2, vWA + i, wo + 1024)]
        X = [rd128(f['x'] + 4 * b, vXA + 2 * s + (b >> 1), sl * 16384 + (b & 1) * 2048) for b in range(4)]
        return W(0) + X + W(2) + W(1) + W(3) + [rdtr(f['q'], vQA, sl * 4096 + s * 2048), rdtr(f['q'] + 2, vQA, sl * 4096 + s * 2048 + 256)]
    a.e("s_barrier")
    a.stamp(3)
    if Opt.kdiag or Opt.probe >= 18:
        kstamp(a, 2)
        a.e("s_waitcnt lgkmcnt(0)")
    for r in reads(0): a.e(r)
    if qa[0]: dmablock("d2", "A", take(qa[0], 2))
    for k in range(16):
        c, s = divmod(k, 2); f = fr(k)
        z = lambda x: None if k == 0 else x
        mf = []
        for n_, i in enumerate((0, 2, 1, 3)):
            for b in (range(4) if n_ % 2 == 0 else range(3, -1, -1)):
                d = vACC + 16 * b + 4 * i
                mf.append(mfma16(d, f['w'] + 4 * i, f['x'] + 4 * b, z(d)))
        for b in range(2): mf.append(mfma16(vAQ + 4 * b, f['q'], f['x'] + 4 * b, z(vAQ + 4 * b)))
        rds = reads(k + 1) if k < 15 else []
        if s == 0:
            a.e("s_waitcnt lgkmcnt(6)")
            for i, m in enumerate(mf):
                if i == 8: a.e("s_waitcnt lgkmcnt(8)")
                a.e(m)
                if i < len(rds): a.e(rds[i])
            continue
        a.e("s_waitcnt lgkmcnt(8)")
        for m in mf[:4]: a.e(m)
        if c <= 5:
            dmablock("e%d" % (c + 2), "B", take(qb[c], c + 2), "c%d" % (c + 1))
            assert not any(x[0] <= c + 1 for x in stream)
        if c == 7:
            a.e("s_waitcnt lgkmcnt(0)")
        elif c == 6 and Opt.stagger:
            a.e("s_waitcnt lgkmcnt(0)")
            a.e("s_cbranch_vccz L_st7")
            a.e("s_waitcnt vmcnt(0)")
            spin_counter(a, "kvf", True)
            a.e("s_barrier")
            a.e("s_setprio 1")
            for x, _ in kv_first_loads(a): a.e(x)
            a.lab("L_st7")
        elif c == 6:
            a.e("s_setprio 0")
            a.wait0(lgkm=True)
            spin_counter(a, "kvf", True)
            a.e("s_barrier")
            put(a, kv_first_loads(a))
        else:
            a.e("s_barrier")
        if c < 7 and ((Opt.kdiag and Opt.diag) or Opt.probe == 21 + c):
            kstamp(a, 3 + c)
            a.e("s_waitcnt lgkmcnt(0)")
        if c + 3 < 8:
            items = take(qa[c + 1], c + 3)
            if c == 4:
                items.append(("s_cmp_lg_u32 s%d, 0\ns_cbranch_scc1 L_d7_r\nbuffer_load_dword %s, off, %s, 0 sc1"
                              % (sW, v(vPOLL), srd(SDBG)), None))
            dmablock("d%d" % (c + 3), "A", items)
        for i, m in enumerate(mf[4:]):
            a.e(m)
            if i < len(rds): a.e(rds[i])
        if k == 11: assert not stream and not fills["A"] and not fills["B"]
        if k == 11 and Opt.stagger:
            a.e("s_cbranch_vccnz L_st6")
            a.e("s_setprio 0")
            a.wait0()
            a.e("s_barrier")
            put(a, kv_first_loads(a))
            a.lab("L_st6")
    a.stamp(4)

def phase1_L(a):
    a.lab("L_light")
    a.vm = []
    srd_words(a, [SWKV, SWV, SGATE])
    a.e("s_sub_u32 s%d, s%d, 14" % (sCNT, sM))
    a.e("s_lshl_b32 s%d, s%d, 16" % (sOLD, sCNT))
    a.e("s_lshl_b32 s%d, s%d, 13" % (sHST, sCNT))
    a.e("s_add_u32 s%d, s%d, s%d" % (sWH, sHST, sWK))
    a.e("s_xor_b32 s%d, s%d, 0x2000" % (sHST, sHST))
    a.e("s_add_u32 s%d, s%d, 0x2000" % (sA, sWK))
    a.e("s_waitcnt lgkmcnt(0)")
    a.stamp(2)
    a.e("s_mov_b32 s%d, s%d" % (SWV, sTMPP))
    a.e("s_mov_b32 s%d, s%d" % (SWV + 1, sTMPP + 1))
    def xdma(c, base, so):
        a.vmop("s_add_u32 m0, s%d, 0x%x\ns_nop 0\nbuffer_load_dwordx4 %s, %s, s%d offen offset:%d lds"
               % (base, LL_X + c * 16384 - c * 128, v(vDX), srd(SX), so, c * 128), "c%d" % c)
    def wdma(u):
        for t, rs in enumerate((SWKV, SWV)):
            a.vmop("s_add_u32 m0, s%d, 0x%x\ns_nop 0\nbuffer_load_dwordx4 %s, %s, s%d offen lds"
                   % (sWK, LL_W + t * 16384 + u * 8192, v(vL16), srd(rs), sA if u else sWK), "w")
    wdma(0)
    a.vmop("s_mov_b32 m0, s%d\ns_nop 0\nbuffer_load_dwordx4 %s, %s, 0 offen lds" % (sHST, v(vL16), srd(SGATE)), "w")
    for c in range(8):
        if c == 4: wdma(1)
        xdma(c, sWH, sOLD)
        if c in (1, 3, 5): a.e("s_barrier")
    setup_rd(a)
    a.e("v_lshrrev_b32 v3, 5, v0")
    a.e("v_bfrev_b32 v5, v4")
    a.e("v_lshrrev_b32 v5, 30, v5")
    a.e("s_cmp_ge_u32 s%d, 2" % sLO)
    a.e("s_cselect_b64 vcc, -1, 0")
    a.e("v_cndmask_b32 v4, v5, v4, vcc")
    a.e("v_lshl_add_u32 %s, v3, 3, v2" % v(vWA))
    a.e("v_lshlrev_b32 %s, 5, %s" % (v(vWA), v(vWA)))
    a.e("v_lshl_add_u32 %s, v4, 3, %s" % (v(vWA), v(vWA)))
    a.e("s_lshr_b32 s%d, s%d, 1" % (sA, sLO))
    a.e("s_lshl_b32 s%d, s%d, 14" % (sA, sA))
    a.e("s_add_u32 s%d, s%d, 0x%x" % (sA, sA, LL_W))
    a.e("v_add_u32 %s, s%d, %s" % (v(vWA), sA, v(vWA)))
    a.e("v_lshl_add_u32 %s, v3, 4, s%d" % (v(vWA + 1), sHST))
    a.e("s_and_b32 s%d, s%d, 1" % (sA, sLO))
    a.e("s_lshl_b32 s%d, s%d, 1" % (sB, sCNT))
    a.e("s_add_u32 s%d, s%d, s%d" % (sCNT, sA, sB))
    a.e("s_lshl_b32 s%d, s%d, 12" % (sA, sCNT))
    a.e("v_and_b32 v2, 31, v0")
    a.e("v_bfe_u32 v4, v0, 1, 3")
    a.e("v_xor_b32 v4, v4, v3")
    a.e("v_lshlrev_b32 v4, 4, v4")
    a.e("v_lshl_add_u32 v4, v2, 7, v4")
    a.e("v_add_u32 %s, s%d, v4" % (v(vLX), sA))
    for s in range(1, 4): a.e("v_xor_b32 %s, %d, %s" % (v(vLX + s), 32 * s, v(vLX)))
    for s in range(4): a.e("v_add_u32 %s, 0x10000, %s" % (v(vLX + 4 + s), v(vLX + s)))
    setup_oclr(a)
    vm0 = list(a.vm)
    a.e("s_cmp_lg_u32 s%d, 0" % sHI)
    a.e("s_cbranch_scc1 L_lB")
    a.e("s_not_b64 %s, %s" % (sp(sTMPP), sp(sVM)))
    a.e("s_cmp_ge_u32 s%d, 2" % sLO)
    a.e("s_cbranch_scc1 L_lV")
    def chain(kind):
        a.vm = list(vm0)
        def fr(k):
            b = vFR + 8 * (k % 4)
            return b, b + 4
        def reads(k):
            c, s = divmod(k, 4); x, w = fr(k)
            r = [rd128(x, vLX + s + 4 * (c >> 2), (c & 3) * 16384), rdtr(w, vWA, k * 512), rdtr(w + 2, vWA, k * 512 + 128)]
            if kind == "K":
                r += ["s_mov_b64 exec, %s" % sp(sTMPP), rd128(w, vWA + 1, k * 32), "s_mov_b64 exec, -1"]
            return r
        for q in range(4):
            a.waitvm("c%d" % (2 * q + 1))
            a.e("s_barrier")
            nr = 4 if kind == "K" else 3
            for k in range(8 * q, 8 * q + 2):
                for r in reads(k): a.e(r)
            for k in range(8 * q, 8 * q + 8):
                if k + 2 < 8 * q + 8:
                    for r in reads(k + 2): a.e(r)
                left = min(2, 8 * q + 7 - k)
                a.e("s_waitcnt lgkmcnt(%d)" % (left * nr))
                x, w = fr(k)
                cc = None if k == 0 else vACC
                a.e(mfma(vACC, w, x, cc) if kind == "K" else mfma(vACC, x, w, cc))
        a.e("s_lshl_b32 s%d, s%d, 2" % (sA, sG))
        a.e("s_add_u32 s%d, s%d, s%d" % (sA, sA, sCNT))
        a.e("s_nop 12")
        if kind == "K":
            a.e("s_mov_b32 s%d, 0x%x" % (sC, f2u(0.25 * math.log2(math.e))))
            for i in range(8): a.e("v_mul_f32 %s, s%d, %s" % (v(vACC + i), sC, v(vACC + i)))
            a.e("v_mul_f32 %s, 0x%x, %s" % (v(vACC + 8), f2u(-math.log2(math.e)), v(vACC + 8)))
            a.e("v_exp_f32 %s, %s" % (v(vACC + 8), v(vACC + 8)))
            for i in range(4): a.e("v_cvt_pk_bf16_f32 %s, %s, %s" % (v(vFR + i), v(vACC + 2 * i), v(vACC + 2 * i + 1)))
            a.e("v_add_f32 %s, 1.0, %s" % (v(vACC + 8), v(vACC + 8)))
            a.e("v_rcp_f32 %s, %s" % (v(vACC + 8), v(vACC + 8)))
            a.e("s_add_u32 s%d, s%d, 63" % (sB, sA))
            a.e("s_and_b32 s%d, s%d, 63" % (sB, sB))
            a.e("s_lshl_b32 s%d, s%d, 11" % (sB, sB))
            a.e("buffer_store_dwordx4 %s, %s, %s, s%d offen sc1" % (v(vFR, 4), v(vL16), srd(SKV), sB))
            a.e("s_lshl_b32 s%d, s%d, 7" % (sB, sA))
            a.e("s_add_u32 s%d, s%d, 0x%x" % (sB, sB, WS_G))
            a.e("s_mov_b32 exec_hi, 0")
            a.e("buffer_store_dword %s, %s, %s, s%d offen sc1" % (v(vACC + 8), v(vGA), srd(SWS), sB))
            a.e("s_mov_b64 exec, -1")
        else:
            for i in range(8): a.e("v_cvt_pk_bf16_f32 %s, %s, %s" % (v(vFR + i), v(vACC + 2 * i), v(vACC + 2 * i + 1)))
            a.e("v_bfe_u32 v2, v0, 4, 1")
            a.e("v_add_u32 v2, s%d, v2" % sA)
            a.e("v_and_b32 v2, 63, v2")
            a.e("v_lshl_add_u32 v2, v2, 11, %s" % v(vL16))
            for i in range(4): a.e("v_cndmask_b32 %s, %s, %s, %s" % (v(vFR + i), v(vFR + 4 + i), v(vFR + i), sp(sVM)))
            a.e("buffer_store_dwordx4 %s, v2, %s, 0 offen offset:1024 sc1" % (v(vFR, 4), srd(SKV)))
        a.e("s_branch L_lJ")
    chain("K")
    a.lab("L_lV")
    chain("V")
    a.lab("L_lB")
    a.vm = list(vm0)
    a.e("s_cmp_lg_u32 s%d, 14" % sM)
    a.e("s_cbranch_scc1 L_nozf")
    a.e("s_cmp_lg_u32 s%d, 4" % sW)
    a.e("s_cbranch_scc1 L_nozf")
    a.e("v_lshlrev_b32 v2, 7, v0")
    a.e("s_lshl_b32 s%d, s%d, 11" % (sA, sG))
    a.e("s_add_u32 s%d, s%d, 0x%x" % (sA, sA, WS_HFLAG))
    a.e("s_mov_b64 exec, 0xffff")
    a.e("buffer_store_dword %s, v2, %s, s%d offen sc1" % (v(vZERO), srd(SWS), sA))
    a.e("s_mov_b64 exec, -1")
    a.lab("L_nozf")
    for q in range(4):
        a.waitvm("c%d" % (2 * q + 1))
        a.e("s_barrier")
    a.lab("L_lJ")
    a.e("v_lshrrev_b32 v3, 2, v0")
    a.e("v_lshlrev_b32 v3, 10, v3")
    a.e("v_lshrrev_b32 v4, 5, v0")
    a.e("v_lshlrev_b32 v4, 1, v4")
    a.e("v_xor_b32 v4, v4, v0")
    a.e("v_and_b32 v4, 3, v4")
    a.e("v_lshl_add_u32 v3, v4, 4, v3")
    a.e("s_lshl_b32 s%d, s%d, 14" % (sA, sW))
    a.e("s_lshl_b32 s%d, s%d, 6" % (sB, sHP))
    a.e("s_add_u32 s%d, s%d, s%d" % (sA, sA, sB))
    a.e("v_add_u32 %s, s%d, v3" % (v(vDQ), sA))
    a.e("s_xor_b32 s%d, s%d, 0x2000" % (sWH, sWH))
    a.e("s_xor_b32 s%d, s%d, 0x10000" % (sOLD, sOLD))
    a.wait0(lgkm=True)
    a.e("s_barrier")
    a.e("s_cmp_lg_u32 s%d, 0" % sW)
    a.e("s_cbranch_scc1 L_noat")
    a.e("s_mov_b64 exec, 1")
    a.e("buffer_atomic_add %s, off, %s, 0 sc1" % (v(vONE), srd(SDBG)))
    a.e("s_mov_b64 exec, -1")
    a.lab("L_noat")
    a.stamp(3)
    for c in range(8): xdma(c, sWH, sOLD)
    for p in range(4):
        a.e("s_add_u32 m0, s%d, 0x%x" % (sWK, LL_WQ + p * 8192))
        a.e("s_mov_b32 s%d, 0x%x" % (sA, p * 128 * 1024))
        a.e("buffer_load_dwordx4 %s, %s, s%d offen lds" % (v(vDQ), srd(SWQ), sA))
    setup_attn(a)
    if Opt.touch & 2:
        a.e("s_lshl_b32 s%d, s%d, 1" % (sA, sG))
        a.e("s_add_u32 s%d, s%d, s%d" % (sA, sA, sM))
        a.e("s_sub_u32 s%d, s%d, 14" % (sA, sA))
        a.e("s_lshl_b32 s%d, s%d, 3" % (sA, sA))
        a.e("s_add_u32 s%d, s%d, s%d" % (sA, sA, sW))
        a.e("v_lshlrev_b32 v2, 15, v0")
        a.e("s_lshl_b32 s%d, s%d, 7" % (sA, sA))
        a.e("buffer_load_dword %s, v2, %s, s%d offen" % (v(vPOLL), srd(SWO), sA))
        a.e("buffer_load_dword %s, v2, %s, s%d offen" % (v(vPOLL), srd(SWD), sA))
    a.e("s_lshl_b32 s%d, s%d, 12" % (sA, sLO))
    a.e("v_add_u32 %s, s%d, %s" % (v(vXA), sA, v(vXA)))
    a.e("v_xor_b32 %s, 64, %s" % (v(vXA + 1), v(vXA)))
    a.e("v_add_u32 %s, 0x10000, %s" % (v(vXA + 2), v(vXA)))
    a.e("v_add_u32 %s, 0x10000, %s" % (v(vXA + 3), v(vXA + 1)))
    a.e("v_add_u32 %s, 0x%x, %s" % (v(vQA), LL_WQ, v(vQA)))
    a.e("s_waitcnt vmcnt(%d)" % (2 if Opt.touch & 2 else 0))
    a.e("s_barrier")
    def fr(k): return vFR + 12 * (k % 3)
    def reads(k):
        c, s = divmod(k, 2); f = fr(k)
        return [rd128(f + 4 * b, vXA + s + 2 * (c >> 2), (c & 3) * 16384 + b * 2048) for b in range(2)] + \
               [rdtr(f + 8, vQA, k * 2048), rdtr(f + 10, vQA, k * 2048 + 256)]
    for k in range(2):
        for r in reads(k): a.e(r)
    for k in range(16):
        a.e("s_waitcnt lgkmcnt(%d)" % (4 * min(1, 15 - k)))
        for b in range(2): a.e(mfma16(vAQ + 4 * b, fr(k) + 8, fr(k) + 4 * b, None if k == 0 else vAQ + 4 * b))
        if k + 2 < 16:
            for r in reads(k + 2): a.e(r)
    spin_counter(a, "kvl", False)
    a.e("s_barrier")
    for s, t in kv_first_loads(a): a.e(s)
    a.wait0()
    a.stamp(4)
    a.e("s_branch L_join")

def gelu_tile(a, ti, scalar=False):
    acc = vACC + 16 * ti
    t = vFR
    o = vFR + 8 + 4 * ti
    pk = lambda r: v(r, 2)
    if scalar:
        for i in range(8): a.e("v_mul_f32 %s, %s, %s" % (v(t + i), v(acc + i), v(acc + i)))
        for i in range(8): a.e("v_fma_f32 %s, %s, %s, %s" % (v(t + i), v(t + i), v(vC0 + 1), v(vC0)))
        for i in range(8): a.e("v_mul_f32 %s, %s, %s" % (v(t + i), v(t + i), v(acc + i)))
        for i in range(8): a.e("v_exp_f32 %s, %s" % (v(t + i), v(t + i)))
        for i in range(8): a.e("v_add_f32 %s, 1.0, %s" % (v(t + i), v(t + i)))
        for i in range(8): a.e("v_rcp_f32 %s, %s" % (v(t + i), v(t + i)))
        for i in range(8): a.e("v_mul_f32 %s, %s, %s" % (v(acc + i), v(acc + i), v(acc + 8 + i)))
        for i in range(8): a.e("v_mul_f32 %s, %s, %s" % (v(acc + i), v(acc + i), v(t + i)))
    R4, R8 = (range(0), range(0)) if scalar else (range(4), range(8))
    for i in R4: a.e("v_pk_mul_f32 %s, %s, %s" % (pk(t + 2 * i), pk(acc + 2 * i), pk(acc + 2 * i)))
    for i in R4: a.e("v_pk_fma_f32 %s, %s, %s, %s op_sel:[0,1,0] op_sel_hi:[1,1,0]" % (pk(t + 2 * i), pk(t + 2 * i), pk(vC0), pk(vC0)))
    for i in R4: a.e("v_pk_mul_f32 %s, %s, %s" % (pk(t + 2 * i), pk(t + 2 * i), pk(acc + 2 * i)))
    for i in R8: a.e("v_exp_f32 %s, %s" % (v(t + i), v(t + i)))
    for i in R4: a.e("v_pk_add_f32 %s, %s, 1.0 op_sel_hi:[1,0]" % (pk(t + 2 * i), pk(t + 2 * i)))
    for i in R8: a.e("v_rcp_f32 %s, %s" % (v(t + i), v(t + i)))
    for i in R4: a.e("v_pk_mul_f32 %s, %s, %s" % (pk(acc + 2 * i), pk(acc + 2 * i), pk(acc + 8 + 2 * i)))
    for i in R4: a.e("v_pk_mul_f32 %s, %s, %s" % (pk(acc + 2 * i), pk(acc + 2 * i), pk(t + 2 * i)))
    for i in range(4): a.e("v_cvt_pk_bf16_f32 %s, %s, %s" % (v(o + i), v(acc + 2 * i), v(acc + 2 * i + 1)))
    a.vmop("buffer_store_dwordx4 %s, %s, %s, s%d offen offset:%d sc1" % (v(o, 4), v(vHA), srd(SWS), sD if ti >> 1 else sHST, (ti & 1) * 256), "hst")

def gelu_head(a):
    a.e("s_bitcmp1_b32 s%d, 0" % sLO)
    a.e("s_cselect_b32 s%d, 0x%x, 0x%x" % (sD, (-112 * 1024) & 0xffffffff, 0))
    a.e("s_cselect_b32 s%d, 0, 0x%x" % (sC, 112 * 1024))
    a.e("s_add_u32 s%d, s%d, s%d" % (sD, sD, sC))
    a.e("s_add_u32 s%d, s%d, s%d" % (sD, sD, sHST))

def gelu_sub(a):
    if Opt.stagger and Opt.gsc:
        a.lab("L_geluA")
        gelu_head(a)
        for ti in range(Opt.gsc): gelu_tile(a, ti, True)
        a.e("s_branch L_gelu%d" % Opt.gsc)
    else:
        a.lab("L_geluA")
    a.lab("L_geluB")
    gelu_head(a)
    for ti in range(4):
        gelu_tile(a, ti)
        a.lab("L_gelu%d" % (ti + 1))
    a.e("s_setpc_b64 %s" % sp(sRET))

def Yseg(hset, toggle=False):
    out = []
    for t in range(2):
        S, Sn = vS + 16 * t, vS + 16 * (1 - t)
        K, V0, V1 = vKF + 4 * t, vV + 8 * t, vV + 8 * t + 4
        for j in range(8):
            out.append("v_exp_f32 %s, %s" % (v(vE + 2 * (j % 2)), v(S + 2 * j)))
            out.append("v_exp_f32 %s, %s" % (v(vE + 2 * (j % 2) + 1), v(S + 2 * j + 1)))
            jj = (j - 1) % 8
            out.append("v_cvt_pk_bf16_f32 %s, %s, %s" % (v(vP + jj), v(vE + 2 * (jj % 2)), v(vE + 2 * (jj % 2) + 1)))
            if j == 1: out.append(mfma(vO, V1, vP + 4, vO))
            if j == 3: out.append(mfma(Sn, K, vQ, None))
            if hset is None:
                if j == 7: out.append(mfma(vO, V0, vP, vO))
            else:
                if j == 5: out.append(mfma(vO, V0, vP, vO))
                if j == 6 and t == 1 and toggle:
                    out.append("v_xor_b32 %s, 0x4000, %s" % (v(vKVA), v(vKVA)))
                    out.append("v_xor_b32 %s, 0x8000, %s" % (v(vWDA), v(vWDA)))
                if j == 7: out.append(mfma(vD + 16 * t, vWF + 4 * t, vH + 4 * hset, vD + 16 * t))
    return out

def kv_reads(off):
    r = [rd128(vKF, vKVA, off), rd128(vKF + 4, vKVA, off + 2048), "s_mov_b64 exec, %s" % sp(sVM)]
    for t in range(2):
        r += [rd128(vV + 8 * t, vKVA, off + 2048 * t + 1024), rd128(vV + 8 * t + 4, vKVA, off + 2048 * t + 1280)]
    r.append("s_mov_b64 exec, -1")
    return r
def wd_reads(dst, addr, off):
    r = []
    for c in range(2):
        r += [rdtr(dst + 4 * c, addr, off + 512 * c), rdtr(dst + 4 * c + 2, addr, off + 512 * c + 1024)]
    return r

def wdrow(sg): return (32 * (sg >> 1) + 8 * (sg & 1)) * 1024

def attention(a, role):
    A = role == "A"
    def kvdma(u):
        a.vmop("s_add_u32 m0, s%d, 0x%x\ns_add_u32 s%d, s%d, 0x%x\nbuffer_load_dwordx4 %s, %s, s%d offen sc1 lds"
               % (sWK, L_KV + (u % 4) * 8192, sA, sWK, u * 8192, v(vL16), srd(SKV), sA), "kv%d" % u)
    def wddma(sg):
        a.vmop("s_add_u32 m0, s%d, 0x%x\ns_add_u32 s%d, s%d, 0x%x\nbuffer_load_dwordx4 %s, %s, s%d offen lds"
               % (sWK, L_WD + ((sg + 3) % 8) * 8192, sA, sWDOFF, wdrow(sg), v(vWDV), srd(SWD), sA), "wd%d" % sg)
    def wodma(j):
        a.vmop("s_add_u32 m0, s%d, 0x%x\ns_add_u32 s%d, s%d, 0x%x\nbuffer_load_dwordx4 %s, %s, s%d offen lds"
               % (sWK, L_WO + j * 8192, sA, sB, j * 16384, v(vWDV), srd(SWO), sA), "wo")
    def hload(sg, dst):
        a.vmop("s_add_u32 s%d, s%d, 0x%x\nbuffer_load_dwordx4 %s, %s, %s, s%d offen sc1"
               % (sA, sHOFF, sg * 1024, v(dst, 4), v(vL16), srd(SWS), sA), "h%d" % sg)
    for n in range(11):
        if not A and n == 0: a.e("s_barrier")
        tags = []
        if A and n % 2 == 1: tags.append("kv%d" % ((n + 1) // 2))
        if not A and n % 2 == 0: tags.append("kv%d" % ((n + 2) // 2))
        if n == 2: tags.append("hst")
        if n == 10: tags.append("wd0")
        if n == 8 and A:
            a.e("s_cmp_lg_u32 s%d, 0" % sW)
            a.e("s_cbranch_scc1 L_hf_done")
            a.e("s_mov_b32 s%d, 0x4000" % sB)
            a.e("s_waitcnt vmcnt(2)")
            a.lab("L_hf_chk")
            a.e("v_cmp_ne_u32 vcc, 1, %s" % v(vPOLL))
            a.e("s_cbranch_vccz L_hf_done")
            a.e("s_sleep 2")
            a.e("buffer_load_dword %s, %s, %s, 0 offen sc1" % (v(vPOLL), v(vFLA), srd(SWS)))
            a.e("s_sub_u32 s%d, s%d, 1" % (sB, sB))
            a.e("s_cmp_lg_u32 s%d, 0" % sB)
            a.e("s_waitcnt vmcnt(0)")
            a.e("s_cbranch_scc1 L_hf_chk")
            a.lab("L_hf_done")
        a.waitvm(tags)
        if n == 3 and not A:
            a.e("s_cmp_ge_u32 s%d, 14" % sM)
            a.e("s_cbranch_scc1 L_nohf")
            a.e("s_cmp_lg_u32 s%d, 4" % sW)
            a.e("s_cbranch_scc1 L_nohf")
            a.e("s_lshl_b32 s%d, s%d, 4" % (sA, sG))
            a.e("s_add_u32 s%d, s%d, s%d" % (sA, sA, sM))
            a.e("s_lshl_b32 s%d, s%d, 7" % (sA, sA))
            a.e("s_add_u32 s%d, s%d, 0x%x" % (sA, sA, WS_HFLAG))
            a.e("s_mov_b64 exec, 1")
            a.e("buffer_store_dword %s, off, %s, s%d sc1" % (v(vONE), srd(SWS), sA))
            a.e("s_mov_b64 exec, -1")
            a.lab("L_nohf")
        for r in kv_reads((n % 8) * 4096): a.e(r)
        if n == 7 and A:
            a.e("s_cmp_lg_u32 s%d, 0" % sW)
            a.e("s_cbranch_scc1 L_hf_nol")
            a.e("buffer_load_dword %s, %s, %s, 0 offen sc1" % (v(vPOLL), v(vFLA), srd(SWS)))
            a.lab("L_hf_nol")
        if n == 0:
            kvdma(2); kvdma(3)
            a.e("s_lshr_b32 s%d, s%d, 1" % (sC, sW))
            a.e("s_mul_i32 s%d, s%d, %d" % (sWDOFF, sC, 448 * 1024))
            a.e("s_and_b32 s%d, s%d, 1" % (sB, sW))
            a.e("s_lshl_b32 s%d, s%d, 14" % (sA, sB))
            a.e("s_add_u32 s%d, s%d, s%d" % (sWDOFF, sWDOFF, sA))
            a.e("s_lshl_b32 s%d, s%d, 1" % (sA, sT))
            a.e("s_add_u32 s%d, s%d, s%d" % (sA, sA, sB))
            a.e("s_mul_i32 s%d, s%d, 112" % (sA, sA))
            a.e("s_mul_i32 s%d, s%d, 28" % (sB, sC))
            a.e("s_add_u32 s%d, s%d, s%d" % (sA, sA, sB))
            a.e("s_lshl_b32 s%d, s%d, 10" % (sA, sA))
            a.e("s_add_u32 s%d, s%d, 0x%x" % (sHOFF, sA, WS_HF))
        if (A and n % 2 == 1 and n >= 3): kvdma((n + 5) // 2)
        if (not A and n % 2 == 0 and n >= 2): kvdma((n + 6) // 2)
        if 1 <= n <= 3:
            a.e("s_lshr_b32 s%d, s%d, 1" % (sB, sW))
            a.e("s_lshl_b32 s%d, s%d, 17" % (sB, sB))
            a.e("s_and_b32 s%d, s%d, 1" % (sC, sW))
            a.e("s_lshl_b32 s%d, s%d, 13" % (sC, sC))
            a.e("s_add_u32 s%d, s%d, s%d" % (sB, sB, sC))
            for j in {1: (0, 1, 2), 2: (3, 4, 5), 3: (6, 7)}[n]: wodma(j)
        if n >= 4: wddma(n - 4)
        if n == 9:
            hload(0, vH + 12); hload(1, vH + 0); hload(24, vH + 16); hload(25, vH + 20)
        if n == 10:
            hload(26, vH + 24); hload(27, vH + 28); hload(2, vH + 4)
        a.e("s_waitcnt lgkmcnt(0)")
        a.e("s_call_b64 %s, L_Y%s" % (sp(sRET), role))
    a.e("s_add_u32 s%d, s%d, 0x%x" % (sHOFF, sHOFF, 3 * 1024))
    a.e("s_add_u32 s%d, s%d, 0x%x" % (sWDOFF, sWDOFF, wdrow(7)))
    a.e("s_mov_b32 s%d, 0x%x" % (sM0WD, ((7 + 3) % 8) * 8192))
    u0 = 8 if A else 9
    a.e("s_add_u32 s%d, s%d, 0x%x" % (sKVOFF, sWK, u0 * 8192))
    a.e("s_mov_b32 s%d, 6" % sCNT)
    a.waitvm(["h0", "wd1", "kv6"] if A else ["h0", "wd1"])
    a.e("s_branch L_loop%s_in" % role)
    a.l.append(".p2align 6")
    a.lab("L_loop%s" % role)
    for p in range(4):
        a.e("s_waitcnt vmcnt(5)")
        if p == 3: a.lab("L_loop%s_in" % role)
        for r in kv_reads(p * 4096): a.e(r)
        for r in wd_reads(vWF, vWDA, p * 8192): a.e(r)
        a.e("buffer_load_dwordx4 %s, %s, %s, s%d offen sc1" % (v(vH + 4 * ((p + 3) % 4), 4), v(vL16), srd(SWS), sHOFF))
        a.e("s_add_u32 m0, s%d, s%d" % (sWK, sM0WD))
        a.e("s_add_u32 s%d, s%d, 0x400" % (sHOFF, sHOFF))
        a.e("buffer_load_dwordx4 %s, %s, s%d offen lds" % (v(vWDV), srd(SWD), sWDOFF))
        a.e("s_add_u32 s%d, s%d, 0x%x" % (sWDOFF, sWDOFF, 0x6000 if p & 1 else 0x2000))
        a.e("s_add_u32 s%d, s%d, 0x2000" % (sM0WD, sM0WD))
        a.e("s_and_b32 s%d, s%d, 0xffff" % (sM0WD, sM0WD))
        if (p % 2 == 1) == A:
            a.e("s_and_b32 s%d, s%d, 0x7fff" % (sA, sKVOFF))
            a.e("s_add_u32 m0, s%d, 0x%x" % (sA, L_KV))
            a.e("s_nop 0")
            a.e("buffer_load_dwordx4 %s, %s, s%d offen sc1 lds" % (v(vL16), srd(SKV), sKVOFF))
            a.e("s_add_u32 s%d, s%d, 0x2000" % (sKVOFF, sKVOFF))
        if p == 3:
            a.e("s_sub_u32 s%d, s%d, 1" % (sCNT, sCNT))
            a.e("s_cmp_lg_u32 s%d, 0" % sCNT)
        a.e("s_waitcnt lgkmcnt(0)")
        if A: a.e("s_barrier")
        for x in Yseg(p, toggle=(p == 3)): a.e(x)
        if not A:
            if p == 3: a.e("s_cbranch_scc0 L_tail")
            a.e("s_barrier")
    a.e(("s_cbranch_scc1 L_loop%s" if A else "s_branch L_loop%s") % role)

def ysubs(a):
    for role in "AB":
        a.l.append(".p2align 6")
        a.lab("L_Y%s" % role)
        if role == "A": a.e("s_barrier")
        for x in Yseg(None): a.e(x)
        if role == "B": a.e("s_barrier")
        a.e("s_setpc_b64 %s" % sp(sRET))

def transition(a):
    a.lab("L_join")
    a.e("s_cmp_lg_u32 s%d, 0" % sHI)
    a.e("s_cbranch_scc1 L_trB")
    vm0 = list(a.vm)
    for role in "AB":
        a.vm = list(vm0)
        A = role == "A"
        if not A: a.lab("L_trB")
        def qfin():
            for i in range(4): a.e("v_cvt_pk_bf16_f32 %s, %s, %s" % (v(vQ + i), v(vAQ + 2 * i), v(vAQ + 2 * i + 1)))
            for i in range(4, 7): a.e("v_mov_b32 %s, 0" % v(vP + i))
            a.e("v_permlane16_swap_b32 %s, %s" % (v(vQ), v(vQ + 2)))
            a.e("v_permlane16_swap_b32 %s, %s" % (v(vQ + 1), v(vQ + 3)))
        def gelu():
            a.e("s_cmp_ge_u32 s%d, 14" % sM)
            a.e("s_cbranch_scc1 L_nog%s" % role)
            a.e("s_call_b64 %s, L_gelu%s" % (sp(sRET), role))
            a.vm += ["hst"] * 4
            a.lab("L_nog%s" % role)
        if A:
            a.e("s_setprio 1")
            gelu(); qfin()
            a.waitvm(["k0", "kv0", "kv1"])
            a.e("s_barrier")
        else:
            a.waitvm(["k0", "kv0", "kv1"])
            a.e("s_barrier")
            gelu(); qfin()
            a.e("s_nop 1")
        a.e(mfma(vS, vK0, vQ, None))
        a.stamp(5)
        attention(a, role)
        if A: a.e("s_branch L_tail")

def tail(a):
    a.lab("L_tail")
    a.e("v_cvt_pk_bf16_f32 %s, %s, %s" % (v(vP + 7), v(vE + 2), v(vE + 3)))
    a.stamp(6)
    a.e("s_setprio 0")
    a.e("s_mov_b32 s%d, 0x%x" % (sC, f2u(2.0 ** -16)))
    a.e(mfma(vO, vV1L, vP + 4, vO))
    a.e("s_mov_b32 s%d, 0x%x" % (sD, f2u(2.0 ** 100)))
    a.e("s_nop 10")
    t = vFR
    a.e("v_rcp_f32 %s, %s" % (v(t + 2), v(vO + 8)))
    a.e("v_pk_mul_f32 %s, %s, 0 op_sel_hi:[1,0]" % (v(t, 2), v(vO, 2)))
    for i in range(1, 4): a.e("v_pk_fma_f32 %s, %s, 0, %s op_sel_hi:[1,0,1]" % (v(t, 2), v(vO + 2 * i, 2), v(t, 2)))
    a.e("v_add_f32 %s, %s, %s" % (v(t), v(t), v(t + 1)))
    a.e("v_add_f32 %s, %s, %s" % (v(t), v(t), v(vO + 8)))
    a.e("v_cmp_nle_f32 vcc, s%d, %s" % (sC, v(t)))
    a.e("v_cmp_nge_f32 %s, s%d, %s" % (sp(sTMPP), sD, v(t)))
    a.e("s_or_b64 vcc, vcc, %s" % sp(sTMPP))
    a.e("s_branch L_fb" if Opt.force_fb else "s_cbranch_scc1 L_fb")
    a.lab("L_fbret")
    a.e("v_mul_f32 %s, %s, %s" % (v(t + 2), v(t + 2), v(vGP)))
    for i in range(4): a.e("v_pk_mul_f32 %s, %s, %s op_sel_hi:[1,0]" % (v(vO + 2 * i, 2), v(vO + 2 * i, 2), v(t + 2, 2)))
    for i in range(4): a.e("v_cvt_pk_bf16_f32 %s, %s, %s" % (v(vP + i), v(vO + 2 * i), v(vO + 2 * i + 1)))
    for i in range(4): a.e("v_min_u32 %s, -2, %s" % (v(vP + i), v(vP + i)))
    a.e("buffer_store_dwordx4 %s, %s, %s, s%d offen sc1" % (v(vP, 4), v(vL16), srd(SWS), sOST))
    a.e("s_waitcnt vmcnt(1)")
    a.e("s_barrier")
    hreg = {21: vH + 0, 22: vH + 4, 23: vH + 8, 24: vH + 16, 25: vH + 20, 26: vH + 24, 27: vH + 28}
    wf = [vFR, vFR + 8, vFR + 16]
    for i in range(2):
        for r in wd_reads(wf[i], vWDA, i * 8192): a.e(r)
    for i in range(7):
        if i + 2 < 7:
            for r in wd_reads(wf[(i + 2) % 3], vWDA, (i + 2) * 8192): a.e(r)
        a.e("s_waitcnt lgkmcnt(%d)" % (4 * min(2, 6 - i)))
        for c in range(2): a.e(mfma(vD + 16 * c, wf[i % 3] + 4 * c, hreg[21 + i], vD + 16 * c))
    a.e("s_barrier")
    a.e("v_add_u32 %s, 0x%x, %s" % (v(vWDA), L_WO, v(vWDA)))
    a.e("v_sub_f32 %s, 1.0, %s" % (v(vGC), v(vGC)))
    a.e("s_waitcnt vmcnt(0)")
    a.stamp(7)
    for j in range(8):
        if j == 4: a.e("s_add_u32 s%d, s%d, 0x1000" % (sA, sOLD))
        a.e("buffer_load_dwordx4 %s, %s, %s, s%d offen offset:%d sc1" % (v(vS + 4 * j, 4), v(vL16), srd(SWS), sOLD if j < 4 else sA, (j % 4) * 1024))
    for i in range(2):
        for r in wd_reads(wf[i], vWDA, i * 8192): a.e(r)
    for i in range(16): a.e("v_pk_mul_f32 %s, %s, %s op_sel:[0,1] op_sel_hi:[1,1]" % (v(vD + 2 * i, 2), v(vD + 2 * i, 2), v(vGP, 2)))
    aw = vXA
    ar = vWA
    a.e("v_and_b32 v2, 31, v0")
    a.e("v_lshrrev_b32 v3, 5, v0")
    a.e("v_and_b32 v4, 7, v0")
    a.e("v_xor_b32 v3, v3, v4")
    a.e("v_lshlrev_b32 v3, 4, v3")
    a.e("v_lshl_add_u32 v3, v2, 8, v3")
    a.e("s_and_b32 s%d, s%d, 1" % (sB, sW))
    a.e("s_lshl_b32 s%d, s%d, 15" % (sB, sB))
    a.e("s_lshr_b32 s%d, s%d, 1" % (sC, sW))
    a.e("s_lshl_b32 s%d, s%d, 13" % (sD, sC))
    a.e("s_add_u32 s%d, s%d, s%d" % (sD, sD, sB))
    a.e("v_add_u32 %s, s%d, v3" % (v(aw), sD))
    for j in range(1, 4): a.e("v_xor_b32 %s, %d, %s" % (v(aw + j), 32 * j, v(aw)))
    a.e("v_lshrrev_b32 v2, 3, v0")
    a.e("v_lshlrev_b32 v3, 1, v4")
    a.e("v_xor_b32 v3, v3, v2")
    a.e("v_lshlrev_b32 v3, 4, v3")
    a.e("v_lshl_add_u32 v3, v2, 8, v3")
    a.e("s_lshl_b32 s%d, s%d, 11" % (sD, sC))
    a.e("s_add_u32 s%d, s%d, s%d" % (sD, sD, sB))
    a.e("v_add_u32 %s, s%d, v3" % (v(ar), sD))
    a.e("v_xor_b32 %s, 16, %s" % (v(ar + 1), v(ar)))
    a.e("v_lshlrev_b32 v4, 4, v4")
    a.e("v_lshl_add_u32 %s, v2, 10, v4" % v(ar + 2))
    a.e("s_lshl_b32 s%d, s%d, 13" % (sC, sC))
    a.e("s_add_u32 s%d, s%d, s%d" % (sB, sB, sC))
    a.e("s_lshl_b32 s%d, s%d, 16" % (sC, sT))
    a.e("s_add_u32 s%d, s%d, s%d" % (sB, sB, sC))
    a.e("s_lshl_b32 s%d, s%d, 7" % (sC, sCB))
    a.e("s_add_u32 s%d, s%d, s%d" % (sCNT, sB, sC))
    a.e("s_mov_b32 s%d, 0x2000" % sB)
    for j in range(8):
        o = vS + 4 * j
        if j + 2 < 8:
            for r in wd_reads(wf[(j + 2) % 3], vWDA, (j + 2) * 8192): a.e(r)
        a.lab("L_ochk%d" % j)
        a.e("s_waitcnt vmcnt(%d)" % (7 - j))
        a.e("v_max3_u32 v2, %s, %s, %s" % (v(o), v(o + 1), v(o + 2)))
        a.e("v_max_u32 v2, v2, %s" % v(o + 3))
        a.e("v_cmp_eq_u32 vcc, -1, v2")
        a.e("s_cbranch_vccnz L_ore%d" % j)
        a.lab("L_ook%d" % j)
        a.e("s_waitcnt lgkmcnt(%d)" % (4 * min(2, 7 - j)))
        for c in range(2): a.e(mfma(vD + 16 * c, wf[j % 3] + 4 * c, o, vD + 16 * c))
    a.stamp(8)
    a.e("s_nop 10")
    for c in range(2):
        for j in range(4):
            a.e("ds_write_b128 %s, %s offset:%d" % (v(aw + j), v(vD + 16 * c + 4 * j, 4), 128 * c))
    a.e("s_waitcnt lgkmcnt(0)")
    a.e("s_barrier")
    for p in range(4):
        for h in range(2): a.e(rd128(vS + 8 * p + 4 * h, ar + h, p * 8192))
    for p in range(1, 4):
        a.e("s_waitcnt lgkmcnt(%d)" % (6 - 2 * p))
        for i in range(4): a.e("v_pk_add_f32 %s, %s, %s" % (v(vS + 2 * i, 2), v(vS + 2 * i, 2), v(vS + 8 * p + 2 * i, 2)))
    for i in range(4): a.e("v_cvt_pk_bf16_f32 %s, %s, %s" % (v(vP + i), v(vS + 2 * i), v(vS + 2 * i + 1)))
    a.e("buffer_store_dwordx4 %s, %s, %s, s%d offen %s" % (v(vP, 4), v(ar + 2), srd(SOUT), sCNT, Opt.out_pol))
    if Opt.probe >= 0:
        a.e("s_waitcnt vmcnt(0)")
        a.stamp(9)
        a.e("s_cmp_ge_u32 s%d, 14" % sM)
        a.e("s_cbranch_scc%d L_end" % (0 if Opt.probe_l else 1))
        a.lab("L_probe")
        a.e("s_memrealtime s[0:1]")
        a.e("s_waitcnt lgkmcnt(0)")
        a.e("s_sub_u32 s0, s0, s%d" % (sSTAMP + 4))
        a.e("s_cmp_lt_u32 s0, 4000")
        a.e("s_cbranch_scc1 L_probe")
    if Opt.pin == 9:
        a.e("s_waitcnt vmcnt(0)")
        a.stamp(9)
    if Opt.diag:
        a.e("s_waitcnt vmcnt(0)")
        a.stamp(9)
        a.e("s_mov_b32 s%d, s%d" % (sSTAMP + 3, sSTAMP))
        a.e("s_mov_b32 s%d, s%d" % (sSTAMP, sB))
        a.e("s_getreg_b32 s%d, hwreg(HW_REG_XCC_ID)" % (sSTAMP + 1))
        for i in range(20): a.e("v_mov_b32 %s, s%d" % (v(vS + i), sSTAMP + i))
        a.e("s_lshl_b32 s%d, s2, 3" % sA)
        a.e("s_add_u32 s%d, s%d, s%d" % (sA, sA, sW))
        a.e("s_lshl_b32 s%d, s%d, 7" % (sA, sA))
        a.e("s_add_u32 s%d, s%d, 0x%x" % (sA, sA, WS_STAMP))
        a.e("s_mov_b64 exec, 1")
        for i in range(5): a.e("buffer_store_dwordx4 %s, off, %s, s%d offset:%d" % (v(vS + 4 * i, 4), srd(SWS), sA, 16 * i))
    a.lab("L_end")
    a.e("s_endpgm")
    for j in range(8):
        a.lab("L_ore%d" % j)
        a.e("s_sub_u32 s%d, s%d, 1" % (sB, sB))
        a.e("s_cbranch_scc1 L_ogive%d" % j)
        a.e("s_waitcnt vmcnt(0)")
        for i in range(j, 8):
            a.e("buffer_load_dwordx4 %s, %s, %s, s%d offen offset:%d sc1" % (v(vS + 4 * i, 4), v(vL16), srd(SWS), sOLD if i < 4 else sA, (i % 4) * 1024))
        a.e("s_branch L_ochk%d" % j)
        a.lab("L_ogive%d" % j)
        a.e("s_mov_b32 s%d, 0" % sB)
        a.e("s_branch L_ook%d" % j)

def fallback(a):
    a.lab("L_fb")
    m = vFR + 4
    a.e("v_mov_b32 %s, 0xff800000" % v(m))
    a.e("s_mov_b32 s%d, 0" % sA)
    a.lab("L_fb1")
    a.e("buffer_load_dwordx4 %s, %s, %s, s%d offen sc1" % (v(vKF, 4), v(vL16), srd(SKV), sA))
    a.e("s_waitcnt vmcnt(0)")
    a.e(mfma(vS, vKF, vQ, None))
    a.e("s_add_u32 s%d, s%d, 2048" % (sA, sA))
    a.e("s_nop 11")
    for i in range(8): a.e("v_max3_f32 %s, %s, %s, %s" % (v(m), v(m), v(vS + 2 * i), v(vS + 2 * i + 1)))
    a.e("s_cmp_lt_u32 s%d, 0x20000" % sA)
    a.e("s_cbranch_scc1 L_fb1")
    a.e("v_mov_b32 %s, %s" % (v(m + 1), v(m)))
    a.e("s_nop 1")
    a.e("v_permlane32_swap_b32 %s, %s" % (v(m), v(m + 1)))
    a.e("s_nop 1")
    a.e("v_max_f32 %s, %s, %s" % (v(m), v(m), v(m + 1)))
    for i in range(16): a.e("v_sub_f32 %s, 0, %s" % (v(vS + 16 + i), v(m)))
    for i in range(16): a.e("v_mov_b32 %s, 0" % v(vO + i))
    a.e("s_mov_b32 s%d, 0" % sA)
    a.lab("L_fb2")
    a.e("s_add_u32 s%d, s%d, 0x%x" % (sB, sA, 63 * 2048))
    a.e("s_and_b32 s%d, s%d, 0x1ffff" % (sB, sB))
    a.e("buffer_load_dwordx4 %s, %s, %s, s%d offen sc1" % (v(vKF, 4), v(vL16), srd(SKV), sB))
    a.e("s_add_u32 s%d, s%d, 2048" % (sB, sA))
    a.e("s_and_b32 s%d, s%d, 0x1ffff" % (sB, sB))
    a.e("s_mov_b64 exec, %s" % sp(sVM))
    a.e("buffer_load_dwordx4 %s, %s, %s, s%d offen offset:1024 sc1" % (v(vV, 4), v(vL16), srd(SKV), sA))
    a.e("buffer_load_dwordx4 %s, %s, %s, s%d offen offset:1280 sc1" % (v(vV + 4, 4), v(vL16), srd(SKV), sB))
    a.e("s_mov_b64 exec, -1")
    a.e("s_waitcnt vmcnt(0)")
    a.e(mfma(vS, vKF, vQ, vS + 16))
    a.e("s_add_u32 s%d, s%d, 2048" % (sA, sA))
    a.e("s_nop 11")
    for i in range(16): a.e("v_exp_f32 %s, %s" % (v(vS + i), v(vS + i)))
    for i in range(8): a.e("v_cvt_pk_bf16_f32 %s, %s, %s" % (v(vP + i), v(vS + 2 * i), v(vS + 2 * i + 1)))
    a.e("s_nop 1")
    a.e(mfma(vO, vV, vP, vO))
    a.e(mfma(vO, vV + 4, vP + 4, vO))
    a.e("s_cmp_lt_u32 s%d, 0x20000" % sA)
    a.e("s_cbranch_scc1 L_fb2")
    a.e("s_nop 11")
    a.e("v_rcp_f32 %s, %s" % (v(vFR + 2), v(vO + 8)))
    a.e("s_branch L_fbret")

def build():
    a = Asm()
    prologue(a)
    phase1_F(a)
    transition(a)
    tail(a)
    a.l += a.ool
    ysubs(a)
    vm = a.vm; gelu_sub(a); a.vm = vm
    phase1_L(a)
    fallback(a)
    a.lab("L_codeend")
    il = a.l.index("L_light:")
    for i, x in enumerate(a.l):
        if x.endswith(" lds") and "sc1" not in x and " nt" not in x:
            if (Opt.ntx & 4 and (srd(SWD) in x or srd(SWO) in x)) or (Opt.ntx & 8 and i > il):
                a.l[i] = x[:-4] + " nt lds"
    head = open("cdna_kernels/%s.s.ref" % NAME).read().split("\n")
    hdr = [l for l in head if l.startswith(";") and "@launch" not in l and "Override" not in l and "grid=" not in l]
    out = hdr + ["; @launch grid=(256,1,1) block=(512,1,1) lds=%d" % LDS_BYTES,
                 '.amdgcn_target "amdgcn-amd-amdhsa--gfx950"', ".text", ".globl %s_kernel" % NAME, ".p2align 8",
                 ".type %s_kernel,@function" % NAME,
                 ".set CODE_PF_MAX, L_codeend - L_nopf - 4" if Opt.code_pf else "",
                 "%s_kernel:" % NAME]
    out += ["; mapmode %d" % Opt.mapmode, "; xrot %d" % Opt.xrot]
    out += a.l
    out += ['.section .rodata,"a"', ".p2align 6", ".amdhsa_kernel %s_kernel" % NAME,
            "  .amdhsa_next_free_vgpr %d" % NV, "  .amdhsa_next_free_sgpr 102", "  .amdhsa_accum_offset 256",
            "  .amdhsa_group_segment_fixed_size 0", "  .amdhsa_kernarg_size 104", "  .amdhsa_user_sgpr_count 2",
            "  .amdhsa_user_sgpr_kernarg_segment_ptr 1", "  .amdhsa_system_sgpr_workgroup_id_x 1", ".end_amdhsa_kernel", ""]
    return "\n".join(out)

if __name__ == "__main__":
    path = sys.argv[1]
    for kv in sys.argv[2:]:
        k, val = kv.split("=")
        cur = getattr(Opt, k)
        setattr(Opt, k, val if isinstance(cur, str) else type(cur)(int(val)))
    open(path, "w").write(build())
```

```python
import sys, struct, math

NAME = "gated_mix__grouped_kv_mqa__geglu_ffn__prompt"

class Opt:
    diag = 0
    mapmode = 1
    force_fb = False
    out_pol = ""
    code_pf = True
    xrot = 0
    pregap = 0
    tbar = 0
    hord = 1
    cmap = 1
    kqx = 1
    oearly = 8
    conc = 1
    ghx = 0
    qa = "288888"
    qb = "477777"
    npre = 8
    stagger = 1
    rper = 2
    dma1 = 17
    kprio = 0
    dma0 = 8
    npd = 4
    kdiag = 0
    fillpre = 0
    fillper = 4
    gsc = 2
    sched = 2
    xmask = 1
    ntx = 0
    touch = 2
    rotg = 0
    rotm = 0
    startbar = 1
    pvz = 1
    pin = -1
    pin_ns = 60000
    probe = -1
    probe_l = 0

def f2u(x): return struct.unpack("<I", struct.pack("<f", x))[0]

WS_KV = 0
WS_G = 128 * 1024
WS_HFLAG = 192 * 1024
WS_OF = 1 << 20
WS_HF = 4 << 20
WS_STAMP = 12 << 20
WS_SIZE = 16 << 20
K1 = 1024
L_G, L_U, L_X, L_WQ = 0, 48 * K1, 96 * K1, 144 * K1
L_QX = 32 * K1
L_WD, L_WO, L_KV = 0, 64 * K1, 128 * K1
LL_X, LL_W, LL_GATE, LL_WQ = 0, 128 * K1, 144 * K1, 128 * K1
LDS_BYTES = 160 * K1

SX, SWG, SWU, SWQ, SWS, SWD, SWO, SOUT, SDBG, SWKV, SGATE, SKV = 4, 8, 12, 16, 20, 24, 28, 32, 36, 40, 44, 64
SWV = 72
sTMPP = 48
sW, sHI, sLO, sG, sM, sT, sCB = 50, 51, 52, 53, 54, 55, 56
sWK = 57
sWH = 58
sK64 = 59
sVM = 60
sRET = 62
sA, sB, sC, sD = 68, 69, 70, 71
sOFFW, sOFFQ, sCH, sXP = 72, 73, 74, 75
sHOFF, sWDOFF, sKVOFF, sM0WD, sM0KV, sCNT = 72, 73, 74, 75, 76, 77
sOST, sOLD, sHST = 78, 79, 80
sHST2 = 3
sKQ = 76
sHP = 81
sSTAMP = 82

def srd(b): return "s[%d:%d]" % (b, b + 3)
def sp(b): return "s[%d:%d]" % (b, b + 1)
def v(b, n=1): return "v%d" % b if n == 1 else "v[%d:%d]" % (b, b + n - 1)

vL16 = 1
vT0, vT1, vT2, vT3 = 2, 3, 4, 5
vGP, vGC = 6, 7
vKVA = 8
vWDA = 9
vWDV = 10
vONE = 11
vZERO = 12
vFLA = 13
vPOLL = 14
vGA = 15
vQ = 16
vK0 = 20
vV1L = 24
vE = 28
vP = 32
vV = 40
vO = 56
vD = 72
vACC = 104
vS = 104
vH = 136
vAQ = vP
vF1 = 168
vKF = 168
vWF = 176
vFR = 184
vLX = 224
vXA = 240
vWA = 244
vQA = 248
vDX, vDG, vDQ = 249, 250, 251
vC0 = 252
vHA = 254
NV = 256

class Asm:
    def __init__(self):
        self.l = []
        self.vm = []
        self.nstamp = 0
    def e(self, s):
        for x in s.split("\n"):
            x = x.strip()
            if x: self.l.append("    " + x)
    def lab(self, s): self.l.append(s + ":")
    def vmop(self, s, tag):
        self.e(s); self.vm.append(tag)
    def vmn(self, tags):
        if isinstance(tags, str): tags = [tags]
        last = -1
        for i, t in enumerate(self.vm):
            if t in tags: last = i
        return None if last < 0 else len(self.vm) - 1 - last
    def waitvm(self, tags, lgkm=False):
        n = self.vmn(tags)
        if n is None:
            if lgkm: self.e("s_waitcnt lgkmcnt(0)")
            return
        assert n < 64
        self.e("s_waitcnt vmcnt(%d)%s" % (n, " lgkmcnt(0)" if lgkm else ""))
        self.vm = self.vm[len(self.vm) - n:] if n else []
    def wait0(self, lgkm=False):
        self.e("s_waitcnt vmcnt(0)%s" % (" lgkmcnt(0)" if lgkm else "")); self.vm = []
    def stamp(self, i, real=False):
        if Opt.probe == i:
            self.e("s_waitcnt lgkmcnt(0)")
            self.e("s_memrealtime %s" % sp(sSTAMP + 4))
            self.e("s_waitcnt lgkmcnt(0)")
        if Opt.pin == i:
            self.nstamp += 1
            self.e("s_waitcnt lgkmcnt(0)")
            self.e("s_cselect_b32 s%d, 1, 0" % (sSTAMP + 5))
            self.lab("L_pin%d" % self.nstamp)
            self.e("s_memrealtime s[0:1]")
            self.e("s_waitcnt lgkmcnt(0)")
            self.e("s_sub_u32 s0, s0, s%d" % sSTAMP)
            self.e("s_cmp_lt_u32 s0, %d" % (Opt.pin_ns // 10))
            self.e("s_cbranch_scc1 L_pin%d" % self.nstamp)
            self.e("s_cmp_lg_u32 s%d, 0" % (sSTAMP + 5))
        if Opt.diag and not Opt.kdiag and (Opt.diag == 1 or i == 9):
            self.e("s_waitcnt lgkmcnt(0)")
            self.e("s_memtime %s" % sp(sSTAMP + 2 * i))
            self.e("s_memrealtime s[0:1]")
            self.e("s_waitcnt lgkmcnt(0)")
            self.e("s_mov_b32 s%d, s0" % (sSTAMP + 2 * i + 1))

def astamp(a, i):
    if Opt.diag and Opt.kdiag == 2: a.e("s_memtime %s" % sp(sSTAMP + 2 * i))

def kstamp(a, i):
    if Opt.probe == 18 + i: a.e("s_memrealtime %s" % sp(sSTAMP + 4))
    if Opt.diag and Opt.kdiag == 1: a.e("s_memtime %s" % sp(sSTAMP + 2 * i))

def mfma(d, a, b, c):
    return "v_mfma_f32_32x32x16_bf16 %s, %s, %s, %s" % (v(d, 16), v(a, 4), v(b, 4), "0" if c is None else v(c, 16))
def mfma16(d, a, b, c):
    return "v_mfma_f32_16x16x32_bf16 %s, %s, %s, %s" % (v(d, 4), v(a, 4), v(b, 4), "0" if c is None else v(c, 4))
def rd128(d, a, off):
    assert 0 <= off < 65536
    return "ds_read_b128 %s, %s offset:%d" % (v(d, 4), v(a), off)
def rdtr(d, a, off):
    assert 0 <= off < 65536
    return "ds_read_b64_tr_b16 %s, %s offset:%d" % (v(d, 2), v(a), off)

def interleave(mf, fill, per=2):
    out = []
    fill = list(fill)
    for i, m in enumerate(mf):
        out.append(m)
        if i < len(mf) - 1:
            out += fill[:per]; fill = fill[per:]
    return out + fill

def srd_words(a, regs):
    sizes = {SX: 2048 * 1024, SWG: 512 * 3584, SWU: 512 * 3584, SWQ: 512 * 1024, SWS: WS_SIZE, SWKV: 16384, SWV: 16384,
             SGATE: 1024, SWD: 1792 * 1024, SWO: 512 * 1024, SOUT: 2048 * 1024, SDBG: 256, SKV: 128 * 1024}
    for reg in regs:
        a.e("s_mov_b32 s%d, 0x%x" % (reg + 2, sizes[reg]))
        a.e("s_mov_b32 s%d, 0x20000" % (reg + 3))

def prologue(a):
    a.e("s_cmp_ge_u32 s2, 256")
    a.e("s_cbranch_scc1 L_end")
    for reg, off in ((SX, 0), (SWG, 48), (SWU, 56), (SWQ, 8), (SWS, 96), (SWKV, 16), (sTMPP, 24), (SGATE, 72),
                     (SWD, 64), (SWO, 32), (SOUT, 80), (SDBG, 88), (SKV, 96)):
        a.e("s_load_dwordx2 %s, s[0:1], %d" % (sp(reg), off))
    if Opt.probe >= 0: a.e("s_memrealtime %s" % sp(sSTAMP + 4))
    if Opt.diag or Opt.pin >= 0 or Opt.probe >= 0:
        a.e("s_memrealtime %s" % sp(sSTAMP))
        a.e("s_memtime %s" % sp(sSTAMP + 2))
    a.e("v_lshrrev_b32 v2, 6, v0")
    a.e("v_and_b32 v0, 63, v0")
    a.e("v_readfirstlane_b32 s%d, v2" % sW)
    a.e("v_lshlrev_b32 %s, 4, v0" % v(vL16))
    srd_words(a, [SX, SWQ])
    a.e("s_and_b32 s%d, s2, 7" % sA)
    a.e("s_lshr_b32 s%d, s2, 3" % sB)
    if Opt.cmap:
        a.e("s_andn2_b32 s%d, 1, s%d" % (sT, sA))
        a.e("s_lshl_b32 s%d, s%d, 2" % (sT, sT))
        a.e("s_lshr_b32 s%d, s%d, 1" % (sD, sA))
        a.e("s_add_u32 s%d, s%d, s%d" % (sT, sT, sD))
        a.e("s_lshl_b32 s%d, s%d, 2" % (sT, sT))
    else:
        a.e("s_lshl_b32 s%d, s%d, 2" % (sT, sA))
    a.e("s_and_b32 s%d, s%d, 3" % (sD, sB))
    a.e("s_add_u32 s%d, s%d, s%d" % (sT, sT, sD))
    a.e("s_lshr_b32 s%d, s%d, 2" % (sCB, sB))
    if Opt.xrot:
        a.e("s_add_u32 s%d, s%d, %d" % (sA, sA, Opt.xrot))
        a.e("s_and_b32 s%d, s%d, 7" % (sA, sA))
    if Opt.mapmode == 0:
        a.e("s_lshl_b32 s%d, s%d, 1" % (sG, sA))
        a.e("s_and_b32 s%d, s%d, 1" % (sC, sB))
        a.e("s_add_u32 s%d, s%d, s%d" % (sG, sG, sC))
        a.e("s_lshr_b32 s%d, s%d, 1" % (sM, sB))
        a.e("s_mov_b32 s%d, s%d" % (sHP, sM))
    elif Opt.mapmode in (1, 3):
        a.e("s_and_b32 s%d, s%d, 1" % (sG, sA))
        a.e("s_lshl_b32 s%d, s%d, 3" % (sG, sG))
        a.e("s_and_b32 s%d, s%d, 7" % (sC, sB))
        a.e("s_add_u32 s%d, s%d, s%d" % (sG, sG, sC))
        a.e("s_lshr_b32 s%d, s%d, 1" % (sA, sA))
        a.e("s_lshl_b32 s%d, s%d, 2" % (sHP, sA))
        a.e("s_lshr_b32 s%d, s%d, 3" % (sC, sB))
        a.e("s_add_u32 s%d, s%d, s%d" % (sHP, sHP, sC))
        if Opt.mapmode == 1:
            a.e("s_mov_b32 s%d, s%d" % (sM, sHP))
        else:
            a.e("s_sub_u32 s%d, s%d, s%d" % (sM, sHP, sA))
            a.e("s_lshr_b32 s%d, s%d, 1" % (sB, sB))
            a.e("s_and_b32 s%d, s%d, 2" % (sB, sB))
            a.e("s_add_u32 s%d, s%d, s%d" % (sB, sB, sA))
            a.e("s_and_b32 s%d, s%d, 3" % (sB, sB))
            a.e("s_add_u32 s%d, s%d, 12" % (sB, sB))
            a.e("s_cmp_eq_u32 s%d, 3" % sC)
            a.e("s_cselect_b32 s%d, s%d, s%d" % (sM, sB, sM))
    else:
        a.e("s_and_b32 s%d, s%d, 3" % (sG, sA))
        a.e("s_lshl_b32 s%d, s%d, 2" % (sG, sG))
        a.e("s_add_u32 s%d, s%d, s%d" % (sG, sG, sD))
        a.e("s_lshr_b32 s%d, s%d, 2" % (sM, sA))
        a.e("s_lshl_b32 s%d, s%d, 3" % (sM, sM))
        a.e("s_add_u32 s%d, s%d, s%d" % (sM, sM, sCB))
        a.e("s_mov_b32 s%d, s%d" % (sHP, sM))
    a.e("s_lshl_b32 s%d, s%d, 10" % (sWK, sW))
    a.e("s_mov_b32 s%d, 0x10000" % sK64)
    if Opt.code_pf:
        a.e("s_cmp_lg_u32 s%d, s%d" % (sD, sW))
        a.e("s_cbranch_scc1 L_nopf")
        a.e("s_getpc_b64 %s" % sp(sRET))
        a.e("s_lshl_b32 s%d, s%d, 13" % (sD, sW))
        a.e("v_lshl_add_u32 v2, v0, 7, s%d" % sD)
        a.e("v_min_u32 v2, CODE_PF_MAX, v2")
        a.e("global_load_dword %s, v2, %s" % (v(vPOLL), sp(sRET)))
        a.lab("L_nopf")
    a.e("s_lshl_b32 s%d, s%d, 2" % (sA, sW))
    a.e("v_lshrrev_b32 v2, 4, v0")
    a.e("v_add_u32 v3, s%d, v2" % sA)
    a.e("v_xor_b32 v3, v3, v0")
    a.e("v_and_b32 v3, 7, v3")
    a.e("v_lshlrev_b32 v3, 4, v3")
    a.e("v_lshrrev_b32 v4, 3, v0")
    a.e("v_lshl_add_u32 v3, v4, 10, v3")
    a.e("s_lshl_b32 s%d, s%d, 17" % (sA, sG))
    a.e("s_lshl_b32 s%d, s%d, 13" % (sB, sW))
    a.e("s_add_u32 s%d, s%d, s%d" % (sA, sA, sB))
    a.e("v_add_u32 %s, s%d, v3" % (v(vDX), sA))
    a.e("s_cmp_ge_u32 s%d, 14" % sM)
    a.e("s_cbranch_scc1 L_light")

def setup_rd(a):
    a.e("s_lshr_b32 s%d, s%d, 2" % (sHI, sW))
    a.e("s_and_b32 s%d, s%d, 3" % (sLO, sW))
    a.e("v_and_b32 v2, 15, v0")
    a.e("v_lshrrev_b32 v3, 4, v0")
    a.e("v_bfe_u32 v4, v0, 1, 3")
    a.e("v_xor_b32 v4, v4, v3")
    a.e("v_lshlrev_b32 v4, 4, v4")
    a.e("v_lshl_add_u32 %s, v2, 7, v4" % v(vXA))
    a.e("v_bfe_u32 v2, v0, 2, 2")
    a.e("v_and_b32 v4, 3, v0")
    a.e("v_lshl_add_u32 %s, v3, 3, v2" % v(vQA))
    a.e("v_lshlrev_b32 %s, 6, %s" % (v(vQA), v(vQA)))
    a.e("v_xor_b32 v5, s%d, v3" % sHI)
    a.e("v_and_b32 v5, 1, v5")
    a.e("v_lshl_add_u32 %s, v5, 5, %s" % (v(vQA), v(vQA)))
    a.e("v_lshl_add_u32 %s, v4, 3, %s" % (v(vQA), v(vQA)))

def setup_oclr(a):
    srd_words(a, [SWS, SKV, SDBG])
    a.e("s_mov_b32 s%d, 0xffff" % sVM)
    a.e("s_mov_b32 s%d, 0xffff" % (sVM + 1))
    a.e("s_lshl_b32 s%d, s%d, 2" % (sA, sG))
    a.e("s_add_u32 s%d, s%d, s%d" % (sA, sA, sLO))
    a.e("s_lshl_b32 s%d, s%d, 5" % (sB, sA))
    a.e("s_lshl_b32 s%d, s%d, 1" % (sC, sHP))
    a.e("s_add_u32 s%d, s%d, s%d" % (sB, sB, sC))
    a.e("s_add_u32 s%d, s%d, s%d" % (sB, sB, sHI))
    a.e("s_lshl_b32 s%d, s%d, 10" % (sB, sB))
    a.e("s_add_u32 s%d, s%d, 0x%x" % (sOST, sB, WS_OF))
    for i in range(4): a.e("v_mov_b32 %s, -1" % v(vQ + i))
    a.vmop("buffer_store_dwordx4 %s, %s, %s, s%d offen sc1" % (v(vQ, 4), v(vL16), srd(SWS), sOST), "oclr")
    a.e("v_mov_b32 %s, 1" % v(vONE))
    a.e("v_mov_b32 %s, 0" % v(vZERO))
    a.e("v_and_b32 %s, 31, v0" % v(vGA))
    a.e("v_lshlrev_b32 %s, 2, %s" % (v(vGA), v(vGA)))

def collect(fn):
    t = Asm(); t.marks = {}
    def vmop(s_, tag):
        t.e(s_); t.marks[len(t.l) - 1] = tag
    t.vmop = vmop
    fn(t)
    return [(x, t.marks.get(i)) for i, x in enumerate(t.l)]
def put(a, items):
    for x, tag in items:
        if tag: a.vmop(x, tag)
        else: a.e(x)

def setup_attn(a):
    srd_words(a, [SWD, SWO, SOUT])
    a.e("s_lshl_b32 s%d, s%d, 2" % (sA, sG))
    a.e("s_add_u32 s%d, s%d, s%d" % (sA, sA, sLO))
    a.e("s_mul_i32 s%d, s%d, 112" % (sB, sA))
    a.e("s_lshl_b32 s%d, s%d, 3" % (sC, sM))
    a.e("s_add_u32 s%d, s%d, s%d" % (sB, sB, sC))
    a.e("s_lshl_b32 s%d, s%d, 2" % (sC, sHI))
    a.e("s_add_u32 s%d, s%d, s%d" % (sB, sB, sC))
    a.e("s_and_b32 s%d, s%d, 1" % (sC, sLO))
    a.e("s_lshl_b32 s%d, s%d, 1" % (sC, sC))
    a.e("s_add_u32 s%d, s%d, s%d" % (sB, sB, sC))
    a.e("s_lshl_b32 s%d, s%d, 10" % (sB, sB))
    a.e("s_add_u32 s%d, s%d, 0x%x" % (sHST, sB, WS_HF))
    a.e("s_mul_i32 s%d, s%d, %d" % (sC, sC, 112 * 1024))
    a.e("s_sub_u32 s%d, %d, s%d" % (sC, 112 * 1024, sC))
    a.e("s_add_u32 s%d, s%d, s%d" % (sHST2, sHST, sC))
    a.e("v_bfe_u32 v2, v0, 2, 2")
    a.e("v_lshrrev_b32 v3, 5, v0")
    a.e("v_lshl_add_u32 v2, v3, 2, v2")
    a.e("v_lshlrev_b32 v2, 6, v2")
    a.e("v_bfe_u32 v3, v0, 4, 1")
    a.e("v_lshl_add_u32 v2, v3, 5, v2")
    a.e("v_and_b32 v3, 3, v0")
    a.e("v_lshl_add_u32 v2, v3, 3, v2")
    a.e("s_lshr_b32 s%d, s%d, 1" % (sA, sW))
    a.e("s_lshl_b32 s%d, s%d, 11" % (sA, sA))
    a.e("v_add_u32 %s, s%d, v2" % (v(vWDA), sA))
    a.e("v_add_u32 %s, 0x%x, %s" % (v(vKVA), L_KV, v(vL16)))
    a.e("v_bfe_u32 v2, v0, 2, 3")
    a.e("v_lshlrev_b32 v2, 10, v2")
    a.e("v_lshrrev_b32 v3, 5, v0")
    a.e("v_lshl_add_u32 v2, v3, 6, v2")
    a.e("v_and_b32 v3, 3, v0")
    a.e("v_lshl_add_u32 v2, v3, 4, v2")
    a.e("s_lshl_b32 s%d, s%d, 7" % (sB, sCB))
    a.e("v_add_u32 %s, s%d, v2" % (v(vWDV), sB))
    a.e("v_min_u32 v2, 13, v0")
    a.e("v_lshlrev_b32 v2, 7, v2")
    a.e("s_lshr_b32 s%d, s%d, 1" % (sA, sT))
    a.e("s_lshl_b32 s%d, s%d, 11" % (sA, sA))
    a.e("s_add_u32 s%d, s%d, 0x%x" % (sA, sA, WS_HFLAG))
    a.e("v_add_u32 %s, s%d, v2" % (v(vFLA), sA))
    a.e("s_lshl_b32 s%d, s%d, 1" % (sA, sT))
    a.e("s_and_b32 s%d, s%d, 1" % (sB, sW))
    a.e("s_add_u32 s%d, s%d, s%d" % (sA, sA, sB))
    a.e("s_lshl_b32 s%d, s%d, 15" % (sB, sA))
    a.e("s_lshr_b32 s%d, s%d, 1" % (sKQ, sW))
    if Opt.kqx:
        a.e("s_lshl_b32 s%d, s%d, 1" % (sC, sCB))
        a.e("s_and_b32 s%d, s%d, 2" % (sC, sC))
        a.e("s_xor_b32 s%d, s%d, s%d" % (sKQ, sKQ, sC))
    a.e("s_lshl_b32 s%d, s%d, 13" % (sC, sKQ))
    a.e("s_add_u32 s%d, s%d, s%d" % (sB, sB, sC))
    a.e("s_add_u32 s%d, s%d, 0x%x" % (sOLD, sB, WS_OF))
    if Opt.pvz:
        a.e("s_mov_b32 s%d, 0x110000" % sA)
        a.e("s_mov_b32 s%d, 0x110000" % sB)
        a.e("v_mov_b32 v3, 0x3f803f80")
        a.e("v_cndmask_b32 v2, 0, v3, %s" % sp(sA))
    else:
        a.e("v_mov_b32 v2, 0x3f803f80")
    for i in range(16): a.e("v_mov_b32 %s, v2" % v(vV + i))
    for i in range(4): a.e("v_mov_b32 %s, v2" % v(vV1L + i))
    for i in range(4): a.e("v_mov_b32 %s, 0" % v(vE + i))
    a.e("v_lshrrev_b32 v2, 4, v0")
    a.e("v_lshl_add_u32 %s, v2, 8, %s" % (v(vHA), v(vL16)))
    for i in range(16): a.e("v_mov_b32 %s, 0" % v(vO + i))
    for i in range(32): a.e("v_mov_b32 %s, 0" % v(vD + i))
    c0 = -2.0 * math.sqrt(2.0 / math.pi) * math.log2(math.e)
    a.e("v_mov_b32 %s, 0x%x" % (v(vC0), f2u(c0)))
    a.e("v_mov_b32 %s, 0x%x" % (v(vC0 + 1), f2u(c0 * 0.044715)))

def kv_first_loads(a):
    it = []
    for u in range(2):
        it.append(("s_add_u32 m0, s%d, 0x%x\ns_add_u32 s%d, s%d, 0x%x\nbuffer_load_dwordx4 %s, %s, s%d offen sc1 lds"
                   % (sWK, L_KV + u * 8192, sA, sWK, u * 8192, v(vL16), srd(SKV), sA), "kv%d" % u))
    it.append(("s_mov_b32 s%d, 0x%x\nbuffer_load_dwordx4 %s, %s, %s, s%d offen sc1"
               % (sA, 63 * 2048, v(vK0, 4), v(vL16), srd(SKV), sA), "k0"))
    it.append(("s_mov_b64 exec, %s\nbuffer_load_dwordx4 %s, %s, %s, 0 offen offset:%d sc1\ns_mov_b64 exec, -1"
               % (sp(sVM), v(vV1L, 4), v(vL16), srd(SKV), 1024 + 256), "k0"))
    it.append(("s_lshl_b32 s%d, s%d, 2\ns_add_u32 s%d, s%d, s%d\ns_lshl_b32 s%d, s%d, 7\ns_add_u32 s%d, s%d, 0x%x\n"
               "buffer_load_dword %s, %s, %s, s%d offen sc1"
               % (sA, sG, sA, sA, sLO, sA, sA, sA, sA, WS_G, v(vGP), v(vGA), srd(SWS), sA), "k0"))
    it.append(("s_lshl_b32 s%d, s%d, 1\ns_and_b32 s%d, s%d, 1\ns_add_u32 s%d, s%d, s%d\ns_lshl_b32 s%d, s%d, 7\ns_add_u32 s%d, s%d, 0x%x\n"
               "buffer_load_dword %s, %s, %s, s%d offen sc1"
               % (sA, sT, sB, sW, sA, sA, sB, sA, sA, sA, sA, WS_G, v(vGC), v(vGA), srd(SWS), sA), "k0"))
    return it

def spin_counter(a, name, first_loaded):
    a.e("s_cmp_lg_u32 s%d, 0" % sW)
    a.e("s_cbranch_scc1 L_%s_done" % name)
    a.e("s_mov_b32 s%d, 0x4000" % sB)
    if first_loaded: a.e("s_branch L_%s_chk" % name)
    a.lab("L_%s_re" % name)
    a.e("buffer_load_dword %s, off, %s, 0 sc1" % (v(vPOLL), srd(SDBG)))
    a.e("s_waitcnt vmcnt(0)")
    a.lab("L_%s_chk" % name)
    a.e("v_readfirstlane_b32 s%d, %s" % (sA, v(vPOLL)))
    a.e("s_cmp_ge_u32 s%d, 32" % sA)
    a.e("s_cbranch_scc1 L_%s_done" % name)
    a.e("s_sleep 4")
    a.e("s_sub_u32 s%d, s%d, 1" % (sB, sB))
    a.e("s_cmp_lg_u32 s%d, 0" % sB)
    a.e("s_cbranch_scc1 L_%s_re" % name)
    a.lab("L_%s_done" % name)

def phase1_F(a):
    SCHED = {1: ["01423567", "10253467", "23016457", "32104756"],
             2: ["02134657", "01324576", "10243567", "10235467"],
             3: ["01324657", "01243576", "12035467", "20134567"]}
    tabs = SCHED[Opt.sched] if Opt.sched else ["".join(str(c ^ (p & Opt.xmask)) for c in range(8)) for p in range(4)]
    for t_ in tabs: assert sorted(t_) == list("01234567")
    num = [int(t_[::-1], 16) for t_ in tabs]
    a.e("s_add_u32 s%d, s%d, s%d" % (sA, sG, sHP))
    a.e("s_mov_b32 s%d, 0x%x" % (sXP, num[0]))
    a.e("s_mov_b32 s%d, 0x%x" % (sB, num[2]))
    a.e("s_bitcmp1_b32 s%d, 0" % sA)
    a.e("s_cselect_b32 s%d, 0x%x, s%d" % (sXP, num[1], sXP))
    a.e("s_cselect_b32 s%d, 0x%x, s%d" % (sB, num[3], sB))
    a.e("s_bitcmp1_b32 s%d, 1" % sA)
    a.e("s_cselect_b32 s%d, s%d, s%d" % (sXP, sB, sXP))
    if Opt.ghx:
        a.e("s_bitcmp1_b32 s%d, 3" % sG)
        a.e("s_cselect_b32 s%d, 0x44444444, 0" % sB)
        a.e("s_xor_b32 s%d, s%d, s%d" % (sXP, sXP, sB))
    a.e("s_and_b32 s%d, s%d, 3" % (sLO, sW))
    a.e("s_lshl_b32 s%d, s%d, 10" % (sWH, sLO))

    def wvoff(a):
        a.e("s_lshl_b32 s%d, s%d, 1" % (sA, sLO))
        a.e("s_and_b32 s%d, s%d, 4" % (sA, sA))
        a.e("v_lshrrev_b32 v2, 4, v0")
        a.e("v_bfe_u32 v3, v0, 1, 3")
        a.e("v_xor_b32 v3, v3, v2")
        a.e("v_xor_b32 v3, s%d, v3" % sA)
        a.e("v_lshlrev_b32 v3, 5, v3")
        a.e("v_and_b32 v4, 1, v0")
        a.e("v_lshl_add_u32 v3, v4, 4, v3")
        a.e("v_mul_u32_u24 v5, 3584, v2")
        a.e("s_mul_i32 s%d, s%d, %d" % (sA, sLO, 4 * 3584))
        a.e("s_lshl_b32 s%d, s%d, 8" % (sB, sM))
        a.e("s_add_u32 s%d, s%d, s%d" % (sA, sA, sB))
        a.e("v_add3_u32 %s, v3, v5, s%d" % (v(vDG), sA))
    def qvoff(a):
        a.e("v_lshrrev_b32 v3, 2, v0")
        a.e("v_lshlrev_b32 v3, 10, v3")
        a.e("v_bfe_u32 v4, v0, 4, 2")
        a.e("v_and_b32 v4, 2, v4")
        a.e("v_xor_b32 v4, v4, v0")
        a.e("v_and_b32 v4, 3, v4")
        a.e("v_lshl_add_u32 v3, v4, 4, v3")
        a.e("s_lshl_b32 s%d, s%d, 14" % (sA, sLO))
        a.e("s_lshl_b32 s%d, s%d, 6" % (sB, sHP))
        a.e("s_add_u32 s%d, s%d, s%d" % (sA, sA, sB))
        a.e("v_add_u32 %s, s%d, v3" % (v(vDQ), sA))

    ORDER = [("q", 0)] + [("x", j) for j in range(4)] + [(t_, j) for j in range(4) for t_ in "gu"]
    def block(items):
        out = []; lastc = None; lastw = None
        for c, kind, j in items:
            s = c % 3; pre = []
            if c != lastc:
                pre.append("s_bfe_u32 s%d, s%d, 0x%x" % (sCH, sXP, 0x30000 + 4 * c)); lastc = c; lastw = None
            fam = "w" if kind in "gu" else kind
            if lastw is None or lastw[0] != fam:
                pre.append({"q": "s_lshl_b32 s%d, s%d, 16" % (sOFFW, sCH), "x": "s_lshl_b32 s%d, s%d, 7" % (sOFFW, sCH),
                            "w": "s_mul_i32 s%d, s%d, %d" % (sOFFW, sCH, 64 * 3584)}[fam])
                lastw = (fam, 0)
            if lastw[1] != j:
                pre.append("s_add_u32 s%d, s%d, 0x%x" % (sOFFW, sOFFW, (j - lastw[1]) * (0x8000 if fam == "x" else 16 * 3584)))
                lastw = (fam, j)
            m0c, vo, rs = {"q": (L_WQ + s * 4096, vDQ, SWQ), "x": (L_X + s * 16384 + j * 4096, vDX, SX),
                           "g": (L_G + s * 16384 + j * 4096, vDG, SWG), "u": (L_U + s * 16384 + j * 4096, vDG, SWU)}[kind]
            nt = " nt" if Opt.ntx & (1 if rs == SX else 2) else ""
            out.append(("s_add_u32 m0, s%d, 0x%x\n%s\nbuffer_load_dwordx4 %s, %s, s%d offen%s lds"
                        % (sWH, m0c, "\n".join(pre) or "s_nop 0", v(vo), srd(rs), sOFFW, nt), "c%d" % c))
        return out
    def part(c, role): return [(c, k_, j) for k_, j in ORDER if (k_ in "gu") == (role == "A")]

    def rdsetup(a):
        setup_rd(a)
        a.e("v_lshl_add_u32 %s, v3, 3, v2" % v(vWA))
        a.e("v_lshlrev_b32 %s, 8, %s" % (v(vWA), v(vWA)))
        a.e("v_lshl_add_u32 %s, v4, 3, %s" % (v(vWA), v(vWA)))
        a.e("v_and_b32 v5, 1, v3")
        a.e("v_lshl_add_u32 v2, v5, 2, v2")
        a.e("s_lshl_b32 s%d, s%d, 2" % (sA, sHI))
        a.e("s_and_b32 s%d, s%d, 1" % (sB, sLO))
        a.e("s_lshl_b32 s%d, s%d, 1" % (sB, sB))
        a.e("s_add_u32 s%d, s%d, s%d" % (sA, sA, sB))
        a.e("v_xor_b32 v2, s%d, v2" % sA)
        a.e("v_lshl_add_u32 %s, v2, 5, %s" % (v(vWA), v(vWA)))
        a.e("v_xor_b32 %s, 32, %s" % (v(vWA + 1), v(vWA)))
        a.e("v_add_u32 %s, 0x%x, %s" % (v(vWA + 2), L_U - L_G, v(vWA)))
        a.e("v_add_u32 %s, 0x%x, %s" % (v(vWA + 3), L_U - L_G, v(vWA + 1)))
        a.e("s_lshl_b32 s%d, s%d, 12" % (sA, sLO))
        a.e("s_add_u32 s%d, s%d, 0x%x" % (sA, sA, L_X))
        a.e("v_add_u32 %s, s%d, %s" % (v(vXA), sA, v(vXA)))
        a.e("v_xor_b32 %s, 0x1000, %s" % (v(vXA + 1), v(vXA)))
        a.e("v_xor_b32 %s, 64, %s" % (v(vXA + 2), v(vXA)))
        a.e("v_xor_b32 %s, 64, %s" % (v(vXA + 3), v(vXA + 1)))
        a.e("v_add_u32 %s, 0x%x, %s" % (v(vQA), L_WQ, v(vQA)))

    srd_words(a, [SWG, SWU])
    a.e("s_cmp_ge_u32 s%d, 4" % sW)
    a.e("s_cbranch_scc1 L_setB")
    late = collect(setup_oclr) + collect(setup_attn)
    words = collect(lambda t: srd_words(t, [SWS, SKV, SDBG, SWD, SWO, SOUT]))
    late = [x for x in late if x not in words]
    words += [("v_mov_b32 %s, 0" % v(r_), None) for r_ in (vGA, vWDV, vFLA, vHA)]
    st = collect(rdsetup) + words + late[:Opt.fillpre]
    fills = {"A": late[Opt.fillpre:], "B": late[Opt.fillpre:]}
    vms = {}
    for role in "AB":
        a.vm = []
        if role == "A":
            wvoff(a)
        else:
            a.lab("L_setB")
            a.e("v_subrev_u32 %s, 0x8000, %s" % (v(vDX), v(vDX)))
            qvoff(a)
        a.e("s_waitcnt lgkmcnt(0)")
        a.stamp(2)
        put(a, block(part(0, role)))
        if Opt.startbar: a.e("s_barrier")
        npre = min(Opt.npre, 8) if role == "A" else 5
        pn = block(part(1, role)[:npre])
        rest = st + collect(qvoff if role == "A" else wvoff)
        gap = len(rest) // (npre + Opt.pregap) + 1
        for i in range(npre):
            put(a, pn[:1]); pn = pn[1:]
            put(a, rest[:gap]); rest = rest[gap:]
        put(a, rest)
        a.e("s_mov_b64 vcc, %d" % (-1 if role == "A" else 0))
        if role == "A":
            a.waitvm("c0")
            a.e("s_branch L_k0")
        else:
            a.e("s_setprio 1")
            a.waitvm("c0")
        vms[role] = a.vm
    stream = part(1, "A")[min(Opt.npre, 8):] + [(c, k_, j) for c in range(2, 8) for k_, j in ORDER]
    qa = [int(x, 16) for x in Opt.qa]; qb = [int(x, 16) for x in Opt.qb]
    def take(n, cmax):
        m = 0
        while m < n and m < len(stream) and stream[m][0] <= cmax: m += 1
        r_ = stream[:m]; del stream[:m]
        return block(r_)
    a.lab("L_k0")
    a.vm = vms["A"]
    ool = Asm()
    def dmablock(name, role, items, wait=None):
        a.e("s_cbranch_vcc%s L_%s" % ("nz" if role == "A" else "z", name))
        if wait: a.waitvm(wait, lgkm=True)
        a.lab("L_%s_r" % name)
        ool.lab("L_%s" % name)
        ool.vm = a.vm if role == "A" else vms["B"]
        for it_ in items:
            if it_[1] is None: put(ool, fills[role]); fills[role] = []
            put(ool, [it_])
            put(ool, fills[role][:Opt.fillper]); fills[role] = fills[role][Opt.fillper:]
        if name == "e7": put(ool, fills[role]); fills[role] = []
        if wait: ool.waitvm(wait, lgkm=True)
        if role == "B": vms["B"] = ool.vm
        ool.e("s_branch L_%s_r" % name)
    a.ool = ool.l

    def fr(k):
        b = vF1 + 36 * (k % 2)
        return dict(x=b, w=b + 16, q=b + 32)
    def reads(k):
        c, s = divmod(k, 2); f = fr(k); sl = c % 3
        wo = sl * 16384 + s * 8192
        W = lambda i: [rdtr(f['w'] + 4 * i, vWA + i, wo), rdtr(f['w'] + 4 * i + 2, vWA + i, wo + 1024)]
        X = [rd128(f['x'] + 4 * b, vXA + 2 * s + (b >> 1), sl * 16384 + (b & 1) * 2048) for b in range(4)]
        return W(0) + X + W(2) + W(1) + W(3) + [rdtr(f['q'], vQA, sl * 4096 + s * 2048), rdtr(f['q'] + 2, vQA, sl * 4096 + s * 2048 + 256)]
    a.e("s_barrier")
    a.stamp(3)
    if Opt.kdiag or Opt.probe >= 18:
        kstamp(a, 2)
        a.e("s_waitcnt lgkmcnt(0)")
    for r in reads(0): a.e(r)
    if qa[0]: dmablock("d2", "A", take(qa[0], 2))
    for k in range(16):
        c, s = divmod(k, 2); f = fr(k)
        z = lambda x: None if k == 0 else x
        mf = []
        for n_, i in enumerate((0, 2, 1, 3)):
            for b in (range(4) if n_ % 2 == 0 else range(3, -1, -1)):
                d = vACC + 16 * b + 4 * i
                mf.append(mfma16(d, f['w'] + 4 * i, f['x'] + 4 * b, z(d)))
        for b in range(2): mf.append(mfma16(vAQ + 4 * b, f['q'], f['x'] + 4 * b, z(vAQ + 4 * b)))
        rds = reads(k + 1) if k < 15 else []
        if s == 0:
            a.e("s_waitcnt lgkmcnt(6)")
            for i, m in enumerate(mf):
                if i == 8: a.e("s_waitcnt lgkmcnt(8)")
                a.e(m)
                if i < len(rds): a.e(rds[i])
            continue
        a.e("s_waitcnt lgkmcnt(8)")
        for m in mf[:4]: a.e(m)
        if c <= 5:
            dmablock("e%d" % (c + 2), "B", take(qb[c], c + 2), "c%d" % (c + 1))
            assert not any(x[0] <= c + 1 for x in stream)
        if c == 7:
            a.e("s_waitcnt lgkmcnt(0)")
        elif c == 6 and Opt.stagger:
            a.e("s_waitcnt lgkmcnt(0)")
            a.e("s_cbranch_vccz L_st7")
            a.e("s_waitcnt vmcnt(0)")
            spin_counter(a, "kvf", True)
            a.e("s_barrier")
            a.e("s_setprio 1")
            for x, _ in kv_first_loads(a): a.e(x)
            a.lab("L_st7")
        elif c == 6:
            a.e("s_setprio 0")
            a.wait0(lgkm=True)
            spin_counter(a, "kvf", True)
            a.e("s_barrier")
            put(a, kv_first_loads(a))
        else:
            a.e("s_barrier")
        if c < 7 and ((Opt.kdiag == 1 and Opt.diag) or Opt.probe == 21 + c):
            kstamp(a, 3 + c)
            a.e("s_waitcnt lgkmcnt(0)")
        if c + 3 < 8:
            items = take(qa[c + 1], c + 3)
            if c == 4:
                items.append(("s_cmp_lg_u32 s%d, 0\ns_cbranch_scc1 L_d7_r\nbuffer_load_dword %s, off, %s, 0 sc1"
                              % (sW, v(vPOLL), srd(SDBG)), None))
            dmablock("d%d" % (c + 3), "A", items)
        for i, m in enumerate(mf[4:]):
            a.e(m)
            if i < len(rds): a.e(rds[i])
        if k == 11: assert not stream and not fills["A"] and not fills["B"]
        if k == 11 and Opt.stagger:
            a.e("s_cbranch_vccnz L_st6")
            a.e("s_setprio 0")
            a.wait0()
            a.e("s_barrier")
            put(a, kv_first_loads(a))
            a.lab("L_st6")
    a.stamp(4)

def phase1_L(a):
    a.lab("L_light")
    a.vm = []
    srd_words(a, [SWKV, SWV, SGATE])
    a.e("s_sub_u32 s%d, s%d, 14" % (sCNT, sM))
    a.e("s_lshl_b32 s%d, s%d, 16" % (sOLD, sCNT))
    a.e("s_lshl_b32 s%d, s%d, 13" % (sHST, sCNT))
    a.e("s_add_u32 s%d, s%d, s%d" % (sWH, sHST, sWK))
    a.e("s_xor_b32 s%d, s%d, 0x2000" % (sHST, sHST))
    a.e("s_add_u32 s%d, s%d, 0x2000" % (sA, sWK))
    a.e("s_waitcnt lgkmcnt(0)")
    a.stamp(2)
    a.e("s_mov_b32 s%d, s%d" % (SWV, sTMPP))
    a.e("s_mov_b32 s%d, s%d" % (SWV + 1, sTMPP + 1))
    def xdma(c, base, so):
        a.vmop("s_add_u32 m0, s%d, 0x%x\ns_nop 0\nbuffer_load_dwordx4 %s, %s, s%d offen offset:%d lds"
               % (base, LL_X + c * 16384 - c * 128, v(vDX), srd(SX), so, c * 128), "c%d" % c)
    def wdma(u):
        for t, rs in enumerate((SWKV, SWV)):
            a.vmop("s_add_u32 m0, s%d, 0x%x\ns_nop 0\nbuffer_load_dwordx4 %s, %s, s%d offen lds"
                   % (sWK, LL_W + t * 16384 + u * 8192, v(vL16), srd(rs), sA if u else sWK), "w")
    wdma(0)
    a.vmop("s_mov_b32 m0, s%d\ns_nop 0\nbuffer_load_dwordx4 %s, %s, 0 offen lds" % (sHST, v(vL16), srd(SGATE)), "w")
    for c in range(8):
        if c == 4: wdma(1)
        xdma(c, sWH, sOLD)
        if c in (1, 3, 5): a.e("s_barrier")
    setup_rd(a)
    a.e("v_lshrrev_b32 v3, 5, v0")
    a.e("v_bfrev_b32 v5, v4")
    a.e("v_lshrrev_b32 v5, 30, v5")
    a.e("s_cmp_ge_u32 s%d, 2" % sLO)
    a.e("s_cselect_b64 vcc, -1, 0")
    a.e("v_cndmask_b32 v4, v5, v4, vcc")
    a.e("v_lshl_add_u32 %s, v3, 3, v2" % v(vWA))
    a.e("v_lshlrev_b32 %s, 5, %s" % (v(vWA), v(vWA)))
    a.e("v_lshl_add_u32 %s, v4, 3, %s" % (v(vWA), v(vWA)))
    a.e("s_lshr_b32 s%d, s%d, 1" % (sA, sLO))
    a.e("s_lshl_b32 s%d, s%d, 14" % (sA, sA))
    a.e("s_add_u32 s%d, s%d, 0x%x" % (sA, sA, LL_W))
    a.e("v_add_u32 %s, s%d, %s" % (v(vWA), sA, v(vWA)))
    a.e("v_lshl_add_u32 %s, v3, 4, s%d" % (v(vWA + 1), sHST))
    a.e("s_and_b32 s%d, s%d, 1" % (sA, sLO))
    a.e("s_lshl_b32 s%d, s%d, 1" % (sB, sCNT))
    a.e("s_add_u32 s%d, s%d, s%d" % (sCNT, sA, sB))
    a.e("s_lshl_b32 s%d, s%d, 12" % (sA, sCNT))
    a.e("v_and_b32 v2, 31, v0")
    a.e("v_bfe_u32 v4, v0, 1, 3")
    a.e("v_xor_b32 v4, v4, v3")
    a.e("v_lshlrev_b32 v4, 4, v4")
    a.e("v_lshl_add_u32 v4, v2, 7, v4")
    a.e("v_add_u32 %s, s%d, v4" % (v(vLX), sA))
    for s in range(1, 4): a.e("v_xor_b32 %s, %d, %s" % (v(vLX + s), 32 * s, v(vLX)))
    for s in range(4): a.e("v_add_u32 %s, 0x10000, %s" % (v(vLX + 4 + s), v(vLX + s)))
    setup_oclr(a)
    vm0 = list(a.vm)
    a.e("s_cmp_lg_u32 s%d, 0" % sHI)
    a.e("s_cbranch_scc1 L_lB")
    a.e("s_not_b64 %s, %s" % (sp(sTMPP), sp(sVM)))
    a.e("s_cmp_ge_u32 s%d, 2" % sLO)
    a.e("s_cbranch_scc1 L_lV")
    def chain(kind):
        a.vm = list(vm0)
        def fr(k):
            b = vFR + 8 * (k % 4)
            return b, b + 4
        def reads(k):
            c, s = divmod(k, 4); x, w = fr(k)
            r = [rd128(x, vLX + s + 4 * (c >> 2), (c & 3) * 16384), rdtr(w, vWA, k * 512), rdtr(w + 2, vWA, k * 512 + 128)]
            if kind == "K":
                r += ["s_mov_b64 exec, %s" % sp(sTMPP), rd128(w, vWA + 1, k * 32), "s_mov_b64 exec, -1"]
            return r
        for q in range(4):
            a.waitvm("c%d" % (2 * q + 1))
            a.e("s_barrier")
            nr = 4 if kind == "K" else 3
            for k in range(8 * q, 8 * q + 2):
                for r in reads(k): a.e(r)
            for k in range(8 * q, 8 * q + 8):
                if k + 2 < 8 * q + 8:
                    for r in reads(k + 2): a.e(r)
                left = min(2, 8 * q + 7 - k)
                a.e("s_waitcnt lgkmcnt(%d)" % (left * nr))
                x, w = fr(k)
                cc = None if k == 0 else vACC
                a.e(mfma(vACC, w, x, cc) if kind == "K" else mfma(vACC, x, w, cc))
        a.e("s_lshl_b32 s%d, s%d, 2" % (sA, sG))
        a.e("s_add_u32 s%d, s%d, s%d" % (sA, sA, sCNT))
        a.e("s_nop 12")
        if kind == "K":
            a.e("s_mov_b32 s%d, 0x%x" % (sC, f2u(0.25 * math.log2(math.e))))
            for i in range(8): a.e("v_mul_f32 %s, s%d, %s" % (v(vACC + i), sC, v(vACC + i)))
            a.e("v_mul_f32 %s, 0x%x, %s" % (v(vACC + 8), f2u(-math.log2(math.e)), v(vACC + 8)))
            a.e("v_exp_f32 %s, %s" % (v(vACC + 8), v(vACC + 8)))
            for i in range(4): a.e("v_cvt_pk_bf16_f32 %s, %s, %s" % (v(vFR + i), v(vACC + 2 * i), v(vACC + 2 * i + 1)))
            a.e("v_add_f32 %s, 1.0, %s" % (v(vACC + 8), v(vACC + 8)))
            a.e("v_rcp_f32 %s, %s" % (v(vACC + 8), v(vACC + 8)))
            a.e("s_add_u32 s%d, s%d, 63" % (sB, sA))
            a.e("s_and_b32 s%d, s%d, 63" % (sB, sB))
            a.e("s_lshl_b32 s%d, s%d, 11" % (sB, sB))
            a.e("buffer_store_dwordx4 %s, %s, %s, s%d offen sc1" % (v(vFR, 4), v(vL16), srd(SKV), sB))
            a.e("s_lshl_b32 s%d, s%d, 7" % (sB, sA))
            a.e("s_add_u32 s%d, s%d, 0x%x" % (sB, sB, WS_G))
            a.e("s_mov_b32 exec_hi, 0")
            a.e("buffer_store_dword %s, %s, %s, s%d offen sc1" % (v(vACC + 8), v(vGA), srd(SWS), sB))
            a.e("s_mov_b64 exec, -1")
        else:
            for i in range(8): a.e("v_cvt_pk_bf16_f32 %s, %s, %s" % (v(vFR + i), v(vACC + 2 * i), v(vACC + 2 * i + 1)))
            a.e("v_bfe_u32 v2, v0, 4, 1")
            a.e("v_add_u32 v2, s%d, v2" % sA)
            a.e("v_and_b32 v2, 63, v2")
            a.e("v_lshl_add_u32 v2, v2, 11, %s" % v(vL16))
            for i in range(4): a.e("v_cndmask_b32 %s, %s, %s, %s" % (v(vFR + i), v(vFR + 4 + i), v(vFR + i), sp(sVM)))
            a.e("buffer_store_dwordx4 %s, v2, %s, 0 offen offset:1024 sc1" % (v(vFR, 4), srd(SKV)))
        a.e("s_branch L_lJ")
    chain("K")
    a.lab("L_lV")
    chain("V")
    a.lab("L_lB")
    a.vm = list(vm0)
    a.e("s_cmp_lg_u32 s%d, 14" % sM)
    a.e("s_cbranch_scc1 L_nozf")
    a.e("s_cmp_lg_u32 s%d, 4" % sW)
    a.e("s_cbranch_scc1 L_nozf")
    a.e("v_lshlrev_b32 v2, 7, v0")
    a.e("s_lshl_b32 s%d, s%d, 11" % (sA, sG))
    a.e("s_add_u32 s%d, s%d, 0x%x" % (sA, sA, WS_HFLAG))
    a.e("s_mov_b64 exec, 0xffff")
    a.e("buffer_store_dword %s, v2, %s, s%d offen sc1" % (v(vZERO), srd(SWS), sA))
    a.e("s_mov_b64 exec, -1")
    a.lab("L_nozf")
    for q in range(4):
        a.waitvm("c%d" % (2 * q + 1))
        a.e("s_barrier")
    a.lab("L_lJ")
    a.e("v_lshrrev_b32 v3, 2, v0")
    a.e("v_lshlrev_b32 v3, 10, v3")
    a.e("v_lshrrev_b32 v4, 5, v0")
    a.e("v_lshlrev_b32 v4, 1, v4")
    a.e("v_xor_b32 v4, v4, v0")
    a.e("v_and_b32 v4, 3, v4")
    a.e("v_lshl_add_u32 v3, v4, 4, v3")
    a.e("s_lshl_b32 s%d, s%d, 14" % (sA, sW))
    a.e("s_lshl_b32 s%d, s%d, 6" % (sB, sHP))
    a.e("s_add_u32 s%d, s%d, s%d" % (sA, sA, sB))
    a.e("v_add_u32 %s, s%d, v3" % (v(vDQ), sA))
    a.e("s_xor_b32 s%d, s%d, 0x2000" % (sWH, sWH))
    a.e("s_xor_b32 s%d, s%d, 0x10000" % (sOLD, sOLD))
    a.wait0(lgkm=True)
    a.e("s_barrier")
    a.e("s_cmp_lg_u32 s%d, 0" % sW)
    a.e("s_cbranch_scc1 L_noat")
    a.e("s_mov_b64 exec, 1")
    a.e("buffer_atomic_add %s, off, %s, 0 sc1" % (v(vONE), srd(SDBG)))
    a.e("s_mov_b64 exec, -1")
    a.lab("L_noat")
    a.stamp(3)
    for c in range(8): xdma(c, sWH, sOLD)
    for p in range(4):
        a.e("s_add_u32 m0, s%d, 0x%x" % (sWK, LL_WQ + p * 8192))
        a.e("s_mov_b32 s%d, 0x%x" % (sA, p * 128 * 1024))
        a.e("buffer_load_dwordx4 %s, %s, s%d offen lds" % (v(vDQ), srd(SWQ), sA))
    setup_attn(a)
    if Opt.touch & 2:
        a.e("s_lshl_b32 s%d, s%d, 1" % (sA, sG))
        a.e("s_add_u32 s%d, s%d, s%d" % (sA, sA, sM))
        a.e("s_sub_u32 s%d, s%d, 14" % (sA, sA))
        a.e("s_lshl_b32 s%d, s%d, 3" % (sA, sA))
        a.e("s_add_u32 s%d, s%d, s%d" % (sA, sA, sW))
        a.e("v_lshlrev_b32 v2, 15, v0")
        a.e("s_lshl_b32 s%d, s%d, 7" % (sA, sA))
        a.e("buffer_load_dword %s, v2, %s, s%d offen" % (v(vPOLL), srd(SWO), sA))
        a.e("buffer_load_dword %s, v2, %s, s%d offen" % (v(vPOLL), srd(SWD), sA))
    a.e("s_lshl_b32 s%d, s%d, 12" % (sA, sLO))
    a.e("v_add_u32 %s, s%d, %s" % (v(vXA), sA, v(vXA)))
    a.e("v_xor_b32 %s, 64, %s" % (v(vXA + 1), v(vXA)))
    a.e("v_add_u32 %s, 0x10000, %s" % (v(vXA + 2), v(vXA)))
    a.e("v_add_u32 %s, 0x10000, %s" % (v(vXA + 3), v(vXA + 1)))
    a.e("v_add_u32 %s, 0x%x, %s" % (v(vQA), LL_WQ, v(vQA)))
    a.e("s_waitcnt vmcnt(%d)" % (2 if Opt.touch & 2 else 0))
    a.e("s_barrier")
    def fr(k): return vFR + 12 * (k % 3)
    def reads(k):
        c, s = divmod(k, 2); f = fr(k)
        return [rd128(f + 4 * b, vXA + s + 2 * (c >> 2), (c & 3) * 16384 + b * 2048) for b in range(2)] + \
               [rdtr(f + 8, vQA, k * 2048), rdtr(f + 10, vQA, k * 2048 + 256)]
    for k in range(2):
        for r in reads(k): a.e(r)
    for k in range(16):
        a.e("s_waitcnt lgkmcnt(%d)" % (4 * min(1, 15 - k)))
        for b in range(2): a.e(mfma16(vAQ + 4 * b, fr(k) + 8, fr(k) + 4 * b, None if k == 0 else vAQ + 4 * b))
        if k + 2 < 16:
            for r in reads(k + 2): a.e(r)
    spin_counter(a, "kvl", False)
    a.e("s_barrier")
    for s, t in kv_first_loads(a): a.e(s)
    a.wait0()
    a.stamp(4)
    a.e("s_branch L_join")

def gelu_tile(a, ti, scalar=False):
    acc = vACC + 16 * ti
    t = vFR
    o = vFR + 8 + 4 * ti
    pk = lambda r: v(r, 2)
    if scalar:
        for i in range(8): a.e("v_mul_f32 %s, %s, %s" % (v(t + i), v(acc + i), v(acc + i)))
        for i in range(8): a.e("v_fma_f32 %s, %s, %s, %s" % (v(t + i), v(t + i), v(vC0 + 1), v(vC0)))
        for i in range(8): a.e("v_mul_f32 %s, %s, %s" % (v(t + i), v(t + i), v(acc + i)))
        for i in range(8): a.e("v_exp_f32 %s, %s" % (v(t + i), v(t + i)))
        for i in range(8): a.e("v_add_f32 %s, 1.0, %s" % (v(t + i), v(t + i)))
        for i in range(8): a.e("v_rcp_f32 %s, %s" % (v(t + i), v(t + i)))
        for i in range(8): a.e("v_mul_f32 %s, %s, %s" % (v(acc + i), v(acc + i), v(acc + 8 + i)))
        for i in range(8): a.e("v_mul_f32 %s, %s, %s" % (v(acc + i), v(acc + i), v(t + i)))
    R4, R8 = (range(0), range(0)) if scalar else (range(4), range(8))
    for i in R4: a.e("v_pk_mul_f32 %s, %s, %s" % (pk(t + 2 * i), pk(acc + 2 * i), pk(acc + 2 * i)))
    for i in R4: a.e("v_pk_fma_f32 %s, %s, %s, %s op_sel:[0,1,0] op_sel_hi:[1,1,0]" % (pk(t + 2 * i), pk(t + 2 * i), pk(vC0), pk(vC0)))
    for i in R4: a.e("v_pk_mul_f32 %s, %s, %s" % (pk(t + 2 * i), pk(t + 2 * i), pk(acc + 2 * i)))
    for i in R8: a.e("v_exp_f32 %s, %s" % (v(t + i), v(t + i)))
    for i in R4: a.e("v_pk_add_f32 %s, %s, 1.0 op_sel_hi:[1,0]" % (pk(t + 2 * i), pk(t + 2 * i)))
    for i in R8: a.e("v_rcp_f32 %s, %s" % (v(t + i), v(t + i)))
    for i in R4: a.e("v_pk_mul_f32 %s, %s, %s" % (pk(acc + 2 * i), pk(acc + 2 * i), pk(acc + 8 + 2 * i)))
    for i in R4: a.e("v_pk_mul_f32 %s, %s, %s" % (pk(acc + 2 * i), pk(acc + 2 * i), pk(t + 2 * i)))
    for i in range(4): a.e("v_cvt_pk_bf16_f32 %s, %s, %s" % (v(o + i), v(acc + 2 * i), v(acc + 2 * i + 1)))
    a.vmop("buffer_store_dwordx4 %s, %s, %s, s%d offen offset:%d sc1" % (v(o, 4), v(vHA), srd(SWS), sHST2 if ti >> 1 else sHST, (ti & 1) * 256), "hst")

def Yseg(hset, toggle=False):
    out = []
    for t in range(2):
        S, Sn = vS + 16 * t, vS + 16 * (1 - t)
        K, V0, V1 = vKF + 4 * t, vV + 8 * t, vV + 8 * t + 4
        for j in range(8):
            out.append("v_exp_f32 %s, %s" % (v(vE + 2 * (j % 2)), v(S + 2 * j)))
            out.append("v_exp_f32 %s, %s" % (v(vE + 2 * (j % 2) + 1), v(S + 2 * j + 1)))
            jj = (j - 1) % 8
            out.append("v_cvt_pk_bf16_f32 %s, %s, %s" % (v(vP + jj), v(vE + 2 * (jj % 2)), v(vE + 2 * (jj % 2) + 1)))
            if j == 1: out.append(mfma(vO, V1, vP + 4, vO))
            if j == 3: out.append(mfma(Sn, K, vQ, None))
            if hset is None:
                if j == 7: out.append(mfma(vO, V0, vP, vO))
            else:
                if j == 5: out.append(mfma(vO, V0, vP, vO))
                if j == 6 and t == 1 and toggle:
                    out.append("v_xor_b32 %s, 0x4000, %s" % (v(vKVA), v(vKVA)))
                    out.append("v_xor_b32 %s, 0x8000, %s" % (v(vWDA), v(vWDA)))
                if j == 7: out.append(mfma(vD + 16 * t, vWF + 4 * t, vH + 4 * hset, vD + 16 * t))
    return out

def kv_reads(off):
    r = [rd128(vKF, vKVA, off), rd128(vKF + 4, vKVA, off + 2048), "s_mov_b64 exec, %s" % sp(sVM)]
    for t in range(2):
        r += [rd128(vV + 8 * t, vKVA, off + 2048 * t + 1024), rd128(vV + 8 * t + 4, vKVA, off + 2048 * t + 1280)]
    r.append("s_mov_b64 exec, -1")
    return r
def wd_reads(dst, addr, off):
    r = []
    for c in range(2):
        r += [rdtr(dst + 4 * c, addr, off + 512 * c), rdtr(dst + 4 * c + 2, addr, off + 512 * c + 1024)]
    return r

def wdrow(sg): return (32 * (sg >> 1) + 8 * (sg & 1)) * 1024

def attention(a, role, pre0=None):
    A = role == "A"
    def kvdma(u):
        a.vmop("s_add_u32 m0, s%d, 0x%x\ns_add_u32 s%d, s%d, 0x%x\nbuffer_load_dwordx4 %s, %s, s%d offen sc1 lds"
               % (sWK, L_KV + (u % 4) * 8192, sA, sWK, u * 8192, v(vL16), srd(SKV), sA), "kv%d" % u)
    def wddma(sg):
        a.vmop("s_add_u32 m0, s%d, 0x%x\ns_add_u32 s%d, s%d, 0x%x\nbuffer_load_dwordx4 %s, %s, s%d offen lds"
               % (sWK, L_WD + ((sg + 3) % 8) * 8192, sA, sWDOFF, wdrow(sg), v(vWDV), srd(SWD), sA), "wd%d" % sg)
    def wodma(j):
        a.vmop("s_add_u32 m0, s%d, 0x%x\ns_add_u32 s%d, s%d, 0x%x\nbuffer_load_dwordx4 %s, %s, s%d offen lds"
               % (sWK, L_WO + j * 8192, sA, sB, j * 16384, v(vWDV), srd(SWO), sA), "wo")
    def hload(sg, dst):
        a.vmop("s_add_u32 s%d, s%d, 0x%x\nbuffer_load_dwordx4 %s, %s, %s, s%d offen sc1"
               % (sA, sHOFF, sg * 1024, v(dst, 4), v(vL16), srd(SWS), sA), "h%d" % sg)
    for n in range(11):
        if not A and n == 0: a.e("s_barrier")
        if n % 2 == 1: astamp(a, 2 + n // 2)
        tags = []
        if A and n % 2 == 1: tags.append("kv%d" % ((n + 1) // 2))
        if not A and n % 2 == 0: tags.append("kv%d" % ((n + 2) // 2))
        if n == (3 if A else 2): tags.append("hst")
        if n == 10: tags.append("wd0")
        if n == 8 and A:
            a.e("s_cmp_lg_u32 s%d, 0" % sW)
            a.e("s_cbranch_scc1 L_hf_done")
            a.e("s_mov_b32 s%d, 0x4000" % sB)
            a.e("s_waitcnt vmcnt(2)")
            a.lab("L_hf_chk")
            a.e("v_cmp_ne_u32 vcc, 1, %s" % v(vPOLL))
            a.e("s_cbranch_vccz L_hf_done")
            a.e("s_sleep 2")
            a.e("buffer_load_dword %s, %s, %s, 0 offen sc1" % (v(vPOLL), v(vFLA), srd(SWS)))
            a.e("s_sub_u32 s%d, s%d, 1" % (sB, sB))
            a.e("s_cmp_lg_u32 s%d, 0" % sB)
            a.e("s_waitcnt vmcnt(0)")
            a.e("s_cbranch_scc1 L_hf_chk")
            a.lab("L_hf_done")
        a.waitvm(tags)
        if n == 3 and not A:
            a.e("s_cmp_ge_u32 s%d, 14" % sM)
            a.e("s_cbranch_scc1 L_nohf")
            a.e("s_cmp_lg_u32 s%d, 4" % sW)
            a.e("s_cbranch_scc1 L_nohf")
            a.e("s_lshl_b32 s%d, s%d, 4" % (sA, sG))
            a.e("s_add_u32 s%d, s%d, s%d" % (sA, sA, sM))
            a.e("s_lshl_b32 s%d, s%d, 7" % (sA, sA))
            a.e("s_add_u32 s%d, s%d, 0x%x" % (sA, sA, WS_HFLAG))
            a.e("s_mov_b64 exec, 1")
            a.e("buffer_store_dword %s, off, %s, s%d sc1" % (v(vONE), srd(SWS), sA))
            a.e("s_mov_b64 exec, -1")
            a.lab("L_nohf")
        for r in kv_reads((n % 8) * 4096): a.e(r)
        if n == 7 and A:
            a.e("s_cmp_lg_u32 s%d, 0" % sW)
            a.e("s_cbranch_scc1 L_hf_nol")
            a.e("buffer_load_dword %s, %s, %s, 0 offen sc1" % (v(vPOLL), v(vFLA), srd(SWS)))
            a.lab("L_hf_nol")
        if n == 0:
            kvdma(2); kvdma(3)
            a.e("s_mov_b32 s%d, s%d" % (sC, sKQ))
            a.e("s_mul_i32 s%d, s%d, %d" % (sWDOFF, sC, 448 * 1024))
            a.e("s_and_b32 s%d, s%d, 1" % (sB, sW))
            a.e("s_lshl_b32 s%d, s%d, 14" % (sA, sB))
            a.e("s_add_u32 s%d, s%d, s%d" % (sWDOFF, sWDOFF, sA))
            a.e("s_lshl_b32 s%d, s%d, 1" % (sA, sT))
            a.e("s_add_u32 s%d, s%d, s%d" % (sA, sA, sB))
            a.e("s_mul_i32 s%d, s%d, 112" % (sA, sA))
            a.e("s_mul_i32 s%d, s%d, 28" % (sB, sC))
            a.e("s_add_u32 s%d, s%d, s%d" % (sA, sA, sB))
            a.e("s_lshl_b32 s%d, s%d, 10" % (sA, sA))
            a.e("s_add_u32 s%d, s%d, 0x%x" % (sHOFF, sA, WS_HF))
        if (A and n % 2 == 1 and n >= 3): kvdma((n + 5) // 2)
        if (not A and n % 2 == 0 and n >= 2): kvdma((n + 6) // 2)
        if 1 <= n <= 3:
            a.e("s_lshl_b32 s%d, s%d, 17" % (sB, sKQ))
            a.e("s_and_b32 s%d, s%d, 1" % (sC, sW))
            a.e("s_lshl_b32 s%d, s%d, 13" % (sC, sC))
            a.e("s_add_u32 s%d, s%d, s%d" % (sB, sB, sC))
            for j in {1: (0, 1, 2), 2: (3, 4, 5), 3: (6, 7)}[n]: wodma(j)
        if n >= 4: wddma(n - 4)
        if n == 9:
            hload(0, vH + 12); hload(1, vH + 0); hload(24, vH + 16); hload(25, vH + 20)
        if n == 10:
            hload(26, vH + 24); hload(27, vH + 28); hload(2, vH + 4)
        if n == 0 and pre0:
            pre0()
            a.stamp(5)
        a.e("s_waitcnt lgkmcnt(0)")
        a.e("s_call_b64 %s, L_Y%s" % (sp(sRET), role))
        if n == 0:
            a.e("s_branch L_X1%s" % role)
            a.lab("L_Y%s" % role)
            if A: a.e("s_barrier")
            for x in Yseg(None): a.e(x)
            if not A: a.e("s_barrier")
            a.e("s_setpc_b64 %s" % sp(sRET))
            a.lab("L_X1%s" % role)
    astamp(a, 7)
    a.e("s_add_u32 s%d, s%d, 0x%x" % (sHOFF, sHOFF, 3 * 1024))
    a.e("s_add_u32 s%d, s%d, 0x%x" % (sWDOFF, sWDOFF, wdrow(7)))
    a.e("s_mov_b32 s%d, 0x%x" % (sM0WD, ((7 + 3) % 8) * 8192))
    u0 = 8 if A else 9
    a.e("s_add_u32 s%d, s%d, 0x%x" % (sKVOFF, sWK, u0 * 8192))
    a.e("s_mov_b32 s%d, 6" % sCNT)
    a.waitvm(["h0", "wd1", "kv6"] if A else ["h0", "wd1"])
    a.e("s_branch L_loop%s_in" % role)
    a.l.append(".p2align 6")
    a.lab("L_loop%s" % role)
    for p in range(4):
        if p == 0 and Opt.diag and Opt.kdiag == 2:
            a.e("s_cmp_lg_u32 s%d, 4" % sCNT)
            a.e("s_cbranch_scc1 L_nst%s" % role)
            astamp(a, 8)
            a.lab("L_nst%s" % role)
        a.e("s_waitcnt vmcnt(5)")
        if p == 3: a.lab("L_loop%s_in" % role)
        for r in kv_reads(p * 4096): a.e(r)
        for r in wd_reads(vWF, vWDA, p * 8192): a.e(r)
        a.e("buffer_load_dwordx4 %s, %s, %s, s%d offen sc1" % (v(vH + 4 * ((p + 3) % 4), 4), v(vL16), srd(SWS), sHOFF))
        a.e("s_add_u32 m0, s%d, s%d" % (sWK, sM0WD))
        a.e("s_add_u32 s%d, s%d, 0x400" % (sHOFF, sHOFF))
        a.e("buffer_load_dwordx4 %s, %s, s%d offen lds" % (v(vWDV), srd(SWD), sWDOFF))
        a.e("s_add_u32 s%d, s%d, 0x%x" % (sWDOFF, sWDOFF, 0x6000 if p & 1 else 0x2000))
        a.e("s_add_u32 s%d, s%d, 0x2000" % (sM0WD, sM0WD))
        a.e("s_and_b32 s%d, s%d, 0xffff" % (sM0WD, sM0WD))
        if (p % 2 == 1) == A:
            a.e("s_and_b32 s%d, s%d, 0x7fff" % (sA, sKVOFF))
            a.e("s_add_u32 m0, s%d, 0x%x" % (sA, L_KV))
            a.e("s_nop 0")
            a.e("buffer_load_dwordx4 %s, %s, s%d offen sc1 lds" % (v(vL16), srd(SKV), sKVOFF))
            a.e("s_add_u32 s%d, s%d, 0x2000" % (sKVOFF, sKVOFF))
        if p == 3:
            a.e("s_sub_u32 s%d, s%d, 1" % (sCNT, sCNT))
            a.e("s_cmp_lg_u32 s%d, 0" % sCNT)
        a.e("s_waitcnt lgkmcnt(0)")
        if A: a.e("s_barrier")
        for x in Yseg(p, toggle=(p == 3)): a.e(x)
        if not A:
            if p == 3: a.e("s_cbranch_scc0 L_tail")
            a.e("s_barrier")
    a.e(("s_cbranch_scc1 L_loop%s" if A else "s_branch L_loop%s") % role)

def transition(a, role):
    A = role == "A"
    if A:
        a.vm = list(a.vmjoin)
        a.lab("L_trA")
    else:
        a.lab("L_join")
        a.e("s_cmp_eq_u32 s%d, 0" % sHI)
        a.e("s_cbranch_scc1 L_trA")
        a.vmjoin = list(a.vm)
    def qfin():
        for i in range(4): a.e("v_cvt_pk_bf16_f32 %s, %s, %s" % (v(vQ + i), v(vAQ + 2 * i), v(vAQ + 2 * i + 1)))
        for i in range(4, 7): a.e("v_mov_b32 %s, 0" % v(vP + i))
        a.e("v_permlane16_swap_b32 %s, %s" % (v(vQ), v(vQ + 2)))
        a.e("v_permlane16_swap_b32 %s, %s" % (v(vQ + 1), v(vQ + 3)))
    pre0 = None
    if A:
        a.e("s_setprio 1")
        a.e("s_cmp_ge_u32 s%d, 14" % sM)
        a.e("s_cbranch_scc1 L_nogA0")
        a.l.append(".p2align 3")
        for ti in range(Opt.gsc): gelu_tile(a, ti, True)
        a.lab("L_nogA0")
        qfin()
        a.waitvm(["k0", "kv0", "kv1"])
        a.e("s_setprio 0")
        a.e("s_barrier")
        a.e(mfma(vS, vK0, vQ, None))
        def pre0():
            a.e("s_cmp_lt_u32 s%d, 14" % sM)
            a.e("s_cbranch_scc1 L_gA1")
            a.e("s_waitcnt vmcnt(0)")
            a.e("s_branch L_nogA1")
            a.l.append(".p2align 3")
            a.lab("L_gA1")
            for ti in range(Opt.gsc, 4): gelu_tile(a, ti)
            a.lab("L_nogA1")
            a.e("s_setprio 1")
    else:
        a.waitvm(["k0", "kv0", "kv1"])
        a.e("s_setprio 1")
        a.e("s_cmp_ge_u32 s%d, 14" % sM)
        a.l.append(".p2align 3")
        a.e("s_barrier")
        a.e("s_cbranch_scc1 L_nogB")
        for ti in range(4): gelu_tile(a, ti)
        a.lab("L_nogB")
        qfin()
        a.e("s_setprio 0")
        a.e("s_nop 0")
        a.e(mfma(vS, vK0, vQ, None))
        a.stamp(5)
    attention(a, role, pre0)
    if A: a.e("s_branch L_tail")

def tail(a):
    a.lab("L_tail")
    a.e("v_cvt_pk_bf16_f32 %s, %s, %s" % (v(vP + 7), v(vE + 2), v(vE + 3)))
    a.stamp(6)
    astamp(a, 9)
    if Opt.diag and Opt.kdiag == 2: a.e("s_waitcnt lgkmcnt(0)")
    a.e("s_setprio 0")
    a.e("s_mov_b32 s%d, 0x%x" % (sC, f2u(2.0 ** -16)))
    a.e(mfma(vO, vV1L, vP + 4, vO))
    a.e("s_mov_b32 s%d, 0x%x" % (sD, f2u(2.0 ** 100)))
    a.e("s_nop 10")
    t = vFR
    a.e("v_rcp_f32 %s, %s" % (v(t + 2), v(vO + 8)))
    a.e("v_pk_mul_f32 %s, %s, 0 op_sel_hi:[1,0]" % (v(t, 2), v(vO, 2)))
    for i in range(1, 4): a.e("v_pk_fma_f32 %s, %s, 0, %s op_sel_hi:[1,0,1]" % (v(t, 2), v(vO + 2 * i, 2), v(t, 2)))
    a.e("v_add_f32 %s, %s, %s" % (v(t), v(t), v(t + 1)))
    a.e("v_add_f32 %s, %s, %s" % (v(t), v(t), v(vO + 8)))
    a.e("v_cmp_nle_f32 vcc, s%d, %s" % (sC, v(t)))
    a.e("v_cmp_nge_f32 %s, s%d, %s" % (sp(sTMPP), sD, v(t)))
    a.e("s_or_b64 vcc, vcc, %s" % sp(sTMPP))
    a.e("s_branch L_fb" if Opt.force_fb else "s_cbranch_scc1 L_fb")
    a.lab("L_fbret")
    a.e("v_mul_f32 %s, %s, %s" % (v(t + 2), v(t + 2), v(vGP)))
    for i in range(4): a.e("v_pk_mul_f32 %s, %s, %s op_sel_hi:[1,0]" % (v(vO + 2 * i, 2), v(vO + 2 * i, 2), v(t + 2, 2)))
    for i in range(4): a.e("v_cvt_pk_bf16_f32 %s, %s, %s" % (v(vP + i), v(vO + 2 * i), v(vO + 2 * i + 1)))
    for i in range(4): a.e("v_min_u32 %s, -2, %s" % (v(vP + i), v(vP + i)))
    a.e("buffer_store_dwordx4 %s, %s, %s, s%d offen sc1" % (v(vP, 4), v(vL16), srd(SWS), sOST))
    HORD = [0, 2, 4, 6, 1, 3, 5, 7] if Opt.hord else list(range(8))
    def oload(j):
        return "buffer_load_dwordx4 %s, %s, %s, s%d offen offset:%d sc1" % (
            v(vS + 4 * j, 4), v(vL16), srd(SWS), sOLD if HORD[j] < 4 else sA, (HORD[j] % 4) * 1024)
    a.oload = oload
    aw = vXA
    ar = vWA
    def addrs(a):
        a.e("v_sub_f32 %s, 1.0, %s" % (v(vGC), v(vGC)))
        a.e("v_add_u32 %s, 0x%x, %s" % (v(vQA), L_WO, v(vWDA)))
        a.e("v_and_b32 v2, 31, v0")
        a.e("v_lshrrev_b32 v3, 5, v0")
        a.e("v_and_b32 v4, 7, v0")
        a.e("v_xor_b32 v3, v3, v4")
        a.e("v_lshlrev_b32 v3, 4, v3")
        a.e("v_lshl_add_u32 v3, v2, 8, v3")
        a.e("s_and_b32 s%d, s%d, 1" % (sB, sW))
        a.e("s_lshl_b32 s%d, s%d, 15" % (sB, sB))
        a.e("s_lshr_b32 s%d, s%d, 1" % (sC, sW))
        a.e("s_lshl_b32 s%d, s%d, 13" % (sD, sC))
        a.e("s_add_u32 s%d, s%d, s%d" % (sD, sD, sB))
        a.e("v_add_u32 %s, s%d, v3" % (v(aw), sD))
        for j in range(1, 4): a.e("v_xor_b32 %s, %d, %s" % (v(aw + j), 32 * j, v(aw)))
        a.e("v_lshrrev_b32 v2, 3, v0")
        a.e("v_lshlrev_b32 v3, 1, v4")
        a.e("v_xor_b32 v3, v3, v2")
        a.e("v_lshlrev_b32 v3, 4, v3")
        a.e("v_lshl_add_u32 v3, v2, 8, v3")
        a.e("s_lshl_b32 s%d, s%d, 11" % (sD, sC))
        a.e("s_add_u32 s%d, s%d, s%d" % (sD, sD, sB))
        a.e("v_add_u32 %s, s%d, v3" % (v(ar), sD))
        a.e("v_xor_b32 %s, 16, %s" % (v(ar + 1), v(ar)))
        a.e("v_lshlrev_b32 v4, 4, v4")
        a.e("v_lshl_add_u32 %s, v2, 10, v4" % v(ar + 2))
        a.e("s_lshl_b32 s%d, s%d, 13" % (sC, sC))
        a.e("s_add_u32 s%d, s%d, s%d" % (sB, sB, sC))
        a.e("s_lshl_b32 s%d, s%d, 16" % (sC, sT))
        a.e("s_add_u32 s%d, s%d, s%d" % (sB, sB, sC))
        a.e("s_lshl_b32 s%d, s%d, 7" % (sC, sCB))
        a.e("s_add_u32 s%d, s%d, s%d" % (sCNT, sB, sC))
        a.e("s_mov_b32 s%d, 0x2000" % sB)
    a.e("s_add_u32 s%d, s%d, 0x1000" % (sA, sOLD))
    a.e("s_cmp_eq_u32 s%d, 0" % sHI)
    a.e("s_cbranch_scc1 L_tl1")
    a.e("s_setprio 1")
    a.e("s_waitcnt vmcnt(1)")
    a.lab("L_tl2")
    a.e("s_barrier")
    ol = Asm(); a.ool2 = ol.l
    ol.lab("L_tl1")
    for j in range(8): ol.e(oload(j))
    ol.e("s_waitcnt vmcnt(9)")
    ol.e("s_branch L_tl2")
    hreg = {21: vH + 0, 22: vH + 4, 23: vH + 8, 24: vH + 16, 25: vH + 20, 26: vH + 24, 27: vH + 28}
    wf = [vFR, vFR + 8, vFR + 16]
    for i in range(2):
        for r in wd_reads(wf[i], vWDA, i * 8192): a.e(r)
    fl = collect(addrs)
    put(a, fl[:8]); fl = fl[8:]
    for i in range(7):
        if i + 2 < 7:
            for r in wd_reads(wf[(i + 2) % 3], vWDA, (i + 2) * 8192): a.e(r)
        else:
            for r in wd_reads(wf[(i + 2) % 3], vQA, HORD[i - 5] * 8192): a.e(r)
        a.e("s_waitcnt lgkmcnt(8)")
        for c in range(2):
            a.e(mfma(vD + 16 * c, wf[i % 3] + 4 * c, hreg[21 + i], vD + 16 * c))
            put(a, fl[:2]); fl = fl[2:]
    put(a, fl)
    a.e("s_cmp_lg_u32 s%d, 0" % sHI)
    a.e("s_cbranch_scc1 L_tl3")
    a.e("s_nop 8")
    for i in range(32): a.e("v_mul_f32 %s, %s, %s" % (v(vD + i), v(vGC), v(vD + i)))
    if Opt.tbar == 0: a.e("s_barrier")
    a.lab("L_tl4")
    ol.lab("L_tl3")
    ol.e("s_setprio 0")
    for j in range(8):
        ol.e(oload(j))
        if j == 0: ol.e("s_nop 6")
        for i in range(4 * j, 4 * j + 4): ol.e("v_mul_f32 %s, %s, %s" % (v(vD + i), v(vGC), v(vD + i)))
    ol.e("s_barrier")
    ol.e("s_branch L_tl4")
    a.stamp(7)
    for j in range(8):
        o = vS + 4 * j
        if j + 2 < 8:
            for r in wd_reads(wf[(j + 3) % 3], vQA, HORD[j + 2] * 8192): a.e(r)
        if j == Opt.tbar and j:
            a.e("s_cmp_lg_u32 s%d, 0" % sHI)
            a.e("s_cbranch_scc1 L_ochk%d" % j)
            a.e("s_barrier")
        a.lab("L_ochk%d" % j)
        a.e("s_waitcnt vmcnt(%d)" % (7 - j))
        a.e("v_max3_u32 v2, %s, %s, %s" % (v(o), v(o + 1), v(o + 2)))
        a.e("v_max_u32 v2, v2, %s" % v(o + 3))
        a.e("v_cmp_eq_u32 vcc, -1, v2")
        a.e("s_cbranch_vccnz L_ore%d" % j)
        a.lab("L_ook%d" % j)
        a.e("s_waitcnt lgkmcnt(%d)" % (4 * min(2, 7 - j)))
        for c in range(2): a.e(mfma(vD + 16 * c, wf[(j + 1) % 3] + 4 * c, o, vD + 16 * c))
    a.stamp(8)
    a.e("s_nop 10")
    for c in range(2):
        for j in range(4):
            a.e("ds_write_b128 %s, %s offset:%d" % (v(aw + j), v(vD + 16 * c + 4 * j, 4), 128 * c))
    a.e("s_waitcnt lgkmcnt(0)")
    a.e("s_barrier")
    for p in range(4):
        for h in range(2): a.e(rd128(vS + 8 * p + 4 * h, ar + h, p * 8192))
    for p in range(1, 4):
        a.e("s_waitcnt lgkmcnt(%d)" % (6 - 2 * p))
        for i in range(4): a.e("v_pk_add_f32 %s, %s, %s" % (v(vS + 2 * i, 2), v(vS + 2 * i, 2), v(vS + 8 * p + 2 * i, 2)))
    for i in range(4): a.e("v_cvt_pk_bf16_f32 %s, %s, %s" % (v(vP + i), v(vS + 2 * i), v(vS + 2 * i + 1)))
    a.e("buffer_store_dwordx4 %s, %s, %s, s%d offen %s" % (v(vP, 4), v(ar + 2), srd(SOUT), sCNT, Opt.out_pol))
    if Opt.probe >= 0:
        a.e("s_waitcnt vmcnt(0)")
        a.stamp(9)
        a.e("s_cmp_ge_u32 s%d, 14" % sM)
        a.e("s_cbranch_scc%d L_end" % (0 if Opt.probe_l else 1))
        a.lab("L_probe")
        a.e("s_memrealtime s[0:1]")
        a.e("s_waitcnt lgkmcnt(0)")
        a.e("s_sub_u32 s0, s0, s%d" % (sSTAMP + 4))
        a.e("s_cmp_lt_u32 s0, 4000")
        a.e("s_cbranch_scc1 L_probe")
    if Opt.pin == 9:
        a.e("s_waitcnt vmcnt(0)")
        a.stamp(9)
    if Opt.diag:
        a.e("s_waitcnt vmcnt(0)")
        a.stamp(9)
        a.e("s_mov_b32 s%d, s%d" % (sSTAMP + 3, sSTAMP))
        a.e("s_mov_b32 s%d, s%d" % (sSTAMP, sB))
        a.e("s_getreg_b32 s%d, hwreg(HW_REG_XCC_ID)" % (sSTAMP + 1))
        for i in range(20): a.e("v_mov_b32 %s, s%d" % (v(vS + i), sSTAMP + i))
        a.e("s_lshl_b32 s%d, s2, 3" % sA)
        a.e("s_add_u32 s%d, s%d, s%d" % (sA, sA, sW))
        a.e("s_lshl_b32 s%d, s%d, 7" % (sA, sA))
        a.e("s_add_u32 s%d, s%d, 0x%x" % (sA, sA, WS_STAMP))
        a.e("s_mov_b64 exec, 1")
        for i in range(5): a.e("buffer_store_dwordx4 %s, off, %s, s%d offset:%d" % (v(vS + 4 * i, 4), srd(SWS), sA, 16 * i))
    a.lab("L_end")
    a.e("s_endpgm")
    a.l += a.ool2
    for j in range(8):
        a.lab("L_ore%d" % j)
        a.e("s_sub_u32 s%d, s%d, 1" % (sB, sB))
        a.e("s_cbranch_scc1 L_ogive%d" % j)
        a.e("s_waitcnt vmcnt(0)")
        for i in range(j, 8): a.e(a.oload(i))
        a.e("s_branch L_ochk%d" % j)
        a.lab("L_ogive%d" % j)
        a.e("s_mov_b32 s%d, 0" % sB)
        a.e("s_branch L_ook%d" % j)

def fallback(a):
    a.lab("L_fb")
    m = vFR + 4
    a.e("v_mov_b32 %s, 0xff800000" % v(m))
    a.e("s_mov_b32 s%d, 0" % sA)
    a.lab("L_fb1")
    a.e("buffer_load_dwordx4 %s, %s, %s, s%d offen sc1" % (v(vKF, 4), v(vL16), srd(SKV), sA))
    a.e("s_waitcnt vmcnt(0)")
    a.e(mfma(vS, vKF, vQ, None))
    a.e("s_add_u32 s%d, s%d, 2048" % (sA, sA))
    a.e("s_nop 11")
    for i in range(8): a.e("v_max3_f32 %s, %s, %s, %s" % (v(m), v(m), v(vS + 2 * i), v(vS + 2 * i + 1)))
    a.e("s_cmp_lt_u32 s%d, 0x20000" % sA)
    a.e("s_cbranch_scc1 L_fb1")
    a.e("v_mov_b32 %s, %s" % (v(m + 1), v(m)))
    a.e("s_nop 1")
    a.e("v_permlane32_swap_b32 %s, %s" % (v(m), v(m + 1)))
    a.e("s_nop 1")
    a.e("v_max_f32 %s, %s, %s" % (v(m), v(m), v(m + 1)))
    for i in range(16): a.e("v_sub_f32 %s, 0, %s" % (v(vS + 16 + i), v(m)))
    for i in range(16): a.e("v_mov_b32 %s, 0" % v(vO + i))
    a.e("s_mov_b32 s%d, 0" % sA)
    a.lab("L_fb2")
    a.e("s_add_u32 s%d, s%d, 0x%x" % (sB, sA, 63 * 2048))
    a.e("s_and_b32 s%d, s%d, 0x1ffff" % (sB, sB))
    a.e("buffer_load_dwordx4 %s, %s, %s, s%d offen sc1" % (v(vKF, 4), v(vL16), srd(SKV), sB))
    a.e("s_add_u32 s%d, s%d, 2048" % (sB, sA))
    a.e("s_and_b32 s%d, s%d, 0x1ffff" % (sB, sB))
    a.e("s_mov_b64 exec, %s" % sp(sVM))
    a.e("buffer_load_dwordx4 %s, %s, %s, s%d offen offset:1024 sc1" % (v(vV, 4), v(vL16), srd(SKV), sA))
    a.e("buffer_load_dwordx4 %s, %s, %s, s%d offen offset:1280 sc1" % (v(vV + 4, 4), v(vL16), srd(SKV), sB))
    a.e("s_mov_b64 exec, -1")
    a.e("s_waitcnt vmcnt(0)")
    a.e(mfma(vS, vKF, vQ, vS + 16))
    a.e("s_add_u32 s%d, s%d, 2048" % (sA, sA))
    a.e("s_nop 11")
    for i in range(16): a.e("v_exp_f32 %s, %s" % (v(vS + i), v(vS + i)))
    for i in range(8): a.e("v_cvt_pk_bf16_f32 %s, %s, %s" % (v(vP + i), v(vS + 2 * i), v(vS + 2 * i + 1)))
    a.e("s_nop 1")
    a.e(mfma(vO, vV, vP, vO))
    a.e(mfma(vO, vV + 4, vP + 4, vO))
    a.e("s_cmp_lt_u32 s%d, 0x20000" % sA)
    a.e("s_cbranch_scc1 L_fb2")
    a.e("s_nop 11")
    a.e("v_rcp_f32 %s, %s" % (v(vFR + 2), v(vO + 8)))
    a.e("s_branch L_fbret")

def build():
    a = Asm()
    prologue(a)
    phase1_F(a)
    transition(a, "B")
    tail(a)
    a.l += a.ool
    transition(a, "A")
    phase1_L(a)
    fallback(a)
    a.lab("L_codeend")
    il = a.l.index("L_light:")
    for i, x in enumerate(a.l):
        if x.endswith(" lds") and "sc1" not in x and " nt" not in x:
            if (Opt.ntx & 4 and (srd(SWD) in x or srd(SWO) in x)) or (Opt.ntx & 8 and i > il):
                a.l[i] = x[:-4] + " nt lds"
    head = open("cdna_kernels/%s.s.ref" % NAME).read().split("\n")
    hdr = [l for l in head if l.startswith(";") and "@launch" not in l and "Override" not in l and "grid=" not in l]
    out = hdr + ["; @launch grid=(256,1,1) block=(512,1,1) lds=%d" % LDS_BYTES,
                 '.amdgcn_target "amdgcn-amd-amdhsa--gfx950"', ".text", ".globl %s_kernel" % NAME, ".p2align 8",
                 ".type %s_kernel,@function" % NAME,
                 ".set CODE_PF_MAX, L_codeend - L_nopf - 4" if Opt.code_pf else "",
                 "%s_kernel:" % NAME]
    out += ["; mapmode %d" % Opt.mapmode, "; xrot %d" % Opt.xrot]
    out += a.l
    out += ['.section .rodata,"a"', ".p2align 6", ".amdhsa_kernel %s_kernel" % NAME,
            "  .amdhsa_next_free_vgpr %d" % NV, "  .amdhsa_next_free_sgpr 102", "  .amdhsa_accum_offset 256",
            "  .amdhsa_group_segment_fixed_size 0", "  .amdhsa_kernarg_size 104", "  .amdhsa_user_sgpr_count 2",
            "  .amdhsa_user_sgpr_kernarg_segment_ptr 1", "  .amdhsa_system_sgpr_workgroup_id_x 1", ".end_amdhsa_kernel", ""]
    return "\n".join(out)

if __name__ == "__main__":
    path = sys.argv[1]
    for kv in sys.argv[2:]:
        k, val = kv.split("=")
        cur = getattr(Opt, k)
        setattr(Opt, k, val if isinstance(cur, str) else type(cur)(int(val)))
    open(path, "w").write(build())
```

```python
import sys, struct, math

NAME = "gated_mix__grouped_kv_mqa__geglu_ffn__prompt"

class Opt:
    diag = 0
    mapmode = 1
    force_fb = False
    out_pol = ""
    code_pf = True
    xrot = 0
    pregap = 0
    tbar = 0
    hord = 1
    cmap = 1
    kqx = 0
    oearly = 8
    conc = 1
    ghx = 0
    qa = "288888"
    qb = "477777"
    npre = 8
    stagger = 1
    rper = 2
    dma1 = 17
    kprio = 0
    dma0 = 8
    npd = 4
    kdiag = 0
    fillpre = 0
    fillper = 4
    gsc = 2
    sched = 2
    xmask = 1
    ntx = 0
    touch = 2
    rotg = 0
    rotm = 0
    startbar = 1
    pvz = 1
    pin = -1
    pin_ns = 60000
    probe = -1
    probe_x = -1
    probe_l = 0

def f2u(x): return struct.unpack("<I", struct.pack("<f", x))[0]

WS_KV = 0
WS_G = 128 * 1024
WS_HFLAG = 192 * 1024
WS_OF = 1 << 20
WS_HF = 4 << 20
WS_STAMP = 12 << 20
WS_SIZE = 16 << 20
K1 = 1024
L_G, L_U, L_X, L_WQ = 0, 48 * K1, 96 * K1, 144 * K1
L_QX = 32 * K1
L_WD, L_WO, L_KV = 0, 64 * K1, 128 * K1
LL_X, LL_W, LL_GATE, LL_WQ = 0, 128 * K1, 144 * K1, 128 * K1
LDS_BYTES = 160 * K1

SX, SWG, SWU, SWQ, SWS, SWD, SWO, SOUT, SDBG, SWKV, SGATE, SKV = 4, 8, 12, 16, 20, 24, 28, 32, 36, 40, 44, 64
SWV = 72
sTMPP = 48
sW, sHI, sLO, sG, sM, sT, sCB = 50, 51, 52, 53, 54, 55, 56
sWK = 57
sWH = 58
sK64 = 59
sVM = 60
sRET = 62
sA, sB, sC, sD = 68, 69, 70, 71
sOFFW, sOFFQ, sCH, sXP = 72, 73, 74, 75
sHOFF, sWDOFF, sKVOFF, sM0WD, sM0KV, sCNT = 72, 73, 74, 75, 76, 77
sOST, sOLD, sHST = 78, 79, 80
sHST2 = 3
sKQ = 76
sHP = 81
sSTAMP = 82

def srd(b): return "s[%d:%d]" % (b, b + 3)
def sp(b): return "s[%d:%d]" % (b, b + 1)
def v(b, n=1): return "v%d" % b if n == 1 else "v[%d:%d]" % (b, b + n - 1)

vL16 = 1
vT0, vT1, vT2, vT3 = 2, 3, 4, 5
vGP, vGC = 6, 7
vKVA = 8
vWDA = 9
vWDV = 10
vONE = 11
vZERO = 12
vFLA = 13
vPOLL = 14
vGA = 15
vQ = 16
vK0 = 20
vV1L = 24
vE = 28
vP = 32
vV = 40
vO = 56
vD = 72
vACC = 104
vS = 104
vH = 136
vAQ = vP
vF1 = 168
vKF = 168
vWF = 176
vFR = 184
vLX = 224
vXA = 240
vWA = 244
vQA = 248
vDX, vDG, vDQ = 249, 250, 251
vC0 = 252
vHA = 254
NV = 256

class Asm:
    def __init__(self):
        self.l = []
        self.vm = []
        self.nstamp = 0
    def e(self, s):
        for x in s.split("\n"):
            x = x.strip()
            if x: self.l.append("    " + x)
    def lab(self, s): self.l.append(s + ":")
    def vmop(self, s, tag):
        self.e(s); self.vm.append(tag)
    def vmn(self, tags):
        if isinstance(tags, str): tags = [tags]
        last = -1
        for i, t in enumerate(self.vm):
            if t in tags: last = i
        return None if last < 0 else len(self.vm) - 1 - last
    def waitvm(self, tags, lgkm=False):
        n = self.vmn(tags)
        if n is None:
            if lgkm: self.e("s_waitcnt lgkmcnt(0)")
            return
        assert n < 64
        self.e("s_waitcnt vmcnt(%d)%s" % (n, " lgkmcnt(0)" if lgkm else ""))
        self.vm = self.vm[len(self.vm) - n:] if n else []
    def wait0(self, lgkm=False):
        self.e("s_waitcnt vmcnt(0)%s" % (" lgkmcnt(0)" if lgkm else "")); self.vm = []
    def stamp(self, i, real=False):
        if Opt.probe == i:
            self.e("s_waitcnt lgkmcnt(0)")
            self.e("s_memrealtime %s" % sp(sSTAMP + 4))
            self.e("s_waitcnt lgkmcnt(0)")
        if Opt.pin == i:
            self.nstamp += 1
            self.e("s_waitcnt lgkmcnt(0)")
            self.e("s_cselect_b32 s%d, 1, 0" % (sSTAMP + 5))
            self.lab("L_pin%d" % self.nstamp)
            self.e("s_memrealtime s[0:1]")
            self.e("s_waitcnt lgkmcnt(0)")
            self.e("s_sub_u32 s0, s0, s%d" % sSTAMP)
            self.e("s_cmp_lt_u32 s0, %d" % (Opt.pin_ns // 10))
            self.e("s_cbranch_scc1 L_pin%d" % self.nstamp)
            self.e("s_cmp_lg_u32 s%d, 0" % (sSTAMP + 5))
        if Opt.diag and not Opt.kdiag and (Opt.diag == 1 or i == 9):
            self.e("s_waitcnt lgkmcnt(0)")
            self.e("s_memtime %s" % sp(sSTAMP + 2 * i))
            self.e("s_memrealtime s[0:1]")
            self.e("s_waitcnt lgkmcnt(0)")
            self.e("s_mov_b32 s%d, s0" % (sSTAMP + 2 * i + 1))

def astamp(a, i):
    if Opt.diag and Opt.kdiag == 2: a.e("s_memtime %s" % sp(sSTAMP + 2 * i))

def kstamp(a, i):
    if Opt.probe == 18 + i: a.e("s_memrealtime %s" % sp(sSTAMP + 4))
    if Opt.diag and Opt.kdiag == 1: a.e("s_memtime %s" % sp(sSTAMP + 2 * i))

def mfma(d, a, b, c):
    return "v_mfma_f32_32x32x16_bf16 %s, %s, %s, %s" % (v(d, 16), v(a, 4), v(b, 4), "0" if c is None else v(c, 16))
def mfma16(d, a, b, c):
    return "v_mfma_f32_16x16x32_bf16 %s, %s, %s, %s" % (v(d, 4), v(a, 4), v(b, 4), "0" if c is None else v(c, 4))
def rd128(d, a, off):
    assert 0 <= off < 65536
    return "ds_read_b128 %s, %s offset:%d" % (v(d, 4), v(a), off)
def rdtr(d, a, off):
    assert 0 <= off < 65536
    return "ds_read_b64_tr_b16 %s, %s offset:%d" % (v(d, 2), v(a), off)

def interleave(mf, fill, per=2):
    out = []
    fill = list(fill)
    for i, m in enumerate(mf):
        out.append(m)
        if i < len(mf) - 1:
            out += fill[:per]; fill = fill[per:]
    return out + fill

def srd_words(a, regs):
    sizes = {SX: 2048 * 1024, SWG: 512 * 3584, SWU: 512 * 3584, SWQ: 512 * 1024, SWS: WS_SIZE, SWKV: 16384, SWV: 16384,
             SGATE: 1024, SWD: 1792 * 1024, SWO: 512 * 1024, SOUT: 2048 * 1024, SDBG: 256, SKV: 128 * 1024}
    for reg in regs:
        a.e("s_mov_b32 s%d, 0x%x" % (reg + 2, sizes[reg]))
        a.e("s_mov_b32 s%d, 0x20000" % (reg + 3))

def prologue(a):
    a.e("s_cmp_ge_u32 s2, 256")
    a.e("s_cbranch_scc1 L_end")
    for reg, off in ((SX, 0), (SWG, 48), (SWU, 56), (SWQ, 8), (SWS, 96), (SWKV, 16), (sTMPP, 24), (SGATE, 72),
                     (SWD, 64), (SWO, 32), (SOUT, 80), (SDBG, 88), (SKV, 96)):
        a.e("s_load_dwordx2 %s, s[0:1], %d" % (sp(reg), off))
    if Opt.probe >= 0: a.e("s_memrealtime %s" % sp(sSTAMP + 4))
    if Opt.diag or Opt.pin >= 0 or Opt.probe >= 0:
        a.e("s_memrealtime %s" % sp(sSTAMP))
        a.e("s_memtime %s" % sp(sSTAMP + 2))
    a.e("v_lshrrev_b32 v2, 6, v0")
    a.e("v_and_b32 v0, 63, v0")
    a.e("v_readfirstlane_b32 s%d, v2" % sW)
    a.e("v_lshlrev_b32 %s, 4, v0" % v(vL16))
    srd_words(a, [SX, SWQ])
    a.e("s_and_b32 s%d, s2, 7" % sA)
    a.e("s_lshr_b32 s%d, s2, 3" % sB)
    if Opt.cmap:
        a.e("s_andn2_b32 s%d, 1, s%d" % (sT, sA))
        a.e("s_lshl_b32 s%d, s%d, 2" % (sT, sT))
        a.e("s_lshr_b32 s%d, s%d, 1" % (sD, sA))
        a.e("s_add_u32 s%d, s%d, s%d" % (sT, sT, sD))
        a.e("s_lshl_b32 s%d, s%d, 2" % (sT, sT))
    else:
        a.e("s_lshl_b32 s%d, s%d, 2" % (sT, sA))
    a.e("s_and_b32 s%d, s%d, 3" % (sD, sB))
    a.e("s_add_u32 s%d, s%d, s%d" % (sT, sT, sD))
    a.e("s_lshr_b32 s%d, s%d, 2" % (sCB, sB))
    if Opt.xrot:
        a.e("s_add_u32 s%d, s%d, %d" % (sA, sA, Opt.xrot))
        a.e("s_and_b32 s%d, s%d, 7" % (sA, sA))
    if Opt.mapmode == 0:
        a.e("s_lshl_b32 s%d, s%d, 1" % (sG, sA))
        a.e("s_and_b32 s%d, s%d, 1" % (sC, sB))
        a.e("s_add_u32 s%d, s%d, s%d" % (sG, sG, sC))
        a.e("s_lshr_b32 s%d, s%d, 1" % (sM, sB))
        a.e("s_mov_b32 s%d, s%d" % (sHP, sM))
    elif Opt.mapmode in (1, 3):
        a.e("s_and_b32 s%d, s%d, 1" % (sG, sA))
        a.e("s_lshl_b32 s%d, s%d, 3" % (sG, sG))
        a.e("s_and_b32 s%d, s%d, 7" % (sC, sB))
        a.e("s_add_u32 s%d, s%d, s%d" % (sG, sG, sC))
        a.e("s_lshr_b32 s%d, s%d, 1" % (sA, sA))
        a.e("s_lshl_b32 s%d, s%d, 2" % (sHP, sA))
        a.e("s_lshr_b32 s%d, s%d, 3" % (sC, sB))
        a.e("s_add_u32 s%d, s%d, s%d" % (sHP, sHP, sC))
        if Opt.mapmode == 1:
            a.e("s_mov_b32 s%d, s%d" % (sM, sHP))
        else:
            a.e("s_sub_u32 s%d, s%d, s%d" % (sM, sHP, sA))
            a.e("s_lshr_b32 s%d, s%d, 1" % (sB, sB))
            a.e("s_and_b32 s%d, s%d, 2" % (sB, sB))
            a.e("s_add_u32 s%d, s%d, s%d" % (sB, sB, sA))
            a.e("s_and_b32 s%d, s%d, 3" % (sB, sB))
            a.e("s_add_u32 s%d, s%d, 12" % (sB, sB))
            a.e("s_cmp_eq_u32 s%d, 3" % sC)
            a.e("s_cselect_b32 s%d, s%d, s%d" % (sM, sB, sM))
    else:
        a.e("s_and_b32 s%d, s%d, 3" % (sG, sA))
        a.e("s_lshl_b32 s%d, s%d, 2" % (sG, sG))
        a.e("s_add_u32 s%d, s%d, s%d" % (sG, sG, sD))
        a.e("s_lshr_b32 s%d, s%d, 2" % (sM, sA))
        a.e("s_lshl_b32 s%d, s%d, 3" % (sM, sM))
        a.e("s_add_u32 s%d, s%d, s%d" % (sM, sM, sCB))
        a.e("s_mov_b32 s%d, s%d" % (sHP, sM))
    a.e("s_lshl_b32 s%d, s%d, 10" % (sWK, sW))
    a.e("s_mov_b32 s%d, 0x10000" % sK64)
    if Opt.code_pf:
        a.e("s_cmp_lg_u32 s%d, s%d" % (sD, sW))
        a.e("s_cbranch_scc1 L_nopf")
        a.e("s_getpc_b64 %s" % sp(sRET))
        a.e("s_lshl_b32 s%d, s%d, 13" % (sD, sW))
        a.e("v_lshl_add_u32 v2, v0, 7, s%d" % sD)
        a.e("v_min_u32 v2, CODE_PF_MAX, v2")
        a.e("global_load_dword %s, v2, %s" % (v(vPOLL), sp(sRET)))
        a.lab("L_nopf")
    a.e("s_lshl_b32 s%d, s%d, 2" % (sA, sW))
    a.e("v_lshrrev_b32 v2, 4, v0")
    a.e("v_add_u32 v3, s%d, v2" % sA)
    a.e("v_xor_b32 v3, v3, v0")
    a.e("v_and_b32 v3, 7, v3")
    a.e("v_lshlrev_b32 v3, 4, v3")
    a.e("v_lshrrev_b32 v4, 3, v0")
    a.e("v_lshl_add_u32 v3, v4, 10, v3")
    a.e("s_lshl_b32 s%d, s%d, 17" % (sA, sG))
    a.e("s_lshl_b32 s%d, s%d, 13" % (sB, sW))
    a.e("s_add_u32 s%d, s%d, s%d" % (sA, sA, sB))
    a.e("v_add_u32 %s, s%d, v3" % (v(vDX), sA))
    a.e("s_cmp_ge_u32 s%d, 14" % sM)
    a.e("s_cbranch_scc1 L_light")

def setup_rd(a):
    a.e("s_lshr_b32 s%d, s%d, 2" % (sHI, sW))
    a.e("s_and_b32 s%d, s%d, 3" % (sLO, sW))
    a.e("v_and_b32 v2, 15, v0")
    a.e("v_lshrrev_b32 v3, 4, v0")
    a.e("v_bfe_u32 v4, v0, 1, 3")
    a.e("v_xor_b32 v4, v4, v3")
    a.e("v_lshlrev_b32 v4, 4, v4")
    a.e("v_lshl_add_u32 %s, v2, 7, v4" % v(vXA))
    a.e("v_bfe_u32 v2, v0, 2, 2")
    a.e("v_and_b32 v4, 3, v0")
    a.e("v_lshl_add_u32 %s, v3, 3, v2" % v(vQA))
    a.e("v_lshlrev_b32 %s, 6, %s" % (v(vQA), v(vQA)))
    a.e("v_xor_b32 v5, s%d, v3" % sHI)
    a.e("v_and_b32 v5, 1, v5")
    a.e("v_lshl_add_u32 %s, v5, 5, %s" % (v(vQA), v(vQA)))
    a.e("v_lshl_add_u32 %s, v4, 3, %s" % (v(vQA), v(vQA)))

def setup_oclr(a):
    srd_words(a, [SWS, SKV, SDBG])
    a.e("s_mov_b32 s%d, 0xffff" % sVM)
    a.e("s_mov_b32 s%d, 0xffff" % (sVM + 1))
    a.e("s_lshl_b32 s%d, s%d, 2" % (sA, sG))
    a.e("s_add_u32 s%d, s%d, s%d" % (sA, sA, sLO))
    a.e("s_lshl_b32 s%d, s%d, 5" % (sB, sA))
    a.e("s_lshl_b32 s%d, s%d, 1" % (sC, sHP))
    a.e("s_add_u32 s%d, s%d, s%d" % (sB, sB, sC))
    a.e("s_add_u32 s%d, s%d, s%d" % (sB, sB, sHI))
    a.e("s_lshl_b32 s%d, s%d, 10" % (sB, sB))
    a.e("s_add_u32 s%d, s%d, 0x%x" % (sOST, sB, WS_OF))
    for i in range(4): a.e("v_mov_b32 %s, -1" % v(vQ + i))
    a.vmop("buffer_store_dwordx4 %s, %s, %s, s%d offen sc1" % (v(vQ, 4), v(vL16), srd(SWS), sOST), "oclr")
    a.e("v_mov_b32 %s, 1" % v(vONE))
    a.e("v_mov_b32 %s, 0" % v(vZERO))
    a.e("v_and_b32 %s, 31, v0" % v(vGA))
    a.e("v_lshlrev_b32 %s, 2, %s" % (v(vGA), v(vGA)))

def collect(fn):
    t = Asm(); t.marks = {}
    def vmop(s_, tag):
        t.e(s_); t.marks[len(t.l) - 1] = tag
    t.vmop = vmop
    fn(t)
    return [(x, t.marks.get(i)) for i, x in enumerate(t.l)]
def put(a, items):
    for x, tag in items:
        if tag: a.vmop(x, tag)
        else: a.e(x)

def setup_attn(a):
    srd_words(a, [SWD, SWO, SOUT])
    a.e("s_lshl_b32 s%d, s%d, 2" % (sA, sG))
    a.e("s_add_u32 s%d, s%d, s%d" % (sA, sA, sLO))
    a.e("s_mul_i32 s%d, s%d, 112" % (sB, sA))
    a.e("s_lshl_b32 s%d, s%d, 3" % (sC, sM))
    a.e("s_add_u32 s%d, s%d, s%d" % (sB, sB, sC))
    a.e("s_lshl_b32 s%d, s%d, 2" % (sC, sHI))
    a.e("s_add_u32 s%d, s%d, s%d" % (sB, sB, sC))
    a.e("s_and_b32 s%d, s%d, 1" % (sC, sLO))
    a.e("s_lshl_b32 s%d, s%d, 1" % (sC, sC))
    a.e("s_add_u32 s%d, s%d, s%d" % (sB, sB, sC))
    a.e("s_lshl_b32 s%d, s%d, 10" % (sB, sB))
    a.e("s_add_u32 s%d, s%d, 0x%x" % (sHST, sB, WS_HF))
    a.e("s_mul_i32 s%d, s%d, %d" % (sC, sC, 112 * 1024))
    a.e("s_sub_u32 s%d, %d, s%d" % (sC, 112 * 1024, sC))
    a.e("s_add_u32 s%d, s%d, s%d" % (sHST2, sHST, sC))
    a.e("v_bfe_u32 v2, v0, 2, 2")
    a.e("v_lshrrev_b32 v3, 5, v0")
    a.e("v_lshl_add_u32 v2, v3, 2, v2")
    a.e("v_lshlrev_b32 v2, 6, v2")
    a.e("v_bfe_u32 v3, v0, 4, 1")
    a.e("v_lshl_add_u32 v2, v3, 5, v2")
    a.e("v_and_b32 v3, 3, v0")
    a.e("v_lshl_add_u32 v2, v3, 3, v2")
    a.e("s_lshr_b32 s%d, s%d, 1" % (sA, sW))
    a.e("s_lshl_b32 s%d, s%d, 11" % (sA, sA))
    a.e("v_add_u32 %s, s%d, v2" % (v(vWDA), sA))
    a.e("v_add_u32 %s, 0x%x, %s" % (v(vKVA), L_KV, v(vL16)))
    a.e("v_bfe_u32 v2, v0, 2, 3")
    a.e("v_lshlrev_b32 v2, 10, v2")
    a.e("v_lshrrev_b32 v3, 5, v0")
    a.e("v_lshl_add_u32 v2, v3, 6, v2")
    a.e("v_and_b32 v3, 3, v0")
    a.e("v_lshl_add_u32 v2, v3, 4, v2")
    a.e("s_lshl_b32 s%d, s%d, 7" % (sB, sCB))
    a.e("v_add_u32 %s, s%d, v2" % (v(vWDV), sB))
    a.e("v_min_u32 v2, 13, v0")
    a.e("v_lshlrev_b32 v2, 7, v2")
    a.e("s_lshr_b32 s%d, s%d, 1" % (sA, sT))
    a.e("s_lshl_b32 s%d, s%d, 11" % (sA, sA))
    a.e("s_add_u32 s%d, s%d, 0x%x" % (sA, sA, WS_HFLAG))
    a.e("v_add_u32 %s, s%d, v2" % (v(vFLA), sA))
    a.e("s_lshl_b32 s%d, s%d, 1" % (sA, sT))
    a.e("s_and_b32 s%d, s%d, 1" % (sB, sW))
    a.e("s_add_u32 s%d, s%d, s%d" % (sA, sA, sB))
    a.e("s_lshl_b32 s%d, s%d, 15" % (sB, sA))
    a.e("s_lshr_b32 s%d, s%d, 1" % (sKQ, sW))
    if Opt.kqx:
        a.e("s_lshl_b32 s%d, s%d, 1" % (sC, sCB))
        a.e("s_and_b32 s%d, s%d, 2" % (sC, sC))
        a.e("s_xor_b32 s%d, s%d, s%d" % (sKQ, sKQ, sC))
    a.e("s_lshl_b32 s%d, s%d, 13" % (sC, sKQ))
    a.e("s_add_u32 s%d, s%d, s%d" % (sB, sB, sC))
    a.e("s_add_u32 s%d, s%d, 0x%x" % (sOLD, sB, WS_OF))
    if Opt.pvz:
        a.e("s_mov_b32 s%d, 0x110000" % sA)
        a.e("s_mov_b32 s%d, 0x110000" % sB)
        a.e("v_mov_b32 v3, 0x3f803f80")
        a.e("v_cndmask_b32 v2, 0, v3, %s" % sp(sA))
    else:
        a.e("v_mov_b32 v2, 0x3f803f80")
    for i in range(16): a.e("v_mov_b32 %s, v2" % v(vV + i))
    for i in range(4): a.e("v_mov_b32 %s, v2" % v(vV1L + i))
    for i in range(4): a.e("v_mov_b32 %s, 0" % v(vE + i))
    a.e("v_lshrrev_b32 v2, 4, v0")
    a.e("v_lshl_add_u32 %s, v2, 8, %s" % (v(vHA), v(vL16)))
    for i in range(16): a.e("v_mov_b32 %s, 0" % v(vO + i))
    for i in range(32): a.e("v_mov_b32 %s, 0" % v(vD + i))
    c0 = -2.0 * math.sqrt(2.0 / math.pi) * math.log2(math.e)
    a.e("v_mov_b32 %s, 0x%x" % (v(vC0), f2u(c0)))
    a.e("v_mov_b32 %s, 0x%x" % (v(vC0 + 1), f2u(c0 * 0.044715)))

def kv_first_loads(a):
    it = []
    for u in range(2):
        it.append(("s_add_u32 m0, s%d, 0x%x\ns_add_u32 s%d, s%d, 0x%x\nbuffer_load_dwordx4 %s, %s, s%d offen sc1 lds"
                   % (sWK, L_KV + u * 8192, sA, sWK, u * 8192, v(vL16), srd(SKV), sA), "kv%d" % u))
    it.append(("s_mov_b32 s%d, 0x%x\nbuffer_load_dwordx4 %s, %s, %s, s%d offen sc1"
               % (sA, 63 * 2048, v(vK0, 4), v(vL16), srd(SKV), sA), "k0"))
    it.append(("s_mov_b64 exec, %s\nbuffer_load_dwordx4 %s, %s, %s, 0 offen offset:%d sc1\ns_mov_b64 exec, -1"
               % (sp(sVM), v(vV1L, 4), v(vL16), srd(SKV), 1024 + 256), "k0"))
    it.append(("s_lshl_b32 s%d, s%d, 2\ns_add_u32 s%d, s%d, s%d\ns_lshl_b32 s%d, s%d, 7\ns_add_u32 s%d, s%d, 0x%x\n"
               "buffer_load_dword %s, %s, %s, s%d offen sc1"
               % (sA, sG, sA, sA, sLO, sA, sA, sA, sA, WS_G, v(vGP), v(vGA), srd(SWS), sA), "k0"))
    it.append(("s_lshl_b32 s%d, s%d, 1\ns_and_b32 s%d, s%d, 1\ns_add_u32 s%d, s%d, s%d\ns_lshl_b32 s%d, s%d, 7\ns_add_u32 s%d, s%d, 0x%x\n"
               "buffer_load_dword %s, %s, %s, s%d offen sc1"
               % (sA, sT, sB, sW, sA, sA, sB, sA, sA, sA, sA, WS_G, v(vGC), v(vGA), srd(SWS), sA), "k0"))
    return it

def spin_counter(a, name, first_loaded):
    a.e("s_cmp_lg_u32 s%d, 0" % sW)
    a.e("s_cbranch_scc1 L_%s_done" % name)
    a.e("s_mov_b32 s%d, 0x4000" % sB)
    if first_loaded: a.e("s_branch L_%s_chk" % name)
    a.lab("L_%s_re" % name)
    a.e("buffer_load_dword %s, off, %s, 0 sc1" % (v(vPOLL), srd(SDBG)))
    a.e("s_waitcnt vmcnt(0)")
    a.lab("L_%s_chk" % name)
    a.e("v_readfirstlane_b32 s%d, %s" % (sA, v(vPOLL)))
    a.e("s_cmp_ge_u32 s%d, 32" % sA)
    a.e("s_cbranch_scc1 L_%s_done" % name)
    a.e("s_sleep 4")
    a.e("s_sub_u32 s%d, s%d, 1" % (sB, sB))
    a.e("s_cmp_lg_u32 s%d, 0" % sB)
    a.e("s_cbranch_scc1 L_%s_re" % name)
    a.lab("L_%s_done" % name)

def phase1_F(a):
    SCHED = {1: ["01423567", "10253467", "23016457", "32104756"],
             2: ["02134657", "01324576", "10243567", "10235467"],
             3: ["01324657", "01243576", "12035467", "20134567"]}
    tabs = SCHED[Opt.sched] if Opt.sched else ["".join(str(c ^ (p & Opt.xmask)) for c in range(8)) for p in range(4)]
    for t_ in tabs: assert sorted(t_) == list("01234567")
    num = [int(t_[::-1], 16) for t_ in tabs]
    a.e("s_add_u32 s%d, s%d, s%d" % (sA, sG, sHP))
    a.e("s_mov_b32 s%d, 0x%x" % (sXP, num[0]))
    a.e("s_mov_b32 s%d, 0x%x" % (sB, num[2]))
    a.e("s_bitcmp1_b32 s%d, 0" % sA)
    a.e("s_cselect_b32 s%d, 0x%x, s%d" % (sXP, num[1], sXP))
    a.e("s_cselect_b32 s%d, 0x%x, s%d" % (sB, num[3], sB))
    a.e("s_bitcmp1_b32 s%d, 1" % sA)
    a.e("s_cselect_b32 s%d, s%d, s%d" % (sXP, sB, sXP))
    if Opt.ghx:
        a.e("s_bitcmp1_b32 s%d, 3" % sG)
        a.e("s_cselect_b32 s%d, 0x44444444, 0" % sB)
        a.e("s_xor_b32 s%d, s%d, s%d" % (sXP, sXP, sB))
    a.e("s_and_b32 s%d, s%d, 3" % (sLO, sW))
    a.e("s_lshl_b32 s%d, s%d, 10" % (sWH, sLO))

    def wvoff(a):
        a.e("s_lshl_b32 s%d, s%d, 1" % (sA, sLO))
        a.e("s_and_b32 s%d, s%d, 4" % (sA, sA))
        a.e("v_lshrrev_b32 v2, 4, v0")
        a.e("v_bfe_u32 v3, v0, 1, 3")
        a.e("v_xor_b32 v3, v3, v2")
        a.e("v_xor_b32 v3, s%d, v3" % sA)
        a.e("v_lshlrev_b32 v3, 5, v3")
        a.e("v_and_b32 v4, 1, v0")
        a.e("v_lshl_add_u32 v3, v4, 4, v3")
        a.e("v_mul_u32_u24 v5, 3584, v2")
        a.e("s_mul_i32 s%d, s%d, %d" % (sA, sLO, 4 * 3584))
        a.e("s_lshl_b32 s%d, s%d, 8" % (sB, sM))
        a.e("s_add_u32 s%d, s%d, s%d" % (sA, sA, sB))
        a.e("v_add3_u32 %s, v3, v5, s%d" % (v(vDG), sA))
    def qvoff(a):
        a.e("v_lshrrev_b32 v3, 2, v0")
        a.e("v_lshlrev_b32 v3, 10, v3")
        a.e("v_bfe_u32 v4, v0, 4, 2")
        a.e("v_and_b32 v4, 2, v4")
        a.e("v_xor_b32 v4, v4, v0")
        a.e("v_and_b32 v4, 3, v4")
        a.e("v_lshl_add_u32 v3, v4, 4, v3")
        a.e("s_lshl_b32 s%d, s%d, 14" % (sA, sLO))
        a.e("s_lshl_b32 s%d, s%d, 6" % (sB, sHP))
        a.e("s_add_u32 s%d, s%d, s%d" % (sA, sA, sB))
        a.e("v_add_u32 %s, s%d, v3" % (v(vDQ), sA))

    ORDER = [("q", 0)] + [("x", j) for j in range(4)] + [(t_, j) for j in range(4) for t_ in "gu"]
    def block(items):
        out = []; lastc = None; lastw = None
        for c, kind, j in items:
            s = c % 3; pre = []
            if c != lastc:
                pre.append("s_bfe_u32 s%d, s%d, 0x%x" % (sCH, sXP, 0x30000 + 4 * c)); lastc = c; lastw = None
            fam = "w" if kind in "gu" else kind
            if lastw is None or lastw[0] != fam:
                pre.append({"q": "s_lshl_b32 s%d, s%d, 16" % (sOFFW, sCH), "x": "s_lshl_b32 s%d, s%d, 7" % (sOFFW, sCH),
                            "w": "s_mul_i32 s%d, s%d, %d" % (sOFFW, sCH, 64 * 3584)}[fam])
                lastw = (fam, 0)
            if lastw[1] != j:
                pre.append("s_add_u32 s%d, s%d, 0x%x" % (sOFFW, sOFFW, (j - lastw[1]) * (0x8000 if fam == "x" else 16 * 3584)))
                lastw = (fam, j)
            m0c, vo, rs = {"q": (L_WQ + s * 4096, vDQ, SWQ), "x": (L_X + s * 16384 + j * 4096, vDX, SX),
                           "g": (L_G + s * 16384 + j * 4096, vDG, SWG), "u": (L_U + s * 16384 + j * 4096, vDG, SWU)}[kind]
            nt = " nt" if Opt.ntx & (1 if rs == SX else 2) else ""
            out.append(("s_add_u32 m0, s%d, 0x%x\n%s\nbuffer_load_dwordx4 %s, %s, s%d offen%s lds"
                        % (sWH, m0c, "\n".join(pre) or "s_nop 0", v(vo), srd(rs), sOFFW, nt), "c%d" % c))
        return out
    def part(c, role): return [(c, k_, j) for k_, j in ORDER if (k_ in "gu") == (role == "A")]

    def rdsetup(a):
        setup_rd(a)
        a.e("v_lshl_add_u32 %s, v3, 3, v2" % v(vWA))
        a.e("v_lshlrev_b32 %s, 8, %s" % (v(vWA), v(vWA)))
        a.e("v_lshl_add_u32 %s, v4, 3, %s" % (v(vWA), v(vWA)))
        a.e("v_and_b32 v5, 1, v3")
        a.e("v_lshl_add_u32 v2, v5, 2, v2")
        a.e("s_lshl_b32 s%d, s%d, 2" % (sA, sHI))
        a.e("s_and_b32 s%d, s%d, 1" % (sB, sLO))
        a.e("s_lshl_b32 s%d, s%d, 1" % (sB, sB))
        a.e("s_add_u32 s%d, s%d, s%d" % (sA, sA, sB))
        a.e("v_xor_b32 v2, s%d, v2" % sA)
        a.e("v_lshl_add_u32 %s, v2, 5, %s" % (v(vWA), v(vWA)))
        a.e("v_xor_b32 %s, 32, %s" % (v(vWA + 1), v(vWA)))
        a.e("v_add_u32 %s, 0x%x, %s" % (v(vWA + 2), L_U - L_G, v(vWA)))
        a.e("v_add_u32 %s, 0x%x, %s" % (v(vWA + 3), L_U - L_G, v(vWA + 1)))
        a.e("s_lshl_b32 s%d, s%d, 12" % (sA, sLO))
        a.e("s_add_u32 s%d, s%d, 0x%x" % (sA, sA, L_X))
        a.e("v_add_u32 %s, s%d, %s" % (v(vXA), sA, v(vXA)))
        a.e("v_xor_b32 %s, 0x1000, %s" % (v(vXA + 1), v(vXA)))
        a.e("v_xor_b32 %s, 64, %s" % (v(vXA + 2), v(vXA)))
        a.e("v_xor_b32 %s, 64, %s" % (v(vXA + 3), v(vXA + 1)))
        a.e("v_add_u32 %s, 0x%x, %s" % (v(vQA), L_WQ, v(vQA)))

    srd_words(a, [SWG, SWU])
    a.e("s_cmp_ge_u32 s%d, 4" % sW)
    a.e("s_cbranch_scc1 L_setB")
    late = collect(setup_oclr) + collect(setup_attn)
    words = collect(lambda t: srd_words(t, [SWS, SKV, SDBG, SWD, SWO, SOUT]))
    late = [x for x in late if x not in words]
    words += [("v_mov_b32 %s, 0" % v(r_), None) for r_ in (vGA, vWDV, vFLA, vHA)]
    st = collect(rdsetup) + words + late[:Opt.fillpre]
    fills = {"A": late[Opt.fillpre:], "B": late[Opt.fillpre:]}
    vms = {}
    for role in "AB":
        a.vm = []
        if role == "A":
            wvoff(a)
        else:
            a.lab("L_setB")
            a.e("v_subrev_u32 %s, 0x8000, %s" % (v(vDX), v(vDX)))
            qvoff(a)
        a.e("s_waitcnt lgkmcnt(0)")
        a.stamp(2)
        put(a, block(part(0, role)))
        if Opt.startbar: a.e("s_barrier")
        npre = min(Opt.npre, 8) if role == "A" else 5
        pn = block(part(1, role)[:npre])
        rest = st + collect(qvoff if role == "A" else wvoff)
        gap = len(rest) // (npre + Opt.pregap) + 1
        for i in range(npre):
            put(a, pn[:1]); pn = pn[1:]
            put(a, rest[:gap]); rest = rest[gap:]
        put(a, rest)
        a.e("s_mov_b64 vcc, %d" % (-1 if role == "A" else 0))
        if role == "A":
            a.waitvm("c0")
            a.e("s_branch L_k0")
        else:
            a.e("s_setprio 1")
            a.waitvm("c0")
        vms[role] = a.vm
    stream = part(1, "A")[min(Opt.npre, 8):] + [(c, k_, j) for c in range(2, 8) for k_, j in ORDER]
    qa = [int(x, 16) for x in Opt.qa]; qb = [int(x, 16) for x in Opt.qb]
    def take(n, cmax):
        m = 0
        while m < n and m < len(stream) and stream[m][0] <= cmax: m += 1
        r_ = stream[:m]; del stream[:m]
        return block(r_)
    a.lab("L_k0")
    a.vm = vms["A"]
    ool = Asm()
    def dmablock(name, role, items, wait=None):
        a.e("s_cbranch_vcc%s L_%s" % ("nz" if role == "A" else "z", name))
        if wait: a.waitvm(wait, lgkm=True)
        a.lab("L_%s_r" % name)
        ool.lab("L_%s" % name)
        ool.vm = a.vm if role == "A" else vms["B"]
        for it_ in items:
            if it_[1] is None: put(ool, fills[role]); fills[role] = []
            put(ool, [it_])
            put(ool, fills[role][:Opt.fillper]); fills[role] = fills[role][Opt.fillper:]
        if name == "e7": put(ool, fills[role]); fills[role] = []
        if wait: ool.waitvm(wait, lgkm=True)
        if role == "B": vms["B"] = ool.vm
        ool.e("s_branch L_%s_r" % name)
    a.ool = ool.l

    def fr(k):
        b = vF1 + 36 * (k % 2)
        return dict(x=b, w=b + 16, q=b + 32)
    def reads(k):
        c, s = divmod(k, 2); f = fr(k); sl = c % 3
        wo = sl * 16384 + s * 8192
        W = lambda i: [rdtr(f['w'] + 4 * i, vWA + i, wo), rdtr(f['w'] + 4 * i + 2, vWA + i, wo + 1024)]
        X = [rd128(f['x'] + 4 * b, vXA + 2 * s + (b >> 1), sl * 16384 + (b & 1) * 2048) for b in range(4)]
        return W(0) + X + W(2) + W(1) + W(3) + [rdtr(f['q'], vQA, sl * 4096 + s * 2048), rdtr(f['q'] + 2, vQA, sl * 4096 + s * 2048 + 256)]
    a.e("s_barrier")
    a.stamp(3)
    if Opt.kdiag or Opt.probe >= 18:
        kstamp(a, 2)
        a.e("s_waitcnt lgkmcnt(0)")
    for r in reads(0): a.e(r)
    if qa[0]: dmablock("d2", "A", take(qa[0], 2))
    for k in range(16):
        c, s = divmod(k, 2); f = fr(k)
        z = lambda x: None if k == 0 else x
        mf = []
        for n_, i in enumerate((0, 2, 1, 3)):
            for b in (range(4) if n_ % 2 == 0 else range(3, -1, -1)):
                d = vACC + 16 * b + 4 * i
                mf.append(mfma16(d, f['w'] + 4 * i, f['x'] + 4 * b, z(d)))
        for b in range(2): mf.append(mfma16(vAQ + 4 * b, f['q'], f['x'] + 4 * b, z(vAQ + 4 * b)))
        rds = reads(k + 1) if k < 15 else []
        if s == 0:
            a.e("s_waitcnt lgkmcnt(6)")
            for i, m in enumerate(mf):
                if i == 8: a.e("s_waitcnt lgkmcnt(8)")
                a.e(m)
                if i < len(rds): a.e(rds[i])
            continue
        a.e("s_waitcnt lgkmcnt(8)")
        for m in mf[:4]: a.e(m)
        if c <= 5:
            dmablock("e%d" % (c + 2), "B", take(qb[c], c + 2), "c%d" % (c + 1))
            assert not any(x[0] <= c + 1 for x in stream)
        if c == 7:
            a.e("s_waitcnt lgkmcnt(0)")
        elif c == 6 and Opt.stagger:
            a.e("s_waitcnt lgkmcnt(0)")
            a.e("s_cbranch_vccz L_st7")
            a.e("s_waitcnt vmcnt(0)")
            spin_counter(a, "kvf", True)
            a.e("s_barrier")
            a.e("s_setprio 1")
            for x, _ in kv_first_loads(a): a.e(x)
            a.lab("L_st7")
        elif c == 6:
            a.e("s_setprio 0")
            a.wait0(lgkm=True)
            spin_counter(a, "kvf", True)
            a.e("s_barrier")
            put(a, kv_first_loads(a))
        else:
            a.e("s_barrier")
        if c < 7 and ((Opt.kdiag == 1 and Opt.diag) or Opt.probe == 21 + c):
            kstamp(a, 3 + c)
            a.e("s_waitcnt lgkmcnt(0)")
        if c + 3 < 8:
            items = take(qa[c + 1], c + 3)
            if c == 4:
                items.append(("s_cmp_lg_u32 s%d, 0\ns_cbranch_scc1 L_d7_r\nbuffer_load_dword %s, off, %s, 0 sc1"
                              % (sW, v(vPOLL), srd(SDBG)), None))
            dmablock("d%d" % (c + 3), "A", items)
        for i, m in enumerate(mf[4:]):
            a.e(m)
            if i < len(rds): a.e(rds[i])
        if k == 11: assert not stream and not fills["A"] and not fills["B"]
        if k == 11 and Opt.stagger:
            a.e("s_cbranch_vccnz L_st6")
            a.e("s_setprio 0")
            a.wait0()
            a.e("s_barrier")
            put(a, kv_first_loads(a))
            a.lab("L_st6")
    a.stamp(4)

def phase1_L(a):
    a.lab("L_light")
    a.vm = []
    srd_words(a, [SWKV, SWV, SGATE])
    a.e("s_sub_u32 s%d, s%d, 14" % (sCNT, sM))
    a.e("s_lshl_b32 s%d, s%d, 16" % (sOLD, sCNT))
    a.e("s_lshl_b32 s%d, s%d, 13" % (sHST, sCNT))
    a.e("s_add_u32 s%d, s%d, s%d" % (sWH, sHST, sWK))
    a.e("s_xor_b32 s%d, s%d, 0x2000" % (sHST, sHST))
    a.e("s_add_u32 s%d, s%d, 0x2000" % (sA, sWK))
    a.e("s_waitcnt lgkmcnt(0)")
    a.stamp(2)
    a.e("s_mov_b32 s%d, s%d" % (SWV, sTMPP))
    a.e("s_mov_b32 s%d, s%d" % (SWV + 1, sTMPP + 1))
    def xdma(c, base, so):
        a.vmop("s_add_u32 m0, s%d, 0x%x\ns_nop 0\nbuffer_load_dwordx4 %s, %s, s%d offen offset:%d lds"
               % (base, LL_X + c * 16384 - c * 128, v(vDX), srd(SX), so, c * 128), "c%d" % c)
    def wdma(u):
        for t, rs in enumerate((SWKV, SWV)):
            a.vmop("s_add_u32 m0, s%d, 0x%x\ns_nop 0\nbuffer_load_dwordx4 %s, %s, s%d offen lds"
                   % (sWK, LL_W + t * 16384 + u * 8192, v(vL16), srd(rs), sA if u else sWK), "w")
    wdma(0)
    a.vmop("s_mov_b32 m0, s%d\ns_nop 0\nbuffer_load_dwordx4 %s, %s, 0 offen lds" % (sHST, v(vL16), srd(SGATE)), "w")
    for c in range(8):
        if c == 4: wdma(1)
        xdma(c, sWH, sOLD)
        if c in (1, 3, 5): a.e("s_barrier")
    setup_rd(a)
    a.e("v_lshrrev_b32 v3, 5, v0")
    a.e("v_bfrev_b32 v5, v4")
    a.e("v_lshrrev_b32 v5, 30, v5")
    a.e("s_cmp_ge_u32 s%d, 2" % sLO)
    a.e("s_cselect_b64 vcc, -1, 0")
    a.e("v_cndmask_b32 v4, v5, v4, vcc")
    a.e("v_lshl_add_u32 %s, v3, 3, v2" % v(vWA))
    a.e("v_lshlrev_b32 %s, 5, %s" % (v(vWA), v(vWA)))
    a.e("v_lshl_add_u32 %s, v4, 3, %s" % (v(vWA), v(vWA)))
    a.e("s_lshr_b32 s%d, s%d, 1" % (sA, sLO))
    a.e("s_lshl_b32 s%d, s%d, 14" % (sA, sA))
    a.e("s_add_u32 s%d, s%d, 0x%x" % (sA, sA, LL_W))
    a.e("v_add_u32 %s, s%d, %s" % (v(vWA), sA, v(vWA)))
    a.e("v_lshl_add_u32 %s, v3, 4, s%d" % (v(vWA + 1), sHST))
    a.e("s_and_b32 s%d, s%d, 1" % (sA, sLO))
    a.e("s_lshl_b32 s%d, s%d, 1" % (sB, sCNT))
    a.e("s_add_u32 s%d, s%d, s%d" % (sCNT, sA, sB))
    a.e("s_lshl_b32 s%d, s%d, 12" % (sA, sCNT))
    a.e("v_and_b32 v2, 31, v0")
    a.e("v_bfe_u32 v4, v0, 1, 3")
    a.e("v_xor_b32 v4, v4, v3")
    a.e("v_lshlrev_b32 v4, 4, v4")
    a.e("v_lshl_add_u32 v4, v2, 7, v4")
    a.e("v_add_u32 %s, s%d, v4" % (v(vLX), sA))
    for s in range(1, 4): a.e("v_xor_b32 %s, %d, %s" % (v(vLX + s), 32 * s, v(vLX)))
    for s in range(4): a.e("v_add_u32 %s, 0x10000, %s" % (v(vLX + 4 + s), v(vLX + s)))
    setup_oclr(a)
    vm0 = list(a.vm)
    a.e("s_cmp_lg_u32 s%d, 0" % sHI)
    a.e("s_cbranch_scc1 L_lB")
    a.e("s_not_b64 %s, %s" % (sp(sTMPP), sp(sVM)))
    a.e("s_cmp_ge_u32 s%d, 2" % sLO)
    a.e("s_cbranch_scc1 L_lV")
    def chain(kind):
        a.vm = list(vm0)
        def fr(k):
            b = vFR + 8 * (k % 4)
            return b, b + 4
        def reads(k):
            c, s = divmod(k, 4); x, w = fr(k)
            r = [rd128(x, vLX + s + 4 * (c >> 2), (c & 3) * 16384), rdtr(w, vWA, k * 512), rdtr(w + 2, vWA, k * 512 + 128)]
            if kind == "K":
                r += ["s_mov_b64 exec, %s" % sp(sTMPP), rd128(w, vWA + 1, k * 32), "s_mov_b64 exec, -1"]
            return r
        for q in range(4):
            a.waitvm("c%d" % (2 * q + 1))
            a.e("s_barrier")
            nr = 4 if kind == "K" else 3
            for k in range(8 * q, 8 * q + 2):
                for r in reads(k): a.e(r)
            for k in range(8 * q, 8 * q + 8):
                if k + 2 < 8 * q + 8:
                    for r in reads(k + 2): a.e(r)
                left = min(2, 8 * q + 7 - k)
                a.e("s_waitcnt lgkmcnt(%d)" % (left * nr))
                x, w = fr(k)
                cc = None if k == 0 else vACC
                a.e(mfma(vACC, w, x, cc) if kind == "K" else mfma(vACC, x, w, cc))
        a.e("s_lshl_b32 s%d, s%d, 2" % (sA, sG))
        a.e("s_add_u32 s%d, s%d, s%d" % (sA, sA, sCNT))
        a.e("s_nop 12")
        if kind == "K":
            a.e("s_mov_b32 s%d, 0x%x" % (sC, f2u(0.25 * math.log2(math.e))))
            for i in range(8): a.e("v_mul_f32 %s, s%d, %s" % (v(vACC + i), sC, v(vACC + i)))
            a.e("v_mul_f32 %s, 0x%x, %s" % (v(vACC + 8), f2u(-math.log2(math.e)), v(vACC + 8)))
            a.e("v_exp_f32 %s, %s" % (v(vACC + 8), v(vACC + 8)))
            for i in range(4): a.e("v_cvt_pk_bf16_f32 %s, %s, %s" % (v(vFR + i), v(vACC + 2 * i), v(vACC + 2 * i + 1)))
            a.e("v_add_f32 %s, 1.0, %s" % (v(vACC + 8), v(vACC + 8)))
            a.e("v_rcp_f32 %s, %s" % (v(vACC + 8), v(vACC + 8)))
            a.e("s_add_u32 s%d, s%d, 63" % (sB, sA))
            a.e("s_and_b32 s%d, s%d, 63" % (sB, sB))
            a.e("s_lshl_b32 s%d, s%d, 11" % (sB, sB))
            a.e("buffer_store_dwordx4 %s, %s, %s, s%d offen sc1" % (v(vFR, 4), v(vL16), srd(SKV), sB))
            a.e("s_lshl_b32 s%d, s%d, 7" % (sB, sA))
            a.e("s_add_u32 s%d, s%d, 0x%x" % (sB, sB, WS_G))
            a.e("s_mov_b32 exec_hi, 0")
            a.e("buffer_store_dword %s, %s, %s, s%d offen sc1" % (v(vACC + 8), v(vGA), srd(SWS), sB))
            a.e("s_mov_b64 exec, -1")
        else:
            for i in range(8): a.e("v_cvt_pk_bf16_f32 %s, %s, %s" % (v(vFR + i), v(vACC + 2 * i), v(vACC + 2 * i + 1)))
            a.e("v_bfe_u32 v2, v0, 4, 1")
            a.e("v_add_u32 v2, s%d, v2" % sA)
            a.e("v_and_b32 v2, 63, v2")
            a.e("v_lshl_add_u32 v2, v2, 11, %s" % v(vL16))
            for i in range(4): a.e("v_cndmask_b32 %s, %s, %s, %s" % (v(vFR + i), v(vFR + 4 + i), v(vFR + i), sp(sVM)))
            a.e("buffer_store_dwordx4 %s, v2, %s, 0 offen offset:1024 sc1" % (v(vFR, 4), srd(SKV)))
        a.e("s_branch L_lJ")
    chain("K")
    a.lab("L_lV")
    chain("V")
    a.lab("L_lB")
    a.vm = list(vm0)
    a.e("s_cmp_lg_u32 s%d, 14" % sM)
    a.e("s_cbranch_scc1 L_nozf")
    a.e("s_cmp_lg_u32 s%d, 4" % sW)
    a.e("s_cbranch_scc1 L_nozf")
    a.e("v_lshlrev_b32 v2, 7, v0")
    a.e("s_lshl_b32 s%d, s%d, 11" % (sA, sG))
    a.e("s_add_u32 s%d, s%d, 0x%x" % (sA, sA, WS_HFLAG))
    a.e("s_mov_b64 exec, 0xffff")
    a.e("buffer_store_dword %s, v2, %s, s%d offen sc1" % (v(vZERO), srd(SWS), sA))
    a.e("s_mov_b64 exec, -1")
    a.lab("L_nozf")
    for q in range(4):
        a.waitvm("c%d" % (2 * q + 1))
        a.e("s_barrier")
    a.lab("L_lJ")
    a.e("v_lshrrev_b32 v3, 2, v0")
    a.e("v_lshlrev_b32 v3, 10, v3")
    a.e("v_lshrrev_b32 v4, 5, v0")
    a.e("v_lshlrev_b32 v4, 1, v4")
    a.e("v_xor_b32 v4, v4, v0")
    a.e("v_and_b32 v4, 3, v4")
    a.e("v_lshl_add_u32 v3, v4, 4, v3")
    a.e("s_lshl_b32 s%d, s%d, 14" % (sA, sW))
    a.e("s_lshl_b32 s%d, s%d, 6" % (sB, sHP))
    a.e("s_add_u32 s%d, s%d, s%d" % (sA, sA, sB))
    a.e("v_add_u32 %s, s%d, v3" % (v(vDQ), sA))
    a.e("s_xor_b32 s%d, s%d, 0x2000" % (sWH, sWH))
    a.e("s_xor_b32 s%d, s%d, 0x10000" % (sOLD, sOLD))
    a.wait0(lgkm=True)
    a.e("s_barrier")
    a.e("s_cmp_lg_u32 s%d, 0" % sW)
    a.e("s_cbranch_scc1 L_noat")
    a.e("s_mov_b64 exec, 1")
    a.e("buffer_atomic_add %s, off, %s, 0 sc1" % (v(vONE), srd(SDBG)))
    a.e("s_mov_b64 exec, -1")
    a.lab("L_noat")
    a.stamp(3)
    for c in range(8): xdma(c, sWH, sOLD)
    for p in range(4):
        a.e("s_add_u32 m0, s%d, 0x%x" % (sWK, LL_WQ + p * 8192))
        a.e("s_mov_b32 s%d, 0x%x" % (sA, p * 128 * 1024))
        a.e("buffer_load_dwordx4 %s, %s, s%d offen lds" % (v(vDQ), srd(SWQ), sA))
    setup_attn(a)
    if Opt.touch & 2:
        a.e("s_lshl_b32 s%d, s%d, 1" % (sA, sG))
        a.e("s_add_u32 s%d, s%d, s%d" % (sA, sA, sM))
        a.e("s_sub_u32 s%d, s%d, 14" % (sA, sA))
        a.e("s_lshl_b32 s%d, s%d, 3" % (sA, sA))
        a.e("s_add_u32 s%d, s%d, s%d" % (sA, sA, sW))
        a.e("v_lshlrev_b32 v2, 15, v0")
        a.e("s_lshl_b32 s%d, s%d, 7" % (sA, sA))
        a.e("buffer_load_dword %s, v2, %s, s%d offen" % (v(vPOLL), srd(SWO), sA))
        a.e("buffer_load_dword %s, v2, %s, s%d offen" % (v(vPOLL), srd(SWD), sA))
    a.e("s_lshl_b32 s%d, s%d, 12" % (sA, sLO))
    a.e("v_add_u32 %s, s%d, %s" % (v(vXA), sA, v(vXA)))
    a.e("v_xor_b32 %s, 64, %s" % (v(vXA + 1), v(vXA)))
    a.e("v_add_u32 %s, 0x10000, %s" % (v(vXA + 2), v(vXA)))
    a.e("v_add_u32 %s, 0x10000, %s" % (v(vXA + 3), v(vXA + 1)))
    a.e("v_add_u32 %s, 0x%x, %s" % (v(vQA), LL_WQ, v(vQA)))
    a.e("s_waitcnt vmcnt(%d)" % (2 if Opt.touch & 2 else 0))
    a.e("s_barrier")
    def fr(k): return vFR + 12 * (k % 3)
    def reads(k):
        c, s = divmod(k, 2); f = fr(k)
        return [rd128(f + 4 * b, vXA + s + 2 * (c >> 2), (c & 3) * 16384 + b * 2048) for b in range(2)] + \
               [rdtr(f + 8, vQA, k * 2048), rdtr(f + 10, vQA, k * 2048 + 256)]
    for k in range(2):
        for r in reads(k): a.e(r)
    for k in range(16):
        a.e("s_waitcnt lgkmcnt(%d)" % (4 * min(1, 15 - k)))
        for b in range(2): a.e(mfma16(vAQ + 4 * b, fr(k) + 8, fr(k) + 4 * b, None if k == 0 else vAQ + 4 * b))
        if k + 2 < 16:
            for r in reads(k + 2): a.e(r)
    spin_counter(a, "kvl", False)
    a.e("s_barrier")
    for s, t in kv_first_loads(a): a.e(s)
    a.wait0()
    a.stamp(4)
    a.e("s_branch L_join")

def gelu_tile(a, ti, scalar=False):
    acc = vACC + 16 * ti
    t = vFR
    o = vFR + 8 + 4 * ti
    pk = lambda r: v(r, 2)
    if scalar:
        for i in range(8): a.e("v_mul_f32 %s, %s, %s" % (v(t + i), v(acc + i), v(acc + i)))
        for i in range(8): a.e("v_fma_f32 %s, %s, %s, %s" % (v(t + i), v(t + i), v(vC0 + 1), v(vC0)))
        for i in range(8): a.e("v_mul_f32 %s, %s, %s" % (v(t + i), v(t + i), v(acc + i)))
        for i in range(8): a.e("v_exp_f32 %s, %s" % (v(t + i), v(t + i)))
        for i in range(8): a.e("v_add_f32 %s, 1.0, %s" % (v(t + i), v(t + i)))
        for i in range(8): a.e("v_rcp_f32 %s, %s" % (v(t + i), v(t + i)))
        for i in range(8): a.e("v_mul_f32 %s, %s, %s" % (v(acc + i), v(acc + i), v(acc + 8 + i)))
        for i in range(8): a.e("v_mul_f32 %s, %s, %s" % (v(acc + i), v(acc + i), v(t + i)))
    R4, R8 = (range(0), range(0)) if scalar else (range(4), range(8))
    for i in R4: a.e("v_pk_mul_f32 %s, %s, %s" % (pk(t + 2 * i), pk(acc + 2 * i), pk(acc + 2 * i)))
    for i in R4: a.e("v_pk_fma_f32 %s, %s, %s, %s op_sel:[0,1,0] op_sel_hi:[1,1,0]" % (pk(t + 2 * i), pk(t + 2 * i), pk(vC0), pk(vC0)))
    for i in R4: a.e("v_pk_mul_f32 %s, %s, %s" % (pk(t + 2 * i), pk(t + 2 * i), pk(acc + 2 * i)))
    for i in R8: a.e("v_exp_f32 %s, %s" % (v(t + i), v(t + i)))
    for i in R4: a.e("v_pk_add_f32 %s, %s, 1.0 op_sel_hi:[1,0]" % (pk(t + 2 * i), pk(t + 2 * i)))
    for i in R8: a.e("v_rcp_f32 %s, %s" % (v(t + i), v(t + i)))
    for i in R4: a.e("v_pk_mul_f32 %s, %s, %s" % (pk(acc + 2 * i), pk(acc + 2 * i), pk(acc + 8 + 2 * i)))
    for i in R4: a.e("v_pk_mul_f32 %s, %s, %s" % (pk(acc + 2 * i), pk(acc + 2 * i), pk(t + 2 * i)))
    for i in range(4): a.e("v_cvt_pk_bf16_f32 %s, %s, %s" % (v(o + i), v(acc + 2 * i), v(acc + 2 * i + 1)))
    a.vmop("buffer_store_dwordx4 %s, %s, %s, s%d offen offset:%d sc1" % (v(o, 4), v(vHA), srd(SWS), sHST2 if ti >> 1 else sHST, (ti & 1) * 256), "hst")

def Yseg(hset, toggle=False):
    out = []
    for t in range(2):
        S, Sn = vS + 16 * t, vS + 16 * (1 - t)
        K, V0, V1 = vKF + 4 * t, vV + 8 * t, vV + 8 * t + 4
        for j in range(8):
            out.append("v_exp_f32 %s, %s" % (v(vE + 2 * (j % 2)), v(S + 2 * j)))
            out.append("v_exp_f32 %s, %s" % (v(vE + 2 * (j % 2) + 1), v(S + 2 * j + 1)))
            jj = (j - 1) % 8
            out.append("v_cvt_pk_bf16_f32 %s, %s, %s" % (v(vP + jj), v(vE + 2 * (jj % 2)), v(vE + 2 * (jj % 2) + 1)))
            if j == 1: out.append(mfma(vO, V1, vP + 4, vO))
            if j == 3: out.append(mfma(Sn, K, vQ, None))
            if hset is None:
                if j == 7: out.append(mfma(vO, V0, vP, vO))
            else:
                if j == 5: out.append(mfma(vO, V0, vP, vO))
                if j == 6 and t == 1 and toggle:
                    out.append("v_xor_b32 %s, 0x4000, %s" % (v(vKVA), v(vKVA)))
                    out.append("v_xor_b32 %s, 0x8000, %s" % (v(vWDA), v(vWDA)))
                if j == 7: out.append(mfma(vD + 16 * t, vWF + 4 * t, vH + 4 * hset, vD + 16 * t))
    return out

def kv_reads(off):
    r = [rd128(vKF, vKVA, off), rd128(vKF + 4, vKVA, off + 2048), "s_mov_b64 exec, %s" % sp(sVM)]
    for t in range(2):
        r += [rd128(vV + 8 * t, vKVA, off + 2048 * t + 1024), rd128(vV + 8 * t + 4, vKVA, off + 2048 * t + 1280)]
    r.append("s_mov_b64 exec, -1")
    return r
def wd_reads(dst, addr, off):
    r = []
    for c in range(2):
        r += [rdtr(dst + 4 * c, addr, off + 512 * c), rdtr(dst + 4 * c + 2, addr, off + 512 * c + 1024)]
    return r

def wdrow(sg): return (32 * (sg >> 1) + 8 * (sg & 1)) * 1024

def attention(a, role, pre0=None):
    A = role == "A"
    def kvdma(u):
        a.vmop("s_add_u32 m0, s%d, 0x%x\ns_add_u32 s%d, s%d, 0x%x\nbuffer_load_dwordx4 %s, %s, s%d offen sc1 lds"
               % (sWK, L_KV + (u % 4) * 8192, sA, sWK, u * 8192, v(vL16), srd(SKV), sA), "kv%d" % u)
    def wddma(sg):
        a.vmop("s_add_u32 m0, s%d, 0x%x\ns_add_u32 s%d, s%d, 0x%x\nbuffer_load_dwordx4 %s, %s, s%d offen lds"
               % (sWK, L_WD + ((sg + 3) % 8) * 8192, sA, sWDOFF, wdrow(sg), v(vWDV), srd(SWD), sA), "wd%d" % sg)
    def wodma(j):
        a.vmop("s_add_u32 m0, s%d, 0x%x\ns_add_u32 s%d, s%d, 0x%x\nbuffer_load_dwordx4 %s, %s, s%d offen lds"
               % (sWK, L_WO + j * 8192, sA, sB, j * 16384, v(vWDV), srd(SWO), sA), "wo")
    def hload(sg, dst):
        a.vmop("s_add_u32 s%d, s%d, 0x%x\nbuffer_load_dwordx4 %s, %s, %s, s%d offen sc1"
               % (sA, sHOFF, sg * 1024, v(dst, 4), v(vL16), srd(SWS), sA), "h%d" % sg)
    for n in range(11):
        if not A and n == 0: a.e("s_barrier")
        if n % 2 == 1: astamp(a, 2 + n // 2)
        tags = []
        if A and n % 2 == 1: tags.append("kv%d" % ((n + 1) // 2))
        if not A and n % 2 == 0: tags.append("kv%d" % ((n + 2) // 2))
        if n == (3 if A else 2): tags.append("hst")
        if n == 10: tags.append("wd0")
        if n == 8 and A:
            a.e("s_cmp_lg_u32 s%d, 0" % sW)
            a.e("s_cbranch_scc1 L_hf_done")
            a.e("s_mov_b32 s%d, 0x4000" % sB)
            a.e("s_waitcnt vmcnt(2)")
            a.lab("L_hf_chk")
            a.e("v_cmp_ne_u32 vcc, 1, %s" % v(vPOLL))
            a.e("s_cbranch_vccz L_hf_done")
            a.e("s_sleep 2")
            a.e("buffer_load_dword %s, %s, %s, 0 offen sc1" % (v(vPOLL), v(vFLA), srd(SWS)))
            a.e("s_sub_u32 s%d, s%d, 1" % (sB, sB))
            a.e("s_cmp_lg_u32 s%d, 0" % sB)
            a.e("s_waitcnt vmcnt(0)")
            a.e("s_cbranch_scc1 L_hf_chk")
            a.lab("L_hf_done")
        a.waitvm(tags)
        if n == 3 and not A:
            a.e("s_cmp_ge_u32 s%d, 14" % sM)
            a.e("s_cbranch_scc1 L_nohf")
            a.e("s_cmp_lg_u32 s%d, 4" % sW)
            a.e("s_cbranch_scc1 L_nohf")
            a.e("s_lshl_b32 s%d, s%d, 4" % (sA, sG))
            a.e("s_add_u32 s%d, s%d, s%d" % (sA, sA, sM))
            a.e("s_lshl_b32 s%d, s%d, 7" % (sA, sA))
            a.e("s_add_u32 s%d, s%d, 0x%x" % (sA, sA, WS_HFLAG))
            a.e("s_mov_b64 exec, 1")
            a.e("buffer_store_dword %s, off, %s, s%d sc1" % (v(vONE), srd(SWS), sA))
            a.e("s_mov_b64 exec, -1")
            a.lab("L_nohf")
        for r in kv_reads((n % 8) * 4096): a.e(r)
        if n == 7 and A:
            a.e("s_cmp_lg_u32 s%d, 0" % sW)
            a.e("s_cbranch_scc1 L_hf_nol")
            a.e("buffer_load_dword %s, %s, %s, 0 offen sc1" % (v(vPOLL), v(vFLA), srd(SWS)))
            a.lab("L_hf_nol")
        if n == 0:
            kvdma(2); kvdma(3)
            a.e("s_mov_b32 s%d, s%d" % (sC, sKQ))
            a.e("s_mul_i32 s%d, s%d, %d" % (sWDOFF, sC, 448 * 1024))
            a.e("s_and_b32 s%d, s%d, 1" % (sB, sW))
            a.e("s_lshl_b32 s%d, s%d, 14" % (sA, sB))
            a.e("s_add_u32 s%d, s%d, s%d" % (sWDOFF, sWDOFF, sA))
            a.e("s_lshl_b32 s%d, s%d, 1" % (sA, sT))
            a.e("s_add_u32 s%d, s%d, s%d" % (sA, sA, sB))
            a.e("s_mul_i32 s%d, s%d, 112" % (sA, sA))
            a.e("s_mul_i32 s%d, s%d, 28" % (sB, sC))
            a.e("s_add_u32 s%d, s%d, s%d" % (sA, sA, sB))
            a.e("s_lshl_b32 s%d, s%d, 10" % (sA, sA))
            a.e("s_add_u32 s%d, s%d, 0x%x" % (sHOFF, sA, WS_HF))
        if (A and n % 2 == 1 and n >= 3): kvdma((n + 5) // 2)
        if (not A and n % 2 == 0 and n >= 2): kvdma((n + 6) // 2)
        if 1 <= n <= 3:
            a.e("s_lshl_b32 s%d, s%d, 17" % (sB, sKQ))
            a.e("s_and_b32 s%d, s%d, 1" % (sC, sW))
            a.e("s_lshl_b32 s%d, s%d, 13" % (sC, sC))
            a.e("s_add_u32 s%d, s%d, s%d" % (sB, sB, sC))
            for j in {1: (0, 1, 2), 2: (3, 4, 5), 3: (6, 7)}[n]: wodma(j)
        if n >= 4: wddma(n - 4)
        if n == 9:
            hload(0, vH + 12); hload(1, vH + 0); hload(24, vH + 16); hload(25, vH + 20)
        if n == 10:
            hload(26, vH + 24); hload(27, vH + 28); hload(2, vH + 4)
        if n == 0 and pre0:
            pre0()
            a.stamp(5)
        a.e("s_waitcnt lgkmcnt(0)")
        a.e("s_call_b64 %s, L_Y%s" % (sp(sRET), role))
        if n == 0:
            a.e("s_branch L_X1%s" % role)
            a.lab("L_Y%s" % role)
            if A: a.e("s_barrier")
            for x in Yseg(None): a.e(x)
            if not A: a.e("s_barrier")
            a.e("s_setpc_b64 %s" % sp(sRET))
            a.lab("L_X1%s" % role)
    astamp(a, 7)
    a.e("s_add_u32 s%d, s%d, 0x%x" % (sHOFF, sHOFF, 3 * 1024))
    a.e("s_add_u32 s%d, s%d, 0x%x" % (sWDOFF, sWDOFF, wdrow(7)))
    a.e("s_mov_b32 s%d, 0x%x" % (sM0WD, ((7 + 3) % 8) * 8192))
    u0 = 8 if A else 9
    a.e("s_add_u32 s%d, s%d, 0x%x" % (sKVOFF, sWK, u0 * 8192))
    a.e("s_mov_b32 s%d, 6" % sCNT)
    a.waitvm(["h0", "wd1", "kv6"] if A else ["h0", "wd1"])
    a.e("s_branch L_loop%s_in" % role)
    a.l.append(".p2align 6")
    a.lab("L_loop%s" % role)
    for p in range(4):
        if p == 0 and Opt.diag and Opt.kdiag == 2:
            a.e("s_cmp_lg_u32 s%d, 4" % sCNT)
            a.e("s_cbranch_scc1 L_nst%s" % role)
            astamp(a, 8)
            a.lab("L_nst%s" % role)
        a.e("s_waitcnt vmcnt(5)")
        if p == 3: a.lab("L_loop%s_in" % role)
        for r in kv_reads(p * 4096): a.e(r)
        for r in wd_reads(vWF, vWDA, p * 8192): a.e(r)
        a.e("buffer_load_dwordx4 %s, %s, %s, s%d offen sc1" % (v(vH + 4 * ((p + 3) % 4), 4), v(vL16), srd(SWS), sHOFF))
        a.e("s_add_u32 m0, s%d, s%d" % (sWK, sM0WD))
        a.e("s_add_u32 s%d, s%d, 0x400" % (sHOFF, sHOFF))
        a.e("buffer_load_dwordx4 %s, %s, s%d offen lds" % (v(vWDV), srd(SWD), sWDOFF))
        a.e("s_add_u32 s%d, s%d, 0x%x" % (sWDOFF, sWDOFF, 0x6000 if p & 1 else 0x2000))
        a.e("s_add_u32 s%d, s%d, 0x2000" % (sM0WD, sM0WD))
        a.e("s_and_b32 s%d, s%d, 0xffff" % (sM0WD, sM0WD))
        if (p % 2 == 1) == A:
            a.e("s_and_b32 s%d, s%d, 0x7fff" % (sA, sKVOFF))
            a.e("s_add_u32 m0, s%d, 0x%x" % (sA, L_KV))
            a.e("s_nop 0")
            a.e("buffer_load_dwordx4 %s, %s, s%d offen sc1 lds" % (v(vL16), srd(SKV), sKVOFF))
            a.e("s_add_u32 s%d, s%d, 0x2000" % (sKVOFF, sKVOFF))
        if p == 3:
            a.e("s_sub_u32 s%d, s%d, 1" % (sCNT, sCNT))
            a.e("s_cmp_lg_u32 s%d, 0" % sCNT)
        a.e("s_waitcnt lgkmcnt(0)")
        if A: a.e("s_barrier")
        for x in Yseg(p, toggle=(p == 3)): a.e(x)
        if not A:
            if p == 3: a.e("s_cbranch_scc0 L_tail")
            a.e("s_barrier")
    a.e(("s_cbranch_scc1 L_loop%s" if A else "s_branch L_loop%s") % role)

def transition(a, role):
    A = role == "A"
    if A:
        a.vm = list(a.vmjoin)
        a.lab("L_trA")
    else:
        a.lab("L_join")
        a.e("s_cmp_eq_u32 s%d, 0" % sHI)
        a.e("s_cbranch_scc1 L_trA")
        a.vmjoin = list(a.vm)
    def qfin():
        for i in range(4): a.e("v_cvt_pk_bf16_f32 %s, %s, %s" % (v(vQ + i), v(vAQ + 2 * i), v(vAQ + 2 * i + 1)))
        for i in range(4, 7): a.e("v_mov_b32 %s, 0" % v(vP + i))
        a.e("v_permlane16_swap_b32 %s, %s" % (v(vQ), v(vQ + 2)))
        a.e("v_permlane16_swap_b32 %s, %s" % (v(vQ + 1), v(vQ + 3)))
    pre0 = None
    if A:
        a.e("s_setprio 1")
        a.e("s_cmp_ge_u32 s%d, 14" % sM)
        a.e("s_cbranch_scc1 L_nogA0")
        a.l.append(".p2align 3")
        for ti in range(Opt.gsc): gelu_tile(a, ti, True)
        a.lab("L_nogA0")
        qfin()
        a.waitvm(["k0", "kv0", "kv1"])
        a.e("s_setprio 0")
        a.e("s_barrier")
        a.e(mfma(vS, vK0, vQ, None))
        def pre0():
            a.e("s_cmp_lt_u32 s%d, 14" % sM)
            a.e("s_cbranch_scc1 L_gA1")
            a.e("s_waitcnt vmcnt(0)")
            a.e("s_branch L_nogA1")
            a.l.append(".p2align 3")
            a.lab("L_gA1")
            for ti in range(Opt.gsc, 4): gelu_tile(a, ti)
            a.lab("L_nogA1")
            a.e("s_setprio 1")
    else:
        a.waitvm(["k0", "kv0", "kv1"])
        a.e("s_setprio 1")
        a.e("s_cmp_ge_u32 s%d, 14" % sM)
        a.l.append(".p2align 3")
        a.e("s_barrier")
        a.e("s_cbranch_scc1 L_nogB")
        for ti in range(4): gelu_tile(a, ti)
        a.lab("L_nogB")
        qfin()
        a.e("s_setprio 0")
        a.e("s_nop 0")
        a.e(mfma(vS, vK0, vQ, None))
        a.stamp(5)
    attention(a, role, pre0)
    if A: a.e("s_branch L_tail")

def tail(a):
    a.lab("L_tail")
    a.e("v_cvt_pk_bf16_f32 %s, %s, %s" % (v(vP + 7), v(vE + 2), v(vE + 3)))
    a.stamp(6)
    astamp(a, 9)
    if Opt.diag and Opt.kdiag == 2: a.e("s_waitcnt lgkmcnt(0)")
    a.e("s_setprio 0")
    a.e("s_mov_b32 s%d, 0x%x" % (sC, f2u(2.0 ** -16)))
    a.e(mfma(vO, vV1L, vP + 4, vO))
    a.e("s_mov_b32 s%d, 0x%x" % (sD, f2u(2.0 ** 100)))
    a.e("s_nop 10")
    t = vFR
    a.e("v_rcp_f32 %s, %s" % (v(t + 2), v(vO + 8)))
    a.e("v_pk_mul_f32 %s, %s, 0 op_sel_hi:[1,0]" % (v(t, 2), v(vO, 2)))
    for i in range(1, 4): a.e("v_pk_fma_f32 %s, %s, 0, %s op_sel_hi:[1,0,1]" % (v(t, 2), v(vO + 2 * i, 2), v(t, 2)))
    a.e("v_add_f32 %s, %s, %s" % (v(t), v(t), v(t + 1)))
    a.e("v_add_f32 %s, %s, %s" % (v(t), v(t), v(vO + 8)))
    a.e("v_cmp_nle_f32 vcc, s%d, %s" % (sC, v(t)))
    a.e("v_cmp_nge_f32 %s, s%d, %s" % (sp(sTMPP), sD, v(t)))
    a.e("s_or_b64 vcc, vcc, %s" % sp(sTMPP))
    a.e("s_branch L_fb" if Opt.force_fb else "s_cbranch_scc1 L_fb")
    a.lab("L_fbret")
    a.e("v_mul_f32 %s, %s, %s" % (v(t + 2), v(t + 2), v(vGP)))
    for i in range(4): a.e("v_pk_mul_f32 %s, %s, %s op_sel_hi:[1,0]" % (v(vO + 2 * i, 2), v(vO + 2 * i, 2), v(t + 2, 2)))
    for i in range(4): a.e("v_cvt_pk_bf16_f32 %s, %s, %s" % (v(vP + i), v(vO + 2 * i), v(vO + 2 * i + 1)))
    for i in range(4): a.e("v_min_u32 %s, -2, %s" % (v(vP + i), v(vP + i)))
    a.e("buffer_store_dwordx4 %s, %s, %s, s%d offen sc1" % (v(vP, 4), v(vL16), srd(SWS), sOST))
    HORD = [0, 2, 4, 6, 1, 3, 5, 7] if Opt.hord else list(range(8))
    def oload(j):
        return "buffer_load_dwordx4 %s, %s, %s, s%d offen offset:%d sc1" % (
            v(vS + 4 * j, 4), v(vL16), srd(SWS), sOLD if HORD[j] < 4 else sA, (HORD[j] % 4) * 1024)
    a.oload = oload
    aw = vXA
    ar = vWA
    def addrs(a):
        a.e("v_sub_f32 %s, 1.0, %s" % (v(vGC), v(vGC)))
        a.e("v_add_u32 %s, 0x%x, %s" % (v(vQA), L_WO, v(vWDA)))
        a.e("v_and_b32 v2, 31, v0")
        a.e("v_lshrrev_b32 v3, 5, v0")
        a.e("v_and_b32 v4, 7, v0")
        a.e("v_xor_b32 v3, v3, v4")
        a.e("v_lshlrev_b32 v3, 4, v3")
        a.e("v_lshl_add_u32 v3, v2, 8, v3")
        a.e("s_and_b32 s%d, s%d, 1" % (sB, sW))
        a.e("s_lshl_b32 s%d, s%d, 15" % (sB, sB))
        a.e("s_lshr_b32 s%d, s%d, 1" % (sC, sW))
        a.e("s_lshl_b32 s%d, s%d, 13" % (sD, sC))
        a.e("s_add_u32 s%d, s%d, s%d" % (sD, sD, sB))
        a.e("v_add_u32 %s, s%d, v3" % (v(aw), sD))
        for j in range(1, 4): a.e("v_xor_b32 %s, %d, %s" % (v(aw + j), 32 * j, v(aw)))
        a.e("v_lshrrev_b32 v2, 3, v0")
        a.e("v_lshlrev_b32 v3, 1, v4")
        a.e("v_xor_b32 v3, v3, v2")
        a.e("v_lshlrev_b32 v3, 4, v3")
        a.e("v_lshl_add_u32 v3, v2, 8, v3")
        a.e("s_lshl_b32 s%d, s%d, 11" % (sD, sC))
        a.e("s_add_u32 s%d, s%d, s%d" % (sD, sD, sB))
        a.e("v_add_u32 %s, s%d, v3" % (v(ar), sD))
        a.e("v_xor_b32 %s, 16, %s" % (v(ar + 1), v(ar)))
        a.e("v_lshlrev_b32 v4, 4, v4")
        a.e("v_lshl_add_u32 %s, v2, 10, v4" % v(ar + 2))
        a.e("s_lshl_b32 s%d, s%d, 13" % (sC, sC))
        a.e("s_add_u32 s%d, s%d, s%d" % (sB, sB, sC))
        a.e("s_lshl_b32 s%d, s%d, 16" % (sC, sT))
        a.e("s_add_u32 s%d, s%d, s%d" % (sB, sB, sC))
        a.e("s_lshl_b32 s%d, s%d, 7" % (sC, sCB))
        a.e("s_add_u32 s%d, s%d, s%d" % (sCNT, sB, sC))
        a.e("s_mov_b32 s%d, 0x2000" % sB)
    a.e("s_add_u32 s%d, s%d, 0x1000" % (sA, sOLD))
    a.e("s_cmp_eq_u32 s%d, 0" % sHI)
    a.e("s_cbranch_scc1 L_tl1")
    a.e("s_setprio 1")
    a.e("s_waitcnt vmcnt(1)")
    a.lab("L_tl2")
    a.e("s_barrier")
    ol = Asm(); a.ool2 = ol.l
    ol.lab("L_tl1")
    for j in range(8): ol.e(oload(j))
    ol.e("s_waitcnt vmcnt(9)")
    ol.e("s_branch L_tl2")
    hreg = {21: vH + 0, 22: vH + 4, 23: vH + 8, 24: vH + 16, 25: vH + 20, 26: vH + 24, 27: vH + 28}
    wf = [vFR, vFR + 8, vFR + 16]
    for i in range(2):
        for r in wd_reads(wf[i], vWDA, i * 8192): a.e(r)
    fl = collect(addrs)
    put(a, fl[:8]); fl = fl[8:]
    for i in range(7):
        if i + 2 < 7:
            for r in wd_reads(wf[(i + 2) % 3], vWDA, (i + 2) * 8192): a.e(r)
        else:
            for r in wd_reads(wf[(i + 2) % 3], vQA, HORD[i - 5] * 8192): a.e(r)
        a.e("s_waitcnt lgkmcnt(8)")
        for c in range(2):
            a.e(mfma(vD + 16 * c, wf[i % 3] + 4 * c, hreg[21 + i], vD + 16 * c))
            put(a, fl[:2]); fl = fl[2:]
    put(a, fl)
    a.e("s_cmp_lg_u32 s%d, 0" % sHI)
    a.e("s_cbranch_scc1 L_tl3")
    a.e("s_nop 8")
    for i in range(32): a.e("v_mul_f32 %s, %s, %s" % (v(vD + i), v(vGC), v(vD + i)))
    if Opt.tbar == 0: a.e("s_barrier")
    a.lab("L_tl4")
    ol.lab("L_tl3")
    ol.e("s_setprio 0")
    for j in range(8):
        ol.e(oload(j))
        if j == 0: ol.e("s_nop 6")
        for i in range(4 * j, 4 * j + 4): ol.e("v_mul_f32 %s, %s, %s" % (v(vD + i), v(vGC), v(vD + i)))
    ol.e("s_barrier")
    ol.e("s_branch L_tl4")
    a.stamp(7)
    for j in range(8):
        o = vS + 4 * j
        if j + 2 < 8:
            for r in wd_reads(wf[(j + 3) % 3], vQA, HORD[j + 2] * 8192): a.e(r)
        if j == Opt.tbar and j:
            a.e("s_cmp_lg_u32 s%d, 0" % sHI)
            a.e("s_cbranch_scc1 L_ochk%d" % j)
            a.e("s_barrier")
        a.lab("L_ochk%d" % j)
        a.e("s_waitcnt vmcnt(%d)" % (7 - j))
        a.e("v_max3_u32 v2, %s, %s, %s" % (v(o), v(o + 1), v(o + 2)))
        a.e("v_max_u32 v2, v2, %s" % v(o + 3))
        a.e("v_cmp_eq_u32 vcc, -1, v2")
        a.e("s_cbranch_vccnz L_ore%d" % j)
        a.lab("L_ook%d" % j)
        a.e("s_waitcnt lgkmcnt(%d)" % (4 * min(2, 7 - j)))
        for c in range(2): a.e(mfma(vD + 16 * c, wf[(j + 1) % 3] + 4 * c, o, vD + 16 * c))
    a.stamp(8)
    a.e("s_nop 10")
    for c in range(2):
        for j in range(4):
            a.e("ds_write_b128 %s, %s offset:%d" % (v(aw + j), v(vD + 16 * c + 4 * j, 4), 128 * c))
    a.e("s_waitcnt lgkmcnt(0)")
    a.e("s_barrier")
    for p in range(4):
        for h in range(2): a.e(rd128(vS + 8 * p + 4 * h, ar + h, p * 8192))
    for p in range(1, 4):
        a.e("s_waitcnt lgkmcnt(%d)" % (6 - 2 * p))
        for i in range(4): a.e("v_pk_add_f32 %s, %s, %s" % (v(vS + 2 * i, 2), v(vS + 2 * i, 2), v(vS + 8 * p + 2 * i, 2)))
    for i in range(4): a.e("v_cvt_pk_bf16_f32 %s, %s, %s" % (v(vP + i), v(vS + 2 * i), v(vS + 2 * i + 1)))
    a.e("buffer_store_dwordx4 %s, %s, %s, s%d offen %s" % (v(vP, 4), v(ar + 2), srd(SOUT), sCNT, Opt.out_pol))
    if Opt.probe >= 0:
        a.e("s_waitcnt vmcnt(0)")
        a.stamp(9)
        a.e("s_cmp_ge_u32 s%d, 14" % sM)
        a.e("s_cbranch_scc%d L_end" % (0 if Opt.probe_l else 1))
        if Opt.probe_x >= 0:
            a.e("s_and_b32 s0, s2, 7")
            a.e("s_cmp_lg_u32 s0, %d" % Opt.probe_x)
            a.e("s_cbranch_scc1 L_end")
        a.lab("L_probe")
        a.e("s_memrealtime s[0:1]")
        a.e("s_waitcnt lgkmcnt(0)")
        a.e("s_sub_u32 s0, s0, s%d" % (sSTAMP + 4))
        a.e("s_cmp_lt_u32 s0, 4000")
        a.e("s_cbranch_scc1 L_probe")
    if Opt.pin == 9:
        a.e("s_waitcnt vmcnt(0)")
        a.stamp(9)
    if Opt.diag:
        a.e("s_waitcnt vmcnt(0)")
        a.stamp(9)
        a.e("s_mov_b32 s%d, s%d" % (sSTAMP + 3, sSTAMP))
        a.e("s_mov_b32 s%d, s%d" % (sSTAMP, sB))
        a.e("s_getreg_b32 s%d, hwreg(HW_REG_XCC_ID)" % (sSTAMP + 1))
        for i in range(20): a.e("v_mov_b32 %s, s%d" % (v(vS + i), sSTAMP + i))
        a.e("s_lshl_b32 s%d, s2, 3" % sA)
        a.e("s_add_u32 s%d, s%d, s%d" % (sA, sA, sW))
        a.e("s_lshl_b32 s%d, s%d, 7" % (sA, sA))
        a.e("s_add_u32 s%d, s%d, 0x%x" % (sA, sA, WS_STAMP))
        a.e("s_mov_b64 exec, 1")
        for i in range(5): a.e("buffer_store_dwordx4 %s, off, %s, s%d offset:%d" % (v(vS + 4 * i, 4), srd(SWS), sA, 16 * i))
    a.lab("L_end")
    a.e("s_endpgm")
    a.l += a.ool2
    for j in range(8):
        a.lab("L_ore%d" % j)
        a.e("s_sub_u32 s%d, s%d, 1" % (sB, sB))
        a.e("s_cbranch_scc1 L_ogive%d" % j)
        a.e("s_waitcnt vmcnt(0)")
        for i in range(j, 8): a.e(a.oload(i))
        a.e("s_branch L_ochk%d" % j)
        a.lab("L_ogive%d" % j)
        a.e("s_mov_b32 s%d, 0" % sB)
        a.e("s_branch L_ook%d" % j)

def fallback(a):
    a.lab("L_fb")
    m = vFR + 4
    a.e("v_mov_b32 %s, 0xff800000" % v(m))
    a.e("s_mov_b32 s%d, 0" % sA)
    a.lab("L_fb1")
    a.e("buffer_load_dwordx4 %s, %s, %s, s%d offen sc1" % (v(vKF, 4), v(vL16), srd(SKV), sA))
    a.e("s_waitcnt vmcnt(0)")
    a.e(mfma(vS, vKF, vQ, None))
    a.e("s_add_u32 s%d, s%d, 2048" % (sA, sA))
    a.e("s_nop 11")
    for i in range(8): a.e("v_max3_f32 %s, %s, %s, %s" % (v(m), v(m), v(vS + 2 * i), v(vS + 2 * i + 1)))
    a.e("s_cmp_lt_u32 s%d, 0x20000" % sA)
    a.e("s_cbranch_scc1 L_fb1")
    a.e("v_mov_b32 %s, %s" % (v(m + 1), v(m)))
    a.e("s_nop 1")
    a.e("v_permlane32_swap_b32 %s, %s" % (v(m), v(m + 1)))
    a.e("s_nop 1")
    a.e("v_max_f32 %s, %s, %s" % (v(m), v(m), v(m + 1)))
    for i in range(16): a.e("v_sub_f32 %s, 0, %s" % (v(vS + 16 + i), v(m)))
    for i in range(16): a.e("v_mov_b32 %s, 0" % v(vO + i))
    a.e("s_mov_b32 s%d, 0" % sA)
    a.lab("L_fb2")
    a.e("s_add_u32 s%d, s%d, 0x%x" % (sB, sA, 63 * 2048))
    a.e("s_and_b32 s%d, s%d, 0x1ffff" % (sB, sB))
    a.e("buffer_load_dwordx4 %s, %s, %s, s%d offen sc1" % (v(vKF, 4), v(vL16), srd(SKV), sB))
    a.e("s_add_u32 s%d, s%d, 2048" % (sB, sA))
    a.e("s_and_b32 s%d, s%d, 0x1ffff" % (sB, sB))
    a.e("s_mov_b64 exec, %s" % sp(sVM))
    a.e("buffer_load_dwordx4 %s, %s, %s, s%d offen offset:1024 sc1" % (v(vV, 4), v(vL16), srd(SKV), sA))
    a.e("buffer_load_dwordx4 %s, %s, %s, s%d offen offset:1280 sc1" % (v(vV + 4, 4), v(vL16), srd(SKV), sB))
    a.e("s_mov_b64 exec, -1")
    a.e("s_waitcnt vmcnt(0)")
    a.e(mfma(vS, vKF, vQ, vS + 16))
    a.e("s_add_u32 s%d, s%d, 2048" % (sA, sA))
    a.e("s_nop 11")
    for i in range(16): a.e("v_exp_f32 %s, %s" % (v(vS + i), v(vS + i)))
    for i in range(8): a.e("v_cvt_pk_bf16_f32 %s, %s, %s" % (v(vP + i), v(vS + 2 * i), v(vS + 2 * i + 1)))
    a.e("s_nop 1")
    a.e(mfma(vO, vV, vP, vO))
    a.e(mfma(vO, vV + 4, vP + 4, vO))
    a.e("s_cmp_lt_u32 s%d, 0x20000" % sA)
    a.e("s_cbranch_scc1 L_fb2")
    a.e("s_nop 11")
    a.e("v_rcp_f32 %s, %s" % (v(vFR + 2), v(vO + 8)))
    a.e("s_branch L_fbret")

def build():
    a = Asm()
    prologue(a)
    phase1_F(a)
    transition(a, "B")
    tail(a)
    a.l += a.ool
    transition(a, "A")
    phase1_L(a)
    fallback(a)
    a.lab("L_codeend")
    il = a.l.index("L_light:")
    for i, x in enumerate(a.l):
        if x.endswith(" lds") and "sc1" not in x and " nt" not in x:
            if (Opt.ntx & 4 and (srd(SWD) in x or srd(SWO) in x)) or (Opt.ntx & 8 and i > il):
                a.l[i] = x[:-4] + " nt lds"
    head = open("cdna_kernels/%s.s.ref" % NAME).read().split("\n")
    hdr = [l for l in head if l.startswith(";") and "@launch" not in l and "Override" not in l and "grid=" not in l]
    out = hdr + ["; @launch grid=(256,1,1) block=(512,1,1) lds=%d" % LDS_BYTES,
                 '.amdgcn_target "amdgcn-amd-amdhsa--gfx950"', ".text", ".globl %s_kernel" % NAME, ".p2align 8",
                 ".type %s_kernel,@function" % NAME,
                 ".set CODE_PF_MAX, L_codeend - L_nopf - 4" if Opt.code_pf else "",
                 "%s_kernel:" % NAME]
    out += ["; mapmode %d" % Opt.mapmode, "; xrot %d" % Opt.xrot]
    out += a.l
    out += ['.section .rodata,"a"', ".p2align 6", ".amdhsa_kernel %s_kernel" % NAME,
            "  .amdhsa_next_free_vgpr %d" % NV, "  .amdhsa_next_free_sgpr 102", "  .amdhsa_accum_offset 256",
            "  .amdhsa_group_segment_fixed_size 0", "  .amdhsa_kernarg_size 104", "  .amdhsa_user_sgpr_count 2",
            "  .amdhsa_user_sgpr_kernarg_segment_ptr 1", "  .amdhsa_system_sgpr_workgroup_id_x 1", ".end_amdhsa_kernel", ""]
    return "\n".join(out)

if __name__ == "__main__":
    path = sys.argv[1]
    for kv in sys.argv[2:]:
        k, val = kv.split("=")
        cur = getattr(Opt, k)
        setattr(Opt, k, val if isinstance(cur, str) else type(cur)(int(val)))
    open(path, "w").write(build())
```

```python
import sys, struct, math

NAME = "gated_mix__grouped_kv_mqa__geglu_ffn__prompt"

class Opt:
    diag = 0
    mapmode = 1
    force_fb = False
    out_pol = ""
    code_pf = True
    xrot = 0
    pregap = 0
    olate = 1
    hrot = 0
    tbar = 0
    hord = 1
    cmap = 1
    kqx = 0
    oearly = 8
    conc = 1
    ghx = 0
    qa = "088888"
    qb = "577777"
    npre = 8
    stagger = 1
    rper = 2
    dma1 = 17
    kprio = 0
    dma0 = 8
    npd = 4
    kdiag = 0
    fillpre = 0
    fillper = 4
    gsc = 2
    sched = 2
    xmask = 1
    ntx = 0
    touch = 2
    rotg = 0
    rotm = 0
    startbar = 1
    pvz = 1
    pin = -1
    pin_ns = 60000
    probe = -1
    probe_x = -1
    probe_l = 0

def f2u(x): return struct.unpack("<I", struct.pack("<f", x))[0]

WS_KV = 0
WS_G = 128 * 1024
WS_HFLAG = 192 * 1024
WS_OF = 1 << 20
WS_HF = 4 << 20
WS_STAMP = 12 << 20
WS_SIZE = 16 << 20
K1 = 1024
L_G, L_U, L_X, L_WQ = 0, 48 * K1, 96 * K1, 144 * K1
L_QX = 32 * K1
L_WD, L_WO, L_KV = 0, 64 * K1, 128 * K1
LL_X, LL_W, LL_GATE, LL_WQ = 0, 128 * K1, 144 * K1, 128 * K1
LDS_BYTES = 160 * K1

SX, SWG, SWU, SWQ, SWS, SWD, SWO, SOUT, SDBG, SWKV, SGATE, SKV = 4, 8, 12, 16, 20, 24, 28, 32, 36, 40, 44, 64
SWV = 72
sTMPP = 48
sW, sHI, sLO, sG, sM, sT, sCB = 50, 51, 52, 53, 54, 55, 56
sWK = 57
sWH = 58
sK64 = 59
sVM = 60
sRET = 62
sA, sB, sC, sD = 68, 69, 70, 71
sOFFW, sOFFQ, sCH, sXP = 72, 73, 74, 75
sHOFF, sWDOFF, sKVOFF, sM0WD, sM0KV, sCNT = 72, 73, 74, 75, 76, 77
sOST, sOLD, sHST = 78, 79, 80
sHST2 = 3
sRX, sRW, sM0B = 40, 41, 42
sKQ = 76
sHP = 81
sSTAMP = 82

def srd(b): return "s[%d:%d]" % (b, b + 3)
def sp(b): return "s[%d:%d]" % (b, b + 1)
def v(b, n=1): return "v%d" % b if n == 1 else "v[%d:%d]" % (b, b + n - 1)

vL16 = 1
vT0, vT1, vT2, vT3 = 2, 3, 4, 5
vGP, vGC = 6, 7
vKVA = 8
vWDA = 9
vWDV = 10
vONE = 11
vZERO = 12
vFLA = 13
vPOLL = 14
vGA = 15
vQ = 16
vK0 = 20
vV1L = 24
vE = 28
vP = 32
vV = 40
vO = 56
vD = 72
vACC = 104
vS = 104
vH = 136
vAQ = vP
vF1 = 168
vKF = 168
vWF = 176
vFR = 184
vLX = 224
vXA = 240
vWA = 244
vQA = 248
vDX, vDG, vDQ = 249, 250, 251
vC0 = 252
vHA = 254
NV = 256

class Asm:
    def __init__(self):
        self.l = []
        self.vm = []
        self.nstamp = 0
    def e(self, s):
        for x in s.split("\n"):
            x = x.strip()
            if x: self.l.append("    " + x)
    def lab(self, s): self.l.append(s + ":")
    def vmop(self, s, tag):
        self.e(s); self.vm.append(tag)
    def vmn(self, tags):
        if isinstance(tags, str): tags = [tags]
        last = -1
        for i, t in enumerate(self.vm):
            if t in tags: last = i
        return None if last < 0 else len(self.vm) - 1 - last
    def waitvm(self, tags, lgkm=False):
        n = self.vmn(tags)
        if n is None:
            if lgkm: self.e("s_waitcnt lgkmcnt(0)")
            return
        assert n < 64
        self.e("s_waitcnt vmcnt(%d)%s" % (n, " lgkmcnt(0)" if lgkm else ""))
        self.vm = self.vm[len(self.vm) - n:] if n else []
    def wait0(self, lgkm=False):
        self.e("s_waitcnt vmcnt(0)%s" % (" lgkmcnt(0)" if lgkm else "")); self.vm = []
    def stamp(self, i, real=False):
        if Opt.probe == i:
            self.e("s_waitcnt lgkmcnt(0)")
            self.e("s_memrealtime %s" % sp(sSTAMP + 4))
            self.e("s_waitcnt lgkmcnt(0)")
        if Opt.pin == i:
            self.nstamp += 1
            self.e("s_waitcnt lgkmcnt(0)")
            self.e("s_cselect_b32 s%d, 1, 0" % (sSTAMP + 5))
            self.lab("L_pin%d" % self.nstamp)
            self.e("s_memrealtime s[0:1]")
            self.e("s_waitcnt lgkmcnt(0)")
            self.e("s_sub_u32 s0, s0, s%d" % sSTAMP)
            self.e("s_cmp_lt_u32 s0, %d" % (Opt.pin_ns // 10))
            self.e("s_cbranch_scc1 L_pin%d" % self.nstamp)
            self.e("s_cmp_lg_u32 s%d, 0" % (sSTAMP + 5))
        if Opt.diag and not Opt.kdiag and (Opt.diag == 1 or i == 9):
            self.e("s_waitcnt lgkmcnt(0)")
            self.e("s_memtime %s" % sp(sSTAMP + 2 * i))
            self.e("s_memrealtime s[0:1]")
            self.e("s_waitcnt lgkmcnt(0)")
            self.e("s_mov_b32 s%d, s0" % (sSTAMP + 2 * i + 1))

def astamp(a, i):
    if Opt.diag and Opt.kdiag == 2: a.e("s_memtime %s" % sp(sSTAMP + 2 * i))

def kstamp(a, i):
    if Opt.probe == 18 + i: a.e("s_memrealtime %s" % sp(sSTAMP + 4))
    if Opt.diag and Opt.kdiag == 1: a.e("s_memtime %s" % sp(sSTAMP + 2 * i))

def mfma(d, a, b, c):
    return "v_mfma_f32_32x32x16_bf16 %s, %s, %s, %s" % (v(d, 16), v(a, 4), v(b, 4), "0" if c is None else v(c, 16))
def mfma16(d, a, b, c):
    return "v_mfma_f32_16x16x32_bf16 %s, %s, %s, %s" % (v(d, 4), v(a, 4), v(b, 4), "0" if c is None else v(c, 4))
def rd128(d, a, off):
    assert 0 <= off < 65536
    return "ds_read_b128 %s, %s offset:%d" % (v(d, 4), v(a), off)
def rdtr(d, a, off):
    assert 0 <= off < 65536
    return "ds_read_b64_tr_b16 %s, %s offset:%d" % (v(d, 2), v(a), off)

def interleave(mf, fill, per=2):
    out = []
    fill = list(fill)
    for i, m in enumerate(mf):
        out.append(m)
        if i < len(mf) - 1:
            out += fill[:per]; fill = fill[per:]
    return out + fill

def srd_words(a, regs):
    sizes = {SX: 2048 * 1024, SWG: 512 * 3584, SWU: 512 * 3584, SWQ: 512 * 1024, SWS: WS_SIZE, SWKV: 16384, SWV: 16384,
             SGATE: 1024, SWD: 1792 * 1024, SWO: 512 * 1024, SOUT: 2048 * 1024, SDBG: 256, SKV: 128 * 1024}
    for reg in regs:
        a.e("s_mov_b32 s%d, 0x%x" % (reg + 2, sizes[reg]))
        a.e("s_mov_b32 s%d, 0x20000" % (reg + 3))

def prologue(a):
    a.e("s_cmp_ge_u32 s2, 256")
    a.e("s_cbranch_scc1 L_end")
    for reg, off in ((SX, 0), (SWG, 48), (SWU, 56), (SWQ, 8), (SWS, 96), (SWKV, 16), (sTMPP, 24), (SGATE, 72),
                     (SWD, 64), (SWO, 32), (SOUT, 80), (SDBG, 88), (SKV, 96)):
        a.e("s_load_dwordx2 %s, s[0:1], %d" % (sp(reg), off))
    if Opt.probe >= 0: a.e("s_memrealtime %s" % sp(sSTAMP + 4))
    if Opt.diag or Opt.pin >= 0 or Opt.probe >= 0:
        a.e("s_memrealtime %s" % sp(sSTAMP))
        a.e("s_memtime %s" % sp(sSTAMP + 2))
    a.e("v_lshrrev_b32 v2, 6, v0")
    a.e("v_and_b32 v0, 63, v0")
    a.e("v_readfirstlane_b32 s%d, v2" % sW)
    a.e("v_lshlrev_b32 %s, 4, v0" % v(vL16))
    srd_words(a, [SX, SWQ])
    a.e("s_and_b32 s%d, s2, 7" % sA)
    a.e("s_lshr_b32 s%d, s2, 3" % sB)
    if Opt.cmap:
        a.e("s_andn2_b32 s%d, 1, s%d" % (sT, sA))
        a.e("s_lshl_b32 s%d, s%d, 2" % (sT, sT))
        a.e("s_lshr_b32 s%d, s%d, 1" % (sD, sA))
        a.e("s_add_u32 s%d, s%d, s%d" % (sT, sT, sD))
        a.e("s_lshl_b32 s%d, s%d, 2" % (sT, sT))
    else:
        a.e("s_lshl_b32 s%d, s%d, 2" % (sT, sA))
    a.e("s_and_b32 s%d, s%d, 3" % (sD, sB))
    a.e("s_add_u32 s%d, s%d, s%d" % (sT, sT, sD))
    a.e("s_lshr_b32 s%d, s%d, 2" % (sCB, sB))
    if Opt.xrot:
        a.e("s_add_u32 s%d, s%d, %d" % (sA, sA, Opt.xrot))
        a.e("s_and_b32 s%d, s%d, 7" % (sA, sA))
    if Opt.mapmode == 0:
        a.e("s_lshl_b32 s%d, s%d, 1" % (sG, sA))
        a.e("s_and_b32 s%d, s%d, 1" % (sC, sB))
        a.e("s_add_u32 s%d, s%d, s%d" % (sG, sG, sC))
        a.e("s_lshr_b32 s%d, s%d, 1" % (sM, sB))
        a.e("s_mov_b32 s%d, s%d" % (sHP, sM))
    elif Opt.mapmode in (1, 3):
        a.e("s_and_b32 s%d, s%d, 1" % (sG, sA))
        a.e("s_lshl_b32 s%d, s%d, 3" % (sG, sG))
        a.e("s_and_b32 s%d, s%d, 7" % (sC, sB))
        a.e("s_add_u32 s%d, s%d, s%d" % (sG, sG, sC))
        a.e("s_lshr_b32 s%d, s%d, 1" % (sA, sA))
        a.e("s_lshl_b32 s%d, s%d, 2" % (sHP, sA))
        a.e("s_lshr_b32 s%d, s%d, 3" % (sC, sB))
        a.e("s_add_u32 s%d, s%d, s%d" % (sHP, sHP, sC))
        if Opt.mapmode == 1:
            a.e("s_mov_b32 s%d, s%d" % (sM, sHP))
        else:
            a.e("s_sub_u32 s%d, s%d, s%d" % (sM, sHP, sA))
            a.e("s_lshr_b32 s%d, s%d, 1" % (sB, sB))
            a.e("s_and_b32 s%d, s%d, 2" % (sB, sB))
            a.e("s_add_u32 s%d, s%d, s%d" % (sB, sB, sA))
            a.e("s_and_b32 s%d, s%d, 3" % (sB, sB))
            a.e("s_add_u32 s%d, s%d, 12" % (sB, sB))
            a.e("s_cmp_eq_u32 s%d, 3" % sC)
            a.e("s_cselect_b32 s%d, s%d, s%d" % (sM, sB, sM))
    else:
        a.e("s_and_b32 s%d, s%d, 3" % (sG, sA))
        a.e("s_lshl_b32 s%d, s%d, 2" % (sG, sG))
        a.e("s_add_u32 s%d, s%d, s%d" % (sG, sG, sD))
        a.e("s_lshr_b32 s%d, s%d, 2" % (sM, sA))
        a.e("s_lshl_b32 s%d, s%d, 3" % (sM, sM))
        a.e("s_add_u32 s%d, s%d, s%d" % (sM, sM, sCB))
        a.e("s_mov_b32 s%d, s%d" % (sHP, sM))
    a.e("s_lshl_b32 s%d, s%d, 10" % (sWK, sW))
    a.e("s_mov_b32 s%d, 0x10000" % sK64)
    if Opt.code_pf:
        a.e("s_cmp_lg_u32 s%d, s%d" % (sD, sW))
        a.e("s_cbranch_scc1 L_nopf")
        a.e("s_getpc_b64 %s" % sp(sRET))
        a.e("s_lshl_b32 s%d, s%d, 13" % (sD, sW))
        a.e("v_lshl_add_u32 v2, v0, 7, s%d" % sD)
        a.e("v_min_u32 v2, CODE_PF_MAX, v2")
        a.e("global_load_dword %s, v2, %s" % (v(vPOLL), sp(sRET)))
        a.lab("L_nopf")
    a.e("s_lshl_b32 s%d, s%d, 2" % (sA, sW))
    a.e("v_lshrrev_b32 v2, 4, v0")
    a.e("v_add_u32 v3, s%d, v2" % sA)
    a.e("v_xor_b32 v3, v3, v0")
    a.e("v_and_b32 v3, 7, v3")
    a.e("v_lshlrev_b32 v3, 4, v3")
    a.e("v_lshrrev_b32 v4, 3, v0")
    a.e("v_lshl_add_u32 v3, v4, 10, v3")
    a.e("s_lshl_b32 s%d, s%d, 17" % (sA, sG))
    a.e("s_lshl_b32 s%d, s%d, 13" % (sB, sW))
    a.e("s_add_u32 s%d, s%d, s%d" % (sA, sA, sB))
    a.e("v_add_u32 %s, s%d, v3" % (v(vDX), sA))
    a.e("s_cmp_ge_u32 s%d, 14" % sM)
    a.e("s_cbranch_scc1 L_light")

def setup_rd(a):
    a.e("s_lshr_b32 s%d, s%d, 2" % (sHI, sW))
    a.e("s_and_b32 s%d, s%d, 3" % (sLO, sW))
    a.e("v_and_b32 v2, 15, v0")
    a.e("v_lshrrev_b32 v3, 4, v0")
    a.e("v_bfe_u32 v4, v0, 1, 3")
    a.e("v_xor_b32 v4, v4, v3")
    a.e("v_lshlrev_b32 v4, 4, v4")
    a.e("v_lshl_add_u32 %s, v2, 7, v4" % v(vXA))
    a.e("v_bfe_u32 v2, v0, 2, 2")
    a.e("v_and_b32 v4, 3, v0")
    a.e("v_lshl_add_u32 %s, v3, 3, v2" % v(vQA))
    a.e("v_lshlrev_b32 %s, 6, %s" % (v(vQA), v(vQA)))
    a.e("v_xor_b32 v5, s%d, v3" % sHI)
    a.e("v_and_b32 v5, 1, v5")
    a.e("v_lshl_add_u32 %s, v5, 5, %s" % (v(vQA), v(vQA)))
    a.e("v_lshl_add_u32 %s, v4, 3, %s" % (v(vQA), v(vQA)))

def setup_oclr(a):
    srd_words(a, [SWS, SKV, SDBG])
    a.e("s_mov_b32 s%d, 0xffff" % sVM)
    a.e("s_mov_b32 s%d, 0xffff" % (sVM + 1))
    a.e("s_lshl_b32 s%d, s%d, 2" % (sA, sG))
    a.e("s_add_u32 s%d, s%d, s%d" % (sA, sA, sLO))
    a.e("s_lshl_b32 s%d, s%d, 5" % (sB, sA))
    a.e("s_lshl_b32 s%d, s%d, 1" % (sC, sHP))
    a.e("s_add_u32 s%d, s%d, s%d" % (sB, sB, sC))
    a.e("s_add_u32 s%d, s%d, s%d" % (sB, sB, sHI))
    a.e("s_lshl_b32 s%d, s%d, 10" % (sB, sB))
    a.e("s_add_u32 s%d, s%d, 0x%x" % (sOST, sB, WS_OF))
    for i in range(4): a.e("v_mov_b32 %s, -1" % v(vQ + i))
    a.vmop("buffer_store_dwordx4 %s, %s, %s, s%d offen sc1" % (v(vQ, 4), v(vL16), srd(SWS), sOST), "oclr")
    a.e("v_mov_b32 %s, 1" % v(vONE))
    a.e("v_mov_b32 %s, 0" % v(vZERO))
    a.e("v_and_b32 %s, 31, v0" % v(vGA))
    a.e("v_lshlrev_b32 %s, 2, %s" % (v(vGA), v(vGA)))

def collect(fn):
    t = Asm(); t.marks = {}
    def vmop(s_, tag):
        t.e(s_); t.marks[len(t.l) - 1] = tag
    t.vmop = vmop
    fn(t)
    return [(x, t.marks.get(i)) for i, x in enumerate(t.l)]
def put(a, items):
    for x, tag in items:
        if tag: a.vmop(x, tag)
        else: a.e(x)

def setup_attn(a):
    srd_words(a, [SWD, SWO, SOUT])
    a.e("s_lshl_b32 s%d, s%d, 2" % (sA, sG))
    a.e("s_add_u32 s%d, s%d, s%d" % (sA, sA, sLO))
    a.e("s_mul_i32 s%d, s%d, 112" % (sB, sA))
    a.e("s_lshl_b32 s%d, s%d, 3" % (sC, sM))
    a.e("s_add_u32 s%d, s%d, s%d" % (sB, sB, sC))
    a.e("s_lshl_b32 s%d, s%d, 2" % (sC, sHI))
    a.e("s_add_u32 s%d, s%d, s%d" % (sB, sB, sC))
    a.e("s_and_b32 s%d, s%d, 1" % (sC, sLO))
    a.e("s_lshl_b32 s%d, s%d, 1" % (sC, sC))
    a.e("s_add_u32 s%d, s%d, s%d" % (sB, sB, sC))
    a.e("s_lshl_b32 s%d, s%d, 10" % (sB, sB))
    a.e("s_add_u32 s%d, s%d, 0x%x" % (sHST, sB, WS_HF))
    a.e("s_mul_i32 s%d, s%d, %d" % (sC, sC, 112 * 1024))
    a.e("s_sub_u32 s%d, %d, s%d" % (sC, 112 * 1024, sC))
    a.e("s_add_u32 s%d, s%d, s%d" % (sHST2, sHST, sC))
    a.e("v_bfe_u32 v2, v0, 2, 2")
    a.e("v_lshrrev_b32 v3, 5, v0")
    a.e("v_lshl_add_u32 v2, v3, 2, v2")
    a.e("v_lshlrev_b32 v2, 6, v2")
    a.e("v_bfe_u32 v3, v0, 4, 1")
    a.e("v_lshl_add_u32 v2, v3, 5, v2")
    a.e("v_and_b32 v3, 3, v0")
    a.e("v_lshl_add_u32 v2, v3, 3, v2")
    a.e("s_lshr_b32 s%d, s%d, 1" % (sA, sW))
    a.e("s_lshl_b32 s%d, s%d, 11" % (sA, sA))
    a.e("v_add_u32 %s, s%d, v2" % (v(vWDA), sA))
    a.e("v_add_u32 %s, 0x%x, %s" % (v(vKVA), L_KV, v(vL16)))
    a.e("v_bfe_u32 v2, v0, 2, 3")
    a.e("v_lshlrev_b32 v2, 10, v2")
    a.e("v_lshrrev_b32 v3, 5, v0")
    a.e("v_lshl_add_u32 v2, v3, 6, v2")
    a.e("v_and_b32 v3, 3, v0")
    a.e("v_lshl_add_u32 v2, v3, 4, v2")
    a.e("s_lshl_b32 s%d, s%d, 7" % (sB, sCB))
    a.e("v_add_u32 %s, s%d, v2" % (v(vWDV), sB))
    a.e("v_min_u32 v2, 13, v0")
    a.e("v_lshlrev_b32 v2, 7, v2")
    a.e("s_lshr_b32 s%d, s%d, 1" % (sA, sT))
    a.e("s_lshl_b32 s%d, s%d, 11" % (sA, sA))
    a.e("s_add_u32 s%d, s%d, 0x%x" % (sA, sA, WS_HFLAG))
    a.e("v_add_u32 %s, s%d, v2" % (v(vFLA), sA))
    a.e("s_lshl_b32 s%d, s%d, 1" % (sA, sT))
    a.e("s_and_b32 s%d, s%d, 1" % (sB, sW))
    a.e("s_add_u32 s%d, s%d, s%d" % (sA, sA, sB))
    a.e("s_lshl_b32 s%d, s%d, 15" % (sB, sA))
    a.e("s_lshr_b32 s%d, s%d, 1" % (sKQ, sW))
    if Opt.kqx:
        a.e("s_lshl_b32 s%d, s%d, 1" % (sC, sCB))
        a.e("s_and_b32 s%d, s%d, 2" % (sC, sC))
        a.e("s_xor_b32 s%d, s%d, s%d" % (sKQ, sKQ, sC))
    a.e("s_lshl_b32 s%d, s%d, 13" % (sC, sKQ))
    a.e("s_add_u32 s%d, s%d, s%d" % (sB, sB, sC))
    a.e("s_add_u32 s%d, s%d, 0x%x" % (sOLD, sB, WS_OF))
    if Opt.pvz:
        a.e("s_mov_b32 s%d, 0x110000" % sA)
        a.e("s_mov_b32 s%d, 0x110000" % sB)
        a.e("v_mov_b32 v3, 0x3f803f80")
        a.e("v_cndmask_b32 v2, 0, v3, %s" % sp(sA))
    else:
        a.e("v_mov_b32 v2, 0x3f803f80")
    for i in range(16): a.e("v_mov_b32 %s, v2" % v(vV + i))
    for i in range(4): a.e("v_mov_b32 %s, v2" % v(vV1L + i))
    for i in range(4): a.e("v_mov_b32 %s, 0" % v(vE + i))
    a.e("v_lshrrev_b32 v2, 4, v0")
    a.e("v_lshl_add_u32 %s, v2, 8, %s" % (v(vHA), v(vL16)))
    for i in range(16): a.e("v_mov_b32 %s, 0" % v(vO + i))
    for i in range(32): a.e("v_mov_b32 %s, 0" % v(vD + i))
    c0 = -2.0 * math.sqrt(2.0 / math.pi) * math.log2(math.e)
    a.e("v_mov_b32 %s, 0x%x" % (v(vC0), f2u(c0)))
    a.e("v_mov_b32 %s, 0x%x" % (v(vC0 + 1), f2u(c0 * 0.044715)))

def kv_first_loads(a):
    it = []
    for u in range(2):
        it.append(("s_add_u32 m0, s%d, 0x%x\ns_add_u32 s%d, s%d, 0x%x\nbuffer_load_dwordx4 %s, %s, s%d offen sc1 lds"
                   % (sWK, L_KV + u * 8192, sA, sWK, u * 8192, v(vL16), srd(SKV), sA), "kv%d" % u))
    it.append(("s_mov_b32 s%d, 0x%x\nbuffer_load_dwordx4 %s, %s, %s, s%d offen sc1"
               % (sA, 63 * 2048, v(vK0, 4), v(vL16), srd(SKV), sA), "k0"))
    it.append(("s_mov_b64 exec, %s\nbuffer_load_dwordx4 %s, %s, %s, 0 offen offset:%d sc1\ns_mov_b64 exec, -1"
               % (sp(sVM), v(vV1L, 4), v(vL16), srd(SKV), 1024 + 256), "k0"))
    it.append(("s_lshl_b32 s%d, s%d, 2\ns_add_u32 s%d, s%d, s%d\ns_lshl_b32 s%d, s%d, 7\ns_add_u32 s%d, s%d, 0x%x\n"
               "buffer_load_dword %s, %s, %s, s%d offen sc1"
               % (sA, sG, sA, sA, sLO, sA, sA, sA, sA, WS_G, v(vGP), v(vGA), srd(SWS), sA), "k0"))
    it.append(("s_lshl_b32 s%d, s%d, 1\ns_and_b32 s%d, s%d, 1\ns_add_u32 s%d, s%d, s%d\ns_lshl_b32 s%d, s%d, 7\ns_add_u32 s%d, s%d, 0x%x\n"
               "buffer_load_dword %s, %s, %s, s%d offen sc1"
               % (sA, sT, sB, sW, sA, sA, sB, sA, sA, sA, sA, WS_G, v(vGC), v(vGA), srd(SWS), sA), "k0"))
    return it

def spin_counter(a, name, first_loaded):
    a.e("s_cmp_lg_u32 s%d, 0" % sW)
    a.e("s_cbranch_scc1 L_%s_done" % name)
    a.e("s_mov_b32 s%d, 0x4000" % sB)
    if first_loaded: a.e("s_branch L_%s_chk" % name)
    a.lab("L_%s_re" % name)
    a.e("buffer_load_dword %s, off, %s, 0 sc1" % (v(vPOLL), srd(SDBG)))
    a.e("s_waitcnt vmcnt(0)")
    a.lab("L_%s_chk" % name)
    a.e("v_readfirstlane_b32 s%d, %s" % (sA, v(vPOLL)))
    a.e("s_cmp_ge_u32 s%d, 32" % sA)
    a.e("s_cbranch_scc1 L_%s_done" % name)
    a.e("s_sleep 4")
    a.e("s_sub_u32 s%d, s%d, 1" % (sB, sB))
    a.e("s_cmp_lg_u32 s%d, 0" % sB)
    a.e("s_cbranch_scc1 L_%s_re" % name)
    a.lab("L_%s_done" % name)

def phase1_F(a):
    SCHED = {1: ["01423567", "10253467", "23016457", "32104756"],
             2: ["02134657", "01324576", "10243567", "10235467"],
             3: ["01324657", "01243576", "12035467", "20134567"],
             5: ["01243567", "10325467", "23014657", "32104576"],
             4: ["02143657", "10325476", "02143657", "10325476"]}
    tabs = SCHED[Opt.sched] if Opt.sched else ["".join(str(c ^ (p & Opt.xmask)) for c in range(8)) for p in range(4)]
    for t_ in tabs: assert sorted(t_) == list("01234567")
    num = [int(t_[::-1], 16) for t_ in tabs]
    a.e("s_add_u32 s%d, s%d, s%d" % (sA, sG, sHP))
    a.e("s_mov_b32 s%d, 0x%x" % (sXP, num[0]))
    a.e("s_mov_b32 s%d, 0x%x" % (sB, num[2]))
    a.e("s_bitcmp1_b32 s%d, 0" % sA)
    a.e("s_cselect_b32 s%d, 0x%x, s%d" % (sXP, num[1], sXP))
    a.e("s_cselect_b32 s%d, 0x%x, s%d" % (sB, num[3], sB))
    a.e("s_bitcmp1_b32 s%d, 1" % sA)
    a.e("s_cselect_b32 s%d, s%d, s%d" % (sXP, sB, sXP))
    if Opt.ghx:
        a.e("s_bitcmp1_b32 s%d, 3" % sG)
        a.e("s_cselect_b32 s%d, 0x44444444, 0" % sB)
        a.e("s_xor_b32 s%d, s%d, s%d" % (sXP, sXP, sB))
    a.e("s_and_b32 s%d, s%d, 3" % (sLO, sW))
    a.e("s_lshl_b32 s%d, s%d, 10" % (sWH, sLO))
    if Opt.hrot:
        a.e("s_lshl_b32 s%d, s%d, %d" % (sOFFQ, sA, 13 - (Opt.hrot & 1)))
        a.e("s_and_b32 s%d, s%d, 0x2000" % (sOFFQ, sOFFQ))
        a.e("s_add_u32 s%d, s%d, s%d" % (sM0B, sWH, sOFFQ))
        a.e("s_sub_u32 s%d, s%d, s%d" % (sM0B + 1, sWH, sOFFQ))

    def wvoff(a):
        a.e("s_lshl_b32 s%d, s%d, 1" % (sA, sLO))
        a.e("s_and_b32 s%d, s%d, 4" % (sA, sA))
        a.e("v_lshrrev_b32 v2, 4, v0")
        a.e("v_bfe_u32 v3, v0, 1, 3")
        a.e("v_xor_b32 v3, v3, v2")
        a.e("v_xor_b32 v3, s%d, v3" % sA)
        a.e("v_lshlrev_b32 v3, 5, v3")
        a.e("v_and_b32 v4, 1, v0")
        a.e("v_lshl_add_u32 v3, v4, 4, v3")
        a.e("v_mul_u32_u24 v5, 3584, v2")
        a.e("s_mul_i32 s%d, s%d, %d" % (sA, sLO, 4 * 3584))
        a.e("s_lshl_b32 s%d, s%d, 8" % (sB, sM))
        a.e("s_add_u32 s%d, s%d, s%d" % (sA, sA, sB))
        a.e("v_add3_u32 %s, v3, v5, s%d" % (v(vDG), sA))
    def qvoff(a):
        a.e("v_lshrrev_b32 v3, 2, v0")
        a.e("v_lshlrev_b32 v3, 10, v3")
        a.e("v_bfe_u32 v4, v0, 4, 2")
        a.e("v_and_b32 v4, 2, v4")
        a.e("v_xor_b32 v4, v4, v0")
        a.e("v_and_b32 v4, 3, v4")
        a.e("v_lshl_add_u32 v3, v4, 4, v3")
        a.e("s_lshl_b32 s%d, s%d, 14" % (sA, sLO))
        a.e("s_lshl_b32 s%d, s%d, 6" % (sB, sHP))
        a.e("s_add_u32 s%d, s%d, s%d" % (sA, sA, sB))
        a.e("v_add_u32 %s, s%d, v3" % (v(vDQ), sA))

    if Opt.hrot:
        ORDER = [("q", 0)] + [(t_, 2 * h_ + j) for h_ in range(2) for t_, j in (("x", 0), ("x", 1), ("g", 0), ("u", 0), ("g", 1), ("u", 1))]
    else:
        ORDER = [("q", 0)] + [("x", j) for j in range(4)] + [(t_, j) for j in range(4) for t_ in "gu"]
    def block(items):
        out = []; lastc = None; lastw = None
        for c, kind, j in items:
            s = c % 3; pre = []
            if c != lastc:
                pre.append("s_bfe_u32 s%d, s%d, 0x%x" % (sCH, sXP, 0x30000 + 4 * c)); lastc = c; lastw = None
            fam = "w" if kind in "gu" else kind
            rot = Opt.hrot and fam != "q"
            if lastw is None or lastw[0] != fam or (rot and lastw[1] >> 1 != j >> 1):
                pre.append({"q": "s_lshl_b32 s%d, s%d, 16" % (sOFFW, sCH), "x": "s_lshl_b32 s%d, s%d, 7" % (sOFFW, sCH),
                            "w": "s_mul_i32 s%d, s%d, %d" % (sOFFW, sCH, 64 * 3584)}[fam])
                if rot: pre.append("s_%s_u32 s%d, s%d, s%d" % ("sub" if j >> 1 else "add", sOFFW, sOFFW, sRX if fam == "x" else sRW))
                lastw = (fam, 0)
            if lastw[1] != j:
                pre.append("s_add_u32 s%d, s%d, 0x%x" % (sOFFW, sOFFW, (j - lastw[1]) * (0x8000 if fam == "x" else 16 * 3584)))
                lastw = (fam, j)
            m0c, vo, rs = {"q": (L_WQ + s * 4096, vDQ, SWQ), "x": (L_X + s * 16384 + j * 4096, vDX, SX),
                           "g": (L_G + s * 16384 + j * 4096, vDG, SWG), "u": (L_U + s * 16384 + j * 4096, vDG, SWU)}[kind]
            nt = " nt" if Opt.ntx & (1 if rs == SX else 2) else ""
            out.append(("s_add_u32 m0, s%d, 0x%x\n%s\nbuffer_load_dwordx4 %s, %s, s%d offen%s lds"
                        % ((sM0B + (j >> 1)) if rot else sWH, m0c, "\n".join(pre) or "s_nop 0", v(vo), srd(rs), sOFFW, nt), "c%d" % c))
        return out
    def part(c, role): return [(c, k_, j) for k_, j in ORDER if (k_ in "gu") == (role == "A")]

    def rdsetup(a):
        setup_rd(a)
        a.e("v_lshl_add_u32 %s, v3, 3, v2" % v(vWA))
        a.e("v_lshlrev_b32 %s, 8, %s" % (v(vWA), v(vWA)))
        a.e("v_lshl_add_u32 %s, v4, 3, %s" % (v(vWA), v(vWA)))
        a.e("v_and_b32 v5, 1, v3")
        a.e("v_lshl_add_u32 v2, v5, 2, v2")
        a.e("s_lshl_b32 s%d, s%d, 2" % (sA, sHI))
        a.e("s_and_b32 s%d, s%d, 1" % (sB, sLO))
        a.e("s_lshl_b32 s%d, s%d, 1" % (sB, sB))
        a.e("s_add_u32 s%d, s%d, s%d" % (sA, sA, sB))
        a.e("v_xor_b32 v2, s%d, v2" % sA)
        a.e("v_lshl_add_u32 %s, v2, 5, %s" % (v(vWA), v(vWA)))
        a.e("v_xor_b32 %s, 32, %s" % (v(vWA + 1), v(vWA)))
        a.e("v_add_u32 %s, 0x%x, %s" % (v(vWA + 2), L_U - L_G, v(vWA)))
        a.e("v_add_u32 %s, 0x%x, %s" % (v(vWA + 3), L_U - L_G, v(vWA + 1)))
        a.e("s_lshl_b32 s%d, s%d, 12" % (sA, sLO))
        a.e("s_add_u32 s%d, s%d, 0x%x" % (sA, sA, L_X))
        a.e("v_add_u32 %s, s%d, %s" % (v(vXA), sA, v(vXA)))
        a.e("v_xor_b32 %s, 0x1000, %s" % (v(vXA + 1), v(vXA)))
        a.e("v_xor_b32 %s, 64, %s" % (v(vXA + 2), v(vXA)))
        a.e("v_xor_b32 %s, 64, %s" % (v(vXA + 3), v(vXA + 1)))
        a.e("v_add_u32 %s, 0x%x, %s" % (v(vQA), L_WQ, v(vQA)))

    srd_words(a, [SWG, SWU])
    a.e("s_cmp_ge_u32 s%d, 4" % sW)
    a.e("s_cbranch_scc1 L_setB")
    late = collect(setup_oclr) + collect(setup_attn)
    words = collect(lambda t: srd_words(t, [SWS, SKV, SDBG, SWD, SWO, SOUT]))
    late = [x for x in late if x not in words]
    oclr = [x for x in late if x[1] == "oclr"]
    if Opt.olate: late = [x for x in late if x[1] != "oclr"]
    else: oclr = []
    words += [("v_mov_b32 %s, 0" % v(r_), None) for r_ in (vGA, vWDV, vFLA, vHA)]
    st = collect(rdsetup) + words + late[:Opt.fillpre]
    fills = {"A": late[Opt.fillpre:], "B": late[Opt.fillpre:]}
    vms = {}
    for role in "AB":
        a.vm = []
        if role == "A":
            wvoff(a)
        else:
            a.lab("L_setB")
            a.e("v_subrev_u32 %s, 0x8000, %s" % (v(vDX), v(vDX)))
            qvoff(a)
        a.e("s_waitcnt lgkmcnt(0)")
        a.stamp(2)
        if Opt.hrot:
            a.e("s_lshl_b32 s%d, s%d, 3" % (sRX, sOFFQ))
            a.e("s_mul_i32 s%d, s%d, 14" % (sRW, sOFFQ))
        put(a, block(part(0, role)))
        if Opt.startbar: a.e("s_barrier")
        npre = min(Opt.npre, 8) if role == "A" else 5
        pn = block(part(1, role)[:npre])
        rest = st + collect(qvoff if role == "A" else wvoff)
        gap = len(rest) // (npre + Opt.pregap) + 1
        for i in range(npre):
            put(a, pn[:1]); pn = pn[1:]
            put(a, rest[:gap]); rest = rest[gap:]
        put(a, rest)
        a.e("s_mov_b64 vcc, %d" % (-1 if role == "A" else 0))
        if role == "A":
            a.waitvm("c0")
            a.e("s_branch L_k0")
        else:
            a.e("s_setprio 1")
            a.waitvm("c0")
        vms[role] = a.vm
    stream = part(1, "A")[min(Opt.npre, 8):] + [(c, k_, j) for c in range(2, 8) for k_, j in ORDER]
    qa = [int(x, 16) for x in Opt.qa]; qb = [int(x, 16) for x in Opt.qb]
    def take(n, cmax):
        m = 0
        while m < n and m < len(stream) and stream[m][0] <= cmax: m += 1
        r_ = stream[:m]; del stream[:m]
        return block(r_)
    a.lab("L_k0")
    a.vm = vms["A"]
    ool = Asm()
    def dmablock(name, role, items, wait=None):
        a.e("s_cbranch_vcc%s L_%s" % ("nz" if role == "A" else "z", name))
        if wait: a.waitvm(wait, lgkm=True)
        a.lab("L_%s_r" % name)
        ool.lab("L_%s" % name)
        ool.vm = a.vm if role == "A" else vms["B"]
        for it_ in items:
            if it_[1] is None: put(ool, fills[role]); fills[role] = []
            put(ool, [it_])
            put(ool, fills[role][:Opt.fillper]); fills[role] = fills[role][Opt.fillper:]
        if name == "e7": put(ool, fills[role]); fills[role] = []
        if wait: ool.waitvm(wait, lgkm=True)
        if role == "B": vms["B"] = ool.vm
        ool.e("s_branch L_%s_r" % name)
    a.ool = ool.l

    def fr(k):
        b = vF1 + 36 * (k % 2)
        return dict(x=b, w=b + 16, q=b + 32)
    def reads(k):
        c, s = divmod(k, 2); f = fr(k); sl = c % 3
        wo = sl * 16384 + s * 8192
        W = lambda i: [rdtr(f['w'] + 4 * i, vWA + i, wo), rdtr(f['w'] + 4 * i + 2, vWA + i, wo + 1024)]
        X = [rd128(f['x'] + 4 * b, vXA + 2 * s + (b >> 1), sl * 16384 + (b & 1) * 2048) for b in range(4)]
        return W(0) + X + W(2) + W(1) + W(3) + [rdtr(f['q'], vQA, sl * 4096 + s * 2048), rdtr(f['q'] + 2, vQA, sl * 4096 + s * 2048 + 256)]
    a.e("s_barrier")
    a.stamp(3)
    if Opt.kdiag or Opt.probe >= 18:
        kstamp(a, 2)
        a.e("s_waitcnt lgkmcnt(0)")
    for r in reads(0): a.e(r)
    if qa[0]: dmablock("d2", "A", take(qa[0], 2))
    for k in range(16):
        c, s = divmod(k, 2); f = fr(k)
        z = lambda x: None if k == 0 else x
        mf = []
        for n_, i in enumerate((0, 2, 1, 3)):
            for b in (range(4) if n_ % 2 == 0 else range(3, -1, -1)):
                d = vACC + 16 * b + 4 * i
                mf.append(mfma16(d, f['w'] + 4 * i, f['x'] + 4 * b, z(d)))
        for b in range(2): mf.append(mfma16(vAQ + 4 * b, f['q'], f['x'] + 4 * b, z(vAQ + 4 * b)))
        rds = reads(k + 1) if k < 15 else []
        if s == 0:
            a.e("s_waitcnt lgkmcnt(6)")
            for i, m in enumerate(mf):
                if i == 8: a.e("s_waitcnt lgkmcnt(8)")
                a.e(m)
                if i < len(rds): a.e(rds[i])
            continue
        a.e("s_waitcnt lgkmcnt(8)")
        for m in mf[:4]: a.e(m)
        if c <= 5:
            dmablock("e%d" % (c + 2), "B", take(qb[c], c + 2), "c%d" % (c + 1))
            assert not any(x[0] <= c + 1 for x in stream)
        if c == 7:
            a.e("s_waitcnt lgkmcnt(0)")
        elif c == 6 and Opt.stagger:
            a.e("s_waitcnt lgkmcnt(0)")
            a.e("s_cbranch_vccz L_st7")
            a.e("s_waitcnt vmcnt(0)")
            spin_counter(a, "kvf", True)
            a.e("s_barrier")
            a.e("s_setprio 1")
            for x, _ in kv_first_loads(a) + oclr: a.e(x)
            a.lab("L_st7")
        elif c == 6:
            a.e("s_setprio 0")
            a.wait0(lgkm=True)
            spin_counter(a, "kvf", True)
            a.e("s_barrier")
            put(a, kv_first_loads(a) + oclr)
        else:
            a.e("s_barrier")
        if c < 7 and ((Opt.kdiag == 1 and Opt.diag) or Opt.probe == 21 + c):
            kstamp(a, 3 + c)
            a.e("s_waitcnt lgkmcnt(0)")
        if c + 3 < 8:
            items = take(qa[c + 1], c + 3)
            if c == 4:
                items.append(("s_cmp_lg_u32 s%d, 0\ns_cbranch_scc1 L_d7_r\nbuffer_load_dword %s, off, %s, 0 sc1"
                              % (sW, v(vPOLL), srd(SDBG)), None))
            dmablock("d%d" % (c + 3), "A", items)
        for i, m in enumerate(mf[4:]):
            a.e(m)
            if i < len(rds): a.e(rds[i])
        if k == 11: assert not stream and not fills["A"] and not fills["B"]
        if k == 11 and Opt.stagger:
            a.e("s_cbranch_vccnz L_st6")
            a.e("s_setprio 0")
            a.wait0()
            a.e("s_barrier")
            put(a, kv_first_loads(a) + oclr)
            a.lab("L_st6")
    a.stamp(4)

def phase1_L(a):
    a.lab("L_light")
    a.vm = []
    srd_words(a, [SWKV, SWV, SGATE])
    a.e("s_sub_u32 s%d, s%d, 14" % (sCNT, sM))
    a.e("s_lshl_b32 s%d, s%d, 16" % (sOLD, sCNT))
    a.e("s_lshl_b32 s%d, s%d, 13" % (sHST, sCNT))
    a.e("s_add_u32 s%d, s%d, s%d" % (sWH, sHST, sWK))
    a.e("s_xor_b32 s%d, s%d, 0x2000" % (sHST, sHST))
    a.e("s_add_u32 s%d, s%d, 0x2000" % (sA, sWK))
    a.e("s_waitcnt lgkmcnt(0)")
    a.stamp(2)
    a.e("s_mov_b32 s%d, s%d" % (SWV, sTMPP))
    a.e("s_mov_b32 s%d, s%d" % (SWV + 1, sTMPP + 1))
    def xdma(c, base, so):
        a.vmop("s_add_u32 m0, s%d, 0x%x\ns_nop 0\nbuffer_load_dwordx4 %s, %s, s%d offen offset:%d lds"
               % (base, LL_X + c * 16384 - c * 128, v(vDX), srd(SX), so, c * 128), "c%d" % c)
    def wdma(u):
        for t, rs in enumerate((SWKV, SWV)):
            a.vmop("s_add_u32 m0, s%d, 0x%x\ns_nop 0\nbuffer_load_dwordx4 %s, %s, s%d offen lds"
                   % (sWK, LL_W + t * 16384 + u * 8192, v(vL16), srd(rs), sA if u else sWK), "w")
    wdma(0)
    a.vmop("s_mov_b32 m0, s%d\ns_nop 0\nbuffer_load_dwordx4 %s, %s, 0 offen lds" % (sHST, v(vL16), srd(SGATE)), "w")
    for c in range(8):
        if c == 4: wdma(1)
        xdma(c, sWH, sOLD)
        if c in (1, 3, 5): a.e("s_barrier")
    setup_rd(a)
    a.e("v_lshrrev_b32 v3, 5, v0")
    a.e("v_bfrev_b32 v5, v4")
    a.e("v_lshrrev_b32 v5, 30, v5")
    a.e("s_cmp_ge_u32 s%d, 2" % sLO)
    a.e("s_cselect_b64 vcc, -1, 0")
    a.e("v_cndmask_b32 v4, v5, v4, vcc")
    a.e("v_lshl_add_u32 %s, v3, 3, v2" % v(vWA))
    a.e("v_lshlrev_b32 %s, 5, %s" % (v(vWA), v(vWA)))
    a.e("v_lshl_add_u32 %s, v4, 3, %s" % (v(vWA), v(vWA)))
    a.e("s_lshr_b32 s%d, s%d, 1" % (sA, sLO))
    a.e("s_lshl_b32 s%d, s%d, 14" % (sA, sA))
    a.e("s_add_u32 s%d, s%d, 0x%x" % (sA, sA, LL_W))
    a.e("v_add_u32 %s, s%d, %s" % (v(vWA), sA, v(vWA)))
    a.e("v_lshl_add_u32 %s, v3, 4, s%d" % (v(vWA + 1), sHST))
    a.e("s_and_b32 s%d, s%d, 1" % (sA, sLO))
    a.e("s_lshl_b32 s%d, s%d, 1" % (sB, sCNT))
    a.e("s_add_u32 s%d, s%d, s%d" % (sCNT, sA, sB))
    a.e("s_lshl_b32 s%d, s%d, 12" % (sA, sCNT))
    a.e("v_and_b32 v2, 31, v0")
    a.e("v_bfe_u32 v4, v0, 1, 3")
    a.e("v_xor_b32 v4, v4, v3")
    a.e("v_lshlrev_b32 v4, 4, v4")
    a.e("v_lshl_add_u32 v4, v2, 7, v4")
    a.e("v_add_u32 %s, s%d, v4" % (v(vLX), sA))
    for s in range(1, 4): a.e("v_xor_b32 %s, %d, %s" % (v(vLX + s), 32 * s, v(vLX)))
    for s in range(4): a.e("v_add_u32 %s, 0x10000, %s" % (v(vLX + 4 + s), v(vLX + s)))
    setup_oclr(a)
    vm0 = list(a.vm)
    a.e("s_cmp_lg_u32 s%d, 0" % sHI)
    a.e("s_cbranch_scc1 L_lB")
    a.e("s_not_b64 %s, %s" % (sp(sTMPP), sp(sVM)))
    a.e("s_cmp_ge_u32 s%d, 2" % sLO)
    a.e("s_cbranch_scc1 L_lV")
    def chain(kind):
        a.vm = list(vm0)
        def fr(k):
            b = vFR + 8 * (k % 4)
            return b, b + 4
        def reads(k):
            c, s = divmod(k, 4); x, w = fr(k)
            r = [rd128(x, vLX + s + 4 * (c >> 2), (c & 3) * 16384), rdtr(w, vWA, k * 512), rdtr(w + 2, vWA, k * 512 + 128)]
            if kind == "K":
                r += ["s_mov_b64 exec, %s" % sp(sTMPP), rd128(w, vWA + 1, k * 32), "s_mov_b64 exec, -1"]
            return r
        for q in range(4):
            a.waitvm("c%d" % (2 * q + 1))
            a.e("s_barrier")
            nr = 4 if kind == "K" else 3
            for k in range(8 * q, 8 * q + 2):
                for r in reads(k): a.e(r)
            for k in range(8 * q, 8 * q + 8):
                if k + 2 < 8 * q + 8:
                    for r in reads(k + 2): a.e(r)
                left = min(2, 8 * q + 7 - k)
                a.e("s_waitcnt lgkmcnt(%d)" % (left * nr))
                x, w = fr(k)
                cc = None if k == 0 else vACC
                a.e(mfma(vACC, w, x, cc) if kind == "K" else mfma(vACC, x, w, cc))
        a.e("s_lshl_b32 s%d, s%d, 2" % (sA, sG))
        a.e("s_add_u32 s%d, s%d, s%d" % (sA, sA, sCNT))
        a.e("s_nop 12")
        if kind == "K":
            a.e("s_mov_b32 s%d, 0x%x" % (sC, f2u(0.25 * math.log2(math.e))))
            for i in range(8): a.e("v_mul_f32 %s, s%d, %s" % (v(vACC + i), sC, v(vACC + i)))
            a.e("v_mul_f32 %s, 0x%x, %s" % (v(vACC + 8), f2u(-math.log2(math.e)), v(vACC + 8)))
            a.e("v_exp_f32 %s, %s" % (v(vACC + 8), v(vACC + 8)))
            for i in range(4): a.e("v_cvt_pk_bf16_f32 %s, %s, %s" % (v(vFR + i), v(vACC + 2 * i), v(vACC + 2 * i + 1)))
            a.e("v_add_f32 %s, 1.0, %s" % (v(vACC + 8), v(vACC + 8)))
            a.e("v_rcp_f32 %s, %s" % (v(vACC + 8), v(vACC + 8)))
            a.e("s_add_u32 s%d, s%d, 63" % (sB, sA))
            a.e("s_and_b32 s%d, s%d, 63" % (sB, sB))
            a.e("s_lshl_b32 s%d, s%d, 11" % (sB, sB))
            a.e("buffer_store_dwordx4 %s, %s, %s, s%d offen sc1" % (v(vFR, 4), v(vL16), srd(SKV), sB))
            a.e("s_lshl_b32 s%d, s%d, 7" % (sB, sA))
            a.e("s_add_u32 s%d, s%d, 0x%x" % (sB, sB, WS_G))
            a.e("s_mov_b32 exec_hi, 0")
            a.e("buffer_store_dword %s, %s, %s, s%d offen sc1" % (v(vACC + 8), v(vGA), srd(SWS), sB))
            a.e("s_mov_b64 exec, -1")
        else:
            for i in range(8): a.e("v_cvt_pk_bf16_f32 %s, %s, %s" % (v(vFR + i), v(vACC + 2 * i), v(vACC + 2 * i + 1)))
            a.e("v_bfe_u32 v2, v0, 4, 1")
            a.e("v_add_u32 v2, s%d, v2" % sA)
            a.e("v_and_b32 v2, 63, v2")
            a.e("v_lshl_add_u32 v2, v2, 11, %s" % v(vL16))
            for i in range(4): a.e("v_cndmask_b32 %s, %s, %s, %s" % (v(vFR + i), v(vFR + 4 + i), v(vFR + i), sp(sVM)))
            a.e("buffer_store_dwordx4 %s, v2, %s, 0 offen offset:1024 sc1" % (v(vFR, 4), srd(SKV)))
        a.e("s_branch L_lJ")
    chain("K")
    a.lab("L_lV")
    chain("V")
    a.lab("L_lB")
    a.vm = list(vm0)
    a.e("s_cmp_lg_u32 s%d, 14" % sM)
    a.e("s_cbranch_scc1 L_nozf")
    a.e("s_cmp_lg_u32 s%d, 4" % sW)
    a.e("s_cbranch_scc1 L_nozf")
    a.e("v_lshlrev_b32 v2, 7, v0")
    a.e("s_lshl_b32 s%d, s%d, 11" % (sA, sG))
    a.e("s_add_u32 s%d, s%d, 0x%x" % (sA, sA, WS_HFLAG))
    a.e("s_mov_b64 exec, 0xffff")
    a.e("buffer_store_dword %s, v2, %s, s%d offen sc1" % (v(vZERO), srd(SWS), sA))
    a.e("s_mov_b64 exec, -1")
    a.lab("L_nozf")
    for q in range(4):
        a.waitvm("c%d" % (2 * q + 1))
        a.e("s_barrier")
    a.lab("L_lJ")
    a.e("v_lshrrev_b32 v3, 2, v0")
    a.e("v_lshlrev_b32 v3, 10, v3")
    a.e("v_lshrrev_b32 v4, 5, v0")
    a.e("v_lshlrev_b32 v4, 1, v4")
    a.e("v_xor_b32 v4, v4, v0")
    a.e("v_and_b32 v4, 3, v4")
    a.e("v_lshl_add_u32 v3, v4, 4, v3")
    a.e("s_lshl_b32 s%d, s%d, 14" % (sA, sW))
    a.e("s_lshl_b32 s%d, s%d, 6" % (sB, sHP))
    a.e("s_add_u32 s%d, s%d, s%d" % (sA, sA, sB))
    a.e("v_add_u32 %s, s%d, v3" % (v(vDQ), sA))
    a.e("s_xor_b32 s%d, s%d, 0x2000" % (sWH, sWH))
    a.e("s_xor_b32 s%d, s%d, 0x10000" % (sOLD, sOLD))
    a.wait0(lgkm=True)
    a.e("s_barrier")
    a.e("s_cmp_lg_u32 s%d, 0" % sW)
    a.e("s_cbranch_scc1 L_noat")
    a.e("s_mov_b64 exec, 1")
    a.e("buffer_atomic_add %s, off, %s, 0 sc1" % (v(vONE), srd(SDBG)))
    a.e("s_mov_b64 exec, -1")
    a.lab("L_noat")
    a.stamp(3)
    for c in range(8): xdma(c, sWH, sOLD)
    for p in range(4):
        a.e("s_add_u32 m0, s%d, 0x%x" % (sWK, LL_WQ + p * 8192))
        a.e("s_mov_b32 s%d, 0x%x" % (sA, p * 128 * 1024))
        a.e("buffer_load_dwordx4 %s, %s, s%d offen lds" % (v(vDQ), srd(SWQ), sA))
    setup_attn(a)
    if Opt.touch & 2:
        a.e("s_lshl_b32 s%d, s%d, 1" % (sA, sG))
        a.e("s_add_u32 s%d, s%d, s%d" % (sA, sA, sM))
        a.e("s_sub_u32 s%d, s%d, 14" % (sA, sA))
        a.e("s_lshl_b32 s%d, s%d, 3" % (sA, sA))
        a.e("s_add_u32 s%d, s%d, s%d" % (sA, sA, sW))
        a.e("v_lshlrev_b32 v2, 15, v0")
        a.e("s_lshl_b32 s%d, s%d, 7" % (sA, sA))
        a.e("buffer_load_dword %s, v2, %s, s%d offen" % (v(vPOLL), srd(SWO), sA))
        a.e("buffer_load_dword %s, v2, %s, s%d offen" % (v(vPOLL), srd(SWD), sA))
    a.e("s_lshl_b32 s%d, s%d, 12" % (sA, sLO))
    a.e("v_add_u32 %s, s%d, %s" % (v(vXA), sA, v(vXA)))
    a.e("v_xor_b32 %s, 64, %s" % (v(vXA + 1), v(vXA)))
    a.e("v_add_u32 %s, 0x10000, %s" % (v(vXA + 2), v(vXA)))
    a.e("v_add_u32 %s, 0x10000, %s" % (v(vXA + 3), v(vXA + 1)))
    a.e("v_add_u32 %s, 0x%x, %s" % (v(vQA), LL_WQ, v(vQA)))
    a.e("s_waitcnt vmcnt(%d)" % (2 if Opt.touch & 2 else 0))
    a.e("s_barrier")
    def fr(k): return vFR + 12 * (k % 3)
    def reads(k):
        c, s = divmod(k, 2); f = fr(k)
        return [rd128(f + 4 * b, vXA + s + 2 * (c >> 2), (c & 3) * 16384 + b * 2048) for b in range(2)] + \
               [rdtr(f + 8, vQA, k * 2048), rdtr(f + 10, vQA, k * 2048 + 256)]
    for k in range(2):
        for r in reads(k): a.e(r)
    for k in range(16):
        a.e("s_waitcnt lgkmcnt(%d)" % (4 * min(1, 15 - k)))
        for b in range(2): a.e(mfma16(vAQ + 4 * b, fr(k) + 8, fr(k) + 4 * b, None if k == 0 else vAQ + 4 * b))
        if k + 2 < 16:
            for r in reads(k + 2): a.e(r)
    spin_counter(a, "kvl", False)
    a.e("s_barrier")
    for s, t in kv_first_loads(a): a.e(s)
    a.wait0()
    a.stamp(4)
    a.e("s_branch L_join")

def gelu_tile(a, ti, scalar=False):
    acc = vACC + 16 * ti
    t = vFR
    o = vFR + 8 + 4 * ti
    pk = lambda r: v(r, 2)
    if scalar:
        for i in range(8): a.e("v_mul_f32 %s, %s, %s" % (v(t + i), v(acc + i), v(acc + i)))
        for i in range(8): a.e("v_fma_f32 %s, %s, %s, %s" % (v(t + i), v(t + i), v(vC0 + 1), v(vC0)))
        for i in range(8): a.e("v_mul_f32 %s, %s, %s" % (v(t + i), v(t + i), v(acc + i)))
        for i in range(8): a.e("v_exp_f32 %s, %s" % (v(t + i), v(t + i)))
        for i in range(8): a.e("v_add_f32 %s, 1.0, %s" % (v(t + i), v(t + i)))
        for i in range(8): a.e("v_rcp_f32 %s, %s" % (v(t + i), v(t + i)))
        for i in range(8): a.e("v_mul_f32 %s, %s, %s" % (v(acc + i), v(acc + i), v(acc + 8 + i)))
        for i in range(8): a.e("v_mul_f32 %s, %s, %s" % (v(acc + i), v(acc + i), v(t + i)))
    R4, R8 = (range(0), range(0)) if scalar else (range(4), range(8))
    for i in R4: a.e("v_pk_mul_f32 %s, %s, %s" % (pk(t + 2 * i), pk(acc + 2 * i), pk(acc + 2 * i)))
    for i in R4: a.e("v_pk_fma_f32 %s, %s, %s, %s op_sel:[0,1,0] op_sel_hi:[1,1,0]" % (pk(t + 2 * i), pk(t + 2 * i), pk(vC0), pk(vC0)))
    for i in R4: a.e("v_pk_mul_f32 %s, %s, %s" % (pk(t + 2 * i), pk(t + 2 * i), pk(acc + 2 * i)))
    for i in R8: a.e("v_exp_f32 %s, %s" % (v(t + i), v(t + i)))
    for i in R4: a.e("v_pk_add_f32 %s, %s, 1.0 op_sel_hi:[1,0]" % (pk(t + 2 * i), pk(t + 2 * i)))
    for i in R8: a.e("v_rcp_f32 %s, %s" % (v(t + i), v(t + i)))
    for i in R4: a.e("v_pk_mul_f32 %s, %s, %s" % (pk(acc + 2 * i), pk(acc + 2 * i), pk(acc + 8 + 2 * i)))
    for i in R4: a.e("v_pk_mul_f32 %s, %s, %s" % (pk(acc + 2 * i), pk(acc + 2 * i), pk(t + 2 * i)))
    for i in range(4): a.e("v_cvt_pk_bf16_f32 %s, %s, %s" % (v(o + i), v(acc + 2 * i), v(acc + 2 * i + 1)))
    a.vmop("buffer_store_dwordx4 %s, %s, %s, s%d offen offset:%d sc1" % (v(o, 4), v(vHA), srd(SWS), sHST2 if ti >> 1 else sHST, (ti & 1) * 256), "hst")

def Yseg(hset, toggle=False):
    out = []
    for t in range(2):
        S, Sn = vS + 16 * t, vS + 16 * (1 - t)
        K, V0, V1 = vKF + 4 * t, vV + 8 * t, vV + 8 * t + 4
        for j in range(8):
            out.append("v_exp_f32 %s, %s" % (v(vE + 2 * (j % 2)), v(S + 2 * j)))
            out.append("v_exp_f32 %s, %s" % (v(vE + 2 * (j % 2) + 1), v(S + 2 * j + 1)))
            jj = (j - 1) % 8
            out.append("v_cvt_pk_bf16_f32 %s, %s, %s" % (v(vP + jj), v(vE + 2 * (jj % 2)), v(vE + 2 * (jj % 2) + 1)))
            if j == 1: out.append(mfma(vO, V1, vP + 4, vO))
            if j == 3: out.append(mfma(Sn, K, vQ, None))
            if hset is None:
                if j == 7: out.append(mfma(vO, V0, vP, vO))
            else:
                if j == 5: out.append(mfma(vO, V0, vP, vO))
                if j == 6 and t == 1 and toggle:
                    out.append("v_xor_b32 %s, 0x4000, %s" % (v(vKVA), v(vKVA)))
                    out.append("v_xor_b32 %s, 0x8000, %s" % (v(vWDA), v(vWDA)))
                if j == 7: out.append(mfma(vD + 16 * t, vWF + 4 * t, vH + 4 * hset, vD + 16 * t))
    return out

def kv_reads(off):
    r = [rd128(vKF, vKVA, off), rd128(vKF + 4, vKVA, off + 2048), "s_mov_b64 exec, %s" % sp(sVM)]
    for t in range(2):
        r += [rd128(vV + 8 * t, vKVA, off + 2048 * t + 1024), rd128(vV + 8 * t + 4, vKVA, off + 2048 * t + 1280)]
    r.append("s_mov_b64 exec, -1")
    return r
def wd_reads(dst, addr, off):
    r = []
    for c in range(2):
        r += [rdtr(dst + 4 * c, addr, off + 512 * c), rdtr(dst + 4 * c + 2, addr, off + 512 * c + 1024)]
    return r

def wdrow(sg): return (32 * (sg >> 1) + 8 * (sg & 1)) * 1024

def attention(a, role, pre0=None):
    A = role == "A"
    def kvdma(u):
        a.vmop("s_add_u32 m0, s%d, 0x%x\ns_add_u32 s%d, s%d, 0x%x\nbuffer_load_dwordx4 %s, %s, s%d offen sc1 lds"
               % (sWK, L_KV + (u % 4) * 8192, sA, sWK, u * 8192, v(vL16), srd(SKV), sA), "kv%d" % u)
    def wddma(sg):
        a.vmop("s_add_u32 m0, s%d, 0x%x\ns_add_u32 s%d, s%d, 0x%x\nbuffer_load_dwordx4 %s, %s, s%d offen lds"
               % (sWK, L_WD + ((sg + 3) % 8) * 8192, sA, sWDOFF, wdrow(sg), v(vWDV), srd(SWD), sA), "wd%d" % sg)
    def wodma(j):
        a.vmop("s_add_u32 m0, s%d, 0x%x\ns_add_u32 s%d, s%d, 0x%x\nbuffer_load_dwordx4 %s, %s, s%d offen lds"
               % (sWK, L_WO + j * 8192, sA, sB, j * 16384, v(vWDV), srd(SWO), sA), "wo")
    def hload(sg, dst):
        a.vmop("s_add_u32 s%d, s%d, 0x%x\nbuffer_load_dwordx4 %s, %s, %s, s%d offen sc1"
               % (sA, sHOFF, sg * 1024, v(dst, 4), v(vL16), srd(SWS), sA), "h%d" % sg)
    for n in range(11):
        if not A and n == 0: a.e("s_barrier")
        if n % 2 == 1: astamp(a, 2 + n // 2)
        tags = []
        if A and n % 2 == 1: tags.append("kv%d" % ((n + 1) // 2))
        if not A and n % 2 == 0: tags.append("kv%d" % ((n + 2) // 2))
        if n == (3 if A else 2): tags.append("hst")
        if n == 10: tags.append("wd0")
        if n == 8 and A:
            a.e("s_cmp_lg_u32 s%d, 0" % sW)
            a.e("s_cbranch_scc1 L_hf_done")
            a.e("s_mov_b32 s%d, 0x4000" % sB)
            a.e("s_waitcnt vmcnt(2)")
            a.lab("L_hf_chk")
            a.e("v_cmp_ne_u32 vcc, 1, %s" % v(vPOLL))
            a.e("s_cbranch_vccz L_hf_done")
            a.e("s_sleep 2")
            a.e("buffer_load_dword %s, %s, %s, 0 offen sc1" % (v(vPOLL), v(vFLA), srd(SWS)))
            a.e("s_sub_u32 s%d, s%d, 1" % (sB, sB))
            a.e("s_cmp_lg_u32 s%d, 0" % sB)
            a.e("s_waitcnt vmcnt(0)")
            a.e("s_cbranch_scc1 L_hf_chk")
            a.lab("L_hf_done")
        a.waitvm(tags)
        if n == 3 and not A:
            a.e("s_cmp_ge_u32 s%d, 14" % sM)
            a.e("s_cbranch_scc1 L_nohf")
            a.e("s_cmp_lg_u32 s%d, 4" % sW)
            a.e("s_cbranch_scc1 L_nohf")
            a.e("s_lshl_b32 s%d, s%d, 4" % (sA, sG))
            a.e("s_add_u32 s%d, s%d, s%d" % (sA, sA, sM))
            a.e("s_lshl_b32 s%d, s%d, 7" % (sA, sA))
            a.e("s_add_u32 s%d, s%d, 0x%x" % (sA, sA, WS_HFLAG))
            a.e("s_mov_b64 exec, 1")
            a.e("buffer_store_dword %s, off, %s, s%d sc1" % (v(vONE), srd(SWS), sA))
            a.e("s_mov_b64 exec, -1")
            a.lab("L_nohf")
        for r in kv_reads((n % 8) * 4096): a.e(r)
        if n == 7 and A:
            a.e("s_cmp_lg_u32 s%d, 0" % sW)
            a.e("s_cbranch_scc1 L_hf_nol")
            a.e("buffer_load_dword %s, %s, %s, 0 offen sc1" % (v(vPOLL), v(vFLA), srd(SWS)))
            a.lab("L_hf_nol")
        if n == 0:
            kvdma(2); kvdma(3)
            a.e("s_mov_b32 s%d, s%d" % (sC, sKQ))
            a.e("s_mul_i32 s%d, s%d, %d" % (sWDOFF, sC, 448 * 1024))
            a.e("s_and_b32 s%d, s%d, 1" % (sB, sW))
            a.e("s_lshl_b32 s%d, s%d, 14" % (sA, sB))
            a.e("s_add_u32 s%d, s%d, s%d" % (sWDOFF, sWDOFF, sA))
            a.e("s_lshl_b32 s%d, s%d, 1" % (sA, sT))
            a.e("s_add_u32 s%d, s%d, s%d" % (sA, sA, sB))
            a.e("s_mul_i32 s%d, s%d, 112" % (sA, sA))
            a.e("s_mul_i32 s%d, s%d, 28" % (sB, sC))
            a.e("s_add_u32 s%d, s%d, s%d" % (sA, sA, sB))
            a.e("s_lshl_b32 s%d, s%d, 10" % (sA, sA))
            a.e("s_add_u32 s%d, s%d, 0x%x" % (sHOFF, sA, WS_HF))
        if (A and n % 2 == 1 and n >= 3): kvdma((n + 5) // 2)
        if (not A and n % 2 == 0 and n >= 2): kvdma((n + 6) // 2)
        if 1 <= n <= 3:
            a.e("s_lshl_b32 s%d, s%d, 17" % (sB, sKQ))
            a.e("s_and_b32 s%d, s%d, 1" % (sC, sW))
            a.e("s_lshl_b32 s%d, s%d, 13" % (sC, sC))
            a.e("s_add_u32 s%d, s%d, s%d" % (sB, sB, sC))
            for j in {1: (0, 1, 2), 2: (3, 4, 5), 3: (6, 7)}[n]: wodma(j)
        if n >= 4: wddma(n - 4)
        if n == 9:
            hload(0, vH + 12); hload(1, vH + 0); hload(24, vH + 16); hload(25, vH + 20)
        if n == 10:
            hload(26, vH + 24); hload(27, vH + 28); hload(2, vH + 4)
        if n == 0 and pre0:
            pre0()
            a.stamp(5)
        a.e("s_waitcnt lgkmcnt(0)")
        a.e("s_call_b64 %s, L_Y%s" % (sp(sRET), role))
        if n == 0:
            a.e("s_branch L_X1%s" % role)
            a.lab("L_Y%s" % role)
            if A: a.e("s_barrier")
            for x in Yseg(None): a.e(x)
            if not A: a.e("s_barrier")
            a.e("s_setpc_b64 %s" % sp(sRET))
            a.lab("L_X1%s" % role)
    astamp(a, 7)
    a.e("s_add_u32 s%d, s%d, 0x%x" % (sHOFF, sHOFF, 3 * 1024))
    a.e("s_add_u32 s%d, s%d, 0x%x" % (sWDOFF, sWDOFF, wdrow(7)))
    a.e("s_mov_b32 s%d, 0x%x" % (sM0WD, ((7 + 3) % 8) * 8192))
    u0 = 8 if A else 9
    a.e("s_add_u32 s%d, s%d, 0x%x" % (sKVOFF, sWK, u0 * 8192))
    a.e("s_mov_b32 s%d, 6" % sCNT)
    a.waitvm(["h0", "wd1", "kv6"] if A else ["h0", "wd1"])
    a.e("s_branch L_loop%s_in" % role)
    a.l.append(".p2align 6")
    a.lab("L_loop%s" % role)
    for p in range(4):
        if p == 0 and Opt.diag and Opt.kdiag == 2:
            a.e("s_cmp_lg_u32 s%d, 4" % sCNT)
            a.e("s_cbranch_scc1 L_nst%s" % role)
            astamp(a, 8)
            a.lab("L_nst%s" % role)
        a.e("s_waitcnt vmcnt(5)")
        if p == 3: a.lab("L_loop%s_in" % role)
        for r in kv_reads(p * 4096): a.e(r)
        for r in wd_reads(vWF, vWDA, p * 8192): a.e(r)
        a.e("buffer_load_dwordx4 %s, %s, %s, s%d offen sc1" % (v(vH + 4 * ((p + 3) % 4), 4), v(vL16), srd(SWS), sHOFF))
        a.e("s_add_u32 m0, s%d, s%d" % (sWK, sM0WD))
        a.e("s_add_u32 s%d, s%d, 0x400" % (sHOFF, sHOFF))
        a.e("buffer_load_dwordx4 %s, %s, s%d offen lds" % (v(vWDV), srd(SWD), sWDOFF))
        a.e("s_add_u32 s%d, s%d, 0x%x" % (sWDOFF, sWDOFF, 0x6000 if p & 1 else 0x2000))
        a.e("s_add_u32 s%d, s%d, 0x2000" % (sM0WD, sM0WD))
        a.e("s_and_b32 s%d, s%d, 0xffff" % (sM0WD, sM0WD))
        if (p % 2 == 1) == A:
            a.e("s_and_b32 s%d, s%d, 0x7fff" % (sA, sKVOFF))
            a.e("s_add_u32 m0, s%d, 0x%x" % (sA, L_KV))
            a.e("s_nop 0")
            a.e("buffer_load_dwordx4 %s, %s, s%d offen sc1 lds" % (v(vL16), srd(SKV), sKVOFF))
            a.e("s_add_u32 s%d, s%d, 0x2000" % (sKVOFF, sKVOFF))
        if p == 3:
            a.e("s_sub_u32 s%d, s%d, 1" % (sCNT, sCNT))
            a.e("s_cmp_lg_u32 s%d, 0" % sCNT)
        a.e("s_waitcnt lgkmcnt(0)")
        if A: a.e("s_barrier")
        for x in Yseg(p, toggle=(p == 3)): a.e(x)
        if not A:
            if p == 3: a.e("s_cbranch_scc0 L_tail")
            a.e("s_barrier")
    a.e(("s_cbranch_scc1 L_loop%s" if A else "s_branch L_loop%s") % role)

def transition(a, role):
    A = role == "A"
    if A:
        a.vm = list(a.vmjoin)
        a.lab("L_trA")
    else:
        a.lab("L_join")
        a.e("s_cmp_eq_u32 s%d, 0" % sHI)
        a.e("s_cbranch_scc1 L_trA")
        a.vmjoin = list(a.vm)
    def qfin():
        for i in range(4): a.e("v_cvt_pk_bf16_f32 %s, %s, %s" % (v(vQ + i), v(vAQ + 2 * i), v(vAQ + 2 * i + 1)))
        for i in range(4, 7): a.e("v_mov_b32 %s, 0" % v(vP + i))
        a.e("v_permlane16_swap_b32 %s, %s" % (v(vQ), v(vQ + 2)))
        a.e("v_permlane16_swap_b32 %s, %s" % (v(vQ + 1), v(vQ + 3)))
    pre0 = None
    if A:
        a.e("s_setprio 1")
        a.e("s_cmp_ge_u32 s%d, 14" % sM)
        a.e("s_cbranch_scc1 L_nogA0")
        a.l.append(".p2align 3")
        for ti in range(Opt.gsc): gelu_tile(a, ti, True)
        a.lab("L_nogA0")
        qfin()
        a.waitvm(["k0", "kv0", "kv1"])
        a.e("s_setprio 0")
        a.e("s_barrier")
        a.e(mfma(vS, vK0, vQ, None))
        def pre0():
            a.e("s_cmp_lt_u32 s%d, 14" % sM)
            a.e("s_cbranch_scc1 L_gA1")
            a.e("s_waitcnt vmcnt(0)")
            a.e("s_branch L_nogA1")
            a.l.append(".p2align 3")
            a.lab("L_gA1")
            for ti in range(Opt.gsc, 4): gelu_tile(a, ti)
            a.lab("L_nogA1")
            a.e("s_setprio 1")
    else:
        a.waitvm(["k0", "kv0", "kv1"])
        a.e("s_setprio 1")
        a.e("s_cmp_ge_u32 s%d, 14" % sM)
        a.l.append(".p2align 3")
        a.e("s_barrier")
        a.e("s_cbranch_scc1 L_nogB")
        for ti in range(4): gelu_tile(a, ti)
        a.lab("L_nogB")
        qfin()
        a.e("s_setprio 0")
        a.e("s_nop 0")
        a.e(mfma(vS, vK0, vQ, None))
        a.stamp(5)
    attention(a, role, pre0)
    if A: a.e("s_branch L_tail")

def tail(a):
    a.lab("L_tail")
    a.e("v_cvt_pk_bf16_f32 %s, %s, %s" % (v(vP + 7), v(vE + 2), v(vE + 3)))
    a.stamp(6)
    astamp(a, 9)
    if Opt.diag and Opt.kdiag == 2: a.e("s_waitcnt lgkmcnt(0)")
    a.e("s_setprio 0")
    a.e("s_mov_b32 s%d, 0x%x" % (sC, f2u(2.0 ** -16)))
    a.e(mfma(vO, vV1L, vP + 4, vO))
    a.e("s_mov_b32 s%d, 0x%x" % (sD, f2u(2.0 ** 100)))
    a.e("s_nop 10")
    t = vFR
    a.e("v_rcp_f32 %s, %s" % (v(t + 2), v(vO + 8)))
    a.e("v_pk_mul_f32 %s, %s, 0 op_sel_hi:[1,0]" % (v(t, 2), v(vO, 2)))
    for i in range(1, 4): a.e("v_pk_fma_f32 %s, %s, 0, %s op_sel_hi:[1,0,1]" % (v(t, 2), v(vO + 2 * i, 2), v(t, 2)))
    a.e("v_add_f32 %s, %s, %s" % (v(t), v(t), v(t + 1)))
    a.e("v_add_f32 %s, %s, %s" % (v(t), v(t), v(vO + 8)))
    a.e("v_cmp_nle_f32 vcc, s%d, %s" % (sC, v(t)))
    a.e("v_cmp_nge_f32 %s, s%d, %s" % (sp(sTMPP), sD, v(t)))
    a.e("s_or_b64 vcc, vcc, %s" % sp(sTMPP))
    a.e("s_branch L_fb" if Opt.force_fb else "s_cbranch_scc1 L_fb")
    a.lab("L_fbret")
    a.e("v_mul_f32 %s, %s, %s" % (v(t + 2), v(t + 2), v(vGP)))
    for i in range(4): a.e("v_pk_mul_f32 %s, %s, %s op_sel_hi:[1,0]" % (v(vO + 2 * i, 2), v(vO + 2 * i, 2), v(t + 2, 2)))
    for i in range(4): a.e("v_cvt_pk_bf16_f32 %s, %s, %s" % (v(vP + i), v(vO + 2 * i), v(vO + 2 * i + 1)))
    for i in range(4): a.e("v_min_u32 %s, -2, %s" % (v(vP + i), v(vP + i)))
    a.e("buffer_store_dwordx4 %s, %s, %s, s%d offen sc1" % (v(vP, 4), v(vL16), srd(SWS), sOST))
    HORD = [0, 2, 4, 6, 1, 3, 5, 7] if Opt.hord else list(range(8))
    def oload(j):
        return "buffer_load_dwordx4 %s, %s, %s, s%d offen offset:%d sc1" % (
            v(vS + 4 * j, 4), v(vL16), srd(SWS), sOLD if HORD[j] < 4 else sA, (HORD[j] % 4) * 1024)
    a.oload = oload
    aw = vXA
    ar = vWA
    def addrs(a):
        a.e("v_sub_f32 %s, 1.0, %s" % (v(vGC), v(vGC)))
        a.e("v_add_u32 %s, 0x%x, %s" % (v(vQA), L_WO, v(vWDA)))
        a.e("v_and_b32 v2, 31, v0")
        a.e("v_lshrrev_b32 v3, 5, v0")
        a.e("v_and_b32 v4, 7, v0")
        a.e("v_xor_b32 v3, v3, v4")
        a.e("v_lshlrev_b32 v3, 4, v3")
        a.e("v_lshl_add_u32 v3, v2, 8, v3")
        a.e("s_and_b32 s%d, s%d, 1" % (sB, sW))
        a.e("s_lshl_b32 s%d, s%d, 15" % (sB, sB))
        a.e("s_lshr_b32 s%d, s%d, 1" % (sC, sW))
        a.e("s_lshl_b32 s%d, s%d, 13" % (sD, sC))
        a.e("s_add_u32 s%d, s%d, s%d" % (sD, sD, sB))
        a.e("v_add_u32 %s, s%d, v3" % (v(aw), sD))
        for j in range(1, 4): a.e("v_xor_b32 %s, %d, %s" % (v(aw + j), 32 * j, v(aw)))
        a.e("v_lshrrev_b32 v2, 3, v0")
        a.e("v_lshlrev_b32 v3, 1, v4")
        a.e("v_xor_b32 v3, v3, v2")
        a.e("v_lshlrev_b32 v3, 4, v3")
        a.e("v_lshl_add_u32 v3, v2, 8, v3")
        a.e("s_lshl_b32 s%d, s%d, 11" % (sD, sC))
        a.e("s_add_u32 s%d, s%d, s%d" % (sD, sD, sB))
        a.e("v_add_u32 %s, s%d, v3" % (v(ar), sD))
        a.e("v_xor_b32 %s, 16, %s" % (v(ar + 1), v(ar)))
        a.e("v_lshlrev_b32 v4, 4, v4")
        a.e("v_lshl_add_u32 %s, v2, 10, v4" % v(ar + 2))
        a.e("s_lshl_b32 s%d, s%d, 13" % (sC, sC))
        a.e("s_add_u32 s%d, s%d, s%d" % (sB, sB, sC))
        a.e("s_lshl_b32 s%d, s%d, 16" % (sC, sT))
        a.e("s_add_u32 s%d, s%d, s%d" % (sB, sB, sC))
        a.e("s_lshl_b32 s%d, s%d, 7" % (sC, sCB))
        a.e("s_add_u32 s%d, s%d, s%d" % (sCNT, sB, sC))
        a.e("s_mov_b32 s%d, 0x2000" % sB)
    a.e("s_add_u32 s%d, s%d, 0x1000" % (sA, sOLD))
    a.e("s_cmp_eq_u32 s%d, 0" % sHI)
    a.e("s_cbranch_scc1 L_tl1")
    a.e("s_setprio 1")
    a.e("s_waitcnt vmcnt(1)")
    a.lab("L_tl2")
    a.e("s_barrier")
    ol = Asm(); a.ool2 = ol.l
    ol.lab("L_tl1")
    for j in range(8): ol.e(oload(j))
    ol.e("s_waitcnt vmcnt(9)")
    ol.e("s_branch L_tl2")
    hreg = {21: vH + 0, 22: vH + 4, 23: vH + 8, 24: vH + 16, 25: vH + 20, 26: vH + 24, 27: vH + 28}
    wf = [vFR, vFR + 8, vFR + 16]
    for i in range(2):
        for r in wd_reads(wf[i], vWDA, i * 8192): a.e(r)
    fl = collect(addrs)
    put(a, fl[:8]); fl = fl[8:]
    for i in range(7):
        if i + 2 < 7:
            for r in wd_reads(wf[(i + 2) % 3], vWDA, (i + 2) * 8192): a.e(r)
        else:
            for r in wd_reads(wf[(i + 2) % 3], vQA, HORD[i - 5] * 8192): a.e(r)
        a.e("s_waitcnt lgkmcnt(8)")
        for c in range(2):
            a.e(mfma(vD + 16 * c, wf[i % 3] + 4 * c, hreg[21 + i], vD + 16 * c))
            put(a, fl[:2]); fl = fl[2:]
    put(a, fl)
    a.e("s_cmp_lg_u32 s%d, 0" % sHI)
    a.e("s_cbranch_scc1 L_tl3")
    a.e("s_nop 8")
    for i in range(32): a.e("v_mul_f32 %s, %s, %s" % (v(vD + i), v(vGC), v(vD + i)))
    if Opt.tbar == 0: a.e("s_barrier")
    a.lab("L_tl4")
    ol.lab("L_tl3")
    ol.e("s_setprio 0")
    for j in range(8):
        ol.e(oload(j))
        if j == 0: ol.e("s_nop 6")
        for i in range(4 * j, 4 * j + 4): ol.e("v_mul_f32 %s, %s, %s" % (v(vD + i), v(vGC), v(vD + i)))
    ol.e("s_barrier")
    ol.e("s_branch L_tl4")
    a.stamp(7)
    for j in range(8):
        o = vS + 4 * j
        if j + 2 < 8:
            for r in wd_reads(wf[(j + 3) % 3], vQA, HORD[j + 2] * 8192): a.e(r)
        if j == Opt.tbar and j:
            a.e("s_cmp_lg_u32 s%d, 0" % sHI)
            a.e("s_cbranch_scc1 L_ochk%d" % j)
            a.e("s_barrier")
        a.lab("L_ochk%d" % j)
        a.e("s_waitcnt vmcnt(%d)" % (7 - j))
        a.e("v_max3_u32 v2, %s, %s, %s" % (v(o), v(o + 1), v(o + 2)))
        a.e("v_max_u32 v2, v2, %s" % v(o + 3))
        a.e("v_cmp_eq_u32 vcc, -1, v2")
        a.e("s_cbranch_vccnz L_ore%d" % j)
        a.lab("L_ook%d" % j)
        a.e("s_waitcnt lgkmcnt(%d)" % (4 * min(2, 7 - j)))
        for c in range(2): a.e(mfma(vD + 16 * c, wf[(j + 1) % 3] + 4 * c, o, vD + 16 * c))
    a.stamp(8)
    a.e("s_nop 10")
    for c in range(2):
        for j in range(4):
            a.e("ds_write_b128 %s, %s offset:%d" % (v(aw + j), v(vD + 16 * c + 4 * j, 4), 128 * c))
    a.e("s_waitcnt lgkmcnt(0)")
    a.e("s_barrier")
    for p in range(4):
        for h in range(2): a.e(rd128(vS + 8 * p + 4 * h, ar + h, p * 8192))
    for p in range(1, 4):
        a.e("s_waitcnt lgkmcnt(%d)" % (6 - 2 * p))
        for i in range(4): a.e("v_pk_add_f32 %s, %s, %s" % (v(vS + 2 * i, 2), v(vS + 2 * i, 2), v(vS + 8 * p + 2 * i, 2)))
    for i in range(4): a.e("v_cvt_pk_bf16_f32 %s, %s, %s" % (v(vP + i), v(vS + 2 * i), v(vS + 2 * i + 1)))
    a.e("buffer_store_dwordx4 %s, %s, %s, s%d offen %s" % (v(vP, 4), v(ar + 2), srd(SOUT), sCNT, Opt.out_pol))
    if Opt.probe >= 0:
        a.e("s_waitcnt vmcnt(0)")
        a.stamp(9)
        a.e("s_cmp_ge_u32 s%d, 14" % sM)
        a.e("s_cbranch_scc%d L_end" % (0 if Opt.probe_l else 1))
        if Opt.probe_x >= 0:
            a.e("s_and_b32 s0, s2, 7")
            a.e("s_cmp_lg_u32 s0, %d" % Opt.probe_x)
            a.e("s_cbranch_scc1 L_end")
        a.lab("L_probe")
        a.e("s_memrealtime s[0:1]")
        a.e("s_waitcnt lgkmcnt(0)")
        a.e("s_sub_u32 s0, s0, s%d" % (sSTAMP + 4))
        a.e("s_cmp_lt_u32 s0, 4000")
        a.e("s_cbranch_scc1 L_probe")
    if Opt.pin == 9:
        a.e("s_waitcnt vmcnt(0)")
        a.stamp(9)
    if Opt.diag:
        a.e("s_waitcnt vmcnt(0)")
        a.stamp(9)
        a.e("s_mov_b32 s%d, s%d" % (sSTAMP + 3, sSTAMP))
        a.e("s_mov_b32 s%d, s%d" % (sSTAMP, sB))
        a.e("s_getreg_b32 s%d, hwreg(HW_REG_XCC_ID)" % (sSTAMP + 1))
        for i in range(20): a.e("v_mov_b32 %s, s%d" % (v(vS + i), sSTAMP + i))
        a.e("s_lshl_b32 s%d, s2, 3" % sA)
        a.e("s_add_u32 s%d, s%d, s%d" % (sA, sA, sW))
        a.e("s_lshl_b32 s%d, s%d, 7" % (sA, sA))
        a.e("s_add_u32 s%d, s%d, 0x%x" % (sA, sA, WS_STAMP))
        a.e("s_mov_b64 exec, 1")
        for i in range(5): a.e("buffer_store_dwordx4 %s, off, %s, s%d offset:%d" % (v(vS + 4 * i, 4), srd(SWS), sA, 16 * i))
    a.lab("L_end")
    a.e("s_endpgm")
    a.l += a.ool2
    for j in range(8):
        a.lab("L_ore%d" % j)
        a.e("s_sub_u32 s%d, s%d, 1" % (sB, sB))
        a.e("s_cbranch_scc1 L_ogive%d" % j)
        a.e("s_waitcnt vmcnt(0)")
        for i in range(j, 8): a.e(a.oload(i))
        a.e("s_branch L_ochk%d" % j)
        a.lab("L_ogive%d" % j)
        a.e("s_mov_b32 s%d, 0" % sB)
        a.e("s_branch L_ook%d" % j)

def fallback(a):
    a.lab("L_fb")
    m = vFR + 4
    a.e("v_mov_b32 %s, 0xff800000" % v(m))
    a.e("s_mov_b32 s%d, 0" % sA)
    a.lab("L_fb1")
    a.e("buffer_load_dwordx4 %s, %s, %s, s%d offen sc1" % (v(vKF, 4), v(vL16), srd(SKV), sA))
    a.e("s_waitcnt vmcnt(0)")
    a.e(mfma(vS, vKF, vQ, None))
    a.e("s_add_u32 s%d, s%d, 2048" % (sA, sA))
    a.e("s_nop 11")
    for i in range(8): a.e("v_max3_f32 %s, %s, %s, %s" % (v(m), v(m), v(vS + 2 * i), v(vS + 2 * i + 1)))
    a.e("s_cmp_lt_u32 s%d, 0x20000" % sA)
    a.e("s_cbranch_scc1 L_fb1")
    a.e("v_mov_b32 %s, %s" % (v(m + 1), v(m)))
    a.e("s_nop 1")
    a.e("v_permlane32_swap_b32 %s, %s" % (v(m), v(m + 1)))
    a.e("s_nop 1")
    a.e("v_max_f32 %s, %s, %s" % (v(m), v(m), v(m + 1)))
    for i in range(16): a.e("v_sub_f32 %s, 0, %s" % (v(vS + 16 + i), v(m)))
    for i in range(16): a.e("v_mov_b32 %s, 0" % v(vO + i))
    a.e("s_mov_b32 s%d, 0" % sA)
    a.lab("L_fb2")
    a.e("s_add_u32 s%d, s%d, 0x%x" % (sB, sA, 63 * 2048))
    a.e("s_and_b32 s%d, s%d, 0x1ffff" % (sB, sB))
    a.e("buffer_load_dwordx4 %s, %s, %s, s%d offen sc1" % (v(vKF, 4), v(vL16), srd(SKV), sB))
    a.e("s_add_u32 s%d, s%d, 2048" % (sB, sA))
    a.e("s_and_b32 s%d, s%d, 0x1ffff" % (sB, sB))
    a.e("s_mov_b64 exec, %s" % sp(sVM))
    a.e("buffer_load_dwordx4 %s, %s, %s, s%d offen offset:1024 sc1" % (v(vV, 4), v(vL16), srd(SKV), sA))
    a.e("buffer_load_dwordx4 %s, %s, %s, s%d offen offset:1280 sc1" % (v(vV + 4, 4), v(vL16), srd(SKV), sB))
    a.e("s_mov_b64 exec, -1")
    a.e("s_waitcnt vmcnt(0)")
    a.e(mfma(vS, vKF, vQ, vS + 16))
    a.e("s_add_u32 s%d, s%d, 2048" % (sA, sA))
    a.e("s_nop 11")
    for i in range(16): a.e("v_exp_f32 %s, %s" % (v(vS + i), v(vS + i)))
    for i in range(8): a.e("v_cvt_pk_bf16_f32 %s, %s, %s" % (v(vP + i), v(vS + 2 * i), v(vS + 2 * i + 1)))
    a.e("s_nop 1")
    a.e(mfma(vO, vV, vP, vO))
    a.e(mfma(vO, vV + 4, vP + 4, vO))
    a.e("s_cmp_lt_u32 s%d, 0x20000" % sA)
    a.e("s_cbranch_scc1 L_fb2")
    a.e("s_nop 11")
    a.e("v_rcp_f32 %s, %s" % (v(vFR + 2), v(vO + 8)))
    a.e("s_branch L_fbret")

def build():
    a = Asm()
    prologue(a)
    phase1_F(a)
    transition(a, "B")
    tail(a)
    a.l += a.ool
    transition(a, "A")
    phase1_L(a)
    fallback(a)
    a.lab("L_codeend")
    il = a.l.index("L_light:")
    for i, x in enumerate(a.l):
        if x.endswith(" lds") and "sc1" not in x and " nt" not in x:
            if (Opt.ntx & 4 and (srd(SWD) in x or srd(SWO) in x)) or (Opt.ntx & 8 and i > il):
                a.l[i] = x[:-4] + " nt lds"
    head = open("cdna_kernels/%s.s.ref" % NAME).read().split("\n")
    hdr = [l for l in head if l.startswith(";") and "@launch" not in l and "Override" not in l and "grid=" not in l]
    out = hdr + ["; @launch grid=(256,1,1) block=(512,1,1) lds=%d" % LDS_BYTES,
                 '.amdgcn_target "amdgcn-amd-amdhsa--gfx950"', ".text", ".globl %s_kernel" % NAME, ".p2align 8",
                 ".type %s_kernel,@function" % NAME,
                 ".set CODE_PF_MAX, L_codeend - L_nopf - 4" if Opt.code_pf else "",
                 "%s_kernel:" % NAME]
    out += ["; mapmode %d" % Opt.mapmode, "; xrot %d" % Opt.xrot]
    out += a.l
    out += ['.section .rodata,"a"', ".p2align 6", ".amdhsa_kernel %s_kernel" % NAME,
            "  .amdhsa_next_free_vgpr %d" % NV, "  .amdhsa_next_free_sgpr 102", "  .amdhsa_accum_offset 256",
            "  .amdhsa_group_segment_fixed_size 0", "  .amdhsa_kernarg_size 104", "  .amdhsa_user_sgpr_count 2",
            "  .amdhsa_user_sgpr_kernarg_segment_ptr 1", "  .amdhsa_system_sgpr_workgroup_id_x 1", ".end_amdhsa_kernel", ""]
    return "\n".join(out)

if __name__ == "__main__":
    path = sys.argv[1]
    for kv in sys.argv[2:]:
        k, val = kv.split("=")
        cur = getattr(Opt, k)
        setattr(Opt, k, val if isinstance(cur, str) else type(cur)(int(val)))
    open(path, "w").write(build())
```

```python
import sys, struct, math

NAME = "gated_mix__grouped_kv_mqa__geglu_ffn__prompt"

class Opt:
    diag = 0
    mapmode = 1
    force_fb = False
    out_pol = ""
    code_pf = True
    xrot = 0
    pregap = 0
    olate = 1
    hrot = 0
    tbar = 0
    hord = 1
    cmap = 1
    kqx = 0
    oearly = 8
    conc = 1
    ghx = 1
    qa = "088888"
    qb = "577777"
    npre = 8
    stagger = 1
    rper = 2
    dma1 = 17
    kprio = 0
    dma0 = 8
    npd = 4
    kdiag = 0
    fillpre = 0
    fillper = 4
    gsc = 2
    sched = 2
    xmask = 1
    ntx = 0
    touch = 2
    rotg = 0
    rotm = 0
    startbar = 1
    pvz = 1
    pin = -1
    pin_ns = 60000
    probe = -1
    probe_x = -1
    probe_mul = 10
    probe_l = 0

def f2u(x): return struct.unpack("<I", struct.pack("<f", x))[0]

WS_KV = 0
WS_G = 128 * 1024
WS_HFLAG = 192 * 1024
WS_OF = 1 << 20
WS_HF = 4 << 20
WS_STAMP = 12 << 20
WS_SIZE = 16 << 20
K1 = 1024
L_G, L_U, L_X, L_WQ = 0, 48 * K1, 96 * K1, 144 * K1
L_QX = 32 * K1
L_WD, L_WO, L_KV = 0, 64 * K1, 128 * K1
LL_X, LL_W, LL_GATE, LL_WQ = 0, 128 * K1, 144 * K1, 128 * K1
LDS_BYTES = 160 * K1

SX, SWG, SWU, SWQ, SWS, SWD, SWO, SOUT, SDBG, SWKV, SGATE, SKV = 4, 8, 12, 16, 20, 24, 28, 32, 36, 40, 44, 64
SWV = 72
sTMPP = 48
sW, sHI, sLO, sG, sM, sT, sCB = 50, 51, 52, 53, 54, 55, 56
sWK = 57
sWH = 58
sK64 = 59
sVM = 60
sRET = 62
sA, sB, sC, sD = 68, 69, 70, 71
sOFFW, sOFFQ, sCH, sXP = 72, 73, 74, 75
sHOFF, sWDOFF, sKVOFF, sM0WD, sM0KV, sCNT = 72, 73, 74, 75, 76, 77
sOST, sOLD, sHST = 78, 79, 80
sHST2 = 3
sRX, sRW, sM0B = 40, 41, 42
sKQ = 76
sHP = 81
sSTAMP = 82

def srd(b): return "s[%d:%d]" % (b, b + 3)
def sp(b): return "s[%d:%d]" % (b, b + 1)
def v(b, n=1): return "v%d" % b if n == 1 else "v[%d:%d]" % (b, b + n - 1)

vL16 = 1
vT0, vT1, vT2, vT3 = 2, 3, 4, 5
vGP, vGC = 6, 7
vKVA = 8
vWDA = 9
vWDV = 10
vONE = 11
vZERO = 12
vFLA = 13
vPOLL = 14
vGA = 15
vQ = 16
vK0 = 20
vV1L = 24
vE = 28
vP = 32
vV = 40
vO = 56
vD = 72
vACC = 104
vS = 104
vH = 136
vAQ = vP
vF1 = 168
vKF = 168
vWF = 176
vFR = 184
vLX = 224
vXA = 240
vWA = 244
vQA = 248
vDX, vDG, vDQ = 249, 250, 251
vC0 = 252
vHA = 254
NV = 256

class Asm:
    def __init__(self):
        self.l = []
        self.vm = []
        self.nstamp = 0
    def e(self, s):
        for x in s.split("\n"):
            x = x.strip()
            if x: self.l.append("    " + x)
    def lab(self, s): self.l.append(s + ":")
    def vmop(self, s, tag):
        self.e(s); self.vm.append(tag)
    def vmn(self, tags):
        if isinstance(tags, str): tags = [tags]
        last = -1
        for i, t in enumerate(self.vm):
            if t in tags: last = i
        return None if last < 0 else len(self.vm) - 1 - last
    def waitvm(self, tags, lgkm=False):
        n = self.vmn(tags)
        if n is None:
            if lgkm: self.e("s_waitcnt lgkmcnt(0)")
            return
        assert n < 64
        self.e("s_waitcnt vmcnt(%d)%s" % (n, " lgkmcnt(0)" if lgkm else ""))
        self.vm = self.vm[len(self.vm) - n:] if n else []
    def wait0(self, lgkm=False):
        self.e("s_waitcnt vmcnt(0)%s" % (" lgkmcnt(0)" if lgkm else "")); self.vm = []
    def stamp(self, i, real=False):
        if Opt.probe == i:
            self.e("s_waitcnt lgkmcnt(0)")
            self.e("s_memrealtime %s" % sp(sSTAMP + 4))
            self.e("s_waitcnt lgkmcnt(0)")
        if Opt.pin == i:
            self.nstamp += 1
            self.e("s_waitcnt lgkmcnt(0)")
            self.e("s_cselect_b32 s%d, 1, 0" % (sSTAMP + 5))
            self.lab("L_pin%d" % self.nstamp)
            self.e("s_memrealtime s[0:1]")
            self.e("s_waitcnt lgkmcnt(0)")
            self.e("s_sub_u32 s0, s0, s%d" % sSTAMP)
            self.e("s_cmp_lt_u32 s0, %d" % (Opt.pin_ns // 10))
            self.e("s_cbranch_scc1 L_pin%d" % self.nstamp)
            self.e("s_cmp_lg_u32 s%d, 0" % (sSTAMP + 5))
        if Opt.diag and not Opt.kdiag and (Opt.diag == 1 or i == 9):
            self.e("s_waitcnt lgkmcnt(0)")
            self.e("s_memtime %s" % sp(sSTAMP + 2 * i))
            self.e("s_memrealtime s[0:1]")
            self.e("s_waitcnt lgkmcnt(0)")
            self.e("s_mov_b32 s%d, s0" % (sSTAMP + 2 * i + 1))

def astamp(a, i):
    if Opt.diag and Opt.kdiag == 2: a.e("s_memtime %s" % sp(sSTAMP + 2 * i))

def kstamp(a, i):
    if Opt.probe == 18 + i: a.e("s_memrealtime %s" % sp(sSTAMP + 4))
    if Opt.diag and Opt.kdiag == 1: a.e("s_memtime %s" % sp(sSTAMP + 2 * i))

def mfma(d, a, b, c):
    return "v_mfma_f32_32x32x16_bf16 %s, %s, %s, %s" % (v(d, 16), v(a, 4), v(b, 4), "0" if c is None else v(c, 16))
def mfma16(d, a, b, c):
    return "v_mfma_f32_16x16x32_bf16 %s, %s, %s, %s" % (v(d, 4), v(a, 4), v(b, 4), "0" if c is None else v(c, 4))
def rd128(d, a, off):
    assert 0 <= off < 65536
    return "ds_read_b128 %s, %s offset:%d" % (v(d, 4), v(a), off)
def rdtr(d, a, off):
    assert 0 <= off < 65536
    return "ds_read_b64_tr_b16 %s, %s offset:%d" % (v(d, 2), v(a), off)

def interleave(mf, fill, per=2):
    out = []
    fill = list(fill)
    for i, m in enumerate(mf):
        out.append(m)
        if i < len(mf) - 1:
            out += fill[:per]; fill = fill[per:]
    return out + fill

def srd_words(a, regs):
    sizes = {SX: 2048 * 1024, SWG: 512 * 3584, SWU: 512 * 3584, SWQ: 512 * 1024, SWS: WS_SIZE, SWKV: 16384, SWV: 16384,
             SGATE: 1024, SWD: 1792 * 1024, SWO: 512 * 1024, SOUT: 2048 * 1024, SDBG: 256, SKV: 128 * 1024}
    for reg in regs:
        a.e("s_mov_b32 s%d, 0x%x" % (reg + 2, sizes[reg]))
        a.e("s_mov_b32 s%d, 0x20000" % (reg + 3))

def prologue(a):
    a.e("s_cmp_ge_u32 s2, 256")
    a.e("s_cbranch_scc1 L_end")
    for reg, off in ((SX, 0), (SWG, 48), (SWU, 56), (SWQ, 8), (SWS, 96), (SWKV, 16), (sTMPP, 24), (SGATE, 72),
                     (SWD, 64), (SWO, 32), (SOUT, 80), (SDBG, 88), (SKV, 96)):
        a.e("s_load_dwordx2 %s, s[0:1], %d" % (sp(reg), off))
    if Opt.probe >= 0: a.e("s_memrealtime %s" % sp(sSTAMP + 4))
    if Opt.diag or Opt.pin >= 0 or Opt.probe >= 0:
        a.e("s_memrealtime %s" % sp(sSTAMP))
        a.e("s_memtime %s" % sp(sSTAMP + 2))
    a.e("v_lshrrev_b32 v2, 6, v0")
    a.e("v_and_b32 v0, 63, v0")
    a.e("v_readfirstlane_b32 s%d, v2" % sW)
    a.e("v_lshlrev_b32 %s, 4, v0" % v(vL16))
    srd_words(a, [SX, SWQ])
    a.e("s_and_b32 s%d, s2, 7" % sA)
    a.e("s_lshr_b32 s%d, s2, 3" % sB)
    if Opt.cmap:
        a.e("s_andn2_b32 s%d, 1, s%d" % (sT, sA))
        a.e("s_lshl_b32 s%d, s%d, 2" % (sT, sT))
        a.e("s_lshr_b32 s%d, s%d, 1" % (sD, sA))
        a.e("s_add_u32 s%d, s%d, s%d" % (sT, sT, sD))
        a.e("s_lshl_b32 s%d, s%d, 2" % (sT, sT))
    else:
        a.e("s_lshl_b32 s%d, s%d, 2" % (sT, sA))
    a.e("s_and_b32 s%d, s%d, 3" % (sD, sB))
    a.e("s_add_u32 s%d, s%d, s%d" % (sT, sT, sD))
    a.e("s_lshr_b32 s%d, s%d, 2" % (sCB, sB))
    if Opt.xrot:
        a.e("s_add_u32 s%d, s%d, %d" % (sA, sA, Opt.xrot))
        a.e("s_and_b32 s%d, s%d, 7" % (sA, sA))
    if Opt.mapmode == 0:
        a.e("s_lshl_b32 s%d, s%d, 1" % (sG, sA))
        a.e("s_and_b32 s%d, s%d, 1" % (sC, sB))
        a.e("s_add_u32 s%d, s%d, s%d" % (sG, sG, sC))
        a.e("s_lshr_b32 s%d, s%d, 1" % (sM, sB))
        a.e("s_mov_b32 s%d, s%d" % (sHP, sM))
    elif Opt.mapmode in (1, 3):
        a.e("s_and_b32 s%d, s%d, 1" % (sG, sA))
        a.e("s_lshl_b32 s%d, s%d, 3" % (sG, sG))
        a.e("s_and_b32 s%d, s%d, 7" % (sC, sB))
        a.e("s_add_u32 s%d, s%d, s%d" % (sG, sG, sC))
        a.e("s_lshr_b32 s%d, s%d, 1" % (sA, sA))
        a.e("s_lshl_b32 s%d, s%d, 2" % (sHP, sA))
        a.e("s_lshr_b32 s%d, s%d, 3" % (sC, sB))
        a.e("s_add_u32 s%d, s%d, s%d" % (sHP, sHP, sC))
        if Opt.mapmode == 1:
            a.e("s_mov_b32 s%d, s%d" % (sM, sHP))
        else:
            a.e("s_sub_u32 s%d, s%d, s%d" % (sM, sHP, sA))
            a.e("s_lshr_b32 s%d, s%d, 1" % (sB, sB))
            a.e("s_and_b32 s%d, s%d, 2" % (sB, sB))
            a.e("s_add_u32 s%d, s%d, s%d" % (sB, sB, sA))
            a.e("s_and_b32 s%d, s%d, 3" % (sB, sB))
            a.e("s_add_u32 s%d, s%d, 12" % (sB, sB))
            a.e("s_cmp_eq_u32 s%d, 3" % sC)
            a.e("s_cselect_b32 s%d, s%d, s%d" % (sM, sB, sM))
    else:
        a.e("s_and_b32 s%d, s%d, 3" % (sG, sA))
        a.e("s_lshl_b32 s%d, s%d, 2" % (sG, sG))
        a.e("s_add_u32 s%d, s%d, s%d" % (sG, sG, sD))
        a.e("s_lshr_b32 s%d, s%d, 2" % (sM, sA))
        a.e("s_lshl_b32 s%d, s%d, 3" % (sM, sM))
        a.e("s_add_u32 s%d, s%d, s%d" % (sM, sM, sCB))
        a.e("s_mov_b32 s%d, s%d" % (sHP, sM))
    a.e("s_lshl_b32 s%d, s%d, 10" % (sWK, sW))
    a.e("s_mov_b32 s%d, 0x10000" % sK64)
    if Opt.code_pf:
        a.e("s_cmp_lg_u32 s%d, s%d" % (sD, sW))
        a.e("s_cbranch_scc1 L_nopf")
        a.e("s_getpc_b64 %s" % sp(sRET))
        a.e("s_lshl_b32 s%d, s%d, 13" % (sD, sW))
        a.e("v_lshl_add_u32 v2, v0, 7, s%d" % sD)
        a.e("v_min_u32 v2, CODE_PF_MAX, v2")
        a.e("global_load_dword %s, v2, %s" % (v(vPOLL), sp(sRET)))
        a.lab("L_nopf")
    a.e("s_lshl_b32 s%d, s%d, 2" % (sA, sW))
    a.e("v_lshrrev_b32 v2, 4, v0")
    a.e("v_add_u32 v3, s%d, v2" % sA)
    a.e("v_xor_b32 v3, v3, v0")
    a.e("v_and_b32 v3, 7, v3")
    a.e("v_lshlrev_b32 v3, 4, v3")
    a.e("v_lshrrev_b32 v4, 3, v0")
    a.e("v_lshl_add_u32 v3, v4, 10, v3")
    a.e("s_lshl_b32 s%d, s%d, 17" % (sA, sG))
    a.e("s_lshl_b32 s%d, s%d, 13" % (sB, sW))
    a.e("s_add_u32 s%d, s%d, s%d" % (sA, sA, sB))
    a.e("v_add_u32 %s, s%d, v3" % (v(vDX), sA))
    a.e("s_cmp_ge_u32 s%d, 14" % sM)
    a.e("s_cbranch_scc1 L_light")

def setup_rd(a):
    a.e("s_lshr_b32 s%d, s%d, 2" % (sHI, sW))
    a.e("s_and_b32 s%d, s%d, 3" % (sLO, sW))
    a.e("v_and_b32 v2, 15, v0")
    a.e("v_lshrrev_b32 v3, 4, v0")
    a.e("v_bfe_u32 v4, v0, 1, 3")
    a.e("v_xor_b32 v4, v4, v3")
    a.e("v_lshlrev_b32 v4, 4, v4")
    a.e("v_lshl_add_u32 %s, v2, 7, v4" % v(vXA))
    a.e("v_bfe_u32 v2, v0, 2, 2")
    a.e("v_and_b32 v4, 3, v0")
    a.e("v_lshl_add_u32 %s, v3, 3, v2" % v(vQA))
    a.e("v_lshlrev_b32 %s, 6, %s" % (v(vQA), v(vQA)))
    a.e("v_xor_b32 v5, s%d, v3" % sHI)
    a.e("v_and_b32 v5, 1, v5")
    a.e("v_lshl_add_u32 %s, v5, 5, %s" % (v(vQA), v(vQA)))
    a.e("v_lshl_add_u32 %s, v4, 3, %s" % (v(vQA), v(vQA)))

def setup_oclr(a):
    srd_words(a, [SWS, SKV, SDBG])
    a.e("s_mov_b32 s%d, 0xffff" % sVM)
    a.e("s_mov_b32 s%d, 0xffff" % (sVM + 1))
    a.e("s_lshl_b32 s%d, s%d, 2" % (sA, sG))
    a.e("s_add_u32 s%d, s%d, s%d" % (sA, sA, sLO))
    a.e("s_lshl_b32 s%d, s%d, 5" % (sB, sA))
    a.e("s_lshl_b32 s%d, s%d, 1" % (sC, sHP))
    a.e("s_add_u32 s%d, s%d, s%d" % (sB, sB, sC))
    a.e("s_add_u32 s%d, s%d, s%d" % (sB, sB, sHI))
    a.e("s_lshl_b32 s%d, s%d, 10" % (sB, sB))
    a.e("s_add_u32 s%d, s%d, 0x%x" % (sOST, sB, WS_OF))
    for i in range(4): a.e("v_mov_b32 %s, -1" % v(vQ + i))
    a.vmop("buffer_store_dwordx4 %s, %s, %s, s%d offen sc1" % (v(vQ, 4), v(vL16), srd(SWS), sOST), "oclr")
    a.e("v_mov_b32 %s, 1" % v(vONE))
    a.e("v_mov_b32 %s, 0" % v(vZERO))
    a.e("v_and_b32 %s, 31, v0" % v(vGA))
    a.e("v_lshlrev_b32 %s, 2, %s" % (v(vGA), v(vGA)))

def collect(fn):
    t = Asm(); t.marks = {}
    def vmop(s_, tag):
        t.e(s_); t.marks[len(t.l) - 1] = tag
    t.vmop = vmop
    fn(t)
    return [(x, t.marks.get(i)) for i, x in enumerate(t.l)]
def put(a, items):
    for x, tag in items:
        if tag: a.vmop(x, tag)
        else: a.e(x)

def setup_attn(a):
    srd_words(a, [SWD, SWO, SOUT])
    a.e("s_lshl_b32 s%d, s%d, 2" % (sA, sG))
    a.e("s_add_u32 s%d, s%d, s%d" % (sA, sA, sLO))
    a.e("s_mul_i32 s%d, s%d, 112" % (sB, sA))
    a.e("s_lshl_b32 s%d, s%d, 3" % (sC, sM))
    a.e("s_add_u32 s%d, s%d, s%d" % (sB, sB, sC))
    a.e("s_lshl_b32 s%d, s%d, 2" % (sC, sHI))
    a.e("s_add_u32 s%d, s%d, s%d" % (sB, sB, sC))
    a.e("s_and_b32 s%d, s%d, 1" % (sC, sLO))
    a.e("s_lshl_b32 s%d, s%d, 1" % (sC, sC))
    a.e("s_add_u32 s%d, s%d, s%d" % (sB, sB, sC))
    a.e("s_lshl_b32 s%d, s%d, 10" % (sB, sB))
    a.e("s_add_u32 s%d, s%d, 0x%x" % (sHST, sB, WS_HF))
    a.e("s_mul_i32 s%d, s%d, %d" % (sC, sC, 112 * 1024))
    a.e("s_sub_u32 s%d, %d, s%d" % (sC, 112 * 1024, sC))
    a.e("s_add_u32 s%d, s%d, s%d" % (sHST2, sHST, sC))
    a.e("v_bfe_u32 v2, v0, 2, 2")
    a.e("v_lshrrev_b32 v3, 5, v0")
    a.e("v_lshl_add_u32 v2, v3, 2, v2")
    a.e("v_lshlrev_b32 v2, 6, v2")
    a.e("v_bfe_u32 v3, v0, 4, 1")
    a.e("v_lshl_add_u32 v2, v3, 5, v2")
    a.e("v_and_b32 v3, 3, v0")
    a.e("v_lshl_add_u32 v2, v3, 3, v2")
    a.e("s_lshr_b32 s%d, s%d, 1" % (sA, sW))
    a.e("s_lshl_b32 s%d, s%d, 11" % (sA, sA))
    a.e("v_add_u32 %s, s%d, v2" % (v(vWDA), sA))
    a.e("v_add_u32 %s, 0x%x, %s" % (v(vKVA), L_KV, v(vL16)))
    a.e("v_bfe_u32 v2, v0, 2, 3")
    a.e("v_lshlrev_b32 v2, 10, v2")
    a.e("v_lshrrev_b32 v3, 5, v0")
    a.e("v_lshl_add_u32 v2, v3, 6, v2")
    a.e("v_and_b32 v3, 3, v0")
    a.e("v_lshl_add_u32 v2, v3, 4, v2")
    a.e("s_lshl_b32 s%d, s%d, 7" % (sB, sCB))
    a.e("v_add_u32 %s, s%d, v2" % (v(vWDV), sB))
    a.e("v_min_u32 v2, 13, v0")
    a.e("v_lshlrev_b32 v2, 7, v2")
    a.e("s_lshr_b32 s%d, s%d, 1" % (sA, sT))
    a.e("s_lshl_b32 s%d, s%d, 11" % (sA, sA))
    a.e("s_add_u32 s%d, s%d, 0x%x" % (sA, sA, WS_HFLAG))
    a.e("v_add_u32 %s, s%d, v2" % (v(vFLA), sA))
    a.e("s_lshl_b32 s%d, s%d, 1" % (sA, sT))
    a.e("s_and_b32 s%d, s%d, 1" % (sB, sW))
    a.e("s_add_u32 s%d, s%d, s%d" % (sA, sA, sB))
    a.e("s_lshl_b32 s%d, s%d, 15" % (sB, sA))
    a.e("s_lshr_b32 s%d, s%d, 1" % (sKQ, sW))
    if Opt.kqx:
        a.e("s_lshl_b32 s%d, s%d, 1" % (sC, sCB))
        a.e("s_and_b32 s%d, s%d, 2" % (sC, sC))
        a.e("s_xor_b32 s%d, s%d, s%d" % (sKQ, sKQ, sC))
    a.e("s_lshl_b32 s%d, s%d, 13" % (sC, sKQ))
    a.e("s_add_u32 s%d, s%d, s%d" % (sB, sB, sC))
    a.e("s_add_u32 s%d, s%d, 0x%x" % (sOLD, sB, WS_OF))
    if Opt.pvz:
        a.e("s_mov_b32 s%d, 0x110000" % sA)
        a.e("s_mov_b32 s%d, 0x110000" % sB)
        a.e("v_mov_b32 v3, 0x3f803f80")
        a.e("v_cndmask_b32 v2, 0, v3, %s" % sp(sA))
    else:
        a.e("v_mov_b32 v2, 0x3f803f80")
    for i in range(16): a.e("v_mov_b32 %s, v2" % v(vV + i))
    for i in range(4): a.e("v_mov_b32 %s, v2" % v(vV1L + i))
    for i in range(4): a.e("v_mov_b32 %s, 0" % v(vE + i))
    a.e("v_lshrrev_b32 v2, 4, v0")
    a.e("v_lshl_add_u32 %s, v2, 8, %s" % (v(vHA), v(vL16)))
    for i in range(16): a.e("v_mov_b32 %s, 0" % v(vO + i))
    for i in range(32): a.e("v_mov_b32 %s, 0" % v(vD + i))
    c0 = -2.0 * math.sqrt(2.0 / math.pi) * math.log2(math.e)
    a.e("v_mov_b32 %s, 0x%x" % (v(vC0), f2u(c0)))
    a.e("v_mov_b32 %s, 0x%x" % (v(vC0 + 1), f2u(c0 * 0.044715)))

def kv_first_loads(a):
    it = []
    for u in range(2):
        it.append(("s_add_u32 m0, s%d, 0x%x\ns_add_u32 s%d, s%d, 0x%x\nbuffer_load_dwordx4 %s, %s, s%d offen sc1 lds"
                   % (sWK, L_KV + u * 8192, sA, sWK, u * 8192, v(vL16), srd(SKV), sA), "kv%d" % u))
    it.append(("s_mov_b32 s%d, 0x%x\nbuffer_load_dwordx4 %s, %s, %s, s%d offen sc1"
               % (sA, 63 * 2048, v(vK0, 4), v(vL16), srd(SKV), sA), "k0"))
    it.append(("s_mov_b64 exec, %s\nbuffer_load_dwordx4 %s, %s, %s, 0 offen offset:%d sc1\ns_mov_b64 exec, -1"
               % (sp(sVM), v(vV1L, 4), v(vL16), srd(SKV), 1024 + 256), "k0"))
    it.append(("s_lshl_b32 s%d, s%d, 2\ns_add_u32 s%d, s%d, s%d\ns_lshl_b32 s%d, s%d, 7\ns_add_u32 s%d, s%d, 0x%x\n"
               "buffer_load_dword %s, %s, %s, s%d offen sc1"
               % (sA, sG, sA, sA, sLO, sA, sA, sA, sA, WS_G, v(vGP), v(vGA), srd(SWS), sA), "k0"))
    it.append(("s_lshl_b32 s%d, s%d, 1\ns_and_b32 s%d, s%d, 1\ns_add_u32 s%d, s%d, s%d\ns_lshl_b32 s%d, s%d, 7\ns_add_u32 s%d, s%d, 0x%x\n"
               "buffer_load_dword %s, %s, %s, s%d offen sc1"
               % (sA, sT, sB, sW, sA, sA, sB, sA, sA, sA, sA, WS_G, v(vGC), v(vGA), srd(SWS), sA), "k0"))
    return it

def spin_counter(a, name, first_loaded):
    a.e("s_cmp_lg_u32 s%d, 0" % sW)
    a.e("s_cbranch_scc1 L_%s_done" % name)
    a.e("s_mov_b32 s%d, 0x4000" % sB)
    if first_loaded: a.e("s_branch L_%s_chk" % name)
    a.lab("L_%s_re" % name)
    a.e("buffer_load_dword %s, off, %s, 0 sc1" % (v(vPOLL), srd(SDBG)))
    a.e("s_waitcnt vmcnt(0)")
    a.lab("L_%s_chk" % name)
    a.e("v_readfirstlane_b32 s%d, %s" % (sA, v(vPOLL)))
    a.e("s_cmp_ge_u32 s%d, 32" % sA)
    a.e("s_cbranch_scc1 L_%s_done" % name)
    a.e("s_sleep 4")
    a.e("s_sub_u32 s%d, s%d, 1" % (sB, sB))
    a.e("s_cmp_lg_u32 s%d, 0" % sB)
    a.e("s_cbranch_scc1 L_%s_re" % name)
    a.lab("L_%s_done" % name)

def phase1_F(a):
    SCHED = {1: ["01423567", "10253467", "23016457", "32104756"],
             2: ["02134657", "01324576", "10243567", "10235467"],
             3: ["01324657", "01243576", "12035467", "20134567"],
             5: ["01243567", "10325467", "23014657", "32104576"],
             4: ["02143657", "10325476", "02143657", "10325476"]}
    tabs = SCHED[Opt.sched] if Opt.sched else ["".join(str(c ^ (p & Opt.xmask)) for c in range(8)) for p in range(4)]
    for t_ in tabs: assert sorted(t_) == list("01234567")
    num = [int(t_[::-1], 16) for t_ in tabs]
    a.e("s_add_u32 s%d, s%d, s%d" % (sA, sG, sHP))
    a.e("s_mov_b32 s%d, 0x%x" % (sXP, num[0]))
    a.e("s_mov_b32 s%d, 0x%x" % (sB, num[2]))
    a.e("s_bitcmp1_b32 s%d, 0" % sA)
    a.e("s_cselect_b32 s%d, 0x%x, s%d" % (sXP, num[1], sXP))
    a.e("s_cselect_b32 s%d, 0x%x, s%d" % (sB, num[3], sB))
    a.e("s_bitcmp1_b32 s%d, 1" % sA)
    a.e("s_cselect_b32 s%d, s%d, s%d" % (sXP, sB, sXP))
    if Opt.ghx:
        a.e("s_bitcmp1_b32 s%d, 3" % sG)
        a.e("s_cselect_b32 s%d, 0x44444444, 0" % sB)
        a.e("s_xor_b32 s%d, s%d, s%d" % (sXP, sXP, sB))
    a.e("s_and_b32 s%d, s%d, 3" % (sLO, sW))
    a.e("s_lshl_b32 s%d, s%d, 10" % (sWH, sLO))
    if Opt.hrot:
        a.e("s_lshl_b32 s%d, s%d, %d" % (sOFFQ, sA, 13 - (Opt.hrot & 1)))
        a.e("s_and_b32 s%d, s%d, 0x2000" % (sOFFQ, sOFFQ))
        a.e("s_add_u32 s%d, s%d, s%d" % (sM0B, sWH, sOFFQ))
        a.e("s_sub_u32 s%d, s%d, s%d" % (sM0B + 1, sWH, sOFFQ))

    def wvoff(a):
        a.e("s_lshl_b32 s%d, s%d, 1" % (sA, sLO))
        a.e("s_and_b32 s%d, s%d, 4" % (sA, sA))
        a.e("v_lshrrev_b32 v2, 4, v0")
        a.e("v_bfe_u32 v3, v0, 1, 3")
        a.e("v_xor_b32 v3, v3, v2")
        a.e("v_xor_b32 v3, s%d, v3" % sA)
        a.e("v_lshlrev_b32 v3, 5, v3")
        a.e("v_and_b32 v4, 1, v0")
        a.e("v_lshl_add_u32 v3, v4, 4, v3")
        a.e("v_mul_u32_u24 v5, 3584, v2")
        a.e("s_mul_i32 s%d, s%d, %d" % (sA, sLO, 4 * 3584))
        a.e("s_lshl_b32 s%d, s%d, 8" % (sB, sM))
        a.e("s_add_u32 s%d, s%d, s%d" % (sA, sA, sB))
        a.e("v_add3_u32 %s, v3, v5, s%d" % (v(vDG), sA))
    def qvoff(a):
        a.e("v_lshrrev_b32 v3, 2, v0")
        a.e("v_lshlrev_b32 v3, 10, v3")
        a.e("v_bfe_u32 v4, v0, 4, 2")
        a.e("v_and_b32 v4, 2, v4")
        a.e("v_xor_b32 v4, v4, v0")
        a.e("v_and_b32 v4, 3, v4")
        a.e("v_lshl_add_u32 v3, v4, 4, v3")
        a.e("s_lshl_b32 s%d, s%d, 14" % (sA, sLO))
        a.e("s_lshl_b32 s%d, s%d, 6" % (sB, sHP))
        a.e("s_add_u32 s%d, s%d, s%d" % (sA, sA, sB))
        a.e("v_add_u32 %s, s%d, v3" % (v(vDQ), sA))

    if Opt.hrot:
        ORDER = [("q", 0)] + [(t_, 2 * h_ + j) for h_ in range(2) for t_, j in (("x", 0), ("x", 1), ("g", 0), ("u", 0), ("g", 1), ("u", 1))]
    else:
        ORDER = [("q", 0)] + [("x", j) for j in range(4)] + [(t_, j) for j in range(4) for t_ in "gu"]
    def block(items):
        out = []; lastc = None; lastw = None
        for c, kind, j in items:
            s = c % 3; pre = []
            if c != lastc:
                pre.append("s_bfe_u32 s%d, s%d, 0x%x" % (sCH, sXP, 0x30000 + 4 * c)); lastc = c; lastw = None
            fam = "w" if kind in "gu" else kind
            rot = Opt.hrot and fam != "q"
            if lastw is None or lastw[0] != fam or (rot and lastw[1] >> 1 != j >> 1):
                pre.append({"q": "s_lshl_b32 s%d, s%d, 16" % (sOFFW, sCH), "x": "s_lshl_b32 s%d, s%d, 7" % (sOFFW, sCH),
                            "w": "s_mul_i32 s%d, s%d, %d" % (sOFFW, sCH, 64 * 3584)}[fam])
                if rot: pre.append("s_%s_u32 s%d, s%d, s%d" % ("sub" if j >> 1 else "add", sOFFW, sOFFW, sRX if fam == "x" else sRW))
                lastw = (fam, 0)
            if lastw[1] != j:
                pre.append("s_add_u32 s%d, s%d, 0x%x" % (sOFFW, sOFFW, (j - lastw[1]) * (0x8000 if fam == "x" else 16 * 3584)))
                lastw = (fam, j)
            m0c, vo, rs = {"q": (L_WQ + s * 4096, vDQ, SWQ), "x": (L_X + s * 16384 + j * 4096, vDX, SX),
                           "g": (L_G + s * 16384 + j * 4096, vDG, SWG), "u": (L_U + s * 16384 + j * 4096, vDG, SWU)}[kind]
            nt = " nt" if Opt.ntx & (1 if rs == SX else 2) else ""
            out.append(("s_add_u32 m0, s%d, 0x%x\n%s\nbuffer_load_dwordx4 %s, %s, s%d offen%s lds"
                        % ((sM0B + (j >> 1)) if rot else sWH, m0c, "\n".join(pre) or "s_nop 0", v(vo), srd(rs), sOFFW, nt), "c%d" % c))
        return out
    def part(c, role): return [(c, k_, j) for k_, j in ORDER if (k_ in "gu") == (role == "A")]

    def rdsetup(a):
        setup_rd(a)
        a.e("v_lshl_add_u32 %s, v3, 3, v2" % v(vWA))
        a.e("v_lshlrev_b32 %s, 8, %s" % (v(vWA), v(vWA)))
        a.e("v_lshl_add_u32 %s, v4, 3, %s" % (v(vWA), v(vWA)))
        a.e("v_and_b32 v5, 1, v3")
        a.e("v_lshl_add_u32 v2, v5, 2, v2")
        a.e("s_lshl_b32 s%d, s%d, 2" % (sA, sHI))
        a.e("s_and_b32 s%d, s%d, 1" % (sB, sLO))
        a.e("s_lshl_b32 s%d, s%d, 1" % (sB, sB))
        a.e("s_add_u32 s%d, s%d, s%d" % (sA, sA, sB))
        a.e("v_xor_b32 v2, s%d, v2" % sA)
        a.e("v_lshl_add_u32 %s, v2, 5, %s" % (v(vWA), v(vWA)))
        a.e("v_xor_b32 %s, 32, %s" % (v(vWA + 1), v(vWA)))
        a.e("v_add_u32 %s, 0x%x, %s" % (v(vWA + 2), L_U - L_G, v(vWA)))
        a.e("v_add_u32 %s, 0x%x, %s" % (v(vWA + 3), L_U - L_G, v(vWA + 1)))
        a.e("s_lshl_b32 s%d, s%d, 12" % (sA, sLO))
        a.e("s_add_u32 s%d, s%d, 0x%x" % (sA, sA, L_X))
        a.e("v_add_u32 %s, s%d, %s" % (v(vXA), sA, v(vXA)))
        a.e("v_xor_b32 %s, 0x1000, %s" % (v(vXA + 1), v(vXA)))
        a.e("v_xor_b32 %s, 64, %s" % (v(vXA + 2), v(vXA)))
        a.e("v_xor_b32 %s, 64, %s" % (v(vXA + 3), v(vXA + 1)))
        a.e("v_add_u32 %s, 0x%x, %s" % (v(vQA), L_WQ, v(vQA)))

    srd_words(a, [SWG, SWU])
    a.e("s_cmp_ge_u32 s%d, 4" % sW)
    a.e("s_cbranch_scc1 L_setB")
    late = collect(setup_oclr) + collect(setup_attn)
    words = collect(lambda t: srd_words(t, [SWS, SKV, SDBG, SWD, SWO, SOUT]))
    late = [x for x in late if x not in words]
    oclr = [x for x in late if x[1] == "oclr"]
    if Opt.olate: late = [x for x in late if x[1] != "oclr"]
    else: oclr = []
    words += [("v_mov_b32 %s, 0" % v(r_), None) for r_ in (vGA, vWDV, vFLA, vHA)]
    st = collect(rdsetup) + words + late[:Opt.fillpre]
    fills = {"A": late[Opt.fillpre:], "B": late[Opt.fillpre:]}
    vms = {}
    for role in "AB":
        a.vm = []
        if role == "A":
            wvoff(a)
        else:
            a.lab("L_setB")
            a.e("v_subrev_u32 %s, 0x8000, %s" % (v(vDX), v(vDX)))
            qvoff(a)
        a.e("s_waitcnt lgkmcnt(0)")
        a.stamp(2)
        if Opt.hrot:
            a.e("s_lshl_b32 s%d, s%d, 3" % (sRX, sOFFQ))
            a.e("s_mul_i32 s%d, s%d, 14" % (sRW, sOFFQ))
        put(a, block(part(0, role)))
        if Opt.startbar: a.e("s_barrier")
        npre = min(Opt.npre, 8) if role == "A" else 5
        pn = block(part(1, role)[:npre])
        rest = st + collect(qvoff if role == "A" else wvoff)
        gap = len(rest) // (npre + Opt.pregap) + 1
        for i in range(npre):
            put(a, pn[:1]); pn = pn[1:]
            put(a, rest[:gap]); rest = rest[gap:]
        put(a, rest)
        a.e("s_mov_b64 vcc, %d" % (-1 if role == "A" else 0))
        if role == "A":
            a.waitvm("c0")
            a.e("s_branch L_k0")
        else:
            a.e("s_setprio 1")
            a.waitvm("c0")
        vms[role] = a.vm
    stream = part(1, "A")[min(Opt.npre, 8):] + [(c, k_, j) for c in range(2, 8) for k_, j in ORDER]
    qa = [int(x, 16) for x in Opt.qa]; qb = [int(x, 16) for x in Opt.qb]
    def take(n, cmax):
        m = 0
        while m < n and m < len(stream) and stream[m][0] <= cmax: m += 1
        r_ = stream[:m]; del stream[:m]
        return block(r_)
    a.lab("L_k0")
    a.vm = vms["A"]
    ool = Asm()
    def dmablock(name, role, items, wait=None):
        a.e("s_cbranch_vcc%s L_%s" % ("nz" if role == "A" else "z", name))
        if wait: a.waitvm(wait, lgkm=True)
        a.lab("L_%s_r" % name)
        ool.lab("L_%s" % name)
        ool.vm = a.vm if role == "A" else vms["B"]
        for it_ in items:
            if it_[1] is None: put(ool, fills[role]); fills[role] = []
            put(ool, [it_])
            put(ool, fills[role][:Opt.fillper]); fills[role] = fills[role][Opt.fillper:]
        if name == "e7": put(ool, fills[role]); fills[role] = []
        if wait: ool.waitvm(wait, lgkm=True)
        if role == "B": vms["B"] = ool.vm
        ool.e("s_branch L_%s_r" % name)
    a.ool = ool.l

    def fr(k):
        b = vF1 + 36 * (k % 2)
        return dict(x=b, w=b + 16, q=b + 32)
    def reads(k):
        c, s = divmod(k, 2); f = fr(k); sl = c % 3
        wo = sl * 16384 + s * 8192
        W = lambda i: [rdtr(f['w'] + 4 * i, vWA + i, wo), rdtr(f['w'] + 4 * i + 2, vWA + i, wo + 1024)]
        X = [rd128(f['x'] + 4 * b, vXA + 2 * s + (b >> 1), sl * 16384 + (b & 1) * 2048) for b in range(4)]
        return W(0) + X + W(2) + W(1) + W(3) + [rdtr(f['q'], vQA, sl * 4096 + s * 2048), rdtr(f['q'] + 2, vQA, sl * 4096 + s * 2048 + 256)]
    a.e("s_barrier")
    a.stamp(3)
    if Opt.kdiag or Opt.probe >= 18:
        kstamp(a, 2)
        a.e("s_waitcnt lgkmcnt(0)")
    for r in reads(0): a.e(r)
    if qa[0]: dmablock("d2", "A", take(qa[0], 2))
    for k in range(16):
        c, s = divmod(k, 2); f = fr(k)
        z = lambda x: None if k == 0 else x
        mf = []
        for n_, i in enumerate((0, 2, 1, 3)):
            for b in (range(4) if n_ % 2 == 0 else range(3, -1, -1)):
                d = vACC + 16 * b + 4 * i
                mf.append(mfma16(d, f['w'] + 4 * i, f['x'] + 4 * b, z(d)))
        for b in range(2): mf.append(mfma16(vAQ + 4 * b, f['q'], f['x'] + 4 * b, z(vAQ + 4 * b)))
        rds = reads(k + 1) if k < 15 else []
        if s == 0:
            a.e("s_waitcnt lgkmcnt(6)")
            for i, m in enumerate(mf):
                if i == 8: a.e("s_waitcnt lgkmcnt(8)")
                a.e(m)
                if i < len(rds): a.e(rds[i])
            continue
        a.e("s_waitcnt lgkmcnt(8)")
        for m in mf[:4]: a.e(m)
        if c <= 5:
            dmablock("e%d" % (c + 2), "B", take(qb[c], c + 2), "c%d" % (c + 1))
            assert not any(x[0] <= c + 1 for x in stream)
        if c == 7:
            a.e("s_waitcnt lgkmcnt(0)")
        elif c == 6 and Opt.stagger:
            a.e("s_waitcnt lgkmcnt(0)")
            a.e("s_cbranch_vccz L_st7")
            a.e("s_waitcnt vmcnt(0)")
            spin_counter(a, "kvf", True)
            a.e("s_barrier")
            a.e("s_setprio 1")
            for x, _ in kv_first_loads(a) + oclr: a.e(x)
            a.lab("L_st7")
        elif c == 6:
            a.e("s_setprio 0")
            a.wait0(lgkm=True)
            spin_counter(a, "kvf", True)
            a.e("s_barrier")
            put(a, kv_first_loads(a) + oclr)
        else:
            a.e("s_barrier")
        if c < 7 and ((Opt.kdiag == 1 and Opt.diag) or Opt.probe == 21 + c):
            kstamp(a, 3 + c)
            a.e("s_waitcnt lgkmcnt(0)")
        if c + 3 < 8:
            items = take(qa[c + 1], c + 3)
            if c == 4:
                items.append(("s_cmp_lg_u32 s%d, 0\ns_cbranch_scc1 L_d7_r\nbuffer_load_dword %s, off, %s, 0 sc1"
                              % (sW, v(vPOLL), srd(SDBG)), None))
            dmablock("d%d" % (c + 3), "A", items)
        for i, m in enumerate(mf[4:]):
            a.e(m)
            if i < len(rds): a.e(rds[i])
        if k == 11: assert not stream and not fills["A"] and not fills["B"]
        if k == 11 and Opt.stagger:
            a.e("s_cbranch_vccnz L_st6")
            a.e("s_setprio 0")
            a.wait0()
            a.e("s_barrier")
            put(a, kv_first_loads(a) + oclr)
            a.lab("L_st6")
    a.stamp(4)

def phase1_L(a):
    a.lab("L_light")
    a.vm = []
    srd_words(a, [SWKV, SWV, SGATE])
    a.e("s_sub_u32 s%d, s%d, 14" % (sCNT, sM))
    a.e("s_lshl_b32 s%d, s%d, 16" % (sOLD, sCNT))
    a.e("s_lshl_b32 s%d, s%d, 13" % (sHST, sCNT))
    a.e("s_add_u32 s%d, s%d, s%d" % (sWH, sHST, sWK))
    a.e("s_xor_b32 s%d, s%d, 0x2000" % (sHST, sHST))
    a.e("s_add_u32 s%d, s%d, 0x2000" % (sA, sWK))
    a.e("s_waitcnt lgkmcnt(0)")
    a.stamp(2)
    a.e("s_mov_b32 s%d, s%d" % (SWV, sTMPP))
    a.e("s_mov_b32 s%d, s%d" % (SWV + 1, sTMPP + 1))
    def xdma(c, base, so):
        a.vmop("s_add_u32 m0, s%d, 0x%x\ns_nop 0\nbuffer_load_dwordx4 %s, %s, s%d offen offset:%d lds"
               % (base, LL_X + c * 16384 - c * 128, v(vDX), srd(SX), so, c * 128), "c%d" % c)
    def wdma(u):
        for t, rs in enumerate((SWKV, SWV)):
            a.vmop("s_add_u32 m0, s%d, 0x%x\ns_nop 0\nbuffer_load_dwordx4 %s, %s, s%d offen lds"
                   % (sWK, LL_W + t * 16384 + u * 8192, v(vL16), srd(rs), sA if u else sWK), "w")
    wdma(0)
    a.vmop("s_mov_b32 m0, s%d\ns_nop 0\nbuffer_load_dwordx4 %s, %s, 0 offen lds" % (sHST, v(vL16), srd(SGATE)), "w")
    for c in range(8):
        if c == 4: wdma(1)
        xdma(c, sWH, sOLD)
        if c in (1, 3, 5): a.e("s_barrier")
    setup_rd(a)
    a.e("v_lshrrev_b32 v3, 5, v0")
    a.e("v_bfrev_b32 v5, v4")
    a.e("v_lshrrev_b32 v5, 30, v5")
    a.e("s_cmp_ge_u32 s%d, 2" % sLO)
    a.e("s_cselect_b64 vcc, -1, 0")
    a.e("v_cndmask_b32 v4, v5, v4, vcc")
    a.e("v_lshl_add_u32 %s, v3, 3, v2" % v(vWA))
    a.e("v_lshlrev_b32 %s, 5, %s" % (v(vWA), v(vWA)))
    a.e("v_lshl_add_u32 %s, v4, 3, %s" % (v(vWA), v(vWA)))
    a.e("s_lshr_b32 s%d, s%d, 1" % (sA, sLO))
    a.e("s_lshl_b32 s%d, s%d, 14" % (sA, sA))
    a.e("s_add_u32 s%d, s%d, 0x%x" % (sA, sA, LL_W))
    a.e("v_add_u32 %s, s%d, %s" % (v(vWA), sA, v(vWA)))
    a.e("v_lshl_add_u32 %s, v3, 4, s%d" % (v(vWA + 1), sHST))
    a.e("s_and_b32 s%d, s%d, 1" % (sA, sLO))
    a.e("s_lshl_b32 s%d, s%d, 1" % (sB, sCNT))
    a.e("s_add_u32 s%d, s%d, s%d" % (sCNT, sA, sB))
    a.e("s_lshl_b32 s%d, s%d, 12" % (sA, sCNT))
    a.e("v_and_b32 v2, 31, v0")
    a.e("v_bfe_u32 v4, v0, 1, 3")
    a.e("v_xor_b32 v4, v4, v3")
    a.e("v_lshlrev_b32 v4, 4, v4")
    a.e("v_lshl_add_u32 v4, v2, 7, v4")
    a.e("v_add_u32 %s, s%d, v4" % (v(vLX), sA))
    for s in range(1, 4): a.e("v_xor_b32 %s, %d, %s" % (v(vLX + s), 32 * s, v(vLX)))
    for s in range(4): a.e("v_add_u32 %s, 0x10000, %s" % (v(vLX + 4 + s), v(vLX + s)))
    setup_oclr(a)
    vm0 = list(a.vm)
    a.e("s_cmp_lg_u32 s%d, 0" % sHI)
    a.e("s_cbranch_scc1 L_lB")
    a.e("s_not_b64 %s, %s" % (sp(sTMPP), sp(sVM)))
    a.e("s_cmp_ge_u32 s%d, 2" % sLO)
    a.e("s_cbranch_scc1 L_lV")
    def chain(kind):
        a.vm = list(vm0)
        def fr(k):
            b = vFR + 8 * (k % 4)
            return b, b + 4
        def reads(k):
            c, s = divmod(k, 4); x, w = fr(k)
            r = [rd128(x, vLX + s + 4 * (c >> 2), (c & 3) * 16384), rdtr(w, vWA, k * 512), rdtr(w + 2, vWA, k * 512 + 128)]
            if kind == "K":
                r += ["s_mov_b64 exec, %s" % sp(sTMPP), rd128(w, vWA + 1, k * 32), "s_mov_b64 exec, -1"]
            return r
        for q in range(4):
            a.waitvm("c%d" % (2 * q + 1))
            a.e("s_barrier")
            nr = 4 if kind == "K" else 3
            for k in range(8 * q, 8 * q + 2):
                for r in reads(k): a.e(r)
            for k in range(8 * q, 8 * q + 8):
                if k + 2 < 8 * q + 8:
                    for r in reads(k + 2): a.e(r)
                left = min(2, 8 * q + 7 - k)
                a.e("s_waitcnt lgkmcnt(%d)" % (left * nr))
                x, w = fr(k)
                cc = None if k == 0 else vACC
                a.e(mfma(vACC, w, x, cc) if kind == "K" else mfma(vACC, x, w, cc))
        a.e("s_lshl_b32 s%d, s%d, 2" % (sA, sG))
        a.e("s_add_u32 s%d, s%d, s%d" % (sA, sA, sCNT))
        a.e("s_nop 12")
        if kind == "K":
            a.e("s_mov_b32 s%d, 0x%x" % (sC, f2u(0.25 * math.log2(math.e))))
            for i in range(8): a.e("v_mul_f32 %s, s%d, %s" % (v(vACC + i), sC, v(vACC + i)))
            a.e("v_mul_f32 %s, 0x%x, %s" % (v(vACC + 8), f2u(-math.log2(math.e)), v(vACC + 8)))
            a.e("v_exp_f32 %s, %s" % (v(vACC + 8), v(vACC + 8)))
            for i in range(4): a.e("v_cvt_pk_bf16_f32 %s, %s, %s" % (v(vFR + i), v(vACC + 2 * i), v(vACC + 2 * i + 1)))
            a.e("v_add_f32 %s, 1.0, %s" % (v(vACC + 8), v(vACC + 8)))
            a.e("v_rcp_f32 %s, %s" % (v(vACC + 8), v(vACC + 8)))
            a.e("s_add_u32 s%d, s%d, 63" % (sB, sA))
            a.e("s_and_b32 s%d, s%d, 63" % (sB, sB))
            a.e("s_lshl_b32 s%d, s%d, 11" % (sB, sB))
            a.e("buffer_store_dwordx4 %s, %s, %s, s%d offen sc1" % (v(vFR, 4), v(vL16), srd(SKV), sB))
            a.e("s_lshl_b32 s%d, s%d, 7" % (sB, sA))
            a.e("s_add_u32 s%d, s%d, 0x%x" % (sB, sB, WS_G))
            a.e("s_mov_b32 exec_hi, 0")
            a.e("buffer_store_dword %s, %s, %s, s%d offen sc1" % (v(vACC + 8), v(vGA), srd(SWS), sB))
            a.e("s_mov_b64 exec, -1")
        else:
            for i in range(8): a.e("v_cvt_pk_bf16_f32 %s, %s, %s" % (v(vFR + i), v(vACC + 2 * i), v(vACC + 2 * i + 1)))
            a.e("v_bfe_u32 v2, v0, 4, 1")
            a.e("v_add_u32 v2, s%d, v2" % sA)
            a.e("v_and_b32 v2, 63, v2")
            a.e("v_lshl_add_u32 v2, v2, 11, %s" % v(vL16))
            for i in range(4): a.e("v_cndmask_b32 %s, %s, %s, %s" % (v(vFR + i), v(vFR + 4 + i), v(vFR + i), sp(sVM)))
            a.e("buffer_store_dwordx4 %s, v2, %s, 0 offen offset:1024 sc1" % (v(vFR, 4), srd(SKV)))
        a.e("s_branch L_lJ")
    chain("K")
    a.lab("L_lV")
    chain("V")
    a.lab("L_lB")
    a.vm = list(vm0)
    a.e("s_cmp_lg_u32 s%d, 14" % sM)
    a.e("s_cbranch_scc1 L_nozf")
    a.e("s_cmp_lg_u32 s%d, 4" % sW)
    a.e("s_cbranch_scc1 L_nozf")
    a.e("v_lshlrev_b32 v2, 7, v0")
    a.e("s_lshl_b32 s%d, s%d, 11" % (sA, sG))
    a.e("s_add_u32 s%d, s%d, 0x%x" % (sA, sA, WS_HFLAG))
    a.e("s_mov_b64 exec, 0xffff")
    a.e("buffer_store_dword %s, v2, %s, s%d offen sc1" % (v(vZERO), srd(SWS), sA))
    a.e("s_mov_b64 exec, -1")
    a.lab("L_nozf")
    for q in range(4):
        a.waitvm("c%d" % (2 * q + 1))
        a.e("s_barrier")
    a.lab("L_lJ")
    a.e("v_lshrrev_b32 v3, 2, v0")
    a.e("v_lshlrev_b32 v3, 10, v3")
    a.e("v_lshrrev_b32 v4, 5, v0")
    a.e("v_lshlrev_b32 v4, 1, v4")
    a.e("v_xor_b32 v4, v4, v0")
    a.e("v_and_b32 v4, 3, v4")
    a.e("v_lshl_add_u32 v3, v4, 4, v3")
    a.e("s_lshl_b32 s%d, s%d, 14" % (sA, sW))
    a.e("s_lshl_b32 s%d, s%d, 6" % (sB, sHP))
    a.e("s_add_u32 s%d, s%d, s%d" % (sA, sA, sB))
    a.e("v_add_u32 %s, s%d, v3" % (v(vDQ), sA))
    a.e("s_xor_b32 s%d, s%d, 0x2000" % (sWH, sWH))
    a.e("s_xor_b32 s%d, s%d, 0x10000" % (sOLD, sOLD))
    a.wait0(lgkm=True)
    a.e("s_barrier")
    a.e("s_cmp_lg_u32 s%d, 0" % sW)
    a.e("s_cbranch_scc1 L_noat")
    a.e("s_mov_b64 exec, 1")
    a.e("buffer_atomic_add %s, off, %s, 0 sc1" % (v(vONE), srd(SDBG)))
    a.e("s_mov_b64 exec, -1")
    a.lab("L_noat")
    a.stamp(3)
    for c in range(8): xdma(c, sWH, sOLD)
    for p in range(4):
        a.e("s_add_u32 m0, s%d, 0x%x" % (sWK, LL_WQ + p * 8192))
        a.e("s_mov_b32 s%d, 0x%x" % (sA, p * 128 * 1024))
        a.e("buffer_load_dwordx4 %s, %s, s%d offen lds" % (v(vDQ), srd(SWQ), sA))
    setup_attn(a)
    if Opt.touch & 2:
        a.e("s_lshl_b32 s%d, s%d, 1" % (sA, sG))
        a.e("s_add_u32 s%d, s%d, s%d" % (sA, sA, sM))
        a.e("s_sub_u32 s%d, s%d, 14" % (sA, sA))
        a.e("s_lshl_b32 s%d, s%d, 3" % (sA, sA))
        a.e("s_add_u32 s%d, s%d, s%d" % (sA, sA, sW))
        a.e("v_lshlrev_b32 v2, 15, v0")
        a.e("s_lshl_b32 s%d, s%d, 7" % (sA, sA))
        a.e("buffer_load_dword %s, v2, %s, s%d offen" % (v(vPOLL), srd(SWO), sA))
        a.e("buffer_load_dword %s, v2, %s, s%d offen" % (v(vPOLL), srd(SWD), sA))
    a.e("s_lshl_b32 s%d, s%d, 12" % (sA, sLO))
    a.e("v_add_u32 %s, s%d, %s" % (v(vXA), sA, v(vXA)))
    a.e("v_xor_b32 %s, 64, %s" % (v(vXA + 1), v(vXA)))
    a.e("v_add_u32 %s, 0x10000, %s" % (v(vXA + 2), v(vXA)))
    a.e("v_add_u32 %s, 0x10000, %s" % (v(vXA + 3), v(vXA + 1)))
    a.e("v_add_u32 %s, 0x%x, %s" % (v(vQA), LL_WQ, v(vQA)))
    a.e("s_waitcnt vmcnt(%d)" % (2 if Opt.touch & 2 else 0))
    a.e("s_barrier")
    def fr(k): return vFR + 12 * (k % 3)
    def reads(k):
        c, s = divmod(k, 2); f = fr(k)
        return [rd128(f + 4 * b, vXA + s + 2 * (c >> 2), (c & 3) * 16384 + b * 2048) for b in range(2)] + \
               [rdtr(f + 8, vQA, k * 2048), rdtr(f + 10, vQA, k * 2048 + 256)]
    for k in range(2):
        for r in reads(k): a.e(r)
    for k in range(16):
        a.e("s_waitcnt lgkmcnt(%d)" % (4 * min(1, 15 - k)))
        for b in range(2): a.e(mfma16(vAQ + 4 * b, fr(k) + 8, fr(k) + 4 * b, None if k == 0 else vAQ + 4 * b))
        if k + 2 < 16:
            for r in reads(k + 2): a.e(r)
    spin_counter(a, "kvl", False)
    a.e("s_barrier")
    for s, t in kv_first_loads(a): a.e(s)
    a.wait0()
    a.stamp(4)
    a.e("s_branch L_join")

def gelu_tile(a, ti, scalar=False):
    acc = vACC + 16 * ti
    t = vFR
    o = vFR + 8 + 4 * ti
    pk = lambda r: v(r, 2)
    if scalar:
        for i in range(8): a.e("v_mul_f32 %s, %s, %s" % (v(t + i), v(acc + i), v(acc + i)))
        for i in range(8): a.e("v_fma_f32 %s, %s, %s, %s" % (v(t + i), v(t + i), v(vC0 + 1), v(vC0)))
        for i in range(8): a.e("v_mul_f32 %s, %s, %s" % (v(t + i), v(t + i), v(acc + i)))
        for i in range(8): a.e("v_exp_f32 %s, %s" % (v(t + i), v(t + i)))
        for i in range(8): a.e("v_add_f32 %s, 1.0, %s" % (v(t + i), v(t + i)))
        for i in range(8): a.e("v_rcp_f32 %s, %s" % (v(t + i), v(t + i)))
        for i in range(8): a.e("v_mul_f32 %s, %s, %s" % (v(acc + i), v(acc + i), v(acc + 8 + i)))
        for i in range(8): a.e("v_mul_f32 %s, %s, %s" % (v(acc + i), v(acc + i), v(t + i)))
    R4, R8 = (range(0), range(0)) if scalar else (range(4), range(8))
    for i in R4: a.e("v_pk_mul_f32 %s, %s, %s" % (pk(t + 2 * i), pk(acc + 2 * i), pk(acc + 2 * i)))
    for i in R4: a.e("v_pk_fma_f32 %s, %s, %s, %s op_sel:[0,1,0] op_sel_hi:[1,1,0]" % (pk(t + 2 * i), pk(t + 2 * i), pk(vC0), pk(vC0)))
    for i in R4: a.e("v_pk_mul_f32 %s, %s, %s" % (pk(t + 2 * i), pk(t + 2 * i), pk(acc + 2 * i)))
    for i in R8: a.e("v_exp_f32 %s, %s" % (v(t + i), v(t + i)))
    for i in R4: a.e("v_pk_add_f32 %s, %s, 1.0 op_sel_hi:[1,0]" % (pk(t + 2 * i), pk(t + 2 * i)))
    for i in R8: a.e("v_rcp_f32 %s, %s" % (v(t + i), v(t + i)))
    for i in R4: a.e("v_pk_mul_f32 %s, %s, %s" % (pk(acc + 2 * i), pk(acc + 2 * i), pk(acc + 8 + 2 * i)))
    for i in R4: a.e("v_pk_mul_f32 %s, %s, %s" % (pk(acc + 2 * i), pk(acc + 2 * i), pk(t + 2 * i)))
    for i in range(4): a.e("v_cvt_pk_bf16_f32 %s, %s, %s" % (v(o + i), v(acc + 2 * i), v(acc + 2 * i + 1)))
    a.vmop("buffer_store_dwordx4 %s, %s, %s, s%d offen offset:%d sc1" % (v(o, 4), v(vHA), srd(SWS), sHST2 if ti >> 1 else sHST, (ti & 1) * 256), "hst")

def Yseg(hset, toggle=False):
    out = []
    for t in range(2):
        S, Sn = vS + 16 * t, vS + 16 * (1 - t)
        K, V0, V1 = vKF + 4 * t, vV + 8 * t, vV + 8 * t + 4
        for j in range(8):
            out.append("v_exp_f32 %s, %s" % (v(vE + 2 * (j % 2)), v(S + 2 * j)))
            out.append("v_exp_f32 %s, %s" % (v(vE + 2 * (j % 2) + 1), v(S + 2 * j + 1)))
            jj = (j - 1) % 8
            out.append("v_cvt_pk_bf16_f32 %s, %s, %s" % (v(vP + jj), v(vE + 2 * (jj % 2)), v(vE + 2 * (jj % 2) + 1)))
            if j == 1: out.append(mfma(vO, V1, vP + 4, vO))
            if j == 3: out.append(mfma(Sn, K, vQ, None))
            if hset is None:
                if j == 7: out.append(mfma(vO, V0, vP, vO))
            else:
                if j == 5: out.append(mfma(vO, V0, vP, vO))
                if j == 6 and t == 1 and toggle:
                    out.append("v_xor_b32 %s, 0x4000, %s" % (v(vKVA), v(vKVA)))
                    out.append("v_xor_b32 %s, 0x8000, %s" % (v(vWDA), v(vWDA)))
                if j == 7: out.append(mfma(vD + 16 * t, vWF + 4 * t, vH + 4 * hset, vD + 16 * t))
    return out

def kv_reads(off):
    r = [rd128(vKF, vKVA, off), rd128(vKF + 4, vKVA, off + 2048), "s_mov_b64 exec, %s" % sp(sVM)]
    for t in range(2):
        r += [rd128(vV + 8 * t, vKVA, off + 2048 * t + 1024), rd128(vV + 8 * t + 4, vKVA, off + 2048 * t + 1280)]
    r.append("s_mov_b64 exec, -1")
    return r
def wd_reads(dst, addr, off):
    r = []
    for c in range(2):
        r += [rdtr(dst + 4 * c, addr, off + 512 * c), rdtr(dst + 4 * c + 2, addr, off + 512 * c + 1024)]
    return r

def wdrow(sg): return (32 * (sg >> 1) + 8 * (sg & 1)) * 1024

def attention(a, role, pre0=None):
    A = role == "A"
    def kvdma(u):
        a.vmop("s_add_u32 m0, s%d, 0x%x\ns_add_u32 s%d, s%d, 0x%x\nbuffer_load_dwordx4 %s, %s, s%d offen sc1 lds"
               % (sWK, L_KV + (u % 4) * 8192, sA, sWK, u * 8192, v(vL16), srd(SKV), sA), "kv%d" % u)
    def wddma(sg):
        a.vmop("s_add_u32 m0, s%d, 0x%x\ns_add_u32 s%d, s%d, 0x%x\nbuffer_load_dwordx4 %s, %s, s%d offen lds"
               % (sWK, L_WD + ((sg + 3) % 8) * 8192, sA, sWDOFF, wdrow(sg), v(vWDV), srd(SWD), sA), "wd%d" % sg)
    def wodma(j):
        a.vmop("s_add_u32 m0, s%d, 0x%x\ns_add_u32 s%d, s%d, 0x%x\nbuffer_load_dwordx4 %s, %s, s%d offen lds"
               % (sWK, L_WO + j * 8192, sA, sB, j * 16384, v(vWDV), srd(SWO), sA), "wo")
    def hload(sg, dst):
        a.vmop("s_add_u32 s%d, s%d, 0x%x\nbuffer_load_dwordx4 %s, %s, %s, s%d offen sc1"
               % (sA, sHOFF, sg * 1024, v(dst, 4), v(vL16), srd(SWS), sA), "h%d" % sg)
    for n in range(11):
        if not A and n == 0: a.e("s_barrier")
        if n % 2 == 1: astamp(a, 2 + n // 2)
        tags = []
        if A and n % 2 == 1: tags.append("kv%d" % ((n + 1) // 2))
        if not A and n % 2 == 0: tags.append("kv%d" % ((n + 2) // 2))
        if n == (3 if A else 2): tags.append("hst")
        if n == 10: tags.append("wd0")
        if n == 8 and A:
            a.e("s_cmp_lg_u32 s%d, 0" % sW)
            a.e("s_cbranch_scc1 L_hf_done")
            a.e("s_mov_b32 s%d, 0x4000" % sB)
            a.e("s_waitcnt vmcnt(2)")
            a.lab("L_hf_chk")
            a.e("v_cmp_ne_u32 vcc, 1, %s" % v(vPOLL))
            a.e("s_cbranch_vccz L_hf_done")
            a.e("s_sleep 2")
            a.e("buffer_load_dword %s, %s, %s, 0 offen sc1" % (v(vPOLL), v(vFLA), srd(SWS)))
            a.e("s_sub_u32 s%d, s%d, 1" % (sB, sB))
            a.e("s_cmp_lg_u32 s%d, 0" % sB)
            a.e("s_waitcnt vmcnt(0)")
            a.e("s_cbranch_scc1 L_hf_chk")
            a.lab("L_hf_done")
        a.waitvm(tags)
        if n == 3 and not A:
            a.e("s_cmp_ge_u32 s%d, 14" % sM)
            a.e("s_cbranch_scc1 L_nohf")
            a.e("s_cmp_lg_u32 s%d, 4" % sW)
            a.e("s_cbranch_scc1 L_nohf")
            a.e("s_lshl_b32 s%d, s%d, 4" % (sA, sG))
            a.e("s_add_u32 s%d, s%d, s%d" % (sA, sA, sM))
            a.e("s_lshl_b32 s%d, s%d, 7" % (sA, sA))
            a.e("s_add_u32 s%d, s%d, 0x%x" % (sA, sA, WS_HFLAG))
            a.e("s_mov_b64 exec, 1")
            a.e("buffer_store_dword %s, off, %s, s%d sc1" % (v(vONE), srd(SWS), sA))
            a.e("s_mov_b64 exec, -1")
            a.lab("L_nohf")
        for r in kv_reads((n % 8) * 4096): a.e(r)
        if n == 7 and A:
            a.e("s_cmp_lg_u32 s%d, 0" % sW)
            a.e("s_cbranch_scc1 L_hf_nol")
            a.e("buffer_load_dword %s, %s, %s, 0 offen sc1" % (v(vPOLL), v(vFLA), srd(SWS)))
            a.lab("L_hf_nol")
        if n == 0:
            kvdma(2); kvdma(3)
            a.e("s_mov_b32 s%d, s%d" % (sC, sKQ))
            a.e("s_mul_i32 s%d, s%d, %d" % (sWDOFF, sC, 448 * 1024))
            a.e("s_and_b32 s%d, s%d, 1" % (sB, sW))
            a.e("s_lshl_b32 s%d, s%d, 14" % (sA, sB))
            a.e("s_add_u32 s%d, s%d, s%d" % (sWDOFF, sWDOFF, sA))
            a.e("s_lshl_b32 s%d, s%d, 1" % (sA, sT))
            a.e("s_add_u32 s%d, s%d, s%d" % (sA, sA, sB))
            a.e("s_mul_i32 s%d, s%d, 112" % (sA, sA))
            a.e("s_mul_i32 s%d, s%d, 28" % (sB, sC))
            a.e("s_add_u32 s%d, s%d, s%d" % (sA, sA, sB))
            a.e("s_lshl_b32 s%d, s%d, 10" % (sA, sA))
            a.e("s_add_u32 s%d, s%d, 0x%x" % (sHOFF, sA, WS_HF))
        if (A and n % 2 == 1 and n >= 3): kvdma((n + 5) // 2)
        if (not A and n % 2 == 0 and n >= 2): kvdma((n + 6) // 2)
        if 1 <= n <= 3:
            a.e("s_lshl_b32 s%d, s%d, 17" % (sB, sKQ))
            a.e("s_and_b32 s%d, s%d, 1" % (sC, sW))
            a.e("s_lshl_b32 s%d, s%d, 13" % (sC, sC))
            a.e("s_add_u32 s%d, s%d, s%d" % (sB, sB, sC))
            for j in {1: (0, 1, 2), 2: (3, 4, 5), 3: (6, 7)}[n]: wodma(j)
        if n >= 4: wddma(n - 4)
        if n == 9:
            hload(0, vH + 12); hload(1, vH + 0); hload(24, vH + 16); hload(25, vH + 20)
        if n == 10:
            hload(26, vH + 24); hload(27, vH + 28); hload(2, vH + 4)
        if n == 0 and pre0:
            pre0()
            a.stamp(5)
        a.e("s_waitcnt lgkmcnt(0)")
        a.e("s_call_b64 %s, L_Y%s" % (sp(sRET), role))
        if n == 0:
            a.e("s_branch L_X1%s" % role)
            a.lab("L_Y%s" % role)
            if A: a.e("s_barrier")
            for x in Yseg(None): a.e(x)
            if not A: a.e("s_barrier")
            a.e("s_setpc_b64 %s" % sp(sRET))
            a.lab("L_X1%s" % role)
    astamp(a, 7)
    a.e("s_add_u32 s%d, s%d, 0x%x" % (sHOFF, sHOFF, 3 * 1024))
    a.e("s_add_u32 s%d, s%d, 0x%x" % (sWDOFF, sWDOFF, wdrow(7)))
    a.e("s_mov_b32 s%d, 0x%x" % (sM0WD, ((7 + 3) % 8) * 8192))
    u0 = 8 if A else 9
    a.e("s_add_u32 s%d, s%d, 0x%x" % (sKVOFF, sWK, u0 * 8192))
    a.e("s_mov_b32 s%d, 6" % sCNT)
    a.waitvm(["h0", "wd1", "kv6"] if A else ["h0", "wd1"])
    a.e("s_branch L_loop%s_in" % role)
    a.l.append(".p2align 6")
    a.lab("L_loop%s" % role)
    for p in range(4):
        if p == 0 and Opt.diag and Opt.kdiag == 2:
            a.e("s_cmp_lg_u32 s%d, 4" % sCNT)
            a.e("s_cbranch_scc1 L_nst%s" % role)
            astamp(a, 8)
            a.lab("L_nst%s" % role)
        a.e("s_waitcnt vmcnt(5)")
        if p == 3: a.lab("L_loop%s_in" % role)
        for r in kv_reads(p * 4096): a.e(r)
        for r in wd_reads(vWF, vWDA, p * 8192): a.e(r)
        a.e("buffer_load_dwordx4 %s, %s, %s, s%d offen sc1" % (v(vH + 4 * ((p + 3) % 4), 4), v(vL16), srd(SWS), sHOFF))
        a.e("s_add_u32 m0, s%d, s%d" % (sWK, sM0WD))
        a.e("s_add_u32 s%d, s%d, 0x400" % (sHOFF, sHOFF))
        a.e("buffer_load_dwordx4 %s, %s, s%d offen lds" % (v(vWDV), srd(SWD), sWDOFF))
        a.e("s_add_u32 s%d, s%d, 0x%x" % (sWDOFF, sWDOFF, 0x6000 if p & 1 else 0x2000))
        a.e("s_add_u32 s%d, s%d, 0x2000" % (sM0WD, sM0WD))
        a.e("s_and_b32 s%d, s%d, 0xffff" % (sM0WD, sM0WD))
        if (p % 2 == 1) == A:
            a.e("s_and_b32 s%d, s%d, 0x7fff" % (sA, sKVOFF))
            a.e("s_add_u32 m0, s%d, 0x%x" % (sA, L_KV))
            a.e("s_nop 0")
            a.e("buffer_load_dwordx4 %s, %s, s%d offen sc1 lds" % (v(vL16), srd(SKV), sKVOFF))
            a.e("s_add_u32 s%d, s%d, 0x2000" % (sKVOFF, sKVOFF))
        if p == 3:
            a.e("s_sub_u32 s%d, s%d, 1" % (sCNT, sCNT))
            a.e("s_cmp_lg_u32 s%d, 0" % sCNT)
        a.e("s_waitcnt lgkmcnt(0)")
        if A: a.e("s_barrier")
        for x in Yseg(p, toggle=(p == 3)): a.e(x)
        if not A:
            if p == 3: a.e("s_cbranch_scc0 L_tail")
            a.e("s_barrier")
    a.e(("s_cbranch_scc1 L_loop%s" if A else "s_branch L_loop%s") % role)

def transition(a, role):
    A = role == "A"
    if A:
        a.vm = list(a.vmjoin)
        a.lab("L_trA")
    else:
        a.lab("L_join")
        a.e("s_cmp_eq_u32 s%d, 0" % sHI)
        a.e("s_cbranch_scc1 L_trA")
        a.vmjoin = list(a.vm)
    def qfin():
        for i in range(4): a.e("v_cvt_pk_bf16_f32 %s, %s, %s" % (v(vQ + i), v(vAQ + 2 * i), v(vAQ + 2 * i + 1)))
        for i in range(4, 7): a.e("v_mov_b32 %s, 0" % v(vP + i))
        a.e("v_permlane16_swap_b32 %s, %s" % (v(vQ), v(vQ + 2)))
        a.e("v_permlane16_swap_b32 %s, %s" % (v(vQ + 1), v(vQ + 3)))
    pre0 = None
    if A:
        a.e("s_setprio 1")
        a.e("s_cmp_ge_u32 s%d, 14" % sM)
        a.e("s_cbranch_scc1 L_nogA0")
        a.l.append(".p2align 3")
        for ti in range(Opt.gsc): gelu_tile(a, ti, True)
        a.lab("L_nogA0")
        qfin()
        a.waitvm(["k0", "kv0", "kv1"])
        a.e("s_setprio 0")
        a.e("s_barrier")
        a.e(mfma(vS, vK0, vQ, None))
        def pre0():
            a.e("s_cmp_lt_u32 s%d, 14" % sM)
            a.e("s_cbranch_scc1 L_gA1")
            a.e("s_waitcnt vmcnt(0)")
            a.e("s_branch L_nogA1")
            a.l.append(".p2align 3")
            a.lab("L_gA1")
            for ti in range(Opt.gsc, 4): gelu_tile(a, ti)
            a.lab("L_nogA1")
            a.e("s_setprio 1")
    else:
        a.waitvm(["k0", "kv0", "kv1"])
        a.e("s_setprio 1")
        a.e("s_cmp_ge_u32 s%d, 14" % sM)
        a.l.append(".p2align 3")
        a.e("s_barrier")
        a.e("s_cbranch_scc1 L_nogB")
        for ti in range(4): gelu_tile(a, ti)
        a.lab("L_nogB")
        qfin()
        a.e("s_setprio 0")
        a.e("s_nop 0")
        a.e(mfma(vS, vK0, vQ, None))
        a.stamp(5)
    attention(a, role, pre0)
    if A: a.e("s_branch L_tail")

def tail(a):
    a.lab("L_tail")
    a.e("v_cvt_pk_bf16_f32 %s, %s, %s" % (v(vP + 7), v(vE + 2), v(vE + 3)))
    a.stamp(6)
    astamp(a, 9)
    if Opt.diag and Opt.kdiag == 2: a.e("s_waitcnt lgkmcnt(0)")
    a.e("s_setprio 0")
    a.e("s_mov_b32 s%d, 0x%x" % (sC, f2u(2.0 ** -16)))
    a.e(mfma(vO, vV1L, vP + 4, vO))
    a.e("s_mov_b32 s%d, 0x%x" % (sD, f2u(2.0 ** 100)))
    a.e("s_nop 10")
    t = vFR
    a.e("v_rcp_f32 %s, %s" % (v(t + 2), v(vO + 8)))
    a.e("v_pk_mul_f32 %s, %s, 0 op_sel_hi:[1,0]" % (v(t, 2), v(vO, 2)))
    for i in range(1, 4): a.e("v_pk_fma_f32 %s, %s, 0, %s op_sel_hi:[1,0,1]" % (v(t, 2), v(vO + 2 * i, 2), v(t, 2)))
    a.e("v_add_f32 %s, %s, %s" % (v(t), v(t), v(t + 1)))
    a.e("v_add_f32 %s, %s, %s" % (v(t), v(t), v(vO + 8)))
    a.e("v_cmp_nle_f32 vcc, s%d, %s" % (sC, v(t)))
    a.e("v_cmp_nge_f32 %s, s%d, %s" % (sp(sTMPP), sD, v(t)))
    a.e("s_or_b64 vcc, vcc, %s" % sp(sTMPP))
    a.e("s_branch L_fb" if Opt.force_fb else "s_cbranch_scc1 L_fb")
    a.lab("L_fbret")
    a.e("v_mul_f32 %s, %s, %s" % (v(t + 2), v(t + 2), v(vGP)))
    for i in range(4): a.e("v_pk_mul_f32 %s, %s, %s op_sel_hi:[1,0]" % (v(vO + 2 * i, 2), v(vO + 2 * i, 2), v(t + 2, 2)))
    for i in range(4): a.e("v_cvt_pk_bf16_f32 %s, %s, %s" % (v(vP + i), v(vO + 2 * i), v(vO + 2 * i + 1)))
    for i in range(4): a.e("v_min_u32 %s, -2, %s" % (v(vP + i), v(vP + i)))
    a.e("buffer_store_dwordx4 %s, %s, %s, s%d offen sc1" % (v(vP, 4), v(vL16), srd(SWS), sOST))
    HORD = [0, 2, 4, 6, 1, 3, 5, 7] if Opt.hord else list(range(8))
    def oload(j):
        return "buffer_load_dwordx4 %s, %s, %s, s%d offen offset:%d sc1" % (
            v(vS + 4 * j, 4), v(vL16), srd(SWS), sOLD if HORD[j] < 4 else sA, (HORD[j] % 4) * 1024)
    a.oload = oload
    aw = vXA
    ar = vWA
    def addrs(a):
        a.e("v_sub_f32 %s, 1.0, %s" % (v(vGC), v(vGC)))
        a.e("v_add_u32 %s, 0x%x, %s" % (v(vQA), L_WO, v(vWDA)))
        a.e("v_and_b32 v2, 31, v0")
        a.e("v_lshrrev_b32 v3, 5, v0")
        a.e("v_and_b32 v4, 7, v0")
        a.e("v_xor_b32 v3, v3, v4")
        a.e("v_lshlrev_b32 v3, 4, v3")
        a.e("v_lshl_add_u32 v3, v2, 8, v3")
        a.e("s_and_b32 s%d, s%d, 1" % (sB, sW))
        a.e("s_lshl_b32 s%d, s%d, 15" % (sB, sB))
        a.e("s_lshr_b32 s%d, s%d, 1" % (sC, sW))
        a.e("s_lshl_b32 s%d, s%d, 13" % (sD, sC))
        a.e("s_add_u32 s%d, s%d, s%d" % (sD, sD, sB))
        a.e("v_add_u32 %s, s%d, v3" % (v(aw), sD))
        for j in range(1, 4): a.e("v_xor_b32 %s, %d, %s" % (v(aw + j), 32 * j, v(aw)))
        a.e("v_lshrrev_b32 v2, 3, v0")
        a.e("v_lshlrev_b32 v3, 1, v4")
        a.e("v_xor_b32 v3, v3, v2")
        a.e("v_lshlrev_b32 v3, 4, v3")
        a.e("v_lshl_add_u32 v3, v2, 8, v3")
        a.e("s_lshl_b32 s%d, s%d, 11" % (sD, sC))
        a.e("s_add_u32 s%d, s%d, s%d" % (sD, sD, sB))
        a.e("v_add_u32 %s, s%d, v3" % (v(ar), sD))
        a.e("v_xor_b32 %s, 16, %s" % (v(ar + 1), v(ar)))
        a.e("v_lshlrev_b32 v4, 4, v4")
        a.e("v_lshl_add_u32 %s, v2, 10, v4" % v(ar + 2))
        a.e("s_lshl_b32 s%d, s%d, 13" % (sC, sC))
        a.e("s_add_u32 s%d, s%d, s%d" % (sB, sB, sC))
        a.e("s_lshl_b32 s%d, s%d, 16" % (sC, sT))
        a.e("s_add_u32 s%d, s%d, s%d" % (sB, sB, sC))
        a.e("s_lshl_b32 s%d, s%d, 7" % (sC, sCB))
        a.e("s_add_u32 s%d, s%d, s%d" % (sCNT, sB, sC))
        a.e("s_mov_b32 s%d, 0x2000" % sB)
    a.e("s_add_u32 s%d, s%d, 0x1000" % (sA, sOLD))
    a.e("s_cmp_eq_u32 s%d, 0" % sHI)
    a.e("s_cbranch_scc1 L_tl1")
    a.e("s_setprio 1")
    a.e("s_waitcnt vmcnt(1)")
    a.lab("L_tl2")
    a.e("s_barrier")
    ol = Asm(); a.ool2 = ol.l
    ol.lab("L_tl1")
    for j in range(8): ol.e(oload(j))
    ol.e("s_waitcnt vmcnt(9)")
    ol.e("s_branch L_tl2")
    hreg = {21: vH + 0, 22: vH + 4, 23: vH + 8, 24: vH + 16, 25: vH + 20, 26: vH + 24, 27: vH + 28}
    wf = [vFR, vFR + 8, vFR + 16]
    for i in range(2):
        for r in wd_reads(wf[i], vWDA, i * 8192): a.e(r)
    fl = collect(addrs)
    put(a, fl[:8]); fl = fl[8:]
    for i in range(7):
        if i + 2 < 7:
            for r in wd_reads(wf[(i + 2) % 3], vWDA, (i + 2) * 8192): a.e(r)
        else:
            for r in wd_reads(wf[(i + 2) % 3], vQA, HORD[i - 5] * 8192): a.e(r)
        a.e("s_waitcnt lgkmcnt(8)")
        for c in range(2):
            a.e(mfma(vD + 16 * c, wf[i % 3] + 4 * c, hreg[21 + i], vD + 16 * c))
            put(a, fl[:2]); fl = fl[2:]
    put(a, fl)
    a.e("s_cmp_lg_u32 s%d, 0" % sHI)
    a.e("s_cbranch_scc1 L_tl3")
    a.e("s_nop 8")
    for i in range(32): a.e("v_mul_f32 %s, %s, %s" % (v(vD + i), v(vGC), v(vD + i)))
    if Opt.tbar == 0: a.e("s_barrier")
    a.lab("L_tl4")
    ol.lab("L_tl3")
    ol.e("s_setprio 0")
    for j in range(8):
        ol.e(oload(j))
        if j == 0: ol.e("s_nop 6")
        for i in range(4 * j, 4 * j + 4): ol.e("v_mul_f32 %s, %s, %s" % (v(vD + i), v(vGC), v(vD + i)))
    ol.e("s_barrier")
    ol.e("s_branch L_tl4")
    a.stamp(7)
    for j in range(8):
        o = vS + 4 * j
        if j + 2 < 8:
            for r in wd_reads(wf[(j + 3) % 3], vQA, HORD[j + 2] * 8192): a.e(r)
        if j == Opt.tbar and j:
            a.e("s_cmp_lg_u32 s%d, 0" % sHI)
            a.e("s_cbranch_scc1 L_ochk%d" % j)
            a.e("s_barrier")
        a.lab("L_ochk%d" % j)
        a.e("s_waitcnt vmcnt(%d)" % (7 - j))
        a.e("v_max3_u32 v2, %s, %s, %s" % (v(o), v(o + 1), v(o + 2)))
        a.e("v_max_u32 v2, v2, %s" % v(o + 3))
        a.e("v_cmp_eq_u32 vcc, -1, v2")
        a.e("s_cbranch_vccnz L_ore%d" % j)
        a.lab("L_ook%d" % j)
        a.e("s_waitcnt lgkmcnt(%d)" % (4 * min(2, 7 - j)))
        for c in range(2): a.e(mfma(vD + 16 * c, wf[(j + 1) % 3] + 4 * c, o, vD + 16 * c))
    a.stamp(8)
    a.e("s_nop 10")
    for c in range(2):
        for j in range(4):
            a.e("ds_write_b128 %s, %s offset:%d" % (v(aw + j), v(vD + 16 * c + 4 * j, 4), 128 * c))
    a.e("s_waitcnt lgkmcnt(0)")
    a.e("s_barrier")
    for p in range(4):
        for h in range(2): a.e(rd128(vS + 8 * p + 4 * h, ar + h, p * 8192))
    for p in range(1, 4):
        a.e("s_waitcnt lgkmcnt(%d)" % (6 - 2 * p))
        for i in range(4): a.e("v_pk_add_f32 %s, %s, %s" % (v(vS + 2 * i, 2), v(vS + 2 * i, 2), v(vS + 8 * p + 2 * i, 2)))
    for i in range(4): a.e("v_cvt_pk_bf16_f32 %s, %s, %s" % (v(vP + i), v(vS + 2 * i), v(vS + 2 * i + 1)))
    a.e("buffer_store_dwordx4 %s, %s, %s, s%d offen %s" % (v(vP, 4), v(ar + 2), srd(SOUT), sCNT, Opt.out_pol))
    if Opt.probe >= 0:
        a.e("s_waitcnt vmcnt(0)")
        a.stamp(9)
        if Opt.probe != 9:
            a.e("s_cmp_ge_u32 s%d, 14" % sM)
            a.e("s_cbranch_scc%d L_end" % (0 if Opt.probe_l else 1))
        a.e("s_sub_u32 s%d, s%d, s%d" % (sA, sSTAMP + 4, sSTAMP))
        a.e("s_mul_i32 s%d, s%d, %d" % (sA, sA, Opt.probe_mul - 1))
        a.e("s_min_u32 s%d, s%d, 100000" % (sA, sA))
        a.e("s_add_u32 s%d, s%d, 3800" % (sA, sA))
        if Opt.probe_x >= 0:
            a.e("s_and_b32 s0, s2, 7")
            a.e("s_cmp_lg_u32 s0, %d" % Opt.probe_x)
            a.e("s_cbranch_scc1 L_end")
        a.lab("L_probe")
        a.e("s_memrealtime s[0:1]")
        a.e("s_waitcnt lgkmcnt(0)")
        a.e("s_sub_u32 s0, s0, s%d" % (sSTAMP + 4))
        a.e("s_cmp_lt_u32 s0, s%d" % sA)
        a.e("s_cbranch_scc1 L_probe")
    if Opt.pin == 9:
        a.e("s_waitcnt vmcnt(0)")
        a.stamp(9)
    if Opt.diag:
        a.e("s_waitcnt vmcnt(0)")
        a.stamp(9)
        a.e("s_mov_b32 s%d, s%d" % (sSTAMP + 3, sSTAMP))
        a.e("s_mov_b32 s%d, s%d" % (sSTAMP, sB))
        a.e("s_getreg_b32 s%d, hwreg(HW_REG_XCC_ID)" % (sSTAMP + 1))
        for i in range(20): a.e("v_mov_b32 %s, s%d" % (v(vS + i), sSTAMP + i))
        a.e("s_lshl_b32 s%d, s2, 3" % sA)
        a.e("s_add_u32 s%d, s%d, s%d" % (sA, sA, sW))
        a.e("s_lshl_b32 s%d, s%d, 7" % (sA, sA))
        a.e("s_add_u32 s%d, s%d, 0x%x" % (sA, sA, WS_STAMP))
        a.e("s_mov_b64 exec, 1")
        for i in range(5): a.e("buffer_store_dwordx4 %s, off, %s, s%d offset:%d" % (v(vS + 4 * i, 4), srd(SWS), sA, 16 * i))
    a.lab("L_end")
    a.e("s_endpgm")
    a.l += a.ool2
    for j in range(8):
        a.lab("L_ore%d" % j)
        a.e("s_sub_u32 s%d, s%d, 1" % (sB, sB))
        a.e("s_cbranch_scc1 L_ogive%d" % j)
        a.e("s_waitcnt vmcnt(0)")
        for i in range(j, 8): a.e(a.oload(i))
        a.e("s_branch L_ochk%d" % j)
        a.lab("L_ogive%d" % j)
        a.e("s_mov_b32 s%d, 0" % sB)
        a.e("s_branch L_ook%d" % j)

def fallback(a):
    a.lab("L_fb")
    m = vFR + 4
    a.e("v_mov_b32 %s, 0xff800000" % v(m))
    a.e("s_mov_b32 s%d, 0" % sA)
    a.lab("L_fb1")
    a.e("buffer_load_dwordx4 %s, %s, %s, s%d offen sc1" % (v(vKF, 4), v(vL16), srd(SKV), sA))
    a.e("s_waitcnt vmcnt(0)")
    a.e(mfma(vS, vKF, vQ, None))
    a.e("s_add_u32 s%d, s%d, 2048" % (sA, sA))
    a.e("s_nop 11")
    for i in range(8): a.e("v_max3_f32 %s, %s, %s, %s" % (v(m), v(m), v(vS + 2 * i), v(vS + 2 * i + 1)))
    a.e("s_cmp_lt_u32 s%d, 0x20000" % sA)
    a.e("s_cbranch_scc1 L_fb1")
    a.e("v_mov_b32 %s, %s" % (v(m + 1), v(m)))
    a.e("s_nop 1")
    a.e("v_permlane32_swap_b32 %s, %s" % (v(m), v(m + 1)))
    a.e("s_nop 1")
    a.e("v_max_f32 %s, %s, %s" % (v(m), v(m), v(m + 1)))
    for i in range(16): a.e("v_sub_f32 %s, 0, %s" % (v(vS + 16 + i), v(m)))
    for i in range(16): a.e("v_mov_b32 %s, 0" % v(vO + i))
    a.e("s_mov_b32 s%d, 0" % sA)
    a.lab("L_fb2")
    a.e("s_add_u32 s%d, s%d, 0x%x" % (sB, sA, 63 * 2048))
    a.e("s_and_b32 s%d, s%d, 0x1ffff" % (sB, sB))
    a.e("buffer_load_dwordx4 %s, %s, %s, s%d offen sc1" % (v(vKF, 4), v(vL16), srd(SKV), sB))
    a.e("s_add_u32 s%d, s%d, 2048" % (sB, sA))
    a.e("s_and_b32 s%d, s%d, 0x1ffff" % (sB, sB))
    a.e("s_mov_b64 exec, %s" % sp(sVM))
    a.e("buffer_load_dwordx4 %s, %s, %s, s%d offen offset:1024 sc1" % (v(vV, 4), v(vL16), srd(SKV), sA))
    a.e("buffer_load_dwordx4 %s, %s, %s, s%d offen offset:1280 sc1" % (v(vV + 4, 4), v(vL16), srd(SKV), sB))
    a.e("s_mov_b64 exec, -1")
    a.e("s_waitcnt vmcnt(0)")
    a.e(mfma(vS, vKF, vQ, vS + 16))
    a.e("s_add_u32 s%d, s%d, 2048" % (sA, sA))
    a.e("s_nop 11")
    for i in range(16): a.e("v_exp_f32 %s, %s" % (v(vS + i), v(vS + i)))
    for i in range(8): a.e("v_cvt_pk_bf16_f32 %s, %s, %s" % (v(vP + i), v(vS + 2 * i), v(vS + 2 * i + 1)))
    a.e("s_nop 1")
    a.e(mfma(vO, vV, vP, vO))
    a.e(mfma(vO, vV + 4, vP + 4, vO))
    a.e("s_cmp_lt_u32 s%d, 0x20000" % sA)
    a.e("s_cbranch_scc1 L_fb2")
    a.e("s_nop 11")
    a.e("v_rcp_f32 %s, %s" % (v(vFR + 2), v(vO + 8)))
    a.e("s_branch L_fbret")

def build():
    a = Asm()
    prologue(a)
    phase1_F(a)
    transition(a, "B")
    tail(a)
    a.l += a.ool
    transition(a, "A")
    phase1_L(a)
    fallback(a)
    a.lab("L_codeend")
    il = a.l.index("L_light:")
    for i, x in enumerate(a.l):
        if x.endswith(" lds") and "sc1" not in x and " nt" not in x:
            if (Opt.ntx & 4 and (srd(SWD) in x or srd(SWO) in x)) or (Opt.ntx & 8 and i > il):
                a.l[i] = x[:-4] + " nt lds"
    head = open("cdna_kernels/%s.s.ref" % NAME).read().split("\n")
    hdr = [l for l in head if l.startswith(";") and "@launch" not in l and "Override" not in l and "grid=" not in l]
    out = hdr + ["; @launch grid=(256,1,1) block=(512,1,1) lds=%d" % LDS_BYTES,
                 '.amdgcn_target "amdgcn-amd-amdhsa--gfx950"', ".text", ".globl %s_kernel" % NAME, ".p2align 8",
                 ".type %s_kernel,@function" % NAME,
                 ".set CODE_PF_MAX, L_codeend - L_nopf - 4" if Opt.code_pf else "",
                 "%s_kernel:" % NAME]
    out += ["; mapmode %d" % Opt.mapmode, "; xrot %d" % Opt.xrot]
    out += a.l
    out += ['.section .rodata,"a"', ".p2align 6", ".amdhsa_kernel %s_kernel" % NAME,
            "  .amdhsa_next_free_vgpr %d" % NV, "  .amdhsa_next_free_sgpr 102", "  .amdhsa_accum_offset 256",
            "  .amdhsa_group_segment_fixed_size 0", "  .amdhsa_kernarg_size 104", "  .amdhsa_user_sgpr_count 2",
            "  .amdhsa_user_sgpr_kernarg_segment_ptr 1", "  .amdhsa_system_sgpr_workgroup_id_x 1", ".end_amdhsa_kernel", ""]
    return "\n".join(out)

if __name__ == "__main__":
    path = sys.argv[1]
    for kv in sys.argv[2:]:
        k, val = kv.split("=")
        cur = getattr(Opt, k)
        setattr(Opt, k, val if isinstance(cur, str) else type(cur)(int(val)))
    open(path, "w").write(build())
```

```python
import sys, struct, math

NAME = "gated_mix__grouped_kv_mqa__geglu_ffn__prompt"

class Opt:
    diag = 0
    mapmode = 1
    force_fb = False
    out_pol = ""
    code_pf = True
    xrot = 0
    pregap = 0
    tlb = 0
    olate = 1
    hrot = 0
    tbar = 0
    hord = 1
    cmap = 1
    kqx = 0
    oearly = 8
    conc = 1
    ghx = 1
    qa = "088888"
    qb = "577777"
    npre = 8
    stagger = 1
    rper = 2
    dma1 = 17
    kprio = 0
    dma0 = 8
    npd = 4
    kdiag = 0
    fillpre = 0
    fillper = 4
    gsc = 2
    sched = 2
    xmask = 1
    ntx = 0
    touch = 2
    rotg = 0
    rotm = 0
    startbar = 1
    pvz = 1
    pin = -1
    pin_ns = 60000
    probe = -1
    probe_x = -1
    probe_mul = 10
    probe_l = 0

def f2u(x): return struct.unpack("<I", struct.pack("<f", x))[0]

WS_KV = 0
WS_G = 128 * 1024
WS_HFLAG = 192 * 1024
WS_OF = 1 << 20
WS_HF = 4 << 20
WS_STAMP = 12 << 20
WS_SIZE = 16 << 20
K1 = 1024
L_G, L_U, L_X, L_WQ = 0, 48 * K1, 96 * K1, 144 * K1
L_QX = 32 * K1
L_WD, L_WO, L_KV = 0, 64 * K1, 128 * K1
LL_X, LL_W, LL_GATE, LL_WQ = 0, 128 * K1, 144 * K1, 128 * K1
LDS_BYTES = 160 * K1

SX, SWG, SWU, SWQ, SWS, SWD, SWO, SOUT, SDBG, SWKV, SGATE, SKV = 4, 8, 12, 16, 20, 24, 28, 32, 36, 40, 44, 64
SWV = 72
sTMPP = 48
sW, sHI, sLO, sG, sM, sT, sCB = 50, 51, 52, 53, 54, 55, 56
sWK = 57
sWH = 58
sK64 = 59
sVM = 60
sRET = 62
sA, sB, sC, sD = 68, 69, 70, 71
sOFFW, sOFFQ, sCH, sXP = 72, 73, 74, 75
sHOFF, sWDOFF, sKVOFF, sM0WD, sM0KV, sCNT = 72, 73, 74, 75, 76, 77
sOST, sOLD, sHST = 78, 79, 80
sHST2 = 3
sRX, sRW, sM0B = 40, 41, 42
sKQ = 76
sHP = 81
sSTAMP = 82

def srd(b): return "s[%d:%d]" % (b, b + 3)
def sp(b): return "s[%d:%d]" % (b, b + 1)
def v(b, n=1): return "v%d" % b if n == 1 else "v[%d:%d]" % (b, b + n - 1)

vL16 = 1
vT0, vT1, vT2, vT3 = 2, 3, 4, 5
vGP, vGC = 6, 7
vKVA = 8
vWDA = 9
vWDV = 10
vONE = 11
vZERO = 12
vFLA = 13
vPOLL = 14
vGA = 15
vQ = 16
vK0 = 20
vV1L = 24
vE = 28
vP = 32
vV = 40
vO = 56
vD = 72
vACC = 104
vS = 104
vH = 136
vAQ = vP
vF1 = 168
vKF = 168
vWF = 176
vFR = 184
vLX = 224
vXA = 240
vWA = 244
vQA = 248
vDX, vDG, vDQ = 249, 250, 251
vC0 = 252
vHA = 254
NV = 256

class Asm:
    def __init__(self):
        self.l = []
        self.vm = []
        self.nstamp = 0
    def e(self, s):
        for x in s.split("\n"):
            x = x.strip()
            if x: self.l.append("    " + x)
    def lab(self, s): self.l.append(s + ":")
    def vmop(self, s, tag):
        self.e(s); self.vm.append(tag)
    def vmn(self, tags):
        if isinstance(tags, str): tags = [tags]
        last = -1
        for i, t in enumerate(self.vm):
            if t in tags: last = i
        return None if last < 0 else len(self.vm) - 1 - last
    def waitvm(self, tags, lgkm=False):
        n = self.vmn(tags)
        if n is None:
            if lgkm: self.e("s_waitcnt lgkmcnt(0)")
            return
        assert n < 64
        self.e("s_waitcnt vmcnt(%d)%s" % (n, " lgkmcnt(0)" if lgkm else ""))
        self.vm = self.vm[len(self.vm) - n:] if n else []
    def wait0(self, lgkm=False):
        self.e("s_waitcnt vmcnt(0)%s" % (" lgkmcnt(0)" if lgkm else "")); self.vm = []
    def stamp(self, i, real=False):
        if Opt.probe == i:
            self.e("s_waitcnt lgkmcnt(0)")
            self.e("s_memrealtime %s" % sp(sSTAMP + 4))
            self.e("s_waitcnt lgkmcnt(0)")
        if Opt.pin == i:
            self.nstamp += 1
            self.e("s_waitcnt lgkmcnt(0)")
            self.e("s_cselect_b32 s%d, 1, 0" % (sSTAMP + 5))
            self.lab("L_pin%d" % self.nstamp)
            self.e("s_memrealtime s[0:1]")
            self.e("s_waitcnt lgkmcnt(0)")
            self.e("s_sub_u32 s0, s0, s%d" % sSTAMP)
            self.e("s_cmp_lt_u32 s0, %d" % (Opt.pin_ns // 10))
            self.e("s_cbranch_scc1 L_pin%d" % self.nstamp)
            self.e("s_cmp_lg_u32 s%d, 0" % (sSTAMP + 5))
        if Opt.diag and not Opt.kdiag and (Opt.diag == 1 or i == 9):
            self.e("s_waitcnt lgkmcnt(0)")
            self.e("s_memtime %s" % sp(sSTAMP + 2 * i))
            self.e("s_memrealtime s[0:1]")
            self.e("s_waitcnt lgkmcnt(0)")
            self.e("s_mov_b32 s%d, s0" % (sSTAMP + 2 * i + 1))

def astamp(a, i):
    if Opt.diag and Opt.kdiag == 2: a.e("s_memtime %s" % sp(sSTAMP + 2 * i))

def kstamp(a, i):
    if Opt.probe == 18 + i: a.e("s_memrealtime %s" % sp(sSTAMP + 4))
    if Opt.diag and Opt.kdiag == 1: a.e("s_memtime %s" % sp(sSTAMP + 2 * i))

def mfma(d, a, b, c):
    return "v_mfma_f32_32x32x16_bf16 %s, %s, %s, %s" % (v(d, 16), v(a, 4), v(b, 4), "0" if c is None else v(c, 16))
def mfma16(d, a, b, c):
    return "v_mfma_f32_16x16x32_bf16 %s, %s, %s, %s" % (v(d, 4), v(a, 4), v(b, 4), "0" if c is None else v(c, 4))
def rd128(d, a, off):
    assert 0 <= off < 65536
    return "ds_read_b128 %s, %s offset:%d" % (v(d, 4), v(a), off)
def rdtr(d, a, off):
    assert 0 <= off < 65536
    return "ds_read_b64_tr_b16 %s, %s offset:%d" % (v(d, 2), v(a), off)

def interleave(mf, fill, per=2):
    out = []
    fill = list(fill)
    for i, m in enumerate(mf):
        out.append(m)
        if i < len(mf) - 1:
            out += fill[:per]; fill = fill[per:]
    return out + fill

def srd_words(a, regs):
    sizes = {SX: 2048 * 1024, SWG: 512 * 3584, SWU: 512 * 3584, SWQ: 512 * 1024, SWS: WS_SIZE, SWKV: 16384, SWV: 16384,
             SGATE: 1024, SWD: 1792 * 1024, SWO: 512 * 1024, SOUT: 2048 * 1024, SDBG: 256, SKV: 128 * 1024}
    for reg in regs:
        a.e("s_mov_b32 s%d, 0x%x" % (reg + 2, sizes[reg]))
        a.e("s_mov_b32 s%d, 0x20000" % (reg + 3))

def prologue(a):
    a.e("s_cmp_ge_u32 s2, 256")
    a.e("s_cbranch_scc1 L_end")
    for reg, off in ((SX, 0), (SWG, 48), (SWU, 56), (SWQ, 8), (SWS, 96), (SWKV, 16), (sTMPP, 24), (SGATE, 72),
                     (SWD, 64), (SWO, 32), (SOUT, 80), (SDBG, 88), (SKV, 96)):
        a.e("s_load_dwordx2 %s, s[0:1], %d" % (sp(reg), off))
    if Opt.probe >= 0: a.e("s_memrealtime %s" % sp(sSTAMP + 4))
    if Opt.diag or Opt.pin >= 0 or Opt.probe >= 0:
        a.e("s_memrealtime %s" % sp(sSTAMP))
        a.e("s_memtime %s" % sp(sSTAMP + 2))
    a.e("v_lshrrev_b32 v2, 6, v0")
    a.e("v_and_b32 v0, 63, v0")
    a.e("v_readfirstlane_b32 s%d, v2" % sW)
    a.e("v_lshlrev_b32 %s, 4, v0" % v(vL16))
    srd_words(a, [SX, SWQ])
    a.e("s_and_b32 s%d, s2, 7" % sA)
    a.e("s_lshr_b32 s%d, s2, 3" % sB)
    if Opt.cmap:
        a.e("s_andn2_b32 s%d, 1, s%d" % (sT, sA))
        a.e("s_lshl_b32 s%d, s%d, 2" % (sT, sT))
        a.e("s_lshr_b32 s%d, s%d, 1" % (sD, sA))
        a.e("s_add_u32 s%d, s%d, s%d" % (sT, sT, sD))
        a.e("s_lshl_b32 s%d, s%d, 2" % (sT, sT))
    else:
        a.e("s_lshl_b32 s%d, s%d, 2" % (sT, sA))
    a.e("s_and_b32 s%d, s%d, 3" % (sD, sB))
    a.e("s_add_u32 s%d, s%d, s%d" % (sT, sT, sD))
    a.e("s_lshr_b32 s%d, s%d, 2" % (sCB, sB))
    if Opt.xrot:
        a.e("s_add_u32 s%d, s%d, %d" % (sA, sA, Opt.xrot))
        a.e("s_and_b32 s%d, s%d, 7" % (sA, sA))
    if Opt.mapmode == 0:
        a.e("s_lshl_b32 s%d, s%d, 1" % (sG, sA))
        a.e("s_and_b32 s%d, s%d, 1" % (sC, sB))
        a.e("s_add_u32 s%d, s%d, s%d" % (sG, sG, sC))
        a.e("s_lshr_b32 s%d, s%d, 1" % (sM, sB))
        a.e("s_mov_b32 s%d, s%d" % (sHP, sM))
    elif Opt.mapmode in (1, 3):
        a.e("s_and_b32 s%d, s%d, 1" % (sG, sA))
        a.e("s_lshl_b32 s%d, s%d, 3" % (sG, sG))
        a.e("s_and_b32 s%d, s%d, 7" % (sC, sB))
        a.e("s_add_u32 s%d, s%d, s%d" % (sG, sG, sC))
        a.e("s_lshr_b32 s%d, s%d, 1" % (sA, sA))
        a.e("s_lshl_b32 s%d, s%d, 2" % (sHP, sA))
        a.e("s_lshr_b32 s%d, s%d, 3" % (sC, sB))
        a.e("s_add_u32 s%d, s%d, s%d" % (sHP, sHP, sC))
        if Opt.mapmode == 1:
            a.e("s_mov_b32 s%d, s%d" % (sM, sHP))
        else:
            a.e("s_sub_u32 s%d, s%d, s%d" % (sM, sHP, sA))
            a.e("s_lshr_b32 s%d, s%d, 1" % (sB, sB))
            a.e("s_and_b32 s%d, s%d, 2" % (sB, sB))
            a.e("s_add_u32 s%d, s%d, s%d" % (sB, sB, sA))
            a.e("s_and_b32 s%d, s%d, 3" % (sB, sB))
            a.e("s_add_u32 s%d, s%d, 12" % (sB, sB))
            a.e("s_cmp_eq_u32 s%d, 3" % sC)
            a.e("s_cselect_b32 s%d, s%d, s%d" % (sM, sB, sM))
    else:
        a.e("s_and_b32 s%d, s%d, 3" % (sG, sA))
        a.e("s_lshl_b32 s%d, s%d, 2" % (sG, sG))
        a.e("s_add_u32 s%d, s%d, s%d" % (sG, sG, sD))
        a.e("s_lshr_b32 s%d, s%d, 2" % (sM, sA))
        a.e("s_lshl_b32 s%d, s%d, 3" % (sM, sM))
        a.e("s_add_u32 s%d, s%d, s%d" % (sM, sM, sCB))
        a.e("s_mov_b32 s%d, s%d" % (sHP, sM))
    a.e("s_lshl_b32 s%d, s%d, 10" % (sWK, sW))
    a.e("s_mov_b32 s%d, 0x10000" % sK64)
    if Opt.code_pf:
        a.e("s_cmp_lg_u32 s%d, s%d" % (sD, sW))
        a.e("s_cbranch_scc1 L_nopf")
        a.e("s_getpc_b64 %s" % sp(sRET))
        a.e("s_lshl_b32 s%d, s%d, 13" % (sD, sW))
        a.e("v_lshl_add_u32 v2, v0, 7, s%d" % sD)
        a.e("v_min_u32 v2, CODE_PF_MAX, v2")
        a.e("global_load_dword %s, v2, %s" % (v(vPOLL), sp(sRET)))
        a.lab("L_nopf")
    a.e("s_lshl_b32 s%d, s%d, 2" % (sA, sW))
    a.e("v_lshrrev_b32 v2, 4, v0")
    a.e("v_add_u32 v3, s%d, v2" % sA)
    a.e("v_xor_b32 v3, v3, v0")
    a.e("v_and_b32 v3, 7, v3")
    a.e("v_lshlrev_b32 v3, 4, v3")
    a.e("v_lshrrev_b32 v4, 3, v0")
    a.e("v_lshl_add_u32 v3, v4, 10, v3")
    a.e("s_lshl_b32 s%d, s%d, 17" % (sA, sG))
    a.e("s_lshl_b32 s%d, s%d, 13" % (sB, sW))
    a.e("s_add_u32 s%d, s%d, s%d" % (sA, sA, sB))
    a.e("v_add_u32 %s, s%d, v3" % (v(vDX), sA))
    a.e("s_cmp_ge_u32 s%d, 14" % sM)
    a.e("s_cbranch_scc1 L_light")

def setup_rd(a):
    a.e("s_lshr_b32 s%d, s%d, 2" % (sHI, sW))
    a.e("s_and_b32 s%d, s%d, 3" % (sLO, sW))
    a.e("v_and_b32 v2, 15, v0")
    a.e("v_lshrrev_b32 v3, 4, v0")
    a.e("v_bfe_u32 v4, v0, 1, 3")
    a.e("v_xor_b32 v4, v4, v3")
    a.e("v_lshlrev_b32 v4, 4, v4")
    a.e("v_lshl_add_u32 %s, v2, 7, v4" % v(vXA))
    a.e("v_bfe_u32 v2, v0, 2, 2")
    a.e("v_and_b32 v4, 3, v0")
    a.e("v_lshl_add_u32 %s, v3, 3, v2" % v(vQA))
    a.e("v_lshlrev_b32 %s, 6, %s" % (v(vQA), v(vQA)))
    a.e("v_xor_b32 v5, s%d, v3" % sHI)
    a.e("v_and_b32 v5, 1, v5")
    a.e("v_lshl_add_u32 %s, v5, 5, %s" % (v(vQA), v(vQA)))
    a.e("v_lshl_add_u32 %s, v4, 3, %s" % (v(vQA), v(vQA)))

def setup_oclr(a):
    srd_words(a, [SWS, SKV, SDBG])
    a.e("s_mov_b32 s%d, 0xffff" % sVM)
    a.e("s_mov_b32 s%d, 0xffff" % (sVM + 1))
    a.e("s_lshl_b32 s%d, s%d, 2" % (sA, sG))
    a.e("s_add_u32 s%d, s%d, s%d" % (sA, sA, sLO))
    a.e("s_lshl_b32 s%d, s%d, 5" % (sB, sA))
    a.e("s_lshl_b32 s%d, s%d, 1" % (sC, sHP))
    a.e("s_add_u32 s%d, s%d, s%d" % (sB, sB, sC))
    a.e("s_add_u32 s%d, s%d, s%d" % (sB, sB, sHI))
    a.e("s_lshl_b32 s%d, s%d, 10" % (sB, sB))
    a.e("s_add_u32 s%d, s%d, 0x%x" % (sOST, sB, WS_OF))
    for i in range(4): a.e("v_mov_b32 %s, -1" % v(vQ + i))
    a.vmop("buffer_store_dwordx4 %s, %s, %s, s%d offen sc1" % (v(vQ, 4), v(vL16), srd(SWS), sOST), "oclr")
    a.e("v_mov_b32 %s, 1" % v(vONE))
    a.e("v_mov_b32 %s, 0" % v(vZERO))
    a.e("v_and_b32 %s, 31, v0" % v(vGA))
    a.e("v_lshlrev_b32 %s, 2, %s" % (v(vGA), v(vGA)))

def collect(fn):
    t = Asm(); t.marks = {}
    def vmop(s_, tag):
        t.e(s_); t.marks[len(t.l) - 1] = tag
    t.vmop = vmop
    fn(t)
    return [(x, t.marks.get(i)) for i, x in enumerate(t.l)]
def put(a, items):
    for x, tag in items:
        if tag: a.vmop(x, tag)
        else: a.e(x)

def setup_attn(a):
    srd_words(a, [SWD, SWO, SOUT])
    a.e("s_lshl_b32 s%d, s%d, 2" % (sA, sG))
    a.e("s_add_u32 s%d, s%d, s%d" % (sA, sA, sLO))
    a.e("s_mul_i32 s%d, s%d, 112" % (sB, sA))
    a.e("s_lshl_b32 s%d, s%d, 3" % (sC, sM))
    a.e("s_add_u32 s%d, s%d, s%d" % (sB, sB, sC))
    a.e("s_lshl_b32 s%d, s%d, 2" % (sC, sHI))
    a.e("s_add_u32 s%d, s%d, s%d" % (sB, sB, sC))
    a.e("s_and_b32 s%d, s%d, 1" % (sC, sLO))
    a.e("s_lshl_b32 s%d, s%d, 1" % (sC, sC))
    a.e("s_add_u32 s%d, s%d, s%d" % (sB, sB, sC))
    a.e("s_lshl_b32 s%d, s%d, 10" % (sB, sB))
    a.e("s_add_u32 s%d, s%d, 0x%x" % (sHST, sB, WS_HF))
    a.e("s_mul_i32 s%d, s%d, %d" % (sC, sC, 112 * 1024))
    a.e("s_sub_u32 s%d, %d, s%d" % (sC, 112 * 1024, sC))
    a.e("s_add_u32 s%d, s%d, s%d" % (sHST2, sHST, sC))
    a.e("v_bfe_u32 v2, v0, 2, 2")
    a.e("v_lshrrev_b32 v3, 5, v0")
    a.e("v_lshl_add_u32 v2, v3, 2, v2")
    a.e("v_lshlrev_b32 v2, 6, v2")
    a.e("v_bfe_u32 v3, v0, 4, 1")
    a.e("v_lshl_add_u32 v2, v3, 5, v2")
    a.e("v_and_b32 v3, 3, v0")
    a.e("v_lshl_add_u32 v2, v3, 3, v2")
    a.e("s_lshr_b32 s%d, s%d, 1" % (sA, sW))
    a.e("s_lshl_b32 s%d, s%d, 11" % (sA, sA))
    a.e("v_add_u32 %s, s%d, v2" % (v(vWDA), sA))
    a.e("v_add_u32 %s, 0x%x, %s" % (v(vKVA), L_KV, v(vL16)))
    a.e("v_bfe_u32 v2, v0, 2, 3")
    a.e("v_lshlrev_b32 v2, 10, v2")
    a.e("v_lshrrev_b32 v3, 5, v0")
    a.e("v_lshl_add_u32 v2, v3, 6, v2")
    a.e("v_and_b32 v3, 3, v0")
    a.e("v_lshl_add_u32 v2, v3, 4, v2")
    a.e("s_lshl_b32 s%d, s%d, 7" % (sB, sCB))
    a.e("v_add_u32 %s, s%d, v2" % (v(vWDV), sB))
    a.e("v_min_u32 v2, 13, v0")
    a.e("v_lshlrev_b32 v2, 7, v2")
    a.e("s_lshr_b32 s%d, s%d, 1" % (sA, sT))
    a.e("s_lshl_b32 s%d, s%d, 11" % (sA, sA))
    a.e("s_add_u32 s%d, s%d, 0x%x" % (sA, sA, WS_HFLAG))
    a.e("v_add_u32 %s, s%d, v2" % (v(vFLA), sA))
    a.e("s_lshl_b32 s%d, s%d, 1" % (sA, sT))
    a.e("s_and_b32 s%d, s%d, 1" % (sB, sW))
    a.e("s_add_u32 s%d, s%d, s%d" % (sA, sA, sB))
    a.e("s_lshl_b32 s%d, s%d, 15" % (sB, sA))
    a.e("s_lshr_b32 s%d, s%d, 1" % (sKQ, sW))
    if Opt.kqx:
        a.e("s_lshl_b32 s%d, s%d, 1" % (sC, sCB))
        a.e("s_and_b32 s%d, s%d, 2" % (sC, sC))
        a.e("s_xor_b32 s%d, s%d, s%d" % (sKQ, sKQ, sC))
    a.e("s_lshl_b32 s%d, s%d, 13" % (sC, sKQ))
    a.e("s_add_u32 s%d, s%d, s%d" % (sB, sB, sC))
    a.e("s_add_u32 s%d, s%d, 0x%x" % (sOLD, sB, WS_OF))
    if Opt.pvz:
        a.e("s_mov_b32 s%d, 0x110000" % sA)
        a.e("s_mov_b32 s%d, 0x110000" % sB)
        a.e("v_mov_b32 v3, 0x3f803f80")
        a.e("v_cndmask_b32 v2, 0, v3, %s" % sp(sA))
    else:
        a.e("v_mov_b32 v2, 0x3f803f80")
    for i in range(16): a.e("v_mov_b32 %s, v2" % v(vV + i))
    for i in range(4): a.e("v_mov_b32 %s, v2" % v(vV1L + i))
    for i in range(4): a.e("v_mov_b32 %s, 0" % v(vE + i))
    a.e("v_lshrrev_b32 v2, 4, v0")
    a.e("v_lshl_add_u32 %s, v2, 8, %s" % (v(vHA), v(vL16)))
    for i in range(16): a.e("v_mov_b32 %s, 0" % v(vO + i))
    for i in range(32): a.e("v_mov_b32 %s, 0" % v(vD + i))
    c0 = -2.0 * math.sqrt(2.0 / math.pi) * math.log2(math.e)
    a.e("v_mov_b32 %s, 0x%x" % (v(vC0), f2u(c0)))
    a.e("v_mov_b32 %s, 0x%x" % (v(vC0 + 1), f2u(c0 * 0.044715)))

def kv_first_loads(a):
    it = []
    for u in range(2):
        it.append(("s_add_u32 m0, s%d, 0x%x\ns_add_u32 s%d, s%d, 0x%x\nbuffer_load_dwordx4 %s, %s, s%d offen sc1 lds"
                   % (sWK, L_KV + u * 8192, sA, sWK, u * 8192, v(vL16), srd(SKV), sA), "kv%d" % u))
    it.append(("s_mov_b32 s%d, 0x%x\nbuffer_load_dwordx4 %s, %s, %s, s%d offen sc1"
               % (sA, 63 * 2048, v(vK0, 4), v(vL16), srd(SKV), sA), "k0"))
    it.append(("s_mov_b64 exec, %s\nbuffer_load_dwordx4 %s, %s, %s, 0 offen offset:%d sc1\ns_mov_b64 exec, -1"
               % (sp(sVM), v(vV1L, 4), v(vL16), srd(SKV), 1024 + 256), "k0"))
    it.append(("s_lshl_b32 s%d, s%d, 2\ns_add_u32 s%d, s%d, s%d\ns_lshl_b32 s%d, s%d, 7\ns_add_u32 s%d, s%d, 0x%x\n"
               "buffer_load_dword %s, %s, %s, s%d offen sc1"
               % (sA, sG, sA, sA, sLO, sA, sA, sA, sA, WS_G, v(vGP), v(vGA), srd(SWS), sA), "k0"))
    it.append(("s_lshl_b32 s%d, s%d, 1\ns_and_b32 s%d, s%d, 1\ns_add_u32 s%d, s%d, s%d\ns_lshl_b32 s%d, s%d, 7\ns_add_u32 s%d, s%d, 0x%x\n"
               "buffer_load_dword %s, %s, %s, s%d offen sc1"
               % (sA, sT, sB, sW, sA, sA, sB, sA, sA, sA, sA, WS_G, v(vGC), v(vGA), srd(SWS), sA), "k0"))
    return it

def spin_counter(a, name, first_loaded):
    a.e("s_cmp_lg_u32 s%d, 0" % sW)
    a.e("s_cbranch_scc1 L_%s_done" % name)
    a.e("s_mov_b32 s%d, 0x4000" % sB)
    if first_loaded: a.e("s_branch L_%s_chk" % name)
    a.lab("L_%s_re" % name)
    a.e("buffer_load_dword %s, off, %s, 0 sc1" % (v(vPOLL), srd(SDBG)))
    a.e("s_waitcnt vmcnt(0)")
    a.lab("L_%s_chk" % name)
    a.e("v_readfirstlane_b32 s%d, %s" % (sA, v(vPOLL)))
    a.e("s_cmp_ge_u32 s%d, 32" % sA)
    a.e("s_cbranch_scc1 L_%s_done" % name)
    a.e("s_sleep 4")
    a.e("s_sub_u32 s%d, s%d, 1" % (sB, sB))
    a.e("s_cmp_lg_u32 s%d, 0" % sB)
    a.e("s_cbranch_scc1 L_%s_re" % name)
    a.lab("L_%s_done" % name)

def phase1_F(a):
    SCHED = {1: ["01423567", "10253467", "23016457", "32104756"],
             2: ["02134657", "01324576", "10243567", "10235467"],
             3: ["01324657", "01243576", "12035467", "20134567"],
             5: ["01243567", "10325467", "23014657", "32104576"],
             4: ["02143657", "10325476", "02143657", "10325476"]}
    tabs = SCHED[Opt.sched] if Opt.sched else ["".join(str(c ^ (p & Opt.xmask)) for c in range(8)) for p in range(4)]
    for t_ in tabs: assert sorted(t_) == list("01234567")
    num = [int(t_[::-1], 16) for t_ in tabs]
    a.e("s_add_u32 s%d, s%d, s%d" % (sA, sG, sHP))
    a.e("s_mov_b32 s%d, 0x%x" % (sXP, num[0]))
    a.e("s_mov_b32 s%d, 0x%x" % (sB, num[2]))
    a.e("s_bitcmp1_b32 s%d, 0" % sA)
    a.e("s_cselect_b32 s%d, 0x%x, s%d" % (sXP, num[1], sXP))
    a.e("s_cselect_b32 s%d, 0x%x, s%d" % (sB, num[3], sB))
    a.e("s_bitcmp1_b32 s%d, 1" % sA)
    a.e("s_cselect_b32 s%d, s%d, s%d" % (sXP, sB, sXP))
    if Opt.ghx:
        a.e("s_bitcmp1_b32 s%d, 3" % sG)
        a.e("s_cselect_b32 s%d, 0x44444444, 0" % sB)
        a.e("s_xor_b32 s%d, s%d, s%d" % (sXP, sXP, sB))
    a.e("s_and_b32 s%d, s%d, 3" % (sLO, sW))
    a.e("s_lshl_b32 s%d, s%d, 10" % (sWH, sLO))
    if Opt.hrot:
        a.e("s_lshl_b32 s%d, s%d, %d" % (sOFFQ, sA, 13 - (Opt.hrot & 1)))
        a.e("s_and_b32 s%d, s%d, 0x2000" % (sOFFQ, sOFFQ))
        a.e("s_add_u32 s%d, s%d, s%d" % (sM0B, sWH, sOFFQ))
        a.e("s_sub_u32 s%d, s%d, s%d" % (sM0B + 1, sWH, sOFFQ))

    def wvoff(a):
        a.e("s_lshl_b32 s%d, s%d, 1" % (sA, sLO))
        a.e("s_and_b32 s%d, s%d, 4" % (sA, sA))
        a.e("v_lshrrev_b32 v2, 4, v0")
        a.e("v_bfe_u32 v3, v0, 1, 3")
        a.e("v_xor_b32 v3, v3, v2")
        a.e("v_xor_b32 v3, s%d, v3" % sA)
        a.e("v_lshlrev_b32 v3, 5, v3")
        a.e("v_and_b32 v4, 1, v0")
        a.e("v_lshl_add_u32 v3, v4, 4, v3")
        a.e("v_mul_u32_u24 v5, 3584, v2")
        a.e("s_mul_i32 s%d, s%d, %d" % (sA, sLO, 4 * 3584))
        a.e("s_lshl_b32 s%d, s%d, 8" % (sB, sM))
        a.e("s_add_u32 s%d, s%d, s%d" % (sA, sA, sB))
        a.e("v_add3_u32 %s, v3, v5, s%d" % (v(vDG), sA))
    def qvoff(a):
        a.e("v_lshrrev_b32 v3, 2, v0")
        a.e("v_lshlrev_b32 v3, 10, v3")
        a.e("v_bfe_u32 v4, v0, 4, 2")
        a.e("v_and_b32 v4, 2, v4")
        a.e("v_xor_b32 v4, v4, v0")
        a.e("v_and_b32 v4, 3, v4")
        a.e("v_lshl_add_u32 v3, v4, 4, v3")
        a.e("s_lshl_b32 s%d, s%d, 14" % (sA, sLO))
        a.e("s_lshl_b32 s%d, s%d, 6" % (sB, sHP))
        a.e("s_add_u32 s%d, s%d, s%d" % (sA, sA, sB))
        a.e("v_add_u32 %s, s%d, v3" % (v(vDQ), sA))

    if Opt.hrot:
        ORDER = [("q", 0)] + [(t_, 2 * h_ + j) for h_ in range(2) for t_, j in (("x", 0), ("x", 1), ("g", 0), ("u", 0), ("g", 1), ("u", 1))]
    else:
        ORDER = [("q", 0)] + [("x", j) for j in range(4)] + [(t_, j) for j in range(4) for t_ in "gu"]
    def block(items):
        out = []; lastc = None; lastw = None
        for c, kind, j in items:
            s = c % 3; pre = []
            if c != lastc:
                pre.append("s_bfe_u32 s%d, s%d, 0x%x" % (sCH, sXP, 0x30000 + 4 * c)); lastc = c; lastw = None
            fam = "w" if kind in "gu" else kind
            rot = Opt.hrot and fam != "q"
            if lastw is None or lastw[0] != fam or (rot and lastw[1] >> 1 != j >> 1):
                pre.append({"q": "s_lshl_b32 s%d, s%d, 16" % (sOFFW, sCH), "x": "s_lshl_b32 s%d, s%d, 7" % (sOFFW, sCH),
                            "w": "s_mul_i32 s%d, s%d, %d" % (sOFFW, sCH, 64 * 3584)}[fam])
                if rot: pre.append("s_%s_u32 s%d, s%d, s%d" % ("sub" if j >> 1 else "add", sOFFW, sOFFW, sRX if fam == "x" else sRW))
                lastw = (fam, 0)
            if lastw[1] != j:
                pre.append("s_add_u32 s%d, s%d, 0x%x" % (sOFFW, sOFFW, (j - lastw[1]) * (0x8000 if fam == "x" else 16 * 3584)))
                lastw = (fam, j)
            m0c, vo, rs = {"q": (L_WQ + s * 4096, vDQ, SWQ), "x": (L_X + s * 16384 + j * 4096, vDX, SX),
                           "g": (L_G + s * 16384 + j * 4096, vDG, SWG), "u": (L_U + s * 16384 + j * 4096, vDG, SWU)}[kind]
            nt = " nt" if Opt.ntx & (1 if rs == SX else 2) else ""
            out.append(("s_add_u32 m0, s%d, 0x%x\n%s\nbuffer_load_dwordx4 %s, %s, s%d offen%s lds"
                        % ((sM0B + (j >> 1)) if rot else sWH, m0c, "\n".join(pre) or "s_nop 0", v(vo), srd(rs), sOFFW, nt), "c%d" % c))
        return out
    def part(c, role): return [(c, k_, j) for k_, j in ORDER if (k_ in "gu") == (role == "A")]

    def rdsetup(a):
        setup_rd(a)
        a.e("v_lshl_add_u32 %s, v3, 3, v2" % v(vWA))
        a.e("v_lshlrev_b32 %s, 8, %s" % (v(vWA), v(vWA)))
        a.e("v_lshl_add_u32 %s, v4, 3, %s" % (v(vWA), v(vWA)))
        a.e("v_and_b32 v5, 1, v3")
        a.e("v_lshl_add_u32 v2, v5, 2, v2")
        a.e("s_lshl_b32 s%d, s%d, 2" % (sA, sHI))
        a.e("s_and_b32 s%d, s%d, 1" % (sB, sLO))
        a.e("s_lshl_b32 s%d, s%d, 1" % (sB, sB))
        a.e("s_add_u32 s%d, s%d, s%d" % (sA, sA, sB))
        a.e("v_xor_b32 v2, s%d, v2" % sA)
        a.e("v_lshl_add_u32 %s, v2, 5, %s" % (v(vWA), v(vWA)))
        a.e("v_xor_b32 %s, 32, %s" % (v(vWA + 1), v(vWA)))
        a.e("v_add_u32 %s, 0x%x, %s" % (v(vWA + 2), L_U - L_G, v(vWA)))
        a.e("v_add_u32 %s, 0x%x, %s" % (v(vWA + 3), L_U - L_G, v(vWA + 1)))
        a.e("s_lshl_b32 s%d, s%d, 12" % (sA, sLO))
        a.e("s_add_u32 s%d, s%d, 0x%x" % (sA, sA, L_X))
        a.e("v_add_u32 %s, s%d, %s" % (v(vXA), sA, v(vXA)))
        a.e("v_xor_b32 %s, 0x1000, %s" % (v(vXA + 1), v(vXA)))
        a.e("v_xor_b32 %s, 64, %s" % (v(vXA + 2), v(vXA)))
        a.e("v_xor_b32 %s, 64, %s" % (v(vXA + 3), v(vXA + 1)))
        a.e("v_add_u32 %s, 0x%x, %s" % (v(vQA), L_WQ, v(vQA)))

    srd_words(a, [SWG, SWU])
    a.e("s_cmp_ge_u32 s%d, 4" % sW)
    a.e("s_cbranch_scc1 L_setB")
    late = collect(setup_oclr) + collect(setup_attn)
    words = collect(lambda t: srd_words(t, [SWS, SKV, SDBG, SWD, SWO, SOUT]))
    late = [x for x in late if x not in words]
    oclr = [x for x in late if x[1] == "oclr"]
    if Opt.olate: late = [x for x in late if x[1] != "oclr"]
    else: oclr = []
    words += [("v_mov_b32 %s, 0" % v(r_), None) for r_ in (vGA, vWDV, vFLA, vHA)]
    st = collect(rdsetup) + words + late[:Opt.fillpre]
    fills = {"A": late[Opt.fillpre:], "B": late[Opt.fillpre:]}
    vms = {}
    for role in "AB":
        a.vm = []
        if role == "A":
            wvoff(a)
        else:
            a.lab("L_setB")
            a.e("v_subrev_u32 %s, 0x8000, %s" % (v(vDX), v(vDX)))
            qvoff(a)
        a.e("s_waitcnt lgkmcnt(0)")
        a.stamp(2)
        if Opt.hrot:
            a.e("s_lshl_b32 s%d, s%d, 3" % (sRX, sOFFQ))
            a.e("s_mul_i32 s%d, s%d, 14" % (sRW, sOFFQ))
        put(a, block(part(0, role)))
        if Opt.tlb and role == "B":
            a.e("s_and_b32 s%d, s%d, 7" % (sA, sG))
            a.e("v_lshl_add_u32 v2, v0, 3, s%d" % sA)
            a.e("v_mul_u32_u24 v3, 3584, v2")
            a.e("s_lshl_b32 s%d, s%d, 8" % (sA, sM))
            a.e("s_and_b32 s%d, s%d, 1" % (sB, sW))
            a.e("s_lshl_b32 s%d, s%d, 7" % (sB, sB))
            a.e("s_add_u32 s%d, s%d, s%d" % (sA, sA, sB))
            if Opt.tlb == 1: a.e("s_mov_b64 exec, 0x%x" % 0x11111111); a.e("s_mov_b32 exec_hi, 0x11111111")
            if Opt.tlb == 2: a.e("s_bitcmp1_b32 s%d, 3\ns_cselect_b32 exec_lo, 0, 0xffff0000\ns_cselect_b32 exec_hi, 0xffff0000, 0" % sG)
            a.e("s_cmp_ge_u32 s%d, 6" % sW)
            a.e("s_cbranch_scc1 L_tlbu")
            a.e("buffer_load_dword %s, v3, %s, s%d offen" % (v(vPOLL), srd(SWG), sA))
            a.e("s_branch L_tlbe")
            a.lab("L_tlbu")
            a.e("buffer_load_dword %s, v3, %s, s%d offen" % (v(vPOLL), srd(SWU), sA))
            a.lab("L_tlbe")
            a.e("s_mov_b64 exec, -1")
            a.vm.append("tlb")
        if Opt.startbar: a.e("s_barrier")
        npre = min(Opt.npre, 8) if role == "A" else 5
        pn = block(part(1, role)[:npre])
        rest = st + collect(qvoff if role == "A" else wvoff)
        gap = len(rest) // (npre + Opt.pregap) + 1
        for i in range(npre):
            put(a, pn[:1]); pn = pn[1:]
            put(a, rest[:gap]); rest = rest[gap:]
        put(a, rest)
        a.e("s_mov_b64 vcc, %d" % (-1 if role == "A" else 0))
        if role == "A":
            a.waitvm("c0")
            a.e("s_branch L_k0")
        else:
            a.e("s_setprio 1")
            a.waitvm("c0")
        vms[role] = a.vm
    stream = part(1, "A")[min(Opt.npre, 8):] + [(c, k_, j) for c in range(2, 8) for k_, j in ORDER]
    qa = [int(x, 16) for x in Opt.qa]; qb = [int(x, 16) for x in Opt.qb]
    def take(n, cmax):
        m = 0
        while m < n and m < len(stream) and stream[m][0] <= cmax: m += 1
        r_ = stream[:m]; del stream[:m]
        return block(r_)
    a.lab("L_k0")
    a.vm = vms["A"]
    ool = Asm()
    def dmablock(name, role, items, wait=None):
        a.e("s_cbranch_vcc%s L_%s" % ("nz" if role == "A" else "z", name))
        if wait: a.waitvm(wait, lgkm=True)
        a.lab("L_%s_r" % name)
        ool.lab("L_%s" % name)
        ool.vm = a.vm if role == "A" else vms["B"]
        for it_ in items:
            if it_[1] is None: put(ool, fills[role]); fills[role] = []
            put(ool, [it_])
            put(ool, fills[role][:Opt.fillper]); fills[role] = fills[role][Opt.fillper:]
        if name == "e7": put(ool, fills[role]); fills[role] = []
        if wait: ool.waitvm(wait, lgkm=True)
        if role == "B": vms["B"] = ool.vm
        ool.e("s_branch L_%s_r" % name)
    a.ool = ool.l

    def fr(k):
        b = vF1 + 36 * (k % 2)
        return dict(x=b, w=b + 16, q=b + 32)
    def reads(k):
        c, s = divmod(k, 2); f = fr(k); sl = c % 3
        wo = sl * 16384 + s * 8192
        W = lambda i: [rdtr(f['w'] + 4 * i, vWA + i, wo), rdtr(f['w'] + 4 * i + 2, vWA + i, wo + 1024)]
        X = [rd128(f['x'] + 4 * b, vXA + 2 * s + (b >> 1), sl * 16384 + (b & 1) * 2048) for b in range(4)]
        return W(0) + X + W(2) + W(1) + W(3) + [rdtr(f['q'], vQA, sl * 4096 + s * 2048), rdtr(f['q'] + 2, vQA, sl * 4096 + s * 2048 + 256)]
    a.e("s_barrier")
    a.stamp(3)
    if Opt.kdiag or Opt.probe >= 18:
        kstamp(a, 2)
        a.e("s_waitcnt lgkmcnt(0)")
    for r in reads(0): a.e(r)
    if qa[0]: dmablock("d2", "A", take(qa[0], 2))
    for k in range(16):
        c, s = divmod(k, 2); f = fr(k)
        z = lambda x: None if k == 0 else x
        mf = []
        for n_, i in enumerate((0, 2, 1, 3)):
            for b in (range(4) if n_ % 2 == 0 else range(3, -1, -1)):
                d = vACC + 16 * b + 4 * i
                mf.append(mfma16(d, f['w'] + 4 * i, f['x'] + 4 * b, z(d)))
        for b in range(2): mf.append(mfma16(vAQ + 4 * b, f['q'], f['x'] + 4 * b, z(vAQ + 4 * b)))
        rds = reads(k + 1) if k < 15 else []
        if s == 0:
            a.e("s_waitcnt lgkmcnt(6)")
            for i, m in enumerate(mf):
                if i == 8: a.e("s_waitcnt lgkmcnt(8)")
                a.e(m)
                if i < len(rds): a.e(rds[i])
            continue
        a.e("s_waitcnt lgkmcnt(8)")
        for m in mf[:4]: a.e(m)
        if c <= 5:
            dmablock("e%d" % (c + 2), "B", take(qb[c], c + 2), "c%d" % (c + 1))
            assert not any(x[0] <= c + 1 for x in stream)
        if c == 7:
            a.e("s_waitcnt lgkmcnt(0)")
        elif c == 6 and Opt.stagger:
            a.e("s_waitcnt lgkmcnt(0)")
            a.e("s_cbranch_vccz L_st7")
            a.e("s_waitcnt vmcnt(0)")
            spin_counter(a, "kvf", True)
            a.e("s_barrier")
            a.e("s_setprio 1")
            for x, _ in kv_first_loads(a) + oclr: a.e(x)
            a.lab("L_st7")
        elif c == 6:
            a.e("s_setprio 0")
            a.wait0(lgkm=True)
            spin_counter(a, "kvf", True)
            a.e("s_barrier")
            put(a, kv_first_loads(a) + oclr)
        else:
            a.e("s_barrier")
        if c < 7 and ((Opt.kdiag == 1 and Opt.diag) or Opt.probe == 21 + c):
            kstamp(a, 3 + c)
            a.e("s_waitcnt lgkmcnt(0)")
        if c + 3 < 8:
            items = take(qa[c + 1], c + 3)
            if c == 4:
                items.append(("s_cmp_lg_u32 s%d, 0\ns_cbranch_scc1 L_d7_r\nbuffer_load_dword %s, off, %s, 0 sc1"
                              % (sW, v(vPOLL), srd(SDBG)), None))
            dmablock("d%d" % (c + 3), "A", items)
        for i, m in enumerate(mf[4:]):
            a.e(m)
            if i < len(rds): a.e(rds[i])
        if k == 11: assert not stream and not fills["A"] and not fills["B"]
        if k == 11 and Opt.stagger:
            a.e("s_cbranch_vccnz L_st6")
            a.e("s_setprio 0")
            a.wait0()
            a.e("s_barrier")
            put(a, kv_first_loads(a) + oclr)
            a.lab("L_st6")
    a.stamp(4)

def phase1_L(a):
    a.lab("L_light")
    a.vm = []
    srd_words(a, [SWKV, SWV, SGATE])
    a.e("s_sub_u32 s%d, s%d, 14" % (sCNT, sM))
    a.e("s_lshl_b32 s%d, s%d, 16" % (sOLD, sCNT))
    a.e("s_lshl_b32 s%d, s%d, 13" % (sHST, sCNT))
    a.e("s_add_u32 s%d, s%d, s%d" % (sWH, sHST, sWK))
    a.e("s_xor_b32 s%d, s%d, 0x2000" % (sHST, sHST))
    a.e("s_add_u32 s%d, s%d, 0x2000" % (sA, sWK))
    a.e("s_waitcnt lgkmcnt(0)")
    a.stamp(2)
    a.e("s_mov_b32 s%d, s%d" % (SWV, sTMPP))
    a.e("s_mov_b32 s%d, s%d" % (SWV + 1, sTMPP + 1))
    def xdma(c, base, so):
        a.vmop("s_add_u32 m0, s%d, 0x%x\ns_nop 0\nbuffer_load_dwordx4 %s, %s, s%d offen offset:%d lds"
               % (base, LL_X + c * 16384 - c * 128, v(vDX), srd(SX), so, c * 128), "c%d" % c)
    def wdma(u):
        for t, rs in enumerate((SWKV, SWV)):
            a.vmop("s_add_u32 m0, s%d, 0x%x\ns_nop 0\nbuffer_load_dwordx4 %s, %s, s%d offen lds"
                   % (sWK, LL_W + t * 16384 + u * 8192, v(vL16), srd(rs), sA if u else sWK), "w")
    wdma(0)
    a.vmop("s_mov_b32 m0, s%d\ns_nop 0\nbuffer_load_dwordx4 %s, %s, 0 offen lds" % (sHST, v(vL16), srd(SGATE)), "w")
    for c in range(8):
        if c == 4: wdma(1)
        xdma(c, sWH, sOLD)
        if c in (1, 3, 5): a.e("s_barrier")
    setup_rd(a)
    a.e("v_lshrrev_b32 v3, 5, v0")
    a.e("v_bfrev_b32 v5, v4")
    a.e("v_lshrrev_b32 v5, 30, v5")
    a.e("s_cmp_ge_u32 s%d, 2" % sLO)
    a.e("s_cselect_b64 vcc, -1, 0")
    a.e("v_cndmask_b32 v4, v5, v4, vcc")
    a.e("v_lshl_add_u32 %s, v3, 3, v2" % v(vWA))
    a.e("v_lshlrev_b32 %s, 5, %s" % (v(vWA), v(vWA)))
    a.e("v_lshl_add_u32 %s, v4, 3, %s" % (v(vWA), v(vWA)))
    a.e("s_lshr_b32 s%d, s%d, 1" % (sA, sLO))
    a.e("s_lshl_b32 s%d, s%d, 14" % (sA, sA))
    a.e("s_add_u32 s%d, s%d, 0x%x" % (sA, sA, LL_W))
    a.e("v_add_u32 %s, s%d, %s" % (v(vWA), sA, v(vWA)))
    a.e("v_lshl_add_u32 %s, v3, 4, s%d" % (v(vWA + 1), sHST))
    a.e("s_and_b32 s%d, s%d, 1" % (sA, sLO))
    a.e("s_lshl_b32 s%d, s%d, 1" % (sB, sCNT))
    a.e("s_add_u32 s%d, s%d, s%d" % (sCNT, sA, sB))
    a.e("s_lshl_b32 s%d, s%d, 12" % (sA, sCNT))
    a.e("v_and_b32 v2, 31, v0")
    a.e("v_bfe_u32 v4, v0, 1, 3")
    a.e("v_xor_b32 v4, v4, v3")
    a.e("v_lshlrev_b32 v4, 4, v4")
    a.e("v_lshl_add_u32 v4, v2, 7, v4")
    a.e("v_add_u32 %s, s%d, v4" % (v(vLX), sA))
    for s in range(1, 4): a.e("v_xor_b32 %s, %d, %s" % (v(vLX + s), 32 * s, v(vLX)))
    for s in range(4): a.e("v_add_u32 %s, 0x10000, %s" % (v(vLX + 4 + s), v(vLX + s)))
    setup_oclr(a)
    vm0 = list(a.vm)
    a.e("s_cmp_lg_u32 s%d, 0" % sHI)
    a.e("s_cbranch_scc1 L_lB")
    a.e("s_not_b64 %s, %s" % (sp(sTMPP), sp(sVM)))
    a.e("s_cmp_ge_u32 s%d, 2" % sLO)
    a.e("s_cbranch_scc1 L_lV")
    def chain(kind):
        a.vm = list(vm0)
        def fr(k):
            b = vFR + 8 * (k % 4)
            return b, b + 4
        def reads(k):
            c, s = divmod(k, 4); x, w = fr(k)
            r = [rd128(x, vLX + s + 4 * (c >> 2), (c & 3) * 16384), rdtr(w, vWA, k * 512), rdtr(w + 2, vWA, k * 512 + 128)]
            if kind == "K":
                r += ["s_mov_b64 exec, %s" % sp(sTMPP), rd128(w, vWA + 1, k * 32), "s_mov_b64 exec, -1"]
            return r
        for q in range(4):
            a.waitvm("c%d" % (2 * q + 1))
            a.e("s_barrier")
            nr = 4 if kind == "K" else 3
            for k in range(8 * q, 8 * q + 2):
                for r in reads(k): a.e(r)
            for k in range(8 * q, 8 * q + 8):
                if k + 2 < 8 * q + 8:
                    for r in reads(k + 2): a.e(r)
                left = min(2, 8 * q + 7 - k)
                a.e("s_waitcnt lgkmcnt(%d)" % (left * nr))
                x, w = fr(k)
                cc = None if k == 0 else vACC
                a.e(mfma(vACC, w, x, cc) if kind == "K" else mfma(vACC, x, w, cc))
        a.e("s_lshl_b32 s%d, s%d, 2" % (sA, sG))
        a.e("s_add_u32 s%d, s%d, s%d" % (sA, sA, sCNT))
        a.e("s_nop 12")
        if kind == "K":
            a.e("s_mov_b32 s%d, 0x%x" % (sC, f2u(0.25 * math.log2(math.e))))
            for i in range(8): a.e("v_mul_f32 %s, s%d, %s" % (v(vACC + i), sC, v(vACC + i)))
            a.e("v_mul_f32 %s, 0x%x, %s" % (v(vACC + 8), f2u(-math.log2(math.e)), v(vACC + 8)))
            a.e("v_exp_f32 %s, %s" % (v(vACC + 8), v(vACC + 8)))
            for i in range(4): a.e("v_cvt_pk_bf16_f32 %s, %s, %s" % (v(vFR + i), v(vACC + 2 * i), v(vACC + 2 * i + 1)))
            a.e("v_add_f32 %s, 1.0, %s" % (v(vACC + 8), v(vACC + 8)))
            a.e("v_rcp_f32 %s, %s" % (v(vACC + 8), v(vACC + 8)))
            a.e("s_add_u32 s%d, s%d, 63" % (sB, sA))
            a.e("s_and_b32 s%d, s%d, 63" % (sB, sB))
            a.e("s_lshl_b32 s%d, s%d, 11" % (sB, sB))
            a.e("buffer_store_dwordx4 %s, %s, %s, s%d offen sc1" % (v(vFR, 4), v(vL16), srd(SKV), sB))
            a.e("s_lshl_b32 s%d, s%d, 7" % (sB, sA))
            a.e("s_add_u32 s%d, s%d, 0x%x" % (sB, sB, WS_G))
            a.e("s_mov_b32 exec_hi, 0")
            a.e("buffer_store_dword %s, %s, %s, s%d offen sc1" % (v(vACC + 8), v(vGA), srd(SWS), sB))
            a.e("s_mov_b64 exec, -1")
        else:
            for i in range(8): a.e("v_cvt_pk_bf16_f32 %s, %s, %s" % (v(vFR + i), v(vACC + 2 * i), v(vACC + 2 * i + 1)))
            a.e("v_bfe_u32 v2, v0, 4, 1")
            a.e("v_add_u32 v2, s%d, v2" % sA)
            a.e("v_and_b32 v2, 63, v2")
            a.e("v_lshl_add_u32 v2, v2, 11, %s" % v(vL16))
            for i in range(4): a.e("v_cndmask_b32 %s, %s, %s, %s" % (v(vFR + i), v(vFR + 4 + i), v(vFR + i), sp(sVM)))
            a.e("buffer_store_dwordx4 %s, v2, %s, 0 offen offset:1024 sc1" % (v(vFR, 4), srd(SKV)))
        a.e("s_branch L_lJ")
    chain("K")
    a.lab("L_lV")
    chain("V")
    a.lab("L_lB")
    a.vm = list(vm0)
    a.e("s_cmp_lg_u32 s%d, 14" % sM)
    a.e("s_cbranch_scc1 L_nozf")
    a.e("s_cmp_lg_u32 s%d, 4" % sW)
    a.e("s_cbranch_scc1 L_nozf")
    a.e("v_lshlrev_b32 v2, 7, v0")
    a.e("s_lshl_b32 s%d, s%d, 11" % (sA, sG))
    a.e("s_add_u32 s%d, s%d, 0x%x" % (sA, sA, WS_HFLAG))
    a.e("s_mov_b64 exec, 0xffff")
    a.e("buffer_store_dword %s, v2, %s, s%d offen sc1" % (v(vZERO), srd(SWS), sA))
    a.e("s_mov_b64 exec, -1")
    a.lab("L_nozf")
    for q in range(4):
        a.waitvm("c%d" % (2 * q + 1))
        a.e("s_barrier")
    a.lab("L_lJ")
    a.e("v_lshrrev_b32 v3, 2, v0")
    a.e("v_lshlrev_b32 v3, 10, v3")
    a.e("v_lshrrev_b32 v4, 5, v0")
    a.e("v_lshlrev_b32 v4, 1, v4")
    a.e("v_xor_b32 v4, v4, v0")
    a.e("v_and_b32 v4, 3, v4")
    a.e("v_lshl_add_u32 v3, v4, 4, v3")
    a.e("s_lshl_b32 s%d, s%d, 14" % (sA, sW))
    a.e("s_lshl_b32 s%d, s%d, 6" % (sB, sHP))
    a.e("s_add_u32 s%d, s%d, s%d" % (sA, sA, sB))
    a.e("v_add_u32 %s, s%d, v3" % (v(vDQ), sA))
    a.e("s_xor_b32 s%d, s%d, 0x2000" % (sWH, sWH))
    a.e("s_xor_b32 s%d, s%d, 0x10000" % (sOLD, sOLD))
    a.wait0(lgkm=True)
    a.e("s_barrier")
    a.e("s_cmp_lg_u32 s%d, 0" % sW)
    a.e("s_cbranch_scc1 L_noat")
    a.e("s_mov_b64 exec, 1")
    a.e("buffer_atomic_add %s, off, %s, 0 sc1" % (v(vONE), srd(SDBG)))
    a.e("s_mov_b64 exec, -1")
    a.lab("L_noat")
    a.stamp(3)
    for c in range(8): xdma(c, sWH, sOLD)
    for p in range(4):
        a.e("s_add_u32 m0, s%d, 0x%x" % (sWK, LL_WQ + p * 8192))
        a.e("s_mov_b32 s%d, 0x%x" % (sA, p * 128 * 1024))
        a.e("buffer_load_dwordx4 %s, %s, s%d offen lds" % (v(vDQ), srd(SWQ), sA))
    setup_attn(a)
    if Opt.touch & 2:
        a.e("s_lshl_b32 s%d, s%d, 1" % (sA, sG))
        a.e("s_add_u32 s%d, s%d, s%d" % (sA, sA, sM))
        a.e("s_sub_u32 s%d, s%d, 14" % (sA, sA))
        a.e("s_lshl_b32 s%d, s%d, 3" % (sA, sA))
        a.e("s_add_u32 s%d, s%d, s%d" % (sA, sA, sW))
        a.e("v_lshlrev_b32 v2, 15, v0")
        a.e("s_lshl_b32 s%d, s%d, 7" % (sA, sA))
        a.e("buffer_load_dword %s, v2, %s, s%d offen" % (v(vPOLL), srd(SWO), sA))
        a.e("buffer_load_dword %s, v2, %s, s%d offen" % (v(vPOLL), srd(SWD), sA))
    a.e("s_lshl_b32 s%d, s%d, 12" % (sA, sLO))
    a.e("v_add_u32 %s, s%d, %s" % (v(vXA), sA, v(vXA)))
    a.e("v_xor_b32 %s, 64, %s" % (v(vXA + 1), v(vXA)))
    a.e("v_add_u32 %s, 0x10000, %s" % (v(vXA + 2), v(vXA)))
    a.e("v_add_u32 %s, 0x10000, %s" % (v(vXA + 3), v(vXA + 1)))
    a.e("v_add_u32 %s, 0x%x, %s" % (v(vQA), LL_WQ, v(vQA)))
    a.e("s_waitcnt vmcnt(%d)" % (2 if Opt.touch & 2 else 0))
    a.e("s_barrier")
    def fr(k): return vFR + 12 * (k % 3)
    def reads(k):
        c, s = divmod(k, 2); f = fr(k)
        return [rd128(f + 4 * b, vXA + s + 2 * (c >> 2), (c & 3) * 16384 + b * 2048) for b in range(2)] + \
               [rdtr(f + 8, vQA, k * 2048), rdtr(f + 10, vQA, k * 2048 + 256)]
    for k in range(2):
        for r in reads(k): a.e(r)
    for k in range(16):
        a.e("s_waitcnt lgkmcnt(%d)" % (4 * min(1, 15 - k)))
        for b in range(2): a.e(mfma16(vAQ + 4 * b, fr(k) + 8, fr(k) + 4 * b, None if k == 0 else vAQ + 4 * b))
        if k + 2 < 16:
            for r in reads(k + 2): a.e(r)
    spin_counter(a, "kvl", False)
    a.e("s_barrier")
    for s, t in kv_first_loads(a): a.e(s)
    a.wait0()
    a.stamp(4)
    a.e("s_branch L_join")

def gelu_tile(a, ti, scalar=False):
    acc = vACC + 16 * ti
    t = vFR
    o = vFR + 8 + 4 * ti
    pk = lambda r: v(r, 2)
    if scalar:
        for i in range(8): a.e("v_mul_f32 %s, %s, %s" % (v(t + i), v(acc + i), v(acc + i)))
        for i in range(8): a.e("v_fma_f32 %s, %s, %s, %s" % (v(t + i), v(t + i), v(vC0 + 1), v(vC0)))
        for i in range(8): a.e("v_mul_f32 %s, %s, %s" % (v(t + i), v(t + i), v(acc + i)))
        for i in range(8): a.e("v_exp_f32 %s, %s" % (v(t + i), v(t + i)))
        for i in range(8): a.e("v_add_f32 %s, 1.0, %s" % (v(t + i), v(t + i)))
        for i in range(8): a.e("v_rcp_f32 %s, %s" % (v(t + i), v(t + i)))
        for i in range(8): a.e("v_mul_f32 %s, %s, %s" % (v(acc + i), v(acc + i), v(acc + 8 + i)))
        for i in range(8): a.e("v_mul_f32 %s, %s, %s" % (v(acc + i), v(acc + i), v(t + i)))
    R4, R8 = (range(0), range(0)) if scalar else (range(4), range(8))
    for i in R4: a.e("v_pk_mul_f32 %s, %s, %s" % (pk(t + 2 * i), pk(acc + 2 * i), pk(acc + 2 * i)))
    for i in R4: a.e("v_pk_fma_f32 %s, %s, %s, %s op_sel:[0,1,0] op_sel_hi:[1,1,0]" % (pk(t + 2 * i), pk(t + 2 * i), pk(vC0), pk(vC0)))
    for i in R4: a.e("v_pk_mul_f32 %s, %s, %s" % (pk(t + 2 * i), pk(t + 2 * i), pk(acc + 2 * i)))
    for i in R8: a.e("v_exp_f32 %s, %s" % (v(t + i), v(t + i)))
    for i in R4: a.e("v_pk_add_f32 %s, %s, 1.0 op_sel_hi:[1,0]" % (pk(t + 2 * i), pk(t + 2 * i)))
    for i in R8: a.e("v_rcp_f32 %s, %s" % (v(t + i), v(t + i)))
    for i in R4: a.e("v_pk_mul_f32 %s, %s, %s" % (pk(acc + 2 * i), pk(acc + 2 * i), pk(acc + 8 + 2 * i)))
    for i in R4: a.e("v_pk_mul_f32 %s, %s, %s" % (pk(acc + 2 * i), pk(acc + 2 * i), pk(t + 2 * i)))
    for i in range(4): a.e("v_cvt_pk_bf16_f32 %s, %s, %s" % (v(o + i), v(acc + 2 * i), v(acc + 2 * i + 1)))
    a.vmop("buffer_store_dwordx4 %s, %s, %s, s%d offen offset:%d sc1" % (v(o, 4), v(vHA), srd(SWS), sHST2 if ti >> 1 else sHST, (ti & 1) * 256), "hst")

def Yseg(hset, toggle=False):
    out = []
    for t in range(2):
        S, Sn = vS + 16 * t, vS + 16 * (1 - t)
        K, V0, V1 = vKF + 4 * t, vV + 8 * t, vV + 8 * t + 4
        for j in range(8):
            out.append("v_exp_f32 %s, %s" % (v(vE + 2 * (j % 2)), v(S + 2 * j)))
            out.append("v_exp_f32 %s, %s" % (v(vE + 2 * (j % 2) + 1), v(S + 2 * j + 1)))
            jj = (j - 1) % 8
            out.append("v_cvt_pk_bf16_f32 %s, %s, %s" % (v(vP + jj), v(vE + 2 * (jj % 2)), v(vE + 2 * (jj % 2) + 1)))
            if j == 1: out.append(mfma(vO, V1, vP + 4, vO))
            if j == 3: out.append(mfma(Sn, K, vQ, None))
            if hset is None:
                if j == 7: out.append(mfma(vO, V0, vP, vO))
            else:
                if j == 5: out.append(mfma(vO, V0, vP, vO))
                if j == 6 and t == 1 and toggle:
                    out.append("v_xor_b32 %s, 0x4000, %s" % (v(vKVA), v(vKVA)))
                    out.append("v_xor_b32 %s, 0x8000, %s" % (v(vWDA), v(vWDA)))
                if j == 7: out.append(mfma(vD + 16 * t, vWF + 4 * t, vH + 4 * hset, vD + 16 * t))
    return out

def kv_reads(off):
    r = [rd128(vKF, vKVA, off), rd128(vKF + 4, vKVA, off + 2048), "s_mov_b64 exec, %s" % sp(sVM)]
    for t in range(2):
        r += [rd128(vV + 8 * t, vKVA, off + 2048 * t + 1024), rd128(vV + 8 * t + 4, vKVA, off + 2048 * t + 1280)]
    r.append("s_mov_b64 exec, -1")
    return r
def wd_reads(dst, addr, off):
    r = []
    for c in range(2):
        r += [rdtr(dst + 4 * c, addr, off + 512 * c), rdtr(dst + 4 * c + 2, addr, off + 512 * c + 1024)]
    return r

def wdrow(sg): return (32 * (sg >> 1) + 8 * (sg & 1)) * 1024

def attention(a, role, pre0=None):
    A = role == "A"
    def kvdma(u):
        a.vmop("s_add_u32 m0, s%d, 0x%x\ns_add_u32 s%d, s%d, 0x%x\nbuffer_load_dwordx4 %s, %s, s%d offen sc1 lds"
               % (sWK, L_KV + (u % 4) * 8192, sA, sWK, u * 8192, v(vL16), srd(SKV), sA), "kv%d" % u)
    def wddma(sg):
        a.vmop("s_add_u32 m0, s%d, 0x%x\ns_add_u32 s%d, s%d, 0x%x\nbuffer_load_dwordx4 %s, %s, s%d offen lds"
               % (sWK, L_WD + ((sg + 3) % 8) * 8192, sA, sWDOFF, wdrow(sg), v(vWDV), srd(SWD), sA), "wd%d" % sg)
    def wodma(j):
        a.vmop("s_add_u32 m0, s%d, 0x%x\ns_add_u32 s%d, s%d, 0x%x\nbuffer_load_dwordx4 %s, %s, s%d offen lds"
               % (sWK, L_WO + j * 8192, sA, sB, j * 16384, v(vWDV), srd(SWO), sA), "wo")
    def hload(sg, dst):
        a.vmop("s_add_u32 s%d, s%d, 0x%x\nbuffer_load_dwordx4 %s, %s, %s, s%d offen sc1"
               % (sA, sHOFF, sg * 1024, v(dst, 4), v(vL16), srd(SWS), sA), "h%d" % sg)
    for n in range(11):
        if not A and n == 0: a.e("s_barrier")
        if n % 2 == 1: astamp(a, 2 + n // 2)
        tags = []
        if A and n % 2 == 1: tags.append("kv%d" % ((n + 1) // 2))
        if not A and n % 2 == 0: tags.append("kv%d" % ((n + 2) // 2))
        if n == (3 if A else 2): tags.append("hst")
        if n == 10: tags.append("wd0")
        if n == 8 and A:
            a.e("s_cmp_lg_u32 s%d, 0" % sW)
            a.e("s_cbranch_scc1 L_hf_done")
            a.e("s_mov_b32 s%d, 0x4000" % sB)
            a.e("s_waitcnt vmcnt(2)")
            a.lab("L_hf_chk")
            a.e("v_cmp_ne_u32 vcc, 1, %s" % v(vPOLL))
            a.e("s_cbranch_vccz L_hf_done")
            a.e("s_sleep 2")
            a.e("buffer_load_dword %s, %s, %s, 0 offen sc1" % (v(vPOLL), v(vFLA), srd(SWS)))
            a.e("s_sub_u32 s%d, s%d, 1" % (sB, sB))
            a.e("s_cmp_lg_u32 s%d, 0" % sB)
            a.e("s_waitcnt vmcnt(0)")
            a.e("s_cbranch_scc1 L_hf_chk")
            a.lab("L_hf_done")
        a.waitvm(tags)
        if n == 3 and not A:
            a.e("s_cmp_ge_u32 s%d, 14" % sM)
            a.e("s_cbranch_scc1 L_nohf")
            a.e("s_cmp_lg_u32 s%d, 4" % sW)
            a.e("s_cbranch_scc1 L_nohf")
            a.e("s_lshl_b32 s%d, s%d, 4" % (sA, sG))
            a.e("s_add_u32 s%d, s%d, s%d" % (sA, sA, sM))
            a.e("s_lshl_b32 s%d, s%d, 7" % (sA, sA))
            a.e("s_add_u32 s%d, s%d, 0x%x" % (sA, sA, WS_HFLAG))
            a.e("s_mov_b64 exec, 1")
            a.e("buffer_store_dword %s, off, %s, s%d sc1" % (v(vONE), srd(SWS), sA))
            a.e("s_mov_b64 exec, -1")
            a.lab("L_nohf")
        for r in kv_reads((n % 8) * 4096): a.e(r)
        if n == 7 and A:
            a.e("s_cmp_lg_u32 s%d, 0" % sW)
            a.e("s_cbranch_scc1 L_hf_nol")
            a.e("buffer_load_dword %s, %s, %s, 0 offen sc1" % (v(vPOLL), v(vFLA), srd(SWS)))
            a.lab("L_hf_nol")
        if n == 0:
            kvdma(2); kvdma(3)
            a.e("s_mov_b32 s%d, s%d" % (sC, sKQ))
            a.e("s_mul_i32 s%d, s%d, %d" % (sWDOFF, sC, 448 * 1024))
            a.e("s_and_b32 s%d, s%d, 1" % (sB, sW))
            a.e("s_lshl_b32 s%d, s%d, 14" % (sA, sB))
            a.e("s_add_u32 s%d, s%d, s%d" % (sWDOFF, sWDOFF, sA))
            a.e("s_lshl_b32 s%d, s%d, 1" % (sA, sT))
            a.e("s_add_u32 s%d, s%d, s%d" % (sA, sA, sB))
            a.e("s_mul_i32 s%d, s%d, 112" % (sA, sA))
            a.e("s_mul_i32 s%d, s%d, 28" % (sB, sC))
            a.e("s_add_u32 s%d, s%d, s%d" % (sA, sA, sB))
            a.e("s_lshl_b32 s%d, s%d, 10" % (sA, sA))
            a.e("s_add_u32 s%d, s%d, 0x%x" % (sHOFF, sA, WS_HF))
        if (A and n % 2 == 1 and n >= 3): kvdma((n + 5) // 2)
        if (not A and n % 2 == 0 and n >= 2): kvdma((n + 6) // 2)
        if 1 <= n <= 3:
            a.e("s_lshl_b32 s%d, s%d, 17" % (sB, sKQ))
            a.e("s_and_b32 s%d, s%d, 1" % (sC, sW))
            a.e("s_lshl_b32 s%d, s%d, 13" % (sC, sC))
            a.e("s_add_u32 s%d, s%d, s%d" % (sB, sB, sC))
            for j in {1: (0, 1, 2), 2: (3, 4, 5), 3: (6, 7)}[n]: wodma(j)
        if n >= 4: wddma(n - 4)
        if n == 9:
            hload(0, vH + 12); hload(1, vH + 0); hload(24, vH + 16); hload(25, vH + 20)
        if n == 10:
            hload(26, vH + 24); hload(27, vH + 28); hload(2, vH + 4)
        if n == 0 and pre0:
            pre0()
            a.stamp(5)
        a.e("s_waitcnt lgkmcnt(0)")
        a.e("s_call_b64 %s, L_Y%s" % (sp(sRET), role))
        if n == 0:
            a.e("s_branch L_X1%s" % role)
            a.lab("L_Y%s" % role)
            if A: a.e("s_barrier")
            for x in Yseg(None): a.e(x)
            if not A: a.e("s_barrier")
            a.e("s_setpc_b64 %s" % sp(sRET))
            a.lab("L_X1%s" % role)
    astamp(a, 7)
    a.e("s_add_u32 s%d, s%d, 0x%x" % (sHOFF, sHOFF, 3 * 1024))
    a.e("s_add_u32 s%d, s%d, 0x%x" % (sWDOFF, sWDOFF, wdrow(7)))
    a.e("s_mov_b32 s%d, 0x%x" % (sM0WD, ((7 + 3) % 8) * 8192))
    u0 = 8 if A else 9
    a.e("s_add_u32 s%d, s%d, 0x%x" % (sKVOFF, sWK, u0 * 8192))
    a.e("s_mov_b32 s%d, 6" % sCNT)
    a.waitvm(["h0", "wd1", "kv6"] if A else ["h0", "wd1"])
    a.e("s_branch L_loop%s_in" % role)
    a.l.append(".p2align 6")
    a.lab("L_loop%s" % role)
    for p in range(4):
        if p == 0 and Opt.diag and Opt.kdiag == 2:
            a.e("s_cmp_lg_u32 s%d, 4" % sCNT)
            a.e("s_cbranch_scc1 L_nst%s" % role)
            astamp(a, 8)
            a.lab("L_nst%s" % role)
        a.e("s_waitcnt vmcnt(5)")
        if p == 3: a.lab("L_loop%s_in" % role)
        for r in kv_reads(p * 4096): a.e(r)
        for r in wd_reads(vWF, vWDA, p * 8192): a.e(r)
        a.e("buffer_load_dwordx4 %s, %s, %s, s%d offen sc1" % (v(vH + 4 * ((p + 3) % 4), 4), v(vL16), srd(SWS), sHOFF))
        a.e("s_add_u32 m0, s%d, s%d" % (sWK, sM0WD))
        a.e("s_add_u32 s%d, s%d, 0x400" % (sHOFF, sHOFF))
        a.e("buffer_load_dwordx4 %s, %s, s%d offen lds" % (v(vWDV), srd(SWD), sWDOFF))
        a.e("s_add_u32 s%d, s%d, 0x%x" % (sWDOFF, sWDOFF, 0x6000 if p & 1 else 0x2000))
        a.e("s_add_u32 s%d, s%d, 0x2000" % (sM0WD, sM0WD))
        a.e("s_and_b32 s%d, s%d, 0xffff" % (sM0WD, sM0WD))
        if (p % 2 == 1) == A:
            a.e("s_and_b32 s%d, s%d, 0x7fff" % (sA, sKVOFF))
            a.e("s_add_u32 m0, s%d, 0x%x" % (sA, L_KV))
            a.e("s_nop 0")
            a.e("buffer_load_dwordx4 %s, %s, s%d offen sc1 lds" % (v(vL16), srd(SKV), sKVOFF))
            a.e("s_add_u32 s%d, s%d, 0x2000" % (sKVOFF, sKVOFF))
        if p == 3:
            a.e("s_sub_u32 s%d, s%d, 1" % (sCNT, sCNT))
            a.e("s_cmp_lg_u32 s%d, 0" % sCNT)
        a.e("s_waitcnt lgkmcnt(0)")
        if A: a.e("s_barrier")
        for x in Yseg(p, toggle=(p == 3)): a.e(x)
        if not A:
            if p == 3: a.e("s_cbranch_scc0 L_tail")
            a.e("s_barrier")
    a.e(("s_cbranch_scc1 L_loop%s" if A else "s_branch L_loop%s") % role)

def transition(a, role):
    A = role == "A"
    if A:
        a.vm = list(a.vmjoin)
        a.lab("L_trA")
    else:
        a.lab("L_join")
        a.e("s_cmp_eq_u32 s%d, 0" % sHI)
        a.e("s_cbranch_scc1 L_trA")
        a.vmjoin = list(a.vm)
    def qfin():
        for i in range(4): a.e("v_cvt_pk_bf16_f32 %s, %s, %s" % (v(vQ + i), v(vAQ + 2 * i), v(vAQ + 2 * i + 1)))
        for i in range(4, 7): a.e("v_mov_b32 %s, 0" % v(vP + i))
        a.e("v_permlane16_swap_b32 %s, %s" % (v(vQ), v(vQ + 2)))
        a.e("v_permlane16_swap_b32 %s, %s" % (v(vQ + 1), v(vQ + 3)))
    pre0 = None
    if A:
        a.e("s_setprio 1")
        a.e("s_cmp_ge_u32 s%d, 14" % sM)
        a.e("s_cbranch_scc1 L_nogA0")
        a.l.append(".p2align 3")
        for ti in range(Opt.gsc): gelu_tile(a, ti, True)
        a.lab("L_nogA0")
        qfin()
        a.waitvm(["k0", "kv0", "kv1"])
        a.e("s_setprio 0")
        a.e("s_barrier")
        a.e(mfma(vS, vK0, vQ, None))
        def pre0():
            a.e("s_cmp_lt_u32 s%d, 14" % sM)
            a.e("s_cbranch_scc1 L_gA1")
            a.e("s_waitcnt vmcnt(0)")
            a.e("s_branch L_nogA1")
            a.l.append(".p2align 3")
            a.lab("L_gA1")
            for ti in range(Opt.gsc, 4): gelu_tile(a, ti)
            a.lab("L_nogA1")
            a.e("s_setprio 1")
    else:
        a.waitvm(["k0", "kv0", "kv1"])
        a.e("s_setprio 1")
        a.e("s_cmp_ge_u32 s%d, 14" % sM)
        a.l.append(".p2align 3")
        a.e("s_barrier")
        a.e("s_cbranch_scc1 L_nogB")
        for ti in range(4): gelu_tile(a, ti)
        a.lab("L_nogB")
        qfin()
        a.e("s_setprio 0")
        a.e("s_nop 0")
        a.e(mfma(vS, vK0, vQ, None))
        a.stamp(5)
    attention(a, role, pre0)
    if A: a.e("s_branch L_tail")

def tail(a):
    a.lab("L_tail")
    a.e("v_cvt_pk_bf16_f32 %s, %s, %s" % (v(vP + 7), v(vE + 2), v(vE + 3)))
    a.stamp(6)
    astamp(a, 9)
    if Opt.diag and Opt.kdiag == 2: a.e("s_waitcnt lgkmcnt(0)")
    a.e("s_setprio 0")
    a.e("s_mov_b32 s%d, 0x%x" % (sC, f2u(2.0 ** -16)))
    a.e(mfma(vO, vV1L, vP + 4, vO))
    a.e("s_mov_b32 s%d, 0x%x" % (sD, f2u(2.0 ** 100)))
    a.e("s_nop 10")
    t = vFR
    a.e("v_rcp_f32 %s, %s" % (v(t + 2), v(vO + 8)))
    a.e("v_pk_mul_f32 %s, %s, 0 op_sel_hi:[1,0]" % (v(t, 2), v(vO, 2)))
    for i in range(1, 4): a.e("v_pk_fma_f32 %s, %s, 0, %s op_sel_hi:[1,0,1]" % (v(t, 2), v(vO + 2 * i, 2), v(t, 2)))
    a.e("v_add_f32 %s, %s, %s" % (v(t), v(t), v(t + 1)))
    a.e("v_add_f32 %s, %s, %s" % (v(t), v(t), v(vO + 8)))
    a.e("v_cmp_nle_f32 vcc, s%d, %s" % (sC, v(t)))
    a.e("v_cmp_nge_f32 %s, s%d, %s" % (sp(sTMPP), sD, v(t)))
    a.e("s_or_b64 vcc, vcc, %s" % sp(sTMPP))
    a.e("s_branch L_fb" if Opt.force_fb else "s_cbranch_scc1 L_fb")
    a.lab("L_fbret")
    a.e("v_mul_f32 %s, %s, %s" % (v(t + 2), v(t + 2), v(vGP)))
    for i in range(4): a.e("v_pk_mul_f32 %s, %s, %s op_sel_hi:[1,0]" % (v(vO + 2 * i, 2), v(vO + 2 * i, 2), v(t + 2, 2)))
    for i in range(4): a.e("v_cvt_pk_bf16_f32 %s, %s, %s" % (v(vP + i), v(vO + 2 * i), v(vO + 2 * i + 1)))
    for i in range(4): a.e("v_min_u32 %s, -2, %s" % (v(vP + i), v(vP + i)))
    a.e("buffer_store_dwordx4 %s, %s, %s, s%d offen sc1" % (v(vP, 4), v(vL16), srd(SWS), sOST))
    HORD = [0, 2, 4, 6, 1, 3, 5, 7] if Opt.hord else list(range(8))
    def oload(j):
        return "buffer_load_dwordx4 %s, %s, %s, s%d offen offset:%d sc1" % (
            v(vS + 4 * j, 4), v(vL16), srd(SWS), sOLD if HORD[j] < 4 else sA, (HORD[j] % 4) * 1024)
    a.oload = oload
    aw = vXA
    ar = vWA
    def addrs(a):
        a.e("v_sub_f32 %s, 1.0, %s" % (v(vGC), v(vGC)))
        a.e("v_add_u32 %s, 0x%x, %s" % (v(vQA), L_WO, v(vWDA)))
        a.e("v_and_b32 v2, 31, v0")
        a.e("v_lshrrev_b32 v3, 5, v0")
        a.e("v_and_b32 v4, 7, v0")
        a.e("v_xor_b32 v3, v3, v4")
        a.e("v_lshlrev_b32 v3, 4, v3")
        a.e("v_lshl_add_u32 v3, v2, 8, v3")
        a.e("s_and_b32 s%d, s%d, 1" % (sB, sW))
        a.e("s_lshl_b32 s%d, s%d, 15" % (sB, sB))
        a.e("s_lshr_b32 s%d, s%d, 1" % (sC, sW))
        a.e("s_lshl_b32 s%d, s%d, 13" % (sD, sC))
        a.e("s_add_u32 s%d, s%d, s%d" % (sD, sD, sB))
        a.e("v_add_u32 %s, s%d, v3" % (v(aw), sD))
        for j in range(1, 4): a.e("v_xor_b32 %s, %d, %s" % (v(aw + j), 32 * j, v(aw)))
        a.e("v_lshrrev_b32 v2, 3, v0")
        a.e("v_lshlrev_b32 v3, 1, v4")
        a.e("v_xor_b32 v3, v3, v2")
        a.e("v_lshlrev_b32 v3, 4, v3")
        a.e("v_lshl_add_u32 v3, v2, 8, v3")
        a.e("s_lshl_b32 s%d, s%d, 11" % (sD, sC))
        a.e("s_add_u32 s%d, s%d, s%d" % (sD, sD, sB))
        a.e("v_add_u32 %s, s%d, v3" % (v(ar), sD))
        a.e("v_xor_b32 %s, 16, %s" % (v(ar + 1), v(ar)))
        a.e("v_lshlrev_b32 v4, 4, v4")
        a.e("v_lshl_add_u32 %s, v2, 10, v4" % v(ar + 2))
        a.e("s_lshl_b32 s%d, s%d, 13" % (sC, sC))
        a.e("s_add_u32 s%d, s%d, s%d" % (sB, sB, sC))
        a.e("s_lshl_b32 s%d, s%d, 16" % (sC, sT))
        a.e("s_add_u32 s%d, s%d, s%d" % (sB, sB, sC))
        a.e("s_lshl_b32 s%d, s%d, 7" % (sC, sCB))
        a.e("s_add_u32 s%d, s%d, s%d" % (sCNT, sB, sC))
        a.e("s_mov_b32 s%d, 0x2000" % sB)
    a.e("s_add_u32 s%d, s%d, 0x1000" % (sA, sOLD))
    a.e("s_cmp_eq_u32 s%d, 0" % sHI)
    a.e("s_cbranch_scc1 L_tl1")
    a.e("s_setprio 1")
    a.e("s_waitcnt vmcnt(1)")
    a.lab("L_tl2")
    a.e("s_barrier")
    ol = Asm(); a.ool2 = ol.l
    ol.lab("L_tl1")
    for j in range(8): ol.e(oload(j))
    ol.e("s_waitcnt vmcnt(9)")
    ol.e("s_branch L_tl2")
    hreg = {21: vH + 0, 22: vH + 4, 23: vH + 8, 24: vH + 16, 25: vH + 20, 26: vH + 24, 27: vH + 28}
    wf = [vFR, vFR + 8, vFR + 16]
    for i in range(2):
        for r in wd_reads(wf[i], vWDA, i * 8192): a.e(r)
    fl = collect(addrs)
    put(a, fl[:8]); fl = fl[8:]
    for i in range(7):
        if i + 2 < 7:
            for r in wd_reads(wf[(i + 2) % 3], vWDA, (i + 2) * 8192): a.e(r)
        else:
            for r in wd_reads(wf[(i + 2) % 3], vQA, HORD[i - 5] * 8192): a.e(r)
        a.e("s_waitcnt lgkmcnt(8)")
        for c in range(2):
            a.e(mfma(vD + 16 * c, wf[i % 3] + 4 * c, hreg[21 + i], vD + 16 * c))
            put(a, fl[:2]); fl = fl[2:]
    put(a, fl)
    a.e("s_cmp_lg_u32 s%d, 0" % sHI)
    a.e("s_cbranch_scc1 L_tl3")
    a.e("s_nop 8")
    for i in range(32): a.e("v_mul_f32 %s, %s, %s" % (v(vD + i), v(vGC), v(vD + i)))
    if Opt.tbar == 0: a.e("s_barrier")
    a.lab("L_tl4")
    ol.lab("L_tl3")
    ol.e("s_setprio 0")
    for j in range(8):
        ol.e(oload(j))
        if j == 0: ol.e("s_nop 6")
        for i in range(4 * j, 4 * j + 4): ol.e("v_mul_f32 %s, %s, %s" % (v(vD + i), v(vGC), v(vD + i)))
    ol.e("s_barrier")
    ol.e("s_branch L_tl4")
    a.stamp(7)
    for j in range(8):
        o = vS + 4 * j
        if j + 2 < 8:
            for r in wd_reads(wf[(j + 3) % 3], vQA, HORD[j + 2] * 8192): a.e(r)
        if j == Opt.tbar and j:
            a.e("s_cmp_lg_u32 s%d, 0" % sHI)
            a.e("s_cbranch_scc1 L_ochk%d" % j)
            a.e("s_barrier")
        a.lab("L_ochk%d" % j)
        a.e("s_waitcnt vmcnt(%d)" % (7 - j))
        a.e("v_max3_u32 v2, %s, %s, %s" % (v(o), v(o + 1), v(o + 2)))
        a.e("v_max_u32 v2, v2, %s" % v(o + 3))
        a.e("v_cmp_eq_u32 vcc, -1, v2")
        a.e("s_cbranch_vccnz L_ore%d" % j)
        a.lab("L_ook%d" % j)
        a.e("s_waitcnt lgkmcnt(%d)" % (4 * min(2, 7 - j)))
        for c in range(2): a.e(mfma(vD + 16 * c, wf[(j + 1) % 3] + 4 * c, o, vD + 16 * c))
    a.stamp(8)
    a.e("s_nop 10")
    for c in range(2):
        for j in range(4):
            a.e("ds_write_b128 %s, %s offset:%d" % (v(aw + j), v(vD + 16 * c + 4 * j, 4), 128 * c))
    a.e("s_waitcnt lgkmcnt(0)")
    a.e("s_barrier")
    for p in range(4):
        for h in range(2): a.e(rd128(vS + 8 * p + 4 * h, ar + h, p * 8192))
    for p in range(1, 4):
        a.e("s_waitcnt lgkmcnt(%d)" % (6 - 2 * p))
        for i in range(4): a.e("v_pk_add_f32 %s, %s, %s" % (v(vS + 2 * i, 2), v(vS + 2 * i, 2), v(vS + 8 * p + 2 * i, 2)))
    for i in range(4): a.e("v_cvt_pk_bf16_f32 %s, %s, %s" % (v(vP + i), v(vS + 2 * i), v(vS + 2 * i + 1)))
    a.e("buffer_store_dwordx4 %s, %s, %s, s%d offen %s" % (v(vP, 4), v(ar + 2), srd(SOUT), sCNT, Opt.out_pol))
    if Opt.probe >= 0:
        a.e("s_waitcnt vmcnt(0)")
        a.stamp(9)
        if Opt.probe != 9:
            a.e("s_cmp_ge_u32 s%d, 14" % sM)
            a.e("s_cbranch_scc%d L_end" % (0 if Opt.probe_l else 1))
        a.e("s_sub_u32 s%d, s%d, s%d" % (sA, sSTAMP + 4, sSTAMP))
        a.e("s_mul_i32 s%d, s%d, %d" % (sA, sA, Opt.probe_mul - 1))
        a.e("s_min_u32 s%d, s%d, 100000" % (sA, sA))
        a.e("s_add_u32 s%d, s%d, 3800" % (sA, sA))
        if Opt.probe_x >= 0:
            a.e("s_and_b32 s0, s2, 7")
            a.e("s_cmp_lg_u32 s0, %d" % Opt.probe_x)
            a.e("s_cbranch_scc1 L_end")
        a.lab("L_probe")
        a.e("s_memrealtime s[0:1]")
        a.e("s_waitcnt lgkmcnt(0)")
        a.e("s_sub_u32 s0, s0, s%d" % (sSTAMP + 4))
        a.e("s_cmp_lt_u32 s0, s%d" % sA)
        a.e("s_cbranch_scc1 L_probe")
    if Opt.pin == 9:
        a.e("s_waitcnt vmcnt(0)")
        a.stamp(9)
    if Opt.diag:
        a.e("s_waitcnt vmcnt(0)")
        a.stamp(9)
        a.e("s_mov_b32 s%d, s%d" % (sSTAMP + 3, sSTAMP))
        a.e("s_mov_b32 s%d, s%d" % (sSTAMP, sB))
        a.e("s_getreg_b32 s%d, hwreg(HW_REG_XCC_ID)" % (sSTAMP + 1))
        for i in range(20): a.e("v_mov_b32 %s, s%d" % (v(vS + i), sSTAMP + i))
        a.e("s_lshl_b32 s%d, s2, 3" % sA)
        a.e("s_add_u32 s%d, s%d, s%d" % (sA, sA, sW))
        a.e("s_lshl_b32 s%d, s%d, 7" % (sA, sA))
        a.e("s_add_u32 s%d, s%d, 0x%x" % (sA, sA, WS_STAMP))
        a.e("s_mov_b64 exec, 1")
        for i in range(5): a.e("buffer_store_dwordx4 %s, off, %s, s%d offset:%d" % (v(vS + 4 * i, 4), srd(SWS), sA, 16 * i))
    a.lab("L_end")
    a.e("s_endpgm")
    a.l += a.ool2
    for j in range(8):
        a.lab("L_ore%d" % j)
        a.e("s_sub_u32 s%d, s%d, 1" % (sB, sB))
        a.e("s_cbranch_scc1 L_ogive%d" % j)
        a.e("s_waitcnt vmcnt(0)")
        for i in range(j, 8): a.e(a.oload(i))
        a.e("s_branch L_ochk%d" % j)
        a.lab("L_ogive%d" % j)
        a.e("s_mov_b32 s%d, 0" % sB)
        a.e("s_branch L_ook%d" % j)

def fallback(a):
    a.lab("L_fb")
    m = vFR + 4
    a.e("v_mov_b32 %s, 0xff800000" % v(m))
    a.e("s_mov_b32 s%d, 0" % sA)
    a.lab("L_fb1")
    a.e("buffer_load_dwordx4 %s, %s, %s, s%d offen sc1" % (v(vKF, 4), v(vL16), srd(SKV), sA))
    a.e("s_waitcnt vmcnt(0)")
    a.e(mfma(vS, vKF, vQ, None))
    a.e("s_add_u32 s%d, s%d, 2048" % (sA, sA))
    a.e("s_nop 11")
    for i in range(8): a.e("v_max3_f32 %s, %s, %s, %s" % (v(m), v(m), v(vS + 2 * i), v(vS + 2 * i + 1)))
    a.e("s_cmp_lt_u32 s%d, 0x20000" % sA)
    a.e("s_cbranch_scc1 L_fb1")
    a.e("v_mov_b32 %s, %s" % (v(m + 1), v(m)))
    a.e("s_nop 1")
    a.e("v_permlane32_swap_b32 %s, %s" % (v(m), v(m + 1)))
    a.e("s_nop 1")
    a.e("v_max_f32 %s, %s, %s" % (v(m), v(m), v(m + 1)))
    for i in range(16): a.e("v_sub_f32 %s, 0, %s" % (v(vS + 16 + i), v(m)))
    for i in range(16): a.e("v_mov_b32 %s, 0" % v(vO + i))
    a.e("s_mov_b32 s%d, 0" % sA)
    a.lab("L_fb2")
    a.e("s_add_u32 s%d, s%d, 0x%x" % (sB, sA, 63 * 2048))
    a.e("s_and_b32 s%d, s%d, 0x1ffff" % (sB, sB))
    a.e("buffer_load_dwordx4 %s, %s, %s, s%d offen sc1" % (v(vKF, 4), v(vL16), srd(SKV), sB))
    a.e("s_add_u32 s%d, s%d, 2048" % (sB, sA))
    a.e("s_and_b32 s%d, s%d, 0x1ffff" % (sB, sB))
    a.e("s_mov_b64 exec, %s" % sp(sVM))
    a.e("buffer_load_dwordx4 %s, %s, %s, s%d offen offset:1024 sc1" % (v(vV, 4), v(vL16), srd(SKV), sA))
    a.e("buffer_load_dwordx4 %s, %s, %s, s%d offen offset:1280 sc1" % (v(vV + 4, 4), v(vL16), srd(SKV), sB))
    a.e("s_mov_b64 exec, -1")
    a.e("s_waitcnt vmcnt(0)")
    a.e(mfma(vS, vKF, vQ, vS + 16))
    a.e("s_add_u32 s%d, s%d, 2048" % (sA, sA))
    a.e("s_nop 11")
    for i in range(16): a.e("v_exp_f32 %s, %s" % (v(vS + i), v(vS + i)))
    for i in range(8): a.e("v_cvt_pk_bf16_f32 %s, %s, %s" % (v(vP + i), v(vS + 2 * i), v(vS + 2 * i + 1)))
    a.e("s_nop 1")
    a.e(mfma(vO, vV, vP, vO))
    a.e(mfma(vO, vV + 4, vP + 4, vO))
    a.e("s_cmp_lt_u32 s%d, 0x20000" % sA)
    a.e("s_cbranch_scc1 L_fb2")
    a.e("s_nop 11")
    a.e("v_rcp_f32 %s, %s" % (v(vFR + 2), v(vO + 8)))
    a.e("s_branch L_fbret")

def build():
    a = Asm()
    prologue(a)
    phase1_F(a)
    transition(a, "B")
    tail(a)
    a.l += a.ool
    transition(a, "A")
    phase1_L(a)
    fallback(a)
    a.lab("L_codeend")
    il = a.l.index("L_light:")
    for i, x in enumerate(a.l):
        if x.endswith(" lds") and "sc1" not in x and " nt" not in x:
            if (Opt.ntx & 4 and (srd(SWD) in x or srd(SWO) in x)) or (Opt.ntx & 8 and i > il):
                a.l[i] = x[:-4] + " nt lds"
    head = open("cdna_kernels/%s.s.ref" % NAME).read().split("\n")
    hdr = [l for l in head if l.startswith(";") and "@launch" not in l and "Override" not in l and "grid=" not in l]
    out = hdr + ["; @launch grid=(256,1,1) block=(512,1,1) lds=%d" % LDS_BYTES,
                 '.amdgcn_target "amdgcn-amd-amdhsa--gfx950"', ".text", ".globl %s_kernel" % NAME, ".p2align 8",
                 ".type %s_kernel,@function" % NAME,
                 ".set CODE_PF_MAX, L_codeend - L_nopf - 4" if Opt.code_pf else "",
                 "%s_kernel:" % NAME]
    out += ["; mapmode %d" % Opt.mapmode, "; xrot %d" % Opt.xrot]
    out += a.l
    out += ['.section .rodata,"a"', ".p2align 6", ".amdhsa_kernel %s_kernel" % NAME,
            "  .amdhsa_next_free_vgpr %d" % NV, "  .amdhsa_next_free_sgpr 102", "  .amdhsa_accum_offset 256",
            "  .amdhsa_group_segment_fixed_size 0", "  .amdhsa_kernarg_size 104", "  .amdhsa_user_sgpr_count 2",
            "  .amdhsa_user_sgpr_kernarg_segment_ptr 1", "  .amdhsa_system_sgpr_workgroup_id_x 1", ".end_amdhsa_kernel", ""]
    return "\n".join(out)

if __name__ == "__main__":
    path = sys.argv[1]
    for kv in sys.argv[2:]:
        k, val = kv.split("=")
        cur = getattr(Opt, k)
        setattr(Opt, k, val if isinstance(cur, str) else type(cur)(int(val)))
    open(path, "w").write(build())
```

```python
import sys, struct, math

NAME = "gated_mix__grouped_kv_mqa__geglu_ffn__prompt"

class Opt:
    diag = 0
    mapmode = 1
    force_fb = False
    out_pol = ""
    code_pf = True
    xrot = 0
    pregap = 0
    tlb = 0
    olate = 1
    hrot = 0
    tbar = 0
    hord = 1
    cmap = 1
    kqx = 0
    oearly = 8
    conc = 1
    ghx = 1
    qa = "088888"
    qb = "577777"
    npre = 8
    stagger = 1
    rper = 2
    dma1 = 17
    kprio = 0
    dma0 = 8
    npd = 4
    kdiag = 0
    fillpre = 0
    fillper = 4
    gsc = 2
    sched = 2
    xmask = 1
    ntx = 0
    touch = 2
    rotg = 0
    rotm = 0
    startbar = 1
    pvz = 1
    pin = -1
    pin_ns = 60000
    probe = -1
    probe_x = -1
    probe_mul = 10
    probe_w = -1
    probe_l = 0

def f2u(x): return struct.unpack("<I", struct.pack("<f", x))[0]

WS_KV = 0
WS_G = 128 * 1024
WS_HFLAG = 192 * 1024
WS_OF = 1 << 20
WS_HF = 4 << 20
WS_STAMP = 12 << 20
WS_SIZE = 16 << 20
K1 = 1024
L_G, L_U, L_X, L_WQ = 0, 48 * K1, 96 * K1, 144 * K1
L_QX = 32 * K1
L_WD, L_WO, L_KV = 0, 64 * K1, 128 * K1
LL_X, LL_W, LL_GATE, LL_WQ = 0, 128 * K1, 144 * K1, 128 * K1
LDS_BYTES = 160 * K1

SX, SWG, SWU, SWQ, SWS, SWD, SWO, SOUT, SDBG, SWKV, SGATE, SKV = 4, 8, 12, 16, 20, 24, 28, 32, 36, 40, 44, 64
SWV = 72
sTMPP = 48
sW, sHI, sLO, sG, sM, sT, sCB = 50, 51, 52, 53, 54, 55, 56
sWK = 57
sWH = 58
sK64 = 59
sVM = 60
sRET = 62
sA, sB, sC, sD = 68, 69, 70, 71
sOFFW, sOFFQ, sCH, sXP = 72, 73, 74, 75
sHOFF, sWDOFF, sKVOFF, sM0WD, sM0KV, sCNT = 72, 73, 74, 75, 76, 77
sOST, sOLD, sHST = 78, 79, 80
sHST2 = 3
sRX, sRW, sM0B = 40, 41, 42
sKQ = 76
sHP = 81
sSTAMP = 82

def srd(b): return "s[%d:%d]" % (b, b + 3)
def sp(b): return "s[%d:%d]" % (b, b + 1)
def v(b, n=1): return "v%d" % b if n == 1 else "v[%d:%d]" % (b, b + n - 1)

vL16 = 1
vT0, vT1, vT2, vT3 = 2, 3, 4, 5
vGP, vGC = 6, 7
vKVA = 8
vWDA = 9
vWDV = 10
vONE = 11
vZERO = 12
vFLA = 13
vPOLL = 14
vGA = 15
vQ = 16
vK0 = 20
vV1L = 24
vE = 28
vP = 32
vV = 40
vO = 56
vD = 72
vACC = 104
vS = 104
vH = 136
vAQ = vP
vF1 = 168
vKF = 168
vWF = 176
vFR = 184
vLX = 224
vXA = 240
vWA = 244
vQA = 248
vDX, vDG, vDQ = 249, 250, 251
vC0 = 252
vHA = 254
NV = 256

class Asm:
    def __init__(self):
        self.l = []
        self.vm = []
        self.nstamp = 0
    def e(self, s):
        for x in s.split("\n"):
            x = x.strip()
            if x: self.l.append("    " + x)
    def lab(self, s): self.l.append(s + ":")
    def vmop(self, s, tag):
        self.e(s); self.vm.append(tag)
    def vmn(self, tags):
        if isinstance(tags, str): tags = [tags]
        last = -1
        for i, t in enumerate(self.vm):
            if t in tags: last = i
        return None if last < 0 else len(self.vm) - 1 - last
    def waitvm(self, tags, lgkm=False):
        n = self.vmn(tags)
        if n is None:
            if lgkm: self.e("s_waitcnt lgkmcnt(0)")
            return
        assert n < 64
        self.e("s_waitcnt vmcnt(%d)%s" % (n, " lgkmcnt(0)" if lgkm else ""))
        self.vm = self.vm[len(self.vm) - n:] if n else []
    def wait0(self, lgkm=False):
        self.e("s_waitcnt vmcnt(0)%s" % (" lgkmcnt(0)" if lgkm else "")); self.vm = []
    def stamp(self, i, real=False):
        if Opt.probe == i:
            self.e("s_waitcnt lgkmcnt(0)")
            self.e("s_memrealtime %s" % sp(sSTAMP + 4))
            self.e("s_waitcnt lgkmcnt(0)")
        if Opt.pin == i:
            self.nstamp += 1
            self.e("s_waitcnt lgkmcnt(0)")
            self.e("s_cselect_b32 s%d, 1, 0" % (sSTAMP + 5))
            self.lab("L_pin%d" % self.nstamp)
            self.e("s_memrealtime s[0:1]")
            self.e("s_waitcnt lgkmcnt(0)")
            self.e("s_sub_u32 s0, s0, s%d" % sSTAMP)
            self.e("s_cmp_lt_u32 s0, %d" % (Opt.pin_ns // 10))
            self.e("s_cbranch_scc1 L_pin%d" % self.nstamp)
            self.e("s_cmp_lg_u32 s%d, 0" % (sSTAMP + 5))
        if Opt.diag and not Opt.kdiag and (Opt.diag == 1 or i == 9):
            self.e("s_waitcnt lgkmcnt(0)")
            self.e("s_memtime %s" % sp(sSTAMP + 2 * i))
            self.e("s_memrealtime s[0:1]")
            self.e("s_waitcnt lgkmcnt(0)")
            self.e("s_mov_b32 s%d, s0" % (sSTAMP + 2 * i + 1))

def astamp(a, i):
    if Opt.diag and Opt.kdiag == 2: a.e("s_memtime %s" % sp(sSTAMP + 2 * i))

def kstamp(a, i):
    if Opt.probe == 18 + i: a.e("s_memrealtime %s" % sp(sSTAMP + 4))
    if Opt.diag and Opt.kdiag == 1: a.e("s_memtime %s" % sp(sSTAMP + 2 * i))

def mfma(d, a, b, c):
    return "v_mfma_f32_32x32x16_bf16 %s, %s, %s, %s" % (v(d, 16), v(a, 4), v(b, 4), "0" if c is None else v(c, 16))
def mfma16(d, a, b, c):
    return "v_mfma_f32_16x16x32_bf16 %s, %s, %s, %s" % (v(d, 4), v(a, 4), v(b, 4), "0" if c is None else v(c, 4))
def rd128(d, a, off):
    assert 0 <= off < 65536
    return "ds_read_b128 %s, %s offset:%d" % (v(d, 4), v(a), off)
def rdtr(d, a, off):
    assert 0 <= off < 65536
    return "ds_read_b64_tr_b16 %s, %s offset:%d" % (v(d, 2), v(a), off)

def interleave(mf, fill, per=2):
    out = []
    fill = list(fill)
    for i, m in enumerate(mf):
        out.append(m)
        if i < len(mf) - 1:
            out += fill[:per]; fill = fill[per:]
    return out + fill

def srd_words(a, regs):
    sizes = {SX: 2048 * 1024, SWG: 512 * 3584, SWU: 512 * 3584, SWQ: 512 * 1024, SWS: WS_SIZE, SWKV: 16384, SWV: 16384,
             SGATE: 1024, SWD: 1792 * 1024, SWO: 512 * 1024, SOUT: 2048 * 1024, SDBG: 256, SKV: 128 * 1024}
    for reg in regs:
        a.e("s_mov_b32 s%d, 0x%x" % (reg + 2, sizes[reg]))
        a.e("s_mov_b32 s%d, 0x20000" % (reg + 3))

def prologue(a):
    a.e("s_cmp_ge_u32 s2, 256")
    a.e("s_cbranch_scc1 L_end")
    for reg, off in ((SX, 0), (SWG, 48), (SWU, 56), (SWQ, 8), (SWS, 96), (SWKV, 16), (sTMPP, 24), (SGATE, 72),
                     (SWD, 64), (SWO, 32), (SOUT, 80), (SDBG, 88), (SKV, 96)):
        a.e("s_load_dwordx2 %s, s[0:1], %d" % (sp(reg), off))
    if Opt.probe >= 0: a.e("s_memrealtime %s" % sp(sSTAMP + 4))
    if Opt.diag or Opt.pin >= 0 or Opt.probe >= 0:
        a.e("s_memrealtime %s" % sp(sSTAMP))
        a.e("s_memtime %s" % sp(sSTAMP + 2))
    if Opt.probe == 1: a.stamp(1)
    a.e("v_lshrrev_b32 v2, 6, v0")
    a.e("v_and_b32 v0, 63, v0")
    a.e("v_readfirstlane_b32 s%d, v2" % sW)
    a.e("v_lshlrev_b32 %s, 4, v0" % v(vL16))
    srd_words(a, [SX, SWQ])
    a.e("s_and_b32 s%d, s2, 7" % sA)
    a.e("s_lshr_b32 s%d, s2, 3" % sB)
    if Opt.cmap:
        a.e("s_andn2_b32 s%d, 1, s%d" % (sT, sA))
        a.e("s_lshl_b32 s%d, s%d, 2" % (sT, sT))
        a.e("s_lshr_b32 s%d, s%d, 1" % (sD, sA))
        a.e("s_add_u32 s%d, s%d, s%d" % (sT, sT, sD))
        a.e("s_lshl_b32 s%d, s%d, 2" % (sT, sT))
    else:
        a.e("s_lshl_b32 s%d, s%d, 2" % (sT, sA))
    a.e("s_and_b32 s%d, s%d, 3" % (sD, sB))
    a.e("s_add_u32 s%d, s%d, s%d" % (sT, sT, sD))
    a.e("s_lshr_b32 s%d, s%d, 2" % (sCB, sB))
    if Opt.xrot:
        a.e("s_add_u32 s%d, s%d, %d" % (sA, sA, Opt.xrot))
        a.e("s_and_b32 s%d, s%d, 7" % (sA, sA))
    if Opt.mapmode == 0:
        a.e("s_lshl_b32 s%d, s%d, 1" % (sG, sA))
        a.e("s_and_b32 s%d, s%d, 1" % (sC, sB))
        a.e("s_add_u32 s%d, s%d, s%d" % (sG, sG, sC))
        a.e("s_lshr_b32 s%d, s%d, 1" % (sM, sB))
        a.e("s_mov_b32 s%d, s%d" % (sHP, sM))
    elif Opt.mapmode in (1, 3):
        a.e("s_and_b32 s%d, s%d, 1" % (sG, sA))
        a.e("s_lshl_b32 s%d, s%d, 3" % (sG, sG))
        a.e("s_and_b32 s%d, s%d, 7" % (sC, sB))
        a.e("s_add_u32 s%d, s%d, s%d" % (sG, sG, sC))
        a.e("s_lshr_b32 s%d, s%d, 1" % (sA, sA))
        a.e("s_lshl_b32 s%d, s%d, 2" % (sHP, sA))
        a.e("s_lshr_b32 s%d, s%d, 3" % (sC, sB))
        a.e("s_add_u32 s%d, s%d, s%d" % (sHP, sHP, sC))
        if Opt.mapmode == 1:
            a.e("s_mov_b32 s%d, s%d" % (sM, sHP))
        else:
            a.e("s_sub_u32 s%d, s%d, s%d" % (sM, sHP, sA))
            a.e("s_lshr_b32 s%d, s%d, 1" % (sB, sB))
            a.e("s_and_b32 s%d, s%d, 2" % (sB, sB))
            a.e("s_add_u32 s%d, s%d, s%d" % (sB, sB, sA))
            a.e("s_and_b32 s%d, s%d, 3" % (sB, sB))
            a.e("s_add_u32 s%d, s%d, 12" % (sB, sB))
            a.e("s_cmp_eq_u32 s%d, 3" % sC)
            a.e("s_cselect_b32 s%d, s%d, s%d" % (sM, sB, sM))
    else:
        a.e("s_and_b32 s%d, s%d, 3" % (sG, sA))
        a.e("s_lshl_b32 s%d, s%d, 2" % (sG, sG))
        a.e("s_add_u32 s%d, s%d, s%d" % (sG, sG, sD))
        a.e("s_lshr_b32 s%d, s%d, 2" % (sM, sA))
        a.e("s_lshl_b32 s%d, s%d, 3" % (sM, sM))
        a.e("s_add_u32 s%d, s%d, s%d" % (sM, sM, sCB))
        a.e("s_mov_b32 s%d, s%d" % (sHP, sM))
    a.e("s_lshl_b32 s%d, s%d, 10" % (sWK, sW))
    a.e("s_mov_b32 s%d, 0x10000" % sK64)
    if Opt.code_pf:
        a.e("s_cmp_lg_u32 s%d, s%d" % (sD, sW))
        a.e("s_cbranch_scc1 L_nopf")
        a.e("s_getpc_b64 %s" % sp(sRET))
        a.e("s_lshl_b32 s%d, s%d, 13" % (sD, sW))
        a.e("v_lshl_add_u32 v2, v0, 7, s%d" % sD)
        a.e("v_min_u32 v2, CODE_PF_MAX, v2")
        a.e("global_load_dword %s, v2, %s" % (v(vPOLL), sp(sRET)))
        a.lab("L_nopf")
    a.e("s_lshl_b32 s%d, s%d, 2" % (sA, sW))
    a.e("v_lshrrev_b32 v2, 4, v0")
    a.e("v_add_u32 v3, s%d, v2" % sA)
    a.e("v_xor_b32 v3, v3, v0")
    a.e("v_and_b32 v3, 7, v3")
    a.e("v_lshlrev_b32 v3, 4, v3")
    a.e("v_lshrrev_b32 v4, 3, v0")
    a.e("v_lshl_add_u32 v3, v4, 10, v3")
    a.e("s_lshl_b32 s%d, s%d, 17" % (sA, sG))
    a.e("s_lshl_b32 s%d, s%d, 13" % (sB, sW))
    a.e("s_add_u32 s%d, s%d, s%d" % (sA, sA, sB))
    a.e("v_add_u32 %s, s%d, v3" % (v(vDX), sA))
    a.e("s_cmp_ge_u32 s%d, 14" % sM)
    a.e("s_cbranch_scc1 L_light")

def setup_rd(a):
    a.e("s_lshr_b32 s%d, s%d, 2" % (sHI, sW))
    a.e("s_and_b32 s%d, s%d, 3" % (sLO, sW))
    a.e("v_and_b32 v2, 15, v0")
    a.e("v_lshrrev_b32 v3, 4, v0")
    a.e("v_bfe_u32 v4, v0, 1, 3")
    a.e("v_xor_b32 v4, v4, v3")
    a.e("v_lshlrev_b32 v4, 4, v4")
    a.e("v_lshl_add_u32 %s, v2, 7, v4" % v(vXA))
    a.e("v_bfe_u32 v2, v0, 2, 2")
    a.e("v_and_b32 v4, 3, v0")
    a.e("v_lshl_add_u32 %s, v3, 3, v2" % v(vQA))
    a.e("v_lshlrev_b32 %s, 6, %s" % (v(vQA), v(vQA)))
    a.e("v_xor_b32 v5, s%d, v3" % sHI)
    a.e("v_and_b32 v5, 1, v5")
    a.e("v_lshl_add_u32 %s, v5, 5, %s" % (v(vQA), v(vQA)))
    a.e("v_lshl_add_u32 %s, v4, 3, %s" % (v(vQA), v(vQA)))

def setup_oclr(a):
    srd_words(a, [SWS, SKV, SDBG])
    a.e("s_mov_b32 s%d, 0xffff" % sVM)
    a.e("s_mov_b32 s%d, 0xffff" % (sVM + 1))
    a.e("s_lshl_b32 s%d, s%d, 2" % (sA, sG))
    a.e("s_add_u32 s%d, s%d, s%d" % (sA, sA, sLO))
    a.e("s_lshl_b32 s%d, s%d, 5" % (sB, sA))
    a.e("s_lshl_b32 s%d, s%d, 1" % (sC, sHP))
    a.e("s_add_u32 s%d, s%d, s%d" % (sB, sB, sC))
    a.e("s_add_u32 s%d, s%d, s%d" % (sB, sB, sHI))
    a.e("s_lshl_b32 s%d, s%d, 10" % (sB, sB))
    a.e("s_add_u32 s%d, s%d, 0x%x" % (sOST, sB, WS_OF))
    for i in range(4): a.e("v_mov_b32 %s, -1" % v(vQ + i))
    a.vmop("buffer_store_dwordx4 %s, %s, %s, s%d offen sc1" % (v(vQ, 4), v(vL16), srd(SWS), sOST), "oclr")
    a.e("v_mov_b32 %s, 1" % v(vONE))
    a.e("v_mov_b32 %s, 0" % v(vZERO))
    a.e("v_and_b32 %s, 31, v0" % v(vGA))
    a.e("v_lshlrev_b32 %s, 2, %s" % (v(vGA), v(vGA)))

def collect(fn):
    t = Asm(); t.marks = {}
    def vmop(s_, tag):
        t.e(s_); t.marks[len(t.l) - 1] = tag
    t.vmop = vmop
    fn(t)
    return [(x, t.marks.get(i)) for i, x in enumerate(t.l)]
def put(a, items):
    for x, tag in items:
        if tag: a.vmop(x, tag)
        else: a.e(x)

def setup_attn(a):
    srd_words(a, [SWD, SWO, SOUT])
    a.e("s_lshl_b32 s%d, s%d, 2" % (sA, sG))
    a.e("s_add_u32 s%d, s%d, s%d" % (sA, sA, sLO))
    a.e("s_mul_i32 s%d, s%d, 112" % (sB, sA))
    a.e("s_lshl_b32 s%d, s%d, 3" % (sC, sM))
    a.e("s_add_u32 s%d, s%d, s%d" % (sB, sB, sC))
    a.e("s_lshl_b32 s%d, s%d, 2" % (sC, sHI))
    a.e("s_add_u32 s%d, s%d, s%d" % (sB, sB, sC))
    a.e("s_and_b32 s%d, s%d, 1" % (sC, sLO))
    a.e("s_lshl_b32 s%d, s%d, 1" % (sC, sC))
    a.e("s_add_u32 s%d, s%d, s%d" % (sB, sB, sC))
    a.e("s_lshl_b32 s%d, s%d, 10" % (sB, sB))
    a.e("s_add_u32 s%d, s%d, 0x%x" % (sHST, sB, WS_HF))
    a.e("s_mul_i32 s%d, s%d, %d" % (sC, sC, 112 * 1024))
    a.e("s_sub_u32 s%d, %d, s%d" % (sC, 112 * 1024, sC))
    a.e("s_add_u32 s%d, s%d, s%d" % (sHST2, sHST, sC))
    a.e("v_bfe_u32 v2, v0, 2, 2")
    a.e("v_lshrrev_b32 v3, 5, v0")
    a.e("v_lshl_add_u32 v2, v3, 2, v2")
    a.e("v_lshlrev_b32 v2, 6, v2")
    a.e("v_bfe_u32 v3, v0, 4, 1")
    a.e("v_lshl_add_u32 v2, v3, 5, v2")
    a.e("v_and_b32 v3, 3, v0")
    a.e("v_lshl_add_u32 v2, v3, 3, v2")
    a.e("s_lshr_b32 s%d, s%d, 1" % (sA, sW))
    a.e("s_lshl_b32 s%d, s%d, 11" % (sA, sA))
    a.e("v_add_u32 %s, s%d, v2" % (v(vWDA), sA))
    a.e("v_add_u32 %s, 0x%x, %s" % (v(vKVA), L_KV, v(vL16)))
    a.e("v_bfe_u32 v2, v0, 2, 3")
    a.e("v_lshlrev_b32 v2, 10, v2")
    a.e("v_lshrrev_b32 v3, 5, v0")
    a.e("v_lshl_add_u32 v2, v3, 6, v2")
    a.e("v_and_b32 v3, 3, v0")
    a.e("v_lshl_add_u32 v2, v3, 4, v2")
    a.e("s_lshl_b32 s%d, s%d, 7" % (sB, sCB))
    a.e("v_add_u32 %s, s%d, v2" % (v(vWDV), sB))
    a.e("v_min_u32 v2, 13, v0")
    a.e("v_lshlrev_b32 v2, 7, v2")
    a.e("s_lshr_b32 s%d, s%d, 1" % (sA, sT))
    a.e("s_lshl_b32 s%d, s%d, 11" % (sA, sA))
    a.e("s_add_u32 s%d, s%d, 0x%x" % (sA, sA, WS_HFLAG))
    a.e("v_add_u32 %s, s%d, v2" % (v(vFLA), sA))
    a.e("s_lshl_b32 s%d, s%d, 1" % (sA, sT))
    a.e("s_and_b32 s%d, s%d, 1" % (sB, sW))
    a.e("s_add_u32 s%d, s%d, s%d" % (sA, sA, sB))
    a.e("s_lshl_b32 s%d, s%d, 15" % (sB, sA))
    a.e("s_lshr_b32 s%d, s%d, 1" % (sKQ, sW))
    if Opt.kqx:
        a.e("s_lshl_b32 s%d, s%d, 1" % (sC, sCB))
        a.e("s_and_b32 s%d, s%d, 2" % (sC, sC))
        a.e("s_xor_b32 s%d, s%d, s%d" % (sKQ, sKQ, sC))
    a.e("s_lshl_b32 s%d, s%d, 13" % (sC, sKQ))
    a.e("s_add_u32 s%d, s%d, s%d" % (sB, sB, sC))
    a.e("s_add_u32 s%d, s%d, 0x%x" % (sOLD, sB, WS_OF))
    if Opt.pvz:
        a.e("s_mov_b32 s%d, 0x110000" % sA)
        a.e("s_mov_b32 s%d, 0x110000" % sB)
        a.e("v_mov_b32 v3, 0x3f803f80")
        a.e("v_cndmask_b32 v2, 0, v3, %s" % sp(sA))
    else:
        a.e("v_mov_b32 v2, 0x3f803f80")
    for i in range(16): a.e("v_mov_b32 %s, v2" % v(vV + i))
    for i in range(4): a.e("v_mov_b32 %s, v2" % v(vV1L + i))
    for i in range(4): a.e("v_mov_b32 %s, 0" % v(vE + i))
    a.e("v_lshrrev_b32 v2, 4, v0")
    a.e("v_lshl_add_u32 %s, v2, 8, %s" % (v(vHA), v(vL16)))
    for i in range(16): a.e("v_mov_b32 %s, 0" % v(vO + i))
    for i in range(32): a.e("v_mov_b32 %s, 0" % v(vD + i))
    c0 = -2.0 * math.sqrt(2.0 / math.pi) * math.log2(math.e)
    a.e("v_mov_b32 %s, 0x%x" % (v(vC0), f2u(c0)))
    a.e("v_mov_b32 %s, 0x%x" % (v(vC0 + 1), f2u(c0 * 0.044715)))

def kv_first_loads(a):
    it = []
    for u in range(2):
        it.append(("s_add_u32 m0, s%d, 0x%x\ns_add_u32 s%d, s%d, 0x%x\nbuffer_load_dwordx4 %s, %s, s%d offen sc1 lds"
                   % (sWK, L_KV + u * 8192, sA, sWK, u * 8192, v(vL16), srd(SKV), sA), "kv%d" % u))
    it.append(("s_mov_b32 s%d, 0x%x\nbuffer_load_dwordx4 %s, %s, %s, s%d offen sc1"
               % (sA, 63 * 2048, v(vK0, 4), v(vL16), srd(SKV), sA), "k0"))
    it.append(("s_mov_b64 exec, %s\nbuffer_load_dwordx4 %s, %s, %s, 0 offen offset:%d sc1\ns_mov_b64 exec, -1"
               % (sp(sVM), v(vV1L, 4), v(vL16), srd(SKV), 1024 + 256), "k0"))
    it.append(("s_lshl_b32 s%d, s%d, 2\ns_add_u32 s%d, s%d, s%d\ns_lshl_b32 s%d, s%d, 7\ns_add_u32 s%d, s%d, 0x%x\n"
               "buffer_load_dword %s, %s, %s, s%d offen sc1"
               % (sA, sG, sA, sA, sLO, sA, sA, sA, sA, WS_G, v(vGP), v(vGA), srd(SWS), sA), "k0"))
    it.append(("s_lshl_b32 s%d, s%d, 1\ns_and_b32 s%d, s%d, 1\ns_add_u32 s%d, s%d, s%d\ns_lshl_b32 s%d, s%d, 7\ns_add_u32 s%d, s%d, 0x%x\n"
               "buffer_load_dword %s, %s, %s, s%d offen sc1"
               % (sA, sT, sB, sW, sA, sA, sB, sA, sA, sA, sA, WS_G, v(vGC), v(vGA), srd(SWS), sA), "k0"))
    return it

def spin_counter(a, name, first_loaded):
    a.e("s_cmp_lg_u32 s%d, 0" % sW)
    a.e("s_cbranch_scc1 L_%s_done" % name)
    a.e("s_mov_b32 s%d, 0x4000" % sB)
    if first_loaded: a.e("s_branch L_%s_chk" % name)
    a.lab("L_%s_re" % name)
    a.e("buffer_load_dword %s, off, %s, 0 sc1" % (v(vPOLL), srd(SDBG)))
    a.e("s_waitcnt vmcnt(0)")
    a.lab("L_%s_chk" % name)
    a.e("v_readfirstlane_b32 s%d, %s" % (sA, v(vPOLL)))
    a.e("s_cmp_ge_u32 s%d, 32" % sA)
    a.e("s_cbranch_scc1 L_%s_done" % name)
    a.e("s_sleep 4")
    a.e("s_sub_u32 s%d, s%d, 1" % (sB, sB))
    a.e("s_cmp_lg_u32 s%d, 0" % sB)
    a.e("s_cbranch_scc1 L_%s_re" % name)
    a.lab("L_%s_done" % name)

def phase1_F(a):
    SCHED = {1: ["01423567", "10253467", "23016457", "32104756"],
             2: ["02134657", "01324576", "10243567", "10235467"],
             3: ["01324657", "01243576", "12035467", "20134567"],
             5: ["01243567", "10325467", "23014657", "32104576"],
             4: ["02143657", "10325476", "02143657", "10325476"]}
    tabs = SCHED[Opt.sched] if Opt.sched else ["".join(str(c ^ (p & Opt.xmask)) for c in range(8)) for p in range(4)]
    for t_ in tabs: assert sorted(t_) == list("01234567")
    num = [int(t_[::-1], 16) for t_ in tabs]
    a.e("s_add_u32 s%d, s%d, s%d" % (sA, sG, sHP))
    a.e("s_mov_b32 s%d, 0x%x" % (sXP, num[0]))
    a.e("s_mov_b32 s%d, 0x%x" % (sB, num[2]))
    a.e("s_bitcmp1_b32 s%d, 0" % sA)
    a.e("s_cselect_b32 s%d, 0x%x, s%d" % (sXP, num[1], sXP))
    a.e("s_cselect_b32 s%d, 0x%x, s%d" % (sB, num[3], sB))
    a.e("s_bitcmp1_b32 s%d, 1" % sA)
    a.e("s_cselect_b32 s%d, s%d, s%d" % (sXP, sB, sXP))
    if Opt.ghx:
        a.e("s_bitcmp1_b32 s%d, 3" % sG)
        a.e("s_cselect_b32 s%d, 0x44444444, 0" % sB)
        a.e("s_xor_b32 s%d, s%d, s%d" % (sXP, sXP, sB))
    a.e("s_and_b32 s%d, s%d, 3" % (sLO, sW))
    a.e("s_lshl_b32 s%d, s%d, 10" % (sWH, sLO))
    if Opt.hrot:
        a.e("s_lshl_b32 s%d, s%d, %d" % (sOFFQ, sA, 13 - (Opt.hrot & 1)))
        a.e("s_and_b32 s%d, s%d, 0x2000" % (sOFFQ, sOFFQ))
        a.e("s_add_u32 s%d, s%d, s%d" % (sM0B, sWH, sOFFQ))
        a.e("s_sub_u32 s%d, s%d, s%d" % (sM0B + 1, sWH, sOFFQ))

    def wvoff(a):
        a.e("s_lshl_b32 s%d, s%d, 1" % (sA, sLO))
        a.e("s_and_b32 s%d, s%d, 4" % (sA, sA))
        a.e("v_lshrrev_b32 v2, 4, v0")
        a.e("v_bfe_u32 v3, v0, 1, 3")
        a.e("v_xor_b32 v3, v3, v2")
        a.e("v_xor_b32 v3, s%d, v3" % sA)
        a.e("v_lshlrev_b32 v3, 5, v3")
        a.e("v_and_b32 v4, 1, v0")
        a.e("v_lshl_add_u32 v3, v4, 4, v3")
        a.e("v_mul_u32_u24 v5, 3584, v2")
        a.e("s_mul_i32 s%d, s%d, %d" % (sA, sLO, 4 * 3584))
        a.e("s_lshl_b32 s%d, s%d, 8" % (sB, sM))
        a.e("s_add_u32 s%d, s%d, s%d" % (sA, sA, sB))
        a.e("v_add3_u32 %s, v3, v5, s%d" % (v(vDG), sA))
    def qvoff(a):
        a.e("v_lshrrev_b32 v3, 2, v0")
        a.e("v_lshlrev_b32 v3, 10, v3")
        a.e("v_bfe_u32 v4, v0, 4, 2")
        a.e("v_and_b32 v4, 2, v4")
        a.e("v_xor_b32 v4, v4, v0")
        a.e("v_and_b32 v4, 3, v4")
        a.e("v_lshl_add_u32 v3, v4, 4, v3")
        a.e("s_lshl_b32 s%d, s%d, 14" % (sA, sLO))
        a.e("s_lshl_b32 s%d, s%d, 6" % (sB, sHP))
        a.e("s_add_u32 s%d, s%d, s%d" % (sA, sA, sB))
        a.e("v_add_u32 %s, s%d, v3" % (v(vDQ), sA))

    if Opt.hrot:
        ORDER = [("q", 0)] + [(t_, 2 * h_ + j) for h_ in range(2) for t_, j in (("x", 0), ("x", 1), ("g", 0), ("u", 0), ("g", 1), ("u", 1))]
    else:
        ORDER = [("q", 0)] + [("x", j) for j in range(4)] + [(t_, j) for j in range(4) for t_ in "gu"]
    def block(items):
        out = []; lastc = None; lastw = None
        for c, kind, j in items:
            s = c % 3; pre = []
            if c != lastc:
                pre.append("s_bfe_u32 s%d, s%d, 0x%x" % (sCH, sXP, 0x30000 + 4 * c)); lastc = c; lastw = None
            fam = "w" if kind in "gu" else kind
            rot = Opt.hrot and fam != "q"
            if lastw is None or lastw[0] != fam or (rot and lastw[1] >> 1 != j >> 1):
                pre.append({"q": "s_lshl_b32 s%d, s%d, 16" % (sOFFW, sCH), "x": "s_lshl_b32 s%d, s%d, 7" % (sOFFW, sCH),
                            "w": "s_mul_i32 s%d, s%d, %d" % (sOFFW, sCH, 64 * 3584)}[fam])
                if rot: pre.append("s_%s_u32 s%d, s%d, s%d" % ("sub" if j >> 1 else "add", sOFFW, sOFFW, sRX if fam == "x" else sRW))
                lastw = (fam, 0)
            if lastw[1] != j:
                pre.append("s_add_u32 s%d, s%d, 0x%x" % (sOFFW, sOFFW, (j - lastw[1]) * (0x8000 if fam == "x" else 16 * 3584)))
                lastw = (fam, j)
            m0c, vo, rs = {"q": (L_WQ + s * 4096, vDQ, SWQ), "x": (L_X + s * 16384 + j * 4096, vDX, SX),
                           "g": (L_G + s * 16384 + j * 4096, vDG, SWG), "u": (L_U + s * 16384 + j * 4096, vDG, SWU)}[kind]
            nt = " nt" if Opt.ntx & (1 if rs == SX else 2) else ""
            out.append(("s_add_u32 m0, s%d, 0x%x\n%s\nbuffer_load_dwordx4 %s, %s, s%d offen%s lds"
                        % ((sM0B + (j >> 1)) if rot else sWH, m0c, "\n".join(pre) or "s_nop 0", v(vo), srd(rs), sOFFW, nt), "c%d" % c))
        return out
    def part(c, role): return [(c, k_, j) for k_, j in ORDER if (k_ in "gu") == (role == "A")]

    def rdsetup(a):
        setup_rd(a)
        a.e("v_lshl_add_u32 %s, v3, 3, v2" % v(vWA))
        a.e("v_lshlrev_b32 %s, 8, %s" % (v(vWA), v(vWA)))
        a.e("v_lshl_add_u32 %s, v4, 3, %s" % (v(vWA), v(vWA)))
        a.e("v_and_b32 v5, 1, v3")
        a.e("v_lshl_add_u32 v2, v5, 2, v2")
        a.e("s_lshl_b32 s%d, s%d, 2" % (sA, sHI))
        a.e("s_and_b32 s%d, s%d, 1" % (sB, sLO))
        a.e("s_lshl_b32 s%d, s%d, 1" % (sB, sB))
        a.e("s_add_u32 s%d, s%d, s%d" % (sA, sA, sB))
        a.e("v_xor_b32 v2, s%d, v2" % sA)
        a.e("v_lshl_add_u32 %s, v2, 5, %s" % (v(vWA), v(vWA)))
        a.e("v_xor_b32 %s, 32, %s" % (v(vWA + 1), v(vWA)))
        a.e("v_add_u32 %s, 0x%x, %s" % (v(vWA + 2), L_U - L_G, v(vWA)))
        a.e("v_add_u32 %s, 0x%x, %s" % (v(vWA + 3), L_U - L_G, v(vWA + 1)))
        a.e("s_lshl_b32 s%d, s%d, 12" % (sA, sLO))
        a.e("s_add_u32 s%d, s%d, 0x%x" % (sA, sA, L_X))
        a.e("v_add_u32 %s, s%d, %s" % (v(vXA), sA, v(vXA)))
        a.e("v_xor_b32 %s, 0x1000, %s" % (v(vXA + 1), v(vXA)))
        a.e("v_xor_b32 %s, 64, %s" % (v(vXA + 2), v(vXA)))
        a.e("v_xor_b32 %s, 64, %s" % (v(vXA + 3), v(vXA + 1)))
        a.e("v_add_u32 %s, 0x%x, %s" % (v(vQA), L_WQ, v(vQA)))

    srd_words(a, [SWG, SWU])
    a.e("s_cmp_ge_u32 s%d, 4" % sW)
    a.e("s_cbranch_scc1 L_setB")
    late = collect(setup_oclr) + collect(setup_attn)
    words = collect(lambda t: srd_words(t, [SWS, SKV, SDBG, SWD, SWO, SOUT]))
    late = [x for x in late if x not in words]
    oclr = [x for x in late if x[1] == "oclr"]
    if Opt.olate: late = [x for x in late if x[1] != "oclr"]
    else: oclr = []
    words += [("v_mov_b32 %s, 0" % v(r_), None) for r_ in (vGA, vWDV, vFLA, vHA)]
    st = collect(rdsetup) + words + late[:Opt.fillpre]
    fills = {"A": late[Opt.fillpre:], "B": late[Opt.fillpre:]}
    vms = {}
    for role in "AB":
        a.vm = []
        if role == "A":
            wvoff(a)
        else:
            a.lab("L_setB")
            a.e("v_subrev_u32 %s, 0x8000, %s" % (v(vDX), v(vDX)))
            qvoff(a)
        a.e("s_waitcnt lgkmcnt(0)")
        a.stamp(2)
        if Opt.hrot:
            a.e("s_lshl_b32 s%d, s%d, 3" % (sRX, sOFFQ))
            a.e("s_mul_i32 s%d, s%d, 14" % (sRW, sOFFQ))
        put(a, block(part(0, role)))
        if Opt.tlb and role == "B":
            a.e("s_and_b32 s%d, s%d, 7" % (sA, sG))
            a.e("v_lshl_add_u32 v2, v0, 3, s%d" % sA)
            a.e("v_mul_u32_u24 v3, 3584, v2")
            a.e("s_lshl_b32 s%d, s%d, 8" % (sA, sM))
            a.e("s_and_b32 s%d, s%d, 1" % (sB, sW))
            a.e("s_lshl_b32 s%d, s%d, 7" % (sB, sB))
            a.e("s_add_u32 s%d, s%d, s%d" % (sA, sA, sB))
            if Opt.tlb == 1: a.e("s_mov_b64 exec, 0x%x" % 0x11111111); a.e("s_mov_b32 exec_hi, 0x11111111")
            if Opt.tlb == 2: a.e("s_bitcmp1_b32 s%d, 3\ns_cselect_b32 exec_lo, 0, 0xffff0000\ns_cselect_b32 exec_hi, 0xffff0000, 0" % sG)
            a.e("s_cmp_ge_u32 s%d, 6" % sW)
            a.e("s_cbranch_scc1 L_tlbu")
            a.e("buffer_load_dword %s, v3, %s, s%d offen" % (v(vPOLL), srd(SWG), sA))
            a.e("s_branch L_tlbe")
            a.lab("L_tlbu")
            a.e("buffer_load_dword %s, v3, %s, s%d offen" % (v(vPOLL), srd(SWU), sA))
            a.lab("L_tlbe")
            a.e("s_mov_b64 exec, -1")
            a.vm.append("tlb")
        if Opt.startbar: a.e("s_barrier")
        npre = min(Opt.npre, 8) if role == "A" else 5
        pn = block(part(1, role)[:npre])
        rest = st + collect(qvoff if role == "A" else wvoff)
        gap = len(rest) // (npre + Opt.pregap) + 1
        for i in range(npre):
            put(a, pn[:1]); pn = pn[1:]
            put(a, rest[:gap]); rest = rest[gap:]
        put(a, rest)
        a.e("s_mov_b64 vcc, %d" % (-1 if role == "A" else 0))
        if role == "A":
            a.waitvm("c0")
            a.e("s_branch L_k0")
        else:
            a.e("s_setprio 1")
            a.waitvm("c0")
        vms[role] = a.vm
    stream = part(1, "A")[min(Opt.npre, 8):] + [(c, k_, j) for c in range(2, 8) for k_, j in ORDER]
    qa = [int(x, 16) for x in Opt.qa]; qb = [int(x, 16) for x in Opt.qb]
    def take(n, cmax):
        m = 0
        while m < n and m < len(stream) and stream[m][0] <= cmax: m += 1
        r_ = stream[:m]; del stream[:m]
        return block(r_)
    a.lab("L_k0")
    a.vm = vms["A"]
    ool = Asm()
    def dmablock(name, role, items, wait=None):
        a.e("s_cbranch_vcc%s L_%s" % ("nz" if role == "A" else "z", name))
        if wait: a.waitvm(wait, lgkm=True)
        a.lab("L_%s_r" % name)
        ool.lab("L_%s" % name)
        ool.vm = a.vm if role == "A" else vms["B"]
        for it_ in items:
            if it_[1] is None: put(ool, fills[role]); fills[role] = []
            put(ool, [it_])
            put(ool, fills[role][:Opt.fillper]); fills[role] = fills[role][Opt.fillper:]
        if name == "e7": put(ool, fills[role]); fills[role] = []
        if wait: ool.waitvm(wait, lgkm=True)
        if role == "B": vms["B"] = ool.vm
        ool.e("s_branch L_%s_r" % name)
    a.ool = ool.l

    def fr(k):
        b = vF1 + 36 * (k % 2)
        return dict(x=b, w=b + 16, q=b + 32)
    def reads(k):
        c, s = divmod(k, 2); f = fr(k); sl = c % 3
        wo = sl * 16384 + s * 8192
        W = lambda i: [rdtr(f['w'] + 4 * i, vWA + i, wo), rdtr(f['w'] + 4 * i + 2, vWA + i, wo + 1024)]
        X = [rd128(f['x'] + 4 * b, vXA + 2 * s + (b >> 1), sl * 16384 + (b & 1) * 2048) for b in range(4)]
        return W(0) + X + W(2) + W(1) + W(3) + [rdtr(f['q'], vQA, sl * 4096 + s * 2048), rdtr(f['q'] + 2, vQA, sl * 4096 + s * 2048 + 256)]
    a.e("s_barrier")
    a.stamp(3)
    if Opt.kdiag or Opt.probe >= 18:
        kstamp(a, 2)
        a.e("s_waitcnt lgkmcnt(0)")
    for r in reads(0): a.e(r)
    if qa[0]: dmablock("d2", "A", take(qa[0], 2))
    for k in range(16):
        c, s = divmod(k, 2); f = fr(k)
        z = lambda x: None if k == 0 else x
        mf = []
        for n_, i in enumerate((0, 2, 1, 3)):
            for b in (range(4) if n_ % 2 == 0 else range(3, -1, -1)):
                d = vACC + 16 * b + 4 * i
                mf.append(mfma16(d, f['w'] + 4 * i, f['x'] + 4 * b, z(d)))
        for b in range(2): mf.append(mfma16(vAQ + 4 * b, f['q'], f['x'] + 4 * b, z(vAQ + 4 * b)))
        rds = reads(k + 1) if k < 15 else []
        if s == 0:
            a.e("s_waitcnt lgkmcnt(6)")
            for i, m in enumerate(mf):
                if i == 8: a.e("s_waitcnt lgkmcnt(8)")
                a.e(m)
                if i < len(rds): a.e(rds[i])
            continue
        a.e("s_waitcnt lgkmcnt(8)")
        for m in mf[:4]: a.e(m)
        if c <= 5:
            dmablock("e%d" % (c + 2), "B", take(qb[c], c + 2), "c%d" % (c + 1))
            assert not any(x[0] <= c + 1 for x in stream)
        if c == 7:
            a.e("s_waitcnt lgkmcnt(0)")
        elif c == 6 and Opt.stagger:
            a.e("s_waitcnt lgkmcnt(0)")
            a.e("s_cbranch_vccz L_st7")
            a.e("s_waitcnt vmcnt(0)")
            spin_counter(a, "kvf", True)
            a.e("s_barrier")
            a.e("s_setprio 1")
            for x, _ in kv_first_loads(a) + oclr: a.e(x)
            a.lab("L_st7")
        elif c == 6:
            a.e("s_setprio 0")
            a.wait0(lgkm=True)
            spin_counter(a, "kvf", True)
            a.e("s_barrier")
            put(a, kv_first_loads(a) + oclr)
        else:
            a.e("s_barrier")
        if c < 7 and ((Opt.kdiag == 1 and Opt.diag) or Opt.probe == 21 + c):
            kstamp(a, 3 + c)
            a.e("s_waitcnt lgkmcnt(0)")
        if c + 3 < 8:
            items = take(qa[c + 1], c + 3)
            if c == 4:
                items.append(("s_cmp_lg_u32 s%d, 0\ns_cbranch_scc1 L_d7_r\nbuffer_load_dword %s, off, %s, 0 sc1"
                              % (sW, v(vPOLL), srd(SDBG)), None))
            dmablock("d%d" % (c + 3), "A", items)
        for i, m in enumerate(mf[4:]):
            a.e(m)
            if i < len(rds): a.e(rds[i])
        if k == 11: assert not stream and not fills["A"] and not fills["B"]
        if k == 11 and Opt.stagger:
            a.e("s_cbranch_vccnz L_st6")
            a.e("s_setprio 0")
            a.wait0()
            a.e("s_barrier")
            put(a, kv_first_loads(a) + oclr)
            a.lab("L_st6")
    a.stamp(4)

def phase1_L(a):
    a.lab("L_light")
    a.vm = []
    srd_words(a, [SWKV, SWV, SGATE])
    a.e("s_sub_u32 s%d, s%d, 14" % (sCNT, sM))
    a.e("s_lshl_b32 s%d, s%d, 16" % (sOLD, sCNT))
    a.e("s_lshl_b32 s%d, s%d, 13" % (sHST, sCNT))
    a.e("s_add_u32 s%d, s%d, s%d" % (sWH, sHST, sWK))
    a.e("s_xor_b32 s%d, s%d, 0x2000" % (sHST, sHST))
    a.e("s_add_u32 s%d, s%d, 0x2000" % (sA, sWK))
    a.e("s_waitcnt lgkmcnt(0)")
    a.stamp(2)
    a.e("s_mov_b32 s%d, s%d" % (SWV, sTMPP))
    a.e("s_mov_b32 s%d, s%d" % (SWV + 1, sTMPP + 1))
    def xdma(c, base, so):
        a.vmop("s_add_u32 m0, s%d, 0x%x\ns_nop 0\nbuffer_load_dwordx4 %s, %s, s%d offen offset:%d lds"
               % (base, LL_X + c * 16384 - c * 128, v(vDX), srd(SX), so, c * 128), "c%d" % c)
    def wdma(u):
        for t, rs in enumerate((SWKV, SWV)):
            a.vmop("s_add_u32 m0, s%d, 0x%x\ns_nop 0\nbuffer_load_dwordx4 %s, %s, s%d offen lds"
                   % (sWK, LL_W + t * 16384 + u * 8192, v(vL16), srd(rs), sA if u else sWK), "w")
    wdma(0)
    a.vmop("s_mov_b32 m0, s%d\ns_nop 0\nbuffer_load_dwordx4 %s, %s, 0 offen lds" % (sHST, v(vL16), srd(SGATE)), "w")
    for c in range(8):
        if c == 4: wdma(1)
        xdma(c, sWH, sOLD)
        if c in (1, 3, 5): a.e("s_barrier")
    setup_rd(a)
    a.e("v_lshrrev_b32 v3, 5, v0")
    a.e("v_bfrev_b32 v5, v4")
    a.e("v_lshrrev_b32 v5, 30, v5")
    a.e("s_cmp_ge_u32 s%d, 2" % sLO)
    a.e("s_cselect_b64 vcc, -1, 0")
    a.e("v_cndmask_b32 v4, v5, v4, vcc")
    a.e("v_lshl_add_u32 %s, v3, 3, v2" % v(vWA))
    a.e("v_lshlrev_b32 %s, 5, %s" % (v(vWA), v(vWA)))
    a.e("v_lshl_add_u32 %s, v4, 3, %s" % (v(vWA), v(vWA)))
    a.e("s_lshr_b32 s%d, s%d, 1" % (sA, sLO))
    a.e("s_lshl_b32 s%d, s%d, 14" % (sA, sA))
    a.e("s_add_u32 s%d, s%d, 0x%x" % (sA, sA, LL_W))
    a.e("v_add_u32 %s, s%d, %s" % (v(vWA), sA, v(vWA)))
    a.e("v_lshl_add_u32 %s, v3, 4, s%d" % (v(vWA + 1), sHST))
    a.e("s_and_b32 s%d, s%d, 1" % (sA, sLO))
    a.e("s_lshl_b32 s%d, s%d, 1" % (sB, sCNT))
    a.e("s_add_u32 s%d, s%d, s%d" % (sCNT, sA, sB))
    a.e("s_lshl_b32 s%d, s%d, 12" % (sA, sCNT))
    a.e("v_and_b32 v2, 31, v0")
    a.e("v_bfe_u32 v4, v0, 1, 3")
    a.e("v_xor_b32 v4, v4, v3")
    a.e("v_lshlrev_b32 v4, 4, v4")
    a.e("v_lshl_add_u32 v4, v2, 7, v4")
    a.e("v_add_u32 %s, s%d, v4" % (v(vLX), sA))
    for s in range(1, 4): a.e("v_xor_b32 %s, %d, %s" % (v(vLX + s), 32 * s, v(vLX)))
    for s in range(4): a.e("v_add_u32 %s, 0x10000, %s" % (v(vLX + 4 + s), v(vLX + s)))
    setup_oclr(a)
    vm0 = list(a.vm)
    a.e("s_cmp_lg_u32 s%d, 0" % sHI)
    a.e("s_cbranch_scc1 L_lB")
    a.e("s_not_b64 %s, %s" % (sp(sTMPP), sp(sVM)))
    a.e("s_cmp_ge_u32 s%d, 2" % sLO)
    a.e("s_cbranch_scc1 L_lV")
    def chain(kind):
        a.vm = list(vm0)
        def fr(k):
            b = vFR + 8 * (k % 4)
            return b, b + 4
        def reads(k):
            c, s = divmod(k, 4); x, w = fr(k)
            r = [rd128(x, vLX + s + 4 * (c >> 2), (c & 3) * 16384), rdtr(w, vWA, k * 512), rdtr(w + 2, vWA, k * 512 + 128)]
            if kind == "K":
                r += ["s_mov_b64 exec, %s" % sp(sTMPP), rd128(w, vWA + 1, k * 32), "s_mov_b64 exec, -1"]
            return r
        for q in range(4):
            a.waitvm("c%d" % (2 * q + 1))
            a.e("s_barrier")
            nr = 4 if kind == "K" else 3
            for k in range(8 * q, 8 * q + 2):
                for r in reads(k): a.e(r)
            for k in range(8 * q, 8 * q + 8):
                if k + 2 < 8 * q + 8:
                    for r in reads(k + 2): a.e(r)
                left = min(2, 8 * q + 7 - k)
                a.e("s_waitcnt lgkmcnt(%d)" % (left * nr))
                x, w = fr(k)
                cc = None if k == 0 else vACC
                a.e(mfma(vACC, w, x, cc) if kind == "K" else mfma(vACC, x, w, cc))
        a.e("s_lshl_b32 s%d, s%d, 2" % (sA, sG))
        a.e("s_add_u32 s%d, s%d, s%d" % (sA, sA, sCNT))
        a.e("s_nop 12")
        if kind == "K":
            a.e("s_mov_b32 s%d, 0x%x" % (sC, f2u(0.25 * math.log2(math.e))))
            for i in range(8): a.e("v_mul_f32 %s, s%d, %s" % (v(vACC + i), sC, v(vACC + i)))
            a.e("v_mul_f32 %s, 0x%x, %s" % (v(vACC + 8), f2u(-math.log2(math.e)), v(vACC + 8)))
            a.e("v_exp_f32 %s, %s" % (v(vACC + 8), v(vACC + 8)))
            for i in range(4): a.e("v_cvt_pk_bf16_f32 %s, %s, %s" % (v(vFR + i), v(vACC + 2 * i), v(vACC + 2 * i + 1)))
            a.e("v_add_f32 %s, 1.0, %s" % (v(vACC + 8), v(vACC + 8)))
            a.e("v_rcp_f32 %s, %s" % (v(vACC + 8), v(vACC + 8)))
            a.e("s_add_u32 s%d, s%d, 63" % (sB, sA))
            a.e("s_and_b32 s%d, s%d, 63" % (sB, sB))
            a.e("s_lshl_b32 s%d, s%d, 11" % (sB, sB))
            a.e("buffer_store_dwordx4 %s, %s, %s, s%d offen sc1" % (v(vFR, 4), v(vL16), srd(SKV), sB))
            a.e("s_lshl_b32 s%d, s%d, 7" % (sB, sA))
            a.e("s_add_u32 s%d, s%d, 0x%x" % (sB, sB, WS_G))
            a.e("s_mov_b32 exec_hi, 0")
            a.e("buffer_store_dword %s, %s, %s, s%d offen sc1" % (v(vACC + 8), v(vGA), srd(SWS), sB))
            a.e("s_mov_b64 exec, -1")
        else:
            for i in range(8): a.e("v_cvt_pk_bf16_f32 %s, %s, %s" % (v(vFR + i), v(vACC + 2 * i), v(vACC + 2 * i + 1)))
            a.e("v_bfe_u32 v2, v0, 4, 1")
            a.e("v_add_u32 v2, s%d, v2" % sA)
            a.e("v_and_b32 v2, 63, v2")
            a.e("v_lshl_add_u32 v2, v2, 11, %s" % v(vL16))
            for i in range(4): a.e("v_cndmask_b32 %s, %s, %s, %s" % (v(vFR + i), v(vFR + 4 + i), v(vFR + i), sp(sVM)))
            a.e("buffer_store_dwordx4 %s, v2, %s, 0 offen offset:1024 sc1" % (v(vFR, 4), srd(SKV)))
        a.e("s_branch L_lJ")
    chain("K")
    a.lab("L_lV")
    chain("V")
    a.lab("L_lB")
    a.vm = list(vm0)
    a.e("s_cmp_lg_u32 s%d, 14" % sM)
    a.e("s_cbranch_scc1 L_nozf")
    a.e("s_cmp_lg_u32 s%d, 4" % sW)
    a.e("s_cbranch_scc1 L_nozf")
    a.e("v_lshlrev_b32 v2, 7, v0")
    a.e("s_lshl_b32 s%d, s%d, 11" % (sA, sG))
    a.e("s_add_u32 s%d, s%d, 0x%x" % (sA, sA, WS_HFLAG))
    a.e("s_mov_b64 exec, 0xffff")
    a.e("buffer_store_dword %s, v2, %s, s%d offen sc1" % (v(vZERO), srd(SWS), sA))
    a.e("s_mov_b64 exec, -1")
    a.lab("L_nozf")
    for q in range(4):
        a.waitvm("c%d" % (2 * q + 1))
        a.e("s_barrier")
    a.lab("L_lJ")
    a.e("v_lshrrev_b32 v3, 2, v0")
    a.e("v_lshlrev_b32 v3, 10, v3")
    a.e("v_lshrrev_b32 v4, 5, v0")
    a.e("v_lshlrev_b32 v4, 1, v4")
    a.e("v_xor_b32 v4, v4, v0")
    a.e("v_and_b32 v4, 3, v4")
    a.e("v_lshl_add_u32 v3, v4, 4, v3")
    a.e("s_lshl_b32 s%d, s%d, 14" % (sA, sW))
    a.e("s_lshl_b32 s%d, s%d, 6" % (sB, sHP))
    a.e("s_add_u32 s%d, s%d, s%d" % (sA, sA, sB))
    a.e("v_add_u32 %s, s%d, v3" % (v(vDQ), sA))
    a.e("s_xor_b32 s%d, s%d, 0x2000" % (sWH, sWH))
    a.e("s_xor_b32 s%d, s%d, 0x10000" % (sOLD, sOLD))
    a.wait0(lgkm=True)
    a.e("s_barrier")
    a.e("s_cmp_lg_u32 s%d, 0" % sW)
    a.e("s_cbranch_scc1 L_noat")
    a.e("s_mov_b64 exec, 1")
    a.e("buffer_atomic_add %s, off, %s, 0 sc1" % (v(vONE), srd(SDBG)))
    a.e("s_mov_b64 exec, -1")
    a.lab("L_noat")
    a.stamp(3)
    for c in range(8): xdma(c, sWH, sOLD)
    for p in range(4):
        a.e("s_add_u32 m0, s%d, 0x%x" % (sWK, LL_WQ + p * 8192))
        a.e("s_mov_b32 s%d, 0x%x" % (sA, p * 128 * 1024))
        a.e("buffer_load_dwordx4 %s, %s, s%d offen lds" % (v(vDQ), srd(SWQ), sA))
    setup_attn(a)
    if Opt.touch & 2:
        a.e("s_lshl_b32 s%d, s%d, 1" % (sA, sG))
        a.e("s_add_u32 s%d, s%d, s%d" % (sA, sA, sM))
        a.e("s_sub_u32 s%d, s%d, 14" % (sA, sA))
        a.e("s_lshl_b32 s%d, s%d, 3" % (sA, sA))
        a.e("s_add_u32 s%d, s%d, s%d" % (sA, sA, sW))
        a.e("v_lshlrev_b32 v2, 15, v0")
        a.e("s_lshl_b32 s%d, s%d, 7" % (sA, sA))
        a.e("buffer_load_dword %s, v2, %s, s%d offen" % (v(vPOLL), srd(SWO), sA))
        a.e("buffer_load_dword %s, v2, %s, s%d offen" % (v(vPOLL), srd(SWD), sA))
    a.e("s_lshl_b32 s%d, s%d, 12" % (sA, sLO))
    a.e("v_add_u32 %s, s%d, %s" % (v(vXA), sA, v(vXA)))
    a.e("v_xor_b32 %s, 64, %s" % (v(vXA + 1), v(vXA)))
    a.e("v_add_u32 %s, 0x10000, %s" % (v(vXA + 2), v(vXA)))
    a.e("v_add_u32 %s, 0x10000, %s" % (v(vXA + 3), v(vXA + 1)))
    a.e("v_add_u32 %s, 0x%x, %s" % (v(vQA), LL_WQ, v(vQA)))
    a.e("s_waitcnt vmcnt(%d)" % (2 if Opt.touch & 2 else 0))
    a.e("s_barrier")
    def fr(k): return vFR + 12 * (k % 3)
    def reads(k):
        c, s = divmod(k, 2); f = fr(k)
        return [rd128(f + 4 * b, vXA + s + 2 * (c >> 2), (c & 3) * 16384 + b * 2048) for b in range(2)] + \
               [rdtr(f + 8, vQA, k * 2048), rdtr(f + 10, vQA, k * 2048 + 256)]
    for k in range(2):
        for r in reads(k): a.e(r)
    for k in range(16):
        a.e("s_waitcnt lgkmcnt(%d)" % (4 * min(1, 15 - k)))
        for b in range(2): a.e(mfma16(vAQ + 4 * b, fr(k) + 8, fr(k) + 4 * b, None if k == 0 else vAQ + 4 * b))
        if k + 2 < 16:
            for r in reads(k + 2): a.e(r)
    spin_counter(a, "kvl", False)
    a.e("s_barrier")
    for s, t in kv_first_loads(a): a.e(s)
    a.wait0()
    a.stamp(4)
    a.e("s_branch L_join")

def gelu_tile(a, ti, scalar=False):
    acc = vACC + 16 * ti
    t = vFR
    o = vFR + 8 + 4 * ti
    pk = lambda r: v(r, 2)
    if scalar:
        for i in range(8): a.e("v_mul_f32 %s, %s, %s" % (v(t + i), v(acc + i), v(acc + i)))
        for i in range(8): a.e("v_fma_f32 %s, %s, %s, %s" % (v(t + i), v(t + i), v(vC0 + 1), v(vC0)))
        for i in range(8): a.e("v_mul_f32 %s, %s, %s" % (v(t + i), v(t + i), v(acc + i)))
        for i in range(8): a.e("v_exp_f32 %s, %s" % (v(t + i), v(t + i)))
        for i in range(8): a.e("v_add_f32 %s, 1.0, %s" % (v(t + i), v(t + i)))
        for i in range(8): a.e("v_rcp_f32 %s, %s" % (v(t + i), v(t + i)))
        for i in range(8): a.e("v_mul_f32 %s, %s, %s" % (v(acc + i), v(acc + i), v(acc + 8 + i)))
        for i in range(8): a.e("v_mul_f32 %s, %s, %s" % (v(acc + i), v(acc + i), v(t + i)))
    R4, R8 = (range(0), range(0)) if scalar else (range(4), range(8))
    for i in R4: a.e("v_pk_mul_f32 %s, %s, %s" % (pk(t + 2 * i), pk(acc + 2 * i), pk(acc + 2 * i)))
    for i in R4: a.e("v_pk_fma_f32 %s, %s, %s, %s op_sel:[0,1,0] op_sel_hi:[1,1,0]" % (pk(t + 2 * i), pk(t + 2 * i), pk(vC0), pk(vC0)))
    for i in R4: a.e("v_pk_mul_f32 %s, %s, %s" % (pk(t + 2 * i), pk(t + 2 * i), pk(acc + 2 * i)))
    for i in R8: a.e("v_exp_f32 %s, %s" % (v(t + i), v(t + i)))
    for i in R4: a.e("v_pk_add_f32 %s, %s, 1.0 op_sel_hi:[1,0]" % (pk(t + 2 * i), pk(t + 2 * i)))
    for i in R8: a.e("v_rcp_f32 %s, %s" % (v(t + i), v(t + i)))
    for i in R4: a.e("v_pk_mul_f32 %s, %s, %s" % (pk(acc + 2 * i), pk(acc + 2 * i), pk(acc + 8 + 2 * i)))
    for i in R4: a.e("v_pk_mul_f32 %s, %s, %s" % (pk(acc + 2 * i), pk(acc + 2 * i), pk(t + 2 * i)))
    for i in range(4): a.e("v_cvt_pk_bf16_f32 %s, %s, %s" % (v(o + i), v(acc + 2 * i), v(acc + 2 * i + 1)))
    a.vmop("buffer_store_dwordx4 %s, %s, %s, s%d offen offset:%d sc1" % (v(o, 4), v(vHA), srd(SWS), sHST2 if ti >> 1 else sHST, (ti & 1) * 256), "hst")

def Yseg(hset, toggle=False):
    out = []
    for t in range(2):
        S, Sn = vS + 16 * t, vS + 16 * (1 - t)
        K, V0, V1 = vKF + 4 * t, vV + 8 * t, vV + 8 * t + 4
        for j in range(8):
            out.append("v_exp_f32 %s, %s" % (v(vE + 2 * (j % 2)), v(S + 2 * j)))
            out.append("v_exp_f32 %s, %s" % (v(vE + 2 * (j % 2) + 1), v(S + 2 * j + 1)))
            jj = (j - 1) % 8
            out.append("v_cvt_pk_bf16_f32 %s, %s, %s" % (v(vP + jj), v(vE + 2 * (jj % 2)), v(vE + 2 * (jj % 2) + 1)))
            if j == 1: out.append(mfma(vO, V1, vP + 4, vO))
            if j == 3: out.append(mfma(Sn, K, vQ, None))
            if hset is None:
                if j == 7: out.append(mfma(vO, V0, vP, vO))
            else:
                if j == 5: out.append(mfma(vO, V0, vP, vO))
                if j == 6 and t == 1 and toggle:
                    out.append("v_xor_b32 %s, 0x4000, %s" % (v(vKVA), v(vKVA)))
                    out.append("v_xor_b32 %s, 0x8000, %s" % (v(vWDA), v(vWDA)))
                if j == 7: out.append(mfma(vD + 16 * t, vWF + 4 * t, vH + 4 * hset, vD + 16 * t))
    return out

def kv_reads(off):
    r = [rd128(vKF, vKVA, off), rd128(vKF + 4, vKVA, off + 2048), "s_mov_b64 exec, %s" % sp(sVM)]
    for t in range(2):
        r += [rd128(vV + 8 * t, vKVA, off + 2048 * t + 1024), rd128(vV + 8 * t + 4, vKVA, off + 2048 * t + 1280)]
    r.append("s_mov_b64 exec, -1")
    return r
def wd_reads(dst, addr, off):
    r = []
    for c in range(2):
        r += [rdtr(dst + 4 * c, addr, off + 512 * c), rdtr(dst + 4 * c + 2, addr, off + 512 * c + 1024)]
    return r

def wdrow(sg): return (32 * (sg >> 1) + 8 * (sg & 1)) * 1024

def attention(a, role, pre0=None):
    A = role == "A"
    def kvdma(u):
        a.vmop("s_add_u32 m0, s%d, 0x%x\ns_add_u32 s%d, s%d, 0x%x\nbuffer_load_dwordx4 %s, %s, s%d offen sc1 lds"
               % (sWK, L_KV + (u % 4) * 8192, sA, sWK, u * 8192, v(vL16), srd(SKV), sA), "kv%d" % u)
    def wddma(sg):
        a.vmop("s_add_u32 m0, s%d, 0x%x\ns_add_u32 s%d, s%d, 0x%x\nbuffer_load_dwordx4 %s, %s, s%d offen lds"
               % (sWK, L_WD + ((sg + 3) % 8) * 8192, sA, sWDOFF, wdrow(sg), v(vWDV), srd(SWD), sA), "wd%d" % sg)
    def wodma(j):
        a.vmop("s_add_u32 m0, s%d, 0x%x\ns_add_u32 s%d, s%d, 0x%x\nbuffer_load_dwordx4 %s, %s, s%d offen lds"
               % (sWK, L_WO + j * 8192, sA, sB, j * 16384, v(vWDV), srd(SWO), sA), "wo")
    def hload(sg, dst):
        a.vmop("s_add_u32 s%d, s%d, 0x%x\nbuffer_load_dwordx4 %s, %s, %s, s%d offen sc1"
               % (sA, sHOFF, sg * 1024, v(dst, 4), v(vL16), srd(SWS), sA), "h%d" % sg)
    for n in range(11):
        if not A and n == 0: a.e("s_barrier")
        if n % 2 == 1: astamp(a, 2 + n // 2)
        tags = []
        if A and n % 2 == 1: tags.append("kv%d" % ((n + 1) // 2))
        if not A and n % 2 == 0: tags.append("kv%d" % ((n + 2) // 2))
        if n == (3 if A else 2): tags.append("hst")
        if n == 10: tags.append("wd0")
        if n == 8 and A:
            a.e("s_cmp_lg_u32 s%d, 0" % sW)
            a.e("s_cbranch_scc1 L_hf_done")
            a.e("s_mov_b32 s%d, 0x4000" % sB)
            a.e("s_waitcnt vmcnt(2)")
            a.lab("L_hf_chk")
            a.e("v_cmp_ne_u32 vcc, 1, %s" % v(vPOLL))
            a.e("s_cbranch_vccz L_hf_done")
            a.e("s_sleep 2")
            a.e("buffer_load_dword %s, %s, %s, 0 offen sc1" % (v(vPOLL), v(vFLA), srd(SWS)))
            a.e("s_sub_u32 s%d, s%d, 1" % (sB, sB))
            a.e("s_cmp_lg_u32 s%d, 0" % sB)
            a.e("s_waitcnt vmcnt(0)")
            a.e("s_cbranch_scc1 L_hf_chk")
            a.lab("L_hf_done")
        a.waitvm(tags)
        if n == 3 and not A:
            a.e("s_cmp_ge_u32 s%d, 14" % sM)
            a.e("s_cbranch_scc1 L_nohf")
            a.e("s_cmp_lg_u32 s%d, 4" % sW)
            a.e("s_cbranch_scc1 L_nohf")
            a.e("s_lshl_b32 s%d, s%d, 4" % (sA, sG))
            a.e("s_add_u32 s%d, s%d, s%d" % (sA, sA, sM))
            a.e("s_lshl_b32 s%d, s%d, 7" % (sA, sA))
            a.e("s_add_u32 s%d, s%d, 0x%x" % (sA, sA, WS_HFLAG))
            a.e("s_mov_b64 exec, 1")
            a.e("buffer_store_dword %s, off, %s, s%d sc1" % (v(vONE), srd(SWS), sA))
            a.e("s_mov_b64 exec, -1")
            a.lab("L_nohf")
        for r in kv_reads((n % 8) * 4096): a.e(r)
        if n == 7 and A:
            a.e("s_cmp_lg_u32 s%d, 0" % sW)
            a.e("s_cbranch_scc1 L_hf_nol")
            a.e("buffer_load_dword %s, %s, %s, 0 offen sc1" % (v(vPOLL), v(vFLA), srd(SWS)))
            a.lab("L_hf_nol")
        if n == 0:
            kvdma(2); kvdma(3)
            a.e("s_mov_b32 s%d, s%d" % (sC, sKQ))
            a.e("s_mul_i32 s%d, s%d, %d" % (sWDOFF, sC, 448 * 1024))
            a.e("s_and_b32 s%d, s%d, 1" % (sB, sW))
            a.e("s_lshl_b32 s%d, s%d, 14" % (sA, sB))
            a.e("s_add_u32 s%d, s%d, s%d" % (sWDOFF, sWDOFF, sA))
            a.e("s_lshl_b32 s%d, s%d, 1" % (sA, sT))
            a.e("s_add_u32 s%d, s%d, s%d" % (sA, sA, sB))
            a.e("s_mul_i32 s%d, s%d, 112" % (sA, sA))
            a.e("s_mul_i32 s%d, s%d, 28" % (sB, sC))
            a.e("s_add_u32 s%d, s%d, s%d" % (sA, sA, sB))
            a.e("s_lshl_b32 s%d, s%d, 10" % (sA, sA))
            a.e("s_add_u32 s%d, s%d, 0x%x" % (sHOFF, sA, WS_HF))
        if (A and n % 2 == 1 and n >= 3): kvdma((n + 5) // 2)
        if (not A and n % 2 == 0 and n >= 2): kvdma((n + 6) // 2)
        if 1 <= n <= 3:
            a.e("s_lshl_b32 s%d, s%d, 17" % (sB, sKQ))
            a.e("s_and_b32 s%d, s%d, 1" % (sC, sW))
            a.e("s_lshl_b32 s%d, s%d, 13" % (sC, sC))
            a.e("s_add_u32 s%d, s%d, s%d" % (sB, sB, sC))
            for j in {1: (0, 1, 2), 2: (3, 4, 5), 3: (6, 7)}[n]: wodma(j)
        if n >= 4: wddma(n - 4)
        if n == 9:
            hload(0, vH + 12); hload(1, vH + 0); hload(24, vH + 16); hload(25, vH + 20)
        if n == 10:
            hload(26, vH + 24); hload(27, vH + 28); hload(2, vH + 4)
        if n == 0 and pre0:
            pre0()
            a.stamp(5)
        a.e("s_waitcnt lgkmcnt(0)")
        a.e("s_call_b64 %s, L_Y%s" % (sp(sRET), role))
        if n == 0:
            a.e("s_branch L_X1%s" % role)
            a.lab("L_Y%s" % role)
            if A: a.e("s_barrier")
            for x in Yseg(None): a.e(x)
            if not A: a.e("s_barrier")
            a.e("s_setpc_b64 %s" % sp(sRET))
            a.lab("L_X1%s" % role)
    astamp(a, 7)
    a.e("s_add_u32 s%d, s%d, 0x%x" % (sHOFF, sHOFF, 3 * 1024))
    a.e("s_add_u32 s%d, s%d, 0x%x" % (sWDOFF, sWDOFF, wdrow(7)))
    a.e("s_mov_b32 s%d, 0x%x" % (sM0WD, ((7 + 3) % 8) * 8192))
    u0 = 8 if A else 9
    a.e("s_add_u32 s%d, s%d, 0x%x" % (sKVOFF, sWK, u0 * 8192))
    a.e("s_mov_b32 s%d, 6" % sCNT)
    a.waitvm(["h0", "wd1", "kv6"] if A else ["h0", "wd1"])
    a.e("s_branch L_loop%s_in" % role)
    a.l.append(".p2align 6")
    a.lab("L_loop%s" % role)
    for p in range(4):
        if p == 0 and Opt.diag and Opt.kdiag == 2:
            a.e("s_cmp_lg_u32 s%d, 4" % sCNT)
            a.e("s_cbranch_scc1 L_nst%s" % role)
            astamp(a, 8)
            a.lab("L_nst%s" % role)
        a.e("s_waitcnt vmcnt(5)")
        if p == 3: a.lab("L_loop%s_in" % role)
        for r in kv_reads(p * 4096): a.e(r)
        for r in wd_reads(vWF, vWDA, p * 8192): a.e(r)
        a.e("buffer_load_dwordx4 %s, %s, %s, s%d offen sc1" % (v(vH + 4 * ((p + 3) % 4), 4), v(vL16), srd(SWS), sHOFF))
        a.e("s_add_u32 m0, s%d, s%d" % (sWK, sM0WD))
        a.e("s_add_u32 s%d, s%d, 0x400" % (sHOFF, sHOFF))
        a.e("buffer_load_dwordx4 %s, %s, s%d offen lds" % (v(vWDV), srd(SWD), sWDOFF))
        a.e("s_add_u32 s%d, s%d, 0x%x" % (sWDOFF, sWDOFF, 0x6000 if p & 1 else 0x2000))
        a.e("s_add_u32 s%d, s%d, 0x2000" % (sM0WD, sM0WD))
        a.e("s_and_b32 s%d, s%d, 0xffff" % (sM0WD, sM0WD))
        if (p % 2 == 1) == A:
            a.e("s_and_b32 s%d, s%d, 0x7fff" % (sA, sKVOFF))
            a.e("s_add_u32 m0, s%d, 0x%x" % (sA, L_KV))
            a.e("s_nop 0")
            a.e("buffer_load_dwordx4 %s, %s, s%d offen sc1 lds" % (v(vL16), srd(SKV), sKVOFF))
            a.e("s_add_u32 s%d, s%d, 0x2000" % (sKVOFF, sKVOFF))
        if p == 3:
            a.e("s_sub_u32 s%d, s%d, 1" % (sCNT, sCNT))
            a.e("s_cmp_lg_u32 s%d, 0" % sCNT)
        a.e("s_waitcnt lgkmcnt(0)")
        if A: a.e("s_barrier")
        for x in Yseg(p, toggle=(p == 3)): a.e(x)
        if not A:
            if p == 3: a.e("s_cbranch_scc0 L_tail")
            a.e("s_barrier")
    a.e(("s_cbranch_scc1 L_loop%s" if A else "s_branch L_loop%s") % role)

def transition(a, role):
    A = role == "A"
    if A:
        a.vm = list(a.vmjoin)
        a.lab("L_trA")
    else:
        a.lab("L_join")
        a.e("s_cmp_eq_u32 s%d, 0" % sHI)
        a.e("s_cbranch_scc1 L_trA")
        a.vmjoin = list(a.vm)
    def qfin():
        for i in range(4): a.e("v_cvt_pk_bf16_f32 %s, %s, %s" % (v(vQ + i), v(vAQ + 2 * i), v(vAQ + 2 * i + 1)))
        for i in range(4, 7): a.e("v_mov_b32 %s, 0" % v(vP + i))
        a.e("v_permlane16_swap_b32 %s, %s" % (v(vQ), v(vQ + 2)))
        a.e("v_permlane16_swap_b32 %s, %s" % (v(vQ + 1), v(vQ + 3)))
    pre0 = None
    if A:
        a.e("s_setprio 1")
        a.e("s_cmp_ge_u32 s%d, 14" % sM)
        a.e("s_cbranch_scc1 L_nogA0")
        a.l.append(".p2align 3")
        for ti in range(Opt.gsc): gelu_tile(a, ti, True)
        a.lab("L_nogA0")
        qfin()
        a.waitvm(["k0", "kv0", "kv1"])
        a.e("s_setprio 0")
        a.e("s_barrier")
        a.e(mfma(vS, vK0, vQ, None))
        def pre0():
            a.e("s_cmp_lt_u32 s%d, 14" % sM)
            a.e("s_cbranch_scc1 L_gA1")
            a.e("s_waitcnt vmcnt(0)")
            a.e("s_branch L_nogA1")
            a.l.append(".p2align 3")
            a.lab("L_gA1")
            for ti in range(Opt.gsc, 4): gelu_tile(a, ti)
            a.lab("L_nogA1")
            a.e("s_setprio 1")
    else:
        a.waitvm(["k0", "kv0", "kv1"])
        a.e("s_setprio 1")
        a.e("s_cmp_ge_u32 s%d, 14" % sM)
        a.l.append(".p2align 3")
        a.e("s_barrier")
        a.e("s_cbranch_scc1 L_nogB")
        for ti in range(4): gelu_tile(a, ti)
        a.lab("L_nogB")
        qfin()
        a.e("s_setprio 0")
        a.e("s_nop 0")
        a.e(mfma(vS, vK0, vQ, None))
        a.stamp(5)
    attention(a, role, pre0)
    if A: a.e("s_branch L_tail")

def tail(a):
    a.lab("L_tail")
    a.e("v_cvt_pk_bf16_f32 %s, %s, %s" % (v(vP + 7), v(vE + 2), v(vE + 3)))
    a.stamp(6)
    astamp(a, 9)
    if Opt.diag and Opt.kdiag == 2: a.e("s_waitcnt lgkmcnt(0)")
    a.e("s_setprio 0")
    a.e("s_mov_b32 s%d, 0x%x" % (sC, f2u(2.0 ** -16)))
    a.e(mfma(vO, vV1L, vP + 4, vO))
    a.e("s_mov_b32 s%d, 0x%x" % (sD, f2u(2.0 ** 100)))
    a.e("s_nop 10")
    t = vFR
    a.e("v_rcp_f32 %s, %s" % (v(t + 2), v(vO + 8)))
    a.e("v_pk_mul_f32 %s, %s, 0 op_sel_hi:[1,0]" % (v(t, 2), v(vO, 2)))
    for i in range(1, 4): a.e("v_pk_fma_f32 %s, %s, 0, %s op_sel_hi:[1,0,1]" % (v(t, 2), v(vO + 2 * i, 2), v(t, 2)))
    a.e("v_add_f32 %s, %s, %s" % (v(t), v(t), v(t + 1)))
    a.e("v_add_f32 %s, %s, %s" % (v(t), v(t), v(vO + 8)))
    a.e("v_cmp_nle_f32 vcc, s%d, %s" % (sC, v(t)))
    a.e("v_cmp_nge_f32 %s, s%d, %s" % (sp(sTMPP), sD, v(t)))
    a.e("s_or_b64 vcc, vcc, %s" % sp(sTMPP))
    a.e("s_branch L_fb" if Opt.force_fb else "s_cbranch_scc1 L_fb")
    a.lab("L_fbret")
    a.e("v_mul_f32 %s, %s, %s" % (v(t + 2), v(t + 2), v(vGP)))
    for i in range(4): a.e("v_pk_mul_f32 %s, %s, %s op_sel_hi:[1,0]" % (v(vO + 2 * i, 2), v(vO + 2 * i, 2), v(t + 2, 2)))
    for i in range(4): a.e("v_cvt_pk_bf16_f32 %s, %s, %s" % (v(vP + i), v(vO + 2 * i), v(vO + 2 * i + 1)))
    for i in range(4): a.e("v_min_u32 %s, -2, %s" % (v(vP + i), v(vP + i)))
    a.e("buffer_store_dwordx4 %s, %s, %s, s%d offen sc1" % (v(vP, 4), v(vL16), srd(SWS), sOST))
    HORD = [0, 2, 4, 6, 1, 3, 5, 7] if Opt.hord else list(range(8))
    def oload(j):
        return "buffer_load_dwordx4 %s, %s, %s, s%d offen offset:%d sc1" % (
            v(vS + 4 * j, 4), v(vL16), srd(SWS), sOLD if HORD[j] < 4 else sA, (HORD[j] % 4) * 1024)
    a.oload = oload
    aw = vXA
    ar = vWA
    def addrs(a):
        a.e("v_sub_f32 %s, 1.0, %s" % (v(vGC), v(vGC)))
        a.e("v_add_u32 %s, 0x%x, %s" % (v(vQA), L_WO, v(vWDA)))
        a.e("v_and_b32 v2, 31, v0")
        a.e("v_lshrrev_b32 v3, 5, v0")
        a.e("v_and_b32 v4, 7, v0")
        a.e("v_xor_b32 v3, v3, v4")
        a.e("v_lshlrev_b32 v3, 4, v3")
        a.e("v_lshl_add_u32 v3, v2, 8, v3")
        a.e("s_and_b32 s%d, s%d, 1" % (sB, sW))
        a.e("s_lshl_b32 s%d, s%d, 15" % (sB, sB))
        a.e("s_lshr_b32 s%d, s%d, 1" % (sC, sW))
        a.e("s_lshl_b32 s%d, s%d, 13" % (sD, sC))
        a.e("s_add_u32 s%d, s%d, s%d" % (sD, sD, sB))
        a.e("v_add_u32 %s, s%d, v3" % (v(aw), sD))
        for j in range(1, 4): a.e("v_xor_b32 %s, %d, %s" % (v(aw + j), 32 * j, v(aw)))
        a.e("v_lshrrev_b32 v2, 3, v0")
        a.e("v_lshlrev_b32 v3, 1, v4")
        a.e("v_xor_b32 v3, v3, v2")
        a.e("v_lshlrev_b32 v3, 4, v3")
        a.e("v_lshl_add_u32 v3, v2, 8, v3")
        a.e("s_lshl_b32 s%d, s%d, 11" % (sD, sC))
        a.e("s_add_u32 s%d, s%d, s%d" % (sD, sD, sB))
        a.e("v_add_u32 %s, s%d, v3" % (v(ar), sD))
        a.e("v_xor_b32 %s, 16, %s" % (v(ar + 1), v(ar)))
        a.e("v_lshlrev_b32 v4, 4, v4")
        a.e("v_lshl_add_u32 %s, v2, 10, v4" % v(ar + 2))
        a.e("s_lshl_b32 s%d, s%d, 13" % (sC, sC))
        a.e("s_add_u32 s%d, s%d, s%d" % (sB, sB, sC))
        a.e("s_lshl_b32 s%d, s%d, 16" % (sC, sT))
        a.e("s_add_u32 s%d, s%d, s%d" % (sB, sB, sC))
        a.e("s_lshl_b32 s%d, s%d, 7" % (sC, sCB))
        a.e("s_add_u32 s%d, s%d, s%d" % (sCNT, sB, sC))
        a.e("s_mov_b32 s%d, 0x2000" % sB)
    a.e("s_add_u32 s%d, s%d, 0x1000" % (sA, sOLD))
    a.e("s_cmp_eq_u32 s%d, 0" % sHI)
    a.e("s_cbranch_scc1 L_tl1")
    a.e("s_setprio 1")
    a.e("s_waitcnt vmcnt(1)")
    a.lab("L_tl2")
    a.e("s_barrier")
    ol = Asm(); a.ool2 = ol.l
    ol.lab("L_tl1")
    for j in range(8): ol.e(oload(j))
    ol.e("s_waitcnt vmcnt(9)")
    ol.e("s_branch L_tl2")
    hreg = {21: vH + 0, 22: vH + 4, 23: vH + 8, 24: vH + 16, 25: vH + 20, 26: vH + 24, 27: vH + 28}
    wf = [vFR, vFR + 8, vFR + 16]
    for i in range(2):
        for r in wd_reads(wf[i], vWDA, i * 8192): a.e(r)
    fl = collect(addrs)
    put(a, fl[:8]); fl = fl[8:]
    for i in range(7):
        if i + 2 < 7:
            for r in wd_reads(wf[(i + 2) % 3], vWDA, (i + 2) * 8192): a.e(r)
        else:
            for r in wd_reads(wf[(i + 2) % 3], vQA, HORD[i - 5] * 8192): a.e(r)
        a.e("s_waitcnt lgkmcnt(8)")
        for c in range(2):
            a.e(mfma(vD + 16 * c, wf[i % 3] + 4 * c, hreg[21 + i], vD + 16 * c))
            put(a, fl[:2]); fl = fl[2:]
    put(a, fl)
    a.e("s_cmp_lg_u32 s%d, 0" % sHI)
    a.e("s_cbranch_scc1 L_tl3")
    a.e("s_nop 8")
    for i in range(32): a.e("v_mul_f32 %s, %s, %s" % (v(vD + i), v(vGC), v(vD + i)))
    if Opt.tbar == 0: a.e("s_barrier")
    a.lab("L_tl4")
    ol.lab("L_tl3")
    ol.e("s_setprio 0")
    for j in range(8):
        ol.e(oload(j))
        if j == 0: ol.e("s_nop 6")
        for i in range(4 * j, 4 * j + 4): ol.e("v_mul_f32 %s, %s, %s" % (v(vD + i), v(vGC), v(vD + i)))
    ol.e("s_barrier")
    ol.e("s_branch L_tl4")
    a.stamp(7)
    for j in range(8):
        o = vS + 4 * j
        if j + 2 < 8:
            for r in wd_reads(wf[(j + 3) % 3], vQA, HORD[j + 2] * 8192): a.e(r)
        if j == Opt.tbar and j:
            a.e("s_cmp_lg_u32 s%d, 0" % sHI)
            a.e("s_cbranch_scc1 L_ochk%d" % j)
            a.e("s_barrier")
        a.lab("L_ochk%d" % j)
        a.e("s_waitcnt vmcnt(%d)" % (7 - j))
        a.e("v_max3_u32 v2, %s, %s, %s" % (v(o), v(o + 1), v(o + 2)))
        a.e("v_max_u32 v2, v2, %s" % v(o + 3))
        a.e("v_cmp_eq_u32 vcc, -1, v2")
        a.e("s_cbranch_vccnz L_ore%d" % j)
        a.lab("L_ook%d" % j)
        a.e("s_waitcnt lgkmcnt(%d)" % (4 * min(2, 7 - j)))
        for c in range(2): a.e(mfma(vD + 16 * c, wf[(j + 1) % 3] + 4 * c, o, vD + 16 * c))
    a.stamp(8)
    a.e("s_nop 10")
    for c in range(2):
        for j in range(4):
            a.e("ds_write_b128 %s, %s offset:%d" % (v(aw + j), v(vD + 16 * c + 4 * j, 4), 128 * c))
    a.e("s_waitcnt lgkmcnt(0)")
    a.e("s_barrier")
    for p in range(4):
        for h in range(2): a.e(rd128(vS + 8 * p + 4 * h, ar + h, p * 8192))
    for p in range(1, 4):
        a.e("s_waitcnt lgkmcnt(%d)" % (6 - 2 * p))
        for i in range(4): a.e("v_pk_add_f32 %s, %s, %s" % (v(vS + 2 * i, 2), v(vS + 2 * i, 2), v(vS + 8 * p + 2 * i, 2)))
    for i in range(4): a.e("v_cvt_pk_bf16_f32 %s, %s, %s" % (v(vP + i), v(vS + 2 * i), v(vS + 2 * i + 1)))
    a.e("buffer_store_dwordx4 %s, %s, %s, s%d offen %s" % (v(vP, 4), v(ar + 2), srd(SOUT), sCNT, Opt.out_pol))
    if Opt.probe >= 0:
        a.e("s_waitcnt vmcnt(0)")
        a.stamp(9)
        if Opt.probe != 9:
            a.e("s_cmp_ge_u32 s%d, 14" % sM)
            a.e("s_cbranch_scc%d L_end" % (0 if Opt.probe_l else 1))
        a.e("s_sub_u32 s%d, s%d, s%d" % (sA, sSTAMP + 4, sSTAMP))
        a.e("s_mul_i32 s%d, s%d, %d" % (sA, sA, Opt.probe_mul - 1))
        a.e("s_min_u32 s%d, s%d, 100000" % (sA, sA))
        a.e("s_add_u32 s%d, s%d, 3800" % (sA, sA))
        if Opt.probe_w >= 0:
            a.e("s_cmp_lg_u32 s%d, %d" % (sHI, Opt.probe_w))
            a.e("s_cbranch_scc1 L_end")
        if Opt.probe_x >= 0:
            a.e("s_and_b32 s0, s2, 7")
            a.e("s_cmp_lg_u32 s0, %d" % Opt.probe_x)
            a.e("s_cbranch_scc1 L_end")
        a.lab("L_probe")
        a.e("s_memrealtime s[0:1]")
        a.e("s_waitcnt lgkmcnt(0)")
        a.e("s_sub_u32 s0, s0, s%d" % (sSTAMP + 4))
        a.e("s_cmp_lt_u32 s0, s%d" % sA)
        a.e("s_cbranch_scc1 L_probe")
    if Opt.pin == 9:
        a.e("s_waitcnt vmcnt(0)")
        a.stamp(9)
    if Opt.diag:
        a.e("s_waitcnt vmcnt(0)")
        a.stamp(9)
        a.e("s_mov_b32 s%d, s%d" % (sSTAMP + 3, sSTAMP))
        a.e("s_mov_b32 s%d, s%d" % (sSTAMP, sB))
        a.e("s_getreg_b32 s%d, hwreg(HW_REG_XCC_ID)" % (sSTAMP + 1))
        for i in range(20): a.e("v_mov_b32 %s, s%d" % (v(vS + i), sSTAMP + i))
        a.e("s_lshl_b32 s%d, s2, 3" % sA)
        a.e("s_add_u32 s%d, s%d, s%d" % (sA, sA, sW))
        a.e("s_lshl_b32 s%d, s%d, 7" % (sA, sA))
        a.e("s_add_u32 s%d, s%d, 0x%x" % (sA, sA, WS_STAMP))
        a.e("s_mov_b64 exec, 1")
        for i in range(5): a.e("buffer_store_dwordx4 %s, off, %s, s%d offset:%d" % (v(vS + 4 * i, 4), srd(SWS), sA, 16 * i))
    a.lab("L_end")
    a.e("s_endpgm")
    a.l += a.ool2
    for j in range(8):
        a.lab("L_ore%d" % j)
        a.e("s_sub_u32 s%d, s%d, 1" % (sB, sB))
        a.e("s_cbranch_scc1 L_ogive%d" % j)
        a.e("s_waitcnt vmcnt(0)")
        for i in range(j, 8): a.e(a.oload(i))
        a.e("s_branch L_ochk%d" % j)
        a.lab("L_ogive%d" % j)
        a.e("s_mov_b32 s%d, 0" % sB)
        a.e("s_branch L_ook%d" % j)

def fallback(a):
    a.lab("L_fb")
    m = vFR + 4
    a.e("v_mov_b32 %s, 0xff800000" % v(m))
    a.e("s_mov_b32 s%d, 0" % sA)
    a.lab("L_fb1")
    a.e("buffer_load_dwordx4 %s, %s, %s, s%d offen sc1" % (v(vKF, 4), v(vL16), srd(SKV), sA))
    a.e("s_waitcnt vmcnt(0)")
    a.e(mfma(vS, vKF, vQ, None))
    a.e("s_add_u32 s%d, s%d, 2048" % (sA, sA))
    a.e("s_nop 11")
    for i in range(8): a.e("v_max3_f32 %s, %s, %s, %s" % (v(m), v(m), v(vS + 2 * i), v(vS + 2 * i + 1)))
    a.e("s_cmp_lt_u32 s%d, 0x20000" % sA)
    a.e("s_cbranch_scc1 L_fb1")
    a.e("v_mov_b32 %s, %s" % (v(m + 1), v(m)))
    a.e("s_nop 1")
    a.e("v_permlane32_swap_b32 %s, %s" % (v(m), v(m + 1)))
    a.e("s_nop 1")
    a.e("v_max_f32 %s, %s, %s" % (v(m), v(m), v(m + 1)))
    for i in range(16): a.e("v_sub_f32 %s, 0, %s" % (v(vS + 16 + i), v(m)))
    for i in range(16): a.e("v_mov_b32 %s, 0" % v(vO + i))
    a.e("s_mov_b32 s%d, 0" % sA)
    a.lab("L_fb2")
    a.e("s_add_u32 s%d, s%d, 0x%x" % (sB, sA, 63 * 2048))
    a.e("s_and_b32 s%d, s%d, 0x1ffff" % (sB, sB))
    a.e("buffer_load_dwordx4 %s, %s, %s, s%d offen sc1" % (v(vKF, 4), v(vL16), srd(SKV), sB))
    a.e("s_add_u32 s%d, s%d, 2048" % (sB, sA))
    a.e("s_and_b32 s%d, s%d, 0x1ffff" % (sB, sB))
    a.e("s_mov_b64 exec, %s" % sp(sVM))
    a.e("buffer_load_dwordx4 %s, %s, %s, s%d offen offset:1024 sc1" % (v(vV, 4), v(vL16), srd(SKV), sA))
    a.e("buffer_load_dwordx4 %s, %s, %s, s%d offen offset:1280 sc1" % (v(vV + 4, 4), v(vL16), srd(SKV), sB))
    a.e("s_mov_b64 exec, -1")
    a.e("s_waitcnt vmcnt(0)")
    a.e(mfma(vS, vKF, vQ, vS + 16))
    a.e("s_add_u32 s%d, s%d, 2048" % (sA, sA))
    a.e("s_nop 11")
    for i in range(16): a.e("v_exp_f32 %s, %s" % (v(vS + i), v(vS + i)))
    for i in range(8): a.e("v_cvt_pk_bf16_f32 %s, %s, %s" % (v(vP + i), v(vS + 2 * i), v(vS + 2 * i + 1)))
    a.e("s_nop 1")
    a.e(mfma(vO, vV, vP, vO))
    a.e(mfma(vO, vV + 4, vP + 4, vO))
    a.e("s_cmp_lt_u32 s%d, 0x20000" % sA)
    a.e("s_cbranch_scc1 L_fb2")
    a.e("s_nop 11")
    a.e("v_rcp_f32 %s, %s" % (v(vFR + 2), v(vO + 8)))
    a.e("s_branch L_fbret")

def build():
    a = Asm()
    prologue(a)
    phase1_F(a)
    transition(a, "B")
    tail(a)
    a.l += a.ool
    transition(a, "A")
    phase1_L(a)
    fallback(a)
    a.lab("L_codeend")
    il = a.l.index("L_light:")
    for i, x in enumerate(a.l):
        if x.endswith(" lds") and "sc1" not in x and " nt" not in x:
            if (Opt.ntx & 4 and (srd(SWD) in x or srd(SWO) in x)) or (Opt.ntx & 8 and i > il):
                a.l[i] = x[:-4] + " nt lds"
    head = open("cdna_kernels/%s.s.ref" % NAME).read().split("\n")
    hdr = [l for l in head if l.startswith(";") and "@launch" not in l and "Override" not in l and "grid=" not in l]
    out = hdr + ["; @launch grid=(256,1,1) block=(512,1,1) lds=%d" % LDS_BYTES,
                 '.amdgcn_target "amdgcn-amd-amdhsa--gfx950"', ".text", ".globl %s_kernel" % NAME, ".p2align 8",
                 ".type %s_kernel,@function" % NAME,
                 ".set CODE_PF_MAX, L_codeend - L_nopf - 4" if Opt.code_pf else "",
                 "%s_kernel:" % NAME]
    out += ["; mapmode %d" % Opt.mapmode, "; xrot %d" % Opt.xrot]
    out += a.l
    out += ['.section .rodata,"a"', ".p2align 6", ".amdhsa_kernel %s_kernel" % NAME,
            "  .amdhsa_next_free_vgpr %d" % NV, "  .amdhsa_next_free_sgpr 102", "  .amdhsa_accum_offset 256",
            "  .amdhsa_group_segment_fixed_size 0", "  .amdhsa_kernarg_size 104", "  .amdhsa_user_sgpr_count 2",
            "  .amdhsa_user_sgpr_kernarg_segment_ptr 1", "  .amdhsa_system_sgpr_workgroup_id_x 1", ".end_amdhsa_kernel", ""]
    return "\n".join(out)

if __name__ == "__main__":
    path = sys.argv[1]
    for kv in sys.argv[2:]:
        k, val = kv.split("=")
        cur = getattr(Opt, k)
        setattr(Opt, k, val if isinstance(cur, str) else type(cur)(int(val)))
    open(path, "w").write(build())
```

```python
import sys, struct, math

NAME = "gated_mix__grouped_kv_mqa__geglu_ffn__prompt"

class Opt:
    diag = 0
    mapmode = 1
    force_fb = False
    out_pol = ""
    code_pf = True
    xrot = 0
    pregap = 0
    tlb = 2
    olate = 1
    hrot = 0
    tbar = 0
    hord = 1
    cmap = 1
    kqx = 0
    oearly = 8
    conc = 1
    ghx = 1
    qa = "088888"
    qb = "577777"
    npre = 8
    stagger = 1
    rper = 2
    dma1 = 17
    kprio = 0
    dma0 = 8
    npd = 4
    kdiag = 0
    fillpre = 0
    fillper = 4
    gsc = 2
    sched = 2
    xmask = 1
    ntx = 0
    touch = 2
    rotg = 0
    rotm = 0
    startbar = 1
    pvz = 1
    pin = -1
    pin_ns = 60000
    probe = -1
    probe_x = -1
    probe_mul = 10
    probe_w = -1
    probe_l = 0

def f2u(x): return struct.unpack("<I", struct.pack("<f", x))[0]

WS_KV = 0
WS_G = 128 * 1024
WS_HFLAG = 192 * 1024
WS_OF = 1 << 20
WS_HF = 4 << 20
WS_STAMP = 12 << 20
WS_SIZE = 16 << 20
K1 = 1024
L_G, L_U, L_X, L_WQ = 0, 48 * K1, 96 * K1, 144 * K1
L_QX = 32 * K1
L_WD, L_WO, L_KV = 0, 64 * K1, 128 * K1
LL_X, LL_W, LL_GATE, LL_WQ = 0, 128 * K1, 144 * K1, 128 * K1
LDS_BYTES = 160 * K1

SX, SWG, SWU, SWQ, SWS, SWD, SWO, SOUT, SDBG, SWKV, SGATE, SKV = 4, 8, 12, 16, 20, 24, 28, 32, 36, 40, 44, 64
SWV = 72
sTMPP = 48
sW, sHI, sLO, sG, sM, sT, sCB = 50, 51, 52, 53, 54, 55, 56
sWK = 57
sWH = 58
sK64 = 59
sVM = 60
sRET = 62
sA, sB, sC, sD = 68, 69, 70, 71
sOFFW, sOFFQ, sCH, sXP = 72, 73, 74, 75
sHOFF, sWDOFF, sKVOFF, sM0WD, sM0KV, sCNT = 72, 73, 74, 75, 76, 77
sOST, sOLD, sHST = 78, 79, 80
sHST2 = 3
sRX, sRW, sM0B = 40, 41, 42
sKQ = 76
sHP = sM
sFREE = 81
sSTAMP = 82

def srd(b): return "s[%d:%d]" % (b, b + 3)
def sp(b): return "s[%d:%d]" % (b, b + 1)
def v(b, n=1): return "v%d" % b if n == 1 else "v[%d:%d]" % (b, b + n - 1)

vL16 = 1
vT0, vT1, vT2, vT3 = 2, 3, 4, 5
vGP, vGC = 6, 7
vKVA = 8
vWDA = 9
vWDV = 10
vONE = 11
vZERO = 12
vFLA = 13
vPOLL = 14
vGA = 15
vQ = 16
vK0 = 20
vV1L = 24
vE = 28
vP = 32
vV = 40
vO = 56
vD = 72
vACC = 104
vS = 104
vH = 136
vAQ = vP
vF1 = 168
vKF = 168
vWF = 176
vFR = 184
vLX = 224
vXA = 240
vWA = 244
vQA = 248
vDX, vDG, vDQ = 249, 250, 251
vC0 = 252
vTID = 255
vHA = 254
NV = 256

class Asm:
    def __init__(self):
        self.l = []
        self.vm = []
        self.nstamp = 0
    def e(self, s):
        for x in s.split("\n"):
            x = x.strip()
            if x: self.l.append("    " + x)
    def lab(self, s): self.l.append(s + ":")
    def vmop(self, s, tag):
        self.e(s); self.vm.append(tag)
    def vmn(self, tags):
        if isinstance(tags, str): tags = [tags]
        last = -1
        for i, t in enumerate(self.vm):
            if t in tags: last = i
        return None if last < 0 else len(self.vm) - 1 - last
    def waitvm(self, tags, lgkm=False):
        n = self.vmn(tags)
        if n is None:
            if lgkm: self.e("s_waitcnt lgkmcnt(0)")
            return
        assert n < 64
        self.e("s_waitcnt vmcnt(%d)%s" % (n, " lgkmcnt(0)" if lgkm else ""))
        self.vm = self.vm[len(self.vm) - n:] if n else []
    def wait0(self, lgkm=False):
        self.e("s_waitcnt vmcnt(0)%s" % (" lgkmcnt(0)" if lgkm else "")); self.vm = []
    def stamp(self, i, real=False):
        if Opt.probe == i:
            self.e("s_waitcnt lgkmcnt(0)")
            self.e("s_memrealtime %s" % sp(sSTAMP + 4))
            self.e("s_waitcnt lgkmcnt(0)")
        if Opt.pin == i:
            self.nstamp += 1
            self.e("s_waitcnt lgkmcnt(0)")
            self.e("s_cselect_b32 s%d, 1, 0" % (sSTAMP + 5))
            self.lab("L_pin%d" % self.nstamp)
            self.e("s_memrealtime s[0:1]")
            self.e("s_waitcnt lgkmcnt(0)")
            self.e("s_sub_u32 s0, s0, s%d" % sSTAMP)
            self.e("s_cmp_lt_u32 s0, %d" % (Opt.pin_ns // 10))
            self.e("s_cbranch_scc1 L_pin%d" % self.nstamp)
            self.e("s_cmp_lg_u32 s%d, 0" % (sSTAMP + 5))
        if Opt.diag and not Opt.kdiag and (Opt.diag == 1 or i == 9):
            self.e("s_waitcnt lgkmcnt(0)")
            self.e("s_memtime %s" % sp(sSTAMP + 2 * i))
            self.e("s_memrealtime %s" % sp(sRET))
            self.e("s_waitcnt lgkmcnt(0)")
            self.e("s_mov_b32 s%d, s%d" % (sSTAMP + 2 * i + 1, sRET))

def astamp(a, i):
    if Opt.diag and Opt.kdiag == 2: a.e("s_memtime %s" % sp(sSTAMP + 2 * i))

def kstamp(a, i):
    if Opt.probe == 18 + i: a.e("s_memrealtime %s" % sp(sSTAMP + 4))
    if Opt.diag and Opt.kdiag == 1: a.e("s_memtime %s" % sp(sSTAMP + 2 * i))

def mfma(d, a, b, c):
    return "v_mfma_f32_32x32x16_bf16 %s, %s, %s, %s" % (v(d, 16), v(a, 4), v(b, 4), "0" if c is None else v(c, 16))
def mfma16(d, a, b, c):
    return "v_mfma_f32_16x16x32_bf16 %s, %s, %s, %s" % (v(d, 4), v(a, 4), v(b, 4), "0" if c is None else v(c, 4))
def rd128(d, a, off):
    assert 0 <= off < 65536
    return "ds_read_b128 %s, %s offset:%d" % (v(d, 4), v(a), off)
def rdtr(d, a, off):
    assert 0 <= off < 65536
    return "ds_read_b64_tr_b16 %s, %s offset:%d" % (v(d, 2), v(a), off)

def interleave(mf, fill, per=2):
    out = []
    fill = list(fill)
    for i, m in enumerate(mf):
        out.append(m)
        if i < len(mf) - 1:
            out += fill[:per]; fill = fill[per:]
    return out + fill

def srd_words(a, regs):
    sizes = {SX: 2048 * 1024, SWG: 512 * 3584, SWU: 512 * 3584, SWQ: 512 * 1024, SWS: WS_SIZE, SWKV: 16384, SWV: 16384,
             SGATE: 1024, SWD: 1792 * 1024, SWO: 512 * 1024, SOUT: 2048 * 1024, SDBG: 256, SKV: 128 * 1024}
    for reg in regs:
        a.e("s_mov_b32 s%d, 0x%x" % (reg + 2, sizes[reg]))
        a.e("s_mov_b32 s%d, 0x20000" % (reg + 3))

def ptr_loads(a, lst):
    for reg, off in lst: a.e("s_load_dwordx2 %s, s[0:1], %d" % (sp(reg), off))

def prologue(a):
    if Opt.diag or Opt.pin >= 0 or Opt.probe >= 0:
        a.e("s_memrealtime %s" % sp(sSTAMP))
        if Opt.diag: a.e("s_memtime %s" % sp(sSTAMP + 2))
    ptr_loads(a, ((SX, 0), (SWG, 48), (SWU, 56), (SWQ, 8), (SGATE, 72)))
    if Opt.probe == 1: a.stamp(1)
    a.e("v_lshrrev_b32 v2, 6, v0")
    if Opt.code_pf:
        a.e("s_getpc_b64 %s" % sp(sRET))
        a.lab("L_nopf")
        a.e("s_and_b32 s%d, s2, -8" % sA)
        a.e("v_add_lshl_u32 v3, v2, s%d, 7" % sA)
        a.e("v_readfirstlane_b32 s%d, v2" % sW)
        a.e("v_min_u32 v3, CODE_PF_MAX, v3")
        a.e("global_load_dword %s, v3, %s" % (v(vPOLL), sp(sRET)))
    else:
        a.e("s_nop 0")
        a.e("v_readfirstlane_b32 s%d, v2" % sW)
    a.e("s_cmpk_ge_u32 s2, 256")
    a.e("s_cbranch_scc1 L_end")
    a.e("s_and_b32 s%d, s2, 1" % sD)
    a.e("s_bfe_u32 s%d, s2, 0x30003" % sA)
    a.e("s_lshl3_add_u32 s%d, s%d, s%d" % (sG, sD, sA))
    a.e("s_bfe_u32 s%d, s2, 0x20001" % sA)
    a.e("s_lshr_b32 s%d, s2, 6" % sB)
    a.e("s_lshl2_add_u32 s%d, s%d, s%d" % (sM, sA, sB))
    a.e("s_lshl_b32 s%d, s%d, 10" % (sWK, sW))
    a.e("s_cmp_ge_u32 s%d, 14" % sM)
    a.e("s_cbranch_scc1 L_light")

def xvoff(a, t):
    a.e("v_lshrrev_b32 v2, 4, %s" % v(t))
    a.e("v_xor_b32 v2, v2, %s" % v(t))
    a.e("v_and_b32 v2, 7, v2")
    a.e("s_lshl_b32 s%d, s%d, 17" % (sA, sG))
    a.e("v_lshl_add_u32 v2, v2, 4, s%d" % sA)
    a.e("v_lshrrev_b32 v3, 3, %s" % v(t))
    a.e("v_lshl_add_u32 %s, v3, 10, v2" % v(vDX))

def setup_ids(a):
    ptr_loads(a, ((SWS, 96), (SKV, 96), (SDBG, 88), (SWD, 64), (SWO, 32), (SOUT, 80)))
    a.e("v_and_b32 v0, 63, v0")
    a.e("v_lshlrev_b32 %s, 4, v0" % v(vL16))
    a.e("s_andn2_b32 s%d, 1, s2" % sA)
    a.e("s_bfe_u32 s%d, s2, 0x20001" % sB)
    a.e("s_lshl2_add_u32 s%d, s%d, s%d" % (sA, sA, sB))
    a.e("s_bfe_u32 s%d, s2, 0x20003" % sB)
    a.e("s_lshl2_add_u32 s%d, s%d, s%d" % (sT, sA, sB))
    a.e("s_lshr_b32 s%d, s2, 5" % sCB)

def setup_rd(a):
    a.e("s_lshr_b32 s%d, s%d, 2" % (sHI, sW))
    a.e("s_and_b32 s%d, s%d, 3" % (sLO, sW))
    a.e("v_and_b32 v2, 15, v0")
    a.e("v_lshrrev_b32 v3, 4, v0")
    a.e("v_bfe_u32 v4, v0, 1, 3")
    a.e("v_xor_b32 v4, v4, v3")
    a.e("v_lshlrev_b32 v4, 4, v4")
    a.e("v_lshl_add_u32 %s, v2, 7, v4" % v(vXA))
    a.e("v_bfe_u32 v2, v0, 2, 2")
    a.e("v_and_b32 v4, 3, v0")
    a.e("v_lshl_add_u32 %s, v3, 3, v2" % v(vQA))
    a.e("v_lshlrev_b32 %s, 6, %s" % (v(vQA), v(vQA)))
    a.e("v_xor_b32 v5, s%d, v3" % sHI)
    a.e("v_and_b32 v5, 1, v5")
    a.e("v_lshl_add_u32 %s, v5, 5, %s" % (v(vQA), v(vQA)))
    a.e("v_lshl_add_u32 %s, v4, 3, %s" % (v(vQA), v(vQA)))

def setup_oclr(a):
    srd_words(a, [SWS, SKV, SDBG])
    a.e("s_mov_b32 s%d, 0xffff" % sVM)
    a.e("s_mov_b32 s%d, 0xffff" % (sVM + 1))
    a.e("s_lshl_b32 s%d, s%d, 2" % (sA, sG))
    a.e("s_add_u32 s%d, s%d, s%d" % (sA, sA, sLO))
    a.e("s_lshl_b32 s%d, s%d, 5" % (sB, sA))
    a.e("s_lshl_b32 s%d, s%d, 1" % (sC, sHP))
    a.e("s_add_u32 s%d, s%d, s%d" % (sB, sB, sC))
    a.e("s_add_u32 s%d, s%d, s%d" % (sB, sB, sHI))
    a.e("s_lshl_b32 s%d, s%d, 10" % (sB, sB))
    a.e("s_add_u32 s%d, s%d, 0x%x" % (sOST, sB, WS_OF))
    for i in range(4): a.e("v_mov_b32 %s, -1" % v(vQ + i))
    a.vmop("buffer_store_dwordx4 %s, %s, %s, s%d offen sc1" % (v(vQ, 4), v(vL16), srd(SWS), sOST), "oclr")
    a.e("v_mov_b32 %s, 1" % v(vONE))
    a.e("v_mov_b32 %s, 0" % v(vZERO))
    a.e("v_and_b32 %s, 31, v0" % v(vGA))
    a.e("v_lshlrev_b32 %s, 2, %s" % (v(vGA), v(vGA)))

def collect(fn):
    t = Asm(); t.marks = {}
    def vmop(s_, tag):
        t.e(s_); t.marks[len(t.l) - 1] = tag
    t.vmop = vmop
    fn(t)
    return [(x, t.marks.get(i)) for i, x in enumerate(t.l)]
def put(a, items):
    for x, tag in items:
        if tag: a.vmop(x, tag)
        else: a.e(x)

def setup_attn(a):
    srd_words(a, [SWD, SWO, SOUT])
    a.e("s_lshl_b32 s%d, s%d, 2" % (sA, sG))
    a.e("s_add_u32 s%d, s%d, s%d" % (sA, sA, sLO))
    a.e("s_mul_i32 s%d, s%d, 112" % (sB, sA))
    a.e("s_lshl_b32 s%d, s%d, 3" % (sC, sM))
    a.e("s_add_u32 s%d, s%d, s%d" % (sB, sB, sC))
    a.e("s_lshl_b32 s%d, s%d, 2" % (sC, sHI))
    a.e("s_add_u32 s%d, s%d, s%d" % (sB, sB, sC))
    a.e("s_and_b32 s%d, s%d, 1" % (sC, sLO))
    a.e("s_lshl_b32 s%d, s%d, 1" % (sC, sC))
    a.e("s_add_u32 s%d, s%d, s%d" % (sB, sB, sC))
    a.e("s_lshl_b32 s%d, s%d, 10" % (sB, sB))
    a.e("s_add_u32 s%d, s%d, 0x%x" % (sHST, sB, WS_HF))
    a.e("s_mul_i32 s%d, s%d, %d" % (sC, sC, 112 * 1024))
    a.e("s_sub_u32 s%d, %d, s%d" % (sC, 112 * 1024, sC))
    a.e("s_add_u32 s%d, s%d, s%d" % (sHST2, sHST, sC))
    a.e("v_bfe_u32 v2, v0, 2, 2")
    a.e("v_lshrrev_b32 v3, 5, v0")
    a.e("v_lshl_add_u32 v2, v3, 2, v2")
    a.e("v_lshlrev_b32 v2, 6, v2")
    a.e("v_bfe_u32 v3, v0, 4, 1")
    a.e("v_lshl_add_u32 v2, v3, 5, v2")
    a.e("v_and_b32 v3, 3, v0")
    a.e("v_lshl_add_u32 v2, v3, 3, v2")
    a.e("s_lshr_b32 s%d, s%d, 1" % (sA, sW))
    a.e("s_lshl_b32 s%d, s%d, 11" % (sA, sA))
    a.e("v_add_u32 %s, s%d, v2" % (v(vWDA), sA))
    a.e("v_add_u32 %s, 0x%x, %s" % (v(vKVA), L_KV, v(vL16)))
    a.e("v_bfe_u32 v2, v0, 2, 3")
    a.e("v_lshlrev_b32 v2, 10, v2")
    a.e("v_lshrrev_b32 v3, 5, v0")
    a.e("v_lshl_add_u32 v2, v3, 6, v2")
    a.e("v_and_b32 v3, 3, v0")
    a.e("v_lshl_add_u32 v2, v3, 4, v2")
    a.e("s_lshl_b32 s%d, s%d, 7" % (sB, sCB))
    a.e("v_add_u32 %s, s%d, v2" % (v(vWDV), sB))
    a.e("v_min_u32 v2, 13, v0")
    a.e("v_lshlrev_b32 v2, 7, v2")
    a.e("s_lshr_b32 s%d, s%d, 1" % (sA, sT))
    a.e("s_lshl_b32 s%d, s%d, 11" % (sA, sA))
    a.e("s_add_u32 s%d, s%d, 0x%x" % (sA, sA, WS_HFLAG))
    a.e("v_add_u32 %s, s%d, v2" % (v(vFLA), sA))
    a.e("s_lshl_b32 s%d, s%d, 1" % (sA, sT))
    a.e("s_and_b32 s%d, s%d, 1" % (sB, sW))
    a.e("s_add_u32 s%d, s%d, s%d" % (sA, sA, sB))
    a.e("s_lshl_b32 s%d, s%d, 15" % (sB, sA))
    a.e("s_lshr_b32 s%d, s%d, 1" % (sKQ, sW))
    if Opt.kqx:
        a.e("s_lshl_b32 s%d, s%d, 1" % (sC, sCB))
        a.e("s_and_b32 s%d, s%d, 2" % (sC, sC))
        a.e("s_xor_b32 s%d, s%d, s%d" % (sKQ, sKQ, sC))
    a.e("s_lshl_b32 s%d, s%d, 13" % (sC, sKQ))
    a.e("s_add_u32 s%d, s%d, s%d" % (sB, sB, sC))
    a.e("s_add_u32 s%d, s%d, 0x%x" % (sOLD, sB, WS_OF))
    if Opt.pvz:
        a.e("s_mov_b32 s%d, 0x110000" % sA)
        a.e("s_mov_b32 s%d, 0x110000" % sB)
        a.e("v_mov_b32 v3, 0x3f803f80")
        a.e("v_cndmask_b32 v2, 0, v3, %s" % sp(sA))
    else:
        a.e("v_mov_b32 v2, 0x3f803f80")
    for i in range(16): a.e("v_mov_b32 %s, v2" % v(vV + i))
    for i in range(4): a.e("v_mov_b32 %s, v2" % v(vV1L + i))
    for i in range(4): a.e("v_mov_b32 %s, 0" % v(vE + i))
    a.e("v_lshrrev_b32 v2, 4, v0")
    a.e("v_lshl_add_u32 %s, v2, 8, %s" % (v(vHA), v(vL16)))
    for i in range(16): a.e("v_mov_b32 %s, 0" % v(vO + i))
    for i in range(32): a.e("v_mov_b32 %s, 0" % v(vD + i))
    c0 = -2.0 * math.sqrt(2.0 / math.pi) * math.log2(math.e)
    a.e("v_mov_b32 %s, 0x%x" % (v(vC0), f2u(c0)))
    a.e("v_mov_b32 %s, 0x%x" % (v(vC0 + 1), f2u(c0 * 0.044715)))

def kv_first_loads(a):
    it = []
    for u in range(2):
        it.append(("s_add_u32 m0, s%d, 0x%x\ns_add_u32 s%d, s%d, 0x%x\nbuffer_load_dwordx4 %s, %s, s%d offen sc1 lds"
                   % (sWK, L_KV + u * 8192, sA, sWK, u * 8192, v(vL16), srd(SKV), sA), "kv%d" % u))
    it.append(("s_mov_b32 s%d, 0x%x\nbuffer_load_dwordx4 %s, %s, %s, s%d offen sc1"
               % (sA, 63 * 2048, v(vK0, 4), v(vL16), srd(SKV), sA), "k0"))
    it.append(("s_mov_b64 exec, %s\nbuffer_load_dwordx4 %s, %s, %s, 0 offen offset:%d sc1\ns_mov_b64 exec, -1"
               % (sp(sVM), v(vV1L, 4), v(vL16), srd(SKV), 1024 + 256), "k0"))
    it.append(("s_lshl_b32 s%d, s%d, 2\ns_add_u32 s%d, s%d, s%d\ns_lshl_b32 s%d, s%d, 7\ns_add_u32 s%d, s%d, 0x%x\n"
               "buffer_load_dword %s, %s, %s, s%d offen sc1"
               % (sA, sG, sA, sA, sLO, sA, sA, sA, sA, WS_G, v(vGP), v(vGA), srd(SWS), sA), "k0"))
    it.append(("s_lshl_b32 s%d, s%d, 1\ns_and_b32 s%d, s%d, 1\ns_add_u32 s%d, s%d, s%d\ns_lshl_b32 s%d, s%d, 7\ns_add_u32 s%d, s%d, 0x%x\n"
               "buffer_load_dword %s, %s, %s, s%d offen sc1"
               % (sA, sT, sB, sW, sA, sA, sB, sA, sA, sA, sA, WS_G, v(vGC), v(vGA), srd(SWS), sA), "k0"))
    return it

def spin_counter(a, name, first_loaded):
    a.e("s_cmp_lg_u32 s%d, 0" % sW)
    a.e("s_cbranch_scc1 L_%s_done" % name)
    a.e("s_mov_b32 s%d, 0x4000" % sB)
    if first_loaded: a.e("s_branch L_%s_chk" % name)
    a.lab("L_%s_re" % name)
    a.e("buffer_load_dword %s, off, %s, 0 sc1" % (v(vPOLL), srd(SDBG)))
    a.e("s_waitcnt vmcnt(0)")
    a.lab("L_%s_chk" % name)
    a.e("v_readfirstlane_b32 s%d, %s" % (sA, v(vPOLL)))
    a.e("s_cmp_ge_u32 s%d, 32" % sA)
    a.e("s_cbranch_scc1 L_%s_done" % name)
    a.e("s_sleep 4")
    a.e("s_sub_u32 s%d, s%d, 1" % (sB, sB))
    a.e("s_cmp_lg_u32 s%d, 0" % sB)
    a.e("s_cbranch_scc1 L_%s_re" % name)
    a.lab("L_%s_done" % name)

def phase1_F(a):
    SCHED = {1: ["01423567", "10253467", "23016457", "32104756"],
             2: ["02134657", "01324576", "10243567", "10235467"],
             3: ["01324657", "01243576", "12035467", "20134567"],
             5: ["01243567", "10325467", "23014657", "32104576"],
             4: ["02143657", "10325476", "02143657", "10325476"]}
    tabs = SCHED[Opt.sched] if Opt.sched else ["".join(str(c ^ (p & Opt.xmask)) for c in range(8)) for p in range(4)]
    for t_ in tabs: assert sorted(t_) == list("01234567")
    num = [int(t_[::-1], 16) for t_ in tabs]
    def table(a):
        a.e("s_add_u32 s%d, s%d, s%d" % (sA, sG, sHP))
        a.e("s_mov_b32 s%d, 0x%x" % (sXP, num[0]))
        a.e("s_mov_b32 s%d, 0x%x" % (sB, num[2]))
        a.e("s_bitcmp1_b32 s%d, 0" % sA)
        a.e("s_cselect_b32 s%d, 0x%x, s%d" % (sXP, num[1], sXP))
        a.e("s_cselect_b32 s%d, 0x%x, s%d" % (sB, num[3], sB))
        a.e("s_bitcmp1_b32 s%d, 1" % sA)
        a.e("s_cselect_b32 s%d, s%d, s%d" % (sXP, sB, sXP))
        if Opt.ghx:
            a.e("s_bitcmp1_b32 s%d, 3" % sG)
            a.e("s_cselect_b32 s%d, 0x44444444, 0" % sB)
            a.e("s_xor_b32 s%d, s%d, s%d" % (sXP, sXP, sB))
    fo, fw = {"0000": (0, 0), "0101": (0, 1), "0011": (1, 1), "0123": (0, 2)}["".join(t_[0] for t_ in tabs)]
    a.e("s_add_u32 s%d, s%d, s%d" % (sA, sG, sHP))
    a.e("s_bfe_u32 s%d, s%d, 0x%x" % (sCH, sA, fw << 16 | fo))
    if Opt.ghx: a.e("s_lshl2_add_u32 s%d, s%d, s%d" % (sCH, sD, sCH))
    a.e("s_and_b32 s%d, s%d, 0xc00" % (sWH, sWK))
    a.e("v_and_b32 %s, 0xff, v0" % v(vTID))

    def wvoff(a):
        a.e("v_lshrrev_b32 v2, 4, %s" % v(vTID))
        a.e("v_lshrrev_b32 v3, 5, %s" % v(vTID))
        a.e("v_bfi_b32 v3, 3, v2, v3")
        a.e("v_lshlrev_b32 v3, 1, v3")
        a.e("v_xor_b32 v3, v3, %s" % v(vTID))
        a.e("v_and_b32 v3, 15, v3")
        a.e("s_lshl_b32 s%d, s%d, 8" % (sA, sM))
        a.e("v_lshl_add_u32 v3, v3, 4, s%d" % sA)
        a.e("v_mul_u32_u24 v2, 3584, v2")
        a.e("v_add_u32 %s, v2, v3" % v(vDG))
    def qvoff(a):
        a.e("v_lshrrev_b32 v2, 4, %s" % v(vTID))
        a.e("v_and_b32 v2, 2, v2")
        a.e("v_xor_b32 v2, v2, %s" % v(vTID))
        a.e("v_and_b32 v2, 3, v2")
        a.e("s_lshl_b32 s%d, s%d, 6" % (sA, sHP))
        a.e("v_lshl_add_u32 v2, v2, 4, s%d" % sA)
        a.e("v_lshrrev_b32 v3, 2, %s" % v(vTID))
        a.e("v_lshl_add_u32 %s, v3, 10, v2" % v(vDQ))
    def wsrd(a):
        srd_words(a, [SWG])
        a.e("s_mov_b64 %s, %s" % (sp(SWU + 2), sp(SWG + 2)))

    if Opt.hrot:
        ORDER = [("q", 0)] + [(t_, 2 * h_ + j) for h_ in range(2) for t_, j in (("x", 0), ("x", 1), ("g", 0), ("u", 0), ("g", 1), ("u", 1))]
    else:
        ORDER = [("q", 0)] + [("x", j) for j in range(4)] + [(t_, j) for j in range(4) for t_ in "gu"]
    def block(items):
        out = []; lastc = None; lastw = None
        for c, kind, j in items:
            s = c % 3; pre = []
            if c != lastc:
                if c: pre.append("s_bfe_u32 s%d, s%d, 0x%x" % (sCH, sXP, 0x30000 + 4 * c))
                lastc = c; lastw = None
            fam = "w" if kind in "gu" else kind
            rot = Opt.hrot and fam != "q"
            if lastw is None or lastw[0] != fam or (rot and lastw[1] >> 1 != j >> 1):
                pre.append({"q": "s_lshl_b32 s%d, s%d, 16" % (sOFFW, sCH), "x": "s_lshl_b32 s%d, s%d, 7" % (sOFFW, sCH),
                            "w": "s_mul_i32 s%d, s%d, %d" % (sOFFW, sCH, 64 * 3584)}[fam])
                if rot: pre.append("s_%s_u32 s%d, s%d, s%d" % ("sub" if j >> 1 else "add", sOFFW, sOFFW, sRX if fam == "x" else sRW))
                lastw = (fam, 0)
            if lastw[1] != j:
                pre.append("s_add_u32 s%d, s%d, 0x%x" % (sOFFW, sOFFW, (j - lastw[1]) * (0x8000 if fam == "x" else 16 * 3584)))
                lastw = (fam, j)
            m0c, vo, rs = {"q": (L_WQ + s * 4096, vDQ, SWQ), "x": (L_X + s * 16384 + j * 4096, vDX, SX),
                           "g": (L_G + s * 16384 + j * 4096, vDG, SWG), "u": (L_U + s * 16384 + j * 4096, vDG, SWU)}[kind]
            nt = " nt" if Opt.ntx & (1 if rs == SX else 2) else ""
            out.append(("s_add_u32 m0, s%d, 0x%x\n%s\nbuffer_load_dwordx4 %s, %s, s%d offen%s lds"
                        % ((sM0B + (j >> 1)) if rot else sWH, m0c, "\n".join(pre) or "s_nop 0", v(vo), srd(rs), sOFFW, nt), "c%d" % c))
        return out
    def part(c, role): return [(c, k_, j) for k_, j in ORDER if (k_ in "gu") == (role == "A")]

    def rdsetup(a):
        setup_rd(a)
        a.e("v_lshl_add_u32 %s, v3, 3, v2" % v(vWA))
        a.e("v_lshlrev_b32 %s, 8, %s" % (v(vWA), v(vWA)))
        a.e("v_lshl_add_u32 %s, v4, 3, %s" % (v(vWA), v(vWA)))
        a.e("v_and_b32 v5, 1, v3")
        a.e("v_lshl_add_u32 v2, v5, 2, v2")
        a.e("s_lshl_b32 s%d, s%d, 2" % (sA, sHI))
        a.e("s_and_b32 s%d, s%d, 1" % (sB, sLO))
        a.e("s_lshl_b32 s%d, s%d, 1" % (sB, sB))
        a.e("s_add_u32 s%d, s%d, s%d" % (sA, sA, sB))
        a.e("v_xor_b32 v2, s%d, v2" % sA)
        a.e("v_lshl_add_u32 %s, v2, 5, %s" % (v(vWA), v(vWA)))
        a.e("v_xor_b32 %s, 32, %s" % (v(vWA + 1), v(vWA)))
        a.e("v_add_u32 %s, 0x%x, %s" % (v(vWA + 2), L_U - L_G, v(vWA)))
        a.e("v_add_u32 %s, 0x%x, %s" % (v(vWA + 3), L_U - L_G, v(vWA + 1)))
        a.e("s_lshl_b32 s%d, s%d, 12" % (sA, sLO))
        a.e("s_add_u32 s%d, s%d, 0x%x" % (sA, sA, L_X))
        a.e("v_add_u32 %s, s%d, %s" % (v(vXA), sA, v(vXA)))
        a.e("v_xor_b32 %s, 0x1000, %s" % (v(vXA + 1), v(vXA)))
        a.e("v_xor_b32 %s, 64, %s" % (v(vXA + 2), v(vXA)))
        a.e("v_xor_b32 %s, 64, %s" % (v(vXA + 3), v(vXA + 1)))
        a.e("v_add_u32 %s, 0x%x, %s" % (v(vQA), L_WQ, v(vQA)))

    a.e("s_cmp_ge_u32 s%d, 4" % sW)
    a.e("s_cbranch_scc1 L_setB")
    late = collect(setup_oclr) + collect(setup_attn)
    words = collect(lambda t: srd_words(t, [SWS, SKV, SDBG, SWD, SWO, SOUT]))
    late = [x for x in late if x not in words]
    oclr = [x for x in late if x[1] == "oclr"]
    if Opt.olate: late = [x for x in late if x[1] != "oclr"]
    else: oclr = []
    words += [("v_mov_b32 %s, 0" % v(r_), None) for r_ in (vGA, vWDV, vFLA, vHA)]
    st = collect(rdsetup) + words + late[:Opt.fillpre]
    fills = {"A": late[Opt.fillpre:], "B": late[Opt.fillpre:]}
    vms = {}
    wsrd(a); wvoff(a)
    a.e("s_waitcnt lgkmcnt(0)")
    a.stamp(2)
    put(a, block(part(0, "A")))
    a.e("s_branch L_setA")
    vms["A"] = a.vm; a.vm = []
    a.lab("L_setB")
    srd_words(a, [SX]); xvoff(a, vTID)
    a.e("s_waitcnt lgkmcnt(0)")
    a.stamp(2)
    put(a, block(part(0, "B")[1:]))
    srd_words(a, [SWQ]); qvoff(a)
    put(a, block(part(0, "B")[:1]))
    vms["B"] = a.vm
    for role in "BA":
        a.vm = vms[role]
        if role == "A": a.lab("L_setA")
        table(a)
        setup_ids(a)
        if role == "A": srd_words(a, [SX, SWQ])
        else: wsrd(a)
        if Opt.tlb and role == "B":
            a.e("s_and_b32 s%d, s%d, 7" % (sA, sG))
            a.e("v_lshl_add_u32 v2, v0, 3, s%d" % sA)
            a.e("v_mul_u32_u24 v3, 3584, v2")
            a.e("s_lshl_b32 s%d, s%d, 8" % (sA, sM))
            a.e("s_and_b32 s%d, s%d, 1" % (sB, sW))
            a.e("s_lshl_b32 s%d, s%d, 7" % (sB, sB))
            a.e("s_add_u32 s%d, s%d, s%d" % (sA, sA, sB))
            if Opt.tlb == 1: a.e("s_mov_b64 exec, 0x%x" % 0x11111111); a.e("s_mov_b32 exec_hi, 0x11111111")
            if Opt.tlb == 2: a.e("s_bitcmp1_b32 s%d, 3\ns_cselect_b32 exec_lo, 0, 0xffff0000\ns_cselect_b32 exec_hi, 0xffff0000, 0" % sG)
            a.e("s_cmp_ge_u32 s%d, 6" % sW)
            a.e("s_cbranch_scc1 L_tlbu")
            a.e("buffer_load_dword %s, v3, %s, s%d offen" % (v(vPOLL), srd(SWG), sA))
            a.e("s_branch L_tlbe")
            a.lab("L_tlbu")
            a.e("buffer_load_dword %s, v3, %s, s%d offen" % (v(vPOLL), srd(SWU), sA))
            a.lab("L_tlbe")
            a.e("s_mov_b64 exec, -1")
            a.vm.append("tlb")
        if Opt.startbar: a.e("s_barrier")
        npre = min(Opt.npre, 8) if role == "A" else 5
        pn = block(part(1, role)[:npre])
        rest = st + (collect(qvoff) + collect(lambda t: xvoff(t, vTID)) if role == "A" else collect(wvoff))
        gap = len(rest) // (npre + Opt.pregap) + 1
        for i in range(npre):
            put(a, pn[:1]); pn = pn[1:]
            put(a, rest[:gap]); rest = rest[gap:]
        put(a, rest)
        a.e("s_mov_b64 vcc, %d" % (-1 if role == "A" else 0))
        if role == "A":
            a.waitvm("c0", lgkm=True)
        else:
            a.e("s_setprio 1")
            a.waitvm("c0", lgkm=True)
            a.e("s_branch L_k0")
        vms[role] = a.vm
    stream = part(1, "A")[min(Opt.npre, 8):] + [(c, k_, j) for c in range(2, 8) for k_, j in ORDER]
    qa = [int(x, 16) for x in Opt.qa]; qb = [int(x, 16) for x in Opt.qb]
    def take(n, cmax):
        m = 0
        while m < n and m < len(stream) and stream[m][0] <= cmax: m += 1
        r_ = stream[:m]; del stream[:m]
        return block(r_)
    a.lab("L_k0")
    a.vm = vms["A"]
    ool = Asm()
    def dmablock(name, role, items, wait=None):
        a.e("s_cbranch_vcc%s L_%s" % ("nz" if role == "A" else "z", name))
        if wait: a.waitvm(wait, lgkm=True)
        a.lab("L_%s_r" % name)
        ool.lab("L_%s" % name)
        ool.vm = a.vm if role == "A" else vms["B"]
        for it_ in items:
            if it_[1] is None: put(ool, fills[role]); fills[role] = []
            put(ool, [it_])
            put(ool, fills[role][:Opt.fillper]); fills[role] = fills[role][Opt.fillper:]
        if name == "e7": put(ool, fills[role]); fills[role] = []
        if wait: ool.waitvm(wait, lgkm=True)
        if role == "B": vms["B"] = ool.vm
        ool.e("s_branch L_%s_r" % name)
    a.ool = ool.l

    def fr(k):
        b = vF1 + 36 * (k % 2)
        return dict(x=b, w=b + 16, q=b + 32)
    def reads(k):
        c, s = divmod(k, 2); f = fr(k); sl = c % 3
        wo = sl * 16384 + s * 8192
        W = lambda i: [rdtr(f['w'] + 4 * i, vWA + i, wo), rdtr(f['w'] + 4 * i + 2, vWA + i, wo + 1024)]
        X = [rd128(f['x'] + 4 * b, vXA + 2 * s + (b >> 1), sl * 16384 + (b & 1) * 2048) for b in range(4)]
        return W(0) + X + W(2) + W(1) + W(3) + [rdtr(f['q'], vQA, sl * 4096 + s * 2048), rdtr(f['q'] + 2, vQA, sl * 4096 + s * 2048 + 256)]
    a.e("s_barrier")
    a.stamp(3)
    if Opt.kdiag or Opt.probe >= 18:
        kstamp(a, 2)
        a.e("s_waitcnt lgkmcnt(0)")
    for r in reads(0): a.e(r)
    if qa[0]: dmablock("d2", "A", take(qa[0], 2))
    for k in range(16):
        c, s = divmod(k, 2); f = fr(k)
        z = lambda x: None if k == 0 else x
        mf = []
        for n_, i in enumerate((0, 2, 1, 3)):
            for b in (range(4) if n_ % 2 == 0 else range(3, -1, -1)):
                d = vACC + 16 * b + 4 * i
                mf.append(mfma16(d, f['w'] + 4 * i, f['x'] + 4 * b, z(d)))
        for b in range(2): mf.append(mfma16(vAQ + 4 * b, f['q'], f['x'] + 4 * b, z(vAQ + 4 * b)))
        rds = reads(k + 1) if k < 15 else []
        if s == 0:
            a.e("s_waitcnt lgkmcnt(6)")
            for i, m in enumerate(mf):
                if i == 8: a.e("s_waitcnt lgkmcnt(8)")
                a.e(m)
                if i < len(rds): a.e(rds[i])
            continue
        a.e("s_waitcnt lgkmcnt(8)")
        for m in mf[:4]: a.e(m)
        if c <= 5:
            dmablock("e%d" % (c + 2), "B", take(qb[c], c + 2), "c%d" % (c + 1))
            assert not any(x[0] <= c + 1 for x in stream)
        if c == 7:
            a.e("s_waitcnt lgkmcnt(0)")
        elif c == 6 and Opt.stagger:
            a.e("s_waitcnt lgkmcnt(0)")
            a.e("s_cbranch_vccz L_st7")
            a.e("s_waitcnt vmcnt(0)")
            spin_counter(a, "kvf", True)
            a.e("s_barrier")
            a.e("s_setprio 1")
            for x, _ in kv_first_loads(a) + oclr: a.e(x)
            a.lab("L_st7")
        elif c == 6:
            a.e("s_setprio 0")
            a.wait0(lgkm=True)
            spin_counter(a, "kvf", True)
            a.e("s_barrier")
            put(a, kv_first_loads(a) + oclr)
        else:
            a.e("s_barrier")
        if c < 7 and ((Opt.kdiag == 1 and Opt.diag) or Opt.probe == 21 + c):
            kstamp(a, 3 + c)
            a.e("s_waitcnt lgkmcnt(0)")
        if c + 3 < 8:
            items = take(qa[c + 1], c + 3)
            if c == 4:
                items.append(("s_cmp_lg_u32 s%d, 0\ns_cbranch_scc1 L_d7_r\nbuffer_load_dword %s, off, %s, 0 sc1"
                              % (sW, v(vPOLL), srd(SDBG)), None))
            dmablock("d%d" % (c + 3), "A", items)
        for i, m in enumerate(mf[4:]):
            a.e(m)
            if i < len(rds): a.e(rds[i])
        if k == 11: assert not stream and not fills["A"] and not fills["B"]
        if k == 11 and Opt.stagger:
            a.e("s_cbranch_vccnz L_st6")
            a.e("s_setprio 0")
            a.wait0()
            a.e("s_barrier")
            put(a, kv_first_loads(a) + oclr)
            a.lab("L_st6")
    a.stamp(4)

def phase1_L(a):
    a.lab("L_light")
    a.vm = []
    ptr_loads(a, ((SWKV, 16), (SWV, 24)))
    srd_words(a, [SWKV, SWV, SGATE, SX])
    xvoff(a, 0)
    a.e("v_and_b32 v2, 63, v0")
    a.e("v_lshlrev_b32 %s, 4, v2" % v(vL16))
    a.e("s_sub_u32 s%d, s%d, 14" % (sCNT, sM))
    a.e("s_lshl_b32 s%d, s%d, 16" % (sOLD, sCNT))
    a.e("s_lshl_b32 s%d, s%d, 13" % (sHST, sCNT))
    a.e("s_add_u32 s%d, s%d, s%d" % (sWH, sHST, sWK))
    a.e("s_xor_b32 s%d, s%d, 0x2000" % (sHST, sHST))
    a.e("s_add_u32 s%d, s%d, 0x2000" % (sA, sWK))
    a.e("s_waitcnt lgkmcnt(0)")
    a.stamp(2)
    def xdma(c, base, so):
        a.vmop("s_add_u32 m0, s%d, 0x%x\ns_nop 0\nbuffer_load_dwordx4 %s, %s, s%d offen offset:%d lds"
               % (base, LL_X + c * 16384 - c * 128, v(vDX), srd(SX), so, c * 128), "c%d" % c)
    def wdma(u):
        for t, rs in enumerate((SWKV, SWV)):
            a.vmop("s_add_u32 m0, s%d, 0x%x\ns_nop 0\nbuffer_load_dwordx4 %s, %s, s%d offen lds"
                   % (sWK, LL_W + t * 16384 + u * 8192, v(vL16), srd(rs), sA if u else sWK), "w")
    wdma(0)
    a.vmop("s_mov_b32 m0, s%d\ns_nop 0\nbuffer_load_dwordx4 %s, %s, 0 offen lds" % (sHST, v(vL16), srd(SGATE)), "w")
    for c in range(8):
        if c == 4: wdma(1)
        xdma(c, sWH, sOLD)
        if c in (1, 3, 5): a.e("s_barrier")
    setup_ids(a)
    srd_words(a, [SWQ])
    setup_rd(a)
    a.e("v_lshrrev_b32 v3, 5, v0")
    a.e("v_bfrev_b32 v5, v4")
    a.e("v_lshrrev_b32 v5, 30, v5")
    a.e("s_cmp_ge_u32 s%d, 2" % sLO)
    a.e("s_cselect_b64 vcc, -1, 0")
    a.e("v_cndmask_b32 v4, v5, v4, vcc")
    a.e("v_lshl_add_u32 %s, v3, 3, v2" % v(vWA))
    a.e("v_lshlrev_b32 %s, 5, %s" % (v(vWA), v(vWA)))
    a.e("v_lshl_add_u32 %s, v4, 3, %s" % (v(vWA), v(vWA)))
    a.e("s_lshr_b32 s%d, s%d, 1" % (sA, sLO))
    a.e("s_lshl_b32 s%d, s%d, 14" % (sA, sA))
    a.e("s_add_u32 s%d, s%d, 0x%x" % (sA, sA, LL_W))
    a.e("v_add_u32 %s, s%d, %s" % (v(vWA), sA, v(vWA)))
    a.e("v_lshl_add_u32 %s, v3, 4, s%d" % (v(vWA + 1), sHST))
    a.e("s_and_b32 s%d, s%d, 1" % (sA, sLO))
    a.e("s_lshl_b32 s%d, s%d, 1" % (sB, sCNT))
    a.e("s_add_u32 s%d, s%d, s%d" % (sCNT, sA, sB))
    a.e("s_lshl_b32 s%d, s%d, 12" % (sA, sCNT))
    a.e("v_and_b32 v2, 31, v0")
    a.e("v_bfe_u32 v4, v0, 1, 3")
    a.e("v_xor_b32 v4, v4, v3")
    a.e("v_lshlrev_b32 v4, 4, v4")
    a.e("v_lshl_add_u32 v4, v2, 7, v4")
    a.e("v_add_u32 %s, s%d, v4" % (v(vLX), sA))
    for s in range(1, 4): a.e("v_xor_b32 %s, %d, %s" % (v(vLX + s), 32 * s, v(vLX)))
    for s in range(4): a.e("v_add_u32 %s, 0x10000, %s" % (v(vLX + 4 + s), v(vLX + s)))
    a.e("s_waitcnt lgkmcnt(0)")
    setup_oclr(a)
    vm0 = list(a.vm)
    a.e("s_cmp_lg_u32 s%d, 0" % sHI)
    a.e("s_cbranch_scc1 L_lB")
    a.e("s_not_b64 %s, %s" % (sp(sTMPP), sp(sVM)))
    a.e("s_cmp_ge_u32 s%d, 2" % sLO)
    a.e("s_cbranch_scc1 L_lV")
    def chain(kind):
        a.vm = list(vm0)
        def fr(k):
            b = vFR + 8 * (k % 4)
            return b, b + 4
        def reads(k):
            c, s = divmod(k, 4); x, w = fr(k)
            r = [rd128(x, vLX + s + 4 * (c >> 2), (c & 3) * 16384), rdtr(w, vWA, k * 512), rdtr(w + 2, vWA, k * 512 + 128)]
            if kind == "K":
                r += ["s_mov_b64 exec, %s" % sp(sTMPP), rd128(w, vWA + 1, k * 32), "s_mov_b64 exec, -1"]
            return r
        for q in range(4):
            a.waitvm("c%d" % (2 * q + 1))
            a.e("s_barrier")
            nr = 4 if kind == "K" else 3
            for k in range(8 * q, 8 * q + 2):
                for r in reads(k): a.e(r)
            for k in range(8 * q, 8 * q + 8):
                if k + 2 < 8 * q + 8:
                    for r in reads(k + 2): a.e(r)
                left = min(2, 8 * q + 7 - k)
                a.e("s_waitcnt lgkmcnt(%d)" % (left * nr))
                x, w = fr(k)
                cc = None if k == 0 else vACC
                a.e(mfma(vACC, w, x, cc) if kind == "K" else mfma(vACC, x, w, cc))
        a.e("s_lshl_b32 s%d, s%d, 2" % (sA, sG))
        a.e("s_add_u32 s%d, s%d, s%d" % (sA, sA, sCNT))
        a.e("s_nop 12")
        if kind == "K":
            a.e("s_mov_b32 s%d, 0x%x" % (sC, f2u(0.25 * math.log2(math.e))))
            for i in range(8): a.e("v_mul_f32 %s, s%d, %s" % (v(vACC + i), sC, v(vACC + i)))
            a.e("v_mul_f32 %s, 0x%x, %s" % (v(vACC + 8), f2u(-math.log2(math.e)), v(vACC + 8)))
            a.e("v_exp_f32 %s, %s" % (v(vACC + 8), v(vACC + 8)))
            for i in range(4): a.e("v_cvt_pk_bf16_f32 %s, %s, %s" % (v(vFR + i), v(vACC + 2 * i), v(vACC + 2 * i + 1)))
            a.e("v_add_f32 %s, 1.0, %s" % (v(vACC + 8), v(vACC + 8)))
            a.e("v_rcp_f32 %s, %s" % (v(vACC + 8), v(vACC + 8)))
            a.e("s_add_u32 s%d, s%d, 63" % (sB, sA))
            a.e("s_and_b32 s%d, s%d, 63" % (sB, sB))
            a.e("s_lshl_b32 s%d, s%d, 11" % (sB, sB))
            a.e("buffer_store_dwordx4 %s, %s, %s, s%d offen sc1" % (v(vFR, 4), v(vL16), srd(SKV), sB))
            a.e("s_lshl_b32 s%d, s%d, 7" % (sB, sA))
            a.e("s_add_u32 s%d, s%d, 0x%x" % (sB, sB, WS_G))
            a.e("s_mov_b32 exec_hi, 0")
            a.e("buffer_store_dword %s, %s, %s, s%d offen sc1" % (v(vACC + 8), v(vGA), srd(SWS), sB))
            a.e("s_mov_b64 exec, -1")
        else:
            for i in range(8): a.e("v_cvt_pk_bf16_f32 %s, %s, %s" % (v(vFR + i), v(vACC + 2 * i), v(vACC + 2 * i + 1)))
            a.e("v_bfe_u32 v2, v0, 4, 1")
            a.e("v_add_u32 v2, s%d, v2" % sA)
            a.e("v_and_b32 v2, 63, v2")
            a.e("v_lshl_add_u32 v2, v2, 11, %s" % v(vL16))
            for i in range(4): a.e("v_cndmask_b32 %s, %s, %s, %s" % (v(vFR + i), v(vFR + 4 + i), v(vFR + i), sp(sVM)))
            a.e("buffer_store_dwordx4 %s, v2, %s, 0 offen offset:1024 sc1" % (v(vFR, 4), srd(SKV)))
        a.e("s_branch L_lJ")
    chain("K")
    a.lab("L_lV")
    chain("V")
    a.lab("L_lB")
    a.vm = list(vm0)
    a.e("s_cmp_lg_u32 s%d, 14" % sM)
    a.e("s_cbranch_scc1 L_nozf")
    a.e("s_cmp_lg_u32 s%d, 4" % sW)
    a.e("s_cbranch_scc1 L_nozf")
    a.e("v_lshlrev_b32 v2, 7, v0")
    a.e("s_lshl_b32 s%d, s%d, 11" % (sA, sG))
    a.e("s_add_u32 s%d, s%d, 0x%x" % (sA, sA, WS_HFLAG))
    a.e("s_mov_b64 exec, 0xffff")
    a.e("buffer_store_dword %s, v2, %s, s%d offen sc1" % (v(vZERO), srd(SWS), sA))
    a.e("s_mov_b64 exec, -1")
    a.lab("L_nozf")
    for q in range(4):
        a.waitvm("c%d" % (2 * q + 1))
        a.e("s_barrier")
    a.lab("L_lJ")
    a.e("v_lshrrev_b32 v3, 2, v0")
    a.e("v_lshlrev_b32 v3, 10, v3")
    a.e("v_lshrrev_b32 v4, 5, v0")
    a.e("v_lshlrev_b32 v4, 1, v4")
    a.e("v_xor_b32 v4, v4, v0")
    a.e("v_and_b32 v4, 3, v4")
    a.e("v_lshl_add_u32 v3, v4, 4, v3")
    a.e("s_lshl_b32 s%d, s%d, 14" % (sA, sW))
    a.e("s_lshl_b32 s%d, s%d, 6" % (sB, sHP))
    a.e("s_add_u32 s%d, s%d, s%d" % (sA, sA, sB))
    a.e("v_add_u32 %s, s%d, v3" % (v(vDQ), sA))
    a.e("s_xor_b32 s%d, s%d, 0x2000" % (sWH, sWH))
    a.e("s_xor_b32 s%d, s%d, 0x10000" % (sOLD, sOLD))
    a.wait0(lgkm=True)
    a.e("s_barrier")
    a.e("s_cmp_lg_u32 s%d, 0" % sW)
    a.e("s_cbranch_scc1 L_noat")
    a.e("s_mov_b64 exec, 1")
    a.e("buffer_atomic_add %s, off, %s, 0 sc1" % (v(vONE), srd(SDBG)))
    a.e("s_mov_b64 exec, -1")
    a.lab("L_noat")
    a.stamp(3)
    for c in range(8): xdma(c, sWH, sOLD)
    for p in range(4):
        a.e("s_add_u32 m0, s%d, 0x%x" % (sWK, LL_WQ + p * 8192))
        a.e("s_mov_b32 s%d, 0x%x" % (sA, p * 128 * 1024))
        a.e("buffer_load_dwordx4 %s, %s, s%d offen lds" % (v(vDQ), srd(SWQ), sA))
    setup_attn(a)
    if Opt.touch & 2:
        a.e("s_lshl_b32 s%d, s%d, 1" % (sA, sG))
        a.e("s_add_u32 s%d, s%d, s%d" % (sA, sA, sM))
        a.e("s_sub_u32 s%d, s%d, 14" % (sA, sA))
        a.e("s_lshl_b32 s%d, s%d, 3" % (sA, sA))
        a.e("s_add_u32 s%d, s%d, s%d" % (sA, sA, sW))
        a.e("v_lshlrev_b32 v2, 15, v0")
        a.e("s_lshl_b32 s%d, s%d, 7" % (sA, sA))
        a.e("buffer_load_dword %s, v2, %s, s%d offen" % (v(vPOLL), srd(SWO), sA))
        a.e("buffer_load_dword %s, v2, %s, s%d offen" % (v(vPOLL), srd(SWD), sA))
    a.e("s_lshl_b32 s%d, s%d, 12" % (sA, sLO))
    a.e("v_add_u32 %s, s%d, %s" % (v(vXA), sA, v(vXA)))
    a.e("v_xor_b32 %s, 64, %s" % (v(vXA + 1), v(vXA)))
    a.e("v_add_u32 %s, 0x10000, %s" % (v(vXA + 2), v(vXA)))
    a.e("v_add_u32 %s, 0x10000, %s" % (v(vXA + 3), v(vXA + 1)))
    a.e("v_add_u32 %s, 0x%x, %s" % (v(vQA), LL_WQ, v(vQA)))
    a.e("s_waitcnt vmcnt(%d)" % (2 if Opt.touch & 2 else 0))
    a.e("s_barrier")
    def fr(k): return vFR + 12 * (k % 3)
    def reads(k):
        c, s = divmod(k, 2); f = fr(k)
        return [rd128(f + 4 * b, vXA + s + 2 * (c >> 2), (c & 3) * 16384 + b * 2048) for b in range(2)] + \
               [rdtr(f + 8, vQA, k * 2048), rdtr(f + 10, vQA, k * 2048 + 256)]
    for k in range(2):
        for r in reads(k): a.e(r)
    for k in range(16):
        a.e("s_waitcnt lgkmcnt(%d)" % (4 * min(1, 15 - k)))
        for b in range(2): a.e(mfma16(vAQ + 4 * b, fr(k) + 8, fr(k) + 4 * b, None if k == 0 else vAQ + 4 * b))
        if k + 2 < 16:
            for r in reads(k + 2): a.e(r)
    spin_counter(a, "kvl", False)
    a.e("s_barrier")
    for s, t in kv_first_loads(a): a.e(s)
    a.wait0()
    a.stamp(4)
    a.e("s_branch L_join")

def gelu_tile(a, ti, scalar=False):
    acc = vACC + 16 * ti
    t = vFR
    o = vFR + 8 + 4 * ti
    pk = lambda r: v(r, 2)
    if scalar:
        for i in range(8): a.e("v_mul_f32 %s, %s, %s" % (v(t + i), v(acc + i), v(acc + i)))
        for i in range(8): a.e("v_fma_f32 %s, %s, %s, %s" % (v(t + i), v(t + i), v(vC0 + 1), v(vC0)))
        for i in range(8): a.e("v_mul_f32 %s, %s, %s" % (v(t + i), v(t + i), v(acc + i)))
        for i in range(8): a.e("v_exp_f32 %s, %s" % (v(t + i), v(t + i)))
        for i in range(8): a.e("v_add_f32 %s, 1.0, %s" % (v(t + i), v(t + i)))
        for i in range(8): a.e("v_rcp_f32 %s, %s" % (v(t + i), v(t + i)))
        for i in range(8): a.e("v_mul_f32 %s, %s, %s" % (v(acc + i), v(acc + i), v(acc + 8 + i)))
        for i in range(8): a.e("v_mul_f32 %s, %s, %s" % (v(acc + i), v(acc + i), v(t + i)))
    R4, R8 = (range(0), range(0)) if scalar else (range(4), range(8))
    for i in R4: a.e("v_pk_mul_f32 %s, %s, %s" % (pk(t + 2 * i), pk(acc + 2 * i), pk(acc + 2 * i)))
    for i in R4: a.e("v_pk_fma_f32 %s, %s, %s, %s op_sel:[0,1,0] op_sel_hi:[1,1,0]" % (pk(t + 2 * i), pk(t + 2 * i), pk(vC0), pk(vC0)))
    for i in R4: a.e("v_pk_mul_f32 %s, %s, %s" % (pk(t + 2 * i), pk(t + 2 * i), pk(acc + 2 * i)))
    for i in R8: a.e("v_exp_f32 %s, %s" % (v(t + i), v(t + i)))
    for i in R4: a.e("v_pk_add_f32 %s, %s, 1.0 op_sel_hi:[1,0]" % (pk(t + 2 * i), pk(t + 2 * i)))
    for i in R8: a.e("v_rcp_f32 %s, %s" % (v(t + i), v(t + i)))
    for i in R4: a.e("v_pk_mul_f32 %s, %s, %s" % (pk(acc + 2 * i), pk(acc + 2 * i), pk(acc + 8 + 2 * i)))
    for i in R4: a.e("v_pk_mul_f32 %s, %s, %s" % (pk(acc + 2 * i), pk(acc + 2 * i), pk(t + 2 * i)))
    for i in range(4): a.e("v_cvt_pk_bf16_f32 %s, %s, %s" % (v(o + i), v(acc + 2 * i), v(acc + 2 * i + 1)))
    a.vmop("buffer_store_dwordx4 %s, %s, %s, s%d offen offset:%d sc1" % (v(o, 4), v(vHA), srd(SWS), sHST2 if ti >> 1 else sHST, (ti & 1) * 256), "hst")

def Yseg(hset, toggle=False):
    out = []
    for t in range(2):
        S, Sn = vS + 16 * t, vS + 16 * (1 - t)
        K, V0, V1 = vKF + 4 * t, vV + 8 * t, vV + 8 * t + 4
        for j in range(8):
            out.append("v_exp_f32 %s, %s" % (v(vE + 2 * (j % 2)), v(S + 2 * j)))
            out.append("v_exp_f32 %s, %s" % (v(vE + 2 * (j % 2) + 1), v(S + 2 * j + 1)))
            jj = (j - 1) % 8
            out.append("v_cvt_pk_bf16_f32 %s, %s, %s" % (v(vP + jj), v(vE + 2 * (jj % 2)), v(vE + 2 * (jj % 2) + 1)))
            if j == 1: out.append(mfma(vO, V1, vP + 4, vO))
            if j == 3: out.append(mfma(Sn, K, vQ, None))
            if hset is None:
                if j == 7: out.append(mfma(vO, V0, vP, vO))
            else:
                if j == 5: out.append(mfma(vO, V0, vP, vO))
                if j == 6 and t == 1 and toggle:
                    out.append("v_xor_b32 %s, 0x4000, %s" % (v(vKVA), v(vKVA)))
                    out.append("v_xor_b32 %s, 0x8000, %s" % (v(vWDA), v(vWDA)))
                if j == 7: out.append(mfma(vD + 16 * t, vWF + 4 * t, vH + 4 * hset, vD + 16 * t))
    return out

def kv_reads(off):
    r = [rd128(vKF, vKVA, off), rd128(vKF + 4, vKVA, off + 2048), "s_mov_b64 exec, %s" % sp(sVM)]
    for t in range(2):
        r += [rd128(vV + 8 * t, vKVA, off + 2048 * t + 1024), rd128(vV + 8 * t + 4, vKVA, off + 2048 * t + 1280)]
    r.append("s_mov_b64 exec, -1")
    return r
def wd_reads(dst, addr, off):
    r = []
    for c in range(2):
        r += [rdtr(dst + 4 * c, addr, off + 512 * c), rdtr(dst + 4 * c + 2, addr, off + 512 * c + 1024)]
    return r

def wdrow(sg): return (32 * (sg >> 1) + 8 * (sg & 1)) * 1024

def attention(a, role, pre0=None):
    A = role == "A"
    def kvdma(u):
        a.vmop("s_add_u32 m0, s%d, 0x%x\ns_add_u32 s%d, s%d, 0x%x\nbuffer_load_dwordx4 %s, %s, s%d offen sc1 lds"
               % (sWK, L_KV + (u % 4) * 8192, sA, sWK, u * 8192, v(vL16), srd(SKV), sA), "kv%d" % u)
    def wddma(sg):
        a.vmop("s_add_u32 m0, s%d, 0x%x\ns_add_u32 s%d, s%d, 0x%x\nbuffer_load_dwordx4 %s, %s, s%d offen lds"
               % (sWK, L_WD + ((sg + 3) % 8) * 8192, sA, sWDOFF, wdrow(sg), v(vWDV), srd(SWD), sA), "wd%d" % sg)
    def wodma(j):
        a.vmop("s_add_u32 m0, s%d, 0x%x\ns_add_u32 s%d, s%d, 0x%x\nbuffer_load_dwordx4 %s, %s, s%d offen lds"
               % (sWK, L_WO + j * 8192, sA, sB, j * 16384, v(vWDV), srd(SWO), sA), "wo")
    def hload(sg, dst):
        a.vmop("s_add_u32 s%d, s%d, 0x%x\nbuffer_load_dwordx4 %s, %s, %s, s%d offen sc1"
               % (sA, sHOFF, sg * 1024, v(dst, 4), v(vL16), srd(SWS), sA), "h%d" % sg)
    for n in range(11):
        if not A and n == 0: a.e("s_barrier")
        if n % 2 == 1: astamp(a, 2 + n // 2)
        tags = []
        if A and n % 2 == 1: tags.append("kv%d" % ((n + 1) // 2))
        if not A and n % 2 == 0: tags.append("kv%d" % ((n + 2) // 2))
        if n == (3 if A else 2): tags.append("hst")
        if n == 10: tags.append("wd0")
        if n == 8 and A:
            a.e("s_cmp_lg_u32 s%d, 0" % sW)
            a.e("s_cbranch_scc1 L_hf_done")
            a.e("s_mov_b32 s%d, 0x4000" % sB)
            a.e("s_waitcnt vmcnt(2)")
            a.lab("L_hf_chk")
            a.e("v_cmp_ne_u32 vcc, 1, %s" % v(vPOLL))
            a.e("s_cbranch_vccz L_hf_done")
            a.e("s_sleep 2")
            a.e("buffer_load_dword %s, %s, %s, 0 offen sc1" % (v(vPOLL), v(vFLA), srd(SWS)))
            a.e("s_sub_u32 s%d, s%d, 1" % (sB, sB))
            a.e("s_cmp_lg_u32 s%d, 0" % sB)
            a.e("s_waitcnt vmcnt(0)")
            a.e("s_cbranch_scc1 L_hf_chk")
            a.lab("L_hf_done")
        a.waitvm(tags)
        if n == 3 and not A:
            a.e("s_cmp_ge_u32 s%d, 14" % sM)
            a.e("s_cbranch_scc1 L_nohf")
            a.e("s_cmp_lg_u32 s%d, 4" % sW)
            a.e("s_cbranch_scc1 L_nohf")
            a.e("s_lshl_b32 s%d, s%d, 4" % (sA, sG))
            a.e("s_add_u32 s%d, s%d, s%d" % (sA, sA, sM))
            a.e("s_lshl_b32 s%d, s%d, 7" % (sA, sA))
            a.e("s_add_u32 s%d, s%d, 0x%x" % (sA, sA, WS_HFLAG))
            a.e("s_mov_b64 exec, 1")
            a.e("buffer_store_dword %s, off, %s, s%d sc1" % (v(vONE), srd(SWS), sA))
            a.e("s_mov_b64 exec, -1")
            a.lab("L_nohf")
        for r in kv_reads((n % 8) * 4096): a.e(r)
        if n == 7 and A:
            a.e("s_cmp_lg_u32 s%d, 0" % sW)
            a.e("s_cbranch_scc1 L_hf_nol")
            a.e("buffer_load_dword %s, %s, %s, 0 offen sc1" % (v(vPOLL), v(vFLA), srd(SWS)))
            a.lab("L_hf_nol")
        if n == 0:
            kvdma(2); kvdma(3)
            a.e("s_mov_b32 s%d, s%d" % (sC, sKQ))
            a.e("s_mul_i32 s%d, s%d, %d" % (sWDOFF, sC, 448 * 1024))
            a.e("s_and_b32 s%d, s%d, 1" % (sB, sW))
            a.e("s_lshl_b32 s%d, s%d, 14" % (sA, sB))
            a.e("s_add_u32 s%d, s%d, s%d" % (sWDOFF, sWDOFF, sA))
            a.e("s_lshl_b32 s%d, s%d, 1" % (sA, sT))
            a.e("s_add_u32 s%d, s%d, s%d" % (sA, sA, sB))
            a.e("s_mul_i32 s%d, s%d, 112" % (sA, sA))
            a.e("s_mul_i32 s%d, s%d, 28" % (sB, sC))
            a.e("s_add_u32 s%d, s%d, s%d" % (sA, sA, sB))
            a.e("s_lshl_b32 s%d, s%d, 10" % (sA, sA))
            a.e("s_add_u32 s%d, s%d, 0x%x" % (sHOFF, sA, WS_HF))
        if (A and n % 2 == 1 and n >= 3): kvdma((n + 5) // 2)
        if (not A and n % 2 == 0 and n >= 2): kvdma((n + 6) // 2)
        if 1 <= n <= 3:
            a.e("s_lshl_b32 s%d, s%d, 17" % (sB, sKQ))
            a.e("s_and_b32 s%d, s%d, 1" % (sC, sW))
            a.e("s_lshl_b32 s%d, s%d, 13" % (sC, sC))
            a.e("s_add_u32 s%d, s%d, s%d" % (sB, sB, sC))
            for j in {1: (0, 1, 2), 2: (3, 4, 5), 3: (6, 7)}[n]: wodma(j)
        if n >= 4: wddma(n - 4)
        if n == 9:
            hload(0, vH + 12); hload(1, vH + 0); hload(24, vH + 16); hload(25, vH + 20)
        if n == 10:
            hload(26, vH + 24); hload(27, vH + 28); hload(2, vH + 4)
        if n == 0 and pre0:
            pre0()
            a.stamp(5)
        a.e("s_waitcnt lgkmcnt(0)")
        a.e("s_call_b64 %s, L_Y%s" % (sp(sRET), role))
        if n == 0:
            a.e("s_branch L_X1%s" % role)
            a.lab("L_Y%s" % role)
            if A: a.e("s_barrier")
            for x in Yseg(None): a.e(x)
            if not A: a.e("s_barrier")
            a.e("s_setpc_b64 %s" % sp(sRET))
            a.lab("L_X1%s" % role)
    astamp(a, 7)
    a.e("s_add_u32 s%d, s%d, 0x%x" % (sHOFF, sHOFF, 3 * 1024))
    a.e("s_add_u32 s%d, s%d, 0x%x" % (sWDOFF, sWDOFF, wdrow(7)))
    a.e("s_mov_b32 s%d, 0x%x" % (sM0WD, ((7 + 3) % 8) * 8192))
    u0 = 8 if A else 9
    a.e("s_add_u32 s%d, s%d, 0x%x" % (sKVOFF, sWK, u0 * 8192))
    a.e("s_mov_b32 s%d, 6" % sCNT)
    a.waitvm(["h0", "wd1", "kv6"] if A else ["h0", "wd1"])
    a.e("s_branch L_loop%s_in" % role)
    a.l.append(".p2align 6")
    a.lab("L_loop%s" % role)
    for p in range(4):
        if p == 0 and Opt.diag and Opt.kdiag == 2:
            a.e("s_cmp_lg_u32 s%d, 4" % sCNT)
            a.e("s_cbranch_scc1 L_nst%s" % role)
            astamp(a, 8)
            a.lab("L_nst%s" % role)
        a.e("s_waitcnt vmcnt(5)")
        if p == 3: a.lab("L_loop%s_in" % role)
        for r in kv_reads(p * 4096): a.e(r)
        for r in wd_reads(vWF, vWDA, p * 8192): a.e(r)
        a.e("buffer_load_dwordx4 %s, %s, %s, s%d offen sc1" % (v(vH + 4 * ((p + 3) % 4), 4), v(vL16), srd(SWS), sHOFF))
        a.e("s_add_u32 m0, s%d, s%d" % (sWK, sM0WD))
        a.e("s_add_u32 s%d, s%d, 0x400" % (sHOFF, sHOFF))
        a.e("buffer_load_dwordx4 %s, %s, s%d offen lds" % (v(vWDV), srd(SWD), sWDOFF))
        a.e("s_add_u32 s%d, s%d, 0x%x" % (sWDOFF, sWDOFF, 0x6000 if p & 1 else 0x2000))
        a.e("s_add_u32 s%d, s%d, 0x2000" % (sM0WD, sM0WD))
        a.e("s_and_b32 s%d, s%d, 0xffff" % (sM0WD, sM0WD))
        if (p % 2 == 1) == A:
            a.e("s_and_b32 s%d, s%d, 0x7fff" % (sA, sKVOFF))
            a.e("s_add_u32 m0, s%d, 0x%x" % (sA, L_KV))
            a.e("s_nop 0")
            a.e("buffer_load_dwordx4 %s, %s, s%d offen sc1 lds" % (v(vL16), srd(SKV), sKVOFF))
            a.e("s_add_u32 s%d, s%d, 0x2000" % (sKVOFF, sKVOFF))
        if p == 3:
            a.e("s_sub_u32 s%d, s%d, 1" % (sCNT, sCNT))
            a.e("s_cmp_lg_u32 s%d, 0" % sCNT)
        a.e("s_waitcnt lgkmcnt(0)")
        if A: a.e("s_barrier")
        for x in Yseg(p, toggle=(p == 3)): a.e(x)
        if not A:
            if p == 3: a.e("s_cbranch_scc0 L_tail")
            a.e("s_barrier")
    a.e(("s_cbranch_scc1 L_loop%s" if A else "s_branch L_loop%s") % role)

def transition(a, role):
    A = role == "A"
    if A:
        a.vm = list(a.vmjoin)
        a.lab("L_trA")
    else:
        a.lab("L_join")
        a.e("s_cmp_eq_u32 s%d, 0" % sHI)
        a.e("s_cbranch_scc1 L_trA")
        a.vmjoin = list(a.vm)
    def qfin():
        for i in range(4): a.e("v_cvt_pk_bf16_f32 %s, %s, %s" % (v(vQ + i), v(vAQ + 2 * i), v(vAQ + 2 * i + 1)))
        for i in range(4, 7): a.e("v_mov_b32 %s, 0" % v(vP + i))
        a.e("v_permlane16_swap_b32 %s, %s" % (v(vQ), v(vQ + 2)))
        a.e("v_permlane16_swap_b32 %s, %s" % (v(vQ + 1), v(vQ + 3)))
    pre0 = None
    if A:
        a.e("s_setprio 1")
        a.e("s_cmp_ge_u32 s%d, 14" % sM)
        a.e("s_cbranch_scc1 L_nogA0")
        a.l.append(".p2align 3")
        for ti in range(Opt.gsc): gelu_tile(a, ti, True)
        a.lab("L_nogA0")
        qfin()
        a.waitvm(["k0", "kv0", "kv1"])
        a.e("s_setprio 0")
        a.e("s_barrier")
        a.e(mfma(vS, vK0, vQ, None))
        def pre0():
            a.e("s_cmp_lt_u32 s%d, 14" % sM)
            a.e("s_cbranch_scc1 L_gA1")
            a.e("s_waitcnt vmcnt(0)")
            a.e("s_branch L_nogA1")
            a.l.append(".p2align 3")
            a.lab("L_gA1")
            for ti in range(Opt.gsc, 4): gelu_tile(a, ti)
            a.lab("L_nogA1")
            a.e("s_setprio 1")
    else:
        a.waitvm(["k0", "kv0", "kv1"])
        a.e("s_setprio 1")
        a.e("s_cmp_ge_u32 s%d, 14" % sM)
        a.l.append(".p2align 3")
        a.e("s_barrier")
        a.e("s_cbranch_scc1 L_nogB")
        for ti in range(4): gelu_tile(a, ti)
        a.lab("L_nogB")
        qfin()
        a.e("s_setprio 0")
        a.e("s_nop 0")
        a.e(mfma(vS, vK0, vQ, None))
        a.stamp(5)
    attention(a, role, pre0)
    if A: a.e("s_branch L_tail")

def tail(a):
    a.lab("L_tail")
    a.e("v_cvt_pk_bf16_f32 %s, %s, %s" % (v(vP + 7), v(vE + 2), v(vE + 3)))
    a.stamp(6)
    astamp(a, 9)
    if Opt.diag and Opt.kdiag == 2: a.e("s_waitcnt lgkmcnt(0)")
    a.e("s_setprio 0")
    a.e("s_mov_b32 s%d, 0x%x" % (sC, f2u(2.0 ** -16)))
    a.e(mfma(vO, vV1L, vP + 4, vO))
    a.e("s_mov_b32 s%d, 0x%x" % (sD, f2u(2.0 ** 100)))
    a.e("s_nop 10")
    t = vFR
    a.e("v_rcp_f32 %s, %s" % (v(t + 2), v(vO + 8)))
    a.e("v_pk_mul_f32 %s, %s, 0 op_sel_hi:[1,0]" % (v(t, 2), v(vO, 2)))
    for i in range(1, 4): a.e("v_pk_fma_f32 %s, %s, 0, %s op_sel_hi:[1,0,1]" % (v(t, 2), v(vO + 2 * i, 2), v(t, 2)))
    a.e("v_add_f32 %s, %s, %s" % (v(t), v(t), v(t + 1)))
    a.e("v_add_f32 %s, %s, %s" % (v(t), v(t), v(vO + 8)))
    a.e("v_cmp_nle_f32 vcc, s%d, %s" % (sC, v(t)))
    a.e("v_cmp_nge_f32 %s, s%d, %s" % (sp(sTMPP), sD, v(t)))
    a.e("s_or_b64 vcc, vcc, %s" % sp(sTMPP))
    a.e("s_branch L_fb" if Opt.force_fb else "s_cbranch_scc1 L_fb")
    a.lab("L_fbret")
    a.e("v_mul_f32 %s, %s, %s" % (v(t + 2), v(t + 2), v(vGP)))
    for i in range(4): a.e("v_pk_mul_f32 %s, %s, %s op_sel_hi:[1,0]" % (v(vO + 2 * i, 2), v(vO + 2 * i, 2), v(t + 2, 2)))
    for i in range(4): a.e("v_cvt_pk_bf16_f32 %s, %s, %s" % (v(vP + i), v(vO + 2 * i), v(vO + 2 * i + 1)))
    for i in range(4): a.e("v_min_u32 %s, -2, %s" % (v(vP + i), v(vP + i)))
    a.e("buffer_store_dwordx4 %s, %s, %s, s%d offen sc1" % (v(vP, 4), v(vL16), srd(SWS), sOST))
    HORD = [0, 2, 4, 6, 1, 3, 5, 7] if Opt.hord else list(range(8))
    def oload(j):
        return "buffer_load_dwordx4 %s, %s, %s, s%d offen offset:%d sc1" % (
            v(vS + 4 * j, 4), v(vL16), srd(SWS), sOLD if HORD[j] < 4 else sA, (HORD[j] % 4) * 1024)
    a.oload = oload
    aw = vXA
    ar = vWA
    def addrs(a):
        a.e("v_sub_f32 %s, 1.0, %s" % (v(vGC), v(vGC)))
        a.e("v_add_u32 %s, 0x%x, %s" % (v(vQA), L_WO, v(vWDA)))
        a.e("v_and_b32 v2, 31, v0")
        a.e("v_lshrrev_b32 v3, 5, v0")
        a.e("v_and_b32 v4, 7, v0")
        a.e("v_xor_b32 v3, v3, v4")
        a.e("v_lshlrev_b32 v3, 4, v3")
        a.e("v_lshl_add_u32 v3, v2, 8, v3")
        a.e("s_and_b32 s%d, s%d, 1" % (sB, sW))
        a.e("s_lshl_b32 s%d, s%d, 15" % (sB, sB))
        a.e("s_lshr_b32 s%d, s%d, 1" % (sC, sW))
        a.e("s_lshl_b32 s%d, s%d, 13" % (sD, sC))
        a.e("s_add_u32 s%d, s%d, s%d" % (sD, sD, sB))
        a.e("v_add_u32 %s, s%d, v3" % (v(aw), sD))
        for j in range(1, 4): a.e("v_xor_b32 %s, %d, %s" % (v(aw + j), 32 * j, v(aw)))
        a.e("v_lshrrev_b32 v2, 3, v0")
        a.e("v_lshlrev_b32 v3, 1, v4")
        a.e("v_xor_b32 v3, v3, v2")
        a.e("v_lshlrev_b32 v3, 4, v3")
        a.e("v_lshl_add_u32 v3, v2, 8, v3")
        a.e("s_lshl_b32 s%d, s%d, 11" % (sD, sC))
        a.e("s_add_u32 s%d, s%d, s%d" % (sD, sD, sB))
        a.e("v_add_u32 %s, s%d, v3" % (v(ar), sD))
        a.e("v_xor_b32 %s, 16, %s" % (v(ar + 1), v(ar)))
        a.e("v_lshlrev_b32 v4, 4, v4")
        a.e("v_lshl_add_u32 %s, v2, 10, v4" % v(ar + 2))
        a.e("s_lshl_b32 s%d, s%d, 13" % (sC, sC))
        a.e("s_add_u32 s%d, s%d, s%d" % (sB, sB, sC))
        a.e("s_lshl_b32 s%d, s%d, 16" % (sC, sT))
        a.e("s_add_u32 s%d, s%d, s%d" % (sB, sB, sC))
        a.e("s_lshl_b32 s%d, s%d, 7" % (sC, sCB))
        a.e("s_add_u32 s%d, s%d, s%d" % (sCNT, sB, sC))
        a.e("s_mov_b32 s%d, 0x2000" % sB)
    a.e("s_add_u32 s%d, s%d, 0x1000" % (sA, sOLD))
    a.e("s_cmp_eq_u32 s%d, 0" % sHI)
    a.e("s_cbranch_scc1 L_tl1")
    a.e("s_setprio 1")
    a.e("s_waitcnt vmcnt(1)")
    a.lab("L_tl2")
    a.e("s_barrier")
    ol = Asm(); a.ool2 = ol.l
    ol.lab("L_tl1")
    for j in range(8): ol.e(oload(j))
    ol.e("s_waitcnt vmcnt(9)")
    ol.e("s_branch L_tl2")
    hreg = {21: vH + 0, 22: vH + 4, 23: vH + 8, 24: vH + 16, 25: vH + 20, 26: vH + 24, 27: vH + 28}
    wf = [vFR, vFR + 8, vFR + 16]
    for i in range(2):
        for r in wd_reads(wf[i], vWDA, i * 8192): a.e(r)
    fl = collect(addrs)
    put(a, fl[:8]); fl = fl[8:]
    for i in range(7):
        if i + 2 < 7:
            for r in wd_reads(wf[(i + 2) % 3], vWDA, (i + 2) * 8192): a.e(r)
        else:
            for r in wd_reads(wf[(i + 2) % 3], vQA, HORD[i - 5] * 8192): a.e(r)
        a.e("s_waitcnt lgkmcnt(8)")
        for c in range(2):
            a.e(mfma(vD + 16 * c, wf[i % 3] + 4 * c, hreg[21 + i], vD + 16 * c))
            put(a, fl[:2]); fl = fl[2:]
    put(a, fl)
    a.e("s_cmp_lg_u32 s%d, 0" % sHI)
    a.e("s_cbranch_scc1 L_tl3")
    a.e("s_nop 8")
    for i in range(32): a.e("v_mul_f32 %s, %s, %s" % (v(vD + i), v(vGC), v(vD + i)))
    if Opt.tbar == 0: a.e("s_barrier")
    a.lab("L_tl4")
    ol.lab("L_tl3")
    ol.e("s_setprio 0")
    for j in range(8):
        ol.e(oload(j))
        if j == 0: ol.e("s_nop 6")
        for i in range(4 * j, 4 * j + 4): ol.e("v_mul_f32 %s, %s, %s" % (v(vD + i), v(vGC), v(vD + i)))
    ol.e("s_barrier")
    ol.e("s_branch L_tl4")
    a.stamp(7)
    for j in range(8):
        o = vS + 4 * j
        if j + 2 < 8:
            for r in wd_reads(wf[(j + 3) % 3], vQA, HORD[j + 2] * 8192): a.e(r)
        if j == Opt.tbar and j:
            a.e("s_cmp_lg_u32 s%d, 0" % sHI)
            a.e("s_cbranch_scc1 L_ochk%d" % j)
            a.e("s_barrier")
        a.lab("L_ochk%d" % j)
        a.e("s_waitcnt vmcnt(%d)" % (7 - j))
        a.e("v_max3_u32 v2, %s, %s, %s" % (v(o), v(o + 1), v(o + 2)))
        a.e("v_max_u32 v2, v2, %s" % v(o + 3))
        a.e("v_cmp_eq_u32 vcc, -1, v2")
        a.e("s_cbranch_vccnz L_ore%d" % j)
        a.lab("L_ook%d" % j)
        a.e("s_waitcnt lgkmcnt(%d)" % (4 * min(2, 7 - j)))
        for c in range(2): a.e(mfma(vD + 16 * c, wf[(j + 1) % 3] + 4 * c, o, vD + 16 * c))
    a.stamp(8)
    a.e("s_nop 10")
    for c in range(2):
        for j in range(4):
            a.e("ds_write_b128 %s, %s offset:%d" % (v(aw + j), v(vD + 16 * c + 4 * j, 4), 128 * c))
    a.e("s_waitcnt lgkmcnt(0)")
    a.e("s_barrier")
    for p in range(4):
        for h in range(2): a.e(rd128(vS + 8 * p + 4 * h, ar + h, p * 8192))
    for p in range(1, 4):
        a.e("s_waitcnt lgkmcnt(%d)" % (6 - 2 * p))
        for i in range(4): a.e("v_pk_add_f32 %s, %s, %s" % (v(vS + 2 * i, 2), v(vS + 2 * i, 2), v(vS + 8 * p + 2 * i, 2)))
    for i in range(4): a.e("v_cvt_pk_bf16_f32 %s, %s, %s" % (v(vP + i), v(vS + 2 * i), v(vS + 2 * i + 1)))
    a.e("buffer_store_dwordx4 %s, %s, %s, s%d offen %s" % (v(vP, 4), v(ar + 2), srd(SOUT), sCNT, Opt.out_pol))
    if Opt.probe >= 0:
        a.e("s_waitcnt vmcnt(0)")
        a.stamp(9)
        if Opt.probe != 9:
            a.e("s_cmp_ge_u32 s%d, 14" % sM)
            a.e("s_cbranch_scc%d L_end" % (0 if Opt.probe_l else 1))
        a.e("s_sub_u32 s%d, s%d, s%d" % (sA, sSTAMP + 4, sSTAMP))
        a.e("s_mul_i32 s%d, s%d, %d" % (sA, sA, Opt.probe_mul - 1))
        a.e("s_min_u32 s%d, s%d, 100000" % (sA, sA))
        a.e("s_add_u32 s%d, s%d, 3800" % (sA, sA))
        if Opt.probe_w >= 0:
            a.e("s_cmp_lg_u32 s%d, %d" % (sHI, Opt.probe_w))
            a.e("s_cbranch_scc1 L_end")
        if Opt.probe_x >= 0:
            a.e("s_and_b32 s0, s2, 7")
            a.e("s_cmp_lg_u32 s0, %d" % Opt.probe_x)
            a.e("s_cbranch_scc1 L_end")
        a.lab("L_probe")
        a.e("s_memrealtime s[0:1]")
        a.e("s_waitcnt lgkmcnt(0)")
        a.e("s_sub_u32 s0, s0, s%d" % (sSTAMP + 4))
        a.e("s_cmp_lt_u32 s0, s%d" % sA)
        a.e("s_cbranch_scc1 L_probe")
    if Opt.pin == 9:
        a.e("s_waitcnt vmcnt(0)")
        a.stamp(9)
    if Opt.diag:
        a.e("s_waitcnt vmcnt(0)")
        a.stamp(9)
        a.e("s_mov_b32 s%d, s%d" % (sSTAMP + 3, sSTAMP))
        a.e("s_mov_b32 s%d, s%d" % (sSTAMP, sB))
        a.e("s_getreg_b32 s%d, hwreg(HW_REG_XCC_ID)" % (sSTAMP + 1))
        for i in range(20): a.e("v_mov_b32 %s, s%d" % (v(vS + i), sSTAMP + i))
        a.e("s_lshl_b32 s%d, s2, 3" % sA)
        a.e("s_add_u32 s%d, s%d, s%d" % (sA, sA, sW))
        a.e("s_lshl_b32 s%d, s%d, 7" % (sA, sA))
        a.e("s_add_u32 s%d, s%d, 0x%x" % (sA, sA, WS_STAMP))
        a.e("s_mov_b64 exec, 1")
        for i in range(5): a.e("buffer_store_dwordx4 %s, off, %s, s%d offset:%d" % (v(vS + 4 * i, 4), srd(SWS), sA, 16 * i))
    a.lab("L_end")
    a.e("s_endpgm")
    a.l += a.ool2
    for j in range(8):
        a.lab("L_ore%d" % j)
        a.e("s_sub_u32 s%d, s%d, 1" % (sB, sB))
        a.e("s_cbranch_scc1 L_ogive%d" % j)
        a.e("s_waitcnt vmcnt(0)")
        for i in range(j, 8): a.e(a.oload(i))
        a.e("s_branch L_ochk%d" % j)
        a.lab("L_ogive%d" % j)
        a.e("s_mov_b32 s%d, 0" % sB)
        a.e("s_branch L_ook%d" % j)

def fallback(a):
    a.lab("L_fb")
    m = vFR + 4
    a.e("v_mov_b32 %s, 0xff800000" % v(m))
    a.e("s_mov_b32 s%d, 0" % sA)
    a.lab("L_fb1")
    a.e("buffer_load_dwordx4 %s, %s, %s, s%d offen sc1" % (v(vKF, 4), v(vL16), srd(SKV), sA))
    a.e("s_waitcnt vmcnt(0)")
    a.e(mfma(vS, vKF, vQ, None))
    a.e("s_add_u32 s%d, s%d, 2048" % (sA, sA))
    a.e("s_nop 11")
    for i in range(8): a.e("v_max3_f32 %s, %s, %s, %s" % (v(m), v(m), v(vS + 2 * i), v(vS + 2 * i + 1)))
    a.e("s_cmp_lt_u32 s%d, 0x20000" % sA)
    a.e("s_cbranch_scc1 L_fb1")
    a.e("v_mov_b32 %s, %s" % (v(m + 1), v(m)))
    a.e("s_nop 1")
    a.e("v_permlane32_swap_b32 %s, %s" % (v(m), v(m + 1)))
    a.e("s_nop 1")
    a.e("v_max_f32 %s, %s, %s" % (v(m), v(m), v(m + 1)))
    for i in range(16): a.e("v_sub_f32 %s, 0, %s" % (v(vS + 16 + i), v(m)))
    for i in range(16): a.e("v_mov_b32 %s, 0" % v(vO + i))
    a.e("s_mov_b32 s%d, 0" % sA)
    a.lab("L_fb2")
    a.e("s_add_u32 s%d, s%d, 0x%x" % (sB, sA, 63 * 2048))
    a.e("s_and_b32 s%d, s%d, 0x1ffff" % (sB, sB))
    a.e("buffer_load_dwordx4 %s, %s, %s, s%d offen sc1" % (v(vKF, 4), v(vL16), srd(SKV), sB))
    a.e("s_add_u32 s%d, s%d, 2048" % (sB, sA))
    a.e("s_and_b32 s%d, s%d, 0x1ffff" % (sB, sB))
    a.e("s_mov_b64 exec, %s" % sp(sVM))
    a.e("buffer_load_dwordx4 %s, %s, %s, s%d offen offset:1024 sc1" % (v(vV, 4), v(vL16), srd(SKV), sA))
    a.e("buffer_load_dwordx4 %s, %s, %s, s%d offen offset:1280 sc1" % (v(vV + 4, 4), v(vL16), srd(SKV), sB))
    a.e("s_mov_b64 exec, -1")
    a.e("s_waitcnt vmcnt(0)")
    a.e(mfma(vS, vKF, vQ, vS + 16))
    a.e("s_add_u32 s%d, s%d, 2048" % (sA, sA))
    a.e("s_nop 11")
    for i in range(16): a.e("v_exp_f32 %s, %s" % (v(vS + i), v(vS + i)))
    for i in range(8): a.e("v_cvt_pk_bf16_f32 %s, %s, %s" % (v(vP + i), v(vS + 2 * i), v(vS + 2 * i + 1)))
    a.e("s_nop 1")
    a.e(mfma(vO, vV, vP, vO))
    a.e(mfma(vO, vV + 4, vP + 4, vO))
    a.e("s_cmp_lt_u32 s%d, 0x20000" % sA)
    a.e("s_cbranch_scc1 L_fb2")
    a.e("s_nop 11")
    a.e("v_rcp_f32 %s, %s" % (v(vFR + 2), v(vO + 8)))
    a.e("s_branch L_fbret")

def build():
    a = Asm()
    prologue(a)
    phase1_F(a)
    transition(a, "B")
    tail(a)
    a.l += a.ool
    transition(a, "A")
    phase1_L(a)
    fallback(a)
    a.lab("L_codeend")
    il = a.l.index("L_light:")
    for i, x in enumerate(a.l):
        if x.endswith(" lds") and "sc1" not in x and " nt" not in x:
            if (Opt.ntx & 4 and (srd(SWD) in x or srd(SWO) in x)) or (Opt.ntx & 8 and i > il):
                a.l[i] = x[:-4] + " nt lds"
    head = open("cdna_kernels/%s.s.ref" % NAME).read().split("\n")
    hdr = [l for l in head if l.startswith(";") and "@launch" not in l and "Override" not in l and "grid=" not in l]
    out = hdr + ["; @launch grid=(256,1,1) block=(512,1,1) lds=%d" % LDS_BYTES,
                 '.amdgcn_target "amdgcn-amd-amdhsa--gfx950"', ".text", ".globl %s_kernel" % NAME, ".p2align 8",
                 ".type %s_kernel,@function" % NAME,
                 ".set CODE_PF_MAX, L_codeend - L_nopf - 4" if Opt.code_pf else "",
                 "%s_kernel:" % NAME]
    out += ["; mapmode %d" % Opt.mapmode, "; xrot %d" % Opt.xrot]
    out += a.l
    out += ['.section .rodata,"a"', ".p2align 6", ".amdhsa_kernel %s_kernel" % NAME,
            "  .amdhsa_next_free_vgpr %d" % NV, "  .amdhsa_next_free_sgpr 102", "  .amdhsa_accum_offset 256",
            "  .amdhsa_group_segment_fixed_size 0", "  .amdhsa_kernarg_size 104", "  .amdhsa_user_sgpr_count 2",
            "  .amdhsa_user_sgpr_kernarg_segment_ptr 1", "  .amdhsa_system_sgpr_workgroup_id_x 1", ".end_amdhsa_kernel", ""]
    return "\n".join(out)

if __name__ == "__main__":
    path = sys.argv[1]
    for kv in sys.argv[2:]:
        k, val = kv.split("=")
        cur = getattr(Opt, k)
        setattr(Opt, k, val if isinstance(cur, str) else type(cur)(int(val)))
    open(path, "w").write(build())
```

```python
import sys, struct, math

NAME = "gated_mix__grouped_kv_mqa__geglu_ffn__prompt"

class Opt:
    diag = 0
    mapmode = 1
    force_fb = False
    out_pol = ""
    code_pf = True
    xrot = 0
    pregap = 0
    tch = 12
    tlb = 2
    olate = 1
    hrot = 0
    tbar = 0
    hord = 1
    cmap = 1
    kqx = 0
    oearly = 8
    conc = 1
    ghx = 1
    qa = "088888"
    qb = "577777"
    npre = 8
    stagger = 1
    rper = 2
    dma1 = 17
    kprio = 0
    dma0 = 8
    npd = 4
    kdiag = 0
    fillpre = 0
    fillper = 4
    gsc = 2
    sched = 0
    xmask = 1
    ntx = 0
    touch = 2
    rotg = 0
    rotm = 0
    startbar = 1
    pvz = 1
    pin = -1
    pin_ns = 60000
    probe = -1
    probe_x = -1
    probe_mul = 10
    probe_w = -1
    probe_l = 0

def f2u(x): return struct.unpack("<I", struct.pack("<f", x))[0]

WS_KV = 0
WS_G = 128 * 1024
WS_HFLAG = 192 * 1024
WS_OF = 1 << 20
WS_HF = 4 << 20
WS_STAMP = 12 << 20
WS_SIZE = 16 << 20
K1 = 1024
L_G, L_U, L_X, L_WQ = 0, 48 * K1, 96 * K1, 144 * K1
L_QX = 32 * K1
L_WD, L_WO, L_KV = 0, 64 * K1, 128 * K1
LL_X, LL_W, LL_GATE, LL_WQ = 0, 128 * K1, 144 * K1, 128 * K1
LDS_BYTES = 160 * K1

SX, SWG, SWU, SWQ, SWS, SWD, SWO, SOUT, SDBG, SWKV, SGATE, SKV = 4, 8, 12, 16, 20, 24, 28, 32, 36, 40, 44, 64
SWV = 72
sTMPP = 48
sW, sHI, sLO, sG, sM, sT, sCB = 50, 51, 52, 53, 54, 55, 56
sWK = 57
sWH = 58
sK64 = 59
sVM = 60
sRET = 62
sA, sB, sC, sD = 68, 69, 70, 71
sOFFW, sOFFQ, sCH, sXP = 72, 73, 74, 75
sHOFF, sWDOFF, sKVOFF, sM0WD, sM0KV, sCNT = 72, 73, 74, 75, 76, 77
sOST, sOLD, sHST = 78, 79, 80
sHST2 = 3
sRX, sRW, sM0B = 40, 41, 42
sKQ = 76
sHP = sM
sFREE = 81
sSTAMP = 82

def srd(b): return "s[%d:%d]" % (b, b + 3)
def sp(b): return "s[%d:%d]" % (b, b + 1)
def v(b, n=1): return "v%d" % b if n == 1 else "v[%d:%d]" % (b, b + n - 1)

vL16 = 1
vT0, vT1, vT2, vT3 = 2, 3, 4, 5
vGP, vGC = 6, 7
vKVA = 8
vWDA = 9
vWDV = 10
vONE = 11
vZERO = 12
vFLA = 13
vPOLL = 14
vGA = 15
vQ = 16
vK0 = 20
vV1L = 24
vE = 28
vP = 32
vV = 40
vO = 56
vD = 72
vACC = 104
vS = 104
vH = 136
vAQ = vP
vF1 = 168
vKF = 168
vWF = 176
vFR = 184
vLX = 224
vXA = 240
vWA = 244
vQA = 248
vDX, vDG, vDQ = 249, 250, 251
vC0 = 252
vTID = 255
vHA = 254
NV = 256

class Asm:
    def __init__(self):
        self.l = []
        self.vm = []
        self.nstamp = 0
    def e(self, s):
        for x in s.split("\n"):
            x = x.strip()
            if x: self.l.append("    " + x)
    def lab(self, s): self.l.append(s + ":")
    def vmop(self, s, tag):
        self.e(s); self.vm.append(tag)
    def vmn(self, tags):
        if isinstance(tags, str): tags = [tags]
        last = -1
        for i, t in enumerate(self.vm):
            if t in tags: last = i
        return None if last < 0 else len(self.vm) - 1 - last
    def waitvm(self, tags, lgkm=False):
        n = self.vmn(tags)
        if n is None:
            if lgkm: self.e("s_waitcnt lgkmcnt(0)")
            return
        assert n < 64
        self.e("s_waitcnt vmcnt(%d)%s" % (n, " lgkmcnt(0)" if lgkm else ""))
        self.vm = self.vm[len(self.vm) - n:] if n else []
    def wait0(self, lgkm=False):
        self.e("s_waitcnt vmcnt(0)%s" % (" lgkmcnt(0)" if lgkm else "")); self.vm = []
    def stamp(self, i, real=False):
        if Opt.probe == i:
            self.e("s_waitcnt lgkmcnt(0)")
            self.e("s_memrealtime %s" % sp(sSTAMP + 4))
            self.e("s_waitcnt lgkmcnt(0)")
        if Opt.pin == i:
            self.nstamp += 1
            self.e("s_waitcnt lgkmcnt(0)")
            self.e("s_cselect_b32 s%d, 1, 0" % (sSTAMP + 5))
            self.lab("L_pin%d" % self.nstamp)
            self.e("s_memrealtime s[0:1]")
            self.e("s_waitcnt lgkmcnt(0)")
            self.e("s_sub_u32 s0, s0, s%d" % sSTAMP)
            self.e("s_cmp_lt_u32 s0, %d" % (Opt.pin_ns // 10))
            self.e("s_cbranch_scc1 L_pin%d" % self.nstamp)
            self.e("s_cmp_lg_u32 s%d, 0" % (sSTAMP + 5))
        if Opt.diag and not Opt.kdiag and (Opt.diag == 1 or i == 9):
            self.e("s_waitcnt lgkmcnt(0)")
            self.e("s_memtime %s" % sp(sSTAMP + 2 * i))
            self.e("s_memrealtime %s" % sp(sRET))
            self.e("s_waitcnt lgkmcnt(0)")
            self.e("s_mov_b32 s%d, s%d" % (sSTAMP + 2 * i + 1, sRET))

def astamp(a, i):
    if Opt.diag and Opt.kdiag == 2: a.e("s_memtime %s" % sp(sSTAMP + 2 * i))

def kstamp(a, i):
    if Opt.probe == 18 + i: a.e("s_memrealtime %s" % sp(sSTAMP + 4))
    if Opt.diag and Opt.kdiag == 1: a.e("s_memtime %s" % sp(sSTAMP + 2 * i))

def mfma(d, a, b, c):
    return "v_mfma_f32_32x32x16_bf16 %s, %s, %s, %s" % (v(d, 16), v(a, 4), v(b, 4), "0" if c is None else v(c, 16))
def mfma16(d, a, b, c):
    return "v_mfma_f32_16x16x32_bf16 %s, %s, %s, %s" % (v(d, 4), v(a, 4), v(b, 4), "0" if c is None else v(c, 4))
def rd128(d, a, off):
    assert 0 <= off < 65536
    return "ds_read_b128 %s, %s offset:%d" % (v(d, 4), v(a), off)
def rdtr(d, a, off):
    assert 0 <= off < 65536
    return "ds_read_b64_tr_b16 %s, %s offset:%d" % (v(d, 2), v(a), off)

def interleave(mf, fill, per=2):
    out = []
    fill = list(fill)
    for i, m in enumerate(mf):
        out.append(m)
        if i < len(mf) - 1:
            out += fill[:per]; fill = fill[per:]
    return out + fill

def srd_words(a, regs):
    sizes = {SX: 2048 * 1024, SWG: 512 * 3584, SWU: 512 * 3584, SWQ: 512 * 1024, SWS: WS_SIZE, SWKV: 16384, SWV: 16384,
             SGATE: 1024, SWD: 1792 * 1024, SWO: 512 * 1024, SOUT: 2048 * 1024, SDBG: 256, SKV: 128 * 1024}
    for reg in regs:
        a.e("s_mov_b32 s%d, 0x%x" % (reg + 2, sizes[reg]))
        a.e("s_mov_b32 s%d, 0x20000" % (reg + 3))

def ptr_loads(a, lst):
    for reg, off in lst: a.e("s_load_dwordx2 %s, s[0:1], %d" % (sp(reg), off))

def prologue(a):
    if Opt.diag or Opt.pin >= 0 or Opt.probe >= 0:
        a.e("s_memrealtime %s" % sp(sSTAMP))
        if Opt.diag: a.e("s_memtime %s" % sp(sSTAMP + 2))
    ptr_loads(a, ((SX, 0), (SWG, 48), (SWU, 56), (SWQ, 8), (SGATE, 72)))
    if Opt.probe == 1: a.stamp(1)
    a.e("v_lshrrev_b32 v2, 6, v0")
    if Opt.code_pf:
        a.e("s_getpc_b64 %s" % sp(sRET))
        a.lab("L_nopf")
        a.e("s_and_b32 s%d, s2, -8" % sA)
        a.e("v_add_lshl_u32 v3, v2, s%d, 7" % sA)
        a.e("v_readfirstlane_b32 s%d, v2" % sW)
        a.e("v_min_u32 v3, CODE_PF_MAX, v3")
        a.e("global_load_dword %s, v3, %s" % (v(vPOLL), sp(sRET)))
    else:
        a.e("s_nop 0")
        a.e("v_readfirstlane_b32 s%d, v2" % sW)
    a.e("s_cmpk_ge_u32 s2, 256")
    a.e("s_cbranch_scc1 L_end")
    a.e("s_and_b32 s%d, s2, 1" % sD)
    a.e("s_bfe_u32 s%d, s2, 0x30003" % sA)
    a.e("s_lshl3_add_u32 s%d, s%d, s%d" % (sG, sD, sA))
    a.e("s_bfe_u32 s%d, s2, 0x20001" % sA)
    a.e("s_lshr_b32 s%d, s2, 6" % sB)
    a.e("s_lshl2_add_u32 s%d, s%d, s%d" % (sM, sA, sB))
    a.e("s_lshl_b32 s%d, s%d, 10" % (sWK, sW))
    a.e("s_cmp_ge_u32 s%d, 14" % sM)
    a.e("s_cbranch_scc1 L_light")

def xvoff(a, t):
    a.e("v_lshrrev_b32 v2, 4, %s" % v(t))
    a.e("v_xor_b32 v2, v2, %s" % v(t))
    a.e("v_and_b32 v2, 7, v2")
    a.e("s_lshl_b32 s%d, s%d, 17" % (sA, sG))
    a.e("v_lshl_add_u32 v2, v2, 4, s%d" % sA)
    a.e("v_lshrrev_b32 v3, 3, %s" % v(t))
    a.e("v_lshl_add_u32 %s, v3, 10, v2" % v(vDX))

def setup_ids(a):
    ptr_loads(a, ((SWS, 96), (SKV, 96), (SDBG, 88), (SWD, 64), (SWO, 32), (SOUT, 80)))
    a.e("v_and_b32 v0, 63, v0")
    a.e("v_lshlrev_b32 %s, 4, v0" % v(vL16))
    a.e("s_andn2_b32 s%d, 1, s2" % sA)
    a.e("s_bfe_u32 s%d, s2, 0x20001" % sB)
    a.e("s_lshl2_add_u32 s%d, s%d, s%d" % (sA, sA, sB))
    a.e("s_bfe_u32 s%d, s2, 0x20003" % sB)
    a.e("s_lshl2_add_u32 s%d, s%d, s%d" % (sT, sA, sB))
    a.e("s_lshr_b32 s%d, s2, 5" % sCB)

def setup_rd(a):
    a.e("s_lshr_b32 s%d, s%d, 2" % (sHI, sW))
    a.e("s_and_b32 s%d, s%d, 3" % (sLO, sW))
    a.e("v_and_b32 v2, 15, v0")
    a.e("v_lshrrev_b32 v3, 4, v0")
    a.e("v_bfe_u32 v4, v0, 1, 3")
    a.e("v_xor_b32 v4, v4, v3")
    a.e("v_lshlrev_b32 v4, 4, v4")
    a.e("v_lshl_add_u32 %s, v2, 7, v4" % v(vXA))
    a.e("v_bfe_u32 v2, v0, 2, 2")
    a.e("v_and_b32 v4, 3, v0")
    a.e("v_lshl_add_u32 %s, v3, 3, v2" % v(vQA))
    a.e("v_lshlrev_b32 %s, 6, %s" % (v(vQA), v(vQA)))
    a.e("v_xor_b32 v5, s%d, v3" % sHI)
    a.e("v_and_b32 v5, 1, v5")
    a.e("v_lshl_add_u32 %s, v5, 5, %s" % (v(vQA), v(vQA)))
    a.e("v_lshl_add_u32 %s, v4, 3, %s" % (v(vQA), v(vQA)))

def setup_oclr(a):
    srd_words(a, [SWS, SKV, SDBG])
    a.e("s_mov_b32 s%d, 0xffff" % sVM)
    a.e("s_mov_b32 s%d, 0xffff" % (sVM + 1))
    a.e("s_lshl_b32 s%d, s%d, 2" % (sA, sG))
    a.e("s_add_u32 s%d, s%d, s%d" % (sA, sA, sLO))
    a.e("s_lshl_b32 s%d, s%d, 5" % (sB, sA))
    a.e("s_lshl_b32 s%d, s%d, 1" % (sC, sHP))
    a.e("s_add_u32 s%d, s%d, s%d" % (sB, sB, sC))
    a.e("s_add_u32 s%d, s%d, s%d" % (sB, sB, sHI))
    a.e("s_lshl_b32 s%d, s%d, 10" % (sB, sB))
    a.e("s_add_u32 s%d, s%d, 0x%x" % (sOST, sB, WS_OF))
    for i in range(4): a.e("v_mov_b32 %s, -1" % v(vQ + i))
    a.vmop("buffer_store_dwordx4 %s, %s, %s, s%d offen sc1" % (v(vQ, 4), v(vL16), srd(SWS), sOST), "oclr")
    a.e("v_mov_b32 %s, 1" % v(vONE))
    a.e("v_mov_b32 %s, 0" % v(vZERO))
    a.e("v_and_b32 %s, 31, v0" % v(vGA))
    a.e("v_lshlrev_b32 %s, 2, %s" % (v(vGA), v(vGA)))

def collect(fn):
    t = Asm(); t.marks = {}
    def vmop(s_, tag):
        t.e(s_); t.marks[len(t.l) - 1] = tag
    t.vmop = vmop
    fn(t)
    return [(x, t.marks.get(i)) for i, x in enumerate(t.l)]
def put(a, items):
    for x, tag in items:
        if tag: a.vmop(x, tag)
        else: a.e(x)

def setup_attn(a):
    srd_words(a, [SWD, SWO, SOUT])
    a.e("s_lshl_b32 s%d, s%d, 2" % (sA, sG))
    a.e("s_add_u32 s%d, s%d, s%d" % (sA, sA, sLO))
    a.e("s_mul_i32 s%d, s%d, 112" % (sB, sA))
    a.e("s_lshl_b32 s%d, s%d, 3" % (sC, sM))
    a.e("s_add_u32 s%d, s%d, s%d" % (sB, sB, sC))
    a.e("s_lshl_b32 s%d, s%d, 2" % (sC, sHI))
    a.e("s_add_u32 s%d, s%d, s%d" % (sB, sB, sC))
    a.e("s_and_b32 s%d, s%d, 1" % (sC, sLO))
    a.e("s_lshl_b32 s%d, s%d, 1" % (sC, sC))
    a.e("s_add_u32 s%d, s%d, s%d" % (sB, sB, sC))
    a.e("s_lshl_b32 s%d, s%d, 10" % (sB, sB))
    a.e("s_add_u32 s%d, s%d, 0x%x" % (sHST, sB, WS_HF))
    a.e("s_mul_i32 s%d, s%d, %d" % (sC, sC, 112 * 1024))
    a.e("s_sub_u32 s%d, %d, s%d" % (sC, 112 * 1024, sC))
    a.e("s_add_u32 s%d, s%d, s%d" % (sHST2, sHST, sC))
    a.e("v_bfe_u32 v2, v0, 2, 2")
    a.e("v_lshrrev_b32 v3, 5, v0")
    a.e("v_lshl_add_u32 v2, v3, 2, v2")
    a.e("v_lshlrev_b32 v2, 6, v2")
    a.e("v_bfe_u32 v3, v0, 4, 1")
    a.e("v_lshl_add_u32 v2, v3, 5, v2")
    a.e("v_and_b32 v3, 3, v0")
    a.e("v_lshl_add_u32 v2, v3, 3, v2")
    a.e("s_lshr_b32 s%d, s%d, 1" % (sA, sW))
    a.e("s_lshl_b32 s%d, s%d, 11" % (sA, sA))
    a.e("v_add_u32 %s, s%d, v2" % (v(vWDA), sA))
    a.e("v_add_u32 %s, 0x%x, %s" % (v(vKVA), L_KV, v(vL16)))
    a.e("v_bfe_u32 v2, v0, 2, 3")
    a.e("v_lshlrev_b32 v2, 10, v2")
    a.e("v_lshrrev_b32 v3, 5, v0")
    a.e("v_lshl_add_u32 v2, v3, 6, v2")
    a.e("v_and_b32 v3, 3, v0")
    a.e("v_lshl_add_u32 v2, v3, 4, v2")
    a.e("s_lshl_b32 s%d, s%d, 7" % (sB, sCB))
    a.e("v_add_u32 %s, s%d, v2" % (v(vWDV), sB))
    a.e("v_min_u32 v2, 13, v0")
    a.e("v_lshlrev_b32 v2, 7, v2")
    a.e("s_lshr_b32 s%d, s%d, 1" % (sA, sT))
    a.e("s_lshl_b32 s%d, s%d, 11" % (sA, sA))
    a.e("s_add_u32 s%d, s%d, 0x%x" % (sA, sA, WS_HFLAG))
    a.e("v_add_u32 %s, s%d, v2" % (v(vFLA), sA))
    a.e("s_lshl_b32 s%d, s%d, 1" % (sA, sT))
    a.e("s_and_b32 s%d, s%d, 1" % (sB, sW))
    a.e("s_add_u32 s%d, s%d, s%d" % (sA, sA, sB))
    a.e("s_lshl_b32 s%d, s%d, 15" % (sB, sA))
    a.e("s_lshr_b32 s%d, s%d, 1" % (sKQ, sW))
    if Opt.kqx:
        a.e("s_lshl_b32 s%d, s%d, 1" % (sC, sCB))
        a.e("s_and_b32 s%d, s%d, 2" % (sC, sC))
        a.e("s_xor_b32 s%d, s%d, s%d" % (sKQ, sKQ, sC))
    a.e("s_lshl_b32 s%d, s%d, 13" % (sC, sKQ))
    a.e("s_add_u32 s%d, s%d, s%d" % (sB, sB, sC))
    a.e("s_add_u32 s%d, s%d, 0x%x" % (sOLD, sB, WS_OF))
    if Opt.pvz:
        a.e("s_mov_b32 s%d, 0x110000" % sA)
        a.e("s_mov_b32 s%d, 0x110000" % sB)
        a.e("v_mov_b32 v3, 0x3f803f80")
        a.e("v_cndmask_b32 v2, 0, v3, %s" % sp(sA))
    else:
        a.e("v_mov_b32 v2, 0x3f803f80")
    for i in range(16): a.e("v_mov_b32 %s, v2" % v(vV + i))
    for i in range(4): a.e("v_mov_b32 %s, v2" % v(vV1L + i))
    for i in range(4): a.e("v_mov_b32 %s, 0" % v(vE + i))
    a.e("v_lshrrev_b32 v2, 4, v0")
    a.e("v_lshl_add_u32 %s, v2, 8, %s" % (v(vHA), v(vL16)))
    for i in range(16): a.e("v_mov_b32 %s, 0" % v(vO + i))
    for i in range(32): a.e("v_mov_b32 %s, 0" % v(vD + i))
    c0 = -2.0 * math.sqrt(2.0 / math.pi) * math.log2(math.e)
    a.e("v_mov_b32 %s, 0x%x" % (v(vC0), f2u(c0)))
    a.e("v_mov_b32 %s, 0x%x" % (v(vC0 + 1), f2u(c0 * 0.044715)))

def kv_first_loads(a):
    it = []
    for u in range(2):
        it.append(("s_add_u32 m0, s%d, 0x%x\ns_add_u32 s%d, s%d, 0x%x\nbuffer_load_dwordx4 %s, %s, s%d offen sc1 lds"
                   % (sWK, L_KV + u * 8192, sA, sWK, u * 8192, v(vL16), srd(SKV), sA), "kv%d" % u))
    it.append(("s_mov_b32 s%d, 0x%x\nbuffer_load_dwordx4 %s, %s, %s, s%d offen sc1"
               % (sA, 63 * 2048, v(vK0, 4), v(vL16), srd(SKV), sA), "k0"))
    it.append(("s_mov_b64 exec, %s\nbuffer_load_dwordx4 %s, %s, %s, 0 offen offset:%d sc1\ns_mov_b64 exec, -1"
               % (sp(sVM), v(vV1L, 4), v(vL16), srd(SKV), 1024 + 256), "k0"))
    it.append(("s_lshl_b32 s%d, s%d, 2\ns_add_u32 s%d, s%d, s%d\ns_lshl_b32 s%d, s%d, 7\ns_add_u32 s%d, s%d, 0x%x\n"
               "buffer_load_dword %s, %s, %s, s%d offen sc1"
               % (sA, sG, sA, sA, sLO, sA, sA, sA, sA, WS_G, v(vGP), v(vGA), srd(SWS), sA), "k0"))
    it.append(("s_lshl_b32 s%d, s%d, 1\ns_and_b32 s%d, s%d, 1\ns_add_u32 s%d, s%d, s%d\ns_lshl_b32 s%d, s%d, 7\ns_add_u32 s%d, s%d, 0x%x\n"
               "buffer_load_dword %s, %s, %s, s%d offen sc1"
               % (sA, sT, sB, sW, sA, sA, sB, sA, sA, sA, sA, WS_G, v(vGC), v(vGA), srd(SWS), sA), "k0"))
    return it

def spin_counter(a, name, first_loaded):
    a.e("s_cmp_lg_u32 s%d, 0" % sW)
    a.e("s_cbranch_scc1 L_%s_done" % name)
    a.e("s_mov_b32 s%d, 0x4000" % sB)
    if first_loaded: a.e("s_branch L_%s_chk" % name)
    a.lab("L_%s_re" % name)
    a.e("buffer_load_dword %s, off, %s, 0 sc1" % (v(vPOLL), srd(SDBG)))
    a.e("s_waitcnt vmcnt(0)")
    a.lab("L_%s_chk" % name)
    a.e("v_readfirstlane_b32 s%d, %s" % (sA, v(vPOLL)))
    a.e("s_cmp_ge_u32 s%d, 32" % sA)
    a.e("s_cbranch_scc1 L_%s_done" % name)
    a.e("s_sleep 4")
    a.e("s_sub_u32 s%d, s%d, 1" % (sB, sB))
    a.e("s_cmp_lg_u32 s%d, 0" % sB)
    a.e("s_cbranch_scc1 L_%s_re" % name)
    a.lab("L_%s_done" % name)

def phase1_F(a):
    SCHED = {1: ["01423567", "10253467", "23016457", "32104756"],
             2: ["02134657", "01324576", "10243567", "10235467"],
             3: ["01324657", "01243576", "12035467", "20134567"],
             5: ["01243567", "10325467", "23014657", "32104576"],
             4: ["02143657", "10325476", "02143657", "10325476"]}
    tabs = SCHED[Opt.sched] if Opt.sched else ["".join(str(c ^ (p & Opt.xmask)) for c in range(8)) for p in range(4)]
    for t_ in tabs: assert sorted(t_) == list("01234567")
    num = [int(t_[::-1], 16) for t_ in tabs]
    def table(a):
        a.e("s_add_u32 s%d, s%d, s%d" % (sA, sG, sHP))
        a.e("s_mov_b32 s%d, 0x%x" % (sXP, num[0]))
        a.e("s_mov_b32 s%d, 0x%x" % (sB, num[2]))
        a.e("s_bitcmp1_b32 s%d, 0" % sA)
        a.e("s_cselect_b32 s%d, 0x%x, s%d" % (sXP, num[1], sXP))
        a.e("s_cselect_b32 s%d, 0x%x, s%d" % (sB, num[3], sB))
        a.e("s_bitcmp1_b32 s%d, 1" % sA)
        a.e("s_cselect_b32 s%d, s%d, s%d" % (sXP, sB, sXP))
        if Opt.ghx:
            a.e("s_bitcmp1_b32 s%d, 3" % sG)
            a.e("s_cselect_b32 s%d, 0x44444444, 0" % sB)
            a.e("s_xor_b32 s%d, s%d, s%d" % (sXP, sXP, sB))
    fo, fw = {"0000": (0, 0), "0101": (0, 1), "0011": (1, 1), "0123": (0, 2)}["".join(t_[0] for t_ in tabs)]
    a.e("s_add_u32 s%d, s%d, s%d" % (sA, sG, sHP))
    a.e("s_bfe_u32 s%d, s%d, 0x%x" % (sCH, sA, fw << 16 | fo))
    if Opt.ghx: a.e("s_lshl2_add_u32 s%d, s%d, s%d" % (sCH, sD, sCH))
    a.e("s_and_b32 s%d, s%d, 0xc00" % (sWH, sWK))
    a.e("v_and_b32 %s, 0xff, v0" % v(vTID))

    def wvoff(a):
        a.e("v_lshrrev_b32 v2, 4, %s" % v(vTID))
        a.e("v_lshrrev_b32 v3, 5, %s" % v(vTID))
        a.e("v_bfi_b32 v3, 3, v2, v3")
        a.e("v_lshlrev_b32 v3, 1, v3")
        a.e("v_xor_b32 v3, v3, %s" % v(vTID))
        a.e("v_and_b32 v3, 15, v3")
        a.e("s_lshl_b32 s%d, s%d, 8" % (sA, sM))
        a.e("v_lshl_add_u32 v3, v3, 4, s%d" % sA)
        a.e("v_mul_u32_u24 v2, 3584, v2")
        a.e("v_add_u32 %s, v2, v3" % v(vDG))
    def qvoff(a):
        a.e("v_lshrrev_b32 v2, 4, %s" % v(vTID))
        a.e("v_and_b32 v2, 2, v2")
        a.e("v_xor_b32 v2, v2, %s" % v(vTID))
        a.e("v_and_b32 v2, 3, v2")
        a.e("s_lshl_b32 s%d, s%d, 6" % (sA, sHP))
        a.e("v_lshl_add_u32 v2, v2, 4, s%d" % sA)
        a.e("v_lshrrev_b32 v3, 2, %s" % v(vTID))
        a.e("v_lshl_add_u32 %s, v3, 10, v2" % v(vDQ))
    def wsrd(a):
        srd_words(a, [SWG])
        a.e("s_mov_b64 %s, %s" % (sp(SWU + 2), sp(SWG + 2)))

    if Opt.hrot:
        ORDER = [("q", 0)] + [(t_, 2 * h_ + j) for h_ in range(2) for t_, j in (("x", 0), ("x", 1), ("g", 0), ("u", 0), ("g", 1), ("u", 1))]
    else:
        ORDER = [("q", 0)] + [("x", j) for j in range(4)] + [(t_, j) for j in range(4) for t_ in "gu"]
    def block(items):
        out = []; lastc = None; lastw = None
        for c, kind, j in items:
            s = c % 3; pre = []
            if c != lastc:
                if c: pre.append("s_bfe_u32 s%d, s%d, 0x%x" % (sCH, sXP, 0x30000 + 4 * c))
                lastc = c; lastw = None
            fam = "w" if kind in "gu" else kind
            rot = Opt.hrot and fam != "q"
            if lastw is None or lastw[0] != fam or (rot and lastw[1] >> 1 != j >> 1):
                pre.append({"q": "s_lshl_b32 s%d, s%d, 16" % (sOFFW, sCH), "x": "s_lshl_b32 s%d, s%d, 7" % (sOFFW, sCH),
                            "w": "s_mul_i32 s%d, s%d, %d" % (sOFFW, sCH, 64 * 3584)}[fam])
                if rot: pre.append("s_%s_u32 s%d, s%d, s%d" % ("sub" if j >> 1 else "add", sOFFW, sOFFW, sRX if fam == "x" else sRW))
                lastw = (fam, 0)
            if lastw[1] != j:
                pre.append("s_add_u32 s%d, s%d, 0x%x" % (sOFFW, sOFFW, (j - lastw[1]) * (0x8000 if fam == "x" else 16 * 3584)))
                lastw = (fam, j)
            m0c, vo, rs = {"q": (L_WQ + s * 4096, vDQ, SWQ), "x": (L_X + s * 16384 + j * 4096, vDX, SX),
                           "g": (L_G + s * 16384 + j * 4096, vDG, SWG), "u": (L_U + s * 16384 + j * 4096, vDG, SWU)}[kind]
            nt = " nt" if Opt.ntx & (1 if rs == SX else 2) else ""
            out.append(("s_add_u32 m0, s%d, 0x%x\n%s\nbuffer_load_dwordx4 %s, %s, s%d offen%s lds"
                        % ((sM0B + (j >> 1)) if rot else sWH, m0c, "\n".join(pre) or "s_nop 0", v(vo), srd(rs), sOFFW, nt), "c%d" % c))
        return out
    def part(c, role): return [(c, k_, j) for k_, j in ORDER if (k_ in "gu") == (role == "A")]

    def rdsetup(a):
        setup_rd(a)
        a.e("v_lshl_add_u32 %s, v3, 3, v2" % v(vWA))
        a.e("v_lshlrev_b32 %s, 8, %s" % (v(vWA), v(vWA)))
        a.e("v_lshl_add_u32 %s, v4, 3, %s" % (v(vWA), v(vWA)))
        a.e("v_and_b32 v5, 1, v3")
        a.e("v_lshl_add_u32 v2, v5, 2, v2")
        a.e("s_lshl_b32 s%d, s%d, 2" % (sA, sHI))
        a.e("s_and_b32 s%d, s%d, 1" % (sB, sLO))
        a.e("s_lshl_b32 s%d, s%d, 1" % (sB, sB))
        a.e("s_add_u32 s%d, s%d, s%d" % (sA, sA, sB))
        a.e("v_xor_b32 v2, s%d, v2" % sA)
        a.e("v_lshl_add_u32 %s, v2, 5, %s" % (v(vWA), v(vWA)))
        a.e("v_xor_b32 %s, 32, %s" % (v(vWA + 1), v(vWA)))
        a.e("v_add_u32 %s, 0x%x, %s" % (v(vWA + 2), L_U - L_G, v(vWA)))
        a.e("v_add_u32 %s, 0x%x, %s" % (v(vWA + 3), L_U - L_G, v(vWA + 1)))
        a.e("s_lshl_b32 s%d, s%d, 12" % (sA, sLO))
        a.e("s_add_u32 s%d, s%d, 0x%x" % (sA, sA, L_X))
        a.e("v_add_u32 %s, s%d, %s" % (v(vXA), sA, v(vXA)))
        a.e("v_xor_b32 %s, 0x1000, %s" % (v(vXA + 1), v(vXA)))
        a.e("v_xor_b32 %s, 64, %s" % (v(vXA + 2), v(vXA)))
        a.e("v_xor_b32 %s, 64, %s" % (v(vXA + 3), v(vXA + 1)))
        a.e("v_add_u32 %s, 0x%x, %s" % (v(vQA), L_WQ, v(vQA)))

    a.e("s_cmp_ge_u32 s%d, 4" % sW)
    a.e("s_cbranch_scc1 L_setB")
    late = collect(setup_oclr) + collect(setup_attn)
    words = collect(lambda t: srd_words(t, [SWS, SKV, SDBG, SWD, SWO, SOUT]))
    late = [x for x in late if x not in words]
    oclr = [x for x in late if x[1] == "oclr"]
    if Opt.olate: late = [x for x in late if x[1] != "oclr"]
    else: oclr = []
    words += [("v_mov_b32 %s, 0" % v(r_), None) for r_ in (vGA, vWDV, vFLA, vHA)]
    st = collect(rdsetup) + words + late[:Opt.fillpre]
    fills = {"A": late[Opt.fillpre:], "B": late[Opt.fillpre:]}
    vms = {}
    wsrd(a); wvoff(a)
    a.e("s_waitcnt lgkmcnt(0)")
    a.stamp(2)
    put(a, block(part(0, "A")))
    a.e("s_branch L_setA")
    vms["A"] = a.vm; a.vm = []
    a.lab("L_setB")
    srd_words(a, [SX]); xvoff(a, vTID)
    a.e("s_waitcnt lgkmcnt(0)")
    a.stamp(2)
    put(a, block(part(0, "B")[1:]))
    srd_words(a, [SWQ]); qvoff(a)
    put(a, block(part(0, "B")[:1]))
    vms["B"] = a.vm
    for role in "BA":
        a.vm = vms[role]
        if role == "A": a.lab("L_setA")
        table(a)
        setup_ids(a)
        if role == "A": srd_words(a, [SX, SWQ])
        else: wsrd(a)
        tm = sum(0xff << (8 * i) for i in range(4) if Opt.tch >> i & 1)
        setex = "s_bitcmp1_b32 s%d, 3\ns_cselect_b32 exec_lo, 0, 0x%x\ns_cselect_b32 exec_hi, 0x%x, 0" % (sG, tm, tm) if Opt.ghx \
                else "s_mov_b32 exec_lo, 0x%x\ns_mov_b32 exec_hi, 0" % tm
        if Opt.tlb & 2 and role == "B":
            a.e("s_and_b32 s%d, s%d, 7" % (sA, sG))
            a.e("v_lshl_add_u32 v2, v0, 3, s%d" % sA)
            a.e("v_mul_u32_u24 v3, 3584, v2")
            a.e("s_and_b32 s%d, s%d, 1" % (sB, sW))
            a.e("s_lshl1_add_u32 s%d, s%d, s%d" % (sA, sM, sB))
            a.e("s_lshl_b32 s%d, s%d, 7" % (sA, sA))
            a.e(setex)
            a.e("s_cmp_ge_u32 s%d, 6" % sW)
            a.e("s_cbranch_scc1 L_tlbu")
            a.e("buffer_load_dword %s, v3, %s, s%d offen" % (v(vPOLL), srd(SWG), sA))
            a.e("s_branch L_tlbe")
            a.lab("L_tlbu")
            a.e("buffer_load_dword %s, v3, %s, s%d offen" % (v(vPOLL), srd(SWU), sA))
            a.lab("L_tlbe")
            a.e("s_mov_b64 exec, -1")
            a.vm.append("tlb")
        if Opt.tlb & 12 and role == "A":
            a.e("s_cmp_lg_u32 s%d, 0" % sW)
            a.e("s_cbranch_scc1 L_tlbx")
            a.e("s_and_b32 s%d, s%d, 7" % (sA, sG))
            a.e("v_lshl_add_u32 v2, v0, 3, s%d" % sA)
            a.e("v_lshlrev_b32 v3, 10, v2")
            a.e("s_lshl_b32 s%d, s%d, 6" % (sA, sHP))
            a.e(setex if Opt.tlb & 4 else "s_mov_b64 exec, 1")
            a.e("buffer_load_dword %s, v3, %s, s%d offen" % (v(vPOLL), srd(SWQ), sA))
            a.e("s_branch L_tlby")
            a.lab("L_tlbx")
            a.e("s_and_b32 s%d, s%d, 3" % (sA, sM))
            a.e("s_lshl2_add_u32 s%d, s%d, s%d" % (sA, sG, sA))
            a.e("s_lshl_b32 s%d, s%d, 15" % (sA, sA))
            a.e("v_lshl_add_u32 v3, v0, 10, s%d" % sA)
            a.e("s_lshr_b32 s%d, s%d, 3" % (sA, sG))
            a.e("s_lshl2_add_u32 s%d, s%d, s%d" % (sA, sA, sW) if Opt.ghx else "s_mov_b32 s%d, s%d" % (sA, sW))
            a.e("s_lshl_b32 s%d, s%d, 7" % (sA, sA))
            a.e("s_bitcmp1_b32 %d, s%d" % (Opt.tch if Opt.tlb & 8 else 0, sW))
            a.e("s_cselect_b32 exec_lo, -1, 1")
            a.e("s_mov_b32 exec_hi, 0")
            a.e("buffer_load_dword %s, v3, %s, s%d offen" % (v(vPOLL), srd(SX), sA))
            a.lab("L_tlby")
            a.e("s_mov_b64 exec, -1")
            a.vm.append("tlb")
        if Opt.startbar: a.e("s_barrier")
        npre = min(Opt.npre, 8) if role == "A" else 5
        pn = block(part(1, role)[:npre])
        rest = st + (collect(qvoff) + collect(lambda t: xvoff(t, vTID)) if role == "A" else collect(wvoff))
        gap = len(rest) // (npre + Opt.pregap) + 1
        for i in range(npre):
            put(a, pn[:1]); pn = pn[1:]
            put(a, rest[:gap]); rest = rest[gap:]
        put(a, rest)
        a.e("s_mov_b64 vcc, %d" % (-1 if role == "A" else 0))
        if role == "A":
            a.waitvm("c0", lgkm=True)
        else:
            a.e("s_setprio 1")
            a.waitvm("c0", lgkm=True)
            a.e("s_branch L_k0")
        vms[role] = a.vm
    stream = part(1, "A")[min(Opt.npre, 8):] + [(c, k_, j) for c in range(2, 8) for k_, j in ORDER]
    qa = [int(x, 16) for x in Opt.qa]; qb = [int(x, 16) for x in Opt.qb]
    def take(n, cmax):
        m = 0
        while m < n and m < len(stream) and stream[m][0] <= cmax: m += 1
        r_ = stream[:m]; del stream[:m]
        return block(r_)
    a.lab("L_k0")
    a.vm = vms["A"]
    ool = Asm()
    def dmablock(name, role, items, wait=None):
        a.e("s_cbranch_vcc%s L_%s" % ("nz" if role == "A" else "z", name))
        if wait: a.waitvm(wait, lgkm=True)
        a.lab("L_%s_r" % name)
        ool.lab("L_%s" % name)
        ool.vm = a.vm if role == "A" else vms["B"]
        for it_ in items:
            if it_[1] is None: put(ool, fills[role]); fills[role] = []
            put(ool, [it_])
            put(ool, fills[role][:Opt.fillper]); fills[role] = fills[role][Opt.fillper:]
        if name == "e7": put(ool, fills[role]); fills[role] = []
        if wait: ool.waitvm(wait, lgkm=True)
        if role == "B": vms["B"] = ool.vm
        ool.e("s_branch L_%s_r" % name)
    a.ool = ool.l

    def fr(k):
        b = vF1 + 36 * (k % 2)
        return dict(x=b, w=b + 16, q=b + 32)
    def reads(k):
        c, s = divmod(k, 2); f = fr(k); sl = c % 3
        wo = sl * 16384 + s * 8192
        W = lambda i: [rdtr(f['w'] + 4 * i, vWA + i, wo), rdtr(f['w'] + 4 * i + 2, vWA + i, wo + 1024)]
        X = [rd128(f['x'] + 4 * b, vXA + 2 * s + (b >> 1), sl * 16384 + (b & 1) * 2048) for b in range(4)]
        return W(0) + X + W(2) + W(1) + W(3) + [rdtr(f['q'], vQA, sl * 4096 + s * 2048), rdtr(f['q'] + 2, vQA, sl * 4096 + s * 2048 + 256)]
    a.e("s_barrier")
    a.stamp(3)
    if Opt.kdiag or Opt.probe >= 18:
        kstamp(a, 2)
        a.e("s_waitcnt lgkmcnt(0)")
    for r in reads(0): a.e(r)
    if qa[0]: dmablock("d2", "A", take(qa[0], 2))
    for k in range(16):
        c, s = divmod(k, 2); f = fr(k)
        z = lambda x: None if k == 0 else x
        mf = []
        for n_, i in enumerate((0, 2, 1, 3)):
            for b in (range(4) if n_ % 2 == 0 else range(3, -1, -1)):
                d = vACC + 16 * b + 4 * i
                mf.append(mfma16(d, f['w'] + 4 * i, f['x'] + 4 * b, z(d)))
        for b in range(2): mf.append(mfma16(vAQ + 4 * b, f['q'], f['x'] + 4 * b, z(vAQ + 4 * b)))
        rds = reads(k + 1) if k < 15 else []
        if s == 0:
            a.e("s_waitcnt lgkmcnt(6)")
            for i, m in enumerate(mf):
                if i == 8: a.e("s_waitcnt lgkmcnt(8)")
                a.e(m)
                if i < len(rds): a.e(rds[i])
            continue
        a.e("s_waitcnt lgkmcnt(8)")
        for m in mf[:4]: a.e(m)
        if c <= 5:
            dmablock("e%d" % (c + 2), "B", take(qb[c], c + 2), "c%d" % (c + 1))
            assert not any(x[0] <= c + 1 for x in stream)
        if c == 7:
            a.e("s_waitcnt lgkmcnt(0)")
        elif c == 6 and Opt.stagger:
            a.e("s_waitcnt lgkmcnt(0)")
            a.e("s_cbranch_vccz L_st7")
            a.e("s_waitcnt vmcnt(0)")
            spin_counter(a, "kvf", True)
            a.e("s_barrier")
            a.e("s_setprio 1")
            for x, _ in kv_first_loads(a) + oclr: a.e(x)
            a.lab("L_st7")
        elif c == 6:
            a.e("s_setprio 0")
            a.wait0(lgkm=True)
            spin_counter(a, "kvf", True)
            a.e("s_barrier")
            put(a, kv_first_loads(a) + oclr)
        else:
            a.e("s_barrier")
        if c < 7 and ((Opt.kdiag == 1 and Opt.diag) or Opt.probe == 21 + c):
            kstamp(a, 3 + c)
            a.e("s_waitcnt lgkmcnt(0)")
        if c + 3 < 8:
            items = take(qa[c + 1], c + 3)
            if c == 4:
                items.append(("s_cmp_lg_u32 s%d, 0\ns_cbranch_scc1 L_d7_r\nbuffer_load_dword %s, off, %s, 0 sc1"
                              % (sW, v(vPOLL), srd(SDBG)), None))
            dmablock("d%d" % (c + 3), "A", items)
        for i, m in enumerate(mf[4:]):
            a.e(m)
            if i < len(rds): a.e(rds[i])
        if k == 11: assert not stream and not fills["A"] and not fills["B"]
        if k == 11 and Opt.stagger:
            a.e("s_cbranch_vccnz L_st6")
            a.e("s_setprio 0")
            a.wait0()
            a.e("s_barrier")
            put(a, kv_first_loads(a) + oclr)
            a.lab("L_st6")
    a.stamp(4)

def phase1_L(a):
    a.lab("L_light")
    a.vm = []
    ptr_loads(a, ((SWKV, 16), (SWV, 24)))
    srd_words(a, [SWKV, SWV, SGATE, SX])
    xvoff(a, 0)
    a.e("v_and_b32 v2, 63, v0")
    a.e("v_lshlrev_b32 %s, 4, v2" % v(vL16))
    a.e("s_sub_u32 s%d, s%d, 14" % (sCNT, sM))
    a.e("s_lshl_b32 s%d, s%d, 16" % (sOLD, sCNT))
    a.e("s_lshl_b32 s%d, s%d, 13" % (sHST, sCNT))
    a.e("s_add_u32 s%d, s%d, s%d" % (sWH, sHST, sWK))
    a.e("s_xor_b32 s%d, s%d, 0x2000" % (sHST, sHST))
    a.e("s_add_u32 s%d, s%d, 0x2000" % (sA, sWK))
    a.e("s_waitcnt lgkmcnt(0)")
    a.stamp(2)
    def xdma(c, base, so):
        a.vmop("s_add_u32 m0, s%d, 0x%x\ns_nop 0\nbuffer_load_dwordx4 %s, %s, s%d offen offset:%d lds"
               % (base, LL_X + c * 16384 - c * 128, v(vDX), srd(SX), so, c * 128), "c%d" % c)
    def wdma(u):
        for t, rs in enumerate((SWKV, SWV)):
            a.vmop("s_add_u32 m0, s%d, 0x%x\ns_nop 0\nbuffer_load_dwordx4 %s, %s, s%d offen lds"
                   % (sWK, LL_W + t * 16384 + u * 8192, v(vL16), srd(rs), sA if u else sWK), "w")
    wdma(0)
    a.vmop("s_mov_b32 m0, s%d\ns_nop 0\nbuffer_load_dwordx4 %s, %s, 0 offen lds" % (sHST, v(vL16), srd(SGATE)), "w")
    for c in range(8):
        if c == 4: wdma(1)
        xdma(c, sWH, sOLD)
        if c in (1, 3, 5): a.e("s_barrier")
    setup_ids(a)
    srd_words(a, [SWQ])
    setup_rd(a)
    a.e("v_lshrrev_b32 v3, 5, v0")
    a.e("v_bfrev_b32 v5, v4")
    a.e("v_lshrrev_b32 v5, 30, v5")
    a.e("s_cmp_ge_u32 s%d, 2" % sLO)
    a.e("s_cselect_b64 vcc, -1, 0")
    a.e("v_cndmask_b32 v4, v5, v4, vcc")
    a.e("v_lshl_add_u32 %s, v3, 3, v2" % v(vWA))
    a.e("v_lshlrev_b32 %s, 5, %s" % (v(vWA), v(vWA)))
    a.e("v_lshl_add_u32 %s, v4, 3, %s" % (v(vWA), v(vWA)))
    a.e("s_lshr_b32 s%d, s%d, 1" % (sA, sLO))
    a.e("s_lshl_b32 s%d, s%d, 14" % (sA, sA))
    a.e("s_add_u32 s%d, s%d, 0x%x" % (sA, sA, LL_W))
    a.e("v_add_u32 %s, s%d, %s" % (v(vWA), sA, v(vWA)))
    a.e("v_lshl_add_u32 %s, v3, 4, s%d" % (v(vWA + 1), sHST))
    a.e("s_and_b32 s%d, s%d, 1" % (sA, sLO))
    a.e("s_lshl_b32 s%d, s%d, 1" % (sB, sCNT))
    a.e("s_add_u32 s%d, s%d, s%d" % (sCNT, sA, sB))
    a.e("s_lshl_b32 s%d, s%d, 12" % (sA, sCNT))
    a.e("v_and_b32 v2, 31, v0")
    a.e("v_bfe_u32 v4, v0, 1, 3")
    a.e("v_xor_b32 v4, v4, v3")
    a.e("v_lshlrev_b32 v4, 4, v4")
    a.e("v_lshl_add_u32 v4, v2, 7, v4")
    a.e("v_add_u32 %s, s%d, v4" % (v(vLX), sA))
    for s in range(1, 4): a.e("v_xor_b32 %s, %d, %s" % (v(vLX + s), 32 * s, v(vLX)))
    for s in range(4): a.e("v_add_u32 %s, 0x10000, %s" % (v(vLX + 4 + s), v(vLX + s)))
    a.e("s_waitcnt lgkmcnt(0)")
    setup_oclr(a)
    vm0 = list(a.vm)
    a.e("s_cmp_lg_u32 s%d, 0" % sHI)
    a.e("s_cbranch_scc1 L_lB")
    a.e("s_not_b64 %s, %s" % (sp(sTMPP), sp(sVM)))
    a.e("s_cmp_ge_u32 s%d, 2" % sLO)
    a.e("s_cbranch_scc1 L_lV")
    def chain(kind):
        a.vm = list(vm0)
        def fr(k):
            b = vFR + 8 * (k % 4)
            return b, b + 4
        def reads(k):
            c, s = divmod(k, 4); x, w = fr(k)
            r = [rd128(x, vLX + s + 4 * (c >> 2), (c & 3) * 16384), rdtr(w, vWA, k * 512), rdtr(w + 2, vWA, k * 512 + 128)]
            if kind == "K":
                r += ["s_mov_b64 exec, %s" % sp(sTMPP), rd128(w, vWA + 1, k * 32), "s_mov_b64 exec, -1"]
            return r
        for q in range(4):
            a.waitvm("c%d" % (2 * q + 1))
            a.e("s_barrier")
            nr = 4 if kind == "K" else 3
            for k in range(8 * q, 8 * q + 2):
                for r in reads(k): a.e(r)
            for k in range(8 * q, 8 * q + 8):
                if k + 2 < 8 * q + 8:
                    for r in reads(k + 2): a.e(r)
                left = min(2, 8 * q + 7 - k)
                a.e("s_waitcnt lgkmcnt(%d)" % (left * nr))
                x, w = fr(k)
                cc = None if k == 0 else vACC
                a.e(mfma(vACC, w, x, cc) if kind == "K" else mfma(vACC, x, w, cc))
        a.e("s_lshl_b32 s%d, s%d, 2" % (sA, sG))
        a.e("s_add_u32 s%d, s%d, s%d" % (sA, sA, sCNT))
        a.e("s_nop 12")
        if kind == "K":
            a.e("s_mov_b32 s%d, 0x%x" % (sC, f2u(0.25 * math.log2(math.e))))
            for i in range(8): a.e("v_mul_f32 %s, s%d, %s" % (v(vACC + i), sC, v(vACC + i)))
            a.e("v_mul_f32 %s, 0x%x, %s" % (v(vACC + 8), f2u(-math.log2(math.e)), v(vACC + 8)))
            a.e("v_exp_f32 %s, %s" % (v(vACC + 8), v(vACC + 8)))
            for i in range(4): a.e("v_cvt_pk_bf16_f32 %s, %s, %s" % (v(vFR + i), v(vACC + 2 * i), v(vACC + 2 * i + 1)))
            a.e("v_add_f32 %s, 1.0, %s" % (v(vACC + 8), v(vACC + 8)))
            a.e("v_rcp_f32 %s, %s" % (v(vACC + 8), v(vACC + 8)))
            a.e("s_add_u32 s%d, s%d, 63" % (sB, sA))
            a.e("s_and_b32 s%d, s%d, 63" % (sB, sB))
            a.e("s_lshl_b32 s%d, s%d, 11" % (sB, sB))
            a.e("buffer_store_dwordx4 %s, %s, %s, s%d offen sc1" % (v(vFR, 4), v(vL16), srd(SKV), sB))
            a.e("s_lshl_b32 s%d, s%d, 7" % (sB, sA))
            a.e("s_add_u32 s%d, s%d, 0x%x" % (sB, sB, WS_G))
            a.e("s_mov_b32 exec_hi, 0")
            a.e("buffer_store_dword %s, %s, %s, s%d offen sc1" % (v(vACC + 8), v(vGA), srd(SWS), sB))
            a.e("s_mov_b64 exec, -1")
        else:
            for i in range(8): a.e("v_cvt_pk_bf16_f32 %s, %s, %s" % (v(vFR + i), v(vACC + 2 * i), v(vACC + 2 * i + 1)))
            a.e("v_bfe_u32 v2, v0, 4, 1")
            a.e("v_add_u32 v2, s%d, v2" % sA)
            a.e("v_and_b32 v2, 63, v2")
            a.e("v_lshl_add_u32 v2, v2, 11, %s" % v(vL16))
            for i in range(4): a.e("v_cndmask_b32 %s, %s, %s, %s" % (v(vFR + i), v(vFR + 4 + i), v(vFR + i), sp(sVM)))
            a.e("buffer_store_dwordx4 %s, v2, %s, 0 offen offset:1024 sc1" % (v(vFR, 4), srd(SKV)))
        a.e("s_branch L_lJ")
    chain("K")
    a.lab("L_lV")
    chain("V")
    a.lab("L_lB")
    a.vm = list(vm0)
    a.e("s_cmp_lg_u32 s%d, 14" % sM)
    a.e("s_cbranch_scc1 L_nozf")
    a.e("s_cmp_lg_u32 s%d, 4" % sW)
    a.e("s_cbranch_scc1 L_nozf")
    a.e("v_lshlrev_b32 v2, 7, v0")
    a.e("s_lshl_b32 s%d, s%d, 11" % (sA, sG))
    a.e("s_add_u32 s%d, s%d, 0x%x" % (sA, sA, WS_HFLAG))
    a.e("s_mov_b64 exec, 0xffff")
    a.e("buffer_store_dword %s, v2, %s, s%d offen sc1" % (v(vZERO), srd(SWS), sA))
    a.e("s_mov_b64 exec, -1")
    a.lab("L_nozf")
    for q in range(4):
        a.waitvm("c%d" % (2 * q + 1))
        a.e("s_barrier")
    a.lab("L_lJ")
    a.e("v_lshrrev_b32 v3, 2, v0")
    a.e("v_lshlrev_b32 v3, 10, v3")
    a.e("v_lshrrev_b32 v4, 5, v0")
    a.e("v_lshlrev_b32 v4, 1, v4")
    a.e("v_xor_b32 v4, v4, v0")
    a.e("v_and_b32 v4, 3, v4")
    a.e("v_lshl_add_u32 v3, v4, 4, v3")
    a.e("s_lshl_b32 s%d, s%d, 14" % (sA, sW))
    a.e("s_lshl_b32 s%d, s%d, 6" % (sB, sHP))
    a.e("s_add_u32 s%d, s%d, s%d" % (sA, sA, sB))
    a.e("v_add_u32 %s, s%d, v3" % (v(vDQ), sA))
    a.e("s_xor_b32 s%d, s%d, 0x2000" % (sWH, sWH))
    a.e("s_xor_b32 s%d, s%d, 0x10000" % (sOLD, sOLD))
    a.wait0(lgkm=True)
    a.e("s_barrier")
    a.e("s_cmp_lg_u32 s%d, 0" % sW)
    a.e("s_cbranch_scc1 L_noat")
    a.e("s_mov_b64 exec, 1")
    a.e("buffer_atomic_add %s, off, %s, 0 sc1" % (v(vONE), srd(SDBG)))
    a.e("s_mov_b64 exec, -1")
    a.lab("L_noat")
    a.stamp(3)
    for c in range(8): xdma(c, sWH, sOLD)
    for p in range(4):
        a.e("s_add_u32 m0, s%d, 0x%x" % (sWK, LL_WQ + p * 8192))
        a.e("s_mov_b32 s%d, 0x%x" % (sA, p * 128 * 1024))
        a.e("buffer_load_dwordx4 %s, %s, s%d offen lds" % (v(vDQ), srd(SWQ), sA))
    setup_attn(a)
    if Opt.touch & 2:
        a.e("s_lshl_b32 s%d, s%d, 1" % (sA, sG))
        a.e("s_add_u32 s%d, s%d, s%d" % (sA, sA, sM))
        a.e("s_sub_u32 s%d, s%d, 14" % (sA, sA))
        a.e("s_lshl_b32 s%d, s%d, 3" % (sA, sA))
        a.e("s_add_u32 s%d, s%d, s%d" % (sA, sA, sW))
        a.e("v_lshlrev_b32 v2, 15, v0")
        a.e("s_lshl_b32 s%d, s%d, 7" % (sA, sA))
        a.e("buffer_load_dword %s, v2, %s, s%d offen" % (v(vPOLL), srd(SWO), sA))
        a.e("buffer_load_dword %s, v2, %s, s%d offen" % (v(vPOLL), srd(SWD), sA))
    a.e("s_lshl_b32 s%d, s%d, 12" % (sA, sLO))
    a.e("v_add_u32 %s, s%d, %s" % (v(vXA), sA, v(vXA)))
    a.e("v_xor_b32 %s, 64, %s" % (v(vXA + 1), v(vXA)))
    a.e("v_add_u32 %s, 0x10000, %s" % (v(vXA + 2), v(vXA)))
    a.e("v_add_u32 %s, 0x10000, %s" % (v(vXA + 3), v(vXA + 1)))
    a.e("v_add_u32 %s, 0x%x, %s" % (v(vQA), LL_WQ, v(vQA)))
    a.e("s_waitcnt vmcnt(%d)" % (2 if Opt.touch & 2 else 0))
    a.e("s_barrier")
    def fr(k): return vFR + 12 * (k % 3)
    def reads(k):
        c, s = divmod(k, 2); f = fr(k)
        return [rd128(f + 4 * b, vXA + s + 2 * (c >> 2), (c & 3) * 16384 + b * 2048) for b in range(2)] + \
               [rdtr(f + 8, vQA, k * 2048), rdtr(f + 10, vQA, k * 2048 + 256)]
    for k in range(2):
        for r in reads(k): a.e(r)
    for k in range(16):
        a.e("s_waitcnt lgkmcnt(%d)" % (4 * min(1, 15 - k)))
        for b in range(2): a.e(mfma16(vAQ + 4 * b, fr(k) + 8, fr(k) + 4 * b, None if k == 0 else vAQ + 4 * b))
        if k + 2 < 16:
            for r in reads(k + 2): a.e(r)
    spin_counter(a, "kvl", False)
    a.e("s_barrier")
    for s, t in kv_first_loads(a): a.e(s)
    a.wait0()
    a.stamp(4)
    a.e("s_branch L_join")

def gelu_tile(a, ti, scalar=False):
    acc = vACC + 16 * ti
    t = vFR
    o = vFR + 8 + 4 * ti
    pk = lambda r: v(r, 2)
    if scalar:
        for i in range(8): a.e("v_mul_f32 %s, %s, %s" % (v(t + i), v(acc + i), v(acc + i)))
        for i in range(8): a.e("v_fma_f32 %s, %s, %s, %s" % (v(t + i), v(t + i), v(vC0 + 1), v(vC0)))
        for i in range(8): a.e("v_mul_f32 %s, %s, %s" % (v(t + i), v(t + i), v(acc + i)))
        for i in range(8): a.e("v_exp_f32 %s, %s" % (v(t + i), v(t + i)))
        for i in range(8): a.e("v_add_f32 %s, 1.0, %s" % (v(t + i), v(t + i)))
        for i in range(8): a.e("v_rcp_f32 %s, %s" % (v(t + i), v(t + i)))
        for i in range(8): a.e("v_mul_f32 %s, %s, %s" % (v(acc + i), v(acc + i), v(acc + 8 + i)))
        for i in range(8): a.e("v_mul_f32 %s, %s, %s" % (v(acc + i), v(acc + i), v(t + i)))
    R4, R8 = (range(0), range(0)) if scalar else (range(4), range(8))
    for i in R4: a.e("v_pk_mul_f32 %s, %s, %s" % (pk(t + 2 * i), pk(acc + 2 * i), pk(acc + 2 * i)))
    for i in R4: a.e("v_pk_fma_f32 %s, %s, %s, %s op_sel:[0,1,0] op_sel_hi:[1,1,0]" % (pk(t + 2 * i), pk(t + 2 * i), pk(vC0), pk(vC0)))
    for i in R4: a.e("v_pk_mul_f32 %s, %s, %s" % (pk(t + 2 * i), pk(t + 2 * i), pk(acc + 2 * i)))
    for i in R8: a.e("v_exp_f32 %s, %s" % (v(t + i), v(t + i)))
    for i in R4: a.e("v_pk_add_f32 %s, %s, 1.0 op_sel_hi:[1,0]" % (pk(t + 2 * i), pk(t + 2 * i)))
    for i in R8: a.e("v_rcp_f32 %s, %s" % (v(t + i), v(t + i)))
    for i in R4: a.e("v_pk_mul_f32 %s, %s, %s" % (pk(acc + 2 * i), pk(acc + 2 * i), pk(acc + 8 + 2 * i)))
    for i in R4: a.e("v_pk_mul_f32 %s, %s, %s" % (pk(acc + 2 * i), pk(acc + 2 * i), pk(t + 2 * i)))
    for i in range(4): a.e("v_cvt_pk_bf16_f32 %s, %s, %s" % (v(o + i), v(acc + 2 * i), v(acc + 2 * i + 1)))
    a.vmop("buffer_store_dwordx4 %s, %s, %s, s%d offen offset:%d sc1" % (v(o, 4), v(vHA), srd(SWS), sHST2 if ti >> 1 else sHST, (ti & 1) * 256), "hst")

def Yseg(hset, toggle=False):
    out = []
    for t in range(2):
        S, Sn = vS + 16 * t, vS + 16 * (1 - t)
        K, V0, V1 = vKF + 4 * t, vV + 8 * t, vV + 8 * t + 4
        for j in range(8):
            out.append("v_exp_f32 %s, %s" % (v(vE + 2 * (j % 2)), v(S + 2 * j)))
            out.append("v_exp_f32 %s, %s" % (v(vE + 2 * (j % 2) + 1), v(S + 2 * j + 1)))
            jj = (j - 1) % 8
            out.append("v_cvt_pk_bf16_f32 %s, %s, %s" % (v(vP + jj), v(vE + 2 * (jj % 2)), v(vE + 2 * (jj % 2) + 1)))
            if j == 1: out.append(mfma(vO, V1, vP + 4, vO))
            if j == 3: out.append(mfma(Sn, K, vQ, None))
            if hset is None:
                if j == 7: out.append(mfma(vO, V0, vP, vO))
            else:
                if j == 5: out.append(mfma(vO, V0, vP, vO))
                if j == 6 and t == 1 and toggle:
                    out.append("v_xor_b32 %s, 0x4000, %s" % (v(vKVA), v(vKVA)))
                    out.append("v_xor_b32 %s, 0x8000, %s" % (v(vWDA), v(vWDA)))
                if j == 7: out.append(mfma(vD + 16 * t, vWF + 4 * t, vH + 4 * hset, vD + 16 * t))
    return out

def kv_reads(off):
    r = [rd128(vKF, vKVA, off), rd128(vKF + 4, vKVA, off + 2048), "s_mov_b64 exec, %s" % sp(sVM)]
    for t in range(2):
        r += [rd128(vV + 8 * t, vKVA, off + 2048 * t + 1024), rd128(vV + 8 * t + 4, vKVA, off + 2048 * t + 1280)]
    r.append("s_mov_b64 exec, -1")
    return r
def wd_reads(dst, addr, off):
    r = []
    for c in range(2):
        r += [rdtr(dst + 4 * c, addr, off + 512 * c), rdtr(dst + 4 * c + 2, addr, off + 512 * c + 1024)]
    return r

def wdrow(sg): return (32 * (sg >> 1) + 8 * (sg & 1)) * 1024

def attention(a, role, pre0=None):
    A = role == "A"
    def kvdma(u):
        a.vmop("s_add_u32 m0, s%d, 0x%x\ns_add_u32 s%d, s%d, 0x%x\nbuffer_load_dwordx4 %s, %s, s%d offen sc1 lds"
               % (sWK, L_KV + (u % 4) * 8192, sA, sWK, u * 8192, v(vL16), srd(SKV), sA), "kv%d" % u)
    def wddma(sg):
        a.vmop("s_add_u32 m0, s%d, 0x%x\ns_add_u32 s%d, s%d, 0x%x\nbuffer_load_dwordx4 %s, %s, s%d offen lds"
               % (sWK, L_WD + ((sg + 3) % 8) * 8192, sA, sWDOFF, wdrow(sg), v(vWDV), srd(SWD), sA), "wd%d" % sg)
    def wodma(j):
        a.vmop("s_add_u32 m0, s%d, 0x%x\ns_add_u32 s%d, s%d, 0x%x\nbuffer_load_dwordx4 %s, %s, s%d offen lds"
               % (sWK, L_WO + j * 8192, sA, sB, j * 16384, v(vWDV), srd(SWO), sA), "wo")
    def hload(sg, dst):
        a.vmop("s_add_u32 s%d, s%d, 0x%x\nbuffer_load_dwordx4 %s, %s, %s, s%d offen sc1"
               % (sA, sHOFF, sg * 1024, v(dst, 4), v(vL16), srd(SWS), sA), "h%d" % sg)
    for n in range(11):
        if not A and n == 0: a.e("s_barrier")
        if n % 2 == 1: astamp(a, 2 + n // 2)
        tags = []
        if A and n % 2 == 1: tags.append("kv%d" % ((n + 1) // 2))
        if not A and n % 2 == 0: tags.append("kv%d" % ((n + 2) // 2))
        if n == (3 if A else 2): tags.append("hst")
        if n == 10: tags.append("wd0")
        if n == 8 and A:
            a.e("s_cmp_lg_u32 s%d, 0" % sW)
            a.e("s_cbranch_scc1 L_hf_done")
            a.e("s_mov_b32 s%d, 0x4000" % sB)
            a.e("s_waitcnt vmcnt(2)")
            a.lab("L_hf_chk")
            a.e("v_cmp_ne_u32 vcc, 1, %s" % v(vPOLL))
            a.e("s_cbranch_vccz L_hf_done")
            a.e("s_sleep 2")
            a.e("buffer_load_dword %s, %s, %s, 0 offen sc1" % (v(vPOLL), v(vFLA), srd(SWS)))
            a.e("s_sub_u32 s%d, s%d, 1" % (sB, sB))
            a.e("s_cmp_lg_u32 s%d, 0" % sB)
            a.e("s_waitcnt vmcnt(0)")
            a.e("s_cbranch_scc1 L_hf_chk")
            a.lab("L_hf_done")
        a.waitvm(tags)
        if n == 3 and not A:
            a.e("s_cmp_ge_u32 s%d, 14" % sM)
            a.e("s_cbranch_scc1 L_nohf")
            a.e("s_cmp_lg_u32 s%d, 4" % sW)
            a.e("s_cbranch_scc1 L_nohf")
            a.e("s_lshl_b32 s%d, s%d, 4" % (sA, sG))
            a.e("s_add_u32 s%d, s%d, s%d" % (sA, sA, sM))
            a.e("s_lshl_b32 s%d, s%d, 7" % (sA, sA))
            a.e("s_add_u32 s%d, s%d, 0x%x" % (sA, sA, WS_HFLAG))
            a.e("s_mov_b64 exec, 1")
            a.e("buffer_store_dword %s, off, %s, s%d sc1" % (v(vONE), srd(SWS), sA))
            a.e("s_mov_b64 exec, -1")
            a.lab("L_nohf")
        for r in kv_reads((n % 8) * 4096): a.e(r)
        if n == 7 and A:
            a.e("s_cmp_lg_u32 s%d, 0" % sW)
            a.e("s_cbranch_scc1 L_hf_nol")
            a.e("buffer_load_dword %s, %s, %s, 0 offen sc1" % (v(vPOLL), v(vFLA), srd(SWS)))
            a.lab("L_hf_nol")
        if n == 0:
            kvdma(2); kvdma(3)
            a.e("s_mov_b32 s%d, s%d" % (sC, sKQ))
            a.e("s_mul_i32 s%d, s%d, %d" % (sWDOFF, sC, 448 * 1024))
            a.e("s_and_b32 s%d, s%d, 1" % (sB, sW))
            a.e("s_lshl_b32 s%d, s%d, 14" % (sA, sB))
            a.e("s_add_u32 s%d, s%d, s%d" % (sWDOFF, sWDOFF, sA))
            a.e("s_lshl_b32 s%d, s%d, 1" % (sA, sT))
            a.e("s_add_u32 s%d, s%d, s%d" % (sA, sA, sB))
            a.e("s_mul_i32 s%d, s%d, 112" % (sA, sA))
            a.e("s_mul_i32 s%d, s%d, 28" % (sB, sC))
            a.e("s_add_u32 s%d, s%d, s%d" % (sA, sA, sB))
            a.e("s_lshl_b32 s%d, s%d, 10" % (sA, sA))
            a.e("s_add_u32 s%d, s%d, 0x%x" % (sHOFF, sA, WS_HF))
        if (A and n % 2 == 1 and n >= 3): kvdma((n + 5) // 2)
        if (not A and n % 2 == 0 and n >= 2): kvdma((n + 6) // 2)
        if 1 <= n <= 3:
            a.e("s_lshl_b32 s%d, s%d, 17" % (sB, sKQ))
            a.e("s_and_b32 s%d, s%d, 1" % (sC, sW))
            a.e("s_lshl_b32 s%d, s%d, 13" % (sC, sC))
            a.e("s_add_u32 s%d, s%d, s%d" % (sB, sB, sC))
            for j in {1: (0, 1, 2), 2: (3, 4, 5), 3: (6, 7)}[n]: wodma(j)
        if n >= 4: wddma(n - 4)
        if n == 9:
            hload(0, vH + 12); hload(1, vH + 0); hload(24, vH + 16); hload(25, vH + 20)
        if n == 10:
            hload(26, vH + 24); hload(27, vH + 28); hload(2, vH + 4)
        if n == 0 and pre0:
            pre0()
            a.stamp(5)
        a.e("s_waitcnt lgkmcnt(0)")
        a.e("s_call_b64 %s, L_Y%s" % (sp(sRET), role))
        if n == 0:
            a.e("s_branch L_X1%s" % role)
            a.lab("L_Y%s" % role)
            if A: a.e("s_barrier")
            for x in Yseg(None): a.e(x)
            if not A: a.e("s_barrier")
            a.e("s_setpc_b64 %s" % sp(sRET))
            a.lab("L_X1%s" % role)
    astamp(a, 7)
    a.e("s_add_u32 s%d, s%d, 0x%x" % (sHOFF, sHOFF, 3 * 1024))
    a.e("s_add_u32 s%d, s%d, 0x%x" % (sWDOFF, sWDOFF, wdrow(7)))
    a.e("s_mov_b32 s%d, 0x%x" % (sM0WD, ((7 + 3) % 8) * 8192))
    u0 = 8 if A else 9
    a.e("s_add_u32 s%d, s%d, 0x%x" % (sKVOFF, sWK, u0 * 8192))
    a.e("s_mov_b32 s%d, 6" % sCNT)
    a.waitvm(["h0", "wd1", "kv6"] if A else ["h0", "wd1"])
    a.e("s_branch L_loop%s_in" % role)
    a.l.append(".p2align 6")
    a.lab("L_loop%s" % role)
    for p in range(4):
        if p == 0 and Opt.diag and Opt.kdiag == 2:
            a.e("s_cmp_lg_u32 s%d, 4" % sCNT)
            a.e("s_cbranch_scc1 L_nst%s" % role)
            astamp(a, 8)
            a.lab("L_nst%s" % role)
        a.e("s_waitcnt vmcnt(5)")
        if p == 3: a.lab("L_loop%s_in" % role)
        for r in kv_reads(p * 4096): a.e(r)
        for r in wd_reads(vWF, vWDA, p * 8192): a.e(r)
        a.e("buffer_load_dwordx4 %s, %s, %s, s%d offen sc1" % (v(vH + 4 * ((p + 3) % 4), 4), v(vL16), srd(SWS), sHOFF))
        a.e("s_add_u32 m0, s%d, s%d" % (sWK, sM0WD))
        a.e("s_add_u32 s%d, s%d, 0x400" % (sHOFF, sHOFF))
        a.e("buffer_load_dwordx4 %s, %s, s%d offen lds" % (v(vWDV), srd(SWD), sWDOFF))
        a.e("s_add_u32 s%d, s%d, 0x%x" % (sWDOFF, sWDOFF, 0x6000 if p & 1 else 0x2000))
        a.e("s_add_u32 s%d, s%d, 0x2000" % (sM0WD, sM0WD))
        a.e("s_and_b32 s%d, s%d, 0xffff" % (sM0WD, sM0WD))
        if (p % 2 == 1) == A:
            a.e("s_and_b32 s%d, s%d, 0x7fff" % (sA, sKVOFF))
            a.e("s_add_u32 m0, s%d, 0x%x" % (sA, L_KV))
            a.e("s_nop 0")
            a.e("buffer_load_dwordx4 %s, %s, s%d offen sc1 lds" % (v(vL16), srd(SKV), sKVOFF))
            a.e("s_add_u32 s%d, s%d, 0x2000" % (sKVOFF, sKVOFF))
        if p == 3:
            a.e("s_sub_u32 s%d, s%d, 1" % (sCNT, sCNT))
            a.e("s_cmp_lg_u32 s%d, 0" % sCNT)
        a.e("s_waitcnt lgkmcnt(0)")
        if A: a.e("s_barrier")
        for x in Yseg(p, toggle=(p == 3)): a.e(x)
        if not A:
            if p == 3: a.e("s_cbranch_scc0 L_tail")
            a.e("s_barrier")
    a.e(("s_cbranch_scc1 L_loop%s" if A else "s_branch L_loop%s") % role)

def transition(a, role):
    A = role == "A"
    if A:
        a.vm = list(a.vmjoin)
        a.lab("L_trA")
    else:
        a.lab("L_join")
        a.e("s_cmp_eq_u32 s%d, 0" % sHI)
        a.e("s_cbranch_scc1 L_trA")
        a.vmjoin = list(a.vm)
    def qfin():
        for i in range(4): a.e("v_cvt_pk_bf16_f32 %s, %s, %s" % (v(vQ + i), v(vAQ + 2 * i), v(vAQ + 2 * i + 1)))
        for i in range(4, 7): a.e("v_mov_b32 %s, 0" % v(vP + i))
        a.e("v_permlane16_swap_b32 %s, %s" % (v(vQ), v(vQ + 2)))
        a.e("v_permlane16_swap_b32 %s, %s" % (v(vQ + 1), v(vQ + 3)))
    pre0 = None
    if A:
        a.e("s_setprio 1")
        a.e("s_cmp_ge_u32 s%d, 14" % sM)
        a.e("s_cbranch_scc1 L_nogA0")
        a.l.append(".p2align 3")
        for ti in range(Opt.gsc): gelu_tile(a, ti, True)
        a.lab("L_nogA0")
        qfin()
        a.waitvm(["k0", "kv0", "kv1"])
        a.e("s_setprio 0")
        a.e("s_barrier")
        a.e(mfma(vS, vK0, vQ, None))
        def pre0():
            a.e("s_cmp_lt_u32 s%d, 14" % sM)
            a.e("s_cbranch_scc1 L_gA1")
            a.e("s_waitcnt vmcnt(0)")
            a.e("s_branch L_nogA1")
            a.l.append(".p2align 3")
            a.lab("L_gA1")
            for ti in range(Opt.gsc, 4): gelu_tile(a, ti)
            a.lab("L_nogA1")
            a.e("s_setprio 1")
    else:
        a.waitvm(["k0", "kv0", "kv1"])
        a.e("s_setprio 1")
        a.e("s_cmp_ge_u32 s%d, 14" % sM)
        a.l.append(".p2align 3")
        a.e("s_barrier")
        a.e("s_cbranch_scc1 L_nogB")
        for ti in range(4): gelu_tile(a, ti)
        a.lab("L_nogB")
        qfin()
        a.e("s_setprio 0")
        a.e("s_nop 0")
        a.e(mfma(vS, vK0, vQ, None))
        a.stamp(5)
    attention(a, role, pre0)
    if A: a.e("s_branch L_tail")

def tail(a):
    a.lab("L_tail")
    a.e("v_cvt_pk_bf16_f32 %s, %s, %s" % (v(vP + 7), v(vE + 2), v(vE + 3)))
    a.stamp(6)
    astamp(a, 9)
    if Opt.diag and Opt.kdiag == 2: a.e("s_waitcnt lgkmcnt(0)")
    a.e("s_setprio 0")
    a.e("s_mov_b32 s%d, 0x%x" % (sC, f2u(2.0 ** -16)))
    a.e(mfma(vO, vV1L, vP + 4, vO))
    a.e("s_mov_b32 s%d, 0x%x" % (sD, f2u(2.0 ** 100)))
    a.e("s_nop 10")
    t = vFR
    a.e("v_rcp_f32 %s, %s" % (v(t + 2), v(vO + 8)))
    a.e("v_pk_mul_f32 %s, %s, 0 op_sel_hi:[1,0]" % (v(t, 2), v(vO, 2)))
    for i in range(1, 4): a.e("v_pk_fma_f32 %s, %s, 0, %s op_sel_hi:[1,0,1]" % (v(t, 2), v(vO + 2 * i, 2), v(t, 2)))
    a.e("v_add_f32 %s, %s, %s" % (v(t), v(t), v(t + 1)))
    a.e("v_add_f32 %s, %s, %s" % (v(t), v(t), v(vO + 8)))
    a.e("v_cmp_nle_f32 vcc, s%d, %s" % (sC, v(t)))
    a.e("v_cmp_nge_f32 %s, s%d, %s" % (sp(sTMPP), sD, v(t)))
    a.e("s_or_b64 vcc, vcc, %s" % sp(sTMPP))
    a.e("s_branch L_fb" if Opt.force_fb else "s_cbranch_scc1 L_fb")
    a.lab("L_fbret")
    a.e("v_mul_f32 %s, %s, %s" % (v(t + 2), v(t + 2), v(vGP)))
    for i in range(4): a.e("v_pk_mul_f32 %s, %s, %s op_sel_hi:[1,0]" % (v(vO + 2 * i, 2), v(vO + 2 * i, 2), v(t + 2, 2)))
    for i in range(4): a.e("v_cvt_pk_bf16_f32 %s, %s, %s" % (v(vP + i), v(vO + 2 * i), v(vO + 2 * i + 1)))
    for i in range(4): a.e("v_min_u32 %s, -2, %s" % (v(vP + i), v(vP + i)))
    a.e("buffer_store_dwordx4 %s, %s, %s, s%d offen sc1" % (v(vP, 4), v(vL16), srd(SWS), sOST))
    HORD = [0, 2, 4, 6, 1, 3, 5, 7] if Opt.hord else list(range(8))
    def oload(j):
        return "buffer_load_dwordx4 %s, %s, %s, s%d offen offset:%d sc1" % (
            v(vS + 4 * j, 4), v(vL16), srd(SWS), sOLD if HORD[j] < 4 else sA, (HORD[j] % 4) * 1024)
    a.oload = oload
    aw = vXA
    ar = vWA
    def addrs(a):
        a.e("v_sub_f32 %s, 1.0, %s" % (v(vGC), v(vGC)))
        a.e("v_add_u32 %s, 0x%x, %s" % (v(vQA), L_WO, v(vWDA)))
        a.e("v_and_b32 v2, 31, v0")
        a.e("v_lshrrev_b32 v3, 5, v0")
        a.e("v_and_b32 v4, 7, v0")
        a.e("v_xor_b32 v3, v3, v4")
        a.e("v_lshlrev_b32 v3, 4, v3")
        a.e("v_lshl_add_u32 v3, v2, 8, v3")
        a.e("s_and_b32 s%d, s%d, 1" % (sB, sW))
        a.e("s_lshl_b32 s%d, s%d, 15" % (sB, sB))
        a.e("s_lshr_b32 s%d, s%d, 1" % (sC, sW))
        a.e("s_lshl_b32 s%d, s%d, 13" % (sD, sC))
        a.e("s_add_u32 s%d, s%d, s%d" % (sD, sD, sB))
        a.e("v_add_u32 %s, s%d, v3" % (v(aw), sD))
        for j in range(1, 4): a.e("v_xor_b32 %s, %d, %s" % (v(aw + j), 32 * j, v(aw)))
        a.e("v_lshrrev_b32 v2, 3, v0")
        a.e("v_lshlrev_b32 v3, 1, v4")
        a.e("v_xor_b32 v3, v3, v2")
        a.e("v_lshlrev_b32 v3, 4, v3")
        a.e("v_lshl_add_u32 v3, v2, 8, v3")
        a.e("s_lshl_b32 s%d, s%d, 11" % (sD, sC))
        a.e("s_add_u32 s%d, s%d, s%d" % (sD, sD, sB))
        a.e("v_add_u32 %s, s%d, v3" % (v(ar), sD))
        a.e("v_xor_b32 %s, 16, %s" % (v(ar + 1), v(ar)))
        a.e("v_lshlrev_b32 v4, 4, v4")
        a.e("v_lshl_add_u32 %s, v2, 10, v4" % v(ar + 2))
        a.e("s_lshl_b32 s%d, s%d, 13" % (sC, sC))
        a.e("s_add_u32 s%d, s%d, s%d" % (sB, sB, sC))
        a.e("s_lshl_b32 s%d, s%d, 16" % (sC, sT))
        a.e("s_add_u32 s%d, s%d, s%d" % (sB, sB, sC))
        a.e("s_lshl_b32 s%d, s%d, 7" % (sC, sCB))
        a.e("s_add_u32 s%d, s%d, s%d" % (sCNT, sB, sC))
        a.e("s_mov_b32 s%d, 0x2000" % sB)
    a.e("s_add_u32 s%d, s%d, 0x1000" % (sA, sOLD))
    a.e("s_cmp_eq_u32 s%d, 0" % sHI)
    a.e("s_cbranch_scc1 L_tl1")
    a.e("s_setprio 1")
    a.e("s_waitcnt vmcnt(1)")
    a.lab("L_tl2")
    a.e("s_barrier")
    ol = Asm(); a.ool2 = ol.l
    ol.lab("L_tl1")
    for j in range(8): ol.e(oload(j))
    ol.e("s_waitcnt vmcnt(9)")
    ol.e("s_branch L_tl2")
    hreg = {21: vH + 0, 22: vH + 4, 23: vH + 8, 24: vH + 16, 25: vH + 20, 26: vH + 24, 27: vH + 28}
    wf = [vFR, vFR + 8, vFR + 16]
    for i in range(2):
        for r in wd_reads(wf[i], vWDA, i * 8192): a.e(r)
    fl = collect(addrs)
    put(a, fl[:8]); fl = fl[8:]
    for i in range(7):
        if i + 2 < 7:
            for r in wd_reads(wf[(i + 2) % 3], vWDA, (i + 2) * 8192): a.e(r)
        else:
            for r in wd_reads(wf[(i + 2) % 3], vQA, HORD[i - 5] * 8192): a.e(r)
        a.e("s_waitcnt lgkmcnt(8)")
        for c in range(2):
            a.e(mfma(vD + 16 * c, wf[i % 3] + 4 * c, hreg[21 + i], vD + 16 * c))
            put(a, fl[:2]); fl = fl[2:]
    put(a, fl)
    a.e("s_cmp_lg_u32 s%d, 0" % sHI)
    a.e("s_cbranch_scc1 L_tl3")
    a.e("s_nop 8")
    for i in range(32): a.e("v_mul_f32 %s, %s, %s" % (v(vD + i), v(vGC), v(vD + i)))
    if Opt.tbar == 0: a.e("s_barrier")
    a.lab("L_tl4")
    ol.lab("L_tl3")
    ol.e("s_setprio 0")
    for j in range(8):
        ol.e(oload(j))
        if j == 0: ol.e("s_nop 6")
        for i in range(4 * j, 4 * j + 4): ol.e("v_mul_f32 %s, %s, %s" % (v(vD + i), v(vGC), v(vD + i)))
    ol.e("s_barrier")
    ol.e("s_branch L_tl4")
    a.stamp(7)
    for j in range(8):
        o = vS + 4 * j
        if j + 2 < 8:
            for r in wd_reads(wf[(j + 3) % 3], vQA, HORD[j + 2] * 8192): a.e(r)
        if j == Opt.tbar and j:
            a.e("s_cmp_lg_u32 s%d, 0" % sHI)
            a.e("s_cbranch_scc1 L_ochk%d" % j)
            a.e("s_barrier")
        a.lab("L_ochk%d" % j)
        a.e("s_waitcnt vmcnt(%d)" % (7 - j))
        a.e("v_max3_u32 v2, %s, %s, %s" % (v(o), v(o + 1), v(o + 2)))
        a.e("v_max_u32 v2, v2, %s" % v(o + 3))
        a.e("v_cmp_eq_u32 vcc, -1, v2")
        a.e("s_cbranch_vccnz L_ore%d" % j)
        a.lab("L_ook%d" % j)
        a.e("s_waitcnt lgkmcnt(%d)" % (4 * min(2, 7 - j)))
        for c in range(2): a.e(mfma(vD + 16 * c, wf[(j + 1) % 3] + 4 * c, o, vD + 16 * c))
    a.stamp(8)
    a.e("s_nop 10")
    for c in range(2):
        for j in range(4):
            a.e("ds_write_b128 %s, %s offset:%d" % (v(aw + j), v(vD + 16 * c + 4 * j, 4), 128 * c))
    a.e("s_waitcnt lgkmcnt(0)")
    a.e("s_barrier")
    for p in range(4):
        for h in range(2): a.e(rd128(vS + 8 * p + 4 * h, ar + h, p * 8192))
    for p in range(1, 4):
        a.e("s_waitcnt lgkmcnt(%d)" % (6 - 2 * p))
        for i in range(4): a.e("v_pk_add_f32 %s, %s, %s" % (v(vS + 2 * i, 2), v(vS + 2 * i, 2), v(vS + 8 * p + 2 * i, 2)))
    for i in range(4): a.e("v_cvt_pk_bf16_f32 %s, %s, %s" % (v(vP + i), v(vS + 2 * i), v(vS + 2 * i + 1)))
    a.e("buffer_store_dwordx4 %s, %s, %s, s%d offen %s" % (v(vP, 4), v(ar + 2), srd(SOUT), sCNT, Opt.out_pol))
    if Opt.probe >= 0:
        a.e("s_waitcnt vmcnt(0)")
        a.stamp(9)
        if Opt.probe != 9:
            a.e("s_cmp_ge_u32 s%d, 14" % sM)
            a.e("s_cbranch_scc%d L_end" % (0 if Opt.probe_l else 1))
        a.e("s_sub_u32 s%d, s%d, s%d" % (sA, sSTAMP + 4, sSTAMP))
        a.e("s_mul_i32 s%d, s%d, %d" % (sA, sA, Opt.probe_mul - 1))
        a.e("s_min_u32 s%d, s%d, 100000" % (sA, sA))
        a.e("s_add_u32 s%d, s%d, 3800" % (sA, sA))
        if Opt.probe_w >= 0:
            a.e("s_cmp_lg_u32 s%d, %d" % (sHI, Opt.probe_w))
            a.e("s_cbranch_scc1 L_end")
        if Opt.probe_x >= 0:
            a.e("s_and_b32 s0, s2, 7")
            a.e("s_cmp_lg_u32 s0, %d" % Opt.probe_x)
            a.e("s_cbranch_scc1 L_end")
        a.lab("L_probe")
        a.e("s_memrealtime s[0:1]")
        a.e("s_waitcnt lgkmcnt(0)")
        a.e("s_sub_u32 s0, s0, s%d" % (sSTAMP + 4))
        a.e("s_cmp_lt_u32 s0, s%d" % sA)
        a.e("s_cbranch_scc1 L_probe")
    if Opt.pin == 9:
        a.e("s_waitcnt vmcnt(0)")
        a.stamp(9)
    if Opt.diag:
        a.e("s_waitcnt vmcnt(0)")
        a.stamp(9)
        a.e("s_mov_b32 s%d, s%d" % (sSTAMP + 3, sSTAMP))
        a.e("s_mov_b32 s%d, s%d" % (sSTAMP, sB))
        a.e("s_getreg_b32 s%d, hwreg(HW_REG_XCC_ID)" % (sSTAMP + 1))
        for i in range(20): a.e("v_mov_b32 %s, s%d" % (v(vS + i), sSTAMP + i))
        a.e("s_lshl_b32 s%d, s2, 3" % sA)
        a.e("s_add_u32 s%d, s%d, s%d" % (sA, sA, sW))
        a.e("s_lshl_b32 s%d, s%d, 7" % (sA, sA))
        a.e("s_add_u32 s%d, s%d, 0x%x" % (sA, sA, WS_STAMP))
        a.e("s_mov_b64 exec, 1")
        for i in range(5): a.e("buffer_store_dwordx4 %s, off, %s, s%d offset:%d" % (v(vS + 4 * i, 4), srd(SWS), sA, 16 * i))
    a.lab("L_end")
    a.e("s_endpgm")
    a.l += a.ool2
    for j in range(8):
        a.lab("L_ore%d" % j)
        a.e("s_sub_u32 s%d, s%d, 1" % (sB, sB))
        a.e("s_cbranch_scc1 L_ogive%d" % j)
        a.e("s_waitcnt vmcnt(0)")
        for i in range(j, 8): a.e(a.oload(i))
        a.e("s_branch L_ochk%d" % j)
        a.lab("L_ogive%d" % j)
        a.e("s_mov_b32 s%d, 0" % sB)
        a.e("s_branch L_ook%d" % j)

def fallback(a):
    a.lab("L_fb")
    m = vFR + 4
    a.e("v_mov_b32 %s, 0xff800000" % v(m))
    a.e("s_mov_b32 s%d, 0" % sA)
    a.lab("L_fb1")
    a.e("buffer_load_dwordx4 %s, %s, %s, s%d offen sc1" % (v(vKF, 4), v(vL16), srd(SKV), sA))
    a.e("s_waitcnt vmcnt(0)")
    a.e(mfma(vS, vKF, vQ, None))
    a.e("s_add_u32 s%d, s%d, 2048" % (sA, sA))
    a.e("s_nop 11")
    for i in range(8): a.e("v_max3_f32 %s, %s, %s, %s" % (v(m), v(m), v(vS + 2 * i), v(vS + 2 * i + 1)))
    a.e("s_cmp_lt_u32 s%d, 0x20000" % sA)
    a.e("s_cbranch_scc1 L_fb1")
    a.e("v_mov_b32 %s, %s" % (v(m + 1), v(m)))
    a.e("s_nop 1")
    a.e("v_permlane32_swap_b32 %s, %s" % (v(m), v(m + 1)))
    a.e("s_nop 1")
    a.e("v_max_f32 %s, %s, %s" % (v(m), v(m), v(m + 1)))
    for i in range(16): a.e("v_sub_f32 %s, 0, %s" % (v(vS + 16 + i), v(m)))
    for i in range(16): a.e("v_mov_b32 %s, 0" % v(vO + i))
    a.e("s_mov_b32 s%d, 0" % sA)
    a.lab("L_fb2")
    a.e("s_add_u32 s%d, s%d, 0x%x" % (sB, sA, 63 * 2048))
    a.e("s_and_b32 s%d, s%d, 0x1ffff" % (sB, sB))
    a.e("buffer_load_dwordx4 %s, %s, %s, s%d offen sc1" % (v(vKF, 4), v(vL16), srd(SKV), sB))
    a.e("s_add_u32 s%d, s%d, 2048" % (sB, sA))
    a.e("s_and_b32 s%d, s%d, 0x1ffff" % (sB, sB))
    a.e("s_mov_b64 exec, %s" % sp(sVM))
    a.e("buffer_load_dwordx4 %s, %s, %s, s%d offen offset:1024 sc1" % (v(vV, 4), v(vL16), srd(SKV), sA))
    a.e("buffer_load_dwordx4 %s, %s, %s, s%d offen offset:1280 sc1" % (v(vV + 4, 4), v(vL16), srd(SKV), sB))
    a.e("s_mov_b64 exec, -1")
    a.e("s_waitcnt vmcnt(0)")
    a.e(mfma(vS, vKF, vQ, vS + 16))
    a.e("s_add_u32 s%d, s%d, 2048" % (sA, sA))
    a.e("s_nop 11")
    for i in range(16): a.e("v_exp_f32 %s, %s" % (v(vS + i), v(vS + i)))
    for i in range(8): a.e("v_cvt_pk_bf16_f32 %s, %s, %s" % (v(vP + i), v(vS + 2 * i), v(vS + 2 * i + 1)))
    a.e("s_nop 1")
    a.e(mfma(vO, vV, vP, vO))
    a.e(mfma(vO, vV + 4, vP + 4, vO))
    a.e("s_cmp_lt_u32 s%d, 0x20000" % sA)
    a.e("s_cbranch_scc1 L_fb2")
    a.e("s_nop 11")
    a.e("v_rcp_f32 %s, %s" % (v(vFR + 2), v(vO + 8)))
    a.e("s_branch L_fbret")

def build():
    a = Asm()
    prologue(a)
    phase1_F(a)
    transition(a, "B")
    tail(a)
    a.l += a.ool
    transition(a, "A")
    phase1_L(a)
    fallback(a)
    a.lab("L_codeend")
    il = a.l.index("L_light:")
    for i, x in enumerate(a.l):
        if x.endswith(" lds") and "sc1" not in x and " nt" not in x:
            if (Opt.ntx & 4 and (srd(SWD) in x or srd(SWO) in x)) or (Opt.ntx & 8 and i > il):
                a.l[i] = x[:-4] + " nt lds"
    head = open("cdna_kernels/%s.s.ref" % NAME).read().split("\n")
    hdr = [l for l in head if l.startswith(";") and "@launch" not in l and "Override" not in l and "grid=" not in l]
    out = hdr + ["; @launch grid=(256,1,1) block=(512,1,1) lds=%d" % LDS_BYTES,
                 '.amdgcn_target "amdgcn-amd-amdhsa--gfx950"', ".text", ".globl %s_kernel" % NAME, ".p2align 8",
                 ".type %s_kernel,@function" % NAME,
                 ".set CODE_PF_MAX, L_codeend - L_nopf - 4" if Opt.code_pf else "",
                 "%s_kernel:" % NAME]
    out += ["; mapmode %d" % Opt.mapmode, "; xrot %d" % Opt.xrot]
    out += a.l
    out += ['.section .rodata,"a"', ".p2align 6", ".amdhsa_kernel %s_kernel" % NAME,
            "  .amdhsa_next_free_vgpr %d" % NV, "  .amdhsa_next_free_sgpr 102", "  .amdhsa_accum_offset 256",
            "  .amdhsa_group_segment_fixed_size 0", "  .amdhsa_kernarg_size 104", "  .amdhsa_user_sgpr_count 2",
            "  .amdhsa_user_sgpr_kernarg_segment_ptr 1", "  .amdhsa_system_sgpr_workgroup_id_x 1", ".end_amdhsa_kernel", ""]
    return "\n".join(out)

if __name__ == "__main__":
    path = sys.argv[1]
    for kv in sys.argv[2:]:
        k, val = kv.split("=")
        cur = getattr(Opt, k)
        setattr(Opt, k, val if isinstance(cur, str) else type(cur)(int(val)))
    open(path, "w").write(build())
```

```python
import sys, struct, math

NAME = "gated_mix__grouped_kv_mqa__geglu_ffn__prompt"

class Opt:
    diag = 0
    mapmode = 1
    force_fb = False
    out_pol = ""
    code_pf = True
    xrot = 0
    pregap = 0
    tch = 12
    tlb = 2
    olate = 1
    hrot = 0
    tbar = 0
    hord = 1
    cmap = 1
    kqx = 0
    oearly = 8
    conc = 1
    ghx = 1
    qa = "088888"
    qb = "577777"
    npre = 8
    stagger = 1
    rper = 2
    dma1 = 17
    kprio = 0
    dma0 = 8
    npd = 4
    kdiag = 0
    fillpre = 0
    fillper = 4
    gsc = 2
    sched = 0
    xmask = 1
    ntx = 0
    touch = 2
    rotg = 0
    rotm = 0
    startbar = 1
    pvz = 1
    pin = -1
    pin_ns = 60000
    probe = -1
    probe_x = -1
    probe_mul = 10
    probe_w = -1
    probe_l = 0

def f2u(x): return struct.unpack("<I", struct.pack("<f", x))[0]

WS_KV = 0
WS_G = 128 * 1024
WS_HFLAG = 192 * 1024
WS_OF = 1 << 20
WS_HF = 4 << 20
WS_STAMP = 12 << 20
WS_SIZE = 16 << 20
K1 = 1024
L_G, L_U, L_X, L_WQ = 0, 48 * K1, 96 * K1, 144 * K1
L_QX = 32 * K1
L_WD, L_WO, L_KV = 0, 64 * K1, 128 * K1
LL_X, LL_W, LL_GATE, LL_WQ = 0, 128 * K1, 144 * K1, 128 * K1
LDS_BYTES = 160 * K1

SX, SWG, SWU, SWQ, SWS, SWD, SWO, SOUT, SDBG, SWKV, SGATE, SKV = 4, 8, 12, 16, 20, 24, 28, 32, 36, 40, 44, 64
SWV = 72
sTMPP = 48
sW, sHI, sLO, sG, sM, sT, sCB = 50, 51, 52, 53, 54, 55, 56
sWK = 57
sWH = 58
sK64 = 59
sVM = 60
sRET = 62
sA, sB, sC, sD = 68, 69, 70, 71
sOFFW, sOFFQ, sCH, sXP = 72, 73, 74, 75
sHOFF, sWDOFF, sKVOFF, sM0WD, sM0KV, sCNT = 72, 73, 74, 75, 76, 77
sOST, sOLD, sHST = 78, 79, 80
sHST2 = 3
sRX, sRW, sM0B = 40, 41, 42
sKQ = 76
sHP = sM
sFREE = 81
sSTAMP = 82

def srd(b): return "s[%d:%d]" % (b, b + 3)
def sp(b): return "s[%d:%d]" % (b, b + 1)
def v(b, n=1): return "v%d" % b if n == 1 else "v[%d:%d]" % (b, b + n - 1)

vL16 = 1
vT0, vT1, vT2, vT3 = 2, 3, 4, 5
vGP, vGC = 6, 7
vKVA = 8
vWDA = 9
vWDV = 10
vONE = 11
vZERO = 12
vFLA = 13
vPOLL = 14
vGA = 15
vQ = 16
vK0 = 20
vV1L = 24
vE = 28
vP = 32
vV = 40
vO = 56
vD = 72
vACC = 104
vS = 104
vH = 136
vAQ = vP
vF1 = 168
vKF = 168
vWF = 176
vFR = 184
vLX = 224
vXA = 240
vWA = 244
vQA = 248
vDX, vDG, vDQ = 249, 250, 251
vC0 = 252
vTID = 255
vHA = 254
NV = 256

class Asm:
    def __init__(self):
        self.l = []
        self.vm = []
        self.nstamp = 0
    def e(self, s):
        for x in s.split("\n"):
            x = x.strip()
            if x: self.l.append("    " + x)
    def lab(self, s): self.l.append(s + ":")
    def vmop(self, s, tag):
        self.e(s); self.vm.append(tag)
    def vmn(self, tags):
        if isinstance(tags, str): tags = [tags]
        last = -1
        for i, t in enumerate(self.vm):
            if t in tags: last = i
        return None if last < 0 else len(self.vm) - 1 - last
    def waitvm(self, tags, lgkm=False):
        n = self.vmn(tags)
        if n is None:
            if lgkm: self.e("s_waitcnt lgkmcnt(0)")
            return
        assert n < 64
        self.e("s_waitcnt vmcnt(%d)%s" % (n, " lgkmcnt(0)" if lgkm else ""))
        self.vm = self.vm[len(self.vm) - n:] if n else []
    def wait0(self, lgkm=False):
        self.e("s_waitcnt vmcnt(0)%s" % (" lgkmcnt(0)" if lgkm else "")); self.vm = []
    def stamp(self, i, real=False):
        if Opt.probe == i:
            self.e("s_waitcnt lgkmcnt(0)")
            self.e("s_memrealtime %s" % sp(sSTAMP + 4))
            self.e("s_waitcnt lgkmcnt(0)")
        if Opt.pin == i:
            self.nstamp += 1
            self.e("s_waitcnt lgkmcnt(0)")
            self.e("s_cselect_b32 s%d, 1, 0" % (sSTAMP + 5))
            self.lab("L_pin%d" % self.nstamp)
            self.e("s_memrealtime s[0:1]")
            self.e("s_waitcnt lgkmcnt(0)")
            self.e("s_sub_u32 s0, s0, s%d" % sSTAMP)
            self.e("s_cmp_lt_u32 s0, %d" % (Opt.pin_ns // 10))
            self.e("s_cbranch_scc1 L_pin%d" % self.nstamp)
            self.e("s_cmp_lg_u32 s%d, 0" % (sSTAMP + 5))
        if Opt.diag and not Opt.kdiag and (Opt.diag == 1 or i == 9):
            self.e("s_waitcnt lgkmcnt(0)")
            self.e("s_memtime %s" % sp(sSTAMP + 2 * i))
            self.e("s_memrealtime %s" % sp(sRET))
            self.e("s_waitcnt lgkmcnt(0)")
            self.e("s_mov_b32 s%d, s%d" % (sSTAMP + 2 * i + 1, sRET))

def astamp(a, i):
    if Opt.diag and Opt.kdiag == 2: a.e("s_memtime %s" % sp(sSTAMP + 2 * i))

def kstamp(a, i):
    if Opt.probe == 18 + i: a.e("s_memrealtime %s" % sp(sSTAMP + 4))
    if Opt.diag and Opt.kdiag == 1: a.e("s_memtime %s" % sp(sSTAMP + 2 * i))

def mfma(d, a, b, c):
    return "v_mfma_f32_32x32x16_bf16 %s, %s, %s, %s" % (v(d, 16), v(a, 4), v(b, 4), "0" if c is None else v(c, 16))
def mfma16(d, a, b, c):
    return "v_mfma_f32_16x16x32_bf16 %s, %s, %s, %s" % (v(d, 4), v(a, 4), v(b, 4), "0" if c is None else v(c, 4))
def rd128(d, a, off):
    assert 0 <= off < 65536
    return "ds_read_b128 %s, %s offset:%d" % (v(d, 4), v(a), off)
def rdtr(d, a, off):
    assert 0 <= off < 65536
    return "ds_read_b64_tr_b16 %s, %s offset:%d" % (v(d, 2), v(a), off)

def interleave(mf, fill, per=2):
    out = []
    fill = list(fill)
    for i, m in enumerate(mf):
        out.append(m)
        if i < len(mf) - 1:
            out += fill[:per]; fill = fill[per:]
    return out + fill

def srd_words(a, regs):
    sizes = {SX: 2048 * 1024, SWG: 512 * 3584, SWU: 512 * 3584, SWQ: 512 * 1024, SWS: WS_SIZE, SWKV: 16384, SWV: 16384,
             SGATE: 1024, SWD: 1792 * 1024, SWO: 512 * 1024, SOUT: 2048 * 1024, SDBG: 256, SKV: 128 * 1024}
    for reg in regs:
        a.e("s_mov_b32 s%d, 0x%x" % (reg + 2, sizes[reg]))
        a.e("s_mov_b32 s%d, 0x20000" % (reg + 3))

def ptr_loads(a, lst):
    for reg, off in lst: a.e("s_load_dwordx2 %s, s[0:1], %d" % (sp(reg), off))

def prologue(a):
    if Opt.diag or Opt.pin >= 0 or Opt.probe >= 0:
        a.e("s_memrealtime %s" % sp(sSTAMP))
        if Opt.diag: a.e("s_memtime %s" % sp(sSTAMP + 2))
    ptr_loads(a, ((SX, 0), (SWG, 48), (SWU, 56), (SWQ, 8), (SGATE, 72)))
    if Opt.probe == 1: a.stamp(1)
    a.e("v_lshrrev_b32 v2, 6, v0")
    if Opt.code_pf:
        a.e("s_getpc_b64 %s" % sp(sRET))
        a.lab("L_nopf")
        a.e("s_and_b32 s%d, s2, -8" % sA)
        a.e("v_add_lshl_u32 v3, v2, s%d, 7" % sA)
        a.e("v_readfirstlane_b32 s%d, v2" % sW)
        a.e("v_min_u32 v3, CODE_PF_MAX, v3")
        a.e("global_load_dword %s, v3, %s" % (v(vPOLL), sp(sRET)))
    else:
        a.e("s_nop 0")
        a.e("v_readfirstlane_b32 s%d, v2" % sW)
    a.e("s_cmpk_ge_u32 s2, 256")
    a.e("s_cbranch_scc1 L_end")
    a.e("s_and_b32 s%d, s2, 1" % sD)
    a.e("s_bfe_u32 s%d, s2, 0x30003" % sA)
    a.e("s_lshl3_add_u32 s%d, s%d, s%d" % (sG, sD, sA))
    a.e("s_bfe_u32 s%d, s2, 0x20001" % sA)
    a.e("s_lshr_b32 s%d, s2, 6" % sB)
    a.e("s_lshl2_add_u32 s%d, s%d, s%d" % (sM, sA, sB))
    a.e("s_lshl_b32 s%d, s%d, 10" % (sWK, sW))
    a.e("s_cmp_ge_u32 s%d, 14" % sM)
    a.e("s_cbranch_scc1 L_light")

def xvoff(a, t):
    a.e("v_lshrrev_b32 v2, 4, %s" % v(t))
    a.e("v_xor_b32 v2, v2, %s" % v(t))
    a.e("v_and_b32 v2, 7, v2")
    a.e("s_lshl_b32 s%d, s%d, 17" % (sA, sG))
    a.e("v_lshl_add_u32 v2, v2, 4, s%d" % sA)
    a.e("v_lshrrev_b32 v3, 3, %s" % v(t))
    a.e("v_lshl_add_u32 %s, v3, 10, v2" % v(vDX))

def setup_ids(a):
    ptr_loads(a, ((SWS, 96), (SKV, 96), (SDBG, 88), (SWD, 64), (SWO, 32), (SOUT, 80)))
    a.e("v_and_b32 v0, 63, v0")
    a.e("v_lshlrev_b32 %s, 4, v0" % v(vL16))
    a.e("s_andn2_b32 s%d, 1, s2" % sA)
    a.e("s_bfe_u32 s%d, s2, 0x20001" % sB)
    a.e("s_lshl2_add_u32 s%d, s%d, s%d" % (sA, sA, sB))
    a.e("s_bfe_u32 s%d, s2, 0x20003" % sB)
    a.e("s_lshl2_add_u32 s%d, s%d, s%d" % (sT, sA, sB))
    a.e("s_lshr_b32 s%d, s2, 5" % sCB)

def setup_rd(a):
    a.e("s_lshr_b32 s%d, s%d, 2" % (sHI, sW))
    a.e("s_and_b32 s%d, s%d, 3" % (sLO, sW))
    a.e("v_and_b32 v2, 15, v0")
    a.e("v_lshrrev_b32 v3, 4, v0")
    a.e("v_bfe_u32 v4, v0, 1, 3")
    a.e("v_xor_b32 v4, v4, v3")
    a.e("v_lshlrev_b32 v4, 4, v4")
    a.e("v_lshl_add_u32 %s, v2, 7, v4" % v(vXA))
    a.e("v_bfe_u32 v2, v0, 2, 2")
    a.e("v_and_b32 v4, 3, v0")
    a.e("v_lshl_add_u32 %s, v3, 3, v2" % v(vQA))
    a.e("v_lshlrev_b32 %s, 6, %s" % (v(vQA), v(vQA)))
    a.e("v_xor_b32 v5, s%d, v3" % sHI)
    a.e("v_and_b32 v5, 1, v5")
    a.e("v_lshl_add_u32 %s, v5, 5, %s" % (v(vQA), v(vQA)))
    a.e("v_lshl_add_u32 %s, v4, 3, %s" % (v(vQA), v(vQA)))

def setup_oclr(a):
    srd_words(a, [SWS, SKV, SDBG])
    a.e("s_mov_b32 s%d, 0xffff" % sVM)
    a.e("s_mov_b32 s%d, 0xffff" % (sVM + 1))
    a.e("s_lshl_b32 s%d, s%d, 2" % (sA, sG))
    a.e("s_add_u32 s%d, s%d, s%d" % (sA, sA, sLO))
    a.e("s_lshl_b32 s%d, s%d, 5" % (sB, sA))
    a.e("s_lshl_b32 s%d, s%d, 1" % (sC, sHP))
    a.e("s_add_u32 s%d, s%d, s%d" % (sB, sB, sC))
    a.e("s_add_u32 s%d, s%d, s%d" % (sB, sB, sHI))
    a.e("s_lshl_b32 s%d, s%d, 10" % (sB, sB))
    a.e("s_add_u32 s%d, s%d, 0x%x" % (sOST, sB, WS_OF))
    for i in range(4): a.e("v_mov_b32 %s, -1" % v(vQ + i))
    a.vmop("buffer_store_dwordx4 %s, %s, %s, s%d offen sc1" % (v(vQ, 4), v(vL16), srd(SWS), sOST), "oclr")
    a.e("v_mov_b32 %s, 1" % v(vONE))
    a.e("v_mov_b32 %s, 0" % v(vZERO))
    a.e("v_and_b32 %s, 31, v0" % v(vGA))
    a.e("v_lshlrev_b32 %s, 2, %s" % (v(vGA), v(vGA)))

def collect(fn):
    t = Asm(); t.marks = {}
    def vmop(s_, tag):
        t.e(s_); t.marks[len(t.l) - 1] = tag
    t.vmop = vmop
    fn(t)
    return [(x, t.marks.get(i)) for i, x in enumerate(t.l)]
def put(a, items):
    for x, tag in items:
        if tag: a.vmop(x, tag)
        else: a.e(x)

def setup_attn(a):
    srd_words(a, [SWD, SWO, SOUT])
    a.e("s_lshl_b32 s%d, s%d, 2" % (sA, sG))
    a.e("s_add_u32 s%d, s%d, s%d" % (sA, sA, sLO))
    a.e("s_mul_i32 s%d, s%d, 112" % (sB, sA))
    a.e("s_lshl_b32 s%d, s%d, 3" % (sC, sM))
    a.e("s_add_u32 s%d, s%d, s%d" % (sB, sB, sC))
    a.e("s_lshl_b32 s%d, s%d, 2" % (sC, sHI))
    a.e("s_add_u32 s%d, s%d, s%d" % (sB, sB, sC))
    a.e("s_and_b32 s%d, s%d, 1" % (sC, sLO))
    a.e("s_lshl_b32 s%d, s%d, 1" % (sC, sC))
    a.e("s_add_u32 s%d, s%d, s%d" % (sB, sB, sC))
    a.e("s_lshl_b32 s%d, s%d, 10" % (sB, sB))
    a.e("s_add_u32 s%d, s%d, 0x%x" % (sHST, sB, WS_HF))
    a.e("s_mul_i32 s%d, s%d, %d" % (sC, sC, 112 * 1024))
    a.e("s_sub_u32 s%d, %d, s%d" % (sC, 112 * 1024, sC))
    a.e("s_add_u32 s%d, s%d, s%d" % (sHST2, sHST, sC))
    a.e("v_bfe_u32 v2, v0, 2, 2")
    a.e("v_lshrrev_b32 v3, 5, v0")
    a.e("v_lshl_add_u32 v2, v3, 2, v2")
    a.e("v_lshlrev_b32 v2, 6, v2")
    a.e("v_bfe_u32 v3, v0, 4, 1")
    a.e("v_lshl_add_u32 v2, v3, 5, v2")
    a.e("v_and_b32 v3, 3, v0")
    a.e("v_lshl_add_u32 v2, v3, 3, v2")
    a.e("s_lshr_b32 s%d, s%d, 1" % (sA, sW))
    a.e("s_lshl_b32 s%d, s%d, 11" % (sA, sA))
    a.e("v_add_u32 %s, s%d, v2" % (v(vWDA), sA))
    a.e("v_add_u32 %s, 0x%x, %s" % (v(vKVA), L_KV, v(vL16)))
    a.e("v_bfe_u32 v2, v0, 2, 3")
    a.e("v_lshlrev_b32 v2, 10, v2")
    a.e("v_lshrrev_b32 v3, 5, v0")
    a.e("v_lshl_add_u32 v2, v3, 6, v2")
    a.e("v_and_b32 v3, 3, v0")
    a.e("v_lshl_add_u32 v2, v3, 4, v2")
    a.e("s_lshl_b32 s%d, s%d, 7" % (sB, sCB))
    a.e("v_add_u32 %s, s%d, v2" % (v(vWDV), sB))
    a.e("v_min_u32 v2, 13, v0")
    a.e("v_lshlrev_b32 v2, 7, v2")
    a.e("s_lshr_b32 s%d, s%d, 1" % (sA, sT))
    a.e("s_lshl_b32 s%d, s%d, 11" % (sA, sA))
    a.e("s_add_u32 s%d, s%d, 0x%x" % (sA, sA, WS_HFLAG))
    a.e("v_add_u32 %s, s%d, v2" % (v(vFLA), sA))
    a.e("s_lshl_b32 s%d, s%d, 1" % (sA, sT))
    a.e("s_and_b32 s%d, s%d, 1" % (sB, sW))
    a.e("s_add_u32 s%d, s%d, s%d" % (sA, sA, sB))
    a.e("s_lshl_b32 s%d, s%d, 15" % (sB, sA))
    a.e("s_lshr_b32 s%d, s%d, 1" % (sKQ, sW))
    if Opt.kqx:
        a.e("s_lshl_b32 s%d, s%d, 1" % (sC, sCB))
        a.e("s_and_b32 s%d, s%d, 2" % (sC, sC))
        a.e("s_xor_b32 s%d, s%d, s%d" % (sKQ, sKQ, sC))
    a.e("s_lshl_b32 s%d, s%d, 13" % (sC, sKQ))
    a.e("s_add_u32 s%d, s%d, s%d" % (sB, sB, sC))
    a.e("s_add_u32 s%d, s%d, 0x%x" % (sOLD, sB, WS_OF))
    if Opt.pvz:
        a.e("s_mov_b32 s%d, 0x110000" % sA)
        a.e("s_mov_b32 s%d, 0x110000" % sB)
        a.e("v_mov_b32 v3, 0x3f803f80")
        a.e("v_cndmask_b32 v2, 0, v3, %s" % sp(sA))
    else:
        a.e("v_mov_b32 v2, 0x3f803f80")
    for i in range(16): a.e("v_mov_b32 %s, v2" % v(vV + i))
    for i in range(4): a.e("v_mov_b32 %s, v2" % v(vV1L + i))
    for i in range(4): a.e("v_mov_b32 %s, 0" % v(vE + i))
    a.e("v_lshrrev_b32 v2, 4, v0")
    a.e("v_lshl_add_u32 %s, v2, 8, %s" % (v(vHA), v(vL16)))
    for i in range(16): a.e("v_mov_b32 %s, 0" % v(vO + i))
    for i in range(32): a.e("v_mov_b32 %s, 0" % v(vD + i))
    c0 = -2.0 * math.sqrt(2.0 / math.pi) * math.log2(math.e)
    a.e("v_mov_b32 %s, 0x%x" % (v(vC0), f2u(c0)))
    a.e("v_mov_b32 %s, 0x%x" % (v(vC0 + 1), f2u(c0 * 0.044715)))

def kv_first_loads(a, quartet=False):
    it = []
    for o in (range(0, 16384, 4096) if quartet else range(0, 16384, 8192)):
        b = sWH if quartet else sWK
        it.append(("s_add_u32 m0, s%d, 0x%x\ns_add_u32 s%d, s%d, 0x%x\nbuffer_load_dwordx4 %s, %s, s%d offen sc1 lds"
                   % (b, L_KV + o, sA, b, o, v(vL16), srd(SKV), sA), "kv%d" % (o >> 13)))
    it.append(("s_mov_b32 s%d, 0x%x\nbuffer_load_dwordx4 %s, %s, %s, s%d offen sc1"
               % (sA, 63 * 2048, v(vK0, 4), v(vL16), srd(SKV), sA), "k0"))
    it.append(("s_mov_b64 exec, %s\nbuffer_load_dwordx4 %s, %s, %s, 0 offen offset:%d sc1\ns_mov_b64 exec, -1"
               % (sp(sVM), v(vV1L, 4), v(vL16), srd(SKV), 1024 + 256), "k0"))
    it.append(("s_lshl_b32 s%d, s%d, 2\ns_add_u32 s%d, s%d, s%d\ns_lshl_b32 s%d, s%d, 7\ns_add_u32 s%d, s%d, 0x%x\n"
               "buffer_load_dword %s, %s, %s, s%d offen sc1"
               % (sA, sG, sA, sA, sLO, sA, sA, sA, sA, WS_G, v(vGP), v(vGA), srd(SWS), sA), "k0"))
    it.append(("s_lshl_b32 s%d, s%d, 1\ns_and_b32 s%d, s%d, 1\ns_add_u32 s%d, s%d, s%d\ns_lshl_b32 s%d, s%d, 7\ns_add_u32 s%d, s%d, 0x%x\n"
               "buffer_load_dword %s, %s, %s, s%d offen sc1"
               % (sA, sT, sB, sW, sA, sA, sB, sA, sA, sA, sA, WS_G, v(vGC), v(vGA), srd(SWS), sA), "k0"))
    return it

def spin_counter(a, name, first_loaded, wave=0):
    a.e("s_cmp_lg_u32 s%d, %d" % (sW, wave))
    a.e("s_cbranch_scc1 L_%s_done" % name)
    a.e("s_mov_b32 s%d, 0x4000" % sB)
    if first_loaded: a.e("s_branch L_%s_chk" % name)
    a.lab("L_%s_re" % name)
    a.e("buffer_load_dword %s, off, %s, 0 sc1" % (v(vPOLL), srd(SDBG)))
    a.e("s_waitcnt vmcnt(0)")
    a.lab("L_%s_chk" % name)
    a.e("v_readfirstlane_b32 s%d, %s" % (sA, v(vPOLL)))
    a.e("s_cmp_ge_u32 s%d, 32" % sA)
    a.e("s_cbranch_scc1 L_%s_done" % name)
    a.e("s_sleep 4")
    a.e("s_sub_u32 s%d, s%d, 1" % (sB, sB))
    a.e("s_cmp_lg_u32 s%d, 0" % sB)
    a.e("s_cbranch_scc1 L_%s_re" % name)
    a.lab("L_%s_done" % name)

def phase1_F(a):
    SCHED = {1: ["01423567", "10253467", "23016457", "32104756"],
             2: ["02134657", "01324576", "10243567", "10235467"],
             3: ["01324657", "01243576", "12035467", "20134567"],
             5: ["01243567", "10325467", "23014657", "32104576"],
             4: ["02143657", "10325476", "02143657", "10325476"]}
    tabs = SCHED[Opt.sched] if Opt.sched else ["".join(str(c ^ (p & Opt.xmask)) for c in range(8)) for p in range(4)]
    for t_ in tabs: assert sorted(t_) == list("01234567")
    num = [int(t_[::-1], 16) for t_ in tabs]
    def table(a):
        a.e("s_add_u32 s%d, s%d, s%d" % (sA, sG, sHP))
        a.e("s_mov_b32 s%d, 0x%x" % (sXP, num[0]))
        a.e("s_mov_b32 s%d, 0x%x" % (sB, num[2]))
        a.e("s_bitcmp1_b32 s%d, 0" % sA)
        a.e("s_cselect_b32 s%d, 0x%x, s%d" % (sXP, num[1], sXP))
        a.e("s_cselect_b32 s%d, 0x%x, s%d" % (sB, num[3], sB))
        a.e("s_bitcmp1_b32 s%d, 1" % sA)
        a.e("s_cselect_b32 s%d, s%d, s%d" % (sXP, sB, sXP))
        if Opt.ghx:
            a.e("s_bitcmp1_b32 s%d, 3" % sG)
            a.e("s_cselect_b32 s%d, 0x44444444, 0" % sB)
            a.e("s_xor_b32 s%d, s%d, s%d" % (sXP, sXP, sB))
    fo, fw = {"0000": (0, 0), "0101": (0, 1), "0011": (1, 1), "0123": (0, 2)}["".join(t_[0] for t_ in tabs)]
    a.e("s_add_u32 s%d, s%d, s%d" % (sA, sG, sHP))
    a.e("s_bfe_u32 s%d, s%d, 0x%x" % (sCH, sA, fw << 16 | fo))
    if Opt.ghx: a.e("s_lshl2_add_u32 s%d, s%d, s%d" % (sCH, sD, sCH))
    a.e("s_and_b32 s%d, s%d, 0xc00" % (sWH, sWK))
    a.e("v_and_b32 %s, 0xff, v0" % v(vTID))

    def wvoff(a):
        a.e("v_lshrrev_b32 v2, 4, %s" % v(vTID))
        a.e("v_lshrrev_b32 v3, 5, %s" % v(vTID))
        a.e("v_bfi_b32 v3, 3, v2, v3")
        a.e("v_lshlrev_b32 v3, 1, v3")
        a.e("v_xor_b32 v3, v3, %s" % v(vTID))
        a.e("v_and_b32 v3, 15, v3")
        a.e("s_lshl_b32 s%d, s%d, 8" % (sA, sM))
        a.e("v_lshl_add_u32 v3, v3, 4, s%d" % sA)
        a.e("v_mul_u32_u24 v2, 3584, v2")
        a.e("v_add_u32 %s, v2, v3" % v(vDG))
    def qvoff(a):
        a.e("v_lshrrev_b32 v2, 4, %s" % v(vTID))
        a.e("v_and_b32 v2, 2, v2")
        a.e("v_xor_b32 v2, v2, %s" % v(vTID))
        a.e("v_and_b32 v2, 3, v2")
        a.e("s_lshl_b32 s%d, s%d, 6" % (sA, sHP))
        a.e("v_lshl_add_u32 v2, v2, 4, s%d" % sA)
        a.e("v_lshrrev_b32 v3, 2, %s" % v(vTID))
        a.e("v_lshl_add_u32 %s, v3, 10, v2" % v(vDQ))
    def wsrd(a):
        srd_words(a, [SWG])
        a.e("s_mov_b64 %s, %s" % (sp(SWU + 2), sp(SWG + 2)))

    if Opt.hrot:
        ORDER = [("q", 0)] + [(t_, 2 * h_ + j) for h_ in range(2) for t_, j in (("x", 0), ("x", 1), ("g", 0), ("u", 0), ("g", 1), ("u", 1))]
    else:
        ORDER = [("q", 0)] + [("x", j) for j in range(4)] + [(t_, j) for j in range(4) for t_ in "gu"]
    def block(items):
        out = []; lastc = None; lastw = None
        for c, kind, j in items:
            s = c % 3; pre = []
            if c != lastc:
                if c: pre.append("s_bfe_u32 s%d, s%d, 0x%x" % (sCH, sXP, 0x30000 + 4 * c))
                lastc = c; lastw = None
            fam = "w" if kind in "gu" else kind
            rot = Opt.hrot and fam != "q"
            if lastw is None or lastw[0] != fam or (rot and lastw[1] >> 1 != j >> 1):
                pre.append({"q": "s_lshl_b32 s%d, s%d, 16" % (sOFFW, sCH), "x": "s_lshl_b32 s%d, s%d, 7" % (sOFFW, sCH),
                            "w": "s_mul_i32 s%d, s%d, %d" % (sOFFW, sCH, 64 * 3584)}[fam])
                if rot: pre.append("s_%s_u32 s%d, s%d, s%d" % ("sub" if j >> 1 else "add", sOFFW, sOFFW, sRX if fam == "x" else sRW))
                lastw = (fam, 0)
            if lastw[1] != j:
                pre.append("s_add_u32 s%d, s%d, 0x%x" % (sOFFW, sOFFW, (j - lastw[1]) * (0x8000 if fam == "x" else 16 * 3584)))
                lastw = (fam, j)
            m0c, vo, rs = {"q": (L_WQ + s * 4096, vDQ, SWQ), "x": (L_X + s * 16384 + j * 4096, vDX, SX),
                           "g": (L_G + s * 16384 + j * 4096, vDG, SWG), "u": (L_U + s * 16384 + j * 4096, vDG, SWU)}[kind]
            nt = " nt" if Opt.ntx & (1 if rs == SX else 2) else ""
            out.append(("s_add_u32 m0, s%d, 0x%x\n%s\nbuffer_load_dwordx4 %s, %s, s%d offen%s lds"
                        % ((sM0B + (j >> 1)) if rot else sWH, m0c, "\n".join(pre) or "s_nop 0", v(vo), srd(rs), sOFFW, nt), "c%d" % c))
        return out
    def part(c, role): return [(c, k_, j) for k_, j in ORDER if (k_ in "gu") == (role == "A")]

    def rdsetup(a):
        setup_rd(a)
        a.e("v_lshl_add_u32 %s, v3, 3, v2" % v(vWA))
        a.e("v_lshlrev_b32 %s, 8, %s" % (v(vWA), v(vWA)))
        a.e("v_lshl_add_u32 %s, v4, 3, %s" % (v(vWA), v(vWA)))
        a.e("v_and_b32 v5, 1, v3")
        a.e("v_lshl_add_u32 v2, v5, 2, v2")
        a.e("s_lshl_b32 s%d, s%d, 2" % (sA, sHI))
        a.e("s_and_b32 s%d, s%d, 1" % (sB, sLO))
        a.e("s_lshl_b32 s%d, s%d, 1" % (sB, sB))
        a.e("s_add_u32 s%d, s%d, s%d" % (sA, sA, sB))
        a.e("v_xor_b32 v2, s%d, v2" % sA)
        a.e("v_lshl_add_u32 %s, v2, 5, %s" % (v(vWA), v(vWA)))
        a.e("v_xor_b32 %s, 32, %s" % (v(vWA + 1), v(vWA)))
        a.e("v_add_u32 %s, 0x%x, %s" % (v(vWA + 2), L_U - L_G, v(vWA)))
        a.e("v_add_u32 %s, 0x%x, %s" % (v(vWA + 3), L_U - L_G, v(vWA + 1)))
        a.e("s_lshl_b32 s%d, s%d, 12" % (sA, sLO))
        a.e("s_add_u32 s%d, s%d, 0x%x" % (sA, sA, L_X))
        a.e("v_add_u32 %s, s%d, %s" % (v(vXA), sA, v(vXA)))
        a.e("v_xor_b32 %s, 0x1000, %s" % (v(vXA + 1), v(vXA)))
        a.e("v_xor_b32 %s, 64, %s" % (v(vXA + 2), v(vXA)))
        a.e("v_xor_b32 %s, 64, %s" % (v(vXA + 3), v(vXA + 1)))
        a.e("v_add_u32 %s, 0x%x, %s" % (v(vQA), L_WQ, v(vQA)))

    a.e("s_cmp_ge_u32 s%d, 4" % sW)
    a.e("s_cbranch_scc1 L_setB")
    late = collect(setup_oclr) + collect(setup_attn)
    words = collect(lambda t: srd_words(t, [SWS, SKV, SDBG, SWD, SWO, SOUT]))
    late = [x for x in late if x not in words]
    oclr = [x for x in late if x[1] == "oclr"]
    if Opt.olate: late = [x for x in late if x[1] != "oclr"]
    else: oclr = []
    words += [("v_mov_b32 %s, 0" % v(r_), None) for r_ in (vGA, vWDV, vFLA, vHA)]
    st = collect(rdsetup) + words + late[:Opt.fillpre]
    fills = {"A": late[Opt.fillpre:], "B": late[Opt.fillpre:]}
    vms = {}
    wsrd(a); wvoff(a)
    a.e("s_waitcnt lgkmcnt(0)")
    a.stamp(2)
    put(a, block(part(0, "A")))
    a.e("s_branch L_setA")
    vms["A"] = a.vm; a.vm = []
    a.lab("L_setB")
    srd_words(a, [SX]); xvoff(a, vTID)
    a.e("s_waitcnt lgkmcnt(0)")
    a.stamp(2)
    put(a, block(part(0, "B")[1:]))
    srd_words(a, [SWQ]); qvoff(a)
    put(a, block(part(0, "B")[:1]))
    vms["B"] = a.vm
    for role in "BA":
        a.vm = vms[role]
        if role == "A": a.lab("L_setA")
        table(a)
        setup_ids(a)
        if role == "A": srd_words(a, [SX, SWQ])
        else: wsrd(a)
        tm = sum(0xff << (8 * i) for i in range(4) if Opt.tch >> i & 1)
        setex = "s_bitcmp1_b32 s%d, 3\ns_cselect_b32 exec_lo, 0, 0x%x\ns_cselect_b32 exec_hi, 0x%x, 0" % (sG, tm, tm) if Opt.ghx \
                else "s_mov_b32 exec_lo, 0x%x\ns_mov_b32 exec_hi, 0" % tm
        if Opt.tlb & 2 and role == "B":
            a.e("s_and_b32 s%d, s%d, 7" % (sA, sG))
            a.e("v_lshl_add_u32 v2, v0, 3, s%d" % sA)
            a.e("v_mul_u32_u24 v3, 3584, v2")
            a.e("s_and_b32 s%d, s%d, 1" % (sB, sW))
            a.e("s_lshl1_add_u32 s%d, s%d, s%d" % (sA, sM, sB))
            a.e("s_lshl_b32 s%d, s%d, 7" % (sA, sA))
            a.e(setex)
            a.e("s_cmp_ge_u32 s%d, 6" % sW)
            a.e("s_cbranch_scc1 L_tlbu")
            a.e("buffer_load_dword %s, v3, %s, s%d offen" % (v(vPOLL), srd(SWG), sA))
            a.e("s_branch L_tlbe")
            a.lab("L_tlbu")
            a.e("buffer_load_dword %s, v3, %s, s%d offen" % (v(vPOLL), srd(SWU), sA))
            a.lab("L_tlbe")
            a.e("s_mov_b64 exec, -1")
            a.vm.append("tlb")
        if Opt.tlb & 12 and role == "A":
            a.e("s_cmp_lg_u32 s%d, 0" % sW)
            a.e("s_cbranch_scc1 L_tlbx")
            a.e("s_and_b32 s%d, s%d, 7" % (sA, sG))
            a.e("v_lshl_add_u32 v2, v0, 3, s%d" % sA)
            a.e("v_lshlrev_b32 v3, 10, v2")
            a.e("s_lshl_b32 s%d, s%d, 6" % (sA, sHP))
            a.e(setex if Opt.tlb & 4 else "s_mov_b64 exec, 1")
            a.e("buffer_load_dword %s, v3, %s, s%d offen" % (v(vPOLL), srd(SWQ), sA))
            a.e("s_branch L_tlby")
            a.lab("L_tlbx")
            a.e("s_and_b32 s%d, s%d, 3" % (sA, sM))
            a.e("s_lshl2_add_u32 s%d, s%d, s%d" % (sA, sG, sA))
            a.e("s_lshl_b32 s%d, s%d, 15" % (sA, sA))
            a.e("v_lshl_add_u32 v3, v0, 10, s%d" % sA)
            a.e("s_lshr_b32 s%d, s%d, 3" % (sA, sG))
            a.e("s_lshl2_add_u32 s%d, s%d, s%d" % (sA, sA, sW) if Opt.ghx else "s_mov_b32 s%d, s%d" % (sA, sW))
            a.e("s_lshl_b32 s%d, s%d, 7" % (sA, sA))
            a.e("s_bitcmp1_b32 %d, s%d" % (Opt.tch if Opt.tlb & 8 else 0, sW))
            a.e("s_cselect_b32 exec_lo, -1, 1")
            a.e("s_mov_b32 exec_hi, 0")
            a.e("buffer_load_dword %s, v3, %s, s%d offen" % (v(vPOLL), srd(SX), sA))
            a.lab("L_tlby")
            a.e("s_mov_b64 exec, -1")
            a.vm.append("tlb")
        if Opt.startbar: a.e("s_barrier")
        npre = min(Opt.npre, 8) if role == "A" else 5
        pn = block(part(1, role)[:npre])
        rest = st + (collect(qvoff) + collect(lambda t: xvoff(t, vTID)) if role == "A" else collect(wvoff))
        gap = len(rest) // (npre + Opt.pregap) + 1
        for i in range(npre):
            put(a, pn[:1]); pn = pn[1:]
            put(a, rest[:gap]); rest = rest[gap:]
        put(a, rest)
        a.e("s_mov_b64 vcc, %d" % (-1 if role == "A" else 0))
        if role == "A":
            a.waitvm("c0", lgkm=True)
        else:
            a.e("s_setprio 1")
            a.waitvm("c0", lgkm=True)
            a.e("s_branch L_k0")
        vms[role] = a.vm
    stream = part(1, "A")[min(Opt.npre, 8):] + [(c, k_, j) for c in range(2, 8) for k_, j in ORDER]
    qa = [int(x, 16) for x in Opt.qa]; qb = [int(x, 16) for x in Opt.qb]
    def take(n, cmax):
        m = 0
        while m < n and m < len(stream) and stream[m][0] <= cmax: m += 1
        r_ = stream[:m]; del stream[:m]
        return block(r_)
    a.lab("L_k0")
    a.vm = vms["A"]
    ool = Asm()
    def dmablock(name, role, items, wait=None):
        a.e("s_cbranch_vcc%s L_%s" % ("nz" if role == "A" else "z", name))
        if wait: a.waitvm(wait, lgkm=True)
        a.lab("L_%s_r" % name)
        ool.lab("L_%s" % name)
        ool.vm = a.vm if role == "A" else vms["B"]
        for it_ in items:
            put(ool, [it_])
            put(ool, fills[role][:Opt.fillper]); fills[role] = fills[role][Opt.fillper:]
        if name in ("d7", "e7"): put(ool, fills[role]); fills[role] = []
        if wait: ool.waitvm(wait, lgkm=True)
        if role == "B": vms["B"] = ool.vm
        ool.e("s_branch L_%s_r" % name)
    a.ool = ool.l

    def fr(k):
        b = vF1 + 36 * (k % 2)
        return dict(x=b, w=b + 16, q=b + 32)
    def reads(k):
        c, s = divmod(k, 2); f = fr(k); sl = c % 3
        wo = sl * 16384 + s * 8192
        W = lambda i: [rdtr(f['w'] + 4 * i, vWA + i, wo), rdtr(f['w'] + 4 * i + 2, vWA + i, wo + 1024)]
        X = [rd128(f['x'] + 4 * b, vXA + 2 * s + (b >> 1), sl * 16384 + (b & 1) * 2048) for b in range(4)]
        return W(0) + X + W(2) + W(1) + W(3) + [rdtr(f['q'], vQA, sl * 4096 + s * 2048), rdtr(f['q'] + 2, vQA, sl * 4096 + s * 2048 + 256)]
    a.e("s_barrier")
    a.stamp(3)
    if Opt.kdiag or Opt.probe >= 18:
        kstamp(a, 2)
        a.e("s_waitcnt lgkmcnt(0)")
    for r in reads(0): a.e(r)
    if qa[0]: dmablock("d2", "A", take(qa[0], 2))
    for k in range(16):
        c, s = divmod(k, 2); f = fr(k)
        z = lambda x: None if k == 0 else x
        mf = []
        for n_, i in enumerate((0, 2, 1, 3)):
            for b in (range(4) if n_ % 2 == 0 else range(3, -1, -1)):
                d = vACC + 16 * b + 4 * i
                mf.append(mfma16(d, f['w'] + 4 * i, f['x'] + 4 * b, z(d)))
        for b in range(2): mf.append(mfma16(vAQ + 4 * b, f['q'], f['x'] + 4 * b, z(vAQ + 4 * b)))
        rds = reads(k + 1) if k < 15 else []
        if s == 0:
            a.e("s_waitcnt lgkmcnt(6)")
            for i, m in enumerate(mf):
                if i == 8: a.e("s_waitcnt lgkmcnt(8)")
                a.e(m)
                if i < len(rds): a.e(rds[i])
            continue
        a.e("s_waitcnt lgkmcnt(8)")
        for m in mf[:4]: a.e(m)
        if c <= 5:
            dmablock("e%d" % (c + 2), "B", take(qb[c], c + 2), "c%d" % (c + 1))
            assert not any(x[0] <= c + 1 for x in stream)
        if c == 7:
            a.e("s_waitcnt lgkmcnt(0)")
        elif c == 6:
            a.e("s_waitcnt lgkmcnt(0)")
            a.e("s_cbranch_vccz L_st7")
            a.e("s_setprio 1")
            a.e("s_waitcnt vmcnt(0)")
            a.e("s_barrier")
            a.lab("L_st7")
        else:
            a.e("s_barrier")
        if c < 7 and ((Opt.kdiag == 1 and Opt.diag) or Opt.probe == 21 + c):
            kstamp(a, 3 + c)
            a.e("s_waitcnt lgkmcnt(0)")
        if c + 3 < 8:
            items = take(qa[c + 1], c + 3)
            dmablock("d%d" % (c + 3), "A", items)
        for i, m in enumerate(mf[4:]):
            a.e(m)
            if i < len(rds): a.e(rds[i])
        if k == 11: assert not stream and not fills["A"] and not fills["B"]
        if k == 11:
            a.e("s_cbranch_vccnz L_st6")
            a.e("s_setprio 0")
            spin_counter(a, "kvf", False, 4)
            a.wait0()
            a.e("s_barrier")
            put(a, kv_first_loads(a, True) + oclr)
            a.lab("L_st6")
    a.kvA = (kv_first_loads(a) + oclr)[2:]
    a.stamp(4)

def phase1_L(a):
    a.lab("L_light")
    a.vm = []
    ptr_loads(a, ((SWKV, 16), (SWV, 24)))
    srd_words(a, [SWKV, SWV, SGATE, SX])
    xvoff(a, 0)
    a.e("v_and_b32 v2, 63, v0")
    a.e("v_lshlrev_b32 %s, 4, v2" % v(vL16))
    a.e("s_sub_u32 s%d, s%d, 14" % (sCNT, sM))
    a.e("s_lshl_b32 s%d, s%d, 16" % (sOLD, sCNT))
    a.e("s_lshl_b32 s%d, s%d, 13" % (sHST, sCNT))
    a.e("s_add_u32 s%d, s%d, s%d" % (sWH, sHST, sWK))
    a.e("s_xor_b32 s%d, s%d, 0x2000" % (sHST, sHST))
    a.e("s_add_u32 s%d, s%d, 0x2000" % (sA, sWK))
    a.e("s_waitcnt lgkmcnt(0)")
    a.stamp(2)
    def xdma(c, base, so):
        a.vmop("s_add_u32 m0, s%d, 0x%x\ns_nop 0\nbuffer_load_dwordx4 %s, %s, s%d offen offset:%d lds"
               % (base, LL_X + c * 16384 - c * 128, v(vDX), srd(SX), so, c * 128), "c%d" % c)
    def wdma(u):
        for t, rs in enumerate((SWKV, SWV)):
            a.vmop("s_add_u32 m0, s%d, 0x%x\ns_nop 0\nbuffer_load_dwordx4 %s, %s, s%d offen lds"
                   % (sWK, LL_W + t * 16384 + u * 8192, v(vL16), srd(rs), sA if u else sWK), "w")
    wdma(0)
    a.vmop("s_mov_b32 m0, s%d\ns_nop 0\nbuffer_load_dwordx4 %s, %s, 0 offen lds" % (sHST, v(vL16), srd(SGATE)), "w")
    for c in range(8):
        if c == 4: wdma(1)
        xdma(c, sWH, sOLD)
        if c in (1, 3, 5): a.e("s_barrier")
    setup_ids(a)
    srd_words(a, [SWQ])
    setup_rd(a)
    a.e("v_lshrrev_b32 v3, 5, v0")
    a.e("v_bfrev_b32 v5, v4")
    a.e("v_lshrrev_b32 v5, 30, v5")
    a.e("s_cmp_ge_u32 s%d, 2" % sLO)
    a.e("s_cselect_b64 vcc, -1, 0")
    a.e("v_cndmask_b32 v4, v5, v4, vcc")
    a.e("v_lshl_add_u32 %s, v3, 3, v2" % v(vWA))
    a.e("v_lshlrev_b32 %s, 5, %s" % (v(vWA), v(vWA)))
    a.e("v_lshl_add_u32 %s, v4, 3, %s" % (v(vWA), v(vWA)))
    a.e("s_lshr_b32 s%d, s%d, 1" % (sA, sLO))
    a.e("s_lshl_b32 s%d, s%d, 14" % (sA, sA))
    a.e("s_add_u32 s%d, s%d, 0x%x" % (sA, sA, LL_W))
    a.e("v_add_u32 %s, s%d, %s" % (v(vWA), sA, v(vWA)))
    a.e("v_lshl_add_u32 %s, v3, 4, s%d" % (v(vWA + 1), sHST))
    a.e("s_and_b32 s%d, s%d, 1" % (sA, sLO))
    a.e("s_lshl_b32 s%d, s%d, 1" % (sB, sCNT))
    a.e("s_add_u32 s%d, s%d, s%d" % (sCNT, sA, sB))
    a.e("s_lshl_b32 s%d, s%d, 12" % (sA, sCNT))
    a.e("v_and_b32 v2, 31, v0")
    a.e("v_bfe_u32 v4, v0, 1, 3")
    a.e("v_xor_b32 v4, v4, v3")
    a.e("v_lshlrev_b32 v4, 4, v4")
    a.e("v_lshl_add_u32 v4, v2, 7, v4")
    a.e("v_add_u32 %s, s%d, v4" % (v(vLX), sA))
    for s in range(1, 4): a.e("v_xor_b32 %s, %d, %s" % (v(vLX + s), 32 * s, v(vLX)))
    for s in range(4): a.e("v_add_u32 %s, 0x10000, %s" % (v(vLX + 4 + s), v(vLX + s)))
    a.e("s_waitcnt lgkmcnt(0)")
    setup_oclr(a)
    vm0 = list(a.vm)
    a.e("s_cmp_lg_u32 s%d, 0" % sHI)
    a.e("s_cbranch_scc1 L_lB")
    a.e("s_not_b64 %s, %s" % (sp(sTMPP), sp(sVM)))
    a.e("s_cmp_ge_u32 s%d, 2" % sLO)
    a.e("s_cbranch_scc1 L_lV")
    def chain(kind):
        a.vm = list(vm0)
        def fr(k):
            b = vFR + 8 * (k % 4)
            return b, b + 4
        def reads(k):
            c, s = divmod(k, 4); x, w = fr(k)
            r = [rd128(x, vLX + s + 4 * (c >> 2), (c & 3) * 16384), rdtr(w, vWA, k * 512), rdtr(w + 2, vWA, k * 512 + 128)]
            if kind == "K":
                r += ["s_mov_b64 exec, %s" % sp(sTMPP), rd128(w, vWA + 1, k * 32), "s_mov_b64 exec, -1"]
            return r
        for q in range(4):
            a.waitvm("c%d" % (2 * q + 1))
            a.e("s_barrier")
            nr = 4 if kind == "K" else 3
            for k in range(8 * q, 8 * q + 2):
                for r in reads(k): a.e(r)
            for k in range(8 * q, 8 * q + 8):
                if k + 2 < 8 * q + 8:
                    for r in reads(k + 2): a.e(r)
                left = min(2, 8 * q + 7 - k)
                a.e("s_waitcnt lgkmcnt(%d)" % (left * nr))
                x, w = fr(k)
                cc = None if k == 0 else vACC
                a.e(mfma(vACC, w, x, cc) if kind == "K" else mfma(vACC, x, w, cc))
        a.e("s_lshl_b32 s%d, s%d, 2" % (sA, sG))
        a.e("s_add_u32 s%d, s%d, s%d" % (sA, sA, sCNT))
        a.e("s_nop 12")
        if kind == "K":
            a.e("s_mov_b32 s%d, 0x%x" % (sC, f2u(0.25 * math.log2(math.e))))
            for i in range(8): a.e("v_mul_f32 %s, s%d, %s" % (v(vACC + i), sC, v(vACC + i)))
            a.e("v_mul_f32 %s, 0x%x, %s" % (v(vACC + 8), f2u(-math.log2(math.e)), v(vACC + 8)))
            a.e("v_exp_f32 %s, %s" % (v(vACC + 8), v(vACC + 8)))
            for i in range(4): a.e("v_cvt_pk_bf16_f32 %s, %s, %s" % (v(vFR + i), v(vACC + 2 * i), v(vACC + 2 * i + 1)))
            a.e("v_add_f32 %s, 1.0, %s" % (v(vACC + 8), v(vACC + 8)))
            a.e("v_rcp_f32 %s, %s" % (v(vACC + 8), v(vACC + 8)))
            a.e("s_add_u32 s%d, s%d, 63" % (sB, sA))
            a.e("s_and_b32 s%d, s%d, 63" % (sB, sB))
            a.e("s_lshl_b32 s%d, s%d, 11" % (sB, sB))
            a.e("buffer_store_dwordx4 %s, %s, %s, s%d offen sc1" % (v(vFR, 4), v(vL16), srd(SKV), sB))
            a.e("s_lshl_b32 s%d, s%d, 7" % (sB, sA))
            a.e("s_add_u32 s%d, s%d, 0x%x" % (sB, sB, WS_G))
            a.e("s_mov_b32 exec_hi, 0")
            a.e("buffer_store_dword %s, %s, %s, s%d offen sc1" % (v(vACC + 8), v(vGA), srd(SWS), sB))
            a.e("s_mov_b64 exec, -1")
        else:
            for i in range(8): a.e("v_cvt_pk_bf16_f32 %s, %s, %s" % (v(vFR + i), v(vACC + 2 * i), v(vACC + 2 * i + 1)))
            a.e("v_bfe_u32 v2, v0, 4, 1")
            a.e("v_add_u32 v2, s%d, v2" % sA)
            a.e("v_and_b32 v2, 63, v2")
            a.e("v_lshl_add_u32 v2, v2, 11, %s" % v(vL16))
            for i in range(4): a.e("v_cndmask_b32 %s, %s, %s, %s" % (v(vFR + i), v(vFR + 4 + i), v(vFR + i), sp(sVM)))
            a.e("buffer_store_dwordx4 %s, v2, %s, 0 offen offset:1024 sc1" % (v(vFR, 4), srd(SKV)))
        a.e("s_branch L_lJ")
    chain("K")
    a.lab("L_lV")
    chain("V")
    a.lab("L_lB")
    a.vm = list(vm0)
    a.e("s_cmp_lg_u32 s%d, 14" % sM)
    a.e("s_cbranch_scc1 L_nozf")
    a.e("s_cmp_lg_u32 s%d, 4" % sW)
    a.e("s_cbranch_scc1 L_nozf")
    a.e("v_lshlrev_b32 v2, 7, v0")
    a.e("s_lshl_b32 s%d, s%d, 11" % (sA, sG))
    a.e("s_add_u32 s%d, s%d, 0x%x" % (sA, sA, WS_HFLAG))
    a.e("s_mov_b64 exec, 0xffff")
    a.e("buffer_store_dword %s, v2, %s, s%d offen sc1" % (v(vZERO), srd(SWS), sA))
    a.e("s_mov_b64 exec, -1")
    a.lab("L_nozf")
    for q in range(4):
        a.waitvm("c%d" % (2 * q + 1))
        a.e("s_barrier")
    a.lab("L_lJ")
    a.e("v_lshrrev_b32 v3, 2, v0")
    a.e("v_lshlrev_b32 v3, 10, v3")
    a.e("v_lshrrev_b32 v4, 5, v0")
    a.e("v_lshlrev_b32 v4, 1, v4")
    a.e("v_xor_b32 v4, v4, v0")
    a.e("v_and_b32 v4, 3, v4")
    a.e("v_lshl_add_u32 v3, v4, 4, v3")
    a.e("s_lshl_b32 s%d, s%d, 14" % (sA, sW))
    a.e("s_lshl_b32 s%d, s%d, 6" % (sB, sHP))
    a.e("s_add_u32 s%d, s%d, s%d" % (sA, sA, sB))
    a.e("v_add_u32 %s, s%d, v3" % (v(vDQ), sA))
    a.e("s_xor_b32 s%d, s%d, 0x2000" % (sWH, sWH))
    a.e("s_xor_b32 s%d, s%d, 0x10000" % (sOLD, sOLD))
    a.wait0(lgkm=True)
    a.e("s_barrier")
    a.e("s_cmp_lg_u32 s%d, 0" % sW)
    a.e("s_cbranch_scc1 L_noat")
    a.e("s_mov_b64 exec, 1")
    a.e("buffer_atomic_add %s, off, %s, 0 sc1" % (v(vONE), srd(SDBG)))
    a.e("s_mov_b64 exec, -1")
    a.lab("L_noat")
    a.stamp(3)
    for c in range(8): xdma(c, sWH, sOLD)
    for p in range(4):
        a.e("s_add_u32 m0, s%d, 0x%x" % (sWK, LL_WQ + p * 8192))
        a.e("s_mov_b32 s%d, 0x%x" % (sA, p * 128 * 1024))
        a.e("buffer_load_dwordx4 %s, %s, s%d offen lds" % (v(vDQ), srd(SWQ), sA))
    setup_attn(a)
    if Opt.touch & 2:
        a.e("s_lshl_b32 s%d, s%d, 1" % (sA, sG))
        a.e("s_add_u32 s%d, s%d, s%d" % (sA, sA, sM))
        a.e("s_sub_u32 s%d, s%d, 14" % (sA, sA))
        a.e("s_lshl_b32 s%d, s%d, 3" % (sA, sA))
        a.e("s_add_u32 s%d, s%d, s%d" % (sA, sA, sW))
        a.e("v_lshlrev_b32 v2, 15, v0")
        a.e("s_lshl_b32 s%d, s%d, 7" % (sA, sA))
        a.e("buffer_load_dword %s, v2, %s, s%d offen" % (v(vPOLL), srd(SWO), sA))
        a.e("buffer_load_dword %s, v2, %s, s%d offen" % (v(vPOLL), srd(SWD), sA))
    a.e("s_lshl_b32 s%d, s%d, 12" % (sA, sLO))
    a.e("v_add_u32 %s, s%d, %s" % (v(vXA), sA, v(vXA)))
    a.e("v_xor_b32 %s, 64, %s" % (v(vXA + 1), v(vXA)))
    a.e("v_add_u32 %s, 0x10000, %s" % (v(vXA + 2), v(vXA)))
    a.e("v_add_u32 %s, 0x10000, %s" % (v(vXA + 3), v(vXA + 1)))
    a.e("v_add_u32 %s, 0x%x, %s" % (v(vQA), LL_WQ, v(vQA)))
    a.e("s_waitcnt vmcnt(%d)" % (2 if Opt.touch & 2 else 0))
    a.e("s_barrier")
    def fr(k): return vFR + 12 * (k % 3)
    def reads(k):
        c, s = divmod(k, 2); f = fr(k)
        return [rd128(f + 4 * b, vXA + s + 2 * (c >> 2), (c & 3) * 16384 + b * 2048) for b in range(2)] + \
               [rdtr(f + 8, vQA, k * 2048), rdtr(f + 10, vQA, k * 2048 + 256)]
    for k in range(2):
        for r in reads(k): a.e(r)
    for k in range(16):
        a.e("s_waitcnt lgkmcnt(%d)" % (4 * min(1, 15 - k)))
        for b in range(2): a.e(mfma16(vAQ + 4 * b, fr(k) + 8, fr(k) + 4 * b, None if k == 0 else vAQ + 4 * b))
        if k + 2 < 16:
            for r in reads(k + 2): a.e(r)
    spin_counter(a, "kvl", False)
    a.e("s_barrier")
    for s, t in kv_first_loads(a): a.e(s)
    a.wait0()
    a.stamp(4)
    a.e("s_branch L_join")

def gelu_tile(a, ti, scalar=False):
    acc = vACC + 16 * ti
    t = vFR
    o = vFR + 8 + 4 * ti
    pk = lambda r: v(r, 2)
    if scalar:
        for i in range(8): a.e("v_mul_f32 %s, %s, %s" % (v(t + i), v(acc + i), v(acc + i)))
        for i in range(8): a.e("v_fma_f32 %s, %s, %s, %s" % (v(t + i), v(t + i), v(vC0 + 1), v(vC0)))
        for i in range(8): a.e("v_mul_f32 %s, %s, %s" % (v(t + i), v(t + i), v(acc + i)))
        for i in range(8): a.e("v_exp_f32 %s, %s" % (v(t + i), v(t + i)))
        for i in range(8): a.e("v_add_f32 %s, 1.0, %s" % (v(t + i), v(t + i)))
        for i in range(8): a.e("v_rcp_f32 %s, %s" % (v(t + i), v(t + i)))
        for i in range(8): a.e("v_mul_f32 %s, %s, %s" % (v(acc + i), v(acc + i), v(acc + 8 + i)))
        for i in range(8): a.e("v_mul_f32 %s, %s, %s" % (v(acc + i), v(acc + i), v(t + i)))
    R4, R8 = (range(0), range(0)) if scalar else (range(4), range(8))
    for i in R4: a.e("v_pk_mul_f32 %s, %s, %s" % (pk(t + 2 * i), pk(acc + 2 * i), pk(acc + 2 * i)))
    for i in R4: a.e("v_pk_fma_f32 %s, %s, %s, %s op_sel:[0,1,0] op_sel_hi:[1,1,0]" % (pk(t + 2 * i), pk(t + 2 * i), pk(vC0), pk(vC0)))
    for i in R4: a.e("v_pk_mul_f32 %s, %s, %s" % (pk(t + 2 * i), pk(t + 2 * i), pk(acc + 2 * i)))
    for i in R8: a.e("v_exp_f32 %s, %s" % (v(t + i), v(t + i)))
    for i in R4: a.e("v_pk_add_f32 %s, %s, 1.0 op_sel_hi:[1,0]" % (pk(t + 2 * i), pk(t + 2 * i)))
    for i in R8: a.e("v_rcp_f32 %s, %s" % (v(t + i), v(t + i)))
    for i in R4: a.e("v_pk_mul_f32 %s, %s, %s" % (pk(acc + 2 * i), pk(acc + 2 * i), pk(acc + 8 + 2 * i)))
    for i in R4: a.e("v_pk_mul_f32 %s, %s, %s" % (pk(acc + 2 * i), pk(acc + 2 * i), pk(t + 2 * i)))
    for i in range(4): a.e("v_cvt_pk_bf16_f32 %s, %s, %s" % (v(o + i), v(acc + 2 * i), v(acc + 2 * i + 1)))
    a.vmop("buffer_store_dwordx4 %s, %s, %s, s%d offen offset:%d sc1" % (v(o, 4), v(vHA), srd(SWS), sHST2 if ti >> 1 else sHST, (ti & 1) * 256), "hst")

def Yseg(hset, toggle=False):
    out = []
    for t in range(2):
        S, Sn = vS + 16 * t, vS + 16 * (1 - t)
        K, V0, V1 = vKF + 4 * t, vV + 8 * t, vV + 8 * t + 4
        for j in range(8):
            out.append("v_exp_f32 %s, %s" % (v(vE + 2 * (j % 2)), v(S + 2 * j)))
            out.append("v_exp_f32 %s, %s" % (v(vE + 2 * (j % 2) + 1), v(S + 2 * j + 1)))
            jj = (j - 1) % 8
            out.append("v_cvt_pk_bf16_f32 %s, %s, %s" % (v(vP + jj), v(vE + 2 * (jj % 2)), v(vE + 2 * (jj % 2) + 1)))
            if j == 1: out.append(mfma(vO, V1, vP + 4, vO))
            if j == 3: out.append(mfma(Sn, K, vQ, None))
            if hset is None:
                if j == 7: out.append(mfma(vO, V0, vP, vO))
            else:
                if j == 5: out.append(mfma(vO, V0, vP, vO))
                if j == 6 and t == 1 and toggle:
                    out.append("v_xor_b32 %s, 0x4000, %s" % (v(vKVA), v(vKVA)))
                    out.append("v_xor_b32 %s, 0x8000, %s" % (v(vWDA), v(vWDA)))
                if j == 7: out.append(mfma(vD + 16 * t, vWF + 4 * t, vH + 4 * hset, vD + 16 * t))
    return out

def kv_reads(off):
    r = [rd128(vKF, vKVA, off), rd128(vKF + 4, vKVA, off + 2048), "s_mov_b64 exec, %s" % sp(sVM)]
    for t in range(2):
        r += [rd128(vV + 8 * t, vKVA, off + 2048 * t + 1024), rd128(vV + 8 * t + 4, vKVA, off + 2048 * t + 1280)]
    r.append("s_mov_b64 exec, -1")
    return r
def wd_reads(dst, addr, off):
    r = []
    for c in range(2):
        r += [rdtr(dst + 4 * c, addr, off + 512 * c), rdtr(dst + 4 * c + 2, addr, off + 512 * c + 1024)]
    return r

def wdrow(sg): return (32 * (sg >> 1) + 8 * (sg & 1)) * 1024

def attention(a, role, pre0=None):
    A = role == "A"
    def kvdma(u):
        a.vmop("s_add_u32 m0, s%d, 0x%x\ns_add_u32 s%d, s%d, 0x%x\nbuffer_load_dwordx4 %s, %s, s%d offen sc1 lds"
               % (sWK, L_KV + (u % 4) * 8192, sA, sWK, u * 8192, v(vL16), srd(SKV), sA), "kv%d" % u)
    def wddma(sg):
        a.vmop("s_add_u32 m0, s%d, 0x%x\ns_add_u32 s%d, s%d, 0x%x\nbuffer_load_dwordx4 %s, %s, s%d offen lds"
               % (sWK, L_WD + ((sg + 3) % 8) * 8192, sA, sWDOFF, wdrow(sg), v(vWDV), srd(SWD), sA), "wd%d" % sg)
    def wodma(j):
        a.vmop("s_add_u32 m0, s%d, 0x%x\ns_add_u32 s%d, s%d, 0x%x\nbuffer_load_dwordx4 %s, %s, s%d offen lds"
               % (sWK, L_WO + j * 8192, sA, sB, j * 16384, v(vWDV), srd(SWO), sA), "wo")
    def hload(sg, dst):
        a.vmop("s_add_u32 s%d, s%d, 0x%x\nbuffer_load_dwordx4 %s, %s, %s, s%d offen sc1"
               % (sA, sHOFF, sg * 1024, v(dst, 4), v(vL16), srd(SWS), sA), "h%d" % sg)
    for n in range(11):
        if not A and n == 0: a.e("s_barrier")
        if n % 2 == 1: astamp(a, 2 + n // 2)
        tags = []
        if A and n % 2 == 1: tags.append("kv%d" % ((n + 1) // 2))
        if not A and n % 2 == 0: tags.append("kv%d" % ((n + 2) // 2))
        if n == (3 if A else 2): tags.append("hst")
        if n == 10: tags.append("wd0")
        if n == 8 and A:
            a.e("s_cmp_lg_u32 s%d, 0" % sW)
            a.e("s_cbranch_scc1 L_hf_done")
            a.e("s_mov_b32 s%d, 0x4000" % sB)
            a.e("s_waitcnt vmcnt(2)")
            a.lab("L_hf_chk")
            a.e("v_cmp_ne_u32 vcc, 1, %s" % v(vPOLL))
            a.e("s_cbranch_vccz L_hf_done")
            a.e("s_sleep 2")
            a.e("buffer_load_dword %s, %s, %s, 0 offen sc1" % (v(vPOLL), v(vFLA), srd(SWS)))
            a.e("s_sub_u32 s%d, s%d, 1" % (sB, sB))
            a.e("s_cmp_lg_u32 s%d, 0" % sB)
            a.e("s_waitcnt vmcnt(0)")
            a.e("s_cbranch_scc1 L_hf_chk")
            a.lab("L_hf_done")
        a.waitvm(tags)
        if n == 3 and not A:
            a.e("s_cmp_ge_u32 s%d, 14" % sM)
            a.e("s_cbranch_scc1 L_nohf")
            a.e("s_cmp_lg_u32 s%d, 4" % sW)
            a.e("s_cbranch_scc1 L_nohf")
            a.e("s_lshl_b32 s%d, s%d, 4" % (sA, sG))
            a.e("s_add_u32 s%d, s%d, s%d" % (sA, sA, sM))
            a.e("s_lshl_b32 s%d, s%d, 7" % (sA, sA))
            a.e("s_add_u32 s%d, s%d, 0x%x" % (sA, sA, WS_HFLAG))
            a.e("s_mov_b64 exec, 1")
            a.e("buffer_store_dword %s, off, %s, s%d sc1" % (v(vONE), srd(SWS), sA))
            a.e("s_mov_b64 exec, -1")
            a.lab("L_nohf")
        for r in kv_reads((n % 8) * 4096): a.e(r)
        if n == 7 and A:
            a.e("s_cmp_lg_u32 s%d, 0" % sW)
            a.e("s_cbranch_scc1 L_hf_nol")
            a.e("buffer_load_dword %s, %s, %s, 0 offen sc1" % (v(vPOLL), v(vFLA), srd(SWS)))
            a.lab("L_hf_nol")
        if n == 0:
            kvdma(2); kvdma(3)
            a.e("s_mov_b32 s%d, s%d" % (sC, sKQ))
            a.e("s_mul_i32 s%d, s%d, %d" % (sWDOFF, sC, 448 * 1024))
            a.e("s_and_b32 s%d, s%d, 1" % (sB, sW))
            a.e("s_lshl_b32 s%d, s%d, 14" % (sA, sB))
            a.e("s_add_u32 s%d, s%d, s%d" % (sWDOFF, sWDOFF, sA))
            a.e("s_lshl_b32 s%d, s%d, 1" % (sA, sT))
            a.e("s_add_u32 s%d, s%d, s%d" % (sA, sA, sB))
            a.e("s_mul_i32 s%d, s%d, 112" % (sA, sA))
            a.e("s_mul_i32 s%d, s%d, 28" % (sB, sC))
            a.e("s_add_u32 s%d, s%d, s%d" % (sA, sA, sB))
            a.e("s_lshl_b32 s%d, s%d, 10" % (sA, sA))
            a.e("s_add_u32 s%d, s%d, 0x%x" % (sHOFF, sA, WS_HF))
        if (A and n % 2 == 1 and n >= 3): kvdma((n + 5) // 2)
        if (not A and n % 2 == 0 and n >= 2): kvdma((n + 6) // 2)
        if 1 <= n <= 3:
            a.e("s_lshl_b32 s%d, s%d, 17" % (sB, sKQ))
            a.e("s_and_b32 s%d, s%d, 1" % (sC, sW))
            a.e("s_lshl_b32 s%d, s%d, 13" % (sC, sC))
            a.e("s_add_u32 s%d, s%d, s%d" % (sB, sB, sC))
            for j in {1: (0, 1, 2), 2: (3, 4, 5), 3: (6, 7)}[n]: wodma(j)
        if n >= 4: wddma(n - 4)
        if n == 9:
            hload(0, vH + 12); hload(1, vH + 0); hload(24, vH + 16); hload(25, vH + 20)
        if n == 10:
            hload(26, vH + 24); hload(27, vH + 28); hload(2, vH + 4)
        if n == 0 and pre0:
            pre0()
            a.stamp(5)
        a.e("s_waitcnt lgkmcnt(0)")
        a.e("s_call_b64 %s, L_Y%s" % (sp(sRET), role))
        if n == 0:
            a.e("s_branch L_X1%s" % role)
            a.lab("L_Y%s" % role)
            if A: a.e("s_barrier")
            for x in Yseg(None): a.e(x)
            if not A: a.e("s_barrier")
            a.e("s_setpc_b64 %s" % sp(sRET))
            a.lab("L_X1%s" % role)
    astamp(a, 7)
    a.e("s_add_u32 s%d, s%d, 0x%x" % (sHOFF, sHOFF, 3 * 1024))
    a.e("s_add_u32 s%d, s%d, 0x%x" % (sWDOFF, sWDOFF, wdrow(7)))
    a.e("s_mov_b32 s%d, 0x%x" % (sM0WD, ((7 + 3) % 8) * 8192))
    u0 = 8 if A else 9
    a.e("s_add_u32 s%d, s%d, 0x%x" % (sKVOFF, sWK, u0 * 8192))
    a.e("s_mov_b32 s%d, 6" % sCNT)
    a.waitvm(["h0", "wd1", "kv6"] if A else ["h0", "wd1"])
    a.e("s_branch L_loop%s_in" % role)
    a.l.append(".p2align 6")
    a.lab("L_loop%s" % role)
    for p in range(4):
        if p == 0 and Opt.diag and Opt.kdiag == 2:
            a.e("s_cmp_lg_u32 s%d, 4" % sCNT)
            a.e("s_cbranch_scc1 L_nst%s" % role)
            astamp(a, 8)
            a.lab("L_nst%s" % role)
        a.e("s_waitcnt vmcnt(5)")
        if p == 3: a.lab("L_loop%s_in" % role)
        for r in kv_reads(p * 4096): a.e(r)
        for r in wd_reads(vWF, vWDA, p * 8192): a.e(r)
        a.e("buffer_load_dwordx4 %s, %s, %s, s%d offen sc1" % (v(vH + 4 * ((p + 3) % 4), 4), v(vL16), srd(SWS), sHOFF))
        a.e("s_add_u32 m0, s%d, s%d" % (sWK, sM0WD))
        a.e("s_add_u32 s%d, s%d, 0x400" % (sHOFF, sHOFF))
        a.e("buffer_load_dwordx4 %s, %s, s%d offen lds" % (v(vWDV), srd(SWD), sWDOFF))
        a.e("s_add_u32 s%d, s%d, 0x%x" % (sWDOFF, sWDOFF, 0x6000 if p & 1 else 0x2000))
        a.e("s_add_u32 s%d, s%d, 0x2000" % (sM0WD, sM0WD))
        a.e("s_and_b32 s%d, s%d, 0xffff" % (sM0WD, sM0WD))
        if (p % 2 == 1) == A:
            a.e("s_and_b32 s%d, s%d, 0x7fff" % (sA, sKVOFF))
            a.e("s_add_u32 m0, s%d, 0x%x" % (sA, L_KV))
            a.e("s_nop 0")
            a.e("buffer_load_dwordx4 %s, %s, s%d offen sc1 lds" % (v(vL16), srd(SKV), sKVOFF))
            a.e("s_add_u32 s%d, s%d, 0x2000" % (sKVOFF, sKVOFF))
        if p == 3:
            a.e("s_sub_u32 s%d, s%d, 1" % (sCNT, sCNT))
            a.e("s_cmp_lg_u32 s%d, 0" % sCNT)
        a.e("s_waitcnt lgkmcnt(0)")
        if A: a.e("s_barrier")
        for x in Yseg(p, toggle=(p == 3)): a.e(x)
        if not A:
            if p == 3: a.e("s_cbranch_scc0 L_tail")
            a.e("s_barrier")
    a.e(("s_cbranch_scc1 L_loop%s" if A else "s_branch L_loop%s") % role)

def transition(a, role):
    A = role == "A"
    if A:
        a.vm = []
        a.lab("L_trA")
    else:
        a.lab("L_join")
        a.e("s_cmp_eq_u32 s%d, 0" % sHI)
        a.e("s_cbranch_scc1 L_trA")
        a.vmjoin = list(a.vm)
    def qfin():
        for i in range(4): a.e("v_cvt_pk_bf16_f32 %s, %s, %s" % (v(vQ + i), v(vAQ + 2 * i), v(vAQ + 2 * i + 1)))
        for i in range(4, 7): a.e("v_mov_b32 %s, 0" % v(vP + i))
        a.e("v_permlane16_swap_b32 %s, %s" % (v(vQ), v(vQ + 2)))
        a.e("v_permlane16_swap_b32 %s, %s" % (v(vQ + 1), v(vQ + 3)))
    pre0 = None
    if A:
        a.e("s_setprio 1")
        a.e("s_cmp_ge_u32 s%d, 14" % sM)
        a.e("s_cbranch_scc1 L_nogA0")
        put(a, a.kvA[:1] + a.kvA[-1:])
        a.l.append(".p2align 3")
        for ti in range(Opt.gsc): gelu_tile(a, ti, True)
        a.lab("L_nogA0")
        qfin()
        a.waitvm(["k0", "kv0", "kv1"])
        a.e("s_setprio 0")
        a.e("s_barrier")
        a.e(mfma(vS, vK0, vQ, None))
        put(a, a.kvA[1:-1])
        def pre0():
            a.e("s_cmp_lt_u32 s%d, 14" % sM)
            a.e("s_cbranch_scc1 L_gA1")
            a.e("s_waitcnt vmcnt(0)")
            a.e("s_branch L_nogA1")
            a.l.append(".p2align 3")
            a.lab("L_gA1")
            for ti in range(Opt.gsc, 4): gelu_tile(a, ti)
            a.lab("L_nogA1")
            a.e("s_setprio 1")
    else:
        a.waitvm(["k0", "kv0", "kv1"])
        a.e("s_setprio 1")
        a.e("s_cmp_ge_u32 s%d, 14" % sM)
        a.l.append(".p2align 3")
        a.e("s_barrier")
        a.e("s_cbranch_scc1 L_nogB")
        for ti in range(4): gelu_tile(a, ti)
        a.lab("L_nogB")
        qfin()
        a.e("s_setprio 0")
        a.e("s_nop 0")
        a.e(mfma(vS, vK0, vQ, None))
        a.stamp(5)
    attention(a, role, pre0)
    if A: a.e("s_branch L_tail")

def tail(a):
    a.lab("L_tail")
    a.e("v_cvt_pk_bf16_f32 %s, %s, %s" % (v(vP + 7), v(vE + 2), v(vE + 3)))
    a.stamp(6)
    astamp(a, 9)
    if Opt.diag and Opt.kdiag == 2: a.e("s_waitcnt lgkmcnt(0)")
    a.e("s_setprio 0")
    a.e("s_mov_b32 s%d, 0x%x" % (sC, f2u(2.0 ** -16)))
    a.e(mfma(vO, vV1L, vP + 4, vO))
    a.e("s_mov_b32 s%d, 0x%x" % (sD, f2u(2.0 ** 100)))
    a.e("s_nop 10")
    t = vFR
    a.e("v_rcp_f32 %s, %s" % (v(t + 2), v(vO + 8)))
    a.e("v_pk_mul_f32 %s, %s, 0 op_sel_hi:[1,0]" % (v(t, 2), v(vO, 2)))
    for i in range(1, 4): a.e("v_pk_fma_f32 %s, %s, 0, %s op_sel_hi:[1,0,1]" % (v(t, 2), v(vO + 2 * i, 2), v(t, 2)))
    a.e("v_add_f32 %s, %s, %s" % (v(t), v(t), v(t + 1)))
    a.e("v_add_f32 %s, %s, %s" % (v(t), v(t), v(vO + 8)))
    a.e("v_cmp_nle_f32 vcc, s%d, %s" % (sC, v(t)))
    a.e("v_cmp_nge_f32 %s, s%d, %s" % (sp(sTMPP), sD, v(t)))
    a.e("s_or_b64 vcc, vcc, %s" % sp(sTMPP))
    a.e("s_branch L_fb" if Opt.force_fb else "s_cbranch_scc1 L_fb")
    a.lab("L_fbret")
    a.e("v_mul_f32 %s, %s, %s" % (v(t + 2), v(t + 2), v(vGP)))
    for i in range(4): a.e("v_pk_mul_f32 %s, %s, %s op_sel_hi:[1,0]" % (v(vO + 2 * i, 2), v(vO + 2 * i, 2), v(t + 2, 2)))
    for i in range(4): a.e("v_cvt_pk_bf16_f32 %s, %s, %s" % (v(vP + i), v(vO + 2 * i), v(vO + 2 * i + 1)))
    for i in range(4): a.e("v_min_u32 %s, -2, %s" % (v(vP + i), v(vP + i)))
    a.e("buffer_store_dwordx4 %s, %s, %s, s%d offen sc1" % (v(vP, 4), v(vL16), srd(SWS), sOST))
    HORD = [0, 2, 4, 6, 1, 3, 5, 7] if Opt.hord else list(range(8))
    def oload(j):
        return "buffer_load_dwordx4 %s, %s, %s, s%d offen offset:%d sc1" % (
            v(vS + 4 * j, 4), v(vL16), srd(SWS), sOLD if HORD[j] < 4 else sA, (HORD[j] % 4) * 1024)
    a.oload = oload
    aw = vXA
    ar = vWA
    def addrs(a):
        a.e("v_sub_f32 %s, 1.0, %s" % (v(vGC), v(vGC)))
        a.e("v_add_u32 %s, 0x%x, %s" % (v(vQA), L_WO, v(vWDA)))
        a.e("v_and_b32 v2, 31, v0")
        a.e("v_lshrrev_b32 v3, 5, v0")
        a.e("v_and_b32 v4, 7, v0")
        a.e("v_xor_b32 v3, v3, v4")
        a.e("v_lshlrev_b32 v3, 4, v3")
        a.e("v_lshl_add_u32 v3, v2, 8, v3")
        a.e("s_and_b32 s%d, s%d, 1" % (sB, sW))
        a.e("s_lshl_b32 s%d, s%d, 15" % (sB, sB))
        a.e("s_lshr_b32 s%d, s%d, 1" % (sC, sW))
        a.e("s_lshl_b32 s%d, s%d, 13" % (sD, sC))
        a.e("s_add_u32 s%d, s%d, s%d" % (sD, sD, sB))
        a.e("v_add_u32 %s, s%d, v3" % (v(aw), sD))
        for j in range(1, 4): a.e("v_xor_b32 %s, %d, %s" % (v(aw + j), 32 * j, v(aw)))
        a.e("v_lshrrev_b32 v2, 3, v0")
        a.e("v_lshlrev_b32 v3, 1, v4")
        a.e("v_xor_b32 v3, v3, v2")
        a.e("v_lshlrev_b32 v3, 4, v3")
        a.e("v_lshl_add_u32 v3, v2, 8, v3")
        a.e("s_lshl_b32 s%d, s%d, 11" % (sD, sC))
        a.e("s_add_u32 s%d, s%d, s%d" % (sD, sD, sB))
        a.e("v_add_u32 %s, s%d, v3" % (v(ar), sD))
        a.e("v_xor_b32 %s, 16, %s" % (v(ar + 1), v(ar)))
        a.e("v_lshlrev_b32 v4, 4, v4")
        a.e("v_lshl_add_u32 %s, v2, 10, v4" % v(ar + 2))
        a.e("s_lshl_b32 s%d, s%d, 13" % (sC, sC))
        a.e("s_add_u32 s%d, s%d, s%d" % (sB, sB, sC))
        a.e("s_lshl_b32 s%d, s%d, 16" % (sC, sT))
        a.e("s_add_u32 s%d, s%d, s%d" % (sB, sB, sC))
        a.e("s_lshl_b32 s%d, s%d, 7" % (sC, sCB))
        a.e("s_add_u32 s%d, s%d, s%d" % (sCNT, sB, sC))
        a.e("s_mov_b32 s%d, 0x2000" % sB)
    a.e("s_add_u32 s%d, s%d, 0x1000" % (sA, sOLD))
    a.e("s_cmp_eq_u32 s%d, 0" % sHI)
    a.e("s_cbranch_scc1 L_tl1")
    a.e("s_setprio 1")
    a.e("s_waitcnt vmcnt(1)")
    a.lab("L_tl2")
    a.e("s_barrier")
    ol = Asm(); a.ool2 = ol.l
    ol.lab("L_tl1")
    for j in range(8): ol.e(oload(j))
    ol.e("s_waitcnt vmcnt(9)")
    ol.e("s_branch L_tl2")
    hreg = {21: vH + 0, 22: vH + 4, 23: vH + 8, 24: vH + 16, 25: vH + 20, 26: vH + 24, 27: vH + 28}
    wf = [vFR, vFR + 8, vFR + 16]
    for i in range(2):
        for r in wd_reads(wf[i], vWDA, i * 8192): a.e(r)
    fl = collect(addrs)
    put(a, fl[:8]); fl = fl[8:]
    for i in range(7):
        if i + 2 < 7:
            for r in wd_reads(wf[(i + 2) % 3], vWDA, (i + 2) * 8192): a.e(r)
        else:
            for r in wd_reads(wf[(i + 2) % 3], vQA, HORD[i - 5] * 8192): a.e(r)
        a.e("s_waitcnt lgkmcnt(8)")
        for c in range(2):
            a.e(mfma(vD + 16 * c, wf[i % 3] + 4 * c, hreg[21 + i], vD + 16 * c))
            put(a, fl[:2]); fl = fl[2:]
    put(a, fl)
    a.e("s_cmp_lg_u32 s%d, 0" % sHI)
    a.e("s_cbranch_scc1 L_tl3")
    a.e("s_nop 8")
    for i in range(32): a.e("v_mul_f32 %s, %s, %s" % (v(vD + i), v(vGC), v(vD + i)))
    if Opt.tbar == 0: a.e("s_barrier")
    a.lab("L_tl4")
    ol.lab("L_tl3")
    ol.e("s_setprio 0")
    for j in range(8):
        ol.e(oload(j))
        if j == 0: ol.e("s_nop 6")
        for i in range(4 * j, 4 * j + 4): ol.e("v_mul_f32 %s, %s, %s" % (v(vD + i), v(vGC), v(vD + i)))
    ol.e("s_barrier")
    ol.e("s_branch L_tl4")
    a.stamp(7)
    for j in range(8):
        o = vS + 4 * j
        if j + 2 < 8:
            for r in wd_reads(wf[(j + 3) % 3], vQA, HORD[j + 2] * 8192): a.e(r)
        if j == Opt.tbar and j:
            a.e("s_cmp_lg_u32 s%d, 0" % sHI)
            a.e("s_cbranch_scc1 L_ochk%d" % j)
            a.e("s_barrier")
        a.lab("L_ochk%d" % j)
        a.e("s_waitcnt vmcnt(%d)" % (7 - j))
        a.e("v_max3_u32 v2, %s, %s, %s" % (v(o), v(o + 1), v(o + 2)))
        a.e("v_max_u32 v2, v2, %s" % v(o + 3))
        a.e("v_cmp_eq_u32 vcc, -1, v2")
        a.e("s_cbranch_vccnz L_ore%d" % j)
        a.lab("L_ook%d" % j)
        a.e("s_waitcnt lgkmcnt(%d)" % (4 * min(2, 7 - j)))
        for c in range(2): a.e(mfma(vD + 16 * c, wf[(j + 1) % 3] + 4 * c, o, vD + 16 * c))
    a.stamp(8)
    a.e("s_nop 10")
    for c in range(2):
        for j in range(4):
            a.e("ds_write_b128 %s, %s offset:%d" % (v(aw + j), v(vD + 16 * c + 4 * j, 4), 128 * c))
    a.e("s_waitcnt lgkmcnt(0)")
    a.e("s_barrier")
    for p in range(4):
        for h in range(2): a.e(rd128(vS + 8 * p + 4 * h, ar + h, p * 8192))
    for p in range(1, 4):
        a.e("s_waitcnt lgkmcnt(%d)" % (6 - 2 * p))
        for i in range(4): a.e("v_pk_add_f32 %s, %s, %s" % (v(vS + 2 * i, 2), v(vS + 2 * i, 2), v(vS + 8 * p + 2 * i, 2)))
    for i in range(4): a.e("v_cvt_pk_bf16_f32 %s, %s, %s" % (v(vP + i), v(vS + 2 * i), v(vS + 2 * i + 1)))
    a.e("buffer_store_dwordx4 %s, %s, %s, s%d offen %s" % (v(vP, 4), v(ar + 2), srd(SOUT), sCNT, Opt.out_pol))
    if Opt.probe >= 0:
        a.e("s_waitcnt vmcnt(0)")
        a.stamp(9)
        if Opt.probe != 9:
            a.e("s_cmp_ge_u32 s%d, 14" % sM)
            a.e("s_cbranch_scc%d L_end" % (0 if Opt.probe_l else 1))
        a.e("s_sub_u32 s%d, s%d, s%d" % (sA, sSTAMP + 4, sSTAMP))
        a.e("s_mul_i32 s%d, s%d, %d" % (sA, sA, Opt.probe_mul - 1))
        a.e("s_min_u32 s%d, s%d, 100000" % (sA, sA))
        a.e("s_add_u32 s%d, s%d, 3800" % (sA, sA))
        if Opt.probe_w >= 0:
            a.e("s_cmp_lg_u32 s%d, %d" % (sHI, Opt.probe_w))
            a.e("s_cbranch_scc1 L_end")
        if Opt.probe_x >= 0:
            a.e("s_and_b32 s0, s2, 7")
            a.e("s_cmp_lg_u32 s0, %d" % Opt.probe_x)
            a.e("s_cbranch_scc1 L_end")
        a.lab("L_probe")
        a.e("s_memrealtime s[0:1]")
        a.e("s_waitcnt lgkmcnt(0)")
        a.e("s_sub_u32 s0, s0, s%d" % (sSTAMP + 4))
        a.e("s_cmp_lt_u32 s0, s%d" % sA)
        a.e("s_cbranch_scc1 L_probe")
    if Opt.pin == 9:
        a.e("s_waitcnt vmcnt(0)")
        a.stamp(9)
    if Opt.diag:
        a.e("s_waitcnt vmcnt(0)")
        a.stamp(9)
        a.e("s_mov_b32 s%d, s%d" % (sSTAMP + 3, sSTAMP))
        a.e("s_mov_b32 s%d, s%d" % (sSTAMP, sB))
        a.e("s_getreg_b32 s%d, hwreg(HW_REG_XCC_ID)" % (sSTAMP + 1))
        for i in range(20): a.e("v_mov_b32 %s, s%d" % (v(vS + i), sSTAMP + i))
        a.e("s_lshl_b32 s%d, s2, 3" % sA)
        a.e("s_add_u32 s%d, s%d, s%d" % (sA, sA, sW))
        a.e("s_lshl_b32 s%d, s%d, 7" % (sA, sA))
        a.e("s_add_u32 s%d, s%d, 0x%x" % (sA, sA, WS_STAMP))
        a.e("s_mov_b64 exec, 1")
        for i in range(5): a.e("buffer_store_dwordx4 %s, off, %s, s%d offset:%d" % (v(vS + 4 * i, 4), srd(SWS), sA, 16 * i))
    a.lab("L_end")
    a.e("s_endpgm")
    a.l += a.ool2
    for j in range(8):
        a.lab("L_ore%d" % j)
        a.e("s_sub_u32 s%d, s%d, 1" % (sB, sB))
        a.e("s_cbranch_scc1 L_ogive%d" % j)
        a.e("s_waitcnt vmcnt(0)")
        for i in range(j, 8): a.e(a.oload(i))
        a.e("s_branch L_ochk%d" % j)
        a.lab("L_ogive%d" % j)
        a.e("s_mov_b32 s%d, 0" % sB)
        a.e("s_branch L_ook%d" % j)

def fallback(a):
    a.lab("L_fb")
    m = vFR + 4
    a.e("v_mov_b32 %s, 0xff800000" % v(m))
    a.e("s_mov_b32 s%d, 0" % sA)
    a.lab("L_fb1")
    a.e("buffer_load_dwordx4 %s, %s, %s, s%d offen sc1" % (v(vKF, 4), v(vL16), srd(SKV), sA))
    a.e("s_waitcnt vmcnt(0)")
    a.e(mfma(vS, vKF, vQ, None))
    a.e("s_add_u32 s%d, s%d, 2048" % (sA, sA))
    a.e("s_nop 11")
    for i in range(8): a.e("v_max3_f32 %s, %s, %s, %s" % (v(m), v(m), v(vS + 2 * i), v(vS + 2 * i + 1)))
    a.e("s_cmp_lt_u32 s%d, 0x20000" % sA)
    a.e("s_cbranch_scc1 L_fb1")
    a.e("v_mov_b32 %s, %s" % (v(m + 1), v(m)))
    a.e("s_nop 1")
    a.e("v_permlane32_swap_b32 %s, %s" % (v(m), v(m + 1)))
    a.e("s_nop 1")
    a.e("v_max_f32 %s, %s, %s" % (v(m), v(m), v(m + 1)))
    for i in range(16): a.e("v_sub_f32 %s, 0, %s" % (v(vS + 16 + i), v(m)))
    for i in range(16): a.e("v_mov_b32 %s, 0" % v(vO + i))
    a.e("s_mov_b32 s%d, 0" % sA)
    a.lab("L_fb2")
    a.e("s_add_u32 s%d, s%d, 0x%x" % (sB, sA, 63 * 2048))
    a.e("s_and_b32 s%d, s%d, 0x1ffff" % (sB, sB))
    a.e("buffer_load_dwordx4 %s, %s, %s, s%d offen sc1" % (v(vKF, 4), v(vL16), srd(SKV), sB))
    a.e("s_add_u32 s%d, s%d, 2048" % (sB, sA))
    a.e("s_and_b32 s%d, s%d, 0x1ffff" % (sB, sB))
    a.e("s_mov_b64 exec, %s" % sp(sVM))
    a.e("buffer_load_dwordx4 %s, %s, %s, s%d offen offset:1024 sc1" % (v(vV, 4), v(vL16), srd(SKV), sA))
    a.e("buffer_load_dwordx4 %s, %s, %s, s%d offen offset:1280 sc1" % (v(vV + 4, 4), v(vL16), srd(SKV), sB))
    a.e("s_mov_b64 exec, -1")
    a.e("s_waitcnt vmcnt(0)")
    a.e(mfma(vS, vKF, vQ, vS + 16))
    a.e("s_add_u32 s%d, s%d, 2048" % (sA, sA))
    a.e("s_nop 11")
    for i in range(16): a.e("v_exp_f32 %s, %s" % (v(vS + i), v(vS + i)))
    for i in range(8): a.e("v_cvt_pk_bf16_f32 %s, %s, %s" % (v(vP + i), v(vS + 2 * i), v(vS + 2 * i + 1)))
    a.e("s_nop 1")
    a.e(mfma(vO, vV, vP, vO))
    a.e(mfma(vO, vV + 4, vP + 4, vO))
    a.e("s_cmp_lt_u32 s%d, 0x20000" % sA)
    a.e("s_cbranch_scc1 L_fb2")
    a.e("s_nop 11")
    a.e("v_rcp_f32 %s, %s" % (v(vFR + 2), v(vO + 8)))
    a.e("s_branch L_fbret")

def build():
    a = Asm()
    prologue(a)
    phase1_F(a)
    transition(a, "B")
    tail(a)
    a.l += a.ool
    transition(a, "A")
    phase1_L(a)
    fallback(a)
    a.lab("L_codeend")
    il = a.l.index("L_light:")
    for i, x in enumerate(a.l):
        if x.endswith(" lds") and "sc1" not in x and " nt" not in x:
            if (Opt.ntx & 4 and (srd(SWD) in x or srd(SWO) in x)) or (Opt.ntx & 8 and i > il):
                a.l[i] = x[:-4] + " nt lds"
    head = open("cdna_kernels/%s.s.ref" % NAME).read().split("\n")
    hdr = [l for l in head if l.startswith(";") and "@launch" not in l and "Override" not in l and "grid=" not in l]
    out = hdr + ["; @launch grid=(256,1,1) block=(512,1,1) lds=%d" % LDS_BYTES,
                 '.amdgcn_target "amdgcn-amd-amdhsa--gfx950"', ".text", ".globl %s_kernel" % NAME, ".p2align 8",
                 ".type %s_kernel,@function" % NAME,
                 ".set CODE_PF_MAX, L_codeend - L_nopf - 4" if Opt.code_pf else "",
                 "%s_kernel:" % NAME]
    out += ["; mapmode %d" % Opt.mapmode, "; xrot %d" % Opt.xrot]
    out += a.l
    out += ['.section .rodata,"a"', ".p2align 6", ".amdhsa_kernel %s_kernel" % NAME,
            "  .amdhsa_next_free_vgpr %d" % NV, "  .amdhsa_next_free_sgpr 102", "  .amdhsa_accum_offset 256",
            "  .amdhsa_group_segment_fixed_size 0", "  .amdhsa_kernarg_size 104", "  .amdhsa_user_sgpr_count 2",
            "  .amdhsa_user_sgpr_kernarg_segment_ptr 1", "  .amdhsa_system_sgpr_workgroup_id_x 1", ".end_amdhsa_kernel", ""]
    return "\n".join(out)

if __name__ == "__main__":
    path = sys.argv[1]
    for kv in sys.argv[2:]:
        k, val = kv.split("=")
        cur = getattr(Opt, k)
        setattr(Opt, k, val if isinstance(cur, str) else type(cur)(int(val)))
    open(path, "w").write(build())
```

```python
import sys, struct, math

NAME = "gated_mix__grouped_kv_mqa__geglu_ffn__prompt"

class Opt:
    diag = 0
    mapmode = 1
    force_fb = False
    out_pol = ""
    code_pf = True
    xrot = 0
    pregap = 0
    tpos = 1
    cskew = 0
    tch = 12
    tlb = 6
    olate = 1
    hrot = 0
    tbar = 0
    hord = 1
    cmap = 1
    kqx = 0
    oearly = 8
    conc = 1
    ghx = 1
    qa = "088888"
    qb = "577777"
    npre = 8
    stagger = 1
    rper = 2
    dma1 = 17
    kprio = 0
    dma0 = 8
    npd = 4
    kdiag = 0
    fillpre = 0
    fillper = 4
    gsc = 2
    sched = 0
    xmask = 1
    ntx = 0
    touch = 2
    rotg = 0
    rotm = 0
    startbar = 1
    pvz = 1
    pin = -1
    pin_ns = 60000
    probe = -1
    probe_x = -1
    probe_mul = 10
    probe_w = -1
    probe_l = 0

def f2u(x): return struct.unpack("<I", struct.pack("<f", x))[0]

WS_KV = 0
WS_G = 128 * 1024
WS_HFLAG = 192 * 1024
WS_OF = 1 << 20
WS_HF = 4 << 20
WS_STAMP = 12 << 20
WS_SIZE = 16 << 20
K1 = 1024
L_G, L_U, L_X, L_WQ = 0, 48 * K1, 96 * K1, 144 * K1
L_QX = 32 * K1
L_WD, L_WO, L_KV = 0, 64 * K1, 128 * K1
LL_X, LL_W, LL_GATE, LL_WQ = 0, 128 * K1, 144 * K1, 128 * K1
LDS_BYTES = 160 * K1

SX, SWG, SWU, SWQ, SWS, SWD, SWO, SOUT, SDBG, SWKV, SGATE, SKV = 4, 8, 12, 16, 20, 24, 28, 32, 36, 40, 44, 64
SWV = 72
sTMPP = 48
sW, sHI, sLO, sG, sM, sT, sCB = 50, 51, 52, 53, 54, 55, 56
sWK = 57
sWH = 58
sK64 = 59
sVM = 60
sRET = 62
sA, sB, sC, sD = 68, 69, 70, 71
sOFFW, sOFFQ, sCH, sXP = 72, 73, 74, 75
sHOFF, sWDOFF, sKVOFF, sM0WD, sM0KV, sCNT = 72, 73, 74, 75, 76, 77
sOST, sOLD, sHST = 78, 79, 80
sHST2 = 3
sRX, sRW, sM0B = 40, 41, 42
sKQ = 76
sHP = sM
sFREE = 81
sSTAMP = 82

def srd(b): return "s[%d:%d]" % (b, b + 3)
def sp(b): return "s[%d:%d]" % (b, b + 1)
def v(b, n=1): return "v%d" % b if n == 1 else "v[%d:%d]" % (b, b + n - 1)

vL16 = 1
vT0, vT1, vT2, vT3 = 2, 3, 4, 5
vGP, vGC = 6, 7
vKVA = 8
vWDA = 9
vWDV = 10
vONE = 11
vZERO = 12
vFLA = 13
vPOLL = 14
vGA = 15
vQ = 16
vK0 = 20
vV1L = 24
vE = 28
vP = 32
vV = 40
vO = 56
vD = 72
vACC = 104
vS = 104
vH = 136
vAQ = vP
vF1 = 168
vKF = 168
vWF = 176
vFR = 184
vLX = 224
vXA = 240
vWA = 244
vQA = 248
vDX, vDG, vDQ = 249, 250, 251
vC0 = 252
vTID = 255
vHA = 254
NV = 256

class Asm:
    def __init__(self):
        self.l = []
        self.vm = []
        self.nstamp = 0
    def e(self, s):
        for x in s.split("\n"):
            x = x.strip()
            if x: self.l.append("    " + x)
    def lab(self, s): self.l.append(s + ":")
    def vmop(self, s, tag):
        self.e(s); self.vm.append(tag)
    def vmn(self, tags):
        if isinstance(tags, str): tags = [tags]
        last = -1
        for i, t in enumerate(self.vm):
            if t in tags: last = i
        return None if last < 0 else len(self.vm) - 1 - last
    def waitvm(self, tags, lgkm=False):
        n = self.vmn(tags)
        if n is None:
            if lgkm: self.e("s_waitcnt lgkmcnt(0)")
            return
        assert n < 64
        self.e("s_waitcnt vmcnt(%d)%s" % (n, " lgkmcnt(0)" if lgkm else ""))
        self.vm = self.vm[len(self.vm) - n:] if n else []
    def wait0(self, lgkm=False):
        self.e("s_waitcnt vmcnt(0)%s" % (" lgkmcnt(0)" if lgkm else "")); self.vm = []
    def stamp(self, i, real=False):
        if Opt.probe == i:
            self.e("s_waitcnt lgkmcnt(0)")
            self.e("s_memrealtime %s" % sp(sSTAMP + 4))
            self.e("s_waitcnt lgkmcnt(0)")
        if Opt.pin == i:
            self.nstamp += 1
            self.e("s_waitcnt lgkmcnt(0)")
            self.e("s_cselect_b32 s%d, 1, 0" % (sSTAMP + 5))
            self.lab("L_pin%d" % self.nstamp)
            self.e("s_memrealtime s[0:1]")
            self.e("s_waitcnt lgkmcnt(0)")
            self.e("s_sub_u32 s0, s0, s%d" % sSTAMP)
            self.e("s_cmp_lt_u32 s0, %d" % (Opt.pin_ns // 10))
            self.e("s_cbranch_scc1 L_pin%d" % self.nstamp)
            self.e("s_cmp_lg_u32 s%d, 0" % (sSTAMP + 5))
        if Opt.diag and not Opt.kdiag and (Opt.diag == 1 or i == 9):
            self.e("s_waitcnt lgkmcnt(0)")
            self.e("s_memtime %s" % sp(sSTAMP + 2 * i))
            self.e("s_memrealtime %s" % sp(sRET))
            self.e("s_waitcnt lgkmcnt(0)")
            self.e("s_mov_b32 s%d, s%d" % (sSTAMP + 2 * i + 1, sRET))

def astamp(a, i):
    if Opt.diag and Opt.kdiag == 2: a.e("s_memtime %s" % sp(sSTAMP + 2 * i))

def kstamp(a, i):
    if Opt.probe == 18 + i: a.e("s_memrealtime %s" % sp(sSTAMP + 4))
    if Opt.diag and Opt.kdiag == 1: a.e("s_memtime %s" % sp(sSTAMP + 2 * i))

def mfma(d, a, b, c):
    return "v_mfma_f32_32x32x16_bf16 %s, %s, %s, %s" % (v(d, 16), v(a, 4), v(b, 4), "0" if c is None else v(c, 16))
def mfma16(d, a, b, c):
    return "v_mfma_f32_16x16x32_bf16 %s, %s, %s, %s" % (v(d, 4), v(a, 4), v(b, 4), "0" if c is None else v(c, 4))
def rd128(d, a, off):
    assert 0 <= off < 65536
    return "ds_read_b128 %s, %s offset:%d" % (v(d, 4), v(a), off)
def rdtr(d, a, off):
    assert 0 <= off < 65536
    return "ds_read_b64_tr_b16 %s, %s offset:%d" % (v(d, 2), v(a), off)

def interleave(mf, fill, per=2):
    out = []
    fill = list(fill)
    for i, m in enumerate(mf):
        out.append(m)
        if i < len(mf) - 1:
            out += fill[:per]; fill = fill[per:]
    return out + fill

def srd_words(a, regs):
    sizes = {SX: 2048 * 1024, SWG: 512 * 3584, SWU: 512 * 3584, SWQ: 512 * 1024, SWS: WS_SIZE, SWKV: 16384, SWV: 16384,
             SGATE: 1024, SWD: 1792 * 1024, SWO: 512 * 1024, SOUT: 2048 * 1024, SDBG: 256, SKV: 128 * 1024}
    for reg in regs:
        a.e("s_mov_b32 s%d, 0x%x" % (reg + 2, sizes[reg]))
        a.e("s_mov_b32 s%d, 0x20000" % (reg + 3))

def ptr_loads(a, lst):
    for reg, off in lst: a.e("s_load_dwordx2 %s, s[0:1], %d" % (sp(reg), off))

def prologue(a):
    if Opt.diag or Opt.pin >= 0 or Opt.probe >= 0:
        a.e("s_memrealtime %s" % sp(sSTAMP))
        if Opt.diag: a.e("s_memtime %s" % sp(sSTAMP + 2))
    ptr_loads(a, ((SX, 0), (SWG, 48), (SWU, 56), (SWQ, 8), (SGATE, 72)))
    if Opt.probe == 1: a.stamp(1)
    a.e("v_lshrrev_b32 v2, 6, v0")
    if Opt.code_pf:
        a.e("s_getpc_b64 %s" % sp(sRET))
        a.lab("L_nopf")
        a.e("s_and_b32 s%d, s2, -8" % sA)
        a.e("v_add_lshl_u32 v3, v2, s%d, 7" % sA)
        a.e("v_readfirstlane_b32 s%d, v2" % sW)
        a.e("v_min_u32 v3, CODE_PF_MAX, v3")
        a.e("global_load_dword %s, v3, %s" % (v(vPOLL), sp(sRET)))
    else:
        a.e("s_nop 0")
        a.e("v_readfirstlane_b32 s%d, v2" % sW)
    a.e("s_cmpk_ge_u32 s2, 256")
    a.e("s_cbranch_scc1 L_end")
    a.e("s_and_b32 s%d, s2, 1" % sD)
    a.e("s_bfe_u32 s%d, s2, 0x30003" % sA)
    a.e("s_lshl3_add_u32 s%d, s%d, s%d" % (sG, sD, sA))
    a.e("s_bfe_u32 s%d, s2, 0x20001" % sA)
    a.e("s_lshr_b32 s%d, s2, 6" % sB)
    a.e("s_lshl2_add_u32 s%d, s%d, s%d" % (sM, sA, sB))
    a.e("s_lshl_b32 s%d, s%d, 10" % (sWK, sW))
    a.e("s_cmp_ge_u32 s%d, 14" % sM)
    a.e("s_cbranch_scc1 L_light")

def xvoff(a, t):
    a.e("v_lshrrev_b32 v2, 4, %s" % v(t))
    a.e("v_xor_b32 v2, v2, %s" % v(t))
    a.e("v_and_b32 v2, 7, v2")
    a.e("s_lshl_b32 s%d, s%d, 17" % (sA, sG))
    a.e("v_lshl_add_u32 v2, v2, 4, s%d" % sA)
    a.e("v_lshrrev_b32 v3, 3, %s" % v(t))
    a.e("v_lshl_add_u32 %s, v3, 10, v2" % v(vDX))

def setup_ids(a):
    ptr_loads(a, ((SWS, 96), (SKV, 96), (SDBG, 88), (SWD, 64), (SWO, 32), (SOUT, 80)))
    a.e("v_and_b32 v0, 63, v0")
    a.e("v_lshlrev_b32 %s, 4, v0" % v(vL16))
    a.e("s_andn2_b32 s%d, 1, s2" % sA)
    a.e("s_bfe_u32 s%d, s2, 0x20001" % sB)
    a.e("s_lshl2_add_u32 s%d, s%d, s%d" % (sA, sA, sB))
    a.e("s_bfe_u32 s%d, s2, 0x20003" % sB)
    a.e("s_lshl2_add_u32 s%d, s%d, s%d" % (sT, sA, sB))
    a.e("s_lshr_b32 s%d, s2, 5" % sCB)

def setup_rd(a):
    a.e("s_lshr_b32 s%d, s%d, 2" % (sHI, sW))
    a.e("s_and_b32 s%d, s%d, 3" % (sLO, sW))
    a.e("v_and_b32 v2, 15, v0")
    a.e("v_lshrrev_b32 v3, 4, v0")
    a.e("v_bfe_u32 v4, v0, 1, 3")
    a.e("v_xor_b32 v4, v4, v3")
    a.e("v_lshlrev_b32 v4, 4, v4")
    a.e("v_lshl_add_u32 %s, v2, 7, v4" % v(vXA))
    a.e("v_bfe_u32 v2, v0, 2, 2")
    a.e("v_and_b32 v4, 3, v0")
    a.e("v_lshl_add_u32 %s, v3, 3, v2" % v(vQA))
    a.e("v_lshlrev_b32 %s, 6, %s" % (v(vQA), v(vQA)))
    a.e("v_xor_b32 v5, s%d, v3" % sHI)
    a.e("v_and_b32 v5, 1, v5")
    a.e("v_lshl_add_u32 %s, v5, 5, %s" % (v(vQA), v(vQA)))
    a.e("v_lshl_add_u32 %s, v4, 3, %s" % (v(vQA), v(vQA)))

def setup_oclr(a):
    srd_words(a, [SWS, SKV, SDBG])
    a.e("s_mov_b32 s%d, 0xffff" % sVM)
    a.e("s_mov_b32 s%d, 0xffff" % (sVM + 1))
    a.e("s_lshl_b32 s%d, s%d, 2" % (sA, sG))
    a.e("s_add_u32 s%d, s%d, s%d" % (sA, sA, sLO))
    a.e("s_lshl_b32 s%d, s%d, 5" % (sB, sA))
    a.e("s_lshl_b32 s%d, s%d, 1" % (sC, sHP))
    a.e("s_add_u32 s%d, s%d, s%d" % (sB, sB, sC))
    a.e("s_add_u32 s%d, s%d, s%d" % (sB, sB, sHI))
    a.e("s_lshl_b32 s%d, s%d, 10" % (sB, sB))
    a.e("s_add_u32 s%d, s%d, 0x%x" % (sOST, sB, WS_OF))
    for i in range(4): a.e("v_mov_b32 %s, -1" % v(vQ + i))
    a.vmop("buffer_store_dwordx4 %s, %s, %s, s%d offen sc1" % (v(vQ, 4), v(vL16), srd(SWS), sOST), "oclr")
    a.e("v_mov_b32 %s, 1" % v(vONE))
    a.e("v_mov_b32 %s, 0" % v(vZERO))
    a.e("v_and_b32 %s, 31, v0" % v(vGA))
    a.e("v_lshlrev_b32 %s, 2, %s" % (v(vGA), v(vGA)))

def collect(fn):
    t = Asm(); t.marks = {}
    def vmop(s_, tag):
        t.e(s_); t.marks[len(t.l) - 1] = tag
    t.vmop = vmop
    fn(t)
    return [(x, t.marks.get(i)) for i, x in enumerate(t.l)]
def put(a, items):
    for x, tag in items:
        if tag: a.vmop(x, tag)
        else: a.e(x)

def setup_attn(a):
    srd_words(a, [SWD, SWO, SOUT])
    a.e("s_lshl_b32 s%d, s%d, 2" % (sA, sG))
    a.e("s_add_u32 s%d, s%d, s%d" % (sA, sA, sLO))
    a.e("s_mul_i32 s%d, s%d, 112" % (sB, sA))
    a.e("s_lshl_b32 s%d, s%d, 3" % (sC, sM))
    a.e("s_add_u32 s%d, s%d, s%d" % (sB, sB, sC))
    a.e("s_lshl_b32 s%d, s%d, 2" % (sC, sHI))
    a.e("s_add_u32 s%d, s%d, s%d" % (sB, sB, sC))
    a.e("s_and_b32 s%d, s%d, 1" % (sC, sLO))
    a.e("s_lshl_b32 s%d, s%d, 1" % (sC, sC))
    a.e("s_add_u32 s%d, s%d, s%d" % (sB, sB, sC))
    a.e("s_lshl_b32 s%d, s%d, 10" % (sB, sB))
    a.e("s_add_u32 s%d, s%d, 0x%x" % (sHST, sB, WS_HF))
    a.e("s_mul_i32 s%d, s%d, %d" % (sC, sC, 112 * 1024))
    a.e("s_sub_u32 s%d, %d, s%d" % (sC, 112 * 1024, sC))
    a.e("s_add_u32 s%d, s%d, s%d" % (sHST2, sHST, sC))
    a.e("v_bfe_u32 v2, v0, 2, 2")
    a.e("v_lshrrev_b32 v3, 5, v0")
    a.e("v_lshl_add_u32 v2, v3, 2, v2")
    a.e("v_lshlrev_b32 v2, 6, v2")
    a.e("v_bfe_u32 v3, v0, 4, 1")
    a.e("v_lshl_add_u32 v2, v3, 5, v2")
    a.e("v_and_b32 v3, 3, v0")
    a.e("v_lshl_add_u32 v2, v3, 3, v2")
    a.e("s_lshr_b32 s%d, s%d, 1" % (sA, sW))
    a.e("s_lshl_b32 s%d, s%d, 11" % (sA, sA))
    a.e("v_add_u32 %s, s%d, v2" % (v(vWDA), sA))
    a.e("v_add_u32 %s, 0x%x, %s" % (v(vKVA), L_KV, v(vL16)))
    a.e("v_bfe_u32 v2, v0, 2, 3")
    a.e("v_lshlrev_b32 v2, 10, v2")
    a.e("v_lshrrev_b32 v3, 5, v0")
    a.e("v_lshl_add_u32 v2, v3, 6, v2")
    a.e("v_and_b32 v3, 3, v0")
    a.e("v_lshl_add_u32 v2, v3, 4, v2")
    a.e("s_lshl_b32 s%d, s%d, 7" % (sB, sCB))
    a.e("v_add_u32 %s, s%d, v2" % (v(vWDV), sB))
    a.e("v_min_u32 v2, 13, v0")
    a.e("v_lshlrev_b32 v2, 7, v2")
    a.e("s_lshr_b32 s%d, s%d, 1" % (sA, sT))
    a.e("s_lshl_b32 s%d, s%d, 11" % (sA, sA))
    a.e("s_add_u32 s%d, s%d, 0x%x" % (sA, sA, WS_HFLAG))
    a.e("v_add_u32 %s, s%d, v2" % (v(vFLA), sA))
    a.e("s_lshl_b32 s%d, s%d, 1" % (sA, sT))
    a.e("s_and_b32 s%d, s%d, 1" % (sB, sW))
    a.e("s_add_u32 s%d, s%d, s%d" % (sA, sA, sB))
    a.e("s_lshl_b32 s%d, s%d, 15" % (sB, sA))
    a.e("s_lshr_b32 s%d, s%d, 1" % (sKQ, sW))
    if Opt.kqx:
        a.e("s_lshl_b32 s%d, s%d, 1" % (sC, sCB))
        a.e("s_and_b32 s%d, s%d, 2" % (sC, sC))
        a.e("s_xor_b32 s%d, s%d, s%d" % (sKQ, sKQ, sC))
    a.e("s_lshl_b32 s%d, s%d, 13" % (sC, sKQ))
    a.e("s_add_u32 s%d, s%d, s%d" % (sB, sB, sC))
    a.e("s_add_u32 s%d, s%d, 0x%x" % (sOLD, sB, WS_OF))
    if Opt.pvz:
        a.e("s_mov_b32 s%d, 0x110000" % sA)
        a.e("s_mov_b32 s%d, 0x110000" % sB)
        a.e("v_mov_b32 v3, 0x3f803f80")
        a.e("v_cndmask_b32 v2, 0, v3, %s" % sp(sA))
    else:
        a.e("v_mov_b32 v2, 0x3f803f80")
    for i in range(16): a.e("v_mov_b32 %s, v2" % v(vV + i))
    for i in range(4): a.e("v_mov_b32 %s, v2" % v(vV1L + i))
    for i in range(4): a.e("v_mov_b32 %s, 0" % v(vE + i))
    a.e("v_lshrrev_b32 v2, 4, v0")
    a.e("v_lshl_add_u32 %s, v2, 8, %s" % (v(vHA), v(vL16)))
    for i in range(16): a.e("v_mov_b32 %s, 0" % v(vO + i))
    for i in range(32): a.e("v_mov_b32 %s, 0" % v(vD + i))
    c0 = -2.0 * math.sqrt(2.0 / math.pi) * math.log2(math.e)
    a.e("v_mov_b32 %s, 0x%x" % (v(vC0), f2u(c0)))
    a.e("v_mov_b32 %s, 0x%x" % (v(vC0 + 1), f2u(c0 * 0.044715)))

def kv_first_loads(a, quartet=False):
    it = []
    for o in (range(0, 16384, 4096) if quartet else range(0, 16384, 8192)):
        b = sWH if quartet else sWK
        it.append(("s_add_u32 m0, s%d, 0x%x\ns_add_u32 s%d, s%d, 0x%x\nbuffer_load_dwordx4 %s, %s, s%d offen sc1 lds"
                   % (b, L_KV + o, sA, b, o, v(vL16), srd(SKV), sA), "kv%d" % (o >> 13)))
    it.append(("s_mov_b32 s%d, 0x%x\nbuffer_load_dwordx4 %s, %s, %s, s%d offen sc1"
               % (sA, 63 * 2048, v(vK0, 4), v(vL16), srd(SKV), sA), "k0"))
    it.append(("s_mov_b64 exec, %s\nbuffer_load_dwordx4 %s, %s, %s, 0 offen offset:%d sc1\ns_mov_b64 exec, -1"
               % (sp(sVM), v(vV1L, 4), v(vL16), srd(SKV), 1024 + 256), "k0"))
    it.append(("s_lshl_b32 s%d, s%d, 2\ns_add_u32 s%d, s%d, s%d\ns_lshl_b32 s%d, s%d, 7\ns_add_u32 s%d, s%d, 0x%x\n"
               "buffer_load_dword %s, %s, %s, s%d offen sc1"
               % (sA, sG, sA, sA, sLO, sA, sA, sA, sA, WS_G, v(vGP), v(vGA), srd(SWS), sA), "k0"))
    it.append(("s_lshl_b32 s%d, s%d, 1\ns_and_b32 s%d, s%d, 1\ns_add_u32 s%d, s%d, s%d\ns_lshl_b32 s%d, s%d, 7\ns_add_u32 s%d, s%d, 0x%x\n"
               "buffer_load_dword %s, %s, %s, s%d offen sc1"
               % (sA, sT, sB, sW, sA, sA, sB, sA, sA, sA, sA, WS_G, v(vGC), v(vGA), srd(SWS), sA), "k0"))
    return it

def spin_counter(a, name, first_loaded, wave=0):
    a.e("s_cmp_lg_u32 s%d, %d" % (sW, wave))
    a.e("s_cbranch_scc1 L_%s_done" % name)
    a.e("s_mov_b32 s%d, 0x4000" % sB)
    if first_loaded: a.e("s_branch L_%s_chk" % name)
    a.lab("L_%s_re" % name)
    a.e("buffer_load_dword %s, off, %s, 0 sc1" % (v(vPOLL), srd(SDBG)))
    a.e("s_waitcnt vmcnt(0)")
    a.lab("L_%s_chk" % name)
    a.e("v_readfirstlane_b32 s%d, %s" % (sA, v(vPOLL)))
    a.e("s_cmp_ge_u32 s%d, 32" % sA)
    a.e("s_cbranch_scc1 L_%s_done" % name)
    a.e("s_sleep 4")
    a.e("s_sub_u32 s%d, s%d, 1" % (sB, sB))
    a.e("s_cmp_lg_u32 s%d, 0" % sB)
    a.e("s_cbranch_scc1 L_%s_re" % name)
    a.lab("L_%s_done" % name)

def phase1_F(a):
    SCHED = {1: ["01423567", "10253467", "23016457", "32104756"],
             2: ["02134657", "01324576", "10243567", "10235467"],
             3: ["01324657", "01243576", "12035467", "20134567"],
             5: ["01243567", "10325467", "23014657", "32104576"],
             6: ["01243567", "10325467", "01234657", "10324576"],
             4: ["02143657", "10325476", "02143657", "10325476"]}
    tabs = SCHED[Opt.sched] if Opt.sched else ["".join(str(c ^ (p & Opt.xmask)) for c in range(8)) for p in range(4)]
    for t_ in tabs: assert sorted(t_) == list("01234567")
    num = [int(t_[::-1], 16) for t_ in tabs]
    def table(a):
        a.e("s_add_u32 s%d, s%d, s%d" % (sA, sG, sHP))
        a.e("s_mov_b32 s%d, 0x%x" % (sXP, num[0]))
        a.e("s_mov_b32 s%d, 0x%x" % (sB, num[2]))
        a.e("s_bitcmp1_b32 s%d, 0" % sA)
        a.e("s_cselect_b32 s%d, 0x%x, s%d" % (sXP, num[1], sXP))
        a.e("s_cselect_b32 s%d, 0x%x, s%d" % (sB, num[3], sB))
        a.e("s_bitcmp1_b32 s%d, 1" % sA)
        a.e("s_cselect_b32 s%d, s%d, s%d" % (sXP, sB, sXP))
        if Opt.ghx:
            a.e("s_bitcmp1_b32 s%d, 3" % sG)
            a.e("s_cselect_b32 s%d, 0x44444444, 0" % sB)
            a.e("s_xor_b32 s%d, s%d, s%d" % (sXP, sXP, sB))
    fo, fw = {"0000": (0, 0), "0101": (0, 1), "0011": (1, 1), "0123": (0, 2)}["".join(t_[0] for t_ in tabs)]
    a.e("s_add_u32 s%d, s%d, s%d" % (sA, sG, sHP))
    a.e("s_bfe_u32 s%d, s%d, 0x%x" % (sCH, sA, fw << 16 | fo))
    if Opt.ghx: a.e("s_lshl2_add_u32 s%d, s%d, s%d" % (sCH, sD, sCH))
    a.e("s_and_b32 s%d, s%d, 0xc00" % (sWH, sWK))
    a.e("v_and_b32 %s, 0xff, v0" % v(vTID))

    def wvoff(a):
        a.e("v_lshrrev_b32 v2, 4, %s" % v(vTID))
        a.e("v_lshrrev_b32 v3, 5, %s" % v(vTID))
        a.e("v_bfi_b32 v3, 3, v2, v3")
        a.e("v_lshlrev_b32 v3, 1, v3")
        a.e("v_xor_b32 v3, v3, %s" % v(vTID))
        a.e("v_and_b32 v3, 15, v3")
        a.e("s_lshl_b32 s%d, s%d, 8" % (sA, sM))
        a.e("v_lshl_add_u32 v3, v3, 4, s%d" % sA)
        a.e("v_mul_u32_u24 v2, 3584, v2")
        a.e("v_add_u32 %s, v2, v3" % v(vDG))
    def qvoff(a):
        a.e("v_lshrrev_b32 v2, 4, %s" % v(vTID))
        a.e("v_and_b32 v2, 2, v2")
        a.e("v_xor_b32 v2, v2, %s" % v(vTID))
        a.e("v_and_b32 v2, 3, v2")
        a.e("s_lshl_b32 s%d, s%d, 6" % (sA, sHP))
        a.e("v_lshl_add_u32 v2, v2, 4, s%d" % sA)
        a.e("v_lshrrev_b32 v3, 2, %s" % v(vTID))
        a.e("v_lshl_add_u32 %s, v3, 10, v2" % v(vDQ))
    def wsrd(a):
        srd_words(a, [SWG])
        a.e("s_mov_b64 %s, %s" % (sp(SWU + 2), sp(SWG + 2)))

    if Opt.hrot:
        ORDER = [("q", 0)] + [(t_, 2 * h_ + j) for h_ in range(2) for t_, j in (("x", 0), ("x", 1), ("g", 0), ("u", 0), ("g", 1), ("u", 1))]
    else:
        ORDER = [("q", 0)] + [("x", j) for j in range(4)] + [(t_, j) for j in range(4) for t_ in "gu"]
    def block(items):
        out = []; lastc = None; lastw = None
        for c, kind, j in items:
            s = c % 3; pre = []
            if c != lastc:
                if c: pre.append("s_bfe_u32 s%d, s%d, 0x%x" % (sCH, sXP, 0x30000 + 4 * c))
                lastc = c; lastw = None
            fam = "w" if kind in "gu" else kind
            rot = Opt.hrot and fam != "q"
            if lastw is None or lastw[0] != fam or (rot and lastw[1] >> 1 != j >> 1):
                pre.append({"q": "s_lshl_b32 s%d, s%d, 16" % (sOFFW, sCH), "x": "s_lshl_b32 s%d, s%d, 7" % (sOFFW, sCH),
                            "w": "s_mul_i32 s%d, s%d, %d" % (sOFFW, sCH, 64 * 3584)}[fam])
                if rot: pre.append("s_%s_u32 s%d, s%d, s%d" % ("sub" if j >> 1 else "add", sOFFW, sOFFW, sRX if fam == "x" else sRW))
                lastw = (fam, 0)
            if lastw[1] != j:
                pre.append("s_add_u32 s%d, s%d, 0x%x" % (sOFFW, sOFFW, (j - lastw[1]) * (0x8000 if fam == "x" else 16 * 3584)))
                lastw = (fam, j)
            m0c, vo, rs = {"q": (L_WQ + s * 4096, vDQ, SWQ), "x": (L_X + s * 16384 + j * 4096, vDX, SX),
                           "g": (L_G + s * 16384 + j * 4096, vDG, SWG), "u": (L_U + s * 16384 + j * 4096, vDG, SWU)}[kind]
            nt = " nt" if Opt.ntx & (1 if rs == SX else 2) else ""
            out.append(("s_add_u32 m0, s%d, 0x%x\n%s\nbuffer_load_dwordx4 %s, %s, s%d offen%s lds"
                        % ((sM0B + (j >> 1)) if rot else sWH, m0c, "\n".join(pre) or "s_nop 0", v(vo), srd(rs), sOFFW, nt), "c%d" % c))
        return out
    def part(c, role): return [(c, k_, j) for k_, j in ORDER if (k_ in "gu") == (role == "A")]

    def rdsetup(a):
        setup_rd(a)
        a.e("v_lshl_add_u32 %s, v3, 3, v2" % v(vWA))
        a.e("v_lshlrev_b32 %s, 8, %s" % (v(vWA), v(vWA)))
        a.e("v_lshl_add_u32 %s, v4, 3, %s" % (v(vWA), v(vWA)))
        a.e("v_and_b32 v5, 1, v3")
        a.e("v_lshl_add_u32 v2, v5, 2, v2")
        a.e("s_lshl_b32 s%d, s%d, 2" % (sA, sHI))
        a.e("s_and_b32 s%d, s%d, 1" % (sB, sLO))
        a.e("s_lshl_b32 s%d, s%d, 1" % (sB, sB))
        a.e("s_add_u32 s%d, s%d, s%d" % (sA, sA, sB))
        a.e("v_xor_b32 v2, s%d, v2" % sA)
        a.e("v_lshl_add_u32 %s, v2, 5, %s" % (v(vWA), v(vWA)))
        a.e("v_xor_b32 %s, 32, %s" % (v(vWA + 1), v(vWA)))
        a.e("v_add_u32 %s, 0x%x, %s" % (v(vWA + 2), L_U - L_G, v(vWA)))
        a.e("v_add_u32 %s, 0x%x, %s" % (v(vWA + 3), L_U - L_G, v(vWA + 1)))
        a.e("s_lshl_b32 s%d, s%d, 12" % (sA, sLO))
        a.e("s_add_u32 s%d, s%d, 0x%x" % (sA, sA, L_X))
        a.e("v_add_u32 %s, s%d, %s" % (v(vXA), sA, v(vXA)))
        a.e("v_xor_b32 %s, 0x1000, %s" % (v(vXA + 1), v(vXA)))
        a.e("v_xor_b32 %s, 64, %s" % (v(vXA + 2), v(vXA)))
        a.e("v_xor_b32 %s, 64, %s" % (v(vXA + 3), v(vXA + 1)))
        a.e("v_add_u32 %s, 0x%x, %s" % (v(vQA), L_WQ, v(vQA)))

    a.e("s_cmp_ge_u32 s%d, 4" % sW)
    a.e("s_cbranch_scc1 L_setB")
    late = collect(setup_oclr) + collect(setup_attn)
    words = collect(lambda t: srd_words(t, [SWS, SKV, SDBG, SWD, SWO, SOUT]))
    late = [x for x in late if x not in words]
    oclr = [x for x in late if x[1] == "oclr"]
    if Opt.olate: late = [x for x in late if x[1] != "oclr"]
    else: oclr = []
    words += [("v_mov_b32 %s, 0" % v(r_), None) for r_ in (vGA, vWDV, vFLA, vHA)]
    st = collect(rdsetup) + words + late[:Opt.fillpre]
    fills = {"A": late[Opt.fillpre:], "B": late[Opt.fillpre:]}
    vms = {}
    wsrd(a); wvoff(a)
    a.e("s_waitcnt lgkmcnt(0)")
    a.stamp(2)
    put(a, block(part(0, "A")))
    a.e("s_branch L_setA")
    vms["A"] = a.vm; a.vm = []
    a.lab("L_setB")
    srd_words(a, [SX]); xvoff(a, vTID)
    a.e("s_waitcnt lgkmcnt(0)")
    a.stamp(2)
    put(a, block(part(0, "B")[1:]))
    srd_words(a, [SWQ]); qvoff(a)
    put(a, block(part(0, "B")[:1]))
    vms["B"] = a.vm
    for role in "BA":
        a.vm = vms[role]
        if role == "A": a.lab("L_setA")
        table(a)
        setup_ids(a)
        if role == "A": srd_words(a, [SX, SWQ])
        else: wsrd(a)
        def touches():
            tm = sum(0xff << (8 * i) for i in range(4) if Opt.tch >> i & 1)
            setex = "s_bitcmp1_b32 s%d, 3\ns_cselect_b32 exec_lo, 0, 0x%x\ns_cselect_b32 exec_hi, 0x%x, 0" % (sG, tm, tm) if Opt.ghx \
                    else "s_mov_b32 exec_lo, 0x%x\ns_mov_b32 exec_hi, 0" % tm
            if Opt.tlb & 2 and role == "B":
                a.e("s_and_b32 s%d, s%d, 7" % (sA, sG))
                a.e("v_lshl_add_u32 v2, v0, 3, s%d" % sA)
                a.e("v_mul_u32_u24 v3, 3584, v2")
                a.e("s_and_b32 s%d, s%d, 1" % (sB, sW))
                a.e("s_lshl1_add_u32 s%d, s%d, s%d" % (sA, sM, sB))
                a.e("s_lshl_b32 s%d, s%d, 7" % (sA, sA))
                a.e(setex)
                a.e("s_cmp_ge_u32 s%d, 6" % sW)
                a.e("s_cbranch_scc1 L_tlbu")
                a.e("buffer_load_dword %s, v3, %s, s%d offen" % (v(vPOLL), srd(SWG), sA))
                a.e("s_branch L_tlbe")
                a.lab("L_tlbu")
                a.e("buffer_load_dword %s, v3, %s, s%d offen" % (v(vPOLL), srd(SWU), sA))
                a.lab("L_tlbe")
                a.e("s_mov_b64 exec, -1")
                a.vm.append("tlb")
            if Opt.tlb & 12 and role == "A":
                a.e("s_cmp_lg_u32 s%d, 0" % sW)
                a.e("s_cbranch_scc1 L_tlbx")
                a.e("s_and_b32 s%d, s%d, 7" % (sA, sG))
                a.e("v_lshl_add_u32 v2, v0, 3, s%d" % sA)
                a.e("v_lshlrev_b32 v3, 10, v2")
                a.e("s_lshl_b32 s%d, s%d, 6" % (sA, sHP))
                a.e(setex if Opt.tlb & 4 else "s_mov_b64 exec, 1")
                a.e("buffer_load_dword %s, v3, %s, s%d offen" % (v(vPOLL), srd(SWQ), sA))
                a.e("s_branch L_tlby")
                a.lab("L_tlbx")
                a.e("s_and_b32 s%d, s%d, 3" % (sA, sM))
                a.e("s_lshl2_add_u32 s%d, s%d, s%d" % (sA, sG, sA))
                a.e("s_lshl_b32 s%d, s%d, 15" % (sA, sA))
                a.e("v_lshl_add_u32 v3, v0, 10, s%d" % sA)
                a.e("s_lshr_b32 s%d, s%d, 3" % (sA, sG))
                a.e("s_lshl2_add_u32 s%d, s%d, s%d" % (sA, sA, sW) if Opt.ghx else "s_mov_b32 s%d, s%d" % (sA, sW))
                a.e("s_lshl_b32 s%d, s%d, 7" % (sA, sA))
                a.e("s_bitcmp1_b32 %d, s%d" % (Opt.tch if Opt.tlb & 8 else 0, sW))
                a.e("s_cselect_b32 exec_lo, -1, 1")
                a.e("s_mov_b32 exec_hi, 0")
                a.e("buffer_load_dword %s, v3, %s, s%d offen" % (v(vPOLL), srd(SX), sA))
                a.lab("L_tlby")
                a.e("s_mov_b64 exec, -1")
                a.vm.append("tlb")
        if Opt.tpos == 0: touches()
        if Opt.startbar: a.e("s_barrier")
        npre = min(Opt.npre, 8) if role == "A" else 5
        pn = block(part(1, role)[:npre])
        rest = st + (collect(qvoff) + collect(lambda t: xvoff(t, vTID)) if role == "A" else collect(wvoff))
        gap = len(rest) // (npre + Opt.pregap) + 1
        for i in range(npre):
            put(a, pn[:1]); pn = pn[1:]
            put(a, rest[:gap]); rest = rest[gap:]
        put(a, rest)
        if Opt.tpos == 1: touches()
        a.e("s_mov_b64 vcc, %d" % (-1 if role == "A" else 0))
        if role == "A":
            a.waitvm("c0", lgkm=True)
        else:
            a.e("s_setprio 1")
            a.waitvm("c0", lgkm=True)
            a.e("s_branch L_k0")
        vms[role] = a.vm
    stream = part(1, "A")[min(Opt.npre, 8):] + [(c, k_, j) for c in range(2, 8) for k_, j in ORDER]
    qa = [int(x, 16) for x in Opt.qa]; qb = [int(x, 16) for x in Opt.qb]
    def take(n, cmax):
        m = 0
        while m < n and m < len(stream) and stream[m][0] <= cmax: m += 1
        r_ = stream[:m]; del stream[:m]
        return block(r_)
    a.lab("L_k0")
    a.vm = vms["A"]
    ool = Asm()
    def dmablock(name, role, items, wait=None):
        a.e("s_cbranch_vcc%s L_%s" % ("nz" if role == "A" else "z", name))
        if wait: a.waitvm(wait, lgkm=True)
        a.lab("L_%s_r" % name)
        ool.lab("L_%s" % name)
        ool.vm = a.vm if role == "A" else vms["B"]
        for it_ in items:
            put(ool, [it_])
            put(ool, fills[role][:Opt.fillper]); fills[role] = fills[role][Opt.fillper:]
        if name in ("d7", "e7"): put(ool, fills[role]); fills[role] = []
        if wait: ool.waitvm(wait, lgkm=True)
        if role == "B": vms["B"] = ool.vm
        ool.e("s_branch L_%s_r" % name)
    a.ool = ool.l

    def fr(k):
        b = vF1 + 36 * (k % 2)
        return dict(x=b, w=b + 16, q=b + 32)
    def reads(k):
        c, s = divmod(k, 2); f = fr(k); sl = c % 3
        wo = sl * 16384 + s * 8192
        W = lambda i: [rdtr(f['w'] + 4 * i, vWA + i, wo), rdtr(f['w'] + 4 * i + 2, vWA + i, wo + 1024)]
        X = [rd128(f['x'] + 4 * b, vXA + 2 * s + (b >> 1), sl * 16384 + (b & 1) * 2048) for b in range(4)]
        return W(0) + X + W(2) + W(1) + W(3) + [rdtr(f['q'], vQA, sl * 4096 + s * 2048), rdtr(f['q'] + 2, vQA, sl * 4096 + s * 2048 + 256)]
    a.e("s_barrier")
    a.stamp(3)
    if Opt.kdiag or Opt.probe >= 18:
        kstamp(a, 2)
        a.e("s_waitcnt lgkmcnt(0)")
    for r in reads(0): a.e(r)
    if qa[0]: dmablock("d2", "A", take(qa[0], 2))
    for k in range(16):
        c, s = divmod(k, 2); f = fr(k)
        z = lambda x: None if k == 0 else x
        mf = []
        for n_, i in enumerate((0, 2, 1, 3)):
            for b in (range(4) if n_ % 2 == 0 else range(3, -1, -1)):
                d = vACC + 16 * b + 4 * i
                mf.append(mfma16(d, f['w'] + 4 * i, f['x'] + 4 * b, z(d)))
        for b in range(2): mf.append(mfma16(vAQ + 4 * b, f['q'], f['x'] + 4 * b, z(vAQ + 4 * b)))
        rds = reads(k + 1) if k < 15 else []
        if s == 0:
            a.e("s_waitcnt lgkmcnt(6)")
            for i, m in enumerate(mf):
                if i == 8: a.e("s_waitcnt lgkmcnt(8)")
                a.e(m)
                if i < len(rds): a.e(rds[i])
            continue
        a.e("s_waitcnt lgkmcnt(8)")
        for m in mf[:4]: a.e(m)
        if c <= 5:
            dmablock("e%d" % (c + 2), "B", take(qb[c], c + 2), "c%d" % (c + 1))
            assert not any(x[0] <= c + 1 for x in stream)
        if c == 7:
            a.e("s_waitcnt lgkmcnt(0)")
        elif c == 6:
            a.e("s_waitcnt lgkmcnt(0)")
            a.e("s_cbranch_vccz L_st7")
            a.e("s_setprio 1")
            a.e("s_waitcnt vmcnt(0)")
            a.e("s_barrier")
            a.lab("L_st7")
        else:
            a.e("s_barrier")
        if c < 7 and ((Opt.kdiag == 1 and Opt.diag) or Opt.probe == 21 + c):
            kstamp(a, 3 + c)
            a.e("s_waitcnt lgkmcnt(0)")
        if c + 3 < 8:
            items = take(qa[c + 1], c + 3)
            dmablock("d%d" % (c + 3), "A", items)
        for i, m in enumerate(mf[4:]):
            a.e(m)
            if i < len(rds): a.e(rds[i])
        if k == 11: assert not stream and not fills["A"] and not fills["B"]
        if k == 11:
            a.e("s_cbranch_vccnz L_st6")
            a.e("s_setprio 0")
            spin_counter(a, "kvf", False, 4)
            a.wait0()
            a.e("s_barrier")
            put(a, kv_first_loads(a, True) + oclr)
            a.lab("L_st6")
    a.kvA = (kv_first_loads(a) + oclr)[2:]
    a.stamp(4)

def phase1_L(a):
    a.lab("L_light")
    a.vm = []
    ptr_loads(a, ((SWKV, 16), (SWV, 24)))
    srd_words(a, [SWKV, SWV, SGATE, SX])
    xvoff(a, 0)
    a.e("v_and_b32 v2, 63, v0")
    a.e("v_lshlrev_b32 %s, 4, v2" % v(vL16))
    a.e("s_sub_u32 s%d, s%d, 14" % (sCNT, sM))
    a.e("s_lshl_b32 s%d, s%d, 16" % (sOLD, sCNT))
    a.e("s_lshl_b32 s%d, s%d, 13" % (sHST, sCNT))
    a.e("s_add_u32 s%d, s%d, s%d" % (sWH, sHST, sWK))
    a.e("s_xor_b32 s%d, s%d, 0x2000" % (sHST, sHST))
    a.e("s_add_u32 s%d, s%d, 0x2000" % (sA, sWK))
    a.e("s_waitcnt lgkmcnt(0)")
    a.stamp(2)
    def xdma(c, base, so):
        a.vmop("s_add_u32 m0, s%d, 0x%x\ns_nop 0\nbuffer_load_dwordx4 %s, %s, s%d offen offset:%d lds"
               % (base, LL_X + c * 16384 - c * 128, v(vDX), srd(SX), so, c * 128), "c%d" % c)
    def wdma(u):
        for t, rs in enumerate((SWKV, SWV)):
            a.vmop("s_add_u32 m0, s%d, 0x%x\ns_nop 0\nbuffer_load_dwordx4 %s, %s, s%d offen lds"
                   % (sWK, LL_W + t * 16384 + u * 8192, v(vL16), srd(rs), sA if u else sWK), "w")
    wdma(0)
    a.vmop("s_mov_b32 m0, s%d\ns_nop 0\nbuffer_load_dwordx4 %s, %s, 0 offen lds" % (sHST, v(vL16), srd(SGATE)), "w")
    for c in range(8):
        if c == 4: wdma(1)
        xdma(c, sWH, sOLD)
        if c in (1, 3, 5): a.e("s_barrier")
    setup_ids(a)
    srd_words(a, [SWQ])
    setup_rd(a)
    a.e("v_lshrrev_b32 v3, 5, v0")
    a.e("v_bfrev_b32 v5, v4")
    a.e("v_lshrrev_b32 v5, 30, v5")
    a.e("s_cmp_ge_u32 s%d, 2" % sLO)
    a.e("s_cselect_b64 vcc, -1, 0")
    a.e("v_cndmask_b32 v4, v5, v4, vcc")
    a.e("v_lshl_add_u32 %s, v3, 3, v2" % v(vWA))
    a.e("v_lshlrev_b32 %s, 5, %s" % (v(vWA), v(vWA)))
    a.e("v_lshl_add_u32 %s, v4, 3, %s" % (v(vWA), v(vWA)))
    a.e("s_lshr_b32 s%d, s%d, 1" % (sA, sLO))
    a.e("s_lshl_b32 s%d, s%d, 14" % (sA, sA))
    a.e("s_add_u32 s%d, s%d, 0x%x" % (sA, sA, LL_W))
    a.e("v_add_u32 %s, s%d, %s" % (v(vWA), sA, v(vWA)))
    a.e("v_lshl_add_u32 %s, v3, 4, s%d" % (v(vWA + 1), sHST))
    a.e("s_and_b32 s%d, s%d, 1" % (sA, sLO))
    a.e("s_lshl_b32 s%d, s%d, 1" % (sB, sCNT))
    a.e("s_add_u32 s%d, s%d, s%d" % (sCNT, sA, sB))
    a.e("s_lshl_b32 s%d, s%d, 12" % (sA, sCNT))
    a.e("v_and_b32 v2, 31, v0")
    a.e("v_bfe_u32 v4, v0, 1, 3")
    a.e("v_xor_b32 v4, v4, v3")
    a.e("v_lshlrev_b32 v4, 4, v4")
    a.e("v_lshl_add_u32 v4, v2, 7, v4")
    a.e("v_add_u32 %s, s%d, v4" % (v(vLX), sA))
    for s in range(1, 4): a.e("v_xor_b32 %s, %d, %s" % (v(vLX + s), 32 * s, v(vLX)))
    for s in range(4): a.e("v_add_u32 %s, 0x10000, %s" % (v(vLX + 4 + s), v(vLX + s)))
    a.e("s_waitcnt lgkmcnt(0)")
    setup_oclr(a)
    vm0 = list(a.vm)
    a.e("s_cmp_lg_u32 s%d, 0" % sHI)
    a.e("s_cbranch_scc1 L_lB")
    a.e("s_not_b64 %s, %s" % (sp(sTMPP), sp(sVM)))
    a.e("s_cmp_ge_u32 s%d, 2" % sLO)
    a.e("s_cbranch_scc1 L_lV")
    def chain(kind):
        a.vm = list(vm0)
        def fr(k):
            b = vFR + 8 * (k % 4)
            return b, b + 4
        def reads(k):
            c, s = divmod(k, 4); x, w = fr(k)
            r = [rd128(x, vLX + s + 4 * (c >> 2), (c & 3) * 16384), rdtr(w, vWA, k * 512), rdtr(w + 2, vWA, k * 512 + 128)]
            if kind == "K":
                r += ["s_mov_b64 exec, %s" % sp(sTMPP), rd128(w, vWA + 1, k * 32), "s_mov_b64 exec, -1"]
            return r
        for q in range(4):
            a.waitvm("c%d" % (2 * q + 1))
            a.e("s_barrier")
            nr = 4 if kind == "K" else 3
            for k in range(8 * q, 8 * q + 2):
                for r in reads(k): a.e(r)
            for k in range(8 * q, 8 * q + 8):
                if k + 2 < 8 * q + 8:
                    for r in reads(k + 2): a.e(r)
                left = min(2, 8 * q + 7 - k)
                a.e("s_waitcnt lgkmcnt(%d)" % (left * nr))
                x, w = fr(k)
                cc = None if k == 0 else vACC
                a.e(mfma(vACC, w, x, cc) if kind == "K" else mfma(vACC, x, w, cc))
        a.e("s_lshl_b32 s%d, s%d, 2" % (sA, sG))
        a.e("s_add_u32 s%d, s%d, s%d" % (sA, sA, sCNT))
        a.e("s_nop 12")
        if kind == "K":
            a.e("s_mov_b32 s%d, 0x%x" % (sC, f2u(0.25 * math.log2(math.e))))
            for i in range(8): a.e("v_mul_f32 %s, s%d, %s" % (v(vACC + i), sC, v(vACC + i)))
            a.e("v_mul_f32 %s, 0x%x, %s" % (v(vACC + 8), f2u(-math.log2(math.e)), v(vACC + 8)))
            a.e("v_exp_f32 %s, %s" % (v(vACC + 8), v(vACC + 8)))
            for i in range(4): a.e("v_cvt_pk_bf16_f32 %s, %s, %s" % (v(vFR + i), v(vACC + 2 * i), v(vACC + 2 * i + 1)))
            a.e("v_add_f32 %s, 1.0, %s" % (v(vACC + 8), v(vACC + 8)))
            a.e("v_rcp_f32 %s, %s" % (v(vACC + 8), v(vACC + 8)))
            a.e("s_add_u32 s%d, s%d, 63" % (sB, sA))
            a.e("s_and_b32 s%d, s%d, 63" % (sB, sB))
            a.e("s_lshl_b32 s%d, s%d, 11" % (sB, sB))
            a.e("buffer_store_dwordx4 %s, %s, %s, s%d offen sc1" % (v(vFR, 4), v(vL16), srd(SKV), sB))
            a.e("s_lshl_b32 s%d, s%d, 7" % (sB, sA))
            a.e("s_add_u32 s%d, s%d, 0x%x" % (sB, sB, WS_G))
            a.e("s_mov_b32 exec_hi, 0")
            a.e("buffer_store_dword %s, %s, %s, s%d offen sc1" % (v(vACC + 8), v(vGA), srd(SWS), sB))
            a.e("s_mov_b64 exec, -1")
        else:
            for i in range(8): a.e("v_cvt_pk_bf16_f32 %s, %s, %s" % (v(vFR + i), v(vACC + 2 * i), v(vACC + 2 * i + 1)))
            a.e("v_bfe_u32 v2, v0, 4, 1")
            a.e("v_add_u32 v2, s%d, v2" % sA)
            a.e("v_and_b32 v2, 63, v2")
            a.e("v_lshl_add_u32 v2, v2, 11, %s" % v(vL16))
            for i in range(4): a.e("v_cndmask_b32 %s, %s, %s, %s" % (v(vFR + i), v(vFR + 4 + i), v(vFR + i), sp(sVM)))
            a.e("buffer_store_dwordx4 %s, v2, %s, 0 offen offset:1024 sc1" % (v(vFR, 4), srd(SKV)))
        a.e("s_branch L_lJ")
    chain("K")
    a.lab("L_lV")
    chain("V")
    a.lab("L_lB")
    a.vm = list(vm0)
    a.e("s_cmp_lg_u32 s%d, 14" % sM)
    a.e("s_cbranch_scc1 L_nozf")
    a.e("s_cmp_lg_u32 s%d, 4" % sW)
    a.e("s_cbranch_scc1 L_nozf")
    a.e("v_lshlrev_b32 v2, 7, v0")
    a.e("s_lshl_b32 s%d, s%d, 11" % (sA, sG))
    a.e("s_add_u32 s%d, s%d, 0x%x" % (sA, sA, WS_HFLAG))
    a.e("s_mov_b64 exec, 0xffff")
    a.e("buffer_store_dword %s, v2, %s, s%d offen sc1" % (v(vZERO), srd(SWS), sA))
    a.e("s_mov_b64 exec, -1")
    a.lab("L_nozf")
    for q in range(4):
        a.waitvm("c%d" % (2 * q + 1))
        a.e("s_barrier")
    a.lab("L_lJ")
    a.e("v_lshrrev_b32 v3, 2, v0")
    a.e("v_lshlrev_b32 v3, 10, v3")
    a.e("v_lshrrev_b32 v4, 5, v0")
    a.e("v_lshlrev_b32 v4, 1, v4")
    a.e("v_xor_b32 v4, v4, v0")
    a.e("v_and_b32 v4, 3, v4")
    a.e("v_lshl_add_u32 v3, v4, 4, v3")
    a.e("s_lshl_b32 s%d, s%d, 14" % (sA, sW))
    a.e("s_lshl_b32 s%d, s%d, 6" % (sB, sHP))
    a.e("s_add_u32 s%d, s%d, s%d" % (sA, sA, sB))
    a.e("v_add_u32 %s, s%d, v3" % (v(vDQ), sA))
    a.e("s_xor_b32 s%d, s%d, 0x2000" % (sWH, sWH))
    a.e("s_xor_b32 s%d, s%d, 0x10000" % (sOLD, sOLD))
    a.wait0(lgkm=True)
    a.e("s_barrier")
    a.e("s_cmp_lg_u32 s%d, 0" % sW)
    a.e("s_cbranch_scc1 L_noat")
    a.e("s_mov_b64 exec, 1")
    a.e("buffer_atomic_add %s, off, %s, 0 sc1" % (v(vONE), srd(SDBG)))
    a.e("s_mov_b64 exec, -1")
    a.lab("L_noat")
    a.stamp(3)
    for c in range(8): xdma(c, sWH, sOLD)
    for p in range(4):
        a.e("s_add_u32 m0, s%d, 0x%x" % (sWK, LL_WQ + p * 8192))
        a.e("s_mov_b32 s%d, 0x%x" % (sA, p * 128 * 1024))
        a.e("buffer_load_dwordx4 %s, %s, s%d offen lds" % (v(vDQ), srd(SWQ), sA))
    setup_attn(a)
    if Opt.touch & 2:
        a.e("s_lshl_b32 s%d, s%d, 1" % (sA, sG))
        a.e("s_add_u32 s%d, s%d, s%d" % (sA, sA, sM))
        a.e("s_sub_u32 s%d, s%d, 14" % (sA, sA))
        a.e("s_lshl_b32 s%d, s%d, 3" % (sA, sA))
        a.e("s_add_u32 s%d, s%d, s%d" % (sA, sA, sW))
        a.e("v_lshlrev_b32 v2, 15, v0")
        a.e("s_lshl_b32 s%d, s%d, 7" % (sA, sA))
        a.e("buffer_load_dword %s, v2, %s, s%d offen" % (v(vPOLL), srd(SWO), sA))
        a.e("buffer_load_dword %s, v2, %s, s%d offen" % (v(vPOLL), srd(SWD), sA))
    a.e("s_lshl_b32 s%d, s%d, 12" % (sA, sLO))
    a.e("v_add_u32 %s, s%d, %s" % (v(vXA), sA, v(vXA)))
    a.e("v_xor_b32 %s, 64, %s" % (v(vXA + 1), v(vXA)))
    a.e("v_add_u32 %s, 0x10000, %s" % (v(vXA + 2), v(vXA)))
    a.e("v_add_u32 %s, 0x10000, %s" % (v(vXA + 3), v(vXA + 1)))
    a.e("v_add_u32 %s, 0x%x, %s" % (v(vQA), LL_WQ, v(vQA)))
    a.e("s_waitcnt vmcnt(%d)" % (2 if Opt.touch & 2 else 0))
    a.e("s_barrier")
    def fr(k): return vFR + 12 * (k % 3)
    def reads(k):
        c, s = divmod(k, 2); f = fr(k)
        return [rd128(f + 4 * b, vXA + s + 2 * (c >> 2), (c & 3) * 16384 + b * 2048) for b in range(2)] + \
               [rdtr(f + 8, vQA, k * 2048), rdtr(f + 10, vQA, k * 2048 + 256)]
    for k in range(2):
        for r in reads(k): a.e(r)
    for k in range(16):
        a.e("s_waitcnt lgkmcnt(%d)" % (4 * min(1, 15 - k)))
        for b in range(2): a.e(mfma16(vAQ + 4 * b, fr(k) + 8, fr(k) + 4 * b, None if k == 0 else vAQ + 4 * b))
        if k + 2 < 16:
            for r in reads(k + 2): a.e(r)
    spin_counter(a, "kvl", False)
    a.e("s_barrier")
    for s, t in kv_first_loads(a): a.e(s)
    a.wait0()
    a.stamp(4)
    a.e("s_branch L_join")

def gelu_tile(a, ti, scalar=False):
    acc = vACC + 16 * ti
    t = vFR
    o = vFR + 8 + 4 * ti
    pk = lambda r: v(r, 2)
    if scalar:
        for i in range(8): a.e("v_mul_f32 %s, %s, %s" % (v(t + i), v(acc + i), v(acc + i)))
        for i in range(8): a.e("v_fma_f32 %s, %s, %s, %s" % (v(t + i), v(t + i), v(vC0 + 1), v(vC0)))
        for i in range(8): a.e("v_mul_f32 %s, %s, %s" % (v(t + i), v(t + i), v(acc + i)))
        for i in range(8): a.e("v_exp_f32 %s, %s" % (v(t + i), v(t + i)))
        for i in range(8): a.e("v_add_f32 %s, 1.0, %s" % (v(t + i), v(t + i)))
        for i in range(8): a.e("v_rcp_f32 %s, %s" % (v(t + i), v(t + i)))
        for i in range(8): a.e("v_mul_f32 %s, %s, %s" % (v(acc + i), v(acc + i), v(acc + 8 + i)))
        for i in range(8): a.e("v_mul_f32 %s, %s, %s" % (v(acc + i), v(acc + i), v(t + i)))
    R4, R8 = (range(0), range(0)) if scalar else (range(4), range(8))
    for i in R4: a.e("v_pk_mul_f32 %s, %s, %s" % (pk(t + 2 * i), pk(acc + 2 * i), pk(acc + 2 * i)))
    for i in R4: a.e("v_pk_fma_f32 %s, %s, %s, %s op_sel:[0,1,0] op_sel_hi:[1,1,0]" % (pk(t + 2 * i), pk(t + 2 * i), pk(vC0), pk(vC0)))
    for i in R4: a.e("v_pk_mul_f32 %s, %s, %s" % (pk(t + 2 * i), pk(t + 2 * i), pk(acc + 2 * i)))
    for i in R8: a.e("v_exp_f32 %s, %s" % (v(t + i), v(t + i)))
    for i in R4: a.e("v_pk_add_f32 %s, %s, 1.0 op_sel_hi:[1,0]" % (pk(t + 2 * i), pk(t + 2 * i)))
    for i in R8: a.e("v_rcp_f32 %s, %s" % (v(t + i), v(t + i)))
    for i in R4: a.e("v_pk_mul_f32 %s, %s, %s" % (pk(acc + 2 * i), pk(acc + 2 * i), pk(acc + 8 + 2 * i)))
    for i in R4: a.e("v_pk_mul_f32 %s, %s, %s" % (pk(acc + 2 * i), pk(acc + 2 * i), pk(t + 2 * i)))
    for i in range(4): a.e("v_cvt_pk_bf16_f32 %s, %s, %s" % (v(o + i), v(acc + 2 * i), v(acc + 2 * i + 1)))
    a.vmop("buffer_store_dwordx4 %s, %s, %s, s%d offen offset:%d sc1" % (v(o, 4), v(vHA), srd(SWS), sHST2 if ti >> 1 else sHST, (ti & 1) * 256), "hst")

def Yseg(hset, toggle=False):
    out = []
    for t in range(2):
        S, Sn = vS + 16 * t, vS + 16 * (1 - t)
        K, V0, V1 = vKF + 4 * t, vV + 8 * t, vV + 8 * t + 4
        for j in range(8):
            out.append("v_exp_f32 %s, %s" % (v(vE + 2 * (j % 2)), v(S + 2 * j)))
            out.append("v_exp_f32 %s, %s" % (v(vE + 2 * (j % 2) + 1), v(S + 2 * j + 1)))
            jj = (j - 1) % 8
            out.append("v_cvt_pk_bf16_f32 %s, %s, %s" % (v(vP + jj), v(vE + 2 * (jj % 2)), v(vE + 2 * (jj % 2) + 1)))
            if j == 1: out.append(mfma(vO, V1, vP + 4, vO))
            if j == 3: out.append(mfma(Sn, K, vQ, None))
            if hset is None:
                if j == 7: out.append(mfma(vO, V0, vP, vO))
            else:
                if j == 5: out.append(mfma(vO, V0, vP, vO))
                if j == 6 and t == 1 and toggle:
                    out.append("v_xor_b32 %s, 0x4000, %s" % (v(vKVA), v(vKVA)))
                    out.append("v_xor_b32 %s, 0x8000, %s" % (v(vWDA), v(vWDA)))
                if j == 7: out.append(mfma(vD + 16 * t, vWF + 4 * t, vH + 4 * hset, vD + 16 * t))
    return out

def kv_reads(off):
    r = [rd128(vKF, vKVA, off), rd128(vKF + 4, vKVA, off + 2048), "s_mov_b64 exec, %s" % sp(sVM)]
    for t in range(2):
        r += [rd128(vV + 8 * t, vKVA, off + 2048 * t + 1024), rd128(vV + 8 * t + 4, vKVA, off + 2048 * t + 1280)]
    r.append("s_mov_b64 exec, -1")
    return r
def wd_reads(dst, addr, off):
    r = []
    for c in range(2):
        r += [rdtr(dst + 4 * c, addr, off + 512 * c), rdtr(dst + 4 * c + 2, addr, off + 512 * c + 1024)]
    return r

def wdrow(sg): return (32 * (sg >> 1) + 8 * (sg & 1)) * 1024

def attention(a, role, pre0=None):
    A = role == "A"
    def kvdma(u):
        a.vmop("s_add_u32 m0, s%d, 0x%x\ns_add_u32 s%d, s%d, 0x%x\nbuffer_load_dwordx4 %s, %s, s%d offen sc1 lds"
               % (sWK, L_KV + (u % 4) * 8192, sA, sWK, u * 8192, v(vL16), srd(SKV), sA), "kv%d" % u)
    def wddma(sg):
        a.vmop("s_add_u32 m0, s%d, 0x%x\ns_add_u32 s%d, s%d, 0x%x\nbuffer_load_dwordx4 %s, %s, s%d offen lds"
               % (sWK, L_WD + ((sg + 3) % 8) * 8192, sA, sWDOFF, wdrow(sg), v(vWDV), srd(SWD), sA), "wd%d" % sg)
    def wodma(j):
        a.vmop("s_add_u32 m0, s%d, 0x%x\ns_add_u32 s%d, s%d, 0x%x\nbuffer_load_dwordx4 %s, %s, s%d offen lds"
               % (sWK, L_WO + j * 8192, sA, sB, j * 16384, v(vWDV), srd(SWO), sA), "wo")
    def hload(sg, dst):
        a.vmop("s_add_u32 s%d, s%d, 0x%x\nbuffer_load_dwordx4 %s, %s, %s, s%d offen sc1"
               % (sA, sHOFF, sg * 1024, v(dst, 4), v(vL16), srd(SWS), sA), "h%d" % sg)
    for n in range(11):
        if not A and n == 0: a.e("s_barrier")
        if n % 2 == 1: astamp(a, 2 + n // 2)
        tags = []
        if A and n % 2 == 1: tags.append("kv%d" % ((n + 1) // 2))
        if not A and n % 2 == 0: tags.append("kv%d" % ((n + 2) // 2))
        if n == (3 if A else 2): tags.append("hst")
        if n == 10: tags.append("wd0")
        if n == 8 and A:
            a.e("s_cmp_lg_u32 s%d, 0" % sW)
            a.e("s_cbranch_scc1 L_hf_done")
            a.e("s_mov_b32 s%d, 0x4000" % sB)
            a.e("s_waitcnt vmcnt(2)")
            a.lab("L_hf_chk")
            a.e("v_cmp_ne_u32 vcc, 1, %s" % v(vPOLL))
            a.e("s_cbranch_vccz L_hf_done")
            a.e("s_sleep 2")
            a.e("buffer_load_dword %s, %s, %s, 0 offen sc1" % (v(vPOLL), v(vFLA), srd(SWS)))
            a.e("s_sub_u32 s%d, s%d, 1" % (sB, sB))
            a.e("s_cmp_lg_u32 s%d, 0" % sB)
            a.e("s_waitcnt vmcnt(0)")
            a.e("s_cbranch_scc1 L_hf_chk")
            a.lab("L_hf_done")
        a.waitvm(tags)
        if n == 3 and not A:
            a.e("s_cmp_ge_u32 s%d, 14" % sM)
            a.e("s_cbranch_scc1 L_nohf")
            a.e("s_cmp_lg_u32 s%d, 4" % sW)
            a.e("s_cbranch_scc1 L_nohf")
            a.e("s_lshl_b32 s%d, s%d, 4" % (sA, sG))
            a.e("s_add_u32 s%d, s%d, s%d" % (sA, sA, sM))
            a.e("s_lshl_b32 s%d, s%d, 7" % (sA, sA))
            a.e("s_add_u32 s%d, s%d, 0x%x" % (sA, sA, WS_HFLAG))
            a.e("s_mov_b64 exec, 1")
            a.e("buffer_store_dword %s, off, %s, s%d sc1" % (v(vONE), srd(SWS), sA))
            a.e("s_mov_b64 exec, -1")
            a.lab("L_nohf")
        for r in kv_reads((n % 8) * 4096): a.e(r)
        if n == 7 and A:
            a.e("s_cmp_lg_u32 s%d, 0" % sW)
            a.e("s_cbranch_scc1 L_hf_nol")
            a.e("buffer_load_dword %s, %s, %s, 0 offen sc1" % (v(vPOLL), v(vFLA), srd(SWS)))
            a.lab("L_hf_nol")
        if n == 0:
            kvdma(2); kvdma(3)
            a.e("s_mov_b32 s%d, s%d" % (sC, sKQ))
            a.e("s_mul_i32 s%d, s%d, %d" % (sWDOFF, sC, 448 * 1024))
            a.e("s_and_b32 s%d, s%d, 1" % (sB, sW))
            a.e("s_lshl_b32 s%d, s%d, 14" % (sA, sB))
            a.e("s_add_u32 s%d, s%d, s%d" % (sWDOFF, sWDOFF, sA))
            a.e("s_lshl_b32 s%d, s%d, 1" % (sA, sT))
            a.e("s_add_u32 s%d, s%d, s%d" % (sA, sA, sB))
            a.e("s_mul_i32 s%d, s%d, 112" % (sA, sA))
            a.e("s_mul_i32 s%d, s%d, 28" % (sB, sC))
            a.e("s_add_u32 s%d, s%d, s%d" % (sA, sA, sB))
            a.e("s_lshl_b32 s%d, s%d, 10" % (sA, sA))
            a.e("s_add_u32 s%d, s%d, 0x%x" % (sHOFF, sA, WS_HF))
        if (A and n % 2 == 1 and n >= 3): kvdma((n + 5) // 2)
        if (not A and n % 2 == 0 and n >= 2): kvdma((n + 6) // 2)
        if 1 <= n <= 3:
            a.e("s_lshl_b32 s%d, s%d, 17" % (sB, sKQ))
            a.e("s_and_b32 s%d, s%d, 1" % (sC, sW))
            a.e("s_lshl_b32 s%d, s%d, 13" % (sC, sC))
            a.e("s_add_u32 s%d, s%d, s%d" % (sB, sB, sC))
            for j in {1: (0, 1, 2), 2: (3, 4, 5), 3: (6, 7)}[n]: wodma(j)
        if n >= 4: wddma(n - 4)
        if n == 9:
            hload(0, vH + 12); hload(1, vH + 0); hload(24, vH + 16); hload(25, vH + 20)
        if n == 10:
            hload(26, vH + 24); hload(27, vH + 28); hload(2, vH + 4)
        if n == 0 and pre0:
            pre0()
            a.stamp(5)
        a.e("s_waitcnt lgkmcnt(0)")
        a.e("s_call_b64 %s, L_Y%s" % (sp(sRET), role))
        if n == 0:
            a.e("s_branch L_X1%s" % role)
            a.lab("L_Y%s" % role)
            if A: a.e("s_barrier")
            for x in Yseg(None): a.e(x)
            if not A: a.e("s_barrier")
            a.e("s_setpc_b64 %s" % sp(sRET))
            a.lab("L_X1%s" % role)
    astamp(a, 7)
    a.e("s_add_u32 s%d, s%d, 0x%x" % (sHOFF, sHOFF, 3 * 1024))
    a.e("s_add_u32 s%d, s%d, 0x%x" % (sWDOFF, sWDOFF, wdrow(7)))
    a.e("s_mov_b32 s%d, 0x%x" % (sM0WD, ((7 + 3) % 8) * 8192))
    u0 = 8 if A else 9
    a.e("s_add_u32 s%d, s%d, 0x%x" % (sKVOFF, sWK, u0 * 8192))
    a.e("s_mov_b32 s%d, 6" % sCNT)
    a.waitvm(["h0", "wd1", "kv6"] if A else ["h0", "wd1"])
    a.e("s_branch L_loop%s_in" % role)
    a.l.append(".p2align 6")
    a.lab("L_loop%s" % role)
    for p in range(4):
        if p == 0 and Opt.diag and Opt.kdiag == 2:
            a.e("s_cmp_lg_u32 s%d, 4" % sCNT)
            a.e("s_cbranch_scc1 L_nst%s" % role)
            astamp(a, 8)
            a.lab("L_nst%s" % role)
        a.e("s_waitcnt vmcnt(5)")
        if p == 3: a.lab("L_loop%s_in" % role)
        for r in kv_reads(p * 4096): a.e(r)
        for r in wd_reads(vWF, vWDA, p * 8192): a.e(r)
        a.e("buffer_load_dwordx4 %s, %s, %s, s%d offen sc1" % (v(vH + 4 * ((p + 3) % 4), 4), v(vL16), srd(SWS), sHOFF))
        a.e("s_add_u32 m0, s%d, s%d" % (sWK, sM0WD))
        a.e("s_add_u32 s%d, s%d, 0x400" % (sHOFF, sHOFF))
        a.e("buffer_load_dwordx4 %s, %s, s%d offen lds" % (v(vWDV), srd(SWD), sWDOFF))
        a.e("s_add_u32 s%d, s%d, 0x%x" % (sWDOFF, sWDOFF, 0x6000 if p & 1 else 0x2000))
        a.e("s_add_u32 s%d, s%d, 0x2000" % (sM0WD, sM0WD))
        a.e("s_and_b32 s%d, s%d, 0xffff" % (sM0WD, sM0WD))
        if (p % 2 == 1) == A:
            a.e("s_and_b32 s%d, s%d, 0x7fff" % (sA, sKVOFF))
            a.e("s_add_u32 m0, s%d, 0x%x" % (sA, L_KV))
            a.e("s_nop 0")
            a.e("buffer_load_dwordx4 %s, %s, s%d offen sc1 lds" % (v(vL16), srd(SKV), sKVOFF))
            a.e("s_add_u32 s%d, s%d, 0x2000" % (sKVOFF, sKVOFF))
        if p == 3:
            a.e("s_sub_u32 s%d, s%d, 1" % (sCNT, sCNT))
            a.e("s_cmp_lg_u32 s%d, 0" % sCNT)
        a.e("s_waitcnt lgkmcnt(0)")
        if A: a.e("s_barrier")
        for x in Yseg(p, toggle=(p == 3)): a.e(x)
        if not A:
            if p == 3: a.e("s_cbranch_scc0 L_tail")
            a.e("s_barrier")
    a.e(("s_cbranch_scc1 L_loop%s" if A else "s_branch L_loop%s") % role)

def transition(a, role):
    A = role == "A"
    if A:
        a.vm = []
        a.lab("L_trA")
    else:
        a.lab("L_join")
        a.e("s_cmp_eq_u32 s%d, 0" % sHI)
        a.e("s_cbranch_scc1 L_trA")
        a.vmjoin = list(a.vm)
    def qfin():
        for i in range(4): a.e("v_cvt_pk_bf16_f32 %s, %s, %s" % (v(vQ + i), v(vAQ + 2 * i), v(vAQ + 2 * i + 1)))
        for i in range(4, 7): a.e("v_mov_b32 %s, 0" % v(vP + i))
        a.e("v_permlane16_swap_b32 %s, %s" % (v(vQ), v(vQ + 2)))
        a.e("v_permlane16_swap_b32 %s, %s" % (v(vQ + 1), v(vQ + 3)))
    pre0 = None
    if A:
        a.e("s_setprio 1")
        a.e("s_cmp_ge_u32 s%d, 14" % sM)
        a.e("s_cbranch_scc1 L_nogA0")
        put(a, a.kvA[:1] + a.kvA[-1:])
        a.l.append(".p2align 3")
        for ti in range(Opt.gsc): gelu_tile(a, ti, True)
        a.lab("L_nogA0")
        qfin()
        a.waitvm(["k0", "kv0", "kv1"])
        a.e("s_setprio 0")
        a.e("s_barrier")
        a.e(mfma(vS, vK0, vQ, None))
        put(a, a.kvA[1:-1])
        def pre0():
            a.e("s_cmp_lt_u32 s%d, 14" % sM)
            a.e("s_cbranch_scc1 L_gA1")
            a.e("s_waitcnt vmcnt(0)")
            a.e("s_branch L_nogA1")
            a.l.append(".p2align 3")
            a.lab("L_gA1")
            for ti in range(Opt.gsc, 4): gelu_tile(a, ti)
            a.lab("L_nogA1")
            a.e("s_setprio 1")
    else:
        a.waitvm(["k0", "kv0", "kv1"])
        a.e("s_setprio 1")
        a.e("s_cmp_ge_u32 s%d, 14" % sM)
        a.l.append(".p2align 3")
        a.e("s_barrier")
        a.e("s_cbranch_scc1 L_nogB")
        for ti in range(4): gelu_tile(a, ti)
        a.lab("L_nogB")
        qfin()
        a.e("s_setprio 0")
        a.e("s_nop 0")
        a.e(mfma(vS, vK0, vQ, None))
        a.stamp(5)
    attention(a, role, pre0)
    if A: a.e("s_branch L_tail")

def tail(a):
    a.lab("L_tail")
    a.e("v_cvt_pk_bf16_f32 %s, %s, %s" % (v(vP + 7), v(vE + 2), v(vE + 3)))
    a.stamp(6)
    astamp(a, 9)
    if Opt.diag and Opt.kdiag == 2: a.e("s_waitcnt lgkmcnt(0)")
    a.e("s_setprio 0")
    a.e("s_mov_b32 s%d, 0x%x" % (sC, f2u(2.0 ** -16)))
    a.e(mfma(vO, vV1L, vP + 4, vO))
    a.e("s_mov_b32 s%d, 0x%x" % (sD, f2u(2.0 ** 100)))
    wf = [vFR, vFR + 8, vFR + 16]
    for i in range(2):
        for r in wd_reads(wf[i], vWDA, i * 8192): a.e(r)
    a.e("s_nop 2")
    t = vT0
    a.e("v_rcp_f32 %s, %s" % (v(t + 2), v(vO + 8)))
    a.e("v_pk_mul_f32 %s, %s, 0 op_sel_hi:[1,0]" % (v(t, 2), v(vO, 2)))
    for i in range(1, 4): a.e("v_pk_fma_f32 %s, %s, 0, %s op_sel_hi:[1,0,1]" % (v(t, 2), v(vO + 2 * i, 2), v(t, 2)))
    a.e("v_add_f32 %s, %s, %s" % (v(t), v(t), v(t + 1)))
    a.e("v_add_f32 %s, %s, %s" % (v(t), v(t), v(vO + 8)))
    a.e("v_cmp_nle_f32 vcc, s%d, %s" % (sC, v(t)))
    a.e("v_cmp_nge_f32 %s, s%d, %s" % (sp(sTMPP), sD, v(t)))
    a.e("s_or_b64 vcc, vcc, %s" % sp(sTMPP))
    a.e("s_branch L_fb" if Opt.force_fb else "s_cbranch_scc1 L_fb")
    a.lab("L_fbret")
    a.e("v_mul_f32 %s, %s, %s" % (v(t + 2), v(t + 2), v(vGP)))
    for i in range(4): a.e("v_pk_mul_f32 %s, %s, %s op_sel_hi:[1,0]" % (v(vO + 2 * i, 2), v(vO + 2 * i, 2), v(t + 2, 2)))
    for i in range(4): a.e("v_cvt_pk_bf16_f32 %s, %s, %s" % (v(vP + i), v(vO + 2 * i), v(vO + 2 * i + 1)))
    for i in range(4): a.e("v_min_u32 %s, -2, %s" % (v(vP + i), v(vP + i)))
    a.e("buffer_store_dwordx4 %s, %s, %s, s%d offen sc1" % (v(vP, 4), v(vL16), srd(SWS), sOST))
    HORD = [0, 2, 4, 6, 1, 3, 5, 7] if Opt.hord else list(range(8))
    def oload(j):
        return "buffer_load_dwordx4 %s, %s, %s, s%d offen offset:%d sc1" % (
            v(vS + 4 * j, 4), v(vL16), srd(SWS), sOLD if HORD[j] < 4 else sA, (HORD[j] % 4) * 1024)
    a.oload = oload
    aw = vXA
    ar = vWA
    def addrs(a):
        a.e("v_sub_f32 %s, 1.0, %s" % (v(vGC), v(vGC)))
        a.e("v_add_u32 %s, 0x%x, %s" % (v(vQA), L_WO, v(vWDA)))
        a.e("v_and_b32 v2, 31, v0")
        a.e("v_lshrrev_b32 v3, 5, v0")
        a.e("v_and_b32 v4, 7, v0")
        a.e("v_xor_b32 v3, v3, v4")
        a.e("v_lshlrev_b32 v3, 4, v3")
        a.e("v_lshl_add_u32 v3, v2, 8, v3")
        a.e("s_and_b32 s%d, s%d, 1" % (sB, sW))
        a.e("s_lshl_b32 s%d, s%d, 15" % (sB, sB))
        a.e("s_lshr_b32 s%d, s%d, 1" % (sC, sW))
        a.e("s_lshl_b32 s%d, s%d, 13" % (sD, sC))
        a.e("s_add_u32 s%d, s%d, s%d" % (sD, sD, sB))
        a.e("v_add_u32 %s, s%d, v3" % (v(aw), sD))
        for j in range(1, 4): a.e("v_xor_b32 %s, %d, %s" % (v(aw + j), 32 * j, v(aw)))
        a.e("v_lshrrev_b32 v2, 3, v0")
        a.e("v_lshlrev_b32 v3, 1, v4")
        a.e("v_xor_b32 v3, v3, v2")
        a.e("v_lshlrev_b32 v3, 4, v3")
        a.e("v_lshl_add_u32 v3, v2, 8, v3")
        a.e("s_lshl_b32 s%d, s%d, 11" % (sD, sC))
        a.e("s_add_u32 s%d, s%d, s%d" % (sD, sD, sB))
        a.e("v_add_u32 %s, s%d, v3" % (v(ar), sD))
        a.e("v_xor_b32 %s, 16, %s" % (v(ar + 1), v(ar)))
        a.e("v_lshlrev_b32 v4, 4, v4")
        a.e("v_lshl_add_u32 %s, v2, 10, v4" % v(ar + 2))
        a.e("s_lshl_b32 s%d, s%d, 13" % (sC, sC))
        a.e("s_add_u32 s%d, s%d, s%d" % (sB, sB, sC))
        a.e("s_lshl_b32 s%d, s%d, 16" % (sC, sT))
        a.e("s_add_u32 s%d, s%d, s%d" % (sB, sB, sC))
        a.e("s_lshl_b32 s%d, s%d, 7" % (sC, sCB))
        a.e("s_add_u32 s%d, s%d, s%d" % (sCNT, sB, sC))
        a.e("s_mov_b32 s%d, 0x2000" % sB)
    a.e("s_add_u32 s%d, s%d, 0x1000" % (sA, sOLD))
    ol = Asm(); a.ool2 = ol.l
    a.e("s_cmp_lg_u32 s%d, 0" % sHI)
    a.e("s_cbranch_scc1 L_tl1")
    for j in range(8): a.e(oload(j))
    a.e("s_waitcnt vmcnt(9)")
    a.e("s_branch L_tl2")
    a.lab("L_tl1")
    a.e("s_setprio 1")
    a.e("s_waitcnt vmcnt(1)")
    a.lab("L_tl2")
    a.e("s_barrier")
    hreg = {21: vH + 0, 22: vH + 4, 23: vH + 8, 24: vH + 16, 25: vH + 20, 26: vH + 24, 27: vH + 28}
    fl = collect(addrs)
    for i in range(7):
        if i + 2 < 7:
            for r in wd_reads(wf[(i + 2) % 3], vWDA, (i + 2) * 8192): a.e(r)
        else:
            for r in wd_reads(wf[(i + 2) % 3], vQA, HORD[i - 5] * 8192): a.e(r)
        a.e("s_waitcnt lgkmcnt(8)")
        for c in range(2):
            a.e(mfma(vD + 16 * c, wf[i % 3] + 4 * c, hreg[21 + i], vD + 16 * c))
            put(a, fl[:3]); fl = fl[3:]
    assert not fl
    a.e("s_cmp_lg_u32 s%d, 0" % sHI)
    a.e("s_cbranch_scc1 L_tl3")
    a.l.append(".p2align 3")
    a.e("s_nop 7")
    a.e("s_nop 0")
    for i in range(16): a.e("v_pk_mul_f32 %s, %s, %s op_sel:[0,1] op_sel_hi:[1,1]" % (v(vD + 2 * i, 2), v(vD + 2 * i, 2), v(vGP, 2)))
    if Opt.tbar == 0: a.e("s_barrier")
    a.lab("L_tl4")
    ol.lab("L_tl3")
    ol.e("s_setprio 0")
    for j in range(8):
        ol.e(oload(j))
        if j == 0: ol.e("s_nop 6")
        for i in range(4 * j, 4 * j + 4): ol.e("v_mul_f32 %s, %s, %s" % (v(vD + i), v(vGC), v(vD + i)))
    ol.e("s_barrier")
    ol.e("s_branch L_tl4")
    a.stamp(7)
    J1 = 8 - Opt.cskew
    wo = lambda j: wf[(j + 1) % 3] if j < J1 else vH + 8 * (j - J1)
    for j in range(8):
        o = vS + 4 * j
        if j + 2 < 8:
            for r in wd_reads(wo(j + 2), vQA, HORD[j + 2] * 8192): a.e(r)
        a.lab("L_ochk%d" % j)
        a.e("s_waitcnt vmcnt(%d)" % (7 - j))
        a.e("v_max3_u32 v2, %s, %s, %s" % (v(o), v(o + 1), v(o + 2)))
        a.e("v_max_u32 v2, v2, %s" % v(o + 3))
        a.e("v_cmp_eq_u32 vcc, -1, v2")
        a.e("s_cbranch_vccnz L_ore%d" % j)
        a.lab("L_ook%d" % j)
        a.e("s_waitcnt lgkmcnt(%d)" % (4 * min(2, 7 - j)))
        for c in range(2 if j < J1 else 1): a.e(mfma(vD + 16 * c, wo(j) + 4 * c, o, vD + 16 * c))
    wr = lambda c, j: "ds_write_b128 %s, %s offset:%d" % (v(aw + j), v(vD + 16 * c + 4 * j, 4), 128 * c)
    w0 = [wr(0, j) for j in range(4)]
    dist = 0
    for j in range(J1, 8):
        a.e(mfma(vD + 16, wo(j) + 4, vS + 4 * j, vD + 16)); dist += 1
        if dist < 12:
            a.e("s_nop 5"); dist += 6
        elif j < 7:
            a.e(w0.pop(0))
    a.stamp(8)
    if not Opt.cskew: a.e("s_nop 10")
    elif dist < 12: a.e("s_nop %d" % (11 - dist))
    n0 = len(w0)
    for x in w0: a.e(x)
    if Opt.cskew: a.e("s_nop %d" % (11 - n0))
    for j in range(4): a.e(wr(1, j))
    a.e("s_waitcnt lgkmcnt(0)")
    a.e("s_barrier")
    for p in range(4):
        for h in range(2): a.e(rd128(vS + 8 * p + 4 * h, ar + h, p * 8192))
    for p in range(1, 4):
        a.e("s_waitcnt lgkmcnt(%d)" % (6 - 2 * p))
        for i in range(4): a.e("v_pk_add_f32 %s, %s, %s" % (v(vS + 2 * i, 2), v(vS + 2 * i, 2), v(vS + 8 * p + 2 * i, 2)))
    for i in range(4): a.e("v_cvt_pk_bf16_f32 %s, %s, %s" % (v(vP + i), v(vS + 2 * i), v(vS + 2 * i + 1)))
    a.e("buffer_store_dwordx4 %s, %s, %s, s%d offen %s" % (v(vP, 4), v(ar + 2), srd(SOUT), sCNT, Opt.out_pol))
    if Opt.probe >= 0:
        a.e("s_waitcnt vmcnt(0)")
        a.stamp(9)
        if Opt.probe != 9:
            a.e("s_cmp_ge_u32 s%d, 14" % sM)
            a.e("s_cbranch_scc%d L_end" % (0 if Opt.probe_l else 1))
        a.e("s_sub_u32 s%d, s%d, s%d" % (sA, sSTAMP + 4, sSTAMP))
        a.e("s_mul_i32 s%d, s%d, %d" % (sA, sA, Opt.probe_mul - 1))
        a.e("s_min_u32 s%d, s%d, 100000" % (sA, sA))
        a.e("s_add_u32 s%d, s%d, 3800" % (sA, sA))
        if Opt.probe_w >= 0:
            a.e("s_cmp_lg_u32 s%d, %d" % (sHI, Opt.probe_w))
            a.e("s_cbranch_scc1 L_end")
        if Opt.probe_x >= 0:
            a.e("s_and_b32 s0, s2, 7")
            a.e("s_cmp_lg_u32 s0, %d" % Opt.probe_x)
            a.e("s_cbranch_scc1 L_end")
        a.lab("L_probe")
        a.e("s_memrealtime s[0:1]")
        a.e("s_waitcnt lgkmcnt(0)")
        a.e("s_sub_u32 s0, s0, s%d" % (sSTAMP + 4))
        a.e("s_cmp_lt_u32 s0, s%d" % sA)
        a.e("s_cbranch_scc1 L_probe")
    if Opt.pin == 9:
        a.e("s_waitcnt vmcnt(0)")
        a.stamp(9)
    if Opt.diag:
        a.e("s_waitcnt vmcnt(0)")
        a.stamp(9)
        a.e("s_mov_b32 s%d, s%d" % (sSTAMP + 3, sSTAMP))
        a.e("s_mov_b32 s%d, s%d" % (sSTAMP, sB))
        a.e("s_getreg_b32 s%d, hwreg(HW_REG_XCC_ID)" % (sSTAMP + 1))
        for i in range(20): a.e("v_mov_b32 %s, s%d" % (v(vS + i), sSTAMP + i))
        a.e("s_lshl_b32 s%d, s2, 3" % sA)
        a.e("s_add_u32 s%d, s%d, s%d" % (sA, sA, sW))
        a.e("s_lshl_b32 s%d, s%d, 7" % (sA, sA))
        a.e("s_add_u32 s%d, s%d, 0x%x" % (sA, sA, WS_STAMP))
        a.e("s_mov_b64 exec, 1")
        for i in range(5): a.e("buffer_store_dwordx4 %s, off, %s, s%d offset:%d" % (v(vS + 4 * i, 4), srd(SWS), sA, 16 * i))
    a.lab("L_end")
    a.e("s_endpgm")
    a.l += a.ool2
    for j in range(8):
        a.lab("L_ore%d" % j)
        a.e("s_sub_u32 s%d, s%d, 1" % (sB, sB))
        a.e("s_cbranch_scc1 L_ogive%d" % j)
        a.e("s_waitcnt vmcnt(0)")
        for i in range(j, 8): a.e(a.oload(i))
        a.e("s_branch L_ochk%d" % j)
        a.lab("L_ogive%d" % j)
        a.e("s_mov_b32 s%d, 0" % sB)
        a.e("s_branch L_ook%d" % j)

def fallback(a):
    a.lab("L_fb")
    m = vT0
    a.e("v_mov_b32 %s, 0xff800000" % v(m))
    a.e("s_mov_b32 s%d, 0" % sA)
    a.lab("L_fb1")
    a.e("buffer_load_dwordx4 %s, %s, %s, s%d offen sc1" % (v(vKF, 4), v(vL16), srd(SKV), sA))
    a.e("s_waitcnt vmcnt(0)")
    a.e(mfma(vS, vKF, vQ, None))
    a.e("s_add_u32 s%d, s%d, 2048" % (sA, sA))
    a.e("s_nop 11")
    for i in range(8): a.e("v_max3_f32 %s, %s, %s, %s" % (v(m), v(m), v(vS + 2 * i), v(vS + 2 * i + 1)))
    a.e("s_cmp_lt_u32 s%d, 0x20000" % sA)
    a.e("s_cbranch_scc1 L_fb1")
    a.e("v_mov_b32 %s, %s" % (v(m + 1), v(m)))
    a.e("s_nop 1")
    a.e("v_permlane32_swap_b32 %s, %s" % (v(m), v(m + 1)))
    a.e("s_nop 1")
    a.e("v_max_f32 %s, %s, %s" % (v(m), v(m), v(m + 1)))
    for i in range(16): a.e("v_sub_f32 %s, 0, %s" % (v(vS + 16 + i), v(m)))
    for i in range(16): a.e("v_mov_b32 %s, 0" % v(vO + i))
    a.e("s_mov_b32 s%d, 0" % sA)
    a.lab("L_fb2")
    a.e("s_add_u32 s%d, s%d, 0x%x" % (sB, sA, 63 * 2048))
    a.e("s_and_b32 s%d, s%d, 0x1ffff" % (sB, sB))
    a.e("buffer_load_dwordx4 %s, %s, %s, s%d offen sc1" % (v(vKF, 4), v(vL16), srd(SKV), sB))
    a.e("s_add_u32 s%d, s%d, 2048" % (sB, sA))
    a.e("s_and_b32 s%d, s%d, 0x1ffff" % (sB, sB))
    a.e("s_mov_b64 exec, %s" % sp(sVM))
    a.e("buffer_load_dwordx4 %s, %s, %s, s%d offen offset:1024 sc1" % (v(vV, 4), v(vL16), srd(SKV), sA))
    a.e("buffer_load_dwordx4 %s, %s, %s, s%d offen offset:1280 sc1" % (v(vV + 4, 4), v(vL16), srd(SKV), sB))
    a.e("s_mov_b64 exec, -1")
    a.e("s_waitcnt vmcnt(0)")
    a.e(mfma(vS, vKF, vQ, vS + 16))
    a.e("s_add_u32 s%d, s%d, 2048" % (sA, sA))
    a.e("s_nop 11")
    for i in range(16): a.e("v_exp_f32 %s, %s" % (v(vS + i), v(vS + i)))
    for i in range(8): a.e("v_cvt_pk_bf16_f32 %s, %s, %s" % (v(vP + i), v(vS + 2 * i), v(vS + 2 * i + 1)))
    a.e("s_nop 1")
    a.e(mfma(vO, vV, vP, vO))
    a.e(mfma(vO, vV + 4, vP + 4, vO))
    a.e("s_cmp_lt_u32 s%d, 0x20000" % sA)
    a.e("s_cbranch_scc1 L_fb2")
    a.e("s_nop 11")
    a.e("v_rcp_f32 %s, %s" % (v(vT0 + 2), v(vO + 8)))
    a.e("s_branch L_fbret")

def build():
    a = Asm()
    prologue(a)
    phase1_F(a)
    transition(a, "B")
    tail(a)
    a.l += a.ool
    transition(a, "A")
    phase1_L(a)
    fallback(a)
    a.lab("L_codeend")
    il = a.l.index("L_light:")
    for i, x in enumerate(a.l):
        if x.endswith(" lds") and "sc1" not in x and " nt" not in x:
            if (Opt.ntx & 4 and (srd(SWD) in x or srd(SWO) in x)) or (Opt.ntx & 8 and i > il):
                a.l[i] = x[:-4] + " nt lds"
    head = open("cdna_kernels/%s.s.ref" % NAME).read().split("\n")
    hdr = [l for l in head if l.startswith(";") and "@launch" not in l and "Override" not in l and "grid=" not in l]
    out = hdr + ["; @launch grid=(256,1,1) block=(512,1,1) lds=%d" % LDS_BYTES,
                 '.amdgcn_target "amdgcn-amd-amdhsa--gfx950"', ".text", ".globl %s_kernel" % NAME, ".p2align 8",
                 ".type %s_kernel,@function" % NAME,
                 ".set CODE_PF_MAX, L_codeend - L_nopf - 4" if Opt.code_pf else "",
                 "%s_kernel:" % NAME]
    out += ["; mapmode %d" % Opt.mapmode, "; xrot %d" % Opt.xrot]
    out += a.l
    out += ['.section .rodata,"a"', ".p2align 6", ".amdhsa_kernel %s_kernel" % NAME,
            "  .amdhsa_next_free_vgpr %d" % NV, "  .amdhsa_next_free_sgpr 102", "  .amdhsa_accum_offset 256",
            "  .amdhsa_group_segment_fixed_size 0", "  .amdhsa_kernarg_size 104", "  .amdhsa_user_sgpr_count 2",
            "  .amdhsa_user_sgpr_kernarg_segment_ptr 1", "  .amdhsa_system_sgpr_workgroup_id_x 1", ".end_amdhsa_kernel", ""]
    return "\n".join(out)

if __name__ == "__main__":
    path = sys.argv[1]
    for kv in sys.argv[2:]:
        k, val = kv.split("=")
        cur = getattr(Opt, k)
        setattr(Opt, k, val if isinstance(cur, str) else type(cur)(int(val)))
    open(path, "w").write(build())
```

```python
import sys, struct, math

NAME = "gated_mix__grouped_kv_mqa__geglu_ffn__prompt"

class Opt:
    diag = 0
    mapmode = 1
    force_fb = False
    out_pol = ""
    code_pf = True
    xrot = 0
    pregap = 0
    tpos = 1
    cskew = 0
    tch = 12
    stch = 8
    spos = 1
    tlb = 12
    olate = 1
    hrot = 0
    tbar = 0
    hord = 1
    cmap = 1
    kqx = 0
    oearly = 8
    conc = 1
    ghx = 1
    qa = "088888"
    qb = "577777"
    npre = 8
    stagger = 1
    rper = 2
    dma1 = 17
    kprio = 0
    dma0 = 8
    npd = 4
    kdiag = 0
    fillpre = 0
    fillper = 4
    gsc = 2
    sched = 0
    xmask = 1
    ntx = 0
    touch = 2
    rotg = 0
    rotm = 0
    startbar = 1
    pvz = 1
    pin = -1
    pin_ns = 60000
    probe = -1
    probe_x = -1
    probe_mul = 10
    probe_w = -1
    probe_l = 0

def f2u(x): return struct.unpack("<I", struct.pack("<f", x))[0]

WS_KV = 0
WS_G = 128 * 1024
WS_HFLAG = 192 * 1024
WS_OF = 1 << 20
WS_HF = 4 << 20
WS_STAMP = 12 << 20
WS_SIZE = 16 << 20
K1 = 1024
L_G, L_U, L_X, L_WQ = 0, 48 * K1, 96 * K1, 144 * K1
L_QX = 32 * K1
L_WD, L_WO, L_KV = 0, 64 * K1, 128 * K1
LL_X, LL_W, LL_GATE, LL_WQ = 0, 128 * K1, 144 * K1, 128 * K1
LDS_BYTES = 160 * K1

SX, SWG, SWU, SWQ, SWS, SWD, SWO, SOUT, SDBG, SWKV, SGATE, SKV = 4, 8, 12, 16, 20, 24, 28, 32, 36, 40, 44, 64
SWV = 72
sTMPP = 48
sW, sHI, sLO, sG, sM, sT, sCB = 50, 51, 52, 53, 54, 55, 56
sWK = 57
sWH = 58
sK64 = 59
sVM = 60
sRET = 62
sA, sB, sC, sD = 68, 69, 70, 71
sOFFW, sOFFQ, sCH, sXP = 72, 73, 74, 75
sHOFF, sWDOFF, sKVOFF, sM0WD, sM0KV, sCNT = 72, 73, 74, 75, 76, 77
sOST, sOLD, sHST = 78, 79, 80
sHST2 = 3
sRX, sRW, sM0B = 40, 41, 42
sKQ = 76
sHP = sM
sFREE = 81
sSTAMP = 82

def srd(b): return "s[%d:%d]" % (b, b + 3)
def sp(b): return "s[%d:%d]" % (b, b + 1)
def v(b, n=1): return "v%d" % b if n == 1 else "v[%d:%d]" % (b, b + n - 1)

vL16 = 1
vT0, vT1, vT2, vT3 = 2, 3, 4, 5
vGP, vGC = 6, 7
vKVA = 8
vWDA = 9
vWDV = 10
vONE = 11
vZERO = 12
vFLA = 13
vPOLL = 14
vGA = 15
vQ = 16
vK0 = 20
vV1L = 24
vE = 28
vP = 32
vV = 40
vO = 56
vD = 72
vACC = 104
vS = 104
vH = 136
vAQ = vP
vF1 = 168
vKF = 168
vWF = 176
vFR = 184
vLX = 224
vXA = 240
vWA = 244
vQA = 248
vDX, vDG, vDQ = 249, 250, 251
vC0 = 252
vTID = 255
vHA = 254
NV = 256

class Asm:
    def __init__(self):
        self.l = []
        self.vm = []
        self.nstamp = 0
    def e(self, s):
        for x in s.split("\n"):
            x = x.strip()
            if x: self.l.append("    " + x)
    def lab(self, s): self.l.append(s + ":")
    def vmop(self, s, tag):
        self.e(s); self.vm.append(tag)
    def vmn(self, tags):
        if isinstance(tags, str): tags = [tags]
        last = -1
        for i, t in enumerate(self.vm):
            if t in tags: last = i
        return None if last < 0 else len(self.vm) - 1 - last
    def waitvm(self, tags, lgkm=False):
        n = self.vmn(tags)
        if n is None:
            if lgkm: self.e("s_waitcnt lgkmcnt(0)")
            return
        assert n < 64
        self.e("s_waitcnt vmcnt(%d)%s" % (n, " lgkmcnt(0)" if lgkm else ""))
        self.vm = self.vm[len(self.vm) - n:] if n else []
    def wait0(self, lgkm=False):
        self.e("s_waitcnt vmcnt(0)%s" % (" lgkmcnt(0)" if lgkm else "")); self.vm = []
    def stamp(self, i, real=False):
        if Opt.probe == i:
            self.e("s_waitcnt lgkmcnt(0)")
            self.e("s_memrealtime %s" % sp(sSTAMP + 4))
            self.e("s_waitcnt lgkmcnt(0)")
        if Opt.pin == i:
            self.nstamp += 1
            self.e("s_waitcnt lgkmcnt(0)")
            self.e("s_cselect_b32 s%d, 1, 0" % (sSTAMP + 5))
            self.lab("L_pin%d" % self.nstamp)
            self.e("s_memrealtime s[0:1]")
            self.e("s_waitcnt lgkmcnt(0)")
            self.e("s_sub_u32 s0, s0, s%d" % sSTAMP)
            self.e("s_cmp_lt_u32 s0, %d" % (Opt.pin_ns // 10))
            self.e("s_cbranch_scc1 L_pin%d" % self.nstamp)
            self.e("s_cmp_lg_u32 s%d, 0" % (sSTAMP + 5))
        if Opt.diag and not Opt.kdiag and (Opt.diag == 1 or i == 9):
            self.e("s_waitcnt lgkmcnt(0)")
            self.e("s_memtime %s" % sp(sSTAMP + 2 * i))
            self.e("s_memrealtime %s" % sp(sRET))
            self.e("s_waitcnt lgkmcnt(0)")
            self.e("s_mov_b32 s%d, s%d" % (sSTAMP + 2 * i + 1, sRET))

def astamp(a, i):
    if Opt.diag and Opt.kdiag == 2: a.e("s_memtime %s" % sp(sSTAMP + 2 * i))

def kstamp(a, i):
    if Opt.probe == 18 + i: a.e("s_memrealtime %s" % sp(sSTAMP + 4))
    if Opt.diag and Opt.kdiag == 1: a.e("s_memtime %s" % sp(sSTAMP + 2 * i))

def mfma(d, a, b, c):
    return "v_mfma_f32_32x32x16_bf16 %s, %s, %s, %s" % (v(d, 16), v(a, 4), v(b, 4), "0" if c is None else v(c, 16))
def mfma16(d, a, b, c):
    return "v_mfma_f32_16x16x32_bf16 %s, %s, %s, %s" % (v(d, 4), v(a, 4), v(b, 4), "0" if c is None else v(c, 4))
def rd128(d, a, off):
    assert 0 <= off < 65536
    return "ds_read_b128 %s, %s offset:%d" % (v(d, 4), v(a), off)
def rdtr(d, a, off):
    assert 0 <= off < 65536
    return "ds_read_b64_tr_b16 %s, %s offset:%d" % (v(d, 2), v(a), off)

def interleave(mf, fill, per=2):
    out = []
    fill = list(fill)
    for i, m in enumerate(mf):
        out.append(m)
        if i < len(mf) - 1:
            out += fill[:per]; fill = fill[per:]
    return out + fill

def srd_words(a, regs):
    sizes = {SX: 2048 * 1024, SWG: 512 * 3584, SWU: 512 * 3584, SWQ: 512 * 1024, SWS: WS_SIZE, SWKV: 16384, SWV: 16384,
             SGATE: 1024, SWD: 1792 * 1024, SWO: 512 * 1024, SOUT: 2048 * 1024, SDBG: 256, SKV: 128 * 1024}
    for reg in regs:
        a.e("s_mov_b32 s%d, 0x%x" % (reg + 2, sizes[reg]))
        a.e("s_mov_b32 s%d, 0x20000" % (reg + 3))

def ptr_loads(a, lst):
    for reg, off in lst: a.e("s_load_dwordx2 %s, s[0:1], %d" % (sp(reg), off))

def prologue(a):
    if Opt.diag or Opt.pin >= 0 or Opt.probe >= 0:
        a.e("s_memrealtime %s" % sp(sSTAMP))
        if Opt.diag: a.e("s_memtime %s" % sp(sSTAMP + 2))
    ptr_loads(a, ((SX, 0), (SWG, 48), (SWU, 56), (SWQ, 8)))
    a.e("s_load_dwordx8 s[%d:%d], s[0:1], 64" % (SOUT, SOUT + 7))
    if not (Opt.diag or Opt.probe >= 0): ptr_loads(a, ((SWS, 96), (SWO, 32)))
    if Opt.probe == 1: a.stamp(1)
    a.e("v_lshrrev_b32 v2, 6, v0")
    if Opt.code_pf:
        a.e("s_getpc_b64 %s" % sp(sRET))
        a.lab("L_nopf")
        a.e("s_and_b32 s%d, s2, -8" % sA)
        a.e("v_add_lshl_u32 v3, v2, s%d, 7" % sA)
        a.e("v_readfirstlane_b32 s%d, v2" % sW)
        a.e("v_min_u32 v3, CODE_PF_MAX, v3")
        a.e("global_load_dword %s, v3, %s" % (v(vPOLL), sp(sRET)))
    else:
        a.e("s_nop 0")
        a.e("v_readfirstlane_b32 s%d, v2" % sW)
    if Opt.diag or Opt.probe >= 0:
        a.e("s_load_dwordx2 %s, s[0:1], 96" % sp(SWS))
    a.e("s_cmpk_ge_u32 s2, 256")
    a.e("s_cbranch_scc1 L_end")
    a.e("s_and_b32 s%d, s2, 1" % sD)
    a.e("s_bfe_u32 s%d, s2, 0x30003" % sA)
    a.e("s_lshl3_add_u32 s%d, s%d, s%d" % (sG, sD, sA))
    a.e("s_bfe_u32 s%d, s2, 0x20001" % sA)
    a.e("s_lshr_b32 s%d, s2, 6" % sB)
    a.e("s_lshl2_add_u32 s%d, s%d, s%d" % (sM, sA, sB))
    a.e("s_lshl_b32 s%d, s%d, 10" % (sWK, sW))
    a.e("s_cmp_ge_u32 s%d, 14" % sM)
    a.e("s_cbranch_scc1 L_light")

def xvoff(a, t):
    a.e("v_lshrrev_b32 v2, 4, %s" % v(t))
    a.e("v_xor_b32 v2, v2, %s" % v(t))
    a.e("v_and_b32 v2, 7, v2")
    a.e("s_lshl_b32 s%d, s%d, 17" % (sA, sG))
    a.e("v_lshl_add_u32 v2, v2, 4, s%d" % sA)
    a.e("v_lshrrev_b32 v3, 3, %s" % v(t))
    a.e("v_lshl_add_u32 %s, v3, 10, v2" % v(vDX))

def setup_ids(a):
    a.e("s_mov_b64 %s, %s" % (sp(SKV), sp(SWS)))
    a.e("s_mov_b64 %s, %s" % (sp(SWD), sp(SOUT)))
    a.e("s_mov_b64 %s, %s" % (sp(SOUT), sp(SOUT + 4)))
    a.e("s_mov_b64 %s, %s" % (sp(SDBG), sp(SOUT + 6)))
    a.e("v_and_b32 v0, 63, v0")
    a.e("v_lshlrev_b32 %s, 4, v0" % v(vL16))
    a.e("s_andn2_b32 s%d, 1, s2" % sA)
    a.e("s_bfe_u32 s%d, s2, 0x20001" % sB)
    a.e("s_lshl2_add_u32 s%d, s%d, s%d" % (sA, sA, sB))
    a.e("s_bfe_u32 s%d, s2, 0x20003" % sB)
    a.e("s_lshl2_add_u32 s%d, s%d, s%d" % (sT, sA, sB))
    a.e("s_lshr_b32 s%d, s2, 5" % sCB)

def setup_rd(a):
    a.e("s_lshr_b32 s%d, s%d, 2" % (sHI, sW))
    a.e("s_and_b32 s%d, s%d, 3" % (sLO, sW))
    a.e("v_and_b32 v2, 15, v0")
    a.e("v_lshrrev_b32 v3, 4, v0")
    a.e("v_bfe_u32 v4, v0, 1, 3")
    a.e("v_xor_b32 v4, v4, v3")
    a.e("v_lshlrev_b32 v4, 4, v4")
    a.e("v_lshl_add_u32 %s, v2, 7, v4" % v(vXA))
    a.e("v_bfe_u32 v2, v0, 2, 2")
    a.e("v_and_b32 v4, 3, v0")
    a.e("v_lshl_add_u32 %s, v3, 3, v2" % v(vQA))
    a.e("v_lshlrev_b32 %s, 6, %s" % (v(vQA), v(vQA)))
    a.e("v_xor_b32 v5, s%d, v3" % sHI)
    a.e("v_and_b32 v5, 1, v5")
    a.e("v_lshl_add_u32 %s, v5, 5, %s" % (v(vQA), v(vQA)))
    a.e("v_lshl_add_u32 %s, v4, 3, %s" % (v(vQA), v(vQA)))

def setup_oclr(a):
    srd_words(a, [SWS, SKV, SDBG])
    a.e("s_mov_b32 s%d, 0xffff" % sVM)
    a.e("s_mov_b32 s%d, 0xffff" % (sVM + 1))
    a.e("s_lshl_b32 s%d, s%d, 2" % (sA, sG))
    a.e("s_add_u32 s%d, s%d, s%d" % (sA, sA, sLO))
    a.e("s_lshl_b32 s%d, s%d, 5" % (sB, sA))
    a.e("s_lshl_b32 s%d, s%d, 1" % (sC, sHP))
    a.e("s_add_u32 s%d, s%d, s%d" % (sB, sB, sC))
    a.e("s_add_u32 s%d, s%d, s%d" % (sB, sB, sHI))
    a.e("s_lshl_b32 s%d, s%d, 10" % (sB, sB))
    a.e("s_add_u32 s%d, s%d, 0x%x" % (sOST, sB, WS_OF))
    for i in range(4): a.e("v_mov_b32 %s, -1" % v(vQ + i))
    a.vmop("buffer_store_dwordx4 %s, %s, %s, s%d offen sc1" % (v(vQ, 4), v(vL16), srd(SWS), sOST), "oclr")
    a.e("v_mov_b32 %s, 1" % v(vONE))
    a.e("v_mov_b32 %s, 0" % v(vZERO))
    a.e("v_and_b32 %s, 31, v0" % v(vGA))
    a.e("v_lshlrev_b32 %s, 2, %s" % (v(vGA), v(vGA)))

def collect(fn):
    t = Asm(); t.marks = {}
    def vmop(s_, tag):
        t.e(s_); t.marks[len(t.l) - 1] = tag
    t.vmop = vmop
    fn(t)
    return [(x, t.marks.get(i)) for i, x in enumerate(t.l)]
def put(a, items):
    for x, tag in items:
        if tag: a.vmop(x, tag)
        else: a.e(x)

def setup_attn(a):
    srd_words(a, [SWD, SWO, SOUT])
    a.e("s_lshl_b32 s%d, s%d, 2" % (sA, sG))
    a.e("s_add_u32 s%d, s%d, s%d" % (sA, sA, sLO))
    a.e("s_mul_i32 s%d, s%d, 112" % (sB, sA))
    a.e("s_lshl_b32 s%d, s%d, 3" % (sC, sM))
    a.e("s_add_u32 s%d, s%d, s%d" % (sB, sB, sC))
    a.e("s_lshl_b32 s%d, s%d, 2" % (sC, sHI))
    a.e("s_add_u32 s%d, s%d, s%d" % (sB, sB, sC))
    a.e("s_and_b32 s%d, s%d, 1" % (sC, sLO))
    a.e("s_lshl_b32 s%d, s%d, 1" % (sC, sC))
    a.e("s_add_u32 s%d, s%d, s%d" % (sB, sB, sC))
    a.e("s_lshl_b32 s%d, s%d, 10" % (sB, sB))
    a.e("s_add_u32 s%d, s%d, 0x%x" % (sHST, sB, WS_HF))
    a.e("s_mul_i32 s%d, s%d, %d" % (sC, sC, 112 * 1024))
    a.e("s_sub_u32 s%d, %d, s%d" % (sC, 112 * 1024, sC))
    a.e("s_add_u32 s%d, s%d, s%d" % (sHST2, sHST, sC))
    a.e("v_bfe_u32 v2, v0, 2, 2")
    a.e("v_lshrrev_b32 v3, 5, v0")
    a.e("v_lshl_add_u32 v2, v3, 2, v2")
    a.e("v_lshlrev_b32 v2, 6, v2")
    a.e("v_bfe_u32 v3, v0, 4, 1")
    a.e("v_lshl_add_u32 v2, v3, 5, v2")
    a.e("v_and_b32 v3, 3, v0")
    a.e("v_lshl_add_u32 v2, v3, 3, v2")
    a.e("s_lshr_b32 s%d, s%d, 1" % (sA, sW))
    a.e("s_lshl_b32 s%d, s%d, 11" % (sA, sA))
    a.e("v_add_u32 %s, s%d, v2" % (v(vWDA), sA))
    a.e("v_add_u32 %s, 0x%x, %s" % (v(vKVA), L_KV, v(vL16)))
    a.e("v_bfe_u32 v2, v0, 2, 3")
    a.e("v_lshlrev_b32 v2, 10, v2")
    a.e("v_lshrrev_b32 v3, 5, v0")
    a.e("v_lshl_add_u32 v2, v3, 6, v2")
    a.e("v_and_b32 v3, 3, v0")
    a.e("v_lshl_add_u32 v2, v3, 4, v2")
    a.e("s_lshl_b32 s%d, s%d, 7" % (sB, sCB))
    a.e("v_add_u32 %s, s%d, v2" % (v(vWDV), sB))
    a.e("v_min_u32 v2, 13, v0")
    a.e("v_lshlrev_b32 v2, 7, v2")
    a.e("s_lshr_b32 s%d, s%d, 1" % (sA, sT))
    a.e("s_lshl_b32 s%d, s%d, 11" % (sA, sA))
    a.e("s_add_u32 s%d, s%d, 0x%x" % (sA, sA, WS_HFLAG))
    a.e("v_add_u32 %s, s%d, v2" % (v(vFLA), sA))
    a.e("s_lshl_b32 s%d, s%d, 1" % (sA, sT))
    a.e("s_and_b32 s%d, s%d, 1" % (sB, sW))
    a.e("s_add_u32 s%d, s%d, s%d" % (sA, sA, sB))
    a.e("s_lshl_b32 s%d, s%d, 15" % (sB, sA))
    a.e("s_lshr_b32 s%d, s%d, 1" % (sKQ, sW))
    if Opt.kqx:
        a.e("s_lshl_b32 s%d, s%d, 1" % (sC, sCB))
        a.e("s_and_b32 s%d, s%d, 2" % (sC, sC))
        a.e("s_xor_b32 s%d, s%d, s%d" % (sKQ, sKQ, sC))
    a.e("s_lshl_b32 s%d, s%d, 13" % (sC, sKQ))
    a.e("s_add_u32 s%d, s%d, s%d" % (sB, sB, sC))
    a.e("s_add_u32 s%d, s%d, 0x%x" % (sOLD, sB, WS_OF))
    if Opt.pvz:
        a.e("s_mov_b32 s%d, 0x110000" % sA)
        a.e("s_mov_b32 s%d, 0x110000" % sB)
        a.e("v_mov_b32 v3, 0x3f803f80")
        a.e("v_cndmask_b32 v2, 0, v3, %s" % sp(sA))
    else:
        a.e("v_mov_b32 v2, 0x3f803f80")
    for i in range(16): a.e("v_mov_b32 %s, v2" % v(vV + i))
    for i in range(4): a.e("v_mov_b32 %s, v2" % v(vV1L + i))
    for i in range(4): a.e("v_mov_b32 %s, 0" % v(vE + i))
    a.e("v_lshrrev_b32 v2, 4, v0")
    a.e("v_lshl_add_u32 %s, v2, 8, %s" % (v(vHA), v(vL16)))
    for i in range(16): a.e("v_mov_b32 %s, 0" % v(vO + i))
    for i in range(32): a.e("v_mov_b32 %s, 0" % v(vD + i))
    c0 = -2.0 * math.sqrt(2.0 / math.pi) * math.log2(math.e)
    a.e("v_mov_b32 %s, 0x%x" % (v(vC0), f2u(c0)))
    a.e("v_mov_b32 %s, 0x%x" % (v(vC0 + 1), f2u(c0 * 0.044715)))

def kv_first_loads(a, quartet=False):
    it = []
    for o in (range(0, 16384, 4096) if quartet else range(0, 16384, 8192)):
        b = sWH if quartet else sWK
        it.append(("s_add_u32 m0, s%d, 0x%x\ns_add_u32 s%d, s%d, 0x%x\nbuffer_load_dwordx4 %s, %s, s%d offen sc1 lds"
                   % (b, L_KV + o, sA, b, o, v(vL16), srd(SKV), sA), "kv%d" % (o >> 13)))
    it.append(("s_mov_b32 s%d, 0x%x\nbuffer_load_dwordx4 %s, %s, %s, s%d offen sc1"
               % (sA, 63 * 2048, v(vK0, 4), v(vL16), srd(SKV), sA), "k0"))
    it.append(("s_mov_b64 exec, %s\nbuffer_load_dwordx4 %s, %s, %s, 0 offen offset:%d sc1\ns_mov_b64 exec, -1"
               % (sp(sVM), v(vV1L, 4), v(vL16), srd(SKV), 1024 + 256), "k0"))
    it.append(("s_lshl_b32 s%d, s%d, 2\ns_add_u32 s%d, s%d, s%d\ns_lshl_b32 s%d, s%d, 7\ns_add_u32 s%d, s%d, 0x%x\n"
               "buffer_load_dword %s, %s, %s, s%d offen sc1"
               % (sA, sG, sA, sA, sLO, sA, sA, sA, sA, WS_G, v(vGP), v(vGA), srd(SWS), sA), "k0"))
    it.append(("s_lshl_b32 s%d, s%d, 1\ns_and_b32 s%d, s%d, 1\ns_add_u32 s%d, s%d, s%d\ns_lshl_b32 s%d, s%d, 7\ns_add_u32 s%d, s%d, 0x%x\n"
               "buffer_load_dword %s, %s, %s, s%d offen sc1"
               % (sA, sT, sB, sW, sA, sA, sB, sA, sA, sA, sA, WS_G, v(vGC), v(vGA), srd(SWS), sA), "k0"))
    return it

def spin_counter(a, name, first_loaded, wave=0):
    a.e("s_cmp_lg_u32 s%d, %d" % (sW, wave))
    a.e("s_cbranch_scc1 L_%s_done" % name)
    a.e("s_mov_b32 s%d, 0x4000" % sB)
    if first_loaded: a.e("s_branch L_%s_chk" % name)
    a.lab("L_%s_re" % name)
    a.e("buffer_load_dword %s, off, %s, 0 sc1" % (v(vPOLL), srd(SDBG)))
    a.e("s_waitcnt vmcnt(0)")
    a.lab("L_%s_chk" % name)
    a.e("v_readfirstlane_b32 s%d, %s" % (sA, v(vPOLL)))
    a.e("s_cmp_ge_u32 s%d, 32" % sA)
    a.e("s_cbranch_scc1 L_%s_done" % name)
    a.e("s_sleep 4")
    a.e("s_sub_u32 s%d, s%d, 1" % (sB, sB))
    a.e("s_cmp_lg_u32 s%d, 0" % sB)
    a.e("s_cbranch_scc1 L_%s_re" % name)
    a.lab("L_%s_done" % name)

def phase1_F(a):
    SCHED = {1: ["01423567", "10253467", "23016457", "32104756"],
             2: ["02134657", "01324576", "10243567", "10235467"],
             3: ["01324657", "01243576", "12035467", "20134567"],
             5: ["01243567", "10325467", "23014657", "32104576"],
             6: ["01243567", "10325467", "01234657", "10324576"],
             4: ["02143657", "10325476", "02143657", "10325476"]}
    tabs = SCHED[Opt.sched] if Opt.sched else ["".join(str(c ^ (p & Opt.xmask)) for c in range(8)) for p in range(4)]
    for t_ in tabs: assert sorted(t_) == list("01234567")
    num = [int(t_[::-1], 16) for t_ in tabs]
    def table(a):
        a.e("s_add_u32 s%d, s%d, s%d" % (sA, sG, sHP))
        a.e("s_mov_b32 s%d, 0x%x" % (sXP, num[0]))
        a.e("s_mov_b32 s%d, 0x%x" % (sB, num[2]))
        a.e("s_bitcmp1_b32 s%d, 0" % sA)
        a.e("s_cselect_b32 s%d, 0x%x, s%d" % (sXP, num[1], sXP))
        a.e("s_cselect_b32 s%d, 0x%x, s%d" % (sB, num[3], sB))
        a.e("s_bitcmp1_b32 s%d, 1" % sA)
        a.e("s_cselect_b32 s%d, s%d, s%d" % (sXP, sB, sXP))
        if Opt.ghx:
            a.e("s_bitcmp1_b32 s%d, 3" % sG)
            a.e("s_cselect_b32 s%d, 0x44444444, 0" % sB)
            a.e("s_xor_b32 s%d, s%d, s%d" % (sXP, sXP, sB))
    fo, fw = {"0000": (0, 0), "0101": (0, 1), "0011": (1, 1), "0123": (0, 2)}["".join(t_[0] for t_ in tabs)]
    a.e("s_add_u32 s%d, s%d, s%d" % (sA, sG, sHP))
    a.e("s_bfe_u32 s%d, s%d, 0x%x" % (sCH, sA, fw << 16 | fo))
    if Opt.ghx: a.e("s_lshl2_add_u32 s%d, s%d, s%d" % (sCH, sD, sCH))
    a.e("s_and_b32 s%d, s%d, 0xc00" % (sWH, sWK))
    a.e("v_and_b32 %s, 0xff, v0" % v(vTID))

    def wvoff(a):
        a.e("v_lshrrev_b32 v2, 4, %s" % v(vTID))
        a.e("v_lshrrev_b32 v3, 5, %s" % v(vTID))
        a.e("v_bfi_b32 v3, 3, v2, v3")
        a.e("v_lshlrev_b32 v3, 1, v3")
        a.e("v_xor_b32 v3, v3, %s" % v(vTID))
        a.e("v_and_b32 v3, 15, v3")
        a.e("s_lshl_b32 s%d, s%d, 8" % (sA, sM))
        a.e("v_lshl_add_u32 v3, v3, 4, s%d" % sA)
        a.e("v_mul_u32_u24 v2, 3584, v2")
        a.e("v_add_u32 %s, v2, v3" % v(vDG))
    def qvoff(a):
        a.e("v_lshrrev_b32 v2, 4, %s" % v(vTID))
        a.e("v_and_b32 v2, 2, v2")
        a.e("v_xor_b32 v2, v2, %s" % v(vTID))
        a.e("v_and_b32 v2, 3, v2")
        a.e("s_lshl_b32 s%d, s%d, 6" % (sA, sHP))
        a.e("v_lshl_add_u32 v2, v2, 4, s%d" % sA)
        a.e("v_lshrrev_b32 v3, 2, %s" % v(vTID))
        a.e("v_lshl_add_u32 %s, v3, 10, v2" % v(vDQ))
    def stouch(a):
        if Opt.diag or Opt.probe >= 0: a.e("s_load_dwordx2 %s, s[0:1], 32" % sp(SWO))
        if not Opt.stch: return
        a.e("s_lshr_b32 s%d, s%d, 2" % (sA, sW))
        if Opt.ghx: a.e("s_lshl2_add_u32 s%d, s%d, s%d" % (sA, sD, sA))
        a.e("s_lshl_b32 s%d, s%d, 6" % (sA, sA))
        a.e("s_and_b32 s%d, s%d, 7" % (sB, sG))
        a.e("s_add_u32 s%d, s%d, s%d" % (sA, sA, sB))
        a.e("s_mul_i32 s%d, s%d, 28" % (sA, sA))
        a.e("s_bfe_u32 s%d, s%d, 0x10001" % (sB, sW))
        a.e("s_lshl1_add_u32 s%d, s%d, s%d" % (sB, sM, sB))
        a.e("s_add_u32 s%d, s%d, s%d" % (sA, sA, sB))
        a.e("s_lshl_b32 s%d, s%d, 7" % (sA, sA))
        a.e("s_bitcmp1_b32 s%d, 0" % sW)
        a.e("s_cselect_b64 %s, %s, %s" % (sp(SWKV), sp(SWU), sp(SWG)))
        a.e("s_add_u32 s%d, s%d, s%d" % (SWKV, SWKV, sA))
        a.e("s_addc_u32 s%d, s%d, 0" % (SWKV + 1, SWKV + 1))
        for i in range(Opt.stch):
            a.e("s_load_dwordx2 %s, %s, 0x%x" % (sp(sTMPP), sp(SWKV), 128 * 3584 + i * 8 * 3584 + 60))
    def wsrd(a):
        srd_words(a, [SWG])
        a.e("s_mov_b64 %s, %s" % (sp(SWU + 2), sp(SWG + 2)))

    if Opt.hrot:
        ORDER = [("q", 0)] + [(t_, 2 * h_ + j) for h_ in range(2) for t_, j in (("x", 0), ("x", 1), ("g", 0), ("u", 0), ("g", 1), ("u", 1))]
    else:
        ORDER = [("q", 0)] + [("x", j) for j in range(4)] + [(t_, j) for j in range(4) for t_ in "gu"]
    def block(items):
        out = []; lastc = None; lastw = None
        for c, kind, j in items:
            s = c % 3; pre = []
            if c != lastc:
                if c: pre.append("s_bfe_u32 s%d, s%d, 0x%x" % (sCH, sXP, 0x30000 + 4 * c))
                lastc = c; lastw = None
            fam = "w" if kind in "gu" else kind
            rot = Opt.hrot and fam != "q"
            if lastw is None or lastw[0] != fam or (rot and lastw[1] >> 1 != j >> 1):
                pre.append({"q": "s_lshl_b32 s%d, s%d, 16" % (sOFFW, sCH), "x": "s_lshl_b32 s%d, s%d, 7" % (sOFFW, sCH),
                            "w": "s_mul_i32 s%d, s%d, %d" % (sOFFW, sCH, 64 * 3584)}[fam])
                if rot: pre.append("s_%s_u32 s%d, s%d, s%d" % ("sub" if j >> 1 else "add", sOFFW, sOFFW, sRX if fam == "x" else sRW))
                lastw = (fam, 0)
            if lastw[1] != j:
                pre.append("s_add_u32 s%d, s%d, 0x%x" % (sOFFW, sOFFW, (j - lastw[1]) * (0x8000 if fam == "x" else 16 * 3584)))
                lastw = (fam, j)
            m0c, vo, rs = {"q": (L_WQ + s * 4096, vDQ, SWQ), "x": (L_X + s * 16384 + j * 4096, vDX, SX),
                           "g": (L_G + s * 16384 + j * 4096, vDG, SWG), "u": (L_U + s * 16384 + j * 4096, vDG, SWU)}[kind]
            nt = " nt" if Opt.ntx & (1 if rs == SX else 2) else ""
            out.append(("s_add_u32 m0, s%d, 0x%x\n%s\nbuffer_load_dwordx4 %s, %s, s%d offen%s lds"
                        % ((sM0B + (j >> 1)) if rot else sWH, m0c, "\n".join(pre) or "s_nop 0", v(vo), srd(rs), sOFFW, nt), "c%d" % c))
        return out
    def part(c, role): return [(c, k_, j) for k_, j in ORDER if (k_ in "gu") == (role == "A")]

    def rdsetup(a):
        setup_rd(a)
        a.e("v_lshl_add_u32 %s, v3, 3, v2" % v(vWA))
        a.e("v_lshlrev_b32 %s, 8, %s" % (v(vWA), v(vWA)))
        a.e("v_lshl_add_u32 %s, v4, 3, %s" % (v(vWA), v(vWA)))
        a.e("v_and_b32 v5, 1, v3")
        a.e("v_lshl_add_u32 v2, v5, 2, v2")
        a.e("s_lshl_b32 s%d, s%d, 2" % (sA, sHI))
        a.e("s_and_b32 s%d, s%d, 1" % (sB, sLO))
        a.e("s_lshl_b32 s%d, s%d, 1" % (sB, sB))
        a.e("s_add_u32 s%d, s%d, s%d" % (sA, sA, sB))
        a.e("v_xor_b32 v2, s%d, v2" % sA)
        a.e("v_lshl_add_u32 %s, v2, 5, %s" % (v(vWA), v(vWA)))
        a.e("v_xor_b32 %s, 32, %s" % (v(vWA + 1), v(vWA)))
        a.e("v_add_u32 %s, 0x%x, %s" % (v(vWA + 2), L_U - L_G, v(vWA)))
        a.e("v_add_u32 %s, 0x%x, %s" % (v(vWA + 3), L_U - L_G, v(vWA + 1)))
        a.e("s_lshl_b32 s%d, s%d, 12" % (sA, sLO))
        a.e("s_add_u32 s%d, s%d, 0x%x" % (sA, sA, L_X))
        a.e("v_add_u32 %s, s%d, %s" % (v(vXA), sA, v(vXA)))
        a.e("v_xor_b32 %s, 0x1000, %s" % (v(vXA + 1), v(vXA)))
        a.e("v_xor_b32 %s, 64, %s" % (v(vXA + 2), v(vXA)))
        a.e("v_xor_b32 %s, 64, %s" % (v(vXA + 3), v(vXA + 1)))
        a.e("v_add_u32 %s, 0x%x, %s" % (v(vQA), L_WQ, v(vQA)))

    a.e("s_cmp_ge_u32 s%d, 4" % sW)
    a.e("s_cbranch_scc1 L_setB")
    late = collect(setup_oclr) + collect(setup_attn)
    words = collect(lambda t: srd_words(t, [SWS, SKV, SDBG, SWD, SWO, SOUT]))
    late = [x for x in late if x not in words]
    oclr = [x for x in late if x[1] == "oclr"]
    if Opt.olate: late = [x for x in late if x[1] != "oclr"]
    else: oclr = []
    words += [("v_mov_b32 %s, 0" % v(r_), None) for r_ in (vGA, vWDV, vFLA, vHA)]
    st = collect(rdsetup) + words + late[:Opt.fillpre]
    fills = {"A": late[Opt.fillpre:], "B": late[Opt.fillpre:]}
    vms = {}
    wsrd(a); wvoff(a)
    a.e("s_waitcnt lgkmcnt(0)")
    a.stamp(2)
    if Opt.spos == 0: stouch(a)
    put(a, block(part(0, "A")))
    a.e("s_branch L_setA")
    vms["A"] = a.vm; a.vm = []
    a.lab("L_setB")
    srd_words(a, [SX]); xvoff(a, vTID)
    a.e("s_waitcnt lgkmcnt(0)")
    a.stamp(2)
    if Opt.spos == 0: stouch(a)
    put(a, block(part(0, "B")[1:]))
    srd_words(a, [SWQ]); qvoff(a)
    put(a, block(part(0, "B")[:1]))
    vms["B"] = a.vm
    for role in "BA":
        a.vm = vms[role]
        if role == "A": a.lab("L_setA")
        if Opt.spos == 1: stouch(a)
        table(a)
        setup_ids(a)
        if role == "A": srd_words(a, [SX, SWQ])
        else: wsrd(a)
        def touches():
            tm = sum(0xff << (8 * i) for i in range(4) if Opt.tch >> i & 1)
            setex = "s_bitcmp1_b32 s%d, 3\ns_cselect_b32 exec_lo, 0, 0x%x\ns_cselect_b32 exec_hi, 0x%x, 0" % (sG, tm, tm) if Opt.ghx \
                    else "s_mov_b32 exec_lo, 0x%x\ns_mov_b32 exec_hi, 0" % tm
            if Opt.tlb & 2 and role == "B":
                a.e("s_and_b32 s%d, s%d, 7" % (sA, sG))
                a.e("v_lshl_add_u32 v2, v0, 3, s%d" % sA)
                a.e("v_mul_u32_u24 v3, 3584, v2")
                a.e("s_and_b32 s%d, s%d, 1" % (sB, sW))
                a.e("s_lshl1_add_u32 s%d, s%d, s%d" % (sA, sM, sB))
                a.e("s_lshl_b32 s%d, s%d, 7" % (sA, sA))
                a.e(setex)
                a.e("s_cmp_ge_u32 s%d, 6" % sW)
                a.e("s_cbranch_scc1 L_tlbu")
                a.e("buffer_load_dword %s, v3, %s, s%d offen" % (v(vPOLL), srd(SWG), sA))
                a.e("s_branch L_tlbe")
                a.lab("L_tlbu")
                a.e("buffer_load_dword %s, v3, %s, s%d offen" % (v(vPOLL), srd(SWU), sA))
                a.lab("L_tlbe")
                a.e("s_mov_b64 exec, -1")
                a.vm.append("tlb")
            if Opt.tlb & 12 and role == "A":
                a.e("s_cmp_lg_u32 s%d, 0" % sW)
                a.e("s_cbranch_scc1 L_tlbx")
                a.e("s_and_b32 s%d, s%d, 7" % (sA, sG))
                a.e("v_lshl_add_u32 v2, v0, 3, s%d" % sA)
                a.e("v_lshlrev_b32 v3, 10, v2")
                a.e("s_lshl_b32 s%d, s%d, 6" % (sA, sHP))
                a.e(setex if Opt.tlb & 4 else "s_mov_b64 exec, 1")
                a.e("buffer_load_dword %s, v3, %s, s%d offen" % (v(vPOLL), srd(SWQ), sA))
                a.e("s_branch L_tlby")
                a.lab("L_tlbx")
                a.e("s_and_b32 s%d, s%d, 3" % (sA, sM))
                a.e("s_lshl2_add_u32 s%d, s%d, s%d" % (sA, sG, sA))
                a.e("s_lshl_b32 s%d, s%d, 15" % (sA, sA))
                a.e("v_lshl_add_u32 v3, v0, 10, s%d" % sA)
                a.e("s_lshr_b32 s%d, s%d, 3" % (sA, sG))
                a.e("s_lshl2_add_u32 s%d, s%d, s%d" % (sA, sA, sW) if Opt.ghx else "s_mov_b32 s%d, s%d" % (sA, sW))
                a.e("s_lshl_b32 s%d, s%d, 7" % (sA, sA))
                a.e("s_bitcmp1_b32 %d, s%d" % (Opt.tch if Opt.tlb & 8 else 0, sW))
                a.e("s_cselect_b32 exec_lo, -1, 1")
                a.e("s_mov_b32 exec_hi, 0")
                a.e("buffer_load_dword %s, v3, %s, s%d offen" % (v(vPOLL), srd(SX), sA))
                a.lab("L_tlby")
                a.e("s_mov_b64 exec, -1")
                a.vm.append("tlb")
        if Opt.tpos == 0: touches()
        if Opt.startbar: a.e("s_barrier")
        npre = min(Opt.npre, 8) if role == "A" else 5
        pn = block(part(1, role)[:npre])
        rest = st + (collect(qvoff) + collect(lambda t: xvoff(t, vTID)) if role == "A" else collect(wvoff))
        gap = len(rest) // (npre + Opt.pregap) + 1
        for i in range(npre):
            put(a, pn[:1]); pn = pn[1:]
            put(a, rest[:gap]); rest = rest[gap:]
        put(a, rest)
        if Opt.tpos == 1: touches()
        a.e("s_mov_b64 vcc, %d" % (-1 if role == "A" else 0))
        if role == "A":
            a.waitvm("c0", lgkm=True)
        else:
            a.e("s_setprio 1")
            a.waitvm("c0", lgkm=True)
            a.e("s_branch L_k0")
        vms[role] = a.vm
    stream = part(1, "A")[min(Opt.npre, 8):] + [(c, k_, j) for c in range(2, 8) for k_, j in ORDER]
    qa = [int(x, 16) for x in Opt.qa]; qb = [int(x, 16) for x in Opt.qb]
    def take(n, cmax):
        m = 0
        while m < n and m < len(stream) and stream[m][0] <= cmax: m += 1
        r_ = stream[:m]; del stream[:m]
        return block(r_)
    a.lab("L_k0")
    a.vm = vms["A"]
    ool = Asm()
    def dmablock(name, role, items, wait=None):
        a.e("s_cbranch_vcc%s L_%s" % ("nz" if role == "A" else "z", name))
        if wait: a.waitvm(wait, lgkm=True)
        a.lab("L_%s_r" % name)
        ool.lab("L_%s" % name)
        ool.vm = a.vm if role == "A" else vms["B"]
        for it_ in items:
            put(ool, [it_])
            put(ool, fills[role][:Opt.fillper]); fills[role] = fills[role][Opt.fillper:]
        if name in ("d7", "e7"): put(ool, fills[role]); fills[role] = []
        if wait: ool.waitvm(wait, lgkm=True)
        if role == "B": vms["B"] = ool.vm
        ool.e("s_branch L_%s_r" % name)
    a.ool = ool.l

    def fr(k):
        b = vF1 + 36 * (k % 2)
        return dict(x=b, w=b + 16, q=b + 32)
    def reads(k):
        c, s = divmod(k, 2); f = fr(k); sl = c % 3
        wo = sl * 16384 + s * 8192
        W = lambda i: [rdtr(f['w'] + 4 * i, vWA + i, wo), rdtr(f['w'] + 4 * i + 2, vWA + i, wo + 1024)]
        X = [rd128(f['x'] + 4 * b, vXA + 2 * s + (b >> 1), sl * 16384 + (b & 1) * 2048) for b in range(4)]
        return W(0) + X + W(2) + W(1) + W(3) + [rdtr(f['q'], vQA, sl * 4096 + s * 2048), rdtr(f['q'] + 2, vQA, sl * 4096 + s * 2048 + 256)]
    a.e("s_barrier")
    a.stamp(3)
    if Opt.kdiag or Opt.probe >= 18:
        kstamp(a, 2)
        a.e("s_waitcnt lgkmcnt(0)")
    for r in reads(0): a.e(r)
    if qa[0]: dmablock("d2", "A", take(qa[0], 2))
    for k in range(16):
        c, s = divmod(k, 2); f = fr(k)
        z = lambda x: None if k == 0 else x
        mf = []
        for n_, i in enumerate((0, 2, 1, 3)):
            for b in (range(4) if n_ % 2 == 0 else range(3, -1, -1)):
                d = vACC + 16 * b + 4 * i
                mf.append(mfma16(d, f['w'] + 4 * i, f['x'] + 4 * b, z(d)))
        for b in range(2): mf.append(mfma16(vAQ + 4 * b, f['q'], f['x'] + 4 * b, z(vAQ + 4 * b)))
        rds = reads(k + 1) if k < 15 else []
        if s == 0:
            a.e("s_waitcnt lgkmcnt(6)")
            for i, m in enumerate(mf):
                if i == 8: a.e("s_waitcnt lgkmcnt(8)")
                a.e(m)
                if i < len(rds): a.e(rds[i])
            continue
        a.e("s_waitcnt lgkmcnt(8)")
        for m in mf[:4]: a.e(m)
        if c <= 5:
            dmablock("e%d" % (c + 2), "B", take(qb[c], c + 2), "c%d" % (c + 1))
            assert not any(x[0] <= c + 1 for x in stream)
        if c == 7:
            a.e("s_waitcnt lgkmcnt(0)")
        elif c == 6:
            a.e("s_waitcnt lgkmcnt(0)")
            a.e("s_cbranch_vccz L_st7")
            a.e("s_setprio 1")
            a.e("s_waitcnt vmcnt(0)")
            a.e("s_barrier")
            a.lab("L_st7")
        else:
            a.e("s_barrier")
        if c < 7 and ((Opt.kdiag == 1 and Opt.diag) or Opt.probe == 21 + c):
            kstamp(a, 3 + c)
            a.e("s_waitcnt lgkmcnt(0)")
        if c + 3 < 8:
            items = take(qa[c + 1], c + 3)
            dmablock("d%d" % (c + 3), "A", items)
        for i, m in enumerate(mf[4:]):
            a.e(m)
            if i < len(rds): a.e(rds[i])
        if k == 11: assert not stream and not fills["A"] and not fills["B"]
        if k == 11:
            a.e("s_cbranch_vccnz L_st6")
            a.e("s_setprio 0")
            spin_counter(a, "kvf", False, 4)
            a.wait0()
            a.e("s_barrier")
            put(a, kv_first_loads(a, True) + oclr)
            a.lab("L_st6")
    a.kvA = (kv_first_loads(a) + oclr)[2:]
    a.stamp(4)

def phase1_L(a):
    a.lab("L_light")
    a.vm = []
    a.e("s_waitcnt lgkmcnt(0)")
    ptr_loads(a, ((SWKV, 16), (SWV, 24), (SGATE, 72), (SWO, 32)))
    srd_words(a, [SWKV, SWV, SGATE, SX])
    xvoff(a, 0)
    a.e("v_and_b32 v2, 63, v0")
    a.e("v_lshlrev_b32 %s, 4, v2" % v(vL16))
    a.e("s_sub_u32 s%d, s%d, 14" % (sCNT, sM))
    a.e("s_lshl_b32 s%d, s%d, 16" % (sOLD, sCNT))
    a.e("s_lshl_b32 s%d, s%d, 13" % (sHST, sCNT))
    a.e("s_add_u32 s%d, s%d, s%d" % (sWH, sHST, sWK))
    a.e("s_xor_b32 s%d, s%d, 0x2000" % (sHST, sHST))
    a.e("s_add_u32 s%d, s%d, 0x2000" % (sA, sWK))
    a.e("s_waitcnt lgkmcnt(0)")
    a.stamp(2)
    def xdma(c, base, so):
        a.vmop("s_add_u32 m0, s%d, 0x%x\ns_nop 0\nbuffer_load_dwordx4 %s, %s, s%d offen offset:%d lds"
               % (base, LL_X + c * 16384 - c * 128, v(vDX), srd(SX), so, c * 128), "c%d" % c)
    def wdma(u):
        for t, rs in enumerate((SWKV, SWV)):
            a.vmop("s_add_u32 m0, s%d, 0x%x\ns_nop 0\nbuffer_load_dwordx4 %s, %s, s%d offen lds"
                   % (sWK, LL_W + t * 16384 + u * 8192, v(vL16), srd(rs), sA if u else sWK), "w")
    wdma(0)
    a.vmop("s_mov_b32 m0, s%d\ns_nop 0\nbuffer_load_dwordx4 %s, %s, 0 offen lds" % (sHST, v(vL16), srd(SGATE)), "w")
    for c in range(8):
        if c == 4: wdma(1)
        xdma(c, sWH, sOLD)
        if c in (1, 3, 5): a.e("s_barrier")
    setup_ids(a)
    srd_words(a, [SWQ])
    setup_rd(a)
    a.e("v_lshrrev_b32 v3, 5, v0")
    a.e("v_bfrev_b32 v5, v4")
    a.e("v_lshrrev_b32 v5, 30, v5")
    a.e("s_cmp_ge_u32 s%d, 2" % sLO)
    a.e("s_cselect_b64 vcc, -1, 0")
    a.e("v_cndmask_b32 v4, v5, v4, vcc")
    a.e("v_lshl_add_u32 %s, v3, 3, v2" % v(vWA))
    a.e("v_lshlrev_b32 %s, 5, %s" % (v(vWA), v(vWA)))
    a.e("v_lshl_add_u32 %s, v4, 3, %s" % (v(vWA), v(vWA)))
    a.e("s_lshr_b32 s%d, s%d, 1" % (sA, sLO))
    a.e("s_lshl_b32 s%d, s%d, 14" % (sA, sA))
    a.e("s_add_u32 s%d, s%d, 0x%x" % (sA, sA, LL_W))
    a.e("v_add_u32 %s, s%d, %s" % (v(vWA), sA, v(vWA)))
    a.e("v_lshl_add_u32 %s, v3, 4, s%d" % (v(vWA + 1), sHST))
    a.e("s_and_b32 s%d, s%d, 1" % (sA, sLO))
    a.e("s_lshl_b32 s%d, s%d, 1" % (sB, sCNT))
    a.e("s_add_u32 s%d, s%d, s%d" % (sCNT, sA, sB))
    a.e("s_lshl_b32 s%d, s%d, 12" % (sA, sCNT))
    a.e("v_and_b32 v2, 31, v0")
    a.e("v_bfe_u32 v4, v0, 1, 3")
    a.e("v_xor_b32 v4, v4, v3")
    a.e("v_lshlrev_b32 v4, 4, v4")
    a.e("v_lshl_add_u32 v4, v2, 7, v4")
    a.e("v_add_u32 %s, s%d, v4" % (v(vLX), sA))
    for s in range(1, 4): a.e("v_xor_b32 %s, %d, %s" % (v(vLX + s), 32 * s, v(vLX)))
    for s in range(4): a.e("v_add_u32 %s, 0x10000, %s" % (v(vLX + 4 + s), v(vLX + s)))
    a.e("s_waitcnt lgkmcnt(0)")
    setup_oclr(a)
    vm0 = list(a.vm)
    a.e("s_cmp_lg_u32 s%d, 0" % sHI)
    a.e("s_cbranch_scc1 L_lB")
    a.e("s_not_b64 %s, %s" % (sp(sTMPP), sp(sVM)))
    a.e("s_cmp_ge_u32 s%d, 2" % sLO)
    a.e("s_cbranch_scc1 L_lV")
    def chain(kind):
        a.vm = list(vm0)
        def fr(k):
            b = vFR + 8 * (k % 4)
            return b, b + 4
        def reads(k):
            c, s = divmod(k, 4); x, w = fr(k)
            r = [rd128(x, vLX + s + 4 * (c >> 2), (c & 3) * 16384), rdtr(w, vWA, k * 512), rdtr(w + 2, vWA, k * 512 + 128)]
            if kind == "K":
                r += ["s_mov_b64 exec, %s" % sp(sTMPP), rd128(w, vWA + 1, k * 32), "s_mov_b64 exec, -1"]
            return r
        for q in range(4):
            a.waitvm("c%d" % (2 * q + 1))
            a.e("s_barrier")
            nr = 4 if kind == "K" else 3
            for k in range(8 * q, 8 * q + 2):
                for r in reads(k): a.e(r)
            for k in range(8 * q, 8 * q + 8):
                if k + 2 < 8 * q + 8:
                    for r in reads(k + 2): a.e(r)
                left = min(2, 8 * q + 7 - k)
                a.e("s_waitcnt lgkmcnt(%d)" % (left * nr))
                x, w = fr(k)
                cc = None if k == 0 else vACC
                a.e(mfma(vACC, w, x, cc) if kind == "K" else mfma(vACC, x, w, cc))
        a.e("s_lshl_b32 s%d, s%d, 2" % (sA, sG))
        a.e("s_add_u32 s%d, s%d, s%d" % (sA, sA, sCNT))
        a.e("s_nop 12")
        if kind == "K":
            a.e("s_mov_b32 s%d, 0x%x" % (sC, f2u(0.25 * math.log2(math.e))))
            for i in range(8): a.e("v_mul_f32 %s, s%d, %s" % (v(vACC + i), sC, v(vACC + i)))
            a.e("v_mul_f32 %s, 0x%x, %s" % (v(vACC + 8), f2u(-math.log2(math.e)), v(vACC + 8)))
            a.e("v_exp_f32 %s, %s" % (v(vACC + 8), v(vACC + 8)))
            for i in range(4): a.e("v_cvt_pk_bf16_f32 %s, %s, %s" % (v(vFR + i), v(vACC + 2 * i), v(vACC + 2 * i + 1)))
            a.e("v_add_f32 %s, 1.0, %s" % (v(vACC + 8), v(vACC + 8)))
            a.e("v_rcp_f32 %s, %s" % (v(vACC + 8), v(vACC + 8)))
            a.e("s_add_u32 s%d, s%d, 63" % (sB, sA))
            a.e("s_and_b32 s%d, s%d, 63" % (sB, sB))
            a.e("s_lshl_b32 s%d, s%d, 11" % (sB, sB))
            a.e("buffer_store_dwordx4 %s, %s, %s, s%d offen sc1" % (v(vFR, 4), v(vL16), srd(SKV), sB))
            a.e("s_lshl_b32 s%d, s%d, 7" % (sB, sA))
            a.e("s_add_u32 s%d, s%d, 0x%x" % (sB, sB, WS_G))
            a.e("s_mov_b32 exec_hi, 0")
            a.e("buffer_store_dword %s, %s, %s, s%d offen sc1" % (v(vACC + 8), v(vGA), srd(SWS), sB))
            a.e("s_mov_b64 exec, -1")
        else:
            for i in range(8): a.e("v_cvt_pk_bf16_f32 %s, %s, %s" % (v(vFR + i), v(vACC + 2 * i), v(vACC + 2 * i + 1)))
            a.e("v_bfe_u32 v2, v0, 4, 1")
            a.e("v_add_u32 v2, s%d, v2" % sA)
            a.e("v_and_b32 v2, 63, v2")
            a.e("v_lshl_add_u32 v2, v2, 11, %s" % v(vL16))
            for i in range(4): a.e("v_cndmask_b32 %s, %s, %s, %s" % (v(vFR + i), v(vFR + 4 + i), v(vFR + i), sp(sVM)))
            a.e("buffer_store_dwordx4 %s, v2, %s, 0 offen offset:1024 sc1" % (v(vFR, 4), srd(SKV)))
        a.e("s_branch L_lJ")
    chain("K")
    a.lab("L_lV")
    chain("V")
    a.lab("L_lB")
    a.vm = list(vm0)
    a.e("s_cmp_lg_u32 s%d, 14" % sM)
    a.e("s_cbranch_scc1 L_nozf")
    a.e("s_cmp_lg_u32 s%d, 4" % sW)
    a.e("s_cbranch_scc1 L_nozf")
    a.e("v_lshlrev_b32 v2, 7, v0")
    a.e("s_lshl_b32 s%d, s%d, 11" % (sA, sG))
    a.e("s_add_u32 s%d, s%d, 0x%x" % (sA, sA, WS_HFLAG))
    a.e("s_mov_b64 exec, 0xffff")
    a.e("buffer_store_dword %s, v2, %s, s%d offen sc1" % (v(vZERO), srd(SWS), sA))
    a.e("s_mov_b64 exec, -1")
    a.lab("L_nozf")
    for q in range(4):
        a.waitvm("c%d" % (2 * q + 1))
        a.e("s_barrier")
    a.lab("L_lJ")
    a.e("v_lshrrev_b32 v3, 2, v0")
    a.e("v_lshlrev_b32 v3, 10, v3")
    a.e("v_lshrrev_b32 v4, 5, v0")
    a.e("v_lshlrev_b32 v4, 1, v4")
    a.e("v_xor_b32 v4, v4, v0")
    a.e("v_and_b32 v4, 3, v4")
    a.e("v_lshl_add_u32 v3, v4, 4, v3")
    a.e("s_lshl_b32 s%d, s%d, 14" % (sA, sW))
    a.e("s_lshl_b32 s%d, s%d, 6" % (sB, sHP))
    a.e("s_add_u32 s%d, s%d, s%d" % (sA, sA, sB))
    a.e("v_add_u32 %s, s%d, v3" % (v(vDQ), sA))
    a.e("s_xor_b32 s%d, s%d, 0x2000" % (sWH, sWH))
    a.e("s_xor_b32 s%d, s%d, 0x10000" % (sOLD, sOLD))
    a.wait0(lgkm=True)
    a.e("s_barrier")
    a.e("s_cmp_lg_u32 s%d, 0" % sW)
    a.e("s_cbranch_scc1 L_noat")
    a.e("s_mov_b64 exec, 1")
    a.e("buffer_atomic_add %s, off, %s, 0 sc1" % (v(vONE), srd(SDBG)))
    a.e("s_mov_b64 exec, -1")
    a.lab("L_noat")
    a.stamp(3)
    for c in range(8): xdma(c, sWH, sOLD)
    for p in range(4):
        a.e("s_add_u32 m0, s%d, 0x%x" % (sWK, LL_WQ + p * 8192))
        a.e("s_mov_b32 s%d, 0x%x" % (sA, p * 128 * 1024))
        a.e("buffer_load_dwordx4 %s, %s, s%d offen lds" % (v(vDQ), srd(SWQ), sA))
    setup_attn(a)
    if Opt.touch & 2:
        a.e("s_lshl_b32 s%d, s%d, 1" % (sA, sG))
        a.e("s_add_u32 s%d, s%d, s%d" % (sA, sA, sM))
        a.e("s_sub_u32 s%d, s%d, 14" % (sA, sA))
        a.e("s_lshl_b32 s%d, s%d, 3" % (sA, sA))
        a.e("s_add_u32 s%d, s%d, s%d" % (sA, sA, sW))
        a.e("v_lshlrev_b32 v2, 15, v0")
        a.e("s_lshl_b32 s%d, s%d, 7" % (sA, sA))
        a.e("buffer_load_dword %s, v2, %s, s%d offen" % (v(vPOLL), srd(SWO), sA))
        a.e("buffer_load_dword %s, v2, %s, s%d offen" % (v(vPOLL), srd(SWD), sA))
    a.e("s_lshl_b32 s%d, s%d, 12" % (sA, sLO))
    a.e("v_add_u32 %s, s%d, %s" % (v(vXA), sA, v(vXA)))
    a.e("v_xor_b32 %s, 64, %s" % (v(vXA + 1), v(vXA)))
    a.e("v_add_u32 %s, 0x10000, %s" % (v(vXA + 2), v(vXA)))
    a.e("v_add_u32 %s, 0x10000, %s" % (v(vXA + 3), v(vXA + 1)))
    a.e("v_add_u32 %s, 0x%x, %s" % (v(vQA), LL_WQ, v(vQA)))
    a.e("s_waitcnt vmcnt(%d)" % (2 if Opt.touch & 2 else 0))
    a.e("s_barrier")
    def fr(k): return vFR + 12 * (k % 3)
    def reads(k):
        c, s = divmod(k, 2); f = fr(k)
        return [rd128(f + 4 * b, vXA + s + 2 * (c >> 2), (c & 3) * 16384 + b * 2048) for b in range(2)] + \
               [rdtr(f + 8, vQA, k * 2048), rdtr(f + 10, vQA, k * 2048 + 256)]
    for k in range(2):
        for r in reads(k): a.e(r)
    for k in range(16):
        a.e("s_waitcnt lgkmcnt(%d)" % (4 * min(1, 15 - k)))
        for b in range(2): a.e(mfma16(vAQ + 4 * b, fr(k) + 8, fr(k) + 4 * b, None if k == 0 else vAQ + 4 * b))
        if k + 2 < 16:
            for r in reads(k + 2): a.e(r)
    spin_counter(a, "kvl", False)
    a.e("s_barrier")
    for s, t in kv_first_loads(a): a.e(s)
    a.wait0()
    a.stamp(4)
    a.e("s_branch L_join")

def gelu_tile(a, ti, scalar=False):
    acc = vACC + 16 * ti
    t = vFR
    o = vFR + 8 + 4 * ti
    pk = lambda r: v(r, 2)
    if scalar:
        for i in range(8): a.e("v_mul_f32 %s, %s, %s" % (v(t + i), v(acc + i), v(acc + i)))
        for i in range(8): a.e("v_fma_f32 %s, %s, %s, %s" % (v(t + i), v(t + i), v(vC0 + 1), v(vC0)))
        for i in range(8): a.e("v_mul_f32 %s, %s, %s" % (v(t + i), v(t + i), v(acc + i)))
        for i in range(8): a.e("v_exp_f32 %s, %s" % (v(t + i), v(t + i)))
        for i in range(8): a.e("v_add_f32 %s, 1.0, %s" % (v(t + i), v(t + i)))
        for i in range(8): a.e("v_rcp_f32 %s, %s" % (v(t + i), v(t + i)))
        for i in range(8): a.e("v_mul_f32 %s, %s, %s" % (v(acc + i), v(acc + i), v(acc + 8 + i)))
        for i in range(8): a.e("v_mul_f32 %s, %s, %s" % (v(acc + i), v(acc + i), v(t + i)))
    R4, R8 = (range(0), range(0)) if scalar else (range(4), range(8))
    for i in R4: a.e("v_pk_mul_f32 %s, %s, %s" % (pk(t + 2 * i), pk(acc + 2 * i), pk(acc + 2 * i)))
    for i in R4: a.e("v_pk_fma_f32 %s, %s, %s, %s op_sel:[0,1,0] op_sel_hi:[1,1,0]" % (pk(t + 2 * i), pk(t + 2 * i), pk(vC0), pk(vC0)))
    for i in R4: a.e("v_pk_mul_f32 %s, %s, %s" % (pk(t + 2 * i), pk(t + 2 * i), pk(acc + 2 * i)))
    for i in R8: a.e("v_exp_f32 %s, %s" % (v(t + i), v(t + i)))
    for i in R4: a.e("v_pk_add_f32 %s, %s, 1.0 op_sel_hi:[1,0]" % (pk(t + 2 * i), pk(t + 2 * i)))
    for i in R8: a.e("v_rcp_f32 %s, %s" % (v(t + i), v(t + i)))
    for i in R4: a.e("v_pk_mul_f32 %s, %s, %s" % (pk(acc + 2 * i), pk(acc + 2 * i), pk(acc + 8 + 2 * i)))
    for i in R4: a.e("v_pk_mul_f32 %s, %s, %s" % (pk(acc + 2 * i), pk(acc + 2 * i), pk(t + 2 * i)))
    for i in range(4): a.e("v_cvt_pk_bf16_f32 %s, %s, %s" % (v(o + i), v(acc + 2 * i), v(acc + 2 * i + 1)))
    a.vmop("buffer_store_dwordx4 %s, %s, %s, s%d offen offset:%d sc1" % (v(o, 4), v(vHA), srd(SWS), sHST2 if ti >> 1 else sHST, (ti & 1) * 256), "hst")

def Yseg(hset, toggle=False):
    out = []
    for t in range(2):
        S, Sn = vS + 16 * t, vS + 16 * (1 - t)
        K, V0, V1 = vKF + 4 * t, vV + 8 * t, vV + 8 * t + 4
        for j in range(8):
            out.append("v_exp_f32 %s, %s" % (v(vE + 2 * (j % 2)), v(S + 2 * j)))
            out.append("v_exp_f32 %s, %s" % (v(vE + 2 * (j % 2) + 1), v(S + 2 * j + 1)))
            jj = (j - 1) % 8
            out.append("v_cvt_pk_bf16_f32 %s, %s, %s" % (v(vP + jj), v(vE + 2 * (jj % 2)), v(vE + 2 * (jj % 2) + 1)))
            if j == 1: out.append(mfma(vO, V1, vP + 4, vO))
            if j == 3: out.append(mfma(Sn, K, vQ, None))
            if hset is None:
                if j == 7: out.append(mfma(vO, V0, vP, vO))
            else:
                if j == 5: out.append(mfma(vO, V0, vP, vO))
                if j == 6 and t == 1 and toggle:
                    out.append("v_xor_b32 %s, 0x4000, %s" % (v(vKVA), v(vKVA)))
                    out.append("v_xor_b32 %s, 0x8000, %s" % (v(vWDA), v(vWDA)))
                if j == 7: out.append(mfma(vD + 16 * t, vWF + 4 * t, vH + 4 * hset, vD + 16 * t))
    return out

def kv_reads(off):
    r = [rd128(vKF, vKVA, off), rd128(vKF + 4, vKVA, off + 2048), "s_mov_b64 exec, %s" % sp(sVM)]
    for t in range(2):
        r += [rd128(vV + 8 * t, vKVA, off + 2048 * t + 1024), rd128(vV + 8 * t + 4, vKVA, off + 2048 * t + 1280)]
    r.append("s_mov_b64 exec, -1")
    return r
def wd_reads(dst, addr, off):
    r = []
    for c in range(2):
        r += [rdtr(dst + 4 * c, addr, off + 512 * c), rdtr(dst + 4 * c + 2, addr, off + 512 * c + 1024)]
    return r

def wdrow(sg): return (32 * (sg >> 1) + 8 * (sg & 1)) * 1024

def attention(a, role, pre0=None):
    A = role == "A"
    def kvdma(u):
        a.vmop("s_add_u32 m0, s%d, 0x%x\ns_add_u32 s%d, s%d, 0x%x\nbuffer_load_dwordx4 %s, %s, s%d offen sc1 lds"
               % (sWK, L_KV + (u % 4) * 8192, sA, sWK, u * 8192, v(vL16), srd(SKV), sA), "kv%d" % u)
    def wddma(sg):
        a.vmop("s_add_u32 m0, s%d, 0x%x\ns_add_u32 s%d, s%d, 0x%x\nbuffer_load_dwordx4 %s, %s, s%d offen lds"
               % (sWK, L_WD + ((sg + 3) % 8) * 8192, sA, sWDOFF, wdrow(sg), v(vWDV), srd(SWD), sA), "wd%d" % sg)
    def wodma(j):
        a.vmop("s_add_u32 m0, s%d, 0x%x\ns_add_u32 s%d, s%d, 0x%x\nbuffer_load_dwordx4 %s, %s, s%d offen lds"
               % (sWK, L_WO + j * 8192, sA, sB, j * 16384, v(vWDV), srd(SWO), sA), "wo")
    def hload(sg, dst):
        a.vmop("s_add_u32 s%d, s%d, 0x%x\nbuffer_load_dwordx4 %s, %s, %s, s%d offen sc1"
               % (sA, sHOFF, sg * 1024, v(dst, 4), v(vL16), srd(SWS), sA), "h%d" % sg)
    for n in range(11):
        if not A and n == 0: a.e("s_barrier")
        if n % 2 == 1: astamp(a, 2 + n // 2)
        tags = []
        if A and n % 2 == 1: tags.append("kv%d" % ((n + 1) // 2))
        if not A and n % 2 == 0: tags.append("kv%d" % ((n + 2) // 2))
        if n == (3 if A else 2): tags.append("hst")
        if n == 10: tags.append("wd0")
        if n == 8 and A:
            a.e("s_cmp_lg_u32 s%d, 0" % sW)
            a.e("s_cbranch_scc1 L_hf_done")
            a.e("s_mov_b32 s%d, 0x4000" % sB)
            a.e("s_waitcnt vmcnt(2)")
            a.lab("L_hf_chk")
            a.e("v_cmp_ne_u32 vcc, 1, %s" % v(vPOLL))
            a.e("s_cbranch_vccz L_hf_done")
            a.e("s_sleep 2")
            a.e("buffer_load_dword %s, %s, %s, 0 offen sc1" % (v(vPOLL), v(vFLA), srd(SWS)))
            a.e("s_sub_u32 s%d, s%d, 1" % (sB, sB))
            a.e("s_cmp_lg_u32 s%d, 0" % sB)
            a.e("s_waitcnt vmcnt(0)")
            a.e("s_cbranch_scc1 L_hf_chk")
            a.lab("L_hf_done")
        a.waitvm(tags)
        if n == 3 and not A:
            a.e("s_cmp_ge_u32 s%d, 14" % sM)
            a.e("s_cbranch_scc1 L_nohf")
            a.e("s_cmp_lg_u32 s%d, 4" % sW)
            a.e("s_cbranch_scc1 L_nohf")
            a.e("s_lshl_b32 s%d, s%d, 4" % (sA, sG))
            a.e("s_add_u32 s%d, s%d, s%d" % (sA, sA, sM))
            a.e("s_lshl_b32 s%d, s%d, 7" % (sA, sA))
            a.e("s_add_u32 s%d, s%d, 0x%x" % (sA, sA, WS_HFLAG))
            a.e("s_mov_b64 exec, 1")
            a.e("buffer_store_dword %s, off, %s, s%d sc1" % (v(vONE), srd(SWS), sA))
            a.e("s_mov_b64 exec, -1")
            a.lab("L_nohf")
        for r in kv_reads((n % 8) * 4096): a.e(r)
        if n == 7 and A:
            a.e("s_cmp_lg_u32 s%d, 0" % sW)
            a.e("s_cbranch_scc1 L_hf_nol")
            a.e("buffer_load_dword %s, %s, %s, 0 offen sc1" % (v(vPOLL), v(vFLA), srd(SWS)))
            a.lab("L_hf_nol")
        if n == 0:
            kvdma(2); kvdma(3)
            a.e("s_mov_b32 s%d, s%d" % (sC, sKQ))
            a.e("s_mul_i32 s%d, s%d, %d" % (sWDOFF, sC, 448 * 1024))
            a.e("s_and_b32 s%d, s%d, 1" % (sB, sW))
            a.e("s_lshl_b32 s%d, s%d, 14" % (sA, sB))
            a.e("s_add_u32 s%d, s%d, s%d" % (sWDOFF, sWDOFF, sA))
            a.e("s_lshl_b32 s%d, s%d, 1" % (sA, sT))
            a.e("s_add_u32 s%d, s%d, s%d" % (sA, sA, sB))
            a.e("s_mul_i32 s%d, s%d, 112" % (sA, sA))
            a.e("s_mul_i32 s%d, s%d, 28" % (sB, sC))
            a.e("s_add_u32 s%d, s%d, s%d" % (sA, sA, sB))
            a.e("s_lshl_b32 s%d, s%d, 10" % (sA, sA))
            a.e("s_add_u32 s%d, s%d, 0x%x" % (sHOFF, sA, WS_HF))
        if (A and n % 2 == 1 and n >= 3): kvdma((n + 5) // 2)
        if (not A and n % 2 == 0 and n >= 2): kvdma((n + 6) // 2)
        if 1 <= n <= 3:
            a.e("s_lshl_b32 s%d, s%d, 17" % (sB, sKQ))
            a.e("s_and_b32 s%d, s%d, 1" % (sC, sW))
            a.e("s_lshl_b32 s%d, s%d, 13" % (sC, sC))
            a.e("s_add_u32 s%d, s%d, s%d" % (sB, sB, sC))
            for j in {1: (0, 1, 2), 2: (3, 4, 5), 3: (6, 7)}[n]: wodma(j)
        if n >= 4: wddma(n - 4)
        if n == 9:
            hload(0, vH + 12); hload(1, vH + 0); hload(24, vH + 16); hload(25, vH + 20)
        if n == 10:
            hload(26, vH + 24); hload(27, vH + 28); hload(2, vH + 4)
        if n == 0 and pre0:
            pre0()
            a.stamp(5)
        a.e("s_waitcnt lgkmcnt(0)")
        a.e("s_call_b64 %s, L_Y%s" % (sp(sRET), role))
        if n == 0:
            a.e("s_branch L_X1%s" % role)
            a.lab("L_Y%s" % role)
            if A: a.e("s_barrier")
            for x in Yseg(None): a.e(x)
            if not A: a.e("s_barrier")
            a.e("s_setpc_b64 %s" % sp(sRET))
            a.lab("L_X1%s" % role)
    astamp(a, 7)
    a.e("s_add_u32 s%d, s%d, 0x%x" % (sHOFF, sHOFF, 3 * 1024))
    a.e("s_add_u32 s%d, s%d, 0x%x" % (sWDOFF, sWDOFF, wdrow(7)))
    a.e("s_mov_b32 s%d, 0x%x" % (sM0WD, ((7 + 3) % 8) * 8192))
    u0 = 8 if A else 9
    a.e("s_add_u32 s%d, s%d, 0x%x" % (sKVOFF, sWK, u0 * 8192))
    a.e("s_mov_b32 s%d, 6" % sCNT)
    a.waitvm(["h0", "wd1", "kv6"] if A else ["h0", "wd1"])
    a.e("s_branch L_loop%s_in" % role)
    a.l.append(".p2align 6")
    a.lab("L_loop%s" % role)
    for p in range(4):
        if p == 0 and Opt.diag and Opt.kdiag == 2:
            a.e("s_cmp_lg_u32 s%d, 4" % sCNT)
            a.e("s_cbranch_scc1 L_nst%s" % role)
            astamp(a, 8)
            a.lab("L_nst%s" % role)
        a.e("s_waitcnt vmcnt(5)")
        if p == 3: a.lab("L_loop%s_in" % role)
        for r in kv_reads(p * 4096): a.e(r)
        for r in wd_reads(vWF, vWDA, p * 8192): a.e(r)
        a.e("buffer_load_dwordx4 %s, %s, %s, s%d offen sc1" % (v(vH + 4 * ((p + 3) % 4), 4), v(vL16), srd(SWS), sHOFF))
        a.e("s_add_u32 m0, s%d, s%d" % (sWK, sM0WD))
        a.e("s_add_u32 s%d, s%d, 0x400" % (sHOFF, sHOFF))
        a.e("buffer_load_dwordx4 %s, %s, s%d offen lds" % (v(vWDV), srd(SWD), sWDOFF))
        a.e("s_add_u32 s%d, s%d, 0x%x" % (sWDOFF, sWDOFF, 0x6000 if p & 1 else 0x2000))
        a.e("s_add_u32 s%d, s%d, 0x2000" % (sM0WD, sM0WD))
        a.e("s_and_b32 s%d, s%d, 0xffff" % (sM0WD, sM0WD))
        if (p % 2 == 1) == A:
            a.e("s_and_b32 s%d, s%d, 0x7fff" % (sA, sKVOFF))
            a.e("s_add_u32 m0, s%d, 0x%x" % (sA, L_KV))
            a.e("s_nop 0")
            a.e("buffer_load_dwordx4 %s, %s, s%d offen sc1 lds" % (v(vL16), srd(SKV), sKVOFF))
            a.e("s_add_u32 s%d, s%d, 0x2000" % (sKVOFF, sKVOFF))
        if p == 3:
            a.e("s_sub_u32 s%d, s%d, 1" % (sCNT, sCNT))
            a.e("s_cmp_lg_u32 s%d, 0" % sCNT)
        a.e("s_waitcnt lgkmcnt(0)")
        if A: a.e("s_barrier")
        for x in Yseg(p, toggle=(p == 3)): a.e(x)
        if not A:
            if p == 3: a.e("s_cbranch_scc0 L_tail")
            a.e("s_barrier")
    a.e(("s_cbranch_scc1 L_loop%s" if A else "s_branch L_loop%s") % role)

def transition(a, role):
    A = role == "A"
    if A:
        a.vm = []
        a.lab("L_trA")
    else:
        a.lab("L_join")
        a.e("s_cmp_eq_u32 s%d, 0" % sHI)
        a.e("s_cbranch_scc1 L_trA")
        a.vmjoin = list(a.vm)
    def qfin():
        for i in range(4): a.e("v_cvt_pk_bf16_f32 %s, %s, %s" % (v(vQ + i), v(vAQ + 2 * i), v(vAQ + 2 * i + 1)))
        for i in range(4, 7): a.e("v_mov_b32 %s, 0" % v(vP + i))
        a.e("v_permlane16_swap_b32 %s, %s" % (v(vQ), v(vQ + 2)))
        a.e("v_permlane16_swap_b32 %s, %s" % (v(vQ + 1), v(vQ + 3)))
    pre0 = None
    if A:
        a.e("s_setprio 1")
        a.e("s_cmp_ge_u32 s%d, 14" % sM)
        a.e("s_cbranch_scc1 L_nogA0")
        put(a, a.kvA[:1] + a.kvA[-1:])
        a.l.append(".p2align 3")
        for ti in range(Opt.gsc): gelu_tile(a, ti, True)
        a.lab("L_nogA0")
        qfin()
        a.waitvm(["k0", "kv0", "kv1"])
        a.e("s_setprio 0")
        a.e("s_barrier")
        a.e(mfma(vS, vK0, vQ, None))
        put(a, a.kvA[1:-1])
        def pre0():
            a.e("s_cmp_lt_u32 s%d, 14" % sM)
            a.e("s_cbranch_scc1 L_gA1")
            a.e("s_waitcnt vmcnt(0)")
            a.e("s_branch L_nogA1")
            a.l.append(".p2align 3")
            a.lab("L_gA1")
            for ti in range(Opt.gsc, 4): gelu_tile(a, ti)
            a.lab("L_nogA1")
            a.e("s_setprio 1")
    else:
        a.waitvm(["k0", "kv0", "kv1"])
        a.e("s_setprio 1")
        a.e("s_cmp_ge_u32 s%d, 14" % sM)
        a.l.append(".p2align 3")
        a.e("s_barrier")
        a.e("s_cbranch_scc1 L_nogB")
        for ti in range(4): gelu_tile(a, ti)
        a.lab("L_nogB")
        qfin()
        a.e("s_setprio 0")
        a.e("s_nop 0")
        a.e(mfma(vS, vK0, vQ, None))
        a.stamp(5)
    attention(a, role, pre0)
    if A: a.e("s_branch L_tail")

def tail(a):
    a.lab("L_tail")
    a.e("v_cvt_pk_bf16_f32 %s, %s, %s" % (v(vP + 7), v(vE + 2), v(vE + 3)))
    a.stamp(6)
    astamp(a, 9)
    if Opt.diag and Opt.kdiag == 2: a.e("s_waitcnt lgkmcnt(0)")
    a.e("s_setprio 0")
    a.e("s_mov_b32 s%d, 0x%x" % (sC, f2u(2.0 ** -16)))
    a.e(mfma(vO, vV1L, vP + 4, vO))
    a.e("s_mov_b32 s%d, 0x%x" % (sD, f2u(2.0 ** 100)))
    wf = [vFR, vFR + 8, vFR + 16]
    for i in range(2):
        for r in wd_reads(wf[i], vWDA, i * 8192): a.e(r)
    a.e("s_nop 2")
    t = vT0
    a.e("v_rcp_f32 %s, %s" % (v(t + 2), v(vO + 8)))
    a.e("v_pk_mul_f32 %s, %s, 0 op_sel_hi:[1,0]" % (v(t, 2), v(vO, 2)))
    for i in range(1, 4): a.e("v_pk_fma_f32 %s, %s, 0, %s op_sel_hi:[1,0,1]" % (v(t, 2), v(vO + 2 * i, 2), v(t, 2)))
    a.e("v_add_f32 %s, %s, %s" % (v(t), v(t), v(t + 1)))
    a.e("v_add_f32 %s, %s, %s" % (v(t), v(t), v(vO + 8)))
    a.e("v_cmp_nle_f32 vcc, s%d, %s" % (sC, v(t)))
    a.e("v_cmp_nge_f32 %s, s%d, %s" % (sp(sTMPP), sD, v(t)))
    a.e("s_or_b64 vcc, vcc, %s" % sp(sTMPP))
    a.e("s_branch L_fb" if Opt.force_fb else "s_cbranch_scc1 L_fb")
    a.lab("L_fbret")
    a.e("v_mul_f32 %s, %s, %s" % (v(t + 2), v(t + 2), v(vGP)))
    for i in range(4): a.e("v_pk_mul_f32 %s, %s, %s op_sel_hi:[1,0]" % (v(vO + 2 * i, 2), v(vO + 2 * i, 2), v(t + 2, 2)))
    for i in range(4): a.e("v_cvt_pk_bf16_f32 %s, %s, %s" % (v(vP + i), v(vO + 2 * i), v(vO + 2 * i + 1)))
    for i in range(4): a.e("v_min_u32 %s, -2, %s" % (v(vP + i), v(vP + i)))
    a.e("buffer_store_dwordx4 %s, %s, %s, s%d offen sc1" % (v(vP, 4), v(vL16), srd(SWS), sOST))
    HORD = [0, 2, 4, 6, 1, 3, 5, 7] if Opt.hord else list(range(8))
    def oload(j):
        return "buffer_load_dwordx4 %s, %s, %s, s%d offen offset:%d sc1" % (
            v(vS + 4 * j, 4), v(vL16), srd(SWS), sOLD if HORD[j] < 4 else sA, (HORD[j] % 4) * 1024)
    a.oload = oload
    aw = vXA
    ar = vWA
    def addrs(a):
        a.e("v_sub_f32 %s, 1.0, %s" % (v(vGC), v(vGC)))
        a.e("v_add_u32 %s, 0x%x, %s" % (v(vQA), L_WO, v(vWDA)))
        a.e("v_and_b32 v2, 31, v0")
        a.e("v_lshrrev_b32 v3, 5, v0")
        a.e("v_and_b32 v4, 7, v0")
        a.e("v_xor_b32 v3, v3, v4")
        a.e("v_lshlrev_b32 v3, 4, v3")
        a.e("v_lshl_add_u32 v3, v2, 8, v3")
        a.e("s_and_b32 s%d, s%d, 1" % (sB, sW))
        a.e("s_lshl_b32 s%d, s%d, 15" % (sB, sB))
        a.e("s_lshr_b32 s%d, s%d, 1" % (sC, sW))
        a.e("s_lshl_b32 s%d, s%d, 13" % (sD, sC))
        a.e("s_add_u32 s%d, s%d, s%d" % (sD, sD, sB))
        a.e("v_add_u32 %s, s%d, v3" % (v(aw), sD))
        for j in range(1, 4): a.e("v_xor_b32 %s, %d, %s" % (v(aw + j), 32 * j, v(aw)))
        a.e("v_lshrrev_b32 v2, 3, v0")
        a.e("v_lshlrev_b32 v3, 1, v4")
        a.e("v_xor_b32 v3, v3, v2")
        a.e("v_lshlrev_b32 v3, 4, v3")
        a.e("v_lshl_add_u32 v3, v2, 8, v3")
        a.e("s_lshl_b32 s%d, s%d, 11" % (sD, sC))
        a.e("s_add_u32 s%d, s%d, s%d" % (sD, sD, sB))
        a.e("v_add_u32 %s, s%d, v3" % (v(ar), sD))
        a.e("v_xor_b32 %s, 16, %s" % (v(ar + 1), v(ar)))
        a.e("v_lshlrev_b32 v4, 4, v4")
        a.e("v_lshl_add_u32 %s, v2, 10, v4" % v(ar + 2))
        a.e("s_lshl_b32 s%d, s%d, 13" % (sC, sC))
        a.e("s_add_u32 s%d, s%d, s%d" % (sB, sB, sC))
        a.e("s_lshl_b32 s%d, s%d, 16" % (sC, sT))
        a.e("s_add_u32 s%d, s%d, s%d" % (sB, sB, sC))
        a.e("s_lshl_b32 s%d, s%d, 7" % (sC, sCB))
        a.e("s_add_u32 s%d, s%d, s%d" % (sCNT, sB, sC))
        a.e("s_mov_b32 s%d, 0x2000" % sB)
    a.e("s_add_u32 s%d, s%d, 0x1000" % (sA, sOLD))
    ol = Asm(); a.ool2 = ol.l
    a.e("s_cmp_lg_u32 s%d, 0" % sHI)
    a.e("s_cbranch_scc1 L_tl1")
    for j in range(8): a.e(oload(j))
    a.e("s_waitcnt vmcnt(9)")
    a.e("s_branch L_tl2")
    a.lab("L_tl1")
    a.e("s_setprio 1")
    a.e("s_waitcnt vmcnt(1)")
    a.lab("L_tl2")
    a.e("s_barrier")
    hreg = {21: vH + 0, 22: vH + 4, 23: vH + 8, 24: vH + 16, 25: vH + 20, 26: vH + 24, 27: vH + 28}
    fl = collect(addrs)
    for i in range(7):
        if i + 2 < 7:
            for r in wd_reads(wf[(i + 2) % 3], vWDA, (i + 2) * 8192): a.e(r)
        else:
            for r in wd_reads(wf[(i + 2) % 3], vQA, HORD[i - 5] * 8192): a.e(r)
        a.e("s_waitcnt lgkmcnt(8)")
        for c in range(2):
            a.e(mfma(vD + 16 * c, wf[i % 3] + 4 * c, hreg[21 + i], vD + 16 * c))
            put(a, fl[:3]); fl = fl[3:]
    assert not fl
    a.e("s_cmp_lg_u32 s%d, 0" % sHI)
    a.e("s_cbranch_scc1 L_tl3")
    a.l.append(".p2align 3")
    a.e("s_nop 7")
    a.e("s_nop 0")
    for i in range(16): a.e("v_pk_mul_f32 %s, %s, %s op_sel:[0,1] op_sel_hi:[1,1]" % (v(vD + 2 * i, 2), v(vD + 2 * i, 2), v(vGP, 2)))
    if Opt.tbar == 0: a.e("s_barrier")
    a.lab("L_tl4")
    ol.lab("L_tl3")
    ol.e("s_setprio 0")
    for j in range(8):
        ol.e(oload(j))
        if j == 0: ol.e("s_nop 6")
        for i in range(4 * j, 4 * j + 4): ol.e("v_mul_f32 %s, %s, %s" % (v(vD + i), v(vGC), v(vD + i)))
    ol.e("s_barrier")
    ol.e("s_branch L_tl4")
    a.stamp(7)
    J1 = 8 - Opt.cskew
    wo = lambda j: wf[(j + 1) % 3] if j < J1 else vH + 8 * (j - J1)
    for j in range(8):
        o = vS + 4 * j
        if j + 2 < 8:
            for r in wd_reads(wo(j + 2), vQA, HORD[j + 2] * 8192): a.e(r)
        a.lab("L_ochk%d" % j)
        a.e("s_waitcnt vmcnt(%d)" % (7 - j))
        a.e("v_max3_u32 v2, %s, %s, %s" % (v(o), v(o + 1), v(o + 2)))
        a.e("v_max_u32 v2, v2, %s" % v(o + 3))
        a.e("v_cmp_eq_u32 vcc, -1, v2")
        a.e("s_cbranch_vccnz L_ore%d" % j)
        a.lab("L_ook%d" % j)
        a.e("s_waitcnt lgkmcnt(%d)" % (4 * min(2, 7 - j)))
        for c in range(2 if j < J1 else 1): a.e(mfma(vD + 16 * c, wo(j) + 4 * c, o, vD + 16 * c))
    wr = lambda c, j: "ds_write_b128 %s, %s offset:%d" % (v(aw + j), v(vD + 16 * c + 4 * j, 4), 128 * c)
    w0 = [wr(0, j) for j in range(4)]
    dist = 0
    for j in range(J1, 8):
        a.e(mfma(vD + 16, wo(j) + 4, vS + 4 * j, vD + 16)); dist += 1
        if dist < 12:
            a.e("s_nop 5"); dist += 6
        elif j < 7:
            a.e(w0.pop(0))
    a.stamp(8)
    if not Opt.cskew: a.e("s_nop 10")
    elif dist < 12: a.e("s_nop %d" % (11 - dist))
    n0 = len(w0)
    for x in w0: a.e(x)
    if Opt.cskew: a.e("s_nop %d" % (11 - n0))
    for j in range(4): a.e(wr(1, j))
    a.e("s_waitcnt lgkmcnt(0)")
    a.e("s_barrier")
    for p in range(4):
        for h in range(2): a.e(rd128(vS + 8 * p + 4 * h, ar + h, p * 8192))
    for p in range(1, 4):
        a.e("s_waitcnt lgkmcnt(%d)" % (6 - 2 * p))
        for i in range(4): a.e("v_pk_add_f32 %s, %s, %s" % (v(vS + 2 * i, 2), v(vS + 2 * i, 2), v(vS + 8 * p + 2 * i, 2)))
    for i in range(4): a.e("v_cvt_pk_bf16_f32 %s, %s, %s" % (v(vP + i), v(vS + 2 * i), v(vS + 2 * i + 1)))
    a.e("buffer_store_dwordx4 %s, %s, %s, s%d offen %s" % (v(vP, 4), v(ar + 2), srd(SOUT), sCNT, Opt.out_pol))
    if Opt.probe >= 0:
        a.e("s_waitcnt vmcnt(0)")
        a.stamp(9)
        if Opt.probe != 9:
            a.e("s_cmp_ge_u32 s%d, 14" % sM)
            a.e("s_cbranch_scc%d L_end" % (0 if Opt.probe_l else 1))
        a.e("s_sub_u32 s%d, s%d, s%d" % (sA, sSTAMP + 4, sSTAMP))
        a.e("s_mul_i32 s%d, s%d, %d" % (sA, sA, Opt.probe_mul - 1))
        a.e("s_min_u32 s%d, s%d, 100000" % (sA, sA))
        a.e("s_add_u32 s%d, s%d, 3800" % (sA, sA))
        if Opt.probe_w >= 0:
            a.e("s_cmp_lg_u32 s%d, %d" % (sHI, Opt.probe_w))
            a.e("s_cbranch_scc1 L_end")
        if Opt.probe_x >= 0:
            a.e("s_and_b32 s0, s2, 7")
            a.e("s_cmp_lg_u32 s0, %d" % Opt.probe_x)
            a.e("s_cbranch_scc1 L_end")
        a.lab("L_probe")
        a.e("s_memrealtime s[0:1]")
        a.e("s_waitcnt lgkmcnt(0)")
        a.e("s_sub_u32 s0, s0, s%d" % (sSTAMP + 4))
        a.e("s_cmp_lt_u32 s0, s%d" % sA)
        a.e("s_cbranch_scc1 L_probe")
    if Opt.pin == 9:
        a.e("s_waitcnt vmcnt(0)")
        a.stamp(9)
    if Opt.diag:
        a.e("s_waitcnt vmcnt(0)")
        a.stamp(9)
        a.e("s_mov_b32 s%d, s%d" % (sSTAMP + 3, sSTAMP))
        a.e("s_mov_b32 s%d, s%d" % (sSTAMP, sB))
        a.e("s_getreg_b32 s%d, hwreg(HW_REG_XCC_ID)" % (sSTAMP + 1))
        for i in range(20): a.e("v_mov_b32 %s, s%d" % (v(vS + i), sSTAMP + i))
        a.e("s_lshl_b32 s%d, s2, 3" % sA)
        a.e("s_add_u32 s%d, s%d, s%d" % (sA, sA, sW))
        a.e("s_lshl_b32 s%d, s%d, 7" % (sA, sA))
        a.e("s_add_u32 s%d, s%d, 0x%x" % (sA, sA, WS_STAMP))
        a.e("s_mov_b64 exec, 1")
        for i in range(5): a.e("buffer_store_dwordx4 %s, off, %s, s%d offset:%d" % (v(vS + 4 * i, 4), srd(SWS), sA, 16 * i))
    a.lab("L_end")
    a.e("s_endpgm")
    a.l += a.ool2
    for j in range(8):
        a.lab("L_ore%d" % j)
        a.e("s_sub_u32 s%d, s%d, 1" % (sB, sB))
        a.e("s_cbranch_scc1 L_ogive%d" % j)
        a.e("s_waitcnt vmcnt(0)")
        for i in range(j, 8): a.e(a.oload(i))
        a.e("s_branch L_ochk%d" % j)
        a.lab("L_ogive%d" % j)
        a.e("s_mov_b32 s%d, 0" % sB)
        a.e("s_branch L_ook%d" % j)

def fallback(a):
    a.lab("L_fb")
    m = vT0
    a.e("v_mov_b32 %s, 0xff800000" % v(m))
    a.e("s_mov_b32 s%d, 0" % sA)
    a.lab("L_fb1")
    a.e("buffer_load_dwordx4 %s, %s, %s, s%d offen sc1" % (v(vKF, 4), v(vL16), srd(SKV), sA))
    a.e("s_waitcnt vmcnt(0)")
    a.e(mfma(vS, vKF, vQ, None))
    a.e("s_add_u32 s%d, s%d, 2048" % (sA, sA))
    a.e("s_nop 11")
    for i in range(8): a.e("v_max3_f32 %s, %s, %s, %s" % (v(m), v(m), v(vS + 2 * i), v(vS + 2 * i + 1)))
    a.e("s_cmp_lt_u32 s%d, 0x20000" % sA)
    a.e("s_cbranch_scc1 L_fb1")
    a.e("v_mov_b32 %s, %s" % (v(m + 1), v(m)))
    a.e("s_nop 1")
    a.e("v_permlane32_swap_b32 %s, %s" % (v(m), v(m + 1)))
    a.e("s_nop 1")
    a.e("v_max_f32 %s, %s, %s" % (v(m), v(m), v(m + 1)))
    for i in range(16): a.e("v_sub_f32 %s, 0, %s" % (v(vS + 16 + i), v(m)))
    for i in range(16): a.e("v_mov_b32 %s, 0" % v(vO + i))
    a.e("s_mov_b32 s%d, 0" % sA)
    a.lab("L_fb2")
    a.e("s_add_u32 s%d, s%d, 0x%x" % (sB, sA, 63 * 2048))
    a.e("s_and_b32 s%d, s%d, 0x1ffff" % (sB, sB))
    a.e("buffer_load_dwordx4 %s, %s, %s, s%d offen sc1" % (v(vKF, 4), v(vL16), srd(SKV), sB))
    a.e("s_add_u32 s%d, s%d, 2048" % (sB, sA))
    a.e("s_and_b32 s%d, s%d, 0x1ffff" % (sB, sB))
    a.e("s_mov_b64 exec, %s" % sp(sVM))
    a.e("buffer_load_dwordx4 %s, %s, %s, s%d offen offset:1024 sc1" % (v(vV, 4), v(vL16), srd(SKV), sA))
    a.e("buffer_load_dwordx4 %s, %s, %s, s%d offen offset:1280 sc1" % (v(vV + 4, 4), v(vL16), srd(SKV), sB))
    a.e("s_mov_b64 exec, -1")
    a.e("s_waitcnt vmcnt(0)")
    a.e(mfma(vS, vKF, vQ, vS + 16))
    a.e("s_add_u32 s%d, s%d, 2048" % (sA, sA))
    a.e("s_nop 11")
    for i in range(16): a.e("v_exp_f32 %s, %s" % (v(vS + i), v(vS + i)))
    for i in range(8): a.e("v_cvt_pk_bf16_f32 %s, %s, %s" % (v(vP + i), v(vS + 2 * i), v(vS + 2 * i + 1)))
    a.e("s_nop 1")
    a.e(mfma(vO, vV, vP, vO))
    a.e(mfma(vO, vV + 4, vP + 4, vO))
    a.e("s_cmp_lt_u32 s%d, 0x20000" % sA)
    a.e("s_cbranch_scc1 L_fb2")
    a.e("s_nop 11")
    a.e("v_rcp_f32 %s, %s" % (v(vT0 + 2), v(vO + 8)))
    a.e("s_branch L_fbret")

def build():
    a = Asm()
    prologue(a)
    phase1_F(a)
    transition(a, "B")
    tail(a)
    a.l += a.ool
    transition(a, "A")
    phase1_L(a)
    fallback(a)
    a.lab("L_codeend")
    il = a.l.index("L_light:")
    for i, x in enumerate(a.l):
        if x.endswith(" lds") and "sc1" not in x and " nt" not in x:
            if (Opt.ntx & 4 and (srd(SWD) in x or srd(SWO) in x)) or (Opt.ntx & 8 and i > il):
                a.l[i] = x[:-4] + " nt lds"
    head = open("cdna_kernels/%s.s.ref" % NAME).read().split("\n")
    hdr = [l for l in head if l.startswith(";") and "@launch" not in l and "Override" not in l and "grid=" not in l]
    out = hdr + ["; @launch grid=(256,1,1) block=(512,1,1) lds=%d" % LDS_BYTES,
                 '.amdgcn_target "amdgcn-amd-amdhsa--gfx950"', ".text", ".globl %s_kernel" % NAME, ".p2align 8",
                 ".type %s_kernel,@function" % NAME,
                 ".set CODE_PF_MAX, L_codeend - L_nopf - 4" if Opt.code_pf else "",
                 "%s_kernel:" % NAME]
    out += ["; mapmode %d" % Opt.mapmode, "; xrot %d" % Opt.xrot]
    out += a.l
    out += ['.section .rodata,"a"', ".p2align 6", ".amdhsa_kernel %s_kernel" % NAME,
            "  .amdhsa_next_free_vgpr %d" % NV, "  .amdhsa_next_free_sgpr 102", "  .amdhsa_accum_offset 256",
            "  .amdhsa_group_segment_fixed_size 0", "  .amdhsa_kernarg_size 104", "  .amdhsa_user_sgpr_count 2",
            "  .amdhsa_user_sgpr_kernarg_segment_ptr 1", "  .amdhsa_system_sgpr_workgroup_id_x 1", ".end_amdhsa_kernel", ""]
    return "\n".join(out)

if __name__ == "__main__":
    path = sys.argv[1]
    for kv in sys.argv[2:]:
        k, val = kv.split("=")
        cur = getattr(Opt, k)
        setattr(Opt, k, val if isinstance(cur, str) else type(cur)(int(val)))
    open(path, "w").write(build())
```

```python
import sys, struct, math

NAME = "gated_mix__grouped_kv_mqa__geglu_ffn__prompt"

class Opt:
    diag = 0
    mapmode = 1
    force_fb = False
    out_pol = ""
    code_pf = True
    xrot = 0
    pregap = 0
    tpos = 1
    cskew = 0
    tch = 12
    stch = 0
    spos = 1
    tlb = 14
    olate = 1
    hrot = 0
    tbar = 0
    hord = 1
    cmap = 1
    kqx = 0
    oearly = 8
    conc = 1
    ghx = 1
    qa = "088888"
    qb = "577777"
    npre = 8
    stagger = 1
    rper = 2
    dma1 = 17
    kprio = 0
    dma0 = 8
    npd = 4
    kdiag = 0
    fillpre = 0
    fillper = 4
    gsc = 2
    sched = 0
    xmask = 1
    ntx = 0
    touch = 2
    rotg = 0
    rotm = 0
    startbar = 1
    pvz = 1
    pin = -1
    pin_ns = 60000
    probe = -1
    probe_x = -1
    probe_mul = 10
    probe_w = -1
    probe_l = 0

def f2u(x): return struct.unpack("<I", struct.pack("<f", x))[0]

WS_KV = 0
WS_G = 128 * 1024
WS_HFLAG = 192 * 1024
WS_OF = 1 << 20
WS_HF = 4 << 20
WS_STAMP = 12 << 20
WS_SIZE = 16 << 20
K1 = 1024
L_G, L_U, L_X, L_WQ = 0, 48 * K1, 96 * K1, 144 * K1
L_QX = 32 * K1
L_WD, L_WO, L_KV = 0, 64 * K1, 128 * K1
LL_X, LL_W, LL_GATE, LL_WQ = 0, 128 * K1, 144 * K1, 128 * K1
LDS_BYTES = 160 * K1

SX, SWG, SWU, SWQ, SWS, SWD, SWO, SOUT, SDBG, SWKV, SGATE, SKV = 4, 8, 12, 16, 20, 24, 28, 32, 36, 40, 44, 64
SWV = 72
sTMPP = 48
sW, sHI, sLO, sG, sM, sT, sCB = 50, 51, 52, 53, 54, 55, 56
sWK = 57
sWH = 58
sK64 = 59
sVM = 60
sRET = 62
sA, sB, sC, sD = 68, 69, 70, 71
sOFFW, sOFFQ, sCH, sXP = 72, 73, 74, 75
sHOFF, sWDOFF, sKVOFF, sM0WD, sM0KV, sCNT = 72, 73, 74, 75, 76, 77
sOST, sOLD, sHST = 78, 79, 80
sHST2 = 3
sRX, sRW, sM0B = 40, 41, 42
sKQ = 76
sHP = sM
sFREE = 81
sSTAMP = 82

def srd(b): return "s[%d:%d]" % (b, b + 3)
def sp(b): return "s[%d:%d]" % (b, b + 1)
def v(b, n=1): return "v%d" % b if n == 1 else "v[%d:%d]" % (b, b + n - 1)

vL16 = 1
vT0, vT1, vT2, vT3 = 2, 3, 4, 5
vGP, vGC = 6, 7
vKVA = 8
vWDA = 9
vWDV = 10
vONE = 11
vZERO = 12
vFLA = 13
vPOLL = 14
vGA = 15
vQ = 16
vK0 = 20
vV1L = 24
vE = 28
vP = 32
vV = 40
vO = 56
vD = 72
vACC = 104
vS = 104
vH = 136
vAQ = vP
vF1 = 168
vKF = 168
vWF = 176
vFR = 184
vLX = 224
vXA = 240
vWA = 244
vQA = 248
vDX, vDG, vDQ = 249, 250, 251
vC0 = 252
vTID = 255
vHA = 254
NV = 256

class Asm:
    def __init__(self):
        self.l = []
        self.vm = []
        self.nstamp = 0
    def e(self, s):
        for x in s.split("\n"):
            x = x.strip()
            if x: self.l.append("    " + x)
    def lab(self, s): self.l.append(s + ":")
    def vmop(self, s, tag):
        self.e(s); self.vm.append(tag)
    def vmn(self, tags):
        if isinstance(tags, str): tags = [tags]
        last = -1
        for i, t in enumerate(self.vm):
            if t in tags: last = i
        return None if last < 0 else len(self.vm) - 1 - last
    def waitvm(self, tags, lgkm=False):
        n = self.vmn(tags)
        if n is None:
            if lgkm: self.e("s_waitcnt lgkmcnt(0)")
            return
        assert n < 64
        self.e("s_waitcnt vmcnt(%d)%s" % (n, " lgkmcnt(0)" if lgkm else ""))
        self.vm = self.vm[len(self.vm) - n:] if n else []
    def wait0(self, lgkm=False):
        self.e("s_waitcnt vmcnt(0)%s" % (" lgkmcnt(0)" if lgkm else "")); self.vm = []
    def stamp(self, i, real=False):
        if Opt.probe == i:
            self.e("s_waitcnt lgkmcnt(0)")
            self.e("s_memrealtime %s" % sp(sSTAMP + 4))
            self.e("s_waitcnt lgkmcnt(0)")
        if Opt.pin == i:
            self.nstamp += 1
            self.e("s_waitcnt lgkmcnt(0)")
            self.e("s_cselect_b32 s%d, 1, 0" % (sSTAMP + 5))
            self.lab("L_pin%d" % self.nstamp)
            self.e("s_memrealtime s[0:1]")
            self.e("s_waitcnt lgkmcnt(0)")
            self.e("s_sub_u32 s0, s0, s%d" % sSTAMP)
            self.e("s_cmp_lt_u32 s0, %d" % (Opt.pin_ns // 10))
            self.e("s_cbranch_scc1 L_pin%d" % self.nstamp)
            self.e("s_cmp_lg_u32 s%d, 0" % (sSTAMP + 5))
        if Opt.diag and not Opt.kdiag and (Opt.diag == 1 or i == 9):
            self.e("s_waitcnt lgkmcnt(0)")
            self.e("s_memtime %s" % sp(sSTAMP + 2 * i))
            self.e("s_memrealtime %s" % sp(sRET))
            self.e("s_waitcnt lgkmcnt(0)")
            self.e("s_mov_b32 s%d, s%d" % (sSTAMP + 2 * i + 1, sRET))

def astamp(a, i):
    if Opt.diag and Opt.kdiag == 2: a.e("s_memtime %s" % sp(sSTAMP + 2 * i))

def kstamp(a, i):
    if Opt.probe == 18 + i: a.e("s_memrealtime %s" % sp(sSTAMP + 4))
    if Opt.diag and Opt.kdiag == 1: a.e("s_memtime %s" % sp(sSTAMP + 2 * i))

def mfma(d, a, b, c):
    return "v_mfma_f32_32x32x16_bf16 %s, %s, %s, %s" % (v(d, 16), v(a, 4), v(b, 4), "0" if c is None else v(c, 16))
def mfma16(d, a, b, c):
    return "v_mfma_f32_16x16x32_bf16 %s, %s, %s, %s" % (v(d, 4), v(a, 4), v(b, 4), "0" if c is None else v(c, 4))
def rd128(d, a, off):
    assert 0 <= off < 65536
    return "ds_read_b128 %s, %s offset:%d" % (v(d, 4), v(a), off)
def rdtr(d, a, off):
    assert 0 <= off < 65536
    return "ds_read_b64_tr_b16 %s, %s offset:%d" % (v(d, 2), v(a), off)

def interleave(mf, fill, per=2):
    out = []
    fill = list(fill)
    for i, m in enumerate(mf):
        out.append(m)
        if i < len(mf) - 1:
            out += fill[:per]; fill = fill[per:]
    return out + fill

def srd_words(a, regs):
    sizes = {SX: 2048 * 1024, SWG: 512 * 3584, SWU: 512 * 3584, SWQ: 512 * 1024, SWS: WS_SIZE, SWKV: 16384, SWV: 16384,
             SGATE: 1024, SWD: 1792 * 1024, SWO: 512 * 1024, SOUT: 2048 * 1024, SDBG: 256, SKV: 128 * 1024}
    for reg in regs:
        a.e("s_mov_b32 s%d, 0x%x" % (reg + 2, sizes[reg]))
        a.e("s_mov_b32 s%d, 0x20000" % (reg + 3))

def ptr_loads(a, lst):
    for reg, off in lst: a.e("s_load_dwordx2 %s, s[0:1], %d" % (sp(reg), off))

def prologue(a):
    if Opt.diag or Opt.pin >= 0 or Opt.probe >= 0:
        a.e("s_memrealtime %s" % sp(sSTAMP))
        if Opt.diag: a.e("s_memtime %s" % sp(sSTAMP + 2))
    ptr_loads(a, ((SX, 0), (SWG, 48), (SWU, 56), (SWQ, 8)))
    a.e("s_load_dwordx8 s[%d:%d], s[0:1], 64" % (SOUT, SOUT + 7))
    if not (Opt.diag or Opt.probe >= 0): ptr_loads(a, ((SWS, 96), (SWO, 32)))
    if Opt.probe == 1: a.stamp(1)
    a.e("v_lshrrev_b32 v2, 6, v0")
    if Opt.code_pf:
        a.e("s_getpc_b64 %s" % sp(sRET))
        a.lab("L_nopf")
        a.e("s_and_b32 s%d, s2, -8" % sA)
        a.e("v_add_lshl_u32 v3, v2, s%d, 7" % sA)
        a.e("v_readfirstlane_b32 s%d, v2" % sW)
        a.e("v_min_u32 v3, CODE_PF_MAX, v3")
        a.e("global_load_dword %s, v3, %s" % (v(vPOLL), sp(sRET)))
    else:
        a.e("s_nop 0")
        a.e("v_readfirstlane_b32 s%d, v2" % sW)
    if Opt.diag or Opt.probe >= 0:
        a.e("s_load_dwordx2 %s, s[0:1], 96" % sp(SWS))
    a.e("s_cmpk_ge_u32 s2, 256")
    a.e("s_cbranch_scc1 L_end")
    a.e("s_and_b32 s%d, s2, 1" % sD)
    a.e("s_bfe_u32 s%d, s2, 0x30003" % sA)
    a.e("s_lshl3_add_u32 s%d, s%d, s%d" % (sG, sD, sA))
    a.e("s_bfe_u32 s%d, s2, 0x20001" % sA)
    a.e("s_lshr_b32 s%d, s2, 6" % sB)
    a.e("s_lshl2_add_u32 s%d, s%d, s%d" % (sM, sA, sB))
    a.e("s_lshl_b32 s%d, s%d, 10" % (sWK, sW))
    a.e("s_cmp_ge_u32 s%d, 14" % sM)
    a.e("s_cbranch_scc1 L_light")

def xvoff(a, t):
    a.e("v_lshrrev_b32 v2, 4, %s" % v(t))
    a.e("v_xor_b32 v2, v2, %s" % v(t))
    a.e("v_and_b32 v2, 7, v2")
    a.e("s_lshl_b32 s%d, s%d, 17" % (sA, sG))
    a.e("v_lshl_add_u32 v2, v2, 4, s%d" % sA)
    a.e("v_lshrrev_b32 v3, 3, %s" % v(t))
    a.e("v_lshl_add_u32 %s, v3, 10, v2" % v(vDX))

def setup_ids(a):
    a.e("s_mov_b64 %s, %s" % (sp(SKV), sp(SWS)))
    a.e("s_mov_b64 %s, %s" % (sp(SWD), sp(SOUT)))
    a.e("s_mov_b64 %s, %s" % (sp(SOUT), sp(SOUT + 4)))
    a.e("s_mov_b64 %s, %s" % (sp(SDBG), sp(SOUT + 6)))
    a.e("v_and_b32 v0, 63, v0")
    a.e("v_lshlrev_b32 %s, 4, v0" % v(vL16))
    a.e("s_andn2_b32 s%d, 1, s2" % sA)
    a.e("s_bfe_u32 s%d, s2, 0x20001" % sB)
    a.e("s_lshl2_add_u32 s%d, s%d, s%d" % (sA, sA, sB))
    a.e("s_bfe_u32 s%d, s2, 0x20003" % sB)
    a.e("s_lshl2_add_u32 s%d, s%d, s%d" % (sT, sA, sB))
    a.e("s_lshr_b32 s%d, s2, 5" % sCB)

def setup_rd(a):
    a.e("s_lshr_b32 s%d, s%d, 2" % (sHI, sW))
    a.e("s_and_b32 s%d, s%d, 3" % (sLO, sW))
    a.e("v_and_b32 v2, 15, v0")
    a.e("v_lshrrev_b32 v3, 4, v0")
    a.e("v_bfe_u32 v4, v0, 1, 3")
    a.e("v_xor_b32 v4, v4, v3")
    a.e("v_lshlrev_b32 v4, 4, v4")
    a.e("v_lshl_add_u32 %s, v2, 7, v4" % v(vXA))
    a.e("v_bfe_u32 v2, v0, 2, 2")
    a.e("v_and_b32 v4, 3, v0")
    a.e("v_lshl_add_u32 %s, v3, 3, v2" % v(vQA))
    a.e("v_lshlrev_b32 %s, 6, %s" % (v(vQA), v(vQA)))
    a.e("v_xor_b32 v5, s%d, v3" % sHI)
    a.e("v_and_b32 v5, 1, v5")
    a.e("v_lshl_add_u32 %s, v5, 5, %s" % (v(vQA), v(vQA)))
    a.e("v_lshl_add_u32 %s, v4, 3, %s" % (v(vQA), v(vQA)))

def setup_oclr(a):
    srd_words(a, [SWS, SKV, SDBG])
    a.e("s_mov_b32 s%d, 0xffff" % sVM)
    a.e("s_mov_b32 s%d, 0xffff" % (sVM + 1))
    a.e("s_lshl_b32 s%d, s%d, 2" % (sA, sG))
    a.e("s_add_u32 s%d, s%d, s%d" % (sA, sA, sLO))
    a.e("s_lshl_b32 s%d, s%d, 5" % (sB, sA))
    a.e("s_lshl_b32 s%d, s%d, 1" % (sC, sHP))
    a.e("s_add_u32 s%d, s%d, s%d" % (sB, sB, sC))
    a.e("s_add_u32 s%d, s%d, s%d" % (sB, sB, sHI))
    a.e("s_lshl_b32 s%d, s%d, 10" % (sB, sB))
    a.e("s_add_u32 s%d, s%d, 0x%x" % (sOST, sB, WS_OF))
    for i in range(4): a.e("v_mov_b32 %s, -1" % v(vQ + i))
    a.vmop("buffer_store_dwordx4 %s, %s, %s, s%d offen sc1" % (v(vQ, 4), v(vL16), srd(SWS), sOST), "oclr")
    a.e("v_mov_b32 %s, 1" % v(vONE))
    a.e("v_mov_b32 %s, 0" % v(vZERO))
    a.e("v_and_b32 %s, 31, v0" % v(vGA))
    a.e("v_lshlrev_b32 %s, 2, %s" % (v(vGA), v(vGA)))

def collect(fn):
    t = Asm(); t.marks = {}
    def vmop(s_, tag):
        t.e(s_); t.marks[len(t.l) - 1] = tag
    t.vmop = vmop
    fn(t)
    return [(x, t.marks.get(i)) for i, x in enumerate(t.l)]
def put(a, items):
    for x, tag in items:
        if tag: a.vmop(x, tag)
        else: a.e(x)

def setup_attn(a):
    srd_words(a, [SWD, SWO, SOUT])
    a.e("s_lshl_b32 s%d, s%d, 2" % (sA, sG))
    a.e("s_add_u32 s%d, s%d, s%d" % (sA, sA, sLO))
    a.e("s_mul_i32 s%d, s%d, 112" % (sB, sA))
    a.e("s_lshl_b32 s%d, s%d, 3" % (sC, sM))
    a.e("s_add_u32 s%d, s%d, s%d" % (sB, sB, sC))
    a.e("s_lshl_b32 s%d, s%d, 2" % (sC, sHI))
    a.e("s_add_u32 s%d, s%d, s%d" % (sB, sB, sC))
    a.e("s_and_b32 s%d, s%d, 1" % (sC, sLO))
    a.e("s_lshl_b32 s%d, s%d, 1" % (sC, sC))
    a.e("s_add_u32 s%d, s%d, s%d" % (sB, sB, sC))
    a.e("s_lshl_b32 s%d, s%d, 10" % (sB, sB))
    a.e("s_add_u32 s%d, s%d, 0x%x" % (sHST, sB, WS_HF))
    a.e("s_mul_i32 s%d, s%d, %d" % (sC, sC, 112 * 1024))
    a.e("s_sub_u32 s%d, %d, s%d" % (sC, 112 * 1024, sC))
    a.e("s_add_u32 s%d, s%d, s%d" % (sHST2, sHST, sC))
    a.e("v_bfe_u32 v2, v0, 2, 2")
    a.e("v_lshrrev_b32 v3, 5, v0")
    a.e("v_lshl_add_u32 v2, v3, 2, v2")
    a.e("v_lshlrev_b32 v2, 6, v2")
    a.e("v_bfe_u32 v3, v0, 4, 1")
    a.e("v_lshl_add_u32 v2, v3, 5, v2")
    a.e("v_and_b32 v3, 3, v0")
    a.e("v_lshl_add_u32 v2, v3, 3, v2")
    a.e("s_lshr_b32 s%d, s%d, 1" % (sA, sW))
    a.e("s_lshl_b32 s%d, s%d, 11" % (sA, sA))
    a.e("v_add_u32 %s, s%d, v2" % (v(vWDA), sA))
    a.e("v_add_u32 %s, 0x%x, %s" % (v(vKVA), L_KV, v(vL16)))
    a.e("v_bfe_u32 v2, v0, 2, 3")
    a.e("v_lshlrev_b32 v2, 10, v2")
    a.e("v_lshrrev_b32 v3, 5, v0")
    a.e("v_lshl_add_u32 v2, v3, 6, v2")
    a.e("v_and_b32 v3, 3, v0")
    a.e("v_lshl_add_u32 v2, v3, 4, v2")
    a.e("s_lshl_b32 s%d, s%d, 7" % (sB, sCB))
    a.e("v_add_u32 %s, s%d, v2" % (v(vWDV), sB))
    a.e("v_min_u32 v2, 13, v0")
    a.e("v_lshlrev_b32 v2, 7, v2")
    a.e("s_lshr_b32 s%d, s%d, 1" % (sA, sT))
    a.e("s_lshl_b32 s%d, s%d, 11" % (sA, sA))
    a.e("s_add_u32 s%d, s%d, 0x%x" % (sA, sA, WS_HFLAG))
    a.e("v_add_u32 %s, s%d, v2" % (v(vFLA), sA))
    a.e("s_lshl_b32 s%d, s%d, 1" % (sA, sT))
    a.e("s_and_b32 s%d, s%d, 1" % (sB, sW))
    a.e("s_add_u32 s%d, s%d, s%d" % (sA, sA, sB))
    a.e("s_lshl_b32 s%d, s%d, 15" % (sB, sA))
    a.e("s_lshr_b32 s%d, s%d, 1" % (sKQ, sW))
    if Opt.kqx:
        a.e("s_lshl_b32 s%d, s%d, 1" % (sC, sCB))
        a.e("s_and_b32 s%d, s%d, 2" % (sC, sC))
        a.e("s_xor_b32 s%d, s%d, s%d" % (sKQ, sKQ, sC))
    a.e("s_lshl_b32 s%d, s%d, 13" % (sC, sKQ))
    a.e("s_add_u32 s%d, s%d, s%d" % (sB, sB, sC))
    a.e("s_add_u32 s%d, s%d, 0x%x" % (sOLD, sB, WS_OF))
    if Opt.pvz:
        a.e("s_mov_b32 s%d, 0x110000" % sA)
        a.e("s_mov_b32 s%d, 0x110000" % sB)
        a.e("v_mov_b32 v3, 0x3f803f80")
        a.e("v_cndmask_b32 v2, 0, v3, %s" % sp(sA))
    else:
        a.e("v_mov_b32 v2, 0x3f803f80")
    for i in range(16): a.e("v_mov_b32 %s, v2" % v(vV + i))
    for i in range(4): a.e("v_mov_b32 %s, v2" % v(vV1L + i))
    for i in range(4): a.e("v_mov_b32 %s, 0" % v(vE + i))
    a.e("v_lshrrev_b32 v2, 4, v0")
    a.e("v_lshl_add_u32 %s, v2, 8, %s" % (v(vHA), v(vL16)))
    for i in range(16): a.e("v_mov_b32 %s, 0" % v(vO + i))
    for i in range(32): a.e("v_mov_b32 %s, 0" % v(vD + i))
    c0 = -2.0 * math.sqrt(2.0 / math.pi) * math.log2(math.e)
    a.e("v_mov_b32 %s, 0x%x" % (v(vC0), f2u(c0)))
    a.e("v_mov_b32 %s, 0x%x" % (v(vC0 + 1), f2u(c0 * 0.044715)))

def kv_first_loads(a, quartet=False):
    it = []
    for o in (range(0, 16384, 4096) if quartet else range(0, 16384, 8192)):
        b = sWH if quartet else sWK
        it.append(("s_add_u32 m0, s%d, 0x%x\ns_add_u32 s%d, s%d, 0x%x\nbuffer_load_dwordx4 %s, %s, s%d offen sc1 lds"
                   % (b, L_KV + o, sA, b, o, v(vL16), srd(SKV), sA), "kv%d" % (o >> 13)))
    it.append(("s_mov_b32 s%d, 0x%x\nbuffer_load_dwordx4 %s, %s, %s, s%d offen sc1"
               % (sA, 63 * 2048, v(vK0, 4), v(vL16), srd(SKV), sA), "k0"))
    it.append(("s_mov_b64 exec, %s\nbuffer_load_dwordx4 %s, %s, %s, 0 offen offset:%d sc1\ns_mov_b64 exec, -1"
               % (sp(sVM), v(vV1L, 4), v(vL16), srd(SKV), 1024 + 256), "k0"))
    it.append(("s_lshl_b32 s%d, s%d, 2\ns_add_u32 s%d, s%d, s%d\ns_lshl_b32 s%d, s%d, 7\ns_add_u32 s%d, s%d, 0x%x\n"
               "buffer_load_dword %s, %s, %s, s%d offen sc1"
               % (sA, sG, sA, sA, sLO, sA, sA, sA, sA, WS_G, v(vGP), v(vGA), srd(SWS), sA), "k0"))
    it.append(("s_lshl_b32 s%d, s%d, 1\ns_and_b32 s%d, s%d, 1\ns_add_u32 s%d, s%d, s%d\ns_lshl_b32 s%d, s%d, 7\ns_add_u32 s%d, s%d, 0x%x\n"
               "buffer_load_dword %s, %s, %s, s%d offen sc1"
               % (sA, sT, sB, sW, sA, sA, sB, sA, sA, sA, sA, WS_G, v(vGC), v(vGA), srd(SWS), sA), "k0"))
    return it

def spin_counter(a, name, first_loaded, wave=0):
    a.e("s_cmp_lg_u32 s%d, %d" % (sW, wave))
    a.e("s_cbranch_scc1 L_%s_done" % name)
    a.e("s_mov_b32 s%d, 0x4000" % sB)
    if first_loaded: a.e("s_branch L_%s_chk" % name)
    a.lab("L_%s_re" % name)
    a.e("buffer_load_dword %s, off, %s, 0 sc1" % (v(vPOLL), srd(SDBG)))
    a.e("s_waitcnt vmcnt(0)")
    a.lab("L_%s_chk" % name)
    a.e("v_readfirstlane_b32 s%d, %s" % (sA, v(vPOLL)))
    a.e("s_cmp_ge_u32 s%d, 32" % sA)
    a.e("s_cbranch_scc1 L_%s_done" % name)
    a.e("s_sleep 4")
    a.e("s_sub_u32 s%d, s%d, 1" % (sB, sB))
    a.e("s_cmp_lg_u32 s%d, 0" % sB)
    a.e("s_cbranch_scc1 L_%s_re" % name)
    a.lab("L_%s_done" % name)

def phase1_F(a):
    SCHED = {1: ["01423567", "10253467", "23016457", "32104756"],
             2: ["02134657", "01324576", "10243567", "10235467"],
             3: ["01324657", "01243576", "12035467", "20134567"],
             5: ["01243567", "10325467", "23014657", "32104576"],
             6: ["01243567", "10325467", "01234657", "10324576"],
             4: ["02143657", "10325476", "02143657", "10325476"]}
    tabs = SCHED[Opt.sched] if Opt.sched else ["".join(str(c ^ (p & Opt.xmask)) for c in range(8)) for p in range(4)]
    for t_ in tabs: assert sorted(t_) == list("01234567")
    num = [int(t_[::-1], 16) for t_ in tabs]
    def table(a):
        a.e("s_add_u32 s%d, s%d, s%d" % (sA, sG, sHP))
        a.e("s_mov_b32 s%d, 0x%x" % (sXP, num[0]))
        a.e("s_mov_b32 s%d, 0x%x" % (sB, num[2]))
        a.e("s_bitcmp1_b32 s%d, 0" % sA)
        a.e("s_cselect_b32 s%d, 0x%x, s%d" % (sXP, num[1], sXP))
        a.e("s_cselect_b32 s%d, 0x%x, s%d" % (sB, num[3], sB))
        a.e("s_bitcmp1_b32 s%d, 1" % sA)
        a.e("s_cselect_b32 s%d, s%d, s%d" % (sXP, sB, sXP))
        if Opt.ghx:
            a.e("s_bitcmp1_b32 s%d, 3" % sG)
            a.e("s_cselect_b32 s%d, 0x44444444, 0" % sB)
            a.e("s_xor_b32 s%d, s%d, s%d" % (sXP, sXP, sB))
    fo, fw = {"0000": (0, 0), "0101": (0, 1), "0011": (1, 1), "0123": (0, 2)}["".join(t_[0] for t_ in tabs)]
    a.e("s_add_u32 s%d, s%d, s%d" % (sA, sG, sHP))
    a.e("s_bfe_u32 s%d, s%d, 0x%x" % (sCH, sA, fw << 16 | fo))
    if Opt.ghx: a.e("s_lshl2_add_u32 s%d, s%d, s%d" % (sCH, sD, sCH))
    a.e("s_and_b32 s%d, s%d, 0xc00" % (sWH, sWK))
    a.e("v_and_b32 %s, 0xff, v0" % v(vTID))

    def wvoff(a):
        a.e("v_lshrrev_b32 v2, 4, %s" % v(vTID))
        a.e("v_lshrrev_b32 v3, 5, %s" % v(vTID))
        a.e("v_bfi_b32 v3, 3, v2, v3")
        a.e("v_lshlrev_b32 v3, 1, v3")
        a.e("v_xor_b32 v3, v3, %s" % v(vTID))
        a.e("v_and_b32 v3, 15, v3")
        a.e("s_lshl_b32 s%d, s%d, 8" % (sA, sM))
        a.e("v_lshl_add_u32 v3, v3, 4, s%d" % sA)
        a.e("v_mul_u32_u24 v2, 3584, v2")
        a.e("v_add_u32 %s, v2, v3" % v(vDG))
    def qvoff(a):
        a.e("v_lshrrev_b32 v2, 4, %s" % v(vTID))
        a.e("v_and_b32 v2, 2, v2")
        a.e("v_xor_b32 v2, v2, %s" % v(vTID))
        a.e("v_and_b32 v2, 3, v2")
        a.e("s_lshl_b32 s%d, s%d, 6" % (sA, sHP))
        a.e("v_lshl_add_u32 v2, v2, 4, s%d" % sA)
        a.e("v_lshrrev_b32 v3, 2, %s" % v(vTID))
        a.e("v_lshl_add_u32 %s, v3, 10, v2" % v(vDQ))
    def stouch(a):
        if Opt.diag or Opt.probe >= 0: a.e("s_load_dwordx2 %s, s[0:1], 32" % sp(SWO))
        if not Opt.stch: return
        a.e("s_lshr_b32 s%d, s%d, 2" % (sA, sW))
        if Opt.ghx: a.e("s_lshl2_add_u32 s%d, s%d, s%d" % (sA, sD, sA))
        a.e("s_lshl_b32 s%d, s%d, 6" % (sA, sA))
        a.e("s_and_b32 s%d, s%d, 7" % (sB, sG))
        a.e("s_add_u32 s%d, s%d, s%d" % (sA, sA, sB))
        a.e("s_mul_i32 s%d, s%d, 28" % (sA, sA))
        a.e("s_bfe_u32 s%d, s%d, 0x10001" % (sB, sW))
        a.e("s_lshl1_add_u32 s%d, s%d, s%d" % (sB, sM, sB))
        a.e("s_add_u32 s%d, s%d, s%d" % (sA, sA, sB))
        a.e("s_lshl_b32 s%d, s%d, 7" % (sA, sA))
        a.e("s_bitcmp1_b32 s%d, 0" % sW)
        a.e("s_cselect_b64 %s, %s, %s" % (sp(SWKV), sp(SWU), sp(SWG)))
        a.e("s_add_u32 s%d, s%d, s%d" % (SWKV, SWKV, sA))
        a.e("s_addc_u32 s%d, s%d, 0" % (SWKV + 1, SWKV + 1))
        for i in range(Opt.stch):
            a.e("s_load_dwordx2 %s, %s, 0x%x" % (sp(sTMPP), sp(SWKV), 128 * 3584 + i * 8 * 3584 + 60))
    def wsrd(a):
        srd_words(a, [SWG])
        a.e("s_mov_b64 %s, %s" % (sp(SWU + 2), sp(SWG + 2)))

    if Opt.hrot:
        ORDER = [("q", 0)] + [(t_, 2 * h_ + j) for h_ in range(2) for t_, j in (("x", 0), ("x", 1), ("g", 0), ("u", 0), ("g", 1), ("u", 1))]
    else:
        ORDER = [("q", 0)] + [("x", j) for j in range(4)] + [(t_, j) for j in range(4) for t_ in "gu"]
    def block(items):
        out = []; lastc = None; lastw = None
        for c, kind, j in items:
            s = c % 3; pre = []
            if c != lastc:
                if c: pre.append("s_bfe_u32 s%d, s%d, 0x%x" % (sCH, sXP, 0x30000 + 4 * c))
                lastc = c; lastw = None
            fam = "w" if kind in "gu" else kind
            rot = Opt.hrot and fam != "q"
            if lastw is None or lastw[0] != fam or (rot and lastw[1] >> 1 != j >> 1):
                pre.append({"q": "s_lshl_b32 s%d, s%d, 16" % (sOFFW, sCH), "x": "s_lshl_b32 s%d, s%d, 7" % (sOFFW, sCH),
                            "w": "s_mul_i32 s%d, s%d, %d" % (sOFFW, sCH, 64 * 3584)}[fam])
                if rot: pre.append("s_%s_u32 s%d, s%d, s%d" % ("sub" if j >> 1 else "add", sOFFW, sOFFW, sRX if fam == "x" else sRW))
                lastw = (fam, 0)
            if lastw[1] != j:
                pre.append("s_add_u32 s%d, s%d, 0x%x" % (sOFFW, sOFFW, (j - lastw[1]) * (0x8000 if fam == "x" else 16 * 3584)))
                lastw = (fam, j)
            m0c, vo, rs = {"q": (L_WQ + s * 4096, vDQ, SWQ), "x": (L_X + s * 16384 + j * 4096, vDX, SX),
                           "g": (L_G + s * 16384 + j * 4096, vDG, SWG), "u": (L_U + s * 16384 + j * 4096, vDG, SWU)}[kind]
            nt = " nt" if Opt.ntx & (1 if rs == SX else 2) else ""
            out.append(("s_add_u32 m0, s%d, 0x%x\n%s\nbuffer_load_dwordx4 %s, %s, s%d offen%s lds"
                        % ((sM0B + (j >> 1)) if rot else sWH, m0c, "\n".join(pre) or "s_nop 0", v(vo), srd(rs), sOFFW, nt), "c%d" % c))
        return out
    def part(c, role): return [(c, k_, j) for k_, j in ORDER if (k_ in "gu") == (role == "A")]

    def rdsetup(a):
        setup_rd(a)
        a.e("v_lshl_add_u32 %s, v3, 3, v2" % v(vWA))
        a.e("v_lshlrev_b32 %s, 8, %s" % (v(vWA), v(vWA)))
        a.e("v_lshl_add_u32 %s, v4, 3, %s" % (v(vWA), v(vWA)))
        a.e("v_and_b32 v5, 1, v3")
        a.e("v_lshl_add_u32 v2, v5, 2, v2")
        a.e("s_lshl_b32 s%d, s%d, 2" % (sA, sHI))
        a.e("s_and_b32 s%d, s%d, 1" % (sB, sLO))
        a.e("s_lshl_b32 s%d, s%d, 1" % (sB, sB))
        a.e("s_add_u32 s%d, s%d, s%d" % (sA, sA, sB))
        a.e("v_xor_b32 v2, s%d, v2" % sA)
        a.e("v_lshl_add_u32 %s, v2, 5, %s" % (v(vWA), v(vWA)))
        a.e("v_xor_b32 %s, 32, %s" % (v(vWA + 1), v(vWA)))
        a.e("v_add_u32 %s, 0x%x, %s" % (v(vWA + 2), L_U - L_G, v(vWA)))
        a.e("v_add_u32 %s, 0x%x, %s" % (v(vWA + 3), L_U - L_G, v(vWA + 1)))
        a.e("s_lshl_b32 s%d, s%d, 12" % (sA, sLO))
        a.e("s_add_u32 s%d, s%d, 0x%x" % (sA, sA, L_X))
        a.e("v_add_u32 %s, s%d, %s" % (v(vXA), sA, v(vXA)))
        a.e("v_xor_b32 %s, 0x1000, %s" % (v(vXA + 1), v(vXA)))
        a.e("v_xor_b32 %s, 64, %s" % (v(vXA + 2), v(vXA)))
        a.e("v_xor_b32 %s, 64, %s" % (v(vXA + 3), v(vXA + 1)))
        a.e("v_add_u32 %s, 0x%x, %s" % (v(vQA), L_WQ, v(vQA)))

    a.e("s_cmp_ge_u32 s%d, 4" % sW)
    a.e("s_cbranch_scc1 L_setB")
    late = collect(setup_oclr) + collect(setup_attn)
    words = collect(lambda t: srd_words(t, [SWS, SKV, SDBG, SWD, SWO, SOUT]))
    late = [x for x in late if x not in words]
    oclr = [x for x in late if x[1] == "oclr"]
    if Opt.olate: late = [x for x in late if x[1] != "oclr"]
    else: oclr = []
    words += [("v_mov_b32 %s, 0" % v(r_), None) for r_ in (vGA, vWDV, vFLA, vHA)]
    st = collect(rdsetup) + words + late[:Opt.fillpre]
    fills = {"A": late[Opt.fillpre:], "B": late[Opt.fillpre:]}
    vms = {}
    wsrd(a); wvoff(a)
    a.e("s_waitcnt lgkmcnt(0)")
    a.stamp(2)
    if Opt.spos == 0: stouch(a)
    put(a, block(part(0, "A")))
    a.e("s_branch L_setA")
    vms["A"] = a.vm; a.vm = []
    a.lab("L_setB")
    srd_words(a, [SX]); xvoff(a, vTID)
    a.e("s_waitcnt lgkmcnt(0)")
    a.stamp(2)
    if Opt.spos == 0: stouch(a)
    put(a, block(part(0, "B")[1:]))
    srd_words(a, [SWQ]); qvoff(a)
    put(a, block(part(0, "B")[:1]))
    vms["B"] = a.vm
    for role in "BA":
        a.vm = vms[role]
        if role == "A": a.lab("L_setA")
        if Opt.spos == 1: stouch(a)
        table(a)
        setup_ids(a)
        if role == "A": srd_words(a, [SX, SWQ])
        else: wsrd(a)
        def touches():
            tm = sum(0xff << (8 * i) for i in range(4) if Opt.tch >> i & 1)
            setex = "s_bitcmp1_b32 s%d, 3\ns_cselect_b32 exec_lo, 0, 0x%x\ns_cselect_b32 exec_hi, 0x%x, 0" % (sG, tm, tm) if Opt.ghx \
                    else "s_mov_b32 exec_lo, 0x%x\ns_mov_b32 exec_hi, 0" % tm
            if Opt.tlb & 2 and role == "B":
                a.e("s_and_b32 s%d, s%d, 7" % (sA, sG))
                a.e("v_lshl_add_u32 v2, v0, 3, s%d" % sA)
                a.e("v_mul_u32_u24 v3, 3584, v2")
                a.e("s_and_b32 s%d, s%d, 1" % (sB, sW))
                a.e("s_lshl1_add_u32 s%d, s%d, s%d" % (sA, sM, sB))
                a.e("s_lshl_b32 s%d, s%d, 7" % (sA, sA))
                a.e(setex)
                a.e("s_cmp_ge_u32 s%d, 6" % sW)
                a.e("s_cbranch_scc1 L_tlbu")
                a.e("buffer_load_dword %s, v3, %s, s%d offen" % (v(vPOLL), srd(SWG), sA))
                a.e("s_branch L_tlbe")
                a.lab("L_tlbu")
                a.e("buffer_load_dword %s, v3, %s, s%d offen" % (v(vPOLL), srd(SWU), sA))
                a.lab("L_tlbe")
                a.e("s_mov_b64 exec, -1")
                a.vm.append("tlb")
            if Opt.tlb & 12 and role == "A":
                a.e("s_cmp_lg_u32 s%d, 0" % sW)
                a.e("s_cbranch_scc1 L_tlbx")
                a.e("s_and_b32 s%d, s%d, 7" % (sA, sG))
                a.e("v_lshl_add_u32 v2, v0, 3, s%d" % sA)
                a.e("v_lshlrev_b32 v3, 10, v2")
                a.e("s_lshl_b32 s%d, s%d, 6" % (sA, sHP))
                a.e(setex if Opt.tlb & 4 else "s_mov_b64 exec, 1")
                a.e("buffer_load_dword %s, v3, %s, s%d offen" % (v(vPOLL), srd(SWQ), sA))
                a.e("s_branch L_tlby")
                a.lab("L_tlbx")
                a.e("s_and_b32 s%d, s%d, 3" % (sA, sM))
                a.e("s_lshl2_add_u32 s%d, s%d, s%d" % (sA, sG, sA))
                a.e("s_lshl_b32 s%d, s%d, 15" % (sA, sA))
                a.e("v_lshl_add_u32 v3, v0, 10, s%d" % sA)
                a.e("s_lshr_b32 s%d, s%d, 3" % (sA, sG))
                a.e("s_lshl2_add_u32 s%d, s%d, s%d" % (sA, sA, sW) if Opt.ghx else "s_mov_b32 s%d, s%d" % (sA, sW))
                a.e("s_lshl_b32 s%d, s%d, 7" % (sA, sA))
                a.e("s_bitcmp1_b32 %d, s%d" % (Opt.tch if Opt.tlb & 8 else 0, sW))
                a.e("s_cselect_b32 exec_lo, -1, 1")
                a.e("s_mov_b32 exec_hi, 0")
                a.e("buffer_load_dword %s, v3, %s, s%d offen" % (v(vPOLL), srd(SX), sA))
                a.lab("L_tlby")
                a.e("s_mov_b64 exec, -1")
                a.vm.append("tlb")
        if Opt.tpos == 0: touches()
        if Opt.startbar: a.e("s_barrier")
        npre = min(Opt.npre, 8) if role == "A" else 5
        pn = block(part(1, role)[:npre])
        rest = st + (collect(qvoff) + collect(lambda t: xvoff(t, vTID)) if role == "A" else collect(wvoff))
        gap = len(rest) // (npre + Opt.pregap) + 1
        for i in range(npre):
            put(a, pn[:1]); pn = pn[1:]
            put(a, rest[:gap]); rest = rest[gap:]
        put(a, rest)
        if Opt.tpos == 1: touches()
        a.e("s_mov_b64 vcc, %d" % (-1 if role == "A" else 0))
        if role == "A":
            a.waitvm("c0", lgkm=True)
        else:
            a.e("s_setprio 1")
            a.waitvm("c0", lgkm=True)
            a.e("s_branch L_k0")
        vms[role] = a.vm
    stream = part(1, "A")[min(Opt.npre, 8):] + [(c, k_, j) for c in range(2, 8) for k_, j in ORDER]
    qa = [int(x, 16) for x in Opt.qa]; qb = [int(x, 16) for x in Opt.qb]
    def take(n, cmax):
        m = 0
        while m < n and m < len(stream) and stream[m][0] <= cmax: m += 1
        r_ = stream[:m]; del stream[:m]
        return block(r_)
    a.lab("L_k0")
    a.vm = vms["A"]
    ool = Asm()
    def dmablock(name, role, items, wait=None):
        a.e("s_cbranch_vcc%s L_%s" % ("nz" if role == "A" else "z", name))
        if wait: a.waitvm(wait, lgkm=True)
        a.lab("L_%s_r" % name)
        ool.lab("L_%s" % name)
        ool.vm = a.vm if role == "A" else vms["B"]
        for it_ in items:
            put(ool, [it_])
            put(ool, fills[role][:Opt.fillper]); fills[role] = fills[role][Opt.fillper:]
        if name in ("d7", "e7"): put(ool, fills[role]); fills[role] = []
        if wait: ool.waitvm(wait, lgkm=True)
        if role == "B": vms["B"] = ool.vm
        ool.e("s_branch L_%s_r" % name)
    a.ool = ool.l

    def fr(k):
        b = vF1 + 36 * (k % 2)
        return dict(x=b, w=b + 16, q=b + 32)
    def reads(k):
        c, s = divmod(k, 2); f = fr(k); sl = c % 3
        wo = sl * 16384 + s * 8192
        W = lambda i: [rdtr(f['w'] + 4 * i, vWA + i, wo), rdtr(f['w'] + 4 * i + 2, vWA + i, wo + 1024)]
        X = [rd128(f['x'] + 4 * b, vXA + 2 * s + (b >> 1), sl * 16384 + (b & 1) * 2048) for b in range(4)]
        return W(0) + X + W(2) + W(1) + W(3) + [rdtr(f['q'], vQA, sl * 4096 + s * 2048), rdtr(f['q'] + 2, vQA, sl * 4096 + s * 2048 + 256)]
    a.e("s_barrier")
    a.stamp(3)
    if Opt.kdiag or Opt.probe >= 18:
        kstamp(a, 2)
        a.e("s_waitcnt lgkmcnt(0)")
    for r in reads(0): a.e(r)
    if qa[0]: dmablock("d2", "A", take(qa[0], 2))
    for k in range(16):
        c, s = divmod(k, 2); f = fr(k)
        z = lambda x: None if k == 0 else x
        mf = []
        for n_, i in enumerate((0, 2, 1, 3)):
            for b in (range(4) if n_ % 2 == 0 else range(3, -1, -1)):
                d = vACC + 16 * b + 4 * i
                mf.append(mfma16(d, f['w'] + 4 * i, f['x'] + 4 * b, z(d)))
        for b in range(2): mf.append(mfma16(vAQ + 4 * b, f['q'], f['x'] + 4 * b, z(vAQ + 4 * b)))
        rds = reads(k + 1) if k < 15 else []
        if s == 0:
            a.e("s_waitcnt lgkmcnt(6)")
            for i, m in enumerate(mf):
                if i == 8: a.e("s_waitcnt lgkmcnt(8)")
                a.e(m)
                if i < len(rds): a.e(rds[i])
            continue
        a.e("s_waitcnt lgkmcnt(8)")
        for m in mf[:4]: a.e(m)
        if c <= 5:
            dmablock("e%d" % (c + 2), "B", take(qb[c], c + 2), "c%d" % (c + 1))
            assert not any(x[0] <= c + 1 for x in stream)
        if c == 7:
            a.e("s_waitcnt lgkmcnt(0)")
        elif c == 6:
            a.e("s_waitcnt lgkmcnt(0)")
            a.e("s_cbranch_vccz L_st7")
            a.e("s_setprio 1")
            a.e("s_waitcnt vmcnt(0)")
            a.e("s_barrier")
            a.lab("L_st7")
        else:
            a.e("s_barrier")
        if c < 7 and ((Opt.kdiag == 1 and Opt.diag) or Opt.probe == 21 + c):
            kstamp(a, 3 + c)
            a.e("s_waitcnt lgkmcnt(0)")
        if c + 3 < 8:
            items = take(qa[c + 1], c + 3)
            dmablock("d%d" % (c + 3), "A", items)
        for i, m in enumerate(mf[4:]):
            a.e(m)
            if i < len(rds): a.e(rds[i])
        if k == 11: assert not stream and not fills["A"] and not fills["B"]
        if k == 11:
            a.e("s_cbranch_vccnz L_st6")
            a.e("s_setprio 0")
            spin_counter(a, "kvf", False, 4)
            a.wait0()
            a.e("s_barrier")
            put(a, kv_first_loads(a, True) + oclr)
            a.lab("L_st6")
    a.kvA = (kv_first_loads(a) + oclr)[2:]
    a.stamp(4)

def phase1_L(a):
    a.lab("L_light")
    a.vm = []
    a.e("s_waitcnt lgkmcnt(0)")
    ptr_loads(a, ((SWKV, 16), (SWV, 24), (SGATE, 72), (SWO, 32)))
    srd_words(a, [SWKV, SWV, SGATE, SX])
    xvoff(a, 0)
    a.e("v_and_b32 v2, 63, v0")
    a.e("v_lshlrev_b32 %s, 4, v2" % v(vL16))
    a.e("s_sub_u32 s%d, s%d, 14" % (sCNT, sM))
    a.e("s_lshl_b32 s%d, s%d, 16" % (sOLD, sCNT))
    a.e("s_lshl_b32 s%d, s%d, 13" % (sHST, sCNT))
    a.e("s_add_u32 s%d, s%d, s%d" % (sWH, sHST, sWK))
    a.e("s_xor_b32 s%d, s%d, 0x2000" % (sHST, sHST))
    a.e("s_add_u32 s%d, s%d, 0x2000" % (sA, sWK))
    a.e("s_waitcnt lgkmcnt(0)")
    a.stamp(2)
    def xdma(c, base, so):
        a.vmop("s_add_u32 m0, s%d, 0x%x\ns_nop 0\nbuffer_load_dwordx4 %s, %s, s%d offen offset:%d lds"
               % (base, LL_X + c * 16384 - c * 128, v(vDX), srd(SX), so, c * 128), "c%d" % c)
    def wdma(u):
        for t, rs in enumerate((SWKV, SWV)):
            a.vmop("s_add_u32 m0, s%d, 0x%x\ns_nop 0\nbuffer_load_dwordx4 %s, %s, s%d offen lds"
                   % (sWK, LL_W + t * 16384 + u * 8192, v(vL16), srd(rs), sA if u else sWK), "w")
    wdma(0)
    a.vmop("s_mov_b32 m0, s%d\ns_nop 0\nbuffer_load_dwordx4 %s, %s, 0 offen lds" % (sHST, v(vL16), srd(SGATE)), "w")
    for c in range(8):
        if c == 4: wdma(1)
        xdma(c, sWH, sOLD)
        if c in (1, 3, 5): a.e("s_barrier")
    setup_ids(a)
    srd_words(a, [SWQ])
    setup_rd(a)
    a.e("v_lshrrev_b32 v3, 5, v0")
    a.e("v_bfrev_b32 v5, v4")
    a.e("v_lshrrev_b32 v5, 30, v5")
    a.e("s_cmp_ge_u32 s%d, 2" % sLO)
    a.e("s_cselect_b64 vcc, -1, 0")
    a.e("v_cndmask_b32 v4, v5, v4, vcc")
    a.e("v_lshl_add_u32 %s, v3, 3, v2" % v(vWA))
    a.e("v_lshlrev_b32 %s, 5, %s" % (v(vWA), v(vWA)))
    a.e("v_lshl_add_u32 %s, v4, 3, %s" % (v(vWA), v(vWA)))
    a.e("s_lshr_b32 s%d, s%d, 1" % (sA, sLO))
    a.e("s_lshl_b32 s%d, s%d, 14" % (sA, sA))
    a.e("s_add_u32 s%d, s%d, 0x%x" % (sA, sA, LL_W))
    a.e("v_add_u32 %s, s%d, %s" % (v(vWA), sA, v(vWA)))
    a.e("v_lshl_add_u32 %s, v3, 4, s%d" % (v(vWA + 1), sHST))
    a.e("s_and_b32 s%d, s%d, 1" % (sA, sLO))
    a.e("s_lshl_b32 s%d, s%d, 1" % (sB, sCNT))
    a.e("s_add_u32 s%d, s%d, s%d" % (sCNT, sA, sB))
    a.e("s_lshl_b32 s%d, s%d, 12" % (sA, sCNT))
    a.e("v_and_b32 v2, 31, v0")
    a.e("v_bfe_u32 v4, v0, 1, 3")
    a.e("v_xor_b32 v4, v4, v3")
    a.e("v_lshlrev_b32 v4, 4, v4")
    a.e("v_lshl_add_u32 v4, v2, 7, v4")
    a.e("v_add_u32 %s, s%d, v4" % (v(vLX), sA))
    for s in range(1, 4): a.e("v_xor_b32 %s, %d, %s" % (v(vLX + s), 32 * s, v(vLX)))
    for s in range(4): a.e("v_add_u32 %s, 0x10000, %s" % (v(vLX + 4 + s), v(vLX + s)))
    a.e("s_waitcnt lgkmcnt(0)")
    setup_oclr(a)
    vm0 = list(a.vm)
    a.e("s_cmp_lg_u32 s%d, 0" % sHI)
    a.e("s_cbranch_scc1 L_lB")
    a.e("s_not_b64 %s, %s" % (sp(sTMPP), sp(sVM)))
    a.e("s_cmp_ge_u32 s%d, 2" % sLO)
    a.e("s_cbranch_scc1 L_lV")
    def chain(kind):
        a.vm = list(vm0)
        def fr(k):
            b = vFR + 8 * (k % 4)
            return b, b + 4
        def reads(k):
            c, s = divmod(k, 4); x, w = fr(k)
            r = [rd128(x, vLX + s + 4 * (c >> 2), (c & 3) * 16384), rdtr(w, vWA, k * 512), rdtr(w + 2, vWA, k * 512 + 128)]
            if kind == "K":
                r += ["s_mov_b64 exec, %s" % sp(sTMPP), rd128(w, vWA + 1, k * 32), "s_mov_b64 exec, -1"]
            return r
        for q in range(4):
            a.waitvm("c%d" % (2 * q + 1))
            a.e("s_barrier")
            nr = 4 if kind == "K" else 3
            for k in range(8 * q, 8 * q + 2):
                for r in reads(k): a.e(r)
            for k in range(8 * q, 8 * q + 8):
                if k + 2 < 8 * q + 8:
                    for r in reads(k + 2): a.e(r)
                left = min(2, 8 * q + 7 - k)
                a.e("s_waitcnt lgkmcnt(%d)" % (left * nr))
                x, w = fr(k)
                cc = None if k == 0 else vACC
                a.e(mfma(vACC, w, x, cc) if kind == "K" else mfma(vACC, x, w, cc))
        a.e("s_lshl_b32 s%d, s%d, 2" % (sA, sG))
        a.e("s_add_u32 s%d, s%d, s%d" % (sA, sA, sCNT))
        a.e("s_nop 12")
        if kind == "K":
            a.e("s_mov_b32 s%d, 0x%x" % (sC, f2u(0.25 * math.log2(math.e))))
            for i in range(8): a.e("v_mul_f32 %s, s%d, %s" % (v(vACC + i), sC, v(vACC + i)))
            a.e("v_mul_f32 %s, 0x%x, %s" % (v(vACC + 8), f2u(-math.log2(math.e)), v(vACC + 8)))
            a.e("v_exp_f32 %s, %s" % (v(vACC + 8), v(vACC + 8)))
            for i in range(4): a.e("v_cvt_pk_bf16_f32 %s, %s, %s" % (v(vFR + i), v(vACC + 2 * i), v(vACC + 2 * i + 1)))
            a.e("v_add_f32 %s, 1.0, %s" % (v(vACC + 8), v(vACC + 8)))
            a.e("v_rcp_f32 %s, %s" % (v(vACC + 8), v(vACC + 8)))
            a.e("s_add_u32 s%d, s%d, 63" % (sB, sA))
            a.e("s_and_b32 s%d, s%d, 63" % (sB, sB))
            a.e("s_lshl_b32 s%d, s%d, 11" % (sB, sB))
            a.e("buffer_store_dwordx4 %s, %s, %s, s%d offen sc1" % (v(vFR, 4), v(vL16), srd(SKV), sB))
            a.e("s_lshl_b32 s%d, s%d, 7" % (sB, sA))
            a.e("s_add_u32 s%d, s%d, 0x%x" % (sB, sB, WS_G))
            a.e("s_mov_b32 exec_hi, 0")
            a.e("buffer_store_dword %s, %s, %s, s%d offen sc1" % (v(vACC + 8), v(vGA), srd(SWS), sB))
            a.e("s_mov_b64 exec, -1")
        else:
            for i in range(8): a.e("v_cvt_pk_bf16_f32 %s, %s, %s" % (v(vFR + i), v(vACC + 2 * i), v(vACC + 2 * i + 1)))
            a.e("v_bfe_u32 v2, v0, 4, 1")
            a.e("v_add_u32 v2, s%d, v2" % sA)
            a.e("v_and_b32 v2, 63, v2")
            a.e("v_lshl_add_u32 v2, v2, 11, %s" % v(vL16))
            for i in range(4): a.e("v_cndmask_b32 %s, %s, %s, %s" % (v(vFR + i), v(vFR + 4 + i), v(vFR + i), sp(sVM)))
            a.e("buffer_store_dwordx4 %s, v2, %s, 0 offen offset:1024 sc1" % (v(vFR, 4), srd(SKV)))
        a.e("s_branch L_lJ")
    chain("K")
    a.lab("L_lV")
    chain("V")
    a.lab("L_lB")
    a.vm = list(vm0)
    a.e("s_cmp_lg_u32 s%d, 14" % sM)
    a.e("s_cbranch_scc1 L_nozf")
    a.e("s_cmp_lg_u32 s%d, 4" % sW)
    a.e("s_cbranch_scc1 L_nozf")
    a.e("v_lshlrev_b32 v2, 7, v0")
    a.e("s_lshl_b32 s%d, s%d, 11" % (sA, sG))
    a.e("s_add_u32 s%d, s%d, 0x%x" % (sA, sA, WS_HFLAG))
    a.e("s_mov_b64 exec, 0xffff")
    a.e("buffer_store_dword %s, v2, %s, s%d offen sc1" % (v(vZERO), srd(SWS), sA))
    a.e("s_mov_b64 exec, -1")
    a.lab("L_nozf")
    for q in range(4):
        a.waitvm("c%d" % (2 * q + 1))
        a.e("s_barrier")
    a.lab("L_lJ")
    a.e("v_lshrrev_b32 v3, 2, v0")
    a.e("v_lshlrev_b32 v3, 10, v3")
    a.e("v_lshrrev_b32 v4, 5, v0")
    a.e("v_lshlrev_b32 v4, 1, v4")
    a.e("v_xor_b32 v4, v4, v0")
    a.e("v_and_b32 v4, 3, v4")
    a.e("v_lshl_add_u32 v3, v4, 4, v3")
    a.e("s_lshl_b32 s%d, s%d, 14" % (sA, sW))
    a.e("s_lshl_b32 s%d, s%d, 6" % (sB, sHP))
    a.e("s_add_u32 s%d, s%d, s%d" % (sA, sA, sB))
    a.e("v_add_u32 %s, s%d, v3" % (v(vDQ), sA))
    a.e("s_xor_b32 s%d, s%d, 0x2000" % (sWH, sWH))
    a.e("s_xor_b32 s%d, s%d, 0x10000" % (sOLD, sOLD))
    a.wait0(lgkm=True)
    a.e("s_barrier")
    a.e("s_cmp_lg_u32 s%d, 0" % sW)
    a.e("s_cbranch_scc1 L_noat")
    a.e("s_mov_b64 exec, 1")
    a.e("buffer_atomic_add %s, off, %s, 0 sc1" % (v(vONE), srd(SDBG)))
    a.e("s_mov_b64 exec, -1")
    a.lab("L_noat")
    a.stamp(3)
    for c in range(8): xdma(c, sWH, sOLD)
    for p in range(4):
        a.e("s_add_u32 m0, s%d, 0x%x" % (sWK, LL_WQ + p * 8192))
        a.e("s_mov_b32 s%d, 0x%x" % (sA, p * 128 * 1024))
        a.e("buffer_load_dwordx4 %s, %s, s%d offen lds" % (v(vDQ), srd(SWQ), sA))
    setup_attn(a)
    if Opt.touch & 2:
        a.e("s_lshl_b32 s%d, s%d, 1" % (sA, sG))
        a.e("s_add_u32 s%d, s%d, s%d" % (sA, sA, sM))
        a.e("s_sub_u32 s%d, s%d, 14" % (sA, sA))
        a.e("s_lshl_b32 s%d, s%d, 3" % (sA, sA))
        a.e("s_add_u32 s%d, s%d, s%d" % (sA, sA, sW))
        a.e("v_lshlrev_b32 v2, 15, v0")
        a.e("s_lshl_b32 s%d, s%d, 7" % (sA, sA))
        a.e("buffer_load_dword %s, v2, %s, s%d offen" % (v(vPOLL), srd(SWO), sA))
        a.e("buffer_load_dword %s, v2, %s, s%d offen" % (v(vPOLL), srd(SWD), sA))
    a.e("s_lshl_b32 s%d, s%d, 12" % (sA, sLO))
    a.e("v_add_u32 %s, s%d, %s" % (v(vXA), sA, v(vXA)))
    a.e("v_xor_b32 %s, 64, %s" % (v(vXA + 1), v(vXA)))
    a.e("v_add_u32 %s, 0x10000, %s" % (v(vXA + 2), v(vXA)))
    a.e("v_add_u32 %s, 0x10000, %s" % (v(vXA + 3), v(vXA + 1)))
    a.e("v_add_u32 %s, 0x%x, %s" % (v(vQA), LL_WQ, v(vQA)))
    a.e("s_waitcnt vmcnt(%d)" % (2 if Opt.touch & 2 else 0))
    a.e("s_barrier")
    def fr(k): return vFR + 12 * (k % 3)
    def reads(k):
        c, s = divmod(k, 2); f = fr(k)
        return [rd128(f + 4 * b, vXA + s + 2 * (c >> 2), (c & 3) * 16384 + b * 2048) for b in range(2)] + \
               [rdtr(f + 8, vQA, k * 2048), rdtr(f + 10, vQA, k * 2048 + 256)]
    for k in range(2):
        for r in reads(k): a.e(r)
    for k in range(16):
        a.e("s_waitcnt lgkmcnt(%d)" % (4 * min(1, 15 - k)))
        for b in range(2): a.e(mfma16(vAQ + 4 * b, fr(k) + 8, fr(k) + 4 * b, None if k == 0 else vAQ + 4 * b))
        if k + 2 < 16:
            for r in reads(k + 2): a.e(r)
    spin_counter(a, "kvl", False)
    a.e("s_barrier")
    for s, t in kv_first_loads(a): a.e(s)
    a.wait0()
    a.stamp(4)
    a.e("s_branch L_join")

def gelu_tile(a, ti, scalar=False):
    acc = vACC + 16 * ti
    t = vFR
    o = vFR + 8 + 4 * ti
    pk = lambda r: v(r, 2)
    if scalar:
        for i in range(8): a.e("v_mul_f32 %s, %s, %s" % (v(t + i), v(acc + i), v(acc + i)))
        for i in range(8): a.e("v_fma_f32 %s, %s, %s, %s" % (v(t + i), v(t + i), v(vC0 + 1), v(vC0)))
        for i in range(8): a.e("v_mul_f32 %s, %s, %s" % (v(t + i), v(t + i), v(acc + i)))
        for i in range(8): a.e("v_exp_f32 %s, %s" % (v(t + i), v(t + i)))
        for i in range(8): a.e("v_add_f32 %s, 1.0, %s" % (v(t + i), v(t + i)))
        for i in range(8): a.e("v_rcp_f32 %s, %s" % (v(t + i), v(t + i)))
        for i in range(8): a.e("v_mul_f32 %s, %s, %s" % (v(acc + i), v(acc + i), v(acc + 8 + i)))
        for i in range(8): a.e("v_mul_f32 %s, %s, %s" % (v(acc + i), v(acc + i), v(t + i)))
    R4, R8 = (range(0), range(0)) if scalar else (range(4), range(8))
    for i in R4: a.e("v_pk_mul_f32 %s, %s, %s" % (pk(t + 2 * i), pk(acc + 2 * i), pk(acc + 2 * i)))
    for i in R4: a.e("v_pk_fma_f32 %s, %s, %s, %s op_sel:[0,1,0] op_sel_hi:[1,1,0]" % (pk(t + 2 * i), pk(t + 2 * i), pk(vC0), pk(vC0)))
    for i in R4: a.e("v_pk_mul_f32 %s, %s, %s" % (pk(t + 2 * i), pk(t + 2 * i), pk(acc + 2 * i)))
    for i in R8: a.e("v_exp_f32 %s, %s" % (v(t + i), v(t + i)))
    for i in R4: a.e("v_pk_add_f32 %s, %s, 1.0 op_sel_hi:[1,0]" % (pk(t + 2 * i), pk(t + 2 * i)))
    for i in R8: a.e("v_rcp_f32 %s, %s" % (v(t + i), v(t + i)))
    for i in R4: a.e("v_pk_mul_f32 %s, %s, %s" % (pk(acc + 2 * i), pk(acc + 2 * i), pk(acc + 8 + 2 * i)))
    for i in R4: a.e("v_pk_mul_f32 %s, %s, %s" % (pk(acc + 2 * i), pk(acc + 2 * i), pk(t + 2 * i)))
    for i in range(4): a.e("v_cvt_pk_bf16_f32 %s, %s, %s" % (v(o + i), v(acc + 2 * i), v(acc + 2 * i + 1)))
    a.vmop("buffer_store_dwordx4 %s, %s, %s, s%d offen offset:%d sc1" % (v(o, 4), v(vHA), srd(SWS), sHST2 if ti >> 1 else sHST, (ti & 1) * 256), "hst")

def Yseg(hset, toggle=False):
    out = []
    for t in range(2):
        S, Sn = vS + 16 * t, vS + 16 * (1 - t)
        K, V0, V1 = vKF + 4 * t, vV + 8 * t, vV + 8 * t + 4
        for j in range(8):
            out.append("v_exp_f32 %s, %s" % (v(vE + 2 * (j % 2)), v(S + 2 * j)))
            out.append("v_exp_f32 %s, %s" % (v(vE + 2 * (j % 2) + 1), v(S + 2 * j + 1)))
            jj = (j - 1) % 8
            out.append("v_cvt_pk_bf16_f32 %s, %s, %s" % (v(vP + jj), v(vE + 2 * (jj % 2)), v(vE + 2 * (jj % 2) + 1)))
            if j == 1: out.append(mfma(vO, V1, vP + 4, vO))
            if j == 3: out.append(mfma(Sn, K, vQ, None))
            if hset is None:
                if j == 7: out.append(mfma(vO, V0, vP, vO))
            else:
                if j == 5: out.append(mfma(vO, V0, vP, vO))
                if j == 6 and t == 1 and toggle:
                    out.append("v_xor_b32 %s, 0x4000, %s" % (v(vKVA), v(vKVA)))
                    out.append("v_xor_b32 %s, 0x8000, %s" % (v(vWDA), v(vWDA)))
                if j == 7: out.append(mfma(vD + 16 * t, vWF + 4 * t, vH + 4 * hset, vD + 16 * t))
    return out

def kv_reads(off):
    r = [rd128(vKF, vKVA, off), rd128(vKF + 4, vKVA, off + 2048), "s_mov_b64 exec, %s" % sp(sVM)]
    for t in range(2):
        r += [rd128(vV + 8 * t, vKVA, off + 2048 * t + 1024), rd128(vV + 8 * t + 4, vKVA, off + 2048 * t + 1280)]
    r.append("s_mov_b64 exec, -1")
    return r
def wd_reads(dst, addr, off):
    r = []
    for c in range(2):
        r += [rdtr(dst + 4 * c, addr, off + 512 * c), rdtr(dst + 4 * c + 2, addr, off + 512 * c + 1024)]
    return r

def wdrow(sg): return (32 * (sg >> 1) + 8 * (sg & 1)) * 1024

def attention(a, role, pre0=None):
    A = role == "A"
    def kvdma(u):
        a.vmop("s_add_u32 m0, s%d, 0x%x\ns_add_u32 s%d, s%d, 0x%x\nbuffer_load_dwordx4 %s, %s, s%d offen sc1 lds"
               % (sWK, L_KV + (u % 4) * 8192, sA, sWK, u * 8192, v(vL16), srd(SKV), sA), "kv%d" % u)
    def wddma(sg):
        a.vmop("s_add_u32 m0, s%d, 0x%x\ns_add_u32 s%d, s%d, 0x%x\nbuffer_load_dwordx4 %s, %s, s%d offen lds"
               % (sWK, L_WD + ((sg + 3) % 8) * 8192, sA, sWDOFF, wdrow(sg), v(vWDV), srd(SWD), sA), "wd%d" % sg)
    def wodma(j):
        a.vmop("s_add_u32 m0, s%d, 0x%x\ns_add_u32 s%d, s%d, 0x%x\nbuffer_load_dwordx4 %s, %s, s%d offen lds"
               % (sWK, L_WO + j * 8192, sA, sB, j * 16384, v(vWDV), srd(SWO), sA), "wo")
    def hload(sg, dst):
        a.vmop("s_add_u32 s%d, s%d, 0x%x\nbuffer_load_dwordx4 %s, %s, %s, s%d offen sc1"
               % (sA, sHOFF, sg * 1024, v(dst, 4), v(vL16), srd(SWS), sA), "h%d" % sg)
    for n in range(11):
        if not A and n == 0: a.e("s_barrier")
        if n % 2 == 1: astamp(a, 2 + n // 2)
        tags = []
        if A and n % 2 == 1: tags.append("kv%d" % ((n + 1) // 2))
        if not A and n % 2 == 0: tags.append("kv%d" % ((n + 2) // 2))
        if n == (3 if A else 2): tags.append("hst")
        if n == 10: tags.append("wd0")
        if n == 8 and A:
            a.e("s_cmp_lg_u32 s%d, 0" % sW)
            a.e("s_cbranch_scc1 L_hf_done")
            a.e("s_mov_b32 s%d, 0x4000" % sB)
            a.e("s_waitcnt vmcnt(2)")
            a.lab("L_hf_chk")
            a.e("v_cmp_ne_u32 vcc, 1, %s" % v(vPOLL))
            a.e("s_cbranch_vccz L_hf_done")
            a.e("s_sleep 2")
            a.e("buffer_load_dword %s, %s, %s, 0 offen sc1" % (v(vPOLL), v(vFLA), srd(SWS)))
            a.e("s_sub_u32 s%d, s%d, 1" % (sB, sB))
            a.e("s_cmp_lg_u32 s%d, 0" % sB)
            a.e("s_waitcnt vmcnt(0)")
            a.e("s_cbranch_scc1 L_hf_chk")
            a.lab("L_hf_done")
        a.waitvm(tags)
        if n == 3 and not A:
            a.e("s_cmp_ge_u32 s%d, 14" % sM)
            a.e("s_cbranch_scc1 L_nohf")
            a.e("s_cmp_lg_u32 s%d, 4" % sW)
            a.e("s_cbranch_scc1 L_nohf")
            a.e("s_lshl_b32 s%d, s%d, 4" % (sA, sG))
            a.e("s_add_u32 s%d, s%d, s%d" % (sA, sA, sM))
            a.e("s_lshl_b32 s%d, s%d, 7" % (sA, sA))
            a.e("s_add_u32 s%d, s%d, 0x%x" % (sA, sA, WS_HFLAG))
            a.e("s_mov_b64 exec, 1")
            a.e("buffer_store_dword %s, off, %s, s%d sc1" % (v(vONE), srd(SWS), sA))
            a.e("s_mov_b64 exec, -1")
            a.lab("L_nohf")
        for r in kv_reads((n % 8) * 4096): a.e(r)
        if n == 7 and A:
            a.e("s_cmp_lg_u32 s%d, 0" % sW)
            a.e("s_cbranch_scc1 L_hf_nol")
            a.e("buffer_load_dword %s, %s, %s, 0 offen sc1" % (v(vPOLL), v(vFLA), srd(SWS)))
            a.lab("L_hf_nol")
        if n == 0:
            kvdma(2); kvdma(3)
            a.e("s_mov_b32 s%d, s%d" % (sC, sKQ))
            a.e("s_mul_i32 s%d, s%d, %d" % (sWDOFF, sC, 448 * 1024))
            a.e("s_and_b32 s%d, s%d, 1" % (sB, sW))
            a.e("s_lshl_b32 s%d, s%d, 14" % (sA, sB))
            a.e("s_add_u32 s%d, s%d, s%d" % (sWDOFF, sWDOFF, sA))
            a.e("s_lshl_b32 s%d, s%d, 1" % (sA, sT))
            a.e("s_add_u32 s%d, s%d, s%d" % (sA, sA, sB))
            a.e("s_mul_i32 s%d, s%d, 112" % (sA, sA))
            a.e("s_mul_i32 s%d, s%d, 28" % (sB, sC))
            a.e("s_add_u32 s%d, s%d, s%d" % (sA, sA, sB))
            a.e("s_lshl_b32 s%d, s%d, 10" % (sA, sA))
            a.e("s_add_u32 s%d, s%d, 0x%x" % (sHOFF, sA, WS_HF))
        if (A and n % 2 == 1 and n >= 3): kvdma((n + 5) // 2)
        if (not A and n % 2 == 0 and n >= 2): kvdma((n + 6) // 2)
        if 1 <= n <= 3:
            a.e("s_lshl_b32 s%d, s%d, 17" % (sB, sKQ))
            a.e("s_and_b32 s%d, s%d, 1" % (sC, sW))
            a.e("s_lshl_b32 s%d, s%d, 13" % (sC, sC))
            a.e("s_add_u32 s%d, s%d, s%d" % (sB, sB, sC))
            for j in {1: (0, 1, 2), 2: (3, 4, 5), 3: (6, 7)}[n]: wodma(j)
        if n >= 4: wddma(n - 4)
        if n == 9:
            hload(0, vH + 12); hload(1, vH + 0); hload(24, vH + 16); hload(25, vH + 20)
        if n == 10:
            hload(26, vH + 24); hload(27, vH + 28); hload(2, vH + 4)
        if n == 0 and pre0:
            pre0()
            a.stamp(5)
        a.e("s_waitcnt lgkmcnt(0)")
        a.e("s_call_b64 %s, L_Y%s" % (sp(sRET), role))
        if n == 0:
            a.e("s_branch L_X1%s" % role)
            a.lab("L_Y%s" % role)
            if A: a.e("s_barrier")
            for x in Yseg(None): a.e(x)
            if not A: a.e("s_barrier")
            a.e("s_setpc_b64 %s" % sp(sRET))
            a.lab("L_X1%s" % role)
    astamp(a, 7)
    a.e("s_add_u32 s%d, s%d, 0x%x" % (sHOFF, sHOFF, 3 * 1024))
    a.e("s_add_u32 s%d, s%d, 0x%x" % (sWDOFF, sWDOFF, wdrow(7)))
    a.e("s_mov_b32 s%d, 0x%x" % (sM0WD, ((7 + 3) % 8) * 8192))
    u0 = 8 if A else 9
    a.e("s_add_u32 s%d, s%d, 0x%x" % (sKVOFF, sWK, u0 * 8192))
    a.e("s_mov_b32 s%d, 6" % sCNT)
    a.waitvm(["h0", "wd1", "kv6"] if A else ["h0", "wd1"])
    a.e("s_branch L_loop%s_in" % role)
    a.l.append(".p2align 6")
    a.lab("L_loop%s" % role)
    for p in range(4):
        if p == 0 and Opt.diag and Opt.kdiag == 2:
            a.e("s_cmp_lg_u32 s%d, 4" % sCNT)
            a.e("s_cbranch_scc1 L_nst%s" % role)
            astamp(a, 8)
            a.lab("L_nst%s" % role)
        a.e("s_waitcnt vmcnt(5)")
        if p == 3: a.lab("L_loop%s_in" % role)
        for r in kv_reads(p * 4096): a.e(r)
        for r in wd_reads(vWF, vWDA, p * 8192): a.e(r)
        a.e("buffer_load_dwordx4 %s, %s, %s, s%d offen sc1" % (v(vH + 4 * ((p + 3) % 4), 4), v(vL16), srd(SWS), sHOFF))
        a.e("s_add_u32 m0, s%d, s%d" % (sWK, sM0WD))
        a.e("s_add_u32 s%d, s%d, 0x400" % (sHOFF, sHOFF))
        a.e("buffer_load_dwordx4 %s, %s, s%d offen lds" % (v(vWDV), srd(SWD), sWDOFF))
        a.e("s_add_u32 s%d, s%d, 0x%x" % (sWDOFF, sWDOFF, 0x6000 if p & 1 else 0x2000))
        a.e("s_add_u32 s%d, s%d, 0x2000" % (sM0WD, sM0WD))
        a.e("s_and_b32 s%d, s%d, 0xffff" % (sM0WD, sM0WD))
        if (p % 2 == 1) == A:
            a.e("s_and_b32 s%d, s%d, 0x7fff" % (sA, sKVOFF))
            a.e("s_add_u32 m0, s%d, 0x%x" % (sA, L_KV))
            a.e("s_nop 0")
            a.e("buffer_load_dwordx4 %s, %s, s%d offen sc1 lds" % (v(vL16), srd(SKV), sKVOFF))
            a.e("s_add_u32 s%d, s%d, 0x2000" % (sKVOFF, sKVOFF))
        if p == 3:
            a.e("s_sub_u32 s%d, s%d, 1" % (sCNT, sCNT))
            a.e("s_cmp_lg_u32 s%d, 0" % sCNT)
        a.e("s_waitcnt lgkmcnt(0)")
        if A: a.e("s_barrier")
        for x in Yseg(p, toggle=(p == 3)): a.e(x)
        if not A:
            if p == 3: a.e("s_cbranch_scc0 L_tail")
            a.e("s_barrier")
    a.e(("s_cbranch_scc1 L_loop%s" if A else "s_branch L_loop%s") % role)

def transition(a, role):
    A = role == "A"
    if A:
        a.vm = []
        a.lab("L_trA")
    else:
        a.lab("L_join")
        a.e("s_cmp_eq_u32 s%d, 0" % sHI)
        a.e("s_cbranch_scc1 L_trA")
        a.vmjoin = list(a.vm)
    def qfin():
        for i in range(4): a.e("v_cvt_pk_bf16_f32 %s, %s, %s" % (v(vQ + i), v(vAQ + 2 * i), v(vAQ + 2 * i + 1)))
        for i in range(4, 7): a.e("v_mov_b32 %s, 0" % v(vP + i))
        a.e("v_permlane16_swap_b32 %s, %s" % (v(vQ), v(vQ + 2)))
        a.e("v_permlane16_swap_b32 %s, %s" % (v(vQ + 1), v(vQ + 3)))
    pre0 = None
    if A:
        a.e("s_setprio 1")
        a.e("s_cmp_ge_u32 s%d, 14" % sM)
        a.e("s_cbranch_scc1 L_nogA0")
        put(a, a.kvA[:1] + a.kvA[-1:])
        a.l.append(".p2align 3")
        for ti in range(Opt.gsc): gelu_tile(a, ti, True)
        a.lab("L_nogA0")
        qfin()
        a.waitvm(["k0", "kv0", "kv1"])
        a.e("s_setprio 0")
        a.e("s_barrier")
        a.e(mfma(vS, vK0, vQ, None))
        put(a, a.kvA[1:-1])
        def pre0():
            a.e("s_cmp_lt_u32 s%d, 14" % sM)
            a.e("s_cbranch_scc1 L_gA1")
            a.e("s_waitcnt vmcnt(0)")
            a.e("s_branch L_nogA1")
            a.l.append(".p2align 3")
            a.lab("L_gA1")
            for ti in range(Opt.gsc, 4): gelu_tile(a, ti)
            a.lab("L_nogA1")
            a.e("s_setprio 1")
    else:
        a.waitvm(["k0", "kv0", "kv1"])
        a.e("s_setprio 1")
        a.e("s_cmp_ge_u32 s%d, 14" % sM)
        a.l.append(".p2align 3")
        a.e("s_barrier")
        a.e("s_cbranch_scc1 L_nogB")
        for ti in range(4): gelu_tile(a, ti)
        a.lab("L_nogB")
        qfin()
        a.e("s_setprio 0")
        a.e("s_nop 0")
        a.e(mfma(vS, vK0, vQ, None))
        a.stamp(5)
    attention(a, role, pre0)
    if A: a.e("s_branch L_tail")

def tail(a):
    a.lab("L_tail")
    a.e("v_cvt_pk_bf16_f32 %s, %s, %s" % (v(vP + 7), v(vE + 2), v(vE + 3)))
    a.stamp(6)
    astamp(a, 9)
    if Opt.diag and Opt.kdiag == 2: a.e("s_waitcnt lgkmcnt(0)")
    a.e("s_setprio 0")
    a.e("s_mov_b32 s%d, 0x%x" % (sC, f2u(2.0 ** -16)))
    a.e(mfma(vO, vV1L, vP + 4, vO))
    a.e("s_mov_b32 s%d, 0x%x" % (sD, f2u(2.0 ** 100)))
    wf = [vFR, vFR + 8, vFR + 16]
    for i in range(2):
        for r in wd_reads(wf[i], vWDA, i * 8192): a.e(r)
    a.e("s_nop 2")
    t = vT0
    a.e("v_rcp_f32 %s, %s" % (v(t + 2), v(vO + 8)))
    a.e("v_pk_mul_f32 %s, %s, 0 op_sel_hi:[1,0]" % (v(t, 2), v(vO, 2)))
    for i in range(1, 4): a.e("v_pk_fma_f32 %s, %s, 0, %s op_sel_hi:[1,0,1]" % (v(t, 2), v(vO + 2 * i, 2), v(t, 2)))
    a.e("v_add_f32 %s, %s, %s" % (v(t), v(t), v(t + 1)))
    a.e("v_add_f32 %s, %s, %s" % (v(t), v(t), v(vO + 8)))
    a.e("v_cmp_nle_f32 vcc, s%d, %s" % (sC, v(t)))
    a.e("v_cmp_nge_f32 %s, s%d, %s" % (sp(sTMPP), sD, v(t)))
    a.e("s_or_b64 vcc, vcc, %s" % sp(sTMPP))
    a.e("s_branch L_fb" if Opt.force_fb else "s_cbranch_scc1 L_fb")
    a.lab("L_fbret")
    a.e("v_mul_f32 %s, %s, %s" % (v(t + 2), v(t + 2), v(vGP)))
    for i in range(4): a.e("v_pk_mul_f32 %s, %s, %s op_sel_hi:[1,0]" % (v(vO + 2 * i, 2), v(vO + 2 * i, 2), v(t + 2, 2)))
    for i in range(4): a.e("v_cvt_pk_bf16_f32 %s, %s, %s" % (v(vP + i), v(vO + 2 * i), v(vO + 2 * i + 1)))
    for i in range(4): a.e("v_min_u32 %s, -2, %s" % (v(vP + i), v(vP + i)))
    a.e("buffer_store_dwordx4 %s, %s, %s, s%d offen sc1" % (v(vP, 4), v(vL16), srd(SWS), sOST))
    HORD = [0, 2, 4, 6, 1, 3, 5, 7] if Opt.hord else list(range(8))
    def oload(j):
        return "buffer_load_dwordx4 %s, %s, %s, s%d offen offset:%d sc1" % (
            v(vS + 4 * j, 4), v(vL16), srd(SWS), sOLD if HORD[j] < 4 else sA, (HORD[j] % 4) * 1024)
    a.oload = oload
    aw = vXA
    ar = vWA
    def addrs(a):
        a.e("v_sub_f32 %s, 1.0, %s" % (v(vGC), v(vGC)))
        a.e("v_add_u32 %s, 0x%x, %s" % (v(vQA), L_WO, v(vWDA)))
        a.e("v_and_b32 v2, 31, v0")
        a.e("v_lshrrev_b32 v3, 5, v0")
        a.e("v_and_b32 v4, 7, v0")
        a.e("v_xor_b32 v3, v3, v4")
        a.e("v_lshlrev_b32 v3, 4, v3")
        a.e("v_lshl_add_u32 v3, v2, 8, v3")
        a.e("s_and_b32 s%d, s%d, 1" % (sB, sW))
        a.e("s_lshl_b32 s%d, s%d, 15" % (sB, sB))
        a.e("s_lshr_b32 s%d, s%d, 1" % (sC, sW))
        a.e("s_lshl_b32 s%d, s%d, 13" % (sD, sC))
        a.e("s_add_u32 s%d, s%d, s%d" % (sD, sD, sB))
        a.e("v_add_u32 %s, s%d, v3" % (v(aw), sD))
        for j in range(1, 4): a.e("v_xor_b32 %s, %d, %s" % (v(aw + j), 32 * j, v(aw)))
        a.e("v_lshrrev_b32 v2, 3, v0")
        a.e("v_lshlrev_b32 v3, 1, v4")
        a.e("v_xor_b32 v3, v3, v2")
        a.e("v_lshlrev_b32 v3, 4, v3")
        a.e("v_lshl_add_u32 v3, v2, 8, v3")
        a.e("s_lshl_b32 s%d, s%d, 11" % (sD, sC))
        a.e("s_add_u32 s%d, s%d, s%d" % (sD, sD, sB))
        a.e("v_add_u32 %s, s%d, v3" % (v(ar), sD))
        a.e("v_xor_b32 %s, 16, %s" % (v(ar + 1), v(ar)))
        a.e("v_lshlrev_b32 v4, 4, v4")
        a.e("v_lshl_add_u32 %s, v2, 10, v4" % v(ar + 2))
        a.e("s_lshl_b32 s%d, s%d, 13" % (sC, sC))
        a.e("s_add_u32 s%d, s%d, s%d" % (sB, sB, sC))
        a.e("s_lshl_b32 s%d, s%d, 16" % (sC, sT))
        a.e("s_add_u32 s%d, s%d, s%d" % (sB, sB, sC))
        a.e("s_lshl_b32 s%d, s%d, 7" % (sC, sCB))
        a.e("s_add_u32 s%d, s%d, s%d" % (sCNT, sB, sC))
        a.e("s_mov_b32 s%d, 0x2000" % sB)
    a.e("s_add_u32 s%d, s%d, 0x1000" % (sA, sOLD))
    ol = Asm(); a.ool2 = ol.l
    a.e("s_cmp_lg_u32 s%d, 0" % sHI)
    a.e("s_cbranch_scc1 L_tl1")
    for j in range(8): a.e(oload(j))
    a.e("s_waitcnt vmcnt(9)")
    a.e("s_branch L_tl2")
    a.lab("L_tl1")
    a.e("s_setprio 1")
    a.e("s_waitcnt vmcnt(1)")
    a.lab("L_tl2")
    a.e("s_barrier")
    hreg = {21: vH + 0, 22: vH + 4, 23: vH + 8, 24: vH + 16, 25: vH + 20, 26: vH + 24, 27: vH + 28}
    fl = collect(addrs)
    for i in range(7):
        if i + 2 < 7:
            for r in wd_reads(wf[(i + 2) % 3], vWDA, (i + 2) * 8192): a.e(r)
        else:
            for r in wd_reads(wf[(i + 2) % 3], vQA, HORD[i - 5] * 8192): a.e(r)
        a.e("s_waitcnt lgkmcnt(8)")
        for c in range(2):
            a.e(mfma(vD + 16 * c, wf[i % 3] + 4 * c, hreg[21 + i], vD + 16 * c))
            put(a, fl[:3]); fl = fl[3:]
    assert not fl
    a.e("s_cmp_lg_u32 s%d, 0" % sHI)
    a.e("s_cbranch_scc1 L_tl3")
    a.l.append(".p2align 3")
    a.e("s_nop 7")
    a.e("s_nop 0")
    for i in range(16): a.e("v_pk_mul_f32 %s, %s, %s op_sel:[0,1] op_sel_hi:[1,1]" % (v(vD + 2 * i, 2), v(vD + 2 * i, 2), v(vGP, 2)))
    if Opt.tbar == 0: a.e("s_barrier")
    a.lab("L_tl4")
    ol.lab("L_tl3")
    ol.e("s_setprio 0")
    for j in range(8):
        ol.e(oload(j))
        if j == 0: ol.e("s_nop 6")
        for i in range(4 * j, 4 * j + 4): ol.e("v_mul_f32 %s, %s, %s" % (v(vD + i), v(vGC), v(vD + i)))
    ol.e("s_barrier")
    ol.e("s_branch L_tl4")
    a.stamp(7)
    J1 = 8 - Opt.cskew
    wo = lambda j: wf[(j + 1) % 3] if j < J1 else vH + 8 * (j - J1)
    for j in range(8):
        o = vS + 4 * j
        if j + 2 < 8:
            for r in wd_reads(wo(j + 2), vQA, HORD[j + 2] * 8192): a.e(r)
        a.lab("L_ochk%d" % j)
        a.e("s_waitcnt vmcnt(%d)" % (7 - j))
        a.e("v_max3_u32 v2, %s, %s, %s" % (v(o), v(o + 1), v(o + 2)))
        a.e("v_max_u32 v2, v2, %s" % v(o + 3))
        a.e("v_cmp_eq_u32 vcc, -1, v2")
        a.e("s_cbranch_vccnz L_ore%d" % j)
        a.lab("L_ook%d" % j)
        a.e("s_waitcnt lgkmcnt(%d)" % (4 * min(2, 7 - j)))
        for c in range(2 if j < J1 else 1): a.e(mfma(vD + 16 * c, wo(j) + 4 * c, o, vD + 16 * c))
    wr = lambda c, j: "ds_write_b128 %s, %s offset:%d" % (v(aw + j), v(vD + 16 * c + 4 * j, 4), 128 * c)
    w0 = [wr(0, j) for j in range(4)]
    dist = 0
    for j in range(J1, 8):
        a.e(mfma(vD + 16, wo(j) + 4, vS + 4 * j, vD + 16)); dist += 1
        if dist < 12:
            a.e("s_nop 5"); dist += 6
        elif j < 7:
            a.e(w0.pop(0))
    a.stamp(8)
    if not Opt.cskew: a.e("s_nop 10")
    elif dist < 12: a.e("s_nop %d" % (11 - dist))
    n0 = len(w0)
    for x in w0: a.e(x)
    if Opt.cskew: a.e("s_nop %d" % (11 - n0))
    for j in range(4): a.e(wr(1, j))
    a.e("s_waitcnt lgkmcnt(0)")
    a.e("s_barrier")
    for p in range(4):
        for h in range(2): a.e(rd128(vS + 8 * p + 4 * h, ar + h, p * 8192))
    for p in range(1, 4):
        a.e("s_waitcnt lgkmcnt(%d)" % (6 - 2 * p))
        for i in range(4): a.e("v_pk_add_f32 %s, %s, %s" % (v(vS + 2 * i, 2), v(vS + 2 * i, 2), v(vS + 8 * p + 2 * i, 2)))
    for i in range(4): a.e("v_cvt_pk_bf16_f32 %s, %s, %s" % (v(vP + i), v(vS + 2 * i), v(vS + 2 * i + 1)))
    a.e("buffer_store_dwordx4 %s, %s, %s, s%d offen %s" % (v(vP, 4), v(ar + 2), srd(SOUT), sCNT, Opt.out_pol))
    if Opt.probe >= 0:
        a.e("s_waitcnt vmcnt(0)")
        a.stamp(9)
        if Opt.probe != 9:
            a.e("s_cmp_ge_u32 s%d, 14" % sM)
            a.e("s_cbranch_scc%d L_end" % (0 if Opt.probe_l else 1))
        a.e("s_sub_u32 s%d, s%d, s%d" % (sA, sSTAMP + 4, sSTAMP))
        a.e("s_mul_i32 s%d, s%d, %d" % (sA, sA, Opt.probe_mul - 1))
        a.e("s_min_u32 s%d, s%d, 100000" % (sA, sA))
        a.e("s_add_u32 s%d, s%d, 3800" % (sA, sA))
        if Opt.probe_w >= 0:
            a.e("s_cmp_lg_u32 s%d, %d" % (sHI, Opt.probe_w))
            a.e("s_cbranch_scc1 L_end")
        if Opt.probe_x >= 0:
            a.e("s_and_b32 s0, s2, 7")
            a.e("s_cmp_lg_u32 s0, %d" % Opt.probe_x)
            a.e("s_cbranch_scc1 L_end")
        a.lab("L_probe")
        a.e("s_memrealtime s[0:1]")
        a.e("s_waitcnt lgkmcnt(0)")
        a.e("s_sub_u32 s0, s0, s%d" % (sSTAMP + 4))
        a.e("s_cmp_lt_u32 s0, s%d" % sA)
        a.e("s_cbranch_scc1 L_probe")
    if Opt.pin == 9:
        a.e("s_waitcnt vmcnt(0)")
        a.stamp(9)
    if Opt.diag:
        a.e("s_waitcnt vmcnt(0)")
        a.stamp(9)
        a.e("s_mov_b32 s%d, s%d" % (sSTAMP + 3, sSTAMP))
        a.e("s_mov_b32 s%d, s%d" % (sSTAMP, sB))
        a.e("s_getreg_b32 s%d, hwreg(HW_REG_XCC_ID)" % (sSTAMP + 1))
        for i in range(20): a.e("v_mov_b32 %s, s%d" % (v(vS + i), sSTAMP + i))
        a.e("s_lshl_b32 s%d, s2, 3" % sA)
        a.e("s_add_u32 s%d, s%d, s%d" % (sA, sA, sW))
        a.e("s_lshl_b32 s%d, s%d, 7" % (sA, sA))
        a.e("s_add_u32 s%d, s%d, 0x%x" % (sA, sA, WS_STAMP))
        a.e("s_mov_b64 exec, 1")
        for i in range(5): a.e("buffer_store_dwordx4 %s, off, %s, s%d offset:%d" % (v(vS + 4 * i, 4), srd(SWS), sA, 16 * i))
    a.lab("L_end")
    a.e("s_endpgm")
    a.l += a.ool2
    for j in range(8):
        a.lab("L_ore%d" % j)
        a.e("s_sub_u32 s%d, s%d, 1" % (sB, sB))
        a.e("s_cbranch_scc1 L_ogive%d" % j)
        a.e("s_waitcnt vmcnt(0)")
        for i in range(j, 8): a.e(a.oload(i))
        a.e("s_branch L_ochk%d" % j)
        a.lab("L_ogive%d" % j)
        a.e("s_mov_b32 s%d, 0" % sB)
        a.e("s_branch L_ook%d" % j)

def fallback(a):
    a.lab("L_fb")
    m = vT0
    a.e("v_mov_b32 %s, 0xff800000" % v(m))
    a.e("s_mov_b32 s%d, 0" % sA)
    a.lab("L_fb1")
    a.e("buffer_load_dwordx4 %s, %s, %s, s%d offen sc1" % (v(vKF, 4), v(vL16), srd(SKV), sA))
    a.e("s_waitcnt vmcnt(0)")
    a.e(mfma(vS, vKF, vQ, None))
    a.e("s_add_u32 s%d, s%d, 2048" % (sA, sA))
    a.e("s_nop 11")
    for i in range(8): a.e("v_max3_f32 %s, %s, %s, %s" % (v(m), v(m), v(vS + 2 * i), v(vS + 2 * i + 1)))
    a.e("s_cmp_lt_u32 s%d, 0x20000" % sA)
    a.e("s_cbranch_scc1 L_fb1")
    a.e("v_mov_b32 %s, %s" % (v(m + 1), v(m)))
    a.e("s_nop 1")
    a.e("v_permlane32_swap_b32 %s, %s" % (v(m), v(m + 1)))
    a.e("s_nop 1")
    a.e("v_max_f32 %s, %s, %s" % (v(m), v(m), v(m + 1)))
    for i in range(16): a.e("v_sub_f32 %s, 0, %s" % (v(vS + 16 + i), v(m)))
    for i in range(16): a.e("v_mov_b32 %s, 0" % v(vO + i))
    a.e("s_mov_b32 s%d, 0" % sA)
    a.lab("L_fb2")
    a.e("s_add_u32 s%d, s%d, 0x%x" % (sB, sA, 63 * 2048))
    a.e("s_and_b32 s%d, s%d, 0x1ffff" % (sB, sB))
    a.e("buffer_load_dwordx4 %s, %s, %s, s%d offen sc1" % (v(vKF, 4), v(vL16), srd(SKV), sB))
    a.e("s_add_u32 s%d, s%d, 2048" % (sB, sA))
    a.e("s_and_b32 s%d, s%d, 0x1ffff" % (sB, sB))
    a.e("s_mov_b64 exec, %s" % sp(sVM))
    a.e("buffer_load_dwordx4 %s, %s, %s, s%d offen offset:1024 sc1" % (v(vV, 4), v(vL16), srd(SKV), sA))
    a.e("buffer_load_dwordx4 %s, %s, %s, s%d offen offset:1280 sc1" % (v(vV + 4, 4), v(vL16), srd(SKV), sB))
    a.e("s_mov_b64 exec, -1")
    a.e("s_waitcnt vmcnt(0)")
    a.e(mfma(vS, vKF, vQ, vS + 16))
    a.e("s_add_u32 s%d, s%d, 2048" % (sA, sA))
    a.e("s_nop 11")
    for i in range(16): a.e("v_exp_f32 %s, %s" % (v(vS + i), v(vS + i)))
    for i in range(8): a.e("v_cvt_pk_bf16_f32 %s, %s, %s" % (v(vP + i), v(vS + 2 * i), v(vS + 2 * i + 1)))
    a.e("s_nop 1")
    a.e(mfma(vO, vV, vP, vO))
    a.e(mfma(vO, vV + 4, vP + 4, vO))
    a.e("s_cmp_lt_u32 s%d, 0x20000" % sA)
    a.e("s_cbranch_scc1 L_fb2")
    a.e("s_nop 11")
    a.e("v_rcp_f32 %s, %s" % (v(vT0 + 2), v(vO + 8)))
    a.e("s_branch L_fbret")

def build():
    a = Asm()
    prologue(a)
    phase1_F(a)
    transition(a, "B")
    tail(a)
    a.l += a.ool
    transition(a, "A")
    phase1_L(a)
    fallback(a)
    a.lab("L_codeend")
    il = a.l.index("L_light:")
    for i, x in enumerate(a.l):
        if x.endswith(" lds") and "sc1" not in x and " nt" not in x:
            if (Opt.ntx & 4 and (srd(SWD) in x or srd(SWO) in x)) or (Opt.ntx & 8 and i > il):
                a.l[i] = x[:-4] + " nt lds"
    head = open("cdna_kernels/%s.s.ref" % NAME).read().split("\n")
    hdr = [l for l in head if l.startswith(";") and "@launch" not in l and "Override" not in l and "grid=" not in l]
    out = hdr + ["; @launch grid=(256,1,1) block=(512,1,1) lds=%d" % LDS_BYTES,
                 '.amdgcn_target "amdgcn-amd-amdhsa--gfx950"', ".text", ".globl %s_kernel" % NAME, ".p2align 8",
                 ".type %s_kernel,@function" % NAME,
                 ".set CODE_PF_MAX, L_codeend - L_nopf - 4" if Opt.code_pf else "",
                 "%s_kernel:" % NAME]
    out += ["; mapmode %d" % Opt.mapmode, "; xrot %d" % Opt.xrot]
    out += a.l
    out += ['.section .rodata,"a"', ".p2align 6", ".amdhsa_kernel %s_kernel" % NAME,
            "  .amdhsa_next_free_vgpr %d" % NV, "  .amdhsa_next_free_sgpr 102", "  .amdhsa_accum_offset 256",
            "  .amdhsa_group_segment_fixed_size 0", "  .amdhsa_kernarg_size 104", "  .amdhsa_user_sgpr_count 2",
            "  .amdhsa_user_sgpr_kernarg_segment_ptr 1", "  .amdhsa_system_sgpr_workgroup_id_x 1", ".end_amdhsa_kernel", ""]
    return "\n".join(out)

if __name__ == "__main__":
    path = sys.argv[1]
    for kv in sys.argv[2:]:
        k, val = kv.split("=")
        cur = getattr(Opt, k)
        setattr(Opt, k, val if isinstance(cur, str) else type(cur)(int(val)))
    open(path, "w").write(build())
```

```python
import sys, struct, math

NAME = "gated_mix__grouped_kv_mqa__geglu_ffn__prompt"

class Opt:
    diag = 0
    mapmode = 1
    force_fb = False
    out_pol = ""
    code_pf = True
    xrot = 0
    pregap = 0
    tpos = 1
    cskew = 0
    tch = 12
    stch = 0
    spos = 1
    tlb = 14
    olate = 1
    hrot = 0
    tbar = 0
    hord = 1
    cmap = 1
    kqx = 0
    oearly = 8
    conc = 1
    ghx = 1
    qa = "088888"
    qb = "577777"
    npre = 8
    stagger = 1
    rper = 2
    dma1 = 17
    kprio = 0
    dma0 = 8
    npd = 4
    kdiag = 0
    fillpre = 0
    fillper = 4
    gsc = 2
    sched = 0
    xmask = 1
    ntx = 0
    touch = 2
    rotg = 0
    rotm = 0
    startbar = 1
    pvz = 1
    pin = -1
    pin_ns = 60000
    probe = -1
    probe_x = -1
    probe_mul = 10
    probe_w = -1
    probe_l = 0

def f2u(x): return struct.unpack("<I", struct.pack("<f", x))[0]

WS_KV = 0
WS_G = 128 * 1024
WS_HFLAG = 192 * 1024
WS_OF = 1 << 20
WS_HF = 4 << 20
WS_STAMP = 12 << 20
WS_SIZE = 16 << 20
K1 = 1024
L_G, L_U, L_X, L_WQ = 0, 48 * K1, 96 * K1, 144 * K1
L_QX = 32 * K1
L_WD, L_WO, L_KV = 0, 64 * K1, 128 * K1
LL_X, LL_W, LL_GATE, LL_WQ = 0, 128 * K1, 144 * K1, 128 * K1
LDS_BYTES = 160 * K1

SX, SWG, SWU, SWQ, SWS, SWD, SWO, SOUT, SDBG, SWKV, SGATE, SKV = 4, 8, 12, 16, 20, 24, 28, 32, 36, 40, 44, 64
SWV = 72
sTMPP = 48
sW, sHI, sLO, sG, sM, sT, sCB = 50, 51, 52, 53, 54, 55, 56
sWK = 57
sWH = 58
sK64 = 59
sVM = 60
sRET = 62
sA, sB, sC, sD = 68, 69, 70, 71
sOFFW, sOFFQ, sCH, sXP = 72, 73, 74, 75
sHOFF, sWDOFF, sKVOFF, sM0WD, sM0KV, sCNT = 72, 73, 74, 75, 76, 77
sOST, sOLD, sHST = 78, 79, 80
sHST2 = 3
sRX, sRW, sM0B = 40, 41, 42
sKQ = 76
sHP = sM
sFREE = 81
sSTAMP = 82

def srd(b): return "s[%d:%d]" % (b, b + 3)
def sp(b): return "s[%d:%d]" % (b, b + 1)
def v(b, n=1): return "v%d" % b if n == 1 else "v[%d:%d]" % (b, b + n - 1)

vL16 = 1
vT0, vT1, vT2, vT3 = 2, 3, 4, 5
vGP, vGC = 6, 7
vKVA = 8
vWDA = 9
vWDV = 10
vONE = 11
vZERO = 12
vFLA = 13
vPOLL = 14
vGA = 15
vQ = 16
vK0 = 20
vV1L = 24
vE = 28
vP = 32
vV = 40
vO = 56
vD = 72
vACC = 104
vS = 104
vH = 136
vAQ = vP
vF1 = 168
vKF = 168
vWF = 176
vFR = 184
vLX = 224
vXA = 240
vWA = 244
vQA = 248
vDX, vDG, vDQ = 249, 250, 251
vC0 = 252
vTID = 255
vHA = 254
NV = 256

class Asm:
    def __init__(self):
        self.l = []
        self.vm = []
        self.nstamp = 0
    def e(self, s):
        for x in s.split("\n"):
            x = x.strip()
            if x: self.l.append("    " + x)
    def lab(self, s): self.l.append(s + ":")
    def vmop(self, s, tag):
        self.e(s); self.vm.append(tag)
    def vmn(self, tags):
        if isinstance(tags, str): tags = [tags]
        last = -1
        for i, t in enumerate(self.vm):
            if t in tags: last = i
        return None if last < 0 else len(self.vm) - 1 - last
    def waitvm(self, tags, lgkm=False):
        n = self.vmn(tags)
        if n is None:
            if lgkm: self.e("s_waitcnt lgkmcnt(0)")
            return
        assert n < 64
        self.e("s_waitcnt vmcnt(%d)%s" % (n, " lgkmcnt(0)" if lgkm else ""))
        self.vm = self.vm[len(self.vm) - n:] if n else []
    def wait0(self, lgkm=False):
        self.e("s_waitcnt vmcnt(0)%s" % (" lgkmcnt(0)" if lgkm else "")); self.vm = []
    def stamp(self, i, real=False):
        if Opt.probe == i:
            self.e("s_waitcnt lgkmcnt(0)")
            self.e("s_memrealtime %s" % sp(sSTAMP + 4))
            self.e("s_waitcnt lgkmcnt(0)")
        if Opt.pin == i:
            self.nstamp += 1
            self.e("s_waitcnt lgkmcnt(0)")
            self.e("s_cselect_b32 s%d, 1, 0" % (sSTAMP + 5))
            self.lab("L_pin%d" % self.nstamp)
            self.e("s_memrealtime s[0:1]")
            self.e("s_waitcnt lgkmcnt(0)")
            self.e("s_sub_u32 s0, s0, s%d" % sSTAMP)
            self.e("s_cmp_lt_u32 s0, %d" % (Opt.pin_ns // 10))
            self.e("s_cbranch_scc1 L_pin%d" % self.nstamp)
            self.e("s_cmp_lg_u32 s%d, 0" % (sSTAMP + 5))
        if Opt.diag and not Opt.kdiag and (Opt.diag == 1 or i == 9):
            self.e("s_waitcnt lgkmcnt(0)")
            self.e("s_memtime %s" % sp(sSTAMP + 2 * i))
            self.e("s_memrealtime %s" % sp(sRET))
            self.e("s_waitcnt lgkmcnt(0)")
            self.e("s_mov_b32 s%d, s%d" % (sSTAMP + 2 * i + 1, sRET))

def astamp(a, i):
    if Opt.diag and Opt.kdiag == 2: a.e("s_memtime %s" % sp(sSTAMP + 2 * i))

def kstamp(a, i):
    if Opt.probe == 18 + i: a.e("s_memrealtime %s" % sp(sSTAMP + 4))
    if Opt.diag and Opt.kdiag == 1: a.e("s_memtime %s" % sp(sSTAMP + 2 * i))

def mfma(d, a, b, c):
    return "v_mfma_f32_32x32x16_bf16 %s, %s, %s, %s" % (v(d, 16), v(a, 4), v(b, 4), "0" if c is None else v(c, 16))
def mfma16(d, a, b, c):
    return "v_mfma_f32_16x16x32_bf16 %s, %s, %s, %s" % (v(d, 4), v(a, 4), v(b, 4), "0" if c is None else v(c, 4))
def rd128(d, a, off):
    assert 0 <= off < 65536
    return "ds_read_b128 %s, %s offset:%d" % (v(d, 4), v(a), off)
def rdtr(d, a, off):
    assert 0 <= off < 65536
    return "ds_read_b64_tr_b16 %s, %s offset:%d" % (v(d, 2), v(a), off)

def interleave(mf, fill, per=2):
    out = []
    fill = list(fill)
    for i, m in enumerate(mf):
        out.append(m)
        if i < len(mf) - 1:
            out += fill[:per]; fill = fill[per:]
    return out + fill

def srd_words(a, regs):
    sizes = {SX: 2048 * 1024, SWG: 512 * 3584, SWU: 512 * 3584, SWQ: 512 * 1024, SWS: WS_SIZE, SWKV: 16384, SWV: 16384,
             SGATE: 1024, SWD: 1792 * 1024, SWO: 512 * 1024, SOUT: 2048 * 1024, SDBG: 256, SKV: 128 * 1024}
    for reg in regs:
        a.e("s_mov_b32 s%d, 0x%x" % (reg + 2, sizes[reg]))
        a.e("s_mov_b32 s%d, 0x20000" % (reg + 3))

def ptr_loads(a, lst):
    for reg, off in lst: a.e("s_load_dwordx2 %s, s[0:1], %d" % (sp(reg), off))

def prologue(a):
    if Opt.diag or Opt.pin >= 0 or Opt.probe >= 0:
        a.e("s_memrealtime %s" % sp(sSTAMP))
        if Opt.diag: a.e("s_memtime %s" % sp(sSTAMP + 2))
    ptr_loads(a, ((SX, 0), (SWG, 48), (SWU, 56), (SWQ, 8)))
    a.e("s_load_dwordx8 s[%d:%d], s[0:1], 64" % (SOUT, SOUT + 7))
    if not (Opt.diag or Opt.probe >= 0): ptr_loads(a, ((SWS, 96), (SWO, 32)))
    if Opt.probe == 1: a.stamp(1)
    a.e("v_lshrrev_b32 v2, 6, v0")
    if Opt.code_pf:
        a.e("s_getpc_b64 %s" % sp(sRET))
        a.lab("L_nopf")
        a.e("s_and_b32 s%d, s2, -8" % sA)
        a.e("v_add_lshl_u32 v3, v2, s%d, 7" % sA)
        a.e("v_readfirstlane_b32 s%d, v2" % sW)
        a.e("v_min_u32 v3, CODE_PF_MAX, v3")
        a.e("global_load_dword %s, v3, %s" % (v(vPOLL), sp(sRET)))
    else:
        a.e("s_nop 0")
        a.e("v_readfirstlane_b32 s%d, v2" % sW)
    if Opt.diag or Opt.probe >= 0:
        a.e("s_load_dwordx2 %s, s[0:1], 96" % sp(SWS))
    a.e("s_cmpk_ge_u32 s2, 256")
    a.e("s_cbranch_scc1 L_end")
    a.e("s_and_b32 s%d, s2, 1" % sD)
    a.e("s_bfe_u32 s%d, s2, 0x30003" % sA)
    a.e("s_lshl3_add_u32 s%d, s%d, s%d" % (sG, sD, sA))
    a.e("s_bfe_u32 s%d, s2, 0x20001" % sA)
    a.e("s_lshr_b32 s%d, s2, 6" % sB)
    a.e("s_lshl2_add_u32 s%d, s%d, s%d" % (sM, sA, sB))
    a.e("s_lshl_b32 s%d, s%d, 10" % (sWK, sW))
    a.e("s_cmp_ge_u32 s%d, 14" % sM)
    a.e("s_cbranch_scc1 L_light")

def xvoff(a, t):
    a.e("v_lshrrev_b32 v2, 4, %s" % v(t))
    a.e("v_xor_b32 v2, v2, %s" % v(t))
    a.e("v_and_b32 v2, 7, v2")
    a.e("s_lshl_b32 s%d, s%d, 17" % (sA, sG))
    a.e("v_lshl_add_u32 v2, v2, 4, s%d" % sA)
    a.e("v_lshrrev_b32 v3, 3, %s" % v(t))
    a.e("v_lshl_add_u32 %s, v3, 10, v2" % v(vDX))

def setup_ids(a):
    a.e("s_mov_b64 %s, %s" % (sp(SKV), sp(SWS)))
    a.e("s_mov_b64 %s, %s" % (sp(SWD), sp(SOUT)))
    a.e("s_mov_b64 %s, %s" % (sp(SOUT), sp(SOUT + 4)))
    a.e("s_mov_b64 %s, %s" % (sp(SDBG), sp(SOUT + 6)))
    a.e("v_and_b32 v0, 63, v0")
    a.e("v_lshlrev_b32 %s, 4, v0" % v(vL16))
    a.e("s_andn2_b32 s%d, 1, s2" % sA)
    a.e("s_bfe_u32 s%d, s2, 0x20001" % sB)
    a.e("s_lshl2_add_u32 s%d, s%d, s%d" % (sA, sA, sB))
    a.e("s_bfe_u32 s%d, s2, 0x20003" % sB)
    a.e("s_lshl2_add_u32 s%d, s%d, s%d" % (sT, sA, sB))
    a.e("s_lshr_b32 s%d, s2, 5" % sCB)

def setup_rd(a):
    a.e("s_lshr_b32 s%d, s%d, 2" % (sHI, sW))
    a.e("s_and_b32 s%d, s%d, 3" % (sLO, sW))
    a.e("v_and_b32 v2, 15, v0")
    a.e("v_lshrrev_b32 v3, 4, v0")
    a.e("v_bfe_u32 v4, v0, 1, 3")
    a.e("v_xor_b32 v4, v4, v3")
    a.e("v_lshlrev_b32 v4, 4, v4")
    a.e("v_lshl_add_u32 %s, v2, 7, v4" % v(vXA))
    a.e("v_bfe_u32 v2, v0, 2, 2")
    a.e("v_and_b32 v4, 3, v0")
    a.e("v_lshl_add_u32 %s, v3, 3, v2" % v(vQA))
    a.e("v_lshlrev_b32 %s, 6, %s" % (v(vQA), v(vQA)))
    a.e("v_xor_b32 v5, s%d, v3" % sHI)
    a.e("v_and_b32 v5, 1, v5")
    a.e("v_lshl_add_u32 %s, v5, 5, %s" % (v(vQA), v(vQA)))
    a.e("v_lshl_add_u32 %s, v4, 3, %s" % (v(vQA), v(vQA)))

def setup_oclr(a):
    srd_words(a, [SWS, SKV, SDBG])
    a.e("s_mov_b32 s%d, 0xffff" % sVM)
    a.e("s_mov_b32 s%d, 0xffff" % (sVM + 1))
    a.e("s_lshl_b32 s%d, s%d, 2" % (sA, sG))
    a.e("s_add_u32 s%d, s%d, s%d" % (sA, sA, sLO))
    a.e("s_lshl_b32 s%d, s%d, 5" % (sB, sA))
    a.e("s_lshl_b32 s%d, s%d, 1" % (sC, sHP))
    a.e("s_add_u32 s%d, s%d, s%d" % (sB, sB, sC))
    a.e("s_add_u32 s%d, s%d, s%d" % (sB, sB, sHI))
    a.e("s_lshl_b32 s%d, s%d, 10" % (sB, sB))
    a.e("s_add_u32 s%d, s%d, 0x%x" % (sOST, sB, WS_OF))
    for i in range(4): a.e("v_mov_b32 %s, -1" % v(vQ + i))
    a.vmop("buffer_store_dwordx4 %s, %s, %s, s%d offen sc1" % (v(vQ, 4), v(vL16), srd(SWS), sOST), "oclr")
    a.e("v_mov_b32 %s, 1" % v(vONE))
    a.e("v_mov_b32 %s, 0" % v(vZERO))
    a.e("v_and_b32 %s, 31, v0" % v(vGA))
    a.e("v_lshlrev_b32 %s, 2, %s" % (v(vGA), v(vGA)))

def collect(fn):
    t = Asm(); t.marks = {}
    def vmop(s_, tag):
        t.e(s_); t.marks[len(t.l) - 1] = tag
    t.vmop = vmop
    fn(t)
    return [(x, t.marks.get(i)) for i, x in enumerate(t.l)]
def put(a, items):
    for x, tag in items:
        if tag: a.vmop(x, tag)
        else: a.e(x)

def setup_attn(a):
    srd_words(a, [SWD, SWO, SOUT])
    a.e("s_lshl_b32 s%d, s%d, 2" % (sA, sG))
    a.e("s_add_u32 s%d, s%d, s%d" % (sA, sA, sLO))
    a.e("s_mul_i32 s%d, s%d, 112" % (sB, sA))
    a.e("s_lshl_b32 s%d, s%d, 3" % (sC, sM))
    a.e("s_add_u32 s%d, s%d, s%d" % (sB, sB, sC))
    a.e("s_lshl_b32 s%d, s%d, 2" % (sC, sHI))
    a.e("s_add_u32 s%d, s%d, s%d" % (sB, sB, sC))
    a.e("s_and_b32 s%d, s%d, 1" % (sC, sLO))
    a.e("s_lshl_b32 s%d, s%d, 1" % (sC, sC))
    a.e("s_add_u32 s%d, s%d, s%d" % (sB, sB, sC))
    a.e("s_lshl_b32 s%d, s%d, 10" % (sB, sB))
    a.e("s_add_u32 s%d, s%d, 0x%x" % (sHST, sB, WS_HF))
    a.e("s_mul_i32 s%d, s%d, %d" % (sC, sC, 112 * 1024))
    a.e("s_sub_u32 s%d, %d, s%d" % (sC, 112 * 1024, sC))
    a.e("s_add_u32 s%d, s%d, s%d" % (sHST2, sHST, sC))
    a.e("v_bfe_u32 v2, v0, 2, 2")
    a.e("v_lshrrev_b32 v3, 5, v0")
    a.e("v_lshl_add_u32 v2, v3, 2, v2")
    a.e("v_lshlrev_b32 v2, 6, v2")
    a.e("v_bfe_u32 v3, v0, 4, 1")
    a.e("v_lshl_add_u32 v2, v3, 5, v2")
    a.e("v_and_b32 v3, 3, v0")
    a.e("v_lshl_add_u32 v2, v3, 3, v2")
    a.e("s_lshr_b32 s%d, s%d, 1" % (sA, sW))
    a.e("s_lshl_b32 s%d, s%d, 11" % (sA, sA))
    a.e("v_add_u32 %s, s%d, v2" % (v(vWDA), sA))
    a.e("v_add_u32 %s, 0x%x, %s" % (v(vKVA), L_KV, v(vL16)))
    a.e("v_bfe_u32 v2, v0, 2, 3")
    a.e("v_lshlrev_b32 v2, 10, v2")
    a.e("v_lshrrev_b32 v3, 5, v0")
    a.e("v_lshl_add_u32 v2, v3, 6, v2")
    a.e("v_and_b32 v3, 3, v0")
    a.e("v_lshl_add_u32 v2, v3, 4, v2")
    a.e("s_lshl_b32 s%d, s%d, 7" % (sB, sCB))
    a.e("v_add_u32 %s, s%d, v2" % (v(vWDV), sB))
    a.e("v_min_u32 v2, 13, v0")
    a.e("v_lshlrev_b32 v2, 7, v2")
    a.e("s_lshr_b32 s%d, s%d, 1" % (sA, sT))
    a.e("s_lshl_b32 s%d, s%d, 11" % (sA, sA))
    a.e("s_add_u32 s%d, s%d, 0x%x" % (sA, sA, WS_HFLAG))
    a.e("v_add_u32 %s, s%d, v2" % (v(vFLA), sA))
    a.e("s_lshl_b32 s%d, s%d, 1" % (sA, sT))
    a.e("s_and_b32 s%d, s%d, 1" % (sB, sW))
    a.e("s_add_u32 s%d, s%d, s%d" % (sA, sA, sB))
    a.e("s_lshl_b32 s%d, s%d, 15" % (sB, sA))
    a.e("s_lshr_b32 s%d, s%d, 1" % (sKQ, sW))
    if Opt.kqx:
        a.e("s_lshl_b32 s%d, s%d, 1" % (sC, sCB))
        a.e("s_and_b32 s%d, s%d, 2" % (sC, sC))
        a.e("s_xor_b32 s%d, s%d, s%d" % (sKQ, sKQ, sC))
    a.e("s_lshl_b32 s%d, s%d, 13" % (sC, sKQ))
    a.e("s_add_u32 s%d, s%d, s%d" % (sB, sB, sC))
    a.e("s_add_u32 s%d, s%d, 0x%x" % (sOLD, sB, WS_OF))
    if Opt.pvz:
        a.e("s_mov_b32 s%d, 0x110000" % sA)
        a.e("s_mov_b32 s%d, 0x110000" % sB)
        a.e("v_mov_b32 v3, 0x3f803f80")
        a.e("v_cndmask_b32 v2, 0, v3, %s" % sp(sA))
    else:
        a.e("v_mov_b32 v2, 0x3f803f80")
    for i in range(16): a.e("v_mov_b32 %s, v2" % v(vV + i))
    for i in range(4): a.e("v_mov_b32 %s, v2" % v(vV1L + i))
    for i in range(4): a.e("v_mov_b32 %s, 0" % v(vE + i))
    a.e("v_lshrrev_b32 v2, 4, v0")
    a.e("v_lshl_add_u32 %s, v2, 8, %s" % (v(vHA), v(vL16)))
    for i in range(16): a.e("v_mov_b32 %s, 0" % v(vO + i))
    for i in range(32): a.e("v_mov_b32 %s, 0" % v(vD + i))
    c0 = -2.0 * math.sqrt(2.0 / math.pi) * math.log2(math.e)
    a.e("v_mov_b32 %s, 0x%x" % (v(vC0), f2u(c0)))
    a.e("v_mov_b32 %s, 0x%x" % (v(vC0 + 1), f2u(c0 * 0.044715)))

def kv_first_loads(a, quartet=False):
    it = []
    for o in (range(0, 16384, 4096) if quartet else range(0, 16384, 8192)):
        b = sWH if quartet else sWK
        it.append(("s_add_u32 m0, s%d, 0x%x\ns_add_u32 s%d, s%d, 0x%x\nbuffer_load_dwordx4 %s, %s, s%d offen sc1 lds"
                   % (b, L_KV + o, sA, b, o, v(vL16), srd(SKV), sA), "kv%d" % (o >> 13)))
    it.append(("s_mov_b32 s%d, 0x%x\nbuffer_load_dwordx4 %s, %s, %s, s%d offen sc1"
               % (sA, 63 * 2048, v(vK0, 4), v(vL16), srd(SKV), sA), "k0"))
    it.append(("s_mov_b64 exec, %s\nbuffer_load_dwordx4 %s, %s, %s, 0 offen offset:%d sc1\ns_mov_b64 exec, -1"
               % (sp(sVM), v(vV1L, 4), v(vL16), srd(SKV), 1024 + 256), "k0"))
    it.append(("s_lshl_b32 s%d, s%d, 2\ns_add_u32 s%d, s%d, s%d\ns_lshl_b32 s%d, s%d, 7\ns_add_u32 s%d, s%d, 0x%x\n"
               "buffer_load_dword %s, %s, %s, s%d offen sc1"
               % (sA, sG, sA, sA, sLO, sA, sA, sA, sA, WS_G, v(vGP), v(vGA), srd(SWS), sA), "k0"))
    it.append(("s_lshl_b32 s%d, s%d, 1\ns_and_b32 s%d, s%d, 1\ns_add_u32 s%d, s%d, s%d\ns_lshl_b32 s%d, s%d, 7\ns_add_u32 s%d, s%d, 0x%x\n"
               "buffer_load_dword %s, %s, %s, s%d offen sc1"
               % (sA, sT, sB, sW, sA, sA, sB, sA, sA, sA, sA, WS_G, v(vGC), v(vGA), srd(SWS), sA), "k0"))
    return it

def spin_counter(a, name, first_loaded, wave=0):
    a.e("s_cmp_lg_u32 s%d, %d" % (sW, wave))
    a.e("s_cbranch_scc1 L_%s_done" % name)
    a.e("s_mov_b32 s%d, 0x4000" % sB)
    if first_loaded: a.e("s_branch L_%s_chk" % name)
    a.lab("L_%s_re" % name)
    a.e("buffer_load_dword %s, off, %s, 0 sc1" % (v(vPOLL), srd(SDBG)))
    a.e("s_waitcnt vmcnt(0)")
    a.lab("L_%s_chk" % name)
    a.e("v_readfirstlane_b32 s%d, %s" % (sA, v(vPOLL)))
    a.e("s_cmp_ge_u32 s%d, 32" % sA)
    a.e("s_cbranch_scc1 L_%s_done" % name)
    a.e("s_sleep 4")
    a.e("s_sub_u32 s%d, s%d, 1" % (sB, sB))
    a.e("s_cmp_lg_u32 s%d, 0" % sB)
    a.e("s_cbranch_scc1 L_%s_re" % name)
    a.lab("L_%s_done" % name)

def phase1_F(a):
    SCHED = {1: ["01423567", "10253467", "23016457", "32104756"],
             2: ["02134657", "01324576", "10243567", "10235467"],
             3: ["01324657", "01243576", "12035467", "20134567"],
             5: ["01243567", "10325467", "23014657", "32104576"],
             6: ["01243567", "10325467", "01234657", "10324576"],
             4: ["02143657", "10325476", "02143657", "10325476"]}
    tabs = SCHED[Opt.sched] if Opt.sched else ["".join(str(c ^ (p & Opt.xmask)) for c in range(8)) for p in range(4)]
    for t_ in tabs: assert sorted(t_) == list("01234567")
    num = [int(t_[::-1], 16) for t_ in tabs]
    def table(a):
        a.e("s_add_u32 s%d, s%d, s%d" % (sA, sG, sHP))
        a.e("s_mov_b32 s%d, 0x%x" % (sXP, num[0]))
        a.e("s_mov_b32 s%d, 0x%x" % (sB, num[2]))
        a.e("s_bitcmp1_b32 s%d, 0" % sA)
        a.e("s_cselect_b32 s%d, 0x%x, s%d" % (sXP, num[1], sXP))
        a.e("s_cselect_b32 s%d, 0x%x, s%d" % (sB, num[3], sB))
        a.e("s_bitcmp1_b32 s%d, 1" % sA)
        a.e("s_cselect_b32 s%d, s%d, s%d" % (sXP, sB, sXP))
        if Opt.ghx:
            a.e("s_bitcmp1_b32 s%d, 3" % sG)
            a.e("s_cselect_b32 s%d, 0x44444444, 0" % sB)
            a.e("s_xor_b32 s%d, s%d, s%d" % (sXP, sXP, sB))
    fo, fw = {"0000": (0, 0), "0101": (0, 1), "0011": (1, 1), "0123": (0, 2)}["".join(t_[0] for t_ in tabs)]
    a.e("s_add_u32 s%d, s%d, s%d" % (sA, sG, sHP))
    a.e("s_bfe_u32 s%d, s%d, 0x%x" % (sCH, sA, fw << 16 | fo))
    if Opt.ghx: a.e("s_lshl2_add_u32 s%d, s%d, s%d" % (sCH, sD, sCH))
    a.e("s_and_b32 s%d, s%d, 0xc00" % (sWH, sWK))
    a.e("v_and_b32 %s, 0xff, v0" % v(vTID))

    def wvoff(a):
        a.e("v_lshrrev_b32 v2, 4, %s" % v(vTID))
        a.e("v_lshrrev_b32 v3, 5, %s" % v(vTID))
        a.e("v_bfi_b32 v3, 3, v2, v3")
        a.e("v_lshlrev_b32 v3, 1, v3")
        a.e("v_xor_b32 v3, v3, %s" % v(vTID))
        a.e("v_and_b32 v3, 15, v3")
        a.e("s_lshl_b32 s%d, s%d, 8" % (sA, sM))
        a.e("v_lshl_add_u32 v3, v3, 4, s%d" % sA)
        a.e("v_mul_u32_u24 v2, 3584, v2")
        a.e("v_add_u32 %s, v2, v3" % v(vDG))
    def qvoff(a):
        a.e("v_lshrrev_b32 v2, 4, %s" % v(vTID))
        a.e("v_and_b32 v2, 2, v2")
        a.e("v_xor_b32 v2, v2, %s" % v(vTID))
        a.e("v_and_b32 v2, 3, v2")
        a.e("s_lshl_b32 s%d, s%d, 6" % (sA, sHP))
        a.e("v_lshl_add_u32 v2, v2, 4, s%d" % sA)
        a.e("v_lshrrev_b32 v3, 2, %s" % v(vTID))
        a.e("v_lshl_add_u32 %s, v3, 10, v2" % v(vDQ))
    def stouch(a):
        if Opt.diag or Opt.probe >= 0: a.e("s_load_dwordx2 %s, s[0:1], 32" % sp(SWO))
        if not Opt.stch: return
        a.e("s_lshr_b32 s%d, s%d, 2" % (sA, sW))
        if Opt.ghx: a.e("s_lshl2_add_u32 s%d, s%d, s%d" % (sA, sD, sA))
        a.e("s_lshl_b32 s%d, s%d, 6" % (sA, sA))
        a.e("s_and_b32 s%d, s%d, 7" % (sB, sG))
        a.e("s_add_u32 s%d, s%d, s%d" % (sA, sA, sB))
        a.e("s_mul_i32 s%d, s%d, 28" % (sA, sA))
        a.e("s_bfe_u32 s%d, s%d, 0x10001" % (sB, sW))
        a.e("s_lshl1_add_u32 s%d, s%d, s%d" % (sB, sM, sB))
        a.e("s_add_u32 s%d, s%d, s%d" % (sA, sA, sB))
        a.e("s_lshl_b32 s%d, s%d, 7" % (sA, sA))
        a.e("s_bitcmp1_b32 s%d, 0" % sW)
        a.e("s_cselect_b64 %s, %s, %s" % (sp(SWKV), sp(SWU), sp(SWG)))
        a.e("s_add_u32 s%d, s%d, s%d" % (SWKV, SWKV, sA))
        a.e("s_addc_u32 s%d, s%d, 0" % (SWKV + 1, SWKV + 1))
        for i in range(Opt.stch):
            a.e("s_load_dwordx2 %s, %s, 0x%x" % (sp(sTMPP), sp(SWKV), 128 * 3584 + i * 8 * 3584 + 60))
    def wsrd(a):
        srd_words(a, [SWG])
        a.e("s_mov_b64 %s, %s" % (sp(SWU + 2), sp(SWG + 2)))

    if Opt.hrot:
        ORDER = [("q", 0)] + [(t_, 2 * h_ + j) for h_ in range(2) for t_, j in (("x", 0), ("x", 1), ("g", 0), ("u", 0), ("g", 1), ("u", 1))]
    else:
        ORDER = [("q", 0)] + [("x", j) for j in range(4)] + [(t_, j) for j in range(4) for t_ in "gu"]
    def block(items):
        out = []; lastc = None; lastw = None
        for c, kind, j in items:
            s = c % 3; pre = []
            if c != lastc:
                if c: pre.append("s_bfe_u32 s%d, s%d, 0x%x" % (sCH, sXP, 0x30000 + 4 * c))
                lastc = c; lastw = None
            fam = "w" if kind in "gu" else kind
            rot = Opt.hrot and fam != "q"
            if lastw is None or lastw[0] != fam or (rot and lastw[1] >> 1 != j >> 1):
                pre.append({"q": "s_lshl_b32 s%d, s%d, 16" % (sOFFW, sCH), "x": "s_lshl_b32 s%d, s%d, 7" % (sOFFW, sCH),
                            "w": "s_mul_i32 s%d, s%d, %d" % (sOFFW, sCH, 64 * 3584)}[fam])
                if rot: pre.append("s_%s_u32 s%d, s%d, s%d" % ("sub" if j >> 1 else "add", sOFFW, sOFFW, sRX if fam == "x" else sRW))
                lastw = (fam, 0)
            if lastw[1] != j:
                pre.append("s_add_u32 s%d, s%d, 0x%x" % (sOFFW, sOFFW, (j - lastw[1]) * (0x8000 if fam == "x" else 16 * 3584)))
                lastw = (fam, j)
            m0c, vo, rs = {"q": (L_WQ + s * 4096, vDQ, SWQ), "x": (L_X + s * 16384 + j * 4096, vDX, SX),
                           "g": (L_G + s * 16384 + j * 4096, vDG, SWG), "u": (L_U + s * 16384 + j * 4096, vDG, SWU)}[kind]
            nt = " nt" if Opt.ntx & (1 if rs == SX else 2) else ""
            out.append(("s_add_u32 m0, s%d, 0x%x\n%s\nbuffer_load_dwordx4 %s, %s, s%d offen%s lds"
                        % ((sM0B + (j >> 1)) if rot else sWH, m0c, "\n".join(pre) or "s_nop 0", v(vo), srd(rs), sOFFW, nt), "c%d" % c))
        return out
    def part(c, role): return [(c, k_, j) for k_, j in ORDER if (k_ in "gu") == (role == "A")]

    def rdsetup(a):
        setup_rd(a)
        a.e("v_lshl_add_u32 %s, v3, 3, v2" % v(vWA))
        a.e("v_lshlrev_b32 %s, 8, %s" % (v(vWA), v(vWA)))
        a.e("v_lshl_add_u32 %s, v4, 3, %s" % (v(vWA), v(vWA)))
        a.e("v_and_b32 v5, 1, v3")
        a.e("v_lshl_add_u32 v2, v5, 2, v2")
        a.e("s_lshl_b32 s%d, s%d, 2" % (sA, sHI))
        a.e("s_and_b32 s%d, s%d, 1" % (sB, sLO))
        a.e("s_lshl_b32 s%d, s%d, 1" % (sB, sB))
        a.e("s_add_u32 s%d, s%d, s%d" % (sA, sA, sB))
        a.e("v_xor_b32 v2, s%d, v2" % sA)
        a.e("v_lshl_add_u32 %s, v2, 5, %s" % (v(vWA), v(vWA)))
        a.e("v_xor_b32 %s, 32, %s" % (v(vWA + 1), v(vWA)))
        a.e("v_add_u32 %s, 0x%x, %s" % (v(vWA + 2), L_U - L_G, v(vWA)))
        a.e("v_add_u32 %s, 0x%x, %s" % (v(vWA + 3), L_U - L_G, v(vWA + 1)))
        a.e("s_lshl_b32 s%d, s%d, 12" % (sA, sLO))
        a.e("s_add_u32 s%d, s%d, 0x%x" % (sA, sA, L_X))
        a.e("v_add_u32 %s, s%d, %s" % (v(vXA), sA, v(vXA)))
        a.e("v_xor_b32 %s, 0x1000, %s" % (v(vXA + 1), v(vXA)))
        a.e("v_xor_b32 %s, 64, %s" % (v(vXA + 2), v(vXA)))
        a.e("v_xor_b32 %s, 64, %s" % (v(vXA + 3), v(vXA + 1)))
        a.e("v_add_u32 %s, 0x%x, %s" % (v(vQA), L_WQ, v(vQA)))

    a.e("s_cmp_ge_u32 s%d, 4" % sW)
    a.e("s_cbranch_scc1 L_setB")
    late = collect(setup_oclr) + collect(setup_attn)
    words = collect(lambda t: srd_words(t, [SWS, SKV, SDBG, SWD, SWO, SOUT]))
    late = [x for x in late if x not in words]
    oclr = [x for x in late if x[1] == "oclr"]
    if Opt.olate: late = [x for x in late if x[1] != "oclr"]
    else: oclr = []
    words += [("v_mov_b32 %s, 0" % v(r_), None) for r_ in (vGA, vWDV, vFLA, vHA)]
    st = collect(rdsetup) + words + late[:Opt.fillpre]
    fills = {"A": late[Opt.fillpre:], "B": late[Opt.fillpre:]}
    vms = {}
    wsrd(a); wvoff(a)
    a.e("s_waitcnt lgkmcnt(0)")
    a.stamp(2)
    if Opt.spos == 0: stouch(a)
    put(a, block(part(0, "A")))
    a.e("s_branch L_setA")
    vms["A"] = a.vm; a.vm = []
    a.lab("L_setB")
    srd_words(a, [SX]); xvoff(a, vTID)
    a.e("s_waitcnt lgkmcnt(0)")
    a.stamp(2)
    if Opt.spos == 0: stouch(a)
    put(a, block(part(0, "B")[1:]))
    srd_words(a, [SWQ]); qvoff(a)
    put(a, block(part(0, "B")[:1]))
    vms["B"] = a.vm
    for role in "BA":
        a.vm = vms[role]
        if role == "A": a.lab("L_setA")
        if Opt.spos == 1: stouch(a)
        table(a)
        setup_ids(a)
        if role == "A": srd_words(a, [SX, SWQ])
        else: wsrd(a)
        def touches():
            tm = sum(0xff << (8 * i) for i in range(4) if Opt.tch >> i & 1)
            setex = "s_bitcmp1_b32 s%d, 3\ns_cselect_b32 exec_lo, 0, 0x%x\ns_cselect_b32 exec_hi, 0x%x, 0" % (sG, tm, tm) if Opt.ghx \
                    else "s_mov_b32 exec_lo, 0x%x\ns_mov_b32 exec_hi, 0" % tm
            if Opt.tlb & 2 and role == "B":
                a.e("s_and_b32 s%d, s%d, 7" % (sA, sG))
                a.e("v_lshl_add_u32 v2, v0, 3, s%d" % sA)
                a.e("v_mul_u32_u24 v3, 3584, v2")
                a.e("s_and_b32 s%d, s%d, 1" % (sB, sW))
                a.e("s_lshl1_add_u32 s%d, s%d, s%d" % (sA, sM, sB))
                a.e("s_lshl_b32 s%d, s%d, 7" % (sA, sA))
                a.e(setex)
                a.e("s_cmp_ge_u32 s%d, 6" % sW)
                a.e("s_cbranch_scc1 L_tlbu")
                a.e("buffer_load_dword %s, v3, %s, s%d offen" % (v(vPOLL), srd(SWG), sA))
                a.e("s_branch L_tlbe")
                a.lab("L_tlbu")
                a.e("buffer_load_dword %s, v3, %s, s%d offen" % (v(vPOLL), srd(SWU), sA))
                a.lab("L_tlbe")
                a.e("s_mov_b64 exec, -1")
                a.vm.append("tlb")
            if Opt.tlb & 12 and role == "A":
                a.e("s_cmp_lg_u32 s%d, 0" % sW)
                a.e("s_cbranch_scc1 L_tlbx")
                a.e("s_and_b32 s%d, s%d, 7" % (sA, sG))
                a.e("v_lshl_add_u32 v2, v0, 3, s%d" % sA)
                a.e("v_lshlrev_b32 v3, 10, v2")
                a.e("s_lshl_b32 s%d, s%d, 6" % (sA, sHP))
                a.e(setex if Opt.tlb & 4 else "s_mov_b64 exec, 1")
                a.e("buffer_load_dword %s, v3, %s, s%d offen" % (v(vPOLL), srd(SWQ), sA))
                a.e("s_branch L_tlby")
                a.lab("L_tlbx")
                a.e("s_and_b32 s%d, s%d, 3" % (sA, sM))
                a.e("s_lshl2_add_u32 s%d, s%d, s%d" % (sA, sG, sA))
                a.e("s_lshl_b32 s%d, s%d, 15" % (sA, sA))
                a.e("v_lshl_add_u32 v3, v0, 10, s%d" % sA)
                a.e("s_lshr_b32 s%d, s%d, 3" % (sA, sG))
                a.e("s_lshl2_add_u32 s%d, s%d, s%d" % (sA, sA, sW) if Opt.ghx else "s_mov_b32 s%d, s%d" % (sA, sW))
                a.e("s_lshl_b32 s%d, s%d, 7" % (sA, sA))
                a.e("s_bitcmp1_b32 %d, s%d" % (Opt.tch if Opt.tlb & 8 else 0, sW))
                a.e("s_cselect_b32 exec_lo, -1, 1")
                a.e("s_mov_b32 exec_hi, 0")
                a.e("buffer_load_dword %s, v3, %s, s%d offen" % (v(vPOLL), srd(SX), sA))
                a.lab("L_tlby")
                a.e("s_mov_b64 exec, -1")
                a.vm.append("tlb")
        if Opt.tpos == 0: touches()
        if Opt.startbar: a.e("s_barrier")
        npre = min(Opt.npre, 8) if role == "A" else 5
        pn = block(part(1, role)[:npre])
        rest = st + (collect(qvoff) + collect(lambda t: xvoff(t, vTID)) if role == "A" else collect(wvoff))
        gap = len(rest) // (npre + Opt.pregap) + 1
        if Opt.tpos == 2:
            put(a, pn); touches(); npre = 0
        if Opt.tpos == 3 and role == "B":
            put(a, pn); touches(); npre = 0
        for i in range(npre):
            put(a, pn[:1]); pn = pn[1:]
            put(a, rest[:gap]); rest = rest[gap:]
        put(a, rest)
        if Opt.tpos == 1 or (Opt.tpos == 3 and role == "A"): touches()
        a.e("s_mov_b64 vcc, %d" % (-1 if role == "A" else 0))
        if role == "A":
            a.waitvm("c0", lgkm=True)
        else:
            a.e("s_setprio 1")
            a.waitvm("c0", lgkm=True)
            a.e("s_branch L_k0")
        vms[role] = a.vm
    stream = part(1, "A")[min(Opt.npre, 8):] + [(c, k_, j) for c in range(2, 8) for k_, j in ORDER]
    qa = [int(x, 16) for x in Opt.qa]; qb = [int(x, 16) for x in Opt.qb]
    def take(n, cmax):
        m = 0
        while m < n and m < len(stream) and stream[m][0] <= cmax: m += 1
        r_ = stream[:m]; del stream[:m]
        return block(r_)
    a.lab("L_k0")
    a.vm = vms["A"]
    ool = Asm()
    def dmablock(name, role, items, wait=None):
        a.e("s_cbranch_vcc%s L_%s" % ("nz" if role == "A" else "z", name))
        if wait: a.waitvm(wait, lgkm=True)
        a.lab("L_%s_r" % name)
        ool.lab("L_%s" % name)
        ool.vm = a.vm if role == "A" else vms["B"]
        for it_ in items:
            put(ool, [it_])
            put(ool, fills[role][:Opt.fillper]); fills[role] = fills[role][Opt.fillper:]
        if name in ("d7", "e7"): put(ool, fills[role]); fills[role] = []
        if wait: ool.waitvm(wait, lgkm=True)
        if role == "B": vms["B"] = ool.vm
        ool.e("s_branch L_%s_r" % name)
    a.ool = ool.l

    def fr(k):
        b = vF1 + 36 * (k % 2)
        return dict(x=b, w=b + 16, q=b + 32)
    def reads(k):
        c, s = divmod(k, 2); f = fr(k); sl = c % 3
        wo = sl * 16384 + s * 8192
        W = lambda i: [rdtr(f['w'] + 4 * i, vWA + i, wo), rdtr(f['w'] + 4 * i + 2, vWA + i, wo + 1024)]
        X = [rd128(f['x'] + 4 * b, vXA + 2 * s + (b >> 1), sl * 16384 + (b & 1) * 2048) for b in range(4)]
        return W(0) + X + W(2) + W(1) + W(3) + [rdtr(f['q'], vQA, sl * 4096 + s * 2048), rdtr(f['q'] + 2, vQA, sl * 4096 + s * 2048 + 256)]
    a.e("s_barrier")
    a.stamp(3)
    if Opt.kdiag or Opt.probe >= 18:
        kstamp(a, 2)
        a.e("s_waitcnt lgkmcnt(0)")
    for r in reads(0): a.e(r)
    if qa[0]: dmablock("d2", "A", take(qa[0], 2))
    for k in range(16):
        c, s = divmod(k, 2); f = fr(k)
        z = lambda x: None if k == 0 else x
        mf = []
        for n_, i in enumerate((0, 2, 1, 3)):
            for b in (range(4) if n_ % 2 == 0 else range(3, -1, -1)):
                d = vACC + 16 * b + 4 * i
                mf.append(mfma16(d, f['w'] + 4 * i, f['x'] + 4 * b, z(d)))
        for b in range(2): mf.append(mfma16(vAQ + 4 * b, f['q'], f['x'] + 4 * b, z(vAQ + 4 * b)))
        rds = reads(k + 1) if k < 15 else []
        if s == 0:
            a.e("s_waitcnt lgkmcnt(6)")
            for i, m in enumerate(mf):
                if i == 8: a.e("s_waitcnt lgkmcnt(8)")
                a.e(m)
                if i < len(rds): a.e(rds[i])
            continue
        a.e("s_waitcnt lgkmcnt(8)")
        for m in mf[:4]: a.e(m)
        if c <= 5:
            dmablock("e%d" % (c + 2), "B", take(qb[c], c + 2), "c%d" % (c + 1))
            assert not any(x[0] <= c + 1 for x in stream)
        if c == 7:
            a.e("s_waitcnt lgkmcnt(0)")
        elif c == 6:
            a.e("s_waitcnt lgkmcnt(0)")
            a.e("s_cbranch_vccz L_st7")
            a.e("s_setprio 1")
            a.e("s_waitcnt vmcnt(0)")
            a.e("s_barrier")
            a.lab("L_st7")
        else:
            a.e("s_barrier")
        if c < 7 and ((Opt.kdiag == 1 and Opt.diag) or Opt.probe == 21 + c):
            kstamp(a, 3 + c)
            a.e("s_waitcnt lgkmcnt(0)")
        if c + 3 < 8:
            items = take(qa[c + 1], c + 3)
            dmablock("d%d" % (c + 3), "A", items)
        for i, m in enumerate(mf[4:]):
            a.e(m)
            if i < len(rds): a.e(rds[i])
        if k == 11: assert not stream and not fills["A"] and not fills["B"]
        if k == 11:
            a.e("s_cbranch_vccnz L_st6")
            a.e("s_setprio 0")
            spin_counter(a, "kvf", False, 4)
            a.wait0()
            a.e("s_barrier")
            put(a, kv_first_loads(a, True) + oclr)
            a.lab("L_st6")
    a.kvA = (kv_first_loads(a) + oclr)[2:]
    a.stamp(4)

def phase1_L(a):
    a.lab("L_light")
    a.vm = []
    a.e("s_waitcnt lgkmcnt(0)")
    ptr_loads(a, ((SWKV, 16), (SWV, 24), (SGATE, 72), (SWO, 32)))
    srd_words(a, [SWKV, SWV, SGATE, SX])
    xvoff(a, 0)
    a.e("v_and_b32 v2, 63, v0")
    a.e("v_lshlrev_b32 %s, 4, v2" % v(vL16))
    a.e("s_sub_u32 s%d, s%d, 14" % (sCNT, sM))
    a.e("s_lshl_b32 s%d, s%d, 16" % (sOLD, sCNT))
    a.e("s_lshl_b32 s%d, s%d, 13" % (sHST, sCNT))
    a.e("s_add_u32 s%d, s%d, s%d" % (sWH, sHST, sWK))
    a.e("s_xor_b32 s%d, s%d, 0x2000" % (sHST, sHST))
    a.e("s_add_u32 s%d, s%d, 0x2000" % (sA, sWK))
    a.e("s_waitcnt lgkmcnt(0)")
    a.stamp(2)
    def xdma(c, base, so):
        a.vmop("s_add_u32 m0, s%d, 0x%x\ns_nop 0\nbuffer_load_dwordx4 %s, %s, s%d offen offset:%d lds"
               % (base, LL_X + c * 16384 - c * 128, v(vDX), srd(SX), so, c * 128), "c%d" % c)
    def wdma(u):
        for t, rs in enumerate((SWKV, SWV)):
            a.vmop("s_add_u32 m0, s%d, 0x%x\ns_nop 0\nbuffer_load_dwordx4 %s, %s, s%d offen lds"
                   % (sWK, LL_W + t * 16384 + u * 8192, v(vL16), srd(rs), sA if u else sWK), "w")
    wdma(0)
    a.vmop("s_mov_b32 m0, s%d\ns_nop 0\nbuffer_load_dwordx4 %s, %s, 0 offen lds" % (sHST, v(vL16), srd(SGATE)), "w")
    for c in range(8):
        if c == 4: wdma(1)
        xdma(c, sWH, sOLD)
        if c in (1, 3, 5): a.e("s_barrier")
    setup_ids(a)
    srd_words(a, [SWQ])
    setup_rd(a)
    a.e("v_lshrrev_b32 v3, 5, v0")
    a.e("v_bfrev_b32 v5, v4")
    a.e("v_lshrrev_b32 v5, 30, v5")
    a.e("s_cmp_ge_u32 s%d, 2" % sLO)
    a.e("s_cselect_b64 vcc, -1, 0")
    a.e("v_cndmask_b32 v4, v5, v4, vcc")
    a.e("v_lshl_add_u32 %s, v3, 3, v2" % v(vWA))
    a.e("v_lshlrev_b32 %s, 5, %s" % (v(vWA), v(vWA)))
    a.e("v_lshl_add_u32 %s, v4, 3, %s" % (v(vWA), v(vWA)))
    a.e("s_lshr_b32 s%d, s%d, 1" % (sA, sLO))
    a.e("s_lshl_b32 s%d, s%d, 14" % (sA, sA))
    a.e("s_add_u32 s%d, s%d, 0x%x" % (sA, sA, LL_W))
    a.e("v_add_u32 %s, s%d, %s" % (v(vWA), sA, v(vWA)))
    a.e("v_lshl_add_u32 %s, v3, 4, s%d" % (v(vWA + 1), sHST))
    a.e("s_and_b32 s%d, s%d, 1" % (sA, sLO))
    a.e("s_lshl_b32 s%d, s%d, 1" % (sB, sCNT))
    a.e("s_add_u32 s%d, s%d, s%d" % (sCNT, sA, sB))
    a.e("s_lshl_b32 s%d, s%d, 12" % (sA, sCNT))
    a.e("v_and_b32 v2, 31, v0")
    a.e("v_bfe_u32 v4, v0, 1, 3")
    a.e("v_xor_b32 v4, v4, v3")
    a.e("v_lshlrev_b32 v4, 4, v4")
    a.e("v_lshl_add_u32 v4, v2, 7, v4")
    a.e("v_add_u32 %s, s%d, v4" % (v(vLX), sA))
    for s in range(1, 4): a.e("v_xor_b32 %s, %d, %s" % (v(vLX + s), 32 * s, v(vLX)))
    for s in range(4): a.e("v_add_u32 %s, 0x10000, %s" % (v(vLX + 4 + s), v(vLX + s)))
    a.e("s_waitcnt lgkmcnt(0)")
    setup_oclr(a)
    vm0 = list(a.vm)
    a.e("s_cmp_lg_u32 s%d, 0" % sHI)
    a.e("s_cbranch_scc1 L_lB")
    a.e("s_not_b64 %s, %s" % (sp(sTMPP), sp(sVM)))
    a.e("s_cmp_ge_u32 s%d, 2" % sLO)
    a.e("s_cbranch_scc1 L_lV")
    def chain(kind):
        a.vm = list(vm0)
        def fr(k):
            b = vFR + 8 * (k % 4)
            return b, b + 4
        def reads(k):
            c, s = divmod(k, 4); x, w = fr(k)
            r = [rd128(x, vLX + s + 4 * (c >> 2), (c & 3) * 16384), rdtr(w, vWA, k * 512), rdtr(w + 2, vWA, k * 512 + 128)]
            if kind == "K":
                r += ["s_mov_b64 exec, %s" % sp(sTMPP), rd128(w, vWA + 1, k * 32), "s_mov_b64 exec, -1"]
            return r
        for q in range(4):
            a.waitvm("c%d" % (2 * q + 1))
            a.e("s_barrier")
            nr = 4 if kind == "K" else 3
            for k in range(8 * q, 8 * q + 2):
                for r in reads(k): a.e(r)
            for k in range(8 * q, 8 * q + 8):
                if k + 2 < 8 * q + 8:
                    for r in reads(k + 2): a.e(r)
                left = min(2, 8 * q + 7 - k)
                a.e("s_waitcnt lgkmcnt(%d)" % (left * nr))
                x, w = fr(k)
                cc = None if k == 0 else vACC
                a.e(mfma(vACC, w, x, cc) if kind == "K" else mfma(vACC, x, w, cc))
        a.e("s_lshl_b32 s%d, s%d, 2" % (sA, sG))
        a.e("s_add_u32 s%d, s%d, s%d" % (sA, sA, sCNT))
        a.e("s_nop 12")
        if kind == "K":
            a.e("s_mov_b32 s%d, 0x%x" % (sC, f2u(0.25 * math.log2(math.e))))
            for i in range(8): a.e("v_mul_f32 %s, s%d, %s" % (v(vACC + i), sC, v(vACC + i)))
            a.e("v_mul_f32 %s, 0x%x, %s" % (v(vACC + 8), f2u(-math.log2(math.e)), v(vACC + 8)))
            a.e("v_exp_f32 %s, %s" % (v(vACC + 8), v(vACC + 8)))
            for i in range(4): a.e("v_cvt_pk_bf16_f32 %s, %s, %s" % (v(vFR + i), v(vACC + 2 * i), v(vACC + 2 * i + 1)))
            a.e("v_add_f32 %s, 1.0, %s" % (v(vACC + 8), v(vACC + 8)))
            a.e("v_rcp_f32 %s, %s" % (v(vACC + 8), v(vACC + 8)))
            a.e("s_add_u32 s%d, s%d, 63" % (sB, sA))
            a.e("s_and_b32 s%d, s%d, 63" % (sB, sB))
            a.e("s_lshl_b32 s%d, s%d, 11" % (sB, sB))
            a.e("buffer_store_dwordx4 %s, %s, %s, s%d offen sc1" % (v(vFR, 4), v(vL16), srd(SKV), sB))
            a.e("s_lshl_b32 s%d, s%d, 7" % (sB, sA))
            a.e("s_add_u32 s%d, s%d, 0x%x" % (sB, sB, WS_G))
            a.e("s_mov_b32 exec_hi, 0")
            a.e("buffer_store_dword %s, %s, %s, s%d offen sc1" % (v(vACC + 8), v(vGA), srd(SWS), sB))
            a.e("s_mov_b64 exec, -1")
        else:
            for i in range(8): a.e("v_cvt_pk_bf16_f32 %s, %s, %s" % (v(vFR + i), v(vACC + 2 * i), v(vACC + 2 * i + 1)))
            a.e("v_bfe_u32 v2, v0, 4, 1")
            a.e("v_add_u32 v2, s%d, v2" % sA)
            a.e("v_and_b32 v2, 63, v2")
            a.e("v_lshl_add_u32 v2, v2, 11, %s" % v(vL16))
            for i in range(4): a.e("v_cndmask_b32 %s, %s, %s, %s" % (v(vFR + i), v(vFR + 4 + i), v(vFR + i), sp(sVM)))
            a.e("buffer_store_dwordx4 %s, v2, %s, 0 offen offset:1024 sc1" % (v(vFR, 4), srd(SKV)))
        a.e("s_branch L_lJ")
    chain("K")
    a.lab("L_lV")
    chain("V")
    a.lab("L_lB")
    a.vm = list(vm0)
    a.e("s_cmp_lg_u32 s%d, 14" % sM)
    a.e("s_cbranch_scc1 L_nozf")
    a.e("s_cmp_lg_u32 s%d, 4" % sW)
    a.e("s_cbranch_scc1 L_nozf")
    a.e("v_lshlrev_b32 v2, 7, v0")
    a.e("s_lshl_b32 s%d, s%d, 11" % (sA, sG))
    a.e("s_add_u32 s%d, s%d, 0x%x" % (sA, sA, WS_HFLAG))
    a.e("s_mov_b64 exec, 0xffff")
    a.e("buffer_store_dword %s, v2, %s, s%d offen sc1" % (v(vZERO), srd(SWS), sA))
    a.e("s_mov_b64 exec, -1")
    a.lab("L_nozf")
    for q in range(4):
        a.waitvm("c%d" % (2 * q + 1))
        a.e("s_barrier")
    a.lab("L_lJ")
    a.e("v_lshrrev_b32 v3, 2, v0")
    a.e("v_lshlrev_b32 v3, 10, v3")
    a.e("v_lshrrev_b32 v4, 5, v0")
    a.e("v_lshlrev_b32 v4, 1, v4")
    a.e("v_xor_b32 v4, v4, v0")
    a.e("v_and_b32 v4, 3, v4")
    a.e("v_lshl_add_u32 v3, v4, 4, v3")
    a.e("s_lshl_b32 s%d, s%d, 14" % (sA, sW))
    a.e("s_lshl_b32 s%d, s%d, 6" % (sB, sHP))
    a.e("s_add_u32 s%d, s%d, s%d" % (sA, sA, sB))
    a.e("v_add_u32 %s, s%d, v3" % (v(vDQ), sA))
    a.e("s_xor_b32 s%d, s%d, 0x2000" % (sWH, sWH))
    a.e("s_xor_b32 s%d, s%d, 0x10000" % (sOLD, sOLD))
    a.wait0(lgkm=True)
    a.e("s_barrier")
    a.e("s_cmp_lg_u32 s%d, 0" % sW)
    a.e("s_cbranch_scc1 L_noat")
    a.e("s_mov_b64 exec, 1")
    a.e("buffer_atomic_add %s, off, %s, 0 sc1" % (v(vONE), srd(SDBG)))
    a.e("s_mov_b64 exec, -1")
    a.lab("L_noat")
    a.stamp(3)
    for c in range(8): xdma(c, sWH, sOLD)
    for p in range(4):
        a.e("s_add_u32 m0, s%d, 0x%x" % (sWK, LL_WQ + p * 8192))
        a.e("s_mov_b32 s%d, 0x%x" % (sA, p * 128 * 1024))
        a.e("buffer_load_dwordx4 %s, %s, s%d offen lds" % (v(vDQ), srd(SWQ), sA))
    setup_attn(a)
    if Opt.touch & 2:
        a.e("s_lshl_b32 s%d, s%d, 1" % (sA, sG))
        a.e("s_add_u32 s%d, s%d, s%d" % (sA, sA, sM))
        a.e("s_sub_u32 s%d, s%d, 14" % (sA, sA))
        a.e("s_lshl_b32 s%d, s%d, 3" % (sA, sA))
        a.e("s_add_u32 s%d, s%d, s%d" % (sA, sA, sW))
        a.e("v_lshlrev_b32 v2, 15, v0")
        a.e("s_lshl_b32 s%d, s%d, 7" % (sA, sA))
        a.e("buffer_load_dword %s, v2, %s, s%d offen" % (v(vPOLL), srd(SWO), sA))
        a.e("buffer_load_dword %s, v2, %s, s%d offen" % (v(vPOLL), srd(SWD), sA))
    a.e("s_lshl_b32 s%d, s%d, 12" % (sA, sLO))
    a.e("v_add_u32 %s, s%d, %s" % (v(vXA), sA, v(vXA)))
    a.e("v_xor_b32 %s, 64, %s" % (v(vXA + 1), v(vXA)))
    a.e("v_add_u32 %s, 0x10000, %s" % (v(vXA + 2), v(vXA)))
    a.e("v_add_u32 %s, 0x10000, %s" % (v(vXA + 3), v(vXA + 1)))
    a.e("v_add_u32 %s, 0x%x, %s" % (v(vQA), LL_WQ, v(vQA)))
    a.e("s_waitcnt vmcnt(%d)" % (2 if Opt.touch & 2 else 0))
    a.e("s_barrier")
    def fr(k): return vFR + 12 * (k % 3)
    def reads(k):
        c, s = divmod(k, 2); f = fr(k)
        return [rd128(f + 4 * b, vXA + s + 2 * (c >> 2), (c & 3) * 16384 + b * 2048) for b in range(2)] + \
               [rdtr(f + 8, vQA, k * 2048), rdtr(f + 10, vQA, k * 2048 + 256)]
    for k in range(2):
        for r in reads(k): a.e(r)
    for k in range(16):
        a.e("s_waitcnt lgkmcnt(%d)" % (4 * min(1, 15 - k)))
        for b in range(2): a.e(mfma16(vAQ + 4 * b, fr(k) + 8, fr(k) + 4 * b, None if k == 0 else vAQ + 4 * b))
        if k + 2 < 16:
            for r in reads(k + 2): a.e(r)
    spin_counter(a, "kvl", False)
    a.e("s_barrier")
    for s, t in kv_first_loads(a): a.e(s)
    a.wait0()
    a.stamp(4)
    a.e("s_branch L_join")

def gelu_tile(a, ti, scalar=False):
    acc = vACC + 16 * ti
    t = vFR
    o = vFR + 8 + 4 * ti
    pk = lambda r: v(r, 2)
    if scalar:
        for i in range(8): a.e("v_mul_f32 %s, %s, %s" % (v(t + i), v(acc + i), v(acc + i)))
        for i in range(8): a.e("v_fma_f32 %s, %s, %s, %s" % (v(t + i), v(t + i), v(vC0 + 1), v(vC0)))
        for i in range(8): a.e("v_mul_f32 %s, %s, %s" % (v(t + i), v(t + i), v(acc + i)))
        for i in range(8): a.e("v_exp_f32 %s, %s" % (v(t + i), v(t + i)))
        for i in range(8): a.e("v_add_f32 %s, 1.0, %s" % (v(t + i), v(t + i)))
        for i in range(8): a.e("v_rcp_f32 %s, %s" % (v(t + i), v(t + i)))
        for i in range(8): a.e("v_mul_f32 %s, %s, %s" % (v(acc + i), v(acc + i), v(acc + 8 + i)))
        for i in range(8): a.e("v_mul_f32 %s, %s, %s" % (v(acc + i), v(acc + i), v(t + i)))
    R4, R8 = (range(0), range(0)) if scalar else (range(4), range(8))
    for i in R4: a.e("v_pk_mul_f32 %s, %s, %s" % (pk(t + 2 * i), pk(acc + 2 * i), pk(acc + 2 * i)))
    for i in R4: a.e("v_pk_fma_f32 %s, %s, %s, %s op_sel:[0,1,0] op_sel_hi:[1,1,0]" % (pk(t + 2 * i), pk(t + 2 * i), pk(vC0), pk(vC0)))
    for i in R4: a.e("v_pk_mul_f32 %s, %s, %s" % (pk(t + 2 * i), pk(t + 2 * i), pk(acc + 2 * i)))
    for i in R8: a.e("v_exp_f32 %s, %s" % (v(t + i), v(t + i)))
    for i in R4: a.e("v_pk_add_f32 %s, %s, 1.0 op_sel_hi:[1,0]" % (pk(t + 2 * i), pk(t + 2 * i)))
    for i in R8: a.e("v_rcp_f32 %s, %s" % (v(t + i), v(t + i)))
    for i in R4: a.e("v_pk_mul_f32 %s, %s, %s" % (pk(acc + 2 * i), pk(acc + 2 * i), pk(acc + 8 + 2 * i)))
    for i in R4: a.e("v_pk_mul_f32 %s, %s, %s" % (pk(acc + 2 * i), pk(acc + 2 * i), pk(t + 2 * i)))
    for i in range(4): a.e("v_cvt_pk_bf16_f32 %s, %s, %s" % (v(o + i), v(acc + 2 * i), v(acc + 2 * i + 1)))
    a.vmop("buffer_store_dwordx4 %s, %s, %s, s%d offen offset:%d sc1" % (v(o, 4), v(vHA), srd(SWS), sHST2 if ti >> 1 else sHST, (ti & 1) * 256), "hst")

def Yseg(hset, toggle=False):
    out = []
    for t in range(2):
        S, Sn = vS + 16 * t, vS + 16 * (1 - t)
        K, V0, V1 = vKF + 4 * t, vV + 8 * t, vV + 8 * t + 4
        for j in range(8):
            out.append("v_exp_f32 %s, %s" % (v(vE + 2 * (j % 2)), v(S + 2 * j)))
            out.append("v_exp_f32 %s, %s" % (v(vE + 2 * (j % 2) + 1), v(S + 2 * j + 1)))
            jj = (j - 1) % 8
            out.append("v_cvt_pk_bf16_f32 %s, %s, %s" % (v(vP + jj), v(vE + 2 * (jj % 2)), v(vE + 2 * (jj % 2) + 1)))
            if j == 1: out.append(mfma(vO, V1, vP + 4, vO))
            if j == 3: out.append(mfma(Sn, K, vQ, None))
            if hset is None:
                if j == 7: out.append(mfma(vO, V0, vP, vO))
            else:
                if j == 5: out.append(mfma(vO, V0, vP, vO))
                if j == 6 and t == 1 and toggle:
                    out.append("v_xor_b32 %s, 0x4000, %s" % (v(vKVA), v(vKVA)))
                    out.append("v_xor_b32 %s, 0x8000, %s" % (v(vWDA), v(vWDA)))
                if j == 7: out.append(mfma(vD + 16 * t, vWF + 4 * t, vH + 4 * hset, vD + 16 * t))
    return out

def kv_reads(off):
    r = [rd128(vKF, vKVA, off), rd128(vKF + 4, vKVA, off + 2048), "s_mov_b64 exec, %s" % sp(sVM)]
    for t in range(2):
        r += [rd128(vV + 8 * t, vKVA, off + 2048 * t + 1024), rd128(vV + 8 * t + 4, vKVA, off + 2048 * t + 1280)]
    r.append("s_mov_b64 exec, -1")
    return r
def wd_reads(dst, addr, off):
    r = []
    for c in range(2):
        r += [rdtr(dst + 4 * c, addr, off + 512 * c), rdtr(dst + 4 * c + 2, addr, off + 512 * c + 1024)]
    return r

def wdrow(sg): return (32 * (sg >> 1) + 8 * (sg & 1)) * 1024

def attention(a, role, pre0=None):
    A = role == "A"
    def kvdma(u):
        a.vmop("s_add_u32 m0, s%d, 0x%x\ns_add_u32 s%d, s%d, 0x%x\nbuffer_load_dwordx4 %s, %s, s%d offen sc1 lds"
               % (sWK, L_KV + (u % 4) * 8192, sA, sWK, u * 8192, v(vL16), srd(SKV), sA), "kv%d" % u)
    def wddma(sg):
        a.vmop("s_add_u32 m0, s%d, 0x%x\ns_add_u32 s%d, s%d, 0x%x\nbuffer_load_dwordx4 %s, %s, s%d offen lds"
               % (sWK, L_WD + ((sg + 3) % 8) * 8192, sA, sWDOFF, wdrow(sg), v(vWDV), srd(SWD), sA), "wd%d" % sg)
    def wodma(j):
        a.vmop("s_add_u32 m0, s%d, 0x%x\ns_add_u32 s%d, s%d, 0x%x\nbuffer_load_dwordx4 %s, %s, s%d offen lds"
               % (sWK, L_WO + j * 8192, sA, sB, j * 16384, v(vWDV), srd(SWO), sA), "wo")
    def hload(sg, dst):
        a.vmop("s_add_u32 s%d, s%d, 0x%x\nbuffer_load_dwordx4 %s, %s, %s, s%d offen sc1"
               % (sA, sHOFF, sg * 1024, v(dst, 4), v(vL16), srd(SWS), sA), "h%d" % sg)
    for n in range(11):
        if not A and n == 0: a.e("s_barrier")
        if n % 2 == 1: astamp(a, 2 + n // 2)
        tags = []
        if A and n % 2 == 1: tags.append("kv%d" % ((n + 1) // 2))
        if not A and n % 2 == 0: tags.append("kv%d" % ((n + 2) // 2))
        if n == (3 if A else 2): tags.append("hst")
        if n == 10: tags.append("wd0")
        if n == 8 and A:
            a.e("s_cmp_lg_u32 s%d, 0" % sW)
            a.e("s_cbranch_scc1 L_hf_done")
            a.e("s_mov_b32 s%d, 0x4000" % sB)
            a.e("s_waitcnt vmcnt(2)")
            a.lab("L_hf_chk")
            a.e("v_cmp_ne_u32 vcc, 1, %s" % v(vPOLL))
            a.e("s_cbranch_vccz L_hf_done")
            a.e("s_sleep 2")
            a.e("buffer_load_dword %s, %s, %s, 0 offen sc1" % (v(vPOLL), v(vFLA), srd(SWS)))
            a.e("s_sub_u32 s%d, s%d, 1" % (sB, sB))
            a.e("s_cmp_lg_u32 s%d, 0" % sB)
            a.e("s_waitcnt vmcnt(0)")
            a.e("s_cbranch_scc1 L_hf_chk")
            a.lab("L_hf_done")
        a.waitvm(tags)
        if n == 3 and not A:
            a.e("s_cmp_ge_u32 s%d, 14" % sM)
            a.e("s_cbranch_scc1 L_nohf")
            a.e("s_cmp_lg_u32 s%d, 4" % sW)
            a.e("s_cbranch_scc1 L_nohf")
            a.e("s_lshl_b32 s%d, s%d, 4" % (sA, sG))
            a.e("s_add_u32 s%d, s%d, s%d" % (sA, sA, sM))
            a.e("s_lshl_b32 s%d, s%d, 7" % (sA, sA))
            a.e("s_add_u32 s%d, s%d, 0x%x" % (sA, sA, WS_HFLAG))
            a.e("s_mov_b64 exec, 1")
            a.e("buffer_store_dword %s, off, %s, s%d sc1" % (v(vONE), srd(SWS), sA))
            a.e("s_mov_b64 exec, -1")
            a.lab("L_nohf")
        for r in kv_reads((n % 8) * 4096): a.e(r)
        if n == 7 and A:
            a.e("s_cmp_lg_u32 s%d, 0" % sW)
            a.e("s_cbranch_scc1 L_hf_nol")
            a.e("buffer_load_dword %s, %s, %s, 0 offen sc1" % (v(vPOLL), v(vFLA), srd(SWS)))
            a.lab("L_hf_nol")
        if n == 0:
            kvdma(2); kvdma(3)
            a.e("s_mov_b32 s%d, s%d" % (sC, sKQ))
            a.e("s_mul_i32 s%d, s%d, %d" % (sWDOFF, sC, 448 * 1024))
            a.e("s_and_b32 s%d, s%d, 1" % (sB, sW))
            a.e("s_lshl_b32 s%d, s%d, 14" % (sA, sB))
            a.e("s_add_u32 s%d, s%d, s%d" % (sWDOFF, sWDOFF, sA))
            a.e("s_lshl_b32 s%d, s%d, 1" % (sA, sT))
            a.e("s_add_u32 s%d, s%d, s%d" % (sA, sA, sB))
            a.e("s_mul_i32 s%d, s%d, 112" % (sA, sA))
            a.e("s_mul_i32 s%d, s%d, 28" % (sB, sC))
            a.e("s_add_u32 s%d, s%d, s%d" % (sA, sA, sB))
            a.e("s_lshl_b32 s%d, s%d, 10" % (sA, sA))
            a.e("s_add_u32 s%d, s%d, 0x%x" % (sHOFF, sA, WS_HF))
        if (A and n % 2 == 1 and n >= 3): kvdma((n + 5) // 2)
        if (not A and n % 2 == 0 and n >= 2): kvdma((n + 6) // 2)
        if 1 <= n <= 3:
            a.e("s_lshl_b32 s%d, s%d, 17" % (sB, sKQ))
            a.e("s_and_b32 s%d, s%d, 1" % (sC, sW))
            a.e("s_lshl_b32 s%d, s%d, 13" % (sC, sC))
            a.e("s_add_u32 s%d, s%d, s%d" % (sB, sB, sC))
            for j in {1: (0, 1, 2), 2: (3, 4, 5), 3: (6, 7)}[n]: wodma(j)
        if n >= 4: wddma(n - 4)
        if n == 9:
            hload(0, vH + 12); hload(1, vH + 0); hload(24, vH + 16); hload(25, vH + 20)
        if n == 10:
            hload(26, vH + 24); hload(27, vH + 28); hload(2, vH + 4)
        if n == 0 and pre0:
            pre0()
            a.stamp(5)
        a.e("s_waitcnt lgkmcnt(0)")
        a.e("s_call_b64 %s, L_Y%s" % (sp(sRET), role))
        if n == 0:
            a.e("s_branch L_X1%s" % role)
            a.lab("L_Y%s" % role)
            if A: a.e("s_barrier")
            for x in Yseg(None): a.e(x)
            if not A: a.e("s_barrier")
            a.e("s_setpc_b64 %s" % sp(sRET))
            a.lab("L_X1%s" % role)
    astamp(a, 7)
    a.e("s_add_u32 s%d, s%d, 0x%x" % (sHOFF, sHOFF, 3 * 1024))
    a.e("s_add_u32 s%d, s%d, 0x%x" % (sWDOFF, sWDOFF, wdrow(7)))
    a.e("s_mov_b32 s%d, 0x%x" % (sM0WD, ((7 + 3) % 8) * 8192))
    u0 = 8 if A else 9
    a.e("s_add_u32 s%d, s%d, 0x%x" % (sKVOFF, sWK, u0 * 8192))
    a.e("s_mov_b32 s%d, 6" % sCNT)
    a.waitvm(["h0", "wd1", "kv6"] if A else ["h0", "wd1"])
    a.e("s_branch L_loop%s_in" % role)
    a.l.append(".p2align 6")
    a.lab("L_loop%s" % role)
    for p in range(4):
        if p == 0 and Opt.diag and Opt.kdiag == 2:
            a.e("s_cmp_lg_u32 s%d, 4" % sCNT)
            a.e("s_cbranch_scc1 L_nst%s" % role)
            astamp(a, 8)
            a.lab("L_nst%s" % role)
        a.e("s_waitcnt vmcnt(5)")
        if p == 3: a.lab("L_loop%s_in" % role)
        for r in kv_reads(p * 4096): a.e(r)
        for r in wd_reads(vWF, vWDA, p * 8192): a.e(r)
        a.e("buffer_load_dwordx4 %s, %s, %s, s%d offen sc1" % (v(vH + 4 * ((p + 3) % 4), 4), v(vL16), srd(SWS), sHOFF))
        a.e("s_add_u32 m0, s%d, s%d" % (sWK, sM0WD))
        a.e("s_add_u32 s%d, s%d, 0x400" % (sHOFF, sHOFF))
        a.e("buffer_load_dwordx4 %s, %s, s%d offen lds" % (v(vWDV), srd(SWD), sWDOFF))
        a.e("s_add_u32 s%d, s%d, 0x%x" % (sWDOFF, sWDOFF, 0x6000 if p & 1 else 0x2000))
        a.e("s_add_u32 s%d, s%d, 0x2000" % (sM0WD, sM0WD))
        a.e("s_and_b32 s%d, s%d, 0xffff" % (sM0WD, sM0WD))
        if (p % 2 == 1) == A:
            a.e("s_and_b32 s%d, s%d, 0x7fff" % (sA, sKVOFF))
            a.e("s_add_u32 m0, s%d, 0x%x" % (sA, L_KV))
            a.e("s_nop 0")
            a.e("buffer_load_dwordx4 %s, %s, s%d offen sc1 lds" % (v(vL16), srd(SKV), sKVOFF))
            a.e("s_add_u32 s%d, s%d, 0x2000" % (sKVOFF, sKVOFF))
        if p == 3:
            a.e("s_sub_u32 s%d, s%d, 1" % (sCNT, sCNT))
            a.e("s_cmp_lg_u32 s%d, 0" % sCNT)
        a.e("s_waitcnt lgkmcnt(0)")
        if A: a.e("s_barrier")
        for x in Yseg(p, toggle=(p == 3)): a.e(x)
        if not A:
            if p == 3: a.e("s_cbranch_scc0 L_tail")
            a.e("s_barrier")
    a.e(("s_cbranch_scc1 L_loop%s" if A else "s_branch L_loop%s") % role)

def transition(a, role):
    A = role == "A"
    if A:
        a.vm = []
        a.lab("L_trA")
    else:
        a.lab("L_join")
        a.e("s_cmp_eq_u32 s%d, 0" % sHI)
        a.e("s_cbranch_scc1 L_trA")
        a.vmjoin = list(a.vm)
    def qfin():
        for i in range(4): a.e("v_cvt_pk_bf16_f32 %s, %s, %s" % (v(vQ + i), v(vAQ + 2 * i), v(vAQ + 2 * i + 1)))
        for i in range(4, 7): a.e("v_mov_b32 %s, 0" % v(vP + i))
        a.e("v_permlane16_swap_b32 %s, %s" % (v(vQ), v(vQ + 2)))
        a.e("v_permlane16_swap_b32 %s, %s" % (v(vQ + 1), v(vQ + 3)))
    pre0 = None
    if A:
        a.e("s_setprio 1")
        a.e("s_cmp_ge_u32 s%d, 14" % sM)
        a.e("s_cbranch_scc1 L_nogA0")
        put(a, a.kvA[:1] + a.kvA[-1:])
        a.l.append(".p2align 3")
        for ti in range(Opt.gsc): gelu_tile(a, ti, True)
        a.lab("L_nogA0")
        qfin()
        a.waitvm(["k0", "kv0", "kv1"])
        a.e("s_setprio 0")
        a.e("s_barrier")
        a.e(mfma(vS, vK0, vQ, None))
        put(a, a.kvA[1:-1])
        def pre0():
            a.e("s_cmp_lt_u32 s%d, 14" % sM)
            a.e("s_cbranch_scc1 L_gA1")
            a.e("s_waitcnt vmcnt(0)")
            a.e("s_branch L_nogA1")
            a.l.append(".p2align 3")
            a.lab("L_gA1")
            for ti in range(Opt.gsc, 4): gelu_tile(a, ti)
            a.lab("L_nogA1")
            a.e("s_setprio 1")
    else:
        a.waitvm(["k0", "kv0", "kv1"])
        a.e("s_setprio 1")
        a.e("s_cmp_ge_u32 s%d, 14" % sM)
        a.l.append(".p2align 3")
        a.e("s_barrier")
        a.e("s_cbranch_scc1 L_nogB")
        for ti in range(4): gelu_tile(a, ti)
        a.lab("L_nogB")
        qfin()
        a.e("s_setprio 0")
        a.e("s_nop 0")
        a.e(mfma(vS, vK0, vQ, None))
        a.stamp(5)
    attention(a, role, pre0)
    if A: a.e("s_branch L_tail")

def tail(a):
    a.lab("L_tail")
    a.e("v_cvt_pk_bf16_f32 %s, %s, %s" % (v(vP + 7), v(vE + 2), v(vE + 3)))
    a.stamp(6)
    astamp(a, 9)
    if Opt.diag and Opt.kdiag == 2: a.e("s_waitcnt lgkmcnt(0)")
    a.e("s_setprio 0")
    a.e("s_mov_b32 s%d, 0x%x" % (sC, f2u(2.0 ** -16)))
    a.e(mfma(vO, vV1L, vP + 4, vO))
    a.e("s_mov_b32 s%d, 0x%x" % (sD, f2u(2.0 ** 100)))
    wf = [vFR, vFR + 8, vFR + 16]
    for i in range(2):
        for r in wd_reads(wf[i], vWDA, i * 8192): a.e(r)
    a.e("s_nop 2")
    t = vT0
    a.e("v_rcp_f32 %s, %s" % (v(t + 2), v(vO + 8)))
    a.e("v_pk_mul_f32 %s, %s, 0 op_sel_hi:[1,0]" % (v(t, 2), v(vO, 2)))
    for i in range(1, 4): a.e("v_pk_fma_f32 %s, %s, 0, %s op_sel_hi:[1,0,1]" % (v(t, 2), v(vO + 2 * i, 2), v(t, 2)))
    a.e("v_add_f32 %s, %s, %s" % (v(t), v(t), v(t + 1)))
    a.e("v_add_f32 %s, %s, %s" % (v(t), v(t), v(vO + 8)))
    a.e("v_cmp_nle_f32 vcc, s%d, %s" % (sC, v(t)))
    a.e("v_cmp_nge_f32 %s, s%d, %s" % (sp(sTMPP), sD, v(t)))
    a.e("s_or_b64 vcc, vcc, %s" % sp(sTMPP))
    a.e("s_branch L_fb" if Opt.force_fb else "s_cbranch_scc1 L_fb")
    a.lab("L_fbret")
    a.e("v_mul_f32 %s, %s, %s" % (v(t + 2), v(t + 2), v(vGP)))
    for i in range(4): a.e("v_pk_mul_f32 %s, %s, %s op_sel_hi:[1,0]" % (v(vO + 2 * i, 2), v(vO + 2 * i, 2), v(t + 2, 2)))
    for i in range(4): a.e("v_cvt_pk_bf16_f32 %s, %s, %s" % (v(vP + i), v(vO + 2 * i), v(vO + 2 * i + 1)))
    for i in range(4): a.e("v_min_u32 %s, -2, %s" % (v(vP + i), v(vP + i)))
    a.e("buffer_store_dwordx4 %s, %s, %s, s%d offen sc1" % (v(vP, 4), v(vL16), srd(SWS), sOST))
    HORD = [0, 2, 4, 6, 1, 3, 5, 7] if Opt.hord else list(range(8))
    def oload(j):
        return "buffer_load_dwordx4 %s, %s, %s, s%d offen offset:%d sc1" % (
            v(vS + 4 * j, 4), v(vL16), srd(SWS), sOLD if HORD[j] < 4 else sA, (HORD[j] % 4) * 1024)
    a.oload = oload
    aw = vXA
    ar = vWA
    def addrs(a):
        a.e("v_sub_f32 %s, 1.0, %s" % (v(vGC), v(vGC)))
        a.e("v_add_u32 %s, 0x%x, %s" % (v(vQA), L_WO, v(vWDA)))
        a.e("v_and_b32 v2, 31, v0")
        a.e("v_lshrrev_b32 v3, 5, v0")
        a.e("v_and_b32 v4, 7, v0")
        a.e("v_xor_b32 v3, v3, v4")
        a.e("v_lshlrev_b32 v3, 4, v3")
        a.e("v_lshl_add_u32 v3, v2, 8, v3")
        a.e("s_and_b32 s%d, s%d, 1" % (sB, sW))
        a.e("s_lshl_b32 s%d, s%d, 15" % (sB, sB))
        a.e("s_lshr_b32 s%d, s%d, 1" % (sC, sW))
        a.e("s_lshl_b32 s%d, s%d, 13" % (sD, sC))
        a.e("s_add_u32 s%d, s%d, s%d" % (sD, sD, sB))
        a.e("v_add_u32 %s, s%d, v3" % (v(aw), sD))
        for j in range(1, 4): a.e("v_xor_b32 %s, %d, %s" % (v(aw + j), 32 * j, v(aw)))
        a.e("v_lshrrev_b32 v2, 3, v0")
        a.e("v_lshlrev_b32 v3, 1, v4")
        a.e("v_xor_b32 v3, v3, v2")
        a.e("v_lshlrev_b32 v3, 4, v3")
        a.e("v_lshl_add_u32 v3, v2, 8, v3")
        a.e("s_lshl_b32 s%d, s%d, 11" % (sD, sC))
        a.e("s_add_u32 s%d, s%d, s%d" % (sD, sD, sB))
        a.e("v_add_u32 %s, s%d, v3" % (v(ar), sD))
        a.e("v_xor_b32 %s, 16, %s" % (v(ar + 1), v(ar)))
        a.e("v_lshlrev_b32 v4, 4, v4")
        a.e("v_lshl_add_u32 %s, v2, 10, v4" % v(ar + 2))
        a.e("s_lshl_b32 s%d, s%d, 13" % (sC, sC))
        a.e("s_add_u32 s%d, s%d, s%d" % (sB, sB, sC))
        a.e("s_lshl_b32 s%d, s%d, 16" % (sC, sT))
        a.e("s_add_u32 s%d, s%d, s%d" % (sB, sB, sC))
        a.e("s_lshl_b32 s%d, s%d, 7" % (sC, sCB))
        a.e("s_add_u32 s%d, s%d, s%d" % (sCNT, sB, sC))
        a.e("s_mov_b32 s%d, 0x2000" % sB)
    a.e("s_add_u32 s%d, s%d, 0x1000" % (sA, sOLD))
    ol = Asm(); a.ool2 = ol.l
    a.e("s_cmp_lg_u32 s%d, 0" % sHI)
    a.e("s_cbranch_scc1 L_tl1")
    for j in range(8): a.e(oload(j))
    a.e("s_waitcnt vmcnt(9)")
    a.e("s_branch L_tl2")
    a.lab("L_tl1")
    a.e("s_setprio 1")
    a.e("s_waitcnt vmcnt(1)")
    a.lab("L_tl2")
    a.e("s_barrier")
    hreg = {21: vH + 0, 22: vH + 4, 23: vH + 8, 24: vH + 16, 25: vH + 20, 26: vH + 24, 27: vH + 28}
    fl = collect(addrs)
    for i in range(7):
        if i + 2 < 7:
            for r in wd_reads(wf[(i + 2) % 3], vWDA, (i + 2) * 8192): a.e(r)
        else:
            for r in wd_reads(wf[(i + 2) % 3], vQA, HORD[i - 5] * 8192): a.e(r)
        a.e("s_waitcnt lgkmcnt(8)")
        for c in range(2):
            a.e(mfma(vD + 16 * c, wf[i % 3] + 4 * c, hreg[21 + i], vD + 16 * c))
            put(a, fl[:3]); fl = fl[3:]
    assert not fl
    a.e("s_cmp_lg_u32 s%d, 0" % sHI)
    a.e("s_cbranch_scc1 L_tl3")
    a.l.append(".p2align 3")
    a.e("s_nop 7")
    a.e("s_nop 0")
    for i in range(16): a.e("v_pk_mul_f32 %s, %s, %s op_sel:[0,1] op_sel_hi:[1,1]" % (v(vD + 2 * i, 2), v(vD + 2 * i, 2), v(vGP, 2)))
    if Opt.tbar == 0: a.e("s_barrier")
    a.lab("L_tl4")
    ol.lab("L_tl3")
    ol.e("s_setprio 0")
    for j in range(8):
        ol.e(oload(j))
        if j == 0: ol.e("s_nop 6")
        for i in range(4 * j, 4 * j + 4): ol.e("v_mul_f32 %s, %s, %s" % (v(vD + i), v(vGC), v(vD + i)))
    ol.e("s_barrier")
    ol.e("s_branch L_tl4")
    a.stamp(7)
    J1 = 8 - Opt.cskew
    wo = lambda j: wf[(j + 1) % 3] if j < J1 else vH + 8 * (j - J1)
    for j in range(8):
        o = vS + 4 * j
        if j + 2 < 8:
            for r in wd_reads(wo(j + 2), vQA, HORD[j + 2] * 8192): a.e(r)
        a.lab("L_ochk%d" % j)
        a.e("s_waitcnt vmcnt(%d)" % (7 - j))
        a.e("v_max3_u32 v2, %s, %s, %s" % (v(o), v(o + 1), v(o + 2)))
        a.e("v_max_u32 v2, v2, %s" % v(o + 3))
        a.e("v_cmp_eq_u32 vcc, -1, v2")
        a.e("s_cbranch_vccnz L_ore%d" % j)
        a.lab("L_ook%d" % j)
        a.e("s_waitcnt lgkmcnt(%d)" % (4 * min(2, 7 - j)))
        for c in range(2 if j < J1 else 1): a.e(mfma(vD + 16 * c, wo(j) + 4 * c, o, vD + 16 * c))
    wr = lambda c, j: "ds_write_b128 %s, %s offset:%d" % (v(aw + j), v(vD + 16 * c + 4 * j, 4), 128 * c)
    w0 = [wr(0, j) for j in range(4)]
    dist = 0
    for j in range(J1, 8):
        a.e(mfma(vD + 16, wo(j) + 4, vS + 4 * j, vD + 16)); dist += 1
        if dist < 12:
            a.e("s_nop 5"); dist += 6
        elif j < 7:
            a.e(w0.pop(0))
    a.stamp(8)
    if not Opt.cskew: a.e("s_nop 10")
    elif dist < 12: a.e("s_nop %d" % (11 - dist))
    n0 = len(w0)
    for x in w0: a.e(x)
    if Opt.cskew: a.e("s_nop %d" % (11 - n0))
    for j in range(4): a.e(wr(1, j))
    a.e("s_waitcnt lgkmcnt(0)")
    a.e("s_barrier")
    for p in range(4):
        for h in range(2): a.e(rd128(vS + 8 * p + 4 * h, ar + h, p * 8192))
    for p in range(1, 4):
        a.e("s_waitcnt lgkmcnt(%d)" % (6 - 2 * p))
        for i in range(4): a.e("v_pk_add_f32 %s, %s, %s" % (v(vS + 2 * i, 2), v(vS + 2 * i, 2), v(vS + 8 * p + 2 * i, 2)))
    for i in range(4): a.e("v_cvt_pk_bf16_f32 %s, %s, %s" % (v(vP + i), v(vS + 2 * i), v(vS + 2 * i + 1)))
    a.e("buffer_store_dwordx4 %s, %s, %s, s%d offen %s" % (v(vP, 4), v(ar + 2), srd(SOUT), sCNT, Opt.out_pol))
    if Opt.probe >= 0:
        a.e("s_waitcnt vmcnt(0)")
        a.stamp(9)
        if Opt.probe != 9:
            a.e("s_cmp_ge_u32 s%d, 14" % sM)
            a.e("s_cbranch_scc%d L_end" % (0 if Opt.probe_l else 1))
        a.e("s_sub_u32 s%d, s%d, s%d" % (sA, sSTAMP + 4, sSTAMP))
        a.e("s_mul_i32 s%d, s%d, %d" % (sA, sA, Opt.probe_mul - 1))
        a.e("s_min_u32 s%d, s%d, 100000" % (sA, sA))
        a.e("s_add_u32 s%d, s%d, 3800" % (sA, sA))
        if Opt.probe_w >= 0:
            a.e("s_cmp_lg_u32 s%d, %d" % (sHI, Opt.probe_w))
            a.e("s_cbranch_scc1 L_end")
        if Opt.probe_x >= 0:
            a.e("s_and_b32 s0, s2, 7")
            a.e("s_cmp_lg_u32 s0, %d" % Opt.probe_x)
            a.e("s_cbranch_scc1 L_end")
        a.lab("L_probe")
        a.e("s_memrealtime s[0:1]")
        a.e("s_waitcnt lgkmcnt(0)")
        a.e("s_sub_u32 s0, s0, s%d" % (sSTAMP + 4))
        a.e("s_cmp_lt_u32 s0, s%d" % sA)
        a.e("s_cbranch_scc1 L_probe")
    if Opt.pin == 9:
        a.e("s_waitcnt vmcnt(0)")
        a.stamp(9)
    if Opt.diag:
        a.e("s_waitcnt vmcnt(0)")
        a.stamp(9)
        a.e("s_mov_b32 s%d, s%d" % (sSTAMP + 3, sSTAMP))
        a.e("s_mov_b32 s%d, s%d" % (sSTAMP, sB))
        a.e("s_getreg_b32 s%d, hwreg(HW_REG_XCC_ID)" % (sSTAMP + 1))
        for i in range(20): a.e("v_mov_b32 %s, s%d" % (v(vS + i), sSTAMP + i))
        a.e("s_lshl_b32 s%d, s2, 3" % sA)
        a.e("s_add_u32 s%d, s%d, s%d" % (sA, sA, sW))
        a.e("s_lshl_b32 s%d, s%d, 7" % (sA, sA))
        a.e("s_add_u32 s%d, s%d, 0x%x" % (sA, sA, WS_STAMP))
        a.e("s_mov_b64 exec, 1")
        for i in range(5): a.e("buffer_store_dwordx4 %s, off, %s, s%d offset:%d" % (v(vS + 4 * i, 4), srd(SWS), sA, 16 * i))
    a.lab("L_end")
    a.e("s_endpgm")
    a.l += a.ool2
    for j in range(8):
        a.lab("L_ore%d" % j)
        a.e("s_sub_u32 s%d, s%d, 1" % (sB, sB))
        a.e("s_cbranch_scc1 L_ogive%d" % j)
        a.e("s_waitcnt vmcnt(0)")
        for i in range(j, 8): a.e(a.oload(i))
        a.e("s_branch L_ochk%d" % j)
        a.lab("L_ogive%d" % j)
        a.e("s_mov_b32 s%d, 0" % sB)
        a.e("s_branch L_ook%d" % j)

def fallback(a):
    a.lab("L_fb")
    m = vT0
    a.e("v_mov_b32 %s, 0xff800000" % v(m))
    a.e("s_mov_b32 s%d, 0" % sA)
    a.lab("L_fb1")
    a.e("buffer_load_dwordx4 %s, %s, %s, s%d offen sc1" % (v(vKF, 4), v(vL16), srd(SKV), sA))
    a.e("s_waitcnt vmcnt(0)")
    a.e(mfma(vS, vKF, vQ, None))
    a.e("s_add_u32 s%d, s%d, 2048" % (sA, sA))
    a.e("s_nop 11")
    for i in range(8): a.e("v_max3_f32 %s, %s, %s, %s" % (v(m), v(m), v(vS + 2 * i), v(vS + 2 * i + 1)))
    a.e("s_cmp_lt_u32 s%d, 0x20000" % sA)
    a.e("s_cbranch_scc1 L_fb1")
    a.e("v_mov_b32 %s, %s" % (v(m + 1), v(m)))
    a.e("s_nop 1")
    a.e("v_permlane32_swap_b32 %s, %s" % (v(m), v(m + 1)))
    a.e("s_nop 1")
    a.e("v_max_f32 %s, %s, %s" % (v(m), v(m), v(m + 1)))
    for i in range(16): a.e("v_sub_f32 %s, 0, %s" % (v(vS + 16 + i), v(m)))
    for i in range(16): a.e("v_mov_b32 %s, 0" % v(vO + i))
    a.e("s_mov_b32 s%d, 0" % sA)
    a.lab("L_fb2")
    a.e("s_add_u32 s%d, s%d, 0x%x" % (sB, sA, 63 * 2048))
    a.e("s_and_b32 s%d, s%d, 0x1ffff" % (sB, sB))
    a.e("buffer_load_dwordx4 %s, %s, %s, s%d offen sc1" % (v(vKF, 4), v(vL16), srd(SKV), sB))
    a.e("s_add_u32 s%d, s%d, 2048" % (sB, sA))
    a.e("s_and_b32 s%d, s%d, 0x1ffff" % (sB, sB))
    a.e("s_mov_b64 exec, %s" % sp(sVM))
    a.e("buffer_load_dwordx4 %s, %s, %s, s%d offen offset:1024 sc1" % (v(vV, 4), v(vL16), srd(SKV), sA))
    a.e("buffer_load_dwordx4 %s, %s, %s, s%d offen offset:1280 sc1" % (v(vV + 4, 4), v(vL16), srd(SKV), sB))
    a.e("s_mov_b64 exec, -1")
    a.e("s_waitcnt vmcnt(0)")
    a.e(mfma(vS, vKF, vQ, vS + 16))
    a.e("s_add_u32 s%d, s%d, 2048" % (sA, sA))
    a.e("s_nop 11")
    for i in range(16): a.e("v_exp_f32 %s, %s" % (v(vS + i), v(vS + i)))
    for i in range(8): a.e("v_cvt_pk_bf16_f32 %s, %s, %s" % (v(vP + i), v(vS + 2 * i), v(vS + 2 * i + 1)))
    a.e("s_nop 1")
    a.e(mfma(vO, vV, vP, vO))
    a.e(mfma(vO, vV + 4, vP + 4, vO))
    a.e("s_cmp_lt_u32 s%d, 0x20000" % sA)
    a.e("s_cbranch_scc1 L_fb2")
    a.e("s_nop 11")
    a.e("v_rcp_f32 %s, %s" % (v(vT0 + 2), v(vO + 8)))
    a.e("s_branch L_fbret")

def build():
    a = Asm()
    prologue(a)
    phase1_F(a)
    transition(a, "B")
    tail(a)
    a.l += a.ool
    transition(a, "A")
    phase1_L(a)
    fallback(a)
    a.lab("L_codeend")
    il = a.l.index("L_light:")
    for i, x in enumerate(a.l):
        if x.endswith(" lds") and "sc1" not in x and " nt" not in x:
            if (Opt.ntx & 4 and (srd(SWD) in x or srd(SWO) in x)) or (Opt.ntx & 8 and i > il):
                a.l[i] = x[:-4] + " nt lds"
    head = open("cdna_kernels/%s.s.ref" % NAME).read().split("\n")
    hdr = [l for l in head if l.startswith(";") and "@launch" not in l and "Override" not in l and "grid=" not in l]
    out = hdr + ["; @launch grid=(256,1,1) block=(512,1,1) lds=%d" % LDS_BYTES,
                 '.amdgcn_target "amdgcn-amd-amdhsa--gfx950"', ".text", ".globl %s_kernel" % NAME, ".p2align 8",
                 ".type %s_kernel,@function" % NAME,
                 ".set CODE_PF_MAX, L_codeend - L_nopf - 4" if Opt.code_pf else "",
                 "%s_kernel:" % NAME]
    out += ["; mapmode %d" % Opt.mapmode, "; xrot %d" % Opt.xrot]
    out += a.l
    out += ['.section .rodata,"a"', ".p2align 6", ".amdhsa_kernel %s_kernel" % NAME,
            "  .amdhsa_next_free_vgpr %d" % NV, "  .amdhsa_next_free_sgpr 102", "  .amdhsa_accum_offset 256",
            "  .amdhsa_group_segment_fixed_size 0", "  .amdhsa_kernarg_size 104", "  .amdhsa_user_sgpr_count 2",
            "  .amdhsa_user_sgpr_kernarg_segment_ptr 1", "  .amdhsa_system_sgpr_workgroup_id_x 1", ".end_amdhsa_kernel", ""]
    return "\n".join(out)

if __name__ == "__main__":
    path = sys.argv[1]
    for kv in sys.argv[2:]:
        k, val = kv.split("=")
        cur = getattr(Opt, k)
        setattr(Opt, k, val if isinstance(cur, str) else type(cur)(int(val)))
    open(path, "w").write(build())
```

```python
import sys, struct, math

NAME = "gated_mix__grouped_kv_mqa__geglu_ffn__prompt"

class Opt:
    diag = 0
    mapmode = 1
    force_fb = False
    allsc = 0
    out_pol = "sc0 sc1"
    code_pf = True
    xrot = 0
    pregap = 0
    old_pol = "sc1"
    ypos0 = "36g"
    ypos1 = "36bg"
    tpos = 1
    cskew = 0
    tch = 12
    stch = 0
    spos = 1
    tlb = 14
    olate = 1
    hrot = 0
    tbar = 0
    hord = 1
    cmap = 1
    kqx = 0
    oearly = 8
    conc = 1
    ghx = 1
    qa = "088888"
    qb = "577777"
    npre = 8
    stagger = 1
    rper = 2
    dma1 = 17
    kprio = 0
    dma0 = 8
    npd = 4
    kdiag = 0
    fillpre = 0
    fillper = 4
    gsc = 2
    sched = 0
    xmask = 1
    ntx = 0
    touch = 2
    rotg = 0
    rotm = 0
    startbar = 1
    pvz = 1
    pin = -1
    pin_ns = 60000
    probe = -1
    probe_x = -1
    probe_mul = 10
    probe_w = -1
    probe_l = 0

def f2u(x): return struct.unpack("<I", struct.pack("<f", x))[0]

WS_KV = 0
WS_G = 128 * 1024
WS_HFLAG = 192 * 1024
WS_OF = 1 << 20
WS_HF = 4 << 20
WS_STAMP = 12 << 20
WS_SIZE = 16 << 20
K1 = 1024
L_G, L_U, L_X, L_WQ = 0, 48 * K1, 96 * K1, 144 * K1
L_QX = 32 * K1
L_WD, L_WO, L_KV = 0, 64 * K1, 128 * K1
LL_X, LL_W, LL_GATE, LL_WQ = 0, 128 * K1, 144 * K1, 128 * K1
LDS_BYTES = 160 * K1

SX, SWG, SWU, SWQ, SWS, SWD, SWO, SOUT, SDBG, SWKV, SGATE, SKV = 4, 8, 12, 16, 20, 24, 28, 32, 36, 40, 44, 64
SWV = 72
sTMPP = 48
sW, sHI, sLO, sG, sM, sT, sCB = 50, 51, 52, 53, 54, 55, 56
sWK = 57
sWH = 58
sK64 = 59
sVM = 60
sRET = 62
sA, sB, sC, sD = 68, 69, 70, 71
sOFFW, sOFFQ, sCH, sXP = 72, 73, 74, 75
sHOFF, sWDOFF, sKVOFF, sM0WD, sM0KV, sCNT = 72, 73, 74, 75, 76, 77
sOST, sOLD, sHST = 78, 79, 80
sHST2 = 3
sRX, sRW, sM0B = 40, 41, 42
sKQ = 76
sHP = sM
sFREE = 81
sSTAMP = 82

def srd(b): return "s[%d:%d]" % (b, b + 3)
def sp(b): return "s[%d:%d]" % (b, b + 1)
def v(b, n=1): return "v%d" % b if n == 1 else "v[%d:%d]" % (b, b + n - 1)

vL16 = 1
vT0, vT1, vT2, vT3 = 2, 3, 4, 5
vGP, vGC = 6, 7
vKVA = 8
vWDA = 9
vWDV = 10
vONE = 11
vZERO = 12
vFLA = 13
vPOLL = 14
vGA = 15
vQ = 16
vK0 = 20
vV1L = 24
vIDX = 28
vP = 32
vV = 40
vO = 56
vD = 72
vACC = 104
vS = 104
vH = 136
vAQ = vP
vF1 = 168
vKF = 168
vWF = 176
vFR = 184
vLX = 224
vXA = 240
vWA = 244
vQA = 248
vDX, vDG, vDQ = 249, 250, 251
vC0 = 252
vTID = 255
vHA = 254
NV = 256

class Asm:
    def __init__(self):
        self.l = []
        self.vm = []
        self.nstamp = 0
    def e(self, s):
        for x in s.split("\n"):
            x = x.strip()
            if x: self.l.append("    " + x)
    def lab(self, s): self.l.append(s + ":")
    def vmop(self, s, tag):
        self.e(s); self.vm.append(tag)
    def vmn(self, tags):
        if isinstance(tags, str): tags = [tags]
        last = -1
        for i, t in enumerate(self.vm):
            if t in tags: last = i
        return None if last < 0 else len(self.vm) - 1 - last
    def waitvm(self, tags, lgkm=False):
        n = self.vmn(tags)
        if n is None:
            if lgkm: self.e("s_waitcnt lgkmcnt(0)")
            return
        assert n < 64
        self.e("s_waitcnt vmcnt(%d)%s" % (n, " lgkmcnt(0)" if lgkm else ""))
        self.vm = self.vm[len(self.vm) - n:] if n else []
    def wait0(self, lgkm=False):
        self.e("s_waitcnt vmcnt(0)%s" % (" lgkmcnt(0)" if lgkm else "")); self.vm = []
    def stamp(self, i, real=False):
        if Opt.probe == i:
            self.e("s_waitcnt lgkmcnt(0)")
            self.e("s_memrealtime %s" % sp(sSTAMP + 4))
            self.e("s_waitcnt lgkmcnt(0)")
        if Opt.pin == i:
            self.nstamp += 1
            self.e("s_waitcnt lgkmcnt(0)")
            self.e("s_cselect_b32 s%d, 1, 0" % (sSTAMP + 5))
            self.lab("L_pin%d" % self.nstamp)
            self.e("s_memrealtime s[0:1]")
            self.e("s_waitcnt lgkmcnt(0)")
            self.e("s_sub_u32 s0, s0, s%d" % sSTAMP)
            self.e("s_cmp_lt_u32 s0, %d" % (Opt.pin_ns // 10))
            self.e("s_cbranch_scc1 L_pin%d" % self.nstamp)
            self.e("s_cmp_lg_u32 s%d, 0" % (sSTAMP + 5))
        if Opt.diag and not Opt.kdiag and (Opt.diag == 1 or i == 9):
            self.e("s_waitcnt lgkmcnt(0)")
            self.e("s_memtime %s" % sp(sSTAMP + 2 * i))
            self.e("s_memrealtime %s" % sp(sRET))
            self.e("s_waitcnt lgkmcnt(0)")
            self.e("s_mov_b32 s%d, s%d" % (sSTAMP + 2 * i + 1, sRET))

def astamp(a, i):
    if Opt.diag and Opt.kdiag == 2: a.e("s_memtime %s" % sp(sSTAMP + 2 * i))

def kstamp(a, i):
    if Opt.probe == 18 + i: a.e("s_memrealtime %s" % sp(sSTAMP + 4))
    if Opt.diag and Opt.kdiag == 1: a.e("s_memtime %s" % sp(sSTAMP + 2 * i))

def mfma(d, a, b, c):
    return "v_mfma_f32_32x32x16_bf16 %s, %s, %s, %s" % (v(d, 16), v(a, 4), v(b, 4), "0" if c is None else v(c, 16))
def smfmac(d, a, b):
    return "v_smfmac_f32_32x32x32_bf16 %s, %s, %s, %s" % (v(d, 16), v(a, 4), v(b, 8), v(vIDX))
def mfma16(d, a, b, c):
    return "v_mfma_f32_16x16x32_bf16 %s, %s, %s, %s" % (v(d, 4), v(a, 4), v(b, 4), "0" if c is None else v(c, 4))
def rd128(d, a, off):
    assert 0 <= off < 65536
    return "ds_read_b128 %s, %s offset:%d" % (v(d, 4), v(a), off)
def rdtr(d, a, off):
    assert 0 <= off < 65536
    return "ds_read_b64_tr_b16 %s, %s offset:%d" % (v(d, 2), v(a), off)

def interleave(mf, fill, per=2):
    out = []
    fill = list(fill)
    for i, m in enumerate(mf):
        out.append(m)
        if i < len(mf) - 1:
            out += fill[:per]; fill = fill[per:]
    return out + fill

def srd_words(a, regs):
    sizes = {SX: 2048 * 1024, SWG: 512 * 3584, SWU: 512 * 3584, SWQ: 512 * 1024, SWS: WS_SIZE, SWKV: 16384, SWV: 16384,
             SGATE: 1024, SWD: 1792 * 1024, SWO: 512 * 1024, SOUT: 2048 * 1024, SDBG: 256, SKV: 128 * 1024}
    for reg in regs:
        a.e("s_mov_b32 s%d, 0x%x" % (reg + 2, sizes[reg]))
        a.e("s_mov_b32 s%d, 0x20000" % (reg + 3))

def ptr_loads(a, lst):
    for reg, off in lst: a.e("s_load_dwordx2 %s, s[0:1], %d" % (sp(reg), off))

def prologue(a):
    if Opt.diag or Opt.pin >= 0 or Opt.probe >= 0:
        a.e("s_memrealtime %s" % sp(sSTAMP))
        if Opt.diag in (1, 2): a.e("s_memtime %s" % sp(sSTAMP + 2))
    ptr_loads(a, ((SX, 0), (SWG, 48), (SWU, 56), (SWQ, 8)))
    a.e("s_load_dwordx8 s[%d:%d], s[0:1], 64" % (SOUT, SOUT + 7))
    if not (Opt.diag or Opt.probe >= 0): ptr_loads(a, ((SWS, 96), (SWO, 32)))
    if Opt.probe == 1: a.stamp(1)
    a.e("v_lshrrev_b32 v2, 6, v0")
    if Opt.code_pf:
        a.e("s_getpc_b64 %s" % sp(sRET))
        a.lab("L_nopf")
        a.e("s_and_b32 s%d, s2, -8" % sA)
        a.e("v_add_lshl_u32 v3, v2, s%d, 7" % sA)
        a.e("v_readfirstlane_b32 s%d, v2" % sW)
        a.e("v_min_u32 v3, CODE_PF_MAX, v3")
        a.e("global_load_dword %s, v3, %s" % (v(vPOLL), sp(sRET)))
    else:
        a.e("s_nop 0")
        a.e("v_readfirstlane_b32 s%d, v2" % sW)
    if Opt.diag or Opt.probe >= 0:
        a.e("s_load_dwordx2 %s, s[0:1], 96" % sp(SWS))
    a.e("s_cmpk_ge_u32 s2, 256")
    a.e("s_cbranch_scc1 L_end")
    a.e("s_and_b32 s%d, s2, 1" % sD)
    a.e("s_bfe_u32 s%d, s2, 0x30003" % sA)
    a.e("s_lshl3_add_u32 s%d, s%d, s%d" % (sG, sD, sA))
    a.e("s_bfe_u32 s%d, s2, 0x20001" % sA)
    a.e("s_lshr_b32 s%d, s2, 6" % sB)
    a.e("s_lshl2_add_u32 s%d, s%d, s%d" % (sM, sA, sB))
    a.e("s_lshl_b32 s%d, s%d, 10" % (sWK, sW))
    a.e("s_cmp_ge_u32 s%d, 14" % sM)
    a.e("s_cbranch_scc1 L_light")

def xvoff(a, t):
    a.e("v_lshrrev_b32 v2, 4, %s" % v(t))
    a.e("v_xor_b32 v2, v2, %s" % v(t))
    a.e("v_and_b32 v2, 7, v2")
    a.e("s_lshl_b32 s%d, s%d, 17" % (sA, sG))
    a.e("v_lshl_add_u32 v2, v2, 4, s%d" % sA)
    a.e("v_lshrrev_b32 v3, 3, %s" % v(t))
    a.e("v_lshl_add_u32 %s, v3, 10, v2" % v(vDX))

def setup_ids(a):
    a.e("s_mov_b64 %s, %s" % (sp(SKV), sp(SWS)))
    a.e("s_mov_b64 %s, %s" % (sp(SWD), sp(SOUT)))
    a.e("s_mov_b64 %s, %s" % (sp(SOUT), sp(SOUT + 4)))
    a.e("s_mov_b64 %s, %s" % (sp(SDBG), sp(SOUT + 6)))
    a.e("v_and_b32 v0, 63, v0")
    a.e("v_lshlrev_b32 %s, 4, v0" % v(vL16))
    a.e("s_andn2_b32 s%d, 1, s2" % sA)
    a.e("s_bfe_u32 s%d, s2, 0x20001" % sB)
    a.e("s_lshl2_add_u32 s%d, s%d, s%d" % (sA, sA, sB))
    a.e("s_bfe_u32 s%d, s2, 0x20003" % sB)
    a.e("s_lshl2_add_u32 s%d, s%d, s%d" % (sT, sA, sB))
    a.e("s_lshr_b32 s%d, s2, 5" % sCB)

def setup_rd(a):
    a.e("s_lshr_b32 s%d, s%d, 2" % (sHI, sW))
    a.e("s_and_b32 s%d, s%d, 3" % (sLO, sW))
    a.e("v_and_b32 v2, 15, v0")
    a.e("v_lshrrev_b32 v3, 4, v0")
    a.e("v_bfe_u32 v4, v0, 1, 3")
    a.e("v_xor_b32 v4, v4, v3")
    a.e("v_lshlrev_b32 v4, 4, v4")
    a.e("v_lshl_add_u32 %s, v2, 7, v4" % v(vXA))
    a.e("v_bfe_u32 v2, v0, 2, 2")
    a.e("v_and_b32 v4, 3, v0")
    a.e("v_lshl_add_u32 %s, v3, 3, v2" % v(vQA))
    a.e("v_lshlrev_b32 %s, 6, %s" % (v(vQA), v(vQA)))
    a.e("v_xor_b32 v5, s%d, v3" % sHI)
    a.e("v_and_b32 v5, 1, v5")
    a.e("v_lshl_add_u32 %s, v5, 5, %s" % (v(vQA), v(vQA)))
    a.e("v_lshl_add_u32 %s, v4, 3, %s" % (v(vQA), v(vQA)))

def setup_oclr(a):
    srd_words(a, [SWS, SKV, SDBG])
    a.e("s_mov_b32 s%d, 0xffff" % sVM)
    a.e("s_mov_b32 s%d, 0xffff" % (sVM + 1))
    a.e("s_lshl_b32 s%d, s%d, 2" % (sA, sG))
    a.e("s_add_u32 s%d, s%d, s%d" % (sA, sA, sLO))
    a.e("s_lshl_b32 s%d, s%d, 5" % (sB, sA))
    a.e("s_lshl_b32 s%d, s%d, 1" % (sC, sHP))
    a.e("s_add_u32 s%d, s%d, s%d" % (sB, sB, sC))
    a.e("s_add_u32 s%d, s%d, s%d" % (sB, sB, sHI))
    a.e("s_lshl_b32 s%d, s%d, 10" % (sB, sB))
    a.e("s_add_u32 s%d, s%d, 0x%x" % (sOST, sB, WS_OF))
    for i in range(4): a.e("v_mov_b32 %s, -1" % v(vQ + i))
    a.vmop("buffer_store_dwordx4 %s, %s, %s, s%d offen sc1" % (v(vQ, 4), v(vL16), srd(SWS), sOST), "oclr")
    a.e("v_mov_b32 %s, 1" % v(vONE))
    a.e("v_mov_b32 %s, 0" % v(vZERO))
    a.e("v_and_b32 %s, 31, v0" % v(vGA))
    a.e("v_lshlrev_b32 %s, 2, %s" % (v(vGA), v(vGA)))

def collect(fn):
    t = Asm(); t.marks = {}
    def vmop(s_, tag):
        t.e(s_); t.marks[len(t.l) - 1] = tag
    t.vmop = vmop
    fn(t)
    return [(x, t.marks.get(i)) for i, x in enumerate(t.l)]
def put(a, items):
    for x, tag in items:
        if tag: a.vmop(x, tag)
        else: a.e(x)

def setup_attn(a):
    srd_words(a, [SWD, SWO, SOUT])
    a.e("s_lshl_b32 s%d, s%d, 2" % (sA, sG))
    a.e("s_add_u32 s%d, s%d, s%d" % (sA, sA, sLO))
    a.e("s_mul_i32 s%d, s%d, 112" % (sB, sA))
    a.e("s_lshl_b32 s%d, s%d, 3" % (sC, sM))
    a.e("s_add_u32 s%d, s%d, s%d" % (sB, sB, sC))
    a.e("s_lshl_b32 s%d, s%d, 2" % (sC, sHI))
    a.e("s_add_u32 s%d, s%d, s%d" % (sB, sB, sC))
    a.e("s_and_b32 s%d, s%d, 1" % (sC, sLO))
    a.e("s_lshl_b32 s%d, s%d, 1" % (sC, sC))
    a.e("s_add_u32 s%d, s%d, s%d" % (sB, sB, sC))
    a.e("s_lshl_b32 s%d, s%d, 10" % (sB, sB))
    a.e("s_add_u32 s%d, s%d, 0x%x" % (sHST, sB, WS_HF))
    a.e("s_mul_i32 s%d, s%d, %d" % (sC, sC, 112 * 1024))
    a.e("s_sub_u32 s%d, %d, s%d" % (sC, 112 * 1024, sC))
    a.e("s_add_u32 s%d, s%d, s%d" % (sHST2, sHST, sC))
    a.e("v_bfe_u32 v2, v0, 2, 2")
    a.e("v_lshrrev_b32 v3, 5, v0")
    a.e("v_lshl_add_u32 v2, v3, 2, v2")
    a.e("v_lshlrev_b32 v2, 6, v2")
    a.e("v_bfe_u32 v3, v0, 4, 1")
    a.e("v_lshl_add_u32 v2, v3, 5, v2")
    a.e("v_and_b32 v3, 3, v0")
    a.e("v_lshl_add_u32 v2, v3, 3, v2")
    a.e("s_lshr_b32 s%d, s%d, 1" % (sA, sW))
    a.e("s_lshl_b32 s%d, s%d, 11" % (sA, sA))
    a.e("v_add_u32 %s, s%d, v2" % (v(vWDA), sA))
    a.e("v_add_u32 %s, 0x%x, %s" % (v(vKVA), L_KV, v(vL16)))
    a.e("v_bfe_u32 v2, v0, 2, 3")
    a.e("v_lshlrev_b32 v2, 10, v2")
    a.e("v_lshrrev_b32 v3, 5, v0")
    a.e("v_lshl_add_u32 v2, v3, 6, v2")
    a.e("v_and_b32 v3, 3, v0")
    a.e("v_lshl_add_u32 v2, v3, 4, v2")
    a.e("s_lshl_b32 s%d, s%d, 7" % (sB, sCB))
    a.e("v_add_u32 %s, s%d, v2" % (v(vWDV), sB))
    a.e("v_min_u32 v2, 13, v0")
    a.e("v_lshlrev_b32 v2, 7, v2")
    a.e("s_lshr_b32 s%d, s%d, 1" % (sA, sT))
    a.e("s_lshl_b32 s%d, s%d, 11" % (sA, sA))
    a.e("s_add_u32 s%d, s%d, 0x%x" % (sA, sA, WS_HFLAG))
    a.e("v_add_u32 %s, s%d, v2" % (v(vFLA), sA))
    a.e("s_lshl_b32 s%d, s%d, 1" % (sA, sT))
    a.e("s_and_b32 s%d, s%d, 1" % (sB, sW))
    a.e("s_add_u32 s%d, s%d, s%d" % (sA, sA, sB))
    a.e("s_lshl_b32 s%d, s%d, 15" % (sB, sA))
    a.e("s_lshr_b32 s%d, s%d, 1" % (sKQ, sW))
    if Opt.kqx:
        a.e("s_lshl_b32 s%d, s%d, 1" % (sC, sCB))
        a.e("s_and_b32 s%d, s%d, 2" % (sC, sC))
        a.e("s_xor_b32 s%d, s%d, s%d" % (sKQ, sKQ, sC))
    a.e("s_lshl_b32 s%d, s%d, 13" % (sC, sKQ))
    a.e("s_add_u32 s%d, s%d, s%d" % (sB, sB, sC))
    a.e("s_add_u32 s%d, s%d, 0x%x" % (sOLD, sB, WS_OF))
    if Opt.pvz:
        a.e("s_mov_b32 s%d, 0x110000" % sA)
        a.e("s_mov_b32 s%d, 0x110000" % sB)
        a.e("v_mov_b32 v3, 0x3f803f80")
        a.e("v_cndmask_b32 v2, 0, v3, %s" % sp(sA))
    else:
        a.e("v_mov_b32 v2, 0x3f803f80")
    for i in range(16): a.e("v_mov_b32 %s, v2" % v(vV + i))
    for i in range(4): a.e("v_mov_b32 %s, v2" % v(vV1L + i))
    a.e("v_mov_b32 %s, 0xdddd" % v(vIDX))
    a.e("v_lshrrev_b32 v2, 4, v0")
    a.e("v_lshl_add_u32 %s, v2, 8, %s" % (v(vHA), v(vL16)))
    for i in range(16): a.e("v_mov_b32 %s, 0" % v(vO + i))
    for i in range(32): a.e("v_mov_b32 %s, 0" % v(vD + i))
    c0 = -2.0 * math.sqrt(2.0 / math.pi) * math.log2(math.e)
    a.e("v_mov_b32 %s, 0x%x" % (v(vC0), f2u(c0)))
    a.e("v_mov_b32 %s, 0x%x" % (v(vC0 + 1), f2u(c0 * 0.044715)))

def kv_first_loads(a, quartet=False):
    it = []
    for o in (range(0, 16384, 4096) if quartet else range(0, 16384, 8192)):
        b = sWH if quartet else sWK
        it.append(("s_add_u32 m0, s%d, 0x%x\ns_add_u32 s%d, s%d, 0x%x\nbuffer_load_dwordx4 %s, %s, s%d offen sc1 lds"
                   % (b, L_KV + o, sA, b, o, v(vL16), srd(SKV), sA), "kv%d" % (o >> 13)))
    it.append(("s_mov_b32 s%d, 0x%x\nbuffer_load_dwordx4 %s, %s, %s, s%d offen sc1"
               % (sA, 63 * 2048, v(vK0, 4), v(vL16), srd(SKV), sA), "k0"))
    it.append(("s_mov_b64 exec, %s\nbuffer_load_dwordx4 %s, %s, %s, 0 offen offset:%d sc1\ns_mov_b64 exec, -1"
               % (sp(sVM), v(vV1L, 4), v(vL16), srd(SKV), 1024 + 256), "k0"))
    it.append(("s_lshl_b32 s%d, s%d, 2\ns_add_u32 s%d, s%d, s%d\ns_lshl_b32 s%d, s%d, 7\ns_add_u32 s%d, s%d, 0x%x\n"
               "buffer_load_dword %s, %s, %s, s%d offen sc1"
               % (sA, sG, sA, sA, sLO, sA, sA, sA, sA, WS_G, v(vGP), v(vGA), srd(SWS), sA), "k0"))
    it.append(("s_lshl_b32 s%d, s%d, 1\ns_and_b32 s%d, s%d, 1\ns_add_u32 s%d, s%d, s%d\ns_lshl_b32 s%d, s%d, 7\ns_add_u32 s%d, s%d, 0x%x\n"
               "buffer_load_dword %s, %s, %s, s%d offen sc1"
               % (sA, sT, sB, sW, sA, sA, sB, sA, sA, sA, sA, WS_G, v(vGC), v(vGA), srd(SWS), sA), "k0"))
    return it

def spin_counter(a, name, first_loaded, wave=0):
    a.e("s_cmp_lg_u32 s%d, %d" % (sW, wave))
    a.e("s_cbranch_scc1 L_%s_done" % name)
    a.e("s_mov_b32 s%d, 0x4000" % sB)
    if first_loaded: a.e("s_branch L_%s_chk" % name)
    a.lab("L_%s_re" % name)
    a.e("buffer_load_dword %s, off, %s, 0 sc1" % (v(vPOLL), srd(SDBG)))
    a.e("s_waitcnt vmcnt(0)")
    a.lab("L_%s_chk" % name)
    a.e("v_readfirstlane_b32 s%d, %s" % (sA, v(vPOLL)))
    a.e("s_cmp_ge_u32 s%d, 32" % sA)
    a.e("s_cbranch_scc1 L_%s_done" % name)
    a.e("s_sleep 4")
    a.e("s_sub_u32 s%d, s%d, 1" % (sB, sB))
    a.e("s_cmp_lg_u32 s%d, 0" % sB)
    a.e("s_cbranch_scc1 L_%s_re" % name)
    a.lab("L_%s_done" % name)

def phase1_F(a):
    SCHED = {1: ["01423567", "10253467", "23016457", "32104756"],
             2: ["02134657", "01324576", "10243567", "10235467"],
             3: ["01324657", "01243576", "12035467", "20134567"],
             5: ["01243567", "10325467", "23014657", "32104576"],
             6: ["01243567", "10325467", "01234657", "10324576"],
             4: ["02143657", "10325476", "02143657", "10325476"]}
    tabs = SCHED[Opt.sched] if Opt.sched else ["".join(str(c ^ (p & Opt.xmask)) for c in range(8)) for p in range(4)]
    for t_ in tabs: assert sorted(t_) == list("01234567")
    num = [int(t_[::-1], 16) for t_ in tabs]
    def table(a):
        a.e("s_add_u32 s%d, s%d, s%d" % (sA, sG, sHP))
        a.e("s_mov_b32 s%d, 0x%x" % (sXP, num[0]))
        a.e("s_mov_b32 s%d, 0x%x" % (sB, num[2]))
        a.e("s_bitcmp1_b32 s%d, 0" % sA)
        a.e("s_cselect_b32 s%d, 0x%x, s%d" % (sXP, num[1], sXP))
        a.e("s_cselect_b32 s%d, 0x%x, s%d" % (sB, num[3], sB))
        a.e("s_bitcmp1_b32 s%d, 1" % sA)
        a.e("s_cselect_b32 s%d, s%d, s%d" % (sXP, sB, sXP))
        if Opt.ghx:
            a.e("s_bitcmp1_b32 s%d, 3" % sG)
            a.e("s_cselect_b32 s%d, 0x44444444, 0" % sB)
            a.e("s_xor_b32 s%d, s%d, s%d" % (sXP, sXP, sB))
    fo, fw = {"0000": (0, 0), "0101": (0, 1), "0011": (1, 1), "0123": (0, 2)}["".join(t_[0] for t_ in tabs)]
    a.e("s_add_u32 s%d, s%d, s%d" % (sA, sG, sHP))
    a.e("s_bfe_u32 s%d, s%d, 0x%x" % (sCH, sA, fw << 16 | fo))
    if Opt.ghx: a.e("s_lshl2_add_u32 s%d, s%d, s%d" % (sCH, sD, sCH))
    a.e("s_and_b32 s%d, s%d, 0xc00" % (sWH, sWK))
    a.e("v_and_b32 %s, 0xff, v0" % v(vTID))

    def wvoff(a):
        a.e("v_lshrrev_b32 v2, 4, %s" % v(vTID))
        a.e("v_lshrrev_b32 v3, 5, %s" % v(vTID))
        a.e("v_bfi_b32 v3, 3, v2, v3")
        a.e("v_lshlrev_b32 v3, 1, v3")
        a.e("v_xor_b32 v3, v3, %s" % v(vTID))
        a.e("v_and_b32 v3, 15, v3")
        a.e("s_lshl_b32 s%d, s%d, 8" % (sA, sM))
        a.e("v_lshl_add_u32 v3, v3, 4, s%d" % sA)
        a.e("v_mul_u32_u24 v2, 3584, v2")
        a.e("v_add_u32 %s, v2, v3" % v(vDG))
    def qvoff(a):
        a.e("v_lshrrev_b32 v2, 4, %s" % v(vTID))
        a.e("v_and_b32 v2, 2, v2")
        a.e("v_xor_b32 v2, v2, %s" % v(vTID))
        a.e("v_and_b32 v2, 3, v2")
        a.e("s_lshl_b32 s%d, s%d, 6" % (sA, sHP))
        a.e("v_lshl_add_u32 v2, v2, 4, s%d" % sA)
        a.e("v_lshrrev_b32 v3, 2, %s" % v(vTID))
        a.e("v_lshl_add_u32 %s, v3, 10, v2" % v(vDQ))
    def stouch(a):
        if Opt.diag or Opt.probe >= 0: a.e("s_load_dwordx2 %s, s[0:1], 32" % sp(SWO))
        if not Opt.stch: return
        a.e("s_lshr_b32 s%d, s%d, 2" % (sA, sW))
        if Opt.ghx: a.e("s_lshl2_add_u32 s%d, s%d, s%d" % (sA, sD, sA))
        a.e("s_lshl_b32 s%d, s%d, 6" % (sA, sA))
        a.e("s_and_b32 s%d, s%d, 7" % (sB, sG))
        a.e("s_add_u32 s%d, s%d, s%d" % (sA, sA, sB))
        a.e("s_mul_i32 s%d, s%d, 28" % (sA, sA))
        a.e("s_bfe_u32 s%d, s%d, 0x10001" % (sB, sW))
        a.e("s_lshl1_add_u32 s%d, s%d, s%d" % (sB, sM, sB))
        a.e("s_add_u32 s%d, s%d, s%d" % (sA, sA, sB))
        a.e("s_lshl_b32 s%d, s%d, 7" % (sA, sA))
        a.e("s_bitcmp1_b32 s%d, 0" % sW)
        a.e("s_cselect_b64 %s, %s, %s" % (sp(SWKV), sp(SWU), sp(SWG)))
        a.e("s_add_u32 s%d, s%d, s%d" % (SWKV, SWKV, sA))
        a.e("s_addc_u32 s%d, s%d, 0" % (SWKV + 1, SWKV + 1))
        for i in range(Opt.stch):
            a.e("s_load_dwordx2 %s, %s, 0x%x" % (sp(sTMPP), sp(SWKV), 128 * 3584 + i * 8 * 3584 + 60))
    def wsrd(a):
        srd_words(a, [SWG])
        a.e("s_mov_b64 %s, %s" % (sp(SWU + 2), sp(SWG + 2)))

    if Opt.hrot:
        ORDER = [("q", 0)] + [(t_, 2 * h_ + j) for h_ in range(2) for t_, j in (("x", 0), ("x", 1), ("g", 0), ("u", 0), ("g", 1), ("u", 1))]
    else:
        ORDER = [("q", 0)] + [("x", j) for j in range(4)] + [(t_, j) for j in range(4) for t_ in "gu"]
    def block(items):
        out = []; lastc = None; lastw = None
        for c, kind, j in items:
            s = c % 3; pre = []
            if c != lastc:
                if c: pre.append("s_bfe_u32 s%d, s%d, 0x%x" % (sCH, sXP, 0x30000 + 4 * c))
                lastc = c; lastw = None
            fam = "w" if kind in "gu" else kind
            rot = Opt.hrot and fam != "q"
            if lastw is None or lastw[0] != fam or (rot and lastw[1] >> 1 != j >> 1):
                pre.append({"q": "s_lshl_b32 s%d, s%d, 16" % (sOFFW, sCH), "x": "s_lshl_b32 s%d, s%d, 7" % (sOFFW, sCH),
                            "w": "s_mul_i32 s%d, s%d, %d" % (sOFFW, sCH, 64 * 3584)}[fam])
                if rot: pre.append("s_%s_u32 s%d, s%d, s%d" % ("sub" if j >> 1 else "add", sOFFW, sOFFW, sRX if fam == "x" else sRW))
                lastw = (fam, 0)
            if lastw[1] != j:
                pre.append("s_add_u32 s%d, s%d, 0x%x" % (sOFFW, sOFFW, (j - lastw[1]) * (0x8000 if fam == "x" else 16 * 3584)))
                lastw = (fam, j)
            m0c, vo, rs = {"q": (L_WQ + s * 4096, vDQ, SWQ), "x": (L_X + s * 16384 + j * 4096, vDX, SX),
                           "g": (L_G + s * 16384 + j * 4096, vDG, SWG), "u": (L_U + s * 16384 + j * 4096, vDG, SWU)}[kind]
            nt = " nt" if Opt.ntx & (1 if rs == SX else 2) else ""
            out.append(("s_add_u32 m0, s%d, 0x%x\n%s\nbuffer_load_dwordx4 %s, %s, s%d offen%s lds"
                        % ((sM0B + (j >> 1)) if rot else sWH, m0c, "\n".join(pre) or "s_nop 0", v(vo), srd(rs), sOFFW, nt), "c%d" % c))
        return out
    def part(c, role): return [(c, k_, j) for k_, j in ORDER if (k_ in "gu") == (role == "A")]

    def rdsetup(a):
        setup_rd(a)
        a.e("v_lshl_add_u32 %s, v3, 3, v2" % v(vWA))
        a.e("v_lshlrev_b32 %s, 8, %s" % (v(vWA), v(vWA)))
        a.e("v_lshl_add_u32 %s, v4, 3, %s" % (v(vWA), v(vWA)))
        a.e("v_and_b32 v5, 1, v3")
        a.e("v_lshl_add_u32 v2, v5, 2, v2")
        a.e("s_lshl_b32 s%d, s%d, 2" % (sA, sHI))
        a.e("s_and_b32 s%d, s%d, 1" % (sB, sLO))
        a.e("s_lshl_b32 s%d, s%d, 1" % (sB, sB))
        a.e("s_add_u32 s%d, s%d, s%d" % (sA, sA, sB))
        a.e("v_xor_b32 v2, s%d, v2" % sA)
        a.e("v_lshl_add_u32 %s, v2, 5, %s" % (v(vWA), v(vWA)))
        a.e("v_xor_b32 %s, 32, %s" % (v(vWA + 1), v(vWA)))
        a.e("v_add_u32 %s, 0x%x, %s" % (v(vWA + 2), L_U - L_G, v(vWA)))
        a.e("v_add_u32 %s, 0x%x, %s" % (v(vWA + 3), L_U - L_G, v(vWA + 1)))
        a.e("s_lshl_b32 s%d, s%d, 12" % (sA, sLO))
        a.e("s_add_u32 s%d, s%d, 0x%x" % (sA, sA, L_X))
        a.e("v_add_u32 %s, s%d, %s" % (v(vXA), sA, v(vXA)))
        a.e("v_xor_b32 %s, 0x1000, %s" % (v(vXA + 1), v(vXA)))
        a.e("v_xor_b32 %s, 64, %s" % (v(vXA + 2), v(vXA)))
        a.e("v_xor_b32 %s, 64, %s" % (v(vXA + 3), v(vXA + 1)))
        a.e("v_add_u32 %s, 0x%x, %s" % (v(vQA), L_WQ, v(vQA)))

    a.e("s_cmp_ge_u32 s%d, 4" % sW)
    a.e("s_cbranch_scc1 L_setB")
    late = collect(setup_oclr) + collect(setup_attn)
    words = collect(lambda t: srd_words(t, [SWS, SKV, SDBG, SWD, SWO, SOUT]))
    late = [x for x in late if x not in words]
    oclr = [x for x in late if x[1] == "oclr"]
    if Opt.olate: late = [x for x in late if x[1] != "oclr"]
    else: oclr = []
    words += [("v_mov_b32 %s, 0" % v(r_), None) for r_ in (vGA, vWDV, vFLA, vHA)]
    st = collect(rdsetup) + words + late[:Opt.fillpre]
    fills = {"A": late[Opt.fillpre:], "B": late[Opt.fillpre:]}
    vms = {}
    wsrd(a); wvoff(a)
    a.e("s_waitcnt lgkmcnt(0)")
    a.stamp(2)
    if Opt.spos == 0: stouch(a)
    put(a, block(part(0, "A")))
    a.e("s_branch L_setA")
    vms["A"] = a.vm; a.vm = []
    a.lab("L_setB")
    srd_words(a, [SX]); xvoff(a, vTID)
    a.e("s_waitcnt lgkmcnt(0)")
    a.stamp(2)
    if Opt.spos == 0: stouch(a)
    put(a, block(part(0, "B")[1:]))
    srd_words(a, [SWQ]); qvoff(a)
    put(a, block(part(0, "B")[:1]))
    vms["B"] = a.vm
    for role in "BA":
        a.vm = vms[role]
        if role == "A": a.lab("L_setA")
        if Opt.spos == 1: stouch(a)
        table(a)
        setup_ids(a)
        if role == "A": srd_words(a, [SX, SWQ])
        else: wsrd(a)
        def touches():
            tm = sum(0xff << (8 * i) for i in range(4) if Opt.tch >> i & 1)
            setex = "s_bitcmp1_b32 s%d, 3\ns_cselect_b32 exec_lo, 0, 0x%x\ns_cselect_b32 exec_hi, 0x%x, 0" % (sG, tm, tm) if Opt.ghx \
                    else "s_mov_b32 exec_lo, 0x%x\ns_mov_b32 exec_hi, 0" % tm
            if Opt.tlb & 2 and role == "B":
                a.e("s_and_b32 s%d, s%d, 7" % (sA, sG))
                a.e("v_lshl_add_u32 v2, v0, 3, s%d" % sA)
                a.e("v_mul_u32_u24 v3, 3584, v2")
                a.e("s_and_b32 s%d, s%d, 1" % (sB, sW))
                a.e("s_lshl1_add_u32 s%d, s%d, s%d" % (sA, sM, sB))
                a.e("s_lshl_b32 s%d, s%d, 7" % (sA, sA))
                a.e(setex)
                a.e("s_cmp_ge_u32 s%d, 6" % sW)
                a.e("s_cbranch_scc1 L_tlbu")
                a.e("buffer_load_dword %s, v3, %s, s%d offen" % (v(vPOLL), srd(SWG), sA))
                a.e("s_branch L_tlbe")
                a.lab("L_tlbu")
                a.e("buffer_load_dword %s, v3, %s, s%d offen" % (v(vPOLL), srd(SWU), sA))
                a.lab("L_tlbe")
                a.e("s_mov_b64 exec, -1")
                a.vm.append("tlb")
            if Opt.tlb & 12 and role == "A":
                a.e("s_cmp_lg_u32 s%d, 0" % sW)
                a.e("s_cbranch_scc1 L_tlbx")
                a.e("s_and_b32 s%d, s%d, 7" % (sA, sG))
                a.e("v_lshl_add_u32 v2, v0, 3, s%d" % sA)
                a.e("v_lshlrev_b32 v3, 10, v2")
                a.e("s_lshl_b32 s%d, s%d, 6" % (sA, sHP))
                a.e(setex if Opt.tlb & 4 else "s_mov_b64 exec, 1")
                a.e("buffer_load_dword %s, v3, %s, s%d offen" % (v(vPOLL), srd(SWQ), sA))
                a.e("s_branch L_tlby")
                a.lab("L_tlbx")
                a.e("s_and_b32 s%d, s%d, 3" % (sA, sM))
                a.e("s_lshl2_add_u32 s%d, s%d, s%d" % (sA, sG, sA))
                a.e("s_lshl_b32 s%d, s%d, 15" % (sA, sA))
                a.e("v_lshl_add_u32 v3, v0, 10, s%d" % sA)
                a.e("s_lshr_b32 s%d, s%d, 3" % (sA, sG))
                a.e("s_lshl2_add_u32 s%d, s%d, s%d" % (sA, sA, sW) if Opt.ghx else "s_mov_b32 s%d, s%d" % (sA, sW))
                a.e("s_lshl_b32 s%d, s%d, 7" % (sA, sA))
                a.e("s_bitcmp1_b32 %d, s%d" % (Opt.tch if Opt.tlb & 8 else 0, sW))
                a.e("s_cselect_b32 exec_lo, -1, 1")
                a.e("s_mov_b32 exec_hi, 0")
                a.e("buffer_load_dword %s, v3, %s, s%d offen" % (v(vPOLL), srd(SX), sA))
                a.lab("L_tlby")
                a.e("s_mov_b64 exec, -1")
                a.vm.append("tlb")
        if Opt.tpos == 0: touches()
        if Opt.startbar: a.e("s_barrier")
        npre = min(Opt.npre, 8) if role == "A" else 5
        pn = block(part(1, role)[:npre])
        rest = st + (collect(qvoff) + collect(lambda t: xvoff(t, vTID)) if role == "A" else collect(wvoff))
        gap = len(rest) // (npre + Opt.pregap) + 1
        if Opt.tpos == 2:
            put(a, pn); touches(); npre = 0
        if Opt.tpos == 3 and role == "B":
            put(a, pn); touches(); npre = 0
        for i in range(npre):
            put(a, pn[:1]); pn = pn[1:]
            put(a, rest[:gap]); rest = rest[gap:]
        put(a, rest)
        if Opt.tpos == 1 or (Opt.tpos == 3 and role == "A"): touches()
        a.e("s_mov_b64 vcc, %d" % (-1 if role == "A" else 0))
        if role == "A":
            a.waitvm("c0", lgkm=True)
        else:
            a.e("s_setprio 1")
            a.waitvm("c0", lgkm=True)
            a.e("s_branch L_k0")
        vms[role] = a.vm
    stream = part(1, "A")[min(Opt.npre, 8):] + [(c, k_, j) for c in range(2, 8) for k_, j in ORDER]
    qa = [int(x, 16) for x in Opt.qa]; qb = [int(x, 16) for x in Opt.qb]
    def take(n, cmax):
        m = 0
        while m < n and m < len(stream) and stream[m][0] <= cmax: m += 1
        r_ = stream[:m]; del stream[:m]
        return block(r_)
    a.lab("L_k0")
    a.vm = vms["A"]
    ool = Asm()
    def dmablock(name, role, items, wait=None):
        a.e("s_cbranch_vcc%s L_%s" % ("nz" if role == "A" else "z", name))
        if wait: a.waitvm(wait, lgkm=True)
        a.lab("L_%s_r" % name)
        ool.lab("L_%s" % name)
        ool.vm = a.vm if role == "A" else vms["B"]
        for it_ in items:
            put(ool, [it_])
            put(ool, fills[role][:Opt.fillper]); fills[role] = fills[role][Opt.fillper:]
        if name in ("d7", "e7"): put(ool, fills[role]); fills[role] = []
        if wait: ool.waitvm(wait, lgkm=True)
        if role == "B": vms["B"] = ool.vm
        ool.e("s_branch L_%s_r" % name)
    a.ool = ool.l

    def fr(k):
        b = vF1 + 36 * (k % 2)
        return dict(x=b, w=b + 16, q=b + 32)
    def reads(k):
        c, s = divmod(k, 2); f = fr(k); sl = c % 3
        wo = sl * 16384 + s * 8192
        W = lambda i: [rdtr(f['w'] + 4 * i, vWA + i, wo), rdtr(f['w'] + 4 * i + 2, vWA + i, wo + 1024)]
        X = [rd128(f['x'] + 4 * b, vXA + 2 * s + (b >> 1), sl * 16384 + (b & 1) * 2048) for b in range(4)]
        return W(0) + X + W(2) + W(1) + W(3) + [rdtr(f['q'], vQA, sl * 4096 + s * 2048), rdtr(f['q'] + 2, vQA, sl * 4096 + s * 2048 + 256)]
    a.e("s_barrier")
    a.stamp(3)
    if Opt.kdiag or Opt.probe >= 18:
        kstamp(a, 2)
        a.e("s_waitcnt lgkmcnt(0)")
    for r in reads(0): a.e(r)
    if qa[0]: dmablock("d2", "A", take(qa[0], 2))
    for k in range(16):
        c, s = divmod(k, 2); f = fr(k)
        z = lambda x: None if k == 0 else x
        mf = []
        for n_, i in enumerate((0, 2, 1, 3)):
            for b in (range(4) if n_ % 2 == 0 else range(3, -1, -1)):
                d = vACC + 16 * b + 4 * i
                mf.append(mfma16(d, f['w'] + 4 * i, f['x'] + 4 * b, z(d)))
        for b in range(2): mf.append(mfma16(vAQ + 4 * b, f['q'], f['x'] + 4 * b, z(vAQ + 4 * b)))
        rds = reads(k + 1) if k < 15 else []
        if s == 0:
            a.e("s_waitcnt lgkmcnt(6)")
            for i, m in enumerate(mf):
                if i == 8: a.e("s_waitcnt lgkmcnt(8)")
                a.e(m)
                if i < len(rds): a.e(rds[i])
            continue
        a.e("s_waitcnt lgkmcnt(8)")
        for m in mf[:4]: a.e(m)
        if c <= 5:
            dmablock("e%d" % (c + 2), "B", take(qb[c], c + 2), "c%d" % (c + 1))
            assert not any(x[0] <= c + 1 for x in stream)
        if c == 7:
            a.e("s_waitcnt lgkmcnt(0)")
        elif c == 6:
            a.e("s_waitcnt lgkmcnt(0)")
            a.e("s_cbranch_vccz L_st7")
            a.e("s_setprio 1")
            a.e("s_waitcnt vmcnt(0)")
            a.e("s_barrier")
            a.lab("L_st7")
        else:
            a.e("s_barrier")
        if c < 7 and ((Opt.kdiag == 1 and Opt.diag) or Opt.probe == 21 + c):
            kstamp(a, 3 + c)
            a.e("s_waitcnt lgkmcnt(0)")
        if c + 3 < 8:
            items = take(qa[c + 1], c + 3)
            dmablock("d%d" % (c + 3), "A", items)
        for i, m in enumerate(mf[4:]):
            a.e(m)
            if i < len(rds): a.e(rds[i])
        if k == 11: assert not stream and not fills["A"] and not fills["B"]
        if k == 11:
            a.e("s_cbranch_vccnz L_st6")
            a.e("s_setprio 0")
            spin_counter(a, "kvf", False, 4)
            a.wait0()
            a.e("s_barrier")
            put(a, kv_first_loads(a, True) + oclr)
            a.lab("L_st6")
    a.kvA = (kv_first_loads(a) + oclr)[2:]
    a.stamp(4)

def phase1_L(a):
    a.lab("L_light")
    a.vm = []
    a.e("s_waitcnt lgkmcnt(0)")
    ptr_loads(a, ((SWKV, 16), (SWV, 24), (SGATE, 72), (SWO, 32)))
    srd_words(a, [SWKV, SWV, SGATE, SX])
    xvoff(a, 0)
    a.e("v_and_b32 v2, 63, v0")
    a.e("v_lshlrev_b32 %s, 4, v2" % v(vL16))
    a.e("s_sub_u32 s%d, s%d, 14" % (sCNT, sM))
    a.e("s_lshl_b32 s%d, s%d, 16" % (sOLD, sCNT))
    a.e("s_lshl_b32 s%d, s%d, 13" % (sHST, sCNT))
    a.e("s_add_u32 s%d, s%d, s%d" % (sWH, sHST, sWK))
    a.e("s_xor_b32 s%d, s%d, 0x2000" % (sHST, sHST))
    a.e("s_add_u32 s%d, s%d, 0x2000" % (sA, sWK))
    a.e("s_waitcnt lgkmcnt(0)")
    a.stamp(2)
    def xdma(c, base, so):
        a.vmop("s_add_u32 m0, s%d, 0x%x\ns_nop 0\nbuffer_load_dwordx4 %s, %s, s%d offen offset:%d lds"
               % (base, LL_X + c * 16384 - c * 128, v(vDX), srd(SX), so, c * 128), "c%d" % c)
    def wdma(u):
        for t, rs in enumerate((SWKV, SWV)):
            a.vmop("s_add_u32 m0, s%d, 0x%x\ns_nop 0\nbuffer_load_dwordx4 %s, %s, s%d offen lds"
                   % (sWK, LL_W + t * 16384 + u * 8192, v(vL16), srd(rs), sA if u else sWK), "w")
    wdma(0)
    a.vmop("s_mov_b32 m0, s%d\ns_nop 0\nbuffer_load_dwordx4 %s, %s, 0 offen lds" % (sHST, v(vL16), srd(SGATE)), "w")
    for c in range(8):
        if c == 4: wdma(1)
        xdma(c, sWH, sOLD)
        if c in (1, 3, 5): a.e("s_barrier")
    setup_ids(a)
    srd_words(a, [SWQ])
    setup_rd(a)
    a.e("v_lshrrev_b32 v3, 5, v0")
    a.e("v_bfrev_b32 v5, v4")
    a.e("v_lshrrev_b32 v5, 30, v5")
    a.e("s_cmp_ge_u32 s%d, 2" % sLO)
    a.e("s_cselect_b64 vcc, -1, 0")
    a.e("v_cndmask_b32 v4, v5, v4, vcc")
    a.e("v_lshl_add_u32 %s, v3, 3, v2" % v(vWA))
    a.e("v_lshlrev_b32 %s, 5, %s" % (v(vWA), v(vWA)))
    a.e("v_lshl_add_u32 %s, v4, 3, %s" % (v(vWA), v(vWA)))
    a.e("s_lshr_b32 s%d, s%d, 1" % (sA, sLO))
    a.e("s_lshl_b32 s%d, s%d, 14" % (sA, sA))
    a.e("s_add_u32 s%d, s%d, 0x%x" % (sA, sA, LL_W))
    a.e("v_add_u32 %s, s%d, %s" % (v(vWA), sA, v(vWA)))
    a.e("v_lshl_add_u32 %s, v3, 4, s%d" % (v(vWA + 1), sHST))
    a.e("s_and_b32 s%d, s%d, 1" % (sA, sLO))
    a.e("s_lshl_b32 s%d, s%d, 1" % (sB, sCNT))
    a.e("s_add_u32 s%d, s%d, s%d" % (sCNT, sA, sB))
    a.e("s_lshl_b32 s%d, s%d, 12" % (sA, sCNT))
    a.e("v_and_b32 v2, 31, v0")
    a.e("v_lshrrev_b32 v4, 1, v0")
    a.e("v_lshlrev_b32 v5, 1, v0")
    a.e("v_bfi_b32 v4, 4, v4, v5")
    a.e("v_bfi_b32 v4, 12, v4, v2")
    a.e("v_cndmask_b32 v2, v2, v4, vcc")
    a.e("v_bfe_u32 v4, v2, 1, 3")
    a.e("v_xor_b32 v4, v4, v3")
    a.e("v_lshlrev_b32 v4, 4, v4")
    a.e("v_lshl_add_u32 v4, v2, 7, v4")
    a.e("v_add_u32 %s, s%d, v4" % (v(vLX), sA))
    for s in range(1, 4): a.e("v_xor_b32 %s, %d, %s" % (v(vLX + s), 32 * s, v(vLX)))
    for s in range(4): a.e("v_add_u32 %s, 0x10000, %s" % (v(vLX + 4 + s), v(vLX + s)))
    a.e("s_waitcnt lgkmcnt(0)")
    setup_oclr(a)
    vm0 = list(a.vm)
    a.e("s_cmp_lg_u32 s%d, 0" % sHI)
    a.e("s_cbranch_scc1 L_lB")
    a.e("s_not_b64 %s, %s" % (sp(sTMPP), sp(sVM)))
    a.e("s_cmp_ge_u32 s%d, 2" % sLO)
    a.e("s_cbranch_scc1 L_lV")
    def chain(kind):
        a.vm = list(vm0)
        def fr(k):
            b = vFR + 8 * (k % 4)
            return b, b + 4
        def reads(k):
            c, s = divmod(k, 4); x, w = fr(k)
            r = [rd128(x, vLX + s + 4 * (c >> 2), (c & 3) * 16384), rdtr(w, vWA, k * 512), rdtr(w + 2, vWA, k * 512 + 128)]
            if kind == "K":
                r += ["s_mov_b64 exec, %s" % sp(sTMPP), rd128(w, vWA + 1, k * 32), "s_mov_b64 exec, -1"]
            return r
        for q in range(4):
            a.waitvm("c%d" % (2 * q + 1))
            a.e("s_barrier")
            nr = 4 if kind == "K" else 3
            for k in range(8 * q, 8 * q + 2):
                for r in reads(k): a.e(r)
            for k in range(8 * q, 8 * q + 8):
                if k + 2 < 8 * q + 8:
                    for r in reads(k + 2): a.e(r)
                left = min(2, 8 * q + 7 - k)
                a.e("s_waitcnt lgkmcnt(%d)" % (left * nr))
                x, w = fr(k)
                cc = None if k == 0 else vACC
                a.e(mfma(vACC, w, x, cc) if kind == "K" else mfma(vACC, x, w, cc))
        a.e("s_lshl_b32 s%d, s%d, 2" % (sA, sG))
        a.e("s_add_u32 s%d, s%d, s%d" % (sA, sA, sCNT))
        a.e("s_nop 12")
        if kind == "K":
            a.e("s_mov_b32 s%d, 0x%x" % (sC, f2u(0.25 * math.log2(math.e))))
            for i in range(8): a.e("v_mul_f32 %s, s%d, %s" % (v(vACC + i), sC, v(vACC + i)))
            a.e("v_mul_f32 %s, 0x%x, %s" % (v(vACC + 8), f2u(-math.log2(math.e)), v(vACC + 8)))
            a.e("v_exp_f32 %s, %s" % (v(vACC + 8), v(vACC + 8)))
            for i in range(4): a.e("v_cvt_pk_bf16_f32 %s, %s, %s" % (v(vFR + i), v(vACC + 2 * i), v(vACC + 2 * i + 1)))
            a.e("v_add_f32 %s, 1.0, %s" % (v(vACC + 8), v(vACC + 8)))
            a.e("v_rcp_f32 %s, %s" % (v(vACC + 8), v(vACC + 8)))
            a.e("s_add_u32 s%d, s%d, 63" % (sB, sA))
            a.e("s_and_b32 s%d, s%d, 63" % (sB, sB))
            a.e("s_lshl_b32 s%d, s%d, 11" % (sB, sB))
            a.e("buffer_store_dwordx4 %s, %s, %s, s%d offen sc1" % (v(vFR, 4), v(vL16), srd(SKV), sB))
            a.e("s_lshl_b32 s%d, s%d, 7" % (sB, sA))
            a.e("s_add_u32 s%d, s%d, 0x%x" % (sB, sB, WS_G))
            a.e("s_mov_b32 exec_hi, 0")
            a.e("buffer_store_dword %s, %s, %s, s%d offen sc1" % (v(vACC + 8), v(vGA), srd(SWS), sB))
            a.e("s_mov_b64 exec, -1")
        else:
            for i in range(8): a.e("v_cvt_pk_bf16_f32 %s, %s, %s" % (v(vFR + i), v(vACC + 2 * i), v(vACC + 2 * i + 1)))
            a.e("v_bfe_u32 v2, v0, 4, 1")
            a.e("v_add_u32 v2, s%d, v2" % sA)
            a.e("v_and_b32 v2, 63, v2")
            a.e("v_lshl_add_u32 v2, v2, 11, %s" % v(vL16))
            for i in range(4): a.e("v_cndmask_b32 %s, %s, %s, %s" % (v(vFR + i), v(vFR + 4 + i), v(vFR + i), sp(sVM)))
            a.e("buffer_store_dwordx4 %s, v2, %s, 0 offen offset:1024 sc1" % (v(vFR, 4), srd(SKV)))
        a.e("s_branch L_lJ")
    chain("K")
    a.lab("L_lV")
    chain("V")
    a.lab("L_lB")
    a.vm = list(vm0)
    a.e("s_cmp_lg_u32 s%d, 14" % sM)
    a.e("s_cbranch_scc1 L_nozf")
    a.e("s_cmp_lg_u32 s%d, 4" % sW)
    a.e("s_cbranch_scc1 L_nozf")
    a.e("v_lshlrev_b32 v2, 7, v0")
    a.e("s_lshl_b32 s%d, s%d, 11" % (sA, sG))
    a.e("s_add_u32 s%d, s%d, 0x%x" % (sA, sA, WS_HFLAG))
    a.e("s_mov_b64 exec, 0xffff")
    a.e("buffer_store_dword %s, v2, %s, s%d offen sc1" % (v(vZERO), srd(SWS), sA))
    a.e("s_mov_b64 exec, -1")
    a.lab("L_nozf")
    for q in range(4):
        a.waitvm("c%d" % (2 * q + 1))
        a.e("s_barrier")
    a.lab("L_lJ")
    a.e("v_lshrrev_b32 v3, 2, v0")
    a.e("v_lshlrev_b32 v3, 10, v3")
    a.e("v_lshrrev_b32 v4, 5, v0")
    a.e("v_lshlrev_b32 v4, 1, v4")
    a.e("v_xor_b32 v4, v4, v0")
    a.e("v_and_b32 v4, 3, v4")
    a.e("v_lshl_add_u32 v3, v4, 4, v3")
    a.e("s_lshl_b32 s%d, s%d, 14" % (sA, sW))
    a.e("s_lshl_b32 s%d, s%d, 6" % (sB, sHP))
    a.e("s_add_u32 s%d, s%d, s%d" % (sA, sA, sB))
    a.e("v_add_u32 %s, s%d, v3" % (v(vDQ), sA))
    a.e("s_xor_b32 s%d, s%d, 0x2000" % (sWH, sWH))
    a.e("s_xor_b32 s%d, s%d, 0x10000" % (sOLD, sOLD))
    a.wait0(lgkm=True)
    a.e("s_barrier")
    a.e("s_cmp_lg_u32 s%d, 0" % sW)
    a.e("s_cbranch_scc1 L_noat")
    a.e("s_mov_b64 exec, 1")
    a.e("buffer_atomic_add %s, off, %s, 0 sc1" % (v(vONE), srd(SDBG)))
    a.e("s_mov_b64 exec, -1")
    a.lab("L_noat")
    a.stamp(3)
    for c in range(8): xdma(c, sWH, sOLD)
    for p in range(4):
        a.e("s_add_u32 m0, s%d, 0x%x" % (sWK, LL_WQ + p * 8192))
        a.e("s_mov_b32 s%d, 0x%x" % (sA, p * 128 * 1024))
        a.e("buffer_load_dwordx4 %s, %s, s%d offen lds" % (v(vDQ), srd(SWQ), sA))
    setup_attn(a)
    if Opt.touch & 2:
        a.e("s_lshl_b32 s%d, s%d, 1" % (sA, sG))
        a.e("s_add_u32 s%d, s%d, s%d" % (sA, sA, sM))
        a.e("s_sub_u32 s%d, s%d, 14" % (sA, sA))
        a.e("s_lshl_b32 s%d, s%d, 3" % (sA, sA))
        a.e("s_add_u32 s%d, s%d, s%d" % (sA, sA, sW))
        a.e("v_lshlrev_b32 v2, 15, v0")
        a.e("s_lshl_b32 s%d, s%d, 7" % (sA, sA))
        a.e("buffer_load_dword %s, v2, %s, s%d offen" % (v(vPOLL), srd(SWO), sA))
        a.e("buffer_load_dword %s, v2, %s, s%d offen" % (v(vPOLL), srd(SWD), sA))
    a.e("s_lshl_b32 s%d, s%d, 12" % (sA, sLO))
    a.e("v_add_u32 %s, s%d, %s" % (v(vXA), sA, v(vXA)))
    a.e("v_xor_b32 %s, 64, %s" % (v(vXA + 1), v(vXA)))
    a.e("v_add_u32 %s, 0x10000, %s" % (v(vXA + 2), v(vXA)))
    a.e("v_add_u32 %s, 0x10000, %s" % (v(vXA + 3), v(vXA + 1)))
    a.e("v_add_u32 %s, 0x%x, %s" % (v(vQA), LL_WQ, v(vQA)))
    a.e("s_waitcnt vmcnt(%d)" % (2 if Opt.touch & 2 else 0))
    a.e("s_barrier")
    def fr(k): return vFR + 12 * (k % 3)
    def reads(k):
        c, s = divmod(k, 2); f = fr(k)
        return [rd128(f + 4 * b, vXA + s + 2 * (c >> 2), (c & 3) * 16384 + b * 2048) for b in range(2)] + \
               [rdtr(f + 8, vQA, k * 2048), rdtr(f + 10, vQA, k * 2048 + 256)]
    for k in range(2):
        for r in reads(k): a.e(r)
    for k in range(16):
        a.e("s_waitcnt lgkmcnt(%d)" % (4 * min(1, 15 - k)))
        for b in range(2): a.e(mfma16(vAQ + 4 * b, fr(k) + 8, fr(k) + 4 * b, None if k == 0 else vAQ + 4 * b))
        if k + 2 < 16:
            for r in reads(k + 2): a.e(r)
    spin_counter(a, "kvl", False)
    a.e("s_barrier")
    for s, t in kv_first_loads(a): a.e(s)
    a.wait0()
    a.stamp(4)
    a.e("s_branch L_join")

def gelu_tile(a, ti, scalar=False):
    acc = vACC + 16 * ti
    t = vFR
    o = vFR + 8 + 4 * ti
    pk = lambda r: v(r, 2)
    if scalar:
        for i in range(8): a.e("v_mul_f32 %s, %s, %s" % (v(t + i), v(acc + i), v(acc + i)))
        for i in range(8): a.e("v_fma_f32 %s, %s, %s, %s" % (v(t + i), v(t + i), v(vC0 + 1), v(vC0)))
        for i in range(8): a.e("v_mul_f32 %s, %s, %s" % (v(t + i), v(t + i), v(acc + i)))
        for i in range(8): a.e("v_exp_f32 %s, %s" % (v(t + i), v(t + i)))
        for i in range(8): a.e("v_add_f32 %s, 1.0, %s" % (v(t + i), v(t + i)))
        for i in range(8): a.e("v_rcp_f32 %s, %s" % (v(t + i), v(t + i)))
        for i in range(8): a.e("v_mul_f32 %s, %s, %s" % (v(acc + i), v(acc + i), v(acc + 8 + i)))
        for i in range(8): a.e("v_mul_f32 %s, %s, %s" % (v(acc + i), v(acc + i), v(t + i)))
    R4, R8 = (range(0), range(0)) if scalar else (range(4), range(8))
    for i in R4: a.e("v_pk_mul_f32 %s, %s, %s" % (pk(t + 2 * i), pk(acc + 2 * i), pk(acc + 2 * i)))
    for i in R4: a.e("v_pk_fma_f32 %s, %s, %s, %s op_sel:[0,1,0] op_sel_hi:[1,1,0]" % (pk(t + 2 * i), pk(t + 2 * i), pk(vC0), pk(vC0)))
    for i in R4: a.e("v_pk_mul_f32 %s, %s, %s" % (pk(t + 2 * i), pk(t + 2 * i), pk(acc + 2 * i)))
    for i in R8: a.e("v_exp_f32 %s, %s" % (v(t + i), v(t + i)))
    for i in R4: a.e("v_pk_add_f32 %s, %s, 1.0 op_sel_hi:[1,0]" % (pk(t + 2 * i), pk(t + 2 * i)))
    for i in R8: a.e("v_rcp_f32 %s, %s" % (v(t + i), v(t + i)))
    for i in R4: a.e("v_pk_mul_f32 %s, %s, %s" % (pk(acc + 2 * i), pk(acc + 2 * i), pk(acc + 8 + 2 * i)))
    for i in R4: a.e("v_pk_mul_f32 %s, %s, %s" % (pk(acc + 2 * i), pk(acc + 2 * i), pk(t + 2 * i)))
    for i in range(4): a.e("v_cvt_pk_bf16_f32 %s, %s, %s" % (v(o + i), v(acc + 2 * i), v(acc + 2 * i + 1)))
    a.vmop("buffer_store_dwordx4 %s, %s, %s, s%d offen offset:%d sc1" % (v(o, 4), v(vHA), srd(SWS), sHST2 if ti >> 1 else sHST, (ti & 1) * 256), "hst")

def Yseg(hset, toggle=False):
    out = []
    pos = [int(x, 17) for x in (Opt.ypos0 if hset is None else Opt.ypos1)]
    for t in range(2):
        S, Sn = vS + 16 * t, vS + 16 * (1 - t)
        K, V0, V1 = vKF + 4 * t, vV + 8 * t, vV + 8 * t + 4
        for e in range(1, 17):
            out.append("v_exp_f32 %s, %s" % (v(S + e - 1), v(S + e - 1)))
            if e == pos[0]: out.append(smfmac(vO, V1, Sn + 8))
            if e == pos[1]: out.append(mfma(Sn, K, vQ, None))
            if e == pos[2]: out.append(smfmac(vO, V0, S))
            if hset is not None:
                if e == 13 and t == 1 and toggle:
                    out.append("v_xor_b32 %s, 0x4000, %s" % (v(vKVA), v(vKVA)))
                    out.append("v_xor_b32 %s, 0x8000, %s" % (v(vWDA), v(vWDA)))
                if e == pos[3]: out.append(mfma(vD + 16 * t, vWF + 4 * t, vH + 4 * hset, vD + 16 * t))
    return out

def kv_reads(off):
    r = [rd128(vKF, vKVA, off), rd128(vKF + 4, vKVA, off + 2048), "s_mov_b64 exec, %s" % sp(sVM)]
    for t in range(2):
        r += [rd128(vV + 8 * t, vKVA, off + 2048 * t + 1024), rd128(vV + 8 * t + 4, vKVA, off + 2048 * t + 1280)]
    r.append("s_mov_b64 exec, -1")
    return r
def wd_reads(dst, addr, off):
    r = []
    for c in range(2):
        r += [rdtr(dst + 4 * c, addr, off + 512 * c), rdtr(dst + 4 * c + 2, addr, off + 512 * c + 1024)]
    return r

def wdrow(sg): return (32 * (sg >> 1) + 8 * (sg & 1)) * 1024

def attention(a, role, pre0=None):
    A = role == "A"
    def kvdma(u):
        a.vmop("s_add_u32 m0, s%d, 0x%x\ns_add_u32 s%d, s%d, 0x%x\nbuffer_load_dwordx4 %s, %s, s%d offen sc1 lds"
               % (sWK, L_KV + (u % 4) * 8192, sA, sWK, u * 8192, v(vL16), srd(SKV), sA), "kv%d" % u)
    def wddma(sg):
        a.vmop("s_add_u32 m0, s%d, 0x%x\ns_add_u32 s%d, s%d, 0x%x\nbuffer_load_dwordx4 %s, %s, s%d offen lds"
               % (sWK, L_WD + ((sg + 3) % 8) * 8192, sA, sWDOFF, wdrow(sg), v(vWDV), srd(SWD), sA), "wd%d" % sg)
    def wodma(j):
        a.vmop("s_add_u32 m0, s%d, 0x%x\ns_add_u32 s%d, s%d, 0x%x\nbuffer_load_dwordx4 %s, %s, s%d offen lds"
               % (sWK, L_WO + j * 8192, sA, sB, j * 16384, v(vWDV), srd(SWO), sA), "wo")
    def hload(sg, dst):
        a.vmop("s_add_u32 s%d, s%d, 0x%x\nbuffer_load_dwordx4 %s, %s, %s, s%d offen sc1"
               % (sA, sHOFF, sg * 1024, v(dst, 4), v(vL16), srd(SWS), sA), "h%d" % sg)
    for n in range(11):
        if not A and n == 0: a.e("s_barrier")
        if n % 2 == 1: astamp(a, 2 + n // 2)
        tags = []
        if A and n % 2 == 1: tags.append("kv%d" % ((n + 1) // 2))
        if not A and n % 2 == 0: tags.append("kv%d" % ((n + 2) // 2))
        if n == (3 if A else 2): tags.append("hst")
        if n == 10: tags.append("wd0")
        if n == 8 and A:
            a.e("s_cmp_lg_u32 s%d, 0" % sW)
            a.e("s_cbranch_scc1 L_hf_done")
            a.e("s_mov_b32 s%d, 0x4000" % sB)
            a.e("s_waitcnt vmcnt(2)")
            a.lab("L_hf_chk")
            a.e("v_cmp_ne_u32 vcc, 1, %s" % v(vPOLL))
            a.e("s_cbranch_vccz L_hf_done")
            a.e("s_sleep 2")
            a.e("buffer_load_dword %s, %s, %s, 0 offen sc1" % (v(vPOLL), v(vFLA), srd(SWS)))
            a.e("s_sub_u32 s%d, s%d, 1" % (sB, sB))
            a.e("s_cmp_lg_u32 s%d, 0" % sB)
            a.e("s_waitcnt vmcnt(0)")
            a.e("s_cbranch_scc1 L_hf_chk")
            a.lab("L_hf_done")
        a.waitvm(tags)
        if n == 5 and Opt.diag == 3 and A:
            a.e("v_mov_b32 v2, s%d" % sSTAMP)
            a.e("s_lshl_b32 s%d, s2, 3" % sA)
            a.e("s_add_u32 s%d, s%d, s%d" % (sA, sA, sW))
            a.e("s_lshl_b32 s%d, s%d, 7" % (sA, sA))
            a.e("s_add_u32 s%d, s%d, 0x%x" % (sA, sA, WS_STAMP))
            a.e("s_mov_b64 exec, 1")
            a.vmop("buffer_store_dword v2, off, %s, s%d offset:12 sc1" % (srd(SWS), sA), "st")
            a.e("s_mov_b64 exec, -1")
        if n == 3 and not A:
            a.e("s_cmp_ge_u32 s%d, 14" % sM)
            a.e("s_cbranch_scc1 L_nohf")
            a.e("s_cmp_lg_u32 s%d, 4" % sW)
            a.e("s_cbranch_scc1 L_nohf")
            a.e("s_lshl_b32 s%d, s%d, 4" % (sA, sG))
            a.e("s_add_u32 s%d, s%d, s%d" % (sA, sA, sM))
            a.e("s_lshl_b32 s%d, s%d, 7" % (sA, sA))
            a.e("s_add_u32 s%d, s%d, 0x%x" % (sA, sA, WS_HFLAG))
            a.e("s_mov_b64 exec, 1")
            a.e("buffer_store_dword %s, off, %s, s%d sc1" % (v(vONE), srd(SWS), sA))
            a.e("s_mov_b64 exec, -1")
            a.lab("L_nohf")
        for r in kv_reads((n % 8) * 4096): a.e(r)
        if n == 7 and A:
            a.e("s_cmp_lg_u32 s%d, 0" % sW)
            a.e("s_cbranch_scc1 L_hf_nol")
            a.e("buffer_load_dword %s, %s, %s, 0 offen sc1" % (v(vPOLL), v(vFLA), srd(SWS)))
            a.lab("L_hf_nol")
        if n == 0:
            kvdma(2); kvdma(3)
            a.e("s_mov_b32 s%d, s%d" % (sC, sKQ))
            a.e("s_mul_i32 s%d, s%d, %d" % (sWDOFF, sC, 448 * 1024))
            a.e("s_and_b32 s%d, s%d, 1" % (sB, sW))
            a.e("s_lshl_b32 s%d, s%d, 14" % (sA, sB))
            a.e("s_add_u32 s%d, s%d, s%d" % (sWDOFF, sWDOFF, sA))
            a.e("s_lshl_b32 s%d, s%d, 1" % (sA, sT))
            a.e("s_add_u32 s%d, s%d, s%d" % (sA, sA, sB))
            a.e("s_mul_i32 s%d, s%d, 112" % (sA, sA))
            a.e("s_mul_i32 s%d, s%d, 28" % (sB, sC))
            a.e("s_add_u32 s%d, s%d, s%d" % (sA, sA, sB))
            a.e("s_lshl_b32 s%d, s%d, 10" % (sA, sA))
            a.e("s_add_u32 s%d, s%d, 0x%x" % (sHOFF, sA, WS_HF))
        if (A and n % 2 == 1 and n >= 3): kvdma((n + 5) // 2)
        if (not A and n % 2 == 0 and n >= 2): kvdma((n + 6) // 2)
        if 1 <= n <= 3:
            a.e("s_lshl_b32 s%d, s%d, 17" % (sB, sKQ))
            a.e("s_and_b32 s%d, s%d, 1" % (sC, sW))
            a.e("s_lshl_b32 s%d, s%d, 13" % (sC, sC))
            a.e("s_add_u32 s%d, s%d, s%d" % (sB, sB, sC))
            for j in {1: (0, 1, 2), 2: (3, 4, 5), 3: (6, 7)}[n]: wodma(j)
        for sg in {4: (0, 1), 5: (2, 3), 6: (4, 5), 7: (6,)}.get(n, ()): wddma(sg)
        hreg = {0: vH + 12, 1: vH, 2: vH + 4, 24: vH + 16, 25: vH + 20, 26: vH + 24, 27: vH + 28}
        hs = {9: (0, 1, 24), 10: (2, 25, 26, 27)} if A else {8: (0, 1), 9: (2, 24, 25), 10: (26, 27)}
        for sg in hs.get(n, ()): hload(sg, hreg[sg])
        if n == 0 and pre0:
            pre0()
            a.stamp(5)
        a.e("s_waitcnt lgkmcnt(0)")
        a.e("s_call_b64 %s, L_Y%s" % (sp(sRET), role))
        if n == 0:
            a.e("s_branch L_X1%s" % role)
            a.lab("L_Y%s" % role)
            if A: a.e("s_barrier")
            for x in Yseg(None): a.e(x)
            if not A: a.e("s_barrier")
            a.e("s_setpc_b64 %s" % sp(sRET))
            a.lab("L_X1%s" % role)
    astamp(a, 7)
    a.e("s_add_u32 s%d, s%d, 0x%x" % (sHOFF, sHOFF, 3 * 1024))
    a.e("s_add_u32 s%d, s%d, 0x%x" % (sWDOFF, sWDOFF, wdrow(7)))
    a.e("s_mov_b32 s%d, 0x%x" % (sM0WD, ((7 + 3) % 8) * 8192))
    u0 = 8 if A else 9
    a.e("s_add_u32 s%d, s%d, 0x%x" % (sKVOFF, sWK, u0 * 8192))
    a.e("s_mov_b32 s%d, 6" % sCNT)
    a.waitvm(["h0", "wd1", "kv6"] if A else ["h0", "wd1"])
    a.e("s_branch L_loop%s_in" % role)
    a.l.append(".p2align 6")
    a.lab("L_loop%s" % role)
    for p in range(4):
        if p == 0 and Opt.diag and Opt.kdiag == 2:
            a.e("s_cmp_lg_u32 s%d, 4" % sCNT)
            a.e("s_cbranch_scc1 L_nst%s" % role)
            astamp(a, 8)
            a.lab("L_nst%s" % role)
        a.e("s_waitcnt vmcnt(5)")
        if p == 3: a.lab("L_loop%s_in" % role)
        for r in kv_reads(p * 4096): a.e(r)
        for r in wd_reads(vWF, vWDA, p * 8192): a.e(r)
        a.e("buffer_load_dwordx4 %s, %s, %s, s%d offen sc1" % (v(vH + 4 * ((p + 3) % 4), 4), v(vL16), srd(SWS), sHOFF))
        a.e("s_add_u32 m0, s%d, s%d" % (sWK, sM0WD))
        a.e("s_add_u32 s%d, s%d, 0x400" % (sHOFF, sHOFF))
        a.e("buffer_load_dwordx4 %s, %s, s%d offen lds" % (v(vWDV), srd(SWD), sWDOFF))
        a.e("s_add_u32 s%d, s%d, 0x%x" % (sWDOFF, sWDOFF, 0x6000 if p & 1 else 0x2000))
        a.e("s_add_u32 s%d, s%d, 0x2000" % (sM0WD, sM0WD))
        a.e("s_and_b32 s%d, s%d, 0xffff" % (sM0WD, sM0WD))
        if (p % 2 == 1) == A:
            a.e("s_and_b32 s%d, s%d, 0x7fff" % (sA, sKVOFF))
            a.e("s_add_u32 m0, s%d, 0x%x" % (sA, L_KV))
            a.e("s_nop 0")
            a.e("buffer_load_dwordx4 %s, %s, s%d offen sc1 lds" % (v(vL16), srd(SKV), sKVOFF))
            a.e("s_add_u32 s%d, s%d, 0x2000" % (sKVOFF, sKVOFF))
        if p == 3:
            a.e("s_sub_u32 s%d, s%d, 1" % (sCNT, sCNT))
            a.e("s_cmp_lg_u32 s%d, 0" % sCNT)
        a.e("s_waitcnt lgkmcnt(0)")
        if A: a.e("s_barrier")
        for x in Yseg(p, toggle=(p == 3)): a.e(x)
        if not A:
            if p == 3: a.e("s_cbranch_scc0 L_tail")
            a.e("s_barrier")
    a.e(("s_cbranch_scc1 L_loop%s" if A else "s_branch L_loop%s") % role)

def transition(a, role):
    A = role == "A"
    if A:
        a.vm = []
        a.lab("L_trA")
    else:
        a.lab("L_join")
        a.e("s_cmp_eq_u32 s%d, 0" % sHI)
        a.e("s_cbranch_scc1 L_trA")
        a.vmjoin = list(a.vm)
    def qfin():
        for i in range(4): a.e("v_cvt_pk_bf16_f32 %s, %s, %s" % (v(vQ + i), v(vAQ + 2 * i), v(vAQ + 2 * i + 1)))
        for i in range(8): a.e("v_mov_b32 %s, 0" % v(vS + 24 + i))
        a.e("v_permlane16_swap_b32 %s, %s" % (v(vQ), v(vQ + 2)))
        a.e("v_permlane16_swap_b32 %s, %s" % (v(vQ + 1), v(vQ + 3)))
    pre0 = None
    if A:
        a.e("s_setprio 1")
        a.e("s_cmp_ge_u32 s%d, 14" % sM)
        a.e("s_cbranch_scc1 L_nogA0")
        put(a, a.kvA[:1] + a.kvA[-1:])
        a.l.append(".p2align 3")
        for ti in range(Opt.gsc): gelu_tile(a, ti, True)
        a.lab("L_nogA0")
        qfin()
        a.waitvm(["k0", "kv0", "kv1"])
        a.e("s_setprio 0")
        a.e("s_barrier")
        a.e(mfma(vS, vK0, vQ, None))
        put(a, a.kvA[1:-1])
        def pre0():
            a.e("s_cmp_lt_u32 s%d, 14" % sM)
            a.e("s_cbranch_scc1 L_gA1")
            a.e("s_waitcnt vmcnt(0)")
            a.e("s_branch L_nogA1")
            a.l.append(".p2align 3")
            a.lab("L_gA1")
            for ti in range(Opt.gsc, 4): gelu_tile(a, ti)
            a.lab("L_nogA1")
            a.e("s_setprio 1")
    else:
        a.waitvm(["k0", "kv0", "kv1"])
        a.e("s_setprio 1")
        a.e("s_cmp_ge_u32 s%d, 14" % sM)
        a.l.append(".p2align 3")
        a.e("s_barrier")
        a.e("s_cbranch_scc1 L_nogB")
        for ti in range(4): gelu_tile(a, ti)
        a.lab("L_nogB")
        qfin()
        a.e("s_setprio 0")
        a.e("s_nop 0")
        a.e(mfma(vS, vK0, vQ, None))
        a.stamp(5)
    attention(a, role, pre0)
    if A: a.e("s_branch L_tail")

def tail(a):
    a.lab("L_tail")
    a.stamp(6)
    astamp(a, 9)
    if Opt.diag and Opt.kdiag == 2: a.e("s_waitcnt lgkmcnt(0)")
    a.e(smfmac(vO, vV1L, vS + 24))
    a.e("s_setprio 0")
    a.e("s_mov_b32 s%d, 0x%x" % (sC, f2u(2.0 ** -16)))
    a.e("s_mov_b32 s%d, 0x%x" % (sD, f2u(2.0 ** 100)))
    wf = [vFR, vFR + 8, vFR + 16]
    for i in range(2):
        for r in wd_reads(wf[i], vWDA, i * 8192): a.e(r)
    a.e("s_nop 0")
    t = vT0
    a.e("v_rcp_f32 %s, %s" % (v(t + 2), v(vO + 8)))
    a.e("v_pk_mul_f32 %s, %s, 0 op_sel_hi:[1,0]" % (v(t, 2), v(vO, 2)))
    for i in range(1, 4): a.e("v_pk_fma_f32 %s, %s, 0, %s op_sel_hi:[1,0,1]" % (v(t, 2), v(vO + 2 * i, 2), v(t, 2)))
    a.e("v_add_f32 %s, %s, %s" % (v(t), v(t), v(t + 1)))
    a.e("v_add_f32 %s, %s, %s" % (v(t), v(t), v(vO + 8)))
    a.e("v_cmp_nle_f32 vcc, s%d, %s" % (sC, v(t)))
    a.e("v_cmp_nge_f32 %s, s%d, %s" % (sp(sTMPP), sD, v(t)))
    a.e("s_or_b64 vcc, vcc, %s" % sp(sTMPP))
    a.e("s_branch L_fb" if Opt.force_fb else "s_cbranch_scc1 L_fb")
    a.lab("L_fbret")
    a.e("v_mul_f32 %s, %s, %s" % (v(t + 2), v(t + 2), v(vGP)))
    for i in range(4): a.e("v_pk_mul_f32 %s, %s, %s op_sel_hi:[1,0]" % (v(vO + 2 * i, 2), v(vO + 2 * i, 2), v(t + 2, 2)))
    for i in range(4): a.e("v_cvt_pk_bf16_f32 %s, %s, %s" % (v(vP + i), v(vO + 2 * i), v(vO + 2 * i + 1)))
    for i in range(4): a.e("v_min_u32 %s, -2, %s" % (v(vP + i), v(vP + i)))
    a.e("buffer_store_dwordx4 %s, %s, %s, s%d offen sc1" % (v(vP, 4), v(vL16), srd(SWS), sOST))
    HORD = [0, 2, 4, 6, 1, 3, 5, 7] if Opt.hord else list(range(8))
    def oload(j):
        return "buffer_load_dwordx4 %s, %s, %s, s%d offen offset:%d %s" % (
            v(vS + 4 * j, 4), v(vL16), srd(SWS), sOLD if HORD[j] < 4 else sA, (HORD[j] % 4) * 1024, Opt.old_pol)
    a.oload = oload
    aw = vXA
    ar = vWA
    def addrs(a):
        a.e("v_sub_f32 %s, 1.0, %s" % (v(vGC), v(vGC)))
        a.e("v_add_u32 %s, 0x%x, %s" % (v(vQA), L_WO, v(vWDA)))
        a.e("v_and_b32 v2, 31, v0")
        a.e("v_lshrrev_b32 v3, 5, v0")
        a.e("v_and_b32 v4, 7, v0")
        a.e("v_xor_b32 v3, v3, v4")
        a.e("v_lshlrev_b32 v3, 4, v3")
        a.e("v_lshl_add_u32 v3, v2, 8, v3")
        a.e("s_and_b32 s%d, s%d, 1" % (sB, sW))
        a.e("s_lshl_b32 s%d, s%d, 15" % (sB, sB))
        a.e("s_lshr_b32 s%d, s%d, 1" % (sC, sW))
        a.e("s_lshl_b32 s%d, s%d, 13" % (sD, sC))
        a.e("s_add_u32 s%d, s%d, s%d" % (sD, sD, sB))
        a.e("v_add_u32 %s, s%d, v3" % (v(aw), sD))
        for j in range(1, 4): a.e("v_xor_b32 %s, %d, %s" % (v(aw + j), 32 * j, v(aw)))
        a.e("v_lshrrev_b32 v2, 3, v0")
        a.e("v_lshlrev_b32 v3, 1, v4")
        a.e("v_xor_b32 v3, v3, v2")
        a.e("v_lshlrev_b32 v3, 4, v3")
        a.e("v_lshl_add_u32 v3, v2, 8, v3")
        a.e("s_lshl_b32 s%d, s%d, 11" % (sD, sC))
        a.e("s_add_u32 s%d, s%d, s%d" % (sD, sD, sB))
        a.e("v_add_u32 %s, s%d, v3" % (v(ar), sD))
        a.e("v_xor_b32 %s, 16, %s" % (v(ar + 1), v(ar)))
        a.e("v_lshlrev_b32 v4, 4, v4")
        a.e("v_lshl_add_u32 %s, v2, 10, v4" % v(ar + 2))
        a.e("s_lshl_b32 s%d, s%d, 13" % (sC, sC))
        a.e("s_add_u32 s%d, s%d, s%d" % (sB, sB, sC))
        a.e("s_lshl_b32 s%d, s%d, 16" % (sC, sT))
        a.e("s_add_u32 s%d, s%d, s%d" % (sB, sB, sC))
        a.e("s_lshl_b32 s%d, s%d, 7" % (sC, sCB))
        a.e("s_add_u32 s%d, s%d, s%d" % (sCNT, sB, sC))
        a.e("s_mov_b32 s%d, 0x2000" % sB)
    a.e("s_add_u32 s%d, s%d, 0x1000" % (sA, sOLD))
    ol = Asm(); a.ool2 = ol.l
    a.e("s_cmp_lg_u32 s%d, 0" % sHI)
    a.e("s_cbranch_scc1 L_tl1")
    for j in range(8): a.e(oload(j))
    a.e("s_waitcnt vmcnt(9)")
    a.e("s_branch L_tl2")
    a.lab("L_tl1")
    a.e("s_setprio 1")
    a.e("s_waitcnt vmcnt(1)")
    a.lab("L_tl2")
    a.e("s_barrier")
    hreg = {21: vH + 0, 22: vH + 4, 23: vH + 8, 24: vH + 16, 25: vH + 20, 26: vH + 24, 27: vH + 28}
    fl = collect(addrs)
    for i in range(7):
        if i + 2 < 7:
            for r in wd_reads(wf[(i + 2) % 3], vWDA, (i + 2) * 8192): a.e(r)
        else:
            for r in wd_reads(wf[(i + 2) % 3], vQA, HORD[i - 5] * 8192): a.e(r)
        a.e("s_waitcnt lgkmcnt(8)")
        for c in range(2):
            a.e(mfma(vD + 16 * c, wf[i % 3] + 4 * c, hreg[21 + i], vD + 16 * c))
            put(a, fl[:3]); fl = fl[3:]
    assert not fl
    a.e("s_cmp_lg_u32 s%d, 0" % sHI)
    a.e("s_cbranch_scc1 L_tl3")
    a.l.append(".p2align 3")
    a.e("s_nop 7")
    a.e("s_nop 0")
    for i in range(16): a.e("v_pk_mul_f32 %s, %s, %s op_sel:[0,1] op_sel_hi:[1,1]" % (v(vD + 2 * i, 2), v(vD + 2 * i, 2), v(vGP, 2)))
    if Opt.tbar == 0: a.e("s_barrier")
    a.lab("L_tl4")
    ol.lab("L_tl3")
    ol.e("s_setprio 0")
    for j in range(8):
        ol.e(oload(j))
        if j == 0: ol.e("s_nop 6")
        for i in range(4 * j, 4 * j + 4): ol.e("v_mul_f32 %s, %s, %s" % (v(vD + i), v(vGC), v(vD + i)))
    ol.e("s_barrier")
    ol.e("s_branch L_tl4")
    a.stamp(7)
    J1 = 8 - Opt.cskew
    wo = lambda j: wf[(j + 1) % 3] if j < J1 else vH + 8 * (j - J1)
    for j in range(8):
        o = vS + 4 * j
        if j + 2 < 8:
            for r in wd_reads(wo(j + 2), vQA, HORD[j + 2] * 8192): a.e(r)
        a.lab("L_ochk%d" % j)
        a.e("s_waitcnt vmcnt(%d)" % (7 - j))
        a.e("v_max3_u32 v2, %s, %s, %s" % (v(o), v(o + 1), v(o + 2)))
        a.e("v_max_u32 v2, v2, %s" % v(o + 3))
        a.e("v_cmp_eq_u32 vcc, -1, v2")
        a.e("s_cbranch_vccnz L_ore%d" % j)
        a.lab("L_ook%d" % j)
        a.e("s_waitcnt lgkmcnt(%d)" % (4 * min(2, 7 - j)))
        for c in range(2 if j < J1 else 1): a.e(mfma(vD + 16 * c, wo(j) + 4 * c, o, vD + 16 * c))
    wr = lambda c, j: "ds_write_b128 %s, %s offset:%d" % (v(aw + j), v(vD + 16 * c + 4 * j, 4), 128 * c)
    w0 = [wr(0, j) for j in range(4)]
    dist = 0
    for j in range(J1, 8):
        a.e(mfma(vD + 16, wo(j) + 4, vS + 4 * j, vD + 16)); dist += 1
        if dist < 12:
            a.e("s_nop 5"); dist += 6
        elif j < 7:
            a.e(w0.pop(0))
    a.stamp(8)
    if not Opt.cskew: a.e("s_nop 10")
    elif dist < 12: a.e("s_nop %d" % (11 - dist))
    n0 = len(w0)
    for x in w0: a.e(x)
    if Opt.cskew: a.e("s_nop %d" % (11 - n0))
    for j in range(4): a.e(wr(1, j))
    a.e("s_waitcnt lgkmcnt(0)")
    a.e("s_barrier")
    for p in range(4):
        for h in range(2): a.e(rd128(vS + 8 * p + 4 * h, ar + h, p * 8192))
    for p in range(1, 4):
        a.e("s_waitcnt lgkmcnt(%d)" % (6 - 2 * p))
        for i in range(4): a.e("v_pk_add_f32 %s, %s, %s" % (v(vS + 2 * i, 2), v(vS + 2 * i, 2), v(vS + 8 * p + 2 * i, 2)))
    for i in range(4): a.e("v_cvt_pk_bf16_f32 %s, %s, %s" % (v(vP + i), v(vS + 2 * i), v(vS + 2 * i + 1)))
    a.e("buffer_store_dwordx4 %s, %s, %s, s%d offen %s" % (v(vP, 4), v(ar + 2), srd(SOUT), sCNT, Opt.out_pol))
    if Opt.probe >= 0:
        a.e("s_waitcnt vmcnt(0)")
        a.stamp(9)
        if Opt.probe != 9:
            a.e("s_cmp_ge_u32 s%d, 14" % sM)
            a.e("s_cbranch_scc%d L_end" % (0 if Opt.probe_l else 1))
        a.e("s_sub_u32 s%d, s%d, s%d" % (sA, sSTAMP + 4, sSTAMP))
        a.e("s_mul_i32 s%d, s%d, %d" % (sA, sA, Opt.probe_mul - 1))
        a.e("s_min_u32 s%d, s%d, 100000" % (sA, sA))
        a.e("s_add_u32 s%d, s%d, 3800" % (sA, sA))
        if Opt.probe_w >= 0:
            a.e("s_cmp_lg_u32 s%d, %d" % (sHI, Opt.probe_w))
            a.e("s_cbranch_scc1 L_end")
        if Opt.probe_x >= 0:
            a.e("s_and_b32 s0, s2, 7")
            a.e("s_cmp_lg_u32 s0, %d" % Opt.probe_x)
            a.e("s_cbranch_scc1 L_end")
        a.lab("L_probe")
        a.e("s_memrealtime s[0:1]")
        a.e("s_waitcnt lgkmcnt(0)")
        a.e("s_sub_u32 s0, s0, s%d" % (sSTAMP + 4))
        a.e("s_cmp_lt_u32 s0, s%d" % sA)
        a.e("s_cbranch_scc1 L_probe")
    if Opt.pin == 9:
        a.e("s_waitcnt vmcnt(0)")
        a.stamp(9)
    if Opt.diag in (1, 2):
        a.e("s_waitcnt vmcnt(0)")
        a.stamp(9)
        a.e("s_mov_b32 s%d, s%d" % (sSTAMP + 3, sSTAMP))
        a.e("s_mov_b32 s%d, s%d" % (sSTAMP, sB))
        a.e("s_getreg_b32 s%d, hwreg(HW_REG_XCC_ID)" % (sSTAMP + 1))
        for i in range(20): a.e("v_mov_b32 %s, s%d" % (v(vS + i), sSTAMP + i))
        a.e("s_lshl_b32 s%d, s2, 3" % sA)
        a.e("s_add_u32 s%d, s%d, s%d" % (sA, sA, sW))
        a.e("s_lshl_b32 s%d, s%d, 7" % (sA, sA))
        a.e("s_add_u32 s%d, s%d, 0x%x" % (sA, sA, WS_STAMP))
        a.e("s_mov_b64 exec, 1")
        for i in range(5): a.e("buffer_store_dwordx4 %s, off, %s, s%d offset:%d" % (v(vS + 4 * i, 4), srd(SWS), sA, 16 * i))
    a.lab("L_end")
    a.e("s_endpgm")
    a.l += a.ool2
    for j in range(8):
        a.lab("L_ore%d" % j)
        a.e("s_sub_u32 s%d, s%d, 1" % (sB, sB))
        a.e("s_cbranch_scc1 L_ogive%d" % j)
        a.e("s_waitcnt vmcnt(0)")
        for i in range(j, 8): a.e(a.oload(i))
        a.e("s_branch L_ochk%d" % j)
        a.lab("L_ogive%d" % j)
        a.e("s_mov_b32 s%d, 0" % sB)
        a.e("s_branch L_ook%d" % j)

def fallback(a):
    a.lab("L_fb")
    m = vT0
    a.e("v_mov_b32 %s, 0xff800000" % v(m))
    a.e("s_mov_b32 s%d, 0" % sA)
    a.lab("L_fb1")
    a.e("buffer_load_dwordx4 %s, %s, %s, s%d offen sc1" % (v(vKF, 4), v(vL16), srd(SKV), sA))
    a.e("s_waitcnt vmcnt(0)")
    a.e(mfma(vS, vKF, vQ, None))
    a.e("s_add_u32 s%d, s%d, 2048" % (sA, sA))
    a.e("s_nop 11")
    for i in range(8): a.e("v_max3_f32 %s, %s, %s, %s" % (v(m), v(m), v(vS + 2 * i), v(vS + 2 * i + 1)))
    a.e("s_cmp_lt_u32 s%d, 0x20000" % sA)
    a.e("s_cbranch_scc1 L_fb1")
    a.e("v_mov_b32 %s, %s" % (v(m + 1), v(m)))
    a.e("s_nop 1")
    a.e("v_permlane32_swap_b32 %s, %s" % (v(m), v(m + 1)))
    a.e("s_nop 1")
    a.e("v_max_f32 %s, %s, %s" % (v(m), v(m), v(m + 1)))
    for i in range(16): a.e("v_sub_f32 %s, 0, %s" % (v(vS + 16 + i), v(m)))
    for i in range(16): a.e("v_mov_b32 %s, 0" % v(vO + i))
    a.e("s_mov_b32 s%d, 0" % sA)
    a.lab("L_fb2")
    a.e("s_add_u32 s%d, s%d, 0x%x" % (sB, sA, 63 * 2048))
    a.e("s_and_b32 s%d, s%d, 0x1ffff" % (sB, sB))
    a.e("buffer_load_dwordx4 %s, %s, %s, s%d offen sc1" % (v(vKF, 4), v(vL16), srd(SKV), sB))
    a.e("s_add_u32 s%d, s%d, 2048" % (sB, sA))
    a.e("s_and_b32 s%d, s%d, 0x1ffff" % (sB, sB))
    a.e("s_mov_b64 exec, %s" % sp(sVM))
    a.e("buffer_load_dwordx4 %s, %s, %s, s%d offen offset:1024 sc1" % (v(vV, 4), v(vL16), srd(SKV), sA))
    a.e("buffer_load_dwordx4 %s, %s, %s, s%d offen offset:1280 sc1" % (v(vV + 4, 4), v(vL16), srd(SKV), sB))
    a.e("s_mov_b64 exec, -1")
    a.e("s_waitcnt vmcnt(0)")
    a.e(mfma(vS, vKF, vQ, vS + 16))
    a.e("s_add_u32 s%d, s%d, 2048" % (sA, sA))
    a.e("s_nop 11")
    for i in range(16): a.e("v_exp_f32 %s, %s" % (v(vS + i), v(vS + i)))
    a.e("s_nop 2")
    a.e(smfmac(vO, vV, vS))
    a.e(smfmac(vO, vV + 4, vS + 8))
    a.e("s_cmp_lt_u32 s%d, 0x20000" % sA)
    a.e("s_cbranch_scc1 L_fb2")
    a.e("s_nop 11")
    a.e("v_rcp_f32 %s, %s" % (v(vT0 + 2), v(vO + 8)))
    a.e("s_branch L_fbret")

def build():
    a = Asm()
    prologue(a)
    phase1_F(a)
    transition(a, "B")
    tail(a)
    a.l += a.ool
    transition(a, "A")
    phase1_L(a)
    fallback(a)
    a.lab("L_codeend")
    for i, x in enumerate(a.l):
        if " sc1" in x and "sc0" not in x and ((Opt.allsc & 1 and "buffer_store" in x) or (Opt.allsc & 2 and "buffer_load" in x)):
            a.l[i] = x.replace(" sc1", " sc0 sc1")
    il = a.l.index("L_light:")
    for i, x in enumerate(a.l):
        if x.endswith(" lds") and "sc1" not in x and " nt" not in x:
            if (Opt.ntx & 4 and (srd(SWD) in x or srd(SWO) in x)) or (Opt.ntx & 8 and i > il):
                a.l[i] = x[:-4] + " nt lds"
    head = open("cdna_kernels/%s.s.ref" % NAME).read().split("\n")
    hdr = [l for l in head if l.startswith(";") and "@launch" not in l and "Override" not in l and "grid=" not in l]
    out = hdr + ["; @launch grid=(256,1,1) block=(512,1,1) lds=%d" % LDS_BYTES,
                 '.amdgcn_target "amdgcn-amd-amdhsa--gfx950"', ".text", ".globl %s_kernel" % NAME, ".p2align 8",
                 ".type %s_kernel,@function" % NAME,
                 ".set CODE_PF_MAX, L_codeend - L_nopf - 4" if Opt.code_pf else "",
                 "%s_kernel:" % NAME]
    out += ["; mapmode %d" % Opt.mapmode, "; xrot %d" % Opt.xrot]
    out += a.l
    out += ['.section .rodata,"a"', ".p2align 6", ".amdhsa_kernel %s_kernel" % NAME,
            "  .amdhsa_next_free_vgpr %d" % NV, "  .amdhsa_next_free_sgpr 102", "  .amdhsa_accum_offset 256",
            "  .amdhsa_group_segment_fixed_size 0", "  .amdhsa_kernarg_size 104", "  .amdhsa_user_sgpr_count 2",
            "  .amdhsa_user_sgpr_kernarg_segment_ptr 1", "  .amdhsa_system_sgpr_workgroup_id_x 1", ".end_amdhsa_kernel", ""]
    return "\n".join(out)

if __name__ == "__main__":
    path = sys.argv[1]
    for kv in sys.argv[2:]:
        k, val = kv.split("=")
        cur = getattr(Opt, k)
        setattr(Opt, k, val if isinstance(cur, str) else type(cur)(int(val)))
    open(path, "w").write(build())
```

```python
import sys, struct, math

NAME = "gated_mix__grouped_kv_mqa__geglu_ffn__prompt"

class Opt:
    diag = 0
    mapmode = 1
    force_fb = False
    allsc = 0
    out_pol = "sc0 sc1"
    code_pf = True
    xrot = 0
    pregap = 0
    aearly = 1
    odelay = 0
    old_pol = "sc1"
    ypos0 = "36g"
    ypos1 = "36bg"
    tpos = 1
    cskew = 0
    tch = 12
    stch = 0
    spos = 1
    tlb = 14
    olate = 1
    hrot = 0
    tbar = 0
    hord = 1
    cmap = 1
    kqx = 0
    oearly = 8
    conc = 1
    ghx = 1
    qa = "088888"
    qb = "577777"
    npre = 8
    stagger = 1
    rper = 2
    dma1 = 17
    kprio = 0
    dma0 = 8
    npd = 4
    kdiag = 0
    fillpre = 0
    fillper = 4
    gsc = 2
    sched = 0
    xmask = 1
    ntx = 0
    touch = 2
    rotg = 0
    rotm = 0
    startbar = 1
    pvz = 1
    pin = -1
    pin_ns = 60000
    probe = -1
    probe_x = -1
    probe_mul = 10
    probe_w = -1
    probe_l = 0

def f2u(x): return struct.unpack("<I", struct.pack("<f", x))[0]

WS_KV = 0
WS_G = 128 * 1024
WS_HFLAG = 192 * 1024
WS_OF = 1 << 20
WS_HF = 4 << 20
WS_STAMP = 12 << 20
WS_SIZE = 16 << 20
K1 = 1024
L_G, L_U, L_X, L_WQ = 0, 48 * K1, 96 * K1, 144 * K1
L_QX = 32 * K1
L_WD, L_WO, L_KV = 0, 64 * K1, 128 * K1
LL_X, LL_W, LL_GATE, LL_WQ = 0, 128 * K1, 144 * K1, 128 * K1
LDS_BYTES = 160 * K1

SX, SWG, SWU, SWQ, SWS, SWD, SWO, SOUT, SDBG, SWKV, SGATE, SKV = 4, 8, 12, 16, 20, 24, 28, 32, 36, 40, 44, 64
SWV = 72
sTMPP = 48
sW, sHI, sLO, sG, sM, sT, sCB = 50, 51, 52, 53, 54, 55, 56
sWK = 57
sWH = 58
sK64 = 59
sVM = 60
sRET = 62
sA, sB, sC, sD = 68, 69, 70, 71
sOFFW, sOFFQ, sCH, sXP = 72, 73, 74, 75
sHOFF, sWDOFF, sKVOFF, sM0WD, sM0KV, sCNT = 72, 73, 74, 75, 76, 77
sOST, sOLD, sHST = 78, 79, 80
sHST2 = 3
sRX, sRW, sM0B = 40, 41, 42
sKQ = 76
sHP = sM
sFREE = 81
sSTAMP = 82

def srd(b): return "s[%d:%d]" % (b, b + 3)
def sp(b): return "s[%d:%d]" % (b, b + 1)
def v(b, n=1): return "v%d" % b if n == 1 else "v[%d:%d]" % (b, b + n - 1)

vL16 = 1
vT0, vT1, vT2, vT3 = 2, 3, 4, 5
vGP, vGC = 6, 7
vKVA = 8
vWDA = 9
vWDV = 10
vONE = 11
vZERO = 12
vFLA = 13
vPOLL = 14
vGA = 15
vQ = 16
vK0 = 20
vV1L = 24
vIDX = 28
vP = 32
vV = 40
vO = 56
vD = 72
vACC = 104
vS = 104
vH = 136
vAQ = vP
vF1 = 168
vKF = 168
vWF = 176
vFR = 184
vLX = 224
vXA = 240
vWA = 244
vQA = 248
vDX, vDG, vDQ = 249, 250, 251
vC0 = 252
vTID = 255
vHA = 254
NV = 256

class Asm:
    def __init__(self):
        self.l = []
        self.vm = []
        self.nstamp = 0
    def e(self, s):
        for x in s.split("\n"):
            x = x.strip()
            if x: self.l.append("    " + x)
    def lab(self, s): self.l.append(s + ":")
    def vmop(self, s, tag):
        self.e(s); self.vm.append(tag)
    def vmn(self, tags):
        if isinstance(tags, str): tags = [tags]
        last = -1
        for i, t in enumerate(self.vm):
            if t in tags: last = i
        return None if last < 0 else len(self.vm) - 1 - last
    def waitvm(self, tags, lgkm=False):
        n = self.vmn(tags)
        if n is None:
            if lgkm: self.e("s_waitcnt lgkmcnt(0)")
            return
        assert n < 64
        self.e("s_waitcnt vmcnt(%d)%s" % (n, " lgkmcnt(0)" if lgkm else ""))
        self.vm = self.vm[len(self.vm) - n:] if n else []
    def wait0(self, lgkm=False):
        self.e("s_waitcnt vmcnt(0)%s" % (" lgkmcnt(0)" if lgkm else "")); self.vm = []
    def stamp(self, i, real=False):
        if Opt.probe == i:
            self.e("s_waitcnt lgkmcnt(0)")
            self.e("s_memrealtime %s" % sp(sSTAMP + 4))
            self.e("s_waitcnt lgkmcnt(0)")
        if Opt.pin == i:
            self.nstamp += 1
            self.e("s_waitcnt lgkmcnt(0)")
            self.e("s_cselect_b32 s%d, 1, 0" % (sSTAMP + 5))
            self.lab("L_pin%d" % self.nstamp)
            self.e("s_memrealtime s[0:1]")
            self.e("s_waitcnt lgkmcnt(0)")
            self.e("s_sub_u32 s0, s0, s%d" % sSTAMP)
            self.e("s_cmp_lt_u32 s0, %d" % (Opt.pin_ns // 10))
            self.e("s_cbranch_scc1 L_pin%d" % self.nstamp)
            self.e("s_cmp_lg_u32 s%d, 0" % (sSTAMP + 5))
        if Opt.diag and not Opt.kdiag and (Opt.diag == 1 or i == 9):
            self.e("s_waitcnt lgkmcnt(0)")
            self.e("s_memtime %s" % sp(sSTAMP + 2 * i))
            self.e("s_memrealtime %s" % sp(sRET))
            self.e("s_waitcnt lgkmcnt(0)")
            self.e("s_mov_b32 s%d, s%d" % (sSTAMP + 2 * i + 1, sRET))

def astamp(a, i):
    if Opt.diag and Opt.kdiag == 2: a.e("s_memtime %s" % sp(sSTAMP + 2 * i))

def kstamp(a, i):
    if Opt.probe == 18 + i: a.e("s_memrealtime %s" % sp(sSTAMP + 4))
    if Opt.diag and Opt.kdiag == 1: a.e("s_memtime %s" % sp(sSTAMP + 2 * i))

def mfma(d, a, b, c):
    return "v_mfma_f32_32x32x16_bf16 %s, %s, %s, %s" % (v(d, 16), v(a, 4), v(b, 4), "0" if c is None else v(c, 16))
def smfmac(d, a, b):
    return "v_smfmac_f32_32x32x32_bf16 %s, %s, %s, %s" % (v(d, 16), v(a, 4), v(b, 8), v(vIDX))
def mfma16(d, a, b, c):
    return "v_mfma_f32_16x16x32_bf16 %s, %s, %s, %s" % (v(d, 4), v(a, 4), v(b, 4), "0" if c is None else v(c, 4))
def rd128(d, a, off):
    assert 0 <= off < 65536
    return "ds_read_b128 %s, %s offset:%d" % (v(d, 4), v(a), off)
def rdtr(d, a, off):
    assert 0 <= off < 65536
    return "ds_read_b64_tr_b16 %s, %s offset:%d" % (v(d, 2), v(a), off)

def interleave(mf, fill, per=2):
    out = []
    fill = list(fill)
    for i, m in enumerate(mf):
        out.append(m)
        if i < len(mf) - 1:
            out += fill[:per]; fill = fill[per:]
    return out + fill

def srd_words(a, regs):
    sizes = {SX: 2048 * 1024, SWG: 512 * 3584, SWU: 512 * 3584, SWQ: 512 * 1024, SWS: WS_SIZE, SWKV: 16384, SWV: 16384,
             SGATE: 1024, SWD: 1792 * 1024, SWO: 512 * 1024, SOUT: 2048 * 1024, SDBG: 256, SKV: 128 * 1024}
    for reg in regs:
        a.e("s_mov_b32 s%d, 0x%x" % (reg + 2, sizes[reg]))
        a.e("s_mov_b32 s%d, 0x20000" % (reg + 3))

def ptr_loads(a, lst):
    for reg, off in lst: a.e("s_load_dwordx2 %s, s[0:1], %d" % (sp(reg), off))

def prologue(a):
    if Opt.diag or Opt.pin >= 0 or Opt.probe >= 0:
        a.e("s_memrealtime %s" % sp(sSTAMP))
        if Opt.diag in (1, 2): a.e("s_memtime %s" % sp(sSTAMP + 2))
    ptr_loads(a, ((SX, 0), (SWG, 48), (SWU, 56), (SWQ, 8)))
    a.e("s_load_dwordx8 s[%d:%d], s[0:1], 64" % (SOUT, SOUT + 7))
    if not (Opt.diag or Opt.probe >= 0): ptr_loads(a, ((SWS, 96), (SWO, 32)))
    if Opt.probe == 1: a.stamp(1)
    a.e("v_lshrrev_b32 v2, 6, v0")
    if Opt.code_pf:
        a.e("s_getpc_b64 %s" % sp(sRET))
        a.lab("L_nopf")
        a.e("s_and_b32 s%d, s2, -8" % sA)
        a.e("v_add_lshl_u32 v3, v2, s%d, 7" % sA)
        a.e("v_readfirstlane_b32 s%d, v2" % sW)
        a.e("v_min_u32 v3, CODE_PF_MAX, v3")
        a.e("global_load_dword %s, v3, %s" % (v(vPOLL), sp(sRET)))
    else:
        a.e("s_nop 0")
        a.e("v_readfirstlane_b32 s%d, v2" % sW)
    if Opt.diag or Opt.probe >= 0:
        a.e("s_load_dwordx2 %s, s[0:1], 96" % sp(SWS))
    a.e("s_cmpk_ge_u32 s2, 256")
    a.e("s_cbranch_scc1 L_end")
    a.e("s_and_b32 s%d, s2, 1" % sD)
    a.e("s_bfe_u32 s%d, s2, 0x30003" % sA)
    a.e("s_lshl3_add_u32 s%d, s%d, s%d" % (sG, sD, sA))
    a.e("s_bfe_u32 s%d, s2, 0x20001" % sA)
    a.e("s_lshr_b32 s%d, s2, 6" % sB)
    a.e("s_lshl2_add_u32 s%d, s%d, s%d" % (sM, sA, sB))
    a.e("s_lshl_b32 s%d, s%d, 10" % (sWK, sW))
    a.e("s_cmp_ge_u32 s%d, 14" % sM)
    a.e("s_cbranch_scc1 L_light")

def xvoff(a, t):
    a.e("v_lshrrev_b32 v2, 4, %s" % v(t))
    a.e("v_xor_b32 v2, v2, %s" % v(t))
    a.e("v_and_b32 v2, 7, v2")
    a.e("s_lshl_b32 s%d, s%d, 17" % (sA, sG))
    a.e("v_lshl_add_u32 v2, v2, 4, s%d" % sA)
    a.e("v_lshrrev_b32 v3, 3, %s" % v(t))
    a.e("v_lshl_add_u32 %s, v3, 10, v2" % v(vDX))

def setup_ids(a):
    a.e("s_mov_b64 %s, %s" % (sp(SKV), sp(SWS)))
    a.e("s_mov_b64 %s, %s" % (sp(SWD), sp(SOUT)))
    a.e("s_mov_b64 %s, %s" % (sp(SOUT), sp(SOUT + 4)))
    a.e("s_mov_b64 %s, %s" % (sp(SDBG), sp(SOUT + 6)))
    a.e("v_and_b32 v0, 63, v0")
    a.e("v_lshlrev_b32 %s, 4, v0" % v(vL16))
    a.e("s_andn2_b32 s%d, 1, s2" % sA)
    a.e("s_bfe_u32 s%d, s2, 0x20001" % sB)
    a.e("s_lshl2_add_u32 s%d, s%d, s%d" % (sA, sA, sB))
    a.e("s_bfe_u32 s%d, s2, 0x20003" % sB)
    a.e("s_lshl2_add_u32 s%d, s%d, s%d" % (sT, sA, sB))
    a.e("s_lshr_b32 s%d, s2, 5" % sCB)

def setup_rd(a):
    a.e("s_lshr_b32 s%d, s%d, 2" % (sHI, sW))
    a.e("s_and_b32 s%d, s%d, 3" % (sLO, sW))
    a.e("v_and_b32 v2, 15, v0")
    a.e("v_lshrrev_b32 v3, 4, v0")
    a.e("v_bfe_u32 v4, v0, 1, 3")
    a.e("v_xor_b32 v4, v4, v3")
    a.e("v_lshlrev_b32 v4, 4, v4")
    a.e("v_lshl_add_u32 %s, v2, 7, v4" % v(vXA))
    a.e("v_bfe_u32 v2, v0, 2, 2")
    a.e("v_and_b32 v4, 3, v0")
    a.e("v_lshl_add_u32 %s, v3, 3, v2" % v(vQA))
    a.e("v_lshlrev_b32 %s, 6, %s" % (v(vQA), v(vQA)))
    a.e("v_xor_b32 v5, s%d, v3" % sHI)
    a.e("v_and_b32 v5, 1, v5")
    a.e("v_lshl_add_u32 %s, v5, 5, %s" % (v(vQA), v(vQA)))
    a.e("v_lshl_add_u32 %s, v4, 3, %s" % (v(vQA), v(vQA)))

def setup_oclr(a):
    srd_words(a, [SWS, SKV, SDBG])
    a.e("s_mov_b32 s%d, 0xffff" % sVM)
    a.e("s_mov_b32 s%d, 0xffff" % (sVM + 1))
    a.e("s_lshl_b32 s%d, s%d, 2" % (sA, sG))
    a.e("s_add_u32 s%d, s%d, s%d" % (sA, sA, sLO))
    a.e("s_lshl_b32 s%d, s%d, 5" % (sB, sA))
    a.e("s_lshl_b32 s%d, s%d, 1" % (sC, sHP))
    a.e("s_add_u32 s%d, s%d, s%d" % (sB, sB, sC))
    a.e("s_add_u32 s%d, s%d, s%d" % (sB, sB, sHI))
    a.e("s_lshl_b32 s%d, s%d, 10" % (sB, sB))
    a.e("s_add_u32 s%d, s%d, 0x%x" % (sOST, sB, WS_OF))
    for i in range(4): a.e("v_mov_b32 %s, -1" % v(vQ + i))
    a.vmop("buffer_store_dwordx4 %s, %s, %s, s%d offen sc1" % (v(vQ, 4), v(vL16), srd(SWS), sOST), "oclr")
    a.e("v_mov_b32 %s, 1" % v(vONE))
    a.e("v_mov_b32 %s, 0" % v(vZERO))
    a.e("v_and_b32 %s, 31, v0" % v(vGA))
    a.e("v_lshlrev_b32 %s, 2, %s" % (v(vGA), v(vGA)))

def collect(fn):
    t = Asm(); t.marks = {}
    def vmop(s_, tag):
        t.e(s_); t.marks[len(t.l) - 1] = tag
    t.vmop = vmop
    fn(t)
    return [(x, t.marks.get(i)) for i, x in enumerate(t.l)]
def put(a, items):
    for x, tag in items:
        if tag: a.vmop(x, tag)
        else: a.e(x)

def setup_attn(a):
    srd_words(a, [SWD, SWO, SOUT])
    a.e("s_lshl_b32 s%d, s%d, 2" % (sA, sG))
    a.e("s_add_u32 s%d, s%d, s%d" % (sA, sA, sLO))
    a.e("s_mul_i32 s%d, s%d, 112" % (sB, sA))
    a.e("s_lshl_b32 s%d, s%d, 3" % (sC, sM))
    a.e("s_add_u32 s%d, s%d, s%d" % (sB, sB, sC))
    a.e("s_lshl_b32 s%d, s%d, 2" % (sC, sHI))
    a.e("s_add_u32 s%d, s%d, s%d" % (sB, sB, sC))
    a.e("s_and_b32 s%d, s%d, 1" % (sC, sLO))
    a.e("s_lshl_b32 s%d, s%d, 1" % (sC, sC))
    a.e("s_add_u32 s%d, s%d, s%d" % (sB, sB, sC))
    a.e("s_lshl_b32 s%d, s%d, 10" % (sB, sB))
    a.e("s_add_u32 s%d, s%d, 0x%x" % (sHST, sB, WS_HF))
    a.e("s_mul_i32 s%d, s%d, %d" % (sC, sC, 112 * 1024))
    a.e("s_sub_u32 s%d, %d, s%d" % (sC, 112 * 1024, sC))
    a.e("s_add_u32 s%d, s%d, s%d" % (sHST2, sHST, sC))
    a.e("v_bfe_u32 v2, v0, 2, 2")
    a.e("v_lshrrev_b32 v3, 5, v0")
    a.e("v_lshl_add_u32 v2, v3, 2, v2")
    a.e("v_lshlrev_b32 v2, 6, v2")
    a.e("v_bfe_u32 v3, v0, 4, 1")
    a.e("v_lshl_add_u32 v2, v3, 5, v2")
    a.e("v_and_b32 v3, 3, v0")
    a.e("v_lshl_add_u32 v2, v3, 3, v2")
    a.e("s_lshr_b32 s%d, s%d, 1" % (sA, sW))
    a.e("s_lshl_b32 s%d, s%d, 11" % (sA, sA))
    a.e("v_add_u32 %s, s%d, v2" % (v(vWDA), sA))
    a.e("v_add_u32 %s, 0x%x, %s" % (v(vKVA), L_KV, v(vL16)))
    a.e("v_bfe_u32 v2, v0, 2, 3")
    a.e("v_lshlrev_b32 v2, 10, v2")
    a.e("v_lshrrev_b32 v3, 5, v0")
    a.e("v_lshl_add_u32 v2, v3, 6, v2")
    a.e("v_and_b32 v3, 3, v0")
    a.e("v_lshl_add_u32 v2, v3, 4, v2")
    a.e("s_lshl_b32 s%d, s%d, 7" % (sB, sCB))
    a.e("v_add_u32 %s, s%d, v2" % (v(vWDV), sB))
    a.e("v_min_u32 v2, 13, v0")
    a.e("v_lshlrev_b32 v2, 7, v2")
    a.e("s_lshr_b32 s%d, s%d, 1" % (sA, sT))
    a.e("s_lshl_b32 s%d, s%d, 11" % (sA, sA))
    a.e("s_add_u32 s%d, s%d, 0x%x" % (sA, sA, WS_HFLAG))
    a.e("v_add_u32 %s, s%d, v2" % (v(vFLA), sA))
    a.e("s_lshl_b32 s%d, s%d, 1" % (sA, sT))
    a.e("s_and_b32 s%d, s%d, 1" % (sB, sW))
    a.e("s_add_u32 s%d, s%d, s%d" % (sA, sA, sB))
    a.e("s_lshl_b32 s%d, s%d, 15" % (sB, sA))
    a.e("s_lshr_b32 s%d, s%d, 1" % (sKQ, sW))
    if Opt.kqx:
        a.e("s_lshl_b32 s%d, s%d, 1" % (sC, sCB))
        a.e("s_and_b32 s%d, s%d, 2" % (sC, sC))
        a.e("s_xor_b32 s%d, s%d, s%d" % (sKQ, sKQ, sC))
    a.e("s_lshl_b32 s%d, s%d, 13" % (sC, sKQ))
    a.e("s_add_u32 s%d, s%d, s%d" % (sB, sB, sC))
    a.e("s_add_u32 s%d, s%d, 0x%x" % (sOLD, sB, WS_OF))
    if Opt.pvz:
        a.e("s_mov_b32 s%d, 0x110000" % sA)
        a.e("s_mov_b32 s%d, 0x110000" % sB)
        a.e("v_mov_b32 v3, 0x3f803f80")
        a.e("v_cndmask_b32 v2, 0, v3, %s" % sp(sA))
    else:
        a.e("v_mov_b32 v2, 0x3f803f80")
    for i in range(16): a.e("v_mov_b32 %s, v2" % v(vV + i))
    for i in range(4): a.e("v_mov_b32 %s, v2" % v(vV1L + i))
    a.e("v_mov_b32 %s, 0xdddd" % v(vIDX))
    a.e("v_lshrrev_b32 v2, 4, v0")
    a.e("v_lshl_add_u32 %s, v2, 8, %s" % (v(vHA), v(vL16)))
    for i in range(16): a.e("v_mov_b32 %s, 0" % v(vO + i))
    for i in range(32): a.e("v_mov_b32 %s, 0" % v(vD + i))
    c0 = -2.0 * math.sqrt(2.0 / math.pi) * math.log2(math.e)
    a.e("v_mov_b32 %s, 0x%x" % (v(vC0), f2u(c0)))
    a.e("v_mov_b32 %s, 0x%x" % (v(vC0 + 1), f2u(c0 * 0.044715)))

def kv_first_loads(a, quartet=False):
    it = []
    for o in (range(0, 16384, 4096) if quartet else range(0, 16384, 8192)):
        b = sWH if quartet else sWK
        it.append(("s_add_u32 m0, s%d, 0x%x\ns_add_u32 s%d, s%d, 0x%x\nbuffer_load_dwordx4 %s, %s, s%d offen sc1 lds"
                   % (b, L_KV + o, sA, b, o, v(vL16), srd(SKV), sA), "kv%d" % (o >> 13)))
    it.append(("s_mov_b32 s%d, 0x%x\nbuffer_load_dwordx4 %s, %s, %s, s%d offen sc1"
               % (sA, 63 * 2048, v(vK0, 4), v(vL16), srd(SKV), sA), "k0"))
    it.append(("s_mov_b64 exec, %s\nbuffer_load_dwordx4 %s, %s, %s, 0 offen offset:%d sc1\ns_mov_b64 exec, -1"
               % (sp(sVM), v(vV1L, 4), v(vL16), srd(SKV), 1024 + 256), "k0"))
    it.append(("s_lshl_b32 s%d, s%d, 2\ns_add_u32 s%d, s%d, s%d\ns_lshl_b32 s%d, s%d, 7\ns_add_u32 s%d, s%d, 0x%x\n"
               "buffer_load_dword %s, %s, %s, s%d offen sc1"
               % (sA, sG, sA, sA, sLO, sA, sA, sA, sA, WS_G, v(vGP), v(vGA), srd(SWS), sA), "k0"))
    it.append(("s_lshl_b32 s%d, s%d, 1\ns_and_b32 s%d, s%d, 1\ns_add_u32 s%d, s%d, s%d\ns_lshl_b32 s%d, s%d, 7\ns_add_u32 s%d, s%d, 0x%x\n"
               "buffer_load_dword %s, %s, %s, s%d offen sc1"
               % (sA, sT, sB, sW, sA, sA, sB, sA, sA, sA, sA, WS_G, v(vGC), v(vGA), srd(SWS), sA), "k0"))
    return it

def spin_counter(a, name, first_loaded, wave=0):
    a.e("s_cmp_lg_u32 s%d, %d" % (sW, wave))
    a.e("s_cbranch_scc1 L_%s_done" % name)
    a.e("s_mov_b32 s%d, 0x4000" % sB)
    if first_loaded: a.e("s_branch L_%s_chk" % name)
    a.lab("L_%s_re" % name)
    a.e("buffer_load_dword %s, off, %s, 0 sc1" % (v(vPOLL), srd(SDBG)))
    a.e("s_waitcnt vmcnt(0)")
    a.lab("L_%s_chk" % name)
    a.e("v_readfirstlane_b32 s%d, %s" % (sA, v(vPOLL)))
    a.e("s_cmp_ge_u32 s%d, 32" % sA)
    a.e("s_cbranch_scc1 L_%s_done" % name)
    a.e("s_sleep 4")
    a.e("s_sub_u32 s%d, s%d, 1" % (sB, sB))
    a.e("s_cmp_lg_u32 s%d, 0" % sB)
    a.e("s_cbranch_scc1 L_%s_re" % name)
    a.lab("L_%s_done" % name)

def phase1_F(a):
    SCHED = {1: ["01423567", "10253467", "23016457", "32104756"],
             2: ["02134657", "01324576", "10243567", "10235467"],
             3: ["01324657", "01243576", "12035467", "20134567"],
             5: ["01243567", "10325467", "23014657", "32104576"],
             6: ["01243567", "10325467", "01234657", "10324576"],
             4: ["02143657", "10325476", "02143657", "10325476"]}
    tabs = SCHED[Opt.sched] if Opt.sched else ["".join(str(c ^ (p & Opt.xmask)) for c in range(8)) for p in range(4)]
    for t_ in tabs: assert sorted(t_) == list("01234567")
    num = [int(t_[::-1], 16) for t_ in tabs]
    def table(a):
        a.e("s_add_u32 s%d, s%d, s%d" % (sA, sG, sHP))
        a.e("s_mov_b32 s%d, 0x%x" % (sXP, num[0]))
        a.e("s_mov_b32 s%d, 0x%x" % (sB, num[2]))
        a.e("s_bitcmp1_b32 s%d, 0" % sA)
        a.e("s_cselect_b32 s%d, 0x%x, s%d" % (sXP, num[1], sXP))
        a.e("s_cselect_b32 s%d, 0x%x, s%d" % (sB, num[3], sB))
        a.e("s_bitcmp1_b32 s%d, 1" % sA)
        a.e("s_cselect_b32 s%d, s%d, s%d" % (sXP, sB, sXP))
        if Opt.ghx:
            a.e("s_bitcmp1_b32 s%d, 3" % sG)
            a.e("s_cselect_b32 s%d, 0x44444444, 0" % sB)
            a.e("s_xor_b32 s%d, s%d, s%d" % (sXP, sXP, sB))
    fo, fw = {"0000": (0, 0), "0101": (0, 1), "0011": (1, 1), "0123": (0, 2)}["".join(t_[0] for t_ in tabs)]
    a.e("s_add_u32 s%d, s%d, s%d" % (sA, sG, sHP))
    a.e("s_bfe_u32 s%d, s%d, 0x%x" % (sCH, sA, fw << 16 | fo))
    if Opt.ghx: a.e("s_lshl2_add_u32 s%d, s%d, s%d" % (sCH, sD, sCH))
    a.e("s_and_b32 s%d, s%d, 0xc00" % (sWH, sWK))
    a.e("v_and_b32 %s, 0xff, v0" % v(vTID))

    def wvoff(a):
        a.e("v_lshrrev_b32 v2, 4, %s" % v(vTID))
        a.e("v_lshrrev_b32 v3, 5, %s" % v(vTID))
        a.e("v_bfi_b32 v3, 3, v2, v3")
        a.e("v_lshlrev_b32 v3, 1, v3")
        a.e("v_xor_b32 v3, v3, %s" % v(vTID))
        a.e("v_and_b32 v3, 15, v3")
        a.e("s_lshl_b32 s%d, s%d, 8" % (sA, sM))
        a.e("v_lshl_add_u32 v3, v3, 4, s%d" % sA)
        a.e("v_mul_u32_u24 v2, 3584, v2")
        a.e("v_add_u32 %s, v2, v3" % v(vDG))
    def qvoff(a):
        a.e("v_lshrrev_b32 v2, 4, %s" % v(vTID))
        a.e("v_and_b32 v2, 2, v2")
        a.e("v_xor_b32 v2, v2, %s" % v(vTID))
        a.e("v_and_b32 v2, 3, v2")
        a.e("s_lshl_b32 s%d, s%d, 6" % (sA, sHP))
        a.e("v_lshl_add_u32 v2, v2, 4, s%d" % sA)
        a.e("v_lshrrev_b32 v3, 2, %s" % v(vTID))
        a.e("v_lshl_add_u32 %s, v3, 10, v2" % v(vDQ))
    def stouch(a):
        if Opt.diag or Opt.probe >= 0: a.e("s_load_dwordx2 %s, s[0:1], 32" % sp(SWO))
        if not Opt.stch: return
        a.e("s_lshr_b32 s%d, s%d, 2" % (sA, sW))
        if Opt.ghx: a.e("s_lshl2_add_u32 s%d, s%d, s%d" % (sA, sD, sA))
        a.e("s_lshl_b32 s%d, s%d, 6" % (sA, sA))
        a.e("s_and_b32 s%d, s%d, 7" % (sB, sG))
        a.e("s_add_u32 s%d, s%d, s%d" % (sA, sA, sB))
        a.e("s_mul_i32 s%d, s%d, 28" % (sA, sA))
        a.e("s_bfe_u32 s%d, s%d, 0x10001" % (sB, sW))
        a.e("s_lshl1_add_u32 s%d, s%d, s%d" % (sB, sM, sB))
        a.e("s_add_u32 s%d, s%d, s%d" % (sA, sA, sB))
        a.e("s_lshl_b32 s%d, s%d, 7" % (sA, sA))
        a.e("s_bitcmp1_b32 s%d, 0" % sW)
        a.e("s_cselect_b64 %s, %s, %s" % (sp(SWKV), sp(SWU), sp(SWG)))
        a.e("s_add_u32 s%d, s%d, s%d" % (SWKV, SWKV, sA))
        a.e("s_addc_u32 s%d, s%d, 0" % (SWKV + 1, SWKV + 1))
        for i in range(Opt.stch):
            a.e("s_load_dwordx2 %s, %s, 0x%x" % (sp(sTMPP), sp(SWKV), 128 * 3584 + i * 8 * 3584 + 60))
    def wsrd(a):
        srd_words(a, [SWG])
        a.e("s_mov_b64 %s, %s" % (sp(SWU + 2), sp(SWG + 2)))

    if Opt.hrot:
        ORDER = [("q", 0)] + [(t_, 2 * h_ + j) for h_ in range(2) for t_, j in (("x", 0), ("x", 1), ("g", 0), ("u", 0), ("g", 1), ("u", 1))]
    else:
        ORDER = [("q", 0)] + [("x", j) for j in range(4)] + [(t_, j) for j in range(4) for t_ in "gu"]
    def block(items):
        out = []; lastc = None; lastw = None
        for c, kind, j in items:
            s = c % 3; pre = []
            if c != lastc:
                if c: pre.append("s_bfe_u32 s%d, s%d, 0x%x" % (sCH, sXP, 0x30000 + 4 * c))
                lastc = c; lastw = None
            fam = "w" if kind in "gu" else kind
            rot = Opt.hrot and fam != "q"
            if lastw is None or lastw[0] != fam or (rot and lastw[1] >> 1 != j >> 1):
                pre.append({"q": "s_lshl_b32 s%d, s%d, 16" % (sOFFW, sCH), "x": "s_lshl_b32 s%d, s%d, 7" % (sOFFW, sCH),
                            "w": "s_mul_i32 s%d, s%d, %d" % (sOFFW, sCH, 64 * 3584)}[fam])
                if rot: pre.append("s_%s_u32 s%d, s%d, s%d" % ("sub" if j >> 1 else "add", sOFFW, sOFFW, sRX if fam == "x" else sRW))
                lastw = (fam, 0)
            if lastw[1] != j:
                pre.append("s_add_u32 s%d, s%d, 0x%x" % (sOFFW, sOFFW, (j - lastw[1]) * (0x8000 if fam == "x" else 16 * 3584)))
                lastw = (fam, j)
            m0c, vo, rs = {"q": (L_WQ + s * 4096, vDQ, SWQ), "x": (L_X + s * 16384 + j * 4096, vDX, SX),
                           "g": (L_G + s * 16384 + j * 4096, vDG, SWG), "u": (L_U + s * 16384 + j * 4096, vDG, SWU)}[kind]
            nt = " nt" if Opt.ntx & (1 if rs == SX else 2) else ""
            out.append(("s_add_u32 m0, s%d, 0x%x\n%s\nbuffer_load_dwordx4 %s, %s, s%d offen%s lds"
                        % ((sM0B + (j >> 1)) if rot else sWH, m0c, "\n".join(pre) or "s_nop 0", v(vo), srd(rs), sOFFW, nt), "c%d" % c))
        return out
    def part(c, role): return [(c, k_, j) for k_, j in ORDER if (k_ in "gu") == (role == "A")]

    def rdsetup(a):
        setup_rd(a)
        a.e("v_lshl_add_u32 %s, v3, 3, v2" % v(vWA))
        a.e("v_lshlrev_b32 %s, 8, %s" % (v(vWA), v(vWA)))
        a.e("v_lshl_add_u32 %s, v4, 3, %s" % (v(vWA), v(vWA)))
        a.e("v_and_b32 v5, 1, v3")
        a.e("v_lshl_add_u32 v2, v5, 2, v2")
        a.e("s_lshl_b32 s%d, s%d, 2" % (sA, sHI))
        a.e("s_and_b32 s%d, s%d, 1" % (sB, sLO))
        a.e("s_lshl_b32 s%d, s%d, 1" % (sB, sB))
        a.e("s_add_u32 s%d, s%d, s%d" % (sA, sA, sB))
        a.e("v_xor_b32 v2, s%d, v2" % sA)
        a.e("v_lshl_add_u32 %s, v2, 5, %s" % (v(vWA), v(vWA)))
        a.e("v_xor_b32 %s, 32, %s" % (v(vWA + 1), v(vWA)))
        a.e("v_add_u32 %s, 0x%x, %s" % (v(vWA + 2), L_U - L_G, v(vWA)))
        a.e("v_add_u32 %s, 0x%x, %s" % (v(vWA + 3), L_U - L_G, v(vWA + 1)))
        a.e("s_lshl_b32 s%d, s%d, 12" % (sA, sLO))
        a.e("s_add_u32 s%d, s%d, 0x%x" % (sA, sA, L_X))
        a.e("v_add_u32 %s, s%d, %s" % (v(vXA), sA, v(vXA)))
        a.e("v_xor_b32 %s, 0x1000, %s" % (v(vXA + 1), v(vXA)))
        a.e("v_xor_b32 %s, 64, %s" % (v(vXA + 2), v(vXA)))
        a.e("v_xor_b32 %s, 64, %s" % (v(vXA + 3), v(vXA + 1)))
        a.e("v_add_u32 %s, 0x%x, %s" % (v(vQA), L_WQ, v(vQA)))

    a.e("s_cmp_ge_u32 s%d, 4" % sW)
    a.e("s_cbranch_scc1 L_setB")
    late = collect(setup_oclr) + collect(setup_attn)
    words = collect(lambda t: srd_words(t, [SWS, SKV, SDBG, SWD, SWO, SOUT]))
    late = [x for x in late if x not in words]
    oclr = [x for x in late if x[1] == "oclr"]
    if Opt.olate: late = [x for x in late if x[1] != "oclr"]
    else: oclr = []
    words += [("v_mov_b32 %s, 0" % v(r_), None) for r_ in (vGA, vWDV, vFLA, vHA)]
    st = collect(rdsetup) + words + late[:Opt.fillpre]
    fills = {"A": late[Opt.fillpre:], "B": late[Opt.fillpre:]}
    vms = {}
    wsrd(a); wvoff(a)
    a.e("s_waitcnt lgkmcnt(0)")
    a.stamp(2)
    if Opt.spos == 0: stouch(a)
    put(a, block(part(0, "A")))
    a.e("s_branch L_setA")
    vms["A"] = a.vm; a.vm = []
    a.lab("L_setB")
    srd_words(a, [SX]); xvoff(a, vTID)
    a.e("s_waitcnt lgkmcnt(0)")
    a.stamp(2)
    if Opt.spos == 0: stouch(a)
    put(a, block(part(0, "B")[1:]))
    srd_words(a, [SWQ]); qvoff(a)
    put(a, block(part(0, "B")[:1]))
    vms["B"] = a.vm
    for role in "BA":
        a.vm = vms[role]
        if role == "A": a.lab("L_setA")
        if Opt.spos == 1: stouch(a)
        table(a)
        setup_ids(a)
        if role == "A": srd_words(a, [SX, SWQ])
        else: wsrd(a)
        def touches():
            tm = sum(0xff << (8 * i) for i in range(4) if Opt.tch >> i & 1)
            setex = "s_bitcmp1_b32 s%d, 3\ns_cselect_b32 exec_lo, 0, 0x%x\ns_cselect_b32 exec_hi, 0x%x, 0" % (sG, tm, tm) if Opt.ghx \
                    else "s_mov_b32 exec_lo, 0x%x\ns_mov_b32 exec_hi, 0" % tm
            if Opt.tlb & 2 and role == "B":
                a.e("s_and_b32 s%d, s%d, 7" % (sA, sG))
                a.e("v_lshl_add_u32 v2, v0, 3, s%d" % sA)
                a.e("v_mul_u32_u24 v3, 3584, v2")
                a.e("s_and_b32 s%d, s%d, 1" % (sB, sW))
                a.e("s_lshl1_add_u32 s%d, s%d, s%d" % (sA, sM, sB))
                a.e("s_lshl_b32 s%d, s%d, 7" % (sA, sA))
                a.e(setex)
                a.e("s_cmp_ge_u32 s%d, 6" % sW)
                a.e("s_cbranch_scc1 L_tlbu")
                a.e("buffer_load_dword %s, v3, %s, s%d offen" % (v(vPOLL), srd(SWG), sA))
                a.e("s_branch L_tlbe")
                a.lab("L_tlbu")
                a.e("buffer_load_dword %s, v3, %s, s%d offen" % (v(vPOLL), srd(SWU), sA))
                a.lab("L_tlbe")
                a.e("s_mov_b64 exec, -1")
                a.vm.append("tlb")
            if Opt.tlb & 12 and role == "A":
                a.e("s_cmp_lg_u32 s%d, 0" % sW)
                a.e("s_cbranch_scc1 L_tlbx")
                a.e("s_and_b32 s%d, s%d, 7" % (sA, sG))
                a.e("v_lshl_add_u32 v2, v0, 3, s%d" % sA)
                a.e("v_lshlrev_b32 v3, 10, v2")
                a.e("s_lshl_b32 s%d, s%d, 6" % (sA, sHP))
                a.e(setex if Opt.tlb & 4 else "s_mov_b64 exec, 1")
                a.e("buffer_load_dword %s, v3, %s, s%d offen" % (v(vPOLL), srd(SWQ), sA))
                a.e("s_branch L_tlby")
                a.lab("L_tlbx")
                a.e("s_and_b32 s%d, s%d, 3" % (sA, sM))
                a.e("s_lshl2_add_u32 s%d, s%d, s%d" % (sA, sG, sA))
                a.e("s_lshl_b32 s%d, s%d, 15" % (sA, sA))
                a.e("v_lshl_add_u32 v3, v0, 10, s%d" % sA)
                a.e("s_lshr_b32 s%d, s%d, 3" % (sA, sG))
                a.e("s_lshl2_add_u32 s%d, s%d, s%d" % (sA, sA, sW) if Opt.ghx else "s_mov_b32 s%d, s%d" % (sA, sW))
                a.e("s_lshl_b32 s%d, s%d, 7" % (sA, sA))
                a.e("s_bitcmp1_b32 %d, s%d" % (Opt.tch if Opt.tlb & 8 else 0, sW))
                a.e("s_cselect_b32 exec_lo, -1, 1")
                a.e("s_mov_b32 exec_hi, 0")
                a.e("buffer_load_dword %s, v3, %s, s%d offen" % (v(vPOLL), srd(SX), sA))
                a.lab("L_tlby")
                a.e("s_mov_b64 exec, -1")
                a.vm.append("tlb")
        if Opt.tpos == 0: touches()
        if Opt.startbar: a.e("s_barrier")
        npre = min(Opt.npre, 8) if role == "A" else 5
        pn = block(part(1, role)[:npre])
        rest = st + (collect(qvoff) + collect(lambda t: xvoff(t, vTID)) if role == "A" else collect(wvoff))
        gap = len(rest) // (npre + Opt.pregap) + 1
        if Opt.tpos == 2:
            put(a, pn); touches(); npre = 0
        if Opt.tpos == 3 and role == "B":
            put(a, pn); touches(); npre = 0
        for i in range(npre):
            put(a, pn[:1]); pn = pn[1:]
            put(a, rest[:gap]); rest = rest[gap:]
        put(a, rest)
        if Opt.tpos == 1 or (Opt.tpos == 3 and role == "A"): touches()
        a.e("s_mov_b64 vcc, %d" % (-1 if role == "A" else 0))
        if role == "A":
            a.waitvm("c0", lgkm=True)
        else:
            a.e("s_setprio 1")
            a.waitvm("c0", lgkm=True)
            a.e("s_branch L_k0")
        vms[role] = a.vm
    stream = part(1, "A")[min(Opt.npre, 8):] + [(c, k_, j) for c in range(2, 8) for k_, j in ORDER]
    qa = [int(x, 16) for x in Opt.qa]; qb = [int(x, 16) for x in Opt.qb]
    def take(n, cmax):
        m = 0
        while m < n and m < len(stream) and stream[m][0] <= cmax: m += 1
        r_ = stream[:m]; del stream[:m]
        return block(r_)
    a.lab("L_k0")
    a.vm = vms["A"]
    ool = Asm()
    def dmablock(name, role, items, wait=None):
        a.e("s_cbranch_vcc%s L_%s" % ("nz" if role == "A" else "z", name))
        if wait: a.waitvm(wait, lgkm=True)
        a.lab("L_%s_r" % name)
        ool.lab("L_%s" % name)
        ool.vm = a.vm if role == "A" else vms["B"]
        for it_ in items:
            put(ool, [it_])
            put(ool, fills[role][:Opt.fillper]); fills[role] = fills[role][Opt.fillper:]
        if name in ("d7", "e7"): put(ool, fills[role]); fills[role] = []
        if wait: ool.waitvm(wait, lgkm=True)
        if role == "B": vms["B"] = ool.vm
        ool.e("s_branch L_%s_r" % name)
    a.ool = ool.l

    def fr(k):
        b = vF1 + 36 * (k % 2)
        return dict(x=b, w=b + 16, q=b + 32)
    def reads(k):
        c, s = divmod(k, 2); f = fr(k); sl = c % 3
        wo = sl * 16384 + s * 8192
        W = lambda i: [rdtr(f['w'] + 4 * i, vWA + i, wo), rdtr(f['w'] + 4 * i + 2, vWA + i, wo + 1024)]
        X = [rd128(f['x'] + 4 * b, vXA + 2 * s + (b >> 1), sl * 16384 + (b & 1) * 2048) for b in range(4)]
        return W(0) + X + W(2) + W(1) + W(3) + [rdtr(f['q'], vQA, sl * 4096 + s * 2048), rdtr(f['q'] + 2, vQA, sl * 4096 + s * 2048 + 256)]
    a.e("s_barrier")
    a.stamp(3)
    if Opt.kdiag or Opt.probe >= 18:
        kstamp(a, 2)
        a.e("s_waitcnt lgkmcnt(0)")
    for r in reads(0): a.e(r)
    if qa[0]: dmablock("d2", "A", take(qa[0], 2))
    for k in range(16):
        c, s = divmod(k, 2); f = fr(k)
        z = lambda x: None if k == 0 else x
        mf = []
        for n_, i in enumerate((0, 2, 1, 3)):
            for b in (range(4) if n_ % 2 == 0 else range(3, -1, -1)):
                d = vACC + 16 * b + 4 * i
                mf.append(mfma16(d, f['w'] + 4 * i, f['x'] + 4 * b, z(d)))
        for b in range(2): mf.append(mfma16(vAQ + 4 * b, f['q'], f['x'] + 4 * b, z(vAQ + 4 * b)))
        rds = reads(k + 1) if k < 15 else []
        if s == 0:
            a.e("s_waitcnt lgkmcnt(6)")
            for i, m in enumerate(mf):
                if i == 8: a.e("s_waitcnt lgkmcnt(8)")
                a.e(m)
                if i < len(rds): a.e(rds[i])
            continue
        a.e("s_waitcnt lgkmcnt(8)")
        for m in mf[:4]: a.e(m)
        if c <= 5:
            dmablock("e%d" % (c + 2), "B", take(qb[c], c + 2), "c%d" % (c + 1))
            assert not any(x[0] <= c + 1 for x in stream)
        if c == 7:
            a.e("s_waitcnt lgkmcnt(0)")
        elif c == 6:
            a.e("s_waitcnt lgkmcnt(0)")
            a.e("s_cbranch_vccz L_st7")
            a.e("s_setprio 1")
            a.e("s_waitcnt vmcnt(0)")
            a.e("s_barrier")
            a.lab("L_st7")
        else:
            a.e("s_barrier")
        if c < 7 and ((Opt.kdiag == 1 and Opt.diag) or Opt.probe == 21 + c):
            kstamp(a, 3 + c)
            a.e("s_waitcnt lgkmcnt(0)")
        if c + 3 < 8:
            items = take(qa[c + 1], c + 3)
            dmablock("d%d" % (c + 3), "A", items)
        for i, m in enumerate(mf[4:]):
            a.e(m)
            if i < len(rds): a.e(rds[i])
        if k == 11: assert not stream and not fills["A"] and not fills["B"]
        if k == 11:
            a.e("s_cbranch_vccnz L_st6")
            a.e("s_setprio 0")
            spin_counter(a, "kvf", False, 4)
            a.wait0()
            a.e("s_barrier")
            put(a, kv_first_loads(a, True) + oclr)
            a.lab("L_st6")
    a.kvA = (kv_first_loads(a) + oclr)[2:]
    a.stamp(4)

def phase1_L(a):
    a.lab("L_light")
    a.vm = []
    a.e("s_waitcnt lgkmcnt(0)")
    ptr_loads(a, ((SWKV, 16), (SWV, 24), (SGATE, 72), (SWO, 32)))
    srd_words(a, [SWKV, SWV, SGATE, SX])
    xvoff(a, 0)
    a.e("v_and_b32 v2, 63, v0")
    a.e("v_lshlrev_b32 %s, 4, v2" % v(vL16))
    a.e("s_sub_u32 s%d, s%d, 14" % (sCNT, sM))
    a.e("s_lshl_b32 s%d, s%d, 16" % (sOLD, sCNT))
    a.e("s_lshl_b32 s%d, s%d, 13" % (sHST, sCNT))
    a.e("s_add_u32 s%d, s%d, s%d" % (sWH, sHST, sWK))
    a.e("s_xor_b32 s%d, s%d, 0x2000" % (sHST, sHST))
    a.e("s_add_u32 s%d, s%d, 0x2000" % (sA, sWK))
    a.e("s_waitcnt lgkmcnt(0)")
    a.stamp(2)
    def xdma(c, base, so):
        a.vmop("s_add_u32 m0, s%d, 0x%x\ns_nop 0\nbuffer_load_dwordx4 %s, %s, s%d offen offset:%d lds"
               % (base, LL_X + c * 16384 - c * 128, v(vDX), srd(SX), so, c * 128), "c%d" % c)
    def wdma(u):
        for t, rs in enumerate((SWKV, SWV)):
            a.vmop("s_add_u32 m0, s%d, 0x%x\ns_nop 0\nbuffer_load_dwordx4 %s, %s, s%d offen lds"
                   % (sWK, LL_W + t * 16384 + u * 8192, v(vL16), srd(rs), sA if u else sWK), "w")
    wdma(0)
    a.vmop("s_mov_b32 m0, s%d\ns_nop 0\nbuffer_load_dwordx4 %s, %s, 0 offen lds" % (sHST, v(vL16), srd(SGATE)), "w")
    for c in range(8):
        if c == 4: wdma(1)
        xdma(c, sWH, sOLD)
        if c in (1, 3, 5): a.e("s_barrier")
    setup_ids(a)
    srd_words(a, [SWQ])
    setup_rd(a)
    a.e("v_lshrrev_b32 v3, 5, v0")
    a.e("v_bfrev_b32 v5, v4")
    a.e("v_lshrrev_b32 v5, 30, v5")
    a.e("s_cmp_ge_u32 s%d, 2" % sLO)
    a.e("s_cselect_b64 vcc, -1, 0")
    a.e("v_cndmask_b32 v4, v5, v4, vcc")
    a.e("v_lshl_add_u32 %s, v3, 3, v2" % v(vWA))
    a.e("v_lshlrev_b32 %s, 5, %s" % (v(vWA), v(vWA)))
    a.e("v_lshl_add_u32 %s, v4, 3, %s" % (v(vWA), v(vWA)))
    a.e("s_lshr_b32 s%d, s%d, 1" % (sA, sLO))
    a.e("s_lshl_b32 s%d, s%d, 14" % (sA, sA))
    a.e("s_add_u32 s%d, s%d, 0x%x" % (sA, sA, LL_W))
    a.e("v_add_u32 %s, s%d, %s" % (v(vWA), sA, v(vWA)))
    a.e("v_lshl_add_u32 %s, v3, 4, s%d" % (v(vWA + 1), sHST))
    a.e("s_and_b32 s%d, s%d, 1" % (sA, sLO))
    a.e("s_lshl_b32 s%d, s%d, 1" % (sB, sCNT))
    a.e("s_add_u32 s%d, s%d, s%d" % (sCNT, sA, sB))
    a.e("s_lshl_b32 s%d, s%d, 12" % (sA, sCNT))
    a.e("v_and_b32 v2, 31, v0")
    a.e("v_lshrrev_b32 v4, 1, v0")
    a.e("v_lshlrev_b32 v5, 1, v0")
    a.e("v_bfi_b32 v4, 4, v4, v5")
    a.e("v_bfi_b32 v4, 12, v4, v2")
    a.e("v_cndmask_b32 v2, v2, v4, vcc")
    a.e("v_bfe_u32 v4, v2, 1, 3")
    a.e("v_xor_b32 v4, v4, v3")
    a.e("v_lshlrev_b32 v4, 4, v4")
    a.e("v_lshl_add_u32 v4, v2, 7, v4")
    a.e("v_add_u32 %s, s%d, v4" % (v(vLX), sA))
    for s in range(1, 4): a.e("v_xor_b32 %s, %d, %s" % (v(vLX + s), 32 * s, v(vLX)))
    for s in range(4): a.e("v_add_u32 %s, 0x10000, %s" % (v(vLX + 4 + s), v(vLX + s)))
    a.e("s_waitcnt lgkmcnt(0)")
    setup_oclr(a)
    vm0 = list(a.vm)
    a.e("s_cmp_lg_u32 s%d, 0" % sHI)
    a.e("s_cbranch_scc1 L_lB")
    a.e("s_not_b64 %s, %s" % (sp(sTMPP), sp(sVM)))
    a.e("s_cmp_ge_u32 s%d, 2" % sLO)
    a.e("s_cbranch_scc1 L_lV")
    def chain(kind):
        a.vm = list(vm0)
        def fr(k):
            b = vFR + 8 * (k % 4)
            return b, b + 4
        def reads(k):
            c, s = divmod(k, 4); x, w = fr(k)
            r = [rd128(x, vLX + s + 4 * (c >> 2), (c & 3) * 16384), rdtr(w, vWA, k * 512), rdtr(w + 2, vWA, k * 512 + 128)]
            if kind == "K":
                r += ["s_mov_b64 exec, %s" % sp(sTMPP), rd128(w, vWA + 1, k * 32), "s_mov_b64 exec, -1"]
            return r
        for q in range(4):
            a.waitvm("c%d" % (2 * q + 1))
            a.e("s_barrier")
            nr = 4 if kind == "K" else 3
            for k in range(8 * q, 8 * q + 2):
                for r in reads(k): a.e(r)
            for k in range(8 * q, 8 * q + 8):
                if k + 2 < 8 * q + 8:
                    for r in reads(k + 2): a.e(r)
                left = min(2, 8 * q + 7 - k)
                a.e("s_waitcnt lgkmcnt(%d)" % (left * nr))
                x, w = fr(k)
                cc = None if k == 0 else vACC
                a.e(mfma(vACC, w, x, cc) if kind == "K" else mfma(vACC, x, w, cc))
        a.e("s_lshl_b32 s%d, s%d, 2" % (sA, sG))
        a.e("s_add_u32 s%d, s%d, s%d" % (sA, sA, sCNT))
        a.e("s_nop 12")
        if kind == "K":
            a.e("s_mov_b32 s%d, 0x%x" % (sC, f2u(0.25 * math.log2(math.e))))
            for i in range(8): a.e("v_mul_f32 %s, s%d, %s" % (v(vACC + i), sC, v(vACC + i)))
            a.e("v_mul_f32 %s, 0x%x, %s" % (v(vACC + 8), f2u(-math.log2(math.e)), v(vACC + 8)))
            a.e("v_exp_f32 %s, %s" % (v(vACC + 8), v(vACC + 8)))
            for i in range(4): a.e("v_cvt_pk_bf16_f32 %s, %s, %s" % (v(vFR + i), v(vACC + 2 * i), v(vACC + 2 * i + 1)))
            a.e("v_add_f32 %s, 1.0, %s" % (v(vACC + 8), v(vACC + 8)))
            a.e("v_rcp_f32 %s, %s" % (v(vACC + 8), v(vACC + 8)))
            a.e("s_add_u32 s%d, s%d, 63" % (sB, sA))
            a.e("s_and_b32 s%d, s%d, 63" % (sB, sB))
            a.e("s_lshl_b32 s%d, s%d, 11" % (sB, sB))
            a.e("buffer_store_dwordx4 %s, %s, %s, s%d offen sc1" % (v(vFR, 4), v(vL16), srd(SKV), sB))
            a.e("s_lshl_b32 s%d, s%d, 7" % (sB, sA))
            a.e("s_add_u32 s%d, s%d, 0x%x" % (sB, sB, WS_G))
            a.e("s_mov_b32 exec_hi, 0")
            a.e("buffer_store_dword %s, %s, %s, s%d offen sc1" % (v(vACC + 8), v(vGA), srd(SWS), sB))
            a.e("s_mov_b64 exec, -1")
        else:
            for i in range(8): a.e("v_cvt_pk_bf16_f32 %s, %s, %s" % (v(vFR + i), v(vACC + 2 * i), v(vACC + 2 * i + 1)))
            a.e("v_bfe_u32 v2, v0, 4, 1")
            a.e("v_add_u32 v2, s%d, v2" % sA)
            a.e("v_and_b32 v2, 63, v2")
            a.e("v_lshl_add_u32 v2, v2, 11, %s" % v(vL16))
            for i in range(4): a.e("v_cndmask_b32 %s, %s, %s, %s" % (v(vFR + i), v(vFR + 4 + i), v(vFR + i), sp(sVM)))
            a.e("buffer_store_dwordx4 %s, v2, %s, 0 offen offset:1024 sc1" % (v(vFR, 4), srd(SKV)))
        a.e("s_branch L_lJ")
    chain("K")
    a.lab("L_lV")
    chain("V")
    a.lab("L_lB")
    a.vm = list(vm0)
    a.e("s_cmp_lg_u32 s%d, 14" % sM)
    a.e("s_cbranch_scc1 L_nozf")
    a.e("s_cmp_lg_u32 s%d, 4" % sW)
    a.e("s_cbranch_scc1 L_nozf")
    a.e("v_lshlrev_b32 v2, 7, v0")
    a.e("s_lshl_b32 s%d, s%d, 11" % (sA, sG))
    a.e("s_add_u32 s%d, s%d, 0x%x" % (sA, sA, WS_HFLAG))
    a.e("s_mov_b64 exec, 0xffff")
    a.e("buffer_store_dword %s, v2, %s, s%d offen sc1" % (v(vZERO), srd(SWS), sA))
    a.e("s_mov_b64 exec, -1")
    a.lab("L_nozf")
    for q in range(4):
        a.waitvm("c%d" % (2 * q + 1))
        a.e("s_barrier")
    a.lab("L_lJ")
    a.e("v_lshrrev_b32 v3, 2, v0")
    a.e("v_lshlrev_b32 v3, 10, v3")
    a.e("v_lshrrev_b32 v4, 5, v0")
    a.e("v_lshlrev_b32 v4, 1, v4")
    a.e("v_xor_b32 v4, v4, v0")
    a.e("v_and_b32 v4, 3, v4")
    a.e("v_lshl_add_u32 v3, v4, 4, v3")
    a.e("s_lshl_b32 s%d, s%d, 14" % (sA, sW))
    a.e("s_lshl_b32 s%d, s%d, 6" % (sB, sHP))
    a.e("s_add_u32 s%d, s%d, s%d" % (sA, sA, sB))
    a.e("v_add_u32 %s, s%d, v3" % (v(vDQ), sA))
    a.e("s_xor_b32 s%d, s%d, 0x2000" % (sWH, sWH))
    a.e("s_xor_b32 s%d, s%d, 0x10000" % (sOLD, sOLD))
    a.wait0(lgkm=True)
    a.e("s_barrier")
    a.e("s_cmp_lg_u32 s%d, 0" % sW)
    a.e("s_cbranch_scc1 L_noat")
    a.e("s_mov_b64 exec, 1")
    a.e("buffer_atomic_add %s, off, %s, 0 sc1" % (v(vONE), srd(SDBG)))
    a.e("s_mov_b64 exec, -1")
    a.lab("L_noat")
    a.stamp(3)
    for c in range(8): xdma(c, sWH, sOLD)
    for p in range(4):
        a.e("s_add_u32 m0, s%d, 0x%x" % (sWK, LL_WQ + p * 8192))
        a.e("s_mov_b32 s%d, 0x%x" % (sA, p * 128 * 1024))
        a.e("buffer_load_dwordx4 %s, %s, s%d offen lds" % (v(vDQ), srd(SWQ), sA))
    setup_attn(a)
    if Opt.touch & 2:
        a.e("s_lshl_b32 s%d, s%d, 1" % (sA, sG))
        a.e("s_add_u32 s%d, s%d, s%d" % (sA, sA, sM))
        a.e("s_sub_u32 s%d, s%d, 14" % (sA, sA))
        a.e("s_lshl_b32 s%d, s%d, 3" % (sA, sA))
        a.e("s_add_u32 s%d, s%d, s%d" % (sA, sA, sW))
        a.e("v_lshlrev_b32 v2, 15, v0")
        a.e("s_lshl_b32 s%d, s%d, 7" % (sA, sA))
        a.e("buffer_load_dword %s, v2, %s, s%d offen" % (v(vPOLL), srd(SWO), sA))
        a.e("buffer_load_dword %s, v2, %s, s%d offen" % (v(vPOLL), srd(SWD), sA))
    a.e("s_lshl_b32 s%d, s%d, 12" % (sA, sLO))
    a.e("v_add_u32 %s, s%d, %s" % (v(vXA), sA, v(vXA)))
    a.e("v_xor_b32 %s, 64, %s" % (v(vXA + 1), v(vXA)))
    a.e("v_add_u32 %s, 0x10000, %s" % (v(vXA + 2), v(vXA)))
    a.e("v_add_u32 %s, 0x10000, %s" % (v(vXA + 3), v(vXA + 1)))
    a.e("v_add_u32 %s, 0x%x, %s" % (v(vQA), LL_WQ, v(vQA)))
    a.e("s_waitcnt vmcnt(%d)" % (2 if Opt.touch & 2 else 0))
    a.e("s_barrier")
    def fr(k): return vFR + 12 * (k % 3)
    def reads(k):
        c, s = divmod(k, 2); f = fr(k)
        return [rd128(f + 4 * b, vXA + s + 2 * (c >> 2), (c & 3) * 16384 + b * 2048) for b in range(2)] + \
               [rdtr(f + 8, vQA, k * 2048), rdtr(f + 10, vQA, k * 2048 + 256)]
    for k in range(2):
        for r in reads(k): a.e(r)
    for k in range(16):
        a.e("s_waitcnt lgkmcnt(%d)" % (4 * min(1, 15 - k)))
        for b in range(2): a.e(mfma16(vAQ + 4 * b, fr(k) + 8, fr(k) + 4 * b, None if k == 0 else vAQ + 4 * b))
        if k + 2 < 16:
            for r in reads(k + 2): a.e(r)
    spin_counter(a, "kvl", False)
    a.e("s_barrier")
    for s, t in kv_first_loads(a): a.e(s)
    a.wait0()
    a.stamp(4)
    a.e("s_branch L_join")

def gelu_tile(a, ti, scalar=False):
    acc = vACC + 16 * ti
    t = vFR
    o = vFR + 8 + 4 * ti
    pk = lambda r: v(r, 2)
    if scalar:
        for i in range(8): a.e("v_mul_f32 %s, %s, %s" % (v(t + i), v(acc + i), v(acc + i)))
        for i in range(8): a.e("v_fma_f32 %s, %s, %s, %s" % (v(t + i), v(t + i), v(vC0 + 1), v(vC0)))
        for i in range(8): a.e("v_mul_f32 %s, %s, %s" % (v(t + i), v(t + i), v(acc + i)))
        for i in range(8): a.e("v_exp_f32 %s, %s" % (v(t + i), v(t + i)))
        for i in range(8): a.e("v_add_f32 %s, 1.0, %s" % (v(t + i), v(t + i)))
        for i in range(8): a.e("v_rcp_f32 %s, %s" % (v(t + i), v(t + i)))
        for i in range(8): a.e("v_mul_f32 %s, %s, %s" % (v(acc + i), v(acc + i), v(acc + 8 + i)))
        for i in range(8): a.e("v_mul_f32 %s, %s, %s" % (v(acc + i), v(acc + i), v(t + i)))
    R4, R8 = (range(0), range(0)) if scalar else (range(4), range(8))
    for i in R4: a.e("v_pk_mul_f32 %s, %s, %s" % (pk(t + 2 * i), pk(acc + 2 * i), pk(acc + 2 * i)))
    for i in R4: a.e("v_pk_fma_f32 %s, %s, %s, %s op_sel:[0,1,0] op_sel_hi:[1,1,0]" % (pk(t + 2 * i), pk(t + 2 * i), pk(vC0), pk(vC0)))
    for i in R4: a.e("v_pk_mul_f32 %s, %s, %s" % (pk(t + 2 * i), pk(t + 2 * i), pk(acc + 2 * i)))
    for i in R8: a.e("v_exp_f32 %s, %s" % (v(t + i), v(t + i)))
    for i in R4: a.e("v_pk_add_f32 %s, %s, 1.0 op_sel_hi:[1,0]" % (pk(t + 2 * i), pk(t + 2 * i)))
    for i in R8: a.e("v_rcp_f32 %s, %s" % (v(t + i), v(t + i)))
    for i in R4: a.e("v_pk_mul_f32 %s, %s, %s" % (pk(acc + 2 * i), pk(acc + 2 * i), pk(acc + 8 + 2 * i)))
    for i in R4: a.e("v_pk_mul_f32 %s, %s, %s" % (pk(acc + 2 * i), pk(acc + 2 * i), pk(t + 2 * i)))
    for i in range(4): a.e("v_cvt_pk_bf16_f32 %s, %s, %s" % (v(o + i), v(acc + 2 * i), v(acc + 2 * i + 1)))
    a.vmop("buffer_store_dwordx4 %s, %s, %s, s%d offen offset:%d sc1" % (v(o, 4), v(vHA), srd(SWS), sHST2 if ti >> 1 else sHST, (ti & 1) * 256), "hst")

def Yseg(hset, toggle=False):
    out = []
    pos = [int(x, 17) for x in (Opt.ypos0 if hset is None else Opt.ypos1)]
    for t in range(2):
        S, Sn = vS + 16 * t, vS + 16 * (1 - t)
        K, V0, V1 = vKF + 4 * t, vV + 8 * t, vV + 8 * t + 4
        for e in range(1, 17):
            out.append("v_exp_f32 %s, %s" % (v(S + e - 1), v(S + e - 1)))
            if e == pos[0]: out.append(smfmac(vO, V1, Sn + 8))
            if e == pos[1]: out.append(mfma(Sn, K, vQ, None))
            if e == pos[2]: out.append(smfmac(vO, V0, S))
            if hset is not None:
                if e == 13 and t == 1 and toggle:
                    out.append("v_xor_b32 %s, 0x4000, %s" % (v(vKVA), v(vKVA)))
                    out.append("v_xor_b32 %s, 0x8000, %s" % (v(vWDA), v(vWDA)))
                if e == pos[3]: out.append(mfma(vD + 16 * t, vWF + 4 * t, vH + 4 * hset, vD + 16 * t))
    return out

def kv_reads(off):
    r = [rd128(vKF, vKVA, off), rd128(vKF + 4, vKVA, off + 2048), "s_mov_b64 exec, %s" % sp(sVM)]
    for t in range(2):
        r += [rd128(vV + 8 * t, vKVA, off + 2048 * t + 1024), rd128(vV + 8 * t + 4, vKVA, off + 2048 * t + 1280)]
    r.append("s_mov_b64 exec, -1")
    return r
def wd_reads(dst, addr, off):
    r = []
    for c in range(2):
        r += [rdtr(dst + 4 * c, addr, off + 512 * c), rdtr(dst + 4 * c + 2, addr, off + 512 * c + 1024)]
    return r

def wdrow(sg): return (32 * (sg >> 1) + 8 * (sg & 1)) * 1024

def attention(a, role, pre0=None):
    A = role == "A"
    def kvdma(u):
        a.vmop("s_add_u32 m0, s%d, 0x%x\ns_add_u32 s%d, s%d, 0x%x\nbuffer_load_dwordx4 %s, %s, s%d offen sc1 lds"
               % (sWK, L_KV + (u % 4) * 8192, sA, sWK, u * 8192, v(vL16), srd(SKV), sA), "kv%d" % u)
    def wddma(sg):
        a.vmop("s_add_u32 m0, s%d, 0x%x\ns_add_u32 s%d, s%d, 0x%x\nbuffer_load_dwordx4 %s, %s, s%d offen lds"
               % (sWK, L_WD + ((sg + 3) % 8) * 8192, sA, sWDOFF, wdrow(sg), v(vWDV), srd(SWD), sA), "wd%d" % sg)
    def wodma(j):
        a.vmop("s_add_u32 m0, s%d, 0x%x\ns_add_u32 s%d, s%d, 0x%x\nbuffer_load_dwordx4 %s, %s, s%d offen lds"
               % (sWK, L_WO + j * 8192, sA, sB, j * 16384, v(vWDV), srd(SWO), sA), "wo")
    def hload(sg, dst):
        a.vmop("s_add_u32 s%d, s%d, 0x%x\nbuffer_load_dwordx4 %s, %s, %s, s%d offen sc1"
               % (sA, sHOFF, sg * 1024, v(dst, 4), v(vL16), srd(SWS), sA), "h%d" % sg)
    for n in range(11):
        if not A and n == 0: a.e("s_barrier")
        if n % 2 == 1: astamp(a, 2 + n // 2)
        tags = []
        if A and n % 2 == 1: tags.append("kv%d" % ((n + 1) // 2))
        if not A and n % 2 == 0: tags.append("kv%d" % ((n + 2) // 2))
        if n == (3 if A else 2): tags.append("hst")
        if n == 10: tags.append("wd0")
        if n == 8 and A:
            a.e("s_cmp_lg_u32 s%d, 0" % sW)
            a.e("s_cbranch_scc1 L_hf_done")
            a.e("s_mov_b32 s%d, 0x4000" % sB)
            a.e("s_waitcnt vmcnt(2)")
            a.lab("L_hf_chk")
            a.e("v_cmp_ne_u32 vcc, 1, %s" % v(vPOLL))
            a.e("s_cbranch_vccz L_hf_done")
            a.e("s_sleep 2")
            a.e("buffer_load_dword %s, %s, %s, 0 offen sc1" % (v(vPOLL), v(vFLA), srd(SWS)))
            a.e("s_sub_u32 s%d, s%d, 1" % (sB, sB))
            a.e("s_cmp_lg_u32 s%d, 0" % sB)
            a.e("s_waitcnt vmcnt(0)")
            a.e("s_cbranch_scc1 L_hf_chk")
            a.lab("L_hf_done")
        a.waitvm(tags)
        if n == 5 and Opt.diag == 3 and A:
            a.e("v_mov_b32 v2, s%d" % sSTAMP)
            a.e("s_lshl_b32 s%d, s2, 3" % sA)
            a.e("s_add_u32 s%d, s%d, s%d" % (sA, sA, sW))
            a.e("s_lshl_b32 s%d, s%d, 7" % (sA, sA))
            a.e("s_add_u32 s%d, s%d, 0x%x" % (sA, sA, WS_STAMP))
            a.e("s_mov_b64 exec, 1")
            a.vmop("buffer_store_dword v2, off, %s, s%d offset:12 sc1" % (srd(SWS), sA), "st")
            a.e("s_mov_b64 exec, -1")
        if n == 3 and not A:
            a.e("s_cmp_ge_u32 s%d, 14" % sM)
            a.e("s_cbranch_scc1 L_nohf")
            a.e("s_cmp_lg_u32 s%d, 4" % sW)
            a.e("s_cbranch_scc1 L_nohf")
            a.e("s_lshl_b32 s%d, s%d, 4" % (sA, sG))
            a.e("s_add_u32 s%d, s%d, s%d" % (sA, sA, sM))
            a.e("s_lshl_b32 s%d, s%d, 7" % (sA, sA))
            a.e("s_add_u32 s%d, s%d, 0x%x" % (sA, sA, WS_HFLAG))
            a.e("s_mov_b64 exec, 1")
            a.e("buffer_store_dword %s, off, %s, s%d sc1" % (v(vONE), srd(SWS), sA))
            a.e("s_mov_b64 exec, -1")
            a.lab("L_nohf")
        for r in kv_reads((n % 8) * 4096): a.e(r)
        if n == 7 and A:
            a.e("s_cmp_lg_u32 s%d, 0" % sW)
            a.e("s_cbranch_scc1 L_hf_nol")
            a.e("buffer_load_dword %s, %s, %s, 0 offen sc1" % (v(vPOLL), v(vFLA), srd(SWS)))
            a.lab("L_hf_nol")
        if n == 0:
            kvdma(2); kvdma(3)
            a.e("s_mov_b32 s%d, s%d" % (sC, sKQ))
            a.e("s_mul_i32 s%d, s%d, %d" % (sWDOFF, sC, 448 * 1024))
            a.e("s_and_b32 s%d, s%d, 1" % (sB, sW))
            a.e("s_lshl_b32 s%d, s%d, 14" % (sA, sB))
            a.e("s_add_u32 s%d, s%d, s%d" % (sWDOFF, sWDOFF, sA))
            a.e("s_lshl_b32 s%d, s%d, 1" % (sA, sT))
            a.e("s_add_u32 s%d, s%d, s%d" % (sA, sA, sB))
            a.e("s_mul_i32 s%d, s%d, 112" % (sA, sA))
            a.e("s_mul_i32 s%d, s%d, 28" % (sB, sC))
            a.e("s_add_u32 s%d, s%d, s%d" % (sA, sA, sB))
            a.e("s_lshl_b32 s%d, s%d, 10" % (sA, sA))
            a.e("s_add_u32 s%d, s%d, 0x%x" % (sHOFF, sA, WS_HF))
        if (A and n % 2 == 1 and n >= 3): kvdma((n + 5) // 2)
        if (not A and n % 2 == 0 and n >= 2): kvdma((n + 6) // 2)
        if 1 <= n <= 3:
            a.e("s_lshl_b32 s%d, s%d, 17" % (sB, sKQ))
            a.e("s_and_b32 s%d, s%d, 1" % (sC, sW))
            a.e("s_lshl_b32 s%d, s%d, 13" % (sC, sC))
            a.e("s_add_u32 s%d, s%d, s%d" % (sB, sB, sC))
            for j in {1: (0, 1, 2), 2: (3, 4, 5), 3: (6, 7)}[n]: wodma(j)
        for sg in {4: (0, 1), 5: (2, 3), 6: (4, 5), 7: (6,)}.get(n, ()): wddma(sg)
        hreg = {0: vH + 12, 1: vH, 2: vH + 4, 24: vH + 16, 25: vH + 20, 26: vH + 24, 27: vH + 28}
        hs = {9: (0, 1, 24), 10: (2, 25, 26, 27)} if A else {8: (0, 1), 9: (2, 24, 25), 10: (26, 27)}
        for sg in hs.get(n, ()): hload(sg, hreg[sg])
        if n == 0 and pre0:
            pre0()
            a.stamp(5)
        a.e("s_waitcnt lgkmcnt(0)")
        a.e("s_call_b64 %s, L_Y%s" % (sp(sRET), role))
        if n == 0:
            a.e("s_branch L_X1%s" % role)
            a.lab("L_Y%s" % role)
            if A: a.e("s_barrier")
            for x in Yseg(None): a.e(x)
            if not A: a.e("s_barrier")
            a.e("s_setpc_b64 %s" % sp(sRET))
            a.lab("L_X1%s" % role)
    astamp(a, 7)
    a.e("s_add_u32 s%d, s%d, 0x%x" % (sHOFF, sHOFF, 3 * 1024))
    a.e("s_add_u32 s%d, s%d, 0x%x" % (sWDOFF, sWDOFF, wdrow(7)))
    a.e("s_mov_b32 s%d, 0x%x" % (sM0WD, ((7 + 3) % 8) * 8192))
    u0 = 8 if A else 9
    a.e("s_add_u32 s%d, s%d, 0x%x" % (sKVOFF, sWK, u0 * 8192))
    a.e("s_mov_b32 s%d, 6" % sCNT)
    a.waitvm(["h0", "wd1", "kv6"] if A else ["h0", "wd1"])
    a.e("s_branch L_loop%s_in" % role)
    a.l.append(".p2align 6")
    a.lab("L_loop%s" % role)
    for p in range(4):
        if p == 0 and Opt.diag and Opt.kdiag == 2:
            a.e("s_cmp_lg_u32 s%d, 4" % sCNT)
            a.e("s_cbranch_scc1 L_nst%s" % role)
            astamp(a, 8)
            a.lab("L_nst%s" % role)
        a.e("s_waitcnt vmcnt(5)")
        if p == 3: a.lab("L_loop%s_in" % role)
        for r in kv_reads(p * 4096): a.e(r)
        for r in wd_reads(vWF, vWDA, p * 8192): a.e(r)
        a.e("buffer_load_dwordx4 %s, %s, %s, s%d offen sc1" % (v(vH + 4 * ((p + 3) % 4), 4), v(vL16), srd(SWS), sHOFF))
        a.e("s_add_u32 m0, s%d, s%d" % (sWK, sM0WD))
        a.e("s_add_u32 s%d, s%d, 0x400" % (sHOFF, sHOFF))
        a.e("buffer_load_dwordx4 %s, %s, s%d offen lds" % (v(vWDV), srd(SWD), sWDOFF))
        a.e("s_add_u32 s%d, s%d, 0x%x" % (sWDOFF, sWDOFF, 0x6000 if p & 1 else 0x2000))
        a.e("s_add_u32 s%d, s%d, 0x2000" % (sM0WD, sM0WD))
        a.e("s_and_b32 s%d, s%d, 0xffff" % (sM0WD, sM0WD))
        if (p % 2 == 1) == A:
            a.e("s_and_b32 s%d, s%d, 0x7fff" % (sA, sKVOFF))
            a.e("s_add_u32 m0, s%d, 0x%x" % (sA, L_KV))
            a.e("s_nop 0")
            a.e("buffer_load_dwordx4 %s, %s, s%d offen sc1 lds" % (v(vL16), srd(SKV), sKVOFF))
            a.e("s_add_u32 s%d, s%d, 0x2000" % (sKVOFF, sKVOFF))
        if p == 3:
            a.e("s_sub_u32 s%d, s%d, 1" % (sCNT, sCNT))
            a.e("s_cmp_lg_u32 s%d, 0" % sCNT)
        a.e("s_waitcnt lgkmcnt(0)")
        if A: a.e("s_barrier")
        for x in Yseg(p, toggle=(p == 3)): a.e(x)
        if not A:
            if p == 3: a.e("s_cbranch_scc0 L_tail")
            a.e("s_barrier")
    a.e(("s_cbranch_scc1 L_loop%s" if A else "s_branch L_loop%s") % role)

def transition(a, role):
    A = role == "A"
    if A:
        a.vm = []
        a.lab("L_trA")
    else:
        a.lab("L_join")
        a.e("s_cmp_eq_u32 s%d, 0" % sHI)
        a.e("s_cbranch_scc1 L_trA")
        a.vmjoin = list(a.vm)
    def qfin():
        for i in range(4): a.e("v_cvt_pk_bf16_f32 %s, %s, %s" % (v(vQ + i), v(vAQ + 2 * i), v(vAQ + 2 * i + 1)))
        for i in range(8): a.e("v_mov_b32 %s, 0" % v(vS + 24 + i))
        a.e("v_permlane16_swap_b32 %s, %s" % (v(vQ), v(vQ + 2)))
        a.e("v_permlane16_swap_b32 %s, %s" % (v(vQ + 1), v(vQ + 3)))
    pre0 = None
    if A:
        a.e("s_setprio 1")
        a.e("s_cmp_ge_u32 s%d, 14" % sM)
        a.e("s_cbranch_scc1 L_nogA0")
        put(a, a.kvA[:1] + a.kvA[-1:])
        a.l.append(".p2align 3")
        for ti in range(Opt.gsc): gelu_tile(a, ti, True)
        a.lab("L_nogA0")
        qfin()
        a.waitvm(["k0", "kv0", "kv1"])
        a.e("s_setprio 0")
        a.e("s_barrier")
        a.e(mfma(vS, vK0, vQ, None))
        put(a, a.kvA[1:-1])
        def pre0():
            a.e("s_cmp_lt_u32 s%d, 14" % sM)
            a.e("s_cbranch_scc1 L_gA1")
            a.e("s_waitcnt vmcnt(0)")
            a.e("s_branch L_nogA1")
            a.l.append(".p2align 3")
            a.lab("L_gA1")
            for ti in range(Opt.gsc, 4): gelu_tile(a, ti)
            a.lab("L_nogA1")
            a.e("s_setprio 1")
    else:
        a.waitvm(["k0", "kv0", "kv1"])
        a.e("s_setprio 1")
        a.e("s_cmp_ge_u32 s%d, 14" % sM)
        a.l.append(".p2align 3")
        a.e("s_barrier")
        a.e("s_cbranch_scc1 L_nogB")
        for ti in range(4): gelu_tile(a, ti)
        a.lab("L_nogB")
        qfin()
        a.e("s_setprio 0")
        a.e("s_nop 0")
        a.e(mfma(vS, vK0, vQ, None))
        a.stamp(5)
    attention(a, role, pre0)
    if A: a.e("s_branch L_tail")

def tail(a):
    a.lab("L_tail")
    a.stamp(6)
    astamp(a, 9)
    if Opt.diag and Opt.kdiag == 2: a.e("s_waitcnt lgkmcnt(0)")
    a.e(smfmac(vO, vV1L, vS + 24))
    a.e("s_setprio 0")
    a.e("s_mov_b32 s%d, 0x%x" % (sC, f2u(2.0 ** -16)))
    a.e("s_mov_b32 s%d, 0x%x" % (sD, f2u(2.0 ** 100)))
    wf = [vFR, vFR + 8, vFR + 16]
    for i in range(2):
        for r in wd_reads(wf[i], vWDA, i * 8192): a.e(r)
    a.e("s_nop 0")
    t = vT0
    a.e("v_rcp_f32 %s, %s" % (v(t + 2), v(vO + 8)))
    a.e("v_pk_mul_f32 %s, %s, 0 op_sel_hi:[1,0]" % (v(t, 2), v(vO, 2)))
    for i in range(1, 4): a.e("v_pk_fma_f32 %s, %s, 0, %s op_sel_hi:[1,0,1]" % (v(t, 2), v(vO + 2 * i, 2), v(t, 2)))
    a.e("v_add_f32 %s, %s, %s" % (v(t), v(t), v(t + 1)))
    a.e("v_add_f32 %s, %s, %s" % (v(t), v(t), v(vO + 8)))
    a.e("v_cmp_nle_f32 vcc, s%d, %s" % (sC, v(t)))
    a.e("v_cmp_nge_f32 %s, s%d, %s" % (sp(sTMPP), sD, v(t)))
    a.e("s_or_b64 vcc, vcc, %s" % sp(sTMPP))
    a.e("s_branch L_fb" if Opt.force_fb else "s_cbranch_scc1 L_fb")
    a.lab("L_fbret")
    a.e("v_mul_f32 %s, %s, %s" % (v(t + 2), v(t + 2), v(vGP)))
    for i in range(4): a.e("v_pk_mul_f32 %s, %s, %s op_sel_hi:[1,0]" % (v(vO + 2 * i, 2), v(vO + 2 * i, 2), v(t + 2, 2)))
    for i in range(4): a.e("v_cvt_pk_bf16_f32 %s, %s, %s" % (v(vP + i), v(vO + 2 * i), v(vO + 2 * i + 1)))
    for i in range(4): a.e("v_min_u32 %s, -2, %s" % (v(vP + i), v(vP + i)))
    a.e("buffer_store_dwordx4 %s, %s, %s, s%d offen sc1" % (v(vP, 4), v(vL16), srd(SWS), sOST))
    HORD = [0, 2, 4, 6, 1, 3, 5, 7] if Opt.hord else list(range(8))
    def oload(j):
        return "buffer_load_dwordx4 %s, %s, %s, s%d offen offset:%d %s" % (
            v(vS + 4 * j, 4), v(vL16), srd(SWS), sOLD if HORD[j] < 4 else sA, (HORD[j] % 4) * 1024, Opt.old_pol)
    a.oload = oload
    aw = vXA
    ar = vWA
    def addrs(a):
        a.e("v_sub_f32 %s, 1.0, %s" % (v(vGC), v(vGC)))
        a.e("v_add_u32 %s, 0x%x, %s" % (v(vQA), L_WO, v(vWDA)))
        a.e("v_and_b32 v2, 31, v0")
        a.e("v_lshrrev_b32 v3, 5, v0")
        a.e("v_and_b32 v4, 7, v0")
        a.e("v_xor_b32 v3, v3, v4")
        a.e("v_lshlrev_b32 v3, 4, v3")
        a.e("v_lshl_add_u32 v3, v2, 8, v3")
        a.e("s_and_b32 s%d, s%d, 1" % (sB, sW))
        a.e("s_lshl_b32 s%d, s%d, 15" % (sB, sB))
        a.e("s_lshr_b32 s%d, s%d, 1" % (sC, sW))
        a.e("s_lshl_b32 s%d, s%d, 13" % (sD, sC))
        a.e("s_add_u32 s%d, s%d, s%d" % (sD, sD, sB))
        a.e("v_add_u32 %s, s%d, v3" % (v(aw), sD))
        for j in range(1, 4): a.e("v_xor_b32 %s, %d, %s" % (v(aw + j), 32 * j, v(aw)))
        a.e("v_lshrrev_b32 v2, 3, v0")
        a.e("v_lshlrev_b32 v3, 1, v4")
        a.e("v_xor_b32 v3, v3, v2")
        a.e("v_lshlrev_b32 v3, 4, v3")
        a.e("v_lshl_add_u32 v3, v2, 8, v3")
        a.e("s_lshl_b32 s%d, s%d, 11" % (sD, sC))
        a.e("s_add_u32 s%d, s%d, s%d" % (sD, sD, sB))
        a.e("v_add_u32 %s, s%d, v3" % (v(ar), sD))
        a.e("v_xor_b32 %s, 16, %s" % (v(ar + 1), v(ar)))
        a.e("v_lshlrev_b32 v4, 4, v4")
        a.e("v_lshl_add_u32 %s, v2, 10, v4" % v(ar + 2))
        a.e("s_lshl_b32 s%d, s%d, 13" % (sC, sC))
        a.e("s_add_u32 s%d, s%d, s%d" % (sB, sB, sC))
        a.e("s_lshl_b32 s%d, s%d, 16" % (sC, sT))
        a.e("s_add_u32 s%d, s%d, s%d" % (sB, sB, sC))
        a.e("s_lshl_b32 s%d, s%d, 7" % (sC, sCB))
        a.e("s_add_u32 s%d, s%d, s%d" % (sCNT, sB, sC))
        a.e("s_mov_b32 s%d, 0x2000" % sB)
    a.e("s_add_u32 s%d, s%d, 0x1000" % (sA, sOLD))
    ol = Asm(); a.ool2 = ol.l
    a.e("s_cmp_lg_u32 s%d, 0" % sHI)
    a.e("s_cbranch_scc1 L_tl1")
    if Opt.aearly:
        for j in range(8): a.e(oload(j))
    a.e("s_waitcnt vmcnt(%d)" % (9 if Opt.aearly else 1))
    a.e("s_branch L_tl2")
    a.lab("L_tl1")
    a.e("s_setprio 1")
    a.e("s_waitcnt vmcnt(1)")
    a.lab("L_tl2")
    a.e("s_barrier")
    hreg = {21: vH + 0, 22: vH + 4, 23: vH + 8, 24: vH + 16, 25: vH + 20, 26: vH + 24, 27: vH + 28}
    fl = collect(addrs)
    for i in range(7):
        if i + 2 < 7:
            for r in wd_reads(wf[(i + 2) % 3], vWDA, (i + 2) * 8192): a.e(r)
        else:
            for r in wd_reads(wf[(i + 2) % 3], vQA, HORD[i - 5] * 8192): a.e(r)
        a.e("s_waitcnt lgkmcnt(8)")
        for c in range(2):
            a.e(mfma(vD + 16 * c, wf[i % 3] + 4 * c, hreg[21 + i], vD + 16 * c))
            put(a, fl[:3]); fl = fl[3:]
    assert not fl
    a.e("s_cmp_lg_u32 s%d, 0" % sHI)
    a.e("s_cbranch_scc1 L_tl3" if Opt.aearly else "s_branch L_tl3")
    a.l.append(".p2align 3")
    a.e("s_nop 7")
    a.e("s_nop 0")
    for i in range(16): a.e("v_pk_mul_f32 %s, %s, %s op_sel:[0,1] op_sel_hi:[1,1]" % (v(vD + 2 * i, 2), v(vD + 2 * i, 2), v(vGP, 2)))
    if Opt.tbar == 0: a.e("s_barrier")
    a.lab("L_tl4")
    ol.lab("L_tl3")
    ol.e("s_setprio 0")
    if Opt.odelay: ol.e("s_waitcnt vmcnt(0)")
    for j in range(8):
        ol.e(oload(j))
        if j == 0: ol.e("s_nop 6")
        for i in range(4 * j, 4 * j + 4): ol.e("v_mul_f32 %s, %s, %s" % (v(vD + i), v(vGC), v(vD + i)))
    ol.e("s_barrier")
    ol.e("s_branch L_tl4")
    a.stamp(7)
    J1 = 8 - Opt.cskew
    wo = lambda j: wf[(j + 1) % 3] if j < J1 else vH + 8 * (j - J1)
    for j in range(8):
        o = vS + 4 * j
        if j + 2 < 8:
            for r in wd_reads(wo(j + 2), vQA, HORD[j + 2] * 8192): a.e(r)
        a.lab("L_ochk%d" % j)
        a.e("s_waitcnt vmcnt(%d)" % (7 - j))
        a.e("v_max3_u32 v2, %s, %s, %s" % (v(o), v(o + 1), v(o + 2)))
        a.e("v_max_u32 v2, v2, %s" % v(o + 3))
        a.e("v_cmp_eq_u32 vcc, -1, v2")
        a.e("s_cbranch_vccnz L_ore%d" % j)
        a.lab("L_ook%d" % j)
        a.e("s_waitcnt lgkmcnt(%d)" % (4 * min(2, 7 - j)))
        for c in range(2 if j < J1 else 1): a.e(mfma(vD + 16 * c, wo(j) + 4 * c, o, vD + 16 * c))
    wr = lambda c, j: "ds_write_b128 %s, %s offset:%d" % (v(aw + j), v(vD + 16 * c + 4 * j, 4), 128 * c)
    w0 = [wr(0, j) for j in range(4)]
    dist = 0
    for j in range(J1, 8):
        a.e(mfma(vD + 16, wo(j) + 4, vS + 4 * j, vD + 16)); dist += 1
        if dist < 12:
            a.e("s_nop 5"); dist += 6
        elif j < 7:
            a.e(w0.pop(0))
    a.stamp(8)
    if not Opt.cskew: a.e("s_nop 10")
    elif dist < 12: a.e("s_nop %d" % (11 - dist))
    n0 = len(w0)
    for x in w0: a.e(x)
    if Opt.cskew: a.e("s_nop %d" % (11 - n0))
    for j in range(4): a.e(wr(1, j))
    a.e("s_waitcnt lgkmcnt(0)")
    a.e("s_barrier")
    for p in range(4):
        for h in range(2): a.e(rd128(vS + 8 * p + 4 * h, ar + h, p * 8192))
    for p in range(1, 4):
        a.e("s_waitcnt lgkmcnt(%d)" % (6 - 2 * p))
        for i in range(4): a.e("v_pk_add_f32 %s, %s, %s" % (v(vS + 2 * i, 2), v(vS + 2 * i, 2), v(vS + 8 * p + 2 * i, 2)))
    for i in range(4): a.e("v_cvt_pk_bf16_f32 %s, %s, %s" % (v(vP + i), v(vS + 2 * i), v(vS + 2 * i + 1)))
    a.e("buffer_store_dwordx4 %s, %s, %s, s%d offen %s" % (v(vP, 4), v(ar + 2), srd(SOUT), sCNT, Opt.out_pol))
    if Opt.probe >= 0:
        a.e("s_waitcnt vmcnt(0)")
        a.stamp(9)
        if Opt.probe != 9:
            a.e("s_cmp_ge_u32 s%d, 14" % sM)
            a.e("s_cbranch_scc%d L_end" % (0 if Opt.probe_l else 1))
        a.e("s_sub_u32 s%d, s%d, s%d" % (sA, sSTAMP + 4, sSTAMP))
        a.e("s_mul_i32 s%d, s%d, %d" % (sA, sA, Opt.probe_mul - 1))
        a.e("s_min_u32 s%d, s%d, 100000" % (sA, sA))
        a.e("s_add_u32 s%d, s%d, 3800" % (sA, sA))
        if Opt.probe_w >= 0:
            a.e("s_cmp_lg_u32 s%d, %d" % (sHI, Opt.probe_w))
            a.e("s_cbranch_scc1 L_end")
        if Opt.probe_x >= 0:
            a.e("s_and_b32 s0, s2, 7")
            a.e("s_cmp_lg_u32 s0, %d" % Opt.probe_x)
            a.e("s_cbranch_scc1 L_end")
        a.lab("L_probe")
        a.e("s_memrealtime s[0:1]")
        a.e("s_waitcnt lgkmcnt(0)")
        a.e("s_sub_u32 s0, s0, s%d" % (sSTAMP + 4))
        a.e("s_cmp_lt_u32 s0, s%d" % sA)
        a.e("s_cbranch_scc1 L_probe")
    if Opt.pin == 9:
        a.e("s_waitcnt vmcnt(0)")
        a.stamp(9)
    if Opt.diag in (1, 2):
        a.e("s_waitcnt vmcnt(0)")
        a.stamp(9)
        a.e("s_mov_b32 s%d, s%d" % (sSTAMP + 3, sSTAMP))
        a.e("s_mov_b32 s%d, s%d" % (sSTAMP, sB))
        a.e("s_getreg_b32 s%d, hwreg(HW_REG_XCC_ID)" % (sSTAMP + 1))
        for i in range(20): a.e("v_mov_b32 %s, s%d" % (v(vS + i), sSTAMP + i))
        a.e("s_lshl_b32 s%d, s2, 3" % sA)
        a.e("s_add_u32 s%d, s%d, s%d" % (sA, sA, sW))
        a.e("s_lshl_b32 s%d, s%d, 7" % (sA, sA))
        a.e("s_add_u32 s%d, s%d, 0x%x" % (sA, sA, WS_STAMP))
        a.e("s_mov_b64 exec, 1")
        for i in range(5): a.e("buffer_store_dwordx4 %s, off, %s, s%d offset:%d" % (v(vS + 4 * i, 4), srd(SWS), sA, 16 * i))
    a.lab("L_end")
    a.e("s_endpgm")
    a.l += a.ool2
    for j in range(8):
        a.lab("L_ore%d" % j)
        a.e("s_sub_u32 s%d, s%d, 1" % (sB, sB))
        a.e("s_cbranch_scc1 L_ogive%d" % j)
        a.e("s_waitcnt vmcnt(0)")
        for i in range(j, 8): a.e(a.oload(i))
        a.e("s_branch L_ochk%d" % j)
        a.lab("L_ogive%d" % j)
        a.e("s_mov_b32 s%d, 0" % sB)
        a.e("s_branch L_ook%d" % j)

def fallback(a):
    a.lab("L_fb")
    m = vT0
    a.e("v_mov_b32 %s, 0xff800000" % v(m))
    a.e("s_mov_b32 s%d, 0" % sA)
    a.lab("L_fb1")
    a.e("buffer_load_dwordx4 %s, %s, %s, s%d offen sc1" % (v(vKF, 4), v(vL16), srd(SKV), sA))
    a.e("s_waitcnt vmcnt(0)")
    a.e(mfma(vS, vKF, vQ, None))
    a.e("s_add_u32 s%d, s%d, 2048" % (sA, sA))
    a.e("s_nop 11")
    for i in range(8): a.e("v_max3_f32 %s, %s, %s, %s" % (v(m), v(m), v(vS + 2 * i), v(vS + 2 * i + 1)))
    a.e("s_cmp_lt_u32 s%d, 0x20000" % sA)
    a.e("s_cbranch_scc1 L_fb1")
    a.e("v_mov_b32 %s, %s" % (v(m + 1), v(m)))
    a.e("s_nop 1")
    a.e("v_permlane32_swap_b32 %s, %s" % (v(m), v(m + 1)))
    a.e("s_nop 1")
    a.e("v_max_f32 %s, %s, %s" % (v(m), v(m), v(m + 1)))
    for i in range(16): a.e("v_sub_f32 %s, 0, %s" % (v(vS + 16 + i), v(m)))
    for i in range(16): a.e("v_mov_b32 %s, 0" % v(vO + i))
    a.e("s_mov_b32 s%d, 0" % sA)
    a.lab("L_fb2")
    a.e("s_add_u32 s%d, s%d, 0x%x" % (sB, sA, 63 * 2048))
    a.e("s_and_b32 s%d, s%d, 0x1ffff" % (sB, sB))
    a.e("buffer_load_dwordx4 %s, %s, %s, s%d offen sc1" % (v(vKF, 4), v(vL16), srd(SKV), sB))
    a.e("s_add_u32 s%d, s%d, 2048" % (sB, sA))
    a.e("s_and_b32 s%d, s%d, 0x1ffff" % (sB, sB))
    a.e("s_mov_b64 exec, %s" % sp(sVM))
    a.e("buffer_load_dwordx4 %s, %s, %s, s%d offen offset:1024 sc1" % (v(vV, 4), v(vL16), srd(SKV), sA))
    a.e("buffer_load_dwordx4 %s, %s, %s, s%d offen offset:1280 sc1" % (v(vV + 4, 4), v(vL16), srd(SKV), sB))
    a.e("s_mov_b64 exec, -1")
    a.e("s_waitcnt vmcnt(0)")
    a.e(mfma(vS, vKF, vQ, vS + 16))
    a.e("s_add_u32 s%d, s%d, 2048" % (sA, sA))
    a.e("s_nop 11")
    for i in range(16): a.e("v_exp_f32 %s, %s" % (v(vS + i), v(vS + i)))
    a.e("s_nop 2")
    a.e(smfmac(vO, vV, vS))
    a.e(smfmac(vO, vV + 4, vS + 8))
    a.e("s_cmp_lt_u32 s%d, 0x20000" % sA)
    a.e("s_cbranch_scc1 L_fb2")
    a.e("s_nop 11")
    a.e("v_rcp_f32 %s, %s" % (v(vT0 + 2), v(vO + 8)))
    a.e("s_branch L_fbret")

def build():
    a = Asm()
    prologue(a)
    phase1_F(a)
    transition(a, "B")
    tail(a)
    a.l += a.ool
    transition(a, "A")
    phase1_L(a)
    fallback(a)
    a.lab("L_codeend")
    for i, x in enumerate(a.l):
        if " sc1" in x and "sc0" not in x and ((Opt.allsc & 1 and "buffer_store" in x) or (Opt.allsc & 2 and "buffer_load" in x)):
            a.l[i] = x.replace(" sc1", " sc0 sc1")
    il = a.l.index("L_light:")
    for i, x in enumerate(a.l):
        if x.endswith(" lds") and "sc1" not in x and " nt" not in x:
            if (Opt.ntx & 4 and (srd(SWD) in x or srd(SWO) in x)) or (Opt.ntx & 8 and i > il):
                a.l[i] = x[:-4] + " nt lds"
    head = open("cdna_kernels/%s.s.ref" % NAME).read().split("\n")
    hdr = [l for l in head if l.startswith(";") and "@launch" not in l and "Override" not in l and "grid=" not in l]
    out = hdr + ["; @launch grid=(256,1,1) block=(512,1,1) lds=%d" % LDS_BYTES,
                 '.amdgcn_target "amdgcn-amd-amdhsa--gfx950"', ".text", ".globl %s_kernel" % NAME, ".p2align 8",
                 ".type %s_kernel,@function" % NAME,
                 ".set CODE_PF_MAX, L_codeend - L_nopf - 4" if Opt.code_pf else "",
                 "%s_kernel:" % NAME]
    out += ["; mapmode %d" % Opt.mapmode, "; xrot %d" % Opt.xrot]
    out += a.l
    out += ['.section .rodata,"a"', ".p2align 6", ".amdhsa_kernel %s_kernel" % NAME,
            "  .amdhsa_next_free_vgpr %d" % NV, "  .amdhsa_next_free_sgpr 102", "  .amdhsa_accum_offset 256",
            "  .amdhsa_group_segment_fixed_size 0", "  .amdhsa_kernarg_size 104", "  .amdhsa_user_sgpr_count 2",
            "  .amdhsa_user_sgpr_kernarg_segment_ptr 1", "  .amdhsa_system_sgpr_workgroup_id_x 1", ".end_amdhsa_kernel", ""]
    return "\n".join(out)

if __name__ == "__main__":
    path = sys.argv[1]
    for kv in sys.argv[2:]:
        k, val = kv.split("=")
        cur = getattr(Opt, k)
        setattr(Opt, k, val if isinstance(cur, str) else type(cur)(int(val)))
    open(path, "w").write(build())
```

```python
import sys, struct, math

NAME = "gated_mix__grouped_kv_mqa__geglu_ffn__prompt"

class Opt:
    diag = 0
    mapmode = 1
    force_fb = False
    allsc = 0
    out_pol = "sc0 sc1"
    code_pf = True
    xrot = 0
    pregap = 0
    old_pol = "sc1"
    ypos0 = "36g"
    ypos1 = "36bg"
    ypos2 = "36cg9"
    xtile = 0
    tpos = 1
    cskew = 0
    tch = 12
    stch = 0
    spos = 1
    tlb = 14
    olate = 1
    hrot = 0
    tbar = 0
    hord = 1
    cmap = 1
    kqx = 0
    oearly = 8
    conc = 1
    ghx = 1
    qa = "088888"
    qb = "577777"
    npre = 8
    stagger = 1
    rper = 2
    dma1 = 17
    kprio = 0
    dma0 = 8
    npd = 4
    kdiag = 0
    fillpre = 0
    fillper = 4
    gsc = 2
    sched = 0
    xmask = 1
    ntx = 0
    touch = 2
    rotg = 0
    rotm = 0
    startbar = 1
    pvz = 1
    pin = -1
    pin_ns = 60000
    probe = -1
    probe_x = -1
    probe_mul = 10
    probe_w = -1
    probe_l = 0

def f2u(x): return struct.unpack("<I", struct.pack("<f", x))[0]

WS_KV = 0
WS_G = 128 * 1024
WS_HFLAG = 192 * 1024
WS_OF = 1 << 20
WS_HF = 4 << 20
WS_STAMP = 12 << 20
WS_SIZE = 16 << 20
K1 = 1024
L_G, L_U, L_X, L_WQ = 0, 48 * K1, 96 * K1, 144 * K1
L_QX = 32 * K1
L_WD, L_WO, L_KV = 0, 64 * K1, 128 * K1
LL_X, LL_W, LL_GATE, LL_WQ = 0, 128 * K1, 144 * K1, 128 * K1
LDS_BYTES = 160 * K1

SX, SWG, SWU, SWQ, SWS, SWD, SWO, SOUT, SDBG, SWKV, SGATE, SKV = 4, 8, 12, 16, 20, 24, 28, 32, 36, 40, 44, 64
SWV = 72
sTMPP = 48
sW, sHI, sLO, sG, sM, sT, sCB = 50, 51, 52, 53, 54, 55, 56
sWK = 57
sWH = 58
sVM = 60
sRET = 62
sA, sB, sC, sD = 68, 69, 70, 71
sOFFW, sOFFQ, sCH, sXP = 72, 73, 74, 75
sHOFF, sWDOFF, sKVOFF, sHXO, sCNT = 72, 73, 74, 75, 77
sWXO, sWXD = 59, 81
sOST, sOLD, sHST = 78, 79, 80
sHST2 = 3
sRX, sRW, sM0B = 40, 41, 42
sKQ = 76
sHP = sM
sSTAMP = 82

def srd(b): return "s[%d:%d]" % (b, b + 3)
def sp(b): return "s[%d:%d]" % (b, b + 1)
def v(b, n=1): return "v%d" % b if n == 1 else "v[%d:%d]" % (b, b + n - 1)

vL16 = 1
vT0, vT1, vT2, vT3 = 2, 3, 4, 5
vGP, vGC = 6, 7
vKVA = 8
vWDA = 9
vWDV = 10
vONE = 11
vZERO = 12
vFLA = 13
vPOLL = 14
vGA = 15
vQ = 16
vK0 = 20
vV1L = 24
vIDX = 28
vKVB = 29
vP = 32
vV = 40
vO = 56
vD = 72
vACC = 104
vS = 104
vH = 136
vAQ = vP
vF1 = 168
vKF = 168
vWF = 176
vWX = 224
vHX = 232
vFR = 184
vLX = 224
vXA = 240
vWA = 244
vQA = 248
vDX, vDG, vDQ = 249, 250, 251
vC0 = 252
vTID = 255
vHA = 254
NV = 256

class Asm:
    def __init__(self):
        self.l = []
        self.vm = []
        self.nstamp = 0
    def e(self, s):
        for x in s.split("\n"):
            x = x.strip()
            if x: self.l.append("    " + x)
    def lab(self, s): self.l.append(s + ":")
    def vmop(self, s, tag):
        self.e(s); self.vm.append(tag)
    def vmn(self, tags):
        if isinstance(tags, str): tags = [tags]
        last = -1
        for i, t in enumerate(self.vm):
            if t in tags: last = i
        return None if last < 0 else len(self.vm) - 1 - last
    def waitvm(self, tags, lgkm=False):
        n = self.vmn(tags)
        if n is None:
            if lgkm: self.e("s_waitcnt lgkmcnt(0)")
            return
        assert n < 64
        self.e("s_waitcnt vmcnt(%d)%s" % (n, " lgkmcnt(0)" if lgkm else ""))
        self.vm = self.vm[len(self.vm) - n:] if n else []
    def wait0(self, lgkm=False):
        self.e("s_waitcnt vmcnt(0)%s" % (" lgkmcnt(0)" if lgkm else "")); self.vm = []
    def stamp(self, i, real=False):
        if Opt.probe == i:
            self.e("s_waitcnt lgkmcnt(0)")
            self.e("s_memrealtime %s" % sp(sSTAMP + 4))
            self.e("s_waitcnt lgkmcnt(0)")
        if Opt.pin == i:
            self.nstamp += 1
            self.e("s_waitcnt lgkmcnt(0)")
            self.e("s_cselect_b32 s%d, 1, 0" % (sSTAMP + 5))
            self.lab("L_pin%d" % self.nstamp)
            self.e("s_memrealtime s[0:1]")
            self.e("s_waitcnt lgkmcnt(0)")
            self.e("s_sub_u32 s0, s0, s%d" % sSTAMP)
            self.e("s_cmp_lt_u32 s0, %d" % (Opt.pin_ns // 10))
            self.e("s_cbranch_scc1 L_pin%d" % self.nstamp)
            self.e("s_cmp_lg_u32 s%d, 0" % (sSTAMP + 5))
        if Opt.diag and not Opt.kdiag and (Opt.diag == 1 or i == 9):
            self.e("s_waitcnt lgkmcnt(0)")
            self.e("s_memtime %s" % sp(sSTAMP + 2 * i))
            self.e("s_memrealtime %s" % sp(sRET))
            self.e("s_waitcnt lgkmcnt(0)")
            self.e("s_mov_b32 s%d, s%d" % (sSTAMP + 2 * i + 1, sRET))

def astamp(a, i):
    if Opt.diag and Opt.kdiag == 2: a.e("s_memtime %s" % sp(sSTAMP + 2 * i))

def kstamp(a, i):
    if Opt.probe == 18 + i: a.e("s_memrealtime %s" % sp(sSTAMP + 4))
    if Opt.diag and Opt.kdiag == 1: a.e("s_memtime %s" % sp(sSTAMP + 2 * i))

def mfma(d, a, b, c):
    return "v_mfma_f32_32x32x16_bf16 %s, %s, %s, %s" % (v(d, 16), v(a, 4), v(b, 4), "0" if c is None else v(c, 16))
def smfmac(d, a, b):
    return "v_smfmac_f32_32x32x32_bf16 %s, %s, %s, %s" % (v(d, 16), v(a, 4), v(b, 8), v(vIDX))
def mfma16(d, a, b, c):
    return "v_mfma_f32_16x16x32_bf16 %s, %s, %s, %s" % (v(d, 4), v(a, 4), v(b, 4), "0" if c is None else v(c, 4))
def rd128(d, a, off):
    assert 0 <= off < 65536
    return "ds_read_b128 %s, %s offset:%d" % (v(d, 4), v(a), off)
def rdtr(d, a, off):
    assert 0 <= off < 65536
    return "ds_read_b64_tr_b16 %s, %s offset:%d" % (v(d, 2), v(a), off)

def interleave(mf, fill, per=2):
    out = []
    fill = list(fill)
    for i, m in enumerate(mf):
        out.append(m)
        if i < len(mf) - 1:
            out += fill[:per]; fill = fill[per:]
    return out + fill

def srd_words(a, regs):
    sizes = {SX: 2048 * 1024, SWG: 512 * 3584, SWU: 512 * 3584, SWQ: 512 * 1024, SWS: WS_SIZE, SWKV: 16384, SWV: 16384,
             SGATE: 1024, SWD: 1792 * 1024, SWO: 512 * 1024, SOUT: 2048 * 1024, SDBG: 256, SKV: 128 * 1024}
    for reg in regs:
        a.e("s_mov_b32 s%d, 0x%x" % (reg + 2, sizes[reg]))
        a.e("s_mov_b32 s%d, 0x20000" % (reg + 3))

def ptr_loads(a, lst):
    for reg, off in lst: a.e("s_load_dwordx2 %s, s[0:1], %d" % (sp(reg), off))

def prologue(a):
    if Opt.diag or Opt.pin >= 0 or Opt.probe >= 0:
        a.e("s_memrealtime %s" % sp(sSTAMP))
        if Opt.diag in (1, 2): a.e("s_memtime %s" % sp(sSTAMP + 2))
    ptr_loads(a, ((SX, 0), (SWG, 48), (SWU, 56), (SWQ, 8)))
    a.e("s_load_dwordx8 s[%d:%d], s[0:1], 64" % (SOUT, SOUT + 7))
    if not (Opt.diag or Opt.probe >= 0): ptr_loads(a, ((SWS, 96), (SWO, 32)))
    if Opt.probe == 1: a.stamp(1)
    a.e("v_lshrrev_b32 v2, 6, v0")
    if Opt.code_pf:
        a.e("s_getpc_b64 %s" % sp(sRET))
        a.lab("L_nopf")
        a.e("s_and_b32 s%d, s2, -8" % sA)
        a.e("v_add_lshl_u32 v3, v2, s%d, 7" % sA)
        a.e("v_readfirstlane_b32 s%d, v2" % sW)
        a.e("v_min_u32 v3, CODE_PF_MAX, v3")
        a.e("global_load_dword %s, v3, %s" % (v(vPOLL), sp(sRET)))
    else:
        a.e("s_nop 0")
        a.e("v_readfirstlane_b32 s%d, v2" % sW)
    if Opt.diag or Opt.probe >= 0:
        a.e("s_load_dwordx2 %s, s[0:1], 96" % sp(SWS))
    a.e("s_cmpk_ge_u32 s2, 256")
    a.e("s_cbranch_scc1 L_end")
    a.e("s_and_b32 s%d, s2, 1" % sD)
    a.e("s_bfe_u32 s%d, s2, 0x30003" % sA)
    a.e("s_lshl3_add_u32 s%d, s%d, s%d" % (sG, sD, sA))
    a.e("s_bfe_u32 s%d, s2, 0x20001" % sA)
    a.e("s_lshr_b32 s%d, s2, 6" % sB)
    a.e("s_lshl2_add_u32 s%d, s%d, s%d" % (sM, sA, sB))
    a.e("s_lshl_b32 s%d, s%d, 10" % (sWK, sW))
    a.e("s_cmp_ge_u32 s%d, 14" % sM)
    a.e("s_cbranch_scc1 L_light")

def xvoff(a, t):
    a.e("v_lshrrev_b32 v2, 4, %s" % v(t))
    a.e("v_xor_b32 v2, v2, %s" % v(t))
    a.e("v_and_b32 v2, 7, v2")
    a.e("s_lshl_b32 s%d, s%d, 17" % (sA, sG))
    a.e("v_lshl_add_u32 v2, v2, 4, s%d" % sA)
    a.e("v_lshrrev_b32 v3, 3, %s" % v(t))
    a.e("v_lshl_add_u32 %s, v3, 10, v2" % v(vDX))

def setup_ids(a):
    a.e("s_mov_b64 %s, %s" % (sp(SKV), sp(SWS)))
    a.e("s_mov_b64 %s, %s" % (sp(SWD), sp(SOUT)))
    a.e("s_mov_b64 %s, %s" % (sp(SOUT), sp(SOUT + 4)))
    a.e("s_mov_b64 %s, %s" % (sp(SDBG), sp(SOUT + 6)))
    a.e("v_and_b32 v0, 63, v0")
    a.e("v_lshlrev_b32 %s, 4, v0" % v(vL16))
    a.e("s_andn2_b32 s%d, 1, s2" % sA)
    a.e("s_bfe_u32 s%d, s2, 0x20001" % sB)
    a.e("s_lshl2_add_u32 s%d, s%d, s%d" % (sA, sA, sB))
    a.e("s_bfe_u32 s%d, s2, 0x20003" % sB)
    a.e("s_lshl2_add_u32 s%d, s%d, s%d" % (sT, sA, sB))
    a.e("s_lshr_b32 s%d, s2, 5" % sCB)

def setup_rd(a):
    a.e("s_lshr_b32 s%d, s%d, 2" % (sHI, sW))
    a.e("s_and_b32 s%d, s%d, 3" % (sLO, sW))
    a.e("v_and_b32 v2, 15, v0")
    a.e("v_lshrrev_b32 v3, 4, v0")
    a.e("v_bfe_u32 v4, v0, 1, 3")
    a.e("v_xor_b32 v4, v4, v3")
    a.e("v_lshlrev_b32 v4, 4, v4")
    a.e("v_lshl_add_u32 %s, v2, 7, v4" % v(vXA))
    a.e("v_bfe_u32 v2, v0, 2, 2")
    a.e("v_and_b32 v4, 3, v0")
    a.e("v_lshl_add_u32 %s, v3, 3, v2" % v(vQA))
    a.e("v_lshlrev_b32 %s, 6, %s" % (v(vQA), v(vQA)))
    a.e("v_xor_b32 v5, s%d, v3" % sHI)
    a.e("v_and_b32 v5, 1, v5")
    a.e("v_lshl_add_u32 %s, v5, 5, %s" % (v(vQA), v(vQA)))
    a.e("v_lshl_add_u32 %s, v4, 3, %s" % (v(vQA), v(vQA)))

def setup_oclr(a):
    srd_words(a, [SWS, SKV, SDBG])
    a.e("s_mov_b32 s%d, 0xffff" % sVM)
    a.e("s_mov_b32 s%d, 0xffff" % (sVM + 1))
    a.e("s_lshl_b32 s%d, s%d, 2" % (sA, sG))
    a.e("s_add_u32 s%d, s%d, s%d" % (sA, sA, sLO))
    a.e("s_lshl_b32 s%d, s%d, 5" % (sB, sA))
    a.e("s_lshl_b32 s%d, s%d, 1" % (sC, sHP))
    a.e("s_add_u32 s%d, s%d, s%d" % (sB, sB, sC))
    a.e("s_add_u32 s%d, s%d, s%d" % (sB, sB, sHI))
    a.e("s_lshl_b32 s%d, s%d, 10" % (sB, sB))
    a.e("s_add_u32 s%d, s%d, 0x%x" % (sOST, sB, WS_OF))
    for i in range(4): a.e("v_mov_b32 %s, -1" % v(vQ + i))
    a.vmop("buffer_store_dwordx4 %s, %s, %s, s%d offen sc1" % (v(vQ, 4), v(vL16), srd(SWS), sOST), "oclr")
    a.e("v_mov_b32 %s, 1" % v(vONE))
    a.e("v_mov_b32 %s, 0" % v(vZERO))
    a.e("v_and_b32 %s, 31, v0" % v(vGA))
    a.e("v_lshlrev_b32 %s, 2, %s" % (v(vGA), v(vGA)))

def collect(fn):
    t = Asm(); t.marks = {}
    def vmop(s_, tag):
        t.e(s_); t.marks[len(t.l) - 1] = tag
    t.vmop = vmop
    fn(t)
    return [(x, t.marks.get(i)) for i, x in enumerate(t.l)]
def put(a, items):
    for x, tag in items:
        if tag: a.vmop(x, tag)
        else: a.e(x)

def setup_attn(a):
    srd_words(a, [SWD, SWO, SOUT])
    a.e("s_lshl_b32 s%d, s%d, 2" % (sA, sG))
    a.e("s_add_u32 s%d, s%d, s%d" % (sA, sA, sLO))
    a.e("s_mul_i32 s%d, s%d, 112" % (sB, sA))
    a.e("s_lshl_b32 s%d, s%d, 3" % (sC, sM))
    a.e("s_add_u32 s%d, s%d, s%d" % (sB, sB, sC))
    a.e("s_lshl_b32 s%d, s%d, 2" % (sC, sHI))
    a.e("s_add_u32 s%d, s%d, s%d" % (sB, sB, sC))
    a.e("s_and_b32 s%d, s%d, 1" % (sC, sLO))
    a.e("s_lshl_b32 s%d, s%d, 1" % (sC, sC))
    a.e("s_add_u32 s%d, s%d, s%d" % (sB, sB, sC))
    a.e("s_lshl_b32 s%d, s%d, 10" % (sB, sB))
    a.e("s_add_u32 s%d, s%d, 0x%x" % (sHST, sB, WS_HF))
    a.e("s_mul_i32 s%d, s%d, %d" % (sC, sC, 112 * 1024))
    a.e("s_sub_u32 s%d, %d, s%d" % (sC, 112 * 1024, sC))
    a.e("s_add_u32 s%d, s%d, s%d" % (sHST2, sHST, sC))
    a.e("v_bfe_u32 v2, v0, 2, 2")
    a.e("v_lshrrev_b32 v3, 5, v0")
    a.e("v_lshl_add_u32 v2, v3, 2, v2")
    a.e("v_lshlrev_b32 v2, 6, v2")
    a.e("v_bfe_u32 v3, v0, 4, 1")
    a.e("v_lshl_add_u32 v2, v3, 5, v2")
    a.e("v_and_b32 v3, 3, v0")
    a.e("v_lshl_add_u32 v2, v3, 3, v2")
    a.e("s_lshr_b32 s%d, s%d, 1" % (sA, sW))
    a.e("s_lshl_b32 s%d, s%d, 11" % (sA, sA))
    a.e("v_add_u32 %s, s%d, v2" % (v(vWDA), sA))
    a.e("v_add_u32 %s, 0x%x, %s" % (v(vKVA), L_KV, v(vL16)))
    a.e("v_add_u32 %s, 0x%x, %s" % (v(vKVB), L_KV + 0x4000, v(vL16)))
    a.e("v_bfe_u32 v2, v0, 2, 3")
    a.e("v_lshlrev_b32 v2, 10, v2")
    a.e("v_lshrrev_b32 v3, 5, v0")
    a.e("v_lshl_add_u32 v2, v3, 6, v2")
    a.e("v_and_b32 v3, 3, v0")
    a.e("v_lshl_add_u32 v2, v3, 4, v2")
    a.e("s_lshl_b32 s%d, s%d, 7" % (sB, sCB))
    a.e("v_add_u32 %s, s%d, v2" % (v(vWDV), sB))
    a.e("v_min_u32 v2, 13, v0")
    a.e("v_lshlrev_b32 v2, 7, v2")
    a.e("s_lshr_b32 s%d, s%d, 1" % (sA, sT))
    a.e("s_lshl_b32 s%d, s%d, 11" % (sA, sA))
    a.e("s_add_u32 s%d, s%d, 0x%x" % (sA, sA, WS_HFLAG))
    a.e("v_add_u32 %s, s%d, v2" % (v(vFLA), sA))
    a.e("s_lshl_b32 s%d, s%d, 1" % (sA, sT))
    a.e("s_and_b32 s%d, s%d, 1" % (sB, sW))
    a.e("s_add_u32 s%d, s%d, s%d" % (sA, sA, sB))
    a.e("s_lshl_b32 s%d, s%d, 15" % (sB, sA))
    a.e("s_lshr_b32 s%d, s%d, 1" % (sKQ, sW))
    if Opt.kqx:
        a.e("s_lshl_b32 s%d, s%d, 1" % (sC, sCB))
        a.e("s_and_b32 s%d, s%d, 2" % (sC, sC))
        a.e("s_xor_b32 s%d, s%d, s%d" % (sKQ, sKQ, sC))
    a.e("s_lshl_b32 s%d, s%d, 13" % (sC, sKQ))
    a.e("s_add_u32 s%d, s%d, s%d" % (sB, sB, sC))
    a.e("s_add_u32 s%d, s%d, 0x%x" % (sOLD, sB, WS_OF))
    if Opt.pvz:
        a.e("s_mov_b32 s%d, 0x110000" % sA)
        a.e("s_mov_b32 s%d, 0x110000" % sB)
        a.e("v_mov_b32 v3, 0x3f803f80")
        a.e("v_cndmask_b32 v2, 0, v3, %s" % sp(sA))
    else:
        a.e("v_mov_b32 v2, 0x3f803f80")
    for i in range(16): a.e("v_mov_b32 %s, v2" % v(vV + i))
    for i in range(4): a.e("v_mov_b32 %s, v2" % v(vV1L + i))
    a.e("v_mov_b32 %s, 0xdddd" % v(vIDX))
    a.e("v_lshrrev_b32 v2, 4, v0")
    a.e("v_lshl_add_u32 %s, v2, 8, %s" % (v(vHA), v(vL16)))
    for i in range(16): a.e("v_mov_b32 %s, 0" % v(vO + i))
    for i in range(32): a.e("v_mov_b32 %s, 0" % v(vD + i))
    c0 = -2.0 * math.sqrt(2.0 / math.pi) * math.log2(math.e)
    a.e("v_mov_b32 %s, 0x%x" % (v(vC0), f2u(c0)))
    a.e("v_mov_b32 %s, 0x%x" % (v(vC0 + 1), f2u(c0 * 0.044715)))

def kv_first_loads(a, quartet=False):
    it = []
    for o in (range(0, 16384, 4096) if quartet else range(0, 16384, 8192)):
        b = sWH if quartet else sWK
        it.append(("s_add_u32 m0, s%d, 0x%x\ns_add_u32 s%d, s%d, 0x%x\nbuffer_load_dwordx4 %s, %s, s%d offen sc1 lds"
                   % (b, L_KV + o, sA, b, o, v(vL16), srd(SKV), sA), "kv%d" % (o >> 13)))
    it.append(("s_mov_b32 s%d, 0x%x\nbuffer_load_dwordx4 %s, %s, %s, s%d offen sc1"
               % (sA, 63 * 2048, v(vK0, 4), v(vL16), srd(SKV), sA), "k0"))
    it.append(("s_mov_b64 exec, %s\nbuffer_load_dwordx4 %s, %s, %s, 0 offen offset:%d sc1\ns_mov_b64 exec, -1"
               % (sp(sVM), v(vV1L, 4), v(vL16), srd(SKV), 1024 + 256), "k0"))
    it.append(("s_lshl_b32 s%d, s%d, 2\ns_add_u32 s%d, s%d, s%d\ns_lshl_b32 s%d, s%d, 7\ns_add_u32 s%d, s%d, 0x%x\n"
               "buffer_load_dword %s, %s, %s, s%d offen sc1"
               % (sA, sG, sA, sA, sLO, sA, sA, sA, sA, WS_G, v(vGP), v(vGA), srd(SWS), sA), "k0"))
    it.append(("s_lshl_b32 s%d, s%d, 1\ns_and_b32 s%d, s%d, 1\ns_add_u32 s%d, s%d, s%d\ns_lshl_b32 s%d, s%d, 7\ns_add_u32 s%d, s%d, 0x%x\n"
               "buffer_load_dword %s, %s, %s, s%d offen sc1"
               % (sA, sT, sB, sW, sA, sA, sB, sA, sA, sA, sA, WS_G, v(vGC), v(vGA), srd(SWS), sA), "k0"))
    return it

def spin_counter(a, name, first_loaded, wave=0):
    a.e("s_cmp_lg_u32 s%d, %d" % (sW, wave))
    a.e("s_cbranch_scc1 L_%s_done" % name)
    a.e("s_mov_b32 s%d, 0x4000" % sB)
    if first_loaded: a.e("s_branch L_%s_chk" % name)
    a.lab("L_%s_re" % name)
    a.e("buffer_load_dword %s, off, %s, 0 sc1" % (v(vPOLL), srd(SDBG)))
    a.e("s_waitcnt vmcnt(0)")
    a.lab("L_%s_chk" % name)
    a.e("v_readfirstlane_b32 s%d, %s" % (sA, v(vPOLL)))
    a.e("s_cmp_ge_u32 s%d, 32" % sA)
    a.e("s_cbranch_scc1 L_%s_done" % name)
    a.e("s_sleep 4")
    a.e("s_sub_u32 s%d, s%d, 1" % (sB, sB))
    a.e("s_cmp_lg_u32 s%d, 0" % sB)
    a.e("s_cbranch_scc1 L_%s_re" % name)
    a.lab("L_%s_done" % name)

def phase1_F(a):
    SCHED = {1: ["01423567", "10253467", "23016457", "32104756"],
             2: ["02134657", "01324576", "10243567", "10235467"],
             3: ["01324657", "01243576", "12035467", "20134567"],
             5: ["01243567", "10325467", "23014657", "32104576"],
             6: ["01243567", "10325467", "01234657", "10324576"],
             4: ["02143657", "10325476", "02143657", "10325476"]}
    tabs = SCHED[Opt.sched] if Opt.sched else ["".join(str(c ^ (p & Opt.xmask)) for c in range(8)) for p in range(4)]
    for t_ in tabs: assert sorted(t_) == list("01234567")
    num = [int(t_[::-1], 16) for t_ in tabs]
    def table(a):
        a.e("s_add_u32 s%d, s%d, s%d" % (sA, sG, sHP))
        a.e("s_mov_b32 s%d, 0x%x" % (sXP, num[0]))
        a.e("s_mov_b32 s%d, 0x%x" % (sB, num[2]))
        a.e("s_bitcmp1_b32 s%d, 0" % sA)
        a.e("s_cselect_b32 s%d, 0x%x, s%d" % (sXP, num[1], sXP))
        a.e("s_cselect_b32 s%d, 0x%x, s%d" % (sB, num[3], sB))
        a.e("s_bitcmp1_b32 s%d, 1" % sA)
        a.e("s_cselect_b32 s%d, s%d, s%d" % (sXP, sB, sXP))
        if Opt.ghx:
            a.e("s_bitcmp1_b32 s%d, 3" % sG)
            a.e("s_cselect_b32 s%d, 0x44444444, 0" % sB)
            a.e("s_xor_b32 s%d, s%d, s%d" % (sXP, sXP, sB))
    fo, fw = {"0000": (0, 0), "0101": (0, 1), "0011": (1, 1), "0123": (0, 2)}["".join(t_[0] for t_ in tabs)]
    a.e("s_add_u32 s%d, s%d, s%d" % (sA, sG, sHP))
    a.e("s_bfe_u32 s%d, s%d, 0x%x" % (sCH, sA, fw << 16 | fo))
    if Opt.ghx: a.e("s_lshl2_add_u32 s%d, s%d, s%d" % (sCH, sD, sCH))
    a.e("s_and_b32 s%d, s%d, 0xc00" % (sWH, sWK))
    a.e("v_and_b32 %s, 0xff, v0" % v(vTID))

    def wvoff(a):
        a.e("v_lshrrev_b32 v2, 4, %s" % v(vTID))
        a.e("v_lshrrev_b32 v3, 5, %s" % v(vTID))
        a.e("v_bfi_b32 v3, 3, v2, v3")
        a.e("v_lshlrev_b32 v3, 1, v3")
        a.e("v_xor_b32 v3, v3, %s" % v(vTID))
        a.e("v_and_b32 v3, 15, v3")
        a.e("s_lshl_b32 s%d, s%d, 8" % (sA, sM))
        a.e("v_lshl_add_u32 v3, v3, 4, s%d" % sA)
        a.e("v_mul_u32_u24 v2, 3584, v2")
        a.e("v_add_u32 %s, v2, v3" % v(vDG))
    def qvoff(a):
        a.e("v_lshrrev_b32 v2, 4, %s" % v(vTID))
        a.e("v_and_b32 v2, 2, v2")
        a.e("v_xor_b32 v2, v2, %s" % v(vTID))
        a.e("v_and_b32 v2, 3, v2")
        a.e("s_lshl_b32 s%d, s%d, 6" % (sA, sHP))
        a.e("v_lshl_add_u32 v2, v2, 4, s%d" % sA)
        a.e("v_lshrrev_b32 v3, 2, %s" % v(vTID))
        a.e("v_lshl_add_u32 %s, v3, 10, v2" % v(vDQ))
    def stouch(a):
        if Opt.diag or Opt.probe >= 0: a.e("s_load_dwordx2 %s, s[0:1], 32" % sp(SWO))
        if not Opt.stch: return
        a.e("s_lshr_b32 s%d, s%d, 2" % (sA, sW))
        if Opt.ghx: a.e("s_lshl2_add_u32 s%d, s%d, s%d" % (sA, sD, sA))
        a.e("s_lshl_b32 s%d, s%d, 6" % (sA, sA))
        a.e("s_and_b32 s%d, s%d, 7" % (sB, sG))
        a.e("s_add_u32 s%d, s%d, s%d" % (sA, sA, sB))
        a.e("s_mul_i32 s%d, s%d, 28" % (sA, sA))
        a.e("s_bfe_u32 s%d, s%d, 0x10001" % (sB, sW))
        a.e("s_lshl1_add_u32 s%d, s%d, s%d" % (sB, sM, sB))
        a.e("s_add_u32 s%d, s%d, s%d" % (sA, sA, sB))
        a.e("s_lshl_b32 s%d, s%d, 7" % (sA, sA))
        a.e("s_bitcmp1_b32 s%d, 0" % sW)
        a.e("s_cselect_b64 %s, %s, %s" % (sp(SWKV), sp(SWU), sp(SWG)))
        a.e("s_add_u32 s%d, s%d, s%d" % (SWKV, SWKV, sA))
        a.e("s_addc_u32 s%d, s%d, 0" % (SWKV + 1, SWKV + 1))
        for i in range(Opt.stch):
            a.e("s_load_dwordx2 %s, %s, 0x%x" % (sp(sTMPP), sp(SWKV), 128 * 3584 + i * 8 * 3584 + 60))
    def wsrd(a):
        srd_words(a, [SWG])
        a.e("s_mov_b64 %s, %s" % (sp(SWU + 2), sp(SWG + 2)))

    if Opt.hrot:
        ORDER = [("q", 0)] + [(t_, 2 * h_ + j) for h_ in range(2) for t_, j in (("x", 0), ("x", 1), ("g", 0), ("u", 0), ("g", 1), ("u", 1))]
    else:
        ORDER = [("q", 0)] + [("x", j) for j in range(4)] + [(t_, j) for j in range(4) for t_ in "gu"]
    def block(items):
        out = []; lastc = None; lastw = None
        for c, kind, j in items:
            s = c % 3; pre = []
            if c != lastc:
                if c: pre.append("s_bfe_u32 s%d, s%d, 0x%x" % (sCH, sXP, 0x30000 + 4 * c))
                lastc = c; lastw = None
            fam = "w" if kind in "gu" else kind
            rot = Opt.hrot and fam != "q"
            if lastw is None or lastw[0] != fam or (rot and lastw[1] >> 1 != j >> 1):
                pre.append({"q": "s_lshl_b32 s%d, s%d, 16" % (sOFFW, sCH), "x": "s_lshl_b32 s%d, s%d, 7" % (sOFFW, sCH),
                            "w": "s_mul_i32 s%d, s%d, %d" % (sOFFW, sCH, 64 * 3584)}[fam])
                if rot: pre.append("s_%s_u32 s%d, s%d, s%d" % ("sub" if j >> 1 else "add", sOFFW, sOFFW, sRX if fam == "x" else sRW))
                lastw = (fam, 0)
            if lastw[1] != j:
                pre.append("s_add_u32 s%d, s%d, 0x%x" % (sOFFW, sOFFW, (j - lastw[1]) * (0x8000 if fam == "x" else 16 * 3584)))
                lastw = (fam, j)
            m0c, vo, rs = {"q": (L_WQ + s * 4096, vDQ, SWQ), "x": (L_X + s * 16384 + j * 4096, vDX, SX),
                           "g": (L_G + s * 16384 + j * 4096, vDG, SWG), "u": (L_U + s * 16384 + j * 4096, vDG, SWU)}[kind]
            nt = " nt" if Opt.ntx & (1 if rs == SX else 2) else ""
            out.append(("s_add_u32 m0, s%d, 0x%x\n%s\nbuffer_load_dwordx4 %s, %s, s%d offen%s lds"
                        % ((sM0B + (j >> 1)) if rot else sWH, m0c, "\n".join(pre) or "s_nop 0", v(vo), srd(rs), sOFFW, nt), "c%d" % c))
        return out
    def part(c, role): return [(c, k_, j) for k_, j in ORDER if (k_ in "gu") == (role == "A")]

    def rdsetup(a):
        setup_rd(a)
        a.e("v_lshl_add_u32 %s, v3, 3, v2" % v(vWA))
        a.e("v_lshlrev_b32 %s, 8, %s" % (v(vWA), v(vWA)))
        a.e("v_lshl_add_u32 %s, v4, 3, %s" % (v(vWA), v(vWA)))
        a.e("v_and_b32 v5, 1, v3")
        a.e("v_lshl_add_u32 v2, v5, 2, v2")
        a.e("s_lshl_b32 s%d, s%d, 2" % (sA, sHI))
        a.e("s_and_b32 s%d, s%d, 1" % (sB, sLO))
        a.e("s_lshl_b32 s%d, s%d, 1" % (sB, sB))
        a.e("s_add_u32 s%d, s%d, s%d" % (sA, sA, sB))
        a.e("v_xor_b32 v2, s%d, v2" % sA)
        a.e("v_lshl_add_u32 %s, v2, 5, %s" % (v(vWA), v(vWA)))
        a.e("v_xor_b32 %s, 32, %s" % (v(vWA + 1), v(vWA)))
        a.e("v_add_u32 %s, 0x%x, %s" % (v(vWA + 2), L_U - L_G, v(vWA)))
        a.e("v_add_u32 %s, 0x%x, %s" % (v(vWA + 3), L_U - L_G, v(vWA + 1)))
        a.e("s_lshl_b32 s%d, s%d, 12" % (sA, sLO))
        a.e("s_add_u32 s%d, s%d, 0x%x" % (sA, sA, L_X))
        a.e("v_add_u32 %s, s%d, %s" % (v(vXA), sA, v(vXA)))
        a.e("v_xor_b32 %s, 0x1000, %s" % (v(vXA + 1), v(vXA)))
        a.e("v_xor_b32 %s, 64, %s" % (v(vXA + 2), v(vXA)))
        a.e("v_xor_b32 %s, 64, %s" % (v(vXA + 3), v(vXA + 1)))
        a.e("v_add_u32 %s, 0x%x, %s" % (v(vQA), L_WQ, v(vQA)))

    a.e("s_cmp_ge_u32 s%d, 4" % sW)
    a.e("s_cbranch_scc1 L_setB")
    late = collect(setup_oclr) + collect(setup_attn)
    words = collect(lambda t: srd_words(t, [SWS, SKV, SDBG, SWD, SWO, SOUT]))
    late = [x for x in late if x not in words]
    oclr = [x for x in late if x[1] == "oclr"]
    if Opt.olate: late = [x for x in late if x[1] != "oclr"]
    else: oclr = []
    words += [("v_mov_b32 %s, 0" % v(r_), None) for r_ in (vGA, vWDV, vFLA, vHA)]
    st = collect(rdsetup) + words + late[:Opt.fillpre]
    fills = {"A": late[Opt.fillpre:], "B": late[Opt.fillpre:]}
    vms = {}
    wsrd(a); wvoff(a)
    a.e("s_waitcnt lgkmcnt(0)")
    a.stamp(2)
    if Opt.spos == 0: stouch(a)
    put(a, block(part(0, "A")))
    a.e("s_branch L_setA")
    vms["A"] = a.vm; a.vm = []
    a.lab("L_setB")
    srd_words(a, [SX]); xvoff(a, vTID)
    a.e("s_waitcnt lgkmcnt(0)")
    a.stamp(2)
    if Opt.spos == 0: stouch(a)
    put(a, block(part(0, "B")[1:]))
    srd_words(a, [SWQ]); qvoff(a)
    put(a, block(part(0, "B")[:1]))
    vms["B"] = a.vm
    for role in "BA":
        a.vm = vms[role]
        if role == "A": a.lab("L_setA")
        if Opt.spos == 1: stouch(a)
        table(a)
        setup_ids(a)
        if role == "A": srd_words(a, [SX, SWQ])
        else: wsrd(a)
        def touches():
            tm = sum(0xff << (8 * i) for i in range(4) if Opt.tch >> i & 1)
            setex = "s_bitcmp1_b32 s%d, 3\ns_cselect_b32 exec_lo, 0, 0x%x\ns_cselect_b32 exec_hi, 0x%x, 0" % (sG, tm, tm) if Opt.ghx \
                    else "s_mov_b32 exec_lo, 0x%x\ns_mov_b32 exec_hi, 0" % tm
            if Opt.tlb & 2 and role == "B":
                a.e("s_and_b32 s%d, s%d, 7" % (sA, sG))
                a.e("v_lshl_add_u32 v2, v0, 3, s%d" % sA)
                a.e("v_mul_u32_u24 v3, 3584, v2")
                a.e("s_and_b32 s%d, s%d, 1" % (sB, sW))
                a.e("s_lshl1_add_u32 s%d, s%d, s%d" % (sA, sM, sB))
                a.e("s_lshl_b32 s%d, s%d, 7" % (sA, sA))
                a.e(setex)
                a.e("s_cmp_ge_u32 s%d, 6" % sW)
                a.e("s_cbranch_scc1 L_tlbu")
                a.e("buffer_load_dword %s, v3, %s, s%d offen" % (v(vPOLL), srd(SWG), sA))
                a.e("s_branch L_tlbe")
                a.lab("L_tlbu")
                a.e("buffer_load_dword %s, v3, %s, s%d offen" % (v(vPOLL), srd(SWU), sA))
                a.lab("L_tlbe")
                a.e("s_mov_b64 exec, -1")
                a.vm.append("tlb")
            if Opt.tlb & 12 and role == "A":
                a.e("s_cmp_lg_u32 s%d, 0" % sW)
                a.e("s_cbranch_scc1 L_tlbx")
                a.e("s_and_b32 s%d, s%d, 7" % (sA, sG))
                a.e("v_lshl_add_u32 v2, v0, 3, s%d" % sA)
                a.e("v_lshlrev_b32 v3, 10, v2")
                a.e("s_lshl_b32 s%d, s%d, 6" % (sA, sHP))
                a.e(setex if Opt.tlb & 4 else "s_mov_b64 exec, 1")
                a.e("buffer_load_dword %s, v3, %s, s%d offen" % (v(vPOLL), srd(SWQ), sA))
                a.e("s_branch L_tlby")
                a.lab("L_tlbx")
                a.e("s_and_b32 s%d, s%d, 3" % (sA, sM))
                a.e("s_lshl2_add_u32 s%d, s%d, s%d" % (sA, sG, sA))
                a.e("s_lshl_b32 s%d, s%d, 15" % (sA, sA))
                a.e("v_lshl_add_u32 v3, v0, 10, s%d" % sA)
                a.e("s_lshr_b32 s%d, s%d, 3" % (sA, sG))
                a.e("s_lshl2_add_u32 s%d, s%d, s%d" % (sA, sA, sW) if Opt.ghx else "s_mov_b32 s%d, s%d" % (sA, sW))
                a.e("s_lshl_b32 s%d, s%d, 7" % (sA, sA))
                a.e("s_bitcmp1_b32 %d, s%d" % (Opt.tch if Opt.tlb & 8 else 0, sW))
                a.e("s_cselect_b32 exec_lo, -1, 1")
                a.e("s_mov_b32 exec_hi, 0")
                a.e("buffer_load_dword %s, v3, %s, s%d offen" % (v(vPOLL), srd(SX), sA))
                a.lab("L_tlby")
                a.e("s_mov_b64 exec, -1")
                a.vm.append("tlb")
        if Opt.tpos == 0: touches()
        if Opt.startbar: a.e("s_barrier")
        npre = min(Opt.npre, 8) if role == "A" else 5
        pn = block(part(1, role)[:npre])
        rest = st + (collect(qvoff) + collect(lambda t: xvoff(t, vTID)) if role == "A" else collect(wvoff))
        gap = len(rest) // (npre + Opt.pregap) + 1
        if Opt.tpos == 2:
            put(a, pn); touches(); npre = 0
        if Opt.tpos == 3 and role == "B":
            put(a, pn); touches(); npre = 0
        for i in range(npre):
            put(a, pn[:1]); pn = pn[1:]
            put(a, rest[:gap]); rest = rest[gap:]
        put(a, rest)
        if Opt.tpos == 1 or (Opt.tpos == 3 and role == "A"): touches()
        a.e("s_mov_b64 vcc, %d" % (-1 if role == "A" else 0))
        if role == "A":
            a.waitvm("c0", lgkm=True)
        else:
            a.e("s_setprio 1")
            a.waitvm("c0", lgkm=True)
            a.e("s_branch L_k0")
        vms[role] = a.vm
    stream = part(1, "A")[min(Opt.npre, 8):] + [(c, k_, j) for c in range(2, 8) for k_, j in ORDER]
    qa = [int(x, 16) for x in Opt.qa]; qb = [int(x, 16) for x in Opt.qb]
    def take(n, cmax):
        m = 0
        while m < n and m < len(stream) and stream[m][0] <= cmax: m += 1
        r_ = stream[:m]; del stream[:m]
        return block(r_)
    a.lab("L_k0")
    a.vm = vms["A"]
    ool = Asm()
    def dmablock(name, role, items, wait=None):
        a.e("s_cbranch_vcc%s L_%s" % ("nz" if role == "A" else "z", name))
        if wait: a.waitvm(wait, lgkm=True)
        a.lab("L_%s_r" % name)
        ool.lab("L_%s" % name)
        ool.vm = a.vm if role == "A" else vms["B"]
        for it_ in items:
            put(ool, [it_])
            put(ool, fills[role][:Opt.fillper]); fills[role] = fills[role][Opt.fillper:]
        if name in ("d7", "e7"): put(ool, fills[role]); fills[role] = []
        if wait: ool.waitvm(wait, lgkm=True)
        if role == "B": vms["B"] = ool.vm
        ool.e("s_branch L_%s_r" % name)
    a.ool = ool.l

    def fr(k):
        b = vF1 + 36 * (k % 2)
        return dict(x=b, w=b + 16, q=b + 32)
    def reads(k):
        c, s = divmod(k, 2); f = fr(k); sl = c % 3
        wo = sl * 16384 + s * 8192
        W = lambda i: [rdtr(f['w'] + 4 * i, vWA + i, wo), rdtr(f['w'] + 4 * i + 2, vWA + i, wo + 1024)]
        X = [rd128(f['x'] + 4 * b, vXA + 2 * s + (b >> 1), sl * 16384 + (b & 1) * 2048) for b in range(4)]
        return W(0) + X + W(2) + W(1) + W(3) + [rdtr(f['q'], vQA, sl * 4096 + s * 2048), rdtr(f['q'] + 2, vQA, sl * 4096 + s * 2048 + 256)]
    a.e("s_barrier")
    a.stamp(3)
    if Opt.kdiag or Opt.probe >= 18:
        kstamp(a, 2)
        a.e("s_waitcnt lgkmcnt(0)")
    for r in reads(0): a.e(r)
    if qa[0]: dmablock("d2", "A", take(qa[0], 2))
    for k in range(16):
        c, s = divmod(k, 2); f = fr(k)
        z = lambda x: None if k == 0 else x
        mf = []
        for n_, i in enumerate((0, 2, 1, 3)):
            for b in (range(4) if n_ % 2 == 0 else range(3, -1, -1)):
                d = vACC + 16 * b + 4 * i
                mf.append(mfma16(d, f['w'] + 4 * i, f['x'] + 4 * b, z(d)))
        for b in range(2): mf.append(mfma16(vAQ + 4 * b, f['q'], f['x'] + 4 * b, z(vAQ + 4 * b)))
        rds = reads(k + 1) if k < 15 else []
        if s == 0:
            a.e("s_waitcnt lgkmcnt(6)")
            for i, m in enumerate(mf):
                if i == 8: a.e("s_waitcnt lgkmcnt(8)")
                a.e(m)
                if i < len(rds): a.e(rds[i])
            continue
        a.e("s_waitcnt lgkmcnt(8)")
        for m in mf[:4]: a.e(m)
        if c <= 5:
            dmablock("e%d" % (c + 2), "B", take(qb[c], c + 2), "c%d" % (c + 1))
            assert not any(x[0] <= c + 1 for x in stream)
        if c == 7:
            a.e("s_waitcnt lgkmcnt(0)")
        elif c == 6:
            a.e("s_waitcnt lgkmcnt(0)")
            a.e("s_cbranch_vccz L_st7")
            a.e("s_setprio 1")
            a.e("s_waitcnt vmcnt(0)")
            a.e("s_barrier")
            a.lab("L_st7")
        else:
            a.e("s_barrier")
        if c < 7 and ((Opt.kdiag == 1 and Opt.diag) or Opt.probe == 21 + c):
            kstamp(a, 3 + c)
            a.e("s_waitcnt lgkmcnt(0)")
        if c + 3 < 8:
            items = take(qa[c + 1], c + 3)
            dmablock("d%d" % (c + 3), "A", items)
        for i, m in enumerate(mf[4:]):
            a.e(m)
            if i < len(rds): a.e(rds[i])
        if k == 11: assert not stream and not fills["A"] and not fills["B"]
        if k == 11:
            a.e("s_cbranch_vccnz L_st6")
            a.e("s_setprio 0")
            spin_counter(a, "kvf", False, 4)
            a.wait0()
            a.e("s_barrier")
            put(a, kv_first_loads(a, True) + oclr)
            a.lab("L_st6")
    a.kvA = (kv_first_loads(a) + oclr)[2:]
    a.stamp(4)

def phase1_L(a):
    a.lab("L_light")
    a.vm = []
    a.e("s_waitcnt lgkmcnt(0)")
    ptr_loads(a, ((SWKV, 16), (SWV, 24), (SGATE, 72), (SWO, 32)))
    srd_words(a, [SWKV, SWV, SGATE, SX])
    xvoff(a, 0)
    a.e("v_and_b32 v2, 63, v0")
    a.e("v_lshlrev_b32 %s, 4, v2" % v(vL16))
    a.e("s_sub_u32 s%d, s%d, 14" % (sCNT, sM))
    a.e("s_lshl_b32 s%d, s%d, 16" % (sOLD, sCNT))
    a.e("s_lshl_b32 s%d, s%d, 13" % (sHST, sCNT))
    a.e("s_add_u32 s%d, s%d, s%d" % (sWH, sHST, sWK))
    a.e("s_xor_b32 s%d, s%d, 0x2000" % (sHST, sHST))
    a.e("s_add_u32 s%d, s%d, 0x2000" % (sA, sWK))
    a.e("s_waitcnt lgkmcnt(0)")
    a.stamp(2)
    def xdma(c, base, so):
        a.vmop("s_add_u32 m0, s%d, 0x%x\ns_nop 0\nbuffer_load_dwordx4 %s, %s, s%d offen offset:%d lds"
               % (base, LL_X + c * 16384 - c * 128, v(vDX), srd(SX), so, c * 128), "c%d" % c)
    def wdma(u):
        for t, rs in enumerate((SWKV, SWV)):
            a.vmop("s_add_u32 m0, s%d, 0x%x\ns_nop 0\nbuffer_load_dwordx4 %s, %s, s%d offen lds"
                   % (sWK, LL_W + t * 16384 + u * 8192, v(vL16), srd(rs), sA if u else sWK), "w")
    wdma(0)
    a.vmop("s_mov_b32 m0, s%d\ns_nop 0\nbuffer_load_dwordx4 %s, %s, 0 offen lds" % (sHST, v(vL16), srd(SGATE)), "w")
    for c in range(8):
        if c == 4: wdma(1)
        xdma(c, sWH, sOLD)
        if c in (1, 3, 5): a.e("s_barrier")
    setup_ids(a)
    srd_words(a, [SWQ])
    setup_rd(a)
    a.e("v_lshrrev_b32 v3, 5, v0")
    a.e("v_bfrev_b32 v5, v4")
    a.e("v_lshrrev_b32 v5, 30, v5")
    a.e("s_cmp_ge_u32 s%d, 2" % sLO)
    a.e("s_cselect_b64 vcc, -1, 0")
    a.e("v_cndmask_b32 v4, v5, v4, vcc")
    a.e("v_lshl_add_u32 %s, v3, 3, v2" % v(vWA))
    a.e("v_lshlrev_b32 %s, 5, %s" % (v(vWA), v(vWA)))
    a.e("v_lshl_add_u32 %s, v4, 3, %s" % (v(vWA), v(vWA)))
    a.e("s_lshr_b32 s%d, s%d, 1" % (sA, sLO))
    a.e("s_lshl_b32 s%d, s%d, 14" % (sA, sA))
    a.e("s_add_u32 s%d, s%d, 0x%x" % (sA, sA, LL_W))
    a.e("v_add_u32 %s, s%d, %s" % (v(vWA), sA, v(vWA)))
    a.e("v_lshl_add_u32 %s, v3, 4, s%d" % (v(vWA + 1), sHST))
    a.e("s_and_b32 s%d, s%d, 1" % (sA, sLO))
    a.e("s_lshl_b32 s%d, s%d, 1" % (sB, sCNT))
    a.e("s_add_u32 s%d, s%d, s%d" % (sCNT, sA, sB))
    a.e("s_lshl_b32 s%d, s%d, 12" % (sA, sCNT))
    a.e("v_and_b32 v2, 31, v0")
    a.e("v_lshrrev_b32 v4, 1, v0")
    a.e("v_lshlrev_b32 v5, 1, v0")
    a.e("v_bfi_b32 v4, 4, v4, v5")
    a.e("v_bfi_b32 v4, 12, v4, v2")
    a.e("v_cndmask_b32 v2, v2, v4, vcc")
    a.e("v_bfe_u32 v4, v2, 1, 3")
    a.e("v_xor_b32 v4, v4, v3")
    a.e("v_lshlrev_b32 v4, 4, v4")
    a.e("v_lshl_add_u32 v4, v2, 7, v4")
    a.e("v_add_u32 %s, s%d, v4" % (v(vLX), sA))
    for s in range(1, 4): a.e("v_xor_b32 %s, %d, %s" % (v(vLX + s), 32 * s, v(vLX)))
    for s in range(4): a.e("v_add_u32 %s, 0x10000, %s" % (v(vLX + 4 + s), v(vLX + s)))
    a.e("s_waitcnt lgkmcnt(0)")
    setup_oclr(a)
    vm0 = list(a.vm)
    a.e("s_cmp_lg_u32 s%d, 0" % sHI)
    a.e("s_cbranch_scc1 L_lB")
    a.e("s_not_b64 %s, %s" % (sp(sTMPP), sp(sVM)))
    a.e("s_cmp_ge_u32 s%d, 2" % sLO)
    a.e("s_cbranch_scc1 L_lV")
    def chain(kind):
        a.vm = list(vm0)
        def fr(k):
            b = vFR + 8 * (k % 4)
            return b, b + 4
        def reads(k):
            c, s = divmod(k, 4); x, w = fr(k)
            r = [rd128(x, vLX + s + 4 * (c >> 2), (c & 3) * 16384), rdtr(w, vWA, k * 512), rdtr(w + 2, vWA, k * 512 + 128)]
            if kind == "K":
                r += ["s_mov_b64 exec, %s" % sp(sTMPP), rd128(w, vWA + 1, k * 32), "s_mov_b64 exec, -1"]
            return r
        for q in range(4):
            a.waitvm("c%d" % (2 * q + 1))
            a.e("s_barrier")
            nr = 4 if kind == "K" else 3
            for k in range(8 * q, 8 * q + 2):
                for r in reads(k): a.e(r)
            for k in range(8 * q, 8 * q + 8):
                if k + 2 < 8 * q + 8:
                    for r in reads(k + 2): a.e(r)
                left = min(2, 8 * q + 7 - k)
                a.e("s_waitcnt lgkmcnt(%d)" % (left * nr))
                x, w = fr(k)
                cc = None if k == 0 else vACC
                a.e(mfma(vACC, w, x, cc) if kind == "K" else mfma(vACC, x, w, cc))
        a.e("s_lshl_b32 s%d, s%d, 2" % (sA, sG))
        a.e("s_add_u32 s%d, s%d, s%d" % (sA, sA, sCNT))
        a.e("s_nop 12")
        if kind == "K":
            a.e("s_mov_b32 s%d, 0x%x" % (sC, f2u(0.25 * math.log2(math.e))))
            for i in range(8): a.e("v_mul_f32 %s, s%d, %s" % (v(vACC + i), sC, v(vACC + i)))
            a.e("v_mul_f32 %s, 0x%x, %s" % (v(vACC + 8), f2u(-math.log2(math.e)), v(vACC + 8)))
            a.e("v_exp_f32 %s, %s" % (v(vACC + 8), v(vACC + 8)))
            for i in range(4): a.e("v_cvt_pk_bf16_f32 %s, %s, %s" % (v(vFR + i), v(vACC + 2 * i), v(vACC + 2 * i + 1)))
            a.e("v_add_f32 %s, 1.0, %s" % (v(vACC + 8), v(vACC + 8)))
            a.e("v_rcp_f32 %s, %s" % (v(vACC + 8), v(vACC + 8)))
            a.e("s_add_u32 s%d, s%d, 63" % (sB, sA))
            a.e("s_and_b32 s%d, s%d, 63" % (sB, sB))
            a.e("s_lshl_b32 s%d, s%d, 11" % (sB, sB))
            a.e("buffer_store_dwordx4 %s, %s, %s, s%d offen sc1" % (v(vFR, 4), v(vL16), srd(SKV), sB))
            a.e("s_lshl_b32 s%d, s%d, 7" % (sB, sA))
            a.e("s_add_u32 s%d, s%d, 0x%x" % (sB, sB, WS_G))
            a.e("s_mov_b32 exec_hi, 0")
            a.e("buffer_store_dword %s, %s, %s, s%d offen sc1" % (v(vACC + 8), v(vGA), srd(SWS), sB))
            a.e("s_mov_b64 exec, -1")
        else:
            for i in range(8): a.e("v_cvt_pk_bf16_f32 %s, %s, %s" % (v(vFR + i), v(vACC + 2 * i), v(vACC + 2 * i + 1)))
            a.e("v_bfe_u32 v2, v0, 4, 1")
            a.e("v_add_u32 v2, s%d, v2" % sA)
            a.e("v_and_b32 v2, 63, v2")
            a.e("v_lshl_add_u32 v2, v2, 11, %s" % v(vL16))
            for i in range(4): a.e("v_cndmask_b32 %s, %s, %s, %s" % (v(vFR + i), v(vFR + 4 + i), v(vFR + i), sp(sVM)))
            a.e("buffer_store_dwordx4 %s, v2, %s, 0 offen offset:1024 sc1" % (v(vFR, 4), srd(SKV)))
        a.e("s_branch L_lJ")
    chain("K")
    a.lab("L_lV")
    chain("V")
    a.lab("L_lB")
    a.vm = list(vm0)
    a.e("s_cmp_lg_u32 s%d, 14" % sM)
    a.e("s_cbranch_scc1 L_nozf")
    a.e("s_cmp_lg_u32 s%d, 4" % sW)
    a.e("s_cbranch_scc1 L_nozf")
    a.e("v_lshlrev_b32 v2, 7, v0")
    a.e("s_lshl_b32 s%d, s%d, 11" % (sA, sG))
    a.e("s_add_u32 s%d, s%d, 0x%x" % (sA, sA, WS_HFLAG))
    a.e("s_mov_b64 exec, 0xffff")
    a.e("buffer_store_dword %s, v2, %s, s%d offen sc1" % (v(vZERO), srd(SWS), sA))
    a.e("s_mov_b64 exec, -1")
    a.lab("L_nozf")
    for q in range(4):
        a.waitvm("c%d" % (2 * q + 1))
        a.e("s_barrier")
    a.lab("L_lJ")
    a.e("v_lshrrev_b32 v3, 2, v0")
    a.e("v_lshlrev_b32 v3, 10, v3")
    a.e("v_lshrrev_b32 v4, 5, v0")
    a.e("v_lshlrev_b32 v4, 1, v4")
    a.e("v_xor_b32 v4, v4, v0")
    a.e("v_and_b32 v4, 3, v4")
    a.e("v_lshl_add_u32 v3, v4, 4, v3")
    a.e("s_lshl_b32 s%d, s%d, 14" % (sA, sW))
    a.e("s_lshl_b32 s%d, s%d, 6" % (sB, sHP))
    a.e("s_add_u32 s%d, s%d, s%d" % (sA, sA, sB))
    a.e("v_add_u32 %s, s%d, v3" % (v(vDQ), sA))
    a.e("s_xor_b32 s%d, s%d, 0x2000" % (sWH, sWH))
    a.e("s_xor_b32 s%d, s%d, 0x10000" % (sOLD, sOLD))
    a.wait0(lgkm=True)
    a.e("s_barrier")
    a.e("s_cmp_lg_u32 s%d, 0" % sW)
    a.e("s_cbranch_scc1 L_noat")
    a.e("s_mov_b64 exec, 1")
    a.e("buffer_atomic_add %s, off, %s, 0 sc1" % (v(vONE), srd(SDBG)))
    a.e("s_mov_b64 exec, -1")
    a.lab("L_noat")
    a.stamp(3)
    for c in range(8): xdma(c, sWH, sOLD)
    for p in range(4):
        a.e("s_add_u32 m0, s%d, 0x%x" % (sWK, LL_WQ + p * 8192))
        a.e("s_mov_b32 s%d, 0x%x" % (sA, p * 128 * 1024))
        a.e("buffer_load_dwordx4 %s, %s, s%d offen lds" % (v(vDQ), srd(SWQ), sA))
    setup_attn(a)
    if Opt.touch & 2:
        a.e("s_lshl_b32 s%d, s%d, 1" % (sA, sG))
        a.e("s_add_u32 s%d, s%d, s%d" % (sA, sA, sM))
        a.e("s_sub_u32 s%d, s%d, 14" % (sA, sA))
        a.e("s_lshl_b32 s%d, s%d, 3" % (sA, sA))
        a.e("s_add_u32 s%d, s%d, s%d" % (sA, sA, sW))
        a.e("v_lshlrev_b32 v2, 15, v0")
        a.e("s_lshl_b32 s%d, s%d, 7" % (sA, sA))
        a.e("buffer_load_dword %s, v2, %s, s%d offen" % (v(vPOLL), srd(SWO), sA))
        a.e("buffer_load_dword %s, v2, %s, s%d offen" % (v(vPOLL), srd(SWD), sA))
    a.e("s_lshl_b32 s%d, s%d, 12" % (sA, sLO))
    a.e("v_add_u32 %s, s%d, %s" % (v(vXA), sA, v(vXA)))
    a.e("v_xor_b32 %s, 64, %s" % (v(vXA + 1), v(vXA)))
    a.e("v_add_u32 %s, 0x10000, %s" % (v(vXA + 2), v(vXA)))
    a.e("v_add_u32 %s, 0x10000, %s" % (v(vXA + 3), v(vXA + 1)))
    a.e("v_add_u32 %s, 0x%x, %s" % (v(vQA), LL_WQ, v(vQA)))
    a.e("s_waitcnt vmcnt(%d)" % (2 if Opt.touch & 2 else 0))
    a.e("s_barrier")
    def fr(k): return vFR + 12 * (k % 3)
    def reads(k):
        c, s = divmod(k, 2); f = fr(k)
        return [rd128(f + 4 * b, vXA + s + 2 * (c >> 2), (c & 3) * 16384 + b * 2048) for b in range(2)] + \
               [rdtr(f + 8, vQA, k * 2048), rdtr(f + 10, vQA, k * 2048 + 256)]
    for k in range(2):
        for r in reads(k): a.e(r)
    for k in range(16):
        a.e("s_waitcnt lgkmcnt(%d)" % (4 * min(1, 15 - k)))
        for b in range(2): a.e(mfma16(vAQ + 4 * b, fr(k) + 8, fr(k) + 4 * b, None if k == 0 else vAQ + 4 * b))
        if k + 2 < 16:
            for r in reads(k + 2): a.e(r)
    spin_counter(a, "kvl", False)
    a.e("s_barrier")
    for s, t in kv_first_loads(a): a.e(s)
    a.wait0()
    a.stamp(4)
    a.e("s_branch L_join")

def gelu_tile(a, ti, scalar=False):
    acc = vACC + 16 * ti
    t = vFR
    o = vFR + 8 + 4 * ti
    pk = lambda r: v(r, 2)
    if scalar:
        for i in range(8): a.e("v_mul_f32 %s, %s, %s" % (v(t + i), v(acc + i), v(acc + i)))
        for i in range(8): a.e("v_fma_f32 %s, %s, %s, %s" % (v(t + i), v(t + i), v(vC0 + 1), v(vC0)))
        for i in range(8): a.e("v_mul_f32 %s, %s, %s" % (v(t + i), v(t + i), v(acc + i)))
        for i in range(8): a.e("v_exp_f32 %s, %s" % (v(t + i), v(t + i)))
        for i in range(8): a.e("v_add_f32 %s, 1.0, %s" % (v(t + i), v(t + i)))
        for i in range(8): a.e("v_rcp_f32 %s, %s" % (v(t + i), v(t + i)))
        for i in range(8): a.e("v_mul_f32 %s, %s, %s" % (v(acc + i), v(acc + i), v(acc + 8 + i)))
        for i in range(8): a.e("v_mul_f32 %s, %s, %s" % (v(acc + i), v(acc + i), v(t + i)))
    R4, R8 = (range(0), range(0)) if scalar else (range(4), range(8))
    for i in R4: a.e("v_pk_mul_f32 %s, %s, %s" % (pk(t + 2 * i), pk(acc + 2 * i), pk(acc + 2 * i)))
    for i in R4: a.e("v_pk_fma_f32 %s, %s, %s, %s op_sel:[0,1,0] op_sel_hi:[1,1,0]" % (pk(t + 2 * i), pk(t + 2 * i), pk(vC0), pk(vC0)))
    for i in R4: a.e("v_pk_mul_f32 %s, %s, %s" % (pk(t + 2 * i), pk(t + 2 * i), pk(acc + 2 * i)))
    for i in R8: a.e("v_exp_f32 %s, %s" % (v(t + i), v(t + i)))
    for i in R4: a.e("v_pk_add_f32 %s, %s, 1.0 op_sel_hi:[1,0]" % (pk(t + 2 * i), pk(t + 2 * i)))
    for i in R8: a.e("v_rcp_f32 %s, %s" % (v(t + i), v(t + i)))
    for i in R4: a.e("v_pk_mul_f32 %s, %s, %s" % (pk(acc + 2 * i), pk(acc + 2 * i), pk(acc + 8 + 2 * i)))
    for i in R4: a.e("v_pk_mul_f32 %s, %s, %s" % (pk(acc + 2 * i), pk(acc + 2 * i), pk(t + 2 * i)))
    for i in range(4): a.e("v_cvt_pk_bf16_f32 %s, %s, %s" % (v(o + i), v(acc + 2 * i), v(acc + 2 * i + 1)))
    a.vmop("buffer_store_dwordx4 %s, %s, %s, s%d offen offset:%d sc1" % (v(o, 4), v(vHA), srd(SWS), sHST2 if ti >> 1 else sHST, (ti & 1) * 256), "hst")

def Yseg(hset, toggle=False):
    out = []
    for t in range(2):
        extra = False and hset < 2 and t == Opt.xtile
        pos = [int(x, 17) for x in (Opt.ypos0 if hset is None else Opt.ypos2 if extra else Opt.ypos1)]
        S, Sn = vS + 16 * t, vS + 16 * (1 - t)
        K, V0, V1 = vKF + 4 * t, vV + 8 * t, vV + 8 * t + 4
        for e in range(1, 17):
            out.append("v_exp_f32 %s, %s" % (v(S + e - 1), v(S + e - 1)))
            if e == pos[0]: out.append(smfmac(vO, V1, Sn + 8))
            if e == pos[1]: out.append(mfma(Sn, K, vQ, None))
            if e == pos[2]: out.append(smfmac(vO, V0, S))
            if hset is not None:
                if e == 13 and t == 1 and toggle:
                    out.append("v_xor_b32 %s, 0x4000, %s" % (v(vKVB), v(vKVB)))
                if e == pos[3]: out.append(mfma(vD + 16 * t, vWF + 4 * t, vH + 4 * hset, vD + 16 * t))
                if extra and e == pos[4]: out.append(mfma(vD + 16 * hset, vWX + 4 * hset, vH + 16, vD + 16 * hset))
    return out

def kv_reads(off, vKVA=vKVA):
    r = [rd128(vKF, vKVA, off), rd128(vKF + 4, vKVA, off + 2048), "s_mov_b64 exec, %s" % sp(sVM)]
    for t in range(2):
        r += [rd128(vV + 8 * t, vKVA, off + 2048 * t + 1024), rd128(vV + 8 * t + 4, vKVA, off + 2048 * t + 1280)]
    r.append("s_mov_b64 exec, -1")
    return r
def wd_reads(dst, addr, off):
    r = []
    for c in range(2):
        r += [rdtr(dst + 4 * c, addr, off + 512 * c), rdtr(dst + 4 * c + 2, addr, off + 512 * c + 1024)]
    return r

def wdrow(sg): return (32 * (sg >> 1) + 8 * (sg & 1)) * 1024

def attention(a, role, pre0=None):
    A = role == "A"
    def kvdma(u):
        a.vmop("s_add_u32 m0, s%d, 0x%x\ns_add_u32 s%d, s%d, 0x%x\nbuffer_load_dwordx4 %s, %s, s%d offen sc1 lds"
               % (sWK, L_KV + (u % 4) * 8192, sA, sWK, u * 8192, v(vL16), srd(SKV), sA), "kv%d" % u)
    def wddma(sg):
        a.vmop("s_add_u32 m0, s%d, 0x%x\ns_add_u32 s%d, s%d, 0x%x\nbuffer_load_dwordx4 %s, %s, s%d offen lds"
               % (sWK, L_WD + (sg % 4 if sg < 23 or sg == 27 else sg - 19) * 8192, sA, sWDOFF, wdrow(sg), v(vWDV), srd(SWD), sA), "wd%d" % sg)
    def wodma(j):
        a.vmop("s_add_u32 m0, s%d, 0x%x\ns_add_u32 s%d, s%d, 0x%x\nbuffer_load_dwordx4 %s, %s, s%d offen lds"
               % (sWK, L_WO + j * 8192, sA, sB, j * 16384, v(vWDV), srd(SWO), sA), "wo")
    def hload(sg, dst):
        a.vmop("s_add_u32 s%d, s%d, 0x%x\nbuffer_load_dwordx4 %s, %s, %s, s%d offen sc1"
               % (sA, sHOFF, sg * 1024, v(dst, 4), v(vL16), srd(SWS), sA), "h%d" % sg)
    for n in range(12):
        if not A and n == 0: a.e("s_barrier")
        if n % 2 == 1: astamp(a, 2 + n // 2)
        tags = []
        if A and n % 2 == 1: tags.append("kv%d" % ((n + 1) // 2))
        if not A and n % 2 == 0: tags.append("kv%d" % ((n + 2) // 2))
        if n == (3 if A else 2): tags.append("hst")
        if n == 9: tags.append("wd27")
        if n == 11: tags.append("wd0")
        if n == 9 and A:
            a.e("s_cmp_lg_u32 s%d, 0" % sW)
            a.e("s_cbranch_scc1 L_hf_done")
            a.e("s_mov_b32 s%d, 0x4000" % sB)
            a.e("s_waitcnt vmcnt(0)")
            a.lab("L_hf_chk")
            a.e("v_cmp_ne_u32 vcc, 1, %s" % v(vPOLL))
            a.e("s_cbranch_vccz L_hf_done")
            a.e("s_sleep 2")
            a.e("buffer_load_dword %s, %s, %s, 0 offen sc1" % (v(vPOLL), v(vFLA), srd(SWS)))
            a.e("s_sub_u32 s%d, s%d, 1" % (sB, sB))
            a.e("s_cmp_lg_u32 s%d, 0" % sB)
            a.e("s_waitcnt vmcnt(0)")
            a.e("s_cbranch_scc1 L_hf_chk")
            a.lab("L_hf_done")
        a.waitvm(tags)
        if n == 5 and Opt.diag == 3 and A:
            a.e("v_mov_b32 v2, s%d" % sSTAMP)
            a.e("s_lshl_b32 s%d, s2, 3" % sA)
            a.e("s_add_u32 s%d, s%d, s%d" % (sA, sA, sW))
            a.e("s_lshl_b32 s%d, s%d, 7" % (sA, sA))
            a.e("s_add_u32 s%d, s%d, 0x%x" % (sA, sA, WS_STAMP))
            a.e("s_mov_b64 exec, 1")
            a.vmop("buffer_store_dword v2, off, %s, s%d offset:12 sc1" % (srd(SWS), sA), "st")
            a.e("s_mov_b64 exec, -1")
        if n == 3 and not A:
            a.e("s_cmp_ge_u32 s%d, 14" % sM)
            a.e("s_cbranch_scc1 L_nohf")
            a.e("s_cmp_lg_u32 s%d, 4" % sW)
            a.e("s_cbranch_scc1 L_nohf")
            a.e("s_lshl_b32 s%d, s%d, 4" % (sA, sG))
            a.e("s_add_u32 s%d, s%d, s%d" % (sA, sA, sM))
            a.e("s_lshl_b32 s%d, s%d, 7" % (sA, sA))
            a.e("s_add_u32 s%d, s%d, 0x%x" % (sA, sA, WS_HFLAG))
            a.e("s_mov_b64 exec, 1")
            a.e("buffer_store_dword %s, off, %s, s%d sc1" % (v(vONE), srd(SWS), sA))
            a.e("s_mov_b64 exec, -1")
            a.lab("L_nohf")
        for r in kv_reads((n % 8) * 4096): a.e(r)
        if n == 8 and A:
            a.e("s_cmp_lg_u32 s%d, 0" % sW)
            a.e("s_cbranch_scc1 L_hf_nol")
            a.e("buffer_load_dword %s, %s, %s, 0 offen sc1" % (v(vPOLL), v(vFLA), srd(SWS)))
            a.lab("L_hf_nol")
        if n == 0:
            kvdma(2); kvdma(3)
            a.e("s_mov_b32 s%d, s%d" % (sC, sKQ))
            a.e("s_mul_i32 s%d, s%d, %d" % (sWDOFF, sC, 448 * 1024))
            a.e("s_and_b32 s%d, s%d, 1" % (sB, sW))
            a.e("s_lshl_b32 s%d, s%d, 14" % (sA, sB))
            a.e("s_add_u32 s%d, s%d, s%d" % (sWDOFF, sWDOFF, sA))
            a.e("s_lshl_b32 s%d, s%d, 1" % (sA, sT))
            a.e("s_add_u32 s%d, s%d, s%d" % (sA, sA, sB))
            a.e("s_mul_i32 s%d, s%d, 112" % (sA, sA))
            a.e("s_mul_i32 s%d, s%d, 28" % (sB, sC))
            a.e("s_add_u32 s%d, s%d, s%d" % (sA, sA, sB))
            a.e("s_lshl_b32 s%d, s%d, 10" % (sA, sA))
            a.e("s_add_u32 s%d, s%d, 0x%x" % (sHOFF, sA, WS_HF))
        if (A and n % 2 == 1 and n >= 3): kvdma((n + 5) // 2)
        if (not A and n % 2 == 0 and n >= 2): kvdma((n + 6) // 2)
        if 1 <= n <= 4:
            a.e("s_lshl_b32 s%d, s%d, 17" % (sB, sKQ))
            a.e("s_and_b32 s%d, s%d, 1" % (sC, sW))
            a.e("s_lshl_b32 s%d, s%d, 13" % (sC, sC))
            a.e("s_add_u32 s%d, s%d, s%d" % (sB, sB, sC))
            for j in (2 * n - 2, 2 * n - 1): wodma(j)
        for sg in {5: (27, 23, 24), 6: (25, 26, 0), 7: (1, 2)}.get(n, ()): wddma(sg)
        if n == 10:
            for r in wd_reads(vWX, vWDA, 3 * 8192): a.e(r)
        hs = {10: (0, 1, 23, 24), 11: (2, 25, 26, 27)} if A else {9: (0, 1, 23), 10: (2, 24), 11: (25, 26, 27)}
        for sg in hs.get(n, ()): hload(sg, vH + 4 * sg if sg < 4 else vHX if sg == 27 else vH + 4 * (sg - 19))
        if n == 11:
            a.e("s_add_u32 s%d, s%d, 0x%x" % (sHOFF, sHOFF, 3 * 1024))
            a.e("s_add_u32 s%d, s%d, 0x%x" % (sWDOFF, sWDOFF, wdrow(3)))
            a.e("s_add_u32 s%d, s%d, 0x%x" % (sKVOFF, sWK, 9 * 8192))
            a.e("s_mov_b32 s%d, 5" % sCNT)
        if n == 0 and pre0:
            pre0()
            a.stamp(5)
        a.e("s_waitcnt lgkmcnt(0)")
        a.e("s_call_b64 %s, L_Y%s" % (sp(sRET), role))
        if n == 0:
            a.e("s_branch L_X1%s" % role)
            a.lab("L_Y%s" % role)
            if A: a.e("s_barrier")
            for x in Yseg(None): a.e(x)
            if not A: a.e("s_barrier")
            a.e("s_setpc_b64 %s" % sp(sRET))
            a.lab("L_X1%s" % role)
    vm = list(a.vm); need = [63] * 4
    for n in range(12, 32):
        p, it = n % 4, (n - 12) // 4
        tags = ["wd%d" % (n - 11), "h%d" % (n - 12)]
        if (p % 2 == 1) == A: tags.append("kv%d" % ((n + (1 if A else 2)) // 2))
        idx = [i for i, t in enumerate(vm) if t in tags]
        if idx: need[p] = min(need[p], len(vm) - 1 - max(idx))
        vm.append("wd%d" % (n - 9))
        vm.append("h%d" % (n - 9))
        if (p % 2 == 1) == A: vm.append("kv%d" % ((n + (5 if A else 6)) // 2))
    a.lab("L_loop%s" % role)
    for p in range(4):
        if p == 0 and Opt.diag and Opt.kdiag == 2:
            a.e("s_cmp_lg_u32 s%d, 4" % sCNT)
            a.e("s_cbranch_scc1 L_nst%s" % role)
            astamp(a, 8)
            a.lab("L_nst%s" % role)
        a.e("s_waitcnt vmcnt(%d)" % need[p])
        for r in kv_reads(p * 4096, vKVB): a.e(r)
        for r in wd_reads(vWF, vWDA, p * 8192): a.e(r)
        a.e("s_add_u32 m0, s%d, 0x%x" % (sWK, L_WD + ((p + 3) % 4) * 8192))
        a.e("s_and_b32 s%d, s%d, 0x7fff" % (sA, sKVOFF))
        a.e("buffer_load_dwordx4 %s, %s, s%d offen lds" % (v(vWDV), srd(SWD), sWDOFF))
        a.e("s_add_u32 s%d, s%d, 0x%x" % (sWDOFF, sWDOFF, 0x2000 if p & 1 else 0x6000))
        a.e("buffer_load_dwordx4 %s, %s, %s, s%d offen sc1" % (v(vH + 4 * ((p + 3) % 4), 4), v(vL16), srd(SWS), sHOFF))
        if (p % 2 == 1) == A:
            a.e("s_add_u32 m0, s%d, 0x%x" % (sA, L_KV))
        a.e("s_add_u32 s%d, s%d, 0x400" % (sHOFF, sHOFF))
        if (p % 2 == 1) == A:
            a.e("buffer_load_dwordx4 %s, %s, s%d offen sc1 lds" % (v(vL16), srd(SKV), sKVOFF))
            a.e("s_add_u32 s%d, s%d, 0x2000" % (sKVOFF, sKVOFF))
        if p == 3:
            a.e("s_sub_u32 s%d, s%d, 1" % (sCNT, sCNT))
            a.e("s_cmp_lg_u32 s%d, 0" % sCNT)
        a.e("s_waitcnt lgkmcnt(0)")
        if A: a.e("s_barrier")
        for x in Yseg(p, toggle=(p == 3)): a.e(x)
        if not A:
            if p == 3: a.e("s_cbranch_scc0 L_tail")
            a.e("s_barrier")
    a.e(("s_cbranch_scc1 L_loop%s" if A else "s_branch L_loop%s") % role)

def transition(a, role):
    A = role == "A"
    if A:
        a.vm = []
        a.lab("L_trA")
    else:
        a.lab("L_join")
        a.e("s_cmp_eq_u32 s%d, 0" % sHI)
        a.e("s_cbranch_scc1 L_trA")
        a.vmjoin = list(a.vm)
    def qfin():
        for i in range(4): a.e("v_cvt_pk_bf16_f32 %s, %s, %s" % (v(vQ + i), v(vAQ + 2 * i), v(vAQ + 2 * i + 1)))
        for i in range(8): a.e("v_mov_b32 %s, 0" % v(vS + 24 + i))
        a.e("v_permlane16_swap_b32 %s, %s" % (v(vQ), v(vQ + 2)))
        a.e("v_permlane16_swap_b32 %s, %s" % (v(vQ + 1), v(vQ + 3)))
    pre0 = None
    if A:
        a.e("s_setprio 1")
        a.e("s_cmp_ge_u32 s%d, 14" % sM)
        a.e("s_cbranch_scc1 L_nogA0")
        put(a, a.kvA[:1] + a.kvA[-1:])
        a.l.append(".p2align 3")
        for ti in range(Opt.gsc): gelu_tile(a, ti, True)
        a.lab("L_nogA0")
        qfin()
        a.waitvm(["k0", "kv0", "kv1"])
        a.e("s_setprio 0")
        a.e("s_barrier")
        a.e(mfma(vS, vK0, vQ, None))
        put(a, a.kvA[1:-1])
        def pre0():
            a.e("s_cmp_lt_u32 s%d, 14" % sM)
            a.e("s_cbranch_scc1 L_gA1")
            a.e("s_waitcnt vmcnt(0)")
            a.e("s_branch L_nogA1")
            a.l.append(".p2align 3")
            a.lab("L_gA1")
            for ti in range(Opt.gsc, 4): gelu_tile(a, ti)
            a.lab("L_nogA1")
            a.e("s_setprio 1")
    else:
        a.waitvm(["k0", "kv0", "kv1"])
        a.e("s_setprio 1")
        a.e("s_cmp_ge_u32 s%d, 14" % sM)
        a.l.append(".p2align 3")
        a.e("s_barrier")
        a.e("s_cbranch_scc1 L_nogB")
        for ti in range(4): gelu_tile(a, ti)
        a.lab("L_nogB")
        qfin()
        a.e("s_setprio 0")
        a.e("s_nop 0")
        a.e(mfma(vS, vK0, vQ, None))
        a.stamp(5)
    attention(a, role, pre0)
    if A: a.e("s_branch L_tail")

def tail(a):
    a.lab("L_tail")
    a.stamp(6)
    astamp(a, 9)
    if Opt.diag and Opt.kdiag == 2: a.e("s_waitcnt lgkmcnt(0)")
    a.e(smfmac(vO, vV1L, vS + 24))
    a.e("s_setprio 0")
    a.e("s_mov_b32 s%d, 0x%x" % (sC, f2u(2.0 ** -16)))
    a.e("s_mov_b32 s%d, 0x%x" % (sD, f2u(2.0 ** 100)))
    wf = [vFR, vFR + 8, vFR + 16]
    for i in range(2):
        for r in wd_reads(wf[i], vWDA, (4 + i) * 8192): a.e(r)
    a.e("s_nop 0")
    t = vT0
    a.e("v_rcp_f32 %s, %s" % (v(t + 2), v(vO + 8)))
    a.e("v_pk_mul_f32 %s, %s, 0 op_sel_hi:[1,0]" % (v(t, 2), v(vO, 2)))
    for i in range(1, 4): a.e("v_pk_fma_f32 %s, %s, 0, %s op_sel_hi:[1,0,1]" % (v(t, 2), v(vO + 2 * i, 2), v(t, 2)))
    a.e("v_add_f32 %s, %s, %s" % (v(t), v(t), v(t + 1)))
    a.e("v_add_f32 %s, %s, %s" % (v(t), v(t), v(vO + 8)))
    a.e("v_cmp_nle_f32 vcc, s%d, %s" % (sC, v(t)))
    a.e("v_cmp_nge_f32 %s, s%d, %s" % (sp(sTMPP), sD, v(t)))
    a.e("s_or_b64 vcc, vcc, %s" % sp(sTMPP))
    a.e("s_branch L_fb" if Opt.force_fb else "s_cbranch_scc1 L_fb")
    a.lab("L_fbret")
    a.e("v_mul_f32 %s, %s, %s" % (v(t + 2), v(t + 2), v(vGP)))
    for i in range(4): a.e("v_pk_mul_f32 %s, %s, %s op_sel_hi:[1,0]" % (v(vO + 2 * i, 2), v(vO + 2 * i, 2), v(t + 2, 2)))
    for i in range(4): a.e("v_cvt_pk_bf16_f32 %s, %s, %s" % (v(vP + i), v(vO + 2 * i), v(vO + 2 * i + 1)))
    for i in range(4): a.e("v_min_u32 %s, -2, %s" % (v(vP + i), v(vP + i)))
    a.e("buffer_store_dwordx4 %s, %s, %s, s%d offen sc1" % (v(vP, 4), v(vL16), srd(SWS), sOST))
    HORD = [0, 2, 4, 6, 1, 3, 5, 7] if Opt.hord else list(range(8))
    def oload(j):
        return "buffer_load_dwordx4 %s, %s, %s, s%d offen offset:%d %s" % (
            v(vS + 4 * j, 4), v(vL16), srd(SWS), sOLD if HORD[j] < 4 else sA, (HORD[j] % 4) * 1024, Opt.old_pol)
    a.oload = oload
    aw = vXA
    ar = vWA
    def addrs(a):
        a.e("v_sub_f32 %s, 1.0, %s" % (v(vGC), v(vGC)))
        a.e("v_add_u32 %s, 0x%x, %s" % (v(vQA), L_WO, v(vWDA)))
        a.e("v_and_b32 v2, 31, v0")
        a.e("v_lshrrev_b32 v3, 5, v0")
        a.e("v_and_b32 v4, 7, v0")
        a.e("v_xor_b32 v3, v3, v4")
        a.e("v_lshlrev_b32 v3, 4, v3")
        a.e("v_lshl_add_u32 v3, v2, 8, v3")
        a.e("s_and_b32 s%d, s%d, 1" % (sB, sW))
        a.e("s_lshl_b32 s%d, s%d, 15" % (sB, sB))
        a.e("s_lshr_b32 s%d, s%d, 1" % (sC, sW))
        a.e("s_lshl_b32 s%d, s%d, 13" % (sD, sC))
        a.e("s_add_u32 s%d, s%d, s%d" % (sD, sD, sB))
        a.e("v_add_u32 %s, s%d, v3" % (v(aw), sD))
        for j in range(1, 4): a.e("v_xor_b32 %s, %d, %s" % (v(aw + j), 32 * j, v(aw)))
        a.e("v_lshrrev_b32 v2, 3, v0")
        a.e("v_lshlrev_b32 v3, 1, v4")
        a.e("v_xor_b32 v3, v3, v2")
        a.e("v_lshlrev_b32 v3, 4, v3")
        a.e("v_lshl_add_u32 v3, v2, 8, v3")
        a.e("s_lshl_b32 s%d, s%d, 11" % (sD, sC))
        a.e("s_add_u32 s%d, s%d, s%d" % (sD, sD, sB))
        a.e("v_add_u32 %s, s%d, v3" % (v(ar), sD))
        a.e("v_xor_b32 %s, 16, %s" % (v(ar + 1), v(ar)))
        a.e("v_lshlrev_b32 v4, 4, v4")
        a.e("v_lshl_add_u32 %s, v2, 10, v4" % v(ar + 2))
        a.e("s_lshl_b32 s%d, s%d, 13" % (sC, sC))
        a.e("s_add_u32 s%d, s%d, s%d" % (sB, sB, sC))
        a.e("s_lshl_b32 s%d, s%d, 16" % (sC, sT))
        a.e("s_add_u32 s%d, s%d, s%d" % (sB, sB, sC))
        a.e("s_lshl_b32 s%d, s%d, 7" % (sC, sCB))
        a.e("s_add_u32 s%d, s%d, s%d" % (sCNT, sB, sC))
        a.e("s_mov_b32 s%d, 0x2000" % sB)
    a.e("s_add_u32 s%d, s%d, 0x1000" % (sA, sOLD))
    ol = Asm(); a.ool2 = ol.l
    a.e("s_cmp_lg_u32 s%d, 0" % sHI)
    a.e("s_cbranch_scc1 L_tl1")
    for j in range(8): a.e(oload(j))
    a.e("s_waitcnt vmcnt(9)")
    a.e("s_barrier")
    a.e("s_branch L_tl2")
    a.lab("L_tl1")
    a.e("s_setprio 1")
    a.lab("L_tl2")
    fl = collect(addrs)
    for c in range(2):
        a.e(mfma(vD + 16 * c, vWX + 4 * c, vHX, vD + 16 * c))
        put(a, fl[:3]); fl = fl[3:]
    slot = [4, 5, 6, 7, 0, 1, 2]
    for i in range(7):
        if i == 2:
            a.e("s_cmp_eq_u32 s%d, 0" % sHI)
            a.e("s_cbranch_scc1 L_tl5")
            a.e("s_waitcnt vmcnt(1)")
            a.e("s_barrier")
            a.lab("L_tl5")
        if i + 2 < 7:
            for r in wd_reads(wf[(i + 2) % 3], vWDA, slot[i + 2] * 8192): a.e(r)
        else:
            for r in wd_reads(wf[(i + 2) % 3], vQA, HORD[i - 5] * 8192): a.e(r)
        a.e("s_waitcnt lgkmcnt(8)")
        for c in range(2):
            a.e(mfma(vD + 16 * c, wf[i % 3] + 4 * c, vH + 4 * slot[i], vD + 16 * c))
            put(a, fl[:3]); fl = fl[3:]
    assert not fl
    a.e("s_cmp_lg_u32 s%d, 0" % sHI)
    a.e("s_cbranch_scc1 L_tl3")
    a.l.append(".p2align 3")
    a.e("s_nop 7")
    a.e("s_nop 0")
    for i in range(16): a.e("v_pk_mul_f32 %s, %s, %s op_sel:[0,1] op_sel_hi:[1,1]" % (v(vD + 2 * i, 2), v(vD + 2 * i, 2), v(vGP, 2)))
    if Opt.tbar == 0: a.e("s_barrier")
    a.lab("L_tl4")
    ol.lab("L_tl3")
    ol.e("s_setprio 0")
    for j in range(8):
        ol.e(oload(j))
        if j == 0: ol.e("s_nop 6")
        for i in range(4 * j, 4 * j + 4): ol.e("v_mul_f32 %s, %s, %s" % (v(vD + i), v(vGC), v(vD + i)))
    ol.e("s_barrier")
    ol.e("s_branch L_tl4")
    a.stamp(7)
    J1 = 8 - Opt.cskew
    wo = lambda j: wf[(j + 1) % 3] if j < J1 else vH + 8 * (j - J1)
    for j in range(8):
        o = vS + 4 * j
        if j + 2 < 8:
            for r in wd_reads(wo(j + 2), vQA, HORD[j + 2] * 8192): a.e(r)
        a.lab("L_ochk%d" % j)
        a.e("s_waitcnt vmcnt(%d)" % (7 - j))
        a.e("v_max3_u32 v2, %s, %s, %s" % (v(o), v(o + 1), v(o + 2)))
        a.e("v_max_u32 v2, v2, %s" % v(o + 3))
        a.e("v_cmp_eq_u32 vcc, -1, v2")
        a.e("s_cbranch_vccnz L_ore%d" % j)
        a.lab("L_ook%d" % j)
        a.e("s_waitcnt lgkmcnt(%d)" % (4 * min(2, 7 - j)))
        for c in range(2 if j < J1 else 1): a.e(mfma(vD + 16 * c, wo(j) + 4 * c, o, vD + 16 * c))
    wr = lambda c, j: "ds_write_b128 %s, %s offset:%d" % (v(aw + j), v(vD + 16 * c + 4 * j, 4), 128 * c)
    w0 = [wr(0, j) for j in range(4)]
    dist = 0
    for j in range(J1, 8):
        a.e(mfma(vD + 16, wo(j) + 4, vS + 4 * j, vD + 16)); dist += 1
        if dist < 12:
            a.e("s_nop 5"); dist += 6
        elif j < 7:
            a.e(w0.pop(0))
    a.stamp(8)
    if not Opt.cskew: a.e("s_nop 10")
    elif dist < 12: a.e("s_nop %d" % (11 - dist))
    n0 = len(w0)
    for x in w0: a.e(x)
    if Opt.cskew: a.e("s_nop %d" % (11 - n0))
    for j in range(4): a.e(wr(1, j))
    a.e("s_waitcnt lgkmcnt(0)")
    a.e("s_barrier")
    for p in range(4):
        for h in range(2): a.e(rd128(vS + 8 * p + 4 * h, ar + h, p * 8192))
    for p in range(1, 4):
        a.e("s_waitcnt lgkmcnt(%d)" % (6 - 2 * p))
        for i in range(4): a.e("v_pk_add_f32 %s, %s, %s" % (v(vS + 2 * i, 2), v(vS + 2 * i, 2), v(vS + 8 * p + 2 * i, 2)))
    for i in range(4): a.e("v_cvt_pk_bf16_f32 %s, %s, %s" % (v(vP + i), v(vS + 2 * i), v(vS + 2 * i + 1)))
    a.e("buffer_store_dwordx4 %s, %s, %s, s%d offen %s" % (v(vP, 4), v(ar + 2), srd(SOUT), sCNT, Opt.out_pol))
    if Opt.probe >= 0:
        a.e("s_waitcnt vmcnt(0)")
        a.stamp(9)
        if Opt.probe != 9:
            a.e("s_cmp_ge_u32 s%d, 14" % sM)
            a.e("s_cbranch_scc%d L_end" % (0 if Opt.probe_l else 1))
        a.e("s_sub_u32 s%d, s%d, s%d" % (sA, sSTAMP + 4, sSTAMP))
        a.e("s_mul_i32 s%d, s%d, %d" % (sA, sA, Opt.probe_mul - 1))
        a.e("s_min_u32 s%d, s%d, 100000" % (sA, sA))
        a.e("s_add_u32 s%d, s%d, 3800" % (sA, sA))
        if Opt.probe_w >= 0:
            a.e("s_cmp_lg_u32 s%d, %d" % (sHI, Opt.probe_w))
            a.e("s_cbranch_scc1 L_end")
        if Opt.probe_x >= 0:
            a.e("s_and_b32 s0, s2, 7")
            a.e("s_cmp_lg_u32 s0, %d" % Opt.probe_x)
            a.e("s_cbranch_scc1 L_end")
        a.lab("L_probe")
        a.e("s_memrealtime s[0:1]")
        a.e("s_waitcnt lgkmcnt(0)")
        a.e("s_sub_u32 s0, s0, s%d" % (sSTAMP + 4))
        a.e("s_cmp_lt_u32 s0, s%d" % sA)
        a.e("s_cbranch_scc1 L_probe")
    if Opt.pin == 9:
        a.e("s_waitcnt vmcnt(0)")
        a.stamp(9)
    if Opt.diag in (1, 2):
        a.e("s_waitcnt vmcnt(0)")
        a.stamp(9)
        a.e("s_mov_b32 s%d, s%d" % (sSTAMP + 3, sSTAMP))
        a.e("s_mov_b32 s%d, s%d" % (sSTAMP, sB))
        a.e("s_getreg_b32 s%d, hwreg(HW_REG_XCC_ID)" % (sSTAMP + 1))
        for i in range(20): a.e("v_mov_b32 %s, s%d" % (v(vS + i), sSTAMP + i))
        a.e("s_lshl_b32 s%d, s2, 3" % sA)
        a.e("s_add_u32 s%d, s%d, s%d" % (sA, sA, sW))
        a.e("s_lshl_b32 s%d, s%d, 7" % (sA, sA))
        a.e("s_add_u32 s%d, s%d, 0x%x" % (sA, sA, WS_STAMP))
        a.e("s_mov_b64 exec, 1")
        for i in range(5): a.e("buffer_store_dwordx4 %s, off, %s, s%d offset:%d" % (v(vS + 4 * i, 4), srd(SWS), sA, 16 * i))
    a.lab("L_end")
    a.e("s_endpgm")
    a.l += a.ool2
    for j in range(8):
        a.lab("L_ore%d" % j)
        a.e("s_sub_u32 s%d, s%d, 1" % (sB, sB))
        a.e("s_cbranch_scc1 L_ogive%d" % j)
        a.e("s_waitcnt vmcnt(0)")
        for i in range(j, 8): a.e(a.oload(i))
        a.e("s_branch L_ochk%d" % j)
        a.lab("L_ogive%d" % j)
        a.e("s_mov_b32 s%d, 0" % sB)
        a.e("s_branch L_ook%d" % j)

def fallback(a):
    a.lab("L_fb")
    m = vT0
    a.e("v_mov_b32 %s, 0xff800000" % v(m))
    a.e("s_mov_b32 s%d, 0" % sA)
    a.lab("L_fb1")
    a.e("buffer_load_dwordx4 %s, %s, %s, s%d offen sc1" % (v(vKF, 4), v(vL16), srd(SKV), sA))
    a.e("s_waitcnt vmcnt(0)")
    a.e(mfma(vS, vKF, vQ, None))
    a.e("s_add_u32 s%d, s%d, 2048" % (sA, sA))
    a.e("s_nop 11")
    for i in range(8): a.e("v_max3_f32 %s, %s, %s, %s" % (v(m), v(m), v(vS + 2 * i), v(vS + 2 * i + 1)))
    a.e("s_cmp_lt_u32 s%d, 0x20000" % sA)
    a.e("s_cbranch_scc1 L_fb1")
    a.e("v_mov_b32 %s, %s" % (v(m + 1), v(m)))
    a.e("s_nop 1")
    a.e("v_permlane32_swap_b32 %s, %s" % (v(m), v(m + 1)))
    a.e("s_nop 1")
    a.e("v_max_f32 %s, %s, %s" % (v(m), v(m), v(m + 1)))
    for i in range(16): a.e("v_sub_f32 %s, 0, %s" % (v(vS + 16 + i), v(m)))
    for i in range(16): a.e("v_mov_b32 %s, 0" % v(vO + i))
    a.e("s_mov_b32 s%d, 0" % sA)
    a.lab("L_fb2")
    a.e("s_add_u32 s%d, s%d, 0x%x" % (sB, sA, 63 * 2048))
    a.e("s_and_b32 s%d, s%d, 0x1ffff" % (sB, sB))
    a.e("buffer_load_dwordx4 %s, %s, %s, s%d offen sc1" % (v(vKF, 4), v(vL16), srd(SKV), sB))
    a.e("s_add_u32 s%d, s%d, 2048" % (sB, sA))
    a.e("s_and_b32 s%d, s%d, 0x1ffff" % (sB, sB))
    a.e("s_mov_b64 exec, %s" % sp(sVM))
    a.e("buffer_load_dwordx4 %s, %s, %s, s%d offen offset:1024 sc1" % (v(vV, 4), v(vL16), srd(SKV), sA))
    a.e("buffer_load_dwordx4 %s, %s, %s, s%d offen offset:1280 sc1" % (v(vV + 4, 4), v(vL16), srd(SKV), sB))
    a.e("s_mov_b64 exec, -1")
    a.e("s_waitcnt vmcnt(0)")
    a.e(mfma(vS, vKF, vQ, vS + 16))
    a.e("s_add_u32 s%d, s%d, 2048" % (sA, sA))
    a.e("s_nop 11")
    for i in range(16): a.e("v_exp_f32 %s, %s" % (v(vS + i), v(vS + i)))
    a.e("s_nop 2")
    a.e(smfmac(vO, vV, vS))
    a.e(smfmac(vO, vV + 4, vS + 8))
    a.e("s_cmp_lt_u32 s%d, 0x20000" % sA)
    a.e("s_cbranch_scc1 L_fb2")
    a.e("s_nop 11")
    a.e("v_rcp_f32 %s, %s" % (v(vT0 + 2), v(vO + 8)))
    a.e("s_branch L_fbret")

def build():
    a = Asm()
    prologue(a)
    phase1_F(a)
    transition(a, "B")
    tail(a)
    a.l += a.ool
    transition(a, "A")
    phase1_L(a)
    fallback(a)
    a.lab("L_codeend")
    for i, x in enumerate(a.l):
        if " sc1" in x and "sc0" not in x and ((Opt.allsc & 1 and "buffer_store" in x) or (Opt.allsc & 2 and "buffer_load" in x)):
            a.l[i] = x.replace(" sc1", " sc0 sc1")
    il = a.l.index("L_light:")
    for i, x in enumerate(a.l):
        if x.endswith(" lds") and "sc1" not in x and " nt" not in x:
            if (Opt.ntx & 4 and (srd(SWD) in x or srd(SWO) in x)) or (Opt.ntx & 8 and i > il):
                a.l[i] = x[:-4] + " nt lds"
    head = open("cdna_kernels/%s.s.ref" % NAME).read().split("\n")
    hdr = [l for l in head if l.startswith(";") and "@launch" not in l and "Override" not in l and "grid=" not in l]
    out = hdr + ["; @launch grid=(256,1,1) block=(512,1,1) lds=%d" % LDS_BYTES,
                 '.amdgcn_target "amdgcn-amd-amdhsa--gfx950"', ".text", ".globl %s_kernel" % NAME, ".p2align 8",
                 ".type %s_kernel,@function" % NAME,
                 ".set CODE_PF_MAX, L_codeend - L_nopf - 4" if Opt.code_pf else "",
                 "%s_kernel:" % NAME]
    out += ["; mapmode %d" % Opt.mapmode, "; xrot %d" % Opt.xrot]
    out += a.l
    out += ['.section .rodata,"a"', ".p2align 6", ".amdhsa_kernel %s_kernel" % NAME,
            "  .amdhsa_next_free_vgpr %d" % NV, "  .amdhsa_next_free_sgpr 102", "  .amdhsa_accum_offset 256",
            "  .amdhsa_group_segment_fixed_size 0", "  .amdhsa_kernarg_size 104", "  .amdhsa_user_sgpr_count 2",
            "  .amdhsa_user_sgpr_kernarg_segment_ptr 1", "  .amdhsa_system_sgpr_workgroup_id_x 1", ".end_amdhsa_kernel", ""]
    return "\n".join(out)

if __name__ == "__main__":
    path = sys.argv[1]
    for kv in sys.argv[2:]:
        k, val = kv.split("=")
        cur = getattr(Opt, k)
        setattr(Opt, k, val if isinstance(cur, str) else type(cur)(int(val)))
    open(path, "w").write(build())
```

```python
import sys, struct, math

NAME = "gated_mix__grouped_kv_mqa__geglu_ffn__prompt"

class Opt:
    diag = 0
    mapmode = 1
    force_fb = False
    allsc = 0
    out_pol = "sc0 sc1"
    code_pf = True
    xrot = 0
    pregap = 0
    old_pol = "sc1"
    ypos0 = "36g"
    ypos1 = "36bg"
    ypos2 = "36cg9"
    xtile = 0
    tpos = 1
    cskew = 0
    tch = 12
    stch = 0
    spos = 1
    tlb = 14
    olate = 1
    hrot = 0
    tbar = 0
    hord = 1
    cmap = 1
    kqx = 0
    oearly = 8
    conc = 1
    ghx = 1
    qa = "088888"
    qb = "577777"
    npre = 8
    stagger = 1
    rper = 2
    dma1 = 17
    kprio = 0
    dma0 = 8
    npd = 4
    kdiag = 0
    fillpre = 0
    fillper = 5
    gsc = 2
    sched = 0
    xmask = 1
    ntx = 0
    touch = 2
    rotg = 0
    rotm = 0
    startbar = 1
    pvz = 1
    pin = -1
    pin_ns = 60000
    probe = -1
    probe_x = -1
    probe_mul = 10
    probe_w = -1
    probe_l = 0

def f2u(x): return struct.unpack("<I", struct.pack("<f", x))[0]

WS_KV = 0
WS_G = 128 * 1024
WS_HFLAG = 192 * 1024
WS_OF = 1 << 20
WS_HF = 4 << 20
WS_STAMP = 12 << 20
WS_SIZE = 16 << 20
K1 = 1024
L_G, L_U, L_X, L_WQ = 0, 48 * K1, 96 * K1, 144 * K1
L_QX = 32 * K1
L_WD, L_WO, L_KV = 0, 64 * K1, 128 * K1
LL_X, LL_W, LL_GATE, LL_WQ = 0, 128 * K1, 144 * K1, 128 * K1
LDS_BYTES = 160 * K1

SX, SWG, SWU, SWQ, SWS, SWD, SWO, SOUT, SDBG, SWKV, SGATE, SKV = 4, 8, 12, 16, 20, 24, 28, 32, 36, 40, 44, 64
SWV = 72
sTMPP = 48
sW, sHI, sLO, sG, sM, sT, sCB = 50, 51, 52, 53, 54, 55, 56
sWK = 57
sWH = 58
sVM = 60
sRET = 62
sA, sB, sC, sD = 68, 69, 70, 71
sOFFW, sOFFQ, sCH, sXP = 72, 73, 74, 75
sHOFF, sWDOFF, sKVOFF, sHXO, sCNT = 72, 73, 74, 75, 77
sOUTO, sLO_, sRNG = 59, 81, 75
sOLD2 = 58
sOST, sOLD, sHST = 78, 79, 80
sHST2 = 3
sRX, sRW, sM0B = 40, 41, 42
sKQ = 76
sHP = sM
sSTAMP = 82

def srd(b): return "s[%d:%d]" % (b, b + 3)
def sp(b): return "s[%d:%d]" % (b, b + 1)
def v(b, n=1): return "v%d" % b if n == 1 else "v[%d:%d]" % (b, b + n - 1)

vL16 = 1
vT0, vT1, vT2, vT3 = 2, 3, 4, 5
vGP, vGC = 6, 7
vKVA = 8
vWDA = 9
vWDV = 10
vONE = 11
vZERO = 12
vFLA = 13
vPOLL = 14
vGA = 15
vQ = 16
vK0 = 20
vV1L = 24
vIDX = 28
vAW0, vAR0, vOUTA = 30, 31, 12
vKVB = 29
vP = 32
vV = 40
vO = 56
vD = 72
vACC = 104
vS = 104
vH = 136
vAQ = vP
vF1 = 168
vKF = 168
vWF = 176
vWX = 224
vHX = 232
vFR = 184
vLX = 224
vXA = 240
vWA = 244
vQA = 248
vDX, vDG, vDQ = 249, 250, 251
vC0 = 252
vTID = 255
vHA = 254
NV = 256

class Asm:
    def __init__(self):
        self.l = []
        self.vm = []
        self.nstamp = 0
    def e(self, s):
        for x in s.split("\n"):
            x = x.strip()
            if x: self.l.append("    " + x)
    def lab(self, s): self.l.append(s + ":")
    def vmop(self, s, tag):
        self.e(s); self.vm.append(tag)
    def vmn(self, tags):
        if isinstance(tags, str): tags = [tags]
        last = -1
        for i, t in enumerate(self.vm):
            if t in tags: last = i
        return None if last < 0 else len(self.vm) - 1 - last
    def waitvm(self, tags, lgkm=False):
        n = self.vmn(tags)
        if n is None:
            if lgkm: self.e("s_waitcnt lgkmcnt(0)")
            return
        assert n < 64
        self.e("s_waitcnt vmcnt(%d)%s" % (n, " lgkmcnt(0)" if lgkm else ""))
        self.vm = self.vm[len(self.vm) - n:] if n else []
    def wait0(self, lgkm=False):
        self.e("s_waitcnt vmcnt(0)%s" % (" lgkmcnt(0)" if lgkm else "")); self.vm = []
    def stamp(self, i, real=False):
        if Opt.probe == i:
            self.e("s_waitcnt lgkmcnt(0)")
            self.e("s_memrealtime %s" % sp(sSTAMP + 4))
            self.e("s_waitcnt lgkmcnt(0)")
        if Opt.pin == i:
            self.nstamp += 1
            self.e("s_waitcnt lgkmcnt(0)")
            self.e("s_cselect_b32 s%d, 1, 0" % (sSTAMP + 5))
            self.lab("L_pin%d" % self.nstamp)
            self.e("s_memrealtime s[0:1]")
            self.e("s_waitcnt lgkmcnt(0)")
            self.e("s_sub_u32 s0, s0, s%d" % sSTAMP)
            self.e("s_cmp_lt_u32 s0, %d" % (Opt.pin_ns // 10))
            self.e("s_cbranch_scc1 L_pin%d" % self.nstamp)
            self.e("s_cmp_lg_u32 s%d, 0" % (sSTAMP + 5))
        if Opt.diag and not Opt.kdiag and (Opt.diag == 1 or i == 9):
            self.e("s_waitcnt lgkmcnt(0)")
            self.e("s_memtime %s" % sp(sSTAMP + 2 * i))
            self.e("s_memrealtime %s" % sp(sRET))
            self.e("s_waitcnt lgkmcnt(0)")
            self.e("s_mov_b32 s%d, s%d" % (sSTAMP + 2 * i + 1, sRET))

def astamp(a, i):
    if Opt.diag and Opt.kdiag == 2: a.e("s_memtime %s" % sp(sSTAMP + 2 * i))

def tstamp(a, i):
    if Opt.diag and Opt.kdiag == 3: a.e("s_memtime %s" % sp(sSTAMP + 2 * i))

def kstamp(a, i):
    if Opt.probe == 18 + i: a.e("s_memrealtime %s" % sp(sSTAMP + 4))
    if Opt.diag and Opt.kdiag == 1: a.e("s_memtime %s" % sp(sSTAMP + 2 * i))

def mfma(d, a, b, c):
    return "v_mfma_f32_32x32x16_bf16 %s, %s, %s, %s" % (v(d, 16), v(a, 4), v(b, 4), "0" if c is None else v(c, 16))
def smfmac(d, a, b):
    return "v_smfmac_f32_32x32x32_bf16 %s, %s, %s, %s" % (v(d, 16), v(a, 4), v(b, 8), v(vIDX))
def mfma16(d, a, b, c):
    return "v_mfma_f32_16x16x32_bf16 %s, %s, %s, %s" % (v(d, 4), v(a, 4), v(b, 4), "0" if c is None else v(c, 4))
def rd128(d, a, off):
    assert 0 <= off < 65536
    return "ds_read_b128 %s, %s offset:%d" % (v(d, 4), v(a), off)
def rdtr(d, a, off):
    assert 0 <= off < 65536
    return "ds_read_b64_tr_b16 %s, %s offset:%d" % (v(d, 2), v(a), off)

def interleave(mf, fill, per=2):
    out = []
    fill = list(fill)
    for i, m in enumerate(mf):
        out.append(m)
        if i < len(mf) - 1:
            out += fill[:per]; fill = fill[per:]
    return out + fill

def srd_words(a, regs):
    sizes = {SX: 2048 * 1024, SWG: 512 * 3584, SWU: 512 * 3584, SWQ: 512 * 1024, SWS: WS_SIZE, SWKV: 16384, SWV: 16384,
             SGATE: 1024, SWD: 1792 * 1024, SWO: 512 * 1024, SOUT: 2048 * 1024, SDBG: 256, SKV: 128 * 1024}
    for reg in regs:
        a.e("s_mov_b32 s%d, 0x%x" % (reg + 2, sizes[reg]))
        a.e("s_mov_b32 s%d, 0x20000" % (reg + 3))

def ptr_loads(a, lst):
    for reg, off in lst: a.e("s_load_dwordx2 %s, s[0:1], %d" % (sp(reg), off))

def prologue(a):
    if Opt.diag or Opt.pin >= 0 or Opt.probe >= 0:
        a.e("s_memrealtime %s" % sp(sSTAMP))
        if Opt.diag in (1, 2): a.e("s_memtime %s" % sp(sSTAMP + 2))
    ptr_loads(a, ((SX, 0), (SWG, 48), (SWU, 56), (SWQ, 8)))
    a.e("s_load_dwordx8 s[%d:%d], s[0:1], 64" % (SOUT, SOUT + 7))
    if not (Opt.diag or Opt.probe >= 0): ptr_loads(a, ((SWS, 96), (SWO, 32)))
    if Opt.probe == 1: a.stamp(1)
    a.e("v_lshrrev_b32 v2, 6, v0")
    if Opt.code_pf:
        a.e("s_getpc_b64 %s" % sp(sRET))
        a.lab("L_nopf")
        a.e("s_and_b32 s%d, s2, -8" % sA)
        a.e("v_add_lshl_u32 v3, v2, s%d, 7" % sA)
        a.e("v_readfirstlane_b32 s%d, v2" % sW)
        a.e("v_min_u32 v3, CODE_PF_MAX, v3")
        a.e("global_load_dword %s, v3, %s" % (v(vPOLL), sp(sRET)))
    else:
        a.e("s_nop 0")
        a.e("v_readfirstlane_b32 s%d, v2" % sW)
    if Opt.diag or Opt.probe >= 0:
        a.e("s_load_dwordx2 %s, s[0:1], 96" % sp(SWS))
    a.e("s_cmpk_ge_u32 s2, 256")
    a.e("s_cbranch_scc1 L_end")
    a.e("s_and_b32 s%d, s2, 1" % sD)
    a.e("s_bfe_u32 s%d, s2, 0x30003" % sA)
    a.e("s_lshl3_add_u32 s%d, s%d, s%d" % (sG, sD, sA))
    a.e("s_bfe_u32 s%d, s2, 0x20001" % sA)
    a.e("s_lshr_b32 s%d, s2, 6" % sB)
    a.e("s_lshl2_add_u32 s%d, s%d, s%d" % (sM, sA, sB))
    a.e("s_lshl_b32 s%d, s%d, 10" % (sWK, sW))
    a.e("s_cmp_ge_u32 s%d, 14" % sM)
    a.e("s_cbranch_scc1 L_light")

def xvoff(a, t):
    a.e("v_lshrrev_b32 v2, 4, %s" % v(t))
    a.e("v_xor_b32 v2, v2, %s" % v(t))
    a.e("v_and_b32 v2, 7, v2")
    a.e("s_lshl_b32 s%d, s%d, 17" % (sA, sG))
    a.e("v_lshl_add_u32 v2, v2, 4, s%d" % sA)
    a.e("v_lshrrev_b32 v3, 3, %s" % v(t))
    a.e("v_lshl_add_u32 %s, v3, 10, v2" % v(vDX))

def setup_ids(a):
    a.e("s_mov_b64 %s, %s" % (sp(SKV), sp(SWS)))
    a.e("s_mov_b64 %s, %s" % (sp(SWD), sp(SOUT)))
    a.e("s_mov_b64 %s, %s" % (sp(SOUT), sp(SOUT + 4)))
    a.e("s_mov_b64 %s, %s" % (sp(SDBG), sp(SOUT + 6)))
    a.e("v_and_b32 v0, 63, v0")
    a.e("v_lshlrev_b32 %s, 4, v0" % v(vL16))
    a.e("s_andn2_b32 s%d, 1, s2" % sA)
    a.e("s_bfe_u32 s%d, s2, 0x20001" % sB)
    a.e("s_lshl2_add_u32 s%d, s%d, s%d" % (sA, sA, sB))
    a.e("s_bfe_u32 s%d, s2, 0x20003" % sB)
    a.e("s_lshl2_add_u32 s%d, s%d, s%d" % (sT, sA, sB))
    a.e("s_lshr_b32 s%d, s2, 5" % sCB)

def setup_rd(a):
    a.e("s_lshr_b32 s%d, s%d, 2" % (sHI, sW))
    a.e("s_and_b32 s%d, s%d, 3" % (sLO, sW))
    a.e("v_and_b32 v2, 15, v0")
    a.e("v_lshrrev_b32 v3, 4, v0")
    a.e("v_bfe_u32 v4, v0, 1, 3")
    a.e("v_xor_b32 v4, v4, v3")
    a.e("v_lshlrev_b32 v4, 4, v4")
    a.e("v_lshl_add_u32 %s, v2, 7, v4" % v(vXA))
    a.e("v_bfe_u32 v2, v0, 2, 2")
    a.e("v_and_b32 v4, 3, v0")
    a.e("v_lshl_add_u32 %s, v3, 3, v2" % v(vQA))
    a.e("v_lshlrev_b32 %s, 6, %s" % (v(vQA), v(vQA)))
    a.e("v_xor_b32 v5, s%d, v3" % sHI)
    a.e("v_and_b32 v5, 1, v5")
    a.e("v_lshl_add_u32 %s, v5, 5, %s" % (v(vQA), v(vQA)))
    a.e("v_lshl_add_u32 %s, v4, 3, %s" % (v(vQA), v(vQA)))

def setup_oclr(a):
    srd_words(a, [SWS, SKV, SDBG])
    a.e("s_mov_b32 s%d, 0xffff" % sVM)
    a.e("s_mov_b32 s%d, 0xffff" % (sVM + 1))
    a.e("s_lshl_b32 s%d, s%d, 2" % (sA, sG))
    a.e("s_add_u32 s%d, s%d, s%d" % (sA, sA, sLO))
    a.e("s_lshl_b32 s%d, s%d, 5" % (sB, sA))
    a.e("s_lshl_b32 s%d, s%d, 1" % (sC, sHP))
    a.e("s_add_u32 s%d, s%d, s%d" % (sB, sB, sC))
    a.e("s_add_u32 s%d, s%d, s%d" % (sB, sB, sHI))
    a.e("s_lshl_b32 s%d, s%d, 10" % (sB, sB))
    a.e("s_add_u32 s%d, s%d, 0x%x" % (sOST, sB, WS_OF))
    for i in range(4): a.e("v_mov_b32 %s, -1" % v(vQ + i))
    a.vmop("buffer_store_dwordx4 %s, %s, %s, s%d offen sc1" % (v(vQ, 4), v(vL16), srd(SWS), sOST), "oclr")
    a.e("v_mov_b32 %s, 1" % v(vONE))
    a.e("v_mov_b32 %s, 0" % v(vZERO))
    a.e("v_and_b32 %s, 31, v0" % v(vGA))
    a.e("v_lshlrev_b32 %s, 2, %s" % (v(vGA), v(vGA)))

def collect(fn):
    t = Asm(); t.marks = {}
    def vmop(s_, tag):
        t.e(s_); t.marks[len(t.l) - 1] = tag
    t.vmop = vmop
    fn(t)
    return [(x, t.marks.get(i)) for i, x in enumerate(t.l)]
def put(a, items):
    for x, tag in items:
        if tag: a.vmop(x, tag)
        else: a.e(x)

def setup_attn(a):
    srd_words(a, [SWD, SWO, SOUT])
    a.e("s_lshl_b32 s%d, s%d, 2" % (sA, sG))
    a.e("s_add_u32 s%d, s%d, s%d" % (sA, sA, sLO))
    a.e("s_mul_i32 s%d, s%d, 112" % (sB, sA))
    a.e("s_lshl_b32 s%d, s%d, 3" % (sC, sM))
    a.e("s_add_u32 s%d, s%d, s%d" % (sB, sB, sC))
    a.e("s_lshl_b32 s%d, s%d, 2" % (sC, sHI))
    a.e("s_add_u32 s%d, s%d, s%d" % (sB, sB, sC))
    a.e("s_and_b32 s%d, s%d, 1" % (sC, sLO))
    a.e("s_lshl_b32 s%d, s%d, 1" % (sC, sC))
    a.e("s_add_u32 s%d, s%d, s%d" % (sB, sB, sC))
    a.e("s_lshl_b32 s%d, s%d, 10" % (sB, sB))
    a.e("s_add_u32 s%d, s%d, 0x%x" % (sHST, sB, WS_HF))
    a.e("s_mul_i32 s%d, s%d, %d" % (sC, sC, 112 * 1024))
    a.e("s_sub_u32 s%d, %d, s%d" % (sC, 112 * 1024, sC))
    a.e("s_add_u32 s%d, s%d, s%d" % (sHST2, sHST, sC))
    a.e("v_bfe_u32 v2, v0, 2, 2")
    a.e("v_lshrrev_b32 v3, 5, v0")
    a.e("v_lshl_add_u32 v2, v3, 2, v2")
    a.e("v_lshlrev_b32 v2, 6, v2")
    a.e("v_bfe_u32 v3, v0, 4, 1")
    a.e("v_lshl_add_u32 v2, v3, 5, v2")
    a.e("v_and_b32 v3, 3, v0")
    a.e("v_lshl_add_u32 v2, v3, 3, v2")
    a.e("s_lshr_b32 s%d, s%d, 1" % (sA, sW))
    a.e("s_lshl_b32 s%d, s%d, 11" % (sA, sA))
    a.e("v_add_u32 %s, s%d, v2" % (v(vWDA), sA))
    a.e("v_add_u32 %s, 0x%x, %s" % (v(vKVA), L_KV, v(vL16)))
    a.e("v_add_u32 %s, 0x%x, %s" % (v(vKVB), L_KV + 0x4000, v(vL16)))
    a.e("v_bfe_u32 v2, v0, 2, 3")
    a.e("v_lshlrev_b32 v2, 10, v2")
    a.e("v_lshrrev_b32 v3, 5, v0")
    a.e("v_lshl_add_u32 v2, v3, 6, v2")
    a.e("v_and_b32 v3, 3, v0")
    a.e("v_lshl_add_u32 v2, v3, 4, v2")
    a.e("s_lshl_b32 s%d, s%d, 7" % (sB, sCB))
    a.e("v_add_u32 %s, s%d, v2" % (v(vWDV), sB))
    a.e("v_min_u32 v2, 13, v0")
    a.e("v_lshlrev_b32 v2, 7, v2")
    a.e("s_lshr_b32 s%d, s%d, 1" % (sA, sT))
    a.e("s_lshl_b32 s%d, s%d, 11" % (sA, sA))
    a.e("s_add_u32 s%d, s%d, 0x%x" % (sA, sA, WS_HFLAG))
    a.e("v_add_u32 %s, s%d, v2" % (v(vFLA), sA))
    a.e("s_lshl_b32 s%d, s%d, 1" % (sA, sT))
    a.e("s_and_b32 s%d, s%d, 1" % (sB, sW))
    a.e("s_add_u32 s%d, s%d, s%d" % (sA, sA, sB))
    a.e("s_lshl_b32 s%d, s%d, 15" % (sB, sA))
    a.e("s_lshr_b32 s%d, s%d, 1" % (sKQ, sW))
    if Opt.kqx:
        a.e("s_lshl_b32 s%d, s%d, 1" % (sC, sCB))
        a.e("s_and_b32 s%d, s%d, 2" % (sC, sC))
        a.e("s_xor_b32 s%d, s%d, s%d" % (sKQ, sKQ, sC))
    a.e("s_lshl_b32 s%d, s%d, 13" % (sC, sKQ))
    a.e("s_add_u32 s%d, s%d, s%d" % (sB, sB, sC))
    a.e("s_add_u32 s%d, s%d, 0x%x" % (sOLD, sB, WS_OF))
    a.e("v_and_b32 v2, 31, v0")
    a.e("v_lshrrev_b32 v3, 5, v0")
    a.e("v_and_b32 v4, 7, v0")
    a.e("v_xor_b32 v3, v3, v4")
    a.e("v_lshlrev_b32 v3, 4, v3")
    a.e("v_lshl_add_u32 v3, v2, 8, v3")
    a.e("s_and_b32 s%d, s%d, 1" % (sB, sW))
    a.e("s_lshl_b32 s%d, s%d, 15" % (sB, sB))
    a.e("s_lshr_b32 s%d, s%d, 1" % (sC, sW))
    a.e("s_lshl_b32 s%d, s%d, 13" % (sD, sC))
    a.e("s_add_u32 s%d, s%d, s%d" % (sOUTO, sD, sB))
    a.e("v_add_u32 %s, s%d, v3" % (v(vAW0), sOUTO))
    a.e("v_lshrrev_b32 v2, 3, v0")
    a.e("v_lshlrev_b32 v3, 1, v4")
    a.e("v_xor_b32 v3, v3, v2")
    a.e("v_lshlrev_b32 v3, 4, v3")
    a.e("v_lshl_add_u32 v3, v2, 8, v3")
    a.e("s_lshl_b32 s%d, s%d, 11" % (sD, sC))
    a.e("s_add_u32 s%d, s%d, s%d" % (sD, sD, sB))
    a.e("v_add_u32 %s, s%d, v3" % (v(vAR0), sD))
    a.e("v_lshlrev_b32 v4, 4, v4")
    a.e("v_lshl_add_u32 %s, v2, 10, v4" % v(vOUTA))
    a.e("s_lshl_b32 s%d, s%d, 16" % (sC, sT))
    a.e("s_add_u32 s%d, s%d, s%d" % (sOUTO, sOUTO, sC))
    a.e("s_lshl_b32 s%d, s%d, 7" % (sC, sCB))
    a.e("s_add_u32 s%d, s%d, s%d" % (sOUTO, sOUTO, sC))
    if Opt.pvz:
        a.e("s_mov_b32 s%d, 0x110000" % sA)
        a.e("s_mov_b32 s%d, 0x110000" % sB)
        a.e("v_mov_b32 v3, 0x3f803f80")
        a.e("v_cndmask_b32 v2, 0, v3, %s" % sp(sA))
    else:
        a.e("v_mov_b32 v2, 0x3f803f80")
    for i in range(16): a.e("v_mov_b32 %s, v2" % v(vV + i))
    for i in range(4): a.e("v_mov_b32 %s, v2" % v(vV1L + i))
    a.e("v_mov_b32 %s, 0xdddd" % v(vIDX))
    a.e("v_lshrrev_b32 v2, 4, v0")
    a.e("v_lshl_add_u32 %s, v2, 8, %s" % (v(vHA), v(vL16)))
    for i in range(16): a.e("v_mov_b32 %s, 0" % v(vO + i))
    for i in range(32): a.e("v_mov_b32 %s, 0" % v(vD + i))
    c0 = -2.0 * math.sqrt(2.0 / math.pi) * math.log2(math.e)
    a.e("v_mov_b32 %s, 0x%x" % (v(vC0), f2u(c0)))
    a.e("v_mov_b32 %s, 0x%x" % (v(vC0 + 1), f2u(c0 * 0.044715)))

def kv_first_loads(a, quartet=False):
    it = []
    for o in (range(0, 16384, 4096) if quartet else range(0, 16384, 8192)):
        b = sWH if quartet else sWK
        it.append(("s_add_u32 m0, s%d, 0x%x\ns_add_u32 s%d, s%d, 0x%x\nbuffer_load_dwordx4 %s, %s, s%d offen sc1 lds"
                   % (b, L_KV + o, sA, b, o, v(vL16), srd(SKV), sA), "kv%d" % (o >> 13)))
    it.append(("s_mov_b32 s%d, 0x%x\nbuffer_load_dwordx4 %s, %s, %s, s%d offen sc1"
               % (sA, 63 * 2048, v(vK0, 4), v(vL16), srd(SKV), sA), "k0"))
    it.append(("s_mov_b64 exec, %s\nbuffer_load_dwordx4 %s, %s, %s, 0 offen offset:%d sc1\ns_mov_b64 exec, -1"
               % (sp(sVM), v(vV1L, 4), v(vL16), srd(SKV), 1024 + 256), "k0"))
    it.append(("s_lshl_b32 s%d, s%d, 2\ns_add_u32 s%d, s%d, s%d\ns_lshl_b32 s%d, s%d, 7\ns_add_u32 s%d, s%d, 0x%x\n"
               "buffer_load_dword %s, %s, %s, s%d offen sc1"
               % (sA, sG, sA, sA, sLO, sA, sA, sA, sA, WS_G, v(vGP), v(vGA), srd(SWS), sA), "k0"))
    it.append(("s_lshl_b32 s%d, s%d, 1\ns_and_b32 s%d, s%d, 1\ns_add_u32 s%d, s%d, s%d\ns_lshl_b32 s%d, s%d, 7\ns_add_u32 s%d, s%d, 0x%x\n"
               "buffer_load_dword %s, %s, %s, s%d offen sc1"
               % (sA, sT, sB, sW, sA, sA, sB, sA, sA, sA, sA, WS_G, v(vGC), v(vGA), srd(SWS), sA), "k0"))
    return it

def spin_counter(a, name, first_loaded, wave=0):
    a.e("s_cmp_lg_u32 s%d, %d" % (sW, wave))
    a.e("s_cbranch_scc1 L_%s_done" % name)
    a.e("s_mov_b32 s%d, 0x4000" % sB)
    if first_loaded: a.e("s_branch L_%s_chk" % name)
    a.lab("L_%s_re" % name)
    a.e("buffer_load_dword %s, off, %s, 0 sc1" % (v(vPOLL), srd(SDBG)))
    a.e("s_waitcnt vmcnt(0)")
    a.lab("L_%s_chk" % name)
    a.e("v_readfirstlane_b32 s%d, %s" % (sA, v(vPOLL)))
    a.e("s_cmp_ge_u32 s%d, 32" % sA)
    a.e("s_cbranch_scc1 L_%s_done" % name)
    a.e("s_sleep 4")
    a.e("s_sub_u32 s%d, s%d, 1" % (sB, sB))
    a.e("s_cmp_lg_u32 s%d, 0" % sB)
    a.e("s_cbranch_scc1 L_%s_re" % name)
    a.lab("L_%s_done" % name)

def phase1_F(a):
    SCHED = {1: ["01423567", "10253467", "23016457", "32104756"],
             2: ["02134657", "01324576", "10243567", "10235467"],
             3: ["01324657", "01243576", "12035467", "20134567"],
             5: ["01243567", "10325467", "23014657", "32104576"],
             6: ["01243567", "10325467", "01234657", "10324576"],
             4: ["02143657", "10325476", "02143657", "10325476"]}
    tabs = SCHED[Opt.sched] if Opt.sched else ["".join(str(c ^ (p & Opt.xmask)) for c in range(8)) for p in range(4)]
    for t_ in tabs: assert sorted(t_) == list("01234567")
    num = [int(t_[::-1], 16) for t_ in tabs]
    def table(a):
        a.e("s_add_u32 s%d, s%d, s%d" % (sA, sG, sHP))
        a.e("s_mov_b32 s%d, 0x%x" % (sXP, num[0]))
        a.e("s_mov_b32 s%d, 0x%x" % (sB, num[2]))
        a.e("s_bitcmp1_b32 s%d, 0" % sA)
        a.e("s_cselect_b32 s%d, 0x%x, s%d" % (sXP, num[1], sXP))
        a.e("s_cselect_b32 s%d, 0x%x, s%d" % (sB, num[3], sB))
        a.e("s_bitcmp1_b32 s%d, 1" % sA)
        a.e("s_cselect_b32 s%d, s%d, s%d" % (sXP, sB, sXP))
        if Opt.ghx:
            a.e("s_bitcmp1_b32 s%d, 3" % sG)
            a.e("s_cselect_b32 s%d, 0x44444444, 0" % sB)
            a.e("s_xor_b32 s%d, s%d, s%d" % (sXP, sXP, sB))
    fo, fw = {"0000": (0, 0), "0101": (0, 1), "0011": (1, 1), "0123": (0, 2)}["".join(t_[0] for t_ in tabs)]
    a.e("s_add_u32 s%d, s%d, s%d" % (sA, sG, sHP))
    a.e("s_bfe_u32 s%d, s%d, 0x%x" % (sCH, sA, fw << 16 | fo))
    if Opt.ghx: a.e("s_lshl2_add_u32 s%d, s%d, s%d" % (sCH, sD, sCH))
    a.e("s_and_b32 s%d, s%d, 0xc00" % (sWH, sWK))
    a.e("v_and_b32 %s, 0xff, v0" % v(vTID))

    def wvoff(a):
        a.e("v_lshrrev_b32 v2, 4, %s" % v(vTID))
        a.e("v_lshrrev_b32 v3, 5, %s" % v(vTID))
        a.e("v_bfi_b32 v3, 3, v2, v3")
        a.e("v_lshlrev_b32 v3, 1, v3")
        a.e("v_xor_b32 v3, v3, %s" % v(vTID))
        a.e("v_and_b32 v3, 15, v3")
        a.e("s_lshl_b32 s%d, s%d, 8" % (sA, sM))
        a.e("v_lshl_add_u32 v3, v3, 4, s%d" % sA)
        a.e("v_mul_u32_u24 v2, 3584, v2")
        a.e("v_add_u32 %s, v2, v3" % v(vDG))
    def qvoff(a):
        a.e("v_lshrrev_b32 v2, 4, %s" % v(vTID))
        a.e("v_and_b32 v2, 2, v2")
        a.e("v_xor_b32 v2, v2, %s" % v(vTID))
        a.e("v_and_b32 v2, 3, v2")
        a.e("s_lshl_b32 s%d, s%d, 6" % (sA, sHP))
        a.e("v_lshl_add_u32 v2, v2, 4, s%d" % sA)
        a.e("v_lshrrev_b32 v3, 2, %s" % v(vTID))
        a.e("v_lshl_add_u32 %s, v3, 10, v2" % v(vDQ))
    def stouch(a):
        if Opt.diag or Opt.probe >= 0: a.e("s_load_dwordx2 %s, s[0:1], 32" % sp(SWO))
        if not Opt.stch: return
        a.e("s_lshr_b32 s%d, s%d, 2" % (sA, sW))
        if Opt.ghx: a.e("s_lshl2_add_u32 s%d, s%d, s%d" % (sA, sD, sA))
        a.e("s_lshl_b32 s%d, s%d, 6" % (sA, sA))
        a.e("s_and_b32 s%d, s%d, 7" % (sB, sG))
        a.e("s_add_u32 s%d, s%d, s%d" % (sA, sA, sB))
        a.e("s_mul_i32 s%d, s%d, 28" % (sA, sA))
        a.e("s_bfe_u32 s%d, s%d, 0x10001" % (sB, sW))
        a.e("s_lshl1_add_u32 s%d, s%d, s%d" % (sB, sM, sB))
        a.e("s_add_u32 s%d, s%d, s%d" % (sA, sA, sB))
        a.e("s_lshl_b32 s%d, s%d, 7" % (sA, sA))
        a.e("s_bitcmp1_b32 s%d, 0" % sW)
        a.e("s_cselect_b64 %s, %s, %s" % (sp(SWKV), sp(SWU), sp(SWG)))
        a.e("s_add_u32 s%d, s%d, s%d" % (SWKV, SWKV, sA))
        a.e("s_addc_u32 s%d, s%d, 0" % (SWKV + 1, SWKV + 1))
        for i in range(Opt.stch):
            a.e("s_load_dwordx2 %s, %s, 0x%x" % (sp(sTMPP), sp(SWKV), 128 * 3584 + i * 8 * 3584 + 60))
    def wsrd(a):
        srd_words(a, [SWG])
        a.e("s_mov_b64 %s, %s" % (sp(SWU + 2), sp(SWG + 2)))

    if Opt.hrot:
        ORDER = [("q", 0)] + [(t_, 2 * h_ + j) for h_ in range(2) for t_, j in (("x", 0), ("x", 1), ("g", 0), ("u", 0), ("g", 1), ("u", 1))]
    else:
        ORDER = [("q", 0)] + [("x", j) for j in range(4)] + [(t_, j) for j in range(4) for t_ in "gu"]
    def block(items):
        out = []; lastc = None; lastw = None
        for c, kind, j in items:
            s = c % 3; pre = []
            if c != lastc:
                if c: pre.append("s_bfe_u32 s%d, s%d, 0x%x" % (sCH, sXP, 0x30000 + 4 * c))
                lastc = c; lastw = None
            fam = "w" if kind in "gu" else kind
            rot = Opt.hrot and fam != "q"
            if lastw is None or lastw[0] != fam or (rot and lastw[1] >> 1 != j >> 1):
                pre.append({"q": "s_lshl_b32 s%d, s%d, 16" % (sOFFW, sCH), "x": "s_lshl_b32 s%d, s%d, 7" % (sOFFW, sCH),
                            "w": "s_mul_i32 s%d, s%d, %d" % (sOFFW, sCH, 64 * 3584)}[fam])
                if rot: pre.append("s_%s_u32 s%d, s%d, s%d" % ("sub" if j >> 1 else "add", sOFFW, sOFFW, sRX if fam == "x" else sRW))
                lastw = (fam, 0)
            if lastw[1] != j:
                pre.append("s_add_u32 s%d, s%d, 0x%x" % (sOFFW, sOFFW, (j - lastw[1]) * (0x8000 if fam == "x" else 16 * 3584)))
                lastw = (fam, j)
            m0c, vo, rs = {"q": (L_WQ + s * 4096, vDQ, SWQ), "x": (L_X + s * 16384 + j * 4096, vDX, SX),
                           "g": (L_G + s * 16384 + j * 4096, vDG, SWG), "u": (L_U + s * 16384 + j * 4096, vDG, SWU)}[kind]
            nt = " nt" if Opt.ntx & (1 if rs == SX else 2) else ""
            out.append(("s_add_u32 m0, s%d, 0x%x\n%s\nbuffer_load_dwordx4 %s, %s, s%d offen%s lds"
                        % ((sM0B + (j >> 1)) if rot else sWH, m0c, "\n".join(pre) or "s_nop 0", v(vo), srd(rs), sOFFW, nt), "c%d" % c))
        return out
    def part(c, role): return [(c, k_, j) for k_, j in ORDER if (k_ in "gu") == (role == "A")]

    def rdsetup(a):
        setup_rd(a)
        a.e("v_lshl_add_u32 %s, v3, 3, v2" % v(vWA))
        a.e("v_lshlrev_b32 %s, 8, %s" % (v(vWA), v(vWA)))
        a.e("v_lshl_add_u32 %s, v4, 3, %s" % (v(vWA), v(vWA)))
        a.e("v_and_b32 v5, 1, v3")
        a.e("v_lshl_add_u32 v2, v5, 2, v2")
        a.e("s_lshl_b32 s%d, s%d, 2" % (sA, sHI))
        a.e("s_and_b32 s%d, s%d, 1" % (sB, sLO))
        a.e("s_lshl_b32 s%d, s%d, 1" % (sB, sB))
        a.e("s_add_u32 s%d, s%d, s%d" % (sA, sA, sB))
        a.e("v_xor_b32 v2, s%d, v2" % sA)
        a.e("v_lshl_add_u32 %s, v2, 5, %s" % (v(vWA), v(vWA)))
        a.e("v_xor_b32 %s, 32, %s" % (v(vWA + 1), v(vWA)))
        a.e("v_add_u32 %s, 0x%x, %s" % (v(vWA + 2), L_U - L_G, v(vWA)))
        a.e("v_add_u32 %s, 0x%x, %s" % (v(vWA + 3), L_U - L_G, v(vWA + 1)))
        a.e("s_lshl_b32 s%d, s%d, 12" % (sA, sLO))
        a.e("s_add_u32 s%d, s%d, 0x%x" % (sA, sA, L_X))
        a.e("v_add_u32 %s, s%d, %s" % (v(vXA), sA, v(vXA)))
        a.e("v_xor_b32 %s, 0x1000, %s" % (v(vXA + 1), v(vXA)))
        a.e("v_xor_b32 %s, 64, %s" % (v(vXA + 2), v(vXA)))
        a.e("v_xor_b32 %s, 64, %s" % (v(vXA + 3), v(vXA + 1)))
        a.e("v_add_u32 %s, 0x%x, %s" % (v(vQA), L_WQ, v(vQA)))

    a.e("s_cmp_ge_u32 s%d, 4" % sW)
    a.e("s_cbranch_scc1 L_setB")
    late = collect(setup_oclr) + collect(setup_attn)
    words = collect(lambda t: srd_words(t, [SWS, SKV, SDBG, SWD, SWO, SOUT]))
    late = [x for x in late if x not in words]
    oclr = [x for x in late if x[1] == "oclr"]
    if Opt.olate: late = [x for x in late if x[1] != "oclr"]
    else: oclr = []
    words += [("v_mov_b32 %s, 0" % v(r_), None) for r_ in (vGA, vWDV, vFLA, vHA, vOUTA)]
    st = collect(rdsetup) + words + late[:Opt.fillpre]
    fills = {"A": late[Opt.fillpre:], "B": late[Opt.fillpre:]}
    vms = {}
    wsrd(a); wvoff(a)
    a.e("s_waitcnt lgkmcnt(0)")
    a.stamp(2)
    if Opt.spos == 0: stouch(a)
    put(a, block(part(0, "A")))
    a.e("s_branch L_setA")
    vms["A"] = a.vm; a.vm = []
    a.lab("L_setB")
    srd_words(a, [SX]); xvoff(a, vTID)
    a.e("s_waitcnt lgkmcnt(0)")
    a.stamp(2)
    if Opt.spos == 0: stouch(a)
    put(a, block(part(0, "B")[1:]))
    srd_words(a, [SWQ]); qvoff(a)
    put(a, block(part(0, "B")[:1]))
    vms["B"] = a.vm
    for role in "BA":
        a.vm = vms[role]
        if role == "A": a.lab("L_setA")
        if Opt.spos == 1: stouch(a)
        table(a)
        setup_ids(a)
        if role == "A": srd_words(a, [SX, SWQ])
        else: wsrd(a)
        def touches():
            tm = sum(0xff << (8 * i) for i in range(4) if Opt.tch >> i & 1)
            setex = "s_bitcmp1_b32 s%d, 3\ns_cselect_b32 exec_lo, 0, 0x%x\ns_cselect_b32 exec_hi, 0x%x, 0" % (sG, tm, tm) if Opt.ghx \
                    else "s_mov_b32 exec_lo, 0x%x\ns_mov_b32 exec_hi, 0" % tm
            if Opt.tlb & 2 and role == "B":
                a.e("s_and_b32 s%d, s%d, 7" % (sA, sG))
                a.e("v_lshl_add_u32 v2, v0, 3, s%d" % sA)
                a.e("v_mul_u32_u24 v3, 3584, v2")
                a.e("s_and_b32 s%d, s%d, 1" % (sB, sW))
                a.e("s_lshl1_add_u32 s%d, s%d, s%d" % (sA, sM, sB))
                a.e("s_lshl_b32 s%d, s%d, 7" % (sA, sA))
                a.e(setex)
                a.e("s_cmp_ge_u32 s%d, 6" % sW)
                a.e("s_cbranch_scc1 L_tlbu")
                a.e("buffer_load_dword %s, v3, %s, s%d offen" % (v(vPOLL), srd(SWG), sA))
                a.e("s_branch L_tlbe")
                a.lab("L_tlbu")
                a.e("buffer_load_dword %s, v3, %s, s%d offen" % (v(vPOLL), srd(SWU), sA))
                a.lab("L_tlbe")
                a.e("s_mov_b64 exec, -1")
                a.vm.append("tlb")
            if Opt.tlb & 12 and role == "A":
                a.e("s_cmp_lg_u32 s%d, 0" % sW)
                a.e("s_cbranch_scc1 L_tlbx")
                a.e("s_and_b32 s%d, s%d, 7" % (sA, sG))
                a.e("v_lshl_add_u32 v2, v0, 3, s%d" % sA)
                a.e("v_lshlrev_b32 v3, 10, v2")
                a.e("s_lshl_b32 s%d, s%d, 6" % (sA, sHP))
                a.e(setex if Opt.tlb & 4 else "s_mov_b64 exec, 1")
                a.e("buffer_load_dword %s, v3, %s, s%d offen" % (v(vPOLL), srd(SWQ), sA))
                a.e("s_branch L_tlby")
                a.lab("L_tlbx")
                a.e("s_and_b32 s%d, s%d, 3" % (sA, sM))
                a.e("s_lshl2_add_u32 s%d, s%d, s%d" % (sA, sG, sA))
                a.e("s_lshl_b32 s%d, s%d, 15" % (sA, sA))
                a.e("v_lshl_add_u32 v3, v0, 10, s%d" % sA)
                a.e("s_lshr_b32 s%d, s%d, 3" % (sA, sG))
                a.e("s_lshl2_add_u32 s%d, s%d, s%d" % (sA, sA, sW) if Opt.ghx else "s_mov_b32 s%d, s%d" % (sA, sW))
                a.e("s_lshl_b32 s%d, s%d, 7" % (sA, sA))
                a.e("s_bitcmp1_b32 %d, s%d" % (Opt.tch if Opt.tlb & 8 else 0, sW))
                a.e("s_cselect_b32 exec_lo, -1, 1")
                a.e("s_mov_b32 exec_hi, 0")
                a.e("buffer_load_dword %s, v3, %s, s%d offen" % (v(vPOLL), srd(SX), sA))
                a.lab("L_tlby")
                a.e("s_mov_b64 exec, -1")
                a.vm.append("tlb")
        if Opt.tpos == 0: touches()
        if Opt.startbar: a.e("s_barrier")
        npre = min(Opt.npre, 8) if role == "A" else 5
        pn = block(part(1, role)[:npre])
        rest = st + (collect(qvoff) + collect(lambda t: xvoff(t, vTID)) if role == "A" else collect(wvoff))
        gap = len(rest) // (npre + Opt.pregap) + 1
        if Opt.tpos == 2:
            put(a, pn); touches(); npre = 0
        if Opt.tpos == 3 and role == "B":
            put(a, pn); touches(); npre = 0
        for i in range(npre):
            put(a, pn[:1]); pn = pn[1:]
            put(a, rest[:gap]); rest = rest[gap:]
        put(a, rest)
        if Opt.tpos == 1 or (Opt.tpos == 3 and role == "A"): touches()
        a.e("s_mov_b64 vcc, %d" % (-1 if role == "A" else 0))
        if role == "A":
            a.waitvm("c0", lgkm=True)
        else:
            a.e("s_setprio 1")
            a.waitvm("c0", lgkm=True)
            a.e("s_branch L_k0")
        vms[role] = a.vm
    stream = part(1, "A")[min(Opt.npre, 8):] + [(c, k_, j) for c in range(2, 8) for k_, j in ORDER]
    qa = [int(x, 16) for x in Opt.qa]; qb = [int(x, 16) for x in Opt.qb]
    def take(n, cmax):
        m = 0
        while m < n and m < len(stream) and stream[m][0] <= cmax: m += 1
        r_ = stream[:m]; del stream[:m]
        return block(r_)
    a.lab("L_k0")
    a.vm = vms["A"]
    ool = Asm()
    def dmablock(name, role, items, wait=None):
        a.e("s_cbranch_vcc%s L_%s" % ("nz" if role == "A" else "z", name))
        if wait: a.waitvm(wait, lgkm=True)
        a.lab("L_%s_r" % name)
        ool.lab("L_%s" % name)
        ool.vm = a.vm if role == "A" else vms["B"]
        for it_ in items:
            put(ool, [it_])
            put(ool, fills[role][:Opt.fillper]); fills[role] = fills[role][Opt.fillper:]
        if name in ("d7", "e7"): put(ool, fills[role]); fills[role] = []
        if wait: ool.waitvm(wait, lgkm=True)
        if role == "B": vms["B"] = ool.vm
        ool.e("s_branch L_%s_r" % name)
    a.ool = ool.l

    def fr(k):
        b = vF1 + 36 * (k % 2)
        return dict(x=b, w=b + 16, q=b + 32)
    def reads(k):
        c, s = divmod(k, 2); f = fr(k); sl = c % 3
        wo = sl * 16384 + s * 8192
        W = lambda i: [rdtr(f['w'] + 4 * i, vWA + i, wo), rdtr(f['w'] + 4 * i + 2, vWA + i, wo + 1024)]
        X = [rd128(f['x'] + 4 * b, vXA + 2 * s + (b >> 1), sl * 16384 + (b & 1) * 2048) for b in range(4)]
        return W(0) + X + W(2) + W(1) + W(3) + [rdtr(f['q'], vQA, sl * 4096 + s * 2048), rdtr(f['q'] + 2, vQA, sl * 4096 + s * 2048 + 256)]
    a.e("s_barrier")
    a.stamp(3)
    if Opt.kdiag or Opt.probe >= 18:
        kstamp(a, 2)
        a.e("s_waitcnt lgkmcnt(0)")
    for r in reads(0): a.e(r)
    if qa[0]: dmablock("d2", "A", take(qa[0], 2))
    for k in range(16):
        c, s = divmod(k, 2); f = fr(k)
        z = lambda x: None if k == 0 else x
        mf = []
        for n_, i in enumerate((0, 2, 1, 3)):
            for b in (range(4) if n_ % 2 == 0 else range(3, -1, -1)):
                d = vACC + 16 * b + 4 * i
                mf.append(mfma16(d, f['w'] + 4 * i, f['x'] + 4 * b, z(d)))
        for b in range(2): mf.append(mfma16(vAQ + 4 * b, f['q'], f['x'] + 4 * b, z(vAQ + 4 * b)))
        rds = reads(k + 1) if k < 15 else []
        if s == 0:
            a.e("s_waitcnt lgkmcnt(6)")
            for i, m in enumerate(mf):
                if i == 8: a.e("s_waitcnt lgkmcnt(8)")
                a.e(m)
                if i < len(rds): a.e(rds[i])
            continue
        a.e("s_waitcnt lgkmcnt(8)")
        for m in mf[:4]: a.e(m)
        if c <= 5:
            dmablock("e%d" % (c + 2), "B", take(qb[c], c + 2), "c%d" % (c + 1))
            assert not any(x[0] <= c + 1 for x in stream)
        if c == 7:
            a.e("s_waitcnt lgkmcnt(0)")
        elif c == 6:
            a.e("s_waitcnt lgkmcnt(0)")
            a.e("s_cbranch_vccz L_st7")
            a.e("s_setprio 1")
            a.e("s_waitcnt vmcnt(0)")
            a.e("s_barrier")
            a.lab("L_st7")
        else:
            a.e("s_barrier")
        if c < 7 and ((Opt.kdiag == 1 and Opt.diag) or Opt.probe == 21 + c):
            kstamp(a, 3 + c)
            a.e("s_waitcnt lgkmcnt(0)")
        if c + 3 < 8:
            items = take(qa[c + 1], c + 3)
            dmablock("d%d" % (c + 3), "A", items)
        for i, m in enumerate(mf[4:]):
            a.e(m)
            if i < len(rds): a.e(rds[i])
        if k == 11: assert not stream and not fills["A"] and not fills["B"]
        if k == 11:
            a.e("s_cbranch_vccnz L_st6")
            a.e("s_setprio 0")
            spin_counter(a, "kvf", False, 4)
            a.wait0()
            a.e("s_barrier")
            put(a, kv_first_loads(a, True) + oclr)
            a.lab("L_st6")
    a.kvA = (kv_first_loads(a) + oclr)[2:]
    a.stamp(4)

def phase1_L(a):
    a.lab("L_light")
    a.vm = []
    a.e("s_waitcnt lgkmcnt(0)")
    ptr_loads(a, ((SWKV, 16), (SWV, 24), (SGATE, 72), (SWO, 32)))
    srd_words(a, [SWKV, SWV, SGATE, SX])
    xvoff(a, 0)
    a.e("v_and_b32 v2, 63, v0")
    a.e("v_lshlrev_b32 %s, 4, v2" % v(vL16))
    a.e("s_sub_u32 s%d, s%d, 14" % (sCNT, sM))
    a.e("s_lshl_b32 s%d, s%d, 16" % (sOLD, sCNT))
    a.e("s_lshl_b32 s%d, s%d, 13" % (sHST, sCNT))
    a.e("s_add_u32 s%d, s%d, s%d" % (sWH, sHST, sWK))
    a.e("s_xor_b32 s%d, s%d, 0x2000" % (sHST, sHST))
    a.e("s_add_u32 s%d, s%d, 0x2000" % (sA, sWK))
    a.e("s_waitcnt lgkmcnt(0)")
    a.stamp(2)
    def xdma(c, base, so):
        a.vmop("s_add_u32 m0, s%d, 0x%x\ns_nop 0\nbuffer_load_dwordx4 %s, %s, s%d offen offset:%d lds"
               % (base, LL_X + c * 16384 - c * 128, v(vDX), srd(SX), so, c * 128), "c%d" % c)
    def wdma(u):
        for t, rs in enumerate((SWKV, SWV)):
            a.vmop("s_add_u32 m0, s%d, 0x%x\ns_nop 0\nbuffer_load_dwordx4 %s, %s, s%d offen lds"
                   % (sWK, LL_W + t * 16384 + u * 8192, v(vL16), srd(rs), sA if u else sWK), "w")
    wdma(0)
    a.vmop("s_mov_b32 m0, s%d\ns_nop 0\nbuffer_load_dwordx4 %s, %s, 0 offen lds" % (sHST, v(vL16), srd(SGATE)), "w")
    for c in range(8):
        if c == 4: wdma(1)
        xdma(c, sWH, sOLD)
        if c in (1, 3, 5): a.e("s_barrier")
    setup_ids(a)
    srd_words(a, [SWQ])
    setup_rd(a)
    a.e("v_lshrrev_b32 v3, 5, v0")
    a.e("v_bfrev_b32 v5, v4")
    a.e("v_lshrrev_b32 v5, 30, v5")
    a.e("s_cmp_ge_u32 s%d, 2" % sLO)
    a.e("s_cselect_b64 vcc, -1, 0")
    a.e("v_cndmask_b32 v4, v5, v4, vcc")
    a.e("v_lshl_add_u32 %s, v3, 3, v2" % v(vWA))
    a.e("v_lshlrev_b32 %s, 5, %s" % (v(vWA), v(vWA)))
    a.e("v_lshl_add_u32 %s, v4, 3, %s" % (v(vWA), v(vWA)))
    a.e("s_lshr_b32 s%d, s%d, 1" % (sA, sLO))
    a.e("s_lshl_b32 s%d, s%d, 14" % (sA, sA))
    a.e("s_add_u32 s%d, s%d, 0x%x" % (sA, sA, LL_W))
    a.e("v_add_u32 %s, s%d, %s" % (v(vWA), sA, v(vWA)))
    a.e("v_lshl_add_u32 %s, v3, 4, s%d" % (v(vWA + 1), sHST))
    a.e("s_and_b32 s%d, s%d, 1" % (sA, sLO))
    a.e("s_lshl_b32 s%d, s%d, 1" % (sB, sCNT))
    a.e("s_add_u32 s%d, s%d, s%d" % (sCNT, sA, sB))
    a.e("s_lshl_b32 s%d, s%d, 12" % (sA, sCNT))
    a.e("v_and_b32 v2, 31, v0")
    a.e("v_lshrrev_b32 v4, 1, v0")
    a.e("v_lshlrev_b32 v5, 1, v0")
    a.e("v_bfi_b32 v4, 4, v4, v5")
    a.e("v_bfi_b32 v4, 12, v4, v2")
    a.e("v_cndmask_b32 v2, v2, v4, vcc")
    a.e("v_bfe_u32 v4, v2, 1, 3")
    a.e("v_xor_b32 v4, v4, v3")
    a.e("v_lshlrev_b32 v4, 4, v4")
    a.e("v_lshl_add_u32 v4, v2, 7, v4")
    a.e("v_add_u32 %s, s%d, v4" % (v(vLX), sA))
    for s in range(1, 4): a.e("v_xor_b32 %s, %d, %s" % (v(vLX + s), 32 * s, v(vLX)))
    for s in range(4): a.e("v_add_u32 %s, 0x10000, %s" % (v(vLX + 4 + s), v(vLX + s)))
    a.e("s_waitcnt lgkmcnt(0)")
    setup_oclr(a)
    vm0 = list(a.vm)
    a.e("s_cmp_lg_u32 s%d, 0" % sHI)
    a.e("s_cbranch_scc1 L_lB")
    a.e("s_not_b64 %s, %s" % (sp(sTMPP), sp(sVM)))
    a.e("s_cmp_ge_u32 s%d, 2" % sLO)
    a.e("s_cbranch_scc1 L_lV")
    def chain(kind):
        a.vm = list(vm0)
        def fr(k):
            b = vFR + 8 * (k % 4)
            return b, b + 4
        def reads(k):
            c, s = divmod(k, 4); x, w = fr(k)
            r = [rd128(x, vLX + s + 4 * (c >> 2), (c & 3) * 16384), rdtr(w, vWA, k * 512), rdtr(w + 2, vWA, k * 512 + 128)]
            if kind == "K":
                r += ["s_mov_b64 exec, %s" % sp(sTMPP), rd128(w, vWA + 1, k * 32), "s_mov_b64 exec, -1"]
            return r
        for q in range(4):
            a.waitvm("c%d" % (2 * q + 1))
            a.e("s_barrier")
            nr = 4 if kind == "K" else 3
            for k in range(8 * q, 8 * q + 2):
                for r in reads(k): a.e(r)
            for k in range(8 * q, 8 * q + 8):
                if k + 2 < 8 * q + 8:
                    for r in reads(k + 2): a.e(r)
                left = min(2, 8 * q + 7 - k)
                a.e("s_waitcnt lgkmcnt(%d)" % (left * nr))
                x, w = fr(k)
                cc = None if k == 0 else vACC
                a.e(mfma(vACC, w, x, cc) if kind == "K" else mfma(vACC, x, w, cc))
        a.e("s_lshl_b32 s%d, s%d, 2" % (sA, sG))
        a.e("s_add_u32 s%d, s%d, s%d" % (sA, sA, sCNT))
        a.e("s_nop 12")
        if kind == "K":
            a.e("s_mov_b32 s%d, 0x%x" % (sC, f2u(0.25 * math.log2(math.e))))
            for i in range(8): a.e("v_mul_f32 %s, s%d, %s" % (v(vACC + i), sC, v(vACC + i)))
            a.e("v_mul_f32 %s, 0x%x, %s" % (v(vACC + 8), f2u(-math.log2(math.e)), v(vACC + 8)))
            a.e("v_exp_f32 %s, %s" % (v(vACC + 8), v(vACC + 8)))
            for i in range(4): a.e("v_cvt_pk_bf16_f32 %s, %s, %s" % (v(vFR + i), v(vACC + 2 * i), v(vACC + 2 * i + 1)))
            a.e("v_add_f32 %s, 1.0, %s" % (v(vACC + 8), v(vACC + 8)))
            a.e("v_rcp_f32 %s, %s" % (v(vACC + 8), v(vACC + 8)))
            a.e("s_add_u32 s%d, s%d, 63" % (sB, sA))
            a.e("s_and_b32 s%d, s%d, 63" % (sB, sB))
            a.e("s_lshl_b32 s%d, s%d, 11" % (sB, sB))
            a.e("buffer_store_dwordx4 %s, %s, %s, s%d offen sc1" % (v(vFR, 4), v(vL16), srd(SKV), sB))
            a.e("s_lshl_b32 s%d, s%d, 7" % (sB, sA))
            a.e("s_add_u32 s%d, s%d, 0x%x" % (sB, sB, WS_G))
            a.e("s_mov_b32 exec_hi, 0")
            a.e("buffer_store_dword %s, %s, %s, s%d offen sc1" % (v(vACC + 8), v(vGA), srd(SWS), sB))
            a.e("s_mov_b64 exec, -1")
        else:
            for i in range(8): a.e("v_cvt_pk_bf16_f32 %s, %s, %s" % (v(vFR + i), v(vACC + 2 * i), v(vACC + 2 * i + 1)))
            a.e("v_bfe_u32 v2, v0, 4, 1")
            a.e("v_add_u32 v2, s%d, v2" % sA)
            a.e("v_and_b32 v2, 63, v2")
            a.e("v_lshl_add_u32 v2, v2, 11, %s" % v(vL16))
            for i in range(4): a.e("v_cndmask_b32 %s, %s, %s, %s" % (v(vFR + i), v(vFR + 4 + i), v(vFR + i), sp(sVM)))
            a.e("buffer_store_dwordx4 %s, v2, %s, 0 offen offset:1024 sc1" % (v(vFR, 4), srd(SKV)))
        a.e("s_branch L_lJ")
    chain("K")
    a.lab("L_lV")
    chain("V")
    a.lab("L_lB")
    a.vm = list(vm0)
    a.e("s_cmp_lg_u32 s%d, 14" % sM)
    a.e("s_cbranch_scc1 L_nozf")
    a.e("s_cmp_lg_u32 s%d, 4" % sW)
    a.e("s_cbranch_scc1 L_nozf")
    a.e("v_lshlrev_b32 v2, 7, v0")
    a.e("s_lshl_b32 s%d, s%d, 11" % (sA, sG))
    a.e("s_add_u32 s%d, s%d, 0x%x" % (sA, sA, WS_HFLAG))
    a.e("s_mov_b64 exec, 0xffff")
    a.e("buffer_store_dword %s, v2, %s, s%d offen sc1" % (v(vZERO), srd(SWS), sA))
    a.e("s_mov_b64 exec, -1")
    a.lab("L_nozf")
    for q in range(4):
        a.waitvm("c%d" % (2 * q + 1))
        a.e("s_barrier")
    a.lab("L_lJ")
    a.e("v_lshrrev_b32 v3, 2, v0")
    a.e("v_lshlrev_b32 v3, 10, v3")
    a.e("v_lshrrev_b32 v4, 5, v0")
    a.e("v_lshlrev_b32 v4, 1, v4")
    a.e("v_xor_b32 v4, v4, v0")
    a.e("v_and_b32 v4, 3, v4")
    a.e("v_lshl_add_u32 v3, v4, 4, v3")
    a.e("s_lshl_b32 s%d, s%d, 14" % (sA, sW))
    a.e("s_lshl_b32 s%d, s%d, 6" % (sB, sHP))
    a.e("s_add_u32 s%d, s%d, s%d" % (sA, sA, sB))
    a.e("v_add_u32 %s, s%d, v3" % (v(vDQ), sA))
    a.e("s_xor_b32 s%d, s%d, 0x2000" % (sWH, sWH))
    a.e("s_xor_b32 s%d, s%d, 0x10000" % (sOLD, sOLD))
    a.wait0(lgkm=True)
    a.e("s_barrier")
    a.e("s_cmp_lg_u32 s%d, 0" % sW)
    a.e("s_cbranch_scc1 L_noat")
    a.e("s_mov_b64 exec, 1")
    a.e("buffer_atomic_add %s, off, %s, 0 sc1" % (v(vONE), srd(SDBG)))
    a.e("s_mov_b64 exec, -1")
    a.lab("L_noat")
    a.stamp(3)
    for c in range(8): xdma(c, sWH, sOLD)
    for p in range(4):
        a.e("s_add_u32 m0, s%d, 0x%x" % (sWK, LL_WQ + p * 8192))
        a.e("s_mov_b32 s%d, 0x%x" % (sA, p * 128 * 1024))
        a.e("buffer_load_dwordx4 %s, %s, s%d offen lds" % (v(vDQ), srd(SWQ), sA))
    setup_attn(a)
    if Opt.touch & 2:
        a.e("s_lshl_b32 s%d, s%d, 1" % (sA, sG))
        a.e("s_add_u32 s%d, s%d, s%d" % (sA, sA, sM))
        a.e("s_sub_u32 s%d, s%d, 14" % (sA, sA))
        a.e("s_lshl_b32 s%d, s%d, 3" % (sA, sA))
        a.e("s_add_u32 s%d, s%d, s%d" % (sA, sA, sW))
        a.e("v_lshlrev_b32 v2, 15, v0")
        a.e("s_lshl_b32 s%d, s%d, 7" % (sA, sA))
        a.e("buffer_load_dword %s, v2, %s, s%d offen" % (v(vPOLL), srd(SWO), sA))
        a.e("buffer_load_dword %s, v2, %s, s%d offen" % (v(vPOLL), srd(SWD), sA))
    a.e("s_lshl_b32 s%d, s%d, 12" % (sA, sLO))
    a.e("v_add_u32 %s, s%d, %s" % (v(vXA), sA, v(vXA)))
    a.e("v_xor_b32 %s, 64, %s" % (v(vXA + 1), v(vXA)))
    a.e("v_add_u32 %s, 0x10000, %s" % (v(vXA + 2), v(vXA)))
    a.e("v_add_u32 %s, 0x10000, %s" % (v(vXA + 3), v(vXA + 1)))
    a.e("v_add_u32 %s, 0x%x, %s" % (v(vQA), LL_WQ, v(vQA)))
    a.e("s_waitcnt vmcnt(%d)" % (2 if Opt.touch & 2 else 0))
    a.e("s_barrier")
    def fr(k): return vFR + 12 * (k % 3)
    def reads(k):
        c, s = divmod(k, 2); f = fr(k)
        return [rd128(f + 4 * b, vXA + s + 2 * (c >> 2), (c & 3) * 16384 + b * 2048) for b in range(2)] + \
               [rdtr(f + 8, vQA, k * 2048), rdtr(f + 10, vQA, k * 2048 + 256)]
    for k in range(2):
        for r in reads(k): a.e(r)
    for k in range(16):
        a.e("s_waitcnt lgkmcnt(%d)" % (4 * min(1, 15 - k)))
        for b in range(2): a.e(mfma16(vAQ + 4 * b, fr(k) + 8, fr(k) + 4 * b, None if k == 0 else vAQ + 4 * b))
        if k + 2 < 16:
            for r in reads(k + 2): a.e(r)
    spin_counter(a, "kvl", False)
    a.e("s_barrier")
    for s, t in kv_first_loads(a): a.e(s)
    a.wait0()
    a.stamp(4)
    a.e("s_branch L_join")

def gelu_tile(a, ti, scalar=False):
    acc = vACC + 16 * ti
    t = vFR
    o = vFR + 8 + 4 * ti
    pk = lambda r: v(r, 2)
    if scalar:
        for i in range(8): a.e("v_mul_f32 %s, %s, %s" % (v(t + i), v(acc + i), v(acc + i)))
        for i in range(8): a.e("v_fma_f32 %s, %s, %s, %s" % (v(t + i), v(t + i), v(vC0 + 1), v(vC0)))
        for i in range(8): a.e("v_mul_f32 %s, %s, %s" % (v(t + i), v(t + i), v(acc + i)))
        for i in range(8): a.e("v_exp_f32 %s, %s" % (v(t + i), v(t + i)))
        for i in range(8): a.e("v_add_f32 %s, 1.0, %s" % (v(t + i), v(t + i)))
        for i in range(8): a.e("v_rcp_f32 %s, %s" % (v(t + i), v(t + i)))
        for i in range(8): a.e("v_mul_f32 %s, %s, %s" % (v(acc + i), v(acc + i), v(acc + 8 + i)))
        for i in range(8): a.e("v_mul_f32 %s, %s, %s" % (v(acc + i), v(acc + i), v(t + i)))
    R4, R8 = (range(0), range(0)) if scalar else (range(4), range(8))
    for i in R4: a.e("v_pk_mul_f32 %s, %s, %s" % (pk(t + 2 * i), pk(acc + 2 * i), pk(acc + 2 * i)))
    for i in R4: a.e("v_pk_fma_f32 %s, %s, %s, %s op_sel:[0,1,0] op_sel_hi:[1,1,0]" % (pk(t + 2 * i), pk(t + 2 * i), pk(vC0), pk(vC0)))
    for i in R4: a.e("v_pk_mul_f32 %s, %s, %s" % (pk(t + 2 * i), pk(t + 2 * i), pk(acc + 2 * i)))
    for i in R8: a.e("v_exp_f32 %s, %s" % (v(t + i), v(t + i)))
    for i in R4: a.e("v_pk_add_f32 %s, %s, 1.0 op_sel_hi:[1,0]" % (pk(t + 2 * i), pk(t + 2 * i)))
    for i in R8: a.e("v_rcp_f32 %s, %s" % (v(t + i), v(t + i)))
    for i in R4: a.e("v_pk_mul_f32 %s, %s, %s" % (pk(acc + 2 * i), pk(acc + 2 * i), pk(acc + 8 + 2 * i)))
    for i in R4: a.e("v_pk_mul_f32 %s, %s, %s" % (pk(acc + 2 * i), pk(acc + 2 * i), pk(t + 2 * i)))
    for i in range(4): a.e("v_cvt_pk_bf16_f32 %s, %s, %s" % (v(o + i), v(acc + 2 * i), v(acc + 2 * i + 1)))
    a.vmop("buffer_store_dwordx4 %s, %s, %s, s%d offen offset:%d sc1" % (v(o, 4), v(vHA), srd(SWS), sHST2 if ti >> 1 else sHST, (ti & 1) * 256), "hst")

def Yseg(hset, toggle=False):
    out = []
    for t in range(2):
        extra = False and hset < 2 and t == Opt.xtile
        pos = [int(x, 17) for x in (Opt.ypos0 if hset is None else Opt.ypos2 if extra else Opt.ypos1)]
        S, Sn = vS + 16 * t, vS + 16 * (1 - t)
        K, V0, V1 = vKF + 4 * t, vV + 8 * t, vV + 8 * t + 4
        for e in range(1, 17):
            out.append("v_exp_f32 %s, %s" % (v(S + e - 1), v(S + e - 1)))
            if e == pos[0]: out.append(smfmac(vO, V1, Sn + 8))
            if e == pos[1]: out.append(mfma(Sn, K, vQ, None))
            if e == pos[2]: out.append(smfmac(vO, V0, S))
            if hset is not None:
                if e == 13 and t == 1 and toggle:
                    out.append("v_xor_b32 %s, 0x4000, %s" % (v(vKVB), v(vKVB)))
                if e == pos[3]: out.append(mfma(vD + 16 * t, vWF + 4 * t, vH + 4 * hset, vD + 16 * t))
                if extra and e == pos[4]: out.append(mfma(vD + 16 * hset, vWX + 4 * hset, vH + 16, vD + 16 * hset))
    return out

def kv_reads(off, vKVA=vKVA):
    r = [rd128(vKF, vKVA, off), rd128(vKF + 4, vKVA, off + 2048), "s_mov_b64 exec, %s" % sp(sVM)]
    for t in range(2):
        r += [rd128(vV + 8 * t, vKVA, off + 2048 * t + 1024), rd128(vV + 8 * t + 4, vKVA, off + 2048 * t + 1280)]
    r.append("s_mov_b64 exec, -1")
    return r
def wd_reads(dst, addr, off):
    r = []
    for c in range(2):
        r += [rdtr(dst + 4 * c, addr, off + 512 * c), rdtr(dst + 4 * c + 2, addr, off + 512 * c + 1024)]
    return r

def wdrow(sg): return (32 * (sg >> 1) + 8 * (sg & 1)) * 1024

def attention(a, role, pre0=None):
    A = role == "A"
    def kvdma(u):
        a.vmop("s_add_u32 m0, s%d, 0x%x\ns_add_u32 s%d, s%d, 0x%x\nbuffer_load_dwordx4 %s, %s, s%d offen sc1 lds"
               % (sWK, L_KV + (u % 4) * 8192, sA, sWK, u * 8192, v(vL16), srd(SKV), sA), "kv%d" % u)
    def wddma(sg):
        a.vmop("s_add_u32 m0, s%d, 0x%x\ns_add_u32 s%d, s%d, 0x%x\nbuffer_load_dwordx4 %s, %s, s%d offen lds"
               % (sWK, L_WD + (sg % 4 if sg < 23 or sg == 27 else sg - 19) * 8192, sA, sWDOFF, wdrow(sg), v(vWDV), srd(SWD), sA), "wd%d" % sg)
    def wodma(j):
        a.vmop("s_add_u32 m0, s%d, 0x%x\ns_add_u32 s%d, s%d, 0x%x\nbuffer_load_dwordx4 %s, %s, s%d offen lds"
               % (sWK, L_WO + j * 8192, sA, sB, j * 16384, v(vWDV), srd(SWO), sA), "wo")
    def hload(sg, dst):
        a.vmop("s_add_u32 s%d, s%d, 0x%x\nbuffer_load_dwordx4 %s, %s, %s, s%d offen sc1"
               % (sA, sHOFF, sg * 1024, v(dst, 4), v(vL16), srd(SWS), sA), "h%d" % sg)
    for n in range(12):
        if not A and n == 0: a.e("s_barrier")
        if n % 2 == 1: astamp(a, 2 + n // 2)
        tags = []
        if A and n % 2 == 1: tags.append("kv%d" % ((n + 1) // 2))
        if not A and n % 2 == 0: tags.append("kv%d" % ((n + 2) // 2))
        if n == (3 if A else 2): tags.append("hst")
        if n == 9: tags.append("wd27")
        if n == 11: tags.append("wd0")
        if n == 9 and A:
            a.e("s_cmp_lg_u32 s%d, 0" % sW)
            a.e("s_cbranch_scc1 L_hf_done")
            a.e("s_mov_b32 s%d, 0x4000" % sB)
            a.e("s_waitcnt vmcnt(0)")
            a.lab("L_hf_chk")
            a.e("v_cmp_ne_u32 vcc, 1, %s" % v(vPOLL))
            a.e("s_cbranch_vccz L_hf_done")
            a.e("s_sleep 2")
            a.e("buffer_load_dword %s, %s, %s, 0 offen sc1" % (v(vPOLL), v(vFLA), srd(SWS)))
            a.e("s_sub_u32 s%d, s%d, 1" % (sB, sB))
            a.e("s_cmp_lg_u32 s%d, 0" % sB)
            a.e("s_waitcnt vmcnt(0)")
            a.e("s_cbranch_scc1 L_hf_chk")
            a.lab("L_hf_done")
        a.waitvm(tags)
        if n == 5 and Opt.diag == 3 and A:
            a.e("v_mov_b32 v2, s%d" % sSTAMP)
            a.e("s_lshl_b32 s%d, s2, 3" % sA)
            a.e("s_add_u32 s%d, s%d, s%d" % (sA, sA, sW))
            a.e("s_lshl_b32 s%d, s%d, 7" % (sA, sA))
            a.e("s_add_u32 s%d, s%d, 0x%x" % (sA, sA, WS_STAMP))
            a.e("s_mov_b64 exec, 1")
            a.vmop("buffer_store_dword v2, off, %s, s%d offset:12 sc1" % (srd(SWS), sA), "st")
            a.e("s_mov_b64 exec, -1")
        if n == 3 and not A:
            a.e("s_cmp_ge_u32 s%d, 14" % sM)
            a.e("s_cbranch_scc1 L_nohf")
            a.e("s_cmp_lg_u32 s%d, 4" % sW)
            a.e("s_cbranch_scc1 L_nohf")
            a.e("s_lshl_b32 s%d, s%d, 4" % (sA, sG))
            a.e("s_add_u32 s%d, s%d, s%d" % (sA, sA, sM))
            a.e("s_lshl_b32 s%d, s%d, 7" % (sA, sA))
            a.e("s_add_u32 s%d, s%d, 0x%x" % (sA, sA, WS_HFLAG))
            a.e("s_mov_b64 exec, 1")
            a.e("buffer_store_dword %s, off, %s, s%d sc1" % (v(vONE), srd(SWS), sA))
            a.e("s_mov_b64 exec, -1")
            a.lab("L_nohf")
        for r in kv_reads((n % 8) * 4096): a.e(r)
        if n == 8 and A:
            a.e("s_cmp_lg_u32 s%d, 0" % sW)
            a.e("s_cbranch_scc1 L_hf_nol")
            a.e("buffer_load_dword %s, %s, %s, 0 offen sc1" % (v(vPOLL), v(vFLA), srd(SWS)))
            a.lab("L_hf_nol")
        if n == 0:
            kvdma(2); kvdma(3)
            a.e("s_mov_b32 s%d, s%d" % (sC, sKQ))
            a.e("s_mul_i32 s%d, s%d, %d" % (sWDOFF, sC, 448 * 1024))
            a.e("s_and_b32 s%d, s%d, 1" % (sB, sW))
            a.e("s_lshl_b32 s%d, s%d, 14" % (sA, sB))
            a.e("s_add_u32 s%d, s%d, s%d" % (sWDOFF, sWDOFF, sA))
            a.e("s_lshl_b32 s%d, s%d, 1" % (sA, sT))
            a.e("s_add_u32 s%d, s%d, s%d" % (sA, sA, sB))
            a.e("s_mul_i32 s%d, s%d, 112" % (sA, sA))
            a.e("s_mul_i32 s%d, s%d, 28" % (sB, sC))
            a.e("s_add_u32 s%d, s%d, s%d" % (sA, sA, sB))
            a.e("s_lshl_b32 s%d, s%d, 10" % (sA, sA))
            a.e("s_add_u32 s%d, s%d, 0x%x" % (sHOFF, sA, WS_HF))
        if (A and n % 2 == 1 and n >= 3): kvdma((n + 5) // 2)
        if (not A and n % 2 == 0 and n >= 2): kvdma((n + 6) // 2)
        if 1 <= n <= 4:
            a.e("s_lshl_b32 s%d, s%d, 17" % (sB, sKQ))
            a.e("s_and_b32 s%d, s%d, 1" % (sC, sW))
            a.e("s_lshl_b32 s%d, s%d, 13" % (sC, sC))
            a.e("s_add_u32 s%d, s%d, s%d" % (sB, sB, sC))
            for j in (2 * n - 2, 2 * n - 1): wodma(j)
        for sg in {5: (27, 23, 24), 6: (25, 26, 0), 7: (1, 2)}.get(n, ()): wddma(sg)
        if n == 10:
            for r in wd_reads(vWX, vWDA, 3 * 8192): a.e(r)
        hs = {10: (0, 1, 23, 24), 11: (2, 25, 26, 27)} if A else {9: (0, 1, 23), 10: (2, 24), 11: (25, 26, 27)}
        for sg in hs.get(n, ()): hload(sg, vH + 4 * sg if sg < 4 else vHX if sg == 27 else vH + 4 * (sg - 19))
        if n == 11:
            a.e("s_add_u32 s%d, s%d, 0x%x" % (sHOFF, sHOFF, 3 * 1024))
            a.e("s_add_u32 s%d, s%d, 0x%x" % (sWDOFF, sWDOFF, wdrow(3)))
            a.e("s_add_u32 s%d, s%d, 0x%x" % (sKVOFF, sWK, 9 * 8192))
            a.e("s_mov_b32 s%d, 5" % sCNT)
            a.e("s_add_u32 s%d, s%d, 0x1000" % (sOLD2, sOLD))
            a.e("s_mov_b32 s%d, 0x%x" % (sLO_, f2u(2.0 ** -16)))
            a.e("s_mov_b32 s%d, 0x%x" % (sRNG, f2u(2.0 ** 100) - f2u(2.0 ** -16)))
        if n == 0 and pre0:
            pre0()
            a.stamp(5)
        a.e("s_waitcnt lgkmcnt(0)")
        a.e("s_call_b64 %s, L_Y%s" % (sp(sRET), role))
        if n == 0:
            a.e("s_branch L_X1%s" % role)
            a.lab("L_Y%s" % role)
            if A: a.e("s_barrier")
            for x in Yseg(None): a.e(x)
            if not A: a.e("s_barrier")
            a.e("s_setpc_b64 %s" % sp(sRET))
            a.lab("L_X1%s" % role)
    vm = list(a.vm); need = [63] * 4
    for n in range(12, 32):
        p, it = n % 4, (n - 12) // 4
        tags = ["wd%d" % (n - 11), "h%d" % (n - 12)]
        if (p % 2 == 1) == A: tags.append("kv%d" % ((n + (1 if A else 2)) // 2))
        idx = [i for i, t in enumerate(vm) if t in tags]
        if idx: need[p] = min(need[p], len(vm) - 1 - max(idx))
        vm.append("wd%d" % (n - 9))
        vm.append("h%d" % (n - 9))
        if (p % 2 == 1) == A: vm.append("kv%d" % ((n + (5 if A else 6)) // 2))
    a.lab("L_loop%s" % role)
    for p in range(4):
        if p == 0 and Opt.diag and Opt.kdiag == 2:
            a.e("s_cmp_lg_u32 s%d, 4" % sCNT)
            a.e("s_cbranch_scc1 L_nst%s" % role)
            astamp(a, 8)
            a.lab("L_nst%s" % role)
        a.e("s_waitcnt vmcnt(%d)" % need[p])
        for r in kv_reads(p * 4096, vKVB): a.e(r)
        for r in wd_reads(vWF, vWDA, p * 8192): a.e(r)
        a.e("s_add_u32 m0, s%d, 0x%x" % (sWK, L_WD + ((p + 3) % 4) * 8192))
        a.e("s_and_b32 s%d, s%d, 0x7fff" % (sA, sKVOFF))
        a.e("buffer_load_dwordx4 %s, %s, s%d offen lds" % (v(vWDV), srd(SWD), sWDOFF))
        a.e("s_add_u32 s%d, s%d, 0x%x" % (sWDOFF, sWDOFF, 0x2000 if p & 1 else 0x6000))
        a.e("buffer_load_dwordx4 %s, %s, %s, s%d offen sc1" % (v(vH + 4 * ((p + 3) % 4), 4), v(vL16), srd(SWS), sHOFF))
        if (p % 2 == 1) == A:
            a.e("s_add_u32 m0, s%d, 0x%x" % (sA, L_KV))
        a.e("s_add_u32 s%d, s%d, 0x400" % (sHOFF, sHOFF))
        if (p % 2 == 1) == A:
            a.e("buffer_load_dwordx4 %s, %s, s%d offen sc1 lds" % (v(vL16), srd(SKV), sKVOFF))
            a.e("s_add_u32 s%d, s%d, 0x2000" % (sKVOFF, sKVOFF))
        if p == 3:
            a.e("s_sub_u32 s%d, s%d, 1" % (sCNT, sCNT))
            a.e("s_cmp_lg_u32 s%d, 0" % sCNT)
        a.e("s_waitcnt lgkmcnt(0)")
        if A: a.e("s_barrier")
        for x in Yseg(p, toggle=(p == 3)): a.e(x)
        if not A:
            if p == 3: a.e("s_cbranch_scc0 L_tail")
            a.e("s_barrier")
    a.e(("s_cbranch_scc1 L_loop%s" if A else "s_branch L_loop%s") % role)

def transition(a, role):
    A = role == "A"
    if A:
        a.vm = []
        a.lab("L_trA")
    else:
        a.lab("L_join")
        a.e("s_cmp_eq_u32 s%d, 0" % sHI)
        a.e("s_cbranch_scc1 L_trA")
        a.vmjoin = list(a.vm)
    def qfin():
        for i in range(4): a.e("v_cvt_pk_bf16_f32 %s, %s, %s" % (v(vQ + i), v(vAQ + 2 * i), v(vAQ + 2 * i + 1)))
        for i in range(8): a.e("v_mov_b32 %s, 0" % v(vS + 24 + i))
        a.e("v_permlane16_swap_b32 %s, %s" % (v(vQ), v(vQ + 2)))
        a.e("v_permlane16_swap_b32 %s, %s" % (v(vQ + 1), v(vQ + 3)))
    pre0 = None
    if A:
        a.e("s_setprio 1")
        a.e("s_cmp_ge_u32 s%d, 14" % sM)
        a.e("s_cbranch_scc1 L_nogA0")
        put(a, a.kvA[:1] + a.kvA[-1:])
        a.l.append(".p2align 3")
        for ti in range(Opt.gsc): gelu_tile(a, ti, True)
        a.lab("L_nogA0")
        qfin()
        a.waitvm(["k0", "kv0", "kv1"])
        a.e("s_setprio 0")
        a.e("s_barrier")
        a.e(mfma(vS, vK0, vQ, None))
        put(a, a.kvA[1:-1])
        def pre0():
            a.e("s_cmp_lt_u32 s%d, 14" % sM)
            a.e("s_cbranch_scc1 L_gA1")
            a.e("s_waitcnt vmcnt(0)")
            a.e("s_branch L_nogA1")
            a.l.append(".p2align 3")
            a.lab("L_gA1")
            for ti in range(Opt.gsc, 4): gelu_tile(a, ti)
            a.lab("L_nogA1")
            a.e("s_setprio 1")
    else:
        a.waitvm(["k0", "kv0", "kv1"])
        a.e("s_setprio 1")
        a.e("s_cmp_ge_u32 s%d, 14" % sM)
        a.l.append(".p2align 3")
        a.e("s_barrier")
        a.e("s_cbranch_scc1 L_nogB")
        for ti in range(4): gelu_tile(a, ti)
        a.lab("L_nogB")
        qfin()
        a.e("s_setprio 0")
        a.e("s_nop 0")
        a.e(mfma(vS, vK0, vQ, None))
        a.stamp(5)
    attention(a, role, pre0)
    if A: a.e("s_branch L_tail")

def tail(a):
    a.lab("L_tail")
    a.stamp(6)
    astamp(a, 9)
    if Opt.diag and Opt.kdiag == 2: a.e("s_waitcnt lgkmcnt(0)")
    tstamp(a, 2)
    a.e(smfmac(vO, vV1L, vS + 24))
    wf = [vFR, vFR + 8, vFR + 16]
    HORD = [0, 2, 4, 6, 1, 3, 5, 7] if Opt.hord else list(range(8))
    def oload(j):
        return "buffer_load_dwordx4 %s, %s, %s, s%d offen offset:%d %s" % (
            v(vS + 4 * j, 4), v(vL16), srd(SWS), sOLD if HORD[j] < 4 else sOLD2, (HORD[j] % 4) * 1024, Opt.old_pol)
    a.oload = oload
    a.e("s_cmp_eq_u32 s%d, 0" % sHI)
    a.e("s_cbranch_scc1 L_tl0")
    a.e("s_setprio 1")
    a.e("s_nop 8")
    a.l.append(".p2align 3")
    a.lab("L_tl1")
    t = vT0
    a.e("v_rcp_f32 %s, %s" % (v(t + 2), v(vO + 8)))
    a.e("s_nop 0")
    a.e("v_mul_f32_e64 %s, %s, %s" % (v(t + 2), v(t + 2), v(vGP)))
    for i in range(4): a.e("v_pk_mul_f32 %s, %s, %s op_sel_hi:[1,0]" % (v(vO + 2 * i, 2), v(vO + 2 * i, 2), v(t + 2, 2)))
    for i in range(4):
        a.e("v_pk_fma_f32 %s, %s, 0, %s op_sel_hi:[1,0,%d]" % (v(t, 2), v(vO + 2 * i, 2), v(t, 2) if i else v(vO + 8, 2), 1 if i else 0))
        a.e("v_cvt_pk_bf16_f32 %s, %s, %s" % (v(vP + i), v(vO + 2 * i), v(vO + 2 * i + 1)))
    a.e("v_fmac_f32 %s, 0, %s" % (v(t), v(t + 1)))
    a.e("v_subrev_u32 %s, s%d, %s" % (v(t), sLO_, v(t)))
    a.e("v_cmp_lt_u32 vcc, s%d, %s" % (sRNG, v(t)))
    a.e("s_branch L_fb" if Opt.force_fb else "s_cbranch_vccnz L_fb")
    a.lab("L_fbret")
    a.e("buffer_store_dwordx4 %s, %s, %s, s%d offen sc1" % (v(vP, 4), v(vL16), srd(SWS), sOST))
    tstamp(a, 3)
    aw = [vAW0, vXA, vXA + 1, vXA + 2]
    ar = [vAR0, vXA + 3]
    def addrs(a):
        a.e("v_add_u32 %s, 0x%x, %s" % (v(vQA), L_WO, v(vWDA)))
        a.e("v_sub_f32 %s, 1.0, %s" % (v(vGC), v(vGC)))
        for j in range(1, 4): a.e("v_xor_b32 %s, %d, %s" % (v(aw[j]), 32 * j, v(aw[0])))
        a.e("v_xor_b32 %s, 16, %s" % (v(ar[1]), v(ar[0])))
        a.e("s_mov_b32 s%d, 0x2000" % sB)
    ol = Asm(); a.ool2 = ol.l
    ol.lab("L_tl0")
    ol.e("s_setprio 0")
    for j in range(8): ol.e(oload(j))
    ol.e("s_branch L_tl1")
    a.e("s_cbranch_scc1 L_tl6")
    a.lab("L_tl2")
    ol.lab("L_tl6")
    ol.e("s_waitcnt vmcnt(9)")
    tstamp(ol, 4)
    ol.e("s_barrier")
    tstamp(ol, 5)
    ol.e("s_branch L_tl2")
    fl = collect(addrs)
    for c in range(2):
        for r in wd_reads(wf[0], vWDA, 4 * 8192)[2 * c:2 * c + 2]: a.e(r)
        a.e(mfma(vD + 16 * c, vWX + 4 * c, vHX, vD + 16 * c))
    for r in wd_reads(wf[1], vWDA, 5 * 8192): a.e(r)
    slot = [4, 5, 6, 7, 0, 1, 2]
    for i in range(7):
        if i == 2:
            a.e("s_cmp_eq_u32 s%d, 0" % sHI)
            a.e("s_cbranch_scc1 L_tl5")
            a.e("s_waitcnt vmcnt(1)")
            tstamp(a, 4)
            a.e("s_barrier")
            tstamp(a, 5)
            a.lab("L_tl5")
        if i + 2 < 7:
            for r in wd_reads(wf[(i + 2) % 3], vWDA, slot[i + 2] * 8192): a.e(r)
        else:
            for r in wd_reads(wf[(i + 2) % 3], vQA, HORD[i - 5] * 8192): a.e(r)
        a.e("s_waitcnt lgkmcnt(8)")
        for c in range(2):
            a.e(mfma(vD + 16 * c, wf[i % 3] + 4 * c, vH + 4 * slot[i], vD + 16 * c))
            put(a, fl[:1]); fl = fl[1:]
    assert not fl
    tstamp(a, 6)
    a.e("s_cmp_lg_u32 s%d, 0" % sHI)
    a.e("s_cbranch_scc1 L_tl3")
    a.l.append(".p2align 3")
    a.e("s_nop 7")
    a.e("s_nop 0")
    for i in range(16): a.e("v_pk_mul_f32 %s, %s, %s op_sel:[0,1] op_sel_hi:[1,1]" % (v(vD + 2 * i, 2), v(vD + 2 * i, 2), v(vGP, 2)))
    tstamp(a, 7)
    if Opt.tbar == 0: a.e("s_barrier")
    a.lab("L_tl4")
    tstamp(a, 8)
    ol.lab("L_tl3")
    ol.e("s_setprio 0")
    for j in range(8):
        ol.e(oload(j))
        if j == 0: ol.e("s_nop 6")
        for i in range(4 * j, 4 * j + 4): ol.e("v_mul_f32 %s, %s, %s" % (v(vD + i), v(vGC), v(vD + i)))
    tstamp(ol, 7)
    ol.e("s_barrier")
    ol.e("s_branch L_tl4")
    a.stamp(7)
    J1 = 8 - Opt.cskew
    wo = lambda j: wf[(j + 1) % 3] if j < J1 else vH + 8 * (j - J1)
    for j in range(8):
        o = vS + 4 * j
        if j + 2 < 8:
            for r in wd_reads(wo(j + 2), vQA, HORD[j + 2] * 8192): a.e(r)
        a.lab("L_ochk%d" % j)
        a.e("s_waitcnt vmcnt(%d)" % (7 - j))
        a.e("v_max3_u32 v2, %s, %s, %s" % (v(o), v(o + 1), v(o + 2)))
        a.e("v_max_u32 v2, v2, %s" % v(o + 3))
        a.e("v_cmp_eq_u32 vcc, -1, v2")
        a.e("s_cbranch_vccnz L_ore%d" % j)
        a.lab("L_ook%d" % j)
        a.e("s_waitcnt lgkmcnt(%d)" % (4 * min(2, 7 - j)))
        for c in range(2 if j < J1 else 1): a.e(mfma(vD + 16 * c, wo(j) + 4 * c, o, vD + 16 * c))
    wr = lambda c, j: "ds_write_b128 %s, %s offset:%d" % (v(aw[j]), v(vD + 16 * c + 4 * j, 4), 128 * c)
    w0 = [wr(0, j) for j in range(4)]
    dist = 0
    for j in range(J1, 8):
        a.e(mfma(vD + 16, wo(j) + 4, vS + 4 * j, vD + 16)); dist += 1
        if dist < 12:
            a.e("s_nop 5"); dist += 6
        elif j < 7:
            a.e(w0.pop(0))
    a.stamp(8)
    tstamp(a, 9)
    if not Opt.cskew: a.e("s_nop 10")
    elif dist < 12: a.e("s_nop %d" % (11 - dist))
    n0 = len(w0)
    for x in w0: a.e(x)
    if Opt.cskew: a.e("s_nop %d" % (11 - n0))
    for j in range(4): a.e(wr(1, j))
    a.e("s_waitcnt lgkmcnt(0)")
    a.e("s_barrier")
    for p in range(4):
        for h in range(2): a.e(rd128(vS + 8 * p + 4 * h, ar[h], p * 8192))
    for p in range(1, 4):
        a.e("s_waitcnt lgkmcnt(%d)" % (6 - 2 * p))
        for i in range(4): a.e("v_pk_add_f32 %s, %s, %s" % (v(vS + 2 * i, 2), v(vS + 2 * i, 2), v(vS + 8 * p + 2 * i, 2)))
    for i in range(4): a.e("v_cvt_pk_bf16_f32 %s, %s, %s" % (v(vP + i), v(vS + 2 * i), v(vS + 2 * i + 1)))
    a.e("buffer_store_dwordx4 %s, %s, %s, s%d offen %s" % (v(vP, 4), v(vOUTA), srd(SOUT), sOUTO, Opt.out_pol))
    if Opt.probe >= 0:
        a.e("s_waitcnt vmcnt(0)")
        a.stamp(9)
        if Opt.probe != 9:
            a.e("s_cmp_ge_u32 s%d, 14" % sM)
            a.e("s_cbranch_scc%d L_end" % (0 if Opt.probe_l else 1))
        a.e("s_sub_u32 s%d, s%d, s%d" % (sA, sSTAMP + 4, sSTAMP))
        a.e("s_mul_i32 s%d, s%d, %d" % (sA, sA, Opt.probe_mul - 1))
        a.e("s_min_u32 s%d, s%d, 100000" % (sA, sA))
        a.e("s_add_u32 s%d, s%d, 3800" % (sA, sA))
        if Opt.probe_w >= 0:
            a.e("s_cmp_lg_u32 s%d, %d" % (sHI, Opt.probe_w))
            a.e("s_cbranch_scc1 L_end")
        if Opt.probe_x >= 0:
            a.e("s_and_b32 s0, s2, 7")
            a.e("s_cmp_lg_u32 s0, %d" % Opt.probe_x)
            a.e("s_cbranch_scc1 L_end")
        a.lab("L_probe")
        a.e("s_memrealtime s[0:1]")
        a.e("s_waitcnt lgkmcnt(0)")
        a.e("s_sub_u32 s0, s0, s%d" % (sSTAMP + 4))
        a.e("s_cmp_lt_u32 s0, s%d" % sA)
        a.e("s_cbranch_scc1 L_probe")
    if Opt.pin == 9:
        a.e("s_waitcnt vmcnt(0)")
        a.stamp(9)
    if Opt.diag in (1, 2):
        a.e("s_waitcnt vmcnt(0)")
        a.stamp(9)
        a.e("s_mov_b32 s%d, s%d" % (sSTAMP + 3, sSTAMP))
        a.e("s_mov_b32 s%d, s%d" % (sSTAMP, sB))
        a.e("s_getreg_b32 s%d, hwreg(HW_REG_XCC_ID)" % (sSTAMP + 1))
        for i in range(20): a.e("v_mov_b32 %s, s%d" % (v(vS + i), sSTAMP + i))
        a.e("s_lshl_b32 s%d, s2, 3" % sA)
        a.e("s_add_u32 s%d, s%d, s%d" % (sA, sA, sW))
        a.e("s_lshl_b32 s%d, s%d, 7" % (sA, sA))
        a.e("s_add_u32 s%d, s%d, 0x%x" % (sA, sA, WS_STAMP))
        a.e("s_mov_b64 exec, 1")
        for i in range(5): a.e("buffer_store_dwordx4 %s, off, %s, s%d offset:%d" % (v(vS + 4 * i, 4), srd(SWS), sA, 16 * i))
    a.lab("L_end")
    a.e("s_endpgm")
    a.l += a.ool2
    for j in range(8):
        a.lab("L_ore%d" % j)
        a.e("s_sub_u32 s%d, s%d, 1" % (sB, sB))
        a.e("s_cbranch_scc1 L_ogive%d" % j)
        a.e("s_waitcnt vmcnt(0)")
        for i in range(j, 8): a.e(a.oload(i))
        a.e("s_branch L_ochk%d" % j)
        a.lab("L_ogive%d" % j)
        a.e("s_mov_b32 s%d, 0" % sB)
        a.e("s_branch L_ook%d" % j)

def fallback(a):
    a.lab("L_fb")
    m = vT0
    a.e("v_mov_b32 %s, 0xff800000" % v(m))
    a.e("s_mov_b32 s%d, 0" % sA)
    a.lab("L_fb1")
    a.e("buffer_load_dwordx4 %s, %s, %s, s%d offen sc1" % (v(vKF, 4), v(vL16), srd(SKV), sA))
    a.e("s_waitcnt vmcnt(0)")
    a.e(mfma(vS, vKF, vQ, None))
    a.e("s_add_u32 s%d, s%d, 2048" % (sA, sA))
    a.e("s_nop 11")
    for i in range(8): a.e("v_max3_f32 %s, %s, %s, %s" % (v(m), v(m), v(vS + 2 * i), v(vS + 2 * i + 1)))
    a.e("s_cmp_lt_u32 s%d, 0x20000" % sA)
    a.e("s_cbranch_scc1 L_fb1")
    a.e("v_mov_b32 %s, %s" % (v(m + 1), v(m)))
    a.e("s_nop 1")
    a.e("v_permlane32_swap_b32 %s, %s" % (v(m), v(m + 1)))
    a.e("s_nop 1")
    a.e("v_max_f32 %s, %s, %s" % (v(m), v(m), v(m + 1)))
    for i in range(16): a.e("v_sub_f32 %s, 0, %s" % (v(vS + 16 + i), v(m)))
    for i in range(16): a.e("v_mov_b32 %s, 0" % v(vO + i))
    a.e("s_mov_b32 s%d, 0" % sA)
    a.lab("L_fb2")
    a.e("s_add_u32 s%d, s%d, 0x%x" % (sB, sA, 63 * 2048))
    a.e("s_and_b32 s%d, s%d, 0x1ffff" % (sB, sB))
    a.e("buffer_load_dwordx4 %s, %s, %s, s%d offen sc1" % (v(vKF, 4), v(vL16), srd(SKV), sB))
    a.e("s_add_u32 s%d, s%d, 2048" % (sB, sA))
    a.e("s_and_b32 s%d, s%d, 0x1ffff" % (sB, sB))
    a.e("s_mov_b64 exec, %s" % sp(sVM))
    a.e("buffer_load_dwordx4 %s, %s, %s, s%d offen offset:1024 sc1" % (v(vV, 4), v(vL16), srd(SKV), sA))
    a.e("buffer_load_dwordx4 %s, %s, %s, s%d offen offset:1280 sc1" % (v(vV + 4, 4), v(vL16), srd(SKV), sB))
    a.e("s_mov_b64 exec, -1")
    a.e("s_waitcnt vmcnt(0)")
    a.e(mfma(vS, vKF, vQ, vS + 16))
    a.e("s_add_u32 s%d, s%d, 2048" % (sA, sA))
    a.e("s_nop 11")
    for i in range(16): a.e("v_exp_f32 %s, %s" % (v(vS + i), v(vS + i)))
    a.e("s_nop 2")
    a.e(smfmac(vO, vV, vS))
    a.e(smfmac(vO, vV + 4, vS + 8))
    a.e("s_cmp_lt_u32 s%d, 0x20000" % sA)
    a.e("s_cbranch_scc1 L_fb2")
    a.e("s_nop 11")
    a.e("v_rcp_f32 %s, %s" % (v(vT0 + 2), v(vO + 8)))
    a.e("s_cmp_eq_u32 s%d, 0" % sHI)
    a.e("v_mul_f32 %s, %s, %s" % (v(vT0 + 2), v(vT0 + 2), v(vGP)))
    for i in range(8): a.e("v_mul_f32 %s, %s, %s" % (v(vO + i), v(vT0 + 2), v(vO + i)))
    for i in range(4): a.e("v_cvt_pk_bf16_f32 %s, %s, %s" % (v(vP + i), v(vO + 2 * i), v(vO + 2 * i + 1)))
    for i in range(4): a.e("v_min_u32 %s, -2, %s" % (v(vP + i), v(vP + i)))
    a.e("s_cbranch_scc0 L_fbret")
    for j in range(8): a.e(a.oload(j))
    a.e("s_branch L_fbret")

def build():
    a = Asm()
    prologue(a)
    phase1_F(a)
    transition(a, "B")
    tail(a)
    a.l += a.ool
    transition(a, "A")
    phase1_L(a)
    fallback(a)
    a.lab("L_codeend")
    for i, x in enumerate(a.l):
        if " sc1" in x and "sc0" not in x and ((Opt.allsc & 1 and "buffer_store" in x) or (Opt.allsc & 2 and "buffer_load" in x)):
            a.l[i] = x.replace(" sc1", " sc0 sc1")
    il = a.l.index("L_light:")
    for i, x in enumerate(a.l):
        if x.endswith(" lds") and "sc1" not in x and " nt" not in x:
            if (Opt.ntx & 4 and (srd(SWD) in x or srd(SWO) in x)) or (Opt.ntx & 8 and i > il):
                a.l[i] = x[:-4] + " nt lds"
    head = open("cdna_kernels/%s.s.ref" % NAME).read().split("\n")
    hdr = [l for l in head if l.startswith(";") and "@launch" not in l and "Override" not in l and "grid=" not in l]
    out = hdr + ["; @launch grid=(256,1,1) block=(512,1,1) lds=%d" % LDS_BYTES,
                 '.amdgcn_target "amdgcn-amd-amdhsa--gfx950"', ".text", ".globl %s_kernel" % NAME, ".p2align 8",
                 ".type %s_kernel,@function" % NAME,
                 ".set CODE_PF_MAX, L_codeend - L_nopf - 4" if Opt.code_pf else "",
                 "%s_kernel:" % NAME]
    out += ["; mapmode %d" % Opt.mapmode, "; xrot %d" % Opt.xrot]
    out += a.l
    out += ['.section .rodata,"a"', ".p2align 6", ".amdhsa_kernel %s_kernel" % NAME,
            "  .amdhsa_next_free_vgpr %d" % NV, "  .amdhsa_next_free_sgpr 102", "  .amdhsa_accum_offset 256",
            "  .amdhsa_group_segment_fixed_size 0", "  .amdhsa_kernarg_size 104", "  .amdhsa_user_sgpr_count 2",
            "  .amdhsa_user_sgpr_kernarg_segment_ptr 1", "  .amdhsa_system_sgpr_workgroup_id_x 1", ".end_amdhsa_kernel", ""]
    return "\n".join(out)

if __name__ == "__main__":
    path = sys.argv[1]
    for kv in sys.argv[2:]:
        k, val = kv.split("=")
        cur = getattr(Opt, k)
        setattr(Opt, k, val if isinstance(cur, str) else type(cur)(int(val)))
    open(path, "w").write(build())
```

```python
import sys, struct, math

NAME = "gated_mix__grouped_kv_mqa__geglu_ffn__prompt"

class Opt:
    diag = 0
    mapmode = 1
    force_fb = False
    allsc = 0
    out_pol = "sc0 sc1"
    code_pf = True
    xrot = 0
    pregap = 0
    aearly = 0
    bidle = 1
    old_pol = "sc1"
    ypos0 = "36g"
    ypos1 = "36bg"
    ypos2 = "36cg9"
    xtile = 0
    tpos = 1
    cskew = 0
    tch = 12
    stch = 0
    spos = 1
    tlb = 14
    olate = 1
    hrot = 0
    tbar = 0
    hord = 1
    cmap = 1
    kqx = 0
    oearly = 8
    conc = 1
    ghx = 1
    qa = "077777"
    qb = "588888"
    npre = 8
    stagger = 1
    rper = 2
    dma1 = 17
    kprio = 0
    dma0 = 8
    npd = 4
    kdiag = 0
    fillpre = 0
    fillper = 5
    gsc = 2
    sched = 0
    xmask = 1
    ntx = 0
    touch = 2
    rotg = 0
    rotm = 0
    startbar = 1
    pvz = 1
    pin = -1
    pin_ns = 60000
    probe = -1
    probe_x = -1
    probe_mul = 10
    probe_w = -1
    probe_l = 0

def f2u(x): return struct.unpack("<I", struct.pack("<f", x))[0]

WS_KV = 0
WS_G = 128 * 1024
WS_HFLAG = 192 * 1024
WS_OF = 1 << 20
WS_HF = 4 << 20
WS_STAMP = 12 << 20
WS_SIZE = 16 << 20
K1 = 1024
L_G, L_U, L_X, L_WQ = 0, 48 * K1, 96 * K1, 144 * K1
L_QX = 32 * K1
L_WD, L_WO, L_KV = 0, 64 * K1, 128 * K1
LL_X, LL_W, LL_GATE, LL_WQ = 0, 128 * K1, 144 * K1, 128 * K1
LDS_BYTES = 160 * K1

SX, SWG, SWU, SWQ, SWS, SWD, SWO, SOUT, SDBG, SWKV, SGATE, SKV = 4, 8, 12, 16, 20, 24, 28, 32, 36, 40, 44, 64
SWV = 72
sTMPP = 48
sW, sHI, sLO, sG, sM, sT, sCB = 50, 51, 52, 53, 54, 55, 56
sWK = 57
sWH = 58
sVM = 60
sRET = 62
sA, sB, sC, sD = 68, 69, 70, 71
sOFFW, sOFFQ, sCH, sXP = 72, 73, 74, 75
sHOFF, sWDOFF, sKVOFF, sHXO, sCNT = 72, 73, 74, 75, 77
sOUTO, sLO_, sRNG = 59, 81, 75
sOLD2 = 58
sOST, sOLD, sHST = 78, 79, 80
sHST2 = 3
sRX, sRW, sM0B = 40, 41, 42
sKQ = 76
sHP = sM
sSTAMP = 82

def srd(b): return "s[%d:%d]" % (b, b + 3)
def sp(b): return "s[%d:%d]" % (b, b + 1)
def v(b, n=1): return "v%d" % b if n == 1 else "v[%d:%d]" % (b, b + n - 1)

vL16 = 1
vT0, vT1, vT2, vT3 = 2, 3, 4, 5
vGP, vGC = 6, 7
vKVA = 8
vWDA = 9
vWDV = 10
vONE = 11
vZERO = 12
vFLA = 13
vPOLL = 14
vGA = 15
vQ = 16
vK0 = 20
vV1L = 24
vIDX = 28
vAW0, vAR0, vOUTA = 30, 31, 12
vKVB = 29
vP = 32
vV = 40
vO = 56
vD = 72
vACC = 104
vS = 104
vH = 136
vAQ = vP
vF1 = 168
vKF = 168
vWF = 176
vWX = 224
vHX = 232
vFR = 184
vLX = 224
vXA = 240
vWA = 244
vQA = 248
vDX, vDG, vDQ = 249, 250, 251
vC0 = 252
vTID = 255
vHA = 254
NV = 256

class Asm:
    def __init__(self):
        self.l = []
        self.vm = []
        self.nstamp = 0
    def e(self, s):
        for x in s.split("\n"):
            x = x.strip()
            if x: self.l.append("    " + x)
    def lab(self, s): self.l.append(s + ":")
    def vmop(self, s, tag):
        self.e(s); self.vm.append(tag)
    def vmn(self, tags):
        if isinstance(tags, str): tags = [tags]
        last = -1
        for i, t in enumerate(self.vm):
            if t in tags: last = i
        return None if last < 0 else len(self.vm) - 1 - last
    def waitvm(self, tags, lgkm=False):
        n = self.vmn(tags)
        if n is None:
            if lgkm: self.e("s_waitcnt lgkmcnt(0)")
            return
        assert n < 64
        self.e("s_waitcnt vmcnt(%d)%s" % (n, " lgkmcnt(0)" if lgkm else ""))
        self.vm = self.vm[len(self.vm) - n:] if n else []
    def wait0(self, lgkm=False):
        self.e("s_waitcnt vmcnt(0)%s" % (" lgkmcnt(0)" if lgkm else "")); self.vm = []
    def stamp(self, i, real=False):
        if Opt.probe == i:
            self.e("s_waitcnt lgkmcnt(0)")
            self.e("s_memrealtime %s" % sp(sSTAMP + 4))
            self.e("s_waitcnt lgkmcnt(0)")
        if Opt.pin == i:
            self.nstamp += 1
            self.e("s_waitcnt lgkmcnt(0)")
            self.e("s_cselect_b32 s%d, 1, 0" % (sSTAMP + 5))
            self.lab("L_pin%d" % self.nstamp)
            self.e("s_memrealtime s[0:1]")
            self.e("s_waitcnt lgkmcnt(0)")
            self.e("s_sub_u32 s0, s0, s%d" % sSTAMP)
            self.e("s_cmp_lt_u32 s0, %d" % (Opt.pin_ns // 10))
            self.e("s_cbranch_scc1 L_pin%d" % self.nstamp)
            self.e("s_cmp_lg_u32 s%d, 0" % (sSTAMP + 5))
        if Opt.diag and not Opt.kdiag and (Opt.diag == 1 or i == 9):
            self.e("s_waitcnt lgkmcnt(0)")
            self.e("s_memtime %s" % sp(sSTAMP + 2 * i))
            self.e("s_memrealtime %s" % sp(sRET))
            self.e("s_waitcnt lgkmcnt(0)")
            self.e("s_mov_b32 s%d, s%d" % (sSTAMP + 2 * i + 1, sRET))

def astamp(a, i):
    if Opt.diag and Opt.kdiag == 2: a.e("s_memtime %s" % sp(sSTAMP + 2 * i))

def tstamp(a, i):
    if Opt.diag and Opt.kdiag == 3: a.e("s_memtime %s" % sp(sSTAMP + 2 * i))

def kstamp(a, i):
    if Opt.probe == 18 + i: a.e("s_memrealtime %s" % sp(sSTAMP + 4))
    if Opt.diag and Opt.kdiag == 1: a.e("s_memtime %s" % sp(sSTAMP + 2 * i))

def mfma(d, a, b, c):
    return "v_mfma_f32_32x32x16_bf16 %s, %s, %s, %s" % (v(d, 16), v(a, 4), v(b, 4), "0" if c is None else v(c, 16))
def smfmac(d, a, b):
    return "v_smfmac_f32_32x32x32_bf16 %s, %s, %s, %s" % (v(d, 16), v(a, 4), v(b, 8), v(vIDX))
def mfma16(d, a, b, c):
    return "v_mfma_f32_16x16x32_bf16 %s, %s, %s, %s" % (v(d, 4), v(a, 4), v(b, 4), "0" if c is None else v(c, 4))
def rd128(d, a, off):
    assert 0 <= off < 65536
    return "ds_read_b128 %s, %s offset:%d" % (v(d, 4), v(a), off)
def rdtr(d, a, off):
    assert 0 <= off < 65536
    return "ds_read_b64_tr_b16 %s, %s offset:%d" % (v(d, 2), v(a), off)

def interleave(mf, fill, per=2):
    out = []
    fill = list(fill)
    for i, m in enumerate(mf):
        out.append(m)
        if i < len(mf) - 1:
            out += fill[:per]; fill = fill[per:]
    return out + fill

def srd_words(a, regs):
    sizes = {SX: 2048 * 1024, SWG: 512 * 3584, SWU: 512 * 3584, SWQ: 512 * 1024, SWS: WS_SIZE, SWKV: 16384, SWV: 16384,
             SGATE: 1024, SWD: 1792 * 1024, SWO: 512 * 1024, SOUT: 2048 * 1024, SDBG: 256, SKV: 128 * 1024}
    for reg in regs:
        a.e("s_mov_b32 s%d, 0x%x" % (reg + 2, sizes[reg]))
        a.e("s_mov_b32 s%d, 0x20000" % (reg + 3))

def ptr_loads(a, lst):
    for reg, off in lst: a.e("s_load_dwordx2 %s, s[0:1], %d" % (sp(reg), off))

def prologue(a):
    if Opt.diag or Opt.pin >= 0 or Opt.probe >= 0:
        a.e("s_memrealtime %s" % sp(sSTAMP))
        if Opt.diag in (1, 2): a.e("s_memtime %s" % sp(sSTAMP + 2))
    ptr_loads(a, ((SX, 0), (SWG, 48), (SWU, 56), (SWQ, 8)))
    a.e("s_load_dwordx8 s[%d:%d], s[0:1], 64" % (SOUT, SOUT + 7))
    if not (Opt.diag or Opt.probe >= 0): ptr_loads(a, ((SWS, 96), (SWO, 32)))
    if Opt.probe == 1: a.stamp(1)
    a.e("v_lshrrev_b32 v2, 6, v0")
    if Opt.code_pf:
        a.e("s_getpc_b64 %s" % sp(sRET))
        a.lab("L_nopf")
        a.e("s_and_b32 s%d, s2, -8" % sA)
        a.e("v_add_lshl_u32 v3, v2, s%d, 7" % sA)
        a.e("v_readfirstlane_b32 s%d, v2" % sW)
        a.e("v_min_u32 v3, CODE_PF_MAX, v3")
        a.e("global_load_dword %s, v3, %s" % (v(vPOLL), sp(sRET)))
    else:
        a.e("s_nop 0")
        a.e("v_readfirstlane_b32 s%d, v2" % sW)
    if Opt.diag or Opt.probe >= 0:
        a.e("s_load_dwordx2 %s, s[0:1], 96" % sp(SWS))
    a.e("s_cmpk_ge_u32 s2, 256")
    a.e("s_cbranch_scc1 L_end")
    a.e("s_and_b32 s%d, s2, 1" % sD)
    a.e("s_bfe_u32 s%d, s2, 0x30003" % sA)
    a.e("s_lshl3_add_u32 s%d, s%d, s%d" % (sG, sD, sA))
    a.e("s_bfe_u32 s%d, s2, 0x20001" % sA)
    a.e("s_lshr_b32 s%d, s2, 6" % sB)
    a.e("s_lshl2_add_u32 s%d, s%d, s%d" % (sM, sA, sB))
    a.e("s_lshl_b32 s%d, s%d, 10" % (sWK, sW))
    a.e("s_cmp_ge_u32 s%d, 14" % sM)
    a.e("s_cbranch_scc1 L_light")

def xvoff(a, t):
    a.e("v_lshrrev_b32 v2, 4, %s" % v(t))
    a.e("v_xor_b32 v2, v2, %s" % v(t))
    a.e("v_and_b32 v2, 7, v2")
    a.e("s_lshl_b32 s%d, s%d, 17" % (sA, sG))
    a.e("v_lshl_add_u32 v2, v2, 4, s%d" % sA)
    a.e("v_lshrrev_b32 v3, 3, %s" % v(t))
    a.e("v_lshl_add_u32 %s, v3, 10, v2" % v(vDX))

def setup_ids(a):
    a.e("s_mov_b64 %s, %s" % (sp(SKV), sp(SWS)))
    a.e("s_mov_b64 %s, %s" % (sp(SWD), sp(SOUT)))
    a.e("s_mov_b64 %s, %s" % (sp(SOUT), sp(SOUT + 4)))
    a.e("s_mov_b64 %s, %s" % (sp(SDBG), sp(SOUT + 6)))
    a.e("v_and_b32 v0, 63, v0")
    a.e("v_lshlrev_b32 %s, 4, v0" % v(vL16))
    a.e("s_andn2_b32 s%d, 1, s2" % sA)
    a.e("s_bfe_u32 s%d, s2, 0x20001" % sB)
    a.e("s_lshl2_add_u32 s%d, s%d, s%d" % (sA, sA, sB))
    a.e("s_bfe_u32 s%d, s2, 0x20003" % sB)
    a.e("s_lshl2_add_u32 s%d, s%d, s%d" % (sT, sA, sB))
    a.e("s_lshr_b32 s%d, s2, 5" % sCB)

def setup_rd(a):
    a.e("s_lshr_b32 s%d, s%d, 2" % (sHI, sW))
    a.e("s_and_b32 s%d, s%d, 3" % (sLO, sW))
    a.e("v_and_b32 v2, 15, v0")
    a.e("v_lshrrev_b32 v3, 4, v0")
    a.e("v_bfe_u32 v4, v0, 1, 3")
    a.e("v_xor_b32 v4, v4, v3")
    a.e("v_lshlrev_b32 v4, 4, v4")
    a.e("v_lshl_add_u32 %s, v2, 7, v4" % v(vXA))
    a.e("v_bfe_u32 v2, v0, 2, 2")
    a.e("v_and_b32 v4, 3, v0")
    a.e("v_lshl_add_u32 %s, v3, 3, v2" % v(vQA))
    a.e("v_lshlrev_b32 %s, 6, %s" % (v(vQA), v(vQA)))
    a.e("v_xor_b32 v5, s%d, v3" % sHI)
    a.e("v_and_b32 v5, 1, v5")
    a.e("v_lshl_add_u32 %s, v5, 5, %s" % (v(vQA), v(vQA)))
    a.e("v_lshl_add_u32 %s, v4, 3, %s" % (v(vQA), v(vQA)))

def setup_oclr(a):
    srd_words(a, [SWS, SKV, SDBG])
    a.e("s_mov_b32 s%d, 0xffff" % sVM)
    a.e("s_mov_b32 s%d, 0xffff" % (sVM + 1))
    a.e("s_lshl_b32 s%d, s%d, 2" % (sA, sG))
    a.e("s_add_u32 s%d, s%d, s%d" % (sA, sA, sLO))
    a.e("s_lshl_b32 s%d, s%d, 5" % (sB, sA))
    a.e("s_lshl_b32 s%d, s%d, 1" % (sC, sHP))
    a.e("s_add_u32 s%d, s%d, s%d" % (sB, sB, sC))
    a.e("s_add_u32 s%d, s%d, s%d" % (sB, sB, sHI))
    a.e("s_lshl_b32 s%d, s%d, 10" % (sB, sB))
    a.e("s_add_u32 s%d, s%d, 0x%x" % (sOST, sB, WS_OF))
    for i in range(4): a.e("v_mov_b32 %s, -1" % v(vQ + i))
    a.vmop("buffer_store_dwordx4 %s, %s, %s, s%d offen sc1" % (v(vQ, 4), v(vL16), srd(SWS), sOST), "oclr")
    a.e("v_mov_b32 %s, 1" % v(vONE))
    a.e("v_mov_b32 %s, 0" % v(vZERO))
    a.e("v_and_b32 %s, 31, v0" % v(vGA))
    a.e("v_lshlrev_b32 %s, 2, %s" % (v(vGA), v(vGA)))

def collect(fn):
    t = Asm(); t.marks = {}
    def vmop(s_, tag):
        t.e(s_); t.marks[len(t.l) - 1] = tag
    t.vmop = vmop
    fn(t)
    return [(x, t.marks.get(i)) for i, x in enumerate(t.l)]
def put(a, items):
    for x, tag in items:
        if tag: a.vmop(x, tag)
        else: a.e(x)

def setup_ones(a):
    a.e("s_mov_b32 s%d, 0x110000" % sA)
    a.e("s_mov_b32 s%d, 0x110000" % sB)
    a.e("v_mov_b32 v3, 0x3f803f80")
    a.e("v_cndmask_b32 %s, 0, v3, %s" % (v(vV1L), sp(sA)))
    for i in range(1, 4): a.e("v_mov_b32 %s, %s" % (v(vV1L + i), v(vV1L)))
    for i in range(16): a.e("v_mov_b32 %s, %s" % (v(vV + i), v(vV1L)))

def setup_attn(a):
    srd_words(a, [SWD, SWO, SOUT])
    a.e("s_lshl_b32 s%d, s%d, 2" % (sA, sG))
    a.e("s_add_u32 s%d, s%d, s%d" % (sA, sA, sLO))
    a.e("s_mul_i32 s%d, s%d, 112" % (sB, sA))
    a.e("s_lshl_b32 s%d, s%d, 3" % (sC, sM))
    a.e("s_add_u32 s%d, s%d, s%d" % (sB, sB, sC))
    a.e("s_lshl_b32 s%d, s%d, 2" % (sC, sHI))
    a.e("s_add_u32 s%d, s%d, s%d" % (sB, sB, sC))
    a.e("s_and_b32 s%d, s%d, 1" % (sC, sLO))
    a.e("s_lshl_b32 s%d, s%d, 1" % (sC, sC))
    a.e("s_add_u32 s%d, s%d, s%d" % (sB, sB, sC))
    a.e("s_lshl_b32 s%d, s%d, 10" % (sB, sB))
    a.e("s_add_u32 s%d, s%d, 0x%x" % (sHST, sB, WS_HF))
    a.e("s_mul_i32 s%d, s%d, %d" % (sC, sC, 112 * 1024))
    a.e("s_sub_u32 s%d, %d, s%d" % (sC, 112 * 1024, sC))
    a.e("s_add_u32 s%d, s%d, s%d" % (sHST2, sHST, sC))
    a.e("v_bfe_u32 v2, v0, 2, 2")
    a.e("v_lshrrev_b32 v3, 5, v0")
    a.e("v_lshl_add_u32 v2, v3, 2, v2")
    a.e("v_lshlrev_b32 v2, 6, v2")
    a.e("v_bfe_u32 v3, v0, 4, 1")
    a.e("v_lshl_add_u32 v2, v3, 5, v2")
    a.e("v_and_b32 v3, 3, v0")
    a.e("v_lshl_add_u32 v2, v3, 3, v2")
    a.e("s_lshr_b32 s%d, s%d, 1" % (sA, sW))
    a.e("s_lshl_b32 s%d, s%d, 11" % (sA, sA))
    a.e("v_add_u32 %s, s%d, v2" % (v(vWDA), sA))
    a.e("v_add_u32 %s, 0x%x, %s" % (v(vKVA), L_KV, v(vL16)))
    a.e("v_add_u32 %s, 0x%x, %s" % (v(vKVB), L_KV + 0x4000, v(vL16)))
    a.e("v_bfe_u32 v2, v0, 2, 3")
    a.e("v_lshlrev_b32 v2, 10, v2")
    a.e("v_lshrrev_b32 v3, 5, v0")
    a.e("v_lshl_add_u32 v2, v3, 6, v2")
    a.e("v_and_b32 v3, 3, v0")
    a.e("v_lshl_add_u32 v2, v3, 4, v2")
    a.e("s_lshl_b32 s%d, s%d, 7" % (sB, sCB))
    a.e("v_add_u32 %s, s%d, v2" % (v(vWDV), sB))
    a.e("v_min_u32 v2, 13, v0")
    a.e("v_lshlrev_b32 v2, 7, v2")
    a.e("s_lshr_b32 s%d, s%d, 1" % (sA, sT))
    a.e("s_lshl_b32 s%d, s%d, 11" % (sA, sA))
    a.e("s_add_u32 s%d, s%d, 0x%x" % (sA, sA, WS_HFLAG))
    a.e("v_add_u32 %s, s%d, v2" % (v(vFLA), sA))
    a.e("s_lshl_b32 s%d, s%d, 1" % (sA, sT))
    a.e("s_and_b32 s%d, s%d, 1" % (sB, sW))
    a.e("s_add_u32 s%d, s%d, s%d" % (sA, sA, sB))
    a.e("s_lshl_b32 s%d, s%d, 15" % (sB, sA))
    a.e("s_lshr_b32 s%d, s%d, 1" % (sKQ, sW))
    if Opt.kqx:
        a.e("s_lshl_b32 s%d, s%d, 1" % (sC, sCB))
        a.e("s_and_b32 s%d, s%d, 2" % (sC, sC))
        a.e("s_xor_b32 s%d, s%d, s%d" % (sKQ, sKQ, sC))
    a.e("s_lshl_b32 s%d, s%d, 13" % (sC, sKQ))
    a.e("s_add_u32 s%d, s%d, s%d" % (sB, sB, sC))
    a.e("s_add_u32 s%d, s%d, 0x%x" % (sOLD, sB, WS_OF))
    a.e("v_and_b32 v2, 31, v0")
    a.e("v_lshrrev_b32 v3, 5, v0")
    a.e("v_and_b32 v4, 7, v0")
    a.e("v_xor_b32 v3, v3, v4")
    a.e("v_lshlrev_b32 v3, 4, v3")
    a.e("v_lshl_add_u32 v3, v2, 8, v3")
    a.e("s_and_b32 s%d, s%d, 1" % (sB, sW))
    a.e("s_lshl_b32 s%d, s%d, 15" % (sB, sB))
    a.e("s_lshr_b32 s%d, s%d, 1" % (sC, sW))
    a.e("s_lshl_b32 s%d, s%d, 13" % (sD, sC))
    a.e("s_add_u32 s%d, s%d, s%d" % (sOUTO, sD, sB))
    a.e("v_add_u32 %s, s%d, v3" % (v(vAW0), sOUTO))
    a.e("v_lshrrev_b32 v2, 3, v0")
    a.e("v_lshlrev_b32 v3, 1, v4")
    a.e("v_xor_b32 v3, v3, v2")
    a.e("v_lshlrev_b32 v3, 4, v3")
    a.e("v_lshl_add_u32 v3, v2, 8, v3")
    a.e("s_lshl_b32 s%d, s%d, 11" % (sD, sC))
    a.e("s_add_u32 s%d, s%d, s%d" % (sD, sD, sB))
    a.e("v_add_u32 %s, s%d, v3" % (v(vAR0), sD))
    a.e("v_lshlrev_b32 v4, 4, v4")
    a.e("v_lshl_add_u32 %s, v2, 10, v4" % v(vOUTA))
    a.e("s_lshl_b32 s%d, s%d, 16" % (sC, sT))
    a.e("s_add_u32 s%d, s%d, s%d" % (sOUTO, sOUTO, sC))
    a.e("s_lshl_b32 s%d, s%d, 7" % (sC, sCB))
    a.e("s_add_u32 s%d, s%d, s%d" % (sOUTO, sOUTO, sC))
    a.e("v_mov_b32 %s, 0xdddd" % v(vIDX))
    a.e("v_lshrrev_b32 v2, 4, v0")
    a.e("v_lshl_add_u32 %s, v2, 8, %s" % (v(vHA), v(vL16)))
    for i in range(16): a.e("v_mov_b32 %s, 0" % v(vO + i))
    for i in range(32): a.e("v_mov_b32 %s, 0" % v(vD + i))
    c0 = -2.0 * math.sqrt(2.0 / math.pi) * math.log2(math.e)
    a.e("v_mov_b32 %s, 0x%x" % (v(vC0), f2u(c0)))
    a.e("v_mov_b32 %s, 0x%x" % (v(vC0 + 1), f2u(c0 * 0.044715)))

def kv_first_loads(a, quartet=False):
    it = []
    for o in (range(0, 16384, 4096) if quartet else range(0, 16384, 8192)):
        b = sWH if quartet else sWK
        it.append(("s_add_u32 m0, s%d, 0x%x\ns_add_u32 s%d, s%d, 0x%x\nbuffer_load_dwordx4 %s, %s, s%d offen sc1 lds"
                   % (b, L_KV + o, sA, b, o, v(vL16), srd(SKV), sA), "kv%d" % (o >> 13)))
    it.append(("s_mov_b32 s%d, 0x%x\nbuffer_load_dwordx4 %s, %s, %s, s%d offen sc1"
               % (sA, 63 * 2048, v(vK0, 4), v(vL16), srd(SKV), sA), "k0"))
    it.append(("s_mov_b64 exec, %s\nbuffer_load_dwordx4 %s, %s, %s, 0 offen offset:%d sc1\ns_mov_b64 exec, -1"
               % (sp(sVM), v(vV1L, 4), v(vL16), srd(SKV), 1024 + 256), "k0"))
    it.append(("s_lshl_b32 s%d, s%d, 2\ns_add_u32 s%d, s%d, s%d\ns_lshl_b32 s%d, s%d, 7\ns_add_u32 s%d, s%d, 0x%x\n"
               "buffer_load_dword %s, %s, %s, s%d offen sc1"
               % (sA, sG, sA, sA, sLO, sA, sA, sA, sA, WS_G, v(vGP), v(vGA), srd(SWS), sA), "k0"))
    it.append(("s_lshl_b32 s%d, s%d, 1\ns_and_b32 s%d, s%d, 1\ns_add_u32 s%d, s%d, s%d\ns_lshl_b32 s%d, s%d, 7\ns_add_u32 s%d, s%d, 0x%x\n"
               "buffer_load_dword %s, %s, %s, s%d offen sc1"
               % (sA, sT, sB, sW, sA, sA, sB, sA, sA, sA, sA, WS_G, v(vGC), v(vGA), srd(SWS), sA), "k0"))
    return it

def spin_counter(a, name, first_loaded, wave=0):
    a.e("s_cmp_lg_u32 s%d, %d" % (sW, wave))
    a.e("s_cbranch_scc1 L_%s_done" % name)
    a.e("s_mov_b32 s%d, 0x4000" % sB)
    if first_loaded: a.e("s_branch L_%s_chk" % name)
    a.lab("L_%s_re" % name)
    a.e("buffer_load_dword %s, off, %s, 0 sc1" % (v(vPOLL), srd(SDBG)))
    a.e("s_waitcnt vmcnt(0)")
    a.lab("L_%s_chk" % name)
    a.e("v_readfirstlane_b32 s%d, %s" % (sA, v(vPOLL)))
    a.e("s_cmp_ge_u32 s%d, 32" % sA)
    a.e("s_cbranch_scc1 L_%s_done" % name)
    a.e("s_sleep 4")
    a.e("s_sub_u32 s%d, s%d, 1" % (sB, sB))
    a.e("s_cmp_lg_u32 s%d, 0" % sB)
    a.e("s_cbranch_scc1 L_%s_re" % name)
    a.lab("L_%s_done" % name)

def phase1_F(a):
    SCHED = {1: ["01423567", "10253467", "23016457", "32104756"],
             2: ["02134657", "01324576", "10243567", "10235467"],
             3: ["01324657", "01243576", "12035467", "20134567"],
             5: ["01243567", "10325467", "23014657", "32104576"],
             6: ["01243567", "10325467", "01234657", "10324576"],
             4: ["02143657", "10325476", "02143657", "10325476"]}
    tabs = SCHED[Opt.sched] if Opt.sched else ["".join(str(c ^ (p & Opt.xmask)) for c in range(8)) for p in range(4)]
    for t_ in tabs: assert sorted(t_) == list("01234567")
    num = [int(t_[::-1], 16) for t_ in tabs]
    def table(a):
        a.e("s_add_u32 s%d, s%d, s%d" % (sA, sG, sHP))
        a.e("s_mov_b32 s%d, 0x%x" % (sXP, num[0]))
        a.e("s_mov_b32 s%d, 0x%x" % (sB, num[2]))
        a.e("s_bitcmp1_b32 s%d, 0" % sA)
        a.e("s_cselect_b32 s%d, 0x%x, s%d" % (sXP, num[1], sXP))
        a.e("s_cselect_b32 s%d, 0x%x, s%d" % (sB, num[3], sB))
        a.e("s_bitcmp1_b32 s%d, 1" % sA)
        a.e("s_cselect_b32 s%d, s%d, s%d" % (sXP, sB, sXP))
        if Opt.ghx:
            a.e("s_bitcmp1_b32 s%d, 3" % sG)
            a.e("s_cselect_b32 s%d, 0x44444444, 0" % sB)
            a.e("s_xor_b32 s%d, s%d, s%d" % (sXP, sXP, sB))
    fo, fw = {"0000": (0, 0), "0101": (0, 1), "0011": (1, 1), "0123": (0, 2)}["".join(t_[0] for t_ in tabs)]
    a.e("s_add_u32 s%d, s%d, s%d" % (sA, sG, sHP))
    a.e("s_bfe_u32 s%d, s%d, 0x%x" % (sCH, sA, fw << 16 | fo))
    if Opt.ghx: a.e("s_lshl2_add_u32 s%d, s%d, s%d" % (sCH, sD, sCH))
    a.e("s_and_b32 s%d, s%d, 0xc00" % (sWH, sWK))
    a.e("v_and_b32 %s, 0xff, v0" % v(vTID))

    def wvoff(a):
        a.e("v_lshrrev_b32 v2, 4, %s" % v(vTID))
        a.e("v_lshrrev_b32 v3, 5, %s" % v(vTID))
        a.e("v_bfi_b32 v3, 3, v2, v3")
        a.e("v_lshlrev_b32 v3, 1, v3")
        a.e("v_xor_b32 v3, v3, %s" % v(vTID))
        a.e("v_and_b32 v3, 15, v3")
        a.e("s_lshl_b32 s%d, s%d, 8" % (sA, sM))
        a.e("v_lshl_add_u32 v3, v3, 4, s%d" % sA)
        a.e("v_mul_u32_u24 v2, 3584, v2")
        a.e("v_add_u32 %s, v2, v3" % v(vDG))
    def qvoff(a):
        a.e("v_lshrrev_b32 v2, 4, %s" % v(vTID))
        a.e("v_and_b32 v2, 2, v2")
        a.e("v_xor_b32 v2, v2, %s" % v(vTID))
        a.e("v_and_b32 v2, 3, v2")
        a.e("s_lshl_b32 s%d, s%d, 6" % (sA, sHP))
        a.e("v_lshl_add_u32 v2, v2, 4, s%d" % sA)
        a.e("v_lshrrev_b32 v3, 2, %s" % v(vTID))
        a.e("v_lshl_add_u32 %s, v3, 10, v2" % v(vDQ))
    def stouch(a):
        if Opt.diag or Opt.probe >= 0: a.e("s_load_dwordx2 %s, s[0:1], 32" % sp(SWO))
        if not Opt.stch: return
        a.e("s_lshr_b32 s%d, s%d, 2" % (sA, sW))
        if Opt.ghx: a.e("s_lshl2_add_u32 s%d, s%d, s%d" % (sA, sD, sA))
        a.e("s_lshl_b32 s%d, s%d, 6" % (sA, sA))
        a.e("s_and_b32 s%d, s%d, 7" % (sB, sG))
        a.e("s_add_u32 s%d, s%d, s%d" % (sA, sA, sB))
        a.e("s_mul_i32 s%d, s%d, 28" % (sA, sA))
        a.e("s_bfe_u32 s%d, s%d, 0x10001" % (sB, sW))
        a.e("s_lshl1_add_u32 s%d, s%d, s%d" % (sB, sM, sB))
        a.e("s_add_u32 s%d, s%d, s%d" % (sA, sA, sB))
        a.e("s_lshl_b32 s%d, s%d, 7" % (sA, sA))
        a.e("s_bitcmp1_b32 s%d, 0" % sW)
        a.e("s_cselect_b64 %s, %s, %s" % (sp(SWKV), sp(SWU), sp(SWG)))
        a.e("s_add_u32 s%d, s%d, s%d" % (SWKV, SWKV, sA))
        a.e("s_addc_u32 s%d, s%d, 0" % (SWKV + 1, SWKV + 1))
        for i in range(Opt.stch):
            a.e("s_load_dwordx2 %s, %s, 0x%x" % (sp(sTMPP), sp(SWKV), 128 * 3584 + i * 8 * 3584 + 60))
    def wsrd(a):
        srd_words(a, [SWG])
        a.e("s_mov_b64 %s, %s" % (sp(SWU + 2), sp(SWG + 2)))

    if Opt.hrot:
        ORDER = [("q", 0)] + [(t_, 2 * h_ + j) for h_ in range(2) for t_, j in (("x", 0), ("x", 1), ("g", 0), ("u", 0), ("g", 1), ("u", 1))]
    else:
        ORDER = [("q", 0)] + [("x", j) for j in range(4)] + [(t_, j) for j in range(4) for t_ in "gu"]
    def block(items):
        out = []; lastc = None; lastw = None
        for c, kind, j in items:
            s = c % 3; pre = []
            if c != lastc:
                if c: pre.append("s_bfe_u32 s%d, s%d, 0x%x" % (sCH, sXP, 0x30000 + 4 * c))
                lastc = c; lastw = None
            fam = "w" if kind in "gu" else kind
            rot = Opt.hrot and fam != "q"
            if lastw is None or lastw[0] != fam or (rot and lastw[1] >> 1 != j >> 1):
                pre.append({"q": "s_lshl_b32 s%d, s%d, 16" % (sOFFW, sCH), "x": "s_lshl_b32 s%d, s%d, 7" % (sOFFW, sCH),
                            "w": "s_mul_i32 s%d, s%d, %d" % (sOFFW, sCH, 64 * 3584)}[fam])
                if rot: pre.append("s_%s_u32 s%d, s%d, s%d" % ("sub" if j >> 1 else "add", sOFFW, sOFFW, sRX if fam == "x" else sRW))
                lastw = (fam, 0)
            if lastw[1] != j:
                pre.append("s_add_u32 s%d, s%d, 0x%x" % (sOFFW, sOFFW, (j - lastw[1]) * (0x8000 if fam == "x" else 16 * 3584)))
                lastw = (fam, j)
            m0c, vo, rs = {"q": (L_WQ + s * 4096, vDQ, SWQ), "x": (L_X + s * 16384 + j * 4096, vDX, SX),
                           "g": (L_G + s * 16384 + j * 4096, vDG, SWG), "u": (L_U + s * 16384 + j * 4096, vDG, SWU)}[kind]
            nt = " nt" if Opt.ntx & (1 if rs == SX else 2) else ""
            out.append(("s_add_u32 m0, s%d, 0x%x\n%s\nbuffer_load_dwordx4 %s, %s, s%d offen%s lds"
                        % ((sM0B + (j >> 1)) if rot else sWH, m0c, "\n".join(pre) or "s_nop 0", v(vo), srd(rs), sOFFW, nt), "c%d" % c))
        return out
    def part(c, role): return [(c, k_, j) for k_, j in ORDER if (k_ in "gu") == (role == "A")]

    def rdsetup(a):
        setup_rd(a)
        a.e("v_lshl_add_u32 %s, v3, 3, v2" % v(vWA))
        a.e("v_lshlrev_b32 %s, 8, %s" % (v(vWA), v(vWA)))
        a.e("v_lshl_add_u32 %s, v4, 3, %s" % (v(vWA), v(vWA)))
        a.e("v_and_b32 v5, 1, v3")
        a.e("v_lshl_add_u32 v2, v5, 2, v2")
        a.e("s_lshl_b32 s%d, s%d, 2" % (sA, sHI))
        a.e("s_and_b32 s%d, s%d, 1" % (sB, sLO))
        a.e("s_lshl_b32 s%d, s%d, 1" % (sB, sB))
        a.e("s_add_u32 s%d, s%d, s%d" % (sA, sA, sB))
        a.e("v_xor_b32 v2, s%d, v2" % sA)
        a.e("v_lshl_add_u32 %s, v2, 5, %s" % (v(vWA), v(vWA)))
        a.e("v_xor_b32 %s, 32, %s" % (v(vWA + 1), v(vWA)))
        a.e("v_add_u32 %s, 0x%x, %s" % (v(vWA + 2), L_U - L_G, v(vWA)))
        a.e("v_add_u32 %s, 0x%x, %s" % (v(vWA + 3), L_U - L_G, v(vWA + 1)))
        a.e("s_lshl_b32 s%d, s%d, 12" % (sA, sLO))
        a.e("s_add_u32 s%d, s%d, 0x%x" % (sA, sA, L_X))
        a.e("v_add_u32 %s, s%d, %s" % (v(vXA), sA, v(vXA)))
        a.e("v_xor_b32 %s, 0x1000, %s" % (v(vXA + 1), v(vXA)))
        a.e("v_xor_b32 %s, 64, %s" % (v(vXA + 2), v(vXA)))
        a.e("v_xor_b32 %s, 64, %s" % (v(vXA + 3), v(vXA + 1)))
        a.e("v_add_u32 %s, 0x%x, %s" % (v(vQA), L_WQ, v(vQA)))

    a.e("s_cmp_ge_u32 s%d, 4" % sW)
    a.e("s_cbranch_scc1 L_setB")
    late = collect(setup_oclr) + collect(setup_ones) + [("; later", None)] + collect(setup_attn)
    words = collect(lambda t: srd_words(t, [SWS, SKV, SDBG, SWD, SWO, SOUT]))
    late = [x for x in late if x not in words]
    oclr = [x for x in late if x[1] == "oclr"]
    if Opt.olate: late = [x for x in late if x[1] != "oclr"]
    else: oclr = []
    words += [("v_mov_b32 %s, 0" % v(r_), None) for r_ in (vGA, vWDV, vFLA, vHA, vOUTA)]
    st = collect(rdsetup) + words + late[:Opt.fillpre]
    cut = late.index(("; later", None)) if Opt.bidle else len(late)
    fills = {"A": late[Opt.fillpre:], "B": late[Opt.fillpre:max(cut, Opt.fillpre)]}
    idleB = late[max(cut, Opt.fillpre):]
    vms = {}
    wsrd(a); wvoff(a)
    a.e("s_waitcnt lgkmcnt(0)")
    a.stamp(2)
    if Opt.spos == 0: stouch(a)
    put(a, block(part(0, "A")))
    a.e("s_branch L_setA")
    vms["A"] = a.vm; a.vm = []
    a.lab("L_setB")
    srd_words(a, [SX]); xvoff(a, vTID)
    a.e("s_waitcnt lgkmcnt(0)")
    a.stamp(2)
    if Opt.spos == 0: stouch(a)
    put(a, block(part(0, "B")[1:]))
    srd_words(a, [SWQ]); qvoff(a)
    put(a, block(part(0, "B")[:1]))
    vms["B"] = a.vm
    for role in "BA":
        a.vm = vms[role]
        if role == "A": a.lab("L_setA")
        if Opt.spos == 1: stouch(a)
        table(a)
        setup_ids(a)
        if role == "A": srd_words(a, [SX, SWQ])
        else: wsrd(a)
        def touches():
            tm = sum(0xff << (8 * i) for i in range(4) if Opt.tch >> i & 1)
            setex = "s_bitcmp1_b32 s%d, 3\ns_cselect_b32 exec_lo, 0, 0x%x\ns_cselect_b32 exec_hi, 0x%x, 0" % (sG, tm, tm) if Opt.ghx \
                    else "s_mov_b32 exec_lo, 0x%x\ns_mov_b32 exec_hi, 0" % tm
            if Opt.tlb & 2 and role == "B":
                a.e("s_and_b32 s%d, s%d, 7" % (sA, sG))
                a.e("v_lshl_add_u32 v2, v0, 3, s%d" % sA)
                a.e("v_mul_u32_u24 v3, 3584, v2")
                a.e("s_and_b32 s%d, s%d, 1" % (sB, sW))
                a.e("s_lshl1_add_u32 s%d, s%d, s%d" % (sA, sM, sB))
                a.e("s_lshl_b32 s%d, s%d, 7" % (sA, sA))
                a.e(setex)
                a.e("s_cmp_ge_u32 s%d, 6" % sW)
                a.e("s_cbranch_scc1 L_tlbu")
                a.e("buffer_load_dword %s, v3, %s, s%d offen" % (v(vPOLL), srd(SWG), sA))
                a.e("s_branch L_tlbe")
                a.lab("L_tlbu")
                a.e("buffer_load_dword %s, v3, %s, s%d offen" % (v(vPOLL), srd(SWU), sA))
                a.lab("L_tlbe")
                a.e("s_mov_b64 exec, -1")
                a.vm.append("tlb")
            if Opt.tlb & 12 and role == "A":
                a.e("s_cmp_lg_u32 s%d, 0" % sW)
                a.e("s_cbranch_scc1 L_tlbx")
                a.e("s_and_b32 s%d, s%d, 7" % (sA, sG))
                a.e("v_lshl_add_u32 v2, v0, 3, s%d" % sA)
                a.e("v_lshlrev_b32 v3, 10, v2")
                a.e("s_lshl_b32 s%d, s%d, 6" % (sA, sHP))
                a.e(setex if Opt.tlb & 4 else "s_mov_b64 exec, 1")
                a.e("buffer_load_dword %s, v3, %s, s%d offen" % (v(vPOLL), srd(SWQ), sA))
                a.e("s_branch L_tlby")
                a.lab("L_tlbx")
                a.e("s_and_b32 s%d, s%d, 3" % (sA, sM))
                a.e("s_lshl2_add_u32 s%d, s%d, s%d" % (sA, sG, sA))
                a.e("s_lshl_b32 s%d, s%d, 15" % (sA, sA))
                a.e("v_lshl_add_u32 v3, v0, 10, s%d" % sA)
                a.e("s_lshr_b32 s%d, s%d, 3" % (sA, sG))
                a.e("s_lshl2_add_u32 s%d, s%d, s%d" % (sA, sA, sW) if Opt.ghx else "s_mov_b32 s%d, s%d" % (sA, sW))
                a.e("s_lshl_b32 s%d, s%d, 7" % (sA, sA))
                a.e("s_bitcmp1_b32 %d, s%d" % (Opt.tch if Opt.tlb & 8 else 0, sW))
                a.e("s_cselect_b32 exec_lo, -1, 1")
                a.e("s_mov_b32 exec_hi, 0")
                a.e("buffer_load_dword %s, v3, %s, s%d offen" % (v(vPOLL), srd(SX), sA))
                a.lab("L_tlby")
                a.e("s_mov_b64 exec, -1")
                a.vm.append("tlb")
        if Opt.tpos == 0: touches()
        if Opt.startbar: a.e("s_barrier")
        npre = min(Opt.npre, 8) if role == "A" else 5
        pn = block(part(1, role)[:npre])
        rest = st + (collect(qvoff) + collect(lambda t: xvoff(t, vTID)) if role == "A" else collect(wvoff))
        gap = len(rest) // (npre + Opt.pregap) + 1
        if Opt.tpos == 2:
            put(a, pn); touches(); npre = 0
        if Opt.tpos == 3 and role == "B":
            put(a, pn); touches(); npre = 0
        for i in range(npre):
            put(a, pn[:1]); pn = pn[1:]
            put(a, rest[:gap]); rest = rest[gap:]
        put(a, rest)
        if Opt.tpos == 1 or (Opt.tpos == 3 and role == "A"): touches()
        a.e("s_mov_b64 vcc, %d" % (-1 if role == "A" else 0))
        if role == "A":
            a.waitvm("c0", lgkm=True)
        else:
            a.e("s_setprio 1")
            a.waitvm("c0", lgkm=True)
            a.e("s_branch L_k0")
        vms[role] = a.vm
    stream = part(1, "A")[min(Opt.npre, 8):] + [(c, k_, j) for c in range(2, 8) for k_, j in ORDER]
    qa = [int(x, 16) for x in Opt.qa]; qb = [int(x, 16) for x in Opt.qb]
    def take(n, cmax):
        m = 0
        while m < n and m < len(stream) and stream[m][0] <= cmax: m += 1
        r_ = stream[:m]; del stream[:m]
        return block(r_)
    a.lab("L_k0")
    a.vm = vms["A"]
    ool = Asm()
    def dmablock(name, role, items, wait=None):
        a.e("s_cbranch_vcc%s L_%s" % ("nz" if role == "A" else "z", name))
        if wait: a.waitvm(wait, lgkm=True)
        a.lab("L_%s_r" % name)
        ool.lab("L_%s" % name)
        ool.vm = a.vm if role == "A" else vms["B"]
        for it_ in items:
            put(ool, [it_])
            fp = Opt.fillper if role == "A" or not Opt.bidle else 2
            put(ool, fills[role][:fp]); fills[role] = fills[role][fp:]
        if name in ("d7", "e7"): put(ool, fills[role]); fills[role] = []
        if wait: ool.waitvm(wait, lgkm=True)
        if role == "B": vms["B"] = ool.vm
        ool.e("s_branch L_%s_r" % name)
    a.ool = ool.l

    def fr(k):
        b = vF1 + 36 * (k % 2)
        return dict(x=b, w=b + 16, q=b + 32)
    def reads(k):
        c, s = divmod(k, 2); f = fr(k); sl = c % 3
        wo = sl * 16384 + s * 8192
        W = lambda i: [rdtr(f['w'] + 4 * i, vWA + i, wo), rdtr(f['w'] + 4 * i + 2, vWA + i, wo + 1024)]
        X = [rd128(f['x'] + 4 * b, vXA + 2 * s + (b >> 1), sl * 16384 + (b & 1) * 2048) for b in range(4)]
        return W(0) + X + W(2) + W(1) + W(3) + [rdtr(f['q'], vQA, sl * 4096 + s * 2048), rdtr(f['q'] + 2, vQA, sl * 4096 + s * 2048 + 256)]
    a.e("s_barrier")
    a.stamp(3)
    if Opt.kdiag or Opt.probe >= 18:
        kstamp(a, 2)
        a.e("s_waitcnt lgkmcnt(0)")
    for r in reads(0): a.e(r)
    if qa[0]: dmablock("d2", "A", take(qa[0], 2))
    for k in range(16):
        c, s = divmod(k, 2); f = fr(k)
        z = lambda x: None if k == 0 else x
        mf = []
        for n_, i in enumerate((0, 2, 1, 3)):
            for b in (range(4) if n_ % 2 == 0 else range(3, -1, -1)):
                d = vACC + 16 * b + 4 * i
                mf.append(mfma16(d, f['w'] + 4 * i, f['x'] + 4 * b, z(d)))
        for b in range(2): mf.append(mfma16(vAQ + 4 * b, f['q'], f['x'] + 4 * b, z(vAQ + 4 * b)))
        rds = reads(k + 1) if k < 15 else []
        if s == 0:
            a.e("s_waitcnt lgkmcnt(6)")
            for i, m in enumerate(mf):
                if i == 8: a.e("s_waitcnt lgkmcnt(8)")
                a.e(m)
                if i < len(rds): a.e(rds[i])
            continue
        a.e("s_waitcnt lgkmcnt(8)")
        for m in mf[:4]: a.e(m)
        if c <= 5:
            dmablock("e%d" % (c + 2), "B", take(qb[c], c + 2), "c%d" % (c + 1))
            assert not any(x[0] <= c + 1 for x in stream)
        if c == 7:
            a.e("s_waitcnt lgkmcnt(0)")
        elif c == 6:
            a.e("s_waitcnt lgkmcnt(0)")
            a.e("s_cbranch_vccz L_st7")
            a.e("s_setprio 1")
            a.e("s_waitcnt vmcnt(0)")
            a.e("s_barrier")
            a.lab("L_st7")
        else:
            a.e("s_barrier")
        if c < 7 and ((Opt.kdiag == 1 and Opt.diag) or Opt.probe == 21 + c):
            kstamp(a, 3 + c)
            a.e("s_waitcnt lgkmcnt(0)")
        if c + 3 < 8:
            items = take(qa[c + 1], c + 3)
            dmablock("d%d" % (c + 3), "A", items)
        for i, m in enumerate(mf[4:]):
            a.e(m)
            if i < len(rds): a.e(rds[i])
        if k == 11: assert not stream and not fills["A"] and not fills["B"]
        if k == 11:
            a.e("s_cbranch_vccnz L_st6")
            a.e("s_setprio 0")
            nm = next((i for i, x in enumerate(idleB) if "0xdddd" in x[0]), 0)
            a.e("s_cmp_lg_u32 s%d, 4" % sW)
            a.e("s_cbranch_scc1 L_nopoll")
            a.e("buffer_load_dword %s, off, %s, 0 sc1" % (v(vPOLL), srd(SDBG)))
            a.lab("L_nopoll")
            put(a, idleB[:nm]); idleB = idleB[nm:]
            a.wait0()
            spin_counter(a, "kvf", True, 4)
            a.e("s_barrier")
            put(a, kv_first_loads(a, True) + oclr + idleB)
            a.lab("L_st6")
    a.kvA = (kv_first_loads(a) + oclr)[2:]
    a.stamp(4)

def phase1_L(a):
    a.lab("L_light")
    a.vm = []
    a.e("s_waitcnt lgkmcnt(0)")
    ptr_loads(a, ((SWKV, 16), (SWV, 24), (SGATE, 72), (SWO, 32)))
    srd_words(a, [SWKV, SWV, SGATE, SX])
    xvoff(a, 0)
    a.e("v_and_b32 v2, 63, v0")
    a.e("v_lshlrev_b32 %s, 4, v2" % v(vL16))
    a.e("s_sub_u32 s%d, s%d, 14" % (sCNT, sM))
    a.e("s_lshl_b32 s%d, s%d, 16" % (sOLD, sCNT))
    a.e("s_lshl_b32 s%d, s%d, 13" % (sHST, sCNT))
    a.e("s_add_u32 s%d, s%d, s%d" % (sWH, sHST, sWK))
    a.e("s_xor_b32 s%d, s%d, 0x2000" % (sHST, sHST))
    a.e("s_add_u32 s%d, s%d, 0x2000" % (sA, sWK))
    a.e("s_waitcnt lgkmcnt(0)")
    a.stamp(2)
    def xdma(c, base, so):
        a.vmop("s_add_u32 m0, s%d, 0x%x\ns_nop 0\nbuffer_load_dwordx4 %s, %s, s%d offen offset:%d lds"
               % (base, LL_X + c * 16384 - c * 128, v(vDX), srd(SX), so, c * 128), "c%d" % c)
    def wdma(u):
        for t, rs in enumerate((SWKV, SWV)):
            a.vmop("s_add_u32 m0, s%d, 0x%x\ns_nop 0\nbuffer_load_dwordx4 %s, %s, s%d offen lds"
                   % (sWK, LL_W + t * 16384 + u * 8192, v(vL16), srd(rs), sA if u else sWK), "w")
    wdma(0)
    a.vmop("s_mov_b32 m0, s%d\ns_nop 0\nbuffer_load_dwordx4 %s, %s, 0 offen lds" % (sHST, v(vL16), srd(SGATE)), "w")
    for c in range(8):
        if c == 4: wdma(1)
        xdma(c, sWH, sOLD)
        if c in (1, 3, 5): a.e("s_barrier")
    setup_ids(a)
    srd_words(a, [SWQ])
    setup_rd(a)
    a.e("v_lshrrev_b32 v3, 5, v0")
    a.e("v_bfrev_b32 v5, v4")
    a.e("v_lshrrev_b32 v5, 30, v5")
    a.e("s_cmp_ge_u32 s%d, 2" % sLO)
    a.e("s_cselect_b64 vcc, -1, 0")
    a.e("v_cndmask_b32 v4, v5, v4, vcc")
    a.e("v_lshl_add_u32 %s, v3, 3, v2" % v(vWA))
    a.e("v_lshlrev_b32 %s, 5, %s" % (v(vWA), v(vWA)))
    a.e("v_lshl_add_u32 %s, v4, 3, %s" % (v(vWA), v(vWA)))
    a.e("s_lshr_b32 s%d, s%d, 1" % (sA, sLO))
    a.e("s_lshl_b32 s%d, s%d, 14" % (sA, sA))
    a.e("s_add_u32 s%d, s%d, 0x%x" % (sA, sA, LL_W))
    a.e("v_add_u32 %s, s%d, %s" % (v(vWA), sA, v(vWA)))
    a.e("v_lshl_add_u32 %s, v3, 4, s%d" % (v(vWA + 1), sHST))
    a.e("s_and_b32 s%d, s%d, 1" % (sA, sLO))
    a.e("s_lshl_b32 s%d, s%d, 1" % (sB, sCNT))
    a.e("s_add_u32 s%d, s%d, s%d" % (sCNT, sA, sB))
    a.e("s_lshl_b32 s%d, s%d, 12" % (sA, sCNT))
    a.e("v_and_b32 v2, 31, v0")
    a.e("v_lshrrev_b32 v4, 1, v0")
    a.e("v_lshlrev_b32 v5, 1, v0")
    a.e("v_bfi_b32 v4, 4, v4, v5")
    a.e("v_bfi_b32 v4, 12, v4, v2")
    a.e("v_cndmask_b32 v2, v2, v4, vcc")
    a.e("v_bfe_u32 v4, v2, 1, 3")
    a.e("v_xor_b32 v4, v4, v3")
    a.e("v_lshlrev_b32 v4, 4, v4")
    a.e("v_lshl_add_u32 v4, v2, 7, v4")
    a.e("v_add_u32 %s, s%d, v4" % (v(vLX), sA))
    for s in range(1, 4): a.e("v_xor_b32 %s, %d, %s" % (v(vLX + s), 32 * s, v(vLX)))
    for s in range(4): a.e("v_add_u32 %s, 0x10000, %s" % (v(vLX + 4 + s), v(vLX + s)))
    a.e("s_waitcnt lgkmcnt(0)")
    setup_oclr(a)
    vm0 = list(a.vm)
    a.e("s_cmp_lg_u32 s%d, 0" % sHI)
    a.e("s_cbranch_scc1 L_lB")
    a.e("s_not_b64 %s, %s" % (sp(sTMPP), sp(sVM)))
    a.e("s_cmp_ge_u32 s%d, 2" % sLO)
    a.e("s_cbranch_scc1 L_lV")
    def chain(kind):
        a.vm = list(vm0)
        def fr(k):
            b = vFR + 8 * (k % 4)
            return b, b + 4
        def reads(k):
            c, s = divmod(k, 4); x, w = fr(k)
            r = [rd128(x, vLX + s + 4 * (c >> 2), (c & 3) * 16384), rdtr(w, vWA, k * 512), rdtr(w + 2, vWA, k * 512 + 128)]
            if kind == "K":
                r += ["s_mov_b64 exec, %s" % sp(sTMPP), rd128(w, vWA + 1, k * 32), "s_mov_b64 exec, -1"]
            return r
        for q in range(4):
            a.waitvm("c%d" % (2 * q + 1))
            a.e("s_barrier")
            nr = 4 if kind == "K" else 3
            for k in range(8 * q, 8 * q + 2):
                for r in reads(k): a.e(r)
            for k in range(8 * q, 8 * q + 8):
                if k + 2 < 8 * q + 8:
                    for r in reads(k + 2): a.e(r)
                left = min(2, 8 * q + 7 - k)
                a.e("s_waitcnt lgkmcnt(%d)" % (left * nr))
                x, w = fr(k)
                cc = None if k == 0 else vACC
                a.e(mfma(vACC, w, x, cc) if kind == "K" else mfma(vACC, x, w, cc))
        a.e("s_lshl_b32 s%d, s%d, 2" % (sA, sG))
        a.e("s_add_u32 s%d, s%d, s%d" % (sA, sA, sCNT))
        a.e("s_nop 12")
        if kind == "K":
            a.e("s_mov_b32 s%d, 0x%x" % (sC, f2u(0.25 * math.log2(math.e))))
            for i in range(8): a.e("v_mul_f32 %s, s%d, %s" % (v(vACC + i), sC, v(vACC + i)))
            a.e("v_mul_f32 %s, 0x%x, %s" % (v(vACC + 8), f2u(-math.log2(math.e)), v(vACC + 8)))
            a.e("v_exp_f32 %s, %s" % (v(vACC + 8), v(vACC + 8)))
            for i in range(4): a.e("v_cvt_pk_bf16_f32 %s, %s, %s" % (v(vFR + i), v(vACC + 2 * i), v(vACC + 2 * i + 1)))
            a.e("v_add_f32 %s, 1.0, %s" % (v(vACC + 8), v(vACC + 8)))
            a.e("v_rcp_f32 %s, %s" % (v(vACC + 8), v(vACC + 8)))
            a.e("s_add_u32 s%d, s%d, 63" % (sB, sA))
            a.e("s_and_b32 s%d, s%d, 63" % (sB, sB))
            a.e("s_lshl_b32 s%d, s%d, 11" % (sB, sB))
            a.e("buffer_store_dwordx4 %s, %s, %s, s%d offen sc1" % (v(vFR, 4), v(vL16), srd(SKV), sB))
            a.e("s_lshl_b32 s%d, s%d, 7" % (sB, sA))
            a.e("s_add_u32 s%d, s%d, 0x%x" % (sB, sB, WS_G))
            a.e("s_mov_b32 exec_hi, 0")
            a.e("buffer_store_dword %s, %s, %s, s%d offen sc1" % (v(vACC + 8), v(vGA), srd(SWS), sB))
            a.e("s_mov_b64 exec, -1")
        else:
            for i in range(8): a.e("v_cvt_pk_bf16_f32 %s, %s, %s" % (v(vFR + i), v(vACC + 2 * i), v(vACC + 2 * i + 1)))
            a.e("v_bfe_u32 v2, v0, 4, 1")
            a.e("v_add_u32 v2, s%d, v2" % sA)
            a.e("v_and_b32 v2, 63, v2")
            a.e("v_lshl_add_u32 v2, v2, 11, %s" % v(vL16))
            for i in range(4): a.e("v_cndmask_b32 %s, %s, %s, %s" % (v(vFR + i), v(vFR + 4 + i), v(vFR + i), sp(sVM)))
            a.e("buffer_store_dwordx4 %s, v2, %s, 0 offen offset:1024 sc1" % (v(vFR, 4), srd(SKV)))
        a.e("s_branch L_lJ")
    chain("K")
    a.lab("L_lV")
    chain("V")
    a.lab("L_lB")
    a.vm = list(vm0)
    a.e("s_cmp_lg_u32 s%d, 14" % sM)
    a.e("s_cbranch_scc1 L_nozf")
    a.e("s_cmp_lg_u32 s%d, 4" % sW)
    a.e("s_cbranch_scc1 L_nozf")
    a.e("v_lshlrev_b32 v2, 7, v0")
    a.e("s_lshl_b32 s%d, s%d, 11" % (sA, sG))
    a.e("s_add_u32 s%d, s%d, 0x%x" % (sA, sA, WS_HFLAG))
    a.e("s_mov_b64 exec, 0xffff")
    a.e("buffer_store_dword %s, v2, %s, s%d offen sc1" % (v(vZERO), srd(SWS), sA))
    a.e("s_mov_b64 exec, -1")
    a.lab("L_nozf")
    for q in range(4):
        a.waitvm("c%d" % (2 * q + 1))
        a.e("s_barrier")
    a.lab("L_lJ")
    a.e("v_lshrrev_b32 v3, 2, v0")
    a.e("v_lshlrev_b32 v3, 10, v3")
    a.e("v_lshrrev_b32 v4, 5, v0")
    a.e("v_lshlrev_b32 v4, 1, v4")
    a.e("v_xor_b32 v4, v4, v0")
    a.e("v_and_b32 v4, 3, v4")
    a.e("v_lshl_add_u32 v3, v4, 4, v3")
    a.e("s_lshl_b32 s%d, s%d, 14" % (sA, sW))
    a.e("s_lshl_b32 s%d, s%d, 6" % (sB, sHP))
    a.e("s_add_u32 s%d, s%d, s%d" % (sA, sA, sB))
    a.e("v_add_u32 %s, s%d, v3" % (v(vDQ), sA))
    a.e("s_xor_b32 s%d, s%d, 0x2000" % (sWH, sWH))
    a.e("s_xor_b32 s%d, s%d, 0x10000" % (sOLD, sOLD))
    a.wait0(lgkm=True)
    a.e("s_barrier")
    a.e("s_cmp_lg_u32 s%d, 0" % sW)
    a.e("s_cbranch_scc1 L_noat")
    a.e("s_mov_b64 exec, 1")
    a.e("buffer_atomic_add %s, off, %s, 0 sc1" % (v(vONE), srd(SDBG)))
    a.e("s_mov_b64 exec, -1")
    a.lab("L_noat")
    a.stamp(3)
    for c in range(8): xdma(c, sWH, sOLD)
    for p in range(4):
        a.e("s_add_u32 m0, s%d, 0x%x" % (sWK, LL_WQ + p * 8192))
        a.e("s_mov_b32 s%d, 0x%x" % (sA, p * 128 * 1024))
        a.e("buffer_load_dwordx4 %s, %s, s%d offen lds" % (v(vDQ), srd(SWQ), sA))
    setup_ones(a)
    setup_attn(a)
    if Opt.touch & 2:
        a.e("s_lshl_b32 s%d, s%d, 1" % (sA, sG))
        a.e("s_add_u32 s%d, s%d, s%d" % (sA, sA, sM))
        a.e("s_sub_u32 s%d, s%d, 14" % (sA, sA))
        a.e("s_lshl_b32 s%d, s%d, 3" % (sA, sA))
        a.e("s_add_u32 s%d, s%d, s%d" % (sA, sA, sW))
        a.e("v_lshlrev_b32 v2, 15, v0")
        a.e("s_lshl_b32 s%d, s%d, 7" % (sA, sA))
        a.e("buffer_load_dword %s, v2, %s, s%d offen" % (v(vPOLL), srd(SWO), sA))
        a.e("buffer_load_dword %s, v2, %s, s%d offen" % (v(vPOLL), srd(SWD), sA))
    a.e("s_lshl_b32 s%d, s%d, 12" % (sA, sLO))
    a.e("v_add_u32 %s, s%d, %s" % (v(vXA), sA, v(vXA)))
    a.e("v_xor_b32 %s, 64, %s" % (v(vXA + 1), v(vXA)))
    a.e("v_add_u32 %s, 0x10000, %s" % (v(vXA + 2), v(vXA)))
    a.e("v_add_u32 %s, 0x10000, %s" % (v(vXA + 3), v(vXA + 1)))
    a.e("v_add_u32 %s, 0x%x, %s" % (v(vQA), LL_WQ, v(vQA)))
    a.e("s_waitcnt vmcnt(%d)" % (2 if Opt.touch & 2 else 0))
    a.e("s_barrier")
    def fr(k): return vFR + 12 * (k % 3)
    def reads(k):
        c, s = divmod(k, 2); f = fr(k)
        return [rd128(f + 4 * b, vXA + s + 2 * (c >> 2), (c & 3) * 16384 + b * 2048) for b in range(2)] + \
               [rdtr(f + 8, vQA, k * 2048), rdtr(f + 10, vQA, k * 2048 + 256)]
    for k in range(2):
        for r in reads(k): a.e(r)
    for k in range(16):
        a.e("s_waitcnt lgkmcnt(%d)" % (4 * min(1, 15 - k)))
        for b in range(2): a.e(mfma16(vAQ + 4 * b, fr(k) + 8, fr(k) + 4 * b, None if k == 0 else vAQ + 4 * b))
        if k + 2 < 16:
            for r in reads(k + 2): a.e(r)
    spin_counter(a, "kvl", False)
    a.e("s_barrier")
    for s, t in kv_first_loads(a): a.e(s)
    a.wait0()
    a.stamp(4)
    a.e("s_branch L_join")

def gelu_tile(a, ti, scalar=False):
    acc = vACC + 16 * ti
    t = vFR
    o = vFR + 8 + 4 * ti
    pk = lambda r: v(r, 2)
    if scalar:
        for i in range(8): a.e("v_mul_f32 %s, %s, %s" % (v(t + i), v(acc + i), v(acc + i)))
        for i in range(8): a.e("v_fma_f32 %s, %s, %s, %s" % (v(t + i), v(t + i), v(vC0 + 1), v(vC0)))
        for i in range(8): a.e("v_mul_f32 %s, %s, %s" % (v(t + i), v(t + i), v(acc + i)))
        for i in range(8): a.e("v_exp_f32 %s, %s" % (v(t + i), v(t + i)))
        for i in range(8): a.e("v_add_f32 %s, 1.0, %s" % (v(t + i), v(t + i)))
        for i in range(8): a.e("v_rcp_f32 %s, %s" % (v(t + i), v(t + i)))
        for i in range(8): a.e("v_mul_f32 %s, %s, %s" % (v(acc + i), v(acc + i), v(acc + 8 + i)))
        for i in range(8): a.e("v_mul_f32 %s, %s, %s" % (v(acc + i), v(acc + i), v(t + i)))
    R4, R8 = (range(0), range(0)) if scalar else (range(4), range(8))
    for i in R4: a.e("v_pk_mul_f32 %s, %s, %s" % (pk(t + 2 * i), pk(acc + 2 * i), pk(acc + 2 * i)))
    for i in R4: a.e("v_pk_fma_f32 %s, %s, %s, %s op_sel:[0,1,0] op_sel_hi:[1,1,0]" % (pk(t + 2 * i), pk(t + 2 * i), pk(vC0), pk(vC0)))
    for i in R4: a.e("v_pk_mul_f32 %s, %s, %s" % (pk(t + 2 * i), pk(t + 2 * i), pk(acc + 2 * i)))
    for i in R8: a.e("v_exp_f32 %s, %s" % (v(t + i), v(t + i)))
    for i in R4: a.e("v_pk_add_f32 %s, %s, 1.0 op_sel_hi:[1,0]" % (pk(t + 2 * i), pk(t + 2 * i)))
    for i in R8: a.e("v_rcp_f32 %s, %s" % (v(t + i), v(t + i)))
    for i in R4: a.e("v_pk_mul_f32 %s, %s, %s" % (pk(acc + 2 * i), pk(acc + 2 * i), pk(acc + 8 + 2 * i)))
    for i in R4: a.e("v_pk_mul_f32 %s, %s, %s" % (pk(acc + 2 * i), pk(acc + 2 * i), pk(t + 2 * i)))
    for i in range(4): a.e("v_cvt_pk_bf16_f32 %s, %s, %s" % (v(o + i), v(acc + 2 * i), v(acc + 2 * i + 1)))
    a.vmop("buffer_store_dwordx4 %s, %s, %s, s%d offen offset:%d sc1" % (v(o, 4), v(vHA), srd(SWS), sHST2 if ti >> 1 else sHST, (ti & 1) * 256), "hst")

def Yseg(hset, toggle=False):
    out = []
    for t in range(2):
        extra = False and hset < 2 and t == Opt.xtile
        pos = [int(x, 17) for x in (Opt.ypos0 if hset is None else Opt.ypos2 if extra else Opt.ypos1)]
        S, Sn = vS + 16 * t, vS + 16 * (1 - t)
        K, V0, V1 = vKF + 4 * t, vV + 8 * t, vV + 8 * t + 4
        for e in range(1, 17):
            out.append("v_exp_f32 %s, %s" % (v(S + e - 1), v(S + e - 1)))
            if e == pos[0]: out.append(smfmac(vO, V1, Sn + 8))
            if e == pos[1]: out.append(mfma(Sn, K, vQ, None))
            if e == pos[2]: out.append(smfmac(vO, V0, S))
            if hset is not None:
                if e == 13 and t == 1 and toggle:
                    out.append("v_xor_b32 %s, 0x4000, %s" % (v(vKVB), v(vKVB)))
                if e == pos[3]: out.append(mfma(vD + 16 * t, vWF + 4 * t, vH + 4 * hset, vD + 16 * t))
                if extra and e == pos[4]: out.append(mfma(vD + 16 * hset, vWX + 4 * hset, vH + 16, vD + 16 * hset))
    return out

def kv_reads(off, vKVA=vKVA):
    r = [rd128(vKF, vKVA, off), rd128(vKF + 4, vKVA, off + 2048), "s_mov_b64 exec, %s" % sp(sVM)]
    for t in range(2):
        r += [rd128(vV + 8 * t, vKVA, off + 2048 * t + 1024), rd128(vV + 8 * t + 4, vKVA, off + 2048 * t + 1280)]
    r.append("s_mov_b64 exec, -1")
    return r
def wd_reads(dst, addr, off):
    r = []
    for c in range(2):
        r += [rdtr(dst + 4 * c, addr, off + 512 * c), rdtr(dst + 4 * c + 2, addr, off + 512 * c + 1024)]
    return r

def wdrow(sg): return (32 * (sg >> 1) + 8 * (sg & 1)) * 1024

def attention(a, role, pre0=None):
    A = role == "A"
    def kvdma(u):
        a.vmop("s_add_u32 m0, s%d, 0x%x\ns_add_u32 s%d, s%d, 0x%x\nbuffer_load_dwordx4 %s, %s, s%d offen sc1 lds"
               % (sWK, L_KV + (u % 4) * 8192, sA, sWK, u * 8192, v(vL16), srd(SKV), sA), "kv%d" % u)
    def wddma(sg):
        a.vmop("s_add_u32 m0, s%d, 0x%x\ns_add_u32 s%d, s%d, 0x%x\nbuffer_load_dwordx4 %s, %s, s%d offen lds"
               % (sWK, L_WD + (sg % 4 if sg < 23 or sg == 27 else sg - 19) * 8192, sA, sWDOFF, wdrow(sg), v(vWDV), srd(SWD), sA), "wd%d" % sg)
    def wodma(j):
        a.vmop("s_add_u32 m0, s%d, 0x%x\ns_add_u32 s%d, s%d, 0x%x\nbuffer_load_dwordx4 %s, %s, s%d offen lds"
               % (sWK, L_WO + j * 8192, sA, sB, j * 16384, v(vWDV), srd(SWO), sA), "wo")
    def hload(sg, dst):
        a.vmop("s_add_u32 s%d, s%d, 0x%x\nbuffer_load_dwordx4 %s, %s, %s, s%d offen sc1"
               % (sA, sHOFF, sg * 1024, v(dst, 4), v(vL16), srd(SWS), sA), "h%d" % sg)
    for n in range(12):
        if not A and n == 0: a.e("s_barrier")
        if n % 2 == 1: astamp(a, 2 + n // 2)
        tags = []
        if A and n % 2 == 1: tags.append("kv%d" % ((n + 1) // 2))
        if not A and n % 2 == 0: tags.append("kv%d" % ((n + 2) // 2))
        if n == (3 if A else 2): tags.append("hst")
        if n == 9: tags.append("wd27")
        if n == 11: tags.append("wd0")
        if n == 9 and A:
            a.e("s_cmp_lg_u32 s%d, 0" % sW)
            a.e("s_cbranch_scc1 L_hf_done")
            a.e("s_mov_b32 s%d, 0x4000" % sB)
            a.e("s_waitcnt vmcnt(0)")
            a.lab("L_hf_chk")
            a.e("v_cmp_ne_u32 vcc, 1, %s" % v(vPOLL))
            a.e("s_cbranch_vccz L_hf_done")
            a.e("s_sleep 2")
            a.e("buffer_load_dword %s, %s, %s, 0 offen sc1" % (v(vPOLL), v(vFLA), srd(SWS)))
            a.e("s_sub_u32 s%d, s%d, 1" % (sB, sB))
            a.e("s_cmp_lg_u32 s%d, 0" % sB)
            a.e("s_waitcnt vmcnt(0)")
            a.e("s_cbranch_scc1 L_hf_chk")
            a.lab("L_hf_done")
        a.waitvm(tags)
        if n == 5 and Opt.diag == 3 and A:
            a.e("v_mov_b32 v2, s%d" % sSTAMP)
            a.e("s_lshl_b32 s%d, s2, 3" % sA)
            a.e("s_add_u32 s%d, s%d, s%d" % (sA, sA, sW))
            a.e("s_lshl_b32 s%d, s%d, 7" % (sA, sA))
            a.e("s_add_u32 s%d, s%d, 0x%x" % (sA, sA, WS_STAMP))
            a.e("s_mov_b64 exec, 1")
            a.vmop("buffer_store_dword v2, off, %s, s%d offset:12 sc1" % (srd(SWS), sA), "st")
            a.e("s_mov_b64 exec, -1")
        if n == 3 and not A:
            a.e("s_cmp_ge_u32 s%d, 14" % sM)
            a.e("s_cbranch_scc1 L_nohf")
            a.e("s_cmp_lg_u32 s%d, 4" % sW)
            a.e("s_cbranch_scc1 L_nohf")
            a.e("s_lshl_b32 s%d, s%d, 4" % (sA, sG))
            a.e("s_add_u32 s%d, s%d, s%d" % (sA, sA, sM))
            a.e("s_lshl_b32 s%d, s%d, 7" % (sA, sA))
            a.e("s_add_u32 s%d, s%d, 0x%x" % (sA, sA, WS_HFLAG))
            a.e("s_mov_b64 exec, 1")
            a.e("buffer_store_dword %s, off, %s, s%d sc1" % (v(vONE), srd(SWS), sA))
            a.e("s_mov_b64 exec, -1")
            a.lab("L_nohf")
        for r in kv_reads((n % 8) * 4096): a.e(r)
        if n == 8 and A:
            a.e("s_cmp_lg_u32 s%d, 0" % sW)
            a.e("s_cbranch_scc1 L_hf_nol")
            a.e("buffer_load_dword %s, %s, %s, 0 offen sc1" % (v(vPOLL), v(vFLA), srd(SWS)))
            a.lab("L_hf_nol")
        if n == 0:
            kvdma(2); kvdma(3)
            a.e("s_mov_b32 s%d, s%d" % (sC, sKQ))
            a.e("s_mul_i32 s%d, s%d, %d" % (sWDOFF, sC, 448 * 1024))
            a.e("s_and_b32 s%d, s%d, 1" % (sB, sW))
            a.e("s_lshl_b32 s%d, s%d, 14" % (sA, sB))
            a.e("s_add_u32 s%d, s%d, s%d" % (sWDOFF, sWDOFF, sA))
            a.e("s_lshl_b32 s%d, s%d, 1" % (sA, sT))
            a.e("s_add_u32 s%d, s%d, s%d" % (sA, sA, sB))
            a.e("s_mul_i32 s%d, s%d, 112" % (sA, sA))
            a.e("s_mul_i32 s%d, s%d, 28" % (sB, sC))
            a.e("s_add_u32 s%d, s%d, s%d" % (sA, sA, sB))
            a.e("s_lshl_b32 s%d, s%d, 10" % (sA, sA))
            a.e("s_add_u32 s%d, s%d, 0x%x" % (sHOFF, sA, WS_HF))
        if (A and n % 2 == 1 and n >= 3): kvdma((n + 5) // 2)
        if (not A and n % 2 == 0 and n >= 2): kvdma((n + 6) // 2)
        if 1 <= n <= 4:
            a.e("s_lshl_b32 s%d, s%d, 17" % (sB, sKQ))
            a.e("s_and_b32 s%d, s%d, 1" % (sC, sW))
            a.e("s_lshl_b32 s%d, s%d, 13" % (sC, sC))
            a.e("s_add_u32 s%d, s%d, s%d" % (sB, sB, sC))
            for j in (2 * n - 2, 2 * n - 1): wodma(j)
        for sg in {5: (27, 23, 24), 6: (25, 26, 0), 7: (1, 2)}.get(n, ()): wddma(sg)
        if n == 10:
            for r in wd_reads(vWX, vWDA, 3 * 8192): a.e(r)
        hs = {10: (0, 1, 23, 24), 11: (2, 25, 26, 27)} if A else {9: (0, 1, 23), 10: (2, 24), 11: (25, 26, 27)}
        for sg in hs.get(n, ()): hload(sg, vH + 4 * sg if sg < 4 else vHX if sg == 27 else vH + 4 * (sg - 19))
        if n == 11:
            a.e("s_add_u32 s%d, s%d, 0x%x" % (sHOFF, sHOFF, 3 * 1024))
            a.e("s_add_u32 s%d, s%d, 0x%x" % (sWDOFF, sWDOFF, wdrow(3)))
            a.e("s_add_u32 s%d, s%d, 0x%x" % (sKVOFF, sWK, 9 * 8192))
            a.e("s_mov_b32 s%d, 5" % sCNT)
            a.e("s_add_u32 s%d, s%d, 0x1000" % (sOLD2, sOLD))
            a.e("s_mov_b32 s%d, 0x%x" % (sLO_, f2u(2.0 ** -16)))
            a.e("s_mov_b32 s%d, 0x%x" % (sRNG, f2u(2.0 ** 100) - f2u(2.0 ** -16)))
        if n == 0 and pre0:
            pre0()
            a.stamp(5)
        a.e("s_waitcnt lgkmcnt(0)")
        a.e("s_call_b64 %s, L_Y%s" % (sp(sRET), role))
        if n == 0:
            a.e("s_branch L_X1%s" % role)
            a.lab("L_Y%s" % role)
            if A: a.e("s_barrier")
            for x in Yseg(None): a.e(x)
            if not A: a.e("s_barrier")
            a.e("s_setpc_b64 %s" % sp(sRET))
            a.lab("L_X1%s" % role)
    vm = list(a.vm); need = [63] * 4
    for n in range(12, 32):
        p, it = n % 4, (n - 12) // 4
        tags = ["wd%d" % (n - 11), "h%d" % (n - 12)]
        if (p % 2 == 1) == A: tags.append("kv%d" % ((n + (1 if A else 2)) // 2))
        idx = [i for i, t in enumerate(vm) if t in tags]
        if idx: need[p] = min(need[p], len(vm) - 1 - max(idx))
        vm.append("wd%d" % (n - 9))
        vm.append("h%d" % (n - 9))
        if (p % 2 == 1) == A: vm.append("kv%d" % ((n + (5 if A else 6)) // 2))
    a.lab("L_loop%s" % role)
    for p in range(4):
        if p == 0 and Opt.diag and Opt.kdiag == 2:
            a.e("s_cmp_lg_u32 s%d, 4" % sCNT)
            a.e("s_cbranch_scc1 L_nst%s" % role)
            astamp(a, 8)
            a.lab("L_nst%s" % role)
        a.e("s_waitcnt vmcnt(%d)" % need[p])
        for r in kv_reads(p * 4096, vKVB): a.e(r)
        for r in wd_reads(vWF, vWDA, p * 8192): a.e(r)
        a.e("s_add_u32 m0, s%d, 0x%x" % (sWK, L_WD + ((p + 3) % 4) * 8192))
        a.e("s_and_b32 s%d, s%d, 0x7fff" % (sA, sKVOFF))
        a.e("buffer_load_dwordx4 %s, %s, s%d offen lds" % (v(vWDV), srd(SWD), sWDOFF))
        a.e("s_add_u32 s%d, s%d, 0x%x" % (sWDOFF, sWDOFF, 0x2000 if p & 1 else 0x6000))
        a.e("buffer_load_dwordx4 %s, %s, %s, s%d offen sc1" % (v(vH + 4 * ((p + 3) % 4), 4), v(vL16), srd(SWS), sHOFF))
        if (p % 2 == 1) == A:
            a.e("s_add_u32 m0, s%d, 0x%x" % (sA, L_KV))
        a.e("s_add_u32 s%d, s%d, 0x400" % (sHOFF, sHOFF))
        if (p % 2 == 1) == A:
            a.e("buffer_load_dwordx4 %s, %s, s%d offen sc1 lds" % (v(vL16), srd(SKV), sKVOFF))
            a.e("s_add_u32 s%d, s%d, 0x2000" % (sKVOFF, sKVOFF))
        if p == 3:
            a.e("s_sub_u32 s%d, s%d, 1" % (sCNT, sCNT))
            a.e("s_cmp_lg_u32 s%d, 0" % sCNT)
        a.e("s_waitcnt lgkmcnt(0)")
        if A: a.e("s_barrier")
        for x in Yseg(p, toggle=(p == 3)): a.e(x)
        if not A:
            if p == 3: a.e("s_cbranch_scc0 L_tail")
            a.e("s_barrier")
    a.e(("s_cbranch_scc1 L_loop%s" if A else "s_branch L_loop%s") % role)

def transition(a, role):
    A = role == "A"
    if A:
        a.vm = []
        a.lab("L_trA")
    else:
        a.lab("L_join")
        a.e("s_cmp_eq_u32 s%d, 0" % sHI)
        a.e("s_cbranch_scc1 L_trA")
        a.vmjoin = list(a.vm)
    def qfin():
        for i in range(4): a.e("v_cvt_pk_bf16_f32 %s, %s, %s" % (v(vQ + i), v(vAQ + 2 * i), v(vAQ + 2 * i + 1)))
        for i in range(8): a.e("v_mov_b32 %s, 0" % v(vS + 24 + i))
        a.e("v_permlane16_swap_b32 %s, %s" % (v(vQ), v(vQ + 2)))
        a.e("v_permlane16_swap_b32 %s, %s" % (v(vQ + 1), v(vQ + 3)))
    pre0 = None
    if A:
        a.e("s_setprio 1")
        a.e("s_cmp_ge_u32 s%d, 14" % sM)
        a.e("s_cbranch_scc1 L_nogA0")
        put(a, a.kvA[:1] + a.kvA[-1:])
        a.l.append(".p2align 3")
        for ti in range(Opt.gsc): gelu_tile(a, ti, True)
        a.lab("L_nogA0")
        qfin()
        a.waitvm(["k0", "kv0", "kv1"])
        a.e("s_setprio 0")
        a.e("s_barrier")
        a.e(mfma(vS, vK0, vQ, None))
        put(a, a.kvA[1:-1])
        def pre0():
            a.e("s_cmp_lt_u32 s%d, 14" % sM)
            a.e("s_cbranch_scc1 L_gA1")
            a.e("s_waitcnt vmcnt(0)")
            a.e("s_branch L_nogA1")
            a.l.append(".p2align 3")
            a.lab("L_gA1")
            for ti in range(Opt.gsc, 4): gelu_tile(a, ti)
            a.lab("L_nogA1")
            a.e("s_setprio 2")
    else:
        a.waitvm(["k0", "kv0", "kv1"])
        a.e("s_setprio 1")
        a.e("s_cmp_ge_u32 s%d, 14" % sM)
        a.l.append(".p2align 3")
        a.e("s_barrier")
        a.e("s_cbranch_scc1 L_nogB")
        for ti in range(4): gelu_tile(a, ti)
        a.lab("L_nogB")
        qfin()
        a.e("s_nop 1")
        a.e(mfma(vS, vK0, vQ, None))
        a.stamp(5)
    attention(a, role, pre0)
    if A:
        a.stamp(6); astamp(a, 9); tstamp(a, 2)
        if Opt.diag and Opt.kdiag == 2: a.e("s_waitcnt lgkmcnt(0)")
        a.e(smfmac(vO, vV1L, vS + 24))
        a.e("s_setprio 0")
        a.e("s_branch L_tail2")

def tail(a):
    a.l.append(".p2align 3")
    a.lab("L_tail")
    a.stamp(6)
    astamp(a, 9)
    if Opt.diag and Opt.kdiag == 2: a.e("s_waitcnt lgkmcnt(0)")
    tstamp(a, 2)
    a.e(smfmac(vO, vV1L, vS + 24))
    a.lab("L_tail2")
    wf = [vFR, vFR + 8, vFR + 16]
    HORD = [0, 2, 4, 6, 1, 3, 5, 7] if Opt.hord else list(range(8))
    def oload(j):
        return "buffer_load_dwordx4 %s, %s, %s, s%d offen offset:%d %s" % (
            v(vS + 4 * j, 4), v(vL16), srd(SWS), sOLD if HORD[j] < 4 else sOLD2, (HORD[j] % 4) * 1024, Opt.old_pol)
    a.oload = oload
    a.e("s_cmp_eq_u32 s%d, 0" % sHI)
    if Opt.aearly:
        a.e("s_cbranch_scc1 L_tl0")
        a.e("s_nop 8")
        a.e("s_nop 0")
        a.lab("L_tl1")
    else:
        a.e("s_nop 10")
    t = vT0
    a.e("v_rcp_f32 %s, %s" % (v(t + 2), v(vO + 8)))
    a.e("s_nop 0")
    a.e("v_mul_f32_e64 %s, %s, %s" % (v(t + 2), v(t + 2), v(vGP)))
    for i in range(4): a.e("v_pk_mul_f32 %s, %s, %s op_sel_hi:[1,0]" % (v(vO + 2 * i, 2), v(vO + 2 * i, 2), v(t + 2, 2)))
    for i in range(4):
        a.e("v_pk_fma_f32 %s, %s, 0, %s op_sel_hi:[1,0,%d]" % (v(t, 2), v(vO + 2 * i, 2), v(t, 2) if i else v(vO + 8, 2), 1 if i else 0))
        a.e("v_cvt_pk_bf16_f32 %s, %s, %s" % (v(vP + i), v(vO + 2 * i), v(vO + 2 * i + 1)))
    a.e("v_fmac_f32 %s, 0, %s" % (v(t), v(t + 1)))
    a.e("v_subrev_u32 %s, s%d, %s" % (v(t), sLO_, v(t)))
    a.e("v_cmp_lt_u32 vcc, s%d, %s" % (sRNG, v(t)))
    a.e("s_branch L_fb" if Opt.force_fb else "s_cbranch_vccnz L_fb")
    a.lab("L_fbret")
    a.e("buffer_store_dwordx4 %s, %s, %s, s%d offen sc1" % (v(vP, 4), v(vL16), srd(SWS), sOST))
    tstamp(a, 3)
    aw = [vAW0, vXA, vXA + 1, vXA + 2]
    ar = [vAR0, vXA + 3]
    def addrs(a):
        a.e("v_add_u32 %s, 0x%x, %s" % (v(vQA), L_WO, v(vWDA)))
        a.e("v_sub_f32 %s, 1.0, %s" % (v(vGC), v(vGC)))
        for j in range(1, 4): a.e("v_xor_b32 %s, %d, %s" % (v(aw[j]), 32 * j, v(aw[0])))
        a.e("v_xor_b32 %s, 16, %s" % (v(ar[1]), v(ar[0])))
        a.e("s_mov_b32 s%d, 0x2000" % sB)
    ol = Asm(); a.ool2 = ol.l
    if Opt.aearly:
        ol.lab("L_tl0")
        ol.e("s_waitcnt vmcnt(0)")
        for j in range(8): ol.e(oload(j))
        ol.e("s_nop 0")
        ol.e("s_branch L_tl1")
        a.e("s_cbranch_scc1 L_tl2")
        a.e("s_waitcnt vmcnt(1)")
        a.lab("L_tl2")
        tstamp(a, 4)
        a.e("s_barrier")
        tstamp(a, 5)
    else:
        a.e("s_waitcnt vmcnt(1)")
        tstamp(a, 4)
        a.e("s_barrier")
        a.e("s_cbranch_scc1 L_tl6")
        a.lab("L_tl2")
        tstamp(a, 5)
        ol.lab("L_tl6")
        for j in range(8): ol.e(oload(j))
        ol.e("s_branch L_tl2")
    fl = collect(addrs)
    for c in range(2):
        for r in wd_reads(wf[0], vWDA, 4 * 8192)[2 * c:2 * c + 2]: a.e(r)
        a.e(mfma(vD + 16 * c, vWX + 4 * c, vHX, vD + 16 * c))
    for r in wd_reads(wf[1], vWDA, 5 * 8192): a.e(r)
    slot = [4, 5, 6, 7, 0, 1, 2]
    for i in range(7):
        if i + 2 < 7:
            for r in wd_reads(wf[(i + 2) % 3], vWDA, slot[i + 2] * 8192): a.e(r)
        else:
            for r in wd_reads(wf[(i + 2) % 3], vQA, HORD[i - 5] * 8192): a.e(r)
        a.e("s_waitcnt lgkmcnt(8)")
        for c in range(2):
            a.e(mfma(vD + 16 * c, wf[i % 3] + 4 * c, vH + 4 * slot[i], vD + 16 * c))
            put(a, fl[:1]); fl = fl[1:]
    assert not fl
    tstamp(a, 6)
    a.e("s_cmp_lg_u32 s%d, 0" % sHI)
    a.e("s_cbranch_scc1 L_tl3")
    a.l.append(".p2align 3")
    a.e("s_nop 7")
    a.e("s_nop 0")
    for i in range(16): a.e("v_pk_mul_f32 %s, %s, %s op_sel:[0,1] op_sel_hi:[1,1]" % (v(vD + 2 * i, 2), v(vD + 2 * i, 2), v(vGP, 2)))
    tstamp(a, 7)
    if Opt.tbar == 0: a.e("s_barrier")
    a.lab("L_tl4")
    tstamp(a, 8)
    ol.lab("L_tl3")
    ol.e("s_setprio 0")
    for j in range(8):
        ol.e(oload(j))
        if j == 0: ol.e("s_nop 6")
        for i in range(4 * j, 4 * j + 4): ol.e("v_mul_f32 %s, %s, %s" % (v(vD + i), v(vGC), v(vD + i)))
    tstamp(ol, 7)
    ol.e("s_barrier")
    ol.e("s_branch L_tl4")
    a.stamp(7)
    J1 = 8 - Opt.cskew
    wo = lambda j: wf[(j + 1) % 3] if j < J1 else vH + 8 * (j - J1)
    for j in range(8):
        o = vS + 4 * j
        if j + 2 < 8:
            for r in wd_reads(wo(j + 2), vQA, HORD[j + 2] * 8192): a.e(r)
        a.lab("L_ochk%d" % j)
        a.e("s_waitcnt vmcnt(%d)" % (7 - j))
        a.e("v_max3_u32 v2, %s, %s, %s" % (v(o), v(o + 1), v(o + 2)))
        a.e("v_max_u32 v2, v2, %s" % v(o + 3))
        a.e("v_cmp_eq_u32 vcc, -1, v2")
        a.e("s_cbranch_vccnz L_ore%d" % j)
        a.lab("L_ook%d" % j)
        a.e("s_waitcnt lgkmcnt(%d)" % (4 * min(2, 7 - j)))
        for c in range(2 if j < J1 else 1): a.e(mfma(vD + 16 * c, wo(j) + 4 * c, o, vD + 16 * c))
    wr = lambda c, j: "ds_write_b128 %s, %s offset:%d" % (v(aw[j]), v(vD + 16 * c + 4 * j, 4), 128 * c)
    w0 = [wr(0, j) for j in range(4)]
    dist = 0
    for j in range(J1, 8):
        a.e(mfma(vD + 16, wo(j) + 4, vS + 4 * j, vD + 16)); dist += 1
        if dist < 12:
            a.e("s_nop 5"); dist += 6
        elif j < 7:
            a.e(w0.pop(0))
    a.stamp(8)
    tstamp(a, 9)
    if not Opt.cskew: a.e("s_nop 10")
    elif dist < 12: a.e("s_nop %d" % (11 - dist))
    n0 = len(w0)
    for x in w0: a.e(x)
    if Opt.cskew: a.e("s_nop %d" % (11 - n0))
    for j in range(4): a.e(wr(1, j))
    a.e("s_waitcnt lgkmcnt(0)")
    a.e("s_barrier")
    for p in range(4):
        for h in range(2): a.e(rd128(vS + 8 * p + 4 * h, ar[h], p * 8192))
    for p in range(1, 4):
        a.e("s_waitcnt lgkmcnt(%d)" % (6 - 2 * p))
        for i in range(4): a.e("v_pk_add_f32 %s, %s, %s" % (v(vS + 2 * i, 2), v(vS + 2 * i, 2), v(vS + 8 * p + 2 * i, 2)))
    for i in range(4): a.e("v_cvt_pk_bf16_f32 %s, %s, %s" % (v(vP + i), v(vS + 2 * i), v(vS + 2 * i + 1)))
    a.e("buffer_store_dwordx4 %s, %s, %s, s%d offen %s" % (v(vP, 4), v(vOUTA), srd(SOUT), sOUTO, Opt.out_pol))
    if Opt.probe >= 0:
        a.e("s_waitcnt vmcnt(0)")
        a.stamp(9)
        if Opt.probe != 9:
            a.e("s_cmp_ge_u32 s%d, 14" % sM)
            a.e("s_cbranch_scc%d L_end" % (0 if Opt.probe_l else 1))
        a.e("s_sub_u32 s%d, s%d, s%d" % (sA, sSTAMP + 4, sSTAMP))
        a.e("s_mul_i32 s%d, s%d, %d" % (sA, sA, Opt.probe_mul - 1))
        a.e("s_min_u32 s%d, s%d, 100000" % (sA, sA))
        a.e("s_add_u32 s%d, s%d, 3800" % (sA, sA))
        if Opt.probe_w >= 0:
            a.e("s_cmp_lg_u32 s%d, %d" % (sHI, Opt.probe_w))
            a.e("s_cbranch_scc1 L_end")
        if Opt.probe_x >= 0:
            a.e("s_and_b32 s0, s2, 7")
            a.e("s_cmp_lg_u32 s0, %d" % Opt.probe_x)
            a.e("s_cbranch_scc1 L_end")
        a.lab("L_probe")
        a.e("s_memrealtime s[0:1]")
        a.e("s_waitcnt lgkmcnt(0)")
        a.e("s_sub_u32 s0, s0, s%d" % (sSTAMP + 4))
        a.e("s_cmp_lt_u32 s0, s%d" % sA)
        a.e("s_cbranch_scc1 L_probe")
    if Opt.pin == 9:
        a.e("s_waitcnt vmcnt(0)")
        a.stamp(9)
    if Opt.diag in (1, 2):
        a.e("s_waitcnt vmcnt(0)")
        a.stamp(9)
        a.e("s_mov_b32 s%d, s%d" % (sSTAMP + 3, sSTAMP))
        a.e("s_mov_b32 s%d, s%d" % (sSTAMP, sB))
        a.e("s_getreg_b32 s%d, hwreg(HW_REG_XCC_ID)" % (sSTAMP + 1))
        for i in range(20): a.e("v_mov_b32 %s, s%d" % (v(vS + i), sSTAMP + i))
        a.e("s_lshl_b32 s%d, s2, 3" % sA)
        a.e("s_add_u32 s%d, s%d, s%d" % (sA, sA, sW))
        a.e("s_lshl_b32 s%d, s%d, 7" % (sA, sA))
        a.e("s_add_u32 s%d, s%d, 0x%x" % (sA, sA, WS_STAMP))
        a.e("s_mov_b64 exec, 1")
        for i in range(5): a.e("buffer_store_dwordx4 %s, off, %s, s%d offset:%d" % (v(vS + 4 * i, 4), srd(SWS), sA, 16 * i))
    a.lab("L_end")
    a.e("s_endpgm")
    a.l += a.ool2
    for j in range(8):
        a.lab("L_ore%d" % j)
        a.e("s_sub_u32 s%d, s%d, 1" % (sB, sB))
        a.e("s_cbranch_scc1 L_ogive%d" % j)
        a.e("s_waitcnt vmcnt(0)")
        for i in range(j, 8): a.e(a.oload(i))
        a.e("s_branch L_ochk%d" % j)
        a.lab("L_ogive%d" % j)
        a.e("s_mov_b32 s%d, 0" % sB)
        a.e("s_branch L_ook%d" % j)

def fallback(a):
    a.lab("L_fb")
    m = vT0
    a.e("v_mov_b32 %s, 0xff800000" % v(m))
    a.e("s_mov_b32 s%d, 0" % sA)
    a.lab("L_fb1")
    a.e("buffer_load_dwordx4 %s, %s, %s, s%d offen sc1" % (v(vKF, 4), v(vL16), srd(SKV), sA))
    a.e("s_waitcnt vmcnt(0)")
    a.e(mfma(vS, vKF, vQ, None))
    a.e("s_add_u32 s%d, s%d, 2048" % (sA, sA))
    a.e("s_nop 11")
    for i in range(8): a.e("v_max3_f32 %s, %s, %s, %s" % (v(m), v(m), v(vS + 2 * i), v(vS + 2 * i + 1)))
    a.e("s_cmp_lt_u32 s%d, 0x20000" % sA)
    a.e("s_cbranch_scc1 L_fb1")
    a.e("v_mov_b32 %s, %s" % (v(m + 1), v(m)))
    a.e("s_nop 1")
    a.e("v_permlane32_swap_b32 %s, %s" % (v(m), v(m + 1)))
    a.e("s_nop 1")
    a.e("v_max_f32 %s, %s, %s" % (v(m), v(m), v(m + 1)))
    for i in range(16): a.e("v_sub_f32 %s, 0, %s" % (v(vS + 16 + i), v(m)))
    for i in range(16): a.e("v_mov_b32 %s, 0" % v(vO + i))
    a.e("s_mov_b32 s%d, 0" % sA)
    a.lab("L_fb2")
    a.e("s_add_u32 s%d, s%d, 0x%x" % (sB, sA, 63 * 2048))
    a.e("s_and_b32 s%d, s%d, 0x1ffff" % (sB, sB))
    a.e("buffer_load_dwordx4 %s, %s, %s, s%d offen sc1" % (v(vKF, 4), v(vL16), srd(SKV), sB))
    a.e("s_add_u32 s%d, s%d, 2048" % (sB, sA))
    a.e("s_and_b32 s%d, s%d, 0x1ffff" % (sB, sB))
    a.e("s_mov_b64 exec, %s" % sp(sVM))
    a.e("buffer_load_dwordx4 %s, %s, %s, s%d offen offset:1024 sc1" % (v(vV, 4), v(vL16), srd(SKV), sA))
    a.e("buffer_load_dwordx4 %s, %s, %s, s%d offen offset:1280 sc1" % (v(vV + 4, 4), v(vL16), srd(SKV), sB))
    a.e("s_mov_b64 exec, -1")
    a.e("s_waitcnt vmcnt(0)")
    a.e(mfma(vS, vKF, vQ, vS + 16))
    a.e("s_add_u32 s%d, s%d, 2048" % (sA, sA))
    a.e("s_nop 11")
    for i in range(16): a.e("v_exp_f32 %s, %s" % (v(vS + i), v(vS + i)))
    a.e("s_nop 2")
    a.e(smfmac(vO, vV, vS))
    a.e(smfmac(vO, vV + 4, vS + 8))
    a.e("s_cmp_lt_u32 s%d, 0x20000" % sA)
    a.e("s_cbranch_scc1 L_fb2")
    a.e("s_nop 11")
    a.e("v_rcp_f32 %s, %s" % (v(vT0 + 2), v(vO + 8)))
    a.e("s_cmp_eq_u32 s%d, 0" % sHI)
    a.e("v_mul_f32 %s, %s, %s" % (v(vT0 + 2), v(vT0 + 2), v(vGP)))
    for i in range(8): a.e("v_mul_f32 %s, %s, %s" % (v(vO + i), v(vT0 + 2), v(vO + i)))
    for i in range(4): a.e("v_cvt_pk_bf16_f32 %s, %s, %s" % (v(vP + i), v(vO + 2 * i), v(vO + 2 * i + 1)))
    for i in range(4): a.e("v_min_u32 %s, -2, %s" % (v(vP + i), v(vP + i)))
    if Opt.aearly:
        a.e("s_cbranch_scc0 L_fbret")
        for j in range(8): a.e(a.oload(j))
    a.e("s_branch L_fbret")

def build():
    a = Asm()
    prologue(a)
    phase1_F(a)
    transition(a, "B")
    tail(a)
    a.l += a.ool
    transition(a, "A")
    phase1_L(a)
    fallback(a)
    a.lab("L_codeend")
    for i, x in enumerate(a.l):
        if " sc1" in x and "sc0" not in x and ((Opt.allsc & 1 and "buffer_store" in x) or (Opt.allsc & 2 and "buffer_load" in x)):
            a.l[i] = x.replace(" sc1", " sc0 sc1")
    il = a.l.index("L_light:")
    for i, x in enumerate(a.l):
        if x.endswith(" lds") and "sc1" not in x and " nt" not in x:
            if (Opt.ntx & 4 and (srd(SWD) in x or srd(SWO) in x)) or (Opt.ntx & 8 and i > il):
                a.l[i] = x[:-4] + " nt lds"
    head = open("cdna_kernels/%s.s.ref" % NAME).read().split("\n")
    hdr = [l for l in head if l.startswith(";") and "@launch" not in l and "Override" not in l and "grid=" not in l]
    out = hdr + ["; @launch grid=(256,1,1) block=(512,1,1) lds=%d" % LDS_BYTES,
                 '.amdgcn_target "amdgcn-amd-amdhsa--gfx950"', ".text", ".globl %s_kernel" % NAME, ".p2align 8",
                 ".type %s_kernel,@function" % NAME,
                 ".set CODE_PF_MAX, L_codeend - L_nopf - 4" if Opt.code_pf else "",
                 "%s_kernel:" % NAME]
    out += ["; mapmode %d" % Opt.mapmode, "; xrot %d" % Opt.xrot]
    out += a.l
    out += ['.section .rodata,"a"', ".p2align 6", ".amdhsa_kernel %s_kernel" % NAME,
            "  .amdhsa_next_free_vgpr %d" % NV, "  .amdhsa_next_free_sgpr 102", "  .amdhsa_accum_offset 256",
            "  .amdhsa_group_segment_fixed_size 0", "  .amdhsa_kernarg_size 104", "  .amdhsa_user_sgpr_count 2",
            "  .amdhsa_user_sgpr_kernarg_segment_ptr 1", "  .amdhsa_system_sgpr_workgroup_id_x 1", ".end_amdhsa_kernel", ""]
    return "\n".join(out)

if __name__ == "__main__":
    path = sys.argv[1]
    for kv in sys.argv[2:]:
        k, val = kv.split("=")
        cur = getattr(Opt, k)
        setattr(Opt, k, val if isinstance(cur, str) else type(cur)(int(val)))
    open(path, "w").write(build())
```

```python
import sys, struct, math

NAME = "gated_mix__grouped_kv_mqa__geglu_ffn__prompt"

class Opt:
    diag = 0
    mapmode = 1
    force_fb = False
    allsc = 0
    out_pol = "sc0 sc1"
    code_pf = True
    xrot = 0
    pregap = 0
    aearly = 0
    bidle = 1
    old_pol = "sc1"
    ypos0 = "36g"
    ypos1 = "36bg"
    ypos2 = "36cg9"
    xtile = 0
    tpos = 1
    cfirst = 0
    tch = 12
    stch = 0
    spos = 1
    tlb = 14
    olate = 1
    hrot = 0
    tbar = 0
    hord = 1
    cmap = 1
    kqx = 0
    oearly = 8
    conc = 1
    ghx = 1
    qa = "077777"
    qb = "588888"
    npre = 8
    stagger = 1
    rper = 2
    dma1 = 17
    kprio = 0
    dma0 = 8
    npd = 4
    kdiag = 0
    fillpre = 0
    fillper = 5
    gsc = 2
    sched = 0
    xmask = 1
    ntx = 0
    touch = 2
    rotg = 0
    rotm = 0
    startbar = 1
    pvz = 1
    pin = -1
    pin_ns = 60000
    probe = -1
    probe_x = -1
    probe_mul = 10
    probe_w = -1
    probe_l = 0

def f2u(x): return struct.unpack("<I", struct.pack("<f", x))[0]

WS_KV = 0
WS_G = 128 * 1024
WS_HFLAG = 192 * 1024
WS_OF = 1 << 20
WS_HF = 4 << 20
WS_STAMP = 12 << 20
WS_SIZE = 16 << 20
K1 = 1024
L_G, L_U, L_X, L_WQ = 0, 48 * K1, 96 * K1, 144 * K1
L_QX = 32 * K1
L_WD, L_WO, L_KV = 0, 64 * K1, 128 * K1
LL_X, LL_W, LL_GATE, LL_WQ = 0, 128 * K1, 144 * K1, 128 * K1
LDS_BYTES = 160 * K1

SX, SWG, SWU, SWQ, SWS, SWD, SWO, SOUT, SDBG, SWKV, SGATE, SKV = 4, 8, 12, 16, 20, 24, 28, 32, 36, 40, 44, 64
SWV = 72
sTMPP = 48
sW, sHI, sLO, sG, sM, sT, sCB = 50, 51, 52, 53, 54, 55, 56
sWK = 57
sWH = 58
sVM = 60
sRET = 62
sA, sB, sC, sD = 68, 69, 70, 71
sOFFW, sOFFQ, sCH, sXP = 72, 73, 74, 75
sHOFF, sWDOFF, sKVOFF, sHXO, sCNT = 72, 73, 74, 75, 77
sOUTO, sLO_, sRNG = 59, 81, 75
sOLD2 = 58
sOST, sOLD, sHST = 78, 79, 80
sHST2 = 3
sRX, sRW, sM0B = 40, 41, 42
sKQ = 76
sHP = sM
sSTAMP = 82

def srd(b): return "s[%d:%d]" % (b, b + 3)
def sp(b): return "s[%d:%d]" % (b, b + 1)
def v(b, n=1): return "v%d" % b if n == 1 else "v[%d:%d]" % (b, b + n - 1)

vL16 = 1
vT0, vT1, vT2, vT3 = 2, 3, 4, 5
vGP, vGC = 6, 7
vKVA = 8
vWDA = 9
vWDV = 10
vONE = 11
vZERO = 12
vFLA = 13
vPOLL = 14
vGA = 15
vQ = 16
vK0 = 20
vV1L = 24
vIDX = 28
vAW0, vAR0, vOUTA = 30, 31, 12
vKVB = 29
vP = 32
vV = 40
vO = 56
vD = 72
vACC = 104
vS = 104
vH = 136
vAQ = vP
vF1 = 168
vKF = 168
vWF = 176
vWX = 224
vHX = 232
vPK = 20
WOF = [32, 208, 216, 240, 248, 40, 48, 56]
vWOA = 236
vFR = 184
vLX = 224
vXA = 240
vWA = 244
vQA = 248
vDX, vDG, vDQ = 249, 250, 251
vC0 = 252
vTID = 255
vHA = 254
NV = 256

class Asm:
    def __init__(self):
        self.l = []
        self.vm = []
        self.nstamp = 0
    def e(self, s):
        for x in s.split("\n"):
            x = x.strip()
            if x: self.l.append("    " + x)
    def lab(self, s): self.l.append(s + ":")
    def vmop(self, s, tag):
        self.e(s); self.vm.append(tag)
    def vmn(self, tags):
        if isinstance(tags, str): tags = [tags]
        last = -1
        for i, t in enumerate(self.vm):
            if t in tags: last = i
        return None if last < 0 else len(self.vm) - 1 - last
    def waitvm(self, tags, lgkm=False):
        n = self.vmn(tags)
        if n is None:
            if lgkm: self.e("s_waitcnt lgkmcnt(0)")
            return
        assert n < 64
        self.e("s_waitcnt vmcnt(%d)%s" % (n, " lgkmcnt(0)" if lgkm else ""))
        self.vm = self.vm[len(self.vm) - n:] if n else []
    def wait0(self, lgkm=False):
        self.e("s_waitcnt vmcnt(0)%s" % (" lgkmcnt(0)" if lgkm else "")); self.vm = []
    def stamp(self, i, real=False):
        if Opt.probe == i:
            self.e("s_waitcnt lgkmcnt(0)")
            self.e("s_memrealtime %s" % sp(sSTAMP + 4))
            self.e("s_waitcnt lgkmcnt(0)")
        if Opt.pin == i:
            self.nstamp += 1
            self.e("s_waitcnt lgkmcnt(0)")
            self.e("s_cselect_b32 s%d, 1, 0" % (sSTAMP + 5))
            self.lab("L_pin%d" % self.nstamp)
            self.e("s_memrealtime s[0:1]")
            self.e("s_waitcnt lgkmcnt(0)")
            self.e("s_sub_u32 s0, s0, s%d" % sSTAMP)
            self.e("s_cmp_lt_u32 s0, %d" % (Opt.pin_ns // 10))
            self.e("s_cbranch_scc1 L_pin%d" % self.nstamp)
            self.e("s_cmp_lg_u32 s%d, 0" % (sSTAMP + 5))
        if Opt.diag and not Opt.kdiag and (Opt.diag == 1 or i == 9):
            self.e("s_waitcnt lgkmcnt(0)")
            self.e("s_memtime %s" % sp(sSTAMP + 2 * i))
            self.e("s_memrealtime %s" % sp(sRET))
            self.e("s_waitcnt lgkmcnt(0)")
            self.e("s_mov_b32 s%d, s%d" % (sSTAMP + 2 * i + 1, sRET))

def astamp(a, i):
    if Opt.diag and Opt.kdiag == 2: a.e("s_memtime %s" % sp(sSTAMP + 2 * i))

def tstamp(a, i):
    if Opt.diag and Opt.kdiag == 3: a.e("s_memtime %s" % sp(sSTAMP + 2 * i))

def kstamp(a, i):
    if Opt.probe == 18 + i: a.e("s_memrealtime %s" % sp(sSTAMP + 4))
    if Opt.diag and Opt.kdiag == 1: a.e("s_memtime %s" % sp(sSTAMP + 2 * i))

def mfma(d, a, b, c):
    return "v_mfma_f32_32x32x16_bf16 %s, %s, %s, %s" % (v(d, 16), v(a, 4), v(b, 4), "0" if c is None else v(c, 16))
def smfmac(d, a, b):
    return "v_smfmac_f32_32x32x32_bf16 %s, %s, %s, %s" % (v(d, 16), v(a, 4), v(b, 8), v(vIDX))
def mfma16(d, a, b, c):
    return "v_mfma_f32_16x16x32_bf16 %s, %s, %s, %s" % (v(d, 4), v(a, 4), v(b, 4), "0" if c is None else v(c, 4))
def rd128(d, a, off):
    assert 0 <= off < 65536
    return "ds_read_b128 %s, %s offset:%d" % (v(d, 4), v(a), off)
def rdtr(d, a, off):
    assert 0 <= off < 65536
    return "ds_read_b64_tr_b16 %s, %s offset:%d" % (v(d, 2), v(a), off)

def interleave(mf, fill, per=2):
    out = []
    fill = list(fill)
    for i, m in enumerate(mf):
        out.append(m)
        if i < len(mf) - 1:
            out += fill[:per]; fill = fill[per:]
    return out + fill

def srd_words(a, regs):
    sizes = {SX: 2048 * 1024, SWG: 512 * 3584, SWU: 512 * 3584, SWQ: 512 * 1024, SWS: WS_SIZE, SWKV: 16384, SWV: 16384,
             SGATE: 1024, SWD: 1792 * 1024, SWO: 512 * 1024, SOUT: 2048 * 1024, SDBG: 256, SKV: 128 * 1024}
    for reg in regs:
        a.e("s_mov_b32 s%d, 0x%x" % (reg + 2, sizes[reg]))
        a.e("s_mov_b32 s%d, 0x20000" % (reg + 3))

def ptr_loads(a, lst):
    for reg, off in lst: a.e("s_load_dwordx2 %s, s[0:1], %d" % (sp(reg), off))

def prologue(a):
    if Opt.diag or Opt.pin >= 0 or Opt.probe >= 0:
        a.e("s_memrealtime %s" % sp(sSTAMP))
        if Opt.diag in (1, 2): a.e("s_memtime %s" % sp(sSTAMP + 2))
    ptr_loads(a, ((SX, 0), (SWG, 48), (SWU, 56), (SWQ, 8)))
    a.e("s_load_dwordx8 s[%d:%d], s[0:1], 64" % (SOUT, SOUT + 7))
    if not (Opt.diag or Opt.probe >= 0): ptr_loads(a, ((SWS, 96), (SWO, 32)))
    if Opt.probe == 1: a.stamp(1)
    a.e("v_lshrrev_b32 v2, 6, v0")
    if Opt.code_pf:
        a.e("s_getpc_b64 %s" % sp(sRET))
        a.lab("L_nopf")
        a.e("s_and_b32 s%d, s2, -8" % sA)
        a.e("v_add_lshl_u32 v3, v2, s%d, 7" % sA)
        a.e("v_readfirstlane_b32 s%d, v2" % sW)
        a.e("v_min_u32 v3, CODE_PF_MAX, v3")
        a.e("global_load_dword %s, v3, %s" % (v(vPOLL), sp(sRET)))
    else:
        a.e("s_nop 0")
        a.e("v_readfirstlane_b32 s%d, v2" % sW)
    if Opt.diag or Opt.probe >= 0:
        a.e("s_load_dwordx2 %s, s[0:1], 96" % sp(SWS))
    a.e("s_cmpk_ge_u32 s2, 256")
    a.e("s_cbranch_scc1 L_end")
    a.e("s_and_b32 s%d, s2, 1" % sD)
    a.e("s_bfe_u32 s%d, s2, 0x30003" % sA)
    a.e("s_lshl3_add_u32 s%d, s%d, s%d" % (sG, sD, sA))
    a.e("s_bfe_u32 s%d, s2, 0x20001" % sA)
    a.e("s_lshr_b32 s%d, s2, 6" % sB)
    a.e("s_lshl2_add_u32 s%d, s%d, s%d" % (sM, sA, sB))
    a.e("s_lshl_b32 s%d, s%d, 10" % (sWK, sW))
    a.e("s_cmp_ge_u32 s%d, 14" % sM)
    a.e("s_cbranch_scc1 L_light")

def xvoff(a, t):
    a.e("v_lshrrev_b32 v2, 4, %s" % v(t))
    a.e("v_xor_b32 v2, v2, %s" % v(t))
    a.e("v_and_b32 v2, 7, v2")
    a.e("s_lshl_b32 s%d, s%d, 17" % (sA, sG))
    a.e("v_lshl_add_u32 v2, v2, 4, s%d" % sA)
    a.e("v_lshrrev_b32 v3, 3, %s" % v(t))
    a.e("v_lshl_add_u32 %s, v3, 10, v2" % v(vDX))

def setup_ids(a):
    a.e("s_mov_b64 %s, %s" % (sp(SKV), sp(SWS)))
    a.e("s_mov_b64 %s, %s" % (sp(SWD), sp(SOUT)))
    a.e("s_mov_b64 %s, %s" % (sp(SOUT), sp(SOUT + 4)))
    a.e("s_mov_b64 %s, %s" % (sp(SDBG), sp(SOUT + 6)))
    a.e("v_and_b32 v0, 63, v0")
    a.e("v_lshlrev_b32 %s, 4, v0" % v(vL16))
    a.e("s_andn2_b32 s%d, 1, s2" % sA)
    a.e("s_bfe_u32 s%d, s2, 0x20001" % sB)
    a.e("s_lshl2_add_u32 s%d, s%d, s%d" % (sA, sA, sB))
    a.e("s_bfe_u32 s%d, s2, 0x20003" % sB)
    a.e("s_lshl2_add_u32 s%d, s%d, s%d" % (sT, sA, sB))
    a.e("s_lshr_b32 s%d, s2, 5" % sCB)

def setup_rd(a):
    a.e("s_lshr_b32 s%d, s%d, 2" % (sHI, sW))
    a.e("s_and_b32 s%d, s%d, 3" % (sLO, sW))
    a.e("v_and_b32 v2, 15, v0")
    a.e("v_lshrrev_b32 v3, 4, v0")
    a.e("v_bfe_u32 v4, v0, 1, 3")
    a.e("v_xor_b32 v4, v4, v3")
    a.e("v_lshlrev_b32 v4, 4, v4")
    a.e("v_lshl_add_u32 %s, v2, 7, v4" % v(vXA))
    a.e("v_bfe_u32 v2, v0, 2, 2")
    a.e("v_and_b32 v4, 3, v0")
    a.e("v_lshl_add_u32 %s, v3, 3, v2" % v(vQA))
    a.e("v_lshlrev_b32 %s, 6, %s" % (v(vQA), v(vQA)))
    a.e("v_xor_b32 v5, s%d, v3" % sHI)
    a.e("v_and_b32 v5, 1, v5")
    a.e("v_lshl_add_u32 %s, v5, 5, %s" % (v(vQA), v(vQA)))
    a.e("v_lshl_add_u32 %s, v4, 3, %s" % (v(vQA), v(vQA)))

def setup_oclr(a):
    srd_words(a, [SWS, SKV, SDBG])
    a.e("s_mov_b32 s%d, 0xffff" % sVM)
    a.e("s_mov_b32 s%d, 0xffff" % (sVM + 1))
    a.e("s_lshl_b32 s%d, s%d, 2" % (sA, sG))
    a.e("s_add_u32 s%d, s%d, s%d" % (sA, sA, sLO))
    a.e("s_lshl_b32 s%d, s%d, 5" % (sB, sA))
    a.e("s_lshl_b32 s%d, s%d, 1" % (sC, sHP))
    a.e("s_add_u32 s%d, s%d, s%d" % (sB, sB, sC))
    a.e("s_add_u32 s%d, s%d, s%d" % (sB, sB, sHI))
    a.e("s_lshl_b32 s%d, s%d, 10" % (sB, sB))
    a.e("s_add_u32 s%d, s%d, 0x%x" % (sOST, sB, WS_OF))
    for i in range(4): a.e("v_mov_b32 %s, -1" % v(vQ + i))
    a.vmop("buffer_store_dwordx4 %s, %s, %s, s%d offen sc1" % (v(vQ, 4), v(vL16), srd(SWS), sOST), "oclr")
    a.e("v_mov_b32 %s, 1" % v(vONE))
    a.e("v_mov_b32 %s, 0" % v(vZERO))
    a.e("v_and_b32 %s, 31, v0" % v(vGA))
    a.e("v_lshlrev_b32 %s, 2, %s" % (v(vGA), v(vGA)))

def collect(fn):
    t = Asm(); t.marks = {}
    def vmop(s_, tag):
        t.e(s_); t.marks[len(t.l) - 1] = tag
    t.vmop = vmop
    fn(t)
    return [(x, t.marks.get(i)) for i, x in enumerate(t.l)]
def put(a, items):
    for x, tag in items:
        if tag: a.vmop(x, tag)
        else: a.e(x)

def setup_ones(a):
    a.e("s_mov_b32 s%d, 0x110000" % sA)
    a.e("s_mov_b32 s%d, 0x110000" % sB)
    a.e("v_mov_b32 v3, 0x3f803f80")
    a.e("v_cndmask_b32 %s, 0, v3, %s" % (v(vV1L), sp(sA)))
    for i in range(1, 4): a.e("v_mov_b32 %s, %s" % (v(vV1L + i), v(vV1L)))
    for i in range(16): a.e("v_mov_b32 %s, %s" % (v(vV + i), v(vV1L)))

def setup_attn(a):
    srd_words(a, [SWD, SWO, SOUT])
    a.e("s_lshl_b32 s%d, s%d, 2" % (sA, sG))
    a.e("s_add_u32 s%d, s%d, s%d" % (sA, sA, sLO))
    a.e("s_mul_i32 s%d, s%d, 112" % (sB, sA))
    a.e("s_lshl_b32 s%d, s%d, 3" % (sC, sM))
    a.e("s_add_u32 s%d, s%d, s%d" % (sB, sB, sC))
    a.e("s_lshl_b32 s%d, s%d, 2" % (sC, sHI))
    a.e("s_add_u32 s%d, s%d, s%d" % (sB, sB, sC))
    a.e("s_and_b32 s%d, s%d, 1" % (sC, sLO))
    a.e("s_lshl_b32 s%d, s%d, 1" % (sC, sC))
    a.e("s_add_u32 s%d, s%d, s%d" % (sB, sB, sC))
    a.e("s_lshl_b32 s%d, s%d, 10" % (sB, sB))
    a.e("s_add_u32 s%d, s%d, 0x%x" % (sHST, sB, WS_HF))
    a.e("s_mul_i32 s%d, s%d, %d" % (sC, sC, 112 * 1024))
    a.e("s_sub_u32 s%d, %d, s%d" % (sC, 112 * 1024, sC))
    a.e("s_add_u32 s%d, s%d, s%d" % (sHST2, sHST, sC))
    a.e("v_bfe_u32 v2, v0, 2, 2")
    a.e("v_lshrrev_b32 v3, 5, v0")
    a.e("v_lshl_add_u32 v2, v3, 2, v2")
    a.e("v_lshlrev_b32 v2, 6, v2")
    a.e("v_bfe_u32 v3, v0, 4, 1")
    a.e("v_lshl_add_u32 v2, v3, 5, v2")
    a.e("v_and_b32 v3, 3, v0")
    a.e("v_lshl_add_u32 v2, v3, 3, v2")
    a.e("s_lshr_b32 s%d, s%d, 1" % (sA, sW))
    a.e("s_lshl_b32 s%d, s%d, 11" % (sA, sA))
    a.e("v_add_u32 %s, s%d, v2" % (v(vWDA), sA))
    a.e("v_add_u32 %s, 0x%x, %s" % (v(vKVA), L_KV, v(vL16)))
    a.e("v_add_u32 %s, 0x%x, %s" % (v(vKVB), L_KV + 0x4000, v(vL16)))
    a.e("v_bfe_u32 v2, v0, 2, 3")
    a.e("v_lshlrev_b32 v2, 10, v2")
    a.e("v_lshrrev_b32 v3, 5, v0")
    a.e("v_lshl_add_u32 v2, v3, 6, v2")
    a.e("v_and_b32 v3, 3, v0")
    a.e("v_lshl_add_u32 v2, v3, 4, v2")
    a.e("s_lshl_b32 s%d, s%d, 7" % (sB, sCB))
    a.e("v_add_u32 %s, s%d, v2" % (v(vWDV), sB))
    a.e("v_min_u32 v2, 13, v0")
    a.e("v_lshlrev_b32 v2, 7, v2")
    a.e("s_lshr_b32 s%d, s%d, 1" % (sA, sT))
    a.e("s_lshl_b32 s%d, s%d, 11" % (sA, sA))
    a.e("s_add_u32 s%d, s%d, 0x%x" % (sA, sA, WS_HFLAG))
    a.e("v_add_u32 %s, s%d, v2" % (v(vFLA), sA))
    a.e("s_lshl_b32 s%d, s%d, 1" % (sA, sT))
    a.e("s_and_b32 s%d, s%d, 1" % (sB, sW))
    a.e("s_add_u32 s%d, s%d, s%d" % (sA, sA, sB))
    a.e("s_lshl_b32 s%d, s%d, 15" % (sB, sA))
    a.e("s_lshr_b32 s%d, s%d, 1" % (sKQ, sW))
    if Opt.kqx:
        a.e("s_lshl_b32 s%d, s%d, 1" % (sC, sCB))
        a.e("s_and_b32 s%d, s%d, 2" % (sC, sC))
        a.e("s_xor_b32 s%d, s%d, s%d" % (sKQ, sKQ, sC))
    a.e("s_lshl_b32 s%d, s%d, 13" % (sC, sKQ))
    a.e("s_add_u32 s%d, s%d, s%d" % (sB, sB, sC))
    a.e("s_add_u32 s%d, s%d, 0x%x" % (sOLD, sB, WS_OF))
    a.e("v_and_b32 v2, 31, v0")
    a.e("v_lshrrev_b32 v3, 5, v0")
    a.e("v_and_b32 v4, 7, v0")
    a.e("v_xor_b32 v3, v3, v4")
    a.e("v_lshlrev_b32 v3, 4, v3")
    a.e("v_lshl_add_u32 v3, v2, 8, v3")
    a.e("s_and_b32 s%d, s%d, 1" % (sB, sW))
    a.e("s_lshl_b32 s%d, s%d, 15" % (sB, sB))
    a.e("s_lshr_b32 s%d, s%d, 1" % (sC, sW))
    a.e("s_lshl_b32 s%d, s%d, 13" % (sD, sC))
    a.e("s_add_u32 s%d, s%d, s%d" % (sOUTO, sD, sB))
    a.e("v_add_u32 %s, s%d, v3" % (v(vAW0), sOUTO))
    a.e("v_lshrrev_b32 v2, 3, v0")
    a.e("v_lshlrev_b32 v3, 1, v4")
    a.e("v_xor_b32 v3, v3, v2")
    a.e("v_lshlrev_b32 v3, 4, v3")
    a.e("v_lshl_add_u32 v3, v2, 8, v3")
    a.e("s_lshl_b32 s%d, s%d, 11" % (sD, sC))
    a.e("s_add_u32 s%d, s%d, s%d" % (sD, sD, sB))
    a.e("v_add_u32 %s, s%d, v3" % (v(vAR0), sD))
    a.e("v_lshlrev_b32 v4, 4, v4")
    a.e("v_lshl_add_u32 %s, v2, 10, v4" % v(vOUTA))
    a.e("s_lshl_b32 s%d, s%d, 16" % (sC, sT))
    a.e("s_add_u32 s%d, s%d, s%d" % (sOUTO, sOUTO, sC))
    a.e("s_lshl_b32 s%d, s%d, 7" % (sC, sCB))
    a.e("s_add_u32 s%d, s%d, s%d" % (sOUTO, sOUTO, sC))
    a.e("v_mov_b32 %s, 0xdddd" % v(vIDX))
    a.e("v_lshrrev_b32 v2, 4, v0")
    a.e("v_lshl_add_u32 %s, v2, 8, %s" % (v(vHA), v(vL16)))
    for i in range(16): a.e("v_mov_b32 %s, 0" % v(vO + i))
    for i in range(32): a.e("v_mov_b32 %s, 0" % v(vD + i))
    c0 = -2.0 * math.sqrt(2.0 / math.pi) * math.log2(math.e)
    a.e("v_mov_b32 %s, 0x%x" % (v(vC0), f2u(c0)))
    a.e("v_mov_b32 %s, 0x%x" % (v(vC0 + 1), f2u(c0 * 0.044715)))

def kv_first_loads(a, quartet=False):
    it = []
    for o in (range(0, 16384, 4096) if quartet else range(0, 16384, 8192)):
        b = sWH if quartet else sWK
        it.append(("s_add_u32 m0, s%d, 0x%x\ns_add_u32 s%d, s%d, 0x%x\nbuffer_load_dwordx4 %s, %s, s%d offen sc1 lds"
                   % (b, L_KV + o, sA, b, o, v(vL16), srd(SKV), sA), "kv%d" % (o >> 13)))
    it.append(("s_mov_b32 s%d, 0x%x\nbuffer_load_dwordx4 %s, %s, %s, s%d offen sc1"
               % (sA, 63 * 2048, v(vK0, 4), v(vL16), srd(SKV), sA), "k0"))
    it.append(("s_mov_b64 exec, %s\nbuffer_load_dwordx4 %s, %s, %s, 0 offen offset:%d sc1\ns_mov_b64 exec, -1"
               % (sp(sVM), v(vV1L, 4), v(vL16), srd(SKV), 1024 + 256), "k0"))
    it.append(("s_lshl_b32 s%d, s%d, 2\ns_add_u32 s%d, s%d, s%d\ns_lshl_b32 s%d, s%d, 7\ns_add_u32 s%d, s%d, 0x%x\n"
               "buffer_load_dword %s, %s, %s, s%d offen sc1"
               % (sA, sG, sA, sA, sLO, sA, sA, sA, sA, WS_G, v(vGP), v(vGA), srd(SWS), sA), "k0"))
    it.append(("s_lshl_b32 s%d, s%d, 1\ns_and_b32 s%d, s%d, 1\ns_add_u32 s%d, s%d, s%d\ns_lshl_b32 s%d, s%d, 7\ns_add_u32 s%d, s%d, 0x%x\n"
               "buffer_load_dword %s, %s, %s, s%d offen sc1"
               % (sA, sT, sB, sW, sA, sA, sB, sA, sA, sA, sA, WS_G, v(vGC), v(vGA), srd(SWS), sA), "k0"))
    return it

def spin_counter(a, name, first_loaded, wave=0):
    a.e("s_cmp_lg_u32 s%d, %d" % (sW, wave))
    a.e("s_cbranch_scc1 L_%s_done" % name)
    a.e("s_mov_b32 s%d, 0x4000" % sB)
    if first_loaded: a.e("s_branch L_%s_chk" % name)
    a.lab("L_%s_re" % name)
    a.e("buffer_load_dword %s, off, %s, 0 sc1" % (v(vPOLL), srd(SDBG)))
    a.e("s_waitcnt vmcnt(0)")
    a.lab("L_%s_chk" % name)
    a.e("v_readfirstlane_b32 s%d, %s" % (sA, v(vPOLL)))
    a.e("s_cmp_ge_u32 s%d, 32" % sA)
    a.e("s_cbranch_scc1 L_%s_done" % name)
    a.e("s_sleep 4")
    a.e("s_sub_u32 s%d, s%d, 1" % (sB, sB))
    a.e("s_cmp_lg_u32 s%d, 0" % sB)
    a.e("s_cbranch_scc1 L_%s_re" % name)
    a.lab("L_%s_done" % name)

def phase1_F(a):
    SCHED = {1: ["01423567", "10253467", "23016457", "32104756"],
             2: ["02134657", "01324576", "10243567", "10235467"],
             3: ["01324657", "01243576", "12035467", "20134567"],
             5: ["01243567", "10325467", "23014657", "32104576"],
             6: ["01243567", "10325467", "01234657", "10324576"],
             4: ["02143657", "10325476", "02143657", "10325476"]}
    tabs = SCHED[Opt.sched] if Opt.sched else ["".join(str(c ^ (p & Opt.xmask)) for c in range(8)) for p in range(4)]
    for t_ in tabs: assert sorted(t_) == list("01234567")
    num = [int(t_[::-1], 16) for t_ in tabs]
    def table(a):
        a.e("s_add_u32 s%d, s%d, s%d" % (sA, sG, sHP))
        a.e("s_mov_b32 s%d, 0x%x" % (sXP, num[0]))
        a.e("s_mov_b32 s%d, 0x%x" % (sB, num[2]))
        a.e("s_bitcmp1_b32 s%d, 0" % sA)
        a.e("s_cselect_b32 s%d, 0x%x, s%d" % (sXP, num[1], sXP))
        a.e("s_cselect_b32 s%d, 0x%x, s%d" % (sB, num[3], sB))
        a.e("s_bitcmp1_b32 s%d, 1" % sA)
        a.e("s_cselect_b32 s%d, s%d, s%d" % (sXP, sB, sXP))
        if Opt.ghx:
            a.e("s_bitcmp1_b32 s%d, 3" % sG)
            a.e("s_cselect_b32 s%d, 0x44444444, 0" % sB)
            a.e("s_xor_b32 s%d, s%d, s%d" % (sXP, sXP, sB))
    fo, fw = {"0000": (0, 0), "0101": (0, 1), "0011": (1, 1), "0123": (0, 2)}["".join(t_[0] for t_ in tabs)]
    a.e("s_add_u32 s%d, s%d, s%d" % (sA, sG, sHP))
    a.e("s_bfe_u32 s%d, s%d, 0x%x" % (sCH, sA, fw << 16 | fo))
    if Opt.ghx: a.e("s_lshl2_add_u32 s%d, s%d, s%d" % (sCH, sD, sCH))
    a.e("s_and_b32 s%d, s%d, 0xc00" % (sWH, sWK))
    a.e("v_and_b32 %s, 0xff, v0" % v(vTID))

    def wvoff(a):
        a.e("v_lshrrev_b32 v2, 4, %s" % v(vTID))
        a.e("v_lshrrev_b32 v3, 5, %s" % v(vTID))
        a.e("v_bfi_b32 v3, 3, v2, v3")
        a.e("v_lshlrev_b32 v3, 1, v3")
        a.e("v_xor_b32 v3, v3, %s" % v(vTID))
        a.e("v_and_b32 v3, 15, v3")
        a.e("s_lshl_b32 s%d, s%d, 8" % (sA, sM))
        a.e("v_lshl_add_u32 v3, v3, 4, s%d" % sA)
        a.e("v_mul_u32_u24 v2, 3584, v2")
        a.e("v_add_u32 %s, v2, v3" % v(vDG))
    def qvoff(a):
        a.e("v_lshrrev_b32 v2, 4, %s" % v(vTID))
        a.e("v_and_b32 v2, 2, v2")
        a.e("v_xor_b32 v2, v2, %s" % v(vTID))
        a.e("v_and_b32 v2, 3, v2")
        a.e("s_lshl_b32 s%d, s%d, 6" % (sA, sHP))
        a.e("v_lshl_add_u32 v2, v2, 4, s%d" % sA)
        a.e("v_lshrrev_b32 v3, 2, %s" % v(vTID))
        a.e("v_lshl_add_u32 %s, v3, 10, v2" % v(vDQ))
    def stouch(a):
        if Opt.diag or Opt.probe >= 0: a.e("s_load_dwordx2 %s, s[0:1], 32" % sp(SWO))
        if not Opt.stch: return
        a.e("s_lshr_b32 s%d, s%d, 2" % (sA, sW))
        if Opt.ghx: a.e("s_lshl2_add_u32 s%d, s%d, s%d" % (sA, sD, sA))
        a.e("s_lshl_b32 s%d, s%d, 6" % (sA, sA))
        a.e("s_and_b32 s%d, s%d, 7" % (sB, sG))
        a.e("s_add_u32 s%d, s%d, s%d" % (sA, sA, sB))
        a.e("s_mul_i32 s%d, s%d, 28" % (sA, sA))
        a.e("s_bfe_u32 s%d, s%d, 0x10001" % (sB, sW))
        a.e("s_lshl1_add_u32 s%d, s%d, s%d" % (sB, sM, sB))
        a.e("s_add_u32 s%d, s%d, s%d" % (sA, sA, sB))
        a.e("s_lshl_b32 s%d, s%d, 7" % (sA, sA))
        a.e("s_bitcmp1_b32 s%d, 0" % sW)
        a.e("s_cselect_b64 %s, %s, %s" % (sp(SWKV), sp(SWU), sp(SWG)))
        a.e("s_add_u32 s%d, s%d, s%d" % (SWKV, SWKV, sA))
        a.e("s_addc_u32 s%d, s%d, 0" % (SWKV + 1, SWKV + 1))
        for i in range(Opt.stch):
            a.e("s_load_dwordx2 %s, %s, 0x%x" % (sp(sTMPP), sp(SWKV), 128 * 3584 + i * 8 * 3584 + 60))
    def wsrd(a):
        srd_words(a, [SWG])
        a.e("s_mov_b64 %s, %s" % (sp(SWU + 2), sp(SWG + 2)))

    if Opt.hrot:
        ORDER = [("q", 0)] + [(t_, 2 * h_ + j) for h_ in range(2) for t_, j in (("x", 0), ("x", 1), ("g", 0), ("u", 0), ("g", 1), ("u", 1))]
    else:
        ORDER = [("q", 0)] + [("x", j) for j in range(4)] + [(t_, j) for j in range(4) for t_ in "gu"]
    def block(items):
        out = []; lastc = None; lastw = None
        for c, kind, j in items:
            s = c % 3; pre = []
            if c != lastc:
                if c: pre.append("s_bfe_u32 s%d, s%d, 0x%x" % (sCH, sXP, 0x30000 + 4 * c))
                lastc = c; lastw = None
            fam = "w" if kind in "gu" else kind
            rot = Opt.hrot and fam != "q"
            if lastw is None or lastw[0] != fam or (rot and lastw[1] >> 1 != j >> 1):
                pre.append({"q": "s_lshl_b32 s%d, s%d, 16" % (sOFFW, sCH), "x": "s_lshl_b32 s%d, s%d, 7" % (sOFFW, sCH),
                            "w": "s_mul_i32 s%d, s%d, %d" % (sOFFW, sCH, 64 * 3584)}[fam])
                if rot: pre.append("s_%s_u32 s%d, s%d, s%d" % ("sub" if j >> 1 else "add", sOFFW, sOFFW, sRX if fam == "x" else sRW))
                lastw = (fam, 0)
            if lastw[1] != j:
                pre.append("s_add_u32 s%d, s%d, 0x%x" % (sOFFW, sOFFW, (j - lastw[1]) * (0x8000 if fam == "x" else 16 * 3584)))
                lastw = (fam, j)
            m0c, vo, rs = {"q": (L_WQ + s * 4096, vDQ, SWQ), "x": (L_X + s * 16384 + j * 4096, vDX, SX),
                           "g": (L_G + s * 16384 + j * 4096, vDG, SWG), "u": (L_U + s * 16384 + j * 4096, vDG, SWU)}[kind]
            nt = " nt" if Opt.ntx & (1 if rs == SX else 2) else ""
            out.append(("s_add_u32 m0, s%d, 0x%x\n%s\nbuffer_load_dwordx4 %s, %s, s%d offen%s lds"
                        % ((sM0B + (j >> 1)) if rot else sWH, m0c, "\n".join(pre) or "s_nop 0", v(vo), srd(rs), sOFFW, nt), "c%d" % c))
        return out
    def part(c, role): return [(c, k_, j) for k_, j in ORDER if (k_ in "gu") == (role == "A")]

    def rdsetup(a):
        setup_rd(a)
        a.e("v_lshl_add_u32 %s, v3, 3, v2" % v(vWA))
        a.e("v_lshlrev_b32 %s, 8, %s" % (v(vWA), v(vWA)))
        a.e("v_lshl_add_u32 %s, v4, 3, %s" % (v(vWA), v(vWA)))
        a.e("v_and_b32 v5, 1, v3")
        a.e("v_lshl_add_u32 v2, v5, 2, v2")
        a.e("s_lshl_b32 s%d, s%d, 2" % (sA, sHI))
        a.e("s_and_b32 s%d, s%d, 1" % (sB, sLO))
        a.e("s_lshl_b32 s%d, s%d, 1" % (sB, sB))
        a.e("s_add_u32 s%d, s%d, s%d" % (sA, sA, sB))
        a.e("v_xor_b32 v2, s%d, v2" % sA)
        a.e("v_lshl_add_u32 %s, v2, 5, %s" % (v(vWA), v(vWA)))
        a.e("v_xor_b32 %s, 32, %s" % (v(vWA + 1), v(vWA)))
        a.e("v_add_u32 %s, 0x%x, %s" % (v(vWA + 2), L_U - L_G, v(vWA)))
        a.e("v_add_u32 %s, 0x%x, %s" % (v(vWA + 3), L_U - L_G, v(vWA + 1)))
        a.e("s_lshl_b32 s%d, s%d, 12" % (sA, sLO))
        a.e("s_add_u32 s%d, s%d, 0x%x" % (sA, sA, L_X))
        a.e("v_add_u32 %s, s%d, %s" % (v(vXA), sA, v(vXA)))
        a.e("v_xor_b32 %s, 0x1000, %s" % (v(vXA + 1), v(vXA)))
        a.e("v_xor_b32 %s, 64, %s" % (v(vXA + 2), v(vXA)))
        a.e("v_xor_b32 %s, 64, %s" % (v(vXA + 3), v(vXA + 1)))
        a.e("v_add_u32 %s, 0x%x, %s" % (v(vQA), L_WQ, v(vQA)))

    a.e("s_cmp_ge_u32 s%d, 4" % sW)
    a.e("s_cbranch_scc1 L_setB")
    late = collect(setup_oclr) + collect(setup_ones) + [("; later", None)] + collect(setup_attn)
    words = collect(lambda t: srd_words(t, [SWS, SKV, SDBG, SWD, SWO, SOUT]))
    late = [x for x in late if x not in words]
    oclr = [x for x in late if x[1] == "oclr"]
    if Opt.olate: late = [x for x in late if x[1] != "oclr"]
    else: oclr = []
    words += [("v_mov_b32 %s, 0" % v(r_), None) for r_ in (vGA, vWDV, vFLA, vHA, vOUTA)]
    st = collect(rdsetup) + words + late[:Opt.fillpre]
    cut = late.index(("; later", None)) if Opt.bidle else len(late)
    fills = {"A": late[Opt.fillpre:], "B": late[Opt.fillpre:max(cut, Opt.fillpre)]}
    idleB = late[max(cut, Opt.fillpre):]
    vms = {}
    wsrd(a); wvoff(a)
    a.e("s_waitcnt lgkmcnt(0)")
    a.stamp(2)
    if Opt.spos == 0: stouch(a)
    put(a, block(part(0, "A")))
    a.e("s_branch L_setA")
    vms["A"] = a.vm; a.vm = []
    a.lab("L_setB")
    srd_words(a, [SX]); xvoff(a, vTID)
    a.e("s_waitcnt lgkmcnt(0)")
    a.stamp(2)
    if Opt.spos == 0: stouch(a)
    put(a, block(part(0, "B")[1:]))
    srd_words(a, [SWQ]); qvoff(a)
    put(a, block(part(0, "B")[:1]))
    vms["B"] = a.vm
    for role in "BA":
        a.vm = vms[role]
        if role == "A": a.lab("L_setA")
        if Opt.spos == 1: stouch(a)
        table(a)
        setup_ids(a)
        if role == "A": srd_words(a, [SX, SWQ])
        else: wsrd(a)
        def touches():
            tm = sum(0xff << (8 * i) for i in range(4) if Opt.tch >> i & 1)
            setex = "s_bitcmp1_b32 s%d, 3\ns_cselect_b32 exec_lo, 0, 0x%x\ns_cselect_b32 exec_hi, 0x%x, 0" % (sG, tm, tm) if Opt.ghx \
                    else "s_mov_b32 exec_lo, 0x%x\ns_mov_b32 exec_hi, 0" % tm
            if Opt.tlb & 2 and role == "B":
                a.e("s_and_b32 s%d, s%d, 7" % (sA, sG))
                a.e("v_lshl_add_u32 v2, v0, 3, s%d" % sA)
                a.e("v_mul_u32_u24 v3, 3584, v2")
                a.e("s_and_b32 s%d, s%d, 1" % (sB, sW))
                a.e("s_lshl1_add_u32 s%d, s%d, s%d" % (sA, sM, sB))
                a.e("s_lshl_b32 s%d, s%d, 7" % (sA, sA))
                a.e(setex)
                a.e("s_cmp_ge_u32 s%d, 6" % sW)
                a.e("s_cbranch_scc1 L_tlbu")
                a.e("buffer_load_dword %s, v3, %s, s%d offen" % (v(vPOLL), srd(SWG), sA))
                a.e("s_branch L_tlbe")
                a.lab("L_tlbu")
                a.e("buffer_load_dword %s, v3, %s, s%d offen" % (v(vPOLL), srd(SWU), sA))
                a.lab("L_tlbe")
                a.e("s_mov_b64 exec, -1")
                a.vm.append("tlb")
            if Opt.tlb & 12 and role == "A":
                a.e("s_cmp_lg_u32 s%d, 0" % sW)
                a.e("s_cbranch_scc1 L_tlbx")
                a.e("s_and_b32 s%d, s%d, 7" % (sA, sG))
                a.e("v_lshl_add_u32 v2, v0, 3, s%d" % sA)
                a.e("v_lshlrev_b32 v3, 10, v2")
                a.e("s_lshl_b32 s%d, s%d, 6" % (sA, sHP))
                a.e(setex if Opt.tlb & 4 else "s_mov_b64 exec, 1")
                a.e("buffer_load_dword %s, v3, %s, s%d offen" % (v(vPOLL), srd(SWQ), sA))
                a.e("s_branch L_tlby")
                a.lab("L_tlbx")
                a.e("s_and_b32 s%d, s%d, 3" % (sA, sM))
                a.e("s_lshl2_add_u32 s%d, s%d, s%d" % (sA, sG, sA))
                a.e("s_lshl_b32 s%d, s%d, 15" % (sA, sA))
                a.e("v_lshl_add_u32 v3, v0, 10, s%d" % sA)
                a.e("s_lshr_b32 s%d, s%d, 3" % (sA, sG))
                a.e("s_lshl2_add_u32 s%d, s%d, s%d" % (sA, sA, sW) if Opt.ghx else "s_mov_b32 s%d, s%d" % (sA, sW))
                a.e("s_lshl_b32 s%d, s%d, 7" % (sA, sA))
                a.e("s_bitcmp1_b32 %d, s%d" % (Opt.tch if Opt.tlb & 8 else 0, sW))
                a.e("s_cselect_b32 exec_lo, -1, 1")
                a.e("s_mov_b32 exec_hi, 0")
                a.e("buffer_load_dword %s, v3, %s, s%d offen" % (v(vPOLL), srd(SX), sA))
                a.lab("L_tlby")
                a.e("s_mov_b64 exec, -1")
                a.vm.append("tlb")
        if Opt.tpos == 0: touches()
        if Opt.startbar: a.e("s_barrier")
        npre = min(Opt.npre, 8) if role == "A" else 5
        pn = block(part(1, role)[:npre])
        rest = st + (collect(qvoff) + collect(lambda t: xvoff(t, vTID)) if role == "A" else collect(wvoff))
        gap = len(rest) // (npre + Opt.pregap) + 1
        if Opt.tpos == 2:
            put(a, pn); touches(); npre = 0
        if Opt.tpos == 3 and role == "B":
            put(a, pn); touches(); npre = 0
        for i in range(npre):
            put(a, pn[:1]); pn = pn[1:]
            put(a, rest[:gap]); rest = rest[gap:]
        put(a, rest)
        if Opt.tpos == 1 or (Opt.tpos == 3 and role == "A"): touches()
        a.e("s_mov_b64 vcc, %d" % (-1 if role == "A" else 0))
        if role == "A":
            a.waitvm("c0", lgkm=True)
        else:
            a.e("s_setprio 1")
            a.waitvm("c0", lgkm=True)
            a.e("s_branch L_k0")
        vms[role] = a.vm
    stream = part(1, "A")[min(Opt.npre, 8):] + [(c, k_, j) for c in range(2, 8) for k_, j in ORDER]
    qa = [int(x, 16) for x in Opt.qa]; qb = [int(x, 16) for x in Opt.qb]
    def take(n, cmax):
        m = 0
        while m < n and m < len(stream) and stream[m][0] <= cmax: m += 1
        r_ = stream[:m]; del stream[:m]
        return block(r_)
    a.lab("L_k0")
    a.vm = vms["A"]
    ool = Asm()
    def dmablock(name, role, items, wait=None):
        a.e("s_cbranch_vcc%s L_%s" % ("nz" if role == "A" else "z", name))
        if wait: a.waitvm(wait, lgkm=True)
        a.lab("L_%s_r" % name)
        ool.lab("L_%s" % name)
        ool.vm = a.vm if role == "A" else vms["B"]
        for it_ in items:
            put(ool, [it_])
            fp = Opt.fillper if role == "A" or not Opt.bidle else 2
            put(ool, fills[role][:fp]); fills[role] = fills[role][fp:]
        if name in ("d7", "e7"): put(ool, fills[role]); fills[role] = []
        if wait: ool.waitvm(wait, lgkm=True)
        if role == "B": vms["B"] = ool.vm
        ool.e("s_branch L_%s_r" % name)
    a.ool = ool.l

    def fr(k):
        b = vF1 + 36 * (k % 2)
        return dict(x=b, w=b + 16, q=b + 32)
    def reads(k):
        c, s = divmod(k, 2); f = fr(k); sl = c % 3
        wo = sl * 16384 + s * 8192
        W = lambda i: [rdtr(f['w'] + 4 * i, vWA + i, wo), rdtr(f['w'] + 4 * i + 2, vWA + i, wo + 1024)]
        X = [rd128(f['x'] + 4 * b, vXA + 2 * s + (b >> 1), sl * 16384 + (b & 1) * 2048) for b in range(4)]
        return W(0) + X + W(2) + W(1) + W(3) + [rdtr(f['q'], vQA, sl * 4096 + s * 2048), rdtr(f['q'] + 2, vQA, sl * 4096 + s * 2048 + 256)]
    a.e("s_barrier")
    a.stamp(3)
    if Opt.kdiag or Opt.probe >= 18:
        kstamp(a, 2)
        a.e("s_waitcnt lgkmcnt(0)")
    for r in reads(0): a.e(r)
    if qa[0]: dmablock("d2", "A", take(qa[0], 2))
    for k in range(16):
        c, s = divmod(k, 2); f = fr(k)
        z = lambda x: None if k == 0 else x
        mf = []
        for n_, i in enumerate((0, 2, 1, 3)):
            for b in (range(4) if n_ % 2 == 0 else range(3, -1, -1)):
                d = vACC + 16 * b + 4 * i
                mf.append(mfma16(d, f['w'] + 4 * i, f['x'] + 4 * b, z(d)))
        for b in range(2): mf.append(mfma16(vAQ + 4 * b, f['q'], f['x'] + 4 * b, z(vAQ + 4 * b)))
        rds = reads(k + 1) if k < 15 else []
        if s == 0:
            a.e("s_waitcnt lgkmcnt(6)")
            for i, m in enumerate(mf):
                if i == 8: a.e("s_waitcnt lgkmcnt(8)")
                a.e(m)
                if i < len(rds): a.e(rds[i])
            continue
        a.e("s_waitcnt lgkmcnt(8)")
        for m in mf[:4]: a.e(m)
        if c <= 5:
            dmablock("e%d" % (c + 2), "B", take(qb[c], c + 2), "c%d" % (c + 1))
            assert not any(x[0] <= c + 1 for x in stream)
        if c == 7:
            a.e("s_waitcnt lgkmcnt(0)")
        elif c == 6:
            a.e("s_waitcnt lgkmcnt(0)")
            a.e("s_cbranch_vccz L_st7")
            a.e("s_setprio 1")
            a.e("s_waitcnt vmcnt(0)")
            a.e("s_barrier")
            a.lab("L_st7")
        else:
            a.e("s_barrier")
        if c < 7 and ((Opt.kdiag == 1 and Opt.diag) or Opt.probe == 21 + c):
            kstamp(a, 3 + c)
            a.e("s_waitcnt lgkmcnt(0)")
        if c + 3 < 8:
            items = take(qa[c + 1], c + 3)
            dmablock("d%d" % (c + 3), "A", items)
        for i, m in enumerate(mf[4:]):
            a.e(m)
            if i < len(rds): a.e(rds[i])
        if k == 11: assert not stream and not fills["A"] and not fills["B"]
        if k == 11:
            a.e("s_cbranch_vccnz L_st6")
            a.e("s_setprio 0")
            nm = next((i for i, x in enumerate(idleB) if "0xdddd" in x[0]), 0)
            a.e("s_cmp_lg_u32 s%d, 4" % sW)
            a.e("s_cbranch_scc1 L_nopoll")
            a.e("buffer_load_dword %s, off, %s, 0 sc1" % (v(vPOLL), srd(SDBG)))
            a.lab("L_nopoll")
            put(a, idleB[:nm]); idleB = idleB[nm:]
            a.wait0()
            spin_counter(a, "kvf", True, 4)
            a.e("s_barrier")
            put(a, kv_first_loads(a, True) + oclr + idleB)
            a.lab("L_st6")
    a.kvA = (kv_first_loads(a) + oclr)[2:]
    a.stamp(4)

def phase1_L(a):
    a.lab("L_light")
    a.vm = []
    a.e("s_waitcnt lgkmcnt(0)")
    ptr_loads(a, ((SWKV, 16), (SWV, 24), (SGATE, 72), (SWO, 32)))
    srd_words(a, [SWKV, SWV, SGATE, SX])
    xvoff(a, 0)
    a.e("v_and_b32 v2, 63, v0")
    a.e("v_lshlrev_b32 %s, 4, v2" % v(vL16))
    a.e("s_sub_u32 s%d, s%d, 14" % (sCNT, sM))
    a.e("s_lshl_b32 s%d, s%d, 16" % (sOLD, sCNT))
    a.e("s_lshl_b32 s%d, s%d, 13" % (sHST, sCNT))
    a.e("s_add_u32 s%d, s%d, s%d" % (sWH, sHST, sWK))
    a.e("s_xor_b32 s%d, s%d, 0x2000" % (sHST, sHST))
    a.e("s_add_u32 s%d, s%d, 0x2000" % (sA, sWK))
    a.e("s_waitcnt lgkmcnt(0)")
    a.stamp(2)
    def xdma(c, base, so):
        a.vmop("s_add_u32 m0, s%d, 0x%x\ns_nop 0\nbuffer_load_dwordx4 %s, %s, s%d offen offset:%d lds"
               % (base, LL_X + c * 16384 - c * 128, v(vDX), srd(SX), so, c * 128), "c%d" % c)
    def wdma(u):
        for t, rs in enumerate((SWKV, SWV)):
            a.vmop("s_add_u32 m0, s%d, 0x%x\ns_nop 0\nbuffer_load_dwordx4 %s, %s, s%d offen lds"
                   % (sWK, LL_W + t * 16384 + u * 8192, v(vL16), srd(rs), sA if u else sWK), "w")
    wdma(0)
    a.vmop("s_mov_b32 m0, s%d\ns_nop 0\nbuffer_load_dwordx4 %s, %s, 0 offen lds" % (sHST, v(vL16), srd(SGATE)), "w")
    for c in range(8):
        if c == 4: wdma(1)
        xdma(c, sWH, sOLD)
        if c in (1, 3, 5): a.e("s_barrier")
    setup_ids(a)
    srd_words(a, [SWQ])
    setup_rd(a)
    a.e("v_lshrrev_b32 v3, 5, v0")
    a.e("v_bfrev_b32 v5, v4")
    a.e("v_lshrrev_b32 v5, 30, v5")
    a.e("s_cmp_ge_u32 s%d, 2" % sLO)
    a.e("s_cselect_b64 vcc, -1, 0")
    a.e("v_cndmask_b32 v4, v5, v4, vcc")
    a.e("v_lshl_add_u32 %s, v3, 3, v2" % v(vWA))
    a.e("v_lshlrev_b32 %s, 5, %s" % (v(vWA), v(vWA)))
    a.e("v_lshl_add_u32 %s, v4, 3, %s" % (v(vWA), v(vWA)))
    a.e("s_lshr_b32 s%d, s%d, 1" % (sA, sLO))
    a.e("s_lshl_b32 s%d, s%d, 14" % (sA, sA))
    a.e("s_add_u32 s%d, s%d, 0x%x" % (sA, sA, LL_W))
    a.e("v_add_u32 %s, s%d, %s" % (v(vWA), sA, v(vWA)))
    a.e("v_lshl_add_u32 %s, v3, 4, s%d" % (v(vWA + 1), sHST))
    a.e("s_and_b32 s%d, s%d, 1" % (sA, sLO))
    a.e("s_lshl_b32 s%d, s%d, 1" % (sB, sCNT))
    a.e("s_add_u32 s%d, s%d, s%d" % (sCNT, sA, sB))
    a.e("s_lshl_b32 s%d, s%d, 12" % (sA, sCNT))
    a.e("v_and_b32 v2, 31, v0")
    a.e("v_lshrrev_b32 v4, 1, v0")
    a.e("v_lshlrev_b32 v5, 1, v0")
    a.e("v_bfi_b32 v4, 4, v4, v5")
    a.e("v_bfi_b32 v4, 12, v4, v2")
    a.e("v_cndmask_b32 v2, v2, v4, vcc")
    a.e("v_bfe_u32 v4, v2, 1, 3")
    a.e("v_xor_b32 v4, v4, v3")
    a.e("v_lshlrev_b32 v4, 4, v4")
    a.e("v_lshl_add_u32 v4, v2, 7, v4")
    a.e("v_add_u32 %s, s%d, v4" % (v(vLX), sA))
    for s in range(1, 4): a.e("v_xor_b32 %s, %d, %s" % (v(vLX + s), 32 * s, v(vLX)))
    for s in range(4): a.e("v_add_u32 %s, 0x10000, %s" % (v(vLX + 4 + s), v(vLX + s)))
    a.e("s_waitcnt lgkmcnt(0)")
    setup_oclr(a)
    vm0 = list(a.vm)
    a.e("s_cmp_lg_u32 s%d, 0" % sHI)
    a.e("s_cbranch_scc1 L_lB")
    a.e("s_not_b64 %s, %s" % (sp(sTMPP), sp(sVM)))
    a.e("s_cmp_ge_u32 s%d, 2" % sLO)
    a.e("s_cbranch_scc1 L_lV")
    def chain(kind):
        a.vm = list(vm0)
        def fr(k):
            b = vFR + 8 * (k % 4)
            return b, b + 4
        def reads(k):
            c, s = divmod(k, 4); x, w = fr(k)
            r = [rd128(x, vLX + s + 4 * (c >> 2), (c & 3) * 16384), rdtr(w, vWA, k * 512), rdtr(w + 2, vWA, k * 512 + 128)]
            if kind == "K":
                r += ["s_mov_b64 exec, %s" % sp(sTMPP), rd128(w, vWA + 1, k * 32), "s_mov_b64 exec, -1"]
            return r
        for q in range(4):
            a.waitvm("c%d" % (2 * q + 1))
            a.e("s_barrier")
            nr = 4 if kind == "K" else 3
            for k in range(8 * q, 8 * q + 2):
                for r in reads(k): a.e(r)
            for k in range(8 * q, 8 * q + 8):
                if k + 2 < 8 * q + 8:
                    for r in reads(k + 2): a.e(r)
                left = min(2, 8 * q + 7 - k)
                a.e("s_waitcnt lgkmcnt(%d)" % (left * nr))
                x, w = fr(k)
                cc = None if k == 0 else vACC
                a.e(mfma(vACC, w, x, cc) if kind == "K" else mfma(vACC, x, w, cc))
        a.e("s_lshl_b32 s%d, s%d, 2" % (sA, sG))
        a.e("s_add_u32 s%d, s%d, s%d" % (sA, sA, sCNT))
        a.e("s_nop 12")
        if kind == "K":
            a.e("s_mov_b32 s%d, 0x%x" % (sC, f2u(0.25 * math.log2(math.e))))
            for i in range(8): a.e("v_mul_f32 %s, s%d, %s" % (v(vACC + i), sC, v(vACC + i)))
            a.e("v_mul_f32 %s, 0x%x, %s" % (v(vACC + 8), f2u(-math.log2(math.e)), v(vACC + 8)))
            a.e("v_exp_f32 %s, %s" % (v(vACC + 8), v(vACC + 8)))
            for i in range(4): a.e("v_cvt_pk_bf16_f32 %s, %s, %s" % (v(vFR + i), v(vACC + 2 * i), v(vACC + 2 * i + 1)))
            a.e("v_add_f32 %s, 1.0, %s" % (v(vACC + 8), v(vACC + 8)))
            a.e("v_rcp_f32 %s, %s" % (v(vACC + 8), v(vACC + 8)))
            a.e("s_add_u32 s%d, s%d, 63" % (sB, sA))
            a.e("s_and_b32 s%d, s%d, 63" % (sB, sB))
            a.e("s_lshl_b32 s%d, s%d, 11" % (sB, sB))
            a.e("buffer_store_dwordx4 %s, %s, %s, s%d offen sc1" % (v(vFR, 4), v(vL16), srd(SKV), sB))
            a.e("s_lshl_b32 s%d, s%d, 7" % (sB, sA))
            a.e("s_add_u32 s%d, s%d, 0x%x" % (sB, sB, WS_G))
            a.e("s_mov_b32 exec_hi, 0")
            a.e("buffer_store_dword %s, %s, %s, s%d offen sc1" % (v(vACC + 8), v(vGA), srd(SWS), sB))
            a.e("s_mov_b64 exec, -1")
        else:
            for i in range(8): a.e("v_cvt_pk_bf16_f32 %s, %s, %s" % (v(vFR + i), v(vACC + 2 * i), v(vACC + 2 * i + 1)))
            a.e("v_bfe_u32 v2, v0, 4, 1")
            a.e("v_add_u32 v2, s%d, v2" % sA)
            a.e("v_and_b32 v2, 63, v2")
            a.e("v_lshl_add_u32 v2, v2, 11, %s" % v(vL16))
            for i in range(4): a.e("v_cndmask_b32 %s, %s, %s, %s" % (v(vFR + i), v(vFR + 4 + i), v(vFR + i), sp(sVM)))
            a.e("buffer_store_dwordx4 %s, v2, %s, 0 offen offset:1024 sc1" % (v(vFR, 4), srd(SKV)))
        a.e("s_branch L_lJ")
    chain("K")
    a.lab("L_lV")
    chain("V")
    a.lab("L_lB")
    a.vm = list(vm0)
    a.e("s_cmp_lg_u32 s%d, 14" % sM)
    a.e("s_cbranch_scc1 L_nozf")
    a.e("s_cmp_lg_u32 s%d, 4" % sW)
    a.e("s_cbranch_scc1 L_nozf")
    a.e("v_lshlrev_b32 v2, 7, v0")
    a.e("s_lshl_b32 s%d, s%d, 11" % (sA, sG))
    a.e("s_add_u32 s%d, s%d, 0x%x" % (sA, sA, WS_HFLAG))
    a.e("s_mov_b64 exec, 0xffff")
    a.e("buffer_store_dword %s, v2, %s, s%d offen sc1" % (v(vZERO), srd(SWS), sA))
    a.e("s_mov_b64 exec, -1")
    a.lab("L_nozf")
    for q in range(4):
        a.waitvm("c%d" % (2 * q + 1))
        a.e("s_barrier")
    a.lab("L_lJ")
    a.e("v_lshrrev_b32 v3, 2, v0")
    a.e("v_lshlrev_b32 v3, 10, v3")
    a.e("v_lshrrev_b32 v4, 5, v0")
    a.e("v_lshlrev_b32 v4, 1, v4")
    a.e("v_xor_b32 v4, v4, v0")
    a.e("v_and_b32 v4, 3, v4")
    a.e("v_lshl_add_u32 v3, v4, 4, v3")
    a.e("s_lshl_b32 s%d, s%d, 14" % (sA, sW))
    a.e("s_lshl_b32 s%d, s%d, 6" % (sB, sHP))
    a.e("s_add_u32 s%d, s%d, s%d" % (sA, sA, sB))
    a.e("v_add_u32 %s, s%d, v3" % (v(vDQ), sA))
    a.e("s_xor_b32 s%d, s%d, 0x2000" % (sWH, sWH))
    a.e("s_xor_b32 s%d, s%d, 0x10000" % (sOLD, sOLD))
    a.wait0(lgkm=True)
    a.e("s_barrier")
    a.e("s_cmp_lg_u32 s%d, 0" % sW)
    a.e("s_cbranch_scc1 L_noat")
    a.e("s_mov_b64 exec, 1")
    a.e("buffer_atomic_add %s, off, %s, 0 sc1" % (v(vONE), srd(SDBG)))
    a.e("s_mov_b64 exec, -1")
    a.lab("L_noat")
    a.stamp(3)
    for c in range(8): xdma(c, sWH, sOLD)
    for p in range(4):
        a.e("s_add_u32 m0, s%d, 0x%x" % (sWK, LL_WQ + p * 8192))
        a.e("s_mov_b32 s%d, 0x%x" % (sA, p * 128 * 1024))
        a.e("buffer_load_dwordx4 %s, %s, s%d offen lds" % (v(vDQ), srd(SWQ), sA))
    setup_ones(a)
    setup_attn(a)
    if Opt.touch & 2:
        a.e("s_lshl_b32 s%d, s%d, 1" % (sA, sG))
        a.e("s_add_u32 s%d, s%d, s%d" % (sA, sA, sM))
        a.e("s_sub_u32 s%d, s%d, 14" % (sA, sA))
        a.e("s_lshl_b32 s%d, s%d, 3" % (sA, sA))
        a.e("s_add_u32 s%d, s%d, s%d" % (sA, sA, sW))
        a.e("v_lshlrev_b32 v2, 15, v0")
        a.e("s_lshl_b32 s%d, s%d, 7" % (sA, sA))
        a.e("buffer_load_dword %s, v2, %s, s%d offen" % (v(vPOLL), srd(SWO), sA))
        a.e("buffer_load_dword %s, v2, %s, s%d offen" % (v(vPOLL), srd(SWD), sA))
    a.e("s_lshl_b32 s%d, s%d, 12" % (sA, sLO))
    a.e("v_add_u32 %s, s%d, %s" % (v(vXA), sA, v(vXA)))
    a.e("v_xor_b32 %s, 64, %s" % (v(vXA + 1), v(vXA)))
    a.e("v_add_u32 %s, 0x10000, %s" % (v(vXA + 2), v(vXA)))
    a.e("v_add_u32 %s, 0x10000, %s" % (v(vXA + 3), v(vXA + 1)))
    a.e("v_add_u32 %s, 0x%x, %s" % (v(vQA), LL_WQ, v(vQA)))
    a.e("s_waitcnt vmcnt(%d)" % (2 if Opt.touch & 2 else 0))
    a.e("s_barrier")
    def fr(k): return vFR + 12 * (k % 3)
    def reads(k):
        c, s = divmod(k, 2); f = fr(k)
        return [rd128(f + 4 * b, vXA + s + 2 * (c >> 2), (c & 3) * 16384 + b * 2048) for b in range(2)] + \
               [rdtr(f + 8, vQA, k * 2048), rdtr(f + 10, vQA, k * 2048 + 256)]
    for k in range(2):
        for r in reads(k): a.e(r)
    for k in range(16):
        a.e("s_waitcnt lgkmcnt(%d)" % (4 * min(1, 15 - k)))
        for b in range(2): a.e(mfma16(vAQ + 4 * b, fr(k) + 8, fr(k) + 4 * b, None if k == 0 else vAQ + 4 * b))
        if k + 2 < 16:
            for r in reads(k + 2): a.e(r)
    spin_counter(a, "kvl", False)
    a.e("s_barrier")
    for s, t in kv_first_loads(a): a.e(s)
    a.wait0()
    a.stamp(4)
    a.e("s_branch L_join")

def gelu_tile(a, ti, scalar=False):
    acc = vACC + 16 * ti
    t = vFR
    o = vFR + 8 + 4 * ti
    pk = lambda r: v(r, 2)
    if scalar:
        for i in range(8): a.e("v_mul_f32 %s, %s, %s" % (v(t + i), v(acc + i), v(acc + i)))
        for i in range(8): a.e("v_fma_f32 %s, %s, %s, %s" % (v(t + i), v(t + i), v(vC0 + 1), v(vC0)))
        for i in range(8): a.e("v_mul_f32 %s, %s, %s" % (v(t + i), v(t + i), v(acc + i)))
        for i in range(8): a.e("v_exp_f32 %s, %s" % (v(t + i), v(t + i)))
        for i in range(8): a.e("v_add_f32 %s, 1.0, %s" % (v(t + i), v(t + i)))
        for i in range(8): a.e("v_rcp_f32 %s, %s" % (v(t + i), v(t + i)))
        for i in range(8): a.e("v_mul_f32 %s, %s, %s" % (v(acc + i), v(acc + i), v(acc + 8 + i)))
        for i in range(8): a.e("v_mul_f32 %s, %s, %s" % (v(acc + i), v(acc + i), v(t + i)))
    R4, R8 = (range(0), range(0)) if scalar else (range(4), range(8))
    for i in R4: a.e("v_pk_mul_f32 %s, %s, %s" % (pk(t + 2 * i), pk(acc + 2 * i), pk(acc + 2 * i)))
    for i in R4: a.e("v_pk_fma_f32 %s, %s, %s, %s op_sel:[0,1,0] op_sel_hi:[1,1,0]" % (pk(t + 2 * i), pk(t + 2 * i), pk(vC0), pk(vC0)))
    for i in R4: a.e("v_pk_mul_f32 %s, %s, %s" % (pk(t + 2 * i), pk(t + 2 * i), pk(acc + 2 * i)))
    for i in R8: a.e("v_exp_f32 %s, %s" % (v(t + i), v(t + i)))
    for i in R4: a.e("v_pk_add_f32 %s, %s, 1.0 op_sel_hi:[1,0]" % (pk(t + 2 * i), pk(t + 2 * i)))
    for i in R8: a.e("v_rcp_f32 %s, %s" % (v(t + i), v(t + i)))
    for i in R4: a.e("v_pk_mul_f32 %s, %s, %s" % (pk(acc + 2 * i), pk(acc + 2 * i), pk(acc + 8 + 2 * i)))
    for i in R4: a.e("v_pk_mul_f32 %s, %s, %s" % (pk(acc + 2 * i), pk(acc + 2 * i), pk(t + 2 * i)))
    for i in range(4): a.e("v_cvt_pk_bf16_f32 %s, %s, %s" % (v(o + i), v(acc + 2 * i), v(acc + 2 * i + 1)))
    a.vmop("buffer_store_dwordx4 %s, %s, %s, s%d offen offset:%d sc1" % (v(o, 4), v(vHA), srd(SWS), sHST2 if ti >> 1 else sHST, (ti & 1) * 256), "hst")

def Yseg(hset, toggle=False):
    out = []
    for t in range(2):
        extra = False and hset < 2 and t == Opt.xtile
        pos = [int(x, 17) for x in (Opt.ypos0 if hset is None else Opt.ypos2 if extra else Opt.ypos1)]
        S, Sn = vS + 16 * t, vS + 16 * (1 - t)
        K, V0, V1 = vKF + 4 * t, vV + 8 * t, vV + 8 * t + 4
        for e in range(1, 17):
            out.append("v_exp_f32 %s, %s" % (v(S + e - 1), v(S + e - 1)))
            if e == pos[0]: out.append(smfmac(vO, V1, Sn + 8))
            if e == pos[1]: out.append(mfma(Sn, K, vQ, None))
            if e == pos[2]: out.append(smfmac(vO, V0, S))
            if hset is not None:
                if e == 13 and t == 1 and toggle:
                    out.append("v_xor_b32 %s, 0x4000, %s" % (v(vKVB), v(vKVB)))
                if e == pos[3]: out.append(mfma(vD + 16 * t, vWF + 4 * t, vH + 4 * hset, vD + 16 * t))
                if extra and e == pos[4]: out.append(mfma(vD + 16 * hset, vWX + 4 * hset, vH + 16, vD + 16 * hset))
    return out

def kv_reads(off, vKVA=vKVA):
    r = [rd128(vKF, vKVA, off), rd128(vKF + 4, vKVA, off + 2048), "s_mov_b64 exec, %s" % sp(sVM)]
    for t in range(2):
        r += [rd128(vV + 8 * t, vKVA, off + 2048 * t + 1024), rd128(vV + 8 * t + 4, vKVA, off + 2048 * t + 1280)]
    r.append("s_mov_b64 exec, -1")
    return r
def wd_reads(dst, addr, off):
    r = []
    for c in range(2):
        r += [rdtr(dst + 4 * c, addr, off + 512 * c), rdtr(dst + 4 * c + 2, addr, off + 512 * c + 1024)]
    return r

def hord(): return [0, 2, 4, 6, 1, 3, 5, 7] if Opt.hord else list(range(8))
def wdrow(sg): return (32 * (sg >> 1) + 8 * (sg & 1)) * 1024

def attention(a, role, pre0=None):
    A = role == "A"
    def kvdma(u):
        a.vmop("s_add_u32 m0, s%d, 0x%x\ns_add_u32 s%d, s%d, 0x%x\nbuffer_load_dwordx4 %s, %s, s%d offen sc1 lds"
               % (sWK, L_KV + (u % 4) * 8192, sA, sWK, u * 8192, v(vL16), srd(SKV), sA), "kv%d" % u)
    def wddma(sg):
        a.vmop("s_add_u32 m0, s%d, 0x%x\ns_add_u32 s%d, s%d, 0x%x\nbuffer_load_dwordx4 %s, %s, s%d offen lds"
               % (sWK, L_WD + (sg % 4 if sg < 23 or sg == 27 else sg - 19) * 8192, sA, sWDOFF, wdrow(sg), v(vWDV), srd(SWD), sA), "wd%d" % sg)
    def wodma(j):
        a.vmop("s_add_u32 m0, s%d, 0x%x\ns_add_u32 s%d, s%d, 0x%x\nbuffer_load_dwordx4 %s, %s, s%d offen lds"
               % (sWK, L_WO + j * 8192, sA, sB, j * 16384, v(vWDV), srd(SWO), sA), "wo")
    def hload(sg, dst):
        a.vmop("s_add_u32 s%d, s%d, 0x%x\nbuffer_load_dwordx4 %s, %s, %s, s%d offen sc1"
               % (sA, sHOFF, sg * 1024, v(dst, 4), v(vL16), srd(SWS), sA), "h%d" % sg)
    for n in range(12):
        if not A and n == 0: a.e("s_barrier")
        if n % 2 == 1: astamp(a, 2 + n // 2)
        tags = []
        if A and n % 2 == 1: tags.append("kv%d" % ((n + 1) // 2))
        if not A and n % 2 == 0: tags.append("kv%d" % ((n + 2) // 2))
        if n == (3 if A else 2): tags.append("hst")
        if n == 6: tags.append("wo")
        if n == 9: tags.append("wd27")
        if n == 11: tags.append("wd0")
        if n == 9 and A:
            a.e("s_cmp_lg_u32 s%d, 0" % sW)
            a.e("s_cbranch_scc1 L_hf_done")
            a.e("s_mov_b32 s%d, 0x4000" % sB)
            a.e("s_waitcnt vmcnt(0)")
            a.lab("L_hf_chk")
            a.e("v_cmp_ne_u32 vcc, 1, %s" % v(vPOLL))
            a.e("s_cbranch_vccz L_hf_done")
            a.e("s_sleep 2")
            a.e("buffer_load_dword %s, %s, %s, 0 offen sc1" % (v(vPOLL), v(vFLA), srd(SWS)))
            a.e("s_sub_u32 s%d, s%d, 1" % (sB, sB))
            a.e("s_cmp_lg_u32 s%d, 0" % sB)
            a.e("s_waitcnt vmcnt(0)")
            a.e("s_cbranch_scc1 L_hf_chk")
            a.lab("L_hf_done")
        a.waitvm(tags)
        if n == 5 and Opt.diag == 3 and A:
            a.e("v_mov_b32 v2, s%d" % sSTAMP)
            a.e("s_lshl_b32 s%d, s2, 3" % sA)
            a.e("s_add_u32 s%d, s%d, s%d" % (sA, sA, sW))
            a.e("s_lshl_b32 s%d, s%d, 7" % (sA, sA))
            a.e("s_add_u32 s%d, s%d, 0x%x" % (sA, sA, WS_STAMP))
            a.e("s_mov_b64 exec, 1")
            a.vmop("buffer_store_dword v2, off, %s, s%d offset:12 sc1" % (srd(SWS), sA), "st")
            a.e("s_mov_b64 exec, -1")
        if n == 3 and not A:
            a.e("s_cmp_ge_u32 s%d, 14" % sM)
            a.e("s_cbranch_scc1 L_nohf")
            a.e("s_cmp_lg_u32 s%d, 4" % sW)
            a.e("s_cbranch_scc1 L_nohf")
            a.e("s_lshl_b32 s%d, s%d, 4" % (sA, sG))
            a.e("s_add_u32 s%d, s%d, s%d" % (sA, sA, sM))
            a.e("s_lshl_b32 s%d, s%d, 7" % (sA, sA))
            a.e("s_add_u32 s%d, s%d, 0x%x" % (sA, sA, WS_HFLAG))
            a.e("s_mov_b64 exec, 1")
            a.e("buffer_store_dword %s, off, %s, s%d sc1" % (v(vONE), srd(SWS), sA))
            a.e("s_mov_b64 exec, -1")
            a.lab("L_nohf")
        for r in kv_reads((n % 8) * 4096): a.e(r)
        if n == 8 and A:
            a.e("s_cmp_lg_u32 s%d, 0" % sW)
            a.e("s_cbranch_scc1 L_hf_nol")
            a.e("buffer_load_dword %s, %s, %s, 0 offen sc1" % (v(vPOLL), v(vFLA), srd(SWS)))
            a.lab("L_hf_nol")
        if n == 0:
            kvdma(2); kvdma(3)
            a.e("s_mov_b32 s%d, s%d" % (sC, sKQ))
            a.e("s_mul_i32 s%d, s%d, %d" % (sWDOFF, sC, 448 * 1024))
            a.e("s_and_b32 s%d, s%d, 1" % (sB, sW))
            a.e("s_lshl_b32 s%d, s%d, 14" % (sA, sB))
            a.e("s_add_u32 s%d, s%d, s%d" % (sWDOFF, sWDOFF, sA))
            a.e("s_lshl_b32 s%d, s%d, 1" % (sA, sT))
            a.e("s_add_u32 s%d, s%d, s%d" % (sA, sA, sB))
            a.e("s_mul_i32 s%d, s%d, 112" % (sA, sA))
            a.e("s_mul_i32 s%d, s%d, 28" % (sB, sC))
            a.e("s_add_u32 s%d, s%d, s%d" % (sA, sA, sB))
            a.e("s_lshl_b32 s%d, s%d, 10" % (sA, sA))
            a.e("s_add_u32 s%d, s%d, 0x%x" % (sHOFF, sA, WS_HF))
        if (A and n % 2 == 1 and n >= 3): kvdma((n + 5) // 2)
        if (not A and n % 2 == 0 and n >= 2): kvdma((n + 6) // 2)
        if 1 <= n <= 4:
            a.e("s_lshl_b32 s%d, s%d, 17" % (sB, sKQ))
            a.e("s_and_b32 s%d, s%d, 1" % (sC, sW))
            a.e("s_lshl_b32 s%d, s%d, 13" % (sC, sC))
            a.e("s_add_u32 s%d, s%d, s%d" % (sB, sB, sC))
            for j in (2 * n - 2, 2 * n - 1): wodma(j)
        for sg in {5: (27, 23, 24), 6: (25, 26, 0), 7: (1, 2)}.get(n, ()): wddma(sg)
        if n == 10:
            for r in wd_reads(vWX, vWDA, 3 * 8192): a.e(r)
        for j in {7: (0,), 8: (1, 2), 9: (3,), 11: (4,)}.get(n, ()):
            for r in wd_reads(WOF[j], vWOA, hord()[j] * 8192): a.e(r)
        hs = {10: (0, 1, 23, 24), 11: (2, 25, 26, 27)} if A else {9: (0, 1, 23), 10: (2, 24), 11: (25, 26, 27)}
        for sg in hs.get(n, ()): hload(sg, vH + 4 * sg if sg < 4 else vHX if sg == 27 else vH + 4 * (sg - 19))
        if n == 11:
            a.e("s_add_u32 s%d, s%d, 0x%x" % (sHOFF, sHOFF, 3 * 1024))
            a.e("s_add_u32 s%d, s%d, 0x%x" % (sWDOFF, sWDOFF, wdrow(3)))
            a.e("s_add_u32 s%d, s%d, 0x%x" % (sKVOFF, sWK, 9 * 8192))
            a.e("s_mov_b32 s%d, 5" % sCNT)
            a.e("s_add_u32 s%d, s%d, 0x1000" % (sOLD2, sOLD))
            a.e("s_mov_b32 s%d, 0x%x" % (sLO_, f2u(2.0 ** -16)))
            a.e("s_mov_b32 s%d, 0x%x" % (sRNG, f2u(2.0 ** 100) - f2u(2.0 ** -16)))
        if n == 0 and pre0:
            pre0()
            a.stamp(5)
        a.e("s_waitcnt lgkmcnt(0)")
        a.e("s_call_b64 %s, L_Y%s" % (sp(sRET), role))
        if n == 0:
            a.e("s_branch L_X1%s" % role)
            a.lab("L_Y%s" % role)
            if A: a.e("s_barrier")
            for x in Yseg(None): a.e(x)
            if not A: a.e("s_barrier")
            a.e("s_setpc_b64 %s" % sp(sRET))
            a.lab("L_X1%s" % role)
    vm = list(a.vm); need = [63] * 4
    for n in range(12, 32):
        p, it = n % 4, (n - 12) // 4
        tags = ["wd%d" % (n - 11), "h%d" % (n - 12)]
        if (p % 2 == 1) == A: tags.append("kv%d" % ((n + (1 if A else 2)) // 2))
        idx = [i for i, t in enumerate(vm) if t in tags]
        if idx: need[p] = min(need[p], len(vm) - 1 - max(idx))
        vm.append("wd%d" % (n - 9))
        vm.append("h%d" % (n - 9))
        if (p % 2 == 1) == A: vm.append("kv%d" % ((n + (5 if A else 6)) // 2))
    a.lab("L_loop%s" % role)
    for p in range(4):
        if p == 0 and Opt.diag and Opt.kdiag == 2:
            a.e("s_cmp_lg_u32 s%d, 4" % sCNT)
            a.e("s_cbranch_scc1 L_nst%s" % role)
            astamp(a, 8)
            a.lab("L_nst%s" % role)
        a.e("s_waitcnt vmcnt(%d)" % need[p])
        for r in kv_reads(p * 4096, vKVB): a.e(r)
        for r in wd_reads(vWF, vWDA, p * 8192): a.e(r)
        a.e("s_add_u32 m0, s%d, 0x%x" % (sWK, L_WD + ((p + 3) % 4) * 8192))
        a.e("s_and_b32 s%d, s%d, 0x7fff" % (sA, sKVOFF))
        a.e("buffer_load_dwordx4 %s, %s, s%d offen lds" % (v(vWDV), srd(SWD), sWDOFF))
        a.e("s_add_u32 s%d, s%d, 0x%x" % (sWDOFF, sWDOFF, 0x2000 if p & 1 else 0x6000))
        a.e("buffer_load_dwordx4 %s, %s, %s, s%d offen sc1" % (v(vH + 4 * ((p + 3) % 4), 4), v(vL16), srd(SWS), sHOFF))
        if (p % 2 == 1) == A:
            a.e("s_add_u32 m0, s%d, 0x%x" % (sA, L_KV))
        a.e("s_add_u32 s%d, s%d, 0x400" % (sHOFF, sHOFF))
        if (p % 2 == 1) == A:
            a.e("buffer_load_dwordx4 %s, %s, s%d offen sc1 lds" % (v(vL16), srd(SKV), sKVOFF))
            a.e("s_add_u32 s%d, s%d, 0x2000" % (sKVOFF, sKVOFF))
        if p == 3:
            a.e("s_sub_u32 s%d, s%d, 1" % (sCNT, sCNT))
            a.e("s_cmp_lg_u32 s%d, 0" % sCNT)
        a.e("s_waitcnt lgkmcnt(0)")
        if A: a.e("s_barrier")
        for x in Yseg(p, toggle=(p == 3)): a.e(x)
        if not A:
            if p == 3: a.e("s_cbranch_scc0 L_tail")
            a.e("s_barrier")
    a.e(("s_cbranch_scc1 L_loop%s" if A else "s_branch L_loop%s") % role)

def transition(a, role):
    A = role == "A"
    if A:
        a.vm = []
        a.lab("L_trA")
    else:
        a.lab("L_join")
        a.e("s_cmp_eq_u32 s%d, 0" % sHI)
        a.e("s_cbranch_scc1 L_trA")
        a.vmjoin = list(a.vm)
    def qfin():
        for i in range(4): a.e("v_cvt_pk_bf16_f32 %s, %s, %s" % (v(vQ + i), v(vAQ + 2 * i), v(vAQ + 2 * i + 1)))
        for i in range(8): a.e("v_mov_b32 %s, 0" % v(vS + 24 + i))
        a.e("v_add_u32 %s, 0x%x, %s" % (v(vWOA), L_WO, v(vWDA)))
        a.e("v_permlane16_swap_b32 %s, %s" % (v(vQ), v(vQ + 2)))
        a.e("v_permlane16_swap_b32 %s, %s" % (v(vQ + 1), v(vQ + 3)))
    pre0 = None
    if A:
        a.e("s_setprio 1")
        a.e("s_cmp_ge_u32 s%d, 14" % sM)
        a.e("s_cbranch_scc1 L_nogA0")
        put(a, a.kvA[:1] + a.kvA[-1:])
        a.l.append(".p2align 3")
        for ti in range(Opt.gsc): gelu_tile(a, ti, True)
        a.lab("L_nogA0")
        qfin()
        a.waitvm(["k0", "kv0", "kv1"])
        a.e("s_setprio 0")
        a.e("s_barrier")
        a.e(mfma(vS, vK0, vQ, None))
        put(a, a.kvA[1:-1])
        def pre0():
            a.e("s_cmp_lt_u32 s%d, 14" % sM)
            a.e("s_cbranch_scc1 L_gA1")
            a.e("s_waitcnt vmcnt(0)")
            a.e("s_branch L_nogA1")
            a.l.append(".p2align 3")
            a.lab("L_gA1")
            for ti in range(Opt.gsc, 4): gelu_tile(a, ti)
            a.lab("L_nogA1")
            a.e("s_setprio 2")
    else:
        a.waitvm(["k0", "kv0", "kv1"])
        a.e("s_setprio 1")
        a.e("s_cmp_ge_u32 s%d, 14" % sM)
        a.l.append(".p2align 3")
        a.e("s_barrier")
        a.e("s_cbranch_scc1 L_nogB")
        for ti in range(4): gelu_tile(a, ti)
        a.lab("L_nogB")
        qfin()
        a.e("s_nop 1")
        a.e(mfma(vS, vK0, vQ, None))
        a.stamp(5)
    attention(a, role, pre0)
    if A:
        a.stamp(6); astamp(a, 9); tstamp(a, 2)
        if Opt.diag and Opt.kdiag == 2: a.e("s_waitcnt lgkmcnt(0)")
        a.e(smfmac(vO, vV1L, vS + 24))
        a.e("s_setprio 0")
        a.e("s_cmp_eq_u32 s%d, 0" % sHI)
        a.e("s_nop 9")
        normalise(a, False)
        a.e("s_branch L_fbret")

def normalise(a, packed):
    t = vT0
    a.e("v_rcp_f32 %s, %s" % (v(t + 2), v(vO + 8)))
    a.e("s_nop 0")
    a.e("v_mul_f32_e64 %s, %s, %s" % (v(t + 2), v(t + 2), v(vGP)))
    if packed:
        for i in range(4): a.e("v_pk_mul_f32 %s, %s, %s op_sel_hi:[1,0]" % (v(vO + 2 * i, 2), v(vO + 2 * i, 2), v(t + 2, 2)))
        for i in range(4):
            a.e("v_pk_fma_f32 %s, %s, 0, %s op_sel_hi:[1,0,%d]" % (v(t, 2), v(vO + 2 * i, 2), v(t, 2) if i else v(vO + 8, 2), 1 if i else 0))
            a.e("v_cvt_pk_bf16_f32 %s, %s, %s" % (v(vPK + i), v(vO + 2 * i), v(vO + 2 * i + 1)))
        a.e("v_fmac_f32 %s, 0, %s" % (v(t), v(t + 1)))
    else:
        t = vO + 8
        for i in range(8): a.e("v_mul_f32 %s, %s, %s" % (v(vO + i), v(vT0 + 2), v(vO + i)))
        for i in range(4):
            a.e("v_fmac_f32 %s, 0, %s" % (v(t), v(vO + 2 * i)))
            a.e("v_cvt_pk_bf16_f32 %s, %s, %s" % (v(vPK + i), v(vO + 2 * i), v(vO + 2 * i + 1)))
            a.e("v_fmac_f32 %s, 0, %s" % (v(t), v(vO + 2 * i + 1)))
    a.e("v_subrev_u32 %s, s%d, %s" % (v(t), sLO_, v(t)))
    a.e("v_cmp_lt_u32 vcc, s%d, %s" % (sRNG, v(t)))
    a.e("s_branch L_fb" if Opt.force_fb else "s_cbranch_vccnz L_fb")

def tail(a):
    a.l.append(".p2align 3")
    a.lab("L_tail")
    a.stamp(6)
    astamp(a, 9)
    if Opt.diag and Opt.kdiag == 2: a.e("s_waitcnt lgkmcnt(0)")
    tstamp(a, 2)
    a.e(smfmac(vO, vV1L, vS + 24))
    wf = [vFR, vFR + 8, vFR + 16]
    HORD = hord()
    def oload(j):
        return "buffer_load_dwordx4 %s, %s, %s, s%d offen offset:%d %s" % (
            v(vS + 4 * j, 4), v(vL16), srd(SWS), sOLD if HORD[j] < 4 else sOLD2, (HORD[j] % 4) * 1024, Opt.old_pol)
    a.oload = oload
    a.e("s_cmp_eq_u32 s%d, 0" % sHI)
    a.e("s_nop 10")
    normalise(a, True)
    a.lab("L_fbret")
    a.e("buffer_store_dwordx4 %s, %s, %s, s%d offen sc1" % (v(vPK, 4), v(vL16), srd(SWS), sOST))
    tstamp(a, 3)
    aw = [vAW0, vWOA + 1, vWOA + 2, vWOA + 3]
    ar = [vAR0, vFLA]
    wo = WOF
    def fetch(o, scale):
        for j in range(8):
            o.e(oload(j))
            if j >= 5:
                for r in wd_reads(wo[j], vWOA, HORD[j] * 8192): o.e(r)
            if scale and j >= 4:
                for i in range(4 * j - 16, 4 * j - 12): o.e("v_mul_f32 %s, %s, %s" % (v(vD + i), v(vGC), v(vD + i)))
    def addrs(a):
        a.e("v_sub_f32 %s, 1.0, %s" % (v(vGC), v(vGC)))
        for j in range(1, 4): a.e("v_xor_b32 %s, %d, %s" % (v(aw[j]), 32 * j, v(aw[0])))
        a.e("v_xor_b32 %s, 16, %s" % (v(ar[1]), v(ar[0])))
        a.e("s_mov_b32 s%d, 0x2000" % sB)
    ol = Asm(); a.ool2 = ol.l
    a.e("s_waitcnt vmcnt(1)")
    tstamp(a, 4)
    a.e("s_barrier")
    a.e("s_cbranch_scc1 L_tl6")
    a.lab("L_tl2")
    tstamp(a, 5)
    ol.lab("L_tl6")
    fetch(ol, False)
    ol.e("s_branch L_tl2")
    fl = collect(addrs)
    slot = [4, 5, 6, 7, 0, 1, 2]
    rds = sum((wd_reads(wf[i % 3], vWDA, slot[i] * 8192) for i in range(7)), [])
    for r in rds[:4]: a.e(r)
    done = 4
    for i in range(-1, 7):
        for c in range(2):
            if i >= 0: a.e("s_waitcnt lgkmcnt(%d)" % (done - (4 * i + 2 * c + 2)))
            a.e(mfma(vD + 16 * c, vWX + 4 * c, vHX, vD + 16 * c) if i < 0 else
                mfma(vD + 16 * c, wf[i % 3] + 4 * c, vH + 4 * slot[i], vD + 16 * c))
            if done < len(rds):
                for r in rds[done:done + 2]: a.e(r)
                done += 2
            else:
                put(a, fl[:2]); fl = fl[2:]
    assert not fl
    tstamp(a, 6)
    a.e("s_cbranch_scc0 L_tl3")
    a.e("s_barrier")
    a.e("s_nop 8")
    for i in range(16): a.e("v_mul_f32 %s, %s, %s" % (v(vD + i), v(vGC), v(vD + i)))
    tstamp(a, 7)
    a.lab("L_tl4")
    tstamp(a, 8)
    ol.lab("L_tl3")
    ol.e("s_setprio 0")
    fetch(ol, True)
    ol.e("s_waitcnt lgkmcnt(0)")
    tstamp(ol, 7)
    ol.e("s_barrier")
    ol.e("s_branch L_tl4")
    a.stamp(7)
    def check(j):
        o = vS + 4 * j
        return ["s_waitcnt vmcnt(%d)" % (7 - j), "v_max3_u32 v2, %s, %s, %s" % (v(o), v(o + 1), v(o + 2)),
                "v_max_u32 v2, v2, %s" % v(o + 3), "v_cmp_eq_u32 vcc, -1, v2"]
    a.check = check
    for x in check(0): a.e(x)
    for j in range(10):
        if j < 8:
            a.e("s_cbranch_vccnz L_ore%d" % j)
            a.lab("L_ook%d" % j)
            a.e(mfma(vD, wo[j], vS + 4 * j, vD))
        if j < 2:
            for i in range(16 + 8 * j, 24 + 8 * j): a.e("v_mul_f32 %s, %s, %s" % (v(vD + i), v(vGC), v(vD + i)))
        if j >= 2 and Opt.cfirst: a.e(mfma(vD + 16, wo[j - 2] + 4, vS + 4 * (j - 2), vD + 16))
        if j < 7:
            for x in check(j + 1): a.e(x)
        if j >= 2 and not Opt.cfirst: a.e(mfma(vD + 16, wo[j - 2] + 4, vS + 4 * (j - 2), vD + 16))
        if j in (7, 8): a.e("s_nop 4")
    wr = lambda c, j: "ds_write_b128 %s, %s offset:%d" % (v(aw[j]), v(vD + 16 * c + 4 * j, 4), 128 * c)
    a.stamp(8)
    tstamp(a, 9)
    for j in range(4): a.e(wr(0, j))
    a.e("s_nop 7")
    for j in range(4): a.e(wr(1, j))
    a.e("s_waitcnt lgkmcnt(0)")
    a.e("s_barrier")
    for p in range(4):
        for h in range(2): a.e(rd128(vS + 8 * p + 4 * h, ar[h], p * 8192))
    for p in range(1, 4):
        a.e("s_waitcnt lgkmcnt(%d)" % (6 - 2 * p))
        for i in range(4): a.e("v_pk_add_f32 %s, %s, %s" % (v(vS + 2 * i, 2), v(vS + 2 * i, 2), v(vS + 8 * p + 2 * i, 2)))
    for i in range(4): a.e("v_cvt_pk_bf16_f32 %s, %s, %s" % (v(vP + i), v(vS + 2 * i), v(vS + 2 * i + 1)))
    a.e("buffer_store_dwordx4 %s, %s, %s, s%d offen %s" % (v(vP, 4), v(vOUTA), srd(SOUT), sOUTO, Opt.out_pol))
    if Opt.probe >= 0:
        a.e("s_waitcnt vmcnt(0)")
        a.stamp(9)
        if Opt.probe != 9:
            a.e("s_cmp_ge_u32 s%d, 14" % sM)
            a.e("s_cbranch_scc%d L_end" % (0 if Opt.probe_l else 1))
        a.e("s_sub_u32 s%d, s%d, s%d" % (sA, sSTAMP + 4, sSTAMP))
        a.e("s_mul_i32 s%d, s%d, %d" % (sA, sA, Opt.probe_mul - 1))
        a.e("s_min_u32 s%d, s%d, 100000" % (sA, sA))
        a.e("s_add_u32 s%d, s%d, 3800" % (sA, sA))
        if Opt.probe_w >= 0:
            a.e("s_cmp_lg_u32 s%d, %d" % (sHI, Opt.probe_w))
            a.e("s_cbranch_scc1 L_end")
        if Opt.probe_x >= 0:
            a.e("s_and_b32 s0, s2, 7")
            a.e("s_cmp_lg_u32 s0, %d" % Opt.probe_x)
            a.e("s_cbranch_scc1 L_end")
        a.lab("L_probe")
        a.e("s_memrealtime s[0:1]")
        a.e("s_waitcnt lgkmcnt(0)")
        a.e("s_sub_u32 s0, s0, s%d" % (sSTAMP + 4))
        a.e("s_cmp_lt_u32 s0, s%d" % sA)
        a.e("s_cbranch_scc1 L_probe")
    if Opt.pin == 9:
        a.e("s_waitcnt vmcnt(0)")
        a.stamp(9)
    if Opt.diag in (1, 2):
        a.e("s_waitcnt vmcnt(0)")
        a.stamp(9)
        a.e("s_mov_b32 s%d, s%d" % (sSTAMP + 3, sSTAMP))
        a.e("s_mov_b32 s%d, s%d" % (sSTAMP, sB))
        a.e("s_getreg_b32 s%d, hwreg(HW_REG_XCC_ID)" % (sSTAMP + 1))
        for i in range(20): a.e("v_mov_b32 %s, s%d" % (v(vS + i), sSTAMP + i))
        a.e("s_lshl_b32 s%d, s2, 3" % sA)
        a.e("s_add_u32 s%d, s%d, s%d" % (sA, sA, sW))
        a.e("s_lshl_b32 s%d, s%d, 7" % (sA, sA))
        a.e("s_add_u32 s%d, s%d, 0x%x" % (sA, sA, WS_STAMP))
        a.e("s_mov_b64 exec, 1")
        for i in range(5): a.e("buffer_store_dwordx4 %s, off, %s, s%d offset:%d" % (v(vS + 4 * i, 4), srd(SWS), sA, 16 * i))
    a.lab("L_end")
    a.e("s_endpgm")
    a.l += a.ool2
    for j in range(8):
        a.lab("L_ore%d" % j)
        a.e("s_sub_u32 s%d, s%d, 1" % (sB, sB))
        a.e("s_cbranch_scc1 L_ogive%d" % j)
        a.e("s_waitcnt vmcnt(0)")
        for i in range(j, 8): a.e(a.oload(i))
        for x in a.check(j): a.e(x)
        a.e("s_cbranch_vccnz L_ore%d" % j)
        a.e("s_branch L_ook%d" % j)
        a.lab("L_ogive%d" % j)
        a.e("s_mov_b32 s%d, 0" % sB)
        a.e("s_branch L_ook%d" % j)

def fallback(a):
    a.lab("L_fb")
    m = vT0
    a.e("v_mov_b32 %s, 0xff800000" % v(m))
    a.e("s_mov_b32 s%d, 0" % sA)
    a.lab("L_fb1")
    a.e("buffer_load_dwordx4 %s, %s, %s, s%d offen sc1" % (v(vKF, 4), v(vL16), srd(SKV), sA))
    a.e("s_waitcnt vmcnt(0)")
    a.e(mfma(vS, vKF, vQ, None))
    a.e("s_add_u32 s%d, s%d, 2048" % (sA, sA))
    a.e("s_nop 11")
    for i in range(8): a.e("v_max3_f32 %s, %s, %s, %s" % (v(m), v(m), v(vS + 2 * i), v(vS + 2 * i + 1)))
    a.e("s_cmp_lt_u32 s%d, 0x20000" % sA)
    a.e("s_cbranch_scc1 L_fb1")
    a.e("v_mov_b32 %s, %s" % (v(m + 1), v(m)))
    a.e("s_nop 1")
    a.e("v_permlane32_swap_b32 %s, %s" % (v(m), v(m + 1)))
    a.e("s_nop 1")
    a.e("v_max_f32 %s, %s, %s" % (v(m), v(m), v(m + 1)))
    for i in range(16): a.e("v_sub_f32 %s, 0, %s" % (v(vS + 16 + i), v(m)))
    for i in range(16): a.e("v_mov_b32 %s, 0" % v(vO + i))
    a.e("s_mov_b32 s%d, 0" % sA)
    a.lab("L_fb2")
    a.e("s_add_u32 s%d, s%d, 0x%x" % (sB, sA, 63 * 2048))
    a.e("s_and_b32 s%d, s%d, 0x1ffff" % (sB, sB))
    a.e("buffer_load_dwordx4 %s, %s, %s, s%d offen sc1" % (v(vKF, 4), v(vL16), srd(SKV), sB))
    a.e("s_add_u32 s%d, s%d, 2048" % (sB, sA))
    a.e("s_and_b32 s%d, s%d, 0x1ffff" % (sB, sB))
    a.e("s_mov_b64 exec, %s" % sp(sVM))
    a.e("buffer_load_dwordx4 %s, %s, %s, s%d offen offset:1024 sc1" % (v(vV, 4), v(vL16), srd(SKV), sA))
    a.e("buffer_load_dwordx4 %s, %s, %s, s%d offen offset:1280 sc1" % (v(vV + 4, 4), v(vL16), srd(SKV), sB))
    a.e("s_mov_b64 exec, -1")
    a.e("s_waitcnt vmcnt(0)")
    a.e(mfma(vS, vKF, vQ, vS + 16))
    a.e("s_add_u32 s%d, s%d, 2048" % (sA, sA))
    a.e("s_nop 11")
    for i in range(16): a.e("v_exp_f32 %s, %s" % (v(vS + i), v(vS + i)))
    a.e("s_nop 2")
    a.e(smfmac(vO, vV, vS))
    a.e(smfmac(vO, vV + 4, vS + 8))
    a.e("s_cmp_lt_u32 s%d, 0x20000" % sA)
    a.e("s_cbranch_scc1 L_fb2")
    a.e("s_nop 11")
    a.e("v_rcp_f32 %s, %s" % (v(vT0 + 2), v(vO + 8)))
    a.e("s_cmp_eq_u32 s%d, 0" % sHI)
    a.e("v_mul_f32 %s, %s, %s" % (v(vT0 + 2), v(vT0 + 2), v(vGP)))
    for i in range(8): a.e("v_mul_f32 %s, %s, %s" % (v(vO + i), v(vT0 + 2), v(vO + i)))
    for i in range(4): a.e("v_cvt_pk_bf16_f32 %s, %s, %s" % (v(vPK + i), v(vO + 2 * i), v(vO + 2 * i + 1)))
    for i in range(4): a.e("v_min_u32 %s, -2, %s" % (v(vPK + i), v(vPK + i)))
    a.e("s_branch L_fbret")

def build():
    a = Asm()
    prologue(a)
    phase1_F(a)
    transition(a, "B")
    tail(a)
    a.l += a.ool
    transition(a, "A")
    phase1_L(a)
    fallback(a)
    a.lab("L_codeend")
    for i, x in enumerate(a.l):
        if " sc1" in x and "sc0" not in x and ((Opt.allsc & 1 and "buffer_store" in x) or (Opt.allsc & 2 and "buffer_load" in x)):
            a.l[i] = x.replace(" sc1", " sc0 sc1")
    il = a.l.index("L_light:")
    for i, x in enumerate(a.l):
        if x.endswith(" lds") and "sc1" not in x and " nt" not in x:
            if (Opt.ntx & 4 and (srd(SWD) in x or srd(SWO) in x)) or (Opt.ntx & 8 and i > il):
                a.l[i] = x[:-4] + " nt lds"
    head = open("cdna_kernels/%s.s.ref" % NAME).read().split("\n")
    hdr = [l for l in head if l.startswith(";") and "@launch" not in l and "Override" not in l and "grid=" not in l]
    out = hdr + ["; @launch grid=(256,1,1) block=(512,1,1) lds=%d" % LDS_BYTES,
                 '.amdgcn_target "amdgcn-amd-amdhsa--gfx950"', ".text", ".globl %s_kernel" % NAME, ".p2align 8",
                 ".type %s_kernel,@function" % NAME,
                 ".set CODE_PF_MAX, L_codeend - L_nopf - 4" if Opt.code_pf else "",
                 "%s_kernel:" % NAME]
    out += ["; mapmode %d" % Opt.mapmode, "; xrot %d" % Opt.xrot]
    out += a.l
    out += ['.section .rodata,"a"', ".p2align 6", ".amdhsa_kernel %s_kernel" % NAME,
            "  .amdhsa_next_free_vgpr %d" % NV, "  .amdhsa_next_free_sgpr 102", "  .amdhsa_accum_offset 256",
            "  .amdhsa_group_segment_fixed_size 0", "  .amdhsa_kernarg_size 104", "  .amdhsa_user_sgpr_count 2",
            "  .amdhsa_user_sgpr_kernarg_segment_ptr 1", "  .amdhsa_system_sgpr_workgroup_id_x 1", ".end_amdhsa_kernel", ""]
    return "\n".join(out)

if __name__ == "__main__":
    path = sys.argv[1]
    for kv in sys.argv[2:]:
        k, val = kv.split("=")
        cur = getattr(Opt, k)
        setattr(Opt, k, val if isinstance(cur, str) else type(cur)(int(val)))
    open(path, "w").write(build())
```

```python
import sys, struct, math

NAME = "gated_mix__grouped_kv_mqa__geglu_ffn__prompt"

class Opt:
    diag = 0
    mapmode = 1
    force_fb = False
    allsc = 0
    out_pol = "sc0 sc1"
    code_pf = True
    xrot = 0
    pregap = 0
    aearly = 0
    bidle = 1
    old_pol = "sc1"
    ypos0 = "36g"
    ypos1 = "36bg"
    ypos2 = "36cg9"
    xtile = 0
    tpos = 1
    cfirst = 0
    tch = 12
    stch = 0
    spos = 1
    tlb = 14
    olate = 1
    hrot = 0
    tbar = 0
    hord = 1
    cmap = 1
    kqx = 0
    oearly = 8
    conc = 1
    ghx = 1
    qa = "077777"
    qb = "588888"
    npre = 8
    stagger = 1
    rper = 2
    dma1 = 17
    kprio = 0
    dma0 = 8
    npd = 4
    kdiag = 0
    fillpre = 0
    fillper = 5
    gsc = 2
    sched = 0
    xmask = 1
    ntx = 0
    touch = 2
    rotg = 0
    rotm = 0
    startbar = 1
    pvz = 1
    pin = -1
    pin_ns = 60000
    probe = -1
    probe_x = -1
    probe_mul = 10
    probe_w = -1
    probe_l = 0

def f2u(x): return struct.unpack("<I", struct.pack("<f", x))[0]

WS_KV = 0
WS_G = 128 * 1024
WS_HFLAG = 192 * 1024
WS_OF = 1 << 20
WS_HF = 4 << 20
WS_STAMP = 12 << 20
WS_SIZE = 16 << 20
K1 = 1024
L_G, L_U, L_X, L_WQ = 0, 48 * K1, 96 * K1, 144 * K1
L_QX = 32 * K1
L_WD, L_WO, L_KV = 0, 64 * K1, 128 * K1
LL_X, LL_W, LL_GATE, LL_WQ = 0, 128 * K1, 144 * K1, 128 * K1
LDS_BYTES = 160 * K1

SX, SWG, SWU, SWQ, SWS, SWD, SWO, SOUT, SDBG, SWKV, SGATE, SKV = 4, 8, 12, 16, 20, 24, 28, 32, 36, 40, 44, 64
SWV = 72
sTMPP = 48
sW, sHI, sLO, sG, sM, sT, sCB = 50, 51, 52, 53, 54, 55, 56
sWK = 57
sWH = 58
sVM = 60
sRET = 62
sA, sB, sC, sD = 68, 69, 70, 71
sOFFW, sOFFQ, sCH, sXP = 72, 73, 74, 75
sHOFF, sWDOFF, sKVOFF, sHXO, sCNT = 72, 73, 74, 75, 77
sOUTO, sLO_, sRNG = 59, 81, 75
sOLD2 = 58
sOST, sOLD, sHST = 78, 79, 80
sHST2 = 3
sRX, sRW, sM0B = 40, 41, 42
sKQ = 76
sHP = sM
sSTAMP = 82

def srd(b): return "s[%d:%d]" % (b, b + 3)
def sp(b): return "s[%d:%d]" % (b, b + 1)
def v(b, n=1): return "v%d" % b if n == 1 else "v[%d:%d]" % (b, b + n - 1)

vL16 = 1
vT0, vT1, vT2, vT3 = 2, 3, 4, 5
vGP, vGC = 6, 7
vKVA = 8
vWDA = 9
vWDV = 10
vONE = 11
vZERO = 12
vFLA = 13
vPOLL = 14
vGA = 15
vQ = 16
vK0 = 20
vV1L = 24
vIDX = 28
vAW0, vAR0, vOUTA = 30, 31, 12
vKVB = 29
vP = 32
vV = 40
vO = 56
vD = 72
vACC = 104
vS = 104
vH = 136
vAQ = vP
vF1 = 168
vKF = 168
vWF = 176
vWX = 224
vHX = 232
vPK = 20
WOF = [32, 208, 216, 240, 248, 40, 48, 56]
vWOA = 236
vFR = 184
vLX = 224
vXA = 240
vWA = 244
vQA = 248
vDX, vDG, vDQ = 249, 250, 251
vC0 = 252
vTID = 255
vHA = 254
NV = 256

class Asm:
    def __init__(self):
        self.l = []
        self.vm = []
        self.nstamp = 0
    def e(self, s):
        for x in s.split("\n"):
            x = x.strip()
            if x: self.l.append("    " + x)
    def lab(self, s): self.l.append(s + ":")
    def vmop(self, s, tag):
        self.e(s); self.vm.append(tag)
    def vmn(self, tags):
        if isinstance(tags, str): tags = [tags]
        last = -1
        for i, t in enumerate(self.vm):
            if t in tags: last = i
        return None if last < 0 else len(self.vm) - 1 - last
    def waitvm(self, tags, lgkm=False):
        n = self.vmn(tags)
        if n is None:
            if lgkm: self.e("s_waitcnt lgkmcnt(0)")
            return
        assert n < 64
        self.e("s_waitcnt vmcnt(%d)%s" % (n, " lgkmcnt(0)" if lgkm else ""))
        self.vm = self.vm[len(self.vm) - n:] if n else []
    def wait0(self, lgkm=False):
        self.e("s_waitcnt vmcnt(0)%s" % (" lgkmcnt(0)" if lgkm else "")); self.vm = []
    def stamp(self, i, real=False):
        if Opt.probe == i:
            self.e("s_waitcnt lgkmcnt(0)")
            self.e("s_memrealtime %s" % sp(sSTAMP + 4))
            self.e("s_waitcnt lgkmcnt(0)")
        if Opt.pin == i:
            self.nstamp += 1
            self.e("s_waitcnt lgkmcnt(0)")
            self.e("s_cselect_b32 s%d, 1, 0" % (sSTAMP + 5))
            self.lab("L_pin%d" % self.nstamp)
            self.e("s_memrealtime s[0:1]")
            self.e("s_waitcnt lgkmcnt(0)")
            self.e("s_sub_u32 s0, s0, s%d" % sSTAMP)
            self.e("s_cmp_lt_u32 s0, %d" % (Opt.pin_ns // 10))
            self.e("s_cbranch_scc1 L_pin%d" % self.nstamp)
            self.e("s_cmp_lg_u32 s%d, 0" % (sSTAMP + 5))
        if Opt.diag and not Opt.kdiag and (Opt.diag == 1 or i == 9):
            self.e("s_waitcnt lgkmcnt(0)")
            self.e("s_memtime %s" % sp(sSTAMP + 2 * i))
            self.e("s_memrealtime %s" % sp(sRET))
            self.e("s_waitcnt lgkmcnt(0)")
            self.e("s_mov_b32 s%d, s%d" % (sSTAMP + 2 * i + 1, sRET))

def astamp(a, i):
    if Opt.diag and Opt.kdiag == 2: a.e("s_memtime %s" % sp(sSTAMP + 2 * i))

def tstamp(a, i):
    if Opt.diag and Opt.kdiag == 3: a.e("s_memtime %s" % sp(sSTAMP + 2 * i))

def kstamp(a, i):
    if Opt.probe == 18 + i: a.e("s_memrealtime %s" % sp(sSTAMP + 4))
    if Opt.diag and Opt.kdiag == 1: a.e("s_memtime %s" % sp(sSTAMP + 2 * i))

def mfma(d, a, b, c):
    return "v_mfma_f32_32x32x16_bf16 %s, %s, %s, %s" % (v(d, 16), v(a, 4), v(b, 4), "0" if c is None else v(c, 16))
def smfmac(d, a, b):
    return "v_smfmac_f32_32x32x32_bf16 %s, %s, %s, %s" % (v(d, 16), v(a, 4), v(b, 8), v(vIDX))
def mfma16(d, a, b, c):
    return "v_mfma_f32_16x16x32_bf16 %s, %s, %s, %s" % (v(d, 4), v(a, 4), v(b, 4), "0" if c is None else v(c, 4))
def rd128(d, a, off):
    assert 0 <= off < 65536
    return "ds_read_b128 %s, %s offset:%d" % (v(d, 4), v(a), off)
def rdtr(d, a, off):
    assert 0 <= off < 65536
    return "ds_read_b64_tr_b16 %s, %s offset:%d" % (v(d, 2), v(a), off)

def interleave(mf, fill, per=2):
    out = []
    fill = list(fill)
    for i, m in enumerate(mf):
        out.append(m)
        if i < len(mf) - 1:
            out += fill[:per]; fill = fill[per:]
    return out + fill

def srd_words(a, regs):
    sizes = {SX: 2048 * 1024, SWG: 512 * 3584, SWU: 512 * 3584, SWQ: 512 * 1024, SWS: WS_SIZE, SWKV: 16384, SWV: 16384,
             SGATE: 1024, SWD: 1792 * 1024, SWO: 512 * 1024, SOUT: 2048 * 1024, SDBG: 256, SKV: 128 * 1024}
    for reg in regs:
        a.e("s_mov_b32 s%d, 0x%x" % (reg + 2, sizes[reg]))
        a.e("s_mov_b32 s%d, 0x20000" % (reg + 3))

def ptr_loads(a, lst):
    for reg, off in lst: a.e("s_load_dwordx2 %s, s[0:1], %d" % (sp(reg), off))

def prologue(a):
    if Opt.diag or Opt.pin >= 0 or Opt.probe >= 0:
        a.e("s_memrealtime %s" % sp(sSTAMP))
        if Opt.diag in (1, 2): a.e("s_memtime %s" % sp(sSTAMP + 2))
    ptr_loads(a, ((SX, 0), (SWG, 48), (SWU, 56), (SWQ, 8)))
    a.e("s_load_dwordx8 s[%d:%d], s[0:1], 64" % (SOUT, SOUT + 7))
    if not (Opt.diag or Opt.probe >= 0): ptr_loads(a, ((SWS, 96), (SWO, 32)))
    if Opt.probe == 1: a.stamp(1)
    a.e("v_lshrrev_b32 v2, 6, v0")
    if Opt.code_pf:
        a.e("s_getpc_b64 %s" % sp(sRET))
        a.lab("L_nopf")
        a.e("s_and_b32 s%d, s2, -8" % sA)
        a.e("v_add_lshl_u32 v3, v2, s%d, 7" % sA)
        a.e("v_readfirstlane_b32 s%d, v2" % sW)
        a.e("v_min_u32 v3, CODE_PF_MAX, v3")
        a.e("global_load_dword %s, v3, %s" % (v(vPOLL), sp(sRET)))
    else:
        a.e("s_nop 0")
        a.e("v_readfirstlane_b32 s%d, v2" % sW)
    if Opt.diag or Opt.probe >= 0:
        a.e("s_load_dwordx2 %s, s[0:1], 96" % sp(SWS))
    a.e("s_cmpk_ge_u32 s2, 256")
    a.e("s_cbranch_scc1 L_end")
    a.e("s_and_b32 s%d, s2, 1" % sD)
    a.e("s_bfe_u32 s%d, s2, 0x30003" % sA)
    a.e("s_lshl3_add_u32 s%d, s%d, s%d" % (sG, sD, sA))
    a.e("s_bfe_u32 s%d, s2, 0x20001" % sA)
    a.e("s_lshr_b32 s%d, s2, 6" % sB)
    a.e("s_lshl2_add_u32 s%d, s%d, s%d" % (sM, sA, sB))
    a.e("s_lshl_b32 s%d, s%d, 10" % (sWK, sW))
    a.e("s_cmp_ge_u32 s%d, 14" % sM)
    a.e("s_cbranch_scc1 L_light")

def xvoff(a, t):
    a.e("v_lshrrev_b32 v2, 4, %s" % v(t))
    a.e("v_xor_b32 v2, v2, %s" % v(t))
    a.e("v_and_b32 v2, 7, v2")
    a.e("s_lshl_b32 s%d, s%d, 17" % (sA, sG))
    a.e("v_lshl_add_u32 v2, v2, 4, s%d" % sA)
    a.e("v_lshrrev_b32 v3, 3, %s" % v(t))
    a.e("v_lshl_add_u32 %s, v3, 10, v2" % v(vDX))

def setup_ids(a):
    a.e("s_mov_b64 %s, %s" % (sp(SKV), sp(SWS)))
    a.e("s_mov_b64 %s, %s" % (sp(SWD), sp(SOUT)))
    a.e("s_mov_b64 %s, %s" % (sp(SOUT), sp(SOUT + 4)))
    a.e("s_mov_b64 %s, %s" % (sp(SDBG), sp(SOUT + 6)))
    a.e("v_and_b32 v0, 63, v0")
    a.e("v_lshlrev_b32 %s, 4, v0" % v(vL16))
    a.e("s_andn2_b32 s%d, 1, s2" % sA)
    a.e("s_bfe_u32 s%d, s2, 0x20001" % sB)
    a.e("s_lshl2_add_u32 s%d, s%d, s%d" % (sA, sA, sB))
    a.e("s_bfe_u32 s%d, s2, 0x20003" % sB)
    a.e("s_lshl2_add_u32 s%d, s%d, s%d" % (sT, sA, sB))
    a.e("s_lshr_b32 s%d, s2, 5" % sCB)

def setup_rd(a):
    a.e("s_lshr_b32 s%d, s%d, 2" % (sHI, sW))
    a.e("s_and_b32 s%d, s%d, 3" % (sLO, sW))
    a.e("v_and_b32 v2, 15, v0")
    a.e("v_lshrrev_b32 v3, 4, v0")
    a.e("v_bfe_u32 v4, v0, 1, 3")
    a.e("v_xor_b32 v4, v4, v3")
    a.e("v_lshlrev_b32 v4, 4, v4")
    a.e("v_lshl_add_u32 %s, v2, 7, v4" % v(vXA))
    a.e("v_bfe_u32 v2, v0, 2, 2")
    a.e("v_and_b32 v4, 3, v0")
    a.e("v_lshl_add_u32 %s, v3, 3, v2" % v(vQA))
    a.e("v_lshlrev_b32 %s, 6, %s" % (v(vQA), v(vQA)))
    a.e("v_xor_b32 v5, s%d, v3" % sHI)
    a.e("v_and_b32 v5, 1, v5")
    a.e("v_lshl_add_u32 %s, v5, 5, %s" % (v(vQA), v(vQA)))
    a.e("v_lshl_add_u32 %s, v4, 3, %s" % (v(vQA), v(vQA)))

def setup_oclr(a):
    srd_words(a, [SWS, SKV, SDBG])
    a.e("s_mov_b32 s%d, 0xffff" % sVM)
    a.e("s_mov_b32 s%d, 0xffff" % (sVM + 1))
    a.e("s_lshl_b32 s%d, s%d, 2" % (sA, sG))
    a.e("s_add_u32 s%d, s%d, s%d" % (sA, sA, sLO))
    a.e("s_lshl_b32 s%d, s%d, 5" % (sB, sA))
    a.e("s_lshl_b32 s%d, s%d, 1" % (sC, sHP))
    a.e("s_add_u32 s%d, s%d, s%d" % (sB, sB, sC))
    a.e("s_add_u32 s%d, s%d, s%d" % (sB, sB, sHI))
    a.e("s_lshl_b32 s%d, s%d, 10" % (sB, sB))
    a.e("s_add_u32 s%d, s%d, 0x%x" % (sOST, sB, WS_OF))
    for i in range(4): a.e("v_mov_b32 %s, -1" % v(vQ + i))
    a.vmop("buffer_store_dwordx4 %s, %s, %s, s%d offen sc1" % (v(vQ, 4), v(vL16), srd(SWS), sOST), "oclr")
    a.e("v_mov_b32 %s, 1" % v(vONE))
    a.e("v_mov_b32 %s, 0" % v(vZERO))
    a.e("v_and_b32 %s, 31, v0" % v(vGA))
    a.e("v_lshlrev_b32 %s, 2, %s" % (v(vGA), v(vGA)))

def collect(fn):
    t = Asm(); t.marks = {}
    def vmop(s_, tag):
        t.e(s_); t.marks[len(t.l) - 1] = tag
    t.vmop = vmop
    fn(t)
    return [(x, t.marks.get(i)) for i, x in enumerate(t.l)]
def put(a, items):
    for x, tag in items:
        if tag: a.vmop(x, tag)
        else: a.e(x)

def setup_ones(a):
    a.e("s_mov_b32 s%d, 0x110000" % sA)
    a.e("s_mov_b32 s%d, 0x110000" % sB)
    a.e("v_mov_b32 v3, 0x3f803f80")
    a.e("v_cndmask_b32 %s, 0, v3, %s" % (v(vV1L), sp(sA)))
    for i in range(1, 4): a.e("v_mov_b32 %s, %s" % (v(vV1L + i), v(vV1L)))
    for i in range(16): a.e("v_mov_b32 %s, %s" % (v(vV + i), v(vV1L)))

def setup_attn(a):
    srd_words(a, [SWD, SWO, SOUT])
    a.e("s_lshl_b32 s%d, s%d, 2" % (sA, sG))
    a.e("s_add_u32 s%d, s%d, s%d" % (sA, sA, sLO))
    a.e("s_mul_i32 s%d, s%d, 112" % (sB, sA))
    a.e("s_lshl_b32 s%d, s%d, 3" % (sC, sM))
    a.e("s_add_u32 s%d, s%d, s%d" % (sB, sB, sC))
    a.e("s_lshl_b32 s%d, s%d, 2" % (sC, sHI))
    a.e("s_add_u32 s%d, s%d, s%d" % (sB, sB, sC))
    a.e("s_and_b32 s%d, s%d, 1" % (sC, sLO))
    a.e("s_lshl_b32 s%d, s%d, 1" % (sC, sC))
    a.e("s_add_u32 s%d, s%d, s%d" % (sB, sB, sC))
    a.e("s_lshl_b32 s%d, s%d, 10" % (sB, sB))
    a.e("s_add_u32 s%d, s%d, 0x%x" % (sHST, sB, WS_HF))
    a.e("s_mul_i32 s%d, s%d, %d" % (sC, sC, 112 * 1024))
    a.e("s_sub_u32 s%d, %d, s%d" % (sC, 112 * 1024, sC))
    a.e("s_add_u32 s%d, s%d, s%d" % (sHST2, sHST, sC))
    a.e("v_bfe_u32 v2, v0, 2, 2")
    a.e("v_lshrrev_b32 v3, 5, v0")
    a.e("v_lshl_add_u32 v2, v3, 2, v2")
    a.e("v_lshlrev_b32 v2, 6, v2")
    a.e("v_bfe_u32 v3, v0, 4, 1")
    a.e("v_lshl_add_u32 v2, v3, 5, v2")
    a.e("v_and_b32 v3, 3, v0")
    a.e("v_lshl_add_u32 v2, v3, 3, v2")
    a.e("s_lshr_b32 s%d, s%d, 1" % (sA, sW))
    a.e("s_lshl_b32 s%d, s%d, 11" % (sA, sA))
    a.e("v_add_u32 %s, s%d, v2" % (v(vWDA), sA))
    a.e("v_add_u32 %s, 0x%x, %s" % (v(vKVA), L_KV, v(vL16)))
    a.e("v_add_u32 %s, 0x%x, %s" % (v(vKVB), L_KV + 0x4000, v(vL16)))
    a.e("v_bfe_u32 v2, v0, 2, 3")
    a.e("v_lshlrev_b32 v2, 10, v2")
    a.e("v_lshrrev_b32 v3, 5, v0")
    a.e("v_lshl_add_u32 v2, v3, 6, v2")
    a.e("v_and_b32 v3, 3, v0")
    a.e("v_lshl_add_u32 v2, v3, 4, v2")
    a.e("s_lshl_b32 s%d, s%d, 7" % (sB, sCB))
    a.e("v_add_u32 %s, s%d, v2" % (v(vWDV), sB))
    a.e("v_min_u32 v2, 13, v0")
    a.e("v_lshlrev_b32 v2, 7, v2")
    a.e("s_lshr_b32 s%d, s%d, 1" % (sA, sT))
    a.e("s_lshl_b32 s%d, s%d, 11" % (sA, sA))
    a.e("s_add_u32 s%d, s%d, 0x%x" % (sA, sA, WS_HFLAG))
    a.e("v_add_u32 %s, s%d, v2" % (v(vFLA), sA))
    a.e("s_lshl_b32 s%d, s%d, 1" % (sA, sT))
    a.e("s_and_b32 s%d, s%d, 1" % (sB, sW))
    a.e("s_add_u32 s%d, s%d, s%d" % (sA, sA, sB))
    a.e("s_lshl_b32 s%d, s%d, 15" % (sB, sA))
    a.e("s_lshr_b32 s%d, s%d, 1" % (sKQ, sW))
    if Opt.kqx:
        a.e("s_lshl_b32 s%d, s%d, 1" % (sC, sCB))
        a.e("s_and_b32 s%d, s%d, 2" % (sC, sC))
        a.e("s_xor_b32 s%d, s%d, s%d" % (sKQ, sKQ, sC))
    a.e("s_lshl_b32 s%d, s%d, 13" % (sC, sKQ))
    a.e("s_add_u32 s%d, s%d, s%d" % (sB, sB, sC))
    a.e("s_add_u32 s%d, s%d, 0x%x" % (sOLD, sB, WS_OF))
    a.e("v_and_b32 v2, 31, v0")
    a.e("v_lshrrev_b32 v3, 5, v0")
    a.e("v_and_b32 v4, 7, v0")
    a.e("v_xor_b32 v3, v3, v4")
    a.e("v_lshlrev_b32 v3, 4, v3")
    a.e("v_lshl_add_u32 v3, v2, 8, v3")
    a.e("s_and_b32 s%d, s%d, 1" % (sB, sW))
    a.e("s_lshl_b32 s%d, s%d, 15" % (sB, sB))
    a.e("s_lshr_b32 s%d, s%d, 1" % (sC, sW))
    a.e("s_lshl_b32 s%d, s%d, 13" % (sD, sC))
    a.e("s_add_u32 s%d, s%d, s%d" % (sOUTO, sD, sB))
    a.e("v_add_u32 %s, s%d, v3" % (v(vAW0), sOUTO))
    a.e("v_lshrrev_b32 v2, 3, v0")
    a.e("v_lshlrev_b32 v3, 1, v4")
    a.e("v_xor_b32 v3, v3, v2")
    a.e("v_lshlrev_b32 v3, 4, v3")
    a.e("v_lshl_add_u32 v3, v2, 8, v3")
    a.e("s_lshl_b32 s%d, s%d, 11" % (sD, sC))
    a.e("s_add_u32 s%d, s%d, s%d" % (sD, sD, sB))
    a.e("v_add_u32 %s, s%d, v3" % (v(vAR0), sD))
    a.e("v_lshlrev_b32 v4, 4, v4")
    a.e("v_lshl_add_u32 %s, v2, 10, v4" % v(vOUTA))
    a.e("s_lshl_b32 s%d, s%d, 16" % (sC, sT))
    a.e("s_add_u32 s%d, s%d, s%d" % (sOUTO, sOUTO, sC))
    a.e("s_lshl_b32 s%d, s%d, 7" % (sC, sCB))
    a.e("s_add_u32 s%d, s%d, s%d" % (sOUTO, sOUTO, sC))
    a.e("v_mov_b32 %s, 0xdddd" % v(vIDX))
    a.e("v_lshrrev_b32 v2, 4, v0")
    a.e("v_lshl_add_u32 %s, v2, 8, %s" % (v(vHA), v(vL16)))
    for i in range(16): a.e("v_mov_b32 %s, 0" % v(vO + i))
    for i in range(32): a.e("v_mov_b32 %s, 0" % v(vD + i))
    c0 = -2.0 * math.sqrt(2.0 / math.pi) * math.log2(math.e)
    a.e("v_mov_b32 %s, 0x%x" % (v(vC0), f2u(c0)))
    a.e("v_mov_b32 %s, 0x%x" % (v(vC0 + 1), f2u(c0 * 0.044715)))

def kv_first_loads(a, quartet=False):
    it = []
    for o in (range(0, 16384, 4096) if quartet else range(0, 16384, 8192)):
        b = sWH if quartet else sWK
        it.append(("s_add_u32 m0, s%d, 0x%x\ns_add_u32 s%d, s%d, 0x%x\nbuffer_load_dwordx4 %s, %s, s%d offen sc1 lds"
                   % (b, L_KV + o, sA, b, o, v(vL16), srd(SKV), sA), "kv%d" % (o >> 13)))
    it.append(("s_mov_b32 s%d, 0x%x\nbuffer_load_dwordx4 %s, %s, %s, s%d offen sc1"
               % (sA, 63 * 2048, v(vK0, 4), v(vL16), srd(SKV), sA), "k0"))
    it.append(("s_mov_b64 exec, %s\nbuffer_load_dwordx4 %s, %s, %s, 0 offen offset:%d sc1\ns_mov_b64 exec, -1"
               % (sp(sVM), v(vV1L, 4), v(vL16), srd(SKV), 1024 + 256), "k0"))
    it.append(("s_lshl_b32 s%d, s%d, 2\ns_add_u32 s%d, s%d, s%d\ns_lshl_b32 s%d, s%d, 7\ns_add_u32 s%d, s%d, 0x%x\n"
               "buffer_load_dword %s, %s, %s, s%d offen sc1"
               % (sA, sG, sA, sA, sLO, sA, sA, sA, sA, WS_G, v(vGP), v(vGA), srd(SWS), sA), "k0"))
    it.append(("s_lshl_b32 s%d, s%d, 1\ns_and_b32 s%d, s%d, 1\ns_add_u32 s%d, s%d, s%d\ns_lshl_b32 s%d, s%d, 7\ns_add_u32 s%d, s%d, 0x%x\n"
               "buffer_load_dword %s, %s, %s, s%d offen sc1"
               % (sA, sT, sB, sW, sA, sA, sB, sA, sA, sA, sA, WS_G, v(vGC), v(vGA), srd(SWS), sA), "k0"))
    return it

def spin_counter(a, name, first_loaded, wave=0):
    a.e("s_cmp_lg_u32 s%d, %d" % (sW, wave))
    a.e("s_cbranch_scc1 L_%s_done" % name)
    a.e("s_mov_b32 s%d, 0x4000" % sB)
    if first_loaded: a.e("s_branch L_%s_chk" % name)
    a.lab("L_%s_re" % name)
    a.e("buffer_load_dword %s, off, %s, 0 sc1" % (v(vPOLL), srd(SDBG)))
    a.e("s_waitcnt vmcnt(0)")
    a.lab("L_%s_chk" % name)
    a.e("v_readfirstlane_b32 s%d, %s" % (sA, v(vPOLL)))
    a.e("s_cmp_ge_u32 s%d, 32" % sA)
    a.e("s_cbranch_scc1 L_%s_done" % name)
    a.e("s_sleep 4")
    a.e("s_sub_u32 s%d, s%d, 1" % (sB, sB))
    a.e("s_cmp_lg_u32 s%d, 0" % sB)
    a.e("s_cbranch_scc1 L_%s_re" % name)
    a.lab("L_%s_done" % name)

def phase1_F(a):
    SCHED = {1: ["01423567", "10253467", "23016457", "32104756"],
             2: ["02134657", "01324576", "10243567", "10235467"],
             3: ["01324657", "01243576", "12035467", "20134567"],
             5: ["01243567", "10325467", "23014657", "32104576"],
             6: ["01243567", "10325467", "01234657", "10324576"],
             7: ["01234567", "10235476", "01234567", "10235476"],
             8: ["01234567", "10243657", "01234567", "10243657"],
             4: ["02143657", "10325476", "02143657", "10325476"]}
    tabs = SCHED[Opt.sched] if Opt.sched else ["".join(str(c ^ (p & Opt.xmask)) for c in range(8)) for p in range(4)]
    for t_ in tabs: assert sorted(t_) == list("01234567")
    num = [int(t_[::-1], 16) for t_ in tabs]
    def table(a):
        a.e("s_add_u32 s%d, s%d, s%d" % (sA, sG, sHP))
        a.e("s_mov_b32 s%d, 0x%x" % (sXP, num[0]))
        a.e("s_mov_b32 s%d, 0x%x" % (sB, num[2]))
        a.e("s_bitcmp1_b32 s%d, 0" % sA)
        a.e("s_cselect_b32 s%d, 0x%x, s%d" % (sXP, num[1], sXP))
        a.e("s_cselect_b32 s%d, 0x%x, s%d" % (sB, num[3], sB))
        a.e("s_bitcmp1_b32 s%d, 1" % sA)
        a.e("s_cselect_b32 s%d, s%d, s%d" % (sXP, sB, sXP))
        if Opt.ghx:
            a.e("s_bitcmp1_b32 s%d, 3" % sG)
            a.e("s_cselect_b32 s%d, 0x44444444, 0" % sB)
            a.e("s_xor_b32 s%d, s%d, s%d" % (sXP, sXP, sB))
    fo, fw = {"0000": (0, 0), "0101": (0, 1), "0011": (1, 1), "0123": (0, 2)}["".join(t_[0] for t_ in tabs)]
    a.e("s_add_u32 s%d, s%d, s%d" % (sA, sG, sHP))
    a.e("s_bfe_u32 s%d, s%d, 0x%x" % (sCH, sA, fw << 16 | fo))
    if Opt.ghx: a.e("s_lshl2_add_u32 s%d, s%d, s%d" % (sCH, sD, sCH))
    a.e("s_and_b32 s%d, s%d, 0xc00" % (sWH, sWK))
    a.e("v_and_b32 %s, 0xff, v0" % v(vTID))

    def wvoff(a):
        a.e("v_lshrrev_b32 v2, 4, %s" % v(vTID))
        a.e("v_lshrrev_b32 v3, 5, %s" % v(vTID))
        a.e("v_bfi_b32 v3, 3, v2, v3")
        a.e("v_lshlrev_b32 v3, 1, v3")
        a.e("v_xor_b32 v3, v3, %s" % v(vTID))
        a.e("v_and_b32 v3, 15, v3")
        a.e("s_lshl_b32 s%d, s%d, 8" % (sA, sM))
        a.e("v_lshl_add_u32 v3, v3, 4, s%d" % sA)
        a.e("v_mul_u32_u24 v2, 3584, v2")
        a.e("v_add_u32 %s, v2, v3" % v(vDG))
    def qvoff(a):
        a.e("v_lshrrev_b32 v2, 4, %s" % v(vTID))
        a.e("v_and_b32 v2, 2, v2")
        a.e("v_xor_b32 v2, v2, %s" % v(vTID))
        a.e("v_and_b32 v2, 3, v2")
        a.e("s_lshl_b32 s%d, s%d, 6" % (sA, sHP))
        a.e("v_lshl_add_u32 v2, v2, 4, s%d" % sA)
        a.e("v_lshrrev_b32 v3, 2, %s" % v(vTID))
        a.e("v_lshl_add_u32 %s, v3, 10, v2" % v(vDQ))
    def stouch(a):
        if Opt.diag or Opt.probe >= 0: a.e("s_load_dwordx2 %s, s[0:1], 32" % sp(SWO))
        if not Opt.stch: return
        a.e("s_lshr_b32 s%d, s%d, 2" % (sA, sW))
        if Opt.ghx: a.e("s_lshl2_add_u32 s%d, s%d, s%d" % (sA, sD, sA))
        a.e("s_lshl_b32 s%d, s%d, 6" % (sA, sA))
        a.e("s_and_b32 s%d, s%d, 7" % (sB, sG))
        a.e("s_add_u32 s%d, s%d, s%d" % (sA, sA, sB))
        a.e("s_mul_i32 s%d, s%d, 28" % (sA, sA))
        a.e("s_bfe_u32 s%d, s%d, 0x10001" % (sB, sW))
        a.e("s_lshl1_add_u32 s%d, s%d, s%d" % (sB, sM, sB))
        a.e("s_add_u32 s%d, s%d, s%d" % (sA, sA, sB))
        a.e("s_lshl_b32 s%d, s%d, 7" % (sA, sA))
        a.e("s_bitcmp1_b32 s%d, 0" % sW)
        a.e("s_cselect_b64 %s, %s, %s" % (sp(SWKV), sp(SWU), sp(SWG)))
        a.e("s_add_u32 s%d, s%d, s%d" % (SWKV, SWKV, sA))
        a.e("s_addc_u32 s%d, s%d, 0" % (SWKV + 1, SWKV + 1))
        for i in range(Opt.stch):
            a.e("s_load_dwordx2 %s, %s, 0x%x" % (sp(sTMPP), sp(SWKV), 128 * 3584 + i * 8 * 3584 + 60))
    def wsrd(a):
        srd_words(a, [SWG])
        a.e("s_mov_b64 %s, %s" % (sp(SWU + 2), sp(SWG + 2)))

    if Opt.hrot:
        ORDER = [("q", 0)] + [(t_, 2 * h_ + j) for h_ in range(2) for t_, j in (("x", 0), ("x", 1), ("g", 0), ("u", 0), ("g", 1), ("u", 1))]
    else:
        ORDER = [("q", 0)] + [("x", j) for j in range(4)] + [(t_, j) for j in range(4) for t_ in "gu"]
    def block(items):
        out = []; lastc = None; lastw = None
        for c, kind, j in items:
            s = c % 3; pre = []
            if c != lastc:
                if c: pre.append("s_bfe_u32 s%d, s%d, 0x%x" % (sCH, sXP, 0x30000 + 4 * c))
                lastc = c; lastw = None
            fam = "w" if kind in "gu" else kind
            rot = Opt.hrot and fam != "q"
            if lastw is None or lastw[0] != fam or (rot and lastw[1] >> 1 != j >> 1):
                pre.append({"q": "s_lshl_b32 s%d, s%d, 16" % (sOFFW, sCH), "x": "s_lshl_b32 s%d, s%d, 7" % (sOFFW, sCH),
                            "w": "s_mul_i32 s%d, s%d, %d" % (sOFFW, sCH, 64 * 3584)}[fam])
                if rot: pre.append("s_%s_u32 s%d, s%d, s%d" % ("sub" if j >> 1 else "add", sOFFW, sOFFW, sRX if fam == "x" else sRW))
                lastw = (fam, 0)
            if lastw[1] != j:
                pre.append("s_add_u32 s%d, s%d, 0x%x" % (sOFFW, sOFFW, (j - lastw[1]) * (0x8000 if fam == "x" else 16 * 3584)))
                lastw = (fam, j)
            m0c, vo, rs = {"q": (L_WQ + s * 4096, vDQ, SWQ), "x": (L_X + s * 16384 + j * 4096, vDX, SX),
                           "g": (L_G + s * 16384 + j * 4096, vDG, SWG), "u": (L_U + s * 16384 + j * 4096, vDG, SWU)}[kind]
            nt = " nt" if Opt.ntx & (1 if rs == SX else 2) else ""
            out.append(("s_add_u32 m0, s%d, 0x%x\n%s\nbuffer_load_dwordx4 %s, %s, s%d offen%s lds"
                        % ((sM0B + (j >> 1)) if rot else sWH, m0c, "\n".join(pre) or "s_nop 0", v(vo), srd(rs), sOFFW, nt), "c%d" % c))
        return out
    def part(c, role): return [(c, k_, j) for k_, j in ORDER if (k_ in "gu") == (role == "A")]

    def rdsetup(a):
        setup_rd(a)
        a.e("v_lshl_add_u32 %s, v3, 3, v2" % v(vWA))
        a.e("v_lshlrev_b32 %s, 8, %s" % (v(vWA), v(vWA)))
        a.e("v_lshl_add_u32 %s, v4, 3, %s" % (v(vWA), v(vWA)))
        a.e("v_and_b32 v5, 1, v3")
        a.e("v_lshl_add_u32 v2, v5, 2, v2")
        a.e("s_lshl_b32 s%d, s%d, 2" % (sA, sHI))
        a.e("s_and_b32 s%d, s%d, 1" % (sB, sLO))
        a.e("s_lshl_b32 s%d, s%d, 1" % (sB, sB))
        a.e("s_add_u32 s%d, s%d, s%d" % (sA, sA, sB))
        a.e("v_xor_b32 v2, s%d, v2" % sA)
        a.e("v_lshl_add_u32 %s, v2, 5, %s" % (v(vWA), v(vWA)))
        a.e("v_xor_b32 %s, 32, %s" % (v(vWA + 1), v(vWA)))
        a.e("v_add_u32 %s, 0x%x, %s" % (v(vWA + 2), L_U - L_G, v(vWA)))
        a.e("v_add_u32 %s, 0x%x, %s" % (v(vWA + 3), L_U - L_G, v(vWA + 1)))
        a.e("s_lshl_b32 s%d, s%d, 12" % (sA, sLO))
        a.e("s_add_u32 s%d, s%d, 0x%x" % (sA, sA, L_X))
        a.e("v_add_u32 %s, s%d, %s" % (v(vXA), sA, v(vXA)))
        a.e("v_xor_b32 %s, 0x1000, %s" % (v(vXA + 1), v(vXA)))
        a.e("v_xor_b32 %s, 64, %s" % (v(vXA + 2), v(vXA)))
        a.e("v_xor_b32 %s, 64, %s" % (v(vXA + 3), v(vXA + 1)))
        a.e("v_add_u32 %s, 0x%x, %s" % (v(vQA), L_WQ, v(vQA)))

    a.e("s_cmp_ge_u32 s%d, 4" % sW)
    a.e("s_cbranch_scc1 L_setB")
    late = collect(setup_oclr) + collect(setup_ones) + [("; later", None)] + collect(setup_attn)
    words = collect(lambda t: srd_words(t, [SWS, SKV, SDBG, SWD, SWO, SOUT]))
    late = [x for x in late if x not in words]
    oclr = [x for x in late if x[1] == "oclr"]
    if Opt.olate: late = [x for x in late if x[1] != "oclr"]
    else: oclr = []
    words += [("v_mov_b32 %s, 0" % v(r_), None) for r_ in (vGA, vWDV, vFLA, vHA, vOUTA)]
    st = collect(rdsetup) + words + late[:Opt.fillpre]
    cut = late.index(("; later", None)) if Opt.bidle else len(late)
    fills = {"A": late[Opt.fillpre:], "B": late[Opt.fillpre:max(cut, Opt.fillpre)]}
    idleB = late[max(cut, Opt.fillpre):]
    vms = {}
    wsrd(a); wvoff(a)
    a.e("s_waitcnt lgkmcnt(0)")
    a.stamp(2)
    if Opt.spos == 0: stouch(a)
    put(a, block(part(0, "A")))
    a.e("s_branch L_setA")
    vms["A"] = a.vm; a.vm = []
    a.lab("L_setB")
    srd_words(a, [SX]); xvoff(a, vTID)
    a.e("s_waitcnt lgkmcnt(0)")
    a.stamp(2)
    if Opt.spos == 0: stouch(a)
    put(a, block(part(0, "B")[1:]))
    srd_words(a, [SWQ]); qvoff(a)
    put(a, block(part(0, "B")[:1]))
    vms["B"] = a.vm
    for role in "BA":
        a.vm = vms[role]
        if role == "A": a.lab("L_setA")
        if Opt.spos == 1: stouch(a)
        table(a)
        setup_ids(a)
        if role == "A": srd_words(a, [SX, SWQ])
        else: wsrd(a)
        def touches():
            tm = sum(0xff << (8 * i) for i in range(4) if Opt.tch >> i & 1)
            setex = "s_bitcmp1_b32 s%d, 3\ns_cselect_b32 exec_lo, 0, 0x%x\ns_cselect_b32 exec_hi, 0x%x, 0" % (sG, tm, tm) if Opt.ghx \
                    else "s_mov_b32 exec_lo, 0x%x\ns_mov_b32 exec_hi, 0" % tm
            if Opt.tlb & 2 and role == "B":
                a.e("s_and_b32 s%d, s%d, 7" % (sA, sG))
                a.e("v_lshl_add_u32 v2, v0, 3, s%d" % sA)
                a.e("v_mul_u32_u24 v3, 3584, v2")
                a.e("s_and_b32 s%d, s%d, 1" % (sB, sW))
                a.e("s_lshl1_add_u32 s%d, s%d, s%d" % (sA, sM, sB))
                a.e("s_lshl_b32 s%d, s%d, 7" % (sA, sA))
                a.e(setex)
                a.e("s_cmp_ge_u32 s%d, 6" % sW)
                a.e("s_cbranch_scc1 L_tlbu")
                a.e("buffer_load_dword %s, v3, %s, s%d offen" % (v(vPOLL), srd(SWG), sA))
                a.e("s_branch L_tlbe")
                a.lab("L_tlbu")
                a.e("buffer_load_dword %s, v3, %s, s%d offen" % (v(vPOLL), srd(SWU), sA))
                a.lab("L_tlbe")
                a.e("s_mov_b64 exec, -1")
                a.vm.append("tlb")
            if Opt.tlb & 12 and role == "A":
                a.e("s_cmp_lg_u32 s%d, 0" % sW)
                a.e("s_cbranch_scc1 L_tlbx")
                a.e("s_and_b32 s%d, s%d, 7" % (sA, sG))
                a.e("v_lshl_add_u32 v2, v0, 3, s%d" % sA)
                a.e("v_lshlrev_b32 v3, 10, v2")
                a.e("s_lshl_b32 s%d, s%d, 6" % (sA, sHP))
                a.e(setex if Opt.tlb & 4 else "s_mov_b64 exec, 1")
                a.e("buffer_load_dword %s, v3, %s, s%d offen" % (v(vPOLL), srd(SWQ), sA))
                a.e("s_branch L_tlby")
                a.lab("L_tlbx")
                a.e("s_and_b32 s%d, s%d, 3" % (sA, sM))
                a.e("s_lshl2_add_u32 s%d, s%d, s%d" % (sA, sG, sA))
                a.e("s_lshl_b32 s%d, s%d, 15" % (sA, sA))
                a.e("v_lshl_add_u32 v3, v0, 10, s%d" % sA)
                a.e("s_lshr_b32 s%d, s%d, 3" % (sA, sG))
                a.e("s_lshl2_add_u32 s%d, s%d, s%d" % (sA, sA, sW) if Opt.ghx else "s_mov_b32 s%d, s%d" % (sA, sW))
                a.e("s_lshl_b32 s%d, s%d, 7" % (sA, sA))
                a.e("s_bitcmp1_b32 %d, s%d" % (Opt.tch if Opt.tlb & 8 else 0, sW))
                a.e("s_cselect_b32 exec_lo, -1, 1")
                a.e("s_mov_b32 exec_hi, 0")
                a.e("buffer_load_dword %s, v3, %s, s%d offen" % (v(vPOLL), srd(SX), sA))
                a.lab("L_tlby")
                a.e("s_mov_b64 exec, -1")
                a.vm.append("tlb")
        if Opt.tpos == 0: touches()
        if Opt.startbar: a.e("s_barrier")
        npre = min(Opt.npre, 8) if role == "A" else 5
        pn = block(part(1, role)[:npre])
        rest = st + (collect(qvoff) + collect(lambda t: xvoff(t, vTID)) if role == "A" else collect(wvoff))
        gap = len(rest) // (npre + Opt.pregap) + 1
        if Opt.tpos == 2:
            put(a, pn); touches(); npre = 0
        if Opt.tpos == 3 and role == "B":
            put(a, pn); touches(); npre = 0
        for i in range(npre):
            put(a, pn[:1]); pn = pn[1:]
            put(a, rest[:gap]); rest = rest[gap:]
        put(a, rest)
        if Opt.tpos == 1 or (Opt.tpos == 3 and role == "A"): touches()
        a.e("s_mov_b64 vcc, %d" % (-1 if role == "A" else 0))
        if role == "A":
            a.waitvm("c0", lgkm=True)
        else:
            a.e("s_setprio 1")
            a.waitvm("c0", lgkm=True)
            a.e("s_branch L_k0")
        vms[role] = a.vm
    stream = part(1, "A")[min(Opt.npre, 8):] + [(c, k_, j) for c in range(2, 8) for k_, j in ORDER]
    qa = [int(x, 16) for x in Opt.qa]; qb = [int(x, 16) for x in Opt.qb]
    def take(n, cmax):
        m = 0
        while m < n and m < len(stream) and stream[m][0] <= cmax: m += 1
        r_ = stream[:m]; del stream[:m]
        return block(r_)
    a.lab("L_k0")
    a.vm = vms["A"]
    ool = Asm()
    def dmablock(name, role, items, wait=None):
        a.e("s_cbranch_vcc%s L_%s" % ("nz" if role == "A" else "z", name))
        if wait: a.waitvm(wait, lgkm=True)
        a.lab("L_%s_r" % name)
        ool.lab("L_%s" % name)
        ool.vm = a.vm if role == "A" else vms["B"]
        for it_ in items:
            put(ool, [it_])
            fp = Opt.fillper if role == "A" or not Opt.bidle else 2
            put(ool, fills[role][:fp]); fills[role] = fills[role][fp:]
        if name in ("d7", "e7"): put(ool, fills[role]); fills[role] = []
        if wait: ool.waitvm(wait, lgkm=True)
        if role == "B": vms["B"] = ool.vm
        ool.e("s_branch L_%s_r" % name)
    a.ool = ool.l

    def fr(k):
        b = vF1 + 36 * (k % 2)
        return dict(x=b, w=b + 16, q=b + 32)
    def reads(k):
        c, s = divmod(k, 2); f = fr(k); sl = c % 3
        wo = sl * 16384 + s * 8192
        W = lambda i: [rdtr(f['w'] + 4 * i, vWA + i, wo), rdtr(f['w'] + 4 * i + 2, vWA + i, wo + 1024)]
        X = [rd128(f['x'] + 4 * b, vXA + 2 * s + (b >> 1), sl * 16384 + (b & 1) * 2048) for b in range(4)]
        return W(0) + X + W(2) + W(1) + W(3) + [rdtr(f['q'], vQA, sl * 4096 + s * 2048), rdtr(f['q'] + 2, vQA, sl * 4096 + s * 2048 + 256)]
    a.e("s_barrier")
    a.stamp(3)
    if Opt.kdiag or Opt.probe >= 18:
        kstamp(a, 2)
        a.e("s_waitcnt lgkmcnt(0)")
    for r in reads(0): a.e(r)
    if qa[0]: dmablock("d2", "A", take(qa[0], 2))
    for k in range(16):
        c, s = divmod(k, 2); f = fr(k)
        z = lambda x: None if k == 0 else x
        mf = []
        for n_, i in enumerate((0, 2, 1, 3)):
            for b in (range(4) if n_ % 2 == 0 else range(3, -1, -1)):
                d = vACC + 16 * b + 4 * i
                mf.append(mfma16(d, f['w'] + 4 * i, f['x'] + 4 * b, z(d)))
        for b in range(2): mf.append(mfma16(vAQ + 4 * b, f['q'], f['x'] + 4 * b, z(vAQ + 4 * b)))
        rds = reads(k + 1) if k < 15 else []
        if s == 0:
            a.e("s_waitcnt lgkmcnt(6)")
            for i, m in enumerate(mf):
                if i == 8: a.e("s_waitcnt lgkmcnt(8)")
                a.e(m)
                if i < len(rds): a.e(rds[i])
            continue
        a.e("s_waitcnt lgkmcnt(8)")
        for m in mf[:4]: a.e(m)
        if c <= 5:
            dmablock("e%d" % (c + 2), "B", take(qb[c], c + 2), "c%d" % (c + 1))
            assert not any(x[0] <= c + 1 for x in stream)
        if c == 7:
            a.e("s_waitcnt lgkmcnt(0)")
        elif c == 6:
            a.e("s_waitcnt lgkmcnt(0)")
            a.e("s_cbranch_vccz L_st7")
            a.e("s_setprio 1")
            a.e("s_waitcnt vmcnt(0)")
            a.e("s_barrier")
            a.lab("L_st7")
        else:
            a.e("s_barrier")
        if c < 7 and ((Opt.kdiag == 1 and Opt.diag) or Opt.probe == 21 + c):
            kstamp(a, 3 + c)
            a.e("s_waitcnt lgkmcnt(0)")
        if c + 3 < 8:
            items = take(qa[c + 1], c + 3)
            dmablock("d%d" % (c + 3), "A", items)
        for i, m in enumerate(mf[4:]):
            a.e(m)
            if i < len(rds): a.e(rds[i])
        if k == 11: assert not stream and not fills["A"] and not fills["B"]
        if k == 11:
            a.e("s_cbranch_vccnz L_st6")
            a.e("s_setprio 0")
            nm = next((i for i, x in enumerate(idleB) if "0xdddd" in x[0]), 0)
            a.e("s_cmp_lg_u32 s%d, 4" % sW)
            a.e("s_cbranch_scc1 L_nopoll")
            a.e("buffer_load_dword %s, off, %s, 0 sc1" % (v(vPOLL), srd(SDBG)))
            a.lab("L_nopoll")
            put(a, idleB[:nm]); idleB = idleB[nm:]
            a.wait0()
            spin_counter(a, "kvf", True, 4)
            a.e("s_barrier")
            put(a, kv_first_loads(a, True) + oclr + idleB)
            a.lab("L_st6")
    a.kvA = (kv_first_loads(a) + oclr)[2:]
    a.stamp(4)

def phase1_L(a):
    a.lab("L_light")
    a.vm = []
    a.e("s_waitcnt lgkmcnt(0)")
    ptr_loads(a, ((SWKV, 16), (SWV, 24), (SGATE, 72), (SWO, 32)))
    srd_words(a, [SWKV, SWV, SGATE, SX])
    xvoff(a, 0)
    a.e("v_and_b32 v2, 63, v0")
    a.e("v_lshlrev_b32 %s, 4, v2" % v(vL16))
    a.e("s_sub_u32 s%d, s%d, 14" % (sCNT, sM))
    a.e("s_lshl_b32 s%d, s%d, 16" % (sOLD, sCNT))
    a.e("s_lshl_b32 s%d, s%d, 13" % (sHST, sCNT))
    a.e("s_add_u32 s%d, s%d, s%d" % (sWH, sHST, sWK))
    a.e("s_xor_b32 s%d, s%d, 0x2000" % (sHST, sHST))
    a.e("s_add_u32 s%d, s%d, 0x2000" % (sA, sWK))
    a.e("s_waitcnt lgkmcnt(0)")
    a.stamp(2)
    def xdma(c, base, so):
        a.vmop("s_add_u32 m0, s%d, 0x%x\ns_nop 0\nbuffer_load_dwordx4 %s, %s, s%d offen offset:%d lds"
               % (base, LL_X + c * 16384 - c * 128, v(vDX), srd(SX), so, c * 128), "c%d" % c)
    def wdma(u):
        for t, rs in enumerate((SWKV, SWV)):
            a.vmop("s_add_u32 m0, s%d, 0x%x\ns_nop 0\nbuffer_load_dwordx4 %s, %s, s%d offen lds"
                   % (sWK, LL_W + t * 16384 + u * 8192, v(vL16), srd(rs), sA if u else sWK), "w")
    wdma(0)
    a.vmop("s_mov_b32 m0, s%d\ns_nop 0\nbuffer_load_dwordx4 %s, %s, 0 offen lds" % (sHST, v(vL16), srd(SGATE)), "w")
    for c in range(8):
        if c == 4: wdma(1)
        xdma(c, sWH, sOLD)
        if c in (1, 3, 5): a.e("s_barrier")
    setup_ids(a)
    srd_words(a, [SWQ])
    setup_rd(a)
    a.e("v_lshrrev_b32 v3, 5, v0")
    a.e("v_bfrev_b32 v5, v4")
    a.e("v_lshrrev_b32 v5, 30, v5")
    a.e("s_cmp_ge_u32 s%d, 2" % sLO)
    a.e("s_cselect_b64 vcc, -1, 0")
    a.e("v_cndmask_b32 v4, v5, v4, vcc")
    a.e("v_lshl_add_u32 %s, v3, 3, v2" % v(vWA))
    a.e("v_lshlrev_b32 %s, 5, %s" % (v(vWA), v(vWA)))
    a.e("v_lshl_add_u32 %s, v4, 3, %s" % (v(vWA), v(vWA)))
    a.e("s_lshr_b32 s%d, s%d, 1" % (sA, sLO))
    a.e("s_lshl_b32 s%d, s%d, 14" % (sA, sA))
    a.e("s_add_u32 s%d, s%d, 0x%x" % (sA, sA, LL_W))
    a.e("v_add_u32 %s, s%d, %s" % (v(vWA), sA, v(vWA)))
    a.e("v_lshl_add_u32 %s, v3, 4, s%d" % (v(vWA + 1), sHST))
    a.e("s_and_b32 s%d, s%d, 1" % (sA, sLO))
    a.e("s_lshl_b32 s%d, s%d, 1" % (sB, sCNT))
    a.e("s_add_u32 s%d, s%d, s%d" % (sCNT, sA, sB))
    a.e("s_lshl_b32 s%d, s%d, 12" % (sA, sCNT))
    a.e("v_and_b32 v2, 31, v0")
    a.e("v_lshrrev_b32 v4, 1, v0")
    a.e("v_lshlrev_b32 v5, 1, v0")
    a.e("v_bfi_b32 v4, 4, v4, v5")
    a.e("v_bfi_b32 v4, 12, v4, v2")
    a.e("v_cndmask_b32 v2, v2, v4, vcc")
    a.e("v_bfe_u32 v4, v2, 1, 3")
    a.e("v_xor_b32 v4, v4, v3")
    a.e("v_lshlrev_b32 v4, 4, v4")
    a.e("v_lshl_add_u32 v4, v2, 7, v4")
    a.e("v_add_u32 %s, s%d, v4" % (v(vLX), sA))
    for s in range(1, 4): a.e("v_xor_b32 %s, %d, %s" % (v(vLX + s), 32 * s, v(vLX)))
    for s in range(4): a.e("v_add_u32 %s, 0x10000, %s" % (v(vLX + 4 + s), v(vLX + s)))
    a.e("s_waitcnt lgkmcnt(0)")
    setup_oclr(a)
    vm0 = list(a.vm)
    a.e("s_cmp_lg_u32 s%d, 0" % sHI)
    a.e("s_cbranch_scc1 L_lB")
    a.e("s_not_b64 %s, %s" % (sp(sTMPP), sp(sVM)))
    a.e("s_cmp_ge_u32 s%d, 2" % sLO)
    a.e("s_cbranch_scc1 L_lV")
    def chain(kind):
        a.vm = list(vm0)
        def fr(k):
            b = vFR + 8 * (k % 4)
            return b, b + 4
        def reads(k):
            c, s = divmod(k, 4); x, w = fr(k)
            r = [rd128(x, vLX + s + 4 * (c >> 2), (c & 3) * 16384), rdtr(w, vWA, k * 512), rdtr(w + 2, vWA, k * 512 + 128)]
            if kind == "K":
                r += ["s_mov_b64 exec, %s" % sp(sTMPP), rd128(w, vWA + 1, k * 32), "s_mov_b64 exec, -1"]
            return r
        for q in range(4):
            a.waitvm("c%d" % (2 * q + 1))
            a.e("s_barrier")
            nr = 4 if kind == "K" else 3
            for k in range(8 * q, 8 * q + 2):
                for r in reads(k): a.e(r)
            for k in range(8 * q, 8 * q + 8):
                if k + 2 < 8 * q + 8:
                    for r in reads(k + 2): a.e(r)
                left = min(2, 8 * q + 7 - k)
                a.e("s_waitcnt lgkmcnt(%d)" % (left * nr))
                x, w = fr(k)
                cc = None if k == 0 else vACC
                a.e(mfma(vACC, w, x, cc) if kind == "K" else mfma(vACC, x, w, cc))
        a.e("s_lshl_b32 s%d, s%d, 2" % (sA, sG))
        a.e("s_add_u32 s%d, s%d, s%d" % (sA, sA, sCNT))
        a.e("s_nop 12")
        if kind == "K":
            a.e("s_mov_b32 s%d, 0x%x" % (sC, f2u(0.25 * math.log2(math.e))))
            for i in range(8): a.e("v_mul_f32 %s, s%d, %s" % (v(vACC + i), sC, v(vACC + i)))
            a.e("v_mul_f32 %s, 0x%x, %s" % (v(vACC + 8), f2u(-math.log2(math.e)), v(vACC + 8)))
            a.e("v_exp_f32 %s, %s" % (v(vACC + 8), v(vACC + 8)))
            for i in range(4): a.e("v_cvt_pk_bf16_f32 %s, %s, %s" % (v(vFR + i), v(vACC + 2 * i), v(vACC + 2 * i + 1)))
            a.e("v_add_f32 %s, 1.0, %s" % (v(vACC + 8), v(vACC + 8)))
            a.e("v_rcp_f32 %s, %s" % (v(vACC + 8), v(vACC + 8)))
            a.e("s_add_u32 s%d, s%d, 63" % (sB, sA))
            a.e("s_and_b32 s%d, s%d, 63" % (sB, sB))
            a.e("s_lshl_b32 s%d, s%d, 11" % (sB, sB))
            a.e("buffer_store_dwordx4 %s, %s, %s, s%d offen sc1" % (v(vFR, 4), v(vL16), srd(SKV), sB))
            a.e("s_lshl_b32 s%d, s%d, 7" % (sB, sA))
            a.e("s_add_u32 s%d, s%d, 0x%x" % (sB, sB, WS_G))
            a.e("s_mov_b32 exec_hi, 0")
            a.e("buffer_store_dword %s, %s, %s, s%d offen sc1" % (v(vACC + 8), v(vGA), srd(SWS), sB))
            a.e("s_mov_b64 exec, -1")
        else:
            for i in range(8): a.e("v_cvt_pk_bf16_f32 %s, %s, %s" % (v(vFR + i), v(vACC + 2 * i), v(vACC + 2 * i + 1)))
            a.e("v_bfe_u32 v2, v0, 4, 1")
            a.e("v_add_u32 v2, s%d, v2" % sA)
            a.e("v_and_b32 v2, 63, v2")
            a.e("v_lshl_add_u32 v2, v2, 11, %s" % v(vL16))
            for i in range(4): a.e("v_cndmask_b32 %s, %s, %s, %s" % (v(vFR + i), v(vFR + 4 + i), v(vFR + i), sp(sVM)))
            a.e("buffer_store_dwordx4 %s, v2, %s, 0 offen offset:1024 sc1" % (v(vFR, 4), srd(SKV)))
        a.e("s_branch L_lJ")
    chain("K")
    a.lab("L_lV")
    chain("V")
    a.lab("L_lB")
    a.vm = list(vm0)
    a.e("s_cmp_lg_u32 s%d, 14" % sM)
    a.e("s_cbranch_scc1 L_nozf")
    a.e("s_cmp_lg_u32 s%d, 4" % sW)
    a.e("s_cbranch_scc1 L_nozf")
    a.e("v_lshlrev_b32 v2, 7, v0")
    a.e("s_lshl_b32 s%d, s%d, 11" % (sA, sG))
    a.e("s_add_u32 s%d, s%d, 0x%x" % (sA, sA, WS_HFLAG))
    a.e("s_mov_b64 exec, 0xffff")
    a.e("buffer_store_dword %s, v2, %s, s%d offen sc1" % (v(vZERO), srd(SWS), sA))
    a.e("s_mov_b64 exec, -1")
    a.lab("L_nozf")
    for q in range(4):
        a.waitvm("c%d" % (2 * q + 1))
        a.e("s_barrier")
    a.lab("L_lJ")
    a.e("v_lshrrev_b32 v3, 2, v0")
    a.e("v_lshlrev_b32 v3, 10, v3")
    a.e("v_lshrrev_b32 v4, 5, v0")
    a.e("v_lshlrev_b32 v4, 1, v4")
    a.e("v_xor_b32 v4, v4, v0")
    a.e("v_and_b32 v4, 3, v4")
    a.e("v_lshl_add_u32 v3, v4, 4, v3")
    a.e("s_lshl_b32 s%d, s%d, 14" % (sA, sW))
    a.e("s_lshl_b32 s%d, s%d, 6" % (sB, sHP))
    a.e("s_add_u32 s%d, s%d, s%d" % (sA, sA, sB))
    a.e("v_add_u32 %s, s%d, v3" % (v(vDQ), sA))
    a.e("s_xor_b32 s%d, s%d, 0x2000" % (sWH, sWH))
    a.e("s_xor_b32 s%d, s%d, 0x10000" % (sOLD, sOLD))
    a.wait0(lgkm=True)
    a.e("s_barrier")
    a.e("s_cmp_lg_u32 s%d, 0" % sW)
    a.e("s_cbranch_scc1 L_noat")
    a.e("s_mov_b64 exec, 1")
    a.e("buffer_atomic_add %s, off, %s, 0 sc1" % (v(vONE), srd(SDBG)))
    a.e("s_mov_b64 exec, -1")
    a.lab("L_noat")
    a.stamp(3)
    for c in range(8): xdma(c, sWH, sOLD)
    for p in range(4):
        a.e("s_add_u32 m0, s%d, 0x%x" % (sWK, LL_WQ + p * 8192))
        a.e("s_mov_b32 s%d, 0x%x" % (sA, p * 128 * 1024))
        a.e("buffer_load_dwordx4 %s, %s, s%d offen lds" % (v(vDQ), srd(SWQ), sA))
    setup_ones(a)
    setup_attn(a)
    if Opt.touch & 2:
        a.e("s_lshl_b32 s%d, s%d, 1" % (sA, sG))
        a.e("s_add_u32 s%d, s%d, s%d" % (sA, sA, sM))
        a.e("s_sub_u32 s%d, s%d, 14" % (sA, sA))
        a.e("s_lshl_b32 s%d, s%d, 3" % (sA, sA))
        a.e("s_add_u32 s%d, s%d, s%d" % (sA, sA, sW))
        a.e("v_lshlrev_b32 v2, 15, v0")
        a.e("s_lshl_b32 s%d, s%d, 7" % (sA, sA))
        a.e("buffer_load_dword %s, v2, %s, s%d offen" % (v(vPOLL), srd(SWO), sA))
        a.e("buffer_load_dword %s, v2, %s, s%d offen" % (v(vPOLL), srd(SWD), sA))
    a.e("s_lshl_b32 s%d, s%d, 12" % (sA, sLO))
    a.e("v_add_u32 %s, s%d, %s" % (v(vXA), sA, v(vXA)))
    a.e("v_xor_b32 %s, 64, %s" % (v(vXA + 1), v(vXA)))
    a.e("v_add_u32 %s, 0x10000, %s" % (v(vXA + 2), v(vXA)))
    a.e("v_add_u32 %s, 0x10000, %s" % (v(vXA + 3), v(vXA + 1)))
    a.e("v_add_u32 %s, 0x%x, %s" % (v(vQA), LL_WQ, v(vQA)))
    a.e("s_waitcnt vmcnt(%d)" % (2 if Opt.touch & 2 else 0))
    a.e("s_barrier")
    def fr(k): return vFR + 12 * (k % 3)
    def reads(k):
        c, s = divmod(k, 2); f = fr(k)
        return [rd128(f + 4 * b, vXA + s + 2 * (c >> 2), (c & 3) * 16384 + b * 2048) for b in range(2)] + \
               [rdtr(f + 8, vQA, k * 2048), rdtr(f + 10, vQA, k * 2048 + 256)]
    for k in range(2):
        for r in reads(k): a.e(r)
    for k in range(16):
        a.e("s_waitcnt lgkmcnt(%d)" % (4 * min(1, 15 - k)))
        for b in range(2): a.e(mfma16(vAQ + 4 * b, fr(k) + 8, fr(k) + 4 * b, None if k == 0 else vAQ + 4 * b))
        if k + 2 < 16:
            for r in reads(k + 2): a.e(r)
    spin_counter(a, "kvl", False)
    a.e("s_barrier")
    for s, t in kv_first_loads(a): a.e(s)
    a.wait0()
    a.stamp(4)
    a.e("s_branch L_join")

def gelu_tile(a, ti, scalar=False):
    acc = vACC + 16 * ti
    t = vFR
    o = vFR + 8 + 4 * ti
    pk = lambda r: v(r, 2)
    if scalar:
        for i in range(8): a.e("v_mul_f32 %s, %s, %s" % (v(t + i), v(acc + i), v(acc + i)))
        for i in range(8): a.e("v_fma_f32 %s, %s, %s, %s" % (v(t + i), v(t + i), v(vC0 + 1), v(vC0)))
        for i in range(8): a.e("v_mul_f32 %s, %s, %s" % (v(t + i), v(t + i), v(acc + i)))
        for i in range(8): a.e("v_exp_f32 %s, %s" % (v(t + i), v(t + i)))
        for i in range(8): a.e("v_add_f32 %s, 1.0, %s" % (v(t + i), v(t + i)))
        for i in range(8): a.e("v_rcp_f32 %s, %s" % (v(t + i), v(t + i)))
        for i in range(8): a.e("v_mul_f32 %s, %s, %s" % (v(acc + i), v(acc + i), v(acc + 8 + i)))
        for i in range(8): a.e("v_mul_f32 %s, %s, %s" % (v(acc + i), v(acc + i), v(t + i)))
    R4, R8 = (range(0), range(0)) if scalar else (range(4), range(8))
    for i in R4: a.e("v_pk_mul_f32 %s, %s, %s" % (pk(t + 2 * i), pk(acc + 2 * i), pk(acc + 2 * i)))
    for i in R4: a.e("v_pk_fma_f32 %s, %s, %s, %s op_sel:[0,1,0] op_sel_hi:[1,1,0]" % (pk(t + 2 * i), pk(t + 2 * i), pk(vC0), pk(vC0)))
    for i in R4: a.e("v_pk_mul_f32 %s, %s, %s" % (pk(t + 2 * i), pk(t + 2 * i), pk(acc + 2 * i)))
    for i in R8: a.e("v_exp_f32 %s, %s" % (v(t + i), v(t + i)))
    for i in R4: a.e("v_pk_add_f32 %s, %s, 1.0 op_sel_hi:[1,0]" % (pk(t + 2 * i), pk(t + 2 * i)))
    for i in R8: a.e("v_rcp_f32 %s, %s" % (v(t + i), v(t + i)))
    for i in R4: a.e("v_pk_mul_f32 %s, %s, %s" % (pk(acc + 2 * i), pk(acc + 2 * i), pk(acc + 8 + 2 * i)))
    for i in R4: a.e("v_pk_mul_f32 %s, %s, %s" % (pk(acc + 2 * i), pk(acc + 2 * i), pk(t + 2 * i)))
    for i in range(4): a.e("v_cvt_pk_bf16_f32 %s, %s, %s" % (v(o + i), v(acc + 2 * i), v(acc + 2 * i + 1)))
    a.vmop("buffer_store_dwordx4 %s, %s, %s, s%d offen offset:%d sc1" % (v(o, 4), v(vHA), srd(SWS), sHST2 if ti >> 1 else sHST, (ti & 1) * 256), "hst")

def Yseg(hset, toggle=False):
    out = []
    for t in range(2):
        extra = False and hset < 2 and t == Opt.xtile
        pos = [int(x, 17) for x in (Opt.ypos0 if hset is None else Opt.ypos2 if extra else Opt.ypos1)]
        S, Sn = vS + 16 * t, vS + 16 * (1 - t)
        K, V0, V1 = vKF + 4 * t, vV + 8 * t, vV + 8 * t + 4
        for e in range(1, 17):
            out.append("v_exp_f32 %s, %s" % (v(S + e - 1), v(S + e - 1)))
            if e == pos[0]: out.append(smfmac(vO, V1, Sn + 8))
            if e == pos[1]: out.append(mfma(Sn, K, vQ, None))
            if e == pos[2]: out.append(smfmac(vO, V0, S))
            if hset is not None:
                if e == 13 and t == 1 and toggle:
                    out.append("v_xor_b32 %s, 0x4000, %s" % (v(vKVB), v(vKVB)))
                if e == pos[3]: out.append(mfma(vD + 16 * t, vWF + 4 * t, vH + 4 * hset, vD + 16 * t))
                if extra and e == pos[4]: out.append(mfma(vD + 16 * hset, vWX + 4 * hset, vH + 16, vD + 16 * hset))
    return out

def kv_reads(off, vKVA=vKVA):
    r = [rd128(vKF, vKVA, off), rd128(vKF + 4, vKVA, off + 2048), "s_mov_b64 exec, %s" % sp(sVM)]
    for t in range(2):
        r += [rd128(vV + 8 * t, vKVA, off + 2048 * t + 1024), rd128(vV + 8 * t + 4, vKVA, off + 2048 * t + 1280)]
    r.append("s_mov_b64 exec, -1")
    return r
def wd_reads(dst, addr, off):
    r = []
    for c in range(2):
        r += [rdtr(dst + 4 * c, addr, off + 512 * c), rdtr(dst + 4 * c + 2, addr, off + 512 * c + 1024)]
    return r

def hord(): return [0, 2, 4, 6, 1, 3, 5, 7] if Opt.hord else list(range(8))
def wdrow(sg): return (32 * (sg >> 1) + 8 * (sg & 1)) * 1024

def attention(a, role, pre0=None):
    A = role == "A"
    def kvdma(u):
        a.vmop("s_add_u32 m0, s%d, 0x%x\ns_add_u32 s%d, s%d, 0x%x\nbuffer_load_dwordx4 %s, %s, s%d offen sc1 lds"
               % (sWK, L_KV + (u % 4) * 8192, sA, sWK, u * 8192, v(vL16), srd(SKV), sA), "kv%d" % u)
    def wddma(sg):
        a.vmop("s_add_u32 m0, s%d, 0x%x\ns_add_u32 s%d, s%d, 0x%x\nbuffer_load_dwordx4 %s, %s, s%d offen lds"
               % (sWK, L_WD + (sg % 4 if sg < 23 or sg == 27 else sg - 19) * 8192, sA, sWDOFF, wdrow(sg), v(vWDV), srd(SWD), sA), "wd%d" % sg)
    def wodma(j):
        a.vmop("s_add_u32 m0, s%d, 0x%x\ns_add_u32 s%d, s%d, 0x%x\nbuffer_load_dwordx4 %s, %s, s%d offen lds"
               % (sWK, L_WO + j * 8192, sA, sB, j * 16384, v(vWDV), srd(SWO), sA), "wo")
    def hload(sg, dst):
        a.vmop("s_add_u32 s%d, s%d, 0x%x\nbuffer_load_dwordx4 %s, %s, %s, s%d offen sc1"
               % (sA, sHOFF, sg * 1024, v(dst, 4), v(vL16), srd(SWS), sA), "h%d" % sg)
    for n in range(12):
        if not A and n == 0: a.e("s_barrier")
        if n % 2 == 1: astamp(a, 2 + n // 2)
        tags = []
        if A and n % 2 == 1: tags.append("kv%d" % ((n + 1) // 2))
        if not A and n % 2 == 0: tags.append("kv%d" % ((n + 2) // 2))
        if n == (3 if A else 2): tags.append("hst")
        if n == 6: tags.append("wo")
        if n == 9: tags.append("wd27")
        if n == 11: tags.append("wd0")
        if n == 9 and A:
            a.e("s_cmp_lg_u32 s%d, 0" % sW)
            a.e("s_cbranch_scc1 L_hf_done")
            a.e("s_mov_b32 s%d, 0x4000" % sB)
            a.e("s_waitcnt vmcnt(0)")
            a.lab("L_hf_chk")
            a.e("v_cmp_ne_u32 vcc, 1, %s" % v(vPOLL))
            a.e("s_cbranch_vccz L_hf_done")
            a.e("s_sleep 2")
            a.e("buffer_load_dword %s, %s, %s, 0 offen sc1" % (v(vPOLL), v(vFLA), srd(SWS)))
            a.e("s_sub_u32 s%d, s%d, 1" % (sB, sB))
            a.e("s_cmp_lg_u32 s%d, 0" % sB)
            a.e("s_waitcnt vmcnt(0)")
            a.e("s_cbranch_scc1 L_hf_chk")
            a.lab("L_hf_done")
        a.waitvm(tags)
        if n == 5 and Opt.diag == 3 and A:
            a.e("v_mov_b32 v2, s%d" % sSTAMP)
            a.e("s_lshl_b32 s%d, s2, 3" % sA)
            a.e("s_add_u32 s%d, s%d, s%d" % (sA, sA, sW))
            a.e("s_lshl_b32 s%d, s%d, 7" % (sA, sA))
            a.e("s_add_u32 s%d, s%d, 0x%x" % (sA, sA, WS_STAMP))
            a.e("s_mov_b64 exec, 1")
            a.vmop("buffer_store_dword v2, off, %s, s%d offset:12 sc1" % (srd(SWS), sA), "st")
            a.e("s_mov_b64 exec, -1")
        if n == 3 and not A:
            a.e("s_cmp_ge_u32 s%d, 14" % sM)
            a.e("s_cbranch_scc1 L_nohf")
            a.e("s_cmp_lg_u32 s%d, 4" % sW)
            a.e("s_cbranch_scc1 L_nohf")
            a.e("s_lshl_b32 s%d, s%d, 4" % (sA, sG))
            a.e("s_add_u32 s%d, s%d, s%d" % (sA, sA, sM))
            a.e("s_lshl_b32 s%d, s%d, 7" % (sA, sA))
            a.e("s_add_u32 s%d, s%d, 0x%x" % (sA, sA, WS_HFLAG))
            a.e("s_mov_b64 exec, 1")
            a.e("buffer_store_dword %s, off, %s, s%d sc1" % (v(vONE), srd(SWS), sA))
            a.e("s_mov_b64 exec, -1")
            a.lab("L_nohf")
        for r in kv_reads((n % 8) * 4096): a.e(r)
        if n == 8 and A:
            a.e("s_cmp_lg_u32 s%d, 0" % sW)
            a.e("s_cbranch_scc1 L_hf_nol")
            a.e("buffer_load_dword %s, %s, %s, 0 offen sc1" % (v(vPOLL), v(vFLA), srd(SWS)))
            a.lab("L_hf_nol")
        if n == 0:
            kvdma(2); kvdma(3)
            a.e("s_mov_b32 s%d, s%d" % (sC, sKQ))
            a.e("s_mul_i32 s%d, s%d, %d" % (sWDOFF, sC, 448 * 1024))
            a.e("s_and_b32 s%d, s%d, 1" % (sB, sW))
            a.e("s_lshl_b32 s%d, s%d, 14" % (sA, sB))
            a.e("s_add_u32 s%d, s%d, s%d" % (sWDOFF, sWDOFF, sA))
            a.e("s_lshl_b32 s%d, s%d, 1" % (sA, sT))
            a.e("s_add_u32 s%d, s%d, s%d" % (sA, sA, sB))
            a.e("s_mul_i32 s%d, s%d, 112" % (sA, sA))
            a.e("s_mul_i32 s%d, s%d, 28" % (sB, sC))
            a.e("s_add_u32 s%d, s%d, s%d" % (sA, sA, sB))
            a.e("s_lshl_b32 s%d, s%d, 10" % (sA, sA))
            a.e("s_add_u32 s%d, s%d, 0x%x" % (sHOFF, sA, WS_HF))
        if (A and n % 2 == 1 and n >= 3): kvdma((n + 5) // 2)
        if (not A and n % 2 == 0 and n >= 2): kvdma((n + 6) // 2)
        if 1 <= n <= 4:
            a.e("s_lshl_b32 s%d, s%d, 17" % (sB, sKQ))
            a.e("s_and_b32 s%d, s%d, 1" % (sC, sW))
            a.e("s_lshl_b32 s%d, s%d, 13" % (sC, sC))
            a.e("s_add_u32 s%d, s%d, s%d" % (sB, sB, sC))
            for j in (2 * n - 2, 2 * n - 1): wodma(j)
        for sg in {5: (27, 23, 24), 6: (25, 26, 0), 7: (1, 2)}.get(n, ()): wddma(sg)
        if n == 10:
            for r in wd_reads(vWX, vWDA, 3 * 8192): a.e(r)
        for j in ({7: (0,), 8: (1, 2), 9: (3, 4)} if A else {7: (0, 1), 8: (2, 3), 9: (4,)}).get(n, ()):
            for r in wd_reads(WOF[j], vWOA, hord()[j] * 8192): a.e(r)
        hs = {10: (0, 1, 23, 24), 11: (2, 25, 26, 27)} if A else {9: (0, 1, 23), 10: (2, 24), 11: (25, 26, 27)}
        for sg in hs.get(n, ()): hload(sg, vH + 4 * sg if sg < 4 else vHX if sg == 27 else vH + 4 * (sg - 19))
        if n == 11:
            a.e("s_add_u32 s%d, s%d, 0x%x" % (sHOFF, sHOFF, 3 * 1024))
            a.e("s_add_u32 s%d, s%d, 0x%x" % (sWDOFF, sWDOFF, wdrow(3)))
            a.e("s_add_u32 s%d, s%d, 0x%x" % (sKVOFF, sWK, 9 * 8192))
            a.e("s_mov_b32 s%d, 5" % sCNT)
            a.e("s_add_u32 s%d, s%d, 0x1000" % (sOLD2, sOLD))
            a.e("s_mov_b32 s%d, 0x%x" % (sLO_, f2u(2.0 ** -16)))
            a.e("s_mov_b32 s%d, 0x%x" % (sRNG, f2u(2.0 ** 100) - f2u(2.0 ** -16)))
        if n == 0 and pre0:
            pre0()
            a.stamp(5)
        a.e("s_waitcnt lgkmcnt(0)")
        a.e("s_call_b64 %s, L_Y%s" % (sp(sRET), role))
        if n == 0:
            a.e("s_branch L_X1%s" % role)
            a.lab("L_Y%s" % role)
            if A: a.e("s_barrier")
            for x in Yseg(None): a.e(x)
            if not A: a.e("s_barrier")
            a.e("s_setpc_b64 %s" % sp(sRET))
            a.lab("L_X1%s" % role)
    vm = list(a.vm); need = [63] * 4
    for n in range(12, 32):
        p, it = n % 4, (n - 12) // 4
        tags = ["wd%d" % (n - 11), "h%d" % (n - 12)]
        if (p % 2 == 1) == A: tags.append("kv%d" % ((n + (1 if A else 2)) // 2))
        idx = [i for i, t in enumerate(vm) if t in tags]
        if idx: need[p] = min(need[p], len(vm) - 1 - max(idx))
        vm.append("wd%d" % (n - 9))
        vm.append("h%d" % (n - 9))
        if (p % 2 == 1) == A: vm.append("kv%d" % ((n + (5 if A else 6)) // 2))
    a.lab("L_loop%s" % role)
    for p in range(4):
        if p == 0 and Opt.diag and Opt.kdiag == 2:
            a.e("s_cmp_lg_u32 s%d, 4" % sCNT)
            a.e("s_cbranch_scc1 L_nst%s" % role)
            astamp(a, 8)
            a.lab("L_nst%s" % role)
        a.e("s_waitcnt vmcnt(%d)" % need[p])
        for r in kv_reads(p * 4096, vKVB): a.e(r)
        for r in wd_reads(vWF, vWDA, p * 8192): a.e(r)
        a.e("s_add_u32 m0, s%d, 0x%x" % (sWK, L_WD + ((p + 3) % 4) * 8192))
        a.e("s_and_b32 s%d, s%d, 0x7fff" % (sA, sKVOFF))
        a.e("buffer_load_dwordx4 %s, %s, s%d offen lds" % (v(vWDV), srd(SWD), sWDOFF))
        a.e("s_add_u32 s%d, s%d, 0x%x" % (sWDOFF, sWDOFF, 0x2000 if p & 1 else 0x6000))
        a.e("buffer_load_dwordx4 %s, %s, %s, s%d offen sc1" % (v(vH + 4 * ((p + 3) % 4), 4), v(vL16), srd(SWS), sHOFF))
        if (p % 2 == 1) == A:
            a.e("s_add_u32 m0, s%d, 0x%x" % (sA, L_KV))
        a.e("s_add_u32 s%d, s%d, 0x400" % (sHOFF, sHOFF))
        if (p % 2 == 1) == A:
            a.e("buffer_load_dwordx4 %s, %s, s%d offen sc1 lds" % (v(vL16), srd(SKV), sKVOFF))
            a.e("s_add_u32 s%d, s%d, 0x2000" % (sKVOFF, sKVOFF))
        if p == 3:
            a.e("s_sub_u32 s%d, s%d, 1" % (sCNT, sCNT))
            a.e("s_cmp_lg_u32 s%d, 0" % sCNT)
        a.e("s_waitcnt lgkmcnt(0)")
        if A: a.e("s_barrier")
        for x in Yseg(p, toggle=(p == 3)): a.e(x)
        if not A:
            if p == 3: a.e("s_cbranch_scc0 L_tail")
            a.e("s_barrier")
    a.e(("s_cbranch_scc1 L_loop%s" if A else "s_branch L_loop%s") % role)

def transition(a, role):
    A = role == "A"
    if A:
        a.vm = []
        a.lab("L_trA")
    else:
        a.lab("L_join")
        a.e("s_cmp_eq_u32 s%d, 0" % sHI)
        a.e("s_cbranch_scc1 L_trA")
        a.vmjoin = list(a.vm)
    def qfin():
        for i in range(4): a.e("v_cvt_pk_bf16_f32 %s, %s, %s" % (v(vQ + i), v(vAQ + 2 * i), v(vAQ + 2 * i + 1)))
        for i in range(8): a.e("v_mov_b32 %s, 0" % v(vS + 24 + i))
        a.e("v_add_u32 %s, 0x%x, %s" % (v(vWOA), L_WO, v(vWDA)))
        a.e("v_permlane16_swap_b32 %s, %s" % (v(vQ), v(vQ + 2)))
        a.e("v_permlane16_swap_b32 %s, %s" % (v(vQ + 1), v(vQ + 3)))
    pre0 = None
    if A:
        a.e("s_setprio 1")
        a.e("s_cmp_ge_u32 s%d, 14" % sM)
        a.e("s_cbranch_scc1 L_nogA0")
        put(a, a.kvA[:1] + a.kvA[-1:])
        a.l.append(".p2align 3")
        for ti in range(Opt.gsc): gelu_tile(a, ti, True)
        a.lab("L_nogA0")
        qfin()
        a.waitvm(["k0", "kv0", "kv1"])
        a.e("s_setprio 0")
        a.e("s_barrier")
        a.e(mfma(vS, vK0, vQ, None))
        put(a, a.kvA[1:-1])
        def pre0():
            a.e("s_cmp_lt_u32 s%d, 14" % sM)
            a.e("s_cbranch_scc1 L_gA1")
            a.e("s_waitcnt vmcnt(0)")
            a.e("s_branch L_nogA1")
            a.l.append(".p2align 3")
            a.lab("L_gA1")
            for ti in range(Opt.gsc, 4): gelu_tile(a, ti)
            a.lab("L_nogA1")
            a.e("s_setprio 2")
    else:
        a.waitvm(["k0", "kv0", "kv1"])
        a.e("s_setprio 1")
        a.e("s_cmp_ge_u32 s%d, 14" % sM)
        a.l.append(".p2align 3")
        a.e("s_barrier")
        a.e("s_cbranch_scc1 L_nogB")
        for ti in range(4): gelu_tile(a, ti)
        a.lab("L_nogB")
        qfin()
        a.e("s_nop 1")
        a.e(mfma(vS, vK0, vQ, None))
        a.stamp(5)
    attention(a, role, pre0)
    if A:
        a.stamp(6); astamp(a, 9); tstamp(a, 2)
        if Opt.diag and Opt.kdiag == 2: a.e("s_waitcnt lgkmcnt(0)")
        a.e(smfmac(vO, vV1L, vS + 24))
        a.e("s_setprio 0")
        a.e("s_cmp_eq_u32 s%d, 0" % sHI)
        a.e("s_nop 9")
        normalise(a, False)
        a.e("s_branch L_fbret")

def normalise(a, packed):
    t = vT0
    a.e("v_rcp_f32 %s, %s" % (v(t + 2), v(vO + 8)))
    a.e("s_nop 0")
    a.e("v_mul_f32_e64 %s, %s, %s" % (v(t + 2), v(t + 2), v(vGP)))
    if packed:
        for i in range(4): a.e("v_pk_mul_f32 %s, %s, %s op_sel_hi:[1,0]" % (v(vO + 2 * i, 2), v(vO + 2 * i, 2), v(t + 2, 2)))
        for i in range(4):
            a.e("v_pk_fma_f32 %s, %s, 0, %s op_sel_hi:[1,0,%d]" % (v(t, 2), v(vO + 2 * i, 2), v(t, 2) if i else v(vO + 8, 2), 1 if i else 0))
            a.e("v_cvt_pk_bf16_f32 %s, %s, %s" % (v(vPK + i), v(vO + 2 * i), v(vO + 2 * i + 1)))
        a.e("v_fmac_f32 %s, 0, %s" % (v(t), v(t + 1)))
    else:
        t = vO + 8
        for i in range(8): a.e("v_mul_f32 %s, %s, %s" % (v(vO + i), v(vT0 + 2), v(vO + i)))
        for i in range(4):
            a.e("v_fmac_f32 %s, 0, %s" % (v(t), v(vO + 2 * i)))
            a.e("v_cvt_pk_bf16_f32 %s, %s, %s" % (v(vPK + i), v(vO + 2 * i), v(vO + 2 * i + 1)))
            a.e("v_fmac_f32 %s, 0, %s" % (v(t), v(vO + 2 * i + 1)))
    a.e("v_subrev_u32 %s, s%d, %s" % (v(t), sLO_, v(t)))
    a.e("v_cmp_lt_u32 vcc, s%d, %s" % (sRNG, v(t)))
    a.e("s_branch L_fb" if Opt.force_fb else "s_cbranch_vccnz L_fb")

def tail(a):
    a.l.append(".p2align 3")
    a.lab("L_tail")
    a.stamp(6)
    astamp(a, 9)
    if Opt.diag and Opt.kdiag == 2: a.e("s_waitcnt lgkmcnt(0)")
    tstamp(a, 2)
    a.e(smfmac(vO, vV1L, vS + 24))
    wf = [vFR, vFR + 8, vFR + 16]
    HORD = hord()
    def oload(j):
        return "buffer_load_dwordx4 %s, %s, %s, s%d offen offset:%d %s" % (
            v(vS + 4 * j, 4), v(vL16), srd(SWS), sOLD if HORD[j] < 4 else sOLD2, (HORD[j] % 4) * 1024, Opt.old_pol)
    a.oload = oload
    a.e("s_cmp_eq_u32 s%d, 0" % sHI)
    a.e("s_nop 10")
    normalise(a, True)
    a.lab("L_fbret")
    a.e("buffer_store_dwordx4 %s, %s, %s, s%d offen sc1" % (v(vPK, 4), v(vL16), srd(SWS), sOST))
    tstamp(a, 3)
    aw = [vAW0, vWOA + 1, vWOA + 2, vWOA + 3]
    ar = [vAR0, vFLA]
    wo = WOF
    def fetch(o, scale):
        for j in range(8):
            o.e(oload(j))
            if j >= 5:
                for r in wd_reads(wo[j], vWOA, HORD[j] * 8192): o.e(r)
            if scale and j >= 4:
                for i in range(4 * j - 16, 4 * j - 12): o.e("v_mul_f32 %s, %s, %s" % (v(vD + i), v(vGC), v(vD + i)))
    def addrs(a):
        a.e("v_sub_f32 %s, 1.0, %s" % (v(vGC), v(vGC)))
        for j in range(1, 4): a.e("v_xor_b32 %s, %d, %s" % (v(aw[j]), 32 * j, v(aw[0])))
        a.e("v_xor_b32 %s, 16, %s" % (v(ar[1]), v(ar[0])))
        a.e("s_mov_b32 s%d, 0x2000" % sB)
    ol = Asm(); a.ool2 = ol.l
    a.e("s_waitcnt vmcnt(1)")
    tstamp(a, 4)
    a.e("s_barrier")
    a.e("s_cbranch_scc1 L_tl6")
    a.lab("L_tl2")
    tstamp(a, 5)
    ol.lab("L_tl6")
    fetch(ol, False)
    ol.e("s_branch L_tl2")
    fl = collect(addrs)
    slot = [4, 5, 6, 7, 0, 1, 2]
    rds = sum((wd_reads(wf[i % 3], vWDA, slot[i] * 8192) for i in range(7)), [])
    for r in rds[:4]: a.e(r)
    done = 4
    for i in range(-1, 7):
        for c in range(2):
            if i >= 0: a.e("s_waitcnt lgkmcnt(%d)" % (done - (4 * i + 2 * c + 2)))
            a.e(mfma(vD + 16 * c, vWX + 4 * c, vHX, vD + 16 * c) if i < 0 else
                mfma(vD + 16 * c, wf[i % 3] + 4 * c, vH + 4 * slot[i], vD + 16 * c))
            if done < len(rds):
                for r in rds[done:done + 2]: a.e(r)
                done += 2
            else:
                put(a, fl[:2]); fl = fl[2:]
    assert not fl
    tstamp(a, 6)
    a.e("s_cbranch_scc0 L_tl3")
    a.l.append(".p2align 3")
    a.e("s_nop 7")
    a.e("s_nop 0")
    for i in range(16): a.e("v_pk_mul_f32 %s, %s, %s op_sel:[0,1] op_sel_hi:[1,1]" % (v(vD + 2 * i, 2), v(vD + 2 * i, 2), v(vGP, 2)))
    tstamp(a, 7)
    a.e("s_barrier")
    a.lab("L_tl4")
    tstamp(a, 8)
    ol.lab("L_tl3")
    ol.e("s_setprio 0")
    fetch(ol, False)
    tstamp(ol, 7)
    ol.e("s_barrier")
    for i in range(32): ol.e("v_mul_f32 %s, %s, %s" % (v(vD + i), v(vGC), v(vD + i)))
    ol.e("s_waitcnt lgkmcnt(0)")
    ol.e("s_branch L_tl4")
    a.stamp(7)
    def check(j):
        o = vS + 4 * j
        return ["s_waitcnt vmcnt(%d)" % (7 - j), "v_max3_u32 v2, %s, %s, %s" % (v(o), v(o + 1), v(o + 2)),
                "v_max_u32 v2, v2, %s" % v(o + 3), "v_cmp_eq_u32 vcc, -1, v2"]
    a.check = check
    for x in check(0): a.e(x)
    for j in range(10):
        if j < 8:
            a.e("s_cbranch_vccnz L_ore%d" % j)
            a.lab("L_ook%d" % j)
            a.e(mfma(vD, wo[j], vS + 4 * j, vD))
        if j >= 2 and Opt.cfirst: a.e(mfma(vD + 16, wo[j - 2] + 4, vS + 4 * (j - 2), vD + 16))
        if j < 7:
            for x in check(j + 1): a.e(x)
        if j >= 2 and not Opt.cfirst: a.e(mfma(vD + 16, wo[j - 2] + 4, vS + 4 * (j - 2), vD + 16))
        if j in (7, 8): a.e("s_nop 4")
    wr = lambda c, j: "ds_write_b128 %s, %s offset:%d" % (v(aw[j]), v(vD + 16 * c + 4 * j, 4), 128 * c)
    a.stamp(8)
    tstamp(a, 9)
    for j in range(4): a.e(wr(0, j))
    a.e("s_nop 7")
    for j in range(4): a.e(wr(1, j))
    a.e("s_waitcnt lgkmcnt(0)")
    a.e("s_barrier")
    for p in range(4):
        for h in range(2): a.e(rd128(vS + 8 * p + 4 * h, ar[h], p * 8192))
    for p in range(1, 4):
        a.e("s_waitcnt lgkmcnt(%d)" % (6 - 2 * p))
        for i in range(4): a.e("v_pk_add_f32 %s, %s, %s" % (v(vS + 2 * i, 2), v(vS + 2 * i, 2), v(vS + 8 * p + 2 * i, 2)))
    for i in range(4): a.e("v_cvt_pk_bf16_f32 %s, %s, %s" % (v(vP + i), v(vS + 2 * i), v(vS + 2 * i + 1)))
    a.e("buffer_store_dwordx4 %s, %s, %s, s%d offen %s" % (v(vP, 4), v(vOUTA), srd(SOUT), sOUTO, Opt.out_pol))
    if Opt.probe >= 0:
        a.e("s_waitcnt vmcnt(0)")
        a.stamp(9)
        if Opt.probe != 9:
            a.e("s_cmp_ge_u32 s%d, 14" % sM)
            a.e("s_cbranch_scc%d L_end" % (0 if Opt.probe_l else 1))
        a.e("s_sub_u32 s%d, s%d, s%d" % (sA, sSTAMP + 4, sSTAMP))
        a.e("s_mul_i32 s%d, s%d, %d" % (sA, sA, Opt.probe_mul - 1))
        a.e("s_min_u32 s%d, s%d, 100000" % (sA, sA))
        a.e("s_add_u32 s%d, s%d, 3800" % (sA, sA))
        if Opt.probe_w >= 0:
            a.e("s_cmp_lg_u32 s%d, %d" % (sHI, Opt.probe_w))
            a.e("s_cbranch_scc1 L_end")
        if Opt.probe_x >= 0:
            a.e("s_and_b32 s0, s2, 7")
            a.e("s_cmp_lg_u32 s0, %d" % Opt.probe_x)
            a.e("s_cbranch_scc1 L_end")
        a.lab("L_probe")
        a.e("s_memrealtime s[0:1]")
        a.e("s_waitcnt lgkmcnt(0)")
        a.e("s_sub_u32 s0, s0, s%d" % (sSTAMP + 4))
        a.e("s_cmp_lt_u32 s0, s%d" % sA)
        a.e("s_cbranch_scc1 L_probe")
    if Opt.pin == 9:
        a.e("s_waitcnt vmcnt(0)")
        a.stamp(9)
    if Opt.diag in (1, 2):
        a.e("s_waitcnt vmcnt(0)")
        a.stamp(9)
        a.e("s_mov_b32 s%d, s%d" % (sSTAMP + 3, sSTAMP))
        a.e("s_mov_b32 s%d, s%d" % (sSTAMP, sB))
        a.e("s_getreg_b32 s%d, hwreg(HW_REG_XCC_ID)" % (sSTAMP + 1))
        for i in range(20): a.e("v_mov_b32 %s, s%d" % (v(vS + i), sSTAMP + i))
        a.e("s_lshl_b32 s%d, s2, 3" % sA)
        a.e("s_add_u32 s%d, s%d, s%d" % (sA, sA, sW))
        a.e("s_lshl_b32 s%d, s%d, 7" % (sA, sA))
        a.e("s_add_u32 s%d, s%d, 0x%x" % (sA, sA, WS_STAMP))
        a.e("s_mov_b64 exec, 1")
        for i in range(5): a.e("buffer_store_dwordx4 %s, off, %s, s%d offset:%d" % (v(vS + 4 * i, 4), srd(SWS), sA, 16 * i))
    a.lab("L_end")
    a.e("s_endpgm")
    a.l += a.ool2
    for j in range(8):
        a.lab("L_ore%d" % j)
        a.e("s_sub_u32 s%d, s%d, 1" % (sB, sB))
        a.e("s_cbranch_scc1 L_ogive%d" % j)
        a.e("s_waitcnt vmcnt(0)")
        for i in range(j, 8): a.e(a.oload(i))
        for x in a.check(j): a.e(x)
        a.e("s_cbranch_vccnz L_ore%d" % j)
        a.e("s_branch L_ook%d" % j)
        a.lab("L_ogive%d" % j)
        a.e("s_mov_b32 s%d, 0" % sB)
        a.e("s_branch L_ook%d" % j)

def fallback(a):
    a.lab("L_fb")
    m = vT0
    a.e("v_mov_b32 %s, 0xff800000" % v(m))
    a.e("s_mov_b32 s%d, 0" % sA)
    a.lab("L_fb1")
    a.e("buffer_load_dwordx4 %s, %s, %s, s%d offen sc1" % (v(vKF, 4), v(vL16), srd(SKV), sA))
    a.e("s_waitcnt vmcnt(0)")
    a.e(mfma(vS, vKF, vQ, None))
    a.e("s_add_u32 s%d, s%d, 2048" % (sA, sA))
    a.e("s_nop 11")
    for i in range(8): a.e("v_max3_f32 %s, %s, %s, %s" % (v(m), v(m), v(vS + 2 * i), v(vS + 2 * i + 1)))
    a.e("s_cmp_lt_u32 s%d, 0x20000" % sA)
    a.e("s_cbranch_scc1 L_fb1")
    a.e("v_mov_b32 %s, %s" % (v(m + 1), v(m)))
    a.e("s_nop 1")
    a.e("v_permlane32_swap_b32 %s, %s" % (v(m), v(m + 1)))
    a.e("s_nop 1")
    a.e("v_max_f32 %s, %s, %s" % (v(m), v(m), v(m + 1)))
    for i in range(16): a.e("v_sub_f32 %s, 0, %s" % (v(vS + 16 + i), v(m)))
    for i in range(16): a.e("v_mov_b32 %s, 0" % v(vO + i))
    a.e("s_mov_b32 s%d, 0" % sA)
    a.lab("L_fb2")
    a.e("s_add_u32 s%d, s%d, 0x%x" % (sB, sA, 63 * 2048))
    a.e("s_and_b32 s%d, s%d, 0x1ffff" % (sB, sB))
    a.e("buffer_load_dwordx4 %s, %s, %s, s%d offen sc1" % (v(vKF, 4), v(vL16), srd(SKV), sB))
    a.e("s_add_u32 s%d, s%d, 2048" % (sB, sA))
    a.e("s_and_b32 s%d, s%d, 0x1ffff" % (sB, sB))
    a.e("s_mov_b64 exec, %s" % sp(sVM))
    a.e("buffer_load_dwordx4 %s, %s, %s, s%d offen offset:1024 sc1" % (v(vV, 4), v(vL16), srd(SKV), sA))
    a.e("buffer_load_dwordx4 %s, %s, %s, s%d offen offset:1280 sc1" % (v(vV + 4, 4), v(vL16), srd(SKV), sB))
    a.e("s_mov_b64 exec, -1")
    a.e("s_waitcnt vmcnt(0)")
    a.e(mfma(vS, vKF, vQ, vS + 16))
    a.e("s_add_u32 s%d, s%d, 2048" % (sA, sA))
    a.e("s_nop 11")
    for i in range(16): a.e("v_exp_f32 %s, %s" % (v(vS + i), v(vS + i)))
    a.e("s_nop 2")
    a.e(smfmac(vO, vV, vS))
    a.e(smfmac(vO, vV + 4, vS + 8))
    a.e("s_cmp_lt_u32 s%d, 0x20000" % sA)
    a.e("s_cbranch_scc1 L_fb2")
    a.e("s_nop 11")
    a.e("v_rcp_f32 %s, %s" % (v(vT0 + 2), v(vO + 8)))
    a.e("s_cmp_eq_u32 s%d, 0" % sHI)
    a.e("v_mul_f32 %s, %s, %s" % (v(vT0 + 2), v(vT0 + 2), v(vGP)))
    for i in range(8): a.e("v_mul_f32 %s, %s, %s" % (v(vO + i), v(vT0 + 2), v(vO + i)))
    for i in range(4): a.e("v_cvt_pk_bf16_f32 %s, %s, %s" % (v(vPK + i), v(vO + 2 * i), v(vO + 2 * i + 1)))
    for i in range(4): a.e("v_min_u32 %s, -2, %s" % (v(vPK + i), v(vPK + i)))
    a.e("s_branch L_fbret")

def build():
    a = Asm()
    prologue(a)
    phase1_F(a)
    transition(a, "B")
    tail(a)
    a.l += a.ool
    transition(a, "A")
    phase1_L(a)
    fallback(a)
    a.lab("L_codeend")
    for i, x in enumerate(a.l):
        if " sc1" in x and "sc0" not in x and ((Opt.allsc & 1 and "buffer_store" in x) or (Opt.allsc & 2 and "buffer_load" in x)):
            a.l[i] = x.replace(" sc1", " sc0 sc1")
    il = a.l.index("L_light:")
    for i, x in enumerate(a.l):
        if x.endswith(" lds") and "sc1" not in x and " nt" not in x:
            if (Opt.ntx & 4 and (srd(SWD) in x or srd(SWO) in x)) or (Opt.ntx & 8 and i > il):
                a.l[i] = x[:-4] + " nt lds"
    head = open("cdna_kernels/%s.s.ref" % NAME).read().split("\n")
    hdr = [l for l in head if l.startswith(";") and "@launch" not in l and "Override" not in l and "grid=" not in l]
    out = hdr + ["; @launch grid=(256,1,1) block=(512,1,1) lds=%d" % LDS_BYTES,
                 '.amdgcn_target "amdgcn-amd-amdhsa--gfx950"', ".text", ".globl %s_kernel" % NAME, ".p2align 8",
                 ".type %s_kernel,@function" % NAME,
                 ".set CODE_PF_MAX, L_codeend - L_nopf - 4" if Opt.code_pf else "",
                 "%s_kernel:" % NAME]
    out += ["; mapmode %d" % Opt.mapmode, "; xrot %d" % Opt.xrot]
    out += a.l
    out += ['.section .rodata,"a"', ".p2align 6", ".amdhsa_kernel %s_kernel" % NAME,
            "  .amdhsa_next_free_vgpr %d" % NV, "  .amdhsa_next_free_sgpr 102", "  .amdhsa_accum_offset 256",
            "  .amdhsa_group_segment_fixed_size 0", "  .amdhsa_kernarg_size 104", "  .amdhsa_user_sgpr_count 2",
            "  .amdhsa_user_sgpr_kernarg_segment_ptr 1", "  .amdhsa_system_sgpr_workgroup_id_x 1", ".end_amdhsa_kernel", ""]
    return "\n".join(out)

if __name__ == "__main__":
    path = sys.argv[1]
    for kv in sys.argv[2:]:
        k, val = kv.split("=")
        cur = getattr(Opt, k)
        setattr(Opt, k, val if isinstance(cur, str) else type(cur)(int(val)))
    open(path, "w").write(build())
```

```python
import sys, struct, math

NAME = "gated_mix__grouped_kv_mqa__geglu_ffn__prompt"

class Opt:
    diag = 0
    mapmode = 1
    force_fb = False
    allsc = 0
    out_pol = "sc0 sc1"
    code_pf = True
    xrot = 0
    pregap = 0
    aearly = 0
    bidle = 1
    old_pol = "sc1"
    ypos0 = "36g"
    ypos1 = "36bg"
    ypos2 = "36cg9"
    xtile = 0
    tpos = 1
    cfirst = 0
    tch = 12
    stch = 0
    spos = 1
    tlb = 14
    olate = 1
    hrot = 0
    tbar = 0
    hord = 1
    cmap = 1
    kqx = 0
    oearly = 8
    conc = 1
    ghx = 1
    qa = "077777"
    qb = "588888"
    npre = 8
    stagger = 1
    rper = 2
    dma1 = 17
    kprio = 0
    dma0 = 8
    npd = 4
    kdiag = 0
    fillpre = 0
    fillper = 5
    gsc = 2
    sched = 0
    xmask = 1
    ntx = 0
    touch = 2
    rotg = 0
    rotm = 0
    startbar = 1
    pvz = 1
    pin = -1
    pin_ns = 60000
    probe = -1
    probe_x = -1
    probe_mul = 10
    probe_w = -1
    probe_r = -1
    probe_l = 0

def f2u(x): return struct.unpack("<I", struct.pack("<f", x))[0]

WS_KV = 0
WS_G = 128 * 1024
WS_HFLAG = 192 * 1024
WS_OF = 1 << 20
WS_HF = 4 << 20
WS_STAMP = 12 << 20
WS_SIZE = 16 << 20
K1 = 1024
L_G, L_U, L_X, L_WQ = 0, 48 * K1, 96 * K1, 144 * K1
L_QX = 32 * K1
L_WD, L_WO, L_KV = 0, 64 * K1, 128 * K1
LL_X, LL_W, LL_GATE, LL_WQ = 0, 128 * K1, 144 * K1, 128 * K1
LDS_BYTES = 160 * K1

SX, SWG, SWU, SWQ, SWS, SWD, SWO, SOUT, SDBG, SWKV, SGATE, SKV = 4, 8, 12, 16, 20, 24, 28, 32, 36, 40, 44, 64
SWV = 72
sTMPP = 48
sW, sHI, sLO, sG, sM, sT, sCB = 50, 51, 52, 53, 54, 55, 56
sWK = 57
sWH = 58
sVM = 60
sRET = 62
sA, sB, sC, sD = 68, 69, 70, 71
sOFFW, sOFFQ, sCH, sXP = 72, 73, 74, 75
sHOFF, sWDOFF, sKVOFF, sHXO, sCNT = 72, 73, 74, 75, 77
sOUTO, sLO_, sRNG = 59, 81, 75
sOLD2 = 58
sOST, sOLD, sHST = 78, 79, 80
sHST2 = 3
sRX, sRW, sM0B = 40, 41, 42
sKQ = 76
sHP = sM
sSTAMP = 82

def srd(b): return "s[%d:%d]" % (b, b + 3)
def sp(b): return "s[%d:%d]" % (b, b + 1)
def v(b, n=1): return "v%d" % b if n == 1 else "v[%d:%d]" % (b, b + n - 1)

vL16 = 1
vT0, vT1, vT2, vT3 = 2, 3, 4, 5
vGP, vGC = 6, 7
vKVA = 8
vWDA = 9
vWDV = 10
vONE = 11
vZERO = 12
vFLA = 13
vPOLL = 14
vGA = 15
vQ = 16
vK0 = 20
vV1L = 24
vIDX = 28
vAW0, vAR0, vOUTA = 30, 31, 12
vKVB = 29
vP = 32
vV = 40
vO = 56
vD = 72
vACC = 104
vS = 104
vH = 136
vAQ = vP
vF1 = 168
vKF = 168
vWF = 176
vWX = 224
vHX = 232
vPK = 20
WOF = [32, 208, 216, 240, 248, 40, 48, 56]
vWOA = 236
vFR = 184
vLX = 224
vXA = 240
vWA = 244
vQA = 248
vDX, vDG, vDQ = 249, 250, 251
vC0 = 252
vTID = 255
vHA = 254
NV = 256

class Asm:
    def __init__(self):
        self.l = []
        self.vm = []
        self.nstamp = 0
    def e(self, s):
        for x in s.split("\n"):
            x = x.strip()
            if x: self.l.append("    " + x)
    def lab(self, s): self.l.append(s + ":")
    def vmop(self, s, tag):
        self.e(s); self.vm.append(tag)
    def vmn(self, tags):
        if isinstance(tags, str): tags = [tags]
        last = -1
        for i, t in enumerate(self.vm):
            if t in tags: last = i
        return None if last < 0 else len(self.vm) - 1 - last
    def waitvm(self, tags, lgkm=False):
        n = self.vmn(tags)
        if n is None:
            if lgkm: self.e("s_waitcnt lgkmcnt(0)")
            return
        assert n < 64
        self.e("s_waitcnt vmcnt(%d)%s" % (n, " lgkmcnt(0)" if lgkm else ""))
        self.vm = self.vm[len(self.vm) - n:] if n else []
    def wait0(self, lgkm=False):
        self.e("s_waitcnt vmcnt(0)%s" % (" lgkmcnt(0)" if lgkm else "")); self.vm = []
    def stamp(self, i, real=False):
        if Opt.probe == i:
            self.e("s_waitcnt lgkmcnt(0)")
            self.e("s_memrealtime %s" % sp(sSTAMP + 4))
            self.e("s_waitcnt lgkmcnt(0)")
        if Opt.pin == i:
            self.nstamp += 1
            self.e("s_waitcnt lgkmcnt(0)")
            self.e("s_cselect_b32 s%d, 1, 0" % (sSTAMP + 5))
            self.lab("L_pin%d" % self.nstamp)
            self.e("s_memrealtime s[0:1]")
            self.e("s_waitcnt lgkmcnt(0)")
            self.e("s_sub_u32 s0, s0, s%d" % sSTAMP)
            self.e("s_cmp_lt_u32 s0, %d" % (Opt.pin_ns // 10))
            self.e("s_cbranch_scc1 L_pin%d" % self.nstamp)
            self.e("s_cmp_lg_u32 s%d, 0" % (sSTAMP + 5))
        if Opt.diag and not Opt.kdiag and (Opt.diag == 1 or i == 9):
            self.e("s_waitcnt lgkmcnt(0)")
            self.e("s_memtime %s" % sp(sSTAMP + 2 * i))
            self.e("s_memrealtime %s" % sp(sRET))
            self.e("s_waitcnt lgkmcnt(0)")
            self.e("s_mov_b32 s%d, s%d" % (sSTAMP + 2 * i + 1, sRET))

def astamp(a, i):
    if Opt.diag and Opt.kdiag == 2: a.e("s_memtime %s" % sp(sSTAMP + 2 * i))

def tstamp(a, i):
    if Opt.diag and Opt.kdiag == 3: a.e("s_memtime %s" % sp(sSTAMP + 2 * i))

def kstamp(a, i):
    if Opt.probe == 18 + i: a.e("s_memrealtime %s" % sp(sSTAMP + 4))
    if Opt.diag and Opt.kdiag == 1: a.e("s_memtime %s" % sp(sSTAMP + 2 * i))

def mfma(d, a, b, c):
    return "v_mfma_f32_32x32x16_bf16 %s, %s, %s, %s" % (v(d, 16), v(a, 4), v(b, 4), "0" if c is None else v(c, 16))
def smfmac(d, a, b):
    return "v_smfmac_f32_32x32x32_bf16 %s, %s, %s, %s" % (v(d, 16), v(a, 4), v(b, 8), v(vIDX))
def mfma16(d, a, b, c):
    return "v_mfma_f32_16x16x32_bf16 %s, %s, %s, %s" % (v(d, 4), v(a, 4), v(b, 4), "0" if c is None else v(c, 4))
def rd128(d, a, off):
    assert 0 <= off < 65536
    return "ds_read_b128 %s, %s offset:%d" % (v(d, 4), v(a), off)
def rdtr(d, a, off):
    assert 0 <= off < 65536
    return "ds_read_b64_tr_b16 %s, %s offset:%d" % (v(d, 2), v(a), off)

def interleave(mf, fill, per=2):
    out = []
    fill = list(fill)
    for i, m in enumerate(mf):
        out.append(m)
        if i < len(mf) - 1:
            out += fill[:per]; fill = fill[per:]
    return out + fill

def srd_words(a, regs):
    sizes = {SX: 2048 * 1024, SWG: 512 * 3584, SWU: 512 * 3584, SWQ: 512 * 1024, SWS: WS_SIZE, SWKV: 16384, SWV: 16384,
             SGATE: 1024, SWD: 1792 * 1024, SWO: 512 * 1024, SOUT: 2048 * 1024, SDBG: 256, SKV: 128 * 1024}
    for reg in regs:
        a.e("s_mov_b32 s%d, 0x%x" % (reg + 2, sizes[reg]))
        a.e("s_mov_b32 s%d, 0x20000" % (reg + 3))

def ptr_loads(a, lst):
    for reg, off in lst: a.e("s_load_dwordx2 %s, s[0:1], %d" % (sp(reg), off))

def prologue(a):
    if Opt.diag or Opt.pin >= 0 or Opt.probe >= 0:
        a.e("s_memrealtime %s" % sp(sSTAMP))
        if Opt.diag in (1, 2): a.e("s_memtime %s" % sp(sSTAMP + 2))
    ptr_loads(a, ((SX, 0), (SWG, 48), (SWU, 56), (SWQ, 8)))
    a.e("s_load_dwordx8 s[%d:%d], s[0:1], 64" % (SOUT, SOUT + 7))
    if not (Opt.diag or Opt.probe >= 0): ptr_loads(a, ((SWS, 96), (SWO, 32)))
    if Opt.probe == 1: a.stamp(1)
    a.e("v_lshrrev_b32 v2, 6, v0")
    if Opt.code_pf:
        a.e("s_getpc_b64 %s" % sp(sRET))
        a.lab("L_nopf")
        a.e("s_and_b32 s%d, s2, -8" % sA)
        a.e("v_add_lshl_u32 v3, v2, s%d, 7" % sA)
        a.e("v_readfirstlane_b32 s%d, v2" % sW)
        a.e("v_min_u32 v3, CODE_PF_MAX, v3")
        a.e("global_load_dword %s, v3, %s" % (v(vPOLL), sp(sRET)))
    else:
        a.e("s_nop 0")
        a.e("v_readfirstlane_b32 s%d, v2" % sW)
    if Opt.diag or Opt.probe >= 0:
        a.e("s_load_dwordx2 %s, s[0:1], 96" % sp(SWS))
    a.e("s_cmpk_ge_u32 s2, 256")
    a.e("s_cbranch_scc1 L_end")
    a.e("s_and_b32 s%d, s2, 1" % sD)
    a.e("s_bfe_u32 s%d, s2, 0x30003" % sA)
    a.e("s_lshl3_add_u32 s%d, s%d, s%d" % (sG, sD, sA))
    a.e("s_bfe_u32 s%d, s2, 0x20001" % sA)
    a.e("s_lshr_b32 s%d, s2, 6" % sB)
    a.e("s_lshl2_add_u32 s%d, s%d, s%d" % (sM, sA, sB))
    a.e("s_lshl_b32 s%d, s%d, 10" % (sWK, sW))
    a.e("s_cmp_ge_u32 s%d, 14" % sM)
    a.e("s_cbranch_scc1 L_light")

def xvoff(a, t):
    a.e("v_lshrrev_b32 v2, 4, %s" % v(t))
    a.e("v_xor_b32 v2, v2, %s" % v(t))
    a.e("v_and_b32 v2, 7, v2")
    a.e("s_lshl_b32 s%d, s%d, 17" % (sA, sG))
    a.e("v_lshl_add_u32 v2, v2, 4, s%d" % sA)
    a.e("v_lshrrev_b32 v3, 3, %s" % v(t))
    a.e("v_lshl_add_u32 %s, v3, 10, v2" % v(vDX))

def setup_ids(a):
    a.e("s_mov_b64 %s, %s" % (sp(SKV), sp(SWS)))
    a.e("s_mov_b64 %s, %s" % (sp(SWD), sp(SOUT)))
    a.e("s_mov_b64 %s, %s" % (sp(SOUT), sp(SOUT + 4)))
    a.e("s_mov_b64 %s, %s" % (sp(SDBG), sp(SOUT + 6)))
    a.e("v_and_b32 v0, 63, v0")
    a.e("v_lshlrev_b32 %s, 4, v0" % v(vL16))
    a.e("s_andn2_b32 s%d, 1, s2" % sA)
    a.e("s_bfe_u32 s%d, s2, 0x20001" % sB)
    a.e("s_lshl2_add_u32 s%d, s%d, s%d" % (sA, sA, sB))
    a.e("s_bfe_u32 s%d, s2, 0x20003" % sB)
    a.e("s_lshl2_add_u32 s%d, s%d, s%d" % (sT, sA, sB))
    a.e("s_lshr_b32 s%d, s2, 5" % sCB)

def setup_rd(a):
    a.e("s_lshr_b32 s%d, s%d, 2" % (sHI, sW))
    a.e("s_and_b32 s%d, s%d, 3" % (sLO, sW))
    a.e("v_and_b32 v2, 15, v0")
    a.e("v_lshrrev_b32 v3, 4, v0")
    a.e("v_bfe_u32 v4, v0, 1, 3")
    a.e("v_xor_b32 v4, v4, v3")
    a.e("v_lshlrev_b32 v4, 4, v4")
    a.e("v_lshl_add_u32 %s, v2, 7, v4" % v(vXA))
    a.e("v_bfe_u32 v2, v0, 2, 2")
    a.e("v_and_b32 v4, 3, v0")
    a.e("v_lshl_add_u32 %s, v3, 3, v2" % v(vQA))
    a.e("v_lshlrev_b32 %s, 6, %s" % (v(vQA), v(vQA)))
    a.e("v_xor_b32 v5, s%d, v3" % sHI)
    a.e("v_and_b32 v5, 1, v5")
    a.e("v_lshl_add_u32 %s, v5, 5, %s" % (v(vQA), v(vQA)))
    a.e("v_lshl_add_u32 %s, v4, 3, %s" % (v(vQA), v(vQA)))

def setup_oclr(a):
    srd_words(a, [SWS, SKV, SDBG])
    a.e("s_mov_b32 s%d, 0xffff" % sVM)
    a.e("s_mov_b32 s%d, 0xffff" % (sVM + 1))
    a.e("s_lshl_b32 s%d, s%d, 2" % (sA, sG))
    a.e("s_add_u32 s%d, s%d, s%d" % (sA, sA, sLO))
    a.e("s_lshl_b32 s%d, s%d, 5" % (sB, sA))
    a.e("s_lshl_b32 s%d, s%d, 1" % (sC, sHP))
    a.e("s_add_u32 s%d, s%d, s%d" % (sB, sB, sC))
    a.e("s_add_u32 s%d, s%d, s%d" % (sB, sB, sHI))
    a.e("s_lshl_b32 s%d, s%d, 10" % (sB, sB))
    a.e("s_add_u32 s%d, s%d, 0x%x" % (sOST, sB, WS_OF))
    for i in range(4): a.e("v_mov_b32 %s, -1" % v(vQ + i))
    a.vmop("buffer_store_dwordx4 %s, %s, %s, s%d offen sc1" % (v(vQ, 4), v(vL16), srd(SWS), sOST), "oclr")
    a.e("v_mov_b32 %s, 1" % v(vONE))
    a.e("v_mov_b32 %s, 0" % v(vZERO))
    a.e("v_and_b32 %s, 31, v0" % v(vGA))
    a.e("v_lshlrev_b32 %s, 2, %s" % (v(vGA), v(vGA)))

def collect(fn):
    t = Asm(); t.marks = {}
    def vmop(s_, tag):
        t.e(s_); t.marks[len(t.l) - 1] = tag
    t.vmop = vmop
    fn(t)
    return [(x, t.marks.get(i)) for i, x in enumerate(t.l)]
def put(a, items):
    for x, tag in items:
        if tag: a.vmop(x, tag)
        else: a.e(x)

def setup_ones(a):
    a.e("s_mov_b32 s%d, 0x110000" % sA)
    a.e("s_mov_b32 s%d, 0x110000" % sB)
    a.e("v_mov_b32 v3, 0x3f803f80")
    a.e("v_cndmask_b32 %s, 0, v3, %s" % (v(vV1L), sp(sA)))
    for i in range(1, 4): a.e("v_mov_b32 %s, %s" % (v(vV1L + i), v(vV1L)))
    for i in range(16): a.e("v_mov_b32 %s, %s" % (v(vV + i), v(vV1L)))

def setup_attn(a):
    srd_words(a, [SWD, SWO, SOUT])
    a.e("s_lshl_b32 s%d, s%d, 2" % (sA, sG))
    a.e("s_add_u32 s%d, s%d, s%d" % (sA, sA, sLO))
    a.e("s_mul_i32 s%d, s%d, 112" % (sB, sA))
    a.e("s_lshl_b32 s%d, s%d, 3" % (sC, sM))
    a.e("s_add_u32 s%d, s%d, s%d" % (sB, sB, sC))
    a.e("s_lshl_b32 s%d, s%d, 2" % (sC, sHI))
    a.e("s_add_u32 s%d, s%d, s%d" % (sB, sB, sC))
    a.e("s_and_b32 s%d, s%d, 1" % (sC, sLO))
    a.e("s_lshl_b32 s%d, s%d, 1" % (sC, sC))
    a.e("s_add_u32 s%d, s%d, s%d" % (sB, sB, sC))
    a.e("s_lshl_b32 s%d, s%d, 10" % (sB, sB))
    a.e("s_add_u32 s%d, s%d, 0x%x" % (sHST, sB, WS_HF))
    a.e("s_mul_i32 s%d, s%d, %d" % (sC, sC, 112 * 1024))
    a.e("s_sub_u32 s%d, %d, s%d" % (sC, 112 * 1024, sC))
    a.e("s_add_u32 s%d, s%d, s%d" % (sHST2, sHST, sC))
    a.e("v_bfe_u32 v2, v0, 2, 2")
    a.e("v_lshrrev_b32 v3, 5, v0")
    a.e("v_lshl_add_u32 v2, v3, 2, v2")
    a.e("v_lshlrev_b32 v2, 6, v2")
    a.e("v_bfe_u32 v3, v0, 4, 1")
    a.e("v_lshl_add_u32 v2, v3, 5, v2")
    a.e("v_and_b32 v3, 3, v0")
    a.e("v_lshl_add_u32 v2, v3, 3, v2")
    a.e("s_lshr_b32 s%d, s%d, 1" % (sA, sW))
    a.e("s_lshl_b32 s%d, s%d, 11" % (sA, sA))
    a.e("v_add_u32 %s, s%d, v2" % (v(vWDA), sA))
    a.e("v_add_u32 %s, 0x%x, %s" % (v(vKVA), L_KV, v(vL16)))
    a.e("v_add_u32 %s, 0x%x, %s" % (v(vKVB), L_KV + 0x4000, v(vL16)))
    a.e("v_bfe_u32 v2, v0, 2, 3")
    a.e("v_lshlrev_b32 v2, 10, v2")
    a.e("v_lshrrev_b32 v3, 5, v0")
    a.e("v_lshl_add_u32 v2, v3, 6, v2")
    a.e("v_and_b32 v3, 3, v0")
    a.e("v_lshl_add_u32 v2, v3, 4, v2")
    a.e("s_lshl_b32 s%d, s%d, 7" % (sB, sCB))
    a.e("v_add_u32 %s, s%d, v2" % (v(vWDV), sB))
    a.e("v_min_u32 v2, 13, v0")
    a.e("v_lshlrev_b32 v2, 7, v2")
    a.e("s_lshr_b32 s%d, s%d, 1" % (sA, sT))
    a.e("s_lshl_b32 s%d, s%d, 11" % (sA, sA))
    a.e("s_add_u32 s%d, s%d, 0x%x" % (sA, sA, WS_HFLAG))
    a.e("v_add_u32 %s, s%d, v2" % (v(vFLA), sA))
    a.e("s_lshl_b32 s%d, s%d, 1" % (sA, sT))
    a.e("s_and_b32 s%d, s%d, 1" % (sB, sW))
    a.e("s_add_u32 s%d, s%d, s%d" % (sA, sA, sB))
    a.e("s_lshl_b32 s%d, s%d, 15" % (sB, sA))
    a.e("s_lshr_b32 s%d, s%d, 1" % (sKQ, sW))
    if Opt.kqx:
        a.e("s_lshl_b32 s%d, s%d, 1" % (sC, sCB))
        a.e("s_and_b32 s%d, s%d, 2" % (sC, sC))
        a.e("s_xor_b32 s%d, s%d, s%d" % (sKQ, sKQ, sC))
    a.e("s_lshl_b32 s%d, s%d, 13" % (sC, sKQ))
    a.e("s_add_u32 s%d, s%d, s%d" % (sB, sB, sC))
    a.e("s_add_u32 s%d, s%d, 0x%x" % (sOLD, sB, WS_OF))
    a.e("v_and_b32 v2, 31, v0")
    a.e("v_lshrrev_b32 v3, 5, v0")
    a.e("v_and_b32 v4, 7, v0")
    a.e("v_xor_b32 v3, v3, v4")
    a.e("v_lshlrev_b32 v3, 4, v3")
    a.e("v_lshl_add_u32 v3, v2, 8, v3")
    a.e("s_and_b32 s%d, s%d, 1" % (sB, sW))
    a.e("s_lshl_b32 s%d, s%d, 15" % (sB, sB))
    a.e("s_lshr_b32 s%d, s%d, 1" % (sC, sW))
    a.e("s_lshl_b32 s%d, s%d, 13" % (sD, sC))
    a.e("s_add_u32 s%d, s%d, s%d" % (sOUTO, sD, sB))
    a.e("v_add_u32 %s, s%d, v3" % (v(vAW0), sOUTO))
    a.e("v_lshrrev_b32 v2, 3, v0")
    a.e("v_lshlrev_b32 v3, 1, v4")
    a.e("v_xor_b32 v3, v3, v2")
    a.e("v_lshlrev_b32 v3, 4, v3")
    a.e("v_lshl_add_u32 v3, v2, 8, v3")
    a.e("s_lshl_b32 s%d, s%d, 11" % (sD, sC))
    a.e("s_add_u32 s%d, s%d, s%d" % (sD, sD, sB))
    a.e("v_add_u32 %s, s%d, v3" % (v(vAR0), sD))
    a.e("v_lshlrev_b32 v4, 4, v4")
    a.e("v_lshl_add_u32 %s, v2, 10, v4" % v(vOUTA))
    a.e("s_lshl_b32 s%d, s%d, 16" % (sC, sT))
    a.e("s_add_u32 s%d, s%d, s%d" % (sOUTO, sOUTO, sC))
    a.e("s_lshl_b32 s%d, s%d, 7" % (sC, sCB))
    a.e("s_add_u32 s%d, s%d, s%d" % (sOUTO, sOUTO, sC))
    a.e("v_mov_b32 %s, 0xdddd" % v(vIDX))
    a.e("v_lshrrev_b32 v2, 4, v0")
    a.e("v_lshl_add_u32 %s, v2, 8, %s" % (v(vHA), v(vL16)))
    for i in range(16): a.e("v_mov_b32 %s, 0" % v(vO + i))
    for i in range(32): a.e("v_mov_b32 %s, 0" % v(vD + i))
    c0 = -2.0 * math.sqrt(2.0 / math.pi) * math.log2(math.e)
    a.e("v_mov_b32 %s, 0x%x" % (v(vC0), f2u(c0)))
    a.e("v_mov_b32 %s, 0x%x" % (v(vC0 + 1), f2u(c0 * 0.044715)))

def kv_first_loads(a, quartet=False):
    it = []
    for o in (range(0, 16384, 4096) if quartet else range(0, 16384, 8192)):
        b = sWH if quartet else sWK
        it.append(("s_add_u32 m0, s%d, 0x%x\ns_add_u32 s%d, s%d, 0x%x\nbuffer_load_dwordx4 %s, %s, s%d offen sc1 lds"
                   % (b, L_KV + o, sA, b, o, v(vL16), srd(SKV), sA), "kv%d" % (o >> 13)))
    it.append(("s_mov_b32 s%d, 0x%x\nbuffer_load_dwordx4 %s, %s, %s, s%d offen sc1"
               % (sA, 63 * 2048, v(vK0, 4), v(vL16), srd(SKV), sA), "k0"))
    it.append(("s_mov_b64 exec, %s\nbuffer_load_dwordx4 %s, %s, %s, 0 offen offset:%d sc1\ns_mov_b64 exec, -1"
               % (sp(sVM), v(vV1L, 4), v(vL16), srd(SKV), 1024 + 256), "k0"))
    it.append(("s_lshl_b32 s%d, s%d, 2\ns_add_u32 s%d, s%d, s%d\ns_lshl_b32 s%d, s%d, 7\ns_add_u32 s%d, s%d, 0x%x\n"
               "buffer_load_dword %s, %s, %s, s%d offen sc1"
               % (sA, sG, sA, sA, sLO, sA, sA, sA, sA, WS_G, v(vGP), v(vGA), srd(SWS), sA), "k0"))
    it.append(("s_lshl_b32 s%d, s%d, 1\ns_and_b32 s%d, s%d, 1\ns_add_u32 s%d, s%d, s%d\ns_lshl_b32 s%d, s%d, 7\ns_add_u32 s%d, s%d, 0x%x\n"
               "buffer_load_dword %s, %s, %s, s%d offen sc1"
               % (sA, sT, sB, sW, sA, sA, sB, sA, sA, sA, sA, WS_G, v(vGC), v(vGA), srd(SWS), sA), "k0"))
    return it

def spin_counter(a, name, first_loaded, wave=0):
    a.e("s_cmp_lg_u32 s%d, %d" % (sW, wave))
    a.e("s_cbranch_scc1 L_%s_done" % name)
    a.e("s_mov_b32 s%d, 0x4000" % sB)
    if first_loaded: a.e("s_branch L_%s_chk" % name)
    a.lab("L_%s_re" % name)
    a.e("buffer_load_dword %s, off, %s, 0 sc1" % (v(vPOLL), srd(SDBG)))
    a.e("s_waitcnt vmcnt(0)")
    a.lab("L_%s_chk" % name)
    a.e("v_readfirstlane_b32 s%d, %s" % (sA, v(vPOLL)))
    a.e("s_cmp_ge_u32 s%d, 32" % sA)
    a.e("s_cbranch_scc1 L_%s_done" % name)
    a.e("s_sleep 4")
    a.e("s_sub_u32 s%d, s%d, 1" % (sB, sB))
    a.e("s_cmp_lg_u32 s%d, 0" % sB)
    a.e("s_cbranch_scc1 L_%s_re" % name)
    a.lab("L_%s_done" % name)

def phase1_F(a):
    SCHED = {1: ["01423567", "10253467", "23016457", "32104756"],
             2: ["02134657", "01324576", "10243567", "10235467"],
             3: ["01324657", "01243576", "12035467", "20134567"],
             5: ["01243567", "10325467", "23014657", "32104576"],
             6: ["01243567", "10325467", "01234657", "10324576"],
             7: ["01234567", "10235476", "01234567", "10235476"],
             8: ["01234567", "10243657", "01234567", "10243657"],
             4: ["02143657", "10325476", "02143657", "10325476"]}
    tabs = SCHED[Opt.sched] if Opt.sched else ["".join(str(c ^ (p & Opt.xmask)) for c in range(8)) for p in range(4)]
    for t_ in tabs: assert sorted(t_) == list("01234567")
    num = [int(t_[::-1], 16) for t_ in tabs]
    def table(a):
        a.e("s_add_u32 s%d, s%d, s%d" % (sA, sG, sHP))
        a.e("s_mov_b32 s%d, 0x%x" % (sXP, num[0]))
        a.e("s_mov_b32 s%d, 0x%x" % (sB, num[2]))
        a.e("s_bitcmp1_b32 s%d, 0" % sA)
        a.e("s_cselect_b32 s%d, 0x%x, s%d" % (sXP, num[1], sXP))
        a.e("s_cselect_b32 s%d, 0x%x, s%d" % (sB, num[3], sB))
        a.e("s_bitcmp1_b32 s%d, 1" % sA)
        a.e("s_cselect_b32 s%d, s%d, s%d" % (sXP, sB, sXP))
        if Opt.ghx:
            a.e("s_bitcmp1_b32 s%d, 3" % sG)
            a.e("s_cselect_b32 s%d, 0x44444444, 0" % sB)
            a.e("s_xor_b32 s%d, s%d, s%d" % (sXP, sXP, sB))
    fo, fw = {"0000": (0, 0), "0101": (0, 1), "0011": (1, 1), "0123": (0, 2)}["".join(t_[0] for t_ in tabs)]
    a.e("s_add_u32 s%d, s%d, s%d" % (sA, sG, sHP))
    a.e("s_bfe_u32 s%d, s%d, 0x%x" % (sCH, sA, fw << 16 | fo))
    if Opt.ghx: a.e("s_lshl2_add_u32 s%d, s%d, s%d" % (sCH, sD, sCH))
    a.e("s_and_b32 s%d, s%d, 0xc00" % (sWH, sWK))
    a.e("v_and_b32 %s, 0xff, v0" % v(vTID))

    def wvoff(a):
        a.e("v_lshrrev_b32 v2, 4, %s" % v(vTID))
        a.e("v_lshrrev_b32 v3, 5, %s" % v(vTID))
        a.e("v_bfi_b32 v3, 3, v2, v3")
        a.e("v_lshlrev_b32 v3, 1, v3")
        a.e("v_xor_b32 v3, v3, %s" % v(vTID))
        a.e("v_and_b32 v3, 15, v3")
        a.e("s_lshl_b32 s%d, s%d, 8" % (sA, sM))
        a.e("v_lshl_add_u32 v3, v3, 4, s%d" % sA)
        a.e("v_mul_u32_u24 v2, 3584, v2")
        a.e("v_add_u32 %s, v2, v3" % v(vDG))
    def qvoff(a):
        a.e("v_lshrrev_b32 v2, 4, %s" % v(vTID))
        a.e("v_and_b32 v2, 2, v2")
        a.e("v_xor_b32 v2, v2, %s" % v(vTID))
        a.e("v_and_b32 v2, 3, v2")
        a.e("s_lshl_b32 s%d, s%d, 6" % (sA, sHP))
        a.e("v_lshl_add_u32 v2, v2, 4, s%d" % sA)
        a.e("v_lshrrev_b32 v3, 2, %s" % v(vTID))
        a.e("v_lshl_add_u32 %s, v3, 10, v2" % v(vDQ))
    def stouch(a):
        if Opt.diag or Opt.probe >= 0: a.e("s_load_dwordx2 %s, s[0:1], 32" % sp(SWO))
        if not Opt.stch: return
        a.e("s_lshr_b32 s%d, s%d, 2" % (sA, sW))
        if Opt.ghx: a.e("s_lshl2_add_u32 s%d, s%d, s%d" % (sA, sD, sA))
        a.e("s_lshl_b32 s%d, s%d, 6" % (sA, sA))
        a.e("s_and_b32 s%d, s%d, 7" % (sB, sG))
        a.e("s_add_u32 s%d, s%d, s%d" % (sA, sA, sB))
        a.e("s_mul_i32 s%d, s%d, 28" % (sA, sA))
        a.e("s_bfe_u32 s%d, s%d, 0x10001" % (sB, sW))
        a.e("s_lshl1_add_u32 s%d, s%d, s%d" % (sB, sM, sB))
        a.e("s_add_u32 s%d, s%d, s%d" % (sA, sA, sB))
        a.e("s_lshl_b32 s%d, s%d, 7" % (sA, sA))
        a.e("s_bitcmp1_b32 s%d, 0" % sW)
        a.e("s_cselect_b64 %s, %s, %s" % (sp(SWKV), sp(SWU), sp(SWG)))
        a.e("s_add_u32 s%d, s%d, s%d" % (SWKV, SWKV, sA))
        a.e("s_addc_u32 s%d, s%d, 0" % (SWKV + 1, SWKV + 1))
        for i in range(Opt.stch):
            a.e("s_load_dwordx2 %s, %s, 0x%x" % (sp(sTMPP), sp(SWKV), 128 * 3584 + i * 8 * 3584 + 60))
    def wsrd(a):
        srd_words(a, [SWG])
        a.e("s_mov_b64 %s, %s" % (sp(SWU + 2), sp(SWG + 2)))

    if Opt.hrot:
        ORDER = [("q", 0)] + [(t_, 2 * h_ + j) for h_ in range(2) for t_, j in (("x", 0), ("x", 1), ("g", 0), ("u", 0), ("g", 1), ("u", 1))]
    else:
        ORDER = [("q", 0)] + [("x", j) for j in range(4)] + [(t_, j) for j in range(4) for t_ in "gu"]
    def block(items):
        out = []; lastc = None; lastw = None
        for c, kind, j in items:
            s = c % 3; pre = []
            if c != lastc:
                if c: pre.append("s_bfe_u32 s%d, s%d, 0x%x" % (sCH, sXP, 0x30000 + 4 * c))
                lastc = c; lastw = None
            fam = "w" if kind in "gu" else kind
            rot = Opt.hrot and fam != "q"
            if lastw is None or lastw[0] != fam or (rot and lastw[1] >> 1 != j >> 1):
                pre.append({"q": "s_lshl_b32 s%d, s%d, 16" % (sOFFW, sCH), "x": "s_lshl_b32 s%d, s%d, 7" % (sOFFW, sCH),
                            "w": "s_mul_i32 s%d, s%d, %d" % (sOFFW, sCH, 64 * 3584)}[fam])
                if rot: pre.append("s_%s_u32 s%d, s%d, s%d" % ("sub" if j >> 1 else "add", sOFFW, sOFFW, sRX if fam == "x" else sRW))
                lastw = (fam, 0)
            if lastw[1] != j:
                pre.append("s_add_u32 s%d, s%d, 0x%x" % (sOFFW, sOFFW, (j - lastw[1]) * (0x8000 if fam == "x" else 16 * 3584)))
                lastw = (fam, j)
            m0c, vo, rs = {"q": (L_WQ + s * 4096, vDQ, SWQ), "x": (L_X + s * 16384 + j * 4096, vDX, SX),
                           "g": (L_G + s * 16384 + j * 4096, vDG, SWG), "u": (L_U + s * 16384 + j * 4096, vDG, SWU)}[kind]
            nt = " nt" if Opt.ntx & (1 if rs == SX else 2) else ""
            out.append(("s_add_u32 m0, s%d, 0x%x\n%s\nbuffer_load_dwordx4 %s, %s, s%d offen%s lds"
                        % ((sM0B + (j >> 1)) if rot else sWH, m0c, "\n".join(pre) or "s_nop 0", v(vo), srd(rs), sOFFW, nt), "c%d" % c))
        return out
    def part(c, role): return [(c, k_, j) for k_, j in ORDER if (k_ in "gu") == (role == "A")]

    def rdsetup(a):
        setup_rd(a)
        a.e("v_lshl_add_u32 %s, v3, 3, v2" % v(vWA))
        a.e("v_lshlrev_b32 %s, 8, %s" % (v(vWA), v(vWA)))
        a.e("v_lshl_add_u32 %s, v4, 3, %s" % (v(vWA), v(vWA)))
        a.e("v_and_b32 v5, 1, v3")
        a.e("v_lshl_add_u32 v2, v5, 2, v2")
        a.e("s_lshl_b32 s%d, s%d, 2" % (sA, sHI))
        a.e("s_and_b32 s%d, s%d, 1" % (sB, sLO))
        a.e("s_lshl_b32 s%d, s%d, 1" % (sB, sB))
        a.e("s_add_u32 s%d, s%d, s%d" % (sA, sA, sB))
        a.e("v_xor_b32 v2, s%d, v2" % sA)
        a.e("v_lshl_add_u32 %s, v2, 5, %s" % (v(vWA), v(vWA)))
        a.e("v_xor_b32 %s, 32, %s" % (v(vWA + 1), v(vWA)))
        a.e("v_add_u32 %s, 0x%x, %s" % (v(vWA + 2), L_U - L_G, v(vWA)))
        a.e("v_add_u32 %s, 0x%x, %s" % (v(vWA + 3), L_U - L_G, v(vWA + 1)))
        a.e("s_lshl_b32 s%d, s%d, 12" % (sA, sLO))
        a.e("s_add_u32 s%d, s%d, 0x%x" % (sA, sA, L_X))
        a.e("v_add_u32 %s, s%d, %s" % (v(vXA), sA, v(vXA)))
        a.e("v_xor_b32 %s, 0x1000, %s" % (v(vXA + 1), v(vXA)))
        a.e("v_xor_b32 %s, 64, %s" % (v(vXA + 2), v(vXA)))
        a.e("v_xor_b32 %s, 64, %s" % (v(vXA + 3), v(vXA + 1)))
        a.e("v_add_u32 %s, 0x%x, %s" % (v(vQA), L_WQ, v(vQA)))

    a.e("s_cmp_ge_u32 s%d, 4" % sW)
    a.e("s_cbranch_scc1 L_setB")
    late = collect(setup_oclr) + collect(setup_ones) + [("; later", None)] + collect(setup_attn)
    words = collect(lambda t: srd_words(t, [SWS, SKV, SDBG, SWD, SWO, SOUT]))
    late = [x for x in late if x not in words]
    oclr = [x for x in late if x[1] == "oclr"]
    if Opt.olate: late = [x for x in late if x[1] != "oclr"]
    else: oclr = []
    words += [("v_mov_b32 %s, 0" % v(r_), None) for r_ in (vGA, vWDV, vFLA, vHA, vOUTA)]
    st = collect(rdsetup) + words + late[:Opt.fillpre]
    cut = late.index(("; later", None)) if Opt.bidle else len(late)
    fills = {"A": late[Opt.fillpre:], "B": late[Opt.fillpre:max(cut, Opt.fillpre)]}
    idleB = late[max(cut, Opt.fillpre):]
    vms = {}
    wsrd(a); wvoff(a)
    a.e("s_waitcnt lgkmcnt(0)")
    a.stamp(2)
    if Opt.spos == 0: stouch(a)
    put(a, block(part(0, "A")))
    a.e("s_branch L_setA")
    vms["A"] = a.vm; a.vm = []
    a.lab("L_setB")
    srd_words(a, [SX]); xvoff(a, vTID)
    a.e("s_waitcnt lgkmcnt(0)")
    a.stamp(2)
    if Opt.spos == 0: stouch(a)
    put(a, block(part(0, "B")[1:]))
    srd_words(a, [SWQ]); qvoff(a)
    put(a, block(part(0, "B")[:1]))
    vms["B"] = a.vm
    for role in "BA":
        a.vm = vms[role]
        if role == "A": a.lab("L_setA")
        if Opt.spos == 1: stouch(a)
        table(a)
        setup_ids(a)
        if role == "A": srd_words(a, [SX, SWQ])
        else: wsrd(a)
        def touches():
            tm = sum(0xff << (8 * i) for i in range(4) if Opt.tch >> i & 1)
            setex = "s_bitcmp1_b32 s%d, 3\ns_cselect_b32 exec_lo, 0, 0x%x\ns_cselect_b32 exec_hi, 0x%x, 0" % (sG, tm, tm) if Opt.ghx \
                    else "s_mov_b32 exec_lo, 0x%x\ns_mov_b32 exec_hi, 0" % tm
            if Opt.tlb & 2 and role == "B":
                a.e("s_and_b32 s%d, s%d, 7" % (sA, sG))
                a.e("v_lshl_add_u32 v2, v0, 3, s%d" % sA)
                a.e("v_mul_u32_u24 v3, 3584, v2")
                a.e("s_and_b32 s%d, s%d, 1" % (sB, sW))
                a.e("s_lshl1_add_u32 s%d, s%d, s%d" % (sA, sM, sB))
                a.e("s_lshl_b32 s%d, s%d, 7" % (sA, sA))
                a.e(setex)
                a.e("s_cmp_ge_u32 s%d, 6" % sW)
                a.e("s_cbranch_scc1 L_tlbu")
                a.e("buffer_load_dword %s, v3, %s, s%d offen" % (v(vPOLL), srd(SWG), sA))
                a.e("s_branch L_tlbe")
                a.lab("L_tlbu")
                a.e("buffer_load_dword %s, v3, %s, s%d offen" % (v(vPOLL), srd(SWU), sA))
                a.lab("L_tlbe")
                a.e("s_mov_b64 exec, -1")
                a.vm.append("tlb")
            if Opt.tlb & 12 and role == "A":
                a.e("s_cmp_lg_u32 s%d, 0" % sW)
                a.e("s_cbranch_scc1 L_tlbx")
                a.e("s_and_b32 s%d, s%d, 7" % (sA, sG))
                a.e("v_lshl_add_u32 v2, v0, 3, s%d" % sA)
                a.e("v_lshlrev_b32 v3, 10, v2")
                a.e("s_lshl_b32 s%d, s%d, 6" % (sA, sHP))
                a.e(setex if Opt.tlb & 4 else "s_mov_b64 exec, 1")
                a.e("buffer_load_dword %s, v3, %s, s%d offen" % (v(vPOLL), srd(SWQ), sA))
                a.e("s_branch L_tlby")
                a.lab("L_tlbx")
                a.e("s_and_b32 s%d, s%d, 3" % (sA, sM))
                a.e("s_lshl2_add_u32 s%d, s%d, s%d" % (sA, sG, sA))
                a.e("s_lshl_b32 s%d, s%d, 15" % (sA, sA))
                a.e("v_lshl_add_u32 v3, v0, 10, s%d" % sA)
                a.e("s_lshr_b32 s%d, s%d, 3" % (sA, sG))
                a.e("s_lshl2_add_u32 s%d, s%d, s%d" % (sA, sA, sW) if Opt.ghx else "s_mov_b32 s%d, s%d" % (sA, sW))
                a.e("s_lshl_b32 s%d, s%d, 7" % (sA, sA))
                a.e("s_bitcmp1_b32 %d, s%d" % (Opt.tch if Opt.tlb & 8 else 0, sW))
                a.e("s_cselect_b32 exec_lo, -1, 1")
                a.e("s_mov_b32 exec_hi, 0")
                a.e("buffer_load_dword %s, v3, %s, s%d offen" % (v(vPOLL), srd(SX), sA))
                a.lab("L_tlby")
                a.e("s_mov_b64 exec, -1")
                a.vm.append("tlb")
        if Opt.tpos == 0: touches()
        if Opt.startbar: a.e("s_barrier")
        npre = min(Opt.npre, 8) if role == "A" else 5
        pn = block(part(1, role)[:npre])
        rest = st + (collect(qvoff) + collect(lambda t: xvoff(t, vTID)) if role == "A" else collect(wvoff))
        gap = len(rest) // (npre + Opt.pregap) + 1
        if Opt.tpos == 2:
            put(a, pn); touches(); npre = 0
        if Opt.tpos == 3 and role == "B":
            put(a, pn); touches(); npre = 0
        for i in range(npre):
            put(a, pn[:1]); pn = pn[1:]
            put(a, rest[:gap]); rest = rest[gap:]
        put(a, rest)
        if Opt.tpos == 1 or (Opt.tpos == 3 and role == "A"): touches()
        a.e("s_mov_b64 vcc, %d" % (-1 if role == "A" else 0))
        if role == "A":
            a.waitvm("c0", lgkm=True)
        else:
            a.e("s_setprio 1")
            a.waitvm("c0", lgkm=True)
            a.e("s_branch L_k0")
        vms[role] = a.vm
    stream = part(1, "A")[min(Opt.npre, 8):] + [(c, k_, j) for c in range(2, 8) for k_, j in ORDER]
    qa = [int(x, 16) for x in Opt.qa]; qb = [int(x, 16) for x in Opt.qb]
    def take(n, cmax):
        m = 0
        while m < n and m < len(stream) and stream[m][0] <= cmax: m += 1
        r_ = stream[:m]; del stream[:m]
        return block(r_)
    a.lab("L_k0")
    a.vm = vms["A"]
    ool = Asm()
    def dmablock(name, role, items, wait=None):
        a.e("s_cbranch_vcc%s L_%s" % ("nz" if role == "A" else "z", name))
        if wait: a.waitvm(wait, lgkm=True)
        a.lab("L_%s_r" % name)
        ool.lab("L_%s" % name)
        ool.vm = a.vm if role == "A" else vms["B"]
        for it_ in items:
            put(ool, [it_])
            fp = Opt.fillper if role == "A" or not Opt.bidle else 2
            put(ool, fills[role][:fp]); fills[role] = fills[role][fp:]
        if name in ("d7", "e7"): put(ool, fills[role]); fills[role] = []
        if wait: ool.waitvm(wait, lgkm=True)
        if role == "B": vms["B"] = ool.vm
        ool.e("s_branch L_%s_r" % name)
    a.ool = ool.l

    def fr(k):
        b = vF1 + 36 * (k % 2)
        return dict(x=b, w=b + 16, q=b + 32)
    def reads(k):
        c, s = divmod(k, 2); f = fr(k); sl = c % 3
        wo = sl * 16384 + s * 8192
        W = lambda i: [rdtr(f['w'] + 4 * i, vWA + i, wo), rdtr(f['w'] + 4 * i + 2, vWA + i, wo + 1024)]
        X = [rd128(f['x'] + 4 * b, vXA + 2 * s + (b >> 1), sl * 16384 + (b & 1) * 2048) for b in range(4)]
        return W(0) + X + W(2) + W(1) + W(3) + [rdtr(f['q'], vQA, sl * 4096 + s * 2048), rdtr(f['q'] + 2, vQA, sl * 4096 + s * 2048 + 256)]
    a.e("s_barrier")
    a.stamp(3)
    if Opt.kdiag or Opt.probe >= 18:
        kstamp(a, 2)
        a.e("s_waitcnt lgkmcnt(0)")
    for r in reads(0): a.e(r)
    if qa[0]: dmablock("d2", "A", take(qa[0], 2))
    for k in range(16):
        c, s = divmod(k, 2); f = fr(k)
        z = lambda x: None if k == 0 else x
        mf = []
        for n_, i in enumerate((0, 2, 1, 3)):
            for b in (range(4) if n_ % 2 == 0 else range(3, -1, -1)):
                d = vACC + 16 * b + 4 * i
                mf.append(mfma16(d, f['w'] + 4 * i, f['x'] + 4 * b, z(d)))
        for b in range(2): mf.append(mfma16(vAQ + 4 * b, f['q'], f['x'] + 4 * b, z(vAQ + 4 * b)))
        rds = reads(k + 1) if k < 15 else []
        if s == 0:
            a.e("s_waitcnt lgkmcnt(6)")
            for i, m in enumerate(mf):
                if i == 8: a.e("s_waitcnt lgkmcnt(8)")
                a.e(m)
                if i < len(rds): a.e(rds[i])
            continue
        a.e("s_waitcnt lgkmcnt(8)")
        for m in mf[:4]: a.e(m)
        if c <= 5:
            dmablock("e%d" % (c + 2), "B", take(qb[c], c + 2), "c%d" % (c + 1))
            assert not any(x[0] <= c + 1 for x in stream)
        if c == 7:
            a.e("s_waitcnt lgkmcnt(0)")
        elif c == 6:
            a.e("s_waitcnt lgkmcnt(0)")
            a.e("s_cbranch_vccz L_st7")
            a.e("s_setprio 1")
            a.e("s_waitcnt vmcnt(0)")
            a.e("s_barrier")
            a.lab("L_st7")
        else:
            a.e("s_barrier")
        if c < 7 and ((Opt.kdiag == 1 and Opt.diag) or Opt.probe == 21 + c):
            kstamp(a, 3 + c)
            a.e("s_waitcnt lgkmcnt(0)")
        if c + 3 < 8:
            items = take(qa[c + 1], c + 3)
            dmablock("d%d" % (c + 3), "A", items)
        for i, m in enumerate(mf[4:]):
            a.e(m)
            if i < len(rds): a.e(rds[i])
        if k == 11: assert not stream and not fills["A"] and not fills["B"]
        if k == 11:
            a.e("s_cbranch_vccnz L_st6")
            a.e("s_setprio 0")
            nm = next((i for i, x in enumerate(idleB) if "0xdddd" in x[0]), 0)
            a.e("s_cmp_lg_u32 s%d, 4" % sW)
            a.e("s_cbranch_scc1 L_nopoll")
            a.e("buffer_load_dword %s, off, %s, 0 sc1" % (v(vPOLL), srd(SDBG)))
            a.lab("L_nopoll")
            put(a, idleB[:nm]); idleB = idleB[nm:]
            a.wait0()
            spin_counter(a, "kvf", True, 4)
            a.e("s_barrier")
            put(a, kv_first_loads(a, True) + oclr + idleB)
            a.lab("L_st6")
    a.kvA = (kv_first_loads(a) + oclr)[2:]
    a.stamp(4)

def phase1_L(a):
    a.lab("L_light")
    a.vm = []
    a.e("s_waitcnt lgkmcnt(0)")
    ptr_loads(a, ((SWKV, 16), (SWV, 24), (SGATE, 72), (SWO, 32)))
    srd_words(a, [SWKV, SWV, SGATE, SX])
    xvoff(a, 0)
    a.e("v_and_b32 v2, 63, v0")
    a.e("v_lshlrev_b32 %s, 4, v2" % v(vL16))
    a.e("s_sub_u32 s%d, s%d, 14" % (sCNT, sM))
    a.e("s_lshl_b32 s%d, s%d, 16" % (sOLD, sCNT))
    a.e("s_lshl_b32 s%d, s%d, 13" % (sHST, sCNT))
    a.e("s_add_u32 s%d, s%d, s%d" % (sWH, sHST, sWK))
    a.e("s_xor_b32 s%d, s%d, 0x2000" % (sHST, sHST))
    a.e("s_add_u32 s%d, s%d, 0x2000" % (sA, sWK))
    a.e("s_waitcnt lgkmcnt(0)")
    a.stamp(2)
    def xdma(c, base, so):
        a.vmop("s_add_u32 m0, s%d, 0x%x\ns_nop 0\nbuffer_load_dwordx4 %s, %s, s%d offen offset:%d lds"
               % (base, LL_X + c * 16384 - c * 128, v(vDX), srd(SX), so, c * 128), "c%d" % c)
    def wdma(u):
        for t, rs in enumerate((SWKV, SWV)):
            a.vmop("s_add_u32 m0, s%d, 0x%x\ns_nop 0\nbuffer_load_dwordx4 %s, %s, s%d offen lds"
                   % (sWK, LL_W + t * 16384 + u * 8192, v(vL16), srd(rs), sA if u else sWK), "w")
    wdma(0)
    a.vmop("s_mov_b32 m0, s%d\ns_nop 0\nbuffer_load_dwordx4 %s, %s, 0 offen lds" % (sHST, v(vL16), srd(SGATE)), "w")
    for c in range(8):
        if c == 4: wdma(1)
        xdma(c, sWH, sOLD)
        if c in (1, 3, 5): a.e("s_barrier")
    setup_ids(a)
    srd_words(a, [SWQ])
    setup_rd(a)
    a.e("v_lshrrev_b32 v3, 5, v0")
    a.e("v_bfrev_b32 v5, v4")
    a.e("v_lshrrev_b32 v5, 30, v5")
    a.e("s_cmp_ge_u32 s%d, 2" % sLO)
    a.e("s_cselect_b64 vcc, -1, 0")
    a.e("v_cndmask_b32 v4, v5, v4, vcc")
    a.e("v_lshl_add_u32 %s, v3, 3, v2" % v(vWA))
    a.e("v_lshlrev_b32 %s, 5, %s" % (v(vWA), v(vWA)))
    a.e("v_lshl_add_u32 %s, v4, 3, %s" % (v(vWA), v(vWA)))
    a.e("s_lshr_b32 s%d, s%d, 1" % (sA, sLO))
    a.e("s_lshl_b32 s%d, s%d, 14" % (sA, sA))
    a.e("s_add_u32 s%d, s%d, 0x%x" % (sA, sA, LL_W))
    a.e("v_add_u32 %s, s%d, %s" % (v(vWA), sA, v(vWA)))
    a.e("v_lshl_add_u32 %s, v3, 4, s%d" % (v(vWA + 1), sHST))
    a.e("s_and_b32 s%d, s%d, 1" % (sA, sLO))
    a.e("s_lshl_b32 s%d, s%d, 1" % (sB, sCNT))
    a.e("s_add_u32 s%d, s%d, s%d" % (sCNT, sA, sB))
    a.e("s_lshl_b32 s%d, s%d, 12" % (sA, sCNT))
    a.e("v_and_b32 v2, 31, v0")
    a.e("v_lshrrev_b32 v4, 1, v0")
    a.e("v_lshlrev_b32 v5, 1, v0")
    a.e("v_bfi_b32 v4, 4, v4, v5")
    a.e("v_bfi_b32 v4, 12, v4, v2")
    a.e("v_cndmask_b32 v2, v2, v4, vcc")
    a.e("v_bfe_u32 v4, v2, 1, 3")
    a.e("v_xor_b32 v4, v4, v3")
    a.e("v_lshlrev_b32 v4, 4, v4")
    a.e("v_lshl_add_u32 v4, v2, 7, v4")
    a.e("v_add_u32 %s, s%d, v4" % (v(vLX), sA))
    for s in range(1, 4): a.e("v_xor_b32 %s, %d, %s" % (v(vLX + s), 32 * s, v(vLX)))
    for s in range(4): a.e("v_add_u32 %s, 0x10000, %s" % (v(vLX + 4 + s), v(vLX + s)))
    a.e("s_waitcnt lgkmcnt(0)")
    setup_oclr(a)
    vm0 = list(a.vm)
    a.e("s_cmp_lg_u32 s%d, 0" % sHI)
    a.e("s_cbranch_scc1 L_lB")
    a.e("s_not_b64 %s, %s" % (sp(sTMPP), sp(sVM)))
    a.e("s_cmp_ge_u32 s%d, 2" % sLO)
    a.e("s_cbranch_scc1 L_lV")
    def chain(kind):
        a.vm = list(vm0)
        def fr(k):
            b = vFR + 8 * (k % 4)
            return b, b + 4
        def reads(k):
            c, s = divmod(k, 4); x, w = fr(k)
            r = [rd128(x, vLX + s + 4 * (c >> 2), (c & 3) * 16384), rdtr(w, vWA, k * 512), rdtr(w + 2, vWA, k * 512 + 128)]
            if kind == "K":
                r += ["s_mov_b64 exec, %s" % sp(sTMPP), rd128(w, vWA + 1, k * 32), "s_mov_b64 exec, -1"]
            return r
        for q in range(4):
            a.waitvm("c%d" % (2 * q + 1))
            a.e("s_barrier")
            nr = 4 if kind == "K" else 3
            for k in range(8 * q, 8 * q + 2):
                for r in reads(k): a.e(r)
            for k in range(8 * q, 8 * q + 8):
                if k + 2 < 8 * q + 8:
                    for r in reads(k + 2): a.e(r)
                left = min(2, 8 * q + 7 - k)
                a.e("s_waitcnt lgkmcnt(%d)" % (left * nr))
                x, w = fr(k)
                cc = None if k == 0 else vACC
                a.e(mfma(vACC, w, x, cc) if kind == "K" else mfma(vACC, x, w, cc))
        a.e("s_lshl_b32 s%d, s%d, 2" % (sA, sG))
        a.e("s_add_u32 s%d, s%d, s%d" % (sA, sA, sCNT))
        a.e("s_nop 12")
        if kind == "K":
            a.e("s_mov_b32 s%d, 0x%x" % (sC, f2u(0.25 * math.log2(math.e))))
            for i in range(8): a.e("v_mul_f32 %s, s%d, %s" % (v(vACC + i), sC, v(vACC + i)))
            a.e("v_mul_f32 %s, 0x%x, %s" % (v(vACC + 8), f2u(-math.log2(math.e)), v(vACC + 8)))
            a.e("v_exp_f32 %s, %s" % (v(vACC + 8), v(vACC + 8)))
            for i in range(4): a.e("v_cvt_pk_bf16_f32 %s, %s, %s" % (v(vFR + i), v(vACC + 2 * i), v(vACC + 2 * i + 1)))
            a.e("v_add_f32 %s, 1.0, %s" % (v(vACC + 8), v(vACC + 8)))
            a.e("v_rcp_f32 %s, %s" % (v(vACC + 8), v(vACC + 8)))
            a.e("s_add_u32 s%d, s%d, 63" % (sB, sA))
            a.e("s_and_b32 s%d, s%d, 63" % (sB, sB))
            a.e("s_lshl_b32 s%d, s%d, 11" % (sB, sB))
            a.e("buffer_store_dwordx4 %s, %s, %s, s%d offen sc1" % (v(vFR, 4), v(vL16), srd(SKV), sB))
            a.e("s_lshl_b32 s%d, s%d, 7" % (sB, sA))
            a.e("s_add_u32 s%d, s%d, 0x%x" % (sB, sB, WS_G))
            a.e("s_mov_b32 exec_hi, 0")
            a.e("buffer_store_dword %s, %s, %s, s%d offen sc1" % (v(vACC + 8), v(vGA), srd(SWS), sB))
            a.e("s_mov_b64 exec, -1")
        else:
            for i in range(8): a.e("v_cvt_pk_bf16_f32 %s, %s, %s" % (v(vFR + i), v(vACC + 2 * i), v(vACC + 2 * i + 1)))
            a.e("v_bfe_u32 v2, v0, 4, 1")
            a.e("v_add_u32 v2, s%d, v2" % sA)
            a.e("v_and_b32 v2, 63, v2")
            a.e("v_lshl_add_u32 v2, v2, 11, %s" % v(vL16))
            for i in range(4): a.e("v_cndmask_b32 %s, %s, %s, %s" % (v(vFR + i), v(vFR + 4 + i), v(vFR + i), sp(sVM)))
            a.e("buffer_store_dwordx4 %s, v2, %s, 0 offen offset:1024 sc1" % (v(vFR, 4), srd(SKV)))
        a.e("s_branch L_lJ")
    chain("K")
    a.lab("L_lV")
    chain("V")
    a.lab("L_lB")
    a.vm = list(vm0)
    a.e("s_cmp_lg_u32 s%d, 14" % sM)
    a.e("s_cbranch_scc1 L_nozf")
    a.e("s_cmp_lg_u32 s%d, 4" % sW)
    a.e("s_cbranch_scc1 L_nozf")
    a.e("v_lshlrev_b32 v2, 7, v0")
    a.e("s_lshl_b32 s%d, s%d, 11" % (sA, sG))
    a.e("s_add_u32 s%d, s%d, 0x%x" % (sA, sA, WS_HFLAG))
    a.e("s_mov_b64 exec, 0xffff")
    a.e("buffer_store_dword %s, v2, %s, s%d offen sc1" % (v(vZERO), srd(SWS), sA))
    a.e("s_mov_b64 exec, -1")
    a.lab("L_nozf")
    for q in range(4):
        a.waitvm("c%d" % (2 * q + 1))
        a.e("s_barrier")
    a.lab("L_lJ")
    a.e("v_lshrrev_b32 v3, 2, v0")
    a.e("v_lshlrev_b32 v3, 10, v3")
    a.e("v_lshrrev_b32 v4, 5, v0")
    a.e("v_lshlrev_b32 v4, 1, v4")
    a.e("v_xor_b32 v4, v4, v0")
    a.e("v_and_b32 v4, 3, v4")
    a.e("v_lshl_add_u32 v3, v4, 4, v3")
    a.e("s_lshl_b32 s%d, s%d, 14" % (sA, sW))
    a.e("s_lshl_b32 s%d, s%d, 6" % (sB, sHP))
    a.e("s_add_u32 s%d, s%d, s%d" % (sA, sA, sB))
    a.e("v_add_u32 %s, s%d, v3" % (v(vDQ), sA))
    a.e("s_xor_b32 s%d, s%d, 0x2000" % (sWH, sWH))
    a.e("s_xor_b32 s%d, s%d, 0x10000" % (sOLD, sOLD))
    a.wait0(lgkm=True)
    a.e("s_barrier")
    a.e("s_cmp_lg_u32 s%d, 0" % sW)
    a.e("s_cbranch_scc1 L_noat")
    a.e("s_mov_b64 exec, 1")
    a.e("buffer_atomic_add %s, off, %s, 0 sc1" % (v(vONE), srd(SDBG)))
    a.e("s_mov_b64 exec, -1")
    a.lab("L_noat")
    a.stamp(3)
    for c in range(8): xdma(c, sWH, sOLD)
    for p in range(4):
        a.e("s_add_u32 m0, s%d, 0x%x" % (sWK, LL_WQ + p * 8192))
        a.e("s_mov_b32 s%d, 0x%x" % (sA, p * 128 * 1024))
        a.e("buffer_load_dwordx4 %s, %s, s%d offen lds" % (v(vDQ), srd(SWQ), sA))
    setup_ones(a)
    setup_attn(a)
    if Opt.touch & 2:
        a.e("s_lshl_b32 s%d, s%d, 1" % (sA, sG))
        a.e("s_add_u32 s%d, s%d, s%d" % (sA, sA, sM))
        a.e("s_sub_u32 s%d, s%d, 14" % (sA, sA))
        a.e("s_lshl_b32 s%d, s%d, 3" % (sA, sA))
        a.e("s_add_u32 s%d, s%d, s%d" % (sA, sA, sW))
        a.e("v_lshlrev_b32 v2, 15, v0")
        a.e("s_lshl_b32 s%d, s%d, 7" % (sA, sA))
        a.e("buffer_load_dword %s, v2, %s, s%d offen" % (v(vPOLL), srd(SWO), sA))
        a.e("buffer_load_dword %s, v2, %s, s%d offen" % (v(vPOLL), srd(SWD), sA))
    a.e("s_lshl_b32 s%d, s%d, 12" % (sA, sLO))
    a.e("v_add_u32 %s, s%d, %s" % (v(vXA), sA, v(vXA)))
    a.e("v_xor_b32 %s, 64, %s" % (v(vXA + 1), v(vXA)))
    a.e("v_add_u32 %s, 0x10000, %s" % (v(vXA + 2), v(vXA)))
    a.e("v_add_u32 %s, 0x10000, %s" % (v(vXA + 3), v(vXA + 1)))
    a.e("v_add_u32 %s, 0x%x, %s" % (v(vQA), LL_WQ, v(vQA)))
    a.e("s_waitcnt vmcnt(%d)" % (2 if Opt.touch & 2 else 0))
    a.e("s_barrier")
    def fr(k): return vFR + 12 * (k % 3)
    def reads(k):
        c, s = divmod(k, 2); f = fr(k)
        return [rd128(f + 4 * b, vXA + s + 2 * (c >> 2), (c & 3) * 16384 + b * 2048) for b in range(2)] + \
               [rdtr(f + 8, vQA, k * 2048), rdtr(f + 10, vQA, k * 2048 + 256)]
    for k in range(2):
        for r in reads(k): a.e(r)
    for k in range(16):
        a.e("s_waitcnt lgkmcnt(%d)" % (4 * min(1, 15 - k)))
        for b in range(2): a.e(mfma16(vAQ + 4 * b, fr(k) + 8, fr(k) + 4 * b, None if k == 0 else vAQ + 4 * b))
        if k + 2 < 16:
            for r in reads(k + 2): a.e(r)
    spin_counter(a, "kvl", False)
    a.e("s_barrier")
    for s, t in kv_first_loads(a): a.e(s)
    a.wait0()
    a.stamp(4)
    a.e("s_branch L_join")

def gelu_tile(a, ti, scalar=False):
    acc = vACC + 16 * ti
    t = vFR
    o = vFR + 8 + 4 * ti
    pk = lambda r: v(r, 2)
    if scalar:
        for i in range(8): a.e("v_mul_f32 %s, %s, %s" % (v(t + i), v(acc + i), v(acc + i)))
        for i in range(8): a.e("v_fma_f32 %s, %s, %s, %s" % (v(t + i), v(t + i), v(vC0 + 1), v(vC0)))
        for i in range(8): a.e("v_mul_f32 %s, %s, %s" % (v(t + i), v(t + i), v(acc + i)))
        for i in range(8): a.e("v_exp_f32 %s, %s" % (v(t + i), v(t + i)))
        for i in range(8): a.e("v_add_f32 %s, 1.0, %s" % (v(t + i), v(t + i)))
        for i in range(8): a.e("v_rcp_f32 %s, %s" % (v(t + i), v(t + i)))
        for i in range(8): a.e("v_mul_f32 %s, %s, %s" % (v(acc + i), v(acc + i), v(acc + 8 + i)))
        for i in range(8): a.e("v_mul_f32 %s, %s, %s" % (v(acc + i), v(acc + i), v(t + i)))
    R4, R8 = (range(0), range(0)) if scalar else (range(4), range(8))
    for i in R4: a.e("v_pk_mul_f32 %s, %s, %s" % (pk(t + 2 * i), pk(acc + 2 * i), pk(acc + 2 * i)))
    for i in R4: a.e("v_pk_fma_f32 %s, %s, %s, %s op_sel:[0,1,0] op_sel_hi:[1,1,0]" % (pk(t + 2 * i), pk(t + 2 * i), pk(vC0), pk(vC0)))
    for i in R4: a.e("v_pk_mul_f32 %s, %s, %s" % (pk(t + 2 * i), pk(t + 2 * i), pk(acc + 2 * i)))
    for i in R8: a.e("v_exp_f32 %s, %s" % (v(t + i), v(t + i)))
    for i in R4: a.e("v_pk_add_f32 %s, %s, 1.0 op_sel_hi:[1,0]" % (pk(t + 2 * i), pk(t + 2 * i)))
    for i in R8: a.e("v_rcp_f32 %s, %s" % (v(t + i), v(t + i)))
    for i in R4: a.e("v_pk_mul_f32 %s, %s, %s" % (pk(acc + 2 * i), pk(acc + 2 * i), pk(acc + 8 + 2 * i)))
    for i in R4: a.e("v_pk_mul_f32 %s, %s, %s" % (pk(acc + 2 * i), pk(acc + 2 * i), pk(t + 2 * i)))
    for i in range(4): a.e("v_cvt_pk_bf16_f32 %s, %s, %s" % (v(o + i), v(acc + 2 * i), v(acc + 2 * i + 1)))
    a.vmop("buffer_store_dwordx4 %s, %s, %s, s%d offen offset:%d sc1" % (v(o, 4), v(vHA), srd(SWS), sHST2 if ti >> 1 else sHST, (ti & 1) * 256), "hst")

def Yseg(hset, toggle=False):
    out = []
    for t in range(2):
        extra = False and hset < 2 and t == Opt.xtile
        pos = [int(x, 17) for x in (Opt.ypos0 if hset is None else Opt.ypos2 if extra else Opt.ypos1)]
        S, Sn = vS + 16 * t, vS + 16 * (1 - t)
        K, V0, V1 = vKF + 4 * t, vV + 8 * t, vV + 8 * t + 4
        for e in range(1, 17):
            out.append("v_exp_f32 %s, %s" % (v(S + e - 1), v(S + e - 1)))
            if e == pos[0]: out.append(smfmac(vO, V1, Sn + 8))
            if e == pos[1]: out.append(mfma(Sn, K, vQ, None))
            if e == pos[2]: out.append(smfmac(vO, V0, S))
            if hset is not None:
                if e == 13 and t == 1 and toggle:
                    out.append("v_xor_b32 %s, 0x4000, %s" % (v(vKVB), v(vKVB)))
                if e == pos[3]: out.append(mfma(vD + 16 * t, vWF + 4 * t, vH + 4 * hset, vD + 16 * t))
                if extra and e == pos[4]: out.append(mfma(vD + 16 * hset, vWX + 4 * hset, vH + 16, vD + 16 * hset))
    return out

def kv_reads(off, vKVA=vKVA):
    r = [rd128(vKF, vKVA, off), rd128(vKF + 4, vKVA, off + 2048), "s_mov_b64 exec, %s" % sp(sVM)]
    for t in range(2):
        r += [rd128(vV + 8 * t, vKVA, off + 2048 * t + 1024), rd128(vV + 8 * t + 4, vKVA, off + 2048 * t + 1280)]
    r.append("s_mov_b64 exec, -1")
    return r
def wd_reads(dst, addr, off):
    r = []
    for c in range(2):
        r += [rdtr(dst + 4 * c, addr, off + 512 * c), rdtr(dst + 4 * c + 2, addr, off + 512 * c + 1024)]
    return r

def hord(): return [0, 2, 4, 6, 1, 3, 5, 7] if Opt.hord else list(range(8))
def wdrow(sg): return (32 * (sg >> 1) + 8 * (sg & 1)) * 1024

def attention(a, role, pre0=None):
    A = role == "A"
    def kvdma(u):
        a.vmop("s_add_u32 m0, s%d, 0x%x\ns_add_u32 s%d, s%d, 0x%x\nbuffer_load_dwordx4 %s, %s, s%d offen sc1 lds"
               % (sWK, L_KV + (u % 4) * 8192, sA, sWK, u * 8192, v(vL16), srd(SKV), sA), "kv%d" % u)
    def wddma(sg):
        a.vmop("s_add_u32 m0, s%d, 0x%x\ns_add_u32 s%d, s%d, 0x%x\nbuffer_load_dwordx4 %s, %s, s%d offen lds"
               % (sWK, L_WD + (sg % 4 if sg < 23 or sg == 27 else sg - 19) * 8192, sA, sWDOFF, wdrow(sg), v(vWDV), srd(SWD), sA), "wd%d" % sg)
    def wodma(j):
        a.vmop("s_add_u32 m0, s%d, 0x%x\ns_add_u32 s%d, s%d, 0x%x\nbuffer_load_dwordx4 %s, %s, s%d offen lds"
               % (sWK, L_WO + j * 8192, sA, sB, j * 16384, v(vWDV), srd(SWO), sA), "wo")
    def hload(sg, dst):
        a.vmop("s_add_u32 s%d, s%d, 0x%x\nbuffer_load_dwordx4 %s, %s, %s, s%d offen sc1"
               % (sA, sHOFF, sg * 1024, v(dst, 4), v(vL16), srd(SWS), sA), "h%d" % sg)
    for n in range(12):
        if not A and n == 0: a.e("s_barrier")
        if n % 2 == 1: astamp(a, 2 + n // 2)
        tags = []
        if A and n % 2 == 1: tags.append("kv%d" % ((n + 1) // 2))
        if not A and n % 2 == 0: tags.append("kv%d" % ((n + 2) // 2))
        if n == (3 if A else 2): tags.append("hst")
        if n == 6: tags.append("wo")
        if n == 9: tags.append("wd27")
        if n == 11: tags.append("wd0")
        if n == 9 and A:
            a.e("s_cmp_lg_u32 s%d, 0" % sW)
            a.e("s_cbranch_scc1 L_hf_done")
            a.e("s_mov_b32 s%d, 0x4000" % sB)
            a.e("s_waitcnt vmcnt(0)")
            a.lab("L_hf_chk")
            a.e("v_cmp_ne_u32 vcc, 1, %s" % v(vPOLL))
            a.e("s_cbranch_vccz L_hf_done")
            a.e("s_sleep 2")
            a.e("buffer_load_dword %s, %s, %s, 0 offen sc1" % (v(vPOLL), v(vFLA), srd(SWS)))
            a.e("s_sub_u32 s%d, s%d, 1" % (sB, sB))
            a.e("s_cmp_lg_u32 s%d, 0" % sB)
            a.e("s_waitcnt vmcnt(0)")
            a.e("s_cbranch_scc1 L_hf_chk")
            a.lab("L_hf_done")
        a.waitvm(tags)
        if n == 5 and Opt.diag == 3 and A:
            a.e("v_mov_b32 v2, s%d" % sSTAMP)
            a.e("s_lshl_b32 s%d, s2, 3" % sA)
            a.e("s_add_u32 s%d, s%d, s%d" % (sA, sA, sW))
            a.e("s_lshl_b32 s%d, s%d, 7" % (sA, sA))
            a.e("s_add_u32 s%d, s%d, 0x%x" % (sA, sA, WS_STAMP))
            a.e("s_mov_b64 exec, 1")
            a.vmop("buffer_store_dword v2, off, %s, s%d offset:12 sc1" % (srd(SWS), sA), "st")
            a.e("s_mov_b64 exec, -1")
        if n == 3 and not A:
            a.e("s_cmp_ge_u32 s%d, 14" % sM)
            a.e("s_cbranch_scc1 L_nohf")
            a.e("s_cmp_lg_u32 s%d, 4" % sW)
            a.e("s_cbranch_scc1 L_nohf")
            a.e("s_lshl_b32 s%d, s%d, 4" % (sA, sG))
            a.e("s_add_u32 s%d, s%d, s%d" % (sA, sA, sM))
            a.e("s_lshl_b32 s%d, s%d, 7" % (sA, sA))
            a.e("s_add_u32 s%d, s%d, 0x%x" % (sA, sA, WS_HFLAG))
            a.e("s_mov_b64 exec, 1")
            a.e("buffer_store_dword %s, off, %s, s%d sc1" % (v(vONE), srd(SWS), sA))
            a.e("s_mov_b64 exec, -1")
            a.lab("L_nohf")
        for r in kv_reads((n % 8) * 4096): a.e(r)
        if n == 8 and A:
            a.e("s_cmp_lg_u32 s%d, 0" % sW)
            a.e("s_cbranch_scc1 L_hf_nol")
            a.e("buffer_load_dword %s, %s, %s, 0 offen sc1" % (v(vPOLL), v(vFLA), srd(SWS)))
            a.lab("L_hf_nol")
        if n == 0:
            kvdma(2); kvdma(3)
            a.e("s_mov_b32 s%d, s%d" % (sC, sKQ))
            a.e("s_mul_i32 s%d, s%d, %d" % (sWDOFF, sC, 448 * 1024))
            a.e("s_and_b32 s%d, s%d, 1" % (sB, sW))
            a.e("s_lshl_b32 s%d, s%d, 14" % (sA, sB))
            a.e("s_add_u32 s%d, s%d, s%d" % (sWDOFF, sWDOFF, sA))
            a.e("s_lshl_b32 s%d, s%d, 1" % (sA, sT))
            a.e("s_add_u32 s%d, s%d, s%d" % (sA, sA, sB))
            a.e("s_mul_i32 s%d, s%d, 112" % (sA, sA))
            a.e("s_mul_i32 s%d, s%d, 28" % (sB, sC))
            a.e("s_add_u32 s%d, s%d, s%d" % (sA, sA, sB))
            a.e("s_lshl_b32 s%d, s%d, 10" % (sA, sA))
            a.e("s_add_u32 s%d, s%d, 0x%x" % (sHOFF, sA, WS_HF))
        if (A and n % 2 == 1 and n >= 3): kvdma((n + 5) // 2)
        if (not A and n % 2 == 0 and n >= 2): kvdma((n + 6) // 2)
        if 1 <= n <= 4:
            a.e("s_lshl_b32 s%d, s%d, 17" % (sB, sKQ))
            a.e("s_and_b32 s%d, s%d, 1" % (sC, sW))
            a.e("s_lshl_b32 s%d, s%d, 13" % (sC, sC))
            a.e("s_add_u32 s%d, s%d, s%d" % (sB, sB, sC))
            for j in (2 * n - 2, 2 * n - 1): wodma(j)
        for sg in {5: (27, 23, 24), 6: (25, 26, 0), 7: (1, 2)}.get(n, ()): wddma(sg)
        if n == 10:
            for r in wd_reads(vWX, vWDA, 3 * 8192): a.e(r)
        for j in ({7: (0,), 8: (1, 2), 9: (3, 4)} if A else {7: (0, 1), 8: (2, 3), 9: (4,)}).get(n, ()):
            for r in wd_reads(WOF[j], vWOA, hord()[j] * 8192): a.e(r)
        hs = {10: (0, 1, 23, 24), 11: (2, 25, 26, 27)} if A else {9: (0, 1, 23), 10: (2, 24), 11: (25, 26, 27)}
        for sg in hs.get(n, ()): hload(sg, vH + 4 * sg if sg < 4 else vHX if sg == 27 else vH + 4 * (sg - 19))
        if n == 11:
            a.e("s_add_u32 s%d, s%d, 0x%x" % (sHOFF, sHOFF, 3 * 1024))
            a.e("s_add_u32 s%d, s%d, 0x%x" % (sWDOFF, sWDOFF, wdrow(3)))
            a.e("s_add_u32 s%d, s%d, 0x%x" % (sKVOFF, sWK, 9 * 8192))
            a.e("s_mov_b32 s%d, 5" % sCNT)
            a.e("s_add_u32 s%d, s%d, 0x1000" % (sOLD2, sOLD))
            a.e("s_mov_b32 s%d, 0x%x" % (sLO_, f2u(2.0 ** -16)))
            a.e("s_mov_b32 s%d, 0x%x" % (sRNG, f2u(2.0 ** 100) - f2u(2.0 ** -16)))
        if n == 0 and pre0:
            pre0()
            a.stamp(5)
        a.e("s_waitcnt lgkmcnt(0)")
        a.e("s_call_b64 %s, L_Y%s" % (sp(sRET), role))
        if n == 0:
            a.e("s_branch L_X1%s" % role)
            a.lab("L_Y%s" % role)
            if A: a.e("s_barrier")
            for x in Yseg(None): a.e(x)
            if not A: a.e("s_barrier")
            a.e("s_setpc_b64 %s" % sp(sRET))
            a.lab("L_X1%s" % role)
    vm = list(a.vm); need = [63] * 4
    for n in range(12, 32):
        p, it = n % 4, (n - 12) // 4
        tags = ["wd%d" % (n - 11), "h%d" % (n - 12)]
        if (p % 2 == 1) == A: tags.append("kv%d" % ((n + (1 if A else 2)) // 2))
        idx = [i for i, t in enumerate(vm) if t in tags]
        if idx: need[p] = min(need[p], len(vm) - 1 - max(idx))
        vm.append("wd%d" % (n - 9))
        vm.append("h%d" % (n - 9))
        if (p % 2 == 1) == A: vm.append("kv%d" % ((n + (5 if A else 6)) // 2))
    a.lab("L_loop%s" % role)
    for p in range(4):
        if p == 0 and Opt.diag and Opt.kdiag == 2:
            a.e("s_cmp_lg_u32 s%d, 4" % sCNT)
            a.e("s_cbranch_scc1 L_nst%s" % role)
            astamp(a, 8)
            a.lab("L_nst%s" % role)
        a.e("s_waitcnt vmcnt(%d)" % need[p])
        for r in kv_reads(p * 4096, vKVB): a.e(r)
        for r in wd_reads(vWF, vWDA, p * 8192): a.e(r)
        a.e("s_add_u32 m0, s%d, 0x%x" % (sWK, L_WD + ((p + 3) % 4) * 8192))
        a.e("s_and_b32 s%d, s%d, 0x7fff" % (sA, sKVOFF))
        a.e("buffer_load_dwordx4 %s, %s, s%d offen lds" % (v(vWDV), srd(SWD), sWDOFF))
        a.e("s_add_u32 s%d, s%d, 0x%x" % (sWDOFF, sWDOFF, 0x2000 if p & 1 else 0x6000))
        a.e("buffer_load_dwordx4 %s, %s, %s, s%d offen sc1" % (v(vH + 4 * ((p + 3) % 4), 4), v(vL16), srd(SWS), sHOFF))
        if (p % 2 == 1) == A:
            a.e("s_add_u32 m0, s%d, 0x%x" % (sA, L_KV))
        a.e("s_add_u32 s%d, s%d, 0x400" % (sHOFF, sHOFF))
        if (p % 2 == 1) == A:
            a.e("buffer_load_dwordx4 %s, %s, s%d offen sc1 lds" % (v(vL16), srd(SKV), sKVOFF))
            a.e("s_add_u32 s%d, s%d, 0x2000" % (sKVOFF, sKVOFF))
        if p == 3:
            a.e("s_sub_u32 s%d, s%d, 1" % (sCNT, sCNT))
            a.e("s_cmp_lg_u32 s%d, 0" % sCNT)
        a.e("s_waitcnt lgkmcnt(0)")
        if A: a.e("s_barrier")
        for x in Yseg(p, toggle=(p == 3)): a.e(x)
        if not A:
            if p == 3: a.e("s_cbranch_scc0 L_tail")
            a.e("s_barrier")
    a.e(("s_cbranch_scc1 L_loop%s" if A else "s_branch L_loop%s") % role)

def transition(a, role):
    A = role == "A"
    if A:
        a.vm = []
        a.lab("L_trA")
    else:
        a.lab("L_join")
        a.e("s_cmp_eq_u32 s%d, 0" % sHI)
        a.e("s_cbranch_scc1 L_trA")
        a.vmjoin = list(a.vm)
    def qfin():
        for i in range(4): a.e("v_cvt_pk_bf16_f32 %s, %s, %s" % (v(vQ + i), v(vAQ + 2 * i), v(vAQ + 2 * i + 1)))
        for i in range(8): a.e("v_mov_b32 %s, 0" % v(vS + 24 + i))
        a.e("v_add_u32 %s, 0x%x, %s" % (v(vWOA), L_WO, v(vWDA)))
        a.e("v_permlane16_swap_b32 %s, %s" % (v(vQ), v(vQ + 2)))
        a.e("v_permlane16_swap_b32 %s, %s" % (v(vQ + 1), v(vQ + 3)))
    pre0 = None
    if A:
        a.e("s_setprio 1")
        a.e("s_cmp_ge_u32 s%d, 14" % sM)
        a.e("s_cbranch_scc1 L_nogA0")
        put(a, a.kvA[:1] + a.kvA[-1:])
        a.l.append(".p2align 3")
        for ti in range(Opt.gsc): gelu_tile(a, ti, True)
        a.lab("L_nogA0")
        qfin()
        a.waitvm(["k0", "kv0", "kv1"])
        a.e("s_setprio 0")
        a.e("s_barrier")
        a.e(mfma(vS, vK0, vQ, None))
        put(a, a.kvA[1:-1])
        def pre0():
            a.e("s_cmp_lt_u32 s%d, 14" % sM)
            a.e("s_cbranch_scc1 L_gA1")
            a.e("s_waitcnt vmcnt(0)")
            a.e("s_branch L_nogA1")
            a.l.append(".p2align 3")
            a.lab("L_gA1")
            for ti in range(Opt.gsc, 4): gelu_tile(a, ti)
            a.lab("L_nogA1")
            a.e("s_setprio 2")
    else:
        a.waitvm(["k0", "kv0", "kv1"])
        a.e("s_setprio 1")
        a.e("s_cmp_ge_u32 s%d, 14" % sM)
        a.l.append(".p2align 3")
        a.e("s_barrier")
        a.e("s_cbranch_scc1 L_nogB")
        for ti in range(4): gelu_tile(a, ti)
        a.lab("L_nogB")
        qfin()
        a.e("s_nop 1")
        a.e(mfma(vS, vK0, vQ, None))
        a.stamp(5)
    attention(a, role, pre0)
    if A:
        a.stamp(6); astamp(a, 9); tstamp(a, 2)
        if Opt.diag and Opt.kdiag == 2: a.e("s_waitcnt lgkmcnt(0)")
        a.e(smfmac(vO, vV1L, vS + 24))
        a.e("s_setprio 0")
        a.e("s_cmp_eq_u32 s%d, 0" % sHI)
        a.e("s_nop 9")
        normalise(a, False)
        a.e("s_branch L_fbret")

def normalise(a, packed):
    t = vT0
    a.e("v_rcp_f32 %s, %s" % (v(t + 2), v(vO + 8)))
    a.e("s_nop 0")
    a.e("v_mul_f32_e64 %s, %s, %s" % (v(t + 2), v(t + 2), v(vGP)))
    if packed:
        for i in range(4): a.e("v_pk_mul_f32 %s, %s, %s op_sel_hi:[1,0]" % (v(vO + 2 * i, 2), v(vO + 2 * i, 2), v(t + 2, 2)))
        for i in range(4):
            a.e("v_pk_fma_f32 %s, %s, 0, %s op_sel_hi:[1,0,%d]" % (v(t, 2), v(vO + 2 * i, 2), v(t, 2) if i else v(vO + 8, 2), 1 if i else 0))
            a.e("v_cvt_pk_bf16_f32 %s, %s, %s" % (v(vPK + i), v(vO + 2 * i), v(vO + 2 * i + 1)))
        a.e("v_fmac_f32 %s, 0, %s" % (v(t), v(t + 1)))
    else:
        t = vO + 8
        for i in range(8): a.e("v_mul_f32 %s, %s, %s" % (v(vO + i), v(vT0 + 2), v(vO + i)))
        for i in range(4):
            a.e("v_fmac_f32 %s, 0, %s" % (v(t), v(vO + 2 * i)))
            a.e("v_cvt_pk_bf16_f32 %s, %s, %s" % (v(vPK + i), v(vO + 2 * i), v(vO + 2 * i + 1)))
            a.e("v_fmac_f32 %s, 0, %s" % (v(t), v(vO + 2 * i + 1)))
    a.e("v_subrev_u32 %s, s%d, %s" % (v(t), sLO_, v(t)))
    a.e("v_cmp_lt_u32 vcc, s%d, %s" % (sRNG, v(t)))
    a.e("s_branch L_fb" if Opt.force_fb else "s_cbranch_vccnz L_fb")

def tail(a):
    a.l.append(".p2align 3")
    a.lab("L_tail")
    a.stamp(6)
    astamp(a, 9)
    if Opt.diag and Opt.kdiag == 2: a.e("s_waitcnt lgkmcnt(0)")
    tstamp(a, 2)
    a.e(smfmac(vO, vV1L, vS + 24))
    wf = [vFR, vFR + 8, vFR + 16]
    HORD = hord()
    def oload(j):
        return "buffer_load_dwordx4 %s, %s, %s, s%d offen offset:%d %s" % (
            v(vS + 4 * j, 4), v(vL16), srd(SWS), sOLD if HORD[j] < 4 else sOLD2, (HORD[j] % 4) * 1024, Opt.old_pol)
    a.oload = oload
    a.e("s_cmp_eq_u32 s%d, 0" % sHI)
    a.e("s_nop 10")
    normalise(a, True)
    a.lab("L_fbret")
    a.e("buffer_store_dwordx4 %s, %s, %s, s%d offen sc1" % (v(vPK, 4), v(vL16), srd(SWS), sOST))
    tstamp(a, 3)
    aw = [vAW0, vWOA + 1, vWOA + 2, vWOA + 3]
    ar = [vAR0, vFLA]
    wo = WOF
    def fetch(o, scale):
        for j in range(8):
            o.e(oload(j))
            if j >= 5:
                for r in wd_reads(wo[j], vWOA, HORD[j] * 8192): o.e(r)
            if scale and j >= 4:
                for i in range(4 * j - 16, 4 * j - 12): o.e("v_mul_f32 %s, %s, %s" % (v(vD + i), v(vGC), v(vD + i)))
    def addrs(a):
        a.e("v_sub_f32 %s, 1.0, %s" % (v(vGC), v(vGC)))
        for j in range(1, 4): a.e("v_xor_b32 %s, %d, %s" % (v(aw[j]), 32 * j, v(aw[0])))
        a.e("v_xor_b32 %s, 16, %s" % (v(ar[1]), v(ar[0])))
        a.e("s_mov_b32 s%d, 0x2000" % sB)
    ol = Asm(); a.ool2 = ol.l
    a.e("s_waitcnt vmcnt(1)")
    tstamp(a, 4)
    a.e("s_barrier")
    a.e("s_cbranch_scc1 L_tl6")
    a.lab("L_tl2")
    tstamp(a, 5)
    ol.lab("L_tl6")
    fetch(ol, False)
    ol.e("s_branch L_tl2")
    fl = collect(addrs)
    slot = [4, 5, 6, 7, 0, 1, 2]
    rds = sum((wd_reads(wf[i % 3], vWDA, slot[i] * 8192) for i in range(7)), [])
    for r in rds[:4]: a.e(r)
    done = 4
    for i in range(-1, 7):
        for c in range(2):
            if i >= 0: a.e("s_waitcnt lgkmcnt(%d)" % (done - (4 * i + 2 * c + 2)))
            a.e(mfma(vD + 16 * c, vWX + 4 * c, vHX, vD + 16 * c) if i < 0 else
                mfma(vD + 16 * c, wf[i % 3] + 4 * c, vH + 4 * slot[i], vD + 16 * c))
            if done < len(rds):
                for r in rds[done:done + 2]: a.e(r)
                done += 2
            else:
                put(a, fl[:2]); fl = fl[2:]
    assert not fl
    tstamp(a, 6)
    a.e("s_cbranch_scc0 L_tl3")
    a.l.append(".p2align 3")
    a.e("s_nop 7")
    a.e("s_nop 0")
    for i in range(16): a.e("v_pk_mul_f32 %s, %s, %s op_sel:[0,1] op_sel_hi:[1,1]" % (v(vD + 2 * i, 2), v(vD + 2 * i, 2), v(vGP, 2)))
    tstamp(a, 7)
    a.e("s_barrier")
    a.lab("L_tl4")
    tstamp(a, 8)
    ol.lab("L_tl3")
    ol.e("s_setprio 0")
    fetch(ol, False)
    tstamp(ol, 7)
    ol.e("s_barrier")
    for i in range(32): ol.e("v_mul_f32 %s, %s, %s" % (v(vD + i), v(vGC), v(vD + i)))
    ol.e("s_waitcnt lgkmcnt(0)")
    ol.e("s_branch L_tl4")
    a.stamp(7)
    def check(j):
        o = vS + 4 * j
        return ["s_waitcnt vmcnt(%d)" % (7 - j), "v_max3_u32 v2, %s, %s, %s" % (v(o), v(o + 1), v(o + 2)),
                "v_max_u32 v2, v2, %s" % v(o + 3), "v_cmp_eq_u32 vcc, -1, v2"]
    a.check = check
    for x in check(0): a.e(x)
    for j in range(10):
        if j < 8:
            a.e("s_cbranch_vccnz L_ore%d" % j)
            a.lab("L_ook%d" % j)
            a.e(mfma(vD, wo[j], vS + 4 * j, vD))
        if j >= 2 and Opt.cfirst: a.e(mfma(vD + 16, wo[j - 2] + 4, vS + 4 * (j - 2), vD + 16))
        if j < 7:
            for x in check(j + 1): a.e(x)
        if j >= 2 and not Opt.cfirst: a.e(mfma(vD + 16, wo[j - 2] + 4, vS + 4 * (j - 2), vD + 16))
        if j in (7, 8): a.e("s_nop 4")
    wr = lambda c, j: "ds_write_b128 %s, %s offset:%d" % (v(aw[j]), v(vD + 16 * c + 4 * j, 4), 128 * c)
    a.stamp(8)
    tstamp(a, 9)
    for j in range(4): a.e(wr(0, j))
    a.e("s_nop 7")
    for j in range(4): a.e(wr(1, j))
    a.e("s_waitcnt lgkmcnt(0)")
    a.e("s_barrier")
    for p in range(4):
        for h in range(2): a.e(rd128(vS + 8 * p + 4 * h, ar[h], p * 8192))
    for p in range(1, 4):
        a.e("s_waitcnt lgkmcnt(%d)" % (6 - 2 * p))
        for i in range(4): a.e("v_pk_add_f32 %s, %s, %s" % (v(vS + 2 * i, 2), v(vS + 2 * i, 2), v(vS + 8 * p + 2 * i, 2)))
    for i in range(4): a.e("v_cvt_pk_bf16_f32 %s, %s, %s" % (v(vP + i), v(vS + 2 * i), v(vS + 2 * i + 1)))
    a.e("buffer_store_dwordx4 %s, %s, %s, s%d offen %s" % (v(vP, 4), v(vOUTA), srd(SOUT), sOUTO, Opt.out_pol))
    if Opt.probe >= 0:
        a.e("s_waitcnt vmcnt(0)")
        a.stamp(9)
        if Opt.probe != 9:
            a.e("s_cmp_ge_u32 s%d, 14" % sM)
            a.e("s_cbranch_scc%d L_end" % (0 if Opt.probe_l else 1))
        a.e("s_sub_u32 s%d, s%d, s%d" % (sA, sSTAMP + 4, sSTAMP))
        a.e("s_mul_i32 s%d, s%d, %d" % (sA, sA, Opt.probe_mul - 1))
        a.e("s_min_u32 s%d, s%d, 100000" % (sA, sA))
        a.e("s_add_u32 s%d, s%d, 3800" % (sA, sA))
        if Opt.probe_r >= 0:
            a.e("s_cmp_eq_u32 s%d, 0x2000" % sB)
            a.e("s_cbranch_scc%d L_end" % Opt.probe_r)
        if Opt.probe_w >= 0:
            a.e("s_cmp_lg_u32 s%d, %d" % (sHI, Opt.probe_w))
            a.e("s_cbranch_scc1 L_end")
        if Opt.probe_x >= 0:
            a.e("s_and_b32 s0, s2, 7")
            a.e("s_cmp_lg_u32 s0, %d" % Opt.probe_x)
            a.e("s_cbranch_scc1 L_end")
        a.lab("L_probe")
        a.e("s_memrealtime s[0:1]")
        a.e("s_waitcnt lgkmcnt(0)")
        a.e("s_sub_u32 s0, s0, s%d" % (sSTAMP + 4))
        a.e("s_cmp_lt_u32 s0, s%d" % sA)
        a.e("s_cbranch_scc1 L_probe")
    if Opt.pin == 9:
        a.e("s_waitcnt vmcnt(0)")
        a.stamp(9)
    if Opt.diag in (1, 2):
        a.e("s_waitcnt vmcnt(0)")
        a.stamp(9)
        a.e("s_mov_b32 s%d, s%d" % (sSTAMP + 3, sSTAMP))
        a.e("s_mov_b32 s%d, s%d" % (sSTAMP, sB))
        a.e("s_getreg_b32 s%d, hwreg(HW_REG_XCC_ID)" % (sSTAMP + 1))
        for i in range(20): a.e("v_mov_b32 %s, s%d" % (v(vS + i), sSTAMP + i))
        a.e("s_lshl_b32 s%d, s2, 3" % sA)
        a.e("s_add_u32 s%d, s%d, s%d" % (sA, sA, sW))
        a.e("s_lshl_b32 s%d, s%d, 7" % (sA, sA))
        a.e("s_add_u32 s%d, s%d, 0x%x" % (sA, sA, WS_STAMP))
        a.e("s_mov_b64 exec, 1")
        for i in range(5): a.e("buffer_store_dwordx4 %s, off, %s, s%d offset:%d" % (v(vS + 4 * i, 4), srd(SWS), sA, 16 * i))
    a.lab("L_end")
    a.e("s_endpgm")
    a.l += a.ool2
    for j in range(8):
        a.lab("L_ore%d" % j)
        a.e("s_sub_u32 s%d, s%d, 1" % (sB, sB))
        a.e("s_cbranch_scc1 L_ogive%d" % j)
        a.e("s_waitcnt vmcnt(0)")
        for i in range(j, 8): a.e(a.oload(i))
        for x in a.check(j): a.e(x)
        a.e("s_cbranch_vccnz L_ore%d" % j)
        a.e("s_branch L_ook%d" % j)
        a.lab("L_ogive%d" % j)
        a.e("s_mov_b32 s%d, 0" % sB)
        a.e("s_branch L_ook%d" % j)

def fallback(a):
    a.lab("L_fb")
    m = vT0
    a.e("v_mov_b32 %s, 0xff800000" % v(m))
    a.e("s_mov_b32 s%d, 0" % sA)
    a.lab("L_fb1")
    a.e("buffer_load_dwordx4 %s, %s, %s, s%d offen sc1" % (v(vKF, 4), v(vL16), srd(SKV), sA))
    a.e("s_waitcnt vmcnt(0)")
    a.e(mfma(vS, vKF, vQ, None))
    a.e("s_add_u32 s%d, s%d, 2048" % (sA, sA))
    a.e("s_nop 11")
    for i in range(8): a.e("v_max3_f32 %s, %s, %s, %s" % (v(m), v(m), v(vS + 2 * i), v(vS + 2 * i + 1)))
    a.e("s_cmp_lt_u32 s%d, 0x20000" % sA)
    a.e("s_cbranch_scc1 L_fb1")
    a.e("v_mov_b32 %s, %s" % (v(m + 1), v(m)))
    a.e("s_nop 1")
    a.e("v_permlane32_swap_b32 %s, %s" % (v(m), v(m + 1)))
    a.e("s_nop 1")
    a.e("v_max_f32 %s, %s, %s" % (v(m), v(m), v(m + 1)))
    for i in range(16): a.e("v_sub_f32 %s, 0, %s" % (v(vS + 16 + i), v(m)))
    for i in range(16): a.e("v_mov_b32 %s, 0" % v(vO + i))
    a.e("s_mov_b32 s%d, 0" % sA)
    a.lab("L_fb2")
    a.e("s_add_u32 s%d, s%d, 0x%x" % (sB, sA, 63 * 2048))
    a.e("s_and_b32 s%d, s%d, 0x1ffff" % (sB, sB))
    a.e("buffer_load_dwordx4 %s, %s, %s, s%d offen sc1" % (v(vKF, 4), v(vL16), srd(SKV), sB))
    a.e("s_add_u32 s%d, s%d, 2048" % (sB, sA))
    a.e("s_and_b32 s%d, s%d, 0x1ffff" % (sB, sB))
    a.e("s_mov_b64 exec, %s" % sp(sVM))
    a.e("buffer_load_dwordx4 %s, %s, %s, s%d offen offset:1024 sc1" % (v(vV, 4), v(vL16), srd(SKV), sA))
    a.e("buffer_load_dwordx4 %s, %s, %s, s%d offen offset:1280 sc1" % (v(vV + 4, 4), v(vL16), srd(SKV), sB))
    a.e("s_mov_b64 exec, -1")
    a.e("s_waitcnt vmcnt(0)")
    a.e(mfma(vS, vKF, vQ, vS + 16))
    a.e("s_add_u32 s%d, s%d, 2048" % (sA, sA))
    a.e("s_nop 11")
    for i in range(16): a.e("v_exp_f32 %s, %s" % (v(vS + i), v(vS + i)))
    a.e("s_nop 2")
    a.e(smfmac(vO, vV, vS))
    a.e(smfmac(vO, vV + 4, vS + 8))
    a.e("s_cmp_lt_u32 s%d, 0x20000" % sA)
    a.e("s_cbranch_scc1 L_fb2")
    a.e("s_nop 11")
    a.e("v_rcp_f32 %s, %s" % (v(vT0 + 2), v(vO + 8)))
    a.e("s_cmp_eq_u32 s%d, 0" % sHI)
    a.e("v_mul_f32 %s, %s, %s" % (v(vT0 + 2), v(vT0 + 2), v(vGP)))
    for i in range(8): a.e("v_mul_f32 %s, %s, %s" % (v(vO + i), v(vT0 + 2), v(vO + i)))
    for i in range(4): a.e("v_cvt_pk_bf16_f32 %s, %s, %s" % (v(vPK + i), v(vO + 2 * i), v(vO + 2 * i + 1)))
    for i in range(4): a.e("v_min_u32 %s, -2, %s" % (v(vPK + i), v(vPK + i)))
    a.e("s_branch L_fbret")

def build():
    a = Asm()
    prologue(a)
    phase1_F(a)
    transition(a, "B")
    tail(a)
    a.l += a.ool
    transition(a, "A")
    phase1_L(a)
    fallback(a)
    a.lab("L_codeend")
    for i, x in enumerate(a.l):
        if " sc1" in x and "sc0" not in x and ((Opt.allsc & 1 and "buffer_store" in x) or (Opt.allsc & 2 and "buffer_load" in x)):
            a.l[i] = x.replace(" sc1", " sc0 sc1")
    il = a.l.index("L_light:")
    for i, x in enumerate(a.l):
        if x.endswith(" lds") and "sc1" not in x and " nt" not in x:
            if (Opt.ntx & 4 and (srd(SWD) in x or srd(SWO) in x)) or (Opt.ntx & 8 and i > il):
                a.l[i] = x[:-4] + " nt lds"
    head = open("cdna_kernels/%s.s.ref" % NAME).read().split("\n")
    hdr = [l for l in head if l.startswith(";") and "@launch" not in l and "Override" not in l and "grid=" not in l]
    out = hdr + ["; @launch grid=(256,1,1) block=(512,1,1) lds=%d" % LDS_BYTES,
                 '.amdgcn_target "amdgcn-amd-amdhsa--gfx950"', ".text", ".globl %s_kernel" % NAME, ".p2align 8",
                 ".type %s_kernel,@function" % NAME,
                 ".set CODE_PF_MAX, L_codeend - L_nopf - 4" if Opt.code_pf else "",
                 "%s_kernel:" % NAME]
    out += ["; mapmode %d" % Opt.mapmode, "; xrot %d" % Opt.xrot]
    out += a.l
    out += ['.section .rodata,"a"', ".p2align 6", ".amdhsa_kernel %s_kernel" % NAME,
            "  .amdhsa_next_free_vgpr %d" % NV, "  .amdhsa_next_free_sgpr 102", "  .amdhsa_accum_offset 256",
            "  .amdhsa_group_segment_fixed_size 0", "  .amdhsa_kernarg_size 104", "  .amdhsa_user_sgpr_count 2",
            "  .amdhsa_user_sgpr_kernarg_segment_ptr 1", "  .amdhsa_system_sgpr_workgroup_id_x 1", ".end_amdhsa_kernel", ""]
    return "\n".join(out)

if __name__ == "__main__":
    path = sys.argv[1]
    for kv in sys.argv[2:]:
        k, val = kv.split("=")
        cur = getattr(Opt, k)
        setattr(Opt, k, val if isinstance(cur, str) else type(cur)(int(val)))
    open(path, "w").write(build())
```

```python
import sys, struct, math

NAME = "gated_mix__grouped_kv_mqa__geglu_ffn__prompt"

class Opt:
    diag = 0
    mapmode = 1
    force_fb = False
    allsc = 0
    out_pol = "sc0 sc1"
    code_pf = True
    xrot = 0
    pregap = 0
    aearly = 0
    bidle = 1
    old_pol = "sc1"
    ypos0 = "36g"
    ypos1 = "36bg"
    ypos2 = "36cg9"
    xtile = 0
    tpos = 1
    cfirst = 0
    tch = 12
    stch = 0
    spos = 1
    tlb = 14
    olate = 1
    hrot = 0
    tbar = 0
    hord = 1
    cmap = 1
    kqx = 0
    oearly = 8
    conc = 1
    ghx = 1
    qa = "077777"
    qb = "588888"
    npre = 8
    stagger = 1
    rper = 2
    dma1 = 17
    kprio = 0
    dma0 = 8
    npd = 4
    kdiag = 0
    fillpre = 0
    fillper = 5
    gsc = 2
    sched = 0
    xmask = 1
    ntx = 0
    touch = 2
    rotg = 0
    rotm = 0
    startbar = 1
    pvz = 1
    pin = -1
    pin_ns = 60000
    probe = -1
    probe_x = -1
    probe_mul = 10
    probe_w = -1
    probe_r = -1
    probe_l = 0

def f2u(x): return struct.unpack("<I", struct.pack("<f", x))[0]

WS_KV = 0
WS_G = 128 * 1024
WS_HFLAG = 192 * 1024
WS_OF = 1 << 20
WS_HF = 4 << 20
WS_STAMP = 12 << 20
WS_SIZE = 16 << 20
K1 = 1024
L_G, L_U, L_X, L_WQ = 0, 48 * K1, 96 * K1, 144 * K1
L_QX = 32 * K1
L_WD, L_WO, L_KV = 0, 64 * K1, 128 * K1
LL_X, LL_W, LL_GATE, LL_WQ = 0, 128 * K1, 144 * K1, 128 * K1
LDS_BYTES = 160 * K1

SX, SWG, SWU, SWQ, SWS, SWD, SWO, SOUT, SDBG, SWKV, SGATE, SKV = 4, 8, 12, 16, 20, 24, 28, 32, 36, 40, 44, 64
SWV = 72
sTMPP = 48
sW, sHI, sLO, sG, sM, sT, sCB = 50, 51, 52, 53, 54, 55, 56
sWK = 57
sWH = 58
sVM = 60
sRET = 62
sA, sB, sC, sD = 68, 69, 70, 71
sOFFW, sOFFQ, sCH, sXP = 72, 73, 74, 75
sHOFF, sWDOFF, sKVOFF, sHXO, sCNT = 72, 73, 74, 75, 77
sOUTO, sLO_, sRNG = 59, 81, 75
sOLD2 = 58
sOST, sOLD, sHST = 78, 79, 80
sHST2 = 3
sRX, sRW, sM0B = 40, 41, 42
sKQ = 76
sHP = sM
sSTAMP = 82

def srd(b): return "s[%d:%d]" % (b, b + 3)
def sp(b): return "s[%d:%d]" % (b, b + 1)
def v(b, n=1): return "v%d" % b if n == 1 else "v[%d:%d]" % (b, b + n - 1)

vL16 = 1
vT0, vT1, vT2, vT3 = 2, 3, 4, 5
vGP, vGC = 6, 7
vKVA = 8
vWDA = 9
vWDV = 10
vONE = 11
vZERO = 12
vFLA = 13
vPOLL = 14
vGA = 15
vQ = 16
vK0 = 20
vV1L = 24
vIDX = 28
vAW0, vAR0, vOUTA = 30, 31, 12
vKVB = 29
vP = 32
vV = 40
vO = 56
vD = 72
vACC = 104
vS = 104
vH = 136
vAQ = vP
vF1 = 168
vKF = 168
vWF = 176
vWX = 224
vHX = 232
vPK = 20
WOF = [32, 208, 216, 240, 248, 40, 48, 56]
vWOA = 236
vFR = 184
vLX = 224
vXA = 240
vWA = 244
vQA = 248
vDX, vDG, vDQ = 249, 250, 251
vC0 = 252
vTID = 255
vHA = 254
NV = 256

class Asm:
    def __init__(self):
        self.l = []
        self.vm = []
        self.nstamp = 0
    def e(self, s):
        for x in s.split("\n"):
            x = x.strip()
            if x: self.l.append("    " + x)
    def lab(self, s): self.l.append(s + ":")
    def vmop(self, s, tag):
        self.e(s); self.vm.append(tag)
    def vmn(self, tags):
        if isinstance(tags, str): tags = [tags]
        last = -1
        for i, t in enumerate(self.vm):
            if t in tags: last = i
        return None if last < 0 else len(self.vm) - 1 - last
    def waitvm(self, tags, lgkm=False):
        n = self.vmn(tags)
        if n is None:
            if lgkm: self.e("s_waitcnt lgkmcnt(0)")
            return
        assert n < 64
        self.e("s_waitcnt vmcnt(%d)%s" % (n, " lgkmcnt(0)" if lgkm else ""))
        self.vm = self.vm[len(self.vm) - n:] if n else []
    def wait0(self, lgkm=False):
        self.e("s_waitcnt vmcnt(0)%s" % (" lgkmcnt(0)" if lgkm else "")); self.vm = []
    def stamp(self, i, real=False):
        if Opt.probe == i:
            self.e("s_waitcnt lgkmcnt(0)")
            self.e("s_memrealtime %s" % sp(sSTAMP + 4))
            self.e("s_waitcnt lgkmcnt(0)")
        if Opt.pin == i:
            self.nstamp += 1
            self.e("s_waitcnt lgkmcnt(0)")
            self.e("s_cselect_b32 s%d, 1, 0" % (sSTAMP + 5))
            self.lab("L_pin%d" % self.nstamp)
            self.e("s_memrealtime s[0:1]")
            self.e("s_waitcnt lgkmcnt(0)")
            self.e("s_sub_u32 s0, s0, s%d" % sSTAMP)
            self.e("s_cmp_lt_u32 s0, %d" % (Opt.pin_ns // 10))
            self.e("s_cbranch_scc1 L_pin%d" % self.nstamp)
            self.e("s_cmp_lg_u32 s%d, 0" % (sSTAMP + 5))
        if Opt.diag and not Opt.kdiag and (Opt.diag == 1 or i == 9):
            self.e("s_waitcnt lgkmcnt(0)")
            self.e("s_memtime %s" % sp(sSTAMP + 2 * i))
            self.e("s_memrealtime %s" % sp(sRET))
            self.e("s_waitcnt lgkmcnt(0)")
            self.e("s_mov_b32 s%d, s%d" % (sSTAMP + 2 * i + 1, sRET))

def astamp(a, i):
    if Opt.diag and Opt.kdiag == 2: a.e("s_memtime %s" % sp(sSTAMP + 2 * i))

def tstamp(a, i):
    if Opt.diag and Opt.kdiag == 3: a.e("s_memtime %s" % sp(sSTAMP + 2 * i))

def kstamp(a, i):
    if Opt.probe == 18 + i: a.e("s_memrealtime %s" % sp(sSTAMP + 4))
    if Opt.diag and Opt.kdiag == 1: a.e("s_memtime %s" % sp(sSTAMP + 2 * i))

def mfma(d, a, b, c):
    return "v_mfma_f32_32x32x16_bf16 %s, %s, %s, %s" % (v(d, 16), v(a, 4), v(b, 4), "0" if c is None else v(c, 16))
def smfmac(d, a, b):
    return "v_smfmac_f32_32x32x32_bf16 %s, %s, %s, %s" % (v(d, 16), v(a, 4), v(b, 8), v(vIDX))
def mfma16(d, a, b, c):
    return "v_mfma_f32_16x16x32_bf16 %s, %s, %s, %s" % (v(d, 4), v(a, 4), v(b, 4), "0" if c is None else v(c, 4))
def rd128(d, a, off):
    assert 0 <= off < 65536
    return "ds_read_b128 %s, %s offset:%d" % (v(d, 4), v(a), off)
def rdtr(d, a, off):
    assert 0 <= off < 65536
    return "ds_read_b64_tr_b16 %s, %s offset:%d" % (v(d, 2), v(a), off)

def interleave(mf, fill, per=2):
    out = []
    fill = list(fill)
    for i, m in enumerate(mf):
        out.append(m)
        if i < len(mf) - 1:
            out += fill[:per]; fill = fill[per:]
    return out + fill

def srd_words(a, regs):
    sizes = {SX: 2048 * 1024, SWG: 512 * 3584, SWU: 512 * 3584, SWQ: 512 * 1024, SWS: WS_SIZE, SWKV: 16384, SWV: 16384,
             SGATE: 1024, SWD: 1792 * 1024, SWO: 512 * 1024, SOUT: 2048 * 1024, SDBG: 256, SKV: 128 * 1024}
    for reg in regs:
        a.e("s_mov_b32 s%d, 0x%x" % (reg + 2, sizes[reg]))
        a.e("s_mov_b32 s%d, 0x20000" % (reg + 3))

def ptr_loads(a, lst):
    for reg, off in lst: a.e("s_load_dwordx2 %s, s[0:1], %d" % (sp(reg), off))

def prologue(a):
    if Opt.diag or Opt.pin >= 0 or Opt.probe >= 0:
        a.e("s_memrealtime %s" % sp(sSTAMP))
        if Opt.diag in (1, 2): a.e("s_memtime %s" % sp(sSTAMP + 2))
    ptr_loads(a, ((SX, 0), (SWG, 48), (SWU, 56), (SWQ, 8)))
    a.e("s_load_dwordx8 s[%d:%d], s[0:1], 64" % (SOUT, SOUT + 7))
    if not (Opt.diag or Opt.probe >= 0): ptr_loads(a, ((SWS, 96), (SWO, 32)))
    if Opt.probe == 1: a.stamp(1)
    a.e("v_lshrrev_b32 v2, 6, v0")
    if Opt.code_pf:
        a.e("s_getpc_b64 %s" % sp(sRET))
        a.lab("L_nopf")
        a.e("s_and_b32 s%d, s2, -8" % sA)
        a.e("v_add_lshl_u32 v3, v2, s%d, 7" % sA)
        a.e("v_readfirstlane_b32 s%d, v2" % sW)
        a.e("v_min_u32 v3, CODE_PF_MAX, v3")
        a.e("global_load_dword %s, v3, %s" % (v(vPOLL), sp(sRET)))
    else:
        a.e("s_nop 0")
        a.e("v_readfirstlane_b32 s%d, v2" % sW)
    if Opt.diag or Opt.probe >= 0:
        a.e("s_load_dwordx2 %s, s[0:1], 96" % sp(SWS))
    a.e("s_cmpk_ge_u32 s2, 256")
    a.e("s_cbranch_scc1 L_end")
    a.e("s_and_b32 s%d, s2, 1" % sD)
    a.e("s_bfe_u32 s%d, s2, 0x30003" % sA)
    a.e("s_lshl3_add_u32 s%d, s%d, s%d" % (sG, sD, sA))
    a.e("s_bfe_u32 s%d, s2, 0x20001" % sA)
    a.e("s_lshr_b32 s%d, s2, 6" % sB)
    a.e("s_lshl2_add_u32 s%d, s%d, s%d" % (sM, sA, sB))
    a.e("s_lshl_b32 s%d, s%d, 10" % (sWK, sW))
    a.e("s_cmp_ge_u32 s%d, 14" % sM)
    a.e("s_cbranch_scc1 L_light")

def xvoff(a, t):
    a.e("v_lshrrev_b32 v2, 4, %s" % v(t))
    a.e("v_xor_b32 v2, v2, %s" % v(t))
    a.e("v_and_b32 v2, 7, v2")
    a.e("s_lshl_b32 s%d, s%d, 17" % (sA, sG))
    a.e("v_lshl_add_u32 v2, v2, 4, s%d" % sA)
    a.e("v_lshrrev_b32 v3, 3, %s" % v(t))
    a.e("v_lshl_add_u32 %s, v3, 10, v2" % v(vDX))

def setup_ids(a):
    a.e("s_mov_b64 %s, %s" % (sp(SKV), sp(SWS)))
    a.e("s_mov_b64 %s, %s" % (sp(SWD), sp(SOUT)))
    a.e("s_mov_b64 %s, %s" % (sp(SOUT), sp(SOUT + 4)))
    a.e("s_mov_b64 %s, %s" % (sp(SDBG), sp(SOUT + 6)))
    a.e("v_and_b32 v0, 63, v0")
    a.e("v_lshlrev_b32 %s, 4, v0" % v(vL16))
    a.e("s_andn2_b32 s%d, 1, s2" % sA)
    a.e("s_bfe_u32 s%d, s2, 0x20001" % sB)
    a.e("s_lshl2_add_u32 s%d, s%d, s%d" % (sA, sA, sB))
    a.e("s_bfe_u32 s%d, s2, 0x20003" % sB)
    a.e("s_lshl2_add_u32 s%d, s%d, s%d" % (sT, sA, sB))
    a.e("s_lshr_b32 s%d, s2, 5" % sCB)

def setup_rd(a):
    a.e("s_lshr_b32 s%d, s%d, 2" % (sHI, sW))
    a.e("s_and_b32 s%d, s%d, 3" % (sLO, sW))
    a.e("v_and_b32 v2, 15, v0")
    a.e("v_lshrrev_b32 v3, 4, v0")
    a.e("v_bfe_u32 v4, v0, 1, 3")
    a.e("v_xor_b32 v4, v4, v3")
    a.e("v_lshlrev_b32 v4, 4, v4")
    a.e("v_lshl_add_u32 %s, v2, 7, v4" % v(vXA))
    a.e("v_bfe_u32 v2, v0, 2, 2")
    a.e("v_and_b32 v4, 3, v0")
    a.e("v_lshl_add_u32 %s, v3, 3, v2" % v(vQA))
    a.e("v_lshlrev_b32 %s, 6, %s" % (v(vQA), v(vQA)))
    a.e("v_xor_b32 v5, s%d, v3" % sHI)
    a.e("v_and_b32 v5, 1, v5")
    a.e("v_lshl_add_u32 %s, v5, 5, %s" % (v(vQA), v(vQA)))
    a.e("v_lshl_add_u32 %s, v4, 3, %s" % (v(vQA), v(vQA)))

def setup_oclr(a):
    srd_words(a, [SWS, SKV, SDBG])
    a.e("s_mov_b32 s%d, 0xffff" % sVM)
    a.e("s_mov_b32 s%d, 0xffff" % (sVM + 1))
    a.e("s_lshl_b32 s%d, s%d, 2" % (sA, sG))
    a.e("s_add_u32 s%d, s%d, s%d" % (sA, sA, sLO))
    a.e("s_lshl_b32 s%d, s%d, 5" % (sB, sA))
    a.e("s_lshl_b32 s%d, s%d, 1" % (sC, sHP))
    a.e("s_add_u32 s%d, s%d, s%d" % (sB, sB, sC))
    a.e("s_add_u32 s%d, s%d, s%d" % (sB, sB, sHI))
    a.e("s_lshl_b32 s%d, s%d, 10" % (sB, sB))
    a.e("s_add_u32 s%d, s%d, 0x%x" % (sOST, sB, WS_OF))
    for i in range(4): a.e("v_mov_b32 %s, -1" % v(vQ + i))
    a.vmop("buffer_store_dwordx4 %s, %s, %s, s%d offen sc1" % (v(vQ, 4), v(vL16), srd(SWS), sOST), "oclr")
    a.e("v_mov_b32 %s, 1" % v(vONE))
    a.e("v_mov_b32 %s, 0" % v(vZERO))
    a.e("v_and_b32 %s, 31, v0" % v(vGA))
    a.e("v_lshlrev_b32 %s, 2, %s" % (v(vGA), v(vGA)))

def collect(fn):
    t = Asm(); t.marks = {}
    def vmop(s_, tag):
        t.e(s_); t.marks[len(t.l) - 1] = tag
    t.vmop = vmop
    fn(t)
    return [(x, t.marks.get(i)) for i, x in enumerate(t.l)]
def put(a, items):
    for x, tag in items:
        if tag: a.vmop(x, tag)
        else: a.e(x)

def setup_ones(a):
    a.e("s_mov_b32 s%d, 0x110000" % sA)
    a.e("s_mov_b32 s%d, 0x110000" % sB)
    a.e("v_mov_b32 v3, 0x3f803f80")
    a.e("v_cndmask_b32 %s, 0, v3, %s" % (v(vV1L), sp(sA)))
    for i in range(1, 4): a.e("v_mov_b32 %s, %s" % (v(vV1L + i), v(vV1L)))
    for i in range(16): a.e("v_mov_b32 %s, %s" % (v(vV + i), v(vV1L)))

def setup_attn(a):
    srd_words(a, [SWD, SWO, SOUT])
    a.e("s_lshl_b32 s%d, s%d, 2" % (sA, sG))
    a.e("s_add_u32 s%d, s%d, s%d" % (sA, sA, sLO))
    a.e("s_mul_i32 s%d, s%d, 112" % (sB, sA))
    a.e("s_lshl_b32 s%d, s%d, 3" % (sC, sM))
    a.e("s_add_u32 s%d, s%d, s%d" % (sB, sB, sC))
    a.e("s_lshl_b32 s%d, s%d, 2" % (sC, sHI))
    a.e("s_add_u32 s%d, s%d, s%d" % (sB, sB, sC))
    a.e("s_and_b32 s%d, s%d, 1" % (sC, sLO))
    a.e("s_lshl_b32 s%d, s%d, 1" % (sC, sC))
    a.e("s_add_u32 s%d, s%d, s%d" % (sB, sB, sC))
    a.e("s_lshl_b32 s%d, s%d, 10" % (sB, sB))
    a.e("s_add_u32 s%d, s%d, 0x%x" % (sHST, sB, WS_HF))
    a.e("s_mul_i32 s%d, s%d, %d" % (sC, sC, 112 * 1024))
    a.e("s_sub_u32 s%d, %d, s%d" % (sC, 112 * 1024, sC))
    a.e("s_add_u32 s%d, s%d, s%d" % (sHST2, sHST, sC))
    a.e("v_bfe_u32 v2, v0, 2, 2")
    a.e("v_lshrrev_b32 v3, 5, v0")
    a.e("v_lshl_add_u32 v2, v3, 2, v2")
    a.e("v_lshlrev_b32 v2, 6, v2")
    a.e("v_bfe_u32 v3, v0, 4, 1")
    a.e("v_lshl_add_u32 v2, v3, 5, v2")
    a.e("v_and_b32 v3, 3, v0")
    a.e("v_lshl_add_u32 v2, v3, 3, v2")
    a.e("s_lshr_b32 s%d, s%d, 1" % (sA, sW))
    a.e("s_lshl_b32 s%d, s%d, 11" % (sA, sA))
    a.e("v_add_u32 %s, s%d, v2" % (v(vWDA), sA))
    a.e("v_add_u32 %s, 0x%x, %s" % (v(vKVA), L_KV, v(vL16)))
    a.e("v_add_u32 %s, 0x%x, %s" % (v(vKVB), L_KV + 0x4000, v(vL16)))
    a.e("v_bfe_u32 v2, v0, 2, 3")
    a.e("v_lshlrev_b32 v2, 10, v2")
    a.e("v_lshrrev_b32 v3, 5, v0")
    a.e("v_lshl_add_u32 v2, v3, 6, v2")
    a.e("v_and_b32 v3, 3, v0")
    a.e("v_lshl_add_u32 v2, v3, 4, v2")
    a.e("s_lshl_b32 s%d, s%d, 7" % (sB, sCB))
    a.e("v_add_u32 %s, s%d, v2" % (v(vWDV), sB))
    a.e("v_min_u32 v2, 13, v0")
    a.e("v_lshlrev_b32 v2, 7, v2")
    a.e("s_lshr_b32 s%d, s%d, 1" % (sA, sT))
    a.e("s_lshl_b32 s%d, s%d, 11" % (sA, sA))
    a.e("s_add_u32 s%d, s%d, 0x%x" % (sA, sA, WS_HFLAG))
    a.e("v_add_u32 %s, s%d, v2" % (v(vFLA), sA))
    a.e("s_lshl_b32 s%d, s%d, 1" % (sA, sT))
    a.e("s_and_b32 s%d, s%d, 1" % (sB, sW))
    a.e("s_add_u32 s%d, s%d, s%d" % (sA, sA, sB))
    a.e("s_lshl_b32 s%d, s%d, 15" % (sB, sA))
    a.e("s_lshr_b32 s%d, s%d, 1" % (sKQ, sW))
    if Opt.kqx:
        a.e("s_lshl_b32 s%d, s%d, 1" % (sC, sCB))
        a.e("s_and_b32 s%d, s%d, 2" % (sC, sC))
        a.e("s_xor_b32 s%d, s%d, s%d" % (sKQ, sKQ, sC))
    a.e("s_lshl_b32 s%d, s%d, 13" % (sC, sKQ))
    a.e("s_add_u32 s%d, s%d, s%d" % (sB, sB, sC))
    a.e("s_add_u32 s%d, s%d, 0x%x" % (sOLD, sB, WS_OF))
    a.e("v_and_b32 v2, 31, v0")
    a.e("v_lshrrev_b32 v3, 5, v0")
    a.e("v_and_b32 v4, 7, v0")
    a.e("v_xor_b32 v3, v3, v4")
    a.e("v_lshlrev_b32 v3, 4, v3")
    a.e("v_lshl_add_u32 v3, v2, 8, v3")
    a.e("s_and_b32 s%d, s%d, 1" % (sB, sW))
    a.e("s_lshl_b32 s%d, s%d, 15" % (sB, sB))
    a.e("s_lshr_b32 s%d, s%d, 1" % (sC, sW))
    a.e("s_lshl_b32 s%d, s%d, 13" % (sD, sC))
    a.e("s_add_u32 s%d, s%d, s%d" % (sOUTO, sD, sB))
    a.e("v_add_u32 %s, s%d, v3" % (v(vAW0), sOUTO))
    a.e("v_lshrrev_b32 v2, 3, v0")
    a.e("v_lshlrev_b32 v3, 1, v4")
    a.e("v_xor_b32 v3, v3, v2")
    a.e("v_lshlrev_b32 v3, 4, v3")
    a.e("v_lshl_add_u32 v3, v2, 8, v3")
    a.e("s_lshl_b32 s%d, s%d, 11" % (sD, sC))
    a.e("s_add_u32 s%d, s%d, s%d" % (sD, sD, sB))
    a.e("v_add_u32 %s, s%d, v3" % (v(vAR0), sD))
    a.e("v_lshlrev_b32 v4, 4, v4")
    a.e("v_lshl_add_u32 %s, v2, 10, v4" % v(vOUTA))
    a.e("s_lshl_b32 s%d, s%d, 16" % (sC, sT))
    a.e("s_add_u32 s%d, s%d, s%d" % (sOUTO, sOUTO, sC))
    a.e("s_lshl_b32 s%d, s%d, 7" % (sC, sCB))
    a.e("s_add_u32 s%d, s%d, s%d" % (sOUTO, sOUTO, sC))
    a.e("v_mov_b32 %s, 0xdddd" % v(vIDX))
    a.e("v_lshrrev_b32 v2, 4, v0")
    a.e("v_lshl_add_u32 %s, v2, 8, %s" % (v(vHA), v(vL16)))
    for i in range(16): a.e("v_mov_b32 %s, 0" % v(vO + i))
    for i in range(32): a.e("v_mov_b32 %s, 0" % v(vD + i))
    c0 = -2.0 * math.sqrt(2.0 / math.pi) * math.log2(math.e)
    a.e("v_mov_b32 %s, 0x%x" % (v(vC0), f2u(c0)))
    a.e("v_mov_b32 %s, 0x%x" % (v(vC0 + 1), f2u(c0 * 0.044715)))

def kv_first_loads(a, quartet=False):
    it = []
    for o in (range(0, 16384, 4096) if quartet else range(0, 16384, 8192)):
        b = sWH if quartet else sWK
        it.append(("s_add_u32 m0, s%d, 0x%x\ns_add_u32 s%d, s%d, 0x%x\nbuffer_load_dwordx4 %s, %s, s%d offen sc1 lds"
                   % (b, L_KV + o, sA, b, o, v(vL16), srd(SKV), sA), "kv%d" % (o >> 13)))
    it.append(("s_mov_b32 s%d, 0x%x\nbuffer_load_dwordx4 %s, %s, %s, s%d offen sc1"
               % (sA, 63 * 2048, v(vK0, 4), v(vL16), srd(SKV), sA), "k0"))
    it.append(("s_mov_b64 exec, %s\nbuffer_load_dwordx4 %s, %s, %s, 0 offen offset:%d sc1\ns_mov_b64 exec, -1"
               % (sp(sVM), v(vV1L, 4), v(vL16), srd(SKV), 1024 + 256), "k0"))
    it.append(("s_lshl_b32 s%d, s%d, 2\ns_add_u32 s%d, s%d, s%d\ns_lshl_b32 s%d, s%d, 7\ns_add_u32 s%d, s%d, 0x%x\n"
               "buffer_load_dword %s, %s, %s, s%d offen sc1"
               % (sA, sG, sA, sA, sLO, sA, sA, sA, sA, WS_G, v(vGP), v(vGA), srd(SWS), sA), "k0"))
    it.append(("s_lshl_b32 s%d, s%d, 1\ns_and_b32 s%d, s%d, 1\ns_add_u32 s%d, s%d, s%d\ns_lshl_b32 s%d, s%d, 7\ns_add_u32 s%d, s%d, 0x%x\n"
               "buffer_load_dword %s, %s, %s, s%d offen sc1"
               % (sA, sT, sB, sW, sA, sA, sB, sA, sA, sA, sA, WS_G, v(vGC), v(vGA), srd(SWS), sA), "k0"))
    return it

def spin_counter(a, name, first_loaded, wave=0):
    a.e("s_cmp_lg_u32 s%d, %d" % (sW, wave))
    a.e("s_cbranch_scc1 L_%s_done" % name)
    a.e("s_mov_b32 s%d, 0x4000" % sB)
    if first_loaded: a.e("s_branch L_%s_chk" % name)
    a.lab("L_%s_re" % name)
    a.e("buffer_load_dword %s, off, %s, 0 sc1" % (v(vPOLL), srd(SDBG)))
    a.e("s_waitcnt vmcnt(0)")
    a.lab("L_%s_chk" % name)
    a.e("v_readfirstlane_b32 s%d, %s" % (sA, v(vPOLL)))
    a.e("s_cmp_ge_u32 s%d, 32" % sA)
    a.e("s_cbranch_scc1 L_%s_done" % name)
    a.e("s_sleep 4")
    a.e("s_sub_u32 s%d, s%d, 1" % (sB, sB))
    a.e("s_cmp_lg_u32 s%d, 0" % sB)
    a.e("s_cbranch_scc1 L_%s_re" % name)
    a.lab("L_%s_done" % name)

def phase1_F(a):
    SCHED = {1: ["01423567", "10253467", "23016457", "32104756"],
             2: ["02134657", "01324576", "10243567", "10235467"],
             3: ["01324657", "01243576", "12035467", "20134567"],
             5: ["01243567", "10325467", "23014657", "32104576"],
             6: ["01243567", "10325467", "01234657", "10324576"],
             7: ["01234567", "10235476", "01234567", "10235476"],
             8: ["01234567", "10243657", "01234567", "10243657"],
             4: ["02143657", "10325476", "02143657", "10325476"]}
    tabs = SCHED[Opt.sched] if Opt.sched else ["".join(str(c ^ (p & Opt.xmask)) for c in range(8)) for p in range(4)]
    for t_ in tabs: assert sorted(t_) == list("01234567")
    num = [int(t_[::-1], 16) for t_ in tabs]
    def table(a):
        a.e("s_add_u32 s%d, s%d, s%d" % (sA, sG, sHP))
        a.e("s_mov_b32 s%d, 0x%x" % (sXP, num[0]))
        a.e("s_mov_b32 s%d, 0x%x" % (sB, num[2]))
        a.e("s_bitcmp1_b32 s%d, 0" % sA)
        a.e("s_cselect_b32 s%d, 0x%x, s%d" % (sXP, num[1], sXP))
        a.e("s_cselect_b32 s%d, 0x%x, s%d" % (sB, num[3], sB))
        a.e("s_bitcmp1_b32 s%d, 1" % sA)
        a.e("s_cselect_b32 s%d, s%d, s%d" % (sXP, sB, sXP))
        if Opt.ghx:
            a.e("s_bitcmp1_b32 s%d, 3" % sG)
            a.e("s_cselect_b32 s%d, 0x44444444, 0" % sB)
            a.e("s_xor_b32 s%d, s%d, s%d" % (sXP, sXP, sB))
    fo, fw = {"0000": (0, 0), "0101": (0, 1), "0011": (1, 1), "0123": (0, 2)}["".join(t_[0] for t_ in tabs)]
    a.e("s_add_u32 s%d, s%d, s%d" % (sA, sG, sHP))
    a.e("s_bfe_u32 s%d, s%d, 0x%x" % (sCH, sA, fw << 16 | fo))
    if Opt.ghx: a.e("s_lshl2_add_u32 s%d, s%d, s%d" % (sCH, sD, sCH))
    a.e("s_and_b32 s%d, s%d, 0xc00" % (sWH, sWK))
    a.e("v_and_b32 %s, 0xff, v0" % v(vTID))

    def wvoff(a):
        a.e("v_lshrrev_b32 v2, 4, %s" % v(vTID))
        a.e("v_lshrrev_b32 v3, 5, %s" % v(vTID))
        a.e("v_bfi_b32 v3, 3, v2, v3")
        a.e("v_lshlrev_b32 v3, 1, v3")
        a.e("v_xor_b32 v3, v3, %s" % v(vTID))
        a.e("v_and_b32 v3, 15, v3")
        a.e("s_lshl_b32 s%d, s%d, 8" % (sA, sM))
        a.e("v_lshl_add_u32 v3, v3, 4, s%d" % sA)
        a.e("v_mul_u32_u24 v2, 3584, v2")
        a.e("v_add_u32 %s, v2, v3" % v(vDG))
    def qvoff(a):
        a.e("v_lshrrev_b32 v2, 4, %s" % v(vTID))
        a.e("v_and_b32 v2, 2, v2")
        a.e("v_xor_b32 v2, v2, %s" % v(vTID))
        a.e("v_and_b32 v2, 3, v2")
        a.e("s_lshl_b32 s%d, s%d, 6" % (sA, sHP))
        a.e("v_lshl_add_u32 v2, v2, 4, s%d" % sA)
        a.e("v_lshrrev_b32 v3, 2, %s" % v(vTID))
        a.e("v_lshl_add_u32 %s, v3, 10, v2" % v(vDQ))
    def stouch(a):
        if Opt.diag or Opt.probe >= 0: a.e("s_load_dwordx2 %s, s[0:1], 32" % sp(SWO))
        if not Opt.stch: return
        a.e("s_lshr_b32 s%d, s%d, 2" % (sA, sW))
        if Opt.ghx: a.e("s_lshl2_add_u32 s%d, s%d, s%d" % (sA, sD, sA))
        a.e("s_lshl_b32 s%d, s%d, 6" % (sA, sA))
        a.e("s_and_b32 s%d, s%d, 7" % (sB, sG))
        a.e("s_add_u32 s%d, s%d, s%d" % (sA, sA, sB))
        a.e("s_mul_i32 s%d, s%d, 28" % (sA, sA))
        a.e("s_bfe_u32 s%d, s%d, 0x10001" % (sB, sW))
        a.e("s_lshl1_add_u32 s%d, s%d, s%d" % (sB, sM, sB))
        a.e("s_add_u32 s%d, s%d, s%d" % (sA, sA, sB))
        a.e("s_lshl_b32 s%d, s%d, 7" % (sA, sA))
        a.e("s_bitcmp1_b32 s%d, 0" % sW)
        a.e("s_cselect_b64 %s, %s, %s" % (sp(SWKV), sp(SWU), sp(SWG)))
        a.e("s_add_u32 s%d, s%d, s%d" % (SWKV, SWKV, sA))
        a.e("s_addc_u32 s%d, s%d, 0" % (SWKV + 1, SWKV + 1))
        for i in range(Opt.stch):
            a.e("s_load_dwordx2 %s, %s, 0x%x" % (sp(sTMPP), sp(SWKV), 128 * 3584 + i * 8 * 3584 + 60))
    def wsrd(a):
        srd_words(a, [SWG])
        a.e("s_mov_b64 %s, %s" % (sp(SWU + 2), sp(SWG + 2)))

    if Opt.hrot:
        ORDER = [("q", 0)] + [(t_, 2 * h_ + j) for h_ in range(2) for t_, j in (("x", 0), ("x", 1), ("g", 0), ("u", 0), ("g", 1), ("u", 1))]
    else:
        ORDER = [("q", 0)] + [("x", j) for j in range(4)] + [(t_, j) for j in range(4) for t_ in "gu"]
    def block(items):
        out = []; lastc = None; lastw = None
        for c, kind, j in items:
            s = c % 3; pre = []
            if c != lastc:
                if c: pre.append("s_bfe_u32 s%d, s%d, 0x%x" % (sCH, sXP, 0x30000 + 4 * c))
                lastc = c; lastw = None
            fam = "w" if kind in "gu" else kind
            rot = Opt.hrot and fam != "q"
            if lastw is None or lastw[0] != fam or (rot and lastw[1] >> 1 != j >> 1):
                pre.append({"q": "s_lshl_b32 s%d, s%d, 16" % (sOFFW, sCH), "x": "s_lshl_b32 s%d, s%d, 7" % (sOFFW, sCH),
                            "w": "s_mul_i32 s%d, s%d, %d" % (sOFFW, sCH, 64 * 3584)}[fam])
                if rot: pre.append("s_%s_u32 s%d, s%d, s%d" % ("sub" if j >> 1 else "add", sOFFW, sOFFW, sRX if fam == "x" else sRW))
                lastw = (fam, 0)
            if lastw[1] != j:
                pre.append("s_add_u32 s%d, s%d, 0x%x" % (sOFFW, sOFFW, (j - lastw[1]) * (0x8000 if fam == "x" else 16 * 3584)))
                lastw = (fam, j)
            m0c, vo, rs = {"q": (L_WQ + s * 4096, vDQ, SWQ), "x": (L_X + s * 16384 + j * 4096, vDX, SX),
                           "g": (L_G + s * 16384 + j * 4096, vDG, SWG), "u": (L_U + s * 16384 + j * 4096, vDG, SWU)}[kind]
            nt = " nt" if Opt.ntx & (1 if rs == SX else 2) else ""
            out.append(("s_add_u32 m0, s%d, 0x%x\n%s\nbuffer_load_dwordx4 %s, %s, s%d offen%s lds"
                        % ((sM0B + (j >> 1)) if rot else sWH, m0c, "\n".join(pre) or "s_nop 0", v(vo), srd(rs), sOFFW, nt), "c%d" % c))
        return out
    def part(c, role): return [(c, k_, j) for k_, j in ORDER if (k_ in "gu") == (role == "A")]

    def rdsetup(a):
        setup_rd(a)
        a.e("v_lshl_add_u32 %s, v3, 3, v2" % v(vWA))
        a.e("v_lshlrev_b32 %s, 8, %s" % (v(vWA), v(vWA)))
        a.e("v_lshl_add_u32 %s, v4, 3, %s" % (v(vWA), v(vWA)))
        a.e("v_and_b32 v5, 1, v3")
        a.e("v_lshl_add_u32 v2, v5, 2, v2")
        a.e("s_lshl_b32 s%d, s%d, 2" % (sA, sHI))
        a.e("s_and_b32 s%d, s%d, 1" % (sB, sLO))
        a.e("s_lshl_b32 s%d, s%d, 1" % (sB, sB))
        a.e("s_add_u32 s%d, s%d, s%d" % (sA, sA, sB))
        a.e("v_xor_b32 v2, s%d, v2" % sA)
        a.e("v_lshl_add_u32 %s, v2, 5, %s" % (v(vWA), v(vWA)))
        a.e("v_xor_b32 %s, 32, %s" % (v(vWA + 1), v(vWA)))
        a.e("v_add_u32 %s, 0x%x, %s" % (v(vWA + 2), L_U - L_G, v(vWA)))
        a.e("v_add_u32 %s, 0x%x, %s" % (v(vWA + 3), L_U - L_G, v(vWA + 1)))
        a.e("s_lshl_b32 s%d, s%d, 12" % (sA, sLO))
        a.e("s_add_u32 s%d, s%d, 0x%x" % (sA, sA, L_X))
        a.e("v_add_u32 %s, s%d, %s" % (v(vXA), sA, v(vXA)))
        a.e("v_xor_b32 %s, 0x1000, %s" % (v(vXA + 1), v(vXA)))
        a.e("v_xor_b32 %s, 64, %s" % (v(vXA + 2), v(vXA)))
        a.e("v_xor_b32 %s, 64, %s" % (v(vXA + 3), v(vXA + 1)))
        a.e("v_add_u32 %s, 0x%x, %s" % (v(vQA), L_WQ, v(vQA)))

    a.e("s_cmp_ge_u32 s%d, 4" % sW)
    a.e("s_cbranch_scc1 L_setB")
    late = collect(setup_oclr) + collect(setup_ones) + [("; later", None)] + collect(setup_attn)
    words = collect(lambda t: srd_words(t, [SWS, SKV, SDBG, SWD, SWO, SOUT]))
    late = [x for x in late if x not in words]
    oclr = [x for x in late if x[1] == "oclr"]
    if Opt.olate: late = [x for x in late if x[1] != "oclr"]
    else: oclr = []
    words += [("v_mov_b32 %s, 0" % v(r_), None) for r_ in (vGA, vWDV, vFLA, vHA, vOUTA)]
    st = collect(rdsetup) + words + late[:Opt.fillpre]
    cut = late.index(("; later", None)) if Opt.bidle else len(late)
    fills = {"A": late[Opt.fillpre:], "B": late[Opt.fillpre:max(cut, Opt.fillpre)]}
    idleB = late[max(cut, Opt.fillpre):]
    vms = {}
    wsrd(a); wvoff(a)
    a.e("s_waitcnt lgkmcnt(0)")
    a.stamp(2)
    if Opt.spos == 0: stouch(a)
    put(a, block(part(0, "A")))
    a.e("s_branch L_setA")
    vms["A"] = a.vm; a.vm = []
    a.lab("L_setB")
    srd_words(a, [SX]); xvoff(a, vTID)
    a.e("s_waitcnt lgkmcnt(0)")
    a.stamp(2)
    if Opt.spos == 0: stouch(a)
    put(a, block(part(0, "B")[1:]))
    srd_words(a, [SWQ]); qvoff(a)
    put(a, block(part(0, "B")[:1]))
    vms["B"] = a.vm
    for role in "BA":
        a.vm = vms[role]
        if role == "A": a.lab("L_setA")
        if Opt.spos == 1: stouch(a)
        table(a)
        setup_ids(a)
        if role == "A": srd_words(a, [SX, SWQ])
        else: wsrd(a)
        def touches():
            tm = sum(0xff << (8 * i) for i in range(4) if Opt.tch >> i & 1)
            setex = "s_bitcmp1_b32 s%d, 3\ns_cselect_b32 exec_lo, 0, 0x%x\ns_cselect_b32 exec_hi, 0x%x, 0" % (sG, tm, tm) if Opt.ghx \
                    else "s_mov_b32 exec_lo, 0x%x\ns_mov_b32 exec_hi, 0" % tm
            if Opt.tlb & 2 and role == "B":
                a.e("s_and_b32 s%d, s%d, 7" % (sA, sG))
                a.e("v_lshl_add_u32 v2, v0, 3, s%d" % sA)
                a.e("v_mul_u32_u24 v3, 3584, v2")
                a.e("s_and_b32 s%d, s%d, 1" % (sB, sW))
                a.e("s_lshl1_add_u32 s%d, s%d, s%d" % (sA, sM, sB))
                a.e("s_lshl_b32 s%d, s%d, 7" % (sA, sA))
                a.e(setex)
                a.e("s_cmp_ge_u32 s%d, 6" % sW)
                a.e("s_cbranch_scc1 L_tlbu")
                a.e("buffer_load_dword %s, v3, %s, s%d offen" % (v(vPOLL), srd(SWG), sA))
                a.e("s_branch L_tlbe")
                a.lab("L_tlbu")
                a.e("buffer_load_dword %s, v3, %s, s%d offen" % (v(vPOLL), srd(SWU), sA))
                a.lab("L_tlbe")
                a.e("s_mov_b64 exec, -1")
                a.vm.append("tlb")
            if Opt.tlb & 12 and role == "A":
                a.e("s_cmp_lg_u32 s%d, 0" % sW)
                a.e("s_cbranch_scc1 L_tlbx")
                a.e("s_and_b32 s%d, s%d, 7" % (sA, sG))
                a.e("v_lshl_add_u32 v2, v0, 3, s%d" % sA)
                a.e("v_lshlrev_b32 v3, 10, v2")
                a.e("s_lshl_b32 s%d, s%d, 6" % (sA, sHP))
                a.e(setex if Opt.tlb & 4 else "s_mov_b64 exec, 1")
                a.e("buffer_load_dword %s, v3, %s, s%d offen" % (v(vPOLL), srd(SWQ), sA))
                a.e("s_branch L_tlby")
                a.lab("L_tlbx")
                a.e("s_and_b32 s%d, s%d, 3" % (sA, sM))
                a.e("s_lshl2_add_u32 s%d, s%d, s%d" % (sA, sG, sA))
                a.e("s_lshl_b32 s%d, s%d, 15" % (sA, sA))
                a.e("v_lshl_add_u32 v3, v0, 10, s%d" % sA)
                a.e("s_lshr_b32 s%d, s%d, 3" % (sA, sG))
                a.e("s_lshl2_add_u32 s%d, s%d, s%d" % (sA, sA, sW) if Opt.ghx else "s_mov_b32 s%d, s%d" % (sA, sW))
                a.e("s_lshl_b32 s%d, s%d, 7" % (sA, sA))
                a.e("s_bitcmp1_b32 %d, s%d" % (Opt.tch if Opt.tlb & 8 else 0, sW))
                a.e("s_cselect_b32 exec_lo, -1, 1")
                a.e("s_mov_b32 exec_hi, 0")
                a.e("buffer_load_dword %s, v3, %s, s%d offen" % (v(vPOLL), srd(SX), sA))
                a.lab("L_tlby")
                a.e("s_mov_b64 exec, -1")
                a.vm.append("tlb")
        if Opt.tpos == 0: touches()
        if Opt.startbar: a.e("s_barrier")
        npre = min(Opt.npre, 8) if role == "A" else 5
        pn = block(part(1, role)[:npre])
        rest = st + (collect(qvoff) + collect(lambda t: xvoff(t, vTID)) if role == "A" else collect(wvoff))
        gap = len(rest) // (npre + Opt.pregap) + 1
        if Opt.tpos == 2:
            put(a, pn); touches(); npre = 0
        if Opt.tpos == 3 and role == "B":
            put(a, pn); touches(); npre = 0
        for i in range(npre):
            put(a, pn[:1]); pn = pn[1:]
            put(a, rest[:gap]); rest = rest[gap:]
        put(a, rest)
        if Opt.tpos == 1 or (Opt.tpos == 3 and role == "A"): touches()
        a.e("s_mov_b64 vcc, %d" % (-1 if role == "A" else 0))
        if role == "A":
            a.waitvm("c0", lgkm=True)
        else:
            a.e("s_setprio 1")
            a.waitvm("c0", lgkm=True)
            a.e("s_branch L_k0")
        vms[role] = a.vm
    stream = part(1, "A")[min(Opt.npre, 8):] + [(c, k_, j) for c in range(2, 8) for k_, j in ORDER]
    qa = [int(x, 16) for x in Opt.qa]; qb = [int(x, 16) for x in Opt.qb]
    def take(n, cmax):
        m = 0
        while m < n and m < len(stream) and stream[m][0] <= cmax: m += 1
        r_ = stream[:m]; del stream[:m]
        return block(r_)
    a.lab("L_k0")
    a.vm = vms["A"]
    ool = Asm()
    def dmablock(name, role, items, wait=None):
        a.e("s_cbranch_vcc%s L_%s" % ("nz" if role == "A" else "z", name))
        if wait: a.waitvm(wait, lgkm=True)
        a.lab("L_%s_r" % name)
        ool.lab("L_%s" % name)
        ool.vm = a.vm if role == "A" else vms["B"]
        for it_ in items:
            put(ool, [it_])
            fp = Opt.fillper if role == "A" or not Opt.bidle else 2
            put(ool, fills[role][:fp]); fills[role] = fills[role][fp:]
        if name in ("d7", "e7"): put(ool, fills[role]); fills[role] = []
        if wait: ool.waitvm(wait, lgkm=True)
        if role == "B": vms["B"] = ool.vm
        ool.e("s_branch L_%s_r" % name)
    a.ool = ool.l

    def fr(k):
        b = vF1 + 36 * (k % 2)
        return dict(x=b, w=b + 16, q=b + 32)
    def reads(k):
        c, s = divmod(k, 2); f = fr(k); sl = c % 3
        wo = sl * 16384 + s * 8192
        W = lambda i: [rdtr(f['w'] + 4 * i, vWA + i, wo), rdtr(f['w'] + 4 * i + 2, vWA + i, wo + 1024)]
        X = [rd128(f['x'] + 4 * b, vXA + 2 * s + (b >> 1), sl * 16384 + (b & 1) * 2048) for b in range(4)]
        return W(0) + X + W(2) + W(1) + W(3) + [rdtr(f['q'], vQA, sl * 4096 + s * 2048), rdtr(f['q'] + 2, vQA, sl * 4096 + s * 2048 + 256)]
    a.e("s_barrier")
    a.stamp(3)
    if Opt.kdiag or Opt.probe >= 18:
        kstamp(a, 2)
        a.e("s_waitcnt lgkmcnt(0)")
    for r in reads(0): a.e(r)
    if qa[0]: dmablock("d2", "A", take(qa[0], 2))
    for k in range(16):
        c, s = divmod(k, 2); f = fr(k)
        z = lambda x: None if k == 0 else x
        mf = []
        for n_, i in enumerate((0, 2, 1, 3)):
            for b in (range(4) if n_ % 2 == 0 else range(3, -1, -1)):
                d = vACC + 16 * b + 4 * i
                mf.append(mfma16(d, f['w'] + 4 * i, f['x'] + 4 * b, z(d)))
        for b in range(2): mf.append(mfma16(vAQ + 4 * b, f['q'], f['x'] + 4 * b, z(vAQ + 4 * b)))
        rds = reads(k + 1) if k < 15 else []
        if s == 0:
            a.e("s_waitcnt lgkmcnt(6)")
            for i, m in enumerate(mf):
                if i == 8: a.e("s_waitcnt lgkmcnt(8)")
                a.e(m)
                if i < len(rds): a.e(rds[i])
            continue
        a.e("s_waitcnt lgkmcnt(8)")
        for m in mf[:4]: a.e(m)
        if c <= 5:
            dmablock("e%d" % (c + 2), "B", take(qb[c], c + 2), "c%d" % (c + 1))
            assert not any(x[0] <= c + 1 for x in stream)
        if c == 7:
            a.e("s_waitcnt lgkmcnt(0)")
        elif c == 6:
            a.e("s_waitcnt lgkmcnt(0)")
            a.e("s_cbranch_vccz L_st7")
            a.e("s_setprio 1")
            a.e("s_waitcnt vmcnt(0)")
            a.e("s_barrier")
            a.lab("L_st7")
        else:
            a.e("s_barrier")
        if c < 7 and ((Opt.kdiag == 1 and Opt.diag) or Opt.probe == 21 + c):
            kstamp(a, 3 + c)
            a.e("s_waitcnt lgkmcnt(0)")
        if c + 3 < 8:
            items = take(qa[c + 1], c + 3)
            dmablock("d%d" % (c + 3), "A", items)
        for i, m in enumerate(mf[4:]):
            a.e(m)
            if i < len(rds): a.e(rds[i])
        if k == 11: assert not stream and not fills["A"] and not fills["B"]
        if k == 11:
            a.e("s_cbranch_vccnz L_st6")
            a.e("s_setprio 0")
            nm = next((i for i, x in enumerate(idleB) if "0xdddd" in x[0]), 0)
            a.e("s_cmp_lg_u32 s%d, 4" % sW)
            a.e("s_cbranch_scc1 L_nopoll")
            a.e("buffer_load_dword %s, off, %s, 0 sc1" % (v(vPOLL), srd(SDBG)))
            a.lab("L_nopoll")
            put(a, idleB[:nm]); idleB = idleB[nm:]
            a.wait0()
            spin_counter(a, "kvf", True, 4)
            a.e("s_barrier")
            put(a, kv_first_loads(a, True) + oclr + idleB)
            a.lab("L_st6")
    a.kvA = (kv_first_loads(a) + oclr)[2:]
    a.stamp(4)

def phase1_L(a):
    a.lab("L_light")
    a.vm = []
    a.e("s_waitcnt lgkmcnt(0)")
    ptr_loads(a, ((SWKV, 16), (SWV, 24), (SGATE, 72), (SWO, 32)))
    srd_words(a, [SWKV, SWV, SGATE, SX])
    xvoff(a, 0)
    a.e("v_and_b32 v2, 63, v0")
    a.e("v_lshlrev_b32 %s, 4, v2" % v(vL16))
    a.e("s_sub_u32 s%d, s%d, 14" % (sCNT, sM))
    a.e("s_lshl_b32 s%d, s%d, 16" % (sOLD, sCNT))
    a.e("s_lshl_b32 s%d, s%d, 13" % (sHST, sCNT))
    a.e("s_add_u32 s%d, s%d, s%d" % (sWH, sHST, sWK))
    a.e("s_xor_b32 s%d, s%d, 0x2000" % (sHST, sHST))
    a.e("s_add_u32 s%d, s%d, 0x2000" % (sA, sWK))
    a.e("s_waitcnt lgkmcnt(0)")
    a.stamp(2)
    def xdma(c, base, so):
        a.vmop("s_add_u32 m0, s%d, 0x%x\ns_nop 0\nbuffer_load_dwordx4 %s, %s, s%d offen offset:%d lds"
               % (base, LL_X + c * 16384 - c * 128, v(vDX), srd(SX), so, c * 128), "c%d" % c)
    def wdma(u):
        for t, rs in enumerate((SWKV, SWV)):
            a.vmop("s_add_u32 m0, s%d, 0x%x\ns_nop 0\nbuffer_load_dwordx4 %s, %s, s%d offen lds"
                   % (sWK, LL_W + t * 16384 + u * 8192, v(vL16), srd(rs), sA if u else sWK), "w")
    wdma(0)
    a.vmop("s_mov_b32 m0, s%d\ns_nop 0\nbuffer_load_dwordx4 %s, %s, 0 offen lds" % (sHST, v(vL16), srd(SGATE)), "w")
    for c in range(8):
        if c == 4: wdma(1)
        xdma(c, sWH, sOLD)
        if c in (1, 3, 5): a.e("s_barrier")
    setup_ids(a)
    srd_words(a, [SWQ])
    setup_rd(a)
    a.e("v_lshrrev_b32 v3, 5, v0")
    a.e("v_bfrev_b32 v5, v4")
    a.e("v_lshrrev_b32 v5, 30, v5")
    a.e("s_cmp_ge_u32 s%d, 2" % sLO)
    a.e("s_cselect_b64 vcc, -1, 0")
    a.e("v_cndmask_b32 v4, v5, v4, vcc")
    a.e("v_lshl_add_u32 %s, v3, 3, v2" % v(vWA))
    a.e("v_lshlrev_b32 %s, 5, %s" % (v(vWA), v(vWA)))
    a.e("v_lshl_add_u32 %s, v4, 3, %s" % (v(vWA), v(vWA)))
    a.e("s_lshr_b32 s%d, s%d, 1" % (sA, sLO))
    a.e("s_lshl_b32 s%d, s%d, 14" % (sA, sA))
    a.e("s_add_u32 s%d, s%d, 0x%x" % (sA, sA, LL_W))
    a.e("v_add_u32 %s, s%d, %s" % (v(vWA), sA, v(vWA)))
    a.e("v_lshl_add_u32 %s, v3, 4, s%d" % (v(vWA + 1), sHST))
    a.e("s_and_b32 s%d, s%d, 1" % (sA, sLO))
    a.e("s_lshl_b32 s%d, s%d, 1" % (sB, sCNT))
    a.e("s_add_u32 s%d, s%d, s%d" % (sCNT, sA, sB))
    a.e("s_lshl_b32 s%d, s%d, 12" % (sA, sCNT))
    a.e("v_and_b32 v2, 31, v0")
    a.e("v_lshrrev_b32 v4, 1, v0")
    a.e("v_lshlrev_b32 v5, 1, v0")
    a.e("v_bfi_b32 v4, 4, v4, v5")
    a.e("v_bfi_b32 v4, 12, v4, v2")
    a.e("v_cndmask_b32 v2, v2, v4, vcc")
    a.e("v_bfe_u32 v4, v2, 1, 3")
    a.e("v_xor_b32 v4, v4, v3")
    a.e("v_lshlrev_b32 v4, 4, v4")
    a.e("v_lshl_add_u32 v4, v2, 7, v4")
    a.e("v_add_u32 %s, s%d, v4" % (v(vLX), sA))
    for s in range(1, 4): a.e("v_xor_b32 %s, %d, %s" % (v(vLX + s), 32 * s, v(vLX)))
    for s in range(4): a.e("v_add_u32 %s, 0x10000, %s" % (v(vLX + 4 + s), v(vLX + s)))
    a.e("s_waitcnt lgkmcnt(0)")
    setup_oclr(a)
    vm0 = list(a.vm)
    a.e("s_cmp_lg_u32 s%d, 0" % sHI)
    a.e("s_cbranch_scc1 L_lB")
    a.e("s_not_b64 %s, %s" % (sp(sTMPP), sp(sVM)))
    a.e("s_cmp_ge_u32 s%d, 2" % sLO)
    a.e("s_cbranch_scc1 L_lV")
    def chain(kind):
        a.vm = list(vm0)
        def fr(k):
            b = vFR + 8 * (k % 4)
            return b, b + 4
        def reads(k):
            c, s = divmod(k, 4); x, w = fr(k)
            r = [rd128(x, vLX + s + 4 * (c >> 2), (c & 3) * 16384), rdtr(w, vWA, k * 512), rdtr(w + 2, vWA, k * 512 + 128)]
            if kind == "K":
                r += ["s_mov_b64 exec, %s" % sp(sTMPP), rd128(w, vWA + 1, k * 32), "s_mov_b64 exec, -1"]
            return r
        for q in range(4):
            a.waitvm("c%d" % (2 * q + 1))
            a.e("s_barrier")
            nr = 4 if kind == "K" else 3
            for k in range(8 * q, 8 * q + 2):
                for r in reads(k): a.e(r)
            for k in range(8 * q, 8 * q + 8):
                if k + 2 < 8 * q + 8:
                    for r in reads(k + 2): a.e(r)
                left = min(2, 8 * q + 7 - k)
                a.e("s_waitcnt lgkmcnt(%d)" % (left * nr))
                x, w = fr(k)
                cc = None if k == 0 else vACC
                a.e(mfma(vACC, w, x, cc) if kind == "K" else mfma(vACC, x, w, cc))
        a.e("s_lshl_b32 s%d, s%d, 2" % (sA, sG))
        a.e("s_add_u32 s%d, s%d, s%d" % (sA, sA, sCNT))
        a.e("s_nop 12")
        if kind == "K":
            a.e("s_mov_b32 s%d, 0x%x" % (sC, f2u(0.25 * math.log2(math.e))))
            for i in range(8): a.e("v_mul_f32 %s, s%d, %s" % (v(vACC + i), sC, v(vACC + i)))
            a.e("v_mul_f32 %s, 0x%x, %s" % (v(vACC + 8), f2u(-math.log2(math.e)), v(vACC + 8)))
            a.e("v_exp_f32 %s, %s" % (v(vACC + 8), v(vACC + 8)))
            for i in range(4): a.e("v_cvt_pk_bf16_f32 %s, %s, %s" % (v(vFR + i), v(vACC + 2 * i), v(vACC + 2 * i + 1)))
            a.e("v_add_f32 %s, 1.0, %s" % (v(vACC + 8), v(vACC + 8)))
            a.e("v_rcp_f32 %s, %s" % (v(vACC + 8), v(vACC + 8)))
            a.e("s_add_u32 s%d, s%d, 63" % (sB, sA))
            a.e("s_and_b32 s%d, s%d, 63" % (sB, sB))
            a.e("s_lshl_b32 s%d, s%d, 11" % (sB, sB))
            a.e("buffer_store_dwordx4 %s, %s, %s, s%d offen sc1" % (v(vFR, 4), v(vL16), srd(SKV), sB))
            a.e("s_lshl_b32 s%d, s%d, 7" % (sB, sA))
            a.e("s_add_u32 s%d, s%d, 0x%x" % (sB, sB, WS_G))
            a.e("s_mov_b32 exec_hi, 0")
            a.e("buffer_store_dword %s, %s, %s, s%d offen sc1" % (v(vACC + 8), v(vGA), srd(SWS), sB))
            a.e("s_mov_b64 exec, -1")
        else:
            for i in range(8): a.e("v_cvt_pk_bf16_f32 %s, %s, %s" % (v(vFR + i), v(vACC + 2 * i), v(vACC + 2 * i + 1)))
            a.e("v_bfe_u32 v2, v0, 4, 1")
            a.e("v_add_u32 v2, s%d, v2" % sA)
            a.e("v_and_b32 v2, 63, v2")
            a.e("v_lshl_add_u32 v2, v2, 11, %s" % v(vL16))
            for i in range(4): a.e("v_cndmask_b32 %s, %s, %s, %s" % (v(vFR + i), v(vFR + 4 + i), v(vFR + i), sp(sVM)))
            a.e("buffer_store_dwordx4 %s, v2, %s, 0 offen offset:1024 sc1" % (v(vFR, 4), srd(SKV)))
        a.e("s_branch L_lJ")
    chain("K")
    a.lab("L_lV")
    chain("V")
    a.lab("L_lB")
    a.vm = list(vm0)
    a.e("s_cmp_lg_u32 s%d, 14" % sM)
    a.e("s_cbranch_scc1 L_nozf")
    a.e("s_cmp_lg_u32 s%d, 4" % sW)
    a.e("s_cbranch_scc1 L_nozf")
    a.e("v_lshlrev_b32 v2, 7, v0")
    a.e("s_lshl_b32 s%d, s%d, 11" % (sA, sG))
    a.e("s_add_u32 s%d, s%d, 0x%x" % (sA, sA, WS_HFLAG))
    a.e("s_mov_b64 exec, 0xffff")
    a.e("buffer_store_dword %s, v2, %s, s%d offen sc1" % (v(vZERO), srd(SWS), sA))
    a.e("s_mov_b64 exec, -1")
    a.lab("L_nozf")
    for q in range(4):
        a.waitvm("c%d" % (2 * q + 1))
        a.e("s_barrier")
    a.lab("L_lJ")
    a.e("v_lshrrev_b32 v3, 2, v0")
    a.e("v_lshlrev_b32 v3, 10, v3")
    a.e("v_lshrrev_b32 v4, 5, v0")
    a.e("v_lshlrev_b32 v4, 1, v4")
    a.e("v_xor_b32 v4, v4, v0")
    a.e("v_and_b32 v4, 3, v4")
    a.e("v_lshl_add_u32 v3, v4, 4, v3")
    a.e("s_lshl_b32 s%d, s%d, 14" % (sA, sW))
    a.e("s_lshl_b32 s%d, s%d, 6" % (sB, sHP))
    a.e("s_add_u32 s%d, s%d, s%d" % (sA, sA, sB))
    a.e("v_add_u32 %s, s%d, v3" % (v(vDQ), sA))
    a.e("s_xor_b32 s%d, s%d, 0x2000" % (sWH, sWH))
    a.e("s_xor_b32 s%d, s%d, 0x10000" % (sOLD, sOLD))
    a.wait0(lgkm=True)
    a.e("s_barrier")
    a.e("s_cmp_lg_u32 s%d, 0" % sW)
    a.e("s_cbranch_scc1 L_noat")
    a.e("s_mov_b64 exec, 1")
    a.e("buffer_atomic_add %s, off, %s, 0 sc1" % (v(vONE), srd(SDBG)))
    a.e("s_mov_b64 exec, -1")
    a.lab("L_noat")
    a.stamp(3)
    for c in range(8): xdma(c, sWH, sOLD)
    for p in range(4):
        a.e("s_add_u32 m0, s%d, 0x%x" % (sWK, LL_WQ + p * 8192))
        a.e("s_mov_b32 s%d, 0x%x" % (sA, p * 128 * 1024))
        a.e("buffer_load_dwordx4 %s, %s, s%d offen lds" % (v(vDQ), srd(SWQ), sA))
    setup_ones(a)
    setup_attn(a)
    if Opt.touch & 2:
        a.e("s_lshl_b32 s%d, s%d, 1" % (sA, sG))
        a.e("s_add_u32 s%d, s%d, s%d" % (sA, sA, sM))
        a.e("s_sub_u32 s%d, s%d, 14" % (sA, sA))
        a.e("s_lshl_b32 s%d, s%d, 3" % (sA, sA))
        a.e("s_add_u32 s%d, s%d, s%d" % (sA, sA, sW))
        a.e("v_lshlrev_b32 v2, 15, v0")
        a.e("s_lshl_b32 s%d, s%d, 7" % (sA, sA))
        a.e("buffer_load_dword %s, v2, %s, s%d offen" % (v(vPOLL), srd(SWO), sA))
        a.e("buffer_load_dword %s, v2, %s, s%d offen" % (v(vPOLL), srd(SWD), sA))
    a.e("s_lshl_b32 s%d, s%d, 12" % (sA, sLO))
    a.e("v_add_u32 %s, s%d, %s" % (v(vXA), sA, v(vXA)))
    a.e("v_xor_b32 %s, 64, %s" % (v(vXA + 1), v(vXA)))
    a.e("v_add_u32 %s, 0x10000, %s" % (v(vXA + 2), v(vXA)))
    a.e("v_add_u32 %s, 0x10000, %s" % (v(vXA + 3), v(vXA + 1)))
    a.e("v_add_u32 %s, 0x%x, %s" % (v(vQA), LL_WQ, v(vQA)))
    a.e("s_waitcnt vmcnt(%d)" % (2 if Opt.touch & 2 else 0))
    a.e("s_barrier")
    def fr(k): return vFR + 12 * (k % 3)
    def reads(k):
        c, s = divmod(k, 2); f = fr(k)
        return [rd128(f + 4 * b, vXA + s + 2 * (c >> 2), (c & 3) * 16384 + b * 2048) for b in range(2)] + \
               [rdtr(f + 8, vQA, k * 2048), rdtr(f + 10, vQA, k * 2048 + 256)]
    for k in range(2):
        for r in reads(k): a.e(r)
    for k in range(16):
        a.e("s_waitcnt lgkmcnt(%d)" % (4 * min(1, 15 - k)))
        for b in range(2): a.e(mfma16(vAQ + 4 * b, fr(k) + 8, fr(k) + 4 * b, None if k == 0 else vAQ + 4 * b))
        if k + 2 < 16:
            for r in reads(k + 2): a.e(r)
    spin_counter(a, "kvl", False)
    a.e("s_barrier")
    for s, t in kv_first_loads(a): a.e(s)
    a.wait0()
    a.stamp(4)
    a.e("s_branch L_join")

def gelu_tile(a, ti, scalar=False):
    acc = vACC + 16 * ti
    t = vFR
    o = vFR + 8 + 4 * ti
    pk = lambda r: v(r, 2)
    if scalar:
        for i in range(8): a.e("v_mul_f32 %s, %s, %s" % (v(t + i), v(acc + i), v(acc + i)))
        for i in range(8): a.e("v_fma_f32 %s, %s, %s, %s" % (v(t + i), v(t + i), v(vC0 + 1), v(vC0)))
        for i in range(8): a.e("v_mul_f32 %s, %s, %s" % (v(t + i), v(t + i), v(acc + i)))
        for i in range(8): a.e("v_exp_f32 %s, %s" % (v(t + i), v(t + i)))
        for i in range(8): a.e("v_add_f32 %s, 1.0, %s" % (v(t + i), v(t + i)))
        for i in range(8): a.e("v_rcp_f32 %s, %s" % (v(t + i), v(t + i)))
        for i in range(8): a.e("v_mul_f32 %s, %s, %s" % (v(acc + i), v(acc + i), v(acc + 8 + i)))
        for i in range(8): a.e("v_mul_f32 %s, %s, %s" % (v(acc + i), v(acc + i), v(t + i)))
    R4, R8 = (range(0), range(0)) if scalar else (range(4), range(8))
    for i in R4: a.e("v_pk_mul_f32 %s, %s, %s" % (pk(t + 2 * i), pk(acc + 2 * i), pk(acc + 2 * i)))
    for i in R4: a.e("v_pk_fma_f32 %s, %s, %s, %s op_sel:[0,1,0] op_sel_hi:[1,1,0]" % (pk(t + 2 * i), pk(t + 2 * i), pk(vC0), pk(vC0)))
    for i in R4: a.e("v_pk_mul_f32 %s, %s, %s" % (pk(t + 2 * i), pk(t + 2 * i), pk(acc + 2 * i)))
    for i in R8: a.e("v_exp_f32 %s, %s" % (v(t + i), v(t + i)))
    for i in R4: a.e("v_pk_add_f32 %s, %s, 1.0 op_sel_hi:[1,0]" % (pk(t + 2 * i), pk(t + 2 * i)))
    for i in R8: a.e("v_rcp_f32 %s, %s" % (v(t + i), v(t + i)))
    for i in R4: a.e("v_pk_mul_f32 %s, %s, %s" % (pk(acc + 2 * i), pk(acc + 2 * i), pk(acc + 8 + 2 * i)))
    for i in R4: a.e("v_pk_mul_f32 %s, %s, %s" % (pk(acc + 2 * i), pk(acc + 2 * i), pk(t + 2 * i)))
    for i in range(4): a.e("v_cvt_pk_bf16_f32 %s, %s, %s" % (v(o + i), v(acc + 2 * i), v(acc + 2 * i + 1)))
    a.vmop("buffer_store_dwordx4 %s, %s, %s, s%d offen offset:%d sc1" % (v(o, 4), v(vHA), srd(SWS), sHST2 if ti >> 1 else sHST, (ti & 1) * 256), "hst")

def Yseg(hset, toggle=False):
    out = []
    for t in range(2):
        extra = False and hset < 2 and t == Opt.xtile
        pos = [int(x, 17) for x in (Opt.ypos0 if hset is None else Opt.ypos2 if extra else Opt.ypos1)]
        S, Sn = vS + 16 * t, vS + 16 * (1 - t)
        K, V0, V1 = vKF + 4 * t, vV + 8 * t, vV + 8 * t + 4
        for e in range(1, 17):
            out.append("v_exp_f32 %s, %s" % (v(S + e - 1), v(S + e - 1)))
            if e == pos[0]: out.append(smfmac(vO, V1, Sn + 8))
            if e == pos[1]: out.append(mfma(Sn, K, vQ, None))
            if e == pos[2]: out.append(smfmac(vO, V0, S))
            if hset is not None:
                if e == 13 and t == 1 and toggle:
                    out.append("v_xor_b32 %s, 0x4000, %s" % (v(vKVB), v(vKVB)))
                if e == pos[3]: out.append(mfma(vD + 16 * t, vWF + 4 * t, vH + 4 * hset, vD + 16 * t))
                if extra and e == pos[4]: out.append(mfma(vD + 16 * hset, vWX + 4 * hset, vH + 16, vD + 16 * hset))
    return out

def kv_reads(off, vKVA=vKVA):
    r = [rd128(vKF, vKVA, off), rd128(vKF + 4, vKVA, off + 2048), "s_mov_b64 exec, %s" % sp(sVM)]
    for t in range(2):
        r += [rd128(vV + 8 * t, vKVA, off + 2048 * t + 1024), rd128(vV + 8 * t + 4, vKVA, off + 2048 * t + 1280)]
    r.append("s_mov_b64 exec, -1")
    return r
def wd_reads(dst, addr, off):
    r = []
    for c in range(2):
        r += [rdtr(dst + 4 * c, addr, off + 512 * c), rdtr(dst + 4 * c + 2, addr, off + 512 * c + 1024)]
    return r

def hord(): return [0, 2, 4, 6, 1, 3, 5, 7] if Opt.hord else list(range(8))
def wdrow(sg): return (32 * (sg >> 1) + 8 * (sg & 1)) * 1024

def attention(a, role, pre0=None):
    A = role == "A"
    def kvdma(u):
        a.vmop("s_add_u32 m0, s%d, 0x%x\ns_add_u32 s%d, s%d, 0x%x\nbuffer_load_dwordx4 %s, %s, s%d offen sc1 lds"
               % (sWK, L_KV + (u % 4) * 8192, sA, sWK, u * 8192, v(vL16), srd(SKV), sA), "kv%d" % u)
    def wddma(sg):
        a.vmop("s_add_u32 m0, s%d, 0x%x\ns_add_u32 s%d, s%d, 0x%x\nbuffer_load_dwordx4 %s, %s, s%d offen lds"
               % (sWK, L_WD + (sg % 4 if sg < 23 or sg == 27 else sg - 19) * 8192, sA, sWDOFF, wdrow(sg), v(vWDV), srd(SWD), sA), "wd%d" % sg)
    def wodma(j):
        a.vmop("s_add_u32 m0, s%d, 0x%x\ns_add_u32 s%d, s%d, 0x%x\nbuffer_load_dwordx4 %s, %s, s%d offen lds"
               % (sWK, L_WO + j * 8192, sA, sB, j * 16384, v(vWDV), srd(SWO), sA), "wo")
    def hload(sg, dst):
        a.vmop("s_add_u32 s%d, s%d, 0x%x\nbuffer_load_dwordx4 %s, %s, %s, s%d offen sc1"
               % (sA, sHOFF, sg * 1024, v(dst, 4), v(vL16), srd(SWS), sA), "h%d" % sg)
    for n in range(12):
        if not A and n == 0: a.e("s_barrier")
        if n % 2 == 1: astamp(a, 2 + n // 2)
        tags = []
        if A and n % 2 == 1: tags.append("kv%d" % ((n + 1) // 2))
        if not A and n % 2 == 0: tags.append("kv%d" % ((n + 2) // 2))
        if n == (3 if A else 2): tags.append("hst")
        if n == 6: tags.append("wo")
        if n == 9: tags.append("wd27")
        if n == 11: tags.append("wd0")
        if n == 9 and A:
            a.e("s_cmp_lg_u32 s%d, 0" % sW)
            a.e("s_cbranch_scc1 L_hf_done")
            a.e("s_mov_b32 s%d, 0x4000" % sB)
            a.e("s_waitcnt vmcnt(0)")
            a.lab("L_hf_chk")
            a.e("v_cmp_ne_u32 vcc, 1, %s" % v(vPOLL))
            a.e("s_cbranch_vccz L_hf_done")
            a.e("s_sleep 2")
            a.e("buffer_load_dword %s, %s, %s, 0 offen sc1" % (v(vPOLL), v(vFLA), srd(SWS)))
            a.e("s_sub_u32 s%d, s%d, 1" % (sB, sB))
            a.e("s_cmp_lg_u32 s%d, 0" % sB)
            a.e("s_waitcnt vmcnt(0)")
            a.e("s_cbranch_scc1 L_hf_chk")
            a.lab("L_hf_done")
        a.waitvm(tags)
        if n == 5 and Opt.diag == 3 and A:
            a.e("v_mov_b32 v2, s%d" % sSTAMP)
            a.e("s_lshl_b32 s%d, s2, 3" % sA)
            a.e("s_add_u32 s%d, s%d, s%d" % (sA, sA, sW))
            a.e("s_lshl_b32 s%d, s%d, 7" % (sA, sA))
            a.e("s_add_u32 s%d, s%d, 0x%x" % (sA, sA, WS_STAMP))
            a.e("s_mov_b64 exec, 1")
            a.vmop("buffer_store_dword v2, off, %s, s%d offset:12 sc1" % (srd(SWS), sA), "st")
            a.e("s_mov_b64 exec, -1")
        if n == 3 and not A:
            a.e("s_cmp_ge_u32 s%d, 14" % sM)
            a.e("s_cbranch_scc1 L_nohf")
            a.e("s_cmp_lg_u32 s%d, 4" % sW)
            a.e("s_cbranch_scc1 L_nohf")
            a.e("s_lshl_b32 s%d, s%d, 4" % (sA, sG))
            a.e("s_add_u32 s%d, s%d, s%d" % (sA, sA, sM))
            a.e("s_lshl_b32 s%d, s%d, 7" % (sA, sA))
            a.e("s_add_u32 s%d, s%d, 0x%x" % (sA, sA, WS_HFLAG))
            a.e("s_mov_b64 exec, 1")
            a.e("buffer_store_dword %s, off, %s, s%d sc1" % (v(vONE), srd(SWS), sA))
            a.e("s_mov_b64 exec, -1")
            a.lab("L_nohf")
        for r in kv_reads((n % 8) * 4096): a.e(r)
        if n == 8 and A:
            a.e("s_cmp_lg_u32 s%d, 0" % sW)
            a.e("s_cbranch_scc1 L_hf_nol")
            a.e("buffer_load_dword %s, %s, %s, 0 offen sc1" % (v(vPOLL), v(vFLA), srd(SWS)))
            a.lab("L_hf_nol")
        if n == 0:
            kvdma(2); kvdma(3)
            a.e("s_mov_b32 s%d, s%d" % (sC, sKQ))
            a.e("s_mul_i32 s%d, s%d, %d" % (sWDOFF, sC, 448 * 1024))
            a.e("s_and_b32 s%d, s%d, 1" % (sB, sW))
            a.e("s_lshl_b32 s%d, s%d, 14" % (sA, sB))
            a.e("s_add_u32 s%d, s%d, s%d" % (sWDOFF, sWDOFF, sA))
            a.e("s_lshl_b32 s%d, s%d, 1" % (sA, sT))
            a.e("s_add_u32 s%d, s%d, s%d" % (sA, sA, sB))
            a.e("s_mul_i32 s%d, s%d, 112" % (sA, sA))
            a.e("s_mul_i32 s%d, s%d, 28" % (sB, sC))
            a.e("s_add_u32 s%d, s%d, s%d" % (sA, sA, sB))
            a.e("s_lshl_b32 s%d, s%d, 10" % (sA, sA))
            a.e("s_add_u32 s%d, s%d, 0x%x" % (sHOFF, sA, WS_HF))
        if (A and n % 2 == 1 and n >= 3): kvdma((n + 5) // 2)
        if (not A and n % 2 == 0 and n >= 2): kvdma((n + 6) // 2)
        if 1 <= n <= 4:
            a.e("s_lshl_b32 s%d, s%d, 17" % (sB, sKQ))
            a.e("s_and_b32 s%d, s%d, 1" % (sC, sW))
            a.e("s_lshl_b32 s%d, s%d, 13" % (sC, sC))
            a.e("s_add_u32 s%d, s%d, s%d" % (sB, sB, sC))
            for j in (2 * n - 2, 2 * n - 1): wodma(j)
        for sg in {5: (27, 23, 24), 6: (25, 26, 0), 7: (1, 2)}.get(n, ()): wddma(sg)
        if n == 10:
            for r in wd_reads(vWX, vWDA, 3 * 8192): a.e(r)
        for j in ({7: (0,), 8: (1, 2), 9: (3, 4)} if A else {7: (0, 1), 8: (2, 3), 9: (4,)}).get(n, ()):
            for r in wd_reads(WOF[j], vWOA, hord()[j] * 8192): a.e(r)
        hs = {10: (0, 1, 23, 24), 11: (2, 25, 26, 27)} if A else {9: (0, 1, 23), 10: (2, 24), 11: (25, 26, 27)}
        for sg in hs.get(n, ()): hload(sg, vH + 4 * sg if sg < 4 else vHX if sg == 27 else vH + 4 * (sg - 19))
        if n == 11:
            a.e("s_add_u32 s%d, s%d, 0x%x" % (sHOFF, sHOFF, 3 * 1024))
            a.e("s_add_u32 s%d, s%d, 0x%x" % (sWDOFF, sWDOFF, wdrow(3)))
            a.e("s_add_u32 s%d, s%d, 0x%x" % (sKVOFF, sWK, 9 * 8192))
            a.e("s_mov_b32 s%d, 5" % sCNT)
            a.e("s_add_u32 s%d, s%d, 0x1000" % (sOLD2, sOLD))
            a.e("s_mov_b32 s%d, 0x%x" % (sLO_, f2u(2.0 ** -16)))
            a.e("s_mov_b32 s%d, 0x%x" % (sRNG, f2u(2.0 ** 100) - f2u(2.0 ** -16)))
        if n == 0 and pre0:
            pre0()
            a.stamp(5)
        a.e("s_waitcnt lgkmcnt(0)")
        a.e("s_call_b64 %s, L_Y%s" % (sp(sRET), role))
        if n == 0:
            a.e("s_branch L_X1%s" % role)
            a.lab("L_Y%s" % role)
            if A: a.e("s_barrier")
            for x in Yseg(None): a.e(x)
            if not A: a.e("s_barrier")
            a.e("s_setpc_b64 %s" % sp(sRET))
            a.lab("L_X1%s" % role)
    vm = list(a.vm); need = [63] * 4
    for n in range(12, 32):
        p, it = n % 4, (n - 12) // 4
        tags = ["wd%d" % (n - 11), "h%d" % (n - 12)]
        if (p % 2 == 1) == A: tags.append("kv%d" % ((n + (1 if A else 2)) // 2))
        idx = [i for i, t in enumerate(vm) if t in tags]
        if idx: need[p] = min(need[p], len(vm) - 1 - max(idx))
        vm.append("wd%d" % (n - 9))
        vm.append("h%d" % (n - 9))
        if (p % 2 == 1) == A: vm.append("kv%d" % ((n + (5 if A else 6)) // 2))
    a.lab("L_loop%s" % role)
    for p in range(4):
        if p == 0 and Opt.diag and Opt.kdiag == 2:
            a.e("s_cmp_lg_u32 s%d, 4" % sCNT)
            a.e("s_cbranch_scc1 L_nst%s" % role)
            astamp(a, 8)
            a.lab("L_nst%s" % role)
        a.e("s_waitcnt vmcnt(%d)" % need[p])
        for r in kv_reads(p * 4096, vKVB): a.e(r)
        for r in wd_reads(vWF, vWDA, p * 8192): a.e(r)
        a.e("s_add_u32 m0, s%d, 0x%x" % (sWK, L_WD + ((p + 3) % 4) * 8192))
        a.e("s_and_b32 s%d, s%d, 0x7fff" % (sA, sKVOFF))
        a.e("buffer_load_dwordx4 %s, %s, s%d offen lds" % (v(vWDV), srd(SWD), sWDOFF))
        a.e("s_add_u32 s%d, s%d, 0x%x" % (sWDOFF, sWDOFF, 0x2000 if p & 1 else 0x6000))
        a.e("buffer_load_dwordx4 %s, %s, %s, s%d offen sc1" % (v(vH + 4 * ((p + 3) % 4), 4), v(vL16), srd(SWS), sHOFF))
        if (p % 2 == 1) == A:
            a.e("s_add_u32 m0, s%d, 0x%x" % (sA, L_KV))
        a.e("s_add_u32 s%d, s%d, 0x400" % (sHOFF, sHOFF))
        if (p % 2 == 1) == A:
            a.e("buffer_load_dwordx4 %s, %s, s%d offen sc1 lds" % (v(vL16), srd(SKV), sKVOFF))
            a.e("s_add_u32 s%d, s%d, 0x2000" % (sKVOFF, sKVOFF))
        if p == 3:
            a.e("s_sub_u32 s%d, s%d, 1" % (sCNT, sCNT))
            a.e("s_cmp_lg_u32 s%d, 0" % sCNT)
        a.e("s_waitcnt lgkmcnt(0)")
        if A: a.e("s_barrier")
        for x in Yseg(p, toggle=(p == 3)): a.e(x)
        if not A:
            if p == 3: a.e("s_cbranch_scc0 L_tail")
            a.e("s_barrier")
    a.e(("s_cbranch_scc1 L_loop%s" if A else "s_branch L_loop%s") % role)

def transition(a, role):
    A = role == "A"
    if A:
        a.vm = []
        a.lab("L_trA")
    else:
        a.lab("L_join")
        a.e("s_cmp_eq_u32 s%d, 0" % sHI)
        a.e("s_cbranch_scc1 L_trA")
        a.vmjoin = list(a.vm)
    def qfin():
        for i in range(4): a.e("v_cvt_pk_bf16_f32 %s, %s, %s" % (v(vQ + i), v(vAQ + 2 * i), v(vAQ + 2 * i + 1)))
        for i in range(8): a.e("v_mov_b32 %s, 0" % v(vS + 24 + i))
        a.e("v_add_u32 %s, 0x%x, %s" % (v(vWOA), L_WO, v(vWDA)))
        a.e("v_permlane16_swap_b32 %s, %s" % (v(vQ), v(vQ + 2)))
        a.e("v_permlane16_swap_b32 %s, %s" % (v(vQ + 1), v(vQ + 3)))
    pre0 = None
    if A:
        a.e("s_setprio 1")
        a.e("s_cmp_ge_u32 s%d, 14" % sM)
        a.e("s_cbranch_scc1 L_nogA0")
        put(a, a.kvA[:1] + a.kvA[-1:])
        a.l.append(".p2align 3")
        for ti in range(Opt.gsc): gelu_tile(a, ti, True)
        a.lab("L_nogA0")
        qfin()
        a.waitvm(["k0", "kv0", "kv1"])
        a.e("s_setprio 0")
        a.e("s_barrier")
        a.e(mfma(vS, vK0, vQ, None))
        put(a, a.kvA[1:-1])
        def pre0():
            a.e("s_cmp_lt_u32 s%d, 14" % sM)
            a.e("s_cbranch_scc1 L_gA1")
            a.e("s_waitcnt vmcnt(0)")
            a.e("s_branch L_nogA1")
            a.l.append(".p2align 3")
            a.lab("L_gA1")
            for ti in range(Opt.gsc, 4): gelu_tile(a, ti)
            a.lab("L_nogA1")
            a.e("s_setprio 2")
    else:
        a.waitvm(["k0", "kv0", "kv1"])
        a.e("s_setprio 1")
        a.e("s_cmp_ge_u32 s%d, 14" % sM)
        a.l.append(".p2align 3")
        a.e("s_barrier")
        a.e("s_cbranch_scc1 L_nogB")
        for ti in range(4): gelu_tile(a, ti)
        a.lab("L_nogB")
        qfin()
        a.e("s_nop 1")
        a.e(mfma(vS, vK0, vQ, None))
        a.stamp(5)
    attention(a, role, pre0)
    if A:
        a.stamp(6); astamp(a, 9); tstamp(a, 2)
        if Opt.diag and Opt.kdiag == 2: a.e("s_waitcnt lgkmcnt(0)")
        a.e(smfmac(vO, vV1L, vS + 24))
        a.e("s_setprio 0")
        a.e("s_cmp_eq_u32 s%d, 0" % sHI)
        a.e("s_nop 9")
        normalise(a, False)
        a.lab("L_fbretA")
        a.e("buffer_store_dwordx4 %s, %s, %s, s%d offen sc1" % (v(vPK, 4), v(vL16), srd(SWS), sOST))
        tstamp(a, 3)
        a.e("s_waitcnt vmcnt(1)")
        tstamp(a, 4)
        a.e("s_barrier")
        a.fetch(a, False)
        a.e("s_branch L_tl2")

def normalise(a, packed):
    t = vT0
    a.e("v_rcp_f32 %s, %s" % (v(t + 2), v(vO + 8)))
    a.e("s_nop 0")
    a.e("v_mul_f32_e64 %s, %s, %s" % (v(t + 2), v(t + 2), v(vGP)))
    if packed:
        for i in range(4): a.e("v_pk_mul_f32 %s, %s, %s op_sel_hi:[1,0]" % (v(vO + 2 * i, 2), v(vO + 2 * i, 2), v(t + 2, 2)))
        for i in range(4):
            a.e("v_pk_fma_f32 %s, %s, 0, %s op_sel_hi:[1,0,%d]" % (v(t, 2), v(vO + 2 * i, 2), v(t, 2) if i else v(vO + 8, 2), 1 if i else 0))
            a.e("v_cvt_pk_bf16_f32 %s, %s, %s" % (v(vPK + i), v(vO + 2 * i), v(vO + 2 * i + 1)))
        a.e("v_fmac_f32 %s, 0, %s" % (v(t), v(t + 1)))
    else:
        t = vO + 8
        for i in range(8): a.e("v_mul_f32 %s, %s, %s" % (v(vO + i), v(vT0 + 2), v(vO + i)))
        for i in range(4):
            a.e("v_fmac_f32 %s, 0, %s" % (v(t), v(vO + 2 * i)))
            a.e("v_cvt_pk_bf16_f32 %s, %s, %s" % (v(vPK + i), v(vO + 2 * i), v(vO + 2 * i + 1)))
            a.e("v_fmac_f32 %s, 0, %s" % (v(t), v(vO + 2 * i + 1)))
    a.e("v_subrev_u32 %s, s%d, %s" % (v(t), sLO_, v(t)))
    a.e("v_cmp_lt_u32 vcc, s%d, %s" % (sRNG, v(t)))
    a.e("s_branch L_fb" if Opt.force_fb else "s_cbranch_vccnz L_fb")

def tail(a):
    a.l.append(".p2align 3")
    a.lab("L_tail")
    a.stamp(6)
    astamp(a, 9)
    if Opt.diag and Opt.kdiag == 2: a.e("s_waitcnt lgkmcnt(0)")
    tstamp(a, 2)
    a.e(smfmac(vO, vV1L, vS + 24))
    wf = [vFR, vFR + 8, vFR + 16]
    HORD = hord()
    def oload(j):
        return "buffer_load_dwordx4 %s, %s, %s, s%d offen offset:%d %s" % (
            v(vS + 4 * j, 4), v(vL16), srd(SWS), sOLD if HORD[j] < 4 else sOLD2, (HORD[j] % 4) * 1024, Opt.old_pol)
    a.oload = oload
    a.e("s_cmp_eq_u32 s%d, 0" % sHI)
    a.e("s_nop 10")
    normalise(a, True)
    a.lab("L_fbret")
    a.e("buffer_store_dwordx4 %s, %s, %s, s%d offen sc1" % (v(vPK, 4), v(vL16), srd(SWS), sOST))
    tstamp(a, 3)
    aw = [vAW0, vWOA + 1, vWOA + 2, vWOA + 3]
    ar = [vAR0, vFLA]
    wo = WOF
    def fetch(o, scale):
        for j in range(8):
            o.e(oload(j))
            if j >= 5:
                for r in wd_reads(wo[j], vWOA, HORD[j] * 8192): o.e(r)
            if scale and j >= 4:
                for i in range(4 * j - 16, 4 * j - 12): o.e("v_mul_f32 %s, %s, %s" % (v(vD + i), v(vGC), v(vD + i)))
    def addrs(a):
        a.e("v_sub_f32 %s, 1.0, %s" % (v(vGC), v(vGC)))
        for j in range(1, 4): a.e("v_xor_b32 %s, %d, %s" % (v(aw[j]), 32 * j, v(aw[0])))
        a.e("v_xor_b32 %s, 16, %s" % (v(ar[1]), v(ar[0])))
        a.e("s_mov_b32 s%d, 0x2000" % sB)
    ol = Asm(); a.ool2 = ol.l
    a.e("s_waitcnt vmcnt(1)")
    tstamp(a, 4)
    a.e("s_barrier")
    a.lab("L_tl2")
    tstamp(a, 5)
    a.fetch = fetch
    fl = collect(addrs)
    slot = [4, 5, 6, 7, 0, 1, 2]
    rds = sum((wd_reads(wf[i % 3], vWDA, slot[i] * 8192) for i in range(7)), [])
    for r in rds[:4]: a.e(r)
    done = 4
    for i in range(-1, 7):
        for c in range(2):
            if i >= 0: a.e("s_waitcnt lgkmcnt(%d)" % (done - (4 * i + 2 * c + 2)))
            a.e(mfma(vD + 16 * c, vWX + 4 * c, vHX, vD + 16 * c) if i < 0 else
                mfma(vD + 16 * c, wf[i % 3] + 4 * c, vH + 4 * slot[i], vD + 16 * c))
            if done < len(rds):
                for r in rds[done:done + 2]: a.e(r)
                done += 2
            else:
                put(a, fl[:2]); fl = fl[2:]
    assert not fl
    tstamp(a, 6)
    a.e("s_cbranch_scc0 L_tl3")
    a.l.append(".p2align 3")
    a.e("s_nop 7")
    a.e("s_nop 0")
    for i in range(16): a.e("v_pk_mul_f32 %s, %s, %s op_sel:[0,1] op_sel_hi:[1,1]" % (v(vD + 2 * i, 2), v(vD + 2 * i, 2), v(vGP, 2)))
    tstamp(a, 7)
    a.e("s_barrier")
    a.lab("L_tl4")
    tstamp(a, 8)
    ol.lab("L_tl3")
    ol.e("s_setprio 0")
    fetch(ol, False)
    tstamp(ol, 7)
    ol.e("s_barrier")
    for i in range(32): ol.e("v_mul_f32 %s, %s, %s" % (v(vD + i), v(vGC), v(vD + i)))
    ol.e("s_waitcnt lgkmcnt(0)")
    ol.e("s_branch L_tl4")
    a.stamp(7)
    def check(j):
        o = vS + 4 * j
        return ["s_waitcnt vmcnt(%d)" % (7 - j), "v_max3_u32 v2, %s, %s, %s" % (v(o), v(o + 1), v(o + 2)),
                "v_max_u32 v2, v2, %s" % v(o + 3), "v_cmp_eq_u32 vcc, -1, v2"]
    a.check = check
    for x in check(0): a.e(x)
    for j in range(10):
        if j < 8:
            a.e("s_cbranch_vccnz L_ore%d" % j)
            a.lab("L_ook%d" % j)
            a.e(mfma(vD, wo[j], vS + 4 * j, vD))
        if j >= 2 and Opt.cfirst: a.e(mfma(vD + 16, wo[j - 2] + 4, vS + 4 * (j - 2), vD + 16))
        if j < 7:
            for x in check(j + 1): a.e(x)
        if j >= 2 and not Opt.cfirst: a.e(mfma(vD + 16, wo[j - 2] + 4, vS + 4 * (j - 2), vD + 16))
        if j in (7, 8): a.e("s_nop 4")
    wr = lambda c, j: "ds_write_b128 %s, %s offset:%d" % (v(aw[j]), v(vD + 16 * c + 4 * j, 4), 128 * c)
    a.stamp(8)
    tstamp(a, 9)
    for j in range(4): a.e(wr(0, j))
    a.e("s_nop 7")
    for j in range(4): a.e(wr(1, j))
    a.e("s_waitcnt lgkmcnt(0)")
    a.e("s_barrier")
    for p in range(4):
        for h in range(2): a.e(rd128(vS + 8 * p + 4 * h, ar[h], p * 8192))
    for p in range(1, 4):
        a.e("s_waitcnt lgkmcnt(%d)" % (6 - 2 * p))
        for i in range(4): a.e("v_pk_add_f32 %s, %s, %s" % (v(vS + 2 * i, 2), v(vS + 2 * i, 2), v(vS + 8 * p + 2 * i, 2)))
    for i in range(4): a.e("v_cvt_pk_bf16_f32 %s, %s, %s" % (v(vP + i), v(vS + 2 * i), v(vS + 2 * i + 1)))
    a.e("buffer_store_dwordx4 %s, %s, %s, s%d offen %s" % (v(vP, 4), v(vOUTA), srd(SOUT), sOUTO, Opt.out_pol))
    if Opt.probe >= 0:
        a.e("s_waitcnt vmcnt(0)")
        a.stamp(9)
        if Opt.probe != 9:
            a.e("s_cmp_ge_u32 s%d, 14" % sM)
            a.e("s_cbranch_scc%d L_end" % (0 if Opt.probe_l else 1))
        a.e("s_sub_u32 s%d, s%d, s%d" % (sA, sSTAMP + 4, sSTAMP))
        a.e("s_mul_i32 s%d, s%d, %d" % (sA, sA, Opt.probe_mul - 1))
        a.e("s_min_u32 s%d, s%d, 100000" % (sA, sA))
        a.e("s_add_u32 s%d, s%d, 3800" % (sA, sA))
        if Opt.probe_r >= 0:
            a.e("s_cmp_eq_u32 s%d, 0x2000" % sB)
            a.e("s_cbranch_scc%d L_end" % Opt.probe_r)
        if Opt.probe_w >= 0:
            a.e("s_cmp_lg_u32 s%d, %d" % (sHI, Opt.probe_w))
            a.e("s_cbranch_scc1 L_end")
        if Opt.probe_x >= 0:
            a.e("s_and_b32 s0, s2, 7")
            a.e("s_cmp_lg_u32 s0, %d" % Opt.probe_x)
            a.e("s_cbranch_scc1 L_end")
        a.lab("L_probe")
        a.e("s_memrealtime s[0:1]")
        a.e("s_waitcnt lgkmcnt(0)")
        a.e("s_sub_u32 s0, s0, s%d" % (sSTAMP + 4))
        a.e("s_cmp_lt_u32 s0, s%d" % sA)
        a.e("s_cbranch_scc1 L_probe")
    if Opt.pin == 9:
        a.e("s_waitcnt vmcnt(0)")
        a.stamp(9)
    if Opt.diag in (1, 2):
        a.e("s_waitcnt vmcnt(0)")
        a.stamp(9)
        a.e("s_mov_b32 s%d, s%d" % (sSTAMP + 3, sSTAMP))
        a.e("s_mov_b32 s%d, s%d" % (sSTAMP, sB))
        a.e("s_getreg_b32 s%d, hwreg(HW_REG_XCC_ID)" % (sSTAMP + 1))
        for i in range(20): a.e("v_mov_b32 %s, s%d" % (v(vS + i), sSTAMP + i))
        a.e("s_lshl_b32 s%d, s2, 3" % sA)
        a.e("s_add_u32 s%d, s%d, s%d" % (sA, sA, sW))
        a.e("s_lshl_b32 s%d, s%d, 7" % (sA, sA))
        a.e("s_add_u32 s%d, s%d, 0x%x" % (sA, sA, WS_STAMP))
        a.e("s_mov_b64 exec, 1")
        for i in range(5): a.e("buffer_store_dwordx4 %s, off, %s, s%d offset:%d" % (v(vS + 4 * i, 4), srd(SWS), sA, 16 * i))
    a.lab("L_end")
    a.e("s_endpgm")
    a.l += a.ool2
    for j in range(8):
        a.lab("L_ore%d" % j)
        a.e("s_sub_u32 s%d, s%d, 1" % (sB, sB))
        a.e("s_cbranch_scc1 L_ogive%d" % j)
        a.e("s_waitcnt vmcnt(0)")
        for i in range(j, 8): a.e(a.oload(i))
        for x in a.check(j): a.e(x)
        a.e("s_cbranch_vccnz L_ore%d" % j)
        a.e("s_branch L_ook%d" % j)
        a.lab("L_ogive%d" % j)
        a.e("s_mov_b32 s%d, 0" % sB)
        a.e("s_branch L_ook%d" % j)

def fallback(a):
    a.lab("L_fb")
    m = vT0
    a.e("v_mov_b32 %s, 0xff800000" % v(m))
    a.e("s_mov_b32 s%d, 0" % sA)
    a.lab("L_fb1")
    a.e("buffer_load_dwordx4 %s, %s, %s, s%d offen sc1" % (v(vKF, 4), v(vL16), srd(SKV), sA))
    a.e("s_waitcnt vmcnt(0)")
    a.e(mfma(vS, vKF, vQ, None))
    a.e("s_add_u32 s%d, s%d, 2048" % (sA, sA))
    a.e("s_nop 11")
    for i in range(8): a.e("v_max3_f32 %s, %s, %s, %s" % (v(m), v(m), v(vS + 2 * i), v(vS + 2 * i + 1)))
    a.e("s_cmp_lt_u32 s%d, 0x20000" % sA)
    a.e("s_cbranch_scc1 L_fb1")
    a.e("v_mov_b32 %s, %s" % (v(m + 1), v(m)))
    a.e("s_nop 1")
    a.e("v_permlane32_swap_b32 %s, %s" % (v(m), v(m + 1)))
    a.e("s_nop 1")
    a.e("v_max_f32 %s, %s, %s" % (v(m), v(m), v(m + 1)))
    for i in range(16): a.e("v_sub_f32 %s, 0, %s" % (v(vS + 16 + i), v(m)))
    for i in range(16): a.e("v_mov_b32 %s, 0" % v(vO + i))
    a.e("s_mov_b32 s%d, 0" % sA)
    a.lab("L_fb2")
    a.e("s_add_u32 s%d, s%d, 0x%x" % (sB, sA, 63 * 2048))
    a.e("s_and_b32 s%d, s%d, 0x1ffff" % (sB, sB))
    a.e("buffer_load_dwordx4 %s, %s, %s, s%d offen sc1" % (v(vKF, 4), v(vL16), srd(SKV), sB))
    a.e("s_add_u32 s%d, s%d, 2048" % (sB, sA))
    a.e("s_and_b32 s%d, s%d, 0x1ffff" % (sB, sB))
    a.e("s_mov_b64 exec, %s" % sp(sVM))
    a.e("buffer_load_dwordx4 %s, %s, %s, s%d offen offset:1024 sc1" % (v(vV, 4), v(vL16), srd(SKV), sA))
    a.e("buffer_load_dwordx4 %s, %s, %s, s%d offen offset:1280 sc1" % (v(vV + 4, 4), v(vL16), srd(SKV), sB))
    a.e("s_mov_b64 exec, -1")
    a.e("s_waitcnt vmcnt(0)")
    a.e(mfma(vS, vKF, vQ, vS + 16))
    a.e("s_add_u32 s%d, s%d, 2048" % (sA, sA))
    a.e("s_nop 11")
    for i in range(16): a.e("v_exp_f32 %s, %s" % (v(vS + i), v(vS + i)))
    a.e("s_nop 2")
    a.e(smfmac(vO, vV, vS))
    a.e(smfmac(vO, vV + 4, vS + 8))
    a.e("s_cmp_lt_u32 s%d, 0x20000" % sA)
    a.e("s_cbranch_scc1 L_fb2")
    a.e("s_nop 11")
    a.e("v_rcp_f32 %s, %s" % (v(vT0 + 2), v(vO + 8)))
    a.e("s_cmp_eq_u32 s%d, 0" % sHI)
    a.e("v_mul_f32 %s, %s, %s" % (v(vT0 + 2), v(vT0 + 2), v(vGP)))
    for i in range(8): a.e("v_mul_f32 %s, %s, %s" % (v(vO + i), v(vT0 + 2), v(vO + i)))
    for i in range(4): a.e("v_cvt_pk_bf16_f32 %s, %s, %s" % (v(vPK + i), v(vO + 2 * i), v(vO + 2 * i + 1)))
    for i in range(4): a.e("v_min_u32 %s, -2, %s" % (v(vPK + i), v(vPK + i)))
    a.e("s_cbranch_scc1 L_fbretA")
    a.e("s_branch L_fbret")

def build():
    a = Asm()
    prologue(a)
    phase1_F(a)
    transition(a, "B")
    tail(a)
    a.l += a.ool
    transition(a, "A")
    phase1_L(a)
    fallback(a)
    a.lab("L_codeend")
    for i, x in enumerate(a.l):
        if " sc1" in x and "sc0" not in x and ((Opt.allsc & 1 and "buffer_store" in x) or (Opt.allsc & 2 and "buffer_load" in x)):
            a.l[i] = x.replace(" sc1", " sc0 sc1")
    il = a.l.index("L_light:")
    for i, x in enumerate(a.l):
        if x.endswith(" lds") and "sc1" not in x and " nt" not in x:
            if (Opt.ntx & 4 and (srd(SWD) in x or srd(SWO) in x)) or (Opt.ntx & 8 and i > il):
                a.l[i] = x[:-4] + " nt lds"
    head = open("cdna_kernels/%s.s.ref" % NAME).read().split("\n")
    hdr = [l for l in head if l.startswith(";") and "@launch" not in l and "Override" not in l and "grid=" not in l]
    out = hdr + ["; @launch grid=(256,1,1) block=(512,1,1) lds=%d" % LDS_BYTES,
                 '.amdgcn_target "amdgcn-amd-amdhsa--gfx950"', ".text", ".globl %s_kernel" % NAME, ".p2align 8",
                 ".type %s_kernel,@function" % NAME,
                 ".set CODE_PF_MAX, L_codeend - L_nopf - 4" if Opt.code_pf else "",
                 "%s_kernel:" % NAME]
    out += ["; " + x for x in """One persistent launch, one workgroup per CU (generated by a script), 8 waves = two quartets that alternate on each SIMD.
Stage 1: 14 of every 16 workgroups compute gelu(x Wg) * (x Wu) for 128 tokens x 128 columns plus Q for two heads;
         the other two compute K, V and the mixing gate, publish them (counter in d_debug) and then their own Q.
Stage 2: attention for 128 tokens x 2 heads over all keys, S^T = K Q^T, exp2 in place, P V through sparse MFMAs that
         read the high halves of the fp32 probabilities; a row of ones in the V operand gives the row sums.
         The stand-in maximum is 0: it is accepted only if the row sum lies in [2^-16, 2^100] and every accumulator is
         finite, otherwise the wave redoes its rows with the true maximum (L_fb).
         The down projection of a 64 x 64 output tile runs in the same loop once the producers' flags are seen.
Stage 3: attention outputs are handed over through d_ws (cleared to a mark earlier in this launch), projected,
         mixed with the FFN branch, reduced through LDS and stored.""".split("\n")]
    out += a.l
    out += ['.section .rodata,"a"', ".p2align 6", ".amdhsa_kernel %s_kernel" % NAME,
            "  .amdhsa_next_free_vgpr %d" % NV, "  .amdhsa_next_free_sgpr 102", "  .amdhsa_accum_offset 256",
            "  .amdhsa_group_segment_fixed_size 0", "  .amdhsa_kernarg_size 104", "  .amdhsa_user_sgpr_count 2",
            "  .amdhsa_user_sgpr_kernarg_segment_ptr 1", "  .amdhsa_system_sgpr_workgroup_id_x 1", ".end_amdhsa_kernel", ""]
    return "\n".join(out)

if __name__ == "__main__":
    path = sys.argv[1]
    for kv in sys.argv[2:]:
        k, val = kv.split("=")
        cur = getattr(Opt, k)
        setattr(Opt, k, val if isinstance(cur, str) else type(cur)(int(val)))
    open(path, "w").write(build())
```

```python
import sys, struct, math

NAME = "gated_mix__grouped_kv_mqa__geglu_ffn__prompt"

class Opt:
    diag = 0
    mapmode = 1
    force_fb = False
    allsc = 0
    out_pol = "sc0 sc1"
    code_pf = True
    xrot = 0
    pregap = 0
    aearly = 0
    bidle = 1
    old_pol = "sc1"
    ypos0 = "36g"
    ypos1 = "36bg"
    ypos2 = "36cg9"
    xtile = 0
    tpos = 1
    cfirst = 0
    tch = 12
    stch = 0
    spos = 1
    tlb = 14
    olate = 1
    hrot = 0
    tbar = 0
    hord = 1
    cmap = 1
    kqx = 0
    oearly = 8
    conc = 1
    ghx = 1
    qa = "077777"
    qb = "588888"
    npre = 8
    stagger = 1
    rper = 2
    dma1 = 17
    kprio = 0
    dma0 = 8
    npd = 4
    kdiag = 0
    fillpre = 0
    fillper = 5
    gsc = 2
    sched = 0
    xmask = 1
    ntx = 0
    touch = 2
    rotg = 0
    rotm = 0
    startbar = 1
    pvz = 1
    pin = -1
    pin_ns = 60000
    probe = -1
    probe_x = -1
    probe_mul = 10
    probe_w = -1
    probe_r = -1
    probe_l = 0

def f2u(x): return struct.unpack("<I", struct.pack("<f", x))[0]

WS_KV = 0
WS_G = 128 * 1024
WS_HFLAG = 192 * 1024
WS_OF = 1 << 20
WS_HF = 4 << 20
WS_STAMP = 12 << 20
WS_SIZE = 16 << 20
K1 = 1024
L_G, L_U, L_X, L_WQ = 0, 48 * K1, 96 * K1, 144 * K1
L_QX = 32 * K1
L_WD, L_WO, L_KV = 0, 64 * K1, 128 * K1
LL_X, LL_W, LL_GATE, LL_WQ = 0, 128 * K1, 144 * K1, 128 * K1
LDS_BYTES = 160 * K1

SX, SWG, SWU, SWQ, SWS, SWD, SWO, SOUT, SDBG, SWKV, SGATE, SKV = 4, 8, 12, 16, 20, 24, 28, 32, 36, 40, 44, 64
SWV = 72
sTMPP = 48
sW, sHI, sLO, sG, sM, sT, sCB = 50, 51, 52, 53, 54, 55, 56
sWK = 57
sWH = 58
sVM = 60
sRET = 62
sA, sB, sC, sD = 68, 69, 70, 71
sOFFW, sOFFQ, sCH, sXP = 72, 73, 74, 75
sHOFF, sWDOFF, sKVOFF, sHXO, sCNT = 72, 73, 74, 75, 77
sOUTO, sLO_, sRNG = 59, 81, 75
sOLD2 = 58
sOST, sOLD, sHST = 78, 79, 80
sHST2 = 3
sRX, sRW, sM0B = 40, 41, 42
sKQ = 76
sHP = sM
sSTAMP = 82

def srd(b): return "s[%d:%d]" % (b, b + 3)
def sp(b): return "s[%d:%d]" % (b, b + 1)
def v(b, n=1): return "v%d" % b if n == 1 else "v[%d:%d]" % (b, b + n - 1)

vL16 = 1
vT0, vT1, vT2, vT3 = 2, 3, 4, 5
vGP, vGC = 6, 7
vKVA = 8
vWDA = 9
vWDV = 10
vONE = 11
vZERO = 12
vFLA = 13
vPOLL = 14
vGA = 15
vQ = 16
vK0 = 20
vV1L = 24
vIDX = 28
vAW0, vAR0, vOUTA = 30, 31, 12
vKVB = 29
vP = 32
vV = 40
vO = 56
vD = 72
vACC = 104
vS = 104
vH = 136
vAQ = vP
vF1 = 168
vKF = 168
vWF = 176
vWX = 224
vHX = 232
vPK = 20
WOF = [32, 208, 216, 240, 248, 40, 48, 56]
vWOA = 236
vFR = 184
vLX = 224
vXA = 240
vWA = 244
vQA = 248
vDX, vDG, vDQ = 249, 250, 251
vC0 = 252
vTID = 255
vHA = 254
NV = 256

class Asm:
    def __init__(self):
        self.l = []
        self.vm = []
        self.nstamp = 0
    def e(self, s):
        for x in s.split("\n"):
            x = x.strip()
            if x: self.l.append("    " + x)
    def lab(self, s): self.l.append(s + ":")
    def vmop(self, s, tag):
        self.e(s); self.vm.append(tag)
    def vmn(self, tags):
        if isinstance(tags, str): tags = [tags]
        last = -1
        for i, t in enumerate(self.vm):
            if t in tags: last = i
        return None if last < 0 else len(self.vm) - 1 - last
    def waitvm(self, tags, lgkm=False):
        n = self.vmn(tags)
        if n is None:
            if lgkm: self.e("s_waitcnt lgkmcnt(0)")
            return
        assert n < 64
        self.e("s_waitcnt vmcnt(%d)%s" % (n, " lgkmcnt(0)" if lgkm else ""))
        self.vm = self.vm[len(self.vm) - n:] if n else []
    def wait0(self, lgkm=False):
        self.e("s_waitcnt vmcnt(0)%s" % (" lgkmcnt(0)" if lgkm else "")); self.vm = []
    def stamp(self, i, real=False):
        if Opt.probe == i:
            self.e("s_waitcnt lgkmcnt(0)")
            self.e("s_memrealtime %s" % sp(sSTAMP + 4))
            self.e("s_waitcnt lgkmcnt(0)")
        if Opt.pin == i:
            self.nstamp += 1
            self.e("s_waitcnt lgkmcnt(0)")
            self.e("s_cselect_b32 s%d, 1, 0" % (sSTAMP + 5))
            self.lab("L_pin%d" % self.nstamp)
            self.e("s_memrealtime s[0:1]")
            self.e("s_waitcnt lgkmcnt(0)")
            self.e("s_sub_u32 s0, s0, s%d" % sSTAMP)
            self.e("s_cmp_lt_u32 s0, %d" % (Opt.pin_ns // 10))
            self.e("s_cbranch_scc1 L_pin%d" % self.nstamp)
            self.e("s_cmp_lg_u32 s%d, 0" % (sSTAMP + 5))
        if Opt.diag and not Opt.kdiag and (Opt.diag == 1 or i == 9):
            self.e("s_waitcnt lgkmcnt(0)")
            self.e("s_memtime %s" % sp(sSTAMP + 2 * i))
            self.e("s_memrealtime %s" % sp(sRET))
            self.e("s_waitcnt lgkmcnt(0)")
            self.e("s_mov_b32 s%d, s%d" % (sSTAMP + 2 * i + 1, sRET))

def astamp(a, i):
    if Opt.diag and Opt.kdiag == 2: a.e("s_memtime %s" % sp(sSTAMP + 2 * i))

def tstamp(a, i):
    if Opt.diag and Opt.kdiag == 3: a.e("s_memtime %s" % sp(sSTAMP + 2 * i))

def kstamp(a, i):
    if Opt.probe == 18 + i: a.e("s_memrealtime %s" % sp(sSTAMP + 4))
    if Opt.diag and Opt.kdiag == 1: a.e("s_memtime %s" % sp(sSTAMP + 2 * i))

def mfma(d, a, b, c):
    return "v_mfma_f32_32x32x16_bf16 %s, %s, %s, %s" % (v(d, 16), v(a, 4), v(b, 4), "0" if c is None else v(c, 16))
def smfmac(d, a, b):
    return "v_smfmac_f32_32x32x32_bf16 %s, %s, %s, %s" % (v(d, 16), v(a, 4), v(b, 8), v(vIDX))
def mfma16(d, a, b, c):
    return "v_mfma_f32_16x16x32_bf16 %s, %s, %s, %s" % (v(d, 4), v(a, 4), v(b, 4), "0" if c is None else v(c, 4))
def rd128(d, a, off):
    assert 0 <= off < 65536
    return "ds_read_b128 %s, %s offset:%d" % (v(d, 4), v(a), off)
def rdtr(d, a, off):
    assert 0 <= off < 65536
    return "ds_read_b64_tr_b16 %s, %s offset:%d" % (v(d, 2), v(a), off)

def interleave(mf, fill, per=2):
    out = []
    fill = list(fill)
    for i, m in enumerate(mf):
        out.append(m)
        if i < len(mf) - 1:
            out += fill[:per]; fill = fill[per:]
    return out + fill

def srd_words(a, regs):
    sizes = {SX: 2048 * 1024, SWG: 512 * 3584, SWU: 512 * 3584, SWQ: 512 * 1024, SWS: WS_SIZE, SWKV: 16384, SWV: 16384,
             SGATE: 1024, SWD: 1792 * 1024, SWO: 512 * 1024, SOUT: 2048 * 1024, SDBG: 256, SKV: 128 * 1024}
    for reg in regs:
        a.e("s_mov_b32 s%d, 0x%x" % (reg + 2, sizes[reg]))
        a.e("s_mov_b32 s%d, 0x20000" % (reg + 3))

def ptr_loads(a, lst):
    for reg, off in lst: a.e("s_load_dwordx2 %s, s[0:1], %d" % (sp(reg), off))

def prologue(a):
    if Opt.diag or Opt.pin >= 0 or Opt.probe >= 0:
        a.e("s_memrealtime %s" % sp(sSTAMP))
        if Opt.diag in (1, 2): a.e("s_memtime %s" % sp(sSTAMP + 2))
    ptr_loads(a, ((SX, 0), (SWG, 48), (SWU, 56), (SWQ, 8)))
    if Opt.probe == 1: a.stamp(1)
    a.e("v_lshrrev_b32 v2, 6, v0")
    if Opt.code_pf:
        a.e("s_getpc_b64 %s" % sp(sRET))
        a.lab("L_nopf")
        a.e("s_and_b32 s%d, s2, -8" % sA)
        a.e("v_add_lshl_u32 v4, v2, s%d, 7" % sA)
        a.e("v_mov_b32 v5, 0")
        a.e("v_min_u32 v4, CODE_PF_MAX, v4")
        a.e("v_lshl_add_u64 v[4:5], v[4:5], 0, %s" % sp(sRET))
        a.e("global_load_dword %s, v[4:5], off" % v(vPOLL))
    a.e("s_load_dwordx8 s[%d:%d], s[0:1], 64" % (SOUT, SOUT + 7))
    a.e("v_readfirstlane_b32 s%d, v2" % sW)
    ptr_loads(a, ((SWS, 96),) if Opt.diag or Opt.probe >= 0 else ((SWS, 96), (SWO, 32)))
    a.e("s_cmpk_ge_u32 s2, 256")
    a.e("s_cbranch_scc1 L_end")
    a.e("s_and_b32 s%d, s2, 1" % sD)
    a.e("s_bfe_u32 s%d, s2, 0x30003" % sA)
    a.e("s_lshl3_add_u32 s%d, s%d, s%d" % (sG, sD, sA))
    a.e("s_bfe_u32 s%d, s2, 0x20001" % sA)
    a.e("s_lshr_b32 s%d, s2, 6" % sB)
    a.e("s_lshl2_add_u32 s%d, s%d, s%d" % (sM, sA, sB))
    a.e("s_lshl_b32 s%d, s%d, 10" % (sWK, sW))
    a.e("s_cmp_ge_u32 s%d, 14" % sM)
    a.e("s_cbranch_scc1 L_light")

def xvoff(a, t):
    a.e("v_lshrrev_b32 v2, 4, %s" % v(t))
    a.e("v_xor_b32 v2, v2, %s" % v(t))
    a.e("v_and_b32 v2, 7, v2")
    a.e("s_lshl_b32 s%d, s%d, 17" % (sA, sG))
    a.e("v_lshl_add_u32 v2, v2, 4, s%d" % sA)
    a.e("v_lshrrev_b32 v3, 3, %s" % v(t))
    a.e("v_lshl_add_u32 %s, v3, 10, v2" % v(vDX))

def setup_ids(a):
    a.e("s_mov_b64 %s, %s" % (sp(SKV), sp(SWS)))
    a.e("s_mov_b64 %s, %s" % (sp(SWD), sp(SOUT)))
    a.e("s_mov_b64 %s, %s" % (sp(SOUT), sp(SOUT + 4)))
    a.e("s_mov_b64 %s, %s" % (sp(SDBG), sp(SOUT + 6)))
    a.e("v_and_b32 v0, 63, v0")
    a.e("v_lshlrev_b32 %s, 4, v0" % v(vL16))
    a.e("s_andn2_b32 s%d, 1, s2" % sA)
    a.e("s_bfe_u32 s%d, s2, 0x20001" % sB)
    a.e("s_lshl2_add_u32 s%d, s%d, s%d" % (sA, sA, sB))
    a.e("s_bfe_u32 s%d, s2, 0x20003" % sB)
    a.e("s_lshl2_add_u32 s%d, s%d, s%d" % (sT, sA, sB))
    a.e("s_lshr_b32 s%d, s2, 5" % sCB)

def setup_rd(a):
    a.e("s_lshr_b32 s%d, s%d, 2" % (sHI, sW))
    a.e("s_and_b32 s%d, s%d, 3" % (sLO, sW))
    a.e("v_and_b32 v2, 15, v0")
    a.e("v_lshrrev_b32 v3, 4, v0")
    a.e("v_bfe_u32 v4, v0, 1, 3")
    a.e("v_xor_b32 v4, v4, v3")
    a.e("v_lshlrev_b32 v4, 4, v4")
    a.e("v_lshl_add_u32 %s, v2, 7, v4" % v(vXA))
    a.e("v_bfe_u32 v2, v0, 2, 2")
    a.e("v_and_b32 v4, 3, v0")
    a.e("v_lshl_add_u32 %s, v3, 3, v2" % v(vQA))
    a.e("v_lshlrev_b32 %s, 6, %s" % (v(vQA), v(vQA)))
    a.e("v_xor_b32 v5, s%d, v3" % sHI)
    a.e("v_and_b32 v5, 1, v5")
    a.e("v_lshl_add_u32 %s, v5, 5, %s" % (v(vQA), v(vQA)))
    a.e("v_lshl_add_u32 %s, v4, 3, %s" % (v(vQA), v(vQA)))

def setup_oclr(a):
    srd_words(a, [SWS, SKV, SDBG])
    a.e("s_mov_b32 s%d, 0xffff" % sVM)
    a.e("s_mov_b32 s%d, 0xffff" % (sVM + 1))
    a.e("s_lshl_b32 s%d, s%d, 2" % (sA, sG))
    a.e("s_add_u32 s%d, s%d, s%d" % (sA, sA, sLO))
    a.e("s_lshl_b32 s%d, s%d, 5" % (sB, sA))
    a.e("s_lshl_b32 s%d, s%d, 1" % (sC, sHP))
    a.e("s_add_u32 s%d, s%d, s%d" % (sB, sB, sC))
    a.e("s_add_u32 s%d, s%d, s%d" % (sB, sB, sHI))
    a.e("s_lshl_b32 s%d, s%d, 10" % (sB, sB))
    a.e("s_add_u32 s%d, s%d, 0x%x" % (sOST, sB, WS_OF))
    for i in range(4): a.e("v_mov_b32 %s, -1" % v(vQ + i))
    a.vmop("buffer_store_dwordx4 %s, %s, %s, s%d offen sc1" % (v(vQ, 4), v(vL16), srd(SWS), sOST), "oclr")
    a.e("v_mov_b32 %s, 1" % v(vONE))
    a.e("v_mov_b32 %s, 0" % v(vZERO))
    a.e("v_and_b32 %s, 31, v0" % v(vGA))
    a.e("v_lshlrev_b32 %s, 2, %s" % (v(vGA), v(vGA)))

def collect(fn):
    t = Asm(); t.marks = {}
    def vmop(s_, tag):
        t.e(s_); t.marks[len(t.l) - 1] = tag
    t.vmop = vmop
    fn(t)
    return [(x, t.marks.get(i)) for i, x in enumerate(t.l)]
def put(a, items):
    for x, tag in items:
        if tag: a.vmop(x, tag)
        else: a.e(x)

def setup_ones(a):
    a.e("s_mov_b32 s%d, 0x110000" % sA)
    a.e("s_mov_b32 s%d, 0x110000" % sB)
    a.e("v_mov_b32 v3, 0x3f803f80")
    a.e("v_cndmask_b32 %s, 0, v3, %s" % (v(vV1L), sp(sA)))
    for i in range(1, 4): a.e("v_mov_b32 %s, %s" % (v(vV1L + i), v(vV1L)))
    for i in range(16): a.e("v_mov_b32 %s, %s" % (v(vV + i), v(vV1L)))

def setup_attn(a):
    srd_words(a, [SWD, SWO, SOUT])
    a.e("s_lshl_b32 s%d, s%d, 2" % (sA, sG))
    a.e("s_add_u32 s%d, s%d, s%d" % (sA, sA, sLO))
    a.e("s_mul_i32 s%d, s%d, 112" % (sB, sA))
    a.e("s_lshl_b32 s%d, s%d, 3" % (sC, sM))
    a.e("s_add_u32 s%d, s%d, s%d" % (sB, sB, sC))
    a.e("s_lshl_b32 s%d, s%d, 2" % (sC, sHI))
    a.e("s_add_u32 s%d, s%d, s%d" % (sB, sB, sC))
    a.e("s_and_b32 s%d, s%d, 1" % (sC, sLO))
    a.e("s_lshl_b32 s%d, s%d, 1" % (sC, sC))
    a.e("s_add_u32 s%d, s%d, s%d" % (sB, sB, sC))
    a.e("s_lshl_b32 s%d, s%d, 10" % (sB, sB))
    a.e("s_add_u32 s%d, s%d, 0x%x" % (sHST, sB, WS_HF))
    a.e("s_mul_i32 s%d, s%d, %d" % (sC, sC, 112 * 1024))
    a.e("s_sub_u32 s%d, %d, s%d" % (sC, 112 * 1024, sC))
    a.e("s_add_u32 s%d, s%d, s%d" % (sHST2, sHST, sC))
    a.e("v_bfe_u32 v2, v0, 2, 2")
    a.e("v_lshrrev_b32 v3, 5, v0")
    a.e("v_lshl_add_u32 v2, v3, 2, v2")
    a.e("v_lshlrev_b32 v2, 6, v2")
    a.e("v_bfe_u32 v3, v0, 4, 1")
    a.e("v_lshl_add_u32 v2, v3, 5, v2")
    a.e("v_and_b32 v3, 3, v0")
    a.e("v_lshl_add_u32 v2, v3, 3, v2")
    a.e("s_lshr_b32 s%d, s%d, 1" % (sA, sW))
    a.e("s_lshl_b32 s%d, s%d, 11" % (sA, sA))
    a.e("v_add_u32 %s, s%d, v2" % (v(vWDA), sA))
    a.e("v_add_u32 %s, 0x%x, %s" % (v(vKVA), L_KV, v(vL16)))
    a.e("v_add_u32 %s, 0x%x, %s" % (v(vKVB), L_KV + 0x4000, v(vL16)))
    a.e("v_bfe_u32 v2, v0, 2, 3")
    a.e("v_lshlrev_b32 v2, 10, v2")
    a.e("v_lshrrev_b32 v3, 5, v0")
    a.e("v_lshl_add_u32 v2, v3, 6, v2")
    a.e("v_and_b32 v3, 3, v0")
    a.e("v_lshl_add_u32 v2, v3, 4, v2")
    a.e("s_lshl_b32 s%d, s%d, 7" % (sB, sCB))
    a.e("v_add_u32 %s, s%d, v2" % (v(vWDV), sB))
    a.e("v_min_u32 v2, 13, v0")
    a.e("v_lshlrev_b32 v2, 7, v2")
    a.e("s_lshr_b32 s%d, s%d, 1" % (sA, sT))
    a.e("s_lshl_b32 s%d, s%d, 11" % (sA, sA))
    a.e("s_add_u32 s%d, s%d, 0x%x" % (sA, sA, WS_HFLAG))
    a.e("v_add_u32 %s, s%d, v2" % (v(vFLA), sA))
    a.e("s_lshl_b32 s%d, s%d, 1" % (sA, sT))
    a.e("s_and_b32 s%d, s%d, 1" % (sB, sW))
    a.e("s_add_u32 s%d, s%d, s%d" % (sA, sA, sB))
    a.e("s_lshl_b32 s%d, s%d, 15" % (sB, sA))
    a.e("s_lshr_b32 s%d, s%d, 1" % (sKQ, sW))
    if Opt.kqx:
        a.e("s_lshl_b32 s%d, s%d, 1" % (sC, sCB))
        a.e("s_and_b32 s%d, s%d, 2" % (sC, sC))
        a.e("s_xor_b32 s%d, s%d, s%d" % (sKQ, sKQ, sC))
    a.e("s_lshl_b32 s%d, s%d, 13" % (sC, sKQ))
    a.e("s_add_u32 s%d, s%d, s%d" % (sB, sB, sC))
    a.e("s_add_u32 s%d, s%d, 0x%x" % (sOLD, sB, WS_OF))
    a.e("v_and_b32 v2, 31, v0")
    a.e("v_lshrrev_b32 v3, 5, v0")
    a.e("v_and_b32 v4, 7, v0")
    a.e("v_xor_b32 v3, v3, v4")
    a.e("v_lshlrev_b32 v3, 4, v3")
    a.e("v_lshl_add_u32 v3, v2, 8, v3")
    a.e("s_and_b32 s%d, s%d, 1" % (sB, sW))
    a.e("s_lshl_b32 s%d, s%d, 15" % (sB, sB))
    a.e("s_lshr_b32 s%d, s%d, 1" % (sC, sW))
    a.e("s_lshl_b32 s%d, s%d, 13" % (sD, sC))
    a.e("s_add_u32 s%d, s%d, s%d" % (sOUTO, sD, sB))
    a.e("v_add_u32 %s, s%d, v3" % (v(vAW0), sOUTO))
    a.e("v_lshrrev_b32 v2, 3, v0")
    a.e("v_lshlrev_b32 v3, 1, v4")
    a.e("v_xor_b32 v3, v3, v2")
    a.e("v_lshlrev_b32 v3, 4, v3")
    a.e("v_lshl_add_u32 v3, v2, 8, v3")
    a.e("s_lshl_b32 s%d, s%d, 11" % (sD, sC))
    a.e("s_add_u32 s%d, s%d, s%d" % (sD, sD, sB))
    a.e("v_add_u32 %s, s%d, v3" % (v(vAR0), sD))
    a.e("v_lshlrev_b32 v4, 4, v4")
    a.e("v_lshl_add_u32 %s, v2, 10, v4" % v(vOUTA))
    a.e("s_lshl_b32 s%d, s%d, 16" % (sC, sT))
    a.e("s_add_u32 s%d, s%d, s%d" % (sOUTO, sOUTO, sC))
    a.e("s_lshl_b32 s%d, s%d, 7" % (sC, sCB))
    a.e("s_add_u32 s%d, s%d, s%d" % (sOUTO, sOUTO, sC))
    a.e("v_mov_b32 %s, 0xdddd" % v(vIDX))
    a.e("v_lshrrev_b32 v2, 4, v0")
    a.e("v_lshl_add_u32 %s, v2, 8, %s" % (v(vHA), v(vL16)))
    for i in range(16): a.e("v_mov_b32 %s, 0" % v(vO + i))
    for i in range(32): a.e("v_mov_b32 %s, 0" % v(vD + i))
    c0 = -2.0 * math.sqrt(2.0 / math.pi) * math.log2(math.e)
    a.e("v_mov_b32 %s, 0x%x" % (v(vC0), f2u(c0)))
    a.e("v_mov_b32 %s, 0x%x" % (v(vC0 + 1), f2u(c0 * 0.044715)))

def kv_first_loads(a, quartet=False):
    it = []
    for o in (range(0, 16384, 4096) if quartet else range(0, 16384, 8192)):
        b = sWH if quartet else sWK
        it.append(("s_add_u32 m0, s%d, 0x%x\ns_add_u32 s%d, s%d, 0x%x\nbuffer_load_dwordx4 %s, %s, s%d offen sc1 lds"
                   % (b, L_KV + o, sA, b, o, v(vL16), srd(SKV), sA), "kv%d" % (o >> 13)))
    it.append(("s_mov_b32 s%d, 0x%x\nbuffer_load_dwordx4 %s, %s, %s, s%d offen sc1"
               % (sA, 63 * 2048, v(vK0, 4), v(vL16), srd(SKV), sA), "k0"))
    it.append(("s_mov_b64 exec, %s\nbuffer_load_dwordx4 %s, %s, %s, 0 offen offset:%d sc1\ns_mov_b64 exec, -1"
               % (sp(sVM), v(vV1L, 4), v(vL16), srd(SKV), 1024 + 256), "k0"))
    it.append(("s_lshl_b32 s%d, s%d, 2\ns_add_u32 s%d, s%d, s%d\ns_lshl_b32 s%d, s%d, 7\ns_add_u32 s%d, s%d, 0x%x\n"
               "buffer_load_dword %s, %s, %s, s%d offen sc1"
               % (sA, sG, sA, sA, sLO, sA, sA, sA, sA, WS_G, v(vGP), v(vGA), srd(SWS), sA), "k0"))
    it.append(("s_lshl_b32 s%d, s%d, 1\ns_and_b32 s%d, s%d, 1\ns_add_u32 s%d, s%d, s%d\ns_lshl_b32 s%d, s%d, 7\ns_add_u32 s%d, s%d, 0x%x\n"
               "buffer_load_dword %s, %s, %s, s%d offen sc1"
               % (sA, sT, sB, sW, sA, sA, sB, sA, sA, sA, sA, WS_G, v(vGC), v(vGA), srd(SWS), sA), "k0"))
    return it

def spin_counter(a, name, first_loaded, wave=0):
    a.e("s_cmp_lg_u32 s%d, %d" % (sW, wave))
    a.e("s_cbranch_scc1 L_%s_done" % name)
    a.e("s_mov_b32 s%d, 0x4000" % sB)
    if first_loaded: a.e("s_branch L_%s_chk" % name)
    a.lab("L_%s_re" % name)
    a.e("buffer_load_dword %s, off, %s, 0 sc1" % (v(vPOLL), srd(SDBG)))
    a.e("s_waitcnt vmcnt(0)")
    a.lab("L_%s_chk" % name)
    a.e("v_readfirstlane_b32 s%d, %s" % (sA, v(vPOLL)))
    a.e("s_cmp_ge_u32 s%d, 32" % sA)
    a.e("s_cbranch_scc1 L_%s_done" % name)
    a.e("s_sleep 4")
    a.e("s_sub_u32 s%d, s%d, 1" % (sB, sB))
    a.e("s_cmp_lg_u32 s%d, 0" % sB)
    a.e("s_cbranch_scc1 L_%s_re" % name)
    a.lab("L_%s_done" % name)

def phase1_F(a):
    SCHED = {1: ["01423567", "10253467", "23016457", "32104756"],
             2: ["02134657", "01324576", "10243567", "10235467"],
             3: ["01324657", "01243576", "12035467", "20134567"],
             5: ["01243567", "10325467", "23014657", "32104576"],
             6: ["01243567", "10325467", "01234657", "10324576"],
             7: ["01234567", "10235476", "01234567", "10235476"],
             8: ["01234567", "10243657", "01234567", "10243657"],
             4: ["02143657", "10325476", "02143657", "10325476"]}
    tabs = SCHED[Opt.sched] if Opt.sched else ["".join(str(c ^ (p & Opt.xmask)) for c in range(8)) for p in range(4)]
    for t_ in tabs: assert sorted(t_) == list("01234567")
    num = [int(t_[::-1], 16) for t_ in tabs]
    def table(a):
        a.e("s_add_u32 s%d, s%d, s%d" % (sA, sG, sHP))
        a.e("s_mov_b32 s%d, 0x%x" % (sXP, num[0]))
        a.e("s_mov_b32 s%d, 0x%x" % (sB, num[2]))
        a.e("s_bitcmp1_b32 s%d, 0" % sA)
        a.e("s_cselect_b32 s%d, 0x%x, s%d" % (sXP, num[1], sXP))
        a.e("s_cselect_b32 s%d, 0x%x, s%d" % (sB, num[3], sB))
        a.e("s_bitcmp1_b32 s%d, 1" % sA)
        a.e("s_cselect_b32 s%d, s%d, s%d" % (sXP, sB, sXP))
        if Opt.ghx:
            a.e("s_bitcmp1_b32 s%d, 3" % sG)
            a.e("s_cselect_b32 s%d, 0x44444444, 0" % sB)
            a.e("s_xor_b32 s%d, s%d, s%d" % (sXP, sXP, sB))
    fo, fw = {"0000": (0, 0), "0101": (0, 1), "0011": (1, 1), "0123": (0, 2)}["".join(t_[0] for t_ in tabs)]
    a.e("s_add_u32 s%d, s%d, s%d" % (sA, sG, sHP))
    a.e("s_bfe_u32 s%d, s%d, 0x%x" % (sCH, sA, fw << 16 | fo))
    if Opt.ghx: a.e("s_lshl2_add_u32 s%d, s%d, s%d" % (sCH, sD, sCH))
    a.e("s_and_b32 s%d, s%d, 0xc00" % (sWH, sWK))
    a.e("v_and_b32 %s, 0xff, v0" % v(vTID))

    def wvoff(a):
        a.e("v_lshrrev_b32 v2, 4, %s" % v(vTID))
        a.e("v_lshrrev_b32 v3, 5, %s" % v(vTID))
        a.e("v_bfi_b32 v3, 3, v2, v3")
        a.e("v_lshlrev_b32 v3, 1, v3")
        a.e("v_xor_b32 v3, v3, %s" % v(vTID))
        a.e("v_and_b32 v3, 15, v3")
        a.e("s_lshl_b32 s%d, s%d, 8" % (sA, sM))
        a.e("v_lshl_add_u32 v3, v3, 4, s%d" % sA)
        a.e("v_mul_u32_u24 v2, 3584, v2")
        a.e("v_add_u32 %s, v2, v3" % v(vDG))
    def qvoff(a):
        a.e("v_lshrrev_b32 v2, 4, %s" % v(vTID))
        a.e("v_and_b32 v2, 2, v2")
        a.e("v_xor_b32 v2, v2, %s" % v(vTID))
        a.e("v_and_b32 v2, 3, v2")
        a.e("s_lshl_b32 s%d, s%d, 6" % (sA, sHP))
        a.e("v_lshl_add_u32 v2, v2, 4, s%d" % sA)
        a.e("v_lshrrev_b32 v3, 2, %s" % v(vTID))
        a.e("v_lshl_add_u32 %s, v3, 10, v2" % v(vDQ))
    def stouch(a):
        if Opt.diag or Opt.probe >= 0: a.e("s_load_dwordx2 %s, s[0:1], 32" % sp(SWO))
        if not Opt.stch: return
        a.e("s_lshr_b32 s%d, s%d, 2" % (sA, sW))
        if Opt.ghx: a.e("s_lshl2_add_u32 s%d, s%d, s%d" % (sA, sD, sA))
        a.e("s_lshl_b32 s%d, s%d, 6" % (sA, sA))
        a.e("s_and_b32 s%d, s%d, 7" % (sB, sG))
        a.e("s_add_u32 s%d, s%d, s%d" % (sA, sA, sB))
        a.e("s_mul_i32 s%d, s%d, 28" % (sA, sA))
        a.e("s_bfe_u32 s%d, s%d, 0x10001" % (sB, sW))
        a.e("s_lshl1_add_u32 s%d, s%d, s%d" % (sB, sM, sB))
        a.e("s_add_u32 s%d, s%d, s%d" % (sA, sA, sB))
        a.e("s_lshl_b32 s%d, s%d, 7" % (sA, sA))
        a.e("s_bitcmp1_b32 s%d, 0" % sW)
        a.e("s_cselect_b64 %s, %s, %s" % (sp(SWKV), sp(SWU), sp(SWG)))
        a.e("s_add_u32 s%d, s%d, s%d" % (SWKV, SWKV, sA))
        a.e("s_addc_u32 s%d, s%d, 0" % (SWKV + 1, SWKV + 1))
        for i in range(Opt.stch):
            a.e("s_load_dwordx2 %s, %s, 0x%x" % (sp(sTMPP), sp(SWKV), 128 * 3584 + i * 8 * 3584 + 60))
    def wsrd(a):
        srd_words(a, [SWG])
        a.e("s_mov_b64 %s, %s" % (sp(SWU + 2), sp(SWG + 2)))

    if Opt.hrot:
        ORDER = [("q", 0)] + [(t_, 2 * h_ + j) for h_ in range(2) for t_, j in (("x", 0), ("x", 1), ("g", 0), ("u", 0), ("g", 1), ("u", 1))]
    else:
        ORDER = [("q", 0)] + [("x", j) for j in range(4)] + [(t_, j) for j in range(4) for t_ in "gu"]
    def block(items):
        out = []; lastc = None; lastw = None
        for c, kind, j in items:
            s = c % 3; pre = []
            if c != lastc:
                if c: pre.append("s_bfe_u32 s%d, s%d, 0x%x" % (sCH, sXP, 0x30000 + 4 * c))
                lastc = c; lastw = None
            fam = "w" if kind in "gu" else kind
            rot = Opt.hrot and fam != "q"
            if lastw is None or lastw[0] != fam or (rot and lastw[1] >> 1 != j >> 1):
                pre.append({"q": "s_lshl_b32 s%d, s%d, 16" % (sOFFW, sCH), "x": "s_lshl_b32 s%d, s%d, 7" % (sOFFW, sCH),
                            "w": "s_mul_i32 s%d, s%d, %d" % (sOFFW, sCH, 64 * 3584)}[fam])
                if rot: pre.append("s_%s_u32 s%d, s%d, s%d" % ("sub" if j >> 1 else "add", sOFFW, sOFFW, sRX if fam == "x" else sRW))
                lastw = (fam, 0)
            if lastw[1] != j:
                pre.append("s_add_u32 s%d, s%d, 0x%x" % (sOFFW, sOFFW, (j - lastw[1]) * (0x8000 if fam == "x" else 16 * 3584)))
                lastw = (fam, j)
            m0c, vo, rs = {"q": (L_WQ + s * 4096, vDQ, SWQ), "x": (L_X + s * 16384 + j * 4096, vDX, SX),
                           "g": (L_G + s * 16384 + j * 4096, vDG, SWG), "u": (L_U + s * 16384 + j * 4096, vDG, SWU)}[kind]
            nt = " nt" if Opt.ntx & (1 if rs == SX else 2) else ""
            out.append(("s_add_u32 m0, s%d, 0x%x\n%s\nbuffer_load_dwordx4 %s, %s, s%d offen%s lds"
                        % ((sM0B + (j >> 1)) if rot else sWH, m0c, "\n".join(pre) or "s_nop 0", v(vo), srd(rs), sOFFW, nt), "c%d" % c))
        return out
    def part(c, role): return [(c, k_, j) for k_, j in ORDER if (k_ in "gu") == (role == "A")]

    def rdsetup(a):
        setup_rd(a)
        a.e("v_lshl_add_u32 %s, v3, 3, v2" % v(vWA))
        a.e("v_lshlrev_b32 %s, 8, %s" % (v(vWA), v(vWA)))
        a.e("v_lshl_add_u32 %s, v4, 3, %s" % (v(vWA), v(vWA)))
        a.e("v_and_b32 v5, 1, v3")
        a.e("v_lshl_add_u32 v2, v5, 2, v2")
        a.e("s_lshl_b32 s%d, s%d, 2" % (sA, sHI))
        a.e("s_and_b32 s%d, s%d, 1" % (sB, sLO))
        a.e("s_lshl_b32 s%d, s%d, 1" % (sB, sB))
        a.e("s_add_u32 s%d, s%d, s%d" % (sA, sA, sB))
        a.e("v_xor_b32 v2, s%d, v2" % sA)
        a.e("v_lshl_add_u32 %s, v2, 5, %s" % (v(vWA), v(vWA)))
        a.e("v_xor_b32 %s, 32, %s" % (v(vWA + 1), v(vWA)))
        a.e("v_add_u32 %s, 0x%x, %s" % (v(vWA + 2), L_U - L_G, v(vWA)))
        a.e("v_add_u32 %s, 0x%x, %s" % (v(vWA + 3), L_U - L_G, v(vWA + 1)))
        a.e("s_lshl_b32 s%d, s%d, 12" % (sA, sLO))
        a.e("s_add_u32 s%d, s%d, 0x%x" % (sA, sA, L_X))
        a.e("v_add_u32 %s, s%d, %s" % (v(vXA), sA, v(vXA)))
        a.e("v_xor_b32 %s, 0x1000, %s" % (v(vXA + 1), v(vXA)))
        a.e("v_xor_b32 %s, 64, %s" % (v(vXA + 2), v(vXA)))
        a.e("v_xor_b32 %s, 64, %s" % (v(vXA + 3), v(vXA + 1)))
        a.e("v_add_u32 %s, 0x%x, %s" % (v(vQA), L_WQ, v(vQA)))

    a.e("s_cmp_ge_u32 s%d, 4" % sW)
    a.e("s_cbranch_scc1 L_setB")
    late = collect(setup_oclr) + collect(setup_ones) + [("; later", None)] + collect(setup_attn)
    words = collect(lambda t: srd_words(t, [SWS, SKV, SDBG, SWD, SWO, SOUT]))
    late = [x for x in late if x not in words]
    oclr = [x for x in late if x[1] == "oclr"]
    if Opt.olate: late = [x for x in late if x[1] != "oclr"]
    else: oclr = []
    words += [("v_mov_b32 %s, 0" % v(r_), None) for r_ in (vGA, vWDV, vFLA, vHA, vOUTA)]
    st = collect(rdsetup) + words + late[:Opt.fillpre]
    cut = late.index(("; later", None)) if Opt.bidle else len(late)
    fills = {"A": late[Opt.fillpre:], "B": late[Opt.fillpre:max(cut, Opt.fillpre)]}
    idleB = late[max(cut, Opt.fillpre):]
    vms = {}
    wsrd(a); wvoff(a)
    a.e("s_waitcnt lgkmcnt(0)")
    a.stamp(2)
    if Opt.spos == 0: stouch(a)
    put(a, block(part(0, "A")))
    a.e("s_branch L_setA")
    vms["A"] = a.vm; a.vm = []
    a.lab("L_setB")
    srd_words(a, [SX]); xvoff(a, vTID)
    a.e("s_waitcnt lgkmcnt(0)")
    a.stamp(2)
    if Opt.spos == 0: stouch(a)
    put(a, block(part(0, "B")[1:]))
    srd_words(a, [SWQ]); qvoff(a)
    put(a, block(part(0, "B")[:1]))
    vms["B"] = a.vm
    for role in "BA":
        a.vm = vms[role]
        if role == "A": a.lab("L_setA")
        if Opt.spos == 1: stouch(a)
        table(a)
        setup_ids(a)
        if role == "A": srd_words(a, [SX, SWQ])
        else: wsrd(a)
        def touches():
            tm = sum(0xff << (8 * i) for i in range(4) if Opt.tch >> i & 1)
            setex = "s_bitcmp1_b32 s%d, 3\ns_cselect_b32 exec_lo, 0, 0x%x\ns_cselect_b32 exec_hi, 0x%x, 0" % (sG, tm, tm) if Opt.ghx \
                    else "s_mov_b32 exec_lo, 0x%x\ns_mov_b32 exec_hi, 0" % tm
            if Opt.tlb & 2 and role == "B":
                a.e("s_and_b32 s%d, s%d, 7" % (sA, sG))
                a.e("v_lshl_add_u32 v2, v0, 3, s%d" % sA)
                a.e("v_mul_u32_u24 v3, 3584, v2")
                a.e("s_and_b32 s%d, s%d, 1" % (sB, sW))
                a.e("s_lshl1_add_u32 s%d, s%d, s%d" % (sA, sM, sB))
                a.e("s_lshl_b32 s%d, s%d, 7" % (sA, sA))
                a.e(setex)
                a.e("s_cmp_ge_u32 s%d, 6" % sW)
                a.e("s_cbranch_scc1 L_tlbu")
                a.e("buffer_load_dword %s, v3, %s, s%d offen" % (v(vPOLL), srd(SWG), sA))
                a.e("s_branch L_tlbe")
                a.lab("L_tlbu")
                a.e("buffer_load_dword %s, v3, %s, s%d offen" % (v(vPOLL), srd(SWU), sA))
                a.lab("L_tlbe")
                a.e("s_mov_b64 exec, -1")
                a.vm.append("tlb")
            if Opt.tlb & 12 and role == "A":
                a.e("s_cmp_lg_u32 s%d, 0" % sW)
                a.e("s_cbranch_scc1 L_tlbx")
                a.e("s_and_b32 s%d, s%d, 7" % (sA, sG))
                a.e("v_lshl_add_u32 v2, v0, 3, s%d" % sA)
                a.e("v_lshlrev_b32 v3, 10, v2")
                a.e("s_lshl_b32 s%d, s%d, 6" % (sA, sHP))
                a.e(setex if Opt.tlb & 4 else "s_mov_b64 exec, 1")
                a.e("buffer_load_dword %s, v3, %s, s%d offen" % (v(vPOLL), srd(SWQ), sA))
                a.e("s_branch L_tlby")
                a.lab("L_tlbx")
                a.e("s_and_b32 s%d, s%d, 3" % (sA, sM))
                a.e("s_lshl2_add_u32 s%d, s%d, s%d" % (sA, sG, sA))
                a.e("s_lshl_b32 s%d, s%d, 15" % (sA, sA))
                a.e("v_lshl_add_u32 v3, v0, 10, s%d" % sA)
                a.e("s_lshr_b32 s%d, s%d, 3" % (sA, sG))
                a.e("s_lshl2_add_u32 s%d, s%d, s%d" % (sA, sA, sW) if Opt.ghx else "s_mov_b32 s%d, s%d" % (sA, sW))
                a.e("s_lshl_b32 s%d, s%d, 7" % (sA, sA))
                a.e("s_bitcmp1_b32 %d, s%d" % (Opt.tch if Opt.tlb & 8 else 0, sW))
                a.e("s_cselect_b32 exec_lo, -1, 1")
                a.e("s_mov_b32 exec_hi, 0")
                a.e("buffer_load_dword %s, v3, %s, s%d offen" % (v(vPOLL), srd(SX), sA))
                a.lab("L_tlby")
                a.e("s_mov_b64 exec, -1")
                a.vm.append("tlb")
        if Opt.tpos == 0: touches()
        if Opt.startbar: a.e("s_barrier")
        npre = min(Opt.npre, 8) if role == "A" else 5
        pn = block(part(1, role)[:npre])
        rest = st + (collect(qvoff) + collect(lambda t: xvoff(t, vTID)) if role == "A" else collect(wvoff))
        gap = len(rest) // (npre + Opt.pregap) + 1
        if Opt.tpos == 2:
            put(a, pn); touches(); npre = 0
        if Opt.tpos == 3 and role == "B":
            put(a, pn); touches(); npre = 0
        for i in range(npre):
            put(a, pn[:1]); pn = pn[1:]
            put(a, rest[:gap]); rest = rest[gap:]
        put(a, rest)
        if Opt.tpos == 1 or (Opt.tpos == 3 and role == "A"): touches()
        a.e("s_mov_b64 vcc, %d" % (-1 if role == "A" else 0))
        if role == "A":
            a.waitvm("c0", lgkm=True)
        else:
            a.e("s_setprio 1")
            a.waitvm("c0", lgkm=True)
            a.e("s_branch L_k0")
        vms[role] = a.vm
    stream = part(1, "A")[min(Opt.npre, 8):] + [(c, k_, j) for c in range(2, 8) for k_, j in ORDER]
    qa = [int(x, 16) for x in Opt.qa]; qb = [int(x, 16) for x in Opt.qb]
    def take(n, cmax):
        m = 0
        while m < n and m < len(stream) and stream[m][0] <= cmax: m += 1
        r_ = stream[:m]; del stream[:m]
        return block(r_)
    a.lab("L_k0")
    a.vm = vms["A"]
    ool = Asm()
    def dmablock(name, role, items, wait=None):
        a.e("s_cbranch_vcc%s L_%s" % ("nz" if role == "A" else "z", name))
        if wait: a.waitvm(wait, lgkm=True)
        a.lab("L_%s_r" % name)
        ool.lab("L_%s" % name)
        ool.vm = a.vm if role == "A" else vms["B"]
        for it_ in items:
            put(ool, [it_])
            fp = Opt.fillper if role == "A" or not Opt.bidle else 2
            put(ool, fills[role][:fp]); fills[role] = fills[role][fp:]
        if name in ("d7", "e7"): put(ool, fills[role]); fills[role] = []
        if wait: ool.waitvm(wait, lgkm=True)
        if role == "B": vms["B"] = ool.vm
        ool.e("s_branch L_%s_r" % name)
    a.ool = ool.l

    def fr(k):
        b = vF1 + 36 * (k % 2)
        return dict(x=b, w=b + 16, q=b + 32)
    def reads(k):
        c, s = divmod(k, 2); f = fr(k); sl = c % 3
        wo = sl * 16384 + s * 8192
        W = lambda i: [rdtr(f['w'] + 4 * i, vWA + i, wo), rdtr(f['w'] + 4 * i + 2, vWA + i, wo + 1024)]
        X = [rd128(f['x'] + 4 * b, vXA + 2 * s + (b >> 1), sl * 16384 + (b & 1) * 2048) for b in range(4)]
        return W(0) + X + W(2) + W(1) + W(3) + [rdtr(f['q'], vQA, sl * 4096 + s * 2048), rdtr(f['q'] + 2, vQA, sl * 4096 + s * 2048 + 256)]
    a.e("s_barrier")
    a.stamp(3)
    if Opt.kdiag or Opt.probe >= 18:
        kstamp(a, 2)
        a.e("s_waitcnt lgkmcnt(0)")
    for r in reads(0): a.e(r)
    if qa[0]: dmablock("d2", "A", take(qa[0], 2))
    for k in range(16):
        c, s = divmod(k, 2); f = fr(k)
        z = lambda x: None if k == 0 else x
        mf = []
        for n_, i in enumerate((0, 2, 1, 3)):
            for b in (range(4) if n_ % 2 == 0 else range(3, -1, -1)):
                d = vACC + 16 * b + 4 * i
                mf.append(mfma16(d, f['w'] + 4 * i, f['x'] + 4 * b, z(d)))
        for b in range(2): mf.append(mfma16(vAQ + 4 * b, f['q'], f['x'] + 4 * b, z(vAQ + 4 * b)))
        rds = reads(k + 1) if k < 15 else []
        if s == 0:
            a.e("s_waitcnt lgkmcnt(6)")
            for i, m in enumerate(mf):
                if i == 8: a.e("s_waitcnt lgkmcnt(8)")
                a.e(m)
                if i < len(rds): a.e(rds[i])
            continue
        a.e("s_waitcnt lgkmcnt(8)")
        for m in mf[:4]: a.e(m)
        if c <= 5:
            dmablock("e%d" % (c + 2), "B", take(qb[c], c + 2), "c%d" % (c + 1))
            assert not any(x[0] <= c + 1 for x in stream)
        if c == 7:
            a.e("s_waitcnt lgkmcnt(0)")
        elif c == 6:
            a.e("s_waitcnt lgkmcnt(0)")
            a.e("s_cbranch_vccz L_st7")
            a.e("s_setprio 1")
            a.e("s_waitcnt vmcnt(0)")
            a.e("s_barrier")
            a.lab("L_st7")
        else:
            a.e("s_barrier")
        if c < 7 and ((Opt.kdiag == 1 and Opt.diag) or Opt.probe == 21 + c):
            kstamp(a, 3 + c)
            a.e("s_waitcnt lgkmcnt(0)")
        if c + 3 < 8:
            items = take(qa[c + 1], c + 3)
            dmablock("d%d" % (c + 3), "A", items)
        for i, m in enumerate(mf[4:]):
            a.e(m)
            if i < len(rds): a.e(rds[i])
        if k == 11: assert not stream and not fills["A"] and not fills["B"]
        if k == 11:
            a.e("s_cbranch_vccnz L_st6")
            a.e("s_setprio 0")
            nm = next((i for i, x in enumerate(idleB) if "0xdddd" in x[0]), 0)
            a.e("s_cmp_lg_u32 s%d, 4" % sW)
            a.e("s_cbranch_scc1 L_nopoll")
            a.e("buffer_load_dword %s, off, %s, 0 sc1" % (v(vPOLL), srd(SDBG)))
            a.lab("L_nopoll")
            put(a, idleB[:nm]); idleB = idleB[nm:]
            a.wait0()
            spin_counter(a, "kvf", True, 4)
            a.e("s_barrier")
            put(a, kv_first_loads(a, True) + oclr + idleB)
            a.lab("L_st6")
    a.kvA = (kv_first_loads(a) + oclr)[2:]
    a.stamp(4)

def phase1_L(a):
    a.lab("L_light")
    a.vm = []
    a.e("s_waitcnt lgkmcnt(0)")
    ptr_loads(a, ((SWKV, 16), (SWV, 24), (SGATE, 72), (SWO, 32)))
    srd_words(a, [SWKV, SWV, SGATE, SX])
    xvoff(a, 0)
    a.e("v_and_b32 v2, 63, v0")
    a.e("v_lshlrev_b32 %s, 4, v2" % v(vL16))
    a.e("s_sub_u32 s%d, s%d, 14" % (sCNT, sM))
    a.e("s_lshl_b32 s%d, s%d, 16" % (sOLD, sCNT))
    a.e("s_lshl_b32 s%d, s%d, 13" % (sHST, sCNT))
    a.e("s_add_u32 s%d, s%d, s%d" % (sWH, sHST, sWK))
    a.e("s_xor_b32 s%d, s%d, 0x2000" % (sHST, sHST))
    a.e("s_add_u32 s%d, s%d, 0x2000" % (sA, sWK))
    a.e("s_waitcnt lgkmcnt(0)")
    a.stamp(2)
    def xdma(c, base, so):
        a.vmop("s_add_u32 m0, s%d, 0x%x\ns_nop 0\nbuffer_load_dwordx4 %s, %s, s%d offen offset:%d lds"
               % (base, LL_X + c * 16384 - c * 128, v(vDX), srd(SX), so, c * 128), "c%d" % c)
    def wdma(u):
        for t, rs in enumerate((SWKV, SWV)):
            a.vmop("s_add_u32 m0, s%d, 0x%x\ns_nop 0\nbuffer_load_dwordx4 %s, %s, s%d offen lds"
                   % (sWK, LL_W + t * 16384 + u * 8192, v(vL16), srd(rs), sA if u else sWK), "w")
    wdma(0)
    a.vmop("s_mov_b32 m0, s%d\ns_nop 0\nbuffer_load_dwordx4 %s, %s, 0 offen lds" % (sHST, v(vL16), srd(SGATE)), "w")
    for c in range(8):
        if c == 4: wdma(1)
        xdma(c, sWH, sOLD)
        if c in (1, 3, 5): a.e("s_barrier")
    setup_ids(a)
    srd_words(a, [SWQ])
    setup_rd(a)
    a.e("v_lshrrev_b32 v3, 5, v0")
    a.e("v_bfrev_b32 v5, v4")
    a.e("v_lshrrev_b32 v5, 30, v5")
    a.e("s_cmp_ge_u32 s%d, 2" % sLO)
    a.e("s_cselect_b64 vcc, -1, 0")
    a.e("v_cndmask_b32 v4, v5, v4, vcc")
    a.e("v_lshl_add_u32 %s, v3, 3, v2" % v(vWA))
    a.e("v_lshlrev_b32 %s, 5, %s" % (v(vWA), v(vWA)))
    a.e("v_lshl_add_u32 %s, v4, 3, %s" % (v(vWA), v(vWA)))
    a.e("s_lshr_b32 s%d, s%d, 1" % (sA, sLO))
    a.e("s_lshl_b32 s%d, s%d, 14" % (sA, sA))
    a.e("s_add_u32 s%d, s%d, 0x%x" % (sA, sA, LL_W))
    a.e("v_add_u32 %s, s%d, %s" % (v(vWA), sA, v(vWA)))
    a.e("v_lshl_add_u32 %s, v3, 4, s%d" % (v(vWA + 1), sHST))
    a.e("s_and_b32 s%d, s%d, 1" % (sA, sLO))
    a.e("s_lshl_b32 s%d, s%d, 1" % (sB, sCNT))
    a.e("s_add_u32 s%d, s%d, s%d" % (sCNT, sA, sB))
    a.e("s_lshl_b32 s%d, s%d, 12" % (sA, sCNT))
    a.e("v_and_b32 v2, 31, v0")
    a.e("v_lshrrev_b32 v4, 1, v0")
    a.e("v_lshlrev_b32 v5, 1, v0")
    a.e("v_bfi_b32 v4, 4, v4, v5")
    a.e("v_bfi_b32 v4, 12, v4, v2")
    a.e("v_cndmask_b32 v2, v2, v4, vcc")
    a.e("v_bfe_u32 v4, v2, 1, 3")
    a.e("v_xor_b32 v4, v4, v3")
    a.e("v_lshlrev_b32 v4, 4, v4")
    a.e("v_lshl_add_u32 v4, v2, 7, v4")
    a.e("v_add_u32 %s, s%d, v4" % (v(vLX), sA))
    for s in range(1, 4): a.e("v_xor_b32 %s, %d, %s" % (v(vLX + s), 32 * s, v(vLX)))
    for s in range(4): a.e("v_add_u32 %s, 0x10000, %s" % (v(vLX + 4 + s), v(vLX + s)))
    a.e("s_waitcnt lgkmcnt(0)")
    setup_oclr(a)
    vm0 = list(a.vm)
    a.e("s_cmp_lg_u32 s%d, 0" % sHI)
    a.e("s_cbranch_scc1 L_lB")
    a.e("s_not_b64 %s, %s" % (sp(sTMPP), sp(sVM)))
    a.e("s_cmp_ge_u32 s%d, 2" % sLO)
    a.e("s_cbranch_scc1 L_lV")
    def chain(kind):
        a.vm = list(vm0)
        def fr(k):
            b = vFR + 8 * (k % 4)
            return b, b + 4
        def reads(k):
            c, s = divmod(k, 4); x, w = fr(k)
            r = [rd128(x, vLX + s + 4 * (c >> 2), (c & 3) * 16384), rdtr(w, vWA, k * 512), rdtr(w + 2, vWA, k * 512 + 128)]
            if kind == "K":
                r += ["s_mov_b64 exec, %s" % sp(sTMPP), rd128(w, vWA + 1, k * 32), "s_mov_b64 exec, -1"]
            return r
        for q in range(4):
            a.waitvm("c%d" % (2 * q + 1))
            a.e("s_barrier")
            nr = 4 if kind == "K" else 3
            for k in range(8 * q, 8 * q + 2):
                for r in reads(k): a.e(r)
            for k in range(8 * q, 8 * q + 8):
                if k + 2 < 8 * q + 8:
                    for r in reads(k + 2): a.e(r)
                left = min(2, 8 * q + 7 - k)
                a.e("s_waitcnt lgkmcnt(%d)" % (left * nr))
                x, w = fr(k)
                cc = None if k == 0 else vACC
                a.e(mfma(vACC, w, x, cc) if kind == "K" else mfma(vACC, x, w, cc))
        a.e("s_lshl_b32 s%d, s%d, 2" % (sA, sG))
        a.e("s_add_u32 s%d, s%d, s%d" % (sA, sA, sCNT))
        a.e("s_nop 12")
        if kind == "K":
            a.e("s_mov_b32 s%d, 0x%x" % (sC, f2u(0.25 * math.log2(math.e))))
            for i in range(8): a.e("v_mul_f32 %s, s%d, %s" % (v(vACC + i), sC, v(vACC + i)))
            a.e("v_mul_f32 %s, 0x%x, %s" % (v(vACC + 8), f2u(-math.log2(math.e)), v(vACC + 8)))
            a.e("v_exp_f32 %s, %s" % (v(vACC + 8), v(vACC + 8)))
            for i in range(4): a.e("v_cvt_pk_bf16_f32 %s, %s, %s" % (v(vFR + i), v(vACC + 2 * i), v(vACC + 2 * i + 1)))
            a.e("v_add_f32 %s, 1.0, %s" % (v(vACC + 8), v(vACC + 8)))
            a.e("v_rcp_f32 %s, %s" % (v(vACC + 8), v(vACC + 8)))
            a.e("s_add_u32 s%d, s%d, 63" % (sB, sA))
            a.e("s_and_b32 s%d, s%d, 63" % (sB, sB))
            a.e("s_lshl_b32 s%d, s%d, 11" % (sB, sB))
            a.e("buffer_store_dwordx4 %s, %s, %s, s%d offen sc1" % (v(vFR, 4), v(vL16), srd(SKV), sB))
            a.e("s_lshl_b32 s%d, s%d, 7" % (sB, sA))
            a.e("s_add_u32 s%d, s%d, 0x%x" % (sB, sB, WS_G))
            a.e("s_mov_b32 exec_hi, 0")
            a.e("buffer_store_dword %s, %s, %s, s%d offen sc1" % (v(vACC + 8), v(vGA), srd(SWS), sB))
            a.e("s_mov_b64 exec, -1")
        else:
            for i in range(8): a.e("v_cvt_pk_bf16_f32 %s, %s, %s" % (v(vFR + i), v(vACC + 2 * i), v(vACC + 2 * i + 1)))
            a.e("v_bfe_u32 v2, v0, 4, 1")
            a.e("v_add_u32 v2, s%d, v2" % sA)
            a.e("v_and_b32 v2, 63, v2")
            a.e("v_lshl_add_u32 v2, v2, 11, %s" % v(vL16))
            for i in range(4): a.e("v_cndmask_b32 %s, %s, %s, %s" % (v(vFR + i), v(vFR + 4 + i), v(vFR + i), sp(sVM)))
            a.e("buffer_store_dwordx4 %s, v2, %s, 0 offen offset:1024 sc1" % (v(vFR, 4), srd(SKV)))
        a.e("s_branch L_lJ")
    chain("K")
    a.lab("L_lV")
    chain("V")
    a.lab("L_lB")
    a.vm = list(vm0)
    a.e("s_cmp_lg_u32 s%d, 14" % sM)
    a.e("s_cbranch_scc1 L_nozf")
    a.e("s_cmp_lg_u32 s%d, 4" % sW)
    a.e("s_cbranch_scc1 L_nozf")
    a.e("v_lshlrev_b32 v2, 7, v0")
    a.e("s_lshl_b32 s%d, s%d, 11" % (sA, sG))
    a.e("s_add_u32 s%d, s%d, 0x%x" % (sA, sA, WS_HFLAG))
    a.e("s_mov_b64 exec, 0xffff")
    a.e("buffer_store_dword %s, v2, %s, s%d offen sc1" % (v(vZERO), srd(SWS), sA))
    a.e("s_mov_b64 exec, -1")
    a.lab("L_nozf")
    for q in range(4):
        a.waitvm("c%d" % (2 * q + 1))
        a.e("s_barrier")
    a.lab("L_lJ")
    a.e("v_lshrrev_b32 v3, 2, v0")
    a.e("v_lshlrev_b32 v3, 10, v3")
    a.e("v_lshrrev_b32 v4, 5, v0")
    a.e("v_lshlrev_b32 v4, 1, v4")
    a.e("v_xor_b32 v4, v4, v0")
    a.e("v_and_b32 v4, 3, v4")
    a.e("v_lshl_add_u32 v3, v4, 4, v3")
    a.e("s_lshl_b32 s%d, s%d, 14" % (sA, sW))
    a.e("s_lshl_b32 s%d, s%d, 6" % (sB, sHP))
    a.e("s_add_u32 s%d, s%d, s%d" % (sA, sA, sB))
    a.e("v_add_u32 %s, s%d, v3" % (v(vDQ), sA))
    a.e("s_xor_b32 s%d, s%d, 0x2000" % (sWH, sWH))
    a.e("s_xor_b32 s%d, s%d, 0x10000" % (sOLD, sOLD))
    a.wait0(lgkm=True)
    a.e("s_barrier")
    a.e("s_cmp_lg_u32 s%d, 0" % sW)
    a.e("s_cbranch_scc1 L_noat")
    a.e("s_mov_b64 exec, 1")
    a.e("buffer_atomic_add %s, off, %s, 0 sc1" % (v(vONE), srd(SDBG)))
    a.e("s_mov_b64 exec, -1")
    a.lab("L_noat")
    a.stamp(3)
    for c in range(8): xdma(c, sWH, sOLD)
    for p in range(4):
        a.e("s_add_u32 m0, s%d, 0x%x" % (sWK, LL_WQ + p * 8192))
        a.e("s_mov_b32 s%d, 0x%x" % (sA, p * 128 * 1024))
        a.e("buffer_load_dwordx4 %s, %s, s%d offen lds" % (v(vDQ), srd(SWQ), sA))
    setup_ones(a)
    setup_attn(a)
    if Opt.touch & 2:
        a.e("s_lshl_b32 s%d, s%d, 1" % (sA, sG))
        a.e("s_add_u32 s%d, s%d, s%d" % (sA, sA, sM))
        a.e("s_sub_u32 s%d, s%d, 14" % (sA, sA))
        a.e("s_lshl_b32 s%d, s%d, 3" % (sA, sA))
        a.e("s_add_u32 s%d, s%d, s%d" % (sA, sA, sW))
        a.e("v_lshlrev_b32 v2, 15, v0")
        a.e("s_lshl_b32 s%d, s%d, 7" % (sA, sA))
        a.e("buffer_load_dword %s, v2, %s, s%d offen" % (v(vPOLL), srd(SWO), sA))
        a.e("buffer_load_dword %s, v2, %s, s%d offen" % (v(vPOLL), srd(SWD), sA))
    a.e("s_lshl_b32 s%d, s%d, 12" % (sA, sLO))
    a.e("v_add_u32 %s, s%d, %s" % (v(vXA), sA, v(vXA)))
    a.e("v_xor_b32 %s, 64, %s" % (v(vXA + 1), v(vXA)))
    a.e("v_add_u32 %s, 0x10000, %s" % (v(vXA + 2), v(vXA)))
    a.e("v_add_u32 %s, 0x10000, %s" % (v(vXA + 3), v(vXA + 1)))
    a.e("v_add_u32 %s, 0x%x, %s" % (v(vQA), LL_WQ, v(vQA)))
    a.e("s_waitcnt vmcnt(%d)" % (2 if Opt.touch & 2 else 0))
    a.e("s_barrier")
    def fr(k): return vFR + 12 * (k % 3)
    def reads(k):
        c, s = divmod(k, 2); f = fr(k)
        return [rd128(f + 4 * b, vXA + s + 2 * (c >> 2), (c & 3) * 16384 + b * 2048) for b in range(2)] + \
               [rdtr(f + 8, vQA, k * 2048), rdtr(f + 10, vQA, k * 2048 + 256)]
    for k in range(2):
        for r in reads(k): a.e(r)
    for k in range(16):
        a.e("s_waitcnt lgkmcnt(%d)" % (4 * min(1, 15 - k)))
        for b in range(2): a.e(mfma16(vAQ + 4 * b, fr(k) + 8, fr(k) + 4 * b, None if k == 0 else vAQ + 4 * b))
        if k + 2 < 16:
            for r in reads(k + 2): a.e(r)
    spin_counter(a, "kvl", False)
    a.e("s_barrier")
    for s, t in kv_first_loads(a): a.e(s)
    a.wait0()
    a.stamp(4)
    a.e("s_branch L_join")

def gelu_tile(a, ti, scalar=False):
    acc = vACC + 16 * ti
    t = vFR
    o = vFR + 8 + 4 * ti
    pk = lambda r: v(r, 2)
    if scalar:
        for i in range(8): a.e("v_mul_f32 %s, %s, %s" % (v(t + i), v(acc + i), v(acc + i)))
        for i in range(8): a.e("v_fma_f32 %s, %s, %s, %s" % (v(t + i), v(t + i), v(vC0 + 1), v(vC0)))
        for i in range(8): a.e("v_mul_f32 %s, %s, %s" % (v(t + i), v(t + i), v(acc + i)))
        for i in range(8): a.e("v_exp_f32 %s, %s" % (v(t + i), v(t + i)))
        for i in range(8): a.e("v_add_f32 %s, 1.0, %s" % (v(t + i), v(t + i)))
        for i in range(8): a.e("v_rcp_f32 %s, %s" % (v(t + i), v(t + i)))
        for i in range(8): a.e("v_mul_f32 %s, %s, %s" % (v(acc + i), v(acc + i), v(acc + 8 + i)))
        for i in range(8): a.e("v_mul_f32 %s, %s, %s" % (v(acc + i), v(acc + i), v(t + i)))
    R4, R8 = (range(0), range(0)) if scalar else (range(4), range(8))
    for i in R4: a.e("v_pk_mul_f32 %s, %s, %s" % (pk(t + 2 * i), pk(acc + 2 * i), pk(acc + 2 * i)))
    for i in R4: a.e("v_pk_fma_f32 %s, %s, %s, %s op_sel:[0,1,0] op_sel_hi:[1,1,0]" % (pk(t + 2 * i), pk(t + 2 * i), pk(vC0), pk(vC0)))
    for i in R4: a.e("v_pk_mul_f32 %s, %s, %s" % (pk(t + 2 * i), pk(t + 2 * i), pk(acc + 2 * i)))
    for i in R8: a.e("v_exp_f32 %s, %s" % (v(t + i), v(t + i)))
    for i in R4: a.e("v_pk_add_f32 %s, %s, 1.0 op_sel_hi:[1,0]" % (pk(t + 2 * i), pk(t + 2 * i)))
    for i in R8: a.e("v_rcp_f32 %s, %s" % (v(t + i), v(t + i)))
    for i in R4: a.e("v_pk_mul_f32 %s, %s, %s" % (pk(acc + 2 * i), pk(acc + 2 * i), pk(acc + 8 + 2 * i)))
    for i in R4: a.e("v_pk_mul_f32 %s, %s, %s" % (pk(acc + 2 * i), pk(acc + 2 * i), pk(t + 2 * i)))
    for i in range(4): a.e("v_cvt_pk_bf16_f32 %s, %s, %s" % (v(o + i), v(acc + 2 * i), v(acc + 2 * i + 1)))
    a.vmop("buffer_store_dwordx4 %s, %s, %s, s%d offen offset:%d sc1" % (v(o, 4), v(vHA), srd(SWS), sHST2 if ti >> 1 else sHST, (ti & 1) * 256), "hst")

def Yseg(hset, toggle=False):
    out = []
    for t in range(2):
        extra = False and hset < 2 and t == Opt.xtile
        pos = [int(x, 17) for x in (Opt.ypos0 if hset is None else Opt.ypos2 if extra else Opt.ypos1)]
        S, Sn = vS + 16 * t, vS + 16 * (1 - t)
        K, V0, V1 = vKF + 4 * t, vV + 8 * t, vV + 8 * t + 4
        for e in range(1, 17):
            out.append("v_exp_f32 %s, %s" % (v(S + e - 1), v(S + e - 1)))
            if e == pos[0]: out.append(smfmac(vO, V1, Sn + 8))
            if e == pos[1]: out.append(mfma(Sn, K, vQ, None))
            if e == pos[2]: out.append(smfmac(vO, V0, S))
            if hset is not None:
                if e == 13 and t == 1 and toggle:
                    out.append("v_xor_b32 %s, 0x4000, %s" % (v(vKVB), v(vKVB)))
                if e == pos[3]: out.append(mfma(vD + 16 * t, vWF + 4 * t, vH + 4 * hset, vD + 16 * t))
                if extra and e == pos[4]: out.append(mfma(vD + 16 * hset, vWX + 4 * hset, vH + 16, vD + 16 * hset))
    return out

def kv_reads(off, vKVA=vKVA):
    r = [rd128(vKF, vKVA, off), rd128(vKF + 4, vKVA, off + 2048), "s_mov_b64 exec, %s" % sp(sVM)]
    for t in range(2):
        r += [rd128(vV + 8 * t, vKVA, off + 2048 * t + 1024), rd128(vV + 8 * t + 4, vKVA, off + 2048 * t + 1280)]
    r.append("s_mov_b64 exec, -1")
    return r
def wd_reads(dst, addr, off):
    r = []
    for c in range(2):
        r += [rdtr(dst + 4 * c, addr, off + 512 * c), rdtr(dst + 4 * c + 2, addr, off + 512 * c + 1024)]
    return r

def hord(): return [0, 2, 4, 6, 1, 3, 5, 7] if Opt.hord else list(range(8))
def wdrow(sg): return (32 * (sg >> 1) + 8 * (sg & 1)) * 1024

def attention(a, role, pre0=None):
    A = role == "A"
    def kvdma(u):
        a.vmop("s_add_u32 m0, s%d, 0x%x\ns_add_u32 s%d, s%d, 0x%x\nbuffer_load_dwordx4 %s, %s, s%d offen sc1 lds"
               % (sWK, L_KV + (u % 4) * 8192, sA, sWK, u * 8192, v(vL16), srd(SKV), sA), "kv%d" % u)
    def wddma(sg):
        a.vmop("s_add_u32 m0, s%d, 0x%x\ns_add_u32 s%d, s%d, 0x%x\nbuffer_load_dwordx4 %s, %s, s%d offen lds"
               % (sWK, L_WD + (sg % 4 if sg < 23 or sg == 27 else sg - 19) * 8192, sA, sWDOFF, wdrow(sg), v(vWDV), srd(SWD), sA), "wd%d" % sg)
    def wodma(j):
        a.vmop("s_add_u32 m0, s%d, 0x%x\ns_add_u32 s%d, s%d, 0x%x\nbuffer_load_dwordx4 %s, %s, s%d offen lds"
               % (sWK, L_WO + j * 8192, sA, sB, j * 16384, v(vWDV), srd(SWO), sA), "wo")
    def hload(sg, dst):
        a.vmop("s_add_u32 s%d, s%d, 0x%x\nbuffer_load_dwordx4 %s, %s, %s, s%d offen sc1"
               % (sA, sHOFF, sg * 1024, v(dst, 4), v(vL16), srd(SWS), sA), "h%d" % sg)
    for n in range(12):
        if not A and n == 0: a.e("s_barrier")
        if n % 2 == 1: astamp(a, 2 + n // 2)
        tags = []
        if A and n % 2 == 1: tags.append("kv%d" % ((n + 1) // 2))
        if not A and n % 2 == 0: tags.append("kv%d" % ((n + 2) // 2))
        if n == (3 if A else 2): tags.append("hst")
        if n == 6: tags.append("wo")
        if n == 9: tags.append("wd27")
        if n == 11: tags.append("wd0")
        if n == 9 and A:
            a.e("s_cmp_lg_u32 s%d, 0" % sW)
            a.e("s_cbranch_scc1 L_hf_done")
            a.e("s_mov_b32 s%d, 0x4000" % sB)
            a.e("s_waitcnt vmcnt(0)")
            a.lab("L_hf_chk")
            a.e("v_cmp_ne_u32 vcc, 1, %s" % v(vPOLL))
            a.e("s_cbranch_vccz L_hf_done")
            a.e("s_sleep 2")
            a.e("buffer_load_dword %s, %s, %s, 0 offen sc1" % (v(vPOLL), v(vFLA), srd(SWS)))
            a.e("s_sub_u32 s%d, s%d, 1" % (sB, sB))
            a.e("s_cmp_lg_u32 s%d, 0" % sB)
            a.e("s_waitcnt vmcnt(0)")
            a.e("s_cbranch_scc1 L_hf_chk")
            a.lab("L_hf_done")
        a.waitvm(tags)
        if n == 5 and Opt.diag == 3 and A:
            a.e("v_mov_b32 v2, s%d" % sSTAMP)
            a.e("s_lshl_b32 s%d, s2, 3" % sA)
            a.e("s_add_u32 s%d, s%d, s%d" % (sA, sA, sW))
            a.e("s_lshl_b32 s%d, s%d, 7" % (sA, sA))
            a.e("s_add_u32 s%d, s%d, 0x%x" % (sA, sA, WS_STAMP))
            a.e("s_mov_b64 exec, 1")
            a.vmop("buffer_store_dword v2, off, %s, s%d offset:12 sc1" % (srd(SWS), sA), "st")
            a.e("s_mov_b64 exec, -1")
        if n == 3 and not A:
            a.e("s_cmp_ge_u32 s%d, 14" % sM)
            a.e("s_cbranch_scc1 L_nohf")
            a.e("s_cmp_lg_u32 s%d, 4" % sW)
            a.e("s_cbranch_scc1 L_nohf")
            a.e("s_lshl_b32 s%d, s%d, 4" % (sA, sG))
            a.e("s_add_u32 s%d, s%d, s%d" % (sA, sA, sM))
            a.e("s_lshl_b32 s%d, s%d, 7" % (sA, sA))
            a.e("s_add_u32 s%d, s%d, 0x%x" % (sA, sA, WS_HFLAG))
            a.e("s_mov_b64 exec, 1")
            a.e("buffer_store_dword %s, off, %s, s%d sc1" % (v(vONE), srd(SWS), sA))
            a.e("s_mov_b64 exec, -1")
            a.lab("L_nohf")
        for r in kv_reads((n % 8) * 4096): a.e(r)
        if n == 8 and A:
            a.e("s_cmp_lg_u32 s%d, 0" % sW)
            a.e("s_cbranch_scc1 L_hf_nol")
            a.e("buffer_load_dword %s, %s, %s, 0 offen sc1" % (v(vPOLL), v(vFLA), srd(SWS)))
            a.lab("L_hf_nol")
        if n == 0:
            kvdma(2); kvdma(3)
            a.e("s_mov_b32 s%d, s%d" % (sC, sKQ))
            a.e("s_mul_i32 s%d, s%d, %d" % (sWDOFF, sC, 448 * 1024))
            a.e("s_and_b32 s%d, s%d, 1" % (sB, sW))
            a.e("s_lshl_b32 s%d, s%d, 14" % (sA, sB))
            a.e("s_add_u32 s%d, s%d, s%d" % (sWDOFF, sWDOFF, sA))
            a.e("s_lshl_b32 s%d, s%d, 1" % (sA, sT))
            a.e("s_add_u32 s%d, s%d, s%d" % (sA, sA, sB))
            a.e("s_mul_i32 s%d, s%d, 112" % (sA, sA))
            a.e("s_mul_i32 s%d, s%d, 28" % (sB, sC))
            a.e("s_add_u32 s%d, s%d, s%d" % (sA, sA, sB))
            a.e("s_lshl_b32 s%d, s%d, 10" % (sA, sA))
            a.e("s_add_u32 s%d, s%d, 0x%x" % (sHOFF, sA, WS_HF))
        if (A and n % 2 == 1 and n >= 3): kvdma((n + 5) // 2)
        if (not A and n % 2 == 0 and n >= 2): kvdma((n + 6) // 2)
        if 1 <= n <= 4:
            a.e("s_lshl_b32 s%d, s%d, 17" % (sB, sKQ))
            a.e("s_and_b32 s%d, s%d, 1" % (sC, sW))
            a.e("s_lshl_b32 s%d, s%d, 13" % (sC, sC))
            a.e("s_add_u32 s%d, s%d, s%d" % (sB, sB, sC))
            for j in (2 * n - 2, 2 * n - 1): wodma(j)
        for sg in {5: (27, 23, 24), 6: (25, 26, 0), 7: (1, 2)}.get(n, ()): wddma(sg)
        if n == 10:
            for r in wd_reads(vWX, vWDA, 3 * 8192): a.e(r)
        for j in ({7: (0,), 8: (1, 2), 9: (3, 4)} if A else {7: (0, 1), 8: (2, 3), 9: (4,)}).get(n, ()):
            for r in wd_reads(WOF[j], vWOA, hord()[j] * 8192): a.e(r)
        hs = {10: (0, 1, 23, 24), 11: (2, 25, 26, 27)} if A else {9: (0, 1, 23), 10: (2, 24), 11: (25, 26, 27)}
        for sg in hs.get(n, ()): hload(sg, vH + 4 * sg if sg < 4 else vHX if sg == 27 else vH + 4 * (sg - 19))
        if n == 11:
            a.e("s_add_u32 s%d, s%d, 0x%x" % (sHOFF, sHOFF, 3 * 1024))
            a.e("s_add_u32 s%d, s%d, 0x%x" % (sWDOFF, sWDOFF, wdrow(3)))
            a.e("s_add_u32 s%d, s%d, 0x%x" % (sKVOFF, sWK, 9 * 8192))
            a.e("s_mov_b32 s%d, 5" % sCNT)
            a.e("s_add_u32 s%d, s%d, 0x1000" % (sOLD2, sOLD))
            a.e("s_mov_b32 s%d, 0x%x" % (sLO_, f2u(2.0 ** -16)))
            a.e("s_mov_b32 s%d, 0x%x" % (sRNG, f2u(2.0 ** 100) - f2u(2.0 ** -16)))
        if n == 0 and pre0:
            pre0()
            a.stamp(5)
        a.e("s_waitcnt lgkmcnt(0)")
        a.e("s_call_b64 %s, L_Y%s" % (sp(sRET), role))
        if n == 0:
            a.e("s_branch L_X1%s" % role)
            a.lab("L_Y%s" % role)
            if A: a.e("s_barrier")
            for x in Yseg(None): a.e(x)
            if not A: a.e("s_barrier")
            a.e("s_setpc_b64 %s" % sp(sRET))
            a.lab("L_X1%s" % role)
    vm = list(a.vm); need = [63] * 4
    for n in range(12, 32):
        p, it = n % 4, (n - 12) // 4
        tags = ["wd%d" % (n - 11), "h%d" % (n - 12)]
        if (p % 2 == 1) == A: tags.append("kv%d" % ((n + (1 if A else 2)) // 2))
        idx = [i for i, t in enumerate(vm) if t in tags]
        if idx: need[p] = min(need[p], len(vm) - 1 - max(idx))
        vm.append("wd%d" % (n - 9))
        vm.append("h%d" % (n - 9))
        if (p % 2 == 1) == A: vm.append("kv%d" % ((n + (5 if A else 6)) // 2))
    a.lab("L_loop%s" % role)
    for p in range(4):
        if p == 0 and Opt.diag and Opt.kdiag == 2:
            a.e("s_cmp_lg_u32 s%d, 4" % sCNT)
            a.e("s_cbranch_scc1 L_nst%s" % role)
            astamp(a, 8)
            a.lab("L_nst%s" % role)
        a.e("s_waitcnt vmcnt(%d)" % need[p])
        for r in kv_reads(p * 4096, vKVB): a.e(r)
        for r in wd_reads(vWF, vWDA, p * 8192): a.e(r)
        a.e("s_add_u32 m0, s%d, 0x%x" % (sWK, L_WD + ((p + 3) % 4) * 8192))
        a.e("s_and_b32 s%d, s%d, 0x7fff" % (sA, sKVOFF))
        a.e("buffer_load_dwordx4 %s, %s, s%d offen lds" % (v(vWDV), srd(SWD), sWDOFF))
        a.e("s_add_u32 s%d, s%d, 0x%x" % (sWDOFF, sWDOFF, 0x2000 if p & 1 else 0x6000))
        a.e("buffer_load_dwordx4 %s, %s, %s, s%d offen sc1" % (v(vH + 4 * ((p + 3) % 4), 4), v(vL16), srd(SWS), sHOFF))
        if (p % 2 == 1) == A:
            a.e("s_add_u32 m0, s%d, 0x%x" % (sA, L_KV))
        a.e("s_add_u32 s%d, s%d, 0x400" % (sHOFF, sHOFF))
        if (p % 2 == 1) == A:
            a.e("buffer_load_dwordx4 %s, %s, s%d offen sc1 lds" % (v(vL16), srd(SKV), sKVOFF))
            a.e("s_add_u32 s%d, s%d, 0x2000" % (sKVOFF, sKVOFF))
        if p == 3:
            a.e("s_sub_u32 s%d, s%d, 1" % (sCNT, sCNT))
            a.e("s_cmp_lg_u32 s%d, 0" % sCNT)
        a.e("s_waitcnt lgkmcnt(0)")
        if A: a.e("s_barrier")
        for x in Yseg(p, toggle=(p == 3)): a.e(x)
        if not A:
            if p == 3: a.e("s_cbranch_scc0 L_tail")
            a.e("s_barrier")
    a.e(("s_cbranch_scc1 L_loop%s" if A else "s_branch L_loop%s") % role)

def transition(a, role):
    A = role == "A"
    if A:
        a.vm = []
        a.lab("L_trA")
    else:
        a.lab("L_join")
        a.e("s_cmp_eq_u32 s%d, 0" % sHI)
        a.e("s_cbranch_scc1 L_trA")
        a.vmjoin = list(a.vm)
    def qfin():
        for i in range(4): a.e("v_cvt_pk_bf16_f32 %s, %s, %s" % (v(vQ + i), v(vAQ + 2 * i), v(vAQ + 2 * i + 1)))
        for i in range(8): a.e("v_mov_b32 %s, 0" % v(vS + 24 + i))
        a.e("v_add_u32 %s, 0x%x, %s" % (v(vWOA), L_WO, v(vWDA)))
        a.e("v_permlane16_swap_b32 %s, %s" % (v(vQ), v(vQ + 2)))
        a.e("v_permlane16_swap_b32 %s, %s" % (v(vQ + 1), v(vQ + 3)))
    pre0 = None
    if A:
        a.e("s_setprio 1")
        a.e("s_cmp_ge_u32 s%d, 14" % sM)
        a.e("s_cbranch_scc1 L_nogA0")
        put(a, a.kvA[:1] + a.kvA[-1:])
        a.l.append(".p2align 3")
        for ti in range(Opt.gsc): gelu_tile(a, ti, True)
        a.lab("L_nogA0")
        qfin()
        a.waitvm(["k0", "kv0", "kv1"])
        a.e("s_setprio 0")
        a.e("s_barrier")
        a.e(mfma(vS, vK0, vQ, None))
        put(a, a.kvA[1:-1])
        def pre0():
            a.e("s_cmp_lt_u32 s%d, 14" % sM)
            a.e("s_cbranch_scc1 L_gA1")
            a.e("s_waitcnt vmcnt(0)")
            a.e("s_branch L_nogA1")
            a.l.append(".p2align 3")
            a.lab("L_gA1")
            for ti in range(Opt.gsc, 4): gelu_tile(a, ti)
            a.lab("L_nogA1")
            a.e("s_setprio 2")
    else:
        a.waitvm(["k0", "kv0", "kv1"])
        a.e("s_setprio 1")
        a.e("s_cmp_ge_u32 s%d, 14" % sM)
        a.l.append(".p2align 3")
        a.e("s_barrier")
        a.e("s_cbranch_scc1 L_nogB")
        for ti in range(4): gelu_tile(a, ti)
        a.lab("L_nogB")
        qfin()
        a.e("s_nop 1")
        a.e(mfma(vS, vK0, vQ, None))
        a.stamp(5)
    attention(a, role, pre0)
    if A:
        a.stamp(6); astamp(a, 9); tstamp(a, 2)
        if Opt.diag and Opt.kdiag == 2: a.e("s_waitcnt lgkmcnt(0)")
        a.e(smfmac(vO, vV1L, vS + 24))
        a.e("s_setprio 0")
        a.e("s_cmp_eq_u32 s%d, 0" % sHI)
        a.e("s_nop 9")
        normalise(a, False)
        a.lab("L_fbretA")
        a.e("buffer_store_dwordx4 %s, %s, %s, s%d offen sc1" % (v(vPK, 4), v(vL16), srd(SWS), sOST))
        tstamp(a, 3)
        a.e("s_waitcnt vmcnt(1)")
        tstamp(a, 4)
        a.e("s_barrier")
        a.fetch(a, False)
        a.e("s_branch L_tl2")

def normalise(a, packed):
    t = vT0
    a.e("v_rcp_f32 %s, %s" % (v(t + 2), v(vO + 8)))
    a.e("s_nop 0")
    a.e("v_mul_f32_e64 %s, %s, %s" % (v(t + 2), v(t + 2), v(vGP)))
    if packed:
        for i in range(4): a.e("v_pk_mul_f32 %s, %s, %s op_sel_hi:[1,0]" % (v(vO + 2 * i, 2), v(vO + 2 * i, 2), v(t + 2, 2)))
        for i in range(4):
            a.e("v_pk_fma_f32 %s, %s, 0, %s op_sel_hi:[1,0,%d]" % (v(t, 2), v(vO + 2 * i, 2), v(t, 2) if i else v(vO + 8, 2), 1 if i else 0))
            a.e("v_cvt_pk_bf16_f32 %s, %s, %s" % (v(vPK + i), v(vO + 2 * i), v(vO + 2 * i + 1)))
        a.e("v_fmac_f32 %s, 0, %s" % (v(t), v(t + 1)))
    else:
        t = vO + 8
        for i in range(8): a.e("v_mul_f32 %s, %s, %s" % (v(vO + i), v(vT0 + 2), v(vO + i)))
        for i in range(4):
            a.e("v_fmac_f32 %s, 0, %s" % (v(t), v(vO + 2 * i)))
            a.e("v_cvt_pk_bf16_f32 %s, %s, %s" % (v(vPK + i), v(vO + 2 * i), v(vO + 2 * i + 1)))
            a.e("v_fmac_f32 %s, 0, %s" % (v(t), v(vO + 2 * i + 1)))
    a.e("v_subrev_u32 %s, s%d, %s" % (v(t), sLO_, v(t)))
    a.e("v_cmp_lt_u32 vcc, s%d, %s" % (sRNG, v(t)))
    a.e("s_branch L_fb" if Opt.force_fb else "s_cbranch_vccnz L_fb")

def tail(a):
    a.l.append(".p2align 3")
    a.lab("L_tail")
    a.stamp(6)
    astamp(a, 9)
    if Opt.diag and Opt.kdiag == 2: a.e("s_waitcnt lgkmcnt(0)")
    tstamp(a, 2)
    a.e(smfmac(vO, vV1L, vS + 24))
    wf = [vFR, vFR + 8, vFR + 16]
    HORD = hord()
    def oload(j):
        return "buffer_load_dwordx4 %s, %s, %s, s%d offen offset:%d %s" % (
            v(vS + 4 * j, 4), v(vL16), srd(SWS), sOLD if HORD[j] < 4 else sOLD2, (HORD[j] % 4) * 1024, Opt.old_pol)
    a.oload = oload
    a.e("s_cmp_eq_u32 s%d, 0" % sHI)
    a.e("s_nop 10")
    normalise(a, True)
    a.lab("L_fbret")
    a.e("buffer_store_dwordx4 %s, %s, %s, s%d offen sc1" % (v(vPK, 4), v(vL16), srd(SWS), sOST))
    tstamp(a, 3)
    aw = [vAW0, vWOA + 1, vWOA + 2, vWOA + 3]
    ar = [vAR0, vFLA]
    wo = WOF
    def fetch(o, scale):
        for j in range(8):
            o.e(oload(j))
            if j >= 5:
                for r in wd_reads(wo[j], vWOA, HORD[j] * 8192): o.e(r)
            if scale and j >= 4:
                for i in range(4 * j - 16, 4 * j - 12): o.e("v_mul_f32 %s, %s, %s" % (v(vD + i), v(vGC), v(vD + i)))
    def addrs(a):
        a.e("v_sub_f32 %s, 1.0, %s" % (v(vGC), v(vGC)))
        for j in range(1, 4): a.e("v_xor_b32 %s, %d, %s" % (v(aw[j]), 32 * j, v(aw[0])))
        a.e("v_xor_b32 %s, 16, %s" % (v(ar[1]), v(ar[0])))
        a.e("s_mov_b32 s%d, 0x2000" % sB)
    ol = Asm(); a.ool2 = ol.l
    a.e("s_waitcnt vmcnt(1)")
    tstamp(a, 4)
    a.e("s_barrier")
    a.lab("L_tl2")
    tstamp(a, 5)
    a.fetch = fetch
    fl = collect(addrs)
    slot = [4, 5, 6, 7, 0, 1, 2]
    rds = sum((wd_reads(wf[i % 3], vWDA, slot[i] * 8192) for i in range(7)), [])
    for r in rds[:4]: a.e(r)
    done = 4
    for i in range(-1, 7):
        for c in range(2):
            if i >= 0: a.e("s_waitcnt lgkmcnt(%d)" % (done - (4 * i + 2 * c + 2)))
            a.e(mfma(vD + 16 * c, vWX + 4 * c, vHX, vD + 16 * c) if i < 0 else
                mfma(vD + 16 * c, wf[i % 3] + 4 * c, vH + 4 * slot[i], vD + 16 * c))
            if done < len(rds):
                for r in rds[done:done + 2]: a.e(r)
                done += 2
            else:
                put(a, fl[:2]); fl = fl[2:]
    assert not fl
    tstamp(a, 6)
    a.e("s_cbranch_scc0 L_tl3")
    a.l.append(".p2align 3")
    a.e("s_nop 7")
    a.e("s_nop 0")
    for i in range(16): a.e("v_pk_mul_f32 %s, %s, %s op_sel:[0,1] op_sel_hi:[1,1]" % (v(vD + 2 * i, 2), v(vD + 2 * i, 2), v(vGP, 2)))
    tstamp(a, 7)
    a.e("s_barrier")
    a.lab("L_tl4")
    tstamp(a, 8)
    ol.lab("L_tl3")
    ol.e("s_setprio 0")
    fetch(ol, False)
    tstamp(ol, 7)
    ol.e("s_barrier")
    for i in range(32): ol.e("v_mul_f32 %s, %s, %s" % (v(vD + i), v(vGC), v(vD + i)))
    ol.e("s_waitcnt lgkmcnt(0)")
    ol.e("s_branch L_tl4")
    a.stamp(7)
    def check(j):
        o = vS + 4 * j
        return ["s_waitcnt vmcnt(%d)" % (7 - j), "v_max3_u32 v2, %s, %s, %s" % (v(o), v(o + 1), v(o + 2)),
                "v_max_u32 v2, v2, %s" % v(o + 3), "v_cmp_eq_u32 vcc, -1, v2"]
    a.check = check
    for x in check(0): a.e(x)
    for j in range(10):
        if j < 8:
            a.e("s_cbranch_vccnz L_ore%d" % j)
            a.lab("L_ook%d" % j)
            a.e(mfma(vD, wo[j], vS + 4 * j, vD))
        if j >= 2 and Opt.cfirst: a.e(mfma(vD + 16, wo[j - 2] + 4, vS + 4 * (j - 2), vD + 16))
        if j < 7:
            for x in check(j + 1): a.e(x)
        if j >= 2 and not Opt.cfirst: a.e(mfma(vD + 16, wo[j - 2] + 4, vS + 4 * (j - 2), vD + 16))
        if j in (7, 8): a.e("s_nop 4")
    wr = lambda c, j: "ds_write_b128 %s, %s offset:%d" % (v(aw[j]), v(vD + 16 * c + 4 * j, 4), 128 * c)
    a.stamp(8)
    tstamp(a, 9)
    for j in range(4): a.e(wr(0, j))
    a.e("s_nop 7")
    for j in range(4): a.e(wr(1, j))
    a.e("s_waitcnt lgkmcnt(0)")
    a.e("s_barrier")
    for p in range(4):
        for h in range(2): a.e(rd128(vS + 8 * p + 4 * h, ar[h], p * 8192))
    for p in range(1, 4):
        a.e("s_waitcnt lgkmcnt(%d)" % (6 - 2 * p))
        for i in range(4): a.e("v_pk_add_f32 %s, %s, %s" % (v(vS + 2 * i, 2), v(vS + 2 * i, 2), v(vS + 8 * p + 2 * i, 2)))
    for i in range(4): a.e("v_cvt_pk_bf16_f32 %s, %s, %s" % (v(vP + i), v(vS + 2 * i), v(vS + 2 * i + 1)))
    a.e("buffer_store_dwordx4 %s, %s, %s, s%d offen %s" % (v(vP, 4), v(vOUTA), srd(SOUT), sOUTO, Opt.out_pol))
    if Opt.probe >= 0:
        a.e("s_waitcnt vmcnt(0)")
        a.stamp(9)
        if Opt.probe != 9:
            a.e("s_cmp_ge_u32 s%d, 14" % sM)
            a.e("s_cbranch_scc%d L_end" % (0 if Opt.probe_l else 1))
        a.e("s_sub_u32 s%d, s%d, s%d" % (sA, sSTAMP + 4, sSTAMP))
        a.e("s_mul_i32 s%d, s%d, %d" % (sA, sA, Opt.probe_mul - 1))
        a.e("s_min_u32 s%d, s%d, 100000" % (sA, sA))
        a.e("s_add_u32 s%d, s%d, 3800" % (sA, sA))
        if Opt.probe_r >= 0:
            a.e("s_cmp_eq_u32 s%d, 0x2000" % sB)
            a.e("s_cbranch_scc%d L_end" % Opt.probe_r)
        if Opt.probe_w >= 0:
            a.e("s_cmp_lg_u32 s%d, %d" % (sHI, Opt.probe_w))
            a.e("s_cbranch_scc1 L_end")
        if Opt.probe_x >= 0:
            a.e("s_and_b32 s0, s2, 7")
            a.e("s_cmp_lg_u32 s0, %d" % Opt.probe_x)
            a.e("s_cbranch_scc1 L_end")
        a.lab("L_probe")
        a.e("s_memrealtime s[0:1]")
        a.e("s_waitcnt lgkmcnt(0)")
        a.e("s_sub_u32 s0, s0, s%d" % (sSTAMP + 4))
        a.e("s_cmp_lt_u32 s0, s%d" % sA)
        a.e("s_cbranch_scc1 L_probe")
    if Opt.pin == 9:
        a.e("s_waitcnt vmcnt(0)")
        a.stamp(9)
    if Opt.diag in (1, 2):
        a.e("s_waitcnt vmcnt(0)")
        a.stamp(9)
        a.e("s_mov_b32 s%d, s%d" % (sSTAMP + 3, sSTAMP))
        a.e("s_mov_b32 s%d, s%d" % (sSTAMP, sB))
        a.e("s_getreg_b32 s%d, hwreg(HW_REG_XCC_ID)" % (sSTAMP + 1))
        for i in range(20): a.e("v_mov_b32 %s, s%d" % (v(vS + i), sSTAMP + i))
        a.e("s_lshl_b32 s%d, s2, 3" % sA)
        a.e("s_add_u32 s%d, s%d, s%d" % (sA, sA, sW))
        a.e("s_lshl_b32 s%d, s%d, 7" % (sA, sA))
        a.e("s_add_u32 s%d, s%d, 0x%x" % (sA, sA, WS_STAMP))
        a.e("s_mov_b64 exec, 1")
        for i in range(5): a.e("buffer_store_dwordx4 %s, off, %s, s%d offset:%d" % (v(vS + 4 * i, 4), srd(SWS), sA, 16 * i))
    a.lab("L_end")
    a.e("s_endpgm")
    a.l += a.ool2
    for j in range(8):
        a.lab("L_ore%d" % j)
        a.e("s_sub_u32 s%d, s%d, 1" % (sB, sB))
        a.e("s_cbranch_scc1 L_ogive%d" % j)
        a.e("s_waitcnt vmcnt(0)")
        for i in range(j, 8): a.e(a.oload(i))
        for x in a.check(j): a.e(x)
        a.e("s_cbranch_vccnz L_ore%d" % j)
        a.e("s_branch L_ook%d" % j)
        a.lab("L_ogive%d" % j)
        a.e("s_mov_b32 s%d, 0" % sB)
        a.e("s_branch L_ook%d" % j)

def fallback(a):
    a.lab("L_fb")
    m = vT0
    a.e("v_mov_b32 %s, 0xff800000" % v(m))
    a.e("s_mov_b32 s%d, 0" % sA)
    a.lab("L_fb1")
    a.e("buffer_load_dwordx4 %s, %s, %s, s%d offen sc1" % (v(vKF, 4), v(vL16), srd(SKV), sA))
    a.e("s_waitcnt vmcnt(0)")
    a.e(mfma(vS, vKF, vQ, None))
    a.e("s_add_u32 s%d, s%d, 2048" % (sA, sA))
    a.e("s_nop 11")
    for i in range(8): a.e("v_max3_f32 %s, %s, %s, %s" % (v(m), v(m), v(vS + 2 * i), v(vS + 2 * i + 1)))
    a.e("s_cmp_lt_u32 s%d, 0x20000" % sA)
    a.e("s_cbranch_scc1 L_fb1")
    a.e("v_mov_b32 %s, %s" % (v(m + 1), v(m)))
    a.e("s_nop 1")
    a.e("v_permlane32_swap_b32 %s, %s" % (v(m), v(m + 1)))
    a.e("s_nop 1")
    a.e("v_max_f32 %s, %s, %s" % (v(m), v(m), v(m + 1)))
    for i in range(16): a.e("v_sub_f32 %s, 0, %s" % (v(vS + 16 + i), v(m)))
    for i in range(16): a.e("v_mov_b32 %s, 0" % v(vO + i))
    a.e("s_mov_b32 s%d, 0" % sA)
    a.lab("L_fb2")
    a.e("s_add_u32 s%d, s%d, 0x%x" % (sB, sA, 63 * 2048))
    a.e("s_and_b32 s%d, s%d, 0x1ffff" % (sB, sB))
    a.e("buffer_load_dwordx4 %s, %s, %s, s%d offen sc1" % (v(vKF, 4), v(vL16), srd(SKV), sB))
    a.e("s_add_u32 s%d, s%d, 2048" % (sB, sA))
    a.e("s_and_b32 s%d, s%d, 0x1ffff" % (sB, sB))
    a.e("s_mov_b64 exec, %s" % sp(sVM))
    a.e("buffer_load_dwordx4 %s, %s, %s, s%d offen offset:1024 sc1" % (v(vV, 4), v(vL16), srd(SKV), sA))
    a.e("buffer_load_dwordx4 %s, %s, %s, s%d offen offset:1280 sc1" % (v(vV + 4, 4), v(vL16), srd(SKV), sB))
    a.e("s_mov_b64 exec, -1")
    a.e("s_waitcnt vmcnt(0)")
    a.e(mfma(vS, vKF, vQ, vS + 16))
    a.e("s_add_u32 s%d, s%d, 2048" % (sA, sA))
    a.e("s_nop 11")
    for i in range(16): a.e("v_exp_f32 %s, %s" % (v(vS + i), v(vS + i)))
    a.e("s_nop 2")
    a.e(smfmac(vO, vV, vS))
    a.e(smfmac(vO, vV + 4, vS + 8))
    a.e("s_cmp_lt_u32 s%d, 0x20000" % sA)
    a.e("s_cbranch_scc1 L_fb2")
    a.e("s_nop 11")
    a.e("v_rcp_f32 %s, %s" % (v(vT0 + 2), v(vO + 8)))
    a.e("s_cmp_eq_u32 s%d, 0" % sHI)
    a.e("v_mul_f32 %s, %s, %s" % (v(vT0 + 2), v(vT0 + 2), v(vGP)))
    for i in range(8): a.e("v_mul_f32 %s, %s, %s" % (v(vO + i), v(vT0 + 2), v(vO + i)))
    for i in range(4): a.e("v_cvt_pk_bf16_f32 %s, %s, %s" % (v(vPK + i), v(vO + 2 * i), v(vO + 2 * i + 1)))
    for i in range(4): a.e("v_min_u32 %s, -2, %s" % (v(vPK + i), v(vPK + i)))
    a.e("s_cbranch_scc1 L_fbretA")
    a.e("s_branch L_fbret")

def build():
    a = Asm()
    prologue(a)
    phase1_F(a)
    transition(a, "B")
    tail(a)
    a.l += a.ool
    transition(a, "A")
    phase1_L(a)
    fallback(a)
    a.lab("L_codeend")
    for i, x in enumerate(a.l):
        if " sc1" in x and "sc0" not in x and ((Opt.allsc & 1 and "buffer_store" in x) or (Opt.allsc & 2 and "buffer_load" in x)):
            a.l[i] = x.replace(" sc1", " sc0 sc1")
    il = a.l.index("L_light:")
    for i, x in enumerate(a.l):
        if x.endswith(" lds") and "sc1" not in x and " nt" not in x:
            if (Opt.ntx & 4 and (srd(SWD) in x or srd(SWO) in x)) or (Opt.ntx & 8 and i > il):
                a.l[i] = x[:-4] + " nt lds"
    head = open("cdna_kernels/%s.s.ref" % NAME).read().split("\n")
    hdr = [l for l in head if l.startswith(";") and "@launch" not in l and "Override" not in l and "grid=" not in l]
    out = hdr + ["; @launch grid=(256,1,1) block=(512,1,1) lds=%d" % LDS_BYTES,
                 '.amdgcn_target "amdgcn-amd-amdhsa--gfx950"', ".text", ".globl %s_kernel" % NAME, ".p2align 8",
                 ".type %s_kernel,@function" % NAME,
                 ".set CODE_PF_MAX, L_codeend - L_nopf - 4" if Opt.code_pf else "",
                 "%s_kernel:" % NAME]
    out += ["; " + x for x in """One persistent launch, one workgroup per CU (generated by a script), 8 waves = two quartets that alternate on each SIMD.
Stage 1: 14 of every 16 workgroups compute gelu(x Wg) * (x Wu) for 128 tokens x 128 columns plus Q for two heads;
         the other two compute K, V and the mixing gate, publish them (counter in d_debug) and then their own Q.
Stage 2: attention for 128 tokens x 2 heads over all keys, S^T = K Q^T, exp2 in place, P V through sparse MFMAs that
         read the high halves of the fp32 probabilities; a row of ones in the V operand gives the row sums.
         The stand-in maximum is 0: it is accepted only if the row sum lies in [2^-16, 2^100] and every accumulator is
         finite, otherwise the wave redoes its rows with the true maximum (L_fb).
         The down projection of a 64 x 64 output tile runs in the same loop once the producers' flags are seen.
Stage 3: attention outputs are handed over through d_ws (cleared to a mark earlier in this launch), projected,
         mixed with the FFN branch, reduced through LDS and stored.""".split("\n")]
    out += a.l
    out += ['.section .rodata,"a"', ".p2align 6", ".amdhsa_kernel %s_kernel" % NAME,
            "  .amdhsa_next_free_vgpr %d" % NV, "  .amdhsa_next_free_sgpr 102", "  .amdhsa_accum_offset 256",
            "  .amdhsa_group_segment_fixed_size 0", "  .amdhsa_kernarg_size 104", "  .amdhsa_user_sgpr_count 2",
            "  .amdhsa_user_sgpr_kernarg_segment_ptr 1", "  .amdhsa_system_sgpr_workgroup_id_x 1", ".end_amdhsa_kernel", ""]
    return "\n".join(out)

if __name__ == "__main__":
    path = sys.argv[1]
    for kv in sys.argv[2:]:
        k, val = kv.split("=")
        cur = getattr(Opt, k)
        setattr(Opt, k, val if isinstance(cur, str) else type(cur)(int(val)))
    open(path, "w").write(build())
```

```python
import sys, struct, math

NAME = "gated_mix__grouped_kv_mqa__geglu_ffn__prompt"

class Opt:
    diag = 0
    mapmode = 1
    force_fb = False
    allsc = 0
    out_pol = "sc0 sc1"
    code_pf = True
    xrot = 0
    pregap = 0
    aearly = 0
    bidle = 1
    old_pol = "sc1"
    ypos0 = "36g"
    ypos1 = "36bg"
    ypos2 = "36cg9"
    nx = 2
    tpos = 1
    cfirst = 0
    tch = 12
    stch = 0
    spos = 1
    tlb = 14
    olate = 1
    hrot = 0
    tbar = 0
    hord = 1
    cmap = 1
    kqx = 0
    oearly = 8
    conc = 1
    ghx = 1
    qa = "077777"
    qb = "588888"
    npre = 8
    stagger = 1
    rper = 2
    dma1 = 17
    kprio = 0
    dma0 = 8
    npd = 4
    kdiag = 0
    fillpre = 0
    fillper = 5
    gsc = 2
    sched = 0
    xmask = 1
    ntx = 0
    touch = 2
    rotg = 0
    rotm = 0
    startbar = 1
    pvz = 1
    pin = -1
    pin_ns = 60000
    probe = -1
    probe_x = -1
    probe_mul = 10
    probe_w = -1
    probe_r = -1
    probe_l = 0

def f2u(x): return struct.unpack("<I", struct.pack("<f", x))[0]

WS_KV = 0
WS_G = 128 * 1024
WS_HFLAG = 192 * 1024
WS_OF = 1 << 20
WS_HF = 4 << 20
WS_STAMP = 12 << 20
WS_SIZE = 16 << 20
K1 = 1024
L_G, L_U, L_X, L_WQ = 0, 48 * K1, 96 * K1, 144 * K1
L_QX = 32 * K1
L_WD, L_WO, L_KV = 0, 64 * K1, 128 * K1
L_RED = 96 * K1
LL_X, LL_W, LL_GATE, LL_WQ = 0, 128 * K1, 144 * K1, 128 * K1
LDS_BYTES = 160 * K1

SX, SWG, SWU, SWQ, SWS, SWD, SWO, SOUT, SDBG, SWKV, SGATE, SKV = 4, 8, 12, 16, 20, 24, 28, 32, 36, 40, 44, 64
SWV = 72
sTMPP = 48
sW, sHI, sLO, sG, sM, sT, sCB = 50, 51, 52, 53, 54, 55, 56
sWK = 57
sWH = 58
sVM = 60
sRET = 62
sA, sB, sC, sD = 68, 69, 70, 71
sOFFW, sOFFQ, sCH, sXP = 72, 73, 74, 75
sHOFF, sWDOFF, sKVOFF, sHXO, sCNT = 72, 73, 74, 75, 77
sOUTO, sLO_, sRNG = 59, 81, 75
sOLD2 = 58
sOST, sOLD, sHST = 78, 79, 80
sHST2 = 3
sRX, sRW, sM0B = 40, 41, 42
sKQ = 76
sHP = sM
sSTAMP = 82

def srd(b): return "s[%d:%d]" % (b, b + 3)
def sp(b): return "s[%d:%d]" % (b, b + 1)
def v(b, n=1): return "v%d" % b if n == 1 else "v[%d:%d]" % (b, b + n - 1)

vL16 = 1
vT0, vT1, vT2, vT3 = 2, 3, 4, 5
vGP, vGC = 6, 7
vKVA = 8
vWDA = 9
vWDV = 10
vONE = 11
vZERO = 12
vFLA = 13
vPOLL = 14
vGA = 15
vQ = 16
vK0 = 20
vV1L = 24
vIDX = 28
vAW0, vAR0, vOUTA = 30, 31, 12
vKVB = 29
vP = 32
vV = 40
vO = 56
vD = 72
vACC = 104
vS = 104
vH = 136
vAQ = vP
vF1 = 168
vKF = 168
vWF = 176
vWX = 224
vHX = 232
vPK = 20
WOF = [32, 208, 216, 240, 248, 40, 48, 56]
vWOA = 236
vFR = 184
vLX = 224
vXA = 240
vWA = 244
vQA = 248
vDX, vDG, vDQ = 249, 250, 251
vC0 = 252
vTID = 255
vHA = 254
NV = 256

class Asm:
    def __init__(self):
        self.l = []
        self.vm = []
        self.nstamp = 0
    def e(self, s):
        for x in s.split("\n"):
            x = x.strip()
            if x: self.l.append("    " + x)
    def lab(self, s): self.l.append(s + ":")
    def vmop(self, s, tag):
        self.e(s); self.vm.append(tag)
    def vmn(self, tags):
        if isinstance(tags, str): tags = [tags]
        last = -1
        for i, t in enumerate(self.vm):
            if t in tags: last = i
        return None if last < 0 else len(self.vm) - 1 - last
    def waitvm(self, tags, lgkm=False):
        n = self.vmn(tags)
        if n is None:
            if lgkm: self.e("s_waitcnt lgkmcnt(0)")
            return
        assert n < 64
        self.e("s_waitcnt vmcnt(%d)%s" % (n, " lgkmcnt(0)" if lgkm else ""))
        self.vm = self.vm[len(self.vm) - n:] if n else []
    def wait0(self, lgkm=False):
        self.e("s_waitcnt vmcnt(0)%s" % (" lgkmcnt(0)" if lgkm else "")); self.vm = []
    def stamp(self, i, real=False):
        if Opt.probe == i:
            self.e("s_waitcnt lgkmcnt(0)")
            self.e("s_memrealtime %s" % sp(sSTAMP + 4))
            self.e("s_waitcnt lgkmcnt(0)")
        if Opt.pin == i:
            self.nstamp += 1
            self.e("s_waitcnt lgkmcnt(0)")
            self.e("s_cselect_b32 s%d, 1, 0" % (sSTAMP + 5))
            self.lab("L_pin%d" % self.nstamp)
            self.e("s_memrealtime s[0:1]")
            self.e("s_waitcnt lgkmcnt(0)")
            self.e("s_sub_u32 s0, s0, s%d" % sSTAMP)
            self.e("s_cmp_lt_u32 s0, %d" % (Opt.pin_ns // 10))
            self.e("s_cbranch_scc1 L_pin%d" % self.nstamp)
            self.e("s_cmp_lg_u32 s%d, 0" % (sSTAMP + 5))
        if Opt.diag and not Opt.kdiag and (Opt.diag == 1 or i == 9):
            self.e("s_waitcnt lgkmcnt(0)")
            self.e("s_memtime %s" % sp(sSTAMP + 2 * i))
            self.e("s_memrealtime %s" % sp(sRET))
            self.e("s_waitcnt lgkmcnt(0)")
            self.e("s_mov_b32 s%d, s%d" % (sSTAMP + 2 * i + 1, sRET))

def astamp(a, i):
    if Opt.diag and Opt.kdiag == 2: a.e("s_memtime %s" % sp(sSTAMP + 2 * i))

def tstamp(a, i):
    if Opt.diag and Opt.kdiag == 3: a.e("s_memtime %s" % sp(sSTAMP + 2 * i))

def kstamp(a, i):
    if Opt.probe == 18 + i: a.e("s_memrealtime %s" % sp(sSTAMP + 4))
    if Opt.diag and Opt.kdiag == 1: a.e("s_memtime %s" % sp(sSTAMP + 2 * i))

def mfma(d, a, b, c):
    return "v_mfma_f32_32x32x16_bf16 %s, %s, %s, %s" % (v(d, 16), v(a, 4), v(b, 4), "0" if c is None else v(c, 16))
def smfmac(d, a, b):
    return "v_smfmac_f32_32x32x32_bf16 %s, %s, %s, %s" % (v(d, 16), v(a, 4), v(b, 8), v(vIDX))
def mfma16(d, a, b, c):
    return "v_mfma_f32_16x16x32_bf16 %s, %s, %s, %s" % (v(d, 4), v(a, 4), v(b, 4), "0" if c is None else v(c, 4))
def rd128(d, a, off):
    assert 0 <= off < 65536
    return "ds_read_b128 %s, %s offset:%d" % (v(d, 4), v(a), off)
def rdtr(d, a, off):
    assert 0 <= off < 65536
    return "ds_read_b64_tr_b16 %s, %s offset:%d" % (v(d, 2), v(a), off)

def interleave(mf, fill, per=2):
    out = []
    fill = list(fill)
    for i, m in enumerate(mf):
        out.append(m)
        if i < len(mf) - 1:
            out += fill[:per]; fill = fill[per:]
    return out + fill

def srd_words(a, regs):
    sizes = {SX: 2048 * 1024, SWG: 512 * 3584, SWU: 512 * 3584, SWQ: 512 * 1024, SWS: WS_SIZE, SWKV: 16384, SWV: 16384,
             SGATE: 1024, SWD: 1792 * 1024, SWO: 512 * 1024, SOUT: 2048 * 1024, SDBG: 256, SKV: 128 * 1024}
    for reg in regs:
        a.e("s_mov_b32 s%d, 0x%x" % (reg + 2, sizes[reg]))
        a.e("s_mov_b32 s%d, 0x20000" % (reg + 3))

def ptr_loads(a, lst):
    for reg, off in lst: a.e("s_load_dwordx2 %s, s[0:1], %d" % (sp(reg), off))

def prologue(a):
    if Opt.diag or Opt.pin >= 0 or Opt.probe >= 0:
        a.e("s_memrealtime %s" % sp(sSTAMP))
        if Opt.diag in (1, 2): a.e("s_memtime %s" % sp(sSTAMP + 2))
    ptr_loads(a, ((SX, 0), (SWG, 48), (SWU, 56), (SWQ, 8)))
    if Opt.probe == 1: a.stamp(1)
    a.e("v_lshrrev_b32 v2, 6, v0")
    if Opt.code_pf:
        a.e("s_getpc_b64 %s" % sp(sRET))
        a.lab("L_nopf")
        a.e("s_and_b32 s%d, s2, -8" % sA)
        a.e("v_add_lshl_u32 v4, v2, s%d, 7" % sA)
        a.e("v_mov_b32 v5, 0")
        a.e("v_min_u32 v4, CODE_PF_MAX, v4")
        a.e("v_lshl_add_u64 v[4:5], v[4:5], 0, %s" % sp(sRET))
        a.e("global_load_dword %s, v[4:5], off" % v(vPOLL))
    a.e("s_load_dwordx8 s[%d:%d], s[0:1], 64" % (SOUT, SOUT + 7))
    a.e("v_readfirstlane_b32 s%d, v2" % sW)
    ptr_loads(a, ((SWS, 96),) if Opt.diag or Opt.probe >= 0 else ((SWS, 96), (SWO, 32)))
    a.e("s_cmpk_ge_u32 s2, 256")
    a.e("s_cbranch_scc1 L_end")
    a.e("s_and_b32 s%d, s2, 1" % sD)
    a.e("s_bfe_u32 s%d, s2, 0x30003" % sA)
    a.e("s_lshl3_add_u32 s%d, s%d, s%d" % (sG, sD, sA))
    a.e("s_bfe_u32 s%d, s2, 0x20001" % sA)
    a.e("s_lshr_b32 s%d, s2, 6" % sB)
    a.e("s_lshl2_add_u32 s%d, s%d, s%d" % (sM, sA, sB))
    a.e("s_lshl_b32 s%d, s%d, 10" % (sWK, sW))
    a.e("s_cmp_ge_u32 s%d, 14" % sM)
    a.e("s_cbranch_scc1 L_light")

def xvoff(a, t):
    a.e("v_lshrrev_b32 v2, 4, %s" % v(t))
    a.e("v_xor_b32 v2, v2, %s" % v(t))
    a.e("v_and_b32 v2, 7, v2")
    a.e("s_lshl_b32 s%d, s%d, 17" % (sA, sG))
    a.e("v_lshl_add_u32 v2, v2, 4, s%d" % sA)
    a.e("v_lshrrev_b32 v3, 3, %s" % v(t))
    a.e("v_lshl_add_u32 %s, v3, 10, v2" % v(vDX))

def setup_ids(a):
    a.e("s_mov_b64 %s, %s" % (sp(SKV), sp(SWS)))
    a.e("s_mov_b64 %s, %s" % (sp(SWD), sp(SOUT)))
    a.e("s_mov_b64 %s, %s" % (sp(SOUT), sp(SOUT + 4)))
    a.e("s_mov_b64 %s, %s" % (sp(SDBG), sp(SOUT + 6)))
    a.e("v_and_b32 v0, 63, v0")
    a.e("v_lshlrev_b32 %s, 4, v0" % v(vL16))
    a.e("s_andn2_b32 s%d, 1, s2" % sA)
    a.e("s_bfe_u32 s%d, s2, 0x20001" % sB)
    a.e("s_lshl2_add_u32 s%d, s%d, s%d" % (sA, sA, sB))
    a.e("s_bfe_u32 s%d, s2, 0x20003" % sB)
    a.e("s_lshl2_add_u32 s%d, s%d, s%d" % (sT, sA, sB))
    a.e("s_lshr_b32 s%d, s2, 5" % sCB)

def setup_rd(a):
    a.e("s_lshr_b32 s%d, s%d, 2" % (sHI, sW))
    a.e("s_and_b32 s%d, s%d, 3" % (sLO, sW))
    a.e("v_and_b32 v2, 15, v0")
    a.e("v_lshrrev_b32 v3, 4, v0")
    a.e("v_bfe_u32 v4, v0, 1, 3")
    a.e("v_xor_b32 v4, v4, v3")
    a.e("v_lshlrev_b32 v4, 4, v4")
    a.e("v_lshl_add_u32 %s, v2, 7, v4" % v(vXA))
    a.e("v_bfe_u32 v2, v0, 2, 2")
    a.e("v_and_b32 v4, 3, v0")
    a.e("v_lshl_add_u32 %s, v3, 3, v2" % v(vQA))
    a.e("v_lshlrev_b32 %s, 6, %s" % (v(vQA), v(vQA)))
    a.e("v_xor_b32 v5, s%d, v3" % sHI)
    a.e("v_and_b32 v5, 1, v5")
    a.e("v_lshl_add_u32 %s, v5, 5, %s" % (v(vQA), v(vQA)))
    a.e("v_lshl_add_u32 %s, v4, 3, %s" % (v(vQA), v(vQA)))

def setup_oclr(a):
    srd_words(a, [SWS, SKV, SDBG])
    a.e("s_mov_b32 s%d, 0xffff" % sVM)
    a.e("s_mov_b32 s%d, 0xffff" % (sVM + 1))
    a.e("s_lshl_b32 s%d, s%d, 2" % (sA, sG))
    a.e("s_add_u32 s%d, s%d, s%d" % (sA, sA, sLO))
    a.e("s_lshl_b32 s%d, s%d, 5" % (sB, sA))
    a.e("s_lshl_b32 s%d, s%d, 1" % (sC, sHP))
    a.e("s_add_u32 s%d, s%d, s%d" % (sB, sB, sC))
    a.e("s_add_u32 s%d, s%d, s%d" % (sB, sB, sHI))
    a.e("s_lshl_b32 s%d, s%d, 10" % (sB, sB))
    a.e("s_add_u32 s%d, s%d, 0x%x" % (sOST, sB, WS_OF))
    for i in range(4): a.e("v_mov_b32 %s, -1" % v(vQ + i))
    a.vmop("buffer_store_dwordx4 %s, %s, %s, s%d offen sc1" % (v(vQ, 4), v(vL16), srd(SWS), sOST), "oclr")
    a.e("v_mov_b32 %s, 1" % v(vONE))
    a.e("v_mov_b32 %s, 0" % v(vZERO))
    a.e("v_and_b32 %s, 31, v0" % v(vGA))
    a.e("v_lshlrev_b32 %s, 2, %s" % (v(vGA), v(vGA)))

def collect(fn):
    t = Asm(); t.marks = {}
    def vmop(s_, tag):
        t.e(s_); t.marks[len(t.l) - 1] = tag
    t.vmop = vmop
    fn(t)
    return [(x, t.marks.get(i)) for i, x in enumerate(t.l)]
def put(a, items):
    for x, tag in items:
        if tag: a.vmop(x, tag)
        else: a.e(x)

def setup_ones(a):
    a.e("s_mov_b32 s%d, 0x110000" % sA)
    a.e("s_mov_b32 s%d, 0x110000" % sB)
    a.e("v_mov_b32 v3, 0x3f803f80")
    a.e("v_cndmask_b32 %s, 0, v3, %s" % (v(vV1L), sp(sA)))
    for i in range(1, 4): a.e("v_mov_b32 %s, %s" % (v(vV1L + i), v(vV1L)))
    for i in range(16): a.e("v_mov_b32 %s, %s" % (v(vV + i), v(vV1L)))

def setup_attn(a):
    srd_words(a, [SWD, SWO, SOUT])
    a.e("s_lshl_b32 s%d, s%d, 2" % (sA, sG))
    a.e("s_add_u32 s%d, s%d, s%d" % (sA, sA, sLO))
    a.e("s_mul_i32 s%d, s%d, 112" % (sB, sA))
    a.e("s_lshl_b32 s%d, s%d, 3" % (sC, sM))
    a.e("s_add_u32 s%d, s%d, s%d" % (sB, sB, sC))
    a.e("s_lshl_b32 s%d, s%d, 2" % (sC, sHI))
    a.e("s_add_u32 s%d, s%d, s%d" % (sB, sB, sC))
    a.e("s_and_b32 s%d, s%d, 1" % (sC, sLO))
    a.e("s_lshl_b32 s%d, s%d, 1" % (sC, sC))
    a.e("s_add_u32 s%d, s%d, s%d" % (sB, sB, sC))
    a.e("s_lshl_b32 s%d, s%d, 10" % (sB, sB))
    a.e("s_add_u32 s%d, s%d, 0x%x" % (sHST, sB, WS_HF))
    a.e("s_mul_i32 s%d, s%d, %d" % (sC, sC, 112 * 1024))
    a.e("s_sub_u32 s%d, %d, s%d" % (sC, 112 * 1024, sC))
    a.e("s_add_u32 s%d, s%d, s%d" % (sHST2, sHST, sC))
    a.e("v_bfe_u32 v2, v0, 2, 2")
    a.e("v_lshrrev_b32 v3, 5, v0")
    a.e("v_lshl_add_u32 v2, v3, 2, v2")
    a.e("v_lshlrev_b32 v2, 6, v2")
    a.e("v_bfe_u32 v3, v0, 4, 1")
    a.e("v_lshl_add_u32 v2, v3, 5, v2")
    a.e("v_and_b32 v3, 3, v0")
    a.e("v_lshl_add_u32 v2, v3, 3, v2")
    a.e("s_lshr_b32 s%d, s%d, 1" % (sA, sW))
    a.e("s_lshl_b32 s%d, s%d, 11" % (sA, sA))
    a.e("v_add_u32 %s, s%d, v2" % (v(vWDA), sA))
    a.e("v_add_u32 %s, 0x%x, %s" % (v(vKVA), L_KV, v(vL16)))
    a.e("v_add_u32 %s, 0x%x, %s" % (v(vKVB), L_KV + 0x4000, v(vL16)))
    a.e("v_bfe_u32 v2, v0, 2, 3")
    a.e("v_lshlrev_b32 v2, 10, v2")
    a.e("v_lshrrev_b32 v3, 5, v0")
    a.e("v_lshl_add_u32 v2, v3, 6, v2")
    a.e("v_and_b32 v3, 3, v0")
    a.e("v_lshl_add_u32 v2, v3, 4, v2")
    a.e("s_lshl_b32 s%d, s%d, 7" % (sB, sCB))
    a.e("v_add_u32 %s, s%d, v2" % (v(vWDV), sB))
    a.e("v_min_u32 v2, 13, v0")
    a.e("v_lshlrev_b32 v2, 7, v2")
    a.e("s_lshr_b32 s%d, s%d, 1" % (sA, sT))
    a.e("s_lshl_b32 s%d, s%d, 11" % (sA, sA))
    a.e("s_add_u32 s%d, s%d, 0x%x" % (sA, sA, WS_HFLAG))
    a.e("v_add_u32 %s, s%d, v2" % (v(vFLA), sA))
    a.e("s_lshl_b32 s%d, s%d, 1" % (sA, sT))
    a.e("s_and_b32 s%d, s%d, 1" % (sB, sW))
    a.e("s_add_u32 s%d, s%d, s%d" % (sA, sA, sB))
    a.e("s_lshl_b32 s%d, s%d, 15" % (sB, sA))
    a.e("s_lshr_b32 s%d, s%d, 1" % (sKQ, sW))
    if Opt.kqx:
        a.e("s_lshl_b32 s%d, s%d, 1" % (sC, sCB))
        a.e("s_and_b32 s%d, s%d, 2" % (sC, sC))
        a.e("s_xor_b32 s%d, s%d, s%d" % (sKQ, sKQ, sC))
    a.e("s_lshl_b32 s%d, s%d, 13" % (sC, sKQ))
    a.e("s_add_u32 s%d, s%d, s%d" % (sB, sB, sC))
    a.e("s_add_u32 s%d, s%d, 0x%x" % (sOLD, sB, WS_OF))
    a.e("v_and_b32 v2, 31, v0")
    a.e("v_lshrrev_b32 v3, 5, v0")
    a.e("v_and_b32 v4, 7, v0")
    a.e("v_xor_b32 v3, v3, v4")
    a.e("v_lshlrev_b32 v3, 4, v3")
    a.e("v_lshl_add_u32 v3, v2, 8, v3")
    a.e("s_and_b32 s%d, s%d, 1" % (sB, sW))
    a.e("s_lshl_b32 s%d, s%d, 15" % (sB, sB))
    a.e("s_lshr_b32 s%d, s%d, 1" % (sC, sW))
    a.e("s_lshl_b32 s%d, s%d, 13" % (sD, sC))
    a.e("s_add_u32 s%d, s%d, s%d" % (sOUTO, sD, sB))
    a.e("s_add_u32 s%d, s%d, 0x%x" % (sD, sOUTO, L_RED))
    a.e("v_add_u32 %s, s%d, v3" % (v(vAW0), sD))
    a.e("v_lshrrev_b32 v2, 3, v0")
    a.e("v_lshlrev_b32 v3, 1, v4")
    a.e("v_xor_b32 v3, v3, v2")
    a.e("v_lshlrev_b32 v3, 4, v3")
    a.e("v_lshl_add_u32 v3, v2, 8, v3")
    a.e("s_lshl_b32 s%d, s%d, 11" % (sD, sC))
    a.e("s_add_u32 s%d, s%d, s%d" % (sD, sD, sB))
    a.e("s_add_u32 s%d, s%d, 0x%x" % (sD, sD, L_RED))
    a.e("v_add_u32 %s, s%d, v3" % (v(vAR0), sD))
    a.e("v_lshlrev_b32 v4, 4, v4")
    a.e("v_lshl_add_u32 %s, v2, 10, v4" % v(vOUTA))
    a.e("s_lshl_b32 s%d, s%d, 16" % (sC, sT))
    a.e("s_add_u32 s%d, s%d, s%d" % (sOUTO, sOUTO, sC))
    a.e("s_lshl_b32 s%d, s%d, 7" % (sC, sCB))
    a.e("s_add_u32 s%d, s%d, s%d" % (sOUTO, sOUTO, sC))
    a.e("v_mov_b32 %s, 0xdddd" % v(vIDX))
    a.e("v_lshrrev_b32 v2, 4, v0")
    a.e("v_lshl_add_u32 %s, v2, 8, %s" % (v(vHA), v(vL16)))
    for i in range(16): a.e("v_mov_b32 %s, 0" % v(vO + i))
    for i in range(32): a.e("v_mov_b32 %s, 0" % v(vD + i))
    c0 = -2.0 * math.sqrt(2.0 / math.pi) * math.log2(math.e)
    a.e("v_mov_b32 %s, 0x%x" % (v(vC0), f2u(c0)))
    a.e("v_mov_b32 %s, 0x%x" % (v(vC0 + 1), f2u(c0 * 0.044715)))

def kv_first_loads(a, quartet=False):
    it = []
    for o in (range(0, 16384, 4096) if quartet else range(0, 16384, 8192)):
        b = sWH if quartet else sWK
        it.append(("s_add_u32 m0, s%d, 0x%x\ns_add_u32 s%d, s%d, 0x%x\nbuffer_load_dwordx4 %s, %s, s%d offen sc1 lds"
                   % (b, L_KV + o, sA, b, o, v(vL16), srd(SKV), sA), "kv%d" % (o >> 13)))
    it.append(("s_mov_b32 s%d, 0x%x\nbuffer_load_dwordx4 %s, %s, %s, s%d offen sc1"
               % (sA, 63 * 2048, v(vK0, 4), v(vL16), srd(SKV), sA), "k0"))
    it.append(("s_mov_b64 exec, %s\nbuffer_load_dwordx4 %s, %s, %s, 0 offen offset:%d sc1\ns_mov_b64 exec, -1"
               % (sp(sVM), v(vV1L, 4), v(vL16), srd(SKV), 1024 + 256), "k0"))
    it.append(("s_lshl_b32 s%d, s%d, 2\ns_add_u32 s%d, s%d, s%d\ns_lshl_b32 s%d, s%d, 7\ns_add_u32 s%d, s%d, 0x%x\n"
               "buffer_load_dword %s, %s, %s, s%d offen sc1"
               % (sA, sG, sA, sA, sLO, sA, sA, sA, sA, WS_G, v(vGP), v(vGA), srd(SWS), sA), "k0"))
    it.append(("s_lshl_b32 s%d, s%d, 1\ns_and_b32 s%d, s%d, 1\ns_add_u32 s%d, s%d, s%d\ns_lshl_b32 s%d, s%d, 7\ns_add_u32 s%d, s%d, 0x%x\n"
               "buffer_load_dword %s, %s, %s, s%d offen sc1"
               % (sA, sT, sB, sW, sA, sA, sB, sA, sA, sA, sA, WS_G, v(vGC), v(vGA), srd(SWS), sA), "k0"))
    return it

def spin_counter(a, name, first_loaded, wave=0):
    a.e("s_cmp_lg_u32 s%d, %d" % (sW, wave))
    a.e("s_cbranch_scc1 L_%s_done" % name)
    a.e("s_mov_b32 s%d, 0x4000" % sB)
    if first_loaded: a.e("s_branch L_%s_chk" % name)
    a.lab("L_%s_re" % name)
    a.e("buffer_load_dword %s, off, %s, 0 sc1" % (v(vPOLL), srd(SDBG)))
    a.e("s_waitcnt vmcnt(0)")
    a.lab("L_%s_chk" % name)
    a.e("v_readfirstlane_b32 s%d, %s" % (sA, v(vPOLL)))
    a.e("s_cmp_ge_u32 s%d, 32" % sA)
    a.e("s_cbranch_scc1 L_%s_done" % name)
    a.e("s_sleep 4")
    a.e("s_sub_u32 s%d, s%d, 1" % (sB, sB))
    a.e("s_cmp_lg_u32 s%d, 0" % sB)
    a.e("s_cbranch_scc1 L_%s_re" % name)
    a.lab("L_%s_done" % name)

def phase1_F(a):
    SCHED = {1: ["01423567", "10253467", "23016457", "32104756"],
             2: ["02134657", "01324576", "10243567", "10235467"],
             3: ["01324657", "01243576", "12035467", "20134567"],
             5: ["01243567", "10325467", "23014657", "32104576"],
             6: ["01243567", "10325467", "01234657", "10324576"],
             7: ["01234567", "10235476", "01234567", "10235476"],
             8: ["01234567", "10243657", "01234567", "10243657"],
             4: ["02143657", "10325476", "02143657", "10325476"]}
    tabs = SCHED[Opt.sched] if Opt.sched else ["".join(str(c ^ (p & Opt.xmask)) for c in range(8)) for p in range(4)]
    for t_ in tabs: assert sorted(t_) == list("01234567")
    num = [int(t_[::-1], 16) for t_ in tabs]
    def table(a):
        a.e("s_add_u32 s%d, s%d, s%d" % (sA, sG, sHP))
        a.e("s_mov_b32 s%d, 0x%x" % (sXP, num[0]))
        a.e("s_mov_b32 s%d, 0x%x" % (sB, num[2]))
        a.e("s_bitcmp1_b32 s%d, 0" % sA)
        a.e("s_cselect_b32 s%d, 0x%x, s%d" % (sXP, num[1], sXP))
        a.e("s_cselect_b32 s%d, 0x%x, s%d" % (sB, num[3], sB))
        a.e("s_bitcmp1_b32 s%d, 1" % sA)
        a.e("s_cselect_b32 s%d, s%d, s%d" % (sXP, sB, sXP))
        if Opt.ghx:
            a.e("s_bitcmp1_b32 s%d, 3" % sG)
            a.e("s_cselect_b32 s%d, 0x44444444, 0" % sB)
            a.e("s_xor_b32 s%d, s%d, s%d" % (sXP, sXP, sB))
    fo, fw = {"0000": (0, 0), "0101": (0, 1), "0011": (1, 1), "0123": (0, 2)}["".join(t_[0] for t_ in tabs)]
    a.e("s_add_u32 s%d, s%d, s%d" % (sA, sG, sHP))
    a.e("s_bfe_u32 s%d, s%d, 0x%x" % (sCH, sA, fw << 16 | fo))
    if Opt.ghx: a.e("s_lshl2_add_u32 s%d, s%d, s%d" % (sCH, sD, sCH))
    a.e("s_and_b32 s%d, s%d, 0xc00" % (sWH, sWK))
    a.e("v_and_b32 %s, 0xff, v0" % v(vTID))

    def wvoff(a):
        a.e("v_lshrrev_b32 v2, 4, %s" % v(vTID))
        a.e("v_lshrrev_b32 v3, 5, %s" % v(vTID))
        a.e("v_bfi_b32 v3, 3, v2, v3")
        a.e("v_lshlrev_b32 v3, 1, v3")
        a.e("v_xor_b32 v3, v3, %s" % v(vTID))
        a.e("v_and_b32 v3, 15, v3")
        a.e("s_lshl_b32 s%d, s%d, 8" % (sA, sM))
        a.e("v_lshl_add_u32 v3, v3, 4, s%d" % sA)
        a.e("v_mul_u32_u24 v2, 3584, v2")
        a.e("v_add_u32 %s, v2, v3" % v(vDG))
    def qvoff(a):
        a.e("v_lshrrev_b32 v2, 4, %s" % v(vTID))
        a.e("v_and_b32 v2, 2, v2")
        a.e("v_xor_b32 v2, v2, %s" % v(vTID))
        a.e("v_and_b32 v2, 3, v2")
        a.e("s_lshl_b32 s%d, s%d, 6" % (sA, sHP))
        a.e("v_lshl_add_u32 v2, v2, 4, s%d" % sA)
        a.e("v_lshrrev_b32 v3, 2, %s" % v(vTID))
        a.e("v_lshl_add_u32 %s, v3, 10, v2" % v(vDQ))
    def stouch(a):
        if Opt.diag or Opt.probe >= 0: a.e("s_load_dwordx2 %s, s[0:1], 32" % sp(SWO))
        if not Opt.stch: return
        a.e("s_lshr_b32 s%d, s%d, 2" % (sA, sW))
        if Opt.ghx: a.e("s_lshl2_add_u32 s%d, s%d, s%d" % (sA, sD, sA))
        a.e("s_lshl_b32 s%d, s%d, 6" % (sA, sA))
        a.e("s_and_b32 s%d, s%d, 7" % (sB, sG))
        a.e("s_add_u32 s%d, s%d, s%d" % (sA, sA, sB))
        a.e("s_mul_i32 s%d, s%d, 28" % (sA, sA))
        a.e("s_bfe_u32 s%d, s%d, 0x10001" % (sB, sW))
        a.e("s_lshl1_add_u32 s%d, s%d, s%d" % (sB, sM, sB))
        a.e("s_add_u32 s%d, s%d, s%d" % (sA, sA, sB))
        a.e("s_lshl_b32 s%d, s%d, 7" % (sA, sA))
        a.e("s_bitcmp1_b32 s%d, 0" % sW)
        a.e("s_cselect_b64 %s, %s, %s" % (sp(SWKV), sp(SWU), sp(SWG)))
        a.e("s_add_u32 s%d, s%d, s%d" % (SWKV, SWKV, sA))
        a.e("s_addc_u32 s%d, s%d, 0" % (SWKV + 1, SWKV + 1))
        for i in range(Opt.stch):
            a.e("s_load_dwordx2 %s, %s, 0x%x" % (sp(sTMPP), sp(SWKV), 128 * 3584 + i * 8 * 3584 + 60))
    def wsrd(a):
        srd_words(a, [SWG])
        a.e("s_mov_b64 %s, %s" % (sp(SWU + 2), sp(SWG + 2)))

    if Opt.hrot:
        ORDER = [("q", 0)] + [(t_, 2 * h_ + j) for h_ in range(2) for t_, j in (("x", 0), ("x", 1), ("g", 0), ("u", 0), ("g", 1), ("u", 1))]
    else:
        ORDER = [("q", 0)] + [("x", j) for j in range(4)] + [(t_, j) for j in range(4) for t_ in "gu"]
    def block(items):
        out = []; lastc = None; lastw = None
        for c, kind, j in items:
            s = c % 3; pre = []
            if c != lastc:
                if c: pre.append("s_bfe_u32 s%d, s%d, 0x%x" % (sCH, sXP, 0x30000 + 4 * c))
                lastc = c; lastw = None
            fam = "w" if kind in "gu" else kind
            rot = Opt.hrot and fam != "q"
            if lastw is None or lastw[0] != fam or (rot and lastw[1] >> 1 != j >> 1):
                pre.append({"q": "s_lshl_b32 s%d, s%d, 16" % (sOFFW, sCH), "x": "s_lshl_b32 s%d, s%d, 7" % (sOFFW, sCH),
                            "w": "s_mul_i32 s%d, s%d, %d" % (sOFFW, sCH, 64 * 3584)}[fam])
                if rot: pre.append("s_%s_u32 s%d, s%d, s%d" % ("sub" if j >> 1 else "add", sOFFW, sOFFW, sRX if fam == "x" else sRW))
                lastw = (fam, 0)
            if lastw[1] != j:
                pre.append("s_add_u32 s%d, s%d, 0x%x" % (sOFFW, sOFFW, (j - lastw[1]) * (0x8000 if fam == "x" else 16 * 3584)))
                lastw = (fam, j)
            m0c, vo, rs = {"q": (L_WQ + s * 4096, vDQ, SWQ), "x": (L_X + s * 16384 + j * 4096, vDX, SX),
                           "g": (L_G + s * 16384 + j * 4096, vDG, SWG), "u": (L_U + s * 16384 + j * 4096, vDG, SWU)}[kind]
            nt = " nt" if Opt.ntx & (1 if rs == SX else 2) else ""
            out.append(("s_add_u32 m0, s%d, 0x%x\n%s\nbuffer_load_dwordx4 %s, %s, s%d offen%s lds"
                        % ((sM0B + (j >> 1)) if rot else sWH, m0c, "\n".join(pre) or "s_nop 0", v(vo), srd(rs), sOFFW, nt), "c%d" % c))
        return out
    def part(c, role): return [(c, k_, j) for k_, j in ORDER if (k_ in "gu") == (role == "A")]

    def rdsetup(a):
        setup_rd(a)
        a.e("v_lshl_add_u32 %s, v3, 3, v2" % v(vWA))
        a.e("v_lshlrev_b32 %s, 8, %s" % (v(vWA), v(vWA)))
        a.e("v_lshl_add_u32 %s, v4, 3, %s" % (v(vWA), v(vWA)))
        a.e("v_and_b32 v5, 1, v3")
        a.e("v_lshl_add_u32 v2, v5, 2, v2")
        a.e("s_lshl_b32 s%d, s%d, 2" % (sA, sHI))
        a.e("s_and_b32 s%d, s%d, 1" % (sB, sLO))
        a.e("s_lshl_b32 s%d, s%d, 1" % (sB, sB))
        a.e("s_add_u32 s%d, s%d, s%d" % (sA, sA, sB))
        a.e("v_xor_b32 v2, s%d, v2" % sA)
        a.e("v_lshl_add_u32 %s, v2, 5, %s" % (v(vWA), v(vWA)))
        a.e("v_xor_b32 %s, 32, %s" % (v(vWA + 1), v(vWA)))
        a.e("v_add_u32 %s, 0x%x, %s" % (v(vWA + 2), L_U - L_G, v(vWA)))
        a.e("v_add_u32 %s, 0x%x, %s" % (v(vWA + 3), L_U - L_G, v(vWA + 1)))
        a.e("s_lshl_b32 s%d, s%d, 12" % (sA, sLO))
        a.e("s_add_u32 s%d, s%d, 0x%x" % (sA, sA, L_X))
        a.e("v_add_u32 %s, s%d, %s" % (v(vXA), sA, v(vXA)))
        a.e("v_xor_b32 %s, 0x1000, %s" % (v(vXA + 1), v(vXA)))
        a.e("v_xor_b32 %s, 64, %s" % (v(vXA + 2), v(vXA)))
        a.e("v_xor_b32 %s, 64, %s" % (v(vXA + 3), v(vXA + 1)))
        a.e("v_add_u32 %s, 0x%x, %s" % (v(vQA), L_WQ, v(vQA)))

    a.e("s_cmp_ge_u32 s%d, 4" % sW)
    a.e("s_cbranch_scc1 L_setB")
    late = collect(setup_oclr) + collect(setup_ones) + [("; later", None)] + collect(setup_attn)
    words = collect(lambda t: srd_words(t, [SWS, SKV, SDBG, SWD, SWO, SOUT]))
    late = [x for x in late if x not in words]
    oclr = [x for x in late if x[1] == "oclr"]
    if Opt.olate: late = [x for x in late if x[1] != "oclr"]
    else: oclr = []
    words += [("v_mov_b32 %s, 0" % v(r_), None) for r_ in (vGA, vWDV, vFLA, vHA, vOUTA)]
    st = collect(rdsetup) + words + late[:Opt.fillpre]
    cut = late.index(("; later", None)) if Opt.bidle else len(late)
    fills = {"A": late[Opt.fillpre:], "B": late[Opt.fillpre:max(cut, Opt.fillpre)]}
    idleB = late[max(cut, Opt.fillpre):]
    vms = {}
    wsrd(a); wvoff(a)
    a.e("s_waitcnt lgkmcnt(0)")
    a.stamp(2)
    if Opt.spos == 0: stouch(a)
    put(a, block(part(0, "A")))
    a.e("s_branch L_setA")
    vms["A"] = a.vm; a.vm = []
    a.lab("L_setB")
    srd_words(a, [SX]); xvoff(a, vTID)
    a.e("s_waitcnt lgkmcnt(0)")
    a.stamp(2)
    if Opt.spos == 0: stouch(a)
    put(a, block(part(0, "B")[1:]))
    srd_words(a, [SWQ]); qvoff(a)
    put(a, block(part(0, "B")[:1]))
    vms["B"] = a.vm
    for role in "BA":
        a.vm = vms[role]
        if role == "A": a.lab("L_setA")
        if Opt.spos == 1: stouch(a)
        table(a)
        setup_ids(a)
        if role == "A": srd_words(a, [SX, SWQ])
        else: wsrd(a)
        def touches():
            tm = sum(0xff << (8 * i) for i in range(4) if Opt.tch >> i & 1)
            setex = "s_bitcmp1_b32 s%d, 3\ns_cselect_b32 exec_lo, 0, 0x%x\ns_cselect_b32 exec_hi, 0x%x, 0" % (sG, tm, tm) if Opt.ghx \
                    else "s_mov_b32 exec_lo, 0x%x\ns_mov_b32 exec_hi, 0" % tm
            if Opt.tlb & 2 and role == "B":
                a.e("s_and_b32 s%d, s%d, 7" % (sA, sG))
                a.e("v_lshl_add_u32 v2, v0, 3, s%d" % sA)
                a.e("v_mul_u32_u24 v3, 3584, v2")
                a.e("s_and_b32 s%d, s%d, 1" % (sB, sW))
                a.e("s_lshl1_add_u32 s%d, s%d, s%d" % (sA, sM, sB))
                a.e("s_lshl_b32 s%d, s%d, 7" % (sA, sA))
                a.e(setex)
                a.e("s_cmp_ge_u32 s%d, 6" % sW)
                a.e("s_cbranch_scc1 L_tlbu")
                a.e("buffer_load_dword %s, v3, %s, s%d offen" % (v(vPOLL), srd(SWG), sA))
                a.e("s_branch L_tlbe")
                a.lab("L_tlbu")
                a.e("buffer_load_dword %s, v3, %s, s%d offen" % (v(vPOLL), srd(SWU), sA))
                a.lab("L_tlbe")
                a.e("s_mov_b64 exec, -1")
                a.vm.append("tlb")
            if Opt.tlb & 12 and role == "A":
                a.e("s_cmp_lg_u32 s%d, 0" % sW)
                a.e("s_cbranch_scc1 L_tlbx")
                a.e("s_and_b32 s%d, s%d, 7" % (sA, sG))
                a.e("v_lshl_add_u32 v2, v0, 3, s%d" % sA)
                a.e("v_lshlrev_b32 v3, 10, v2")
                a.e("s_lshl_b32 s%d, s%d, 6" % (sA, sHP))
                a.e(setex if Opt.tlb & 4 else "s_mov_b64 exec, 1")
                a.e("buffer_load_dword %s, v3, %s, s%d offen" % (v(vPOLL), srd(SWQ), sA))
                a.e("s_branch L_tlby")
                a.lab("L_tlbx")
                a.e("s_and_b32 s%d, s%d, 3" % (sA, sM))
                a.e("s_lshl2_add_u32 s%d, s%d, s%d" % (sA, sG, sA))
                a.e("s_lshl_b32 s%d, s%d, 15" % (sA, sA))
                a.e("v_lshl_add_u32 v3, v0, 10, s%d" % sA)
                a.e("s_lshr_b32 s%d, s%d, 3" % (sA, sG))
                a.e("s_lshl2_add_u32 s%d, s%d, s%d" % (sA, sA, sW) if Opt.ghx else "s_mov_b32 s%d, s%d" % (sA, sW))
                a.e("s_lshl_b32 s%d, s%d, 7" % (sA, sA))
                a.e("s_bitcmp1_b32 %d, s%d" % (Opt.tch if Opt.tlb & 8 else 0, sW))
                a.e("s_cselect_b32 exec_lo, -1, 1")
                a.e("s_mov_b32 exec_hi, 0")
                a.e("buffer_load_dword %s, v3, %s, s%d offen" % (v(vPOLL), srd(SX), sA))
                a.lab("L_tlby")
                a.e("s_mov_b64 exec, -1")
                a.vm.append("tlb")
        if Opt.tpos == 0: touches()
        if Opt.startbar: a.e("s_barrier")
        npre = min(Opt.npre, 8) if role == "A" else 5
        pn = block(part(1, role)[:npre])
        rest = st + (collect(qvoff) + collect(lambda t: xvoff(t, vTID)) if role == "A" else collect(wvoff))
        gap = len(rest) // (npre + Opt.pregap) + 1
        if Opt.tpos == 2:
            put(a, pn); touches(); npre = 0
        if Opt.tpos == 3 and role == "B":
            put(a, pn); touches(); npre = 0
        for i in range(npre):
            put(a, pn[:1]); pn = pn[1:]
            put(a, rest[:gap]); rest = rest[gap:]
        put(a, rest)
        if Opt.tpos == 1 or (Opt.tpos == 3 and role == "A"): touches()
        a.e("s_mov_b64 vcc, %d" % (-1 if role == "A" else 0))
        if role == "A":
            a.waitvm("c0", lgkm=True)
        else:
            a.e("s_setprio 1")
            a.waitvm("c0", lgkm=True)
            a.e("s_branch L_k0")
        vms[role] = a.vm
    stream = part(1, "A")[min(Opt.npre, 8):] + [(c, k_, j) for c in range(2, 8) for k_, j in ORDER]
    qa = [int(x, 16) for x in Opt.qa]; qb = [int(x, 16) for x in Opt.qb]
    def take(n, cmax):
        m = 0
        while m < n and m < len(stream) and stream[m][0] <= cmax: m += 1
        r_ = stream[:m]; del stream[:m]
        return block(r_)
    a.lab("L_k0")
    a.vm = vms["A"]
    ool = Asm()
    def dmablock(name, role, items, wait=None):
        a.e("s_cbranch_vcc%s L_%s" % ("nz" if role == "A" else "z", name))
        if wait: a.waitvm(wait, lgkm=True)
        a.lab("L_%s_r" % name)
        ool.lab("L_%s" % name)
        ool.vm = a.vm if role == "A" else vms["B"]
        for it_ in items:
            put(ool, [it_])
            fp = Opt.fillper if role == "A" or not Opt.bidle else 2
            put(ool, fills[role][:fp]); fills[role] = fills[role][fp:]
        if name in ("d7", "e7"): put(ool, fills[role]); fills[role] = []
        if wait: ool.waitvm(wait, lgkm=True)
        if role == "B": vms["B"] = ool.vm
        ool.e("s_branch L_%s_r" % name)
    a.ool = ool.l

    def fr(k):
        b = vF1 + 36 * (k % 2)
        return dict(x=b, w=b + 16, q=b + 32)
    def reads(k):
        c, s = divmod(k, 2); f = fr(k); sl = c % 3
        wo = sl * 16384 + s * 8192
        W = lambda i: [rdtr(f['w'] + 4 * i, vWA + i, wo), rdtr(f['w'] + 4 * i + 2, vWA + i, wo + 1024)]
        X = [rd128(f['x'] + 4 * b, vXA + 2 * s + (b >> 1), sl * 16384 + (b & 1) * 2048) for b in range(4)]
        return W(0) + X + W(2) + W(1) + W(3) + [rdtr(f['q'], vQA, sl * 4096 + s * 2048), rdtr(f['q'] + 2, vQA, sl * 4096 + s * 2048 + 256)]
    a.e("s_barrier")
    a.stamp(3)
    if Opt.kdiag or Opt.probe >= 18:
        kstamp(a, 2)
        a.e("s_waitcnt lgkmcnt(0)")
    for r in reads(0): a.e(r)
    if qa[0]: dmablock("d2", "A", take(qa[0], 2))
    for k in range(16):
        c, s = divmod(k, 2); f = fr(k)
        z = lambda x: None if k == 0 else x
        mf = []
        for n_, i in enumerate((0, 2, 1, 3)):
            for b in (range(4) if n_ % 2 == 0 else range(3, -1, -1)):
                d = vACC + 16 * b + 4 * i
                mf.append(mfma16(d, f['w'] + 4 * i, f['x'] + 4 * b, z(d)))
        for b in range(2): mf.append(mfma16(vAQ + 4 * b, f['q'], f['x'] + 4 * b, z(vAQ + 4 * b)))
        rds = reads(k + 1) if k < 15 else []
        if s == 0:
            a.e("s_waitcnt lgkmcnt(6)")
            for i, m in enumerate(mf):
                if i == 8: a.e("s_waitcnt lgkmcnt(8)")
                a.e(m)
                if i < len(rds): a.e(rds[i])
            continue
        a.e("s_waitcnt lgkmcnt(8)")
        for m in mf[:4]: a.e(m)
        if c <= 5:
            dmablock("e%d" % (c + 2), "B", take(qb[c], c + 2), "c%d" % (c + 1))
            assert not any(x[0] <= c + 1 for x in stream)
        if c == 7:
            a.e("s_waitcnt lgkmcnt(0)")
        elif c == 6:
            a.e("s_waitcnt lgkmcnt(0)")
            a.e("s_cbranch_vccz L_st7")
            a.e("s_setprio 1")
            a.e("s_waitcnt vmcnt(0)")
            a.e("s_barrier")
            a.lab("L_st7")
        else:
            a.e("s_barrier")
        if c < 7 and ((Opt.kdiag == 1 and Opt.diag) or Opt.probe == 21 + c):
            kstamp(a, 3 + c)
            a.e("s_waitcnt lgkmcnt(0)")
        if c + 3 < 8:
            items = take(qa[c + 1], c + 3)
            dmablock("d%d" % (c + 3), "A", items)
        for i, m in enumerate(mf[4:]):
            a.e(m)
            if i < len(rds): a.e(rds[i])
        if k == 11: assert not stream and not fills["A"] and not fills["B"]
        if k == 11:
            a.e("s_cbranch_vccnz L_st6")
            a.e("s_setprio 0")
            nm = next((i for i, x in enumerate(idleB) if "0xdddd" in x[0]), 0)
            a.e("s_cmp_lg_u32 s%d, 4" % sW)
            a.e("s_cbranch_scc1 L_nopoll")
            a.e("buffer_load_dword %s, off, %s, 0 sc1" % (v(vPOLL), srd(SDBG)))
            a.lab("L_nopoll")
            put(a, idleB[:nm]); idleB = idleB[nm:]
            a.wait0()
            spin_counter(a, "kvf", True, 4)
            a.e("s_barrier")
            put(a, kv_first_loads(a, True) + oclr + idleB)
            a.lab("L_st6")
    a.kvA = (kv_first_loads(a) + oclr)[2:]
    a.stamp(4)

def phase1_L(a):
    a.lab("L_light")
    a.vm = []
    a.e("s_waitcnt lgkmcnt(0)")
    ptr_loads(a, ((SWKV, 16), (SWV, 24), (SGATE, 72), (SWO, 32)))
    srd_words(a, [SWKV, SWV, SGATE, SX])
    xvoff(a, 0)
    a.e("v_and_b32 v2, 63, v0")
    a.e("v_lshlrev_b32 %s, 4, v2" % v(vL16))
    a.e("s_sub_u32 s%d, s%d, 14" % (sCNT, sM))
    a.e("s_lshl_b32 s%d, s%d, 16" % (sOLD, sCNT))
    a.e("s_lshl_b32 s%d, s%d, 13" % (sHST, sCNT))
    a.e("s_add_u32 s%d, s%d, s%d" % (sWH, sHST, sWK))
    a.e("s_xor_b32 s%d, s%d, 0x2000" % (sHST, sHST))
    a.e("s_add_u32 s%d, s%d, 0x2000" % (sA, sWK))
    a.e("s_waitcnt lgkmcnt(0)")
    a.stamp(2)
    def xdma(c, base, so):
        a.vmop("s_add_u32 m0, s%d, 0x%x\ns_nop 0\nbuffer_load_dwordx4 %s, %s, s%d offen offset:%d lds"
               % (base, LL_X + c * 16384 - c * 128, v(vDX), srd(SX), so, c * 128), "c%d" % c)
    def wdma(u):
        for t, rs in enumerate((SWKV, SWV)):
            a.vmop("s_add_u32 m0, s%d, 0x%x\ns_nop 0\nbuffer_load_dwordx4 %s, %s, s%d offen lds"
                   % (sWK, LL_W + t * 16384 + u * 8192, v(vL16), srd(rs), sA if u else sWK), "w")
    wdma(0)
    a.vmop("s_mov_b32 m0, s%d\ns_nop 0\nbuffer_load_dwordx4 %s, %s, 0 offen lds" % (sHST, v(vL16), srd(SGATE)), "w")
    for c in range(8):
        if c == 4: wdma(1)
        xdma(c, sWH, sOLD)
        if c in (1, 3, 5): a.e("s_barrier")
    setup_ids(a)
    srd_words(a, [SWQ])
    setup_rd(a)
    a.e("v_lshrrev_b32 v3, 5, v0")
    a.e("v_bfrev_b32 v5, v4")
    a.e("v_lshrrev_b32 v5, 30, v5")
    a.e("s_cmp_ge_u32 s%d, 2" % sLO)
    a.e("s_cselect_b64 vcc, -1, 0")
    a.e("v_cndmask_b32 v4, v5, v4, vcc")
    a.e("v_lshl_add_u32 %s, v3, 3, v2" % v(vWA))
    a.e("v_lshlrev_b32 %s, 5, %s" % (v(vWA), v(vWA)))
    a.e("v_lshl_add_u32 %s, v4, 3, %s" % (v(vWA), v(vWA)))
    a.e("s_lshr_b32 s%d, s%d, 1" % (sA, sLO))
    a.e("s_lshl_b32 s%d, s%d, 14" % (sA, sA))
    a.e("s_add_u32 s%d, s%d, 0x%x" % (sA, sA, LL_W))
    a.e("v_add_u32 %s, s%d, %s" % (v(vWA), sA, v(vWA)))
    a.e("v_lshl_add_u32 %s, v3, 4, s%d" % (v(vWA + 1), sHST))
    a.e("s_and_b32 s%d, s%d, 1" % (sA, sLO))
    a.e("s_lshl_b32 s%d, s%d, 1" % (sB, sCNT))
    a.e("s_add_u32 s%d, s%d, s%d" % (sCNT, sA, sB))
    a.e("s_lshl_b32 s%d, s%d, 12" % (sA, sCNT))
    a.e("v_and_b32 v2, 31, v0")
    a.e("v_lshrrev_b32 v4, 1, v0")
    a.e("v_lshlrev_b32 v5, 1, v0")
    a.e("v_bfi_b32 v4, 4, v4, v5")
    a.e("v_bfi_b32 v4, 12, v4, v2")
    a.e("v_cndmask_b32 v2, v2, v4, vcc")
    a.e("v_bfe_u32 v4, v2, 1, 3")
    a.e("v_xor_b32 v4, v4, v3")
    a.e("v_lshlrev_b32 v4, 4, v4")
    a.e("v_lshl_add_u32 v4, v2, 7, v4")
    a.e("v_add_u32 %s, s%d, v4" % (v(vLX), sA))
    for s in range(1, 4): a.e("v_xor_b32 %s, %d, %s" % (v(vLX + s), 32 * s, v(vLX)))
    for s in range(4): a.e("v_add_u32 %s, 0x10000, %s" % (v(vLX + 4 + s), v(vLX + s)))
    a.e("s_waitcnt lgkmcnt(0)")
    setup_oclr(a)
    vm0 = list(a.vm)
    a.e("s_cmp_lg_u32 s%d, 0" % sHI)
    a.e("s_cbranch_scc1 L_lB")
    a.e("s_not_b64 %s, %s" % (sp(sTMPP), sp(sVM)))
    a.e("s_cmp_ge_u32 s%d, 2" % sLO)
    a.e("s_cbranch_scc1 L_lV")
    def chain(kind):
        a.vm = list(vm0)
        def fr(k):
            b = vFR + 8 * (k % 4)
            return b, b + 4
        def reads(k):
            c, s = divmod(k, 4); x, w = fr(k)
            r = [rd128(x, vLX + s + 4 * (c >> 2), (c & 3) * 16384), rdtr(w, vWA, k * 512), rdtr(w + 2, vWA, k * 512 + 128)]
            if kind == "K":
                r += ["s_mov_b64 exec, %s" % sp(sTMPP), rd128(w, vWA + 1, k * 32), "s_mov_b64 exec, -1"]
            return r
        for q in range(4):
            a.waitvm("c%d" % (2 * q + 1))
            a.e("s_barrier")
            nr = 4 if kind == "K" else 3
            for k in range(8 * q, 8 * q + 2):
                for r in reads(k): a.e(r)
            for k in range(8 * q, 8 * q + 8):
                if k + 2 < 8 * q + 8:
                    for r in reads(k + 2): a.e(r)
                left = min(2, 8 * q + 7 - k)
                a.e("s_waitcnt lgkmcnt(%d)" % (left * nr))
                x, w = fr(k)
                cc = None if k == 0 else vACC
                a.e(mfma(vACC, w, x, cc) if kind == "K" else mfma(vACC, x, w, cc))
        a.e("s_lshl_b32 s%d, s%d, 2" % (sA, sG))
        a.e("s_add_u32 s%d, s%d, s%d" % (sA, sA, sCNT))
        a.e("s_nop 12")
        if kind == "K":
            a.e("s_mov_b32 s%d, 0x%x" % (sC, f2u(0.25 * math.log2(math.e))))
            for i in range(8): a.e("v_mul_f32 %s, s%d, %s" % (v(vACC + i), sC, v(vACC + i)))
            a.e("v_mul_f32 %s, 0x%x, %s" % (v(vACC + 8), f2u(-math.log2(math.e)), v(vACC + 8)))
            a.e("v_exp_f32 %s, %s" % (v(vACC + 8), v(vACC + 8)))
            for i in range(4): a.e("v_cvt_pk_bf16_f32 %s, %s, %s" % (v(vFR + i), v(vACC + 2 * i), v(vACC + 2 * i + 1)))
            a.e("v_add_f32 %s, 1.0, %s" % (v(vACC + 8), v(vACC + 8)))
            a.e("v_rcp_f32 %s, %s" % (v(vACC + 8), v(vACC + 8)))
            a.e("s_add_u32 s%d, s%d, 63" % (sB, sA))
            a.e("s_and_b32 s%d, s%d, 63" % (sB, sB))
            a.e("s_lshl_b32 s%d, s%d, 11" % (sB, sB))
            a.e("buffer_store_dwordx4 %s, %s, %s, s%d offen sc1" % (v(vFR, 4), v(vL16), srd(SKV), sB))
            a.e("s_lshl_b32 s%d, s%d, 7" % (sB, sA))
            a.e("s_add_u32 s%d, s%d, 0x%x" % (sB, sB, WS_G))
            a.e("s_mov_b32 exec_hi, 0")
            a.e("buffer_store_dword %s, %s, %s, s%d offen sc1" % (v(vACC + 8), v(vGA), srd(SWS), sB))
            a.e("s_mov_b64 exec, -1")
        else:
            for i in range(8): a.e("v_cvt_pk_bf16_f32 %s, %s, %s" % (v(vFR + i), v(vACC + 2 * i), v(vACC + 2 * i + 1)))
            a.e("v_bfe_u32 v2, v0, 4, 1")
            a.e("v_add_u32 v2, s%d, v2" % sA)
            a.e("v_and_b32 v2, 63, v2")
            a.e("v_lshl_add_u32 v2, v2, 11, %s" % v(vL16))
            for i in range(4): a.e("v_cndmask_b32 %s, %s, %s, %s" % (v(vFR + i), v(vFR + 4 + i), v(vFR + i), sp(sVM)))
            a.e("buffer_store_dwordx4 %s, v2, %s, 0 offen offset:1024 sc1" % (v(vFR, 4), srd(SKV)))
        a.e("s_branch L_lJ")
    chain("K")
    a.lab("L_lV")
    chain("V")
    a.lab("L_lB")
    a.vm = list(vm0)
    a.e("s_cmp_lg_u32 s%d, 14" % sM)
    a.e("s_cbranch_scc1 L_nozf")
    a.e("s_cmp_lg_u32 s%d, 4" % sW)
    a.e("s_cbranch_scc1 L_nozf")
    a.e("v_lshlrev_b32 v2, 7, v0")
    a.e("s_lshl_b32 s%d, s%d, 11" % (sA, sG))
    a.e("s_add_u32 s%d, s%d, 0x%x" % (sA, sA, WS_HFLAG))
    a.e("s_mov_b64 exec, 0xffff")
    a.e("buffer_store_dword %s, v2, %s, s%d offen sc1" % (v(vZERO), srd(SWS), sA))
    a.e("s_mov_b64 exec, -1")
    a.lab("L_nozf")
    for q in range(4):
        a.waitvm("c%d" % (2 * q + 1))
        a.e("s_barrier")
    a.lab("L_lJ")
    a.e("v_lshrrev_b32 v3, 2, v0")
    a.e("v_lshlrev_b32 v3, 10, v3")
    a.e("v_lshrrev_b32 v4, 5, v0")
    a.e("v_lshlrev_b32 v4, 1, v4")
    a.e("v_xor_b32 v4, v4, v0")
    a.e("v_and_b32 v4, 3, v4")
    a.e("v_lshl_add_u32 v3, v4, 4, v3")
    a.e("s_lshl_b32 s%d, s%d, 14" % (sA, sW))
    a.e("s_lshl_b32 s%d, s%d, 6" % (sB, sHP))
    a.e("s_add_u32 s%d, s%d, s%d" % (sA, sA, sB))
    a.e("v_add_u32 %s, s%d, v3" % (v(vDQ), sA))
    a.e("s_xor_b32 s%d, s%d, 0x2000" % (sWH, sWH))
    a.e("s_xor_b32 s%d, s%d, 0x10000" % (sOLD, sOLD))
    a.wait0(lgkm=True)
    a.e("s_barrier")
    a.e("s_cmp_lg_u32 s%d, 0" % sW)
    a.e("s_cbranch_scc1 L_noat")
    a.e("s_mov_b64 exec, 1")
    a.e("buffer_atomic_add %s, off, %s, 0 sc1" % (v(vONE), srd(SDBG)))
    a.e("s_mov_b64 exec, -1")
    a.lab("L_noat")
    a.stamp(3)
    for c in range(8): xdma(c, sWH, sOLD)
    for p in range(4):
        a.e("s_add_u32 m0, s%d, 0x%x" % (sWK, LL_WQ + p * 8192))
        a.e("s_mov_b32 s%d, 0x%x" % (sA, p * 128 * 1024))
        a.e("buffer_load_dwordx4 %s, %s, s%d offen lds" % (v(vDQ), srd(SWQ), sA))
    setup_ones(a)
    setup_attn(a)
    if Opt.touch & 2:
        a.e("s_lshl_b32 s%d, s%d, 1" % (sA, sG))
        a.e("s_add_u32 s%d, s%d, s%d" % (sA, sA, sM))
        a.e("s_sub_u32 s%d, s%d, 14" % (sA, sA))
        a.e("s_lshl_b32 s%d, s%d, 3" % (sA, sA))
        a.e("s_add_u32 s%d, s%d, s%d" % (sA, sA, sW))
        a.e("v_lshlrev_b32 v2, 15, v0")
        a.e("s_lshl_b32 s%d, s%d, 7" % (sA, sA))
        a.e("buffer_load_dword %s, v2, %s, s%d offen" % (v(vPOLL), srd(SWO), sA))
        a.e("buffer_load_dword %s, v2, %s, s%d offen" % (v(vPOLL), srd(SWD), sA))
    a.e("s_lshl_b32 s%d, s%d, 12" % (sA, sLO))
    a.e("v_add_u32 %s, s%d, %s" % (v(vXA), sA, v(vXA)))
    a.e("v_xor_b32 %s, 64, %s" % (v(vXA + 1), v(vXA)))
    a.e("v_add_u32 %s, 0x10000, %s" % (v(vXA + 2), v(vXA)))
    a.e("v_add_u32 %s, 0x10000, %s" % (v(vXA + 3), v(vXA + 1)))
    a.e("v_add_u32 %s, 0x%x, %s" % (v(vQA), LL_WQ, v(vQA)))
    a.e("s_waitcnt vmcnt(%d)" % (2 if Opt.touch & 2 else 0))
    a.e("s_barrier")
    def fr(k): return vFR + 12 * (k % 3)
    def reads(k):
        c, s = divmod(k, 2); f = fr(k)
        return [rd128(f + 4 * b, vXA + s + 2 * (c >> 2), (c & 3) * 16384 + b * 2048) for b in range(2)] + \
               [rdtr(f + 8, vQA, k * 2048), rdtr(f + 10, vQA, k * 2048 + 256)]
    for k in range(2):
        for r in reads(k): a.e(r)
    for k in range(16):
        a.e("s_waitcnt lgkmcnt(%d)" % (4 * min(1, 15 - k)))
        for b in range(2): a.e(mfma16(vAQ + 4 * b, fr(k) + 8, fr(k) + 4 * b, None if k == 0 else vAQ + 4 * b))
        if k + 2 < 16:
            for r in reads(k + 2): a.e(r)
    spin_counter(a, "kvl", False)
    a.e("s_barrier")
    for s, t in kv_first_loads(a): a.e(s)
    a.wait0()
    a.stamp(4)
    a.e("s_branch L_join")

def gelu_tile(a, ti, scalar=False):
    acc = vACC + 16 * ti
    t = vFR
    o = vFR + 8 + 4 * ti
    pk = lambda r: v(r, 2)
    if scalar:
        for i in range(8): a.e("v_mul_f32 %s, %s, %s" % (v(t + i), v(acc + i), v(acc + i)))
        for i in range(8): a.e("v_fma_f32 %s, %s, %s, %s" % (v(t + i), v(t + i), v(vC0 + 1), v(vC0)))
        for i in range(8): a.e("v_mul_f32 %s, %s, %s" % (v(t + i), v(t + i), v(acc + i)))
        for i in range(8): a.e("v_exp_f32 %s, %s" % (v(t + i), v(t + i)))
        for i in range(8): a.e("v_add_f32 %s, 1.0, %s" % (v(t + i), v(t + i)))
        for i in range(8): a.e("v_rcp_f32 %s, %s" % (v(t + i), v(t + i)))
        for i in range(8): a.e("v_mul_f32 %s, %s, %s" % (v(acc + i), v(acc + i), v(acc + 8 + i)))
        for i in range(8): a.e("v_mul_f32 %s, %s, %s" % (v(acc + i), v(acc + i), v(t + i)))
    R4, R8 = (range(0), range(0)) if scalar else (range(4), range(8))
    for i in R4: a.e("v_pk_mul_f32 %s, %s, %s" % (pk(t + 2 * i), pk(acc + 2 * i), pk(acc + 2 * i)))
    for i in R4: a.e("v_pk_fma_f32 %s, %s, %s, %s op_sel:[0,1,0] op_sel_hi:[1,1,0]" % (pk(t + 2 * i), pk(t + 2 * i), pk(vC0), pk(vC0)))
    for i in R4: a.e("v_pk_mul_f32 %s, %s, %s" % (pk(t + 2 * i), pk(t + 2 * i), pk(acc + 2 * i)))
    for i in R8: a.e("v_exp_f32 %s, %s" % (v(t + i), v(t + i)))
    for i in R4: a.e("v_pk_add_f32 %s, %s, 1.0 op_sel_hi:[1,0]" % (pk(t + 2 * i), pk(t + 2 * i)))
    for i in R8: a.e("v_rcp_f32 %s, %s" % (v(t + i), v(t + i)))
    for i in R4: a.e("v_pk_mul_f32 %s, %s, %s" % (pk(acc + 2 * i), pk(acc + 2 * i), pk(acc + 8 + 2 * i)))
    for i in R4: a.e("v_pk_mul_f32 %s, %s, %s" % (pk(acc + 2 * i), pk(acc + 2 * i), pk(t + 2 * i)))
    for i in range(4): a.e("v_cvt_pk_bf16_f32 %s, %s, %s" % (v(o + i), v(acc + 2 * i), v(acc + 2 * i + 1)))
    a.vmop("buffer_store_dwordx4 %s, %s, %s, s%d offen offset:%d sc1" % (v(o, 4), v(vHA), srd(SWS), sHST2 if ti >> 1 else sHST, (ti & 1) * 256), "hst")

def Yseg(hset, toggle=False, first=False, extra=False, last=False):
    out = []
    for t in range(2):
        pos = [int(x, 17) for x in (Opt.ypos0 if hset is None else Opt.ypos2 if extra else Opt.ypos1)]
        if last and t == 1: pos = [pos[0], 0, pos[2], pos[1]]
        S, Sn = vS + 16 * t, vS + 16 * (1 - t)
        K, V0, V1 = vKF + 4 * t, vV + 8 * t, vV + 8 * t + 4
        for e in range(1, 17):
            out.append("v_exp_f32 %s, %s" % (v(S + e - 1), v(S + e - 1)))
            if e == pos[0] and not (first and t == 0): out.append(smfmac(vO, V1, Sn + 8))
            if e == pos[1]: out.append(mfma(Sn, K, vQ, None))
            if e == pos[2]: out.append(smfmac(vO, V0, S))
            if hset is not None:
                if e == 13 and t == 1 and toggle:
                    out.append("v_xor_b32 %s, 0x4000, %s" % (v(vKVB), v(vKVB)))
                if e == pos[3]: out.append(mfma(vD + 16 * t, vWF + 4 * t, vH + 4 * hset, vD + 16 * t))
                if extra and e == pos[4]: out.append(mfma(vD + 16 * t, vFR + 16 + 4 * t, vH + 16 + 4 * hset, vD + 16 * t))
    return out

def kv_reads(off, vKVA=vKVA):
    r = [rd128(vKF, vKVA, off), rd128(vKF + 4, vKVA, off + 2048), "s_mov_b64 exec, %s" % sp(sVM)]
    for t in range(2):
        r += [rd128(vV + 8 * t, vKVA, off + 2048 * t + 1024), rd128(vV + 8 * t + 4, vKVA, off + 2048 * t + 1280)]
    r.append("s_mov_b64 exec, -1")
    return r
def wd_reads(dst, addr, off):
    r = []
    for c in range(2):
        r += [rdtr(dst + 4 * c, addr, off + 512 * c), rdtr(dst + 4 * c + 2, addr, off + 512 * c + 1024)]
    return r

def hord(): return [0, 2, 4, 6, 1, 3, 5, 7] if Opt.hord else list(range(8))
def wdrow(sg): return (32 * (sg >> 1) + 8 * (sg & 1)) * 1024

def attention(a, role, pre0=None):
    A = role == "A"
    def kvdma(u):
        a.vmop("s_add_u32 m0, s%d, 0x%x\ns_add_u32 s%d, s%d, 0x%x\nbuffer_load_dwordx4 %s, %s, s%d offen sc1 lds"
               % (sWK, L_KV + (u % 4) * 8192, sA, sWK, u * 8192, v(vL16), srd(SKV), sA), "kv%d" % u)
    def wddma(sg):
        a.vmop("s_add_u32 m0, s%d, 0x%x\ns_add_u32 s%d, s%d, 0x%x\nbuffer_load_dwordx4 %s, %s, s%d offen lds"
               % (sWK, L_WD + (sg % 4 if sg < 23 or sg == 27 else sg - 19) * 8192, sA, sWDOFF, wdrow(sg), v(vWDV), srd(SWD), sA), "wd%d" % sg)
    def wodma(j):
        a.vmop("s_add_u32 m0, s%d, 0x%x\ns_add_u32 s%d, s%d, 0x%x\nbuffer_load_dwordx4 %s, %s, s%d offen lds"
               % (sWK, L_WO + (7 - j) * 8192, sA, sB, hord()[j] * 16384, v(vWDV), srd(SWO), sA), "wo")
    def hload(sg, dst):
        a.vmop("s_add_u32 s%d, s%d, 0x%x\nbuffer_load_dwordx4 %s, %s, %s, s%d offen sc1"
               % (sA, sHOFF, sg * 1024, v(dst, 4), v(vL16), srd(SWS), sA), "h%d" % sg)
    for n in range(12):
        if not A and n == 0: a.e("s_barrier")
        if n % 2 == 1: astamp(a, 2 + n // 2)
        tags = []
        if A and n % 2 == 1: tags.append("kv%d" % ((n + 1) // 2))
        if not A and n % 2 == 0: tags.append("kv%d" % ((n + 2) // 2))
        if n == (3 if A else 2): tags.append("hst")
        if n == 6: tags.append("wo")
        if n == 9: tags.append("wd27")
        if n == 11: tags.append("wd0")
        if n == 9 and A:
            a.e("s_cmp_lg_u32 s%d, 0" % sW)
            a.e("s_cbranch_scc1 L_hf_done")
            a.e("s_mov_b32 s%d, 0x4000" % sB)
            a.e("s_waitcnt vmcnt(0)")
            a.lab("L_hf_chk")
            a.e("v_cmp_ne_u32 vcc, 1, %s" % v(vPOLL))
            a.e("s_cbranch_vccz L_hf_done")
            a.e("s_sleep 2")
            a.e("buffer_load_dword %s, %s, %s, 0 offen sc1" % (v(vPOLL), v(vFLA), srd(SWS)))
            a.e("s_sub_u32 s%d, s%d, 1" % (sB, sB))
            a.e("s_cmp_lg_u32 s%d, 0" % sB)
            a.e("s_waitcnt vmcnt(0)")
            a.e("s_cbranch_scc1 L_hf_chk")
            a.lab("L_hf_done")
        a.waitvm(tags)
        if n == 5 and Opt.diag == 3 and A:
            a.e("v_mov_b32 v2, s%d" % sSTAMP)
            a.e("s_lshl_b32 s%d, s2, 3" % sA)
            a.e("s_add_u32 s%d, s%d, s%d" % (sA, sA, sW))
            a.e("s_lshl_b32 s%d, s%d, 7" % (sA, sA))
            a.e("s_add_u32 s%d, s%d, 0x%x" % (sA, sA, WS_STAMP))
            a.e("s_mov_b64 exec, 1")
            a.vmop("buffer_store_dword v2, off, %s, s%d offset:12 sc1" % (srd(SWS), sA), "st")
            a.e("s_mov_b64 exec, -1")
        if n == 3 and not A:
            a.e("s_cmp_ge_u32 s%d, 14" % sM)
            a.e("s_cbranch_scc1 L_nohf")
            a.e("s_cmp_lg_u32 s%d, 4" % sW)
            a.e("s_cbranch_scc1 L_nohf")
            a.e("s_lshl_b32 s%d, s%d, 4" % (sA, sG))
            a.e("s_add_u32 s%d, s%d, s%d" % (sA, sA, sM))
            a.e("s_lshl_b32 s%d, s%d, 7" % (sA, sA))
            a.e("s_add_u32 s%d, s%d, 0x%x" % (sA, sA, WS_HFLAG))
            a.e("s_mov_b64 exec, 1")
            a.e("buffer_store_dword %s, off, %s, s%d sc1" % (v(vONE), srd(SWS), sA))
            a.e("s_mov_b64 exec, -1")
            a.lab("L_nohf")
        for r in kv_reads((n % 8) * 4096): a.e(r)
        if n == 8 and A:
            a.e("s_cmp_lg_u32 s%d, 0" % sW)
            a.e("s_cbranch_scc1 L_hf_nol")
            a.e("buffer_load_dword %s, %s, %s, 0 offen sc1" % (v(vPOLL), v(vFLA), srd(SWS)))
            a.lab("L_hf_nol")
        if n == 0:
            kvdma(2); kvdma(3)
            a.e("s_mov_b32 s%d, s%d" % (sC, sKQ))
            a.e("s_mul_i32 s%d, s%d, %d" % (sWDOFF, sC, 448 * 1024))
            a.e("s_and_b32 s%d, s%d, 1" % (sB, sW))
            a.e("s_lshl_b32 s%d, s%d, 14" % (sA, sB))
            a.e("s_add_u32 s%d, s%d, s%d" % (sWDOFF, sWDOFF, sA))
            a.e("s_lshl_b32 s%d, s%d, 1" % (sA, sT))
            a.e("s_add_u32 s%d, s%d, s%d" % (sA, sA, sB))
            a.e("s_mul_i32 s%d, s%d, 112" % (sA, sA))
            a.e("s_mul_i32 s%d, s%d, 28" % (sB, sC))
            a.e("s_add_u32 s%d, s%d, s%d" % (sA, sA, sB))
            a.e("s_lshl_b32 s%d, s%d, 10" % (sA, sA))
            a.e("s_add_u32 s%d, s%d, 0x%x" % (sHOFF, sA, WS_HF))
        if (A and n % 2 == 1 and n >= 3): kvdma((n + 5) // 2)
        if (not A and n % 2 == 0 and n >= 2): kvdma((n + 6) // 2)
        if 1 <= n <= 4:
            a.e("s_lshl_b32 s%d, s%d, 17" % (sB, sKQ))
            a.e("s_and_b32 s%d, s%d, 1" % (sC, sW))
            a.e("s_lshl_b32 s%d, s%d, 13" % (sC, sC))
            a.e("s_add_u32 s%d, s%d, s%d" % (sB, sB, sC))
            for j in (2 * n - 2, 2 * n - 1): wodma(j)
        for sg in {5: (27, 23, 24), 6: (25, 26, 0), 7: (1, 2)}.get(n, ()): wddma(sg)
        if n == 10:
            for r in wd_reads(vWX, vWDA, 3 * 8192): a.e(r)
        for j in ({7: (0,), 8: (1, 2), 9: (3, 4)} if A else {7: (0, 1), 8: (2, 3), 9: (4,)}).get(n, ()):
            for r in wd_reads(WOF[j], vWOA, (7 - j) * 8192): a.e(r)
        hs = {10: (0, 1, 23, 24), 11: (2, 25, 26, 27)} if A else {9: (0, 1, 23), 10: (2, 24), 11: (25, 26, 27)}
        for sg in hs.get(n, ()): hload(sg, vH + 4 * sg if sg < 4 else vHX if sg == 27 else vH + 4 * (sg - 19))
        if n == 11:
            a.e("s_add_u32 s%d, s%d, 0x%x" % (sHOFF, sHOFF, 3 * 1024))
            a.e("s_add_u32 s%d, s%d, 0x%x" % (sWDOFF, sWDOFF, wdrow(3)))
            a.e("s_add_u32 s%d, s%d, 0x%x" % (sKVOFF, sWK, 9 * 8192))
            a.e("s_mov_b32 s%d, 4" % sCNT)
            a.e("s_add_u32 s%d, s%d, 0x1000" % (sOLD2, sOLD))
            a.e("s_mov_b32 s%d, 0x%x" % (sLO_, f2u(2.0 ** -16)))
            a.e("s_mov_b32 s%d, 0x%x" % (sRNG, f2u(2.0 ** 100) - f2u(2.0 ** -16)))
        if n == 0 and pre0:
            pre0()
            a.stamp(5)
        a.e("s_waitcnt lgkmcnt(0)")
        if n == 0:
            if A: a.e("s_barrier")
            for x in Yseg(None, first=True): a.e(x)
            if not A: a.e("s_barrier")
            continue
        a.e("s_call_b64 %s, L_Y%s" % (sp(sRET), role))
        if n == 1:
            a.e("s_branch L_X1%s" % role)
            a.lab("L_Y%s" % role)
            if A: a.e("s_barrier")
            for x in Yseg(None): a.e(x)
            if not A: a.e("s_barrier")
            a.e("s_setpc_b64 %s" % sp(sRET))
            a.lab("L_X1%s" % role)
    vm = list(a.vm); need = [63] * 8
    for n in range(12, 32):
        p = n % 4; q = p + (4 if n >= 28 else 0)
        tags = ["wd%d" % (n - 11), "h%d" % (n - 12)]
        if (p % 2 == 1) == A: tags.append("kv%d" % ((n + (1 if A else 2)) // 2))
        idx = [i for i, t in enumerate(vm) if t in tags]
        if idx: need[q] = min(need[q], len(vm) - 1 - max(idx))
        vm.append("wd%d" % (n - 9))
        vm.append("h%d" % (n - 9))
        if (p % 2 == 1) == A and n < 28: vm.append("kv%d" % ((n + (5 if A else 6)) // 2))
    a.lab("L_loop%s" % role)
    for q in range(8):
        p = q % 4; fin = q >= 4
        kv = (p % 2 == 1) == A and not fin
        if q == 0 and Opt.diag and Opt.kdiag == 2:
            a.e("s_cmp_lg_u32 s%d, 3" % sCNT)
            a.e("s_cbranch_scc1 L_nst%s" % role)
            astamp(a, 8)
            a.lab("L_nst%s" % role)
        a.e("s_waitcnt vmcnt(%d)" % need[q])
        for i, r in enumerate(kv_reads(p * 4096, vKVB)):
            if not (q == 7 and i == 1): a.e(r)
        for r in wd_reads(vWF, vWDA, p * 8192): a.e(r)
        if fin and p < Opt.nx:
            for r in wd_reads(vFR + 16, vWDA, (4 + p) * 8192): a.e(r)
        if q == 7:
            for r in wd_reads(vFR, vWDA, (4 + Opt.nx) * 8192): a.e(r)
        a.e("s_add_u32 m0, s%d, 0x%x" % (sWK, L_WD + ((p + 3) % 4) * 8192))
        a.e("s_and_b32 s%d, s%d, 0x7fff" % (sA, sKVOFF))
        a.e("buffer_load_dwordx4 %s, %s, s%d offen lds" % (v(vWDV), srd(SWD), sWDOFF))
        a.e("s_add_u32 s%d, s%d, 0x%x" % (sWDOFF, sWDOFF, 0x2000 if p & 1 else 0x6000))
        a.e("buffer_load_dwordx4 %s, %s, %s, s%d offen sc1" % (v(vH + 4 * ((p + 3) % 4), 4), v(vL16), srd(SWS), sHOFF))
        if kv: a.e("s_add_u32 m0, s%d, 0x%x" % (sA, L_KV))
        a.e("s_add_u32 s%d, s%d, 0x400" % (sHOFF, sHOFF))
        if kv:
            a.e("buffer_load_dwordx4 %s, %s, s%d offen sc1 lds" % (v(vL16), srd(SKV), sKVOFF))
            a.e("s_add_u32 s%d, s%d, 0x2000" % (sKVOFF, sKVOFF))
        if q == 3:
            a.e("s_sub_u32 s%d, s%d, 1" % (sCNT, sCNT))
            a.e("s_cmp_lg_u32 s%d, 0" % sCNT)
        a.e("s_waitcnt lgkmcnt(0)")
        if A: a.e("s_barrier")
        for x in Yseg(p, toggle=(q == 3), extra=(fin and p < Opt.nx), last=(q == 7)): a.e(x)
        if not A and q < 7: a.e("s_barrier")
        if q == 3: a.e("s_cbranch_scc1 L_loop%s" % role)
    a.e("s_nop 1")

def transition(a, role):
    A = role == "A"
    if A:
        a.vm = []
        a.lab("L_trA")
    else:
        a.lab("L_join")
        a.e("s_cmp_eq_u32 s%d, 0" % sHI)
        a.e("s_cbranch_scc1 L_trA")
        a.vmjoin = list(a.vm)
    def qfin():
        for i in range(4): a.e("v_cvt_pk_bf16_f32 %s, %s, %s" % (v(vQ + i), v(vAQ + 2 * i), v(vAQ + 2 * i + 1)))
        a.e("v_add_u32 %s, 0x%x, %s" % (v(vWOA), L_WO, v(vWDA)))
        a.e("v_permlane16_swap_b32 %s, %s" % (v(vQ), v(vQ + 2)))
        a.e("v_permlane16_swap_b32 %s, %s" % (v(vQ + 1), v(vQ + 3)))
    pre0 = None
    if A:
        a.e("s_setprio 1")
        a.e("s_cmp_ge_u32 s%d, 14" % sM)
        a.e("s_cbranch_scc1 L_nogA0")
        put(a, a.kvA[:1] + a.kvA[-1:])
        a.l.append(".p2align 3")
        for ti in range(Opt.gsc): gelu_tile(a, ti, True)
        a.lab("L_nogA0")
        qfin()
        a.waitvm(["k0", "kv0", "kv1"])
        a.e("s_setprio 0")
        a.e(mfma(vS, vK0, vQ, None))
        a.e("s_barrier")
        put(a, a.kvA[1:-1])
        def pre0():
            a.e("s_cmp_lt_u32 s%d, 14" % sM)
            a.e("s_cbranch_scc1 L_gA1")
            a.e("s_waitcnt vmcnt(0)")
            a.e("s_branch L_nogA1")
            a.l.append(".p2align 3")
            a.lab("L_gA1")
            for ti in range(Opt.gsc, 4): gelu_tile(a, ti)
            a.lab("L_nogA1")
            a.e("s_setprio 2")
    else:
        a.waitvm(["k0", "kv0", "kv1"])
        a.e("s_setprio 1")
        a.e("s_cmp_ge_u32 s%d, 14" % sM)
        a.l.append(".p2align 3")
        a.e("s_barrier")
        a.e("s_cbranch_scc1 L_nogB")
        for ti in range(4): gelu_tile(a, ti)
        a.lab("L_nogB")
        qfin()
        a.e("s_nop 1")
        a.e(mfma(vS, vK0, vQ, None))
        a.stamp(5)
    attention(a, role, pre0)
    if A:
        a.stamp(6); astamp(a, 9); tstamp(a, 2)
        if Opt.diag and Opt.kdiag == 2: a.e("s_waitcnt lgkmcnt(0)")
        a.e(smfmac(vO, vV1L, vS + 24))
        a.e("s_setprio 0")
        a.e("s_cmp_eq_u32 s%d, 0" % sHI)
        a.e("s_nop 9")
        normalise(a, False)
        a.lab("L_fbretA")
        a.e("buffer_store_dwordx4 %s, %s, %s, s%d offen sc1" % (v(vPK, 4), v(vL16), srd(SWS), sOST))
        tstamp(a, 3)
        a.e("s_waitcnt vmcnt(1)")
        tstamp(a, 4)
        a.e("s_barrier")
        a.fetch(a, False)
        a.e("s_branch L_tl2")

def normalise(a, packed):
    t = vT0
    a.e("v_rcp_f32 %s, %s" % (v(t + 2), v(vO + 8)))
    a.e("s_nop 0")
    a.e("v_mul_f32_e64 %s, %s, %s" % (v(t + 2), v(t + 2), v(vGP)))
    if packed:
        for i in range(4): a.e("v_pk_mul_f32 %s, %s, %s op_sel_hi:[1,0]" % (v(vO + 2 * i, 2), v(vO + 2 * i, 2), v(t + 2, 2)))
        for i in range(4):
            a.e("v_pk_fma_f32 %s, %s, 0, %s op_sel_hi:[1,0,%d]" % (v(t, 2), v(vO + 2 * i, 2), v(t, 2) if i else v(vO + 8, 2), 1 if i else 0))
            a.e("v_cvt_pk_bf16_f32 %s, %s, %s" % (v(vPK + i), v(vO + 2 * i), v(vO + 2 * i + 1)))
        a.e("v_fmac_f32 %s, 0, %s" % (v(t), v(t + 1)))
    else:
        t = vO + 8
        for i in range(8): a.e("v_mul_f32 %s, %s, %s" % (v(vO + i), v(vT0 + 2), v(vO + i)))
        for i in range(4):
            a.e("v_fmac_f32 %s, 0, %s" % (v(t), v(vO + 2 * i)))
            a.e("v_cvt_pk_bf16_f32 %s, %s, %s" % (v(vPK + i), v(vO + 2 * i), v(vO + 2 * i + 1)))
            a.e("v_fmac_f32 %s, 0, %s" % (v(t), v(vO + 2 * i + 1)))
    a.e("v_subrev_u32 %s, s%d, %s" % (v(t), sLO_, v(t)))
    a.e("v_cmp_lt_u32 vcc, s%d, %s" % (sRNG, v(t)))
    a.e("s_branch L_fb" if Opt.force_fb else "s_cbranch_vccnz L_fb")

def tail(a):
    a.lab("L_tail")
    a.stamp(6)
    astamp(a, 9)
    if Opt.diag and Opt.kdiag == 2: a.e("s_waitcnt lgkmcnt(0)")
    tstamp(a, 2)
    a.e(smfmac(vO, vV1L, vS + 24))
    wf = [vFR, vFR + 8, vFR + 16]
    HORD = hord()
    def oload(j):
        return "buffer_load_dwordx4 %s, %s, %s, s%d offen offset:%d %s" % (
            v(vS + 4 * j, 4), v(vL16), srd(SWS), sOLD if HORD[j] < 4 else sOLD2, (HORD[j] % 4) * 1024, Opt.old_pol)
    a.oload = oload
    a.e("s_cmp_eq_u32 s%d, 0" % sHI)
    a.e("s_nop 10")
    a.l.append(".p2align 3")
    normalise(a, True)
    a.lab("L_fbret")
    a.e("buffer_store_dwordx4 %s, %s, %s, s%d offen sc1" % (v(vPK, 4), v(vL16), srd(SWS), sOST))
    tstamp(a, 3)
    aw = [vAW0, vWOA + 1, vWOA + 2, vWOA + 3]
    ar = [vAR0, vFLA]
    wo = WOF
    def fetch(o, scale):
        for j in range(8):
            o.e(oload(j))
            if j >= 5:
                for r in wd_reads(wo[j], vWOA, (7 - j) * 8192): o.e(r)
            if scale and j >= 4:
                for i in range(4 * j - 16, 4 * j - 12): o.e("v_mul_f32 %s, %s, %s" % (v(vD + i), v(vGC), v(vD + i)))
    def addrs(a):
        a.e("v_sub_f32 %s, 1.0, %s" % (v(vGC), v(vGC)))
        for j in range(1, 4): a.e("v_xor_b32 %s, %d, %s" % (v(aw[j]), 32 * j, v(aw[0])))
        a.e("v_xor_b32 %s, 16, %s" % (v(ar[1]), v(ar[0])))
        a.e("s_mov_b32 s%d, 0x2000" % sB)
    ol = Asm(); a.ool2 = ol.l
    a.e("s_waitcnt vmcnt(1)")
    tstamp(a, 4)
    a.e("s_barrier")
    a.lab("L_tl2")
    tstamp(a, 5)
    a.fetch = fetch
    fl = collect(addrs)
    slot = [4, 5, 6, 7, 0, 1, 2][Opt.nx:]
    rds = sum((wd_reads(wf[i % 3], vWDA, slot[i] * 8192) for i in range(len(slot))), [])
    done = 4
    for i in range(-1, len(slot)):
        for c in range(2):
            if i >= 1: a.e("s_waitcnt lgkmcnt(%d)" % (done - (4 * i + 2 * c + 2)))
            a.e(mfma(vD + 16 * c, vWX + 4 * c, vHX, vD + 16 * c) if i < 0 else
                mfma(vD + 16 * c, wf[i % 3] + 4 * c, vH + 4 * slot[i], vD + 16 * c))
            if done < len(rds):
                for r in rds[done:done + 2]: a.e(r)
                done += 2
            else:
                put(a, fl[:2]); fl = fl[2:]
    assert not fl
    tstamp(a, 6)
    a.e("s_cbranch_scc0 L_tl3")
    a.l.append(".p2align 3")
    a.e("s_nop 7")
    a.e("s_nop 0")
    for i in range(16): a.e("v_pk_mul_f32 %s, %s, %s op_sel:[0,1] op_sel_hi:[1,1]" % (v(vD + 2 * i, 2), v(vD + 2 * i, 2), v(vGP, 2)))
    tstamp(a, 7)
    a.lab("L_tl4")
    tstamp(a, 8)
    ol.lab("L_tl3")
    ol.e("s_setprio 0")
    fetch(ol, False)
    tstamp(ol, 7)
    for i in range(32): ol.e("v_mul_f32 %s, %s, %s" % (v(vD + i), v(vGC), v(vD + i)))
    ol.e("s_waitcnt lgkmcnt(0)")
    ol.e("s_branch L_tl4")
    a.stamp(7)
    def check(j):
        o = vS + 4 * j
        return ["s_waitcnt vmcnt(%d)" % (7 - j), "v_max3_u32 v2, %s, %s, %s" % (v(o), v(o + 1), v(o + 2)),
                "v_max_u32 v2, v2, %s" % v(o + 3), "v_cmp_eq_u32 vcc, -1, v2"]
    a.check = check
    for x in check(0): a.e(x)
    for j in range(10):
        if j < 8:
            a.e("s_cbranch_vccnz L_ore%d" % j)
            a.lab("L_ook%d" % j)
            a.e(mfma(vD, wo[j], vS + 4 * j, vD))
        if j >= 2 and Opt.cfirst: a.e(mfma(vD + 16, wo[j - 2] + 4, vS + 4 * (j - 2), vD + 16))
        if j < 7:
            for x in check(j + 1): a.e(x)
        if j >= 2 and not Opt.cfirst: a.e(mfma(vD + 16, wo[j - 2] + 4, vS + 4 * (j - 2), vD + 16))
        if j in (7, 8): a.e("s_nop 4")
    wr = lambda c, j: "ds_write_b128 %s, %s offset:%d" % (v(aw[j]), v(vD + 16 * c + 4 * j, 4), 128 * c)
    a.stamp(8)
    tstamp(a, 9)
    for j in range(4): a.e(wr(0, j))
    a.e("s_nop 7")
    for j in range(4): a.e(wr(1, j))
    a.e("s_waitcnt lgkmcnt(0)")
    a.e("s_barrier")
    for p in range(4):
        for h in range(2): a.e(rd128(vS + 8 * p + 4 * h, ar[h], p * 8192))
    for p in range(1, 4):
        a.e("s_waitcnt lgkmcnt(%d)" % (6 - 2 * p))
        for i in range(4): a.e("v_pk_add_f32 %s, %s, %s" % (v(vS + 2 * i, 2), v(vS + 2 * i, 2), v(vS + 8 * p + 2 * i, 2)))
    for i in range(4): a.e("v_cvt_pk_bf16_f32 %s, %s, %s" % (v(vP + i), v(vS + 2 * i), v(vS + 2 * i + 1)))
    a.e("buffer_store_dwordx4 %s, %s, %s, s%d offen %s" % (v(vP, 4), v(vOUTA), srd(SOUT), sOUTO, Opt.out_pol))
    if Opt.probe >= 0:
        a.e("s_waitcnt vmcnt(0)")
        a.stamp(9)
        if Opt.probe != 9:
            a.e("s_cmp_ge_u32 s%d, 14" % sM)
            a.e("s_cbranch_scc%d L_end" % (0 if Opt.probe_l else 1))
        a.e("s_sub_u32 s%d, s%d, s%d" % (sA, sSTAMP + 4, sSTAMP))
        a.e("s_mul_i32 s%d, s%d, %d" % (sA, sA, Opt.probe_mul - 1))
        a.e("s_min_u32 s%d, s%d, 100000" % (sA, sA))
        a.e("s_add_u32 s%d, s%d, 3800" % (sA, sA))
        if Opt.probe_r >= 0:
            a.e("s_cmp_eq_u32 s%d, 0x2000" % sB)
            a.e("s_cbranch_scc%d L_end" % Opt.probe_r)
        if Opt.probe_w >= 0:
            a.e("s_cmp_lg_u32 s%d, %d" % (sHI, Opt.probe_w))
            a.e("s_cbranch_scc1 L_end")
        if Opt.probe_x >= 0:
            a.e("s_and_b32 s0, s2, 7")
            a.e("s_cmp_lg_u32 s0, %d" % Opt.probe_x)
            a.e("s_cbranch_scc1 L_end")
        a.lab("L_probe")
        a.e("s_memrealtime s[0:1]")
        a.e("s_waitcnt lgkmcnt(0)")
        a.e("s_sub_u32 s0, s0, s%d" % (sSTAMP + 4))
        a.e("s_cmp_lt_u32 s0, s%d" % sA)
        a.e("s_cbranch_scc1 L_probe")
    if Opt.pin == 9:
        a.e("s_waitcnt vmcnt(0)")
        a.stamp(9)
    if Opt.diag in (1, 2):
        a.e("s_waitcnt vmcnt(0)")
        a.stamp(9)
        a.e("s_mov_b32 s%d, s%d" % (sSTAMP + 3, sSTAMP))
        a.e("s_mov_b32 s%d, s%d" % (sSTAMP, sB))
        a.e("s_getreg_b32 s%d, hwreg(HW_REG_XCC_ID)" % (sSTAMP + 1))
        for i in range(20): a.e("v_mov_b32 %s, s%d" % (v(vS + i), sSTAMP + i))
        a.e("s_lshl_b32 s%d, s2, 3" % sA)
        a.e("s_add_u32 s%d, s%d, s%d" % (sA, sA, sW))
        a.e("s_lshl_b32 s%d, s%d, 7" % (sA, sA))
        a.e("s_add_u32 s%d, s%d, 0x%x" % (sA, sA, WS_STAMP))
        a.e("s_mov_b64 exec, 1")
        for i in range(5): a.e("buffer_store_dwordx4 %s, off, %s, s%d offset:%d" % (v(vS + 4 * i, 4), srd(SWS), sA, 16 * i))
    a.lab("L_end")
    a.e("s_endpgm")
    a.l += a.ool2
    for j in range(8):
        a.lab("L_ore%d" % j)
        a.e("s_sub_u32 s%d, s%d, 1" % (sB, sB))
        a.e("s_cbranch_scc1 L_ogive%d" % j)
        a.e("s_waitcnt vmcnt(0)")
        for i in range(j, 8): a.e(a.oload(i))
        for x in a.check(j): a.e(x)
        a.e("s_cbranch_vccnz L_ore%d" % j)
        a.e("s_branch L_ook%d" % j)
        a.lab("L_ogive%d" % j)
        a.e("s_mov_b32 s%d, 0" % sB)
        a.e("s_branch L_ook%d" % j)

def fallback(a):
    a.lab("L_fb")
    m = vT0
    a.e("v_mov_b32 %s, 0xff800000" % v(m))
    a.e("s_mov_b32 s%d, 0" % sA)
    a.lab("L_fb1")
    a.e("buffer_load_dwordx4 %s, %s, %s, s%d offen sc1" % (v(vKF, 4), v(vL16), srd(SKV), sA))
    a.e("s_waitcnt vmcnt(0)")
    a.e(mfma(vS, vKF, vQ, None))
    a.e("s_add_u32 s%d, s%d, 2048" % (sA, sA))
    a.e("s_nop 11")
    for i in range(8): a.e("v_max3_f32 %s, %s, %s, %s" % (v(m), v(m), v(vS + 2 * i), v(vS + 2 * i + 1)))
    a.e("s_cmp_lt_u32 s%d, 0x20000" % sA)
    a.e("s_cbranch_scc1 L_fb1")
    a.e("v_mov_b32 %s, %s" % (v(m + 1), v(m)))
    a.e("s_nop 1")
    a.e("v_permlane32_swap_b32 %s, %s" % (v(m), v(m + 1)))
    a.e("s_nop 1")
    a.e("v_max_f32 %s, %s, %s" % (v(m), v(m), v(m + 1)))
    for i in range(16): a.e("v_sub_f32 %s, 0, %s" % (v(vS + 16 + i), v(m)))
    for i in range(16): a.e("v_mov_b32 %s, 0" % v(vO + i))
    a.e("s_mov_b32 s%d, 0" % sA)
    a.lab("L_fb2")
    a.e("s_add_u32 s%d, s%d, 0x%x" % (sB, sA, 63 * 2048))
    a.e("s_and_b32 s%d, s%d, 0x1ffff" % (sB, sB))
    a.e("buffer_load_dwordx4 %s, %s, %s, s%d offen sc1" % (v(vKF, 4), v(vL16), srd(SKV), sB))
    a.e("s_add_u32 s%d, s%d, 2048" % (sB, sA))
    a.e("s_and_b32 s%d, s%d, 0x1ffff" % (sB, sB))
    a.e("s_mov_b64 exec, %s" % sp(sVM))
    a.e("buffer_load_dwordx4 %s, %s, %s, s%d offen offset:1024 sc1" % (v(vV, 4), v(vL16), srd(SKV), sA))
    a.e("buffer_load_dwordx4 %s, %s, %s, s%d offen offset:1280 sc1" % (v(vV + 4, 4), v(vL16), srd(SKV), sB))
    a.e("s_mov_b64 exec, -1")
    a.e("s_waitcnt vmcnt(0)")
    a.e(mfma(vS, vKF, vQ, vS + 16))
    a.e("s_add_u32 s%d, s%d, 2048" % (sA, sA))
    a.e("s_nop 11")
    for i in range(16): a.e("v_exp_f32 %s, %s" % (v(vS + i), v(vS + i)))
    a.e("s_nop 2")
    a.e(smfmac(vO, vV, vS))
    a.e(smfmac(vO, vV + 4, vS + 8))
    a.e("s_cmp_lt_u32 s%d, 0x20000" % sA)
    a.e("s_cbranch_scc1 L_fb2")
    a.e("s_nop 11")
    a.e("v_rcp_f32 %s, %s" % (v(vT0 + 2), v(vO + 8)))
    a.e("s_cmp_eq_u32 s%d, 0" % sHI)
    a.e("v_mul_f32 %s, %s, %s" % (v(vT0 + 2), v(vT0 + 2), v(vGP)))
    for i in range(8): a.e("v_mul_f32 %s, %s, %s" % (v(vO + i), v(vT0 + 2), v(vO + i)))
    for i in range(4): a.e("v_cvt_pk_bf16_f32 %s, %s, %s" % (v(vPK + i), v(vO + 2 * i), v(vO + 2 * i + 1)))
    for i in range(4): a.e("v_min_u32 %s, -2, %s" % (v(vPK + i), v(vPK + i)))
    a.e("s_cbranch_scc1 L_fbretA")
    a.e("s_branch L_fbret")

def build():
    a = Asm()
    prologue(a)
    phase1_F(a)
    transition(a, "B")
    tail(a)
    a.l += a.ool
    transition(a, "A")
    phase1_L(a)
    fallback(a)
    a.lab("L_codeend")
    for i, x in enumerate(a.l):
        if " sc1" in x and "sc0" not in x and ((Opt.allsc & 1 and "buffer_store" in x) or (Opt.allsc & 2 and "buffer_load" in x)):
            a.l[i] = x.replace(" sc1", " sc0 sc1")
    il = a.l.index("L_light:")
    for i, x in enumerate(a.l):
        if x.endswith(" lds") and "sc1" not in x and " nt" not in x:
            if (Opt.ntx & 4 and (srd(SWD) in x or srd(SWO) in x)) or (Opt.ntx & 8 and i > il):
                a.l[i] = x[:-4] + " nt lds"
    head = open("cdna_kernels/%s.s.ref" % NAME).read().split("\n")
    hdr = [l for l in head if l.startswith(";") and "@launch" not in l and "Override" not in l and "grid=" not in l]
    out = hdr + ["; @launch grid=(256,1,1) block=(512,1,1) lds=%d" % LDS_BYTES,
                 '.amdgcn_target "amdgcn-amd-amdhsa--gfx950"', ".text", ".globl %s_kernel" % NAME, ".p2align 8",
                 ".type %s_kernel,@function" % NAME,
                 ".set CODE_PF_MAX, L_codeend - L_nopf - 4" if Opt.code_pf else "",
                 "%s_kernel:" % NAME]
    out += ["; " + x for x in """One persistent launch, one workgroup per CU (generated by a script), 8 waves = two quartets that alternate on each SIMD.
Stage 1: 14 of every 16 workgroups compute gelu(x Wg) * (x Wu) for 128 tokens x 128 columns plus Q for two heads;
         the other two compute K, V and the mixing gate, publish them (counter in d_debug) and then their own Q.
Stage 2: attention for 128 tokens x 2 heads over all keys, S^T = K Q^T, exp2 in place, P V through sparse MFMAs that
         read the high halves of the fp32 probabilities; a row of ones in the V operand gives the row sums.
         The stand-in maximum is 0: it is accepted only if the row sum lies in [2^-16, 2^100] and every accumulator is
         finite, otherwise the wave redoes its rows with the true maximum (L_fb).
         The down projection of a 64 x 64 output tile runs in the same loop once the producers' flags are seen.
Stage 3: attention outputs are handed over through d_ws (cleared to a mark earlier in this launch), projected,
         mixed with the FFN branch, reduced through LDS and stored.""".split("\n")]
    out += a.l
    out += ['.section .rodata,"a"', ".p2align 6", ".amdhsa_kernel %s_kernel" % NAME,
            "  .amdhsa_next_free_vgpr %d" % NV, "  .amdhsa_next_free_sgpr 102", "  .amdhsa_accum_offset 256",
            "  .amdhsa_group_segment_fixed_size 0", "  .amdhsa_kernarg_size 104", "  .amdhsa_user_sgpr_count 2",
            "  .amdhsa_user_sgpr_kernarg_segment_ptr 1", "  .amdhsa_system_sgpr_workgroup_id_x 1", ".end_amdhsa_kernel", ""]
    return "\n".join(out)

if __name__ == "__main__":
    path = sys.argv[1]
    for kv in sys.argv[2:]:
        k, val = kv.split("=")
        cur = getattr(Opt, k)
        setattr(Opt, k, val if isinstance(cur, str) else type(cur)(int(val)))
    open(path, "w").write(build())
```

```python
import sys, struct, math

NAME = "gated_mix__grouped_kv_mqa__geglu_ffn__prompt"

class Opt:
    diag = 0
    mapmode = 1
    force_fb = False
    allsc = 0
    out_pol = "sc0 sc1"
    code_pf = True
    xrot = 0
    pregap = 0
    rwait = 1
    aearly = 0
    bidle = 1
    old_pol = "sc1"
    ypos0 = "36g"
    ypos1 = "36bg"
    ypos2 = "36cg9"
    nd = 1
    nx = 0
    tpos = 1
    cfirst = 0
    tch = 12
    stch = 0
    spos = 1
    tlb = 14
    olate = 1
    hrot = 0
    tbar = 0
    hord = 1
    cmap = 1
    kqx = 0
    oearly = 8
    conc = 1
    ghx = 1
    qa = "077777"
    qb = "588888"
    npre = 8
    stagger = 1
    rper = 2
    dma1 = 17
    kprio = 0
    dma0 = 8
    npd = 4
    kdiag = 0
    fillpre = 0
    fillper = 5
    gsc = 2
    sched = 0
    xmask = 1
    ntx = 0
    touch = 2
    rotg = 0
    rotm = 0
    startbar = 1
    pvz = 1
    pin = -1
    pin_ns = 60000
    probe = -1
    probe_x = -1
    probe_mul = 10
    probe_w = -1
    probe_r = -1
    probe_l = 0

def f2u(x): return struct.unpack("<I", struct.pack("<f", x))[0]

WS_KV = 0
WS_G = 128 * 1024
WS_HFLAG = 192 * 1024
WS_OF = 1 << 20
WS_HF = 4 << 20
WS_STAMP = 12 << 20
WS_SIZE = 16 << 20
K1 = 1024
L_G, L_U, L_X, L_WQ = 0, 48 * K1, 96 * K1, 144 * K1
L_QX = 32 * K1
L_WD, L_WO, L_KV = 0, 64 * K1, 128 * K1
L_RED = 96 * K1
LL_X, LL_W, LL_GATE, LL_WQ = 0, 128 * K1, 144 * K1, 128 * K1
LDS_BYTES = 160 * K1

SX, SWG, SWU, SWQ, SWS, SWD, SWO, SOUT, SDBG, SWKV, SGATE, SKV = 4, 8, 12, 16, 20, 24, 28, 32, 36, 40, 44, 64
SWV = 72
sTMPP = 48
sW, sHI, sLO, sG, sM, sT, sCB = 50, 51, 52, 53, 54, 55, 56
sWK = 57
sWH = 58
sVM = 60
sRET = 62
sA, sB, sC, sD = 68, 69, 70, 71
sOFFW, sOFFQ, sCH, sXP = 72, 73, 74, 75
sHOFF, sWDOFF, sKVOFF, sHXO, sCNT = 72, 73, 74, 75, 77
sOUTO, sLO_, sRNG = 59, 81, 75
sOLD2 = 58
sOST, sOLD, sHST = 78, 79, 80
sHST2 = 3
sRX, sRW, sM0B = 40, 41, 42
sKQ = 76
sHP = sM
sSTAMP = 82

def srd(b): return "s[%d:%d]" % (b, b + 3)
def sp(b): return "s[%d:%d]" % (b, b + 1)
def v(b, n=1): return "v%d" % b if n == 1 else "v[%d:%d]" % (b, b + n - 1)

vL16 = 1
vT0, vT1, vT2, vT3 = 2, 3, 4, 5
vGP, vGC = 6, 7
vKVA = 8
vWDA = 9
vWDV = 10
vONE = 11
vZERO = 12
vFLA = 13
vPOLL = 14
vGA = 15
vQ = 16
vK0 = 20
vV1L = 24
vIDX = 28
vAW0, vAR0, vOUTA = 30, 31, 12
vKVB = 29
vP = 32
vV = 40
vO = 56
vD = 72
vACC = 104
vS = 104
vH = 136
vAQ = vP
vF1 = 168
vKF = 168
vWF = 176
vWX = 224
vHX = 232
vPK = 20
WOF = [32, 208, 216, 240, 248, 40, 48, 56]
vWOA = 236
vFR = 184
vLX = 224
vXA = 240
vWA = 244
vQA = 248
vDX, vDG, vDQ = 249, 250, 251
vC0 = 252
vTID = 255
vHA = 254
NV = 256

class Asm:
    def __init__(self):
        self.l = []
        self.vm = []
        self.nstamp = 0
    def e(self, s):
        for x in s.split("\n"):
            x = x.strip()
            if x: self.l.append("    " + x)
    def lab(self, s): self.l.append(s + ":")
    def vmop(self, s, tag):
        self.e(s); self.vm.append(tag)
    def vmn(self, tags):
        if isinstance(tags, str): tags = [tags]
        last = -1
        for i, t in enumerate(self.vm):
            if t in tags: last = i
        return None if last < 0 else len(self.vm) - 1 - last
    def waitvm(self, tags, lgkm=False):
        n = self.vmn(tags)
        if n is None:
            if lgkm: self.e("s_waitcnt lgkmcnt(0)")
            return
        assert n < 64
        self.e("s_waitcnt vmcnt(%d)%s" % (n, " lgkmcnt(0)" if lgkm else ""))
        self.vm = self.vm[len(self.vm) - n:] if n else []
    def wait0(self, lgkm=False):
        self.e("s_waitcnt vmcnt(0)%s" % (" lgkmcnt(0)" if lgkm else "")); self.vm = []
    def stamp(self, i, real=False):
        if Opt.probe == i:
            self.e("s_waitcnt lgkmcnt(0)")
            self.e("s_memrealtime %s" % sp(sSTAMP + 4))
            self.e("s_waitcnt lgkmcnt(0)")
        if Opt.pin == i:
            self.nstamp += 1
            self.e("s_waitcnt lgkmcnt(0)")
            self.e("s_cselect_b32 s%d, 1, 0" % (sSTAMP + 5))
            self.lab("L_pin%d" % self.nstamp)
            self.e("s_memrealtime s[0:1]")
            self.e("s_waitcnt lgkmcnt(0)")
            self.e("s_sub_u32 s0, s0, s%d" % sSTAMP)
            self.e("s_cmp_lt_u32 s0, %d" % (Opt.pin_ns // 10))
            self.e("s_cbranch_scc1 L_pin%d" % self.nstamp)
            self.e("s_cmp_lg_u32 s%d, 0" % (sSTAMP + 5))
        if Opt.diag and not Opt.kdiag and (Opt.diag == 1 or i == 9):
            self.e("s_waitcnt lgkmcnt(0)")
            self.e("s_memtime %s" % sp(sSTAMP + 2 * i))
            self.e("s_memrealtime %s" % sp(sRET))
            self.e("s_waitcnt lgkmcnt(0)")
            self.e("s_mov_b32 s%d, s%d" % (sSTAMP + 2 * i + 1, sRET))

def astamp(a, i):
    if Opt.diag and Opt.kdiag == 2: a.e("s_memtime %s" % sp(sSTAMP + 2 * i))

def tstamp(a, i):
    if Opt.diag and Opt.kdiag == 3: a.e("s_memtime %s" % sp(sSTAMP + 2 * i))

def kstamp(a, i):
    if Opt.probe == 18 + i: a.e("s_memrealtime %s" % sp(sSTAMP + 4))
    if Opt.diag and Opt.kdiag == 1: a.e("s_memtime %s" % sp(sSTAMP + 2 * i))

def mfma(d, a, b, c):
    return "v_mfma_f32_32x32x16_bf16 %s, %s, %s, %s" % (v(d, 16), v(a, 4), v(b, 4), "0" if c is None else v(c, 16))
def smfmac(d, a, b):
    return "v_smfmac_f32_32x32x32_bf16 %s, %s, %s, %s" % (v(d, 16), v(a, 4), v(b, 8), v(vIDX))
def mfma16(d, a, b, c):
    return "v_mfma_f32_16x16x32_bf16 %s, %s, %s, %s" % (v(d, 4), v(a, 4), v(b, 4), "0" if c is None else v(c, 4))
def rd128(d, a, off):
    assert 0 <= off < 65536
    return "ds_read_b128 %s, %s offset:%d" % (v(d, 4), v(a), off)
def rdtr(d, a, off):
    assert 0 <= off < 65536
    return "ds_read_b64_tr_b16 %s, %s offset:%d" % (v(d, 2), v(a), off)

def interleave(mf, fill, per=2):
    out = []
    fill = list(fill)
    for i, m in enumerate(mf):
        out.append(m)
        if i < len(mf) - 1:
            out += fill[:per]; fill = fill[per:]
    return out + fill

def srd_words(a, regs):
    sizes = {SX: 2048 * 1024, SWG: 512 * 3584, SWU: 512 * 3584, SWQ: 512 * 1024, SWS: WS_SIZE, SWKV: 16384, SWV: 16384,
             SGATE: 1024, SWD: 1792 * 1024, SWO: 512 * 1024, SOUT: 2048 * 1024, SDBG: 256, SKV: 128 * 1024}
    for reg in regs:
        a.e("s_mov_b32 s%d, 0x%x" % (reg + 2, sizes[reg]))
        a.e("s_mov_b32 s%d, 0x20000" % (reg + 3))

def ptr_loads(a, lst):
    for reg, off in lst: a.e("s_load_dwordx2 %s, s[0:1], %d" % (sp(reg), off))

def prologue(a):
    if Opt.diag or Opt.pin >= 0 or Opt.probe >= 0:
        a.e("s_memrealtime %s" % sp(sSTAMP))
        if Opt.diag in (1, 2): a.e("s_memtime %s" % sp(sSTAMP + 2))
    ptr_loads(a, ((SX, 0), (SWG, 48), (SWU, 56), (SWQ, 8)))
    if Opt.probe == 1: a.stamp(1)
    a.e("v_lshrrev_b32 v2, 6, v0")
    if Opt.code_pf:
        a.e("s_getpc_b64 %s" % sp(sRET))
        a.lab("L_nopf")
        a.e("s_and_b32 s%d, s2, -8" % sA)
        a.e("v_add_lshl_u32 v4, v2, s%d, 7" % sA)
        a.e("v_mov_b32 v5, 0")
        a.e("v_min_u32 v4, CODE_PF_MAX, v4")
        a.e("v_lshl_add_u64 v[4:5], v[4:5], 0, %s" % sp(sRET))
        a.e("global_load_dword %s, v[4:5], off" % v(vPOLL))
    a.e("s_load_dwordx8 s[%d:%d], s[0:1], 64" % (SOUT, SOUT + 7))
    a.e("v_readfirstlane_b32 s%d, v2" % sW)
    ptr_loads(a, ((SWS, 96),) if Opt.diag or Opt.probe >= 0 else ((SWS, 96), (SWO, 32)))
    a.e("s_cmpk_ge_u32 s2, 256")
    a.e("s_cbranch_scc1 L_end")
    a.e("s_and_b32 s%d, s2, 1" % sD)
    a.e("s_bfe_u32 s%d, s2, 0x30003" % sA)
    a.e("s_lshl3_add_u32 s%d, s%d, s%d" % (sG, sD, sA))
    a.e("s_bfe_u32 s%d, s2, 0x20001" % sA)
    a.e("s_lshr_b32 s%d, s2, 6" % sB)
    a.e("s_lshl2_add_u32 s%d, s%d, s%d" % (sM, sA, sB))
    a.e("s_lshl_b32 s%d, s%d, 10" % (sWK, sW))
    a.e("s_cmp_ge_u32 s%d, 14" % sM)
    a.e("s_cbranch_scc1 L_light")

def xvoff(a, t):
    a.e("v_lshrrev_b32 v2, 4, %s" % v(t))
    a.e("v_xor_b32 v2, v2, %s" % v(t))
    a.e("v_and_b32 v2, 7, v2")
    a.e("s_lshl_b32 s%d, s%d, 17" % (sA, sG))
    a.e("v_lshl_add_u32 v2, v2, 4, s%d" % sA)
    a.e("v_lshrrev_b32 v3, 3, %s" % v(t))
    a.e("v_lshl_add_u32 %s, v3, 10, v2" % v(vDX))

def setup_ids(a):
    a.e("s_mov_b64 %s, %s" % (sp(SKV), sp(SWS)))
    a.e("s_mov_b64 %s, %s" % (sp(SWD), sp(SOUT)))
    a.e("s_mov_b64 %s, %s" % (sp(SOUT), sp(SOUT + 4)))
    a.e("s_mov_b64 %s, %s" % (sp(SDBG), sp(SOUT + 6)))
    a.e("v_and_b32 v0, 63, v0")
    a.e("v_lshlrev_b32 %s, 4, v0" % v(vL16))
    a.e("s_andn2_b32 s%d, 1, s2" % sA)
    a.e("s_bfe_u32 s%d, s2, 0x20001" % sB)
    a.e("s_lshl2_add_u32 s%d, s%d, s%d" % (sA, sA, sB))
    a.e("s_bfe_u32 s%d, s2, 0x20003" % sB)
    a.e("s_lshl2_add_u32 s%d, s%d, s%d" % (sT, sA, sB))
    a.e("s_lshr_b32 s%d, s2, 5" % sCB)

def setup_rd(a):
    a.e("s_lshr_b32 s%d, s%d, 2" % (sHI, sW))
    a.e("s_and_b32 s%d, s%d, 3" % (sLO, sW))
    a.e("v_and_b32 v2, 15, v0")
    a.e("v_lshrrev_b32 v3, 4, v0")
    a.e("v_bfe_u32 v4, v0, 1, 3")
    a.e("v_xor_b32 v4, v4, v3")
    a.e("v_lshlrev_b32 v4, 4, v4")
    a.e("v_lshl_add_u32 %s, v2, 7, v4" % v(vXA))
    a.e("v_bfe_u32 v2, v0, 2, 2")
    a.e("v_and_b32 v4, 3, v0")
    a.e("v_lshl_add_u32 %s, v3, 3, v2" % v(vQA))
    a.e("v_lshlrev_b32 %s, 6, %s" % (v(vQA), v(vQA)))
    a.e("v_xor_b32 v5, s%d, v3" % sHI)
    a.e("v_and_b32 v5, 1, v5")
    a.e("v_lshl_add_u32 %s, v5, 5, %s" % (v(vQA), v(vQA)))
    a.e("v_lshl_add_u32 %s, v4, 3, %s" % (v(vQA), v(vQA)))

def setup_oclr(a):
    srd_words(a, [SWS, SKV, SDBG])
    a.e("s_mov_b32 s%d, 0xffff" % sVM)
    a.e("s_mov_b32 s%d, 0xffff" % (sVM + 1))
    a.e("s_lshl_b32 s%d, s%d, 2" % (sA, sG))
    a.e("s_add_u32 s%d, s%d, s%d" % (sA, sA, sLO))
    a.e("s_lshl_b32 s%d, s%d, 5" % (sB, sA))
    a.e("s_lshl_b32 s%d, s%d, 1" % (sC, sHP))
    a.e("s_add_u32 s%d, s%d, s%d" % (sB, sB, sC))
    a.e("s_add_u32 s%d, s%d, s%d" % (sB, sB, sHI))
    a.e("s_lshl_b32 s%d, s%d, 10" % (sB, sB))
    a.e("s_add_u32 s%d, s%d, 0x%x" % (sOST, sB, WS_OF))
    for i in range(4): a.e("v_mov_b32 %s, -1" % v(vQ + i))
    a.vmop("buffer_store_dwordx4 %s, %s, %s, s%d offen sc1" % (v(vQ, 4), v(vL16), srd(SWS), sOST), "oclr")
    a.e("v_mov_b32 %s, 1" % v(vONE))
    a.e("v_mov_b32 %s, 0" % v(vZERO))
    a.e("v_and_b32 %s, 31, v0" % v(vGA))
    a.e("v_lshlrev_b32 %s, 2, %s" % (v(vGA), v(vGA)))

def collect(fn):
    t = Asm(); t.marks = {}
    def vmop(s_, tag):
        t.e(s_); t.marks[len(t.l) - 1] = tag
    t.vmop = vmop
    fn(t)
    return [(x, t.marks.get(i)) for i, x in enumerate(t.l)]
def put(a, items):
    for x, tag in items:
        if tag: a.vmop(x, tag)
        else: a.e(x)

def setup_ones(a):
    a.e("s_mov_b32 s%d, 0x110000" % sA)
    a.e("s_mov_b32 s%d, 0x110000" % sB)
    a.e("v_mov_b32 v3, 0x3f803f80")
    a.e("v_cndmask_b32 %s, 0, v3, %s" % (v(vV1L), sp(sA)))
    for i in range(1, 4): a.e("v_mov_b32 %s, %s" % (v(vV1L + i), v(vV1L)))
    for i in range(16): a.e("v_mov_b32 %s, %s" % (v(vV + i), v(vV1L)))

def setup_attn(a):
    srd_words(a, [SWD, SWO, SOUT])
    a.e("s_lshl_b32 s%d, s%d, 2" % (sA, sG))
    a.e("s_add_u32 s%d, s%d, s%d" % (sA, sA, sLO))
    a.e("s_mul_i32 s%d, s%d, 112" % (sB, sA))
    a.e("s_lshl_b32 s%d, s%d, 3" % (sC, sM))
    a.e("s_add_u32 s%d, s%d, s%d" % (sB, sB, sC))
    a.e("s_lshl_b32 s%d, s%d, 2" % (sC, sHI))
    a.e("s_add_u32 s%d, s%d, s%d" % (sB, sB, sC))
    a.e("s_and_b32 s%d, s%d, 1" % (sC, sLO))
    a.e("s_lshl_b32 s%d, s%d, 1" % (sC, sC))
    a.e("s_add_u32 s%d, s%d, s%d" % (sB, sB, sC))
    a.e("s_lshl_b32 s%d, s%d, 10" % (sB, sB))
    a.e("s_add_u32 s%d, s%d, 0x%x" % (sHST, sB, WS_HF))
    a.e("s_mul_i32 s%d, s%d, %d" % (sC, sC, 112 * 1024))
    a.e("s_sub_u32 s%d, %d, s%d" % (sC, 112 * 1024, sC))
    a.e("s_add_u32 s%d, s%d, s%d" % (sHST2, sHST, sC))
    a.e("v_bfe_u32 v2, v0, 2, 2")
    a.e("v_lshrrev_b32 v3, 5, v0")
    a.e("v_lshl_add_u32 v2, v3, 2, v2")
    a.e("v_lshlrev_b32 v2, 6, v2")
    a.e("v_bfe_u32 v3, v0, 4, 1")
    a.e("v_lshl_add_u32 v2, v3, 5, v2")
    a.e("v_and_b32 v3, 3, v0")
    a.e("v_lshl_add_u32 v2, v3, 3, v2")
    a.e("s_lshr_b32 s%d, s%d, 1" % (sA, sW))
    a.e("s_lshl_b32 s%d, s%d, 11" % (sA, sA))
    a.e("v_add_u32 %s, s%d, v2" % (v(vWDA), sA))
    a.e("v_add_u32 %s, 0x%x, %s" % (v(vKVA), L_KV, v(vL16)))
    a.e("v_add_u32 %s, 0x%x, %s" % (v(vKVB), L_KV + 0x4000, v(vL16)))
    a.e("v_bfe_u32 v2, v0, 2, 3")
    a.e("v_lshlrev_b32 v2, 10, v2")
    a.e("v_lshrrev_b32 v3, 5, v0")
    a.e("v_lshl_add_u32 v2, v3, 6, v2")
    a.e("v_and_b32 v3, 3, v0")
    a.e("v_lshl_add_u32 v2, v3, 4, v2")
    a.e("s_lshl_b32 s%d, s%d, 7" % (sB, sCB))
    a.e("v_add_u32 %s, s%d, v2" % (v(vWDV), sB))
    a.e("v_min_u32 v2, 13, v0")
    a.e("v_lshlrev_b32 v2, 7, v2")
    a.e("s_lshr_b32 s%d, s%d, 1" % (sA, sT))
    a.e("s_lshl_b32 s%d, s%d, 11" % (sA, sA))
    a.e("s_add_u32 s%d, s%d, 0x%x" % (sA, sA, WS_HFLAG))
    a.e("v_add_u32 %s, s%d, v2" % (v(vFLA), sA))
    a.e("s_lshl_b32 s%d, s%d, 1" % (sA, sT))
    a.e("s_and_b32 s%d, s%d, 1" % (sB, sW))
    a.e("s_add_u32 s%d, s%d, s%d" % (sA, sA, sB))
    a.e("s_lshl_b32 s%d, s%d, 15" % (sB, sA))
    a.e("s_lshr_b32 s%d, s%d, 1" % (sKQ, sW))
    if Opt.kqx:
        a.e("s_lshl_b32 s%d, s%d, 1" % (sC, sCB))
        a.e("s_and_b32 s%d, s%d, 2" % (sC, sC))
        a.e("s_xor_b32 s%d, s%d, s%d" % (sKQ, sKQ, sC))
    a.e("s_lshl_b32 s%d, s%d, 13" % (sC, sKQ))
    a.e("s_add_u32 s%d, s%d, s%d" % (sB, sB, sC))
    a.e("s_add_u32 s%d, s%d, 0x%x" % (sOLD, sB, WS_OF))
    a.e("v_and_b32 v2, 31, v0")
    a.e("v_lshrrev_b32 v3, 5, v0")
    a.e("v_and_b32 v4, 7, v0")
    a.e("v_xor_b32 v3, v3, v4")
    a.e("v_lshlrev_b32 v3, 4, v3")
    a.e("v_lshl_add_u32 v3, v2, 8, v3")
    a.e("s_and_b32 s%d, s%d, 1" % (sB, sW))
    a.e("s_lshl_b32 s%d, s%d, 15" % (sB, sB))
    a.e("s_lshr_b32 s%d, s%d, 1" % (sC, sW))
    a.e("s_lshl_b32 s%d, s%d, 13" % (sD, sC))
    a.e("s_add_u32 s%d, s%d, s%d" % (sOUTO, sD, sB))
    a.e("s_add_u32 s%d, s%d, 0x%x" % (sD, sOUTO, L_RED))
    a.e("v_add_u32 %s, s%d, v3" % (v(vAW0), sD))
    a.e("v_lshrrev_b32 v2, 3, v0")
    a.e("v_lshlrev_b32 v3, 1, v4")
    a.e("v_xor_b32 v3, v3, v2")
    a.e("v_lshlrev_b32 v3, 4, v3")
    a.e("v_lshl_add_u32 v3, v2, 8, v3")
    a.e("s_lshl_b32 s%d, s%d, 11" % (sD, sC))
    a.e("s_add_u32 s%d, s%d, s%d" % (sD, sD, sB))
    a.e("s_add_u32 s%d, s%d, 0x%x" % (sD, sD, L_RED))
    a.e("v_add_u32 %s, s%d, v3" % (v(vAR0), sD))
    a.e("v_lshlrev_b32 v4, 4, v4")
    a.e("v_lshl_add_u32 %s, v2, 10, v4" % v(vOUTA))
    a.e("s_lshl_b32 s%d, s%d, 16" % (sC, sT))
    a.e("s_add_u32 s%d, s%d, s%d" % (sOUTO, sOUTO, sC))
    a.e("s_lshl_b32 s%d, s%d, 7" % (sC, sCB))
    a.e("s_add_u32 s%d, s%d, s%d" % (sOUTO, sOUTO, sC))
    a.e("v_mov_b32 %s, 0xdddd" % v(vIDX))
    a.e("v_lshrrev_b32 v2, 4, v0")
    a.e("v_lshl_add_u32 %s, v2, 8, %s" % (v(vHA), v(vL16)))
    for i in range(16): a.e("v_mov_b32 %s, 0" % v(vO + i))
    for i in range(32): a.e("v_mov_b32 %s, 0" % v(vD + i))
    c0 = -2.0 * math.sqrt(2.0 / math.pi) * math.log2(math.e)
    a.e("v_mov_b32 %s, 0x%x" % (v(vC0), f2u(c0)))
    a.e("v_mov_b32 %s, 0x%x" % (v(vC0 + 1), f2u(c0 * 0.044715)))

def kv_first_loads(a, quartet=False):
    it = []
    for o in (range(0, 16384, 4096) if quartet else range(0, 16384, 8192)):
        b = sWH if quartet else sWK
        it.append(("s_add_u32 m0, s%d, 0x%x\ns_add_u32 s%d, s%d, 0x%x\nbuffer_load_dwordx4 %s, %s, s%d offen sc1 lds"
                   % (b, L_KV + o, sA, b, o, v(vL16), srd(SKV), sA), "kv%d" % (o >> 13)))
    it.append(("s_mov_b32 s%d, 0x%x\nbuffer_load_dwordx4 %s, %s, %s, s%d offen sc1"
               % (sA, 63 * 2048, v(vK0, 4), v(vL16), srd(SKV), sA), "k0"))
    it.append(("s_mov_b64 exec, %s\nbuffer_load_dwordx4 %s, %s, %s, 0 offen offset:%d sc1\ns_mov_b64 exec, -1"
               % (sp(sVM), v(vV1L, 4), v(vL16), srd(SKV), 1024 + 256), "k0"))
    it.append(("s_lshl_b32 s%d, s%d, 2\ns_add_u32 s%d, s%d, s%d\ns_lshl_b32 s%d, s%d, 7\ns_add_u32 s%d, s%d, 0x%x\n"
               "buffer_load_dword %s, %s, %s, s%d offen sc1"
               % (sA, sG, sA, sA, sLO, sA, sA, sA, sA, WS_G, v(vGP), v(vGA), srd(SWS), sA), "k0"))
    it.append(("s_lshl_b32 s%d, s%d, 1\ns_and_b32 s%d, s%d, 1\ns_add_u32 s%d, s%d, s%d\ns_lshl_b32 s%d, s%d, 7\ns_add_u32 s%d, s%d, 0x%x\n"
               "buffer_load_dword %s, %s, %s, s%d offen sc1"
               % (sA, sT, sB, sW, sA, sA, sB, sA, sA, sA, sA, WS_G, v(vGC), v(vGA), srd(SWS), sA), "k0"))
    return it

def spin_counter(a, name, first_loaded, wave=0):
    a.e("s_cmp_lg_u32 s%d, %d" % (sW, wave))
    a.e("s_cbranch_scc1 L_%s_done" % name)
    a.e("s_mov_b32 s%d, 0x4000" % sB)
    if first_loaded: a.e("s_branch L_%s_chk" % name)
    a.lab("L_%s_re" % name)
    a.e("buffer_load_dword %s, off, %s, 0 sc1" % (v(vPOLL), srd(SDBG)))
    a.e("s_waitcnt vmcnt(0)")
    a.lab("L_%s_chk" % name)
    a.e("v_readfirstlane_b32 s%d, %s" % (sA, v(vPOLL)))
    a.e("s_cmp_ge_u32 s%d, 32" % sA)
    a.e("s_cbranch_scc1 L_%s_done" % name)
    a.e("s_sleep 4")
    a.e("s_sub_u32 s%d, s%d, 1" % (sB, sB))
    a.e("s_cmp_lg_u32 s%d, 0" % sB)
    a.e("s_cbranch_scc1 L_%s_re" % name)
    a.lab("L_%s_done" % name)

def phase1_F(a):
    SCHED = {1: ["01423567", "10253467", "23016457", "32104756"],
             2: ["02134657", "01324576", "10243567", "10235467"],
             3: ["01324657", "01243576", "12035467", "20134567"],
             5: ["01243567", "10325467", "23014657", "32104576"],
             6: ["01243567", "10325467", "01234657", "10324576"],
             7: ["01234567", "10235476", "01234567", "10235476"],
             8: ["01234567", "10243657", "01234567", "10243657"],
             4: ["02143657", "10325476", "02143657", "10325476"]}
    tabs = SCHED[Opt.sched] if Opt.sched else ["".join(str(c ^ (p & Opt.xmask)) for c in range(8)) for p in range(4)]
    for t_ in tabs: assert sorted(t_) == list("01234567")
    num = [int(t_[::-1], 16) for t_ in tabs]
    def table(a):
        a.e("s_add_u32 s%d, s%d, s%d" % (sA, sG, sHP))
        a.e("s_mov_b32 s%d, 0x%x" % (sXP, num[0]))
        a.e("s_mov_b32 s%d, 0x%x" % (sB, num[2]))
        a.e("s_bitcmp1_b32 s%d, 0" % sA)
        a.e("s_cselect_b32 s%d, 0x%x, s%d" % (sXP, num[1], sXP))
        a.e("s_cselect_b32 s%d, 0x%x, s%d" % (sB, num[3], sB))
        a.e("s_bitcmp1_b32 s%d, 1" % sA)
        a.e("s_cselect_b32 s%d, s%d, s%d" % (sXP, sB, sXP))
        if Opt.ghx:
            a.e("s_bitcmp1_b32 s%d, 3" % sG)
            a.e("s_cselect_b32 s%d, 0x44444444, 0" % sB)
            a.e("s_xor_b32 s%d, s%d, s%d" % (sXP, sXP, sB))
    fo, fw = {"0000": (0, 0), "0101": (0, 1), "0011": (1, 1), "0123": (0, 2)}["".join(t_[0] for t_ in tabs)]
    a.e("s_add_u32 s%d, s%d, s%d" % (sA, sG, sHP))
    a.e("s_bfe_u32 s%d, s%d, 0x%x" % (sCH, sA, fw << 16 | fo))
    if Opt.ghx: a.e("s_lshl2_add_u32 s%d, s%d, s%d" % (sCH, sD, sCH))
    a.e("s_and_b32 s%d, s%d, 0xc00" % (sWH, sWK))
    a.e("v_and_b32 %s, 0xff, v0" % v(vTID))

    def wvoff(a):
        a.e("v_lshrrev_b32 v2, 4, %s" % v(vTID))
        a.e("v_lshrrev_b32 v3, 5, %s" % v(vTID))
        a.e("v_bfi_b32 v3, 3, v2, v3")
        a.e("v_lshlrev_b32 v3, 1, v3")
        a.e("v_xor_b32 v3, v3, %s" % v(vTID))
        a.e("v_and_b32 v3, 15, v3")
        a.e("s_lshl_b32 s%d, s%d, 8" % (sA, sM))
        a.e("v_lshl_add_u32 v3, v3, 4, s%d" % sA)
        a.e("v_mul_u32_u24 v2, 3584, v2")
        a.e("v_add_u32 %s, v2, v3" % v(vDG))
    def qvoff(a):
        a.e("v_lshrrev_b32 v2, 4, %s" % v(vTID))
        a.e("v_and_b32 v2, 2, v2")
        a.e("v_xor_b32 v2, v2, %s" % v(vTID))
        a.e("v_and_b32 v2, 3, v2")
        a.e("s_lshl_b32 s%d, s%d, 6" % (sA, sHP))
        a.e("v_lshl_add_u32 v2, v2, 4, s%d" % sA)
        a.e("v_lshrrev_b32 v3, 2, %s" % v(vTID))
        a.e("v_lshl_add_u32 %s, v3, 10, v2" % v(vDQ))
    def stouch(a):
        if Opt.diag or Opt.probe >= 0: a.e("s_load_dwordx2 %s, s[0:1], 32" % sp(SWO))
        if not Opt.stch: return
        a.e("s_lshr_b32 s%d, s%d, 2" % (sA, sW))
        if Opt.ghx: a.e("s_lshl2_add_u32 s%d, s%d, s%d" % (sA, sD, sA))
        a.e("s_lshl_b32 s%d, s%d, 6" % (sA, sA))
        a.e("s_and_b32 s%d, s%d, 7" % (sB, sG))
        a.e("s_add_u32 s%d, s%d, s%d" % (sA, sA, sB))
        a.e("s_mul_i32 s%d, s%d, 28" % (sA, sA))
        a.e("s_bfe_u32 s%d, s%d, 0x10001" % (sB, sW))
        a.e("s_lshl1_add_u32 s%d, s%d, s%d" % (sB, sM, sB))
        a.e("s_add_u32 s%d, s%d, s%d" % (sA, sA, sB))
        a.e("s_lshl_b32 s%d, s%d, 7" % (sA, sA))
        a.e("s_bitcmp1_b32 s%d, 0" % sW)
        a.e("s_cselect_b64 %s, %s, %s" % (sp(SWKV), sp(SWU), sp(SWG)))
        a.e("s_add_u32 s%d, s%d, s%d" % (SWKV, SWKV, sA))
        a.e("s_addc_u32 s%d, s%d, 0" % (SWKV + 1, SWKV + 1))
        for i in range(Opt.stch):
            a.e("s_load_dwordx2 %s, %s, 0x%x" % (sp(sTMPP), sp(SWKV), 128 * 3584 + i * 8 * 3584 + 60))
    def wsrd(a):
        srd_words(a, [SWG])
        a.e("s_mov_b64 %s, %s" % (sp(SWU + 2), sp(SWG + 2)))

    if Opt.hrot:
        ORDER = [("q", 0)] + [(t_, 2 * h_ + j) for h_ in range(2) for t_, j in (("x", 0), ("x", 1), ("g", 0), ("u", 0), ("g", 1), ("u", 1))]
    else:
        ORDER = [("q", 0)] + [("x", j) for j in range(4)] + [(t_, j) for j in range(4) for t_ in "gu"]
    def block(items):
        out = []; lastc = None; lastw = None
        for c, kind, j in items:
            s = c % 3; pre = []
            if c != lastc:
                if c: pre.append("s_bfe_u32 s%d, s%d, 0x%x" % (sCH, sXP, 0x30000 + 4 * c))
                lastc = c; lastw = None
            fam = "w" if kind in "gu" else kind
            rot = Opt.hrot and fam != "q"
            if lastw is None or lastw[0] != fam or (rot and lastw[1] >> 1 != j >> 1):
                pre.append({"q": "s_lshl_b32 s%d, s%d, 16" % (sOFFW, sCH), "x": "s_lshl_b32 s%d, s%d, 7" % (sOFFW, sCH),
                            "w": "s_mul_i32 s%d, s%d, %d" % (sOFFW, sCH, 64 * 3584)}[fam])
                if rot: pre.append("s_%s_u32 s%d, s%d, s%d" % ("sub" if j >> 1 else "add", sOFFW, sOFFW, sRX if fam == "x" else sRW))
                lastw = (fam, 0)
            if lastw[1] != j:
                pre.append("s_add_u32 s%d, s%d, 0x%x" % (sOFFW, sOFFW, (j - lastw[1]) * (0x8000 if fam == "x" else 16 * 3584)))
                lastw = (fam, j)
            m0c, vo, rs = {"q": (L_WQ + s * 4096, vDQ, SWQ), "x": (L_X + s * 16384 + j * 4096, vDX, SX),
                           "g": (L_G + s * 16384 + j * 4096, vDG, SWG), "u": (L_U + s * 16384 + j * 4096, vDG, SWU)}[kind]
            nt = " nt" if Opt.ntx & (1 if rs == SX else 2) else ""
            out.append(("s_add_u32 m0, s%d, 0x%x\n%s\nbuffer_load_dwordx4 %s, %s, s%d offen%s lds"
                        % ((sM0B + (j >> 1)) if rot else sWH, m0c, "\n".join(pre) or "s_nop 0", v(vo), srd(rs), sOFFW, nt), "c%d" % c))
        return out
    def part(c, role): return [(c, k_, j) for k_, j in ORDER if (k_ in "gu") == (role == "A")]

    def rdsetup(a):
        setup_rd(a)
        a.e("v_lshl_add_u32 %s, v3, 3, v2" % v(vWA))
        a.e("v_lshlrev_b32 %s, 8, %s" % (v(vWA), v(vWA)))
        a.e("v_lshl_add_u32 %s, v4, 3, %s" % (v(vWA), v(vWA)))
        a.e("v_and_b32 v5, 1, v3")
        a.e("v_lshl_add_u32 v2, v5, 2, v2")
        a.e("s_lshl_b32 s%d, s%d, 2" % (sA, sHI))
        a.e("s_and_b32 s%d, s%d, 1" % (sB, sLO))
        a.e("s_lshl_b32 s%d, s%d, 1" % (sB, sB))
        a.e("s_add_u32 s%d, s%d, s%d" % (sA, sA, sB))
        a.e("v_xor_b32 v2, s%d, v2" % sA)
        a.e("v_lshl_add_u32 %s, v2, 5, %s" % (v(vWA), v(vWA)))
        a.e("v_xor_b32 %s, 32, %s" % (v(vWA + 1), v(vWA)))
        a.e("v_add_u32 %s, 0x%x, %s" % (v(vWA + 2), L_U - L_G, v(vWA)))
        a.e("v_add_u32 %s, 0x%x, %s" % (v(vWA + 3), L_U - L_G, v(vWA + 1)))
        a.e("s_lshl_b32 s%d, s%d, 12" % (sA, sLO))
        a.e("s_add_u32 s%d, s%d, 0x%x" % (sA, sA, L_X))
        a.e("v_add_u32 %s, s%d, %s" % (v(vXA), sA, v(vXA)))
        a.e("v_xor_b32 %s, 0x1000, %s" % (v(vXA + 1), v(vXA)))
        a.e("v_xor_b32 %s, 64, %s" % (v(vXA + 2), v(vXA)))
        a.e("v_xor_b32 %s, 64, %s" % (v(vXA + 3), v(vXA + 1)))
        a.e("v_add_u32 %s, 0x%x, %s" % (v(vQA), L_WQ, v(vQA)))

    a.e("s_cmp_ge_u32 s%d, 4" % sW)
    a.e("s_cbranch_scc1 L_setB")
    late = collect(setup_oclr) + collect(setup_ones) + [("; later", None)] + collect(setup_attn)
    words = collect(lambda t: srd_words(t, [SWS, SKV, SDBG, SWD, SWO, SOUT]))
    late = [x for x in late if x not in words]
    oclr = [x for x in late if x[1] == "oclr"]
    if Opt.olate: late = [x for x in late if x[1] != "oclr"]
    else: oclr = []
    words += [("v_mov_b32 %s, 0" % v(r_), None) for r_ in (vGA, vWDV, vFLA, vHA, vOUTA)]
    st = collect(rdsetup) + words + late[:Opt.fillpre]
    cut = late.index(("; later", None)) if Opt.bidle else len(late)
    fills = {"A": late[Opt.fillpre:], "B": late[Opt.fillpre:max(cut, Opt.fillpre)]}
    idleB = late[max(cut, Opt.fillpre):]
    vms = {}
    wsrd(a); wvoff(a)
    a.e("s_waitcnt lgkmcnt(0)")
    a.stamp(2)
    if Opt.spos == 0: stouch(a)
    put(a, block(part(0, "A")))
    a.e("s_branch L_setA")
    vms["A"] = a.vm; a.vm = []
    a.lab("L_setB")
    srd_words(a, [SX]); xvoff(a, vTID)
    a.e("s_waitcnt lgkmcnt(0)")
    a.stamp(2)
    if Opt.spos == 0: stouch(a)
    put(a, block(part(0, "B")[1:]))
    srd_words(a, [SWQ]); qvoff(a)
    put(a, block(part(0, "B")[:1]))
    vms["B"] = a.vm
    for role in "BA":
        a.vm = vms[role]
        if role == "A": a.lab("L_setA")
        if Opt.spos == 1: stouch(a)
        table(a)
        setup_ids(a)
        if role == "A": srd_words(a, [SX, SWQ])
        else: wsrd(a)
        def touches():
            tm = sum(0xff << (8 * i) for i in range(4) if Opt.tch >> i & 1)
            setex = "s_bitcmp1_b32 s%d, 3\ns_cselect_b32 exec_lo, 0, 0x%x\ns_cselect_b32 exec_hi, 0x%x, 0" % (sG, tm, tm) if Opt.ghx \
                    else "s_mov_b32 exec_lo, 0x%x\ns_mov_b32 exec_hi, 0" % tm
            if Opt.tlb & 2 and role == "B":
                a.e("s_and_b32 s%d, s%d, 7" % (sA, sG))
                a.e("v_lshl_add_u32 v2, v0, 3, s%d" % sA)
                a.e("v_mul_u32_u24 v3, 3584, v2")
                a.e("s_and_b32 s%d, s%d, 1" % (sB, sW))
                a.e("s_lshl1_add_u32 s%d, s%d, s%d" % (sA, sM, sB))
                a.e("s_lshl_b32 s%d, s%d, 7" % (sA, sA))
                a.e(setex)
                a.e("s_cmp_ge_u32 s%d, 6" % sW)
                a.e("s_cbranch_scc1 L_tlbu")
                a.e("buffer_load_dword %s, v3, %s, s%d offen" % (v(vPOLL), srd(SWG), sA))
                a.e("s_branch L_tlbe")
                a.lab("L_tlbu")
                a.e("buffer_load_dword %s, v3, %s, s%d offen" % (v(vPOLL), srd(SWU), sA))
                a.lab("L_tlbe")
                a.e("s_mov_b64 exec, -1")
                a.vm.append("tlb")
            if Opt.tlb & 12 and role == "A":
                a.e("s_cmp_lg_u32 s%d, 0" % sW)
                a.e("s_cbranch_scc1 L_tlbx")
                a.e("s_and_b32 s%d, s%d, 7" % (sA, sG))
                a.e("v_lshl_add_u32 v2, v0, 3, s%d" % sA)
                a.e("v_lshlrev_b32 v3, 10, v2")
                a.e("s_lshl_b32 s%d, s%d, 6" % (sA, sHP))
                a.e(setex if Opt.tlb & 4 else "s_mov_b64 exec, 1")
                a.e("buffer_load_dword %s, v3, %s, s%d offen" % (v(vPOLL), srd(SWQ), sA))
                a.e("s_branch L_tlby")
                a.lab("L_tlbx")
                a.e("s_and_b32 s%d, s%d, 3" % (sA, sM))
                a.e("s_lshl2_add_u32 s%d, s%d, s%d" % (sA, sG, sA))
                a.e("s_lshl_b32 s%d, s%d, 15" % (sA, sA))
                a.e("v_lshl_add_u32 v3, v0, 10, s%d" % sA)
                a.e("s_lshr_b32 s%d, s%d, 3" % (sA, sG))
                a.e("s_lshl2_add_u32 s%d, s%d, s%d" % (sA, sA, sW) if Opt.ghx else "s_mov_b32 s%d, s%d" % (sA, sW))
                a.e("s_lshl_b32 s%d, s%d, 7" % (sA, sA))
                a.e("s_bitcmp1_b32 %d, s%d" % (Opt.tch if Opt.tlb & 8 else 0, sW))
                a.e("s_cselect_b32 exec_lo, -1, 1")
                a.e("s_mov_b32 exec_hi, 0")
                a.e("buffer_load_dword %s, v3, %s, s%d offen" % (v(vPOLL), srd(SX), sA))
                a.lab("L_tlby")
                a.e("s_mov_b64 exec, -1")
                a.vm.append("tlb")
        if Opt.tpos == 0: touches()
        if Opt.startbar: a.e("s_barrier")
        npre = min(Opt.npre, 8) if role == "A" else 5
        pn = block(part(1, role)[:npre])
        rest = st + (collect(qvoff) + collect(lambda t: xvoff(t, vTID)) if role == "A" else collect(wvoff))
        gap = len(rest) // (npre + Opt.pregap) + 1
        if Opt.tpos == 2:
            put(a, pn); touches(); npre = 0
        if Opt.tpos == 3 and role == "B":
            put(a, pn); touches(); npre = 0
        for i in range(npre):
            put(a, pn[:1]); pn = pn[1:]
            put(a, rest[:gap]); rest = rest[gap:]
        put(a, rest)
        if Opt.tpos == 1 or (Opt.tpos == 3 and role == "A"): touches()
        a.e("s_mov_b64 vcc, %d" % (-1 if role == "A" else 0))
        if role == "A":
            a.waitvm("c0", lgkm=True)
        else:
            a.e("s_setprio 1")
            a.waitvm("c0", lgkm=True)
            a.e("s_branch L_k0")
        vms[role] = a.vm
    stream = part(1, "A")[min(Opt.npre, 8):] + [(c, k_, j) for c in range(2, 8) for k_, j in ORDER]
    qa = [int(x, 16) for x in Opt.qa]; qb = [int(x, 16) for x in Opt.qb]
    def take(n, cmax):
        m = 0
        while m < n and m < len(stream) and stream[m][0] <= cmax: m += 1
        r_ = stream[:m]; del stream[:m]
        return block(r_)
    a.lab("L_k0")
    a.vm = vms["A"]
    ool = Asm()
    def dmablock(name, role, items, wait=None):
        a.e("s_cbranch_vcc%s L_%s" % ("nz" if role == "A" else "z", name))
        if wait: a.waitvm(wait, lgkm=True)
        a.lab("L_%s_r" % name)
        ool.lab("L_%s" % name)
        ool.vm = a.vm if role == "A" else vms["B"]
        for it_ in items:
            put(ool, [it_])
            fp = Opt.fillper if role == "A" or not Opt.bidle else 2
            put(ool, fills[role][:fp]); fills[role] = fills[role][fp:]
        if name in ("d7", "e7"): put(ool, fills[role]); fills[role] = []
        if wait: ool.waitvm(wait, lgkm=True)
        if role == "B": vms["B"] = ool.vm
        ool.e("s_branch L_%s_r" % name)
    a.ool = ool.l

    def fr(k):
        b = vF1 + 36 * (k % 2)
        return dict(x=b, w=b + 16, q=b + 32)
    def reads(k):
        c, s = divmod(k, 2); f = fr(k); sl = c % 3
        wo = sl * 16384 + s * 8192
        W = lambda i: [rdtr(f['w'] + 4 * i, vWA + i, wo), rdtr(f['w'] + 4 * i + 2, vWA + i, wo + 1024)]
        X = [rd128(f['x'] + 4 * b, vXA + 2 * s + (b >> 1), sl * 16384 + (b & 1) * 2048) for b in range(4)]
        return W(0) + X + W(2) + W(1) + W(3) + [rdtr(f['q'], vQA, sl * 4096 + s * 2048), rdtr(f['q'] + 2, vQA, sl * 4096 + s * 2048 + 256)]
    a.e("s_barrier")
    a.stamp(3)
    if Opt.kdiag or Opt.probe >= 18:
        kstamp(a, 2)
        a.e("s_waitcnt lgkmcnt(0)")
    for r in reads(0): a.e(r)
    if qa[0]: dmablock("d2", "A", take(qa[0], 2))
    for k in range(16):
        c, s = divmod(k, 2); f = fr(k)
        z = lambda x: None if k == 0 else x
        mf = []
        for n_, i in enumerate((0, 2, 1, 3)):
            for b in (range(4) if n_ % 2 == 0 else range(3, -1, -1)):
                d = vACC + 16 * b + 4 * i
                mf.append(mfma16(d, f['w'] + 4 * i, f['x'] + 4 * b, z(d)))
        for b in range(2): mf.append(mfma16(vAQ + 4 * b, f['q'], f['x'] + 4 * b, z(vAQ + 4 * b)))
        rds = reads(k + 1) if k < 15 else []
        if s == 0:
            a.e("s_waitcnt lgkmcnt(6)")
            for i, m in enumerate(mf):
                if i == 8: a.e("s_waitcnt lgkmcnt(8)")
                a.e(m)
                if i < len(rds): a.e(rds[i])
            continue
        a.e("s_waitcnt lgkmcnt(8)")
        for m in mf[:4]: a.e(m)
        if c <= 5:
            dmablock("e%d" % (c + 2), "B", take(qb[c], c + 2), "c%d" % (c + 1))
            assert not any(x[0] <= c + 1 for x in stream)
        if c == 7:
            a.e("s_waitcnt lgkmcnt(0)")
        elif c == 6:
            a.e("s_waitcnt lgkmcnt(0)")
            a.e("s_cbranch_vccz L_st7")
            a.e("s_setprio 1")
            a.e("s_waitcnt vmcnt(0)")
            a.e("s_barrier")
            a.lab("L_st7")
        else:
            a.e("s_barrier")
        if c < 7 and ((Opt.kdiag == 1 and Opt.diag) or Opt.probe == 21 + c):
            kstamp(a, 3 + c)
            a.e("s_waitcnt lgkmcnt(0)")
        if c + 3 < 8:
            items = take(qa[c + 1], c + 3)
            dmablock("d%d" % (c + 3), "A", items)
        for i, m in enumerate(mf[4:]):
            a.e(m)
            if i < len(rds): a.e(rds[i])
        if k == 11: assert not stream and not fills["A"] and not fills["B"]
        if k == 11:
            a.e("s_cbranch_vccnz L_st6")
            a.e("s_setprio 0")
            nm = next((i for i, x in enumerate(idleB) if "0xdddd" in x[0]), 0)
            a.e("s_cmp_lg_u32 s%d, 4" % sW)
            a.e("s_cbranch_scc1 L_nopoll")
            a.e("buffer_load_dword %s, off, %s, 0 sc1" % (v(vPOLL), srd(SDBG)))
            a.lab("L_nopoll")
            put(a, idleB[:nm]); idleB = idleB[nm:]
            a.wait0()
            spin_counter(a, "kvf", True, 4)
            a.e("s_barrier")
            put(a, kv_first_loads(a, True) + oclr + idleB)
            a.lab("L_st6")
    a.kvA = (kv_first_loads(a) + oclr)[2:]
    a.stamp(4)

def phase1_L(a):
    a.lab("L_light")
    a.vm = []
    a.e("s_waitcnt lgkmcnt(0)")
    ptr_loads(a, ((SWKV, 16), (SWV, 24), (SGATE, 72), (SWO, 32)))
    srd_words(a, [SWKV, SWV, SGATE, SX])
    xvoff(a, 0)
    a.e("v_and_b32 v2, 63, v0")
    a.e("v_lshlrev_b32 %s, 4, v2" % v(vL16))
    a.e("s_sub_u32 s%d, s%d, 14" % (sCNT, sM))
    a.e("s_lshl_b32 s%d, s%d, 16" % (sOLD, sCNT))
    a.e("s_lshl_b32 s%d, s%d, 13" % (sHST, sCNT))
    a.e("s_add_u32 s%d, s%d, s%d" % (sWH, sHST, sWK))
    a.e("s_xor_b32 s%d, s%d, 0x2000" % (sHST, sHST))
    a.e("s_add_u32 s%d, s%d, 0x2000" % (sA, sWK))
    a.e("s_waitcnt lgkmcnt(0)")
    a.stamp(2)
    def xdma(c, base, so):
        a.vmop("s_add_u32 m0, s%d, 0x%x\ns_nop 0\nbuffer_load_dwordx4 %s, %s, s%d offen offset:%d lds"
               % (base, LL_X + c * 16384 - c * 128, v(vDX), srd(SX), so, c * 128), "c%d" % c)
    def wdma(u):
        for t, rs in enumerate((SWKV, SWV)):
            a.vmop("s_add_u32 m0, s%d, 0x%x\ns_nop 0\nbuffer_load_dwordx4 %s, %s, s%d offen lds"
                   % (sWK, LL_W + t * 16384 + u * 8192, v(vL16), srd(rs), sA if u else sWK), "w")
    wdma(0)
    a.vmop("s_mov_b32 m0, s%d\ns_nop 0\nbuffer_load_dwordx4 %s, %s, 0 offen lds" % (sHST, v(vL16), srd(SGATE)), "w")
    for c in range(8):
        if c == 4: wdma(1)
        xdma(c, sWH, sOLD)
        if c in (1, 3, 5): a.e("s_barrier")
    setup_ids(a)
    srd_words(a, [SWQ])
    setup_rd(a)
    a.e("v_lshrrev_b32 v3, 5, v0")
    a.e("v_bfrev_b32 v5, v4")
    a.e("v_lshrrev_b32 v5, 30, v5")
    a.e("s_cmp_ge_u32 s%d, 2" % sLO)
    a.e("s_cselect_b64 vcc, -1, 0")
    a.e("v_cndmask_b32 v4, v5, v4, vcc")
    a.e("v_lshl_add_u32 %s, v3, 3, v2" % v(vWA))
    a.e("v_lshlrev_b32 %s, 5, %s" % (v(vWA), v(vWA)))
    a.e("v_lshl_add_u32 %s, v4, 3, %s" % (v(vWA), v(vWA)))
    a.e("s_lshr_b32 s%d, s%d, 1" % (sA, sLO))
    a.e("s_lshl_b32 s%d, s%d, 14" % (sA, sA))
    a.e("s_add_u32 s%d, s%d, 0x%x" % (sA, sA, LL_W))
    a.e("v_add_u32 %s, s%d, %s" % (v(vWA), sA, v(vWA)))
    a.e("v_lshl_add_u32 %s, v3, 4, s%d" % (v(vWA + 1), sHST))
    a.e("s_and_b32 s%d, s%d, 1" % (sA, sLO))
    a.e("s_lshl_b32 s%d, s%d, 1" % (sB, sCNT))
    a.e("s_add_u32 s%d, s%d, s%d" % (sCNT, sA, sB))
    a.e("s_lshl_b32 s%d, s%d, 12" % (sA, sCNT))
    a.e("v_and_b32 v2, 31, v0")
    a.e("v_lshrrev_b32 v4, 1, v0")
    a.e("v_lshlrev_b32 v5, 1, v0")
    a.e("v_bfi_b32 v4, 4, v4, v5")
    a.e("v_bfi_b32 v4, 12, v4, v2")
    a.e("v_cndmask_b32 v2, v2, v4, vcc")
    a.e("v_bfe_u32 v4, v2, 1, 3")
    a.e("v_xor_b32 v4, v4, v3")
    a.e("v_lshlrev_b32 v4, 4, v4")
    a.e("v_lshl_add_u32 v4, v2, 7, v4")
    a.e("v_add_u32 %s, s%d, v4" % (v(vLX), sA))
    for s in range(1, 4): a.e("v_xor_b32 %s, %d, %s" % (v(vLX + s), 32 * s, v(vLX)))
    for s in range(4): a.e("v_add_u32 %s, 0x10000, %s" % (v(vLX + 4 + s), v(vLX + s)))
    a.e("s_waitcnt lgkmcnt(0)")
    setup_oclr(a)
    vm0 = list(a.vm)
    a.e("s_cmp_lg_u32 s%d, 0" % sHI)
    a.e("s_cbranch_scc1 L_lB")
    a.e("s_not_b64 %s, %s" % (sp(sTMPP), sp(sVM)))
    a.e("s_cmp_ge_u32 s%d, 2" % sLO)
    a.e("s_cbranch_scc1 L_lV")
    def chain(kind):
        a.vm = list(vm0)
        def fr(k):
            b = vFR + 8 * (k % 4)
            return b, b + 4
        def reads(k):
            c, s = divmod(k, 4); x, w = fr(k)
            r = [rd128(x, vLX + s + 4 * (c >> 2), (c & 3) * 16384), rdtr(w, vWA, k * 512), rdtr(w + 2, vWA, k * 512 + 128)]
            if kind == "K":
                r += ["s_mov_b64 exec, %s" % sp(sTMPP), rd128(w, vWA + 1, k * 32), "s_mov_b64 exec, -1"]
            return r
        for q in range(4):
            a.waitvm("c%d" % (2 * q + 1))
            a.e("s_barrier")
            nr = 4 if kind == "K" else 3
            for k in range(8 * q, 8 * q + 2):
                for r in reads(k): a.e(r)
            for k in range(8 * q, 8 * q + 8):
                if k + 2 < 8 * q + 8:
                    for r in reads(k + 2): a.e(r)
                left = min(2, 8 * q + 7 - k)
                a.e("s_waitcnt lgkmcnt(%d)" % (left * nr))
                x, w = fr(k)
                cc = None if k == 0 else vACC
                a.e(mfma(vACC, w, x, cc) if kind == "K" else mfma(vACC, x, w, cc))
        a.e("s_lshl_b32 s%d, s%d, 2" % (sA, sG))
        a.e("s_add_u32 s%d, s%d, s%d" % (sA, sA, sCNT))
        a.e("s_nop 12")
        if kind == "K":
            a.e("s_mov_b32 s%d, 0x%x" % (sC, f2u(0.25 * math.log2(math.e))))
            for i in range(8): a.e("v_mul_f32 %s, s%d, %s" % (v(vACC + i), sC, v(vACC + i)))
            a.e("v_mul_f32 %s, 0x%x, %s" % (v(vACC + 8), f2u(-math.log2(math.e)), v(vACC + 8)))
            a.e("v_exp_f32 %s, %s" % (v(vACC + 8), v(vACC + 8)))
            for i in range(4): a.e("v_cvt_pk_bf16_f32 %s, %s, %s" % (v(vFR + i), v(vACC + 2 * i), v(vACC + 2 * i + 1)))
            a.e("v_add_f32 %s, 1.0, %s" % (v(vACC + 8), v(vACC + 8)))
            a.e("v_rcp_f32 %s, %s" % (v(vACC + 8), v(vACC + 8)))
            a.e("s_add_u32 s%d, s%d, 63" % (sB, sA))
            a.e("s_and_b32 s%d, s%d, 63" % (sB, sB))
            a.e("s_lshl_b32 s%d, s%d, 11" % (sB, sB))
            a.e("buffer_store_dwordx4 %s, %s, %s, s%d offen sc1" % (v(vFR, 4), v(vL16), srd(SKV), sB))
            a.e("s_lshl_b32 s%d, s%d, 7" % (sB, sA))
            a.e("s_add_u32 s%d, s%d, 0x%x" % (sB, sB, WS_G))
            a.e("s_mov_b32 exec_hi, 0")
            a.e("buffer_store_dword %s, %s, %s, s%d offen sc1" % (v(vACC + 8), v(vGA), srd(SWS), sB))
            a.e("s_mov_b64 exec, -1")
        else:
            for i in range(8): a.e("v_cvt_pk_bf16_f32 %s, %s, %s" % (v(vFR + i), v(vACC + 2 * i), v(vACC + 2 * i + 1)))
            a.e("v_bfe_u32 v2, v0, 4, 1")
            a.e("v_add_u32 v2, s%d, v2" % sA)
            a.e("v_and_b32 v2, 63, v2")
            a.e("v_lshl_add_u32 v2, v2, 11, %s" % v(vL16))
            for i in range(4): a.e("v_cndmask_b32 %s, %s, %s, %s" % (v(vFR + i), v(vFR + 4 + i), v(vFR + i), sp(sVM)))
            a.e("buffer_store_dwordx4 %s, v2, %s, 0 offen offset:1024 sc1" % (v(vFR, 4), srd(SKV)))
        a.e("s_branch L_lJ")
    chain("K")
    a.lab("L_lV")
    chain("V")
    a.lab("L_lB")
    a.vm = list(vm0)
    a.e("s_cmp_lg_u32 s%d, 14" % sM)
    a.e("s_cbranch_scc1 L_nozf")
    a.e("s_cmp_lg_u32 s%d, 4" % sW)
    a.e("s_cbranch_scc1 L_nozf")
    a.e("v_lshlrev_b32 v2, 7, v0")
    a.e("s_lshl_b32 s%d, s%d, 11" % (sA, sG))
    a.e("s_add_u32 s%d, s%d, 0x%x" % (sA, sA, WS_HFLAG))
    a.e("s_mov_b64 exec, 0xffff")
    a.e("buffer_store_dword %s, v2, %s, s%d offen sc1" % (v(vZERO), srd(SWS), sA))
    a.e("s_mov_b64 exec, -1")
    a.lab("L_nozf")
    for q in range(4):
        a.waitvm("c%d" % (2 * q + 1))
        a.e("s_barrier")
    a.lab("L_lJ")
    a.e("v_lshrrev_b32 v3, 2, v0")
    a.e("v_lshlrev_b32 v3, 10, v3")
    a.e("v_lshrrev_b32 v4, 5, v0")
    a.e("v_lshlrev_b32 v4, 1, v4")
    a.e("v_xor_b32 v4, v4, v0")
    a.e("v_and_b32 v4, 3, v4")
    a.e("v_lshl_add_u32 v3, v4, 4, v3")
    a.e("s_lshl_b32 s%d, s%d, 14" % (sA, sW))
    a.e("s_lshl_b32 s%d, s%d, 6" % (sB, sHP))
    a.e("s_add_u32 s%d, s%d, s%d" % (sA, sA, sB))
    a.e("v_add_u32 %s, s%d, v3" % (v(vDQ), sA))
    a.e("s_xor_b32 s%d, s%d, 0x2000" % (sWH, sWH))
    a.e("s_xor_b32 s%d, s%d, 0x10000" % (sOLD, sOLD))
    a.wait0(lgkm=True)
    a.e("s_barrier")
    a.e("s_cmp_lg_u32 s%d, 0" % sW)
    a.e("s_cbranch_scc1 L_noat")
    a.e("s_mov_b64 exec, 1")
    a.e("buffer_atomic_add %s, off, %s, 0 sc1" % (v(vONE), srd(SDBG)))
    a.e("s_mov_b64 exec, -1")
    a.lab("L_noat")
    a.stamp(3)
    for c in range(8): xdma(c, sWH, sOLD)
    for p in range(4):
        a.e("s_add_u32 m0, s%d, 0x%x" % (sWK, LL_WQ + p * 8192))
        a.e("s_mov_b32 s%d, 0x%x" % (sA, p * 128 * 1024))
        a.e("buffer_load_dwordx4 %s, %s, s%d offen lds" % (v(vDQ), srd(SWQ), sA))
    setup_ones(a)
    setup_attn(a)
    if Opt.touch & 2:
        a.e("s_lshl_b32 s%d, s%d, 1" % (sA, sG))
        a.e("s_add_u32 s%d, s%d, s%d" % (sA, sA, sM))
        a.e("s_sub_u32 s%d, s%d, 14" % (sA, sA))
        a.e("s_lshl_b32 s%d, s%d, 3" % (sA, sA))
        a.e("s_add_u32 s%d, s%d, s%d" % (sA, sA, sW))
        a.e("v_lshlrev_b32 v2, 15, v0")
        a.e("s_lshl_b32 s%d, s%d, 7" % (sA, sA))
        a.e("buffer_load_dword %s, v2, %s, s%d offen" % (v(vPOLL), srd(SWO), sA))
        a.e("buffer_load_dword %s, v2, %s, s%d offen" % (v(vPOLL), srd(SWD), sA))
    a.e("s_lshl_b32 s%d, s%d, 12" % (sA, sLO))
    a.e("v_add_u32 %s, s%d, %s" % (v(vXA), sA, v(vXA)))
    a.e("v_xor_b32 %s, 64, %s" % (v(vXA + 1), v(vXA)))
    a.e("v_add_u32 %s, 0x10000, %s" % (v(vXA + 2), v(vXA)))
    a.e("v_add_u32 %s, 0x10000, %s" % (v(vXA + 3), v(vXA + 1)))
    a.e("v_add_u32 %s, 0x%x, %s" % (v(vQA), LL_WQ, v(vQA)))
    a.e("s_waitcnt vmcnt(%d)" % (2 if Opt.touch & 2 else 0))
    a.e("s_barrier")
    def fr(k): return vFR + 12 * (k % 3)
    def reads(k):
        c, s = divmod(k, 2); f = fr(k)
        return [rd128(f + 4 * b, vXA + s + 2 * (c >> 2), (c & 3) * 16384 + b * 2048) for b in range(2)] + \
               [rdtr(f + 8, vQA, k * 2048), rdtr(f + 10, vQA, k * 2048 + 256)]
    for k in range(2):
        for r in reads(k): a.e(r)
    for k in range(16):
        a.e("s_waitcnt lgkmcnt(%d)" % (4 * min(1, 15 - k)))
        for b in range(2): a.e(mfma16(vAQ + 4 * b, fr(k) + 8, fr(k) + 4 * b, None if k == 0 else vAQ + 4 * b))
        if k + 2 < 16:
            for r in reads(k + 2): a.e(r)
    spin_counter(a, "kvl", False)
    a.e("s_barrier")
    for s, t in kv_first_loads(a): a.e(s)
    a.wait0()
    a.stamp(4)
    a.e("s_branch L_join")

def gelu_tile(a, ti, scalar=False):
    acc = vACC + 16 * ti
    t = vFR
    o = vFR + 8 + 4 * ti
    pk = lambda r: v(r, 2)
    if scalar:
        for i in range(8): a.e("v_mul_f32 %s, %s, %s" % (v(t + i), v(acc + i), v(acc + i)))
        for i in range(8): a.e("v_fma_f32 %s, %s, %s, %s" % (v(t + i), v(t + i), v(vC0 + 1), v(vC0)))
        for i in range(8): a.e("v_mul_f32 %s, %s, %s" % (v(t + i), v(t + i), v(acc + i)))
        for i in range(8): a.e("v_exp_f32 %s, %s" % (v(t + i), v(t + i)))
        for i in range(8): a.e("v_add_f32 %s, 1.0, %s" % (v(t + i), v(t + i)))
        for i in range(8): a.e("v_rcp_f32 %s, %s" % (v(t + i), v(t + i)))
        for i in range(8): a.e("v_mul_f32 %s, %s, %s" % (v(acc + i), v(acc + i), v(acc + 8 + i)))
        for i in range(8): a.e("v_mul_f32 %s, %s, %s" % (v(acc + i), v(acc + i), v(t + i)))
    R4, R8 = (range(0), range(0)) if scalar else (range(4), range(8))
    for i in R4: a.e("v_pk_mul_f32 %s, %s, %s" % (pk(t + 2 * i), pk(acc + 2 * i), pk(acc + 2 * i)))
    for i in R4: a.e("v_pk_fma_f32 %s, %s, %s, %s op_sel:[0,1,0] op_sel_hi:[1,1,0]" % (pk(t + 2 * i), pk(t + 2 * i), pk(vC0), pk(vC0)))
    for i in R4: a.e("v_pk_mul_f32 %s, %s, %s" % (pk(t + 2 * i), pk(t + 2 * i), pk(acc + 2 * i)))
    for i in R8: a.e("v_exp_f32 %s, %s" % (v(t + i), v(t + i)))
    for i in R4: a.e("v_pk_add_f32 %s, %s, 1.0 op_sel_hi:[1,0]" % (pk(t + 2 * i), pk(t + 2 * i)))
    for i in R8: a.e("v_rcp_f32 %s, %s" % (v(t + i), v(t + i)))
    for i in R4: a.e("v_pk_mul_f32 %s, %s, %s" % (pk(acc + 2 * i), pk(acc + 2 * i), pk(acc + 8 + 2 * i)))
    for i in R4: a.e("v_pk_mul_f32 %s, %s, %s" % (pk(acc + 2 * i), pk(acc + 2 * i), pk(t + 2 * i)))
    for i in range(4): a.e("v_cvt_pk_bf16_f32 %s, %s, %s" % (v(o + i), v(acc + 2 * i), v(acc + 2 * i + 1)))
    a.vmop("buffer_store_dwordx4 %s, %s, %s, s%d offen offset:%d sc1" % (v(o, 4), v(vHA), srd(SWS), sHST2 if ti >> 1 else sHST, (ti & 1) * 256), "hst")

def Yseg(hset, toggle=False, first=False, extra=False, last=False):
    out = []
    for t in range(2):
        pos = [int(x, 17) for x in (Opt.ypos0 if hset is None else Opt.ypos2 if extra else Opt.ypos1)]
        if last and t == 1: pos = [pos[0], 0, 11, pos[1]]
        S, Sn = vS + 16 * t, vS + 16 * (1 - t)
        K, V0, V1 = vKF + 4 * t, vV + 8 * t, vV + 8 * t + 4
        for e in range(1, 17):
            out.append("v_exp_f32 %s, %s" % (v(S + e - 1), v(S + e - 1)))
            if e == pos[0] and not (first and t == 0): out.append(smfmac(vO, V1, Sn + 8))
            if e == pos[1]: out.append(mfma(Sn, K, vQ, None))
            if e == pos[2]: out.append(smfmac(vO, V0, S))
            if hset is not None:
                if e == 13 and t == 1 and toggle:
                    out.append("v_xor_b32 %s, 0x4000, %s" % (v(vKVB), v(vKVB)))
                if e == pos[3]: out.append(mfma(vD + 16 * t, vWF + 4 * t, vH + 4 * hset, vD + 16 * t))
                if extra and e == pos[4]: out.append(mfma(vD + 16 * t, vFR + 16 + 4 * t, vH + 16 + 4 * hset, vD + 16 * t))
    return out

def kv_reads(off, vKVA=vKVA):
    r = [rd128(vKF, vKVA, off), rd128(vKF + 4, vKVA, off + 2048), "s_mov_b64 exec, %s" % sp(sVM)]
    for t in range(2):
        r += [rd128(vV + 8 * t, vKVA, off + 2048 * t + 1024), rd128(vV + 8 * t + 4, vKVA, off + 2048 * t + 1280)]
    r.append("s_mov_b64 exec, -1")
    return r
def wd_reads(dst, addr, off):
    r = []
    for c in range(2):
        r += [rdtr(dst + 4 * c, addr, off + 512 * c), rdtr(dst + 4 * c + 2, addr, off + 512 * c + 1024)]
    return r

def hord(): return [0, 2, 4, 6, 1, 3, 5, 7] if Opt.hord else list(range(8))
def wdrow(sg): return (32 * (sg >> 1) + 8 * (sg & 1)) * 1024

def attention(a, role, pre0=None):
    A = role == "A"
    def kvdma(u):
        a.vmop("s_add_u32 m0, s%d, 0x%x\ns_add_u32 s%d, s%d, 0x%x\nbuffer_load_dwordx4 %s, %s, s%d offen sc1 lds"
               % (sWK, L_KV + (u % 4) * 8192, sA, sWK, u * 8192, v(vL16), srd(SKV), sA), "kv%d" % u)
    def wddma(sg):
        a.vmop("s_add_u32 m0, s%d, 0x%x\ns_add_u32 s%d, s%d, 0x%x\nbuffer_load_dwordx4 %s, %s, s%d offen lds"
               % (sWK, L_WD + (sg % 4 if sg < 23 or sg == 27 else sg - 19) * 8192, sA, sWDOFF, wdrow(sg), v(vWDV), srd(SWD), sA), "wd%d" % sg)
    def wodma(j):
        a.vmop("s_add_u32 m0, s%d, 0x%x\ns_add_u32 s%d, s%d, 0x%x\nbuffer_load_dwordx4 %s, %s, s%d offen lds"
               % (sWK, L_WO + (7 - j) * 8192, sA, sB, hord()[j] * 16384, v(vWDV), srd(SWO), sA), "wo")
    def hload(sg, dst):
        a.vmop("s_add_u32 s%d, s%d, 0x%x\nbuffer_load_dwordx4 %s, %s, %s, s%d offen sc1"
               % (sA, sHOFF, sg * 1024, v(dst, 4), v(vL16), srd(SWS), sA), "h%d" % sg)
    for n in range(12):
        if not A and n == 0: a.e("s_barrier")
        if n % 2 == 1: astamp(a, 2 + n // 2)
        tags = []
        if A and n % 2 == 1: tags.append("kv%d" % ((n + 1) // 2))
        if not A and n % 2 == 0: tags.append("kv%d" % ((n + 2) // 2))
        if n == (3 if A else 2): tags.append("hst")
        if n == 6: tags.append("wo")
        if n == 9: tags.append("wd27")
        if n == 11: tags.append("wd0")
        if n == 9 and A:
            a.e("s_cmp_lg_u32 s%d, 0" % sW)
            a.e("s_cbranch_scc1 L_hf_done")
            a.e("s_mov_b32 s%d, 0x4000" % sB)
            a.e("s_waitcnt vmcnt(0)")
            a.lab("L_hf_chk")
            a.e("v_cmp_ne_u32 vcc, 1, %s" % v(vPOLL))
            a.e("s_cbranch_vccz L_hf_done")
            a.e("s_sleep 2")
            a.e("buffer_load_dword %s, %s, %s, 0 offen sc1" % (v(vPOLL), v(vFLA), srd(SWS)))
            a.e("s_sub_u32 s%d, s%d, 1" % (sB, sB))
            a.e("s_cmp_lg_u32 s%d, 0" % sB)
            a.e("s_waitcnt vmcnt(0)")
            a.e("s_cbranch_scc1 L_hf_chk")
            a.lab("L_hf_done")
        a.waitvm(tags)
        if n == 5 and Opt.diag == 3 and A:
            a.e("v_mov_b32 v2, s%d" % sSTAMP)
            a.e("s_lshl_b32 s%d, s2, 3" % sA)
            a.e("s_add_u32 s%d, s%d, s%d" % (sA, sA, sW))
            a.e("s_lshl_b32 s%d, s%d, 7" % (sA, sA))
            a.e("s_add_u32 s%d, s%d, 0x%x" % (sA, sA, WS_STAMP))
            a.e("s_mov_b64 exec, 1")
            a.vmop("buffer_store_dword v2, off, %s, s%d offset:12 sc1" % (srd(SWS), sA), "st")
            a.e("s_mov_b64 exec, -1")
        if n == 3 and not A:
            a.e("s_cmp_ge_u32 s%d, 14" % sM)
            a.e("s_cbranch_scc1 L_nohf")
            a.e("s_cmp_lg_u32 s%d, 4" % sW)
            a.e("s_cbranch_scc1 L_nohf")
            a.e("s_lshl_b32 s%d, s%d, 4" % (sA, sG))
            a.e("s_add_u32 s%d, s%d, s%d" % (sA, sA, sM))
            a.e("s_lshl_b32 s%d, s%d, 7" % (sA, sA))
            a.e("s_add_u32 s%d, s%d, 0x%x" % (sA, sA, WS_HFLAG))
            a.e("s_mov_b64 exec, 1")
            a.e("buffer_store_dword %s, off, %s, s%d sc1" % (v(vONE), srd(SWS), sA))
            a.e("s_mov_b64 exec, -1")
            a.lab("L_nohf")
        for r in kv_reads((n % 8) * 4096): a.e(r)
        if n == 8 and A:
            a.e("s_cmp_lg_u32 s%d, 0" % sW)
            a.e("s_cbranch_scc1 L_hf_nol")
            a.e("buffer_load_dword %s, %s, %s, 0 offen sc1" % (v(vPOLL), v(vFLA), srd(SWS)))
            a.lab("L_hf_nol")
        if n == 0:
            kvdma(2); kvdma(3)
            a.e("s_mov_b32 s%d, s%d" % (sC, sKQ))
            a.e("s_mul_i32 s%d, s%d, %d" % (sWDOFF, sC, 448 * 1024))
            a.e("s_and_b32 s%d, s%d, 1" % (sB, sW))
            a.e("s_lshl_b32 s%d, s%d, 14" % (sA, sB))
            a.e("s_add_u32 s%d, s%d, s%d" % (sWDOFF, sWDOFF, sA))
            a.e("s_lshl_b32 s%d, s%d, 1" % (sA, sT))
            a.e("s_add_u32 s%d, s%d, s%d" % (sA, sA, sB))
            a.e("s_mul_i32 s%d, s%d, 112" % (sA, sA))
            a.e("s_mul_i32 s%d, s%d, 28" % (sB, sC))
            a.e("s_add_u32 s%d, s%d, s%d" % (sA, sA, sB))
            a.e("s_lshl_b32 s%d, s%d, 10" % (sA, sA))
            a.e("s_add_u32 s%d, s%d, 0x%x" % (sHOFF, sA, WS_HF))
        if (A and n % 2 == 1 and n >= 3): kvdma((n + 5) // 2)
        if (not A and n % 2 == 0 and n >= 2): kvdma((n + 6) // 2)
        if 1 <= n <= 4:
            a.e("s_lshl_b32 s%d, s%d, 17" % (sB, sKQ))
            a.e("s_and_b32 s%d, s%d, 1" % (sC, sW))
            a.e("s_lshl_b32 s%d, s%d, 13" % (sC, sC))
            a.e("s_add_u32 s%d, s%d, s%d" % (sB, sB, sC))
            for j in (2 * n - 2, 2 * n - 1): wodma(j)
        for sg in {5: (27, 23, 24), 6: (25, 26, 0), 7: (1, 2)}.get(n, ()): wddma(sg)
        if n == 10:
            for r in wd_reads(vWX, vWDA, 3 * 8192): a.e(r)
        for j in ({7: (0,), 8: (1, 2), 9: (3, 4)} if A else {7: (0, 1), 8: (2, 3), 9: (4,)}).get(n, ()):
            for r in wd_reads(WOF[j], vWOA, (7 - j) * 8192): a.e(r)
        hs = {10: (0, 1, 23, 24), 11: (2, 25, 26, 27)} if A else {9: (0, 1, 23), 10: (2, 24), 11: (25, 26, 27)}
        for sg in hs.get(n, ()): hload(sg, vH + 4 * sg if sg < 4 else vHX if sg == 27 else vH + 4 * (sg - 19))
        if n == 11:
            a.e("s_add_u32 s%d, s%d, 0x%x" % (sHOFF, sHOFF, 3 * 1024))
            a.e("s_add_u32 s%d, s%d, 0x%x" % (sWDOFF, sWDOFF, wdrow(3)))
            a.e("s_add_u32 s%d, s%d, 0x%x" % (sKVOFF, sWK, 9 * 8192))
            a.e("s_mov_b32 s%d, 4" % sCNT)
            a.e("s_add_u32 s%d, s%d, 0x1000" % (sOLD2, sOLD))
            a.e("s_mov_b32 s%d, 0x%x" % (sLO_, f2u(2.0 ** -16)))
            a.e("s_mov_b32 s%d, 0x%x" % (sRNG, f2u(2.0 ** 100) - f2u(2.0 ** -16)))
        if n == 0 and pre0:
            pre0()
            a.stamp(5)
        a.e("s_waitcnt lgkmcnt(0)")
        if n == 0:
            if A: a.e("s_barrier")
            for x in Yseg(None, first=True): a.e(x)
            if not A: a.e("s_barrier")
            continue
        a.e("s_call_b64 %s, L_Y%s" % (sp(sRET), role))
        if n == 1:
            a.e("s_branch L_X1%s" % role)
            a.lab("L_Y%s" % role)
            if A: a.e("s_barrier")
            for x in Yseg(None): a.e(x)
            if not A: a.e("s_barrier")
            a.e("s_setpc_b64 %s" % sp(sRET))
            a.lab("L_X1%s" % role)
    vm = list(a.vm); need = [63] * 8
    for n in range(12, 32):
        p = n % 4; q = p + (4 if n >= 28 else 0)
        tags = ["wd%d" % (n - 11), "h%d" % (n - 12)]
        if (p % 2 == 1) == A: tags.append("kv%d" % ((n + (1 if A else 2)) // 2))
        idx = [i for i, t in enumerate(vm) if t in tags]
        if idx: need[q] = min(need[q], len(vm) - 1 - max(idx))
        vm.append("wd%d" % (n - 9))
        vm.append("h%d" % (n - 9))
        if (p % 2 == 1) == A and n < 28: vm.append("kv%d" % ((n + (5 if A else 6)) // 2))
    a.lab("L_loop%s" % role)
    for q in range(8):
        p = q % 4; fin = q >= 4
        kv = (p % 2 == 1) == A and not fin
        if q == 0 and Opt.diag and Opt.kdiag == 2:
            a.e("s_cmp_lg_u32 s%d, 3" % sCNT)
            a.e("s_cbranch_scc1 L_nst%s" % role)
            astamp(a, 8)
            a.lab("L_nst%s" % role)
        a.e("s_waitcnt vmcnt(%d)" % need[q])
        for i, r in enumerate(kv_reads(p * 4096, vKVB)):
            if not (q == 7 and i == 1): a.e(r)
        if q <= 8 - Opt.nd:
            for r in wd_reads(vWF, vWDA, p * 8192): a.e(r)
        if fin and p < Opt.nx:
            for r in wd_reads(vFR + 16, vWDA, (4 + p) * 8192): a.e(r)
        if q == 7:
            for r in wd_reads(vFR, vWDA, (4 + Opt.nx) * 8192): a.e(r)
        a.e("s_add_u32 m0, s%d, 0x%x" % (sWK, L_WD + ((p + 3) % 4) * 8192))
        a.e("s_and_b32 s%d, s%d, 0x7fff" % (sA, sKVOFF))
        a.e("buffer_load_dwordx4 %s, %s, s%d offen lds" % (v(vWDV), srd(SWD), sWDOFF))
        a.e("s_add_u32 s%d, s%d, 0x%x" % (sWDOFF, sWDOFF, 0x2000 if p & 1 else 0x6000))
        a.e("buffer_load_dwordx4 %s, %s, %s, s%d offen sc1" % (v(vKF + 4 if q == 7 and Opt.nd == 2 else vH + 4 * ((p + 3) % 4), 4), v(vL16), srd(SWS), sHOFF))
        if kv: a.e("s_add_u32 m0, s%d, 0x%x" % (sA, L_KV))
        a.e("s_add_u32 s%d, s%d, 0x400" % (sHOFF, sHOFF))
        if kv:
            a.e("buffer_load_dwordx4 %s, %s, s%d offen sc1 lds" % (v(vL16), srd(SKV), sKVOFF))
            a.e("s_add_u32 s%d, s%d, 0x2000" % (sKVOFF, sKVOFF))
        if q == 3:
            a.e("s_sub_u32 s%d, s%d, 1" % (sCNT, sCNT))
            a.e("s_cmp_lg_u32 s%d, 0" % sCNT)
        a.e("s_waitcnt lgkmcnt(0)")
        if A: a.e("s_barrier")
        for x in Yseg(p if q < 8 - Opt.nd else None, toggle=(q == 3), extra=(fin and p < Opt.nx), last=(q == 7)): a.e(x)
        if not A and q < 7: a.e("s_barrier")
        if q == 3: a.e("s_cbranch_scc1 L_loop%s" % role)
    a.e("s_nop 1")

def transition(a, role):
    A = role == "A"
    if A:
        a.vm = []
        a.lab("L_trA")
    else:
        a.lab("L_join")
        a.e("s_cmp_eq_u32 s%d, 0" % sHI)
        a.e("s_cbranch_scc1 L_trA")
        a.vmjoin = list(a.vm)
    def qfin():
        for i in range(4): a.e("v_cvt_pk_bf16_f32 %s, %s, %s" % (v(vQ + i), v(vAQ + 2 * i), v(vAQ + 2 * i + 1)))
        a.e("v_add_u32 %s, 0x%x, %s" % (v(vWOA), L_WO, v(vWDA)))
        a.e("v_permlane16_swap_b32 %s, %s" % (v(vQ), v(vQ + 2)))
        a.e("v_permlane16_swap_b32 %s, %s" % (v(vQ + 1), v(vQ + 3)))
    pre0 = None
    if A:
        a.e("s_setprio 1")
        a.e("s_cmp_ge_u32 s%d, 14" % sM)
        a.e("s_cbranch_scc1 L_nogA0")
        put(a, a.kvA[:1] + a.kvA[-1:])
        a.l.append(".p2align 3")
        for ti in range(Opt.gsc): gelu_tile(a, ti, True)
        a.lab("L_nogA0")
        qfin()
        a.waitvm(["k0", "kv0", "kv1"])
        a.e("s_setprio 0")
        a.e(mfma(vS, vK0, vQ, None))
        a.e("s_barrier")
        put(a, a.kvA[1:-1])
        def pre0():
            a.e("s_cmp_lt_u32 s%d, 14" % sM)
            a.e("s_cbranch_scc1 L_gA1")
            a.e("s_waitcnt vmcnt(0)")
            a.e("s_branch L_nogA1")
            a.l.append(".p2align 3")
            a.lab("L_gA1")
            for ti in range(Opt.gsc, 4): gelu_tile(a, ti)
            a.lab("L_nogA1")
            a.e("s_setprio 2")
    else:
        a.waitvm(["k0", "kv0", "kv1"])
        a.e("s_setprio 1")
        a.e("s_cmp_ge_u32 s%d, 14" % sM)
        a.l.append(".p2align 3")
        a.e("s_barrier")
        a.e("s_cbranch_scc1 L_nogB")
        for ti in range(4): gelu_tile(a, ti)
        a.lab("L_nogB")
        qfin()
        a.e("s_nop 1")
        a.e(mfma(vS, vK0, vQ, None))
        a.stamp(5)
    attention(a, role, pre0)
    if A:
        a.stamp(6); astamp(a, 9); tstamp(a, 2)
        if Opt.diag and Opt.kdiag == 2: a.e("s_waitcnt lgkmcnt(0)")
        a.e(smfmac(vO, vV1L, vS + 24))
        a.e("s_setprio 0")
        a.e("s_cmp_eq_u32 s%d, 0" % sHI)
        a.e("s_nop 9")
        normalise(a, False)
        a.lab("L_fbretA")
        a.e("buffer_store_dwordx4 %s, %s, %s, s%d offen sc1" % (v(vPK, 4), v(vL16), srd(SWS), sOST))
        tstamp(a, 3)
        a.e("s_waitcnt vmcnt(1)")
        tstamp(a, 4)
        a.e("s_barrier")
        a.fetch(a, False)
        a.e("s_branch L_tl2")

def normalise(a, packed):
    t = vT0
    a.e("v_rcp_f32 %s, %s" % (v(t + 2), v(vO + 8)))
    a.e("s_nop 0")
    a.e("v_mul_f32_e64 %s, %s, %s" % (v(t + 2), v(t + 2), v(vGP)))
    if packed:
        for i in range(4): a.e("v_pk_mul_f32 %s, %s, %s op_sel_hi:[1,0]" % (v(vO + 2 * i, 2), v(vO + 2 * i, 2), v(t + 2, 2)))
        for i in range(4):
            a.e("v_pk_fma_f32 %s, %s, 0, %s op_sel_hi:[1,0,%d]" % (v(t, 2), v(vO + 2 * i, 2), v(t, 2) if i else v(vO + 8, 2), 1 if i else 0))
            a.e("v_cvt_pk_bf16_f32 %s, %s, %s" % (v(vPK + i), v(vO + 2 * i), v(vO + 2 * i + 1)))
        a.e("v_fmac_f32 %s, 0, %s" % (v(t), v(t + 1)))
    else:
        t = vO + 8
        for i in range(8): a.e("v_mul_f32 %s, %s, %s" % (v(vO + i), v(vT0 + 2), v(vO + i)))
        for i in range(4):
            a.e("v_fmac_f32 %s, 0, %s" % (v(t), v(vO + 2 * i)))
            a.e("v_cvt_pk_bf16_f32 %s, %s, %s" % (v(vPK + i), v(vO + 2 * i), v(vO + 2 * i + 1)))
            a.e("v_fmac_f32 %s, 0, %s" % (v(t), v(vO + 2 * i + 1)))
    a.e("v_subrev_u32 %s, s%d, %s" % (v(t), sLO_, v(t)))
    a.e("v_cmp_lt_u32 vcc, s%d, %s" % (sRNG, v(t)))
    a.e("s_branch L_fb" if Opt.force_fb else "s_cbranch_vccnz L_fb")

def tail(a):
    a.lab("L_tail")
    a.stamp(6)
    astamp(a, 9)
    if Opt.diag and Opt.kdiag == 2: a.e("s_waitcnt lgkmcnt(0)")
    tstamp(a, 2)
    a.e(smfmac(vO, vV1L, vS + 24))
    wf = [vFR, vFR + 8, vFR + 16]
    HORD = hord()
    def oload(j):
        return "buffer_load_dwordx4 %s, %s, %s, s%d offen offset:%d %s" % (
            v(vS + 4 * j, 4), v(vL16), srd(SWS), sOLD if HORD[j] < 4 else sOLD2, (HORD[j] % 4) * 1024, Opt.old_pol)
    a.oload = oload
    a.e("s_cmp_eq_u32 s%d, 0" % sHI)
    a.e("s_nop 10")
    a.l.append(".p2align 3")
    normalise(a, True)
    a.lab("L_fbret")
    a.e("buffer_store_dwordx4 %s, %s, %s, s%d offen sc1" % (v(vPK, 4), v(vL16), srd(SWS), sOST))
    tstamp(a, 3)
    aw = [vAW0, vWOA + 1, vWOA + 2, vWOA + 3]
    ar = [vAR0, vFLA]
    wo = WOF
    def fetch(o, scale):
        for j in range(8):
            o.e(oload(j))
            if j >= 5:
                for r in wd_reads(wo[j], vWOA, (7 - j) * 8192): o.e(r)
            if scale and j >= 4:
                for i in range(4 * j - 16, 4 * j - 12): o.e("v_mul_f32 %s, %s, %s" % (v(vD + i), v(vGC), v(vD + i)))
    def addrs(a):
        a.e("v_sub_f32 %s, 1.0, %s" % (v(vGC), v(vGC)))
        for j in range(1, 4): a.e("v_xor_b32 %s, %d, %s" % (v(aw[j]), 32 * j, v(aw[0])))
        a.e("v_xor_b32 %s, 16, %s" % (v(ar[1]), v(ar[0])))
        a.e("s_mov_b32 s%d, 0x2000" % sB)
    ol = Asm(); a.ool2 = ol.l
    a.e("s_waitcnt vmcnt(1)")
    tstamp(a, 4)
    a.e("s_barrier")
    a.lab("L_tl2")
    tstamp(a, 5)
    a.fetch = fetch
    fl = collect(addrs)
    slot = [4, 5, 6, 7, 0, 1, 2][Opt.nx:] + ([3] if Opt.nd == 2 else [])
    hreg = lambda sl: vKF + 4 if sl == 2 and Opt.nd == 2 else vH + 4 * sl
    inreg = [(vWX, vHX)] + ([(vWF, vH + 4 * (4 - Opt.nd))] if Opt.nd else [])
    rds = sum((wd_reads(wf[i % 3], vWDA, slot[i] * 8192) for i in range(len(slot))), [])
    done = 4
    for i in range(-len(inreg), len(slot)):
        for c in range(2):
            if i >= 1: a.e("s_waitcnt lgkmcnt(%d)" % (done - (4 * i + 2 * c + 2)))
            a.e(mfma(vD + 16 * c, inreg[i][0] + 4 * c, inreg[i][1], vD + 16 * c) if i < 0 else
                mfma(vD + 16 * c, wf[i % 3] + 4 * c, hreg(slot[i]), vD + 16 * c))
            if i < -1: continue
            if done < len(rds):
                for r in rds[done:done + 2]: a.e(r)
                done += 2
            else:
                put(a, fl[:2]); fl = fl[2:]
    assert not fl
    tstamp(a, 6)
    a.e("s_cbranch_scc0 L_tl3")
    a.l.append(".p2align 3")
    a.e("s_nop 7")
    a.e("s_nop 0")
    for i in range(16): a.e("v_pk_mul_f32 %s, %s, %s op_sel:[0,1] op_sel_hi:[1,1]" % (v(vD + 2 * i, 2), v(vD + 2 * i, 2), v(vGP, 2)))
    tstamp(a, 7)
    a.lab("L_tl4")
    tstamp(a, 8)
    ol.lab("L_tl3")
    ol.e("s_setprio 0")
    fetch(ol, False)
    tstamp(ol, 7)
    for i in range(32): ol.e("v_mul_f32 %s, %s, %s" % (v(vD + i), v(vGC), v(vD + i)))
    ol.e("s_waitcnt lgkmcnt(0)")
    ol.e("s_branch L_tl4")
    a.stamp(7)
    def check(j):
        o = vS + 4 * j
        return ["s_waitcnt vmcnt(%d)" % (7 - j), "v_max3_u32 v2, %s, %s, %s" % (v(o), v(o + 1), v(o + 2)),
                "v_max_u32 v2, v2, %s" % v(o + 3), "v_cmp_eq_u32 vcc, -1, v2"]
    a.check = check
    for x in check(0): a.e(x)
    for j in range(10):
        if j < 8:
            a.e("s_cbranch_vccnz L_ore%d" % j)
            a.lab("L_ook%d" % j)
            a.e(mfma(vD, wo[j], vS + 4 * j, vD))
        if j >= 2 and Opt.cfirst: a.e(mfma(vD + 16, wo[j - 2] + 4, vS + 4 * (j - 2), vD + 16))
        if j < 7:
            for x in check(j + 1): a.e(x)
        if j >= 2 and not Opt.cfirst: a.e(mfma(vD + 16, wo[j - 2] + 4, vS + 4 * (j - 2), vD + 16))
        if j in (7, 8): a.e("s_nop 4")
    wr = lambda c, j: "ds_write_b128 %s, %s offset:%d" % (v(aw[j]), v(vD + 16 * c + 4 * j, 4), 128 * c)
    a.stamp(8)
    tstamp(a, 9)
    for j in range(4): a.e(wr(0, j))
    a.e("s_nop 7")
    for j in range(4): a.e(wr(1, j))
    a.e("s_waitcnt lgkmcnt(0)")
    a.e("s_barrier")
    for p in range(4):
        for h in range(2): a.e(rd128(vS + 8 * p + 4 * h, ar[h], p * 8192))
    for p in range(1, 4):
        a.e("s_waitcnt lgkmcnt(%d)" % (6 - 2 * p))
        for i in range(4): a.e("v_pk_add_f32 %s, %s, %s" % (v(vS + 2 * i, 2), v(vS + 2 * i, 2), v(vS + 8 * p + 2 * i, 2)))
    for i in range(4): a.e("v_cvt_pk_bf16_f32 %s, %s, %s" % (v(vP + i), v(vS + 2 * i), v(vS + 2 * i + 1)))
    a.e("buffer_store_dwordx4 %s, %s, %s, s%d offen %s" % (v(vP, 4), v(vOUTA), srd(SOUT), sOUTO, Opt.out_pol))
    if Opt.probe >= 0:
        a.e("s_waitcnt vmcnt(0)")
        a.stamp(9)
        if Opt.probe != 9:
            a.e("s_cmp_ge_u32 s%d, 14" % sM)
            a.e("s_cbranch_scc%d L_end" % (0 if Opt.probe_l else 1))
        a.e("s_sub_u32 s%d, s%d, s%d" % (sA, sSTAMP + 4, sSTAMP))
        a.e("s_mul_i32 s%d, s%d, %d" % (sA, sA, Opt.probe_mul - 1))
        a.e("s_min_u32 s%d, s%d, 100000" % (sA, sA))
        a.e("s_add_u32 s%d, s%d, 3800" % (sA, sA))
        if Opt.probe_r >= 0:
            a.e("s_cmp_eq_u32 s%d, 0x2000" % sB)
            a.e("s_cbranch_scc%d L_end" % Opt.probe_r)
        if Opt.probe_w >= 0:
            a.e("s_cmp_lg_u32 s%d, %d" % (sHI, Opt.probe_w))
            a.e("s_cbranch_scc1 L_end")
        if Opt.probe_x >= 0:
            a.e("s_and_b32 s0, s2, 7")
            a.e("s_cmp_lg_u32 s0, %d" % Opt.probe_x)
            a.e("s_cbranch_scc1 L_end")
        a.lab("L_probe")
        a.e("s_memrealtime s[0:1]")
        a.e("s_waitcnt lgkmcnt(0)")
        a.e("s_sub_u32 s0, s0, s%d" % (sSTAMP + 4))
        a.e("s_cmp_lt_u32 s0, s%d" % sA)
        a.e("s_cbranch_scc1 L_probe")
    if Opt.pin == 9:
        a.e("s_waitcnt vmcnt(0)")
        a.stamp(9)
    if Opt.diag in (1, 2):
        a.e("s_waitcnt vmcnt(0)")
        a.stamp(9)
        a.e("s_mov_b32 s%d, s%d" % (sSTAMP + 3, sSTAMP))
        a.e("s_mov_b32 s%d, s%d" % (sSTAMP, sB))
        a.e("s_getreg_b32 s%d, hwreg(HW_REG_XCC_ID)" % (sSTAMP + 1))
        for i in range(20): a.e("v_mov_b32 %s, s%d" % (v(vS + i), sSTAMP + i))
        a.e("s_lshl_b32 s%d, s2, 3" % sA)
        a.e("s_add_u32 s%d, s%d, s%d" % (sA, sA, sW))
        a.e("s_lshl_b32 s%d, s%d, 7" % (sA, sA))
        a.e("s_add_u32 s%d, s%d, 0x%x" % (sA, sA, WS_STAMP))
        a.e("s_mov_b64 exec, 1")
        for i in range(5): a.e("buffer_store_dwordx4 %s, off, %s, s%d offset:%d" % (v(vS + 4 * i, 4), srd(SWS), sA, 16 * i))
    a.lab("L_end")
    a.e("s_endpgm")
    a.l += a.ool2
    for j in range(8):
        a.lab("L_ore%d" % j)
        a.e("s_sub_u32 s%d, s%d, 1" % (sB, sB))
        a.e("s_cbranch_scc1 L_ogive%d" % j)
        if Opt.rwait: a.e("s_waitcnt vmcnt(0)")
        if Opt.rwait > 1: a.e("s_sleep %d" % Opt.rwait)
        for i in range(j, 8): a.e(a.oload(i))
        for x in a.check(j): a.e(x)
        a.e("s_cbranch_vccnz L_ore%d" % j)
        a.e("s_branch L_ook%d" % j)
        a.lab("L_ogive%d" % j)
        a.e("s_mov_b32 s%d, 0" % sB)
        a.e("s_branch L_ook%d" % j)

def fallback(a):
    a.lab("L_fb")
    m = vT0
    a.e("v_mov_b32 %s, 0xff800000" % v(m))
    a.e("s_mov_b32 s%d, 0" % sA)
    a.lab("L_fb1")
    a.e("buffer_load_dwordx4 %s, %s, %s, s%d offen sc1" % (v(vKF, 4), v(vL16), srd(SKV), sA))
    a.e("s_waitcnt vmcnt(0)")
    a.e(mfma(vS, vKF, vQ, None))
    a.e("s_add_u32 s%d, s%d, 2048" % (sA, sA))
    a.e("s_nop 11")
    for i in range(8): a.e("v_max3_f32 %s, %s, %s, %s" % (v(m), v(m), v(vS + 2 * i), v(vS + 2 * i + 1)))
    a.e("s_cmp_lt_u32 s%d, 0x20000" % sA)
    a.e("s_cbranch_scc1 L_fb1")
    a.e("v_mov_b32 %s, %s" % (v(m + 1), v(m)))
    a.e("s_nop 1")
    a.e("v_permlane32_swap_b32 %s, %s" % (v(m), v(m + 1)))
    a.e("s_nop 1")
    a.e("v_max_f32 %s, %s, %s" % (v(m), v(m), v(m + 1)))
    for i in range(16): a.e("v_sub_f32 %s, 0, %s" % (v(vS + 16 + i), v(m)))
    for i in range(16): a.e("v_mov_b32 %s, 0" % v(vO + i))
    a.e("s_mov_b32 s%d, 0" % sA)
    a.lab("L_fb2")
    a.e("s_add_u32 s%d, s%d, 0x%x" % (sB, sA, 63 * 2048))
    a.e("s_and_b32 s%d, s%d, 0x1ffff" % (sB, sB))
    a.e("buffer_load_dwordx4 %s, %s, %s, s%d offen sc1" % (v(vKF, 4), v(vL16), srd(SKV), sB))
    a.e("s_add_u32 s%d, s%d, 2048" % (sB, sA))
    a.e("s_and_b32 s%d, s%d, 0x1ffff" % (sB, sB))
    a.e("s_mov_b64 exec, %s" % sp(sVM))
    a.e("buffer_load_dwordx4 %s, %s, %s, s%d offen offset:1024 sc1" % (v(vV, 4), v(vL16), srd(SKV), sA))
    a.e("buffer_load_dwordx4 %s, %s, %s, s%d offen offset:1280 sc1" % (v(vV + 4, 4), v(vL16), srd(SKV), sB))
    a.e("s_mov_b64 exec, -1")
    a.e("s_waitcnt vmcnt(0)")
    a.e(mfma(vS, vKF, vQ, vS + 16))
    a.e("s_add_u32 s%d, s%d, 2048" % (sA, sA))
    a.e("s_nop 11")
    for i in range(16): a.e("v_exp_f32 %s, %s" % (v(vS + i), v(vS + i)))
    a.e("s_nop 2")
    a.e(smfmac(vO, vV, vS))
    a.e(smfmac(vO, vV + 4, vS + 8))
    a.e("s_cmp_lt_u32 s%d, 0x20000" % sA)
    a.e("s_cbranch_scc1 L_fb2")
    a.e("s_nop 11")
    a.e("v_rcp_f32 %s, %s" % (v(vT0 + 2), v(vO + 8)))
    a.e("s_cmp_eq_u32 s%d, 0" % sHI)
    a.e("v_mul_f32 %s, %s, %s" % (v(vT0 + 2), v(vT0 + 2), v(vGP)))
    for i in range(8): a.e("v_mul_f32 %s, %s, %s" % (v(vO + i), v(vT0 + 2), v(vO + i)))
    for i in range(4): a.e("v_cvt_pk_bf16_f32 %s, %s, %s" % (v(vPK + i), v(vO + 2 * i), v(vO + 2 * i + 1)))
    for i in range(4): a.e("v_min_u32 %s, -2, %s" % (v(vPK + i), v(vPK + i)))
    a.e("s_cbranch_scc1 L_fbretA")
    a.e("s_branch L_fbret")

def build():
    a = Asm()
    prologue(a)
    phase1_F(a)
    transition(a, "B")
    tail(a)
    a.l += a.ool
    transition(a, "A")
    phase1_L(a)
    fallback(a)
    a.lab("L_codeend")
    for i, x in enumerate(a.l):
        if " sc1" in x and "sc0" not in x and ((Opt.allsc & 1 and "buffer_store" in x) or (Opt.allsc & 2 and "buffer_load" in x)):
            a.l[i] = x.replace(" sc1", " sc0 sc1")
    il = a.l.index("L_light:")
    for i, x in enumerate(a.l):
        if x.endswith(" lds") and "sc1" not in x and " nt" not in x:
            if (Opt.ntx & 4 and (srd(SWD) in x or srd(SWO) in x)) or (Opt.ntx & 8 and i > il):
                a.l[i] = x[:-4] + " nt lds"
    head = open("cdna_kernels/%s.s.ref" % NAME).read().split("\n")
    hdr = [l for l in head if l.startswith(";") and "@launch" not in l and "Override" not in l and "grid=" not in l]
    out = hdr + ["; @launch grid=(256,1,1) block=(512,1,1) lds=%d" % LDS_BYTES,
                 '.amdgcn_target "amdgcn-amd-amdhsa--gfx950"', ".text", ".globl %s_kernel" % NAME, ".p2align 8",
                 ".type %s_kernel,@function" % NAME,
                 ".set CODE_PF_MAX, L_codeend - L_nopf - 4" if Opt.code_pf else "",
                 "%s_kernel:" % NAME]
    out += ["; " + x for x in """One persistent launch, one workgroup per CU (generated by a script), 8 waves = two quartets that alternate on each SIMD.
Stage 1: 14 of every 16 workgroups compute gelu(x Wg) * (x Wu) for 128 tokens x 128 columns plus Q for two heads;
         the other two compute K, V and the mixing gate, publish them (counter in d_debug) and then their own Q.
Stage 2: attention for 128 tokens x 2 heads over all keys, S^T = K Q^T, exp2 in place, P V through sparse MFMAs that
         read the high halves of the fp32 probabilities; a row of ones in the V operand gives the row sums.
         The stand-in maximum is 0: it is accepted only if the row sum lies in [2^-16, 2^100] and every accumulator is
         finite, otherwise the wave redoes its rows with the true maximum (L_fb).
         The down projection of a 64 x 64 output tile runs in the same loop once the producers' flags are seen.
Stage 3: attention outputs are handed over through d_ws (cleared to a mark earlier in this launch), projected,
         mixed with the FFN branch, reduced through LDS and stored.""".split("\n")]
    out += a.l
    out += ['.section .rodata,"a"', ".p2align 6", ".amdhsa_kernel %s_kernel" % NAME,
            "  .amdhsa_next_free_vgpr %d" % NV, "  .amdhsa_next_free_sgpr 102", "  .amdhsa_accum_offset 256",
            "  .amdhsa_group_segment_fixed_size 0", "  .amdhsa_kernarg_size 104", "  .amdhsa_user_sgpr_count 2",
            "  .amdhsa_user_sgpr_kernarg_segment_ptr 1", "  .amdhsa_system_sgpr_workgroup_id_x 1", ".end_amdhsa_kernel", ""]
    return "\n".join(out)

if __name__ == "__main__":
    path = sys.argv[1]
    for kv in sys.argv[2:]:
        k, val = kv.split("=")
        cur = getattr(Opt, k)
        setattr(Opt, k, val if isinstance(cur, str) else type(cur)(int(val)))
    open(path, "w").write(build())
```

```python
import sys, struct, math

NAME = "gated_mix__grouped_kv_mqa__geglu_ffn__prompt"

class Opt:
    diag = 0
    mapmode = 1
    force_fb = False
    allsc = 0
    out_pol = "sc0 sc1"
    code_pf = True
    xrot = 0
    pregap = 0
    rwait = 1
    aearly = 0
    bidle = 1
    old_pol = "sc1"
    ypos0 = "36g"
    ypos1 = "36bg"
    ypos2 = "36cg9"
    nd = 1
    nx = 0
    tpos = 1
    cfirst = 0
    tch = 12
    stch = 0
    spos = 1
    tlb = 14
    olate = 1
    hrot = 0
    tbar = 0
    hord = 1
    cmap = 1
    kqx = 0
    oearly = 8
    conc = 1
    ghx = 1
    qa = "077777"
    qb = "588888"
    npre = 8
    stagger = 1
    rper = 2
    dma1 = 17
    kprio = 0
    dma0 = 8
    npd = 4
    kdiag = 0
    fillpre = 0
    fillper = 5
    gsc = 2
    sched = 0
    xmask = 1
    ntx = 0
    touch = 2
    rotg = 0
    rotm = 0
    startbar = 1
    pvz = 1
    pin = -1
    pin_ns = 60000
    probe = -1
    probe_x = -1
    probe_mul = 10
    probe_w = -1
    probe_r = -1
    pcyc = -1
    probe_l = 0

def f2u(x): return struct.unpack("<I", struct.pack("<f", x))[0]

WS_KV = 0
WS_G = 128 * 1024
WS_HFLAG = 192 * 1024
WS_OF = 1 << 20
WS_HF = 4 << 20
WS_STAMP = 12 << 20
WS_SIZE = 16 << 20
K1 = 1024
L_G, L_U, L_X, L_WQ = 0, 48 * K1, 96 * K1, 144 * K1
L_QX = 32 * K1
L_WD, L_WO, L_KV = 0, 64 * K1, 128 * K1
L_RED = 96 * K1
LL_X, LL_W, LL_GATE, LL_WQ = 0, 128 * K1, 144 * K1, 128 * K1
LDS_BYTES = 160 * K1

SX, SWG, SWU, SWQ, SWS, SWD, SWO, SOUT, SDBG, SWKV, SGATE, SKV = 4, 8, 12, 16, 20, 24, 28, 32, 36, 40, 44, 64
SWV = 72
sTMPP = 48
sW, sHI, sLO, sG, sM, sT, sCB = 50, 51, 52, 53, 54, 55, 56
sWK = 57
sWH = 58
sVM = 60
sRET = 62
sA, sB, sC, sD = 68, 69, 70, 71
sOFFW, sOFFQ, sCH, sXP = 72, 73, 74, 75
sHOFF, sWDOFF, sKVOFF, sHXO, sCNT = 72, 73, 74, 75, 77
sOUTO, sLO_, sRNG = 59, 81, 75
sOLD2 = 58
sOST, sOLD, sHST = 78, 79, 80
sHST2 = 3
sRX, sRW, sM0B = 40, 41, 42
sKQ = 76
sHP = sM
sSTAMP = 82

def srd(b): return "s[%d:%d]" % (b, b + 3)
def sp(b): return "s[%d:%d]" % (b, b + 1)
def v(b, n=1): return "v%d" % b if n == 1 else "v[%d:%d]" % (b, b + n - 1)

vL16 = 1
vT0, vT1, vT2, vT3 = 2, 3, 4, 5
vGP, vGC = 6, 7
vKVA = 8
vWDA = 9
vWDV = 10
vONE = 11
vZERO = 12
vFLA = 13
vPOLL = 14
vGA = 15
vQ = 16
vK0 = 20
vV1L = 24
vIDX = 28
vAW0, vAR0, vOUTA = 30, 31, 12
vKVB = 29
vP = 32
vV = 40
vO = 56
vD = 72
vACC = 104
vS = 104
vH = 136
vAQ = vP
vF1 = 168
vKF = 168
vWF = 176
vWX = 224
vHX = 232
vPK = 20
WOF = [32, 208, 216, 240, 248, 40, 48, 56]
vWOA = 236
vFR = 184
vLX = 224
vXA = 240
vWA = 244
vQA = 248
vDX, vDG, vDQ = 249, 250, 251
vC0 = 252
vTID = 255
vHA = 254
NV = 256

class Asm:
    def __init__(self):
        self.l = []
        self.vm = []
        self.nstamp = 0
    def e(self, s):
        for x in s.split("\n"):
            x = x.strip()
            if x: self.l.append("    " + x)
    def lab(self, s): self.l.append(s + ":")
    def vmop(self, s, tag):
        self.e(s); self.vm.append(tag)
    def vmn(self, tags):
        if isinstance(tags, str): tags = [tags]
        last = -1
        for i, t in enumerate(self.vm):
            if t in tags: last = i
        return None if last < 0 else len(self.vm) - 1 - last
    def waitvm(self, tags, lgkm=False):
        n = self.vmn(tags)
        if n is None:
            if lgkm: self.e("s_waitcnt lgkmcnt(0)")
            return
        assert n < 64
        self.e("s_waitcnt vmcnt(%d)%s" % (n, " lgkmcnt(0)" if lgkm else ""))
        self.vm = self.vm[len(self.vm) - n:] if n else []
    def wait0(self, lgkm=False):
        self.e("s_waitcnt vmcnt(0)%s" % (" lgkmcnt(0)" if lgkm else "")); self.vm = []
    def stamp(self, i, real=False):
        if Opt.probe == i:
            self.e("s_waitcnt lgkmcnt(0)")
            self.e("s_memrealtime %s" % sp(sSTAMP + 4))
            if Opt.pcyc >= 0: self.e("s_memtime %s" % sp(sSTAMP + 8))
            self.e("s_waitcnt lgkmcnt(0)")
        if Opt.pin == i:
            self.nstamp += 1
            self.e("s_waitcnt lgkmcnt(0)")
            self.e("s_cselect_b32 s%d, 1, 0" % (sSTAMP + 5))
            self.lab("L_pin%d" % self.nstamp)
            self.e("s_memrealtime s[0:1]")
            self.e("s_waitcnt lgkmcnt(0)")
            self.e("s_sub_u32 s0, s0, s%d" % sSTAMP)
            self.e("s_cmp_lt_u32 s0, %d" % (Opt.pin_ns // 10))
            self.e("s_cbranch_scc1 L_pin%d" % self.nstamp)
            self.e("s_cmp_lg_u32 s%d, 0" % (sSTAMP + 5))
        if Opt.diag and not Opt.kdiag and (Opt.diag == 1 or i == 9):
            self.e("s_waitcnt lgkmcnt(0)")
            self.e("s_memtime %s" % sp(sSTAMP + 2 * i))
            self.e("s_memrealtime %s" % sp(sRET))
            self.e("s_waitcnt lgkmcnt(0)")
            self.e("s_mov_b32 s%d, s%d" % (sSTAMP + 2 * i + 1, sRET))

def astamp(a, i):
    if Opt.diag and Opt.kdiag == 2: a.e("s_memtime %s" % sp(sSTAMP + 2 * i))

def tstamp(a, i):
    if Opt.diag and Opt.kdiag == 3: a.e("s_memtime %s" % sp(sSTAMP + 2 * i))

def kstamp(a, i):
    if Opt.probe == 18 + i: a.e("s_memrealtime %s" % sp(sSTAMP + 4))
    if Opt.diag and Opt.kdiag == 1: a.e("s_memtime %s" % sp(sSTAMP + 2 * i))

def mfma(d, a, b, c):
    return "v_mfma_f32_32x32x16_bf16 %s, %s, %s, %s" % (v(d, 16), v(a, 4), v(b, 4), "0" if c is None else v(c, 16))
def smfmac(d, a, b):
    return "v_smfmac_f32_32x32x32_bf16 %s, %s, %s, %s" % (v(d, 16), v(a, 4), v(b, 8), v(vIDX))
def mfma16(d, a, b, c):
    return "v_mfma_f32_16x16x32_bf16 %s, %s, %s, %s" % (v(d, 4), v(a, 4), v(b, 4), "0" if c is None else v(c, 4))
def rd128(d, a, off):
    assert 0 <= off < 65536
    return "ds_read_b128 %s, %s offset:%d" % (v(d, 4), v(a), off)
def rdtr(d, a, off):
    assert 0 <= off < 65536
    return "ds_read_b64_tr_b16 %s, %s offset:%d" % (v(d, 2), v(a), off)

def interleave(mf, fill, per=2):
    out = []
    fill = list(fill)
    for i, m in enumerate(mf):
        out.append(m)
        if i < len(mf) - 1:
            out += fill[:per]; fill = fill[per:]
    return out + fill

def srd_words(a, regs):
    sizes = {SX: 2048 * 1024, SWG: 512 * 3584, SWU: 512 * 3584, SWQ: 512 * 1024, SWS: WS_SIZE, SWKV: 16384, SWV: 16384,
             SGATE: 1024, SWD: 1792 * 1024, SWO: 512 * 1024, SOUT: 2048 * 1024, SDBG: 256, SKV: 128 * 1024}
    for reg in regs:
        a.e("s_mov_b32 s%d, 0x%x" % (reg + 2, sizes[reg]))
        a.e("s_mov_b32 s%d, 0x20000" % (reg + 3))

def ptr_loads(a, lst):
    for reg, off in lst: a.e("s_load_dwordx2 %s, s[0:1], %d" % (sp(reg), off))

def prologue(a):
    if Opt.diag or Opt.pin >= 0 or Opt.probe >= 0:
        a.e("s_memrealtime %s" % sp(sSTAMP))
        if Opt.diag in (1, 2): a.e("s_memtime %s" % sp(sSTAMP + 2))
    ptr_loads(a, ((SX, 0), (SWG, 48), (SWU, 56), (SWQ, 8)))
    if Opt.probe == 1: a.stamp(1)
    a.e("v_lshrrev_b32 v2, 6, v0")
    if Opt.code_pf:
        a.e("s_getpc_b64 %s" % sp(sRET))
        a.lab("L_nopf")
        a.e("s_and_b32 s%d, s2, -8" % sA)
        a.e("v_add_lshl_u32 v4, v2, s%d, 7" % sA)
        a.e("v_mov_b32 v5, 0")
        a.e("v_min_u32 v4, CODE_PF_MAX, v4")
        a.e("v_lshl_add_u64 v[4:5], v[4:5], 0, %s" % sp(sRET))
        a.e("global_load_dword %s, v[4:5], off" % v(vPOLL))
    a.e("s_load_dwordx8 s[%d:%d], s[0:1], 64" % (SOUT, SOUT + 7))
    a.e("v_readfirstlane_b32 s%d, v2" % sW)
    ptr_loads(a, ((SWS, 96),) if Opt.diag or Opt.probe >= 0 else ((SWS, 96), (SWO, 32)))
    a.e("s_cmpk_ge_u32 s2, 256")
    a.e("s_cbranch_scc1 L_end")
    a.e("s_and_b32 s%d, s2, 1" % sD)
    a.e("s_bfe_u32 s%d, s2, 0x30003" % sA)
    a.e("s_lshl3_add_u32 s%d, s%d, s%d" % (sG, sD, sA))
    a.e("s_bfe_u32 s%d, s2, 0x20001" % sA)
    a.e("s_lshr_b32 s%d, s2, 6" % sB)
    a.e("s_lshl2_add_u32 s%d, s%d, s%d" % (sM, sA, sB))
    a.e("s_lshl_b32 s%d, s%d, 10" % (sWK, sW))
    a.e("s_cmp_ge_u32 s%d, 14" % sM)
    a.e("s_cbranch_scc1 L_light")

def xvoff(a, t):
    a.e("v_lshrrev_b32 v2, 4, %s" % v(t))
    a.e("v_xor_b32 v2, v2, %s" % v(t))
    a.e("v_and_b32 v2, 7, v2")
    a.e("s_lshl_b32 s%d, s%d, 17" % (sA, sG))
    a.e("v_lshl_add_u32 v2, v2, 4, s%d" % sA)
    a.e("v_lshrrev_b32 v3, 3, %s" % v(t))
    a.e("v_lshl_add_u32 %s, v3, 10, v2" % v(vDX))

def setup_ids(a):
    a.e("s_mov_b64 %s, %s" % (sp(SKV), sp(SWS)))
    a.e("s_mov_b64 %s, %s" % (sp(SWD), sp(SOUT)))
    a.e("s_mov_b64 %s, %s" % (sp(SOUT), sp(SOUT + 4)))
    a.e("s_mov_b64 %s, %s" % (sp(SDBG), sp(SOUT + 6)))
    a.e("v_and_b32 v0, 63, v0")
    a.e("v_lshlrev_b32 %s, 4, v0" % v(vL16))
    a.e("s_andn2_b32 s%d, 1, s2" % sA)
    a.e("s_bfe_u32 s%d, s2, 0x20001" % sB)
    a.e("s_lshl2_add_u32 s%d, s%d, s%d" % (sA, sA, sB))
    a.e("s_bfe_u32 s%d, s2, 0x20003" % sB)
    a.e("s_lshl2_add_u32 s%d, s%d, s%d" % (sT, sA, sB))
    a.e("s_lshr_b32 s%d, s2, 5" % sCB)

def setup_rd(a):
    a.e("s_lshr_b32 s%d, s%d, 2" % (sHI, sW))
    a.e("s_and_b32 s%d, s%d, 3" % (sLO, sW))
    a.e("v_and_b32 v2, 15, v0")
    a.e("v_lshrrev_b32 v3, 4, v0")
    a.e("v_bfe_u32 v4, v0, 1, 3")
    a.e("v_xor_b32 v4, v4, v3")
    a.e("v_lshlrev_b32 v4, 4, v4")
    a.e("v_lshl_add_u32 %s, v2, 7, v4" % v(vXA))
    a.e("v_bfe_u32 v2, v0, 2, 2")
    a.e("v_and_b32 v4, 3, v0")
    a.e("v_lshl_add_u32 %s, v3, 3, v2" % v(vQA))
    a.e("v_lshlrev_b32 %s, 6, %s" % (v(vQA), v(vQA)))
    a.e("v_xor_b32 v5, s%d, v3" % sHI)
    a.e("v_and_b32 v5, 1, v5")
    a.e("v_lshl_add_u32 %s, v5, 5, %s" % (v(vQA), v(vQA)))
    a.e("v_lshl_add_u32 %s, v4, 3, %s" % (v(vQA), v(vQA)))

def setup_oclr(a):
    srd_words(a, [SWS, SKV, SDBG])
    a.e("s_mov_b32 s%d, 0xffff" % sVM)
    a.e("s_mov_b32 s%d, 0xffff" % (sVM + 1))
    a.e("s_lshl_b32 s%d, s%d, 2" % (sA, sG))
    a.e("s_add_u32 s%d, s%d, s%d" % (sA, sA, sLO))
    a.e("s_lshl_b32 s%d, s%d, 5" % (sB, sA))
    a.e("s_lshl_b32 s%d, s%d, 1" % (sC, sHP))
    a.e("s_add_u32 s%d, s%d, s%d" % (sB, sB, sC))
    a.e("s_add_u32 s%d, s%d, s%d" % (sB, sB, sHI))
    a.e("s_lshl_b32 s%d, s%d, 10" % (sB, sB))
    a.e("s_add_u32 s%d, s%d, 0x%x" % (sOST, sB, WS_OF))
    for i in range(4): a.e("v_mov_b32 %s, -1" % v(vQ + i))
    a.vmop("buffer_store_dwordx4 %s, %s, %s, s%d offen sc1" % (v(vQ, 4), v(vL16), srd(SWS), sOST), "oclr")
    a.e("v_mov_b32 %s, 1" % v(vONE))
    a.e("v_mov_b32 %s, 0" % v(vZERO))
    a.e("v_and_b32 %s, 31, v0" % v(vGA))
    a.e("v_lshlrev_b32 %s, 2, %s" % (v(vGA), v(vGA)))

def collect(fn):
    t = Asm(); t.marks = {}
    def vmop(s_, tag):
        t.e(s_); t.marks[len(t.l) - 1] = tag
    t.vmop = vmop
    fn(t)
    return [(x, t.marks.get(i)) for i, x in enumerate(t.l)]
def put(a, items):
    for x, tag in items:
        if tag: a.vmop(x, tag)
        else: a.e(x)

def setup_ones(a):
    a.e("s_mov_b32 s%d, 0x110000" % sA)
    a.e("s_mov_b32 s%d, 0x110000" % sB)
    a.e("v_mov_b32 v3, 0x3f803f80")
    a.e("v_cndmask_b32 %s, 0, v3, %s" % (v(vV1L), sp(sA)))
    for i in range(1, 4): a.e("v_mov_b32 %s, %s" % (v(vV1L + i), v(vV1L)))
    for i in range(16): a.e("v_mov_b32 %s, %s" % (v(vV + i), v(vV1L)))

def setup_attn(a):
    srd_words(a, [SWD, SWO, SOUT])
    a.e("s_lshl_b32 s%d, s%d, 2" % (sA, sG))
    a.e("s_add_u32 s%d, s%d, s%d" % (sA, sA, sLO))
    a.e("s_mul_i32 s%d, s%d, 112" % (sB, sA))
    a.e("s_lshl_b32 s%d, s%d, 3" % (sC, sM))
    a.e("s_add_u32 s%d, s%d, s%d" % (sB, sB, sC))
    a.e("s_lshl_b32 s%d, s%d, 2" % (sC, sHI))
    a.e("s_add_u32 s%d, s%d, s%d" % (sB, sB, sC))
    a.e("s_and_b32 s%d, s%d, 1" % (sC, sLO))
    a.e("s_lshl_b32 s%d, s%d, 1" % (sC, sC))
    a.e("s_add_u32 s%d, s%d, s%d" % (sB, sB, sC))
    a.e("s_lshl_b32 s%d, s%d, 10" % (sB, sB))
    a.e("s_add_u32 s%d, s%d, 0x%x" % (sHST, sB, WS_HF))
    a.e("s_mul_i32 s%d, s%d, %d" % (sC, sC, 112 * 1024))
    a.e("s_sub_u32 s%d, %d, s%d" % (sC, 112 * 1024, sC))
    a.e("s_add_u32 s%d, s%d, s%d" % (sHST2, sHST, sC))
    a.e("v_bfe_u32 v2, v0, 2, 2")
    a.e("v_lshrrev_b32 v3, 5, v0")
    a.e("v_lshl_add_u32 v2, v3, 2, v2")
    a.e("v_lshlrev_b32 v2, 6, v2")
    a.e("v_bfe_u32 v3, v0, 4, 1")
    a.e("v_lshl_add_u32 v2, v3, 5, v2")
    a.e("v_and_b32 v3, 3, v0")
    a.e("v_lshl_add_u32 v2, v3, 3, v2")
    a.e("s_lshr_b32 s%d, s%d, 1" % (sA, sW))
    a.e("s_lshl_b32 s%d, s%d, 11" % (sA, sA))
    a.e("v_add_u32 %s, s%d, v2" % (v(vWDA), sA))
    a.e("v_add_u32 %s, 0x%x, %s" % (v(vKVA), L_KV, v(vL16)))
    a.e("v_add_u32 %s, 0x%x, %s" % (v(vKVB), L_KV + 0x4000, v(vL16)))
    a.e("v_bfe_u32 v2, v0, 2, 3")
    a.e("v_lshlrev_b32 v2, 10, v2")
    a.e("v_lshrrev_b32 v3, 5, v0")
    a.e("v_lshl_add_u32 v2, v3, 6, v2")
    a.e("v_and_b32 v3, 3, v0")
    a.e("v_lshl_add_u32 v2, v3, 4, v2")
    a.e("s_lshl_b32 s%d, s%d, 7" % (sB, sCB))
    a.e("v_add_u32 %s, s%d, v2" % (v(vWDV), sB))
    a.e("v_min_u32 v2, 13, v0")
    a.e("v_lshlrev_b32 v2, 7, v2")
    a.e("s_lshr_b32 s%d, s%d, 1" % (sA, sT))
    a.e("s_lshl_b32 s%d, s%d, 11" % (sA, sA))
    a.e("s_add_u32 s%d, s%d, 0x%x" % (sA, sA, WS_HFLAG))
    a.e("v_add_u32 %s, s%d, v2" % (v(vFLA), sA))
    a.e("s_lshl_b32 s%d, s%d, 1" % (sA, sT))
    a.e("s_and_b32 s%d, s%d, 1" % (sB, sW))
    a.e("s_add_u32 s%d, s%d, s%d" % (sA, sA, sB))
    a.e("s_lshl_b32 s%d, s%d, 15" % (sB, sA))
    a.e("s_lshr_b32 s%d, s%d, 1" % (sKQ, sW))
    if Opt.kqx:
        a.e("s_lshl_b32 s%d, s%d, 1" % (sC, sCB))
        a.e("s_and_b32 s%d, s%d, 2" % (sC, sC))
        a.e("s_xor_b32 s%d, s%d, s%d" % (sKQ, sKQ, sC))
    a.e("s_lshl_b32 s%d, s%d, 13" % (sC, sKQ))
    a.e("s_add_u32 s%d, s%d, s%d" % (sB, sB, sC))
    a.e("s_add_u32 s%d, s%d, 0x%x" % (sOLD, sB, WS_OF))
    a.e("v_and_b32 v2, 31, v0")
    a.e("v_lshrrev_b32 v3, 5, v0")
    a.e("v_and_b32 v4, 7, v0")
    a.e("v_xor_b32 v3, v3, v4")
    a.e("v_lshlrev_b32 v3, 4, v3")
    a.e("v_lshl_add_u32 v3, v2, 8, v3")
    a.e("s_and_b32 s%d, s%d, 1" % (sB, sW))
    a.e("s_lshl_b32 s%d, s%d, 15" % (sB, sB))
    a.e("s_lshr_b32 s%d, s%d, 1" % (sC, sW))
    a.e("s_lshl_b32 s%d, s%d, 13" % (sD, sC))
    a.e("s_add_u32 s%d, s%d, s%d" % (sOUTO, sD, sB))
    a.e("s_add_u32 s%d, s%d, 0x%x" % (sD, sOUTO, L_RED))
    a.e("v_add_u32 %s, s%d, v3" % (v(vAW0), sD))
    a.e("v_lshrrev_b32 v2, 3, v0")
    a.e("v_lshlrev_b32 v3, 1, v4")
    a.e("v_xor_b32 v3, v3, v2")
    a.e("v_lshlrev_b32 v3, 4, v3")
    a.e("v_lshl_add_u32 v3, v2, 8, v3")
    a.e("s_lshl_b32 s%d, s%d, 11" % (sD, sC))
    a.e("s_add_u32 s%d, s%d, s%d" % (sD, sD, sB))
    a.e("s_add_u32 s%d, s%d, 0x%x" % (sD, sD, L_RED))
    a.e("v_add_u32 %s, s%d, v3" % (v(vAR0), sD))
    a.e("v_lshlrev_b32 v4, 4, v4")
    a.e("v_lshl_add_u32 %s, v2, 10, v4" % v(vOUTA))
    a.e("s_lshl_b32 s%d, s%d, 16" % (sC, sT))
    a.e("s_add_u32 s%d, s%d, s%d" % (sOUTO, sOUTO, sC))
    a.e("s_lshl_b32 s%d, s%d, 7" % (sC, sCB))
    a.e("s_add_u32 s%d, s%d, s%d" % (sOUTO, sOUTO, sC))
    a.e("v_mov_b32 %s, 0xdddd" % v(vIDX))
    a.e("v_lshrrev_b32 v2, 4, v0")
    a.e("v_lshl_add_u32 %s, v2, 8, %s" % (v(vHA), v(vL16)))
    for i in range(16): a.e("v_mov_b32 %s, 0" % v(vO + i))
    for i in range(32): a.e("v_mov_b32 %s, 0" % v(vD + i))
    c0 = -2.0 * math.sqrt(2.0 / math.pi) * math.log2(math.e)
    a.e("v_mov_b32 %s, 0x%x" % (v(vC0), f2u(c0)))
    a.e("v_mov_b32 %s, 0x%x" % (v(vC0 + 1), f2u(c0 * 0.044715)))

def kv_first_loads(a, quartet=False):
    it = []
    for o in (range(0, 16384, 4096) if quartet else range(0, 16384, 8192)):
        b = sWH if quartet else sWK
        it.append(("s_add_u32 m0, s%d, 0x%x\ns_add_u32 s%d, s%d, 0x%x\nbuffer_load_dwordx4 %s, %s, s%d offen sc1 lds"
                   % (b, L_KV + o, sA, b, o, v(vL16), srd(SKV), sA), "kv%d" % (o >> 13)))
    it.append(("s_mov_b32 s%d, 0x%x\nbuffer_load_dwordx4 %s, %s, %s, s%d offen sc1"
               % (sA, 63 * 2048, v(vK0, 4), v(vL16), srd(SKV), sA), "k0"))
    it.append(("s_mov_b64 exec, %s\nbuffer_load_dwordx4 %s, %s, %s, 0 offen offset:%d sc1\ns_mov_b64 exec, -1"
               % (sp(sVM), v(vV1L, 4), v(vL16), srd(SKV), 1024 + 256), "k0"))
    it.append(("s_lshl_b32 s%d, s%d, 2\ns_add_u32 s%d, s%d, s%d\ns_lshl_b32 s%d, s%d, 7\ns_add_u32 s%d, s%d, 0x%x\n"
               "buffer_load_dword %s, %s, %s, s%d offen sc1"
               % (sA, sG, sA, sA, sLO, sA, sA, sA, sA, WS_G, v(vGP), v(vGA), srd(SWS), sA), "k0"))
    it.append(("s_lshl_b32 s%d, s%d, 1\ns_and_b32 s%d, s%d, 1\ns_add_u32 s%d, s%d, s%d\ns_lshl_b32 s%d, s%d, 7\ns_add_u32 s%d, s%d, 0x%x\n"
               "buffer_load_dword %s, %s, %s, s%d offen sc1"
               % (sA, sT, sB, sW, sA, sA, sB, sA, sA, sA, sA, WS_G, v(vGC), v(vGA), srd(SWS), sA), "k0"))
    return it

def spin_counter(a, name, first_loaded, wave=0):
    a.e("s_cmp_lg_u32 s%d, %d" % (sW, wave))
    a.e("s_cbranch_scc1 L_%s_done" % name)
    a.e("s_mov_b32 s%d, 0x4000" % sB)
    if first_loaded: a.e("s_branch L_%s_chk" % name)
    a.lab("L_%s_re" % name)
    a.e("buffer_load_dword %s, off, %s, 0 sc1" % (v(vPOLL), srd(SDBG)))
    a.e("s_waitcnt vmcnt(0)")
    a.lab("L_%s_chk" % name)
    a.e("v_readfirstlane_b32 s%d, %s" % (sA, v(vPOLL)))
    a.e("s_cmp_ge_u32 s%d, 32" % sA)
    a.e("s_cbranch_scc1 L_%s_done" % name)
    a.e("s_sleep 4")
    a.e("s_sub_u32 s%d, s%d, 1" % (sB, sB))
    a.e("s_cmp_lg_u32 s%d, 0" % sB)
    a.e("s_cbranch_scc1 L_%s_re" % name)
    a.lab("L_%s_done" % name)

def phase1_F(a):
    SCHED = {1: ["01423567", "10253467", "23016457", "32104756"],
             2: ["02134657", "01324576", "10243567", "10235467"],
             3: ["01324657", "01243576", "12035467", "20134567"],
             5: ["01243567", "10325467", "23014657", "32104576"],
             6: ["01243567", "10325467", "01234657", "10324576"],
             7: ["01234567", "10235476", "01234567", "10235476"],
             8: ["01234567", "10243657", "01234567", "10243657"],
             4: ["02143657", "10325476", "02143657", "10325476"]}
    tabs = SCHED[Opt.sched] if Opt.sched else ["".join(str(c ^ (p & Opt.xmask)) for c in range(8)) for p in range(4)]
    for t_ in tabs: assert sorted(t_) == list("01234567")
    num = [int(t_[::-1], 16) for t_ in tabs]
    def table(a):
        a.e("s_add_u32 s%d, s%d, s%d" % (sA, sG, sHP))
        a.e("s_mov_b32 s%d, 0x%x" % (sXP, num[0]))
        a.e("s_mov_b32 s%d, 0x%x" % (sB, num[2]))
        a.e("s_bitcmp1_b32 s%d, 0" % sA)
        a.e("s_cselect_b32 s%d, 0x%x, s%d" % (sXP, num[1], sXP))
        a.e("s_cselect_b32 s%d, 0x%x, s%d" % (sB, num[3], sB))
        a.e("s_bitcmp1_b32 s%d, 1" % sA)
        a.e("s_cselect_b32 s%d, s%d, s%d" % (sXP, sB, sXP))
        if Opt.ghx:
            a.e("s_bitcmp1_b32 s%d, 3" % sG)
            a.e("s_cselect_b32 s%d, 0x44444444, 0" % sB)
            a.e("s_xor_b32 s%d, s%d, s%d" % (sXP, sXP, sB))
    fo, fw = {"0000": (0, 0), "0101": (0, 1), "0011": (1, 1), "0123": (0, 2)}["".join(t_[0] for t_ in tabs)]
    a.e("s_add_u32 s%d, s%d, s%d" % (sA, sG, sHP))
    a.e("s_bfe_u32 s%d, s%d, 0x%x" % (sCH, sA, fw << 16 | fo))
    if Opt.ghx: a.e("s_lshl2_add_u32 s%d, s%d, s%d" % (sCH, sD, sCH))
    a.e("s_and_b32 s%d, s%d, 0xc00" % (sWH, sWK))
    a.e("v_and_b32 %s, 0xff, v0" % v(vTID))

    def wvoff(a):
        a.e("v_lshrrev_b32 v2, 4, %s" % v(vTID))
        a.e("v_lshrrev_b32 v3, 5, %s" % v(vTID))
        a.e("v_bfi_b32 v3, 3, v2, v3")
        a.e("v_lshlrev_b32 v3, 1, v3")
        a.e("v_xor_b32 v3, v3, %s" % v(vTID))
        a.e("v_and_b32 v3, 15, v3")
        a.e("s_lshl_b32 s%d, s%d, 8" % (sA, sM))
        a.e("v_lshl_add_u32 v3, v3, 4, s%d" % sA)
        a.e("v_mul_u32_u24 v2, 3584, v2")
        a.e("v_add_u32 %s, v2, v3" % v(vDG))
    def qvoff(a):
        a.e("v_lshrrev_b32 v2, 4, %s" % v(vTID))
        a.e("v_and_b32 v2, 2, v2")
        a.e("v_xor_b32 v2, v2, %s" % v(vTID))
        a.e("v_and_b32 v2, 3, v2")
        a.e("s_lshl_b32 s%d, s%d, 6" % (sA, sHP))
        a.e("v_lshl_add_u32 v2, v2, 4, s%d" % sA)
        a.e("v_lshrrev_b32 v3, 2, %s" % v(vTID))
        a.e("v_lshl_add_u32 %s, v3, 10, v2" % v(vDQ))
    def stouch(a):
        if Opt.diag or Opt.probe >= 0: a.e("s_load_dwordx2 %s, s[0:1], 32" % sp(SWO))
        if not Opt.stch: return
        a.e("s_lshr_b32 s%d, s%d, 2" % (sA, sW))
        if Opt.ghx: a.e("s_lshl2_add_u32 s%d, s%d, s%d" % (sA, sD, sA))
        a.e("s_lshl_b32 s%d, s%d, 6" % (sA, sA))
        a.e("s_and_b32 s%d, s%d, 7" % (sB, sG))
        a.e("s_add_u32 s%d, s%d, s%d" % (sA, sA, sB))
        a.e("s_mul_i32 s%d, s%d, 28" % (sA, sA))
        a.e("s_bfe_u32 s%d, s%d, 0x10001" % (sB, sW))
        a.e("s_lshl1_add_u32 s%d, s%d, s%d" % (sB, sM, sB))
        a.e("s_add_u32 s%d, s%d, s%d" % (sA, sA, sB))
        a.e("s_lshl_b32 s%d, s%d, 7" % (sA, sA))
        a.e("s_bitcmp1_b32 s%d, 0" % sW)
        a.e("s_cselect_b64 %s, %s, %s" % (sp(SWKV), sp(SWU), sp(SWG)))
        a.e("s_add_u32 s%d, s%d, s%d" % (SWKV, SWKV, sA))
        a.e("s_addc_u32 s%d, s%d, 0" % (SWKV + 1, SWKV + 1))
        for i in range(Opt.stch):
            a.e("s_load_dwordx2 %s, %s, 0x%x" % (sp(sTMPP), sp(SWKV), 128 * 3584 + i * 8 * 3584 + 60))
    def wsrd(a):
        srd_words(a, [SWG])
        a.e("s_mov_b64 %s, %s" % (sp(SWU + 2), sp(SWG + 2)))

    if Opt.hrot:
        ORDER = [("q", 0)] + [(t_, 2 * h_ + j) for h_ in range(2) for t_, j in (("x", 0), ("x", 1), ("g", 0), ("u", 0), ("g", 1), ("u", 1))]
    else:
        ORDER = [("q", 0)] + [("x", j) for j in range(4)] + [(t_, j) for j in range(4) for t_ in "gu"]
    def block(items):
        out = []; lastc = None; lastw = None
        for c, kind, j in items:
            s = c % 3; pre = []
            if c != lastc:
                if c: pre.append("s_bfe_u32 s%d, s%d, 0x%x" % (sCH, sXP, 0x30000 + 4 * c))
                lastc = c; lastw = None
            fam = "w" if kind in "gu" else kind
            rot = Opt.hrot and fam != "q"
            if lastw is None or lastw[0] != fam or (rot and lastw[1] >> 1 != j >> 1):
                pre.append({"q": "s_lshl_b32 s%d, s%d, 16" % (sOFFW, sCH), "x": "s_lshl_b32 s%d, s%d, 7" % (sOFFW, sCH),
                            "w": "s_mul_i32 s%d, s%d, %d" % (sOFFW, sCH, 64 * 3584)}[fam])
                if rot: pre.append("s_%s_u32 s%d, s%d, s%d" % ("sub" if j >> 1 else "add", sOFFW, sOFFW, sRX if fam == "x" else sRW))
                lastw = (fam, 0)
            if lastw[1] != j:
                pre.append("s_add_u32 s%d, s%d, 0x%x" % (sOFFW, sOFFW, (j - lastw[1]) * (0x8000 if fam == "x" else 16 * 3584)))
                lastw = (fam, j)
            m0c, vo, rs = {"q": (L_WQ + s * 4096, vDQ, SWQ), "x": (L_X + s * 16384 + j * 4096, vDX, SX),
                           "g": (L_G + s * 16384 + j * 4096, vDG, SWG), "u": (L_U + s * 16384 + j * 4096, vDG, SWU)}[kind]
            nt = " nt" if Opt.ntx & (1 if rs == SX else 2) else ""
            out.append(("s_add_u32 m0, s%d, 0x%x\n%s\nbuffer_load_dwordx4 %s, %s, s%d offen%s lds"
                        % ((sM0B + (j >> 1)) if rot else sWH, m0c, "\n".join(pre) or "s_nop 0", v(vo), srd(rs), sOFFW, nt), "c%d" % c))
        return out
    def part(c, role): return [(c, k_, j) for k_, j in ORDER if (k_ in "gu") == (role == "A")]

    def rdsetup(a):
        setup_rd(a)
        a.e("v_lshl_add_u32 %s, v3, 3, v2" % v(vWA))
        a.e("v_lshlrev_b32 %s, 8, %s" % (v(vWA), v(vWA)))
        a.e("v_lshl_add_u32 %s, v4, 3, %s" % (v(vWA), v(vWA)))
        a.e("v_and_b32 v5, 1, v3")
        a.e("v_lshl_add_u32 v2, v5, 2, v2")
        a.e("s_lshl_b32 s%d, s%d, 2" % (sA, sHI))
        a.e("s_and_b32 s%d, s%d, 1" % (sB, sLO))
        a.e("s_lshl_b32 s%d, s%d, 1" % (sB, sB))
        a.e("s_add_u32 s%d, s%d, s%d" % (sA, sA, sB))
        a.e("v_xor_b32 v2, s%d, v2" % sA)
        a.e("v_lshl_add_u32 %s, v2, 5, %s" % (v(vWA), v(vWA)))
        a.e("v_xor_b32 %s, 32, %s" % (v(vWA + 1), v(vWA)))
        a.e("v_add_u32 %s, 0x%x, %s" % (v(vWA + 2), L_U - L_G, v(vWA)))
        a.e("v_add_u32 %s, 0x%x, %s" % (v(vWA + 3), L_U - L_G, v(vWA + 1)))
        a.e("s_lshl_b32 s%d, s%d, 12" % (sA, sLO))
        a.e("s_add_u32 s%d, s%d, 0x%x" % (sA, sA, L_X))
        a.e("v_add_u32 %s, s%d, %s" % (v(vXA), sA, v(vXA)))
        a.e("v_xor_b32 %s, 0x1000, %s" % (v(vXA + 1), v(vXA)))
        a.e("v_xor_b32 %s, 64, %s" % (v(vXA + 2), v(vXA)))
        a.e("v_xor_b32 %s, 64, %s" % (v(vXA + 3), v(vXA + 1)))
        a.e("v_add_u32 %s, 0x%x, %s" % (v(vQA), L_WQ, v(vQA)))

    a.e("s_cmp_ge_u32 s%d, 4" % sW)
    a.e("s_cbranch_scc1 L_setB")
    late = collect(setup_oclr) + collect(setup_ones) + [("; later", None)] + collect(setup_attn)
    words = collect(lambda t: srd_words(t, [SWS, SKV, SDBG, SWD, SWO, SOUT]))
    late = [x for x in late if x not in words]
    oclr = [x for x in late if x[1] == "oclr"]
    if Opt.olate: late = [x for x in late if x[1] != "oclr"]
    else: oclr = []
    words += [("v_mov_b32 %s, 0" % v(r_), None) for r_ in (vGA, vWDV, vFLA, vHA, vOUTA)]
    st = collect(rdsetup) + words + late[:Opt.fillpre]
    cut = late.index(("; later", None)) if Opt.bidle else len(late)
    fills = {"A": late[Opt.fillpre:], "B": late[Opt.fillpre:max(cut, Opt.fillpre)]}
    idleB = late[max(cut, Opt.fillpre):]
    vms = {}
    wsrd(a); wvoff(a)
    a.e("s_waitcnt lgkmcnt(0)")
    a.stamp(2)
    if Opt.spos == 0: stouch(a)
    put(a, block(part(0, "A")))
    a.e("s_branch L_setA")
    vms["A"] = a.vm; a.vm = []
    a.lab("L_setB")
    srd_words(a, [SX]); xvoff(a, vTID)
    a.e("s_waitcnt lgkmcnt(0)")
    a.stamp(2)
    if Opt.spos == 0: stouch(a)
    put(a, block(part(0, "B")[1:]))
    srd_words(a, [SWQ]); qvoff(a)
    put(a, block(part(0, "B")[:1]))
    vms["B"] = a.vm
    for role in "BA":
        a.vm = vms[role]
        if role == "A": a.lab("L_setA")
        if Opt.spos == 1: stouch(a)
        table(a)
        setup_ids(a)
        if role == "A": srd_words(a, [SX, SWQ])
        else: wsrd(a)
        def touches():
            tm = sum(0xff << (8 * i) for i in range(4) if Opt.tch >> i & 1)
            setex = "s_bitcmp1_b32 s%d, 3\ns_cselect_b32 exec_lo, 0, 0x%x\ns_cselect_b32 exec_hi, 0x%x, 0" % (sG, tm, tm) if Opt.ghx \
                    else "s_mov_b32 exec_lo, 0x%x\ns_mov_b32 exec_hi, 0" % tm
            if Opt.tlb & 2 and role == "B":
                a.e("s_and_b32 s%d, s%d, 7" % (sA, sG))
                a.e("v_lshl_add_u32 v2, v0, 3, s%d" % sA)
                a.e("v_mul_u32_u24 v3, 3584, v2")
                a.e("s_and_b32 s%d, s%d, 1" % (sB, sW))
                a.e("s_lshl1_add_u32 s%d, s%d, s%d" % (sA, sM, sB))
                a.e("s_lshl_b32 s%d, s%d, 7" % (sA, sA))
                a.e(setex)
                a.e("s_cmp_ge_u32 s%d, 6" % sW)
                a.e("s_cbranch_scc1 L_tlbu")
                a.e("buffer_load_dword %s, v3, %s, s%d offen" % (v(vPOLL), srd(SWG), sA))
                a.e("s_branch L_tlbe")
                a.lab("L_tlbu")
                a.e("buffer_load_dword %s, v3, %s, s%d offen" % (v(vPOLL), srd(SWU), sA))
                a.lab("L_tlbe")
                a.e("s_mov_b64 exec, -1")
                a.vm.append("tlb")
            if Opt.tlb & 12 and role == "A":
                a.e("s_cmp_lg_u32 s%d, 0" % sW)
                a.e("s_cbranch_scc1 L_tlbx")
                a.e("s_and_b32 s%d, s%d, 7" % (sA, sG))
                a.e("v_lshl_add_u32 v2, v0, 3, s%d" % sA)
                a.e("v_lshlrev_b32 v3, 10, v2")
                a.e("s_lshl_b32 s%d, s%d, 6" % (sA, sHP))
                a.e(setex if Opt.tlb & 4 else "s_mov_b64 exec, 1")
                a.e("buffer_load_dword %s, v3, %s, s%d offen" % (v(vPOLL), srd(SWQ), sA))
                a.e("s_branch L_tlby")
                a.lab("L_tlbx")
                a.e("s_and_b32 s%d, s%d, 3" % (sA, sM))
                a.e("s_lshl2_add_u32 s%d, s%d, s%d" % (sA, sG, sA))
                a.e("s_lshl_b32 s%d, s%d, 15" % (sA, sA))
                a.e("v_lshl_add_u32 v3, v0, 10, s%d" % sA)
                a.e("s_lshr_b32 s%d, s%d, 3" % (sA, sG))
                a.e("s_lshl2_add_u32 s%d, s%d, s%d" % (sA, sA, sW) if Opt.ghx else "s_mov_b32 s%d, s%d" % (sA, sW))
                a.e("s_lshl_b32 s%d, s%d, 7" % (sA, sA))
                a.e("s_bitcmp1_b32 %d, s%d" % (Opt.tch if Opt.tlb & 8 else 0, sW))
                a.e("s_cselect_b32 exec_lo, -1, 1")
                a.e("s_mov_b32 exec_hi, 0")
                a.e("buffer_load_dword %s, v3, %s, s%d offen" % (v(vPOLL), srd(SX), sA))
                a.lab("L_tlby")
                a.e("s_mov_b64 exec, -1")
                a.vm.append("tlb")
        if Opt.tpos == 0: touches()
        if Opt.startbar: a.e("s_barrier")
        npre = min(Opt.npre, 8) if role == "A" else 5
        pn = block(part(1, role)[:npre])
        rest = st + (collect(qvoff) + collect(lambda t: xvoff(t, vTID)) if role == "A" else collect(wvoff))
        gap = len(rest) // (npre + Opt.pregap) + 1
        if Opt.tpos == 2:
            put(a, pn); touches(); npre = 0
        if Opt.tpos == 3 and role == "B":
            put(a, pn); touches(); npre = 0
        for i in range(npre):
            put(a, pn[:1]); pn = pn[1:]
            put(a, rest[:gap]); rest = rest[gap:]
        put(a, rest)
        if Opt.tpos == 1 or (Opt.tpos == 3 and role == "A"): touches()
        a.e("s_mov_b64 vcc, %d" % (-1 if role == "A" else 0))
        if role == "A":
            a.waitvm("c0", lgkm=True)
        else:
            a.e("s_setprio 1")
            a.waitvm("c0", lgkm=True)
            a.e("s_branch L_k0")
        vms[role] = a.vm
    stream = part(1, "A")[min(Opt.npre, 8):] + [(c, k_, j) for c in range(2, 8) for k_, j in ORDER]
    qa = [int(x, 16) for x in Opt.qa]; qb = [int(x, 16) for x in Opt.qb]
    def take(n, cmax):
        m = 0
        while m < n and m < len(stream) and stream[m][0] <= cmax: m += 1
        r_ = stream[:m]; del stream[:m]
        return block(r_)
    a.lab("L_k0")
    a.vm = vms["A"]
    ool = Asm()
    def dmablock(name, role, items, wait=None):
        a.e("s_cbranch_vcc%s L_%s" % ("nz" if role == "A" else "z", name))
        if wait: a.waitvm(wait, lgkm=True)
        a.lab("L_%s_r" % name)
        ool.lab("L_%s" % name)
        ool.vm = a.vm if role == "A" else vms["B"]
        for it_ in items:
            put(ool, [it_])
            fp = Opt.fillper if role == "A" or not Opt.bidle else 2
            put(ool, fills[role][:fp]); fills[role] = fills[role][fp:]
        if name in ("d7", "e7"): put(ool, fills[role]); fills[role] = []
        if wait: ool.waitvm(wait, lgkm=True)
        if role == "B": vms["B"] = ool.vm
        ool.e("s_branch L_%s_r" % name)
    a.ool = ool.l

    def fr(k):
        b = vF1 + 36 * (k % 2)
        return dict(x=b, w=b + 16, q=b + 32)
    def reads(k):
        c, s = divmod(k, 2); f = fr(k); sl = c % 3
        wo = sl * 16384 + s * 8192
        W = lambda i: [rdtr(f['w'] + 4 * i, vWA + i, wo), rdtr(f['w'] + 4 * i + 2, vWA + i, wo + 1024)]
        X = [rd128(f['x'] + 4 * b, vXA + 2 * s + (b >> 1), sl * 16384 + (b & 1) * 2048) for b in range(4)]
        return W(0) + X + W(2) + W(1) + W(3) + [rdtr(f['q'], vQA, sl * 4096 + s * 2048), rdtr(f['q'] + 2, vQA, sl * 4096 + s * 2048 + 256)]
    a.e("s_barrier")
    a.stamp(3)
    if Opt.kdiag or Opt.probe >= 18:
        kstamp(a, 2)
        a.e("s_waitcnt lgkmcnt(0)")
    for r in reads(0): a.e(r)
    if qa[0]: dmablock("d2", "A", take(qa[0], 2))
    for k in range(16):
        c, s = divmod(k, 2); f = fr(k)
        z = lambda x: None if k == 0 else x
        mf = []
        for n_, i in enumerate((0, 2, 1, 3)):
            for b in (range(4) if n_ % 2 == 0 else range(3, -1, -1)):
                d = vACC + 16 * b + 4 * i
                mf.append(mfma16(d, f['w'] + 4 * i, f['x'] + 4 * b, z(d)))
        for b in range(2): mf.append(mfma16(vAQ + 4 * b, f['q'], f['x'] + 4 * b, z(vAQ + 4 * b)))
        rds = reads(k + 1) if k < 15 else []
        if s == 0:
            a.e("s_waitcnt lgkmcnt(6)")
            for i, m in enumerate(mf):
                if i == 8: a.e("s_waitcnt lgkmcnt(8)")
                a.e(m)
                if i < len(rds): a.e(rds[i])
            continue
        a.e("s_waitcnt lgkmcnt(8)")
        for m in mf[:4]: a.e(m)
        if c <= 5:
            dmablock("e%d" % (c + 2), "B", take(qb[c], c + 2), "c%d" % (c + 1))
            assert not any(x[0] <= c + 1 for x in stream)
        if c == 7:
            a.e("s_waitcnt lgkmcnt(0)")
        elif c == 6:
            a.e("s_waitcnt lgkmcnt(0)")
            a.e("s_cbranch_vccz L_st7")
            a.e("s_setprio 1")
            a.e("s_waitcnt vmcnt(0)")
            a.e("s_barrier")
            a.lab("L_st7")
        else:
            a.e("s_barrier")
        if c < 7 and ((Opt.kdiag == 1 and Opt.diag) or Opt.probe == 21 + c):
            kstamp(a, 3 + c)
            a.e("s_waitcnt lgkmcnt(0)")
        if c + 3 < 8:
            items = take(qa[c + 1], c + 3)
            dmablock("d%d" % (c + 3), "A", items)
        for i, m in enumerate(mf[4:]):
            a.e(m)
            if i < len(rds): a.e(rds[i])
        if k == 11: assert not stream and not fills["A"] and not fills["B"]
        if k == 11:
            a.e("s_cbranch_vccnz L_st6")
            a.e("s_setprio 0")
            nm = next((i for i, x in enumerate(idleB) if "0xdddd" in x[0]), 0)
            a.e("s_cmp_lg_u32 s%d, 4" % sW)
            a.e("s_cbranch_scc1 L_nopoll")
            a.e("buffer_load_dword %s, off, %s, 0 sc1" % (v(vPOLL), srd(SDBG)))
            a.lab("L_nopoll")
            put(a, idleB[:nm]); idleB = idleB[nm:]
            a.wait0()
            spin_counter(a, "kvf", True, 4)
            a.e("s_barrier")
            put(a, kv_first_loads(a, True) + oclr + idleB)
            a.lab("L_st6")
    a.kvA = (kv_first_loads(a) + oclr)[2:]
    a.stamp(4)

def phase1_L(a):
    a.lab("L_light")
    a.vm = []
    a.e("s_waitcnt lgkmcnt(0)")
    ptr_loads(a, ((SWKV, 16), (SWV, 24), (SGATE, 72), (SWO, 32)))
    srd_words(a, [SWKV, SWV, SGATE, SX])
    xvoff(a, 0)
    a.e("v_and_b32 v2, 63, v0")
    a.e("v_lshlrev_b32 %s, 4, v2" % v(vL16))
    a.e("s_sub_u32 s%d, s%d, 14" % (sCNT, sM))
    a.e("s_lshl_b32 s%d, s%d, 16" % (sOLD, sCNT))
    a.e("s_lshl_b32 s%d, s%d, 13" % (sHST, sCNT))
    a.e("s_add_u32 s%d, s%d, s%d" % (sWH, sHST, sWK))
    a.e("s_xor_b32 s%d, s%d, 0x2000" % (sHST, sHST))
    a.e("s_add_u32 s%d, s%d, 0x2000" % (sA, sWK))
    a.e("s_waitcnt lgkmcnt(0)")
    a.stamp(2)
    def xdma(c, base, so):
        a.vmop("s_add_u32 m0, s%d, 0x%x\ns_nop 0\nbuffer_load_dwordx4 %s, %s, s%d offen offset:%d lds"
               % (base, LL_X + c * 16384 - c * 128, v(vDX), srd(SX), so, c * 128), "c%d" % c)
    def wdma(u):
        for t, rs in enumerate((SWKV, SWV)):
            a.vmop("s_add_u32 m0, s%d, 0x%x\ns_nop 0\nbuffer_load_dwordx4 %s, %s, s%d offen lds"
                   % (sWK, LL_W + t * 16384 + u * 8192, v(vL16), srd(rs), sA if u else sWK), "w")
    wdma(0)
    a.vmop("s_mov_b32 m0, s%d\ns_nop 0\nbuffer_load_dwordx4 %s, %s, 0 offen lds" % (sHST, v(vL16), srd(SGATE)), "w")
    for c in range(8):
        if c == 4: wdma(1)
        xdma(c, sWH, sOLD)
        if c in (1, 3, 5): a.e("s_barrier")
    setup_ids(a)
    srd_words(a, [SWQ])
    setup_rd(a)
    a.e("v_lshrrev_b32 v3, 5, v0")
    a.e("v_bfrev_b32 v5, v4")
    a.e("v_lshrrev_b32 v5, 30, v5")
    a.e("s_cmp_ge_u32 s%d, 2" % sLO)
    a.e("s_cselect_b64 vcc, -1, 0")
    a.e("v_cndmask_b32 v4, v5, v4, vcc")
    a.e("v_lshl_add_u32 %s, v3, 3, v2" % v(vWA))
    a.e("v_lshlrev_b32 %s, 5, %s" % (v(vWA), v(vWA)))
    a.e("v_lshl_add_u32 %s, v4, 3, %s" % (v(vWA), v(vWA)))
    a.e("s_lshr_b32 s%d, s%d, 1" % (sA, sLO))
    a.e("s_lshl_b32 s%d, s%d, 14" % (sA, sA))
    a.e("s_add_u32 s%d, s%d, 0x%x" % (sA, sA, LL_W))
    a.e("v_add_u32 %s, s%d, %s" % (v(vWA), sA, v(vWA)))
    a.e("v_lshl_add_u32 %s, v3, 4, s%d" % (v(vWA + 1), sHST))
    a.e("s_and_b32 s%d, s%d, 1" % (sA, sLO))
    a.e("s_lshl_b32 s%d, s%d, 1" % (sB, sCNT))
    a.e("s_add_u32 s%d, s%d, s%d" % (sCNT, sA, sB))
    a.e("s_lshl_b32 s%d, s%d, 12" % (sA, sCNT))
    a.e("v_and_b32 v2, 31, v0")
    a.e("v_lshrrev_b32 v4, 1, v0")
    a.e("v_lshlrev_b32 v5, 1, v0")
    a.e("v_bfi_b32 v4, 4, v4, v5")
    a.e("v_bfi_b32 v4, 12, v4, v2")
    a.e("v_cndmask_b32 v2, v2, v4, vcc")
    a.e("v_bfe_u32 v4, v2, 1, 3")
    a.e("v_xor_b32 v4, v4, v3")
    a.e("v_lshlrev_b32 v4, 4, v4")
    a.e("v_lshl_add_u32 v4, v2, 7, v4")
    a.e("v_add_u32 %s, s%d, v4" % (v(vLX), sA))
    for s in range(1, 4): a.e("v_xor_b32 %s, %d, %s" % (v(vLX + s), 32 * s, v(vLX)))
    for s in range(4): a.e("v_add_u32 %s, 0x10000, %s" % (v(vLX + 4 + s), v(vLX + s)))
    a.e("s_waitcnt lgkmcnt(0)")
    setup_oclr(a)
    vm0 = list(a.vm)
    a.e("s_cmp_lg_u32 s%d, 0" % sHI)
    a.e("s_cbranch_scc1 L_lB")
    a.e("s_not_b64 %s, %s" % (sp(sTMPP), sp(sVM)))
    a.e("s_cmp_ge_u32 s%d, 2" % sLO)
    a.e("s_cbranch_scc1 L_lV")
    def chain(kind):
        a.vm = list(vm0)
        def fr(k):
            b = vFR + 8 * (k % 4)
            return b, b + 4
        def reads(k):
            c, s = divmod(k, 4); x, w = fr(k)
            r = [rd128(x, vLX + s + 4 * (c >> 2), (c & 3) * 16384), rdtr(w, vWA, k * 512), rdtr(w + 2, vWA, k * 512 + 128)]
            if kind == "K":
                r += ["s_mov_b64 exec, %s" % sp(sTMPP), rd128(w, vWA + 1, k * 32), "s_mov_b64 exec, -1"]
            return r
        for q in range(4):
            a.waitvm("c%d" % (2 * q + 1))
            a.e("s_barrier")
            nr = 4 if kind == "K" else 3
            for k in range(8 * q, 8 * q + 2):
                for r in reads(k): a.e(r)
            for k in range(8 * q, 8 * q + 8):
                if k + 2 < 8 * q + 8:
                    for r in reads(k + 2): a.e(r)
                left = min(2, 8 * q + 7 - k)
                a.e("s_waitcnt lgkmcnt(%d)" % (left * nr))
                x, w = fr(k)
                cc = None if k == 0 else vACC
                a.e(mfma(vACC, w, x, cc) if kind == "K" else mfma(vACC, x, w, cc))
        a.e("s_lshl_b32 s%d, s%d, 2" % (sA, sG))
        a.e("s_add_u32 s%d, s%d, s%d" % (sA, sA, sCNT))
        a.e("s_nop 12")
        if kind == "K":
            a.e("s_mov_b32 s%d, 0x%x" % (sC, f2u(0.25 * math.log2(math.e))))
            for i in range(8): a.e("v_mul_f32 %s, s%d, %s" % (v(vACC + i), sC, v(vACC + i)))
            a.e("v_mul_f32 %s, 0x%x, %s" % (v(vACC + 8), f2u(-math.log2(math.e)), v(vACC + 8)))
            a.e("v_exp_f32 %s, %s" % (v(vACC + 8), v(vACC + 8)))
            for i in range(4): a.e("v_cvt_pk_bf16_f32 %s, %s, %s" % (v(vFR + i), v(vACC + 2 * i), v(vACC + 2 * i + 1)))
            a.e("v_add_f32 %s, 1.0, %s" % (v(vACC + 8), v(vACC + 8)))
            a.e("v_rcp_f32 %s, %s" % (v(vACC + 8), v(vACC + 8)))
            a.e("s_add_u32 s%d, s%d, 63" % (sB, sA))
            a.e("s_and_b32 s%d, s%d, 63" % (sB, sB))
            a.e("s_lshl_b32 s%d, s%d, 11" % (sB, sB))
            a.e("buffer_store_dwordx4 %s, %s, %s, s%d offen sc1" % (v(vFR, 4), v(vL16), srd(SKV), sB))
            a.e("s_lshl_b32 s%d, s%d, 7" % (sB, sA))
            a.e("s_add_u32 s%d, s%d, 0x%x" % (sB, sB, WS_G))
            a.e("s_mov_b32 exec_hi, 0")
            a.e("buffer_store_dword %s, %s, %s, s%d offen sc1" % (v(vACC + 8), v(vGA), srd(SWS), sB))
            a.e("s_mov_b64 exec, -1")
        else:
            for i in range(8): a.e("v_cvt_pk_bf16_f32 %s, %s, %s" % (v(vFR + i), v(vACC + 2 * i), v(vACC + 2 * i + 1)))
            a.e("v_bfe_u32 v2, v0, 4, 1")
            a.e("v_add_u32 v2, s%d, v2" % sA)
            a.e("v_and_b32 v2, 63, v2")
            a.e("v_lshl_add_u32 v2, v2, 11, %s" % v(vL16))
            for i in range(4): a.e("v_cndmask_b32 %s, %s, %s, %s" % (v(vFR + i), v(vFR + 4 + i), v(vFR + i), sp(sVM)))
            a.e("buffer_store_dwordx4 %s, v2, %s, 0 offen offset:1024 sc1" % (v(vFR, 4), srd(SKV)))
        a.e("s_branch L_lJ")
    chain("K")
    a.lab("L_lV")
    chain("V")
    a.lab("L_lB")
    a.vm = list(vm0)
    a.e("s_cmp_lg_u32 s%d, 14" % sM)
    a.e("s_cbranch_scc1 L_nozf")
    a.e("s_cmp_lg_u32 s%d, 4" % sW)
    a.e("s_cbranch_scc1 L_nozf")
    a.e("v_lshlrev_b32 v2, 7, v0")
    a.e("s_lshl_b32 s%d, s%d, 11" % (sA, sG))
    a.e("s_add_u32 s%d, s%d, 0x%x" % (sA, sA, WS_HFLAG))
    a.e("s_mov_b64 exec, 0xffff")
    a.e("buffer_store_dword %s, v2, %s, s%d offen sc1" % (v(vZERO), srd(SWS), sA))
    a.e("s_mov_b64 exec, -1")
    a.lab("L_nozf")
    for q in range(4):
        a.waitvm("c%d" % (2 * q + 1))
        a.e("s_barrier")
    a.lab("L_lJ")
    a.e("v_lshrrev_b32 v3, 2, v0")
    a.e("v_lshlrev_b32 v3, 10, v3")
    a.e("v_lshrrev_b32 v4, 5, v0")
    a.e("v_lshlrev_b32 v4, 1, v4")
    a.e("v_xor_b32 v4, v4, v0")
    a.e("v_and_b32 v4, 3, v4")
    a.e("v_lshl_add_u32 v3, v4, 4, v3")
    a.e("s_lshl_b32 s%d, s%d, 14" % (sA, sW))
    a.e("s_lshl_b32 s%d, s%d, 6" % (sB, sHP))
    a.e("s_add_u32 s%d, s%d, s%d" % (sA, sA, sB))
    a.e("v_add_u32 %s, s%d, v3" % (v(vDQ), sA))
    a.e("s_xor_b32 s%d, s%d, 0x2000" % (sWH, sWH))
    a.e("s_xor_b32 s%d, s%d, 0x10000" % (sOLD, sOLD))
    a.wait0(lgkm=True)
    a.e("s_barrier")
    a.e("s_cmp_lg_u32 s%d, 0" % sW)
    a.e("s_cbranch_scc1 L_noat")
    a.e("s_mov_b64 exec, 1")
    a.e("buffer_atomic_add %s, off, %s, 0 sc1" % (v(vONE), srd(SDBG)))
    a.e("s_mov_b64 exec, -1")
    a.lab("L_noat")
    a.stamp(3)
    for c in range(8): xdma(c, sWH, sOLD)
    for p in range(4):
        a.e("s_add_u32 m0, s%d, 0x%x" % (sWK, LL_WQ + p * 8192))
        a.e("s_mov_b32 s%d, 0x%x" % (sA, p * 128 * 1024))
        a.e("buffer_load_dwordx4 %s, %s, s%d offen lds" % (v(vDQ), srd(SWQ), sA))
    setup_ones(a)
    setup_attn(a)
    if Opt.touch & 2:
        a.e("s_lshl_b32 s%d, s%d, 1" % (sA, sG))
        a.e("s_add_u32 s%d, s%d, s%d" % (sA, sA, sM))
        a.e("s_sub_u32 s%d, s%d, 14" % (sA, sA))
        a.e("s_lshl_b32 s%d, s%d, 3" % (sA, sA))
        a.e("s_add_u32 s%d, s%d, s%d" % (sA, sA, sW))
        a.e("v_lshlrev_b32 v2, 15, v0")
        a.e("s_lshl_b32 s%d, s%d, 7" % (sA, sA))
        a.e("buffer_load_dword %s, v2, %s, s%d offen" % (v(vPOLL), srd(SWO), sA))
        a.e("buffer_load_dword %s, v2, %s, s%d offen" % (v(vPOLL), srd(SWD), sA))
    a.e("s_lshl_b32 s%d, s%d, 12" % (sA, sLO))
    a.e("v_add_u32 %s, s%d, %s" % (v(vXA), sA, v(vXA)))
    a.e("v_xor_b32 %s, 64, %s" % (v(vXA + 1), v(vXA)))
    a.e("v_add_u32 %s, 0x10000, %s" % (v(vXA + 2), v(vXA)))
    a.e("v_add_u32 %s, 0x10000, %s" % (v(vXA + 3), v(vXA + 1)))
    a.e("v_add_u32 %s, 0x%x, %s" % (v(vQA), LL_WQ, v(vQA)))
    a.e("s_waitcnt vmcnt(%d)" % (2 if Opt.touch & 2 else 0))
    a.e("s_barrier")
    def fr(k): return vFR + 12 * (k % 3)
    def reads(k):
        c, s = divmod(k, 2); f = fr(k)
        return [rd128(f + 4 * b, vXA + s + 2 * (c >> 2), (c & 3) * 16384 + b * 2048) for b in range(2)] + \
               [rdtr(f + 8, vQA, k * 2048), rdtr(f + 10, vQA, k * 2048 + 256)]
    for k in range(2):
        for r in reads(k): a.e(r)
    for k in range(16):
        a.e("s_waitcnt lgkmcnt(%d)" % (4 * min(1, 15 - k)))
        for b in range(2): a.e(mfma16(vAQ + 4 * b, fr(k) + 8, fr(k) + 4 * b, None if k == 0 else vAQ + 4 * b))
        if k + 2 < 16:
            for r in reads(k + 2): a.e(r)
    spin_counter(a, "kvl", False)
    a.e("s_barrier")
    for s, t in kv_first_loads(a): a.e(s)
    a.wait0()
    a.stamp(4)
    a.e("s_branch L_join")

def gelu_tile(a, ti, scalar=False):
    acc = vACC + 16 * ti
    t = vFR
    o = vFR + 8 + 4 * ti
    pk = lambda r: v(r, 2)
    if scalar:
        for i in range(8): a.e("v_mul_f32 %s, %s, %s" % (v(t + i), v(acc + i), v(acc + i)))
        for i in range(8): a.e("v_fma_f32 %s, %s, %s, %s" % (v(t + i), v(t + i), v(vC0 + 1), v(vC0)))
        for i in range(8): a.e("v_mul_f32 %s, %s, %s" % (v(t + i), v(t + i), v(acc + i)))
        for i in range(8): a.e("v_exp_f32 %s, %s" % (v(t + i), v(t + i)))
        for i in range(8): a.e("v_add_f32 %s, 1.0, %s" % (v(t + i), v(t + i)))
        for i in range(8): a.e("v_rcp_f32 %s, %s" % (v(t + i), v(t + i)))
        for i in range(8): a.e("v_mul_f32 %s, %s, %s" % (v(acc + i), v(acc + i), v(acc + 8 + i)))
        for i in range(8): a.e("v_mul_f32 %s, %s, %s" % (v(acc + i), v(acc + i), v(t + i)))
    R4, R8 = (range(0), range(0)) if scalar else (range(4), range(8))
    for i in R4: a.e("v_pk_mul_f32 %s, %s, %s" % (pk(t + 2 * i), pk(acc + 2 * i), pk(acc + 2 * i)))
    for i in R4: a.e("v_pk_fma_f32 %s, %s, %s, %s op_sel:[0,1,0] op_sel_hi:[1,1,0]" % (pk(t + 2 * i), pk(t + 2 * i), pk(vC0), pk(vC0)))
    for i in R4: a.e("v_pk_mul_f32 %s, %s, %s" % (pk(t + 2 * i), pk(t + 2 * i), pk(acc + 2 * i)))
    for i in R8: a.e("v_exp_f32 %s, %s" % (v(t + i), v(t + i)))
    for i in R4: a.e("v_pk_add_f32 %s, %s, 1.0 op_sel_hi:[1,0]" % (pk(t + 2 * i), pk(t + 2 * i)))
    for i in R8: a.e("v_rcp_f32 %s, %s" % (v(t + i), v(t + i)))
    for i in R4: a.e("v_pk_mul_f32 %s, %s, %s" % (pk(acc + 2 * i), pk(acc + 2 * i), pk(acc + 8 + 2 * i)))
    for i in R4: a.e("v_pk_mul_f32 %s, %s, %s" % (pk(acc + 2 * i), pk(acc + 2 * i), pk(t + 2 * i)))
    for i in range(4): a.e("v_cvt_pk_bf16_f32 %s, %s, %s" % (v(o + i), v(acc + 2 * i), v(acc + 2 * i + 1)))
    a.vmop("buffer_store_dwordx4 %s, %s, %s, s%d offen offset:%d sc1" % (v(o, 4), v(vHA), srd(SWS), sHST2 if ti >> 1 else sHST, (ti & 1) * 256), "hst")

def Yseg(hset, toggle=False, first=False, extra=False, last=False):
    out = []
    for t in range(2):
        pos = [int(x, 17) for x in (Opt.ypos0 if hset is None else Opt.ypos2 if extra else Opt.ypos1)]
        if last and t == 1: pos = [pos[0], 0, 11, pos[1]]
        S, Sn = vS + 16 * t, vS + 16 * (1 - t)
        K, V0, V1 = vKF + 4 * t, vV + 8 * t, vV + 8 * t + 4
        for e in range(1, 17):
            out.append("v_exp_f32 %s, %s" % (v(S + e - 1), v(S + e - 1)))
            if e == pos[0] and not (first and t == 0): out.append(smfmac(vO, V1, Sn + 8))
            if e == pos[1]: out.append(mfma(Sn, K, vQ, None))
            if e == pos[2]: out.append(smfmac(vO, V0, S))
            if hset is not None:
                if e == 13 and t == 1 and toggle:
                    out.append("v_xor_b32 %s, 0x4000, %s" % (v(vKVB), v(vKVB)))
                if e == pos[3]: out.append(mfma(vD + 16 * t, vWF + 4 * t, vH + 4 * hset, vD + 16 * t))
                if extra and e == pos[4]: out.append(mfma(vD + 16 * t, vFR + 16 + 4 * t, vH + 16 + 4 * hset, vD + 16 * t))
    return out

def kv_reads(off, vKVA=vKVA):
    r = [rd128(vKF, vKVA, off), rd128(vKF + 4, vKVA, off + 2048), "s_mov_b64 exec, %s" % sp(sVM)]
    for t in range(2):
        r += [rd128(vV + 8 * t, vKVA, off + 2048 * t + 1024), rd128(vV + 8 * t + 4, vKVA, off + 2048 * t + 1280)]
    r.append("s_mov_b64 exec, -1")
    return r
def wd_reads(dst, addr, off):
    r = []
    for c in range(2):
        r += [rdtr(dst + 4 * c, addr, off + 512 * c), rdtr(dst + 4 * c + 2, addr, off + 512 * c + 1024)]
    return r

def hord(): return [0, 2, 4, 6, 1, 3, 5, 7] if Opt.hord else list(range(8))
def wdrow(sg): return (32 * (sg >> 1) + 8 * (sg & 1)) * 1024

def attention(a, role, pre0=None):
    A = role == "A"
    def kvdma(u):
        a.vmop("s_add_u32 m0, s%d, 0x%x\ns_add_u32 s%d, s%d, 0x%x\nbuffer_load_dwordx4 %s, %s, s%d offen sc1 lds"
               % (sWK, L_KV + (u % 4) * 8192, sA, sWK, u * 8192, v(vL16), srd(SKV), sA), "kv%d" % u)
    def wddma(sg):
        a.vmop("s_add_u32 m0, s%d, 0x%x\ns_add_u32 s%d, s%d, 0x%x\nbuffer_load_dwordx4 %s, %s, s%d offen lds"
               % (sWK, L_WD + (sg % 4 if sg < 23 or sg == 27 else sg - 19) * 8192, sA, sWDOFF, wdrow(sg), v(vWDV), srd(SWD), sA), "wd%d" % sg)
    def wodma(j):
        a.vmop("s_add_u32 m0, s%d, 0x%x\ns_add_u32 s%d, s%d, 0x%x\nbuffer_load_dwordx4 %s, %s, s%d offen lds"
               % (sWK, L_WO + (7 - j) * 8192, sA, sB, hord()[j] * 16384, v(vWDV), srd(SWO), sA), "wo")
    def hload(sg, dst):
        a.vmop("s_add_u32 s%d, s%d, 0x%x\nbuffer_load_dwordx4 %s, %s, %s, s%d offen sc1"
               % (sA, sHOFF, sg * 1024, v(dst, 4), v(vL16), srd(SWS), sA), "h%d" % sg)
    for n in range(12):
        if not A and n == 0: a.e("s_barrier")
        if n % 2 == 1: astamp(a, 2 + n // 2)
        if n == Opt.pcyc: a.e("s_memtime %s" % sp(sSTAMP + 6))
        tags = []
        if A and n % 2 == 1: tags.append("kv%d" % ((n + 1) // 2))
        if not A and n % 2 == 0: tags.append("kv%d" % ((n + 2) // 2))
        if n == (3 if A else 2): tags.append("hst")
        if n == 6: tags.append("wo")
        if n == 9: tags.append("wd27")
        if n == 11: tags.append("wd0")
        if n == 9 and A:
            a.e("s_cmp_lg_u32 s%d, 0" % sW)
            a.e("s_cbranch_scc1 L_hf_done")
            a.e("s_mov_b32 s%d, 0x4000" % sB)
            a.e("s_waitcnt vmcnt(0)")
            a.lab("L_hf_chk")
            a.e("v_cmp_ne_u32 vcc, 1, %s" % v(vPOLL))
            a.e("s_cbranch_vccz L_hf_done")
            a.e("s_sleep 2")
            a.e("buffer_load_dword %s, %s, %s, 0 offen sc1" % (v(vPOLL), v(vFLA), srd(SWS)))
            a.e("s_sub_u32 s%d, s%d, 1" % (sB, sB))
            a.e("s_cmp_lg_u32 s%d, 0" % sB)
            a.e("s_waitcnt vmcnt(0)")
            a.e("s_cbranch_scc1 L_hf_chk")
            a.lab("L_hf_done")
        a.waitvm(tags)
        if n == 5 and Opt.diag == 3 and A:
            a.e("v_mov_b32 v2, s%d" % sSTAMP)
            a.e("s_lshl_b32 s%d, s2, 3" % sA)
            a.e("s_add_u32 s%d, s%d, s%d" % (sA, sA, sW))
            a.e("s_lshl_b32 s%d, s%d, 7" % (sA, sA))
            a.e("s_add_u32 s%d, s%d, 0x%x" % (sA, sA, WS_STAMP))
            a.e("s_mov_b64 exec, 1")
            a.vmop("buffer_store_dword v2, off, %s, s%d offset:12 sc1" % (srd(SWS), sA), "st")
            a.e("s_mov_b64 exec, -1")
        if n == 3 and not A:
            a.e("s_cmp_ge_u32 s%d, 14" % sM)
            a.e("s_cbranch_scc1 L_nohf")
            a.e("s_cmp_lg_u32 s%d, 4" % sW)
            a.e("s_cbranch_scc1 L_nohf")
            a.e("s_lshl_b32 s%d, s%d, 4" % (sA, sG))
            a.e("s_add_u32 s%d, s%d, s%d" % (sA, sA, sM))
            a.e("s_lshl_b32 s%d, s%d, 7" % (sA, sA))
            a.e("s_add_u32 s%d, s%d, 0x%x" % (sA, sA, WS_HFLAG))
            a.e("s_mov_b64 exec, 1")
            a.e("buffer_store_dword %s, off, %s, s%d sc1" % (v(vONE), srd(SWS), sA))
            a.e("s_mov_b64 exec, -1")
            a.lab("L_nohf")
        for r in kv_reads((n % 8) * 4096): a.e(r)
        if n == 8 and A:
            a.e("s_cmp_lg_u32 s%d, 0" % sW)
            a.e("s_cbranch_scc1 L_hf_nol")
            a.e("buffer_load_dword %s, %s, %s, 0 offen sc1" % (v(vPOLL), v(vFLA), srd(SWS)))
            a.lab("L_hf_nol")
        if n == 0:
            kvdma(2); kvdma(3)
            a.e("s_mov_b32 s%d, s%d" % (sC, sKQ))
            a.e("s_mul_i32 s%d, s%d, %d" % (sWDOFF, sC, 448 * 1024))
            a.e("s_and_b32 s%d, s%d, 1" % (sB, sW))
            a.e("s_lshl_b32 s%d, s%d, 14" % (sA, sB))
            a.e("s_add_u32 s%d, s%d, s%d" % (sWDOFF, sWDOFF, sA))
            a.e("s_lshl_b32 s%d, s%d, 1" % (sA, sT))
            a.e("s_add_u32 s%d, s%d, s%d" % (sA, sA, sB))
            a.e("s_mul_i32 s%d, s%d, 112" % (sA, sA))
            a.e("s_mul_i32 s%d, s%d, 28" % (sB, sC))
            a.e("s_add_u32 s%d, s%d, s%d" % (sA, sA, sB))
            a.e("s_lshl_b32 s%d, s%d, 10" % (sA, sA))
            a.e("s_add_u32 s%d, s%d, 0x%x" % (sHOFF, sA, WS_HF))
        if (A and n % 2 == 1 and n >= 3): kvdma((n + 5) // 2)
        if (not A and n % 2 == 0 and n >= 2): kvdma((n + 6) // 2)
        if 1 <= n <= 4:
            a.e("s_lshl_b32 s%d, s%d, 17" % (sB, sKQ))
            a.e("s_and_b32 s%d, s%d, 1" % (sC, sW))
            a.e("s_lshl_b32 s%d, s%d, 13" % (sC, sC))
            a.e("s_add_u32 s%d, s%d, s%d" % (sB, sB, sC))
            for j in (2 * n - 2, 2 * n - 1): wodma(j)
        for sg in {5: (27, 23, 24), 6: (25, 26, 0), 7: (1, 2)}.get(n, ()): wddma(sg)
        if n == 10:
            for r in wd_reads(vWX, vWDA, 3 * 8192): a.e(r)
        for j in ({7: (0,), 8: (1, 2), 9: (3, 4)} if A else {7: (0, 1), 8: (2, 3), 9: (4,)}).get(n, ()):
            for r in wd_reads(WOF[j], vWOA, (7 - j) * 8192): a.e(r)
        hs = {10: (0, 1, 23, 24), 11: (2, 25, 26, 27)} if A else {9: (0, 1, 23), 10: (2, 24), 11: (25, 26, 27)}
        for sg in hs.get(n, ()): hload(sg, vH + 4 * sg if sg < 4 else vHX if sg == 27 else vH + 4 * (sg - 19))
        if n == 11:
            a.e("s_add_u32 s%d, s%d, 0x%x" % (sHOFF, sHOFF, 3 * 1024))
            a.e("s_add_u32 s%d, s%d, 0x%x" % (sWDOFF, sWDOFF, wdrow(3)))
            a.e("s_add_u32 s%d, s%d, 0x%x" % (sKVOFF, sWK, 9 * 8192))
            a.e("s_mov_b32 s%d, 4" % sCNT)
            a.e("s_add_u32 s%d, s%d, 0x1000" % (sOLD2, sOLD))
            a.e("s_mov_b32 s%d, 0x%x" % (sLO_, f2u(2.0 ** -16)))
            a.e("s_mov_b32 s%d, 0x%x" % (sRNG, f2u(2.0 ** 100) - f2u(2.0 ** -16)))
        if n == 0 and pre0:
            pre0()
            a.stamp(5)
        a.e("s_waitcnt lgkmcnt(0)")
        if n == 0:
            if A: a.e("s_barrier")
            for x in Yseg(None, first=True): a.e(x)
            if not A: a.e("s_barrier")
            continue
        a.e("s_call_b64 %s, L_Y%s" % (sp(sRET), role))
        if n == 1:
            a.e("s_branch L_X1%s" % role)
            a.lab("L_Y%s" % role)
            if A: a.e("s_barrier")
            for x in Yseg(None): a.e(x)
            if not A: a.e("s_barrier")
            a.e("s_setpc_b64 %s" % sp(sRET))
            a.lab("L_X1%s" % role)
    vm = list(a.vm); need = [63] * 8
    for n in range(12, 32):
        p = n % 4; q = p + (4 if n >= 28 else 0)
        tags = ["wd%d" % (n - 11), "h%d" % (n - 12)]
        if (p % 2 == 1) == A: tags.append("kv%d" % ((n + (1 if A else 2)) // 2))
        idx = [i for i, t in enumerate(vm) if t in tags]
        if idx: need[q] = min(need[q], len(vm) - 1 - max(idx))
        vm.append("wd%d" % (n - 9))
        vm.append("h%d" % (n - 9))
        if (p % 2 == 1) == A and n < 28: vm.append("kv%d" % ((n + (5 if A else 6)) // 2))
    a.lab("L_loop%s" % role)
    for q in range(8):
        p = q % 4; fin = q >= 4
        kv = (p % 2 == 1) == A and not fin
        if q == 0 and Opt.diag and Opt.kdiag == 2:
            a.e("s_cmp_lg_u32 s%d, 3" % sCNT)
            a.e("s_cbranch_scc1 L_nst%s" % role)
            astamp(a, 8)
            a.lab("L_nst%s" % role)
        a.e("s_waitcnt vmcnt(%d)" % need[q])
        for i, r in enumerate(kv_reads(p * 4096, vKVB)):
            if not (q == 7 and i == 1): a.e(r)
        if q <= 8 - Opt.nd:
            for r in wd_reads(vWF, vWDA, p * 8192): a.e(r)
        if fin and p < Opt.nx:
            for r in wd_reads(vFR + 16, vWDA, (4 + p) * 8192): a.e(r)
        if q == 7:
            for r in wd_reads(vFR, vWDA, (4 + Opt.nx) * 8192): a.e(r)
        a.e("s_add_u32 m0, s%d, 0x%x" % (sWK, L_WD + ((p + 3) % 4) * 8192))
        a.e("s_and_b32 s%d, s%d, 0x7fff" % (sA, sKVOFF))
        a.e("buffer_load_dwordx4 %s, %s, s%d offen lds" % (v(vWDV), srd(SWD), sWDOFF))
        a.e("s_add_u32 s%d, s%d, 0x%x" % (sWDOFF, sWDOFF, 0x2000 if p & 1 else 0x6000))
        a.e("buffer_load_dwordx4 %s, %s, %s, s%d offen sc1" % (v(vKF + 4 if q == 7 and Opt.nd == 2 else vH + 4 * ((p + 3) % 4), 4), v(vL16), srd(SWS), sHOFF))
        if kv: a.e("s_add_u32 m0, s%d, 0x%x" % (sA, L_KV))
        a.e("s_add_u32 s%d, s%d, 0x400" % (sHOFF, sHOFF))
        if kv:
            a.e("buffer_load_dwordx4 %s, %s, s%d offen sc1 lds" % (v(vL16), srd(SKV), sKVOFF))
            a.e("s_add_u32 s%d, s%d, 0x2000" % (sKVOFF, sKVOFF))
        if q == 3:
            a.e("s_sub_u32 s%d, s%d, 1" % (sCNT, sCNT))
            a.e("s_cmp_lg_u32 s%d, 0" % sCNT)
        a.e("s_waitcnt lgkmcnt(0)")
        if A: a.e("s_barrier")
        for x in Yseg(p if q < 8 - Opt.nd else None, toggle=(q == 3), extra=(fin and p < Opt.nx), last=(q == 7)): a.e(x)
        if not A and q < 7: a.e("s_barrier")
        if q == 3: a.e("s_cbranch_scc1 L_loop%s" % role)
    a.e("s_nop 1")

def transition(a, role):
    A = role == "A"
    if A:
        a.vm = []
        a.lab("L_trA")
    else:
        a.lab("L_join")
        a.e("s_cmp_eq_u32 s%d, 0" % sHI)
        a.e("s_cbranch_scc1 L_trA")
        a.vmjoin = list(a.vm)
    def qfin():
        for i in range(4): a.e("v_cvt_pk_bf16_f32 %s, %s, %s" % (v(vQ + i), v(vAQ + 2 * i), v(vAQ + 2 * i + 1)))
        a.e("v_add_u32 %s, 0x%x, %s" % (v(vWOA), L_WO, v(vWDA)))
        a.e("v_permlane16_swap_b32 %s, %s" % (v(vQ), v(vQ + 2)))
        a.e("v_permlane16_swap_b32 %s, %s" % (v(vQ + 1), v(vQ + 3)))
    pre0 = None
    if A:
        a.e("s_setprio 1")
        a.e("s_cmp_ge_u32 s%d, 14" % sM)
        a.e("s_cbranch_scc1 L_nogA0")
        put(a, a.kvA[:1] + a.kvA[-1:])
        a.l.append(".p2align 3")
        for ti in range(Opt.gsc): gelu_tile(a, ti, True)
        a.lab("L_nogA0")
        qfin()
        a.waitvm(["k0", "kv0", "kv1"])
        a.e("s_setprio 0")
        a.e(mfma(vS, vK0, vQ, None))
        a.e("s_barrier")
        put(a, a.kvA[1:-1])
        def pre0():
            a.e("s_cmp_lt_u32 s%d, 14" % sM)
            a.e("s_cbranch_scc1 L_gA1")
            a.e("s_waitcnt vmcnt(0)")
            a.e("s_branch L_nogA1")
            a.l.append(".p2align 3")
            a.lab("L_gA1")
            for ti in range(Opt.gsc, 4): gelu_tile(a, ti)
            a.lab("L_nogA1")
            a.e("s_setprio 2")
    else:
        a.waitvm(["k0", "kv0", "kv1"])
        a.e("s_setprio 1")
        a.e("s_cmp_ge_u32 s%d, 14" % sM)
        a.l.append(".p2align 3")
        a.e("s_barrier")
        a.e("s_cbranch_scc1 L_nogB")
        for ti in range(4): gelu_tile(a, ti)
        a.lab("L_nogB")
        qfin()
        a.e("s_nop 1")
        a.e(mfma(vS, vK0, vQ, None))
        a.stamp(5)
    attention(a, role, pre0)
    if A:
        a.stamp(6); astamp(a, 9); tstamp(a, 2)
        if Opt.diag and Opt.kdiag == 2: a.e("s_waitcnt lgkmcnt(0)")
        a.e(smfmac(vO, vV1L, vS + 24))
        a.e("s_setprio 0")
        a.e("s_cmp_eq_u32 s%d, 0" % sHI)
        a.e("s_nop 9")
        normalise(a, False)
        a.lab("L_fbretA")
        a.e("buffer_store_dwordx4 %s, %s, %s, s%d offen sc1" % (v(vPK, 4), v(vL16), srd(SWS), sOST))
        tstamp(a, 3)
        a.e("s_waitcnt vmcnt(1)")
        tstamp(a, 4)
        a.e("s_barrier")
        a.fetch(a, False)
        a.e("s_branch L_tl2")

def normalise(a, packed):
    t = vT0
    a.e("v_rcp_f32 %s, %s" % (v(t + 2), v(vO + 8)))
    a.e("s_nop 0")
    a.e("v_mul_f32_e64 %s, %s, %s" % (v(t + 2), v(t + 2), v(vGP)))
    if packed:
        for i in range(4): a.e("v_pk_mul_f32 %s, %s, %s op_sel_hi:[1,0]" % (v(vO + 2 * i, 2), v(vO + 2 * i, 2), v(t + 2, 2)))
        for i in range(4):
            a.e("v_pk_fma_f32 %s, %s, 0, %s op_sel_hi:[1,0,%d]" % (v(t, 2), v(vO + 2 * i, 2), v(t, 2) if i else v(vO + 8, 2), 1 if i else 0))
            a.e("v_cvt_pk_bf16_f32 %s, %s, %s" % (v(vPK + i), v(vO + 2 * i), v(vO + 2 * i + 1)))
        a.e("v_fmac_f32 %s, 0, %s" % (v(t), v(t + 1)))
    else:
        t = vO + 8
        for i in range(8): a.e("v_mul_f32 %s, %s, %s" % (v(vO + i), v(vT0 + 2), v(vO + i)))
        for i in range(4):
            a.e("v_fmac_f32 %s, 0, %s" % (v(t), v(vO + 2 * i)))
            a.e("v_cvt_pk_bf16_f32 %s, %s, %s" % (v(vPK + i), v(vO + 2 * i), v(vO + 2 * i + 1)))
            a.e("v_fmac_f32 %s, 0, %s" % (v(t), v(vO + 2 * i + 1)))
    a.e("v_subrev_u32 %s, s%d, %s" % (v(t), sLO_, v(t)))
    a.e("v_cmp_lt_u32 vcc, s%d, %s" % (sRNG, v(t)))
    a.e("s_branch L_fb" if Opt.force_fb else "s_cbranch_vccnz L_fb")

def tail(a):
    a.lab("L_tail")
    a.stamp(6)
    astamp(a, 9)
    if Opt.diag and Opt.kdiag == 2: a.e("s_waitcnt lgkmcnt(0)")
    tstamp(a, 2)
    a.e(smfmac(vO, vV1L, vS + 24))
    wf = [vFR, vFR + 8, vFR + 16]
    HORD = hord()
    def oload(j):
        return "buffer_load_dwordx4 %s, %s, %s, s%d offen offset:%d %s" % (
            v(vS + 4 * j, 4), v(vL16), srd(SWS), sOLD if HORD[j] < 4 else sOLD2, (HORD[j] % 4) * 1024, Opt.old_pol)
    a.oload = oload
    a.e("s_cmp_eq_u32 s%d, 0" % sHI)
    a.e("s_nop 10")
    a.l.append(".p2align 3")
    normalise(a, True)
    a.lab("L_fbret")
    a.e("buffer_store_dwordx4 %s, %s, %s, s%d offen sc1" % (v(vPK, 4), v(vL16), srd(SWS), sOST))
    tstamp(a, 3)
    aw = [vAW0, vWOA + 1, vWOA + 2, vWOA + 3]
    ar = [vAR0, vFLA]
    wo = WOF
    def fetch(o, scale):
        for j in range(8):
            o.e(oload(j))
            if j >= 5:
                for r in wd_reads(wo[j], vWOA, (7 - j) * 8192): o.e(r)
            if scale and j >= 4:
                for i in range(4 * j - 16, 4 * j - 12): o.e("v_mul_f32 %s, %s, %s" % (v(vD + i), v(vGC), v(vD + i)))
    def addrs(a):
        a.e("v_sub_f32 %s, 1.0, %s" % (v(vGC), v(vGC)))
        for j in range(1, 4): a.e("v_xor_b32 %s, %d, %s" % (v(aw[j]), 32 * j, v(aw[0])))
        a.e("v_xor_b32 %s, 16, %s" % (v(ar[1]), v(ar[0])))
        a.e("s_mov_b32 s%d, 0x2000" % sB)
    ol = Asm(); a.ool2 = ol.l
    a.e("s_waitcnt vmcnt(1)")
    tstamp(a, 4)
    a.e("s_barrier")
    a.lab("L_tl2")
    tstamp(a, 5)
    a.fetch = fetch
    fl = collect(addrs)
    slot = [4, 5, 6, 7, 0, 1, 2][Opt.nx:] + ([3] if Opt.nd == 2 else [])
    hreg = lambda sl: vKF + 4 if sl == 2 and Opt.nd == 2 else vH + 4 * sl
    inreg = [(vWX, vHX)] + ([(vWF, vH + 4 * (4 - Opt.nd))] if Opt.nd else [])
    rds = sum((wd_reads(wf[i % 3], vWDA, slot[i] * 8192) for i in range(len(slot))), [])
    done = 4
    for i in range(-len(inreg), len(slot)):
        for c in range(2):
            if i >= 1: a.e("s_waitcnt lgkmcnt(%d)" % (done - (4 * i + 2 * c + 2)))
            a.e(mfma(vD + 16 * c, inreg[i][0] + 4 * c, inreg[i][1], vD + 16 * c) if i < 0 else
                mfma(vD + 16 * c, wf[i % 3] + 4 * c, hreg(slot[i]), vD + 16 * c))
            if i < -1: continue
            if done < len(rds):
                for r in rds[done:done + 2]: a.e(r)
                done += 2
            else:
                put(a, fl[:2]); fl = fl[2:]
    assert not fl
    tstamp(a, 6)
    a.e("s_cbranch_scc0 L_tl3")
    a.l.append(".p2align 3")
    a.e("s_nop 7")
    a.e("s_nop 0")
    for i in range(16): a.e("v_pk_mul_f32 %s, %s, %s op_sel:[0,1] op_sel_hi:[1,1]" % (v(vD + 2 * i, 2), v(vD + 2 * i, 2), v(vGP, 2)))
    tstamp(a, 7)
    a.lab("L_tl4")
    tstamp(a, 8)
    ol.lab("L_tl3")
    ol.e("s_setprio 0")
    fetch(ol, False)
    tstamp(ol, 7)
    for i in range(32): ol.e("v_mul_f32 %s, %s, %s" % (v(vD + i), v(vGC), v(vD + i)))
    ol.e("s_waitcnt lgkmcnt(0)")
    ol.e("s_branch L_tl4")
    a.stamp(7)
    def check(j):
        o = vS + 4 * j
        return ["s_waitcnt vmcnt(%d)" % (7 - j), "v_max3_u32 v2, %s, %s, %s" % (v(o), v(o + 1), v(o + 2)),
                "v_max_u32 v2, v2, %s" % v(o + 3), "v_cmp_eq_u32 vcc, -1, v2"]
    a.check = check
    for x in check(0): a.e(x)
    for j in range(10):
        if j < 8:
            a.e("s_cbranch_vccnz L_ore%d" % j)
            a.lab("L_ook%d" % j)
            a.e(mfma(vD, wo[j], vS + 4 * j, vD))
        if j >= 2 and Opt.cfirst: a.e(mfma(vD + 16, wo[j - 2] + 4, vS + 4 * (j - 2), vD + 16))
        if j < 7:
            for x in check(j + 1): a.e(x)
        if j >= 2 and not Opt.cfirst: a.e(mfma(vD + 16, wo[j - 2] + 4, vS + 4 * (j - 2), vD + 16))
        if j in (7, 8): a.e("s_nop 4")
    wr = lambda c, j: "ds_write_b128 %s, %s offset:%d" % (v(aw[j]), v(vD + 16 * c + 4 * j, 4), 128 * c)
    a.stamp(8)
    tstamp(a, 9)
    for j in range(4): a.e(wr(0, j))
    a.e("s_nop 7")
    for j in range(4): a.e(wr(1, j))
    a.e("s_waitcnt lgkmcnt(0)")
    a.e("s_barrier")
    for p in range(4):
        for h in range(2): a.e(rd128(vS + 8 * p + 4 * h, ar[h], p * 8192))
    for p in range(1, 4):
        a.e("s_waitcnt lgkmcnt(%d)" % (6 - 2 * p))
        for i in range(4): a.e("v_pk_add_f32 %s, %s, %s" % (v(vS + 2 * i, 2), v(vS + 2 * i, 2), v(vS + 8 * p + 2 * i, 2)))
    for i in range(4): a.e("v_cvt_pk_bf16_f32 %s, %s, %s" % (v(vP + i), v(vS + 2 * i), v(vS + 2 * i + 1)))
    a.e("buffer_store_dwordx4 %s, %s, %s, s%d offen %s" % (v(vP, 4), v(vOUTA), srd(SOUT), sOUTO, Opt.out_pol))
    if Opt.probe >= 0:
        a.e("s_waitcnt vmcnt(0)")
        a.stamp(9)
        if Opt.probe != 9:
            a.e("s_cmp_ge_u32 s%d, 14" % sM)
            a.e("s_cbranch_scc%d L_end" % (0 if Opt.probe_l else 1))
        a.e("s_sub_u32 s%d, s%d, s%d" % (sA, sSTAMP + 4, sSTAMP))
        a.e("s_mul_i32 s%d, s%d, %d" % (sA, sA, Opt.probe_mul - 1))
        if Opt.pcyc >= 0:
            a.e("s_sub_u32 s%d, s%d, s%d" % (sA, sSTAMP + 8, sSTAMP + 6))
            a.e("s_mov_b32 s%d, s%d" % (sSTAMP + 4, sSTAMP))
        a.e("s_min_u32 s%d, s%d, 100000" % (sA, sA))
        a.e("s_add_u32 s%d, s%d, 3800" % (sA, sA))
        if Opt.probe_r >= 0:
            a.e("s_cmp_eq_u32 s%d, 0x2000" % sB)
            a.e("s_cbranch_scc%d L_end" % Opt.probe_r)
        if Opt.probe_w >= 0:
            a.e("s_cmp_lg_u32 s%d, %d" % (sHI, Opt.probe_w))
            a.e("s_cbranch_scc1 L_end")
        if Opt.probe_x >= 0:
            a.e("s_and_b32 s0, s2, 7")
            a.e("s_cmp_lg_u32 s0, %d" % Opt.probe_x)
            a.e("s_cbranch_scc1 L_end")
        a.lab("L_probe")
        a.e("s_memrealtime s[0:1]")
        a.e("s_waitcnt lgkmcnt(0)")
        a.e("s_sub_u32 s0, s0, s%d" % (sSTAMP + 4))
        a.e("s_cmp_lt_u32 s0, s%d" % sA)
        a.e("s_cbranch_scc1 L_probe")
    if Opt.pin == 9:
        a.e("s_waitcnt vmcnt(0)")
        a.stamp(9)
    if Opt.diag in (1, 2):
        a.e("s_waitcnt vmcnt(0)")
        a.stamp(9)
        a.e("s_mov_b32 s%d, s%d" % (sSTAMP + 3, sSTAMP))
        a.e("s_mov_b32 s%d, s%d" % (sSTAMP, sB))
        a.e("s_getreg_b32 s%d, hwreg(HW_REG_XCC_ID)" % (sSTAMP + 1))
        for i in range(20): a.e("v_mov_b32 %s, s%d" % (v(vS + i), sSTAMP + i))
        a.e("s_lshl_b32 s%d, s2, 3" % sA)
        a.e("s_add_u32 s%d, s%d, s%d" % (sA, sA, sW))
        a.e("s_lshl_b32 s%d, s%d, 7" % (sA, sA))
        a.e("s_add_u32 s%d, s%d, 0x%x" % (sA, sA, WS_STAMP))
        a.e("s_mov_b64 exec, 1")
        for i in range(5): a.e("buffer_store_dwordx4 %s, off, %s, s%d offset:%d" % (v(vS + 4 * i, 4), srd(SWS), sA, 16 * i))
    a.lab("L_end")
    a.e("s_endpgm")
    a.l += a.ool2
    for j in range(8):
        a.lab("L_ore%d" % j)
        a.e("s_sub_u32 s%d, s%d, 1" % (sB, sB))
        a.e("s_cbranch_scc1 L_ogive%d" % j)
        if Opt.rwait: a.e("s_waitcnt vmcnt(0)")
        if Opt.rwait > 1: a.e("s_sleep %d" % Opt.rwait)
        for i in range(j, 8): a.e(a.oload(i))
        for x in a.check(j): a.e(x)
        a.e("s_cbranch_vccnz L_ore%d" % j)
        a.e("s_branch L_ook%d" % j)
        a.lab("L_ogive%d" % j)
        a.e("s_mov_b32 s%d, 0" % sB)
        a.e("s_branch L_ook%d" % j)

def fallback(a):
    a.lab("L_fb")
    m = vT0
    a.e("v_mov_b32 %s, 0xff800000" % v(m))
    a.e("s_mov_b32 s%d, 0" % sA)
    a.lab("L_fb1")
    a.e("buffer_load_dwordx4 %s, %s, %s, s%d offen sc1" % (v(vKF, 4), v(vL16), srd(SKV), sA))
    a.e("s_waitcnt vmcnt(0)")
    a.e(mfma(vS, vKF, vQ, None))
    a.e("s_add_u32 s%d, s%d, 2048" % (sA, sA))
    a.e("s_nop 11")
    for i in range(8): a.e("v_max3_f32 %s, %s, %s, %s" % (v(m), v(m), v(vS + 2 * i), v(vS + 2 * i + 1)))
    a.e("s_cmp_lt_u32 s%d, 0x20000" % sA)
    a.e("s_cbranch_scc1 L_fb1")
    a.e("v_mov_b32 %s, %s" % (v(m + 1), v(m)))
    a.e("s_nop 1")
    a.e("v_permlane32_swap_b32 %s, %s" % (v(m), v(m + 1)))
    a.e("s_nop 1")
    a.e("v_max_f32 %s, %s, %s" % (v(m), v(m), v(m + 1)))
    for i in range(16): a.e("v_sub_f32 %s, 0, %s" % (v(vS + 16 + i), v(m)))
    for i in range(16): a.e("v_mov_b32 %s, 0" % v(vO + i))
    a.e("s_mov_b32 s%d, 0" % sA)
    a.lab("L_fb2")
    a.e("s_add_u32 s%d, s%d, 0x%x" % (sB, sA, 63 * 2048))
    a.e("s_and_b32 s%d, s%d, 0x1ffff" % (sB, sB))
    a.e("buffer_load_dwordx4 %s, %s, %s, s%d offen sc1" % (v(vKF, 4), v(vL16), srd(SKV), sB))
    a.e("s_add_u32 s%d, s%d, 2048" % (sB, sA))
    a.e("s_and_b32 s%d, s%d, 0x1ffff" % (sB, sB))
    a.e("s_mov_b64 exec, %s" % sp(sVM))
    a.e("buffer_load_dwordx4 %s, %s, %s, s%d offen offset:1024 sc1" % (v(vV, 4), v(vL16), srd(SKV), sA))
    a.e("buffer_load_dwordx4 %s, %s, %s, s%d offen offset:1280 sc1" % (v(vV + 4, 4), v(vL16), srd(SKV), sB))
    a.e("s_mov_b64 exec, -1")
    a.e("s_waitcnt vmcnt(0)")
    a.e(mfma(vS, vKF, vQ, vS + 16))
    a.e("s_add_u32 s%d, s%d, 2048" % (sA, sA))
    a.e("s_nop 11")
    for i in range(16): a.e("v_exp_f32 %s, %s" % (v(vS + i), v(vS + i)))
    a.e("s_nop 2")
    a.e(smfmac(vO, vV, vS))
    a.e(smfmac(vO, vV + 4, vS + 8))
    a.e("s_cmp_lt_u32 s%d, 0x20000" % sA)
    a.e("s_cbranch_scc1 L_fb2")
    a.e("s_nop 11")
    a.e("v_rcp_f32 %s, %s" % (v(vT0 + 2), v(vO + 8)))
    a.e("s_cmp_eq_u32 s%d, 0" % sHI)
    a.e("v_mul_f32 %s, %s, %s" % (v(vT0 + 2), v(vT0 + 2), v(vGP)))
    for i in range(8): a.e("v_mul_f32 %s, %s, %s" % (v(vO + i), v(vT0 + 2), v(vO + i)))
    for i in range(4): a.e("v_cvt_pk_bf16_f32 %s, %s, %s" % (v(vPK + i), v(vO + 2 * i), v(vO + 2 * i + 1)))
    for i in range(4): a.e("v_min_u32 %s, -2, %s" % (v(vPK + i), v(vPK + i)))
    a.e("s_cbranch_scc1 L_fbretA")
    a.e("s_branch L_fbret")

def build():
    a = Asm()
    prologue(a)
    phase1_F(a)
    transition(a, "B")
    tail(a)
    a.l += a.ool
    transition(a, "A")
    phase1_L(a)
    fallback(a)
    a.lab("L_codeend")
    for i, x in enumerate(a.l):
        if " sc1" in x and "sc0" not in x and ((Opt.allsc & 1 and "buffer_store" in x) or (Opt.allsc & 2 and "buffer_load" in x)):
            a.l[i] = x.replace(" sc1", " sc0 sc1")
    il = a.l.index("L_light:")
    for i, x in enumerate(a.l):
        if x.endswith(" lds") and "sc1" not in x and " nt" not in x:
            if (Opt.ntx & 4 and (srd(SWD) in x or srd(SWO) in x)) or (Opt.ntx & 8 and i > il):
                a.l[i] = x[:-4] + " nt lds"
    head = open("cdna_kernels/%s.s.ref" % NAME).read().split("\n")
    hdr = [l for l in head if l.startswith(";") and "@launch" not in l and "Override" not in l and "grid=" not in l]
    out = hdr + ["; @launch grid=(256,1,1) block=(512,1,1) lds=%d" % LDS_BYTES,
                 '.amdgcn_target "amdgcn-amd-amdhsa--gfx950"', ".text", ".globl %s_kernel" % NAME, ".p2align 8",
                 ".type %s_kernel,@function" % NAME,
                 ".set CODE_PF_MAX, L_codeend - L_nopf - 4" if Opt.code_pf else "",
                 "%s_kernel:" % NAME]
    out += ["; " + x for x in """One persistent launch, one workgroup per CU (generated by a script), 8 waves = two quartets that alternate on each SIMD.
Stage 1: 14 of every 16 workgroups compute gelu(x Wg) * (x Wu) for 128 tokens x 128 columns plus Q for two heads;
         the other two compute K, V and the mixing gate, publish them (counter in d_debug) and then their own Q.
Stage 2: attention for 128 tokens x 2 heads over all keys, S^T = K Q^T, exp2 in place, P V through sparse MFMAs that
         read the high halves of the fp32 probabilities; a row of ones in the V operand gives the row sums.
         The stand-in maximum is 0: it is accepted only if the row sum lies in [2^-16, 2^100] and every accumulator is
         finite, otherwise the wave redoes its rows with the true maximum (L_fb).
         The down projection of a 64 x 64 output tile runs in the same loop once the producers' flags are seen.
Stage 3: attention outputs are handed over through d_ws (cleared to a mark earlier in this launch), projected,
         mixed with the FFN branch, reduced through LDS and stored.""".split("\n")]
    out += a.l
    out += ['.section .rodata,"a"', ".p2align 6", ".amdhsa_kernel %s_kernel" % NAME,
            "  .amdhsa_next_free_vgpr %d" % NV, "  .amdhsa_next_free_sgpr 102", "  .amdhsa_accum_offset 256",
            "  .amdhsa_group_segment_fixed_size 0", "  .amdhsa_kernarg_size 104", "  .amdhsa_user_sgpr_count 2",
            "  .amdhsa_user_sgpr_kernarg_segment_ptr 1", "  .amdhsa_system_sgpr_workgroup_id_x 1", ".end_amdhsa_kernel", ""]
    return "\n".join(out)

if __name__ == "__main__":
    path = sys.argv[1]
    for kv in sys.argv[2:]:
        k, val = kv.split("=")
        cur = getattr(Opt, k)
        setattr(Opt, k, val if isinstance(cur, str) else type(cur)(int(val)))
    open(path, "w").write(build())
```

```python
import sys, struct, math

NAME = "gated_mix__grouped_kv_mqa__geglu_ffn__prompt"

class Opt:
    diag = 0
    mapmode = 1
    force_fb = False
    allsc = 0
    out_pol = "sc0 sc1"
    code_pf = True
    xrot = 0
    pregap = 0
    hlate = 1
    hpub = 3
    rwait = 1
    aearly = 0
    bidle = 1
    old_pol = "sc1"
    ypos0 = "36g"
    ypos1 = "36bg"
    ypos2 = "36cg9"
    nd = 1
    nx = 0
    tpos = 1
    cfirst = 0
    tch = 12
    stch = 0
    spos = 1
    tlb = 14
    olate = 1
    hrot = 0
    tbar = 0
    hord = 1
    cmap = 1
    kqx = 0
    oearly = 8
    conc = 1
    ghx = 1
    qa = "077777"
    qb = "588888"
    npre = 8
    stagger = 1
    rper = 2
    dma1 = 17
    kprio = 0
    dma0 = 8
    npd = 4
    kdiag = 0
    fillpre = 0
    fillper = 5
    gsc = 2
    sched = 0
    xmask = 1
    ntx = 0
    touch = 2
    rotg = 0
    rotm = 0
    startbar = 1
    pvz = 1
    pin = -1
    pin_ns = 60000
    probe = -1
    probe_x = -1
    probe_mul = 10
    probe_w = -1
    probe_r = -1
    pcyc = -1
    probe_l = 0

def f2u(x): return struct.unpack("<I", struct.pack("<f", x))[0]

WS_KV = 0
WS_G = 128 * 1024
WS_HFLAG = 192 * 1024
WS_OF = 1 << 20
WS_HF = 4 << 20
WS_STAMP = 12 << 20
WS_SIZE = 16 << 20
K1 = 1024
L_G, L_U, L_X, L_WQ = 0, 48 * K1, 96 * K1, 144 * K1
L_QX = 32 * K1
L_WD, L_WO, L_KV = 0, 64 * K1, 128 * K1
L_RED = 96 * K1
LL_X, LL_W, LL_GATE, LL_WQ = 0, 128 * K1, 144 * K1, 128 * K1
LDS_BYTES = 160 * K1

SX, SWG, SWU, SWQ, SWS, SWD, SWO, SOUT, SDBG, SWKV, SGATE, SKV = 4, 8, 12, 16, 20, 24, 28, 32, 36, 40, 44, 64
SWV = 72
sTMPP = 48
sW, sHI, sLO, sG, sM, sT, sCB = 50, 51, 52, 53, 54, 55, 56
sWK = 57
sWH = 58
sVM = 60
sRET = 62
sA, sB, sC, sD = 68, 69, 70, 71
sOFFW, sOFFQ, sCH, sXP = 72, 73, 74, 75
sHOFF, sWDOFF, sKVOFF, sHXO, sCNT = 72, 73, 74, 75, 77
sOUTO, sLO_, sRNG = 59, 81, 75
sOLD2 = 58
sOST, sOLD, sHST = 78, 79, 80
sHST2 = 3
sRX, sRW, sM0B = 40, 41, 42
sKQ = 76
sHP = sM
sSTAMP = 82

def srd(b): return "s[%d:%d]" % (b, b + 3)
def sp(b): return "s[%d:%d]" % (b, b + 1)
def v(b, n=1): return "v%d" % b if n == 1 else "v[%d:%d]" % (b, b + n - 1)

vL16 = 1
vT0, vT1, vT2, vT3 = 2, 3, 4, 5
vGP, vGC = 6, 7
vKVA = 8
vWDA = 9
vWDV = 10
vONE = 11
vZERO = 12
vFLA = 13
vPOLL = 14
vGA = 15
vQ = 16
vK0 = 20
vV1L = 24
vIDX = 28
vAW0, vAR0, vOUTA = 30, 31, 12
vKVB = 29
vP = 32
vV = 40
vO = 56
vD = 72
vACC = 104
vS = 104
vH = 136
vAQ = vP
vF1 = 168
vKF = 168
vWF = 176
vWX = 224
vHX = 232
vPK = 20
WOF = [32, 208, 216, 240, 248, 40, 48, 56]
vWOA = 236
vFR = 184
vLX = 224
vXA = 240
vWA = 244
vQA = 248
vDX, vDG, vDQ = 249, 250, 251
vC0 = 252
vTID = 255
vHA = 254
NV = 256

class Asm:
    def __init__(self):
        self.l = []
        self.vm = []
        self.nstamp = 0
    def e(self, s):
        for x in s.split("\n"):
            x = x.strip()
            if x: self.l.append("    " + x)
    def lab(self, s): self.l.append(s + ":")
    def vmop(self, s, tag):
        self.e(s); self.vm.append(tag)
    def vmn(self, tags):
        if isinstance(tags, str): tags = [tags]
        last = -1
        for i, t in enumerate(self.vm):
            if t in tags: last = i
        return None if last < 0 else len(self.vm) - 1 - last
    def waitvm(self, tags, lgkm=False):
        n = self.vmn(tags)
        if n is None:
            if lgkm: self.e("s_waitcnt lgkmcnt(0)")
            return
        assert n < 64
        self.e("s_waitcnt vmcnt(%d)%s" % (n, " lgkmcnt(0)" if lgkm else ""))
        self.vm = self.vm[len(self.vm) - n:] if n else []
    def wait0(self, lgkm=False):
        self.e("s_waitcnt vmcnt(0)%s" % (" lgkmcnt(0)" if lgkm else "")); self.vm = []
    def stamp(self, i, real=False):
        if Opt.probe == i:
            self.e("s_waitcnt lgkmcnt(0)")
            self.e("s_memrealtime %s" % sp(sSTAMP + 4))
            if Opt.pcyc >= 0: self.e("s_memtime %s" % sp(sSTAMP + 8))
            self.e("s_waitcnt lgkmcnt(0)")
        if Opt.pin == i:
            self.nstamp += 1
            self.e("s_waitcnt lgkmcnt(0)")
            self.e("s_cselect_b32 s%d, 1, 0" % (sSTAMP + 5))
            self.lab("L_pin%d" % self.nstamp)
            self.e("s_memrealtime s[0:1]")
            self.e("s_waitcnt lgkmcnt(0)")
            self.e("s_sub_u32 s0, s0, s%d" % sSTAMP)
            self.e("s_cmp_lt_u32 s0, %d" % (Opt.pin_ns // 10))
            self.e("s_cbranch_scc1 L_pin%d" % self.nstamp)
            self.e("s_cmp_lg_u32 s%d, 0" % (sSTAMP + 5))
        if Opt.diag and not Opt.kdiag and (Opt.diag == 1 or i == 9):
            self.e("s_waitcnt lgkmcnt(0)")
            self.e("s_memtime %s" % sp(sSTAMP + 2 * i))
            self.e("s_memrealtime %s" % sp(sRET))
            self.e("s_waitcnt lgkmcnt(0)")
            self.e("s_mov_b32 s%d, s%d" % (sSTAMP + 2 * i + 1, sRET))

def astamp(a, i):
    if Opt.diag and Opt.kdiag == 2: a.e("s_memtime %s" % sp(sSTAMP + 2 * i))

def tstamp(a, i):
    if Opt.diag and Opt.kdiag == 3: a.e("s_memtime %s" % sp(sSTAMP + 2 * i))

def kstamp(a, i):
    if Opt.probe == 18 + i: a.e("s_memrealtime %s" % sp(sSTAMP + 4))
    if Opt.diag and Opt.kdiag == 1: a.e("s_memtime %s" % sp(sSTAMP + 2 * i))

def mfma(d, a, b, c):
    return "v_mfma_f32_32x32x16_bf16 %s, %s, %s, %s" % (v(d, 16), v(a, 4), v(b, 4), "0" if c is None else v(c, 16))
def smfmac(d, a, b):
    return "v_smfmac_f32_32x32x32_bf16 %s, %s, %s, %s" % (v(d, 16), v(a, 4), v(b, 8), v(vIDX))
def mfma16(d, a, b, c):
    return "v_mfma_f32_16x16x32_bf16 %s, %s, %s, %s" % (v(d, 4), v(a, 4), v(b, 4), "0" if c is None else v(c, 4))
def rd128(d, a, off):
    assert 0 <= off < 65536
    return "ds_read_b128 %s, %s offset:%d" % (v(d, 4), v(a), off)
def rdtr(d, a, off):
    assert 0 <= off < 65536
    return "ds_read_b64_tr_b16 %s, %s offset:%d" % (v(d, 2), v(a), off)

def interleave(mf, fill, per=2):
    out = []
    fill = list(fill)
    for i, m in enumerate(mf):
        out.append(m)
        if i < len(mf) - 1:
            out += fill[:per]; fill = fill[per:]
    return out + fill

def srd_words(a, regs):
    sizes = {SX: 2048 * 1024, SWG: 512 * 3584, SWU: 512 * 3584, SWQ: 512 * 1024, SWS: WS_SIZE, SWKV: 16384, SWV: 16384,
             SGATE: 1024, SWD: 1792 * 1024, SWO: 512 * 1024, SOUT: 2048 * 1024, SDBG: 256, SKV: 128 * 1024}
    for reg in regs:
        a.e("s_mov_b32 s%d, 0x%x" % (reg + 2, sizes[reg]))
        a.e("s_mov_b32 s%d, 0x20000" % (reg + 3))

def ptr_loads(a, lst):
    for reg, off in lst: a.e("s_load_dwordx2 %s, s[0:1], %d" % (sp(reg), off))

def prologue(a):
    if Opt.diag or Opt.pin >= 0 or Opt.probe >= 0:
        a.e("s_memrealtime %s" % sp(sSTAMP))
        if Opt.diag in (1, 2): a.e("s_memtime %s" % sp(sSTAMP + 2))
    ptr_loads(a, ((SX, 0), (SWG, 48), (SWU, 56), (SWQ, 8)))
    if Opt.probe == 1: a.stamp(1)
    a.e("v_lshrrev_b32 v2, 6, v0")
    if Opt.code_pf:
        a.e("s_getpc_b64 %s" % sp(sRET))
        a.lab("L_nopf")
        a.e("s_and_b32 s%d, s2, -8" % sA)
        a.e("v_add_lshl_u32 v4, v2, s%d, 7" % sA)
        a.e("v_mov_b32 v5, 0")
        a.e("v_min_u32 v4, CODE_PF_MAX, v4")
        a.e("v_lshl_add_u64 v[4:5], v[4:5], 0, %s" % sp(sRET))
        a.e("global_load_dword %s, v[4:5], off" % v(vPOLL))
    a.e("s_load_dwordx8 s[%d:%d], s[0:1], 64" % (SOUT, SOUT + 7))
    a.e("v_readfirstlane_b32 s%d, v2" % sW)
    ptr_loads(a, ((SWS, 96),) if Opt.diag or Opt.probe >= 0 else ((SWS, 96), (SWO, 32)))
    a.e("s_cmpk_ge_u32 s2, 256")
    a.e("s_cbranch_scc1 L_end")
    a.e("s_and_b32 s%d, s2, 1" % sD)
    a.e("s_bfe_u32 s%d, s2, 0x30003" % sA)
    a.e("s_lshl3_add_u32 s%d, s%d, s%d" % (sG, sD, sA))
    a.e("s_bfe_u32 s%d, s2, 0x20001" % sA)
    a.e("s_lshr_b32 s%d, s2, 6" % sB)
    a.e("s_lshl2_add_u32 s%d, s%d, s%d" % (sM, sA, sB))
    a.e("s_lshl_b32 s%d, s%d, 10" % (sWK, sW))
    a.e("s_cmp_ge_u32 s%d, 14" % sM)
    a.e("s_cbranch_scc1 L_light")

def xvoff(a, t):
    a.e("v_lshrrev_b32 v2, 4, %s" % v(t))
    a.e("v_xor_b32 v2, v2, %s" % v(t))
    a.e("v_and_b32 v2, 7, v2")
    a.e("s_lshl_b32 s%d, s%d, 17" % (sA, sG))
    a.e("v_lshl_add_u32 v2, v2, 4, s%d" % sA)
    a.e("v_lshrrev_b32 v3, 3, %s" % v(t))
    a.e("v_lshl_add_u32 %s, v3, 10, v2" % v(vDX))

def setup_ids(a):
    a.e("s_mov_b64 %s, %s" % (sp(SKV), sp(SWS)))
    a.e("s_mov_b64 %s, %s" % (sp(SWD), sp(SOUT)))
    a.e("s_mov_b64 %s, %s" % (sp(SOUT), sp(SOUT + 4)))
    a.e("s_mov_b64 %s, %s" % (sp(SDBG), sp(SOUT + 6)))
    a.e("v_and_b32 v0, 63, v0")
    a.e("v_lshlrev_b32 %s, 4, v0" % v(vL16))
    a.e("s_andn2_b32 s%d, 1, s2" % sA)
    a.e("s_bfe_u32 s%d, s2, 0x20001" % sB)
    a.e("s_lshl2_add_u32 s%d, s%d, s%d" % (sA, sA, sB))
    a.e("s_bfe_u32 s%d, s2, 0x20003" % sB)
    a.e("s_lshl2_add_u32 s%d, s%d, s%d" % (sT, sA, sB))
    a.e("s_lshr_b32 s%d, s2, 5" % sCB)

def setup_rd(a):
    a.e("s_lshr_b32 s%d, s%d, 2" % (sHI, sW))
    a.e("s_and_b32 s%d, s%d, 3" % (sLO, sW))
    a.e("v_and_b32 v2, 15, v0")
    a.e("v_lshrrev_b32 v3, 4, v0")
    a.e("v_bfe_u32 v4, v0, 1, 3")
    a.e("v_xor_b32 v4, v4, v3")
    a.e("v_lshlrev_b32 v4, 4, v4")
    a.e("v_lshl_add_u32 %s, v2, 7, v4" % v(vXA))
    a.e("v_bfe_u32 v2, v0, 2, 2")
    a.e("v_and_b32 v4, 3, v0")
    a.e("v_lshl_add_u32 %s, v3, 3, v2" % v(vQA))
    a.e("v_lshlrev_b32 %s, 6, %s" % (v(vQA), v(vQA)))
    a.e("v_xor_b32 v5, s%d, v3" % sHI)
    a.e("v_and_b32 v5, 1, v5")
    a.e("v_lshl_add_u32 %s, v5, 5, %s" % (v(vQA), v(vQA)))
    a.e("v_lshl_add_u32 %s, v4, 3, %s" % (v(vQA), v(vQA)))

def setup_oclr(a):
    srd_words(a, [SWS, SKV, SDBG])
    a.e("s_mov_b32 s%d, 0xffff" % sVM)
    a.e("s_mov_b32 s%d, 0xffff" % (sVM + 1))
    a.e("s_lshl_b32 s%d, s%d, 2" % (sA, sG))
    a.e("s_add_u32 s%d, s%d, s%d" % (sA, sA, sLO))
    a.e("s_lshl_b32 s%d, s%d, 5" % (sB, sA))
    a.e("s_lshl_b32 s%d, s%d, 1" % (sC, sHP))
    a.e("s_add_u32 s%d, s%d, s%d" % (sB, sB, sC))
    a.e("s_add_u32 s%d, s%d, s%d" % (sB, sB, sHI))
    a.e("s_lshl_b32 s%d, s%d, 10" % (sB, sB))
    a.e("s_add_u32 s%d, s%d, 0x%x" % (sOST, sB, WS_OF))
    for i in range(4): a.e("v_mov_b32 %s, -1" % v(vQ + i))
    a.vmop("buffer_store_dwordx4 %s, %s, %s, s%d offen sc1" % (v(vQ, 4), v(vL16), srd(SWS), sOST), "oclr")
    a.e("v_mov_b32 %s, 1" % v(vONE))
    a.e("v_mov_b32 %s, 0" % v(vZERO))
    a.e("v_and_b32 %s, 31, v0" % v(vGA))
    a.e("v_lshlrev_b32 %s, 2, %s" % (v(vGA), v(vGA)))

def collect(fn):
    t = Asm(); t.marks = {}
    def vmop(s_, tag):
        t.e(s_); t.marks[len(t.l) - 1] = tag
    t.vmop = vmop
    fn(t)
    return [(x, t.marks.get(i)) for i, x in enumerate(t.l)]
def put(a, items):
    for x, tag in items:
        if tag: a.vmop(x, tag)
        else: a.e(x)

def setup_ones(a):
    a.e("s_mov_b32 s%d, 0x110000" % sA)
    a.e("s_mov_b32 s%d, 0x110000" % sB)
    a.e("v_mov_b32 v3, 0x3f803f80")
    a.e("v_cndmask_b32 %s, 0, v3, %s" % (v(vV1L), sp(sA)))
    for i in range(1, 4): a.e("v_mov_b32 %s, %s" % (v(vV1L + i), v(vV1L)))
    for i in range(16): a.e("v_mov_b32 %s, %s" % (v(vV + i), v(vV1L)))

def setup_attn(a):
    srd_words(a, [SWD, SWO, SOUT])
    a.e("s_lshl_b32 s%d, s%d, 2" % (sA, sG))
    a.e("s_add_u32 s%d, s%d, s%d" % (sA, sA, sLO))
    a.e("s_mul_i32 s%d, s%d, 112" % (sB, sA))
    a.e("s_lshl_b32 s%d, s%d, 3" % (sC, sM))
    a.e("s_add_u32 s%d, s%d, s%d" % (sB, sB, sC))
    a.e("s_lshl_b32 s%d, s%d, 2" % (sC, sHI))
    a.e("s_add_u32 s%d, s%d, s%d" % (sB, sB, sC))
    a.e("s_and_b32 s%d, s%d, 1" % (sC, sLO))
    a.e("s_lshl_b32 s%d, s%d, 1" % (sC, sC))
    a.e("s_add_u32 s%d, s%d, s%d" % (sB, sB, sC))
    a.e("s_lshl_b32 s%d, s%d, 10" % (sB, sB))
    a.e("s_add_u32 s%d, s%d, 0x%x" % (sHST, sB, WS_HF))
    a.e("s_mul_i32 s%d, s%d, %d" % (sC, sC, 112 * 1024))
    a.e("s_sub_u32 s%d, %d, s%d" % (sC, 112 * 1024, sC))
    a.e("s_add_u32 s%d, s%d, s%d" % (sHST2, sHST, sC))
    a.e("v_bfe_u32 v2, v0, 2, 2")
    a.e("v_lshrrev_b32 v3, 5, v0")
    a.e("v_lshl_add_u32 v2, v3, 2, v2")
    a.e("v_lshlrev_b32 v2, 6, v2")
    a.e("v_bfe_u32 v3, v0, 4, 1")
    a.e("v_lshl_add_u32 v2, v3, 5, v2")
    a.e("v_and_b32 v3, 3, v0")
    a.e("v_lshl_add_u32 v2, v3, 3, v2")
    a.e("s_lshr_b32 s%d, s%d, 1" % (sA, sW))
    a.e("s_lshl_b32 s%d, s%d, 11" % (sA, sA))
    a.e("v_add_u32 %s, s%d, v2" % (v(vWDA), sA))
    a.e("v_add_u32 %s, 0x%x, %s" % (v(vKVA), L_KV, v(vL16)))
    a.e("v_add_u32 %s, 0x%x, %s" % (v(vKVB), L_KV + 0x4000, v(vL16)))
    a.e("v_bfe_u32 v2, v0, 2, 3")
    a.e("v_lshlrev_b32 v2, 10, v2")
    a.e("v_lshrrev_b32 v3, 5, v0")
    a.e("v_lshl_add_u32 v2, v3, 6, v2")
    a.e("v_and_b32 v3, 3, v0")
    a.e("v_lshl_add_u32 v2, v3, 4, v2")
    a.e("s_lshl_b32 s%d, s%d, 7" % (sB, sCB))
    a.e("v_add_u32 %s, s%d, v2" % (v(vWDV), sB))
    a.e("v_min_u32 v2, 13, v0")
    a.e("v_lshlrev_b32 v2, 7, v2")
    a.e("s_lshr_b32 s%d, s%d, 1" % (sA, sT))
    a.e("s_lshl_b32 s%d, s%d, 11" % (sA, sA))
    a.e("s_add_u32 s%d, s%d, 0x%x" % (sA, sA, WS_HFLAG))
    a.e("v_add_u32 %s, s%d, v2" % (v(vFLA), sA))
    a.e("s_lshl_b32 s%d, s%d, 1" % (sA, sT))
    a.e("s_and_b32 s%d, s%d, 1" % (sB, sW))
    a.e("s_add_u32 s%d, s%d, s%d" % (sA, sA, sB))
    a.e("s_lshl_b32 s%d, s%d, 15" % (sB, sA))
    a.e("s_lshr_b32 s%d, s%d, 1" % (sKQ, sW))
    if Opt.kqx:
        a.e("s_lshl_b32 s%d, s%d, 1" % (sC, sCB))
        a.e("s_and_b32 s%d, s%d, 2" % (sC, sC))
        a.e("s_xor_b32 s%d, s%d, s%d" % (sKQ, sKQ, sC))
    a.e("s_lshl_b32 s%d, s%d, 13" % (sC, sKQ))
    a.e("s_add_u32 s%d, s%d, s%d" % (sB, sB, sC))
    a.e("s_add_u32 s%d, s%d, 0x%x" % (sOLD, sB, WS_OF))
    a.e("v_and_b32 v2, 31, v0")
    a.e("v_lshrrev_b32 v3, 5, v0")
    a.e("v_and_b32 v4, 7, v0")
    a.e("v_xor_b32 v3, v3, v4")
    a.e("v_lshlrev_b32 v3, 4, v3")
    a.e("v_lshl_add_u32 v3, v2, 8, v3")
    a.e("s_and_b32 s%d, s%d, 1" % (sB, sW))
    a.e("s_lshl_b32 s%d, s%d, 15" % (sB, sB))
    a.e("s_lshr_b32 s%d, s%d, 1" % (sC, sW))
    a.e("s_lshl_b32 s%d, s%d, 13" % (sD, sC))
    a.e("s_add_u32 s%d, s%d, s%d" % (sOUTO, sD, sB))
    a.e("s_add_u32 s%d, s%d, 0x%x" % (sD, sOUTO, L_RED))
    a.e("v_add_u32 %s, s%d, v3" % (v(vAW0), sD))
    a.e("v_lshrrev_b32 v2, 3, v0")
    a.e("v_lshlrev_b32 v3, 1, v4")
    a.e("v_xor_b32 v3, v3, v2")
    a.e("v_lshlrev_b32 v3, 4, v3")
    a.e("v_lshl_add_u32 v3, v2, 8, v3")
    a.e("s_lshl_b32 s%d, s%d, 11" % (sD, sC))
    a.e("s_add_u32 s%d, s%d, s%d" % (sD, sD, sB))
    a.e("s_add_u32 s%d, s%d, 0x%x" % (sD, sD, L_RED))
    a.e("v_add_u32 %s, s%d, v3" % (v(vAR0), sD))
    a.e("v_lshlrev_b32 v4, 4, v4")
    a.e("v_lshl_add_u32 %s, v2, 10, v4" % v(vOUTA))
    a.e("s_lshl_b32 s%d, s%d, 16" % (sC, sT))
    a.e("s_add_u32 s%d, s%d, s%d" % (sOUTO, sOUTO, sC))
    a.e("s_lshl_b32 s%d, s%d, 7" % (sC, sCB))
    a.e("s_add_u32 s%d, s%d, s%d" % (sOUTO, sOUTO, sC))
    a.e("v_mov_b32 %s, 0xdddd" % v(vIDX))
    a.e("v_lshrrev_b32 v2, 4, v0")
    a.e("v_lshl_add_u32 %s, v2, 8, %s" % (v(vHA), v(vL16)))
    for i in range(16): a.e("v_mov_b32 %s, 0" % v(vO + i))
    for i in range(32): a.e("v_mov_b32 %s, 0" % v(vD + i))
    c0 = -2.0 * math.sqrt(2.0 / math.pi) * math.log2(math.e)
    a.e("v_mov_b32 %s, 0x%x" % (v(vC0), f2u(c0)))
    a.e("v_mov_b32 %s, 0x%x" % (v(vC0 + 1), f2u(c0 * 0.044715)))

def kv_first_loads(a, quartet=False):
    it = []
    for o in (range(0, 16384, 4096) if quartet else range(0, 16384, 8192)):
        b = sWH if quartet else sWK
        it.append(("s_add_u32 m0, s%d, 0x%x\ns_add_u32 s%d, s%d, 0x%x\nbuffer_load_dwordx4 %s, %s, s%d offen sc1 lds"
                   % (b, L_KV + o, sA, b, o, v(vL16), srd(SKV), sA), "kv%d" % (o >> 13)))
    it.append(("s_mov_b32 s%d, 0x%x\nbuffer_load_dwordx4 %s, %s, %s, s%d offen sc1"
               % (sA, 63 * 2048, v(vK0, 4), v(vL16), srd(SKV), sA), "k0"))
    it.append(("s_mov_b64 exec, %s\nbuffer_load_dwordx4 %s, %s, %s, 0 offen offset:%d sc1\ns_mov_b64 exec, -1"
               % (sp(sVM), v(vV1L, 4), v(vL16), srd(SKV), 1024 + 256), "k0"))
    it.append(("s_lshl_b32 s%d, s%d, 2\ns_add_u32 s%d, s%d, s%d\ns_lshl_b32 s%d, s%d, 7\ns_add_u32 s%d, s%d, 0x%x\n"
               "buffer_load_dword %s, %s, %s, s%d offen sc1"
               % (sA, sG, sA, sA, sLO, sA, sA, sA, sA, WS_G, v(vGP), v(vGA), srd(SWS), sA), "k0"))
    it.append(("s_lshl_b32 s%d, s%d, 1\ns_and_b32 s%d, s%d, 1\ns_add_u32 s%d, s%d, s%d\ns_lshl_b32 s%d, s%d, 7\ns_add_u32 s%d, s%d, 0x%x\n"
               "buffer_load_dword %s, %s, %s, s%d offen sc1"
               % (sA, sT, sB, sW, sA, sA, sB, sA, sA, sA, sA, WS_G, v(vGC), v(vGA), srd(SWS), sA), "k0"))
    return it

def spin_counter(a, name, first_loaded, wave=0):
    a.e("s_cmp_lg_u32 s%d, %d" % (sW, wave))
    a.e("s_cbranch_scc1 L_%s_done" % name)
    a.e("s_mov_b32 s%d, 0x4000" % sB)
    if first_loaded: a.e("s_branch L_%s_chk" % name)
    a.lab("L_%s_re" % name)
    a.e("buffer_load_dword %s, off, %s, 0 sc1" % (v(vPOLL), srd(SDBG)))
    a.e("s_waitcnt vmcnt(0)")
    a.lab("L_%s_chk" % name)
    a.e("v_readfirstlane_b32 s%d, %s" % (sA, v(vPOLL)))
    a.e("s_cmp_ge_u32 s%d, 32" % sA)
    a.e("s_cbranch_scc1 L_%s_done" % name)
    a.e("s_sleep 4")
    a.e("s_sub_u32 s%d, s%d, 1" % (sB, sB))
    a.e("s_cmp_lg_u32 s%d, 0" % sB)
    a.e("s_cbranch_scc1 L_%s_re" % name)
    a.lab("L_%s_done" % name)

def phase1_F(a):
    SCHED = {1: ["01423567", "10253467", "23016457", "32104756"],
             2: ["02134657", "01324576", "10243567", "10235467"],
             3: ["01324657", "01243576", "12035467", "20134567"],
             5: ["01243567", "10325467", "23014657", "32104576"],
             6: ["01243567", "10325467", "01234657", "10324576"],
             7: ["01234567", "10235476", "01234567", "10235476"],
             8: ["01234567", "10243657", "01234567", "10243657"],
             4: ["02143657", "10325476", "02143657", "10325476"]}
    tabs = SCHED[Opt.sched] if Opt.sched else ["".join(str(c ^ (p & Opt.xmask)) for c in range(8)) for p in range(4)]
    for t_ in tabs: assert sorted(t_) == list("01234567")
    num = [int(t_[::-1], 16) for t_ in tabs]
    def table(a):
        a.e("s_add_u32 s%d, s%d, s%d" % (sA, sG, sHP))
        a.e("s_mov_b32 s%d, 0x%x" % (sXP, num[0]))
        a.e("s_mov_b32 s%d, 0x%x" % (sB, num[2]))
        a.e("s_bitcmp1_b32 s%d, 0" % sA)
        a.e("s_cselect_b32 s%d, 0x%x, s%d" % (sXP, num[1], sXP))
        a.e("s_cselect_b32 s%d, 0x%x, s%d" % (sB, num[3], sB))
        a.e("s_bitcmp1_b32 s%d, 1" % sA)
        a.e("s_cselect_b32 s%d, s%d, s%d" % (sXP, sB, sXP))
        if Opt.ghx:
            a.e("s_bitcmp1_b32 s%d, 3" % sG)
            a.e("s_cselect_b32 s%d, 0x44444444, 0" % sB)
            a.e("s_xor_b32 s%d, s%d, s%d" % (sXP, sXP, sB))
    fo, fw = {"0000": (0, 0), "0101": (0, 1), "0011": (1, 1), "0123": (0, 2)}["".join(t_[0] for t_ in tabs)]
    a.e("s_add_u32 s%d, s%d, s%d" % (sA, sG, sHP))
    a.e("s_bfe_u32 s%d, s%d, 0x%x" % (sCH, sA, fw << 16 | fo))
    if Opt.ghx: a.e("s_lshl2_add_u32 s%d, s%d, s%d" % (sCH, sD, sCH))
    a.e("s_and_b32 s%d, s%d, 0xc00" % (sWH, sWK))
    a.e("v_and_b32 %s, 0xff, v0" % v(vTID))

    def wvoff(a):
        a.e("v_lshrrev_b32 v2, 4, %s" % v(vTID))
        a.e("v_lshrrev_b32 v3, 5, %s" % v(vTID))
        a.e("v_bfi_b32 v3, 3, v2, v3")
        a.e("v_lshlrev_b32 v3, 1, v3")
        a.e("v_xor_b32 v3, v3, %s" % v(vTID))
        a.e("v_and_b32 v3, 15, v3")
        a.e("s_lshl_b32 s%d, s%d, 8" % (sA, sM))
        a.e("v_lshl_add_u32 v3, v3, 4, s%d" % sA)
        a.e("v_mul_u32_u24 v2, 3584, v2")
        a.e("v_add_u32 %s, v2, v3" % v(vDG))
    def qvoff(a):
        a.e("v_lshrrev_b32 v2, 4, %s" % v(vTID))
        a.e("v_and_b32 v2, 2, v2")
        a.e("v_xor_b32 v2, v2, %s" % v(vTID))
        a.e("v_and_b32 v2, 3, v2")
        a.e("s_lshl_b32 s%d, s%d, 6" % (sA, sHP))
        a.e("v_lshl_add_u32 v2, v2, 4, s%d" % sA)
        a.e("v_lshrrev_b32 v3, 2, %s" % v(vTID))
        a.e("v_lshl_add_u32 %s, v3, 10, v2" % v(vDQ))
    def stouch(a):
        if Opt.diag or Opt.probe >= 0: a.e("s_load_dwordx2 %s, s[0:1], 32" % sp(SWO))
        if not Opt.stch: return
        a.e("s_lshr_b32 s%d, s%d, 2" % (sA, sW))
        if Opt.ghx: a.e("s_lshl2_add_u32 s%d, s%d, s%d" % (sA, sD, sA))
        a.e("s_lshl_b32 s%d, s%d, 6" % (sA, sA))
        a.e("s_and_b32 s%d, s%d, 7" % (sB, sG))
        a.e("s_add_u32 s%d, s%d, s%d" % (sA, sA, sB))
        a.e("s_mul_i32 s%d, s%d, 28" % (sA, sA))
        a.e("s_bfe_u32 s%d, s%d, 0x10001" % (sB, sW))
        a.e("s_lshl1_add_u32 s%d, s%d, s%d" % (sB, sM, sB))
        a.e("s_add_u32 s%d, s%d, s%d" % (sA, sA, sB))
        a.e("s_lshl_b32 s%d, s%d, 7" % (sA, sA))
        a.e("s_bitcmp1_b32 s%d, 0" % sW)
        a.e("s_cselect_b64 %s, %s, %s" % (sp(SWKV), sp(SWU), sp(SWG)))
        a.e("s_add_u32 s%d, s%d, s%d" % (SWKV, SWKV, sA))
        a.e("s_addc_u32 s%d, s%d, 0" % (SWKV + 1, SWKV + 1))
        for i in range(Opt.stch):
            a.e("s_load_dwordx2 %s, %s, 0x%x" % (sp(sTMPP), sp(SWKV), 128 * 3584 + i * 8 * 3584 + 60))
    def wsrd(a):
        srd_words(a, [SWG])
        a.e("s_mov_b64 %s, %s" % (sp(SWU + 2), sp(SWG + 2)))

    if Opt.hrot:
        ORDER = [("q", 0)] + [(t_, 2 * h_ + j) for h_ in range(2) for t_, j in (("x", 0), ("x", 1), ("g", 0), ("u", 0), ("g", 1), ("u", 1))]
    else:
        ORDER = [("q", 0)] + [("x", j) for j in range(4)] + [(t_, j) for j in range(4) for t_ in "gu"]
    def block(items):
        out = []; lastc = None; lastw = None
        for c, kind, j in items:
            s = c % 3; pre = []
            if c != lastc:
                if c: pre.append("s_bfe_u32 s%d, s%d, 0x%x" % (sCH, sXP, 0x30000 + 4 * c))
                lastc = c; lastw = None
            fam = "w" if kind in "gu" else kind
            rot = Opt.hrot and fam != "q"
            if lastw is None or lastw[0] != fam or (rot and lastw[1] >> 1 != j >> 1):
                pre.append({"q": "s_lshl_b32 s%d, s%d, 16" % (sOFFW, sCH), "x": "s_lshl_b32 s%d, s%d, 7" % (sOFFW, sCH),
                            "w": "s_mul_i32 s%d, s%d, %d" % (sOFFW, sCH, 64 * 3584)}[fam])
                if rot: pre.append("s_%s_u32 s%d, s%d, s%d" % ("sub" if j >> 1 else "add", sOFFW, sOFFW, sRX if fam == "x" else sRW))
                lastw = (fam, 0)
            if lastw[1] != j:
                pre.append("s_add_u32 s%d, s%d, 0x%x" % (sOFFW, sOFFW, (j - lastw[1]) * (0x8000 if fam == "x" else 16 * 3584)))
                lastw = (fam, j)
            m0c, vo, rs = {"q": (L_WQ + s * 4096, vDQ, SWQ), "x": (L_X + s * 16384 + j * 4096, vDX, SX),
                           "g": (L_G + s * 16384 + j * 4096, vDG, SWG), "u": (L_U + s * 16384 + j * 4096, vDG, SWU)}[kind]
            nt = " nt" if Opt.ntx & (1 if rs == SX else 2) else ""
            out.append(("s_add_u32 m0, s%d, 0x%x\n%s\nbuffer_load_dwordx4 %s, %s, s%d offen%s lds"
                        % ((sM0B + (j >> 1)) if rot else sWH, m0c, "\n".join(pre) or "s_nop 0", v(vo), srd(rs), sOFFW, nt), "c%d" % c))
        return out
    def part(c, role): return [(c, k_, j) for k_, j in ORDER if (k_ in "gu") == (role == "A")]

    def rdsetup(a):
        setup_rd(a)
        a.e("v_lshl_add_u32 %s, v3, 3, v2" % v(vWA))
        a.e("v_lshlrev_b32 %s, 8, %s" % (v(vWA), v(vWA)))
        a.e("v_lshl_add_u32 %s, v4, 3, %s" % (v(vWA), v(vWA)))
        a.e("v_and_b32 v5, 1, v3")
        a.e("v_lshl_add_u32 v2, v5, 2, v2")
        a.e("s_lshl_b32 s%d, s%d, 2" % (sA, sHI))
        a.e("s_and_b32 s%d, s%d, 1" % (sB, sLO))
        a.e("s_lshl_b32 s%d, s%d, 1" % (sB, sB))
        a.e("s_add_u32 s%d, s%d, s%d" % (sA, sA, sB))
        a.e("v_xor_b32 v2, s%d, v2" % sA)
        a.e("v_lshl_add_u32 %s, v2, 5, %s" % (v(vWA), v(vWA)))
        a.e("v_xor_b32 %s, 32, %s" % (v(vWA + 1), v(vWA)))
        a.e("v_add_u32 %s, 0x%x, %s" % (v(vWA + 2), L_U - L_G, v(vWA)))
        a.e("v_add_u32 %s, 0x%x, %s" % (v(vWA + 3), L_U - L_G, v(vWA + 1)))
        a.e("s_lshl_b32 s%d, s%d, 12" % (sA, sLO))
        a.e("s_add_u32 s%d, s%d, 0x%x" % (sA, sA, L_X))
        a.e("v_add_u32 %s, s%d, %s" % (v(vXA), sA, v(vXA)))
        a.e("v_xor_b32 %s, 0x1000, %s" % (v(vXA + 1), v(vXA)))
        a.e("v_xor_b32 %s, 64, %s" % (v(vXA + 2), v(vXA)))
        a.e("v_xor_b32 %s, 64, %s" % (v(vXA + 3), v(vXA + 1)))
        a.e("v_add_u32 %s, 0x%x, %s" % (v(vQA), L_WQ, v(vQA)))

    a.e("s_cmp_ge_u32 s%d, 4" % sW)
    a.e("s_cbranch_scc1 L_setB")
    late = collect(setup_oclr) + collect(setup_ones) + [("; later", None)] + collect(setup_attn)
    words = collect(lambda t: srd_words(t, [SWS, SKV, SDBG, SWD, SWO, SOUT]))
    late = [x for x in late if x not in words]
    oclr = [x for x in late if x[1] == "oclr"]
    if Opt.olate: late = [x for x in late if x[1] != "oclr"]
    else: oclr = []
    words += [("v_mov_b32 %s, 0" % v(r_), None) for r_ in (vGA, vWDV, vFLA, vHA, vOUTA)]
    st = collect(rdsetup) + words + late[:Opt.fillpre]
    cut = late.index(("; later", None)) if Opt.bidle else len(late)
    fills = {"A": late[Opt.fillpre:], "B": late[Opt.fillpre:max(cut, Opt.fillpre)]}
    idleB = late[max(cut, Opt.fillpre):]
    vms = {}
    wsrd(a); wvoff(a)
    a.e("s_waitcnt lgkmcnt(0)")
    a.stamp(2)
    if Opt.spos == 0: stouch(a)
    put(a, block(part(0, "A")))
    a.e("s_branch L_setA")
    vms["A"] = a.vm; a.vm = []
    a.lab("L_setB")
    srd_words(a, [SX]); xvoff(a, vTID)
    a.e("s_waitcnt lgkmcnt(0)")
    a.stamp(2)
    if Opt.spos == 0: stouch(a)
    put(a, block(part(0, "B")[1:]))
    srd_words(a, [SWQ]); qvoff(a)
    put(a, block(part(0, "B")[:1]))
    vms["B"] = a.vm
    for role in "BA":
        a.vm = vms[role]
        if role == "A": a.lab("L_setA")
        if Opt.spos == 1: stouch(a)
        table(a)
        setup_ids(a)
        if role == "A": srd_words(a, [SX, SWQ])
        else: wsrd(a)
        def touches():
            tm = sum(0xff << (8 * i) for i in range(4) if Opt.tch >> i & 1)
            setex = "s_bitcmp1_b32 s%d, 3\ns_cselect_b32 exec_lo, 0, 0x%x\ns_cselect_b32 exec_hi, 0x%x, 0" % (sG, tm, tm) if Opt.ghx \
                    else "s_mov_b32 exec_lo, 0x%x\ns_mov_b32 exec_hi, 0" % tm
            if Opt.tlb & 2 and role == "B":
                a.e("s_and_b32 s%d, s%d, 7" % (sA, sG))
                a.e("v_lshl_add_u32 v2, v0, 3, s%d" % sA)
                a.e("v_mul_u32_u24 v3, 3584, v2")
                a.e("s_and_b32 s%d, s%d, 1" % (sB, sW))
                a.e("s_lshl1_add_u32 s%d, s%d, s%d" % (sA, sM, sB))
                a.e("s_lshl_b32 s%d, s%d, 7" % (sA, sA))
                a.e(setex)
                a.e("s_cmp_ge_u32 s%d, 6" % sW)
                a.e("s_cbranch_scc1 L_tlbu")
                a.e("buffer_load_dword %s, v3, %s, s%d offen" % (v(vPOLL), srd(SWG), sA))
                a.e("s_branch L_tlbe")
                a.lab("L_tlbu")
                a.e("buffer_load_dword %s, v3, %s, s%d offen" % (v(vPOLL), srd(SWU), sA))
                a.lab("L_tlbe")
                a.e("s_mov_b64 exec, -1")
                a.vm.append("tlb")
            if Opt.tlb & 12 and role == "A":
                a.e("s_cmp_lg_u32 s%d, 0" % sW)
                a.e("s_cbranch_scc1 L_tlbx")
                a.e("s_and_b32 s%d, s%d, 7" % (sA, sG))
                a.e("v_lshl_add_u32 v2, v0, 3, s%d" % sA)
                a.e("v_lshlrev_b32 v3, 10, v2")
                a.e("s_lshl_b32 s%d, s%d, 6" % (sA, sHP))
                a.e(setex if Opt.tlb & 4 else "s_mov_b64 exec, 1")
                a.e("buffer_load_dword %s, v3, %s, s%d offen" % (v(vPOLL), srd(SWQ), sA))
                a.e("s_branch L_tlby")
                a.lab("L_tlbx")
                a.e("s_and_b32 s%d, s%d, 3" % (sA, sM))
                a.e("s_lshl2_add_u32 s%d, s%d, s%d" % (sA, sG, sA))
                a.e("s_lshl_b32 s%d, s%d, 15" % (sA, sA))
                a.e("v_lshl_add_u32 v3, v0, 10, s%d" % sA)
                a.e("s_lshr_b32 s%d, s%d, 3" % (sA, sG))
                a.e("s_lshl2_add_u32 s%d, s%d, s%d" % (sA, sA, sW) if Opt.ghx else "s_mov_b32 s%d, s%d" % (sA, sW))
                a.e("s_lshl_b32 s%d, s%d, 7" % (sA, sA))
                a.e("s_bitcmp1_b32 %d, s%d" % (Opt.tch if Opt.tlb & 8 else 0, sW))
                a.e("s_cselect_b32 exec_lo, -1, 1")
                a.e("s_mov_b32 exec_hi, 0")
                a.e("buffer_load_dword %s, v3, %s, s%d offen" % (v(vPOLL), srd(SX), sA))
                a.lab("L_tlby")
                a.e("s_mov_b64 exec, -1")
                a.vm.append("tlb")
        if Opt.tpos == 0: touches()
        if Opt.startbar: a.e("s_barrier")
        npre = min(Opt.npre, 8) if role == "A" else 5
        pn = block(part(1, role)[:npre])
        rest = st + (collect(qvoff) + collect(lambda t: xvoff(t, vTID)) if role == "A" else collect(wvoff))
        gap = len(rest) // (npre + Opt.pregap) + 1
        if Opt.tpos == 2:
            put(a, pn); touches(); npre = 0
        if Opt.tpos == 3 and role == "B":
            put(a, pn); touches(); npre = 0
        for i in range(npre):
            put(a, pn[:1]); pn = pn[1:]
            put(a, rest[:gap]); rest = rest[gap:]
        put(a, rest)
        if Opt.tpos == 1 or (Opt.tpos == 3 and role == "A"): touches()
        a.e("s_mov_b64 vcc, %d" % (-1 if role == "A" else 0))
        if role == "A":
            a.waitvm("c0", lgkm=True)
        else:
            a.e("s_setprio 1")
            a.waitvm("c0", lgkm=True)
            a.e("s_branch L_k0")
        vms[role] = a.vm
    stream = part(1, "A")[min(Opt.npre, 8):] + [(c, k_, j) for c in range(2, 8) for k_, j in ORDER]
    qa = [int(x, 16) for x in Opt.qa]; qb = [int(x, 16) for x in Opt.qb]
    def take(n, cmax):
        m = 0
        while m < n and m < len(stream) and stream[m][0] <= cmax: m += 1
        r_ = stream[:m]; del stream[:m]
        return block(r_)
    a.lab("L_k0")
    a.vm = vms["A"]
    ool = Asm()
    def dmablock(name, role, items, wait=None):
        a.e("s_cbranch_vcc%s L_%s" % ("nz" if role == "A" else "z", name))
        if wait: a.waitvm(wait, lgkm=True)
        a.lab("L_%s_r" % name)
        ool.lab("L_%s" % name)
        ool.vm = a.vm if role == "A" else vms["B"]
        for it_ in items:
            put(ool, [it_])
            fp = Opt.fillper if role == "A" or not Opt.bidle else 2
            put(ool, fills[role][:fp]); fills[role] = fills[role][fp:]
        if name in ("d7", "e7"): put(ool, fills[role]); fills[role] = []
        if wait: ool.waitvm(wait, lgkm=True)
        if role == "B": vms["B"] = ool.vm
        ool.e("s_branch L_%s_r" % name)
    a.ool = ool.l

    def fr(k):
        b = vF1 + 36 * (k % 2)
        return dict(x=b, w=b + 16, q=b + 32)
    def reads(k):
        c, s = divmod(k, 2); f = fr(k); sl = c % 3
        wo = sl * 16384 + s * 8192
        W = lambda i: [rdtr(f['w'] + 4 * i, vWA + i, wo), rdtr(f['w'] + 4 * i + 2, vWA + i, wo + 1024)]
        X = [rd128(f['x'] + 4 * b, vXA + 2 * s + (b >> 1), sl * 16384 + (b & 1) * 2048) for b in range(4)]
        return W(0) + X + W(2) + W(1) + W(3) + [rdtr(f['q'], vQA, sl * 4096 + s * 2048), rdtr(f['q'] + 2, vQA, sl * 4096 + s * 2048 + 256)]
    a.e("s_barrier")
    a.stamp(3)
    if Opt.kdiag or Opt.probe >= 18:
        kstamp(a, 2)
        a.e("s_waitcnt lgkmcnt(0)")
    for r in reads(0): a.e(r)
    if qa[0]: dmablock("d2", "A", take(qa[0], 2))
    for k in range(16):
        c, s = divmod(k, 2); f = fr(k)
        z = lambda x: None if k == 0 else x
        mf = []
        for n_, i in enumerate((0, 2, 1, 3)):
            for b in (range(4) if n_ % 2 == 0 else range(3, -1, -1)):
                d = vACC + 16 * b + 4 * i
                mf.append(mfma16(d, f['w'] + 4 * i, f['x'] + 4 * b, z(d)))
        for b in range(2): mf.append(mfma16(vAQ + 4 * b, f['q'], f['x'] + 4 * b, z(vAQ + 4 * b)))
        rds = reads(k + 1) if k < 15 else []
        if s == 0:
            a.e("s_waitcnt lgkmcnt(6)")
            for i, m in enumerate(mf):
                if i == 8: a.e("s_waitcnt lgkmcnt(8)")
                a.e(m)
                if i < len(rds): a.e(rds[i])
            continue
        a.e("s_waitcnt lgkmcnt(8)")
        for m in mf[:4]: a.e(m)
        if c <= 5:
            dmablock("e%d" % (c + 2), "B", take(qb[c], c + 2), "c%d" % (c + 1))
            assert not any(x[0] <= c + 1 for x in stream)
        if c == 7:
            a.e("s_waitcnt lgkmcnt(0)")
        elif c == 6:
            a.e("s_waitcnt lgkmcnt(0)")
            a.e("s_cbranch_vccz L_st7")
            a.e("s_setprio 1")
            a.e("s_waitcnt vmcnt(0)")
            a.e("s_barrier")
            a.lab("L_st7")
        else:
            a.e("s_barrier")
        if c < 7 and ((Opt.kdiag == 1 and Opt.diag) or Opt.probe == 21 + c):
            kstamp(a, 3 + c)
            a.e("s_waitcnt lgkmcnt(0)")
        if c + 3 < 8:
            items = take(qa[c + 1], c + 3)
            dmablock("d%d" % (c + 3), "A", items)
        for i, m in enumerate(mf[4:]):
            a.e(m)
            if i < len(rds): a.e(rds[i])
        if k == 11: assert not stream and not fills["A"] and not fills["B"]
        if k == 11:
            a.e("s_cbranch_vccnz L_st6")
            a.e("s_setprio 0")
            nm = next((i for i, x in enumerate(idleB) if "0xdddd" in x[0]), 0)
            a.e("s_cmp_lg_u32 s%d, 4" % sW)
            a.e("s_cbranch_scc1 L_nopoll")
            a.e("buffer_load_dword %s, off, %s, 0 sc1" % (v(vPOLL), srd(SDBG)))
            a.lab("L_nopoll")
            put(a, idleB[:nm]); idleB = idleB[nm:]
            a.wait0()
            spin_counter(a, "kvf", True, 4)
            a.e("s_barrier")
            put(a, kv_first_loads(a, True) + oclr + idleB)
            a.lab("L_st6")
    a.kvA = (kv_first_loads(a) + oclr)[2:]
    a.stamp(4)

def phase1_L(a):
    a.lab("L_light")
    a.vm = []
    a.e("s_waitcnt lgkmcnt(0)")
    ptr_loads(a, ((SWKV, 16), (SWV, 24), (SGATE, 72), (SWO, 32)))
    srd_words(a, [SWKV, SWV, SGATE, SX])
    xvoff(a, 0)
    a.e("v_and_b32 v2, 63, v0")
    a.e("v_lshlrev_b32 %s, 4, v2" % v(vL16))
    a.e("s_sub_u32 s%d, s%d, 14" % (sCNT, sM))
    a.e("s_lshl_b32 s%d, s%d, 16" % (sOLD, sCNT))
    a.e("s_lshl_b32 s%d, s%d, 13" % (sHST, sCNT))
    a.e("s_add_u32 s%d, s%d, s%d" % (sWH, sHST, sWK))
    a.e("s_xor_b32 s%d, s%d, 0x2000" % (sHST, sHST))
    a.e("s_add_u32 s%d, s%d, 0x2000" % (sA, sWK))
    a.e("s_waitcnt lgkmcnt(0)")
    a.stamp(2)
    def xdma(c, base, so):
        a.vmop("s_add_u32 m0, s%d, 0x%x\ns_nop 0\nbuffer_load_dwordx4 %s, %s, s%d offen offset:%d lds"
               % (base, LL_X + c * 16384 - c * 128, v(vDX), srd(SX), so, c * 128), "c%d" % c)
    def wdma(u):
        for t, rs in enumerate((SWKV, SWV)):
            a.vmop("s_add_u32 m0, s%d, 0x%x\ns_nop 0\nbuffer_load_dwordx4 %s, %s, s%d offen lds"
                   % (sWK, LL_W + t * 16384 + u * 8192, v(vL16), srd(rs), sA if u else sWK), "w")
    wdma(0)
    a.vmop("s_mov_b32 m0, s%d\ns_nop 0\nbuffer_load_dwordx4 %s, %s, 0 offen lds" % (sHST, v(vL16), srd(SGATE)), "w")
    for c in range(8):
        if c == 4: wdma(1)
        xdma(c, sWH, sOLD)
        if c in (1, 3, 5): a.e("s_barrier")
    setup_ids(a)
    srd_words(a, [SWQ])
    setup_rd(a)
    a.e("v_lshrrev_b32 v3, 5, v0")
    a.e("v_bfrev_b32 v5, v4")
    a.e("v_lshrrev_b32 v5, 30, v5")
    a.e("s_cmp_ge_u32 s%d, 2" % sLO)
    a.e("s_cselect_b64 vcc, -1, 0")
    a.e("v_cndmask_b32 v4, v5, v4, vcc")
    a.e("v_lshl_add_u32 %s, v3, 3, v2" % v(vWA))
    a.e("v_lshlrev_b32 %s, 5, %s" % (v(vWA), v(vWA)))
    a.e("v_lshl_add_u32 %s, v4, 3, %s" % (v(vWA), v(vWA)))
    a.e("s_lshr_b32 s%d, s%d, 1" % (sA, sLO))
    a.e("s_lshl_b32 s%d, s%d, 14" % (sA, sA))
    a.e("s_add_u32 s%d, s%d, 0x%x" % (sA, sA, LL_W))
    a.e("v_add_u32 %s, s%d, %s" % (v(vWA), sA, v(vWA)))
    a.e("v_lshl_add_u32 %s, v3, 4, s%d" % (v(vWA + 1), sHST))
    a.e("s_and_b32 s%d, s%d, 1" % (sA, sLO))
    a.e("s_lshl_b32 s%d, s%d, 1" % (sB, sCNT))
    a.e("s_add_u32 s%d, s%d, s%d" % (sCNT, sA, sB))
    a.e("s_lshl_b32 s%d, s%d, 12" % (sA, sCNT))
    a.e("v_and_b32 v2, 31, v0")
    a.e("v_lshrrev_b32 v4, 1, v0")
    a.e("v_lshlrev_b32 v5, 1, v0")
    a.e("v_bfi_b32 v4, 4, v4, v5")
    a.e("v_bfi_b32 v4, 12, v4, v2")
    a.e("v_cndmask_b32 v2, v2, v4, vcc")
    a.e("v_bfe_u32 v4, v2, 1, 3")
    a.e("v_xor_b32 v4, v4, v3")
    a.e("v_lshlrev_b32 v4, 4, v4")
    a.e("v_lshl_add_u32 v4, v2, 7, v4")
    a.e("v_add_u32 %s, s%d, v4" % (v(vLX), sA))
    for s in range(1, 4): a.e("v_xor_b32 %s, %d, %s" % (v(vLX + s), 32 * s, v(vLX)))
    for s in range(4): a.e("v_add_u32 %s, 0x10000, %s" % (v(vLX + 4 + s), v(vLX + s)))
    a.e("s_waitcnt lgkmcnt(0)")
    setup_oclr(a)
    vm0 = list(a.vm)
    a.e("s_cmp_lg_u32 s%d, 0" % sHI)
    a.e("s_cbranch_scc1 L_lB")
    a.e("s_not_b64 %s, %s" % (sp(sTMPP), sp(sVM)))
    a.e("s_cmp_ge_u32 s%d, 2" % sLO)
    a.e("s_cbranch_scc1 L_lV")
    def chain(kind):
        a.vm = list(vm0)
        def fr(k):
            b = vFR + 8 * (k % 4)
            return b, b + 4
        def reads(k):
            c, s = divmod(k, 4); x, w = fr(k)
            r = [rd128(x, vLX + s + 4 * (c >> 2), (c & 3) * 16384), rdtr(w, vWA, k * 512), rdtr(w + 2, vWA, k * 512 + 128)]
            if kind == "K":
                r += ["s_mov_b64 exec, %s" % sp(sTMPP), rd128(w, vWA + 1, k * 32), "s_mov_b64 exec, -1"]
            return r
        for q in range(4):
            a.waitvm("c%d" % (2 * q + 1))
            a.e("s_barrier")
            nr = 4 if kind == "K" else 3
            for k in range(8 * q, 8 * q + 2):
                for r in reads(k): a.e(r)
            for k in range(8 * q, 8 * q + 8):
                if k + 2 < 8 * q + 8:
                    for r in reads(k + 2): a.e(r)
                left = min(2, 8 * q + 7 - k)
                a.e("s_waitcnt lgkmcnt(%d)" % (left * nr))
                x, w = fr(k)
                cc = None if k == 0 else vACC
                a.e(mfma(vACC, w, x, cc) if kind == "K" else mfma(vACC, x, w, cc))
        a.e("s_lshl_b32 s%d, s%d, 2" % (sA, sG))
        a.e("s_add_u32 s%d, s%d, s%d" % (sA, sA, sCNT))
        a.e("s_nop 12")
        if kind == "K":
            a.e("s_mov_b32 s%d, 0x%x" % (sC, f2u(0.25 * math.log2(math.e))))
            for i in range(8): a.e("v_mul_f32 %s, s%d, %s" % (v(vACC + i), sC, v(vACC + i)))
            a.e("v_mul_f32 %s, 0x%x, %s" % (v(vACC + 8), f2u(-math.log2(math.e)), v(vACC + 8)))
            a.e("v_exp_f32 %s, %s" % (v(vACC + 8), v(vACC + 8)))
            for i in range(4): a.e("v_cvt_pk_bf16_f32 %s, %s, %s" % (v(vFR + i), v(vACC + 2 * i), v(vACC + 2 * i + 1)))
            a.e("v_add_f32 %s, 1.0, %s" % (v(vACC + 8), v(vACC + 8)))
            a.e("v_rcp_f32 %s, %s" % (v(vACC + 8), v(vACC + 8)))
            a.e("s_add_u32 s%d, s%d, 63" % (sB, sA))
            a.e("s_and_b32 s%d, s%d, 63" % (sB, sB))
            a.e("s_lshl_b32 s%d, s%d, 11" % (sB, sB))
            a.e("buffer_store_dwordx4 %s, %s, %s, s%d offen sc1" % (v(vFR, 4), v(vL16), srd(SKV), sB))
            a.e("s_lshl_b32 s%d, s%d, 7" % (sB, sA))
            a.e("s_add_u32 s%d, s%d, 0x%x" % (sB, sB, WS_G))
            a.e("s_mov_b32 exec_hi, 0")
            a.e("buffer_store_dword %s, %s, %s, s%d offen sc1" % (v(vACC + 8), v(vGA), srd(SWS), sB))
            a.e("s_mov_b64 exec, -1")
        else:
            for i in range(8): a.e("v_cvt_pk_bf16_f32 %s, %s, %s" % (v(vFR + i), v(vACC + 2 * i), v(vACC + 2 * i + 1)))
            a.e("v_bfe_u32 v2, v0, 4, 1")
            a.e("v_add_u32 v2, s%d, v2" % sA)
            a.e("v_and_b32 v2, 63, v2")
            a.e("v_lshl_add_u32 v2, v2, 11, %s" % v(vL16))
            for i in range(4): a.e("v_cndmask_b32 %s, %s, %s, %s" % (v(vFR + i), v(vFR + 4 + i), v(vFR + i), sp(sVM)))
            a.e("buffer_store_dwordx4 %s, v2, %s, 0 offen offset:1024 sc1" % (v(vFR, 4), srd(SKV)))
        a.e("s_branch L_lJ")
    chain("K")
    a.lab("L_lV")
    chain("V")
    a.lab("L_lB")
    a.vm = list(vm0)
    a.e("s_cmp_lg_u32 s%d, 14" % sM)
    a.e("s_cbranch_scc1 L_nozf")
    a.e("s_cmp_lg_u32 s%d, 4" % sW)
    a.e("s_cbranch_scc1 L_nozf")
    a.e("v_lshlrev_b32 v2, 7, v0")
    a.e("s_lshl_b32 s%d, s%d, 11" % (sA, sG))
    a.e("s_add_u32 s%d, s%d, 0x%x" % (sA, sA, WS_HFLAG))
    a.e("s_mov_b64 exec, 0xffff")
    a.e("buffer_store_dword %s, v2, %s, s%d offen sc1" % (v(vZERO), srd(SWS), sA))
    a.e("s_mov_b64 exec, -1")
    a.lab("L_nozf")
    for q in range(4):
        a.waitvm("c%d" % (2 * q + 1))
        a.e("s_barrier")
    a.lab("L_lJ")
    a.e("v_lshrrev_b32 v3, 2, v0")
    a.e("v_lshlrev_b32 v3, 10, v3")
    a.e("v_lshrrev_b32 v4, 5, v0")
    a.e("v_lshlrev_b32 v4, 1, v4")
    a.e("v_xor_b32 v4, v4, v0")
    a.e("v_and_b32 v4, 3, v4")
    a.e("v_lshl_add_u32 v3, v4, 4, v3")
    a.e("s_lshl_b32 s%d, s%d, 14" % (sA, sW))
    a.e("s_lshl_b32 s%d, s%d, 6" % (sB, sHP))
    a.e("s_add_u32 s%d, s%d, s%d" % (sA, sA, sB))
    a.e("v_add_u32 %s, s%d, v3" % (v(vDQ), sA))
    a.e("s_xor_b32 s%d, s%d, 0x2000" % (sWH, sWH))
    a.e("s_xor_b32 s%d, s%d, 0x10000" % (sOLD, sOLD))
    a.wait0(lgkm=True)
    a.e("s_barrier")
    a.e("s_cmp_lg_u32 s%d, 0" % sW)
    a.e("s_cbranch_scc1 L_noat")
    a.e("s_mov_b64 exec, 1")
    a.e("buffer_atomic_add %s, off, %s, 0 sc1" % (v(vONE), srd(SDBG)))
    a.e("s_mov_b64 exec, -1")
    a.lab("L_noat")
    a.stamp(3)
    for c in range(8): xdma(c, sWH, sOLD)
    for p in range(4):
        a.e("s_add_u32 m0, s%d, 0x%x" % (sWK, LL_WQ + p * 8192))
        a.e("s_mov_b32 s%d, 0x%x" % (sA, p * 128 * 1024))
        a.e("buffer_load_dwordx4 %s, %s, s%d offen lds" % (v(vDQ), srd(SWQ), sA))
    setup_ones(a)
    setup_attn(a)
    if Opt.touch & 2:
        a.e("s_lshl_b32 s%d, s%d, 1" % (sA, sG))
        a.e("s_add_u32 s%d, s%d, s%d" % (sA, sA, sM))
        a.e("s_sub_u32 s%d, s%d, 14" % (sA, sA))
        a.e("s_lshl_b32 s%d, s%d, 3" % (sA, sA))
        a.e("s_add_u32 s%d, s%d, s%d" % (sA, sA, sW))
        a.e("v_lshlrev_b32 v2, 15, v0")
        a.e("s_lshl_b32 s%d, s%d, 7" % (sA, sA))
        a.e("buffer_load_dword %s, v2, %s, s%d offen" % (v(vPOLL), srd(SWO), sA))
        a.e("buffer_load_dword %s, v2, %s, s%d offen" % (v(vPOLL), srd(SWD), sA))
    a.e("s_lshl_b32 s%d, s%d, 12" % (sA, sLO))
    a.e("v_add_u32 %s, s%d, %s" % (v(vXA), sA, v(vXA)))
    a.e("v_xor_b32 %s, 64, %s" % (v(vXA + 1), v(vXA)))
    a.e("v_add_u32 %s, 0x10000, %s" % (v(vXA + 2), v(vXA)))
    a.e("v_add_u32 %s, 0x10000, %s" % (v(vXA + 3), v(vXA + 1)))
    a.e("v_add_u32 %s, 0x%x, %s" % (v(vQA), LL_WQ, v(vQA)))
    a.e("s_waitcnt vmcnt(%d)" % (2 if Opt.touch & 2 else 0))
    a.e("s_barrier")
    def fr(k): return vFR + 12 * (k % 3)
    def reads(k):
        c, s = divmod(k, 2); f = fr(k)
        return [rd128(f + 4 * b, vXA + s + 2 * (c >> 2), (c & 3) * 16384 + b * 2048) for b in range(2)] + \
               [rdtr(f + 8, vQA, k * 2048), rdtr(f + 10, vQA, k * 2048 + 256)]
    for k in range(2):
        for r in reads(k): a.e(r)
    for k in range(16):
        a.e("s_waitcnt lgkmcnt(%d)" % (4 * min(1, 15 - k)))
        for b in range(2): a.e(mfma16(vAQ + 4 * b, fr(k) + 8, fr(k) + 4 * b, None if k == 0 else vAQ + 4 * b))
        if k + 2 < 16:
            for r in reads(k + 2): a.e(r)
    spin_counter(a, "kvl", False)
    a.e("s_barrier")
    for s, t in kv_first_loads(a): a.e(s)
    a.wait0()
    a.stamp(4)
    a.e("s_branch L_join")

def gelu_tile(a, ti, scalar=False):
    acc = vACC + 16 * ti
    t = vFR
    o = vFR + 8 + 4 * ti
    pk = lambda r: v(r, 2)
    if scalar:
        for i in range(8): a.e("v_mul_f32 %s, %s, %s" % (v(t + i), v(acc + i), v(acc + i)))
        for i in range(8): a.e("v_fma_f32 %s, %s, %s, %s" % (v(t + i), v(t + i), v(vC0 + 1), v(vC0)))
        for i in range(8): a.e("v_mul_f32 %s, %s, %s" % (v(t + i), v(t + i), v(acc + i)))
        for i in range(8): a.e("v_exp_f32 %s, %s" % (v(t + i), v(t + i)))
        for i in range(8): a.e("v_add_f32 %s, 1.0, %s" % (v(t + i), v(t + i)))
        for i in range(8): a.e("v_rcp_f32 %s, %s" % (v(t + i), v(t + i)))
        for i in range(8): a.e("v_mul_f32 %s, %s, %s" % (v(acc + i), v(acc + i), v(acc + 8 + i)))
        for i in range(8): a.e("v_mul_f32 %s, %s, %s" % (v(acc + i), v(acc + i), v(t + i)))
    R4, R8 = (range(0), range(0)) if scalar else (range(4), range(8))
    for i in R4: a.e("v_pk_mul_f32 %s, %s, %s" % (pk(t + 2 * i), pk(acc + 2 * i), pk(acc + 2 * i)))
    for i in R4: a.e("v_pk_fma_f32 %s, %s, %s, %s op_sel:[0,1,0] op_sel_hi:[1,1,0]" % (pk(t + 2 * i), pk(t + 2 * i), pk(vC0), pk(vC0)))
    for i in R4: a.e("v_pk_mul_f32 %s, %s, %s" % (pk(t + 2 * i), pk(t + 2 * i), pk(acc + 2 * i)))
    for i in R8: a.e("v_exp_f32 %s, %s" % (v(t + i), v(t + i)))
    for i in R4: a.e("v_pk_add_f32 %s, %s, 1.0 op_sel_hi:[1,0]" % (pk(t + 2 * i), pk(t + 2 * i)))
    for i in R8: a.e("v_rcp_f32 %s, %s" % (v(t + i), v(t + i)))
    for i in R4: a.e("v_pk_mul_f32 %s, %s, %s" % (pk(acc + 2 * i), pk(acc + 2 * i), pk(acc + 8 + 2 * i)))
    for i in R4: a.e("v_pk_mul_f32 %s, %s, %s" % (pk(acc + 2 * i), pk(acc + 2 * i), pk(t + 2 * i)))
    for i in range(4): a.e("v_cvt_pk_bf16_f32 %s, %s, %s" % (v(o + i), v(acc + 2 * i), v(acc + 2 * i + 1)))
    a.vmop("buffer_store_dwordx4 %s, %s, %s, s%d offen offset:%d sc1" % (v(o, 4), v(vHA), srd(SWS), sHST2 if ti >> 1 else sHST, (ti & 1) * 256), "hst")

def Yseg(hset, toggle=False, first=False, extra=False, last=False):
    out = []
    for t in range(2):
        pos = [int(x, 17) for x in (Opt.ypos0 if hset is None else Opt.ypos2 if extra else Opt.ypos1)]
        if last and t == 1: pos = [pos[0], 0, 11, pos[1]]
        S, Sn = vS + 16 * t, vS + 16 * (1 - t)
        K, V0, V1 = vKF + 4 * t, vV + 8 * t, vV + 8 * t + 4
        for e in range(1, 17):
            out.append("v_exp_f32 %s, %s" % (v(S + e - 1), v(S + e - 1)))
            if e == pos[0] and not (first and t == 0): out.append(smfmac(vO, V1, Sn + 8))
            if e == pos[1]: out.append(mfma(Sn, K, vQ, None))
            if e == pos[2]: out.append(smfmac(vO, V0, S))
            if hset is not None:
                if e == 13 and t == 1 and toggle:
                    out.append("v_xor_b32 %s, 0x4000, %s" % (v(vKVB), v(vKVB)))
                if e == pos[3]: out.append(mfma(vD + 16 * t, vWF + 4 * t, vH + 4 * hset, vD + 16 * t))
                if extra and e == pos[4]: out.append(mfma(vD + 16 * t, vFR + 16 + 4 * t, vH + 16 + 4 * hset, vD + 16 * t))
    return out

def kv_reads(off, vKVA=vKVA):
    r = [rd128(vKF, vKVA, off), rd128(vKF + 4, vKVA, off + 2048), "s_mov_b64 exec, %s" % sp(sVM)]
    for t in range(2):
        r += [rd128(vV + 8 * t, vKVA, off + 2048 * t + 1024), rd128(vV + 8 * t + 4, vKVA, off + 2048 * t + 1280)]
    r.append("s_mov_b64 exec, -1")
    return r
def wd_reads(dst, addr, off):
    r = []
    for c in range(2):
        r += [rdtr(dst + 4 * c, addr, off + 512 * c), rdtr(dst + 4 * c + 2, addr, off + 512 * c + 1024)]
    return r

def hord(): return [0, 2, 4, 6, 1, 3, 5, 7] if Opt.hord else list(range(8))
def wdrow(sg): return (32 * (sg >> 1) + 8 * (sg & 1)) * 1024

def attention(a, role, pre0=None):
    A = role == "A"
    def kvdma(u):
        a.vmop("s_add_u32 m0, s%d, 0x%x\ns_add_u32 s%d, s%d, 0x%x\nbuffer_load_dwordx4 %s, %s, s%d offen sc1 lds"
               % (sWK, L_KV + (u % 4) * 8192, sA, sWK, u * 8192, v(vL16), srd(SKV), sA), "kv%d" % u)
    def wddma(sg):
        a.vmop("s_add_u32 m0, s%d, 0x%x\ns_add_u32 s%d, s%d, 0x%x\nbuffer_load_dwordx4 %s, %s, s%d offen lds"
               % (sWK, L_WD + (sg % 4 if sg < 23 or sg == 27 else sg - 19) * 8192, sA, sWDOFF, wdrow(sg), v(vWDV), srd(SWD), sA), "wd%d" % sg)
    def wodma(j):
        a.vmop("s_add_u32 m0, s%d, 0x%x\ns_add_u32 s%d, s%d, 0x%x\nbuffer_load_dwordx4 %s, %s, s%d offen lds"
               % (sWK, L_WO + (7 - j) * 8192, sA, sB, hord()[j] * 16384, v(vWDV), srd(SWO), sA), "wo")
    def hload(sg, dst):
        a.vmop("s_add_u32 s%d, s%d, 0x%x\nbuffer_load_dwordx4 %s, %s, %s, s%d offen sc1"
               % (sA, sHOFF, sg * 1024, v(dst, 4), v(vL16), srd(SWS), sA), "h%d" % sg)
    for n in range(12):
        if not A and n == 0: a.e("s_barrier")
        if n % 2 == 1: astamp(a, 2 + n // 2)
        if n == Opt.pcyc: a.e("s_memtime %s" % sp(sSTAMP + 6))
        tags = []
        if A and n % 2 == 1: tags.append("kv%d" % ((n + 1) // 2))
        if not A and n % 2 == 0: tags.append("kv%d" % ((n + 2) // 2))
        if n == Opt.hpub - (0 if A else 1): tags.append("hst")
        if n == 6: tags.append("wo")
        if n == 9: tags.append("wd27")
        if n == 11: tags.append("wd0")
        if n == 9 and A:
            a.e("s_cmp_lg_u32 s%d, 0" % sW)
            a.e("s_cbranch_scc1 L_hf_done")
            a.e("s_mov_b32 s%d, 0x4000" % sB)
            a.e("s_waitcnt vmcnt(0)")
            a.lab("L_hf_chk")
            a.e("v_cmp_ne_u32 vcc, 1, %s" % v(vPOLL))
            a.e("s_cbranch_vccz L_hf_done")
            a.e("s_sleep 2")
            a.e("buffer_load_dword %s, %s, %s, 0 offen sc1" % (v(vPOLL), v(vFLA), srd(SWS)))
            a.e("s_sub_u32 s%d, s%d, 1" % (sB, sB))
            a.e("s_cmp_lg_u32 s%d, 0" % sB)
            a.e("s_waitcnt vmcnt(0)")
            a.e("s_cbranch_scc1 L_hf_chk")
            a.lab("L_hf_done")
        a.waitvm(tags)
        if n == 5 and Opt.diag == 3 and A:
            a.e("v_mov_b32 v2, s%d" % sSTAMP)
            a.e("s_lshl_b32 s%d, s2, 3" % sA)
            a.e("s_add_u32 s%d, s%d, s%d" % (sA, sA, sW))
            a.e("s_lshl_b32 s%d, s%d, 7" % (sA, sA))
            a.e("s_add_u32 s%d, s%d, 0x%x" % (sA, sA, WS_STAMP))
            a.e("s_mov_b64 exec, 1")
            a.vmop("buffer_store_dword v2, off, %s, s%d offset:12 sc1" % (srd(SWS), sA), "st")
            a.e("s_mov_b64 exec, -1")
        if n == Opt.hpub and not A:
            a.e("s_cmp_ge_u32 s%d, 14" % sM)
            a.e("s_cbranch_scc1 L_nohf")
            a.e("s_cmp_lg_u32 s%d, 4" % sW)
            a.e("s_cbranch_scc1 L_nohf")
            a.e("s_lshl_b32 s%d, s%d, 4" % (sA, sG))
            a.e("s_add_u32 s%d, s%d, s%d" % (sA, sA, sM))
            a.e("s_lshl_b32 s%d, s%d, 7" % (sA, sA))
            a.e("s_add_u32 s%d, s%d, 0x%x" % (sA, sA, WS_HFLAG))
            a.e("s_mov_b64 exec, 1")
            a.e("buffer_store_dword %s, off, %s, s%d sc1" % (v(vONE), srd(SWS), sA))
            a.e("s_mov_b64 exec, -1")
            a.lab("L_nohf")
        for r in kv_reads((n % 8) * 4096): a.e(r)
        if n == 8 and A:
            a.e("s_cmp_lg_u32 s%d, 0" % sW)
            a.e("s_cbranch_scc1 L_hf_nol")
            a.e("buffer_load_dword %s, %s, %s, 0 offen sc1" % (v(vPOLL), v(vFLA), srd(SWS)))
            a.lab("L_hf_nol")
        if n == 0:
            if A or Opt.hpub == 3:
                kvdma(2); kvdma(3)
            a.e("s_mov_b32 s%d, s%d" % (sC, sKQ))
            a.e("s_mul_i32 s%d, s%d, %d" % (sWDOFF, sC, 448 * 1024))
            a.e("s_and_b32 s%d, s%d, 1" % (sB, sW))
            a.e("s_lshl_b32 s%d, s%d, 14" % (sA, sB))
            a.e("s_add_u32 s%d, s%d, s%d" % (sWDOFF, sWDOFF, sA))
            a.e("s_lshl_b32 s%d, s%d, 1" % (sA, sT))
            a.e("s_add_u32 s%d, s%d, s%d" % (sA, sA, sB))
            a.e("s_mul_i32 s%d, s%d, 112" % (sA, sA))
            a.e("s_mul_i32 s%d, s%d, 28" % (sB, sC))
            a.e("s_add_u32 s%d, s%d, s%d" % (sA, sA, sB))
            a.e("s_lshl_b32 s%d, s%d, 10" % (sA, sA))
            a.e("s_add_u32 s%d, s%d, 0x%x" % (sHOFF, sA, WS_HF))
        if (A and n % 2 == 1 and n >= 3): kvdma((n + 5) // 2)
        if (not A and n % 2 == 0 and n >= 2): kvdma((n + 6) // 2)
        if 1 <= n <= 4:
            a.e("s_lshl_b32 s%d, s%d, 17" % (sB, sKQ))
            a.e("s_and_b32 s%d, s%d, 1" % (sC, sW))
            a.e("s_lshl_b32 s%d, s%d, 13" % (sC, sC))
            a.e("s_add_u32 s%d, s%d, s%d" % (sB, sB, sC))
            for j in (2 * n - 2, 2 * n - 1): wodma(j)
        for sg in {5: (27, 23, 24), 6: (25, 26, 0), 7: (1, 2)}.get(n, ()): wddma(sg)
        if n == 10:
            for r in wd_reads(vWX, vWDA, 3 * 8192): a.e(r)
        for j in ({7: (0,), 8: (1, 2), 9: (3, 4)} if A else {7: (0, 1), 8: (2, 3), 9: (4,)}).get(n, ()):
            for r in wd_reads(WOF[j], vWOA, (7 - j) * 8192): a.e(r)
        hs = {10: (0, 1, 23, 24), 11: (2, 25, 26, 27)} if A else {9: (0, 1, 23), 10: (2, 24), 11: (25, 26, 27)}
        if Opt.hlate: hs = {10: (0, 1), 11: (2,)} if A else {9: (0,), 10: (1,), 11: (2,)}
        for sg in hs.get(n, ()): hload(sg, vH + 4 * sg if sg < 4 else vHX if sg == 27 else vH + 4 * (sg - 19))
        if n == 11:
            a.e("s_add_u32 s%d, s%d, 0x%x" % (sHOFF, sHOFF, 3 * 1024))
            a.e("s_add_u32 s%d, s%d, 0x%x" % (sWDOFF, sWDOFF, wdrow(3)))
            a.e("s_add_u32 s%d, s%d, 0x%x" % (sKVOFF, sWK, 9 * 8192))
            a.e("s_mov_b32 s%d, 4" % sCNT)
            a.e("s_add_u32 s%d, s%d, 0x1000" % (sOLD2, sOLD))
            a.e("s_mov_b32 s%d, 0x%x" % (sLO_, f2u(2.0 ** -16)))
            a.e("s_mov_b32 s%d, 0x%x" % (sRNG, f2u(2.0 ** 100) - f2u(2.0 ** -16)))
        if n == 0 and pre0:
            pre0()
            a.stamp(5)
        a.e("s_waitcnt lgkmcnt(0)")
        if n == 0:
            if A: a.e("s_barrier")
            for x in Yseg(None, first=True): a.e(x)
            if not A: a.e("s_barrier")
            continue
        a.e("s_call_b64 %s, L_Y%s" % (sp(sRET), role))
        if n == 1:
            a.e("s_branch L_X1%s" % role)
            a.lab("L_Y%s" % role)
            if A: a.e("s_barrier")
            for x in Yseg(None): a.e(x)
            if not A: a.e("s_barrier")
            a.e("s_setpc_b64 %s" % sp(sRET))
            a.lab("L_X1%s" % role)
    assert not (Opt.hlate and Opt.nx)
    hl = {28: (27, 23), 29: (24, 25), 30: (26,)} if Opt.hlate else {}
    vm = list(a.vm); need = [63] * 8
    for n in range(12, 32):
        p = n % 4; q = p + (4 if n >= 28 else 0)
        tags = ["wd%d" % (n - 11), "h%d" % (n - 12)]
        if (p % 2 == 1) == A: tags.append("kv%d" % ((n + (1 if A else 2)) // 2))
        idx = [i for i, t in enumerate(vm) if t in tags]
        if idx: need[q] = min(need[q], len(vm) - 1 - max(idx))
        vm.append("wd%d" % (n - 9))
        vm.append("h%d" % (n - 9))
        if (p % 2 == 1) == A and n < 28: vm.append("kv%d" % ((n + (5 if A else 6)) // 2))
        vm += ["hx"] * len(hl.get(n, ()))
    a.lab("L_loop%s" % role)
    for q in range(8):
        p = q % 4; fin = q >= 4
        kv = (p % 2 == 1) == A and not fin
        if q == 0 and Opt.diag and Opt.kdiag == 2:
            a.e("s_cmp_lg_u32 s%d, 3" % sCNT)
            a.e("s_cbranch_scc1 L_nst%s" % role)
            astamp(a, 8)
            a.lab("L_nst%s" % role)
        a.e("s_waitcnt vmcnt(%d)" % need[q])
        for i, r in enumerate(kv_reads(p * 4096, vKVB)):
            if not (q == 7 and i == 1): a.e(r)
        if q <= 8 - Opt.nd:
            for r in wd_reads(vWF, vWDA, p * 8192): a.e(r)
        if fin and p < Opt.nx:
            for r in wd_reads(vFR + 16, vWDA, (4 + p) * 8192): a.e(r)
        if q == 7:
            for r in wd_reads(vFR, vWDA, (4 + Opt.nx) * 8192): a.e(r)
        a.e("s_add_u32 m0, s%d, 0x%x" % (sWK, L_WD + ((p + 3) % 4) * 8192))
        a.e("s_and_b32 s%d, s%d, 0x7fff" % (sA, sKVOFF))
        a.e("buffer_load_dwordx4 %s, %s, s%d offen lds" % (v(vWDV), srd(SWD), sWDOFF))
        a.e("s_add_u32 s%d, s%d, 0x%x" % (sWDOFF, sWDOFF, 0x2000 if p & 1 else 0x6000))
        a.e("buffer_load_dwordx4 %s, %s, %s, s%d offen sc1" % (v(vKF + 4 if q == 7 and Opt.nd == 2 else vH + 4 * ((p + 3) % 4), 4), v(vL16), srd(SWS), sHOFF))
        if kv: a.e("s_add_u32 m0, s%d, 0x%x" % (sA, L_KV))
        a.e("s_add_u32 s%d, s%d, 0x400" % (sHOFF, sHOFF))
        if kv:
            a.e("buffer_load_dwordx4 %s, %s, s%d offen sc1 lds" % (v(vL16), srd(SKV), sKVOFF))
            a.e("s_add_u32 s%d, s%d, 0x2000" % (sKVOFF, sKVOFF))
        for sg in (hl.get(24 + q, ()) if fin else ()):
            a.e("s_add_u32 s%d, s%d, 0x%x" % (sA, sHOFF, (sg - (16 + q)) * 1024))
            a.e("buffer_load_dwordx4 %s, %s, %s, s%d offen sc1" % (v(vHX if sg == 27 else vH + 4 * (sg - 19), 4), v(vL16), srd(SWS), sA))
        if q == 3:
            a.e("s_sub_u32 s%d, s%d, 1" % (sCNT, sCNT))
            a.e("s_cmp_lg_u32 s%d, 0" % sCNT)
        a.e("s_waitcnt lgkmcnt(0)")
        if A: a.e("s_barrier")
        for x in Yseg(p if q < 8 - Opt.nd else None, toggle=(q == 3), extra=(fin and p < Opt.nx), last=(q == 7)): a.e(x)
        if not A and q < 7: a.e("s_barrier")
        if q == 3: a.e("s_cbranch_scc1 L_loop%s" % role)
    a.e("s_nop 1")

def transition(a, role):
    A = role == "A"
    if A:
        a.vm = []
        a.lab("L_trA")
    else:
        a.lab("L_join")
        a.e("s_cmp_eq_u32 s%d, 0" % sHI)
        a.e("s_cbranch_scc1 L_trA")
        a.vmjoin = list(a.vm)
    def qfin():
        for i in range(4): a.e("v_cvt_pk_bf16_f32 %s, %s, %s" % (v(vQ + i), v(vAQ + 2 * i), v(vAQ + 2 * i + 1)))
        a.e("v_add_u32 %s, 0x%x, %s" % (v(vWOA), L_WO, v(vWDA)))
        a.e("v_permlane16_swap_b32 %s, %s" % (v(vQ), v(vQ + 2)))
        a.e("v_permlane16_swap_b32 %s, %s" % (v(vQ + 1), v(vQ + 3)))
    pre0 = None
    if A:
        a.e("s_setprio 1")
        a.e("s_cmp_ge_u32 s%d, 14" % sM)
        a.e("s_cbranch_scc1 L_nogA0")
        put(a, a.kvA[:1] + a.kvA[-1:])
        a.l.append(".p2align 3")
        for ti in range(Opt.gsc): gelu_tile(a, ti, True)
        a.lab("L_nogA0")
        qfin()
        a.waitvm(["k0", "kv0", "kv1"])
        a.e("s_setprio 0")
        a.e(mfma(vS, vK0, vQ, None))
        a.e("s_barrier")
        put(a, a.kvA[1:-1])
        def pre0():
            a.e("s_cmp_lt_u32 s%d, 14" % sM)
            a.e("s_cbranch_scc1 L_gA1")
            a.e("s_waitcnt vmcnt(0)")
            a.e("s_branch L_nogA1")
            a.l.append(".p2align 3")
            a.lab("L_gA1")
            for ti in range(Opt.gsc, 4): gelu_tile(a, ti)
            a.lab("L_nogA1")
            a.e("s_setprio 2")
    else:
        a.waitvm(["k0", "kv0", "kv1"])
        a.e("s_setprio 1")
        if Opt.hpub == 3:
            a.e("s_cmp_ge_u32 s%d, 14" % sM)
            a.l.append(".p2align 3")
            a.e("s_barrier")
            a.e("s_cbranch_scc1 L_nogB")
        else:
            a.e("s_barrier")
            for u in (2, 3):
                a.vmop("s_add_u32 m0, s%d, 0x%x\ns_add_u32 s%d, s%d, 0x%x\nbuffer_load_dwordx4 %s, %s, s%d offen sc1 lds"
                       % (sWK, L_KV + u * 8192, sA, sWK, u * 8192, v(vL16), srd(SKV), sA), "kv%d" % u)
            a.e("s_cmp_lt_u32 s%d, 14" % sM)
            a.e("s_cbranch_scc1 L_gB")
            a.e("s_waitcnt vmcnt(0)")
            a.e("s_branch L_nogB")
            a.l.append(".p2align 3")
            a.lab("L_gB")
        for ti in range(4): gelu_tile(a, ti)
        a.lab("L_nogB")
        qfin()
        a.e("s_nop 1")
        a.e(mfma(vS, vK0, vQ, None))
        a.stamp(5)
    attention(a, role, pre0)
    if A:
        a.stamp(6); astamp(a, 9); tstamp(a, 2)
        if Opt.diag and Opt.kdiag == 2: a.e("s_waitcnt lgkmcnt(0)")
        a.e(smfmac(vO, vV1L, vS + 24))
        a.e("s_setprio 0")
        a.e("s_cmp_eq_u32 s%d, 0" % sHI)
        a.e("s_nop 9")
        normalise(a, False)
        a.lab("L_fbretA")
        a.e("buffer_store_dwordx4 %s, %s, %s, s%d offen sc1" % (v(vPK, 4), v(vL16), srd(SWS), sOST))
        tstamp(a, 3)
        a.e("s_waitcnt vmcnt(1)")
        tstamp(a, 4)
        a.e("s_barrier")
        a.fetch(a, False)
        a.e("s_branch L_tl2")

def normalise(a, packed):
    t = vT0
    a.e("v_rcp_f32 %s, %s" % (v(t + 2), v(vO + 8)))
    a.e("s_nop 0")
    a.e("v_mul_f32_e64 %s, %s, %s" % (v(t + 2), v(t + 2), v(vGP)))
    if packed:
        for i in range(4): a.e("v_pk_mul_f32 %s, %s, %s op_sel_hi:[1,0]" % (v(vO + 2 * i, 2), v(vO + 2 * i, 2), v(t + 2, 2)))
        for i in range(4):
            a.e("v_pk_fma_f32 %s, %s, 0, %s op_sel_hi:[1,0,%d]" % (v(t, 2), v(vO + 2 * i, 2), v(t, 2) if i else v(vO + 8, 2), 1 if i else 0))
            a.e("v_cvt_pk_bf16_f32 %s, %s, %s" % (v(vPK + i), v(vO + 2 * i), v(vO + 2 * i + 1)))
        a.e("v_fmac_f32 %s, 0, %s" % (v(t), v(t + 1)))
    else:
        t = vO + 8
        for i in range(8): a.e("v_mul_f32 %s, %s, %s" % (v(vO + i), v(vT0 + 2), v(vO + i)))
        for i in range(4):
            a.e("v_fmac_f32 %s, 0, %s" % (v(t), v(vO + 2 * i)))
            a.e("v_cvt_pk_bf16_f32 %s, %s, %s" % (v(vPK + i), v(vO + 2 * i), v(vO + 2 * i + 1)))
            a.e("v_fmac_f32 %s, 0, %s" % (v(t), v(vO + 2 * i + 1)))
    a.e("v_subrev_u32 %s, s%d, %s" % (v(t), sLO_, v(t)))
    a.e("v_cmp_lt_u32 vcc, s%d, %s" % (sRNG, v(t)))
    a.e("s_branch L_fb" if Opt.force_fb else "s_cbranch_vccnz L_fb")

def tail(a):
    a.lab("L_tail")
    a.stamp(6)
    astamp(a, 9)
    if Opt.diag and Opt.kdiag == 2: a.e("s_waitcnt lgkmcnt(0)")
    tstamp(a, 2)
    a.e(smfmac(vO, vV1L, vS + 24))
    wf = [vFR, vFR + 8, vFR + 16]
    HORD = hord()
    def oload(j):
        return "buffer_load_dwordx4 %s, %s, %s, s%d offen offset:%d %s" % (
            v(vS + 4 * j, 4), v(vL16), srd(SWS), sOLD if HORD[j] < 4 else sOLD2, (HORD[j] % 4) * 1024, Opt.old_pol)
    a.oload = oload
    a.e("s_cmp_eq_u32 s%d, 0" % sHI)
    a.e("s_nop 10")
    a.l.append(".p2align 3")
    normalise(a, True)
    a.lab("L_fbret")
    a.e("buffer_store_dwordx4 %s, %s, %s, s%d offen sc1" % (v(vPK, 4), v(vL16), srd(SWS), sOST))
    tstamp(a, 3)
    aw = [vAW0, vWOA + 1, vWOA + 2, vWOA + 3]
    ar = [vAR0, vFLA]
    wo = WOF
    def fetch(o, scale):
        for j in range(8):
            o.e(oload(j))
            if j >= 5:
                for r in wd_reads(wo[j], vWOA, (7 - j) * 8192): o.e(r)
            if scale and j >= 4:
                for i in range(4 * j - 16, 4 * j - 12): o.e("v_mul_f32 %s, %s, %s" % (v(vD + i), v(vGC), v(vD + i)))
    def addrs(a):
        a.e("v_sub_f32 %s, 1.0, %s" % (v(vGC), v(vGC)))
        for j in range(1, 4): a.e("v_xor_b32 %s, %d, %s" % (v(aw[j]), 32 * j, v(aw[0])))
        a.e("v_xor_b32 %s, 16, %s" % (v(ar[1]), v(ar[0])))
        a.e("s_mov_b32 s%d, 0x2000" % sB)
    ol = Asm(); a.ool2 = ol.l
    a.e("s_waitcnt vmcnt(1)")
    tstamp(a, 4)
    a.e("s_barrier")
    a.lab("L_tl2")
    tstamp(a, 5)
    a.fetch = fetch
    fl = collect(addrs)
    slot = [4, 5, 6, 7, 0, 1, 2][Opt.nx:] + ([3] if Opt.nd == 2 else [])
    hreg = lambda sl: vKF + 4 if sl == 2 and Opt.nd == 2 else vH + 4 * sl
    inreg = [(vWX, vHX)] + ([(vWF, vH + 4 * (4 - Opt.nd))] if Opt.nd else [])
    rds = sum((wd_reads(wf[i % 3], vWDA, slot[i] * 8192) for i in range(len(slot))), [])
    done = 4
    for i in range(-len(inreg), len(slot)):
        for c in range(2):
            if i >= 1: a.e("s_waitcnt lgkmcnt(%d)" % (done - (4 * i + 2 * c + 2)))
            a.e(mfma(vD + 16 * c, inreg[i][0] + 4 * c, inreg[i][1], vD + 16 * c) if i < 0 else
                mfma(vD + 16 * c, wf[i % 3] + 4 * c, hreg(slot[i]), vD + 16 * c))
            if i < -1: continue
            if done < len(rds):
                for r in rds[done:done + 2]: a.e(r)
                done += 2
            else:
                put(a, fl[:2]); fl = fl[2:]
    assert not fl
    tstamp(a, 6)
    a.e("s_cbranch_scc0 L_tl3")
    a.l.append(".p2align 3")
    a.e("s_nop 7")
    a.e("s_nop 0")
    for i in range(16): a.e("v_pk_mul_f32 %s, %s, %s op_sel:[0,1] op_sel_hi:[1,1]" % (v(vD + 2 * i, 2), v(vD + 2 * i, 2), v(vGP, 2)))
    tstamp(a, 7)
    a.lab("L_tl4")
    tstamp(a, 8)
    ol.lab("L_tl3")
    ol.e("s_setprio 0")
    fetch(ol, False)
    tstamp(ol, 7)
    for i in range(32): ol.e("v_mul_f32 %s, %s, %s" % (v(vD + i), v(vGC), v(vD + i)))
    ol.e("s_waitcnt lgkmcnt(0)")
    ol.e("s_branch L_tl4")
    a.stamp(7)
    def check(j):
        o = vS + 4 * j
        return ["s_waitcnt vmcnt(%d)" % (7 - j), "v_max3_u32 v2, %s, %s, %s" % (v(o), v(o + 1), v(o + 2)),
                "v_max_u32 v2, v2, %s" % v(o + 3), "v_cmp_eq_u32 vcc, -1, v2"]
    a.check = check
    for x in check(0): a.e(x)
    for j in range(10):
        if j < 8:
            a.e("s_cbranch_vccnz L_ore%d" % j)
            a.lab("L_ook%d" % j)
            a.e(mfma(vD, wo[j], vS + 4 * j, vD))
        if j >= 2 and Opt.cfirst: a.e(mfma(vD + 16, wo[j - 2] + 4, vS + 4 * (j - 2), vD + 16))
        if j < 7:
            for x in check(j + 1): a.e(x)
        if j >= 2 and not Opt.cfirst: a.e(mfma(vD + 16, wo[j - 2] + 4, vS + 4 * (j - 2), vD + 16))
        if j in (7, 8): a.e("s_nop 4")
    wr = lambda c, j: "ds_write_b128 %s, %s offset:%d" % (v(aw[j]), v(vD + 16 * c + 4 * j, 4), 128 * c)
    a.stamp(8)
    tstamp(a, 9)
    for j in range(4): a.e(wr(0, j))
    a.e("s_nop 7")
    for j in range(4): a.e(wr(1, j))
    a.e("s_waitcnt lgkmcnt(0)")
    a.e("s_barrier")
    for p in range(4):
        for h in range(2): a.e(rd128(vS + 8 * p + 4 * h, ar[h], p * 8192))
    for p in range(1, 4):
        a.e("s_waitcnt lgkmcnt(%d)" % (6 - 2 * p))
        for i in range(4): a.e("v_pk_add_f32 %s, %s, %s" % (v(vS + 2 * i, 2), v(vS + 2 * i, 2), v(vS + 8 * p + 2 * i, 2)))
    for i in range(4): a.e("v_cvt_pk_bf16_f32 %s, %s, %s" % (v(vP + i), v(vS + 2 * i), v(vS + 2 * i + 1)))
    a.e("buffer_store_dwordx4 %s, %s, %s, s%d offen %s" % (v(vP, 4), v(vOUTA), srd(SOUT), sOUTO, Opt.out_pol))
    if Opt.probe >= 0:
        a.e("s_waitcnt vmcnt(0)")
        a.stamp(9)
        if Opt.probe != 9:
            a.e("s_cmp_ge_u32 s%d, 14" % sM)
            a.e("s_cbranch_scc%d L_end" % (0 if Opt.probe_l else 1))
        a.e("s_sub_u32 s%d, s%d, s%d" % (sA, sSTAMP + 4, sSTAMP))
        a.e("s_mul_i32 s%d, s%d, %d" % (sA, sA, Opt.probe_mul - 1))
        if Opt.pcyc >= 0:
            a.e("s_sub_u32 s%d, s%d, s%d" % (sA, sSTAMP + 8, sSTAMP + 6))
            a.e("s_mov_b32 s%d, s%d" % (sSTAMP + 4, sSTAMP))
        a.e("s_min_u32 s%d, s%d, 100000" % (sA, sA))
        a.e("s_add_u32 s%d, s%d, 3800" % (sA, sA))
        if Opt.probe_r >= 0:
            a.e("s_cmp_eq_u32 s%d, 0x2000" % sB)
            a.e("s_cbranch_scc%d L_end" % Opt.probe_r)
        if Opt.probe_w >= 0:
            a.e("s_cmp_lg_u32 s%d, %d" % (sHI, Opt.probe_w))
            a.e("s_cbranch_scc1 L_end")
        if Opt.probe_x >= 0:
            a.e("s_and_b32 s0, s2, 7")
            a.e("s_cmp_lg_u32 s0, %d" % Opt.probe_x)
            a.e("s_cbranch_scc1 L_end")
        a.lab("L_probe")
        a.e("s_memrealtime s[0:1]")
        a.e("s_waitcnt lgkmcnt(0)")
        a.e("s_sub_u32 s0, s0, s%d" % (sSTAMP + 4))
        a.e("s_cmp_lt_u32 s0, s%d" % sA)
        a.e("s_cbranch_scc1 L_probe")
    if Opt.pin == 9:
        a.e("s_waitcnt vmcnt(0)")
        a.stamp(9)
    if Opt.diag in (1, 2):
        a.e("s_waitcnt vmcnt(0)")
        a.stamp(9)
        a.e("s_mov_b32 s%d, s%d" % (sSTAMP + 3, sSTAMP))
        a.e("s_mov_b32 s%d, s%d" % (sSTAMP, sB))
        a.e("s_getreg_b32 s%d, hwreg(HW_REG_XCC_ID)" % (sSTAMP + 1))
        for i in range(20): a.e("v_mov_b32 %s, s%d" % (v(vS + i), sSTAMP + i))
        a.e("s_lshl_b32 s%d, s2, 3" % sA)
        a.e("s_add_u32 s%d, s%d, s%d" % (sA, sA, sW))
        a.e("s_lshl_b32 s%d, s%d, 7" % (sA, sA))
        a.e("s_add_u32 s%d, s%d, 0x%x" % (sA, sA, WS_STAMP))
        a.e("s_mov_b64 exec, 1")
        for i in range(5): a.e("buffer_store_dwordx4 %s, off, %s, s%d offset:%d" % (v(vS + 4 * i, 4), srd(SWS), sA, 16 * i))
    a.lab("L_end")
    a.e("s_endpgm")
    a.l += a.ool2
    for j in range(8):
        a.lab("L_ore%d" % j)
        a.e("s_sub_u32 s%d, s%d, 1" % (sB, sB))
        a.e("s_cbranch_scc1 L_ogive%d" % j)
        if Opt.rwait: a.e("s_waitcnt vmcnt(0)")
        if Opt.rwait > 1: a.e("s_sleep %d" % Opt.rwait)
        for i in range(j, 8): a.e(a.oload(i))
        for x in a.check(j): a.e(x)
        a.e("s_cbranch_vccnz L_ore%d" % j)
        a.e("s_branch L_ook%d" % j)
        a.lab("L_ogive%d" % j)
        a.e("s_mov_b32 s%d, 0" % sB)
        a.e("s_branch L_ook%d" % j)

def fallback(a):
    a.lab("L_fb")
    m = vT0
    a.e("v_mov_b32 %s, 0xff800000" % v(m))
    a.e("s_mov_b32 s%d, 0" % sA)
    a.lab("L_fb1")
    a.e("buffer_load_dwordx4 %s, %s, %s, s%d offen sc1" % (v(vKF, 4), v(vL16), srd(SKV), sA))
    a.e("s_waitcnt vmcnt(0)")
    a.e(mfma(vS, vKF, vQ, None))
    a.e("s_add_u32 s%d, s%d, 2048" % (sA, sA))
    a.e("s_nop 11")
    for i in range(8): a.e("v_max3_f32 %s, %s, %s, %s" % (v(m), v(m), v(vS + 2 * i), v(vS + 2 * i + 1)))
    a.e("s_cmp_lt_u32 s%d, 0x20000" % sA)
    a.e("s_cbranch_scc1 L_fb1")
    a.e("v_mov_b32 %s, %s" % (v(m + 1), v(m)))
    a.e("s_nop 1")
    a.e("v_permlane32_swap_b32 %s, %s" % (v(m), v(m + 1)))
    a.e("s_nop 1")
    a.e("v_max_f32 %s, %s, %s" % (v(m), v(m), v(m + 1)))
    for i in range(16): a.e("v_sub_f32 %s, 0, %s" % (v(vS + 16 + i), v(m)))
    for i in range(16): a.e("v_mov_b32 %s, 0" % v(vO + i))
    a.e("s_mov_b32 s%d, 0" % sA)
    a.lab("L_fb2")
    a.e("s_add_u32 s%d, s%d, 0x%x" % (sB, sA, 63 * 2048))
    a.e("s_and_b32 s%d, s%d, 0x1ffff" % (sB, sB))
    a.e("buffer_load_dwordx4 %s, %s, %s, s%d offen sc1" % (v(vKF, 4), v(vL16), srd(SKV), sB))
    a.e("s_add_u32 s%d, s%d, 2048" % (sB, sA))
    a.e("s_and_b32 s%d, s%d, 0x1ffff" % (sB, sB))
    a.e("s_mov_b64 exec, %s" % sp(sVM))
    a.e("buffer_load_dwordx4 %s, %s, %s, s%d offen offset:1024 sc1" % (v(vV, 4), v(vL16), srd(SKV), sA))
    a.e("buffer_load_dwordx4 %s, %s, %s, s%d offen offset:1280 sc1" % (v(vV + 4, 4), v(vL16), srd(SKV), sB))
    a.e("s_mov_b64 exec, -1")
    a.e("s_waitcnt vmcnt(0)")
    a.e(mfma(vS, vKF, vQ, vS + 16))
    a.e("s_add_u32 s%d, s%d, 2048" % (sA, sA))
    a.e("s_nop 11")
    for i in range(16): a.e("v_exp_f32 %s, %s" % (v(vS + i), v(vS + i)))
    a.e("s_nop 2")
    a.e(smfmac(vO, vV, vS))
    a.e(smfmac(vO, vV + 4, vS + 8))
    a.e("s_cmp_lt_u32 s%d, 0x20000" % sA)
    a.e("s_cbranch_scc1 L_fb2")
    a.e("s_nop 11")
    a.e("v_rcp_f32 %s, %s" % (v(vT0 + 2), v(vO + 8)))
    a.e("s_cmp_eq_u32 s%d, 0" % sHI)
    a.e("v_mul_f32 %s, %s, %s" % (v(vT0 + 2), v(vT0 + 2), v(vGP)))
    for i in range(8): a.e("v_mul_f32 %s, %s, %s" % (v(vO + i), v(vT0 + 2), v(vO + i)))
    for i in range(4): a.e("v_cvt_pk_bf16_f32 %s, %s, %s" % (v(vPK + i), v(vO + 2 * i), v(vO + 2 * i + 1)))
    for i in range(4): a.e("v_min_u32 %s, -2, %s" % (v(vPK + i), v(vPK + i)))
    a.e("s_cbranch_scc1 L_fbretA")
    a.e("s_branch L_fbret")

def build():
    a = Asm()
    prologue(a)
    phase1_F(a)
    transition(a, "B")
    tail(a)
    a.l += a.ool
    transition(a, "A")
    phase1_L(a)
    fallback(a)
    a.lab("L_codeend")
    for i, x in enumerate(a.l):
        if " sc1" in x and "sc0" not in x and ((Opt.allsc & 1 and "buffer_store" in x) or (Opt.allsc & 2 and "buffer_load" in x)):
            a.l[i] = x.replace(" sc1", " sc0 sc1")
    il = a.l.index("L_light:")
    for i, x in enumerate(a.l):
        if x.endswith(" lds") and "sc1" not in x and " nt" not in x:
            if (Opt.ntx & 4 and (srd(SWD) in x or srd(SWO) in x)) or (Opt.ntx & 8 and i > il):
                a.l[i] = x[:-4] + " nt lds"
    head = open("cdna_kernels/%s.s.ref" % NAME).read().split("\n")
    hdr = [l for l in head if l.startswith(";") and "@launch" not in l and "Override" not in l and "grid=" not in l]
    out = hdr + ["; @launch grid=(256,1,1) block=(512,1,1) lds=%d" % LDS_BYTES,
                 '.amdgcn_target "amdgcn-amd-amdhsa--gfx950"', ".text", ".globl %s_kernel" % NAME, ".p2align 8",
                 ".type %s_kernel,@function" % NAME,
                 ".set CODE_PF_MAX, L_codeend - L_nopf - 4" if Opt.code_pf else "",
                 "%s_kernel:" % NAME]
    out += ["; " + x for x in """One persistent launch, one workgroup per CU (generated by a script), 8 waves = two quartets that alternate on each SIMD.
Stage 1: 14 of every 16 workgroups compute gelu(x Wg) * (x Wu) for 128 tokens x 128 columns plus Q for two heads;
         the other two compute K, V and the mixing gate, publish them (counter in d_debug) and then their own Q.
Stage 2: attention for 128 tokens x 2 heads over all keys, S^T = K Q^T, exp2 in place, P V through sparse MFMAs that
         read the high halves of the fp32 probabilities; a row of ones in the V operand gives the row sums.
         The stand-in maximum is 0: it is accepted only if the row sum lies in [2^-16, 2^100] and every accumulator is
         finite, otherwise the wave redoes its rows with the true maximum (L_fb).
         The down projection of a 64 x 64 output tile runs in the same loop once the producers' flags are seen.
Stage 3: attention outputs are handed over through d_ws (cleared to a mark earlier in this launch), projected,
         mixed with the FFN branch, reduced through LDS and stored.""".split("\n")]
    out += a.l
    out += ['.section .rodata,"a"', ".p2align 6", ".amdhsa_kernel %s_kernel" % NAME,
            "  .amdhsa_next_free_vgpr %d" % NV, "  .amdhsa_next_free_sgpr 102", "  .amdhsa_accum_offset 256",
            "  .amdhsa_group_segment_fixed_size 0", "  .amdhsa_kernarg_size 104", "  .amdhsa_user_sgpr_count 2",
            "  .amdhsa_user_sgpr_kernarg_segment_ptr 1", "  .amdhsa_system_sgpr_workgroup_id_x 1", ".end_amdhsa_kernel", ""]
    return "\n".join(out)

if __name__ == "__main__":
    path = sys.argv[1]
    for kv in sys.argv[2:]:
        k, val = kv.split("=")
        cur = getattr(Opt, k)
        setattr(Opt, k, val if isinstance(cur, str) else type(cur)(int(val)))
    open(path, "w").write(build())
```

```python
import sys, struct, math

NAME = "gated_mix__grouped_kv_mqa__geglu_ffn__prompt"

class Opt:
    diag = 0
    mapmode = 1
    force_fb = False
    allsc = 0
    out_pol = "sc0 sc1"
    code_pf = True
    xrot = 0
    pregap = 0
    wo0 = 3
    hlate = 1
    hpub = 3
    rwait = 1
    aearly = 0
    bidle = 1
    old_pol = "sc1"
    ypos0 = "36g"
    ypos1 = "36bg"
    ypos2 = "36cg9"
    nd = 1
    nx = 0
    tpos = 1
    cfirst = 0
    tch = 12
    stch = 0
    spos = 1
    tlb = 14
    olate = 1
    hrot = 0
    tbar = 0
    hord = 1
    cmap = 1
    kqx = 0
    oearly = 8
    conc = 1
    ghx = 1
    qa = "077777"
    qb = "588888"
    npre = 8
    stagger = 1
    rper = 2
    dma1 = 17
    kprio = 0
    dma0 = 8
    npd = 4
    kdiag = 0
    fillpre = 0
    fillper = 5
    gsc = 2
    sched = 0
    xmask = 1
    ntx = 0
    touch = 2
    rotg = 0
    rotm = 0
    startbar = 1
    pvz = 1
    pin = -1
    pin_ns = 60000
    probe = -1
    probe_x = -1
    probe_mul = 10
    probe_w = -1
    probe_r = -1
    pcyc = -1
    probe_l = 0

def f2u(x): return struct.unpack("<I", struct.pack("<f", x))[0]

WS_KV = 0
WS_G = 128 * 1024
WS_HFLAG = 192 * 1024
WS_OF = 1 << 20
WS_HF = 4 << 20
WS_STAMP = 12 << 20
WS_SIZE = 16 << 20
K1 = 1024
L_G, L_U, L_X, L_WQ = 0, 48 * K1, 96 * K1, 144 * K1
L_QX = 32 * K1
L_WD, L_WO, L_KV = 0, 64 * K1, 128 * K1
L_RED = 96 * K1
LL_X, LL_W, LL_GATE, LL_WQ = 0, 128 * K1, 144 * K1, 128 * K1
LDS_BYTES = 160 * K1

SX, SWG, SWU, SWQ, SWS, SWD, SWO, SOUT, SDBG, SWKV, SGATE, SKV = 4, 8, 12, 16, 20, 24, 28, 32, 36, 40, 44, 64
SWV = 72
sTMPP = 48
sW, sHI, sLO, sG, sM, sT, sCB = 50, 51, 52, 53, 54, 55, 56
sWK = 57
sWH = 58
sVM = 60
sRET = 62
sA, sB, sC, sD = 68, 69, 70, 71
sOFFW, sOFFQ, sCH, sXP = 72, 73, 74, 75
sHOFF, sWDOFF, sKVOFF, sHXO, sCNT = 72, 73, 74, 75, 77
sOUTO, sLO_, sRNG = 59, 81, 75
sOLD2 = 58
sOST, sOLD, sHST = 78, 79, 80
sHST2 = 3
sRX, sRW, sM0B = 40, 41, 42
sKQ = 76
sHP = sM
sSTAMP = 82

def srd(b): return "s[%d:%d]" % (b, b + 3)
def sp(b): return "s[%d:%d]" % (b, b + 1)
def v(b, n=1): return "v%d" % b if n == 1 else "v[%d:%d]" % (b, b + n - 1)

vL16 = 1
vT0, vT1, vT2, vT3 = 2, 3, 4, 5
vGP, vGC = 6, 7
vKVA = 8
vWDA = 9
vWDV = 10
vONE = 11
vZERO = 12
vFLA = 13
vPOLL = 14
vGA = 15
vQ = 16
vK0 = 20
vV1L = 24
vIDX = 28
vAW0, vAR0, vOUTA = 30, 31, 12
vKVB = 29
vP = 32
vV = 40
vO = 56
vD = 72
vACC = 104
vS = 104
vH = 136
vAQ = vP
vF1 = 168
vKF = 168
vWF = 176
vWX = 224
vHX = 232
vPK = 20
WOF = [32, 208, 216, 240, 248, 40, 48, 56]
vWOA = 236
vFR = 184
vLX = 224
vXA = 240
vWA = 244
vQA = 248
vDX, vDG, vDQ = 249, 250, 251
vC0 = 252
vTID = 255
vHA = 254
NV = 256

class Asm:
    def __init__(self):
        self.l = []
        self.vm = []
        self.nstamp = 0
    def e(self, s):
        for x in s.split("\n"):
            x = x.strip()
            if x: self.l.append("    " + x)
    def lab(self, s): self.l.append(s + ":")
    def vmop(self, s, tag):
        self.e(s); self.vm.append(tag)
    def vmn(self, tags):
        if isinstance(tags, str): tags = [tags]
        last = -1
        for i, t in enumerate(self.vm):
            if t in tags: last = i
        return None if last < 0 else len(self.vm) - 1 - last
    def waitvm(self, tags, lgkm=False):
        n = self.vmn(tags)
        if n is None:
            if lgkm: self.e("s_waitcnt lgkmcnt(0)")
            return
        assert n < 64
        self.e("s_waitcnt vmcnt(%d)%s" % (n, " lgkmcnt(0)" if lgkm else ""))
        self.vm = self.vm[len(self.vm) - n:] if n else []
    def wait0(self, lgkm=False):
        self.e("s_waitcnt vmcnt(0)%s" % (" lgkmcnt(0)" if lgkm else "")); self.vm = []
    def stamp(self, i, real=False):
        if Opt.probe == i:
            self.e("s_waitcnt lgkmcnt(0)")
            self.e("s_memrealtime %s" % sp(sSTAMP + 4))
            if Opt.pcyc >= 0: self.e("s_memtime %s" % sp(sSTAMP + 8))
            self.e("s_waitcnt lgkmcnt(0)")
        if Opt.pin == i:
            self.nstamp += 1
            self.e("s_waitcnt lgkmcnt(0)")
            self.e("s_cselect_b32 s%d, 1, 0" % (sSTAMP + 5))
            self.lab("L_pin%d" % self.nstamp)
            self.e("s_memrealtime s[0:1]")
            self.e("s_waitcnt lgkmcnt(0)")
            self.e("s_sub_u32 s0, s0, s%d" % sSTAMP)
            self.e("s_cmp_lt_u32 s0, %d" % (Opt.pin_ns // 10))
            self.e("s_cbranch_scc1 L_pin%d" % self.nstamp)
            self.e("s_cmp_lg_u32 s%d, 0" % (sSTAMP + 5))
        if Opt.diag and not Opt.kdiag and (Opt.diag == 1 or i == 9):
            self.e("s_waitcnt lgkmcnt(0)")
            self.e("s_memtime %s" % sp(sSTAMP + 2 * i))
            self.e("s_memrealtime %s" % sp(sRET))
            self.e("s_waitcnt lgkmcnt(0)")
            self.e("s_mov_b32 s%d, s%d" % (sSTAMP + 2 * i + 1, sRET))

def astamp(a, i):
    if Opt.diag and Opt.kdiag == 2: a.e("s_memtime %s" % sp(sSTAMP + 2 * i))

def tstamp(a, i):
    if Opt.diag and Opt.kdiag == 3: a.e("s_memtime %s" % sp(sSTAMP + 2 * i))

def kstamp(a, i):
    if Opt.probe == 18 + i: a.e("s_memrealtime %s" % sp(sSTAMP + 4))
    if Opt.diag and Opt.kdiag == 1: a.e("s_memtime %s" % sp(sSTAMP + 2 * i))

def mfma(d, a, b, c):
    return "v_mfma_f32_32x32x16_bf16 %s, %s, %s, %s" % (v(d, 16), v(a, 4), v(b, 4), "0" if c is None else v(c, 16))
def smfmac(d, a, b):
    return "v_smfmac_f32_32x32x32_bf16 %s, %s, %s, %s" % (v(d, 16), v(a, 4), v(b, 8), v(vIDX))
def mfma16(d, a, b, c):
    return "v_mfma_f32_16x16x32_bf16 %s, %s, %s, %s" % (v(d, 4), v(a, 4), v(b, 4), "0" if c is None else v(c, 4))
def rd128(d, a, off):
    assert 0 <= off < 65536
    return "ds_read_b128 %s, %s offset:%d" % (v(d, 4), v(a), off)
def rdtr(d, a, off):
    assert 0 <= off < 65536
    return "ds_read_b64_tr_b16 %s, %s offset:%d" % (v(d, 2), v(a), off)

def interleave(mf, fill, per=2):
    out = []
    fill = list(fill)
    for i, m in enumerate(mf):
        out.append(m)
        if i < len(mf) - 1:
            out += fill[:per]; fill = fill[per:]
    return out + fill

def srd_words(a, regs):
    sizes = {SX: 2048 * 1024, SWG: 512 * 3584, SWU: 512 * 3584, SWQ: 512 * 1024, SWS: WS_SIZE, SWKV: 16384, SWV: 16384,
             SGATE: 1024, SWD: 1792 * 1024, SWO: 512 * 1024, SOUT: 2048 * 1024, SDBG: 256, SKV: 128 * 1024}
    for reg in regs:
        a.e("s_mov_b32 s%d, 0x%x" % (reg + 2, sizes[reg]))
        a.e("s_mov_b32 s%d, 0x20000" % (reg + 3))

def ptr_loads(a, lst):
    for reg, off in lst: a.e("s_load_dwordx2 %s, s[0:1], %d" % (sp(reg), off))

def prologue(a):
    if Opt.diag or Opt.pin >= 0 or Opt.probe >= 0:
        a.e("s_memrealtime %s" % sp(sSTAMP))
        if Opt.diag in (1, 2): a.e("s_memtime %s" % sp(sSTAMP + 2))
    ptr_loads(a, ((SX, 0), (SWG, 48), (SWU, 56), (SWQ, 8)))
    if Opt.probe == 1: a.stamp(1)
    a.e("v_lshrrev_b32 v2, 6, v0")
    if Opt.code_pf:
        a.e("s_getpc_b64 %s" % sp(sRET))
        a.lab("L_nopf")
        a.e("s_and_b32 s%d, s2, -8" % sA)
        a.e("v_add_lshl_u32 v4, v2, s%d, 7" % sA)
        a.e("v_mov_b32 v5, 0")
        a.e("v_min_u32 v4, CODE_PF_MAX, v4")
        a.e("v_lshl_add_u64 v[4:5], v[4:5], 0, %s" % sp(sRET))
        a.e("global_load_dword %s, v[4:5], off" % v(vPOLL))
    a.e("s_load_dwordx8 s[%d:%d], s[0:1], 64" % (SOUT, SOUT + 7))
    a.e("v_readfirstlane_b32 s%d, v2" % sW)
    ptr_loads(a, ((SWS, 96),) if Opt.diag or Opt.probe >= 0 else ((SWS, 96), (SWO, 32)))
    a.e("s_cmpk_ge_u32 s2, 256")
    a.e("s_cbranch_scc1 L_end")
    a.e("s_and_b32 s%d, s2, 1" % sD)
    a.e("s_bfe_u32 s%d, s2, 0x30003" % sA)
    a.e("s_lshl3_add_u32 s%d, s%d, s%d" % (sG, sD, sA))
    a.e("s_bfe_u32 s%d, s2, 0x20001" % sA)
    a.e("s_lshr_b32 s%d, s2, 6" % sB)
    a.e("s_lshl2_add_u32 s%d, s%d, s%d" % (sM, sA, sB))
    a.e("s_lshl_b32 s%d, s%d, 10" % (sWK, sW))
    a.e("s_cmp_ge_u32 s%d, 14" % sM)
    a.e("s_cbranch_scc1 L_light")

def xvoff(a, t):
    a.e("v_lshrrev_b32 v2, 4, %s" % v(t))
    a.e("v_xor_b32 v2, v2, %s" % v(t))
    a.e("v_and_b32 v2, 7, v2")
    a.e("s_lshl_b32 s%d, s%d, 17" % (sA, sG))
    a.e("v_lshl_add_u32 v2, v2, 4, s%d" % sA)
    a.e("v_lshrrev_b32 v3, 3, %s" % v(t))
    a.e("v_lshl_add_u32 %s, v3, 10, v2" % v(vDX))

def setup_ids(a):
    a.e("s_mov_b64 %s, %s" % (sp(SKV), sp(SWS)))
    a.e("s_mov_b64 %s, %s" % (sp(SWD), sp(SOUT)))
    a.e("s_mov_b64 %s, %s" % (sp(SOUT), sp(SOUT + 4)))
    a.e("s_mov_b64 %s, %s" % (sp(SDBG), sp(SOUT + 6)))
    a.e("v_and_b32 v0, 63, v0")
    a.e("v_lshlrev_b32 %s, 4, v0" % v(vL16))
    a.e("s_andn2_b32 s%d, 1, s2" % sA)
    a.e("s_bfe_u32 s%d, s2, 0x20001" % sB)
    a.e("s_lshl2_add_u32 s%d, s%d, s%d" % (sA, sA, sB))
    a.e("s_bfe_u32 s%d, s2, 0x20003" % sB)
    a.e("s_lshl2_add_u32 s%d, s%d, s%d" % (sT, sA, sB))
    a.e("s_lshr_b32 s%d, s2, 5" % sCB)

def setup_rd(a):
    a.e("s_lshr_b32 s%d, s%d, 2" % (sHI, sW))
    a.e("s_and_b32 s%d, s%d, 3" % (sLO, sW))
    a.e("v_and_b32 v2, 15, v0")
    a.e("v_lshrrev_b32 v3, 4, v0")
    a.e("v_bfe_u32 v4, v0, 1, 3")
    a.e("v_xor_b32 v4, v4, v3")
    a.e("v_lshlrev_b32 v4, 4, v4")
    a.e("v_lshl_add_u32 %s, v2, 7, v4" % v(vXA))
    a.e("v_bfe_u32 v2, v0, 2, 2")
    a.e("v_and_b32 v4, 3, v0")
    a.e("v_lshl_add_u32 %s, v3, 3, v2" % v(vQA))
    a.e("v_lshlrev_b32 %s, 6, %s" % (v(vQA), v(vQA)))
    a.e("v_xor_b32 v5, s%d, v3" % sHI)
    a.e("v_and_b32 v5, 1, v5")
    a.e("v_lshl_add_u32 %s, v5, 5, %s" % (v(vQA), v(vQA)))
    a.e("v_lshl_add_u32 %s, v4, 3, %s" % (v(vQA), v(vQA)))

def setup_oclr(a):
    srd_words(a, [SWS, SKV, SDBG])
    a.e("s_mov_b32 s%d, 0xffff" % sVM)
    a.e("s_mov_b32 s%d, 0xffff" % (sVM + 1))
    a.e("s_lshl_b32 s%d, s%d, 2" % (sA, sG))
    a.e("s_add_u32 s%d, s%d, s%d" % (sA, sA, sLO))
    a.e("s_lshl_b32 s%d, s%d, 5" % (sB, sA))
    a.e("s_lshl_b32 s%d, s%d, 1" % (sC, sHP))
    a.e("s_add_u32 s%d, s%d, s%d" % (sB, sB, sC))
    a.e("s_add_u32 s%d, s%d, s%d" % (sB, sB, sHI))
    a.e("s_lshl_b32 s%d, s%d, 10" % (sB, sB))
    a.e("s_add_u32 s%d, s%d, 0x%x" % (sOST, sB, WS_OF))
    for i in range(4): a.e("v_mov_b32 %s, -1" % v(vQ + i))
    a.vmop("buffer_store_dwordx4 %s, %s, %s, s%d offen sc1" % (v(vQ, 4), v(vL16), srd(SWS), sOST), "oclr")
    a.e("v_mov_b32 %s, 1" % v(vONE))
    a.e("v_mov_b32 %s, 0" % v(vZERO))
    a.e("v_and_b32 %s, 31, v0" % v(vGA))
    a.e("v_lshlrev_b32 %s, 2, %s" % (v(vGA), v(vGA)))

def collect(fn):
    t = Asm(); t.marks = {}
    def vmop(s_, tag):
        t.e(s_); t.marks[len(t.l) - 1] = tag
    t.vmop = vmop
    fn(t)
    return [(x, t.marks.get(i)) for i, x in enumerate(t.l)]
def put(a, items):
    for x, tag in items:
        if tag: a.vmop(x, tag)
        else: a.e(x)

def setup_ones(a):
    a.e("s_mov_b32 s%d, 0x110000" % sA)
    a.e("s_mov_b32 s%d, 0x110000" % sB)
    a.e("v_mov_b32 v3, 0x3f803f80")
    a.e("v_cndmask_b32 %s, 0, v3, %s" % (v(vV1L), sp(sA)))
    for i in range(1, 4): a.e("v_mov_b32 %s, %s" % (v(vV1L + i), v(vV1L)))
    for i in range(16): a.e("v_mov_b32 %s, %s" % (v(vV + i), v(vV1L)))

def setup_attn(a):
    srd_words(a, [SWD, SWO, SOUT])
    a.e("s_lshl_b32 s%d, s%d, 2" % (sA, sG))
    a.e("s_add_u32 s%d, s%d, s%d" % (sA, sA, sLO))
    a.e("s_mul_i32 s%d, s%d, 112" % (sB, sA))
    a.e("s_lshl_b32 s%d, s%d, 3" % (sC, sM))
    a.e("s_add_u32 s%d, s%d, s%d" % (sB, sB, sC))
    a.e("s_lshl_b32 s%d, s%d, 2" % (sC, sHI))
    a.e("s_add_u32 s%d, s%d, s%d" % (sB, sB, sC))
    a.e("s_and_b32 s%d, s%d, 1" % (sC, sLO))
    a.e("s_lshl_b32 s%d, s%d, 1" % (sC, sC))
    a.e("s_add_u32 s%d, s%d, s%d" % (sB, sB, sC))
    a.e("s_lshl_b32 s%d, s%d, 10" % (sB, sB))
    a.e("s_add_u32 s%d, s%d, 0x%x" % (sHST, sB, WS_HF))
    a.e("s_mul_i32 s%d, s%d, %d" % (sC, sC, 112 * 1024))
    a.e("s_sub_u32 s%d, %d, s%d" % (sC, 112 * 1024, sC))
    a.e("s_add_u32 s%d, s%d, s%d" % (sHST2, sHST, sC))
    a.e("v_bfe_u32 v2, v0, 2, 2")
    a.e("v_lshrrev_b32 v3, 5, v0")
    a.e("v_lshl_add_u32 v2, v3, 2, v2")
    a.e("v_lshlrev_b32 v2, 6, v2")
    a.e("v_bfe_u32 v3, v0, 4, 1")
    a.e("v_lshl_add_u32 v2, v3, 5, v2")
    a.e("v_and_b32 v3, 3, v0")
    a.e("v_lshl_add_u32 v2, v3, 3, v2")
    a.e("s_lshr_b32 s%d, s%d, 1" % (sA, sW))
    a.e("s_lshl_b32 s%d, s%d, 11" % (sA, sA))
    a.e("v_add_u32 %s, s%d, v2" % (v(vWDA), sA))
    a.e("v_add_u32 %s, 0x%x, %s" % (v(vKVA), L_KV, v(vL16)))
    a.e("v_add_u32 %s, 0x%x, %s" % (v(vKVB), L_KV + 0x4000, v(vL16)))
    a.e("v_bfe_u32 v2, v0, 2, 3")
    a.e("v_lshlrev_b32 v2, 10, v2")
    a.e("v_lshrrev_b32 v3, 5, v0")
    a.e("v_lshl_add_u32 v2, v3, 6, v2")
    a.e("v_and_b32 v3, 3, v0")
    a.e("v_lshl_add_u32 v2, v3, 4, v2")
    a.e("s_lshl_b32 s%d, s%d, 7" % (sB, sCB))
    a.e("v_add_u32 %s, s%d, v2" % (v(vWDV), sB))
    a.e("v_min_u32 v2, 13, v0")
    a.e("v_lshlrev_b32 v2, 7, v2")
    a.e("s_lshr_b32 s%d, s%d, 1" % (sA, sT))
    a.e("s_lshl_b32 s%d, s%d, 11" % (sA, sA))
    a.e("s_add_u32 s%d, s%d, 0x%x" % (sA, sA, WS_HFLAG))
    a.e("v_add_u32 %s, s%d, v2" % (v(vFLA), sA))
    a.e("s_lshl_b32 s%d, s%d, 1" % (sA, sT))
    a.e("s_and_b32 s%d, s%d, 1" % (sB, sW))
    a.e("s_add_u32 s%d, s%d, s%d" % (sA, sA, sB))
    a.e("s_lshl_b32 s%d, s%d, 15" % (sB, sA))
    a.e("s_lshr_b32 s%d, s%d, 1" % (sKQ, sW))
    if Opt.kqx:
        a.e("s_lshl_b32 s%d, s%d, 1" % (sC, sCB))
        a.e("s_and_b32 s%d, s%d, 2" % (sC, sC))
        a.e("s_xor_b32 s%d, s%d, s%d" % (sKQ, sKQ, sC))
    a.e("s_lshl_b32 s%d, s%d, 13" % (sC, sKQ))
    a.e("s_add_u32 s%d, s%d, s%d" % (sB, sB, sC))
    a.e("s_add_u32 s%d, s%d, 0x%x" % (sOLD, sB, WS_OF))
    a.e("v_and_b32 v2, 31, v0")
    a.e("v_lshrrev_b32 v3, 5, v0")
    a.e("v_and_b32 v4, 7, v0")
    a.e("v_xor_b32 v3, v3, v4")
    a.e("v_lshlrev_b32 v3, 4, v3")
    a.e("v_lshl_add_u32 v3, v2, 8, v3")
    a.e("s_and_b32 s%d, s%d, 1" % (sB, sW))
    a.e("s_lshl_b32 s%d, s%d, 15" % (sB, sB))
    a.e("s_lshr_b32 s%d, s%d, 1" % (sC, sW))
    a.e("s_lshl_b32 s%d, s%d, 13" % (sD, sC))
    a.e("s_add_u32 s%d, s%d, s%d" % (sOUTO, sD, sB))
    a.e("s_add_u32 s%d, s%d, 0x%x" % (sD, sOUTO, L_RED))
    a.e("v_add_u32 %s, s%d, v3" % (v(vAW0), sD))
    a.e("v_lshrrev_b32 v2, 3, v0")
    a.e("v_lshlrev_b32 v3, 1, v4")
    a.e("v_xor_b32 v3, v3, v2")
    a.e("v_lshlrev_b32 v3, 4, v3")
    a.e("v_lshl_add_u32 v3, v2, 8, v3")
    a.e("s_lshl_b32 s%d, s%d, 11" % (sD, sC))
    a.e("s_add_u32 s%d, s%d, s%d" % (sD, sD, sB))
    a.e("s_add_u32 s%d, s%d, 0x%x" % (sD, sD, L_RED))
    a.e("v_add_u32 %s, s%d, v3" % (v(vAR0), sD))
    a.e("v_lshlrev_b32 v4, 4, v4")
    a.e("v_lshl_add_u32 %s, v2, 10, v4" % v(vOUTA))
    a.e("s_lshl_b32 s%d, s%d, 16" % (sC, sT))
    a.e("s_add_u32 s%d, s%d, s%d" % (sOUTO, sOUTO, sC))
    a.e("s_lshl_b32 s%d, s%d, 7" % (sC, sCB))
    a.e("s_add_u32 s%d, s%d, s%d" % (sOUTO, sOUTO, sC))
    a.e("v_mov_b32 %s, 0xdddd" % v(vIDX))
    a.e("v_lshrrev_b32 v2, 4, v0")
    a.e("v_lshl_add_u32 %s, v2, 8, %s" % (v(vHA), v(vL16)))
    for i in range(16): a.e("v_mov_b32 %s, 0" % v(vO + i))
    for i in range(32): a.e("v_mov_b32 %s, 0" % v(vD + i))
    c0 = -2.0 * math.sqrt(2.0 / math.pi) * math.log2(math.e)
    a.e("v_mov_b32 %s, 0x%x" % (v(vC0), f2u(c0)))
    a.e("v_mov_b32 %s, 0x%x" % (v(vC0 + 1), f2u(c0 * 0.044715)))

def kv_first_loads(a, quartet=False):
    it = []
    for o in (range(0, 16384, 4096) if quartet else range(0, 16384, 8192)):
        b = sWH if quartet else sWK
        it.append(("s_add_u32 m0, s%d, 0x%x\ns_add_u32 s%d, s%d, 0x%x\nbuffer_load_dwordx4 %s, %s, s%d offen sc1 lds"
                   % (b, L_KV + o, sA, b, o, v(vL16), srd(SKV), sA), "kv%d" % (o >> 13)))
    it.append(("s_mov_b32 s%d, 0x%x\nbuffer_load_dwordx4 %s, %s, %s, s%d offen sc1"
               % (sA, 63 * 2048, v(vK0, 4), v(vL16), srd(SKV), sA), "k0"))
    it.append(("s_mov_b64 exec, %s\nbuffer_load_dwordx4 %s, %s, %s, 0 offen offset:%d sc1\ns_mov_b64 exec, -1"
               % (sp(sVM), v(vV1L, 4), v(vL16), srd(SKV), 1024 + 256), "k0"))
    it.append(("s_lshl_b32 s%d, s%d, 2\ns_add_u32 s%d, s%d, s%d\ns_lshl_b32 s%d, s%d, 7\ns_add_u32 s%d, s%d, 0x%x\n"
               "buffer_load_dword %s, %s, %s, s%d offen sc1"
               % (sA, sG, sA, sA, sLO, sA, sA, sA, sA, WS_G, v(vGP), v(vGA), srd(SWS), sA), "k0"))
    it.append(("s_lshl_b32 s%d, s%d, 1\ns_and_b32 s%d, s%d, 1\ns_add_u32 s%d, s%d, s%d\ns_lshl_b32 s%d, s%d, 7\ns_add_u32 s%d, s%d, 0x%x\n"
               "buffer_load_dword %s, %s, %s, s%d offen sc1"
               % (sA, sT, sB, sW, sA, sA, sB, sA, sA, sA, sA, WS_G, v(vGC), v(vGA), srd(SWS), sA), "k0"))
    return it

def spin_counter(a, name, first_loaded, wave=0):
    a.e("s_cmp_lg_u32 s%d, %d" % (sW, wave))
    a.e("s_cbranch_scc1 L_%s_done" % name)
    a.e("s_mov_b32 s%d, 0x4000" % sB)
    if first_loaded: a.e("s_branch L_%s_chk" % name)
    a.lab("L_%s_re" % name)
    a.e("buffer_load_dword %s, off, %s, 0 sc1" % (v(vPOLL), srd(SDBG)))
    a.e("s_waitcnt vmcnt(0)")
    a.lab("L_%s_chk" % name)
    a.e("v_readfirstlane_b32 s%d, %s" % (sA, v(vPOLL)))
    a.e("s_cmp_ge_u32 s%d, 32" % sA)
    a.e("s_cbranch_scc1 L_%s_done" % name)
    a.e("s_sleep 4")
    a.e("s_sub_u32 s%d, s%d, 1" % (sB, sB))
    a.e("s_cmp_lg_u32 s%d, 0" % sB)
    a.e("s_cbranch_scc1 L_%s_re" % name)
    a.lab("L_%s_done" % name)

def phase1_F(a):
    SCHED = {1: ["01423567", "10253467", "23016457", "32104756"],
             2: ["02134657", "01324576", "10243567", "10235467"],
             3: ["01324657", "01243576", "12035467", "20134567"],
             5: ["01243567", "10325467", "23014657", "32104576"],
             6: ["01243567", "10325467", "01234657", "10324576"],
             7: ["01234567", "10235476", "01234567", "10235476"],
             8: ["01234567", "10243657", "01234567", "10243657"],
             4: ["02143657", "10325476", "02143657", "10325476"]}
    tabs = SCHED[Opt.sched] if Opt.sched else ["".join(str(c ^ (p & Opt.xmask)) for c in range(8)) for p in range(4)]
    for t_ in tabs: assert sorted(t_) == list("01234567")
    num = [int(t_[::-1], 16) for t_ in tabs]
    def table(a):
        a.e("s_add_u32 s%d, s%d, s%d" % (sA, sG, sHP))
        a.e("s_mov_b32 s%d, 0x%x" % (sXP, num[0]))
        a.e("s_mov_b32 s%d, 0x%x" % (sB, num[2]))
        a.e("s_bitcmp1_b32 s%d, 0" % sA)
        a.e("s_cselect_b32 s%d, 0x%x, s%d" % (sXP, num[1], sXP))
        a.e("s_cselect_b32 s%d, 0x%x, s%d" % (sB, num[3], sB))
        a.e("s_bitcmp1_b32 s%d, 1" % sA)
        a.e("s_cselect_b32 s%d, s%d, s%d" % (sXP, sB, sXP))
        if Opt.ghx:
            a.e("s_bitcmp1_b32 s%d, 3" % sG)
            a.e("s_cselect_b32 s%d, 0x44444444, 0" % sB)
            a.e("s_xor_b32 s%d, s%d, s%d" % (sXP, sXP, sB))
    fo, fw = {"0000": (0, 0), "0101": (0, 1), "0011": (1, 1), "0123": (0, 2)}["".join(t_[0] for t_ in tabs)]
    a.e("s_add_u32 s%d, s%d, s%d" % (sA, sG, sHP))
    a.e("s_bfe_u32 s%d, s%d, 0x%x" % (sCH, sA, fw << 16 | fo))
    if Opt.ghx: a.e("s_lshl2_add_u32 s%d, s%d, s%d" % (sCH, sD, sCH))
    a.e("s_and_b32 s%d, s%d, 0xc00" % (sWH, sWK))
    a.e("v_and_b32 %s, 0xff, v0" % v(vTID))

    def wvoff(a):
        a.e("v_lshrrev_b32 v2, 4, %s" % v(vTID))
        a.e("v_lshrrev_b32 v3, 5, %s" % v(vTID))
        a.e("v_bfi_b32 v3, 3, v2, v3")
        a.e("v_lshlrev_b32 v3, 1, v3")
        a.e("v_xor_b32 v3, v3, %s" % v(vTID))
        a.e("v_and_b32 v3, 15, v3")
        a.e("s_lshl_b32 s%d, s%d, 8" % (sA, sM))
        a.e("v_lshl_add_u32 v3, v3, 4, s%d" % sA)
        a.e("v_mul_u32_u24 v2, 3584, v2")
        a.e("v_add_u32 %s, v2, v3" % v(vDG))
    def qvoff(a):
        a.e("v_lshrrev_b32 v2, 4, %s" % v(vTID))
        a.e("v_and_b32 v2, 2, v2")
        a.e("v_xor_b32 v2, v2, %s" % v(vTID))
        a.e("v_and_b32 v2, 3, v2")
        a.e("s_lshl_b32 s%d, s%d, 6" % (sA, sHP))
        a.e("v_lshl_add_u32 v2, v2, 4, s%d" % sA)
        a.e("v_lshrrev_b32 v3, 2, %s" % v(vTID))
        a.e("v_lshl_add_u32 %s, v3, 10, v2" % v(vDQ))
    def stouch(a):
        if Opt.diag or Opt.probe >= 0: a.e("s_load_dwordx2 %s, s[0:1], 32" % sp(SWO))
        if not Opt.stch: return
        a.e("s_lshr_b32 s%d, s%d, 2" % (sA, sW))
        if Opt.ghx: a.e("s_lshl2_add_u32 s%d, s%d, s%d" % (sA, sD, sA))
        a.e("s_lshl_b32 s%d, s%d, 6" % (sA, sA))
        a.e("s_and_b32 s%d, s%d, 7" % (sB, sG))
        a.e("s_add_u32 s%d, s%d, s%d" % (sA, sA, sB))
        a.e("s_mul_i32 s%d, s%d, 28" % (sA, sA))
        a.e("s_bfe_u32 s%d, s%d, 0x10001" % (sB, sW))
        a.e("s_lshl1_add_u32 s%d, s%d, s%d" % (sB, sM, sB))
        a.e("s_add_u32 s%d, s%d, s%d" % (sA, sA, sB))
        a.e("s_lshl_b32 s%d, s%d, 7" % (sA, sA))
        a.e("s_bitcmp1_b32 s%d, 0" % sW)
        a.e("s_cselect_b64 %s, %s, %s" % (sp(SWKV), sp(SWU), sp(SWG)))
        a.e("s_add_u32 s%d, s%d, s%d" % (SWKV, SWKV, sA))
        a.e("s_addc_u32 s%d, s%d, 0" % (SWKV + 1, SWKV + 1))
        for i in range(Opt.stch):
            a.e("s_load_dwordx2 %s, %s, 0x%x" % (sp(sTMPP), sp(SWKV), 128 * 3584 + i * 8 * 3584 + 60))
    def wsrd(a):
        srd_words(a, [SWG])
        a.e("s_mov_b64 %s, %s" % (sp(SWU + 2), sp(SWG + 2)))

    if Opt.hrot:
        ORDER = [("q", 0)] + [(t_, 2 * h_ + j) for h_ in range(2) for t_, j in (("x", 0), ("x", 1), ("g", 0), ("u", 0), ("g", 1), ("u", 1))]
    else:
        ORDER = [("q", 0)] + [("x", j) for j in range(4)] + [(t_, j) for j in range(4) for t_ in "gu"]
    def block(items):
        out = []; lastc = None; lastw = None
        for c, kind, j in items:
            s = c % 3; pre = []
            if c != lastc:
                if c: pre.append("s_bfe_u32 s%d, s%d, 0x%x" % (sCH, sXP, 0x30000 + 4 * c))
                lastc = c; lastw = None
            fam = "w" if kind in "gu" else kind
            rot = Opt.hrot and fam != "q"
            if lastw is None or lastw[0] != fam or (rot and lastw[1] >> 1 != j >> 1):
                pre.append({"q": "s_lshl_b32 s%d, s%d, 16" % (sOFFW, sCH), "x": "s_lshl_b32 s%d, s%d, 7" % (sOFFW, sCH),
                            "w": "s_mul_i32 s%d, s%d, %d" % (sOFFW, sCH, 64 * 3584)}[fam])
                if rot: pre.append("s_%s_u32 s%d, s%d, s%d" % ("sub" if j >> 1 else "add", sOFFW, sOFFW, sRX if fam == "x" else sRW))
                lastw = (fam, 0)
            if lastw[1] != j:
                pre.append("s_add_u32 s%d, s%d, 0x%x" % (sOFFW, sOFFW, (j - lastw[1]) * (0x8000 if fam == "x" else 16 * 3584)))
                lastw = (fam, j)
            m0c, vo, rs = {"q": (L_WQ + s * 4096, vDQ, SWQ), "x": (L_X + s * 16384 + j * 4096, vDX, SX),
                           "g": (L_G + s * 16384 + j * 4096, vDG, SWG), "u": (L_U + s * 16384 + j * 4096, vDG, SWU)}[kind]
            nt = " nt" if Opt.ntx & (1 if rs == SX else 2) else ""
            out.append(("s_add_u32 m0, s%d, 0x%x\n%s\nbuffer_load_dwordx4 %s, %s, s%d offen%s lds"
                        % ((sM0B + (j >> 1)) if rot else sWH, m0c, "\n".join(pre) or "s_nop 0", v(vo), srd(rs), sOFFW, nt), "c%d" % c))
        return out
    def part(c, role): return [(c, k_, j) for k_, j in ORDER if (k_ in "gu") == (role == "A")]

    def rdsetup(a):
        setup_rd(a)
        a.e("v_lshl_add_u32 %s, v3, 3, v2" % v(vWA))
        a.e("v_lshlrev_b32 %s, 8, %s" % (v(vWA), v(vWA)))
        a.e("v_lshl_add_u32 %s, v4, 3, %s" % (v(vWA), v(vWA)))
        a.e("v_and_b32 v5, 1, v3")
        a.e("v_lshl_add_u32 v2, v5, 2, v2")
        a.e("s_lshl_b32 s%d, s%d, 2" % (sA, sHI))
        a.e("s_and_b32 s%d, s%d, 1" % (sB, sLO))
        a.e("s_lshl_b32 s%d, s%d, 1" % (sB, sB))
        a.e("s_add_u32 s%d, s%d, s%d" % (sA, sA, sB))
        a.e("v_xor_b32 v2, s%d, v2" % sA)
        a.e("v_lshl_add_u32 %s, v2, 5, %s" % (v(vWA), v(vWA)))
        a.e("v_xor_b32 %s, 32, %s" % (v(vWA + 1), v(vWA)))
        a.e("v_add_u32 %s, 0x%x, %s" % (v(vWA + 2), L_U - L_G, v(vWA)))
        a.e("v_add_u32 %s, 0x%x, %s" % (v(vWA + 3), L_U - L_G, v(vWA + 1)))
        a.e("s_lshl_b32 s%d, s%d, 12" % (sA, sLO))
        a.e("s_add_u32 s%d, s%d, 0x%x" % (sA, sA, L_X))
        a.e("v_add_u32 %s, s%d, %s" % (v(vXA), sA, v(vXA)))
        a.e("v_xor_b32 %s, 0x1000, %s" % (v(vXA + 1), v(vXA)))
        a.e("v_xor_b32 %s, 64, %s" % (v(vXA + 2), v(vXA)))
        a.e("v_xor_b32 %s, 64, %s" % (v(vXA + 3), v(vXA + 1)))
        a.e("v_add_u32 %s, 0x%x, %s" % (v(vQA), L_WQ, v(vQA)))

    a.e("s_cmp_ge_u32 s%d, 4" % sW)
    a.e("s_cbranch_scc1 L_setB")
    late = collect(setup_oclr) + collect(setup_ones) + [("; later", None)] + collect(setup_attn)
    words = collect(lambda t: srd_words(t, [SWS, SKV, SDBG, SWD, SWO, SOUT]))
    late = [x for x in late if x not in words]
    oclr = [x for x in late if x[1] == "oclr"]
    if Opt.olate: late = [x for x in late if x[1] != "oclr"]
    else: oclr = []
    words += [("v_mov_b32 %s, 0" % v(r_), None) for r_ in (vGA, vWDV, vFLA, vHA, vOUTA)]
    st = collect(rdsetup) + words + late[:Opt.fillpre]
    cut = late.index(("; later", None)) if Opt.bidle else len(late)
    fills = {"A": late[Opt.fillpre:], "B": late[Opt.fillpre:max(cut, Opt.fillpre)]}
    idleB = late[max(cut, Opt.fillpre):]
    vms = {}
    wsrd(a); wvoff(a)
    a.e("s_waitcnt lgkmcnt(0)")
    a.stamp(2)
    if Opt.spos == 0: stouch(a)
    put(a, block(part(0, "A")))
    a.e("s_branch L_setA")
    vms["A"] = a.vm; a.vm = []
    a.lab("L_setB")
    srd_words(a, [SX]); xvoff(a, vTID)
    a.e("s_waitcnt lgkmcnt(0)")
    a.stamp(2)
    if Opt.spos == 0: stouch(a)
    put(a, block(part(0, "B")[1:]))
    srd_words(a, [SWQ]); qvoff(a)
    put(a, block(part(0, "B")[:1]))
    vms["B"] = a.vm
    for role in "BA":
        a.vm = vms[role]
        if role == "A": a.lab("L_setA")
        if Opt.spos == 1: stouch(a)
        table(a)
        setup_ids(a)
        if role == "A": srd_words(a, [SX, SWQ])
        else: wsrd(a)
        def touches():
            tm = sum(0xff << (8 * i) for i in range(4) if Opt.tch >> i & 1)
            setex = "s_bitcmp1_b32 s%d, 3\ns_cselect_b32 exec_lo, 0, 0x%x\ns_cselect_b32 exec_hi, 0x%x, 0" % (sG, tm, tm) if Opt.ghx \
                    else "s_mov_b32 exec_lo, 0x%x\ns_mov_b32 exec_hi, 0" % tm
            if Opt.tlb & 2 and role == "B":
                a.e("s_and_b32 s%d, s%d, 7" % (sA, sG))
                a.e("v_lshl_add_u32 v2, v0, 3, s%d" % sA)
                a.e("v_mul_u32_u24 v3, 3584, v2")
                a.e("s_and_b32 s%d, s%d, 1" % (sB, sW))
                a.e("s_lshl1_add_u32 s%d, s%d, s%d" % (sA, sM, sB))
                a.e("s_lshl_b32 s%d, s%d, 7" % (sA, sA))
                a.e(setex)
                a.e("s_cmp_ge_u32 s%d, 6" % sW)
                a.e("s_cbranch_scc1 L_tlbu")
                a.e("buffer_load_dword %s, v3, %s, s%d offen" % (v(vPOLL), srd(SWG), sA))
                a.e("s_branch L_tlbe")
                a.lab("L_tlbu")
                a.e("buffer_load_dword %s, v3, %s, s%d offen" % (v(vPOLL), srd(SWU), sA))
                a.lab("L_tlbe")
                a.e("s_mov_b64 exec, -1")
                a.vm.append("tlb")
            if Opt.tlb & 12 and role == "A":
                a.e("s_cmp_lg_u32 s%d, 0" % sW)
                a.e("s_cbranch_scc1 L_tlbx")
                a.e("s_and_b32 s%d, s%d, 7" % (sA, sG))
                a.e("v_lshl_add_u32 v2, v0, 3, s%d" % sA)
                a.e("v_lshlrev_b32 v3, 10, v2")
                a.e("s_lshl_b32 s%d, s%d, 6" % (sA, sHP))
                a.e(setex if Opt.tlb & 4 else "s_mov_b64 exec, 1")
                a.e("buffer_load_dword %s, v3, %s, s%d offen" % (v(vPOLL), srd(SWQ), sA))
                a.e("s_branch L_tlby")
                a.lab("L_tlbx")
                a.e("s_and_b32 s%d, s%d, 3" % (sA, sM))
                a.e("s_lshl2_add_u32 s%d, s%d, s%d" % (sA, sG, sA))
                a.e("s_lshl_b32 s%d, s%d, 15" % (sA, sA))
                a.e("v_lshl_add_u32 v3, v0, 10, s%d" % sA)
                a.e("s_lshr_b32 s%d, s%d, 3" % (sA, sG))
                a.e("s_lshl2_add_u32 s%d, s%d, s%d" % (sA, sA, sW) if Opt.ghx else "s_mov_b32 s%d, s%d" % (sA, sW))
                a.e("s_lshl_b32 s%d, s%d, 7" % (sA, sA))
                a.e("s_bitcmp1_b32 %d, s%d" % (Opt.tch if Opt.tlb & 8 else 0, sW))
                a.e("s_cselect_b32 exec_lo, -1, 1")
                a.e("s_mov_b32 exec_hi, 0")
                a.e("buffer_load_dword %s, v3, %s, s%d offen" % (v(vPOLL), srd(SX), sA))
                a.lab("L_tlby")
                a.e("s_mov_b64 exec, -1")
                a.vm.append("tlb")
        if Opt.tpos == 0: touches()
        if Opt.startbar: a.e("s_barrier")
        npre = min(Opt.npre, 8) if role == "A" else 5
        pn = block(part(1, role)[:npre])
        rest = st + (collect(qvoff) + collect(lambda t: xvoff(t, vTID)) if role == "A" else collect(wvoff))
        gap = len(rest) // (npre + Opt.pregap) + 1
        if Opt.tpos == 2:
            put(a, pn); touches(); npre = 0
        if Opt.tpos == 3 and role == "B":
            put(a, pn); touches(); npre = 0
        for i in range(npre):
            put(a, pn[:1]); pn = pn[1:]
            put(a, rest[:gap]); rest = rest[gap:]
        put(a, rest)
        if Opt.tpos == 1 or (Opt.tpos == 3 and role == "A"): touches()
        a.e("s_mov_b64 vcc, %d" % (-1 if role == "A" else 0))
        if role == "A":
            a.waitvm("c0", lgkm=True)
        else:
            a.e("s_setprio 1")
            a.waitvm("c0", lgkm=True)
            a.e("s_branch L_k0")
        vms[role] = a.vm
    stream = part(1, "A")[min(Opt.npre, 8):] + [(c, k_, j) for c in range(2, 8) for k_, j in ORDER]
    qa = [int(x, 16) for x in Opt.qa]; qb = [int(x, 16) for x in Opt.qb]
    def take(n, cmax):
        m = 0
        while m < n and m < len(stream) and stream[m][0] <= cmax: m += 1
        r_ = stream[:m]; del stream[:m]
        return block(r_)
    a.lab("L_k0")
    a.vm = vms["A"]
    ool = Asm()
    def dmablock(name, role, items, wait=None):
        a.e("s_cbranch_vcc%s L_%s" % ("nz" if role == "A" else "z", name))
        if wait: a.waitvm(wait, lgkm=True)
        a.lab("L_%s_r" % name)
        ool.lab("L_%s" % name)
        ool.vm = a.vm if role == "A" else vms["B"]
        for it_ in items:
            put(ool, [it_])
            fp = Opt.fillper if role == "A" or not Opt.bidle else 2
            put(ool, fills[role][:fp]); fills[role] = fills[role][fp:]
        if name in ("d7", "e7"): put(ool, fills[role]); fills[role] = []
        if wait: ool.waitvm(wait, lgkm=True)
        if role == "B": vms["B"] = ool.vm
        ool.e("s_branch L_%s_r" % name)
    a.ool = ool.l

    def fr(k):
        b = vF1 + 36 * (k % 2)
        return dict(x=b, w=b + 16, q=b + 32)
    def reads(k):
        c, s = divmod(k, 2); f = fr(k); sl = c % 3
        wo = sl * 16384 + s * 8192
        W = lambda i: [rdtr(f['w'] + 4 * i, vWA + i, wo), rdtr(f['w'] + 4 * i + 2, vWA + i, wo + 1024)]
        X = [rd128(f['x'] + 4 * b, vXA + 2 * s + (b >> 1), sl * 16384 + (b & 1) * 2048) for b in range(4)]
        return W(0) + X + W(2) + W(1) + W(3) + [rdtr(f['q'], vQA, sl * 4096 + s * 2048), rdtr(f['q'] + 2, vQA, sl * 4096 + s * 2048 + 256)]
    a.e("s_barrier")
    a.stamp(3)
    if Opt.kdiag or Opt.probe >= 18:
        kstamp(a, 2)
        a.e("s_waitcnt lgkmcnt(0)")
    for r in reads(0): a.e(r)
    if qa[0]: dmablock("d2", "A", take(qa[0], 2))
    for k in range(16):
        c, s = divmod(k, 2); f = fr(k)
        z = lambda x: None if k == 0 else x
        mf = []
        for n_, i in enumerate((0, 2, 1, 3)):
            for b in (range(4) if n_ % 2 == 0 else range(3, -1, -1)):
                d = vACC + 16 * b + 4 * i
                mf.append(mfma16(d, f['w'] + 4 * i, f['x'] + 4 * b, z(d)))
        for b in range(2): mf.append(mfma16(vAQ + 4 * b, f['q'], f['x'] + 4 * b, z(vAQ + 4 * b)))
        rds = reads(k + 1) if k < 15 else []
        if s == 0:
            a.e("s_waitcnt lgkmcnt(6)")
            for i, m in enumerate(mf):
                if i == 8: a.e("s_waitcnt lgkmcnt(8)")
                a.e(m)
                if i < len(rds): a.e(rds[i])
            continue
        a.e("s_waitcnt lgkmcnt(8)")
        for m in mf[:4]: a.e(m)
        if c <= 5:
            dmablock("e%d" % (c + 2), "B", take(qb[c], c + 2), "c%d" % (c + 1))
            assert not any(x[0] <= c + 1 for x in stream)
        if c == 7:
            a.e("s_waitcnt lgkmcnt(0)")
        elif c == 6:
            a.e("s_waitcnt lgkmcnt(0)")
            a.e("s_cbranch_vccz L_st7")
            a.e("s_setprio 1")
            a.e("s_waitcnt vmcnt(0)")
            a.e("s_barrier")
            a.lab("L_st7")
        else:
            a.e("s_barrier")
        if c < 7 and ((Opt.kdiag == 1 and Opt.diag) or Opt.probe == 21 + c):
            kstamp(a, 3 + c)
            a.e("s_waitcnt lgkmcnt(0)")
        if c + 3 < 8:
            items = take(qa[c + 1], c + 3)
            dmablock("d%d" % (c + 3), "A", items)
        for i, m in enumerate(mf[4:]):
            a.e(m)
            if i < len(rds): a.e(rds[i])
        if k == 11: assert not stream and not fills["A"] and not fills["B"]
        if k == 11:
            a.e("s_cbranch_vccnz L_st6")
            a.e("s_setprio 0")
            nm = next((i for i, x in enumerate(idleB) if "0xdddd" in x[0]), 0)
            a.e("s_cmp_lg_u32 s%d, 4" % sW)
            a.e("s_cbranch_scc1 L_nopoll")
            a.e("buffer_load_dword %s, off, %s, 0 sc1" % (v(vPOLL), srd(SDBG)))
            a.lab("L_nopoll")
            put(a, idleB[:nm]); idleB = idleB[nm:]
            a.wait0()
            spin_counter(a, "kvf", True, 4)
            a.e("s_barrier")
            put(a, kv_first_loads(a, True) + oclr + idleB)
            a.lab("L_st6")
    a.kvA = (kv_first_loads(a) + oclr)[2:]
    a.stamp(4)

def phase1_L(a):
    a.lab("L_light")
    a.vm = []
    a.e("s_waitcnt lgkmcnt(0)")
    ptr_loads(a, ((SWKV, 16), (SWV, 24), (SGATE, 72), (SWO, 32)))
    srd_words(a, [SWKV, SWV, SGATE, SX])
    xvoff(a, 0)
    a.e("v_and_b32 v2, 63, v0")
    a.e("v_lshlrev_b32 %s, 4, v2" % v(vL16))
    a.e("s_sub_u32 s%d, s%d, 14" % (sCNT, sM))
    a.e("s_lshl_b32 s%d, s%d, 16" % (sOLD, sCNT))
    a.e("s_lshl_b32 s%d, s%d, 13" % (sHST, sCNT))
    a.e("s_add_u32 s%d, s%d, s%d" % (sWH, sHST, sWK))
    a.e("s_xor_b32 s%d, s%d, 0x2000" % (sHST, sHST))
    a.e("s_add_u32 s%d, s%d, 0x2000" % (sA, sWK))
    a.e("s_waitcnt lgkmcnt(0)")
    a.stamp(2)
    def xdma(c, base, so):
        a.vmop("s_add_u32 m0, s%d, 0x%x\ns_nop 0\nbuffer_load_dwordx4 %s, %s, s%d offen offset:%d lds"
               % (base, LL_X + c * 16384 - c * 128, v(vDX), srd(SX), so, c * 128), "c%d" % c)
    def wdma(u):
        for t, rs in enumerate((SWKV, SWV)):
            a.vmop("s_add_u32 m0, s%d, 0x%x\ns_nop 0\nbuffer_load_dwordx4 %s, %s, s%d offen lds"
                   % (sWK, LL_W + t * 16384 + u * 8192, v(vL16), srd(rs), sA if u else sWK), "w")
    wdma(0)
    a.vmop("s_mov_b32 m0, s%d\ns_nop 0\nbuffer_load_dwordx4 %s, %s, 0 offen lds" % (sHST, v(vL16), srd(SGATE)), "w")
    for c in range(8):
        if c == 4: wdma(1)
        xdma(c, sWH, sOLD)
        if c in (1, 3, 5): a.e("s_barrier")
    setup_ids(a)
    srd_words(a, [SWQ])
    setup_rd(a)
    a.e("v_lshrrev_b32 v3, 5, v0")
    a.e("v_bfrev_b32 v5, v4")
    a.e("v_lshrrev_b32 v5, 30, v5")
    a.e("s_cmp_ge_u32 s%d, 2" % sLO)
    a.e("s_cselect_b64 vcc, -1, 0")
    a.e("v_cndmask_b32 v4, v5, v4, vcc")
    a.e("v_lshl_add_u32 %s, v3, 3, v2" % v(vWA))
    a.e("v_lshlrev_b32 %s, 5, %s" % (v(vWA), v(vWA)))
    a.e("v_lshl_add_u32 %s, v4, 3, %s" % (v(vWA), v(vWA)))
    a.e("s_lshr_b32 s%d, s%d, 1" % (sA, sLO))
    a.e("s_lshl_b32 s%d, s%d, 14" % (sA, sA))
    a.e("s_add_u32 s%d, s%d, 0x%x" % (sA, sA, LL_W))
    a.e("v_add_u32 %s, s%d, %s" % (v(vWA), sA, v(vWA)))
    a.e("v_lshl_add_u32 %s, v3, 4, s%d" % (v(vWA + 1), sHST))
    a.e("s_and_b32 s%d, s%d, 1" % (sA, sLO))
    a.e("s_lshl_b32 s%d, s%d, 1" % (sB, sCNT))
    a.e("s_add_u32 s%d, s%d, s%d" % (sCNT, sA, sB))
    a.e("s_lshl_b32 s%d, s%d, 12" % (sA, sCNT))
    a.e("v_and_b32 v2, 31, v0")
    a.e("v_lshrrev_b32 v4, 1, v0")
    a.e("v_lshlrev_b32 v5, 1, v0")
    a.e("v_bfi_b32 v4, 4, v4, v5")
    a.e("v_bfi_b32 v4, 12, v4, v2")
    a.e("v_cndmask_b32 v2, v2, v4, vcc")
    a.e("v_bfe_u32 v4, v2, 1, 3")
    a.e("v_xor_b32 v4, v4, v3")
    a.e("v_lshlrev_b32 v4, 4, v4")
    a.e("v_lshl_add_u32 v4, v2, 7, v4")
    a.e("v_add_u32 %s, s%d, v4" % (v(vLX), sA))
    for s in range(1, 4): a.e("v_xor_b32 %s, %d, %s" % (v(vLX + s), 32 * s, v(vLX)))
    for s in range(4): a.e("v_add_u32 %s, 0x10000, %s" % (v(vLX + 4 + s), v(vLX + s)))
    a.e("s_waitcnt lgkmcnt(0)")
    setup_oclr(a)
    vm0 = list(a.vm)
    a.e("s_cmp_lg_u32 s%d, 0" % sHI)
    a.e("s_cbranch_scc1 L_lB")
    a.e("s_not_b64 %s, %s" % (sp(sTMPP), sp(sVM)))
    a.e("s_cmp_ge_u32 s%d, 2" % sLO)
    a.e("s_cbranch_scc1 L_lV")
    def chain(kind):
        a.vm = list(vm0)
        def fr(k):
            b = vFR + 8 * (k % 4)
            return b, b + 4
        def reads(k):
            c, s = divmod(k, 4); x, w = fr(k)
            r = [rd128(x, vLX + s + 4 * (c >> 2), (c & 3) * 16384), rdtr(w, vWA, k * 512), rdtr(w + 2, vWA, k * 512 + 128)]
            if kind == "K":
                r += ["s_mov_b64 exec, %s" % sp(sTMPP), rd128(w, vWA + 1, k * 32), "s_mov_b64 exec, -1"]
            return r
        for q in range(4):
            a.waitvm("c%d" % (2 * q + 1))
            a.e("s_barrier")
            nr = 4 if kind == "K" else 3
            for k in range(8 * q, 8 * q + 2):
                for r in reads(k): a.e(r)
            for k in range(8 * q, 8 * q + 8):
                if k + 2 < 8 * q + 8:
                    for r in reads(k + 2): a.e(r)
                left = min(2, 8 * q + 7 - k)
                a.e("s_waitcnt lgkmcnt(%d)" % (left * nr))
                x, w = fr(k)
                cc = None if k == 0 else vACC
                a.e(mfma(vACC, w, x, cc) if kind == "K" else mfma(vACC, x, w, cc))
        a.e("s_lshl_b32 s%d, s%d, 2" % (sA, sG))
        a.e("s_add_u32 s%d, s%d, s%d" % (sA, sA, sCNT))
        a.e("s_nop 12")
        if kind == "K":
            a.e("s_mov_b32 s%d, 0x%x" % (sC, f2u(0.25 * math.log2(math.e))))
            for i in range(8): a.e("v_mul_f32 %s, s%d, %s" % (v(vACC + i), sC, v(vACC + i)))
            a.e("v_mul_f32 %s, 0x%x, %s" % (v(vACC + 8), f2u(-math.log2(math.e)), v(vACC + 8)))
            a.e("v_exp_f32 %s, %s" % (v(vACC + 8), v(vACC + 8)))
            for i in range(4): a.e("v_cvt_pk_bf16_f32 %s, %s, %s" % (v(vFR + i), v(vACC + 2 * i), v(vACC + 2 * i + 1)))
            a.e("v_add_f32 %s, 1.0, %s" % (v(vACC + 8), v(vACC + 8)))
            a.e("v_rcp_f32 %s, %s" % (v(vACC + 8), v(vACC + 8)))
            a.e("s_add_u32 s%d, s%d, 63" % (sB, sA))
            a.e("s_and_b32 s%d, s%d, 63" % (sB, sB))
            a.e("s_lshl_b32 s%d, s%d, 11" % (sB, sB))
            a.e("buffer_store_dwordx4 %s, %s, %s, s%d offen sc1" % (v(vFR, 4), v(vL16), srd(SKV), sB))
            a.e("s_lshl_b32 s%d, s%d, 7" % (sB, sA))
            a.e("s_add_u32 s%d, s%d, 0x%x" % (sB, sB, WS_G))
            a.e("s_mov_b32 exec_hi, 0")
            a.e("buffer_store_dword %s, %s, %s, s%d offen sc1" % (v(vACC + 8), v(vGA), srd(SWS), sB))
            a.e("s_mov_b64 exec, -1")
        else:
            for i in range(8): a.e("v_cvt_pk_bf16_f32 %s, %s, %s" % (v(vFR + i), v(vACC + 2 * i), v(vACC + 2 * i + 1)))
            a.e("v_bfe_u32 v2, v0, 4, 1")
            a.e("v_add_u32 v2, s%d, v2" % sA)
            a.e("v_and_b32 v2, 63, v2")
            a.e("v_lshl_add_u32 v2, v2, 11, %s" % v(vL16))
            for i in range(4): a.e("v_cndmask_b32 %s, %s, %s, %s" % (v(vFR + i), v(vFR + 4 + i), v(vFR + i), sp(sVM)))
            a.e("buffer_store_dwordx4 %s, v2, %s, 0 offen offset:1024 sc1" % (v(vFR, 4), srd(SKV)))
        a.e("s_branch L_lJ")
    chain("K")
    a.lab("L_lV")
    chain("V")
    a.lab("L_lB")
    a.vm = list(vm0)
    a.e("s_cmp_lg_u32 s%d, 14" % sM)
    a.e("s_cbranch_scc1 L_nozf")
    a.e("s_cmp_lg_u32 s%d, 4" % sW)
    a.e("s_cbranch_scc1 L_nozf")
    a.e("v_lshlrev_b32 v2, 7, v0")
    a.e("s_lshl_b32 s%d, s%d, 11" % (sA, sG))
    a.e("s_add_u32 s%d, s%d, 0x%x" % (sA, sA, WS_HFLAG))
    a.e("s_mov_b64 exec, 0xffff")
    a.e("buffer_store_dword %s, v2, %s, s%d offen sc1" % (v(vZERO), srd(SWS), sA))
    a.e("s_mov_b64 exec, -1")
    a.lab("L_nozf")
    for q in range(4):
        a.waitvm("c%d" % (2 * q + 1))
        a.e("s_barrier")
    a.lab("L_lJ")
    a.e("v_lshrrev_b32 v3, 2, v0")
    a.e("v_lshlrev_b32 v3, 10, v3")
    a.e("v_lshrrev_b32 v4, 5, v0")
    a.e("v_lshlrev_b32 v4, 1, v4")
    a.e("v_xor_b32 v4, v4, v0")
    a.e("v_and_b32 v4, 3, v4")
    a.e("v_lshl_add_u32 v3, v4, 4, v3")
    a.e("s_lshl_b32 s%d, s%d, 14" % (sA, sW))
    a.e("s_lshl_b32 s%d, s%d, 6" % (sB, sHP))
    a.e("s_add_u32 s%d, s%d, s%d" % (sA, sA, sB))
    a.e("v_add_u32 %s, s%d, v3" % (v(vDQ), sA))
    a.e("s_xor_b32 s%d, s%d, 0x2000" % (sWH, sWH))
    a.e("s_xor_b32 s%d, s%d, 0x10000" % (sOLD, sOLD))
    a.wait0(lgkm=True)
    a.e("s_barrier")
    a.e("s_cmp_lg_u32 s%d, 0" % sW)
    a.e("s_cbranch_scc1 L_noat")
    a.e("s_mov_b64 exec, 1")
    a.e("buffer_atomic_add %s, off, %s, 0 sc1" % (v(vONE), srd(SDBG)))
    a.e("s_mov_b64 exec, -1")
    a.lab("L_noat")
    a.stamp(3)
    for c in range(8): xdma(c, sWH, sOLD)
    for p in range(4):
        a.e("s_add_u32 m0, s%d, 0x%x" % (sWK, LL_WQ + p * 8192))
        a.e("s_mov_b32 s%d, 0x%x" % (sA, p * 128 * 1024))
        a.e("buffer_load_dwordx4 %s, %s, s%d offen lds" % (v(vDQ), srd(SWQ), sA))
    setup_ones(a)
    setup_attn(a)
    if Opt.touch & 2:
        a.e("s_lshl_b32 s%d, s%d, 1" % (sA, sG))
        a.e("s_add_u32 s%d, s%d, s%d" % (sA, sA, sM))
        a.e("s_sub_u32 s%d, s%d, 14" % (sA, sA))
        a.e("s_lshl_b32 s%d, s%d, 3" % (sA, sA))
        a.e("s_add_u32 s%d, s%d, s%d" % (sA, sA, sW))
        a.e("v_lshlrev_b32 v2, 15, v0")
        a.e("s_lshl_b32 s%d, s%d, 7" % (sA, sA))
        a.e("buffer_load_dword %s, v2, %s, s%d offen" % (v(vPOLL), srd(SWO), sA))
        a.e("buffer_load_dword %s, v2, %s, s%d offen" % (v(vPOLL), srd(SWD), sA))
    a.e("s_lshl_b32 s%d, s%d, 12" % (sA, sLO))
    a.e("v_add_u32 %s, s%d, %s" % (v(vXA), sA, v(vXA)))
    a.e("v_xor_b32 %s, 64, %s" % (v(vXA + 1), v(vXA)))
    a.e("v_add_u32 %s, 0x10000, %s" % (v(vXA + 2), v(vXA)))
    a.e("v_add_u32 %s, 0x10000, %s" % (v(vXA + 3), v(vXA + 1)))
    a.e("v_add_u32 %s, 0x%x, %s" % (v(vQA), LL_WQ, v(vQA)))
    a.e("s_waitcnt vmcnt(%d)" % (2 if Opt.touch & 2 else 0))
    a.e("s_barrier")
    def fr(k): return vFR + 12 * (k % 3)
    def reads(k):
        c, s = divmod(k, 2); f = fr(k)
        return [rd128(f + 4 * b, vXA + s + 2 * (c >> 2), (c & 3) * 16384 + b * 2048) for b in range(2)] + \
               [rdtr(f + 8, vQA, k * 2048), rdtr(f + 10, vQA, k * 2048 + 256)]
    for k in range(2):
        for r in reads(k): a.e(r)
    for k in range(16):
        a.e("s_waitcnt lgkmcnt(%d)" % (4 * min(1, 15 - k)))
        for b in range(2): a.e(mfma16(vAQ + 4 * b, fr(k) + 8, fr(k) + 4 * b, None if k == 0 else vAQ + 4 * b))
        if k + 2 < 16:
            for r in reads(k + 2): a.e(r)
    spin_counter(a, "kvl", False)
    a.e("s_barrier")
    for s, t in kv_first_loads(a): a.e(s)
    a.wait0()
    a.stamp(4)
    a.e("s_branch L_join")

def gelu_tile(a, ti, scalar=False):
    acc = vACC + 16 * ti
    t = vFR
    o = vFR + 8 + 4 * ti
    pk = lambda r: v(r, 2)
    if scalar:
        for i in range(8): a.e("v_mul_f32 %s, %s, %s" % (v(t + i), v(acc + i), v(acc + i)))
        for i in range(8): a.e("v_fma_f32 %s, %s, %s, %s" % (v(t + i), v(t + i), v(vC0 + 1), v(vC0)))
        for i in range(8): a.e("v_mul_f32 %s, %s, %s" % (v(t + i), v(t + i), v(acc + i)))
        for i in range(8): a.e("v_exp_f32 %s, %s" % (v(t + i), v(t + i)))
        for i in range(8): a.e("v_add_f32 %s, 1.0, %s" % (v(t + i), v(t + i)))
        for i in range(8): a.e("v_rcp_f32 %s, %s" % (v(t + i), v(t + i)))
        for i in range(8): a.e("v_mul_f32 %s, %s, %s" % (v(acc + i), v(acc + i), v(acc + 8 + i)))
        for i in range(8): a.e("v_mul_f32 %s, %s, %s" % (v(acc + i), v(acc + i), v(t + i)))
    R4, R8 = (range(0), range(0)) if scalar else (range(4), range(8))
    for i in R4: a.e("v_pk_mul_f32 %s, %s, %s" % (pk(t + 2 * i), pk(acc + 2 * i), pk(acc + 2 * i)))
    for i in R4: a.e("v_pk_fma_f32 %s, %s, %s, %s op_sel:[0,1,0] op_sel_hi:[1,1,0]" % (pk(t + 2 * i), pk(t + 2 * i), pk(vC0), pk(vC0)))
    for i in R4: a.e("v_pk_mul_f32 %s, %s, %s" % (pk(t + 2 * i), pk(t + 2 * i), pk(acc + 2 * i)))
    for i in R8: a.e("v_exp_f32 %s, %s" % (v(t + i), v(t + i)))
    for i in R4: a.e("v_pk_add_f32 %s, %s, 1.0 op_sel_hi:[1,0]" % (pk(t + 2 * i), pk(t + 2 * i)))
    for i in R8: a.e("v_rcp_f32 %s, %s" % (v(t + i), v(t + i)))
    for i in R4: a.e("v_pk_mul_f32 %s, %s, %s" % (pk(acc + 2 * i), pk(acc + 2 * i), pk(acc + 8 + 2 * i)))
    for i in R4: a.e("v_pk_mul_f32 %s, %s, %s" % (pk(acc + 2 * i), pk(acc + 2 * i), pk(t + 2 * i)))
    for i in range(4): a.e("v_cvt_pk_bf16_f32 %s, %s, %s" % (v(o + i), v(acc + 2 * i), v(acc + 2 * i + 1)))
    a.vmop("buffer_store_dwordx4 %s, %s, %s, s%d offen offset:%d sc1" % (v(o, 4), v(vHA), srd(SWS), sHST2 if ti >> 1 else sHST, (ti & 1) * 256), "hst")

def Yseg(hset, toggle=False, first=False, extra=False, last=False):
    out = []
    for t in range(2):
        pos = [int(x, 17) for x in (Opt.ypos0 if hset is None else Opt.ypos2 if extra else Opt.ypos1)]
        if last and t == 1: pos = [pos[0], 0, 11, pos[1]]
        S, Sn = vS + 16 * t, vS + 16 * (1 - t)
        K, V0, V1 = vKF + 4 * t, vV + 8 * t, vV + 8 * t + 4
        for e in range(1, 17):
            out.append("v_exp_f32 %s, %s" % (v(S + e - 1), v(S + e - 1)))
            if e == pos[0] and not (first and t == 0): out.append(smfmac(vO, V1, Sn + 8))
            if e == pos[1]: out.append(mfma(Sn, K, vQ, None))
            if e == pos[2]: out.append(smfmac(vO, V0, S))
            if hset is not None:
                if e == 13 and t == 1 and toggle:
                    out.append("v_xor_b32 %s, 0x4000, %s" % (v(vKVB), v(vKVB)))
                if e == pos[3]: out.append(mfma(vD + 16 * t, vWF + 4 * t, vH + 4 * hset, vD + 16 * t))
                if extra and e == pos[4]: out.append(mfma(vD + 16 * t, vFR + 16 + 4 * t, vH + 16 + 4 * hset, vD + 16 * t))
    return out

def kv_reads(off, vKVA=vKVA):
    r = [rd128(vKF, vKVA, off), rd128(vKF + 4, vKVA, off + 2048), "s_mov_b64 exec, %s" % sp(sVM)]
    for t in range(2):
        r += [rd128(vV + 8 * t, vKVA, off + 2048 * t + 1024), rd128(vV + 8 * t + 4, vKVA, off + 2048 * t + 1280)]
    r.append("s_mov_b64 exec, -1")
    return r
def wd_reads(dst, addr, off):
    r = []
    for c in range(2):
        r += [rdtr(dst + 4 * c, addr, off + 512 * c), rdtr(dst + 4 * c + 2, addr, off + 512 * c + 1024)]
    return r

def hord(): return [0, 2, 4, 6, 1, 3, 5, 7] if Opt.hord else list(range(8))
def wdrow(sg): return (32 * (sg >> 1) + 8 * (sg & 1)) * 1024

def attention(a, role, pre0=None):
    A = role == "A"
    def kvdma(u):
        a.vmop("s_add_u32 m0, s%d, 0x%x\ns_add_u32 s%d, s%d, 0x%x\nbuffer_load_dwordx4 %s, %s, s%d offen sc1 lds"
               % (sWK, L_KV + (u % 4) * 8192, sA, sWK, u * 8192, v(vL16), srd(SKV), sA), "kv%d" % u)
    def wddma(sg):
        a.vmop("s_add_u32 m0, s%d, 0x%x\ns_add_u32 s%d, s%d, 0x%x\nbuffer_load_dwordx4 %s, %s, s%d offen lds"
               % (sWK, L_WD + (sg % 4 if sg < 23 or sg == 27 else sg - 19) * 8192, sA, sWDOFF, wdrow(sg), v(vWDV), srd(SWD), sA), "wd%d" % sg)
    def wodma(j):
        a.vmop("s_add_u32 m0, s%d, 0x%x\ns_add_u32 s%d, s%d, 0x%x\nbuffer_load_dwordx4 %s, %s, s%d offen lds"
               % (sWK, L_WO + (7 - j) * 8192, sA, sB, hord()[j] * 16384, v(vWDV), srd(SWO), sA), "wo%d" % j)
    def hload(sg, dst):
        a.vmop("s_add_u32 s%d, s%d, 0x%x\nbuffer_load_dwordx4 %s, %s, %s, s%d offen sc1"
               % (sA, sHOFF, sg * 1024, v(dst, 4), v(vL16), srd(SWS), sA), "h%d" % sg)
    for n in range(12):
        if not A and n == 0: a.e("s_barrier")
        if n % 2 == 1: astamp(a, 2 + n // 2)
        if n == Opt.pcyc: a.e("s_memtime %s" % sp(sSTAMP + 6))
        tags = []
        if A and n % 2 == 1: tags.append("kv%d" % ((n + 1) // 2))
        if not A and n % 2 == 0: tags.append("kv%d" % ((n + 2) // 2))
        if n == Opt.hpub - (0 if A else 1): tags.append("hst")
        if n == 7: tags.append("wo4")
        if n == 9: tags.append("wd27")
        if n == 11: tags.append("wd0")
        if n == 9 and A:
            a.e("s_cmp_lg_u32 s%d, 0" % sW)
            a.e("s_cbranch_scc1 L_hf_done")
            a.e("s_mov_b32 s%d, 0x4000" % sB)
            a.e("s_waitcnt vmcnt(0)")
            a.lab("L_hf_chk")
            a.e("v_cmp_ne_u32 vcc, 1, %s" % v(vPOLL))
            a.e("s_cbranch_vccz L_hf_done")
            a.e("s_sleep 2")
            a.e("buffer_load_dword %s, %s, %s, 0 offen sc1" % (v(vPOLL), v(vFLA), srd(SWS)))
            a.e("s_sub_u32 s%d, s%d, 1" % (sB, sB))
            a.e("s_cmp_lg_u32 s%d, 0" % sB)
            a.e("s_waitcnt vmcnt(0)")
            a.e("s_cbranch_scc1 L_hf_chk")
            a.lab("L_hf_done")
        a.waitvm(tags)
        if n == 5 and Opt.diag == 3 and A:
            a.e("v_mov_b32 v2, s%d" % sSTAMP)
            a.e("s_lshl_b32 s%d, s2, 3" % sA)
            a.e("s_add_u32 s%d, s%d, s%d" % (sA, sA, sW))
            a.e("s_lshl_b32 s%d, s%d, 7" % (sA, sA))
            a.e("s_add_u32 s%d, s%d, 0x%x" % (sA, sA, WS_STAMP))
            a.e("s_mov_b64 exec, 1")
            a.vmop("buffer_store_dword v2, off, %s, s%d offset:12 sc1" % (srd(SWS), sA), "st")
            a.e("s_mov_b64 exec, -1")
        if n == Opt.hpub and not A:
            a.e("s_cmp_ge_u32 s%d, 14" % sM)
            a.e("s_cbranch_scc1 L_nohf")
            a.e("s_cmp_lg_u32 s%d, 4" % sW)
            a.e("s_cbranch_scc1 L_nohf")
            a.e("s_lshl_b32 s%d, s%d, 4" % (sA, sG))
            a.e("s_add_u32 s%d, s%d, s%d" % (sA, sA, sM))
            a.e("s_lshl_b32 s%d, s%d, 7" % (sA, sA))
            a.e("s_add_u32 s%d, s%d, 0x%x" % (sA, sA, WS_HFLAG))
            a.e("s_mov_b64 exec, 1")
            a.e("buffer_store_dword %s, off, %s, s%d sc1" % (v(vONE), srd(SWS), sA))
            a.e("s_mov_b64 exec, -1")
            a.lab("L_nohf")
        for r in kv_reads((n % 8) * 4096): a.e(r)
        if n == 8 and A:
            a.e("s_cmp_lg_u32 s%d, 0" % sW)
            a.e("s_cbranch_scc1 L_hf_nol")
            a.e("buffer_load_dword %s, %s, %s, 0 offen sc1" % (v(vPOLL), v(vFLA), srd(SWS)))
            a.lab("L_hf_nol")
        if n == 0:
            if A or Opt.hpub == 3:
                kvdma(2); kvdma(3)
            a.e("s_mov_b32 s%d, s%d" % (sC, sKQ))
            a.e("s_mul_i32 s%d, s%d, %d" % (sWDOFF, sC, 448 * 1024))
            a.e("s_and_b32 s%d, s%d, 1" % (sB, sW))
            a.e("s_lshl_b32 s%d, s%d, 14" % (sA, sB))
            a.e("s_add_u32 s%d, s%d, s%d" % (sWDOFF, sWDOFF, sA))
            a.e("s_lshl_b32 s%d, s%d, 1" % (sA, sT))
            a.e("s_add_u32 s%d, s%d, s%d" % (sA, sA, sB))
            a.e("s_mul_i32 s%d, s%d, 112" % (sA, sA))
            a.e("s_mul_i32 s%d, s%d, 28" % (sB, sC))
            a.e("s_add_u32 s%d, s%d, s%d" % (sA, sA, sB))
            a.e("s_lshl_b32 s%d, s%d, 10" % (sA, sA))
            a.e("s_add_u32 s%d, s%d, 0x%x" % (sHOFF, sA, WS_HF))
        if (A and n % 2 == 1 and n >= 3): kvdma((n + 5) // 2)
        if (not A and n % 2 == 0 and n >= 2): kvdma((n + 6) // 2)
        if Opt.wo0 <= n < Opt.wo0 + 4:
            a.e("s_lshl_b32 s%d, s%d, 17" % (sB, sKQ))
            a.e("s_and_b32 s%d, s%d, 1" % (sC, sW))
            a.e("s_lshl_b32 s%d, s%d, 13" % (sC, sC))
            a.e("s_add_u32 s%d, s%d, s%d" % (sB, sB, sC))
            for j in (2 * (n - Opt.wo0), 2 * (n - Opt.wo0) + 1): wodma(j)
        for sg in {7: (27, 0), 9: (1,), 10: (2,)}.get(n, ()): wddma(sg)
        if n == 10:
            for r in wd_reads(vWX, vWDA, 3 * 8192): a.e(r)
        for j in {8: (0, 1), 9: (2,), 11: (3, 4)}.get(n, ()):
            for r in wd_reads(WOF[j], vWOA, (7 - j) * 8192): a.e(r)
        hs = {10: (0, 1, 23, 24), 11: (2, 25, 26, 27)} if A else {9: (0, 1, 23), 10: (2, 24), 11: (25, 26, 27)}
        if Opt.hlate: hs = {10: (0, 1), 11: (2,)} if A else {9: (0,), 10: (1,), 11: (2,)}
        for sg in hs.get(n, ()): hload(sg, vH + 4 * sg if sg < 4 else vHX if sg == 27 else vH + 4 * (sg - 19))
        if n == 11:
            a.e("s_add_u32 s%d, s%d, 0x%x" % (sHOFF, sHOFF, 3 * 1024))
            a.e("s_add_u32 s%d, s%d, 0x%x" % (sB, sWDOFF, wdrow(23)))
            a.e("s_mov_b32 s%d, 0x6000" % sC)
            a.e("s_add_u32 s%d, s%d, 0x%x" % (sD, sWK, L_WD + 4 * 8192))
            a.e("s_add_u32 s%d, s%d, 0x%x" % (sWDOFF, sWDOFF, wdrow(3)))
            a.e("s_add_u32 s%d, s%d, 0x%x" % (sKVOFF, sWK, 9 * 8192))
            a.e("s_mov_b32 s%d, 4" % sCNT)
            a.e("s_add_u32 s%d, s%d, 0x1000" % (sOLD2, sOLD))
            a.e("s_mov_b32 s%d, 0x%x" % (sLO_, f2u(2.0 ** -16)))
            a.e("s_mov_b32 s%d, 0x%x" % (sRNG, f2u(2.0 ** 100) - f2u(2.0 ** -16)))
        if n == 0 and pre0:
            pre0()
            a.stamp(5)
        a.e("s_waitcnt lgkmcnt(0)")
        if n == 0:
            if A: a.e("s_barrier")
            for x in Yseg(None, first=True): a.e(x)
            if not A: a.e("s_barrier")
            continue
        a.e("s_call_b64 %s, L_Y%s" % (sp(sRET), role))
        if n == 1:
            a.e("s_branch L_X1%s" % role)
            a.lab("L_Y%s" % role)
            if A: a.e("s_barrier")
            for x in Yseg(None): a.e(x)
            if not A: a.e("s_barrier")
            a.e("s_setpc_b64 %s" % sp(sRET))
            a.lab("L_X1%s" % role)
    assert not (Opt.hlate and Opt.nx)
    hl = {28: (27, 23), 29: (24, 25), 30: (26,)} if Opt.hlate else {}
    vm = list(a.vm); need = [63] * 8
    for n in range(12, 32):
        p = n % 4; q = p + (4 if n >= 28 else 0)
        tags = ["wd%d" % (n - 11), "h%d" % (n - 12)]
        if (p % 2 == 1) == A: tags.append("kv%d" % ((n + (1 if A else 2)) // 2))
        idx = [i for i, t in enumerate(vm) if t in tags]
        if idx: need[q] = min(need[q], len(vm) - 1 - max(idx))
        vm.append("wd%d" % (n - 9))
        vm.append("h%d" % (n - 9))
        if (p % 2 == 1) == A and n < 28: vm.append("kv%d" % ((n + (5 if A else 6)) // 2))
        if p == (0 if A else 1) and n < 28: vm.append("park")
        vm += ["hx"] * len(hl.get(n, ()))
    a.lab("L_loop%s" % role)
    for q in range(8):
        p = q % 4; fin = q >= 4
        kv = (p % 2 == 1) == A and not fin
        if q == 0 and Opt.diag and Opt.kdiag == 2:
            a.e("s_cmp_lg_u32 s%d, 3" % sCNT)
            a.e("s_cbranch_scc1 L_nst%s" % role)
            astamp(a, 8)
            a.lab("L_nst%s" % role)
        a.e("s_waitcnt vmcnt(%d)" % need[q])
        for i, r in enumerate(kv_reads(p * 4096, vKVB)):
            if not (q == 7 and i == 1): a.e(r)
        if q <= 8 - Opt.nd:
            for r in wd_reads(vWF, vWDA, p * 8192): a.e(r)
        if fin and p < Opt.nx:
            for r in wd_reads(vFR + 16, vWDA, (4 + p) * 8192): a.e(r)
        if q == 7:
            for r in wd_reads(vFR, vWDA, (4 + Opt.nx) * 8192): a.e(r)
        a.e("s_add_u32 m0, s%d, 0x%x" % (sWK, L_WD + ((p + 3) % 4) * 8192))
        a.e("s_and_b32 s%d, s%d, 0x7fff" % (sA, sKVOFF))
        a.e("buffer_load_dwordx4 %s, %s, s%d offen lds" % (v(vWDV), srd(SWD), sWDOFF))
        a.e("s_add_u32 s%d, s%d, 0x%x" % (sWDOFF, sWDOFF, 0x2000 if p & 1 else 0x6000))
        a.e("buffer_load_dwordx4 %s, %s, %s, s%d offen sc1" % (v(vKF + 4 if q == 7 and Opt.nd == 2 else vH + 4 * ((p + 3) % 4), 4), v(vL16), srd(SWS), sHOFF))
        if kv: a.e("s_add_u32 m0, s%d, 0x%x" % (sA, L_KV))
        a.e("s_add_u32 s%d, s%d, 0x400" % (sHOFF, sHOFF))
        if kv:
            a.e("buffer_load_dwordx4 %s, %s, s%d offen sc1 lds" % (v(vL16), srd(SKV), sKVOFF))
            a.e("s_add_u32 s%d, s%d, 0x2000" % (sKVOFF, sKVOFF))
        if q == (0 if A else 1):
            a.e("s_mov_b32 m0, s%d" % sD)
            a.e("s_add_u32 s%d, s%d, 0x2000" % (sD, sD))
            a.e("buffer_load_dwordx4 %s, %s, s%d offen lds" % (v(vWDV), srd(SWD), sB))
            a.e("s_add_u32 s%d, s%d, s%d" % (sB, sB, sC))
            a.e("s_xor_b32 s%d, s%d, 0x4000" % (sC, sC))
        for sg in (hl.get(24 + q, ()) if fin else ()):
            a.e("s_add_u32 s%d, s%d, 0x%x" % (sA, sHOFF, (sg - (16 + q)) * 1024))
            a.e("buffer_load_dwordx4 %s, %s, %s, s%d offen sc1" % (v(vHX if sg == 27 else vH + 4 * (sg - 19), 4), v(vL16), srd(SWS), sA))
        if q == 3:
            a.e("s_sub_u32 s%d, s%d, 1" % (sCNT, sCNT))
            a.e("s_cmp_lg_u32 s%d, 0" % sCNT)
        a.e("s_waitcnt lgkmcnt(0)")
        if A: a.e("s_barrier")
        for x in Yseg(p if q < 8 - Opt.nd else None, toggle=(q == 3), extra=(fin and p < Opt.nx), last=(q == 7)): a.e(x)
        if not A and q < 7: a.e("s_barrier")
        if q == 3: a.e("s_cbranch_scc1 L_loop%s" % role)
    a.e("s_nop 1")

def transition(a, role):
    A = role == "A"
    if A:
        a.vm = []
        a.lab("L_trA")
    else:
        a.lab("L_join")
        a.e("s_cmp_eq_u32 s%d, 0" % sHI)
        a.e("s_cbranch_scc1 L_trA")
        a.vmjoin = list(a.vm)
    def qfin():
        for i in range(4): a.e("v_cvt_pk_bf16_f32 %s, %s, %s" % (v(vQ + i), v(vAQ + 2 * i), v(vAQ + 2 * i + 1)))
        a.e("v_add_u32 %s, 0x%x, %s" % (v(vWOA), L_WO, v(vWDA)))
        a.e("v_permlane16_swap_b32 %s, %s" % (v(vQ), v(vQ + 2)))
        a.e("v_permlane16_swap_b32 %s, %s" % (v(vQ + 1), v(vQ + 3)))
    pre0 = None
    if A:
        a.e("s_setprio 1")
        a.e("s_cmp_ge_u32 s%d, 14" % sM)
        a.e("s_cbranch_scc1 L_nogA0")
        put(a, a.kvA[:1] + a.kvA[-1:])
        a.l.append(".p2align 3")
        for ti in range(Opt.gsc): gelu_tile(a, ti, True)
        a.lab("L_nogA0")
        qfin()
        a.waitvm(["k0", "kv0", "kv1"])
        a.e("s_setprio 0")
        a.e(mfma(vS, vK0, vQ, None))
        a.e("s_barrier")
        put(a, a.kvA[1:-1])
        def pre0():
            a.e("s_cmp_lt_u32 s%d, 14" % sM)
            a.e("s_cbranch_scc1 L_gA1")
            a.e("s_waitcnt vmcnt(0)")
            a.e("s_branch L_nogA1")
            a.l.append(".p2align 3")
            a.lab("L_gA1")
            for ti in range(Opt.gsc, 4): gelu_tile(a, ti)
            a.lab("L_nogA1")
            a.e("s_setprio 2")
    else:
        a.waitvm(["k0", "kv0", "kv1"])
        a.e("s_setprio 1")
        if Opt.hpub == 3:
            a.e("s_cmp_ge_u32 s%d, 14" % sM)
            a.l.append(".p2align 3")
            a.e("s_barrier")
            a.e("s_cbranch_scc1 L_nogB")
        else:
            a.e("s_barrier")
            for u in (2, 3):
                a.vmop("s_add_u32 m0, s%d, 0x%x\ns_add_u32 s%d, s%d, 0x%x\nbuffer_load_dwordx4 %s, %s, s%d offen sc1 lds"
                       % (sWK, L_KV + u * 8192, sA, sWK, u * 8192, v(vL16), srd(SKV), sA), "kv%d" % u)
            a.e("s_cmp_lt_u32 s%d, 14" % sM)
            a.e("s_cbranch_scc1 L_gB")
            a.e("s_waitcnt vmcnt(0)")
            a.e("s_branch L_nogB")
            a.l.append(".p2align 3")
            a.lab("L_gB")
        for ti in range(4): gelu_tile(a, ti)
        a.lab("L_nogB")
        qfin()
        a.e("s_nop 1")
        a.e(mfma(vS, vK0, vQ, None))
        a.stamp(5)
    attention(a, role, pre0)
    if A:
        a.stamp(6); astamp(a, 9); tstamp(a, 2)
        if Opt.diag and Opt.kdiag == 2: a.e("s_waitcnt lgkmcnt(0)")
        a.e(smfmac(vO, vV1L, vS + 24))
        a.e("s_setprio 0")
        a.e("s_cmp_eq_u32 s%d, 0" % sHI)
        a.e("s_nop 9")
        normalise(a, False)
        a.lab("L_fbretA")
        a.e("buffer_store_dwordx4 %s, %s, %s, s%d offen sc1" % (v(vPK, 4), v(vL16), srd(SWS), sOST))
        tstamp(a, 3)
        a.e("s_waitcnt vmcnt(1)")
        tstamp(a, 4)
        a.e("s_barrier")
        a.fetch(a, False)
        a.e("s_branch L_tl2")

def normalise(a, packed):
    t = vT0
    a.e("v_rcp_f32 %s, %s" % (v(t + 2), v(vO + 8)))
    a.e("s_nop 0")
    a.e("v_mul_f32_e64 %s, %s, %s" % (v(t + 2), v(t + 2), v(vGP)))
    if packed:
        for i in range(4): a.e("v_pk_mul_f32 %s, %s, %s op_sel_hi:[1,0]" % (v(vO + 2 * i, 2), v(vO + 2 * i, 2), v(t + 2, 2)))
        for i in range(4):
            a.e("v_pk_fma_f32 %s, %s, 0, %s op_sel_hi:[1,0,%d]" % (v(t, 2), v(vO + 2 * i, 2), v(t, 2) if i else v(vO + 8, 2), 1 if i else 0))
            a.e("v_cvt_pk_bf16_f32 %s, %s, %s" % (v(vPK + i), v(vO + 2 * i), v(vO + 2 * i + 1)))
        a.e("v_fmac_f32 %s, 0, %s" % (v(t), v(t + 1)))
    else:
        t = vO + 8
        for i in range(8): a.e("v_mul_f32 %s, %s, %s" % (v(vO + i), v(vT0 + 2), v(vO + i)))
        for i in range(4):
            a.e("v_fmac_f32 %s, 0, %s" % (v(t), v(vO + 2 * i)))
            a.e("v_cvt_pk_bf16_f32 %s, %s, %s" % (v(vPK + i), v(vO + 2 * i), v(vO + 2 * i + 1)))
            a.e("v_fmac_f32 %s, 0, %s" % (v(t), v(vO + 2 * i + 1)))
    a.e("v_subrev_u32 %s, s%d, %s" % (v(t), sLO_, v(t)))
    a.e("v_cmp_lt_u32 vcc, s%d, %s" % (sRNG, v(t)))
    a.e("s_branch L_fb" if Opt.force_fb else "s_cbranch_vccnz L_fb")

def tail(a):
    a.lab("L_tail")
    a.stamp(6)
    astamp(a, 9)
    if Opt.diag and Opt.kdiag == 2: a.e("s_waitcnt lgkmcnt(0)")
    tstamp(a, 2)
    a.e(smfmac(vO, vV1L, vS + 24))
    wf = [vFR, vFR + 8, vFR + 16]
    HORD = hord()
    def oload(j):
        return "buffer_load_dwordx4 %s, %s, %s, s%d offen offset:%d %s" % (
            v(vS + 4 * j, 4), v(vL16), srd(SWS), sOLD if HORD[j] < 4 else sOLD2, (HORD[j] % 4) * 1024, Opt.old_pol)
    a.oload = oload
    a.e("s_cmp_eq_u32 s%d, 0" % sHI)
    a.e("s_nop 10")
    a.l.append(".p2align 3")
    normalise(a, True)
    a.lab("L_fbret")
    a.e("buffer_store_dwordx4 %s, %s, %s, s%d offen sc1" % (v(vPK, 4), v(vL16), srd(SWS), sOST))
    tstamp(a, 3)
    aw = [vAW0, vWOA + 1, vWOA + 2, vWOA + 3]
    ar = [vAR0, vFLA]
    wo = WOF
    def fetch(o, scale):
        for j in range(8):
            o.e(oload(j))
            if j >= 5:
                for r in wd_reads(wo[j], vWOA, (7 - j) * 8192): o.e(r)
            if scale and j >= 4:
                for i in range(4 * j - 16, 4 * j - 12): o.e("v_mul_f32 %s, %s, %s" % (v(vD + i), v(vGC), v(vD + i)))
    def addrs(a):
        a.e("v_sub_f32 %s, 1.0, %s" % (v(vGC), v(vGC)))
        for j in range(1, 4): a.e("v_xor_b32 %s, %d, %s" % (v(aw[j]), 32 * j, v(aw[0])))
        a.e("v_xor_b32 %s, 16, %s" % (v(ar[1]), v(ar[0])))
        a.e("s_mov_b32 s%d, 0x2000" % sB)
    ol = Asm(); a.ool2 = ol.l
    a.e("s_waitcnt vmcnt(1)")
    tstamp(a, 4)
    a.e("s_barrier")
    a.lab("L_tl2")
    tstamp(a, 5)
    a.fetch = fetch
    fl = collect(addrs)
    slot = [4, 5, 6, 7, 0, 1, 2][Opt.nx:] + ([3] if Opt.nd == 2 else [])
    hreg = lambda sl: vKF + 4 if sl == 2 and Opt.nd == 2 else vH + 4 * sl
    inreg = [(vWX, vHX)] + ([(vWF, vH + 4 * (4 - Opt.nd))] if Opt.nd else [])
    rds = sum((wd_reads(wf[i % 3], vWDA, slot[i] * 8192) for i in range(len(slot))), [])
    done = 4
    for i in range(-len(inreg), len(slot)):
        for c in range(2):
            if i >= 1: a.e("s_waitcnt lgkmcnt(%d)" % (done - (4 * i + 2 * c + 2)))
            a.e(mfma(vD + 16 * c, inreg[i][0] + 4 * c, inreg[i][1], vD + 16 * c) if i < 0 else
                mfma(vD + 16 * c, wf[i % 3] + 4 * c, hreg(slot[i]), vD + 16 * c))
            if i < -1: continue
            if done < len(rds):
                for r in rds[done:done + 2]: a.e(r)
                done += 2
            else:
                put(a, fl[:2]); fl = fl[2:]
    assert not fl
    tstamp(a, 6)
    a.e("s_cbranch_scc0 L_tl3")
    a.l.append(".p2align 3")
    a.e("s_nop 7")
    a.e("s_nop 0")
    for i in range(16): a.e("v_pk_mul_f32 %s, %s, %s op_sel:[0,1] op_sel_hi:[1,1]" % (v(vD + 2 * i, 2), v(vD + 2 * i, 2), v(vGP, 2)))
    tstamp(a, 7)
    a.lab("L_tl4")
    tstamp(a, 8)
    ol.lab("L_tl3")
    ol.e("s_setprio 0")
    fetch(ol, False)
    tstamp(ol, 7)
    for i in range(32): ol.e("v_mul_f32 %s, %s, %s" % (v(vD + i), v(vGC), v(vD + i)))
    ol.e("s_waitcnt lgkmcnt(0)")
    ol.e("s_branch L_tl4")
    a.stamp(7)
    def check(j):
        o = vS + 4 * j
        return ["s_waitcnt vmcnt(%d)" % (7 - j), "v_max3_u32 v2, %s, %s, %s" % (v(o), v(o + 1), v(o + 2)),
                "v_max_u32 v2, v2, %s" % v(o + 3), "v_cmp_eq_u32 vcc, -1, v2"]
    a.check = check
    for x in check(0): a.e(x)
    for j in range(10):
        if j < 8:
            a.e("s_cbranch_vccnz L_ore%d" % j)
            a.lab("L_ook%d" % j)
            a.e(mfma(vD, wo[j], vS + 4 * j, vD))
        if j >= 2 and Opt.cfirst: a.e(mfma(vD + 16, wo[j - 2] + 4, vS + 4 * (j - 2), vD + 16))
        if j < 7:
            for x in check(j + 1): a.e(x)
        if j >= 2 and not Opt.cfirst: a.e(mfma(vD + 16, wo[j - 2] + 4, vS + 4 * (j - 2), vD + 16))
        if j in (7, 8): a.e("s_nop 4")
    wr = lambda c, j: "ds_write_b128 %s, %s offset:%d" % (v(aw[j]), v(vD + 16 * c + 4 * j, 4), 128 * c)
    a.stamp(8)
    tstamp(a, 9)
    for j in range(4): a.e(wr(0, j))
    a.e("s_nop 7")
    for j in range(4): a.e(wr(1, j))
    a.e("s_waitcnt lgkmcnt(0)")
    a.e("s_barrier")
    for p in range(4):
        for h in range(2): a.e(rd128(vS + 8 * p + 4 * h, ar[h], p * 8192))
    for p in range(1, 4):
        a.e("s_waitcnt lgkmcnt(%d)" % (6 - 2 * p))
        for i in range(4): a.e("v_pk_add_f32 %s, %s, %s" % (v(vS + 2 * i, 2), v(vS + 2 * i, 2), v(vS + 8 * p + 2 * i, 2)))
    for i in range(4): a.e("v_cvt_pk_bf16_f32 %s, %s, %s" % (v(vP + i), v(vS + 2 * i), v(vS + 2 * i + 1)))
    a.e("buffer_store_dwordx4 %s, %s, %s, s%d offen %s" % (v(vP, 4), v(vOUTA), srd(SOUT), sOUTO, Opt.out_pol))
    if Opt.probe >= 0:
        a.e("s_waitcnt vmcnt(0)")
        a.stamp(9)
        if Opt.probe != 9:
            a.e("s_cmp_ge_u32 s%d, 14" % sM)
            a.e("s_cbranch_scc%d L_end" % (0 if Opt.probe_l else 1))
        a.e("s_sub_u32 s%d, s%d, s%d" % (sA, sSTAMP + 4, sSTAMP))
        a.e("s_mul_i32 s%d, s%d, %d" % (sA, sA, Opt.probe_mul - 1))
        if Opt.pcyc >= 0:
            a.e("s_sub_u32 s%d, s%d, s%d" % (sA, sSTAMP + 8, sSTAMP + 6))
            a.e("s_mov_b32 s%d, s%d" % (sSTAMP + 4, sSTAMP))
        a.e("s_min_u32 s%d, s%d, 100000" % (sA, sA))
        a.e("s_add_u32 s%d, s%d, 3800" % (sA, sA))
        if Opt.probe_r >= 0:
            a.e("s_cmp_eq_u32 s%d, 0x2000" % sB)
            a.e("s_cbranch_scc%d L_end" % Opt.probe_r)
        if Opt.probe_w >= 0:
            a.e("s_cmp_lg_u32 s%d, %d" % (sHI, Opt.probe_w))
            a.e("s_cbranch_scc1 L_end")
        if Opt.probe_x >= 0:
            a.e("s_and_b32 s0, s2, 7")
            a.e("s_cmp_lg_u32 s0, %d" % Opt.probe_x)
            a.e("s_cbranch_scc1 L_end")
        a.lab("L_probe")
        a.e("s_memrealtime s[0:1]")
        a.e("s_waitcnt lgkmcnt(0)")
        a.e("s_sub_u32 s0, s0, s%d" % (sSTAMP + 4))
        a.e("s_cmp_lt_u32 s0, s%d" % sA)
        a.e("s_cbranch_scc1 L_probe")
    if Opt.pin == 9:
        a.e("s_waitcnt vmcnt(0)")
        a.stamp(9)
    if Opt.diag in (1, 2):
        a.e("s_waitcnt vmcnt(0)")
        a.stamp(9)
        a.e("s_mov_b32 s%d, s%d" % (sSTAMP + 3, sSTAMP))
        a.e("s_mov_b32 s%d, s%d" % (sSTAMP, sB))
        a.e("s_getreg_b32 s%d, hwreg(HW_REG_XCC_ID)" % (sSTAMP + 1))
        for i in range(20): a.e("v_mov_b32 %s, s%d" % (v(vS + i), sSTAMP + i))
        a.e("s_lshl_b32 s%d, s2, 3" % sA)
        a.e("s_add_u32 s%d, s%d, s%d" % (sA, sA, sW))
        a.e("s_lshl_b32 s%d, s%d, 7" % (sA, sA))
        a.e("s_add_u32 s%d, s%d, 0x%x" % (sA, sA, WS_STAMP))
        a.e("s_mov_b64 exec, 1")
        for i in range(5): a.e("buffer_store_dwordx4 %s, off, %s, s%d offset:%d" % (v(vS + 4 * i, 4), srd(SWS), sA, 16 * i))
    a.lab("L_end")
    a.e("s_endpgm")
    a.l += a.ool2
    for j in range(8):
        a.lab("L_ore%d" % j)
        a.e("s_sub_u32 s%d, s%d, 1" % (sB, sB))
        a.e("s_cbranch_scc1 L_ogive%d" % j)
        if Opt.rwait: a.e("s_waitcnt vmcnt(0)")
        if Opt.rwait > 1: a.e("s_sleep %d" % Opt.rwait)
        for i in range(j, 8): a.e(a.oload(i))
        for x in a.check(j): a.e(x)
        a.e("s_cbranch_vccnz L_ore%d" % j)
        a.e("s_branch L_ook%d" % j)
        a.lab("L_ogive%d" % j)
        a.e("s_mov_b32 s%d, 0" % sB)
        a.e("s_branch L_ook%d" % j)

def fallback(a):
    a.lab("L_fb")
    m = vT0
    a.e("v_mov_b32 %s, 0xff800000" % v(m))
    a.e("s_mov_b32 s%d, 0" % sA)
    a.lab("L_fb1")
    a.e("buffer_load_dwordx4 %s, %s, %s, s%d offen sc1" % (v(vKF, 4), v(vL16), srd(SKV), sA))
    a.e("s_waitcnt vmcnt(0)")
    a.e(mfma(vS, vKF, vQ, None))
    a.e("s_add_u32 s%d, s%d, 2048" % (sA, sA))
    a.e("s_nop 11")
    for i in range(8): a.e("v_max3_f32 %s, %s, %s, %s" % (v(m), v(m), v(vS + 2 * i), v(vS + 2 * i + 1)))
    a.e("s_cmp_lt_u32 s%d, 0x20000" % sA)
    a.e("s_cbranch_scc1 L_fb1")
    a.e("v_mov_b32 %s, %s" % (v(m + 1), v(m)))
    a.e("s_nop 1")
    a.e("v_permlane32_swap_b32 %s, %s" % (v(m), v(m + 1)))
    a.e("s_nop 1")
    a.e("v_max_f32 %s, %s, %s" % (v(m), v(m), v(m + 1)))
    for i in range(16): a.e("v_sub_f32 %s, 0, %s" % (v(vS + 16 + i), v(m)))
    for i in range(16): a.e("v_mov_b32 %s, 0" % v(vO + i))
    a.e("s_mov_b32 s%d, 0" % sA)
    a.lab("L_fb2")
    a.e("s_add_u32 s%d, s%d, 0x%x" % (sB, sA, 63 * 2048))
    a.e("s_and_b32 s%d, s%d, 0x1ffff" % (sB, sB))
    a.e("buffer_load_dwordx4 %s, %s, %s, s%d offen sc1" % (v(vKF, 4), v(vL16), srd(SKV), sB))
    a.e("s_add_u32 s%d, s%d, 2048" % (sB, sA))
    a.e("s_and_b32 s%d, s%d, 0x1ffff" % (sB, sB))
    a.e("s_mov_b64 exec, %s" % sp(sVM))
    a.e("buffer_load_dwordx4 %s, %s, %s, s%d offen offset:1024 sc1" % (v(vV, 4), v(vL16), srd(SKV), sA))
    a.e("buffer_load_dwordx4 %s, %s, %s, s%d offen offset:1280 sc1" % (v(vV + 4, 4), v(vL16), srd(SKV), sB))
    a.e("s_mov_b64 exec, -1")
    a.e("s_waitcnt vmcnt(0)")
    a.e(mfma(vS, vKF, vQ, vS + 16))
    a.e("s_add_u32 s%d, s%d, 2048" % (sA, sA))
    a.e("s_nop 11")
    for i in range(16): a.e("v_exp_f32 %s, %s" % (v(vS + i), v(vS + i)))
    a.e("s_nop 2")
    a.e(smfmac(vO, vV, vS))
    a.e(smfmac(vO, vV + 4, vS + 8))
    a.e("s_cmp_lt_u32 s%d, 0x20000" % sA)
    a.e("s_cbranch_scc1 L_fb2")
    a.e("s_nop 11")
    a.e("v_rcp_f32 %s, %s" % (v(vT0 + 2), v(vO + 8)))
    a.e("s_cmp_eq_u32 s%d, 0" % sHI)
    a.e("v_mul_f32 %s, %s, %s" % (v(vT0 + 2), v(vT0 + 2), v(vGP)))
    for i in range(8): a.e("v_mul_f32 %s, %s, %s" % (v(vO + i), v(vT0 + 2), v(vO + i)))
    for i in range(4): a.e("v_cvt_pk_bf16_f32 %s, %s, %s" % (v(vPK + i), v(vO + 2 * i), v(vO + 2 * i + 1)))
    for i in range(4): a.e("v_min_u32 %s, -2, %s" % (v(vPK + i), v(vPK + i)))
    a.e("s_cbranch_scc1 L_fbretA")
    a.e("s_branch L_fbret")

def build():
    a = Asm()
    prologue(a)
    phase1_F(a)
    transition(a, "B")
    tail(a)
    a.l += a.ool
    transition(a, "A")
    phase1_L(a)
    fallback(a)
    a.lab("L_codeend")
    for i, x in enumerate(a.l):
        if " sc1" in x and "sc0" not in x and ((Opt.allsc & 1 and "buffer_store" in x) or (Opt.allsc & 2 and "buffer_load" in x)):
            a.l[i] = x.replace(" sc1", " sc0 sc1")
    il = a.l.index("L_light:")
    for i, x in enumerate(a.l):
        if x.endswith(" lds") and "sc1" not in x and " nt" not in x:
            if (Opt.ntx & 4 and (srd(SWD) in x or srd(SWO) in x)) or (Opt.ntx & 8 and i > il):
                a.l[i] = x[:-4] + " nt lds"
    head = open("cdna_kernels/%s.s.ref" % NAME).read().split("\n")
    hdr = [l for l in head if l.startswith(";") and "@launch" not in l and "Override" not in l and "grid=" not in l]
    out = hdr + ["; @launch grid=(256,1,1) block=(512,1,1) lds=%d" % LDS_BYTES,
                 '.amdgcn_target "amdgcn-amd-amdhsa--gfx950"', ".text", ".globl %s_kernel" % NAME, ".p2align 8",
                 ".type %s_kernel,@function" % NAME,
                 ".set CODE_PF_MAX, L_codeend - L_nopf - 4" if Opt.code_pf else "",
                 "%s_kernel:" % NAME]
    out += ["; " + x for x in """One persistent launch, one workgroup per CU (generated by a script), 8 waves = two quartets that alternate on each SIMD.
Stage 1: 14 of every 16 workgroups compute gelu(x Wg) * (x Wu) for 128 tokens x 128 columns plus Q for two heads;
         the other two compute K, V and the mixing gate, publish them (counter in d_debug) and then their own Q.
Stage 2: attention for 128 tokens x 2 heads over all keys, S^T = K Q^T, exp2 in place, P V through sparse MFMAs that
         read the high halves of the fp32 probabilities; a row of ones in the V operand gives the row sums.
         The stand-in maximum is 0: it is accepted only if the row sum lies in [2^-16, 2^100] and every accumulator is
         finite, otherwise the wave redoes its rows with the true maximum (L_fb).
         The down projection of a 64 x 64 output tile runs in the same loop once the producers' flags are seen.
Stage 3: attention outputs are handed over through d_ws (cleared to a mark earlier in this launch), projected,
         mixed with the FFN branch, reduced through LDS and stored.""".split("\n")]
    out += a.l
    out += ['.section .rodata,"a"', ".p2align 6", ".amdhsa_kernel %s_kernel" % NAME,
            "  .amdhsa_next_free_vgpr %d" % NV, "  .amdhsa_next_free_sgpr 102", "  .amdhsa_accum_offset 256",
            "  .amdhsa_group_segment_fixed_size 0", "  .amdhsa_kernarg_size 104", "  .amdhsa_user_sgpr_count 2",
            "  .amdhsa_user_sgpr_kernarg_segment_ptr 1", "  .amdhsa_system_sgpr_workgroup_id_x 1", ".end_amdhsa_kernel", ""]
    return "\n".join(out)

if __name__ == "__main__":
    path = sys.argv[1]
    for kv in sys.argv[2:]:
        k, val = kv.split("=")
        cur = getattr(Opt, k)
        setattr(Opt, k, val if isinstance(cur, str) else type(cur)(int(val)))
    open(path, "w").write(build())
```

```python
import sys, struct, math

NAME = "gated_mix__grouped_kv_mqa__geglu_ffn__prompt"

class Opt:
    diag = 0
    mapmode = 1
    force_fb = False
    allsc = 0
    out_pol = "sc0 sc1"
    code_pf = True
    xrot = 0
    pregap = 0
    hlate = 1
    hpub = 4
    hp0 = 1
    hp1 = 6
    rwait = 1
    aearly = 0
    bidle = 1
    old_pol = "sc1"
    ypos0 = "36g"
    ypos1 = "36bg"
    ypos2 = "36cg9"
    nd = 1
    nx = 0
    tpos = 1
    cfirst = 0
    tch = 12
    stch = 0
    spos = 1
    tlb = 14
    olate = 1
    hrot = 0
    tbar = 0
    hord = 1
    cmap = 1
    kqx = 0
    oearly = 8
    conc = 1
    ghx = 1
    qa = "077777"
    qb = "588888"
    npre = 8
    stagger = 1
    rper = 2
    dma1 = 17
    kprio = 0
    dma0 = 8
    npd = 4
    kdiag = 0
    fillpre = 0
    fillper = 5
    gsc = 2
    sched = 0
    xmask = 1
    ntx = 0
    touch = 2
    rotg = 0
    rotm = 0
    startbar = 1
    pvz = 1
    pin = -1
    pin_ns = 60000
    probe = -1
    probe_x = -1
    probe_mul = 10
    probe_w = -1
    probe_r = -1
    pcyc = -1
    probe_l = 0

def f2u(x): return struct.unpack("<I", struct.pack("<f", x))[0]

WS_KV = 0
WS_G = 128 * 1024
WS_HFLAG = 256 * 1024
WS_OF = 1 << 20
WS_HF = 4 << 20
WS_STAMP = 12 << 20
WS_SIZE = 16 << 20
K1 = 1024
L_G, L_U, L_X, L_WQ = 0, 48 * K1, 96 * K1, 144 * K1
L_QX = 32 * K1
L_WD, L_WO, L_KV = 0, 64 * K1, 128 * K1
L_RED = 96 * K1
LL_X, LL_W, LL_GATE, LL_WQ = 0, 128 * K1, 144 * K1, 128 * K1
LDS_BYTES = 160 * K1

SX, SWG, SWU, SWQ, SWS, SWD, SWO, SOUT, SDBG, SWKV, SGATE, SKV = 4, 8, 12, 16, 20, 24, 28, 32, 36, 40, 44, 64
SWV = 72
sTMPP = 48
sW, sHI, sLO, sG, sM, sT, sCB = 50, 51, 52, 53, 54, 55, 56
sWK = 57
sWH = 58
sVM = 60
sRET = 62
sA, sB, sC, sD = 68, 69, 70, 71
sOFFW, sOFFQ, sCH, sXP = 72, 73, 74, 75
sHOFF, sWDOFF, sKVOFF, sHXO, sCNT = 72, 73, 74, 75, 77
sOUTO, sLO_, sRNG = 59, 81, 75
sPUB, sFLG = 48, 49
sOLD2 = 58
sOST, sOLD, sHST = 78, 79, 80
sHST2 = 3
sRX, sRW, sM0B = 40, 41, 42
sKQ = 76
sHP = sM
sSTAMP = 82

def srd(b): return "s[%d:%d]" % (b, b + 3)
def sp(b): return "s[%d:%d]" % (b, b + 1)
def v(b, n=1): return "v%d" % b if n == 1 else "v[%d:%d]" % (b, b + n - 1)

vL16 = 1
vT0, vT1, vT2, vT3 = 2, 3, 4, 5
vGP, vGC = 6, 7
vKVA = 8
vWDA = 9
vWDV = 10
vONE = 11
vZERO = 12
vFLA = 13
vPOLL = 14
vGA = 15
vQ = 16
vK0 = 20
vV1L = 24
vIDX = 28
vAW0, vAR0, vOUTA = 30, 31, 12
vKVB = 29
vP = 32
vV = 40
vO = 56
vD = 72
vACC = 104
vS = 104
vH = 136
vAQ = vP
vF1 = 168
vKF = 168
vWF = 176
vWX = 224
vHX = 232
vPK = 20
WOF = [32, 208, 216, 240, 248, 40, 48, 56]
vWOA = 236
vFR = 184
vLX = 224
vXA = 240
vWA = 244
vQA = 248
vDX, vDG, vDQ = 249, 250, 251
vC0 = 252
vTID = 255
vHA = 254
NV = 256

class Asm:
    def __init__(self):
        self.l = []
        self.vm = []
        self.nstamp = 0
    def e(self, s):
        for x in s.split("\n"):
            x = x.strip()
            if x: self.l.append("    " + x)
    def lab(self, s): self.l.append(s + ":")
    def vmop(self, s, tag):
        self.e(s); self.vm.append(tag)
    def vmn(self, tags):
        if isinstance(tags, str): tags = [tags]
        last = -1
        for i, t in enumerate(self.vm):
            if t in tags: last = i
        return None if last < 0 else len(self.vm) - 1 - last
    def waitvm(self, tags, lgkm=False):
        n = self.vmn(tags)
        if n is None:
            if lgkm: self.e("s_waitcnt lgkmcnt(0)")
            return
        assert n < 64
        self.e("s_waitcnt vmcnt(%d)%s" % (n, " lgkmcnt(0)" if lgkm else ""))
        self.vm = self.vm[len(self.vm) - n:] if n else []
    def wait0(self, lgkm=False):
        self.e("s_waitcnt vmcnt(0)%s" % (" lgkmcnt(0)" if lgkm else "")); self.vm = []
    def stamp(self, i, real=False):
        if Opt.probe == i:
            self.e("s_waitcnt lgkmcnt(0)")
            self.e("s_memrealtime %s" % sp(sSTAMP + 4))
            if Opt.pcyc >= 0: self.e("s_memtime %s" % sp(sSTAMP + 8))
            self.e("s_waitcnt lgkmcnt(0)")
        if Opt.pin == i:
            self.nstamp += 1
            self.e("s_waitcnt lgkmcnt(0)")
            self.e("s_cselect_b32 s%d, 1, 0" % (sSTAMP + 5))
            self.lab("L_pin%d" % self.nstamp)
            self.e("s_memrealtime s[0:1]")
            self.e("s_waitcnt lgkmcnt(0)")
            self.e("s_sub_u32 s0, s0, s%d" % sSTAMP)
            self.e("s_cmp_lt_u32 s0, %d" % (Opt.pin_ns // 10))
            self.e("s_cbranch_scc1 L_pin%d" % self.nstamp)
            self.e("s_cmp_lg_u32 s%d, 0" % (sSTAMP + 5))
        if Opt.diag and not Opt.kdiag and (Opt.diag == 1 or i == 9):
            self.e("s_waitcnt lgkmcnt(0)")
            self.e("s_memtime %s" % sp(sSTAMP + 2 * i))
            self.e("s_memrealtime %s" % sp(sRET))
            self.e("s_waitcnt lgkmcnt(0)")
            self.e("s_mov_b32 s%d, s%d" % (sSTAMP + 2 * i + 1, sRET))

def astamp(a, i):
    if Opt.diag and Opt.kdiag == 2: a.e("s_memtime %s" % sp(sSTAMP + 2 * i))

def tstamp(a, i):
    if Opt.diag and Opt.kdiag == 3: a.e("s_memtime %s" % sp(sSTAMP + 2 * i))

def kstamp(a, i):
    if Opt.probe == 18 + i: a.e("s_memrealtime %s" % sp(sSTAMP + 4))
    if Opt.diag and Opt.kdiag == 1: a.e("s_memtime %s" % sp(sSTAMP + 2 * i))

def mfma(d, a, b, c):
    return "v_mfma_f32_32x32x16_bf16 %s, %s, %s, %s" % (v(d, 16), v(a, 4), v(b, 4), "0" if c is None else v(c, 16))
def smfmac(d, a, b):
    return "v_smfmac_f32_32x32x32_bf16 %s, %s, %s, %s" % (v(d, 16), v(a, 4), v(b, 8), v(vIDX))
def mfma16(d, a, b, c):
    return "v_mfma_f32_16x16x32_bf16 %s, %s, %s, %s" % (v(d, 4), v(a, 4), v(b, 4), "0" if c is None else v(c, 4))
def rd128(d, a, off):
    assert 0 <= off < 65536
    return "ds_read_b128 %s, %s offset:%d" % (v(d, 4), v(a), off)
def rdtr(d, a, off):
    assert 0 <= off < 65536
    return "ds_read_b64_tr_b16 %s, %s offset:%d" % (v(d, 2), v(a), off)

def interleave(mf, fill, per=2):
    out = []
    fill = list(fill)
    for i, m in enumerate(mf):
        out.append(m)
        if i < len(mf) - 1:
            out += fill[:per]; fill = fill[per:]
    return out + fill

def srd_words(a, regs):
    sizes = {SX: 2048 * 1024, SWG: 512 * 3584, SWU: 512 * 3584, SWQ: 512 * 1024, SWS: WS_SIZE, SWKV: 16384, SWV: 16384,
             SGATE: 1024, SWD: 1792 * 1024, SWO: 512 * 1024, SOUT: 2048 * 1024, SDBG: 256, SKV: 128 * 1024}
    for reg in regs:
        a.e("s_mov_b32 s%d, 0x%x" % (reg + 2, sizes[reg]))
        a.e("s_mov_b32 s%d, 0x20000" % (reg + 3))

def ptr_loads(a, lst):
    for reg, off in lst: a.e("s_load_dwordx2 %s, s[0:1], %d" % (sp(reg), off))

def prologue(a):
    if Opt.diag or Opt.pin >= 0 or Opt.probe >= 0:
        a.e("s_memrealtime %s" % sp(sSTAMP))
        if Opt.diag in (1, 2): a.e("s_memtime %s" % sp(sSTAMP + 2))
    ptr_loads(a, ((SX, 0), (SWG, 48), (SWU, 56), (SWQ, 8)))
    if Opt.probe == 1: a.stamp(1)
    a.e("v_lshrrev_b32 v2, 6, v0")
    if Opt.code_pf:
        a.e("s_getpc_b64 %s" % sp(sRET))
        a.lab("L_nopf")
        a.e("s_and_b32 s%d, s2, -8" % sA)
        a.e("v_add_lshl_u32 v4, v2, s%d, 7" % sA)
        a.e("v_mov_b32 v5, 0")
        a.e("v_min_u32 v4, CODE_PF_MAX, v4")
        a.e("v_lshl_add_u64 v[4:5], v[4:5], 0, %s" % sp(sRET))
        a.e("global_load_dword %s, v[4:5], off" % v(vPOLL))
    a.e("s_load_dwordx8 s[%d:%d], s[0:1], 64" % (SOUT, SOUT + 7))
    a.e("v_readfirstlane_b32 s%d, v2" % sW)
    ptr_loads(a, ((SWS, 96),) if Opt.diag or Opt.probe >= 0 else ((SWS, 96), (SWO, 32)))
    a.e("s_cmpk_ge_u32 s2, 256")
    a.e("s_cbranch_scc1 L_end")
    a.e("s_and_b32 s%d, s2, 1" % sD)
    a.e("s_bfe_u32 s%d, s2, 0x30003" % sA)
    a.e("s_lshl3_add_u32 s%d, s%d, s%d" % (sG, sD, sA))
    a.e("s_bfe_u32 s%d, s2, 0x20001" % sA)
    a.e("s_lshr_b32 s%d, s2, 6" % sB)
    a.e("s_lshl2_add_u32 s%d, s%d, s%d" % (sM, sA, sB))
    a.e("s_lshl_b32 s%d, s%d, 10" % (sWK, sW))
    a.e("s_cmp_ge_u32 s%d, 14" % sM)
    a.e("s_cbranch_scc1 L_light")

def xvoff(a, t):
    a.e("v_lshrrev_b32 v2, 4, %s" % v(t))
    a.e("v_xor_b32 v2, v2, %s" % v(t))
    a.e("v_and_b32 v2, 7, v2")
    a.e("s_lshl_b32 s%d, s%d, 17" % (sA, sG))
    a.e("v_lshl_add_u32 v2, v2, 4, s%d" % sA)
    a.e("v_lshrrev_b32 v3, 3, %s" % v(t))
    a.e("v_lshl_add_u32 %s, v3, 10, v2" % v(vDX))

def setup_ids(a):
    a.e("s_mov_b64 %s, %s" % (sp(SKV), sp(SWS)))
    a.e("s_mov_b64 %s, %s" % (sp(SWD), sp(SOUT)))
    a.e("s_mov_b64 %s, %s" % (sp(SOUT), sp(SOUT + 4)))
    a.e("s_mov_b64 %s, %s" % (sp(SDBG), sp(SOUT + 6)))
    a.e("v_and_b32 v0, 63, v0")
    a.e("v_lshlrev_b32 %s, 4, v0" % v(vL16))
    a.e("s_andn2_b32 s%d, 1, s2" % sA)
    a.e("s_bfe_u32 s%d, s2, 0x20001" % sB)
    a.e("s_lshl2_add_u32 s%d, s%d, s%d" % (sA, sA, sB))
    a.e("s_bfe_u32 s%d, s2, 0x20003" % sB)
    a.e("s_lshl2_add_u32 s%d, s%d, s%d" % (sT, sA, sB))
    a.e("s_lshr_b32 s%d, s2, 5" % sCB)

def setup_rd(a):
    a.e("s_lshr_b32 s%d, s%d, 2" % (sHI, sW))
    a.e("s_and_b32 s%d, s%d, 3" % (sLO, sW))
    a.e("v_and_b32 v2, 15, v0")
    a.e("v_lshrrev_b32 v3, 4, v0")
    a.e("v_bfe_u32 v4, v0, 1, 3")
    a.e("v_xor_b32 v4, v4, v3")
    a.e("v_lshlrev_b32 v4, 4, v4")
    a.e("v_lshl_add_u32 %s, v2, 7, v4" % v(vXA))
    a.e("v_bfe_u32 v2, v0, 2, 2")
    a.e("v_and_b32 v4, 3, v0")
    a.e("v_lshl_add_u32 %s, v3, 3, v2" % v(vQA))
    a.e("v_lshlrev_b32 %s, 6, %s" % (v(vQA), v(vQA)))
    a.e("v_xor_b32 v5, s%d, v3" % sHI)
    a.e("v_and_b32 v5, 1, v5")
    a.e("v_lshl_add_u32 %s, v5, 5, %s" % (v(vQA), v(vQA)))
    a.e("v_lshl_add_u32 %s, v4, 3, %s" % (v(vQA), v(vQA)))

def setup_oclr(a):
    srd_words(a, [SWS, SKV, SDBG])
    a.e("s_mov_b32 s%d, 0xffff" % sVM)
    a.e("s_mov_b32 s%d, 0xffff" % (sVM + 1))
    a.e("s_lshl_b32 s%d, s%d, 2" % (sA, sG))
    a.e("s_add_u32 s%d, s%d, s%d" % (sA, sA, sLO))
    a.e("s_lshl_b32 s%d, s%d, 5" % (sB, sA))
    a.e("s_lshl_b32 s%d, s%d, 1" % (sC, sHP))
    a.e("s_add_u32 s%d, s%d, s%d" % (sB, sB, sC))
    a.e("s_add_u32 s%d, s%d, s%d" % (sB, sB, sHI))
    a.e("s_lshl_b32 s%d, s%d, 10" % (sB, sB))
    a.e("s_add_u32 s%d, s%d, 0x%x" % (sOST, sB, WS_OF))
    for i in range(4): a.e("v_mov_b32 %s, -1" % v(vQ + i))
    a.vmop("buffer_store_dwordx4 %s, %s, %s, s%d offen sc1" % (v(vQ, 4), v(vL16), srd(SWS), sOST), "oclr")
    a.e("v_mov_b32 %s, 1" % v(vONE))
    a.e("v_mov_b32 %s, 0" % v(vZERO))
    a.e("v_and_b32 %s, 31, v0" % v(vGA))
    a.e("v_lshlrev_b32 %s, 2, %s" % (v(vGA), v(vGA)))

def collect(fn):
    t = Asm(); t.marks = {}
    def vmop(s_, tag):
        t.e(s_); t.marks[len(t.l) - 1] = tag
    t.vmop = vmop
    fn(t)
    return [(x, t.marks.get(i)) for i, x in enumerate(t.l)]
def put(a, items):
    for x, tag in items:
        if tag: a.vmop(x, tag)
        else: a.e(x)

def setup_ones(a):
    a.e("s_mov_b32 s%d, 0x110000" % sA)
    a.e("s_mov_b32 s%d, 0x110000" % sB)
    a.e("v_mov_b32 v3, 0x3f803f80")
    a.e("v_cndmask_b32 %s, 0, v3, %s" % (v(vV1L), sp(sA)))
    for i in range(1, 4): a.e("v_mov_b32 %s, %s" % (v(vV1L + i), v(vV1L)))
    for i in range(16): a.e("v_mov_b32 %s, %s" % (v(vV + i), v(vV1L)))

def setup_attn(a):
    srd_words(a, [SWD, SWO, SOUT])
    a.e("s_lshl_b32 s%d, s%d, 2" % (sA, sG))
    a.e("s_add_u32 s%d, s%d, s%d" % (sA, sA, sLO))
    a.e("s_mul_i32 s%d, s%d, 112" % (sB, sA))
    a.e("s_lshl_b32 s%d, s%d, 3" % (sC, sM))
    a.e("s_add_u32 s%d, s%d, s%d" % (sB, sB, sC))
    a.e("s_lshl_b32 s%d, s%d, 2" % (sC, sHI))
    a.e("s_add_u32 s%d, s%d, s%d" % (sB, sB, sC))
    a.e("s_and_b32 s%d, s%d, 1" % (sC, sLO))
    a.e("s_lshl_b32 s%d, s%d, 1" % (sC, sC))
    a.e("s_add_u32 s%d, s%d, s%d" % (sB, sB, sC))
    a.e("s_lshl_b32 s%d, s%d, 10" % (sB, sB))
    a.e("s_add_u32 s%d, s%d, 0x%x" % (sHST, sB, WS_HF))
    a.e("s_mul_i32 s%d, s%d, %d" % (sC, sC, 112 * 1024))
    a.e("s_sub_u32 s%d, %d, s%d" % (sC, 112 * 1024, sC))
    a.e("s_add_u32 s%d, s%d, s%d" % (sHST2, sHST, sC))
    a.e("v_bfe_u32 v2, v0, 2, 2")
    a.e("v_lshrrev_b32 v3, 5, v0")
    a.e("v_lshl_add_u32 v2, v3, 2, v2")
    a.e("v_lshlrev_b32 v2, 6, v2")
    a.e("v_bfe_u32 v3, v0, 4, 1")
    a.e("v_lshl_add_u32 v2, v3, 5, v2")
    a.e("v_and_b32 v3, 3, v0")
    a.e("v_lshl_add_u32 v2, v3, 3, v2")
    a.e("s_lshr_b32 s%d, s%d, 1" % (sA, sW))
    a.e("s_lshl_b32 s%d, s%d, 11" % (sA, sA))
    a.e("v_add_u32 %s, s%d, v2" % (v(vWDA), sA))
    a.e("v_add_u32 %s, 0x%x, %s" % (v(vKVA), L_KV, v(vL16)))
    a.e("v_add_u32 %s, 0x%x, %s" % (v(vKVB), L_KV + 0x4000, v(vL16)))
    a.e("v_bfe_u32 v2, v0, 2, 3")
    a.e("v_lshlrev_b32 v2, 10, v2")
    a.e("v_lshrrev_b32 v3, 5, v0")
    a.e("v_lshl_add_u32 v2, v3, 6, v2")
    a.e("v_and_b32 v3, 3, v0")
    a.e("v_lshl_add_u32 v2, v3, 4, v2")
    a.e("s_lshl_b32 s%d, s%d, 7" % (sB, sCB))
    a.e("v_add_u32 %s, s%d, v2" % (v(vWDV), sB))
    a.e("v_min_u32 v2, 55, v0")
    a.e("v_lshlrev_b32 v2, 7, v2")
    a.e("s_lshl_b32 s%d, s%d, 13" % (sA, sT))
    a.e("s_add_u32 s%d, s%d, 0x%x" % (sA, sA, WS_HFLAG))
    a.e("v_add_u32 %s, s%d, v2" % (v(vFLA), sA))
    a.e("s_lshl_b32 s%d, s%d, 1" % (sA, sT))
    a.e("s_and_b32 s%d, s%d, 1" % (sB, sW))
    a.e("s_add_u32 s%d, s%d, s%d" % (sA, sA, sB))
    a.e("s_lshl_b32 s%d, s%d, 15" % (sB, sA))
    a.e("s_lshr_b32 s%d, s%d, 1" % (sKQ, sW))
    if Opt.kqx:
        a.e("s_lshl_b32 s%d, s%d, 1" % (sC, sCB))
        a.e("s_and_b32 s%d, s%d, 2" % (sC, sC))
        a.e("s_xor_b32 s%d, s%d, s%d" % (sKQ, sKQ, sC))
    a.e("s_lshl_b32 s%d, s%d, 13" % (sC, sKQ))
    a.e("s_add_u32 s%d, s%d, s%d" % (sB, sB, sC))
    a.e("s_add_u32 s%d, s%d, 0x%x" % (sOLD, sB, WS_OF))
    a.e("v_and_b32 v2, 31, v0")
    a.e("v_lshrrev_b32 v3, 5, v0")
    a.e("v_and_b32 v4, 7, v0")
    a.e("v_xor_b32 v3, v3, v4")
    a.e("v_lshlrev_b32 v3, 4, v3")
    a.e("v_lshl_add_u32 v3, v2, 8, v3")
    a.e("s_and_b32 s%d, s%d, 1" % (sB, sW))
    a.e("s_lshl_b32 s%d, s%d, 15" % (sB, sB))
    a.e("s_lshr_b32 s%d, s%d, 1" % (sC, sW))
    a.e("s_lshl_b32 s%d, s%d, 13" % (sD, sC))
    a.e("s_add_u32 s%d, s%d, s%d" % (sOUTO, sD, sB))
    a.e("s_add_u32 s%d, s%d, 0x%x" % (sD, sOUTO, L_RED))
    a.e("v_add_u32 %s, s%d, v3" % (v(vAW0), sD))
    a.e("v_lshrrev_b32 v2, 3, v0")
    a.e("v_lshlrev_b32 v3, 1, v4")
    a.e("v_xor_b32 v3, v3, v2")
    a.e("v_lshlrev_b32 v3, 4, v3")
    a.e("v_lshl_add_u32 v3, v2, 8, v3")
    a.e("s_lshl_b32 s%d, s%d, 11" % (sD, sC))
    a.e("s_add_u32 s%d, s%d, s%d" % (sD, sD, sB))
    a.e("s_add_u32 s%d, s%d, 0x%x" % (sD, sD, L_RED))
    a.e("v_add_u32 %s, s%d, v3" % (v(vAR0), sD))
    a.e("v_lshlrev_b32 v4, 4, v4")
    a.e("v_lshl_add_u32 %s, v2, 10, v4" % v(vOUTA))
    a.e("s_lshl_b32 s%d, s%d, 16" % (sC, sT))
    a.e("s_add_u32 s%d, s%d, s%d" % (sOUTO, sOUTO, sC))
    a.e("s_lshl_b32 s%d, s%d, 7" % (sC, sCB))
    a.e("s_add_u32 s%d, s%d, s%d" % (sOUTO, sOUTO, sC))
    a.e("v_mov_b32 %s, 0xdddd" % v(vIDX))
    a.e("v_lshrrev_b32 v2, 4, v0")
    a.e("v_lshl_add_u32 %s, v2, 8, %s" % (v(vHA), v(vL16)))
    for i in range(16): a.e("v_mov_b32 %s, 0" % v(vO + i))
    for i in range(32): a.e("v_mov_b32 %s, 0" % v(vD + i))
    c0 = -2.0 * math.sqrt(2.0 / math.pi) * math.log2(math.e)
    a.e("v_mov_b32 %s, 0x%x" % (v(vC0), f2u(c0)))
    a.e("v_mov_b32 %s, 0x%x" % (v(vC0 + 1), f2u(c0 * 0.044715)))

def kv_first_loads(a, quartet=False):
    it = []
    for o in (range(0, 16384, 4096) if quartet else range(0, 16384, 8192)):
        b = sWH if quartet else sWK
        it.append(("s_add_u32 m0, s%d, 0x%x\ns_add_u32 s%d, s%d, 0x%x\nbuffer_load_dwordx4 %s, %s, s%d offen sc1 lds"
                   % (b, L_KV + o, sA, b, o, v(vL16), srd(SKV), sA), "kv%d" % (o >> 13)))
    it.append(("s_mov_b32 s%d, 0x%x\nbuffer_load_dwordx4 %s, %s, %s, s%d offen sc1"
               % (sA, 63 * 2048, v(vK0, 4), v(vL16), srd(SKV), sA), "k0"))
    it.append(("s_mov_b64 exec, %s\nbuffer_load_dwordx4 %s, %s, %s, 0 offen offset:%d sc1\ns_mov_b64 exec, -1"
               % (sp(sVM), v(vV1L, 4), v(vL16), srd(SKV), 1024 + 256), "k0"))
    it.append(("s_lshl_b32 s%d, s%d, 2\ns_add_u32 s%d, s%d, s%d\ns_lshl_b32 s%d, s%d, 7\ns_add_u32 s%d, s%d, 0x%x\n"
               "buffer_load_dword %s, %s, %s, s%d offen sc1"
               % (sA, sG, sA, sA, sLO, sA, sA, sA, sA, WS_G, v(vGP), v(vGA), srd(SWS), sA), "k0"))
    it.append(("s_lshl_b32 s%d, s%d, 1\ns_and_b32 s%d, s%d, 1\ns_add_u32 s%d, s%d, s%d\ns_lshl_b32 s%d, s%d, 7\ns_add_u32 s%d, s%d, 0x%x\n"
               "buffer_load_dword %s, %s, %s, s%d offen sc1"
               % (sA, sT, sB, sW, sA, sA, sB, sA, sA, sA, sA, WS_G, v(vGC), v(vGA), srd(SWS), sA), "k0"))
    return it

def spin_counter(a, name, first_loaded, wave=0):
    a.e("s_cmp_lg_u32 s%d, %d" % (sW, wave))
    a.e("s_cbranch_scc1 L_%s_done" % name)
    a.e("s_mov_b32 s%d, 0x4000" % sB)
    if first_loaded: a.e("s_branch L_%s_chk" % name)
    a.lab("L_%s_re" % name)
    a.e("buffer_load_dword %s, off, %s, 0 sc1" % (v(vPOLL), srd(SDBG)))
    a.e("s_waitcnt vmcnt(0)")
    a.lab("L_%s_chk" % name)
    a.e("v_readfirstlane_b32 s%d, %s" % (sA, v(vPOLL)))
    a.e("s_cmp_ge_u32 s%d, 32" % sA)
    a.e("s_cbranch_scc1 L_%s_done" % name)
    a.e("s_sleep 4")
    a.e("s_sub_u32 s%d, s%d, 1" % (sB, sB))
    a.e("s_cmp_lg_u32 s%d, 0" % sB)
    a.e("s_cbranch_scc1 L_%s_re" % name)
    a.lab("L_%s_done" % name)

def phase1_F(a):
    SCHED = {1: ["01423567", "10253467", "23016457", "32104756"],
             2: ["02134657", "01324576", "10243567", "10235467"],
             3: ["01324657", "01243576", "12035467", "20134567"],
             5: ["01243567", "10325467", "23014657", "32104576"],
             6: ["01243567", "10325467", "01234657", "10324576"],
             7: ["01234567", "10235476", "01234567", "10235476"],
             8: ["01234567", "10243657", "01234567", "10243657"],
             4: ["02143657", "10325476", "02143657", "10325476"]}
    tabs = SCHED[Opt.sched] if Opt.sched else ["".join(str(c ^ (p & Opt.xmask)) for c in range(8)) for p in range(4)]
    for t_ in tabs: assert sorted(t_) == list("01234567")
    num = [int(t_[::-1], 16) for t_ in tabs]
    def table(a):
        a.e("s_add_u32 s%d, s%d, s%d" % (sA, sG, sHP))
        a.e("s_mov_b32 s%d, 0x%x" % (sXP, num[0]))
        a.e("s_mov_b32 s%d, 0x%x" % (sB, num[2]))
        a.e("s_bitcmp1_b32 s%d, 0" % sA)
        a.e("s_cselect_b32 s%d, 0x%x, s%d" % (sXP, num[1], sXP))
        a.e("s_cselect_b32 s%d, 0x%x, s%d" % (sB, num[3], sB))
        a.e("s_bitcmp1_b32 s%d, 1" % sA)
        a.e("s_cselect_b32 s%d, s%d, s%d" % (sXP, sB, sXP))
        if Opt.ghx:
            a.e("s_bitcmp1_b32 s%d, 3" % sG)
            a.e("s_cselect_b32 s%d, 0x44444444, 0" % sB)
            a.e("s_xor_b32 s%d, s%d, s%d" % (sXP, sXP, sB))
    fo, fw = {"0000": (0, 0), "0101": (0, 1), "0011": (1, 1), "0123": (0, 2)}["".join(t_[0] for t_ in tabs)]
    a.e("s_add_u32 s%d, s%d, s%d" % (sA, sG, sHP))
    a.e("s_bfe_u32 s%d, s%d, 0x%x" % (sCH, sA, fw << 16 | fo))
    if Opt.ghx: a.e("s_lshl2_add_u32 s%d, s%d, s%d" % (sCH, sD, sCH))
    a.e("s_and_b32 s%d, s%d, 0xc00" % (sWH, sWK))
    a.e("v_and_b32 %s, 0xff, v0" % v(vTID))

    def wvoff(a):
        a.e("v_lshrrev_b32 v2, 4, %s" % v(vTID))
        a.e("v_lshrrev_b32 v3, 5, %s" % v(vTID))
        a.e("v_bfi_b32 v3, 3, v2, v3")
        a.e("v_lshlrev_b32 v3, 1, v3")
        a.e("v_xor_b32 v3, v3, %s" % v(vTID))
        a.e("v_and_b32 v3, 15, v3")
        a.e("s_lshl_b32 s%d, s%d, 8" % (sA, sM))
        a.e("v_lshl_add_u32 v3, v3, 4, s%d" % sA)
        a.e("v_mul_u32_u24 v2, 3584, v2")
        a.e("v_add_u32 %s, v2, v3" % v(vDG))
    def qvoff(a):
        a.e("v_lshrrev_b32 v2, 4, %s" % v(vTID))
        a.e("v_and_b32 v2, 2, v2")
        a.e("v_xor_b32 v2, v2, %s" % v(vTID))
        a.e("v_and_b32 v2, 3, v2")
        a.e("s_lshl_b32 s%d, s%d, 6" % (sA, sHP))
        a.e("v_lshl_add_u32 v2, v2, 4, s%d" % sA)
        a.e("v_lshrrev_b32 v3, 2, %s" % v(vTID))
        a.e("v_lshl_add_u32 %s, v3, 10, v2" % v(vDQ))
    def stouch(a):
        if Opt.diag or Opt.probe >= 0: a.e("s_load_dwordx2 %s, s[0:1], 32" % sp(SWO))
        if not Opt.stch: return
        a.e("s_lshr_b32 s%d, s%d, 2" % (sA, sW))
        if Opt.ghx: a.e("s_lshl2_add_u32 s%d, s%d, s%d" % (sA, sD, sA))
        a.e("s_lshl_b32 s%d, s%d, 6" % (sA, sA))
        a.e("s_and_b32 s%d, s%d, 7" % (sB, sG))
        a.e("s_add_u32 s%d, s%d, s%d" % (sA, sA, sB))
        a.e("s_mul_i32 s%d, s%d, 28" % (sA, sA))
        a.e("s_bfe_u32 s%d, s%d, 0x10001" % (sB, sW))
        a.e("s_lshl1_add_u32 s%d, s%d, s%d" % (sB, sM, sB))
        a.e("s_add_u32 s%d, s%d, s%d" % (sA, sA, sB))
        a.e("s_lshl_b32 s%d, s%d, 7" % (sA, sA))
        a.e("s_bitcmp1_b32 s%d, 0" % sW)
        a.e("s_cselect_b64 %s, %s, %s" % (sp(SWKV), sp(SWU), sp(SWG)))
        a.e("s_add_u32 s%d, s%d, s%d" % (SWKV, SWKV, sA))
        a.e("s_addc_u32 s%d, s%d, 0" % (SWKV + 1, SWKV + 1))
        for i in range(Opt.stch):
            a.e("s_load_dwordx2 %s, %s, 0x%x" % (sp(sTMPP), sp(SWKV), 128 * 3584 + i * 8 * 3584 + 60))
    def wsrd(a):
        srd_words(a, [SWG])
        a.e("s_mov_b64 %s, %s" % (sp(SWU + 2), sp(SWG + 2)))

    if Opt.hrot:
        ORDER = [("q", 0)] + [(t_, 2 * h_ + j) for h_ in range(2) for t_, j in (("x", 0), ("x", 1), ("g", 0), ("u", 0), ("g", 1), ("u", 1))]
    else:
        ORDER = [("q", 0)] + [("x", j) for j in range(4)] + [(t_, j) for j in range(4) for t_ in "gu"]
    def block(items):
        out = []; lastc = None; lastw = None
        for c, kind, j in items:
            s = c % 3; pre = []
            if c != lastc:
                if c: pre.append("s_bfe_u32 s%d, s%d, 0x%x" % (sCH, sXP, 0x30000 + 4 * c))
                lastc = c; lastw = None
            fam = "w" if kind in "gu" else kind
            rot = Opt.hrot and fam != "q"
            if lastw is None or lastw[0] != fam or (rot and lastw[1] >> 1 != j >> 1):
                pre.append({"q": "s_lshl_b32 s%d, s%d, 16" % (sOFFW, sCH), "x": "s_lshl_b32 s%d, s%d, 7" % (sOFFW, sCH),
                            "w": "s_mul_i32 s%d, s%d, %d" % (sOFFW, sCH, 64 * 3584)}[fam])
                if rot: pre.append("s_%s_u32 s%d, s%d, s%d" % ("sub" if j >> 1 else "add", sOFFW, sOFFW, sRX if fam == "x" else sRW))
                lastw = (fam, 0)
            if lastw[1] != j:
                pre.append("s_add_u32 s%d, s%d, 0x%x" % (sOFFW, sOFFW, (j - lastw[1]) * (0x8000 if fam == "x" else 16 * 3584)))
                lastw = (fam, j)
            m0c, vo, rs = {"q": (L_WQ + s * 4096, vDQ, SWQ), "x": (L_X + s * 16384 + j * 4096, vDX, SX),
                           "g": (L_G + s * 16384 + j * 4096, vDG, SWG), "u": (L_U + s * 16384 + j * 4096, vDG, SWU)}[kind]
            nt = " nt" if Opt.ntx & (1 if rs == SX else 2) else ""
            out.append(("s_add_u32 m0, s%d, 0x%x\n%s\nbuffer_load_dwordx4 %s, %s, s%d offen%s lds"
                        % ((sM0B + (j >> 1)) if rot else sWH, m0c, "\n".join(pre) or "s_nop 0", v(vo), srd(rs), sOFFW, nt), "c%d" % c))
        return out
    def part(c, role): return [(c, k_, j) for k_, j in ORDER if (k_ in "gu") == (role == "A")]

    def rdsetup(a):
        setup_rd(a)
        a.e("v_lshl_add_u32 %s, v3, 3, v2" % v(vWA))
        a.e("v_lshlrev_b32 %s, 8, %s" % (v(vWA), v(vWA)))
        a.e("v_lshl_add_u32 %s, v4, 3, %s" % (v(vWA), v(vWA)))
        a.e("v_and_b32 v5, 1, v3")
        a.e("v_lshl_add_u32 v2, v5, 2, v2")
        a.e("s_lshl_b32 s%d, s%d, 2" % (sA, sHI))
        a.e("s_and_b32 s%d, s%d, 1" % (sB, sLO))
        a.e("s_lshl_b32 s%d, s%d, 1" % (sB, sB))
        a.e("s_add_u32 s%d, s%d, s%d" % (sA, sA, sB))
        a.e("v_xor_b32 v2, s%d, v2" % sA)
        a.e("v_lshl_add_u32 %s, v2, 5, %s" % (v(vWA), v(vWA)))
        a.e("v_xor_b32 %s, 32, %s" % (v(vWA + 1), v(vWA)))
        a.e("v_add_u32 %s, 0x%x, %s" % (v(vWA + 2), L_U - L_G, v(vWA)))
        a.e("v_add_u32 %s, 0x%x, %s" % (v(vWA + 3), L_U - L_G, v(vWA + 1)))
        a.e("s_lshl_b32 s%d, s%d, 12" % (sA, sLO))
        a.e("s_add_u32 s%d, s%d, 0x%x" % (sA, sA, L_X))
        a.e("v_add_u32 %s, s%d, %s" % (v(vXA), sA, v(vXA)))
        a.e("v_xor_b32 %s, 0x1000, %s" % (v(vXA + 1), v(vXA)))
        a.e("v_xor_b32 %s, 64, %s" % (v(vXA + 2), v(vXA)))
        a.e("v_xor_b32 %s, 64, %s" % (v(vXA + 3), v(vXA + 1)))
        a.e("v_add_u32 %s, 0x%x, %s" % (v(vQA), L_WQ, v(vQA)))

    a.e("s_cmp_ge_u32 s%d, 4" % sW)
    a.e("s_cbranch_scc1 L_setB")
    late = collect(setup_oclr) + collect(setup_ones) + [("; later", None)] + collect(setup_attn)
    words = collect(lambda t: srd_words(t, [SWS, SKV, SDBG, SWD, SWO, SOUT]))
    late = [x for x in late if x not in words]
    oclr = [x for x in late if x[1] == "oclr"]
    if Opt.olate: late = [x for x in late if x[1] != "oclr"]
    else: oclr = []
    words += [("v_mov_b32 %s, 0" % v(r_), None) for r_ in (vGA, vWDV, vFLA, vHA, vOUTA)]
    st = collect(rdsetup) + words + late[:Opt.fillpre]
    cut = late.index(("; later", None)) if Opt.bidle else len(late)
    fills = {"A": late[Opt.fillpre:], "B": late[Opt.fillpre:max(cut, Opt.fillpre)]}
    idleB = late[max(cut, Opt.fillpre):]
    vms = {}
    wsrd(a); wvoff(a)
    a.e("s_waitcnt lgkmcnt(0)")
    a.stamp(2)
    if Opt.spos == 0: stouch(a)
    put(a, block(part(0, "A")))
    a.e("s_branch L_setA")
    vms["A"] = a.vm; a.vm = []
    a.lab("L_setB")
    srd_words(a, [SX]); xvoff(a, vTID)
    a.e("s_waitcnt lgkmcnt(0)")
    a.stamp(2)
    if Opt.spos == 0: stouch(a)
    put(a, block(part(0, "B")[1:]))
    srd_words(a, [SWQ]); qvoff(a)
    put(a, block(part(0, "B")[:1]))
    vms["B"] = a.vm
    for role in "BA":
        a.vm = vms[role]
        if role == "A": a.lab("L_setA")
        if Opt.spos == 1: stouch(a)
        table(a)
        setup_ids(a)
        if role == "A": srd_words(a, [SX, SWQ])
        else: wsrd(a)
        def touches():
            tm = sum(0xff << (8 * i) for i in range(4) if Opt.tch >> i & 1)
            setex = "s_bitcmp1_b32 s%d, 3\ns_cselect_b32 exec_lo, 0, 0x%x\ns_cselect_b32 exec_hi, 0x%x, 0" % (sG, tm, tm) if Opt.ghx \
                    else "s_mov_b32 exec_lo, 0x%x\ns_mov_b32 exec_hi, 0" % tm
            if Opt.tlb & 2 and role == "B":
                a.e("s_and_b32 s%d, s%d, 7" % (sA, sG))
                a.e("v_lshl_add_u32 v2, v0, 3, s%d" % sA)
                a.e("v_mul_u32_u24 v3, 3584, v2")
                a.e("s_and_b32 s%d, s%d, 1" % (sB, sW))
                a.e("s_lshl1_add_u32 s%d, s%d, s%d" % (sA, sM, sB))
                a.e("s_lshl_b32 s%d, s%d, 7" % (sA, sA))
                a.e(setex)
                a.e("s_cmp_ge_u32 s%d, 6" % sW)
                a.e("s_cbranch_scc1 L_tlbu")
                a.e("buffer_load_dword %s, v3, %s, s%d offen" % (v(vPOLL), srd(SWG), sA))
                a.e("s_branch L_tlbe")
                a.lab("L_tlbu")
                a.e("buffer_load_dword %s, v3, %s, s%d offen" % (v(vPOLL), srd(SWU), sA))
                a.lab("L_tlbe")
                a.e("s_mov_b64 exec, -1")
                a.vm.append("tlb")
            if Opt.tlb & 12 and role == "A":
                a.e("s_cmp_lg_u32 s%d, 0" % sW)
                a.e("s_cbranch_scc1 L_tlbx")
                a.e("s_and_b32 s%d, s%d, 7" % (sA, sG))
                a.e("v_lshl_add_u32 v2, v0, 3, s%d" % sA)
                a.e("v_lshlrev_b32 v3, 10, v2")
                a.e("s_lshl_b32 s%d, s%d, 6" % (sA, sHP))
                a.e(setex if Opt.tlb & 4 else "s_mov_b64 exec, 1")
                a.e("buffer_load_dword %s, v3, %s, s%d offen" % (v(vPOLL), srd(SWQ), sA))
                a.e("s_branch L_tlby")
                a.lab("L_tlbx")
                a.e("s_and_b32 s%d, s%d, 3" % (sA, sM))
                a.e("s_lshl2_add_u32 s%d, s%d, s%d" % (sA, sG, sA))
                a.e("s_lshl_b32 s%d, s%d, 15" % (sA, sA))
                a.e("v_lshl_add_u32 v3, v0, 10, s%d" % sA)
                a.e("s_lshr_b32 s%d, s%d, 3" % (sA, sG))
                a.e("s_lshl2_add_u32 s%d, s%d, s%d" % (sA, sA, sW) if Opt.ghx else "s_mov_b32 s%d, s%d" % (sA, sW))
                a.e("s_lshl_b32 s%d, s%d, 7" % (sA, sA))
                a.e("s_bitcmp1_b32 %d, s%d" % (Opt.tch if Opt.tlb & 8 else 0, sW))
                a.e("s_cselect_b32 exec_lo, -1, 1")
                a.e("s_mov_b32 exec_hi, 0")
                a.e("buffer_load_dword %s, v3, %s, s%d offen" % (v(vPOLL), srd(SX), sA))
                a.lab("L_tlby")
                a.e("s_mov_b64 exec, -1")
                a.vm.append("tlb")
        if Opt.tpos == 0: touches()
        if Opt.startbar: a.e("s_barrier")
        npre = min(Opt.npre, 8) if role == "A" else 5
        pn = block(part(1, role)[:npre])
        rest = st + (collect(qvoff) + collect(lambda t: xvoff(t, vTID)) if role == "A" else collect(wvoff))
        gap = len(rest) // (npre + Opt.pregap) + 1
        if Opt.tpos == 2:
            put(a, pn); touches(); npre = 0
        if Opt.tpos == 3 and role == "B":
            put(a, pn); touches(); npre = 0
        for i in range(npre):
            put(a, pn[:1]); pn = pn[1:]
            put(a, rest[:gap]); rest = rest[gap:]
        put(a, rest)
        if Opt.tpos == 1 or (Opt.tpos == 3 and role == "A"): touches()
        a.e("s_mov_b64 vcc, %d" % (-1 if role == "A" else 0))
        if role == "A":
            a.waitvm("c0", lgkm=True)
        else:
            a.e("s_setprio 1")
            a.waitvm("c0", lgkm=True)
            a.e("s_branch L_k0")
        vms[role] = a.vm
    stream = part(1, "A")[min(Opt.npre, 8):] + [(c, k_, j) for c in range(2, 8) for k_, j in ORDER]
    qa = [int(x, 16) for x in Opt.qa]; qb = [int(x, 16) for x in Opt.qb]
    def take(n, cmax):
        m = 0
        while m < n and m < len(stream) and stream[m][0] <= cmax: m += 1
        r_ = stream[:m]; del stream[:m]
        return block(r_)
    a.lab("L_k0")
    a.vm = vms["A"]
    ool = Asm()
    def dmablock(name, role, items, wait=None):
        a.e("s_cbranch_vcc%s L_%s" % ("nz" if role == "A" else "z", name))
        if wait: a.waitvm(wait, lgkm=True)
        a.lab("L_%s_r" % name)
        ool.lab("L_%s" % name)
        ool.vm = a.vm if role == "A" else vms["B"]
        for it_ in items:
            put(ool, [it_])
            fp = Opt.fillper if role == "A" or not Opt.bidle else 2
            put(ool, fills[role][:fp]); fills[role] = fills[role][fp:]
        if name in ("d7", "e7"): put(ool, fills[role]); fills[role] = []
        if wait: ool.waitvm(wait, lgkm=True)
        if role == "B": vms["B"] = ool.vm
        ool.e("s_branch L_%s_r" % name)
    a.ool = ool.l

    def fr(k):
        b = vF1 + 36 * (k % 2)
        return dict(x=b, w=b + 16, q=b + 32)
    def reads(k):
        c, s = divmod(k, 2); f = fr(k); sl = c % 3
        wo = sl * 16384 + s * 8192
        W = lambda i: [rdtr(f['w'] + 4 * i, vWA + i, wo), rdtr(f['w'] + 4 * i + 2, vWA + i, wo + 1024)]
        X = [rd128(f['x'] + 4 * b, vXA + 2 * s + (b >> 1), sl * 16384 + (b & 1) * 2048) for b in range(4)]
        return W(0) + X + W(2) + W(1) + W(3) + [rdtr(f['q'], vQA, sl * 4096 + s * 2048), rdtr(f['q'] + 2, vQA, sl * 4096 + s * 2048 + 256)]
    a.e("s_barrier")
    a.stamp(3)
    if Opt.kdiag or Opt.probe >= 18:
        kstamp(a, 2)
        a.e("s_waitcnt lgkmcnt(0)")
    for r in reads(0): a.e(r)
    if qa[0]: dmablock("d2", "A", take(qa[0], 2))
    for k in range(16):
        c, s = divmod(k, 2); f = fr(k)
        z = lambda x: None if k == 0 else x
        mf = []
        for n_, i in enumerate((0, 2, 1, 3)):
            for b in (range(4) if n_ % 2 == 0 else range(3, -1, -1)):
                d = vACC + 16 * b + 4 * i
                mf.append(mfma16(d, f['w'] + 4 * i, f['x'] + 4 * b, z(d)))
        for b in range(2): mf.append(mfma16(vAQ + 4 * b, f['q'], f['x'] + 4 * b, z(vAQ + 4 * b)))
        rds = reads(k + 1) if k < 15 else []
        if s == 0:
            a.e("s_waitcnt lgkmcnt(6)")
            for i, m in enumerate(mf):
                if i == 8: a.e("s_waitcnt lgkmcnt(8)")
                a.e(m)
                if i < len(rds): a.e(rds[i])
            continue
        a.e("s_waitcnt lgkmcnt(8)")
        for m in mf[:4]: a.e(m)
        if c <= 5:
            dmablock("e%d" % (c + 2), "B", take(qb[c], c + 2), "c%d" % (c + 1))
            assert not any(x[0] <= c + 1 for x in stream)
        if c == 7:
            a.e("s_waitcnt lgkmcnt(0)")
        elif c == 6:
            a.e("s_waitcnt lgkmcnt(0)")
            a.e("s_cbranch_vccz L_st7")
            a.e("s_setprio 1")
            a.e("s_waitcnt vmcnt(0)")
            a.e("s_barrier")
            a.lab("L_st7")
        else:
            a.e("s_barrier")
        if c < 7 and ((Opt.kdiag == 1 and Opt.diag) or Opt.probe == 21 + c):
            kstamp(a, 3 + c)
            a.e("s_waitcnt lgkmcnt(0)")
        if c + 3 < 8:
            items = take(qa[c + 1], c + 3)
            dmablock("d%d" % (c + 3), "A", items)
        for i, m in enumerate(mf[4:]):
            a.e(m)
            if i < len(rds): a.e(rds[i])
        if k == 11: assert not stream and not fills["A"] and not fills["B"]
        if k == 11:
            a.e("s_cbranch_vccnz L_st6")
            a.e("s_setprio 0")
            nm = next((i for i, x in enumerate(idleB) if "0xdddd" in x[0]), 0)
            a.e("s_cmp_lg_u32 s%d, 4" % sW)
            a.e("s_cbranch_scc1 L_nopoll")
            a.e("buffer_load_dword %s, off, %s, 0 sc1" % (v(vPOLL), srd(SDBG)))
            a.lab("L_nopoll")
            put(a, idleB[:nm]); idleB = idleB[nm:]
            a.wait0()
            spin_counter(a, "kvf", True, 4)
            a.e("s_barrier")
            put(a, kv_first_loads(a, True) + oclr + idleB)
            a.lab("L_st6")
    a.kvA = (kv_first_loads(a) + oclr)[2:]
    a.stamp(4)

def phase1_L(a):
    a.lab("L_light")
    a.vm = []
    a.e("s_waitcnt lgkmcnt(0)")
    ptr_loads(a, ((SWKV, 16), (SWV, 24), (SGATE, 72), (SWO, 32)))
    srd_words(a, [SWKV, SWV, SGATE, SX])
    xvoff(a, 0)
    a.e("v_and_b32 v2, 63, v0")
    a.e("v_lshlrev_b32 %s, 4, v2" % v(vL16))
    a.e("s_sub_u32 s%d, s%d, 14" % (sCNT, sM))
    a.e("s_lshl_b32 s%d, s%d, 16" % (sOLD, sCNT))
    a.e("s_lshl_b32 s%d, s%d, 13" % (sHST, sCNT))
    a.e("s_add_u32 s%d, s%d, s%d" % (sWH, sHST, sWK))
    a.e("s_xor_b32 s%d, s%d, 0x2000" % (sHST, sHST))
    a.e("s_add_u32 s%d, s%d, 0x2000" % (sA, sWK))
    a.e("s_waitcnt lgkmcnt(0)")
    a.stamp(2)
    def xdma(c, base, so):
        a.vmop("s_add_u32 m0, s%d, 0x%x\ns_nop 0\nbuffer_load_dwordx4 %s, %s, s%d offen offset:%d lds"
               % (base, LL_X + c * 16384 - c * 128, v(vDX), srd(SX), so, c * 128), "c%d" % c)
    def wdma(u):
        for t, rs in enumerate((SWKV, SWV)):
            a.vmop("s_add_u32 m0, s%d, 0x%x\ns_nop 0\nbuffer_load_dwordx4 %s, %s, s%d offen lds"
                   % (sWK, LL_W + t * 16384 + u * 8192, v(vL16), srd(rs), sA if u else sWK), "w")
    wdma(0)
    a.vmop("s_mov_b32 m0, s%d\ns_nop 0\nbuffer_load_dwordx4 %s, %s, 0 offen lds" % (sHST, v(vL16), srd(SGATE)), "w")
    for c in range(8):
        if c == 4: wdma(1)
        xdma(c, sWH, sOLD)
        if c in (1, 3, 5): a.e("s_barrier")
    setup_ids(a)
    srd_words(a, [SWQ])
    setup_rd(a)
    a.e("v_lshrrev_b32 v3, 5, v0")
    a.e("v_bfrev_b32 v5, v4")
    a.e("v_lshrrev_b32 v5, 30, v5")
    a.e("s_cmp_ge_u32 s%d, 2" % sLO)
    a.e("s_cselect_b64 vcc, -1, 0")
    a.e("v_cndmask_b32 v4, v5, v4, vcc")
    a.e("v_lshl_add_u32 %s, v3, 3, v2" % v(vWA))
    a.e("v_lshlrev_b32 %s, 5, %s" % (v(vWA), v(vWA)))
    a.e("v_lshl_add_u32 %s, v4, 3, %s" % (v(vWA), v(vWA)))
    a.e("s_lshr_b32 s%d, s%d, 1" % (sA, sLO))
    a.e("s_lshl_b32 s%d, s%d, 14" % (sA, sA))
    a.e("s_add_u32 s%d, s%d, 0x%x" % (sA, sA, LL_W))
    a.e("v_add_u32 %s, s%d, %s" % (v(vWA), sA, v(vWA)))
    a.e("v_lshl_add_u32 %s, v3, 4, s%d" % (v(vWA + 1), sHST))
    a.e("s_and_b32 s%d, s%d, 1" % (sA, sLO))
    a.e("s_lshl_b32 s%d, s%d, 1" % (sB, sCNT))
    a.e("s_add_u32 s%d, s%d, s%d" % (sCNT, sA, sB))
    a.e("s_lshl_b32 s%d, s%d, 12" % (sA, sCNT))
    a.e("v_and_b32 v2, 31, v0")
    a.e("v_lshrrev_b32 v4, 1, v0")
    a.e("v_lshlrev_b32 v5, 1, v0")
    a.e("v_bfi_b32 v4, 4, v4, v5")
    a.e("v_bfi_b32 v4, 12, v4, v2")
    a.e("v_cndmask_b32 v2, v2, v4, vcc")
    a.e("v_bfe_u32 v4, v2, 1, 3")
    a.e("v_xor_b32 v4, v4, v3")
    a.e("v_lshlrev_b32 v4, 4, v4")
    a.e("v_lshl_add_u32 v4, v2, 7, v4")
    a.e("v_add_u32 %s, s%d, v4" % (v(vLX), sA))
    for s in range(1, 4): a.e("v_xor_b32 %s, %d, %s" % (v(vLX + s), 32 * s, v(vLX)))
    for s in range(4): a.e("v_add_u32 %s, 0x10000, %s" % (v(vLX + 4 + s), v(vLX + s)))
    a.e("s_waitcnt lgkmcnt(0)")
    setup_oclr(a)
    vm0 = list(a.vm)
    a.e("s_cmp_lg_u32 s%d, 0" % sHI)
    a.e("s_cbranch_scc1 L_lB")
    a.e("s_not_b64 %s, %s" % (sp(sTMPP), sp(sVM)))
    a.e("s_cmp_ge_u32 s%d, 2" % sLO)
    a.e("s_cbranch_scc1 L_lV")
    def chain(kind):
        a.vm = list(vm0)
        def fr(k):
            b = vFR + 8 * (k % 4)
            return b, b + 4
        def reads(k):
            c, s = divmod(k, 4); x, w = fr(k)
            r = [rd128(x, vLX + s + 4 * (c >> 2), (c & 3) * 16384), rdtr(w, vWA, k * 512), rdtr(w + 2, vWA, k * 512 + 128)]
            if kind == "K":
                r += ["s_mov_b64 exec, %s" % sp(sTMPP), rd128(w, vWA + 1, k * 32), "s_mov_b64 exec, -1"]
            return r
        for q in range(4):
            a.waitvm("c%d" % (2 * q + 1))
            a.e("s_barrier")
            nr = 4 if kind == "K" else 3
            for k in range(8 * q, 8 * q + 2):
                for r in reads(k): a.e(r)
            for k in range(8 * q, 8 * q + 8):
                if k + 2 < 8 * q + 8:
                    for r in reads(k + 2): a.e(r)
                left = min(2, 8 * q + 7 - k)
                a.e("s_waitcnt lgkmcnt(%d)" % (left * nr))
                x, w = fr(k)
                cc = None if k == 0 else vACC
                a.e(mfma(vACC, w, x, cc) if kind == "K" else mfma(vACC, x, w, cc))
        a.e("s_lshl_b32 s%d, s%d, 2" % (sA, sG))
        a.e("s_add_u32 s%d, s%d, s%d" % (sA, sA, sCNT))
        a.e("s_nop 12")
        if kind == "K":
            a.e("s_mov_b32 s%d, 0x%x" % (sC, f2u(0.25 * math.log2(math.e))))
            for i in range(8): a.e("v_mul_f32 %s, s%d, %s" % (v(vACC + i), sC, v(vACC + i)))
            a.e("v_mul_f32 %s, 0x%x, %s" % (v(vACC + 8), f2u(-math.log2(math.e)), v(vACC + 8)))
            a.e("v_exp_f32 %s, %s" % (v(vACC + 8), v(vACC + 8)))
            for i in range(4): a.e("v_cvt_pk_bf16_f32 %s, %s, %s" % (v(vFR + i), v(vACC + 2 * i), v(vACC + 2 * i + 1)))
            a.e("v_add_f32 %s, 1.0, %s" % (v(vACC + 8), v(vACC + 8)))
            a.e("v_rcp_f32 %s, %s" % (v(vACC + 8), v(vACC + 8)))
            a.e("s_add_u32 s%d, s%d, 63" % (sB, sA))
            a.e("s_and_b32 s%d, s%d, 63" % (sB, sB))
            a.e("s_lshl_b32 s%d, s%d, 11" % (sB, sB))
            a.e("buffer_store_dwordx4 %s, %s, %s, s%d offen sc1" % (v(vFR, 4), v(vL16), srd(SKV), sB))
            a.e("s_lshl_b32 s%d, s%d, 7" % (sB, sA))
            a.e("s_add_u32 s%d, s%d, 0x%x" % (sB, sB, WS_G))
            a.e("s_mov_b32 exec_hi, 0")
            a.e("buffer_store_dword %s, %s, %s, s%d offen sc1" % (v(vACC + 8), v(vGA), srd(SWS), sB))
            a.e("s_mov_b64 exec, -1")
        else:
            for i in range(8): a.e("v_cvt_pk_bf16_f32 %s, %s, %s" % (v(vFR + i), v(vACC + 2 * i), v(vACC + 2 * i + 1)))
            a.e("v_bfe_u32 v2, v0, 4, 1")
            a.e("v_add_u32 v2, s%d, v2" % sA)
            a.e("v_and_b32 v2, 63, v2")
            a.e("v_lshl_add_u32 v2, v2, 11, %s" % v(vL16))
            for i in range(4): a.e("v_cndmask_b32 %s, %s, %s, %s" % (v(vFR + i), v(vFR + 4 + i), v(vFR + i), sp(sVM)))
            a.e("buffer_store_dwordx4 %s, v2, %s, 0 offen offset:1024 sc1" % (v(vFR, 4), srd(SKV)))
        a.e("s_branch L_lJ")
    chain("K")
    a.lab("L_lV")
    chain("V")
    a.lab("L_lB")
    a.vm = list(vm0)
    a.e("s_cmp_lg_u32 s%d, 4" % sW)
    a.e("s_cbranch_scc1 L_nozf")
    a.e("v_lshlrev_b32 v2, 7, v0")
    a.e("s_lshl1_add_u32 s%d, s%d, s%d" % (sA, sG, sM))
    a.e("s_lshl_b32 s%d, s%d, 13" % (sA, sA))
    a.e("s_add_u32 s%d, s%d, 0x%x" % (sA, sA, WS_HFLAG - 14 * 8192))
    a.e("buffer_store_dword %s, v2, %s, s%d offen sc1" % (v(vZERO), srd(SWS), sA))
    a.lab("L_nozf")
    for q in range(4):
        a.waitvm("c%d" % (2 * q + 1))
        a.e("s_barrier")
    a.lab("L_lJ")
    a.e("v_lshrrev_b32 v3, 2, v0")
    a.e("v_lshlrev_b32 v3, 10, v3")
    a.e("v_lshrrev_b32 v4, 5, v0")
    a.e("v_lshlrev_b32 v4, 1, v4")
    a.e("v_xor_b32 v4, v4, v0")
    a.e("v_and_b32 v4, 3, v4")
    a.e("v_lshl_add_u32 v3, v4, 4, v3")
    a.e("s_lshl_b32 s%d, s%d, 14" % (sA, sW))
    a.e("s_lshl_b32 s%d, s%d, 6" % (sB, sHP))
    a.e("s_add_u32 s%d, s%d, s%d" % (sA, sA, sB))
    a.e("v_add_u32 %s, s%d, v3" % (v(vDQ), sA))
    a.e("s_xor_b32 s%d, s%d, 0x2000" % (sWH, sWH))
    a.e("s_xor_b32 s%d, s%d, 0x10000" % (sOLD, sOLD))
    a.wait0(lgkm=True)
    a.e("s_barrier")
    a.e("s_cmp_lg_u32 s%d, 0" % sW)
    a.e("s_cbranch_scc1 L_noat")
    a.e("s_mov_b64 exec, 1")
    a.e("buffer_atomic_add %s, off, %s, 0 sc1" % (v(vONE), srd(SDBG)))
    a.e("s_mov_b64 exec, -1")
    a.lab("L_noat")
    a.stamp(3)
    for c in range(8): xdma(c, sWH, sOLD)
    for p in range(4):
        a.e("s_add_u32 m0, s%d, 0x%x" % (sWK, LL_WQ + p * 8192))
        a.e("s_mov_b32 s%d, 0x%x" % (sA, p * 128 * 1024))
        a.e("buffer_load_dwordx4 %s, %s, s%d offen lds" % (v(vDQ), srd(SWQ), sA))
    setup_ones(a)
    setup_attn(a)
    if Opt.touch & 2:
        a.e("s_lshl_b32 s%d, s%d, 1" % (sA, sG))
        a.e("s_add_u32 s%d, s%d, s%d" % (sA, sA, sM))
        a.e("s_sub_u32 s%d, s%d, 14" % (sA, sA))
        a.e("s_lshl_b32 s%d, s%d, 3" % (sA, sA))
        a.e("s_add_u32 s%d, s%d, s%d" % (sA, sA, sW))
        a.e("v_lshlrev_b32 v2, 15, v0")
        a.e("s_lshl_b32 s%d, s%d, 7" % (sA, sA))
        a.e("buffer_load_dword %s, v2, %s, s%d offen" % (v(vPOLL), srd(SWO), sA))
        a.e("buffer_load_dword %s, v2, %s, s%d offen" % (v(vPOLL), srd(SWD), sA))
    a.e("s_lshl_b32 s%d, s%d, 12" % (sA, sLO))
    a.e("v_add_u32 %s, s%d, %s" % (v(vXA), sA, v(vXA)))
    a.e("v_xor_b32 %s, 64, %s" % (v(vXA + 1), v(vXA)))
    a.e("v_add_u32 %s, 0x10000, %s" % (v(vXA + 2), v(vXA)))
    a.e("v_add_u32 %s, 0x10000, %s" % (v(vXA + 3), v(vXA + 1)))
    a.e("v_add_u32 %s, 0x%x, %s" % (v(vQA), LL_WQ, v(vQA)))
    a.e("s_waitcnt vmcnt(%d)" % (2 if Opt.touch & 2 else 0))
    a.e("s_barrier")
    def fr(k): return vFR + 12 * (k % 3)
    def reads(k):
        c, s = divmod(k, 2); f = fr(k)
        return [rd128(f + 4 * b, vXA + s + 2 * (c >> 2), (c & 3) * 16384 + b * 2048) for b in range(2)] + \
               [rdtr(f + 8, vQA, k * 2048), rdtr(f + 10, vQA, k * 2048 + 256)]
    for k in range(2):
        for r in reads(k): a.e(r)
    for k in range(16):
        a.e("s_waitcnt lgkmcnt(%d)" % (4 * min(1, 15 - k)))
        for b in range(2): a.e(mfma16(vAQ + 4 * b, fr(k) + 8, fr(k) + 4 * b, None if k == 0 else vAQ + 4 * b))
        if k + 2 < 16:
            for r in reads(k + 2): a.e(r)
    spin_counter(a, "kvl", False)
    a.e("s_barrier")
    for s, t in kv_first_loads(a): a.e(s)
    a.wait0()
    a.stamp(4)
    a.e("s_branch L_join")

def gelu_tile(a, ti, scalar=False):
    acc = vACC + 16 * ti
    t = vFR
    o = vFR + 8 + 4 * ti
    pk = lambda r: v(r, 2)
    if scalar:
        for i in range(8): a.e("v_mul_f32 %s, %s, %s" % (v(t + i), v(acc + i), v(acc + i)))
        for i in range(8): a.e("v_fma_f32 %s, %s, %s, %s" % (v(t + i), v(t + i), v(vC0 + 1), v(vC0)))
        for i in range(8): a.e("v_mul_f32 %s, %s, %s" % (v(t + i), v(t + i), v(acc + i)))
        for i in range(8): a.e("v_exp_f32 %s, %s" % (v(t + i), v(t + i)))
        for i in range(8): a.e("v_add_f32 %s, 1.0, %s" % (v(t + i), v(t + i)))
        for i in range(8): a.e("v_rcp_f32 %s, %s" % (v(t + i), v(t + i)))
        for i in range(8): a.e("v_mul_f32 %s, %s, %s" % (v(acc + i), v(acc + i), v(acc + 8 + i)))
        for i in range(8): a.e("v_mul_f32 %s, %s, %s" % (v(acc + i), v(acc + i), v(t + i)))
    R4, R8 = (range(0), range(0)) if scalar else (range(4), range(8))
    for i in R4: a.e("v_pk_mul_f32 %s, %s, %s" % (pk(t + 2 * i), pk(acc + 2 * i), pk(acc + 2 * i)))
    for i in R4: a.e("v_pk_fma_f32 %s, %s, %s, %s op_sel:[0,1,0] op_sel_hi:[1,1,0]" % (pk(t + 2 * i), pk(t + 2 * i), pk(vC0), pk(vC0)))
    for i in R4: a.e("v_pk_mul_f32 %s, %s, %s" % (pk(t + 2 * i), pk(t + 2 * i), pk(acc + 2 * i)))
    for i in R8: a.e("v_exp_f32 %s, %s" % (v(t + i), v(t + i)))
    for i in R4: a.e("v_pk_add_f32 %s, %s, 1.0 op_sel_hi:[1,0]" % (pk(t + 2 * i), pk(t + 2 * i)))
    for i in R8: a.e("v_rcp_f32 %s, %s" % (v(t + i), v(t + i)))
    for i in R4: a.e("v_pk_mul_f32 %s, %s, %s" % (pk(acc + 2 * i), pk(acc + 2 * i), pk(acc + 8 + 2 * i)))
    for i in R4: a.e("v_pk_mul_f32 %s, %s, %s" % (pk(acc + 2 * i), pk(acc + 2 * i), pk(t + 2 * i)))
    for i in range(4): a.e("v_cvt_pk_bf16_f32 %s, %s, %s" % (v(o + i), v(acc + 2 * i), v(acc + 2 * i + 1)))
    a.vmop("buffer_store_dwordx4 %s, %s, %s, s%d offen offset:%d sc1" % (v(o, 4), v(vHA), srd(SWS), sHST2 if ti >> 1 else sHST, (ti & 1) * 256), "hst")

def Yseg(hset, toggle=False, first=False, extra=False, last=False):
    out = []
    for t in range(2):
        pos = [int(x, 17) for x in (Opt.ypos0 if hset is None else Opt.ypos2 if extra else Opt.ypos1)]
        if last and t == 1: pos = [pos[0], 0, 11, pos[1]]
        S, Sn = vS + 16 * t, vS + 16 * (1 - t)
        K, V0, V1 = vKF + 4 * t, vV + 8 * t, vV + 8 * t + 4
        for e in range(1, 17):
            out.append("v_exp_f32 %s, %s" % (v(S + e - 1), v(S + e - 1)))
            if e == pos[0] and not (first and t == 0): out.append(smfmac(vO, V1, Sn + 8))
            if e == pos[1]: out.append(mfma(Sn, K, vQ, None))
            if e == pos[2]: out.append(smfmac(vO, V0, S))
            if hset is not None:
                if e == 13 and t == 1 and toggle:
                    out.append("v_xor_b32 %s, 0x4000, %s" % (v(vKVB), v(vKVB)))
                if e == pos[3]: out.append(mfma(vD + 16 * t, vWF + 4 * t, vH + 4 * hset, vD + 16 * t))
                if extra and e == pos[4]: out.append(mfma(vD + 16 * t, vFR + 16 + 4 * t, vH + 16 + 4 * hset, vD + 16 * t))
    return out

def kv_reads(off, vKVA=vKVA):
    r = [rd128(vKF, vKVA, off), rd128(vKF + 4, vKVA, off + 2048), "s_mov_b64 exec, %s" % sp(sVM)]
    for t in range(2):
        r += [rd128(vV + 8 * t, vKVA, off + 2048 * t + 1024), rd128(vV + 8 * t + 4, vKVA, off + 2048 * t + 1280)]
    r.append("s_mov_b64 exec, -1")
    return r
def wd_reads(dst, addr, off):
    r = []
    for c in range(2):
        r += [rdtr(dst + 4 * c, addr, off + 512 * c), rdtr(dst + 4 * c + 2, addr, off + 512 * c + 1024)]
    return r

def hord(): return [0, 2, 4, 6, 1, 3, 5, 7] if Opt.hord else list(range(8))
def wdrow(sg): return (32 * (sg >> 1) + 8 * (sg & 1)) * 1024

def attention(a, role, pre0=None):
    A = role == "A"
    def kvdma(u):
        a.vmop("s_add_u32 m0, s%d, 0x%x\ns_add_u32 s%d, s%d, 0x%x\nbuffer_load_dwordx4 %s, %s, s%d offen sc1 lds"
               % (sWK, L_KV + (u % 4) * 8192, sA, sWK, u * 8192, v(vL16), srd(SKV), sA), "kv%d" % u)
    def wddma(sg):
        a.vmop("s_add_u32 m0, s%d, 0x%x\ns_add_u32 s%d, s%d, 0x%x\nbuffer_load_dwordx4 %s, %s, s%d offen lds"
               % (sWK, L_WD + (sg % 4 if sg < 23 or sg == 27 else sg - 19) * 8192, sA, sWDOFF, wdrow(sg), v(vWDV), srd(SWD), sA), "wd%d" % sg)
    def wodma(j):
        a.vmop("s_add_u32 m0, s%d, 0x%x\ns_add_u32 s%d, s%d, 0x%x\nbuffer_load_dwordx4 %s, %s, s%d offen lds"
               % (sWK, L_WO + (7 - j) * 8192, sA, sB, hord()[j] * 16384, v(vWDV), srd(SWO), sA), "wo")
    def hload(sg, dst):
        a.vmop("s_add_u32 s%d, s%d, 0x%x\nbuffer_load_dwordx4 %s, %s, %s, s%d offen sc1"
               % (sA, sHOFF, sg * 1024, v(dst, 4), v(vL16), srd(SWS), sA), "h%d" % sg)
    for n in range(12):
        if not A and n == 0: a.e("s_barrier")
        if n % 2 == 1: astamp(a, 2 + n // 2)
        if n == Opt.pcyc: a.e("s_memtime %s" % sp(sSTAMP + 6))
        tags = []
        if A and n % 2 == 1: tags.append("kv%d" % ((n + 1) // 2))
        if not A and n % 2 == 0: tags.append("kv%d" % ((n + 2) // 2))
        if n == 6: tags.append("wo")
        if n == 9: tags.append("wd27")
        if n == 11: tags.append("wd0")
        if n == 9 and A:
            a.e("s_cmp_lg_u32 s%d, 0" % sW)
            a.e("s_cbranch_scc1 L_hf_done")
            a.e("s_mov_b32 s%d, 0x4000" % sB)
            a.e("s_waitcnt vmcnt(0)")
            a.lab("L_hf_chk")
            a.e("v_cmp_ne_u32 vcc, 1, %s" % v(vPOLL))
            a.e("s_cbranch_vccz L_hf_done")
            a.e("s_sleep 2")
            a.e("buffer_load_dword %s, %s, %s, 0 offen sc1" % (v(vPOLL), v(vFLA), srd(SWS)))
            a.e("s_sub_u32 s%d, s%d, 1" % (sB, sB))
            a.e("s_cmp_lg_u32 s%d, 0" % sB)
            a.e("s_waitcnt vmcnt(0)")
            a.e("s_cbranch_scc1 L_hf_chk")
            a.lab("L_hf_done")
        a.waitvm(tags)
        if n == 5 and Opt.diag == 3 and A:
            a.e("v_mov_b32 v2, s%d" % sSTAMP)
            a.e("s_lshl_b32 s%d, s2, 3" % sA)
            a.e("s_add_u32 s%d, s%d, s%d" % (sA, sA, sW))
            a.e("s_lshl_b32 s%d, s%d, 7" % (sA, sA))
            a.e("s_add_u32 s%d, s%d, 0x%x" % (sA, sA, WS_STAMP))
            a.e("s_mov_b64 exec, 1")
            a.vmop("buffer_store_dword v2, off, %s, s%d offset:12 sc1" % (srd(SWS), sA), "st")
            a.e("s_mov_b64 exec, -1")
        if Opt.hp0 <= n <= Opt.hp1:
            nn = a.vmn("hst")
            a.e("s_cmp_lg_u32 s%d, 0" % sPUB)
            a.e("s_cbranch_scc1 L_np%s%d" % (role, n))
            if nn is not None:
                if n < Opt.hp1:
                    a.e("s_getreg_b32 s%d, hwreg(HW_REG_IB_STS, 0, 4)" % sA)
                    a.e("s_cmp_gt_u32 s%d, %d" % (sA, nn))
                    a.e("s_cbranch_scc1 L_np%s%d" % (role, n))
                a.e("s_waitcnt vmcnt(%d)" % nn)
            a.e("s_mov_b64 exec, 1")
            a.e("buffer_store_dword %s, off, %s, s%d sc1" % (v(vONE), srd(SWS), sFLG))
            a.e("s_mov_b64 exec, -1")
            a.e("s_mov_b32 s%d, 1" % sPUB)
            a.lab("L_np%s%d" % (role, n))
        for r in kv_reads((n % 8) * 4096): a.e(r)
        if n == 8 and A:
            a.e("s_cmp_lg_u32 s%d, 0" % sW)
            a.e("s_cbranch_scc1 L_hf_nol")
            a.e("buffer_load_dword %s, %s, %s, 0 offen sc1" % (v(vPOLL), v(vFLA), srd(SWS)))
            a.lab("L_hf_nol")
        if n == 0:
            if A or Opt.hpub == 3:
                kvdma(2); kvdma(3)
            a.e("s_lshr_b32 s%d, s%d, 1" % (sA, sLO))
            a.e("s_lshl1_add_u32 s%d, s%d, s%d" % (sA, sG, sA))
            a.e("s_lshl4_add_u32 s%d, s%d, s%d" % (sA, sA, sM))
            a.e("s_lshl1_add_u32 s%d, s%d, s%d" % (sA, sA, sHI))
            a.e("s_and_b32 s%d, s%d, 1" % (sB, sLO))
            a.e("s_lshl1_add_u32 s%d, s%d, s%d" % (sA, sA, sB))
            a.e("s_lshl_b32 s%d, s%d, 7" % (sA, sA))
            a.e("s_add_u32 s%d, s%d, 0x%x" % (sFLG, sA, WS_HFLAG))
            a.e("s_cmp_ge_u32 s%d, 14" % sM)
            a.e("s_cselect_b32 s%d, 1, 0" % sPUB)
            a.e("s_mov_b32 s%d, s%d" % (sC, sKQ))
            a.e("s_mul_i32 s%d, s%d, %d" % (sWDOFF, sC, 448 * 1024))
            a.e("s_and_b32 s%d, s%d, 1" % (sB, sW))
            a.e("s_lshl_b32 s%d, s%d, 14" % (sA, sB))
            a.e("s_add_u32 s%d, s%d, s%d" % (sWDOFF, sWDOFF, sA))
            a.e("s_lshl_b32 s%d, s%d, 1" % (sA, sT))
            a.e("s_add_u32 s%d, s%d, s%d" % (sA, sA, sB))
            a.e("s_mul_i32 s%d, s%d, 112" % (sA, sA))
            a.e("s_mul_i32 s%d, s%d, 28" % (sB, sC))
            a.e("s_add_u32 s%d, s%d, s%d" % (sA, sA, sB))
            a.e("s_lshl_b32 s%d, s%d, 10" % (sA, sA))
            a.e("s_add_u32 s%d, s%d, 0x%x" % (sHOFF, sA, WS_HF))
        if (A and n % 2 == 1 and n >= 3): kvdma((n + 5) // 2)
        if (not A and n % 2 == 0 and n >= 2): kvdma((n + 6) // 2)
        if 1 <= n <= 4:
            a.e("s_lshl_b32 s%d, s%d, 17" % (sB, sKQ))
            a.e("s_and_b32 s%d, s%d, 1" % (sC, sW))
            a.e("s_lshl_b32 s%d, s%d, 13" % (sC, sC))
            a.e("s_add_u32 s%d, s%d, s%d" % (sB, sB, sC))
            for j in (2 * n - 2, 2 * n - 1): wodma(j)
        for sg in {5: (27, 23, 24), 6: (25, 26, 0), 7: (1, 2)}.get(n, ()): wddma(sg)
        if n == 10:
            for r in wd_reads(vWX, vWDA, 3 * 8192): a.e(r)
        for j in ({7: (0,), 8: (1, 2), 9: (3, 4)} if A else {7: (0, 1), 8: (2, 3), 9: (4,)}).get(n, ()):
            for r in wd_reads(WOF[j], vWOA, (7 - j) * 8192): a.e(r)
        hs = {10: (0, 1, 23, 24), 11: (2, 25, 26, 27)} if A else {9: (0, 1, 23), 10: (2, 24), 11: (25, 26, 27)}
        if Opt.hlate: hs = {10: (0, 1), 11: (2,)} if A else {9: (0,), 10: (1,), 11: (2,)}
        for sg in hs.get(n, ()): hload(sg, vH + 4 * sg if sg < 4 else vHX if sg == 27 else vH + 4 * (sg - 19))
        if n == 11:
            a.e("s_add_u32 s%d, s%d, 0x%x" % (sHOFF, sHOFF, 3 * 1024))
            a.e("s_add_u32 s%d, s%d, 0x%x" % (sWDOFF, sWDOFF, wdrow(3)))
            a.e("s_add_u32 s%d, s%d, 0x%x" % (sKVOFF, sWK, 9 * 8192))
            a.e("s_mov_b32 s%d, 4" % sCNT)
            a.e("s_add_u32 s%d, s%d, 0x1000" % (sOLD2, sOLD))
            a.e("s_mov_b32 s%d, 0x%x" % (sLO_, f2u(2.0 ** -16)))
            a.e("s_mov_b32 s%d, 0x%x" % (sRNG, f2u(2.0 ** 100) - f2u(2.0 ** -16)))
        if n == 0 and pre0:
            pre0()
            a.stamp(5)
        a.e("s_waitcnt lgkmcnt(0)")
        if n == 0:
            if A: a.e("s_barrier")
            for x in Yseg(None, first=True): a.e(x)
            if not A: a.e("s_barrier")
            continue
        a.e("s_call_b64 %s, L_Y%s" % (sp(sRET), role))
        if n == 1:
            a.e("s_branch L_X1%s" % role)
            a.lab("L_Y%s" % role)
            if A: a.e("s_barrier")
            for x in Yseg(None): a.e(x)
            if not A: a.e("s_barrier")
            a.e("s_setpc_b64 %s" % sp(sRET))
            a.lab("L_X1%s" % role)
    assert not (Opt.hlate and Opt.nx)
    hl = {28: (27, 23), 29: (24, 25), 30: (26,)} if Opt.hlate else {}
    vm = list(a.vm); need = [63] * 8
    for n in range(12, 32):
        p = n % 4; q = p + (4 if n >= 28 else 0)
        tags = ["wd%d" % (n - 11), "h%d" % (n - 12)]
        if (p % 2 == 1) == A: tags.append("kv%d" % ((n + (1 if A else 2)) // 2))
        idx = [i for i, t in enumerate(vm) if t in tags]
        if idx: need[q] = min(need[q], len(vm) - 1 - max(idx))
        vm.append("wd%d" % (n - 9))
        vm.append("h%d" % (n - 9))
        if (p % 2 == 1) == A and n < 28: vm.append("kv%d" % ((n + (5 if A else 6)) // 2))
        vm += ["hx"] * len(hl.get(n, ()))
    a.lab("L_loop%s" % role)
    for q in range(8):
        p = q % 4; fin = q >= 4
        kv = (p % 2 == 1) == A and not fin
        if q == 0 and Opt.diag and Opt.kdiag == 2:
            a.e("s_cmp_lg_u32 s%d, 3" % sCNT)
            a.e("s_cbranch_scc1 L_nst%s" % role)
            astamp(a, 8)
            a.lab("L_nst%s" % role)
        a.e("s_waitcnt vmcnt(%d)" % need[q])
        for i, r in enumerate(kv_reads(p * 4096, vKVB)):
            if not (q == 7 and i == 1): a.e(r)
        if q <= 8 - Opt.nd:
            for r in wd_reads(vWF, vWDA, p * 8192): a.e(r)
        if fin and p < Opt.nx:
            for r in wd_reads(vFR + 16, vWDA, (4 + p) * 8192): a.e(r)
        if q == 7:
            for r in wd_reads(vFR, vWDA, (4 + Opt.nx) * 8192): a.e(r)
        a.e("s_add_u32 m0, s%d, 0x%x" % (sWK, L_WD + ((p + 3) % 4) * 8192))
        a.e("s_and_b32 s%d, s%d, 0x7fff" % (sA, sKVOFF))
        a.e("buffer_load_dwordx4 %s, %s, s%d offen lds" % (v(vWDV), srd(SWD), sWDOFF))
        a.e("s_add_u32 s%d, s%d, 0x%x" % (sWDOFF, sWDOFF, 0x2000 if p & 1 else 0x6000))
        a.e("buffer_load_dwordx4 %s, %s, %s, s%d offen sc1" % (v(vKF + 4 if q == 7 and Opt.nd == 2 else vH + 4 * ((p + 3) % 4), 4), v(vL16), srd(SWS), sHOFF))
        if kv: a.e("s_add_u32 m0, s%d, 0x%x" % (sA, L_KV))
        a.e("s_add_u32 s%d, s%d, 0x400" % (sHOFF, sHOFF))
        if kv:
            a.e("buffer_load_dwordx4 %s, %s, s%d offen sc1 lds" % (v(vL16), srd(SKV), sKVOFF))
            a.e("s_add_u32 s%d, s%d, 0x2000" % (sKVOFF, sKVOFF))
        for sg in (hl.get(24 + q, ()) if fin else ()):
            a.e("s_add_u32 s%d, s%d, 0x%x" % (sA, sHOFF, (sg - (16 + q)) * 1024))
            a.e("buffer_load_dwordx4 %s, %s, %s, s%d offen sc1" % (v(vHX if sg == 27 else vH + 4 * (sg - 19), 4), v(vL16), srd(SWS), sA))
        if q == 3:
            a.e("s_sub_u32 s%d, s%d, 1" % (sCNT, sCNT))
            a.e("s_cmp_lg_u32 s%d, 0" % sCNT)
        a.e("s_waitcnt lgkmcnt(0)")
        if A: a.e("s_barrier")
        for x in Yseg(p if q < 8 - Opt.nd else None, toggle=(q == 3), extra=(fin and p < Opt.nx), last=(q == 7)): a.e(x)
        if not A and q < 7: a.e("s_barrier")
        if q == 3: a.e("s_cbranch_scc1 L_loop%s" % role)
    a.e("s_nop 1")

def transition(a, role):
    A = role == "A"
    if A:
        a.vm = []
        a.lab("L_trA")
    else:
        a.lab("L_join")
        a.e("s_cmp_eq_u32 s%d, 0" % sHI)
        a.e("s_cbranch_scc1 L_trA")
        a.vmjoin = list(a.vm)
    def qfin():
        for i in range(4): a.e("v_cvt_pk_bf16_f32 %s, %s, %s" % (v(vQ + i), v(vAQ + 2 * i), v(vAQ + 2 * i + 1)))
        a.e("v_add_u32 %s, 0x%x, %s" % (v(vWOA), L_WO, v(vWDA)))
        a.e("v_permlane16_swap_b32 %s, %s" % (v(vQ), v(vQ + 2)))
        a.e("v_permlane16_swap_b32 %s, %s" % (v(vQ + 1), v(vQ + 3)))
    pre0 = None
    if A:
        a.e("s_setprio 1")
        a.e("s_cmp_ge_u32 s%d, 14" % sM)
        a.e("s_cbranch_scc1 L_nogA0")
        put(a, a.kvA[:1] + a.kvA[-1:])
        a.l.append(".p2align 3")
        for ti in range(Opt.gsc): gelu_tile(a, ti, True)
        a.lab("L_nogA0")
        qfin()
        a.waitvm(["k0", "kv0", "kv1"])
        a.e("s_setprio 0")
        a.e(mfma(vS, vK0, vQ, None))
        a.e("s_barrier")
        put(a, a.kvA[1:-1])
        def pre0():
            a.e("s_cmp_lt_u32 s%d, 14" % sM)
            a.e("s_cbranch_scc1 L_gA1")
            a.e("s_waitcnt vmcnt(0)")
            a.e("s_branch L_nogA1")
            a.l.append(".p2align 3")
            a.lab("L_gA1")
            for ti in range(Opt.gsc, 4): gelu_tile(a, ti)
            a.lab("L_nogA1")
            a.e("s_setprio 2")
    else:
        a.waitvm(["k0", "kv0", "kv1"])
        a.e("s_setprio 1")
        if Opt.hpub == 3:
            a.e("s_cmp_ge_u32 s%d, 14" % sM)
            a.l.append(".p2align 3")
            a.e("s_barrier")
            a.e("s_cbranch_scc1 L_nogB")
        else:
            a.e("s_barrier")
            for u in (2, 3):
                a.vmop("s_add_u32 m0, s%d, 0x%x\ns_add_u32 s%d, s%d, 0x%x\nbuffer_load_dwordx4 %s, %s, s%d offen sc1 lds"
                       % (sWK, L_KV + u * 8192, sA, sWK, u * 8192, v(vL16), srd(SKV), sA), "kv%d" % u)
            a.e("s_cmp_lt_u32 s%d, 14" % sM)
            a.e("s_cbranch_scc1 L_gB")
            a.e("s_waitcnt vmcnt(0)")
            a.e("s_branch L_nogB")
            a.l.append(".p2align 3")
            a.lab("L_gB")
        for ti in range(4): gelu_tile(a, ti)
        a.lab("L_nogB")
        qfin()
        a.e("s_nop 1")
        a.e(mfma(vS, vK0, vQ, None))
        a.stamp(5)
    attention(a, role, pre0)
    if A:
        a.stamp(6); astamp(a, 9); tstamp(a, 2)
        if Opt.diag and Opt.kdiag == 2: a.e("s_waitcnt lgkmcnt(0)")
        a.e(smfmac(vO, vV1L, vS + 24))
        a.e("s_setprio 0")
        a.e("s_cmp_eq_u32 s%d, 0" % sHI)
        a.e("s_nop 9")
        normalise(a, False)
        a.lab("L_fbretA")
        a.e("buffer_store_dwordx4 %s, %s, %s, s%d offen sc1" % (v(vPK, 4), v(vL16), srd(SWS), sOST))
        tstamp(a, 3)
        a.e("s_waitcnt vmcnt(1)")
        tstamp(a, 4)
        a.e("s_barrier")
        a.fetch(a, False)
        a.e("s_branch L_tl2")

def normalise(a, packed):
    t = vT0
    a.e("v_rcp_f32 %s, %s" % (v(t + 2), v(vO + 8)))
    a.e("s_nop 0")
    a.e("v_mul_f32_e64 %s, %s, %s" % (v(t + 2), v(t + 2), v(vGP)))
    if packed:
        for i in range(4): a.e("v_pk_mul_f32 %s, %s, %s op_sel_hi:[1,0]" % (v(vO + 2 * i, 2), v(vO + 2 * i, 2), v(t + 2, 2)))
        for i in range(4):
            a.e("v_pk_fma_f32 %s, %s, 0, %s op_sel_hi:[1,0,%d]" % (v(t, 2), v(vO + 2 * i, 2), v(t, 2) if i else v(vO + 8, 2), 1 if i else 0))
            a.e("v_cvt_pk_bf16_f32 %s, %s, %s" % (v(vPK + i), v(vO + 2 * i), v(vO + 2 * i + 1)))
        a.e("v_fmac_f32 %s, 0, %s" % (v(t), v(t + 1)))
    else:
        t = vO + 8
        for i in range(8): a.e("v_mul_f32 %s, %s, %s" % (v(vO + i), v(vT0 + 2), v(vO + i)))
        for i in range(4):
            a.e("v_fmac_f32 %s, 0, %s" % (v(t), v(vO + 2 * i)))
            a.e("v_cvt_pk_bf16_f32 %s, %s, %s" % (v(vPK + i), v(vO + 2 * i), v(vO + 2 * i + 1)))
            a.e("v_fmac_f32 %s, 0, %s" % (v(t), v(vO + 2 * i + 1)))
    a.e("v_subrev_u32 %s, s%d, %s" % (v(t), sLO_, v(t)))
    a.e("v_cmp_lt_u32 vcc, s%d, %s" % (sRNG, v(t)))
    a.e("s_branch L_fb" if Opt.force_fb else "s_cbranch_vccnz L_fb")

def tail(a):
    a.lab("L_tail")
    a.stamp(6)
    astamp(a, 9)
    if Opt.diag and Opt.kdiag == 2: a.e("s_waitcnt lgkmcnt(0)")
    tstamp(a, 2)
    a.e(smfmac(vO, vV1L, vS + 24))
    wf = [vFR, vFR + 8, vFR + 16]
    HORD = hord()
    def oload(j):
        return "buffer_load_dwordx4 %s, %s, %s, s%d offen offset:%d %s" % (
            v(vS + 4 * j, 4), v(vL16), srd(SWS), sOLD if HORD[j] < 4 else sOLD2, (HORD[j] % 4) * 1024, Opt.old_pol)
    a.oload = oload
    a.e("s_cmp_eq_u32 s%d, 0" % sHI)
    a.e("s_nop 10")
    a.l.append(".p2align 3")
    normalise(a, True)
    a.lab("L_fbret")
    a.e("buffer_store_dwordx4 %s, %s, %s, s%d offen sc1" % (v(vPK, 4), v(vL16), srd(SWS), sOST))
    tstamp(a, 3)
    aw = [vAW0, vWOA + 1, vWOA + 2, vWOA + 3]
    ar = [vAR0, vFLA]
    wo = WOF
    def fetch(o, scale):
        for j in range(8):
            o.e(oload(j))
            if j >= 5:
                for r in wd_reads(wo[j], vWOA, (7 - j) * 8192): o.e(r)
            if scale and j >= 4:
                for i in range(4 * j - 16, 4 * j - 12): o.e("v_mul_f32 %s, %s, %s" % (v(vD + i), v(vGC), v(vD + i)))
    def addrs(a):
        a.e("v_sub_f32 %s, 1.0, %s" % (v(vGC), v(vGC)))
        for j in range(1, 4): a.e("v_xor_b32 %s, %d, %s" % (v(aw[j]), 32 * j, v(aw[0])))
        a.e("v_xor_b32 %s, 16, %s" % (v(ar[1]), v(ar[0])))
        a.e("s_mov_b32 s%d, 0x2000" % sB)
    ol = Asm(); a.ool2 = ol.l
    a.e("s_waitcnt vmcnt(1)")
    tstamp(a, 4)
    a.e("s_barrier")
    a.lab("L_tl2")
    tstamp(a, 5)
    a.fetch = fetch
    fl = collect(addrs)
    slot = [4, 5, 6, 7, 0, 1, 2][Opt.nx:] + ([3] if Opt.nd == 2 else [])
    hreg = lambda sl: vKF + 4 if sl == 2 and Opt.nd == 2 else vH + 4 * sl
    inreg = [(vWX, vHX)] + ([(vWF, vH + 4 * (4 - Opt.nd))] if Opt.nd else [])
    rds = sum((wd_reads(wf[i % 3], vWDA, slot[i] * 8192) for i in range(len(slot))), [])
    done = 4
    for i in range(-len(inreg), len(slot)):
        for c in range(2):
            if i >= 1: a.e("s_waitcnt lgkmcnt(%d)" % (done - (4 * i + 2 * c + 2)))
            a.e(mfma(vD + 16 * c, inreg[i][0] + 4 * c, inreg[i][1], vD + 16 * c) if i < 0 else
                mfma(vD + 16 * c, wf[i % 3] + 4 * c, hreg(slot[i]), vD + 16 * c))
            if i < -1: continue
            if done < len(rds):
                for r in rds[done:done + 2]: a.e(r)
                done += 2
            else:
                put(a, fl[:2]); fl = fl[2:]
    assert not fl
    tstamp(a, 6)
    a.e("s_cbranch_scc0 L_tl3")
    a.l.append(".p2align 3")
    a.e("s_nop 7")
    a.e("s_nop 0")
    for i in range(16): a.e("v_pk_mul_f32 %s, %s, %s op_sel:[0,1] op_sel_hi:[1,1]" % (v(vD + 2 * i, 2), v(vD + 2 * i, 2), v(vGP, 2)))
    tstamp(a, 7)
    a.lab("L_tl4")
    tstamp(a, 8)
    ol.lab("L_tl3")
    ol.e("s_setprio 0")
    fetch(ol, False)
    tstamp(ol, 7)
    for i in range(32): ol.e("v_mul_f32 %s, %s, %s" % (v(vD + i), v(vGC), v(vD + i)))
    ol.e("s_waitcnt lgkmcnt(0)")
    ol.e("s_branch L_tl4")
    a.stamp(7)
    def check(j):
        o = vS + 4 * j
        return ["s_waitcnt vmcnt(%d)" % (7 - j), "v_max3_u32 v2, %s, %s, %s" % (v(o), v(o + 1), v(o + 2)),
                "v_max_u32 v2, v2, %s" % v(o + 3), "v_cmp_eq_u32 vcc, -1, v2"]
    a.check = check
    for x in check(0): a.e(x)
    for j in range(10):
        if j < 8:
            a.e("s_cbranch_vccnz L_ore%d" % j)
            a.lab("L_ook%d" % j)
            a.e(mfma(vD, wo[j], vS + 4 * j, vD))
        if j >= 2 and Opt.cfirst: a.e(mfma(vD + 16, wo[j - 2] + 4, vS + 4 * (j - 2), vD + 16))
        if j < 7:
            for x in check(j + 1): a.e(x)
        if j >= 2 and not Opt.cfirst: a.e(mfma(vD + 16, wo[j - 2] + 4, vS + 4 * (j - 2), vD + 16))
        if j in (7, 8): a.e("s_nop 4")
    wr = lambda c, j: "ds_write_b128 %s, %s offset:%d" % (v(aw[j]), v(vD + 16 * c + 4 * j, 4), 128 * c)
    a.stamp(8)
    tstamp(a, 9)
    for j in range(4): a.e(wr(0, j))
    a.e("s_nop 7")
    for j in range(4): a.e(wr(1, j))
    a.e("s_waitcnt lgkmcnt(0)")
    a.e("s_barrier")
    for p in range(4):
        for h in range(2): a.e(rd128(vS + 8 * p + 4 * h, ar[h], p * 8192))
    for p in range(1, 4):
        a.e("s_waitcnt lgkmcnt(%d)" % (6 - 2 * p))
        for i in range(4): a.e("v_pk_add_f32 %s, %s, %s" % (v(vS + 2 * i, 2), v(vS + 2 * i, 2), v(vS + 8 * p + 2 * i, 2)))
    for i in range(4): a.e("v_cvt_pk_bf16_f32 %s, %s, %s" % (v(vP + i), v(vS + 2 * i), v(vS + 2 * i + 1)))
    a.e("buffer_store_dwordx4 %s, %s, %s, s%d offen %s" % (v(vP, 4), v(vOUTA), srd(SOUT), sOUTO, Opt.out_pol))
    if Opt.probe >= 0:
        a.e("s_waitcnt vmcnt(0)")
        a.stamp(9)
        if Opt.probe != 9:
            a.e("s_cmp_ge_u32 s%d, 14" % sM)
            a.e("s_cbranch_scc%d L_end" % (0 if Opt.probe_l else 1))
        a.e("s_sub_u32 s%d, s%d, s%d" % (sA, sSTAMP + 4, sSTAMP))
        a.e("s_mul_i32 s%d, s%d, %d" % (sA, sA, Opt.probe_mul - 1))
        if Opt.pcyc >= 0:
            a.e("s_sub_u32 s%d, s%d, s%d" % (sA, sSTAMP + 8, sSTAMP + 6))
            a.e("s_mov_b32 s%d, s%d" % (sSTAMP + 4, sSTAMP))
        a.e("s_min_u32 s%d, s%d, 100000" % (sA, sA))
        a.e("s_add_u32 s%d, s%d, 3800" % (sA, sA))
        if Opt.probe_r >= 0:
            a.e("s_cmp_eq_u32 s%d, 0x2000" % sB)
            a.e("s_cbranch_scc%d L_end" % Opt.probe_r)
        if Opt.probe_w >= 0:
            a.e("s_cmp_lg_u32 s%d, %d" % (sHI, Opt.probe_w))
            a.e("s_cbranch_scc1 L_end")
        if Opt.probe_x >= 0:
            a.e("s_and_b32 s0, s2, 7")
            a.e("s_cmp_lg_u32 s0, %d" % Opt.probe_x)
            a.e("s_cbranch_scc1 L_end")
        a.lab("L_probe")
        a.e("s_memrealtime s[0:1]")
        a.e("s_waitcnt lgkmcnt(0)")
        a.e("s_sub_u32 s0, s0, s%d" % (sSTAMP + 4))
        a.e("s_cmp_lt_u32 s0, s%d" % sA)
        a.e("s_cbranch_scc1 L_probe")
    if Opt.pin == 9:
        a.e("s_waitcnt vmcnt(0)")
        a.stamp(9)
    if Opt.diag in (1, 2):
        a.e("s_waitcnt vmcnt(0)")
        a.stamp(9)
        a.e("s_mov_b32 s%d, s%d" % (sSTAMP + 3, sSTAMP))
        a.e("s_mov_b32 s%d, s%d" % (sSTAMP, sB))
        a.e("s_getreg_b32 s%d, hwreg(HW_REG_XCC_ID)" % (sSTAMP + 1))
        for i in range(20): a.e("v_mov_b32 %s, s%d" % (v(vS + i), sSTAMP + i))
        a.e("s_lshl_b32 s%d, s2, 3" % sA)
        a.e("s_add_u32 s%d, s%d, s%d" % (sA, sA, sW))
        a.e("s_lshl_b32 s%d, s%d, 7" % (sA, sA))
        a.e("s_add_u32 s%d, s%d, 0x%x" % (sA, sA, WS_STAMP))
        a.e("s_mov_b64 exec, 1")
        for i in range(5): a.e("buffer_store_dwordx4 %s, off, %s, s%d offset:%d" % (v(vS + 4 * i, 4), srd(SWS), sA, 16 * i))
    a.lab("L_end")
    a.e("s_endpgm")
    a.l += a.ool2
    for j in range(8):
        a.lab("L_ore%d" % j)
        a.e("s_sub_u32 s%d, s%d, 1" % (sB, sB))
        a.e("s_cbranch_scc1 L_ogive%d" % j)
        if Opt.rwait: a.e("s_waitcnt vmcnt(0)")
        if Opt.rwait > 1: a.e("s_sleep %d" % Opt.rwait)
        for i in range(j, 8): a.e(a.oload(i))
        for x in a.check(j): a.e(x)
        a.e("s_cbranch_vccnz L_ore%d" % j)
        a.e("s_branch L_ook%d" % j)
        a.lab("L_ogive%d" % j)
        a.e("s_mov_b32 s%d, 0" % sB)
        a.e("s_branch L_ook%d" % j)

def fallback(a):
    a.lab("L_fb")
    m = vT0
    a.e("v_mov_b32 %s, 0xff800000" % v(m))
    a.e("s_mov_b32 s%d, 0" % sA)
    a.lab("L_fb1")
    a.e("buffer_load_dwordx4 %s, %s, %s, s%d offen sc1" % (v(vKF, 4), v(vL16), srd(SKV), sA))
    a.e("s_waitcnt vmcnt(0)")
    a.e(mfma(vS, vKF, vQ, None))
    a.e("s_add_u32 s%d, s%d, 2048" % (sA, sA))
    a.e("s_nop 11")
    for i in range(8): a.e("v_max3_f32 %s, %s, %s, %s" % (v(m), v(m), v(vS + 2 * i), v(vS + 2 * i + 1)))
    a.e("s_cmp_lt_u32 s%d, 0x20000" % sA)
    a.e("s_cbranch_scc1 L_fb1")
    a.e("v_mov_b32 %s, %s" % (v(m + 1), v(m)))
    a.e("s_nop 1")
    a.e("v_permlane32_swap_b32 %s, %s" % (v(m), v(m + 1)))
    a.e("s_nop 1")
    a.e("v_max_f32 %s, %s, %s" % (v(m), v(m), v(m + 1)))
    for i in range(16): a.e("v_sub_f32 %s, 0, %s" % (v(vS + 16 + i), v(m)))
    for i in range(16): a.e("v_mov_b32 %s, 0" % v(vO + i))
    a.e("s_mov_b32 s%d, 0" % sA)
    a.lab("L_fb2")
    a.e("s_add_u32 s%d, s%d, 0x%x" % (sB, sA, 63 * 2048))
    a.e("s_and_b32 s%d, s%d, 0x1ffff" % (sB, sB))
    a.e("buffer_load_dwordx4 %s, %s, %s, s%d offen sc1" % (v(vKF, 4), v(vL16), srd(SKV), sB))
    a.e("s_add_u32 s%d, s%d, 2048" % (sB, sA))
    a.e("s_and_b32 s%d, s%d, 0x1ffff" % (sB, sB))
    a.e("s_mov_b64 exec, %s" % sp(sVM))
    a.e("buffer_load_dwordx4 %s, %s, %s, s%d offen offset:1024 sc1" % (v(vV, 4), v(vL16), srd(SKV), sA))
    a.e("buffer_load_dwordx4 %s, %s, %s, s%d offen offset:1280 sc1" % (v(vV + 4, 4), v(vL16), srd(SKV), sB))
    a.e("s_mov_b64 exec, -1")
    a.e("s_waitcnt vmcnt(0)")
    a.e(mfma(vS, vKF, vQ, vS + 16))
    a.e("s_add_u32 s%d, s%d, 2048" % (sA, sA))
    a.e("s_nop 11")
    for i in range(16): a.e("v_exp_f32 %s, %s" % (v(vS + i), v(vS + i)))
    a.e("s_nop 2")
    a.e(smfmac(vO, vV, vS))
    a.e(smfmac(vO, vV + 4, vS + 8))
    a.e("s_cmp_lt_u32 s%d, 0x20000" % sA)
    a.e("s_cbranch_scc1 L_fb2")
    a.e("s_nop 11")
    a.e("v_rcp_f32 %s, %s" % (v(vT0 + 2), v(vO + 8)))
    a.e("s_cmp_eq_u32 s%d, 0" % sHI)
    a.e("v_mul_f32 %s, %s, %s" % (v(vT0 + 2), v(vT0 + 2), v(vGP)))
    for i in range(8): a.e("v_mul_f32 %s, %s, %s" % (v(vO + i), v(vT0 + 2), v(vO + i)))
    for i in range(4): a.e("v_cvt_pk_bf16_f32 %s, %s, %s" % (v(vPK + i), v(vO + 2 * i), v(vO + 2 * i + 1)))
    for i in range(4): a.e("v_min_u32 %s, -2, %s" % (v(vPK + i), v(vPK + i)))
    a.e("s_cbranch_scc1 L_fbretA")
    a.e("s_branch L_fbret")

def build():
    a = Asm()
    prologue(a)
    phase1_F(a)
    transition(a, "B")
    tail(a)
    a.l += a.ool
    transition(a, "A")
    phase1_L(a)
    fallback(a)
    a.lab("L_codeend")
    for i, x in enumerate(a.l):
        if " sc1" in x and "sc0" not in x and ((Opt.allsc & 1 and "buffer_store" in x) or (Opt.allsc & 2 and "buffer_load" in x)):
            a.l[i] = x.replace(" sc1", " sc0 sc1")
    il = a.l.index("L_light:")
    for i, x in enumerate(a.l):
        if x.endswith(" lds") and "sc1" not in x and " nt" not in x:
            if (Opt.ntx & 4 and (srd(SWD) in x or srd(SWO) in x)) or (Opt.ntx & 8 and i > il):
                a.l[i] = x[:-4] + " nt lds"
    head = open("cdna_kernels/%s.s.ref" % NAME).read().split("\n")
    hdr = [l for l in head if l.startswith(";") and "@launch" not in l and "Override" not in l and "grid=" not in l]
    out = hdr + ["; @launch grid=(256,1,1) block=(512,1,1) lds=%d" % LDS_BYTES,
                 '.amdgcn_target "amdgcn-amd-amdhsa--gfx950"', ".text", ".globl %s_kernel" % NAME, ".p2align 8",
                 ".type %s_kernel,@function" % NAME,
                 ".set CODE_PF_MAX, L_codeend - L_nopf - 4" if Opt.code_pf else "",
                 "%s_kernel:" % NAME]
    out += ["; " + x for x in """One persistent launch, one workgroup per CU (generated by a script), 8 waves = two quartets that alternate on each SIMD.
Stage 1: 14 of every 16 workgroups compute gelu(x Wg) * (x Wu) for 128 tokens x 128 columns plus Q for two heads;
         the other two compute K, V and the mixing gate, publish them (counter in d_debug) and then their own Q.
Stage 2: attention for 128 tokens x 2 heads over all keys, S^T = K Q^T, exp2 in place, P V through sparse MFMAs that
         read the high halves of the fp32 probabilities; a row of ones in the V operand gives the row sums.
         The stand-in maximum is 0: it is accepted only if the row sum lies in [2^-16, 2^100] and every accumulator is
         finite, otherwise the wave redoes its rows with the true maximum (L_fb).
         The down projection of a 64 x 64 output tile runs in the same loop once the producers' flags are seen.
Stage 3: attention outputs are handed over through d_ws (cleared to a mark earlier in this launch), projected,
         mixed with the FFN branch, reduced through LDS and stored.""".split("\n")]
    out += a.l
    out += ['.section .rodata,"a"', ".p2align 6", ".amdhsa_kernel %s_kernel" % NAME,
            "  .amdhsa_next_free_vgpr %d" % NV, "  .amdhsa_next_free_sgpr 102", "  .amdhsa_accum_offset 256",
            "  .amdhsa_group_segment_fixed_size 0", "  .amdhsa_kernarg_size 104", "  .amdhsa_user_sgpr_count 2",
            "  .amdhsa_user_sgpr_kernarg_segment_ptr 1", "  .amdhsa_system_sgpr_workgroup_id_x 1", ".end_amdhsa_kernel", ""]
    return "\n".join(out)

if __name__ == "__main__":
    path = sys.argv[1]
    for kv in sys.argv[2:]:
        k, val = kv.split("=")
        cur = getattr(Opt, k)
        setattr(Opt, k, val if isinstance(cur, str) else type(cur)(int(val)))
    open(path, "w").write(build())
```

```python
import sys, struct, math

NAME = "gated_mix__grouped_kv_mqa__geglu_ffn__prompt"

class Opt:
    diag = 0
    mapmode = 1
    force_fb = False
    allsc = 0
    out_pol = "sc0 sc1"
    code_pf = True
    xrot = 0
    pregap = 0
    hlate = 1
    hpub = 3
    rwait = 1
    aearly = 0
    bidle = 1
    old_pol = "sc1"
    ypos0 = "36g"
    ypos1 = "36bg"
    ypos2 = "36cg9"
    nd = 1
    nx = 0
    tpos = 1
    cfirst = 0
    tch = 12
    stch = 0
    spos = 1
    tlb = 14
    olate = 1
    hrot = 0
    tbar = 0
    hord = 1
    cmap = 1
    kqx = 0
    oearly = 8
    conc = 1
    ghx = 1
    qa = "077777"
    qb = "588888"
    npre = 8
    stagger = 1
    rper = 2
    dma1 = 17
    kprio = 0
    dma0 = 8
    npd = 4
    kdiag = 0
    fillpre = 0
    fillper = 5
    gsc = 2
    sched = 0
    xmask = 1
    ntx = 0
    touch = 2
    rotg = 0
    rotm = 0
    startbar = 1
    pvz = 1
    pin = -1
    pin_ns = 60000
    probe = -1
    probe_x = -1
    probe_mul = 10
    probe_w = -1
    probe_r = -1
    pcyc = -1
    prt = 0
    probe_l = 0

def f2u(x): return struct.unpack("<I", struct.pack("<f", x))[0]

WS_KV = 0
WS_G = 128 * 1024
WS_HFLAG = 192 * 1024
WS_OF = 1 << 20
WS_HF = 4 << 20
WS_STAMP = 12 << 20
WS_SIZE = 16 << 20
K1 = 1024
L_G, L_U, L_X, L_WQ = 0, 48 * K1, 96 * K1, 144 * K1
L_QX = 32 * K1
L_WD, L_WO, L_KV = 0, 64 * K1, 128 * K1
L_RED = 96 * K1
LL_X, LL_W, LL_GATE, LL_WQ = 0, 128 * K1, 144 * K1, 128 * K1
LDS_BYTES = 160 * K1

SX, SWG, SWU, SWQ, SWS, SWD, SWO, SOUT, SDBG, SWKV, SGATE, SKV = 4, 8, 12, 16, 20, 24, 28, 32, 36, 40, 44, 64
SWV = 72
sTMPP = 48
sW, sHI, sLO, sG, sM, sT, sCB = 50, 51, 52, 53, 54, 55, 56
sWK = 57
sWH = 58
sVM = 60
sRET = 62
sA, sB, sC, sD = 68, 69, 70, 71
sOFFW, sOFFQ, sCH, sXP = 72, 73, 74, 75
sHOFF, sWDOFF, sKVOFF, sHXO, sCNT = 72, 73, 74, 75, 77
sOUTO, sLO_, sRNG = 59, 81, 75
sOLD2 = 58
sOST, sOLD, sHST = 78, 79, 80
sHST2 = 3
sRX, sRW, sM0B = 40, 41, 42
sKQ = 76
sHP = sM
sSTAMP = 82

def srd(b): return "s[%d:%d]" % (b, b + 3)
def sp(b): return "s[%d:%d]" % (b, b + 1)
def v(b, n=1): return "v%d" % b if n == 1 else "v[%d:%d]" % (b, b + n - 1)

vL16 = 1
vT0, vT1, vT2, vT3 = 2, 3, 4, 5
vGP, vGC = 6, 7
vKVA = 8
vWDA = 9
vWDV = 10
vONE = 11
vZERO = 12
vFLA = 13
vPOLL = 14
vGA = 15
vQ = 16
vK0 = 20
vV1L = 24
vIDX = 28
vAW0, vAR0, vOUTA = 30, 31, 12
vKVB = 29
vP = 32
vV = 40
vO = 56
vD = 72
vACC = 104
vS = 104
vH = 136
vAQ = vP
vF1 = 168
vKF = 168
vWF = 176
vWX = 224
vHX = 232
vPK = 20
WOF = [32, 208, 216, 240, 248, 40, 48, 56]
vWOA = 236
vFR = 184
vLX = 224
vXA = 240
vWA = 244
vQA = 248
vDX, vDG, vDQ = 249, 250, 251
vC0 = 252
vTID = 255
vHA = 254
NV = 256

class Asm:
    def __init__(self):
        self.l = []
        self.vm = []
        self.nstamp = 0
    def e(self, s):
        for x in s.split("\n"):
            x = x.strip()
            if x: self.l.append("    " + x)
    def lab(self, s): self.l.append(s + ":")
    def vmop(self, s, tag):
        self.e(s); self.vm.append(tag)
    def vmn(self, tags):
        if isinstance(tags, str): tags = [tags]
        last = -1
        for i, t in enumerate(self.vm):
            if t in tags: last = i
        return None if last < 0 else len(self.vm) - 1 - last
    def waitvm(self, tags, lgkm=False):
        n = self.vmn(tags)
        if n is None:
            if lgkm: self.e("s_waitcnt lgkmcnt(0)")
            return
        assert n < 64
        self.e("s_waitcnt vmcnt(%d)%s" % (n, " lgkmcnt(0)" if lgkm else ""))
        self.vm = self.vm[len(self.vm) - n:] if n else []
    def wait0(self, lgkm=False):
        self.e("s_waitcnt vmcnt(0)%s" % (" lgkmcnt(0)" if lgkm else "")); self.vm = []
    def stamp(self, i, real=False):
        if Opt.probe == i:
            self.e("s_waitcnt lgkmcnt(0)")
            self.e("s_memrealtime %s" % sp(sSTAMP + 4))
            if Opt.pcyc >= 0: self.e("%s %s" % ("s_memrealtime" if Opt.prt else "s_memtime", sp(sSTAMP + 8)))
            self.e("s_waitcnt lgkmcnt(0)")
        if Opt.pin == i:
            self.nstamp += 1
            self.e("s_waitcnt lgkmcnt(0)")
            self.e("s_cselect_b32 s%d, 1, 0" % (sSTAMP + 5))
            self.lab("L_pin%d" % self.nstamp)
            self.e("s_memrealtime s[0:1]")
            self.e("s_waitcnt lgkmcnt(0)")
            self.e("s_sub_u32 s0, s0, s%d" % sSTAMP)
            self.e("s_cmp_lt_u32 s0, %d" % (Opt.pin_ns // 10))
            self.e("s_cbranch_scc1 L_pin%d" % self.nstamp)
            self.e("s_cmp_lg_u32 s%d, 0" % (sSTAMP + 5))
        if Opt.diag and not Opt.kdiag and (Opt.diag == 1 or i == 9):
            self.e("s_waitcnt lgkmcnt(0)")
            self.e("s_memtime %s" % sp(sSTAMP + 2 * i))
            self.e("s_memrealtime %s" % sp(sRET))
            self.e("s_waitcnt lgkmcnt(0)")
            self.e("s_mov_b32 s%d, s%d" % (sSTAMP + 2 * i + 1, sRET))

def astamp(a, i):
    if Opt.diag and Opt.kdiag == 2: a.e("s_memtime %s" % sp(sSTAMP + 2 * i))

def tstamp(a, i):
    if Opt.diag and Opt.kdiag == 3: a.e("s_memtime %s" % sp(sSTAMP + 2 * i))

def kstamp(a, i):
    if Opt.probe == 18 + i: a.e("s_memrealtime %s" % sp(sSTAMP + 4))
    if Opt.diag and Opt.kdiag == 1: a.e("s_memtime %s" % sp(sSTAMP + 2 * i))

def mfma(d, a, b, c):
    return "v_mfma_f32_32x32x16_bf16 %s, %s, %s, %s" % (v(d, 16), v(a, 4), v(b, 4), "0" if c is None else v(c, 16))
def smfmac(d, a, b):
    return "v_smfmac_f32_32x32x32_bf16 %s, %s, %s, %s" % (v(d, 16), v(a, 4), v(b, 8), v(vIDX))
def mfma16(d, a, b, c):
    return "v_mfma_f32_16x16x32_bf16 %s, %s, %s, %s" % (v(d, 4), v(a, 4), v(b, 4), "0" if c is None else v(c, 4))
def rd128(d, a, off):
    assert 0 <= off < 65536
    return "ds_read_b128 %s, %s offset:%d" % (v(d, 4), v(a), off)
def rdtr(d, a, off):
    assert 0 <= off < 65536
    return "ds_read_b64_tr_b16 %s, %s offset:%d" % (v(d, 2), v(a), off)

def interleave(mf, fill, per=2):
    out = []
    fill = list(fill)
    for i, m in enumerate(mf):
        out.append(m)
        if i < len(mf) - 1:
            out += fill[:per]; fill = fill[per:]
    return out + fill

def srd_words(a, regs):
    sizes = {SX: 2048 * 1024, SWG: 512 * 3584, SWU: 512 * 3584, SWQ: 512 * 1024, SWS: WS_SIZE, SWKV: 16384, SWV: 16384,
             SGATE: 1024, SWD: 1792 * 1024, SWO: 512 * 1024, SOUT: 2048 * 1024, SDBG: 256, SKV: 128 * 1024}
    for reg in regs:
        a.e("s_mov_b32 s%d, 0x%x" % (reg + 2, sizes[reg]))
        a.e("s_mov_b32 s%d, 0x20000" % (reg + 3))

def ptr_loads(a, lst):
    for reg, off in lst: a.e("s_load_dwordx2 %s, s[0:1], %d" % (sp(reg), off))

def prologue(a):
    if Opt.diag or Opt.pin >= 0 or Opt.probe >= 0:
        a.e("s_memrealtime %s" % sp(sSTAMP))
        if Opt.diag in (1, 2): a.e("s_memtime %s" % sp(sSTAMP + 2))
    ptr_loads(a, ((SX, 0), (SWG, 48), (SWU, 56), (SWQ, 8)))
    if Opt.probe == 1: a.stamp(1)
    a.e("v_lshrrev_b32 v2, 6, v0")
    if Opt.code_pf:
        a.e("s_getpc_b64 %s" % sp(sRET))
        a.lab("L_nopf")
        a.e("s_and_b32 s%d, s2, -8" % sA)
        a.e("v_add_lshl_u32 v4, v2, s%d, 7" % sA)
        a.e("v_mov_b32 v5, 0")
        a.e("v_min_u32 v4, CODE_PF_MAX, v4")
        a.e("v_lshl_add_u64 v[4:5], v[4:5], 0, %s" % sp(sRET))
        a.e("global_load_dword %s, v[4:5], off" % v(vPOLL))
    a.e("s_load_dwordx8 s[%d:%d], s[0:1], 64" % (SOUT, SOUT + 7))
    a.e("v_readfirstlane_b32 s%d, v2" % sW)
    ptr_loads(a, ((SWS, 96),) if Opt.diag or Opt.probe >= 0 else ((SWS, 96), (SWO, 32)))
    a.e("s_cmpk_ge_u32 s2, 256")
    a.e("s_cbranch_scc1 L_end")
    a.e("s_and_b32 s%d, s2, 1" % sD)
    a.e("s_bfe_u32 s%d, s2, 0x30003" % sA)
    a.e("s_lshl3_add_u32 s%d, s%d, s%d" % (sG, sD, sA))
    a.e("s_bfe_u32 s%d, s2, 0x20001" % sA)
    a.e("s_lshr_b32 s%d, s2, 6" % sB)
    a.e("s_lshl2_add_u32 s%d, s%d, s%d" % (sM, sA, sB))
    a.e("s_lshl_b32 s%d, s%d, 10" % (sWK, sW))
    a.e("s_cmp_ge_u32 s%d, 14" % sM)
    a.e("s_cbranch_scc1 L_light")

def xvoff(a, t):
    a.e("v_lshrrev_b32 v2, 4, %s" % v(t))
    a.e("v_xor_b32 v2, v2, %s" % v(t))
    a.e("v_and_b32 v2, 7, v2")
    a.e("s_lshl_b32 s%d, s%d, 17" % (sA, sG))
    a.e("v_lshl_add_u32 v2, v2, 4, s%d" % sA)
    a.e("v_lshrrev_b32 v3, 3, %s" % v(t))
    a.e("v_lshl_add_u32 %s, v3, 10, v2" % v(vDX))

def setup_ids(a):
    a.e("s_mov_b64 %s, %s" % (sp(SKV), sp(SWS)))
    a.e("s_mov_b64 %s, %s" % (sp(SWD), sp(SOUT)))
    a.e("s_mov_b64 %s, %s" % (sp(SOUT), sp(SOUT + 4)))
    a.e("s_mov_b64 %s, %s" % (sp(SDBG), sp(SOUT + 6)))
    a.e("v_and_b32 v0, 63, v0")
    a.e("v_lshlrev_b32 %s, 4, v0" % v(vL16))
    a.e("s_andn2_b32 s%d, 1, s2" % sA)
    a.e("s_bfe_u32 s%d, s2, 0x20001" % sB)
    a.e("s_lshl2_add_u32 s%d, s%d, s%d" % (sA, sA, sB))
    a.e("s_bfe_u32 s%d, s2, 0x20003" % sB)
    a.e("s_lshl2_add_u32 s%d, s%d, s%d" % (sT, sA, sB))
    a.e("s_lshr_b32 s%d, s2, 5" % sCB)

def setup_rd(a):
    a.e("s_lshr_b32 s%d, s%d, 2" % (sHI, sW))
    a.e("s_and_b32 s%d, s%d, 3" % (sLO, sW))
    a.e("v_and_b32 v2, 15, v0")
    a.e("v_lshrrev_b32 v3, 4, v0")
    a.e("v_bfe_u32 v4, v0, 1, 3")
    a.e("v_xor_b32 v4, v4, v3")
    a.e("v_lshlrev_b32 v4, 4, v4")
    a.e("v_lshl_add_u32 %s, v2, 7, v4" % v(vXA))
    a.e("v_bfe_u32 v2, v0, 2, 2")
    a.e("v_and_b32 v4, 3, v0")
    a.e("v_lshl_add_u32 %s, v3, 3, v2" % v(vQA))
    a.e("v_lshlrev_b32 %s, 6, %s" % (v(vQA), v(vQA)))
    a.e("v_xor_b32 v5, s%d, v3" % sHI)
    a.e("v_and_b32 v5, 1, v5")
    a.e("v_lshl_add_u32 %s, v5, 5, %s" % (v(vQA), v(vQA)))
    a.e("v_lshl_add_u32 %s, v4, 3, %s" % (v(vQA), v(vQA)))

def setup_oclr(a):
    srd_words(a, [SWS, SKV, SDBG])
    a.e("s_mov_b32 s%d, 0xffff" % sVM)
    a.e("s_mov_b32 s%d, 0xffff" % (sVM + 1))
    a.e("s_lshl_b32 s%d, s%d, 2" % (sA, sG))
    a.e("s_add_u32 s%d, s%d, s%d" % (sA, sA, sLO))
    a.e("s_lshl_b32 s%d, s%d, 5" % (sB, sA))
    a.e("s_lshl_b32 s%d, s%d, 1" % (sC, sHP))
    a.e("s_add_u32 s%d, s%d, s%d" % (sB, sB, sC))
    a.e("s_add_u32 s%d, s%d, s%d" % (sB, sB, sHI))
    a.e("s_lshl_b32 s%d, s%d, 10" % (sB, sB))
    a.e("s_add_u32 s%d, s%d, 0x%x" % (sOST, sB, WS_OF))
    for i in range(4): a.e("v_mov_b32 %s, -1" % v(vQ + i))
    a.vmop("buffer_store_dwordx4 %s, %s, %s, s%d offen sc1" % (v(vQ, 4), v(vL16), srd(SWS), sOST), "oclr")
    a.e("v_mov_b32 %s, 1" % v(vONE))
    a.e("v_mov_b32 %s, 0" % v(vZERO))
    a.e("v_and_b32 %s, 31, v0" % v(vGA))
    a.e("v_lshlrev_b32 %s, 2, %s" % (v(vGA), v(vGA)))

def collect(fn):
    t = Asm(); t.marks = {}
    def vmop(s_, tag):
        t.e(s_); t.marks[len(t.l) - 1] = tag
    t.vmop = vmop
    fn(t)
    return [(x, t.marks.get(i)) for i, x in enumerate(t.l)]
def put(a, items):
    for x, tag in items:
        if tag: a.vmop(x, tag)
        else: a.e(x)

def setup_ones(a):
    a.e("s_mov_b32 s%d, 0x110000" % sA)
    a.e("s_mov_b32 s%d, 0x110000" % sB)
    a.e("v_mov_b32 v3, 0x3f803f80")
    a.e("v_cndmask_b32 %s, 0, v3, %s" % (v(vV1L), sp(sA)))
    for i in range(1, 4): a.e("v_mov_b32 %s, %s" % (v(vV1L + i), v(vV1L)))
    for i in range(16): a.e("v_mov_b32 %s, %s" % (v(vV + i), v(vV1L)))

def setup_attn(a):
    srd_words(a, [SWD, SWO, SOUT])
    a.e("s_lshl_b32 s%d, s%d, 2" % (sA, sG))
    a.e("s_add_u32 s%d, s%d, s%d" % (sA, sA, sLO))
    a.e("s_mul_i32 s%d, s%d, 112" % (sB, sA))
    a.e("s_lshl_b32 s%d, s%d, 3" % (sC, sM))
    a.e("s_add_u32 s%d, s%d, s%d" % (sB, sB, sC))
    a.e("s_lshl_b32 s%d, s%d, 2" % (sC, sHI))
    a.e("s_add_u32 s%d, s%d, s%d" % (sB, sB, sC))
    a.e("s_and_b32 s%d, s%d, 1" % (sC, sLO))
    a.e("s_lshl_b32 s%d, s%d, 1" % (sC, sC))
    a.e("s_add_u32 s%d, s%d, s%d" % (sB, sB, sC))
    a.e("s_lshl_b32 s%d, s%d, 10" % (sB, sB))
    a.e("s_add_u32 s%d, s%d, 0x%x" % (sHST, sB, WS_HF))
    a.e("s_mul_i32 s%d, s%d, %d" % (sC, sC, 112 * 1024))
    a.e("s_sub_u32 s%d, %d, s%d" % (sC, 112 * 1024, sC))
    a.e("s_add_u32 s%d, s%d, s%d" % (sHST2, sHST, sC))
    a.e("v_bfe_u32 v2, v0, 2, 2")
    a.e("v_lshrrev_b32 v3, 5, v0")
    a.e("v_lshl_add_u32 v2, v3, 2, v2")
    a.e("v_lshlrev_b32 v2, 6, v2")
    a.e("v_bfe_u32 v3, v0, 4, 1")
    a.e("v_lshl_add_u32 v2, v3, 5, v2")
    a.e("v_and_b32 v3, 3, v0")
    a.e("v_lshl_add_u32 v2, v3, 3, v2")
    a.e("s_lshr_b32 s%d, s%d, 1" % (sA, sW))
    a.e("s_lshl_b32 s%d, s%d, 11" % (sA, sA))
    a.e("v_add_u32 %s, s%d, v2" % (v(vWDA), sA))
    a.e("v_add_u32 %s, 0x%x, %s" % (v(vKVA), L_KV, v(vL16)))
    a.e("v_add_u32 %s, 0x%x, %s" % (v(vKVB), L_KV + 0x4000, v(vL16)))
    a.e("v_bfe_u32 v2, v0, 2, 3")
    a.e("v_lshlrev_b32 v2, 10, v2")
    a.e("v_lshrrev_b32 v3, 5, v0")
    a.e("v_lshl_add_u32 v2, v3, 6, v2")
    a.e("v_and_b32 v3, 3, v0")
    a.e("v_lshl_add_u32 v2, v3, 4, v2")
    a.e("s_lshl_b32 s%d, s%d, 7" % (sB, sCB))
    a.e("v_add_u32 %s, s%d, v2" % (v(vWDV), sB))
    a.e("v_min_u32 v2, 13, v0")
    a.e("v_lshlrev_b32 v2, 7, v2")
    a.e("s_lshr_b32 s%d, s%d, 1" % (sA, sT))
    a.e("s_lshl_b32 s%d, s%d, 11" % (sA, sA))
    a.e("s_add_u32 s%d, s%d, 0x%x" % (sA, sA, WS_HFLAG))
    a.e("v_add_u32 %s, s%d, v2" % (v(vFLA), sA))
    a.e("s_lshl_b32 s%d, s%d, 1" % (sA, sT))
    a.e("s_and_b32 s%d, s%d, 1" % (sB, sW))
    a.e("s_add_u32 s%d, s%d, s%d" % (sA, sA, sB))
    a.e("s_lshl_b32 s%d, s%d, 15" % (sB, sA))
    a.e("s_lshr_b32 s%d, s%d, 1" % (sKQ, sW))
    if Opt.kqx:
        a.e("s_lshl_b32 s%d, s%d, 1" % (sC, sCB))
        a.e("s_and_b32 s%d, s%d, 2" % (sC, sC))
        a.e("s_xor_b32 s%d, s%d, s%d" % (sKQ, sKQ, sC))
    a.e("s_lshl_b32 s%d, s%d, 13" % (sC, sKQ))
    a.e("s_add_u32 s%d, s%d, s%d" % (sB, sB, sC))
    a.e("s_add_u32 s%d, s%d, 0x%x" % (sOLD, sB, WS_OF))
    a.e("v_and_b32 v2, 31, v0")
    a.e("v_lshrrev_b32 v3, 5, v0")
    a.e("v_and_b32 v4, 7, v0")
    a.e("v_xor_b32 v3, v3, v4")
    a.e("v_lshlrev_b32 v3, 4, v3")
    a.e("v_lshl_add_u32 v3, v2, 8, v3")
    a.e("s_and_b32 s%d, s%d, 1" % (sB, sW))
    a.e("s_lshl_b32 s%d, s%d, 15" % (sB, sB))
    a.e("s_lshr_b32 s%d, s%d, 1" % (sC, sW))
    a.e("s_lshl_b32 s%d, s%d, 13" % (sD, sC))
    a.e("s_add_u32 s%d, s%d, s%d" % (sOUTO, sD, sB))
    a.e("s_add_u32 s%d, s%d, 0x%x" % (sD, sOUTO, L_RED))
    a.e("v_add_u32 %s, s%d, v3" % (v(vAW0), sD))
    a.e("v_lshrrev_b32 v2, 3, v0")
    a.e("v_lshlrev_b32 v3, 1, v4")
    a.e("v_xor_b32 v3, v3, v2")
    a.e("v_lshlrev_b32 v3, 4, v3")
    a.e("v_lshl_add_u32 v3, v2, 8, v3")
    a.e("s_lshl_b32 s%d, s%d, 11" % (sD, sC))
    a.e("s_add_u32 s%d, s%d, s%d" % (sD, sD, sB))
    a.e("s_add_u32 s%d, s%d, 0x%x" % (sD, sD, L_RED))
    a.e("v_add_u32 %s, s%d, v3" % (v(vAR0), sD))
    a.e("v_lshlrev_b32 v4, 4, v4")
    a.e("v_lshl_add_u32 %s, v2, 10, v4" % v(vOUTA))
    a.e("s_lshl_b32 s%d, s%d, 16" % (sC, sT))
    a.e("s_add_u32 s%d, s%d, s%d" % (sOUTO, sOUTO, sC))
    a.e("s_lshl_b32 s%d, s%d, 7" % (sC, sCB))
    a.e("s_add_u32 s%d, s%d, s%d" % (sOUTO, sOUTO, sC))
    a.e("v_mov_b32 %s, 0xdddd" % v(vIDX))
    a.e("v_lshrrev_b32 v2, 4, v0")
    a.e("v_lshl_add_u32 %s, v2, 8, %s" % (v(vHA), v(vL16)))
    for i in range(16): a.e("v_mov_b32 %s, 0" % v(vO + i))
    for i in range(32): a.e("v_mov_b32 %s, 0" % v(vD + i))
    c0 = -2.0 * math.sqrt(2.0 / math.pi) * math.log2(math.e)
    a.e("v_mov_b32 %s, 0x%x" % (v(vC0), f2u(c0)))
    a.e("v_mov_b32 %s, 0x%x" % (v(vC0 + 1), f2u(c0 * 0.044715)))

def kv_first_loads(a, quartet=False):
    it = []
    for o in (range(0, 16384, 4096) if quartet else range(0, 16384, 8192)):
        b = sWH if quartet else sWK
        it.append(("s_add_u32 m0, s%d, 0x%x\ns_add_u32 s%d, s%d, 0x%x\nbuffer_load_dwordx4 %s, %s, s%d offen sc1 lds"
                   % (b, L_KV + o, sA, b, o, v(vL16), srd(SKV), sA), "kv%d" % (o >> 13)))
    it.append(("s_mov_b32 s%d, 0x%x\nbuffer_load_dwordx4 %s, %s, %s, s%d offen sc1"
               % (sA, 63 * 2048, v(vK0, 4), v(vL16), srd(SKV), sA), "k0"))
    it.append(("s_mov_b64 exec, %s\nbuffer_load_dwordx4 %s, %s, %s, 0 offen offset:%d sc1\ns_mov_b64 exec, -1"
               % (sp(sVM), v(vV1L, 4), v(vL16), srd(SKV), 1024 + 256), "k0"))
    it.append(("s_lshl_b32 s%d, s%d, 2\ns_add_u32 s%d, s%d, s%d\ns_lshl_b32 s%d, s%d, 7\ns_add_u32 s%d, s%d, 0x%x\n"
               "buffer_load_dword %s, %s, %s, s%d offen sc1"
               % (sA, sG, sA, sA, sLO, sA, sA, sA, sA, WS_G, v(vGP), v(vGA), srd(SWS), sA), "k0"))
    it.append(("s_lshl_b32 s%d, s%d, 1\ns_and_b32 s%d, s%d, 1\ns_add_u32 s%d, s%d, s%d\ns_lshl_b32 s%d, s%d, 7\ns_add_u32 s%d, s%d, 0x%x\n"
               "buffer_load_dword %s, %s, %s, s%d offen sc1"
               % (sA, sT, sB, sW, sA, sA, sB, sA, sA, sA, sA, WS_G, v(vGC), v(vGA), srd(SWS), sA), "k0"))
    return it

def spin_counter(a, name, first_loaded, wave=0):
    a.e("s_cmp_lg_u32 s%d, %d" % (sW, wave))
    a.e("s_cbranch_scc1 L_%s_done" % name)
    a.e("s_mov_b32 s%d, 0x4000" % sB)
    if first_loaded: a.e("s_branch L_%s_chk" % name)
    a.lab("L_%s_re" % name)
    a.e("buffer_load_dword %s, off, %s, 0 sc1" % (v(vPOLL), srd(SDBG)))
    a.e("s_waitcnt vmcnt(0)")
    a.lab("L_%s_chk" % name)
    a.e("v_readfirstlane_b32 s%d, %s" % (sA, v(vPOLL)))
    a.e("s_cmp_ge_u32 s%d, 32" % sA)
    a.e("s_cbranch_scc1 L_%s_done" % name)
    a.e("s_sleep 4")
    a.e("s_sub_u32 s%d, s%d, 1" % (sB, sB))
    a.e("s_cmp_lg_u32 s%d, 0" % sB)
    a.e("s_cbranch_scc1 L_%s_re" % name)
    a.lab("L_%s_done" % name)

def phase1_F(a):
    SCHED = {1: ["01423567", "10253467", "23016457", "32104756"],
             2: ["02134657", "01324576", "10243567", "10235467"],
             3: ["01324657", "01243576", "12035467", "20134567"],
             5: ["01243567", "10325467", "23014657", "32104576"],
             6: ["01243567", "10325467", "01234657", "10324576"],
             7: ["01234567", "10235476", "01234567", "10235476"],
             8: ["01234567", "10243657", "01234567", "10243657"],
             4: ["02143657", "10325476", "02143657", "10325476"]}
    tabs = SCHED[Opt.sched] if Opt.sched else ["".join(str(c ^ (p & Opt.xmask)) for c in range(8)) for p in range(4)]
    for t_ in tabs: assert sorted(t_) == list("01234567")
    num = [int(t_[::-1], 16) for t_ in tabs]
    def table(a):
        a.e("s_add_u32 s%d, s%d, s%d" % (sA, sG, sHP))
        a.e("s_mov_b32 s%d, 0x%x" % (sXP, num[0]))
        a.e("s_mov_b32 s%d, 0x%x" % (sB, num[2]))
        a.e("s_bitcmp1_b32 s%d, 0" % sA)
        a.e("s_cselect_b32 s%d, 0x%x, s%d" % (sXP, num[1], sXP))
        a.e("s_cselect_b32 s%d, 0x%x, s%d" % (sB, num[3], sB))
        a.e("s_bitcmp1_b32 s%d, 1" % sA)
        a.e("s_cselect_b32 s%d, s%d, s%d" % (sXP, sB, sXP))
        if Opt.ghx:
            a.e("s_bitcmp1_b32 s%d, 3" % sG)
            a.e("s_cselect_b32 s%d, 0x44444444, 0" % sB)
            a.e("s_xor_b32 s%d, s%d, s%d" % (sXP, sXP, sB))
    fo, fw = {"0000": (0, 0), "0101": (0, 1), "0011": (1, 1), "0123": (0, 2)}["".join(t_[0] for t_ in tabs)]
    a.e("s_add_u32 s%d, s%d, s%d" % (sA, sG, sHP))
    a.e("s_bfe_u32 s%d, s%d, 0x%x" % (sCH, sA, fw << 16 | fo))
    if Opt.ghx: a.e("s_lshl2_add_u32 s%d, s%d, s%d" % (sCH, sD, sCH))
    a.e("s_and_b32 s%d, s%d, 0xc00" % (sWH, sWK))
    a.e("v_and_b32 %s, 0xff, v0" % v(vTID))

    def wvoff(a):
        a.e("v_lshrrev_b32 v2, 4, %s" % v(vTID))
        a.e("v_lshrrev_b32 v3, 5, %s" % v(vTID))
        a.e("v_bfi_b32 v3, 3, v2, v3")
        a.e("v_lshlrev_b32 v3, 1, v3")
        a.e("v_xor_b32 v3, v3, %s" % v(vTID))
        a.e("v_and_b32 v3, 15, v3")
        a.e("s_lshl_b32 s%d, s%d, 8" % (sA, sM))
        a.e("v_lshl_add_u32 v3, v3, 4, s%d" % sA)
        a.e("v_mul_u32_u24 v2, 3584, v2")
        a.e("v_add_u32 %s, v2, v3" % v(vDG))
    def qvoff(a):
        a.e("v_lshrrev_b32 v2, 4, %s" % v(vTID))
        a.e("v_and_b32 v2, 2, v2")
        a.e("v_xor_b32 v2, v2, %s" % v(vTID))
        a.e("v_and_b32 v2, 3, v2")
        a.e("s_lshl_b32 s%d, s%d, 6" % (sA, sHP))
        a.e("v_lshl_add_u32 v2, v2, 4, s%d" % sA)
        a.e("v_lshrrev_b32 v3, 2, %s" % v(vTID))
        a.e("v_lshl_add_u32 %s, v3, 10, v2" % v(vDQ))
    def stouch(a):
        if Opt.diag or Opt.probe >= 0: a.e("s_load_dwordx2 %s, s[0:1], 32" % sp(SWO))
        if not Opt.stch: return
        a.e("s_lshr_b32 s%d, s%d, 2" % (sA, sW))
        if Opt.ghx: a.e("s_lshl2_add_u32 s%d, s%d, s%d" % (sA, sD, sA))
        a.e("s_lshl_b32 s%d, s%d, 6" % (sA, sA))
        a.e("s_and_b32 s%d, s%d, 7" % (sB, sG))
        a.e("s_add_u32 s%d, s%d, s%d" % (sA, sA, sB))
        a.e("s_mul_i32 s%d, s%d, 28" % (sA, sA))
        a.e("s_bfe_u32 s%d, s%d, 0x10001" % (sB, sW))
        a.e("s_lshl1_add_u32 s%d, s%d, s%d" % (sB, sM, sB))
        a.e("s_add_u32 s%d, s%d, s%d" % (sA, sA, sB))
        a.e("s_lshl_b32 s%d, s%d, 7" % (sA, sA))
        a.e("s_bitcmp1_b32 s%d, 0" % sW)
        a.e("s_cselect_b64 %s, %s, %s" % (sp(SWKV), sp(SWU), sp(SWG)))
        a.e("s_add_u32 s%d, s%d, s%d" % (SWKV, SWKV, sA))
        a.e("s_addc_u32 s%d, s%d, 0" % (SWKV + 1, SWKV + 1))
        for i in range(Opt.stch):
            a.e("s_load_dwordx2 %s, %s, 0x%x" % (sp(sTMPP), sp(SWKV), 128 * 3584 + i * 8 * 3584 + 60))
    def wsrd(a):
        srd_words(a, [SWG])
        a.e("s_mov_b64 %s, %s" % (sp(SWU + 2), sp(SWG + 2)))

    if Opt.hrot:
        ORDER = [("q", 0)] + [(t_, 2 * h_ + j) for h_ in range(2) for t_, j in (("x", 0), ("x", 1), ("g", 0), ("u", 0), ("g", 1), ("u", 1))]
    else:
        ORDER = [("q", 0)] + [("x", j) for j in range(4)] + [(t_, j) for j in range(4) for t_ in "gu"]
    def block(items):
        out = []; lastc = None; lastw = None
        for c, kind, j in items:
            s = c % 3; pre = []
            if c != lastc:
                if c: pre.append("s_bfe_u32 s%d, s%d, 0x%x" % (sCH, sXP, 0x30000 + 4 * c))
                lastc = c; lastw = None
            fam = "w" if kind in "gu" else kind
            rot = Opt.hrot and fam != "q"
            if lastw is None or lastw[0] != fam or (rot and lastw[1] >> 1 != j >> 1):
                pre.append({"q": "s_lshl_b32 s%d, s%d, 16" % (sOFFW, sCH), "x": "s_lshl_b32 s%d, s%d, 7" % (sOFFW, sCH),
                            "w": "s_mul_i32 s%d, s%d, %d" % (sOFFW, sCH, 64 * 3584)}[fam])
                if rot: pre.append("s_%s_u32 s%d, s%d, s%d" % ("sub" if j >> 1 else "add", sOFFW, sOFFW, sRX if fam == "x" else sRW))
                lastw = (fam, 0)
            if lastw[1] != j:
                pre.append("s_add_u32 s%d, s%d, 0x%x" % (sOFFW, sOFFW, (j - lastw[1]) * (0x8000 if fam == "x" else 16 * 3584)))
                lastw = (fam, j)
            m0c, vo, rs = {"q": (L_WQ + s * 4096, vDQ, SWQ), "x": (L_X + s * 16384 + j * 4096, vDX, SX),
                           "g": (L_G + s * 16384 + j * 4096, vDG, SWG), "u": (L_U + s * 16384 + j * 4096, vDG, SWU)}[kind]
            nt = " nt" if Opt.ntx & (1 if rs == SX else 2) else ""
            out.append(("s_add_u32 m0, s%d, 0x%x\n%s\nbuffer_load_dwordx4 %s, %s, s%d offen%s lds"
                        % ((sM0B + (j >> 1)) if rot else sWH, m0c, "\n".join(pre) or "s_nop 0", v(vo), srd(rs), sOFFW, nt), "c%d" % c))
        return out
    def part(c, role): return [(c, k_, j) for k_, j in ORDER if (k_ in "gu") == (role == "A")]

    def rdsetup(a):
        setup_rd(a)
        a.e("v_lshl_add_u32 %s, v3, 3, v2" % v(vWA))
        a.e("v_lshlrev_b32 %s, 8, %s" % (v(vWA), v(vWA)))
        a.e("v_lshl_add_u32 %s, v4, 3, %s" % (v(vWA), v(vWA)))
        a.e("v_and_b32 v5, 1, v3")
        a.e("v_lshl_add_u32 v2, v5, 2, v2")
        a.e("s_lshl_b32 s%d, s%d, 2" % (sA, sHI))
        a.e("s_and_b32 s%d, s%d, 1" % (sB, sLO))
        a.e("s_lshl_b32 s%d, s%d, 1" % (sB, sB))
        a.e("s_add_u32 s%d, s%d, s%d" % (sA, sA, sB))
        a.e("v_xor_b32 v2, s%d, v2" % sA)
        a.e("v_lshl_add_u32 %s, v2, 5, %s" % (v(vWA), v(vWA)))
        a.e("v_xor_b32 %s, 32, %s" % (v(vWA + 1), v(vWA)))
        a.e("v_add_u32 %s, 0x%x, %s" % (v(vWA + 2), L_U - L_G, v(vWA)))
        a.e("v_add_u32 %s, 0x%x, %s" % (v(vWA + 3), L_U - L_G, v(vWA + 1)))
        a.e("s_lshl_b32 s%d, s%d, 12" % (sA, sLO))
        a.e("s_add_u32 s%d, s%d, 0x%x" % (sA, sA, L_X))
        a.e("v_add_u32 %s, s%d, %s" % (v(vXA), sA, v(vXA)))
        a.e("v_xor_b32 %s, 0x1000, %s" % (v(vXA + 1), v(vXA)))
        a.e("v_xor_b32 %s, 64, %s" % (v(vXA + 2), v(vXA)))
        a.e("v_xor_b32 %s, 64, %s" % (v(vXA + 3), v(vXA + 1)))
        a.e("v_add_u32 %s, 0x%x, %s" % (v(vQA), L_WQ, v(vQA)))

    a.e("s_cmp_ge_u32 s%d, 4" % sW)
    a.e("s_cbranch_scc1 L_setB")
    late = collect(setup_oclr) + collect(setup_ones) + [("; later", None)] + collect(setup_attn)
    words = collect(lambda t: srd_words(t, [SWS, SKV, SDBG, SWD, SWO, SOUT]))
    late = [x for x in late if x not in words]
    oclr = [x for x in late if x[1] == "oclr"]
    if Opt.olate: late = [x for x in late if x[1] != "oclr"]
    else: oclr = []
    words += [("v_mov_b32 %s, 0" % v(r_), None) for r_ in (vGA, vWDV, vFLA, vHA, vOUTA)]
    st = collect(rdsetup) + words + late[:Opt.fillpre]
    cut = late.index(("; later", None)) if Opt.bidle else len(late)
    fills = {"A": late[Opt.fillpre:], "B": late[Opt.fillpre:max(cut, Opt.fillpre)]}
    idleB = late[max(cut, Opt.fillpre):]
    vms = {}
    wsrd(a); wvoff(a)
    a.e("s_waitcnt lgkmcnt(0)")
    a.stamp(2)
    if Opt.spos == 0: stouch(a)
    put(a, block(part(0, "A")))
    a.e("s_branch L_setA")
    vms["A"] = a.vm; a.vm = []
    a.lab("L_setB")
    srd_words(a, [SX]); xvoff(a, vTID)
    a.e("s_waitcnt lgkmcnt(0)")
    a.stamp(2)
    if Opt.spos == 0: stouch(a)
    put(a, block(part(0, "B")[1:]))
    srd_words(a, [SWQ]); qvoff(a)
    put(a, block(part(0, "B")[:1]))
    vms["B"] = a.vm
    for role in "BA":
        a.vm = vms[role]
        if role == "A": a.lab("L_setA")
        if Opt.spos == 1: stouch(a)
        table(a)
        setup_ids(a)
        if role == "A": srd_words(a, [SX, SWQ])
        else: wsrd(a)
        def touches():
            tm = sum(0xff << (8 * i) for i in range(4) if Opt.tch >> i & 1)
            setex = "s_bitcmp1_b32 s%d, 3\ns_cselect_b32 exec_lo, 0, 0x%x\ns_cselect_b32 exec_hi, 0x%x, 0" % (sG, tm, tm) if Opt.ghx \
                    else "s_mov_b32 exec_lo, 0x%x\ns_mov_b32 exec_hi, 0" % tm
            if Opt.tlb & 2 and role == "B":
                a.e("s_and_b32 s%d, s%d, 7" % (sA, sG))
                a.e("v_lshl_add_u32 v2, v0, 3, s%d" % sA)
                a.e("v_mul_u32_u24 v3, 3584, v2")
                a.e("s_and_b32 s%d, s%d, 1" % (sB, sW))
                a.e("s_lshl1_add_u32 s%d, s%d, s%d" % (sA, sM, sB))
                a.e("s_lshl_b32 s%d, s%d, 7" % (sA, sA))
                a.e(setex)
                a.e("s_cmp_ge_u32 s%d, 6" % sW)
                a.e("s_cbranch_scc1 L_tlbu")
                a.e("buffer_load_dword %s, v3, %s, s%d offen" % (v(vPOLL), srd(SWG), sA))
                a.e("s_branch L_tlbe")
                a.lab("L_tlbu")
                a.e("buffer_load_dword %s, v3, %s, s%d offen" % (v(vPOLL), srd(SWU), sA))
                a.lab("L_tlbe")
                a.e("s_mov_b64 exec, -1")
                a.vm.append("tlb")
            if Opt.tlb & 12 and role == "A":
                a.e("s_cmp_lg_u32 s%d, 0" % sW)
                a.e("s_cbranch_scc1 L_tlbx")
                a.e("s_and_b32 s%d, s%d, 7" % (sA, sG))
                a.e("v_lshl_add_u32 v2, v0, 3, s%d" % sA)
                a.e("v_lshlrev_b32 v3, 10, v2")
                a.e("s_lshl_b32 s%d, s%d, 6" % (sA, sHP))
                a.e(setex if Opt.tlb & 4 else "s_mov_b64 exec, 1")
                a.e("buffer_load_dword %s, v3, %s, s%d offen" % (v(vPOLL), srd(SWQ), sA))
                a.e("s_branch L_tlby")
                a.lab("L_tlbx")
                a.e("s_and_b32 s%d, s%d, 3" % (sA, sM))
                a.e("s_lshl2_add_u32 s%d, s%d, s%d" % (sA, sG, sA))
                a.e("s_lshl_b32 s%d, s%d, 15" % (sA, sA))
                a.e("v_lshl_add_u32 v3, v0, 10, s%d" % sA)
                a.e("s_lshr_b32 s%d, s%d, 3" % (sA, sG))
                a.e("s_lshl2_add_u32 s%d, s%d, s%d" % (sA, sA, sW) if Opt.ghx else "s_mov_b32 s%d, s%d" % (sA, sW))
                a.e("s_lshl_b32 s%d, s%d, 7" % (sA, sA))
                a.e("s_bitcmp1_b32 %d, s%d" % (Opt.tch if Opt.tlb & 8 else 0, sW))
                a.e("s_cselect_b32 exec_lo, -1, 1")
                a.e("s_mov_b32 exec_hi, 0")
                a.e("buffer_load_dword %s, v3, %s, s%d offen" % (v(vPOLL), srd(SX), sA))
                a.lab("L_tlby")
                a.e("s_mov_b64 exec, -1")
                a.vm.append("tlb")
        if Opt.tpos == 0: touches()
        if Opt.startbar: a.e("s_barrier")
        npre = min(Opt.npre, 8) if role == "A" else 5
        pn = block(part(1, role)[:npre])
        rest = st + (collect(qvoff) + collect(lambda t: xvoff(t, vTID)) if role == "A" else collect(wvoff))
        gap = len(rest) // (npre + Opt.pregap) + 1
        if Opt.tpos == 2:
            put(a, pn); touches(); npre = 0
        if Opt.tpos == 3 and role == "B":
            put(a, pn); touches(); npre = 0
        for i in range(npre):
            put(a, pn[:1]); pn = pn[1:]
            put(a, rest[:gap]); rest = rest[gap:]
        put(a, rest)
        if Opt.tpos == 1 or (Opt.tpos == 3 and role == "A"): touches()
        a.e("s_mov_b64 vcc, %d" % (-1 if role == "A" else 0))
        if role == "A":
            a.waitvm("c0", lgkm=True)
        else:
            a.e("s_setprio 1")
            a.waitvm("c0", lgkm=True)
            a.e("s_branch L_k0")
        vms[role] = a.vm
    stream = part(1, "A")[min(Opt.npre, 8):] + [(c, k_, j) for c in range(2, 8) for k_, j in ORDER]
    qa = [int(x, 16) for x in Opt.qa]; qb = [int(x, 16) for x in Opt.qb]
    def take(n, cmax):
        m = 0
        while m < n and m < len(stream) and stream[m][0] <= cmax: m += 1
        r_ = stream[:m]; del stream[:m]
        return block(r_)
    a.lab("L_k0")
    a.vm = vms["A"]
    ool = Asm()
    def dmablock(name, role, items, wait=None):
        a.e("s_cbranch_vcc%s L_%s" % ("nz" if role == "A" else "z", name))
        if wait: a.waitvm(wait, lgkm=True)
        a.lab("L_%s_r" % name)
        ool.lab("L_%s" % name)
        ool.vm = a.vm if role == "A" else vms["B"]
        for it_ in items:
            put(ool, [it_])
            fp = Opt.fillper if role == "A" or not Opt.bidle else 2
            put(ool, fills[role][:fp]); fills[role] = fills[role][fp:]
        if name in ("d7", "e7"): put(ool, fills[role]); fills[role] = []
        if wait: ool.waitvm(wait, lgkm=True)
        if role == "B": vms["B"] = ool.vm
        ool.e("s_branch L_%s_r" % name)
    a.ool = ool.l

    def fr(k):
        b = vF1 + 36 * (k % 2)
        return dict(x=b, w=b + 16, q=b + 32)
    def reads(k):
        c, s = divmod(k, 2); f = fr(k); sl = c % 3
        wo = sl * 16384 + s * 8192
        W = lambda i: [rdtr(f['w'] + 4 * i, vWA + i, wo), rdtr(f['w'] + 4 * i + 2, vWA + i, wo + 1024)]
        X = [rd128(f['x'] + 4 * b, vXA + 2 * s + (b >> 1), sl * 16384 + (b & 1) * 2048) for b in range(4)]
        return W(0) + X + W(2) + W(1) + W(3) + [rdtr(f['q'], vQA, sl * 4096 + s * 2048), rdtr(f['q'] + 2, vQA, sl * 4096 + s * 2048 + 256)]
    a.e("s_barrier")
    a.stamp(3)
    if Opt.kdiag or Opt.probe >= 18:
        kstamp(a, 2)
        a.e("s_waitcnt lgkmcnt(0)")
    for r in reads(0): a.e(r)
    if qa[0]: dmablock("d2", "A", take(qa[0], 2))
    for k in range(16):
        c, s = divmod(k, 2); f = fr(k)
        z = lambda x: None if k == 0 else x
        mf = []
        for n_, i in enumerate((0, 2, 1, 3)):
            for b in (range(4) if n_ % 2 == 0 else range(3, -1, -1)):
                d = vACC + 16 * b + 4 * i
                mf.append(mfma16(d, f['w'] + 4 * i, f['x'] + 4 * b, z(d)))
        for b in range(2): mf.append(mfma16(vAQ + 4 * b, f['q'], f['x'] + 4 * b, z(vAQ + 4 * b)))
        rds = reads(k + 1) if k < 15 else []
        if s == 0:
            a.e("s_waitcnt lgkmcnt(6)")
            for i, m in enumerate(mf):
                if i == 8: a.e("s_waitcnt lgkmcnt(8)")
                a.e(m)
                if i < len(rds): a.e(rds[i])
            continue
        a.e("s_waitcnt lgkmcnt(8)")
        for m in mf[:4]: a.e(m)
        if c <= 5:
            dmablock("e%d" % (c + 2), "B", take(qb[c], c + 2), "c%d" % (c + 1))
            assert not any(x[0] <= c + 1 for x in stream)
        if c == 7:
            a.e("s_waitcnt lgkmcnt(0)")
        elif c == 6:
            a.e("s_waitcnt lgkmcnt(0)")
            a.e("s_cbranch_vccz L_st7")
            a.e("s_setprio 1")
            a.e("s_waitcnt vmcnt(0)")
            a.e("s_barrier")
            a.lab("L_st7")
        else:
            a.e("s_barrier")
        if c < 7 and ((Opt.kdiag == 1 and Opt.diag) or Opt.probe == 21 + c):
            kstamp(a, 3 + c)
            a.e("s_waitcnt lgkmcnt(0)")
        if c + 3 < 8:
            items = take(qa[c + 1], c + 3)
            dmablock("d%d" % (c + 3), "A", items)
        for i, m in enumerate(mf[4:]):
            a.e(m)
            if i < len(rds): a.e(rds[i])
        if k == 11: assert not stream and not fills["A"] and not fills["B"]
        if k == 11:
            a.e("s_cbranch_vccnz L_st6")
            a.e("s_setprio 0")
            nm = next((i for i, x in enumerate(idleB) if "0xdddd" in x[0]), 0)
            a.e("s_cmp_lg_u32 s%d, 4" % sW)
            a.e("s_cbranch_scc1 L_nopoll")
            a.e("buffer_load_dword %s, off, %s, 0 sc1" % (v(vPOLL), srd(SDBG)))
            a.lab("L_nopoll")
            put(a, idleB[:nm]); idleB = idleB[nm:]
            a.wait0()
            spin_counter(a, "kvf", True, 4)
            a.e("s_barrier")
            put(a, kv_first_loads(a, True) + oclr + idleB)
            a.lab("L_st6")
    a.kvA = (kv_first_loads(a) + oclr)[2:]
    a.stamp(4)

def phase1_L(a):
    a.lab("L_light")
    a.vm = []
    a.e("s_waitcnt lgkmcnt(0)")
    ptr_loads(a, ((SWKV, 16), (SWV, 24), (SGATE, 72), (SWO, 32)))
    srd_words(a, [SWKV, SWV, SGATE, SX])
    xvoff(a, 0)
    a.e("v_and_b32 v2, 63, v0")
    a.e("v_lshlrev_b32 %s, 4, v2" % v(vL16))
    a.e("s_sub_u32 s%d, s%d, 14" % (sCNT, sM))
    a.e("s_lshl_b32 s%d, s%d, 16" % (sOLD, sCNT))
    a.e("s_lshl_b32 s%d, s%d, 13" % (sHST, sCNT))
    a.e("s_add_u32 s%d, s%d, s%d" % (sWH, sHST, sWK))
    a.e("s_xor_b32 s%d, s%d, 0x2000" % (sHST, sHST))
    a.e("s_add_u32 s%d, s%d, 0x2000" % (sA, sWK))
    a.e("s_waitcnt lgkmcnt(0)")
    a.stamp(2)
    def xdma(c, base, so):
        a.vmop("s_add_u32 m0, s%d, 0x%x\ns_nop 0\nbuffer_load_dwordx4 %s, %s, s%d offen offset:%d lds"
               % (base, LL_X + c * 16384 - c * 128, v(vDX), srd(SX), so, c * 128), "c%d" % c)
    def wdma(u):
        for t, rs in enumerate((SWKV, SWV)):
            a.vmop("s_add_u32 m0, s%d, 0x%x\ns_nop 0\nbuffer_load_dwordx4 %s, %s, s%d offen lds"
                   % (sWK, LL_W + t * 16384 + u * 8192, v(vL16), srd(rs), sA if u else sWK), "w")
    wdma(0)
    a.vmop("s_mov_b32 m0, s%d\ns_nop 0\nbuffer_load_dwordx4 %s, %s, 0 offen lds" % (sHST, v(vL16), srd(SGATE)), "w")
    for c in range(8):
        if c == 4: wdma(1)
        xdma(c, sWH, sOLD)
        if c in (1, 3, 5): a.e("s_barrier")
    setup_ids(a)
    srd_words(a, [SWQ])
    setup_rd(a)
    a.e("v_lshrrev_b32 v3, 5, v0")
    a.e("v_bfrev_b32 v5, v4")
    a.e("v_lshrrev_b32 v5, 30, v5")
    a.e("s_cmp_ge_u32 s%d, 2" % sLO)
    a.e("s_cselect_b64 vcc, -1, 0")
    a.e("v_cndmask_b32 v4, v5, v4, vcc")
    a.e("v_lshl_add_u32 %s, v3, 3, v2" % v(vWA))
    a.e("v_lshlrev_b32 %s, 5, %s" % (v(vWA), v(vWA)))
    a.e("v_lshl_add_u32 %s, v4, 3, %s" % (v(vWA), v(vWA)))
    a.e("s_lshr_b32 s%d, s%d, 1" % (sA, sLO))
    a.e("s_lshl_b32 s%d, s%d, 14" % (sA, sA))
    a.e("s_add_u32 s%d, s%d, 0x%x" % (sA, sA, LL_W))
    a.e("v_add_u32 %s, s%d, %s" % (v(vWA), sA, v(vWA)))
    a.e("v_lshl_add_u32 %s, v3, 4, s%d" % (v(vWA + 1), sHST))
    a.e("s_and_b32 s%d, s%d, 1" % (sA, sLO))
    a.e("s_lshl_b32 s%d, s%d, 1" % (sB, sCNT))
    a.e("s_add_u32 s%d, s%d, s%d" % (sCNT, sA, sB))
    a.e("s_lshl_b32 s%d, s%d, 12" % (sA, sCNT))
    a.e("v_and_b32 v2, 31, v0")
    a.e("v_lshrrev_b32 v4, 1, v0")
    a.e("v_lshlrev_b32 v5, 1, v0")
    a.e("v_bfi_b32 v4, 4, v4, v5")
    a.e("v_bfi_b32 v4, 12, v4, v2")
    a.e("v_cndmask_b32 v2, v2, v4, vcc")
    a.e("v_bfe_u32 v4, v2, 1, 3")
    a.e("v_xor_b32 v4, v4, v3")
    a.e("v_lshlrev_b32 v4, 4, v4")
    a.e("v_lshl_add_u32 v4, v2, 7, v4")
    a.e("v_add_u32 %s, s%d, v4" % (v(vLX), sA))
    for s in range(1, 4): a.e("v_xor_b32 %s, %d, %s" % (v(vLX + s), 32 * s, v(vLX)))
    for s in range(4): a.e("v_add_u32 %s, 0x10000, %s" % (v(vLX + 4 + s), v(vLX + s)))
    a.e("s_waitcnt lgkmcnt(0)")
    setup_oclr(a)
    vm0 = list(a.vm)
    a.e("s_cmp_lg_u32 s%d, 0" % sHI)
    a.e("s_cbranch_scc1 L_lB")
    a.e("s_not_b64 %s, %s" % (sp(sTMPP), sp(sVM)))
    a.e("s_cmp_ge_u32 s%d, 2" % sLO)
    a.e("s_cbranch_scc1 L_lV")
    def chain(kind):
        a.vm = list(vm0)
        def fr(k):
            b = vFR + 8 * (k % 4)
            return b, b + 4
        def reads(k):
            c, s = divmod(k, 4); x, w = fr(k)
            r = [rd128(x, vLX + s + 4 * (c >> 2), (c & 3) * 16384), rdtr(w, vWA, k * 512), rdtr(w + 2, vWA, k * 512 + 128)]
            if kind == "K":
                r += ["s_mov_b64 exec, %s" % sp(sTMPP), rd128(w, vWA + 1, k * 32), "s_mov_b64 exec, -1"]
            return r
        for q in range(4):
            a.waitvm("c%d" % (2 * q + 1))
            a.e("s_barrier")
            nr = 4 if kind == "K" else 3
            for k in range(8 * q, 8 * q + 2):
                for r in reads(k): a.e(r)
            for k in range(8 * q, 8 * q + 8):
                if k + 2 < 8 * q + 8:
                    for r in reads(k + 2): a.e(r)
                left = min(2, 8 * q + 7 - k)
                a.e("s_waitcnt lgkmcnt(%d)" % (left * nr))
                x, w = fr(k)
                cc = None if k == 0 else vACC
                a.e(mfma(vACC, w, x, cc) if kind == "K" else mfma(vACC, x, w, cc))
        a.e("s_lshl_b32 s%d, s%d, 2" % (sA, sG))
        a.e("s_add_u32 s%d, s%d, s%d" % (sA, sA, sCNT))
        a.e("s_nop 12")
        if kind == "K":
            a.e("s_mov_b32 s%d, 0x%x" % (sC, f2u(0.25 * math.log2(math.e))))
            for i in range(8): a.e("v_mul_f32 %s, s%d, %s" % (v(vACC + i), sC, v(vACC + i)))
            a.e("v_mul_f32 %s, 0x%x, %s" % (v(vACC + 8), f2u(-math.log2(math.e)), v(vACC + 8)))
            a.e("v_exp_f32 %s, %s" % (v(vACC + 8), v(vACC + 8)))
            for i in range(4): a.e("v_cvt_pk_bf16_f32 %s, %s, %s" % (v(vFR + i), v(vACC + 2 * i), v(vACC + 2 * i + 1)))
            a.e("v_add_f32 %s, 1.0, %s" % (v(vACC + 8), v(vACC + 8)))
            a.e("v_rcp_f32 %s, %s" % (v(vACC + 8), v(vACC + 8)))
            a.e("s_add_u32 s%d, s%d, 63" % (sB, sA))
            a.e("s_and_b32 s%d, s%d, 63" % (sB, sB))
            a.e("s_lshl_b32 s%d, s%d, 11" % (sB, sB))
            a.e("buffer_store_dwordx4 %s, %s, %s, s%d offen sc1" % (v(vFR, 4), v(vL16), srd(SKV), sB))
            a.e("s_lshl_b32 s%d, s%d, 7" % (sB, sA))
            a.e("s_add_u32 s%d, s%d, 0x%x" % (sB, sB, WS_G))
            a.e("s_mov_b32 exec_hi, 0")
            a.e("buffer_store_dword %s, %s, %s, s%d offen sc1" % (v(vACC + 8), v(vGA), srd(SWS), sB))
            a.e("s_mov_b64 exec, -1")
        else:
            for i in range(8): a.e("v_cvt_pk_bf16_f32 %s, %s, %s" % (v(vFR + i), v(vACC + 2 * i), v(vACC + 2 * i + 1)))
            a.e("v_bfe_u32 v2, v0, 4, 1")
            a.e("v_add_u32 v2, s%d, v2" % sA)
            a.e("v_and_b32 v2, 63, v2")
            a.e("v_lshl_add_u32 v2, v2, 11, %s" % v(vL16))
            for i in range(4): a.e("v_cndmask_b32 %s, %s, %s, %s" % (v(vFR + i), v(vFR + 4 + i), v(vFR + i), sp(sVM)))
            a.e("buffer_store_dwordx4 %s, v2, %s, 0 offen offset:1024 sc1" % (v(vFR, 4), srd(SKV)))
        a.e("s_branch L_lJ")
    chain("K")
    a.lab("L_lV")
    chain("V")
    a.lab("L_lB")
    a.vm = list(vm0)
    a.e("s_cmp_lg_u32 s%d, 14" % sM)
    a.e("s_cbranch_scc1 L_nozf")
    a.e("s_cmp_lg_u32 s%d, 4" % sW)
    a.e("s_cbranch_scc1 L_nozf")
    a.e("v_lshlrev_b32 v2, 7, v0")
    a.e("s_lshl_b32 s%d, s%d, 11" % (sA, sG))
    a.e("s_add_u32 s%d, s%d, 0x%x" % (sA, sA, WS_HFLAG))
    a.e("s_mov_b64 exec, 0xffff")
    a.e("buffer_store_dword %s, v2, %s, s%d offen sc1" % (v(vZERO), srd(SWS), sA))
    a.e("s_mov_b64 exec, -1")
    a.lab("L_nozf")
    for q in range(4):
        a.waitvm("c%d" % (2 * q + 1))
        a.e("s_barrier")
    a.lab("L_lJ")
    a.e("v_lshrrev_b32 v3, 2, v0")
    a.e("v_lshlrev_b32 v3, 10, v3")
    a.e("v_lshrrev_b32 v4, 5, v0")
    a.e("v_lshlrev_b32 v4, 1, v4")
    a.e("v_xor_b32 v4, v4, v0")
    a.e("v_and_b32 v4, 3, v4")
    a.e("v_lshl_add_u32 v3, v4, 4, v3")
    a.e("s_lshl_b32 s%d, s%d, 14" % (sA, sW))
    a.e("s_lshl_b32 s%d, s%d, 6" % (sB, sHP))
    a.e("s_add_u32 s%d, s%d, s%d" % (sA, sA, sB))
    a.e("v_add_u32 %s, s%d, v3" % (v(vDQ), sA))
    a.e("s_xor_b32 s%d, s%d, 0x2000" % (sWH, sWH))
    a.e("s_xor_b32 s%d, s%d, 0x10000" % (sOLD, sOLD))
    a.wait0(lgkm=True)
    a.e("s_barrier")
    a.e("s_cmp_lg_u32 s%d, 0" % sW)
    a.e("s_cbranch_scc1 L_noat")
    a.e("s_mov_b64 exec, 1")
    a.e("buffer_atomic_add %s, off, %s, 0 sc1" % (v(vONE), srd(SDBG)))
    a.e("s_mov_b64 exec, -1")
    a.lab("L_noat")
    a.stamp(3)
    for c in range(8): xdma(c, sWH, sOLD)
    for p in range(4):
        a.e("s_add_u32 m0, s%d, 0x%x" % (sWK, LL_WQ + p * 8192))
        a.e("s_mov_b32 s%d, 0x%x" % (sA, p * 128 * 1024))
        a.e("buffer_load_dwordx4 %s, %s, s%d offen lds" % (v(vDQ), srd(SWQ), sA))
    setup_ones(a)
    setup_attn(a)
    if Opt.touch & 2:
        a.e("s_lshl_b32 s%d, s%d, 1" % (sA, sG))
        a.e("s_add_u32 s%d, s%d, s%d" % (sA, sA, sM))
        a.e("s_sub_u32 s%d, s%d, 14" % (sA, sA))
        a.e("s_lshl_b32 s%d, s%d, 3" % (sA, sA))
        a.e("s_add_u32 s%d, s%d, s%d" % (sA, sA, sW))
        a.e("v_lshlrev_b32 v2, 15, v0")
        a.e("s_lshl_b32 s%d, s%d, 7" % (sA, sA))
        a.e("buffer_load_dword %s, v2, %s, s%d offen" % (v(vPOLL), srd(SWO), sA))
        a.e("buffer_load_dword %s, v2, %s, s%d offen" % (v(vPOLL), srd(SWD), sA))
    a.e("s_lshl_b32 s%d, s%d, 12" % (sA, sLO))
    a.e("v_add_u32 %s, s%d, %s" % (v(vXA), sA, v(vXA)))
    a.e("v_xor_b32 %s, 64, %s" % (v(vXA + 1), v(vXA)))
    a.e("v_add_u32 %s, 0x10000, %s" % (v(vXA + 2), v(vXA)))
    a.e("v_add_u32 %s, 0x10000, %s" % (v(vXA + 3), v(vXA + 1)))
    a.e("v_add_u32 %s, 0x%x, %s" % (v(vQA), LL_WQ, v(vQA)))
    a.e("s_waitcnt vmcnt(%d)" % (2 if Opt.touch & 2 else 0))
    a.e("s_barrier")
    def fr(k): return vFR + 12 * (k % 3)
    def reads(k):
        c, s = divmod(k, 2); f = fr(k)
        return [rd128(f + 4 * b, vXA + s + 2 * (c >> 2), (c & 3) * 16384 + b * 2048) for b in range(2)] + \
               [rdtr(f + 8, vQA, k * 2048), rdtr(f + 10, vQA, k * 2048 + 256)]
    for k in range(2):
        for r in reads(k): a.e(r)
    for k in range(16):
        a.e("s_waitcnt lgkmcnt(%d)" % (4 * min(1, 15 - k)))
        for b in range(2): a.e(mfma16(vAQ + 4 * b, fr(k) + 8, fr(k) + 4 * b, None if k == 0 else vAQ + 4 * b))
        if k + 2 < 16:
            for r in reads(k + 2): a.e(r)
    spin_counter(a, "kvl", False)
    a.e("s_barrier")
    for s, t in kv_first_loads(a): a.e(s)
    a.wait0()
    a.stamp(4)
    a.e("s_branch L_join")

def gelu_tile(a, ti, scalar=False):
    acc = vACC + 16 * ti
    t = vFR
    o = vFR + 8 + 4 * ti
    pk = lambda r: v(r, 2)
    if scalar:
        for i in range(8): a.e("v_mul_f32 %s, %s, %s" % (v(t + i), v(acc + i), v(acc + i)))
        for i in range(8): a.e("v_fma_f32 %s, %s, %s, %s" % (v(t + i), v(t + i), v(vC0 + 1), v(vC0)))
        for i in range(8): a.e("v_mul_f32 %s, %s, %s" % (v(t + i), v(t + i), v(acc + i)))
        for i in range(8): a.e("v_exp_f32 %s, %s" % (v(t + i), v(t + i)))
        for i in range(8): a.e("v_add_f32 %s, 1.0, %s" % (v(t + i), v(t + i)))
        for i in range(8): a.e("v_rcp_f32 %s, %s" % (v(t + i), v(t + i)))
        for i in range(8): a.e("v_mul_f32 %s, %s, %s" % (v(acc + i), v(acc + i), v(acc + 8 + i)))
        for i in range(8): a.e("v_mul_f32 %s, %s, %s" % (v(acc + i), v(acc + i), v(t + i)))
    R4, R8 = (range(0), range(0)) if scalar else (range(4), range(8))
    for i in R4: a.e("v_pk_mul_f32 %s, %s, %s" % (pk(t + 2 * i), pk(acc + 2 * i), pk(acc + 2 * i)))
    for i in R4: a.e("v_pk_fma_f32 %s, %s, %s, %s op_sel:[0,1,0] op_sel_hi:[1,1,0]" % (pk(t + 2 * i), pk(t + 2 * i), pk(vC0), pk(vC0)))
    for i in R4: a.e("v_pk_mul_f32 %s, %s, %s" % (pk(t + 2 * i), pk(t + 2 * i), pk(acc + 2 * i)))
    for i in R8: a.e("v_exp_f32 %s, %s" % (v(t + i), v(t + i)))
    for i in R4: a.e("v_pk_add_f32 %s, %s, 1.0 op_sel_hi:[1,0]" % (pk(t + 2 * i), pk(t + 2 * i)))
    for i in R8: a.e("v_rcp_f32 %s, %s" % (v(t + i), v(t + i)))
    for i in R4: a.e("v_pk_mul_f32 %s, %s, %s" % (pk(acc + 2 * i), pk(acc + 2 * i), pk(acc + 8 + 2 * i)))
    for i in R4: a.e("v_pk_mul_f32 %s, %s, %s" % (pk(acc + 2 * i), pk(acc + 2 * i), pk(t + 2 * i)))
    for i in range(4): a.e("v_cvt_pk_bf16_f32 %s, %s, %s" % (v(o + i), v(acc + 2 * i), v(acc + 2 * i + 1)))
    a.vmop("buffer_store_dwordx4 %s, %s, %s, s%d offen offset:%d sc1" % (v(o, 4), v(vHA), srd(SWS), sHST2 if ti >> 1 else sHST, (ti & 1) * 256), "hst")

def Yseg(hset, toggle=False, first=False, extra=False, last=False):
    out = []
    for t in range(2):
        pos = [int(x, 17) for x in (Opt.ypos0 if hset is None else Opt.ypos2 if extra else Opt.ypos1)]
        if last and t == 1: pos = [pos[0], 0, 11, pos[1]]
        S, Sn = vS + 16 * t, vS + 16 * (1 - t)
        K, V0, V1 = vKF + 4 * t, vV + 8 * t, vV + 8 * t + 4
        for e in range(1, 17):
            out.append("v_exp_f32 %s, %s" % (v(S + e - 1), v(S + e - 1)))
            if e == pos[0] and not (first and t == 0): out.append(smfmac(vO, V1, Sn + 8))
            if e == pos[1]: out.append(mfma(Sn, K, vQ, None))
            if e == pos[2]: out.append(smfmac(vO, V0, S))
            if hset is not None:
                if e == 13 and t == 1 and toggle:
                    out.append("v_xor_b32 %s, 0x4000, %s" % (v(vKVB), v(vKVB)))
                if e == pos[3]: out.append(mfma(vD + 16 * t, vWF + 4 * t, vH + 4 * hset, vD + 16 * t))
                if extra and e == pos[4]: out.append(mfma(vD + 16 * t, vFR + 16 + 4 * t, vH + 16 + 4 * hset, vD + 16 * t))
    return out

def kv_reads(off, vKVA=vKVA):
    r = [rd128(vKF, vKVA, off), rd128(vKF + 4, vKVA, off + 2048), "s_mov_b64 exec, %s" % sp(sVM)]
    for t in range(2):
        r += [rd128(vV + 8 * t, vKVA, off + 2048 * t + 1024), rd128(vV + 8 * t + 4, vKVA, off + 2048 * t + 1280)]
    r.append("s_mov_b64 exec, -1")
    return r
def wd_reads(dst, addr, off):
    r = []
    for c in range(2):
        r += [rdtr(dst + 4 * c, addr, off + 512 * c), rdtr(dst + 4 * c + 2, addr, off + 512 * c + 1024)]
    return r

def hord(): return [0, 2, 4, 6, 1, 3, 5, 7] if Opt.hord else list(range(8))
def wdrow(sg): return (32 * (sg >> 1) + 8 * (sg & 1)) * 1024

def attention(a, role, pre0=None):
    A = role == "A"
    def kvdma(u):
        a.vmop("s_add_u32 m0, s%d, 0x%x\ns_add_u32 s%d, s%d, 0x%x\nbuffer_load_dwordx4 %s, %s, s%d offen sc1 lds"
               % (sWK, L_KV + (u % 4) * 8192, sA, sWK, u * 8192, v(vL16), srd(SKV), sA), "kv%d" % u)
    def wddma(sg):
        a.vmop("s_add_u32 m0, s%d, 0x%x\ns_add_u32 s%d, s%d, 0x%x\nbuffer_load_dwordx4 %s, %s, s%d offen lds"
               % (sWK, L_WD + (sg % 4 if sg < 23 or sg == 27 else sg - 19) * 8192, sA, sWDOFF, wdrow(sg), v(vWDV), srd(SWD), sA), "wd%d" % sg)
    def wodma(j):
        a.vmop("s_add_u32 m0, s%d, 0x%x\ns_add_u32 s%d, s%d, 0x%x\nbuffer_load_dwordx4 %s, %s, s%d offen lds"
               % (sWK, L_WO + (7 - j) * 8192, sA, sB, hord()[j] * 16384, v(vWDV), srd(SWO), sA), "wo")
    def hload(sg, dst):
        a.vmop("s_add_u32 s%d, s%d, 0x%x\nbuffer_load_dwordx4 %s, %s, %s, s%d offen sc1"
               % (sA, sHOFF, sg * 1024, v(dst, 4), v(vL16), srd(SWS), sA), "h%d" % sg)
    for n in range(12):
        if not A and n == 0: a.e("s_barrier")
        if n % 2 == 1: astamp(a, 2 + n // 2)
        if n == Opt.pcyc: a.e("%s %s" % ("s_memrealtime" if Opt.prt else "s_memtime", sp(sSTAMP + 6)))
        tags = []
        if A and n % 2 == 1: tags.append("kv%d" % ((n + 1) // 2))
        if not A and n % 2 == 0: tags.append("kv%d" % ((n + 2) // 2))
        if n == Opt.hpub - (0 if A else 1): tags.append("hst")
        if n == 6: tags.append("wo")
        if n == 9: tags.append("wd27")
        if n == 11: tags.append("wd0")
        if n == 9 and A:
            a.e("s_cmp_lg_u32 s%d, 0" % sW)
            a.e("s_cbranch_scc1 L_hf_done")
            a.e("s_mov_b32 s%d, 0x4000" % sB)
            a.e("s_waitcnt vmcnt(0)")
            a.lab("L_hf_chk")
            a.e("v_cmp_ne_u32 vcc, 1, %s" % v(vPOLL))
            a.e("s_cbranch_vccz L_hf_done")
            a.e("s_sleep 2")
            a.e("buffer_load_dword %s, %s, %s, 0 offen sc1" % (v(vPOLL), v(vFLA), srd(SWS)))
            a.e("s_sub_u32 s%d, s%d, 1" % (sB, sB))
            a.e("s_cmp_lg_u32 s%d, 0" % sB)
            a.e("s_waitcnt vmcnt(0)")
            a.e("s_cbranch_scc1 L_hf_chk")
            a.lab("L_hf_done")
        a.waitvm(tags)
        if n == 5 and Opt.diag == 3 and A:
            a.e("v_mov_b32 v2, s%d" % sSTAMP)
            a.e("s_lshl_b32 s%d, s2, 3" % sA)
            a.e("s_add_u32 s%d, s%d, s%d" % (sA, sA, sW))
            a.e("s_lshl_b32 s%d, s%d, 7" % (sA, sA))
            a.e("s_add_u32 s%d, s%d, 0x%x" % (sA, sA, WS_STAMP))
            a.e("s_mov_b64 exec, 1")
            a.vmop("buffer_store_dword v2, off, %s, s%d offset:12 sc1" % (srd(SWS), sA), "st")
            a.e("s_mov_b64 exec, -1")
        if n == Opt.hpub and not A:
            a.e("s_cmp_ge_u32 s%d, 14" % sM)
            a.e("s_cbranch_scc1 L_nohf")
            a.e("s_cmp_lg_u32 s%d, 4" % sW)
            a.e("s_cbranch_scc1 L_nohf")
            a.e("s_lshl_b32 s%d, s%d, 4" % (sA, sG))
            a.e("s_add_u32 s%d, s%d, s%d" % (sA, sA, sM))
            a.e("s_lshl_b32 s%d, s%d, 7" % (sA, sA))
            a.e("s_add_u32 s%d, s%d, 0x%x" % (sA, sA, WS_HFLAG))
            a.e("s_mov_b64 exec, 1")
            a.e("buffer_store_dword %s, off, %s, s%d sc1" % (v(vONE), srd(SWS), sA))
            a.e("s_mov_b64 exec, -1")
            a.lab("L_nohf")
        for r in kv_reads((n % 8) * 4096): a.e(r)
        if n == 8 and A:
            a.e("s_cmp_lg_u32 s%d, 0" % sW)
            a.e("s_cbranch_scc1 L_hf_nol")
            a.e("buffer_load_dword %s, %s, %s, 0 offen sc1" % (v(vPOLL), v(vFLA), srd(SWS)))
            a.lab("L_hf_nol")
        if n == 0:
            if A or Opt.hpub == 3:
                kvdma(2); kvdma(3)
            a.e("s_mov_b32 s%d, s%d" % (sC, sKQ))
            a.e("s_mul_i32 s%d, s%d, %d" % (sWDOFF, sC, 448 * 1024))
            a.e("s_and_b32 s%d, s%d, 1" % (sB, sW))
            a.e("s_lshl_b32 s%d, s%d, 14" % (sA, sB))
            a.e("s_add_u32 s%d, s%d, s%d" % (sWDOFF, sWDOFF, sA))
            a.e("s_lshl_b32 s%d, s%d, 1" % (sA, sT))
            a.e("s_add_u32 s%d, s%d, s%d" % (sA, sA, sB))
            a.e("s_mul_i32 s%d, s%d, 112" % (sA, sA))
            a.e("s_mul_i32 s%d, s%d, 28" % (sB, sC))
            a.e("s_add_u32 s%d, s%d, s%d" % (sA, sA, sB))
            a.e("s_lshl_b32 s%d, s%d, 10" % (sA, sA))
            a.e("s_add_u32 s%d, s%d, 0x%x" % (sHOFF, sA, WS_HF))
        if (A and n % 2 == 1 and n >= 3): kvdma((n + 5) // 2)
        if (not A and n % 2 == 0 and n >= 2): kvdma((n + 6) // 2)
        if 1 <= n <= 4:
            a.e("s_lshl_b32 s%d, s%d, 17" % (sB, sKQ))
            a.e("s_and_b32 s%d, s%d, 1" % (sC, sW))
            a.e("s_lshl_b32 s%d, s%d, 13" % (sC, sC))
            a.e("s_add_u32 s%d, s%d, s%d" % (sB, sB, sC))
            for j in (2 * n - 2, 2 * n - 1): wodma(j)
        for sg in {5: (27, 23, 24), 6: (25, 26, 0), 7: (1, 2)}.get(n, ()): wddma(sg)
        if n == 10:
            for r in wd_reads(vWX, vWDA, 3 * 8192): a.e(r)
        for j in ({7: (0,), 8: (1, 2), 9: (3, 4)} if A else {7: (0, 1), 8: (2, 3), 9: (4,)}).get(n, ()):
            for r in wd_reads(WOF[j], vWOA, (7 - j) * 8192): a.e(r)
        hs = {10: (0, 1, 23, 24), 11: (2, 25, 26, 27)} if A else {9: (0, 1, 23), 10: (2, 24), 11: (25, 26, 27)}
        if Opt.hlate: hs = {10: (0, 1), 11: (2,)} if A else {9: (0,), 10: (1,), 11: (2,)}
        for sg in hs.get(n, ()): hload(sg, vH + 4 * sg if sg < 4 else vHX if sg == 27 else vH + 4 * (sg - 19))
        if n == 11:
            a.e("s_add_u32 s%d, s%d, 0x%x" % (sHOFF, sHOFF, 3 * 1024))
            a.e("s_add_u32 s%d, s%d, 0x%x" % (sWDOFF, sWDOFF, wdrow(3)))
            a.e("s_add_u32 s%d, s%d, 0x%x" % (sKVOFF, sWK, 9 * 8192))
            a.e("s_mov_b32 s%d, 4" % sCNT)
            a.e("s_add_u32 s%d, s%d, 0x1000" % (sOLD2, sOLD))
            a.e("s_mov_b32 s%d, 0x%x" % (sLO_, f2u(2.0 ** -16)))
            a.e("s_mov_b32 s%d, 0x%x" % (sRNG, f2u(2.0 ** 100) - f2u(2.0 ** -16)))
        if n == 0 and pre0:
            pre0()
            a.stamp(5)
        a.e("s_waitcnt lgkmcnt(0)")
        if n == 0:
            if A: a.e("s_barrier")
            for x in Yseg(None, first=True): a.e(x)
            if not A: a.e("s_barrier")
            continue
        a.e("s_call_b64 %s, L_Y%s" % (sp(sRET), role))
        if n == 1:
            a.e("s_branch L_X1%s" % role)
            a.lab("L_Y%s" % role)
            if A: a.e("s_barrier")
            for x in Yseg(None): a.e(x)
            if not A: a.e("s_barrier")
            a.e("s_setpc_b64 %s" % sp(sRET))
            a.lab("L_X1%s" % role)
    assert not (Opt.hlate and Opt.nx)
    hl = {28: (27, 23), 29: (24, 25), 30: (26,)} if Opt.hlate else {}
    vm = list(a.vm); need = [63] * 8
    for n in range(12, 32):
        p = n % 4; q = p + (4 if n >= 28 else 0)
        tags = ["wd%d" % (n - 11), "h%d" % (n - 12)]
        if (p % 2 == 1) == A: tags.append("kv%d" % ((n + (1 if A else 2)) // 2))
        idx = [i for i, t in enumerate(vm) if t in tags]
        if idx: need[q] = min(need[q], len(vm) - 1 - max(idx))
        vm.append("wd%d" % (n - 9))
        vm.append("h%d" % (n - 9))
        if (p % 2 == 1) == A and n < 28: vm.append("kv%d" % ((n + (5 if A else 6)) // 2))
        vm += ["hx"] * len(hl.get(n, ()))
    a.lab("L_loop%s" % role)
    for q in range(8):
        p = q % 4; fin = q >= 4
        kv = (p % 2 == 1) == A and not fin
        if q == 0 and Opt.diag and Opt.kdiag == 2:
            a.e("s_cmp_lg_u32 s%d, 3" % sCNT)
            a.e("s_cbranch_scc1 L_nst%s" % role)
            astamp(a, 8)
            a.lab("L_nst%s" % role)
        a.e("s_waitcnt vmcnt(%d)" % need[q])
        for i, r in enumerate(kv_reads(p * 4096, vKVB)):
            if not (q == 7 and i == 1): a.e(r)
        if q <= 8 - Opt.nd:
            for r in wd_reads(vWF, vWDA, p * 8192): a.e(r)
        if fin and p < Opt.nx:
            for r in wd_reads(vFR + 16, vWDA, (4 + p) * 8192): a.e(r)
        if q == 7:
            for r in wd_reads(vFR, vWDA, (4 + Opt.nx) * 8192): a.e(r)
        a.e("s_add_u32 m0, s%d, 0x%x" % (sWK, L_WD + ((p + 3) % 4) * 8192))
        a.e("s_and_b32 s%d, s%d, 0x7fff" % (sA, sKVOFF))
        a.e("buffer_load_dwordx4 %s, %s, s%d offen lds" % (v(vWDV), srd(SWD), sWDOFF))
        a.e("s_add_u32 s%d, s%d, 0x%x" % (sWDOFF, sWDOFF, 0x2000 if p & 1 else 0x6000))
        a.e("buffer_load_dwordx4 %s, %s, %s, s%d offen sc1" % (v(vKF + 4 if q == 7 and Opt.nd == 2 else vH + 4 * ((p + 3) % 4), 4), v(vL16), srd(SWS), sHOFF))
        if kv: a.e("s_add_u32 m0, s%d, 0x%x" % (sA, L_KV))
        a.e("s_add_u32 s%d, s%d, 0x400" % (sHOFF, sHOFF))
        if kv:
            a.e("buffer_load_dwordx4 %s, %s, s%d offen sc1 lds" % (v(vL16), srd(SKV), sKVOFF))
            a.e("s_add_u32 s%d, s%d, 0x2000" % (sKVOFF, sKVOFF))
        for sg in (hl.get(24 + q, ()) if fin else ()):
            a.e("s_add_u32 s%d, s%d, 0x%x" % (sA, sHOFF, (sg - (16 + q)) * 1024))
            a.e("buffer_load_dwordx4 %s, %s, %s, s%d offen sc1" % (v(vHX if sg == 27 else vH + 4 * (sg - 19), 4), v(vL16), srd(SWS), sA))
        if q == 3:
            a.e("s_sub_u32 s%d, s%d, 1" % (sCNT, sCNT))
            a.e("s_cmp_lg_u32 s%d, 0" % sCNT)
        a.e("s_waitcnt lgkmcnt(0)")
        if A: a.e("s_barrier")
        for x in Yseg(p if q < 8 - Opt.nd else None, toggle=(q == 3), extra=(fin and p < Opt.nx), last=(q == 7)): a.e(x)
        if not A and q < 7: a.e("s_barrier")
        if q == 3: a.e("s_cbranch_scc1 L_loop%s" % role)
    a.e("s_nop 1")

def transition(a, role):
    A = role == "A"
    if A:
        a.vm = []
        a.lab("L_trA")
    else:
        a.lab("L_join")
        a.e("s_cmp_eq_u32 s%d, 0" % sHI)
        a.e("s_cbranch_scc1 L_trA")
        a.vmjoin = list(a.vm)
    def qfin():
        for i in range(4): a.e("v_cvt_pk_bf16_f32 %s, %s, %s" % (v(vQ + i), v(vAQ + 2 * i), v(vAQ + 2 * i + 1)))
        a.e("v_add_u32 %s, 0x%x, %s" % (v(vWOA), L_WO, v(vWDA)))
        a.e("v_permlane16_swap_b32 %s, %s" % (v(vQ), v(vQ + 2)))
        a.e("v_permlane16_swap_b32 %s, %s" % (v(vQ + 1), v(vQ + 3)))
    pre0 = None
    if A:
        a.e("s_setprio 1")
        a.e("s_cmp_ge_u32 s%d, 14" % sM)
        a.e("s_cbranch_scc1 L_nogA0")
        put(a, a.kvA[:1] + a.kvA[-1:])
        a.l.append(".p2align 3")
        for ti in range(Opt.gsc): gelu_tile(a, ti, True)
        a.lab("L_nogA0")
        qfin()
        a.waitvm(["k0", "kv0", "kv1"])
        a.e("s_setprio 0")
        a.e(mfma(vS, vK0, vQ, None))
        a.e("s_barrier")
        put(a, a.kvA[1:-1])
        def pre0():
            a.e("s_cmp_lt_u32 s%d, 14" % sM)
            a.e("s_cbranch_scc1 L_gA1")
            a.e("s_waitcnt vmcnt(0)")
            a.e("s_branch L_nogA1")
            a.l.append(".p2align 3")
            a.lab("L_gA1")
            for ti in range(Opt.gsc, 4): gelu_tile(a, ti)
            a.lab("L_nogA1")
            a.e("s_setprio 2")
    else:
        a.waitvm(["k0", "kv0", "kv1"])
        a.e("s_setprio 1")
        if Opt.hpub == 3:
            a.e("s_cmp_ge_u32 s%d, 14" % sM)
            a.l.append(".p2align 3")
            a.e("s_barrier")
            a.e("s_cbranch_scc1 L_nogB")
        else:
            a.e("s_barrier")
            for u in (2, 3):
                a.vmop("s_add_u32 m0, s%d, 0x%x\ns_add_u32 s%d, s%d, 0x%x\nbuffer_load_dwordx4 %s, %s, s%d offen sc1 lds"
                       % (sWK, L_KV + u * 8192, sA, sWK, u * 8192, v(vL16), srd(SKV), sA), "kv%d" % u)
            a.e("s_cmp_lt_u32 s%d, 14" % sM)
            a.e("s_cbranch_scc1 L_gB")
            a.e("s_waitcnt vmcnt(0)")
            a.e("s_branch L_nogB")
            a.l.append(".p2align 3")
            a.lab("L_gB")
        for ti in range(4): gelu_tile(a, ti)
        a.lab("L_nogB")
        qfin()
        a.e("s_nop 1")
        a.e(mfma(vS, vK0, vQ, None))
        a.stamp(5)
    attention(a, role, pre0)
    if A:
        a.stamp(6); astamp(a, 9); tstamp(a, 2)
        if Opt.diag and Opt.kdiag == 2: a.e("s_waitcnt lgkmcnt(0)")
        a.e(smfmac(vO, vV1L, vS + 24))
        a.e("s_setprio 0")
        a.e("s_cmp_eq_u32 s%d, 0" % sHI)
        a.e("s_nop 9")
        normalise(a, False)
        a.lab("L_fbretA")
        a.e("buffer_store_dwordx4 %s, %s, %s, s%d offen sc1" % (v(vPK, 4), v(vL16), srd(SWS), sOST))
        tstamp(a, 3)
        a.e("s_waitcnt vmcnt(1)")
        tstamp(a, 4)
        a.e("s_barrier")
        a.fetch(a, False)
        a.e("s_branch L_tl2")

def normalise(a, packed):
    t = vT0
    a.e("v_rcp_f32 %s, %s" % (v(t + 2), v(vO + 8)))
    a.e("s_nop 0")
    a.e("v_mul_f32_e64 %s, %s, %s" % (v(t + 2), v(t + 2), v(vGP)))
    if packed:
        for i in range(4): a.e("v_pk_mul_f32 %s, %s, %s op_sel_hi:[1,0]" % (v(vO + 2 * i, 2), v(vO + 2 * i, 2), v(t + 2, 2)))
        for i in range(4):
            a.e("v_pk_fma_f32 %s, %s, 0, %s op_sel_hi:[1,0,%d]" % (v(t, 2), v(vO + 2 * i, 2), v(t, 2) if i else v(vO + 8, 2), 1 if i else 0))
            a.e("v_cvt_pk_bf16_f32 %s, %s, %s" % (v(vPK + i), v(vO + 2 * i), v(vO + 2 * i + 1)))
        a.e("v_fmac_f32 %s, 0, %s" % (v(t), v(t + 1)))
    else:
        t = vO + 8
        for i in range(8): a.e("v_mul_f32 %s, %s, %s" % (v(vO + i), v(vT0 + 2), v(vO + i)))
        for i in range(4):
            a.e("v_fmac_f32 %s, 0, %s" % (v(t), v(vO + 2 * i)))
            a.e("v_cvt_pk_bf16_f32 %s, %s, %s" % (v(vPK + i), v(vO + 2 * i), v(vO + 2 * i + 1)))
            a.e("v_fmac_f32 %s, 0, %s" % (v(t), v(vO + 2 * i + 1)))
    a.e("v_subrev_u32 %s, s%d, %s" % (v(t), sLO_, v(t)))
    a.e("v_cmp_lt_u32 vcc, s%d, %s" % (sRNG, v(t)))
    a.e("s_branch L_fb" if Opt.force_fb else "s_cbranch_vccnz L_fb")

def tail(a):
    a.lab("L_tail")
    a.stamp(6)
    astamp(a, 9)
    if Opt.diag and Opt.kdiag == 2: a.e("s_waitcnt lgkmcnt(0)")
    tstamp(a, 2)
    a.e(smfmac(vO, vV1L, vS + 24))
    wf = [vFR, vFR + 8, vFR + 16]
    HORD = hord()
    def oload(j):
        return "buffer_load_dwordx4 %s, %s, %s, s%d offen offset:%d %s" % (
            v(vS + 4 * j, 4), v(vL16), srd(SWS), sOLD if HORD[j] < 4 else sOLD2, (HORD[j] % 4) * 1024, Opt.old_pol)
    a.oload = oload
    a.e("s_cmp_eq_u32 s%d, 0" % sHI)
    a.e("s_nop 10")
    a.l.append(".p2align 3")
    normalise(a, True)
    a.lab("L_fbret")
    a.e("buffer_store_dwordx4 %s, %s, %s, s%d offen sc1" % (v(vPK, 4), v(vL16), srd(SWS), sOST))
    tstamp(a, 3)
    aw = [vAW0, vWOA + 1, vWOA + 2, vWOA + 3]
    ar = [vAR0, vFLA]
    wo = WOF
    def fetch(o, scale):
        for j in range(8):
            o.e(oload(j))
            if j >= 5:
                for r in wd_reads(wo[j], vWOA, (7 - j) * 8192): o.e(r)
            if scale and j >= 4:
                for i in range(4 * j - 16, 4 * j - 12): o.e("v_mul_f32 %s, %s, %s" % (v(vD + i), v(vGC), v(vD + i)))
    def addrs(a):
        a.e("v_sub_f32 %s, 1.0, %s" % (v(vGC), v(vGC)))
        for j in range(1, 4): a.e("v_xor_b32 %s, %d, %s" % (v(aw[j]), 32 * j, v(aw[0])))
        a.e("v_xor_b32 %s, 16, %s" % (v(ar[1]), v(ar[0])))
        a.e("s_mov_b32 s%d, 0x2000" % sB)
    ol = Asm(); a.ool2 = ol.l
    a.e("s_waitcnt vmcnt(1)")
    tstamp(a, 4)
    a.e("s_barrier")
    a.lab("L_tl2")
    tstamp(a, 5)
    a.fetch = fetch
    fl = collect(addrs)
    slot = [4, 5, 6, 7, 0, 1, 2][Opt.nx:] + ([3] if Opt.nd == 2 else [])
    hreg = lambda sl: vKF + 4 if sl == 2 and Opt.nd == 2 else vH + 4 * sl
    inreg = [(vWX, vHX)] + ([(vWF, vH + 4 * (4 - Opt.nd))] if Opt.nd else [])
    rds = sum((wd_reads(wf[i % 3], vWDA, slot[i] * 8192) for i in range(len(slot))), [])
    done = 4
    for i in range(-len(inreg), len(slot)):
        for c in range(2):
            if i >= 1: a.e("s_waitcnt lgkmcnt(%d)" % (done - (4 * i + 2 * c + 2)))
            a.e(mfma(vD + 16 * c, inreg[i][0] + 4 * c, inreg[i][1], vD + 16 * c) if i < 0 else
                mfma(vD + 16 * c, wf[i % 3] + 4 * c, hreg(slot[i]), vD + 16 * c))
            if i < -1: continue
            if done < len(rds):
                for r in rds[done:done + 2]: a.e(r)
                done += 2
            else:
                put(a, fl[:2]); fl = fl[2:]
    assert not fl
    tstamp(a, 6)
    a.e("s_cbranch_scc0 L_tl3")
    a.l.append(".p2align 3")
    a.e("s_nop 7")
    a.e("s_nop 0")
    for i in range(16): a.e("v_pk_mul_f32 %s, %s, %s op_sel:[0,1] op_sel_hi:[1,1]" % (v(vD + 2 * i, 2), v(vD + 2 * i, 2), v(vGP, 2)))
    tstamp(a, 7)
    a.lab("L_tl4")
    tstamp(a, 8)
    ol.lab("L_tl3")
    ol.e("s_setprio 0")
    fetch(ol, False)
    tstamp(ol, 7)
    for i in range(32): ol.e("v_mul_f32 %s, %s, %s" % (v(vD + i), v(vGC), v(vD + i)))
    ol.e("s_waitcnt lgkmcnt(0)")
    ol.e("s_branch L_tl4")
    a.stamp(7)
    def check(j):
        o = vS + 4 * j
        return ["s_waitcnt vmcnt(%d)" % (7 - j), "v_max3_u32 v2, %s, %s, %s" % (v(o), v(o + 1), v(o + 2)),
                "v_max_u32 v2, v2, %s" % v(o + 3), "v_cmp_eq_u32 vcc, -1, v2"]
    a.check = check
    for x in check(0): a.e(x)
    for j in range(10):
        if j < 8:
            a.e("s_cbranch_vccnz L_ore%d" % j)
            a.lab("L_ook%d" % j)
            a.e(mfma(vD, wo[j], vS + 4 * j, vD))
        if j >= 2 and Opt.cfirst: a.e(mfma(vD + 16, wo[j - 2] + 4, vS + 4 * (j - 2), vD + 16))
        if j < 7:
            for x in check(j + 1): a.e(x)
        if j >= 2 and not Opt.cfirst: a.e(mfma(vD + 16, wo[j - 2] + 4, vS + 4 * (j - 2), vD + 16))
        if j in (7, 8): a.e("s_nop 4")
    wr = lambda c, j: "ds_write_b128 %s, %s offset:%d" % (v(aw[j]), v(vD + 16 * c + 4 * j, 4), 128 * c)
    a.stamp(8)
    tstamp(a, 9)
    for j in range(4): a.e(wr(0, j))
    a.e("s_nop 7")
    for j in range(4): a.e(wr(1, j))
    a.e("s_waitcnt lgkmcnt(0)")
    a.e("s_barrier")
    for p in range(4):
        for h in range(2): a.e(rd128(vS + 8 * p + 4 * h, ar[h], p * 8192))
    for p in range(1, 4):
        a.e("s_waitcnt lgkmcnt(%d)" % (6 - 2 * p))
        for i in range(4): a.e("v_pk_add_f32 %s, %s, %s" % (v(vS + 2 * i, 2), v(vS + 2 * i, 2), v(vS + 8 * p + 2 * i, 2)))
    for i in range(4): a.e("v_cvt_pk_bf16_f32 %s, %s, %s" % (v(vP + i), v(vS + 2 * i), v(vS + 2 * i + 1)))
    a.e("buffer_store_dwordx4 %s, %s, %s, s%d offen %s" % (v(vP, 4), v(vOUTA), srd(SOUT), sOUTO, Opt.out_pol))
    if Opt.probe >= 0:
        a.e("s_waitcnt vmcnt(0)")
        a.stamp(9)
        if Opt.probe != 9:
            a.e("s_cmp_ge_u32 s%d, 14" % sM)
            a.e("s_cbranch_scc%d L_end" % (0 if Opt.probe_l else 1))
        a.e("s_sub_u32 s%d, s%d, s%d" % (sA, sSTAMP + 4, sSTAMP))
        a.e("s_mul_i32 s%d, s%d, %d" % (sA, sA, Opt.probe_mul - 1))
        if Opt.pcyc >= 0:
            a.e("s_sub_u32 s%d, s%d, s%d" % (sA, sSTAMP + 8, sSTAMP + 6))
            if Opt.prt: a.e("s_mul_i32 s%d, s%d, 10" % (sA, sA))
            a.e("s_mov_b32 s%d, s%d" % (sSTAMP + 4, sSTAMP))
        a.e("s_min_u32 s%d, s%d, 100000" % (sA, sA))
        a.e("s_add_u32 s%d, s%d, 3800" % (sA, sA))
        if Opt.probe_r >= 0:
            a.e("s_cmp_eq_u32 s%d, 0x2000" % sB)
            a.e("s_cbranch_scc%d L_end" % Opt.probe_r)
        if Opt.probe_w >= 0:
            a.e("s_cmp_lg_u32 s%d, %d" % (sHI, Opt.probe_w))
            a.e("s_cbranch_scc1 L_end")
        if Opt.probe_x >= 0:
            a.e("s_and_b32 s0, s2, 7")
            a.e("s_cmp_lg_u32 s0, %d" % Opt.probe_x)
            a.e("s_cbranch_scc1 L_end")
        a.lab("L_probe")
        a.e("s_memrealtime s[0:1]")
        a.e("s_waitcnt lgkmcnt(0)")
        a.e("s_sub_u32 s0, s0, s%d" % (sSTAMP + 4))
        a.e("s_cmp_lt_u32 s0, s%d" % sA)
        a.e("s_cbranch_scc1 L_probe")
    if Opt.pin == 9:
        a.e("s_waitcnt vmcnt(0)")
        a.stamp(9)
    if Opt.diag in (1, 2):
        a.e("s_waitcnt vmcnt(0)")
        a.stamp(9)
        a.e("s_mov_b32 s%d, s%d" % (sSTAMP + 3, sSTAMP))
        a.e("s_mov_b32 s%d, s%d" % (sSTAMP, sB))
        a.e("s_getreg_b32 s%d, hwreg(HW_REG_XCC_ID)" % (sSTAMP + 1))
        for i in range(20): a.e("v_mov_b32 %s, s%d" % (v(vS + i), sSTAMP + i))
        a.e("s_lshl_b32 s%d, s2, 3" % sA)
        a.e("s_add_u32 s%d, s%d, s%d" % (sA, sA, sW))
        a.e("s_lshl_b32 s%d, s%d, 7" % (sA, sA))
        a.e("s_add_u32 s%d, s%d, 0x%x" % (sA, sA, WS_STAMP))
        a.e("s_mov_b64 exec, 1")
        for i in range(5): a.e("buffer_store_dwordx4 %s, off, %s, s%d offset:%d" % (v(vS + 4 * i, 4), srd(SWS), sA, 16 * i))
    a.lab("L_end")
    a.e("s_endpgm")
    a.l += a.ool2
    for j in range(8):
        a.lab("L_ore%d" % j)
        a.e("s_sub_u32 s%d, s%d, 1" % (sB, sB))
        a.e("s_cbranch_scc1 L_ogive%d" % j)
        if Opt.rwait: a.e("s_waitcnt vmcnt(0)")
        if Opt.rwait > 1: a.e("s_sleep %d" % Opt.rwait)
        for i in range(j, 8): a.e(a.oload(i))
        for x in a.check(j): a.e(x)
        a.e("s_cbranch_vccnz L_ore%d" % j)
        a.e("s_branch L_ook%d" % j)
        a.lab("L_ogive%d" % j)
        a.e("s_mov_b32 s%d, 0" % sB)
        a.e("s_branch L_ook%d" % j)

def fallback(a):
    a.lab("L_fb")
    m = vT0
    a.e("v_mov_b32 %s, 0xff800000" % v(m))
    a.e("s_mov_b32 s%d, 0" % sA)
    a.lab("L_fb1")
    a.e("buffer_load_dwordx4 %s, %s, %s, s%d offen sc1" % (v(vKF, 4), v(vL16), srd(SKV), sA))
    a.e("s_waitcnt vmcnt(0)")
    a.e(mfma(vS, vKF, vQ, None))
    a.e("s_add_u32 s%d, s%d, 2048" % (sA, sA))
    a.e("s_nop 11")
    for i in range(8): a.e("v_max3_f32 %s, %s, %s, %s" % (v(m), v(m), v(vS + 2 * i), v(vS + 2 * i + 1)))
    a.e("s_cmp_lt_u32 s%d, 0x20000" % sA)
    a.e("s_cbranch_scc1 L_fb1")
    a.e("v_mov_b32 %s, %s" % (v(m + 1), v(m)))
    a.e("s_nop 1")
    a.e("v_permlane32_swap_b32 %s, %s" % (v(m), v(m + 1)))
    a.e("s_nop 1")
    a.e("v_max_f32 %s, %s, %s" % (v(m), v(m), v(m + 1)))
    for i in range(16): a.e("v_sub_f32 %s, 0, %s" % (v(vS + 16 + i), v(m)))
    for i in range(16): a.e("v_mov_b32 %s, 0" % v(vO + i))
    a.e("s_mov_b32 s%d, 0" % sA)
    a.lab("L_fb2")
    a.e("s_add_u32 s%d, s%d, 0x%x" % (sB, sA, 63 * 2048))
    a.e("s_and_b32 s%d, s%d, 0x1ffff" % (sB, sB))
    a.e("buffer_load_dwordx4 %s, %s, %s, s%d offen sc1" % (v(vKF, 4), v(vL16), srd(SKV), sB))
    a.e("s_add_u32 s%d, s%d, 2048" % (sB, sA))
    a.e("s_and_b32 s%d, s%d, 0x1ffff" % (sB, sB))
    a.e("s_mov_b64 exec, %s" % sp(sVM))
    a.e("buffer_load_dwordx4 %s, %s, %s, s%d offen offset:1024 sc1" % (v(vV, 4), v(vL16), srd(SKV), sA))
    a.e("buffer_load_dwordx4 %s, %s, %s, s%d offen offset:1280 sc1" % (v(vV + 4, 4), v(vL16), srd(SKV), sB))
    a.e("s_mov_b64 exec, -1")
    a.e("s_waitcnt vmcnt(0)")
    a.e(mfma(vS, vKF, vQ, vS + 16))
    a.e("s_add_u32 s%d, s%d, 2048" % (sA, sA))
    a.e("s_nop 11")
    for i in range(16): a.e("v_exp_f32 %s, %s" % (v(vS + i), v(vS + i)))
    a.e("s_nop 2")
    a.e(smfmac(vO, vV, vS))
    a.e(smfmac(vO, vV + 4, vS + 8))
    a.e("s_cmp_lt_u32 s%d, 0x20000" % sA)
    a.e("s_cbranch_scc1 L_fb2")
    a.e("s_nop 11")
    a.e("v_rcp_f32 %s, %s" % (v(vT0 + 2), v(vO + 8)))
    a.e("s_cmp_eq_u32 s%d, 0" % sHI)
    a.e("v_mul_f32 %s, %s, %s" % (v(vT0 + 2), v(vT0 + 2), v(vGP)))
    for i in range(8): a.e("v_mul_f32 %s, %s, %s" % (v(vO + i), v(vT0 + 2), v(vO + i)))
    for i in range(4): a.e("v_cvt_pk_bf16_f32 %s, %s, %s" % (v(vPK + i), v(vO + 2 * i), v(vO + 2 * i + 1)))
    for i in range(4): a.e("v_min_u32 %s, -2, %s" % (v(vPK + i), v(vPK + i)))
    a.e("s_cbranch_scc1 L_fbretA")
    a.e("s_branch L_fbret")

def build():
    a = Asm()
    prologue(a)
    phase1_F(a)
    transition(a, "B")
    tail(a)
    a.l += a.ool
    transition(a, "A")
    phase1_L(a)
    fallback(a)
    a.lab("L_codeend")
    for i, x in enumerate(a.l):
        if " sc1" in x and "sc0" not in x and ((Opt.allsc & 1 and "buffer_store" in x) or (Opt.allsc & 2 and "buffer_load" in x)):
            a.l[i] = x.replace(" sc1", " sc0 sc1")
    il = a.l.index("L_light:")
    for i, x in enumerate(a.l):
        if x.endswith(" lds") and "sc1" not in x and " nt" not in x:
            if (Opt.ntx & 4 and (srd(SWD) in x or srd(SWO) in x)) or (Opt.ntx & 8 and i > il):
                a.l[i] = x[:-4] + " nt lds"
    head = open("cdna_kernels/%s.s.ref" % NAME).read().split("\n")
    hdr = [l for l in head if l.startswith(";") and "@launch" not in l and "Override" not in l and "grid=" not in l]
    out = hdr + ["; @launch grid=(256,1,1) block=(512,1,1) lds=%d" % LDS_BYTES,
                 '.amdgcn_target "amdgcn-amd-amdhsa--gfx950"', ".text", ".globl %s_kernel" % NAME, ".p2align 8",
                 ".type %s_kernel,@function" % NAME,
                 ".set CODE_PF_MAX, L_codeend - L_nopf - 4" if Opt.code_pf else "",
                 "%s_kernel:" % NAME]
    out += ["; " + x for x in """One persistent launch, one workgroup per CU (generated by a script), 8 waves = two quartets that alternate on each SIMD.
Stage 1: 14 of every 16 workgroups compute gelu(x Wg) * (x Wu) for 128 tokens x 128 columns plus Q for two heads;
         the other two compute K, V and the mixing gate, publish them (counter in d_debug) and then their own Q.
Stage 2: attention for 128 tokens x 2 heads over all keys, S^T = K Q^T, exp2 in place, P V through sparse MFMAs that
         read the high halves of the fp32 probabilities; a row of ones in the V operand gives the row sums.
         The stand-in maximum is 0: it is accepted only if the row sum lies in [2^-16, 2^100] and every accumulator is
         finite, otherwise the wave redoes its rows with the true maximum (L_fb).
         The down projection of a 64 x 64 output tile runs in the same loop once the producers' flags are seen.
Stage 3: attention outputs are handed over through d_ws (cleared to a mark earlier in this launch), projected,
         mixed with the FFN branch, reduced through LDS and stored.""".split("\n")]
    out += a.l
    out += ['.section .rodata,"a"', ".p2align 6", ".amdhsa_kernel %s_kernel" % NAME,
            "  .amdhsa_next_free_vgpr %d" % NV, "  .amdhsa_next_free_sgpr 102", "  .amdhsa_accum_offset 256",
            "  .amdhsa_group_segment_fixed_size 0", "  .amdhsa_kernarg_size 104", "  .amdhsa_user_sgpr_count 2",
            "  .amdhsa_user_sgpr_kernarg_segment_ptr 1", "  .amdhsa_system_sgpr_workgroup_id_x 1", ".end_amdhsa_kernel", ""]
    return "\n".join(out)

if __name__ == "__main__":
    path = sys.argv[1]
    for kv in sys.argv[2:]:
        k, val = kv.split("=")
        cur = getattr(Opt, k)
        setattr(Opt, k, val if isinstance(cur, str) else type(cur)(int(val)))
    open(path, "w").write(build())
```

```python
import sys, struct, math

NAME = "gated_mix__grouped_kv_mqa__geglu_ffn__prompt"

class Opt:
    diag = 0
    mapmode = 1
    force_fb = False
    allsc = 0
    out_pol = "sc0 sc1"
    code_pf = True
    xrot = 0
    pregap = 0
    oddl = 1
    hlate = 1
    hpub = 3
    rwait = 1
    aearly = 0
    bidle = 1
    old_pol = "sc1"
    ypos0 = "36g"
    ypos1 = "36bg"
    ypos2 = "36cg9"
    nd = 1
    nx = 0
    tpos = 1
    cfirst = 0
    tch = 12
    stch = 0
    spos = 1
    tlb = 14
    olate = 1
    hrot = 0
    tbar = 0
    hord = 1
    cmap = 1
    kqx = 2
    oearly = 8
    conc = 1
    ghx = 1
    qa = "077777"
    qb = "588888"
    npre = 8
    stagger = 1
    rper = 2
    dma1 = 17
    kprio = 0
    dma0 = 8
    npd = 4
    kdiag = 0
    fillpre = 0
    fillper = 5
    gsc = 2
    sched = 0
    xmask = 1
    ntx = 0
    touch = 2
    rotg = 0
    rotm = 0
    startbar = 1
    pvz = 1
    pin = -1
    pin_ns = 60000
    probe = -1
    probe_x = -1
    probe_mul = 10
    probe_w = -1
    probe_r = -1
    pcyc = -1
    prt = 0
    probe_l = 0

def f2u(x): return struct.unpack("<I", struct.pack("<f", x))[0]

WS_KV = 0
WS_G = 128 * 1024
WS_HFLAG = 192 * 1024
WS_OF = 1 << 20
WS_HF = 4 << 20
WS_STAMP = 12 << 20
WS_SIZE = 16 << 20
K1 = 1024
L_G, L_U, L_X, L_WQ = 0, 48 * K1, 96 * K1, 144 * K1
L_QX = 32 * K1
L_WD, L_WO, L_KV = 0, 64 * K1, 128 * K1
L_RED = 96 * K1
LL_X, LL_W, LL_GATE, LL_WQ = 0, 128 * K1, 144 * K1, 128 * K1
LDS_BYTES = 160 * K1

SX, SWG, SWU, SWQ, SWS, SWD, SWO, SOUT, SDBG, SWKV, SGATE, SKV = 4, 8, 12, 16, 20, 24, 28, 32, 36, 40, 44, 64
SWV = 72
sTMPP = 48
sW, sHI, sLO, sG, sM, sT, sCB = 50, 51, 52, 53, 54, 55, 56
sWK = 57
sWH = 58
sVM = 60
sRET = 62
sA, sB, sC, sD = 68, 69, 70, 71
sOFFW, sOFFQ, sCH, sXP = 72, 73, 74, 75
sHOFF, sWDOFF, sKVOFF, sHXO, sCNT = 72, 73, 74, 75, 77
sOUTO, sLO_, sRNG = 59, 81, 75
sOLD2 = 58
sOST, sOLD, sHST = 78, 79, 80
sHST2 = 3
sRX, sRW, sM0B = 40, 41, 42
sKQ = 76
sHP = 81
sSTAMP = 82

def srd(b): return "s[%d:%d]" % (b, b + 3)
def sp(b): return "s[%d:%d]" % (b, b + 1)
def v(b, n=1): return "v%d" % b if n == 1 else "v[%d:%d]" % (b, b + n - 1)

vL16 = 1
vT0, vT1, vT2, vT3 = 2, 3, 4, 5
vGP, vGC = 6, 7
vKVA = 8
vWDA = 9
vWDV = 10
vONE = 11
vZERO = 12
vFLA = 13
vPOLL = 14
vGA = 15
vQ = 16
vK0 = 20
vV1L = 24
vIDX = 28
vAW0, vAR0, vOUTA = 30, 31, 12
vKVB = 29
vP = 32
vV = 40
vO = 56
vD = 72
vACC = 104
vS = 104
vH = 136
vAQ = vP
vF1 = 168
vKF = 168
vWF = 176
vWX = 224
vHX = 232
vPK = 20
WOF = [32, 208, 216, 240, 248, 40, 48, 56]
vWOA = 236
vFR = 184
vLX = 224
vXA = 240
vWA = 244
vQA = 248
vDX, vDG, vDQ = 249, 250, 251
vC0 = 252
vTID = 255
vHA = 254
NV = 256

class Asm:
    def __init__(self):
        self.l = []
        self.vm = []
        self.nstamp = 0
    def e(self, s):
        for x in s.split("\n"):
            x = x.strip()
            if x: self.l.append("    " + x)
    def lab(self, s): self.l.append(s + ":")
    def vmop(self, s, tag):
        self.e(s); self.vm.append(tag)
    def vmn(self, tags):
        if isinstance(tags, str): tags = [tags]
        last = -1
        for i, t in enumerate(self.vm):
            if t in tags: last = i
        return None if last < 0 else len(self.vm) - 1 - last
    def waitvm(self, tags, lgkm=False):
        n = self.vmn(tags)
        if n is None:
            if lgkm: self.e("s_waitcnt lgkmcnt(0)")
            return
        assert n < 64
        self.e("s_waitcnt vmcnt(%d)%s" % (n, " lgkmcnt(0)" if lgkm else ""))
        self.vm = self.vm[len(self.vm) - n:] if n else []
    def wait0(self, lgkm=False):
        self.e("s_waitcnt vmcnt(0)%s" % (" lgkmcnt(0)" if lgkm else "")); self.vm = []
    def stamp(self, i, real=False):
        if Opt.probe == i:
            self.e("s_waitcnt lgkmcnt(0)")
            self.e("s_memrealtime %s" % sp(sSTAMP + 4))
            if Opt.pcyc >= 0: self.e("%s %s" % ("s_memrealtime" if Opt.prt else "s_memtime", sp(sSTAMP + 8)))
            self.e("s_waitcnt lgkmcnt(0)")
        if Opt.pin == i:
            self.nstamp += 1
            self.e("s_waitcnt lgkmcnt(0)")
            self.e("s_cselect_b32 s%d, 1, 0" % (sSTAMP + 5))
            self.lab("L_pin%d" % self.nstamp)
            self.e("s_memrealtime s[0:1]")
            self.e("s_waitcnt lgkmcnt(0)")
            self.e("s_sub_u32 s0, s0, s%d" % sSTAMP)
            self.e("s_cmp_lt_u32 s0, %d" % (Opt.pin_ns // 10))
            self.e("s_cbranch_scc1 L_pin%d" % self.nstamp)
            self.e("s_cmp_lg_u32 s%d, 0" % (sSTAMP + 5))
        if Opt.diag and not Opt.kdiag and (Opt.diag == 1 or i == 9):
            self.e("s_waitcnt lgkmcnt(0)")
            self.e("s_memtime %s" % sp(sSTAMP + 2 * i))
            self.e("s_memrealtime %s" % sp(sRET))
            self.e("s_waitcnt lgkmcnt(0)")
            self.e("s_mov_b32 s%d, s%d" % (sSTAMP + 2 * i + 1, sRET))

def astamp(a, i):
    if Opt.diag and Opt.kdiag == 2: a.e("s_memtime %s" % sp(sSTAMP + 2 * i))

def tstamp(a, i):
    if Opt.diag and Opt.kdiag == 3: a.e("s_memtime %s" % sp(sSTAMP + 2 * i))

def kstamp(a, i):
    if Opt.probe == 18 + i: a.e("s_memrealtime %s" % sp(sSTAMP + 4))
    if Opt.diag and Opt.kdiag == 1: a.e("s_memtime %s" % sp(sSTAMP + 2 * i))

def mfma(d, a, b, c):
    return "v_mfma_f32_32x32x16_bf16 %s, %s, %s, %s" % (v(d, 16), v(a, 4), v(b, 4), "0" if c is None else v(c, 16))
def smfmac(d, a, b):
    return "v_smfmac_f32_32x32x32_bf16 %s, %s, %s, %s" % (v(d, 16), v(a, 4), v(b, 8), v(vIDX))
def mfma16(d, a, b, c):
    return "v_mfma_f32_16x16x32_bf16 %s, %s, %s, %s" % (v(d, 4), v(a, 4), v(b, 4), "0" if c is None else v(c, 4))
def rd128(d, a, off):
    assert 0 <= off < 65536
    return "ds_read_b128 %s, %s offset:%d" % (v(d, 4), v(a), off)
def rdtr(d, a, off):
    assert 0 <= off < 65536
    return "ds_read_b64_tr_b16 %s, %s offset:%d" % (v(d, 2), v(a), off)

def interleave(mf, fill, per=2):
    out = []
    fill = list(fill)
    for i, m in enumerate(mf):
        out.append(m)
        if i < len(mf) - 1:
            out += fill[:per]; fill = fill[per:]
    return out + fill

def srd_words(a, regs):
    sizes = {SX: 2048 * 1024, SWG: 512 * 3584, SWU: 512 * 3584, SWQ: 512 * 1024, SWS: WS_SIZE, SWKV: 16384, SWV: 16384,
             SGATE: 1024, SWD: 1792 * 1024, SWO: 512 * 1024, SOUT: 2048 * 1024, SDBG: 256, SKV: 128 * 1024}
    for reg in regs:
        a.e("s_mov_b32 s%d, 0x%x" % (reg + 2, sizes[reg]))
        a.e("s_mov_b32 s%d, 0x20000" % (reg + 3))

def ptr_loads(a, lst):
    for reg, off in lst: a.e("s_load_dwordx2 %s, s[0:1], %d" % (sp(reg), off))

def prologue(a):
    if Opt.diag or Opt.pin >= 0 or Opt.probe >= 0:
        a.e("s_memrealtime %s" % sp(sSTAMP))
        if Opt.diag in (1, 2): a.e("s_memtime %s" % sp(sSTAMP + 2))
    ptr_loads(a, ((SX, 0), (SWG, 48), (SWU, 56), (SWQ, 8)))
    if Opt.probe == 1: a.stamp(1)
    a.e("v_lshrrev_b32 v2, 6, v0")
    if Opt.code_pf:
        a.e("s_getpc_b64 %s" % sp(sRET))
        a.lab("L_nopf")
        a.e("s_and_b32 s%d, s2, -8" % sA)
        a.e("v_add_lshl_u32 v4, v2, s%d, 7" % sA)
        a.e("v_mov_b32 v5, 0")
        a.e("v_min_u32 v4, CODE_PF_MAX, v4")
        a.e("v_lshl_add_u64 v[4:5], v[4:5], 0, %s" % sp(sRET))
        a.e("global_load_dword %s, v[4:5], off" % v(vPOLL))
    a.e("s_load_dwordx8 s[%d:%d], s[0:1], 64" % (SOUT, SOUT + 7))
    a.e("v_readfirstlane_b32 s%d, v2" % sW)
    ptr_loads(a, ((SWS, 96),) if Opt.diag or Opt.probe >= 0 else ((SWS, 96), (SWO, 32)))
    a.e("s_cmpk_ge_u32 s2, 256")
    a.e("s_cbranch_scc1 L_end")
    if Opt.oddl:
        a.e("s_bfe_u32 s%d, s2, 0x10002" % sD)
        a.e("s_bfe_u32 s%d, s2, 0x30003" % sA)
        a.e("s_lshl3_add_u32 s%d, s%d, s%d" % (sG, sD, sA))
        a.e("s_and_b32 s%d, s2, 3" % sA)
        if Opt.oddl == 2: a.e("s_xor_b32 s%d, s%d, 1" % (sA, sA))
        a.e("s_lshr_b32 s%d, s2, 6" % sB)
        a.e("s_lshl2_add_u32 s%d, s%d, s%d" % (sHP, sA, sB))
        a.e("s_lshr_b32 s%d, s%d, 3" % (sB, sHP))
        a.e("s_sub_u32 s%d, s%d, s%d" % (sM, sHP, sB))
        a.e("s_lshl_b32 s%d, s%d, 10" % (sWK, sW))
        a.e("s_andn2_b32 s%d, 7, s%d" % (sA, sHP))
        a.e("s_cbranch_scc0 L_light")
    else:
        a.e("s_and_b32 s%d, s2, 1" % sD)
        a.e("s_bfe_u32 s%d, s2, 0x30003" % sA)
        a.e("s_lshl3_add_u32 s%d, s%d, s%d" % (sG, sD, sA))
        a.e("s_bfe_u32 s%d, s2, 0x20001" % sA)
        a.e("s_lshr_b32 s%d, s2, 6" % sB)
        a.e("s_lshl2_add_u32 s%d, s%d, s%d" % (sM, sA, sB))
        a.e("s_mov_b32 s%d, s%d" % (sHP, sM))
        a.e("s_lshl_b32 s%d, s%d, 10" % (sWK, sW))
        a.e("s_cmp_ge_u32 s%d, 14" % sM)
        a.e("s_cbranch_scc1 L_light")

def xvoff(a, t):
    a.e("v_lshrrev_b32 v2, 4, %s" % v(t))
    a.e("v_xor_b32 v2, v2, %s" % v(t))
    a.e("v_and_b32 v2, 7, v2")
    a.e("s_lshl_b32 s%d, s%d, 17" % (sA, sG))
    a.e("v_lshl_add_u32 v2, v2, 4, s%d" % sA)
    a.e("v_lshrrev_b32 v3, 3, %s" % v(t))
    a.e("v_lshl_add_u32 %s, v3, 10, v2" % v(vDX))

def setup_ids(a):
    a.e("s_mov_b64 %s, %s" % (sp(SKV), sp(SWS)))
    a.e("s_mov_b64 %s, %s" % (sp(SWD), sp(SOUT)))
    a.e("s_mov_b64 %s, %s" % (sp(SOUT), sp(SOUT + 4)))
    a.e("s_mov_b64 %s, %s" % (sp(SDBG), sp(SOUT + 6)))
    a.e("v_and_b32 v0, 63, v0")
    a.e("v_lshlrev_b32 %s, 4, v0" % v(vL16))
    if Opt.oddl:
        a.e("s_and_b32 s%d, s2, 7" % sA)
        a.e("s_xor_b32 s%d, s%d, 4" % (sA, sA))
    else:
        a.e("s_andn2_b32 s%d, 1, s2" % sA)
        a.e("s_bfe_u32 s%d, s2, 0x20001" % sB)
        a.e("s_lshl2_add_u32 s%d, s%d, s%d" % (sA, sA, sB))
    a.e("s_bfe_u32 s%d, s2, 0x20003" % sB)
    a.e("s_lshl2_add_u32 s%d, s%d, s%d" % (sT, sA, sB))
    a.e("s_lshr_b32 s%d, s2, 5" % sCB)

def setup_rd(a):
    a.e("s_lshr_b32 s%d, s%d, 2" % (sHI, sW))
    a.e("s_and_b32 s%d, s%d, 3" % (sLO, sW))
    a.e("v_and_b32 v2, 15, v0")
    a.e("v_lshrrev_b32 v3, 4, v0")
    a.e("v_bfe_u32 v4, v0, 1, 3")
    a.e("v_xor_b32 v4, v4, v3")
    a.e("v_lshlrev_b32 v4, 4, v4")
    a.e("v_lshl_add_u32 %s, v2, 7, v4" % v(vXA))
    a.e("v_bfe_u32 v2, v0, 2, 2")
    a.e("v_and_b32 v4, 3, v0")
    a.e("v_lshl_add_u32 %s, v3, 3, v2" % v(vQA))
    a.e("v_lshlrev_b32 %s, 6, %s" % (v(vQA), v(vQA)))
    a.e("v_xor_b32 v5, s%d, v3" % sHI)
    a.e("v_and_b32 v5, 1, v5")
    a.e("v_lshl_add_u32 %s, v5, 5, %s" % (v(vQA), v(vQA)))
    a.e("v_lshl_add_u32 %s, v4, 3, %s" % (v(vQA), v(vQA)))

def setup_oclr(a):
    srd_words(a, [SWS, SKV, SDBG])
    a.e("s_mov_b32 s%d, 0xffff" % sVM)
    a.e("s_mov_b32 s%d, 0xffff" % (sVM + 1))
    a.e("s_lshl_b32 s%d, s%d, 2" % (sA, sG))
    a.e("s_add_u32 s%d, s%d, s%d" % (sA, sA, sLO))
    a.e("s_lshl_b32 s%d, s%d, 5" % (sB, sA))
    a.e("s_lshl_b32 s%d, s%d, 1" % (sC, sHP))
    a.e("s_add_u32 s%d, s%d, s%d" % (sB, sB, sC))
    a.e("s_add_u32 s%d, s%d, s%d" % (sB, sB, sHI))
    a.e("s_lshl_b32 s%d, s%d, 10" % (sB, sB))
    a.e("s_add_u32 s%d, s%d, 0x%x" % (sOST, sB, WS_OF))
    for i in range(4): a.e("v_mov_b32 %s, -1" % v(vQ + i))
    a.vmop("buffer_store_dwordx4 %s, %s, %s, s%d offen sc1" % (v(vQ, 4), v(vL16), srd(SWS), sOST), "oclr")
    a.e("v_mov_b32 %s, 1" % v(vONE))
    a.e("v_mov_b32 %s, 0" % v(vZERO))
    a.e("v_and_b32 %s, 31, v0" % v(vGA))
    a.e("v_lshlrev_b32 %s, 2, %s" % (v(vGA), v(vGA)))

def collect(fn):
    t = Asm(); t.marks = {}
    def vmop(s_, tag):
        t.e(s_); t.marks[len(t.l) - 1] = tag
    t.vmop = vmop
    fn(t)
    return [(x, t.marks.get(i)) for i, x in enumerate(t.l)]
def put(a, items):
    for x, tag in items:
        if tag: a.vmop(x, tag)
        else: a.e(x)

def setup_ones(a):
    a.e("s_mov_b32 s%d, 0x110000" % sA)
    a.e("s_mov_b32 s%d, 0x110000" % sB)
    a.e("v_mov_b32 v3, 0x3f803f80")
    a.e("v_cndmask_b32 %s, 0, v3, %s" % (v(vV1L), sp(sA)))
    for i in range(1, 4): a.e("v_mov_b32 %s, %s" % (v(vV1L + i), v(vV1L)))
    for i in range(16): a.e("v_mov_b32 %s, %s" % (v(vV + i), v(vV1L)))

def setup_attn(a):
    srd_words(a, [SWD, SWO, SOUT])
    a.e("s_lshl_b32 s%d, s%d, 2" % (sA, sG))
    a.e("s_add_u32 s%d, s%d, s%d" % (sA, sA, sLO))
    a.e("s_mul_i32 s%d, s%d, 112" % (sB, sA))
    a.e("s_lshl_b32 s%d, s%d, 3" % (sC, sM))
    a.e("s_add_u32 s%d, s%d, s%d" % (sB, sB, sC))
    a.e("s_lshl_b32 s%d, s%d, 2" % (sC, sHI))
    a.e("s_add_u32 s%d, s%d, s%d" % (sB, sB, sC))
    a.e("s_and_b32 s%d, s%d, 1" % (sC, sLO))
    a.e("s_lshl_b32 s%d, s%d, 1" % (sC, sC))
    a.e("s_add_u32 s%d, s%d, s%d" % (sB, sB, sC))
    a.e("s_lshl_b32 s%d, s%d, 10" % (sB, sB))
    a.e("s_add_u32 s%d, s%d, 0x%x" % (sHST, sB, WS_HF))
    a.e("s_mul_i32 s%d, s%d, %d" % (sC, sC, 112 * 1024))
    a.e("s_sub_u32 s%d, %d, s%d" % (sC, 112 * 1024, sC))
    a.e("s_add_u32 s%d, s%d, s%d" % (sHST2, sHST, sC))
    a.e("v_bfe_u32 v2, v0, 2, 2")
    a.e("v_lshrrev_b32 v3, 5, v0")
    a.e("v_lshl_add_u32 v2, v3, 2, v2")
    a.e("v_lshlrev_b32 v2, 6, v2")
    a.e("v_bfe_u32 v3, v0, 4, 1")
    a.e("v_lshl_add_u32 v2, v3, 5, v2")
    a.e("v_and_b32 v3, 3, v0")
    a.e("v_lshl_add_u32 v2, v3, 3, v2")
    a.e("s_lshr_b32 s%d, s%d, 1" % (sA, sW))
    a.e("s_lshl_b32 s%d, s%d, 11" % (sA, sA))
    a.e("v_add_u32 %s, s%d, v2" % (v(vWDA), sA))
    a.e("v_add_u32 %s, 0x%x, %s" % (v(vKVA), L_KV, v(vL16)))
    a.e("v_add_u32 %s, 0x%x, %s" % (v(vKVB), L_KV + 0x4000, v(vL16)))
    a.e("v_bfe_u32 v2, v0, 2, 3")
    a.e("v_lshlrev_b32 v2, 10, v2")
    a.e("v_lshrrev_b32 v3, 5, v0")
    a.e("v_lshl_add_u32 v2, v3, 6, v2")
    a.e("v_and_b32 v3, 3, v0")
    a.e("v_lshl_add_u32 v2, v3, 4, v2")
    a.e("s_lshl_b32 s%d, s%d, 7" % (sB, sCB))
    a.e("v_add_u32 %s, s%d, v2" % (v(vWDV), sB))
    a.e("v_min_u32 v2, 13, v0")
    a.e("v_lshlrev_b32 v2, 7, v2")
    a.e("s_lshr_b32 s%d, s%d, 1" % (sA, sT))
    a.e("s_lshl_b32 s%d, s%d, 11" % (sA, sA))
    a.e("s_add_u32 s%d, s%d, 0x%x" % (sA, sA, WS_HFLAG))
    a.e("v_add_u32 %s, s%d, v2" % (v(vFLA), sA))
    a.e("s_lshl_b32 s%d, s%d, 1" % (sA, sT))
    a.e("s_and_b32 s%d, s%d, 1" % (sB, sW))
    a.e("s_add_u32 s%d, s%d, s%d" % (sA, sA, sB))
    a.e("s_lshl_b32 s%d, s%d, 15" % (sB, sA))
    a.e("s_lshr_b32 s%d, s%d, 1" % (sKQ, sW))
    if Opt.kqx == 2:
        a.e("s_and_b32 s%d, s%d, 2" % (sKQ, sW))
        a.e("s_add_u32 s%d, s%d, s%d" % (sKQ, sKQ, sHI))
    if Opt.kqx == 1:
        a.e("s_lshl_b32 s%d, s%d, 1" % (sC, sCB))
        a.e("s_and_b32 s%d, s%d, 2" % (sC, sC))
        a.e("s_xor_b32 s%d, s%d, s%d" % (sKQ, sKQ, sC))
    a.e("s_lshl_b32 s%d, s%d, 13" % (sC, sKQ))
    a.e("s_add_u32 s%d, s%d, s%d" % (sB, sB, sC))
    a.e("s_add_u32 s%d, s%d, 0x%x" % (sOLD, sB, WS_OF))
    a.e("v_and_b32 v2, 31, v0")
    a.e("v_lshrrev_b32 v3, 5, v0")
    a.e("v_and_b32 v4, 7, v0")
    a.e("v_xor_b32 v3, v3, v4")
    a.e("v_lshlrev_b32 v3, 4, v3")
    a.e("v_lshl_add_u32 v3, v2, 8, v3")
    a.e("s_and_b32 s%d, s%d, 1" % (sB, sW))
    a.e("s_lshl_b32 s%d, s%d, 15" % (sB, sB))
    a.e("s_lshr_b32 s%d, s%d, 1" % (sC, sW))
    a.e("s_lshl_b32 s%d, s%d, 13" % (sD, sC))
    a.e("s_add_u32 s%d, s%d, s%d" % (sOUTO, sD, sB))
    a.e("s_add_u32 s%d, s%d, 0x%x" % (sD, sOUTO, L_RED))
    a.e("v_add_u32 %s, s%d, v3" % (v(vAW0), sD))
    a.e("v_lshrrev_b32 v2, 3, v0")
    a.e("v_lshlrev_b32 v3, 1, v4")
    a.e("v_xor_b32 v3, v3, v2")
    a.e("v_lshlrev_b32 v3, 4, v3")
    a.e("v_lshl_add_u32 v3, v2, 8, v3")
    a.e("s_lshl_b32 s%d, s%d, 11" % (sD, sC))
    a.e("s_add_u32 s%d, s%d, s%d" % (sD, sD, sB))
    a.e("s_add_u32 s%d, s%d, 0x%x" % (sD, sD, L_RED))
    a.e("v_add_u32 %s, s%d, v3" % (v(vAR0), sD))
    a.e("v_lshlrev_b32 v4, 4, v4")
    a.e("v_lshl_add_u32 %s, v2, 10, v4" % v(vOUTA))
    a.e("s_lshl_b32 s%d, s%d, 16" % (sC, sT))
    a.e("s_add_u32 s%d, s%d, s%d" % (sOUTO, sOUTO, sC))
    a.e("s_lshl_b32 s%d, s%d, 7" % (sC, sCB))
    a.e("s_add_u32 s%d, s%d, s%d" % (sOUTO, sOUTO, sC))
    a.e("v_mov_b32 %s, 0xdddd" % v(vIDX))
    a.e("v_lshrrev_b32 v2, 4, v0")
    a.e("v_lshl_add_u32 %s, v2, 8, %s" % (v(vHA), v(vL16)))
    for i in range(16): a.e("v_mov_b32 %s, 0" % v(vO + i))
    for i in range(32): a.e("v_mov_b32 %s, 0" % v(vD + i))
    c0 = -2.0 * math.sqrt(2.0 / math.pi) * math.log2(math.e)
    a.e("v_mov_b32 %s, 0x%x" % (v(vC0), f2u(c0)))
    a.e("v_mov_b32 %s, 0x%x" % (v(vC0 + 1), f2u(c0 * 0.044715)))

def kv_first_loads(a, quartet=False):
    it = []
    for o in (range(0, 16384, 4096) if quartet else range(0, 16384, 8192)):
        b = sWH if quartet else sWK
        it.append(("s_add_u32 m0, s%d, 0x%x\ns_add_u32 s%d, s%d, 0x%x\nbuffer_load_dwordx4 %s, %s, s%d offen sc1 lds"
                   % (b, L_KV + o, sA, b, o, v(vL16), srd(SKV), sA), "kv%d" % (o >> 13)))
    it.append(("s_mov_b32 s%d, 0x%x\nbuffer_load_dwordx4 %s, %s, %s, s%d offen sc1"
               % (sA, 63 * 2048, v(vK0, 4), v(vL16), srd(SKV), sA), "k0"))
    it.append(("s_mov_b64 exec, %s\nbuffer_load_dwordx4 %s, %s, %s, 0 offen offset:%d sc1\ns_mov_b64 exec, -1"
               % (sp(sVM), v(vV1L, 4), v(vL16), srd(SKV), 1024 + 256), "k0"))
    it.append(("s_lshl_b32 s%d, s%d, 2\ns_add_u32 s%d, s%d, s%d\ns_lshl_b32 s%d, s%d, 7\ns_add_u32 s%d, s%d, 0x%x\n"
               "buffer_load_dword %s, %s, %s, s%d offen sc1"
               % (sA, sG, sA, sA, sLO, sA, sA, sA, sA, WS_G, v(vGP), v(vGA), srd(SWS), sA), "k0"))
    it.append(("s_lshl_b32 s%d, s%d, 1\ns_and_b32 s%d, s%d, 1\ns_add_u32 s%d, s%d, s%d\ns_lshl_b32 s%d, s%d, 7\ns_add_u32 s%d, s%d, 0x%x\n"
               "buffer_load_dword %s, %s, %s, s%d offen sc1"
               % (sA, sT, sB, sW, sA, sA, sB, sA, sA, sA, sA, WS_G, v(vGC), v(vGA), srd(SWS), sA), "k0"))
    return it

def spin_counter(a, name, first_loaded, wave=0):
    a.e("s_cmp_lg_u32 s%d, %d" % (sW, wave))
    a.e("s_cbranch_scc1 L_%s_done" % name)
    a.e("s_mov_b32 s%d, 0x4000" % sB)
    if first_loaded: a.e("s_branch L_%s_chk" % name)
    a.lab("L_%s_re" % name)
    a.e("buffer_load_dword %s, off, %s, 0 sc1" % (v(vPOLL), srd(SDBG)))
    a.e("s_waitcnt vmcnt(0)")
    a.lab("L_%s_chk" % name)
    a.e("v_readfirstlane_b32 s%d, %s" % (sA, v(vPOLL)))
    a.e("s_cmp_ge_u32 s%d, 32" % sA)
    a.e("s_cbranch_scc1 L_%s_done" % name)
    a.e("s_sleep 4")
    a.e("s_sub_u32 s%d, s%d, 1" % (sB, sB))
    a.e("s_cmp_lg_u32 s%d, 0" % sB)
    a.e("s_cbranch_scc1 L_%s_re" % name)
    a.lab("L_%s_done" % name)

def phase1_F(a):
    SCHED = {1: ["01423567", "10253467", "23016457", "32104756"],
             2: ["02134657", "01324576", "10243567", "10235467"],
             3: ["01324657", "01243576", "12035467", "20134567"],
             5: ["01243567", "10325467", "23014657", "32104576"],
             6: ["01243567", "10325467", "01234657", "10324576"],
             7: ["01234567", "10235476", "01234567", "10235476"],
             8: ["01234567", "10243657", "01234567", "10243657"],
             4: ["02143657", "10325476", "02143657", "10325476"]}
    tabs = SCHED[Opt.sched] if Opt.sched else ["".join(str(c ^ (p & Opt.xmask)) for c in range(8)) for p in range(4)]
    for t_ in tabs: assert sorted(t_) == list("01234567")
    num = [int(t_[::-1], 16) for t_ in tabs]
    def table(a):
        a.e("s_add_u32 s%d, s%d, s%d" % (sA, sG, sHP))
        a.e("s_mov_b32 s%d, 0x%x" % (sXP, num[0]))
        a.e("s_mov_b32 s%d, 0x%x" % (sB, num[2]))
        a.e("s_bitcmp1_b32 s%d, 0" % sA)
        a.e("s_cselect_b32 s%d, 0x%x, s%d" % (sXP, num[1], sXP))
        a.e("s_cselect_b32 s%d, 0x%x, s%d" % (sB, num[3], sB))
        a.e("s_bitcmp1_b32 s%d, 1" % sA)
        a.e("s_cselect_b32 s%d, s%d, s%d" % (sXP, sB, sXP))
        if Opt.ghx:
            a.e("s_bitcmp1_b32 s%d, 3" % sG)
            a.e("s_cselect_b32 s%d, 0x44444444, 0" % sB)
            a.e("s_xor_b32 s%d, s%d, s%d" % (sXP, sXP, sB))
    fo, fw = {"0000": (0, 0), "0101": (0, 1), "0011": (1, 1), "0123": (0, 2)}["".join(t_[0] for t_ in tabs)]
    a.e("s_add_u32 s%d, s%d, s%d" % (sA, sG, sHP))
    a.e("s_bfe_u32 s%d, s%d, 0x%x" % (sCH, sA, fw << 16 | fo))
    if Opt.ghx: a.e("s_lshl2_add_u32 s%d, s%d, s%d" % (sCH, sD, sCH))
    a.e("s_and_b32 s%d, s%d, 0xc00" % (sWH, sWK))
    a.e("v_and_b32 %s, 0xff, v0" % v(vTID))

    def wvoff(a):
        a.e("v_lshrrev_b32 v2, 4, %s" % v(vTID))
        a.e("v_lshrrev_b32 v3, 5, %s" % v(vTID))
        a.e("v_bfi_b32 v3, 3, v2, v3")
        a.e("v_lshlrev_b32 v3, 1, v3")
        a.e("v_xor_b32 v3, v3, %s" % v(vTID))
        a.e("v_and_b32 v3, 15, v3")
        a.e("s_lshl_b32 s%d, s%d, 8" % (sA, sM))
        a.e("v_lshl_add_u32 v3, v3, 4, s%d" % sA)
        a.e("v_mul_u32_u24 v2, 3584, v2")
        a.e("v_add_u32 %s, v2, v3" % v(vDG))
    def qvoff(a):
        a.e("v_lshrrev_b32 v2, 4, %s" % v(vTID))
        a.e("v_and_b32 v2, 2, v2")
        a.e("v_xor_b32 v2, v2, %s" % v(vTID))
        a.e("v_and_b32 v2, 3, v2")
        a.e("s_lshl_b32 s%d, s%d, 6" % (sA, sHP))
        a.e("v_lshl_add_u32 v2, v2, 4, s%d" % sA)
        a.e("v_lshrrev_b32 v3, 2, %s" % v(vTID))
        a.e("v_lshl_add_u32 %s, v3, 10, v2" % v(vDQ))
    def stouch(a):
        if Opt.diag or Opt.probe >= 0: a.e("s_load_dwordx2 %s, s[0:1], 32" % sp(SWO))
        if not Opt.stch: return
        a.e("s_lshr_b32 s%d, s%d, 2" % (sA, sW))
        if Opt.ghx: a.e("s_lshl2_add_u32 s%d, s%d, s%d" % (sA, sD, sA))
        a.e("s_lshl_b32 s%d, s%d, 6" % (sA, sA))
        a.e("s_and_b32 s%d, s%d, 7" % (sB, sG))
        a.e("s_add_u32 s%d, s%d, s%d" % (sA, sA, sB))
        a.e("s_mul_i32 s%d, s%d, 28" % (sA, sA))
        a.e("s_bfe_u32 s%d, s%d, 0x10001" % (sB, sW))
        a.e("s_lshl1_add_u32 s%d, s%d, s%d" % (sB, sM, sB))
        a.e("s_add_u32 s%d, s%d, s%d" % (sA, sA, sB))
        a.e("s_lshl_b32 s%d, s%d, 7" % (sA, sA))
        a.e("s_bitcmp1_b32 s%d, 0" % sW)
        a.e("s_cselect_b64 %s, %s, %s" % (sp(SWKV), sp(SWU), sp(SWG)))
        a.e("s_add_u32 s%d, s%d, s%d" % (SWKV, SWKV, sA))
        a.e("s_addc_u32 s%d, s%d, 0" % (SWKV + 1, SWKV + 1))
        for i in range(Opt.stch):
            a.e("s_load_dwordx2 %s, %s, 0x%x" % (sp(sTMPP), sp(SWKV), 128 * 3584 + i * 8 * 3584 + 60))
    def wsrd(a):
        srd_words(a, [SWG])
        a.e("s_mov_b64 %s, %s" % (sp(SWU + 2), sp(SWG + 2)))

    if Opt.hrot:
        ORDER = [("q", 0)] + [(t_, 2 * h_ + j) for h_ in range(2) for t_, j in (("x", 0), ("x", 1), ("g", 0), ("u", 0), ("g", 1), ("u", 1))]
    else:
        ORDER = [("q", 0)] + [("x", j) for j in range(4)] + [(t_, j) for j in range(4) for t_ in "gu"]
    def block(items):
        out = []; lastc = None; lastw = None
        for c, kind, j in items:
            s = c % 3; pre = []
            if c != lastc:
                if c: pre.append("s_bfe_u32 s%d, s%d, 0x%x" % (sCH, sXP, 0x30000 + 4 * c))
                lastc = c; lastw = None
            fam = "w" if kind in "gu" else kind
            rot = Opt.hrot and fam != "q"
            if lastw is None or lastw[0] != fam or (rot and lastw[1] >> 1 != j >> 1):
                pre.append({"q": "s_lshl_b32 s%d, s%d, 16" % (sOFFW, sCH), "x": "s_lshl_b32 s%d, s%d, 7" % (sOFFW, sCH),
                            "w": "s_mul_i32 s%d, s%d, %d" % (sOFFW, sCH, 64 * 3584)}[fam])
                if rot: pre.append("s_%s_u32 s%d, s%d, s%d" % ("sub" if j >> 1 else "add", sOFFW, sOFFW, sRX if fam == "x" else sRW))
                lastw = (fam, 0)
            if lastw[1] != j:
                pre.append("s_add_u32 s%d, s%d, 0x%x" % (sOFFW, sOFFW, (j - lastw[1]) * (0x8000 if fam == "x" else 16 * 3584)))
                lastw = (fam, j)
            m0c, vo, rs = {"q": (L_WQ + s * 4096, vDQ, SWQ), "x": (L_X + s * 16384 + j * 4096, vDX, SX),
                           "g": (L_G + s * 16384 + j * 4096, vDG, SWG), "u": (L_U + s * 16384 + j * 4096, vDG, SWU)}[kind]
            nt = " nt" if Opt.ntx & (1 if rs == SX else 2) else ""
            out.append(("s_add_u32 m0, s%d, 0x%x\n%s\nbuffer_load_dwordx4 %s, %s, s%d offen%s lds"
                        % ((sM0B + (j >> 1)) if rot else sWH, m0c, "\n".join(pre) or "s_nop 0", v(vo), srd(rs), sOFFW, nt), "c%d" % c))
        return out
    def part(c, role): return [(c, k_, j) for k_, j in ORDER if (k_ in "gu") == (role == "A")]

    def rdsetup(a):
        setup_rd(a)
        a.e("v_lshl_add_u32 %s, v3, 3, v2" % v(vWA))
        a.e("v_lshlrev_b32 %s, 8, %s" % (v(vWA), v(vWA)))
        a.e("v_lshl_add_u32 %s, v4, 3, %s" % (v(vWA), v(vWA)))
        a.e("v_and_b32 v5, 1, v3")
        a.e("v_lshl_add_u32 v2, v5, 2, v2")
        a.e("s_lshl_b32 s%d, s%d, 2" % (sA, sHI))
        a.e("s_and_b32 s%d, s%d, 1" % (sB, sLO))
        a.e("s_lshl_b32 s%d, s%d, 1" % (sB, sB))
        a.e("s_add_u32 s%d, s%d, s%d" % (sA, sA, sB))
        a.e("v_xor_b32 v2, s%d, v2" % sA)
        a.e("v_lshl_add_u32 %s, v2, 5, %s" % (v(vWA), v(vWA)))
        a.e("v_xor_b32 %s, 32, %s" % (v(vWA + 1), v(vWA)))
        a.e("v_add_u32 %s, 0x%x, %s" % (v(vWA + 2), L_U - L_G, v(vWA)))
        a.e("v_add_u32 %s, 0x%x, %s" % (v(vWA + 3), L_U - L_G, v(vWA + 1)))
        a.e("s_lshl_b32 s%d, s%d, 12" % (sA, sLO))
        a.e("s_add_u32 s%d, s%d, 0x%x" % (sA, sA, L_X))
        a.e("v_add_u32 %s, s%d, %s" % (v(vXA), sA, v(vXA)))
        a.e("v_xor_b32 %s, 0x1000, %s" % (v(vXA + 1), v(vXA)))
        a.e("v_xor_b32 %s, 64, %s" % (v(vXA + 2), v(vXA)))
        a.e("v_xor_b32 %s, 64, %s" % (v(vXA + 3), v(vXA + 1)))
        a.e("v_add_u32 %s, 0x%x, %s" % (v(vQA), L_WQ, v(vQA)))

    a.e("s_cmp_ge_u32 s%d, 4" % sW)
    a.e("s_cbranch_scc1 L_setB")
    late = collect(setup_oclr) + collect(setup_ones) + [("; later", None)] + collect(setup_attn)
    words = collect(lambda t: srd_words(t, [SWS, SKV, SDBG, SWD, SWO, SOUT]))
    late = [x for x in late if x not in words]
    oclr = [x for x in late if x[1] == "oclr"]
    if Opt.olate: late = [x for x in late if x[1] != "oclr"]
    else: oclr = []
    words += [("v_mov_b32 %s, 0" % v(r_), None) for r_ in (vGA, vWDV, vFLA, vHA, vOUTA)]
    st = collect(rdsetup) + words + late[:Opt.fillpre]
    cut = late.index(("; later", None)) if Opt.bidle else len(late)
    fills = {"A": late[Opt.fillpre:], "B": late[Opt.fillpre:max(cut, Opt.fillpre)]}
    idleB = late[max(cut, Opt.fillpre):]
    vms = {}
    wsrd(a); wvoff(a)
    a.e("s_waitcnt lgkmcnt(0)")
    a.stamp(2)
    if Opt.spos == 0: stouch(a)
    put(a, block(part(0, "A")))
    a.e("s_branch L_setA")
    vms["A"] = a.vm; a.vm = []
    a.lab("L_setB")
    srd_words(a, [SX]); xvoff(a, vTID)
    a.e("s_waitcnt lgkmcnt(0)")
    a.stamp(2)
    if Opt.spos == 0: stouch(a)
    put(a, block(part(0, "B")[1:]))
    srd_words(a, [SWQ]); qvoff(a)
    put(a, block(part(0, "B")[:1]))
    vms["B"] = a.vm
    for role in "BA":
        a.vm = vms[role]
        if role == "A": a.lab("L_setA")
        if Opt.spos == 1: stouch(a)
        table(a)
        setup_ids(a)
        if role == "A": srd_words(a, [SX, SWQ])
        else: wsrd(a)
        def touches():
            tm = sum(0xff << (8 * i) for i in range(4) if Opt.tch >> i & 1)
            setex = "s_bitcmp1_b32 s%d, 3\ns_cselect_b32 exec_lo, 0, 0x%x\ns_cselect_b32 exec_hi, 0x%x, 0" % (sG, tm, tm) if Opt.ghx \
                    else "s_mov_b32 exec_lo, 0x%x\ns_mov_b32 exec_hi, 0" % tm
            if Opt.tlb & 2 and role == "B":
                a.e("s_and_b32 s%d, s%d, 7" % (sA, sG))
                a.e("v_lshl_add_u32 v2, v0, 3, s%d" % sA)
                a.e("v_mul_u32_u24 v3, 3584, v2")
                a.e("s_and_b32 s%d, s%d, 1" % (sB, sW))
                a.e("s_lshl1_add_u32 s%d, s%d, s%d" % (sA, sM, sB))
                a.e("s_lshl_b32 s%d, s%d, 7" % (sA, sA))
                a.e(setex)
                a.e("s_cmp_ge_u32 s%d, 6" % sW)
                a.e("s_cbranch_scc1 L_tlbu")
                a.e("buffer_load_dword %s, v3, %s, s%d offen" % (v(vPOLL), srd(SWG), sA))
                a.e("s_branch L_tlbe")
                a.lab("L_tlbu")
                a.e("buffer_load_dword %s, v3, %s, s%d offen" % (v(vPOLL), srd(SWU), sA))
                a.lab("L_tlbe")
                a.e("s_mov_b64 exec, -1")
                a.vm.append("tlb")
            if Opt.tlb & 12 and role == "A":
                a.e("s_cmp_lg_u32 s%d, 0" % sW)
                a.e("s_cbranch_scc1 L_tlbx")
                a.e("s_and_b32 s%d, s%d, 7" % (sA, sG))
                a.e("v_lshl_add_u32 v2, v0, 3, s%d" % sA)
                a.e("v_lshlrev_b32 v3, 10, v2")
                a.e("s_lshl_b32 s%d, s%d, 6" % (sA, sHP))
                a.e(setex if Opt.tlb & 4 else "s_mov_b64 exec, 1")
                a.e("buffer_load_dword %s, v3, %s, s%d offen" % (v(vPOLL), srd(SWQ), sA))
                a.e("s_branch L_tlby")
                a.lab("L_tlbx")
                a.e("s_and_b32 s%d, s%d, 3" % (sA, sHP))
                a.e("s_lshl2_add_u32 s%d, s%d, s%d" % (sA, sG, sA))
                a.e("s_lshl_b32 s%d, s%d, 15" % (sA, sA))
                a.e("v_lshl_add_u32 v3, v0, 10, s%d" % sA)
                a.e("s_lshr_b32 s%d, s%d, 3" % (sA, sG))
                a.e("s_lshl2_add_u32 s%d, s%d, s%d" % (sA, sA, sW) if Opt.ghx else "s_mov_b32 s%d, s%d" % (sA, sW))
                a.e("s_lshl_b32 s%d, s%d, 7" % (sA, sA))
                a.e("s_bitcmp1_b32 %d, s%d" % (Opt.tch if Opt.tlb & 8 else 0, sW))
                a.e("s_cselect_b32 exec_lo, -1, 1")
                a.e("s_mov_b32 exec_hi, 0")
                a.e("buffer_load_dword %s, v3, %s, s%d offen" % (v(vPOLL), srd(SX), sA))
                a.lab("L_tlby")
                a.e("s_mov_b64 exec, -1")
                a.vm.append("tlb")
        if Opt.tpos == 0: touches()
        if Opt.startbar: a.e("s_barrier")
        npre = min(Opt.npre, 8) if role == "A" else 5
        pn = block(part(1, role)[:npre])
        rest = st + (collect(qvoff) + collect(lambda t: xvoff(t, vTID)) if role == "A" else collect(wvoff))
        gap = len(rest) // (npre + Opt.pregap) + 1
        if Opt.tpos == 2:
            put(a, pn); touches(); npre = 0
        if Opt.tpos == 3 and role == "B":
            put(a, pn); touches(); npre = 0
        for i in range(npre):
            put(a, pn[:1]); pn = pn[1:]
            put(a, rest[:gap]); rest = rest[gap:]
        put(a, rest)
        if Opt.tpos == 1 or (Opt.tpos == 3 and role == "A"): touches()
        a.e("s_mov_b64 vcc, %d" % (-1 if role == "A" else 0))
        if role == "A":
            a.waitvm("c0", lgkm=True)
        else:
            a.e("s_setprio 1")
            a.waitvm("c0", lgkm=True)
            a.e("s_branch L_k0")
        vms[role] = a.vm
    stream = part(1, "A")[min(Opt.npre, 8):] + [(c, k_, j) for c in range(2, 8) for k_, j in ORDER]
    qa = [int(x, 16) for x in Opt.qa]; qb = [int(x, 16) for x in Opt.qb]
    def take(n, cmax):
        m = 0
        while m < n and m < len(stream) and stream[m][0] <= cmax: m += 1
        r_ = stream[:m]; del stream[:m]
        return block(r_)
    a.lab("L_k0")
    a.vm = vms["A"]
    ool = Asm()
    def dmablock(name, role, items, wait=None):
        a.e("s_cbranch_vcc%s L_%s" % ("nz" if role == "A" else "z", name))
        if wait: a.waitvm(wait, lgkm=True)
        a.lab("L_%s_r" % name)
        ool.lab("L_%s" % name)
        ool.vm = a.vm if role == "A" else vms["B"]
        for it_ in items:
            put(ool, [it_])
            fp = Opt.fillper if role == "A" or not Opt.bidle else 2
            put(ool, fills[role][:fp]); fills[role] = fills[role][fp:]
        if name in ("d7", "e7"): put(ool, fills[role]); fills[role] = []
        if wait: ool.waitvm(wait, lgkm=True)
        if role == "B": vms["B"] = ool.vm
        ool.e("s_branch L_%s_r" % name)
    a.ool = ool.l

    def fr(k):
        b = vF1 + 36 * (k % 2)
        return dict(x=b, w=b + 16, q=b + 32)
    def reads(k):
        c, s = divmod(k, 2); f = fr(k); sl = c % 3
        wo = sl * 16384 + s * 8192
        W = lambda i: [rdtr(f['w'] + 4 * i, vWA + i, wo), rdtr(f['w'] + 4 * i + 2, vWA + i, wo + 1024)]
        X = [rd128(f['x'] + 4 * b, vXA + 2 * s + (b >> 1), sl * 16384 + (b & 1) * 2048) for b in range(4)]
        return W(0) + X + W(2) + W(1) + W(3) + [rdtr(f['q'], vQA, sl * 4096 + s * 2048), rdtr(f['q'] + 2, vQA, sl * 4096 + s * 2048 + 256)]
    a.e("s_barrier")
    a.stamp(3)
    if Opt.kdiag or Opt.probe >= 18:
        kstamp(a, 2)
        a.e("s_waitcnt lgkmcnt(0)")
    for r in reads(0): a.e(r)
    if qa[0]: dmablock("d2", "A", take(qa[0], 2))
    for k in range(16):
        c, s = divmod(k, 2); f = fr(k)
        z = lambda x: None if k == 0 else x
        mf = []
        for n_, i in enumerate((0, 2, 1, 3)):
            for b in (range(4) if n_ % 2 == 0 else range(3, -1, -1)):
                d = vACC + 16 * b + 4 * i
                mf.append(mfma16(d, f['w'] + 4 * i, f['x'] + 4 * b, z(d)))
        for b in range(2): mf.append(mfma16(vAQ + 4 * b, f['q'], f['x'] + 4 * b, z(vAQ + 4 * b)))
        rds = reads(k + 1) if k < 15 else []
        if s == 0:
            a.e("s_waitcnt lgkmcnt(6)")
            for i, m in enumerate(mf):
                if i == 8: a.e("s_waitcnt lgkmcnt(8)")
                a.e(m)
                if i < len(rds): a.e(rds[i])
            continue
        a.e("s_waitcnt lgkmcnt(8)")
        for m in mf[:4]: a.e(m)
        if c <= 5:
            dmablock("e%d" % (c + 2), "B", take(qb[c], c + 2), "c%d" % (c + 1))
            assert not any(x[0] <= c + 1 for x in stream)
        if c == 7:
            a.e("s_waitcnt lgkmcnt(0)")
        elif c == 6:
            a.e("s_waitcnt lgkmcnt(0)")
            a.e("s_cbranch_vccz L_st7")
            a.e("s_setprio 1")
            a.e("s_waitcnt vmcnt(0)")
            a.e("s_barrier")
            a.lab("L_st7")
        else:
            a.e("s_barrier")
        if c < 7 and ((Opt.kdiag == 1 and Opt.diag) or Opt.probe == 21 + c):
            kstamp(a, 3 + c)
            a.e("s_waitcnt lgkmcnt(0)")
        if c + 3 < 8:
            items = take(qa[c + 1], c + 3)
            dmablock("d%d" % (c + 3), "A", items)
        for i, m in enumerate(mf[4:]):
            a.e(m)
            if i < len(rds): a.e(rds[i])
        if k == 11: assert not stream and not fills["A"] and not fills["B"]
        if k == 11:
            a.e("s_cbranch_vccnz L_st6")
            a.e("s_setprio 0")
            nm = next((i for i, x in enumerate(idleB) if "0xdddd" in x[0]), 0)
            a.e("s_cmp_lg_u32 s%d, 4" % sW)
            a.e("s_cbranch_scc1 L_nopoll")
            a.e("buffer_load_dword %s, off, %s, 0 sc1" % (v(vPOLL), srd(SDBG)))
            a.lab("L_nopoll")
            put(a, idleB[:nm]); idleB = idleB[nm:]
            a.wait0()
            spin_counter(a, "kvf", True, 4)
            a.e("s_barrier")
            put(a, kv_first_loads(a, True) + oclr + idleB)
            a.lab("L_st6")
    a.kvA = (kv_first_loads(a) + oclr)[2:]
    a.stamp(4)

def phase1_L(a):
    a.lab("L_light")
    a.vm = []
    if Opt.oddl: a.e("s_add_u32 s%d, s%d, 14" % (sM, sB))
    a.e("s_waitcnt lgkmcnt(0)")
    ptr_loads(a, ((SWKV, 16), (SWV, 24), (SGATE, 72), (SWO, 32)))
    srd_words(a, [SWKV, SWV, SGATE, SX])
    xvoff(a, 0)
    a.e("v_and_b32 v2, 63, v0")
    a.e("v_lshlrev_b32 %s, 4, v2" % v(vL16))
    a.e("s_sub_u32 s%d, s%d, 14" % (sCNT, sM))
    a.e("s_lshl_b32 s%d, s%d, 16" % (sOLD, sCNT))
    a.e("s_lshl_b32 s%d, s%d, 13" % (sHST, sCNT))
    a.e("s_add_u32 s%d, s%d, s%d" % (sWH, sHST, sWK))
    a.e("s_xor_b32 s%d, s%d, 0x2000" % (sHST, sHST))
    a.e("s_add_u32 s%d, s%d, 0x2000" % (sA, sWK))
    a.e("s_waitcnt lgkmcnt(0)")
    a.stamp(2)
    def xdma(c, base, so):
        a.vmop("s_add_u32 m0, s%d, 0x%x\ns_nop 0\nbuffer_load_dwordx4 %s, %s, s%d offen offset:%d lds"
               % (base, LL_X + c * 16384 - c * 128, v(vDX), srd(SX), so, c * 128), "c%d" % c)
    def wdma(u):
        for t, rs in enumerate((SWKV, SWV)):
            a.vmop("s_add_u32 m0, s%d, 0x%x\ns_nop 0\nbuffer_load_dwordx4 %s, %s, s%d offen lds"
                   % (sWK, LL_W + t * 16384 + u * 8192, v(vL16), srd(rs), sA if u else sWK), "w")
    wdma(0)
    a.vmop("s_mov_b32 m0, s%d\ns_nop 0\nbuffer_load_dwordx4 %s, %s, 0 offen lds" % (sHST, v(vL16), srd(SGATE)), "w")
    for c in range(8):
        if c == 4: wdma(1)
        xdma(c, sWH, sOLD)
        if c in (1, 3, 5): a.e("s_barrier")
    setup_ids(a)
    srd_words(a, [SWQ])
    setup_rd(a)
    a.e("v_lshrrev_b32 v3, 5, v0")
    a.e("v_bfrev_b32 v5, v4")
    a.e("v_lshrrev_b32 v5, 30, v5")
    a.e("s_cmp_ge_u32 s%d, 2" % sLO)
    a.e("s_cselect_b64 vcc, -1, 0")
    a.e("v_cndmask_b32 v4, v5, v4, vcc")
    a.e("v_lshl_add_u32 %s, v3, 3, v2" % v(vWA))
    a.e("v_lshlrev_b32 %s, 5, %s" % (v(vWA), v(vWA)))
    a.e("v_lshl_add_u32 %s, v4, 3, %s" % (v(vWA), v(vWA)))
    a.e("s_lshr_b32 s%d, s%d, 1" % (sA, sLO))
    a.e("s_lshl_b32 s%d, s%d, 14" % (sA, sA))
    a.e("s_add_u32 s%d, s%d, 0x%x" % (sA, sA, LL_W))
    a.e("v_add_u32 %s, s%d, %s" % (v(vWA), sA, v(vWA)))
    a.e("v_lshl_add_u32 %s, v3, 4, s%d" % (v(vWA + 1), sHST))
    a.e("s_and_b32 s%d, s%d, 1" % (sA, sLO))
    a.e("s_lshl_b32 s%d, s%d, 1" % (sB, sCNT))
    a.e("s_add_u32 s%d, s%d, s%d" % (sCNT, sA, sB))
    a.e("s_lshl_b32 s%d, s%d, 12" % (sA, sCNT))
    a.e("v_and_b32 v2, 31, v0")
    a.e("v_lshrrev_b32 v4, 1, v0")
    a.e("v_lshlrev_b32 v5, 1, v0")
    a.e("v_bfi_b32 v4, 4, v4, v5")
    a.e("v_bfi_b32 v4, 12, v4, v2")
    a.e("v_cndmask_b32 v2, v2, v4, vcc")
    a.e("v_bfe_u32 v4, v2, 1, 3")
    a.e("v_xor_b32 v4, v4, v3")
    a.e("v_lshlrev_b32 v4, 4, v4")
    a.e("v_lshl_add_u32 v4, v2, 7, v4")
    a.e("v_add_u32 %s, s%d, v4" % (v(vLX), sA))
    for s in range(1, 4): a.e("v_xor_b32 %s, %d, %s" % (v(vLX + s), 32 * s, v(vLX)))
    for s in range(4): a.e("v_add_u32 %s, 0x10000, %s" % (v(vLX + 4 + s), v(vLX + s)))
    a.e("s_waitcnt lgkmcnt(0)")
    setup_oclr(a)
    vm0 = list(a.vm)
    a.e("s_cmp_lg_u32 s%d, 0" % sHI)
    a.e("s_cbranch_scc1 L_lB")
    a.e("s_not_b64 %s, %s" % (sp(sTMPP), sp(sVM)))
    a.e("s_cmp_ge_u32 s%d, 2" % sLO)
    a.e("s_cbranch_scc1 L_lV")
    def chain(kind):
        a.vm = list(vm0)
        def fr(k):
            b = vFR + 8 * (k % 4)
            return b, b + 4
        def reads(k):
            c, s = divmod(k, 4); x, w = fr(k)
            r = [rd128(x, vLX + s + 4 * (c >> 2), (c & 3) * 16384), rdtr(w, vWA, k * 512), rdtr(w + 2, vWA, k * 512 + 128)]
            if kind == "K":
                r += ["s_mov_b64 exec, %s" % sp(sTMPP), rd128(w, vWA + 1, k * 32), "s_mov_b64 exec, -1"]
            return r
        for q in range(4):
            a.waitvm("c%d" % (2 * q + 1))
            a.e("s_barrier")
            nr = 4 if kind == "K" else 3
            for k in range(8 * q, 8 * q + 2):
                for r in reads(k): a.e(r)
            for k in range(8 * q, 8 * q + 8):
                if k + 2 < 8 * q + 8:
                    for r in reads(k + 2): a.e(r)
                left = min(2, 8 * q + 7 - k)
                a.e("s_waitcnt lgkmcnt(%d)" % (left * nr))
                x, w = fr(k)
                cc = None if k == 0 else vACC
                a.e(mfma(vACC, w, x, cc) if kind == "K" else mfma(vACC, x, w, cc))
        a.e("s_lshl_b32 s%d, s%d, 2" % (sA, sG))
        a.e("s_add_u32 s%d, s%d, s%d" % (sA, sA, sCNT))
        a.e("s_nop 12")
        if kind == "K":
            a.e("s_mov_b32 s%d, 0x%x" % (sC, f2u(0.25 * math.log2(math.e))))
            for i in range(8): a.e("v_mul_f32 %s, s%d, %s" % (v(vACC + i), sC, v(vACC + i)))
            a.e("v_mul_f32 %s, 0x%x, %s" % (v(vACC + 8), f2u(-math.log2(math.e)), v(vACC + 8)))
            a.e("v_exp_f32 %s, %s" % (v(vACC + 8), v(vACC + 8)))
            for i in range(4): a.e("v_cvt_pk_bf16_f32 %s, %s, %s" % (v(vFR + i), v(vACC + 2 * i), v(vACC + 2 * i + 1)))
            a.e("v_add_f32 %s, 1.0, %s" % (v(vACC + 8), v(vACC + 8)))
            a.e("v_rcp_f32 %s, %s" % (v(vACC + 8), v(vACC + 8)))
            a.e("s_add_u32 s%d, s%d, 63" % (sB, sA))
            a.e("s_and_b32 s%d, s%d, 63" % (sB, sB))
            a.e("s_lshl_b32 s%d, s%d, 11" % (sB, sB))
            a.e("buffer_store_dwordx4 %s, %s, %s, s%d offen sc1" % (v(vFR, 4), v(vL16), srd(SKV), sB))
            a.e("s_lshl_b32 s%d, s%d, 7" % (sB, sA))
            a.e("s_add_u32 s%d, s%d, 0x%x" % (sB, sB, WS_G))
            a.e("s_mov_b32 exec_hi, 0")
            a.e("buffer_store_dword %s, %s, %s, s%d offen sc1" % (v(vACC + 8), v(vGA), srd(SWS), sB))
            a.e("s_mov_b64 exec, -1")
        else:
            for i in range(8): a.e("v_cvt_pk_bf16_f32 %s, %s, %s" % (v(vFR + i), v(vACC + 2 * i), v(vACC + 2 * i + 1)))
            a.e("v_bfe_u32 v2, v0, 4, 1")
            a.e("v_add_u32 v2, s%d, v2" % sA)
            a.e("v_and_b32 v2, 63, v2")
            a.e("v_lshl_add_u32 v2, v2, 11, %s" % v(vL16))
            for i in range(4): a.e("v_cndmask_b32 %s, %s, %s, %s" % (v(vFR + i), v(vFR + 4 + i), v(vFR + i), sp(sVM)))
            a.e("buffer_store_dwordx4 %s, v2, %s, 0 offen offset:1024 sc1" % (v(vFR, 4), srd(SKV)))
        a.e("s_branch L_lJ")
    chain("K")
    a.lab("L_lV")
    chain("V")
    a.lab("L_lB")
    a.vm = list(vm0)
    a.e("s_cmp_lg_u32 s%d, 14" % sM)
    a.e("s_cbranch_scc1 L_nozf")
    a.e("s_cmp_lg_u32 s%d, 4" % sW)
    a.e("s_cbranch_scc1 L_nozf")
    a.e("v_lshlrev_b32 v2, 7, v0")
    a.e("s_lshl_b32 s%d, s%d, 11" % (sA, sG))
    a.e("s_add_u32 s%d, s%d, 0x%x" % (sA, sA, WS_HFLAG))
    a.e("s_mov_b64 exec, 0xffff")
    a.e("buffer_store_dword %s, v2, %s, s%d offen sc1" % (v(vZERO), srd(SWS), sA))
    a.e("s_mov_b64 exec, -1")
    a.lab("L_nozf")
    for q in range(4):
        a.waitvm("c%d" % (2 * q + 1))
        a.e("s_barrier")
    a.lab("L_lJ")
    a.e("v_lshrrev_b32 v3, 2, v0")
    a.e("v_lshlrev_b32 v3, 10, v3")
    a.e("v_lshrrev_b32 v4, 5, v0")
    a.e("v_lshlrev_b32 v4, 1, v4")
    a.e("v_xor_b32 v4, v4, v0")
    a.e("v_and_b32 v4, 3, v4")
    a.e("v_lshl_add_u32 v3, v4, 4, v3")
    a.e("s_lshl_b32 s%d, s%d, 14" % (sA, sW))
    a.e("s_lshl_b32 s%d, s%d, 6" % (sB, sHP))
    a.e("s_add_u32 s%d, s%d, s%d" % (sA, sA, sB))
    a.e("v_add_u32 %s, s%d, v3" % (v(vDQ), sA))
    a.e("s_xor_b32 s%d, s%d, 0x2000" % (sWH, sWH))
    a.e("s_xor_b32 s%d, s%d, 0x10000" % (sOLD, sOLD))
    a.wait0(lgkm=True)
    a.e("s_barrier")
    a.e("s_cmp_lg_u32 s%d, 0" % sW)
    a.e("s_cbranch_scc1 L_noat")
    a.e("s_mov_b64 exec, 1")
    a.e("buffer_atomic_add %s, off, %s, 0 sc1" % (v(vONE), srd(SDBG)))
    a.e("s_mov_b64 exec, -1")
    a.lab("L_noat")
    a.stamp(3)
    for c in range(8): xdma(c, sWH, sOLD)
    for p in range(4):
        a.e("s_add_u32 m0, s%d, 0x%x" % (sWK, LL_WQ + p * 8192))
        a.e("s_mov_b32 s%d, 0x%x" % (sA, p * 128 * 1024))
        a.e("buffer_load_dwordx4 %s, %s, s%d offen lds" % (v(vDQ), srd(SWQ), sA))
    setup_ones(a)
    setup_attn(a)
    if Opt.touch & 2:
        a.e("s_lshl_b32 s%d, s%d, 1" % (sA, sG))
        a.e("s_add_u32 s%d, s%d, s%d" % (sA, sA, sM))
        a.e("s_sub_u32 s%d, s%d, 14" % (sA, sA))
        a.e("s_lshl_b32 s%d, s%d, 3" % (sA, sA))
        a.e("s_add_u32 s%d, s%d, s%d" % (sA, sA, sW))
        a.e("v_lshlrev_b32 v2, 15, v0")
        a.e("s_lshl_b32 s%d, s%d, 7" % (sA, sA))
        a.e("buffer_load_dword %s, v2, %s, s%d offen" % (v(vPOLL), srd(SWO), sA))
        a.e("buffer_load_dword %s, v2, %s, s%d offen" % (v(vPOLL), srd(SWD), sA))
    a.e("s_lshl_b32 s%d, s%d, 12" % (sA, sLO))
    a.e("v_add_u32 %s, s%d, %s" % (v(vXA), sA, v(vXA)))
    a.e("v_xor_b32 %s, 64, %s" % (v(vXA + 1), v(vXA)))
    a.e("v_add_u32 %s, 0x10000, %s" % (v(vXA + 2), v(vXA)))
    a.e("v_add_u32 %s, 0x10000, %s" % (v(vXA + 3), v(vXA + 1)))
    a.e("v_add_u32 %s, 0x%x, %s" % (v(vQA), LL_WQ, v(vQA)))
    a.e("s_waitcnt vmcnt(%d)" % (2 if Opt.touch & 2 else 0))
    a.e("s_barrier")
    def fr(k): return vFR + 12 * (k % 3)
    def reads(k):
        c, s = divmod(k, 2); f = fr(k)
        return [rd128(f + 4 * b, vXA + s + 2 * (c >> 2), (c & 3) * 16384 + b * 2048) for b in range(2)] + \
               [rdtr(f + 8, vQA, k * 2048), rdtr(f + 10, vQA, k * 2048 + 256)]
    for k in range(2):
        for r in reads(k): a.e(r)
    for k in range(16):
        a.e("s_waitcnt lgkmcnt(%d)" % (4 * min(1, 15 - k)))
        for b in range(2): a.e(mfma16(vAQ + 4 * b, fr(k) + 8, fr(k) + 4 * b, None if k == 0 else vAQ + 4 * b))
        if k + 2 < 16:
            for r in reads(k + 2): a.e(r)
    spin_counter(a, "kvl", False)
    a.e("s_barrier")
    for s, t in kv_first_loads(a): a.e(s)
    a.wait0()
    a.stamp(4)
    a.e("s_branch L_join")

def gelu_tile(a, ti, scalar=False):
    acc = vACC + 16 * ti
    t = vFR
    o = vFR + 8 + 4 * ti
    pk = lambda r: v(r, 2)
    if scalar:
        for i in range(8): a.e("v_mul_f32 %s, %s, %s" % (v(t + i), v(acc + i), v(acc + i)))
        for i in range(8): a.e("v_fma_f32 %s, %s, %s, %s" % (v(t + i), v(t + i), v(vC0 + 1), v(vC0)))
        for i in range(8): a.e("v_mul_f32 %s, %s, %s" % (v(t + i), v(t + i), v(acc + i)))
        for i in range(8): a.e("v_exp_f32 %s, %s" % (v(t + i), v(t + i)))
        for i in range(8): a.e("v_add_f32 %s, 1.0, %s" % (v(t + i), v(t + i)))
        for i in range(8): a.e("v_rcp_f32 %s, %s" % (v(t + i), v(t + i)))
        for i in range(8): a.e("v_mul_f32 %s, %s, %s" % (v(acc + i), v(acc + i), v(acc + 8 + i)))
        for i in range(8): a.e("v_mul_f32 %s, %s, %s" % (v(acc + i), v(acc + i), v(t + i)))
    R4, R8 = (range(0), range(0)) if scalar else (range(4), range(8))
    for i in R4: a.e("v_pk_mul_f32 %s, %s, %s" % (pk(t + 2 * i), pk(acc + 2 * i), pk(acc + 2 * i)))
    for i in R4: a.e("v_pk_fma_f32 %s, %s, %s, %s op_sel:[0,1,0] op_sel_hi:[1,1,0]" % (pk(t + 2 * i), pk(t + 2 * i), pk(vC0), pk(vC0)))
    for i in R4: a.e("v_pk_mul_f32 %s, %s, %s" % (pk(t + 2 * i), pk(t + 2 * i), pk(acc + 2 * i)))
    for i in R8: a.e("v_exp_f32 %s, %s" % (v(t + i), v(t + i)))
    for i in R4: a.e("v_pk_add_f32 %s, %s, 1.0 op_sel_hi:[1,0]" % (pk(t + 2 * i), pk(t + 2 * i)))
    for i in R8: a.e("v_rcp_f32 %s, %s" % (v(t + i), v(t + i)))
    for i in R4: a.e("v_pk_mul_f32 %s, %s, %s" % (pk(acc + 2 * i), pk(acc + 2 * i), pk(acc + 8 + 2 * i)))
    for i in R4: a.e("v_pk_mul_f32 %s, %s, %s" % (pk(acc + 2 * i), pk(acc + 2 * i), pk(t + 2 * i)))
    for i in range(4): a.e("v_cvt_pk_bf16_f32 %s, %s, %s" % (v(o + i), v(acc + 2 * i), v(acc + 2 * i + 1)))
    a.vmop("buffer_store_dwordx4 %s, %s, %s, s%d offen offset:%d sc1" % (v(o, 4), v(vHA), srd(SWS), sHST2 if ti >> 1 else sHST, (ti & 1) * 256), "hst")

def Yseg(hset, toggle=False, first=False, extra=False, last=False):
    out = []
    for t in range(2):
        pos = [int(x, 17) for x in (Opt.ypos0 if hset is None else Opt.ypos2 if extra else Opt.ypos1)]
        if last and t == 1: pos = [pos[0], 0, 11, pos[1]]
        S, Sn = vS + 16 * t, vS + 16 * (1 - t)
        K, V0, V1 = vKF + 4 * t, vV + 8 * t, vV + 8 * t + 4
        for e in range(1, 17):
            out.append("v_exp_f32 %s, %s" % (v(S + e - 1), v(S + e - 1)))
            if e == pos[0] and not (first and t == 0): out.append(smfmac(vO, V1, Sn + 8))
            if e == pos[1]: out.append(mfma(Sn, K, vQ, None))
            if e == pos[2]: out.append(smfmac(vO, V0, S))
            if hset is not None:
                if e == 13 and t == 1 and toggle:
                    out.append("v_xor_b32 %s, 0x4000, %s" % (v(vKVB), v(vKVB)))
                if e == pos[3]: out.append(mfma(vD + 16 * t, vWF + 4 * t, vH + 4 * hset, vD + 16 * t))
                if extra and e == pos[4]: out.append(mfma(vD + 16 * t, vFR + 16 + 4 * t, vH + 16 + 4 * hset, vD + 16 * t))
    return out

def kv_reads(off, vKVA=vKVA):
    r = [rd128(vKF, vKVA, off), rd128(vKF + 4, vKVA, off + 2048), "s_mov_b64 exec, %s" % sp(sVM)]
    for t in range(2):
        r += [rd128(vV + 8 * t, vKVA, off + 2048 * t + 1024), rd128(vV + 8 * t + 4, vKVA, off + 2048 * t + 1280)]
    r.append("s_mov_b64 exec, -1")
    return r
def wd_reads(dst, addr, off):
    r = []
    for c in range(2):
        r += [rdtr(dst + 4 * c, addr, off + 512 * c), rdtr(dst + 4 * c + 2, addr, off + 512 * c + 1024)]
    return r

def hord(): return [0, 2, 4, 6, 1, 3, 5, 7] if Opt.hord else list(range(8))
def wdrow(sg): return (32 * (sg >> 1) + 8 * (sg & 1)) * 1024

def attention(a, role, pre0=None):
    A = role == "A"
    def kvdma(u):
        a.vmop("s_add_u32 m0, s%d, 0x%x\ns_add_u32 s%d, s%d, 0x%x\nbuffer_load_dwordx4 %s, %s, s%d offen sc1 lds"
               % (sWK, L_KV + (u % 4) * 8192, sA, sWK, u * 8192, v(vL16), srd(SKV), sA), "kv%d" % u)
    def wddma(sg):
        a.vmop("s_add_u32 m0, s%d, 0x%x\ns_add_u32 s%d, s%d, 0x%x\nbuffer_load_dwordx4 %s, %s, s%d offen lds"
               % (sWK, L_WD + (sg % 4 if sg < 23 or sg == 27 else sg - 19) * 8192, sA, sWDOFF, wdrow(sg), v(vWDV), srd(SWD), sA), "wd%d" % sg)
    def wodma(j):
        a.vmop("s_add_u32 m0, s%d, 0x%x\ns_add_u32 s%d, s%d, 0x%x\nbuffer_load_dwordx4 %s, %s, s%d offen lds"
               % (sWK, L_WO + (7 - j) * 8192, sA, sB, hord()[j] * 16384, v(vWDV), srd(SWO), sA), "wo")
    def hload(sg, dst):
        a.vmop("s_add_u32 s%d, s%d, 0x%x\nbuffer_load_dwordx4 %s, %s, %s, s%d offen sc1"
               % (sA, sHOFF, sg * 1024, v(dst, 4), v(vL16), srd(SWS), sA), "h%d" % sg)
    for n in range(12):
        if not A and n == 0: a.e("s_barrier")
        if n % 2 == 1: astamp(a, 2 + n // 2)
        if n == Opt.pcyc: a.e("%s %s" % ("s_memrealtime" if Opt.prt else "s_memtime", sp(sSTAMP + 6)))
        tags = []
        if A and n % 2 == 1: tags.append("kv%d" % ((n + 1) // 2))
        if not A and n % 2 == 0: tags.append("kv%d" % ((n + 2) // 2))
        if n == Opt.hpub - (0 if A else 1): tags.append("hst")
        if n == 6: tags.append("wo")
        if n == 9: tags.append("wd27")
        if n == 11: tags.append("wd0")
        if n == 9 and A:
            a.e("s_cmp_lg_u32 s%d, 0" % sW)
            a.e("s_cbranch_scc1 L_hf_done")
            a.e("s_mov_b32 s%d, 0x4000" % sB)
            a.e("s_waitcnt vmcnt(0)")
            a.lab("L_hf_chk")
            a.e("v_cmp_ne_u32 vcc, 1, %s" % v(vPOLL))
            a.e("s_cbranch_vccz L_hf_done")
            a.e("s_sleep 2")
            a.e("buffer_load_dword %s, %s, %s, 0 offen sc1" % (v(vPOLL), v(vFLA), srd(SWS)))
            a.e("s_sub_u32 s%d, s%d, 1" % (sB, sB))
            a.e("s_cmp_lg_u32 s%d, 0" % sB)
            a.e("s_waitcnt vmcnt(0)")
            a.e("s_cbranch_scc1 L_hf_chk")
            a.lab("L_hf_done")
        a.waitvm(tags)
        if n == 5 and Opt.diag == 3 and A:
            a.e("v_mov_b32 v2, s%d" % sSTAMP)
            a.e("s_lshl_b32 s%d, s2, 3" % sA)
            a.e("s_add_u32 s%d, s%d, s%d" % (sA, sA, sW))
            a.e("s_lshl_b32 s%d, s%d, 7" % (sA, sA))
            a.e("s_add_u32 s%d, s%d, 0x%x" % (sA, sA, WS_STAMP))
            a.e("s_mov_b64 exec, 1")
            a.vmop("buffer_store_dword v2, off, %s, s%d offset:12 sc1" % (srd(SWS), sA), "st")
            a.e("s_mov_b64 exec, -1")
        if n == Opt.hpub and not A:
            a.e("s_cmp_ge_u32 s%d, 14" % sM)
            a.e("s_cbranch_scc1 L_nohf")
            a.e("s_cmp_lg_u32 s%d, 4" % sW)
            a.e("s_cbranch_scc1 L_nohf")
            a.e("s_lshl_b32 s%d, s%d, 4" % (sA, sG))
            a.e("s_add_u32 s%d, s%d, s%d" % (sA, sA, sM))
            a.e("s_lshl_b32 s%d, s%d, 7" % (sA, sA))
            a.e("s_add_u32 s%d, s%d, 0x%x" % (sA, sA, WS_HFLAG))
            a.e("s_mov_b64 exec, 1")
            a.e("buffer_store_dword %s, off, %s, s%d sc1" % (v(vONE), srd(SWS), sA))
            a.e("s_mov_b64 exec, -1")
            a.lab("L_nohf")
        for r in kv_reads((n % 8) * 4096): a.e(r)
        if n == 8 and A:
            a.e("s_cmp_lg_u32 s%d, 0" % sW)
            a.e("s_cbranch_scc1 L_hf_nol")
            a.e("buffer_load_dword %s, %s, %s, 0 offen sc1" % (v(vPOLL), v(vFLA), srd(SWS)))
            a.lab("L_hf_nol")
        if n == 0:
            if A or Opt.hpub == 3:
                kvdma(2); kvdma(3)
            a.e("s_mov_b32 s%d, s%d" % (sC, sKQ))
            a.e("s_mul_i32 s%d, s%d, %d" % (sWDOFF, sC, 448 * 1024))
            a.e("s_and_b32 s%d, s%d, 1" % (sB, sW))
            a.e("s_lshl_b32 s%d, s%d, 14" % (sA, sB))
            a.e("s_add_u32 s%d, s%d, s%d" % (sWDOFF, sWDOFF, sA))
            a.e("s_lshl_b32 s%d, s%d, 1" % (sA, sT))
            a.e("s_add_u32 s%d, s%d, s%d" % (sA, sA, sB))
            a.e("s_mul_i32 s%d, s%d, 112" % (sA, sA))
            a.e("s_mul_i32 s%d, s%d, 28" % (sB, sC))
            a.e("s_add_u32 s%d, s%d, s%d" % (sA, sA, sB))
            a.e("s_lshl_b32 s%d, s%d, 10" % (sA, sA))
            a.e("s_add_u32 s%d, s%d, 0x%x" % (sHOFF, sA, WS_HF))
        if (A and n % 2 == 1 and n >= 3): kvdma((n + 5) // 2)
        if (not A and n % 2 == 0 and n >= 2): kvdma((n + 6) // 2)
        if 1 <= n <= 4:
            a.e("s_lshl_b32 s%d, s%d, 17" % (sB, sKQ))
            a.e("s_and_b32 s%d, s%d, 1" % (sC, sW))
            a.e("s_lshl_b32 s%d, s%d, 13" % (sC, sC))
            a.e("s_add_u32 s%d, s%d, s%d" % (sB, sB, sC))
            for j in (2 * n - 2, 2 * n - 1): wodma(j)
        for sg in {5: (27, 23, 24), 6: (25, 26, 0), 7: (1, 2)}.get(n, ()): wddma(sg)
        if n == 10:
            for r in wd_reads(vWX, vWDA, 3 * 8192): a.e(r)
        for j in ({7: (0,), 8: (1, 2), 9: (3, 4)} if A else {7: (0, 1), 8: (2, 3), 9: (4,)}).get(n, ()):
            for r in wd_reads(WOF[j], vWOA, (7 - j) * 8192): a.e(r)
        hs = {10: (0, 1, 23, 24), 11: (2, 25, 26, 27)} if A else {9: (0, 1, 23), 10: (2, 24), 11: (25, 26, 27)}
        if Opt.hlate: hs = {10: (0, 1), 11: (2,)} if A else {9: (0,), 10: (1,), 11: (2,)}
        for sg in hs.get(n, ()): hload(sg, vH + 4 * sg if sg < 4 else vHX if sg == 27 else vH + 4 * (sg - 19))
        if n == 11:
            a.e("s_add_u32 s%d, s%d, 0x%x" % (sHOFF, sHOFF, 3 * 1024))
            a.e("s_add_u32 s%d, s%d, 0x%x" % (sWDOFF, sWDOFF, wdrow(3)))
            a.e("s_add_u32 s%d, s%d, 0x%x" % (sKVOFF, sWK, 9 * 8192))
            a.e("s_mov_b32 s%d, 4" % sCNT)
            a.e("s_add_u32 s%d, s%d, 0x1000" % (sOLD2, sOLD))
            a.e("s_mov_b32 s%d, 0x%x" % (sLO_, f2u(2.0 ** -16)))
            a.e("s_mov_b32 s%d, 0x%x" % (sRNG, f2u(2.0 ** 100) - f2u(2.0 ** -16)))
        if n == 0 and pre0:
            pre0()
            a.stamp(5)
        a.e("s_waitcnt lgkmcnt(0)")
        if n == 0:
            if A: a.e("s_barrier")
            for x in Yseg(None, first=True): a.e(x)
            if not A: a.e("s_barrier")
            continue
        a.e("s_call_b64 %s, L_Y%s" % (sp(sRET), role))
        if n == 1:
            a.e("s_branch L_X1%s" % role)
            a.lab("L_Y%s" % role)
            if A: a.e("s_barrier")
            for x in Yseg(None): a.e(x)
            if not A: a.e("s_barrier")
            a.e("s_setpc_b64 %s" % sp(sRET))
            a.lab("L_X1%s" % role)
    assert not (Opt.hlate and Opt.nx)
    hl = {28: (27, 23), 29: (24, 25), 30: (26,)} if Opt.hlate else {}
    vm = list(a.vm); need = [63] * 8
    for n in range(12, 32):
        p = n % 4; q = p + (4 if n >= 28 else 0)
        tags = ["wd%d" % (n - 11), "h%d" % (n - 12)]
        if (p % 2 == 1) == A: tags.append("kv%d" % ((n + (1 if A else 2)) // 2))
        idx = [i for i, t in enumerate(vm) if t in tags]
        if idx: need[q] = min(need[q], len(vm) - 1 - max(idx))
        vm.append("wd%d" % (n - 9))
        vm.append("h%d" % (n - 9))
        if (p % 2 == 1) == A and n < 28: vm.append("kv%d" % ((n + (5 if A else 6)) // 2))
        vm += ["hx"] * len(hl.get(n, ()))
    a.lab("L_loop%s" % role)
    for q in range(8):
        p = q % 4; fin = q >= 4
        kv = (p % 2 == 1) == A and not fin
        if q == 0 and Opt.diag and Opt.kdiag == 2:
            a.e("s_cmp_lg_u32 s%d, 3" % sCNT)
            a.e("s_cbranch_scc1 L_nst%s" % role)
            astamp(a, 8)
            a.lab("L_nst%s" % role)
        a.e("s_waitcnt vmcnt(%d)" % need[q])
        for i, r in enumerate(kv_reads(p * 4096, vKVB)):
            if not (q == 7 and i == 1): a.e(r)
        if q <= 8 - Opt.nd:
            for r in wd_reads(vWF, vWDA, p * 8192): a.e(r)
        if fin and p < Opt.nx:
            for r in wd_reads(vFR + 16, vWDA, (4 + p) * 8192): a.e(r)
        if q == 7:
            for r in wd_reads(vFR, vWDA, (4 + Opt.nx) * 8192): a.e(r)
        a.e("s_add_u32 m0, s%d, 0x%x" % (sWK, L_WD + ((p + 3) % 4) * 8192))
        a.e("s_and_b32 s%d, s%d, 0x7fff" % (sA, sKVOFF))
        a.e("buffer_load_dwordx4 %s, %s, s%d offen lds" % (v(vWDV), srd(SWD), sWDOFF))
        a.e("s_add_u32 s%d, s%d, 0x%x" % (sWDOFF, sWDOFF, 0x2000 if p & 1 else 0x6000))
        a.e("buffer_load_dwordx4 %s, %s, %s, s%d offen sc1" % (v(vKF + 4 if q == 7 and Opt.nd == 2 else vH + 4 * ((p + 3) % 4), 4), v(vL16), srd(SWS), sHOFF))
        if kv: a.e("s_add_u32 m0, s%d, 0x%x" % (sA, L_KV))
        a.e("s_add_u32 s%d, s%d, 0x400" % (sHOFF, sHOFF))
        if kv:
            a.e("buffer_load_dwordx4 %s, %s, s%d offen sc1 lds" % (v(vL16), srd(SKV), sKVOFF))
            a.e("s_add_u32 s%d, s%d, 0x2000" % (sKVOFF, sKVOFF))
        for sg in (hl.get(24 + q, ()) if fin else ()):
            a.e("s_add_u32 s%d, s%d, 0x%x" % (sA, sHOFF, (sg - (16 + q)) * 1024))
            a.e("buffer_load_dwordx4 %s, %s, %s, s%d offen sc1" % (v(vHX if sg == 27 else vH + 4 * (sg - 19), 4), v(vL16), srd(SWS), sA))
        if q == 3:
            a.e("s_sub_u32 s%d, s%d, 1" % (sCNT, sCNT))
            a.e("s_cmp_lg_u32 s%d, 0" % sCNT)
        a.e("s_waitcnt lgkmcnt(0)")
        if A: a.e("s_barrier")
        for x in Yseg(p if q < 8 - Opt.nd else None, toggle=(q == 3), extra=(fin and p < Opt.nx), last=(q == 7)): a.e(x)
        if not A and q < 7: a.e("s_barrier")
        if q == 3: a.e("s_cbranch_scc1 L_loop%s" % role)
    a.e("s_nop 1")

def transition(a, role):
    A = role == "A"
    if A:
        a.vm = []
        a.lab("L_trA")
    else:
        a.lab("L_join")
        a.e("s_cmp_eq_u32 s%d, 0" % sHI)
        a.e("s_cbranch_scc1 L_trA")
        a.vmjoin = list(a.vm)
    def qfin():
        for i in range(4): a.e("v_cvt_pk_bf16_f32 %s, %s, %s" % (v(vQ + i), v(vAQ + 2 * i), v(vAQ + 2 * i + 1)))
        a.e("v_add_u32 %s, 0x%x, %s" % (v(vWOA), L_WO, v(vWDA)))
        a.e("v_permlane16_swap_b32 %s, %s" % (v(vQ), v(vQ + 2)))
        a.e("v_permlane16_swap_b32 %s, %s" % (v(vQ + 1), v(vQ + 3)))
    pre0 = None
    if A:
        a.e("s_setprio 1")
        a.e("s_cmp_ge_u32 s%d, 14" % sM)
        a.e("s_cbranch_scc1 L_nogA0")
        put(a, a.kvA[:1] + a.kvA[-1:])
        a.l.append(".p2align 3")
        for ti in range(Opt.gsc): gelu_tile(a, ti, True)
        a.lab("L_nogA0")
        qfin()
        a.waitvm(["k0", "kv0", "kv1"])
        a.e("s_setprio 0")
        a.e(mfma(vS, vK0, vQ, None))
        a.e("s_barrier")
        put(a, a.kvA[1:-1])
        def pre0():
            a.e("s_cmp_lt_u32 s%d, 14" % sM)
            a.e("s_cbranch_scc1 L_gA1")
            a.e("s_waitcnt vmcnt(0)")
            a.e("s_branch L_nogA1")
            a.l.append(".p2align 3")
            a.lab("L_gA1")
            for ti in range(Opt.gsc, 4): gelu_tile(a, ti)
            a.lab("L_nogA1")
            a.e("s_setprio 2")
    else:
        a.waitvm(["k0", "kv0", "kv1"])
        a.e("s_setprio 1")
        if Opt.hpub == 3:
            a.e("s_cmp_ge_u32 s%d, 14" % sM)
            a.l.append(".p2align 3")
            a.e("s_barrier")
            a.e("s_cbranch_scc1 L_nogB")
        else:
            a.e("s_barrier")
            for u in (2, 3):
                a.vmop("s_add_u32 m0, s%d, 0x%x\ns_add_u32 s%d, s%d, 0x%x\nbuffer_load_dwordx4 %s, %s, s%d offen sc1 lds"
                       % (sWK, L_KV + u * 8192, sA, sWK, u * 8192, v(vL16), srd(SKV), sA), "kv%d" % u)
            a.e("s_cmp_lt_u32 s%d, 14" % sM)
            a.e("s_cbranch_scc1 L_gB")
            a.e("s_waitcnt vmcnt(0)")
            a.e("s_branch L_nogB")
            a.l.append(".p2align 3")
            a.lab("L_gB")
        for ti in range(4): gelu_tile(a, ti)
        a.lab("L_nogB")
        qfin()
        a.e("s_nop 1")
        a.e(mfma(vS, vK0, vQ, None))
        a.stamp(5)
    attention(a, role, pre0)
    if A:
        a.stamp(6); astamp(a, 9); tstamp(a, 2)
        if Opt.diag and Opt.kdiag == 2: a.e("s_waitcnt lgkmcnt(0)")
        a.e(smfmac(vO, vV1L, vS + 24))
        a.e("s_setprio 0")
        a.e("s_cmp_eq_u32 s%d, 0" % sHI)
        a.e("s_nop 9")
        normalise(a, False)
        a.lab("L_fbretA")
        a.e("buffer_store_dwordx4 %s, %s, %s, s%d offen sc1" % (v(vPK, 4), v(vL16), srd(SWS), sOST))
        tstamp(a, 3)
        a.e("s_waitcnt vmcnt(1)")
        tstamp(a, 4)
        a.e("s_barrier")
        a.fetch(a, False)
        a.e("s_branch L_tl2")

def normalise(a, packed):
    t = vT0
    a.e("v_rcp_f32 %s, %s" % (v(t + 2), v(vO + 8)))
    a.e("s_nop 0")
    a.e("v_mul_f32_e64 %s, %s, %s" % (v(t + 2), v(t + 2), v(vGP)))
    if packed:
        for i in range(4): a.e("v_pk_mul_f32 %s, %s, %s op_sel_hi:[1,0]" % (v(vO + 2 * i, 2), v(vO + 2 * i, 2), v(t + 2, 2)))
        for i in range(4):
            a.e("v_pk_fma_f32 %s, %s, 0, %s op_sel_hi:[1,0,%d]" % (v(t, 2), v(vO + 2 * i, 2), v(t, 2) if i else v(vO + 8, 2), 1 if i else 0))
            a.e("v_cvt_pk_bf16_f32 %s, %s, %s" % (v(vPK + i), v(vO + 2 * i), v(vO + 2 * i + 1)))
        a.e("v_fmac_f32 %s, 0, %s" % (v(t), v(t + 1)))
    else:
        t = vO + 8
        for i in range(8): a.e("v_mul_f32 %s, %s, %s" % (v(vO + i), v(vT0 + 2), v(vO + i)))
        for i in range(4):
            a.e("v_fmac_f32 %s, 0, %s" % (v(t), v(vO + 2 * i)))
            a.e("v_cvt_pk_bf16_f32 %s, %s, %s" % (v(vPK + i), v(vO + 2 * i), v(vO + 2 * i + 1)))
            a.e("v_fmac_f32 %s, 0, %s" % (v(t), v(vO + 2 * i + 1)))
    a.e("v_subrev_u32 %s, s%d, %s" % (v(t), sLO_, v(t)))
    a.e("v_cmp_lt_u32 vcc, s%d, %s" % (sRNG, v(t)))
    a.e("s_branch L_fb" if Opt.force_fb else "s_cbranch_vccnz L_fb")

def tail(a):
    a.lab("L_tail")
    a.stamp(6)
    astamp(a, 9)
    if Opt.diag and Opt.kdiag == 2: a.e("s_waitcnt lgkmcnt(0)")
    tstamp(a, 2)
    a.e(smfmac(vO, vV1L, vS + 24))
    wf = [vFR, vFR + 8, vFR + 16]
    HORD = hord()
    def oload(j):
        return "buffer_load_dwordx4 %s, %s, %s, s%d offen offset:%d %s" % (
            v(vS + 4 * j, 4), v(vL16), srd(SWS), sOLD if HORD[j] < 4 else sOLD2, (HORD[j] % 4) * 1024, Opt.old_pol)
    a.oload = oload
    a.e("s_cmp_eq_u32 s%d, 0" % sHI)
    a.e("s_nop 10")
    a.l.append(".p2align 3")
    normalise(a, True)
    a.lab("L_fbret")
    a.e("buffer_store_dwordx4 %s, %s, %s, s%d offen sc1" % (v(vPK, 4), v(vL16), srd(SWS), sOST))
    tstamp(a, 3)
    aw = [vAW0, vWOA + 1, vWOA + 2, vWOA + 3]
    ar = [vAR0, vFLA]
    wo = WOF
    def fetch(o, scale):
        for j in range(8):
            o.e(oload(j))
            if j >= 5:
                for r in wd_reads(wo[j], vWOA, (7 - j) * 8192): o.e(r)
            if scale and j >= 4:
                for i in range(4 * j - 16, 4 * j - 12): o.e("v_mul_f32 %s, %s, %s" % (v(vD + i), v(vGC), v(vD + i)))
    def addrs(a):
        a.e("v_sub_f32 %s, 1.0, %s" % (v(vGC), v(vGC)))
        for j in range(1, 4): a.e("v_xor_b32 %s, %d, %s" % (v(aw[j]), 32 * j, v(aw[0])))
        a.e("v_xor_b32 %s, 16, %s" % (v(ar[1]), v(ar[0])))
        a.e("s_mov_b32 s%d, 0x2000" % sB)
    ol = Asm(); a.ool2 = ol.l
    a.e("s_waitcnt vmcnt(1)")
    tstamp(a, 4)
    a.e("s_barrier")
    a.lab("L_tl2")
    tstamp(a, 5)
    a.fetch = fetch
    fl = collect(addrs)
    slot = [4, 5, 6, 7, 0, 1, 2][Opt.nx:] + ([3] if Opt.nd == 2 else [])
    hreg = lambda sl: vKF + 4 if sl == 2 and Opt.nd == 2 else vH + 4 * sl
    inreg = [(vWX, vHX)] + ([(vWF, vH + 4 * (4 - Opt.nd))] if Opt.nd else [])
    rds = sum((wd_reads(wf[i % 3], vWDA, slot[i] * 8192) for i in range(len(slot))), [])
    done = 4
    for i in range(-len(inreg), len(slot)):
        for c in range(2):
            if i >= 1: a.e("s_waitcnt lgkmcnt(%d)" % (done - (4 * i + 2 * c + 2)))
            a.e(mfma(vD + 16 * c, inreg[i][0] + 4 * c, inreg[i][1], vD + 16 * c) if i < 0 else
                mfma(vD + 16 * c, wf[i % 3] + 4 * c, hreg(slot[i]), vD + 16 * c))
            if i < -1: continue
            if done < len(rds):
                for r in rds[done:done + 2]: a.e(r)
                done += 2
            else:
                put(a, fl[:2]); fl = fl[2:]
    assert not fl
    tstamp(a, 6)
    a.e("s_cbranch_scc0 L_tl3")
    a.l.append(".p2align 3")
    a.e("s_nop 7")
    a.e("s_nop 0")
    for i in range(16): a.e("v_pk_mul_f32 %s, %s, %s op_sel:[0,1] op_sel_hi:[1,1]" % (v(vD + 2 * i, 2), v(vD + 2 * i, 2), v(vGP, 2)))
    tstamp(a, 7)
    a.lab("L_tl4")
    tstamp(a, 8)
    ol.lab("L_tl3")
    ol.e("s_setprio 0")
    fetch(ol, False)
    tstamp(ol, 7)
    for i in range(32): ol.e("v_mul_f32 %s, %s, %s" % (v(vD + i), v(vGC), v(vD + i)))
    ol.e("s_waitcnt lgkmcnt(0)")
    ol.e("s_branch L_tl4")
    a.stamp(7)
    def check(j):
        o = vS + 4 * j
        return ["s_waitcnt vmcnt(%d)" % (7 - j), "v_max3_u32 v2, %s, %s, %s" % (v(o), v(o + 1), v(o + 2)),
                "v_max_u32 v2, v2, %s" % v(o + 3), "v_cmp_eq_u32 vcc, -1, v2"]
    a.check = check
    for x in check(0): a.e(x)
    for j in range(10):
        if j < 8:
            a.e("s_cbranch_vccnz L_ore%d" % j)
            a.lab("L_ook%d" % j)
            a.e(mfma(vD, wo[j], vS + 4 * j, vD))
        if j >= 2 and Opt.cfirst: a.e(mfma(vD + 16, wo[j - 2] + 4, vS + 4 * (j - 2), vD + 16))
        if j < 7:
            for x in check(j + 1): a.e(x)
        if j >= 2 and not Opt.cfirst: a.e(mfma(vD + 16, wo[j - 2] + 4, vS + 4 * (j - 2), vD + 16))
        if j in (7, 8): a.e("s_nop 4")
    wr = lambda c, j: "ds_write_b128 %s, %s offset:%d" % (v(aw[j]), v(vD + 16 * c + 4 * j, 4), 128 * c)
    a.stamp(8)
    tstamp(a, 9)
    for j in range(4): a.e(wr(0, j))
    a.e("s_nop 7")
    for j in range(4): a.e(wr(1, j))
    a.e("s_waitcnt lgkmcnt(0)")
    a.e("s_barrier")
    for p in range(4):
        for h in range(2): a.e(rd128(vS + 8 * p + 4 * h, ar[h], p * 8192))
    for p in range(1, 4):
        a.e("s_waitcnt lgkmcnt(%d)" % (6 - 2 * p))
        for i in range(4): a.e("v_pk_add_f32 %s, %s, %s" % (v(vS + 2 * i, 2), v(vS + 2 * i, 2), v(vS + 8 * p + 2 * i, 2)))
    for i in range(4): a.e("v_cvt_pk_bf16_f32 %s, %s, %s" % (v(vP + i), v(vS + 2 * i), v(vS + 2 * i + 1)))
    a.e("buffer_store_dwordx4 %s, %s, %s, s%d offen %s" % (v(vP, 4), v(vOUTA), srd(SOUT), sOUTO, Opt.out_pol))
    if Opt.probe >= 0:
        a.e("s_waitcnt vmcnt(0)")
        a.stamp(9)
        if Opt.probe != 9:
            a.e("s_cmp_ge_u32 s%d, 14" % sM)
            a.e("s_cbranch_scc%d L_end" % (0 if Opt.probe_l else 1))
        a.e("s_sub_u32 s%d, s%d, s%d" % (sA, sSTAMP + 4, sSTAMP))
        a.e("s_mul_i32 s%d, s%d, %d" % (sA, sA, Opt.probe_mul - 1))
        if Opt.pcyc >= 0:
            a.e("s_sub_u32 s%d, s%d, s%d" % (sA, sSTAMP + 8, sSTAMP + 6))
            if Opt.prt: a.e("s_mul_i32 s%d, s%d, 10" % (sA, sA))
            a.e("s_mov_b32 s%d, s%d" % (sSTAMP + 4, sSTAMP))
        a.e("s_min_u32 s%d, s%d, 100000" % (sA, sA))
        a.e("s_add_u32 s%d, s%d, 3800" % (sA, sA))
        if Opt.probe_r >= 0:
            a.e("s_cmp_eq_u32 s%d, 0x2000" % sB)
            a.e("s_cbranch_scc%d L_end" % Opt.probe_r)
        if Opt.probe_w >= 0:
            a.e("s_cmp_lg_u32 s%d, %d" % (sHI, Opt.probe_w))
            a.e("s_cbranch_scc1 L_end")
        if Opt.probe_x >= 0:
            a.e("s_and_b32 s0, s2, 7")
            a.e("s_cmp_lg_u32 s0, %d" % Opt.probe_x)
            a.e("s_cbranch_scc1 L_end")
        a.lab("L_probe")
        a.e("s_memrealtime s[0:1]")
        a.e("s_waitcnt lgkmcnt(0)")
        a.e("s_sub_u32 s0, s0, s%d" % (sSTAMP + 4))
        a.e("s_cmp_lt_u32 s0, s%d" % sA)
        a.e("s_cbranch_scc1 L_probe")
    if Opt.pin == 9:
        a.e("s_waitcnt vmcnt(0)")
        a.stamp(9)
    if Opt.diag in (1, 2):
        a.e("s_waitcnt vmcnt(0)")
        a.stamp(9)
        a.e("s_mov_b32 s%d, s%d" % (sSTAMP + 3, sSTAMP))
        a.e("s_mov_b32 s%d, s%d" % (sSTAMP, sB))
        a.e("s_getreg_b32 s%d, hwreg(HW_REG_XCC_ID)" % (sSTAMP + 1))
        for i in range(20): a.e("v_mov_b32 %s, s%d" % (v(vS + i), sSTAMP + i))
        a.e("s_lshl_b32 s%d, s2, 3" % sA)
        a.e("s_add_u32 s%d, s%d, s%d" % (sA, sA, sW))
        a.e("s_lshl_b32 s%d, s%d, 7" % (sA, sA))
        a.e("s_add_u32 s%d, s%d, 0x%x" % (sA, sA, WS_STAMP))
        a.e("s_mov_b64 exec, 1")
        for i in range(5): a.e("buffer_store_dwordx4 %s, off, %s, s%d offset:%d" % (v(vS + 4 * i, 4), srd(SWS), sA, 16 * i))
    a.lab("L_end")
    a.e("s_endpgm")
    a.l += a.ool2
    for j in range(8):
        a.lab("L_ore%d" % j)
        a.e("s_sub_u32 s%d, s%d, 1" % (sB, sB))
        a.e("s_cbranch_scc1 L_ogive%d" % j)
        if Opt.rwait: a.e("s_waitcnt vmcnt(0)")
        if Opt.rwait > 1: a.e("s_sleep %d" % Opt.rwait)
        for i in range(j, 8): a.e(a.oload(i))
        for x in a.check(j): a.e(x)
        a.e("s_cbranch_vccnz L_ore%d" % j)
        a.e("s_branch L_ook%d" % j)
        a.lab("L_ogive%d" % j)
        a.e("s_mov_b32 s%d, 0" % sB)
        a.e("s_branch L_ook%d" % j)

def fallback(a):
    a.lab("L_fb")
    m = vT0
    a.e("v_mov_b32 %s, 0xff800000" % v(m))
    a.e("s_mov_b32 s%d, 0" % sA)
    a.lab("L_fb1")
    a.e("buffer_load_dwordx4 %s, %s, %s, s%d offen sc1" % (v(vKF, 4), v(vL16), srd(SKV), sA))
    a.e("s_waitcnt vmcnt(0)")
    a.e(mfma(vS, vKF, vQ, None))
    a.e("s_add_u32 s%d, s%d, 2048" % (sA, sA))
    a.e("s_nop 11")
    for i in range(8): a.e("v_max3_f32 %s, %s, %s, %s" % (v(m), v(m), v(vS + 2 * i), v(vS + 2 * i + 1)))
    a.e("s_cmp_lt_u32 s%d, 0x20000" % sA)
    a.e("s_cbranch_scc1 L_fb1")
    a.e("v_mov_b32 %s, %s" % (v(m + 1), v(m)))
    a.e("s_nop 1")
    a.e("v_permlane32_swap_b32 %s, %s" % (v(m), v(m + 1)))
    a.e("s_nop 1")
    a.e("v_max_f32 %s, %s, %s" % (v(m), v(m), v(m + 1)))
    for i in range(16): a.e("v_sub_f32 %s, 0, %s" % (v(vS + 16 + i), v(m)))
    for i in range(16): a.e("v_mov_b32 %s, 0" % v(vO + i))
    a.e("s_mov_b32 s%d, 0" % sA)
    a.lab("L_fb2")
    a.e("s_add_u32 s%d, s%d, 0x%x" % (sB, sA, 63 * 2048))
    a.e("s_and_b32 s%d, s%d, 0x1ffff" % (sB, sB))
    a.e("buffer_load_dwordx4 %s, %s, %s, s%d offen sc1" % (v(vKF, 4), v(vL16), srd(SKV), sB))
    a.e("s_add_u32 s%d, s%d, 2048" % (sB, sA))
    a.e("s_and_b32 s%d, s%d, 0x1ffff" % (sB, sB))
    a.e("s_mov_b64 exec, %s" % sp(sVM))
    a.e("buffer_load_dwordx4 %s, %s, %s, s%d offen offset:1024 sc1" % (v(vV, 4), v(vL16), srd(SKV), sA))
    a.e("buffer_load_dwordx4 %s, %s, %s, s%d offen offset:1280 sc1" % (v(vV + 4, 4), v(vL16), srd(SKV), sB))
    a.e("s_mov_b64 exec, -1")
    a.e("s_waitcnt vmcnt(0)")
    a.e(mfma(vS, vKF, vQ, vS + 16))
    a.e("s_add_u32 s%d, s%d, 2048" % (sA, sA))
    a.e("s_nop 11")
    for i in range(16): a.e("v_exp_f32 %s, %s" % (v(vS + i), v(vS + i)))
    a.e("s_nop 2")
    a.e(smfmac(vO, vV, vS))
    a.e(smfmac(vO, vV + 4, vS + 8))
    a.e("s_cmp_lt_u32 s%d, 0x20000" % sA)
    a.e("s_cbranch_scc1 L_fb2")
    a.e("s_nop 11")
    a.e("v_rcp_f32 %s, %s" % (v(vT0 + 2), v(vO + 8)))
    a.e("s_cmp_eq_u32 s%d, 0" % sHI)
    a.e("v_mul_f32 %s, %s, %s" % (v(vT0 + 2), v(vT0 + 2), v(vGP)))
    for i in range(8): a.e("v_mul_f32 %s, %s, %s" % (v(vO + i), v(vT0 + 2), v(vO + i)))
    for i in range(4): a.e("v_cvt_pk_bf16_f32 %s, %s, %s" % (v(vPK + i), v(vO + 2 * i), v(vO + 2 * i + 1)))
    for i in range(4): a.e("v_min_u32 %s, -2, %s" % (v(vPK + i), v(vPK + i)))
    a.e("s_cbranch_scc1 L_fbretA")
    a.e("s_branch L_fbret")

def build():
    a = Asm()
    prologue(a)
    phase1_F(a)
    transition(a, "B")
    tail(a)
    a.l += a.ool
    transition(a, "A")
    phase1_L(a)
    fallback(a)
    a.lab("L_codeend")
    for i, x in enumerate(a.l):
        if " sc1" in x and "sc0" not in x and ((Opt.allsc & 1 and "buffer_store" in x) or (Opt.allsc & 2 and "buffer_load" in x)):
            a.l[i] = x.replace(" sc1", " sc0 sc1")
    il = a.l.index("L_light:")
    for i, x in enumerate(a.l):
        if x.endswith(" lds") and "sc1" not in x and " nt" not in x:
            if (Opt.ntx & 4 and (srd(SWD) in x or srd(SWO) in x)) or (Opt.ntx & 8 and i > il):
                a.l[i] = x[:-4] + " nt lds"
    head = open("cdna_kernels/%s.s.ref" % NAME).read().split("\n")
    hdr = [l for l in head if l.startswith(";") and "@launch" not in l and "Override" not in l and "grid=" not in l]
    out = hdr + ["; @launch grid=(256,1,1) block=(512,1,1) lds=%d" % LDS_BYTES,
                 '.amdgcn_target "amdgcn-amd-amdhsa--gfx950"', ".text", ".globl %s_kernel" % NAME, ".p2align 8",
                 ".type %s_kernel,@function" % NAME,
                 ".set CODE_PF_MAX, L_codeend - L_nopf - 4" if Opt.code_pf else "",
                 "%s_kernel:" % NAME]
    if Opt.diag: out += ["; mapmode %d" % (1 + 3 * bool(Opt.oddl))]
    out += ["; " + x for x in """One persistent launch, one workgroup per CU (generated by a script), 8 waves = two quartets that alternate on each SIMD.
Stage 1: 14 of every 16 workgroups compute gelu(x Wg) * (x Wu) for 128 tokens x 128 columns plus Q for two heads;
         the other two compute K, V and the mixing gate, publish them (counter in d_debug) and then their own Q.
Stage 2: attention for 128 tokens x 2 heads over all keys, S^T = K Q^T, exp2 in place, P V through sparse MFMAs that
         read the high halves of the fp32 probabilities; a row of ones in the V operand gives the row sums.
         The stand-in maximum is 0: it is accepted only if the row sum lies in [2^-16, 2^100] and every accumulator is
         finite, otherwise the wave redoes its rows with the true maximum (L_fb).
         The down projection of a 64 x 64 output tile runs in the same loop once the producers' flags are seen.
Stage 3: attention outputs are handed over through d_ws (cleared to a mark earlier in this launch), projected,
         mixed with the FFN branch, reduced through LDS and stored.""".split("\n")]
    out += a.l
    out += ['.section .rodata,"a"', ".p2align 6", ".amdhsa_kernel %s_kernel" % NAME,
            "  .amdhsa_next_free_vgpr %d" % NV, "  .amdhsa_next_free_sgpr 102", "  .amdhsa_accum_offset 256",
            "  .amdhsa_group_segment_fixed_size 0", "  .amdhsa_kernarg_size 104", "  .amdhsa_user_sgpr_count 2",
            "  .amdhsa_user_sgpr_kernarg_segment_ptr 1", "  .amdhsa_system_sgpr_workgroup_id_x 1", ".end_amdhsa_kernel", ""]
    return "\n".join(out)

if __name__ == "__main__":
    path = sys.argv[1]
    for kv in sys.argv[2:]:
        k, val = kv.split("=")
        cur = getattr(Opt, k)
        setattr(Opt, k, val if isinstance(cur, str) else type(cur)(int(val)))
    open(path, "w").write(build())
```

```python
import sys, struct, math

NAME = "gated_mix__grouped_kv_mqa__geglu_ffn__prompt"

class Opt:
    diag = 0
    mapmode = 1
    force_fb = False
    allsc = 0
    out_pol = "sc0 sc1"
    code_pf = True
    xrot = 0
    pregap = 0
    klate = 1
    bpre = 0
    oddl = 1
    hlate = 1
    hpub = 3
    rwait = 1
    aearly = 0
    bidle = 1
    old_pol = "sc1"
    ypos0 = "36g"
    ypos1 = "36bg"
    ypos2 = "36cg9"
    nd = 1
    nx = 0
    tpos = 1
    cfirst = 0
    tch = 12
    stch = 0
    spos = 1
    tlb = 14
    olate = 1
    hrot = 0
    tbar = 0
    hord = 1
    cmap = 1
    kqx = 2
    oearly = 8
    conc = 1
    ghx = 1
    qa = "077777"
    qb = "588888"
    npre = 8
    stagger = 1
    rper = 2
    dma1 = 17
    kprio = 0
    dma0 = 8
    npd = 4
    kdiag = 0
    fillpre = 0
    fillper = 5
    gsc = 2
    sched = 0
    xmask = 1
    ntx = 0
    touch = 2
    rotg = 0
    rotm = 0
    startbar = 1
    pvz = 1
    pin = -1
    pin_ns = 60000
    probe = -1
    probe_x = -1
    probe_mul = 10
    probe_w = -1
    probe_r = -1
    pcyc = -1
    prt = 0
    probe_l = 0

def f2u(x): return struct.unpack("<I", struct.pack("<f", x))[0]

WS_KV = 0
WS_G = 128 * 1024
WS_HFLAG = 192 * 1024
WS_OF = 1 << 20
WS_HF = 4 << 20
WS_STAMP = 12 << 20
WS_SIZE = 16 << 20
K1 = 1024
L_G, L_U, L_X, L_WQ = 0, 48 * K1, 96 * K1, 144 * K1
L_QX = 32 * K1
L_WD, L_WO, L_KV = 0, 64 * K1, 128 * K1
L_RED = 96 * K1
LL_X, LL_W, LL_GATE, LL_WQ = 0, 128 * K1, 144 * K1, 128 * K1
LDS_BYTES = 160 * K1

SX, SWG, SWU, SWQ, SWS, SWD, SWO, SOUT, SDBG, SWKV, SGATE, SKV = 4, 8, 12, 16, 20, 24, 28, 32, 36, 40, 44, 64
SWV = 72
sTMPP = 48
sW, sHI, sLO, sG, sM, sT, sCB = 50, 51, 52, 53, 54, 55, 56
sWK = 57
sWH = 58
sVM = 60
sRET = 62
sA, sB, sC, sD = 68, 69, 70, 71
sOFFW, sOFFQ, sCH, sXP = 72, 73, 74, 75
sHOFF, sWDOFF, sKVOFF, sHXO, sCNT = 72, 73, 74, 75, 77
sOUTO, sLO_, sRNG = 59, 81, 75
sOLD2 = 58
sOST, sOLD, sHST = 78, 79, 80
sHST2 = 3
sRX, sRW, sM0B = 40, 41, 42
sKQ = 76
sHP = 81
sSTAMP = 82

def srd(b): return "s[%d:%d]" % (b, b + 3)
def sp(b): return "s[%d:%d]" % (b, b + 1)
def v(b, n=1): return "v%d" % b if n == 1 else "v[%d:%d]" % (b, b + n - 1)

vL16 = 1
vT0, vT1, vT2, vT3 = 2, 3, 4, 5
vGP, vGC = 6, 7
vKVA = 8
vWDA = 9
vWDV = 10
vONE = 11
vZERO = 12
vFLA = 13
vPOLL = 14
vGA = 15
vQ = 16
vK0 = 20
vV1L = 24
vIDX = 28
vAW0, vAR0, vOUTA = 30, 31, 12
vKVB = 29
vP = 32
vV = 40
vO = 56
vD = 72
vACC = 104
vS = 104
vH = 136
vAQ = vP
vF1 = 168
vKF = 168
vWF = 176
vWX = 224
vHX = 232
vPK = 20
WOF = [32, 208, 216, 240, 248, 40, 48, 56]
vWOA = 236
vFR = 184
vLX = 224
vXA = 240
vWA = 244
vQA = 248
vDX, vDG, vDQ = 249, 250, 251
vC0 = 252
vTID = 255
vHA = 254
NV = 256

class Asm:
    def __init__(self):
        self.l = []
        self.vm = []
        self.nstamp = 0
    def e(self, s):
        for x in s.split("\n"):
            x = x.strip()
            if x: self.l.append("    " + x)
    def lab(self, s): self.l.append(s + ":")
    def vmop(self, s, tag):
        self.e(s); self.vm.append(tag)
    def vmn(self, tags):
        if isinstance(tags, str): tags = [tags]
        last = -1
        for i, t in enumerate(self.vm):
            if t in tags: last = i
        return None if last < 0 else len(self.vm) - 1 - last
    def waitvm(self, tags, lgkm=False):
        n = self.vmn(tags)
        if n is None:
            if lgkm: self.e("s_waitcnt lgkmcnt(0)")
            return
        assert n < 64
        self.e("s_waitcnt vmcnt(%d)%s" % (n, " lgkmcnt(0)" if lgkm else ""))
        self.vm = self.vm[len(self.vm) - n:] if n else []
    def wait0(self, lgkm=False):
        self.e("s_waitcnt vmcnt(0)%s" % (" lgkmcnt(0)" if lgkm else "")); self.vm = []
    def stamp(self, i, real=False):
        if Opt.probe == i:
            self.e("s_waitcnt lgkmcnt(0)")
            self.e("s_memrealtime %s" % sp(sSTAMP + 4))
            if Opt.pcyc >= 0: self.e("%s %s" % ("s_memrealtime" if Opt.prt else "s_memtime", sp(sSTAMP + 8)))
            self.e("s_waitcnt lgkmcnt(0)")
        if Opt.pin == i:
            self.nstamp += 1
            self.e("s_waitcnt lgkmcnt(0)")
            self.e("s_cselect_b32 s%d, 1, 0" % (sSTAMP + 5))
            self.lab("L_pin%d" % self.nstamp)
            self.e("s_memrealtime s[0:1]")
            self.e("s_waitcnt lgkmcnt(0)")
            self.e("s_sub_u32 s0, s0, s%d" % sSTAMP)
            self.e("s_cmp_lt_u32 s0, %d" % (Opt.pin_ns // 10))
            self.e("s_cbranch_scc1 L_pin%d" % self.nstamp)
            self.e("s_cmp_lg_u32 s%d, 0" % (sSTAMP + 5))
        if Opt.diag and not Opt.kdiag and (Opt.diag == 1 or i == 9):
            self.e("s_waitcnt lgkmcnt(0)")
            self.e("s_memtime %s" % sp(sSTAMP + 2 * i))
            self.e("s_memrealtime %s" % sp(sRET))
            self.e("s_waitcnt lgkmcnt(0)")
            self.e("s_mov_b32 s%d, s%d" % (sSTAMP + 2 * i + 1, sRET))

def astamp(a, i):
    if Opt.diag and Opt.kdiag == 2: a.e("s_memtime %s" % sp(sSTAMP + 2 * i))

def tstamp(a, i):
    if Opt.diag and Opt.kdiag == 3: a.e("s_memtime %s" % sp(sSTAMP + 2 * i))

def kstamp(a, i):
    if Opt.probe == 18 + i: a.e("s_memrealtime %s" % sp(sSTAMP + 4))
    if Opt.diag and Opt.kdiag == 1: a.e("s_memtime %s" % sp(sSTAMP + 2 * i))

def mfma(d, a, b, c):
    return "v_mfma_f32_32x32x16_bf16 %s, %s, %s, %s" % (v(d, 16), v(a, 4), v(b, 4), "0" if c is None else v(c, 16))
def smfmac(d, a, b):
    return "v_smfmac_f32_32x32x32_bf16 %s, %s, %s, %s" % (v(d, 16), v(a, 4), v(b, 8), v(vIDX))
def mfma16(d, a, b, c):
    return "v_mfma_f32_16x16x32_bf16 %s, %s, %s, %s" % (v(d, 4), v(a, 4), v(b, 4), "0" if c is None else v(c, 4))
def rd128(d, a, off):
    assert 0 <= off < 65536
    return "ds_read_b128 %s, %s offset:%d" % (v(d, 4), v(a), off)
def rdtr(d, a, off):
    assert 0 <= off < 65536
    return "ds_read_b64_tr_b16 %s, %s offset:%d" % (v(d, 2), v(a), off)

def interleave(mf, fill, per=2):
    out = []
    fill = list(fill)
    for i, m in enumerate(mf):
        out.append(m)
        if i < len(mf) - 1:
            out += fill[:per]; fill = fill[per:]
    return out + fill

def srd_words(a, regs):
    sizes = {SX: 2048 * 1024, SWG: 512 * 3584, SWU: 512 * 3584, SWQ: 512 * 1024, SWS: WS_SIZE, SWKV: 16384, SWV: 16384,
             SGATE: 1024, SWD: 1792 * 1024, SWO: 512 * 1024, SOUT: 2048 * 1024, SDBG: 256, SKV: 128 * 1024}
    for reg in regs:
        a.e("s_mov_b32 s%d, 0x%x" % (reg + 2, sizes[reg]))
        a.e("s_mov_b32 s%d, 0x20000" % (reg + 3))

def ptr_loads(a, lst):
    for reg, off in lst: a.e("s_load_dwordx2 %s, s[0:1], %d" % (sp(reg), off))

def prologue(a):
    if Opt.diag or Opt.pin >= 0 or Opt.probe >= 0:
        a.e("s_memrealtime %s" % sp(sSTAMP))
        if Opt.diag in (1, 2): a.e("s_memtime %s" % sp(sSTAMP + 2))
    ptr_loads(a, ((SX, 0), (SWG, 48), (SWU, 56), (SWQ, 8)))
    if Opt.probe == 1: a.stamp(1)
    a.e("v_lshrrev_b32 v2, 6, v0")
    if Opt.code_pf:
        a.e("s_getpc_b64 %s" % sp(sRET))
        a.lab("L_nopf")
        a.e("s_and_b32 s%d, s2, -8" % sA)
        a.e("v_add_lshl_u32 v4, v2, s%d, 7" % sA)
        a.e("v_mov_b32 v5, 0")
        a.e("v_min_u32 v4, CODE_PF_MAX, v4")
        a.e("v_lshl_add_u64 v[4:5], v[4:5], 0, %s" % sp(sRET))
        a.e("global_load_dword %s, v[4:5], off" % v(vPOLL))
    if not Opt.klate: a.e("s_load_dwordx8 s[%d:%d], s[0:1], 64" % (SOUT, SOUT + 7))
    a.e("v_readfirstlane_b32 s%d, v2" % sW)
    if not Opt.klate: ptr_loads(a, ((SWS, 96),) if Opt.diag or Opt.probe >= 0 else ((SWS, 96), (SWO, 32)))
    a.e("s_cmpk_ge_u32 s2, 256")
    a.e("s_cbranch_scc1 L_end")
    if Opt.oddl:
        a.e("s_bfe_u32 s%d, s2, 0x10002" % sD)
        a.e("s_bfe_u32 s%d, s2, 0x30003" % sA)
        a.e("s_lshl3_add_u32 s%d, s%d, s%d" % (sG, sD, sA))
        a.e("s_and_b32 s%d, s2, 3" % sA)
        if Opt.oddl == 2: a.e("s_xor_b32 s%d, s%d, 1" % (sA, sA))
        a.e("s_lshr_b32 s%d, s2, 6" % sB)
        a.e("s_lshl2_add_u32 s%d, s%d, s%d" % (sHP, sA, sB))
        a.e("s_lshr_b32 s%d, s%d, 3" % (sB, sHP))
        a.e("s_sub_u32 s%d, s%d, s%d" % (sM, sHP, sB))
        a.e("s_lshl_b32 s%d, s%d, 10" % (sWK, sW))
        a.e("s_andn2_b32 s%d, 7, s%d" % (sA, sHP))
        a.e("s_cbranch_scc0 L_light")
    else:
        a.e("s_and_b32 s%d, s2, 1" % sD)
        a.e("s_bfe_u32 s%d, s2, 0x30003" % sA)
        a.e("s_lshl3_add_u32 s%d, s%d, s%d" % (sG, sD, sA))
        a.e("s_bfe_u32 s%d, s2, 0x20001" % sA)
        a.e("s_lshr_b32 s%d, s2, 6" % sB)
        a.e("s_lshl2_add_u32 s%d, s%d, s%d" % (sM, sA, sB))
        a.e("s_mov_b32 s%d, s%d" % (sHP, sM))
        a.e("s_lshl_b32 s%d, s%d, 10" % (sWK, sW))
        a.e("s_cmp_ge_u32 s%d, 14" % sM)
        a.e("s_cbranch_scc1 L_light")

def xvoff(a, t):
    a.e("v_lshrrev_b32 v2, 4, %s" % v(t))
    a.e("v_xor_b32 v2, v2, %s" % v(t))
    a.e("v_and_b32 v2, 7, v2")
    a.e("s_lshl_b32 s%d, s%d, 17" % (sA, sG))
    a.e("v_lshl_add_u32 v2, v2, 4, s%d" % sA)
    a.e("v_lshrrev_b32 v3, 3, %s" % v(t))
    a.e("v_lshl_add_u32 %s, v3, 10, v2" % v(vDX))

def setup_ids(a):
    if Opt.klate:
        ptr_loads(a, ((SWS, 96), (SKV, 96), (SDBG, 88), (SWD, 64), (SWO, 32), (SOUT, 80)))
    else:
        a.e("s_mov_b64 %s, %s" % (sp(SKV), sp(SWS)))
        a.e("s_mov_b64 %s, %s" % (sp(SWD), sp(SOUT)))
        a.e("s_mov_b64 %s, %s" % (sp(SOUT), sp(SOUT + 4)))
        a.e("s_mov_b64 %s, %s" % (sp(SDBG), sp(SOUT + 6)))
    a.e("v_and_b32 v0, 63, v0")
    a.e("v_lshlrev_b32 %s, 4, v0" % v(vL16))
    if Opt.oddl:
        a.e("s_and_b32 s%d, s2, 7" % sA)
        a.e("s_xor_b32 s%d, s%d, 4" % (sA, sA))
    else:
        a.e("s_andn2_b32 s%d, 1, s2" % sA)
        a.e("s_bfe_u32 s%d, s2, 0x20001" % sB)
        a.e("s_lshl2_add_u32 s%d, s%d, s%d" % (sA, sA, sB))
    a.e("s_bfe_u32 s%d, s2, 0x20003" % sB)
    a.e("s_lshl2_add_u32 s%d, s%d, s%d" % (sT, sA, sB))
    a.e("s_lshr_b32 s%d, s2, 5" % sCB)

def setup_rd(a):
    a.e("s_lshr_b32 s%d, s%d, 2" % (sHI, sW))
    a.e("s_and_b32 s%d, s%d, 3" % (sLO, sW))
    a.e("v_and_b32 v2, 15, v0")
    a.e("v_lshrrev_b32 v3, 4, v0")
    a.e("v_bfe_u32 v4, v0, 1, 3")
    a.e("v_xor_b32 v4, v4, v3")
    a.e("v_lshlrev_b32 v4, 4, v4")
    a.e("v_lshl_add_u32 %s, v2, 7, v4" % v(vXA))
    a.e("v_bfe_u32 v2, v0, 2, 2")
    a.e("v_and_b32 v4, 3, v0")
    a.e("v_lshl_add_u32 %s, v3, 3, v2" % v(vQA))
    a.e("v_lshlrev_b32 %s, 6, %s" % (v(vQA), v(vQA)))
    a.e("v_xor_b32 v5, s%d, v3" % sHI)
    a.e("v_and_b32 v5, 1, v5")
    a.e("v_lshl_add_u32 %s, v5, 5, %s" % (v(vQA), v(vQA)))
    a.e("v_lshl_add_u32 %s, v4, 3, %s" % (v(vQA), v(vQA)))

def setup_oclr(a):
    srd_words(a, [SWS, SKV, SDBG])
    a.e("s_mov_b32 s%d, 0xffff" % sVM)
    a.e("s_mov_b32 s%d, 0xffff" % (sVM + 1))
    a.e("s_lshl_b32 s%d, s%d, 2" % (sA, sG))
    a.e("s_add_u32 s%d, s%d, s%d" % (sA, sA, sLO))
    a.e("s_lshl_b32 s%d, s%d, 5" % (sB, sA))
    a.e("s_lshl_b32 s%d, s%d, 1" % (sC, sHP))
    a.e("s_add_u32 s%d, s%d, s%d" % (sB, sB, sC))
    a.e("s_add_u32 s%d, s%d, s%d" % (sB, sB, sHI))
    a.e("s_lshl_b32 s%d, s%d, 10" % (sB, sB))
    a.e("s_add_u32 s%d, s%d, 0x%x" % (sOST, sB, WS_OF))
    for i in range(4): a.e("v_mov_b32 %s, -1" % v(vQ + i))
    a.vmop("buffer_store_dwordx4 %s, %s, %s, s%d offen sc1" % (v(vQ, 4), v(vL16), srd(SWS), sOST), "oclr")
    a.e("v_mov_b32 %s, 1" % v(vONE))
    a.e("v_mov_b32 %s, 0" % v(vZERO))
    a.e("v_and_b32 %s, 31, v0" % v(vGA))
    a.e("v_lshlrev_b32 %s, 2, %s" % (v(vGA), v(vGA)))

def collect(fn):
    t = Asm(); t.marks = {}
    def vmop(s_, tag):
        t.e(s_); t.marks[len(t.l) - 1] = tag
    t.vmop = vmop
    fn(t)
    return [(x, t.marks.get(i)) for i, x in enumerate(t.l)]
def put(a, items):
    for x, tag in items:
        if tag: a.vmop(x, tag)
        else: a.e(x)

def setup_ones(a):
    a.e("s_mov_b32 s%d, 0x110000" % sA)
    a.e("s_mov_b32 s%d, 0x110000" % sB)
    a.e("v_mov_b32 v3, 0x3f803f80")
    a.e("v_cndmask_b32 %s, 0, v3, %s" % (v(vV1L), sp(sA)))
    for i in range(1, 4): a.e("v_mov_b32 %s, %s" % (v(vV1L + i), v(vV1L)))
    for i in range(16): a.e("v_mov_b32 %s, %s" % (v(vV + i), v(vV1L)))

def setup_attn(a):
    srd_words(a, [SWD, SWO, SOUT])
    a.e("s_lshl_b32 s%d, s%d, 2" % (sA, sG))
    a.e("s_add_u32 s%d, s%d, s%d" % (sA, sA, sLO))
    a.e("s_mul_i32 s%d, s%d, 112" % (sB, sA))
    a.e("s_lshl_b32 s%d, s%d, 3" % (sC, sM))
    a.e("s_add_u32 s%d, s%d, s%d" % (sB, sB, sC))
    a.e("s_lshl_b32 s%d, s%d, 2" % (sC, sHI))
    a.e("s_add_u32 s%d, s%d, s%d" % (sB, sB, sC))
    a.e("s_and_b32 s%d, s%d, 1" % (sC, sLO))
    a.e("s_lshl_b32 s%d, s%d, 1" % (sC, sC))
    a.e("s_add_u32 s%d, s%d, s%d" % (sB, sB, sC))
    a.e("s_lshl_b32 s%d, s%d, 10" % (sB, sB))
    a.e("s_add_u32 s%d, s%d, 0x%x" % (sHST, sB, WS_HF))
    a.e("s_mul_i32 s%d, s%d, %d" % (sC, sC, 112 * 1024))
    a.e("s_sub_u32 s%d, %d, s%d" % (sC, 112 * 1024, sC))
    a.e("s_add_u32 s%d, s%d, s%d" % (sHST2, sHST, sC))
    a.e("v_bfe_u32 v2, v0, 2, 2")
    a.e("v_lshrrev_b32 v3, 5, v0")
    a.e("v_lshl_add_u32 v2, v3, 2, v2")
    a.e("v_lshlrev_b32 v2, 6, v2")
    a.e("v_bfe_u32 v3, v0, 4, 1")
    a.e("v_lshl_add_u32 v2, v3, 5, v2")
    a.e("v_and_b32 v3, 3, v0")
    a.e("v_lshl_add_u32 v2, v3, 3, v2")
    a.e("s_lshr_b32 s%d, s%d, 1" % (sA, sW))
    a.e("s_lshl_b32 s%d, s%d, 11" % (sA, sA))
    a.e("v_add_u32 %s, s%d, v2" % (v(vWDA), sA))
    a.e("v_add_u32 %s, 0x%x, %s" % (v(vKVA), L_KV, v(vL16)))
    a.e("v_add_u32 %s, 0x%x, %s" % (v(vKVB), L_KV + 0x4000, v(vL16)))
    a.e("v_bfe_u32 v2, v0, 2, 3")
    a.e("v_lshlrev_b32 v2, 10, v2")
    a.e("v_lshrrev_b32 v3, 5, v0")
    a.e("v_lshl_add_u32 v2, v3, 6, v2")
    a.e("v_and_b32 v3, 3, v0")
    a.e("v_lshl_add_u32 v2, v3, 4, v2")
    a.e("s_lshl_b32 s%d, s%d, 7" % (sB, sCB))
    a.e("v_add_u32 %s, s%d, v2" % (v(vWDV), sB))
    a.e("v_min_u32 v2, 13, v0")
    a.e("v_lshlrev_b32 v2, 7, v2")
    a.e("s_lshr_b32 s%d, s%d, 1" % (sA, sT))
    a.e("s_lshl_b32 s%d, s%d, 11" % (sA, sA))
    a.e("s_add_u32 s%d, s%d, 0x%x" % (sA, sA, WS_HFLAG))
    a.e("v_add_u32 %s, s%d, v2" % (v(vFLA), sA))
    a.e("s_lshl_b32 s%d, s%d, 1" % (sA, sT))
    a.e("s_and_b32 s%d, s%d, 1" % (sB, sW))
    a.e("s_add_u32 s%d, s%d, s%d" % (sA, sA, sB))
    a.e("s_lshl_b32 s%d, s%d, 15" % (sB, sA))
    a.e("s_lshr_b32 s%d, s%d, 1" % (sKQ, sW))
    if Opt.kqx == 2:
        a.e("s_and_b32 s%d, s%d, 2" % (sKQ, sW))
        a.e("s_add_u32 s%d, s%d, s%d" % (sKQ, sKQ, sHI))
    if Opt.kqx == 1:
        a.e("s_lshl_b32 s%d, s%d, 1" % (sC, sCB))
        a.e("s_and_b32 s%d, s%d, 2" % (sC, sC))
        a.e("s_xor_b32 s%d, s%d, s%d" % (sKQ, sKQ, sC))
    a.e("s_lshl_b32 s%d, s%d, 13" % (sC, sKQ))
    a.e("s_add_u32 s%d, s%d, s%d" % (sB, sB, sC))
    a.e("s_add_u32 s%d, s%d, 0x%x" % (sOLD, sB, WS_OF))
    a.e("v_and_b32 v2, 31, v0")
    a.e("v_lshrrev_b32 v3, 5, v0")
    a.e("v_and_b32 v4, 7, v0")
    a.e("v_xor_b32 v3, v3, v4")
    a.e("v_lshlrev_b32 v3, 4, v3")
    a.e("v_lshl_add_u32 v3, v2, 8, v3")
    a.e("s_and_b32 s%d, s%d, 1" % (sB, sW))
    a.e("s_lshl_b32 s%d, s%d, 15" % (sB, sB))
    a.e("s_lshr_b32 s%d, s%d, 1" % (sC, sW))
    a.e("s_lshl_b32 s%d, s%d, 13" % (sD, sC))
    a.e("s_add_u32 s%d, s%d, s%d" % (sOUTO, sD, sB))
    a.e("s_add_u32 s%d, s%d, 0x%x" % (sD, sOUTO, L_RED))
    a.e("v_add_u32 %s, s%d, v3" % (v(vAW0), sD))
    a.e("v_lshrrev_b32 v2, 3, v0")
    a.e("v_lshlrev_b32 v3, 1, v4")
    a.e("v_xor_b32 v3, v3, v2")
    a.e("v_lshlrev_b32 v3, 4, v3")
    a.e("v_lshl_add_u32 v3, v2, 8, v3")
    a.e("s_lshl_b32 s%d, s%d, 11" % (sD, sC))
    a.e("s_add_u32 s%d, s%d, s%d" % (sD, sD, sB))
    a.e("s_add_u32 s%d, s%d, 0x%x" % (sD, sD, L_RED))
    a.e("v_add_u32 %s, s%d, v3" % (v(vAR0), sD))
    a.e("v_lshlrev_b32 v4, 4, v4")
    a.e("v_lshl_add_u32 %s, v2, 10, v4" % v(vOUTA))
    a.e("s_lshl_b32 s%d, s%d, 16" % (sC, sT))
    a.e("s_add_u32 s%d, s%d, s%d" % (sOUTO, sOUTO, sC))
    a.e("s_lshl_b32 s%d, s%d, 7" % (sC, sCB))
    a.e("s_add_u32 s%d, s%d, s%d" % (sOUTO, sOUTO, sC))
    a.e("v_mov_b32 %s, 0xdddd" % v(vIDX))
    a.e("v_lshrrev_b32 v2, 4, v0")
    a.e("v_lshl_add_u32 %s, v2, 8, %s" % (v(vHA), v(vL16)))
    for i in range(16): a.e("v_mov_b32 %s, 0" % v(vO + i))
    for i in range(32): a.e("v_mov_b32 %s, 0" % v(vD + i))
    c0 = -2.0 * math.sqrt(2.0 / math.pi) * math.log2(math.e)
    a.e("v_mov_b32 %s, 0x%x" % (v(vC0), f2u(c0)))
    a.e("v_mov_b32 %s, 0x%x" % (v(vC0 + 1), f2u(c0 * 0.044715)))

def kv_first_loads(a, quartet=False):
    it = []
    for o in (range(0, 16384, 4096) if quartet else range(0, 16384, 8192)):
        b = sWH if quartet else sWK
        it.append(("s_add_u32 m0, s%d, 0x%x\ns_add_u32 s%d, s%d, 0x%x\nbuffer_load_dwordx4 %s, %s, s%d offen sc1 lds"
                   % (b, L_KV + o, sA, b, o, v(vL16), srd(SKV), sA), "kv%d" % (o >> 13)))
    it.append(("s_mov_b32 s%d, 0x%x\nbuffer_load_dwordx4 %s, %s, %s, s%d offen sc1"
               % (sA, 63 * 2048, v(vK0, 4), v(vL16), srd(SKV), sA), "k0"))
    it.append(("s_mov_b64 exec, %s\nbuffer_load_dwordx4 %s, %s, %s, 0 offen offset:%d sc1\ns_mov_b64 exec, -1"
               % (sp(sVM), v(vV1L, 4), v(vL16), srd(SKV), 1024 + 256), "k0"))
    it.append(("s_lshl_b32 s%d, s%d, 2\ns_add_u32 s%d, s%d, s%d\ns_lshl_b32 s%d, s%d, 7\ns_add_u32 s%d, s%d, 0x%x\n"
               "buffer_load_dword %s, %s, %s, s%d offen sc1"
               % (sA, sG, sA, sA, sLO, sA, sA, sA, sA, WS_G, v(vGP), v(vGA), srd(SWS), sA), "k0"))
    it.append(("s_lshl_b32 s%d, s%d, 1\ns_and_b32 s%d, s%d, 1\ns_add_u32 s%d, s%d, s%d\ns_lshl_b32 s%d, s%d, 7\ns_add_u32 s%d, s%d, 0x%x\n"
               "buffer_load_dword %s, %s, %s, s%d offen sc1"
               % (sA, sT, sB, sW, sA, sA, sB, sA, sA, sA, sA, WS_G, v(vGC), v(vGA), srd(SWS), sA), "k0"))
    return it

def spin_counter(a, name, first_loaded, wave=0):
    a.e("s_cmp_lg_u32 s%d, %d" % (sW, wave))
    a.e("s_cbranch_scc1 L_%s_done" % name)
    a.e("s_mov_b32 s%d, 0x4000" % sB)
    if first_loaded: a.e("s_branch L_%s_chk" % name)
    a.lab("L_%s_re" % name)
    a.e("buffer_load_dword %s, off, %s, 0 sc1" % (v(vPOLL), srd(SDBG)))
    a.e("s_waitcnt vmcnt(0)")
    a.lab("L_%s_chk" % name)
    a.e("v_readfirstlane_b32 s%d, %s" % (sA, v(vPOLL)))
    a.e("s_cmp_ge_u32 s%d, 32" % sA)
    a.e("s_cbranch_scc1 L_%s_done" % name)
    a.e("s_sleep 4")
    a.e("s_sub_u32 s%d, s%d, 1" % (sB, sB))
    a.e("s_cmp_lg_u32 s%d, 0" % sB)
    a.e("s_cbranch_scc1 L_%s_re" % name)
    a.lab("L_%s_done" % name)

def phase1_F(a):
    SCHED = {1: ["01423567", "10253467", "23016457", "32104756"],
             2: ["02134657", "01324576", "10243567", "10235467"],
             3: ["01324657", "01243576", "12035467", "20134567"],
             5: ["01243567", "10325467", "23014657", "32104576"],
             6: ["01243567", "10325467", "01234657", "10324576"],
             7: ["01234567", "10235476", "01234567", "10235476"],
             8: ["01234567", "10243657", "01234567", "10243657"],
             4: ["02143657", "10325476", "02143657", "10325476"]}
    tabs = SCHED[Opt.sched] if Opt.sched else ["".join(str(c ^ (p & Opt.xmask)) for c in range(8)) for p in range(4)]
    for t_ in tabs: assert sorted(t_) == list("01234567")
    num = [int(t_[::-1], 16) for t_ in tabs]
    def table(a):
        a.e("s_add_u32 s%d, s%d, s%d" % (sA, sG, sHP))
        a.e("s_mov_b32 s%d, 0x%x" % (sXP, num[0]))
        a.e("s_mov_b32 s%d, 0x%x" % (sB, num[2]))
        a.e("s_bitcmp1_b32 s%d, 0" % sA)
        a.e("s_cselect_b32 s%d, 0x%x, s%d" % (sXP, num[1], sXP))
        a.e("s_cselect_b32 s%d, 0x%x, s%d" % (sB, num[3], sB))
        a.e("s_bitcmp1_b32 s%d, 1" % sA)
        a.e("s_cselect_b32 s%d, s%d, s%d" % (sXP, sB, sXP))
        if Opt.ghx:
            a.e("s_bitcmp1_b32 s%d, 3" % sG)
            a.e("s_cselect_b32 s%d, 0x44444444, 0" % sB)
            a.e("s_xor_b32 s%d, s%d, s%d" % (sXP, sXP, sB))
    fo, fw = {"0000": (0, 0), "0101": (0, 1), "0011": (1, 1), "0123": (0, 2)}["".join(t_[0] for t_ in tabs)]
    a.e("s_add_u32 s%d, s%d, s%d" % (sA, sG, sHP))
    a.e("s_bfe_u32 s%d, s%d, 0x%x" % (sCH, sA, fw << 16 | fo))
    if Opt.ghx: a.e("s_lshl2_add_u32 s%d, s%d, s%d" % (sCH, sD, sCH))
    a.e("s_and_b32 s%d, s%d, 0xc00" % (sWH, sWK))
    a.e("v_and_b32 %s, 0xff, v0" % v(vTID))

    def wvoff(a):
        a.e("v_lshrrev_b32 v2, 4, %s" % v(vTID))
        a.e("v_lshrrev_b32 v3, 5, %s" % v(vTID))
        a.e("v_bfi_b32 v3, 3, v2, v3")
        a.e("v_lshlrev_b32 v3, 1, v3")
        a.e("v_xor_b32 v3, v3, %s" % v(vTID))
        a.e("v_and_b32 v3, 15, v3")
        a.e("s_lshl_b32 s%d, s%d, 8" % (sA, sM))
        a.e("v_lshl_add_u32 v3, v3, 4, s%d" % sA)
        a.e("v_mul_u32_u24 v2, 3584, v2")
        a.e("v_add_u32 %s, v2, v3" % v(vDG))
    def qvoff(a):
        a.e("v_lshrrev_b32 v2, 4, %s" % v(vTID))
        a.e("v_and_b32 v2, 2, v2")
        a.e("v_xor_b32 v2, v2, %s" % v(vTID))
        a.e("v_and_b32 v2, 3, v2")
        a.e("s_lshl_b32 s%d, s%d, 6" % (sA, sHP))
        a.e("v_lshl_add_u32 v2, v2, 4, s%d" % sA)
        a.e("v_lshrrev_b32 v3, 2, %s" % v(vTID))
        a.e("v_lshl_add_u32 %s, v3, 10, v2" % v(vDQ))
    def stouch(a):
        if (Opt.diag or Opt.probe >= 0) and not Opt.klate: a.e("s_load_dwordx2 %s, s[0:1], 32" % sp(SWO))
        if not Opt.stch: return
        a.e("s_lshr_b32 s%d, s%d, 2" % (sA, sW))
        if Opt.ghx: a.e("s_lshl2_add_u32 s%d, s%d, s%d" % (sA, sD, sA))
        a.e("s_lshl_b32 s%d, s%d, 6" % (sA, sA))
        a.e("s_and_b32 s%d, s%d, 7" % (sB, sG))
        a.e("s_add_u32 s%d, s%d, s%d" % (sA, sA, sB))
        a.e("s_mul_i32 s%d, s%d, 28" % (sA, sA))
        a.e("s_bfe_u32 s%d, s%d, 0x10001" % (sB, sW))
        a.e("s_lshl1_add_u32 s%d, s%d, s%d" % (sB, sM, sB))
        a.e("s_add_u32 s%d, s%d, s%d" % (sA, sA, sB))
        a.e("s_lshl_b32 s%d, s%d, 7" % (sA, sA))
        a.e("s_bitcmp1_b32 s%d, 0" % sW)
        a.e("s_cselect_b64 %s, %s, %s" % (sp(SWKV), sp(SWU), sp(SWG)))
        a.e("s_add_u32 s%d, s%d, s%d" % (SWKV, SWKV, sA))
        a.e("s_addc_u32 s%d, s%d, 0" % (SWKV + 1, SWKV + 1))
        for i in range(Opt.stch):
            a.e("s_load_dwordx2 %s, %s, 0x%x" % (sp(sTMPP), sp(SWKV), 128 * 3584 + i * 8 * 3584 + 60))
    def wsrd(a):
        srd_words(a, [SWG])
        a.e("s_mov_b64 %s, %s" % (sp(SWU + 2), sp(SWG + 2)))

    if Opt.hrot:
        ORDER = [("q", 0)] + [(t_, 2 * h_ + j) for h_ in range(2) for t_, j in (("x", 0), ("x", 1), ("g", 0), ("u", 0), ("g", 1), ("u", 1))]
    else:
        ORDER = [("q", 0)] + [("x", j) for j in range(4)] + [(t_, j) for j in range(4) for t_ in "gu"]
    def block(items):
        out = []; lastc = None; lastw = None
        for c, kind, j in items:
            s = c % 3; pre = []
            if c != lastc:
                if c: pre.append("s_bfe_u32 s%d, s%d, 0x%x" % (sCH, sXP, 0x30000 + 4 * c))
                lastc = c; lastw = None
            fam = "w" if kind in "gu" else kind
            rot = Opt.hrot and fam != "q"
            if lastw is None or lastw[0] != fam or (rot and lastw[1] >> 1 != j >> 1):
                pre.append({"q": "s_lshl_b32 s%d, s%d, 16" % (sOFFW, sCH), "x": "s_lshl_b32 s%d, s%d, 7" % (sOFFW, sCH),
                            "w": "s_mul_i32 s%d, s%d, %d" % (sOFFW, sCH, 64 * 3584)}[fam])
                if rot: pre.append("s_%s_u32 s%d, s%d, s%d" % ("sub" if j >> 1 else "add", sOFFW, sOFFW, sRX if fam == "x" else sRW))
                lastw = (fam, 0)
            if lastw[1] != j:
                pre.append("s_add_u32 s%d, s%d, 0x%x" % (sOFFW, sOFFW, (j - lastw[1]) * (0x8000 if fam == "x" else 16 * 3584)))
                lastw = (fam, j)
            m0c, vo, rs = {"q": (L_WQ + s * 4096, vDQ, SWQ), "x": (L_X + s * 16384 + j * 4096, vDX, SX),
                           "g": (L_G + s * 16384 + j * 4096, vDG, SWG), "u": (L_U + s * 16384 + j * 4096, vDG, SWU)}[kind]
            nt = " nt" if Opt.ntx & (1 if rs == SX else 2) else ""
            out.append(("s_add_u32 m0, s%d, 0x%x\n%s\nbuffer_load_dwordx4 %s, %s, s%d offen%s lds"
                        % ((sM0B + (j >> 1)) if rot else sWH, m0c, "\n".join(pre) or "s_nop 0", v(vo), srd(rs), sOFFW, nt), "c%d" % c))
        return out
    def part(c, role): return [(c, k_, j) for k_, j in ORDER if (k_ in "gu") == (role == "A")]

    def rdsetup(a):
        setup_rd(a)
        a.e("v_lshl_add_u32 %s, v3, 3, v2" % v(vWA))
        a.e("v_lshlrev_b32 %s, 8, %s" % (v(vWA), v(vWA)))
        a.e("v_lshl_add_u32 %s, v4, 3, %s" % (v(vWA), v(vWA)))
        a.e("v_and_b32 v5, 1, v3")
        a.e("v_lshl_add_u32 v2, v5, 2, v2")
        a.e("s_lshl_b32 s%d, s%d, 2" % (sA, sHI))
        a.e("s_and_b32 s%d, s%d, 1" % (sB, sLO))
        a.e("s_lshl_b32 s%d, s%d, 1" % (sB, sB))
        a.e("s_add_u32 s%d, s%d, s%d" % (sA, sA, sB))
        a.e("v_xor_b32 v2, s%d, v2" % sA)
        a.e("v_lshl_add_u32 %s, v2, 5, %s" % (v(vWA), v(vWA)))
        a.e("v_xor_b32 %s, 32, %s" % (v(vWA + 1), v(vWA)))
        a.e("v_add_u32 %s, 0x%x, %s" % (v(vWA + 2), L_U - L_G, v(vWA)))
        a.e("v_add_u32 %s, 0x%x, %s" % (v(vWA + 3), L_U - L_G, v(vWA + 1)))
        a.e("s_lshl_b32 s%d, s%d, 12" % (sA, sLO))
        a.e("s_add_u32 s%d, s%d, 0x%x" % (sA, sA, L_X))
        a.e("v_add_u32 %s, s%d, %s" % (v(vXA), sA, v(vXA)))
        a.e("v_xor_b32 %s, 0x1000, %s" % (v(vXA + 1), v(vXA)))
        a.e("v_xor_b32 %s, 64, %s" % (v(vXA + 2), v(vXA)))
        a.e("v_xor_b32 %s, 64, %s" % (v(vXA + 3), v(vXA + 1)))
        a.e("v_add_u32 %s, 0x%x, %s" % (v(vQA), L_WQ, v(vQA)))

    a.e("s_cmp_ge_u32 s%d, 4" % sW)
    a.e("s_cbranch_scc1 L_setB")
    late = collect(setup_oclr) + collect(setup_ones) + [("; later", None)] + collect(setup_attn)
    words = collect(lambda t: srd_words(t, [SWS, SKV, SDBG, SWD, SWO, SOUT]))
    late = [x for x in late if x not in words]
    oclr = [x for x in late if x[1] == "oclr"]
    if Opt.olate: late = [x for x in late if x[1] != "oclr"]
    else: oclr = []
    words += [("v_mov_b32 %s, 0" % v(r_), None) for r_ in (vGA, vWDV, vFLA, vHA, vOUTA)]
    st = collect(rdsetup) + words + late[:Opt.fillpre]
    cut = late.index(("; later", None)) if Opt.bidle else len(late)
    fills = {"A": late[Opt.fillpre:], "B": late[Opt.fillpre:max(cut, Opt.fillpre)]}
    idleB = late[max(cut, Opt.fillpre):]
    vms = {}
    wsrd(a); wvoff(a)
    a.e("s_waitcnt lgkmcnt(0)")
    a.stamp(2)
    if Opt.spos == 0: stouch(a)
    put(a, block(part(0, "A")))
    a.e("s_branch L_setA")
    vms["A"] = a.vm; a.vm = []
    a.lab("L_setB")
    srd_words(a, [SX]); xvoff(a, vTID)
    a.e("s_waitcnt lgkmcnt(0)")
    a.stamp(2)
    if Opt.spos == 0: stouch(a)
    put(a, block(part(0, "B")[1:]))
    srd_words(a, [SWQ]); qvoff(a)
    put(a, block(part(0, "B")[:1]))
    vms["B"] = a.vm
    for role in "BA":
        a.vm = vms[role]
        if role == "A": a.lab("L_setA")
        if Opt.spos == 1: stouch(a)
        table(a)
        setup_ids(a)
        if role == "A": srd_words(a, [SX, SWQ])
        else: wsrd(a)
        def touches():
            tm = sum(0xff << (8 * i) for i in range(4) if Opt.tch >> i & 1)
            setex = "s_bitcmp1_b32 s%d, 3\ns_cselect_b32 exec_lo, 0, 0x%x\ns_cselect_b32 exec_hi, 0x%x, 0" % (sG, tm, tm) if Opt.ghx \
                    else "s_mov_b32 exec_lo, 0x%x\ns_mov_b32 exec_hi, 0" % tm
            if Opt.tlb & 2 and role == "B":
                a.e("s_and_b32 s%d, s%d, 7" % (sA, sG))
                a.e("v_lshl_add_u32 v2, v0, 3, s%d" % sA)
                a.e("v_mul_u32_u24 v3, 3584, v2")
                a.e("s_and_b32 s%d, s%d, 1" % (sB, sW))
                a.e("s_lshl1_add_u32 s%d, s%d, s%d" % (sA, sM, sB))
                a.e("s_lshl_b32 s%d, s%d, 7" % (sA, sA))
                a.e(setex)
                a.e("s_cmp_ge_u32 s%d, 6" % sW)
                a.e("s_cbranch_scc1 L_tlbu")
                a.e("buffer_load_dword %s, v3, %s, s%d offen" % (v(vPOLL), srd(SWG), sA))
                a.e("s_branch L_tlbe")
                a.lab("L_tlbu")
                a.e("buffer_load_dword %s, v3, %s, s%d offen" % (v(vPOLL), srd(SWU), sA))
                a.lab("L_tlbe")
                a.e("s_mov_b64 exec, -1")
                a.vm.append("tlb")
            if Opt.tlb & 12 and role == "A":
                a.e("s_cmp_lg_u32 s%d, 0" % sW)
                a.e("s_cbranch_scc1 L_tlbx")
                a.e("s_and_b32 s%d, s%d, 7" % (sA, sG))
                a.e("v_lshl_add_u32 v2, v0, 3, s%d" % sA)
                a.e("v_lshlrev_b32 v3, 10, v2")
                a.e("s_lshl_b32 s%d, s%d, 6" % (sA, sHP))
                a.e(setex if Opt.tlb & 4 else "s_mov_b64 exec, 1")
                a.e("buffer_load_dword %s, v3, %s, s%d offen" % (v(vPOLL), srd(SWQ), sA))
                a.e("s_branch L_tlby")
                a.lab("L_tlbx")
                a.e("s_and_b32 s%d, s%d, 3" % (sA, sHP))
                a.e("s_lshl2_add_u32 s%d, s%d, s%d" % (sA, sG, sA))
                a.e("s_lshl_b32 s%d, s%d, 15" % (sA, sA))
                a.e("v_lshl_add_u32 v3, v0, 10, s%d" % sA)
                a.e("s_lshr_b32 s%d, s%d, 3" % (sA, sG))
                a.e("s_lshl2_add_u32 s%d, s%d, s%d" % (sA, sA, sW) if Opt.ghx else "s_mov_b32 s%d, s%d" % (sA, sW))
                a.e("s_lshl_b32 s%d, s%d, 7" % (sA, sA))
                a.e("s_bitcmp1_b32 %d, s%d" % (Opt.tch if Opt.tlb & 8 else 0, sW))
                a.e("s_cselect_b32 exec_lo, -1, 1")
                a.e("s_mov_b32 exec_hi, 0")
                a.e("buffer_load_dword %s, v3, %s, s%d offen" % (v(vPOLL), srd(SX), sA))
                a.lab("L_tlby")
                a.e("s_mov_b64 exec, -1")
                a.vm.append("tlb")
        if Opt.tpos == 0: touches()
        if Opt.startbar: a.e("s_barrier")
        npre = min(Opt.npre, 8) if role == "A" else 5
        pn = block(part(1, role)[:npre])
        rest = st + (collect(qvoff) + collect(lambda t: xvoff(t, vTID)) if role == "A" else collect(wvoff))
        gap = len(rest) // (npre + Opt.pregap) + 1
        if Opt.tpos == 2:
            put(a, pn); touches(); npre = 0
        if Opt.tpos == 3 and role == "B":
            put(a, pn); touches(); npre = 0
        for i in range(npre):
            put(a, pn[:1]); pn = pn[1:]
            put(a, rest[:gap]); rest = rest[gap:]
        put(a, rest)
        if Opt.tpos == 1 or (Opt.tpos == 3 and role == "A"): touches()
        a.e("s_mov_b64 vcc, %d" % (-1 if role == "A" else 0))
        if role == "A":
            a.waitvm("c0", lgkm=True)
        else:
            a.e("s_setprio 1")
            a.waitvm("c0", lgkm=True)
            a.e("s_branch L_k0")
        vms[role] = a.vm
    stream = part(1, "A")[min(Opt.npre, 8):] + [(c, k_, j) for c in range(2, 8) for k_, j in ORDER]
    qa = [int(x, 16) for x in Opt.qa]; qb = [int(x, 16) for x in Opt.qb]
    def take(n, cmax):
        m = 0
        while m < n and m < len(stream) and stream[m][0] <= cmax: m += 1
        r_ = stream[:m]; del stream[:m]
        return block(r_)
    a.lab("L_k0")
    a.vm = vms["A"]
    ool = Asm()
    def dmablock(name, role, items, wait=None):
        a.e("s_cbranch_vcc%s L_%s" % ("nz" if role == "A" else "z", name))
        if wait: a.waitvm(wait, lgkm=True)
        a.lab("L_%s_r" % name)
        ool.lab("L_%s" % name)
        ool.vm = a.vm if role == "A" else vms["B"]
        for it_ in items:
            put(ool, [it_])
            fp = Opt.fillper if role == "A" or not Opt.bidle else 2
            put(ool, fills[role][:fp]); fills[role] = fills[role][fp:]
        if name in ("d7", "e7"): put(ool, fills[role]); fills[role] = []
        if wait: ool.waitvm(wait, lgkm=True)
        if role == "B": vms["B"] = ool.vm
        ool.e("s_branch L_%s_r" % name)
    a.ool = ool.l

    def fr(k):
        b = vF1 + 36 * (k % 2)
        return dict(x=b, w=b + 16, q=b + 32)
    def reads(k):
        c, s = divmod(k, 2); f = fr(k); sl = c % 3
        wo = sl * 16384 + s * 8192
        W = lambda i: [rdtr(f['w'] + 4 * i, vWA + i, wo), rdtr(f['w'] + 4 * i + 2, vWA + i, wo + 1024)]
        X = [rd128(f['x'] + 4 * b, vXA + 2 * s + (b >> 1), sl * 16384 + (b & 1) * 2048) for b in range(4)]
        return W(0) + X + W(2) + W(1) + W(3) + [rdtr(f['q'], vQA, sl * 4096 + s * 2048), rdtr(f['q'] + 2, vQA, sl * 4096 + s * 2048 + 256)]
    a.e("s_barrier")
    a.stamp(3)
    if Opt.kdiag or Opt.probe >= 18:
        kstamp(a, 2)
        a.e("s_waitcnt lgkmcnt(0)")
    for r in reads(0): a.e(r)
    if qa[0]: dmablock("d2", "A", take(qa[0], 2))
    for k in range(16):
        c, s = divmod(k, 2); f = fr(k)
        z = lambda x: None if k == 0 else x
        mf = []
        for n_, i in enumerate((0, 2, 1, 3)):
            for b in (range(4) if n_ % 2 == 0 else range(3, -1, -1)):
                d = vACC + 16 * b + 4 * i
                mf.append(mfma16(d, f['w'] + 4 * i, f['x'] + 4 * b, z(d)))
        for b in range(2): mf.append(mfma16(vAQ + 4 * b, f['q'], f['x'] + 4 * b, z(vAQ + 4 * b)))
        rds = reads(k + 1) if k < 15 else []
        if s == 0:
            a.e("s_waitcnt lgkmcnt(6)")
            for i, m in enumerate(mf):
                if i == 8: a.e("s_waitcnt lgkmcnt(8)")
                a.e(m)
                if i < len(rds): a.e(rds[i])
            continue
        a.e("s_waitcnt lgkmcnt(8)")
        for m in mf[:4]: a.e(m)
        if c <= 5:
            dmablock("e%d" % (c + 2), "B", take(qb[c], c + 2), "c%d" % (c + 1))
            assert not any(x[0] <= c + 1 for x in stream)
        if c == 7:
            a.e("s_waitcnt lgkmcnt(0)")
        elif c == 6:
            a.e("s_waitcnt lgkmcnt(0)")
            a.e("s_cbranch_vccz L_st7")
            a.e("s_setprio 1")
            a.e("s_waitcnt vmcnt(0)")
            a.e("s_barrier")
            a.lab("L_st7")
        else:
            a.e("s_barrier")
        if c < 7 and ((Opt.kdiag == 1 and Opt.diag) or Opt.probe == 21 + c):
            kstamp(a, 3 + c)
            a.e("s_waitcnt lgkmcnt(0)")
        if c + 3 < 8:
            items = take(qa[c + 1], c + 3)
            dmablock("d%d" % (c + 3), "A", items)
        for i, m in enumerate(mf[4:]):
            a.e(m)
            if i < len(rds): a.e(rds[i])
        if k == 11: assert not stream and not fills["A"] and not fills["B"]
        if k == 11:
            a.e("s_cbranch_vccnz L_st6")
            a.e("s_setprio 0")
            nm = next((i for i, x in enumerate(idleB) if "0xdddd" in x[0]), 0)
            a.e("s_cmp_lg_u32 s%d, 4" % sW)
            a.e("s_cbranch_scc1 L_nopoll")
            a.e("buffer_load_dword %s, off, %s, 0 sc1" % (v(vPOLL), srd(SDBG)))
            a.lab("L_nopoll")
            put(a, idleB[:nm]); idleB = idleB[nm:]
            a.wait0()
            spin_counter(a, "kvf", True, 4)
            a.e("s_barrier")
            put(a, kv_first_loads(a, True) + oclr + idleB)
            a.lab("L_st6")
    a.kvA = (kv_first_loads(a) + oclr)[2:]
    a.stamp(4)

def phase1_L(a):
    a.lab("L_light")
    a.vm = []
    if Opt.oddl: a.e("s_add_u32 s%d, s%d, 14" % (sM, sB))
    if Opt.klate:
        ptr_loads(a, ((SGATE, 72), (SWKV, 16), (SWV, 24)))
    else:
        a.e("s_waitcnt lgkmcnt(0)")
        ptr_loads(a, ((SWKV, 16), (SWV, 24), (SGATE, 72), (SWO, 32)))
    srd_words(a, [SWKV, SWV, SGATE, SX])
    xvoff(a, 0)
    a.e("v_and_b32 v2, 63, v0")
    a.e("v_lshlrev_b32 %s, 4, v2" % v(vL16))
    a.e("s_sub_u32 s%d, s%d, 14" % (sCNT, sM))
    a.e("s_lshl_b32 s%d, s%d, 16" % (sOLD, sCNT))
    a.e("s_lshl_b32 s%d, s%d, 13" % (sHST, sCNT))
    a.e("s_add_u32 s%d, s%d, s%d" % (sWH, sHST, sWK))
    a.e("s_xor_b32 s%d, s%d, 0x2000" % (sHST, sHST))
    a.e("s_add_u32 s%d, s%d, 0x2000" % (sA, sWK))
    a.e("s_waitcnt lgkmcnt(0)")
    a.stamp(2)
    def xdma(c, base, so):
        a.vmop("s_add_u32 m0, s%d, 0x%x\ns_nop 0\nbuffer_load_dwordx4 %s, %s, s%d offen offset:%d lds"
               % (base, LL_X + c * 16384 - c * 128, v(vDX), srd(SX), so, c * 128), "c%d" % c)
    def wdma(u):
        for t, rs in enumerate((SWKV, SWV)):
            a.vmop("s_add_u32 m0, s%d, 0x%x\ns_nop 0\nbuffer_load_dwordx4 %s, %s, s%d offen lds"
                   % (sWK, LL_W + t * 16384 + u * 8192, v(vL16), srd(rs), sA if u else sWK), "w")
    wdma(0)
    a.vmop("s_mov_b32 m0, s%d\ns_nop 0\nbuffer_load_dwordx4 %s, %s, 0 offen lds" % (sHST, v(vL16), srd(SGATE)), "w")
    for c in range(8):
        if c == 4: wdma(1)
        xdma(c, sWH, sOLD)
        if c in (1, 3, 5): a.e("s_barrier")
    setup_ids(a)
    srd_words(a, [SWQ])
    setup_rd(a)
    a.e("v_lshrrev_b32 v3, 5, v0")
    a.e("v_bfrev_b32 v5, v4")
    a.e("v_lshrrev_b32 v5, 30, v5")
    a.e("s_cmp_ge_u32 s%d, 2" % sLO)
    a.e("s_cselect_b64 vcc, -1, 0")
    a.e("v_cndmask_b32 v4, v5, v4, vcc")
    a.e("v_lshl_add_u32 %s, v3, 3, v2" % v(vWA))
    a.e("v_lshlrev_b32 %s, 5, %s" % (v(vWA), v(vWA)))
    a.e("v_lshl_add_u32 %s, v4, 3, %s" % (v(vWA), v(vWA)))
    a.e("s_lshr_b32 s%d, s%d, 1" % (sA, sLO))
    a.e("s_lshl_b32 s%d, s%d, 14" % (sA, sA))
    a.e("s_add_u32 s%d, s%d, 0x%x" % (sA, sA, LL_W))
    a.e("v_add_u32 %s, s%d, %s" % (v(vWA), sA, v(vWA)))
    a.e("v_lshl_add_u32 %s, v3, 4, s%d" % (v(vWA + 1), sHST))
    a.e("s_and_b32 s%d, s%d, 1" % (sA, sLO))
    a.e("s_lshl_b32 s%d, s%d, 1" % (sB, sCNT))
    a.e("s_add_u32 s%d, s%d, s%d" % (sCNT, sA, sB))
    a.e("s_lshl_b32 s%d, s%d, 12" % (sA, sCNT))
    a.e("v_and_b32 v2, 31, v0")
    a.e("v_lshrrev_b32 v4, 1, v0")
    a.e("v_lshlrev_b32 v5, 1, v0")
    a.e("v_bfi_b32 v4, 4, v4, v5")
    a.e("v_bfi_b32 v4, 12, v4, v2")
    a.e("v_cndmask_b32 v2, v2, v4, vcc")
    a.e("v_bfe_u32 v4, v2, 1, 3")
    a.e("v_xor_b32 v4, v4, v3")
    a.e("v_lshlrev_b32 v4, 4, v4")
    a.e("v_lshl_add_u32 v4, v2, 7, v4")
    a.e("v_add_u32 %s, s%d, v4" % (v(vLX), sA))
    for s in range(1, 4): a.e("v_xor_b32 %s, %d, %s" % (v(vLX + s), 32 * s, v(vLX)))
    for s in range(4): a.e("v_add_u32 %s, 0x10000, %s" % (v(vLX + 4 + s), v(vLX + s)))
    a.e("s_waitcnt lgkmcnt(0)")
    setup_oclr(a)
    vm0 = list(a.vm)
    a.e("s_cmp_lg_u32 s%d, 0" % sHI)
    a.e("s_cbranch_scc1 L_lB")
    a.e("s_not_b64 %s, %s" % (sp(sTMPP), sp(sVM)))
    a.e("s_cmp_ge_u32 s%d, 2" % sLO)
    a.e("s_cbranch_scc1 L_lV")
    def chain(kind):
        a.vm = list(vm0)
        def fr(k):
            b = vFR + 8 * (k % 4)
            return b, b + 4
        def reads(k):
            c, s = divmod(k, 4); x, w = fr(k)
            r = [rd128(x, vLX + s + 4 * (c >> 2), (c & 3) * 16384), rdtr(w, vWA, k * 512), rdtr(w + 2, vWA, k * 512 + 128)]
            if kind == "K":
                r += ["s_mov_b64 exec, %s" % sp(sTMPP), rd128(w, vWA + 1, k * 32), "s_mov_b64 exec, -1"]
            return r
        for q in range(4):
            a.waitvm("c%d" % (2 * q + 1))
            a.e("s_barrier")
            nr = 4 if kind == "K" else 3
            for k in range(8 * q, 8 * q + 2):
                for r in reads(k): a.e(r)
            for k in range(8 * q, 8 * q + 8):
                if k + 2 < 8 * q + 8:
                    for r in reads(k + 2): a.e(r)
                left = min(2, 8 * q + 7 - k)
                a.e("s_waitcnt lgkmcnt(%d)" % (left * nr))
                x, w = fr(k)
                cc = None if k == 0 else vACC
                a.e(mfma(vACC, w, x, cc) if kind == "K" else mfma(vACC, x, w, cc))
        a.e("s_lshl_b32 s%d, s%d, 2" % (sA, sG))
        a.e("s_add_u32 s%d, s%d, s%d" % (sA, sA, sCNT))
        a.e("s_nop 12")
        if kind == "K":
            a.e("s_mov_b32 s%d, 0x%x" % (sC, f2u(0.25 * math.log2(math.e))))
            for i in range(8): a.e("v_mul_f32 %s, s%d, %s" % (v(vACC + i), sC, v(vACC + i)))
            a.e("v_mul_f32 %s, 0x%x, %s" % (v(vACC + 8), f2u(-math.log2(math.e)), v(vACC + 8)))
            a.e("v_exp_f32 %s, %s" % (v(vACC + 8), v(vACC + 8)))
            for i in range(4): a.e("v_cvt_pk_bf16_f32 %s, %s, %s" % (v(vFR + i), v(vACC + 2 * i), v(vACC + 2 * i + 1)))
            a.e("v_add_f32 %s, 1.0, %s" % (v(vACC + 8), v(vACC + 8)))
            a.e("v_rcp_f32 %s, %s" % (v(vACC + 8), v(vACC + 8)))
            a.e("s_add_u32 s%d, s%d, 63" % (sB, sA))
            a.e("s_and_b32 s%d, s%d, 63" % (sB, sB))
            a.e("s_lshl_b32 s%d, s%d, 11" % (sB, sB))
            a.e("buffer_store_dwordx4 %s, %s, %s, s%d offen sc1" % (v(vFR, 4), v(vL16), srd(SKV), sB))
            a.e("s_lshl_b32 s%d, s%d, 7" % (sB, sA))
            a.e("s_add_u32 s%d, s%d, 0x%x" % (sB, sB, WS_G))
            a.e("s_mov_b32 exec_hi, 0")
            a.e("buffer_store_dword %s, %s, %s, s%d offen sc1" % (v(vACC + 8), v(vGA), srd(SWS), sB))
            a.e("s_mov_b64 exec, -1")
        else:
            for i in range(8): a.e("v_cvt_pk_bf16_f32 %s, %s, %s" % (v(vFR + i), v(vACC + 2 * i), v(vACC + 2 * i + 1)))
            a.e("v_bfe_u32 v2, v0, 4, 1")
            a.e("v_add_u32 v2, s%d, v2" % sA)
            a.e("v_and_b32 v2, 63, v2")
            a.e("v_lshl_add_u32 v2, v2, 11, %s" % v(vL16))
            for i in range(4): a.e("v_cndmask_b32 %s, %s, %s, %s" % (v(vFR + i), v(vFR + 4 + i), v(vFR + i), sp(sVM)))
            a.e("buffer_store_dwordx4 %s, v2, %s, 0 offen offset:1024 sc1" % (v(vFR, 4), srd(SKV)))
        a.e("s_branch L_lJ")
    chain("K")
    a.lab("L_lV")
    chain("V")
    a.lab("L_lB")
    a.vm = list(vm0)
    a.e("s_cmp_lg_u32 s%d, 14" % sM)
    a.e("s_cbranch_scc1 L_nozf")
    a.e("s_cmp_lg_u32 s%d, 4" % sW)
    a.e("s_cbranch_scc1 L_nozf")
    a.e("v_lshlrev_b32 v2, 7, v0")
    a.e("s_lshl_b32 s%d, s%d, 11" % (sA, sG))
    a.e("s_add_u32 s%d, s%d, 0x%x" % (sA, sA, WS_HFLAG))
    a.e("s_mov_b64 exec, 0xffff")
    a.e("buffer_store_dword %s, v2, %s, s%d offen sc1" % (v(vZERO), srd(SWS), sA))
    a.e("s_mov_b64 exec, -1")
    a.lab("L_nozf")
    for q in range(4):
        a.waitvm("c%d" % (2 * q + 1))
        a.e("s_barrier")
    a.lab("L_lJ")
    a.e("v_lshrrev_b32 v3, 2, v0")
    a.e("v_lshlrev_b32 v3, 10, v3")
    a.e("v_lshrrev_b32 v4, 5, v0")
    a.e("v_lshlrev_b32 v4, 1, v4")
    a.e("v_xor_b32 v4, v4, v0")
    a.e("v_and_b32 v4, 3, v4")
    a.e("v_lshl_add_u32 v3, v4, 4, v3")
    a.e("s_lshl_b32 s%d, s%d, 14" % (sA, sW))
    a.e("s_lshl_b32 s%d, s%d, 6" % (sB, sHP))
    a.e("s_add_u32 s%d, s%d, s%d" % (sA, sA, sB))
    a.e("v_add_u32 %s, s%d, v3" % (v(vDQ), sA))
    a.e("s_xor_b32 s%d, s%d, 0x2000" % (sWH, sWH))
    a.e("s_xor_b32 s%d, s%d, 0x10000" % (sOLD, sOLD))
    a.wait0(lgkm=True)
    a.e("s_barrier")
    a.e("s_cmp_lg_u32 s%d, 0" % sW)
    a.e("s_cbranch_scc1 L_noat")
    a.e("s_mov_b64 exec, 1")
    a.e("buffer_atomic_add %s, off, %s, 0 sc1" % (v(vONE), srd(SDBG)))
    a.e("s_mov_b64 exec, -1")
    a.lab("L_noat")
    a.stamp(3)
    for c in range(8): xdma(c, sWH, sOLD)
    for p in range(4):
        a.e("s_add_u32 m0, s%d, 0x%x" % (sWK, LL_WQ + p * 8192))
        a.e("s_mov_b32 s%d, 0x%x" % (sA, p * 128 * 1024))
        a.e("buffer_load_dwordx4 %s, %s, s%d offen lds" % (v(vDQ), srd(SWQ), sA))
    setup_ones(a)
    setup_attn(a)
    if Opt.touch & 2:
        a.e("s_lshl_b32 s%d, s%d, 1" % (sA, sG))
        a.e("s_add_u32 s%d, s%d, s%d" % (sA, sA, sM))
        a.e("s_sub_u32 s%d, s%d, 14" % (sA, sA))
        a.e("s_lshl_b32 s%d, s%d, 3" % (sA, sA))
        a.e("s_add_u32 s%d, s%d, s%d" % (sA, sA, sW))
        a.e("v_lshlrev_b32 v2, 15, v0")
        a.e("s_lshl_b32 s%d, s%d, 7" % (sA, sA))
        a.e("buffer_load_dword %s, v2, %s, s%d offen" % (v(vPOLL), srd(SWO), sA))
        a.e("buffer_load_dword %s, v2, %s, s%d offen" % (v(vPOLL), srd(SWD), sA))
    a.e("s_lshl_b32 s%d, s%d, 12" % (sA, sLO))
    a.e("v_add_u32 %s, s%d, %s" % (v(vXA), sA, v(vXA)))
    a.e("v_xor_b32 %s, 64, %s" % (v(vXA + 1), v(vXA)))
    a.e("v_add_u32 %s, 0x10000, %s" % (v(vXA + 2), v(vXA)))
    a.e("v_add_u32 %s, 0x10000, %s" % (v(vXA + 3), v(vXA + 1)))
    a.e("v_add_u32 %s, 0x%x, %s" % (v(vQA), LL_WQ, v(vQA)))
    a.e("s_waitcnt vmcnt(%d)" % (2 if Opt.touch & 2 else 0))
    a.e("s_barrier")
    def fr(k): return vFR + 12 * (k % 3)
    def reads(k):
        c, s = divmod(k, 2); f = fr(k)
        return [rd128(f + 4 * b, vXA + s + 2 * (c >> 2), (c & 3) * 16384 + b * 2048) for b in range(2)] + \
               [rdtr(f + 8, vQA, k * 2048), rdtr(f + 10, vQA, k * 2048 + 256)]
    for k in range(2):
        for r in reads(k): a.e(r)
    for k in range(16):
        a.e("s_waitcnt lgkmcnt(%d)" % (4 * min(1, 15 - k)))
        for b in range(2): a.e(mfma16(vAQ + 4 * b, fr(k) + 8, fr(k) + 4 * b, None if k == 0 else vAQ + 4 * b))
        if k + 2 < 16:
            for r in reads(k + 2): a.e(r)
    spin_counter(a, "kvl", False)
    a.e("s_barrier")
    for s, t in kv_first_loads(a): a.e(s)
    a.wait0()
    a.stamp(4)
    a.e("s_branch L_join")

def gelu_tile(a, ti, scalar=False):
    acc = vACC + 16 * ti
    t = vFR
    o = vFR + 8 + 4 * ti
    pk = lambda r: v(r, 2)
    if scalar:
        for i in range(8): a.e("v_mul_f32 %s, %s, %s" % (v(t + i), v(acc + i), v(acc + i)))
        for i in range(8): a.e("v_fma_f32 %s, %s, %s, %s" % (v(t + i), v(t + i), v(vC0 + 1), v(vC0)))
        for i in range(8): a.e("v_mul_f32 %s, %s, %s" % (v(t + i), v(t + i), v(acc + i)))
        for i in range(8): a.e("v_exp_f32 %s, %s" % (v(t + i), v(t + i)))
        for i in range(8): a.e("v_add_f32 %s, 1.0, %s" % (v(t + i), v(t + i)))
        for i in range(8): a.e("v_rcp_f32 %s, %s" % (v(t + i), v(t + i)))
        for i in range(8): a.e("v_mul_f32 %s, %s, %s" % (v(acc + i), v(acc + i), v(acc + 8 + i)))
        for i in range(8): a.e("v_mul_f32 %s, %s, %s" % (v(acc + i), v(acc + i), v(t + i)))
    R4, R8 = (range(0), range(0)) if scalar else (range(4), range(8))
    for i in R4: a.e("v_pk_mul_f32 %s, %s, %s" % (pk(t + 2 * i), pk(acc + 2 * i), pk(acc + 2 * i)))
    for i in R4: a.e("v_pk_fma_f32 %s, %s, %s, %s op_sel:[0,1,0] op_sel_hi:[1,1,0]" % (pk(t + 2 * i), pk(t + 2 * i), pk(vC0), pk(vC0)))
    for i in R4: a.e("v_pk_mul_f32 %s, %s, %s" % (pk(t + 2 * i), pk(t + 2 * i), pk(acc + 2 * i)))
    for i in R8: a.e("v_exp_f32 %s, %s" % (v(t + i), v(t + i)))
    for i in R4: a.e("v_pk_add_f32 %s, %s, 1.0 op_sel_hi:[1,0]" % (pk(t + 2 * i), pk(t + 2 * i)))
    for i in R8: a.e("v_rcp_f32 %s, %s" % (v(t + i), v(t + i)))
    for i in R4: a.e("v_pk_mul_f32 %s, %s, %s" % (pk(acc + 2 * i), pk(acc + 2 * i), pk(acc + 8 + 2 * i)))
    for i in R4: a.e("v_pk_mul_f32 %s, %s, %s" % (pk(acc + 2 * i), pk(acc + 2 * i), pk(t + 2 * i)))
    for i in range(4): a.e("v_cvt_pk_bf16_f32 %s, %s, %s" % (v(o + i), v(acc + 2 * i), v(acc + 2 * i + 1)))
    a.vmop("buffer_store_dwordx4 %s, %s, %s, s%d offen offset:%d sc1" % (v(o, 4), v(vHA), srd(SWS), sHST2 if ti >> 1 else sHST, (ti & 1) * 256), "hst")

def Yseg(hset, toggle=False, first=False, extra=False, last=False):
    out = []
    for t in range(2):
        pos = [int(x, 17) for x in (Opt.ypos0 if hset is None else Opt.ypos2 if extra else Opt.ypos1)]
        if last and t == 1: pos = [pos[0], 0, 11, pos[1]]
        S, Sn = vS + 16 * t, vS + 16 * (1 - t)
        K, V0, V1 = vKF + 4 * t, vV + 8 * t, vV + 8 * t + 4
        for e in range(1, 17):
            out.append("v_exp_f32 %s, %s" % (v(S + e - 1), v(S + e - 1)))
            if e == pos[0] and not (first and t == 0): out.append(smfmac(vO, V1, Sn + 8))
            if e == pos[1]: out.append(mfma(Sn, K, vQ, None))
            if e == pos[2]: out.append(smfmac(vO, V0, S))
            if hset is not None:
                if e == 13 and t == 1 and toggle:
                    out.append("v_xor_b32 %s, 0x4000, %s" % (v(vKVB), v(vKVB)))
                if e == pos[3]: out.append(mfma(vD + 16 * t, vWF + 4 * t, vH + 4 * hset, vD + 16 * t))
                if extra and e == pos[4]: out.append(mfma(vD + 16 * t, vFR + 16 + 4 * t, vH + 16 + 4 * hset, vD + 16 * t))
    return out

def kv_reads(off, vKVA=vKVA):
    r = [rd128(vKF, vKVA, off), rd128(vKF + 4, vKVA, off + 2048), "s_mov_b64 exec, %s" % sp(sVM)]
    for t in range(2):
        r += [rd128(vV + 8 * t, vKVA, off + 2048 * t + 1024), rd128(vV + 8 * t + 4, vKVA, off + 2048 * t + 1280)]
    r.append("s_mov_b64 exec, -1")
    return r
def wd_reads(dst, addr, off):
    r = []
    for c in range(2):
        r += [rdtr(dst + 4 * c, addr, off + 512 * c), rdtr(dst + 4 * c + 2, addr, off + 512 * c + 1024)]
    return r

def hord(): return [0, 2, 4, 6, 1, 3, 5, 7] if Opt.hord else list(range(8))
def wdrow(sg): return (32 * (sg >> 1) + 8 * (sg & 1)) * 1024

def attention(a, role, pre0=None):
    A = role == "A"
    def kvdma(u):
        a.vmop("s_add_u32 m0, s%d, 0x%x\ns_add_u32 s%d, s%d, 0x%x\nbuffer_load_dwordx4 %s, %s, s%d offen sc1 lds"
               % (sWK, L_KV + (u % 4) * 8192, sA, sWK, u * 8192, v(vL16), srd(SKV), sA), "kv%d" % u)
    def wddma(sg):
        a.vmop("s_add_u32 m0, s%d, 0x%x\ns_add_u32 s%d, s%d, 0x%x\nbuffer_load_dwordx4 %s, %s, s%d offen lds"
               % (sWK, L_WD + (sg % 4 if sg < 23 or sg == 27 else sg - 19) * 8192, sA, sWDOFF, wdrow(sg), v(vWDV), srd(SWD), sA), "wd%d" % sg)
    def wodma(j):
        a.vmop("s_add_u32 m0, s%d, 0x%x\ns_add_u32 s%d, s%d, 0x%x\nbuffer_load_dwordx4 %s, %s, s%d offen lds"
               % (sWK, L_WO + (7 - j) * 8192, sA, sB, hord()[j] * 16384, v(vWDV), srd(SWO), sA), "wo")
    def hload(sg, dst):
        a.vmop("s_add_u32 s%d, s%d, 0x%x\nbuffer_load_dwordx4 %s, %s, %s, s%d offen sc1"
               % (sA, sHOFF, sg * 1024, v(dst, 4), v(vL16), srd(SWS), sA), "h%d" % sg)
    for n in range(12):
        if not A and n == 0: a.e("s_barrier")
        if n % 2 == 1: astamp(a, 2 + n // 2)
        if n == Opt.pcyc: a.e("%s %s" % ("s_memrealtime" if Opt.prt else "s_memtime", sp(sSTAMP + 6)))
        tags = []
        if A and n % 2 == 1: tags.append("kv%d" % ((n + 1) // 2))
        if not A and n % 2 == 0: tags.append("kv%d" % ((n + 2) // 2))
        if n == Opt.hpub - (0 if A else 1): tags.append("hst")
        if n == 6: tags.append("wo")
        if n == 9: tags.append("wd27")
        if n == 11: tags.append("wd0")
        if n == 9 and A:
            a.e("s_cmp_lg_u32 s%d, 0" % sW)
            a.e("s_cbranch_scc1 L_hf_done")
            a.e("s_mov_b32 s%d, 0x4000" % sB)
            a.e("s_waitcnt vmcnt(0)")
            a.lab("L_hf_chk")
            a.e("v_cmp_ne_u32 vcc, 1, %s" % v(vPOLL))
            a.e("s_cbranch_vccz L_hf_done")
            a.e("s_sleep 2")
            a.e("buffer_load_dword %s, %s, %s, 0 offen sc1" % (v(vPOLL), v(vFLA), srd(SWS)))
            a.e("s_sub_u32 s%d, s%d, 1" % (sB, sB))
            a.e("s_cmp_lg_u32 s%d, 0" % sB)
            a.e("s_waitcnt vmcnt(0)")
            a.e("s_cbranch_scc1 L_hf_chk")
            a.lab("L_hf_done")
        a.waitvm(tags)
        if n == 5 and Opt.diag == 3 and A:
            a.e("v_mov_b32 v2, s%d" % sSTAMP)
            a.e("s_lshl_b32 s%d, s2, 3" % sA)
            a.e("s_add_u32 s%d, s%d, s%d" % (sA, sA, sW))
            a.e("s_lshl_b32 s%d, s%d, 7" % (sA, sA))
            a.e("s_add_u32 s%d, s%d, 0x%x" % (sA, sA, WS_STAMP))
            a.e("s_mov_b64 exec, 1")
            a.vmop("buffer_store_dword v2, off, %s, s%d offset:12 sc1" % (srd(SWS), sA), "st")
            a.e("s_mov_b64 exec, -1")
        if n == Opt.hpub and not A:
            a.e("s_cmp_ge_u32 s%d, 14" % sM)
            a.e("s_cbranch_scc1 L_nohf")
            a.e("s_cmp_lg_u32 s%d, 4" % sW)
            a.e("s_cbranch_scc1 L_nohf")
            a.e("s_lshl_b32 s%d, s%d, 4" % (sA, sG))
            a.e("s_add_u32 s%d, s%d, s%d" % (sA, sA, sM))
            a.e("s_lshl_b32 s%d, s%d, 7" % (sA, sA))
            a.e("s_add_u32 s%d, s%d, 0x%x" % (sA, sA, WS_HFLAG))
            a.e("s_mov_b64 exec, 1")
            a.e("buffer_store_dword %s, off, %s, s%d sc1" % (v(vONE), srd(SWS), sA))
            a.e("s_mov_b64 exec, -1")
            a.lab("L_nohf")
        for r in kv_reads((n % 8) * 4096): a.e(r)
        if n == 8 and A:
            a.e("s_cmp_lg_u32 s%d, 0" % sW)
            a.e("s_cbranch_scc1 L_hf_nol")
            a.e("buffer_load_dword %s, %s, %s, 0 offen sc1" % (v(vPOLL), v(vFLA), srd(SWS)))
            a.lab("L_hf_nol")
        if n == 0:
            if A or Opt.hpub == 3:
                kvdma(2); kvdma(3)
            a.e("s_mov_b32 s%d, s%d" % (sC, sKQ))
            a.e("s_mul_i32 s%d, s%d, %d" % (sWDOFF, sC, 448 * 1024))
            a.e("s_and_b32 s%d, s%d, 1" % (sB, sW))
            a.e("s_lshl_b32 s%d, s%d, 14" % (sA, sB))
            a.e("s_add_u32 s%d, s%d, s%d" % (sWDOFF, sWDOFF, sA))
            a.e("s_lshl_b32 s%d, s%d, 1" % (sA, sT))
            a.e("s_add_u32 s%d, s%d, s%d" % (sA, sA, sB))
            a.e("s_mul_i32 s%d, s%d, 112" % (sA, sA))
            a.e("s_mul_i32 s%d, s%d, 28" % (sB, sC))
            a.e("s_add_u32 s%d, s%d, s%d" % (sA, sA, sB))
            a.e("s_lshl_b32 s%d, s%d, 10" % (sA, sA))
            a.e("s_add_u32 s%d, s%d, 0x%x" % (sHOFF, sA, WS_HF))
        if (A and n % 2 == 1 and n >= 3): kvdma((n + 5) // 2)
        if (not A and n % 2 == 0 and n >= 2): kvdma((n + 6) // 2)
        if 1 <= n <= 4:
            a.e("s_lshl_b32 s%d, s%d, 17" % (sB, sKQ))
            a.e("s_and_b32 s%d, s%d, 1" % (sC, sW))
            a.e("s_lshl_b32 s%d, s%d, 13" % (sC, sC))
            a.e("s_add_u32 s%d, s%d, s%d" % (sB, sB, sC))
            for j in (2 * n - 2, 2 * n - 1): wodma(j)
        for sg in {5: (27, 23, 24), 6: (25, 26, 0), 7: (1, 2)}.get(n, ()): wddma(sg)
        if n == 10:
            for r in wd_reads(vWX, vWDA, 3 * 8192): a.e(r)
        for j in ({7: (0,), 8: (1, 2), 9: (3, 4)} if A else {7: (0, 1), 8: (2, 3), 9: (4,)}).get(n, ()):
            for r in wd_reads(WOF[j], vWOA, (7 - j) * 8192): a.e(r)
        hs = {10: (0, 1, 23, 24), 11: (2, 25, 26, 27)} if A else {9: (0, 1, 23), 10: (2, 24), 11: (25, 26, 27)}
        if Opt.hlate: hs = {10: (0, 1), 11: (2,)} if A else {9: (0,), 10: (1,), 11: (2,)}
        for sg in hs.get(n, ()): hload(sg, vH + 4 * sg if sg < 4 else vHX if sg == 27 else vH + 4 * (sg - 19))
        if n == 11:
            a.e("s_add_u32 s%d, s%d, 0x%x" % (sHOFF, sHOFF, 3 * 1024))
            a.e("s_add_u32 s%d, s%d, 0x%x" % (sWDOFF, sWDOFF, wdrow(3)))
            a.e("s_add_u32 s%d, s%d, 0x%x" % (sKVOFF, sWK, 9 * 8192))
            a.e("s_mov_b32 s%d, 4" % sCNT)
            a.e("s_add_u32 s%d, s%d, 0x1000" % (sOLD2, sOLD))
            a.e("s_mov_b32 s%d, 0x%x" % (sLO_, f2u(2.0 ** -16)))
            a.e("s_mov_b32 s%d, 0x%x" % (sRNG, f2u(2.0 ** 100) - f2u(2.0 ** -16)))
        if n == 0 and pre0:
            pre0()
            a.stamp(5)
        a.e("s_waitcnt lgkmcnt(0)")
        if n == 0:
            if A: a.e("s_barrier")
            for x in Yseg(None, first=True): a.e(x)
            if not A: a.e("s_barrier")
            continue
        a.e("s_call_b64 %s, L_Y%s" % (sp(sRET), role))
        if n == 1:
            a.e("s_branch L_X1%s" % role)
            a.lab("L_Y%s" % role)
            if A: a.e("s_barrier")
            for x in Yseg(None): a.e(x)
            if not A: a.e("s_barrier")
            a.e("s_setpc_b64 %s" % sp(sRET))
            a.lab("L_X1%s" % role)
    assert not (Opt.hlate and Opt.nx)
    hl = {28: (27, 23), 29: (24, 25), 30: (26,)} if Opt.hlate else {}
    vm = list(a.vm); need = [63] * 8
    for n in range(12, 32):
        p = n % 4; q = p + (4 if n >= 28 else 0)
        tags = ["wd%d" % (n - 11), "h%d" % (n - 12)]
        if (p % 2 == 1) == A: tags.append("kv%d" % ((n + (1 if A else 2)) // 2))
        idx = [i for i, t in enumerate(vm) if t in tags]
        if idx: need[q] = min(need[q], len(vm) - 1 - max(idx))
        vm.append("wd%d" % (n - 9))
        vm.append("h%d" % (n - 9))
        if (p % 2 == 1) == A and n < 28: vm.append("kv%d" % ((n + (5 if A else 6)) // 2))
        vm += ["hx"] * len(hl.get(n, ()))
    a.lab("L_loop%s" % role)
    for q in range(8):
        p = q % 4; fin = q >= 4
        kv = (p % 2 == 1) == A and not fin
        if q == 0 and Opt.diag and Opt.kdiag == 2:
            a.e("s_cmp_lg_u32 s%d, 3" % sCNT)
            a.e("s_cbranch_scc1 L_nst%s" % role)
            astamp(a, 8)
            a.lab("L_nst%s" % role)
        a.e("s_waitcnt vmcnt(%d)" % need[q])
        for i, r in enumerate(kv_reads(p * 4096, vKVB)):
            if not (q == 7 and i == 1): a.e(r)
        if q <= 8 - Opt.nd:
            for r in wd_reads(vWF, vWDA, p * 8192): a.e(r)
        if fin and p < Opt.nx:
            for r in wd_reads(vFR + 16, vWDA, (4 + p) * 8192): a.e(r)
        if q == 7:
            for r in wd_reads(vFR, vWDA, (4 + Opt.nx) * 8192): a.e(r)
        a.e("s_add_u32 m0, s%d, 0x%x" % (sWK, L_WD + ((p + 3) % 4) * 8192))
        a.e("s_and_b32 s%d, s%d, 0x7fff" % (sA, sKVOFF))
        a.e("buffer_load_dwordx4 %s, %s, s%d offen lds" % (v(vWDV), srd(SWD), sWDOFF))
        a.e("s_add_u32 s%d, s%d, 0x%x" % (sWDOFF, sWDOFF, 0x2000 if p & 1 else 0x6000))
        a.e("buffer_load_dwordx4 %s, %s, %s, s%d offen sc1" % (v(vKF + 4 if q == 7 and Opt.nd == 2 else vH + 4 * ((p + 3) % 4), 4), v(vL16), srd(SWS), sHOFF))
        if kv: a.e("s_add_u32 m0, s%d, 0x%x" % (sA, L_KV))
        a.e("s_add_u32 s%d, s%d, 0x400" % (sHOFF, sHOFF))
        if kv:
            a.e("buffer_load_dwordx4 %s, %s, s%d offen sc1 lds" % (v(vL16), srd(SKV), sKVOFF))
            a.e("s_add_u32 s%d, s%d, 0x2000" % (sKVOFF, sKVOFF))
        for sg in (hl.get(24 + q, ()) if fin else ()):
            a.e("s_add_u32 s%d, s%d, 0x%x" % (sA, sHOFF, (sg - (16 + q)) * 1024))
            a.e("buffer_load_dwordx4 %s, %s, %s, s%d offen sc1" % (v(vHX if sg == 27 else vH + 4 * (sg - 19), 4), v(vL16), srd(SWS), sA))
        if q == 3:
            a.e("s_sub_u32 s%d, s%d, 1" % (sCNT, sCNT))
            a.e("s_cmp_lg_u32 s%d, 0" % sCNT)
        a.e("s_waitcnt lgkmcnt(0)")
        if A: a.e("s_barrier")
        for x in Yseg(p if q < 8 - Opt.nd else None, toggle=(q == 3), extra=(fin and p < Opt.nx), last=(q == 7)): a.e(x)
        if not A and q < 7: a.e("s_barrier")
        if q == 3: a.e("s_cbranch_scc1 L_loop%s" % role)
    a.e("s_nop 1")

def transition(a, role):
    A = role == "A"
    if A:
        a.vm = []
        a.lab("L_trA")
    else:
        a.lab("L_join")
        a.e("s_cmp_eq_u32 s%d, 0" % sHI)
        a.e("s_cbranch_scc1 L_trA")
        a.vmjoin = list(a.vm)
    def qfin():
        for i in range(4): a.e("v_cvt_pk_bf16_f32 %s, %s, %s" % (v(vQ + i), v(vAQ + 2 * i), v(vAQ + 2 * i + 1)))
        a.e("v_add_u32 %s, 0x%x, %s" % (v(vWOA), L_WO, v(vWDA)))
        a.e("v_permlane16_swap_b32 %s, %s" % (v(vQ), v(vQ + 2)))
        a.e("v_permlane16_swap_b32 %s, %s" % (v(vQ + 1), v(vQ + 3)))
    pre0 = None
    if A:
        a.e("s_setprio 1")
        a.e("s_cmp_ge_u32 s%d, 14" % sM)
        a.e("s_cbranch_scc1 L_nogA0")
        put(a, a.kvA[:1] + a.kvA[-1:])
        a.l.append(".p2align 3")
        for ti in range(Opt.gsc): gelu_tile(a, ti, True)
        a.lab("L_nogA0")
        qfin()
        a.waitvm(["k0", "kv0", "kv1"])
        a.e("s_setprio 0")
        a.e(mfma(vS, vK0, vQ, None))
        a.e("s_barrier")
        put(a, a.kvA[1:-1])
        def pre0():
            a.e("s_cmp_lt_u32 s%d, 14" % sM)
            a.e("s_cbranch_scc1 L_gA1")
            a.e("s_waitcnt vmcnt(0)")
            a.e("s_branch L_nogA1")
            a.l.append(".p2align 3")
            a.lab("L_gA1")
            for ti in range(Opt.gsc, 4): gelu_tile(a, ti)
            a.lab("L_nogA1")
            a.e("s_setprio 2")
    else:
        a.waitvm(["k0", "kv0", "kv1"])
        a.e("s_setprio 1")
        if Opt.hpub == 3:
            a.e("s_cmp_ge_u32 s%d, 14" % sM)
            a.l.append(".p2align 3")
            a.e("s_barrier")
            a.e("s_cbranch_scc1 L_nogB")
        else:
            a.e("s_barrier")
            for u in (2, 3):
                a.vmop("s_add_u32 m0, s%d, 0x%x\ns_add_u32 s%d, s%d, 0x%x\nbuffer_load_dwordx4 %s, %s, s%d offen sc1 lds"
                       % (sWK, L_KV + u * 8192, sA, sWK, u * 8192, v(vL16), srd(SKV), sA), "kv%d" % u)
            a.e("s_cmp_lt_u32 s%d, 14" % sM)
            a.e("s_cbranch_scc1 L_gB")
            a.e("s_waitcnt vmcnt(0)")
            a.e("s_branch L_nogB")
            a.l.append(".p2align 3")
            a.lab("L_gB")
        for ti in range(4): gelu_tile(a, ti)
        a.lab("L_nogB")
        qfin()
        a.e("s_nop 1")
        a.e(mfma(vS, vK0, vQ, None))
        a.stamp(5)
    attention(a, role, pre0)
    if A:
        a.stamp(6); astamp(a, 9); tstamp(a, 2)
        if Opt.diag and Opt.kdiag == 2: a.e("s_waitcnt lgkmcnt(0)")
        a.e(smfmac(vO, vV1L, vS + 24))
        a.e("s_setprio 0")
        a.e("s_cmp_eq_u32 s%d, 0" % sHI)
        a.e("s_nop 9")
        normalise(a, False)
        a.lab("L_fbretA")
        a.e("buffer_store_dwordx4 %s, %s, %s, s%d offen sc1" % (v(vPK, 4), v(vL16), srd(SWS), sOST))
        tstamp(a, 3)
        a.e("s_waitcnt vmcnt(1)")
        tstamp(a, 4)
        a.e("s_barrier")
        a.fetch(a, False)
        a.e("s_branch L_tl2")

def normalise(a, packed):
    t = vT0
    a.e("v_rcp_f32 %s, %s" % (v(t + 2), v(vO + 8)))
    a.e("s_nop 0")
    a.e("v_mul_f32_e64 %s, %s, %s" % (v(t + 2), v(t + 2), v(vGP)))
    if packed:
        for i in range(4): a.e("v_pk_mul_f32 %s, %s, %s op_sel_hi:[1,0]" % (v(vO + 2 * i, 2), v(vO + 2 * i, 2), v(t + 2, 2)))
        for i in range(4):
            a.e("v_pk_fma_f32 %s, %s, 0, %s op_sel_hi:[1,0,%d]" % (v(t, 2), v(vO + 2 * i, 2), v(t, 2) if i else v(vO + 8, 2), 1 if i else 0))
            a.e("v_cvt_pk_bf16_f32 %s, %s, %s" % (v(vPK + i), v(vO + 2 * i), v(vO + 2 * i + 1)))
        a.e("v_fmac_f32 %s, 0, %s" % (v(t), v(t + 1)))
    else:
        t = vO + 8
        for i in range(8): a.e("v_mul_f32 %s, %s, %s" % (v(vO + i), v(vT0 + 2), v(vO + i)))
        for i in range(4):
            a.e("v_fmac_f32 %s, 0, %s" % (v(t), v(vO + 2 * i)))
            a.e("v_cvt_pk_bf16_f32 %s, %s, %s" % (v(vPK + i), v(vO + 2 * i), v(vO + 2 * i + 1)))
            a.e("v_fmac_f32 %s, 0, %s" % (v(t), v(vO + 2 * i + 1)))
    a.e("v_subrev_u32 %s, s%d, %s" % (v(t), sLO_, v(t)))
    a.e("v_cmp_lt_u32 vcc, s%d, %s" % (sRNG, v(t)))
    a.e("s_branch L_fb" if Opt.force_fb else "s_cbranch_vccnz L_fb")

def tail(a):
    a.lab("L_tail")
    a.stamp(6)
    astamp(a, 9)
    if Opt.diag and Opt.kdiag == 2: a.e("s_waitcnt lgkmcnt(0)")
    tstamp(a, 2)
    a.e(smfmac(vO, vV1L, vS + 24))
    wf = [vFR, vFR + 8, vFR + 16]
    HORD = hord()
    def oload(j):
        return "buffer_load_dwordx4 %s, %s, %s, s%d offen offset:%d %s" % (
            v(vS + 4 * j, 4), v(vL16), srd(SWS), sOLD if HORD[j] < 4 else sOLD2, (HORD[j] % 4) * 1024, Opt.old_pol)
    a.oload = oload
    a.e("s_cmp_eq_u32 s%d, 0" % sHI)
    a.e("s_nop 10")
    a.l.append(".p2align 3")
    normalise(a, True)
    a.lab("L_fbret")
    a.e("buffer_store_dwordx4 %s, %s, %s, s%d offen sc1" % (v(vPK, 4), v(vL16), srd(SWS), sOST))
    tstamp(a, 3)
    aw = [vAW0, vWOA + 1, vWOA + 2, vWOA + 3]
    ar = [vAR0, vFLA]
    wo = WOF
    def fetch(o, scale):
        for j in range(8):
            o.e(oload(j))
            if j >= 5:
                for r in wd_reads(wo[j], vWOA, (7 - j) * 8192): o.e(r)
            if scale and j >= 4:
                for i in range(4 * j - 16, 4 * j - 12): o.e("v_mul_f32 %s, %s, %s" % (v(vD + i), v(vGC), v(vD + i)))
    def addrs(a):
        a.e("v_sub_f32 %s, 1.0, %s" % (v(vGC), v(vGC)))
        for j in range(1, 4): a.e("v_xor_b32 %s, %d, %s" % (v(aw[j]), 32 * j, v(aw[0])))
        a.e("v_xor_b32 %s, 16, %s" % (v(ar[1]), v(ar[0])))
        a.e("s_mov_b32 s%d, 0x2000" % sB)
    ol = Asm(); a.ool2 = ol.l
    a.e("s_waitcnt vmcnt(1)")
    tstamp(a, 4)
    a.e("s_barrier")
    a.lab("L_tl2")
    tstamp(a, 5)
    a.fetch = fetch
    fl = collect(addrs)
    slot = [4, 5, 6, 7, 0, 1, 2][Opt.nx:] + ([3] if Opt.nd == 2 else [])
    hreg = lambda sl: vKF + 4 if sl == 2 and Opt.nd == 2 else vH + 4 * sl
    inreg = [(vWX, vHX)] + ([(vWF, vH + 4 * (4 - Opt.nd))] if Opt.nd else [])
    rds = sum((wd_reads(wf[i % 3], vWDA, slot[i] * 8192) for i in range(len(slot))), [])
    done = 4
    for i in range(-len(inreg), len(slot)):
        for c in range(2):
            if i >= 1: a.e("s_waitcnt lgkmcnt(%d)" % (done - (4 * i + 2 * c + 2)))
            a.e(mfma(vD + 16 * c, inreg[i][0] + 4 * c, inreg[i][1], vD + 16 * c) if i < 0 else
                mfma(vD + 16 * c, wf[i % 3] + 4 * c, hreg(slot[i]), vD + 16 * c))
            if i < -1: continue
            if done < len(rds):
                for r in rds[done:done + 2]: a.e(r)
                done += 2
            else:
                put(a, fl[:2]); fl = fl[2:]
    assert not fl
    tstamp(a, 6)
    a.e("s_cbranch_scc0 L_tl3")
    a.l.append(".p2align 3")
    a.e("s_nop 7")
    a.e("s_nop 0")
    for i in range(16): a.e("v_pk_mul_f32 %s, %s, %s op_sel:[0,1] op_sel_hi:[1,1]" % (v(vD + 2 * i, 2), v(vD + 2 * i, 2), v(vGP, 2)))
    tstamp(a, 7)
    a.lab("L_tl4")
    tstamp(a, 8)
    ol.lab("L_tl3")
    ol.e("s_setprio 0")
    fetch(ol, False)
    tstamp(ol, 7)
    for i in range(32): ol.e("v_mul_f32 %s, %s, %s" % (v(vD + i), v(vGC), v(vD + i)))
    ol.e("s_waitcnt lgkmcnt(0)")
    def check(j):
        o = vS + 4 * j
        return ["s_waitcnt vmcnt(%d)" % (7 - j), "v_max3_u32 v2, %s, %s, %s" % (v(o), v(o + 1), v(o + 2)),
                "v_max_u32 v2, v2, %s" % v(o + 3), "v_cmp_eq_u32 vcc, -1, v2"]
    for j in range(Opt.bpre):
        for x in check(j): ol.e(x)
        ol.e("s_cbranch_vccnz L_bp%d" % j)
    ol.e("s_branch L_tl4")
    if Opt.bpre:
        for j in range(8):
            if j < Opt.bpre: ol.lab("L_bp%d" % j)
            ol.e(oload(j))
        ol.e("s_branch L_tl4")
    a.stamp(7)
    def check(j):
        o = vS + 4 * j
        return ["s_waitcnt vmcnt(%d)" % (7 - j), "v_max3_u32 v2, %s, %s, %s" % (v(o), v(o + 1), v(o + 2)),
                "v_max_u32 v2, v2, %s" % v(o + 3), "v_cmp_eq_u32 vcc, -1, v2"]
    a.check = check
    for x in check(0): a.e(x)
    for j in range(10):
        if j < 8:
            a.e("s_cbranch_vccnz L_ore%d" % j)
            a.lab("L_ook%d" % j)
            a.e(mfma(vD, wo[j], vS + 4 * j, vD))
        if j >= 2 and Opt.cfirst: a.e(mfma(vD + 16, wo[j - 2] + 4, vS + 4 * (j - 2), vD + 16))
        if j < 7:
            for x in check(j + 1): a.e(x)
        if j >= 2 and not Opt.cfirst: a.e(mfma(vD + 16, wo[j - 2] + 4, vS + 4 * (j - 2), vD + 16))
        if j in (7, 8): a.e("s_nop 4")
    wr = lambda c, j: "ds_write_b128 %s, %s offset:%d" % (v(aw[j]), v(vD + 16 * c + 4 * j, 4), 128 * c)
    a.stamp(8)
    tstamp(a, 9)
    for j in range(4): a.e(wr(0, j))
    a.e("s_nop 7")
    for j in range(4): a.e(wr(1, j))
    a.e("s_waitcnt lgkmcnt(0)")
    a.e("s_barrier")
    for p in range(4):
        for h in range(2): a.e(rd128(vS + 8 * p + 4 * h, ar[h], p * 8192))
    for p in range(1, 4):
        a.e("s_waitcnt lgkmcnt(%d)" % (6 - 2 * p))
        for i in range(4): a.e("v_pk_add_f32 %s, %s, %s" % (v(vS + 2 * i, 2), v(vS + 2 * i, 2), v(vS + 8 * p + 2 * i, 2)))
    for i in range(4): a.e("v_cvt_pk_bf16_f32 %s, %s, %s" % (v(vP + i), v(vS + 2 * i), v(vS + 2 * i + 1)))
    a.e("buffer_store_dwordx4 %s, %s, %s, s%d offen %s" % (v(vP, 4), v(vOUTA), srd(SOUT), sOUTO, Opt.out_pol))
    if Opt.probe >= 0:
        a.e("s_waitcnt vmcnt(0)")
        a.stamp(9)
        if Opt.probe != 9:
            a.e("s_cmp_ge_u32 s%d, 14" % sM)
            a.e("s_cbranch_scc%d L_end" % (0 if Opt.probe_l else 1))
        a.e("s_sub_u32 s%d, s%d, s%d" % (sA, sSTAMP + 4, sSTAMP))
        a.e("s_mul_i32 s%d, s%d, %d" % (sA, sA, Opt.probe_mul - 1))
        if Opt.pcyc >= 0:
            a.e("s_sub_u32 s%d, s%d, s%d" % (sA, sSTAMP + 8, sSTAMP + 6))
            if Opt.prt: a.e("s_mul_i32 s%d, s%d, 10" % (sA, sA))
            a.e("s_mov_b32 s%d, s%d" % (sSTAMP + 4, sSTAMP))
        a.e("s_min_u32 s%d, s%d, 100000" % (sA, sA))
        a.e("s_add_u32 s%d, s%d, 3800" % (sA, sA))
        if Opt.probe_r >= 0:
            a.e("s_cmp_eq_u32 s%d, 0x2000" % sB)
            a.e("s_cbranch_scc%d L_end" % Opt.probe_r)
        if Opt.probe_w >= 0:
            a.e("s_cmp_lg_u32 s%d, %d" % (sHI, Opt.probe_w))
            a.e("s_cbranch_scc1 L_end")
        if Opt.probe_x >= 0:
            a.e("s_and_b32 s0, s2, 7")
            a.e("s_cmp_lg_u32 s0, %d" % Opt.probe_x)
            a.e("s_cbranch_scc1 L_end")
        a.lab("L_probe")
        a.e("s_memrealtime s[0:1]")
        a.e("s_waitcnt lgkmcnt(0)")
        a.e("s_sub_u32 s0, s0, s%d" % (sSTAMP + 4))
        a.e("s_cmp_lt_u32 s0, s%d" % sA)
        a.e("s_cbranch_scc1 L_probe")
    if Opt.pin == 9:
        a.e("s_waitcnt vmcnt(0)")
        a.stamp(9)
    if Opt.diag in (1, 2):
        a.e("s_waitcnt vmcnt(0)")
        a.stamp(9)
        a.e("s_mov_b32 s%d, s%d" % (sSTAMP + 3, sSTAMP))
        a.e("s_mov_b32 s%d, s%d" % (sSTAMP, sB))
        a.e("s_getreg_b32 s%d, hwreg(HW_REG_XCC_ID)" % (sSTAMP + 1))
        for i in range(20): a.e("v_mov_b32 %s, s%d" % (v(vS + i), sSTAMP + i))
        a.e("s_lshl_b32 s%d, s2, 3" % sA)
        a.e("s_add_u32 s%d, s%d, s%d" % (sA, sA, sW))
        a.e("s_lshl_b32 s%d, s%d, 7" % (sA, sA))
        a.e("s_add_u32 s%d, s%d, 0x%x" % (sA, sA, WS_STAMP))
        a.e("s_mov_b64 exec, 1")
        for i in range(5): a.e("buffer_store_dwordx4 %s, off, %s, s%d offset:%d" % (v(vS + 4 * i, 4), srd(SWS), sA, 16 * i))
    a.lab("L_end")
    a.e("s_endpgm")
    a.l += a.ool2
    for j in range(8):
        a.lab("L_ore%d" % j)
        a.e("s_sub_u32 s%d, s%d, 1" % (sB, sB))
        a.e("s_cbranch_scc1 L_ogive%d" % j)
        if Opt.rwait: a.e("s_waitcnt vmcnt(0)")
        if Opt.rwait > 1: a.e("s_sleep %d" % Opt.rwait)
        for i in range(j, 8): a.e(a.oload(i))
        for x in a.check(j): a.e(x)
        a.e("s_cbranch_vccnz L_ore%d" % j)
        a.e("s_branch L_ook%d" % j)
        a.lab("L_ogive%d" % j)
        a.e("s_mov_b32 s%d, 0" % sB)
        a.e("s_branch L_ook%d" % j)

def fallback(a):
    a.lab("L_fb")
    m = vT0
    a.e("v_mov_b32 %s, 0xff800000" % v(m))
    a.e("s_mov_b32 s%d, 0" % sA)
    a.lab("L_fb1")
    a.e("buffer_load_dwordx4 %s, %s, %s, s%d offen sc1" % (v(vKF, 4), v(vL16), srd(SKV), sA))
    a.e("s_waitcnt vmcnt(0)")
    a.e(mfma(vS, vKF, vQ, None))
    a.e("s_add_u32 s%d, s%d, 2048" % (sA, sA))
    a.e("s_nop 11")
    for i in range(8): a.e("v_max3_f32 %s, %s, %s, %s" % (v(m), v(m), v(vS + 2 * i), v(vS + 2 * i + 1)))
    a.e("s_cmp_lt_u32 s%d, 0x20000" % sA)
    a.e("s_cbranch_scc1 L_fb1")
    a.e("v_mov_b32 %s, %s" % (v(m + 1), v(m)))
    a.e("s_nop 1")
    a.e("v_permlane32_swap_b32 %s, %s" % (v(m), v(m + 1)))
    a.e("s_nop 1")
    a.e("v_max_f32 %s, %s, %s" % (v(m), v(m), v(m + 1)))
    for i in range(16): a.e("v_sub_f32 %s, 0, %s" % (v(vS + 16 + i), v(m)))
    for i in range(16): a.e("v_mov_b32 %s, 0" % v(vO + i))
    a.e("s_mov_b32 s%d, 0" % sA)
    a.lab("L_fb2")
    a.e("s_add_u32 s%d, s%d, 0x%x" % (sB, sA, 63 * 2048))
    a.e("s_and_b32 s%d, s%d, 0x1ffff" % (sB, sB))
    a.e("buffer_load_dwordx4 %s, %s, %s, s%d offen sc1" % (v(vKF, 4), v(vL16), srd(SKV), sB))
    a.e("s_add_u32 s%d, s%d, 2048" % (sB, sA))
    a.e("s_and_b32 s%d, s%d, 0x1ffff" % (sB, sB))
    a.e("s_mov_b64 exec, %s" % sp(sVM))
    a.e("buffer_load_dwordx4 %s, %s, %s, s%d offen offset:1024 sc1" % (v(vV, 4), v(vL16), srd(SKV), sA))
    a.e("buffer_load_dwordx4 %s, %s, %s, s%d offen offset:1280 sc1" % (v(vV + 4, 4), v(vL16), srd(SKV), sB))
    a.e("s_mov_b64 exec, -1")
    a.e("s_waitcnt vmcnt(0)")
    a.e(mfma(vS, vKF, vQ, vS + 16))
    a.e("s_add_u32 s%d, s%d, 2048" % (sA, sA))
    a.e("s_nop 11")
    for i in range(16): a.e("v_exp_f32 %s, %s" % (v(vS + i), v(vS + i)))
    a.e("s_nop 2")
    a.e(smfmac(vO, vV, vS))
    a.e(smfmac(vO, vV + 4, vS + 8))
    a.e("s_cmp_lt_u32 s%d, 0x20000" % sA)
    a.e("s_cbranch_scc1 L_fb2")
    a.e("s_nop 11")
    a.e("v_rcp_f32 %s, %s" % (v(vT0 + 2), v(vO + 8)))
    a.e("s_cmp_eq_u32 s%d, 0" % sHI)
    a.e("v_mul_f32 %s, %s, %s" % (v(vT0 + 2), v(vT0 + 2), v(vGP)))
    for i in range(8): a.e("v_mul_f32 %s, %s, %s" % (v(vO + i), v(vT0 + 2), v(vO + i)))
    for i in range(4): a.e("v_cvt_pk_bf16_f32 %s, %s, %s" % (v(vPK + i), v(vO + 2 * i), v(vO + 2 * i + 1)))
    for i in range(4): a.e("v_min_u32 %s, -2, %s" % (v(vPK + i), v(vPK + i)))
    a.e("s_cbranch_scc1 L_fbretA")
    a.e("s_branch L_fbret")

def build():
    a = Asm()
    prologue(a)
    phase1_F(a)
    transition(a, "B")
    tail(a)
    a.l += a.ool
    transition(a, "A")
    phase1_L(a)
    fallback(a)
    a.lab("L_codeend")
    for i, x in enumerate(a.l):
        if " sc1" in x and "sc0" not in x and ((Opt.allsc & 1 and "buffer_store" in x) or (Opt.allsc & 2 and "buffer_load" in x)):
            a.l[i] = x.replace(" sc1", " sc0 sc1")
    il = a.l.index("L_light:")
    for i, x in enumerate(a.l):
        if x.endswith(" lds") and "sc1" not in x and " nt" not in x:
            if (Opt.ntx & 4 and (srd(SWD) in x or srd(SWO) in x)) or (Opt.ntx & 8 and i > il):
                a.l[i] = x[:-4] + " nt lds"
    head = open("cdna_kernels/%s.s.ref" % NAME).read().split("\n")
    hdr = [l for l in head if l.startswith(";") and "@launch" not in l and "Override" not in l and "grid=" not in l]
    out = hdr + ["; @launch grid=(256,1,1) block=(512,1,1) lds=%d" % LDS_BYTES,
                 '.amdgcn_target "amdgcn-amd-amdhsa--gfx950"', ".text", ".globl %s_kernel" % NAME, ".p2align 8",
                 ".type %s_kernel,@function" % NAME,
                 ".set CODE_PF_MAX, L_codeend - L_nopf - 4" if Opt.code_pf else "",
                 "%s_kernel:" % NAME]
    if Opt.diag: out += ["; mapmode %d" % (1 + 3 * bool(Opt.oddl))]
    out += ["; " + x for x in """One persistent launch, one workgroup per CU (generated by a script), 8 waves = two quartets that alternate on each SIMD.
Stage 1: 14 of every 16 workgroups compute gelu(x Wg) * (x Wu) for 128 tokens x 128 columns plus Q for two heads;
         the other two compute K, V and the mixing gate, publish them (counter in d_debug) and then their own Q.
Stage 2: attention for 128 tokens x 2 heads over all keys, S^T = K Q^T, exp2 in place, P V through sparse MFMAs that
         read the high halves of the fp32 probabilities; a row of ones in the V operand gives the row sums.
         The stand-in maximum is 0: it is accepted only if the row sum lies in [2^-16, 2^100] and every accumulator is
         finite, otherwise the wave redoes its rows with the true maximum (L_fb).
         The down projection of a 64 x 64 output tile runs in the same loop once the producers' flags are seen.
Stage 3: attention outputs are handed over through d_ws (cleared to a mark earlier in this launch), projected,
         mixed with the FFN branch, reduced through LDS and stored.""".split("\n")]
    out += a.l
    out += ['.section .rodata,"a"', ".p2align 6", ".amdhsa_kernel %s_kernel" % NAME,
            "  .amdhsa_next_free_vgpr %d" % NV, "  .amdhsa_next_free_sgpr 102", "  .amdhsa_accum_offset 256",
            "  .amdhsa_group_segment_fixed_size 0", "  .amdhsa_kernarg_size 104", "  .amdhsa_user_sgpr_count 2",
            "  .amdhsa_user_sgpr_kernarg_segment_ptr 1", "  .amdhsa_system_sgpr_workgroup_id_x 1", ".end_amdhsa_kernel", ""]
    return "\n".join(out)

if __name__ == "__main__":
    path = sys.argv[1]
    for kv in sys.argv[2:]:
        k, val = kv.split("=")
        cur = getattr(Opt, k)
        setattr(Opt, k, val if isinstance(cur, str) else type(cur)(int(val)))
    open(path, "w").write(build())
```

```python
import sys, struct, math

NAME = "gated_mix__grouped_kv_mqa__geglu_ffn__prompt"

class Opt:
    diag = 0
    mapmode = 1
    force_fb = False
    allsc = 0
    out_pol = "sc0 sc1"
    code_pf = True
    xrot = 0
    pregap = 0
    hsl = 2
    lthr = 0
    klate = 0
    bpre = 0
    oddl = 1
    hlate = 1
    hpub = 3
    rwait = 1
    aearly = 0
    bidle = 1
    old_pol = "sc1"
    ypos0 = "36g"
    ypos1 = "36bg"
    ypos2 = "36cg9"
    nd = 1
    nx = 0
    tpos = 1
    cfirst = 0
    tch = 12
    stch = 0
    spos = 1
    tlb = 14
    olate = 1
    hrot = 0
    tbar = 0
    hord = 1
    cmap = 1
    kqx = 2
    oearly = 8
    conc = 1
    ghx = 1
    qa = "077777"
    qb = "588888"
    npre = 8
    stagger = 1
    rper = 2
    dma1 = 17
    kprio = 0
    dma0 = 8
    npd = 4
    kdiag = 0
    fillpre = 0
    fillper = 5
    gsc = 2
    sched = 0
    xmask = 1
    ntx = 0
    touch = 2
    rotg = 0
    rotm = 0
    startbar = 1
    pvz = 1
    pin = -1
    pin_ns = 60000
    probe = -1
    probe_x = -1
    probe_mul = 10
    probe_w = -1
    probe_r = -1
    pcyc = -1
    prt = 0
    probe_l = 0

def f2u(x): return struct.unpack("<I", struct.pack("<f", x))[0]

WS_KV = 0
WS_G = 128 * 1024
WS_HFLAG = 192 * 1024
WS_OF = 1 << 20
WS_HF = 4 << 20
WS_STAMP = 12 << 20
WS_SIZE = 16 << 20
K1 = 1024
L_G, L_U, L_X, L_WQ = 0, 48 * K1, 96 * K1, 144 * K1
L_QX = 32 * K1
L_WD, L_WO, L_KV = 0, 64 * K1, 128 * K1
L_RED = 96 * K1
LL_X, LL_W, LL_GATE, LL_WQ = 0, 128 * K1, 144 * K1, 128 * K1
LDS_BYTES = 160 * K1

SX, SWG, SWU, SWQ, SWS, SWD, SWO, SOUT, SDBG, SWKV, SGATE, SKV = 4, 8, 12, 16, 20, 24, 28, 32, 36, 40, 44, 64
SWV = 72
sTMPP = 48
sW, sHI, sLO, sG, sM, sT, sCB = 50, 51, 52, 53, 54, 55, 56
sWK = 57
sWH = 58
sVM = 60
sRET = 62
sA, sB, sC, sD = 68, 69, 70, 71
sOFFW, sOFFQ, sCH, sXP = 72, 73, 74, 75
sHOFF, sWDOFF, sKVOFF, sHXO, sCNT = 72, 73, 74, 75, 77
sOUTO, sLO_, sRNG = 59, 81, 75
sOLD2 = 58
sOST, sOLD, sHST = 78, 79, 80
sHST2 = 3
sRX, sRW, sM0B = 40, 41, 42
sKQ = 76
sHP = 81
sSTAMP = 82

def srd(b): return "s[%d:%d]" % (b, b + 3)
def sp(b): return "s[%d:%d]" % (b, b + 1)
def v(b, n=1): return "v%d" % b if n == 1 else "v[%d:%d]" % (b, b + n - 1)

vL16 = 1
vT0, vT1, vT2, vT3 = 2, 3, 4, 5
vGP, vGC = 6, 7
vKVA = 8
vWDA = 9
vWDV = 10
vONE = 11
vZERO = 12
vFLA = 13
vPOLL = 14
vGA = 15
vQ = 16
vK0 = 20
vV1L = 24
vIDX = 28
vAW0, vAR0, vOUTA = 30, 31, 12
vKVB = 29
vP = 32
vV = 40
vO = 56
vD = 72
vACC = 104
vS = 104
vH = 136
vAQ = vP
vF1 = 168
vKF = 168
vWF = 176
vWX = 224
vHX = 232
vPK = 20
WOF = [32, 208, 216, 240, 248, 40, 48, 56]
vWOA = 236
vFR = 184
vLX = 224
vXA = 240
vWA = 244
vQA = 248
vDX, vDG, vDQ = 249, 250, 251
vC0 = 252
vTID = 255
vHA = 254
NV = 256

class Asm:
    def __init__(self):
        self.l = []
        self.vm = []
        self.nstamp = 0
    def e(self, s):
        for x in s.split("\n"):
            x = x.strip()
            if x: self.l.append("    " + x)
    def lab(self, s): self.l.append(s + ":")
    def vmop(self, s, tag):
        self.e(s); self.vm.append(tag)
    def vmn(self, tags):
        if isinstance(tags, str): tags = [tags]
        last = -1
        for i, t in enumerate(self.vm):
            if t in tags: last = i
        return None if last < 0 else len(self.vm) - 1 - last
    def waitvm(self, tags, lgkm=False):
        n = self.vmn(tags)
        if n is None:
            if lgkm: self.e("s_waitcnt lgkmcnt(0)")
            return
        assert n < 64
        self.e("s_waitcnt vmcnt(%d)%s" % (n, " lgkmcnt(0)" if lgkm else ""))
        self.vm = self.vm[len(self.vm) - n:] if n else []
    def wait0(self, lgkm=False):
        self.e("s_waitcnt vmcnt(0)%s" % (" lgkmcnt(0)" if lgkm else "")); self.vm = []
    def stamp(self, i, real=False):
        if Opt.probe == i:
            self.e("s_waitcnt lgkmcnt(0)")
            self.e("s_memrealtime %s" % sp(sSTAMP + 4))
            if Opt.pcyc >= 0: self.e("%s %s" % ("s_memrealtime" if Opt.prt else "s_memtime", sp(sSTAMP + 8)))
            self.e("s_waitcnt lgkmcnt(0)")
        if Opt.pin == i:
            self.nstamp += 1
            self.e("s_waitcnt lgkmcnt(0)")
            self.e("s_cselect_b32 s%d, 1, 0" % (sSTAMP + 5))
            self.lab("L_pin%d" % self.nstamp)
            self.e("s_memrealtime s[0:1]")
            self.e("s_waitcnt lgkmcnt(0)")
            self.e("s_sub_u32 s0, s0, s%d" % sSTAMP)
            self.e("s_cmp_lt_u32 s0, %d" % (Opt.pin_ns // 10))
            self.e("s_cbranch_scc1 L_pin%d" % self.nstamp)
            self.e("s_cmp_lg_u32 s%d, 0" % (sSTAMP + 5))
        if Opt.diag and not Opt.kdiag and (Opt.diag == 1 or i == 9):
            self.e("s_waitcnt lgkmcnt(0)")
            self.e("s_memtime %s" % sp(sSTAMP + 2 * i))
            self.e("s_memrealtime %s" % sp(sRET))
            self.e("s_waitcnt lgkmcnt(0)")
            self.e("s_mov_b32 s%d, s%d" % (sSTAMP + 2 * i + 1, sRET))

def astamp(a, i):
    if Opt.diag and Opt.kdiag == 2: a.e("s_memtime %s" % sp(sSTAMP + 2 * i))

def tstamp(a, i):
    if Opt.diag and Opt.kdiag == 3: a.e("s_memtime %s" % sp(sSTAMP + 2 * i))

def kstamp(a, i):
    if Opt.probe == 18 + i: a.e("s_memrealtime %s" % sp(sSTAMP + 4))
    if Opt.diag and Opt.kdiag == 1: a.e("s_memtime %s" % sp(sSTAMP + 2 * i))

def mfma(d, a, b, c):
    return "v_mfma_f32_32x32x16_bf16 %s, %s, %s, %s" % (v(d, 16), v(a, 4), v(b, 4), "0" if c is None else v(c, 16))
def smfmac(d, a, b):
    return "v_smfmac_f32_32x32x32_bf16 %s, %s, %s, %s" % (v(d, 16), v(a, 4), v(b, 8), v(vIDX))
def mfma16(d, a, b, c):
    return "v_mfma_f32_16x16x32_bf16 %s, %s, %s, %s" % (v(d, 4), v(a, 4), v(b, 4), "0" if c is None else v(c, 4))
def rd128(d, a, off):
    assert 0 <= off < 65536
    return "ds_read_b128 %s, %s offset:%d" % (v(d, 4), v(a), off)
def rdtr(d, a, off):
    assert 0 <= off < 65536
    return "ds_read_b64_tr_b16 %s, %s offset:%d" % (v(d, 2), v(a), off)

def interleave(mf, fill, per=2):
    out = []
    fill = list(fill)
    for i, m in enumerate(mf):
        out.append(m)
        if i < len(mf) - 1:
            out += fill[:per]; fill = fill[per:]
    return out + fill

def srd_words(a, regs):
    sizes = {SX: 2048 * 1024, SWG: 512 * 3584, SWU: 512 * 3584, SWQ: 512 * 1024, SWS: WS_SIZE, SWKV: 16384, SWV: 16384,
             SGATE: 1024, SWD: 1792 * 1024, SWO: 512 * 1024, SOUT: 2048 * 1024, SDBG: 256, SKV: 128 * 1024}
    for reg in regs:
        a.e("s_mov_b32 s%d, 0x%x" % (reg + 2, sizes[reg]))
        a.e("s_mov_b32 s%d, 0x20000" % (reg + 3))

def ptr_loads(a, lst):
    for reg, off in lst: a.e("s_load_dwordx2 %s, s[0:1], %d" % (sp(reg), off))

def prologue(a):
    if Opt.diag or Opt.pin >= 0 or Opt.probe >= 0:
        a.e("s_memrealtime %s" % sp(sSTAMP))
        if Opt.diag in (1, 2): a.e("s_memtime %s" % sp(sSTAMP + 2))
    ptr_loads(a, ((SX, 0), (SWG, 48), (SWU, 56), (SWQ, 8)))
    if Opt.probe == 1: a.stamp(1)
    a.e("v_lshrrev_b32 v2, 6, v0")
    if Opt.code_pf:
        a.e("s_getpc_b64 %s" % sp(sRET))
        a.lab("L_nopf")
        a.e("s_and_b32 s%d, s2, -8" % sA)
        a.e("v_add_lshl_u32 v4, v2, s%d, 7" % sA)
        a.e("v_mov_b32 v5, 0")
        a.e("v_min_u32 v4, CODE_PF_MAX, v4")
        a.e("v_lshl_add_u64 v[4:5], v[4:5], 0, %s" % sp(sRET))
        a.e("global_load_dword %s, v[4:5], off" % v(vPOLL))
    if not Opt.klate: a.e("s_load_dwordx8 s[%d:%d], s[0:1], 64" % (SOUT, SOUT + 7))
    a.e("v_readfirstlane_b32 s%d, v2" % sW)
    if not Opt.klate: ptr_loads(a, ((SWS, 96),) if Opt.diag or Opt.probe >= 0 else ((SWS, 96), (SWO, 32)))
    a.e("s_cmpk_ge_u32 s2, 256")
    a.e("s_cbranch_scc1 L_end")
    if Opt.oddl:
        a.e("s_bfe_u32 s%d, s2, 0x10002" % sD)
        a.e("s_bfe_u32 s%d, s2, 0x30003" % sA)
        a.e("s_lshl3_add_u32 s%d, s%d, s%d" % (sG, sD, sA))
        a.e("s_and_b32 s%d, s2, 3" % sA)
        if Opt.oddl == 2: a.e("s_xor_b32 s%d, s%d, 1" % (sA, sA))
        a.e("s_lshr_b32 s%d, s2, 6" % sB)
        a.e("s_lshl2_add_u32 s%d, s%d, s%d" % (sHP, sA, sB))
        a.e("s_lshr_b32 s%d, s%d, 3" % (sB, sHP))
        a.e("s_sub_u32 s%d, s%d, s%d" % (sM, sHP, sB))
        a.e("s_lshl_b32 s%d, s%d, 10" % (sWK, sW))
        a.e("s_andn2_b32 s%d, 7, s%d" % (sA, sHP))
        a.e("s_cbranch_scc0 L_light")
    else:
        a.e("s_and_b32 s%d, s2, 1" % sD)
        a.e("s_bfe_u32 s%d, s2, 0x30003" % sA)
        a.e("s_lshl3_add_u32 s%d, s%d, s%d" % (sG, sD, sA))
        a.e("s_bfe_u32 s%d, s2, 0x20001" % sA)
        a.e("s_lshr_b32 s%d, s2, 6" % sB)
        a.e("s_lshl2_add_u32 s%d, s%d, s%d" % (sM, sA, sB))
        a.e("s_mov_b32 s%d, s%d" % (sHP, sM))
        a.e("s_lshl_b32 s%d, s%d, 10" % (sWK, sW))
        a.e("s_cmp_ge_u32 s%d, 14" % sM)
        a.e("s_cbranch_scc1 L_light")

def xvoff(a, t):
    a.e("v_lshrrev_b32 v2, 4, %s" % v(t))
    a.e("v_xor_b32 v2, v2, %s" % v(t))
    a.e("v_and_b32 v2, 7, v2")
    a.e("s_lshl_b32 s%d, s%d, 17" % (sA, sG))
    a.e("v_lshl_add_u32 v2, v2, 4, s%d" % sA)
    a.e("v_lshrrev_b32 v3, 3, %s" % v(t))
    a.e("v_lshl_add_u32 %s, v3, 10, v2" % v(vDX))

def setup_ids(a):
    if Opt.klate:
        ptr_loads(a, ((SWS, 96), (SKV, 96), (SDBG, 88), (SWD, 64), (SWO, 32), (SOUT, 80)))
    else:
        a.e("s_mov_b64 %s, %s" % (sp(SKV), sp(SWS)))
        a.e("s_mov_b64 %s, %s" % (sp(SWD), sp(SOUT)))
        a.e("s_mov_b64 %s, %s" % (sp(SOUT), sp(SOUT + 4)))
        a.e("s_mov_b64 %s, %s" % (sp(SDBG), sp(SOUT + 6)))
    a.e("v_and_b32 v0, 63, v0")
    a.e("v_lshlrev_b32 %s, 4, v0" % v(vL16))
    if Opt.oddl:
        a.e("s_and_b32 s%d, s2, 7" % sA)
        a.e("s_xor_b32 s%d, s%d, 4" % (sA, sA))
    else:
        a.e("s_andn2_b32 s%d, 1, s2" % sA)
        a.e("s_bfe_u32 s%d, s2, 0x20001" % sB)
        a.e("s_lshl2_add_u32 s%d, s%d, s%d" % (sA, sA, sB))
    a.e("s_bfe_u32 s%d, s2, 0x20003" % sB)
    a.e("s_lshl2_add_u32 s%d, s%d, s%d" % (sT, sA, sB))
    a.e("s_lshr_b32 s%d, s2, 5" % sCB)

def setup_rd(a):
    a.e("s_lshr_b32 s%d, s%d, 2" % (sHI, sW))
    a.e("s_and_b32 s%d, s%d, 3" % (sLO, sW))
    a.e("v_and_b32 v2, 15, v0")
    a.e("v_lshrrev_b32 v3, 4, v0")
    a.e("v_bfe_u32 v4, v0, 1, 3")
    a.e("v_xor_b32 v4, v4, v3")
    a.e("v_lshlrev_b32 v4, 4, v4")
    a.e("v_lshl_add_u32 %s, v2, 7, v4" % v(vXA))
    a.e("v_bfe_u32 v2, v0, 2, 2")
    a.e("v_and_b32 v4, 3, v0")
    a.e("v_lshl_add_u32 %s, v3, 3, v2" % v(vQA))
    a.e("v_lshlrev_b32 %s, 6, %s" % (v(vQA), v(vQA)))
    a.e("v_xor_b32 v5, s%d, v3" % sHI)
    a.e("v_and_b32 v5, 1, v5")
    a.e("v_lshl_add_u32 %s, v5, 5, %s" % (v(vQA), v(vQA)))
    a.e("v_lshl_add_u32 %s, v4, 3, %s" % (v(vQA), v(vQA)))

def setup_oclr(a):
    srd_words(a, [SWS, SKV, SDBG])
    a.e("s_mov_b32 s%d, 0xffff" % sVM)
    a.e("s_mov_b32 s%d, 0xffff" % (sVM + 1))
    a.e("s_lshl_b32 s%d, s%d, 2" % (sA, sG))
    a.e("s_add_u32 s%d, s%d, s%d" % (sA, sA, sLO))
    a.e("s_lshl_b32 s%d, s%d, 5" % (sB, sA))
    a.e("s_lshl_b32 s%d, s%d, 1" % (sC, sHP))
    a.e("s_add_u32 s%d, s%d, s%d" % (sB, sB, sC))
    a.e("s_add_u32 s%d, s%d, s%d" % (sB, sB, sHI))
    a.e("s_lshl_b32 s%d, s%d, 10" % (sB, sB))
    a.e("s_add_u32 s%d, s%d, 0x%x" % (sOST, sB, WS_OF))
    for i in range(4): a.e("v_mov_b32 %s, -1" % v(vQ + i))
    a.vmop("buffer_store_dwordx4 %s, %s, %s, s%d offen sc1" % (v(vQ, 4), v(vL16), srd(SWS), sOST), "oclr")
    a.e("v_mov_b32 %s, 1" % v(vONE))
    a.e("v_mov_b32 %s, 0" % v(vZERO))
    a.e("v_and_b32 %s, 31, v0" % v(vGA))
    a.e("v_lshlrev_b32 %s, 2, %s" % (v(vGA), v(vGA)))

def collect(fn):
    t = Asm(); t.marks = {}
    def vmop(s_, tag):
        t.e(s_); t.marks[len(t.l) - 1] = tag
    t.vmop = vmop
    fn(t)
    return [(x, t.marks.get(i)) for i, x in enumerate(t.l)]
def put(a, items):
    for x, tag in items:
        if tag: a.vmop(x, tag)
        else: a.e(x)

def setup_ones(a):
    a.e("s_mov_b32 s%d, 0x110000" % sA)
    a.e("s_mov_b32 s%d, 0x110000" % sB)
    a.e("v_mov_b32 v3, 0x3f803f80")
    a.e("v_cndmask_b32 %s, 0, v3, %s" % (v(vV1L), sp(sA)))
    for i in range(1, 4): a.e("v_mov_b32 %s, %s" % (v(vV1L + i), v(vV1L)))
    for i in range(16): a.e("v_mov_b32 %s, %s" % (v(vV + i), v(vV1L)))

def setup_attn(a):
    srd_words(a, [SWD, SWO, SOUT])
    a.e("s_lshl_b32 s%d, s%d, 2" % (sA, sG))
    a.e("s_add_u32 s%d, s%d, s%d" % (sA, sA, sLO))
    a.e("s_mul_i32 s%d, s%d, 112" % (sB, sA))
    a.e("s_lshl_b32 s%d, s%d, 3" % (sC, sM))
    a.e("s_add_u32 s%d, s%d, s%d" % (sB, sB, sC))
    a.e("s_lshl_b32 s%d, s%d, 2" % (sC, sHI))
    a.e("s_add_u32 s%d, s%d, s%d" % (sB, sB, sC))
    a.e("s_and_b32 s%d, s%d, 1" % (sC, sLO))
    a.e("s_lshl_b32 s%d, s%d, 1" % (sC, sC))
    a.e("s_add_u32 s%d, s%d, s%d" % (sB, sB, sC))
    a.e("s_lshl_b32 s%d, s%d, 10" % (sB, sB))
    a.e("s_add_u32 s%d, s%d, 0x%x" % (sHST, sB, WS_HF))
    a.e("s_mul_i32 s%d, s%d, %d" % (sC, sC, 112 * 1024))
    a.e("s_sub_u32 s%d, %d, s%d" % (sC, 112 * 1024, sC))
    a.e("s_add_u32 s%d, s%d, s%d" % (sHST2, sHST, sC))
    a.e("v_bfe_u32 v2, v0, 2, 2")
    a.e("v_lshrrev_b32 v3, 5, v0")
    a.e("v_lshl_add_u32 v2, v3, 2, v2")
    a.e("v_lshlrev_b32 v2, 6, v2")
    a.e("v_bfe_u32 v3, v0, 4, 1")
    a.e("v_lshl_add_u32 v2, v3, 5, v2")
    a.e("v_and_b32 v3, 3, v0")
    a.e("v_lshl_add_u32 v2, v3, 3, v2")
    a.e("s_lshr_b32 s%d, s%d, 1" % (sA, sW))
    a.e("s_lshl_b32 s%d, s%d, 11" % (sA, sA))
    a.e("v_add_u32 %s, s%d, v2" % (v(vWDA), sA))
    a.e("v_add_u32 %s, 0x%x, %s" % (v(vKVA), L_KV, v(vL16)))
    a.e("v_add_u32 %s, 0x%x, %s" % (v(vKVB), L_KV + 0x4000, v(vL16)))
    a.e("v_bfe_u32 v2, v0, 2, 3")
    a.e("v_lshlrev_b32 v2, 10, v2")
    a.e("v_lshrrev_b32 v3, 5, v0")
    a.e("v_lshl_add_u32 v2, v3, 6, v2")
    a.e("v_and_b32 v3, 3, v0")
    a.e("v_lshl_add_u32 v2, v3, 4, v2")
    a.e("s_lshl_b32 s%d, s%d, 7" % (sB, sCB))
    a.e("v_add_u32 %s, s%d, v2" % (v(vWDV), sB))
    a.e("v_min_u32 v2, 13, v0")
    a.e("v_lshlrev_b32 v2, 7, v2")
    a.e("s_lshr_b32 s%d, s%d, 1" % (sA, sT))
    a.e("s_lshl_b32 s%d, s%d, 11" % (sA, sA))
    a.e("s_add_u32 s%d, s%d, 0x%x" % (sA, sA, WS_HFLAG))
    a.e("v_add_u32 %s, s%d, v2" % (v(vFLA), sA))
    a.e("s_lshl_b32 s%d, s%d, 1" % (sA, sT))
    a.e("s_and_b32 s%d, s%d, 1" % (sB, sW))
    a.e("s_add_u32 s%d, s%d, s%d" % (sA, sA, sB))
    a.e("s_lshl_b32 s%d, s%d, 15" % (sB, sA))
    a.e("s_lshr_b32 s%d, s%d, 1" % (sKQ, sW))
    if Opt.kqx == 2:
        a.e("s_and_b32 s%d, s%d, 2" % (sKQ, sW))
        a.e("s_add_u32 s%d, s%d, s%d" % (sKQ, sKQ, sHI))
    if Opt.kqx == 1:
        a.e("s_lshl_b32 s%d, s%d, 1" % (sC, sCB))
        a.e("s_and_b32 s%d, s%d, 2" % (sC, sC))
        a.e("s_xor_b32 s%d, s%d, s%d" % (sKQ, sKQ, sC))
    a.e("s_lshl_b32 s%d, s%d, 13" % (sC, sKQ))
    a.e("s_add_u32 s%d, s%d, s%d" % (sB, sB, sC))
    a.e("s_add_u32 s%d, s%d, 0x%x" % (sOLD, sB, WS_OF))
    a.e("v_and_b32 v2, 31, v0")
    a.e("v_lshrrev_b32 v3, 5, v0")
    a.e("v_and_b32 v4, 7, v0")
    a.e("v_xor_b32 v3, v3, v4")
    a.e("v_lshlrev_b32 v3, 4, v3")
    a.e("v_lshl_add_u32 v3, v2, 8, v3")
    a.e("s_and_b32 s%d, s%d, 1" % (sB, sW))
    a.e("s_lshl_b32 s%d, s%d, 15" % (sB, sB))
    a.e("s_lshr_b32 s%d, s%d, 1" % (sC, sW))
    a.e("s_lshl_b32 s%d, s%d, 13" % (sD, sC))
    a.e("s_add_u32 s%d, s%d, s%d" % (sOUTO, sD, sB))
    a.e("s_add_u32 s%d, s%d, 0x%x" % (sD, sOUTO, L_RED))
    a.e("v_add_u32 %s, s%d, v3" % (v(vAW0), sD))
    a.e("v_lshrrev_b32 v2, 3, v0")
    a.e("v_lshlrev_b32 v3, 1, v4")
    a.e("v_xor_b32 v3, v3, v2")
    a.e("v_lshlrev_b32 v3, 4, v3")
    a.e("v_lshl_add_u32 v3, v2, 8, v3")
    a.e("s_lshl_b32 s%d, s%d, 11" % (sD, sC))
    a.e("s_add_u32 s%d, s%d, s%d" % (sD, sD, sB))
    a.e("s_add_u32 s%d, s%d, 0x%x" % (sD, sD, L_RED))
    a.e("v_add_u32 %s, s%d, v3" % (v(vAR0), sD))
    a.e("v_lshlrev_b32 v4, 4, v4")
    a.e("v_lshl_add_u32 %s, v2, 10, v4" % v(vOUTA))
    a.e("s_lshl_b32 s%d, s%d, 16" % (sC, sT))
    a.e("s_add_u32 s%d, s%d, s%d" % (sOUTO, sOUTO, sC))
    a.e("s_lshl_b32 s%d, s%d, 7" % (sC, sCB))
    a.e("s_add_u32 s%d, s%d, s%d" % (sOUTO, sOUTO, sC))
    a.e("v_mov_b32 %s, 0xdddd" % v(vIDX))
    a.e("v_lshrrev_b32 v2, 4, v0")
    a.e("v_lshl_add_u32 %s, v2, 8, %s" % (v(vHA), v(vL16)))
    for i in range(16): a.e("v_mov_b32 %s, 0" % v(vO + i))
    for i in range(32): a.e("v_mov_b32 %s, 0" % v(vD + i))
    c0 = -2.0 * math.sqrt(2.0 / math.pi) * math.log2(math.e)
    a.e("v_mov_b32 %s, 0x%x" % (v(vC0), f2u(c0)))
    a.e("v_mov_b32 %s, 0x%x" % (v(vC0 + 1), f2u(c0 * 0.044715)))

def kv_first_loads(a, quartet=False):
    it = []
    for o in (range(0, 16384, 4096) if quartet else range(0, 16384, 8192)):
        b = sWH if quartet else sWK
        it.append(("s_add_u32 m0, s%d, 0x%x\ns_add_u32 s%d, s%d, 0x%x\nbuffer_load_dwordx4 %s, %s, s%d offen sc1 lds"
                   % (b, L_KV + o, sA, b, o, v(vL16), srd(SKV), sA), "kv%d" % (o >> 13)))
    it.append(("s_mov_b32 s%d, 0x%x\nbuffer_load_dwordx4 %s, %s, %s, s%d offen sc1"
               % (sA, 63 * 2048, v(vK0, 4), v(vL16), srd(SKV), sA), "k0"))
    it.append(("s_mov_b64 exec, %s\nbuffer_load_dwordx4 %s, %s, %s, 0 offen offset:%d sc1\ns_mov_b64 exec, -1"
               % (sp(sVM), v(vV1L, 4), v(vL16), srd(SKV), 1024 + 256), "k0"))
    it.append(("s_lshl_b32 s%d, s%d, 2\ns_add_u32 s%d, s%d, s%d\ns_lshl_b32 s%d, s%d, 7\ns_add_u32 s%d, s%d, 0x%x\n"
               "buffer_load_dword %s, %s, %s, s%d offen sc1"
               % (sA, sG, sA, sA, sLO, sA, sA, sA, sA, WS_G, v(vGP), v(vGA), srd(SWS), sA), "k0"))
    it.append(("s_lshl_b32 s%d, s%d, 1\ns_and_b32 s%d, s%d, 1\ns_add_u32 s%d, s%d, s%d\ns_lshl_b32 s%d, s%d, 7\ns_add_u32 s%d, s%d, 0x%x\n"
               "buffer_load_dword %s, %s, %s, s%d offen sc1"
               % (sA, sT, sB, sW, sA, sA, sB, sA, sA, sA, sA, WS_G, v(vGC), v(vGA), srd(SWS), sA), "k0"))
    return it

def spin_counter(a, name, first_loaded, wave=0):
    a.e("s_cmp_lg_u32 s%d, %d" % (sW, wave))
    a.e("s_cbranch_scc1 L_%s_done" % name)
    a.e("s_mov_b32 s%d, 0x4000" % sB)
    if first_loaded: a.e("s_branch L_%s_chk" % name)
    a.lab("L_%s_re" % name)
    a.e("buffer_load_dword %s, off, %s, 0 sc1" % (v(vPOLL), srd(SDBG)))
    a.e("s_waitcnt vmcnt(0)")
    a.lab("L_%s_chk" % name)
    a.e("v_readfirstlane_b32 s%d, %s" % (sA, v(vPOLL)))
    a.e("s_cmp_ge_u32 s%d, 32" % sA)
    a.e("s_cbranch_scc1 L_%s_done" % name)
    a.e("s_sleep 4")
    a.e("s_sub_u32 s%d, s%d, 1" % (sB, sB))
    a.e("s_cmp_lg_u32 s%d, 0" % sB)
    a.e("s_cbranch_scc1 L_%s_re" % name)
    a.lab("L_%s_done" % name)

def phase1_F(a):
    SCHED = {1: ["01423567", "10253467", "23016457", "32104756"],
             2: ["02134657", "01324576", "10243567", "10235467"],
             3: ["01324657", "01243576", "12035467", "20134567"],
             5: ["01243567", "10325467", "23014657", "32104576"],
             6: ["01243567", "10325467", "01234657", "10324576"],
             7: ["01234567", "10235476", "01234567", "10235476"],
             8: ["01234567", "10243657", "01234567", "10243657"],
             4: ["02143657", "10325476", "02143657", "10325476"]}
    tabs = SCHED[Opt.sched] if Opt.sched else ["".join(str(c ^ (p & Opt.xmask)) for c in range(8)) for p in range(4)]
    for t_ in tabs: assert sorted(t_) == list("01234567")
    num = [int(t_[::-1], 16) for t_ in tabs]
    def table(a):
        a.e("s_add_u32 s%d, s%d, s%d" % (sA, sG, sHP))
        a.e("s_mov_b32 s%d, 0x%x" % (sXP, num[0]))
        a.e("s_mov_b32 s%d, 0x%x" % (sB, num[2]))
        a.e("s_bitcmp1_b32 s%d, 0" % sA)
        a.e("s_cselect_b32 s%d, 0x%x, s%d" % (sXP, num[1], sXP))
        a.e("s_cselect_b32 s%d, 0x%x, s%d" % (sB, num[3], sB))
        a.e("s_bitcmp1_b32 s%d, 1" % sA)
        a.e("s_cselect_b32 s%d, s%d, s%d" % (sXP, sB, sXP))
        if Opt.ghx:
            a.e("s_bitcmp1_b32 s%d, 3" % sG)
            a.e("s_cselect_b32 s%d, 0x44444444, 0" % sB)
            a.e("s_xor_b32 s%d, s%d, s%d" % (sXP, sXP, sB))
    fo, fw = {"0000": (0, 0), "0101": (0, 1), "0011": (1, 1), "0123": (0, 2)}["".join(t_[0] for t_ in tabs)]
    a.e("s_add_u32 s%d, s%d, s%d" % (sA, sG, sHP))
    a.e("s_bfe_u32 s%d, s%d, 0x%x" % (sCH, sA, fw << 16 | fo))
    if Opt.ghx: a.e("s_lshl2_add_u32 s%d, s%d, s%d" % (sCH, sD, sCH))
    a.e("s_and_b32 s%d, s%d, 0xc00" % (sWH, sWK))
    a.e("v_and_b32 %s, 0xff, v0" % v(vTID))

    def wvoff(a):
        a.e("v_lshrrev_b32 v2, 4, %s" % v(vTID))
        a.e("v_lshrrev_b32 v3, 5, %s" % v(vTID))
        a.e("v_bfi_b32 v3, 3, v2, v3")
        a.e("v_lshlrev_b32 v3, 1, v3")
        a.e("v_xor_b32 v3, v3, %s" % v(vTID))
        a.e("v_and_b32 v3, 15, v3")
        a.e("s_lshl_b32 s%d, s%d, 8" % (sA, sM))
        a.e("v_lshl_add_u32 v3, v3, 4, s%d" % sA)
        a.e("v_mul_u32_u24 v2, 3584, v2")
        a.e("v_add_u32 %s, v2, v3" % v(vDG))
    def qvoff(a):
        a.e("v_lshrrev_b32 v2, 4, %s" % v(vTID))
        a.e("v_and_b32 v2, 2, v2")
        a.e("v_xor_b32 v2, v2, %s" % v(vTID))
        a.e("v_and_b32 v2, 3, v2")
        a.e("s_lshl_b32 s%d, s%d, 6" % (sA, sHP))
        a.e("v_lshl_add_u32 v2, v2, 4, s%d" % sA)
        a.e("v_lshrrev_b32 v3, 2, %s" % v(vTID))
        a.e("v_lshl_add_u32 %s, v3, 10, v2" % v(vDQ))
    def stouch(a):
        if (Opt.diag or Opt.probe >= 0) and not Opt.klate: a.e("s_load_dwordx2 %s, s[0:1], 32" % sp(SWO))
        if not Opt.stch: return
        a.e("s_lshr_b32 s%d, s%d, 2" % (sA, sW))
        if Opt.ghx: a.e("s_lshl2_add_u32 s%d, s%d, s%d" % (sA, sD, sA))
        a.e("s_lshl_b32 s%d, s%d, 6" % (sA, sA))
        a.e("s_and_b32 s%d, s%d, 7" % (sB, sG))
        a.e("s_add_u32 s%d, s%d, s%d" % (sA, sA, sB))
        a.e("s_mul_i32 s%d, s%d, 28" % (sA, sA))
        a.e("s_bfe_u32 s%d, s%d, 0x10001" % (sB, sW))
        a.e("s_lshl1_add_u32 s%d, s%d, s%d" % (sB, sM, sB))
        a.e("s_add_u32 s%d, s%d, s%d" % (sA, sA, sB))
        a.e("s_lshl_b32 s%d, s%d, 7" % (sA, sA))
        a.e("s_bitcmp1_b32 s%d, 0" % sW)
        a.e("s_cselect_b64 %s, %s, %s" % (sp(SWKV), sp(SWU), sp(SWG)))
        a.e("s_add_u32 s%d, s%d, s%d" % (SWKV, SWKV, sA))
        a.e("s_addc_u32 s%d, s%d, 0" % (SWKV + 1, SWKV + 1))
        for i in range(Opt.stch):
            a.e("s_load_dwordx2 %s, %s, 0x%x" % (sp(sTMPP), sp(SWKV), 128 * 3584 + i * 8 * 3584 + 60))
    def wsrd(a):
        srd_words(a, [SWG])
        a.e("s_mov_b64 %s, %s" % (sp(SWU + 2), sp(SWG + 2)))

    if Opt.hrot:
        ORDER = [("q", 0)] + [(t_, 2 * h_ + j) for h_ in range(2) for t_, j in (("x", 0), ("x", 1), ("g", 0), ("u", 0), ("g", 1), ("u", 1))]
    else:
        ORDER = [("q", 0)] + [("x", j) for j in range(4)] + [(t_, j) for j in range(4) for t_ in "gu"]
    def block(items):
        out = []; lastc = None; lastw = None
        for c, kind, j in items:
            s = c % 3; pre = []
            if c != lastc:
                if c: pre.append("s_bfe_u32 s%d, s%d, 0x%x" % (sCH, sXP, 0x30000 + 4 * c))
                lastc = c; lastw = None
            fam = "w" if kind in "gu" else kind
            rot = Opt.hrot and fam != "q"
            if lastw is None or lastw[0] != fam or (rot and lastw[1] >> 1 != j >> 1):
                pre.append({"q": "s_lshl_b32 s%d, s%d, 16" % (sOFFW, sCH), "x": "s_lshl_b32 s%d, s%d, 7" % (sOFFW, sCH),
                            "w": "s_mul_i32 s%d, s%d, %d" % (sOFFW, sCH, 64 * 3584)}[fam])
                if rot: pre.append("s_%s_u32 s%d, s%d, s%d" % ("sub" if j >> 1 else "add", sOFFW, sOFFW, sRX if fam == "x" else sRW))
                lastw = (fam, 0)
            if lastw[1] != j:
                pre.append("s_add_u32 s%d, s%d, 0x%x" % (sOFFW, sOFFW, (j - lastw[1]) * (0x8000 if fam == "x" else 16 * 3584)))
                lastw = (fam, j)
            m0c, vo, rs = {"q": (L_WQ + s * 4096, vDQ, SWQ), "x": (L_X + s * 16384 + j * 4096, vDX, SX),
                           "g": (L_G + s * 16384 + j * 4096, vDG, SWG), "u": (L_U + s * 16384 + j * 4096, vDG, SWU)}[kind]
            nt = " nt" if Opt.ntx & (1 if rs == SX else 2) else ""
            out.append(("s_add_u32 m0, s%d, 0x%x\n%s\nbuffer_load_dwordx4 %s, %s, s%d offen%s lds"
                        % ((sM0B + (j >> 1)) if rot else sWH, m0c, "\n".join(pre) or "s_nop 0", v(vo), srd(rs), sOFFW, nt), "c%d" % c))
        return out
    def part(c, role): return [(c, k_, j) for k_, j in ORDER if (k_ in "gu") == (role == "A")]

    def rdsetup(a):
        setup_rd(a)
        a.e("v_lshl_add_u32 %s, v3, 3, v2" % v(vWA))
        a.e("v_lshlrev_b32 %s, 8, %s" % (v(vWA), v(vWA)))
        a.e("v_lshl_add_u32 %s, v4, 3, %s" % (v(vWA), v(vWA)))
        a.e("v_and_b32 v5, 1, v3")
        a.e("v_lshl_add_u32 v2, v5, 2, v2")
        a.e("s_lshl_b32 s%d, s%d, 2" % (sA, sHI))
        a.e("s_and_b32 s%d, s%d, 1" % (sB, sLO))
        a.e("s_lshl_b32 s%d, s%d, 1" % (sB, sB))
        a.e("s_add_u32 s%d, s%d, s%d" % (sA, sA, sB))
        a.e("v_xor_b32 v2, s%d, v2" % sA)
        a.e("v_lshl_add_u32 %s, v2, 5, %s" % (v(vWA), v(vWA)))
        a.e("v_xor_b32 %s, 32, %s" % (v(vWA + 1), v(vWA)))
        a.e("v_add_u32 %s, 0x%x, %s" % (v(vWA + 2), L_U - L_G, v(vWA)))
        a.e("v_add_u32 %s, 0x%x, %s" % (v(vWA + 3), L_U - L_G, v(vWA + 1)))
        a.e("s_lshl_b32 s%d, s%d, 12" % (sA, sLO))
        a.e("s_add_u32 s%d, s%d, 0x%x" % (sA, sA, L_X))
        a.e("v_add_u32 %s, s%d, %s" % (v(vXA), sA, v(vXA)))
        a.e("v_xor_b32 %s, 0x1000, %s" % (v(vXA + 1), v(vXA)))
        a.e("v_xor_b32 %s, 64, %s" % (v(vXA + 2), v(vXA)))
        a.e("v_xor_b32 %s, 64, %s" % (v(vXA + 3), v(vXA + 1)))
        a.e("v_add_u32 %s, 0x%x, %s" % (v(vQA), L_WQ, v(vQA)))

    a.e("s_cmp_ge_u32 s%d, 4" % sW)
    a.e("s_cbranch_scc1 L_setB")
    late = collect(setup_oclr) + collect(setup_ones) + [("; later", None)] + collect(setup_attn)
    words = collect(lambda t: srd_words(t, [SWS, SKV, SDBG, SWD, SWO, SOUT]))
    late = [x for x in late if x not in words]
    oclr = [x for x in late if x[1] == "oclr"]
    if Opt.olate: late = [x for x in late if x[1] != "oclr"]
    else: oclr = []
    words += [("v_mov_b32 %s, 0" % v(r_), None) for r_ in (vGA, vWDV, vFLA, vHA, vOUTA)]
    st = collect(rdsetup) + words + late[:Opt.fillpre]
    cut = late.index(("; later", None)) if Opt.bidle else len(late)
    fills = {"A": late[Opt.fillpre:], "B": late[Opt.fillpre:max(cut, Opt.fillpre)]}
    idleB = late[max(cut, Opt.fillpre):]
    vms = {}
    wsrd(a); wvoff(a)
    a.e("s_waitcnt lgkmcnt(0)")
    a.stamp(2)
    if Opt.spos == 0: stouch(a)
    put(a, block(part(0, "A")))
    a.e("s_branch L_setA")
    vms["A"] = a.vm; a.vm = []
    a.lab("L_setB")
    srd_words(a, [SX]); xvoff(a, vTID)
    a.e("s_waitcnt lgkmcnt(0)")
    a.stamp(2)
    if Opt.spos == 0: stouch(a)
    put(a, block(part(0, "B")[1:]))
    srd_words(a, [SWQ]); qvoff(a)
    put(a, block(part(0, "B")[:1]))
    vms["B"] = a.vm
    for role in "BA":
        a.vm = vms[role]
        if role == "A": a.lab("L_setA")
        if Opt.spos == 1: stouch(a)
        table(a)
        setup_ids(a)
        if role == "A": srd_words(a, [SX, SWQ])
        else: wsrd(a)
        def touches():
            tm = sum(0xff << (8 * i) for i in range(4) if Opt.tch >> i & 1)
            setex = "s_bitcmp1_b32 s%d, 3\ns_cselect_b32 exec_lo, 0, 0x%x\ns_cselect_b32 exec_hi, 0x%x, 0" % (sG, tm, tm) if Opt.ghx \
                    else "s_mov_b32 exec_lo, 0x%x\ns_mov_b32 exec_hi, 0" % tm
            if Opt.tlb & 2 and role == "B":
                a.e("s_and_b32 s%d, s%d, 7" % (sA, sG))
                a.e("v_lshl_add_u32 v2, v0, 3, s%d" % sA)
                a.e("v_mul_u32_u24 v3, 3584, v2")
                a.e("s_and_b32 s%d, s%d, 1" % (sB, sW))
                a.e("s_lshl1_add_u32 s%d, s%d, s%d" % (sA, sM, sB))
                a.e("s_lshl_b32 s%d, s%d, 7" % (sA, sA))
                a.e(setex)
                a.e("s_cmp_ge_u32 s%d, 6" % sW)
                a.e("s_cbranch_scc1 L_tlbu")
                a.e("buffer_load_dword %s, v3, %s, s%d offen" % (v(vPOLL), srd(SWG), sA))
                a.e("s_branch L_tlbe")
                a.lab("L_tlbu")
                a.e("buffer_load_dword %s, v3, %s, s%d offen" % (v(vPOLL), srd(SWU), sA))
                a.lab("L_tlbe")
                a.e("s_mov_b64 exec, -1")
                a.vm.append("tlb")
            if Opt.tlb & 12 and role == "A":
                a.e("s_cmp_lg_u32 s%d, 0" % sW)
                a.e("s_cbranch_scc1 L_tlbx")
                a.e("s_and_b32 s%d, s%d, 7" % (sA, sG))
                a.e("v_lshl_add_u32 v2, v0, 3, s%d" % sA)
                a.e("v_lshlrev_b32 v3, 10, v2")
                a.e("s_lshl_b32 s%d, s%d, 6" % (sA, sHP))
                a.e(setex if Opt.tlb & 4 else "s_mov_b64 exec, 1")
                a.e("buffer_load_dword %s, v3, %s, s%d offen" % (v(vPOLL), srd(SWQ), sA))
                a.e("s_branch L_tlby")
                a.lab("L_tlbx")
                a.e("s_and_b32 s%d, s%d, 3" % (sA, sHP))
                a.e("s_lshl2_add_u32 s%d, s%d, s%d" % (sA, sG, sA))
                a.e("s_lshl_b32 s%d, s%d, 15" % (sA, sA))
                a.e("v_lshl_add_u32 v3, v0, 10, s%d" % sA)
                a.e("s_lshr_b32 s%d, s%d, 3" % (sA, sG))
                a.e("s_lshl2_add_u32 s%d, s%d, s%d" % (sA, sA, sW) if Opt.ghx else "s_mov_b32 s%d, s%d" % (sA, sW))
                a.e("s_lshl_b32 s%d, s%d, 7" % (sA, sA))
                a.e("s_bitcmp1_b32 %d, s%d" % (Opt.tch if Opt.tlb & 8 else 0, sW))
                a.e("s_cselect_b32 exec_lo, -1, 1")
                a.e("s_mov_b32 exec_hi, 0")
                a.e("buffer_load_dword %s, v3, %s, s%d offen" % (v(vPOLL), srd(SX), sA))
                a.lab("L_tlby")
                a.e("s_mov_b64 exec, -1")
                a.vm.append("tlb")
        if Opt.tpos == 0: touches()
        if Opt.startbar: a.e("s_barrier")
        npre = min(Opt.npre, 8) if role == "A" else 5
        pn = block(part(1, role)[:npre])
        rest = st + (collect(qvoff) + collect(lambda t: xvoff(t, vTID)) if role == "A" else collect(wvoff))
        gap = len(rest) // (npre + Opt.pregap) + 1
        if Opt.tpos == 2:
            put(a, pn); touches(); npre = 0
        if Opt.tpos == 3 and role == "B":
            put(a, pn); touches(); npre = 0
        for i in range(npre):
            put(a, pn[:1]); pn = pn[1:]
            put(a, rest[:gap]); rest = rest[gap:]
        put(a, rest)
        if Opt.tpos == 1 or (Opt.tpos == 3 and role == "A"): touches()
        a.e("s_mov_b64 vcc, %d" % (-1 if role == "A" else 0))
        if role == "A":
            a.waitvm("c0", lgkm=True)
        else:
            a.e("s_setprio 1")
            a.waitvm("c0", lgkm=True)
            a.e("s_branch L_k0")
        vms[role] = a.vm
    stream = part(1, "A")[min(Opt.npre, 8):] + [(c, k_, j) for c in range(2, 8) for k_, j in ORDER]
    qa = [int(x, 16) for x in Opt.qa]; qb = [int(x, 16) for x in Opt.qb]
    def take(n, cmax):
        m = 0
        while m < n and m < len(stream) and stream[m][0] <= cmax: m += 1
        r_ = stream[:m]; del stream[:m]
        return block(r_)
    a.lab("L_k0")
    a.vm = vms["A"]
    ool = Asm()
    def dmablock(name, role, items, wait=None):
        a.e("s_cbranch_vcc%s L_%s" % ("nz" if role == "A" else "z", name))
        if wait: a.waitvm(wait, lgkm=True)
        a.lab("L_%s_r" % name)
        ool.lab("L_%s" % name)
        ool.vm = a.vm if role == "A" else vms["B"]
        for it_ in items:
            put(ool, [it_])
            fp = Opt.fillper if role == "A" or not Opt.bidle else 2
            put(ool, fills[role][:fp]); fills[role] = fills[role][fp:]
        if name in ("d7", "e7"): put(ool, fills[role]); fills[role] = []
        if wait: ool.waitvm(wait, lgkm=True)
        if role == "B": vms["B"] = ool.vm
        ool.e("s_branch L_%s_r" % name)
    a.ool = ool.l

    def fr(k):
        b = vF1 + 36 * (k % 2)
        return dict(x=b, w=b + 16, q=b + 32)
    def reads(k):
        c, s = divmod(k, 2); f = fr(k); sl = c % 3
        wo = sl * 16384 + s * 8192
        W = lambda i: [rdtr(f['w'] + 4 * i, vWA + i, wo), rdtr(f['w'] + 4 * i + 2, vWA + i, wo + 1024)]
        X = [rd128(f['x'] + 4 * b, vXA + 2 * s + (b >> 1), sl * 16384 + (b & 1) * 2048) for b in range(4)]
        return W(0) + X + W(2) + W(1) + W(3) + [rdtr(f['q'], vQA, sl * 4096 + s * 2048), rdtr(f['q'] + 2, vQA, sl * 4096 + s * 2048 + 256)]
    a.e("s_barrier")
    a.stamp(3)
    if Opt.kdiag or Opt.probe >= 18:
        kstamp(a, 2)
        a.e("s_waitcnt lgkmcnt(0)")
    for r in reads(0): a.e(r)
    if qa[0]: dmablock("d2", "A", take(qa[0], 2))
    for k in range(16):
        c, s = divmod(k, 2); f = fr(k)
        z = lambda x: None if k == 0 else x
        mf = []
        for n_, i in enumerate((0, 2, 1, 3)):
            for b in (range(4) if n_ % 2 == 0 else range(3, -1, -1)):
                d = vACC + 16 * b + 4 * i
                mf.append(mfma16(d, f['w'] + 4 * i, f['x'] + 4 * b, z(d)))
        for b in range(2): mf.append(mfma16(vAQ + 4 * b, f['q'], f['x'] + 4 * b, z(vAQ + 4 * b)))
        rds = reads(k + 1) if k < 15 else []
        if s == 0:
            a.e("s_waitcnt lgkmcnt(6)")
            for i, m in enumerate(mf):
                if i == 8: a.e("s_waitcnt lgkmcnt(8)")
                a.e(m)
                if i < len(rds): a.e(rds[i])
            continue
        a.e("s_waitcnt lgkmcnt(8)")
        for m in mf[:4]: a.e(m)
        if c <= 5:
            dmablock("e%d" % (c + 2), "B", take(qb[c], c + 2), "c%d" % (c + 1))
            assert not any(x[0] <= c + 1 for x in stream)
        if c == 7:
            a.e("s_waitcnt lgkmcnt(0)")
        elif c == 6:
            a.e("s_waitcnt lgkmcnt(0)")
            a.e("s_cbranch_vccz L_st7")
            a.e("s_setprio 1")
            a.e("s_waitcnt vmcnt(0)")
            a.e("s_barrier")
            a.lab("L_st7")
        else:
            a.e("s_barrier")
        if c < 7 and ((Opt.kdiag == 1 and Opt.diag) or Opt.probe == 21 + c):
            kstamp(a, 3 + c)
            a.e("s_waitcnt lgkmcnt(0)")
        if c + 3 < 8:
            items = take(qa[c + 1], c + 3)
            dmablock("d%d" % (c + 3), "A", items)
        for i, m in enumerate(mf[4:]):
            a.e(m)
            if i < len(rds): a.e(rds[i])
        if k == 11: assert not stream and not fills["A"] and not fills["B"]
        if k == 11:
            a.e("s_cbranch_vccnz L_st6")
            a.e("s_setprio 0")
            nm = next((i for i, x in enumerate(idleB) if "0xdddd" in x[0]), 0)
            a.e("s_cmp_lg_u32 s%d, 4" % sW)
            a.e("s_cbranch_scc1 L_nopoll")
            a.e("buffer_load_dword %s, off, %s, 0 sc1" % (v(vPOLL), srd(SDBG)))
            a.lab("L_nopoll")
            put(a, idleB[:nm]); idleB = idleB[nm:]
            a.wait0()
            spin_counter(a, "kvf", True, 4)
            a.e("s_barrier")
            put(a, kv_first_loads(a, True) + oclr + idleB)
            a.lab("L_st6")
    a.kvA = (kv_first_loads(a) + oclr)[2:]
    a.stamp(4)

def phase1_L(a):
    a.lab("L_light")
    a.vm = []
    if Opt.oddl: a.e("s_add_u32 s%d, s%d, 14" % (sM, sB))
    if Opt.klate:
        ptr_loads(a, ((SGATE, 72), (SWKV, 16), (SWV, 24)))
    else:
        a.e("s_waitcnt lgkmcnt(0)")
        ptr_loads(a, ((SWKV, 16), (SWV, 24), (SGATE, 72), (SWO, 32)))
    srd_words(a, [SWKV, SWV, SGATE, SX])
    xvoff(a, 0)
    a.e("v_and_b32 v2, 63, v0")
    a.e("v_lshlrev_b32 %s, 4, v2" % v(vL16))
    a.e("s_sub_u32 s%d, s%d, 14" % (sCNT, sM))
    a.e("s_lshl_b32 s%d, s%d, 16" % (sOLD, sCNT))
    a.e("s_lshl_b32 s%d, s%d, 13" % (sHST, sCNT))
    a.e("s_add_u32 s%d, s%d, s%d" % (sWH, sHST, sWK))
    a.e("s_xor_b32 s%d, s%d, 0x2000" % (sHST, sHST))
    a.e("s_add_u32 s%d, s%d, 0x2000" % (sA, sWK))
    a.e("s_waitcnt lgkmcnt(0)")
    a.stamp(2)
    def xdma(c, base, so):
        a.vmop("s_add_u32 m0, s%d, 0x%x\ns_nop 0\nbuffer_load_dwordx4 %s, %s, s%d offen offset:%d lds"
               % (base, LL_X + c * 16384 - c * 128, v(vDX), srd(SX), so, c * 128), "c%d" % c)
    def wdma(u):
        for t, rs in enumerate((SWKV, SWV)):
            a.vmop("s_add_u32 m0, s%d, 0x%x\ns_nop 0\nbuffer_load_dwordx4 %s, %s, s%d offen lds"
                   % (sWK, LL_W + t * 16384 + u * 8192, v(vL16), srd(rs), sA if u else sWK), "w")
    wdma(0)
    a.vmop("s_mov_b32 m0, s%d\ns_nop 0\nbuffer_load_dwordx4 %s, %s, 0 offen lds" % (sHST, v(vL16), srd(SGATE)), "w")
    for c in range(8):
        if c == 4: wdma(1)
        xdma(c, sWH, sOLD)
        if (c == 1 and Opt.lthr & 1) or (c == 3 and Opt.lthr & 2): a.e("s_waitcnt vmcnt(0)")
        if c in (1, 3, 5): a.e("s_barrier")
    setup_ids(a)
    srd_words(a, [SWQ])
    setup_rd(a)
    a.e("v_lshrrev_b32 v3, 5, v0")
    a.e("v_bfrev_b32 v5, v4")
    a.e("v_lshrrev_b32 v5, 30, v5")
    a.e("s_cmp_ge_u32 s%d, 2" % sLO)
    a.e("s_cselect_b64 vcc, -1, 0")
    a.e("v_cndmask_b32 v4, v5, v4, vcc")
    a.e("v_lshl_add_u32 %s, v3, 3, v2" % v(vWA))
    a.e("v_lshlrev_b32 %s, 5, %s" % (v(vWA), v(vWA)))
    a.e("v_lshl_add_u32 %s, v4, 3, %s" % (v(vWA), v(vWA)))
    a.e("s_lshr_b32 s%d, s%d, 1" % (sA, sLO))
    a.e("s_lshl_b32 s%d, s%d, 14" % (sA, sA))
    a.e("s_add_u32 s%d, s%d, 0x%x" % (sA, sA, LL_W))
    a.e("v_add_u32 %s, s%d, %s" % (v(vWA), sA, v(vWA)))
    a.e("v_lshl_add_u32 %s, v3, 4, s%d" % (v(vWA + 1), sHST))
    a.e("s_and_b32 s%d, s%d, 1" % (sA, sLO))
    a.e("s_lshl_b32 s%d, s%d, 1" % (sB, sCNT))
    a.e("s_add_u32 s%d, s%d, s%d" % (sCNT, sA, sB))
    a.e("s_lshl_b32 s%d, s%d, 12" % (sA, sCNT))
    a.e("v_and_b32 v2, 31, v0")
    a.e("v_lshrrev_b32 v4, 1, v0")
    a.e("v_lshlrev_b32 v5, 1, v0")
    a.e("v_bfi_b32 v4, 4, v4, v5")
    a.e("v_bfi_b32 v4, 12, v4, v2")
    a.e("v_cndmask_b32 v2, v2, v4, vcc")
    a.e("v_bfe_u32 v4, v2, 1, 3")
    a.e("v_xor_b32 v4, v4, v3")
    a.e("v_lshlrev_b32 v4, 4, v4")
    a.e("v_lshl_add_u32 v4, v2, 7, v4")
    a.e("v_add_u32 %s, s%d, v4" % (v(vLX), sA))
    for s in range(1, 4): a.e("v_xor_b32 %s, %d, %s" % (v(vLX + s), 32 * s, v(vLX)))
    for s in range(4): a.e("v_add_u32 %s, 0x10000, %s" % (v(vLX + 4 + s), v(vLX + s)))
    a.e("s_waitcnt lgkmcnt(0)")
    setup_oclr(a)
    vm0 = list(a.vm)
    a.e("s_cmp_lg_u32 s%d, 0" % sHI)
    a.e("s_cbranch_scc1 L_lB")
    a.e("s_not_b64 %s, %s" % (sp(sTMPP), sp(sVM)))
    a.e("s_cmp_ge_u32 s%d, 2" % sLO)
    a.e("s_cbranch_scc1 L_lV")
    def chain(kind):
        a.vm = list(vm0)
        def fr(k):
            b = vFR + 8 * (k % 4)
            return b, b + 4
        def reads(k):
            c, s = divmod(k, 4); x, w = fr(k)
            r = [rd128(x, vLX + s + 4 * (c >> 2), (c & 3) * 16384), rdtr(w, vWA, k * 512), rdtr(w + 2, vWA, k * 512 + 128)]
            if kind == "K":
                r += ["s_mov_b64 exec, %s" % sp(sTMPP), rd128(w, vWA + 1, k * 32), "s_mov_b64 exec, -1"]
            return r
        for q in range(4):
            a.waitvm("c%d" % (2 * q + 1))
            a.e("s_barrier")
            nr = 4 if kind == "K" else 3
            for k in range(8 * q, 8 * q + 2):
                for r in reads(k): a.e(r)
            for k in range(8 * q, 8 * q + 8):
                if k + 2 < 8 * q + 8:
                    for r in reads(k + 2): a.e(r)
                left = min(2, 8 * q + 7 - k)
                a.e("s_waitcnt lgkmcnt(%d)" % (left * nr))
                x, w = fr(k)
                cc = None if k == 0 else vACC
                a.e(mfma(vACC, w, x, cc) if kind == "K" else mfma(vACC, x, w, cc))
        a.e("s_lshl_b32 s%d, s%d, 2" % (sA, sG))
        a.e("s_add_u32 s%d, s%d, s%d" % (sA, sA, sCNT))
        a.e("s_nop 12")
        if kind == "K":
            a.e("s_mov_b32 s%d, 0x%x" % (sC, f2u(0.25 * math.log2(math.e))))
            for i in range(8): a.e("v_mul_f32 %s, s%d, %s" % (v(vACC + i), sC, v(vACC + i)))
            a.e("v_mul_f32 %s, 0x%x, %s" % (v(vACC + 8), f2u(-math.log2(math.e)), v(vACC + 8)))
            a.e("v_exp_f32 %s, %s" % (v(vACC + 8), v(vACC + 8)))
            for i in range(4): a.e("v_cvt_pk_bf16_f32 %s, %s, %s" % (v(vFR + i), v(vACC + 2 * i), v(vACC + 2 * i + 1)))
            a.e("v_add_f32 %s, 1.0, %s" % (v(vACC + 8), v(vACC + 8)))
            a.e("v_rcp_f32 %s, %s" % (v(vACC + 8), v(vACC + 8)))
            a.e("s_add_u32 s%d, s%d, 63" % (sB, sA))
            a.e("s_and_b32 s%d, s%d, 63" % (sB, sB))
            a.e("s_lshl_b32 s%d, s%d, 11" % (sB, sB))
            a.e("buffer_store_dwordx4 %s, %s, %s, s%d offen sc1" % (v(vFR, 4), v(vL16), srd(SKV), sB))
            a.e("s_lshl_b32 s%d, s%d, 7" % (sB, sA))
            a.e("s_add_u32 s%d, s%d, 0x%x" % (sB, sB, WS_G))
            a.e("s_mov_b32 exec_hi, 0")
            a.e("buffer_store_dword %s, %s, %s, s%d offen sc1" % (v(vACC + 8), v(vGA), srd(SWS), sB))
            a.e("s_mov_b64 exec, -1")
        else:
            for i in range(8): a.e("v_cvt_pk_bf16_f32 %s, %s, %s" % (v(vFR + i), v(vACC + 2 * i), v(vACC + 2 * i + 1)))
            a.e("v_bfe_u32 v2, v0, 4, 1")
            a.e("v_add_u32 v2, s%d, v2" % sA)
            a.e("v_and_b32 v2, 63, v2")
            a.e("v_lshl_add_u32 v2, v2, 11, %s" % v(vL16))
            for i in range(4): a.e("v_cndmask_b32 %s, %s, %s, %s" % (v(vFR + i), v(vFR + 4 + i), v(vFR + i), sp(sVM)))
            a.e("buffer_store_dwordx4 %s, v2, %s, 0 offen offset:1024 sc1" % (v(vFR, 4), srd(SKV)))
        a.e("s_branch L_lJ")
    chain("K")
    a.lab("L_lV")
    chain("V")
    a.lab("L_lB")
    a.vm = list(vm0)
    a.e("s_cmp_lg_u32 s%d, 14" % sM)
    a.e("s_cbranch_scc1 L_nozf")
    a.e("s_cmp_lg_u32 s%d, 4" % sW)
    a.e("s_cbranch_scc1 L_nozf")
    a.e("v_lshlrev_b32 v2, 7, v0")
    a.e("s_lshl_b32 s%d, s%d, 11" % (sA, sG))
    a.e("s_add_u32 s%d, s%d, 0x%x" % (sA, sA, WS_HFLAG))
    a.e("s_mov_b64 exec, 0xffff")
    a.e("buffer_store_dword %s, v2, %s, s%d offen sc1" % (v(vZERO), srd(SWS), sA))
    a.e("s_mov_b64 exec, -1")
    a.lab("L_nozf")
    for q in range(4):
        a.waitvm("c%d" % (2 * q + 1))
        a.e("s_barrier")
    a.lab("L_lJ")
    a.e("v_lshrrev_b32 v3, 2, v0")
    a.e("v_lshlrev_b32 v3, 10, v3")
    a.e("v_lshrrev_b32 v4, 5, v0")
    a.e("v_lshlrev_b32 v4, 1, v4")
    a.e("v_xor_b32 v4, v4, v0")
    a.e("v_and_b32 v4, 3, v4")
    a.e("v_lshl_add_u32 v3, v4, 4, v3")
    a.e("s_lshl_b32 s%d, s%d, 14" % (sA, sW))
    a.e("s_lshl_b32 s%d, s%d, 6" % (sB, sHP))
    a.e("s_add_u32 s%d, s%d, s%d" % (sA, sA, sB))
    a.e("v_add_u32 %s, s%d, v3" % (v(vDQ), sA))
    a.e("s_xor_b32 s%d, s%d, 0x2000" % (sWH, sWH))
    a.e("s_xor_b32 s%d, s%d, 0x10000" % (sOLD, sOLD))
    a.wait0(lgkm=True)
    a.e("s_barrier")
    a.e("s_cmp_lg_u32 s%d, 0" % sW)
    a.e("s_cbranch_scc1 L_noat")
    a.e("s_mov_b64 exec, 1")
    a.e("buffer_atomic_add %s, off, %s, 0 sc1" % (v(vONE), srd(SDBG)))
    a.e("s_mov_b64 exec, -1")
    a.lab("L_noat")
    a.stamp(3)
    for c in range(8): xdma(c, sWH, sOLD)
    for p in range(4):
        a.e("s_add_u32 m0, s%d, 0x%x" % (sWK, LL_WQ + p * 8192))
        a.e("s_mov_b32 s%d, 0x%x" % (sA, p * 128 * 1024))
        a.e("buffer_load_dwordx4 %s, %s, s%d offen lds" % (v(vDQ), srd(SWQ), sA))
    setup_ones(a)
    setup_attn(a)
    if Opt.touch & 2:
        a.e("s_lshl_b32 s%d, s%d, 1" % (sA, sG))
        a.e("s_add_u32 s%d, s%d, s%d" % (sA, sA, sM))
        a.e("s_sub_u32 s%d, s%d, 14" % (sA, sA))
        a.e("s_lshl_b32 s%d, s%d, 3" % (sA, sA))
        a.e("s_add_u32 s%d, s%d, s%d" % (sA, sA, sW))
        a.e("v_lshlrev_b32 v2, 15, v0")
        a.e("s_lshl_b32 s%d, s%d, 7" % (sA, sA))
        a.e("buffer_load_dword %s, v2, %s, s%d offen" % (v(vPOLL), srd(SWO), sA))
        a.e("buffer_load_dword %s, v2, %s, s%d offen" % (v(vPOLL), srd(SWD), sA))
    a.e("s_lshl_b32 s%d, s%d, 12" % (sA, sLO))
    a.e("v_add_u32 %s, s%d, %s" % (v(vXA), sA, v(vXA)))
    a.e("v_xor_b32 %s, 64, %s" % (v(vXA + 1), v(vXA)))
    a.e("v_add_u32 %s, 0x10000, %s" % (v(vXA + 2), v(vXA)))
    a.e("v_add_u32 %s, 0x10000, %s" % (v(vXA + 3), v(vXA + 1)))
    a.e("v_add_u32 %s, 0x%x, %s" % (v(vQA), LL_WQ, v(vQA)))
    a.e("s_waitcnt vmcnt(%d)" % (2 if Opt.touch & 2 else 0))
    a.e("s_barrier")
    def fr(k): return vFR + 12 * (k % 3)
    def reads(k):
        c, s = divmod(k, 2); f = fr(k)
        return [rd128(f + 4 * b, vXA + s + 2 * (c >> 2), (c & 3) * 16384 + b * 2048) for b in range(2)] + \
               [rdtr(f + 8, vQA, k * 2048), rdtr(f + 10, vQA, k * 2048 + 256)]
    for k in range(2):
        for r in reads(k): a.e(r)
    for k in range(16):
        a.e("s_waitcnt lgkmcnt(%d)" % (4 * min(1, 15 - k)))
        for b in range(2): a.e(mfma16(vAQ + 4 * b, fr(k) + 8, fr(k) + 4 * b, None if k == 0 else vAQ + 4 * b))
        if k + 2 < 16:
            for r in reads(k + 2): a.e(r)
    spin_counter(a, "kvl", False)
    a.e("s_barrier")
    for s, t in kv_first_loads(a): a.e(s)
    a.wait0()
    a.stamp(4)
    a.e("s_branch L_join")

def gelu_tile(a, ti, scalar=False):
    acc = vACC + 16 * ti
    t = vFR
    o = vFR + 8 + 4 * ti
    pk = lambda r: v(r, 2)
    if scalar:
        for i in range(8): a.e("v_mul_f32 %s, %s, %s" % (v(t + i), v(acc + i), v(acc + i)))
        for i in range(8): a.e("v_fma_f32 %s, %s, %s, %s" % (v(t + i), v(t + i), v(vC0 + 1), v(vC0)))
        for i in range(8): a.e("v_mul_f32 %s, %s, %s" % (v(t + i), v(t + i), v(acc + i)))
        for i in range(8): a.e("v_exp_f32 %s, %s" % (v(t + i), v(t + i)))
        for i in range(8): a.e("v_add_f32 %s, 1.0, %s" % (v(t + i), v(t + i)))
        for i in range(8): a.e("v_rcp_f32 %s, %s" % (v(t + i), v(t + i)))
        for i in range(8): a.e("v_mul_f32 %s, %s, %s" % (v(acc + i), v(acc + i), v(acc + 8 + i)))
        for i in range(8): a.e("v_mul_f32 %s, %s, %s" % (v(acc + i), v(acc + i), v(t + i)))
    R4, R8 = (range(0), range(0)) if scalar else (range(4), range(8))
    for i in R4: a.e("v_pk_mul_f32 %s, %s, %s" % (pk(t + 2 * i), pk(acc + 2 * i), pk(acc + 2 * i)))
    for i in R4: a.e("v_pk_fma_f32 %s, %s, %s, %s op_sel:[0,1,0] op_sel_hi:[1,1,0]" % (pk(t + 2 * i), pk(t + 2 * i), pk(vC0), pk(vC0)))
    for i in R4: a.e("v_pk_mul_f32 %s, %s, %s" % (pk(t + 2 * i), pk(t + 2 * i), pk(acc + 2 * i)))
    for i in R8: a.e("v_exp_f32 %s, %s" % (v(t + i), v(t + i)))
    for i in R4: a.e("v_pk_add_f32 %s, %s, 1.0 op_sel_hi:[1,0]" % (pk(t + 2 * i), pk(t + 2 * i)))
    for i in R8: a.e("v_rcp_f32 %s, %s" % (v(t + i), v(t + i)))
    for i in R4: a.e("v_pk_mul_f32 %s, %s, %s" % (pk(acc + 2 * i), pk(acc + 2 * i), pk(acc + 8 + 2 * i)))
    for i in R4: a.e("v_pk_mul_f32 %s, %s, %s" % (pk(acc + 2 * i), pk(acc + 2 * i), pk(t + 2 * i)))
    for i in range(4): a.e("v_cvt_pk_bf16_f32 %s, %s, %s" % (v(o + i), v(acc + 2 * i), v(acc + 2 * i + 1)))
    a.vmop("buffer_store_dwordx4 %s, %s, %s, s%d offen offset:%d sc1" % (v(o, 4), v(vHA), srd(SWS), sHST2 if ti >> 1 else sHST, (ti & 1) * 256), "hst")

def Yseg(hset, toggle=False, first=False, extra=False, last=False):
    out = []
    for t in range(2):
        pos = [int(x, 17) for x in (Opt.ypos0 if hset is None else Opt.ypos2 if extra else Opt.ypos1)]
        if last and t == 1: pos = [pos[0], 0, 11, pos[1]]
        S, Sn = vS + 16 * t, vS + 16 * (1 - t)
        K, V0, V1 = vKF + 4 * t, vV + 8 * t, vV + 8 * t + 4
        for e in range(1, 17):
            out.append("v_exp_f32 %s, %s" % (v(S + e - 1), v(S + e - 1)))
            if e == pos[0] and not (first and t == 0): out.append(smfmac(vO, V1, Sn + 8))
            if e == pos[1]: out.append(mfma(Sn, K, vQ, None))
            if e == pos[2]: out.append(smfmac(vO, V0, S))
            if hset is not None:
                if e == 13 and t == 1 and toggle:
                    out.append("v_xor_b32 %s, 0x4000, %s" % (v(vKVB), v(vKVB)))
                if e == pos[3]: out.append(mfma(vD + 16 * t, vWF + 4 * t, vH + 4 * hset, vD + 16 * t))
                if extra and e == pos[4]: out.append(mfma(vD + 16 * t, vFR + 16 + 4 * t, vH + 16 + 4 * hset, vD + 16 * t))
    return out

def kv_reads(off, vKVA=vKVA):
    r = [rd128(vKF, vKVA, off), rd128(vKF + 4, vKVA, off + 2048), "s_mov_b64 exec, %s" % sp(sVM)]
    for t in range(2):
        r += [rd128(vV + 8 * t, vKVA, off + 2048 * t + 1024), rd128(vV + 8 * t + 4, vKVA, off + 2048 * t + 1280)]
    r.append("s_mov_b64 exec, -1")
    return r
def wd_reads(dst, addr, off):
    r = []
    for c in range(2):
        r += [rdtr(dst + 4 * c, addr, off + 512 * c), rdtr(dst + 4 * c + 2, addr, off + 512 * c + 1024)]
    return r

def hord(): return [0, 2, 4, 6, 1, 3, 5, 7] if Opt.hord else list(range(8))
def wdrow(sg): return (32 * (sg >> 1) + 8 * (sg & 1)) * 1024

def attention(a, role, pre0=None):
    A = role == "A"
    def kvdma(u):
        a.vmop("s_add_u32 m0, s%d, 0x%x\ns_add_u32 s%d, s%d, 0x%x\nbuffer_load_dwordx4 %s, %s, s%d offen sc1 lds"
               % (sWK, L_KV + (u % 4) * 8192, sA, sWK, u * 8192, v(vL16), srd(SKV), sA), "kv%d" % u)
    def wddma(sg):
        a.vmop("s_add_u32 m0, s%d, 0x%x\ns_add_u32 s%d, s%d, 0x%x\nbuffer_load_dwordx4 %s, %s, s%d offen lds"
               % (sWK, L_WD + (sg % 4 if sg < 23 or sg == 27 else sg - 19) * 8192, sA, sWDOFF, wdrow(sg), v(vWDV), srd(SWD), sA), "wd%d" % sg)
    def wodma(j):
        a.vmop("s_add_u32 m0, s%d, 0x%x\ns_add_u32 s%d, s%d, 0x%x\nbuffer_load_dwordx4 %s, %s, s%d offen lds"
               % (sWK, L_WO + (7 - j) * 8192, sA, sB, hord()[j] * 16384, v(vWDV), srd(SWO), sA), "wo")
    def hload(sg, dst):
        a.vmop("s_add_u32 s%d, s%d, 0x%x\nbuffer_load_dwordx4 %s, %s, %s, s%d offen sc1"
               % (sA, sHOFF, sg * 1024, v(dst, 4), v(vL16), srd(SWS), sA), "h%d" % sg)
    for n in range(12):
        if not A and n == 0: a.e("s_barrier")
        if n % 2 == 1: astamp(a, 2 + n // 2)
        if n == Opt.pcyc: a.e("%s %s" % ("s_memrealtime" if Opt.prt else "s_memtime", sp(sSTAMP + 6)))
        tags = []
        if A and n % 2 == 1: tags.append("kv%d" % ((n + 1) // 2))
        if not A and n % 2 == 0: tags.append("kv%d" % ((n + 2) // 2))
        if n == Opt.hpub - (0 if A else 1): tags.append("hst")
        if n == 6: tags.append("wo")
        if n == 9: tags.append("wd27")
        if n == 11: tags.append("wd0")
        if n == 9 and A:
            a.e("s_cmp_lg_u32 s%d, 0" % sW)
            a.e("s_cbranch_scc1 L_hf_done")
            a.e("s_mov_b32 s%d, 0x4000" % sB)
            a.e("s_waitcnt vmcnt(0)")
            a.lab("L_hf_chk")
            a.e("v_cmp_ne_u32 vcc, 1, %s" % v(vPOLL))
            a.e("s_cbranch_vccz L_hf_done")
            a.e("s_sleep %d" % Opt.hsl)
            a.e("buffer_load_dword %s, %s, %s, 0 offen sc1" % (v(vPOLL), v(vFLA), srd(SWS)))
            a.e("s_sub_u32 s%d, s%d, 1" % (sB, sB))
            a.e("s_cmp_lg_u32 s%d, 0" % sB)
            a.e("s_waitcnt vmcnt(0)")
            a.e("s_cbranch_scc1 L_hf_chk")
            a.lab("L_hf_done")
        a.waitvm(tags)
        if n == 5 and Opt.diag == 3 and A:
            a.e("v_mov_b32 v2, s%d" % sSTAMP)
            a.e("s_lshl_b32 s%d, s2, 3" % sA)
            a.e("s_add_u32 s%d, s%d, s%d" % (sA, sA, sW))
            a.e("s_lshl_b32 s%d, s%d, 7" % (sA, sA))
            a.e("s_add_u32 s%d, s%d, 0x%x" % (sA, sA, WS_STAMP))
            a.e("s_mov_b64 exec, 1")
            a.vmop("buffer_store_dword v2, off, %s, s%d offset:12 sc1" % (srd(SWS), sA), "st")
            a.e("s_mov_b64 exec, -1")
        if n == Opt.hpub and not A:
            a.e("s_cmp_ge_u32 s%d, 14" % sM)
            a.e("s_cbranch_scc1 L_nohf")
            a.e("s_cmp_lg_u32 s%d, 4" % sW)
            a.e("s_cbranch_scc1 L_nohf")
            a.e("s_lshl_b32 s%d, s%d, 4" % (sA, sG))
            a.e("s_add_u32 s%d, s%d, s%d" % (sA, sA, sM))
            a.e("s_lshl_b32 s%d, s%d, 7" % (sA, sA))
            a.e("s_add_u32 s%d, s%d, 0x%x" % (sA, sA, WS_HFLAG))
            a.e("s_mov_b64 exec, 1")
            a.e("buffer_store_dword %s, off, %s, s%d sc1" % (v(vONE), srd(SWS), sA))
            a.e("s_mov_b64 exec, -1")
            a.lab("L_nohf")
        for r in kv_reads((n % 8) * 4096): a.e(r)
        if n == 8 and A:
            a.e("s_cmp_lg_u32 s%d, 0" % sW)
            a.e("s_cbranch_scc1 L_hf_nol")
            a.e("buffer_load_dword %s, %s, %s, 0 offen sc1" % (v(vPOLL), v(vFLA), srd(SWS)))
            a.lab("L_hf_nol")
        if n == 0:
            if A or Opt.hpub == 3:
                kvdma(2); kvdma(3)
            a.e("s_mov_b32 s%d, s%d" % (sC, sKQ))
            a.e("s_mul_i32 s%d, s%d, %d" % (sWDOFF, sC, 448 * 1024))
            a.e("s_and_b32 s%d, s%d, 1" % (sB, sW))
            a.e("s_lshl_b32 s%d, s%d, 14" % (sA, sB))
            a.e("s_add_u32 s%d, s%d, s%d" % (sWDOFF, sWDOFF, sA))
            a.e("s_lshl_b32 s%d, s%d, 1" % (sA, sT))
            a.e("s_add_u32 s%d, s%d, s%d" % (sA, sA, sB))
            a.e("s_mul_i32 s%d, s%d, 112" % (sA, sA))
            a.e("s_mul_i32 s%d, s%d, 28" % (sB, sC))
            a.e("s_add_u32 s%d, s%d, s%d" % (sA, sA, sB))
            a.e("s_lshl_b32 s%d, s%d, 10" % (sA, sA))
            a.e("s_add_u32 s%d, s%d, 0x%x" % (sHOFF, sA, WS_HF))
        if (A and n % 2 == 1 and n >= 3): kvdma((n + 5) // 2)
        if (not A and n % 2 == 0 and n >= 2): kvdma((n + 6) // 2)
        if 1 <= n <= 4:
            a.e("s_lshl_b32 s%d, s%d, 17" % (sB, sKQ))
            a.e("s_and_b32 s%d, s%d, 1" % (sC, sW))
            a.e("s_lshl_b32 s%d, s%d, 13" % (sC, sC))
            a.e("s_add_u32 s%d, s%d, s%d" % (sB, sB, sC))
            for j in (2 * n - 2, 2 * n - 1): wodma(j)
        for sg in {5: (27, 23, 24), 6: (25, 26, 0), 7: (1, 2)}.get(n, ()): wddma(sg)
        if n == 10:
            for r in wd_reads(vWX, vWDA, 3 * 8192): a.e(r)
        for j in ({7: (0,), 8: (1, 2), 9: (3, 4)} if A else {7: (0, 1), 8: (2, 3), 9: (4,)}).get(n, ()):
            for r in wd_reads(WOF[j], vWOA, (7 - j) * 8192): a.e(r)
        hs = {10: (0, 1, 23, 24), 11: (2, 25, 26, 27)} if A else {9: (0, 1, 23), 10: (2, 24), 11: (25, 26, 27)}
        if Opt.hlate: hs = {10: (0, 1), 11: (2,)} if A else {9: (0,), 10: (1,), 11: (2,)}
        for sg in hs.get(n, ()): hload(sg, vH + 4 * sg if sg < 4 else vHX if sg == 27 else vH + 4 * (sg - 19))
        if n == 11:
            a.e("s_add_u32 s%d, s%d, 0x%x" % (sHOFF, sHOFF, 3 * 1024))
            a.e("s_add_u32 s%d, s%d, 0x%x" % (sWDOFF, sWDOFF, wdrow(3)))
            a.e("s_add_u32 s%d, s%d, 0x%x" % (sKVOFF, sWK, 9 * 8192))
            a.e("s_mov_b32 s%d, 4" % sCNT)
            a.e("s_add_u32 s%d, s%d, 0x1000" % (sOLD2, sOLD))
            a.e("s_mov_b32 s%d, 0x%x" % (sLO_, f2u(2.0 ** -16)))
            a.e("s_mov_b32 s%d, 0x%x" % (sRNG, f2u(2.0 ** 100) - f2u(2.0 ** -16)))
        if n == 0 and pre0:
            pre0()
            a.stamp(5)
        a.e("s_waitcnt lgkmcnt(0)")
        if n == 0:
            if A: a.e("s_barrier")
            for x in Yseg(None, first=True): a.e(x)
            if not A: a.e("s_barrier")
            continue
        a.e("s_call_b64 %s, L_Y%s" % (sp(sRET), role))
        if n == 1:
            a.e("s_branch L_X1%s" % role)
            a.lab("L_Y%s" % role)
            if A: a.e("s_barrier")
            for x in Yseg(None): a.e(x)
            if not A: a.e("s_barrier")
            a.e("s_setpc_b64 %s" % sp(sRET))
            a.lab("L_X1%s" % role)
    assert not (Opt.hlate and Opt.nx)
    hl = {28: (27, 23), 29: (24, 25), 30: (26,)} if Opt.hlate else {}
    vm = list(a.vm); need = [63] * 8
    for n in range(12, 32):
        p = n % 4; q = p + (4 if n >= 28 else 0)
        tags = ["wd%d" % (n - 11), "h%d" % (n - 12)]
        if (p % 2 == 1) == A: tags.append("kv%d" % ((n + (1 if A else 2)) // 2))
        idx = [i for i, t in enumerate(vm) if t in tags]
        if idx: need[q] = min(need[q], len(vm) - 1 - max(idx))
        vm.append("wd%d" % (n - 9))
        vm.append("h%d" % (n - 9))
        if (p % 2 == 1) == A and n < 28: vm.append("kv%d" % ((n + (5 if A else 6)) // 2))
        vm += ["hx"] * len(hl.get(n, ()))
    a.lab("L_loop%s" % role)
    for q in range(8):
        p = q % 4; fin = q >= 4
        kv = (p % 2 == 1) == A and not fin
        if q == 0 and Opt.diag and Opt.kdiag == 2:
            a.e("s_cmp_lg_u32 s%d, 3" % sCNT)
            a.e("s_cbranch_scc1 L_nst%s" % role)
            astamp(a, 8)
            a.lab("L_nst%s" % role)
        a.e("s_waitcnt vmcnt(%d)" % need[q])
        for i, r in enumerate(kv_reads(p * 4096, vKVB)):
            if not (q == 7 and i == 1): a.e(r)
        if q <= 8 - Opt.nd:
            for r in wd_reads(vWF, vWDA, p * 8192): a.e(r)
        if fin and p < Opt.nx:
            for r in wd_reads(vFR + 16, vWDA, (4 + p) * 8192): a.e(r)
        if q == 7:
            for r in wd_reads(vFR, vWDA, (4 + Opt.nx) * 8192): a.e(r)
        a.e("s_add_u32 m0, s%d, 0x%x" % (sWK, L_WD + ((p + 3) % 4) * 8192))
        a.e("s_and_b32 s%d, s%d, 0x7fff" % (sA, sKVOFF))
        a.e("buffer_load_dwordx4 %s, %s, s%d offen lds" % (v(vWDV), srd(SWD), sWDOFF))
        a.e("s_add_u32 s%d, s%d, 0x%x" % (sWDOFF, sWDOFF, 0x2000 if p & 1 else 0x6000))
        a.e("buffer_load_dwordx4 %s, %s, %s, s%d offen sc1" % (v(vKF + 4 if q == 7 and Opt.nd == 2 else vH + 4 * ((p + 3) % 4), 4), v(vL16), srd(SWS), sHOFF))
        if kv: a.e("s_add_u32 m0, s%d, 0x%x" % (sA, L_KV))
        a.e("s_add_u32 s%d, s%d, 0x400" % (sHOFF, sHOFF))
        if kv:
            a.e("buffer_load_dwordx4 %s, %s, s%d offen sc1 lds" % (v(vL16), srd(SKV), sKVOFF))
            a.e("s_add_u32 s%d, s%d, 0x2000" % (sKVOFF, sKVOFF))
        for sg in (hl.get(24 + q, ()) if fin else ()):
            a.e("s_add_u32 s%d, s%d, 0x%x" % (sA, sHOFF, (sg - (16 + q)) * 1024))
            a.e("buffer_load_dwordx4 %s, %s, %s, s%d offen sc1" % (v(vHX if sg == 27 else vH + 4 * (sg - 19), 4), v(vL16), srd(SWS), sA))
        if q == 3:
            a.e("s_sub_u32 s%d, s%d, 1" % (sCNT, sCNT))
            a.e("s_cmp_lg_u32 s%d, 0" % sCNT)
        a.e("s_waitcnt lgkmcnt(0)")
        if A: a.e("s_barrier")
        for x in Yseg(p if q < 8 - Opt.nd else None, toggle=(q == 3), extra=(fin and p < Opt.nx), last=(q == 7)): a.e(x)
        if not A and q < 7: a.e("s_barrier")
        if q == 3: a.e("s_cbranch_scc1 L_loop%s" % role)
    a.e("s_nop 1")

def transition(a, role):
    A = role == "A"
    if A:
        a.vm = []
        a.lab("L_trA")
    else:
        a.lab("L_join")
        a.e("s_cmp_eq_u32 s%d, 0" % sHI)
        a.e("s_cbranch_scc1 L_trA")
        a.vmjoin = list(a.vm)
    def qfin():
        for i in range(4): a.e("v_cvt_pk_bf16_f32 %s, %s, %s" % (v(vQ + i), v(vAQ + 2 * i), v(vAQ + 2 * i + 1)))
        a.e("v_add_u32 %s, 0x%x, %s" % (v(vWOA), L_WO, v(vWDA)))
        a.e("v_permlane16_swap_b32 %s, %s" % (v(vQ), v(vQ + 2)))
        a.e("v_permlane16_swap_b32 %s, %s" % (v(vQ + 1), v(vQ + 3)))
    pre0 = None
    if A:
        a.e("s_setprio 1")
        a.e("s_cmp_ge_u32 s%d, 14" % sM)
        a.e("s_cbranch_scc1 L_nogA0")
        put(a, a.kvA[:1] + a.kvA[-1:])
        a.l.append(".p2align 3")
        for ti in range(Opt.gsc): gelu_tile(a, ti, True)
        a.lab("L_nogA0")
        qfin()
        a.waitvm(["k0", "kv0", "kv1"])
        a.e("s_setprio 0")
        a.e(mfma(vS, vK0, vQ, None))
        a.e("s_barrier")
        put(a, a.kvA[1:-1])
        def pre0():
            a.e("s_cmp_lt_u32 s%d, 14" % sM)
            a.e("s_cbranch_scc1 L_gA1")
            a.e("s_waitcnt vmcnt(0)")
            a.e("s_branch L_nogA1")
            a.l.append(".p2align 3")
            a.lab("L_gA1")
            for ti in range(Opt.gsc, 4): gelu_tile(a, ti)
            a.lab("L_nogA1")
            a.e("s_setprio 2")
    else:
        a.waitvm(["k0", "kv0", "kv1"])
        a.e("s_setprio 1")
        if Opt.hpub == 3:
            a.e("s_cmp_ge_u32 s%d, 14" % sM)
            a.l.append(".p2align 3")
            a.e("s_barrier")
            a.e("s_cbranch_scc1 L_nogB")
        else:
            a.e("s_barrier")
            for u in (2, 3):
                a.vmop("s_add_u32 m0, s%d, 0x%x\ns_add_u32 s%d, s%d, 0x%x\nbuffer_load_dwordx4 %s, %s, s%d offen sc1 lds"
                       % (sWK, L_KV + u * 8192, sA, sWK, u * 8192, v(vL16), srd(SKV), sA), "kv%d" % u)
            a.e("s_cmp_lt_u32 s%d, 14" % sM)
            a.e("s_cbranch_scc1 L_gB")
            a.e("s_waitcnt vmcnt(0)")
            a.e("s_branch L_nogB")
            a.l.append(".p2align 3")
            a.lab("L_gB")
        for ti in range(4): gelu_tile(a, ti)
        a.lab("L_nogB")
        qfin()
        a.e("s_nop 1")
        a.e(mfma(vS, vK0, vQ, None))
        a.stamp(5)
    attention(a, role, pre0)
    if A:
        a.stamp(6); astamp(a, 9); tstamp(a, 2)
        if Opt.diag and Opt.kdiag == 2: a.e("s_waitcnt lgkmcnt(0)")
        a.e(smfmac(vO, vV1L, vS + 24))
        a.e("s_setprio 0")
        a.e("s_cmp_eq_u32 s%d, 0" % sHI)
        a.e("s_nop 9")
        normalise(a, False)
        a.lab("L_fbretA")
        a.e("buffer_store_dwordx4 %s, %s, %s, s%d offen sc1" % (v(vPK, 4), v(vL16), srd(SWS), sOST))
        tstamp(a, 3)
        a.e("s_waitcnt vmcnt(1)")
        tstamp(a, 4)
        a.e("s_barrier")
        a.fetch(a, False)
        a.e("s_branch L_tl2")

def normalise(a, packed):
    t = vT0
    a.e("v_rcp_f32 %s, %s" % (v(t + 2), v(vO + 8)))
    a.e("s_nop 0")
    a.e("v_mul_f32_e64 %s, %s, %s" % (v(t + 2), v(t + 2), v(vGP)))
    if packed:
        for i in range(4): a.e("v_pk_mul_f32 %s, %s, %s op_sel_hi:[1,0]" % (v(vO + 2 * i, 2), v(vO + 2 * i, 2), v(t + 2, 2)))
        for i in range(4):
            a.e("v_pk_fma_f32 %s, %s, 0, %s op_sel_hi:[1,0,%d]" % (v(t, 2), v(vO + 2 * i, 2), v(t, 2) if i else v(vO + 8, 2), 1 if i else 0))
            a.e("v_cvt_pk_bf16_f32 %s, %s, %s" % (v(vPK + i), v(vO + 2 * i), v(vO + 2 * i + 1)))
        a.e("v_fmac_f32 %s, 0, %s" % (v(t), v(t + 1)))
    else:
        t = vO + 8
        for i in range(8): a.e("v_mul_f32 %s, %s, %s" % (v(vO + i), v(vT0 + 2), v(vO + i)))
        for i in range(4):
            a.e("v_fmac_f32 %s, 0, %s" % (v(t), v(vO + 2 * i)))
            a.e("v_cvt_pk_bf16_f32 %s, %s, %s" % (v(vPK + i), v(vO + 2 * i), v(vO + 2 * i + 1)))
            a.e("v_fmac_f32 %s, 0, %s" % (v(t), v(vO + 2 * i + 1)))
    a.e("v_subrev_u32 %s, s%d, %s" % (v(t), sLO_, v(t)))
    a.e("v_cmp_lt_u32 vcc, s%d, %s" % (sRNG, v(t)))
    a.e("s_branch L_fb" if Opt.force_fb else "s_cbranch_vccnz L_fb")

def tail(a):
    a.lab("L_tail")
    a.stamp(6)
    astamp(a, 9)
    if Opt.diag and Opt.kdiag == 2: a.e("s_waitcnt lgkmcnt(0)")
    tstamp(a, 2)
    a.e(smfmac(vO, vV1L, vS + 24))
    wf = [vFR, vFR + 8, vFR + 16]
    HORD = hord()
    def oload(j):
        return "buffer_load_dwordx4 %s, %s, %s, s%d offen offset:%d %s" % (
            v(vS + 4 * j, 4), v(vL16), srd(SWS), sOLD if HORD[j] < 4 else sOLD2, (HORD[j] % 4) * 1024, Opt.old_pol)
    a.oload = oload
    a.e("s_cmp_eq_u32 s%d, 0" % sHI)
    a.e("s_nop 10")
    a.l.append(".p2align 3")
    normalise(a, True)
    a.lab("L_fbret")
    a.e("buffer_store_dwordx4 %s, %s, %s, s%d offen sc1" % (v(vPK, 4), v(vL16), srd(SWS), sOST))
    tstamp(a, 3)
    aw = [vAW0, vWOA + 1, vWOA + 2, vWOA + 3]
    ar = [vAR0, vFLA]
    wo = WOF
    def fetch(o, scale):
        for j in range(8):
            o.e(oload(j))
            if j >= 5:
                for r in wd_reads(wo[j], vWOA, (7 - j) * 8192): o.e(r)
            if scale and j >= 4:
                for i in range(4 * j - 16, 4 * j - 12): o.e("v_mul_f32 %s, %s, %s" % (v(vD + i), v(vGC), v(vD + i)))
    def addrs(a):
        a.e("v_sub_f32 %s, 1.0, %s" % (v(vGC), v(vGC)))
        for j in range(1, 4): a.e("v_xor_b32 %s, %d, %s" % (v(aw[j]), 32 * j, v(aw[0])))
        a.e("v_xor_b32 %s, 16, %s" % (v(ar[1]), v(ar[0])))
        a.e("s_mov_b32 s%d, 0x2000" % sB)
    ol = Asm(); a.ool2 = ol.l
    a.e("s_waitcnt vmcnt(1)")
    tstamp(a, 4)
    a.e("s_barrier")
    a.lab("L_tl2")
    tstamp(a, 5)
    a.fetch = fetch
    fl = collect(addrs)
    slot = [4, 5, 6, 7, 0, 1, 2][Opt.nx:] + ([3] if Opt.nd == 2 else [])
    hreg = lambda sl: vKF + 4 if sl == 2 and Opt.nd == 2 else vH + 4 * sl
    inreg = [(vWX, vHX)] + ([(vWF, vH + 4 * (4 - Opt.nd))] if Opt.nd else [])
    rds = sum((wd_reads(wf[i % 3], vWDA, slot[i] * 8192) for i in range(len(slot))), [])
    done = 4
    for i in range(-len(inreg), len(slot)):
        for c in range(2):
            if i >= 1: a.e("s_waitcnt lgkmcnt(%d)" % (done - (4 * i + 2 * c + 2)))
            a.e(mfma(vD + 16 * c, inreg[i][0] + 4 * c, inreg[i][1], vD + 16 * c) if i < 0 else
                mfma(vD + 16 * c, wf[i % 3] + 4 * c, hreg(slot[i]), vD + 16 * c))
            if i < -1: continue
            if done < len(rds):
                for r in rds[done:done + 2]: a.e(r)
                done += 2
            else:
                put(a, fl[:2]); fl = fl[2:]
    assert not fl
    tstamp(a, 6)
    a.e("s_cbranch_scc0 L_tl3")
    a.l.append(".p2align 3")
    a.e("s_nop 7")
    a.e("s_nop 0")
    for i in range(16): a.e("v_pk_mul_f32 %s, %s, %s op_sel:[0,1] op_sel_hi:[1,1]" % (v(vD + 2 * i, 2), v(vD + 2 * i, 2), v(vGP, 2)))
    tstamp(a, 7)
    a.lab("L_tl4")
    tstamp(a, 8)
    ol.lab("L_tl3")
    ol.e("s_setprio 0")
    fetch(ol, False)
    tstamp(ol, 7)
    for i in range(32): ol.e("v_mul_f32 %s, %s, %s" % (v(vD + i), v(vGC), v(vD + i)))
    ol.e("s_waitcnt lgkmcnt(0)")
    def check(j):
        o = vS + 4 * j
        return ["s_waitcnt vmcnt(%d)" % (7 - j), "v_max3_u32 v2, %s, %s, %s" % (v(o), v(o + 1), v(o + 2)),
                "v_max_u32 v2, v2, %s" % v(o + 3), "v_cmp_eq_u32 vcc, -1, v2"]
    for j in range(Opt.bpre):
        for x in check(j): ol.e(x)
        ol.e("s_cbranch_vccnz L_bp%d" % j)
    ol.e("s_branch L_tl4")
    if Opt.bpre:
        for j in range(8):
            if j < Opt.bpre: ol.lab("L_bp%d" % j)
            ol.e(oload(j))
        ol.e("s_branch L_tl4")
    a.stamp(7)
    def check(j):
        o = vS + 4 * j
        return ["s_waitcnt vmcnt(%d)" % (7 - j), "v_max3_u32 v2, %s, %s, %s" % (v(o), v(o + 1), v(o + 2)),
                "v_max_u32 v2, v2, %s" % v(o + 3), "v_cmp_eq_u32 vcc, -1, v2"]
    a.check = check
    for x in check(0): a.e(x)
    for j in range(10):
        if j < 8:
            a.e("s_cbranch_vccnz L_ore%d" % j)
            a.lab("L_ook%d" % j)
            a.e(mfma(vD, wo[j], vS + 4 * j, vD))
        if j >= 2 and Opt.cfirst: a.e(mfma(vD + 16, wo[j - 2] + 4, vS + 4 * (j - 2), vD + 16))
        if j < 7:
            for x in check(j + 1): a.e(x)
        if j >= 2 and not Opt.cfirst: a.e(mfma(vD + 16, wo[j - 2] + 4, vS + 4 * (j - 2), vD + 16))
        if j in (7, 8): a.e("s_nop 4")
    wr = lambda c, j: "ds_write_b128 %s, %s offset:%d" % (v(aw[j]), v(vD + 16 * c + 4 * j, 4), 128 * c)
    a.stamp(8)
    tstamp(a, 9)
    for j in range(4): a.e(wr(0, j))
    a.e("s_nop 7")
    for j in range(4): a.e(wr(1, j))
    a.e("s_waitcnt lgkmcnt(0)")
    a.e("s_barrier")
    for p in range(4):
        for h in range(2): a.e(rd128(vS + 8 * p + 4 * h, ar[h], p * 8192))
    for p in range(1, 4):
        a.e("s_waitcnt lgkmcnt(%d)" % (6 - 2 * p))
        for i in range(4): a.e("v_pk_add_f32 %s, %s, %s" % (v(vS + 2 * i, 2), v(vS + 2 * i, 2), v(vS + 8 * p + 2 * i, 2)))
    for i in range(4): a.e("v_cvt_pk_bf16_f32 %s, %s, %s" % (v(vP + i), v(vS + 2 * i), v(vS + 2 * i + 1)))
    a.e("buffer_store_dwordx4 %s, %s, %s, s%d offen %s" % (v(vP, 4), v(vOUTA), srd(SOUT), sOUTO, Opt.out_pol))
    if Opt.probe >= 0:
        a.e("s_waitcnt vmcnt(0)")
        a.stamp(9)
        if Opt.probe != 9:
            a.e("s_cmp_ge_u32 s%d, 14" % sM)
            a.e("s_cbranch_scc%d L_end" % (0 if Opt.probe_l else 1))
        a.e("s_sub_u32 s%d, s%d, s%d" % (sA, sSTAMP + 4, sSTAMP))
        a.e("s_mul_i32 s%d, s%d, %d" % (sA, sA, Opt.probe_mul - 1))
        if Opt.pcyc >= 0:
            a.e("s_sub_u32 s%d, s%d, s%d" % (sA, sSTAMP + 8, sSTAMP + 6))
            if Opt.prt: a.e("s_mul_i32 s%d, s%d, 10" % (sA, sA))
            a.e("s_mov_b32 s%d, s%d" % (sSTAMP + 4, sSTAMP))
        a.e("s_min_u32 s%d, s%d, 100000" % (sA, sA))
        a.e("s_add_u32 s%d, s%d, 3800" % (sA, sA))
        if Opt.probe_r >= 0:
            a.e("s_cmp_eq_u32 s%d, 0x2000" % sB)
            a.e("s_cbranch_scc%d L_end" % Opt.probe_r)
        if Opt.probe_w >= 0:
            a.e("s_cmp_lg_u32 s%d, %d" % (sHI, Opt.probe_w))
            a.e("s_cbranch_scc1 L_end")
        if Opt.probe_x >= 0:
            a.e("s_and_b32 s0, s2, 7")
            a.e("s_cmp_lg_u32 s0, %d" % Opt.probe_x)
            a.e("s_cbranch_scc1 L_end")
        a.lab("L_probe")
        a.e("s_memrealtime s[0:1]")
        a.e("s_waitcnt lgkmcnt(0)")
        a.e("s_sub_u32 s0, s0, s%d" % (sSTAMP + 4))
        a.e("s_cmp_lt_u32 s0, s%d" % sA)
        a.e("s_cbranch_scc1 L_probe")
    if Opt.pin == 9:
        a.e("s_waitcnt vmcnt(0)")
        a.stamp(9)
    if Opt.diag in (1, 2):
        a.e("s_waitcnt vmcnt(0)")
        a.stamp(9)
        a.e("s_mov_b32 s%d, s%d" % (sSTAMP + 3, sSTAMP))
        a.e("s_mov_b32 s%d, s%d" % (sSTAMP, sB))
        a.e("s_getreg_b32 s%d, hwreg(HW_REG_XCC_ID)" % (sSTAMP + 1))
        for i in range(20): a.e("v_mov_b32 %s, s%d" % (v(vS + i), sSTAMP + i))
        a.e("s_lshl_b32 s%d, s2, 3" % sA)
        a.e("s_add_u32 s%d, s%d, s%d" % (sA, sA, sW))
        a.e("s_lshl_b32 s%d, s%d, 7" % (sA, sA))
        a.e("s_add_u32 s%d, s%d, 0x%x" % (sA, sA, WS_STAMP))
        a.e("s_mov_b64 exec, 1")
        for i in range(5): a.e("buffer_store_dwordx4 %s, off, %s, s%d offset:%d" % (v(vS + 4 * i, 4), srd(SWS), sA, 16 * i))
    a.lab("L_end")
    a.e("s_endpgm")
    a.l += a.ool2
    for j in range(8):
        a.lab("L_ore%d" % j)
        a.e("s_sub_u32 s%d, s%d, 1" % (sB, sB))
        a.e("s_cbranch_scc1 L_ogive%d" % j)
        if Opt.rwait: a.e("s_waitcnt vmcnt(0)")
        if Opt.rwait > 1: a.e("s_sleep %d" % Opt.rwait)
        for i in range(j, 8): a.e(a.oload(i))
        for x in a.check(j): a.e(x)
        a.e("s_cbranch_vccnz L_ore%d" % j)
        a.e("s_branch L_ook%d" % j)
        a.lab("L_ogive%d" % j)
        a.e("s_mov_b32 s%d, 0" % sB)
        a.e("s_branch L_ook%d" % j)

def fallback(a):
    a.lab("L_fb")
    m = vT0
    a.e("v_mov_b32 %s, 0xff800000" % v(m))
    a.e("s_mov_b32 s%d, 0" % sA)
    a.lab("L_fb1")
    a.e("buffer_load_dwordx4 %s, %s, %s, s%d offen sc1" % (v(vKF, 4), v(vL16), srd(SKV), sA))
    a.e("s_waitcnt vmcnt(0)")
    a.e(mfma(vS, vKF, vQ, None))
    a.e("s_add_u32 s%d, s%d, 2048" % (sA, sA))
    a.e("s_nop 11")
    for i in range(8): a.e("v_max3_f32 %s, %s, %s, %s" % (v(m), v(m), v(vS + 2 * i), v(vS + 2 * i + 1)))
    a.e("s_cmp_lt_u32 s%d, 0x20000" % sA)
    a.e("s_cbranch_scc1 L_fb1")
    a.e("v_mov_b32 %s, %s" % (v(m + 1), v(m)))
    a.e("s_nop 1")
    a.e("v_permlane32_swap_b32 %s, %s" % (v(m), v(m + 1)))
    a.e("s_nop 1")
    a.e("v_max_f32 %s, %s, %s" % (v(m), v(m), v(m + 1)))
    for i in range(16): a.e("v_sub_f32 %s, 0, %s" % (v(vS + 16 + i), v(m)))
    for i in range(16): a.e("v_mov_b32 %s, 0" % v(vO + i))
    a.e("s_mov_b32 s%d, 0" % sA)
    a.lab("L_fb2")
    a.e("s_add_u32 s%d, s%d, 0x%x" % (sB, sA, 63 * 2048))
    a.e("s_and_b32 s%d, s%d, 0x1ffff" % (sB, sB))
    a.e("buffer_load_dwordx4 %s, %s, %s, s%d offen sc1" % (v(vKF, 4), v(vL16), srd(SKV), sB))
    a.e("s_add_u32 s%d, s%d, 2048" % (sB, sA))
    a.e("s_and_b32 s%d, s%d, 0x1ffff" % (sB, sB))
    a.e("s_mov_b64 exec, %s" % sp(sVM))
    a.e("buffer_load_dwordx4 %s, %s, %s, s%d offen offset:1024 sc1" % (v(vV, 4), v(vL16), srd(SKV), sA))
    a.e("buffer_load_dwordx4 %s, %s, %s, s%d offen offset:1280 sc1" % (v(vV + 4, 4), v(vL16), srd(SKV), sB))
    a.e("s_mov_b64 exec, -1")
    a.e("s_waitcnt vmcnt(0)")
    a.e(mfma(vS, vKF, vQ, vS + 16))
    a.e("s_add_u32 s%d, s%d, 2048" % (sA, sA))
    a.e("s_nop 11")
    for i in range(16): a.e("v_exp_f32 %s, %s" % (v(vS + i), v(vS + i)))
    a.e("s_nop 2")
    a.e(smfmac(vO, vV, vS))
    a.e(smfmac(vO, vV + 4, vS + 8))
    a.e("s_cmp_lt_u32 s%d, 0x20000" % sA)
    a.e("s_cbranch_scc1 L_fb2")
    a.e("s_nop 11")
    a.e("v_rcp_f32 %s, %s" % (v(vT0 + 2), v(vO + 8)))
    a.e("s_cmp_eq_u32 s%d, 0" % sHI)
    a.e("v_mul_f32 %s, %s, %s" % (v(vT0 + 2), v(vT0 + 2), v(vGP)))
    for i in range(8): a.e("v_mul_f32 %s, %s, %s" % (v(vO + i), v(vT0 + 2), v(vO + i)))
    for i in range(4): a.e("v_cvt_pk_bf16_f32 %s, %s, %s" % (v(vPK + i), v(vO + 2 * i), v(vO + 2 * i + 1)))
    for i in range(4): a.e("v_min_u32 %s, -2, %s" % (v(vPK + i), v(vPK + i)))
    a.e("s_cbranch_scc1 L_fbretA")
    a.e("s_branch L_fbret")

def build():
    a = Asm()
    prologue(a)
    phase1_F(a)
    transition(a, "B")
    tail(a)
    a.l += a.ool
    transition(a, "A")
    phase1_L(a)
    fallback(a)
    a.lab("L_codeend")
    for i, x in enumerate(a.l):
        if " sc1" in x and "sc0" not in x and ((Opt.allsc & 1 and "buffer_store" in x) or (Opt.allsc & 2 and "buffer_load" in x)):
            a.l[i] = x.replace(" sc1", " sc0 sc1")
    il = a.l.index("L_light:")
    for i, x in enumerate(a.l):
        if x.endswith(" lds") and "sc1" not in x and " nt" not in x:
            if (Opt.ntx & 4 and (srd(SWD) in x or srd(SWO) in x)) or (Opt.ntx & 8 and i > il):
                a.l[i] = x[:-4] + " nt lds"
    head = open("cdna_kernels/%s.s.ref" % NAME).read().split("\n")
    hdr = [l for l in head if l.startswith(";") and "@launch" not in l and "Override" not in l and "grid=" not in l]
    out = hdr + ["; @launch grid=(256,1,1) block=(512,1,1) lds=%d" % LDS_BYTES,
                 '.amdgcn_target "amdgcn-amd-amdhsa--gfx950"', ".text", ".globl %s_kernel" % NAME, ".p2align 8",
                 ".type %s_kernel,@function" % NAME,
                 ".set CODE_PF_MAX, L_codeend - L_nopf - 4" if Opt.code_pf else "",
                 "%s_kernel:" % NAME]
    if Opt.diag: out += ["; mapmode %d" % (1 + 3 * bool(Opt.oddl))]
    out += ["; " + x for x in """One persistent launch, one workgroup per CU (generated by a script), 8 waves = two quartets that alternate on each SIMD.
Stage 1: 14 of every 16 workgroups compute gelu(x Wg) * (x Wu) for 128 tokens x 128 columns plus Q for two heads;
         the other two compute K, V and the mixing gate, publish them (counter in d_debug) and then their own Q.
Stage 2: attention for 128 tokens x 2 heads over all keys, S^T = K Q^T, exp2 in place, P V through sparse MFMAs that
         read the high halves of the fp32 probabilities; a row of ones in the V operand gives the row sums.
         The stand-in maximum is 0: it is accepted only if the row sum lies in [2^-16, 2^100] and every accumulator is
         finite, otherwise the wave redoes its rows with the true maximum (L_fb).
         The down projection of a 64 x 64 output tile runs in the same loop once the producers' flags are seen.
Stage 3: attention outputs are handed over through d_ws (cleared to a mark earlier in this launch), projected,
         mixed with the FFN branch, reduced through LDS and stored.""".split("\n")]
    out += a.l
    out += ['.section .rodata,"a"', ".p2align 6", ".amdhsa_kernel %s_kernel" % NAME,
            "  .amdhsa_next_free_vgpr %d" % NV, "  .amdhsa_next_free_sgpr 102", "  .amdhsa_accum_offset 256",
            "  .amdhsa_group_segment_fixed_size 0", "  .amdhsa_kernarg_size 104", "  .amdhsa_user_sgpr_count 2",
            "  .amdhsa_user_sgpr_kernarg_segment_ptr 1", "  .amdhsa_system_sgpr_workgroup_id_x 1", ".end_amdhsa_kernel", ""]
    return "\n".join(out)

if __name__ == "__main__":
    path = sys.argv[1]
    for kv in sys.argv[2:]:
        k, val = kv.split("=")
        cur = getattr(Opt, k)
        setattr(Opt, k, val if isinstance(cur, str) else type(cur)(int(val)))
    open(path, "w").write(build())
```

```python
import sys, struct, math

NAME = "gated_mix__grouped_kv_mqa__geglu_ffn__prompt"

class Opt:
    diag = 0
    mapmode = 1
    force_fb = False
    allsc = 0
    out_pol = "sc0 sc1"
    code_pf = True
    xrot = 0
    pregap = 0
    xodd = 43
    xeven = 32
    hsl = 2
    lthr = 0
    klate = 0
    bpre = 0
    oddl = 1
    hlate = 1
    hpub = 3
    rwait = 1
    aearly = 0
    bidle = 1
    old_pol = "sc1"
    ypos0 = "36g"
    ypos1 = "36bg"
    ypos2 = "36cg9"
    nd = 1
    nx = 0
    tpos = 1
    cfirst = 0
    tch = 12
    stch = 0
    spos = 1
    tlb = 6
    olate = 1
    hrot = 0
    tbar = 0
    hord = 1
    cmap = 1
    kqx = 2
    oearly = 8
    conc = 1
    ghx = 1
    qa = "077777"
    qb = "588888"
    npre = 8
    stagger = 1
    rper = 2
    dma1 = 17
    kprio = 0
    dma0 = 8
    npd = 4
    kdiag = 0
    fillpre = 0
    fillper = 5
    gsc = 2
    sched = 0
    xmask = 1
    ntx = 0
    touch = 2
    rotg = 0
    rotm = 0
    startbar = 1
    pvz = 1
    pin = -1
    pin_ns = 60000
    probe = -1
    probe_x = -1
    probe_mul = 10
    probe_w = -1
    probe_r = -1
    pcyc = -1
    prt = 0
    probe_l = 0

def f2u(x): return struct.unpack("<I", struct.pack("<f", x))[0]

WS_KV = 0
WS_G = 128 * 1024
WS_HFLAG = 192 * 1024
WS_OF = 1 << 20
WS_HF = 4 << 20
WS_STAMP = 12 << 20
WS_SIZE = 16 << 20
K1 = 1024
L_G, L_U, L_X, L_WQ = 0, 48 * K1, 96 * K1, 144 * K1
L_QX = 32 * K1
L_WD, L_WO, L_KV = 0, 64 * K1, 128 * K1
L_RED = 96 * K1
LL_X, LL_W, LL_GATE, LL_WQ = 0, 128 * K1, 144 * K1, 128 * K1
LDS_BYTES = 160 * K1

SX, SWG, SWU, SWQ, SWS, SWD, SWO, SOUT, SDBG, SWKV, SGATE, SKV = 4, 8, 12, 16, 20, 24, 28, 32, 36, 40, 44, 64
SWV = 72
sTMPP = 48
sW, sHI, sLO, sG, sM, sT, sCB = 50, 51, 52, 53, 54, 55, 56
sWK = 57
sWH = 58
sVM = 60
sRET = 62
sA, sB, sC, sD = 68, 69, 70, 71
sOFFW, sOFFQ, sCH, sXP = 72, 73, 74, 75
sHOFF, sWDOFF, sKVOFF, sHXO, sCNT = 72, 73, 74, 75, 77
sOUTO, sLO_, sRNG = 59, 81, 75
sOLD2 = 58
sOST, sOLD, sHST = 78, 79, 80
sHST2 = 3
sRX, sRW, sM0B = 40, 41, 42
sKQ = 76
sHP = 81
sSTAMP = 82

def srd(b): return "s[%d:%d]" % (b, b + 3)
def sp(b): return "s[%d:%d]" % (b, b + 1)
def v(b, n=1): return "v%d" % b if n == 1 else "v[%d:%d]" % (b, b + n - 1)

vL16 = 1
vT0, vT1, vT2, vT3 = 2, 3, 4, 5
vGP, vGC = 6, 7
vKVA = 8
vWDA = 9
vWDV = 10
vONE = 11
vZERO = 12
vFLA = 13
vPOLL = 14
vGA = 15
vQ = 16
vK0 = 20
vV1L = 24
vIDX = 28
vAW0, vAR0, vOUTA = 30, 31, 12
vKVB = 29
vP = 32
vV = 40
vO = 56
vD = 72
vACC = 104
vS = 104
vH = 136
vAQ = vP
vF1 = 168
vKF = 168
vWF = 176
vWX = 224
vHX = 232
vPK = 20
WOF = [32, 208, 216, 240, 248, 40, 48, 56]
vWOA = 236
vFR = 184
vLX = 224
vXA = 240
vWA = 244
vQA = 248
vDX, vDG, vDQ = 249, 250, 251
vC0 = 252
vTID = 255
vHA = 254
NV = 256

class Asm:
    def __init__(self):
        self.l = []
        self.vm = []
        self.nstamp = 0
    def e(self, s):
        for x in s.split("\n"):
            x = x.strip()
            if x: self.l.append("    " + x)
    def lab(self, s): self.l.append(s + ":")
    def vmop(self, s, tag):
        self.e(s); self.vm.append(tag)
    def vmn(self, tags):
        if isinstance(tags, str): tags = [tags]
        last = -1
        for i, t in enumerate(self.vm):
            if t in tags: last = i
        return None if last < 0 else len(self.vm) - 1 - last
    def waitvm(self, tags, lgkm=False):
        n = self.vmn(tags)
        if n is None:
            if lgkm: self.e("s_waitcnt lgkmcnt(0)")
            return
        assert n < 64
        self.e("s_waitcnt vmcnt(%d)%s" % (n, " lgkmcnt(0)" if lgkm else ""))
        self.vm = self.vm[len(self.vm) - n:] if n else []
    def wait0(self, lgkm=False):
        self.e("s_waitcnt vmcnt(0)%s" % (" lgkmcnt(0)" if lgkm else "")); self.vm = []
    def stamp(self, i, real=False):
        if Opt.probe == i:
            self.e("s_waitcnt lgkmcnt(0)")
            self.e("s_memrealtime %s" % sp(sSTAMP + 4))
            if Opt.pcyc >= 0: self.e("%s %s" % ("s_memrealtime" if Opt.prt else "s_memtime", sp(sSTAMP + 8)))
            self.e("s_waitcnt lgkmcnt(0)")
        if Opt.pin == i:
            self.nstamp += 1
            self.e("s_waitcnt lgkmcnt(0)")
            self.e("s_cselect_b32 s%d, 1, 0" % (sSTAMP + 5))
            self.lab("L_pin%d" % self.nstamp)
            self.e("s_memrealtime s[0:1]")
            self.e("s_waitcnt lgkmcnt(0)")
            self.e("s_sub_u32 s0, s0, s%d" % sSTAMP)
            self.e("s_cmp_lt_u32 s0, %d" % (Opt.pin_ns // 10))
            self.e("s_cbranch_scc1 L_pin%d" % self.nstamp)
            self.e("s_cmp_lg_u32 s%d, 0" % (sSTAMP + 5))
        if Opt.diag and not Opt.kdiag and (Opt.diag == 1 or i == 9):
            self.e("s_waitcnt lgkmcnt(0)")
            self.e("s_memtime %s" % sp(sSTAMP + 2 * i))
            self.e("s_memrealtime %s" % sp(sRET))
            self.e("s_waitcnt lgkmcnt(0)")
            self.e("s_mov_b32 s%d, s%d" % (sSTAMP + 2 * i + 1, sRET))

def astamp(a, i):
    if Opt.diag and Opt.kdiag == 2: a.e("s_memtime %s" % sp(sSTAMP + 2 * i))

def tstamp(a, i):
    if Opt.diag and Opt.kdiag == 3: a.e("s_memtime %s" % sp(sSTAMP + 2 * i))

def kstamp(a, i):
    if Opt.probe == 18 + i: a.e("s_memrealtime %s" % sp(sSTAMP + 4))
    if Opt.diag and Opt.kdiag == 1: a.e("s_memtime %s" % sp(sSTAMP + 2 * i))

def mfma(d, a, b, c):
    return "v_mfma_f32_32x32x16_bf16 %s, %s, %s, %s" % (v(d, 16), v(a, 4), v(b, 4), "0" if c is None else v(c, 16))
def smfmac(d, a, b):
    return "v_smfmac_f32_32x32x32_bf16 %s, %s, %s, %s" % (v(d, 16), v(a, 4), v(b, 8), v(vIDX))
def mfma16(d, a, b, c):
    return "v_mfma_f32_16x16x32_bf16 %s, %s, %s, %s" % (v(d, 4), v(a, 4), v(b, 4), "0" if c is None else v(c, 4))
def rd128(d, a, off):
    assert 0 <= off < 65536
    return "ds_read_b128 %s, %s offset:%d" % (v(d, 4), v(a), off)
def rdtr(d, a, off):
    assert 0 <= off < 65536
    return "ds_read_b64_tr_b16 %s, %s offset:%d" % (v(d, 2), v(a), off)

def interleave(mf, fill, per=2):
    out = []
    fill = list(fill)
    for i, m in enumerate(mf):
        out.append(m)
        if i < len(mf) - 1:
            out += fill[:per]; fill = fill[per:]
    return out + fill

def srd_words(a, regs):
    sizes = {SX: 2048 * 1024, SWG: 512 * 3584, SWU: 512 * 3584, SWQ: 512 * 1024, SWS: WS_SIZE, SWKV: 16384, SWV: 16384,
             SGATE: 1024, SWD: 1792 * 1024, SWO: 512 * 1024, SOUT: 2048 * 1024, SDBG: 256, SKV: 128 * 1024}
    for reg in regs:
        a.e("s_mov_b32 s%d, 0x%x" % (reg + 2, sizes[reg]))
        a.e("s_mov_b32 s%d, 0x20000" % (reg + 3))

def ptr_loads(a, lst):
    for reg, off in lst: a.e("s_load_dwordx2 %s, s[0:1], %d" % (sp(reg), off))

def prologue(a):
    if Opt.diag or Opt.pin >= 0 or Opt.probe >= 0:
        a.e("s_memrealtime %s" % sp(sSTAMP))
        if Opt.diag in (1, 2): a.e("s_memtime %s" % sp(sSTAMP + 2))
    ptr_loads(a, ((SX, 0), (SWG, 48), (SWU, 56), (SWQ, 8)))
    if Opt.probe == 1: a.stamp(1)
    a.e("v_lshrrev_b32 v2, 6, v0")
    if Opt.code_pf:
        a.e("s_getpc_b64 %s" % sp(sRET))
        a.lab("L_nopf")
        a.e("s_and_b32 s%d, s2, -8" % sA)
        a.e("v_add_lshl_u32 v4, v2, s%d, 7" % sA)
        a.e("v_mov_b32 v5, 0")
        a.e("v_min_u32 v4, CODE_PF_MAX, v4")
        a.e("v_lshl_add_u64 v[4:5], v[4:5], 0, %s" % sp(sRET))
        a.e("global_load_dword %s, v[4:5], off" % v(vPOLL))
    if not Opt.klate: a.e("s_load_dwordx8 s[%d:%d], s[0:1], 64" % (SOUT, SOUT + 7))
    a.e("v_readfirstlane_b32 s%d, v2" % sW)
    if not Opt.klate: ptr_loads(a, ((SWS, 96),) if Opt.diag or Opt.probe >= 0 else ((SWS, 96), (SWO, 32)))
    a.e("s_cmpk_ge_u32 s2, 256")
    a.e("s_cbranch_scc1 L_end")
    if Opt.oddl:
        a.e("s_bfe_u32 s%d, s2, 0x10002" % sD)
        a.e("s_bfe_u32 s%d, s2, 0x30003" % sA)
        a.e("s_lshl3_add_u32 s%d, s%d, s%d" % (sG, sD, sA))
        a.e("s_and_b32 s%d, s2, 3" % sA)
        if Opt.oddl == 2: a.e("s_xor_b32 s%d, s%d, 1" % (sA, sA))
        a.e("s_lshr_b32 s%d, s2, 6" % sB)
        a.e("s_lshl2_add_u32 s%d, s%d, s%d" % (sHP, sA, sB))
        a.e("s_lshr_b32 s%d, s%d, 3" % (sB, sHP))
        a.e("s_sub_u32 s%d, s%d, s%d" % (sM, sHP, sB))
        a.e("s_lshl_b32 s%d, s%d, 10" % (sWK, sW))
        a.e("s_andn2_b32 s%d, 7, s%d" % (sA, sHP))
        a.e("s_cbranch_scc0 L_light")
    else:
        a.e("s_and_b32 s%d, s2, 1" % sD)
        a.e("s_bfe_u32 s%d, s2, 0x30003" % sA)
        a.e("s_lshl3_add_u32 s%d, s%d, s%d" % (sG, sD, sA))
        a.e("s_bfe_u32 s%d, s2, 0x20001" % sA)
        a.e("s_lshr_b32 s%d, s2, 6" % sB)
        a.e("s_lshl2_add_u32 s%d, s%d, s%d" % (sM, sA, sB))
        a.e("s_mov_b32 s%d, s%d" % (sHP, sM))
        a.e("s_lshl_b32 s%d, s%d, 10" % (sWK, sW))
        a.e("s_cmp_ge_u32 s%d, 14" % sM)
        a.e("s_cbranch_scc1 L_light")

def xvoff(a, t):
    a.e("v_lshrrev_b32 v2, 4, %s" % v(t))
    a.e("v_xor_b32 v2, v2, %s" % v(t))
    a.e("v_and_b32 v2, 7, v2")
    a.e("s_lshl_b32 s%d, s%d, 17" % (sA, sG))
    a.e("v_lshl_add_u32 v2, v2, 4, s%d" % sA)
    a.e("v_lshrrev_b32 v3, 3, %s" % v(t))
    a.e("v_lshl_add_u32 %s, v3, 10, v2" % v(vDX))

def setup_ids(a):
    if Opt.klate:
        ptr_loads(a, ((SWS, 96), (SKV, 96), (SDBG, 88), (SWD, 64), (SWO, 32), (SOUT, 80)))
    else:
        a.e("s_mov_b64 %s, %s" % (sp(SKV), sp(SWS)))
        a.e("s_mov_b64 %s, %s" % (sp(SWD), sp(SOUT)))
        a.e("s_mov_b64 %s, %s" % (sp(SOUT), sp(SOUT + 4)))
        a.e("s_mov_b64 %s, %s" % (sp(SDBG), sp(SOUT + 6)))
    a.e("v_and_b32 v0, 63, v0")
    a.e("v_lshlrev_b32 %s, 4, v0" % v(vL16))
    if Opt.oddl:
        a.e("s_and_b32 s%d, s2, 7" % sA)
        a.e("s_xor_b32 s%d, s%d, 4" % (sA, sA))
    else:
        a.e("s_andn2_b32 s%d, 1, s2" % sA)
        a.e("s_bfe_u32 s%d, s2, 0x20001" % sB)
        a.e("s_lshl2_add_u32 s%d, s%d, s%d" % (sA, sA, sB))
    a.e("s_bfe_u32 s%d, s2, 0x20003" % sB)
    a.e("s_lshl2_add_u32 s%d, s%d, s%d" % (sT, sA, sB))
    a.e("s_lshr_b32 s%d, s2, 5" % sCB)

def setup_rd(a):
    a.e("s_lshr_b32 s%d, s%d, 2" % (sHI, sW))
    a.e("s_and_b32 s%d, s%d, 3" % (sLO, sW))
    a.e("v_and_b32 v2, 15, v0")
    a.e("v_lshrrev_b32 v3, 4, v0")
    a.e("v_bfe_u32 v4, v0, 1, 3")
    a.e("v_xor_b32 v4, v4, v3")
    a.e("v_lshlrev_b32 v4, 4, v4")
    a.e("v_lshl_add_u32 %s, v2, 7, v4" % v(vXA))
    a.e("v_bfe_u32 v2, v0, 2, 2")
    a.e("v_and_b32 v4, 3, v0")
    a.e("v_lshl_add_u32 %s, v3, 3, v2" % v(vQA))
    a.e("v_lshlrev_b32 %s, 6, %s" % (v(vQA), v(vQA)))
    a.e("v_xor_b32 v5, s%d, v3" % sHI)
    a.e("v_and_b32 v5, 1, v5")
    a.e("v_lshl_add_u32 %s, v5, 5, %s" % (v(vQA), v(vQA)))
    a.e("v_lshl_add_u32 %s, v4, 3, %s" % (v(vQA), v(vQA)))

def setup_oclr(a):
    srd_words(a, [SWS, SKV, SDBG])
    a.e("s_mov_b32 s%d, 0xffff" % sVM)
    a.e("s_mov_b32 s%d, 0xffff" % (sVM + 1))
    a.e("s_lshl_b32 s%d, s%d, 2" % (sA, sG))
    a.e("s_add_u32 s%d, s%d, s%d" % (sA, sA, sLO))
    a.e("s_lshl_b32 s%d, s%d, 5" % (sB, sA))
    a.e("s_lshl_b32 s%d, s%d, 1" % (sC, sHP))
    a.e("s_add_u32 s%d, s%d, s%d" % (sB, sB, sC))
    a.e("s_add_u32 s%d, s%d, s%d" % (sB, sB, sHI))
    a.e("s_lshl_b32 s%d, s%d, 10" % (sB, sB))
    a.e("s_add_u32 s%d, s%d, 0x%x" % (sOST, sB, WS_OF))
    for i in range(4): a.e("v_mov_b32 %s, -1" % v(vQ + i))
    a.vmop("buffer_store_dwordx4 %s, %s, %s, s%d offen sc1" % (v(vQ, 4), v(vL16), srd(SWS), sOST), "oclr")
    a.e("v_mov_b32 %s, 1" % v(vONE))
    a.e("v_mov_b32 %s, 0" % v(vZERO))
    a.e("v_and_b32 %s, 31, v0" % v(vGA))
    a.e("v_lshlrev_b32 %s, 2, %s" % (v(vGA), v(vGA)))

def collect(fn):
    t = Asm(); t.marks = {}
    def vmop(s_, tag):
        t.e(s_); t.marks[len(t.l) - 1] = tag
    t.vmop = vmop
    fn(t)
    return [(x, t.marks.get(i)) for i, x in enumerate(t.l)]
def put(a, items):
    for x, tag in items:
        if tag: a.vmop(x, tag)
        else: a.e(x)

def setup_ones(a):
    a.e("s_mov_b32 s%d, 0x110000" % sA)
    a.e("s_mov_b32 s%d, 0x110000" % sB)
    a.e("v_mov_b32 v3, 0x3f803f80")
    a.e("v_cndmask_b32 %s, 0, v3, %s" % (v(vV1L), sp(sA)))
    for i in range(1, 4): a.e("v_mov_b32 %s, %s" % (v(vV1L + i), v(vV1L)))
    for i in range(16): a.e("v_mov_b32 %s, %s" % (v(vV + i), v(vV1L)))

def setup_attn(a):
    srd_words(a, [SWD, SWO, SOUT])
    a.e("s_lshl_b32 s%d, s%d, 2" % (sA, sG))
    a.e("s_add_u32 s%d, s%d, s%d" % (sA, sA, sLO))
    a.e("s_mul_i32 s%d, s%d, 112" % (sB, sA))
    a.e("s_lshl_b32 s%d, s%d, 3" % (sC, sM))
    a.e("s_add_u32 s%d, s%d, s%d" % (sB, sB, sC))
    a.e("s_lshl_b32 s%d, s%d, 2" % (sC, sHI))
    a.e("s_add_u32 s%d, s%d, s%d" % (sB, sB, sC))
    a.e("s_and_b32 s%d, s%d, 1" % (sC, sLO))
    a.e("s_lshl_b32 s%d, s%d, 1" % (sC, sC))
    a.e("s_add_u32 s%d, s%d, s%d" % (sB, sB, sC))
    a.e("s_lshl_b32 s%d, s%d, 10" % (sB, sB))
    a.e("s_add_u32 s%d, s%d, 0x%x" % (sHST, sB, WS_HF))
    a.e("s_mul_i32 s%d, s%d, %d" % (sC, sC, 112 * 1024))
    a.e("s_sub_u32 s%d, %d, s%d" % (sC, 112 * 1024, sC))
    a.e("s_add_u32 s%d, s%d, s%d" % (sHST2, sHST, sC))
    a.e("v_bfe_u32 v2, v0, 2, 2")
    a.e("v_lshrrev_b32 v3, 5, v0")
    a.e("v_lshl_add_u32 v2, v3, 2, v2")
    a.e("v_lshlrev_b32 v2, 6, v2")
    a.e("v_bfe_u32 v3, v0, 4, 1")
    a.e("v_lshl_add_u32 v2, v3, 5, v2")
    a.e("v_and_b32 v3, 3, v0")
    a.e("v_lshl_add_u32 v2, v3, 3, v2")
    a.e("s_lshr_b32 s%d, s%d, 1" % (sA, sW))
    a.e("s_lshl_b32 s%d, s%d, 11" % (sA, sA))
    a.e("v_add_u32 %s, s%d, v2" % (v(vWDA), sA))
    a.e("v_add_u32 %s, 0x%x, %s" % (v(vKVA), L_KV, v(vL16)))
    a.e("v_add_u32 %s, 0x%x, %s" % (v(vKVB), L_KV + 0x4000, v(vL16)))
    a.e("v_bfe_u32 v2, v0, 2, 3")
    a.e("v_lshlrev_b32 v2, 10, v2")
    a.e("v_lshrrev_b32 v3, 5, v0")
    a.e("v_lshl_add_u32 v2, v3, 6, v2")
    a.e("v_and_b32 v3, 3, v0")
    a.e("v_lshl_add_u32 v2, v3, 4, v2")
    a.e("s_lshl_b32 s%d, s%d, 7" % (sB, sCB))
    a.e("v_add_u32 %s, s%d, v2" % (v(vWDV), sB))
    a.e("v_min_u32 v2, 13, v0")
    a.e("v_lshlrev_b32 v2, 7, v2")
    a.e("s_lshr_b32 s%d, s%d, 1" % (sA, sT))
    a.e("s_lshl_b32 s%d, s%d, 11" % (sA, sA))
    a.e("s_add_u32 s%d, s%d, 0x%x" % (sA, sA, WS_HFLAG))
    a.e("v_add_u32 %s, s%d, v2" % (v(vFLA), sA))
    a.e("s_lshl_b32 s%d, s%d, 1" % (sA, sT))
    a.e("s_and_b32 s%d, s%d, 1" % (sB, sW))
    a.e("s_add_u32 s%d, s%d, s%d" % (sA, sA, sB))
    a.e("s_lshl_b32 s%d, s%d, 15" % (sB, sA))
    a.e("s_lshr_b32 s%d, s%d, 1" % (sKQ, sW))
    if Opt.kqx == 2:
        a.e("s_and_b32 s%d, s%d, 2" % (sKQ, sW))
        a.e("s_add_u32 s%d, s%d, s%d" % (sKQ, sKQ, sHI))
    if Opt.kqx == 1:
        a.e("s_lshl_b32 s%d, s%d, 1" % (sC, sCB))
        a.e("s_and_b32 s%d, s%d, 2" % (sC, sC))
        a.e("s_xor_b32 s%d, s%d, s%d" % (sKQ, sKQ, sC))
    a.e("s_lshl_b32 s%d, s%d, 13" % (sC, sKQ))
    a.e("s_add_u32 s%d, s%d, s%d" % (sB, sB, sC))
    a.e("s_add_u32 s%d, s%d, 0x%x" % (sOLD, sB, WS_OF))
    a.e("v_and_b32 v2, 31, v0")
    a.e("v_lshrrev_b32 v3, 5, v0")
    a.e("v_and_b32 v4, 7, v0")
    a.e("v_xor_b32 v3, v3, v4")
    a.e("v_lshlrev_b32 v3, 4, v3")
    a.e("v_lshl_add_u32 v3, v2, 8, v3")
    a.e("s_and_b32 s%d, s%d, 1" % (sB, sW))
    a.e("s_lshl_b32 s%d, s%d, 15" % (sB, sB))
    a.e("s_lshr_b32 s%d, s%d, 1" % (sC, sW))
    a.e("s_lshl_b32 s%d, s%d, 13" % (sD, sC))
    a.e("s_add_u32 s%d, s%d, s%d" % (sOUTO, sD, sB))
    a.e("s_add_u32 s%d, s%d, 0x%x" % (sD, sOUTO, L_RED))
    a.e("v_add_u32 %s, s%d, v3" % (v(vAW0), sD))
    a.e("v_lshrrev_b32 v2, 3, v0")
    a.e("v_lshlrev_b32 v3, 1, v4")
    a.e("v_xor_b32 v3, v3, v2")
    a.e("v_lshlrev_b32 v3, 4, v3")
    a.e("v_lshl_add_u32 v3, v2, 8, v3")
    a.e("s_lshl_b32 s%d, s%d, 11" % (sD, sC))
    a.e("s_add_u32 s%d, s%d, s%d" % (sD, sD, sB))
    a.e("s_add_u32 s%d, s%d, 0x%x" % (sD, sD, L_RED))
    a.e("v_add_u32 %s, s%d, v3" % (v(vAR0), sD))
    a.e("v_lshlrev_b32 v4, 4, v4")
    a.e("v_lshl_add_u32 %s, v2, 10, v4" % v(vOUTA))
    a.e("s_lshl_b32 s%d, s%d, 16" % (sC, sT))
    a.e("s_add_u32 s%d, s%d, s%d" % (sOUTO, sOUTO, sC))
    a.e("s_lshl_b32 s%d, s%d, 7" % (sC, sCB))
    a.e("s_add_u32 s%d, s%d, s%d" % (sOUTO, sOUTO, sC))
    a.e("v_mov_b32 %s, 0xdddd" % v(vIDX))
    a.e("v_lshrrev_b32 v2, 4, v0")
    a.e("v_lshl_add_u32 %s, v2, 8, %s" % (v(vHA), v(vL16)))
    for i in range(16): a.e("v_mov_b32 %s, 0" % v(vO + i))
    for i in range(32): a.e("v_mov_b32 %s, 0" % v(vD + i))
    c0 = -2.0 * math.sqrt(2.0 / math.pi) * math.log2(math.e)
    a.e("v_mov_b32 %s, 0x%x" % (v(vC0), f2u(c0)))
    a.e("v_mov_b32 %s, 0x%x" % (v(vC0 + 1), f2u(c0 * 0.044715)))

def kv_first_loads(a, quartet=False):
    it = []
    for o in (range(0, 16384, 4096) if quartet else range(0, 16384, 8192)):
        b = sWH if quartet else sWK
        it.append(("s_add_u32 m0, s%d, 0x%x\ns_add_u32 s%d, s%d, 0x%x\nbuffer_load_dwordx4 %s, %s, s%d offen sc1 lds"
                   % (b, L_KV + o, sA, b, o, v(vL16), srd(SKV), sA), "kv%d" % (o >> 13)))
    it.append(("s_mov_b32 s%d, 0x%x\nbuffer_load_dwordx4 %s, %s, %s, s%d offen sc1"
               % (sA, 63 * 2048, v(vK0, 4), v(vL16), srd(SKV), sA), "k0"))
    it.append(("s_mov_b64 exec, %s\nbuffer_load_dwordx4 %s, %s, %s, 0 offen offset:%d sc1\ns_mov_b64 exec, -1"
               % (sp(sVM), v(vV1L, 4), v(vL16), srd(SKV), 1024 + 256), "k0"))
    it.append(("s_lshl_b32 s%d, s%d, 2\ns_add_u32 s%d, s%d, s%d\ns_lshl_b32 s%d, s%d, 7\ns_add_u32 s%d, s%d, 0x%x\n"
               "buffer_load_dword %s, %s, %s, s%d offen sc1"
               % (sA, sG, sA, sA, sLO, sA, sA, sA, sA, WS_G, v(vGP), v(vGA), srd(SWS), sA), "k0"))
    it.append(("s_lshl_b32 s%d, s%d, 1\ns_and_b32 s%d, s%d, 1\ns_add_u32 s%d, s%d, s%d\ns_lshl_b32 s%d, s%d, 7\ns_add_u32 s%d, s%d, 0x%x\n"
               "buffer_load_dword %s, %s, %s, s%d offen sc1"
               % (sA, sT, sB, sW, sA, sA, sB, sA, sA, sA, sA, WS_G, v(vGC), v(vGA), srd(SWS), sA), "k0"))
    return it

def spin_counter(a, name, first_loaded, wave=0):
    a.e("s_cmp_lg_u32 s%d, %d" % (sW, wave))
    a.e("s_cbranch_scc1 L_%s_done" % name)
    a.e("s_mov_b32 s%d, 0x4000" % sB)
    if first_loaded: a.e("s_branch L_%s_chk" % name)
    a.lab("L_%s_re" % name)
    a.e("buffer_load_dword %s, off, %s, 0 sc1" % (v(vPOLL), srd(SDBG)))
    a.e("s_waitcnt vmcnt(0)")
    a.lab("L_%s_chk" % name)
    a.e("v_readfirstlane_b32 s%d, %s" % (sA, v(vPOLL)))
    a.e("s_cmp_ge_u32 s%d, 32" % sA)
    a.e("s_cbranch_scc1 L_%s_done" % name)
    a.e("s_sleep 4")
    a.e("s_sub_u32 s%d, s%d, 1" % (sB, sB))
    a.e("s_cmp_lg_u32 s%d, 0" % sB)
    a.e("s_cbranch_scc1 L_%s_re" % name)
    a.lab("L_%s_done" % name)

def phase1_F(a):
    SCHED = {1: ["01423567", "10253467", "23016457", "32104756"],
             2: ["02134657", "01324576", "10243567", "10235467"],
             3: ["01324657", "01243576", "12035467", "20134567"],
             5: ["01243567", "10325467", "23014657", "32104576"],
             6: ["01243567", "10325467", "01234657", "10324576"],
             7: ["01234567", "10235476", "01234567", "10235476"],
             8: ["01234567", "10243657", "01234567", "10243657"],
             4: ["02143657", "10325476", "02143657", "10325476"]}
    tabs = SCHED[Opt.sched] if Opt.sched else ["".join(str(c ^ (p & Opt.xmask)) for c in range(8)) for p in range(4)]
    for t_ in tabs: assert sorted(t_) == list("01234567")
    num = [int(t_[::-1], 16) for t_ in tabs]
    def table(a):
        a.e("s_add_u32 s%d, s%d, s%d" % (sA, sG, sHP))
        a.e("s_mov_b32 s%d, 0x%x" % (sXP, num[0]))
        a.e("s_mov_b32 s%d, 0x%x" % (sB, num[2]))
        a.e("s_bitcmp1_b32 s%d, 0" % sA)
        a.e("s_cselect_b32 s%d, 0x%x, s%d" % (sXP, num[1], sXP))
        a.e("s_cselect_b32 s%d, 0x%x, s%d" % (sB, num[3], sB))
        a.e("s_bitcmp1_b32 s%d, 1" % sA)
        a.e("s_cselect_b32 s%d, s%d, s%d" % (sXP, sB, sXP))
        if Opt.ghx:
            a.e("s_bitcmp1_b32 s%d, 3" % sG)
            a.e("s_cselect_b32 s%d, 0x44444444, 0" % sB)
            a.e("s_xor_b32 s%d, s%d, s%d" % (sXP, sXP, sB))
    fo, fw = {"0000": (0, 0), "0101": (0, 1), "0011": (1, 1), "0123": (0, 2)}["".join(t_[0] for t_ in tabs)]
    a.e("s_add_u32 s%d, s%d, s%d" % (sA, sG, sHP))
    a.e("s_bfe_u32 s%d, s%d, 0x%x" % (sCH, sA, fw << 16 | fo))
    if Opt.ghx: a.e("s_lshl2_add_u32 s%d, s%d, s%d" % (sCH, sD, sCH))
    a.e("s_and_b32 s%d, s%d, 0xc00" % (sWH, sWK))
    a.e("v_and_b32 %s, 0xff, v0" % v(vTID))

    def wvoff(a):
        a.e("v_lshrrev_b32 v2, 4, %s" % v(vTID))
        a.e("v_lshrrev_b32 v3, 5, %s" % v(vTID))
        a.e("v_bfi_b32 v3, 3, v2, v3")
        a.e("v_lshlrev_b32 v3, 1, v3")
        a.e("v_xor_b32 v3, v3, %s" % v(vTID))
        a.e("v_and_b32 v3, 15, v3")
        a.e("s_lshl_b32 s%d, s%d, 8" % (sA, sM))
        a.e("v_lshl_add_u32 v3, v3, 4, s%d" % sA)
        a.e("v_mul_u32_u24 v2, 3584, v2")
        a.e("v_add_u32 %s, v2, v3" % v(vDG))
    def qvoff(a):
        a.e("v_lshrrev_b32 v2, 4, %s" % v(vTID))
        a.e("v_and_b32 v2, 2, v2")
        a.e("v_xor_b32 v2, v2, %s" % v(vTID))
        a.e("v_and_b32 v2, 3, v2")
        a.e("s_lshl_b32 s%d, s%d, 6" % (sA, sHP))
        a.e("v_lshl_add_u32 v2, v2, 4, s%d" % sA)
        a.e("v_lshrrev_b32 v3, 2, %s" % v(vTID))
        a.e("v_lshl_add_u32 %s, v3, 10, v2" % v(vDQ))
    def stouch(a):
        if (Opt.diag or Opt.probe >= 0) and not Opt.klate: a.e("s_load_dwordx2 %s, s[0:1], 32" % sp(SWO))
        if not Opt.stch: return
        a.e("s_lshr_b32 s%d, s%d, 2" % (sA, sW))
        if Opt.ghx: a.e("s_lshl2_add_u32 s%d, s%d, s%d" % (sA, sD, sA))
        a.e("s_lshl_b32 s%d, s%d, 6" % (sA, sA))
        a.e("s_and_b32 s%d, s%d, 7" % (sB, sG))
        a.e("s_add_u32 s%d, s%d, s%d" % (sA, sA, sB))
        a.e("s_mul_i32 s%d, s%d, 28" % (sA, sA))
        a.e("s_bfe_u32 s%d, s%d, 0x10001" % (sB, sW))
        a.e("s_lshl1_add_u32 s%d, s%d, s%d" % (sB, sM, sB))
        a.e("s_add_u32 s%d, s%d, s%d" % (sA, sA, sB))
        a.e("s_lshl_b32 s%d, s%d, 7" % (sA, sA))
        a.e("s_bitcmp1_b32 s%d, 0" % sW)
        a.e("s_cselect_b64 %s, %s, %s" % (sp(SWKV), sp(SWU), sp(SWG)))
        a.e("s_add_u32 s%d, s%d, s%d" % (SWKV, SWKV, sA))
        a.e("s_addc_u32 s%d, s%d, 0" % (SWKV + 1, SWKV + 1))
        for i in range(Opt.stch):
            a.e("s_load_dwordx2 %s, %s, 0x%x" % (sp(sTMPP), sp(SWKV), 128 * 3584 + i * 8 * 3584 + 60))
    def wsrd(a):
        srd_words(a, [SWG])
        a.e("s_mov_b64 %s, %s" % (sp(SWU + 2), sp(SWG + 2)))

    if Opt.hrot:
        ORDER = [("q", 0)] + [(t_, 2 * h_ + j) for h_ in range(2) for t_, j in (("x", 0), ("x", 1), ("g", 0), ("u", 0), ("g", 1), ("u", 1))]
    else:
        ORDER = [("q", 0)] + [("x", j) for j in range(4)] + [(t_, j) for j in range(4) for t_ in "gu"]
    def block(items):
        out = []; lastc = None; lastw = None
        for c, kind, j in items:
            s = c % 3; pre = []
            if c != lastc:
                if c: pre.append("s_bfe_u32 s%d, s%d, 0x%x" % (sCH, sXP, 0x30000 + 4 * c))
                lastc = c; lastw = None
            fam = "w" if kind in "gu" else kind
            rot = Opt.hrot and fam != "q"
            if lastw is None or lastw[0] != fam or (rot and lastw[1] >> 1 != j >> 1):
                pre.append({"q": "s_lshl_b32 s%d, s%d, 16" % (sOFFW, sCH), "x": "s_lshl_b32 s%d, s%d, 7" % (sOFFW, sCH),
                            "w": "s_mul_i32 s%d, s%d, %d" % (sOFFW, sCH, 64 * 3584)}[fam])
                if rot: pre.append("s_%s_u32 s%d, s%d, s%d" % ("sub" if j >> 1 else "add", sOFFW, sOFFW, sRX if fam == "x" else sRW))
                lastw = (fam, 0)
            if lastw[1] != j:
                pre.append("s_add_u32 s%d, s%d, 0x%x" % (sOFFW, sOFFW, (j - lastw[1]) * (0x8000 if fam == "x" else 16 * 3584)))
                lastw = (fam, j)
            m0c, vo, rs = {"q": (L_WQ + s * 4096, vDQ, SWQ), "x": (L_X + s * 16384 + j * 4096, vDX, SX),
                           "g": (L_G + s * 16384 + j * 4096, vDG, SWG), "u": (L_U + s * 16384 + j * 4096, vDG, SWU)}[kind]
            nt = " nt" if Opt.ntx & (1 if rs == SX else 2) else ""
            out.append(("s_add_u32 m0, s%d, 0x%x\n%s\nbuffer_load_dwordx4 %s, %s, s%d offen%s lds"
                        % ((sM0B + (j >> 1)) if rot else sWH, m0c, "\n".join(pre) or "s_nop 0", v(vo), srd(rs), sOFFW, nt), "c%d" % c))
        return out
    def part(c, role): return [(c, k_, j) for k_, j in ORDER if (k_ in "gu") == (role == "A")]

    def rdsetup(a):
        setup_rd(a)
        a.e("v_lshl_add_u32 %s, v3, 3, v2" % v(vWA))
        a.e("v_lshlrev_b32 %s, 8, %s" % (v(vWA), v(vWA)))
        a.e("v_lshl_add_u32 %s, v4, 3, %s" % (v(vWA), v(vWA)))
        a.e("v_and_b32 v5, 1, v3")
        a.e("v_lshl_add_u32 v2, v5, 2, v2")
        a.e("s_lshl_b32 s%d, s%d, 2" % (sA, sHI))
        a.e("s_and_b32 s%d, s%d, 1" % (sB, sLO))
        a.e("s_lshl_b32 s%d, s%d, 1" % (sB, sB))
        a.e("s_add_u32 s%d, s%d, s%d" % (sA, sA, sB))
        a.e("v_xor_b32 v2, s%d, v2" % sA)
        a.e("v_lshl_add_u32 %s, v2, 5, %s" % (v(vWA), v(vWA)))
        a.e("v_xor_b32 %s, 32, %s" % (v(vWA + 1), v(vWA)))
        a.e("v_add_u32 %s, 0x%x, %s" % (v(vWA + 2), L_U - L_G, v(vWA)))
        a.e("v_add_u32 %s, 0x%x, %s" % (v(vWA + 3), L_U - L_G, v(vWA + 1)))
        a.e("s_lshl_b32 s%d, s%d, 12" % (sA, sLO))
        a.e("s_add_u32 s%d, s%d, 0x%x" % (sA, sA, L_X))
        a.e("v_add_u32 %s, s%d, %s" % (v(vXA), sA, v(vXA)))
        a.e("v_xor_b32 %s, 0x1000, %s" % (v(vXA + 1), v(vXA)))
        a.e("v_xor_b32 %s, 64, %s" % (v(vXA + 2), v(vXA)))
        a.e("v_xor_b32 %s, 64, %s" % (v(vXA + 3), v(vXA + 1)))
        a.e("v_add_u32 %s, 0x%x, %s" % (v(vQA), L_WQ, v(vQA)))

    a.e("s_cmp_ge_u32 s%d, 4" % sW)
    a.e("s_cbranch_scc1 L_setB")
    late = collect(setup_oclr) + collect(setup_ones) + [("; later", None)] + collect(setup_attn)
    words = collect(lambda t: srd_words(t, [SWS, SKV, SDBG, SWD, SWO, SOUT]))
    late = [x for x in late if x not in words]
    oclr = [x for x in late if x[1] == "oclr"]
    if Opt.olate: late = [x for x in late if x[1] != "oclr"]
    else: oclr = []
    words += [("v_mov_b32 %s, 0" % v(r_), None) for r_ in (vGA, vWDV, vFLA, vHA, vOUTA)]
    st = collect(rdsetup) + words + late[:Opt.fillpre]
    cut = late.index(("; later", None)) if Opt.bidle else len(late)
    fills = {"A": late[Opt.fillpre:], "B": late[Opt.fillpre:max(cut, Opt.fillpre)]}
    idleB = late[max(cut, Opt.fillpre):]
    vms = {}
    wsrd(a); wvoff(a)
    a.e("s_waitcnt lgkmcnt(0)")
    a.stamp(2)
    if Opt.spos == 0: stouch(a)
    put(a, block(part(0, "A")))
    a.e("s_branch L_setA")
    vms["A"] = a.vm; a.vm = []
    a.lab("L_setB")
    srd_words(a, [SX]); xvoff(a, vTID)
    a.e("s_waitcnt lgkmcnt(0)")
    a.stamp(2)
    if Opt.spos == 0: stouch(a)
    put(a, block(part(0, "B")[1:]))
    srd_words(a, [SWQ]); qvoff(a)
    put(a, block(part(0, "B")[:1]))
    vms["B"] = a.vm
    for role in "BA":
        a.vm = vms[role]
        if role == "A": a.lab("L_setA")
        if Opt.spos == 1: stouch(a)
        table(a)
        setup_ids(a)
        if role == "A": srd_words(a, [SX, SWQ])
        else: wsrd(a)
        def touches():
            tm = sum(0xff << (8 * i) for i in range(4) if Opt.tch >> i & 1)
            setex = "s_bitcmp1_b32 s%d, 3\ns_cselect_b32 exec_lo, 0, 0x%x\ns_cselect_b32 exec_hi, 0x%x, 0" % (sG, tm, tm) if Opt.ghx \
                    else "s_mov_b32 exec_lo, 0x%x\ns_mov_b32 exec_hi, 0" % tm
            if Opt.tlb & 2 and role == "B":
                a.e("s_and_b32 s%d, s%d, 7" % (sA, sG))
                a.e("v_lshl_add_u32 v2, v0, 3, s%d" % sA)
                a.e("v_mul_u32_u24 v3, 3584, v2")
                a.e("s_and_b32 s%d, s%d, 1" % (sB, sW))
                a.e("s_lshl1_add_u32 s%d, s%d, s%d" % (sA, sM, sB))
                a.e("s_lshl_b32 s%d, s%d, 7" % (sA, sA))
                a.e(setex)
                a.e("s_cmp_ge_u32 s%d, 6" % sW)
                a.e("s_cbranch_scc1 L_tlbu")
                a.e("buffer_load_dword %s, v3, %s, s%d offen" % (v(vPOLL), srd(SWG), sA))
                a.e("s_branch L_tlbe")
                a.lab("L_tlbu")
                a.e("buffer_load_dword %s, v3, %s, s%d offen" % (v(vPOLL), srd(SWU), sA))
                a.lab("L_tlbe")
                a.e("s_mov_b64 exec, -1")
                a.vm.append("tlb")
            if Opt.tlb & 12 and role == "A":
                a.e("s_cmp_lg_u32 s%d, 0" % sW)
                a.e("s_cbranch_scc1 L_tlbx")
                a.e("s_and_b32 s%d, s%d, 7" % (sA, sG))
                a.e("v_lshl_add_u32 v2, v0, 3, s%d" % sA)
                a.e("v_lshlrev_b32 v3, 10, v2")
                a.e("s_lshl_b32 s%d, s%d, 6" % (sA, sHP))
                a.e(setex if Opt.tlb & 4 else "s_mov_b64 exec, 1")
                a.e("buffer_load_dword %s, v3, %s, s%d offen" % (v(vPOLL), srd(SWQ), sA))
                if not Opt.tlb & 8:
                    a.e("s_mov_b64 exec, -1")
                    a.lab("L_tlbx")
                    return
                a.e("s_branch L_tlby")
                a.lab("L_tlbx")
                a.e("s_bitcmp1_b32 s2, 0")
                a.e("s_cselect_b32 s%d, %d, %d" % (sB, Opt.xodd, Opt.xeven))
                a.e("s_and_b32 s%d, s%d, 3" % (sA, sHP))
                a.e("s_mul_i32 s%d, s%d, s%d" % (sA, sA, sB))
                a.e("s_lshl_b32 s%d, s%d, 7" % (sC, sG))
                a.e("s_add_u32 s%d, s%d, s%d" % (sA, sA, sC))
                a.e("v_add_lshl_u32 v3, v0, s%d, 10" % sA)
                a.e("s_lshr_b32 s%d, s%d, 3" % (sA, sG))
                a.e("s_lshl2_add_u32 s%d, s%d, s%d" % (sA, sA, sW) if Opt.ghx else "s_mov_b32 s%d, s%d" % (sA, sW))
                a.e("s_lshl_b32 s%d, s%d, 7" % (sA, sA))
                a.e("s_bitcmp1_b32 %d, s%d" % (Opt.tch if Opt.tlb & 8 else 0, sW))
                a.e("s_cselect_b32 s%d, s%d, 1" % (sB, sB))
                a.e("s_bfm_b64 exec, s%d, 0" % sB)
                a.e("buffer_load_dword %s, v3, %s, s%d offen" % (v(vPOLL), srd(SX), sA))
                a.lab("L_tlby")
                a.e("s_mov_b64 exec, -1")
                a.vm.append("tlb")
        if Opt.tpos == 0: touches()
        if Opt.startbar: a.e("s_barrier")
        npre = min(Opt.npre, 8) if role == "A" else 5
        pn = block(part(1, role)[:npre])
        rest = st + (collect(qvoff) + collect(lambda t: xvoff(t, vTID)) if role == "A" else collect(wvoff))
        gap = len(rest) // (npre + Opt.pregap) + 1
        if Opt.tpos == 2:
            put(a, pn); touches(); npre = 0
        if Opt.tpos == 3 and role == "B":
            put(a, pn); touches(); npre = 0
        for i in range(npre):
            put(a, pn[:1]); pn = pn[1:]
            put(a, rest[:gap]); rest = rest[gap:]
        put(a, rest)
        if Opt.tpos == 1 or (Opt.tpos == 3 and role == "A"): touches()
        a.e("s_mov_b64 vcc, %d" % (-1 if role == "A" else 0))
        if role == "A":
            a.waitvm("c0", lgkm=True)
        else:
            a.e("s_setprio 1")
            a.waitvm("c0", lgkm=True)
            a.e("s_branch L_k0")
        vms[role] = a.vm
    stream = part(1, "A")[min(Opt.npre, 8):] + [(c, k_, j) for c in range(2, 8) for k_, j in ORDER]
    qa = [int(x, 16) for x in Opt.qa]; qb = [int(x, 16) for x in Opt.qb]
    def take(n, cmax):
        m = 0
        while m < n and m < len(stream) and stream[m][0] <= cmax: m += 1
        r_ = stream[:m]; del stream[:m]
        return block(r_)
    a.lab("L_k0")
    a.vm = vms["A"]
    ool = Asm()
    def dmablock(name, role, items, wait=None):
        a.e("s_cbranch_vcc%s L_%s" % ("nz" if role == "A" else "z", name))
        if wait: a.waitvm(wait, lgkm=True)
        a.lab("L_%s_r" % name)
        ool.lab("L_%s" % name)
        ool.vm = a.vm if role == "A" else vms["B"]
        for it_ in items:
            put(ool, [it_])
            fp = Opt.fillper if role == "A" or not Opt.bidle else 2
            put(ool, fills[role][:fp]); fills[role] = fills[role][fp:]
        if name in ("d7", "e7"): put(ool, fills[role]); fills[role] = []
        if wait: ool.waitvm(wait, lgkm=True)
        if role == "B": vms["B"] = ool.vm
        ool.e("s_branch L_%s_r" % name)
    a.ool = ool.l

    def fr(k):
        b = vF1 + 36 * (k % 2)
        return dict(x=b, w=b + 16, q=b + 32)
    def reads(k):
        c, s = divmod(k, 2); f = fr(k); sl = c % 3
        wo = sl * 16384 + s * 8192
        W = lambda i: [rdtr(f['w'] + 4 * i, vWA + i, wo), rdtr(f['w'] + 4 * i + 2, vWA + i, wo + 1024)]
        X = [rd128(f['x'] + 4 * b, vXA + 2 * s + (b >> 1), sl * 16384 + (b & 1) * 2048) for b in range(4)]
        return W(0) + X + W(2) + W(1) + W(3) + [rdtr(f['q'], vQA, sl * 4096 + s * 2048), rdtr(f['q'] + 2, vQA, sl * 4096 + s * 2048 + 256)]
    a.e("s_barrier")
    a.stamp(3)
    if Opt.kdiag or Opt.probe >= 18:
        kstamp(a, 2)
        a.e("s_waitcnt lgkmcnt(0)")
    for r in reads(0): a.e(r)
    if qa[0]: dmablock("d2", "A", take(qa[0], 2))
    for k in range(16):
        c, s = divmod(k, 2); f = fr(k)
        z = lambda x: None if k == 0 else x
        mf = []
        for n_, i in enumerate((0, 2, 1, 3)):
            for b in (range(4) if n_ % 2 == 0 else range(3, -1, -1)):
                d = vACC + 16 * b + 4 * i
                mf.append(mfma16(d, f['w'] + 4 * i, f['x'] + 4 * b, z(d)))
        for b in range(2): mf.append(mfma16(vAQ + 4 * b, f['q'], f['x'] + 4 * b, z(vAQ + 4 * b)))
        rds = reads(k + 1) if k < 15 else []
        if s == 0:
            a.e("s_waitcnt lgkmcnt(6)")
            for i, m in enumerate(mf):
                if i == 8: a.e("s_waitcnt lgkmcnt(8)")
                a.e(m)
                if i < len(rds): a.e(rds[i])
            continue
        a.e("s_waitcnt lgkmcnt(8)")
        for m in mf[:4]: a.e(m)
        if c <= 5:
            dmablock("e%d" % (c + 2), "B", take(qb[c], c + 2), "c%d" % (c + 1))
            assert not any(x[0] <= c + 1 for x in stream)
        if c == 7:
            a.e("s_waitcnt lgkmcnt(0)")
        elif c == 6:
            a.e("s_waitcnt lgkmcnt(0)")
            a.e("s_cbranch_vccz L_st7")
            a.e("s_setprio 1")
            a.e("s_waitcnt vmcnt(0)")
            a.e("s_barrier")
            a.lab("L_st7")
        else:
            a.e("s_barrier")
        if c < 7 and ((Opt.kdiag == 1 and Opt.diag) or Opt.probe == 21 + c):
            kstamp(a, 3 + c)
            a.e("s_waitcnt lgkmcnt(0)")
        if c + 3 < 8:
            items = take(qa[c + 1], c + 3)
            dmablock("d%d" % (c + 3), "A", items)
        for i, m in enumerate(mf[4:]):
            a.e(m)
            if i < len(rds): a.e(rds[i])
        if k == 11: assert not stream and not fills["A"] and not fills["B"]
        if k == 11:
            a.e("s_cbranch_vccnz L_st6")
            a.e("s_setprio 0")
            nm = next((i for i, x in enumerate(idleB) if "0xdddd" in x[0]), 0)
            a.e("s_cmp_lg_u32 s%d, 4" % sW)
            a.e("s_cbranch_scc1 L_nopoll")
            a.e("buffer_load_dword %s, off, %s, 0 sc1" % (v(vPOLL), srd(SDBG)))
            a.lab("L_nopoll")
            put(a, idleB[:nm]); idleB = idleB[nm:]
            a.wait0()
            spin_counter(a, "kvf", True, 4)
            a.e("s_barrier")
            put(a, kv_first_loads(a, True) + oclr + idleB)
            a.lab("L_st6")
    a.kvA = (kv_first_loads(a) + oclr)[2:]
    a.stamp(4)

def phase1_L(a):
    a.lab("L_light")
    a.vm = []
    if Opt.oddl: a.e("s_add_u32 s%d, s%d, 14" % (sM, sB))
    if Opt.klate:
        ptr_loads(a, ((SGATE, 72), (SWKV, 16), (SWV, 24)))
    else:
        a.e("s_waitcnt lgkmcnt(0)")
        ptr_loads(a, ((SWKV, 16), (SWV, 24), (SGATE, 72), (SWO, 32)))
    srd_words(a, [SWKV, SWV, SGATE, SX])
    xvoff(a, 0)
    a.e("v_and_b32 v2, 63, v0")
    a.e("v_lshlrev_b32 %s, 4, v2" % v(vL16))
    a.e("s_sub_u32 s%d, s%d, 14" % (sCNT, sM))
    a.e("s_lshl_b32 s%d, s%d, 16" % (sOLD, sCNT))
    a.e("s_lshl_b32 s%d, s%d, 13" % (sHST, sCNT))
    a.e("s_add_u32 s%d, s%d, s%d" % (sWH, sHST, sWK))
    a.e("s_xor_b32 s%d, s%d, 0x2000" % (sHST, sHST))
    a.e("s_add_u32 s%d, s%d, 0x2000" % (sA, sWK))
    a.e("s_waitcnt lgkmcnt(0)")
    a.stamp(2)
    def xdma(c, base, so):
        a.vmop("s_add_u32 m0, s%d, 0x%x\ns_nop 0\nbuffer_load_dwordx4 %s, %s, s%d offen offset:%d lds"
               % (base, LL_X + c * 16384 - c * 128, v(vDX), srd(SX), so, c * 128), "c%d" % c)
    def wdma(u):
        for t, rs in enumerate((SWKV, SWV)):
            a.vmop("s_add_u32 m0, s%d, 0x%x\ns_nop 0\nbuffer_load_dwordx4 %s, %s, s%d offen lds"
                   % (sWK, LL_W + t * 16384 + u * 8192, v(vL16), srd(rs), sA if u else sWK), "w")
    wdma(0)
    a.vmop("s_mov_b32 m0, s%d\ns_nop 0\nbuffer_load_dwordx4 %s, %s, 0 offen lds" % (sHST, v(vL16), srd(SGATE)), "w")
    for c in range(8):
        if c == 4: wdma(1)
        xdma(c, sWH, sOLD)
        if (c == 1 and Opt.lthr & 1) or (c == 3 and Opt.lthr & 2): a.e("s_waitcnt vmcnt(0)")
        if c in (1, 3, 5): a.e("s_barrier")
    setup_ids(a)
    srd_words(a, [SWQ])
    setup_rd(a)
    a.e("v_lshrrev_b32 v3, 5, v0")
    a.e("v_bfrev_b32 v5, v4")
    a.e("v_lshrrev_b32 v5, 30, v5")
    a.e("s_cmp_ge_u32 s%d, 2" % sLO)
    a.e("s_cselect_b64 vcc, -1, 0")
    a.e("v_cndmask_b32 v4, v5, v4, vcc")
    a.e("v_lshl_add_u32 %s, v3, 3, v2" % v(vWA))
    a.e("v_lshlrev_b32 %s, 5, %s" % (v(vWA), v(vWA)))
    a.e("v_lshl_add_u32 %s, v4, 3, %s" % (v(vWA), v(vWA)))
    a.e("s_lshr_b32 s%d, s%d, 1" % (sA, sLO))
    a.e("s_lshl_b32 s%d, s%d, 14" % (sA, sA))
    a.e("s_add_u32 s%d, s%d, 0x%x" % (sA, sA, LL_W))
    a.e("v_add_u32 %s, s%d, %s" % (v(vWA), sA, v(vWA)))
    a.e("v_lshl_add_u32 %s, v3, 4, s%d" % (v(vWA + 1), sHST))
    a.e("s_and_b32 s%d, s%d, 1" % (sA, sLO))
    a.e("s_lshl_b32 s%d, s%d, 1" % (sB, sCNT))
    a.e("s_add_u32 s%d, s%d, s%d" % (sCNT, sA, sB))
    a.e("s_lshl_b32 s%d, s%d, 12" % (sA, sCNT))
    a.e("v_and_b32 v2, 31, v0")
    a.e("v_lshrrev_b32 v4, 1, v0")
    a.e("v_lshlrev_b32 v5, 1, v0")
    a.e("v_bfi_b32 v4, 4, v4, v5")
    a.e("v_bfi_b32 v4, 12, v4, v2")
    a.e("v_cndmask_b32 v2, v2, v4, vcc")
    a.e("v_bfe_u32 v4, v2, 1, 3")
    a.e("v_xor_b32 v4, v4, v3")
    a.e("v_lshlrev_b32 v4, 4, v4")
    a.e("v_lshl_add_u32 v4, v2, 7, v4")
    a.e("v_add_u32 %s, s%d, v4" % (v(vLX), sA))
    for s in range(1, 4): a.e("v_xor_b32 %s, %d, %s" % (v(vLX + s), 32 * s, v(vLX)))
    for s in range(4): a.e("v_add_u32 %s, 0x10000, %s" % (v(vLX + 4 + s), v(vLX + s)))
    a.e("s_waitcnt lgkmcnt(0)")
    setup_oclr(a)
    vm0 = list(a.vm)
    a.e("s_cmp_lg_u32 s%d, 0" % sHI)
    a.e("s_cbranch_scc1 L_lB")
    a.e("s_not_b64 %s, %s" % (sp(sTMPP), sp(sVM)))
    a.e("s_cmp_ge_u32 s%d, 2" % sLO)
    a.e("s_cbranch_scc1 L_lV")
    def chain(kind):
        a.vm = list(vm0)
        def fr(k):
            b = vFR + 8 * (k % 4)
            return b, b + 4
        def reads(k):
            c, s = divmod(k, 4); x, w = fr(k)
            r = [rd128(x, vLX + s + 4 * (c >> 2), (c & 3) * 16384), rdtr(w, vWA, k * 512), rdtr(w + 2, vWA, k * 512 + 128)]
            if kind == "K":
                r += ["s_mov_b64 exec, %s" % sp(sTMPP), rd128(w, vWA + 1, k * 32), "s_mov_b64 exec, -1"]
            return r
        for q in range(4):
            a.waitvm("c%d" % (2 * q + 1))
            a.e("s_barrier")
            nr = 4 if kind == "K" else 3
            for k in range(8 * q, 8 * q + 2):
                for r in reads(k): a.e(r)
            for k in range(8 * q, 8 * q + 8):
                if k + 2 < 8 * q + 8:
                    for r in reads(k + 2): a.e(r)
                left = min(2, 8 * q + 7 - k)
                a.e("s_waitcnt lgkmcnt(%d)" % (left * nr))
                x, w = fr(k)
                cc = None if k == 0 else vACC
                a.e(mfma(vACC, w, x, cc) if kind == "K" else mfma(vACC, x, w, cc))
        a.e("s_lshl_b32 s%d, s%d, 2" % (sA, sG))
        a.e("s_add_u32 s%d, s%d, s%d" % (sA, sA, sCNT))
        a.e("s_nop 12")
        if kind == "K":
            a.e("s_mov_b32 s%d, 0x%x" % (sC, f2u(0.25 * math.log2(math.e))))
            for i in range(8): a.e("v_mul_f32 %s, s%d, %s" % (v(vACC + i), sC, v(vACC + i)))
            a.e("v_mul_f32 %s, 0x%x, %s" % (v(vACC + 8), f2u(-math.log2(math.e)), v(vACC + 8)))
            a.e("v_exp_f32 %s, %s" % (v(vACC + 8), v(vACC + 8)))
            for i in range(4): a.e("v_cvt_pk_bf16_f32 %s, %s, %s" % (v(vFR + i), v(vACC + 2 * i), v(vACC + 2 * i + 1)))
            a.e("v_add_f32 %s, 1.0, %s" % (v(vACC + 8), v(vACC + 8)))
            a.e("v_rcp_f32 %s, %s" % (v(vACC + 8), v(vACC + 8)))
            a.e("s_add_u32 s%d, s%d, 63" % (sB, sA))
            a.e("s_and_b32 s%d, s%d, 63" % (sB, sB))
            a.e("s_lshl_b32 s%d, s%d, 11" % (sB, sB))
            a.e("buffer_store_dwordx4 %s, %s, %s, s%d offen sc1" % (v(vFR, 4), v(vL16), srd(SKV), sB))
            a.e("s_lshl_b32 s%d, s%d, 7" % (sB, sA))
            a.e("s_add_u32 s%d, s%d, 0x%x" % (sB, sB, WS_G))
            a.e("s_mov_b32 exec_hi, 0")
            a.e("buffer_store_dword %s, %s, %s, s%d offen sc1" % (v(vACC + 8), v(vGA), srd(SWS), sB))
            a.e("s_mov_b64 exec, -1")
        else:
            for i in range(8): a.e("v_cvt_pk_bf16_f32 %s, %s, %s" % (v(vFR + i), v(vACC + 2 * i), v(vACC + 2 * i + 1)))
            a.e("v_bfe_u32 v2, v0, 4, 1")
            a.e("v_add_u32 v2, s%d, v2" % sA)
            a.e("v_and_b32 v2, 63, v2")
            a.e("v_lshl_add_u32 v2, v2, 11, %s" % v(vL16))
            for i in range(4): a.e("v_cndmask_b32 %s, %s, %s, %s" % (v(vFR + i), v(vFR + 4 + i), v(vFR + i), sp(sVM)))
            a.e("buffer_store_dwordx4 %s, v2, %s, 0 offen offset:1024 sc1" % (v(vFR, 4), srd(SKV)))
        a.e("s_branch L_lJ")
    chain("K")
    a.lab("L_lV")
    chain("V")
    a.lab("L_lB")
    a.vm = list(vm0)
    a.e("s_cmp_lg_u32 s%d, 14" % sM)
    a.e("s_cbranch_scc1 L_nozf")
    a.e("s_cmp_lg_u32 s%d, 4" % sW)
    a.e("s_cbranch_scc1 L_nozf")
    a.e("v_lshlrev_b32 v2, 7, v0")
    a.e("s_lshl_b32 s%d, s%d, 11" % (sA, sG))
    a.e("s_add_u32 s%d, s%d, 0x%x" % (sA, sA, WS_HFLAG))
    a.e("s_mov_b64 exec, 0xffff")
    a.e("buffer_store_dword %s, v2, %s, s%d offen sc1" % (v(vZERO), srd(SWS), sA))
    a.e("s_mov_b64 exec, -1")
    a.lab("L_nozf")
    for q in range(4):
        a.waitvm("c%d" % (2 * q + 1))
        a.e("s_barrier")
    a.lab("L_lJ")
    a.e("v_lshrrev_b32 v3, 2, v0")
    a.e("v_lshlrev_b32 v3, 10, v3")
    a.e("v_lshrrev_b32 v4, 5, v0")
    a.e("v_lshlrev_b32 v4, 1, v4")
    a.e("v_xor_b32 v4, v4, v0")
    a.e("v_and_b32 v4, 3, v4")
    a.e("v_lshl_add_u32 v3, v4, 4, v3")
    a.e("s_lshl_b32 s%d, s%d, 14" % (sA, sW))
    a.e("s_lshl_b32 s%d, s%d, 6" % (sB, sHP))
    a.e("s_add_u32 s%d, s%d, s%d" % (sA, sA, sB))
    a.e("v_add_u32 %s, s%d, v3" % (v(vDQ), sA))
    a.e("s_xor_b32 s%d, s%d, 0x2000" % (sWH, sWH))
    a.e("s_xor_b32 s%d, s%d, 0x10000" % (sOLD, sOLD))
    a.wait0(lgkm=True)
    a.e("s_barrier")
    a.e("s_cmp_lg_u32 s%d, 0" % sW)
    a.e("s_cbranch_scc1 L_noat")
    a.e("s_mov_b64 exec, 1")
    a.e("buffer_atomic_add %s, off, %s, 0 sc1" % (v(vONE), srd(SDBG)))
    a.e("s_mov_b64 exec, -1")
    a.lab("L_noat")
    a.stamp(3)
    for c in range(8): xdma(c, sWH, sOLD)
    for p in range(4):
        a.e("s_add_u32 m0, s%d, 0x%x" % (sWK, LL_WQ + p * 8192))
        a.e("s_mov_b32 s%d, 0x%x" % (sA, p * 128 * 1024))
        a.e("buffer_load_dwordx4 %s, %s, s%d offen lds" % (v(vDQ), srd(SWQ), sA))
    setup_ones(a)
    setup_attn(a)
    if Opt.touch & 2:
        a.e("s_lshl_b32 s%d, s%d, 1" % (sA, sG))
        a.e("s_add_u32 s%d, s%d, s%d" % (sA, sA, sM))
        a.e("s_sub_u32 s%d, s%d, 14" % (sA, sA))
        a.e("s_lshl_b32 s%d, s%d, 3" % (sA, sA))
        a.e("s_add_u32 s%d, s%d, s%d" % (sA, sA, sW))
        a.e("v_lshlrev_b32 v2, 15, v0")
        a.e("s_lshl_b32 s%d, s%d, 7" % (sA, sA))
        a.e("buffer_load_dword %s, v2, %s, s%d offen" % (v(vPOLL), srd(SWO), sA))
        a.e("buffer_load_dword %s, v2, %s, s%d offen" % (v(vPOLL), srd(SWD), sA))
    a.e("s_lshl_b32 s%d, s%d, 12" % (sA, sLO))
    a.e("v_add_u32 %s, s%d, %s" % (v(vXA), sA, v(vXA)))
    a.e("v_xor_b32 %s, 64, %s" % (v(vXA + 1), v(vXA)))
    a.e("v_add_u32 %s, 0x10000, %s" % (v(vXA + 2), v(vXA)))
    a.e("v_add_u32 %s, 0x10000, %s" % (v(vXA + 3), v(vXA + 1)))
    a.e("v_add_u32 %s, 0x%x, %s" % (v(vQA), LL_WQ, v(vQA)))
    a.e("s_waitcnt vmcnt(%d)" % (2 if Opt.touch & 2 else 0))
    a.e("s_barrier")
    def fr(k): return vFR + 12 * (k % 3)
    def reads(k):
        c, s = divmod(k, 2); f = fr(k)
        return [rd128(f + 4 * b, vXA + s + 2 * (c >> 2), (c & 3) * 16384 + b * 2048) for b in range(2)] + \
               [rdtr(f + 8, vQA, k * 2048), rdtr(f + 10, vQA, k * 2048 + 256)]
    for k in range(2):
        for r in reads(k): a.e(r)
    for k in range(16):
        a.e("s_waitcnt lgkmcnt(%d)" % (4 * min(1, 15 - k)))
        for b in range(2): a.e(mfma16(vAQ + 4 * b, fr(k) + 8, fr(k) + 4 * b, None if k == 0 else vAQ + 4 * b))
        if k + 2 < 16:
            for r in reads(k + 2): a.e(r)
    spin_counter(a, "kvl", False)
    a.e("s_barrier")
    for s, t in kv_first_loads(a): a.e(s)
    a.wait0()
    a.stamp(4)
    a.e("s_branch L_join")

def gelu_tile(a, ti, scalar=False):
    acc = vACC + 16 * ti
    t = vFR
    o = vFR + 8 + 4 * ti
    pk = lambda r: v(r, 2)
    if scalar:
        for i in range(8): a.e("v_mul_f32 %s, %s, %s" % (v(t + i), v(acc + i), v(acc + i)))
        for i in range(8): a.e("v_fma_f32 %s, %s, %s, %s" % (v(t + i), v(t + i), v(vC0 + 1), v(vC0)))
        for i in range(8): a.e("v_mul_f32 %s, %s, %s" % (v(t + i), v(t + i), v(acc + i)))
        for i in range(8): a.e("v_exp_f32 %s, %s" % (v(t + i), v(t + i)))
        for i in range(8): a.e("v_add_f32 %s, 1.0, %s" % (v(t + i), v(t + i)))
        for i in range(8): a.e("v_rcp_f32 %s, %s" % (v(t + i), v(t + i)))
        for i in range(8): a.e("v_mul_f32 %s, %s, %s" % (v(acc + i), v(acc + i), v(acc + 8 + i)))
        for i in range(8): a.e("v_mul_f32 %s, %s, %s" % (v(acc + i), v(acc + i), v(t + i)))
    R4, R8 = (range(0), range(0)) if scalar else (range(4), range(8))
    for i in R4: a.e("v_pk_mul_f32 %s, %s, %s" % (pk(t + 2 * i), pk(acc + 2 * i), pk(acc + 2 * i)))
    for i in R4: a.e("v_pk_fma_f32 %s, %s, %s, %s op_sel:[0,1,0] op_sel_hi:[1,1,0]" % (pk(t + 2 * i), pk(t + 2 * i), pk(vC0), pk(vC0)))
    for i in R4: a.e("v_pk_mul_f32 %s, %s, %s" % (pk(t + 2 * i), pk(t + 2 * i), pk(acc + 2 * i)))
    for i in R8: a.e("v_exp_f32 %s, %s" % (v(t + i), v(t + i)))
    for i in R4: a.e("v_pk_add_f32 %s, %s, 1.0 op_sel_hi:[1,0]" % (pk(t + 2 * i), pk(t + 2 * i)))
    for i in R8: a.e("v_rcp_f32 %s, %s" % (v(t + i), v(t + i)))
    for i in R4: a.e("v_pk_mul_f32 %s, %s, %s" % (pk(acc + 2 * i), pk(acc + 2 * i), pk(acc + 8 + 2 * i)))
    for i in R4: a.e("v_pk_mul_f32 %s, %s, %s" % (pk(acc + 2 * i), pk(acc + 2 * i), pk(t + 2 * i)))
    for i in range(4): a.e("v_cvt_pk_bf16_f32 %s, %s, %s" % (v(o + i), v(acc + 2 * i), v(acc + 2 * i + 1)))
    a.vmop("buffer_store_dwordx4 %s, %s, %s, s%d offen offset:%d sc1" % (v(o, 4), v(vHA), srd(SWS), sHST2 if ti >> 1 else sHST, (ti & 1) * 256), "hst")

def Yseg(hset, toggle=False, first=False, extra=False, last=False):
    out = []
    for t in range(2):
        pos = [int(x, 17) for x in (Opt.ypos0 if hset is None else Opt.ypos2 if extra else Opt.ypos1)]
        if last and t == 1: pos = [pos[0], 0, 11, pos[1]]
        S, Sn = vS + 16 * t, vS + 16 * (1 - t)
        K, V0, V1 = vKF + 4 * t, vV + 8 * t, vV + 8 * t + 4
        for e in range(1, 17):
            out.append("v_exp_f32 %s, %s" % (v(S + e - 1), v(S + e - 1)))
            if e == pos[0] and not (first and t == 0): out.append(smfmac(vO, V1, Sn + 8))
            if e == pos[1]: out.append(mfma(Sn, K, vQ, None))
            if e == pos[2]: out.append(smfmac(vO, V0, S))
            if hset is not None:
                if e == 13 and t == 1 and toggle:
                    out.append("v_xor_b32 %s, 0x4000, %s" % (v(vKVB), v(vKVB)))
                if e == pos[3]: out.append(mfma(vD + 16 * t, vWF + 4 * t, vH + 4 * hset, vD + 16 * t))
                if extra and e == pos[4]: out.append(mfma(vD + 16 * t, vFR + 16 + 4 * t, vH + 16 + 4 * hset, vD + 16 * t))
    return out

def kv_reads(off, vKVA=vKVA):
    r = [rd128(vKF, vKVA, off), rd128(vKF + 4, vKVA, off + 2048), "s_mov_b64 exec, %s" % sp(sVM)]
    for t in range(2):
        r += [rd128(vV + 8 * t, vKVA, off + 2048 * t + 1024), rd128(vV + 8 * t + 4, vKVA, off + 2048 * t + 1280)]
    r.append("s_mov_b64 exec, -1")
    return r
def wd_reads(dst, addr, off):
    r = []
    for c in range(2):
        r += [rdtr(dst + 4 * c, addr, off + 512 * c), rdtr(dst + 4 * c + 2, addr, off + 512 * c + 1024)]
    return r

def hord(): return [0, 2, 4, 6, 1, 3, 5, 7] if Opt.hord else list(range(8))
def wdrow(sg): return (32 * (sg >> 1) + 8 * (sg & 1)) * 1024

def attention(a, role, pre0=None):
    A = role == "A"
    def kvdma(u):
        a.vmop("s_add_u32 m0, s%d, 0x%x\ns_add_u32 s%d, s%d, 0x%x\nbuffer_load_dwordx4 %s, %s, s%d offen sc1 lds"
               % (sWK, L_KV + (u % 4) * 8192, sA, sWK, u * 8192, v(vL16), srd(SKV), sA), "kv%d" % u)
    def wddma(sg):
        a.vmop("s_add_u32 m0, s%d, 0x%x\ns_add_u32 s%d, s%d, 0x%x\nbuffer_load_dwordx4 %s, %s, s%d offen lds"
               % (sWK, L_WD + (sg % 4 if sg < 23 or sg == 27 else sg - 19) * 8192, sA, sWDOFF, wdrow(sg), v(vWDV), srd(SWD), sA), "wd%d" % sg)
    def wodma(j):
        a.vmop("s_add_u32 m0, s%d, 0x%x\ns_add_u32 s%d, s%d, 0x%x\nbuffer_load_dwordx4 %s, %s, s%d offen lds"
               % (sWK, L_WO + (7 - j) * 8192, sA, sB, hord()[j] * 16384, v(vWDV), srd(SWO), sA), "wo")
    def hload(sg, dst):
        a.vmop("s_add_u32 s%d, s%d, 0x%x\nbuffer_load_dwordx4 %s, %s, %s, s%d offen sc1"
               % (sA, sHOFF, sg * 1024, v(dst, 4), v(vL16), srd(SWS), sA), "h%d" % sg)
    for n in range(12):
        if not A and n == 0: a.e("s_barrier")
        if n % 2 == 1: astamp(a, 2 + n // 2)
        if n == Opt.pcyc: a.e("%s %s" % ("s_memrealtime" if Opt.prt else "s_memtime", sp(sSTAMP + 6)))
        tags = []
        if A and n % 2 == 1: tags.append("kv%d" % ((n + 1) // 2))
        if not A and n % 2 == 0: tags.append("kv%d" % ((n + 2) // 2))
        if n == Opt.hpub - (0 if A else 1): tags.append("hst")
        if n == 6: tags.append("wo")
        if n == 9: tags.append("wd27")
        if n == 11: tags.append("wd0")
        if n == 9 and A:
            a.e("s_cmp_lg_u32 s%d, 0" % sW)
            a.e("s_cbranch_scc1 L_hf_done")
            a.e("s_mov_b32 s%d, 0x4000" % sB)
            a.e("s_waitcnt vmcnt(0)")
            a.lab("L_hf_chk")
            a.e("v_cmp_ne_u32 vcc, 1, %s" % v(vPOLL))
            a.e("s_cbranch_vccz L_hf_done")
            a.e("s_sleep %d" % Opt.hsl)
            a.e("buffer_load_dword %s, %s, %s, 0 offen sc1" % (v(vPOLL), v(vFLA), srd(SWS)))
            a.e("s_sub_u32 s%d, s%d, 1" % (sB, sB))
            a.e("s_cmp_lg_u32 s%d, 0" % sB)
            a.e("s_waitcnt vmcnt(0)")
            a.e("s_cbranch_scc1 L_hf_chk")
            a.lab("L_hf_done")
        a.waitvm(tags)
        if n == 5 and Opt.diag == 3 and A:
            a.e("v_mov_b32 v2, s%d" % sSTAMP)
            a.e("s_lshl_b32 s%d, s2, 3" % sA)
            a.e("s_add_u32 s%d, s%d, s%d" % (sA, sA, sW))
            a.e("s_lshl_b32 s%d, s%d, 7" % (sA, sA))
            a.e("s_add_u32 s%d, s%d, 0x%x" % (sA, sA, WS_STAMP))
            a.e("s_mov_b64 exec, 1")
            a.vmop("buffer_store_dword v2, off, %s, s%d offset:12 sc1" % (srd(SWS), sA), "st")
            a.e("s_mov_b64 exec, -1")
        if n == Opt.hpub and not A:
            a.e("s_cmp_ge_u32 s%d, 14" % sM)
            a.e("s_cbranch_scc1 L_nohf")
            a.e("s_cmp_lg_u32 s%d, 4" % sW)
            a.e("s_cbranch_scc1 L_nohf")
            a.e("s_lshl_b32 s%d, s%d, 4" % (sA, sG))
            a.e("s_add_u32 s%d, s%d, s%d" % (sA, sA, sM))
            a.e("s_lshl_b32 s%d, s%d, 7" % (sA, sA))
            a.e("s_add_u32 s%d, s%d, 0x%x" % (sA, sA, WS_HFLAG))
            a.e("s_mov_b64 exec, 1")
            a.e("buffer_store_dword %s, off, %s, s%d sc1" % (v(vONE), srd(SWS), sA))
            a.e("s_mov_b64 exec, -1")
            a.lab("L_nohf")
        for r in kv_reads((n % 8) * 4096): a.e(r)
        if n == 8 and A:
            a.e("s_cmp_lg_u32 s%d, 0" % sW)
            a.e("s_cbranch_scc1 L_hf_nol")
            a.e("buffer_load_dword %s, %s, %s, 0 offen sc1" % (v(vPOLL), v(vFLA), srd(SWS)))
            a.lab("L_hf_nol")
        if n == 0:
            if A or Opt.hpub == 3:
                kvdma(2); kvdma(3)
            a.e("s_mov_b32 s%d, s%d" % (sC, sKQ))
            a.e("s_mul_i32 s%d, s%d, %d" % (sWDOFF, sC, 448 * 1024))
            a.e("s_and_b32 s%d, s%d, 1" % (sB, sW))
            a.e("s_lshl_b32 s%d, s%d, 14" % (sA, sB))
            a.e("s_add_u32 s%d, s%d, s%d" % (sWDOFF, sWDOFF, sA))
            a.e("s_lshl_b32 s%d, s%d, 1" % (sA, sT))
            a.e("s_add_u32 s%d, s%d, s%d" % (sA, sA, sB))
            a.e("s_mul_i32 s%d, s%d, 112" % (sA, sA))
            a.e("s_mul_i32 s%d, s%d, 28" % (sB, sC))
            a.e("s_add_u32 s%d, s%d, s%d" % (sA, sA, sB))
            a.e("s_lshl_b32 s%d, s%d, 10" % (sA, sA))
            a.e("s_add_u32 s%d, s%d, 0x%x" % (sHOFF, sA, WS_HF))
        if (A and n % 2 == 1 and n >= 3): kvdma((n + 5) // 2)
        if (not A and n % 2 == 0 and n >= 2): kvdma((n + 6) // 2)
        if 1 <= n <= 4:
            a.e("s_lshl_b32 s%d, s%d, 17" % (sB, sKQ))
            a.e("s_and_b32 s%d, s%d, 1" % (sC, sW))
            a.e("s_lshl_b32 s%d, s%d, 13" % (sC, sC))
            a.e("s_add_u32 s%d, s%d, s%d" % (sB, sB, sC))
            for j in (2 * n - 2, 2 * n - 1): wodma(j)
        for sg in {5: (27, 23, 24), 6: (25, 26, 0), 7: (1, 2)}.get(n, ()): wddma(sg)
        if n == 10:
            for r in wd_reads(vWX, vWDA, 3 * 8192): a.e(r)
        for j in ({7: (0,), 8: (1, 2), 9: (3, 4)} if A else {7: (0, 1), 8: (2, 3), 9: (4,)}).get(n, ()):
            for r in wd_reads(WOF[j], vWOA, (7 - j) * 8192): a.e(r)
        hs = {10: (0, 1, 23, 24), 11: (2, 25, 26, 27)} if A else {9: (0, 1, 23), 10: (2, 24), 11: (25, 26, 27)}
        if Opt.hlate: hs = {10: (0, 1), 11: (2,)} if A else {9: (0,), 10: (1,), 11: (2,)}
        for sg in hs.get(n, ()): hload(sg, vH + 4 * sg if sg < 4 else vHX if sg == 27 else vH + 4 * (sg - 19))
        if n == 11:
            a.e("s_add_u32 s%d, s%d, 0x%x" % (sHOFF, sHOFF, 3 * 1024))
            a.e("s_add_u32 s%d, s%d, 0x%x" % (sWDOFF, sWDOFF, wdrow(3)))
            a.e("s_add_u32 s%d, s%d, 0x%x" % (sKVOFF, sWK, 9 * 8192))
            a.e("s_mov_b32 s%d, 4" % sCNT)
            a.e("s_add_u32 s%d, s%d, 0x1000" % (sOLD2, sOLD))
            a.e("s_mov_b32 s%d, 0x%x" % (sLO_, f2u(2.0 ** -16)))
            a.e("s_mov_b32 s%d, 0x%x" % (sRNG, f2u(2.0 ** 100) - f2u(2.0 ** -16)))
        if n == 0 and pre0:
            pre0()
            a.stamp(5)
        a.e("s_waitcnt lgkmcnt(0)")
        if n == 0:
            if A: a.e("s_barrier")
            for x in Yseg(None, first=True): a.e(x)
            if not A: a.e("s_barrier")
            continue
        a.e("s_call_b64 %s, L_Y%s" % (sp(sRET), role))
        if n == 1:
            a.e("s_branch L_X1%s" % role)
            a.lab("L_Y%s" % role)
            if A: a.e("s_barrier")
            for x in Yseg(None): a.e(x)
            if not A: a.e("s_barrier")
            a.e("s_setpc_b64 %s" % sp(sRET))
            a.lab("L_X1%s" % role)
    assert not (Opt.hlate and Opt.nx)
    hl = {28: (27, 23), 29: (24, 25), 30: (26,)} if Opt.hlate else {}
    vm = list(a.vm); need = [63] * 8
    for n in range(12, 32):
        p = n % 4; q = p + (4 if n >= 28 else 0)
        tags = ["wd%d" % (n - 11), "h%d" % (n - 12)]
        if (p % 2 == 1) == A: tags.append("kv%d" % ((n + (1 if A else 2)) // 2))
        idx = [i for i, t in enumerate(vm) if t in tags]
        if idx: need[q] = min(need[q], len(vm) - 1 - max(idx))
        vm.append("wd%d" % (n - 9))
        vm.append("h%d" % (n - 9))
        if (p % 2 == 1) == A and n < 28: vm.append("kv%d" % ((n + (5 if A else 6)) // 2))
        vm += ["hx"] * len(hl.get(n, ()))
    a.lab("L_loop%s" % role)
    for q in range(8):
        p = q % 4; fin = q >= 4
        kv = (p % 2 == 1) == A and not fin
        if q == 0 and Opt.diag and Opt.kdiag == 2:
            a.e("s_cmp_lg_u32 s%d, 3" % sCNT)
            a.e("s_cbranch_scc1 L_nst%s" % role)
            astamp(a, 8)
            a.lab("L_nst%s" % role)
        a.e("s_waitcnt vmcnt(%d)" % need[q])
        for i, r in enumerate(kv_reads(p * 4096, vKVB)):
            if not (q == 7 and i == 1): a.e(r)
        if q <= 8 - Opt.nd:
            for r in wd_reads(vWF, vWDA, p * 8192): a.e(r)
        if fin and p < Opt.nx:
            for r in wd_reads(vFR + 16, vWDA, (4 + p) * 8192): a.e(r)
        if q == 7:
            for r in wd_reads(vFR, vWDA, (4 + Opt.nx) * 8192): a.e(r)
        a.e("s_add_u32 m0, s%d, 0x%x" % (sWK, L_WD + ((p + 3) % 4) * 8192))
        a.e("s_and_b32 s%d, s%d, 0x7fff" % (sA, sKVOFF))
        a.e("buffer_load_dwordx4 %s, %s, s%d offen lds" % (v(vWDV), srd(SWD), sWDOFF))
        a.e("s_add_u32 s%d, s%d, 0x%x" % (sWDOFF, sWDOFF, 0x2000 if p & 1 else 0x6000))
        a.e("buffer_load_dwordx4 %s, %s, %s, s%d offen sc1" % (v(vKF + 4 if q == 7 and Opt.nd == 2 else vH + 4 * ((p + 3) % 4), 4), v(vL16), srd(SWS), sHOFF))
        if kv: a.e("s_add_u32 m0, s%d, 0x%x" % (sA, L_KV))
        a.e("s_add_u32 s%d, s%d, 0x400" % (sHOFF, sHOFF))
        if kv:
            a.e("buffer_load_dwordx4 %s, %s, s%d offen sc1 lds" % (v(vL16), srd(SKV), sKVOFF))
            a.e("s_add_u32 s%d, s%d, 0x2000" % (sKVOFF, sKVOFF))
        for sg in (hl.get(24 + q, ()) if fin else ()):
            a.e("s_add_u32 s%d, s%d, 0x%x" % (sA, sHOFF, (sg - (16 + q)) * 1024))
            a.e("buffer_load_dwordx4 %s, %s, %s, s%d offen sc1" % (v(vHX if sg == 27 else vH + 4 * (sg - 19), 4), v(vL16), srd(SWS), sA))
        if q == 3:
            a.e("s_sub_u32 s%d, s%d, 1" % (sCNT, sCNT))
            a.e("s_cmp_lg_u32 s%d, 0" % sCNT)
        a.e("s_waitcnt lgkmcnt(0)")
        if A: a.e("s_barrier")
        for x in Yseg(p if q < 8 - Opt.nd else None, toggle=(q == 3), extra=(fin and p < Opt.nx), last=(q == 7)): a.e(x)
        if not A and q < 7: a.e("s_barrier")
        if q == 3: a.e("s_cbranch_scc1 L_loop%s" % role)
    a.e("s_nop 1")

def transition(a, role):
    A = role == "A"
    if A:
        a.vm = []
        a.lab("L_trA")
    else:
        a.lab("L_join")
        a.e("s_cmp_eq_u32 s%d, 0" % sHI)
        a.e("s_cbranch_scc1 L_trA")
        a.vmjoin = list(a.vm)
    def qfin():
        for i in range(4): a.e("v_cvt_pk_bf16_f32 %s, %s, %s" % (v(vQ + i), v(vAQ + 2 * i), v(vAQ + 2 * i + 1)))
        a.e("v_add_u32 %s, 0x%x, %s" % (v(vWOA), L_WO, v(vWDA)))
        a.e("v_permlane16_swap_b32 %s, %s" % (v(vQ), v(vQ + 2)))
        a.e("v_permlane16_swap_b32 %s, %s" % (v(vQ + 1), v(vQ + 3)))
    pre0 = None
    if A:
        a.e("s_setprio 1")
        a.e("s_cmp_ge_u32 s%d, 14" % sM)
        a.e("s_cbranch_scc1 L_nogA0")
        put(a, a.kvA[:1] + a.kvA[-1:])
        a.l.append(".p2align 3")
        for ti in range(Opt.gsc): gelu_tile(a, ti, True)
        a.lab("L_nogA0")
        qfin()
        a.waitvm(["k0", "kv0", "kv1"])
        a.e("s_setprio 0")
        a.e(mfma(vS, vK0, vQ, None))
        a.e("s_barrier")
        put(a, a.kvA[1:-1])
        def pre0():
            a.e("s_cmp_lt_u32 s%d, 14" % sM)
            a.e("s_cbranch_scc1 L_gA1")
            a.e("s_waitcnt vmcnt(0)")
            a.e("s_branch L_nogA1")
            a.l.append(".p2align 3")
            a.lab("L_gA1")
            for ti in range(Opt.gsc, 4): gelu_tile(a, ti)
            a.lab("L_nogA1")
            a.e("s_setprio 2")
    else:
        a.waitvm(["k0", "kv0", "kv1"])
        a.e("s_setprio 1")
        if Opt.hpub == 3:
            a.e("s_cmp_ge_u32 s%d, 14" % sM)
            a.l.append(".p2align 3")
            a.e("s_barrier")
            a.e("s_cbranch_scc1 L_nogB")
        else:
            a.e("s_barrier")
            for u in (2, 3):
                a.vmop("s_add_u32 m0, s%d, 0x%x\ns_add_u32 s%d, s%d, 0x%x\nbuffer_load_dwordx4 %s, %s, s%d offen sc1 lds"
                       % (sWK, L_KV + u * 8192, sA, sWK, u * 8192, v(vL16), srd(SKV), sA), "kv%d" % u)
            a.e("s_cmp_lt_u32 s%d, 14" % sM)
            a.e("s_cbranch_scc1 L_gB")
            a.e("s_waitcnt vmcnt(0)")
            a.e("s_branch L_nogB")
            a.l.append(".p2align 3")
            a.lab("L_gB")
        for ti in range(4): gelu_tile(a, ti)
        a.lab("L_nogB")
        qfin()
        a.e("s_nop 1")
        a.e(mfma(vS, vK0, vQ, None))
        a.stamp(5)
    attention(a, role, pre0)
    if A:
        a.stamp(6); astamp(a, 9); tstamp(a, 2)
        if Opt.diag and Opt.kdiag == 2: a.e("s_waitcnt lgkmcnt(0)")
        a.e(smfmac(vO, vV1L, vS + 24))
        a.e("s_setprio 0")
        a.e("s_cmp_eq_u32 s%d, 0" % sHI)
        a.e("s_nop 9")
        normalise(a, False)
        a.lab("L_fbretA")
        a.e("buffer_store_dwordx4 %s, %s, %s, s%d offen sc1" % (v(vPK, 4), v(vL16), srd(SWS), sOST))
        tstamp(a, 3)
        a.e("s_waitcnt vmcnt(1)")
        tstamp(a, 4)
        a.e("s_barrier")
        a.fetch(a, False)
        a.e("s_branch L_tl2")

def normalise(a, packed):
    t = vT0
    a.e("v_rcp_f32 %s, %s" % (v(t + 2), v(vO + 8)))
    a.e("s_nop 0")
    a.e("v_mul_f32_e64 %s, %s, %s" % (v(t + 2), v(t + 2), v(vGP)))
    if packed:
        for i in range(4): a.e("v_pk_mul_f32 %s, %s, %s op_sel_hi:[1,0]" % (v(vO + 2 * i, 2), v(vO + 2 * i, 2), v(t + 2, 2)))
        for i in range(4):
            a.e("v_pk_fma_f32 %s, %s, 0, %s op_sel_hi:[1,0,%d]" % (v(t, 2), v(vO + 2 * i, 2), v(t, 2) if i else v(vO + 8, 2), 1 if i else 0))
            a.e("v_cvt_pk_bf16_f32 %s, %s, %s" % (v(vPK + i), v(vO + 2 * i), v(vO + 2 * i + 1)))
        a.e("v_fmac_f32 %s, 0, %s" % (v(t), v(t + 1)))
    else:
        t = vO + 8
        for i in range(8): a.e("v_mul_f32 %s, %s, %s" % (v(vO + i), v(vT0 + 2), v(vO + i)))
        for i in range(4):
            a.e("v_fmac_f32 %s, 0, %s" % (v(t), v(vO + 2 * i)))
            a.e("v_cvt_pk_bf16_f32 %s, %s, %s" % (v(vPK + i), v(vO + 2 * i), v(vO + 2 * i + 1)))
            a.e("v_fmac_f32 %s, 0, %s" % (v(t), v(vO + 2 * i + 1)))
    a.e("v_subrev_u32 %s, s%d, %s" % (v(t), sLO_, v(t)))
    a.e("v_cmp_lt_u32 vcc, s%d, %s" % (sRNG, v(t)))
    a.e("s_branch L_fb" if Opt.force_fb else "s_cbranch_vccnz L_fb")

def tail(a):
    a.lab("L_tail")
    a.stamp(6)
    astamp(a, 9)
    if Opt.diag and Opt.kdiag == 2: a.e("s_waitcnt lgkmcnt(0)")
    tstamp(a, 2)
    a.e(smfmac(vO, vV1L, vS + 24))
    wf = [vFR, vFR + 8, vFR + 16]
    HORD = hord()
    def oload(j):
        return "buffer_load_dwordx4 %s, %s, %s, s%d offen offset:%d %s" % (
            v(vS + 4 * j, 4), v(vL16), srd(SWS), sOLD if HORD[j] < 4 else sOLD2, (HORD[j] % 4) * 1024, Opt.old_pol)
    a.oload = oload
    a.e("s_cmp_eq_u32 s%d, 0" % sHI)
    a.e("s_nop 10")
    a.l.append(".p2align 3")
    normalise(a, True)
    a.lab("L_fbret")
    a.e("buffer_store_dwordx4 %s, %s, %s, s%d offen sc1" % (v(vPK, 4), v(vL16), srd(SWS), sOST))
    tstamp(a, 3)
    aw = [vAW0, vWOA + 1, vWOA + 2, vWOA + 3]
    ar = [vAR0, vFLA]
    wo = WOF
    def fetch(o, scale):
        for j in range(8):
            o.e(oload(j))
            if j >= 5:
                for r in wd_reads(wo[j], vWOA, (7 - j) * 8192): o.e(r)
            if scale and j >= 4:
                for i in range(4 * j - 16, 4 * j - 12): o.e("v_mul_f32 %s, %s, %s" % (v(vD + i), v(vGC), v(vD + i)))
    def addrs(a):
        a.e("v_sub_f32 %s, 1.0, %s" % (v(vGC), v(vGC)))
        for j in range(1, 4): a.e("v_xor_b32 %s, %d, %s" % (v(aw[j]), 32 * j, v(aw[0])))
        a.e("v_xor_b32 %s, 16, %s" % (v(ar[1]), v(ar[0])))
        a.e("s_mov_b32 s%d, 0x2000" % sB)
    ol = Asm(); a.ool2 = ol.l
    a.e("s_waitcnt vmcnt(1)")
    tstamp(a, 4)
    a.e("s_barrier")
    a.lab("L_tl2")
    tstamp(a, 5)
    a.fetch = fetch
    fl = collect(addrs)
    slot = [4, 5, 6, 7, 0, 1, 2][Opt.nx:] + ([3] if Opt.nd == 2 else [])
    hreg = lambda sl: vKF + 4 if sl == 2 and Opt.nd == 2 else vH + 4 * sl
    inreg = [(vWX, vHX)] + ([(vWF, vH + 4 * (4 - Opt.nd))] if Opt.nd else [])
    rds = sum((wd_reads(wf[i % 3], vWDA, slot[i] * 8192) for i in range(len(slot))), [])
    done = 4
    for i in range(-len(inreg), len(slot)):
        for c in range(2):
            if i >= 1: a.e("s_waitcnt lgkmcnt(%d)" % (done - (4 * i + 2 * c + 2)))
            a.e(mfma(vD + 16 * c, inreg[i][0] + 4 * c, inreg[i][1], vD + 16 * c) if i < 0 else
                mfma(vD + 16 * c, wf[i % 3] + 4 * c, hreg(slot[i]), vD + 16 * c))
            if i < -1: continue
            if done < len(rds):
                for r in rds[done:done + 2]: a.e(r)
                done += 2
            else:
                put(a, fl[:2]); fl = fl[2:]
    assert not fl
    tstamp(a, 6)
    a.e("s_cbranch_scc0 L_tl3")
    a.l.append(".p2align 3")
    a.e("s_nop 7")
    a.e("s_nop 0")
    for i in range(16): a.e("v_pk_mul_f32 %s, %s, %s op_sel:[0,1] op_sel_hi:[1,1]" % (v(vD + 2 * i, 2), v(vD + 2 * i, 2), v(vGP, 2)))
    tstamp(a, 7)
    a.lab("L_tl4")
    tstamp(a, 8)
    ol.lab("L_tl3")
    ol.e("s_setprio 0")
    fetch(ol, False)
    tstamp(ol, 7)
    for i in range(32): ol.e("v_mul_f32 %s, %s, %s" % (v(vD + i), v(vGC), v(vD + i)))
    ol.e("s_waitcnt lgkmcnt(0)")
    def check(j):
        o = vS + 4 * j
        return ["s_waitcnt vmcnt(%d)" % (7 - j), "v_max3_u32 v2, %s, %s, %s" % (v(o), v(o + 1), v(o + 2)),
                "v_max_u32 v2, v2, %s" % v(o + 3), "v_cmp_eq_u32 vcc, -1, v2"]
    for j in range(Opt.bpre):
        for x in check(j): ol.e(x)
        ol.e("s_cbranch_vccnz L_bp%d" % j)
    ol.e("s_branch L_tl4")
    if Opt.bpre:
        for j in range(8):
            if j < Opt.bpre: ol.lab("L_bp%d" % j)
            ol.e(oload(j))
        ol.e("s_branch L_tl4")
    a.stamp(7)
    def check(j):
        o = vS + 4 * j
        return ["s_waitcnt vmcnt(%d)" % (7 - j), "v_max3_u32 v2, %s, %s, %s" % (v(o), v(o + 1), v(o + 2)),
                "v_max_u32 v2, v2, %s" % v(o + 3), "v_cmp_eq_u32 vcc, -1, v2"]
    a.check = check
    for x in check(0): a.e(x)
    for j in range(10):
        if j < 8:
            a.e("s_cbranch_vccnz L_ore%d" % j)
            a.lab("L_ook%d" % j)
            a.e(mfma(vD, wo[j], vS + 4 * j, vD))
        if j >= 2 and Opt.cfirst: a.e(mfma(vD + 16, wo[j - 2] + 4, vS + 4 * (j - 2), vD + 16))
        if j < 7:
            for x in check(j + 1): a.e(x)
        if j >= 2 and not Opt.cfirst: a.e(mfma(vD + 16, wo[j - 2] + 4, vS + 4 * (j - 2), vD + 16))
        if j in (7, 8): a.e("s_nop 4")
    wr = lambda c, j: "ds_write_b128 %s, %s offset:%d" % (v(aw[j]), v(vD + 16 * c + 4 * j, 4), 128 * c)
    a.stamp(8)
    tstamp(a, 9)
    for j in range(4): a.e(wr(0, j))
    a.e("s_nop 7")
    for j in range(4): a.e(wr(1, j))
    a.e("s_waitcnt lgkmcnt(0)")
    a.e("s_barrier")
    for p in range(4):
        for h in range(2): a.e(rd128(vS + 8 * p + 4 * h, ar[h], p * 8192))
    for p in range(1, 4):
        a.e("s_waitcnt lgkmcnt(%d)" % (6 - 2 * p))
        for i in range(4): a.e("v_pk_add_f32 %s, %s, %s" % (v(vS + 2 * i, 2), v(vS + 2 * i, 2), v(vS + 8 * p + 2 * i, 2)))
    for i in range(4): a.e("v_cvt_pk_bf16_f32 %s, %s, %s" % (v(vP + i), v(vS + 2 * i), v(vS + 2 * i + 1)))
    a.e("buffer_store_dwordx4 %s, %s, %s, s%d offen %s" % (v(vP, 4), v(vOUTA), srd(SOUT), sOUTO, Opt.out_pol))
    if Opt.probe >= 0:
        a.e("s_waitcnt vmcnt(0)")
        a.stamp(9)
        if Opt.probe != 9:
            a.e("s_cmp_ge_u32 s%d, 14" % sM)
            a.e("s_cbranch_scc%d L_end" % (0 if Opt.probe_l else 1))
        a.e("s_sub_u32 s%d, s%d, s%d" % (sA, sSTAMP + 4, sSTAMP))
        a.e("s_mul_i32 s%d, s%d, %d" % (sA, sA, Opt.probe_mul - 1))
        if Opt.pcyc >= 0:
            a.e("s_sub_u32 s%d, s%d, s%d" % (sA, sSTAMP + 8, sSTAMP + 6))
            if Opt.prt: a.e("s_mul_i32 s%d, s%d, 10" % (sA, sA))
            a.e("s_mov_b32 s%d, s%d" % (sSTAMP + 4, sSTAMP))
        a.e("s_min_u32 s%d, s%d, 100000" % (sA, sA))
        a.e("s_add_u32 s%d, s%d, 3800" % (sA, sA))
        if Opt.probe_r >= 0:
            a.e("s_cmp_eq_u32 s%d, 0x2000" % sB)
            a.e("s_cbranch_scc%d L_end" % Opt.probe_r)
        if Opt.probe_w >= 0:
            a.e("s_cmp_lg_u32 s%d, %d" % (sHI, Opt.probe_w))
            a.e("s_cbranch_scc1 L_end")
        if Opt.probe_x >= 0:
            a.e("s_and_b32 s0, s2, 7")
            a.e("s_cmp_lg_u32 s0, %d" % Opt.probe_x)
            a.e("s_cbranch_scc1 L_end")
        a.lab("L_probe")
        a.e("s_memrealtime s[0:1]")
        a.e("s_waitcnt lgkmcnt(0)")
        a.e("s_sub_u32 s0, s0, s%d" % (sSTAMP + 4))
        a.e("s_cmp_lt_u32 s0, s%d" % sA)
        a.e("s_cbranch_scc1 L_probe")
    if Opt.pin == 9:
        a.e("s_waitcnt vmcnt(0)")
        a.stamp(9)
    if Opt.diag in (1, 2):
        a.e("s_waitcnt vmcnt(0)")
        a.stamp(9)
        a.e("s_mov_b32 s%d, s%d" % (sSTAMP + 3, sSTAMP))
        a.e("s_mov_b32 s%d, s%d" % (sSTAMP, sB))
        a.e("s_getreg_b32 s%d, hwreg(HW_REG_XCC_ID)" % (sSTAMP + 1))
        for i in range(20): a.e("v_mov_b32 %s, s%d" % (v(vS + i), sSTAMP + i))
        a.e("s_lshl_b32 s%d, s2, 3" % sA)
        a.e("s_add_u32 s%d, s%d, s%d" % (sA, sA, sW))
        a.e("s_lshl_b32 s%d, s%d, 7" % (sA, sA))
        a.e("s_add_u32 s%d, s%d, 0x%x" % (sA, sA, WS_STAMP))
        a.e("s_mov_b64 exec, 1")
        for i in range(5): a.e("buffer_store_dwordx4 %s, off, %s, s%d offset:%d" % (v(vS + 4 * i, 4), srd(SWS), sA, 16 * i))
    a.lab("L_end")
    a.e("s_endpgm")
    a.l += a.ool2
    for j in range(8):
        a.lab("L_ore%d" % j)
        a.e("s_sub_u32 s%d, s%d, 1" % (sB, sB))
        a.e("s_cbranch_scc1 L_ogive%d" % j)
        if Opt.rwait: a.e("s_waitcnt vmcnt(0)")
        if Opt.rwait > 1: a.e("s_sleep %d" % Opt.rwait)
        for i in range(j, 8): a.e(a.oload(i))
        for x in a.check(j): a.e(x)
        a.e("s_cbranch_vccnz L_ore%d" % j)
        a.e("s_branch L_ook%d" % j)
        a.lab("L_ogive%d" % j)
        a.e("s_mov_b32 s%d, 0" % sB)
        a.e("s_branch L_ook%d" % j)

def fallback(a):
    a.lab("L_fb")
    m = vT0
    a.e("v_mov_b32 %s, 0xff800000" % v(m))
    a.e("s_mov_b32 s%d, 0" % sA)
    a.lab("L_fb1")
    a.e("buffer_load_dwordx4 %s, %s, %s, s%d offen sc1" % (v(vKF, 4), v(vL16), srd(SKV), sA))
    a.e("s_waitcnt vmcnt(0)")
    a.e(mfma(vS, vKF, vQ, None))
    a.e("s_add_u32 s%d, s%d, 2048" % (sA, sA))
    a.e("s_nop 11")
    for i in range(8): a.e("v_max3_f32 %s, %s, %s, %s" % (v(m), v(m), v(vS + 2 * i), v(vS + 2 * i + 1)))
    a.e("s_cmp_lt_u32 s%d, 0x20000" % sA)
    a.e("s_cbranch_scc1 L_fb1")
    a.e("v_mov_b32 %s, %s" % (v(m + 1), v(m)))
    a.e("s_nop 1")
    a.e("v_permlane32_swap_b32 %s, %s" % (v(m), v(m + 1)))
    a.e("s_nop 1")
    a.e("v_max_f32 %s, %s, %s" % (v(m), v(m), v(m + 1)))
    for i in range(16): a.e("v_sub_f32 %s, 0, %s" % (v(vS + 16 + i), v(m)))
    for i in range(16): a.e("v_mov_b32 %s, 0" % v(vO + i))
    a.e("s_mov_b32 s%d, 0" % sA)
    a.lab("L_fb2")
    a.e("s_add_u32 s%d, s%d, 0x%x" % (sB, sA, 63 * 2048))
    a.e("s_and_b32 s%d, s%d, 0x1ffff" % (sB, sB))
    a.e("buffer_load_dwordx4 %s, %s, %s, s%d offen sc1" % (v(vKF, 4), v(vL16), srd(SKV), sB))
    a.e("s_add_u32 s%d, s%d, 2048" % (sB, sA))
    a.e("s_and_b32 s%d, s%d, 0x1ffff" % (sB, sB))
    a.e("s_mov_b64 exec, %s" % sp(sVM))
    a.e("buffer_load_dwordx4 %s, %s, %s, s%d offen offset:1024 sc1" % (v(vV, 4), v(vL16), srd(SKV), sA))
    a.e("buffer_load_dwordx4 %s, %s, %s, s%d offen offset:1280 sc1" % (v(vV + 4, 4), v(vL16), srd(SKV), sB))
    a.e("s_mov_b64 exec, -1")
    a.e("s_waitcnt vmcnt(0)")
    a.e(mfma(vS, vKF, vQ, vS + 16))
    a.e("s_add_u32 s%d, s%d, 2048" % (sA, sA))
    a.e("s_nop 11")
    for i in range(16): a.e("v_exp_f32 %s, %s" % (v(vS + i), v(vS + i)))
    a.e("s_nop 2")
    a.e(smfmac(vO, vV, vS))
    a.e(smfmac(vO, vV + 4, vS + 8))
    a.e("s_cmp_lt_u32 s%d, 0x20000" % sA)
    a.e("s_cbranch_scc1 L_fb2")
    a.e("s_nop 11")
    a.e("v_rcp_f32 %s, %s" % (v(vT0 + 2), v(vO + 8)))
    a.e("s_cmp_eq_u32 s%d, 0" % sHI)
    a.e("v_mul_f32 %s, %s, %s" % (v(vT0 + 2), v(vT0 + 2), v(vGP)))
    for i in range(8): a.e("v_mul_f32 %s, %s, %s" % (v(vO + i), v(vT0 + 2), v(vO + i)))
    for i in range(4): a.e("v_cvt_pk_bf16_f32 %s, %s, %s" % (v(vPK + i), v(vO + 2 * i), v(vO + 2 * i + 1)))
    for i in range(4): a.e("v_min_u32 %s, -2, %s" % (v(vPK + i), v(vPK + i)))
    a.e("s_cbranch_scc1 L_fbretA")
    a.e("s_branch L_fbret")

def build():
    a = Asm()
    prologue(a)
    phase1_F(a)
    transition(a, "B")
    tail(a)
    a.l += a.ool
    transition(a, "A")
    phase1_L(a)
    fallback(a)
    a.lab("L_codeend")
    for i, x in enumerate(a.l):
        if " sc1" in x and "sc0" not in x and ((Opt.allsc & 1 and "buffer_store" in x) or (Opt.allsc & 2 and "buffer_load" in x)):
            a.l[i] = x.replace(" sc1", " sc0 sc1")
    il = a.l.index("L_light:")
    for i, x in enumerate(a.l):
        if x.endswith(" lds") and "sc1" not in x and " nt" not in x:
            if (Opt.ntx & 4 and (srd(SWD) in x or srd(SWO) in x)) or (Opt.ntx & 8 and i > il):
                a.l[i] = x[:-4] + " nt lds"
    head = open("cdna_kernels/%s.s.ref" % NAME).read().split("\n")
    hdr = [l for l in head if l.startswith(";") and "@launch" not in l and "Override" not in l and "grid=" not in l]
    out = hdr + ["; @launch grid=(256,1,1) block=(512,1,1) lds=%d" % LDS_BYTES,
                 '.amdgcn_target "amdgcn-amd-amdhsa--gfx950"', ".text", ".globl %s_kernel" % NAME, ".p2align 8",
                 ".type %s_kernel,@function" % NAME,
                 ".set CODE_PF_MAX, L_codeend - L_nopf - 4" if Opt.code_pf else "",
                 "%s_kernel:" % NAME]
    if Opt.diag: out += ["; mapmode %d" % (1 + 3 * bool(Opt.oddl))]
    out += ["; " + x for x in """One persistent launch, one workgroup per CU (generated by a script), 8 waves = two quartets that alternate on each SIMD.
Stage 1: 14 of every 16 workgroups compute gelu(x Wg) * (x Wu) for 128 tokens x 128 columns plus Q for two heads;
         the other two compute K, V and the mixing gate, publish them (counter in d_debug) and then their own Q.
Stage 2: attention for 128 tokens x 2 heads over all keys, S^T = K Q^T, exp2 in place, P V through sparse MFMAs that
         read the high halves of the fp32 probabilities; a row of ones in the V operand gives the row sums.
         The stand-in maximum is 0: it is accepted only if the row sum lies in [2^-16, 2^100] and every accumulator is
         finite, otherwise the wave redoes its rows with the true maximum (L_fb).
         The down projection of a 64 x 64 output tile runs in the same loop once the producers' flags are seen.
Stage 3: attention outputs are handed over through d_ws (cleared to a mark earlier in this launch), projected,
         mixed with the FFN branch, reduced through LDS and stored.""".split("\n")]
    out += a.l
    out += ['.section .rodata,"a"', ".p2align 6", ".amdhsa_kernel %s_kernel" % NAME,
            "  .amdhsa_next_free_vgpr %d" % NV, "  .amdhsa_next_free_sgpr 102", "  .amdhsa_accum_offset 256",
            "  .amdhsa_group_segment_fixed_size 0", "  .amdhsa_kernarg_size 104", "  .amdhsa_user_sgpr_count 2",
            "  .amdhsa_user_sgpr_kernarg_segment_ptr 1", "  .amdhsa_system_sgpr_workgroup_id_x 1", ".end_amdhsa_kernel", ""]
    return "\n".join(out)

if __name__ == "__main__":
    path = sys.argv[1]
    for kv in sys.argv[2:]:
        k, val = kv.split("=")
        cur = getattr(Opt, k)
        setattr(Opt, k, val if isinstance(cur, str) else type(cur)(int(val)))
    open(path, "w").write(build())
```

```python
import sys, struct, math

NAME = "gated_mix__grouped_kv_mqa__geglu_ffn__prompt"

class Opt:
    diag = 0
    mapmode = 1
    force_fb = False
    allsc = 0
    out_pol = "sc0 sc1"
    code_pf = True
    xrot = 0
    pregap = 0
    kal = 0
    xodd = 43
    xeven = 32
    hsl = 2
    lthr = 0
    klate = 0
    bpre = 0
    oddl = 1
    hlate = 1
    hpub = 3
    rwait = 1
    aearly = 0
    bidle = 1
    old_pol = "sc1"
    ypos0 = "36g"
    ypos1 = "36bg"
    ypos2 = "36cg9"
    nd = 1
    nx = 0
    tpos = 1
    cfirst = 0
    tch = 12
    stch = 0
    spos = 1
    tlb = 6
    olate = 1
    hrot = 0
    tbar = 0
    hord = 1
    cmap = 1
    kqx = 2
    oearly = 8
    conc = 1
    ghx = 1
    qa = "077777"
    qb = "588888"
    npre = 8
    stagger = 1
    rper = 2
    dma1 = 17
    kprio = 0
    dma0 = 8
    npd = 4
    kdiag = 0
    fillpre = 0
    fillper = 5
    gsc = 2
    sched = 0
    xmask = 1
    ntx = 0
    touch = 2
    rotg = 0
    rotm = 0
    startbar = 1
    pvz = 1
    pin = -1
    pin_ns = 60000
    probe = -1
    probe_x = -1
    probe_mul = 10
    probe_w = -1
    probe_r = -1
    pcyc = -1
    prt = 0
    probe_l = 0

def f2u(x): return struct.unpack("<I", struct.pack("<f", x))[0]

WS_KV = 0
WS_G = 128 * 1024
WS_HFLAG = 192 * 1024
WS_OF = 1 << 20
WS_HF = 4 << 20
WS_STAMP = 12 << 20
WS_SIZE = 16 << 20
K1 = 1024
L_G, L_U, L_X, L_WQ = 0, 48 * K1, 96 * K1, 144 * K1
L_QX = 32 * K1
L_WD, L_WO, L_KV = 0, 64 * K1, 128 * K1
L_RED = 96 * K1
LL_X, LL_W, LL_GATE, LL_WQ = 0, 128 * K1, 144 * K1, 128 * K1
LDS_BYTES = 160 * K1

SX, SWG, SWU, SWQ, SWS, SWD, SWO, SOUT, SDBG, SWKV, SGATE, SKV = 4, 8, 12, 16, 20, 24, 28, 32, 36, 40, 44, 64
SWV = 72
sTMPP = 48
sW, sHI, sLO, sG, sM, sT, sCB = 50, 51, 52, 53, 54, 55, 56
sWK = 57
sWH = 58
sVM = 60
sRET = 62
sA, sB, sC, sD = 68, 69, 70, 71
sOFFW, sOFFQ, sCH, sXP = 72, 73, 74, 75
sHOFF, sWDOFF, sKVOFF, sHXO, sCNT = 72, 73, 74, 75, 77
sOUTO, sLO_, sRNG = 59, 81, 75
sOLD2 = 58
sOST, sOLD, sHST = 78, 79, 80
sHST2 = 3
sRX, sRW, sM0B = 40, 41, 42
sKQ = 76
sHP = 81
sSTAMP = 82

def srd(b): return "s[%d:%d]" % (b, b + 3)
def sp(b): return "s[%d:%d]" % (b, b + 1)
def v(b, n=1): return "v%d" % b if n == 1 else "v[%d:%d]" % (b, b + n - 1)

vL16 = 1
vT0, vT1, vT2, vT3 = 2, 3, 4, 5
vGP, vGC = 6, 7
vKVA = 8
vWDA = 9
vWDV = 10
vONE = 11
vZERO = 12
vFLA = 13
vPOLL = 14
vGA = 15
vQ = 16
vK0 = 20
vV1L = 24
vIDX = 28
vAW0, vAR0, vOUTA = 30, 31, 12
vKVB = 29
vP = 32
vV = 40
vO = 56
vD = 72
vACC = 104
vS = 104
vH = 136
vAQ = vP
vF1 = 168
vKF = 168
vWF = 176
vWX = 224
vHX = 232
vPK = 20
WOF = [32, 208, 216, 240, 248, 40, 48, 56]
vWOA = 236
vFR = 184
vLX = 224
vXA = 240
vWA = 244
vQA = 248
vDX, vDG, vDQ = 249, 250, 251
vC0 = 252
vTID = 255
vHA = 254
NV = 256

class Asm:
    def __init__(self):
        self.l = []
        self.vm = []
        self.nstamp = 0
    def e(self, s):
        for x in s.split("\n"):
            x = x.strip()
            if x: self.l.append("    " + x)
    def lab(self, s): self.l.append(s + ":")
    def vmop(self, s, tag):
        self.e(s); self.vm.append(tag)
    def vmn(self, tags):
        if isinstance(tags, str): tags = [tags]
        last = -1
        for i, t in enumerate(self.vm):
            if t in tags: last = i
        return None if last < 0 else len(self.vm) - 1 - last
    def waitvm(self, tags, lgkm=False):
        n = self.vmn(tags)
        if n is None:
            if lgkm: self.e("s_waitcnt lgkmcnt(0)")
            return
        assert n < 64
        self.e("s_waitcnt vmcnt(%d)%s" % (n, " lgkmcnt(0)" if lgkm else ""))
        self.vm = self.vm[len(self.vm) - n:] if n else []
    def wait0(self, lgkm=False):
        self.e("s_waitcnt vmcnt(0)%s" % (" lgkmcnt(0)" if lgkm else "")); self.vm = []
    def stamp(self, i, real=False):
        if Opt.probe == i:
            self.e("s_waitcnt lgkmcnt(0)")
            self.e("s_memrealtime %s" % sp(sSTAMP + 4))
            if Opt.pcyc >= 0: self.e("%s %s" % ("s_memrealtime" if Opt.prt else "s_memtime", sp(sSTAMP + 8)))
            self.e("s_waitcnt lgkmcnt(0)")
        if Opt.pin == i:
            self.nstamp += 1
            self.e("s_waitcnt lgkmcnt(0)")
            self.e("s_cselect_b32 s%d, 1, 0" % (sSTAMP + 5))
            self.lab("L_pin%d" % self.nstamp)
            self.e("s_memrealtime s[0:1]")
            self.e("s_waitcnt lgkmcnt(0)")
            self.e("s_sub_u32 s0, s0, s%d" % sSTAMP)
            self.e("s_cmp_lt_u32 s0, %d" % (Opt.pin_ns // 10))
            self.e("s_cbranch_scc1 L_pin%d" % self.nstamp)
            self.e("s_cmp_lg_u32 s%d, 0" % (sSTAMP + 5))
        if Opt.diag and not Opt.kdiag and (Opt.diag == 1 or i == 9):
            self.e("s_waitcnt lgkmcnt(0)")
            self.e("s_memtime %s" % sp(sSTAMP + 2 * i))
            self.e("s_memrealtime %s" % sp(sRET))
            self.e("s_waitcnt lgkmcnt(0)")
            self.e("s_mov_b32 s%d, s%d" % (sSTAMP + 2 * i + 1, sRET))

def astamp(a, i):
    if Opt.diag and Opt.kdiag == 2: a.e("s_memtime %s" % sp(sSTAMP + 2 * i))

def tstamp(a, i):
    if Opt.diag and Opt.kdiag == 3: a.e("s_memtime %s" % sp(sSTAMP + 2 * i))

def kstamp(a, i):
    if Opt.probe == 18 + i: a.e("s_memrealtime %s" % sp(sSTAMP + 4))
    if Opt.diag and Opt.kdiag == 1: a.e("s_memtime %s" % sp(sSTAMP + 2 * i))

def mfma(d, a, b, c):
    return "v_mfma_f32_32x32x16_bf16 %s, %s, %s, %s" % (v(d, 16), v(a, 4), v(b, 4), "0" if c is None else v(c, 16))
def smfmac(d, a, b):
    return "v_smfmac_f32_32x32x32_bf16 %s, %s, %s, %s" % (v(d, 16), v(a, 4), v(b, 8), v(vIDX))
def mfma16(d, a, b, c):
    return "v_mfma_f32_16x16x32_bf16 %s, %s, %s, %s" % (v(d, 4), v(a, 4), v(b, 4), "0" if c is None else v(c, 4))
def rd128(d, a, off):
    assert 0 <= off < 65536
    return "ds_read_b128 %s, %s offset:%d" % (v(d, 4), v(a), off)
def rdtr(d, a, off):
    assert 0 <= off < 65536
    return "ds_read_b64_tr_b16 %s, %s offset:%d" % (v(d, 2), v(a), off)

def interleave(mf, fill, per=2):
    out = []
    fill = list(fill)
    for i, m in enumerate(mf):
        out.append(m)
        if i < len(mf) - 1:
            out += fill[:per]; fill = fill[per:]
    return out + fill

def srd_words(a, regs):
    sizes = {SX: 2048 * 1024, SWG: 512 * 3584, SWU: 512 * 3584, SWQ: 512 * 1024, SWS: WS_SIZE, SWKV: 16384, SWV: 16384,
             SGATE: 1024, SWD: 1792 * 1024, SWO: 512 * 1024, SOUT: 2048 * 1024, SDBG: 256, SKV: 128 * 1024}
    for reg in regs:
        a.e("s_mov_b32 s%d, 0x%x" % (reg + 2, sizes[reg]))
        a.e("s_mov_b32 s%d, 0x20000" % (reg + 3))

def ptr_loads(a, lst):
    for reg, off in lst: a.e("s_load_dwordx2 %s, s[0:1], %d" % (sp(reg), off))

def prologue(a):
    if Opt.diag or Opt.pin >= 0 or Opt.probe >= 0:
        a.e("s_memrealtime %s" % sp(sSTAMP))
        if Opt.diag in (1, 2): a.e("s_memtime %s" % sp(sSTAMP + 2))
    ptr_loads(a, ((SX, 0), (SWG, 48), (SWU, 56), (SWQ, 8)))
    if Opt.probe == 1: a.stamp(1)
    a.e("v_lshrrev_b32 v2, 6, v0")
    if Opt.code_pf:
        a.e("s_getpc_b64 %s" % sp(sRET))
        a.lab("L_nopf")
        a.e("s_and_b32 s%d, s2, -8" % sA)
        a.e("v_add_lshl_u32 v4, v2, s%d, 7" % sA)
        a.e("v_mov_b32 v5, 0")
        a.e("v_min_u32 v4, CODE_PF_MAX, v4")
        a.e("v_lshl_add_u64 v[4:5], v[4:5], 0, %s" % sp(sRET))
        a.e("global_load_dword %s, v[4:5], off" % v(vPOLL))
    if not Opt.klate: a.e("s_load_dwordx8 s[%d:%d], s[0:1], 64" % (SOUT, SOUT + 7))
    a.e("v_readfirstlane_b32 s%d, v2" % sW)
    if not Opt.klate: ptr_loads(a, ((SWS, 96),) if Opt.diag or Opt.probe >= 0 else ((SWS, 96), (SWO, 32)))
    a.e("s_cmpk_ge_u32 s2, 256")
    a.e("s_cbranch_scc1 L_end")
    if Opt.oddl:
        a.e("s_bfe_u32 s%d, s2, 0x10002" % sD)
        a.e("s_bfe_u32 s%d, s2, 0x30003" % sA)
        a.e("s_lshl3_add_u32 s%d, s%d, s%d" % (sG, sD, sA))
        a.e("s_and_b32 s%d, s2, 3" % sA)
        if Opt.oddl == 2: a.e("s_xor_b32 s%d, s%d, 1" % (sA, sA))
        a.e("s_lshr_b32 s%d, s2, 6" % sB)
        a.e("s_lshl2_add_u32 s%d, s%d, s%d" % (sHP, sA, sB))
        a.e("s_lshr_b32 s%d, s%d, 3" % (sB, sHP))
        a.e("s_sub_u32 s%d, s%d, s%d" % (sM, sHP, sB))
        a.e("s_lshl_b32 s%d, s%d, 10" % (sWK, sW))
        a.e("s_andn2_b32 s%d, 7, s%d" % (sA, sHP))
        a.e("s_cbranch_scc0 L_light")
    else:
        a.e("s_and_b32 s%d, s2, 1" % sD)
        a.e("s_bfe_u32 s%d, s2, 0x30003" % sA)
        a.e("s_lshl3_add_u32 s%d, s%d, s%d" % (sG, sD, sA))
        a.e("s_bfe_u32 s%d, s2, 0x20001" % sA)
        a.e("s_lshr_b32 s%d, s2, 6" % sB)
        a.e("s_lshl2_add_u32 s%d, s%d, s%d" % (sM, sA, sB))
        a.e("s_mov_b32 s%d, s%d" % (sHP, sM))
        a.e("s_lshl_b32 s%d, s%d, 10" % (sWK, sW))
        a.e("s_cmp_ge_u32 s%d, 14" % sM)
        a.e("s_cbranch_scc1 L_light")

def xvoff(a, t):
    a.e("v_lshrrev_b32 v2, 4, %s" % v(t))
    a.e("v_xor_b32 v2, v2, %s" % v(t))
    a.e("v_and_b32 v2, 7, v2")
    a.e("s_lshl_b32 s%d, s%d, 17" % (sA, sG))
    a.e("v_lshl_add_u32 v2, v2, 4, s%d" % sA)
    a.e("v_lshrrev_b32 v3, 3, %s" % v(t))
    a.e("v_lshl_add_u32 %s, v3, 10, v2" % v(vDX))

def setup_ids(a):
    if Opt.klate:
        ptr_loads(a, ((SWS, 96), (SKV, 96), (SDBG, 88), (SWD, 64), (SWO, 32), (SOUT, 80)))
    else:
        a.e("s_mov_b64 %s, %s" % (sp(SKV), sp(SWS)))
        a.e("s_mov_b64 %s, %s" % (sp(SWD), sp(SOUT)))
        a.e("s_mov_b64 %s, %s" % (sp(SOUT), sp(SOUT + 4)))
        a.e("s_mov_b64 %s, %s" % (sp(SDBG), sp(SOUT + 6)))
    a.e("v_and_b32 v0, 63, v0")
    a.e("v_lshlrev_b32 %s, 4, v0" % v(vL16))
    if Opt.oddl:
        a.e("s_and_b32 s%d, s2, 7" % sA)
        a.e("s_xor_b32 s%d, s%d, 4" % (sA, sA))
    else:
        a.e("s_andn2_b32 s%d, 1, s2" % sA)
        a.e("s_bfe_u32 s%d, s2, 0x20001" % sB)
        a.e("s_lshl2_add_u32 s%d, s%d, s%d" % (sA, sA, sB))
    a.e("s_bfe_u32 s%d, s2, 0x20003" % sB)
    a.e("s_lshl2_add_u32 s%d, s%d, s%d" % (sT, sA, sB))
    a.e("s_lshr_b32 s%d, s2, 5" % sCB)

def setup_rd(a):
    a.e("s_lshr_b32 s%d, s%d, 2" % (sHI, sW))
    a.e("s_and_b32 s%d, s%d, 3" % (sLO, sW))
    a.e("v_and_b32 v2, 15, v0")
    a.e("v_lshrrev_b32 v3, 4, v0")
    a.e("v_bfe_u32 v4, v0, 1, 3")
    a.e("v_xor_b32 v4, v4, v3")
    a.e("v_lshlrev_b32 v4, 4, v4")
    a.e("v_lshl_add_u32 %s, v2, 7, v4" % v(vXA))
    a.e("v_bfe_u32 v2, v0, 2, 2")
    a.e("v_and_b32 v4, 3, v0")
    a.e("v_lshl_add_u32 %s, v3, 3, v2" % v(vQA))
    a.e("v_lshlrev_b32 %s, 6, %s" % (v(vQA), v(vQA)))
    a.e("v_xor_b32 v5, s%d, v3" % sHI)
    a.e("v_and_b32 v5, 1, v5")
    a.e("v_lshl_add_u32 %s, v5, 5, %s" % (v(vQA), v(vQA)))
    a.e("v_lshl_add_u32 %s, v4, 3, %s" % (v(vQA), v(vQA)))

def setup_oclr(a):
    srd_words(a, [SWS, SKV, SDBG])
    a.e("s_mov_b32 s%d, 0xffff" % sVM)
    a.e("s_mov_b32 s%d, 0xffff" % (sVM + 1))
    a.e("s_lshl_b32 s%d, s%d, 2" % (sA, sG))
    a.e("s_add_u32 s%d, s%d, s%d" % (sA, sA, sLO))
    a.e("s_lshl_b32 s%d, s%d, 5" % (sB, sA))
    a.e("s_lshl_b32 s%d, s%d, 1" % (sC, sHP))
    a.e("s_add_u32 s%d, s%d, s%d" % (sB, sB, sC))
    a.e("s_add_u32 s%d, s%d, s%d" % (sB, sB, sHI))
    a.e("s_lshl_b32 s%d, s%d, 10" % (sB, sB))
    a.e("s_add_u32 s%d, s%d, 0x%x" % (sOST, sB, WS_OF))
    for i in range(4): a.e("v_mov_b32 %s, -1" % v(vQ + i))
    a.vmop("buffer_store_dwordx4 %s, %s, %s, s%d offen sc1" % (v(vQ, 4), v(vL16), srd(SWS), sOST), "oclr")
    a.e("v_mov_b32 %s, 1" % v(vONE))
    a.e("v_mov_b32 %s, 0" % v(vZERO))
    a.e("v_and_b32 %s, 31, v0" % v(vGA))
    a.e("v_lshlrev_b32 %s, 2, %s" % (v(vGA), v(vGA)))

def collect(fn):
    t = Asm(); t.marks = {}
    def vmop(s_, tag):
        t.e(s_); t.marks[len(t.l) - 1] = tag
    t.vmop = vmop
    fn(t)
    return [(x, t.marks.get(i)) for i, x in enumerate(t.l)]
def put(a, items):
    for x, tag in items:
        if tag: a.vmop(x, tag)
        else: a.e(x)

def setup_ones(a):
    a.e("s_mov_b32 s%d, 0x110000" % sA)
    a.e("s_mov_b32 s%d, 0x110000" % sB)
    a.e("v_mov_b32 v3, 0x3f803f80")
    a.e("v_cndmask_b32 %s, 0, v3, %s" % (v(vV1L), sp(sA)))
    for i in range(1, 4): a.e("v_mov_b32 %s, %s" % (v(vV1L + i), v(vV1L)))
    for i in range(16): a.e("v_mov_b32 %s, %s" % (v(vV + i), v(vV1L)))

def setup_attn(a):
    srd_words(a, [SWD, SWO, SOUT])
    a.e("s_lshl_b32 s%d, s%d, 2" % (sA, sG))
    a.e("s_add_u32 s%d, s%d, s%d" % (sA, sA, sLO))
    a.e("s_mul_i32 s%d, s%d, 112" % (sB, sA))
    a.e("s_lshl_b32 s%d, s%d, 3" % (sC, sM))
    a.e("s_add_u32 s%d, s%d, s%d" % (sB, sB, sC))
    a.e("s_lshl_b32 s%d, s%d, 2" % (sC, sHI))
    a.e("s_add_u32 s%d, s%d, s%d" % (sB, sB, sC))
    a.e("s_and_b32 s%d, s%d, 1" % (sC, sLO))
    a.e("s_lshl_b32 s%d, s%d, 1" % (sC, sC))
    a.e("s_add_u32 s%d, s%d, s%d" % (sB, sB, sC))
    a.e("s_lshl_b32 s%d, s%d, 10" % (sB, sB))
    a.e("s_add_u32 s%d, s%d, 0x%x" % (sHST, sB, WS_HF))
    a.e("s_mul_i32 s%d, s%d, %d" % (sC, sC, 112 * 1024))
    a.e("s_sub_u32 s%d, %d, s%d" % (sC, 112 * 1024, sC))
    a.e("s_add_u32 s%d, s%d, s%d" % (sHST2, sHST, sC))
    a.e("v_bfe_u32 v2, v0, 2, 2")
    a.e("v_lshrrev_b32 v3, 5, v0")
    a.e("v_lshl_add_u32 v2, v3, 2, v2")
    a.e("v_lshlrev_b32 v2, 6, v2")
    a.e("v_bfe_u32 v3, v0, 4, 1")
    a.e("v_lshl_add_u32 v2, v3, 5, v2")
    a.e("v_and_b32 v3, 3, v0")
    a.e("v_lshl_add_u32 v2, v3, 3, v2")
    a.e("s_lshr_b32 s%d, s%d, 1" % (sA, sW))
    a.e("s_lshl_b32 s%d, s%d, 11" % (sA, sA))
    a.e("v_add_u32 %s, s%d, v2" % (v(vWDA), sA))
    a.e("v_add_u32 %s, 0x%x, %s" % (v(vKVA), L_KV, v(vL16)))
    a.e("v_add_u32 %s, 0x%x, %s" % (v(vKVB), L_KV + 0x4000, v(vL16)))
    a.e("v_bfe_u32 v2, v0, 2, 3")
    a.e("v_lshlrev_b32 v2, 10, v2")
    a.e("v_lshrrev_b32 v3, 5, v0")
    a.e("v_lshl_add_u32 v2, v3, 6, v2")
    a.e("v_and_b32 v3, 3, v0")
    a.e("v_lshl_add_u32 v2, v3, 4, v2")
    a.e("s_lshl_b32 s%d, s%d, 7" % (sB, sCB))
    a.e("v_add_u32 %s, s%d, v2" % (v(vWDV), sB))
    a.e("v_min_u32 v2, 13, v0")
    a.e("v_lshlrev_b32 v2, 7, v2")
    a.e("s_lshr_b32 s%d, s%d, 1" % (sA, sT))
    a.e("s_lshl_b32 s%d, s%d, 11" % (sA, sA))
    a.e("s_add_u32 s%d, s%d, 0x%x" % (sA, sA, WS_HFLAG))
    a.e("v_add_u32 %s, s%d, v2" % (v(vFLA), sA))
    a.e("s_lshl_b32 s%d, s%d, 1" % (sA, sT))
    a.e("s_and_b32 s%d, s%d, 1" % (sB, sW))
    a.e("s_add_u32 s%d, s%d, s%d" % (sA, sA, sB))
    a.e("s_lshl_b32 s%d, s%d, 15" % (sB, sA))
    a.e("s_lshr_b32 s%d, s%d, 1" % (sKQ, sW))
    if Opt.kqx == 2:
        a.e("s_and_b32 s%d, s%d, 2" % (sKQ, sW))
        a.e("s_add_u32 s%d, s%d, s%d" % (sKQ, sKQ, sHI))
    if Opt.kqx == 1:
        a.e("s_lshl_b32 s%d, s%d, 1" % (sC, sCB))
        a.e("s_and_b32 s%d, s%d, 2" % (sC, sC))
        a.e("s_xor_b32 s%d, s%d, s%d" % (sKQ, sKQ, sC))
    a.e("s_lshl_b32 s%d, s%d, 13" % (sC, sKQ))
    a.e("s_add_u32 s%d, s%d, s%d" % (sB, sB, sC))
    a.e("s_add_u32 s%d, s%d, 0x%x" % (sOLD, sB, WS_OF))
    a.e("v_and_b32 v2, 31, v0")
    a.e("v_lshrrev_b32 v3, 5, v0")
    a.e("v_and_b32 v4, 7, v0")
    a.e("v_xor_b32 v3, v3, v4")
    a.e("v_lshlrev_b32 v3, 4, v3")
    a.e("v_lshl_add_u32 v3, v2, 8, v3")
    a.e("s_and_b32 s%d, s%d, 1" % (sB, sW))
    a.e("s_lshl_b32 s%d, s%d, 15" % (sB, sB))
    a.e("s_lshr_b32 s%d, s%d, 1" % (sC, sW))
    a.e("s_lshl_b32 s%d, s%d, 13" % (sD, sC))
    a.e("s_add_u32 s%d, s%d, s%d" % (sOUTO, sD, sB))
    a.e("s_add_u32 s%d, s%d, 0x%x" % (sD, sOUTO, L_RED))
    a.e("v_add_u32 %s, s%d, v3" % (v(vAW0), sD))
    a.e("v_lshrrev_b32 v2, 3, v0")
    a.e("v_lshlrev_b32 v3, 1, v4")
    a.e("v_xor_b32 v3, v3, v2")
    a.e("v_lshlrev_b32 v3, 4, v3")
    a.e("v_lshl_add_u32 v3, v2, 8, v3")
    a.e("s_lshl_b32 s%d, s%d, 11" % (sD, sC))
    a.e("s_add_u32 s%d, s%d, s%d" % (sD, sD, sB))
    a.e("s_add_u32 s%d, s%d, 0x%x" % (sD, sD, L_RED))
    a.e("v_add_u32 %s, s%d, v3" % (v(vAR0), sD))
    a.e("v_lshlrev_b32 v4, 4, v4")
    a.e("v_lshl_add_u32 %s, v2, 10, v4" % v(vOUTA))
    a.e("s_lshl_b32 s%d, s%d, 16" % (sC, sT))
    a.e("s_add_u32 s%d, s%d, s%d" % (sOUTO, sOUTO, sC))
    a.e("s_lshl_b32 s%d, s%d, 7" % (sC, sCB))
    a.e("s_add_u32 s%d, s%d, s%d" % (sOUTO, sOUTO, sC))
    a.e("v_mov_b32 %s, 0xdddd" % v(vIDX))
    a.e("v_lshrrev_b32 v2, 4, v0")
    a.e("v_lshl_add_u32 %s, v2, 8, %s" % (v(vHA), v(vL16)))
    for i in range(16): a.e("v_mov_b32 %s, 0" % v(vO + i))
    for i in range(32): a.e("v_mov_b32 %s, 0" % v(vD + i))
    c0 = -2.0 * math.sqrt(2.0 / math.pi) * math.log2(math.e)
    a.e("v_mov_b32 %s, 0x%x" % (v(vC0), f2u(c0)))
    a.e("v_mov_b32 %s, 0x%x" % (v(vC0 + 1), f2u(c0 * 0.044715)))

def kv_first_loads(a, quartet=False):
    it = []
    for o in (range(0, 16384, 4096) if quartet else range(0, 16384, 8192)):
        b = sWH if quartet else sWK
        it.append(("s_add_u32 m0, s%d, 0x%x\ns_add_u32 s%d, s%d, 0x%x\nbuffer_load_dwordx4 %s, %s, s%d offen sc1 lds"
                   % (b, L_KV + o, sA, b, o, v(vL16), srd(SKV), sA), "kv%d" % (o >> 13)))
    it.append(("s_mov_b32 s%d, 0x%x\nbuffer_load_dwordx4 %s, %s, %s, s%d offen sc1"
               % (sA, 63 * 2048, v(vK0, 4), v(vL16), srd(SKV), sA), "k0"))
    it.append(("s_mov_b64 exec, %s\nbuffer_load_dwordx4 %s, %s, %s, 0 offen offset:%d sc1\ns_mov_b64 exec, -1"
               % (sp(sVM), v(vV1L, 4), v(vL16), srd(SKV), 1024 + 256), "k0"))
    it.append(("s_lshl_b32 s%d, s%d, 2\ns_add_u32 s%d, s%d, s%d\ns_lshl_b32 s%d, s%d, 7\ns_add_u32 s%d, s%d, 0x%x\n"
               "buffer_load_dword %s, %s, %s, s%d offen sc1"
               % (sA, sG, sA, sA, sLO, sA, sA, sA, sA, WS_G, v(vGP), v(vGA), srd(SWS), sA), "k0"))
    it.append(("s_lshl_b32 s%d, s%d, 1\ns_and_b32 s%d, s%d, 1\ns_add_u32 s%d, s%d, s%d\ns_lshl_b32 s%d, s%d, 7\ns_add_u32 s%d, s%d, 0x%x\n"
               "buffer_load_dword %s, %s, %s, s%d offen sc1"
               % (sA, sT, sB, sW, sA, sA, sB, sA, sA, sA, sA, WS_G, v(vGC), v(vGA), srd(SWS), sA), "k0"))
    return it

def spin_counter(a, name, first_loaded, wave=0):
    a.e("s_cmp_lg_u32 s%d, %d" % (sW, wave))
    a.e("s_cbranch_scc1 L_%s_done" % name)
    a.e("s_mov_b32 s%d, 0x4000" % sB)
    if first_loaded: a.e("s_branch L_%s_chk" % name)
    a.lab("L_%s_re" % name)
    a.e("buffer_load_dword %s, off, %s, 0 sc1" % (v(vPOLL), srd(SDBG)))
    a.e("s_waitcnt vmcnt(0)")
    a.lab("L_%s_chk" % name)
    a.e("v_readfirstlane_b32 s%d, %s" % (sA, v(vPOLL)))
    a.e("s_cmp_ge_u32 s%d, 32" % sA)
    a.e("s_cbranch_scc1 L_%s_done" % name)
    a.e("s_sleep 4")
    a.e("s_sub_u32 s%d, s%d, 1" % (sB, sB))
    a.e("s_cmp_lg_u32 s%d, 0" % sB)
    a.e("s_cbranch_scc1 L_%s_re" % name)
    a.lab("L_%s_done" % name)

def phase1_F(a):
    SCHED = {1: ["01423567", "10253467", "23016457", "32104756"],
             2: ["02134657", "01324576", "10243567", "10235467"],
             3: ["01324657", "01243576", "12035467", "20134567"],
             5: ["01243567", "10325467", "23014657", "32104576"],
             6: ["01243567", "10325467", "01234657", "10324576"],
             7: ["01234567", "10235476", "01234567", "10235476"],
             8: ["01234567", "10243657", "01234567", "10243657"],
             4: ["02143657", "10325476", "02143657", "10325476"]}
    tabs = SCHED[Opt.sched] if Opt.sched else ["".join(str(c ^ (p & Opt.xmask)) for c in range(8)) for p in range(4)]
    for t_ in tabs: assert sorted(t_) == list("01234567")
    num = [int(t_[::-1], 16) for t_ in tabs]
    def table(a):
        a.e("s_add_u32 s%d, s%d, s%d" % (sA, sG, sHP))
        a.e("s_mov_b32 s%d, 0x%x" % (sXP, num[0]))
        a.e("s_mov_b32 s%d, 0x%x" % (sB, num[2]))
        a.e("s_bitcmp1_b32 s%d, 0" % sA)
        a.e("s_cselect_b32 s%d, 0x%x, s%d" % (sXP, num[1], sXP))
        a.e("s_cselect_b32 s%d, 0x%x, s%d" % (sB, num[3], sB))
        a.e("s_bitcmp1_b32 s%d, 1" % sA)
        a.e("s_cselect_b32 s%d, s%d, s%d" % (sXP, sB, sXP))
        if Opt.ghx:
            a.e("s_bitcmp1_b32 s%d, 3" % sG)
            a.e("s_cselect_b32 s%d, 0x44444444, 0" % sB)
            a.e("s_xor_b32 s%d, s%d, s%d" % (sXP, sXP, sB))
    fo, fw = {"0000": (0, 0), "0101": (0, 1), "0011": (1, 1), "0123": (0, 2)}["".join(t_[0] for t_ in tabs)]
    a.e("s_add_u32 s%d, s%d, s%d" % (sA, sG, sHP))
    a.e("s_bfe_u32 s%d, s%d, 0x%x" % (sCH, sA, fw << 16 | fo))
    if Opt.ghx: a.e("s_lshl2_add_u32 s%d, s%d, s%d" % (sCH, sD, sCH))
    a.e("s_and_b32 s%d, s%d, 0xc00" % (sWH, sWK))
    a.e("v_and_b32 %s, 0xff, v0" % v(vTID))

    def wvoff(a):
        a.e("v_lshrrev_b32 v2, 4, %s" % v(vTID))
        a.e("v_lshrrev_b32 v3, 5, %s" % v(vTID))
        a.e("v_bfi_b32 v3, 3, v2, v3")
        a.e("v_lshlrev_b32 v3, 1, v3")
        a.e("v_xor_b32 v3, v3, %s" % v(vTID))
        a.e("v_and_b32 v3, 15, v3")
        a.e("s_lshl_b32 s%d, s%d, 8" % (sA, sM))
        a.e("v_lshl_add_u32 v3, v3, 4, s%d" % sA)
        a.e("v_mul_u32_u24 v2, 3584, v2")
        a.e("v_add_u32 %s, v2, v3" % v(vDG))
    def qvoff(a):
        a.e("v_lshrrev_b32 v2, 4, %s" % v(vTID))
        a.e("v_and_b32 v2, 2, v2")
        a.e("v_xor_b32 v2, v2, %s" % v(vTID))
        a.e("v_and_b32 v2, 3, v2")
        a.e("s_lshl_b32 s%d, s%d, 6" % (sA, sHP))
        a.e("v_lshl_add_u32 v2, v2, 4, s%d" % sA)
        a.e("v_lshrrev_b32 v3, 2, %s" % v(vTID))
        a.e("v_lshl_add_u32 %s, v3, 10, v2" % v(vDQ))
    def stouch(a):
        if (Opt.diag or Opt.probe >= 0) and not Opt.klate: a.e("s_load_dwordx2 %s, s[0:1], 32" % sp(SWO))
        if not Opt.stch: return
        a.e("s_lshr_b32 s%d, s%d, 2" % (sA, sW))
        if Opt.ghx: a.e("s_lshl2_add_u32 s%d, s%d, s%d" % (sA, sD, sA))
        a.e("s_lshl_b32 s%d, s%d, 6" % (sA, sA))
        a.e("s_and_b32 s%d, s%d, 7" % (sB, sG))
        a.e("s_add_u32 s%d, s%d, s%d" % (sA, sA, sB))
        a.e("s_mul_i32 s%d, s%d, 28" % (sA, sA))
        a.e("s_bfe_u32 s%d, s%d, 0x10001" % (sB, sW))
        a.e("s_lshl1_add_u32 s%d, s%d, s%d" % (sB, sM, sB))
        a.e("s_add_u32 s%d, s%d, s%d" % (sA, sA, sB))
        a.e("s_lshl_b32 s%d, s%d, 7" % (sA, sA))
        a.e("s_bitcmp1_b32 s%d, 0" % sW)
        a.e("s_cselect_b64 %s, %s, %s" % (sp(SWKV), sp(SWU), sp(SWG)))
        a.e("s_add_u32 s%d, s%d, s%d" % (SWKV, SWKV, sA))
        a.e("s_addc_u32 s%d, s%d, 0" % (SWKV + 1, SWKV + 1))
        for i in range(Opt.stch):
            a.e("s_load_dwordx2 %s, %s, 0x%x" % (sp(sTMPP), sp(SWKV), 128 * 3584 + i * 8 * 3584 + 60))
    def wsrd(a):
        srd_words(a, [SWG])
        a.e("s_mov_b64 %s, %s" % (sp(SWU + 2), sp(SWG + 2)))

    if Opt.hrot:
        ORDER = [("q", 0)] + [(t_, 2 * h_ + j) for h_ in range(2) for t_, j in (("x", 0), ("x", 1), ("g", 0), ("u", 0), ("g", 1), ("u", 1))]
    else:
        ORDER = [("q", 0)] + [("x", j) for j in range(4)] + [(t_, j) for j in range(4) for t_ in "gu"]
    def block(items):
        out = []; lastc = None; lastw = None
        for c, kind, j in items:
            s = c % 3; pre = []
            if c != lastc:
                if c: pre.append("s_bfe_u32 s%d, s%d, 0x%x" % (sCH, sXP, 0x30000 + 4 * c))
                lastc = c; lastw = None
            fam = "w" if kind in "gu" else kind
            rot = Opt.hrot and fam != "q"
            if lastw is None or lastw[0] != fam or (rot and lastw[1] >> 1 != j >> 1):
                pre.append({"q": "s_lshl_b32 s%d, s%d, 16" % (sOFFW, sCH), "x": "s_lshl_b32 s%d, s%d, 7" % (sOFFW, sCH),
                            "w": "s_mul_i32 s%d, s%d, %d" % (sOFFW, sCH, 64 * 3584)}[fam])
                if rot: pre.append("s_%s_u32 s%d, s%d, s%d" % ("sub" if j >> 1 else "add", sOFFW, sOFFW, sRX if fam == "x" else sRW))
                lastw = (fam, 0)
            if lastw[1] != j:
                pre.append("s_add_u32 s%d, s%d, 0x%x" % (sOFFW, sOFFW, (j - lastw[1]) * (0x8000 if fam == "x" else 16 * 3584)))
                lastw = (fam, j)
            m0c, vo, rs = {"q": (L_WQ + s * 4096, vDQ, SWQ), "x": (L_X + s * 16384 + j * 4096, vDX, SX),
                           "g": (L_G + s * 16384 + j * 4096, vDG, SWG), "u": (L_U + s * 16384 + j * 4096, vDG, SWU)}[kind]
            nt = " nt" if Opt.ntx & (1 if rs == SX else 2) else ""
            out.append(("s_add_u32 m0, s%d, 0x%x\n%s\nbuffer_load_dwordx4 %s, %s, s%d offen%s lds"
                        % ((sM0B + (j >> 1)) if rot else sWH, m0c, "\n".join(pre) or "s_nop 0", v(vo), srd(rs), sOFFW, nt), "c%d" % c))
        return out
    def part(c, role): return [(c, k_, j) for k_, j in ORDER if (k_ in "gu") == (role == "A")]

    def rdsetup(a):
        setup_rd(a)
        a.e("v_lshl_add_u32 %s, v3, 3, v2" % v(vWA))
        a.e("v_lshlrev_b32 %s, 8, %s" % (v(vWA), v(vWA)))
        a.e("v_lshl_add_u32 %s, v4, 3, %s" % (v(vWA), v(vWA)))
        a.e("v_and_b32 v5, 1, v3")
        a.e("v_lshl_add_u32 v2, v5, 2, v2")
        a.e("s_lshl_b32 s%d, s%d, 2" % (sA, sHI))
        a.e("s_and_b32 s%d, s%d, 1" % (sB, sLO))
        a.e("s_lshl_b32 s%d, s%d, 1" % (sB, sB))
        a.e("s_add_u32 s%d, s%d, s%d" % (sA, sA, sB))
        a.e("v_xor_b32 v2, s%d, v2" % sA)
        a.e("v_lshl_add_u32 %s, v2, 5, %s" % (v(vWA), v(vWA)))
        a.e("v_xor_b32 %s, 32, %s" % (v(vWA + 1), v(vWA)))
        a.e("v_add_u32 %s, 0x%x, %s" % (v(vWA + 2), L_U - L_G, v(vWA)))
        a.e("v_add_u32 %s, 0x%x, %s" % (v(vWA + 3), L_U - L_G, v(vWA + 1)))
        a.e("s_lshl_b32 s%d, s%d, 12" % (sA, sLO))
        a.e("s_add_u32 s%d, s%d, 0x%x" % (sA, sA, L_X))
        a.e("v_add_u32 %s, s%d, %s" % (v(vXA), sA, v(vXA)))
        a.e("v_xor_b32 %s, 0x1000, %s" % (v(vXA + 1), v(vXA)))
        a.e("v_xor_b32 %s, 64, %s" % (v(vXA + 2), v(vXA)))
        a.e("v_xor_b32 %s, 64, %s" % (v(vXA + 3), v(vXA + 1)))
        a.e("v_add_u32 %s, 0x%x, %s" % (v(vQA), L_WQ, v(vQA)))

    a.e("s_cmp_ge_u32 s%d, 4" % sW)
    a.e("s_cbranch_scc1 L_setB")
    late = collect(setup_oclr) + collect(setup_ones) + [("; later", None)] + collect(setup_attn)
    words = collect(lambda t: srd_words(t, [SWS, SKV, SDBG, SWD, SWO, SOUT]))
    late = [x for x in late if x not in words]
    oclr = [x for x in late if x[1] == "oclr"]
    if Opt.olate: late = [x for x in late if x[1] != "oclr"]
    else: oclr = []
    words += [("v_mov_b32 %s, 0" % v(r_), None) for r_ in (vGA, vWDV, vFLA, vHA, vOUTA)]
    st = collect(rdsetup) + words + late[:Opt.fillpre]
    cut = late.index(("; later", None)) if Opt.bidle else len(late)
    fills = {"A": late[Opt.fillpre:], "B": late[Opt.fillpre:max(cut, Opt.fillpre)]}
    idleB = late[max(cut, Opt.fillpre):]
    vms = {}
    wsrd(a); wvoff(a)
    a.e("s_waitcnt lgkmcnt(0)")
    a.stamp(2)
    if Opt.spos == 0: stouch(a)
    put(a, block(part(0, "A")))
    a.e("s_branch L_setA")
    vms["A"] = a.vm; a.vm = []
    a.lab("L_setB")
    srd_words(a, [SX]); xvoff(a, vTID)
    a.e("s_waitcnt lgkmcnt(0)")
    a.stamp(2)
    if Opt.spos == 0: stouch(a)
    put(a, block(part(0, "B")[1:]))
    srd_words(a, [SWQ]); qvoff(a)
    put(a, block(part(0, "B")[:1]))
    vms["B"] = a.vm
    for role in "BA":
        a.vm = vms[role]
        if role == "A": a.lab("L_setA")
        if Opt.spos == 1: stouch(a)
        table(a)
        setup_ids(a)
        if role == "A": srd_words(a, [SX, SWQ])
        else: wsrd(a)
        def touches():
            tm = sum(0xff << (8 * i) for i in range(4) if Opt.tch >> i & 1)
            setex = "s_bitcmp1_b32 s%d, 3\ns_cselect_b32 exec_lo, 0, 0x%x\ns_cselect_b32 exec_hi, 0x%x, 0" % (sG, tm, tm) if Opt.ghx \
                    else "s_mov_b32 exec_lo, 0x%x\ns_mov_b32 exec_hi, 0" % tm
            if Opt.tlb & 2 and role == "B":
                a.e("s_and_b32 s%d, s%d, 7" % (sA, sG))
                a.e("v_lshl_add_u32 v2, v0, 3, s%d" % sA)
                a.e("v_mul_u32_u24 v3, 3584, v2")
                a.e("s_and_b32 s%d, s%d, 1" % (sB, sW))
                a.e("s_lshl1_add_u32 s%d, s%d, s%d" % (sA, sM, sB))
                a.e("s_lshl_b32 s%d, s%d, 7" % (sA, sA))
                a.e(setex)
                a.e("s_cmp_ge_u32 s%d, 6" % sW)
                a.e("s_cbranch_scc1 L_tlbu")
                a.e("buffer_load_dword %s, v3, %s, s%d offen" % (v(vPOLL), srd(SWG), sA))
                a.e("s_branch L_tlbe")
                a.lab("L_tlbu")
                a.e("buffer_load_dword %s, v3, %s, s%d offen" % (v(vPOLL), srd(SWU), sA))
                a.lab("L_tlbe")
                a.e("s_mov_b64 exec, -1")
                a.vm.append("tlb")
            if Opt.tlb & 12 and role == "A":
                a.e("s_cmp_lg_u32 s%d, 0" % sW)
                a.e("s_cbranch_scc1 L_tlbx")
                a.e("s_and_b32 s%d, s%d, 7" % (sA, sG))
                a.e("v_lshl_add_u32 v2, v0, 3, s%d" % sA)
                a.e("v_lshlrev_b32 v3, 10, v2")
                a.e("s_lshl_b32 s%d, s%d, 6" % (sA, sHP))
                a.e(setex if Opt.tlb & 4 else "s_mov_b64 exec, 1")
                a.e("buffer_load_dword %s, v3, %s, s%d offen" % (v(vPOLL), srd(SWQ), sA))
                if not Opt.tlb & 8:
                    a.e("s_mov_b64 exec, -1")
                    a.lab("L_tlbx")
                    return
                a.e("s_branch L_tlby")
                a.lab("L_tlbx")
                a.e("s_bitcmp1_b32 s2, 0")
                a.e("s_cselect_b32 s%d, %d, %d" % (sB, Opt.xodd, Opt.xeven))
                a.e("s_and_b32 s%d, s%d, 3" % (sA, sHP))
                a.e("s_mul_i32 s%d, s%d, s%d" % (sA, sA, sB))
                a.e("s_lshl_b32 s%d, s%d, 7" % (sC, sG))
                a.e("s_add_u32 s%d, s%d, s%d" % (sA, sA, sC))
                a.e("v_add_lshl_u32 v3, v0, s%d, 10" % sA)
                a.e("s_lshr_b32 s%d, s%d, 3" % (sA, sG))
                a.e("s_lshl2_add_u32 s%d, s%d, s%d" % (sA, sA, sW) if Opt.ghx else "s_mov_b32 s%d, s%d" % (sA, sW))
                a.e("s_lshl_b32 s%d, s%d, 7" % (sA, sA))
                a.e("s_bitcmp1_b32 %d, s%d" % (Opt.tch if Opt.tlb & 8 else 0, sW))
                a.e("s_cselect_b32 s%d, s%d, 1" % (sB, sB))
                a.e("s_bfm_b64 exec, s%d, 0" % sB)
                a.e("buffer_load_dword %s, v3, %s, s%d offen" % (v(vPOLL), srd(SX), sA))
                a.lab("L_tlby")
                a.e("s_mov_b64 exec, -1")
                a.vm.append("tlb")
        if Opt.tpos == 0: touches()
        if Opt.startbar: a.e("s_barrier")
        npre = min(Opt.npre, 8) if role == "A" else 5
        pn = block(part(1, role)[:npre])
        rest = st + (collect(qvoff) + collect(lambda t: xvoff(t, vTID)) if role == "A" else collect(wvoff))
        gap = len(rest) // (npre + Opt.pregap) + 1
        if Opt.tpos == 2:
            put(a, pn); touches(); npre = 0
        if Opt.tpos == 3 and role == "B":
            put(a, pn); touches(); npre = 0
        for i in range(npre):
            put(a, pn[:1]); pn = pn[1:]
            put(a, rest[:gap]); rest = rest[gap:]
        put(a, rest)
        if Opt.tpos == 1 or (Opt.tpos == 3 and role == "A"): touches()
        a.e("s_mov_b64 vcc, %d" % (-1 if role == "A" else 0))
        if role == "A":
            a.waitvm("c0", lgkm=True)
        else:
            a.e("s_setprio 1")
            a.waitvm("c0", lgkm=True)
            a.e("s_branch L_k0")
        vms[role] = a.vm
    stream = part(1, "A")[min(Opt.npre, 8):] + [(c, k_, j) for c in range(2, 8) for k_, j in ORDER]
    qa = [int(x, 16) for x in Opt.qa]; qb = [int(x, 16) for x in Opt.qb]
    def take(n, cmax):
        m = 0
        while m < n and m < len(stream) and stream[m][0] <= cmax: m += 1
        r_ = stream[:m]; del stream[:m]
        return block(r_)
    a.lab("L_k0")
    a.vm = vms["A"]
    ool = Asm()
    def dmablock(name, role, items, wait=None):
        a.e("s_cbranch_vcc%s L_%s" % ("nz" if role == "A" else "z", name))
        if wait: a.waitvm(wait, lgkm=True)
        a.lab("L_%s_r" % name)
        ool.lab("L_%s" % name)
        ool.vm = a.vm if role == "A" else vms["B"]
        for it_ in items:
            put(ool, [it_])
            fp = Opt.fillper if role == "A" or not Opt.bidle else 2
            put(ool, fills[role][:fp]); fills[role] = fills[role][fp:]
        if name in ("d7", "e7"): put(ool, fills[role]); fills[role] = []
        if wait: ool.waitvm(wait, lgkm=True)
        if role == "B": vms["B"] = ool.vm
        ool.e("s_branch L_%s_r" % name)
    a.ool = ool.l

    def fr(k):
        b = vF1 + 36 * (k % 2)
        return dict(x=b, w=b + 16, q=b + 32)
    def reads(k):
        c, s = divmod(k, 2); f = fr(k); sl = c % 3
        wo = sl * 16384 + s * 8192
        W = lambda i: [rdtr(f['w'] + 4 * i, vWA + i, wo), rdtr(f['w'] + 4 * i + 2, vWA + i, wo + 1024)]
        X = [rd128(f['x'] + 4 * b, vXA + 2 * s + (b >> 1), sl * 16384 + (b & 1) * 2048) for b in range(4)]
        return W(0) + X + W(2) + W(1) + W(3) + [rdtr(f['q'], vQA, sl * 4096 + s * 2048), rdtr(f['q'] + 2, vQA, sl * 4096 + s * 2048 + 256)]
    a.e("s_barrier")
    a.stamp(3)
    if Opt.kdiag or Opt.probe >= 18:
        kstamp(a, 2)
        a.e("s_waitcnt lgkmcnt(0)")
    if Opt.kal: a.l.append(".p2align 3")
    if Opt.kal == 2: a.e("s_nop 0")
    al = (lambda: a.l.append(".p2align 3")) if Opt.kal == 3 else (lambda: None)
    for r in reads(0): a.e(r)
    if qa[0]: dmablock("d2", "A", take(qa[0], 2))
    for k in range(16):
        c, s = divmod(k, 2); f = fr(k)
        z = lambda x: None if k == 0 else x
        mf = []
        for n_, i in enumerate((0, 2, 1, 3)):
            for b in (range(4) if n_ % 2 == 0 else range(3, -1, -1)):
                d = vACC + 16 * b + 4 * i
                mf.append(mfma16(d, f['w'] + 4 * i, f['x'] + 4 * b, z(d)))
        for b in range(2): mf.append(mfma16(vAQ + 4 * b, f['q'], f['x'] + 4 * b, z(vAQ + 4 * b)))
        rds = reads(k + 1) if k < 15 else []
        if s == 0:
            a.e("s_waitcnt lgkmcnt(6)"); al()
            for i, m in enumerate(mf):
                if i == 8: a.e("s_waitcnt lgkmcnt(8)"); al()
                a.e(m)
                if i < len(rds): a.e(rds[i])
            continue
        a.e("s_waitcnt lgkmcnt(8)")
        for m in mf[:4]: a.e(m)
        if c <= 5:
            dmablock("e%d" % (c + 2), "B", take(qb[c], c + 2), "c%d" % (c + 1))
            assert not any(x[0] <= c + 1 for x in stream)
        if c == 7:
            a.e("s_waitcnt lgkmcnt(0)")
        elif c == 6:
            a.e("s_waitcnt lgkmcnt(0)")
            a.e("s_cbranch_vccz L_st7")
            a.e("s_setprio 1")
            a.e("s_waitcnt vmcnt(0)")
            a.e("s_barrier")
            a.lab("L_st7")
        else:
            a.e("s_barrier")
        if c < 7 and ((Opt.kdiag == 1 and Opt.diag) or Opt.probe == 21 + c):
            kstamp(a, 3 + c)
            a.e("s_waitcnt lgkmcnt(0)")
        if c + 3 < 8:
            items = take(qa[c + 1], c + 3)
            dmablock("d%d" % (c + 3), "A", items)
        al()
        for i, m in enumerate(mf[4:]):
            a.e(m)
            if i < len(rds): a.e(rds[i])
        if k == 11: assert not stream and not fills["A"] and not fills["B"]
        if k == 11:
            a.e("s_cbranch_vccnz L_st6")
            a.e("s_setprio 0")
            nm = next((i for i, x in enumerate(idleB) if "0xdddd" in x[0]), 0)
            a.e("s_cmp_lg_u32 s%d, 4" % sW)
            a.e("s_cbranch_scc1 L_nopoll")
            a.e("buffer_load_dword %s, off, %s, 0 sc1" % (v(vPOLL), srd(SDBG)))
            a.lab("L_nopoll")
            put(a, idleB[:nm]); idleB = idleB[nm:]
            a.wait0()
            spin_counter(a, "kvf", True, 4)
            a.e("s_barrier")
            put(a, kv_first_loads(a, True) + oclr + idleB)
            a.lab("L_st6")
    a.kvA = (kv_first_loads(a) + oclr)[2:]
    a.stamp(4)

def phase1_L(a):
    a.lab("L_light")
    a.vm = []
    if Opt.oddl: a.e("s_add_u32 s%d, s%d, 14" % (sM, sB))
    if Opt.klate:
        ptr_loads(a, ((SGATE, 72), (SWKV, 16), (SWV, 24)))
    else:
        a.e("s_waitcnt lgkmcnt(0)")
        ptr_loads(a, ((SWKV, 16), (SWV, 24), (SGATE, 72), (SWO, 32)))
    srd_words(a, [SWKV, SWV, SGATE, SX])
    xvoff(a, 0)
    a.e("v_and_b32 v2, 63, v0")
    a.e("v_lshlrev_b32 %s, 4, v2" % v(vL16))
    a.e("s_sub_u32 s%d, s%d, 14" % (sCNT, sM))
    a.e("s_lshl_b32 s%d, s%d, 16" % (sOLD, sCNT))
    a.e("s_lshl_b32 s%d, s%d, 13" % (sHST, sCNT))
    a.e("s_add_u32 s%d, s%d, s%d" % (sWH, sHST, sWK))
    a.e("s_xor_b32 s%d, s%d, 0x2000" % (sHST, sHST))
    a.e("s_add_u32 s%d, s%d, 0x2000" % (sA, sWK))
    a.e("s_waitcnt lgkmcnt(0)")
    a.stamp(2)
    def xdma(c, base, so):
        a.vmop("s_add_u32 m0, s%d, 0x%x\ns_nop 0\nbuffer_load_dwordx4 %s, %s, s%d offen offset:%d lds"
               % (base, LL_X + c * 16384 - c * 128, v(vDX), srd(SX), so, c * 128), "c%d" % c)
    def wdma(u):
        for t, rs in enumerate((SWKV, SWV)):
            a.vmop("s_add_u32 m0, s%d, 0x%x\ns_nop 0\nbuffer_load_dwordx4 %s, %s, s%d offen lds"
                   % (sWK, LL_W + t * 16384 + u * 8192, v(vL16), srd(rs), sA if u else sWK), "w")
    wdma(0)
    a.vmop("s_mov_b32 m0, s%d\ns_nop 0\nbuffer_load_dwordx4 %s, %s, 0 offen lds" % (sHST, v(vL16), srd(SGATE)), "w")
    for c in range(8):
        if c == 4: wdma(1)
        xdma(c, sWH, sOLD)
        if (c == 1 and Opt.lthr & 1) or (c == 3 and Opt.lthr & 2): a.e("s_waitcnt vmcnt(0)")
        if c in (1, 3, 5): a.e("s_barrier")
    setup_ids(a)
    srd_words(a, [SWQ])
    setup_rd(a)
    a.e("v_lshrrev_b32 v3, 5, v0")
    a.e("v_bfrev_b32 v5, v4")
    a.e("v_lshrrev_b32 v5, 30, v5")
    a.e("s_cmp_ge_u32 s%d, 2" % sLO)
    a.e("s_cselect_b64 vcc, -1, 0")
    a.e("v_cndmask_b32 v4, v5, v4, vcc")
    a.e("v_lshl_add_u32 %s, v3, 3, v2" % v(vWA))
    a.e("v_lshlrev_b32 %s, 5, %s" % (v(vWA), v(vWA)))
    a.e("v_lshl_add_u32 %s, v4, 3, %s" % (v(vWA), v(vWA)))
    a.e("s_lshr_b32 s%d, s%d, 1" % (sA, sLO))
    a.e("s_lshl_b32 s%d, s%d, 14" % (sA, sA))
    a.e("s_add_u32 s%d, s%d, 0x%x" % (sA, sA, LL_W))
    a.e("v_add_u32 %s, s%d, %s" % (v(vWA), sA, v(vWA)))
    a.e("v_lshl_add_u32 %s, v3, 4, s%d" % (v(vWA + 1), sHST))
    a.e("s_and_b32 s%d, s%d, 1" % (sA, sLO))
    a.e("s_lshl_b32 s%d, s%d, 1" % (sB, sCNT))
    a.e("s_add_u32 s%d, s%d, s%d" % (sCNT, sA, sB))
    a.e("s_lshl_b32 s%d, s%d, 12" % (sA, sCNT))
    a.e("v_and_b32 v2, 31, v0")
    a.e("v_lshrrev_b32 v4, 1, v0")
    a.e("v_lshlrev_b32 v5, 1, v0")
    a.e("v_bfi_b32 v4, 4, v4, v5")
    a.e("v_bfi_b32 v4, 12, v4, v2")
    a.e("v_cndmask_b32 v2, v2, v4, vcc")
    a.e("v_bfe_u32 v4, v2, 1, 3")
    a.e("v_xor_b32 v4, v4, v3")
    a.e("v_lshlrev_b32 v4, 4, v4")
    a.e("v_lshl_add_u32 v4, v2, 7, v4")
    a.e("v_add_u32 %s, s%d, v4" % (v(vLX), sA))
    for s in range(1, 4): a.e("v_xor_b32 %s, %d, %s" % (v(vLX + s), 32 * s, v(vLX)))
    for s in range(4): a.e("v_add_u32 %s, 0x10000, %s" % (v(vLX + 4 + s), v(vLX + s)))
    a.e("s_waitcnt lgkmcnt(0)")
    setup_oclr(a)
    vm0 = list(a.vm)
    a.e("s_cmp_lg_u32 s%d, 0" % sHI)
    a.e("s_cbranch_scc1 L_lB")
    a.e("s_not_b64 %s, %s" % (sp(sTMPP), sp(sVM)))
    a.e("s_cmp_ge_u32 s%d, 2" % sLO)
    a.e("s_cbranch_scc1 L_lV")
    def chain(kind):
        a.vm = list(vm0)
        def fr(k):
            b = vFR + 8 * (k % 4)
            return b, b + 4
        def reads(k):
            c, s = divmod(k, 4); x, w = fr(k)
            r = [rd128(x, vLX + s + 4 * (c >> 2), (c & 3) * 16384), rdtr(w, vWA, k * 512), rdtr(w + 2, vWA, k * 512 + 128)]
            if kind == "K":
                r += ["s_mov_b64 exec, %s" % sp(sTMPP), rd128(w, vWA + 1, k * 32), "s_mov_b64 exec, -1"]
            return r
        for q in range(4):
            a.waitvm("c%d" % (2 * q + 1))
            a.e("s_barrier")
            nr = 4 if kind == "K" else 3
            for k in range(8 * q, 8 * q + 2):
                for r in reads(k): a.e(r)
            for k in range(8 * q, 8 * q + 8):
                if k + 2 < 8 * q + 8:
                    for r in reads(k + 2): a.e(r)
                left = min(2, 8 * q + 7 - k)
                a.e("s_waitcnt lgkmcnt(%d)" % (left * nr))
                x, w = fr(k)
                cc = None if k == 0 else vACC
                a.e(mfma(vACC, w, x, cc) if kind == "K" else mfma(vACC, x, w, cc))
        a.e("s_lshl_b32 s%d, s%d, 2" % (sA, sG))
        a.e("s_add_u32 s%d, s%d, s%d" % (sA, sA, sCNT))
        a.e("s_nop 12")
        if kind == "K":
            a.e("s_mov_b32 s%d, 0x%x" % (sC, f2u(0.25 * math.log2(math.e))))
            for i in range(8): a.e("v_mul_f32 %s, s%d, %s" % (v(vACC + i), sC, v(vACC + i)))
            a.e("v_mul_f32 %s, 0x%x, %s" % (v(vACC + 8), f2u(-math.log2(math.e)), v(vACC + 8)))
            a.e("v_exp_f32 %s, %s" % (v(vACC + 8), v(vACC + 8)))
            for i in range(4): a.e("v_cvt_pk_bf16_f32 %s, %s, %s" % (v(vFR + i), v(vACC + 2 * i), v(vACC + 2 * i + 1)))
            a.e("v_add_f32 %s, 1.0, %s" % (v(vACC + 8), v(vACC + 8)))
            a.e("v_rcp_f32 %s, %s" % (v(vACC + 8), v(vACC + 8)))
            a.e("s_add_u32 s%d, s%d, 63" % (sB, sA))
            a.e("s_and_b32 s%d, s%d, 63" % (sB, sB))
            a.e("s_lshl_b32 s%d, s%d, 11" % (sB, sB))
            a.e("buffer_store_dwordx4 %s, %s, %s, s%d offen sc1" % (v(vFR, 4), v(vL16), srd(SKV), sB))
            a.e("s_lshl_b32 s%d, s%d, 7" % (sB, sA))
            a.e("s_add_u32 s%d, s%d, 0x%x" % (sB, sB, WS_G))
            a.e("s_mov_b32 exec_hi, 0")
            a.e("buffer_store_dword %s, %s, %s, s%d offen sc1" % (v(vACC + 8), v(vGA), srd(SWS), sB))
            a.e("s_mov_b64 exec, -1")
        else:
            for i in range(8): a.e("v_cvt_pk_bf16_f32 %s, %s, %s" % (v(vFR + i), v(vACC + 2 * i), v(vACC + 2 * i + 1)))
            a.e("v_bfe_u32 v2, v0, 4, 1")
            a.e("v_add_u32 v2, s%d, v2" % sA)
            a.e("v_and_b32 v2, 63, v2")
            a.e("v_lshl_add_u32 v2, v2, 11, %s" % v(vL16))
            for i in range(4): a.e("v_cndmask_b32 %s, %s, %s, %s" % (v(vFR + i), v(vFR + 4 + i), v(vFR + i), sp(sVM)))
            a.e("buffer_store_dwordx4 %s, v2, %s, 0 offen offset:1024 sc1" % (v(vFR, 4), srd(SKV)))
        a.e("s_branch L_lJ")
    chain("K")
    a.lab("L_lV")
    chain("V")
    a.lab("L_lB")
    a.vm = list(vm0)
    a.e("s_cmp_lg_u32 s%d, 14" % sM)
    a.e("s_cbranch_scc1 L_nozf")
    a.e("s_cmp_lg_u32 s%d, 4" % sW)
    a.e("s_cbranch_scc1 L_nozf")
    a.e("v_lshlrev_b32 v2, 7, v0")
    a.e("s_lshl_b32 s%d, s%d, 11" % (sA, sG))
    a.e("s_add_u32 s%d, s%d, 0x%x" % (sA, sA, WS_HFLAG))
    a.e("s_mov_b64 exec, 0xffff")
    a.e("buffer_store_dword %s, v2, %s, s%d offen sc1" % (v(vZERO), srd(SWS), sA))
    a.e("s_mov_b64 exec, -1")
    a.lab("L_nozf")
    for q in range(4):
        a.waitvm("c%d" % (2 * q + 1))
        a.e("s_barrier")
    a.lab("L_lJ")
    a.e("v_lshrrev_b32 v3, 2, v0")
    a.e("v_lshlrev_b32 v3, 10, v3")
    a.e("v_lshrrev_b32 v4, 5, v0")
    a.e("v_lshlrev_b32 v4, 1, v4")
    a.e("v_xor_b32 v4, v4, v0")
    a.e("v_and_b32 v4, 3, v4")
    a.e("v_lshl_add_u32 v3, v4, 4, v3")
    a.e("s_lshl_b32 s%d, s%d, 14" % (sA, sW))
    a.e("s_lshl_b32 s%d, s%d, 6" % (sB, sHP))
    a.e("s_add_u32 s%d, s%d, s%d" % (sA, sA, sB))
    a.e("v_add_u32 %s, s%d, v3" % (v(vDQ), sA))
    a.e("s_xor_b32 s%d, s%d, 0x2000" % (sWH, sWH))
    a.e("s_xor_b32 s%d, s%d, 0x10000" % (sOLD, sOLD))
    a.wait0(lgkm=True)
    a.e("s_barrier")
    a.e("s_cmp_lg_u32 s%d, 0" % sW)
    a.e("s_cbranch_scc1 L_noat")
    a.e("s_mov_b64 exec, 1")
    a.e("buffer_atomic_add %s, off, %s, 0 sc1" % (v(vONE), srd(SDBG)))
    a.e("s_mov_b64 exec, -1")
    a.lab("L_noat")
    a.stamp(3)
    for c in range(8): xdma(c, sWH, sOLD)
    for p in range(4):
        a.e("s_add_u32 m0, s%d, 0x%x" % (sWK, LL_WQ + p * 8192))
        a.e("s_mov_b32 s%d, 0x%x" % (sA, p * 128 * 1024))
        a.e("buffer_load_dwordx4 %s, %s, s%d offen lds" % (v(vDQ), srd(SWQ), sA))
    setup_ones(a)
    setup_attn(a)
    if Opt.touch & 2:
        a.e("s_lshl_b32 s%d, s%d, 1" % (sA, sG))
        a.e("s_add_u32 s%d, s%d, s%d" % (sA, sA, sM))
        a.e("s_sub_u32 s%d, s%d, 14" % (sA, sA))
        a.e("s_lshl_b32 s%d, s%d, 3" % (sA, sA))
        a.e("s_add_u32 s%d, s%d, s%d" % (sA, sA, sW))
        a.e("v_lshlrev_b32 v2, 15, v0")
        a.e("s_lshl_b32 s%d, s%d, 7" % (sA, sA))
        a.e("buffer_load_dword %s, v2, %s, s%d offen" % (v(vPOLL), srd(SWO), sA))
        a.e("buffer_load_dword %s, v2, %s, s%d offen" % (v(vPOLL), srd(SWD), sA))
    a.e("s_lshl_b32 s%d, s%d, 12" % (sA, sLO))
    a.e("v_add_u32 %s, s%d, %s" % (v(vXA), sA, v(vXA)))
    a.e("v_xor_b32 %s, 64, %s" % (v(vXA + 1), v(vXA)))
    a.e("v_add_u32 %s, 0x10000, %s" % (v(vXA + 2), v(vXA)))
    a.e("v_add_u32 %s, 0x10000, %s" % (v(vXA + 3), v(vXA + 1)))
    a.e("v_add_u32 %s, 0x%x, %s" % (v(vQA), LL_WQ, v(vQA)))
    a.e("s_waitcnt vmcnt(%d)" % (2 if Opt.touch & 2 else 0))
    a.e("s_barrier")
    def fr(k): return vFR + 12 * (k % 3)
    def reads(k):
        c, s = divmod(k, 2); f = fr(k)
        return [rd128(f + 4 * b, vXA + s + 2 * (c >> 2), (c & 3) * 16384 + b * 2048) for b in range(2)] + \
               [rdtr(f + 8, vQA, k * 2048), rdtr(f + 10, vQA, k * 2048 + 256)]
    for k in range(2):
        for r in reads(k): a.e(r)
    for k in range(16):
        a.e("s_waitcnt lgkmcnt(%d)" % (4 * min(1, 15 - k)))
        for b in range(2): a.e(mfma16(vAQ + 4 * b, fr(k) + 8, fr(k) + 4 * b, None if k == 0 else vAQ + 4 * b))
        if k + 2 < 16:
            for r in reads(k + 2): a.e(r)
    spin_counter(a, "kvl", False)
    a.e("s_barrier")
    for s, t in kv_first_loads(a): a.e(s)
    a.wait0()
    a.stamp(4)
    a.e("s_branch L_join")

def gelu_tile(a, ti, scalar=False):
    acc = vACC + 16 * ti
    t = vFR
    o = vFR + 8 + 4 * ti
    pk = lambda r: v(r, 2)
    if scalar:
        for i in range(8): a.e("v_mul_f32 %s, %s, %s" % (v(t + i), v(acc + i), v(acc + i)))
        for i in range(8): a.e("v_fma_f32 %s, %s, %s, %s" % (v(t + i), v(t + i), v(vC0 + 1), v(vC0)))
        for i in range(8): a.e("v_mul_f32 %s, %s, %s" % (v(t + i), v(t + i), v(acc + i)))
        for i in range(8): a.e("v_exp_f32 %s, %s" % (v(t + i), v(t + i)))
        for i in range(8): a.e("v_add_f32 %s, 1.0, %s" % (v(t + i), v(t + i)))
        for i in range(8): a.e("v_rcp_f32 %s, %s" % (v(t + i), v(t + i)))
        for i in range(8): a.e("v_mul_f32 %s, %s, %s" % (v(acc + i), v(acc + i), v(acc + 8 + i)))
        for i in range(8): a.e("v_mul_f32 %s, %s, %s" % (v(acc + i), v(acc + i), v(t + i)))
    R4, R8 = (range(0), range(0)) if scalar else (range(4), range(8))
    for i in R4: a.e("v_pk_mul_f32 %s, %s, %s" % (pk(t + 2 * i), pk(acc + 2 * i), pk(acc + 2 * i)))
    for i in R4: a.e("v_pk_fma_f32 %s, %s, %s, %s op_sel:[0,1,0] op_sel_hi:[1,1,0]" % (pk(t + 2 * i), pk(t + 2 * i), pk(vC0), pk(vC0)))
    for i in R4: a.e("v_pk_mul_f32 %s, %s, %s" % (pk(t + 2 * i), pk(t + 2 * i), pk(acc + 2 * i)))
    for i in R8: a.e("v_exp_f32 %s, %s" % (v(t + i), v(t + i)))
    for i in R4: a.e("v_pk_add_f32 %s, %s, 1.0 op_sel_hi:[1,0]" % (pk(t + 2 * i), pk(t + 2 * i)))
    for i in R8: a.e("v_rcp_f32 %s, %s" % (v(t + i), v(t + i)))
    for i in R4: a.e("v_pk_mul_f32 %s, %s, %s" % (pk(acc + 2 * i), pk(acc + 2 * i), pk(acc + 8 + 2 * i)))
    for i in R4: a.e("v_pk_mul_f32 %s, %s, %s" % (pk(acc + 2 * i), pk(acc + 2 * i), pk(t + 2 * i)))
    for i in range(4): a.e("v_cvt_pk_bf16_f32 %s, %s, %s" % (v(o + i), v(acc + 2 * i), v(acc + 2 * i + 1)))
    a.vmop("buffer_store_dwordx4 %s, %s, %s, s%d offen offset:%d sc1" % (v(o, 4), v(vHA), srd(SWS), sHST2 if ti >> 1 else sHST, (ti & 1) * 256), "hst")

def Yseg(hset, toggle=False, first=False, extra=False, last=False):
    out = []
    for t in range(2):
        pos = [int(x, 17) for x in (Opt.ypos0 if hset is None else Opt.ypos2 if extra else Opt.ypos1)]
        if last and t == 1: pos = [pos[0], 0, 11, pos[1]]
        S, Sn = vS + 16 * t, vS + 16 * (1 - t)
        K, V0, V1 = vKF + 4 * t, vV + 8 * t, vV + 8 * t + 4
        for e in range(1, 17):
            out.append("v_exp_f32 %s, %s" % (v(S + e - 1), v(S + e - 1)))
            if e == pos[0] and not (first and t == 0): out.append(smfmac(vO, V1, Sn + 8))
            if e == pos[1]: out.append(mfma(Sn, K, vQ, None))
            if e == pos[2]: out.append(smfmac(vO, V0, S))
            if hset is not None:
                if e == 13 and t == 1 and toggle:
                    out.append("v_xor_b32 %s, 0x4000, %s" % (v(vKVB), v(vKVB)))
                if e == pos[3]: out.append(mfma(vD + 16 * t, vWF + 4 * t, vH + 4 * hset, vD + 16 * t))
                if extra and e == pos[4]: out.append(mfma(vD + 16 * t, vFR + 16 + 4 * t, vH + 16 + 4 * hset, vD + 16 * t))
    return out

def kv_reads(off, vKVA=vKVA):
    r = [rd128(vKF, vKVA, off), rd128(vKF + 4, vKVA, off + 2048), "s_mov_b64 exec, %s" % sp(sVM)]
    for t in range(2):
        r += [rd128(vV + 8 * t, vKVA, off + 2048 * t + 1024), rd128(vV + 8 * t + 4, vKVA, off + 2048 * t + 1280)]
    r.append("s_mov_b64 exec, -1")
    return r
def wd_reads(dst, addr, off):
    r = []
    for c in range(2):
        r += [rdtr(dst + 4 * c, addr, off + 512 * c), rdtr(dst + 4 * c + 2, addr, off + 512 * c + 1024)]
    return r

def hord(): return [0, 2, 4, 6, 1, 3, 5, 7] if Opt.hord else list(range(8))
def wdrow(sg): return (32 * (sg >> 1) + 8 * (sg & 1)) * 1024

def attention(a, role, pre0=None):
    A = role == "A"
    def kvdma(u):
        a.vmop("s_add_u32 m0, s%d, 0x%x\ns_add_u32 s%d, s%d, 0x%x\nbuffer_load_dwordx4 %s, %s, s%d offen sc1 lds"
               % (sWK, L_KV + (u % 4) * 8192, sA, sWK, u * 8192, v(vL16), srd(SKV), sA), "kv%d" % u)
    def wddma(sg):
        a.vmop("s_add_u32 m0, s%d, 0x%x\ns_add_u32 s%d, s%d, 0x%x\nbuffer_load_dwordx4 %s, %s, s%d offen lds"
               % (sWK, L_WD + (sg % 4 if sg < 23 or sg == 27 else sg - 19) * 8192, sA, sWDOFF, wdrow(sg), v(vWDV), srd(SWD), sA), "wd%d" % sg)
    def wodma(j):
        a.vmop("s_add_u32 m0, s%d, 0x%x\ns_add_u32 s%d, s%d, 0x%x\nbuffer_load_dwordx4 %s, %s, s%d offen lds"
               % (sWK, L_WO + (7 - j) * 8192, sA, sB, hord()[j] * 16384, v(vWDV), srd(SWO), sA), "wo")
    def hload(sg, dst):
        a.vmop("s_add_u32 s%d, s%d, 0x%x\nbuffer_load_dwordx4 %s, %s, %s, s%d offen sc1"
               % (sA, sHOFF, sg * 1024, v(dst, 4), v(vL16), srd(SWS), sA), "h%d" % sg)
    for n in range(12):
        if not A and n == 0: a.e("s_barrier")
        if n % 2 == 1: astamp(a, 2 + n // 2)
        if n == Opt.pcyc: a.e("%s %s" % ("s_memrealtime" if Opt.prt else "s_memtime", sp(sSTAMP + 6)))
        tags = []
        if A and n % 2 == 1: tags.append("kv%d" % ((n + 1) // 2))
        if not A and n % 2 == 0: tags.append("kv%d" % ((n + 2) // 2))
        if n == Opt.hpub - (0 if A else 1): tags.append("hst")
        if n == 6: tags.append("wo")
        if n == 9: tags.append("wd27")
        if n == 11: tags.append("wd0")
        if n == 9 and A:
            a.e("s_cmp_lg_u32 s%d, 0" % sW)
            a.e("s_cbranch_scc1 L_hf_done")
            a.e("s_mov_b32 s%d, 0x4000" % sB)
            a.e("s_waitcnt vmcnt(0)")
            a.lab("L_hf_chk")
            a.e("v_cmp_ne_u32 vcc, 1, %s" % v(vPOLL))
            a.e("s_cbranch_vccz L_hf_done")
            a.e("s_sleep %d" % Opt.hsl)
            a.e("buffer_load_dword %s, %s, %s, 0 offen sc1" % (v(vPOLL), v(vFLA), srd(SWS)))
            a.e("s_sub_u32 s%d, s%d, 1" % (sB, sB))
            a.e("s_cmp_lg_u32 s%d, 0" % sB)
            a.e("s_waitcnt vmcnt(0)")
            a.e("s_cbranch_scc1 L_hf_chk")
            a.lab("L_hf_done")
        a.waitvm(tags)
        if n == 5 and Opt.diag == 3 and A:
            a.e("v_mov_b32 v2, s%d" % sSTAMP)
            a.e("s_lshl_b32 s%d, s2, 3" % sA)
            a.e("s_add_u32 s%d, s%d, s%d" % (sA, sA, sW))
            a.e("s_lshl_b32 s%d, s%d, 7" % (sA, sA))
            a.e("s_add_u32 s%d, s%d, 0x%x" % (sA, sA, WS_STAMP))
            a.e("s_mov_b64 exec, 1")
            a.vmop("buffer_store_dword v2, off, %s, s%d offset:12 sc1" % (srd(SWS), sA), "st")
            a.e("s_mov_b64 exec, -1")
        if n == Opt.hpub and not A:
            a.e("s_cmp_ge_u32 s%d, 14" % sM)
            a.e("s_cbranch_scc1 L_nohf")
            a.e("s_cmp_lg_u32 s%d, 4" % sW)
            a.e("s_cbranch_scc1 L_nohf")
            a.e("s_lshl_b32 s%d, s%d, 4" % (sA, sG))
            a.e("s_add_u32 s%d, s%d, s%d" % (sA, sA, sM))
            a.e("s_lshl_b32 s%d, s%d, 7" % (sA, sA))
            a.e("s_add_u32 s%d, s%d, 0x%x" % (sA, sA, WS_HFLAG))
            a.e("s_mov_b64 exec, 1")
            a.e("buffer_store_dword %s, off, %s, s%d sc1" % (v(vONE), srd(SWS), sA))
            a.e("s_mov_b64 exec, -1")
            a.lab("L_nohf")
        for r in kv_reads((n % 8) * 4096): a.e(r)
        if n == 8 and A:
            a.e("s_cmp_lg_u32 s%d, 0" % sW)
            a.e("s_cbranch_scc1 L_hf_nol")
            a.e("buffer_load_dword %s, %s, %s, 0 offen sc1" % (v(vPOLL), v(vFLA), srd(SWS)))
            a.lab("L_hf_nol")
        if n == 0:
            if A or Opt.hpub == 3:
                kvdma(2); kvdma(3)
            a.e("s_mov_b32 s%d, s%d" % (sC, sKQ))
            a.e("s_mul_i32 s%d, s%d, %d" % (sWDOFF, sC, 448 * 1024))
            a.e("s_and_b32 s%d, s%d, 1" % (sB, sW))
            a.e("s_lshl_b32 s%d, s%d, 14" % (sA, sB))
            a.e("s_add_u32 s%d, s%d, s%d" % (sWDOFF, sWDOFF, sA))
            a.e("s_lshl_b32 s%d, s%d, 1" % (sA, sT))
            a.e("s_add_u32 s%d, s%d, s%d" % (sA, sA, sB))
            a.e("s_mul_i32 s%d, s%d, 112" % (sA, sA))
            a.e("s_mul_i32 s%d, s%d, 28" % (sB, sC))
            a.e("s_add_u32 s%d, s%d, s%d" % (sA, sA, sB))
            a.e("s_lshl_b32 s%d, s%d, 10" % (sA, sA))
            a.e("s_add_u32 s%d, s%d, 0x%x" % (sHOFF, sA, WS_HF))
        if (A and n % 2 == 1 and n >= 3): kvdma((n + 5) // 2)
        if (not A and n % 2 == 0 and n >= 2): kvdma((n + 6) // 2)
        if 1 <= n <= 4:
            a.e("s_lshl_b32 s%d, s%d, 17" % (sB, sKQ))
            a.e("s_and_b32 s%d, s%d, 1" % (sC, sW))
            a.e("s_lshl_b32 s%d, s%d, 13" % (sC, sC))
            a.e("s_add_u32 s%d, s%d, s%d" % (sB, sB, sC))
            for j in (2 * n - 2, 2 * n - 1): wodma(j)
        for sg in {5: (27, 23, 24), 6: (25, 26, 0), 7: (1, 2)}.get(n, ()): wddma(sg)
        if n == 10:
            for r in wd_reads(vWX, vWDA, 3 * 8192): a.e(r)
        for j in ({7: (0,), 8: (1, 2), 9: (3, 4)} if A else {7: (0, 1), 8: (2, 3), 9: (4,)}).get(n, ()):
            for r in wd_reads(WOF[j], vWOA, (7 - j) * 8192): a.e(r)
        hs = {10: (0, 1, 23, 24), 11: (2, 25, 26, 27)} if A else {9: (0, 1, 23), 10: (2, 24), 11: (25, 26, 27)}
        if Opt.hlate: hs = {10: (0, 1), 11: (2,)} if A else {9: (0,), 10: (1,), 11: (2,)}
        for sg in hs.get(n, ()): hload(sg, vH + 4 * sg if sg < 4 else vHX if sg == 27 else vH + 4 * (sg - 19))
        if n == 11:
            a.e("s_add_u32 s%d, s%d, 0x%x" % (sHOFF, sHOFF, 3 * 1024))
            a.e("s_add_u32 s%d, s%d, 0x%x" % (sWDOFF, sWDOFF, wdrow(3)))
            a.e("s_add_u32 s%d, s%d, 0x%x" % (sKVOFF, sWK, 9 * 8192))
            a.e("s_mov_b32 s%d, 4" % sCNT)
            a.e("s_add_u32 s%d, s%d, 0x1000" % (sOLD2, sOLD))
            a.e("s_mov_b32 s%d, 0x%x" % (sLO_, f2u(2.0 ** -16)))
            a.e("s_mov_b32 s%d, 0x%x" % (sRNG, f2u(2.0 ** 100) - f2u(2.0 ** -16)))
        if n == 0 and pre0:
            pre0()
            a.stamp(5)
        a.e("s_waitcnt lgkmcnt(0)")
        if n == 0:
            if A: a.e("s_barrier")
            for x in Yseg(None, first=True): a.e(x)
            if not A: a.e("s_barrier")
            continue
        a.e("s_call_b64 %s, L_Y%s" % (sp(sRET), role))
        if n == 1:
            a.e("s_branch L_X1%s" % role)
            a.lab("L_Y%s" % role)
            if A: a.e("s_barrier")
            for x in Yseg(None): a.e(x)
            if not A: a.e("s_barrier")
            a.e("s_setpc_b64 %s" % sp(sRET))
            a.lab("L_X1%s" % role)
    assert not (Opt.hlate and Opt.nx)
    hl = {28: (27, 23), 29: (24, 25), 30: (26,)} if Opt.hlate else {}
    vm = list(a.vm); need = [63] * 8
    for n in range(12, 32):
        p = n % 4; q = p + (4 if n >= 28 else 0)
        tags = ["wd%d" % (n - 11), "h%d" % (n - 12)]
        if (p % 2 == 1) == A: tags.append("kv%d" % ((n + (1 if A else 2)) // 2))
        idx = [i for i, t in enumerate(vm) if t in tags]
        if idx: need[q] = min(need[q], len(vm) - 1 - max(idx))
        vm.append("wd%d" % (n - 9))
        vm.append("h%d" % (n - 9))
        if (p % 2 == 1) == A and n < 28: vm.append("kv%d" % ((n + (5 if A else 6)) // 2))
        vm += ["hx"] * len(hl.get(n, ()))
    a.lab("L_loop%s" % role)
    for q in range(8):
        p = q % 4; fin = q >= 4
        kv = (p % 2 == 1) == A and not fin
        if q == 0 and Opt.diag and Opt.kdiag == 2:
            a.e("s_cmp_lg_u32 s%d, 3" % sCNT)
            a.e("s_cbranch_scc1 L_nst%s" % role)
            astamp(a, 8)
            a.lab("L_nst%s" % role)
        a.e("s_waitcnt vmcnt(%d)" % need[q])
        for i, r in enumerate(kv_reads(p * 4096, vKVB)):
            if not (q == 7 and i == 1): a.e(r)
        if q <= 8 - Opt.nd:
            for r in wd_reads(vWF, vWDA, p * 8192): a.e(r)
        if fin and p < Opt.nx:
            for r in wd_reads(vFR + 16, vWDA, (4 + p) * 8192): a.e(r)
        if q == 7:
            for r in wd_reads(vFR, vWDA, (4 + Opt.nx) * 8192): a.e(r)
        a.e("s_add_u32 m0, s%d, 0x%x" % (sWK, L_WD + ((p + 3) % 4) * 8192))
        a.e("s_and_b32 s%d, s%d, 0x7fff" % (sA, sKVOFF))
        a.e("buffer_load_dwordx4 %s, %s, s%d offen lds" % (v(vWDV), srd(SWD), sWDOFF))
        a.e("s_add_u32 s%d, s%d, 0x%x" % (sWDOFF, sWDOFF, 0x2000 if p & 1 else 0x6000))
        a.e("buffer_load_dwordx4 %s, %s, %s, s%d offen sc1" % (v(vKF + 4 if q == 7 and Opt.nd == 2 else vH + 4 * ((p + 3) % 4), 4), v(vL16), srd(SWS), sHOFF))
        if kv: a.e("s_add_u32 m0, s%d, 0x%x" % (sA, L_KV))
        a.e("s_add_u32 s%d, s%d, 0x400" % (sHOFF, sHOFF))
        if kv:
            a.e("buffer_load_dwordx4 %s, %s, s%d offen sc1 lds" % (v(vL16), srd(SKV), sKVOFF))
            a.e("s_add_u32 s%d, s%d, 0x2000" % (sKVOFF, sKVOFF))
        for sg in (hl.get(24 + q, ()) if fin else ()):
            a.e("s_add_u32 s%d, s%d, 0x%x" % (sA, sHOFF, (sg - (16 + q)) * 1024))
            a.e("buffer_load_dwordx4 %s, %s, %s, s%d offen sc1" % (v(vHX if sg == 27 else vH + 4 * (sg - 19), 4), v(vL16), srd(SWS), sA))
        if q == 3:
            a.e("s_sub_u32 s%d, s%d, 1" % (sCNT, sCNT))
            a.e("s_cmp_lg_u32 s%d, 0" % sCNT)
        a.e("s_waitcnt lgkmcnt(0)")
        if A: a.e("s_barrier")
        for x in Yseg(p if q < 8 - Opt.nd else None, toggle=(q == 3), extra=(fin and p < Opt.nx), last=(q == 7)): a.e(x)
        if not A and q < 7: a.e("s_barrier")
        if q == 3: a.e("s_cbranch_scc1 L_loop%s" % role)
    a.e("s_nop 1")

def transition(a, role):
    A = role == "A"
    if A:
        a.vm = []
        a.lab("L_trA")
    else:
        a.lab("L_join")
        a.e("s_cmp_eq_u32 s%d, 0" % sHI)
        a.e("s_cbranch_scc1 L_trA")
        a.vmjoin = list(a.vm)
    def qfin():
        for i in range(4): a.e("v_cvt_pk_bf16_f32 %s, %s, %s" % (v(vQ + i), v(vAQ + 2 * i), v(vAQ + 2 * i + 1)))
        a.e("v_add_u32 %s, 0x%x, %s" % (v(vWOA), L_WO, v(vWDA)))
        a.e("v_permlane16_swap_b32 %s, %s" % (v(vQ), v(vQ + 2)))
        a.e("v_permlane16_swap_b32 %s, %s" % (v(vQ + 1), v(vQ + 3)))
    pre0 = None
    if A:
        a.e("s_setprio 1")
        a.e("s_cmp_ge_u32 s%d, 14" % sM)
        a.e("s_cbranch_scc1 L_nogA0")
        put(a, a.kvA[:1] + a.kvA[-1:])
        a.l.append(".p2align 3")
        for ti in range(Opt.gsc): gelu_tile(a, ti, True)
        a.lab("L_nogA0")
        qfin()
        a.waitvm(["k0", "kv0", "kv1"])
        a.e("s_setprio 0")
        a.e(mfma(vS, vK0, vQ, None))
        a.e("s_barrier")
        put(a, a.kvA[1:-1])
        def pre0():
            a.e("s_cmp_lt_u32 s%d, 14" % sM)
            a.e("s_cbranch_scc1 L_gA1")
            a.e("s_waitcnt vmcnt(0)")
            a.e("s_branch L_nogA1")
            a.l.append(".p2align 3")
            a.lab("L_gA1")
            for ti in range(Opt.gsc, 4): gelu_tile(a, ti)
            a.lab("L_nogA1")
            a.e("s_setprio 2")
    else:
        a.waitvm(["k0", "kv0", "kv1"])
        a.e("s_setprio 1")
        if Opt.hpub == 3:
            a.e("s_cmp_ge_u32 s%d, 14" % sM)
            a.l.append(".p2align 3")
            a.e("s_barrier")
            a.e("s_cbranch_scc1 L_nogB")
        else:
            a.e("s_barrier")
            for u in (2, 3):
                a.vmop("s_add_u32 m0, s%d, 0x%x\ns_add_u32 s%d, s%d, 0x%x\nbuffer_load_dwordx4 %s, %s, s%d offen sc1 lds"
                       % (sWK, L_KV + u * 8192, sA, sWK, u * 8192, v(vL16), srd(SKV), sA), "kv%d" % u)
            a.e("s_cmp_lt_u32 s%d, 14" % sM)
            a.e("s_cbranch_scc1 L_gB")
            a.e("s_waitcnt vmcnt(0)")
            a.e("s_branch L_nogB")
            a.l.append(".p2align 3")
            a.lab("L_gB")
        for ti in range(4): gelu_tile(a, ti)
        a.lab("L_nogB")
        qfin()
        a.e("s_nop 1")
        a.e(mfma(vS, vK0, vQ, None))
        a.stamp(5)
    attention(a, role, pre0)
    if A:
        a.stamp(6); astamp(a, 9); tstamp(a, 2)
        if Opt.diag and Opt.kdiag == 2: a.e("s_waitcnt lgkmcnt(0)")
        a.e(smfmac(vO, vV1L, vS + 24))
        a.e("s_setprio 0")
        a.e("s_cmp_eq_u32 s%d, 0" % sHI)
        a.e("s_nop 9")
        normalise(a, False)
        a.lab("L_fbretA")
        a.e("buffer_store_dwordx4 %s, %s, %s, s%d offen sc1" % (v(vPK, 4), v(vL16), srd(SWS), sOST))
        tstamp(a, 3)
        a.e("s_waitcnt vmcnt(1)")
        tstamp(a, 4)
        a.e("s_barrier")
        a.fetch(a, False)
        a.e("s_branch L_tl2")

def normalise(a, packed):
    t = vT0
    a.e("v_rcp_f32 %s, %s" % (v(t + 2), v(vO + 8)))
    a.e("s_nop 0")
    a.e("v_mul_f32_e64 %s, %s, %s" % (v(t + 2), v(t + 2), v(vGP)))
    if packed:
        for i in range(4): a.e("v_pk_mul_f32 %s, %s, %s op_sel_hi:[1,0]" % (v(vO + 2 * i, 2), v(vO + 2 * i, 2), v(t + 2, 2)))
        for i in range(4):
            a.e("v_pk_fma_f32 %s, %s, 0, %s op_sel_hi:[1,0,%d]" % (v(t, 2), v(vO + 2 * i, 2), v(t, 2) if i else v(vO + 8, 2), 1 if i else 0))
            a.e("v_cvt_pk_bf16_f32 %s, %s, %s" % (v(vPK + i), v(vO + 2 * i), v(vO + 2 * i + 1)))
        a.e("v_fmac_f32 %s, 0, %s" % (v(t), v(t + 1)))
    else:
        t = vO + 8
        for i in range(8): a.e("v_mul_f32 %s, %s, %s" % (v(vO + i), v(vT0 + 2), v(vO + i)))
        for i in range(4):
            a.e("v_fmac_f32 %s, 0, %s" % (v(t), v(vO + 2 * i)))
            a.e("v_cvt_pk_bf16_f32 %s, %s, %s" % (v(vPK + i), v(vO + 2 * i), v(vO + 2 * i + 1)))
            a.e("v_fmac_f32 %s, 0, %s" % (v(t), v(vO + 2 * i + 1)))
    a.e("v_subrev_u32 %s, s%d, %s" % (v(t), sLO_, v(t)))
    a.e("v_cmp_lt_u32 vcc, s%d, %s" % (sRNG, v(t)))
    a.e("s_branch L_fb" if Opt.force_fb else "s_cbranch_vccnz L_fb")

def tail(a):
    a.lab("L_tail")
    a.stamp(6)
    astamp(a, 9)
    if Opt.diag and Opt.kdiag == 2: a.e("s_waitcnt lgkmcnt(0)")
    tstamp(a, 2)
    a.e(smfmac(vO, vV1L, vS + 24))
    wf = [vFR, vFR + 8, vFR + 16]
    HORD = hord()
    def oload(j):
        return "buffer_load_dwordx4 %s, %s, %s, s%d offen offset:%d %s" % (
            v(vS + 4 * j, 4), v(vL16), srd(SWS), sOLD if HORD[j] < 4 else sOLD2, (HORD[j] % 4) * 1024, Opt.old_pol)
    a.oload = oload
    a.e("s_cmp_eq_u32 s%d, 0" % sHI)
    a.e("s_nop 10")
    a.l.append(".p2align 3")
    normalise(a, True)
    a.lab("L_fbret")
    a.e("buffer_store_dwordx4 %s, %s, %s, s%d offen sc1" % (v(vPK, 4), v(vL16), srd(SWS), sOST))
    tstamp(a, 3)
    aw = [vAW0, vWOA + 1, vWOA + 2, vWOA + 3]
    ar = [vAR0, vFLA]
    wo = WOF
    def fetch(o, scale):
        for j in range(8):
            o.e(oload(j))
            if j >= 5:
                for r in wd_reads(wo[j], vWOA, (7 - j) * 8192): o.e(r)
            if scale and j >= 4:
                for i in range(4 * j - 16, 4 * j - 12): o.e("v_mul_f32 %s, %s, %s" % (v(vD + i), v(vGC), v(vD + i)))
    def addrs(a):
        a.e("v_sub_f32 %s, 1.0, %s" % (v(vGC), v(vGC)))
        for j in range(1, 4): a.e("v_xor_b32 %s, %d, %s" % (v(aw[j]), 32 * j, v(aw[0])))
        a.e("v_xor_b32 %s, 16, %s" % (v(ar[1]), v(ar[0])))
        a.e("s_mov_b32 s%d, 0x2000" % sB)
    ol = Asm(); a.ool2 = ol.l
    a.e("s_waitcnt vmcnt(1)")
    tstamp(a, 4)
    a.e("s_barrier")
    a.lab("L_tl2")
    tstamp(a, 5)
    a.fetch = fetch
    fl = collect(addrs)
    slot = [4, 5, 6, 7, 0, 1, 2][Opt.nx:] + ([3] if Opt.nd == 2 else [])
    hreg = lambda sl: vKF + 4 if sl == 2 and Opt.nd == 2 else vH + 4 * sl
    inreg = [(vWX, vHX)] + ([(vWF, vH + 4 * (4 - Opt.nd))] if Opt.nd else [])
    rds = sum((wd_reads(wf[i % 3], vWDA, slot[i] * 8192) for i in range(len(slot))), [])
    done = 4
    for i in range(-len(inreg), len(slot)):
        for c in range(2):
            if i >= 1: a.e("s_waitcnt lgkmcnt(%d)" % (done - (4 * i + 2 * c + 2)))
            a.e(mfma(vD + 16 * c, inreg[i][0] + 4 * c, inreg[i][1], vD + 16 * c) if i < 0 else
                mfma(vD + 16 * c, wf[i % 3] + 4 * c, hreg(slot[i]), vD + 16 * c))
            if i < -1: continue
            if done < len(rds):
                for r in rds[done:done + 2]: a.e(r)
                done += 2
            else:
                put(a, fl[:2]); fl = fl[2:]
    assert not fl
    tstamp(a, 6)
    a.e("s_cbranch_scc0 L_tl3")
    a.l.append(".p2align 3")
    a.e("s_nop 7")
    a.e("s_nop 0")
    for i in range(16): a.e("v_pk_mul_f32 %s, %s, %s op_sel:[0,1] op_sel_hi:[1,1]" % (v(vD + 2 * i, 2), v(vD + 2 * i, 2), v(vGP, 2)))
    tstamp(a, 7)
    a.lab("L_tl4")
    tstamp(a, 8)
    ol.lab("L_tl3")
    ol.e("s_setprio 0")
    fetch(ol, False)
    tstamp(ol, 7)
    for i in range(32): ol.e("v_mul_f32 %s, %s, %s" % (v(vD + i), v(vGC), v(vD + i)))
    ol.e("s_waitcnt lgkmcnt(0)")
    def check(j):
        o = vS + 4 * j
        return ["s_waitcnt vmcnt(%d)" % (7 - j), "v_max3_u32 v2, %s, %s, %s" % (v(o), v(o + 1), v(o + 2)),
                "v_max_u32 v2, v2, %s" % v(o + 3), "v_cmp_eq_u32 vcc, -1, v2"]
    for j in range(Opt.bpre):
        for x in check(j): ol.e(x)
        ol.e("s_cbranch_vccnz L_bp%d" % j)
    ol.e("s_branch L_tl4")
    if Opt.bpre:
        for j in range(8):
            if j < Opt.bpre: ol.lab("L_bp%d" % j)
            ol.e(oload(j))
        ol.e("s_branch L_tl4")
    a.stamp(7)
    def check(j):
        o = vS + 4 * j
        return ["s_waitcnt vmcnt(%d)" % (7 - j), "v_max3_u32 v2, %s, %s, %s" % (v(o), v(o + 1), v(o + 2)),
                "v_max_u32 v2, v2, %s" % v(o + 3), "v_cmp_eq_u32 vcc, -1, v2"]
    a.check = check
    for x in check(0): a.e(x)
    for j in range(10):
        if j < 8:
            a.e("s_cbranch_vccnz L_ore%d" % j)
            a.lab("L_ook%d" % j)
            a.e(mfma(vD, wo[j], vS + 4 * j, vD))
        if j >= 2 and Opt.cfirst: a.e(mfma(vD + 16, wo[j - 2] + 4, vS + 4 * (j - 2), vD + 16))
        if j < 7:
            for x in check(j + 1): a.e(x)
        if j >= 2 and not Opt.cfirst: a.e(mfma(vD + 16, wo[j - 2] + 4, vS + 4 * (j - 2), vD + 16))
        if j in (7, 8): a.e("s_nop 4")
    wr = lambda c, j: "ds_write_b128 %s, %s offset:%d" % (v(aw[j]), v(vD + 16 * c + 4 * j, 4), 128 * c)
    a.stamp(8)
    tstamp(a, 9)
    for j in range(4): a.e(wr(0, j))
    a.e("s_nop 7")
    for j in range(4): a.e(wr(1, j))
    a.e("s_waitcnt lgkmcnt(0)")
    a.e("s_barrier")
    for p in range(4):
        for h in range(2): a.e(rd128(vS + 8 * p + 4 * h, ar[h], p * 8192))
    for p in range(1, 4):
        a.e("s_waitcnt lgkmcnt(%d)" % (6 - 2 * p))
        for i in range(4): a.e("v_pk_add_f32 %s, %s, %s" % (v(vS + 2 * i, 2), v(vS + 2 * i, 2), v(vS + 8 * p + 2 * i, 2)))
    for i in range(4): a.e("v_cvt_pk_bf16_f32 %s, %s, %s" % (v(vP + i), v(vS + 2 * i), v(vS + 2 * i + 1)))
    a.e("buffer_store_dwordx4 %s, %s, %s, s%d offen %s" % (v(vP, 4), v(vOUTA), srd(SOUT), sOUTO, Opt.out_pol))
    if Opt.probe >= 0:
        a.e("s_waitcnt vmcnt(0)")
        a.stamp(9)
        if Opt.probe != 9:
            a.e("s_cmp_ge_u32 s%d, 14" % sM)
            a.e("s_cbranch_scc%d L_end" % (0 if Opt.probe_l else 1))
        a.e("s_sub_u32 s%d, s%d, s%d" % (sA, sSTAMP + 4, sSTAMP))
        a.e("s_mul_i32 s%d, s%d, %d" % (sA, sA, Opt.probe_mul - 1))
        if Opt.pcyc >= 0:
            a.e("s_sub_u32 s%d, s%d, s%d" % (sA, sSTAMP + 8, sSTAMP + 6))
            if Opt.prt: a.e("s_mul_i32 s%d, s%d, 10" % (sA, sA))
            a.e("s_mov_b32 s%d, s%d" % (sSTAMP + 4, sSTAMP))
        a.e("s_min_u32 s%d, s%d, 100000" % (sA, sA))
        a.e("s_add_u32 s%d, s%d, 3800" % (sA, sA))
        if Opt.probe_r >= 0:
            a.e("s_cmp_eq_u32 s%d, 0x2000" % sB)
            a.e("s_cbranch_scc%d L_end" % Opt.probe_r)
        if Opt.probe_w >= 0:
            a.e("s_cmp_lg_u32 s%d, %d" % (sHI, Opt.probe_w))
            a.e("s_cbranch_scc1 L_end")
        if Opt.probe_x >= 0:
            a.e("s_and_b32 s0, s2, 7")
            a.e("s_cmp_lg_u32 s0, %d" % Opt.probe_x)
            a.e("s_cbranch_scc1 L_end")
        a.lab("L_probe")
        a.e("s_memrealtime s[0:1]")
        a.e("s_waitcnt lgkmcnt(0)")
        a.e("s_sub_u32 s0, s0, s%d" % (sSTAMP + 4))
        a.e("s_cmp_lt_u32 s0, s%d" % sA)
        a.e("s_cbranch_scc1 L_probe")
    if Opt.pin == 9:
        a.e("s_waitcnt vmcnt(0)")
        a.stamp(9)
    if Opt.diag in (1, 2):
        a.e("s_waitcnt vmcnt(0)")
        a.stamp(9)
        a.e("s_mov_b32 s%d, s%d" % (sSTAMP + 3, sSTAMP))
        a.e("s_mov_b32 s%d, s%d" % (sSTAMP, sB))
        a.e("s_getreg_b32 s%d, hwreg(HW_REG_XCC_ID)" % (sSTAMP + 1))
        for i in range(20): a.e("v_mov_b32 %s, s%d" % (v(vS + i), sSTAMP + i))
        a.e("s_lshl_b32 s%d, s2, 3" % sA)
        a.e("s_add_u32 s%d, s%d, s%d" % (sA, sA, sW))
        a.e("s_lshl_b32 s%d, s%d, 7" % (sA, sA))
        a.e("s_add_u32 s%d, s%d, 0x%x" % (sA, sA, WS_STAMP))
        a.e("s_mov_b64 exec, 1")
        for i in range(5): a.e("buffer_store_dwordx4 %s, off, %s, s%d offset:%d" % (v(vS + 4 * i, 4), srd(SWS), sA, 16 * i))
    a.lab("L_end")
    a.e("s_endpgm")
    a.l += a.ool2
    for j in range(8):
        a.lab("L_ore%d" % j)
        a.e("s_sub_u32 s%d, s%d, 1" % (sB, sB))
        a.e("s_cbranch_scc1 L_ogive%d" % j)
        if Opt.rwait: a.e("s_waitcnt vmcnt(0)")
        if Opt.rwait > 1: a.e("s_sleep %d" % Opt.rwait)
        for i in range(j, 8): a.e(a.oload(i))
        for x in a.check(j): a.e(x)
        a.e("s_cbranch_vccnz L_ore%d" % j)
        a.e("s_branch L_ook%d" % j)
        a.lab("L_ogive%d" % j)
        a.e("s_mov_b32 s%d, 0" % sB)
        a.e("s_branch L_ook%d" % j)

def fallback(a):
    a.lab("L_fb")
    m = vT0
    a.e("v_mov_b32 %s, 0xff800000" % v(m))
    a.e("s_mov_b32 s%d, 0" % sA)
    a.lab("L_fb1")
    a.e("buffer_load_dwordx4 %s, %s, %s, s%d offen sc1" % (v(vKF, 4), v(vL16), srd(SKV), sA))
    a.e("s_waitcnt vmcnt(0)")
    a.e(mfma(vS, vKF, vQ, None))
    a.e("s_add_u32 s%d, s%d, 2048" % (sA, sA))
    a.e("s_nop 11")
    for i in range(8): a.e("v_max3_f32 %s, %s, %s, %s" % (v(m), v(m), v(vS + 2 * i), v(vS + 2 * i + 1)))
    a.e("s_cmp_lt_u32 s%d, 0x20000" % sA)
    a.e("s_cbranch_scc1 L_fb1")
    a.e("v_mov_b32 %s, %s" % (v(m + 1), v(m)))
    a.e("s_nop 1")
    a.e("v_permlane32_swap_b32 %s, %s" % (v(m), v(m + 1)))
    a.e("s_nop 1")
    a.e("v_max_f32 %s, %s, %s" % (v(m), v(m), v(m + 1)))
    for i in range(16): a.e("v_sub_f32 %s, 0, %s" % (v(vS + 16 + i), v(m)))
    for i in range(16): a.e("v_mov_b32 %s, 0" % v(vO + i))
    a.e("s_mov_b32 s%d, 0" % sA)
    a.lab("L_fb2")
    a.e("s_add_u32 s%d, s%d, 0x%x" % (sB, sA, 63 * 2048))
    a.e("s_and_b32 s%d, s%d, 0x1ffff" % (sB, sB))
    a.e("buffer_load_dwordx4 %s, %s, %s, s%d offen sc1" % (v(vKF, 4), v(vL16), srd(SKV), sB))
    a.e("s_add_u32 s%d, s%d, 2048" % (sB, sA))
    a.e("s_and_b32 s%d, s%d, 0x1ffff" % (sB, sB))
    a.e("s_mov_b64 exec, %s" % sp(sVM))
    a.e("buffer_load_dwordx4 %s, %s, %s, s%d offen offset:1024 sc1" % (v(vV, 4), v(vL16), srd(SKV), sA))
    a.e("buffer_load_dwordx4 %s, %s, %s, s%d offen offset:1280 sc1" % (v(vV + 4, 4), v(vL16), srd(SKV), sB))
    a.e("s_mov_b64 exec, -1")
    a.e("s_waitcnt vmcnt(0)")
    a.e(mfma(vS, vKF, vQ, vS + 16))
    a.e("s_add_u32 s%d, s%d, 2048" % (sA, sA))
    a.e("s_nop 11")
    for i in range(16): a.e("v_exp_f32 %s, %s" % (v(vS + i), v(vS + i)))
    a.e("s_nop 2")
    a.e(smfmac(vO, vV, vS))
    a.e(smfmac(vO, vV + 4, vS + 8))
    a.e("s_cmp_lt_u32 s%d, 0x20000" % sA)
    a.e("s_cbranch_scc1 L_fb2")
    a.e("s_nop 11")
    a.e("v_rcp_f32 %s, %s" % (v(vT0 + 2), v(vO + 8)))
    a.e("s_cmp_eq_u32 s%d, 0" % sHI)
    a.e("v_mul_f32 %s, %s, %s" % (v(vT0 + 2), v(vT0 + 2), v(vGP)))
    for i in range(8): a.e("v_mul_f32 %s, %s, %s" % (v(vO + i), v(vT0 + 2), v(vO + i)))
    for i in range(4): a.e("v_cvt_pk_bf16_f32 %s, %s, %s" % (v(vPK + i), v(vO + 2 * i), v(vO + 2 * i + 1)))
    for i in range(4): a.e("v_min_u32 %s, -2, %s" % (v(vPK + i), v(vPK + i)))
    a.e("s_cbranch_scc1 L_fbretA")
    a.e("s_branch L_fbret")

def build():
    a = Asm()
    prologue(a)
    phase1_F(a)
    transition(a, "B")
    tail(a)
    a.l += a.ool
    transition(a, "A")
    phase1_L(a)
    fallback(a)
    a.lab("L_codeend")
    for i, x in enumerate(a.l):
        if " sc1" in x and "sc0" not in x and ((Opt.allsc & 1 and "buffer_store" in x) or (Opt.allsc & 2 and "buffer_load" in x)):
            a.l[i] = x.replace(" sc1", " sc0 sc1")
    il = a.l.index("L_light:")
    for i, x in enumerate(a.l):
        if x.endswith(" lds") and "sc1" not in x and " nt" not in x:
            if (Opt.ntx & 4 and (srd(SWD) in x or srd(SWO) in x)) or (Opt.ntx & 8 and i > il):
                a.l[i] = x[:-4] + " nt lds"
    head = open("cdna_kernels/%s.s.ref" % NAME).read().split("\n")
    hdr = [l for l in head if l.startswith(";") and "@launch" not in l and "Override" not in l and "grid=" not in l]
    out = hdr + ["; @launch grid=(256,1,1) block=(512,1,1) lds=%d" % LDS_BYTES,
                 '.amdgcn_target "amdgcn-amd-amdhsa--gfx950"', ".text", ".globl %s_kernel" % NAME, ".p2align 8",
                 ".type %s_kernel,@function" % NAME,
                 ".set CODE_PF_MAX, L_codeend - L_nopf - 4" if Opt.code_pf else "",
                 "%s_kernel:" % NAME]
    if Opt.diag: out += ["; mapmode %d" % (1 + 3 * bool(Opt.oddl))]
    out += ["; " + x for x in """One persistent launch, one workgroup per CU (generated by a script), 8 waves = two quartets that alternate on each SIMD.
Stage 1: 14 of every 16 workgroups compute gelu(x Wg) * (x Wu) for 128 tokens x 128 columns plus Q for two heads;
         the other two compute K, V and the mixing gate, publish them (counter in d_debug) and then their own Q.
Stage 2: attention for 128 tokens x 2 heads over all keys, S^T = K Q^T, exp2 in place, P V through sparse MFMAs that
         read the high halves of the fp32 probabilities; a row of ones in the V operand gives the row sums.
         The stand-in maximum is 0: it is accepted only if the row sum lies in [2^-16, 2^100] and every accumulator is
         finite, otherwise the wave redoes its rows with the true maximum (L_fb).
         The down projection of a 64 x 64 output tile runs in the same loop once the producers' flags are seen.
Stage 3: attention outputs are handed over through d_ws (cleared to a mark earlier in this launch), projected,
         mixed with the FFN branch, reduced through LDS and stored.""".split("\n")]
    out += a.l
    out += ['.section .rodata,"a"', ".p2align 6", ".amdhsa_kernel %s_kernel" % NAME,
            "  .amdhsa_next_free_vgpr %d" % NV, "  .amdhsa_next_free_sgpr 102", "  .amdhsa_accum_offset 256",
            "  .amdhsa_group_segment_fixed_size 0", "  .amdhsa_kernarg_size 104", "  .amdhsa_user_sgpr_count 2",
            "  .amdhsa_user_sgpr_kernarg_segment_ptr 1", "  .amdhsa_system_sgpr_workgroup_id_x 1", ".end_amdhsa_kernel", ""]
    return "\n".join(out)

if __name__ == "__main__":
    path = sys.argv[1]
    for kv in sys.argv[2:]:
        k, val = kv.split("=")
        cur = getattr(Opt, k)
        setattr(Opt, k, val if isinstance(cur, str) else type(cur)(int(val)))
    open(path, "w").write(build())
```

```python
import sys, struct, math

NAME = "gated_mix__grouped_kv_mqa__geglu_ffn__prompt"

class Opt:
    diag = 0
    mapmode = 1
    force_fb = False
    allsc = 0
    out_pol = "sc0 sc1"
    code_pf = True
    xrot = 0
    pregap = 0
    kw0 = 1
    kb = 3
    kal = 1
    xodd = 43
    xeven = 32
    hsl = 2
    lthr = 0
    klate = 0
    bpre = 0
    oddl = 1
    hlate = 1
    hpub = 3
    rwait = 1
    aearly = 0
    bidle = 1
    old_pol = "sc1"
    ypos0 = "36g"
    ypos1 = "36bg"
    ypos2 = "36cg9"
    nd = 1
    nx = 0
    tpos = 1
    cfirst = 0
    tch = 12
    stch = 0
    spos = 1
    tlb = 6
    olate = 1
    hrot = 0
    tbar = 0
    hord = 1
    cmap = 1
    kqx = 2
    oearly = 8
    conc = 1
    ghx = 1
    qa = "077777"
    qb = "588888"
    npre = 8
    stagger = 1
    rper = 2
    dma1 = 17
    kprio = 0
    dma0 = 8
    npd = 4
    kdiag = 0
    fillpre = 0
    fillper = 5
    gsc = 2
    sched = 0
    xmask = 1
    ntx = 0
    touch = 2
    rotg = 0
    rotm = 0
    startbar = 1
    pvz = 1
    pin = -1
    pin_ns = 60000
    probe = -1
    probe_x = -1
    probe_mul = 10
    probe_w = -1
    probe_r = -1
    pcyc = -1
    prt = 0
    probe_l = 0

def f2u(x): return struct.unpack("<I", struct.pack("<f", x))[0]

WS_KV = 0
WS_G = 128 * 1024
WS_HFLAG = 192 * 1024
WS_OF = 1 << 20
WS_HF = 4 << 20
WS_STAMP = 12 << 20
WS_SIZE = 16 << 20
K1 = 1024
L_G, L_U, L_X, L_WQ = 0, 48 * K1, 96 * K1, 144 * K1
L_QX = 32 * K1
L_WD, L_WO, L_KV = 0, 64 * K1, 128 * K1
L_RED = 96 * K1
LL_X, LL_W, LL_GATE, LL_WQ = 0, 128 * K1, 144 * K1, 128 * K1
LDS_BYTES = 160 * K1

SX, SWG, SWU, SWQ, SWS, SWD, SWO, SOUT, SDBG, SWKV, SGATE, SKV = 4, 8, 12, 16, 20, 24, 28, 32, 36, 40, 44, 64
SWV = 72
sTMPP = 48
sW, sHI, sLO, sG, sM, sT, sCB = 50, 51, 52, 53, 54, 55, 56
sWK = 57
sWH = 58
sVM = 60
sRET = 62
sA, sB, sC, sD = 68, 69, 70, 71
sOFFW, sOFFQ, sCH, sXP = 72, 73, 74, 75
sHOFF, sWDOFF, sKVOFF, sHXO, sCNT = 72, 73, 74, 75, 77
sOUTO, sLO_, sRNG = 59, 81, 75
sOLD2 = 58
sOST, sOLD, sHST = 78, 79, 80
sHST2 = 3
sRX, sRW, sM0B = 40, 41, 42
sKQ = 76
sHP = 81
sSTAMP = 82

def srd(b): return "s[%d:%d]" % (b, b + 3)
def sp(b): return "s[%d:%d]" % (b, b + 1)
def v(b, n=1): return "v%d" % b if n == 1 else "v[%d:%d]" % (b, b + n - 1)

vL16 = 1
vT0, vT1, vT2, vT3 = 2, 3, 4, 5
vGP, vGC = 6, 7
vKVA = 8
vWDA = 9
vWDV = 10
vONE = 11
vZERO = 12
vFLA = 13
vPOLL = 14
vGA = 15
vQ = 16
vK0 = 20
vV1L = 24
vIDX = 28
vAW0, vAR0, vOUTA = 30, 31, 12
vKVB = 29
vP = 32
vV = 40
vO = 56
vD = 72
vACC = 104
vS = 104
vH = 136
vAQ = vP
vF1 = 168
vKF = 168
vWF = 176
vWX = 224
vHX = 232
vPK = 20
WOF = [32, 208, 216, 240, 248, 40, 48, 56]
vWOA = 236
vFR = 184
vLX = 224
vXA = 240
vWA = 244
vQA = 248
vDX, vDG, vDQ = 249, 250, 251
vC0 = 252
vTID = 255
vHA = 254
NV = 256

class Asm:
    def __init__(self):
        self.l = []
        self.vm = []
        self.nstamp = 0
    def e(self, s):
        for x in s.split("\n"):
            x = x.strip()
            if x: self.l.append("    " + x)
    def lab(self, s): self.l.append(s + ":")
    def vmop(self, s, tag):
        self.e(s); self.vm.append(tag)
    def vmn(self, tags):
        if isinstance(tags, str): tags = [tags]
        last = -1
        for i, t in enumerate(self.vm):
            if t in tags: last = i
        return None if last < 0 else len(self.vm) - 1 - last
    def waitvm(self, tags, lgkm=False):
        n = self.vmn(tags)
        if n is None:
            if lgkm: self.e("s_waitcnt lgkmcnt(0)")
            return
        assert n < 64
        self.e("s_waitcnt vmcnt(%d)%s" % (n, " lgkmcnt(0)" if lgkm else ""))
        self.vm = self.vm[len(self.vm) - n:] if n else []
    def wait0(self, lgkm=False):
        self.e("s_waitcnt vmcnt(0)%s" % (" lgkmcnt(0)" if lgkm else "")); self.vm = []
    def stamp(self, i, real=False):
        if Opt.probe == i:
            self.e("s_waitcnt lgkmcnt(0)")
            self.e("s_memrealtime %s" % sp(sSTAMP + 4))
            if Opt.pcyc >= 0: self.e("%s %s" % ("s_memrealtime" if Opt.prt else "s_memtime", sp(sSTAMP + 8)))
            self.e("s_waitcnt lgkmcnt(0)")
        if Opt.pin == i:
            self.nstamp += 1
            self.e("s_waitcnt lgkmcnt(0)")
            self.e("s_cselect_b32 s%d, 1, 0" % (sSTAMP + 5))
            self.lab("L_pin%d" % self.nstamp)
            self.e("s_memrealtime s[0:1]")
            self.e("s_waitcnt lgkmcnt(0)")
            self.e("s_sub_u32 s0, s0, s%d" % sSTAMP)
            self.e("s_cmp_lt_u32 s0, %d" % (Opt.pin_ns // 10))
            self.e("s_cbranch_scc1 L_pin%d" % self.nstamp)
            self.e("s_cmp_lg_u32 s%d, 0" % (sSTAMP + 5))
        if Opt.diag and not Opt.kdiag and (Opt.diag == 1 or i == 9):
            self.e("s_waitcnt lgkmcnt(0)")
            self.e("s_memtime %s" % sp(sSTAMP + 2 * i))
            self.e("s_memrealtime %s" % sp(sRET))
            self.e("s_waitcnt lgkmcnt(0)")
            self.e("s_mov_b32 s%d, s%d" % (sSTAMP + 2 * i + 1, sRET))

def astamp(a, i):
    if Opt.diag and Opt.kdiag == 2: a.e("s_memtime %s" % sp(sSTAMP + 2 * i))

def tstamp(a, i):
    if Opt.diag and Opt.kdiag == 3: a.e("s_memtime %s" % sp(sSTAMP + 2 * i))

def kstamp(a, i):
    if Opt.probe == 18 + i: a.e("s_memrealtime %s" % sp(sSTAMP + 4))
    if Opt.diag and Opt.kdiag == 1: a.e("s_memtime %s" % sp(sSTAMP + 2 * i))

def mfma(d, a, b, c):
    return "v_mfma_f32_32x32x16_bf16 %s, %s, %s, %s" % (v(d, 16), v(a, 4), v(b, 4), "0" if c is None else v(c, 16))
def smfmac(d, a, b):
    return "v_smfmac_f32_32x32x32_bf16 %s, %s, %s, %s" % (v(d, 16), v(a, 4), v(b, 8), v(vIDX))
def mfma16(d, a, b, c):
    return "v_mfma_f32_16x16x32_bf16 %s, %s, %s, %s" % (v(d, 4), v(a, 4), v(b, 4), "0" if c is None else v(c, 4))
def rd128(d, a, off):
    assert 0 <= off < 65536
    return "ds_read_b128 %s, %s offset:%d" % (v(d, 4), v(a), off)
def rdtr(d, a, off):
    assert 0 <= off < 65536
    return "ds_read_b64_tr_b16 %s, %s offset:%d" % (v(d, 2), v(a), off)

def interleave(mf, fill, per=2):
    out = []
    fill = list(fill)
    for i, m in enumerate(mf):
        out.append(m)
        if i < len(mf) - 1:
            out += fill[:per]; fill = fill[per:]
    return out + fill

def srd_words(a, regs):
    sizes = {SX: 2048 * 1024, SWG: 512 * 3584, SWU: 512 * 3584, SWQ: 512 * 1024, SWS: WS_SIZE, SWKV: 16384, SWV: 16384,
             SGATE: 1024, SWD: 1792 * 1024, SWO: 512 * 1024, SOUT: 2048 * 1024, SDBG: 256, SKV: 128 * 1024}
    for reg in regs:
        a.e("s_mov_b32 s%d, 0x%x" % (reg + 2, sizes[reg]))
        a.e("s_mov_b32 s%d, 0x20000" % (reg + 3))

def ptr_loads(a, lst):
    for reg, off in lst: a.e("s_load_dwordx2 %s, s[0:1], %d" % (sp(reg), off))

def prologue(a):
    if Opt.diag or Opt.pin >= 0 or Opt.probe >= 0:
        a.e("s_memrealtime %s" % sp(sSTAMP))
        if Opt.diag in (1, 2): a.e("s_memtime %s" % sp(sSTAMP + 2))
    ptr_loads(a, ((SX, 0), (SWG, 48), (SWU, 56), (SWQ, 8)))
    if Opt.probe == 1: a.stamp(1)
    a.e("v_lshrrev_b32 v2, 6, v0")
    if Opt.code_pf:
        a.e("s_getpc_b64 %s" % sp(sRET))
        a.lab("L_nopf")
        a.e("s_and_b32 s%d, s2, -8" % sA)
        a.e("v_add_lshl_u32 v4, v2, s%d, 7" % sA)
        a.e("v_mov_b32 v5, 0")
        a.e("v_min_u32 v4, CODE_PF_MAX, v4")
        a.e("v_lshl_add_u64 v[4:5], v[4:5], 0, %s" % sp(sRET))
        a.e("global_load_dword %s, v[4:5], off" % v(vPOLL))
    if not Opt.klate: a.e("s_load_dwordx8 s[%d:%d], s[0:1], 64" % (SOUT, SOUT + 7))
    a.e("v_readfirstlane_b32 s%d, v2" % sW)
    if not Opt.klate: ptr_loads(a, ((SWS, 96),) if Opt.diag or Opt.probe >= 0 else ((SWS, 96), (SWO, 32)))
    a.e("s_cmpk_ge_u32 s2, 256")
    a.e("s_cbranch_scc1 L_end")
    if Opt.oddl:
        a.e("s_bfe_u32 s%d, s2, 0x10002" % sD)
        a.e("s_bfe_u32 s%d, s2, 0x30003" % sA)
        a.e("s_lshl3_add_u32 s%d, s%d, s%d" % (sG, sD, sA))
        a.e("s_and_b32 s%d, s2, 3" % sA)
        if Opt.oddl == 2: a.e("s_xor_b32 s%d, s%d, 1" % (sA, sA))
        a.e("s_lshr_b32 s%d, s2, 6" % sB)
        a.e("s_lshl2_add_u32 s%d, s%d, s%d" % (sHP, sA, sB))
        a.e("s_lshr_b32 s%d, s%d, 3" % (sB, sHP))
        a.e("s_sub_u32 s%d, s%d, s%d" % (sM, sHP, sB))
        a.e("s_lshl_b32 s%d, s%d, 10" % (sWK, sW))
        a.e("s_andn2_b32 s%d, 7, s%d" % (sA, sHP))
        a.e("s_cbranch_scc0 L_light")
    else:
        a.e("s_and_b32 s%d, s2, 1" % sD)
        a.e("s_bfe_u32 s%d, s2, 0x30003" % sA)
        a.e("s_lshl3_add_u32 s%d, s%d, s%d" % (sG, sD, sA))
        a.e("s_bfe_u32 s%d, s2, 0x20001" % sA)
        a.e("s_lshr_b32 s%d, s2, 6" % sB)
        a.e("s_lshl2_add_u32 s%d, s%d, s%d" % (sM, sA, sB))
        a.e("s_mov_b32 s%d, s%d" % (sHP, sM))
        a.e("s_lshl_b32 s%d, s%d, 10" % (sWK, sW))
        a.e("s_cmp_ge_u32 s%d, 14" % sM)
        a.e("s_cbranch_scc1 L_light")

def xvoff(a, t):
    a.e("v_lshrrev_b32 v2, 4, %s" % v(t))
    a.e("v_xor_b32 v2, v2, %s" % v(t))
    a.e("v_and_b32 v2, 7, v2")
    a.e("s_lshl_b32 s%d, s%d, 17" % (sA, sG))
    a.e("v_lshl_add_u32 v2, v2, 4, s%d" % sA)
    a.e("v_lshrrev_b32 v3, 3, %s" % v(t))
    a.e("v_lshl_add_u32 %s, v3, 10, v2" % v(vDX))

def setup_ids(a):
    if Opt.klate:
        ptr_loads(a, ((SWS, 96), (SKV, 96), (SDBG, 88), (SWD, 64), (SWO, 32), (SOUT, 80)))
    else:
        a.e("s_mov_b64 %s, %s" % (sp(SKV), sp(SWS)))
        a.e("s_mov_b64 %s, %s" % (sp(SWD), sp(SOUT)))
        a.e("s_mov_b64 %s, %s" % (sp(SOUT), sp(SOUT + 4)))
        a.e("s_mov_b64 %s, %s" % (sp(SDBG), sp(SOUT + 6)))
    a.e("v_and_b32 v0, 63, v0")
    a.e("v_lshlrev_b32 %s, 4, v0" % v(vL16))
    if Opt.oddl:
        a.e("s_and_b32 s%d, s2, 7" % sA)
        a.e("s_xor_b32 s%d, s%d, 4" % (sA, sA))
    else:
        a.e("s_andn2_b32 s%d, 1, s2" % sA)
        a.e("s_bfe_u32 s%d, s2, 0x20001" % sB)
        a.e("s_lshl2_add_u32 s%d, s%d, s%d" % (sA, sA, sB))
    a.e("s_bfe_u32 s%d, s2, 0x20003" % sB)
    a.e("s_lshl2_add_u32 s%d, s%d, s%d" % (sT, sA, sB))
    a.e("s_lshr_b32 s%d, s2, 5" % sCB)

def setup_rd(a):
    a.e("s_lshr_b32 s%d, s%d, 2" % (sHI, sW))
    a.e("s_and_b32 s%d, s%d, 3" % (sLO, sW))
    a.e("v_and_b32 v2, 15, v0")
    a.e("v_lshrrev_b32 v3, 4, v0")
    a.e("v_bfe_u32 v4, v0, 1, 3")
    a.e("v_xor_b32 v4, v4, v3")
    a.e("v_lshlrev_b32 v4, 4, v4")
    a.e("v_lshl_add_u32 %s, v2, 7, v4" % v(vXA))
    a.e("v_bfe_u32 v2, v0, 2, 2")
    a.e("v_and_b32 v4, 3, v0")
    a.e("v_lshl_add_u32 %s, v3, 3, v2" % v(vQA))
    a.e("v_lshlrev_b32 %s, 6, %s" % (v(vQA), v(vQA)))
    a.e("v_xor_b32 v5, s%d, v3" % sHI)
    a.e("v_and_b32 v5, 1, v5")
    a.e("v_lshl_add_u32 %s, v5, 5, %s" % (v(vQA), v(vQA)))
    a.e("v_lshl_add_u32 %s, v4, 3, %s" % (v(vQA), v(vQA)))

def setup_oclr(a):
    srd_words(a, [SWS, SKV, SDBG])
    a.e("s_mov_b32 s%d, 0xffff" % sVM)
    a.e("s_mov_b32 s%d, 0xffff" % (sVM + 1))
    a.e("s_lshl_b32 s%d, s%d, 2" % (sA, sG))
    a.e("s_add_u32 s%d, s%d, s%d" % (sA, sA, sLO))
    a.e("s_lshl_b32 s%d, s%d, 5" % (sB, sA))
    a.e("s_lshl_b32 s%d, s%d, 1" % (sC, sHP))
    a.e("s_add_u32 s%d, s%d, s%d" % (sB, sB, sC))
    a.e("s_add_u32 s%d, s%d, s%d" % (sB, sB, sHI))
    a.e("s_lshl_b32 s%d, s%d, 10" % (sB, sB))
    a.e("s_add_u32 s%d, s%d, 0x%x" % (sOST, sB, WS_OF))
    for i in range(4): a.e("v_mov_b32 %s, -1" % v(vQ + i))
    a.vmop("buffer_store_dwordx4 %s, %s, %s, s%d offen sc1" % (v(vQ, 4), v(vL16), srd(SWS), sOST), "oclr")
    a.e("v_mov_b32 %s, 1" % v(vONE))
    a.e("v_mov_b32 %s, 0" % v(vZERO))
    a.e("v_and_b32 %s, 31, v0" % v(vGA))
    a.e("v_lshlrev_b32 %s, 2, %s" % (v(vGA), v(vGA)))

def collect(fn):
    t = Asm(); t.marks = {}
    def vmop(s_, tag):
        t.e(s_); t.marks[len(t.l) - 1] = tag
    t.vmop = vmop
    fn(t)
    return [(x, t.marks.get(i)) for i, x in enumerate(t.l)]
def put(a, items):
    for x, tag in items:
        if tag: a.vmop(x, tag)
        else: a.e(x)

def setup_ones(a):
    a.e("s_mov_b32 s%d, 0x110000" % sA)
    a.e("s_mov_b32 s%d, 0x110000" % sB)
    a.e("v_mov_b32 v3, 0x3f803f80")
    a.e("v_cndmask_b32 %s, 0, v3, %s" % (v(vV1L), sp(sA)))
    for i in range(1, 4): a.e("v_mov_b32 %s, %s" % (v(vV1L + i), v(vV1L)))
    for i in range(16): a.e("v_mov_b32 %s, %s" % (v(vV + i), v(vV1L)))

def setup_attn(a):
    srd_words(a, [SWD, SWO, SOUT])
    a.e("s_lshl_b32 s%d, s%d, 2" % (sA, sG))
    a.e("s_add_u32 s%d, s%d, s%d" % (sA, sA, sLO))
    a.e("s_mul_i32 s%d, s%d, 112" % (sB, sA))
    a.e("s_lshl_b32 s%d, s%d, 3" % (sC, sM))
    a.e("s_add_u32 s%d, s%d, s%d" % (sB, sB, sC))
    a.e("s_lshl_b32 s%d, s%d, 2" % (sC, sHI))
    a.e("s_add_u32 s%d, s%d, s%d" % (sB, sB, sC))
    a.e("s_and_b32 s%d, s%d, 1" % (sC, sLO))
    a.e("s_lshl_b32 s%d, s%d, 1" % (sC, sC))
    a.e("s_add_u32 s%d, s%d, s%d" % (sB, sB, sC))
    a.e("s_lshl_b32 s%d, s%d, 10" % (sB, sB))
    a.e("s_add_u32 s%d, s%d, 0x%x" % (sHST, sB, WS_HF))
    a.e("s_mul_i32 s%d, s%d, %d" % (sC, sC, 112 * 1024))
    a.e("s_sub_u32 s%d, %d, s%d" % (sC, 112 * 1024, sC))
    a.e("s_add_u32 s%d, s%d, s%d" % (sHST2, sHST, sC))
    a.e("v_bfe_u32 v2, v0, 2, 2")
    a.e("v_lshrrev_b32 v3, 5, v0")
    a.e("v_lshl_add_u32 v2, v3, 2, v2")
    a.e("v_lshlrev_b32 v2, 6, v2")
    a.e("v_bfe_u32 v3, v0, 4, 1")
    a.e("v_lshl_add_u32 v2, v3, 5, v2")
    a.e("v_and_b32 v3, 3, v0")
    a.e("v_lshl_add_u32 v2, v3, 3, v2")
    a.e("s_lshr_b32 s%d, s%d, 1" % (sA, sW))
    a.e("s_lshl_b32 s%d, s%d, 11" % (sA, sA))
    a.e("v_add_u32 %s, s%d, v2" % (v(vWDA), sA))
    a.e("v_add_u32 %s, 0x%x, %s" % (v(vKVA), L_KV, v(vL16)))
    a.e("v_add_u32 %s, 0x%x, %s" % (v(vKVB), L_KV + 0x4000, v(vL16)))
    a.e("v_bfe_u32 v2, v0, 2, 3")
    a.e("v_lshlrev_b32 v2, 10, v2")
    a.e("v_lshrrev_b32 v3, 5, v0")
    a.e("v_lshl_add_u32 v2, v3, 6, v2")
    a.e("v_and_b32 v3, 3, v0")
    a.e("v_lshl_add_u32 v2, v3, 4, v2")
    a.e("s_lshl_b32 s%d, s%d, 7" % (sB, sCB))
    a.e("v_add_u32 %s, s%d, v2" % (v(vWDV), sB))
    a.e("v_min_u32 v2, 13, v0")
    a.e("v_lshlrev_b32 v2, 7, v2")
    a.e("s_lshr_b32 s%d, s%d, 1" % (sA, sT))
    a.e("s_lshl_b32 s%d, s%d, 11" % (sA, sA))
    a.e("s_add_u32 s%d, s%d, 0x%x" % (sA, sA, WS_HFLAG))
    a.e("v_add_u32 %s, s%d, v2" % (v(vFLA), sA))
    a.e("s_lshl_b32 s%d, s%d, 1" % (sA, sT))
    a.e("s_and_b32 s%d, s%d, 1" % (sB, sW))
    a.e("s_add_u32 s%d, s%d, s%d" % (sA, sA, sB))
    a.e("s_lshl_b32 s%d, s%d, 15" % (sB, sA))
    a.e("s_lshr_b32 s%d, s%d, 1" % (sKQ, sW))
    if Opt.kqx == 2:
        a.e("s_and_b32 s%d, s%d, 2" % (sKQ, sW))
        a.e("s_add_u32 s%d, s%d, s%d" % (sKQ, sKQ, sHI))
    if Opt.kqx == 1:
        a.e("s_lshl_b32 s%d, s%d, 1" % (sC, sCB))
        a.e("s_and_b32 s%d, s%d, 2" % (sC, sC))
        a.e("s_xor_b32 s%d, s%d, s%d" % (sKQ, sKQ, sC))
    a.e("s_lshl_b32 s%d, s%d, 13" % (sC, sKQ))
    a.e("s_add_u32 s%d, s%d, s%d" % (sB, sB, sC))
    a.e("s_add_u32 s%d, s%d, 0x%x" % (sOLD, sB, WS_OF))
    a.e("v_and_b32 v2, 31, v0")
    a.e("v_lshrrev_b32 v3, 5, v0")
    a.e("v_and_b32 v4, 7, v0")
    a.e("v_xor_b32 v3, v3, v4")
    a.e("v_lshlrev_b32 v3, 4, v3")
    a.e("v_lshl_add_u32 v3, v2, 8, v3")
    a.e("s_and_b32 s%d, s%d, 1" % (sB, sW))
    a.e("s_lshl_b32 s%d, s%d, 15" % (sB, sB))
    a.e("s_lshr_b32 s%d, s%d, 1" % (sC, sW))
    a.e("s_lshl_b32 s%d, s%d, 13" % (sD, sC))
    a.e("s_add_u32 s%d, s%d, s%d" % (sOUTO, sD, sB))
    a.e("s_add_u32 s%d, s%d, 0x%x" % (sD, sOUTO, L_RED))
    a.e("v_add_u32 %s, s%d, v3" % (v(vAW0), sD))
    a.e("v_lshrrev_b32 v2, 3, v0")
    a.e("v_lshlrev_b32 v3, 1, v4")
    a.e("v_xor_b32 v3, v3, v2")
    a.e("v_lshlrev_b32 v3, 4, v3")
    a.e("v_lshl_add_u32 v3, v2, 8, v3")
    a.e("s_lshl_b32 s%d, s%d, 11" % (sD, sC))
    a.e("s_add_u32 s%d, s%d, s%d" % (sD, sD, sB))
    a.e("s_add_u32 s%d, s%d, 0x%x" % (sD, sD, L_RED))
    a.e("v_add_u32 %s, s%d, v3" % (v(vAR0), sD))
    a.e("v_lshlrev_b32 v4, 4, v4")
    a.e("v_lshl_add_u32 %s, v2, 10, v4" % v(vOUTA))
    a.e("s_lshl_b32 s%d, s%d, 16" % (sC, sT))
    a.e("s_add_u32 s%d, s%d, s%d" % (sOUTO, sOUTO, sC))
    a.e("s_lshl_b32 s%d, s%d, 7" % (sC, sCB))
    a.e("s_add_u32 s%d, s%d, s%d" % (sOUTO, sOUTO, sC))
    a.e("v_mov_b32 %s, 0xdddd" % v(vIDX))
    a.e("v_lshrrev_b32 v2, 4, v0")
    a.e("v_lshl_add_u32 %s, v2, 8, %s" % (v(vHA), v(vL16)))
    for i in range(16): a.e("v_mov_b32 %s, 0" % v(vO + i))
    for i in range(32): a.e("v_mov_b32 %s, 0" % v(vD + i))
    c0 = -2.0 * math.sqrt(2.0 / math.pi) * math.log2(math.e)
    a.e("v_mov_b32 %s, 0x%x" % (v(vC0), f2u(c0)))
    a.e("v_mov_b32 %s, 0x%x" % (v(vC0 + 1), f2u(c0 * 0.044715)))

def kv_first_loads(a, quartet=False):
    it = []
    for o in (range(0, 16384, 4096) if quartet else range(0, 16384, 8192)):
        b = sWH if quartet else sWK
        it.append(("s_add_u32 m0, s%d, 0x%x\ns_add_u32 s%d, s%d, 0x%x\nbuffer_load_dwordx4 %s, %s, s%d offen sc1 lds"
                   % (b, L_KV + o, sA, b, o, v(vL16), srd(SKV), sA), "kv%d" % (o >> 13)))
    it.append(("s_mov_b32 s%d, 0x%x\nbuffer_load_dwordx4 %s, %s, %s, s%d offen sc1"
               % (sA, 63 * 2048, v(vK0, 4), v(vL16), srd(SKV), sA), "k0"))
    it.append(("s_mov_b64 exec, %s\nbuffer_load_dwordx4 %s, %s, %s, 0 offen offset:%d sc1\ns_mov_b64 exec, -1"
               % (sp(sVM), v(vV1L, 4), v(vL16), srd(SKV), 1024 + 256), "k0"))
    it.append(("s_lshl_b32 s%d, s%d, 2\ns_add_u32 s%d, s%d, s%d\ns_lshl_b32 s%d, s%d, 7\ns_add_u32 s%d, s%d, 0x%x\n"
               "buffer_load_dword %s, %s, %s, s%d offen sc1"
               % (sA, sG, sA, sA, sLO, sA, sA, sA, sA, WS_G, v(vGP), v(vGA), srd(SWS), sA), "k0"))
    it.append(("s_lshl_b32 s%d, s%d, 1\ns_and_b32 s%d, s%d, 1\ns_add_u32 s%d, s%d, s%d\ns_lshl_b32 s%d, s%d, 7\ns_add_u32 s%d, s%d, 0x%x\n"
               "buffer_load_dword %s, %s, %s, s%d offen sc1"
               % (sA, sT, sB, sW, sA, sA, sB, sA, sA, sA, sA, WS_G, v(vGC), v(vGA), srd(SWS), sA), "k0"))
    return it

def spin_counter(a, name, first_loaded, wave=0):
    a.e("s_cmp_lg_u32 s%d, %d" % (sW, wave))
    a.e("s_cbranch_scc1 L_%s_done" % name)
    a.e("s_mov_b32 s%d, 0x4000" % sB)
    if first_loaded: a.e("s_branch L_%s_chk" % name)
    a.lab("L_%s_re" % name)
    a.e("buffer_load_dword %s, off, %s, 0 sc1" % (v(vPOLL), srd(SDBG)))
    a.e("s_waitcnt vmcnt(0)")
    a.lab("L_%s_chk" % name)
    a.e("v_readfirstlane_b32 s%d, %s" % (sA, v(vPOLL)))
    a.e("s_cmp_ge_u32 s%d, 32" % sA)
    a.e("s_cbranch_scc1 L_%s_done" % name)
    a.e("s_sleep 4")
    a.e("s_sub_u32 s%d, s%d, 1" % (sB, sB))
    a.e("s_cmp_lg_u32 s%d, 0" % sB)
    a.e("s_cbranch_scc1 L_%s_re" % name)
    a.lab("L_%s_done" % name)

def phase1_F(a):
    SCHED = {1: ["01423567", "10253467", "23016457", "32104756"],
             2: ["02134657", "01324576", "10243567", "10235467"],
             3: ["01324657", "01243576", "12035467", "20134567"],
             5: ["01243567", "10325467", "23014657", "32104576"],
             6: ["01243567", "10325467", "01234657", "10324576"],
             7: ["01234567", "10235476", "01234567", "10235476"],
             8: ["01234567", "10243657", "01234567", "10243657"],
             4: ["02143657", "10325476", "02143657", "10325476"]}
    tabs = SCHED[Opt.sched] if Opt.sched else ["".join(str(c ^ (p & Opt.xmask)) for c in range(8)) for p in range(4)]
    for t_ in tabs: assert sorted(t_) == list("01234567")
    num = [int(t_[::-1], 16) for t_ in tabs]
    def table(a):
        a.e("s_add_u32 s%d, s%d, s%d" % (sA, sG, sHP))
        a.e("s_mov_b32 s%d, 0x%x" % (sXP, num[0]))
        a.e("s_mov_b32 s%d, 0x%x" % (sB, num[2]))
        a.e("s_bitcmp1_b32 s%d, 0" % sA)
        a.e("s_cselect_b32 s%d, 0x%x, s%d" % (sXP, num[1], sXP))
        a.e("s_cselect_b32 s%d, 0x%x, s%d" % (sB, num[3], sB))
        a.e("s_bitcmp1_b32 s%d, 1" % sA)
        a.e("s_cselect_b32 s%d, s%d, s%d" % (sXP, sB, sXP))
        if Opt.ghx:
            a.e("s_bitcmp1_b32 s%d, 3" % sG)
            a.e("s_cselect_b32 s%d, 0x44444444, 0" % sB)
            a.e("s_xor_b32 s%d, s%d, s%d" % (sXP, sXP, sB))
    fo, fw = {"0000": (0, 0), "0101": (0, 1), "0011": (1, 1), "0123": (0, 2)}["".join(t_[0] for t_ in tabs)]
    a.e("s_add_u32 s%d, s%d, s%d" % (sA, sG, sHP))
    a.e("s_bfe_u32 s%d, s%d, 0x%x" % (sCH, sA, fw << 16 | fo))
    if Opt.ghx: a.e("s_lshl2_add_u32 s%d, s%d, s%d" % (sCH, sD, sCH))
    a.e("s_and_b32 s%d, s%d, 0xc00" % (sWH, sWK))
    a.e("v_and_b32 %s, 0xff, v0" % v(vTID))

    def wvoff(a):
        a.e("v_lshrrev_b32 v2, 4, %s" % v(vTID))
        a.e("v_lshrrev_b32 v3, 5, %s" % v(vTID))
        a.e("v_bfi_b32 v3, 3, v2, v3")
        a.e("v_lshlrev_b32 v3, 1, v3")
        a.e("v_xor_b32 v3, v3, %s" % v(vTID))
        a.e("v_and_b32 v3, 15, v3")
        a.e("s_lshl_b32 s%d, s%d, 8" % (sA, sM))
        a.e("v_lshl_add_u32 v3, v3, 4, s%d" % sA)
        a.e("v_mul_u32_u24 v2, 3584, v2")
        a.e("v_add_u32 %s, v2, v3" % v(vDG))
    def qvoff(a):
        a.e("v_lshrrev_b32 v2, 4, %s" % v(vTID))
        a.e("v_and_b32 v2, 2, v2")
        a.e("v_xor_b32 v2, v2, %s" % v(vTID))
        a.e("v_and_b32 v2, 3, v2")
        a.e("s_lshl_b32 s%d, s%d, 6" % (sA, sHP))
        a.e("v_lshl_add_u32 v2, v2, 4, s%d" % sA)
        a.e("v_lshrrev_b32 v3, 2, %s" % v(vTID))
        a.e("v_lshl_add_u32 %s, v3, 10, v2" % v(vDQ))
    def stouch(a):
        if (Opt.diag or Opt.probe >= 0) and not Opt.klate: a.e("s_load_dwordx2 %s, s[0:1], 32" % sp(SWO))
        if not Opt.stch: return
        a.e("s_lshr_b32 s%d, s%d, 2" % (sA, sW))
        if Opt.ghx: a.e("s_lshl2_add_u32 s%d, s%d, s%d" % (sA, sD, sA))
        a.e("s_lshl_b32 s%d, s%d, 6" % (sA, sA))
        a.e("s_and_b32 s%d, s%d, 7" % (sB, sG))
        a.e("s_add_u32 s%d, s%d, s%d" % (sA, sA, sB))
        a.e("s_mul_i32 s%d, s%d, 28" % (sA, sA))
        a.e("s_bfe_u32 s%d, s%d, 0x10001" % (sB, sW))
        a.e("s_lshl1_add_u32 s%d, s%d, s%d" % (sB, sM, sB))
        a.e("s_add_u32 s%d, s%d, s%d" % (sA, sA, sB))
        a.e("s_lshl_b32 s%d, s%d, 7" % (sA, sA))
        a.e("s_bitcmp1_b32 s%d, 0" % sW)
        a.e("s_cselect_b64 %s, %s, %s" % (sp(SWKV), sp(SWU), sp(SWG)))
        a.e("s_add_u32 s%d, s%d, s%d" % (SWKV, SWKV, sA))
        a.e("s_addc_u32 s%d, s%d, 0" % (SWKV + 1, SWKV + 1))
        for i in range(Opt.stch):
            a.e("s_load_dwordx2 %s, %s, 0x%x" % (sp(sTMPP), sp(SWKV), 128 * 3584 + i * 8 * 3584 + 60))
    def wsrd(a):
        srd_words(a, [SWG])
        a.e("s_mov_b64 %s, %s" % (sp(SWU + 2), sp(SWG + 2)))

    if Opt.hrot:
        ORDER = [("q", 0)] + [(t_, 2 * h_ + j) for h_ in range(2) for t_, j in (("x", 0), ("x", 1), ("g", 0), ("u", 0), ("g", 1), ("u", 1))]
    else:
        ORDER = [("q", 0)] + [("x", j) for j in range(4)] + [(t_, j) for j in range(4) for t_ in "gu"]
    def block(items):
        out = []; lastc = None; lastw = None
        for c, kind, j in items:
            s = c % 3; pre = []
            if c != lastc:
                if c: pre.append("s_bfe_u32 s%d, s%d, 0x%x" % (sCH, sXP, 0x30000 + 4 * c))
                lastc = c; lastw = None
            fam = "w" if kind in "gu" else kind
            rot = Opt.hrot and fam != "q"
            if lastw is None or lastw[0] != fam or (rot and lastw[1] >> 1 != j >> 1):
                pre.append({"q": "s_lshl_b32 s%d, s%d, 16" % (sOFFW, sCH), "x": "s_lshl_b32 s%d, s%d, 7" % (sOFFW, sCH),
                            "w": "s_mul_i32 s%d, s%d, %d" % (sOFFW, sCH, 64 * 3584)}[fam])
                if rot: pre.append("s_%s_u32 s%d, s%d, s%d" % ("sub" if j >> 1 else "add", sOFFW, sOFFW, sRX if fam == "x" else sRW))
                lastw = (fam, 0)
            if lastw[1] != j:
                pre.append("s_add_u32 s%d, s%d, 0x%x" % (sOFFW, sOFFW, (j - lastw[1]) * (0x8000 if fam == "x" else 16 * 3584)))
                lastw = (fam, j)
            m0c, vo, rs = {"q": (L_WQ + s * 4096, vDQ, SWQ), "x": (L_X + s * 16384 + j * 4096, vDX, SX),
                           "g": (L_G + s * 16384 + j * 4096, vDG, SWG), "u": (L_U + s * 16384 + j * 4096, vDG, SWU)}[kind]
            nt = " nt" if Opt.ntx & (1 if rs == SX else 2) else ""
            out.append(("s_add_u32 m0, s%d, 0x%x\n%s\nbuffer_load_dwordx4 %s, %s, s%d offen%s lds"
                        % ((sM0B + (j >> 1)) if rot else sWH, m0c, "\n".join(pre) or "s_nop 0", v(vo), srd(rs), sOFFW, nt), "c%d" % c))
        return out
    def part(c, role): return [(c, k_, j) for k_, j in ORDER if (k_ in "gu") == (role == "A")]

    def rdsetup(a):
        setup_rd(a)
        a.e("v_lshl_add_u32 %s, v3, 3, v2" % v(vWA))
        a.e("v_lshlrev_b32 %s, 8, %s" % (v(vWA), v(vWA)))
        a.e("v_lshl_add_u32 %s, v4, 3, %s" % (v(vWA), v(vWA)))
        a.e("v_and_b32 v5, 1, v3")
        a.e("v_lshl_add_u32 v2, v5, 2, v2")
        a.e("s_lshl_b32 s%d, s%d, 2" % (sA, sHI))
        a.e("s_and_b32 s%d, s%d, 1" % (sB, sLO))
        a.e("s_lshl_b32 s%d, s%d, 1" % (sB, sB))
        a.e("s_add_u32 s%d, s%d, s%d" % (sA, sA, sB))
        a.e("v_xor_b32 v2, s%d, v2" % sA)
        a.e("v_lshl_add_u32 %s, v2, 5, %s" % (v(vWA), v(vWA)))
        a.e("v_xor_b32 %s, 32, %s" % (v(vWA + 1), v(vWA)))
        a.e("v_add_u32 %s, 0x%x, %s" % (v(vWA + 2), L_U - L_G, v(vWA)))
        a.e("v_add_u32 %s, 0x%x, %s" % (v(vWA + 3), L_U - L_G, v(vWA + 1)))
        a.e("s_lshl_b32 s%d, s%d, 12" % (sA, sLO))
        a.e("s_add_u32 s%d, s%d, 0x%x" % (sA, sA, L_X))
        a.e("v_add_u32 %s, s%d, %s" % (v(vXA), sA, v(vXA)))
        a.e("v_xor_b32 %s, 0x1000, %s" % (v(vXA + 1), v(vXA)))
        a.e("v_xor_b32 %s, 64, %s" % (v(vXA + 2), v(vXA)))
        a.e("v_xor_b32 %s, 64, %s" % (v(vXA + 3), v(vXA + 1)))
        a.e("v_add_u32 %s, 0x%x, %s" % (v(vQA), L_WQ, v(vQA)))

    a.e("s_cmp_ge_u32 s%d, 4" % sW)
    a.e("s_cbranch_scc1 L_setB")
    late = collect(setup_oclr) + collect(setup_ones) + [("; later", None)] + collect(setup_attn)
    words = collect(lambda t: srd_words(t, [SWS, SKV, SDBG, SWD, SWO, SOUT]))
    late = [x for x in late if x not in words]
    oclr = [x for x in late if x[1] == "oclr"]
    if Opt.olate: late = [x for x in late if x[1] != "oclr"]
    else: oclr = []
    words += [("v_mov_b32 %s, 0" % v(r_), None) for r_ in (vGA, vWDV, vFLA, vHA, vOUTA)]
    st = collect(rdsetup) + words + late[:Opt.fillpre]
    cut = late.index(("; later", None)) if Opt.bidle else len(late)
    fills = {"A": late[Opt.fillpre:], "B": late[Opt.fillpre:max(cut, Opt.fillpre)]}
    idleB = late[max(cut, Opt.fillpre):]
    vms = {}
    wsrd(a); wvoff(a)
    a.e("s_waitcnt lgkmcnt(0)")
    a.stamp(2)
    if Opt.spos == 0: stouch(a)
    put(a, block(part(0, "A")))
    a.e("s_branch L_setA")
    vms["A"] = a.vm; a.vm = []
    a.lab("L_setB")
    srd_words(a, [SX]); xvoff(a, vTID)
    a.e("s_waitcnt lgkmcnt(0)")
    a.stamp(2)
    if Opt.spos == 0: stouch(a)
    put(a, block(part(0, "B")[1:]))
    srd_words(a, [SWQ]); qvoff(a)
    put(a, block(part(0, "B")[:1]))
    vms["B"] = a.vm
    for role in "BA":
        a.vm = vms[role]
        if role == "A": a.lab("L_setA")
        if Opt.spos == 1: stouch(a)
        table(a)
        setup_ids(a)
        if role == "A": srd_words(a, [SX, SWQ])
        else: wsrd(a)
        def touches():
            tm = sum(0xff << (8 * i) for i in range(4) if Opt.tch >> i & 1)
            setex = "s_bitcmp1_b32 s%d, 3\ns_cselect_b32 exec_lo, 0, 0x%x\ns_cselect_b32 exec_hi, 0x%x, 0" % (sG, tm, tm) if Opt.ghx \
                    else "s_mov_b32 exec_lo, 0x%x\ns_mov_b32 exec_hi, 0" % tm
            if Opt.tlb & 2 and role == "B":
                a.e("s_and_b32 s%d, s%d, 7" % (sA, sG))
                a.e("v_lshl_add_u32 v2, v0, 3, s%d" % sA)
                a.e("v_mul_u32_u24 v3, 3584, v2")
                a.e("s_and_b32 s%d, s%d, 1" % (sB, sW))
                a.e("s_lshl1_add_u32 s%d, s%d, s%d" % (sA, sM, sB))
                a.e("s_lshl_b32 s%d, s%d, 7" % (sA, sA))
                a.e(setex)
                a.e("s_cmp_ge_u32 s%d, 6" % sW)
                a.e("s_cbranch_scc1 L_tlbu")
                a.e("buffer_load_dword %s, v3, %s, s%d offen" % (v(vPOLL), srd(SWG), sA))
                a.e("s_branch L_tlbe")
                a.lab("L_tlbu")
                a.e("buffer_load_dword %s, v3, %s, s%d offen" % (v(vPOLL), srd(SWU), sA))
                a.lab("L_tlbe")
                a.e("s_mov_b64 exec, -1")
                a.vm.append("tlb")
            if Opt.tlb & 12 and role == "A":
                a.e("s_cmp_lg_u32 s%d, 0" % sW)
                a.e("s_cbranch_scc1 L_tlbx")
                a.e("s_and_b32 s%d, s%d, 7" % (sA, sG))
                a.e("v_lshl_add_u32 v2, v0, 3, s%d" % sA)
                a.e("v_lshlrev_b32 v3, 10, v2")
                a.e("s_lshl_b32 s%d, s%d, 6" % (sA, sHP))
                a.e(setex if Opt.tlb & 4 else "s_mov_b64 exec, 1")
                a.e("buffer_load_dword %s, v3, %s, s%d offen" % (v(vPOLL), srd(SWQ), sA))
                if not Opt.tlb & 8:
                    a.e("s_mov_b64 exec, -1")
                    a.lab("L_tlbx")
                    return
                a.e("s_branch L_tlby")
                a.lab("L_tlbx")
                a.e("s_bitcmp1_b32 s2, 0")
                a.e("s_cselect_b32 s%d, %d, %d" % (sB, Opt.xodd, Opt.xeven))
                a.e("s_and_b32 s%d, s%d, 3" % (sA, sHP))
                a.e("s_mul_i32 s%d, s%d, s%d" % (sA, sA, sB))
                a.e("s_lshl_b32 s%d, s%d, 7" % (sC, sG))
                a.e("s_add_u32 s%d, s%d, s%d" % (sA, sA, sC))
                a.e("v_add_lshl_u32 v3, v0, s%d, 10" % sA)
                a.e("s_lshr_b32 s%d, s%d, 3" % (sA, sG))
                a.e("s_lshl2_add_u32 s%d, s%d, s%d" % (sA, sA, sW) if Opt.ghx else "s_mov_b32 s%d, s%d" % (sA, sW))
                a.e("s_lshl_b32 s%d, s%d, 7" % (sA, sA))
                a.e("s_bitcmp1_b32 %d, s%d" % (Opt.tch if Opt.tlb & 8 else 0, sW))
                a.e("s_cselect_b32 s%d, s%d, 1" % (sB, sB))
                a.e("s_bfm_b64 exec, s%d, 0" % sB)
                a.e("buffer_load_dword %s, v3, %s, s%d offen" % (v(vPOLL), srd(SX), sA))
                a.lab("L_tlby")
                a.e("s_mov_b64 exec, -1")
                a.vm.append("tlb")
        if Opt.tpos == 0: touches()
        if Opt.startbar: a.e("s_barrier")
        npre = min(Opt.npre, 8) if role == "A" else 5
        pn = block(part(1, role)[:npre])
        rest = st + (collect(qvoff) + collect(lambda t: xvoff(t, vTID)) if role == "A" else collect(wvoff))
        gap = len(rest) // (npre + Opt.pregap) + 1
        if Opt.tpos == 2:
            put(a, pn); touches(); npre = 0
        if Opt.tpos == 3 and role == "B":
            put(a, pn); touches(); npre = 0
        for i in range(npre):
            put(a, pn[:1]); pn = pn[1:]
            put(a, rest[:gap]); rest = rest[gap:]
        put(a, rest)
        if Opt.tpos == 1 or (Opt.tpos == 3 and role == "A"): touches()
        a.e("s_mov_b64 vcc, %d" % (-1 if role == "A" else 0))
        if role == "A":
            a.waitvm("c0", lgkm=True)
        else:
            a.e("s_setprio 1")
            a.waitvm("c0", lgkm=True)
            a.e("s_branch L_k0")
        vms[role] = a.vm
    stream = part(1, "A")[min(Opt.npre, 8):] + [(c, k_, j) for c in range(2, 8) for k_, j in ORDER]
    qa = [int(x, 16) for x in Opt.qa]; qb = [int(x, 16) for x in Opt.qb]
    def take(n, cmax):
        m = 0
        while m < n and m < len(stream) and stream[m][0] <= cmax: m += 1
        r_ = stream[:m]; del stream[:m]
        return block(r_)
    a.lab("L_k0")
    a.vm = vms["A"]
    ool = Asm()
    def dmablock(name, role, items, wait=None):
        a.e("s_cbranch_vcc%s L_%s" % ("nz" if role == "A" else "z", name))
        if wait: a.waitvm(wait, lgkm=True)
        a.lab("L_%s_r" % name)
        ool.lab("L_%s" % name)
        ool.vm = a.vm if role == "A" else vms["B"]
        for it_ in items:
            put(ool, [it_])
            fp = Opt.fillper if role == "A" or not Opt.bidle else 2
            put(ool, fills[role][:fp]); fills[role] = fills[role][fp:]
        if name in ("d7", "e7"): put(ool, fills[role]); fills[role] = []
        if wait: ool.waitvm(wait, lgkm=True)
        if role == "B": vms["B"] = ool.vm
        ool.e("s_branch L_%s_r" % name)
    a.ool = ool.l

    def fr(k):
        b = vF1 + 36 * (k % 2)
        return dict(x=b, w=b + 16, q=b + 32)
    def reads(k):
        c, s = divmod(k, 2); f = fr(k); sl = c % 3
        wo = sl * 16384 + s * 8192
        W = lambda i: [rdtr(f['w'] + 4 * i, vWA + i, wo), rdtr(f['w'] + 4 * i + 2, vWA + i, wo + 1024)]
        X = [rd128(f['x'] + 4 * b, vXA + 2 * s + (b >> 1), sl * 16384 + (b & 1) * 2048) for b in range(4)]
        return W(0) + X + W(2) + W(1) + W(3) + [rdtr(f['q'], vQA, sl * 4096 + s * 2048), rdtr(f['q'] + 2, vQA, sl * 4096 + s * 2048 + 256)]
    a.e("s_barrier")
    a.stamp(3)
    if Opt.kdiag or Opt.probe >= 18:
        kstamp(a, 2)
        a.e("s_waitcnt lgkmcnt(0)")
    if Opt.kal: a.l.append(".p2align 3")
    if Opt.kal == 2: a.e("s_nop 0")
    al = (lambda: a.l.append(".p2align 3")) if Opt.kal == 3 else (lambda: None)
    for r in reads(0): a.e(r)
    if qa[0]: dmablock("d2", "A", take(qa[0], 2))
    for k in range(16):
        c, s = divmod(k, 2); f = fr(k)
        z = lambda x: None if k == 0 else x
        mf = []
        for n_, i in enumerate((0, 2, 1, 3)):
            for b in (range(4) if n_ % 2 == 0 else range(3, -1, -1)):
                d = vACC + 16 * b + 4 * i
                mf.append(mfma16(d, f['w'] + 4 * i, f['x'] + 4 * b, z(d)))
        for b in range(2): mf.append(mfma16(vAQ + 4 * b, f['q'], f['x'] + 4 * b, z(vAQ + 4 * b)))
        rds = reads(k + 1) if k < 15 else []
        if s == 0:
            a.e("s_waitcnt lgkmcnt(6)"); al()
            for i, m in enumerate(mf):
                if i == 8: a.e("s_waitcnt lgkmcnt(%d)" % (8 - Opt.kw0)); al()
                a.e(m)
                if Opt.kw0 and i == 7: continue
                ii = i - (1 if Opt.kw0 and i > 7 else 0)
                if ii < len(rds): a.e(rds[ii])
            continue
        a.e("s_waitcnt lgkmcnt(8)")
        for m in mf[:Opt.kb]: a.e(m)
        if c <= 5:
            dmablock("e%d" % (c + 2), "B", take(qb[c], c + 2), "c%d" % (c + 1))
            assert not any(x[0] <= c + 1 for x in stream)
        if c == 7:
            a.e("s_waitcnt lgkmcnt(0)")
        elif c == 6:
            a.e("s_waitcnt lgkmcnt(0)")
            a.e("s_cbranch_vccz L_st7")
            a.e("s_setprio 1")
            a.e("s_waitcnt vmcnt(0)")
            a.e("s_barrier")
            a.lab("L_st7")
        else:
            a.e("s_barrier")
        if c < 7 and ((Opt.kdiag == 1 and Opt.diag) or Opt.probe == 21 + c):
            kstamp(a, 3 + c)
            a.e("s_waitcnt lgkmcnt(0)")
        if c + 3 < 8:
            items = take(qa[c + 1], c + 3)
            dmablock("d%d" % (c + 3), "A", items)
        al()
        for i, m in enumerate(mf[Opt.kb:]):
            a.e(m)
            if i < len(rds): a.e(rds[i])
        if k == 11: assert not stream and not fills["A"] and not fills["B"]
        if k == 11:
            a.e("s_cbranch_vccnz L_st6")
            a.e("s_setprio 0")
            nm = next((i for i, x in enumerate(idleB) if "0xdddd" in x[0]), 0)
            a.e("s_cmp_lg_u32 s%d, 4" % sW)
            a.e("s_cbranch_scc1 L_nopoll")
            a.e("buffer_load_dword %s, off, %s, 0 sc1" % (v(vPOLL), srd(SDBG)))
            a.lab("L_nopoll")
            put(a, idleB[:nm]); idleB = idleB[nm:]
            a.wait0()
            spin_counter(a, "kvf", True, 4)
            a.e("s_barrier")
            put(a, kv_first_loads(a, True) + oclr + idleB)
            a.lab("L_st6")
    a.kvA = (kv_first_loads(a) + oclr)[2:]
    a.stamp(4)

def phase1_L(a):
    a.lab("L_light")
    a.vm = []
    if Opt.oddl: a.e("s_add_u32 s%d, s%d, 14" % (sM, sB))
    if Opt.klate:
        ptr_loads(a, ((SGATE, 72), (SWKV, 16), (SWV, 24)))
    else:
        a.e("s_waitcnt lgkmcnt(0)")
        ptr_loads(a, ((SWKV, 16), (SWV, 24), (SGATE, 72), (SWO, 32)))
    srd_words(a, [SWKV, SWV, SGATE, SX])
    xvoff(a, 0)
    a.e("v_and_b32 v2, 63, v0")
    a.e("v_lshlrev_b32 %s, 4, v2" % v(vL16))
    a.e("s_sub_u32 s%d, s%d, 14" % (sCNT, sM))
    a.e("s_lshl_b32 s%d, s%d, 16" % (sOLD, sCNT))
    a.e("s_lshl_b32 s%d, s%d, 13" % (sHST, sCNT))
    a.e("s_add_u32 s%d, s%d, s%d" % (sWH, sHST, sWK))
    a.e("s_xor_b32 s%d, s%d, 0x2000" % (sHST, sHST))
    a.e("s_add_u32 s%d, s%d, 0x2000" % (sA, sWK))
    a.e("s_waitcnt lgkmcnt(0)")
    a.stamp(2)
    def xdma(c, base, so):
        a.vmop("s_add_u32 m0, s%d, 0x%x\ns_nop 0\nbuffer_load_dwordx4 %s, %s, s%d offen offset:%d lds"
               % (base, LL_X + c * 16384 - c * 128, v(vDX), srd(SX), so, c * 128), "c%d" % c)
    def wdma(u):
        for t, rs in enumerate((SWKV, SWV)):
            a.vmop("s_add_u32 m0, s%d, 0x%x\ns_nop 0\nbuffer_load_dwordx4 %s, %s, s%d offen lds"
                   % (sWK, LL_W + t * 16384 + u * 8192, v(vL16), srd(rs), sA if u else sWK), "w")
    wdma(0)
    a.vmop("s_mov_b32 m0, s%d\ns_nop 0\nbuffer_load_dwordx4 %s, %s, 0 offen lds" % (sHST, v(vL16), srd(SGATE)), "w")
    for c in range(8):
        if c == 4: wdma(1)
        xdma(c, sWH, sOLD)
        if (c == 1 and Opt.lthr & 1) or (c == 3 and Opt.lthr & 2): a.e("s_waitcnt vmcnt(0)")
        if c in (1, 3, 5): a.e("s_barrier")
    setup_ids(a)
    srd_words(a, [SWQ])
    setup_rd(a)
    a.e("v_lshrrev_b32 v3, 5, v0")
    a.e("v_bfrev_b32 v5, v4")
    a.e("v_lshrrev_b32 v5, 30, v5")
    a.e("s_cmp_ge_u32 s%d, 2" % sLO)
    a.e("s_cselect_b64 vcc, -1, 0")
    a.e("v_cndmask_b32 v4, v5, v4, vcc")
    a.e("v_lshl_add_u32 %s, v3, 3, v2" % v(vWA))
    a.e("v_lshlrev_b32 %s, 5, %s" % (v(vWA), v(vWA)))
    a.e("v_lshl_add_u32 %s, v4, 3, %s" % (v(vWA), v(vWA)))
    a.e("s_lshr_b32 s%d, s%d, 1" % (sA, sLO))
    a.e("s_lshl_b32 s%d, s%d, 14" % (sA, sA))
    a.e("s_add_u32 s%d, s%d, 0x%x" % (sA, sA, LL_W))
    a.e("v_add_u32 %s, s%d, %s" % (v(vWA), sA, v(vWA)))
    a.e("v_lshl_add_u32 %s, v3, 4, s%d" % (v(vWA + 1), sHST))
    a.e("s_and_b32 s%d, s%d, 1" % (sA, sLO))
    a.e("s_lshl_b32 s%d, s%d, 1" % (sB, sCNT))
    a.e("s_add_u32 s%d, s%d, s%d" % (sCNT, sA, sB))
    a.e("s_lshl_b32 s%d, s%d, 12" % (sA, sCNT))
    a.e("v_and_b32 v2, 31, v0")
    a.e("v_lshrrev_b32 v4, 1, v0")
    a.e("v_lshlrev_b32 v5, 1, v0")
    a.e("v_bfi_b32 v4, 4, v4, v5")
    a.e("v_bfi_b32 v4, 12, v4, v2")
    a.e("v_cndmask_b32 v2, v2, v4, vcc")
    a.e("v_bfe_u32 v4, v2, 1, 3")
    a.e("v_xor_b32 v4, v4, v3")
    a.e("v_lshlrev_b32 v4, 4, v4")
    a.e("v_lshl_add_u32 v4, v2, 7, v4")
    a.e("v_add_u32 %s, s%d, v4" % (v(vLX), sA))
    for s in range(1, 4): a.e("v_xor_b32 %s, %d, %s" % (v(vLX + s), 32 * s, v(vLX)))
    for s in range(4): a.e("v_add_u32 %s, 0x10000, %s" % (v(vLX + 4 + s), v(vLX + s)))
    a.e("s_waitcnt lgkmcnt(0)")
    setup_oclr(a)
    vm0 = list(a.vm)
    a.e("s_cmp_lg_u32 s%d, 0" % sHI)
    a.e("s_cbranch_scc1 L_lB")
    a.e("s_not_b64 %s, %s" % (sp(sTMPP), sp(sVM)))
    a.e("s_cmp_ge_u32 s%d, 2" % sLO)
    a.e("s_cbranch_scc1 L_lV")
    def chain(kind):
        a.vm = list(vm0)
        def fr(k):
            b = vFR + 8 * (k % 4)
            return b, b + 4
        def reads(k):
            c, s = divmod(k, 4); x, w = fr(k)
            r = [rd128(x, vLX + s + 4 * (c >> 2), (c & 3) * 16384), rdtr(w, vWA, k * 512), rdtr(w + 2, vWA, k * 512 + 128)]
            if kind == "K":
                r += ["s_mov_b64 exec, %s" % sp(sTMPP), rd128(w, vWA + 1, k * 32), "s_mov_b64 exec, -1"]
            return r
        for q in range(4):
            a.waitvm("c%d" % (2 * q + 1))
            a.e("s_barrier")
            nr = 4 if kind == "K" else 3
            for k in range(8 * q, 8 * q + 2):
                for r in reads(k): a.e(r)
            for k in range(8 * q, 8 * q + 8):
                if k + 2 < 8 * q + 8:
                    for r in reads(k + 2): a.e(r)
                left = min(2, 8 * q + 7 - k)
                a.e("s_waitcnt lgkmcnt(%d)" % (left * nr))
                x, w = fr(k)
                cc = None if k == 0 else vACC
                a.e(mfma(vACC, w, x, cc) if kind == "K" else mfma(vACC, x, w, cc))
        a.e("s_lshl_b32 s%d, s%d, 2" % (sA, sG))
        a.e("s_add_u32 s%d, s%d, s%d" % (sA, sA, sCNT))
        a.e("s_nop 12")
        if kind == "K":
            a.e("s_mov_b32 s%d, 0x%x" % (sC, f2u(0.25 * math.log2(math.e))))
            for i in range(8): a.e("v_mul_f32 %s, s%d, %s" % (v(vACC + i), sC, v(vACC + i)))
            a.e("v_mul_f32 %s, 0x%x, %s" % (v(vACC + 8), f2u(-math.log2(math.e)), v(vACC + 8)))
            a.e("v_exp_f32 %s, %s" % (v(vACC + 8), v(vACC + 8)))
            for i in range(4): a.e("v_cvt_pk_bf16_f32 %s, %s, %s" % (v(vFR + i), v(vACC + 2 * i), v(vACC + 2 * i + 1)))
            a.e("v_add_f32 %s, 1.0, %s" % (v(vACC + 8), v(vACC + 8)))
            a.e("v_rcp_f32 %s, %s" % (v(vACC + 8), v(vACC + 8)))
            a.e("s_add_u32 s%d, s%d, 63" % (sB, sA))
            a.e("s_and_b32 s%d, s%d, 63" % (sB, sB))
            a.e("s_lshl_b32 s%d, s%d, 11" % (sB, sB))
            a.e("buffer_store_dwordx4 %s, %s, %s, s%d offen sc1" % (v(vFR, 4), v(vL16), srd(SKV), sB))
            a.e("s_lshl_b32 s%d, s%d, 7" % (sB, sA))
            a.e("s_add_u32 s%d, s%d, 0x%x" % (sB, sB, WS_G))
            a.e("s_mov_b32 exec_hi, 0")
            a.e("buffer_store_dword %s, %s, %s, s%d offen sc1" % (v(vACC + 8), v(vGA), srd(SWS), sB))
            a.e("s_mov_b64 exec, -1")
        else:
            for i in range(8): a.e("v_cvt_pk_bf16_f32 %s, %s, %s" % (v(vFR + i), v(vACC + 2 * i), v(vACC + 2 * i + 1)))
            a.e("v_bfe_u32 v2, v0, 4, 1")
            a.e("v_add_u32 v2, s%d, v2" % sA)
            a.e("v_and_b32 v2, 63, v2")
            a.e("v_lshl_add_u32 v2, v2, 11, %s" % v(vL16))
            for i in range(4): a.e("v_cndmask_b32 %s, %s, %s, %s" % (v(vFR + i), v(vFR + 4 + i), v(vFR + i), sp(sVM)))
            a.e("buffer_store_dwordx4 %s, v2, %s, 0 offen offset:1024 sc1" % (v(vFR, 4), srd(SKV)))
        a.e("s_branch L_lJ")
    chain("K")
    a.lab("L_lV")
    chain("V")
    a.lab("L_lB")
    a.vm = list(vm0)
    a.e("s_cmp_lg_u32 s%d, 14" % sM)
    a.e("s_cbranch_scc1 L_nozf")
    a.e("s_cmp_lg_u32 s%d, 4" % sW)
    a.e("s_cbranch_scc1 L_nozf")
    a.e("v_lshlrev_b32 v2, 7, v0")
    a.e("s_lshl_b32 s%d, s%d, 11" % (sA, sG))
    a.e("s_add_u32 s%d, s%d, 0x%x" % (sA, sA, WS_HFLAG))
    a.e("s_mov_b64 exec, 0xffff")
    a.e("buffer_store_dword %s, v2, %s, s%d offen sc1" % (v(vZERO), srd(SWS), sA))
    a.e("s_mov_b64 exec, -1")
    a.lab("L_nozf")
    for q in range(4):
        a.waitvm("c%d" % (2 * q + 1))
        a.e("s_barrier")
    a.lab("L_lJ")
    a.e("v_lshrrev_b32 v3, 2, v0")
    a.e("v_lshlrev_b32 v3, 10, v3")
    a.e("v_lshrrev_b32 v4, 5, v0")
    a.e("v_lshlrev_b32 v4, 1, v4")
    a.e("v_xor_b32 v4, v4, v0")
    a.e("v_and_b32 v4, 3, v4")
    a.e("v_lshl_add_u32 v3, v4, 4, v3")
    a.e("s_lshl_b32 s%d, s%d, 14" % (sA, sW))
    a.e("s_lshl_b32 s%d, s%d, 6" % (sB, sHP))
    a.e("s_add_u32 s%d, s%d, s%d" % (sA, sA, sB))
    a.e("v_add_u32 %s, s%d, v3" % (v(vDQ), sA))
    a.e("s_xor_b32 s%d, s%d, 0x2000" % (sWH, sWH))
    a.e("s_xor_b32 s%d, s%d, 0x10000" % (sOLD, sOLD))
    a.wait0(lgkm=True)
    a.e("s_barrier")
    a.e("s_cmp_lg_u32 s%d, 0" % sW)
    a.e("s_cbranch_scc1 L_noat")
    a.e("s_mov_b64 exec, 1")
    a.e("buffer_atomic_add %s, off, %s, 0 sc1" % (v(vONE), srd(SDBG)))
    a.e("s_mov_b64 exec, -1")
    a.lab("L_noat")
    a.stamp(3)
    for c in range(8): xdma(c, sWH, sOLD)
    for p in range(4):
        a.e("s_add_u32 m0, s%d, 0x%x" % (sWK, LL_WQ + p * 8192))
        a.e("s_mov_b32 s%d, 0x%x" % (sA, p * 128 * 1024))
        a.e("buffer_load_dwordx4 %s, %s, s%d offen lds" % (v(vDQ), srd(SWQ), sA))
    setup_ones(a)
    setup_attn(a)
    if Opt.touch & 2:
        a.e("s_lshl_b32 s%d, s%d, 1" % (sA, sG))
        a.e("s_add_u32 s%d, s%d, s%d" % (sA, sA, sM))
        a.e("s_sub_u32 s%d, s%d, 14" % (sA, sA))
        a.e("s_lshl_b32 s%d, s%d, 3" % (sA, sA))
        a.e("s_add_u32 s%d, s%d, s%d" % (sA, sA, sW))
        a.e("v_lshlrev_b32 v2, 15, v0")
        a.e("s_lshl_b32 s%d, s%d, 7" % (sA, sA))
        a.e("buffer_load_dword %s, v2, %s, s%d offen" % (v(vPOLL), srd(SWO), sA))
        a.e("buffer_load_dword %s, v2, %s, s%d offen" % (v(vPOLL), srd(SWD), sA))
    a.e("s_lshl_b32 s%d, s%d, 12" % (sA, sLO))
    a.e("v_add_u32 %s, s%d, %s" % (v(vXA), sA, v(vXA)))
    a.e("v_xor_b32 %s, 64, %s" % (v(vXA + 1), v(vXA)))
    a.e("v_add_u32 %s, 0x10000, %s" % (v(vXA + 2), v(vXA)))
    a.e("v_add_u32 %s, 0x10000, %s" % (v(vXA + 3), v(vXA + 1)))
    a.e("v_add_u32 %s, 0x%x, %s" % (v(vQA), LL_WQ, v(vQA)))
    a.e("s_waitcnt vmcnt(%d)" % (2 if Opt.touch & 2 else 0))
    a.e("s_barrier")
    def fr(k): return vFR + 12 * (k % 3)
    def reads(k):
        c, s = divmod(k, 2); f = fr(k)
        return [rd128(f + 4 * b, vXA + s + 2 * (c >> 2), (c & 3) * 16384 + b * 2048) for b in range(2)] + \
               [rdtr(f + 8, vQA, k * 2048), rdtr(f + 10, vQA, k * 2048 + 256)]
    for k in range(2):
        for r in reads(k): a.e(r)
    for k in range(16):
        a.e("s_waitcnt lgkmcnt(%d)" % (4 * min(1, 15 - k)))
        for b in range(2): a.e(mfma16(vAQ + 4 * b, fr(k) + 8, fr(k) + 4 * b, None if k == 0 else vAQ + 4 * b))
        if k + 2 < 16:
            for r in reads(k + 2): a.e(r)
    spin_counter(a, "kvl", False)
    a.e("s_barrier")
    for s, t in kv_first_loads(a): a.e(s)
    a.wait0()
    a.stamp(4)
    a.e("s_branch L_join")

def gelu_tile(a, ti, scalar=False):
    acc = vACC + 16 * ti
    t = vFR
    o = vFR + 8 + 4 * ti
    pk = lambda r: v(r, 2)
    if scalar:
        for i in range(8): a.e("v_mul_f32 %s, %s, %s" % (v(t + i), v(acc + i), v(acc + i)))
        for i in range(8): a.e("v_fma_f32 %s, %s, %s, %s" % (v(t + i), v(t + i), v(vC0 + 1), v(vC0)))
        for i in range(8): a.e("v_mul_f32 %s, %s, %s" % (v(t + i), v(t + i), v(acc + i)))
        for i in range(8): a.e("v_exp_f32 %s, %s" % (v(t + i), v(t + i)))
        for i in range(8): a.e("v_add_f32 %s, 1.0, %s" % (v(t + i), v(t + i)))
        for i in range(8): a.e("v_rcp_f32 %s, %s" % (v(t + i), v(t + i)))
        for i in range(8): a.e("v_mul_f32 %s, %s, %s" % (v(acc + i), v(acc + i), v(acc + 8 + i)))
        for i in range(8): a.e("v_mul_f32 %s, %s, %s" % (v(acc + i), v(acc + i), v(t + i)))
    R4, R8 = (range(0), range(0)) if scalar else (range(4), range(8))
    for i in R4: a.e("v_pk_mul_f32 %s, %s, %s" % (pk(t + 2 * i), pk(acc + 2 * i), pk(acc + 2 * i)))
    for i in R4: a.e("v_pk_fma_f32 %s, %s, %s, %s op_sel:[0,1,0] op_sel_hi:[1,1,0]" % (pk(t + 2 * i), pk(t + 2 * i), pk(vC0), pk(vC0)))
    for i in R4: a.e("v_pk_mul_f32 %s, %s, %s" % (pk(t + 2 * i), pk(t + 2 * i), pk(acc + 2 * i)))
    for i in R8: a.e("v_exp_f32 %s, %s" % (v(t + i), v(t + i)))
    for i in R4: a.e("v_pk_add_f32 %s, %s, 1.0 op_sel_hi:[1,0]" % (pk(t + 2 * i), pk(t + 2 * i)))
    for i in R8: a.e("v_rcp_f32 %s, %s" % (v(t + i), v(t + i)))
    for i in R4: a.e("v_pk_mul_f32 %s, %s, %s" % (pk(acc + 2 * i), pk(acc + 2 * i), pk(acc + 8 + 2 * i)))
    for i in R4: a.e("v_pk_mul_f32 %s, %s, %s" % (pk(acc + 2 * i), pk(acc + 2 * i), pk(t + 2 * i)))
    for i in range(4): a.e("v_cvt_pk_bf16_f32 %s, %s, %s" % (v(o + i), v(acc + 2 * i), v(acc + 2 * i + 1)))
    a.vmop("buffer_store_dwordx4 %s, %s, %s, s%d offen offset:%d sc1" % (v(o, 4), v(vHA), srd(SWS), sHST2 if ti >> 1 else sHST, (ti & 1) * 256), "hst")

def Yseg(hset, toggle=False, first=False, extra=False, last=False):
    out = []
    for t in range(2):
        pos = [int(x, 17) for x in (Opt.ypos0 if hset is None else Opt.ypos2 if extra else Opt.ypos1)]
        if last and t == 1: pos = [pos[0], 0, 11, pos[1]]
        S, Sn = vS + 16 * t, vS + 16 * (1 - t)
        K, V0, V1 = vKF + 4 * t, vV + 8 * t, vV + 8 * t + 4
        for e in range(1, 17):
            out.append("v_exp_f32 %s, %s" % (v(S + e - 1), v(S + e - 1)))
            if e == pos[0] and not (first and t == 0): out.append(smfmac(vO, V1, Sn + 8))
            if e == pos[1]: out.append(mfma(Sn, K, vQ, None))
            if e == pos[2]: out.append(smfmac(vO, V0, S))
            if hset is not None:
                if e == 13 and t == 1 and toggle:
                    out.append("v_xor_b32 %s, 0x4000, %s" % (v(vKVB), v(vKVB)))
                if e == pos[3]: out.append(mfma(vD + 16 * t, vWF + 4 * t, vH + 4 * hset, vD + 16 * t))
                if extra and e == pos[4]: out.append(mfma(vD + 16 * t, vFR + 16 + 4 * t, vH + 16 + 4 * hset, vD + 16 * t))
    return out

def kv_reads(off, vKVA=vKVA):
    r = [rd128(vKF, vKVA, off), rd128(vKF + 4, vKVA, off + 2048), "s_mov_b64 exec, %s" % sp(sVM)]
    for t in range(2):
        r += [rd128(vV + 8 * t, vKVA, off + 2048 * t + 1024), rd128(vV + 8 * t + 4, vKVA, off + 2048 * t + 1280)]
    r.append("s_mov_b64 exec, -1")
    return r
def wd_reads(dst, addr, off):
    r = []
    for c in range(2):
        r += [rdtr(dst + 4 * c, addr, off + 512 * c), rdtr(dst + 4 * c + 2, addr, off + 512 * c + 1024)]
    return r

def hord(): return [0, 2, 4, 6, 1, 3, 5, 7] if Opt.hord else list(range(8))
def wdrow(sg): return (32 * (sg >> 1) + 8 * (sg & 1)) * 1024

def attention(a, role, pre0=None):
    A = role == "A"
    def kvdma(u):
        a.vmop("s_add_u32 m0, s%d, 0x%x\ns_add_u32 s%d, s%d, 0x%x\nbuffer_load_dwordx4 %s, %s, s%d offen sc1 lds"
               % (sWK, L_KV + (u % 4) * 8192, sA, sWK, u * 8192, v(vL16), srd(SKV), sA), "kv%d" % u)
    def wddma(sg):
        a.vmop("s_add_u32 m0, s%d, 0x%x\ns_add_u32 s%d, s%d, 0x%x\nbuffer_load_dwordx4 %s, %s, s%d offen lds"
               % (sWK, L_WD + (sg % 4 if sg < 23 or sg == 27 else sg - 19) * 8192, sA, sWDOFF, wdrow(sg), v(vWDV), srd(SWD), sA), "wd%d" % sg)
    def wodma(j):
        a.vmop("s_add_u32 m0, s%d, 0x%x\ns_add_u32 s%d, s%d, 0x%x\nbuffer_load_dwordx4 %s, %s, s%d offen lds"
               % (sWK, L_WO + (7 - j) * 8192, sA, sB, hord()[j] * 16384, v(vWDV), srd(SWO), sA), "wo")
    def hload(sg, dst):
        a.vmop("s_add_u32 s%d, s%d, 0x%x\nbuffer_load_dwordx4 %s, %s, %s, s%d offen sc1"
               % (sA, sHOFF, sg * 1024, v(dst, 4), v(vL16), srd(SWS), sA), "h%d" % sg)
    for n in range(12):
        if not A and n == 0: a.e("s_barrier")
        if n % 2 == 1: astamp(a, 2 + n // 2)
        if n == Opt.pcyc: a.e("%s %s" % ("s_memrealtime" if Opt.prt else "s_memtime", sp(sSTAMP + 6)))
        tags = []
        if A and n % 2 == 1: tags.append("kv%d" % ((n + 1) // 2))
        if not A and n % 2 == 0: tags.append("kv%d" % ((n + 2) // 2))
        if n == Opt.hpub - (0 if A else 1): tags.append("hst")
        if n == 6: tags.append("wo")
        if n == 9: tags.append("wd27")
        if n == 11: tags.append("wd0")
        if n == 9 and A:
            a.e("s_cmp_lg_u32 s%d, 0" % sW)
            a.e("s_cbranch_scc1 L_hf_done")
            a.e("s_mov_b32 s%d, 0x4000" % sB)
            a.e("s_waitcnt vmcnt(0)")
            a.lab("L_hf_chk")
            a.e("v_cmp_ne_u32 vcc, 1, %s" % v(vPOLL))
            a.e("s_cbranch_vccz L_hf_done")
            a.e("s_sleep %d" % Opt.hsl)
            a.e("buffer_load_dword %s, %s, %s, 0 offen sc1" % (v(vPOLL), v(vFLA), srd(SWS)))
            a.e("s_sub_u32 s%d, s%d, 1" % (sB, sB))
            a.e("s_cmp_lg_u32 s%d, 0" % sB)
            a.e("s_waitcnt vmcnt(0)")
            a.e("s_cbranch_scc1 L_hf_chk")
            a.lab("L_hf_done")
        a.waitvm(tags)
        if n == 5 and Opt.diag == 3 and A:
            a.e("v_mov_b32 v2, s%d" % sSTAMP)
            a.e("s_lshl_b32 s%d, s2, 3" % sA)
            a.e("s_add_u32 s%d, s%d, s%d" % (sA, sA, sW))
            a.e("s_lshl_b32 s%d, s%d, 7" % (sA, sA))
            a.e("s_add_u32 s%d, s%d, 0x%x" % (sA, sA, WS_STAMP))
            a.e("s_mov_b64 exec, 1")
            a.vmop("buffer_store_dword v2, off, %s, s%d offset:12 sc1" % (srd(SWS), sA), "st")
            a.e("s_mov_b64 exec, -1")
        if n == Opt.hpub and not A:
            a.e("s_cmp_ge_u32 s%d, 14" % sM)
            a.e("s_cbranch_scc1 L_nohf")
            a.e("s_cmp_lg_u32 s%d, 4" % sW)
            a.e("s_cbranch_scc1 L_nohf")
            a.e("s_lshl_b32 s%d, s%d, 4" % (sA, sG))
            a.e("s_add_u32 s%d, s%d, s%d" % (sA, sA, sM))
            a.e("s_lshl_b32 s%d, s%d, 7" % (sA, sA))
            a.e("s_add_u32 s%d, s%d, 0x%x" % (sA, sA, WS_HFLAG))
            a.e("s_mov_b64 exec, 1")
            a.e("buffer_store_dword %s, off, %s, s%d sc1" % (v(vONE), srd(SWS), sA))
            a.e("s_mov_b64 exec, -1")
            a.lab("L_nohf")
        for r in kv_reads((n % 8) * 4096): a.e(r)
        if n == 8 and A:
            a.e("s_cmp_lg_u32 s%d, 0" % sW)
            a.e("s_cbranch_scc1 L_hf_nol")
            a.e("buffer_load_dword %s, %s, %s, 0 offen sc1" % (v(vPOLL), v(vFLA), srd(SWS)))
            a.lab("L_hf_nol")
        if n == 0:
            if A or Opt.hpub == 3:
                kvdma(2); kvdma(3)
            a.e("s_mov_b32 s%d, s%d" % (sC, sKQ))
            a.e("s_mul_i32 s%d, s%d, %d" % (sWDOFF, sC, 448 * 1024))
            a.e("s_and_b32 s%d, s%d, 1" % (sB, sW))
            a.e("s_lshl_b32 s%d, s%d, 14" % (sA, sB))
            a.e("s_add_u32 s%d, s%d, s%d" % (sWDOFF, sWDOFF, sA))
            a.e("s_lshl_b32 s%d, s%d, 1" % (sA, sT))
            a.e("s_add_u32 s%d, s%d, s%d" % (sA, sA, sB))
            a.e("s_mul_i32 s%d, s%d, 112" % (sA, sA))
            a.e("s_mul_i32 s%d, s%d, 28" % (sB, sC))
            a.e("s_add_u32 s%d, s%d, s%d" % (sA, sA, sB))
            a.e("s_lshl_b32 s%d, s%d, 10" % (sA, sA))
            a.e("s_add_u32 s%d, s%d, 0x%x" % (sHOFF, sA, WS_HF))
        if (A and n % 2 == 1 and n >= 3): kvdma((n + 5) // 2)
        if (not A and n % 2 == 0 and n >= 2): kvdma((n + 6) // 2)
        if 1 <= n <= 4:
            a.e("s_lshl_b32 s%d, s%d, 17" % (sB, sKQ))
            a.e("s_and_b32 s%d, s%d, 1" % (sC, sW))
            a.e("s_lshl_b32 s%d, s%d, 13" % (sC, sC))
            a.e("s_add_u32 s%d, s%d, s%d" % (sB, sB, sC))
            for j in (2 * n - 2, 2 * n - 1): wodma(j)
        for sg in {5: (27, 23, 24), 6: (25, 26, 0), 7: (1, 2)}.get(n, ()): wddma(sg)
        if n == 10:
            for r in wd_reads(vWX, vWDA, 3 * 8192): a.e(r)
        for j in ({7: (0,), 8: (1, 2), 9: (3, 4)} if A else {7: (0, 1), 8: (2, 3), 9: (4,)}).get(n, ()):
            for r in wd_reads(WOF[j], vWOA, (7 - j) * 8192): a.e(r)
        hs = {10: (0, 1, 23, 24), 11: (2, 25, 26, 27)} if A else {9: (0, 1, 23), 10: (2, 24), 11: (25, 26, 27)}
        if Opt.hlate: hs = {10: (0, 1), 11: (2,)} if A else {9: (0,), 10: (1,), 11: (2,)}
        for sg in hs.get(n, ()): hload(sg, vH + 4 * sg if sg < 4 else vHX if sg == 27 else vH + 4 * (sg - 19))
        if n == 11:
            a.e("s_add_u32 s%d, s%d, 0x%x" % (sHOFF, sHOFF, 3 * 1024))
            a.e("s_add_u32 s%d, s%d, 0x%x" % (sWDOFF, sWDOFF, wdrow(3)))
            a.e("s_add_u32 s%d, s%d, 0x%x" % (sKVOFF, sWK, 9 * 8192))
            a.e("s_mov_b32 s%d, 4" % sCNT)
            a.e("s_add_u32 s%d, s%d, 0x1000" % (sOLD2, sOLD))
            a.e("s_mov_b32 s%d, 0x%x" % (sLO_, f2u(2.0 ** -16)))
            a.e("s_mov_b32 s%d, 0x%x" % (sRNG, f2u(2.0 ** 100) - f2u(2.0 ** -16)))
        if n == 0 and pre0:
            pre0()
            a.stamp(5)
        a.e("s_waitcnt lgkmcnt(0)")
        if n == 0:
            if A: a.e("s_barrier")
            for x in Yseg(None, first=True): a.e(x)
            if not A: a.e("s_barrier")
            continue
        a.e("s_call_b64 %s, L_Y%s" % (sp(sRET), role))
        if n == 1:
            a.e("s_branch L_X1%s" % role)
            a.lab("L_Y%s" % role)
            if A: a.e("s_barrier")
            for x in Yseg(None): a.e(x)
            if not A: a.e("s_barrier")
            a.e("s_setpc_b64 %s" % sp(sRET))
            a.lab("L_X1%s" % role)
    assert not (Opt.hlate and Opt.nx)
    hl = {28: (27, 23), 29: (24, 25), 30: (26,)} if Opt.hlate else {}
    vm = list(a.vm); need = [63] * 8
    for n in range(12, 32):
        p = n % 4; q = p + (4 if n >= 28 else 0)
        tags = ["wd%d" % (n - 11), "h%d" % (n - 12)]
        if (p % 2 == 1) == A: tags.append("kv%d" % ((n + (1 if A else 2)) // 2))
        idx = [i for i, t in enumerate(vm) if t in tags]
        if idx: need[q] = min(need[q], len(vm) - 1 - max(idx))
        vm.append("wd%d" % (n - 9))
        vm.append("h%d" % (n - 9))
        if (p % 2 == 1) == A and n < 28: vm.append("kv%d" % ((n + (5 if A else 6)) // 2))
        vm += ["hx"] * len(hl.get(n, ()))
    a.lab("L_loop%s" % role)
    for q in range(8):
        p = q % 4; fin = q >= 4
        kv = (p % 2 == 1) == A and not fin
        if q == 0 and Opt.diag and Opt.kdiag == 2:
            a.e("s_cmp_lg_u32 s%d, 3" % sCNT)
            a.e("s_cbranch_scc1 L_nst%s" % role)
            astamp(a, 8)
            a.lab("L_nst%s" % role)
        a.e("s_waitcnt vmcnt(%d)" % need[q])
        for i, r in enumerate(kv_reads(p * 4096, vKVB)):
            if not (q == 7 and i == 1): a.e(r)
        if q <= 8 - Opt.nd:
            for r in wd_reads(vWF, vWDA, p * 8192): a.e(r)
        if fin and p < Opt.nx:
            for r in wd_reads(vFR + 16, vWDA, (4 + p) * 8192): a.e(r)
        if q == 7:
            for r in wd_reads(vFR, vWDA, (4 + Opt.nx) * 8192): a.e(r)
        a.e("s_add_u32 m0, s%d, 0x%x" % (sWK, L_WD + ((p + 3) % 4) * 8192))
        a.e("s_and_b32 s%d, s%d, 0x7fff" % (sA, sKVOFF))
        a.e("buffer_load_dwordx4 %s, %s, s%d offen lds" % (v(vWDV), srd(SWD), sWDOFF))
        a.e("s_add_u32 s%d, s%d, 0x%x" % (sWDOFF, sWDOFF, 0x2000 if p & 1 else 0x6000))
        a.e("buffer_load_dwordx4 %s, %s, %s, s%d offen sc1" % (v(vKF + 4 if q == 7 and Opt.nd == 2 else vH + 4 * ((p + 3) % 4), 4), v(vL16), srd(SWS), sHOFF))
        if kv: a.e("s_add_u32 m0, s%d, 0x%x" % (sA, L_KV))
        a.e("s_add_u32 s%d, s%d, 0x400" % (sHOFF, sHOFF))
        if kv:
            a.e("buffer_load_dwordx4 %s, %s, s%d offen sc1 lds" % (v(vL16), srd(SKV), sKVOFF))
            a.e("s_add_u32 s%d, s%d, 0x2000" % (sKVOFF, sKVOFF))
        for sg in (hl.get(24 + q, ()) if fin else ()):
            a.e("s_add_u32 s%d, s%d, 0x%x" % (sA, sHOFF, (sg - (16 + q)) * 1024))
            a.e("buffer_load_dwordx4 %s, %s, %s, s%d offen sc1" % (v(vHX if sg == 27 else vH + 4 * (sg - 19), 4), v(vL16), srd(SWS), sA))
        if q == 3:
            a.e("s_sub_u32 s%d, s%d, 1" % (sCNT, sCNT))
            a.e("s_cmp_lg_u32 s%d, 0" % sCNT)
        a.e("s_waitcnt lgkmcnt(0)")
        if A: a.e("s_barrier")
        for x in Yseg(p if q < 8 - Opt.nd else None, toggle=(q == 3), extra=(fin and p < Opt.nx), last=(q == 7)): a.e(x)
        if not A and q < 7: a.e("s_barrier")
        if q == 3: a.e("s_cbranch_scc1 L_loop%s" % role)
    a.e("s_nop 1")

def transition(a, role):
    A = role == "A"
    if A:
        a.vm = []
        a.lab("L_trA")
    else:
        a.lab("L_join")
        a.e("s_cmp_eq_u32 s%d, 0" % sHI)
        a.e("s_cbranch_scc1 L_trA")
        a.vmjoin = list(a.vm)
    def qfin():
        for i in range(4): a.e("v_cvt_pk_bf16_f32 %s, %s, %s" % (v(vQ + i), v(vAQ + 2 * i), v(vAQ + 2 * i + 1)))
        a.e("v_add_u32 %s, 0x%x, %s" % (v(vWOA), L_WO, v(vWDA)))
        a.e("v_permlane16_swap_b32 %s, %s" % (v(vQ), v(vQ + 2)))
        a.e("v_permlane16_swap_b32 %s, %s" % (v(vQ + 1), v(vQ + 3)))
    pre0 = None
    if A:
        a.e("s_setprio 1")
        a.e("s_cmp_ge_u32 s%d, 14" % sM)
        a.e("s_cbranch_scc1 L_nogA0")
        put(a, a.kvA[:1] + a.kvA[-1:])
        a.l.append(".p2align 3")
        for ti in range(Opt.gsc): gelu_tile(a, ti, True)
        a.lab("L_nogA0")
        qfin()
        a.waitvm(["k0", "kv0", "kv1"])
        a.e("s_setprio 0")
        a.e(mfma(vS, vK0, vQ, None))
        a.e("s_barrier")
        put(a, a.kvA[1:-1])
        def pre0():
            a.e("s_cmp_lt_u32 s%d, 14" % sM)
            a.e("s_cbranch_scc1 L_gA1")
            a.e("s_waitcnt vmcnt(0)")
            a.e("s_branch L_nogA1")
            a.l.append(".p2align 3")
            a.lab("L_gA1")
            for ti in range(Opt.gsc, 4): gelu_tile(a, ti)
            a.lab("L_nogA1")
            a.e("s_setprio 2")
    else:
        a.waitvm(["k0", "kv0", "kv1"])
        a.e("s_setprio 1")
        if Opt.hpub == 3:
            a.e("s_cmp_ge_u32 s%d, 14" % sM)
            a.l.append(".p2align 3")
            a.e("s_barrier")
            a.e("s_cbranch_scc1 L_nogB")
        else:
            a.e("s_barrier")
            for u in (2, 3):
                a.vmop("s_add_u32 m0, s%d, 0x%x\ns_add_u32 s%d, s%d, 0x%x\nbuffer_load_dwordx4 %s, %s, s%d offen sc1 lds"
                       % (sWK, L_KV + u * 8192, sA, sWK, u * 8192, v(vL16), srd(SKV), sA), "kv%d" % u)
            a.e("s_cmp_lt_u32 s%d, 14" % sM)
            a.e("s_cbranch_scc1 L_gB")
            a.e("s_waitcnt vmcnt(0)")
            a.e("s_branch L_nogB")
            a.l.append(".p2align 3")
            a.lab("L_gB")
        for ti in range(4): gelu_tile(a, ti)
        a.lab("L_nogB")
        qfin()
        a.e("s_nop 1")
        a.e(mfma(vS, vK0, vQ, None))
        a.stamp(5)
    attention(a, role, pre0)
    if A:
        a.stamp(6); astamp(a, 9); tstamp(a, 2)
        if Opt.diag and Opt.kdiag == 2: a.e("s_waitcnt lgkmcnt(0)")
        a.e(smfmac(vO, vV1L, vS + 24))
        a.e("s_setprio 0")
        a.e("s_cmp_eq_u32 s%d, 0" % sHI)
        a.e("s_nop 9")
        normalise(a, False)
        a.lab("L_fbretA")
        a.e("buffer_store_dwordx4 %s, %s, %s, s%d offen sc1" % (v(vPK, 4), v(vL16), srd(SWS), sOST))
        tstamp(a, 3)
        a.e("s_waitcnt vmcnt(1)")
        tstamp(a, 4)
        a.e("s_barrier")
        a.fetch(a, False)
        a.e("s_branch L_tl2")

def normalise(a, packed):
    t = vT0
    a.e("v_rcp_f32 %s, %s" % (v(t + 2), v(vO + 8)))
    a.e("s_nop 0")
    a.e("v_mul_f32_e64 %s, %s, %s" % (v(t + 2), v(t + 2), v(vGP)))
    if packed:
        for i in range(4): a.e("v_pk_mul_f32 %s, %s, %s op_sel_hi:[1,0]" % (v(vO + 2 * i, 2), v(vO + 2 * i, 2), v(t + 2, 2)))
        for i in range(4):
            a.e("v_pk_fma_f32 %s, %s, 0, %s op_sel_hi:[1,0,%d]" % (v(t, 2), v(vO + 2 * i, 2), v(t, 2) if i else v(vO + 8, 2), 1 if i else 0))
            a.e("v_cvt_pk_bf16_f32 %s, %s, %s" % (v(vPK + i), v(vO + 2 * i), v(vO + 2 * i + 1)))
        a.e("v_fmac_f32 %s, 0, %s" % (v(t), v(t + 1)))
    else:
        t = vO + 8
        for i in range(8): a.e("v_mul_f32 %s, %s, %s" % (v(vO + i), v(vT0 + 2), v(vO + i)))
        for i in range(4):
            a.e("v_fmac_f32 %s, 0, %s" % (v(t), v(vO + 2 * i)))
            a.e("v_cvt_pk_bf16_f32 %s, %s, %s" % (v(vPK + i), v(vO + 2 * i), v(vO + 2 * i + 1)))
            a.e("v_fmac_f32 %s, 0, %s" % (v(t), v(vO + 2 * i + 1)))
    a.e("v_subrev_u32 %s, s%d, %s" % (v(t), sLO_, v(t)))
    a.e("v_cmp_lt_u32 vcc, s%d, %s" % (sRNG, v(t)))
    a.e("s_branch L_fb" if Opt.force_fb else "s_cbranch_vccnz L_fb")

def tail(a):
    a.lab("L_tail")
    a.stamp(6)
    astamp(a, 9)
    if Opt.diag and Opt.kdiag == 2: a.e("s_waitcnt lgkmcnt(0)")
    tstamp(a, 2)
    a.e(smfmac(vO, vV1L, vS + 24))
    wf = [vFR, vFR + 8, vFR + 16]
    HORD = hord()
    def oload(j):
        return "buffer_load_dwordx4 %s, %s, %s, s%d offen offset:%d %s" % (
            v(vS + 4 * j, 4), v(vL16), srd(SWS), sOLD if HORD[j] < 4 else sOLD2, (HORD[j] % 4) * 1024, Opt.old_pol)
    a.oload = oload
    a.e("s_cmp_eq_u32 s%d, 0" % sHI)
    a.e("s_nop 10")
    a.l.append(".p2align 3")
    normalise(a, True)
    a.lab("L_fbret")
    a.e("buffer_store_dwordx4 %s, %s, %s, s%d offen sc1" % (v(vPK, 4), v(vL16), srd(SWS), sOST))
    tstamp(a, 3)
    aw = [vAW0, vWOA + 1, vWOA + 2, vWOA + 3]
    ar = [vAR0, vFLA]
    wo = WOF
    def fetch(o, scale):
        for j in range(8):
            o.e(oload(j))
            if j >= 5:
                for r in wd_reads(wo[j], vWOA, (7 - j) * 8192): o.e(r)
            if scale and j >= 4:
                for i in range(4 * j - 16, 4 * j - 12): o.e("v_mul_f32 %s, %s, %s" % (v(vD + i), v(vGC), v(vD + i)))
    def addrs(a):
        a.e("v_sub_f32 %s, 1.0, %s" % (v(vGC), v(vGC)))
        for j in range(1, 4): a.e("v_xor_b32 %s, %d, %s" % (v(aw[j]), 32 * j, v(aw[0])))
        a.e("v_xor_b32 %s, 16, %s" % (v(ar[1]), v(ar[0])))
        a.e("s_mov_b32 s%d, 0x2000" % sB)
    ol = Asm(); a.ool2 = ol.l
    a.e("s_waitcnt vmcnt(1)")
    tstamp(a, 4)
    a.e("s_barrier")
    a.lab("L_tl2")
    tstamp(a, 5)
    a.fetch = fetch
    fl = collect(addrs)
    slot = [4, 5, 6, 7, 0, 1, 2][Opt.nx:] + ([3] if Opt.nd == 2 else [])
    hreg = lambda sl: vKF + 4 if sl == 2 and Opt.nd == 2 else vH + 4 * sl
    inreg = [(vWX, vHX)] + ([(vWF, vH + 4 * (4 - Opt.nd))] if Opt.nd else [])
    rds = sum((wd_reads(wf[i % 3], vWDA, slot[i] * 8192) for i in range(len(slot))), [])
    done = 4
    for i in range(-len(inreg), len(slot)):
        for c in range(2):
            if i >= 1: a.e("s_waitcnt lgkmcnt(%d)" % (done - (4 * i + 2 * c + 2)))
            a.e(mfma(vD + 16 * c, inreg[i][0] + 4 * c, inreg[i][1], vD + 16 * c) if i < 0 else
                mfma(vD + 16 * c, wf[i % 3] + 4 * c, hreg(slot[i]), vD + 16 * c))
            if i < -1: continue
            if done < len(rds):
                for r in rds[done:done + 2]: a.e(r)
                done += 2
            else:
                put(a, fl[:2]); fl = fl[2:]
    assert not fl
    tstamp(a, 6)
    a.e("s_cbranch_scc0 L_tl3")
    a.l.append(".p2align 3")
    a.e("s_nop 7")
    a.e("s_nop 0")
    for i in range(16): a.e("v_pk_mul_f32 %s, %s, %s op_sel:[0,1] op_sel_hi:[1,1]" % (v(vD + 2 * i, 2), v(vD + 2 * i, 2), v(vGP, 2)))
    tstamp(a, 7)
    a.lab("L_tl4")
    tstamp(a, 8)
    ol.lab("L_tl3")
    ol.e("s_setprio 0")
    fetch(ol, False)
    tstamp(ol, 7)
    for i in range(32): ol.e("v_mul_f32 %s, %s, %s" % (v(vD + i), v(vGC), v(vD + i)))
    ol.e("s_waitcnt lgkmcnt(0)")
    def check(j):
        o = vS + 4 * j
        return ["s_waitcnt vmcnt(%d)" % (7 - j), "v_max3_u32 v2, %s, %s, %s" % (v(o), v(o + 1), v(o + 2)),
                "v_max_u32 v2, v2, %s" % v(o + 3), "v_cmp_eq_u32 vcc, -1, v2"]
    for j in range(Opt.bpre):
        for x in check(j): ol.e(x)
        ol.e("s_cbranch_vccnz L_bp%d" % j)
    ol.e("s_branch L_tl4")
    if Opt.bpre:
        for j in range(8):
            if j < Opt.bpre: ol.lab("L_bp%d" % j)
            ol.e(oload(j))
        ol.e("s_branch L_tl4")
    a.stamp(7)
    def check(j):
        o = vS + 4 * j
        return ["s_waitcnt vmcnt(%d)" % (7 - j), "v_max3_u32 v2, %s, %s, %s" % (v(o), v(o + 1), v(o + 2)),
                "v_max_u32 v2, v2, %s" % v(o + 3), "v_cmp_eq_u32 vcc, -1, v2"]
    a.check = check
    for x in check(0): a.e(x)
    for j in range(10):
        if j < 8:
            a.e("s_cbranch_vccnz L_ore%d" % j)
            a.lab("L_ook%d" % j)
            a.e(mfma(vD, wo[j], vS + 4 * j, vD))
        if j >= 2 and Opt.cfirst: a.e(mfma(vD + 16, wo[j - 2] + 4, vS + 4 * (j - 2), vD + 16))
        if j < 7:
            for x in check(j + 1): a.e(x)
        if j >= 2 and not Opt.cfirst: a.e(mfma(vD + 16, wo[j - 2] + 4, vS + 4 * (j - 2), vD + 16))
        if j in (7, 8): a.e("s_nop 4")
    wr = lambda c, j: "ds_write_b128 %s, %s offset:%d" % (v(aw[j]), v(vD + 16 * c + 4 * j, 4), 128 * c)
    a.stamp(8)
    tstamp(a, 9)
    for j in range(4): a.e(wr(0, j))
    a.e("s_nop 7")
    for j in range(4): a.e(wr(1, j))
    a.e("s_waitcnt lgkmcnt(0)")
    a.e("s_barrier")
    for p in range(4):
        for h in range(2): a.e(rd128(vS + 8 * p + 4 * h, ar[h], p * 8192))
    for p in range(1, 4):
        a.e("s_waitcnt lgkmcnt(%d)" % (6 - 2 * p))
        for i in range(4): a.e("v_pk_add_f32 %s, %s, %s" % (v(vS + 2 * i, 2), v(vS + 2 * i, 2), v(vS + 8 * p + 2 * i, 2)))
    for i in range(4): a.e("v_cvt_pk_bf16_f32 %s, %s, %s" % (v(vP + i), v(vS + 2 * i), v(vS + 2 * i + 1)))
    a.e("buffer_store_dwordx4 %s, %s, %s, s%d offen %s" % (v(vP, 4), v(vOUTA), srd(SOUT), sOUTO, Opt.out_pol))
    if Opt.probe >= 0:
        a.e("s_waitcnt vmcnt(0)")
        a.stamp(9)
        if Opt.probe != 9:
            a.e("s_cmp_ge_u32 s%d, 14" % sM)
            a.e("s_cbranch_scc%d L_end" % (0 if Opt.probe_l else 1))
        a.e("s_sub_u32 s%d, s%d, s%d" % (sA, sSTAMP + 4, sSTAMP))
        a.e("s_mul_i32 s%d, s%d, %d" % (sA, sA, Opt.probe_mul - 1))
        if Opt.pcyc >= 0:
            a.e("s_sub_u32 s%d, s%d, s%d" % (sA, sSTAMP + 8, sSTAMP + 6))
            if Opt.prt: a.e("s_mul_i32 s%d, s%d, 10" % (sA, sA))
            a.e("s_mov_b32 s%d, s%d" % (sSTAMP + 4, sSTAMP))
        a.e("s_min_u32 s%d, s%d, 100000" % (sA, sA))
        a.e("s_add_u32 s%d, s%d, 3800" % (sA, sA))
        if Opt.probe_r >= 0:
            a.e("s_cmp_eq_u32 s%d, 0x2000" % sB)
            a.e("s_cbranch_scc%d L_end" % Opt.probe_r)
        if Opt.probe_w >= 0:
            a.e("s_cmp_lg_u32 s%d, %d" % (sHI, Opt.probe_w))
            a.e("s_cbranch_scc1 L_end")
        if Opt.probe_x >= 0:
            a.e("s_and_b32 s0, s2, 7")
            a.e("s_cmp_lg_u32 s0, %d" % Opt.probe_x)
            a.e("s_cbranch_scc1 L_end")
        a.lab("L_probe")
        a.e("s_memrealtime s[0:1]")
        a.e("s_waitcnt lgkmcnt(0)")
        a.e("s_sub_u32 s0, s0, s%d" % (sSTAMP + 4))
        a.e("s_cmp_lt_u32 s0, s%d" % sA)
        a.e("s_cbranch_scc1 L_probe")
    if Opt.pin == 9:
        a.e("s_waitcnt vmcnt(0)")
        a.stamp(9)
    if Opt.diag in (1, 2):
        a.e("s_waitcnt vmcnt(0)")
        a.stamp(9)
        a.e("s_mov_b32 s%d, s%d" % (sSTAMP + 3, sSTAMP))
        a.e("s_mov_b32 s%d, s%d" % (sSTAMP, sB))
        a.e("s_getreg_b32 s%d, hwreg(HW_REG_XCC_ID)" % (sSTAMP + 1))
        for i in range(20): a.e("v_mov_b32 %s, s%d" % (v(vS + i), sSTAMP + i))
        a.e("s_lshl_b32 s%d, s2, 3" % sA)
        a.e("s_add_u32 s%d, s%d, s%d" % (sA, sA, sW))
        a.e("s_lshl_b32 s%d, s%d, 7" % (sA, sA))
        a.e("s_add_u32 s%d, s%d, 0x%x" % (sA, sA, WS_STAMP))
        a.e("s_mov_b64 exec, 1")
        for i in range(5): a.e("buffer_store_dwordx4 %s, off, %s, s%d offset:%d" % (v(vS + 4 * i, 4), srd(SWS), sA, 16 * i))
    a.lab("L_end")
    a.e("s_endpgm")
    a.l += a.ool2
    for j in range(8):
        a.lab("L_ore%d" % j)
        a.e("s_sub_u32 s%d, s%d, 1" % (sB, sB))
        a.e("s_cbranch_scc1 L_ogive%d" % j)
        if Opt.rwait: a.e("s_waitcnt vmcnt(0)")
        if Opt.rwait > 1: a.e("s_sleep %d" % Opt.rwait)
        for i in range(j, 8): a.e(a.oload(i))
        for x in a.check(j): a.e(x)
        a.e("s_cbranch_vccnz L_ore%d" % j)
        a.e("s_branch L_ook%d" % j)
        a.lab("L_ogive%d" % j)
        a.e("s_mov_b32 s%d, 0" % sB)
        a.e("s_branch L_ook%d" % j)

def fallback(a):
    a.lab("L_fb")
    m = vT0
    a.e("v_mov_b32 %s, 0xff800000" % v(m))
    a.e("s_mov_b32 s%d, 0" % sA)
    a.lab("L_fb1")
    a.e("buffer_load_dwordx4 %s, %s, %s, s%d offen sc1" % (v(vKF, 4), v(vL16), srd(SKV), sA))
    a.e("s_waitcnt vmcnt(0)")
    a.e(mfma(vS, vKF, vQ, None))
    a.e("s_add_u32 s%d, s%d, 2048" % (sA, sA))
    a.e("s_nop 11")
    for i in range(8): a.e("v_max3_f32 %s, %s, %s, %s" % (v(m), v(m), v(vS + 2 * i), v(vS + 2 * i + 1)))
    a.e("s_cmp_lt_u32 s%d, 0x20000" % sA)
    a.e("s_cbranch_scc1 L_fb1")
    a.e("v_mov_b32 %s, %s" % (v(m + 1), v(m)))
    a.e("s_nop 1")
    a.e("v_permlane32_swap_b32 %s, %s" % (v(m), v(m + 1)))
    a.e("s_nop 1")
    a.e("v_max_f32 %s, %s, %s" % (v(m), v(m), v(m + 1)))
    for i in range(16): a.e("v_sub_f32 %s, 0, %s" % (v(vS + 16 + i), v(m)))
    for i in range(16): a.e("v_mov_b32 %s, 0" % v(vO + i))
    a.e("s_mov_b32 s%d, 0" % sA)
    a.lab("L_fb2")
    a.e("s_add_u32 s%d, s%d, 0x%x" % (sB, sA, 63 * 2048))
    a.e("s_and_b32 s%d, s%d, 0x1ffff" % (sB, sB))
    a.e("buffer_load_dwordx4 %s, %s, %s, s%d offen sc1" % (v(vKF, 4), v(vL16), srd(SKV), sB))
    a.e("s_add_u32 s%d, s%d, 2048" % (sB, sA))
    a.e("s_and_b32 s%d, s%d, 0x1ffff" % (sB, sB))
    a.e("s_mov_b64 exec, %s" % sp(sVM))
    a.e("buffer_load_dwordx4 %s, %s, %s, s%d offen offset:1024 sc1" % (v(vV, 4), v(vL16), srd(SKV), sA))
    a.e("buffer_load_dwordx4 %s, %s, %s, s%d offen offset:1280 sc1" % (v(vV + 4, 4), v(vL16), srd(SKV), sB))
    a.e("s_mov_b64 exec, -1")
    a.e("s_waitcnt vmcnt(0)")
    a.e(mfma(vS, vKF, vQ, vS + 16))
    a.e("s_add_u32 s%d, s%d, 2048" % (sA, sA))
    a.e("s_nop 11")
    for i in range(16): a.e("v_exp_f32 %s, %s" % (v(vS + i), v(vS + i)))
    a.e("s_nop 2")
    a.e(smfmac(vO, vV, vS))
    a.e(smfmac(vO, vV + 4, vS + 8))
    a.e("s_cmp_lt_u32 s%d, 0x20000" % sA)
    a.e("s_cbranch_scc1 L_fb2")
    a.e("s_nop 11")
    a.e("v_rcp_f32 %s, %s" % (v(vT0 + 2), v(vO + 8)))
    a.e("s_cmp_eq_u32 s%d, 0" % sHI)
    a.e("v_mul_f32 %s, %s, %s" % (v(vT0 + 2), v(vT0 + 2), v(vGP)))
    for i in range(8): a.e("v_mul_f32 %s, %s, %s" % (v(vO + i), v(vT0 + 2), v(vO + i)))
    for i in range(4): a.e("v_cvt_pk_bf16_f32 %s, %s, %s" % (v(vPK + i), v(vO + 2 * i), v(vO + 2 * i + 1)))
    for i in range(4): a.e("v_min_u32 %s, -2, %s" % (v(vPK + i), v(vPK + i)))
    a.e("s_cbranch_scc1 L_fbretA")
    a.e("s_branch L_fbret")

def build():
    a = Asm()
    prologue(a)
    phase1_F(a)
    transition(a, "B")
    tail(a)
    a.l += a.ool
    transition(a, "A")
    phase1_L(a)
    fallback(a)
    a.lab("L_codeend")
    for i, x in enumerate(a.l):
        if " sc1" in x and "sc0" not in x and ((Opt.allsc & 1 and "buffer_store" in x) or (Opt.allsc & 2 and "buffer_load" in x)):
            a.l[i] = x.replace(" sc1", " sc0 sc1")
    il = a.l.index("L_light:")
    for i, x in enumerate(a.l):
        if x.endswith(" lds") and "sc1" not in x and " nt" not in x:
            if (Opt.ntx & 4 and (srd(SWD) in x or srd(SWO) in x)) or (Opt.ntx & 8 and i > il):
                a.l[i] = x[:-4] + " nt lds"
    head = open("cdna_kernels/%s.s.ref" % NAME).read().split("\n")
    hdr = [l for l in head if l.startswith(";") and "@launch" not in l and "Override" not in l and "grid=" not in l]
    out = hdr + ["; @launch grid=(256,1,1) block=(512,1,1) lds=%d" % LDS_BYTES,
                 '.amdgcn_target "amdgcn-amd-amdhsa--gfx950"', ".text", ".globl %s_kernel" % NAME, ".p2align 8",
                 ".type %s_kernel,@function" % NAME,
                 ".set CODE_PF_MAX, L_codeend - L_nopf - 4" if Opt.code_pf else "",
                 "%s_kernel:" % NAME]
    if Opt.diag: out += ["; mapmode %d" % (1 + 3 * bool(Opt.oddl))]
    out += ["; " + x for x in """One persistent launch, one workgroup per CU (generated by a script), 8 waves = two quartets that alternate on each SIMD.
Stage 1: 14 of every 16 workgroups compute gelu(x Wg) * (x Wu) for 128 tokens x 128 columns plus Q for two heads;
         the other two compute K, V and the mixing gate, publish them (counter in d_debug) and then their own Q.
Stage 2: attention for 128 tokens x 2 heads over all keys, S^T = K Q^T, exp2 in place, P V through sparse MFMAs that
         read the high halves of the fp32 probabilities; a row of ones in the V operand gives the row sums.
         The stand-in maximum is 0: it is accepted only if the row sum lies in [2^-16, 2^100] and every accumulator is
         finite, otherwise the wave redoes its rows with the true maximum (L_fb).
         The down projection of a 64 x 64 output tile runs in the same loop once the producers' flags are seen.
Stage 3: attention outputs are handed over through d_ws (cleared to a mark earlier in this launch), projected,
         mixed with the FFN branch, reduced through LDS and stored.""".split("\n")]
    out += a.l
    out += ['.section .rodata,"a"', ".p2align 6", ".amdhsa_kernel %s_kernel" % NAME,
            "  .amdhsa_next_free_vgpr %d" % NV, "  .amdhsa_next_free_sgpr 102", "  .amdhsa_accum_offset 256",
            "  .amdhsa_group_segment_fixed_size 0", "  .amdhsa_kernarg_size 104", "  .amdhsa_user_sgpr_count 2",
            "  .amdhsa_user_sgpr_kernarg_segment_ptr 1", "  .amdhsa_system_sgpr_workgroup_id_x 1", ".end_amdhsa_kernel", ""]
    return "\n".join(out)

if __name__ == "__main__":
    path = sys.argv[1]
    for kv in sys.argv[2:]:
        k, val = kv.split("=")
        cur = getattr(Opt, k)
        setattr(Opt, k, val if isinstance(cur, str) else type(cur)(int(val)))
    open(path, "w").write(build())
```

```python
import sys, struct, math

NAME = "gated_mix__grouped_kv_mqa__geglu_ffn__prompt"

class Opt:
    diag = 0
    mapmode = 1
    force_fb = False
    allsc = 0
    out_pol = "sc0 sc1"
    code_pf = True
    xrot = 0
    pregap = 0
    kw0 = 1
    kb = 3
    kal = 1
    xodd = 43
    xeven = 32
    hsl = 2
    lthr = 0
    klate = 0
    bpre = 0
    oddl = 1
    hlate = 1
    hpub = 3
    rwait = 1
    aearly = 0
    bidle = 1
    old_pol = "sc1"
    ypos0 = "36g"
    ypos1 = "36bg"
    ypos2 = "36cg9"
    nd = 1
    nx = 0
    tpos = 1
    cfirst = 0
    tch = 12
    stch = 0
    spos = 1
    tlb = 6
    olate = 1
    hrot = 0
    tbar = 0
    hord = 1
    cmap = 1
    kqx = 2
    oearly = 8
    conc = 1
    ghx = 1
    qa = "077777"
    qb = "588888"
    npre = 8
    stagger = 1
    rper = 2
    dma1 = 17
    kprio = 0
    dma0 = 8
    npd = 4
    kdiag = 0
    fillpre = 0
    fillper = 5
    gsc = 2
    sched = 0
    xmask = 1
    ntx = 0
    touch = 2
    rotg = 0
    rotm = 0
    startbar = 1
    pvz = 1
    pin = -1
    pin_ns = 60000
    probe = -1
    probe_x = -1
    probe_mul = 10
    probe_w = -1
    probe_r = -1
    pcyc = -1
    prt = 0
    probe_g = 1
    probe_l = 0

def f2u(x): return struct.unpack("<I", struct.pack("<f", x))[0]

WS_KV = 0
WS_G = 128 * 1024
WS_HFLAG = 192 * 1024
WS_OF = 1 << 20
WS_HF = 4 << 20
WS_STAMP = 12 << 20
WS_SIZE = 16 << 20
K1 = 1024
L_G, L_U, L_X, L_WQ = 0, 48 * K1, 96 * K1, 144 * K1
L_QX = 32 * K1
L_WD, L_WO, L_KV = 0, 64 * K1, 128 * K1
L_RED = 96 * K1
LL_X, LL_W, LL_GATE, LL_WQ = 0, 128 * K1, 144 * K1, 128 * K1
LDS_BYTES = 160 * K1

SX, SWG, SWU, SWQ, SWS, SWD, SWO, SOUT, SDBG, SWKV, SGATE, SKV = 4, 8, 12, 16, 20, 24, 28, 32, 36, 40, 44, 64
SWV = 72
sTMPP = 48
sW, sHI, sLO, sG, sM, sT, sCB = 50, 51, 52, 53, 54, 55, 56
sWK = 57
sWH = 58
sVM = 60
sRET = 62
sA, sB, sC, sD = 68, 69, 70, 71
sOFFW, sOFFQ, sCH, sXP = 72, 73, 74, 75
sHOFF, sWDOFF, sKVOFF, sHXO, sCNT = 72, 73, 74, 75, 77
sOUTO, sLO_, sRNG = 59, 81, 75
sOLD2 = 58
sOST, sOLD, sHST = 78, 79, 80
sHST2 = 3
sRX, sRW, sM0B = 40, 41, 42
sKQ = 76
sHP = 81
sSTAMP = 82

def srd(b): return "s[%d:%d]" % (b, b + 3)
def sp(b): return "s[%d:%d]" % (b, b + 1)
def v(b, n=1): return "v%d" % b if n == 1 else "v[%d:%d]" % (b, b + n - 1)

vL16 = 1
vT0, vT1, vT2, vT3 = 2, 3, 4, 5
vGP, vGC = 6, 7
vKVA = 8
vWDA = 9
vWDV = 10
vONE = 11
vZERO = 12
vFLA = 13
vPOLL = 14
vGA = 15
vQ = 16
vK0 = 20
vV1L = 24
vIDX = 28
vAW0, vAR0, vOUTA = 30, 31, 12
vKVB = 29
vP = 32
vV = 40
vO = 56
vD = 72
vACC = 104
vS = 104
vH = 136
vAQ = vP
vF1 = 168
vKF = 168
vWF = 176
vWX = 224
vHX = 232
vPK = 20
WOF = [32, 208, 216, 240, 248, 40, 48, 56]
vWOA = 236
vFR = 184
vLX = 224
vXA = 240
vWA = 244
vQA = 248
vDX, vDG, vDQ = 249, 250, 251
vC0 = 252
vTID = 255
vHA = 254
NV = 256

class Asm:
    def __init__(self):
        self.l = []
        self.vm = []
        self.nstamp = 0
    def e(self, s):
        for x in s.split("\n"):
            x = x.strip()
            if x: self.l.append("    " + x)
    def lab(self, s): self.l.append(s + ":")
    def vmop(self, s, tag):
        self.e(s); self.vm.append(tag)
    def vmn(self, tags):
        if isinstance(tags, str): tags = [tags]
        last = -1
        for i, t in enumerate(self.vm):
            if t in tags: last = i
        return None if last < 0 else len(self.vm) - 1 - last
    def waitvm(self, tags, lgkm=False):
        n = self.vmn(tags)
        if n is None:
            if lgkm: self.e("s_waitcnt lgkmcnt(0)")
            return
        assert n < 64
        self.e("s_waitcnt vmcnt(%d)%s" % (n, " lgkmcnt(0)" if lgkm else ""))
        self.vm = self.vm[len(self.vm) - n:] if n else []
    def wait0(self, lgkm=False):
        self.e("s_waitcnt vmcnt(0)%s" % (" lgkmcnt(0)" if lgkm else "")); self.vm = []
    def stamp(self, i, real=False):
        if Opt.probe == i:
            self.e("s_waitcnt lgkmcnt(0)")
            self.e("s_memrealtime %s" % sp(sSTAMP + 4))
            if Opt.pcyc >= 0: self.e("%s %s" % ("s_memrealtime" if Opt.prt else "s_memtime", sp(sSTAMP + 8)))
            self.e("s_waitcnt lgkmcnt(0)")
        if Opt.pin == i:
            self.nstamp += 1
            self.e("s_waitcnt lgkmcnt(0)")
            self.e("s_cselect_b32 s%d, 1, 0" % (sSTAMP + 5))
            self.lab("L_pin%d" % self.nstamp)
            self.e("s_memrealtime s[0:1]")
            self.e("s_waitcnt lgkmcnt(0)")
            self.e("s_sub_u32 s0, s0, s%d" % sSTAMP)
            self.e("s_cmp_lt_u32 s0, %d" % (Opt.pin_ns // 10))
            self.e("s_cbranch_scc1 L_pin%d" % self.nstamp)
            self.e("s_cmp_lg_u32 s%d, 0" % (sSTAMP + 5))
        if Opt.diag and not Opt.kdiag and (Opt.diag == 1 or i == 9):
            self.e("s_waitcnt lgkmcnt(0)")
            self.e("s_memtime %s" % sp(sSTAMP + 2 * i))
            self.e("s_memrealtime %s" % sp(sRET))
            self.e("s_waitcnt lgkmcnt(0)")
            self.e("s_mov_b32 s%d, s%d" % (sSTAMP + 2 * i + 1, sRET))

def astamp(a, i):
    if Opt.diag and Opt.kdiag == 2: a.e("s_memtime %s" % sp(sSTAMP + 2 * i))

def tstamp(a, i):
    if Opt.diag and Opt.kdiag == 3: a.e("s_memtime %s" % sp(sSTAMP + 2 * i))

def kstamp(a, i):
    if Opt.probe == 18 + i: a.e("s_memrealtime %s" % sp(sSTAMP + 4))
    if Opt.diag and Opt.kdiag == 1: a.e("s_memtime %s" % sp(sSTAMP + 2 * i))

def mfma(d, a, b, c):
    return "v_mfma_f32_32x32x16_bf16 %s, %s, %s, %s" % (v(d, 16), v(a, 4), v(b, 4), "0" if c is None else v(c, 16))
def smfmac(d, a, b):
    return "v_smfmac_f32_32x32x32_bf16 %s, %s, %s, %s" % (v(d, 16), v(a, 4), v(b, 8), v(vIDX))
def mfma16(d, a, b, c):
    return "v_mfma_f32_16x16x32_bf16 %s, %s, %s, %s" % (v(d, 4), v(a, 4), v(b, 4), "0" if c is None else v(c, 4))
def rd128(d, a, off):
    assert 0 <= off < 65536
    return "ds_read_b128 %s, %s offset:%d" % (v(d, 4), v(a), off)
def rdtr(d, a, off):
    assert 0 <= off < 65536
    return "ds_read_b64_tr_b16 %s, %s offset:%d" % (v(d, 2), v(a), off)

def interleave(mf, fill, per=2):
    out = []
    fill = list(fill)
    for i, m in enumerate(mf):
        out.append(m)
        if i < len(mf) - 1:
            out += fill[:per]; fill = fill[per:]
    return out + fill

def srd_words(a, regs):
    sizes = {SX: 2048 * 1024, SWG: 512 * 3584, SWU: 512 * 3584, SWQ: 512 * 1024, SWS: WS_SIZE, SWKV: 16384, SWV: 16384,
             SGATE: 1024, SWD: 1792 * 1024, SWO: 512 * 1024, SOUT: 2048 * 1024, SDBG: 256, SKV: 128 * 1024}
    for reg in regs:
        a.e("s_mov_b32 s%d, 0x%x" % (reg + 2, sizes[reg]))
        a.e("s_mov_b32 s%d, 0x20000" % (reg + 3))

def ptr_loads(a, lst):
    for reg, off in lst: a.e("s_load_dwordx2 %s, s[0:1], %d" % (sp(reg), off))

def prologue(a):
    if Opt.diag or Opt.pin >= 0 or Opt.probe >= 0:
        a.e("s_memrealtime %s" % sp(sSTAMP))
        if Opt.diag in (1, 2): a.e("s_memtime %s" % sp(sSTAMP + 2))
    ptr_loads(a, ((SX, 0), (SWG, 48), (SWU, 56), (SWQ, 8)))
    if Opt.probe == 1: a.stamp(1)
    a.e("v_lshrrev_b32 v2, 6, v0")
    if Opt.code_pf:
        a.e("s_getpc_b64 %s" % sp(sRET))
        a.lab("L_nopf")
        a.e("s_and_b32 s%d, s2, -8" % sA)
        a.e("v_add_lshl_u32 v4, v2, s%d, 7" % sA)
        a.e("v_mov_b32 v5, 0")
        a.e("v_min_u32 v4, CODE_PF_MAX, v4")
        a.e("v_lshl_add_u64 v[4:5], v[4:5], 0, %s" % sp(sRET))
        a.e("global_load_dword %s, v[4:5], off" % v(vPOLL))
    if not Opt.klate: a.e("s_load_dwordx8 s[%d:%d], s[0:1], 64" % (SOUT, SOUT + 7))
    a.e("v_readfirstlane_b32 s%d, v2" % sW)
    if not Opt.klate: ptr_loads(a, ((SWS, 96),) if Opt.diag or Opt.probe >= 0 else ((SWS, 96), (SWO, 32)))
    a.e("s_cmpk_ge_u32 s2, 256")
    a.e("s_cbranch_scc1 L_end")
    if Opt.oddl:
        a.e("s_bfe_u32 s%d, s2, 0x10002" % sD)
        a.e("s_bfe_u32 s%d, s2, 0x30003" % sA)
        a.e("s_lshl3_add_u32 s%d, s%d, s%d" % (sG, sD, sA))
        a.e("s_and_b32 s%d, s2, 3" % sA)
        if Opt.oddl == 2: a.e("s_xor_b32 s%d, s%d, 1" % (sA, sA))
        a.e("s_lshr_b32 s%d, s2, 6" % sB)
        a.e("s_lshl2_add_u32 s%d, s%d, s%d" % (sHP, sA, sB))
        a.e("s_lshr_b32 s%d, s%d, 3" % (sB, sHP))
        a.e("s_sub_u32 s%d, s%d, s%d" % (sM, sHP, sB))
        a.e("s_lshl_b32 s%d, s%d, 10" % (sWK, sW))
        a.e("s_andn2_b32 s%d, 7, s%d" % (sA, sHP))
        a.e("s_cbranch_scc0 L_light")
    else:
        a.e("s_and_b32 s%d, s2, 1" % sD)
        a.e("s_bfe_u32 s%d, s2, 0x30003" % sA)
        a.e("s_lshl3_add_u32 s%d, s%d, s%d" % (sG, sD, sA))
        a.e("s_bfe_u32 s%d, s2, 0x20001" % sA)
        a.e("s_lshr_b32 s%d, s2, 6" % sB)
        a.e("s_lshl2_add_u32 s%d, s%d, s%d" % (sM, sA, sB))
        a.e("s_mov_b32 s%d, s%d" % (sHP, sM))
        a.e("s_lshl_b32 s%d, s%d, 10" % (sWK, sW))
        a.e("s_cmp_ge_u32 s%d, 14" % sM)
        a.e("s_cbranch_scc1 L_light")

def xvoff(a, t):
    a.e("v_lshrrev_b32 v2, 4, %s" % v(t))
    a.e("v_xor_b32 v2, v2, %s" % v(t))
    a.e("v_and_b32 v2, 7, v2")
    a.e("s_lshl_b32 s%d, s%d, 17" % (sA, sG))
    a.e("v_lshl_add_u32 v2, v2, 4, s%d" % sA)
    a.e("v_lshrrev_b32 v3, 3, %s" % v(t))
    a.e("v_lshl_add_u32 %s, v3, 10, v2" % v(vDX))

def setup_ids(a):
    if Opt.klate:
        ptr_loads(a, ((SWS, 96), (SKV, 96), (SDBG, 88), (SWD, 64), (SWO, 32), (SOUT, 80)))
    else:
        a.e("s_mov_b64 %s, %s" % (sp(SKV), sp(SWS)))
        a.e("s_mov_b64 %s, %s" % (sp(SWD), sp(SOUT)))
        a.e("s_mov_b64 %s, %s" % (sp(SOUT), sp(SOUT + 4)))
        a.e("s_mov_b64 %s, %s" % (sp(SDBG), sp(SOUT + 6)))
    a.e("v_and_b32 v0, 63, v0")
    a.e("v_lshlrev_b32 %s, 4, v0" % v(vL16))
    if Opt.oddl:
        a.e("s_and_b32 s%d, s2, 7" % sA)
        a.e("s_xor_b32 s%d, s%d, 4" % (sA, sA))
    else:
        a.e("s_andn2_b32 s%d, 1, s2" % sA)
        a.e("s_bfe_u32 s%d, s2, 0x20001" % sB)
        a.e("s_lshl2_add_u32 s%d, s%d, s%d" % (sA, sA, sB))
    a.e("s_bfe_u32 s%d, s2, 0x20003" % sB)
    a.e("s_lshl2_add_u32 s%d, s%d, s%d" % (sT, sA, sB))
    a.e("s_lshr_b32 s%d, s2, 5" % sCB)

def setup_rd(a):
    a.e("s_lshr_b32 s%d, s%d, 2" % (sHI, sW))
    a.e("s_and_b32 s%d, s%d, 3" % (sLO, sW))
    a.e("v_and_b32 v2, 15, v0")
    a.e("v_lshrrev_b32 v3, 4, v0")
    a.e("v_bfe_u32 v4, v0, 1, 3")
    a.e("v_xor_b32 v4, v4, v3")
    a.e("v_lshlrev_b32 v4, 4, v4")
    a.e("v_lshl_add_u32 %s, v2, 7, v4" % v(vXA))
    a.e("v_bfe_u32 v2, v0, 2, 2")
    a.e("v_and_b32 v4, 3, v0")
    a.e("v_lshl_add_u32 %s, v3, 3, v2" % v(vQA))
    a.e("v_lshlrev_b32 %s, 6, %s" % (v(vQA), v(vQA)))
    a.e("v_xor_b32 v5, s%d, v3" % sHI)
    a.e("v_and_b32 v5, 1, v5")
    a.e("v_lshl_add_u32 %s, v5, 5, %s" % (v(vQA), v(vQA)))
    a.e("v_lshl_add_u32 %s, v4, 3, %s" % (v(vQA), v(vQA)))

def setup_oclr(a):
    srd_words(a, [SWS, SKV, SDBG])
    a.e("s_mov_b32 s%d, 0xffff" % sVM)
    a.e("s_mov_b32 s%d, 0xffff" % (sVM + 1))
    a.e("s_lshl_b32 s%d, s%d, 2" % (sA, sG))
    a.e("s_add_u32 s%d, s%d, s%d" % (sA, sA, sLO))
    a.e("s_lshl_b32 s%d, s%d, 5" % (sB, sA))
    a.e("s_lshl_b32 s%d, s%d, 1" % (sC, sHP))
    a.e("s_add_u32 s%d, s%d, s%d" % (sB, sB, sC))
    a.e("s_add_u32 s%d, s%d, s%d" % (sB, sB, sHI))
    a.e("s_lshl_b32 s%d, s%d, 10" % (sB, sB))
    a.e("s_add_u32 s%d, s%d, 0x%x" % (sOST, sB, WS_OF))
    for i in range(4): a.e("v_mov_b32 %s, -1" % v(vQ + i))
    a.vmop("buffer_store_dwordx4 %s, %s, %s, s%d offen sc1" % (v(vQ, 4), v(vL16), srd(SWS), sOST), "oclr")
    a.e("v_mov_b32 %s, 1" % v(vONE))
    a.e("v_mov_b32 %s, 0" % v(vZERO))
    a.e("v_and_b32 %s, 31, v0" % v(vGA))
    a.e("v_lshlrev_b32 %s, 2, %s" % (v(vGA), v(vGA)))

def collect(fn):
    t = Asm(); t.marks = {}
    def vmop(s_, tag):
        t.e(s_); t.marks[len(t.l) - 1] = tag
    t.vmop = vmop
    fn(t)
    return [(x, t.marks.get(i)) for i, x in enumerate(t.l)]
def put(a, items):
    for x, tag in items:
        if tag: a.vmop(x, tag)
        else: a.e(x)

def setup_ones(a):
    a.e("s_mov_b32 s%d, 0x110000" % sA)
    a.e("s_mov_b32 s%d, 0x110000" % sB)
    a.e("v_mov_b32 v3, 0x3f803f80")
    a.e("v_cndmask_b32 %s, 0, v3, %s" % (v(vV1L), sp(sA)))
    for i in range(1, 4): a.e("v_mov_b32 %s, %s" % (v(vV1L + i), v(vV1L)))
    for i in range(16): a.e("v_mov_b32 %s, %s" % (v(vV + i), v(vV1L)))

def setup_attn(a):
    srd_words(a, [SWD, SWO, SOUT])
    a.e("s_lshl_b32 s%d, s%d, 2" % (sA, sG))
    a.e("s_add_u32 s%d, s%d, s%d" % (sA, sA, sLO))
    a.e("s_mul_i32 s%d, s%d, 112" % (sB, sA))
    a.e("s_lshl_b32 s%d, s%d, 3" % (sC, sM))
    a.e("s_add_u32 s%d, s%d, s%d" % (sB, sB, sC))
    a.e("s_lshl_b32 s%d, s%d, 2" % (sC, sHI))
    a.e("s_add_u32 s%d, s%d, s%d" % (sB, sB, sC))
    a.e("s_and_b32 s%d, s%d, 1" % (sC, sLO))
    a.e("s_lshl_b32 s%d, s%d, 1" % (sC, sC))
    a.e("s_add_u32 s%d, s%d, s%d" % (sB, sB, sC))
    a.e("s_lshl_b32 s%d, s%d, 10" % (sB, sB))
    a.e("s_add_u32 s%d, s%d, 0x%x" % (sHST, sB, WS_HF))
    a.e("s_mul_i32 s%d, s%d, %d" % (sC, sC, 112 * 1024))
    a.e("s_sub_u32 s%d, %d, s%d" % (sC, 112 * 1024, sC))
    a.e("s_add_u32 s%d, s%d, s%d" % (sHST2, sHST, sC))
    a.e("v_bfe_u32 v2, v0, 2, 2")
    a.e("v_lshrrev_b32 v3, 5, v0")
    a.e("v_lshl_add_u32 v2, v3, 2, v2")
    a.e("v_lshlrev_b32 v2, 6, v2")
    a.e("v_bfe_u32 v3, v0, 4, 1")
    a.e("v_lshl_add_u32 v2, v3, 5, v2")
    a.e("v_and_b32 v3, 3, v0")
    a.e("v_lshl_add_u32 v2, v3, 3, v2")
    a.e("s_lshr_b32 s%d, s%d, 1" % (sA, sW))
    a.e("s_lshl_b32 s%d, s%d, 11" % (sA, sA))
    a.e("v_add_u32 %s, s%d, v2" % (v(vWDA), sA))
    a.e("v_add_u32 %s, 0x%x, %s" % (v(vKVA), L_KV, v(vL16)))
    a.e("v_add_u32 %s, 0x%x, %s" % (v(vKVB), L_KV + 0x4000, v(vL16)))
    a.e("v_bfe_u32 v2, v0, 2, 3")
    a.e("v_lshlrev_b32 v2, 10, v2")
    a.e("v_lshrrev_b32 v3, 5, v0")
    a.e("v_lshl_add_u32 v2, v3, 6, v2")
    a.e("v_and_b32 v3, 3, v0")
    a.e("v_lshl_add_u32 v2, v3, 4, v2")
    a.e("s_lshl_b32 s%d, s%d, 7" % (sB, sCB))
    a.e("v_add_u32 %s, s%d, v2" % (v(vWDV), sB))
    a.e("v_min_u32 v2, 13, v0")
    a.e("v_lshlrev_b32 v2, 7, v2")
    a.e("s_lshr_b32 s%d, s%d, 1" % (sA, sT))
    a.e("s_lshl_b32 s%d, s%d, 11" % (sA, sA))
    a.e("s_add_u32 s%d, s%d, 0x%x" % (sA, sA, WS_HFLAG))
    a.e("v_add_u32 %s, s%d, v2" % (v(vFLA), sA))
    a.e("s_lshl_b32 s%d, s%d, 1" % (sA, sT))
    a.e("s_and_b32 s%d, s%d, 1" % (sB, sW))
    a.e("s_add_u32 s%d, s%d, s%d" % (sA, sA, sB))
    a.e("s_lshl_b32 s%d, s%d, 15" % (sB, sA))
    a.e("s_lshr_b32 s%d, s%d, 1" % (sKQ, sW))
    if Opt.kqx == 2:
        a.e("s_and_b32 s%d, s%d, 2" % (sKQ, sW))
        a.e("s_add_u32 s%d, s%d, s%d" % (sKQ, sKQ, sHI))
    if Opt.kqx == 1:
        a.e("s_lshl_b32 s%d, s%d, 1" % (sC, sCB))
        a.e("s_and_b32 s%d, s%d, 2" % (sC, sC))
        a.e("s_xor_b32 s%d, s%d, s%d" % (sKQ, sKQ, sC))
    a.e("s_lshl_b32 s%d, s%d, 13" % (sC, sKQ))
    a.e("s_add_u32 s%d, s%d, s%d" % (sB, sB, sC))
    a.e("s_add_u32 s%d, s%d, 0x%x" % (sOLD, sB, WS_OF))
    a.e("v_and_b32 v2, 31, v0")
    a.e("v_lshrrev_b32 v3, 5, v0")
    a.e("v_and_b32 v4, 7, v0")
    a.e("v_xor_b32 v3, v3, v4")
    a.e("v_lshlrev_b32 v3, 4, v3")
    a.e("v_lshl_add_u32 v3, v2, 8, v3")
    a.e("s_and_b32 s%d, s%d, 1" % (sB, sW))
    a.e("s_lshl_b32 s%d, s%d, 15" % (sB, sB))
    a.e("s_lshr_b32 s%d, s%d, 1" % (sC, sW))
    a.e("s_lshl_b32 s%d, s%d, 13" % (sD, sC))
    a.e("s_add_u32 s%d, s%d, s%d" % (sOUTO, sD, sB))
    a.e("s_add_u32 s%d, s%d, 0x%x" % (sD, sOUTO, L_RED))
    a.e("v_add_u32 %s, s%d, v3" % (v(vAW0), sD))
    a.e("v_lshrrev_b32 v2, 3, v0")
    a.e("v_lshlrev_b32 v3, 1, v4")
    a.e("v_xor_b32 v3, v3, v2")
    a.e("v_lshlrev_b32 v3, 4, v3")
    a.e("v_lshl_add_u32 v3, v2, 8, v3")
    a.e("s_lshl_b32 s%d, s%d, 11" % (sD, sC))
    a.e("s_add_u32 s%d, s%d, s%d" % (sD, sD, sB))
    a.e("s_add_u32 s%d, s%d, 0x%x" % (sD, sD, L_RED))
    a.e("v_add_u32 %s, s%d, v3" % (v(vAR0), sD))
    a.e("v_lshlrev_b32 v4, 4, v4")
    a.e("v_lshl_add_u32 %s, v2, 10, v4" % v(vOUTA))
    a.e("s_lshl_b32 s%d, s%d, 16" % (sC, sT))
    a.e("s_add_u32 s%d, s%d, s%d" % (sOUTO, sOUTO, sC))
    a.e("s_lshl_b32 s%d, s%d, 7" % (sC, sCB))
    a.e("s_add_u32 s%d, s%d, s%d" % (sOUTO, sOUTO, sC))
    a.e("v_mov_b32 %s, 0xdddd" % v(vIDX))
    a.e("v_lshrrev_b32 v2, 4, v0")
    a.e("v_lshl_add_u32 %s, v2, 8, %s" % (v(vHA), v(vL16)))
    for i in range(16): a.e("v_mov_b32 %s, 0" % v(vO + i))
    for i in range(32): a.e("v_mov_b32 %s, 0" % v(vD + i))
    c0 = -2.0 * math.sqrt(2.0 / math.pi) * math.log2(math.e)
    a.e("v_mov_b32 %s, 0x%x" % (v(vC0), f2u(c0)))
    a.e("v_mov_b32 %s, 0x%x" % (v(vC0 + 1), f2u(c0 * 0.044715)))

def kv_first_loads(a, quartet=False):
    it = []
    for o in (range(0, 16384, 4096) if quartet else range(0, 16384, 8192)):
        b = sWH if quartet else sWK
        it.append(("s_add_u32 m0, s%d, 0x%x\ns_add_u32 s%d, s%d, 0x%x\nbuffer_load_dwordx4 %s, %s, s%d offen sc1 lds"
                   % (b, L_KV + o, sA, b, o, v(vL16), srd(SKV), sA), "kv%d" % (o >> 13)))
    it.append(("s_mov_b32 s%d, 0x%x\nbuffer_load_dwordx4 %s, %s, %s, s%d offen sc1"
               % (sA, 63 * 2048, v(vK0, 4), v(vL16), srd(SKV), sA), "k0"))
    it.append(("s_mov_b64 exec, %s\nbuffer_load_dwordx4 %s, %s, %s, 0 offen offset:%d sc1\ns_mov_b64 exec, -1"
               % (sp(sVM), v(vV1L, 4), v(vL16), srd(SKV), 1024 + 256), "k0"))
    it.append(("s_lshl_b32 s%d, s%d, 2\ns_add_u32 s%d, s%d, s%d\ns_lshl_b32 s%d, s%d, 7\ns_add_u32 s%d, s%d, 0x%x\n"
               "buffer_load_dword %s, %s, %s, s%d offen sc1"
               % (sA, sG, sA, sA, sLO, sA, sA, sA, sA, WS_G, v(vGP), v(vGA), srd(SWS), sA), "k0"))
    it.append(("s_lshl_b32 s%d, s%d, 1\ns_and_b32 s%d, s%d, 1\ns_add_u32 s%d, s%d, s%d\ns_lshl_b32 s%d, s%d, 7\ns_add_u32 s%d, s%d, 0x%x\n"
               "buffer_load_dword %s, %s, %s, s%d offen sc1"
               % (sA, sT, sB, sW, sA, sA, sB, sA, sA, sA, sA, WS_G, v(vGC), v(vGA), srd(SWS), sA), "k0"))
    return it

def spin_counter(a, name, first_loaded, wave=0):
    a.e("s_cmp_lg_u32 s%d, %d" % (sW, wave))
    a.e("s_cbranch_scc1 L_%s_done" % name)
    a.e("s_mov_b32 s%d, 0x4000" % sB)
    if first_loaded: a.e("s_branch L_%s_chk" % name)
    a.lab("L_%s_re" % name)
    a.e("buffer_load_dword %s, off, %s, 0 sc1" % (v(vPOLL), srd(SDBG)))
    a.e("s_waitcnt vmcnt(0)")
    a.lab("L_%s_chk" % name)
    a.e("v_readfirstlane_b32 s%d, %s" % (sA, v(vPOLL)))
    a.e("s_cmp_ge_u32 s%d, 32" % sA)
    a.e("s_cbranch_scc1 L_%s_done" % name)
    a.e("s_sleep 4")
    a.e("s_sub_u32 s%d, s%d, 1" % (sB, sB))
    a.e("s_cmp_lg_u32 s%d, 0" % sB)
    a.e("s_cbranch_scc1 L_%s_re" % name)
    a.lab("L_%s_done" % name)

def phase1_F(a):
    SCHED = {1: ["01423567", "10253467", "23016457", "32104756"],
             2: ["02134657", "01324576", "10243567", "10235467"],
             3: ["01324657", "01243576", "12035467", "20134567"],
             5: ["01243567", "10325467", "23014657", "32104576"],
             6: ["01243567", "10325467", "01234657", "10324576"],
             7: ["01234567", "10235476", "01234567", "10235476"],
             8: ["01234567", "10243657", "01234567", "10243657"],
             4: ["02143657", "10325476", "02143657", "10325476"]}
    tabs = SCHED[Opt.sched] if Opt.sched else ["".join(str(c ^ (p & Opt.xmask)) for c in range(8)) for p in range(4)]
    for t_ in tabs: assert sorted(t_) == list("01234567")
    num = [int(t_[::-1], 16) for t_ in tabs]
    def table(a):
        a.e("s_add_u32 s%d, s%d, s%d" % (sA, sG, sHP))
        a.e("s_mov_b32 s%d, 0x%x" % (sXP, num[0]))
        a.e("s_mov_b32 s%d, 0x%x" % (sB, num[2]))
        a.e("s_bitcmp1_b32 s%d, 0" % sA)
        a.e("s_cselect_b32 s%d, 0x%x, s%d" % (sXP, num[1], sXP))
        a.e("s_cselect_b32 s%d, 0x%x, s%d" % (sB, num[3], sB))
        a.e("s_bitcmp1_b32 s%d, 1" % sA)
        a.e("s_cselect_b32 s%d, s%d, s%d" % (sXP, sB, sXP))
        if Opt.ghx:
            a.e("s_bitcmp1_b32 s%d, 3" % sG)
            a.e("s_cselect_b32 s%d, 0x44444444, 0" % sB)
            a.e("s_xor_b32 s%d, s%d, s%d" % (sXP, sXP, sB))
    fo, fw = {"0000": (0, 0), "0101": (0, 1), "0011": (1, 1), "0123": (0, 2)}["".join(t_[0] for t_ in tabs)]
    a.e("s_add_u32 s%d, s%d, s%d" % (sA, sG, sHP))
    a.e("s_bfe_u32 s%d, s%d, 0x%x" % (sCH, sA, fw << 16 | fo))
    if Opt.ghx: a.e("s_lshl2_add_u32 s%d, s%d, s%d" % (sCH, sD, sCH))
    a.e("s_and_b32 s%d, s%d, 0xc00" % (sWH, sWK))
    a.e("v_and_b32 %s, 0xff, v0" % v(vTID))

    def wvoff(a):
        a.e("v_lshrrev_b32 v2, 4, %s" % v(vTID))
        a.e("v_lshrrev_b32 v3, 5, %s" % v(vTID))
        a.e("v_bfi_b32 v3, 3, v2, v3")
        a.e("v_lshlrev_b32 v3, 1, v3")
        a.e("v_xor_b32 v3, v3, %s" % v(vTID))
        a.e("v_and_b32 v3, 15, v3")
        a.e("s_lshl_b32 s%d, s%d, 8" % (sA, sM))
        a.e("v_lshl_add_u32 v3, v3, 4, s%d" % sA)
        a.e("v_mul_u32_u24 v2, 3584, v2")
        a.e("v_add_u32 %s, v2, v3" % v(vDG))
    def qvoff(a):
        a.e("v_lshrrev_b32 v2, 4, %s" % v(vTID))
        a.e("v_and_b32 v2, 2, v2")
        a.e("v_xor_b32 v2, v2, %s" % v(vTID))
        a.e("v_and_b32 v2, 3, v2")
        a.e("s_lshl_b32 s%d, s%d, 6" % (sA, sHP))
        a.e("v_lshl_add_u32 v2, v2, 4, s%d" % sA)
        a.e("v_lshrrev_b32 v3, 2, %s" % v(vTID))
        a.e("v_lshl_add_u32 %s, v3, 10, v2" % v(vDQ))
    def stouch(a):
        if (Opt.diag or Opt.probe >= 0) and not Opt.klate: a.e("s_load_dwordx2 %s, s[0:1], 32" % sp(SWO))
        if not Opt.stch: return
        a.e("s_lshr_b32 s%d, s%d, 2" % (sA, sW))
        if Opt.ghx: a.e("s_lshl2_add_u32 s%d, s%d, s%d" % (sA, sD, sA))
        a.e("s_lshl_b32 s%d, s%d, 6" % (sA, sA))
        a.e("s_and_b32 s%d, s%d, 7" % (sB, sG))
        a.e("s_add_u32 s%d, s%d, s%d" % (sA, sA, sB))
        a.e("s_mul_i32 s%d, s%d, 28" % (sA, sA))
        a.e("s_bfe_u32 s%d, s%d, 0x10001" % (sB, sW))
        a.e("s_lshl1_add_u32 s%d, s%d, s%d" % (sB, sM, sB))
        a.e("s_add_u32 s%d, s%d, s%d" % (sA, sA, sB))
        a.e("s_lshl_b32 s%d, s%d, 7" % (sA, sA))
        a.e("s_bitcmp1_b32 s%d, 0" % sW)
        a.e("s_cselect_b64 %s, %s, %s" % (sp(SWKV), sp(SWU), sp(SWG)))
        a.e("s_add_u32 s%d, s%d, s%d" % (SWKV, SWKV, sA))
        a.e("s_addc_u32 s%d, s%d, 0" % (SWKV + 1, SWKV + 1))
        for i in range(Opt.stch):
            a.e("s_load_dwordx2 %s, %s, 0x%x" % (sp(sTMPP), sp(SWKV), 128 * 3584 + i * 8 * 3584 + 60))
    def wsrd(a):
        srd_words(a, [SWG])
        a.e("s_mov_b64 %s, %s" % (sp(SWU + 2), sp(SWG + 2)))

    if Opt.hrot:
        ORDER = [("q", 0)] + [(t_, 2 * h_ + j) for h_ in range(2) for t_, j in (("x", 0), ("x", 1), ("g", 0), ("u", 0), ("g", 1), ("u", 1))]
    else:
        ORDER = [("q", 0)] + [("x", j) for j in range(4)] + [(t_, j) for j in range(4) for t_ in "gu"]
    def block(items):
        out = []; lastc = None; lastw = None
        for c, kind, j in items:
            s = c % 3; pre = []
            if c != lastc:
                if c: pre.append("s_bfe_u32 s%d, s%d, 0x%x" % (sCH, sXP, 0x30000 + 4 * c))
                lastc = c; lastw = None
            fam = "w" if kind in "gu" else kind
            rot = Opt.hrot and fam != "q"
            if lastw is None or lastw[0] != fam or (rot and lastw[1] >> 1 != j >> 1):
                pre.append({"q": "s_lshl_b32 s%d, s%d, 16" % (sOFFW, sCH), "x": "s_lshl_b32 s%d, s%d, 7" % (sOFFW, sCH),
                            "w": "s_mul_i32 s%d, s%d, %d" % (sOFFW, sCH, 64 * 3584)}[fam])
                if rot: pre.append("s_%s_u32 s%d, s%d, s%d" % ("sub" if j >> 1 else "add", sOFFW, sOFFW, sRX if fam == "x" else sRW))
                lastw = (fam, 0)
            if lastw[1] != j:
                pre.append("s_add_u32 s%d, s%d, 0x%x" % (sOFFW, sOFFW, (j - lastw[1]) * (0x8000 if fam == "x" else 16 * 3584)))
                lastw = (fam, j)
            m0c, vo, rs = {"q": (L_WQ + s * 4096, vDQ, SWQ), "x": (L_X + s * 16384 + j * 4096, vDX, SX),
                           "g": (L_G + s * 16384 + j * 4096, vDG, SWG), "u": (L_U + s * 16384 + j * 4096, vDG, SWU)}[kind]
            nt = " nt" if Opt.ntx & (1 if rs == SX else 2) else ""
            out.append(("s_add_u32 m0, s%d, 0x%x\n%s\nbuffer_load_dwordx4 %s, %s, s%d offen%s lds"
                        % ((sM0B + (j >> 1)) if rot else sWH, m0c, "\n".join(pre) or "s_nop 0", v(vo), srd(rs), sOFFW, nt), "c%d" % c))
        return out
    def part(c, role): return [(c, k_, j) for k_, j in ORDER if (k_ in "gu") == (role == "A")]

    def rdsetup(a):
        setup_rd(a)
        a.e("v_lshl_add_u32 %s, v3, 3, v2" % v(vWA))
        a.e("v_lshlrev_b32 %s, 8, %s" % (v(vWA), v(vWA)))
        a.e("v_lshl_add_u32 %s, v4, 3, %s" % (v(vWA), v(vWA)))
        a.e("v_and_b32 v5, 1, v3")
        a.e("v_lshl_add_u32 v2, v5, 2, v2")
        a.e("s_lshl_b32 s%d, s%d, 2" % (sA, sHI))
        a.e("s_and_b32 s%d, s%d, 1" % (sB, sLO))
        a.e("s_lshl_b32 s%d, s%d, 1" % (sB, sB))
        a.e("s_add_u32 s%d, s%d, s%d" % (sA, sA, sB))
        a.e("v_xor_b32 v2, s%d, v2" % sA)
        a.e("v_lshl_add_u32 %s, v2, 5, %s" % (v(vWA), v(vWA)))
        a.e("v_xor_b32 %s, 32, %s" % (v(vWA + 1), v(vWA)))
        a.e("v_add_u32 %s, 0x%x, %s" % (v(vWA + 2), L_U - L_G, v(vWA)))
        a.e("v_add_u32 %s, 0x%x, %s" % (v(vWA + 3), L_U - L_G, v(vWA + 1)))
        a.e("s_lshl_b32 s%d, s%d, 12" % (sA, sLO))
        a.e("s_add_u32 s%d, s%d, 0x%x" % (sA, sA, L_X))
        a.e("v_add_u32 %s, s%d, %s" % (v(vXA), sA, v(vXA)))
        a.e("v_xor_b32 %s, 0x1000, %s" % (v(vXA + 1), v(vXA)))
        a.e("v_xor_b32 %s, 64, %s" % (v(vXA + 2), v(vXA)))
        a.e("v_xor_b32 %s, 64, %s" % (v(vXA + 3), v(vXA + 1)))
        a.e("v_add_u32 %s, 0x%x, %s" % (v(vQA), L_WQ, v(vQA)))

    a.e("s_cmp_ge_u32 s%d, 4" % sW)
    a.e("s_cbranch_scc1 L_setB")
    late = collect(setup_oclr) + collect(setup_ones) + [("; later", None)] + collect(setup_attn)
    words = collect(lambda t: srd_words(t, [SWS, SKV, SDBG, SWD, SWO, SOUT]))
    late = [x for x in late if x not in words]
    oclr = [x for x in late if x[1] == "oclr"]
    if Opt.olate: late = [x for x in late if x[1] != "oclr"]
    else: oclr = []
    words += [("v_mov_b32 %s, 0" % v(r_), None) for r_ in (vGA, vWDV, vFLA, vHA, vOUTA)]
    st = collect(rdsetup) + words + late[:Opt.fillpre]
    cut = late.index(("; later", None)) if Opt.bidle else len(late)
    fills = {"A": late[Opt.fillpre:], "B": late[Opt.fillpre:max(cut, Opt.fillpre)]}
    idleB = late[max(cut, Opt.fillpre):]
    vms = {}
    wsrd(a); wvoff(a)
    a.e("s_waitcnt lgkmcnt(0)")
    a.stamp(2)
    if Opt.spos == 0: stouch(a)
    put(a, block(part(0, "A")))
    a.e("s_branch L_setA")
    vms["A"] = a.vm; a.vm = []
    a.lab("L_setB")
    srd_words(a, [SX]); xvoff(a, vTID)
    a.e("s_waitcnt lgkmcnt(0)")
    a.stamp(2)
    if Opt.spos == 0: stouch(a)
    put(a, block(part(0, "B")[1:]))
    srd_words(a, [SWQ]); qvoff(a)
    put(a, block(part(0, "B")[:1]))
    vms["B"] = a.vm
    for role in "BA":
        a.vm = vms[role]
        if role == "A": a.lab("L_setA")
        if Opt.spos == 1: stouch(a)
        table(a)
        setup_ids(a)
        if role == "A": srd_words(a, [SX, SWQ])
        else: wsrd(a)
        def touches():
            tm = sum(0xff << (8 * i) for i in range(4) if Opt.tch >> i & 1)
            setex = "s_bitcmp1_b32 s%d, 3\ns_cselect_b32 exec_lo, 0, 0x%x\ns_cselect_b32 exec_hi, 0x%x, 0" % (sG, tm, tm) if Opt.ghx \
                    else "s_mov_b32 exec_lo, 0x%x\ns_mov_b32 exec_hi, 0" % tm
            if Opt.tlb & 2 and role == "B":
                a.e("s_and_b32 s%d, s%d, 7" % (sA, sG))
                a.e("v_lshl_add_u32 v2, v0, 3, s%d" % sA)
                a.e("v_mul_u32_u24 v3, 3584, v2")
                a.e("s_and_b32 s%d, s%d, 1" % (sB, sW))
                a.e("s_lshl1_add_u32 s%d, s%d, s%d" % (sA, sM, sB))
                a.e("s_lshl_b32 s%d, s%d, 7" % (sA, sA))
                a.e(setex)
                a.e("s_cmp_ge_u32 s%d, 6" % sW)
                a.e("s_cbranch_scc1 L_tlbu")
                a.e("buffer_load_dword %s, v3, %s, s%d offen" % (v(vPOLL), srd(SWG), sA))
                a.e("s_branch L_tlbe")
                a.lab("L_tlbu")
                a.e("buffer_load_dword %s, v3, %s, s%d offen" % (v(vPOLL), srd(SWU), sA))
                a.lab("L_tlbe")
                a.e("s_mov_b64 exec, -1")
                a.vm.append("tlb")
            if Opt.tlb & 12 and role == "A":
                a.e("s_cmp_lg_u32 s%d, 0" % sW)
                a.e("s_cbranch_scc1 L_tlbx")
                a.e("s_and_b32 s%d, s%d, 7" % (sA, sG))
                a.e("v_lshl_add_u32 v2, v0, 3, s%d" % sA)
                a.e("v_lshlrev_b32 v3, 10, v2")
                a.e("s_lshl_b32 s%d, s%d, 6" % (sA, sHP))
                a.e(setex if Opt.tlb & 4 else "s_mov_b64 exec, 1")
                a.e("buffer_load_dword %s, v3, %s, s%d offen" % (v(vPOLL), srd(SWQ), sA))
                if not Opt.tlb & 8:
                    a.e("s_mov_b64 exec, -1")
                    a.lab("L_tlbx")
                    return
                a.e("s_branch L_tlby")
                a.lab("L_tlbx")
                a.e("s_bitcmp1_b32 s2, 0")
                a.e("s_cselect_b32 s%d, %d, %d" % (sB, Opt.xodd, Opt.xeven))
                a.e("s_and_b32 s%d, s%d, 3" % (sA, sHP))
                a.e("s_mul_i32 s%d, s%d, s%d" % (sA, sA, sB))
                a.e("s_lshl_b32 s%d, s%d, 7" % (sC, sG))
                a.e("s_add_u32 s%d, s%d, s%d" % (sA, sA, sC))
                a.e("v_add_lshl_u32 v3, v0, s%d, 10" % sA)
                a.e("s_lshr_b32 s%d, s%d, 3" % (sA, sG))
                a.e("s_lshl2_add_u32 s%d, s%d, s%d" % (sA, sA, sW) if Opt.ghx else "s_mov_b32 s%d, s%d" % (sA, sW))
                a.e("s_lshl_b32 s%d, s%d, 7" % (sA, sA))
                a.e("s_bitcmp1_b32 %d, s%d" % (Opt.tch if Opt.tlb & 8 else 0, sW))
                a.e("s_cselect_b32 s%d, s%d, 1" % (sB, sB))
                a.e("s_bfm_b64 exec, s%d, 0" % sB)
                a.e("buffer_load_dword %s, v3, %s, s%d offen" % (v(vPOLL), srd(SX), sA))
                a.lab("L_tlby")
                a.e("s_mov_b64 exec, -1")
                a.vm.append("tlb")
        if Opt.tpos == 0: touches()
        if Opt.startbar: a.e("s_barrier")
        npre = min(Opt.npre, 8) if role == "A" else 5
        pn = block(part(1, role)[:npre])
        rest = st + (collect(qvoff) + collect(lambda t: xvoff(t, vTID)) if role == "A" else collect(wvoff))
        gap = len(rest) // (npre + Opt.pregap) + 1
        if Opt.tpos == 2:
            put(a, pn); touches(); npre = 0
        if Opt.tpos == 3 and role == "B":
            put(a, pn); touches(); npre = 0
        for i in range(npre):
            put(a, pn[:1]); pn = pn[1:]
            put(a, rest[:gap]); rest = rest[gap:]
        put(a, rest)
        if Opt.tpos == 1 or (Opt.tpos == 3 and role == "A"): touches()
        a.e("s_mov_b64 vcc, %d" % (-1 if role == "A" else 0))
        if role == "A":
            a.waitvm("c0", lgkm=True)
        else:
            a.e("s_setprio 1")
            a.waitvm("c0", lgkm=True)
            a.e("s_branch L_k0")
        vms[role] = a.vm
    stream = part(1, "A")[min(Opt.npre, 8):] + [(c, k_, j) for c in range(2, 8) for k_, j in ORDER]
    qa = [int(x, 16) for x in Opt.qa]; qb = [int(x, 16) for x in Opt.qb]
    def take(n, cmax):
        m = 0
        while m < n and m < len(stream) and stream[m][0] <= cmax: m += 1
        r_ = stream[:m]; del stream[:m]
        return block(r_)
    a.lab("L_k0")
    a.vm = vms["A"]
    ool = Asm()
    def dmablock(name, role, items, wait=None):
        a.e("s_cbranch_vcc%s L_%s" % ("nz" if role == "A" else "z", name))
        if wait: a.waitvm(wait, lgkm=True)
        a.lab("L_%s_r" % name)
        ool.lab("L_%s" % name)
        ool.vm = a.vm if role == "A" else vms["B"]
        for it_ in items:
            put(ool, [it_])
            fp = Opt.fillper if role == "A" or not Opt.bidle else 2
            put(ool, fills[role][:fp]); fills[role] = fills[role][fp:]
        if name in ("d7", "e7"): put(ool, fills[role]); fills[role] = []
        if wait: ool.waitvm(wait, lgkm=True)
        if role == "B": vms["B"] = ool.vm
        ool.e("s_branch L_%s_r" % name)
    a.ool = ool.l

    def fr(k):
        b = vF1 + 36 * (k % 2)
        return dict(x=b, w=b + 16, q=b + 32)
    def reads(k):
        c, s = divmod(k, 2); f = fr(k); sl = c % 3
        wo = sl * 16384 + s * 8192
        W = lambda i: [rdtr(f['w'] + 4 * i, vWA + i, wo), rdtr(f['w'] + 4 * i + 2, vWA + i, wo + 1024)]
        X = [rd128(f['x'] + 4 * b, vXA + 2 * s + (b >> 1), sl * 16384 + (b & 1) * 2048) for b in range(4)]
        return W(0) + X + W(2) + W(1) + W(3) + [rdtr(f['q'], vQA, sl * 4096 + s * 2048), rdtr(f['q'] + 2, vQA, sl * 4096 + s * 2048 + 256)]
    a.e("s_barrier")
    a.stamp(3)
    if Opt.kdiag or Opt.probe >= 18:
        kstamp(a, 2)
        a.e("s_waitcnt lgkmcnt(0)")
    if Opt.kal: a.l.append(".p2align 3")
    if Opt.kal == 2: a.e("s_nop 0")
    al = (lambda: a.l.append(".p2align 3")) if Opt.kal == 3 else (lambda: None)
    for r in reads(0): a.e(r)
    if qa[0]: dmablock("d2", "A", take(qa[0], 2))
    for k in range(16):
        c, s = divmod(k, 2); f = fr(k)
        z = lambda x: None if k == 0 else x
        mf = []
        for n_, i in enumerate((0, 2, 1, 3)):
            for b in (range(4) if n_ % 2 == 0 else range(3, -1, -1)):
                d = vACC + 16 * b + 4 * i
                mf.append(mfma16(d, f['w'] + 4 * i, f['x'] + 4 * b, z(d)))
        for b in range(2): mf.append(mfma16(vAQ + 4 * b, f['q'], f['x'] + 4 * b, z(vAQ + 4 * b)))
        rds = reads(k + 1) if k < 15 else []
        if s == 0:
            a.e("s_waitcnt lgkmcnt(6)"); al()
            for i, m in enumerate(mf):
                if i == 8: a.e("s_waitcnt lgkmcnt(%d)" % (8 - Opt.kw0)); al()
                a.e(m)
                if Opt.kw0 and i == 7: continue
                ii = i - (1 if Opt.kw0 and i > 7 else 0)
                if ii < len(rds): a.e(rds[ii])
            continue
        a.e("s_waitcnt lgkmcnt(8)")
        for m in mf[:Opt.kb]: a.e(m)
        if c <= 5:
            dmablock("e%d" % (c + 2), "B", take(qb[c], c + 2), "c%d" % (c + 1))
            assert not any(x[0] <= c + 1 for x in stream)
        if c == 7:
            a.e("s_waitcnt lgkmcnt(0)")
        elif c == 6:
            a.e("s_waitcnt lgkmcnt(0)")
            a.e("s_cbranch_vccz L_st7")
            a.e("s_setprio 1")
            a.e("s_waitcnt vmcnt(0)")
            a.e("s_barrier")
            a.lab("L_st7")
        else:
            a.e("s_barrier")
        if c < 7 and ((Opt.kdiag == 1 and Opt.diag) or Opt.probe == 21 + c):
            kstamp(a, 3 + c)
            a.e("s_waitcnt lgkmcnt(0)")
        if c + 3 < 8:
            items = take(qa[c + 1], c + 3)
            dmablock("d%d" % (c + 3), "A", items)
        al()
        for i, m in enumerate(mf[Opt.kb:]):
            a.e(m)
            if i < len(rds): a.e(rds[i])
        if k == 11: assert not stream and not fills["A"] and not fills["B"]
        if k == 11:
            a.e("s_cbranch_vccnz L_st6")
            a.e("s_setprio 0")
            nm = next((i for i, x in enumerate(idleB) if "0xdddd" in x[0]), 0)
            a.e("s_cmp_lg_u32 s%d, 4" % sW)
            a.e("s_cbranch_scc1 L_nopoll")
            a.e("buffer_load_dword %s, off, %s, 0 sc1" % (v(vPOLL), srd(SDBG)))
            a.lab("L_nopoll")
            put(a, idleB[:nm]); idleB = idleB[nm:]
            a.wait0()
            spin_counter(a, "kvf", True, 4)
            a.e("s_barrier")
            put(a, kv_first_loads(a, True) + oclr + idleB)
            a.lab("L_st6")
    a.kvA = (kv_first_loads(a) + oclr)[2:]
    a.stamp(4)

def phase1_L(a):
    a.lab("L_light")
    a.vm = []
    if Opt.oddl: a.e("s_add_u32 s%d, s%d, 14" % (sM, sB))
    if Opt.klate:
        ptr_loads(a, ((SGATE, 72), (SWKV, 16), (SWV, 24)))
    else:
        a.e("s_waitcnt lgkmcnt(0)")
        ptr_loads(a, ((SWKV, 16), (SWV, 24), (SGATE, 72), (SWO, 32)))
    srd_words(a, [SWKV, SWV, SGATE, SX])
    xvoff(a, 0)
    a.e("v_and_b32 v2, 63, v0")
    a.e("v_lshlrev_b32 %s, 4, v2" % v(vL16))
    a.e("s_sub_u32 s%d, s%d, 14" % (sCNT, sM))
    a.e("s_lshl_b32 s%d, s%d, 16" % (sOLD, sCNT))
    a.e("s_lshl_b32 s%d, s%d, 13" % (sHST, sCNT))
    a.e("s_add_u32 s%d, s%d, s%d" % (sWH, sHST, sWK))
    a.e("s_xor_b32 s%d, s%d, 0x2000" % (sHST, sHST))
    a.e("s_add_u32 s%d, s%d, 0x2000" % (sA, sWK))
    a.e("s_waitcnt lgkmcnt(0)")
    a.stamp(2)
    def xdma(c, base, so):
        a.vmop("s_add_u32 m0, s%d, 0x%x\ns_nop 0\nbuffer_load_dwordx4 %s, %s, s%d offen offset:%d lds"
               % (base, LL_X + c * 16384 - c * 128, v(vDX), srd(SX), so, c * 128), "c%d" % c)
    def wdma(u):
        for t, rs in enumerate((SWKV, SWV)):
            a.vmop("s_add_u32 m0, s%d, 0x%x\ns_nop 0\nbuffer_load_dwordx4 %s, %s, s%d offen lds"
                   % (sWK, LL_W + t * 16384 + u * 8192, v(vL16), srd(rs), sA if u else sWK), "w")
    wdma(0)
    a.vmop("s_mov_b32 m0, s%d\ns_nop 0\nbuffer_load_dwordx4 %s, %s, 0 offen lds" % (sHST, v(vL16), srd(SGATE)), "w")
    for c in range(8):
        if c == 4: wdma(1)
        xdma(c, sWH, sOLD)
        if (c == 1 and Opt.lthr & 1) or (c == 3 and Opt.lthr & 2): a.e("s_waitcnt vmcnt(0)")
        if c in (1, 3, 5): a.e("s_barrier")
    setup_ids(a)
    srd_words(a, [SWQ])
    setup_rd(a)
    a.e("v_lshrrev_b32 v3, 5, v0")
    a.e("v_bfrev_b32 v5, v4")
    a.e("v_lshrrev_b32 v5, 30, v5")
    a.e("s_cmp_ge_u32 s%d, 2" % sLO)
    a.e("s_cselect_b64 vcc, -1, 0")
    a.e("v_cndmask_b32 v4, v5, v4, vcc")
    a.e("v_lshl_add_u32 %s, v3, 3, v2" % v(vWA))
    a.e("v_lshlrev_b32 %s, 5, %s" % (v(vWA), v(vWA)))
    a.e("v_lshl_add_u32 %s, v4, 3, %s" % (v(vWA), v(vWA)))
    a.e("s_lshr_b32 s%d, s%d, 1" % (sA, sLO))
    a.e("s_lshl_b32 s%d, s%d, 14" % (sA, sA))
    a.e("s_add_u32 s%d, s%d, 0x%x" % (sA, sA, LL_W))
    a.e("v_add_u32 %s, s%d, %s" % (v(vWA), sA, v(vWA)))
    a.e("v_lshl_add_u32 %s, v3, 4, s%d" % (v(vWA + 1), sHST))
    a.e("s_and_b32 s%d, s%d, 1" % (sA, sLO))
    a.e("s_lshl_b32 s%d, s%d, 1" % (sB, sCNT))
    a.e("s_add_u32 s%d, s%d, s%d" % (sCNT, sA, sB))
    a.e("s_lshl_b32 s%d, s%d, 12" % (sA, sCNT))
    a.e("v_and_b32 v2, 31, v0")
    a.e("v_lshrrev_b32 v4, 1, v0")
    a.e("v_lshlrev_b32 v5, 1, v0")
    a.e("v_bfi_b32 v4, 4, v4, v5")
    a.e("v_bfi_b32 v4, 12, v4, v2")
    a.e("v_cndmask_b32 v2, v2, v4, vcc")
    a.e("v_bfe_u32 v4, v2, 1, 3")
    a.e("v_xor_b32 v4, v4, v3")
    a.e("v_lshlrev_b32 v4, 4, v4")
    a.e("v_lshl_add_u32 v4, v2, 7, v4")
    a.e("v_add_u32 %s, s%d, v4" % (v(vLX), sA))
    for s in range(1, 4): a.e("v_xor_b32 %s, %d, %s" % (v(vLX + s), 32 * s, v(vLX)))
    for s in range(4): a.e("v_add_u32 %s, 0x10000, %s" % (v(vLX + 4 + s), v(vLX + s)))
    a.e("s_waitcnt lgkmcnt(0)")
    setup_oclr(a)
    vm0 = list(a.vm)
    a.e("s_cmp_lg_u32 s%d, 0" % sHI)
    a.e("s_cbranch_scc1 L_lB")
    a.e("s_not_b64 %s, %s" % (sp(sTMPP), sp(sVM)))
    a.e("s_cmp_ge_u32 s%d, 2" % sLO)
    a.e("s_cbranch_scc1 L_lV")
    def chain(kind):
        a.vm = list(vm0)
        def fr(k):
            b = vFR + 8 * (k % 4)
            return b, b + 4
        def reads(k):
            c, s = divmod(k, 4); x, w = fr(k)
            r = [rd128(x, vLX + s + 4 * (c >> 2), (c & 3) * 16384), rdtr(w, vWA, k * 512), rdtr(w + 2, vWA, k * 512 + 128)]
            if kind == "K":
                r += ["s_mov_b64 exec, %s" % sp(sTMPP), rd128(w, vWA + 1, k * 32), "s_mov_b64 exec, -1"]
            return r
        for q in range(4):
            a.waitvm("c%d" % (2 * q + 1))
            a.e("s_barrier")
            nr = 4 if kind == "K" else 3
            for k in range(8 * q, 8 * q + 2):
                for r in reads(k): a.e(r)
            for k in range(8 * q, 8 * q + 8):
                if k + 2 < 8 * q + 8:
                    for r in reads(k + 2): a.e(r)
                left = min(2, 8 * q + 7 - k)
                a.e("s_waitcnt lgkmcnt(%d)" % (left * nr))
                x, w = fr(k)
                cc = None if k == 0 else vACC
                a.e(mfma(vACC, w, x, cc) if kind == "K" else mfma(vACC, x, w, cc))
        a.e("s_lshl_b32 s%d, s%d, 2" % (sA, sG))
        a.e("s_add_u32 s%d, s%d, s%d" % (sA, sA, sCNT))
        a.e("s_nop 12")
        if kind == "K":
            a.e("s_mov_b32 s%d, 0x%x" % (sC, f2u(0.25 * math.log2(math.e))))
            for i in range(8): a.e("v_mul_f32 %s, s%d, %s" % (v(vACC + i), sC, v(vACC + i)))
            a.e("v_mul_f32 %s, 0x%x, %s" % (v(vACC + 8), f2u(-math.log2(math.e)), v(vACC + 8)))
            a.e("v_exp_f32 %s, %s" % (v(vACC + 8), v(vACC + 8)))
            for i in range(4): a.e("v_cvt_pk_bf16_f32 %s, %s, %s" % (v(vFR + i), v(vACC + 2 * i), v(vACC + 2 * i + 1)))
            a.e("v_add_f32 %s, 1.0, %s" % (v(vACC + 8), v(vACC + 8)))
            a.e("v_rcp_f32 %s, %s" % (v(vACC + 8), v(vACC + 8)))
            a.e("s_add_u32 s%d, s%d, 63" % (sB, sA))
            a.e("s_and_b32 s%d, s%d, 63" % (sB, sB))
            a.e("s_lshl_b32 s%d, s%d, 11" % (sB, sB))
            a.e("buffer_store_dwordx4 %s, %s, %s, s%d offen sc1" % (v(vFR, 4), v(vL16), srd(SKV), sB))
            a.e("s_lshl_b32 s%d, s%d, 7" % (sB, sA))
            a.e("s_add_u32 s%d, s%d, 0x%x" % (sB, sB, WS_G))
            a.e("s_mov_b32 exec_hi, 0")
            a.e("buffer_store_dword %s, %s, %s, s%d offen sc1" % (v(vACC + 8), v(vGA), srd(SWS), sB))
            a.e("s_mov_b64 exec, -1")
        else:
            for i in range(8): a.e("v_cvt_pk_bf16_f32 %s, %s, %s" % (v(vFR + i), v(vACC + 2 * i), v(vACC + 2 * i + 1)))
            a.e("v_bfe_u32 v2, v0, 4, 1")
            a.e("v_add_u32 v2, s%d, v2" % sA)
            a.e("v_and_b32 v2, 63, v2")
            a.e("v_lshl_add_u32 v2, v2, 11, %s" % v(vL16))
            for i in range(4): a.e("v_cndmask_b32 %s, %s, %s, %s" % (v(vFR + i), v(vFR + 4 + i), v(vFR + i), sp(sVM)))
            a.e("buffer_store_dwordx4 %s, v2, %s, 0 offen offset:1024 sc1" % (v(vFR, 4), srd(SKV)))
        a.e("s_branch L_lJ")
    chain("K")
    a.lab("L_lV")
    chain("V")
    a.lab("L_lB")
    a.vm = list(vm0)
    a.e("s_cmp_lg_u32 s%d, 14" % sM)
    a.e("s_cbranch_scc1 L_nozf")
    a.e("s_cmp_lg_u32 s%d, 4" % sW)
    a.e("s_cbranch_scc1 L_nozf")
    a.e("v_lshlrev_b32 v2, 7, v0")
    a.e("s_lshl_b32 s%d, s%d, 11" % (sA, sG))
    a.e("s_add_u32 s%d, s%d, 0x%x" % (sA, sA, WS_HFLAG))
    a.e("s_mov_b64 exec, 0xffff")
    a.e("buffer_store_dword %s, v2, %s, s%d offen sc1" % (v(vZERO), srd(SWS), sA))
    a.e("s_mov_b64 exec, -1")
    a.lab("L_nozf")
    for q in range(4):
        a.waitvm("c%d" % (2 * q + 1))
        a.e("s_barrier")
    a.lab("L_lJ")
    a.e("v_lshrrev_b32 v3, 2, v0")
    a.e("v_lshlrev_b32 v3, 10, v3")
    a.e("v_lshrrev_b32 v4, 5, v0")
    a.e("v_lshlrev_b32 v4, 1, v4")
    a.e("v_xor_b32 v4, v4, v0")
    a.e("v_and_b32 v4, 3, v4")
    a.e("v_lshl_add_u32 v3, v4, 4, v3")
    a.e("s_lshl_b32 s%d, s%d, 14" % (sA, sW))
    a.e("s_lshl_b32 s%d, s%d, 6" % (sB, sHP))
    a.e("s_add_u32 s%d, s%d, s%d" % (sA, sA, sB))
    a.e("v_add_u32 %s, s%d, v3" % (v(vDQ), sA))
    a.e("s_xor_b32 s%d, s%d, 0x2000" % (sWH, sWH))
    a.e("s_xor_b32 s%d, s%d, 0x10000" % (sOLD, sOLD))
    a.wait0(lgkm=True)
    a.e("s_barrier")
    a.e("s_cmp_lg_u32 s%d, 0" % sW)
    a.e("s_cbranch_scc1 L_noat")
    a.e("s_mov_b64 exec, 1")
    a.e("buffer_atomic_add %s, off, %s, 0 sc1" % (v(vONE), srd(SDBG)))
    a.e("s_mov_b64 exec, -1")
    a.lab("L_noat")
    a.stamp(3)
    for c in range(8): xdma(c, sWH, sOLD)
    for p in range(4):
        a.e("s_add_u32 m0, s%d, 0x%x" % (sWK, LL_WQ + p * 8192))
        a.e("s_mov_b32 s%d, 0x%x" % (sA, p * 128 * 1024))
        a.e("buffer_load_dwordx4 %s, %s, s%d offen lds" % (v(vDQ), srd(SWQ), sA))
    setup_ones(a)
    setup_attn(a)
    if Opt.touch & 2:
        a.e("s_lshl_b32 s%d, s%d, 1" % (sA, sG))
        a.e("s_add_u32 s%d, s%d, s%d" % (sA, sA, sM))
        a.e("s_sub_u32 s%d, s%d, 14" % (sA, sA))
        a.e("s_lshl_b32 s%d, s%d, 3" % (sA, sA))
        a.e("s_add_u32 s%d, s%d, s%d" % (sA, sA, sW))
        a.e("v_lshlrev_b32 v2, 15, v0")
        a.e("s_lshl_b32 s%d, s%d, 7" % (sA, sA))
        a.e("buffer_load_dword %s, v2, %s, s%d offen" % (v(vPOLL), srd(SWO), sA))
        a.e("buffer_load_dword %s, v2, %s, s%d offen" % (v(vPOLL), srd(SWD), sA))
    a.e("s_lshl_b32 s%d, s%d, 12" % (sA, sLO))
    a.e("v_add_u32 %s, s%d, %s" % (v(vXA), sA, v(vXA)))
    a.e("v_xor_b32 %s, 64, %s" % (v(vXA + 1), v(vXA)))
    a.e("v_add_u32 %s, 0x10000, %s" % (v(vXA + 2), v(vXA)))
    a.e("v_add_u32 %s, 0x10000, %s" % (v(vXA + 3), v(vXA + 1)))
    a.e("v_add_u32 %s, 0x%x, %s" % (v(vQA), LL_WQ, v(vQA)))
    a.e("s_waitcnt vmcnt(%d)" % (2 if Opt.touch & 2 else 0))
    a.e("s_barrier")
    def fr(k): return vFR + 12 * (k % 3)
    def reads(k):
        c, s = divmod(k, 2); f = fr(k)
        return [rd128(f + 4 * b, vXA + s + 2 * (c >> 2), (c & 3) * 16384 + b * 2048) for b in range(2)] + \
               [rdtr(f + 8, vQA, k * 2048), rdtr(f + 10, vQA, k * 2048 + 256)]
    for k in range(2):
        for r in reads(k): a.e(r)
    for k in range(16):
        a.e("s_waitcnt lgkmcnt(%d)" % (4 * min(1, 15 - k)))
        for b in range(2): a.e(mfma16(vAQ + 4 * b, fr(k) + 8, fr(k) + 4 * b, None if k == 0 else vAQ + 4 * b))
        if k + 2 < 16:
            for r in reads(k + 2): a.e(r)
    spin_counter(a, "kvl", False)
    a.e("s_barrier")
    for s, t in kv_first_loads(a): a.e(s)
    a.wait0()
    a.stamp(4)
    a.e("s_branch L_join")

def gelu_tile(a, ti, scalar=False):
    acc = vACC + 16 * ti
    t = vFR
    o = vFR + 8 + 4 * ti
    pk = lambda r: v(r, 2)
    if scalar:
        for i in range(8): a.e("v_mul_f32 %s, %s, %s" % (v(t + i), v(acc + i), v(acc + i)))
        for i in range(8): a.e("v_fma_f32 %s, %s, %s, %s" % (v(t + i), v(t + i), v(vC0 + 1), v(vC0)))
        for i in range(8): a.e("v_mul_f32 %s, %s, %s" % (v(t + i), v(t + i), v(acc + i)))
        for i in range(8): a.e("v_exp_f32 %s, %s" % (v(t + i), v(t + i)))
        for i in range(8): a.e("v_add_f32 %s, 1.0, %s" % (v(t + i), v(t + i)))
        for i in range(8): a.e("v_rcp_f32 %s, %s" % (v(t + i), v(t + i)))
        for i in range(8): a.e("v_mul_f32 %s, %s, %s" % (v(acc + i), v(acc + i), v(acc + 8 + i)))
        for i in range(8): a.e("v_mul_f32 %s, %s, %s" % (v(acc + i), v(acc + i), v(t + i)))
    R4, R8 = (range(0), range(0)) if scalar else (range(4), range(8))
    for i in R4: a.e("v_pk_mul_f32 %s, %s, %s" % (pk(t + 2 * i), pk(acc + 2 * i), pk(acc + 2 * i)))
    for i in R4: a.e("v_pk_fma_f32 %s, %s, %s, %s op_sel:[0,1,0] op_sel_hi:[1,1,0]" % (pk(t + 2 * i), pk(t + 2 * i), pk(vC0), pk(vC0)))
    for i in R4: a.e("v_pk_mul_f32 %s, %s, %s" % (pk(t + 2 * i), pk(t + 2 * i), pk(acc + 2 * i)))
    for i in R8: a.e("v_exp_f32 %s, %s" % (v(t + i), v(t + i)))
    for i in R4: a.e("v_pk_add_f32 %s, %s, 1.0 op_sel_hi:[1,0]" % (pk(t + 2 * i), pk(t + 2 * i)))
    for i in R8: a.e("v_rcp_f32 %s, %s" % (v(t + i), v(t + i)))
    for i in R4: a.e("v_pk_mul_f32 %s, %s, %s" % (pk(acc + 2 * i), pk(acc + 2 * i), pk(acc + 8 + 2 * i)))
    for i in R4: a.e("v_pk_mul_f32 %s, %s, %s" % (pk(acc + 2 * i), pk(acc + 2 * i), pk(t + 2 * i)))
    for i in range(4): a.e("v_cvt_pk_bf16_f32 %s, %s, %s" % (v(o + i), v(acc + 2 * i), v(acc + 2 * i + 1)))
    a.vmop("buffer_store_dwordx4 %s, %s, %s, s%d offen offset:%d sc1" % (v(o, 4), v(vHA), srd(SWS), sHST2 if ti >> 1 else sHST, (ti & 1) * 256), "hst")

def Yseg(hset, toggle=False, first=False, extra=False, last=False):
    out = []
    for t in range(2):
        pos = [int(x, 17) for x in (Opt.ypos0 if hset is None else Opt.ypos2 if extra else Opt.ypos1)]
        if last and t == 1: pos = [pos[0], 0, 11, pos[1]]
        S, Sn = vS + 16 * t, vS + 16 * (1 - t)
        K, V0, V1 = vKF + 4 * t, vV + 8 * t, vV + 8 * t + 4
        for e in range(1, 17):
            out.append("v_exp_f32 %s, %s" % (v(S + e - 1), v(S + e - 1)))
            if e == pos[0] and not (first and t == 0): out.append(smfmac(vO, V1, Sn + 8))
            if e == pos[1]: out.append(mfma(Sn, K, vQ, None))
            if e == pos[2]: out.append(smfmac(vO, V0, S))
            if hset is not None:
                if e == 13 and t == 1 and toggle:
                    out.append("v_xor_b32 %s, 0x4000, %s" % (v(vKVB), v(vKVB)))
                if e == pos[3]: out.append(mfma(vD + 16 * t, vWF + 4 * t, vH + 4 * hset, vD + 16 * t))
                if extra and e == pos[4]: out.append(mfma(vD + 16 * t, vFR + 16 + 4 * t, vH + 16 + 4 * hset, vD + 16 * t))
    return out

def kv_reads(off, vKVA=vKVA):
    r = [rd128(vKF, vKVA, off), rd128(vKF + 4, vKVA, off + 2048), "s_mov_b64 exec, %s" % sp(sVM)]
    for t in range(2):
        r += [rd128(vV + 8 * t, vKVA, off + 2048 * t + 1024), rd128(vV + 8 * t + 4, vKVA, off + 2048 * t + 1280)]
    r.append("s_mov_b64 exec, -1")
    return r
def wd_reads(dst, addr, off):
    r = []
    for c in range(2):
        r += [rdtr(dst + 4 * c, addr, off + 512 * c), rdtr(dst + 4 * c + 2, addr, off + 512 * c + 1024)]
    return r

def hord(): return [0, 2, 4, 6, 1, 3, 5, 7] if Opt.hord else list(range(8))
def wdrow(sg): return (32 * (sg >> 1) + 8 * (sg & 1)) * 1024

def attention(a, role, pre0=None):
    A = role == "A"
    def kvdma(u):
        a.vmop("s_add_u32 m0, s%d, 0x%x\ns_add_u32 s%d, s%d, 0x%x\nbuffer_load_dwordx4 %s, %s, s%d offen sc1 lds"
               % (sWK, L_KV + (u % 4) * 8192, sA, sWK, u * 8192, v(vL16), srd(SKV), sA), "kv%d" % u)
    def wddma(sg):
        a.vmop("s_add_u32 m0, s%d, 0x%x\ns_add_u32 s%d, s%d, 0x%x\nbuffer_load_dwordx4 %s, %s, s%d offen lds"
               % (sWK, L_WD + (sg % 4 if sg < 23 or sg == 27 else sg - 19) * 8192, sA, sWDOFF, wdrow(sg), v(vWDV), srd(SWD), sA), "wd%d" % sg)
    def wodma(j):
        a.vmop("s_add_u32 m0, s%d, 0x%x\ns_add_u32 s%d, s%d, 0x%x\nbuffer_load_dwordx4 %s, %s, s%d offen lds"
               % (sWK, L_WO + (7 - j) * 8192, sA, sB, hord()[j] * 16384, v(vWDV), srd(SWO), sA), "wo")
    def hload(sg, dst):
        a.vmop("s_add_u32 s%d, s%d, 0x%x\nbuffer_load_dwordx4 %s, %s, %s, s%d offen sc1"
               % (sA, sHOFF, sg * 1024, v(dst, 4), v(vL16), srd(SWS), sA), "h%d" % sg)
    for n in range(12):
        if not A and n == 0: a.e("s_barrier")
        if n % 2 == 1: astamp(a, 2 + n // 2)
        if n == Opt.pcyc: a.e("%s %s" % ("s_memrealtime" if Opt.prt else "s_memtime", sp(sSTAMP + 6)))
        tags = []
        if A and n % 2 == 1: tags.append("kv%d" % ((n + 1) // 2))
        if not A and n % 2 == 0: tags.append("kv%d" % ((n + 2) // 2))
        if n == Opt.hpub - (0 if A else 1): tags.append("hst")
        if n == 6: tags.append("wo")
        if n == 9: tags.append("wd27")
        if n == 11: tags.append("wd0")
        if n == 9 and A:
            a.e("s_cmp_lg_u32 s%d, 0" % sW)
            a.e("s_cbranch_scc1 L_hf_done")
            a.e("s_mov_b32 s%d, 0x4000" % sB)
            a.e("s_waitcnt vmcnt(0)")
            a.lab("L_hf_chk")
            a.e("v_cmp_ne_u32 vcc, 1, %s" % v(vPOLL))
            a.e("s_cbranch_vccz L_hf_done")
            a.e("s_sleep %d" % Opt.hsl)
            a.e("buffer_load_dword %s, %s, %s, 0 offen sc1" % (v(vPOLL), v(vFLA), srd(SWS)))
            a.e("s_sub_u32 s%d, s%d, 1" % (sB, sB))
            a.e("s_cmp_lg_u32 s%d, 0" % sB)
            a.e("s_waitcnt vmcnt(0)")
            a.e("s_cbranch_scc1 L_hf_chk")
            a.lab("L_hf_done")
        a.waitvm(tags)
        if n == 5 and Opt.probe >= 0 and Opt.probe_g and A:
            a.e("s_cmp_lg_u32 s%d, 0" % sW)
            a.e("s_cbranch_scc1 L_npg")
            a.e("v_not_b32 v2, s%d" % sSTAMP)
            a.e("s_mov_b64 exec, 1")
            a.e("buffer_atomic_umax v2, off, %s, 0 offset:128 sc1" % srd(SDBG))
            a.e("s_mov_b64 exec, -1")
            a.lab("L_npg")
        if n == 5 and Opt.diag == 3 and A:
            a.e("v_mov_b32 v2, s%d" % sSTAMP)
            a.e("s_lshl_b32 s%d, s2, 3" % sA)
            a.e("s_add_u32 s%d, s%d, s%d" % (sA, sA, sW))
            a.e("s_lshl_b32 s%d, s%d, 7" % (sA, sA))
            a.e("s_add_u32 s%d, s%d, 0x%x" % (sA, sA, WS_STAMP))
            a.e("s_mov_b64 exec, 1")
            a.vmop("buffer_store_dword v2, off, %s, s%d offset:12 sc1" % (srd(SWS), sA), "st")
            a.e("s_mov_b64 exec, -1")
        if n == Opt.hpub and not A:
            a.e("s_cmp_ge_u32 s%d, 14" % sM)
            a.e("s_cbranch_scc1 L_nohf")
            a.e("s_cmp_lg_u32 s%d, 4" % sW)
            a.e("s_cbranch_scc1 L_nohf")
            a.e("s_lshl_b32 s%d, s%d, 4" % (sA, sG))
            a.e("s_add_u32 s%d, s%d, s%d" % (sA, sA, sM))
            a.e("s_lshl_b32 s%d, s%d, 7" % (sA, sA))
            a.e("s_add_u32 s%d, s%d, 0x%x" % (sA, sA, WS_HFLAG))
            a.e("s_mov_b64 exec, 1")
            a.e("buffer_store_dword %s, off, %s, s%d sc1" % (v(vONE), srd(SWS), sA))
            a.e("s_mov_b64 exec, -1")
            a.lab("L_nohf")
        for r in kv_reads((n % 8) * 4096): a.e(r)
        if n == 8 and A:
            a.e("s_cmp_lg_u32 s%d, 0" % sW)
            a.e("s_cbranch_scc1 L_hf_nol")
            a.e("buffer_load_dword %s, %s, %s, 0 offen sc1" % (v(vPOLL), v(vFLA), srd(SWS)))
            a.lab("L_hf_nol")
        if n == 0:
            if A or Opt.hpub == 3:
                kvdma(2); kvdma(3)
            a.e("s_mov_b32 s%d, s%d" % (sC, sKQ))
            a.e("s_mul_i32 s%d, s%d, %d" % (sWDOFF, sC, 448 * 1024))
            a.e("s_and_b32 s%d, s%d, 1" % (sB, sW))
            a.e("s_lshl_b32 s%d, s%d, 14" % (sA, sB))
            a.e("s_add_u32 s%d, s%d, s%d" % (sWDOFF, sWDOFF, sA))
            a.e("s_lshl_b32 s%d, s%d, 1" % (sA, sT))
            a.e("s_add_u32 s%d, s%d, s%d" % (sA, sA, sB))
            a.e("s_mul_i32 s%d, s%d, 112" % (sA, sA))
            a.e("s_mul_i32 s%d, s%d, 28" % (sB, sC))
            a.e("s_add_u32 s%d, s%d, s%d" % (sA, sA, sB))
            a.e("s_lshl_b32 s%d, s%d, 10" % (sA, sA))
            a.e("s_add_u32 s%d, s%d, 0x%x" % (sHOFF, sA, WS_HF))
        if (A and n % 2 == 1 and n >= 3): kvdma((n + 5) // 2)
        if (not A and n % 2 == 0 and n >= 2): kvdma((n + 6) // 2)
        if 1 <= n <= 4:
            a.e("s_lshl_b32 s%d, s%d, 17" % (sB, sKQ))
            a.e("s_and_b32 s%d, s%d, 1" % (sC, sW))
            a.e("s_lshl_b32 s%d, s%d, 13" % (sC, sC))
            a.e("s_add_u32 s%d, s%d, s%d" % (sB, sB, sC))
            for j in (2 * n - 2, 2 * n - 1): wodma(j)
        for sg in {5: (27, 23, 24), 6: (25, 26, 0), 7: (1, 2)}.get(n, ()): wddma(sg)
        if n == 10:
            for r in wd_reads(vWX, vWDA, 3 * 8192): a.e(r)
        for j in ({7: (0,), 8: (1, 2), 9: (3, 4)} if A else {7: (0, 1), 8: (2, 3), 9: (4,)}).get(n, ()):
            for r in wd_reads(WOF[j], vWOA, (7 - j) * 8192): a.e(r)
        hs = {10: (0, 1, 23, 24), 11: (2, 25, 26, 27)} if A else {9: (0, 1, 23), 10: (2, 24), 11: (25, 26, 27)}
        if Opt.hlate: hs = {10: (0, 1), 11: (2,)} if A else {9: (0,), 10: (1,), 11: (2,)}
        for sg in hs.get(n, ()): hload(sg, vH + 4 * sg if sg < 4 else vHX if sg == 27 else vH + 4 * (sg - 19))
        if n == 11:
            a.e("s_add_u32 s%d, s%d, 0x%x" % (sHOFF, sHOFF, 3 * 1024))
            a.e("s_add_u32 s%d, s%d, 0x%x" % (sWDOFF, sWDOFF, wdrow(3)))
            a.e("s_add_u32 s%d, s%d, 0x%x" % (sKVOFF, sWK, 9 * 8192))
            a.e("s_mov_b32 s%d, 4" % sCNT)
            a.e("s_add_u32 s%d, s%d, 0x1000" % (sOLD2, sOLD))
            a.e("s_mov_b32 s%d, 0x%x" % (sLO_, f2u(2.0 ** -16)))
            a.e("s_mov_b32 s%d, 0x%x" % (sRNG, f2u(2.0 ** 100) - f2u(2.0 ** -16)))
        if n == 0 and pre0:
            pre0()
            a.stamp(5)
        a.e("s_waitcnt lgkmcnt(0)")
        if n == 0:
            if A: a.e("s_barrier")
            for x in Yseg(None, first=True): a.e(x)
            if not A: a.e("s_barrier")
            continue
        a.e("s_call_b64 %s, L_Y%s" % (sp(sRET), role))
        if n == 1:
            a.e("s_branch L_X1%s" % role)
            a.lab("L_Y%s" % role)
            if A: a.e("s_barrier")
            for x in Yseg(None): a.e(x)
            if not A: a.e("s_barrier")
            a.e("s_setpc_b64 %s" % sp(sRET))
            a.lab("L_X1%s" % role)
    assert not (Opt.hlate and Opt.nx)
    hl = {28: (27, 23), 29: (24, 25), 30: (26,)} if Opt.hlate else {}
    vm = list(a.vm); need = [63] * 8
    for n in range(12, 32):
        p = n % 4; q = p + (4 if n >= 28 else 0)
        tags = ["wd%d" % (n - 11), "h%d" % (n - 12)]
        if (p % 2 == 1) == A: tags.append("kv%d" % ((n + (1 if A else 2)) // 2))
        idx = [i for i, t in enumerate(vm) if t in tags]
        if idx: need[q] = min(need[q], len(vm) - 1 - max(idx))
        vm.append("wd%d" % (n - 9))
        vm.append("h%d" % (n - 9))
        if (p % 2 == 1) == A and n < 28: vm.append("kv%d" % ((n + (5 if A else 6)) // 2))
        vm += ["hx"] * len(hl.get(n, ()))
    a.lab("L_loop%s" % role)
    for q in range(8):
        p = q % 4; fin = q >= 4
        kv = (p % 2 == 1) == A and not fin
        if q == 0 and Opt.diag and Opt.kdiag == 2:
            a.e("s_cmp_lg_u32 s%d, 3" % sCNT)
            a.e("s_cbranch_scc1 L_nst%s" % role)
            astamp(a, 8)
            a.lab("L_nst%s" % role)
        a.e("s_waitcnt vmcnt(%d)" % need[q])
        for i, r in enumerate(kv_reads(p * 4096, vKVB)):
            if not (q == 7 and i == 1): a.e(r)
        if q <= 8 - Opt.nd:
            for r in wd_reads(vWF, vWDA, p * 8192): a.e(r)
        if fin and p < Opt.nx:
            for r in wd_reads(vFR + 16, vWDA, (4 + p) * 8192): a.e(r)
        if q == 7:
            for r in wd_reads(vFR, vWDA, (4 + Opt.nx) * 8192): a.e(r)
        a.e("s_add_u32 m0, s%d, 0x%x" % (sWK, L_WD + ((p + 3) % 4) * 8192))
        a.e("s_and_b32 s%d, s%d, 0x7fff" % (sA, sKVOFF))
        a.e("buffer_load_dwordx4 %s, %s, s%d offen lds" % (v(vWDV), srd(SWD), sWDOFF))
        a.e("s_add_u32 s%d, s%d, 0x%x" % (sWDOFF, sWDOFF, 0x2000 if p & 1 else 0x6000))
        a.e("buffer_load_dwordx4 %s, %s, %s, s%d offen sc1" % (v(vKF + 4 if q == 7 and Opt.nd == 2 else vH + 4 * ((p + 3) % 4), 4), v(vL16), srd(SWS), sHOFF))
        if kv: a.e("s_add_u32 m0, s%d, 0x%x" % (sA, L_KV))
        a.e("s_add_u32 s%d, s%d, 0x400" % (sHOFF, sHOFF))
        if kv:
            a.e("buffer_load_dwordx4 %s, %s, s%d offen sc1 lds" % (v(vL16), srd(SKV), sKVOFF))
            a.e("s_add_u32 s%d, s%d, 0x2000" % (sKVOFF, sKVOFF))
        for sg in (hl.get(24 + q, ()) if fin else ()):
            a.e("s_add_u32 s%d, s%d, 0x%x" % (sA, sHOFF, (sg - (16 + q)) * 1024))
            a.e("buffer_load_dwordx4 %s, %s, %s, s%d offen sc1" % (v(vHX if sg == 27 else vH + 4 * (sg - 19), 4), v(vL16), srd(SWS), sA))
        if q == 3:
            a.e("s_sub_u32 s%d, s%d, 1" % (sCNT, sCNT))
            a.e("s_cmp_lg_u32 s%d, 0" % sCNT)
        a.e("s_waitcnt lgkmcnt(0)")
        if A: a.e("s_barrier")
        for x in Yseg(p if q < 8 - Opt.nd else None, toggle=(q == 3), extra=(fin and p < Opt.nx), last=(q == 7)): a.e(x)
        if not A and q < 7: a.e("s_barrier")
        if q == 3: a.e("s_cbranch_scc1 L_loop%s" % role)
    a.e("s_nop 1")

def transition(a, role):
    A = role == "A"
    if A:
        a.vm = []
        a.lab("L_trA")
    else:
        a.lab("L_join")
        a.e("s_cmp_eq_u32 s%d, 0" % sHI)
        a.e("s_cbranch_scc1 L_trA")
        a.vmjoin = list(a.vm)
    def qfin():
        for i in range(4): a.e("v_cvt_pk_bf16_f32 %s, %s, %s" % (v(vQ + i), v(vAQ + 2 * i), v(vAQ + 2 * i + 1)))
        a.e("v_add_u32 %s, 0x%x, %s" % (v(vWOA), L_WO, v(vWDA)))
        a.e("v_permlane16_swap_b32 %s, %s" % (v(vQ), v(vQ + 2)))
        a.e("v_permlane16_swap_b32 %s, %s" % (v(vQ + 1), v(vQ + 3)))
    pre0 = None
    if A:
        a.e("s_setprio 1")
        a.e("s_cmp_ge_u32 s%d, 14" % sM)
        a.e("s_cbranch_scc1 L_nogA0")
        put(a, a.kvA[:1] + a.kvA[-1:])
        a.l.append(".p2align 3")
        for ti in range(Opt.gsc): gelu_tile(a, ti, True)
        a.lab("L_nogA0")
        qfin()
        a.waitvm(["k0", "kv0", "kv1"])
        a.e("s_setprio 0")
        a.e(mfma(vS, vK0, vQ, None))
        a.e("s_barrier")
        put(a, a.kvA[1:-1])
        def pre0():
            a.e("s_cmp_lt_u32 s%d, 14" % sM)
            a.e("s_cbranch_scc1 L_gA1")
            a.e("s_waitcnt vmcnt(0)")
            a.e("s_branch L_nogA1")
            a.l.append(".p2align 3")
            a.lab("L_gA1")
            for ti in range(Opt.gsc, 4): gelu_tile(a, ti)
            a.lab("L_nogA1")
            a.e("s_setprio 2")
    else:
        a.waitvm(["k0", "kv0", "kv1"])
        a.e("s_setprio 1")
        if Opt.hpub == 3:
            a.e("s_cmp_ge_u32 s%d, 14" % sM)
            a.l.append(".p2align 3")
            a.e("s_barrier")
            a.e("s_cbranch_scc1 L_nogB")
        else:
            a.e("s_barrier")
            for u in (2, 3):
                a.vmop("s_add_u32 m0, s%d, 0x%x\ns_add_u32 s%d, s%d, 0x%x\nbuffer_load_dwordx4 %s, %s, s%d offen sc1 lds"
                       % (sWK, L_KV + u * 8192, sA, sWK, u * 8192, v(vL16), srd(SKV), sA), "kv%d" % u)
            a.e("s_cmp_lt_u32 s%d, 14" % sM)
            a.e("s_cbranch_scc1 L_gB")
            a.e("s_waitcnt vmcnt(0)")
            a.e("s_branch L_nogB")
            a.l.append(".p2align 3")
            a.lab("L_gB")
        for ti in range(4): gelu_tile(a, ti)
        a.lab("L_nogB")
        qfin()
        a.e("s_nop 1")
        a.e(mfma(vS, vK0, vQ, None))
        a.stamp(5)
    attention(a, role, pre0)
    if A:
        a.stamp(6); astamp(a, 9); tstamp(a, 2)
        if Opt.diag and Opt.kdiag == 2: a.e("s_waitcnt lgkmcnt(0)")
        a.e(smfmac(vO, vV1L, vS + 24))
        a.e("s_setprio 0")
        a.e("s_cmp_eq_u32 s%d, 0" % sHI)
        a.e("s_nop 9")
        normalise(a, False)
        a.lab("L_fbretA")
        a.e("buffer_store_dwordx4 %s, %s, %s, s%d offen sc1" % (v(vPK, 4), v(vL16), srd(SWS), sOST))
        tstamp(a, 3)
        a.e("s_waitcnt vmcnt(1)")
        tstamp(a, 4)
        a.e("s_barrier")
        a.fetch(a, False)
        a.e("s_branch L_tl2")

def normalise(a, packed):
    t = vT0
    a.e("v_rcp_f32 %s, %s" % (v(t + 2), v(vO + 8)))
    a.e("s_nop 0")
    a.e("v_mul_f32_e64 %s, %s, %s" % (v(t + 2), v(t + 2), v(vGP)))
    if packed:
        for i in range(4): a.e("v_pk_mul_f32 %s, %s, %s op_sel_hi:[1,0]" % (v(vO + 2 * i, 2), v(vO + 2 * i, 2), v(t + 2, 2)))
        for i in range(4):
            a.e("v_pk_fma_f32 %s, %s, 0, %s op_sel_hi:[1,0,%d]" % (v(t, 2), v(vO + 2 * i, 2), v(t, 2) if i else v(vO + 8, 2), 1 if i else 0))
            a.e("v_cvt_pk_bf16_f32 %s, %s, %s" % (v(vPK + i), v(vO + 2 * i), v(vO + 2 * i + 1)))
        a.e("v_fmac_f32 %s, 0, %s" % (v(t), v(t + 1)))
    else:
        t = vO + 8
        for i in range(8): a.e("v_mul_f32 %s, %s, %s" % (v(vO + i), v(vT0 + 2), v(vO + i)))
        for i in range(4):
            a.e("v_fmac_f32 %s, 0, %s" % (v(t), v(vO + 2 * i)))
            a.e("v_cvt_pk_bf16_f32 %s, %s, %s" % (v(vPK + i), v(vO + 2 * i), v(vO + 2 * i + 1)))
            a.e("v_fmac_f32 %s, 0, %s" % (v(t), v(vO + 2 * i + 1)))
    a.e("v_subrev_u32 %s, s%d, %s" % (v(t), sLO_, v(t)))
    a.e("v_cmp_lt_u32 vcc, s%d, %s" % (sRNG, v(t)))
    a.e("s_branch L_fb" if Opt.force_fb else "s_cbranch_vccnz L_fb")

def tail(a):
    a.lab("L_tail")
    a.stamp(6)
    astamp(a, 9)
    if Opt.diag and Opt.kdiag == 2: a.e("s_waitcnt lgkmcnt(0)")
    tstamp(a, 2)
    a.e(smfmac(vO, vV1L, vS + 24))
    wf = [vFR, vFR + 8, vFR + 16]
    HORD = hord()
    def oload(j):
        return "buffer_load_dwordx4 %s, %s, %s, s%d offen offset:%d %s" % (
            v(vS + 4 * j, 4), v(vL16), srd(SWS), sOLD if HORD[j] < 4 else sOLD2, (HORD[j] % 4) * 1024, Opt.old_pol)
    a.oload = oload
    a.e("s_cmp_eq_u32 s%d, 0" % sHI)
    a.e("s_nop 10")
    a.l.append(".p2align 3")
    normalise(a, True)
    a.lab("L_fbret")
    a.e("buffer_store_dwordx4 %s, %s, %s, s%d offen sc1" % (v(vPK, 4), v(vL16), srd(SWS), sOST))
    tstamp(a, 3)
    aw = [vAW0, vWOA + 1, vWOA + 2, vWOA + 3]
    ar = [vAR0, vFLA]
    wo = WOF
    def fetch(o, scale):
        for j in range(8):
            o.e(oload(j))
            if j >= 5:
                for r in wd_reads(wo[j], vWOA, (7 - j) * 8192): o.e(r)
            if scale and j >= 4:
                for i in range(4 * j - 16, 4 * j - 12): o.e("v_mul_f32 %s, %s, %s" % (v(vD + i), v(vGC), v(vD + i)))
    def addrs(a):
        a.e("v_sub_f32 %s, 1.0, %s" % (v(vGC), v(vGC)))
        for j in range(1, 4): a.e("v_xor_b32 %s, %d, %s" % (v(aw[j]), 32 * j, v(aw[0])))
        a.e("v_xor_b32 %s, 16, %s" % (v(ar[1]), v(ar[0])))
        a.e("s_mov_b32 s%d, 0x2000" % sB)
    ol = Asm(); a.ool2 = ol.l
    a.e("s_waitcnt vmcnt(1)")
    tstamp(a, 4)
    a.e("s_barrier")
    a.lab("L_tl2")
    tstamp(a, 5)
    a.fetch = fetch
    fl = collect(addrs)
    slot = [4, 5, 6, 7, 0, 1, 2][Opt.nx:] + ([3] if Opt.nd == 2 else [])
    hreg = lambda sl: vKF + 4 if sl == 2 and Opt.nd == 2 else vH + 4 * sl
    inreg = [(vWX, vHX)] + ([(vWF, vH + 4 * (4 - Opt.nd))] if Opt.nd else [])
    rds = sum((wd_reads(wf[i % 3], vWDA, slot[i] * 8192) for i in range(len(slot))), [])
    done = 4
    for i in range(-len(inreg), len(slot)):
        for c in range(2):
            if i >= 1: a.e("s_waitcnt lgkmcnt(%d)" % (done - (4 * i + 2 * c + 2)))
            a.e(mfma(vD + 16 * c, inreg[i][0] + 4 * c, inreg[i][1], vD + 16 * c) if i < 0 else
                mfma(vD + 16 * c, wf[i % 3] + 4 * c, hreg(slot[i]), vD + 16 * c))
            if i < -1: continue
            if done < len(rds):
                for r in rds[done:done + 2]: a.e(r)
                done += 2
            else:
                put(a, fl[:2]); fl = fl[2:]
    assert not fl
    tstamp(a, 6)
    a.e("s_cbranch_scc0 L_tl3")
    a.l.append(".p2align 3")
    a.e("s_nop 7")
    a.e("s_nop 0")
    for i in range(16): a.e("v_pk_mul_f32 %s, %s, %s op_sel:[0,1] op_sel_hi:[1,1]" % (v(vD + 2 * i, 2), v(vD + 2 * i, 2), v(vGP, 2)))
    tstamp(a, 7)
    a.lab("L_tl4")
    tstamp(a, 8)
    ol.lab("L_tl3")
    ol.e("s_setprio 0")
    fetch(ol, False)
    tstamp(ol, 7)
    for i in range(32): ol.e("v_mul_f32 %s, %s, %s" % (v(vD + i), v(vGC), v(vD + i)))
    ol.e("s_waitcnt lgkmcnt(0)")
    def check(j):
        o = vS + 4 * j
        return ["s_waitcnt vmcnt(%d)" % (7 - j), "v_max3_u32 v2, %s, %s, %s" % (v(o), v(o + 1), v(o + 2)),
                "v_max_u32 v2, v2, %s" % v(o + 3), "v_cmp_eq_u32 vcc, -1, v2"]
    for j in range(Opt.bpre):
        for x in check(j): ol.e(x)
        ol.e("s_cbranch_vccnz L_bp%d" % j)
    ol.e("s_branch L_tl4")
    if Opt.bpre:
        for j in range(8):
            if j < Opt.bpre: ol.lab("L_bp%d" % j)
            ol.e(oload(j))
        ol.e("s_branch L_tl4")
    a.stamp(7)
    def check(j):
        o = vS + 4 * j
        return ["s_waitcnt vmcnt(%d)" % (7 - j), "v_max3_u32 v2, %s, %s, %s" % (v(o), v(o + 1), v(o + 2)),
                "v_max_u32 v2, v2, %s" % v(o + 3), "v_cmp_eq_u32 vcc, -1, v2"]
    a.check = check
    for x in check(0): a.e(x)
    for j in range(10):
        if j < 8:
            a.e("s_cbranch_vccnz L_ore%d" % j)
            a.lab("L_ook%d" % j)
            a.e(mfma(vD, wo[j], vS + 4 * j, vD))
        if j >= 2 and Opt.cfirst: a.e(mfma(vD + 16, wo[j - 2] + 4, vS + 4 * (j - 2), vD + 16))
        if j < 7:
            for x in check(j + 1): a.e(x)
        if j >= 2 and not Opt.cfirst: a.e(mfma(vD + 16, wo[j - 2] + 4, vS + 4 * (j - 2), vD + 16))
        if j in (7, 8): a.e("s_nop 4")
    wr = lambda c, j: "ds_write_b128 %s, %s offset:%d" % (v(aw[j]), v(vD + 16 * c + 4 * j, 4), 128 * c)
    a.stamp(8)
    tstamp(a, 9)
    for j in range(4): a.e(wr(0, j))
    a.e("s_nop 7")
    for j in range(4): a.e(wr(1, j))
    a.e("s_waitcnt lgkmcnt(0)")
    a.e("s_barrier")
    for p in range(4):
        for h in range(2): a.e(rd128(vS + 8 * p + 4 * h, ar[h], p * 8192))
    for p in range(1, 4):
        a.e("s_waitcnt lgkmcnt(%d)" % (6 - 2 * p))
        for i in range(4): a.e("v_pk_add_f32 %s, %s, %s" % (v(vS + 2 * i, 2), v(vS + 2 * i, 2), v(vS + 8 * p + 2 * i, 2)))
    for i in range(4): a.e("v_cvt_pk_bf16_f32 %s, %s, %s" % (v(vP + i), v(vS + 2 * i), v(vS + 2 * i + 1)))
    a.e("buffer_store_dwordx4 %s, %s, %s, s%d offen %s" % (v(vP, 4), v(vOUTA), srd(SOUT), sOUTO, Opt.out_pol))
    if Opt.probe >= 0:
        a.e("s_waitcnt vmcnt(0)")
        a.stamp(9)
        if Opt.probe != 9:
            a.e("s_cmp_ge_u32 s%d, 14" % sM)
            a.e("s_cbranch_scc%d L_end" % (0 if Opt.probe_l else 1))
        if Opt.probe_g:
            a.e("buffer_load_dword v2, off, %s, 0 offset:128 sc1" % srd(SDBG))
            a.e("s_waitcnt vmcnt(0)")
            a.e("v_readfirstlane_b32 s%d, v2" % sSTAMP)
            a.e("s_nop 3")
            a.e("s_not_b32 s%d, s%d" % (sSTAMP, sSTAMP))
        a.e("s_sub_u32 s%d, s%d, s%d" % (sA, sSTAMP + 4, sSTAMP))
        a.e("s_mul_i32 s%d, s%d, %d" % (sA, sA, Opt.probe_mul - 1))
        if Opt.pcyc >= 0:
            a.e("s_sub_u32 s%d, s%d, s%d" % (sA, sSTAMP + 8, sSTAMP + 6))
            if Opt.prt: a.e("s_mul_i32 s%d, s%d, 10" % (sA, sA))
            a.e("s_mov_b32 s%d, s%d" % (sSTAMP + 4, sSTAMP))
        a.e("s_min_u32 s%d, s%d, 100000" % (sA, sA))
        a.e("s_add_u32 s%d, s%d, 3800" % (sA, sA))
        if Opt.probe_r >= 0:
            a.e("s_cmp_eq_u32 s%d, 0x2000" % sB)
            a.e("s_cbranch_scc%d L_end" % Opt.probe_r)
        if Opt.probe_w >= 0:
            a.e("s_cmp_lg_u32 s%d, %d" % (sHI, Opt.probe_w))
            a.e("s_cbranch_scc1 L_end")
        if Opt.probe_x >= 0:
            a.e("s_and_b32 s0, s2, 7")
            a.e("s_cmp_lg_u32 s0, %d" % Opt.probe_x)
            a.e("s_cbranch_scc1 L_end")
        a.lab("L_probe")
        a.e("s_memrealtime s[0:1]")
        a.e("s_waitcnt lgkmcnt(0)")
        a.e("s_sub_u32 s0, s0, s%d" % (sSTAMP + 4))
        a.e("s_cmp_lt_u32 s0, s%d" % sA)
        a.e("s_cbranch_scc1 L_probe")
    if Opt.pin == 9:
        a.e("s_waitcnt vmcnt(0)")
        a.stamp(9)
    if Opt.diag in (1, 2):
        a.e("s_waitcnt vmcnt(0)")
        a.stamp(9)
        a.e("s_mov_b32 s%d, s%d" % (sSTAMP + 3, sSTAMP))
        a.e("s_mov_b32 s%d, s%d" % (sSTAMP, sB))
        a.e("s_getreg_b32 s%d, hwreg(HW_REG_XCC_ID)" % (sSTAMP + 1))
        for i in range(20): a.e("v_mov_b32 %s, s%d" % (v(vS + i), sSTAMP + i))
        a.e("s_lshl_b32 s%d, s2, 3" % sA)
        a.e("s_add_u32 s%d, s%d, s%d" % (sA, sA, sW))
        a.e("s_lshl_b32 s%d, s%d, 7" % (sA, sA))
        a.e("s_add_u32 s%d, s%d, 0x%x" % (sA, sA, WS_STAMP))
        a.e("s_mov_b64 exec, 1")
        for i in range(5): a.e("buffer_store_dwordx4 %s, off, %s, s%d offset:%d" % (v(vS + 4 * i, 4), srd(SWS), sA, 16 * i))
    a.lab("L_end")
    a.e("s_endpgm")
    a.l += a.ool2
    for j in range(8):
        a.lab("L_ore%d" % j)
        a.e("s_sub_u32 s%d, s%d, 1" % (sB, sB))
        a.e("s_cbranch_scc1 L_ogive%d" % j)
        if Opt.rwait: a.e("s_waitcnt vmcnt(0)")
        if Opt.rwait > 1: a.e("s_sleep %d" % Opt.rwait)
        for i in range(j, 8): a.e(a.oload(i))
        for x in a.check(j): a.e(x)
        a.e("s_cbranch_vccnz L_ore%d" % j)
        a.e("s_branch L_ook%d" % j)
        a.lab("L_ogive%d" % j)
        a.e("s_mov_b32 s%d, 0" % sB)
        a.e("s_branch L_ook%d" % j)

def fallback(a):
    a.lab("L_fb")
    m = vT0
    a.e("v_mov_b32 %s, 0xff800000" % v(m))
    a.e("s_mov_b32 s%d, 0" % sA)
    a.lab("L_fb1")
    a.e("buffer_load_dwordx4 %s, %s, %s, s%d offen sc1" % (v(vKF, 4), v(vL16), srd(SKV), sA))
    a.e("s_waitcnt vmcnt(0)")
    a.e(mfma(vS, vKF, vQ, None))
    a.e("s_add_u32 s%d, s%d, 2048" % (sA, sA))
    a.e("s_nop 11")
    for i in range(8): a.e("v_max3_f32 %s, %s, %s, %s" % (v(m), v(m), v(vS + 2 * i), v(vS + 2 * i + 1)))
    a.e("s_cmp_lt_u32 s%d, 0x20000" % sA)
    a.e("s_cbranch_scc1 L_fb1")
    a.e("v_mov_b32 %s, %s" % (v(m + 1), v(m)))
    a.e("s_nop 1")
    a.e("v_permlane32_swap_b32 %s, %s" % (v(m), v(m + 1)))
    a.e("s_nop 1")
    a.e("v_max_f32 %s, %s, %s" % (v(m), v(m), v(m + 1)))
    for i in range(16): a.e("v_sub_f32 %s, 0, %s" % (v(vS + 16 + i), v(m)))
    for i in range(16): a.e("v_mov_b32 %s, 0" % v(vO + i))
    a.e("s_mov_b32 s%d, 0" % sA)
    a.lab("L_fb2")
    a.e("s_add_u32 s%d, s%d, 0x%x" % (sB, sA, 63 * 2048))
    a.e("s_and_b32 s%d, s%d, 0x1ffff" % (sB, sB))
    a.e("buffer_load_dwordx4 %s, %s, %s, s%d offen sc1" % (v(vKF, 4), v(vL16), srd(SKV), sB))
    a.e("s_add_u32 s%d, s%d, 2048" % (sB, sA))
    a.e("s_and_b32 s%d, s%d, 0x1ffff" % (sB, sB))
    a.e("s_mov_b64 exec, %s" % sp(sVM))
    a.e("buffer_load_dwordx4 %s, %s, %s, s%d offen offset:1024 sc1" % (v(vV, 4), v(vL16), srd(SKV), sA))
    a.e("buffer_load_dwordx4 %s, %s, %s, s%d offen offset:1280 sc1" % (v(vV + 4, 4), v(vL16), srd(SKV), sB))
    a.e("s_mov_b64 exec, -1")
    a.e("s_waitcnt vmcnt(0)")
    a.e(mfma(vS, vKF, vQ, vS + 16))
    a.e("s_add_u32 s%d, s%d, 2048" % (sA, sA))
    a.e("s_nop 11")
    for i in range(16): a.e("v_exp_f32 %s, %s" % (v(vS + i), v(vS + i)))
    a.e("s_nop 2")
    a.e(smfmac(vO, vV, vS))
    a.e(smfmac(vO, vV + 4, vS + 8))
    a.e("s_cmp_lt_u32 s%d, 0x20000" % sA)
    a.e("s_cbranch_scc1 L_fb2")
    a.e("s_nop 11")
    a.e("v_rcp_f32 %s, %s" % (v(vT0 + 2), v(vO + 8)))
    a.e("s_cmp_eq_u32 s%d, 0" % sHI)
    a.e("v_mul_f32 %s, %s, %s" % (v(vT0 + 2), v(vT0 + 2), v(vGP)))
    for i in range(8): a.e("v_mul_f32 %s, %s, %s" % (v(vO + i), v(vT0 + 2), v(vO + i)))
    for i in range(4): a.e("v_cvt_pk_bf16_f32 %s, %s, %s" % (v(vPK + i), v(vO + 2 * i), v(vO + 2 * i + 1)))
    for i in range(4): a.e("v_min_u32 %s, -2, %s" % (v(vPK + i), v(vPK + i)))
    a.e("s_cbranch_scc1 L_fbretA")
    a.e("s_branch L_fbret")

def build():
    a = Asm()
    prologue(a)
    phase1_F(a)
    transition(a, "B")
    tail(a)
    a.l += a.ool
    transition(a, "A")
    phase1_L(a)
    fallback(a)
    a.lab("L_codeend")
    for i, x in enumerate(a.l):
        if " sc1" in x and "sc0" not in x and ((Opt.allsc & 1 and "buffer_store" in x) or (Opt.allsc & 2 and "buffer_load" in x)):
            a.l[i] = x.replace(" sc1", " sc0 sc1")
    il = a.l.index("L_light:")
    for i, x in enumerate(a.l):
        if x.endswith(" lds") and "sc1" not in x and " nt" not in x:
            if (Opt.ntx & 4 and (srd(SWD) in x or srd(SWO) in x)) or (Opt.ntx & 8 and i > il):
                a.l[i] = x[:-4] + " nt lds"
    head = open("cdna_kernels/%s.s.ref" % NAME).read().split("\n")
    hdr = [l for l in head if l.startswith(";") and "@launch" not in l and "Override" not in l and "grid=" not in l]
    out = hdr + ["; @launch grid=(256,1,1) block=(512,1,1) lds=%d" % LDS_BYTES,
                 '.amdgcn_target "amdgcn-amd-amdhsa--gfx950"', ".text", ".globl %s_kernel" % NAME, ".p2align 8",
                 ".type %s_kernel,@function" % NAME,
                 ".set CODE_PF_MAX, L_codeend - L_nopf - 4" if Opt.code_pf else "",
                 "%s_kernel:" % NAME]
    if Opt.diag: out += ["; mapmode %d" % (1 + 3 * bool(Opt.oddl))]
    out += ["; " + x for x in """One persistent launch, one workgroup per CU (generated by a script), 8 waves = two quartets that alternate on each SIMD.
Stage 1: 14 of every 16 workgroups compute gelu(x Wg) * (x Wu) for 128 tokens x 128 columns plus Q for two heads;
         the other two compute K, V and the mixing gate, publish them (counter in d_debug) and then their own Q.
Stage 2: attention for 128 tokens x 2 heads over all keys, S^T = K Q^T, exp2 in place, P V through sparse MFMAs that
         read the high halves of the fp32 probabilities; a row of ones in the V operand gives the row sums.
         The stand-in maximum is 0: it is accepted only if the row sum lies in [2^-16, 2^100] and every accumulator is
         finite, otherwise the wave redoes its rows with the true maximum (L_fb).
         The down projection of a 64 x 64 output tile runs in the same loop once the producers' flags are seen.
Stage 3: attention outputs are handed over through d_ws (cleared to a mark earlier in this launch), projected,
         mixed with the FFN branch, reduced through LDS and stored.""".split("\n")]
    out += a.l
    out += ['.section .rodata,"a"', ".p2align 6", ".amdhsa_kernel %s_kernel" % NAME,
            "  .amdhsa_next_free_vgpr %d" % NV, "  .amdhsa_next_free_sgpr 102", "  .amdhsa_accum_offset 256",
            "  .amdhsa_group_segment_fixed_size 0", "  .amdhsa_kernarg_size 104", "  .amdhsa_user_sgpr_count 2",
            "  .amdhsa_user_sgpr_kernarg_segment_ptr 1", "  .amdhsa_system_sgpr_workgroup_id_x 1", ".end_amdhsa_kernel", ""]
    return "\n".join(out)

if __name__ == "__main__":
    path = sys.argv[1]
    for kv in sys.argv[2:]:
        k, val = kv.split("=")
        cur = getattr(Opt, k)
        setattr(Opt, k, val if isinstance(cur, str) else type(cur)(int(val)))
    open(path, "w").write(build())
```

```python
import sys, struct, math

NAME = "gated_mix__grouped_kv_mqa__geglu_ffn__prompt"

class Opt:
    diag = 0
    mapmode = 1
    force_fb = False
    allsc = 0
    out_pol = "sc0 sc1"
    code_pf = True
    xrot = 0
    pregap = 0
    kw0 = 1
    kb = 3
    kal = 1
    xodd = 43
    xeven = 32
    hsl = 2
    lthr = 0
    klate = 0
    bpre = 0
    oddl = 1
    hlate = 1
    hpub = 3
    rwait = 1
    aearly = 0
    bidle = 1
    old_pol = "sc1"
    ypos0 = "36g"
    ypos1 = "36bg"
    ypos2 = "36cg9"
    nd = 1
    nx = 0
    tpos = 1
    cfirst = 0
    tch = 12
    stch = 0
    spos = 1
    tlb = 6
    olate = 1
    hrot = 0
    tbar = 0
    hord = 1
    cmap = 1
    kqx = 2
    oearly = 8
    conc = 1
    ghx = 1
    qa = "077777"
    qb = "588888"
    npre = 8
    stagger = 1
    rper = 2
    dma1 = 17
    kprio = 0
    dma0 = 8
    npd = 4
    kdiag = 0
    fillpre = 0
    fillper = 5
    gsc = 2
    sched = 0
    xmask = 1
    ntx = 0
    touch = 2
    rotg = 0
    rotm = 0
    startbar = 1
    pvz = 1
    pin = -1
    pin_ns = 60000
    probe = -1
    probe_x = -1
    probe_mul = 10
    probe_w = -1
    probe_r = -1
    pcyc = -1
    prt = 0
    probe_g = 1
    probe_l = 0

def f2u(x): return struct.unpack("<I", struct.pack("<f", x))[0]

WS_KV = 0
WS_G = 128 * 1024
WS_HFLAG = 192 * 1024
WS_OF = 1 << 20
WS_HF = 4 << 20
WS_STAMP = 12 << 20
WS_SIZE = 16 << 20
K1 = 1024
L_G, L_U, L_X, L_WQ = 0, 48 * K1, 96 * K1, 144 * K1
L_QX = 32 * K1
L_WD, L_WO, L_KV = 0, 64 * K1, 128 * K1
L_RED = 96 * K1
LL_X, LL_W, LL_GATE, LL_WQ = 0, 128 * K1, 144 * K1, 128 * K1
LDS_BYTES = 160 * K1

SX, SWG, SWU, SWQ, SWS, SWD, SWO, SOUT, SDBG, SWKV, SGATE, SKV = 4, 8, 12, 16, 20, 24, 28, 32, 36, 40, 44, 64
SWV = 72
sTMPP = 48
sW, sHI, sLO, sG, sM, sT, sCB = 50, 51, 52, 53, 54, 55, 56
sWK = 57
sWH = 58
sVM = 60
sRET = 62
sA, sB, sC, sD = 68, 69, 70, 71
sOFFW, sOFFQ, sCH, sXP = 72, 73, 74, 75
sHOFF, sWDOFF, sKVOFF, sHXO, sCNT = 72, 73, 74, 75, 77
sOUTO, sLO_, sRNG = 59, 81, 75
sOLD2 = 58
sOST, sOLD, sHST = 78, 79, 80
sHST2 = 3
sRX, sRW, sM0B = 40, 41, 42
sKQ = 76
sHP = 81
sSTAMP = 82

def srd(b): return "s[%d:%d]" % (b, b + 3)
def sp(b): return "s[%d:%d]" % (b, b + 1)
def v(b, n=1): return "v%d" % b if n == 1 else "v[%d:%d]" % (b, b + n - 1)

vL16 = 1
vT0, vT1, vT2, vT3 = 2, 3, 4, 5
vGP, vGC = 6, 7
vKVA = 8
vWDA = 9
vWDV = 10
vONE = 11
vZERO = 12
vFLA = 13
vPOLL = 14
vGA = 15
vQ = 16
vK0 = 20
vV1L = 24
vIDX = 28
vAW0, vAR0, vOUTA = 30, 31, 12
vKVB = 29
vP = 32
vV = 40
vO = 56
vD = 72
vACC = 104
vS = 104
vH = 136
vAQ = vP
vF1 = 168
vKF = 168
vWF = 176
vWX = 224
vHX = 232
vPK = 20
WOF = [32, 208, 216, 240, 248, 40, 48, 56]
vWOA = 236
vFR = 184
vLX = 224
vXA = 240
vWA = 244
vQA = 248
vDX, vDG, vDQ = 249, 250, 251
vC0 = 252
vTID = 255
vHA = 254
NV = 256

class Asm:
    def __init__(self):
        self.l = []
        self.vm = []
        self.nstamp = 0
    def e(self, s):
        for x in s.split("\n"):
            x = x.strip()
            if x: self.l.append("    " + x)
    def lab(self, s): self.l.append(s + ":")
    def vmop(self, s, tag):
        self.e(s); self.vm.append(tag)
    def vmn(self, tags):
        if isinstance(tags, str): tags = [tags]
        last = -1
        for i, t in enumerate(self.vm):
            if t in tags: last = i
        return None if last < 0 else len(self.vm) - 1 - last
    def waitvm(self, tags, lgkm=False):
        n = self.vmn(tags)
        if n is None:
            if lgkm: self.e("s_waitcnt lgkmcnt(0)")
            return
        assert n < 64
        self.e("s_waitcnt vmcnt(%d)%s" % (n, " lgkmcnt(0)" if lgkm else ""))
        self.vm = self.vm[len(self.vm) - n:] if n else []
    def wait0(self, lgkm=False):
        self.e("s_waitcnt vmcnt(0)%s" % (" lgkmcnt(0)" if lgkm else "")); self.vm = []
    def stamp(self, i, real=False):
        if Opt.probe == i:
            self.e("s_waitcnt lgkmcnt(0)")
            self.e("s_memrealtime %s" % sp(sSTAMP + 4))
            if Opt.pcyc >= 0: self.e("%s %s" % ("s_memrealtime" if Opt.prt else "s_memtime", sp(sSTAMP + 8)))
            self.e("s_waitcnt lgkmcnt(0)")
        if Opt.pin == i:
            self.nstamp += 1
            self.e("s_waitcnt lgkmcnt(0)")
            self.e("s_cselect_b32 s%d, 1, 0" % (sSTAMP + 5))
            self.lab("L_pin%d" % self.nstamp)
            self.e("s_memrealtime s[0:1]")
            self.e("s_waitcnt lgkmcnt(0)")
            self.e("s_sub_u32 s0, s0, s%d" % sSTAMP)
            self.e("s_cmp_lt_u32 s0, %d" % (Opt.pin_ns // 10))
            self.e("s_cbranch_scc1 L_pin%d" % self.nstamp)
            self.e("s_cmp_lg_u32 s%d, 0" % (sSTAMP + 5))
        if Opt.diag and not Opt.kdiag and (Opt.diag == 1 or i == 9):
            self.e("s_waitcnt lgkmcnt(0)")
            self.e("s_memtime %s" % sp(sSTAMP + 2 * i))
            self.e("s_memrealtime %s" % sp(sRET))
            self.e("s_waitcnt lgkmcnt(0)")
            self.e("s_mov_b32 s%d, s%d" % (sSTAMP + 2 * i + 1, sRET))

def astamp(a, i):
    if Opt.diag and Opt.kdiag == 2: a.e("s_memtime %s" % sp(sSTAMP + 2 * i))

def tstamp(a, i):
    if Opt.diag and Opt.kdiag == 3: a.e("s_memtime %s" % sp(sSTAMP + 2 * i))

def kstamp(a, i):
    if Opt.probe == 18 + i: a.e("s_memrealtime %s" % sp(sSTAMP + 4))
    if Opt.diag and Opt.kdiag == 1: a.e("s_memtime %s" % sp(sSTAMP + 2 * i))

def mfma(d, a, b, c):
    return "v_mfma_f32_32x32x16_bf16 %s, %s, %s, %s" % (v(d, 16), v(a, 4), v(b, 4), "0" if c is None else v(c, 16))
def smfmac(d, a, b):
    return "v_smfmac_f32_32x32x32_bf16 %s, %s, %s, %s" % (v(d, 16), v(a, 4), v(b, 8), v(vIDX))
def mfma16(d, a, b, c):
    return "v_mfma_f32_16x16x32_bf16 %s, %s, %s, %s" % (v(d, 4), v(a, 4), v(b, 4), "0" if c is None else v(c, 4))
def rd128(d, a, off):
    assert 0 <= off < 65536
    return "ds_read_b128 %s, %s offset:%d" % (v(d, 4), v(a), off)
def rdtr(d, a, off):
    assert 0 <= off < 65536
    return "ds_read_b64_tr_b16 %s, %s offset:%d" % (v(d, 2), v(a), off)

def interleave(mf, fill, per=2):
    out = []
    fill = list(fill)
    for i, m in enumerate(mf):
        out.append(m)
        if i < len(mf) - 1:
            out += fill[:per]; fill = fill[per:]
    return out + fill

def srd_words(a, regs):
    sizes = {SX: 2048 * 1024, SWG: 512 * 3584, SWU: 512 * 3584, SWQ: 512 * 1024, SWS: WS_SIZE, SWKV: 16384, SWV: 16384,
             SGATE: 1024, SWD: 1792 * 1024, SWO: 512 * 1024, SOUT: 2048 * 1024, SDBG: 256, SKV: 128 * 1024}
    for reg in regs:
        a.e("s_mov_b32 s%d, 0x%x" % (reg + 2, sizes[reg]))
        a.e("s_mov_b32 s%d, 0x20000" % (reg + 3))

def ptr_loads(a, lst):
    for reg, off in lst: a.e("s_load_dwordx2 %s, s[0:1], %d" % (sp(reg), off))

def prologue(a):
    if Opt.diag or Opt.pin >= 0 or Opt.probe >= 0:
        a.e("s_memrealtime %s" % sp(sSTAMP))
        if Opt.diag in (1, 2): a.e("s_memtime %s" % sp(sSTAMP + 2))
    ptr_loads(a, ((SX, 0), (SWG, 48), (SWU, 56), (SWQ, 8)))
    if Opt.probe == 1: a.stamp(1)
    a.e("v_lshrrev_b32 v2, 6, v0")
    if Opt.code_pf:
        a.e("s_getpc_b64 %s" % sp(sRET))
        a.lab("L_nopf")
        a.e("s_and_b32 s%d, s2, -8" % sA)
        a.e("v_add_lshl_u32 v4, v2, s%d, 7" % sA)
        a.e("v_mov_b32 v5, 0")
        a.e("v_min_u32 v4, CODE_PF_MAX, v4")
        a.e("v_lshl_add_u64 v[4:5], v[4:5], 0, %s" % sp(sRET))
        a.e("global_load_dword %s, v[4:5], off" % v(vPOLL))
    if not Opt.klate: a.e("s_load_dwordx8 s[%d:%d], s[0:1], 64" % (SOUT, SOUT + 7))
    a.e("v_readfirstlane_b32 s%d, v2" % sW)
    if not Opt.klate: ptr_loads(a, ((SWS, 96),) if Opt.diag or Opt.probe >= 0 else ((SWS, 96), (SWO, 32)))
    a.e("s_cmpk_ge_u32 s2, 256")
    a.e("s_cbranch_scc1 L_end")
    if Opt.oddl:
        a.e("s_bfe_u32 s%d, s2, 0x10002" % sD)
        a.e("s_bfe_u32 s%d, s2, 0x30003" % sA)
        a.e("s_lshl3_add_u32 s%d, s%d, s%d" % (sG, sD, sA))
        a.e("s_and_b32 s%d, s2, 3" % sA)
        if Opt.oddl == 2: a.e("s_xor_b32 s%d, s%d, 1" % (sA, sA))
        a.e("s_lshr_b32 s%d, s2, 6" % sB)
        a.e("s_lshl2_add_u32 s%d, s%d, s%d" % (sHP, sA, sB))
        a.e("s_lshr_b32 s%d, s%d, 3" % (sB, sHP))
        a.e("s_sub_u32 s%d, s%d, s%d" % (sM, sHP, sB))
        a.e("s_lshl_b32 s%d, s%d, 10" % (sWK, sW))
        a.e("s_andn2_b32 s%d, 7, s%d" % (sA, sHP))
        a.e("s_cbranch_scc0 L_light")
    else:
        a.e("s_and_b32 s%d, s2, 1" % sD)
        a.e("s_bfe_u32 s%d, s2, 0x30003" % sA)
        a.e("s_lshl3_add_u32 s%d, s%d, s%d" % (sG, sD, sA))
        a.e("s_bfe_u32 s%d, s2, 0x20001" % sA)
        a.e("s_lshr_b32 s%d, s2, 6" % sB)
        a.e("s_lshl2_add_u32 s%d, s%d, s%d" % (sM, sA, sB))
        a.e("s_mov_b32 s%d, s%d" % (sHP, sM))
        a.e("s_lshl_b32 s%d, s%d, 10" % (sWK, sW))
        a.e("s_cmp_ge_u32 s%d, 14" % sM)
        a.e("s_cbranch_scc1 L_light")

def xvoff(a, t):
    a.e("v_lshrrev_b32 v2, 4, %s" % v(t))
    a.e("v_xor_b32 v2, v2, %s" % v(t))
    a.e("v_and_b32 v2, 7, v2")
    a.e("s_lshl_b32 s%d, s%d, 17" % (sA, sG))
    a.e("v_lshl_add_u32 v2, v2, 4, s%d" % sA)
    a.e("v_lshrrev_b32 v3, 3, %s" % v(t))
    a.e("v_lshl_add_u32 %s, v3, 10, v2" % v(vDX))

def setup_ids(a):
    if Opt.klate:
        ptr_loads(a, ((SWS, 96), (SKV, 96), (SDBG, 88), (SWD, 64), (SWO, 32), (SOUT, 80)))
    else:
        a.e("s_mov_b64 %s, %s" % (sp(SKV), sp(SWS)))
        a.e("s_mov_b64 %s, %s" % (sp(SWD), sp(SOUT)))
        a.e("s_mov_b64 %s, %s" % (sp(SOUT), sp(SOUT + 4)))
        a.e("s_mov_b64 %s, %s" % (sp(SDBG), sp(SOUT + 6)))
    a.e("v_and_b32 v0, 63, v0")
    a.e("v_lshlrev_b32 %s, 4, v0" % v(vL16))
    if Opt.oddl:
        a.e("s_and_b32 s%d, s2, 7" % sA)
        a.e("s_xor_b32 s%d, s%d, 4" % (sA, sA))
    else:
        a.e("s_andn2_b32 s%d, 1, s2" % sA)
        a.e("s_bfe_u32 s%d, s2, 0x20001" % sB)
        a.e("s_lshl2_add_u32 s%d, s%d, s%d" % (sA, sA, sB))
    a.e("s_bfe_u32 s%d, s2, 0x20003" % sB)
    a.e("s_lshl2_add_u32 s%d, s%d, s%d" % (sT, sA, sB))
    a.e("s_lshr_b32 s%d, s2, 5" % sCB)

def setup_rd(a):
    a.e("s_lshr_b32 s%d, s%d, 2" % (sHI, sW))
    a.e("s_and_b32 s%d, s%d, 3" % (sLO, sW))
    a.e("v_and_b32 v2, 15, v0")
    a.e("v_lshrrev_b32 v3, 4, v0")
    a.e("v_bfe_u32 v4, v0, 1, 3")
    a.e("v_xor_b32 v4, v4, v3")
    a.e("v_lshlrev_b32 v4, 4, v4")
    a.e("v_lshl_add_u32 %s, v2, 7, v4" % v(vXA))
    a.e("v_bfe_u32 v2, v0, 2, 2")
    a.e("v_and_b32 v4, 3, v0")
    a.e("v_lshl_add_u32 %s, v3, 3, v2" % v(vQA))
    a.e("v_lshlrev_b32 %s, 6, %s" % (v(vQA), v(vQA)))
    a.e("v_xor_b32 v5, s%d, v3" % sHI)
    a.e("v_and_b32 v5, 1, v5")
    a.e("v_lshl_add_u32 %s, v5, 5, %s" % (v(vQA), v(vQA)))
    a.e("v_lshl_add_u32 %s, v4, 3, %s" % (v(vQA), v(vQA)))

def setup_oclr(a):
    srd_words(a, [SWS, SKV, SDBG])
    a.e("s_mov_b32 s%d, 0xffff" % sVM)
    a.e("s_mov_b32 s%d, 0xffff" % (sVM + 1))
    a.e("s_lshl_b32 s%d, s%d, 2" % (sA, sG))
    a.e("s_add_u32 s%d, s%d, s%d" % (sA, sA, sLO))
    a.e("s_lshl_b32 s%d, s%d, 5" % (sB, sA))
    a.e("s_lshl_b32 s%d, s%d, 1" % (sC, sHP))
    a.e("s_add_u32 s%d, s%d, s%d" % (sB, sB, sC))
    a.e("s_add_u32 s%d, s%d, s%d" % (sB, sB, sHI))
    a.e("s_lshl_b32 s%d, s%d, 10" % (sB, sB))
    a.e("s_add_u32 s%d, s%d, 0x%x" % (sOST, sB, WS_OF))
    for i in range(4): a.e("v_mov_b32 %s, -1" % v(vQ + i))
    a.vmop("buffer_store_dwordx4 %s, %s, %s, s%d offen sc1" % (v(vQ, 4), v(vL16), srd(SWS), sOST), "oclr")
    a.e("v_mov_b32 %s, 1" % v(vONE))
    a.e("v_mov_b32 %s, 0" % v(vZERO))
    a.e("v_and_b32 %s, 31, v0" % v(vGA))
    a.e("v_lshlrev_b32 %s, 2, %s" % (v(vGA), v(vGA)))

def collect(fn):
    t = Asm(); t.marks = {}
    def vmop(s_, tag):
        t.e(s_); t.marks[len(t.l) - 1] = tag
    t.vmop = vmop
    fn(t)
    return [(x, t.marks.get(i)) for i, x in enumerate(t.l)]
def put(a, items):
    for x, tag in items:
        if tag: a.vmop(x, tag)
        else: a.e(x)

def setup_ones(a):
    a.e("s_mov_b32 s%d, 0x110000" % sA)
    a.e("s_mov_b32 s%d, 0x110000" % sB)
    a.e("v_mov_b32 v3, 0x3f803f80")
    a.e("v_cndmask_b32 %s, 0, v3, %s" % (v(vV1L), sp(sA)))
    for i in range(1, 4): a.e("v_mov_b32 %s, %s" % (v(vV1L + i), v(vV1L)))
    for i in range(16): a.e("v_mov_b32 %s, %s" % (v(vV + i), v(vV1L)))

def setup_attn(a):
    srd_words(a, [SWD, SWO, SOUT])
    a.e("s_lshl_b32 s%d, s%d, 2" % (sA, sG))
    a.e("s_add_u32 s%d, s%d, s%d" % (sA, sA, sLO))
    a.e("s_mul_i32 s%d, s%d, 112" % (sB, sA))
    a.e("s_lshl_b32 s%d, s%d, 3" % (sC, sM))
    a.e("s_add_u32 s%d, s%d, s%d" % (sB, sB, sC))
    a.e("s_lshl_b32 s%d, s%d, 2" % (sC, sHI))
    a.e("s_add_u32 s%d, s%d, s%d" % (sB, sB, sC))
    a.e("s_and_b32 s%d, s%d, 1" % (sC, sLO))
    a.e("s_lshl_b32 s%d, s%d, 1" % (sC, sC))
    a.e("s_add_u32 s%d, s%d, s%d" % (sB, sB, sC))
    a.e("s_lshl_b32 s%d, s%d, 10" % (sB, sB))
    a.e("s_add_u32 s%d, s%d, 0x%x" % (sHST, sB, WS_HF))
    a.e("s_mul_i32 s%d, s%d, %d" % (sC, sC, 112 * 1024))
    a.e("s_sub_u32 s%d, %d, s%d" % (sC, 112 * 1024, sC))
    a.e("s_add_u32 s%d, s%d, s%d" % (sHST2, sHST, sC))
    a.e("v_bfe_u32 v2, v0, 2, 2")
    a.e("v_lshrrev_b32 v3, 5, v0")
    a.e("v_lshl_add_u32 v2, v3, 2, v2")
    a.e("v_lshlrev_b32 v2, 6, v2")
    a.e("v_bfe_u32 v3, v0, 4, 1")
    a.e("v_lshl_add_u32 v2, v3, 5, v2")
    a.e("v_and_b32 v3, 3, v0")
    a.e("v_lshl_add_u32 v2, v3, 3, v2")
    a.e("s_lshr_b32 s%d, s%d, 1" % (sA, sW))
    a.e("s_lshl_b32 s%d, s%d, 11" % (sA, sA))
    a.e("v_add_u32 %s, s%d, v2" % (v(vWDA), sA))
    a.e("v_add_u32 %s, 0x%x, %s" % (v(vKVA), L_KV, v(vL16)))
    a.e("v_add_u32 %s, 0x%x, %s" % (v(vKVB), L_KV + 0x4000, v(vL16)))
    a.e("v_bfe_u32 v2, v0, 2, 3")
    a.e("v_lshlrev_b32 v2, 10, v2")
    a.e("v_lshrrev_b32 v3, 5, v0")
    a.e("v_lshl_add_u32 v2, v3, 6, v2")
    a.e("v_and_b32 v3, 3, v0")
    a.e("v_lshl_add_u32 v2, v3, 4, v2")
    a.e("s_lshl_b32 s%d, s%d, 7" % (sB, sCB))
    a.e("v_add_u32 %s, s%d, v2" % (v(vWDV), sB))
    a.e("v_min_u32 v2, 13, v0")
    a.e("v_lshlrev_b32 v2, 7, v2")
    a.e("s_lshr_b32 s%d, s%d, 1" % (sA, sT))
    a.e("s_lshl_b32 s%d, s%d, 11" % (sA, sA))
    a.e("s_add_u32 s%d, s%d, 0x%x" % (sA, sA, WS_HFLAG))
    a.e("v_add_u32 %s, s%d, v2" % (v(vFLA), sA))
    a.e("s_lshl_b32 s%d, s%d, 1" % (sA, sT))
    a.e("s_and_b32 s%d, s%d, 1" % (sB, sW))
    a.e("s_add_u32 s%d, s%d, s%d" % (sA, sA, sB))
    a.e("s_lshl_b32 s%d, s%d, 15" % (sB, sA))
    a.e("s_lshr_b32 s%d, s%d, 1" % (sKQ, sW))
    if Opt.kqx == 2:
        a.e("s_and_b32 s%d, s%d, 2" % (sKQ, sW))
        a.e("s_add_u32 s%d, s%d, s%d" % (sKQ, sKQ, sHI))
    if Opt.kqx == 1:
        a.e("s_lshl_b32 s%d, s%d, 1" % (sC, sCB))
        a.e("s_and_b32 s%d, s%d, 2" % (sC, sC))
        a.e("s_xor_b32 s%d, s%d, s%d" % (sKQ, sKQ, sC))
    a.e("s_lshl_b32 s%d, s%d, 13" % (sC, sKQ))
    a.e("s_add_u32 s%d, s%d, s%d" % (sB, sB, sC))
    a.e("s_add_u32 s%d, s%d, 0x%x" % (sOLD, sB, WS_OF))
    a.e("v_and_b32 v2, 31, v0")
    a.e("v_lshrrev_b32 v3, 5, v0")
    a.e("v_and_b32 v4, 7, v0")
    a.e("v_xor_b32 v3, v3, v4")
    a.e("v_lshlrev_b32 v3, 4, v3")
    a.e("v_lshl_add_u32 v3, v2, 8, v3")
    a.e("s_and_b32 s%d, s%d, 1" % (sB, sW))
    a.e("s_lshl_b32 s%d, s%d, 15" % (sB, sB))
    a.e("s_lshr_b32 s%d, s%d, 1" % (sC, sW))
    a.e("s_lshl_b32 s%d, s%d, 13" % (sD, sC))
    a.e("s_add_u32 s%d, s%d, s%d" % (sOUTO, sD, sB))
    a.e("s_add_u32 s%d, s%d, 0x%x" % (sD, sOUTO, L_RED))
    a.e("v_add_u32 %s, s%d, v3" % (v(vAW0), sD))
    a.e("v_lshrrev_b32 v2, 3, v0")
    a.e("v_lshlrev_b32 v3, 1, v4")
    a.e("v_xor_b32 v3, v3, v2")
    a.e("v_lshlrev_b32 v3, 4, v3")
    a.e("v_lshl_add_u32 v3, v2, 8, v3")
    a.e("s_lshl_b32 s%d, s%d, 11" % (sD, sC))
    a.e("s_add_u32 s%d, s%d, s%d" % (sD, sD, sB))
    a.e("s_add_u32 s%d, s%d, 0x%x" % (sD, sD, L_RED))
    a.e("v_add_u32 %s, s%d, v3" % (v(vAR0), sD))
    a.e("v_lshlrev_b32 v4, 4, v4")
    a.e("v_lshl_add_u32 %s, v2, 10, v4" % v(vOUTA))
    a.e("s_lshl_b32 s%d, s%d, 16" % (sC, sT))
    a.e("s_add_u32 s%d, s%d, s%d" % (sOUTO, sOUTO, sC))
    a.e("s_lshl_b32 s%d, s%d, 7" % (sC, sCB))
    a.e("s_add_u32 s%d, s%d, s%d" % (sOUTO, sOUTO, sC))
    a.e("v_mov_b32 %s, 0xdddd" % v(vIDX))
    a.e("v_lshrrev_b32 v2, 4, v0")
    a.e("v_lshl_add_u32 %s, v2, 8, %s" % (v(vHA), v(vL16)))
    for i in range(16): a.e("v_mov_b32 %s, 0" % v(vO + i))
    for i in range(32): a.e("v_mov_b32 %s, 0" % v(vD + i))
    c0 = -2.0 * math.sqrt(2.0 / math.pi) * math.log2(math.e)
    a.e("v_mov_b32 %s, 0x%x" % (v(vC0), f2u(c0)))
    a.e("v_mov_b32 %s, 0x%x" % (v(vC0 + 1), f2u(c0 * 0.044715)))

def kv_first_loads(a, quartet=False):
    it = []
    for o in (range(0, 16384, 4096) if quartet else range(0, 16384, 8192)):
        b = sWH if quartet else sWK
        it.append(("s_add_u32 m0, s%d, 0x%x\ns_add_u32 s%d, s%d, 0x%x\nbuffer_load_dwordx4 %s, %s, s%d offen sc1 lds"
                   % (b, L_KV + o, sA, b, o, v(vL16), srd(SKV), sA), "kv%d" % (o >> 13)))
    it.append(("s_mov_b32 s%d, 0x%x\nbuffer_load_dwordx4 %s, %s, %s, s%d offen sc1"
               % (sA, 63 * 2048, v(vK0, 4), v(vL16), srd(SKV), sA), "k0"))
    it.append(("s_mov_b64 exec, %s\nbuffer_load_dwordx4 %s, %s, %s, 0 offen offset:%d sc1\ns_mov_b64 exec, -1"
               % (sp(sVM), v(vV1L, 4), v(vL16), srd(SKV), 1024 + 256), "k0"))
    it.append(("s_lshl_b32 s%d, s%d, 2\ns_add_u32 s%d, s%d, s%d\ns_lshl_b32 s%d, s%d, 7\ns_add_u32 s%d, s%d, 0x%x\n"
               "buffer_load_dword %s, %s, %s, s%d offen sc1"
               % (sA, sG, sA, sA, sLO, sA, sA, sA, sA, WS_G, v(vGP), v(vGA), srd(SWS), sA), "k0"))
    it.append(("s_lshl_b32 s%d, s%d, 1\ns_and_b32 s%d, s%d, 1\ns_add_u32 s%d, s%d, s%d\ns_lshl_b32 s%d, s%d, 7\ns_add_u32 s%d, s%d, 0x%x\n"
               "buffer_load_dword %s, %s, %s, s%d offen sc1"
               % (sA, sT, sB, sW, sA, sA, sB, sA, sA, sA, sA, WS_G, v(vGC), v(vGA), srd(SWS), sA), "k0"))
    return it

def spin_counter(a, name, first_loaded, wave=0):
    a.e("s_cmp_lg_u32 s%d, %d" % (sW, wave))
    a.e("s_cbranch_scc1 L_%s_done" % name)
    a.e("s_mov_b32 s%d, 0x4000" % sB)
    if first_loaded: a.e("s_branch L_%s_chk" % name)
    a.lab("L_%s_re" % name)
    a.e("buffer_load_dword %s, off, %s, 0 sc1" % (v(vPOLL), srd(SDBG)))
    a.e("s_waitcnt vmcnt(0)")
    a.lab("L_%s_chk" % name)
    a.e("v_readfirstlane_b32 s%d, %s" % (sA, v(vPOLL)))
    a.e("s_cmp_ge_u32 s%d, 32" % sA)
    a.e("s_cbranch_scc1 L_%s_done" % name)
    a.e("s_sleep 4")
    a.e("s_sub_u32 s%d, s%d, 1" % (sB, sB))
    a.e("s_cmp_lg_u32 s%d, 0" % sB)
    a.e("s_cbranch_scc1 L_%s_re" % name)
    a.lab("L_%s_done" % name)

def phase1_F(a):
    SCHED = {1: ["01423567", "10253467", "23016457", "32104756"],
             2: ["02134657", "01324576", "10243567", "10235467"],
             3: ["01324657", "01243576", "12035467", "20134567"],
             5: ["01243567", "10325467", "23014657", "32104576"],
             6: ["01243567", "10325467", "01234657", "10324576"],
             7: ["01234567", "10235476", "01234567", "10235476"],
             8: ["01234567", "10243657", "01234567", "10243657"],
             4: ["02143657", "10325476", "02143657", "10325476"]}
    tabs = SCHED[Opt.sched] if Opt.sched else ["".join(str(c ^ (p & Opt.xmask)) for c in range(8)) for p in range(4)]
    for t_ in tabs: assert sorted(t_) == list("01234567")
    num = [int(t_[::-1], 16) for t_ in tabs]
    def table(a):
        a.e("s_add_u32 s%d, s%d, s%d" % (sA, sG, sHP))
        a.e("s_mov_b32 s%d, 0x%x" % (sXP, num[0]))
        a.e("s_mov_b32 s%d, 0x%x" % (sB, num[2]))
        a.e("s_bitcmp1_b32 s%d, 0" % sA)
        a.e("s_cselect_b32 s%d, 0x%x, s%d" % (sXP, num[1], sXP))
        a.e("s_cselect_b32 s%d, 0x%x, s%d" % (sB, num[3], sB))
        a.e("s_bitcmp1_b32 s%d, 1" % sA)
        a.e("s_cselect_b32 s%d, s%d, s%d" % (sXP, sB, sXP))
        if Opt.ghx:
            a.e("s_bitcmp1_b32 s%d, 3" % sG)
            a.e("s_cselect_b32 s%d, 0x44444444, 0" % sB)
            a.e("s_xor_b32 s%d, s%d, s%d" % (sXP, sXP, sB))
    fo, fw = {"0000": (0, 0), "0101": (0, 1), "0011": (1, 1), "0123": (0, 2)}["".join(t_[0] for t_ in tabs)]
    a.e("s_add_u32 s%d, s%d, s%d" % (sA, sG, sHP))
    a.e("s_bfe_u32 s%d, s%d, 0x%x" % (sCH, sA, fw << 16 | fo))
    if Opt.ghx: a.e("s_lshl2_add_u32 s%d, s%d, s%d" % (sCH, sD, sCH))
    a.e("s_and_b32 s%d, s%d, 0xc00" % (sWH, sWK))
    a.e("v_and_b32 %s, 0xff, v0" % v(vTID))

    def wvoff(a):
        a.e("v_lshrrev_b32 v2, 4, %s" % v(vTID))
        a.e("v_lshrrev_b32 v3, 5, %s" % v(vTID))
        a.e("v_bfi_b32 v3, 3, v2, v3")
        a.e("v_lshlrev_b32 v3, 1, v3")
        a.e("v_xor_b32 v3, v3, %s" % v(vTID))
        a.e("v_and_b32 v3, 15, v3")
        a.e("s_lshl_b32 s%d, s%d, 8" % (sA, sM))
        a.e("v_lshl_add_u32 v3, v3, 4, s%d" % sA)
        a.e("v_mul_u32_u24 v2, 3584, v2")
        a.e("v_add_u32 %s, v2, v3" % v(vDG))
    def qvoff(a):
        a.e("v_lshrrev_b32 v2, 4, %s" % v(vTID))
        a.e("v_and_b32 v2, 2, v2")
        a.e("v_xor_b32 v2, v2, %s" % v(vTID))
        a.e("v_and_b32 v2, 3, v2")
        a.e("s_lshl_b32 s%d, s%d, 6" % (sA, sHP))
        a.e("v_lshl_add_u32 v2, v2, 4, s%d" % sA)
        a.e("v_lshrrev_b32 v3, 2, %s" % v(vTID))
        a.e("v_lshl_add_u32 %s, v3, 10, v2" % v(vDQ))
    def stouch(a):
        if (Opt.diag or Opt.probe >= 0) and not Opt.klate: a.e("s_load_dwordx2 %s, s[0:1], 32" % sp(SWO))
        if not Opt.stch: return
        a.e("s_lshr_b32 s%d, s%d, 2" % (sA, sW))
        if Opt.ghx: a.e("s_lshl2_add_u32 s%d, s%d, s%d" % (sA, sD, sA))
        a.e("s_lshl_b32 s%d, s%d, 6" % (sA, sA))
        a.e("s_and_b32 s%d, s%d, 7" % (sB, sG))
        a.e("s_add_u32 s%d, s%d, s%d" % (sA, sA, sB))
        a.e("s_mul_i32 s%d, s%d, 28" % (sA, sA))
        a.e("s_bfe_u32 s%d, s%d, 0x10001" % (sB, sW))
        a.e("s_lshl1_add_u32 s%d, s%d, s%d" % (sB, sM, sB))
        a.e("s_add_u32 s%d, s%d, s%d" % (sA, sA, sB))
        a.e("s_lshl_b32 s%d, s%d, 7" % (sA, sA))
        a.e("s_bitcmp1_b32 s%d, 0" % sW)
        a.e("s_cselect_b64 %s, %s, %s" % (sp(SWKV), sp(SWU), sp(SWG)))
        a.e("s_add_u32 s%d, s%d, s%d" % (SWKV, SWKV, sA))
        a.e("s_addc_u32 s%d, s%d, 0" % (SWKV + 1, SWKV + 1))
        for i in range(Opt.stch):
            a.e("s_load_dwordx2 %s, %s, 0x%x" % (sp(sTMPP), sp(SWKV), 128 * 3584 + i * 8 * 3584 + 60))
    def wsrd(a):
        srd_words(a, [SWG])
        a.e("s_mov_b64 %s, %s" % (sp(SWU + 2), sp(SWG + 2)))

    if Opt.hrot:
        ORDER = [("q", 0)] + [(t_, 2 * h_ + j) for h_ in range(2) for t_, j in (("x", 0), ("x", 1), ("g", 0), ("u", 0), ("g", 1), ("u", 1))]
    else:
        ORDER = [("q", 0)] + [("x", j) for j in range(4)] + [(t_, j) for j in range(4) for t_ in "gu"]
    def block(items):
        out = []; lastc = None; lastw = None
        for c, kind, j in items:
            s = c % 3; pre = []
            if c != lastc:
                if c: pre.append("s_bfe_u32 s%d, s%d, 0x%x" % (sCH, sXP, 0x30000 + 4 * c))
                lastc = c; lastw = None
            fam = "w" if kind in "gu" else kind
            rot = Opt.hrot and fam != "q"
            if lastw is None or lastw[0] != fam or (rot and lastw[1] >> 1 != j >> 1):
                pre.append({"q": "s_lshl_b32 s%d, s%d, 16" % (sOFFW, sCH), "x": "s_lshl_b32 s%d, s%d, 7" % (sOFFW, sCH),
                            "w": "s_mul_i32 s%d, s%d, %d" % (sOFFW, sCH, 64 * 3584)}[fam])
                if rot: pre.append("s_%s_u32 s%d, s%d, s%d" % ("sub" if j >> 1 else "add", sOFFW, sOFFW, sRX if fam == "x" else sRW))
                lastw = (fam, 0)
            if lastw[1] != j:
                pre.append("s_add_u32 s%d, s%d, 0x%x" % (sOFFW, sOFFW, (j - lastw[1]) * (0x8000 if fam == "x" else 16 * 3584)))
                lastw = (fam, j)
            m0c, vo, rs = {"q": (L_WQ + s * 4096, vDQ, SWQ), "x": (L_X + s * 16384 + j * 4096, vDX, SX),
                           "g": (L_G + s * 16384 + j * 4096, vDG, SWG), "u": (L_U + s * 16384 + j * 4096, vDG, SWU)}[kind]
            nt = " nt" if Opt.ntx & (1 if rs == SX else 2) else ""
            out.append(("s_add_u32 m0, s%d, 0x%x\n%s\nbuffer_load_dwordx4 %s, %s, s%d offen%s lds"
                        % ((sM0B + (j >> 1)) if rot else sWH, m0c, "\n".join(pre) or "s_nop 0", v(vo), srd(rs), sOFFW, nt), "c%d" % c))
        return out
    def part(c, role): return [(c, k_, j) for k_, j in ORDER if (k_ in "gu") == (role == "A")]

    def rdsetup(a):
        setup_rd(a)
        a.e("v_lshl_add_u32 %s, v3, 3, v2" % v(vWA))
        a.e("v_lshlrev_b32 %s, 8, %s" % (v(vWA), v(vWA)))
        a.e("v_lshl_add_u32 %s, v4, 3, %s" % (v(vWA), v(vWA)))
        a.e("v_and_b32 v5, 1, v3")
        a.e("v_lshl_add_u32 v2, v5, 2, v2")
        a.e("s_lshl_b32 s%d, s%d, 2" % (sA, sHI))
        a.e("s_and_b32 s%d, s%d, 1" % (sB, sLO))
        a.e("s_lshl_b32 s%d, s%d, 1" % (sB, sB))
        a.e("s_add_u32 s%d, s%d, s%d" % (sA, sA, sB))
        a.e("v_xor_b32 v2, s%d, v2" % sA)
        a.e("v_lshl_add_u32 %s, v2, 5, %s" % (v(vWA), v(vWA)))
        a.e("v_xor_b32 %s, 32, %s" % (v(vWA + 1), v(vWA)))
        a.e("v_add_u32 %s, 0x%x, %s" % (v(vWA + 2), L_U - L_G, v(vWA)))
        a.e("v_add_u32 %s, 0x%x, %s" % (v(vWA + 3), L_U - L_G, v(vWA + 1)))
        a.e("s_lshl_b32 s%d, s%d, 12" % (sA, sLO))
        a.e("s_add_u32 s%d, s%d, 0x%x" % (sA, sA, L_X))
        a.e("v_add_u32 %s, s%d, %s" % (v(vXA), sA, v(vXA)))
        a.e("v_xor_b32 %s, 0x1000, %s" % (v(vXA + 1), v(vXA)))
        a.e("v_xor_b32 %s, 64, %s" % (v(vXA + 2), v(vXA)))
        a.e("v_xor_b32 %s, 64, %s" % (v(vXA + 3), v(vXA + 1)))
        a.e("v_add_u32 %s, 0x%x, %s" % (v(vQA), L_WQ, v(vQA)))

    a.e("s_cmp_ge_u32 s%d, 4" % sW)
    a.e("s_cbranch_scc1 L_setB")
    late = collect(setup_oclr) + collect(setup_ones) + [("; later", None)] + collect(setup_attn)
    words = collect(lambda t: srd_words(t, [SWS, SKV, SDBG, SWD, SWO, SOUT]))
    late = [x for x in late if x not in words]
    oclr = [x for x in late if x[1] == "oclr"]
    if Opt.olate: late = [x for x in late if x[1] != "oclr"]
    else: oclr = []
    words += [("v_mov_b32 %s, 0" % v(r_), None) for r_ in (vGA, vWDV, vFLA, vHA, vOUTA)]
    st = collect(rdsetup) + words + late[:Opt.fillpre]
    cut = late.index(("; later", None)) if Opt.bidle else len(late)
    fills = {"A": late[Opt.fillpre:], "B": late[Opt.fillpre:max(cut, Opt.fillpre)]}
    idleB = late[max(cut, Opt.fillpre):]
    vms = {}
    wsrd(a); wvoff(a)
    a.e("s_waitcnt lgkmcnt(0)")
    a.stamp(2)
    if Opt.spos == 0: stouch(a)
    put(a, block(part(0, "A")))
    a.e("s_branch L_setA")
    vms["A"] = a.vm; a.vm = []
    a.lab("L_setB")
    srd_words(a, [SX]); xvoff(a, vTID)
    a.e("s_waitcnt lgkmcnt(0)")
    a.stamp(2)
    if Opt.spos == 0: stouch(a)
    put(a, block(part(0, "B")[1:]))
    srd_words(a, [SWQ]); qvoff(a)
    put(a, block(part(0, "B")[:1]))
    vms["B"] = a.vm
    for role in "BA":
        a.vm = vms[role]
        if role == "A": a.lab("L_setA")
        if Opt.spos == 1: stouch(a)
        table(a)
        setup_ids(a)
        if role == "A": srd_words(a, [SX, SWQ])
        else: wsrd(a)
        def touches():
            tm = sum(0xff << (8 * i) for i in range(4) if Opt.tch >> i & 1)
            setex = "s_bitcmp1_b32 s%d, 3\ns_cselect_b32 exec_lo, 0, 0x%x\ns_cselect_b32 exec_hi, 0x%x, 0" % (sG, tm, tm) if Opt.ghx \
                    else "s_mov_b32 exec_lo, 0x%x\ns_mov_b32 exec_hi, 0" % tm
            if Opt.tlb & 2 and role == "B":
                a.e("s_and_b32 s%d, s%d, 7" % (sA, sG))
                a.e("v_lshl_add_u32 v2, v0, 3, s%d" % sA)
                a.e("v_mul_u32_u24 v3, 3584, v2")
                a.e("s_and_b32 s%d, s%d, 1" % (sB, sW))
                a.e("s_lshl1_add_u32 s%d, s%d, s%d" % (sA, sM, sB))
                a.e("s_lshl_b32 s%d, s%d, 7" % (sA, sA))
                a.e(setex)
                a.e("s_cmp_ge_u32 s%d, 6" % sW)
                a.e("s_cbranch_scc1 L_tlbu")
                a.e("buffer_load_dword %s, v3, %s, s%d offen" % (v(vPOLL), srd(SWG), sA))
                a.e("s_branch L_tlbe")
                a.lab("L_tlbu")
                a.e("buffer_load_dword %s, v3, %s, s%d offen" % (v(vPOLL), srd(SWU), sA))
                a.lab("L_tlbe")
                a.e("s_mov_b64 exec, -1")
                a.vm.append("tlb")
            if Opt.tlb & 12 and role == "A":
                a.e("s_cmp_lg_u32 s%d, 0" % sW)
                a.e("s_cbranch_scc1 L_tlbx")
                a.e("s_and_b32 s%d, s%d, 7" % (sA, sG))
                a.e("v_lshl_add_u32 v2, v0, 3, s%d" % sA)
                a.e("v_lshlrev_b32 v3, 10, v2")
                a.e("s_lshl_b32 s%d, s%d, 6" % (sA, sHP))
                a.e(setex if Opt.tlb & 4 else "s_mov_b64 exec, 1")
                a.e("buffer_load_dword %s, v3, %s, s%d offen" % (v(vPOLL), srd(SWQ), sA))
                if not Opt.tlb & 8:
                    a.e("s_mov_b64 exec, -1")
                    a.lab("L_tlbx")
                    return
                a.e("s_branch L_tlby")
                a.lab("L_tlbx")
                a.e("s_bitcmp1_b32 s2, 0")
                a.e("s_cselect_b32 s%d, %d, %d" % (sB, Opt.xodd, Opt.xeven))
                a.e("s_and_b32 s%d, s%d, 3" % (sA, sHP))
                a.e("s_mul_i32 s%d, s%d, s%d" % (sA, sA, sB))
                a.e("s_lshl_b32 s%d, s%d, 7" % (sC, sG))
                a.e("s_add_u32 s%d, s%d, s%d" % (sA, sA, sC))
                a.e("v_add_lshl_u32 v3, v0, s%d, 10" % sA)
                a.e("s_lshr_b32 s%d, s%d, 3" % (sA, sG))
                a.e("s_lshl2_add_u32 s%d, s%d, s%d" % (sA, sA, sW) if Opt.ghx else "s_mov_b32 s%d, s%d" % (sA, sW))
                a.e("s_lshl_b32 s%d, s%d, 7" % (sA, sA))
                a.e("s_bitcmp1_b32 %d, s%d" % (Opt.tch if Opt.tlb & 8 else 0, sW))
                a.e("s_cselect_b32 s%d, s%d, 1" % (sB, sB))
                a.e("s_bfm_b64 exec, s%d, 0" % sB)
                a.e("buffer_load_dword %s, v3, %s, s%d offen" % (v(vPOLL), srd(SX), sA))
                a.lab("L_tlby")
                a.e("s_mov_b64 exec, -1")
                a.vm.append("tlb")
        if Opt.tpos == 0: touches()
        if Opt.startbar: a.e("s_barrier")
        npre = min(Opt.npre, 8) if role == "A" else 5
        pn = block(part(1, role)[:npre])
        rest = st + (collect(qvoff) + collect(lambda t: xvoff(t, vTID)) if role == "A" else collect(wvoff))
        gap = len(rest) // (npre + Opt.pregap) + 1
        if Opt.tpos == 2:
            put(a, pn); touches(); npre = 0
        if Opt.tpos == 3 and role == "B":
            put(a, pn); touches(); npre = 0
        for i in range(npre):
            put(a, pn[:1]); pn = pn[1:]
            put(a, rest[:gap]); rest = rest[gap:]
        put(a, rest)
        if Opt.tpos == 1 or (Opt.tpos == 3 and role == "A"): touches()
        a.e("s_mov_b64 vcc, %d" % (-1 if role == "A" else 0))
        if role == "A":
            a.waitvm("c0", lgkm=True)
        else:
            a.e("s_setprio 1")
            a.waitvm("c0", lgkm=True)
            a.e("s_branch L_k0")
        vms[role] = a.vm
    stream = part(1, "A")[min(Opt.npre, 8):] + [(c, k_, j) for c in range(2, 8) for k_, j in ORDER]
    qa = [int(x, 16) for x in Opt.qa]; qb = [int(x, 16) for x in Opt.qb]
    def take(n, cmax):
        m = 0
        while m < n and m < len(stream) and stream[m][0] <= cmax: m += 1
        r_ = stream[:m]; del stream[:m]
        return block(r_)
    a.lab("L_k0")
    a.vm = vms["A"]
    ool = Asm()
    def dmablock(name, role, items, wait=None):
        a.e("s_cbranch_vcc%s L_%s" % ("nz" if role == "A" else "z", name))
        if wait: a.waitvm(wait, lgkm=True)
        a.lab("L_%s_r" % name)
        ool.lab("L_%s" % name)
        ool.vm = a.vm if role == "A" else vms["B"]
        for it_ in items:
            put(ool, [it_])
            fp = Opt.fillper if role == "A" or not Opt.bidle else 2
            put(ool, fills[role][:fp]); fills[role] = fills[role][fp:]
        if name in ("d7", "e7"): put(ool, fills[role]); fills[role] = []
        if wait: ool.waitvm(wait, lgkm=True)
        if role == "B": vms["B"] = ool.vm
        ool.e("s_branch L_%s_r" % name)
    a.ool = ool.l

    def fr(k):
        b = vF1 + 36 * (k % 2)
        return dict(x=b, w=b + 16, q=b + 32)
    def reads(k):
        c, s = divmod(k, 2); f = fr(k); sl = c % 3
        wo = sl * 16384 + s * 8192
        W = lambda i: [rdtr(f['w'] + 4 * i, vWA + i, wo), rdtr(f['w'] + 4 * i + 2, vWA + i, wo + 1024)]
        X = [rd128(f['x'] + 4 * b, vXA + 2 * s + (b >> 1), sl * 16384 + (b & 1) * 2048) for b in range(4)]
        return W(0) + X + W(2) + W(1) + W(3) + [rdtr(f['q'], vQA, sl * 4096 + s * 2048), rdtr(f['q'] + 2, vQA, sl * 4096 + s * 2048 + 256)]
    a.e("s_barrier")
    a.stamp(3)
    if Opt.kdiag or Opt.probe >= 18:
        kstamp(a, 2)
        a.e("s_waitcnt lgkmcnt(0)")
    if Opt.kal: a.l.append(".p2align 3")
    if Opt.kal == 2: a.e("s_nop 0")
    al = (lambda: a.l.append(".p2align 3")) if Opt.kal == 3 else (lambda: None)
    for r in reads(0): a.e(r)
    if qa[0]: dmablock("d2", "A", take(qa[0], 2))
    for k in range(16):
        c, s = divmod(k, 2); f = fr(k)
        z = lambda x: None if k == 0 else x
        mf = []
        for n_, i in enumerate((0, 2, 1, 3)):
            for b in (range(4) if n_ % 2 == 0 else range(3, -1, -1)):
                d = vACC + 16 * b + 4 * i
                mf.append(mfma16(d, f['w'] + 4 * i, f['x'] + 4 * b, z(d)))
        for b in range(2): mf.append(mfma16(vAQ + 4 * b, f['q'], f['x'] + 4 * b, z(vAQ + 4 * b)))
        rds = reads(k + 1) if k < 15 else []
        if s == 0:
            a.e("s_waitcnt lgkmcnt(6)"); al()
            for i, m in enumerate(mf):
                if i == 8: a.e("s_waitcnt lgkmcnt(%d)" % (8 - Opt.kw0)); al()
                a.e(m)
                if Opt.kw0 and i == 7: continue
                ii = i - (1 if Opt.kw0 and i > 7 else 0)
                if ii < len(rds): a.e(rds[ii])
            continue
        a.e("s_waitcnt lgkmcnt(8)")
        for m in mf[:Opt.kb]: a.e(m)
        if c <= 5:
            dmablock("e%d" % (c + 2), "B", take(qb[c], c + 2), "c%d" % (c + 1))
            assert not any(x[0] <= c + 1 for x in stream)
        if c == 7:
            a.e("s_waitcnt lgkmcnt(0)")
        elif c == 6:
            a.e("s_waitcnt lgkmcnt(0)")
            a.e("s_cbranch_vccz L_st7")
            a.e("s_setprio 1")
            a.e("s_waitcnt vmcnt(0)")
            a.e("s_barrier")
            a.lab("L_st7")
        else:
            a.e("s_barrier")
        if c < 7 and ((Opt.kdiag == 1 and Opt.diag) or Opt.probe == 21 + c):
            kstamp(a, 3 + c)
            a.e("s_waitcnt lgkmcnt(0)")
        if c + 3 < 8:
            items = take(qa[c + 1], c + 3)
            dmablock("d%d" % (c + 3), "A", items)
        al()
        for i, m in enumerate(mf[Opt.kb:]):
            a.e(m)
            if i < len(rds): a.e(rds[i])
        if k == 11: assert not stream and not fills["A"] and not fills["B"]
        if k == 11:
            a.e("s_cbranch_vccnz L_st6")
            a.e("s_setprio 0")
            nm = next((i for i, x in enumerate(idleB) if "0xdddd" in x[0]), 0)
            a.e("s_cmp_lg_u32 s%d, 4" % sW)
            a.e("s_cbranch_scc1 L_nopoll")
            a.e("buffer_load_dword %s, off, %s, 0 sc1" % (v(vPOLL), srd(SDBG)))
            a.lab("L_nopoll")
            put(a, idleB[:nm]); idleB = idleB[nm:]
            a.wait0()
            spin_counter(a, "kvf", True, 4)
            a.e("s_barrier")
            put(a, kv_first_loads(a, True) + oclr + idleB)
            a.lab("L_st6")
    a.kvA = (kv_first_loads(a) + oclr)[2:]
    a.stamp(4)

def phase1_L(a):
    a.lab("L_light")
    a.vm = []
    if Opt.oddl: a.e("s_add_u32 s%d, s%d, 14" % (sM, sB))
    if Opt.klate:
        ptr_loads(a, ((SGATE, 72), (SWKV, 16), (SWV, 24)))
    else:
        a.e("s_waitcnt lgkmcnt(0)")
        ptr_loads(a, ((SWKV, 16), (SWV, 24), (SGATE, 72), (SWO, 32)))
    srd_words(a, [SWKV, SWV, SGATE, SX])
    xvoff(a, 0)
    a.e("v_and_b32 v2, 63, v0")
    a.e("v_lshlrev_b32 %s, 4, v2" % v(vL16))
    a.e("s_sub_u32 s%d, s%d, 14" % (sCNT, sM))
    a.e("s_lshl_b32 s%d, s%d, 16" % (sOLD, sCNT))
    a.e("s_lshl_b32 s%d, s%d, 13" % (sHST, sCNT))
    a.e("s_add_u32 s%d, s%d, s%d" % (sWH, sHST, sWK))
    a.e("s_xor_b32 s%d, s%d, 0x2000" % (sHST, sHST))
    a.e("s_add_u32 s%d, s%d, 0x2000" % (sA, sWK))
    a.e("s_waitcnt lgkmcnt(0)")
    a.stamp(2)
    def xdma(c, base, so):
        a.vmop("s_add_u32 m0, s%d, 0x%x\ns_nop 0\nbuffer_load_dwordx4 %s, %s, s%d offen offset:%d lds"
               % (base, LL_X + c * 16384 - c * 128, v(vDX), srd(SX), so, c * 128), "c%d" % c)
    def wdma(u):
        for t, rs in enumerate((SWKV, SWV)):
            a.vmop("s_add_u32 m0, s%d, 0x%x\ns_nop 0\nbuffer_load_dwordx4 %s, %s, s%d offen lds"
                   % (sWK, LL_W + t * 16384 + u * 8192, v(vL16), srd(rs), sA if u else sWK), "w")
    wdma(0)
    a.vmop("s_mov_b32 m0, s%d\ns_nop 0\nbuffer_load_dwordx4 %s, %s, 0 offen lds" % (sHST, v(vL16), srd(SGATE)), "w")
    for c in range(8):
        if c == 4: wdma(1)
        xdma(c, sWH, sOLD)
        if (c == 1 and Opt.lthr & 1) or (c == 3 and Opt.lthr & 2): a.e("s_waitcnt vmcnt(0)")
        if c in (1, 3, 5): a.e("s_barrier")
    setup_ids(a)
    srd_words(a, [SWQ])
    setup_rd(a)
    a.e("v_lshrrev_b32 v3, 5, v0")
    a.e("v_bfrev_b32 v5, v4")
    a.e("v_lshrrev_b32 v5, 30, v5")
    a.e("s_cmp_ge_u32 s%d, 2" % sLO)
    a.e("s_cselect_b64 vcc, -1, 0")
    a.e("v_cndmask_b32 v4, v5, v4, vcc")
    a.e("v_lshl_add_u32 %s, v3, 3, v2" % v(vWA))
    a.e("v_lshlrev_b32 %s, 5, %s" % (v(vWA), v(vWA)))
    a.e("v_lshl_add_u32 %s, v4, 3, %s" % (v(vWA), v(vWA)))
    a.e("s_lshr_b32 s%d, s%d, 1" % (sA, sLO))
    a.e("s_lshl_b32 s%d, s%d, 14" % (sA, sA))
    a.e("s_add_u32 s%d, s%d, 0x%x" % (sA, sA, LL_W))
    a.e("v_add_u32 %s, s%d, %s" % (v(vWA), sA, v(vWA)))
    a.e("v_lshl_add_u32 %s, v3, 4, s%d" % (v(vWA + 1), sHST))
    a.e("s_and_b32 s%d, s%d, 1" % (sA, sLO))
    a.e("s_lshl_b32 s%d, s%d, 1" % (sB, sCNT))
    a.e("s_add_u32 s%d, s%d, s%d" % (sCNT, sA, sB))
    a.e("s_lshl_b32 s%d, s%d, 12" % (sA, sCNT))
    a.e("v_and_b32 v2, 31, v0")
    a.e("v_lshrrev_b32 v4, 1, v0")
    a.e("v_lshlrev_b32 v5, 1, v0")
    a.e("v_bfi_b32 v4, 4, v4, v5")
    a.e("v_bfi_b32 v4, 12, v4, v2")
    a.e("v_cndmask_b32 v2, v2, v4, vcc")
    a.e("v_bfe_u32 v4, v2, 1, 3")
    a.e("v_xor_b32 v4, v4, v3")
    a.e("v_lshlrev_b32 v4, 4, v4")
    a.e("v_lshl_add_u32 v4, v2, 7, v4")
    a.e("v_add_u32 %s, s%d, v4" % (v(vLX), sA))
    for s in range(1, 4): a.e("v_xor_b32 %s, %d, %s" % (v(vLX + s), 32 * s, v(vLX)))
    for s in range(4): a.e("v_add_u32 %s, 0x10000, %s" % (v(vLX + 4 + s), v(vLX + s)))
    a.e("s_waitcnt lgkmcnt(0)")
    setup_oclr(a)
    vm0 = list(a.vm)
    a.e("s_cmp_lg_u32 s%d, 0" % sHI)
    a.e("s_cbranch_scc1 L_lB")
    a.e("s_not_b64 %s, %s" % (sp(sTMPP), sp(sVM)))
    a.e("s_cmp_ge_u32 s%d, 2" % sLO)
    a.e("s_cbranch_scc1 L_lV")
    def chain(kind):
        a.vm = list(vm0)
        def fr(k):
            b = vFR + 8 * (k % 4)
            return b, b + 4
        def reads(k):
            c, s = divmod(k, 4); x, w = fr(k)
            r = [rd128(x, vLX + s + 4 * (c >> 2), (c & 3) * 16384), rdtr(w, vWA, k * 512), rdtr(w + 2, vWA, k * 512 + 128)]
            if kind == "K":
                r += ["s_mov_b64 exec, %s" % sp(sTMPP), rd128(w, vWA + 1, k * 32), "s_mov_b64 exec, -1"]
            return r
        for q in range(4):
            a.waitvm("c%d" % (2 * q + 1))
            a.e("s_barrier")
            nr = 4 if kind == "K" else 3
            for k in range(8 * q, 8 * q + 2):
                for r in reads(k): a.e(r)
            for k in range(8 * q, 8 * q + 8):
                if k + 2 < 8 * q + 8:
                    for r in reads(k + 2): a.e(r)
                left = min(2, 8 * q + 7 - k)
                a.e("s_waitcnt lgkmcnt(%d)" % (left * nr))
                x, w = fr(k)
                cc = None if k == 0 else vACC
                a.e(mfma(vACC, w, x, cc) if kind == "K" else mfma(vACC, x, w, cc))
        a.e("s_lshl_b32 s%d, s%d, 2" % (sA, sG))
        a.e("s_add_u32 s%d, s%d, s%d" % (sA, sA, sCNT))
        a.e("s_nop 12")
        if kind == "K":
            a.e("s_mov_b32 s%d, 0x%x" % (sC, f2u(0.25 * math.log2(math.e))))
            for i in range(8): a.e("v_mul_f32 %s, s%d, %s" % (v(vACC + i), sC, v(vACC + i)))
            a.e("v_mul_f32 %s, 0x%x, %s" % (v(vACC + 8), f2u(-math.log2(math.e)), v(vACC + 8)))
            a.e("v_exp_f32 %s, %s" % (v(vACC + 8), v(vACC + 8)))
            for i in range(4): a.e("v_cvt_pk_bf16_f32 %s, %s, %s" % (v(vFR + i), v(vACC + 2 * i), v(vACC + 2 * i + 1)))
            a.e("v_add_f32 %s, 1.0, %s" % (v(vACC + 8), v(vACC + 8)))
            a.e("v_rcp_f32 %s, %s" % (v(vACC + 8), v(vACC + 8)))
            a.e("s_add_u32 s%d, s%d, 63" % (sB, sA))
            a.e("s_and_b32 s%d, s%d, 63" % (sB, sB))
            a.e("s_lshl_b32 s%d, s%d, 11" % (sB, sB))
            a.e("buffer_store_dwordx4 %s, %s, %s, s%d offen sc1" % (v(vFR, 4), v(vL16), srd(SKV), sB))
            a.e("s_lshl_b32 s%d, s%d, 7" % (sB, sA))
            a.e("s_add_u32 s%d, s%d, 0x%x" % (sB, sB, WS_G))
            a.e("s_mov_b32 exec_hi, 0")
            a.e("buffer_store_dword %s, %s, %s, s%d offen sc1" % (v(vACC + 8), v(vGA), srd(SWS), sB))
            a.e("s_mov_b64 exec, -1")
        else:
            for i in range(8): a.e("v_cvt_pk_bf16_f32 %s, %s, %s" % (v(vFR + i), v(vACC + 2 * i), v(vACC + 2 * i + 1)))
            a.e("v_bfe_u32 v2, v0, 4, 1")
            a.e("v_add_u32 v2, s%d, v2" % sA)
            a.e("v_and_b32 v2, 63, v2")
            a.e("v_lshl_add_u32 v2, v2, 11, %s" % v(vL16))
            for i in range(4): a.e("v_cndmask_b32 %s, %s, %s, %s" % (v(vFR + i), v(vFR + 4 + i), v(vFR + i), sp(sVM)))
            a.e("buffer_store_dwordx4 %s, v2, %s, 0 offen offset:1024 sc1" % (v(vFR, 4), srd(SKV)))
        a.e("s_branch L_lJ")
    chain("K")
    a.lab("L_lV")
    chain("V")
    a.lab("L_lB")
    a.vm = list(vm0)
    a.e("s_cmp_lg_u32 s%d, 14" % sM)
    a.e("s_cbranch_scc1 L_nozf")
    a.e("s_cmp_lg_u32 s%d, 4" % sW)
    a.e("s_cbranch_scc1 L_nozf")
    a.e("v_lshlrev_b32 v2, 7, v0")
    a.e("s_lshl_b32 s%d, s%d, 11" % (sA, sG))
    a.e("s_add_u32 s%d, s%d, 0x%x" % (sA, sA, WS_HFLAG))
    a.e("s_mov_b64 exec, 0xffff")
    a.e("buffer_store_dword %s, v2, %s, s%d offen sc1" % (v(vZERO), srd(SWS), sA))
    a.e("s_mov_b64 exec, -1")
    a.lab("L_nozf")
    for q in range(4):
        a.waitvm("c%d" % (2 * q + 1))
        a.e("s_barrier")
    a.lab("L_lJ")
    a.e("v_lshrrev_b32 v3, 2, v0")
    a.e("v_lshlrev_b32 v3, 10, v3")
    a.e("v_lshrrev_b32 v4, 5, v0")
    a.e("v_lshlrev_b32 v4, 1, v4")
    a.e("v_xor_b32 v4, v4, v0")
    a.e("v_and_b32 v4, 3, v4")
    a.e("v_lshl_add_u32 v3, v4, 4, v3")
    a.e("s_lshl_b32 s%d, s%d, 14" % (sA, sW))
    a.e("s_lshl_b32 s%d, s%d, 6" % (sB, sHP))
    a.e("s_add_u32 s%d, s%d, s%d" % (sA, sA, sB))
    a.e("v_add_u32 %s, s%d, v3" % (v(vDQ), sA))
    a.e("s_xor_b32 s%d, s%d, 0x2000" % (sWH, sWH))
    a.e("s_xor_b32 s%d, s%d, 0x10000" % (sOLD, sOLD))
    a.wait0(lgkm=True)
    a.e("s_barrier")
    a.e("s_cmp_lg_u32 s%d, 0" % sW)
    a.e("s_cbranch_scc1 L_noat")
    a.e("s_mov_b64 exec, 1")
    a.e("buffer_atomic_add %s, off, %s, 0 sc1" % (v(vONE), srd(SDBG)))
    a.e("s_mov_b64 exec, -1")
    a.lab("L_noat")
    a.stamp(3)
    for c in range(8): xdma(c, sWH, sOLD)
    for p in range(4):
        a.e("s_add_u32 m0, s%d, 0x%x" % (sWK, LL_WQ + p * 8192))
        a.e("s_mov_b32 s%d, 0x%x" % (sA, p * 128 * 1024))
        a.e("buffer_load_dwordx4 %s, %s, s%d offen lds" % (v(vDQ), srd(SWQ), sA))
    setup_ones(a)
    setup_attn(a)
    if Opt.touch & 2:
        a.e("s_lshl_b32 s%d, s%d, 1" % (sA, sG))
        a.e("s_add_u32 s%d, s%d, s%d" % (sA, sA, sM))
        a.e("s_sub_u32 s%d, s%d, 14" % (sA, sA))
        a.e("s_lshl_b32 s%d, s%d, 3" % (sA, sA))
        a.e("s_add_u32 s%d, s%d, s%d" % (sA, sA, sW))
        a.e("v_lshlrev_b32 v2, 15, v0")
        a.e("s_lshl_b32 s%d, s%d, 7" % (sA, sA))
        a.e("buffer_load_dword %s, v2, %s, s%d offen" % (v(vPOLL), srd(SWO), sA))
        a.e("buffer_load_dword %s, v2, %s, s%d offen" % (v(vPOLL), srd(SWD), sA))
    a.e("s_lshl_b32 s%d, s%d, 12" % (sA, sLO))
    a.e("v_add_u32 %s, s%d, %s" % (v(vXA), sA, v(vXA)))
    a.e("v_xor_b32 %s, 64, %s" % (v(vXA + 1), v(vXA)))
    a.e("v_add_u32 %s, 0x10000, %s" % (v(vXA + 2), v(vXA)))
    a.e("v_add_u32 %s, 0x10000, %s" % (v(vXA + 3), v(vXA + 1)))
    a.e("v_add_u32 %s, 0x%x, %s" % (v(vQA), LL_WQ, v(vQA)))
    a.e("s_waitcnt vmcnt(%d)" % (2 if Opt.touch & 2 else 0))
    a.e("s_barrier")
    def fr(k): return vFR + 12 * (k % 3)
    def reads(k):
        c, s = divmod(k, 2); f = fr(k)
        return [rd128(f + 4 * b, vXA + s + 2 * (c >> 2), (c & 3) * 16384 + b * 2048) for b in range(2)] + \
               [rdtr(f + 8, vQA, k * 2048), rdtr(f + 10, vQA, k * 2048 + 256)]
    for k in range(2):
        for r in reads(k): a.e(r)
    for k in range(16):
        a.e("s_waitcnt lgkmcnt(%d)" % (4 * min(1, 15 - k)))
        for b in range(2): a.e(mfma16(vAQ + 4 * b, fr(k) + 8, fr(k) + 4 * b, None if k == 0 else vAQ + 4 * b))
        if k + 2 < 16:
            for r in reads(k + 2): a.e(r)
    spin_counter(a, "kvl", False)
    a.e("s_barrier")
    for s, t in kv_first_loads(a): a.e(s)
    a.wait0()
    a.stamp(4)
    a.e("s_branch L_join")

def gelu_tile(a, ti, scalar=False):
    acc = vACC + 16 * ti
    t = vFR
    o = vFR + 8 + 4 * ti
    pk = lambda r: v(r, 2)
    if scalar:
        for i in range(8): a.e("v_mul_f32 %s, %s, %s" % (v(t + i), v(acc + i), v(acc + i)))
        for i in range(8): a.e("v_fma_f32 %s, %s, %s, %s" % (v(t + i), v(t + i), v(vC0 + 1), v(vC0)))
        for i in range(8): a.e("v_mul_f32 %s, %s, %s" % (v(t + i), v(t + i), v(acc + i)))
        for i in range(8): a.e("v_exp_f32 %s, %s" % (v(t + i), v(t + i)))
        for i in range(8): a.e("v_add_f32 %s, 1.0, %s" % (v(t + i), v(t + i)))
        for i in range(8): a.e("v_rcp_f32 %s, %s" % (v(t + i), v(t + i)))
        for i in range(8): a.e("v_mul_f32 %s, %s, %s" % (v(acc + i), v(acc + i), v(acc + 8 + i)))
        for i in range(8): a.e("v_mul_f32 %s, %s, %s" % (v(acc + i), v(acc + i), v(t + i)))
    R4, R8 = (range(0), range(0)) if scalar else (range(4), range(8))
    for i in R4: a.e("v_pk_mul_f32 %s, %s, %s" % (pk(t + 2 * i), pk(acc + 2 * i), pk(acc + 2 * i)))
    for i in R4: a.e("v_pk_fma_f32 %s, %s, %s, %s op_sel:[0,1,0] op_sel_hi:[1,1,0]" % (pk(t + 2 * i), pk(t + 2 * i), pk(vC0), pk(vC0)))
    for i in R4: a.e("v_pk_mul_f32 %s, %s, %s" % (pk(t + 2 * i), pk(t + 2 * i), pk(acc + 2 * i)))
    for i in R8: a.e("v_exp_f32 %s, %s" % (v(t + i), v(t + i)))
    for i in R4: a.e("v_pk_add_f32 %s, %s, 1.0 op_sel_hi:[1,0]" % (pk(t + 2 * i), pk(t + 2 * i)))
    for i in R8: a.e("v_rcp_f32 %s, %s" % (v(t + i), v(t + i)))
    for i in R4: a.e("v_pk_mul_f32 %s, %s, %s" % (pk(acc + 2 * i), pk(acc + 2 * i), pk(acc + 8 + 2 * i)))
    for i in R4: a.e("v_pk_mul_f32 %s, %s, %s" % (pk(acc + 2 * i), pk(acc + 2 * i), pk(t + 2 * i)))
    for i in range(4): a.e("v_cvt_pk_bf16_f32 %s, %s, %s" % (v(o + i), v(acc + 2 * i), v(acc + 2 * i + 1)))
    a.vmop("buffer_store_dwordx4 %s, %s, %s, s%d offen offset:%d sc1" % (v(o, 4), v(vHA), srd(SWS), sHST2 if ti >> 1 else sHST, (ti & 1) * 256), "hst")

def Yseg(hset, toggle=False, first=False, extra=False, last=False):
    out = []
    for t in range(2):
        pos = [int(x, 17) for x in (Opt.ypos0 if hset is None else Opt.ypos2 if extra else Opt.ypos1)]
        if last and t == 1: pos = [pos[0], 0, 11, pos[1]]
        S, Sn = vS + 16 * t, vS + 16 * (1 - t)
        K, V0, V1 = vKF + 4 * t, vV + 8 * t, vV + 8 * t + 4
        for e in range(1, 17):
            out.append("v_exp_f32 %s, %s" % (v(S + e - 1), v(S + e - 1)))
            if e == pos[0] and not (first and t == 0): out.append(smfmac(vO, V1, Sn + 8))
            if e == pos[1]: out.append(mfma(Sn, K, vQ, None))
            if e == pos[2]: out.append(smfmac(vO, V0, S))
            if hset is not None:
                if e == 13 and t == 1 and toggle:
                    out.append("v_xor_b32 %s, 0x4000, %s" % (v(vKVB), v(vKVB)))
                if e == pos[3]: out.append(mfma(vD + 16 * t, vWF + 4 * t, vH + 4 * hset, vD + 16 * t))
                if extra and e == pos[4]: out.append(mfma(vD + 16 * t, vFR + 16 + 4 * t, vH + 16 + 4 * hset, vD + 16 * t))
    return out

def kv_reads(off, vKVA=vKVA):
    r = [rd128(vKF, vKVA, off), rd128(vKF + 4, vKVA, off + 2048), "s_mov_b64 exec, %s" % sp(sVM)]
    for t in range(2):
        r += [rd128(vV + 8 * t, vKVA, off + 2048 * t + 1024), rd128(vV + 8 * t + 4, vKVA, off + 2048 * t + 1280)]
    r.append("s_mov_b64 exec, -1")
    return r
def wd_reads(dst, addr, off):
    r = []
    for c in range(2):
        r += [rdtr(dst + 4 * c, addr, off + 512 * c), rdtr(dst + 4 * c + 2, addr, off + 512 * c + 1024)]
    return r

def hord(): return [0, 2, 4, 6, 1, 3, 5, 7] if Opt.hord else list(range(8))
def wdrow(sg): return (32 * (sg >> 1) + 8 * (sg & 1)) * 1024

def attention(a, role, pre0=None):
    A = role == "A"
    def kvdma(u):
        a.vmop("s_add_u32 m0, s%d, 0x%x\ns_add_u32 s%d, s%d, 0x%x\nbuffer_load_dwordx4 %s, %s, s%d offen sc1 lds"
               % (sWK, L_KV + (u % 4) * 8192, sA, sWK, u * 8192, v(vL16), srd(SKV), sA), "kv%d" % u)
    def wddma(sg):
        a.vmop("s_add_u32 m0, s%d, 0x%x\ns_add_u32 s%d, s%d, 0x%x\nbuffer_load_dwordx4 %s, %s, s%d offen lds"
               % (sWK, L_WD + (sg % 4 if sg < 23 or sg == 27 else sg - 19) * 8192, sA, sWDOFF, wdrow(sg), v(vWDV), srd(SWD), sA), "wd%d" % sg)
    def wodma(j):
        a.vmop("s_add_u32 m0, s%d, 0x%x\ns_add_u32 s%d, s%d, 0x%x\nbuffer_load_dwordx4 %s, %s, s%d offen lds"
               % (sWK, L_WO + (7 - j) * 8192, sA, sB, hord()[j] * 16384, v(vWDV), srd(SWO), sA), "wo")
    def hload(sg, dst):
        a.vmop("s_add_u32 s%d, s%d, 0x%x\nbuffer_load_dwordx4 %s, %s, %s, s%d offen sc1"
               % (sA, sHOFF, sg * 1024, v(dst, 4), v(vL16), srd(SWS), sA), "h%d" % sg)
    for n in range(12):
        if not A and n == 0: a.e("s_barrier")
        if n % 2 == 1: astamp(a, 2 + n // 2)
        if n == Opt.pcyc: a.e("%s %s" % ("s_memrealtime" if Opt.prt else "s_memtime", sp(sSTAMP + 6)))
        tags = []
        if A and n % 2 == 1: tags.append("kv%d" % ((n + 1) // 2))
        if not A and n % 2 == 0: tags.append("kv%d" % ((n + 2) // 2))
        if n == Opt.hpub - (0 if A else 1): tags.append("hst")
        if n == 6: tags.append("wo")
        if n == 9: tags.append("wd27")
        if n == 11: tags.append("wd0")
        if n == 9 and A:
            a.e("s_cmp_lg_u32 s%d, 0" % sW)
            a.e("s_cbranch_scc1 L_hf_done")
            a.e("s_mov_b32 s%d, 0x4000" % sB)
            a.e("s_waitcnt vmcnt(0)")
            a.lab("L_hf_chk")
            a.e("v_cmp_ne_u32 vcc, 1, %s" % v(vPOLL))
            a.e("s_cbranch_vccz L_hf_done")
            a.e("s_sleep %d" % Opt.hsl)
            a.e("buffer_load_dword %s, %s, %s, 0 offen sc1" % (v(vPOLL), v(vFLA), srd(SWS)))
            a.e("s_sub_u32 s%d, s%d, 1" % (sB, sB))
            a.e("s_cmp_lg_u32 s%d, 0" % sB)
            a.e("s_waitcnt vmcnt(0)")
            a.e("s_cbranch_scc1 L_hf_chk")
            a.lab("L_hf_done")
        a.waitvm(tags)
        if n == 5 and Opt.diag == 3 and A:
            a.e("v_mov_b32 v2, s%d" % sSTAMP)
            a.e("s_lshl_b32 s%d, s2, 3" % sA)
            a.e("s_add_u32 s%d, s%d, s%d" % (sA, sA, sW))
            a.e("s_lshl_b32 s%d, s%d, 7" % (sA, sA))
            a.e("s_add_u32 s%d, s%d, 0x%x" % (sA, sA, WS_STAMP))
            a.e("s_mov_b64 exec, 1")
            a.vmop("buffer_store_dword v2, off, %s, s%d offset:12 sc1" % (srd(SWS), sA), "st")
            a.e("s_mov_b64 exec, -1")
        if n == Opt.hpub and not A:
            a.e("s_cmp_ge_u32 s%d, 14" % sM)
            a.e("s_cbranch_scc1 L_nohf")
            a.e("s_cmp_lg_u32 s%d, 4" % sW)
            a.e("s_cbranch_scc1 L_nohf")
            a.e("s_lshl_b32 s%d, s%d, 4" % (sA, sG))
            a.e("s_add_u32 s%d, s%d, s%d" % (sA, sA, sM))
            a.e("s_lshl_b32 s%d, s%d, 7" % (sA, sA))
            a.e("s_add_u32 s%d, s%d, 0x%x" % (sA, sA, WS_HFLAG))
            a.e("s_mov_b64 exec, 1")
            a.e("buffer_store_dword %s, off, %s, s%d sc1" % (v(vONE), srd(SWS), sA))
            a.e("s_mov_b64 exec, -1")
            a.lab("L_nohf")
        for r in kv_reads((n % 8) * 4096): a.e(r)
        if n == 8 and A:
            a.e("s_cmp_lg_u32 s%d, 0" % sW)
            a.e("s_cbranch_scc1 L_hf_nol")
            a.e("buffer_load_dword %s, %s, %s, 0 offen sc1" % (v(vPOLL), v(vFLA), srd(SWS)))
            a.lab("L_hf_nol")
        if n == 0:
            if A or Opt.hpub == 3:
                kvdma(2); kvdma(3)
            a.e("s_mov_b32 s%d, s%d" % (sC, sKQ))
            a.e("s_mul_i32 s%d, s%d, %d" % (sWDOFF, sC, 448 * 1024))
            a.e("s_and_b32 s%d, s%d, 1" % (sB, sW))
            a.e("s_lshl_b32 s%d, s%d, 14" % (sA, sB))
            a.e("s_add_u32 s%d, s%d, s%d" % (sWDOFF, sWDOFF, sA))
            a.e("s_lshl_b32 s%d, s%d, 1" % (sA, sT))
            a.e("s_add_u32 s%d, s%d, s%d" % (sA, sA, sB))
            a.e("s_mul_i32 s%d, s%d, 112" % (sA, sA))
            a.e("s_mul_i32 s%d, s%d, 28" % (sB, sC))
            a.e("s_add_u32 s%d, s%d, s%d" % (sA, sA, sB))
            a.e("s_lshl_b32 s%d, s%d, 10" % (sA, sA))
            a.e("s_add_u32 s%d, s%d, 0x%x" % (sHOFF, sA, WS_HF))
        if (A and n % 2 == 1 and n >= 3): kvdma((n + 5) // 2)
        if (not A and n % 2 == 0 and n >= 2): kvdma((n + 6) // 2)
        if 1 <= n <= 4:
            a.e("s_lshl_b32 s%d, s%d, 17" % (sB, sKQ))
            a.e("s_and_b32 s%d, s%d, 1" % (sC, sW))
            a.e("s_lshl_b32 s%d, s%d, 13" % (sC, sC))
            a.e("s_add_u32 s%d, s%d, s%d" % (sB, sB, sC))
            for j in (2 * n - 2, 2 * n - 1): wodma(j)
        for sg in {5: (27, 23, 24), 6: (25, 26, 0), 7: (1, 2)}.get(n, ()): wddma(sg)
        if n == 10:
            for r in wd_reads(vWX, vWDA, 3 * 8192): a.e(r)
        for j in ({7: (0,), 8: (1, 2), 9: (3, 4)} if A else {7: (0, 1), 8: (2, 3), 9: (4,)}).get(n, ()):
            for r in wd_reads(WOF[j], vWOA, (7 - j) * 8192): a.e(r)
        hs = {10: (0, 1, 23, 24), 11: (2, 25, 26, 27)} if A else {9: (0, 1, 23), 10: (2, 24), 11: (25, 26, 27)}
        if Opt.hlate: hs = {10: (0, 1), 11: (2,)} if A else {9: (0,), 10: (1,), 11: (2,)}
        for sg in hs.get(n, ()): hload(sg, vH + 4 * sg if sg < 4 else vHX if sg == 27 else vH + 4 * (sg - 19))
        if n == 11:
            a.e("s_add_u32 s%d, s%d, 0x%x" % (sHOFF, sHOFF, 3 * 1024))
            a.e("s_add_u32 s%d, s%d, 0x%x" % (sWDOFF, sWDOFF, wdrow(3)))
            a.e("s_add_u32 s%d, s%d, 0x%x" % (sKVOFF, sWK, 9 * 8192))
            a.e("s_mov_b32 s%d, 4" % sCNT)
            a.e("s_add_u32 s%d, s%d, 0x1000" % (sOLD2, sOLD))
            a.e("s_mov_b32 s%d, 0x%x" % (sLO_, f2u(2.0 ** -16)))
            a.e("s_mov_b32 s%d, 0x%x" % (sRNG, f2u(2.0 ** 100) - f2u(2.0 ** -16)))
        if n == 0 and pre0:
            pre0()
            a.stamp(5)
        a.e("s_waitcnt lgkmcnt(0)")
        if n == 0:
            if A: a.e("s_barrier")
            for x in Yseg(None, first=True): a.e(x)
            if not A: a.e("s_barrier")
            continue
        a.e("s_call_b64 %s, L_Y%s" % (sp(sRET), role))
        if n == 1:
            a.e("s_branch L_X1%s" % role)
            a.lab("L_Y%s" % role)
            if A: a.e("s_barrier")
            for x in Yseg(None): a.e(x)
            if not A: a.e("s_barrier")
            a.e("s_setpc_b64 %s" % sp(sRET))
            a.lab("L_X1%s" % role)
    assert not (Opt.hlate and Opt.nx)
    hl = {28: (27, 23), 29: (24, 25), 30: (26,)} if Opt.hlate else {}
    vm = list(a.vm); need = [63] * 8
    for n in range(12, 32):
        p = n % 4; q = p + (4 if n >= 28 else 0)
        tags = ["wd%d" % (n - 11), "h%d" % (n - 12)]
        if (p % 2 == 1) == A: tags.append("kv%d" % ((n + (1 if A else 2)) // 2))
        idx = [i for i, t in enumerate(vm) if t in tags]
        if idx: need[q] = min(need[q], len(vm) - 1 - max(idx))
        vm.append("wd%d" % (n - 9))
        vm.append("h%d" % (n - 9))
        if (p % 2 == 1) == A and n < 28: vm.append("kv%d" % ((n + (5 if A else 6)) // 2))
        vm += ["hx"] * len(hl.get(n, ()))
    a.lab("L_loop%s" % role)
    for q in range(8):
        p = q % 4; fin = q >= 4
        kv = (p % 2 == 1) == A and not fin
        if q == 0 and Opt.diag and Opt.kdiag == 2:
            a.e("s_cmp_lg_u32 s%d, 3" % sCNT)
            a.e("s_cbranch_scc1 L_nst%s" % role)
            astamp(a, 8)
            a.lab("L_nst%s" % role)
        a.e("s_waitcnt vmcnt(%d)" % need[q])
        for i, r in enumerate(kv_reads(p * 4096, vKVB)):
            if not (q == 7 and i == 1): a.e(r)
        if q <= 8 - Opt.nd:
            for r in wd_reads(vWF, vWDA, p * 8192): a.e(r)
        if fin and p < Opt.nx:
            for r in wd_reads(vFR + 16, vWDA, (4 + p) * 8192): a.e(r)
        if q == 7:
            for r in wd_reads(vFR, vWDA, (4 + Opt.nx) * 8192): a.e(r)
        a.e("s_add_u32 m0, s%d, 0x%x" % (sWK, L_WD + ((p + 3) % 4) * 8192))
        a.e("s_and_b32 s%d, s%d, 0x7fff" % (sA, sKVOFF))
        a.e("buffer_load_dwordx4 %s, %s, s%d offen lds" % (v(vWDV), srd(SWD), sWDOFF))
        a.e("s_add_u32 s%d, s%d, 0x%x" % (sWDOFF, sWDOFF, 0x2000 if p & 1 else 0x6000))
        a.e("buffer_load_dwordx4 %s, %s, %s, s%d offen sc1" % (v(vKF + 4 if q == 7 and Opt.nd == 2 else vH + 4 * ((p + 3) % 4), 4), v(vL16), srd(SWS), sHOFF))
        if kv: a.e("s_add_u32 m0, s%d, 0x%x" % (sA, L_KV))
        a.e("s_add_u32 s%d, s%d, 0x400" % (sHOFF, sHOFF))
        if kv:
            a.e("buffer_load_dwordx4 %s, %s, s%d offen sc1 lds" % (v(vL16), srd(SKV), sKVOFF))
            a.e("s_add_u32 s%d, s%d, 0x2000" % (sKVOFF, sKVOFF))
        for sg in (hl.get(24 + q, ()) if fin else ()):
            a.e("s_add_u32 s%d, s%d, 0x%x" % (sA, sHOFF, (sg - (16 + q)) * 1024))
            a.e("buffer_load_dwordx4 %s, %s, %s, s%d offen sc1" % (v(vHX if sg == 27 else vH + 4 * (sg - 19), 4), v(vL16), srd(SWS), sA))
        if q == 3:
            a.e("s_sub_u32 s%d, s%d, 1" % (sCNT, sCNT))
            a.e("s_cmp_lg_u32 s%d, 0" % sCNT)
        a.e("s_waitcnt lgkmcnt(0)")
        if A: a.e("s_barrier")
        for x in Yseg(p if q < 8 - Opt.nd else None, toggle=(q == 3), extra=(fin and p < Opt.nx), last=(q == 7)): a.e(x)
        if not A and q < 7: a.e("s_barrier")
        if q == 3: a.e("s_cbranch_scc1 L_loop%s" % role)
    a.e("s_nop 1")

def transition(a, role):
    A = role == "A"
    if A:
        a.vm = []
        a.lab("L_trA")
    else:
        a.lab("L_join")
        a.e("s_cmp_eq_u32 s%d, 0" % sHI)
        a.e("s_cbranch_scc1 L_trA")
        a.vmjoin = list(a.vm)
    def qfin():
        for i in range(4): a.e("v_cvt_pk_bf16_f32 %s, %s, %s" % (v(vQ + i), v(vAQ + 2 * i), v(vAQ + 2 * i + 1)))
        a.e("v_add_u32 %s, 0x%x, %s" % (v(vWOA), L_WO, v(vWDA)))
        a.e("v_permlane16_swap_b32 %s, %s" % (v(vQ), v(vQ + 2)))
        a.e("v_permlane16_swap_b32 %s, %s" % (v(vQ + 1), v(vQ + 3)))
    pre0 = None
    if A:
        a.e("s_setprio 1")
        a.e("s_cmp_ge_u32 s%d, 14" % sM)
        a.e("s_cbranch_scc1 L_nogA0")
        put(a, a.kvA[:1] + a.kvA[-1:])
        a.l.append(".p2align 3")
        for ti in range(Opt.gsc): gelu_tile(a, ti, True)
        a.lab("L_nogA0")
        qfin()
        a.waitvm(["k0", "kv0", "kv1"])
        a.e("s_setprio 0")
        a.e(mfma(vS, vK0, vQ, None))
        a.e("s_barrier")
        put(a, a.kvA[1:-1])
        def pre0():
            a.e("s_cmp_lt_u32 s%d, 14" % sM)
            a.e("s_cbranch_scc1 L_gA1")
            a.e("s_waitcnt vmcnt(0)")
            a.e("s_branch L_nogA1")
            a.l.append(".p2align 3")
            a.lab("L_gA1")
            for ti in range(Opt.gsc, 4): gelu_tile(a, ti)
            a.lab("L_nogA1")
            a.e("s_setprio 2")
    else:
        a.waitvm(["k0", "kv0", "kv1"])
        a.e("s_setprio 1")
        if Opt.hpub == 3:
            a.e("s_cmp_ge_u32 s%d, 14" % sM)
            a.l.append(".p2align 3")
            a.e("s_barrier")
            a.e("s_cbranch_scc1 L_nogB")
        else:
            a.e("s_barrier")
            for u in (2, 3):
                a.vmop("s_add_u32 m0, s%d, 0x%x\ns_add_u32 s%d, s%d, 0x%x\nbuffer_load_dwordx4 %s, %s, s%d offen sc1 lds"
                       % (sWK, L_KV + u * 8192, sA, sWK, u * 8192, v(vL16), srd(SKV), sA), "kv%d" % u)
            a.e("s_cmp_lt_u32 s%d, 14" % sM)
            a.e("s_cbranch_scc1 L_gB")
            a.e("s_waitcnt vmcnt(0)")
            a.e("s_branch L_nogB")
            a.l.append(".p2align 3")
            a.lab("L_gB")
        for ti in range(4): gelu_tile(a, ti)
        a.lab("L_nogB")
        qfin()
        a.e("s_nop 1")
        a.e(mfma(vS, vK0, vQ, None))
        a.stamp(5)
    attention(a, role, pre0)
    if A:
        a.stamp(6); astamp(a, 9); tstamp(a, 2)
        if Opt.diag and Opt.kdiag == 2: a.e("s_waitcnt lgkmcnt(0)")
        a.e(smfmac(vO, vV1L, vS + 24))
        a.e("s_setprio 0")
        a.e("s_cmp_eq_u32 s%d, 0" % sHI)
        a.e("s_nop 9")
        normalise(a, False)
        a.lab("L_fbretA")
        a.e("buffer_store_dwordx4 %s, %s, %s, s%d offen sc1" % (v(vPK, 4), v(vL16), srd(SWS), sOST))
        tstamp(a, 3)
        a.e("s_waitcnt vmcnt(1)")
        tstamp(a, 4)
        a.e("s_barrier")
        a.fetch(a, False)
        a.e("s_branch L_tl2")

def normalise(a, packed):
    t = vT0
    a.e("v_rcp_f32 %s, %s" % (v(t + 2), v(vO + 8)))
    a.e("s_nop 0")
    a.e("v_mul_f32_e64 %s, %s, %s" % (v(t + 2), v(t + 2), v(vGP)))
    if packed:
        for i in range(4): a.e("v_pk_mul_f32 %s, %s, %s op_sel_hi:[1,0]" % (v(vO + 2 * i, 2), v(vO + 2 * i, 2), v(t + 2, 2)))
        for i in range(4):
            a.e("v_pk_fma_f32 %s, %s, 0, %s op_sel_hi:[1,0,%d]" % (v(t, 2), v(vO + 2 * i, 2), v(t, 2) if i else v(vO + 8, 2), 1 if i else 0))
            a.e("v_cvt_pk_bf16_f32 %s, %s, %s" % (v(vPK + i), v(vO + 2 * i), v(vO + 2 * i + 1)))
        a.e("v_fmac_f32 %s, 0, %s" % (v(t), v(t + 1)))
    else:
        t = vO + 8
        for i in range(8): a.e("v_mul_f32 %s, %s, %s" % (v(vO + i), v(vT0 + 2), v(vO + i)))
        for i in range(4):
            a.e("v_fmac_f32 %s, 0, %s" % (v(t), v(vO + 2 * i)))
            a.e("v_cvt_pk_bf16_f32 %s, %s, %s" % (v(vPK + i), v(vO + 2 * i), v(vO + 2 * i + 1)))
            a.e("v_fmac_f32 %s, 0, %s" % (v(t), v(vO + 2 * i + 1)))
    a.e("v_subrev_u32 %s, s%d, %s" % (v(t), sLO_, v(t)))
    a.e("v_cmp_lt_u32 vcc, s%d, %s" % (sRNG, v(t)))
    a.e("s_branch L_fb" if Opt.force_fb else "s_cbranch_vccnz L_fb")

def tail(a):
    a.lab("L_tail")
    a.stamp(6)
    astamp(a, 9)
    if Opt.diag and Opt.kdiag == 2: a.e("s_waitcnt lgkmcnt(0)")
    tstamp(a, 2)
    a.e(smfmac(vO, vV1L, vS + 24))
    wf = [vFR, vFR + 8, vFR + 16]
    HORD = hord()
    def oload(j):
        return "buffer_load_dwordx4 %s, %s, %s, s%d offen offset:%d %s" % (
            v(vS + 4 * j, 4), v(vL16), srd(SWS), sOLD if HORD[j] < 4 else sOLD2, (HORD[j] % 4) * 1024, Opt.old_pol)
    a.oload = oload
    a.e("s_cmp_eq_u32 s%d, 0" % sHI)
    a.e("s_nop 10")
    a.l.append(".p2align 3")
    normalise(a, True)
    a.lab("L_fbret")
    a.e("buffer_store_dwordx4 %s, %s, %s, s%d offen sc1" % (v(vPK, 4), v(vL16), srd(SWS), sOST))
    tstamp(a, 3)
    aw = [vAW0, vWOA + 1, vWOA + 2, vWOA + 3]
    ar = [vAR0, vFLA]
    wo = WOF
    def fetch(o, scale):
        for j in range(8):
            o.e(oload(j))
            if j >= 5:
                for r in wd_reads(wo[j], vWOA, (7 - j) * 8192): o.e(r)
            if scale and j >= 4:
                for i in range(4 * j - 16, 4 * j - 12): o.e("v_mul_f32 %s, %s, %s" % (v(vD + i), v(vGC), v(vD + i)))
    def addrs(a):
        a.e("v_sub_f32 %s, 1.0, %s" % (v(vGC), v(vGC)))
        for j in range(1, 4): a.e("v_xor_b32 %s, %d, %s" % (v(aw[j]), 32 * j, v(aw[0])))
        a.e("v_xor_b32 %s, 16, %s" % (v(ar[1]), v(ar[0])))
        a.e("s_mov_b32 s%d, 0x2000" % sB)
    ol = Asm(); a.ool2 = ol.l
    a.e("s_waitcnt vmcnt(1)")
    tstamp(a, 4)
    a.e("s_barrier")
    a.lab("L_tl2")
    tstamp(a, 5)
    a.fetch = fetch
    fl = collect(addrs)
    slot = [4, 5, 6, 7, 0, 1, 2][Opt.nx:] + ([3] if Opt.nd == 2 else [])
    hreg = lambda sl: vKF + 4 if sl == 2 and Opt.nd == 2 else vH + 4 * sl
    inreg = [(vWX, vHX)] + ([(vWF, vH + 4 * (4 - Opt.nd))] if Opt.nd else [])
    rds = sum((wd_reads(wf[i % 3], vWDA, slot[i] * 8192) for i in range(len(slot))), [])
    done = 4
    for i in range(-len(inreg), len(slot)):
        for c in range(2):
            if i >= 1: a.e("s_waitcnt lgkmcnt(%d)" % (done - (4 * i + 2 * c + 2)))
            a.e(mfma(vD + 16 * c, inreg[i][0] + 4 * c, inreg[i][1], vD + 16 * c) if i < 0 else
                mfma(vD + 16 * c, wf[i % 3] + 4 * c, hreg(slot[i]), vD + 16 * c))
            if i < -1: continue
            if done < len(rds):
                for r in rds[done:done + 2]: a.e(r)
                done += 2
            else:
                put(a, fl[:2]); fl = fl[2:]
    assert not fl
    tstamp(a, 6)
    a.e("s_cbranch_scc0 L_tl3")
    a.l.append(".p2align 3")
    a.e("s_nop 7")
    a.e("s_nop 0")
    for i in range(16): a.e("v_pk_mul_f32 %s, %s, %s op_sel:[0,1] op_sel_hi:[1,1]" % (v(vD + 2 * i, 2), v(vD + 2 * i, 2), v(vGP, 2)))
    tstamp(a, 7)
    a.lab("L_tl4")
    tstamp(a, 8)
    ol.lab("L_tl3")
    ol.e("s_setprio 0")
    fetch(ol, False)
    tstamp(ol, 7)
    for i in range(32): ol.e("v_mul_f32 %s, %s, %s" % (v(vD + i), v(vGC), v(vD + i)))
    ol.e("s_waitcnt lgkmcnt(0)")
    def check(j):
        o = vS + 4 * j
        return ["s_waitcnt vmcnt(%d)" % (7 - j), "v_max3_u32 v2, %s, %s, %s" % (v(o), v(o + 1), v(o + 2)),
                "v_max_u32 v2, v2, %s" % v(o + 3), "v_cmp_eq_u32 vcc, -1, v2"]
    for j in range(Opt.bpre):
        for x in check(j): ol.e(x)
        ol.e("s_cbranch_vccnz L_bp%d" % j)
    ol.e("s_branch L_tl4")
    if Opt.bpre:
        for j in range(8):
            if j < Opt.bpre: ol.lab("L_bp%d" % j)
            ol.e(oload(j))
        ol.e("s_branch L_tl4")
    a.stamp(7)
    def check(j):
        o = vS + 4 * j
        return ["s_waitcnt vmcnt(%d)" % (7 - j), "v_max3_u32 v2, %s, %s, %s" % (v(o), v(o + 1), v(o + 2)),
                "v_max_u32 v2, v2, %s" % v(o + 3), "v_cmp_eq_u32 vcc, -1, v2"]
    a.check = check
    for x in check(0): a.e(x)
    for j in range(10):
        if j < 8:
            a.e("s_cbranch_vccnz L_ore%d" % j)
            a.lab("L_ook%d" % j)
            a.e(mfma(vD, wo[j], vS + 4 * j, vD))
        if j >= 2 and Opt.cfirst: a.e(mfma(vD + 16, wo[j - 2] + 4, vS + 4 * (j - 2), vD + 16))
        if j < 7:
            for x in check(j + 1): a.e(x)
        if j >= 2 and not Opt.cfirst: a.e(mfma(vD + 16, wo[j - 2] + 4, vS + 4 * (j - 2), vD + 16))
        if j in (7, 8): a.e("s_nop 4")
    wr = lambda c, j: "ds_write_b128 %s, %s offset:%d" % (v(aw[j]), v(vD + 16 * c + 4 * j, 4), 128 * c)
    a.stamp(8)
    tstamp(a, 9)
    for j in range(4): a.e(wr(0, j))
    a.e("s_nop 7")
    for j in range(4): a.e(wr(1, j))
    a.e("s_waitcnt lgkmcnt(0)")
    a.e("s_barrier")
    for p in range(4):
        for h in range(2): a.e(rd128(vS + 8 * p + 4 * h, ar[h], p * 8192))
    for p in range(1, 4):
        a.e("s_waitcnt lgkmcnt(%d)" % (6 - 2 * p))
        for i in range(4): a.e("v_pk_add_f32 %s, %s, %s" % (v(vS + 2 * i, 2), v(vS + 2 * i, 2), v(vS + 8 * p + 2 * i, 2)))
    for i in range(4): a.e("v_cvt_pk_bf16_f32 %s, %s, %s" % (v(vP + i), v(vS + 2 * i), v(vS + 2 * i + 1)))
    a.e("buffer_store_dwordx4 %s, %s, %s, s%d offen %s" % (v(vP, 4), v(vOUTA), srd(SOUT), sOUTO, Opt.out_pol))
    if Opt.probe >= 0:
        a.e("s_waitcnt vmcnt(0)")
        a.stamp(9)
        if Opt.probe_g:
            for i, t_ in enumerate((3300, 4300)):
                a.lab("L_pg%d" % i)
                a.e("s_memrealtime s[0:1]")
                a.e("s_waitcnt lgkmcnt(0)")
                a.e("s_sub_u32 s0, s0, s%d" % sSTAMP)
                a.e("s_cmp_lt_u32 s0, %d" % t_)
                a.e("s_cbranch_scc1 L_pg%d" % i)
                if i == 0:
                    a.e("s_cmp_lg_u32 s%d, 0" % sW)
                    a.e("s_cbranch_scc1 L_npg")
                    a.e("v_not_b32 v2, s%d" % sSTAMP)
                    a.e("s_mov_b64 exec, 1")
                    a.e("buffer_atomic_umax v2, off, %s, 0 offset:128 sc1" % srd(SDBG))
                    a.e("s_mov_b64 exec, -1")
                    a.lab("L_npg")
        if Opt.probe != 9:
            a.e("s_cmp_ge_u32 s%d, 14" % sM)
            a.e("s_cbranch_scc%d L_end" % (0 if Opt.probe_l else 1))
        if Opt.probe_g:
            a.e("buffer_load_dword v2, off, %s, 0 offset:128 sc1" % srd(SDBG))
            a.e("s_waitcnt vmcnt(0)")
            a.e("v_readfirstlane_b32 s%d, v2" % sSTAMP)
            a.e("s_nop 3")
            a.e("s_not_b32 s%d, s%d" % (sSTAMP, sSTAMP))
        a.e("s_sub_u32 s%d, s%d, s%d" % (sA, sSTAMP + 4, sSTAMP))
        a.e("s_mul_i32 s%d, s%d, %d" % (sA, sA, Opt.probe_mul - 1))
        if Opt.pcyc >= 0:
            a.e("s_sub_u32 s%d, s%d, s%d" % (sA, sSTAMP + 8, sSTAMP + 6))
            if Opt.prt: a.e("s_mul_i32 s%d, s%d, 10" % (sA, sA))
            a.e("s_mov_b32 s%d, s%d" % (sSTAMP + 4, sSTAMP))
        a.e("s_min_u32 s%d, s%d, 40000" % (sA, sA))
        a.e("s_add_u32 s%d, s%d, 3800" % (sA, sA))
        if Opt.probe_r >= 0:
            a.e("s_cmp_eq_u32 s%d, 0x2000" % sB)
            a.e("s_cbranch_scc%d L_end" % Opt.probe_r)
        if Opt.probe_w >= 0:
            a.e("s_cmp_lg_u32 s%d, %d" % (sHI, Opt.probe_w))
            a.e("s_cbranch_scc1 L_end")
        if Opt.probe_x >= 0:
            a.e("s_and_b32 s0, s2, 7")
            a.e("s_cmp_lg_u32 s0, %d" % Opt.probe_x)
            a.e("s_cbranch_scc1 L_end")
        a.lab("L_probe")
        a.e("s_memrealtime s[0:1]")
        a.e("s_waitcnt lgkmcnt(0)")
        a.e("s_sub_u32 s0, s0, s%d" % (sSTAMP + 4))
        a.e("s_cmp_lt_u32 s0, s%d" % sA)
        a.e("s_cbranch_scc1 L_probe")
    if Opt.pin == 9:
        a.e("s_waitcnt vmcnt(0)")
        a.stamp(9)
    if Opt.diag in (1, 2):
        a.e("s_waitcnt vmcnt(0)")
        a.stamp(9)
        a.e("s_mov_b32 s%d, s%d" % (sSTAMP + 3, sSTAMP))
        a.e("s_mov_b32 s%d, s%d" % (sSTAMP, sB))
        a.e("s_getreg_b32 s%d, hwreg(HW_REG_XCC_ID)" % (sSTAMP + 1))
        for i in range(20): a.e("v_mov_b32 %s, s%d" % (v(vS + i), sSTAMP + i))
        a.e("s_lshl_b32 s%d, s2, 3" % sA)
        a.e("s_add_u32 s%d, s%d, s%d" % (sA, sA, sW))
        a.e("s_lshl_b32 s%d, s%d, 7" % (sA, sA))
        a.e("s_add_u32 s%d, s%d, 0x%x" % (sA, sA, WS_STAMP))
        a.e("s_mov_b64 exec, 1")
        for i in range(5): a.e("buffer_store_dwordx4 %s, off, %s, s%d offset:%d" % (v(vS + 4 * i, 4), srd(SWS), sA, 16 * i))
    a.lab("L_end")
    a.e("s_endpgm")
    a.l += a.ool2
    for j in range(8):
        a.lab("L_ore%d" % j)
        a.e("s_sub_u32 s%d, s%d, 1" % (sB, sB))
        a.e("s_cbranch_scc1 L_ogive%d" % j)
        if Opt.rwait: a.e("s_waitcnt vmcnt(0)")
        if Opt.rwait > 1: a.e("s_sleep %d" % Opt.rwait)
        for i in range(j, 8): a.e(a.oload(i))
        for x in a.check(j): a.e(x)
        a.e("s_cbranch_vccnz L_ore%d" % j)
        a.e("s_branch L_ook%d" % j)
        a.lab("L_ogive%d" % j)
        a.e("s_mov_b32 s%d, 0" % sB)
        a.e("s_branch L_ook%d" % j)

def fallback(a):
    a.lab("L_fb")
    m = vT0
    a.e("v_mov_b32 %s, 0xff800000" % v(m))
    a.e("s_mov_b32 s%d, 0" % sA)
    a.lab("L_fb1")
    a.e("buffer_load_dwordx4 %s, %s, %s, s%d offen sc1" % (v(vKF, 4), v(vL16), srd(SKV), sA))
    a.e("s_waitcnt vmcnt(0)")
    a.e(mfma(vS, vKF, vQ, None))
    a.e("s_add_u32 s%d, s%d, 2048" % (sA, sA))
    a.e("s_nop 11")
    for i in range(8): a.e("v_max3_f32 %s, %s, %s, %s" % (v(m), v(m), v(vS + 2 * i), v(vS + 2 * i + 1)))
    a.e("s_cmp_lt_u32 s%d, 0x20000" % sA)
    a.e("s_cbranch_scc1 L_fb1")
    a.e("v_mov_b32 %s, %s" % (v(m + 1), v(m)))
    a.e("s_nop 1")
    a.e("v_permlane32_swap_b32 %s, %s" % (v(m), v(m + 1)))
    a.e("s_nop 1")
    a.e("v_max_f32 %s, %s, %s" % (v(m), v(m), v(m + 1)))
    for i in range(16): a.e("v_sub_f32 %s, 0, %s" % (v(vS + 16 + i), v(m)))
    for i in range(16): a.e("v_mov_b32 %s, 0" % v(vO + i))
    a.e("s_mov_b32 s%d, 0" % sA)
    a.lab("L_fb2")
    a.e("s_add_u32 s%d, s%d, 0x%x" % (sB, sA, 63 * 2048))
    a.e("s_and_b32 s%d, s%d, 0x1ffff" % (sB, sB))
    a.e("buffer_load_dwordx4 %s, %s, %s, s%d offen sc1" % (v(vKF, 4), v(vL16), srd(SKV), sB))
    a.e("s_add_u32 s%d, s%d, 2048" % (sB, sA))
    a.e("s_and_b32 s%d, s%d, 0x1ffff" % (sB, sB))
    a.e("s_mov_b64 exec, %s" % sp(sVM))
    a.e("buffer_load_dwordx4 %s, %s, %s, s%d offen offset:1024 sc1" % (v(vV, 4), v(vL16), srd(SKV), sA))
    a.e("buffer_load_dwordx4 %s, %s, %s, s%d offen offset:1280 sc1" % (v(vV + 4, 4), v(vL16), srd(SKV), sB))
    a.e("s_mov_b64 exec, -1")
    a.e("s_waitcnt vmcnt(0)")
    a.e(mfma(vS, vKF, vQ, vS + 16))
    a.e("s_add_u32 s%d, s%d, 2048" % (sA, sA))
    a.e("s_nop 11")
    for i in range(16): a.e("v_exp_f32 %s, %s" % (v(vS + i), v(vS + i)))
    a.e("s_nop 2")
    a.e(smfmac(vO, vV, vS))
    a.e(smfmac(vO, vV + 4, vS + 8))
    a.e("s_cmp_lt_u32 s%d, 0x20000" % sA)
    a.e("s_cbranch_scc1 L_fb2")
    a.e("s_nop 11")
    a.e("v_rcp_f32 %s, %s" % (v(vT0 + 2), v(vO + 8)))
    a.e("s_cmp_eq_u32 s%d, 0" % sHI)
    a.e("v_mul_f32 %s, %s, %s" % (v(vT0 + 2), v(vT0 + 2), v(vGP)))
    for i in range(8): a.e("v_mul_f32 %s, %s, %s" % (v(vO + i), v(vT0 + 2), v(vO + i)))
    for i in range(4): a.e("v_cvt_pk_bf16_f32 %s, %s, %s" % (v(vPK + i), v(vO + 2 * i), v(vO + 2 * i + 1)))
    for i in range(4): a.e("v_min_u32 %s, -2, %s" % (v(vPK + i), v(vPK + i)))
    a.e("s_cbranch_scc1 L_fbretA")
    a.e("s_branch L_fbret")

def build():
    a = Asm()
    prologue(a)
    phase1_F(a)
    transition(a, "B")
    tail(a)
    a.l += a.ool
    transition(a, "A")
    phase1_L(a)
    fallback(a)
    a.lab("L_codeend")
    for i, x in enumerate(a.l):
        if " sc1" in x and "sc0" not in x and ((Opt.allsc & 1 and "buffer_store" in x) or (Opt.allsc & 2 and "buffer_load" in x)):
            a.l[i] = x.replace(" sc1", " sc0 sc1")
    il = a.l.index("L_light:")
    for i, x in enumerate(a.l):
        if x.endswith(" lds") and "sc1" not in x and " nt" not in x:
            if (Opt.ntx & 4 and (srd(SWD) in x or srd(SWO) in x)) or (Opt.ntx & 8 and i > il):
                a.l[i] = x[:-4] + " nt lds"
    head = open("cdna_kernels/%s.s.ref" % NAME).read().split("\n")
    hdr = [l for l in head if l.startswith(";") and "@launch" not in l and "Override" not in l and "grid=" not in l]
    out = hdr + ["; @launch grid=(256,1,1) block=(512,1,1) lds=%d" % LDS_BYTES,
                 '.amdgcn_target "amdgcn-amd-amdhsa--gfx950"', ".text", ".globl %s_kernel" % NAME, ".p2align 8",
                 ".type %s_kernel,@function" % NAME,
                 ".set CODE_PF_MAX, L_codeend - L_nopf - 4" if Opt.code_pf else "",
                 "%s_kernel:" % NAME]
    if Opt.diag: out += ["; mapmode %d" % (1 + 3 * bool(Opt.oddl))]
    out += ["; " + x for x in """One persistent launch, one workgroup per CU (generated by a script), 8 waves = two quartets that alternate on each SIMD.
Stage 1: 14 of every 16 workgroups compute gelu(x Wg) * (x Wu) for 128 tokens x 128 columns plus Q for two heads;
         the other two compute K, V and the mixing gate, publish them (counter in d_debug) and then their own Q.
Stage 2: attention for 128 tokens x 2 heads over all keys, S^T = K Q^T, exp2 in place, P V through sparse MFMAs that
         read the high halves of the fp32 probabilities; a row of ones in the V operand gives the row sums.
         The stand-in maximum is 0: it is accepted only if the row sum lies in [2^-16, 2^100] and every accumulator is
         finite, otherwise the wave redoes its rows with the true maximum (L_fb).
         The down projection of a 64 x 64 output tile runs in the same loop once the producers' flags are seen.
Stage 3: attention outputs are handed over through d_ws (cleared to a mark earlier in this launch), projected,
         mixed with the FFN branch, reduced through LDS and stored.""".split("\n")]
    out += a.l
    out += ['.section .rodata,"a"', ".p2align 6", ".amdhsa_kernel %s_kernel" % NAME,
            "  .amdhsa_next_free_vgpr %d" % NV, "  .amdhsa_next_free_sgpr 102", "  .amdhsa_accum_offset 256",
            "  .amdhsa_group_segment_fixed_size 0", "  .amdhsa_kernarg_size 104", "  .amdhsa_user_sgpr_count 2",
            "  .amdhsa_user_sgpr_kernarg_segment_ptr 1", "  .amdhsa_system_sgpr_workgroup_id_x 1", ".end_amdhsa_kernel", ""]
    return "\n".join(out)

if __name__ == "__main__":
    path = sys.argv[1]
    for kv in sys.argv[2:]:
        k, val = kv.split("=")
        cur = getattr(Opt, k)
        setattr(Opt, k, val if isinstance(cur, str) else type(cur)(int(val)))
    open(path, "w").write(build())
```

```python
import sys, struct, math

NAME = "gated_mix__grouped_kv_mqa__geglu_ffn__prompt"

class Opt:
    diag = 0
    mapmode = 1
    force_fb = False
    allsc = 0
    out_pol = "sc0 sc1"
    code_pf = True
    xrot = 0
    pregap = 0
    otouch = 0
    kw0 = 1
    kb = 3
    kal = 1
    xodd = 43
    xeven = 32
    hsl = 2
    lthr = 0
    klate = 0
    bpre = 0
    oddl = 1
    hlate = 1
    hpub = 3
    rwait = 1
    aearly = 0
    bidle = 1
    old_pol = "sc1"
    ypos0 = "36g"
    ypos1 = "36bg"
    ypos2 = "36cg9"
    nd = 1
    nx = 0
    tpos = 1
    cfirst = 0
    tch = 12
    stch = 0
    spos = 1
    tlb = 6
    olate = 1
    hrot = 0
    tbar = 0
    hord = 1
    cmap = 1
    kqx = 2
    oearly = 8
    conc = 1
    ghx = 1
    qa = "077777"
    qb = "588888"
    npre = 8
    stagger = 1
    rper = 2
    dma1 = 17
    kprio = 0
    dma0 = 8
    npd = 4
    kdiag = 0
    fillpre = 0
    fillper = 5
    gsc = 2
    sched = 0
    xmask = 1
    ntx = 0
    touch = 2
    rotg = 0
    rotm = 0
    startbar = 1
    pvz = 1
    pin = -1
    pin_ns = 60000
    probe = -1
    probe_x = -1
    probe_mul = 10
    probe_w = -1
    probe_r = -1
    pcyc = -1
    prt = 0
    probe_g = 1
    probe_l = 0

def f2u(x): return struct.unpack("<I", struct.pack("<f", x))[0]

WS_KV = 0
WS_G = 128 * 1024
WS_HFLAG = 192 * 1024
WS_OF = 1 << 20
WS_HF = 4 << 20
WS_STAMP = 12 << 20
WS_SIZE = 16 << 20
K1 = 1024
L_G, L_U, L_X, L_WQ = 0, 48 * K1, 96 * K1, 144 * K1
L_QX = 32 * K1
L_WD, L_WO, L_KV = 0, 64 * K1, 128 * K1
L_RED = 96 * K1
LL_X, LL_W, LL_GATE, LL_WQ = 0, 128 * K1, 144 * K1, 128 * K1
LDS_BYTES = 160 * K1

SX, SWG, SWU, SWQ, SWS, SWD, SWO, SOUT, SDBG, SWKV, SGATE, SKV = 4, 8, 12, 16, 20, 24, 28, 32, 36, 40, 44, 64
SWV = 72
sTMPP = 48
sW, sHI, sLO, sG, sM, sT, sCB = 50, 51, 52, 53, 54, 55, 56
sWK = 57
sWH = 58
sVM = 60
sRET = 62
sA, sB, sC, sD = 68, 69, 70, 71
sOFFW, sOFFQ, sCH, sXP = 72, 73, 74, 75
sHOFF, sWDOFF, sKVOFF, sHXO, sCNT = 72, 73, 74, 75, 77
sOUTO, sLO_, sRNG = 59, 81, 75
sOLD2 = 58
sOST, sOLD, sHST = 78, 79, 80
sHST2 = 3
sRX, sRW, sM0B = 40, 41, 42
sKQ = 76
sHP = 81
sSTAMP = 82

def srd(b): return "s[%d:%d]" % (b, b + 3)
def sp(b): return "s[%d:%d]" % (b, b + 1)
def v(b, n=1): return "v%d" % b if n == 1 else "v[%d:%d]" % (b, b + n - 1)

vL16 = 1
vT0, vT1, vT2, vT3 = 2, 3, 4, 5
vGP, vGC = 6, 7
vKVA = 8
vWDA = 9
vWDV = 10
vONE = 11
vZERO = 12
vFLA = 13
vPOLL = 14
vGA = 15
vQ = 16
vK0 = 20
vV1L = 24
vIDX = 28
vAW0, vAR0, vOUTA = 30, 31, 12
vKVB = 29
vP = 32
vV = 40
vO = 56
vD = 72
vACC = 104
vS = 104
vH = 136
vAQ = vP
vF1 = 168
vKF = 168
vWF = 176
vWX = 224
vHX = 232
vPK = 20
WOF = [32, 208, 216, 240, 248, 40, 48, 56]
vWOA = 236
vFR = 184
vLX = 224
vXA = 240
vWA = 244
vQA = 248
vDX, vDG, vDQ = 249, 250, 251
vC0 = 252
vTID = 255
vHA = 254
NV = 256

class Asm:
    def __init__(self):
        self.l = []
        self.vm = []
        self.nstamp = 0
    def e(self, s):
        for x in s.split("\n"):
            x = x.strip()
            if x: self.l.append("    " + x)
    def lab(self, s): self.l.append(s + ":")
    def vmop(self, s, tag):
        self.e(s); self.vm.append(tag)
    def vmn(self, tags):
        if isinstance(tags, str): tags = [tags]
        last = -1
        for i, t in enumerate(self.vm):
            if t in tags: last = i
        return None if last < 0 else len(self.vm) - 1 - last
    def waitvm(self, tags, lgkm=False):
        n = self.vmn(tags)
        if n is None:
            if lgkm: self.e("s_waitcnt lgkmcnt(0)")
            return
        assert n < 64
        self.e("s_waitcnt vmcnt(%d)%s" % (n, " lgkmcnt(0)" if lgkm else ""))
        self.vm = self.vm[len(self.vm) - n:] if n else []
    def wait0(self, lgkm=False):
        self.e("s_waitcnt vmcnt(0)%s" % (" lgkmcnt(0)" if lgkm else "")); self.vm = []
    def stamp(self, i, real=False):
        if Opt.probe == i:
            self.e("s_waitcnt lgkmcnt(0)")
            self.e("s_memrealtime %s" % sp(sSTAMP + 4))
            if Opt.pcyc >= 0: self.e("%s %s" % ("s_memrealtime" if Opt.prt else "s_memtime", sp(sSTAMP + 8)))
            self.e("s_waitcnt lgkmcnt(0)")
        if Opt.pin == i:
            self.nstamp += 1
            self.e("s_waitcnt lgkmcnt(0)")
            self.e("s_cselect_b32 s%d, 1, 0" % (sSTAMP + 5))
            self.lab("L_pin%d" % self.nstamp)
            self.e("s_memrealtime s[0:1]")
            self.e("s_waitcnt lgkmcnt(0)")
            self.e("s_sub_u32 s0, s0, s%d" % sSTAMP)
            self.e("s_cmp_lt_u32 s0, %d" % (Opt.pin_ns // 10))
            self.e("s_cbranch_scc1 L_pin%d" % self.nstamp)
            self.e("s_cmp_lg_u32 s%d, 0" % (sSTAMP + 5))
        if Opt.diag and not Opt.kdiag and (Opt.diag == 1 or i == 9):
            self.e("s_waitcnt lgkmcnt(0)")
            self.e("s_memtime %s" % sp(sSTAMP + 2 * i))
            self.e("s_memrealtime %s" % sp(sRET))
            self.e("s_waitcnt lgkmcnt(0)")
            self.e("s_mov_b32 s%d, s%d" % (sSTAMP + 2 * i + 1, sRET))

def astamp(a, i):
    if Opt.diag and Opt.kdiag == 2: a.e("s_memtime %s" % sp(sSTAMP + 2 * i))

def tstamp(a, i):
    if Opt.diag and Opt.kdiag == 3: a.e("s_memtime %s" % sp(sSTAMP + 2 * i))

def kstamp(a, i):
    if Opt.probe == 18 + i: a.e("s_memrealtime %s" % sp(sSTAMP + 4))
    if Opt.diag and Opt.kdiag == 1: a.e("s_memtime %s" % sp(sSTAMP + 2 * i))

def mfma(d, a, b, c):
    return "v_mfma_f32_32x32x16_bf16 %s, %s, %s, %s" % (v(d, 16), v(a, 4), v(b, 4), "0" if c is None else v(c, 16))
def smfmac(d, a, b):
    return "v_smfmac_f32_32x32x32_bf16 %s, %s, %s, %s" % (v(d, 16), v(a, 4), v(b, 8), v(vIDX))
def mfma16(d, a, b, c):
    return "v_mfma_f32_16x16x32_bf16 %s, %s, %s, %s" % (v(d, 4), v(a, 4), v(b, 4), "0" if c is None else v(c, 4))
def rd128(d, a, off):
    assert 0 <= off < 65536
    return "ds_read_b128 %s, %s offset:%d" % (v(d, 4), v(a), off)
def rdtr(d, a, off):
    assert 0 <= off < 65536
    return "ds_read_b64_tr_b16 %s, %s offset:%d" % (v(d, 2), v(a), off)

def interleave(mf, fill, per=2):
    out = []
    fill = list(fill)
    for i, m in enumerate(mf):
        out.append(m)
        if i < len(mf) - 1:
            out += fill[:per]; fill = fill[per:]
    return out + fill

def srd_words(a, regs):
    sizes = {SX: 2048 * 1024, SWG: 512 * 3584, SWU: 512 * 3584, SWQ: 512 * 1024, SWS: WS_SIZE, SWKV: 16384, SWV: 16384,
             SGATE: 1024, SWD: 1792 * 1024, SWO: 512 * 1024, SOUT: 2048 * 1024, SDBG: 256, SKV: 128 * 1024}
    for reg in regs:
        a.e("s_mov_b32 s%d, 0x%x" % (reg + 2, sizes[reg]))
        a.e("s_mov_b32 s%d, 0x20000" % (reg + 3))

def ptr_loads(a, lst):
    for reg, off in lst: a.e("s_load_dwordx2 %s, s[0:1], %d" % (sp(reg), off))

def prologue(a):
    if Opt.diag or Opt.pin >= 0 or Opt.probe >= 0:
        a.e("s_memrealtime %s" % sp(sSTAMP))
        if Opt.diag in (1, 2): a.e("s_memtime %s" % sp(sSTAMP + 2))
    ptr_loads(a, ((SX, 0), (SWG, 48), (SWU, 56), (SWQ, 8)))
    if Opt.probe == 1: a.stamp(1)
    a.e("v_lshrrev_b32 v2, 6, v0")
    if Opt.code_pf:
        a.e("s_getpc_b64 %s" % sp(sRET))
        a.lab("L_nopf")
        a.e("s_and_b32 s%d, s2, -8" % sA)
        a.e("v_add_lshl_u32 v4, v2, s%d, 7" % sA)
        a.e("v_mov_b32 v5, 0")
        a.e("v_min_u32 v4, CODE_PF_MAX, v4")
        a.e("v_lshl_add_u64 v[4:5], v[4:5], 0, %s" % sp(sRET))
        a.e("global_load_dword %s, v[4:5], off" % v(vPOLL))
    if not Opt.klate: a.e("s_load_dwordx8 s[%d:%d], s[0:1], 64" % (SOUT, SOUT + 7))
    a.e("v_readfirstlane_b32 s%d, v2" % sW)
    if not Opt.klate: ptr_loads(a, ((SWS, 96),) if Opt.diag or Opt.probe >= 0 else ((SWS, 96), (SWO, 32)))
    a.e("s_cmpk_ge_u32 s2, 256")
    a.e("s_cbranch_scc1 L_end")
    if Opt.oddl:
        a.e("s_bfe_u32 s%d, s2, 0x10002" % sD)
        a.e("s_bfe_u32 s%d, s2, 0x30003" % sA)
        a.e("s_lshl3_add_u32 s%d, s%d, s%d" % (sG, sD, sA))
        a.e("s_and_b32 s%d, s2, 3" % sA)
        if Opt.oddl == 2: a.e("s_xor_b32 s%d, s%d, 1" % (sA, sA))
        a.e("s_lshr_b32 s%d, s2, 6" % sB)
        a.e("s_lshl2_add_u32 s%d, s%d, s%d" % (sHP, sA, sB))
        a.e("s_lshr_b32 s%d, s%d, 3" % (sB, sHP))
        a.e("s_sub_u32 s%d, s%d, s%d" % (sM, sHP, sB))
        a.e("s_lshl_b32 s%d, s%d, 10" % (sWK, sW))
        a.e("s_andn2_b32 s%d, 7, s%d" % (sA, sHP))
        a.e("s_cbranch_scc0 L_light")
    else:
        a.e("s_and_b32 s%d, s2, 1" % sD)
        a.e("s_bfe_u32 s%d, s2, 0x30003" % sA)
        a.e("s_lshl3_add_u32 s%d, s%d, s%d" % (sG, sD, sA))
        a.e("s_bfe_u32 s%d, s2, 0x20001" % sA)
        a.e("s_lshr_b32 s%d, s2, 6" % sB)
        a.e("s_lshl2_add_u32 s%d, s%d, s%d" % (sM, sA, sB))
        a.e("s_mov_b32 s%d, s%d" % (sHP, sM))
        a.e("s_lshl_b32 s%d, s%d, 10" % (sWK, sW))
        a.e("s_cmp_ge_u32 s%d, 14" % sM)
        a.e("s_cbranch_scc1 L_light")

def xvoff(a, t):
    a.e("v_lshrrev_b32 v2, 4, %s" % v(t))
    a.e("v_xor_b32 v2, v2, %s" % v(t))
    a.e("v_and_b32 v2, 7, v2")
    a.e("s_lshl_b32 s%d, s%d, 17" % (sA, sG))
    a.e("v_lshl_add_u32 v2, v2, 4, s%d" % sA)
    a.e("v_lshrrev_b32 v3, 3, %s" % v(t))
    a.e("v_lshl_add_u32 %s, v3, 10, v2" % v(vDX))

def setup_ids(a):
    if Opt.klate:
        ptr_loads(a, ((SWS, 96), (SKV, 96), (SDBG, 88), (SWD, 64), (SWO, 32), (SOUT, 80)))
    else:
        a.e("s_mov_b64 %s, %s" % (sp(SKV), sp(SWS)))
        a.e("s_mov_b64 %s, %s" % (sp(SWD), sp(SOUT)))
        a.e("s_mov_b64 %s, %s" % (sp(SOUT), sp(SOUT + 4)))
        a.e("s_mov_b64 %s, %s" % (sp(SDBG), sp(SOUT + 6)))
    a.e("v_and_b32 v0, 63, v0")
    a.e("v_lshlrev_b32 %s, 4, v0" % v(vL16))
    if Opt.oddl:
        a.e("s_and_b32 s%d, s2, 7" % sA)
        a.e("s_xor_b32 s%d, s%d, 4" % (sA, sA))
    else:
        a.e("s_andn2_b32 s%d, 1, s2" % sA)
        a.e("s_bfe_u32 s%d, s2, 0x20001" % sB)
        a.e("s_lshl2_add_u32 s%d, s%d, s%d" % (sA, sA, sB))
    a.e("s_bfe_u32 s%d, s2, 0x20003" % sB)
    a.e("s_lshl2_add_u32 s%d, s%d, s%d" % (sT, sA, sB))
    a.e("s_lshr_b32 s%d, s2, 5" % sCB)

def setup_rd(a):
    a.e("s_lshr_b32 s%d, s%d, 2" % (sHI, sW))
    a.e("s_and_b32 s%d, s%d, 3" % (sLO, sW))
    a.e("v_and_b32 v2, 15, v0")
    a.e("v_lshrrev_b32 v3, 4, v0")
    a.e("v_bfe_u32 v4, v0, 1, 3")
    a.e("v_xor_b32 v4, v4, v3")
    a.e("v_lshlrev_b32 v4, 4, v4")
    a.e("v_lshl_add_u32 %s, v2, 7, v4" % v(vXA))
    a.e("v_bfe_u32 v2, v0, 2, 2")
    a.e("v_and_b32 v4, 3, v0")
    a.e("v_lshl_add_u32 %s, v3, 3, v2" % v(vQA))
    a.e("v_lshlrev_b32 %s, 6, %s" % (v(vQA), v(vQA)))
    a.e("v_xor_b32 v5, s%d, v3" % sHI)
    a.e("v_and_b32 v5, 1, v5")
    a.e("v_lshl_add_u32 %s, v5, 5, %s" % (v(vQA), v(vQA)))
    a.e("v_lshl_add_u32 %s, v4, 3, %s" % (v(vQA), v(vQA)))

def setup_oclr(a):
    srd_words(a, [SWS, SKV, SDBG])
    a.e("s_mov_b32 s%d, 0xffff" % sVM)
    a.e("s_mov_b32 s%d, 0xffff" % (sVM + 1))
    a.e("s_lshl_b32 s%d, s%d, 2" % (sA, sG))
    a.e("s_add_u32 s%d, s%d, s%d" % (sA, sA, sLO))
    a.e("s_lshl_b32 s%d, s%d, 5" % (sB, sA))
    a.e("s_lshl_b32 s%d, s%d, 1" % (sC, sHP))
    a.e("s_add_u32 s%d, s%d, s%d" % (sB, sB, sC))
    a.e("s_add_u32 s%d, s%d, s%d" % (sB, sB, sHI))
    a.e("s_lshl_b32 s%d, s%d, 10" % (sB, sB))
    a.e("s_add_u32 s%d, s%d, 0x%x" % (sOST, sB, WS_OF))
    for i in range(4): a.e("v_mov_b32 %s, -1" % v(vQ + i))
    a.vmop("buffer_store_dwordx4 %s, %s, %s, s%d offen sc1" % (v(vQ, 4), v(vL16), srd(SWS), sOST), "oclr")
    a.e("v_mov_b32 %s, 1" % v(vONE))
    a.e("v_mov_b32 %s, 0" % v(vZERO))
    a.e("v_and_b32 %s, 31, v0" % v(vGA))
    a.e("v_lshlrev_b32 %s, 2, %s" % (v(vGA), v(vGA)))

def collect(fn):
    t = Asm(); t.marks = {}
    def vmop(s_, tag):
        t.e(s_); t.marks[len(t.l) - 1] = tag
    t.vmop = vmop
    fn(t)
    return [(x, t.marks.get(i)) for i, x in enumerate(t.l)]
def put(a, items):
    for x, tag in items:
        if tag: a.vmop(x, tag)
        else: a.e(x)

def setup_ones(a):
    a.e("s_mov_b32 s%d, 0x110000" % sA)
    a.e("s_mov_b32 s%d, 0x110000" % sB)
    a.e("v_mov_b32 v3, 0x3f803f80")
    a.e("v_cndmask_b32 %s, 0, v3, %s" % (v(vV1L), sp(sA)))
    for i in range(1, 4): a.e("v_mov_b32 %s, %s" % (v(vV1L + i), v(vV1L)))
    for i in range(16): a.e("v_mov_b32 %s, %s" % (v(vV + i), v(vV1L)))

def setup_attn(a):
    srd_words(a, [SWD, SWO, SOUT])
    a.e("s_lshl_b32 s%d, s%d, 2" % (sA, sG))
    a.e("s_add_u32 s%d, s%d, s%d" % (sA, sA, sLO))
    a.e("s_mul_i32 s%d, s%d, 112" % (sB, sA))
    a.e("s_lshl_b32 s%d, s%d, 3" % (sC, sM))
    a.e("s_add_u32 s%d, s%d, s%d" % (sB, sB, sC))
    a.e("s_lshl_b32 s%d, s%d, 2" % (sC, sHI))
    a.e("s_add_u32 s%d, s%d, s%d" % (sB, sB, sC))
    a.e("s_and_b32 s%d, s%d, 1" % (sC, sLO))
    a.e("s_lshl_b32 s%d, s%d, 1" % (sC, sC))
    a.e("s_add_u32 s%d, s%d, s%d" % (sB, sB, sC))
    a.e("s_lshl_b32 s%d, s%d, 10" % (sB, sB))
    a.e("s_add_u32 s%d, s%d, 0x%x" % (sHST, sB, WS_HF))
    a.e("s_mul_i32 s%d, s%d, %d" % (sC, sC, 112 * 1024))
    a.e("s_sub_u32 s%d, %d, s%d" % (sC, 112 * 1024, sC))
    a.e("s_add_u32 s%d, s%d, s%d" % (sHST2, sHST, sC))
    a.e("v_bfe_u32 v2, v0, 2, 2")
    a.e("v_lshrrev_b32 v3, 5, v0")
    a.e("v_lshl_add_u32 v2, v3, 2, v2")
    a.e("v_lshlrev_b32 v2, 6, v2")
    a.e("v_bfe_u32 v3, v0, 4, 1")
    a.e("v_lshl_add_u32 v2, v3, 5, v2")
    a.e("v_and_b32 v3, 3, v0")
    a.e("v_lshl_add_u32 v2, v3, 3, v2")
    a.e("s_lshr_b32 s%d, s%d, 1" % (sA, sW))
    a.e("s_lshl_b32 s%d, s%d, 11" % (sA, sA))
    a.e("v_add_u32 %s, s%d, v2" % (v(vWDA), sA))
    a.e("v_add_u32 %s, 0x%x, %s" % (v(vKVA), L_KV, v(vL16)))
    a.e("v_add_u32 %s, 0x%x, %s" % (v(vKVB), L_KV + 0x4000, v(vL16)))
    a.e("v_bfe_u32 v2, v0, 2, 3")
    a.e("v_lshlrev_b32 v2, 10, v2")
    a.e("v_lshrrev_b32 v3, 5, v0")
    a.e("v_lshl_add_u32 v2, v3, 6, v2")
    a.e("v_and_b32 v3, 3, v0")
    a.e("v_lshl_add_u32 v2, v3, 4, v2")
    a.e("s_lshl_b32 s%d, s%d, 7" % (sB, sCB))
    a.e("v_add_u32 %s, s%d, v2" % (v(vWDV), sB))
    a.e("v_min_u32 v2, 13, v0")
    a.e("v_lshlrev_b32 v2, 7, v2")
    a.e("s_lshr_b32 s%d, s%d, 1" % (sA, sT))
    a.e("s_lshl_b32 s%d, s%d, 11" % (sA, sA))
    a.e("s_add_u32 s%d, s%d, 0x%x" % (sA, sA, WS_HFLAG))
    a.e("v_add_u32 %s, s%d, v2" % (v(vFLA), sA))
    a.e("s_lshl_b32 s%d, s%d, 1" % (sA, sT))
    a.e("s_and_b32 s%d, s%d, 1" % (sB, sW))
    a.e("s_add_u32 s%d, s%d, s%d" % (sA, sA, sB))
    a.e("s_lshl_b32 s%d, s%d, 15" % (sB, sA))
    a.e("s_lshr_b32 s%d, s%d, 1" % (sKQ, sW))
    if Opt.kqx == 2:
        a.e("s_and_b32 s%d, s%d, 2" % (sKQ, sW))
        a.e("s_add_u32 s%d, s%d, s%d" % (sKQ, sKQ, sHI))
    if Opt.kqx == 1:
        a.e("s_lshl_b32 s%d, s%d, 1" % (sC, sCB))
        a.e("s_and_b32 s%d, s%d, 2" % (sC, sC))
        a.e("s_xor_b32 s%d, s%d, s%d" % (sKQ, sKQ, sC))
    a.e("s_lshl_b32 s%d, s%d, 13" % (sC, sKQ))
    a.e("s_add_u32 s%d, s%d, s%d" % (sB, sB, sC))
    a.e("s_add_u32 s%d, s%d, 0x%x" % (sOLD, sB, WS_OF))
    a.e("v_and_b32 v2, 31, v0")
    a.e("v_lshrrev_b32 v3, 5, v0")
    a.e("v_and_b32 v4, 7, v0")
    a.e("v_xor_b32 v3, v3, v4")
    a.e("v_lshlrev_b32 v3, 4, v3")
    a.e("v_lshl_add_u32 v3, v2, 8, v3")
    a.e("s_and_b32 s%d, s%d, 1" % (sB, sW))
    a.e("s_lshl_b32 s%d, s%d, 15" % (sB, sB))
    a.e("s_lshr_b32 s%d, s%d, 1" % (sC, sW))
    a.e("s_lshl_b32 s%d, s%d, 13" % (sD, sC))
    a.e("s_add_u32 s%d, s%d, s%d" % (sOUTO, sD, sB))
    a.e("s_add_u32 s%d, s%d, 0x%x" % (sD, sOUTO, L_RED))
    a.e("v_add_u32 %s, s%d, v3" % (v(vAW0), sD))
    a.e("v_lshrrev_b32 v2, 3, v0")
    a.e("v_lshlrev_b32 v3, 1, v4")
    a.e("v_xor_b32 v3, v3, v2")
    a.e("v_lshlrev_b32 v3, 4, v3")
    a.e("v_lshl_add_u32 v3, v2, 8, v3")
    a.e("s_lshl_b32 s%d, s%d, 11" % (sD, sC))
    a.e("s_add_u32 s%d, s%d, s%d" % (sD, sD, sB))
    a.e("s_add_u32 s%d, s%d, 0x%x" % (sD, sD, L_RED))
    a.e("v_add_u32 %s, s%d, v3" % (v(vAR0), sD))
    a.e("v_lshlrev_b32 v4, 4, v4")
    a.e("v_lshl_add_u32 %s, v2, 10, v4" % v(vOUTA))
    a.e("s_lshl_b32 s%d, s%d, 16" % (sC, sT))
    a.e("s_add_u32 s%d, s%d, s%d" % (sOUTO, sOUTO, sC))
    a.e("s_lshl_b32 s%d, s%d, 7" % (sC, sCB))
    a.e("s_add_u32 s%d, s%d, s%d" % (sOUTO, sOUTO, sC))
    a.e("v_mov_b32 %s, 0xdddd" % v(vIDX))
    a.e("v_lshrrev_b32 v2, 4, v0")
    a.e("v_lshl_add_u32 %s, v2, 8, %s" % (v(vHA), v(vL16)))
    for i in range(16): a.e("v_mov_b32 %s, 0" % v(vO + i))
    for i in range(32): a.e("v_mov_b32 %s, 0" % v(vD + i))
    c0 = -2.0 * math.sqrt(2.0 / math.pi) * math.log2(math.e)
    a.e("v_mov_b32 %s, 0x%x" % (v(vC0), f2u(c0)))
    a.e("v_mov_b32 %s, 0x%x" % (v(vC0 + 1), f2u(c0 * 0.044715)))

def kv_first_loads(a, quartet=False):
    it = []
    for o in (range(0, 16384, 4096) if quartet else range(0, 16384, 8192)):
        b = sWH if quartet else sWK
        it.append(("s_add_u32 m0, s%d, 0x%x\ns_add_u32 s%d, s%d, 0x%x\nbuffer_load_dwordx4 %s, %s, s%d offen sc1 lds"
                   % (b, L_KV + o, sA, b, o, v(vL16), srd(SKV), sA), "kv%d" % (o >> 13)))
    it.append(("s_mov_b32 s%d, 0x%x\nbuffer_load_dwordx4 %s, %s, %s, s%d offen sc1"
               % (sA, 63 * 2048, v(vK0, 4), v(vL16), srd(SKV), sA), "k0"))
    it.append(("s_mov_b64 exec, %s\nbuffer_load_dwordx4 %s, %s, %s, 0 offen offset:%d sc1\ns_mov_b64 exec, -1"
               % (sp(sVM), v(vV1L, 4), v(vL16), srd(SKV), 1024 + 256), "k0"))
    it.append(("s_lshl_b32 s%d, s%d, 2\ns_add_u32 s%d, s%d, s%d\ns_lshl_b32 s%d, s%d, 7\ns_add_u32 s%d, s%d, 0x%x\n"
               "buffer_load_dword %s, %s, %s, s%d offen sc1"
               % (sA, sG, sA, sA, sLO, sA, sA, sA, sA, WS_G, v(vGP), v(vGA), srd(SWS), sA), "k0"))
    it.append(("s_lshl_b32 s%d, s%d, 1\ns_and_b32 s%d, s%d, 1\ns_add_u32 s%d, s%d, s%d\ns_lshl_b32 s%d, s%d, 7\ns_add_u32 s%d, s%d, 0x%x\n"
               "buffer_load_dword %s, %s, %s, s%d offen sc1"
               % (sA, sT, sB, sW, sA, sA, sB, sA, sA, sA, sA, WS_G, v(vGC), v(vGA), srd(SWS), sA), "k0"))
    return it

def spin_counter(a, name, first_loaded, wave=0):
    a.e("s_cmp_lg_u32 s%d, %d" % (sW, wave))
    a.e("s_cbranch_scc1 L_%s_done" % name)
    a.e("s_mov_b32 s%d, 0x4000" % sB)
    if first_loaded: a.e("s_branch L_%s_chk" % name)
    a.lab("L_%s_re" % name)
    a.e("buffer_load_dword %s, off, %s, 0 sc1" % (v(vPOLL), srd(SDBG)))
    a.e("s_waitcnt vmcnt(0)")
    a.lab("L_%s_chk" % name)
    a.e("v_readfirstlane_b32 s%d, %s" % (sA, v(vPOLL)))
    a.e("s_cmp_ge_u32 s%d, 32" % sA)
    a.e("s_cbranch_scc1 L_%s_done" % name)
    a.e("s_sleep 4    ; back-off between two polls of the K/V counter")
    a.e("s_sub_u32 s%d, s%d, 1" % (sB, sB))
    a.e("s_cmp_lg_u32 s%d, 0" % sB)
    a.e("s_cbranch_scc1 L_%s_re" % name)
    a.lab("L_%s_done" % name)

def phase1_F(a):
    SCHED = {1: ["01423567", "10253467", "23016457", "32104756"],
             2: ["02134657", "01324576", "10243567", "10235467"],
             3: ["01324657", "01243576", "12035467", "20134567"],
             5: ["01243567", "10325467", "23014657", "32104576"],
             6: ["01243567", "10325467", "01234657", "10324576"],
             7: ["01234567", "10235476", "01234567", "10235476"],
             8: ["01234567", "10243657", "01234567", "10243657"],
             4: ["02143657", "10325476", "02143657", "10325476"]}
    tabs = SCHED[Opt.sched] if Opt.sched else ["".join(str(c ^ (p & Opt.xmask)) for c in range(8)) for p in range(4)]
    for t_ in tabs: assert sorted(t_) == list("01234567")
    num = [int(t_[::-1], 16) for t_ in tabs]
    def table(a):
        a.e("s_add_u32 s%d, s%d, s%d" % (sA, sG, sHP))
        a.e("s_mov_b32 s%d, 0x%x" % (sXP, num[0]))
        a.e("s_mov_b32 s%d, 0x%x" % (sB, num[2]))
        a.e("s_bitcmp1_b32 s%d, 0" % sA)
        a.e("s_cselect_b32 s%d, 0x%x, s%d" % (sXP, num[1], sXP))
        a.e("s_cselect_b32 s%d, 0x%x, s%d" % (sB, num[3], sB))
        a.e("s_bitcmp1_b32 s%d, 1" % sA)
        a.e("s_cselect_b32 s%d, s%d, s%d" % (sXP, sB, sXP))
        if Opt.ghx:
            a.e("s_bitcmp1_b32 s%d, 3" % sG)
            a.e("s_cselect_b32 s%d, 0x44444444, 0" % sB)
            a.e("s_xor_b32 s%d, s%d, s%d" % (sXP, sXP, sB))
    fo, fw = {"0000": (0, 0), "0101": (0, 1), "0011": (1, 1), "0123": (0, 2)}["".join(t_[0] for t_ in tabs)]
    a.e("s_add_u32 s%d, s%d, s%d" % (sA, sG, sHP))
    a.e("s_bfe_u32 s%d, s%d, 0x%x" % (sCH, sA, fw << 16 | fo))
    if Opt.ghx: a.e("s_lshl2_add_u32 s%d, s%d, s%d" % (sCH, sD, sCH))
    a.e("s_and_b32 s%d, s%d, 0xc00" % (sWH, sWK))
    a.e("v_and_b32 %s, 0xff, v0" % v(vTID))

    def wvoff(a):
        a.e("v_lshrrev_b32 v2, 4, %s" % v(vTID))
        a.e("v_lshrrev_b32 v3, 5, %s" % v(vTID))
        a.e("v_bfi_b32 v3, 3, v2, v3")
        a.e("v_lshlrev_b32 v3, 1, v3")
        a.e("v_xor_b32 v3, v3, %s" % v(vTID))
        a.e("v_and_b32 v3, 15, v3")
        a.e("s_lshl_b32 s%d, s%d, 8" % (sA, sM))
        a.e("v_lshl_add_u32 v3, v3, 4, s%d" % sA)
        a.e("v_mul_u32_u24 v2, 3584, v2")
        a.e("v_add_u32 %s, v2, v3" % v(vDG))
    def qvoff(a):
        a.e("v_lshrrev_b32 v2, 4, %s" % v(vTID))
        a.e("v_and_b32 v2, 2, v2")
        a.e("v_xor_b32 v2, v2, %s" % v(vTID))
        a.e("v_and_b32 v2, 3, v2")
        a.e("s_lshl_b32 s%d, s%d, 6" % (sA, sHP))
        a.e("v_lshl_add_u32 v2, v2, 4, s%d" % sA)
        a.e("v_lshrrev_b32 v3, 2, %s" % v(vTID))
        a.e("v_lshl_add_u32 %s, v3, 10, v2" % v(vDQ))
    def stouch(a):
        if (Opt.diag or Opt.probe >= 0) and not Opt.klate: a.e("s_load_dwordx2 %s, s[0:1], 32" % sp(SWO))
        if not Opt.stch: return
        a.e("s_lshr_b32 s%d, s%d, 2" % (sA, sW))
        if Opt.ghx: a.e("s_lshl2_add_u32 s%d, s%d, s%d" % (sA, sD, sA))
        a.e("s_lshl_b32 s%d, s%d, 6" % (sA, sA))
        a.e("s_and_b32 s%d, s%d, 7" % (sB, sG))
        a.e("s_add_u32 s%d, s%d, s%d" % (sA, sA, sB))
        a.e("s_mul_i32 s%d, s%d, 28" % (sA, sA))
        a.e("s_bfe_u32 s%d, s%d, 0x10001" % (sB, sW))
        a.e("s_lshl1_add_u32 s%d, s%d, s%d" % (sB, sM, sB))
        a.e("s_add_u32 s%d, s%d, s%d" % (sA, sA, sB))
        a.e("s_lshl_b32 s%d, s%d, 7" % (sA, sA))
        a.e("s_bitcmp1_b32 s%d, 0" % sW)
        a.e("s_cselect_b64 %s, %s, %s" % (sp(SWKV), sp(SWU), sp(SWG)))
        a.e("s_add_u32 s%d, s%d, s%d" % (SWKV, SWKV, sA))
        a.e("s_addc_u32 s%d, s%d, 0" % (SWKV + 1, SWKV + 1))
        for i in range(Opt.stch):
            a.e("s_load_dwordx2 %s, %s, 0x%x" % (sp(sTMPP), sp(SWKV), 128 * 3584 + i * 8 * 3584 + 60))
    def wsrd(a):
        srd_words(a, [SWG])
        a.e("s_mov_b64 %s, %s" % (sp(SWU + 2), sp(SWG + 2)))

    if Opt.hrot:
        ORDER = [("q", 0)] + [(t_, 2 * h_ + j) for h_ in range(2) for t_, j in (("x", 0), ("x", 1), ("g", 0), ("u", 0), ("g", 1), ("u", 1))]
    else:
        ORDER = [("q", 0)] + [("x", j) for j in range(4)] + [(t_, j) for j in range(4) for t_ in "gu"]
    def block(items):
        out = []; lastc = None; lastw = None
        for c, kind, j in items:
            s = c % 3; pre = []
            if c != lastc:
                if c: pre.append("s_bfe_u32 s%d, s%d, 0x%x" % (sCH, sXP, 0x30000 + 4 * c))
                lastc = c; lastw = None
            fam = "w" if kind in "gu" else kind
            rot = Opt.hrot and fam != "q"
            if lastw is None or lastw[0] != fam or (rot and lastw[1] >> 1 != j >> 1):
                pre.append({"q": "s_lshl_b32 s%d, s%d, 16" % (sOFFW, sCH), "x": "s_lshl_b32 s%d, s%d, 7" % (sOFFW, sCH),
                            "w": "s_mul_i32 s%d, s%d, %d" % (sOFFW, sCH, 64 * 3584)}[fam])
                if rot: pre.append("s_%s_u32 s%d, s%d, s%d" % ("sub" if j >> 1 else "add", sOFFW, sOFFW, sRX if fam == "x" else sRW))
                lastw = (fam, 0)
            if lastw[1] != j:
                pre.append("s_add_u32 s%d, s%d, 0x%x" % (sOFFW, sOFFW, (j - lastw[1]) * (0x8000 if fam == "x" else 16 * 3584)))
                lastw = (fam, j)
            m0c, vo, rs = {"q": (L_WQ + s * 4096, vDQ, SWQ), "x": (L_X + s * 16384 + j * 4096, vDX, SX),
                           "g": (L_G + s * 16384 + j * 4096, vDG, SWG), "u": (L_U + s * 16384 + j * 4096, vDG, SWU)}[kind]
            nt = " nt" if Opt.ntx & (1 if rs == SX else 2) else ""
            out.append(("s_add_u32 m0, s%d, 0x%x\n%s\nbuffer_load_dwordx4 %s, %s, s%d offen%s lds"
                        % ((sM0B + (j >> 1)) if rot else sWH, m0c, "\n".join(pre) or "s_nop 0", v(vo), srd(rs), sOFFW, nt), "c%d" % c))
        return out
    def part(c, role): return [(c, k_, j) for k_, j in ORDER if (k_ in "gu") == (role == "A")]

    def rdsetup(a):
        setup_rd(a)
        a.e("v_lshl_add_u32 %s, v3, 3, v2" % v(vWA))
        a.e("v_lshlrev_b32 %s, 8, %s" % (v(vWA), v(vWA)))
        a.e("v_lshl_add_u32 %s, v4, 3, %s" % (v(vWA), v(vWA)))
        a.e("v_and_b32 v5, 1, v3")
        a.e("v_lshl_add_u32 v2, v5, 2, v2")
        a.e("s_lshl_b32 s%d, s%d, 2" % (sA, sHI))
        a.e("s_and_b32 s%d, s%d, 1" % (sB, sLO))
        a.e("s_lshl_b32 s%d, s%d, 1" % (sB, sB))
        a.e("s_add_u32 s%d, s%d, s%d" % (sA, sA, sB))
        a.e("v_xor_b32 v2, s%d, v2" % sA)
        a.e("v_lshl_add_u32 %s, v2, 5, %s" % (v(vWA), v(vWA)))
        a.e("v_xor_b32 %s, 32, %s" % (v(vWA + 1), v(vWA)))
        a.e("v_add_u32 %s, 0x%x, %s" % (v(vWA + 2), L_U - L_G, v(vWA)))
        a.e("v_add_u32 %s, 0x%x, %s" % (v(vWA + 3), L_U - L_G, v(vWA + 1)))
        a.e("s_lshl_b32 s%d, s%d, 12" % (sA, sLO))
        a.e("s_add_u32 s%d, s%d, 0x%x" % (sA, sA, L_X))
        a.e("v_add_u32 %s, s%d, %s" % (v(vXA), sA, v(vXA)))
        a.e("v_xor_b32 %s, 0x1000, %s" % (v(vXA + 1), v(vXA)))
        a.e("v_xor_b32 %s, 64, %s" % (v(vXA + 2), v(vXA)))
        a.e("v_xor_b32 %s, 64, %s" % (v(vXA + 3), v(vXA + 1)))
        a.e("v_add_u32 %s, 0x%x, %s" % (v(vQA), L_WQ, v(vQA)))

    a.e("s_cmp_ge_u32 s%d, 4" % sW)
    a.e("s_cbranch_scc1 L_setB")
    late = collect(setup_oclr) + collect(setup_ones) + [("; later", None)] + collect(setup_attn)
    words = collect(lambda t: srd_words(t, [SWS, SKV, SDBG, SWD, SWO, SOUT]))
    late = [x for x in late if x not in words]
    oclr = [x for x in late if x[1] == "oclr"]
    if Opt.olate: late = [x for x in late if x[1] != "oclr"]
    else: oclr = []
    words += [("v_mov_b32 %s, 0" % v(r_), None) for r_ in (vGA, vWDV, vFLA, vHA, vOUTA)]
    st = collect(rdsetup) + words + late[:Opt.fillpre]
    cut = late.index(("; later", None)) if Opt.bidle else len(late)
    fills = {"A": late[Opt.fillpre:], "B": late[Opt.fillpre:max(cut, Opt.fillpre)]}
    idleB = late[max(cut, Opt.fillpre):]
    vms = {}
    wsrd(a); wvoff(a)
    a.e("s_waitcnt lgkmcnt(0)")
    a.stamp(2)
    if Opt.spos == 0: stouch(a)
    put(a, block(part(0, "A")))
    a.e("s_branch L_setA")
    vms["A"] = a.vm; a.vm = []
    a.lab("L_setB")
    srd_words(a, [SX]); xvoff(a, vTID)
    a.e("s_waitcnt lgkmcnt(0)")
    a.stamp(2)
    if Opt.spos == 0: stouch(a)
    put(a, block(part(0, "B")[1:]))
    srd_words(a, [SWQ]); qvoff(a)
    put(a, block(part(0, "B")[:1]))
    vms["B"] = a.vm
    for role in "BA":
        a.vm = vms[role]
        if role == "A": a.lab("L_setA")
        if Opt.spos == 1: stouch(a)
        table(a)
        setup_ids(a)
        if role == "A": srd_words(a, [SX, SWQ])
        else: wsrd(a)
        def touches():
            tm = sum(0xff << (8 * i) for i in range(4) if Opt.tch >> i & 1)
            setex = "s_bitcmp1_b32 s%d, 3\ns_cselect_b32 exec_lo, 0, 0x%x\ns_cselect_b32 exec_hi, 0x%x, 0" % (sG, tm, tm) if Opt.ghx \
                    else "s_mov_b32 exec_lo, 0x%x\ns_mov_b32 exec_hi, 0" % tm
            if Opt.tlb & 2 and role == "B":
                a.e("s_and_b32 s%d, s%d, 7" % (sA, sG))
                a.e("v_lshl_add_u32 v2, v0, 3, s%d" % sA)
                a.e("v_mul_u32_u24 v3, 3584, v2")
                a.e("s_and_b32 s%d, s%d, 1" % (sB, sW))
                a.e("s_lshl1_add_u32 s%d, s%d, s%d" % (sA, sM, sB))
                a.e("s_lshl_b32 s%d, s%d, 7" % (sA, sA))
                a.e(setex)
                a.e("s_cmp_ge_u32 s%d, 6" % sW)
                a.e("s_cbranch_scc1 L_tlbu")
                a.e("buffer_load_dword %s, v3, %s, s%d offen" % (v(vPOLL), srd(SWG), sA))
                a.e("s_branch L_tlbe")
                a.lab("L_tlbu")
                a.e("buffer_load_dword %s, v3, %s, s%d offen" % (v(vPOLL), srd(SWU), sA))
                a.lab("L_tlbe")
                a.e("s_mov_b64 exec, -1")
                a.vm.append("tlb")
            if Opt.tlb & 12 and role == "A":
                a.e("s_cmp_lg_u32 s%d, 0" % sW)
                a.e("s_cbranch_scc1 L_tlbx")
                a.e("s_and_b32 s%d, s%d, 7" % (sA, sG))
                a.e("v_lshl_add_u32 v2, v0, 3, s%d" % sA)
                a.e("v_lshlrev_b32 v3, 10, v2")
                a.e("s_lshl_b32 s%d, s%d, 6" % (sA, sHP))
                a.e(setex if Opt.tlb & 4 else "s_mov_b64 exec, 1")
                a.e("buffer_load_dword %s, v3, %s, s%d offen" % (v(vPOLL), srd(SWQ), sA))
                if not Opt.tlb & 8:
                    a.e("s_mov_b64 exec, -1")
                    a.lab("L_tlbx")
                    return
                a.e("s_branch L_tlby")
                a.lab("L_tlbx")
                a.e("s_bitcmp1_b32 s2, 0")
                a.e("s_cselect_b32 s%d, %d, %d" % (sB, Opt.xodd, Opt.xeven))
                a.e("s_and_b32 s%d, s%d, 3" % (sA, sHP))
                a.e("s_mul_i32 s%d, s%d, s%d" % (sA, sA, sB))
                a.e("s_lshl_b32 s%d, s%d, 7" % (sC, sG))
                a.e("s_add_u32 s%d, s%d, s%d" % (sA, sA, sC))
                a.e("v_add_lshl_u32 v3, v0, s%d, 10" % sA)
                a.e("s_lshr_b32 s%d, s%d, 3" % (sA, sG))
                a.e("s_lshl2_add_u32 s%d, s%d, s%d" % (sA, sA, sW) if Opt.ghx else "s_mov_b32 s%d, s%d" % (sA, sW))
                a.e("s_lshl_b32 s%d, s%d, 7" % (sA, sA))
                a.e("s_bitcmp1_b32 %d, s%d" % (Opt.tch if Opt.tlb & 8 else 0, sW))
                a.e("s_cselect_b32 s%d, s%d, 1" % (sB, sB))
                a.e("s_bfm_b64 exec, s%d, 0" % sB)
                a.e("buffer_load_dword %s, v3, %s, s%d offen" % (v(vPOLL), srd(SX), sA))
                a.lab("L_tlby")
                a.e("s_mov_b64 exec, -1")
                a.vm.append("tlb")
        if Opt.tpos == 0: touches()
        if Opt.startbar: a.e("s_barrier")
        npre = min(Opt.npre, 8) if role == "A" else 5
        pn = block(part(1, role)[:npre])
        rest = st + (collect(qvoff) + collect(lambda t: xvoff(t, vTID)) if role == "A" else collect(wvoff))
        gap = len(rest) // (npre + Opt.pregap) + 1
        if Opt.tpos == 2:
            put(a, pn); touches(); npre = 0
        if Opt.tpos == 3 and role == "B":
            put(a, pn); touches(); npre = 0
        for i in range(npre):
            put(a, pn[:1]); pn = pn[1:]
            put(a, rest[:gap]); rest = rest[gap:]
        put(a, rest)
        if Opt.tpos == 1 or (Opt.tpos == 3 and role == "A"): touches()
        a.e("s_mov_b64 vcc, %d" % (-1 if role == "A" else 0))
        if role == "A":
            a.waitvm("c0", lgkm=True)
        else:
            a.e("s_setprio 1")
            a.waitvm("c0", lgkm=True)
            a.e("s_branch L_k0")
        vms[role] = a.vm
    stream = part(1, "A")[min(Opt.npre, 8):] + [(c, k_, j) for c in range(2, 8) for k_, j in ORDER]
    qa = [int(x, 16) for x in Opt.qa]; qb = [int(x, 16) for x in Opt.qb]
    def take(n, cmax):
        m = 0
        while m < n and m < len(stream) and stream[m][0] <= cmax: m += 1
        r_ = stream[:m]; del stream[:m]
        return block(r_)
    a.lab("L_k0")
    a.vm = vms["A"]
    ool = Asm()
    def dmablock(name, role, items, wait=None):
        a.e("s_cbranch_vcc%s L_%s" % ("nz" if role == "A" else "z", name))
        if wait: a.waitvm(wait, lgkm=True)
        a.lab("L_%s_r" % name)
        ool.lab("L_%s" % name)
        ool.vm = a.vm if role == "A" else vms["B"]
        for it_ in items:
            put(ool, [it_])
            fp = Opt.fillper if role == "A" or not Opt.bidle else 2
            put(ool, fills[role][:fp]); fills[role] = fills[role][fp:]
        if name in ("d7", "e7"): put(ool, fills[role]); fills[role] = []
        if wait: ool.waitvm(wait, lgkm=True)
        if role == "B": vms["B"] = ool.vm
        ool.e("s_branch L_%s_r" % name)
    a.ool = ool.l

    def fr(k):
        b = vF1 + 36 * (k % 2)
        return dict(x=b, w=b + 16, q=b + 32)
    def reads(k):
        c, s = divmod(k, 2); f = fr(k); sl = c % 3
        wo = sl * 16384 + s * 8192
        W = lambda i: [rdtr(f['w'] + 4 * i, vWA + i, wo), rdtr(f['w'] + 4 * i + 2, vWA + i, wo + 1024)]
        X = [rd128(f['x'] + 4 * b, vXA + 2 * s + (b >> 1), sl * 16384 + (b & 1) * 2048) for b in range(4)]
        return W(0) + X + W(2) + W(1) + W(3) + [rdtr(f['q'], vQA, sl * 4096 + s * 2048), rdtr(f['q'] + 2, vQA, sl * 4096 + s * 2048 + 256)]
    a.e("s_barrier")
    a.stamp(3)
    if Opt.kdiag or Opt.probe >= 18:
        kstamp(a, 2)
        a.e("s_waitcnt lgkmcnt(0)")
    if Opt.kal: a.l.append(".p2align 3")
    if Opt.kal == 2: a.e("s_nop 0")
    al = (lambda: a.l.append(".p2align 3")) if Opt.kal == 3 else (lambda: None)
    for r in reads(0): a.e(r)
    if qa[0]: dmablock("d2", "A", take(qa[0], 2))
    for k in range(16):
        c, s = divmod(k, 2); f = fr(k)
        z = lambda x: None if k == 0 else x
        mf = []
        for n_, i in enumerate((0, 2, 1, 3)):
            for b in (range(4) if n_ % 2 == 0 else range(3, -1, -1)):
                d = vACC + 16 * b + 4 * i
                mf.append(mfma16(d, f['w'] + 4 * i, f['x'] + 4 * b, z(d)))
        for b in range(2): mf.append(mfma16(vAQ + 4 * b, f['q'], f['x'] + 4 * b, z(vAQ + 4 * b)))
        rds = reads(k + 1) if k < 15 else []
        if s == 0:
            a.e("s_waitcnt lgkmcnt(6)"); al()
            for i, m in enumerate(mf):
                if i == 8: a.e("s_waitcnt lgkmcnt(%d)" % (8 - Opt.kw0)); al()
                a.e(m)
                if Opt.kw0 and i == 7: continue
                ii = i - (1 if Opt.kw0 and i > 7 else 0)
                if ii < len(rds): a.e(rds[ii])
            continue
        a.e("s_waitcnt lgkmcnt(8)")
        for m in mf[:Opt.kb]: a.e(m)
        if c <= 5:
            dmablock("e%d" % (c + 2), "B", take(qb[c], c + 2), "c%d" % (c + 1))
            assert not any(x[0] <= c + 1 for x in stream)
        if c == 7:
            a.e("s_waitcnt lgkmcnt(0)")
        elif c == 6:
            a.e("s_waitcnt lgkmcnt(0)")
            a.e("s_cbranch_vccz L_st7")
            a.e("s_setprio 1")
            a.e("s_waitcnt vmcnt(0)")
            a.e("s_barrier")
            a.lab("L_st7")
        else:
            a.e("s_barrier")
        if c < 7 and ((Opt.kdiag == 1 and Opt.diag) or Opt.probe == 21 + c):
            kstamp(a, 3 + c)
            a.e("s_waitcnt lgkmcnt(0)")
        if c + 3 < 8:
            items = take(qa[c + 1], c + 3)
            dmablock("d%d" % (c + 3), "A", items)
        al()
        for i, m in enumerate(mf[Opt.kb:]):
            a.e(m)
            if i < len(rds): a.e(rds[i])
        if k == 11: assert not stream and not fills["A"] and not fills["B"]
        if k == 11:
            a.e("s_cbranch_vccnz L_st6")
            a.e("s_setprio 0")
            nm = next((i for i, x in enumerate(idleB) if "0xdddd" in x[0]), 0)
            a.e("s_cmp_lg_u32 s%d, 4" % sW)
            a.e("s_cbranch_scc1 L_nopoll")
            a.e("buffer_load_dword %s, off, %s, 0 sc1" % (v(vPOLL), srd(SDBG)))
            a.lab("L_nopoll")
            put(a, idleB[:nm]); idleB = idleB[nm:]
            a.wait0()
            spin_counter(a, "kvf", True, 4)
            a.e("s_barrier")
            put(a, kv_first_loads(a, True) + oclr + idleB)
            a.lab("L_st6")
    a.kvA = (kv_first_loads(a) + oclr)[2:]
    a.stamp(4)

def phase1_L(a):
    a.lab("L_light")
    a.vm = []
    if Opt.oddl: a.e("s_add_u32 s%d, s%d, 14" % (sM, sB))
    if Opt.klate:
        ptr_loads(a, ((SGATE, 72), (SWKV, 16), (SWV, 24)))
    else:
        a.e("s_waitcnt lgkmcnt(0)")
        ptr_loads(a, ((SWKV, 16), (SWV, 24), (SGATE, 72), (SWO, 32)))
    srd_words(a, [SWKV, SWV, SGATE, SX])
    xvoff(a, 0)
    a.e("v_and_b32 v2, 63, v0")
    a.e("v_lshlrev_b32 %s, 4, v2" % v(vL16))
    a.e("s_sub_u32 s%d, s%d, 14" % (sCNT, sM))
    a.e("s_lshl_b32 s%d, s%d, 16" % (sOLD, sCNT))
    a.e("s_lshl_b32 s%d, s%d, 13" % (sHST, sCNT))
    a.e("s_add_u32 s%d, s%d, s%d" % (sWH, sHST, sWK))
    a.e("s_xor_b32 s%d, s%d, 0x2000" % (sHST, sHST))
    a.e("s_add_u32 s%d, s%d, 0x2000" % (sA, sWK))
    a.e("s_waitcnt lgkmcnt(0)")
    a.stamp(2)
    def xdma(c, base, so):
        a.vmop("s_add_u32 m0, s%d, 0x%x\ns_nop 0\nbuffer_load_dwordx4 %s, %s, s%d offen offset:%d lds"
               % (base, LL_X + c * 16384 - c * 128, v(vDX), srd(SX), so, c * 128), "c%d" % c)
    def wdma(u):
        for t, rs in enumerate((SWKV, SWV)):
            a.vmop("s_add_u32 m0, s%d, 0x%x\ns_nop 0\nbuffer_load_dwordx4 %s, %s, s%d offen lds"
                   % (sWK, LL_W + t * 16384 + u * 8192, v(vL16), srd(rs), sA if u else sWK), "w")
    wdma(0)
    a.vmop("s_mov_b32 m0, s%d\ns_nop 0\nbuffer_load_dwordx4 %s, %s, 0 offen lds" % (sHST, v(vL16), srd(SGATE)), "w")
    for c in range(8):
        if c == 4: wdma(1)
        xdma(c, sWH, sOLD)
        if (c == 1 and Opt.lthr & 1) or (c == 3 and Opt.lthr & 2): a.e("s_waitcnt vmcnt(0)")
        if c in (1, 3, 5): a.e("s_barrier")
    setup_ids(a)
    srd_words(a, [SWQ])
    setup_rd(a)
    a.e("v_lshrrev_b32 v3, 5, v0")
    a.e("v_bfrev_b32 v5, v4")
    a.e("v_lshrrev_b32 v5, 30, v5")
    a.e("s_cmp_ge_u32 s%d, 2" % sLO)
    a.e("s_cselect_b64 vcc, -1, 0")
    a.e("v_cndmask_b32 v4, v5, v4, vcc")
    a.e("v_lshl_add_u32 %s, v3, 3, v2" % v(vWA))
    a.e("v_lshlrev_b32 %s, 5, %s" % (v(vWA), v(vWA)))
    a.e("v_lshl_add_u32 %s, v4, 3, %s" % (v(vWA), v(vWA)))
    a.e("s_lshr_b32 s%d, s%d, 1" % (sA, sLO))
    a.e("s_lshl_b32 s%d, s%d, 14" % (sA, sA))
    a.e("s_add_u32 s%d, s%d, 0x%x" % (sA, sA, LL_W))
    a.e("v_add_u32 %s, s%d, %s" % (v(vWA), sA, v(vWA)))
    a.e("v_lshl_add_u32 %s, v3, 4, s%d" % (v(vWA + 1), sHST))
    a.e("s_and_b32 s%d, s%d, 1" % (sA, sLO))
    a.e("s_lshl_b32 s%d, s%d, 1" % (sB, sCNT))
    a.e("s_add_u32 s%d, s%d, s%d" % (sCNT, sA, sB))
    a.e("s_lshl_b32 s%d, s%d, 12" % (sA, sCNT))
    a.e("v_and_b32 v2, 31, v0")
    a.e("v_lshrrev_b32 v4, 1, v0")
    a.e("v_lshlrev_b32 v5, 1, v0")
    a.e("v_bfi_b32 v4, 4, v4, v5")
    a.e("v_bfi_b32 v4, 12, v4, v2")
    a.e("v_cndmask_b32 v2, v2, v4, vcc")
    a.e("v_bfe_u32 v4, v2, 1, 3")
    a.e("v_xor_b32 v4, v4, v3")
    a.e("v_lshlrev_b32 v4, 4, v4")
    a.e("v_lshl_add_u32 v4, v2, 7, v4")
    a.e("v_add_u32 %s, s%d, v4" % (v(vLX), sA))
    for s in range(1, 4): a.e("v_xor_b32 %s, %d, %s" % (v(vLX + s), 32 * s, v(vLX)))
    for s in range(4): a.e("v_add_u32 %s, 0x10000, %s" % (v(vLX + 4 + s), v(vLX + s)))
    a.e("s_waitcnt lgkmcnt(0)")
    setup_oclr(a)
    vm0 = list(a.vm)
    a.e("s_cmp_lg_u32 s%d, 0" % sHI)
    a.e("s_cbranch_scc1 L_lB")
    a.e("s_not_b64 %s, %s" % (sp(sTMPP), sp(sVM)))
    a.e("s_cmp_ge_u32 s%d, 2" % sLO)
    a.e("s_cbranch_scc1 L_lV")
    def chain(kind):
        a.vm = list(vm0)
        def fr(k):
            b = vFR + 8 * (k % 4)
            return b, b + 4
        def reads(k):
            c, s = divmod(k, 4); x, w = fr(k)
            r = [rd128(x, vLX + s + 4 * (c >> 2), (c & 3) * 16384), rdtr(w, vWA, k * 512), rdtr(w + 2, vWA, k * 512 + 128)]
            if kind == "K":
                r += ["s_mov_b64 exec, %s" % sp(sTMPP), rd128(w, vWA + 1, k * 32), "s_mov_b64 exec, -1"]
            return r
        for q in range(4):
            a.waitvm("c%d" % (2 * q + 1))
            a.e("s_barrier")
            nr = 4 if kind == "K" else 3
            for k in range(8 * q, 8 * q + 2):
                for r in reads(k): a.e(r)
            for k in range(8 * q, 8 * q + 8):
                if k + 2 < 8 * q + 8:
                    for r in reads(k + 2): a.e(r)
                left = min(2, 8 * q + 7 - k)
                a.e("s_waitcnt lgkmcnt(%d)" % (left * nr))
                x, w = fr(k)
                cc = None if k == 0 else vACC
                a.e(mfma(vACC, w, x, cc) if kind == "K" else mfma(vACC, x, w, cc))
        a.e("s_lshl_b32 s%d, s%d, 2" % (sA, sG))
        a.e("s_add_u32 s%d, s%d, s%d" % (sA, sA, sCNT))
        a.e("s_nop 12")
        if kind == "K":
            a.e("s_mov_b32 s%d, 0x%x" % (sC, f2u(0.25 * math.log2(math.e))))
            for i in range(8): a.e("v_mul_f32 %s, s%d, %s" % (v(vACC + i), sC, v(vACC + i)))
            a.e("v_mul_f32 %s, 0x%x, %s" % (v(vACC + 8), f2u(-math.log2(math.e)), v(vACC + 8)))
            a.e("v_exp_f32 %s, %s" % (v(vACC + 8), v(vACC + 8)))
            for i in range(4): a.e("v_cvt_pk_bf16_f32 %s, %s, %s" % (v(vFR + i), v(vACC + 2 * i), v(vACC + 2 * i + 1)))
            a.e("v_add_f32 %s, 1.0, %s" % (v(vACC + 8), v(vACC + 8)))
            a.e("v_rcp_f32 %s, %s" % (v(vACC + 8), v(vACC + 8)))
            a.e("s_add_u32 s%d, s%d, 63" % (sB, sA))
            a.e("s_and_b32 s%d, s%d, 63" % (sB, sB))
            a.e("s_lshl_b32 s%d, s%d, 11" % (sB, sB))
            a.e("buffer_store_dwordx4 %s, %s, %s, s%d offen sc1" % (v(vFR, 4), v(vL16), srd(SKV), sB))
            a.e("s_lshl_b32 s%d, s%d, 7" % (sB, sA))
            a.e("s_add_u32 s%d, s%d, 0x%x" % (sB, sB, WS_G))
            a.e("s_mov_b32 exec_hi, 0")
            a.e("buffer_store_dword %s, %s, %s, s%d offen sc1" % (v(vACC + 8), v(vGA), srd(SWS), sB))
            a.e("s_mov_b64 exec, -1")
        else:
            for i in range(8): a.e("v_cvt_pk_bf16_f32 %s, %s, %s" % (v(vFR + i), v(vACC + 2 * i), v(vACC + 2 * i + 1)))
            a.e("v_bfe_u32 v2, v0, 4, 1")
            a.e("v_add_u32 v2, s%d, v2" % sA)
            a.e("v_and_b32 v2, 63, v2")
            a.e("v_lshl_add_u32 v2, v2, 11, %s" % v(vL16))
            for i in range(4): a.e("v_cndmask_b32 %s, %s, %s, %s" % (v(vFR + i), v(vFR + 4 + i), v(vFR + i), sp(sVM)))
            a.e("buffer_store_dwordx4 %s, v2, %s, 0 offen offset:1024 sc1" % (v(vFR, 4), srd(SKV)))
        a.e("s_branch L_lJ")
    chain("K")
    a.lab("L_lV")
    chain("V")
    a.lab("L_lB")
    a.vm = list(vm0)
    a.e("s_cmp_lg_u32 s%d, 14" % sM)
    a.e("s_cbranch_scc1 L_nozf")
    a.e("s_cmp_lg_u32 s%d, 4" % sW)
    a.e("s_cbranch_scc1 L_nozf")
    a.e("v_lshlrev_b32 v2, 7, v0")
    a.e("s_lshl_b32 s%d, s%d, 11" % (sA, sG))
    a.e("s_add_u32 s%d, s%d, 0x%x" % (sA, sA, WS_HFLAG))
    a.e("s_mov_b64 exec, 0xffff")
    a.e("buffer_store_dword %s, v2, %s, s%d offen sc1" % (v(vZERO), srd(SWS), sA))
    a.e("s_mov_b64 exec, -1")
    a.lab("L_nozf")
    for q in range(4):
        a.waitvm("c%d" % (2 * q + 1))
        a.e("s_barrier")
    a.lab("L_lJ")
    a.e("v_lshrrev_b32 v3, 2, v0")
    a.e("v_lshlrev_b32 v3, 10, v3")
    a.e("v_lshrrev_b32 v4, 5, v0")
    a.e("v_lshlrev_b32 v4, 1, v4")
    a.e("v_xor_b32 v4, v4, v0")
    a.e("v_and_b32 v4, 3, v4")
    a.e("v_lshl_add_u32 v3, v4, 4, v3")
    a.e("s_lshl_b32 s%d, s%d, 14" % (sA, sW))
    a.e("s_lshl_b32 s%d, s%d, 6" % (sB, sHP))
    a.e("s_add_u32 s%d, s%d, s%d" % (sA, sA, sB))
    a.e("v_add_u32 %s, s%d, v3" % (v(vDQ), sA))
    a.e("s_xor_b32 s%d, s%d, 0x2000" % (sWH, sWH))
    a.e("s_xor_b32 s%d, s%d, 0x10000" % (sOLD, sOLD))
    a.wait0(lgkm=True)
    a.e("s_barrier")
    a.e("s_cmp_lg_u32 s%d, 0" % sW)
    a.e("s_cbranch_scc1 L_noat")
    a.e("s_mov_b64 exec, 1")
    a.e("buffer_atomic_add %s, off, %s, 0 sc1" % (v(vONE), srd(SDBG)))
    a.e("s_mov_b64 exec, -1")
    a.lab("L_noat")
    a.stamp(3)
    for c in range(8): xdma(c, sWH, sOLD)
    for p in range(4):
        a.e("s_add_u32 m0, s%d, 0x%x" % (sWK, LL_WQ + p * 8192))
        a.e("s_mov_b32 s%d, 0x%x" % (sA, p * 128 * 1024))
        a.e("buffer_load_dwordx4 %s, %s, s%d offen lds" % (v(vDQ), srd(SWQ), sA))
    setup_ones(a)
    setup_attn(a)
    if Opt.touch & 2:
        a.e("s_lshl_b32 s%d, s%d, 1" % (sA, sG))
        a.e("s_add_u32 s%d, s%d, s%d" % (sA, sA, sM))
        a.e("s_sub_u32 s%d, s%d, 14" % (sA, sA))
        a.e("s_lshl_b32 s%d, s%d, 3" % (sA, sA))
        a.e("s_add_u32 s%d, s%d, s%d" % (sA, sA, sW))
        a.e("v_lshlrev_b32 v2, 15, v0")
        a.e("s_lshl_b32 s%d, s%d, 7" % (sA, sA))
        a.e("buffer_load_dword %s, v2, %s, s%d offen" % (v(vPOLL), srd(SWO), sA))
        a.e("buffer_load_dword %s, v2, %s, s%d offen" % (v(vPOLL), srd(SWD), sA))
    a.e("s_lshl_b32 s%d, s%d, 12" % (sA, sLO))
    a.e("v_add_u32 %s, s%d, %s" % (v(vXA), sA, v(vXA)))
    a.e("v_xor_b32 %s, 64, %s" % (v(vXA + 1), v(vXA)))
    a.e("v_add_u32 %s, 0x10000, %s" % (v(vXA + 2), v(vXA)))
    a.e("v_add_u32 %s, 0x10000, %s" % (v(vXA + 3), v(vXA + 1)))
    a.e("v_add_u32 %s, 0x%x, %s" % (v(vQA), LL_WQ, v(vQA)))
    a.e("s_waitcnt vmcnt(%d)" % (2 if Opt.touch & 2 else 0))
    a.e("s_barrier")
    def fr(k): return vFR + 12 * (k % 3)
    def reads(k):
        c, s = divmod(k, 2); f = fr(k)
        return [rd128(f + 4 * b, vXA + s + 2 * (c >> 2), (c & 3) * 16384 + b * 2048) for b in range(2)] + \
               [rdtr(f + 8, vQA, k * 2048), rdtr(f + 10, vQA, k * 2048 + 256)]
    for k in range(2):
        for r in reads(k): a.e(r)
    for k in range(16):
        a.e("s_waitcnt lgkmcnt(%d)" % (4 * min(1, 15 - k)))
        for b in range(2): a.e(mfma16(vAQ + 4 * b, fr(k) + 8, fr(k) + 4 * b, None if k == 0 else vAQ + 4 * b))
        if k + 2 < 16:
            for r in reads(k + 2): a.e(r)
    spin_counter(a, "kvl", False)
    a.e("s_barrier")
    for s, t in kv_first_loads(a): a.e(s)
    a.wait0()
    a.stamp(4)
    a.e("s_branch L_join")

def gelu_tile(a, ti, scalar=False):
    acc = vACC + 16 * ti
    t = vFR
    o = vFR + 8 + 4 * ti
    pk = lambda r: v(r, 2)
    if scalar:
        for i in range(8): a.e("v_mul_f32 %s, %s, %s" % (v(t + i), v(acc + i), v(acc + i)))
        for i in range(8): a.e("v_fma_f32 %s, %s, %s, %s" % (v(t + i), v(t + i), v(vC0 + 1), v(vC0)))
        for i in range(8): a.e("v_mul_f32 %s, %s, %s" % (v(t + i), v(t + i), v(acc + i)))
        for i in range(8): a.e("v_exp_f32 %s, %s" % (v(t + i), v(t + i)))
        for i in range(8): a.e("v_add_f32 %s, 1.0, %s" % (v(t + i), v(t + i)))
        for i in range(8): a.e("v_rcp_f32 %s, %s" % (v(t + i), v(t + i)))
        for i in range(8): a.e("v_mul_f32 %s, %s, %s" % (v(acc + i), v(acc + i), v(acc + 8 + i)))
        for i in range(8): a.e("v_mul_f32 %s, %s, %s" % (v(acc + i), v(acc + i), v(t + i)))
    R4, R8 = (range(0), range(0)) if scalar else (range(4), range(8))
    for i in R4: a.e("v_pk_mul_f32 %s, %s, %s" % (pk(t + 2 * i), pk(acc + 2 * i), pk(acc + 2 * i)))
    for i in R4: a.e("v_pk_fma_f32 %s, %s, %s, %s op_sel:[0,1,0] op_sel_hi:[1,1,0]" % (pk(t + 2 * i), pk(t + 2 * i), pk(vC0), pk(vC0)))
    for i in R4: a.e("v_pk_mul_f32 %s, %s, %s" % (pk(t + 2 * i), pk(t + 2 * i), pk(acc + 2 * i)))
    for i in R8: a.e("v_exp_f32 %s, %s" % (v(t + i), v(t + i)))
    for i in R4: a.e("v_pk_add_f32 %s, %s, 1.0 op_sel_hi:[1,0]" % (pk(t + 2 * i), pk(t + 2 * i)))
    for i in R8: a.e("v_rcp_f32 %s, %s" % (v(t + i), v(t + i)))
    for i in R4: a.e("v_pk_mul_f32 %s, %s, %s" % (pk(acc + 2 * i), pk(acc + 2 * i), pk(acc + 8 + 2 * i)))
    for i in R4: a.e("v_pk_mul_f32 %s, %s, %s" % (pk(acc + 2 * i), pk(acc + 2 * i), pk(t + 2 * i)))
    for i in range(4): a.e("v_cvt_pk_bf16_f32 %s, %s, %s" % (v(o + i), v(acc + 2 * i), v(acc + 2 * i + 1)))
    a.vmop("buffer_store_dwordx4 %s, %s, %s, s%d offen offset:%d sc1" % (v(o, 4), v(vHA), srd(SWS), sHST2 if ti >> 1 else sHST, (ti & 1) * 256), "hst")

def Yseg(hset, toggle=False, first=False, extra=False, last=False):
    out = []
    for t in range(2):
        pos = [int(x, 17) for x in (Opt.ypos0 if hset is None else Opt.ypos2 if extra else Opt.ypos1)]
        if last and t == 1: pos = [pos[0], 0, 11, pos[1]]
        S, Sn = vS + 16 * t, vS + 16 * (1 - t)
        K, V0, V1 = vKF + 4 * t, vV + 8 * t, vV + 8 * t + 4
        for e in range(1, 17):
            out.append("v_exp_f32 %s, %s" % (v(S + e - 1), v(S + e - 1)))
            if e == pos[0] and not (first and t == 0): out.append(smfmac(vO, V1, Sn + 8))
            if e == pos[1]: out.append(mfma(Sn, K, vQ, None))
            if e == pos[2]: out.append(smfmac(vO, V0, S))
            if hset is not None:
                if e == 13 and t == 1 and toggle:
                    out.append("v_xor_b32 %s, 0x4000, %s" % (v(vKVB), v(vKVB)))
                if e == pos[3]: out.append(mfma(vD + 16 * t, vWF + 4 * t, vH + 4 * hset, vD + 16 * t))
                if extra and e == pos[4]: out.append(mfma(vD + 16 * t, vFR + 16 + 4 * t, vH + 16 + 4 * hset, vD + 16 * t))
    return out

def kv_reads(off, vKVA=vKVA):
    r = [rd128(vKF, vKVA, off), rd128(vKF + 4, vKVA, off + 2048), "s_mov_b64 exec, %s" % sp(sVM)]
    for t in range(2):
        r += [rd128(vV + 8 * t, vKVA, off + 2048 * t + 1024), rd128(vV + 8 * t + 4, vKVA, off + 2048 * t + 1280)]
    r.append("s_mov_b64 exec, -1")
    return r
def wd_reads(dst, addr, off):
    r = []
    for c in range(2):
        r += [rdtr(dst + 4 * c, addr, off + 512 * c), rdtr(dst + 4 * c + 2, addr, off + 512 * c + 1024)]
    return r

def hord(): return [0, 2, 4, 6, 1, 3, 5, 7] if Opt.hord else list(range(8))
def wdrow(sg): return (32 * (sg >> 1) + 8 * (sg & 1)) * 1024

def attention(a, role, pre0=None):
    A = role == "A"
    def kvdma(u):
        a.vmop("s_add_u32 m0, s%d, 0x%x\ns_add_u32 s%d, s%d, 0x%x\nbuffer_load_dwordx4 %s, %s, s%d offen sc1 lds"
               % (sWK, L_KV + (u % 4) * 8192, sA, sWK, u * 8192, v(vL16), srd(SKV), sA), "kv%d" % u)
    def wddma(sg):
        a.vmop("s_add_u32 m0, s%d, 0x%x\ns_add_u32 s%d, s%d, 0x%x\nbuffer_load_dwordx4 %s, %s, s%d offen lds"
               % (sWK, L_WD + (sg % 4 if sg < 23 or sg == 27 else sg - 19) * 8192, sA, sWDOFF, wdrow(sg), v(vWDV), srd(SWD), sA), "wd%d" % sg)
    def wodma(j):
        a.vmop("s_add_u32 m0, s%d, 0x%x\ns_add_u32 s%d, s%d, 0x%x\nbuffer_load_dwordx4 %s, %s, s%d offen lds"
               % (sWK, L_WO + (7 - j) * 8192, sA, sB, hord()[j] * 16384, v(vWDV), srd(SWO), sA), "wo")
    def hload(sg, dst):
        a.vmop("s_add_u32 s%d, s%d, 0x%x\nbuffer_load_dwordx4 %s, %s, %s, s%d offen sc1"
               % (sA, sHOFF, sg * 1024, v(dst, 4), v(vL16), srd(SWS), sA), "h%d" % sg)
    for n in range(12):
        if not A and n == 0: a.e("s_barrier")
        if n % 2 == 1: astamp(a, 2 + n // 2)
        if n == Opt.pcyc: a.e("%s %s" % ("s_memrealtime" if Opt.prt else "s_memtime", sp(sSTAMP + 6)))
        tags = []
        if A and n % 2 == 1: tags.append("kv%d" % ((n + 1) // 2))
        if not A and n % 2 == 0: tags.append("kv%d" % ((n + 2) // 2))
        if n == Opt.hpub - (0 if A else 1): tags.append("hst")
        if n == 6: tags.append("wo")
        if n == 9: tags.append("wd27")
        if n == 11: tags.append("wd0")
        if n == 9 and A:
            a.e("s_cmp_lg_u32 s%d, 0" % sW)
            a.e("s_cbranch_scc1 L_hf_done")
            a.e("s_mov_b32 s%d, 0x4000" % sB)
            a.e("s_waitcnt vmcnt(0)")
            a.lab("L_hf_chk")
            a.e("v_cmp_ne_u32 vcc, 1, %s" % v(vPOLL))
            a.e("s_cbranch_vccz L_hf_done")
            a.e("s_sleep %d    ; back-off between two polls of the producers' flags" % Opt.hsl)
            a.e("buffer_load_dword %s, %s, %s, 0 offen sc1" % (v(vPOLL), v(vFLA), srd(SWS)))
            a.e("s_sub_u32 s%d, s%d, 1" % (sB, sB))
            a.e("s_cmp_lg_u32 s%d, 0" % sB)
            a.e("s_waitcnt vmcnt(0)")
            a.e("s_cbranch_scc1 L_hf_chk")
            a.lab("L_hf_done")
        a.waitvm(tags)
        if n == 5 and Opt.diag == 3 and A:
            a.e("v_mov_b32 v2, s%d" % sSTAMP)
            a.e("s_lshl_b32 s%d, s2, 3" % sA)
            a.e("s_add_u32 s%d, s%d, s%d" % (sA, sA, sW))
            a.e("s_lshl_b32 s%d, s%d, 7" % (sA, sA))
            a.e("s_add_u32 s%d, s%d, 0x%x" % (sA, sA, WS_STAMP))
            a.e("s_mov_b64 exec, 1")
            a.vmop("buffer_store_dword v2, off, %s, s%d offset:12 sc1" % (srd(SWS), sA), "st")
            a.e("s_mov_b64 exec, -1")
        if n == Opt.hpub and not A:
            a.e("s_cmp_ge_u32 s%d, 14" % sM)
            a.e("s_cbranch_scc1 L_nohf")
            a.e("s_cmp_lg_u32 s%d, 4" % sW)
            a.e("s_cbranch_scc1 L_nohf")
            a.e("s_lshl_b32 s%d, s%d, 4" % (sA, sG))
            a.e("s_add_u32 s%d, s%d, s%d" % (sA, sA, sM))
            a.e("s_lshl_b32 s%d, s%d, 7" % (sA, sA))
            a.e("s_add_u32 s%d, s%d, 0x%x" % (sA, sA, WS_HFLAG))
            a.e("s_mov_b64 exec, 1")
            a.e("buffer_store_dword %s, off, %s, s%d sc1" % (v(vONE), srd(SWS), sA))
            a.e("s_mov_b64 exec, -1")
            a.lab("L_nohf")
        for r in kv_reads((n % 8) * 4096): a.e(r)
        if n == 8 and A:
            a.e("s_cmp_lg_u32 s%d, 0" % sW)
            a.e("s_cbranch_scc1 L_hf_nol")
            a.e("buffer_load_dword %s, %s, %s, 0 offen sc1" % (v(vPOLL), v(vFLA), srd(SWS)))
            a.lab("L_hf_nol")
        if n == 0:
            if A or Opt.hpub == 3:
                kvdma(2); kvdma(3)
            a.e("s_mov_b32 s%d, s%d" % (sC, sKQ))
            a.e("s_mul_i32 s%d, s%d, %d" % (sWDOFF, sC, 448 * 1024))
            a.e("s_and_b32 s%d, s%d, 1" % (sB, sW))
            a.e("s_lshl_b32 s%d, s%d, 14" % (sA, sB))
            a.e("s_add_u32 s%d, s%d, s%d" % (sWDOFF, sWDOFF, sA))
            a.e("s_lshl_b32 s%d, s%d, 1" % (sA, sT))
            a.e("s_add_u32 s%d, s%d, s%d" % (sA, sA, sB))
            a.e("s_mul_i32 s%d, s%d, 112" % (sA, sA))
            a.e("s_mul_i32 s%d, s%d, 28" % (sB, sC))
            a.e("s_add_u32 s%d, s%d, s%d" % (sA, sA, sB))
            a.e("s_lshl_b32 s%d, s%d, 10" % (sA, sA))
            a.e("s_add_u32 s%d, s%d, 0x%x" % (sHOFF, sA, WS_HF))
        if (A and n % 2 == 1 and n >= 3): kvdma((n + 5) // 2)
        if (not A and n % 2 == 0 and n >= 2): kvdma((n + 6) // 2)
        if 1 <= n <= 4:
            a.e("s_lshl_b32 s%d, s%d, 17" % (sB, sKQ))
            a.e("s_and_b32 s%d, s%d, 1" % (sC, sW))
            a.e("s_lshl_b32 s%d, s%d, 13" % (sC, sC))
            a.e("s_add_u32 s%d, s%d, s%d" % (sB, sB, sC))
            for j in (2 * n - 2, 2 * n - 1): wodma(j)
        for sg in {5: (27, 23, 24), 6: (25, 26, 0), 7: (1, 2)}.get(n, ()): wddma(sg)
        if n == 4 and Opt.otouch:
            a.vmop("buffer_load_dword v5, %s, %s, s%d offen %s" % (v(vOUTA), srd(SOUT), sOUTO, "" if Opt.otouch == 1 else "sc0 sc1"), "ot")
        if n == 10:
            for r in wd_reads(vWX, vWDA, 3 * 8192): a.e(r)
        for j in ({7: (0,), 8: (1, 2), 9: (3, 4)} if A else {7: (0, 1), 8: (2, 3), 9: (4,)}).get(n, ()):
            for r in wd_reads(WOF[j], vWOA, (7 - j) * 8192): a.e(r)
        hs = {10: (0, 1, 23, 24), 11: (2, 25, 26, 27)} if A else {9: (0, 1, 23), 10: (2, 24), 11: (25, 26, 27)}
        if Opt.hlate: hs = {10: (0, 1), 11: (2,)} if A else {9: (0,), 10: (1,), 11: (2,)}
        for sg in hs.get(n, ()): hload(sg, vH + 4 * sg if sg < 4 else vHX if sg == 27 else vH + 4 * (sg - 19))
        if n == 11:
            a.e("s_add_u32 s%d, s%d, 0x%x" % (sHOFF, sHOFF, 3 * 1024))
            a.e("s_add_u32 s%d, s%d, 0x%x" % (sWDOFF, sWDOFF, wdrow(3)))
            a.e("s_add_u32 s%d, s%d, 0x%x" % (sKVOFF, sWK, 9 * 8192))
            a.e("s_mov_b32 s%d, 4" % sCNT)
            a.e("s_add_u32 s%d, s%d, 0x1000" % (sOLD2, sOLD))
            a.e("s_mov_b32 s%d, 0x%x" % (sLO_, f2u(2.0 ** -16)))
            a.e("s_mov_b32 s%d, 0x%x" % (sRNG, f2u(2.0 ** 100) - f2u(2.0 ** -16)))
        if n == 0 and pre0:
            pre0()
            a.stamp(5)
        a.e("s_waitcnt lgkmcnt(0)")
        if n == 0:
            if A: a.e("s_barrier")
            for x in Yseg(None, first=True): a.e(x)
            if not A: a.e("s_barrier")
            continue
        a.e("s_call_b64 %s, L_Y%s" % (sp(sRET), role))
        if n == 1:
            a.e("s_branch L_X1%s" % role)
            a.lab("L_Y%s" % role)
            if A: a.e("s_barrier")
            for x in Yseg(None): a.e(x)
            if not A: a.e("s_barrier")
            a.e("s_setpc_b64 %s" % sp(sRET))
            a.lab("L_X1%s" % role)
    assert not (Opt.hlate and Opt.nx)
    hl = {28: (27, 23), 29: (24, 25), 30: (26,)} if Opt.hlate else {}
    vm = list(a.vm); need = [63] * 8
    for n in range(12, 32):
        p = n % 4; q = p + (4 if n >= 28 else 0)
        tags = ["wd%d" % (n - 11), "h%d" % (n - 12)]
        if (p % 2 == 1) == A: tags.append("kv%d" % ((n + (1 if A else 2)) // 2))
        idx = [i for i, t in enumerate(vm) if t in tags]
        if idx: need[q] = min(need[q], len(vm) - 1 - max(idx))
        vm.append("wd%d" % (n - 9))
        vm.append("h%d" % (n - 9))
        if (p % 2 == 1) == A and n < 28: vm.append("kv%d" % ((n + (5 if A else 6)) // 2))
        vm += ["hx"] * len(hl.get(n, ()))
    a.lab("L_loop%s" % role)
    for q in range(8):
        p = q % 4; fin = q >= 4
        kv = (p % 2 == 1) == A and not fin
        if q == 0 and Opt.diag and Opt.kdiag == 2:
            a.e("s_cmp_lg_u32 s%d, 3" % sCNT)
            a.e("s_cbranch_scc1 L_nst%s" % role)
            astamp(a, 8)
            a.lab("L_nst%s" % role)
        a.e("s_waitcnt vmcnt(%d)" % need[q])
        for i, r in enumerate(kv_reads(p * 4096, vKVB)):
            if not (q == 7 and i == 1): a.e(r)
        if q <= 8 - Opt.nd:
            for r in wd_reads(vWF, vWDA, p * 8192): a.e(r)
        if fin and p < Opt.nx:
            for r in wd_reads(vFR + 16, vWDA, (4 + p) * 8192): a.e(r)
        if q == 7:
            for r in wd_reads(vFR, vWDA, (4 + Opt.nx) * 8192): a.e(r)
        a.e("s_add_u32 m0, s%d, 0x%x" % (sWK, L_WD + ((p + 3) % 4) * 8192))
        a.e("s_and_b32 s%d, s%d, 0x7fff" % (sA, sKVOFF))
        a.e("buffer_load_dwordx4 %s, %s, s%d offen lds" % (v(vWDV), srd(SWD), sWDOFF))
        a.e("s_add_u32 s%d, s%d, 0x%x" % (sWDOFF, sWDOFF, 0x2000 if p & 1 else 0x6000))
        a.e("buffer_load_dwordx4 %s, %s, %s, s%d offen sc1" % (v(vKF + 4 if q == 7 and Opt.nd == 2 else vH + 4 * ((p + 3) % 4), 4), v(vL16), srd(SWS), sHOFF))
        if kv: a.e("s_add_u32 m0, s%d, 0x%x" % (sA, L_KV))
        a.e("s_add_u32 s%d, s%d, 0x400" % (sHOFF, sHOFF))
        if kv:
            a.e("buffer_load_dwordx4 %s, %s, s%d offen sc1 lds" % (v(vL16), srd(SKV), sKVOFF))
            a.e("s_add_u32 s%d, s%d, 0x2000" % (sKVOFF, sKVOFF))
        for sg in (hl.get(24 + q, ()) if fin else ()):
            a.e("s_add_u32 s%d, s%d, 0x%x" % (sA, sHOFF, (sg - (16 + q)) * 1024))
            a.e("buffer_load_dwordx4 %s, %s, %s, s%d offen sc1" % (v(vHX if sg == 27 else vH + 4 * (sg - 19), 4), v(vL16), srd(SWS), sA))
        if q == 3:
            a.e("s_sub_u32 s%d, s%d, 1" % (sCNT, sCNT))
            a.e("s_cmp_lg_u32 s%d, 0" % sCNT)
        a.e("s_waitcnt lgkmcnt(0)")
        if A: a.e("s_barrier")
        for x in Yseg(p if q < 8 - Opt.nd else None, toggle=(q == 3), extra=(fin and p < Opt.nx), last=(q == 7)): a.e(x)
        if not A and q < 7: a.e("s_barrier")
        if q == 3: a.e("s_cbranch_scc1 L_loop%s" % role)
    a.e("s_nop 1")

def transition(a, role):
    A = role == "A"
    if A:
        a.vm = []
        a.lab("L_trA")
    else:
        a.lab("L_join")
        a.e("s_cmp_eq_u32 s%d, 0" % sHI)
        a.e("s_cbranch_scc1 L_trA")
        a.vmjoin = list(a.vm)
    def qfin():
        for i in range(4): a.e("v_cvt_pk_bf16_f32 %s, %s, %s" % (v(vQ + i), v(vAQ + 2 * i), v(vAQ + 2 * i + 1)))
        a.e("v_add_u32 %s, 0x%x, %s" % (v(vWOA), L_WO, v(vWDA)))
        a.e("v_permlane16_swap_b32 %s, %s" % (v(vQ), v(vQ + 2)))
        a.e("v_permlane16_swap_b32 %s, %s" % (v(vQ + 1), v(vQ + 3)))
    pre0 = None
    if A:
        a.e("s_setprio 1")
        a.e("s_cmp_ge_u32 s%d, 14" % sM)
        a.e("s_cbranch_scc1 L_nogA0")
        put(a, a.kvA[:1] + a.kvA[-1:])
        a.l.append(".p2align 3")
        for ti in range(Opt.gsc): gelu_tile(a, ti, True)
        a.lab("L_nogA0")
        qfin()
        a.waitvm(["k0", "kv0", "kv1"])
        a.e("s_setprio 0")
        a.e(mfma(vS, vK0, vQ, None))
        a.e("s_barrier")
        put(a, a.kvA[1:-1])
        def pre0():
            a.e("s_cmp_lt_u32 s%d, 14" % sM)
            a.e("s_cbranch_scc1 L_gA1")
            a.e("s_waitcnt vmcnt(0)")
            a.e("s_branch L_nogA1")
            a.l.append(".p2align 3")
            a.lab("L_gA1")
            for ti in range(Opt.gsc, 4): gelu_tile(a, ti)
            a.lab("L_nogA1")
            a.e("s_setprio 2")
    else:
        a.waitvm(["k0", "kv0", "kv1"])
        a.e("s_setprio 1")
        if Opt.hpub == 3:
            a.e("s_cmp_ge_u32 s%d, 14" % sM)
            a.l.append(".p2align 3")
            a.e("s_barrier")
            a.e("s_cbranch_scc1 L_nogB")
        else:
            a.e("s_barrier")
            for u in (2, 3):
                a.vmop("s_add_u32 m0, s%d, 0x%x\ns_add_u32 s%d, s%d, 0x%x\nbuffer_load_dwordx4 %s, %s, s%d offen sc1 lds"
                       % (sWK, L_KV + u * 8192, sA, sWK, u * 8192, v(vL16), srd(SKV), sA), "kv%d" % u)
            a.e("s_cmp_lt_u32 s%d, 14" % sM)
            a.e("s_cbranch_scc1 L_gB")
            a.e("s_waitcnt vmcnt(0)")
            a.e("s_branch L_nogB")
            a.l.append(".p2align 3")
            a.lab("L_gB")
        for ti in range(4): gelu_tile(a, ti)
        a.lab("L_nogB")
        qfin()
        a.e("s_nop 1")
        a.e(mfma(vS, vK0, vQ, None))
        a.stamp(5)
    attention(a, role, pre0)
    if A:
        a.stamp(6); astamp(a, 9); tstamp(a, 2)
        if Opt.diag and Opt.kdiag == 2: a.e("s_waitcnt lgkmcnt(0)")
        a.e(smfmac(vO, vV1L, vS + 24))
        a.e("s_setprio 0")
        a.e("s_cmp_eq_u32 s%d, 0" % sHI)
        a.e("s_nop 9")
        normalise(a, False)
        a.lab("L_fbretA")
        a.e("buffer_store_dwordx4 %s, %s, %s, s%d offen sc1" % (v(vPK, 4), v(vL16), srd(SWS), sOST))
        tstamp(a, 3)
        a.e("s_waitcnt vmcnt(1)")
        tstamp(a, 4)
        a.e("s_barrier")
        a.fetch(a, False)
        a.e("s_branch L_tl2")

def normalise(a, packed):
    t = vT0
    a.e("v_rcp_f32 %s, %s" % (v(t + 2), v(vO + 8)))
    a.e("s_nop 0")
    a.e("v_mul_f32_e64 %s, %s, %s" % (v(t + 2), v(t + 2), v(vGP)))
    if packed:
        for i in range(4): a.e("v_pk_mul_f32 %s, %s, %s op_sel_hi:[1,0]" % (v(vO + 2 * i, 2), v(vO + 2 * i, 2), v(t + 2, 2)))
        for i in range(4):
            a.e("v_pk_fma_f32 %s, %s, 0, %s op_sel_hi:[1,0,%d]" % (v(t, 2), v(vO + 2 * i, 2), v(t, 2) if i else v(vO + 8, 2), 1 if i else 0))
            a.e("v_cvt_pk_bf16_f32 %s, %s, %s" % (v(vPK + i), v(vO + 2 * i), v(vO + 2 * i + 1)))
        a.e("v_fmac_f32 %s, 0, %s" % (v(t), v(t + 1)))
    else:
        t = vO + 8
        for i in range(8): a.e("v_mul_f32 %s, %s, %s" % (v(vO + i), v(vT0 + 2), v(vO + i)))
        for i in range(4):
            a.e("v_fmac_f32 %s, 0, %s" % (v(t), v(vO + 2 * i)))
            a.e("v_cvt_pk_bf16_f32 %s, %s, %s" % (v(vPK + i), v(vO + 2 * i), v(vO + 2 * i + 1)))
            a.e("v_fmac_f32 %s, 0, %s" % (v(t), v(vO + 2 * i + 1)))
    a.e("v_subrev_u32 %s, s%d, %s" % (v(t), sLO_, v(t)))
    a.e("v_cmp_lt_u32 vcc, s%d, %s" % (sRNG, v(t)))
    a.e("s_branch L_fb" if Opt.force_fb else "s_cbranch_vccnz L_fb")

def tail(a):
    a.lab("L_tail")
    a.stamp(6)
    astamp(a, 9)
    if Opt.diag and Opt.kdiag == 2: a.e("s_waitcnt lgkmcnt(0)")
    tstamp(a, 2)
    a.e(smfmac(vO, vV1L, vS + 24))
    wf = [vFR, vFR + 8, vFR + 16]
    HORD = hord()
    def oload(j):
        return "buffer_load_dwordx4 %s, %s, %s, s%d offen offset:%d %s" % (
            v(vS + 4 * j, 4), v(vL16), srd(SWS), sOLD if HORD[j] < 4 else sOLD2, (HORD[j] % 4) * 1024, Opt.old_pol)
    a.oload = oload
    a.e("s_cmp_eq_u32 s%d, 0" % sHI)
    a.e("s_nop 10")
    a.l.append(".p2align 3")
    normalise(a, True)
    a.lab("L_fbret")
    a.e("buffer_store_dwordx4 %s, %s, %s, s%d offen sc1" % (v(vPK, 4), v(vL16), srd(SWS), sOST))
    tstamp(a, 3)
    aw = [vAW0, vWOA + 1, vWOA + 2, vWOA + 3]
    ar = [vAR0, vFLA]
    wo = WOF
    def fetch(o, scale):
        for j in range(8):
            o.e(oload(j))
            if j >= 5:
                for r in wd_reads(wo[j], vWOA, (7 - j) * 8192): o.e(r)
            if scale and j >= 4:
                for i in range(4 * j - 16, 4 * j - 12): o.e("v_mul_f32 %s, %s, %s" % (v(vD + i), v(vGC), v(vD + i)))
    def addrs(a):
        a.e("v_sub_f32 %s, 1.0, %s" % (v(vGC), v(vGC)))
        for j in range(1, 4): a.e("v_xor_b32 %s, %d, %s" % (v(aw[j]), 32 * j, v(aw[0])))
        a.e("v_xor_b32 %s, 16, %s" % (v(ar[1]), v(ar[0])))
        a.e("s_mov_b32 s%d, 0x2000" % sB)
    ol = Asm(); a.ool2 = ol.l
    a.e("s_waitcnt vmcnt(1)")
    tstamp(a, 4)
    a.e("s_barrier")
    a.lab("L_tl2")
    tstamp(a, 5)
    a.fetch = fetch
    fl = collect(addrs)
    slot = [4, 5, 6, 7, 0, 1, 2][Opt.nx:] + ([3] if Opt.nd == 2 else [])
    hreg = lambda sl: vKF + 4 if sl == 2 and Opt.nd == 2 else vH + 4 * sl
    inreg = [(vWX, vHX)] + ([(vWF, vH + 4 * (4 - Opt.nd))] if Opt.nd else [])
    rds = sum((wd_reads(wf[i % 3], vWDA, slot[i] * 8192) for i in range(len(slot))), [])
    done = 4
    for i in range(-len(inreg), len(slot)):
        for c in range(2):
            if i >= 1: a.e("s_waitcnt lgkmcnt(%d)" % (done - (4 * i + 2 * c + 2)))
            a.e(mfma(vD + 16 * c, inreg[i][0] + 4 * c, inreg[i][1], vD + 16 * c) if i < 0 else
                mfma(vD + 16 * c, wf[i % 3] + 4 * c, hreg(slot[i]), vD + 16 * c))
            if i < -1: continue
            if done < len(rds):
                for r in rds[done:done + 2]: a.e(r)
                done += 2
            else:
                put(a, fl[:2]); fl = fl[2:]
    assert not fl
    tstamp(a, 6)
    a.e("s_cbranch_scc0 L_tl3")
    a.l.append(".p2align 3")
    a.e("s_nop 7")
    a.e("s_nop 0")
    for i in range(16): a.e("v_pk_mul_f32 %s, %s, %s op_sel:[0,1] op_sel_hi:[1,1]" % (v(vD + 2 * i, 2), v(vD + 2 * i, 2), v(vGP, 2)))
    tstamp(a, 7)
    a.lab("L_tl4")
    tstamp(a, 8)
    ol.lab("L_tl3")
    ol.e("s_setprio 0")
    fetch(ol, False)
    tstamp(ol, 7)
    for i in range(32): ol.e("v_mul_f32 %s, %s, %s" % (v(vD + i), v(vGC), v(vD + i)))
    ol.e("s_waitcnt lgkmcnt(0)")
    def check(j):
        o = vS + 4 * j
        return ["s_waitcnt vmcnt(%d)" % (7 - j), "v_max3_u32 v2, %s, %s, %s" % (v(o), v(o + 1), v(o + 2)),
                "v_max_u32 v2, v2, %s" % v(o + 3), "v_cmp_eq_u32 vcc, -1, v2"]
    for j in range(Opt.bpre):
        for x in check(j): ol.e(x)
        ol.e("s_cbranch_vccnz L_bp%d" % j)
    ol.e("s_branch L_tl4")
    if Opt.bpre:
        for j in range(8):
            if j < Opt.bpre: ol.lab("L_bp%d" % j)
            ol.e(oload(j))
        ol.e("s_branch L_tl4")
    a.stamp(7)
    def check(j):
        o = vS + 4 * j
        return ["s_waitcnt vmcnt(%d)" % (7 - j), "v_max3_u32 v2, %s, %s, %s" % (v(o), v(o + 1), v(o + 2)),
                "v_max_u32 v2, v2, %s" % v(o + 3), "v_cmp_eq_u32 vcc, -1, v2"]
    a.check = check
    for x in check(0): a.e(x)
    for j in range(10):
        if j < 8:
            a.e("s_cbranch_vccnz L_ore%d" % j)
            a.lab("L_ook%d" % j)
            a.e(mfma(vD, wo[j], vS + 4 * j, vD))
        if j >= 2 and Opt.cfirst: a.e(mfma(vD + 16, wo[j - 2] + 4, vS + 4 * (j - 2), vD + 16))
        if j < 7:
            for x in check(j + 1): a.e(x)
        if j >= 2 and not Opt.cfirst: a.e(mfma(vD + 16, wo[j - 2] + 4, vS + 4 * (j - 2), vD + 16))
        if j in (7, 8): a.e("s_nop 4")
    wr = lambda c, j: "ds_write_b128 %s, %s offset:%d" % (v(aw[j]), v(vD + 16 * c + 4 * j, 4), 128 * c)
    a.stamp(8)
    tstamp(a, 9)
    for j in range(4): a.e(wr(0, j))
    a.e("s_nop 7")
    for j in range(4): a.e(wr(1, j))
    a.e("s_waitcnt lgkmcnt(0)")
    a.e("s_barrier")
    for p in range(4):
        for h in range(2): a.e(rd128(vS + 8 * p + 4 * h, ar[h], p * 8192))
    for p in range(1, 4):
        a.e("s_waitcnt lgkmcnt(%d)" % (6 - 2 * p))
        for i in range(4): a.e("v_pk_add_f32 %s, %s, %s" % (v(vS + 2 * i, 2), v(vS + 2 * i, 2), v(vS + 8 * p + 2 * i, 2)))
    for i in range(4): a.e("v_cvt_pk_bf16_f32 %s, %s, %s" % (v(vP + i), v(vS + 2 * i), v(vS + 2 * i + 1)))
    a.e("buffer_store_dwordx4 %s, %s, %s, s%d offen %s" % (v(vP, 4), v(vOUTA), srd(SOUT), sOUTO, Opt.out_pol))
    if Opt.probe >= 0:
        a.e("s_waitcnt vmcnt(0)")
        a.stamp(9)
        if Opt.probe_g:
            for i, t_ in enumerate((3300, 4300)):
                a.lab("L_pg%d" % i)
                a.e("s_memrealtime s[0:1]")
                a.e("s_waitcnt lgkmcnt(0)")
                a.e("s_sub_u32 s0, s0, s%d" % sSTAMP)
                a.e("s_cmp_lt_u32 s0, %d" % t_)
                a.e("s_cbranch_scc1 L_pg%d" % i)
                if i == 0:
                    a.e("s_cmp_lg_u32 s%d, 0" % sW)
                    a.e("s_cbranch_scc1 L_npg")
                    a.e("v_not_b32 v2, s%d" % sSTAMP)
                    a.e("s_mov_b64 exec, 1")
                    a.e("buffer_atomic_umax v2, off, %s, 0 offset:128 sc1" % srd(SDBG))
                    a.e("s_mov_b64 exec, -1")
                    a.lab("L_npg")
        if Opt.probe != 9:
            a.e("s_cmp_ge_u32 s%d, 14" % sM)
            a.e("s_cbranch_scc%d L_end" % (0 if Opt.probe_l else 1))
        if Opt.probe_g:
            a.e("buffer_load_dword v2, off, %s, 0 offset:128 sc1" % srd(SDBG))
            a.e("s_waitcnt vmcnt(0)")
            a.e("v_readfirstlane_b32 s%d, v2" % sSTAMP)
            a.e("s_nop 3")
            a.e("s_not_b32 s%d, s%d" % (sSTAMP, sSTAMP))
        a.e("s_sub_u32 s%d, s%d, s%d" % (sA, sSTAMP + 4, sSTAMP))
        a.e("s_mul_i32 s%d, s%d, %d" % (sA, sA, Opt.probe_mul - 1))
        if Opt.pcyc >= 0:
            a.e("s_sub_u32 s%d, s%d, s%d" % (sA, sSTAMP + 8, sSTAMP + 6))
            if Opt.prt: a.e("s_mul_i32 s%d, s%d, 10" % (sA, sA))
            a.e("s_mov_b32 s%d, s%d" % (sSTAMP + 4, sSTAMP))
        a.e("s_min_u32 s%d, s%d, 40000" % (sA, sA))
        a.e("s_add_u32 s%d, s%d, 3800" % (sA, sA))
        if Opt.probe_r >= 0:
            a.e("s_cmp_eq_u32 s%d, 0x2000" % sB)
            a.e("s_cbranch_scc%d L_end" % Opt.probe_r)
        if Opt.probe_w >= 0:
            a.e("s_cmp_lg_u32 s%d, %d" % (sHI, Opt.probe_w))
            a.e("s_cbranch_scc1 L_end")
        if Opt.probe_x >= 0:
            a.e("s_and_b32 s0, s2, 7")
            a.e("s_cmp_lg_u32 s0, %d" % Opt.probe_x)
            a.e("s_cbranch_scc1 L_end")
        a.lab("L_probe")
        a.e("s_memrealtime s[0:1]")
        a.e("s_waitcnt lgkmcnt(0)")
        a.e("s_sub_u32 s0, s0, s%d" % (sSTAMP + 4))
        a.e("s_cmp_lt_u32 s0, s%d" % sA)
        a.e("s_cbranch_scc1 L_probe")
    if Opt.pin == 9:
        a.e("s_waitcnt vmcnt(0)")
        a.stamp(9)
    if Opt.diag in (1, 2):
        a.e("s_waitcnt vmcnt(0)")
        a.stamp(9)
        a.e("s_mov_b32 s%d, s%d" % (sSTAMP + 3, sSTAMP))
        a.e("s_mov_b32 s%d, s%d" % (sSTAMP, sB))
        a.e("s_getreg_b32 s%d, hwreg(HW_REG_XCC_ID)" % (sSTAMP + 1))
        for i in range(20): a.e("v_mov_b32 %s, s%d" % (v(vS + i), sSTAMP + i))
        a.e("s_lshl_b32 s%d, s2, 3" % sA)
        a.e("s_add_u32 s%d, s%d, s%d" % (sA, sA, sW))
        a.e("s_lshl_b32 s%d, s%d, 7" % (sA, sA))
        a.e("s_add_u32 s%d, s%d, 0x%x" % (sA, sA, WS_STAMP))
        a.e("s_mov_b64 exec, 1")
        for i in range(5): a.e("buffer_store_dwordx4 %s, off, %s, s%d offset:%d" % (v(vS + 4 * i, 4), srd(SWS), sA, 16 * i))
    a.lab("L_end")
    a.e("s_endpgm")
    a.l += a.ool2
    for j in range(8):
        a.lab("L_ore%d" % j)
        a.e("s_sub_u32 s%d, s%d, 1" % (sB, sB))
        a.e("s_cbranch_scc1 L_ogive%d" % j)
        if Opt.rwait: a.e("s_waitcnt vmcnt(0)")
        if Opt.rwait > 1: a.e("s_sleep %d" % Opt.rwait)
        for i in range(j, 8): a.e(a.oload(i))
        for x in a.check(j): a.e(x)
        a.e("s_cbranch_vccnz L_ore%d" % j)
        a.e("s_branch L_ook%d" % j)
        a.lab("L_ogive%d" % j)
        a.e("s_mov_b32 s%d, 0" % sB)
        a.e("s_branch L_ook%d" % j)

def fallback(a):
    a.lab("L_fb")
    m = vT0
    a.e("v_mov_b32 %s, 0xff800000" % v(m))
    a.e("s_mov_b32 s%d, 0" % sA)
    a.lab("L_fb1")
    a.e("buffer_load_dwordx4 %s, %s, %s, s%d offen sc1" % (v(vKF, 4), v(vL16), srd(SKV), sA))
    a.e("s_waitcnt vmcnt(0)")
    a.e(mfma(vS, vKF, vQ, None))
    a.e("s_add_u32 s%d, s%d, 2048" % (sA, sA))
    a.e("s_nop 11")
    for i in range(8): a.e("v_max3_f32 %s, %s, %s, %s" % (v(m), v(m), v(vS + 2 * i), v(vS + 2 * i + 1)))
    a.e("s_cmp_lt_u32 s%d, 0x20000" % sA)
    a.e("s_cbranch_scc1 L_fb1")
    a.e("v_mov_b32 %s, %s" % (v(m + 1), v(m)))
    a.e("s_nop 1")
    a.e("v_permlane32_swap_b32 %s, %s" % (v(m), v(m + 1)))
    a.e("s_nop 1")
    a.e("v_max_f32 %s, %s, %s" % (v(m), v(m), v(m + 1)))
    for i in range(16): a.e("v_sub_f32 %s, 0, %s" % (v(vS + 16 + i), v(m)))
    for i in range(16): a.e("v_mov_b32 %s, 0" % v(vO + i))
    a.e("s_mov_b32 s%d, 0" % sA)
    a.lab("L_fb2")
    a.e("s_add_u32 s%d, s%d, 0x%x" % (sB, sA, 63 * 2048))
    a.e("s_and_b32 s%d, s%d, 0x1ffff" % (sB, sB))
    a.e("buffer_load_dwordx4 %s, %s, %s, s%d offen sc1" % (v(vKF, 4), v(vL16), srd(SKV), sB))
    a.e("s_add_u32 s%d, s%d, 2048" % (sB, sA))
    a.e("s_and_b32 s%d, s%d, 0x1ffff" % (sB, sB))
    a.e("s_mov_b64 exec, %s" % sp(sVM))
    a.e("buffer_load_dwordx4 %s, %s, %s, s%d offen offset:1024 sc1" % (v(vV, 4), v(vL16), srd(SKV), sA))
    a.e("buffer_load_dwordx4 %s, %s, %s, s%d offen offset:1280 sc1" % (v(vV + 4, 4), v(vL16), srd(SKV), sB))
    a.e("s_mov_b64 exec, -1")
    a.e("s_waitcnt vmcnt(0)")
    a.e(mfma(vS, vKF, vQ, vS + 16))
    a.e("s_add_u32 s%d, s%d, 2048" % (sA, sA))
    a.e("s_nop 11")
    for i in range(16): a.e("v_exp_f32 %s, %s" % (v(vS + i), v(vS + i)))
    a.e("s_nop 2")
    a.e(smfmac(vO, vV, vS))
    a.e(smfmac(vO, vV + 4, vS + 8))
    a.e("s_cmp_lt_u32 s%d, 0x20000" % sA)
    a.e("s_cbranch_scc1 L_fb2")
    a.e("s_nop 11")
    a.e("v_rcp_f32 %s, %s" % (v(vT0 + 2), v(vO + 8)))
    a.e("s_cmp_eq_u32 s%d, 0" % sHI)
    a.e("v_mul_f32 %s, %s, %s" % (v(vT0 + 2), v(vT0 + 2), v(vGP)))
    for i in range(8): a.e("v_mul_f32 %s, %s, %s" % (v(vO + i), v(vT0 + 2), v(vO + i)))
    for i in range(4): a.e("v_cvt_pk_bf16_f32 %s, %s, %s" % (v(vPK + i), v(vO + 2 * i), v(vO + 2 * i + 1)))
    for i in range(4): a.e("v_min_u32 %s, -2, %s" % (v(vPK + i), v(vPK + i)))
    a.e("s_cbranch_scc1 L_fbretA")
    a.e("s_branch L_fbret")

def build():
    a = Asm()
    prologue(a)
    phase1_F(a)
    transition(a, "B")
    tail(a)
    a.l += a.ool
    transition(a, "A")
    phase1_L(a)
    fallback(a)
    a.lab("L_codeend")
    for i, x in enumerate(a.l):
        if " sc1" in x and "sc0" not in x and ((Opt.allsc & 1 and "buffer_store" in x) or (Opt.allsc & 2 and "buffer_load" in x)):
            a.l[i] = x.replace(" sc1", " sc0 sc1")
    notes = {'L_k0': 'first GEMM: K loop over 8 chunks of 64, three-slot LDS ring, 16x16x32 MFMAs', 'L_join': 'waves 4-7: activation, then attention', 'L_trA': 'waves 0-3: activation, then attention', 'L_loopA': 'steady attention loop with one down-projection K step per two key tiles', 'L_loopB': 'steady attention loop with one down-projection K step per two key tiles', 'L_tail': 'normalise, hand over, remaining down steps, output projection, reduction, store', 'L_light': 'light workgroups: K, V, gate, own Q', 'L_fb': 'softmax with the true row maximum (two passes over the keys)', 'L_ore0': 'refetch attention outputs that still carry the not-yet-written mark', 'L_e2': 'out-of-line load blocks of the first GEMM'}
    for k_, t_ in notes.items():
        if k_ + ":" in a.l: a.l.insert(a.l.index(k_ + ":"), "; ---- " + t_)
    a.l = [x for x in a.l if x.strip() != "; later"]
    il = a.l.index("L_light:")
    for i, x in enumerate(a.l):
        if x.endswith(" lds") and "sc1" not in x and " nt" not in x:
            if (Opt.ntx & 4 and (srd(SWD) in x or srd(SWO) in x)) or (Opt.ntx & 8 and i > il):
                a.l[i] = x[:-4] + " nt lds"
    head = open("cdna_kernels/%s.s.ref" % NAME).read().split("\n")
    hdr = [l for l in head if l.startswith(";") and "@launch" not in l and "Override" not in l and "grid=" not in l]
    out = hdr + ["; @launch grid=(256,1,1) block=(512,1,1) lds=%d" % LDS_BYTES,
                 '.amdgcn_target "amdgcn-amd-amdhsa--gfx950"', ".text", ".globl %s_kernel" % NAME, ".p2align 8",
                 ".type %s_kernel,@function" % NAME,
                 ".set CODE_PF_MAX, L_codeend - L_nopf - 4" if Opt.code_pf else "",
                 "%s_kernel:" % NAME]
    if Opt.diag: out += ["; mapmode %d" % (1 + 3 * bool(Opt.oddl))]
    out += ["; " + x for x in """One persistent launch, one workgroup per CU (generated by a script), 8 waves = two quartets that alternate on each SIMD.
Stage 1: 14 of every 16 workgroups compute gelu(x Wg) * (x Wu) for 128 tokens x 128 columns plus Q for two heads;
         the other two compute K, V and the mixing gate, publish them (counter in d_debug) and then their own Q.
Stage 2: attention for 128 tokens x 2 heads over all keys, S^T = K Q^T, exp2 in place, P V through sparse MFMAs that
         read the high halves of the fp32 probabilities; a row of ones in the V operand gives the row sums.
         The stand-in maximum is 0: it is accepted only if the row sum lies in [2^-16, 2^100] and every accumulator is
         finite, otherwise the wave redoes its rows with the true maximum (L_fb).
         The down projection of a 64 x 64 output tile runs in the same loop once the producers' flags are seen.
Stage 3: attention outputs are handed over through d_ws (cleared to a mark earlier in this launch), projected,
         mixed with the FFN branch, reduced through LDS and stored.""".split("\n")]
    out += a.l
    out += ['.section .rodata,"a"', ".p2align 6", ".amdhsa_kernel %s_kernel" % NAME,
            "  .amdhsa_next_free_vgpr %d" % NV, "  .amdhsa_next_free_sgpr 102", "  .amdhsa_accum_offset 256",
            "  .amdhsa_group_segment_fixed_size 0", "  .amdhsa_kernarg_size 104", "  .amdhsa_user_sgpr_count 2",
            "  .amdhsa_user_sgpr_kernarg_segment_ptr 1", "  .amdhsa_system_sgpr_workgroup_id_x 1", ".end_amdhsa_kernel", ""]
    return "\n".join(out)

if __name__ == "__main__":
    path = sys.argv[1]
    for kv in sys.argv[2:]:
        k, val = kv.split("=")
        cur = getattr(Opt, k)
        setattr(Opt, k, val if isinstance(cur, str) else type(cur)(int(val)))
    open(path, "w").write(build())
```

```python
import sys, struct, math

NAME = "gated_mix__grouped_kv_mqa__geglu_ffn__prompt"

class Opt:
    diag = 0
    mapmode = 1
    force_fb = False
    allsc = 0
    out_pol = "sc0 sc1"
    code_pf = True
    xrot = 0
    pregap = 0
    otouch = 0
    otn = 4
    ptouch = 0
    kw0 = 1
    kb = 3
    kal = 1
    xodd = 43
    xeven = 32
    hsl = 2
    lthr = 0
    klate = 0
    bpre = 0
    oddl = 1
    hlate = 1
    hpub = 3
    rwait = 1
    aearly = 0
    bidle = 1
    old_pol = "sc1"
    ypos0 = "36g"
    ypos1 = "36bg"
    ypos2 = "36cg9"
    nd = 1
    nx = 0
    tpos = 1
    cfirst = 0
    tch = 12
    stch = 0
    spos = 1
    tlb = 6
    olate = 1
    hrot = 0
    tbar = 0
    hord = 1
    cmap = 1
    kqx = 2
    oearly = 8
    conc = 1
    ghx = 1
    qa = "077777"
    qb = "588888"
    npre = 8
    stagger = 1
    rper = 2
    dma1 = 17
    kprio = 0
    dma0 = 8
    npd = 4
    kdiag = 0
    fillpre = 0
    fillper = 5
    gsc = 2
    sched = 0
    xmask = 1
    ntx = 0
    touch = 2
    rotg = 0
    rotm = 0
    startbar = 1
    pvz = 1
    pin = -1
    pin_ns = 60000
    probe = -1
    probe_x = -1
    probe_mul = 10
    probe_w = -1
    probe_r = -1
    pcyc = -1
    prt = 0
    probe_g = 1
    probe_l = 0

def f2u(x): return struct.unpack("<I", struct.pack("<f", x))[0]

WS_KV = 0
WS_G = 128 * 1024
WS_HFLAG = 192 * 1024
WS_OF = 1 << 20
WS_HF = 4 << 20
WS_STAMP = 12 << 20
WS_SIZE = 16 << 20
K1 = 1024
L_G, L_U, L_X, L_WQ = 0, 48 * K1, 96 * K1, 144 * K1
L_QX = 32 * K1
L_WD, L_WO, L_KV = 0, 64 * K1, 128 * K1
L_RED = 96 * K1
LL_X, LL_W, LL_GATE, LL_WQ = 0, 128 * K1, 144 * K1, 128 * K1
LDS_BYTES = 160 * K1

SX, SWG, SWU, SWQ, SWS, SWD, SWO, SOUT, SDBG, SWKV, SGATE, SKV = 4, 8, 12, 16, 20, 24, 28, 32, 36, 40, 44, 64
SWV = 72
sTMPP = 48
sW, sHI, sLO, sG, sM, sT, sCB = 50, 51, 52, 53, 54, 55, 56
sWK = 57
sWH = 58
sVM = 60
sRET = 62
sA, sB, sC, sD = 68, 69, 70, 71
sOFFW, sOFFQ, sCH, sXP = 72, 73, 74, 75
sHOFF, sWDOFF, sKVOFF, sHXO, sCNT = 72, 73, 74, 75, 77
sOUTO, sLO_, sRNG = 59, 81, 75
sOLD2 = 58
sOST, sOLD, sHST = 78, 79, 80
sHST2 = 3
sRX, sRW, sM0B = 40, 41, 42
sKQ = 76
sHP = 81
sSTAMP = 82

def srd(b): return "s[%d:%d]" % (b, b + 3)
def sp(b): return "s[%d:%d]" % (b, b + 1)
def v(b, n=1): return "v%d" % b if n == 1 else "v[%d:%d]" % (b, b + n - 1)

vL16 = 1
vT0, vT1, vT2, vT3 = 2, 3, 4, 5
vGP, vGC = 6, 7
vKVA = 8
vWDA = 9
vWDV = 10
vONE = 11
vZERO = 12
vFLA = 13
vPOLL = 14
vGA = 15
vQ = 16
vK0 = 20
vV1L = 24
vIDX = 28
vAW0, vAR0, vOUTA = 30, 31, 12
vKVB = 29
vP = 32
vV = 40
vO = 56
vD = 72
vACC = 104
vS = 104
vH = 136
vAQ = vP
vF1 = 168
vKF = 168
vWF = 176
vWX = 224
vHX = 232
vPK = 20
WOF = [32, 208, 216, 240, 248, 40, 48, 56]
vWOA = 236
vFR = 184
vLX = 224
vXA = 240
vWA = 244
vQA = 248
vDX, vDG, vDQ = 249, 250, 251
vC0 = 252
vTID = 255
vHA = 254
NV = 256

class Asm:
    def __init__(self):
        self.l = []
        self.vm = []
        self.nstamp = 0
    def e(self, s):
        for x in s.split("\n"):
            x = x.strip()
            if x: self.l.append("    " + x)
    def lab(self, s): self.l.append(s + ":")
    def vmop(self, s, tag):
        self.e(s); self.vm.append(tag)
    def vmn(self, tags):
        if isinstance(tags, str): tags = [tags]
        last = -1
        for i, t in enumerate(self.vm):
            if t in tags: last = i
        return None if last < 0 else len(self.vm) - 1 - last
    def waitvm(self, tags, lgkm=False):
        n = self.vmn(tags)
        if n is None:
            if lgkm: self.e("s_waitcnt lgkmcnt(0)")
            return
        assert n < 64
        self.e("s_waitcnt vmcnt(%d)%s" % (n, " lgkmcnt(0)" if lgkm else ""))
        self.vm = self.vm[len(self.vm) - n:] if n else []
    def wait0(self, lgkm=False):
        self.e("s_waitcnt vmcnt(0)%s" % (" lgkmcnt(0)" if lgkm else "")); self.vm = []
    def stamp(self, i, real=False):
        if Opt.probe == i:
            self.e("s_waitcnt lgkmcnt(0)")
            self.e("s_memrealtime %s" % sp(sSTAMP + 4))
            if Opt.pcyc >= 0: self.e("%s %s" % ("s_memrealtime" if Opt.prt else "s_memtime", sp(sSTAMP + 8)))
            self.e("s_waitcnt lgkmcnt(0)")
        if Opt.pin == i:
            self.nstamp += 1
            self.e("s_waitcnt lgkmcnt(0)")
            self.e("s_cselect_b32 s%d, 1, 0" % (sSTAMP + 5))
            self.lab("L_pin%d" % self.nstamp)
            self.e("s_memrealtime s[0:1]")
            self.e("s_waitcnt lgkmcnt(0)")
            self.e("s_sub_u32 s0, s0, s%d" % sSTAMP)
            self.e("s_cmp_lt_u32 s0, %d" % (Opt.pin_ns // 10))
            self.e("s_cbranch_scc1 L_pin%d" % self.nstamp)
            self.e("s_cmp_lg_u32 s%d, 0" % (sSTAMP + 5))
        if Opt.diag and not Opt.kdiag and (Opt.diag == 1 or i == 9):
            self.e("s_waitcnt lgkmcnt(0)")
            self.e("s_memtime %s" % sp(sSTAMP + 2 * i))
            self.e("s_memrealtime %s" % sp(sRET))
            self.e("s_waitcnt lgkmcnt(0)")
            self.e("s_mov_b32 s%d, s%d" % (sSTAMP + 2 * i + 1, sRET))

def astamp(a, i):
    if Opt.diag and Opt.kdiag == 2: a.e("s_memtime %s" % sp(sSTAMP + 2 * i))

def tstamp(a, i):
    if Opt.diag and Opt.kdiag == 3: a.e("s_memtime %s" % sp(sSTAMP + 2 * i))

def kstamp(a, i):
    if Opt.probe == 18 + i: a.e("s_memrealtime %s" % sp(sSTAMP + 4))
    if Opt.diag and Opt.kdiag == 1: a.e("s_memtime %s" % sp(sSTAMP + 2 * i))

def mfma(d, a, b, c):
    return "v_mfma_f32_32x32x16_bf16 %s, %s, %s, %s" % (v(d, 16), v(a, 4), v(b, 4), "0" if c is None else v(c, 16))
def smfmac(d, a, b):
    return "v_smfmac_f32_32x32x32_bf16 %s, %s, %s, %s" % (v(d, 16), v(a, 4), v(b, 8), v(vIDX))
def mfma16(d, a, b, c):
    return "v_mfma_f32_16x16x32_bf16 %s, %s, %s, %s" % (v(d, 4), v(a, 4), v(b, 4), "0" if c is None else v(c, 4))
def rd128(d, a, off):
    assert 0 <= off < 65536
    return "ds_read_b128 %s, %s offset:%d" % (v(d, 4), v(a), off)
def rdtr(d, a, off):
    assert 0 <= off < 65536
    return "ds_read_b64_tr_b16 %s, %s offset:%d" % (v(d, 2), v(a), off)

def interleave(mf, fill, per=2):
    out = []
    fill = list(fill)
    for i, m in enumerate(mf):
        out.append(m)
        if i < len(mf) - 1:
            out += fill[:per]; fill = fill[per:]
    return out + fill

def srd_words(a, regs):
    sizes = {SX: 2048 * 1024, SWG: 512 * 3584, SWU: 512 * 3584, SWQ: 512 * 1024, SWS: WS_SIZE, SWKV: 16384, SWV: 16384,
             SGATE: 1024, SWD: 1792 * 1024, SWO: 512 * 1024, SOUT: 2048 * 1024, SDBG: 256, SKV: 128 * 1024}
    for reg in regs:
        a.e("s_mov_b32 s%d, 0x%x" % (reg + 2, sizes[reg]))
        a.e("s_mov_b32 s%d, 0x20000" % (reg + 3))

def ptr_loads(a, lst):
    for reg, off in lst: a.e("s_load_dwordx2 %s, s[0:1], %d" % (sp(reg), off))

def prologue(a):
    if Opt.diag or Opt.pin >= 0 or Opt.probe >= 0:
        a.e("s_memrealtime %s" % sp(sSTAMP))
        if Opt.diag in (1, 2): a.e("s_memtime %s" % sp(sSTAMP + 2))
    ptr_loads(a, ((SX, 0), (SWG, 48), (SWU, 56), (SWQ, 8)))
    if Opt.probe == 1: a.stamp(1)
    a.e("v_lshrrev_b32 v2, 6, v0")
    if Opt.code_pf:
        a.e("s_getpc_b64 %s" % sp(sRET))
        a.lab("L_nopf")
        a.e("s_and_b32 s%d, s2, -8" % sA)
        a.e("v_add_lshl_u32 v4, v2, s%d, 7" % sA)
        a.e("v_mov_b32 v5, 0")
        a.e("v_min_u32 v4, CODE_PF_MAX, v4")
        a.e("v_lshl_add_u64 v[4:5], v[4:5], 0, %s" % sp(sRET))
        a.e("global_load_dword %s, v[4:5], off" % v(vPOLL))
    if not Opt.klate: a.e("s_load_dwordx8 s[%d:%d], s[0:1], 64" % (SOUT, SOUT + 7))
    a.e("v_readfirstlane_b32 s%d, v2" % sW)
    if not Opt.klate: ptr_loads(a, ((SWS, 96),) if Opt.diag or Opt.probe >= 0 else ((SWS, 96), (SWO, 32)))
    a.e("s_cmpk_ge_u32 s2, 256")
    a.e("s_cbranch_scc1 L_end")
    if Opt.oddl:
        a.e("s_bfe_u32 s%d, s2, 0x10002" % sD)
        a.e("s_bfe_u32 s%d, s2, 0x30003" % sA)
        a.e("s_lshl3_add_u32 s%d, s%d, s%d" % (sG, sD, sA))
        a.e("s_and_b32 s%d, s2, 3" % sA)
        if Opt.oddl == 2: a.e("s_xor_b32 s%d, s%d, 1" % (sA, sA))
        a.e("s_lshr_b32 s%d, s2, 6" % sB)
        a.e("s_lshl2_add_u32 s%d, s%d, s%d" % (sHP, sA, sB))
        a.e("s_lshr_b32 s%d, s%d, 3" % (sB, sHP))
        a.e("s_sub_u32 s%d, s%d, s%d" % (sM, sHP, sB))
        a.e("s_lshl_b32 s%d, s%d, 10" % (sWK, sW))
        a.e("s_andn2_b32 s%d, 7, s%d" % (sA, sHP))
        a.e("s_cbranch_scc0 L_light")
    else:
        a.e("s_and_b32 s%d, s2, 1" % sD)
        a.e("s_bfe_u32 s%d, s2, 0x30003" % sA)
        a.e("s_lshl3_add_u32 s%d, s%d, s%d" % (sG, sD, sA))
        a.e("s_bfe_u32 s%d, s2, 0x20001" % sA)
        a.e("s_lshr_b32 s%d, s2, 6" % sB)
        a.e("s_lshl2_add_u32 s%d, s%d, s%d" % (sM, sA, sB))
        a.e("s_mov_b32 s%d, s%d" % (sHP, sM))
        a.e("s_lshl_b32 s%d, s%d, 10" % (sWK, sW))
        a.e("s_cmp_ge_u32 s%d, 14" % sM)
        a.e("s_cbranch_scc1 L_light")

def xvoff(a, t):
    a.e("v_lshrrev_b32 v2, 4, %s" % v(t))
    a.e("v_xor_b32 v2, v2, %s" % v(t))
    a.e("v_and_b32 v2, 7, v2")
    a.e("s_lshl_b32 s%d, s%d, 17" % (sA, sG))
    a.e("v_lshl_add_u32 v2, v2, 4, s%d" % sA)
    a.e("v_lshrrev_b32 v3, 3, %s" % v(t))
    a.e("v_lshl_add_u32 %s, v3, 10, v2" % v(vDX))

def setup_ids(a):
    if Opt.klate:
        ptr_loads(a, ((SWS, 96), (SKV, 96), (SDBG, 88), (SWD, 64), (SWO, 32), (SOUT, 80)))
    else:
        a.e("s_mov_b64 %s, %s" % (sp(SKV), sp(SWS)))
        a.e("s_mov_b64 %s, %s" % (sp(SWD), sp(SOUT)))
        a.e("s_mov_b64 %s, %s" % (sp(SOUT), sp(SOUT + 4)))
        a.e("s_mov_b64 %s, %s" % (sp(SDBG), sp(SOUT + 6)))
    a.e("v_and_b32 v0, 63, v0")
    a.e("v_lshlrev_b32 %s, 4, v0" % v(vL16))
    if Opt.oddl:
        a.e("s_and_b32 s%d, s2, 7" % sA)
        a.e("s_xor_b32 s%d, s%d, 4" % (sA, sA))
    else:
        a.e("s_andn2_b32 s%d, 1, s2" % sA)
        a.e("s_bfe_u32 s%d, s2, 0x20001" % sB)
        a.e("s_lshl2_add_u32 s%d, s%d, s%d" % (sA, sA, sB))
    a.e("s_bfe_u32 s%d, s2, 0x20003" % sB)
    a.e("s_lshl2_add_u32 s%d, s%d, s%d" % (sT, sA, sB))
    a.e("s_lshr_b32 s%d, s2, 5" % sCB)

def setup_rd(a):
    a.e("s_lshr_b32 s%d, s%d, 2" % (sHI, sW))
    a.e("s_and_b32 s%d, s%d, 3" % (sLO, sW))
    a.e("v_and_b32 v2, 15, v0")
    a.e("v_lshrrev_b32 v3, 4, v0")
    a.e("v_bfe_u32 v4, v0, 1, 3")
    a.e("v_xor_b32 v4, v4, v3")
    a.e("v_lshlrev_b32 v4, 4, v4")
    a.e("v_lshl_add_u32 %s, v2, 7, v4" % v(vXA))
    a.e("v_bfe_u32 v2, v0, 2, 2")
    a.e("v_and_b32 v4, 3, v0")
    a.e("v_lshl_add_u32 %s, v3, 3, v2" % v(vQA))
    a.e("v_lshlrev_b32 %s, 6, %s" % (v(vQA), v(vQA)))
    a.e("v_xor_b32 v5, s%d, v3" % sHI)
    a.e("v_and_b32 v5, 1, v5")
    a.e("v_lshl_add_u32 %s, v5, 5, %s" % (v(vQA), v(vQA)))
    a.e("v_lshl_add_u32 %s, v4, 3, %s" % (v(vQA), v(vQA)))

def setup_oclr(a):
    srd_words(a, [SWS, SKV, SDBG])
    a.e("s_mov_b32 s%d, 0xffff" % sVM)
    a.e("s_mov_b32 s%d, 0xffff" % (sVM + 1))
    a.e("s_lshl_b32 s%d, s%d, 2" % (sA, sG))
    a.e("s_add_u32 s%d, s%d, s%d" % (sA, sA, sLO))
    a.e("s_lshl_b32 s%d, s%d, 5" % (sB, sA))
    a.e("s_lshl_b32 s%d, s%d, 1" % (sC, sHP))
    a.e("s_add_u32 s%d, s%d, s%d" % (sB, sB, sC))
    a.e("s_add_u32 s%d, s%d, s%d" % (sB, sB, sHI))
    a.e("s_lshl_b32 s%d, s%d, 10" % (sB, sB))
    a.e("s_add_u32 s%d, s%d, 0x%x" % (sOST, sB, WS_OF))
    for i in range(4): a.e("v_mov_b32 %s, -1" % v(vQ + i))
    a.vmop("buffer_store_dwordx4 %s, %s, %s, s%d offen sc1" % (v(vQ, 4), v(vL16), srd(SWS), sOST), "oclr")
    a.e("v_mov_b32 %s, 1" % v(vONE))
    a.e("v_mov_b32 %s, 0" % v(vZERO))
    a.e("v_and_b32 %s, 31, v0" % v(vGA))
    a.e("v_lshlrev_b32 %s, 2, %s" % (v(vGA), v(vGA)))

def collect(fn):
    t = Asm(); t.marks = {}
    def vmop(s_, tag):
        t.e(s_); t.marks[len(t.l) - 1] = tag
    t.vmop = vmop
    fn(t)
    return [(x, t.marks.get(i)) for i, x in enumerate(t.l)]
def put(a, items):
    for x, tag in items:
        if tag: a.vmop(x, tag)
        else: a.e(x)

def setup_ones(a):
    a.e("s_mov_b32 s%d, 0x110000" % sA)
    a.e("s_mov_b32 s%d, 0x110000" % sB)
    a.e("v_mov_b32 v3, 0x3f803f80")
    a.e("v_cndmask_b32 %s, 0, v3, %s" % (v(vV1L), sp(sA)))
    for i in range(1, 4): a.e("v_mov_b32 %s, %s" % (v(vV1L + i), v(vV1L)))
    for i in range(16): a.e("v_mov_b32 %s, %s" % (v(vV + i), v(vV1L)))

def setup_attn(a):
    srd_words(a, [SWD, SWO, SOUT])
    a.e("s_lshl_b32 s%d, s%d, 2" % (sA, sG))
    a.e("s_add_u32 s%d, s%d, s%d" % (sA, sA, sLO))
    a.e("s_mul_i32 s%d, s%d, 112" % (sB, sA))
    a.e("s_lshl_b32 s%d, s%d, 3" % (sC, sM))
    a.e("s_add_u32 s%d, s%d, s%d" % (sB, sB, sC))
    a.e("s_lshl_b32 s%d, s%d, 2" % (sC, sHI))
    a.e("s_add_u32 s%d, s%d, s%d" % (sB, sB, sC))
    a.e("s_and_b32 s%d, s%d, 1" % (sC, sLO))
    a.e("s_lshl_b32 s%d, s%d, 1" % (sC, sC))
    a.e("s_add_u32 s%d, s%d, s%d" % (sB, sB, sC))
    a.e("s_lshl_b32 s%d, s%d, 10" % (sB, sB))
    a.e("s_add_u32 s%d, s%d, 0x%x" % (sHST, sB, WS_HF))
    a.e("s_mul_i32 s%d, s%d, %d" % (sC, sC, 112 * 1024))
    a.e("s_sub_u32 s%d, %d, s%d" % (sC, 112 * 1024, sC))
    a.e("s_add_u32 s%d, s%d, s%d" % (sHST2, sHST, sC))
    a.e("v_bfe_u32 v2, v0, 2, 2")
    a.e("v_lshrrev_b32 v3, 5, v0")
    a.e("v_lshl_add_u32 v2, v3, 2, v2")
    a.e("v_lshlrev_b32 v2, 6, v2")
    a.e("v_bfe_u32 v3, v0, 4, 1")
    a.e("v_lshl_add_u32 v2, v3, 5, v2")
    a.e("v_and_b32 v3, 3, v0")
    a.e("v_lshl_add_u32 v2, v3, 3, v2")
    a.e("s_lshr_b32 s%d, s%d, 1" % (sA, sW))
    a.e("s_lshl_b32 s%d, s%d, 11" % (sA, sA))
    a.e("v_add_u32 %s, s%d, v2" % (v(vWDA), sA))
    a.e("v_add_u32 %s, 0x%x, %s" % (v(vKVA), L_KV, v(vL16)))
    a.e("v_add_u32 %s, 0x%x, %s" % (v(vKVB), L_KV + 0x4000, v(vL16)))
    a.e("v_bfe_u32 v2, v0, 2, 3")
    a.e("v_lshlrev_b32 v2, 10, v2")
    a.e("v_lshrrev_b32 v3, 5, v0")
    a.e("v_lshl_add_u32 v2, v3, 6, v2")
    a.e("v_and_b32 v3, 3, v0")
    a.e("v_lshl_add_u32 v2, v3, 4, v2")
    a.e("s_lshl_b32 s%d, s%d, 7" % (sB, sCB))
    a.e("v_add_u32 %s, s%d, v2" % (v(vWDV), sB))
    a.e("v_min_u32 v2, 13, v0")
    a.e("v_lshlrev_b32 v2, 7, v2")
    a.e("s_lshr_b32 s%d, s%d, 1" % (sA, sT))
    a.e("s_lshl_b32 s%d, s%d, 11" % (sA, sA))
    a.e("s_add_u32 s%d, s%d, 0x%x" % (sA, sA, WS_HFLAG))
    a.e("v_add_u32 %s, s%d, v2" % (v(vFLA), sA))
    a.e("s_lshl_b32 s%d, s%d, 1" % (sA, sT))
    a.e("s_and_b32 s%d, s%d, 1" % (sB, sW))
    a.e("s_add_u32 s%d, s%d, s%d" % (sA, sA, sB))
    a.e("s_lshl_b32 s%d, s%d, 15" % (sB, sA))
    a.e("s_lshr_b32 s%d, s%d, 1" % (sKQ, sW))
    if Opt.kqx == 2:
        a.e("s_and_b32 s%d, s%d, 2" % (sKQ, sW))
        a.e("s_add_u32 s%d, s%d, s%d" % (sKQ, sKQ, sHI))
    if Opt.kqx == 1:
        a.e("s_lshl_b32 s%d, s%d, 1" % (sC, sCB))
        a.e("s_and_b32 s%d, s%d, 2" % (sC, sC))
        a.e("s_xor_b32 s%d, s%d, s%d" % (sKQ, sKQ, sC))
    a.e("s_lshl_b32 s%d, s%d, 13" % (sC, sKQ))
    a.e("s_add_u32 s%d, s%d, s%d" % (sB, sB, sC))
    a.e("s_add_u32 s%d, s%d, 0x%x" % (sOLD, sB, WS_OF))
    a.e("v_and_b32 v2, 31, v0")
    a.e("v_lshrrev_b32 v3, 5, v0")
    a.e("v_and_b32 v4, 7, v0")
    a.e("v_xor_b32 v3, v3, v4")
    a.e("v_lshlrev_b32 v3, 4, v3")
    a.e("v_lshl_add_u32 v3, v2, 8, v3")
    a.e("s_and_b32 s%d, s%d, 1" % (sB, sW))
    a.e("s_lshl_b32 s%d, s%d, 15" % (sB, sB))
    a.e("s_lshr_b32 s%d, s%d, 1" % (sC, sW))
    a.e("s_lshl_b32 s%d, s%d, 13" % (sD, sC))
    a.e("s_add_u32 s%d, s%d, s%d" % (sOUTO, sD, sB))
    a.e("s_add_u32 s%d, s%d, 0x%x" % (sD, sOUTO, L_RED))
    a.e("v_add_u32 %s, s%d, v3" % (v(vAW0), sD))
    a.e("v_lshrrev_b32 v2, 3, v0")
    a.e("v_lshlrev_b32 v3, 1, v4")
    a.e("v_xor_b32 v3, v3, v2")
    a.e("v_lshlrev_b32 v3, 4, v3")
    a.e("v_lshl_add_u32 v3, v2, 8, v3")
    a.e("s_lshl_b32 s%d, s%d, 11" % (sD, sC))
    a.e("s_add_u32 s%d, s%d, s%d" % (sD, sD, sB))
    a.e("s_add_u32 s%d, s%d, 0x%x" % (sD, sD, L_RED))
    a.e("v_add_u32 %s, s%d, v3" % (v(vAR0), sD))
    a.e("v_lshlrev_b32 v4, 4, v4")
    a.e("v_lshl_add_u32 %s, v2, 10, v4" % v(vOUTA))
    a.e("s_lshl_b32 s%d, s%d, 16" % (sC, sT))
    a.e("s_add_u32 s%d, s%d, s%d" % (sOUTO, sOUTO, sC))
    a.e("s_lshl_b32 s%d, s%d, 7" % (sC, sCB))
    a.e("s_add_u32 s%d, s%d, s%d" % (sOUTO, sOUTO, sC))
    a.e("v_mov_b32 %s, 0xdddd" % v(vIDX))
    a.e("v_lshrrev_b32 v2, 4, v0")
    a.e("v_lshl_add_u32 %s, v2, 8, %s" % (v(vHA), v(vL16)))
    for i in range(16): a.e("v_mov_b32 %s, 0" % v(vO + i))
    for i in range(32): a.e("v_mov_b32 %s, 0" % v(vD + i))
    c0 = -2.0 * math.sqrt(2.0 / math.pi) * math.log2(math.e)
    a.e("v_mov_b32 %s, 0x%x" % (v(vC0), f2u(c0)))
    a.e("v_mov_b32 %s, 0x%x" % (v(vC0 + 1), f2u(c0 * 0.044715)))

def kv_first_loads(a, quartet=False):
    it = []
    for o in (range(0, 16384, 4096) if quartet else range(0, 16384, 8192)):
        b = sWH if quartet else sWK
        it.append(("s_add_u32 m0, s%d, 0x%x\ns_add_u32 s%d, s%d, 0x%x\nbuffer_load_dwordx4 %s, %s, s%d offen sc1 lds"
                   % (b, L_KV + o, sA, b, o, v(vL16), srd(SKV), sA), "kv%d" % (o >> 13)))
    it.append(("s_mov_b32 s%d, 0x%x\nbuffer_load_dwordx4 %s, %s, %s, s%d offen sc1"
               % (sA, 63 * 2048, v(vK0, 4), v(vL16), srd(SKV), sA), "k0"))
    it.append(("s_mov_b64 exec, %s\nbuffer_load_dwordx4 %s, %s, %s, 0 offen offset:%d sc1\ns_mov_b64 exec, -1"
               % (sp(sVM), v(vV1L, 4), v(vL16), srd(SKV), 1024 + 256), "k0"))
    it.append(("s_lshl_b32 s%d, s%d, 2\ns_add_u32 s%d, s%d, s%d\ns_lshl_b32 s%d, s%d, 7\ns_add_u32 s%d, s%d, 0x%x\n"
               "buffer_load_dword %s, %s, %s, s%d offen sc1"
               % (sA, sG, sA, sA, sLO, sA, sA, sA, sA, WS_G, v(vGP), v(vGA), srd(SWS), sA), "k0"))
    it.append(("s_lshl_b32 s%d, s%d, 1\ns_and_b32 s%d, s%d, 1\ns_add_u32 s%d, s%d, s%d\ns_lshl_b32 s%d, s%d, 7\ns_add_u32 s%d, s%d, 0x%x\n"
               "buffer_load_dword %s, %s, %s, s%d offen sc1"
               % (sA, sT, sB, sW, sA, sA, sB, sA, sA, sA, sA, WS_G, v(vGC), v(vGA), srd(SWS), sA), "k0"))
    return it

def spin_counter(a, name, first_loaded, wave=0):
    a.e("s_cmp_lg_u32 s%d, %d" % (sW, wave))
    a.e("s_cbranch_scc1 L_%s_done" % name)
    a.e("s_mov_b32 s%d, 0x4000" % sB)
    if first_loaded: a.e("s_branch L_%s_chk" % name)
    a.lab("L_%s_re" % name)
    a.e("buffer_load_dword %s, off, %s, 0 sc1" % (v(vPOLL), srd(SDBG)))
    a.e("s_waitcnt vmcnt(0)")
    a.lab("L_%s_chk" % name)
    a.e("v_readfirstlane_b32 s%d, %s" % (sA, v(vPOLL)))
    a.e("s_cmp_ge_u32 s%d, 32" % sA)
    a.e("s_cbranch_scc1 L_%s_done" % name)
    a.e("s_sleep 4    ; back-off between two polls of the K/V counter")
    a.e("s_sub_u32 s%d, s%d, 1" % (sB, sB))
    a.e("s_cmp_lg_u32 s%d, 0" % sB)
    a.e("s_cbranch_scc1 L_%s_re" % name)
    a.lab("L_%s_done" % name)

def phase1_F(a):
    SCHED = {1: ["01423567", "10253467", "23016457", "32104756"],
             2: ["02134657", "01324576", "10243567", "10235467"],
             3: ["01324657", "01243576", "12035467", "20134567"],
             5: ["01243567", "10325467", "23014657", "32104576"],
             6: ["01243567", "10325467", "01234657", "10324576"],
             7: ["01234567", "10235476", "01234567", "10235476"],
             8: ["01234567", "10243657", "01234567", "10243657"],
             4: ["02143657", "10325476", "02143657", "10325476"]}
    tabs = SCHED[Opt.sched] if Opt.sched else ["".join(str(c ^ (p & Opt.xmask)) for c in range(8)) for p in range(4)]
    for t_ in tabs: assert sorted(t_) == list("01234567")
    num = [int(t_[::-1], 16) for t_ in tabs]
    def table(a):
        a.e("s_add_u32 s%d, s%d, s%d" % (sA, sG, sHP))
        a.e("s_mov_b32 s%d, 0x%x" % (sXP, num[0]))
        a.e("s_mov_b32 s%d, 0x%x" % (sB, num[2]))
        a.e("s_bitcmp1_b32 s%d, 0" % sA)
        a.e("s_cselect_b32 s%d, 0x%x, s%d" % (sXP, num[1], sXP))
        a.e("s_cselect_b32 s%d, 0x%x, s%d" % (sB, num[3], sB))
        a.e("s_bitcmp1_b32 s%d, 1" % sA)
        a.e("s_cselect_b32 s%d, s%d, s%d" % (sXP, sB, sXP))
        if Opt.ghx:
            a.e("s_bitcmp1_b32 s%d, 3" % sG)
            a.e("s_cselect_b32 s%d, 0x44444444, 0" % sB)
            a.e("s_xor_b32 s%d, s%d, s%d" % (sXP, sXP, sB))
    fo, fw = {"0000": (0, 0), "0101": (0, 1), "0011": (1, 1), "0123": (0, 2)}["".join(t_[0] for t_ in tabs)]
    a.e("s_add_u32 s%d, s%d, s%d" % (sA, sG, sHP))
    a.e("s_bfe_u32 s%d, s%d, 0x%x" % (sCH, sA, fw << 16 | fo))
    if Opt.ghx: a.e("s_lshl2_add_u32 s%d, s%d, s%d" % (sCH, sD, sCH))
    a.e("s_and_b32 s%d, s%d, 0xc00" % (sWH, sWK))
    a.e("v_and_b32 %s, 0xff, v0" % v(vTID))

    def wvoff(a):
        a.e("v_lshrrev_b32 v2, 4, %s" % v(vTID))
        a.e("v_lshrrev_b32 v3, 5, %s" % v(vTID))
        a.e("v_bfi_b32 v3, 3, v2, v3")
        a.e("v_lshlrev_b32 v3, 1, v3")
        a.e("v_xor_b32 v3, v3, %s" % v(vTID))
        a.e("v_and_b32 v3, 15, v3")
        a.e("s_lshl_b32 s%d, s%d, 8" % (sA, sM))
        a.e("v_lshl_add_u32 v3, v3, 4, s%d" % sA)
        a.e("v_mul_u32_u24 v2, 3584, v2")
        a.e("v_add_u32 %s, v2, v3" % v(vDG))
    def qvoff(a):
        a.e("v_lshrrev_b32 v2, 4, %s" % v(vTID))
        a.e("v_and_b32 v2, 2, v2")
        a.e("v_xor_b32 v2, v2, %s" % v(vTID))
        a.e("v_and_b32 v2, 3, v2")
        a.e("s_lshl_b32 s%d, s%d, 6" % (sA, sHP))
        a.e("v_lshl_add_u32 v2, v2, 4, s%d" % sA)
        a.e("v_lshrrev_b32 v3, 2, %s" % v(vTID))
        a.e("v_lshl_add_u32 %s, v3, 10, v2" % v(vDQ))
    def stouch(a):
        if (Opt.diag or Opt.probe >= 0) and not Opt.klate: a.e("s_load_dwordx2 %s, s[0:1], 32" % sp(SWO))
        if not Opt.stch: return
        a.e("s_lshr_b32 s%d, s%d, 2" % (sA, sW))
        if Opt.ghx: a.e("s_lshl2_add_u32 s%d, s%d, s%d" % (sA, sD, sA))
        a.e("s_lshl_b32 s%d, s%d, 6" % (sA, sA))
        a.e("s_and_b32 s%d, s%d, 7" % (sB, sG))
        a.e("s_add_u32 s%d, s%d, s%d" % (sA, sA, sB))
        a.e("s_mul_i32 s%d, s%d, 28" % (sA, sA))
        a.e("s_bfe_u32 s%d, s%d, 0x10001" % (sB, sW))
        a.e("s_lshl1_add_u32 s%d, s%d, s%d" % (sB, sM, sB))
        a.e("s_add_u32 s%d, s%d, s%d" % (sA, sA, sB))
        a.e("s_lshl_b32 s%d, s%d, 7" % (sA, sA))
        a.e("s_bitcmp1_b32 s%d, 0" % sW)
        a.e("s_cselect_b64 %s, %s, %s" % (sp(SWKV), sp(SWU), sp(SWG)))
        a.e("s_add_u32 s%d, s%d, s%d" % (SWKV, SWKV, sA))
        a.e("s_addc_u32 s%d, s%d, 0" % (SWKV + 1, SWKV + 1))
        for i in range(Opt.stch):
            a.e("s_load_dwordx2 %s, %s, 0x%x" % (sp(sTMPP), sp(SWKV), 128 * 3584 + i * 8 * 3584 + 60))
    def wsrd(a):
        srd_words(a, [SWG])
        a.e("s_mov_b64 %s, %s" % (sp(SWU + 2), sp(SWG + 2)))

    if Opt.hrot:
        ORDER = [("q", 0)] + [(t_, 2 * h_ + j) for h_ in range(2) for t_, j in (("x", 0), ("x", 1), ("g", 0), ("u", 0), ("g", 1), ("u", 1))]
    else:
        ORDER = [("q", 0)] + [("x", j) for j in range(4)] + [(t_, j) for j in range(4) for t_ in "gu"]
    def block(items):
        out = []; lastc = None; lastw = None
        for c, kind, j in items:
            s = c % 3; pre = []
            if c != lastc:
                if c: pre.append("s_bfe_u32 s%d, s%d, 0x%x" % (sCH, sXP, 0x30000 + 4 * c))
                lastc = c; lastw = None
            fam = "w" if kind in "gu" else kind
            rot = Opt.hrot and fam != "q"
            if lastw is None or lastw[0] != fam or (rot and lastw[1] >> 1 != j >> 1):
                pre.append({"q": "s_lshl_b32 s%d, s%d, 16" % (sOFFW, sCH), "x": "s_lshl_b32 s%d, s%d, 7" % (sOFFW, sCH),
                            "w": "s_mul_i32 s%d, s%d, %d" % (sOFFW, sCH, 64 * 3584)}[fam])
                if rot: pre.append("s_%s_u32 s%d, s%d, s%d" % ("sub" if j >> 1 else "add", sOFFW, sOFFW, sRX if fam == "x" else sRW))
                lastw = (fam, 0)
            if lastw[1] != j:
                pre.append("s_add_u32 s%d, s%d, 0x%x" % (sOFFW, sOFFW, (j - lastw[1]) * (0x8000 if fam == "x" else 16 * 3584)))
                lastw = (fam, j)
            m0c, vo, rs = {"q": (L_WQ + s * 4096, vDQ, SWQ), "x": (L_X + s * 16384 + j * 4096, vDX, SX),
                           "g": (L_G + s * 16384 + j * 4096, vDG, SWG), "u": (L_U + s * 16384 + j * 4096, vDG, SWU)}[kind]
            nt = " nt" if Opt.ntx & (1 if rs == SX else 2) else ""
            out.append(("s_add_u32 m0, s%d, 0x%x\n%s\nbuffer_load_dwordx4 %s, %s, s%d offen%s lds"
                        % ((sM0B + (j >> 1)) if rot else sWH, m0c, "\n".join(pre) or "s_nop 0", v(vo), srd(rs), sOFFW, nt), "c%d" % c))
        return out
    def part(c, role): return [(c, k_, j) for k_, j in ORDER if (k_ in "gu") == (role == "A")]

    def rdsetup(a):
        setup_rd(a)
        a.e("v_lshl_add_u32 %s, v3, 3, v2" % v(vWA))
        a.e("v_lshlrev_b32 %s, 8, %s" % (v(vWA), v(vWA)))
        a.e("v_lshl_add_u32 %s, v4, 3, %s" % (v(vWA), v(vWA)))
        a.e("v_and_b32 v5, 1, v3")
        a.e("v_lshl_add_u32 v2, v5, 2, v2")
        a.e("s_lshl_b32 s%d, s%d, 2" % (sA, sHI))
        a.e("s_and_b32 s%d, s%d, 1" % (sB, sLO))
        a.e("s_lshl_b32 s%d, s%d, 1" % (sB, sB))
        a.e("s_add_u32 s%d, s%d, s%d" % (sA, sA, sB))
        a.e("v_xor_b32 v2, s%d, v2" % sA)
        a.e("v_lshl_add_u32 %s, v2, 5, %s" % (v(vWA), v(vWA)))
        a.e("v_xor_b32 %s, 32, %s" % (v(vWA + 1), v(vWA)))
        a.e("v_add_u32 %s, 0x%x, %s" % (v(vWA + 2), L_U - L_G, v(vWA)))
        a.e("v_add_u32 %s, 0x%x, %s" % (v(vWA + 3), L_U - L_G, v(vWA + 1)))
        a.e("s_lshl_b32 s%d, s%d, 12" % (sA, sLO))
        a.e("s_add_u32 s%d, s%d, 0x%x" % (sA, sA, L_X))
        a.e("v_add_u32 %s, s%d, %s" % (v(vXA), sA, v(vXA)))
        a.e("v_xor_b32 %s, 0x1000, %s" % (v(vXA + 1), v(vXA)))
        a.e("v_xor_b32 %s, 64, %s" % (v(vXA + 2), v(vXA)))
        a.e("v_xor_b32 %s, 64, %s" % (v(vXA + 3), v(vXA + 1)))
        a.e("v_add_u32 %s, 0x%x, %s" % (v(vQA), L_WQ, v(vQA)))

    a.e("s_cmp_ge_u32 s%d, 4" % sW)
    a.e("s_cbranch_scc1 L_setB")
    late = collect(setup_oclr) + collect(setup_ones) + [("; later", None)] + collect(setup_attn)
    words = collect(lambda t: srd_words(t, [SWS, SKV, SDBG, SWD, SWO, SOUT]))
    late = [x for x in late if x not in words]
    oclr = [x for x in late if x[1] == "oclr"]
    if Opt.olate: late = [x for x in late if x[1] != "oclr"]
    else: oclr = []
    words += [("v_mov_b32 %s, 0" % v(r_), None) for r_ in (vGA, vWDV, vFLA, vHA, vOUTA)]
    st = collect(rdsetup) + words + late[:Opt.fillpre]
    cut = late.index(("; later", None)) if Opt.bidle else len(late)
    fills = {"A": late[Opt.fillpre:], "B": late[Opt.fillpre:max(cut, Opt.fillpre)]}
    idleB = late[max(cut, Opt.fillpre):]
    vms = {}
    wsrd(a); wvoff(a)
    a.e("s_waitcnt lgkmcnt(0)")
    a.stamp(2)
    if Opt.spos == 0: stouch(a)
    put(a, block(part(0, "A")))
    a.e("s_branch L_setA")
    vms["A"] = a.vm; a.vm = []
    a.lab("L_setB")
    srd_words(a, [SX]); xvoff(a, vTID)
    a.e("s_waitcnt lgkmcnt(0)")
    a.stamp(2)
    if Opt.spos == 0: stouch(a)
    put(a, block(part(0, "B")[1:]))
    srd_words(a, [SWQ]); qvoff(a)
    put(a, block(part(0, "B")[:1]))
    vms["B"] = a.vm
    for role in "BA":
        a.vm = vms[role]
        if role == "A": a.lab("L_setA")
        if Opt.spos == 1: stouch(a)
        table(a)
        setup_ids(a)
        if role == "A": srd_words(a, [SX, SWQ])
        else: wsrd(a)
        def touches():
            tm = sum(0xff << (8 * i) for i in range(4) if Opt.tch >> i & 1)
            setex = "s_bitcmp1_b32 s%d, 3\ns_cselect_b32 exec_lo, 0, 0x%x\ns_cselect_b32 exec_hi, 0x%x, 0" % (sG, tm, tm) if Opt.ghx \
                    else "s_mov_b32 exec_lo, 0x%x\ns_mov_b32 exec_hi, 0" % tm
            if Opt.tlb & 2 and role == "B":
                a.e("s_and_b32 s%d, s%d, 7" % (sA, sG))
                a.e("v_lshl_add_u32 v2, v0, 3, s%d" % sA)
                a.e("v_mul_u32_u24 v3, 3584, v2")
                a.e("s_and_b32 s%d, s%d, 1" % (sB, sW))
                a.e("s_lshl1_add_u32 s%d, s%d, s%d" % (sA, sM, sB))
                a.e("s_lshl_b32 s%d, s%d, 7" % (sA, sA))
                a.e(setex)
                a.e("s_cmp_ge_u32 s%d, 6" % sW)
                a.e("s_cbranch_scc1 L_tlbu")
                a.e("buffer_load_dword %s, v3, %s, s%d offen" % (v(vPOLL), srd(SWG), sA))
                a.e("s_branch L_tlbe")
                a.lab("L_tlbu")
                a.e("buffer_load_dword %s, v3, %s, s%d offen" % (v(vPOLL), srd(SWU), sA))
                a.lab("L_tlbe")
                a.e("s_mov_b64 exec, -1")
                a.vm.append("tlb")
            if Opt.tlb & 12 and role == "A":
                a.e("s_cmp_lg_u32 s%d, 0" % sW)
                a.e("s_cbranch_scc1 L_tlbx")
                a.e("s_and_b32 s%d, s%d, 7" % (sA, sG))
                a.e("v_lshl_add_u32 v2, v0, 3, s%d" % sA)
                a.e("v_lshlrev_b32 v3, 10, v2")
                a.e("s_lshl_b32 s%d, s%d, 6" % (sA, sHP))
                a.e(setex if Opt.tlb & 4 else "s_mov_b64 exec, 1")
                a.e("buffer_load_dword %s, v3, %s, s%d offen" % (v(vPOLL), srd(SWQ), sA))
                if not Opt.tlb & 8:
                    a.e("s_mov_b64 exec, -1")
                    a.lab("L_tlbx")
                    return
                a.e("s_branch L_tlby")
                a.lab("L_tlbx")
                a.e("s_bitcmp1_b32 s2, 0")
                a.e("s_cselect_b32 s%d, %d, %d" % (sB, Opt.xodd, Opt.xeven))
                a.e("s_and_b32 s%d, s%d, 3" % (sA, sHP))
                a.e("s_mul_i32 s%d, s%d, s%d" % (sA, sA, sB))
                a.e("s_lshl_b32 s%d, s%d, 7" % (sC, sG))
                a.e("s_add_u32 s%d, s%d, s%d" % (sA, sA, sC))
                a.e("v_add_lshl_u32 v3, v0, s%d, 10" % sA)
                a.e("s_lshr_b32 s%d, s%d, 3" % (sA, sG))
                a.e("s_lshl2_add_u32 s%d, s%d, s%d" % (sA, sA, sW) if Opt.ghx else "s_mov_b32 s%d, s%d" % (sA, sW))
                a.e("s_lshl_b32 s%d, s%d, 7" % (sA, sA))
                a.e("s_bitcmp1_b32 %d, s%d" % (Opt.tch if Opt.tlb & 8 else 0, sW))
                a.e("s_cselect_b32 s%d, s%d, 1" % (sB, sB))
                a.e("s_bfm_b64 exec, s%d, 0" % sB)
                a.e("buffer_load_dword %s, v3, %s, s%d offen" % (v(vPOLL), srd(SX), sA))
                a.lab("L_tlby")
                a.e("s_mov_b64 exec, -1")
                a.vm.append("tlb")
        if Opt.tpos == 0: touches()
        if Opt.startbar: a.e("s_barrier")
        npre = min(Opt.npre, 8) if role == "A" else 5
        pn = block(part(1, role)[:npre])
        rest = st + (collect(qvoff) + collect(lambda t: xvoff(t, vTID)) if role == "A" else collect(wvoff))
        gap = len(rest) // (npre + Opt.pregap) + 1
        if Opt.tpos == 2:
            put(a, pn); touches(); npre = 0
        if Opt.tpos == 3 and role == "B":
            put(a, pn); touches(); npre = 0
        for i in range(npre):
            put(a, pn[:1]); pn = pn[1:]
            put(a, rest[:gap]); rest = rest[gap:]
        put(a, rest)
        if Opt.tpos == 1 or (Opt.tpos == 3 and role == "A"): touches()
        a.e("s_mov_b64 vcc, %d" % (-1 if role == "A" else 0))
        if role == "A":
            a.waitvm("c0", lgkm=True)
        else:
            a.e("s_setprio 1")
            a.waitvm("c0", lgkm=True)
            a.e("s_branch L_k0")
        vms[role] = a.vm
    stream = part(1, "A")[min(Opt.npre, 8):] + [(c, k_, j) for c in range(2, 8) for k_, j in ORDER]
    qa = [int(x, 16) for x in Opt.qa]; qb = [int(x, 16) for x in Opt.qb]
    def take(n, cmax):
        m = 0
        while m < n and m < len(stream) and stream[m][0] <= cmax: m += 1
        r_ = stream[:m]; del stream[:m]
        return block(r_)
    a.lab("L_k0")
    a.vm = vms["A"]
    ool = Asm()
    def dmablock(name, role, items, wait=None):
        a.e("s_cbranch_vcc%s L_%s" % ("nz" if role == "A" else "z", name))
        if wait: a.waitvm(wait, lgkm=True)
        a.lab("L_%s_r" % name)
        ool.lab("L_%s" % name)
        ool.vm = a.vm if role == "A" else vms["B"]
        for it_ in items:
            put(ool, [it_])
            fp = Opt.fillper if role == "A" or not Opt.bidle else 2
            put(ool, fills[role][:fp]); fills[role] = fills[role][fp:]
        if name in ("d7", "e7"): put(ool, fills[role]); fills[role] = []
        if wait: ool.waitvm(wait, lgkm=True)
        if role == "B": vms["B"] = ool.vm
        ool.e("s_branch L_%s_r" % name)
    a.ool = ool.l

    def fr(k):
        b = vF1 + 36 * (k % 2)
        return dict(x=b, w=b + 16, q=b + 32)
    def reads(k):
        c, s = divmod(k, 2); f = fr(k); sl = c % 3
        wo = sl * 16384 + s * 8192
        W = lambda i: [rdtr(f['w'] + 4 * i, vWA + i, wo), rdtr(f['w'] + 4 * i + 2, vWA + i, wo + 1024)]
        X = [rd128(f['x'] + 4 * b, vXA + 2 * s + (b >> 1), sl * 16384 + (b & 1) * 2048) for b in range(4)]
        return W(0) + X + W(2) + W(1) + W(3) + [rdtr(f['q'], vQA, sl * 4096 + s * 2048), rdtr(f['q'] + 2, vQA, sl * 4096 + s * 2048 + 256)]
    a.e("s_barrier")
    a.stamp(3)
    if Opt.kdiag or Opt.probe >= 18:
        kstamp(a, 2)
        a.e("s_waitcnt lgkmcnt(0)")
    if Opt.kal: a.l.append(".p2align 3")
    if Opt.kal == 2: a.e("s_nop 0")
    al = (lambda: a.l.append(".p2align 3")) if Opt.kal == 3 else (lambda: None)
    for r in reads(0): a.e(r)
    if qa[0]: dmablock("d2", "A", take(qa[0], 2))
    for k in range(16):
        c, s = divmod(k, 2); f = fr(k)
        z = lambda x: None if k == 0 else x
        mf = []
        for n_, i in enumerate((0, 2, 1, 3)):
            for b in (range(4) if n_ % 2 == 0 else range(3, -1, -1)):
                d = vACC + 16 * b + 4 * i
                mf.append(mfma16(d, f['w'] + 4 * i, f['x'] + 4 * b, z(d)))
        for b in range(2): mf.append(mfma16(vAQ + 4 * b, f['q'], f['x'] + 4 * b, z(vAQ + 4 * b)))
        rds = reads(k + 1) if k < 15 else []
        if s == 0:
            a.e("s_waitcnt lgkmcnt(6)"); al()
            for i, m in enumerate(mf):
                if i == 8: a.e("s_waitcnt lgkmcnt(%d)" % (8 - Opt.kw0)); al()
                a.e(m)
                if Opt.kw0 and i == 7: continue
                ii = i - (1 if Opt.kw0 and i > 7 else 0)
                if ii < len(rds): a.e(rds[ii])
            continue
        a.e("s_waitcnt lgkmcnt(8)")
        for m in mf[:Opt.kb]: a.e(m)
        if c <= 5:
            dmablock("e%d" % (c + 2), "B", take(qb[c], c + 2), "c%d" % (c + 1))
            assert not any(x[0] <= c + 1 for x in stream)
        if c == 7:
            a.e("s_waitcnt lgkmcnt(0)")
        elif c == 6:
            a.e("s_waitcnt lgkmcnt(0)")
            a.e("s_cbranch_vccz L_st7")
            a.e("s_setprio 1")
            a.e("s_waitcnt vmcnt(0)")
            a.e("s_barrier")
            a.lab("L_st7")
        else:
            a.e("s_barrier")
        if c < 7 and ((Opt.kdiag == 1 and Opt.diag) or Opt.probe == 21 + c):
            kstamp(a, 3 + c)
            a.e("s_waitcnt lgkmcnt(0)")
        if c + 3 < 8:
            items = take(qa[c + 1], c + 3)
            dmablock("d%d" % (c + 3), "A", items)
        al()
        for i, m in enumerate(mf[Opt.kb:]):
            a.e(m)
            if i < len(rds): a.e(rds[i])
        if k == 11: assert not stream and not fills["A"] and not fills["B"]
        if k == 11:
            a.e("s_cbranch_vccnz L_st6")
            a.e("s_setprio 0")
            nm = next((i for i, x in enumerate(idleB) if "0xdddd" in x[0]), 0)
            a.e("s_cmp_lg_u32 s%d, 4" % sW)
            a.e("s_cbranch_scc1 L_nopoll")
            a.e("buffer_load_dword %s, off, %s, 0 sc1" % (v(vPOLL), srd(SDBG)))
            a.lab("L_nopoll")
            put(a, idleB[:nm]); idleB = idleB[nm:]
            a.wait0()
            spin_counter(a, "kvf", True, 4)
            a.e("s_barrier")
            put(a, kv_first_loads(a, True) + oclr + idleB)
            a.lab("L_st6")
    a.kvA = (kv_first_loads(a) + oclr)[2:]
    a.stamp(4)

def phase1_L(a):
    a.lab("L_light")
    a.vm = []
    if Opt.oddl: a.e("s_add_u32 s%d, s%d, 14" % (sM, sB))
    if Opt.klate:
        ptr_loads(a, ((SGATE, 72), (SWKV, 16), (SWV, 24)))
    else:
        a.e("s_waitcnt lgkmcnt(0)")
        ptr_loads(a, ((SWKV, 16), (SWV, 24), (SGATE, 72), (SWO, 32)))
    srd_words(a, [SWKV, SWV, SGATE, SX])
    xvoff(a, 0)
    a.e("v_and_b32 v2, 63, v0")
    a.e("v_lshlrev_b32 %s, 4, v2" % v(vL16))
    a.e("s_sub_u32 s%d, s%d, 14" % (sCNT, sM))
    a.e("s_lshl_b32 s%d, s%d, 16" % (sOLD, sCNT))
    a.e("s_lshl_b32 s%d, s%d, 13" % (sHST, sCNT))
    a.e("s_add_u32 s%d, s%d, s%d" % (sWH, sHST, sWK))
    a.e("s_xor_b32 s%d, s%d, 0x2000" % (sHST, sHST))
    a.e("s_add_u32 s%d, s%d, 0x2000" % (sA, sWK))
    a.e("s_waitcnt lgkmcnt(0)")
    a.stamp(2)
    def xdma(c, base, so):
        a.vmop("s_add_u32 m0, s%d, 0x%x\ns_nop 0\nbuffer_load_dwordx4 %s, %s, s%d offen offset:%d lds"
               % (base, LL_X + c * 16384 - c * 128, v(vDX), srd(SX), so, c * 128), "c%d" % c)
    def wdma(u):
        for t, rs in enumerate((SWKV, SWV)):
            a.vmop("s_add_u32 m0, s%d, 0x%x\ns_nop 0\nbuffer_load_dwordx4 %s, %s, s%d offen lds"
                   % (sWK, LL_W + t * 16384 + u * 8192, v(vL16), srd(rs), sA if u else sWK), "w")
    wdma(0)
    a.vmop("s_mov_b32 m0, s%d\ns_nop 0\nbuffer_load_dwordx4 %s, %s, 0 offen lds" % (sHST, v(vL16), srd(SGATE)), "w")
    for c in range(8):
        if c == 4: wdma(1)
        xdma(c, sWH, sOLD)
        if (c == 1 and Opt.lthr & 1) or (c == 3 and Opt.lthr & 2): a.e("s_waitcnt vmcnt(0)")
        if c in (1, 3, 5): a.e("s_barrier")
    setup_ids(a)
    srd_words(a, [SWQ])
    setup_rd(a)
    a.e("v_lshrrev_b32 v3, 5, v0")
    a.e("v_bfrev_b32 v5, v4")
    a.e("v_lshrrev_b32 v5, 30, v5")
    a.e("s_cmp_ge_u32 s%d, 2" % sLO)
    a.e("s_cselect_b64 vcc, -1, 0")
    a.e("v_cndmask_b32 v4, v5, v4, vcc")
    a.e("v_lshl_add_u32 %s, v3, 3, v2" % v(vWA))
    a.e("v_lshlrev_b32 %s, 5, %s" % (v(vWA), v(vWA)))
    a.e("v_lshl_add_u32 %s, v4, 3, %s" % (v(vWA), v(vWA)))
    a.e("s_lshr_b32 s%d, s%d, 1" % (sA, sLO))
    a.e("s_lshl_b32 s%d, s%d, 14" % (sA, sA))
    a.e("s_add_u32 s%d, s%d, 0x%x" % (sA, sA, LL_W))
    a.e("v_add_u32 %s, s%d, %s" % (v(vWA), sA, v(vWA)))
    a.e("v_lshl_add_u32 %s, v3, 4, s%d" % (v(vWA + 1), sHST))
    a.e("s_and_b32 s%d, s%d, 1" % (sA, sLO))
    a.e("s_lshl_b32 s%d, s%d, 1" % (sB, sCNT))
    a.e("s_add_u32 s%d, s%d, s%d" % (sCNT, sA, sB))
    a.e("s_lshl_b32 s%d, s%d, 12" % (sA, sCNT))
    a.e("v_and_b32 v2, 31, v0")
    a.e("v_lshrrev_b32 v4, 1, v0")
    a.e("v_lshlrev_b32 v5, 1, v0")
    a.e("v_bfi_b32 v4, 4, v4, v5")
    a.e("v_bfi_b32 v4, 12, v4, v2")
    a.e("v_cndmask_b32 v2, v2, v4, vcc")
    a.e("v_bfe_u32 v4, v2, 1, 3")
    a.e("v_xor_b32 v4, v4, v3")
    a.e("v_lshlrev_b32 v4, 4, v4")
    a.e("v_lshl_add_u32 v4, v2, 7, v4")
    a.e("v_add_u32 %s, s%d, v4" % (v(vLX), sA))
    for s in range(1, 4): a.e("v_xor_b32 %s, %d, %s" % (v(vLX + s), 32 * s, v(vLX)))
    for s in range(4): a.e("v_add_u32 %s, 0x10000, %s" % (v(vLX + 4 + s), v(vLX + s)))
    a.e("s_waitcnt lgkmcnt(0)")
    setup_oclr(a)
    vm0 = list(a.vm)
    a.e("s_cmp_lg_u32 s%d, 0" % sHI)
    a.e("s_cbranch_scc1 L_lB")
    a.e("s_not_b64 %s, %s" % (sp(sTMPP), sp(sVM)))
    a.e("s_cmp_ge_u32 s%d, 2" % sLO)
    a.e("s_cbranch_scc1 L_lV")
    def chain(kind):
        a.vm = list(vm0)
        def fr(k):
            b = vFR + 8 * (k % 4)
            return b, b + 4
        def reads(k):
            c, s = divmod(k, 4); x, w = fr(k)
            r = [rd128(x, vLX + s + 4 * (c >> 2), (c & 3) * 16384), rdtr(w, vWA, k * 512), rdtr(w + 2, vWA, k * 512 + 128)]
            if kind == "K":
                r += ["s_mov_b64 exec, %s" % sp(sTMPP), rd128(w, vWA + 1, k * 32), "s_mov_b64 exec, -1"]
            return r
        for q in range(4):
            a.waitvm("c%d" % (2 * q + 1))
            a.e("s_barrier")
            nr = 4 if kind == "K" else 3
            for k in range(8 * q, 8 * q + 2):
                for r in reads(k): a.e(r)
            for k in range(8 * q, 8 * q + 8):
                if k + 2 < 8 * q + 8:
                    for r in reads(k + 2): a.e(r)
                left = min(2, 8 * q + 7 - k)
                a.e("s_waitcnt lgkmcnt(%d)" % (left * nr))
                x, w = fr(k)
                cc = None if k == 0 else vACC
                a.e(mfma(vACC, w, x, cc) if kind == "K" else mfma(vACC, x, w, cc))
        a.e("s_lshl_b32 s%d, s%d, 2" % (sA, sG))
        a.e("s_add_u32 s%d, s%d, s%d" % (sA, sA, sCNT))
        a.e("s_nop 12")
        if kind == "K":
            a.e("s_mov_b32 s%d, 0x%x" % (sC, f2u(0.25 * math.log2(math.e))))
            for i in range(8): a.e("v_mul_f32 %s, s%d, %s" % (v(vACC + i), sC, v(vACC + i)))
            a.e("v_mul_f32 %s, 0x%x, %s" % (v(vACC + 8), f2u(-math.log2(math.e)), v(vACC + 8)))
            a.e("v_exp_f32 %s, %s" % (v(vACC + 8), v(vACC + 8)))
            for i in range(4): a.e("v_cvt_pk_bf16_f32 %s, %s, %s" % (v(vFR + i), v(vACC + 2 * i), v(vACC + 2 * i + 1)))
            a.e("v_add_f32 %s, 1.0, %s" % (v(vACC + 8), v(vACC + 8)))
            a.e("v_rcp_f32 %s, %s" % (v(vACC + 8), v(vACC + 8)))
            a.e("s_add_u32 s%d, s%d, 63" % (sB, sA))
            a.e("s_and_b32 s%d, s%d, 63" % (sB, sB))
            a.e("s_lshl_b32 s%d, s%d, 11" % (sB, sB))
            a.e("buffer_store_dwordx4 %s, %s, %s, s%d offen sc1" % (v(vFR, 4), v(vL16), srd(SKV), sB))
            a.e("s_lshl_b32 s%d, s%d, 7" % (sB, sA))
            a.e("s_add_u32 s%d, s%d, 0x%x" % (sB, sB, WS_G))
            a.e("s_mov_b32 exec_hi, 0")
            a.e("buffer_store_dword %s, %s, %s, s%d offen sc1" % (v(vACC + 8), v(vGA), srd(SWS), sB))
            a.e("s_mov_b64 exec, -1")
        else:
            for i in range(8): a.e("v_cvt_pk_bf16_f32 %s, %s, %s" % (v(vFR + i), v(vACC + 2 * i), v(vACC + 2 * i + 1)))
            a.e("v_bfe_u32 v2, v0, 4, 1")
            a.e("v_add_u32 v2, s%d, v2" % sA)
            a.e("v_and_b32 v2, 63, v2")
            a.e("v_lshl_add_u32 v2, v2, 11, %s" % v(vL16))
            for i in range(4): a.e("v_cndmask_b32 %s, %s, %s, %s" % (v(vFR + i), v(vFR + 4 + i), v(vFR + i), sp(sVM)))
            a.e("buffer_store_dwordx4 %s, v2, %s, 0 offen offset:1024 sc1" % (v(vFR, 4), srd(SKV)))
        a.e("s_branch L_lJ")
    chain("K")
    a.lab("L_lV")
    chain("V")
    a.lab("L_lB")
    a.vm = list(vm0)
    a.e("s_cmp_lg_u32 s%d, 14" % sM)
    a.e("s_cbranch_scc1 L_nozf")
    a.e("s_cmp_lg_u32 s%d, 4" % sW)
    a.e("s_cbranch_scc1 L_nozf")
    a.e("v_lshlrev_b32 v2, 7, v0")
    a.e("s_lshl_b32 s%d, s%d, 11" % (sA, sG))
    a.e("s_add_u32 s%d, s%d, 0x%x" % (sA, sA, WS_HFLAG))
    a.e("s_mov_b64 exec, 0xffff")
    a.e("buffer_store_dword %s, v2, %s, s%d offen sc1" % (v(vZERO), srd(SWS), sA))
    a.e("s_mov_b64 exec, -1")
    a.lab("L_nozf")
    for q in range(4):
        a.waitvm("c%d" % (2 * q + 1))
        a.e("s_barrier")
    a.lab("L_lJ")
    a.e("v_lshrrev_b32 v3, 2, v0")
    a.e("v_lshlrev_b32 v3, 10, v3")
    a.e("v_lshrrev_b32 v4, 5, v0")
    a.e("v_lshlrev_b32 v4, 1, v4")
    a.e("v_xor_b32 v4, v4, v0")
    a.e("v_and_b32 v4, 3, v4")
    a.e("v_lshl_add_u32 v3, v4, 4, v3")
    a.e("s_lshl_b32 s%d, s%d, 14" % (sA, sW))
    a.e("s_lshl_b32 s%d, s%d, 6" % (sB, sHP))
    a.e("s_add_u32 s%d, s%d, s%d" % (sA, sA, sB))
    a.e("v_add_u32 %s, s%d, v3" % (v(vDQ), sA))
    a.e("s_xor_b32 s%d, s%d, 0x2000" % (sWH, sWH))
    a.e("s_xor_b32 s%d, s%d, 0x10000" % (sOLD, sOLD))
    a.wait0(lgkm=True)
    a.e("s_barrier")
    a.e("s_cmp_lg_u32 s%d, 0" % sW)
    a.e("s_cbranch_scc1 L_noat")
    a.e("s_mov_b64 exec, 1")
    a.e("buffer_atomic_add %s, off, %s, 0 sc1" % (v(vONE), srd(SDBG)))
    a.e("s_mov_b64 exec, -1")
    a.lab("L_noat")
    a.stamp(3)
    for c in range(8): xdma(c, sWH, sOLD)
    for p in range(4):
        a.e("s_add_u32 m0, s%d, 0x%x" % (sWK, LL_WQ + p * 8192))
        a.e("s_mov_b32 s%d, 0x%x" % (sA, p * 128 * 1024))
        a.e("buffer_load_dwordx4 %s, %s, s%d offen lds" % (v(vDQ), srd(SWQ), sA))
    setup_ones(a)
    setup_attn(a)
    if Opt.touch & 2:
        a.e("s_lshl_b32 s%d, s%d, 1" % (sA, sG))
        a.e("s_add_u32 s%d, s%d, s%d" % (sA, sA, sM))
        a.e("s_sub_u32 s%d, s%d, 14" % (sA, sA))
        a.e("s_lshl_b32 s%d, s%d, 3" % (sA, sA))
        a.e("s_add_u32 s%d, s%d, s%d" % (sA, sA, sW))
        a.e("v_lshlrev_b32 v2, 15, v0")
        a.e("s_lshl_b32 s%d, s%d, 7" % (sA, sA))
        a.e("buffer_load_dword %s, v2, %s, s%d offen" % (v(vPOLL), srd(SWO), sA))
        a.e("buffer_load_dword %s, v2, %s, s%d offen" % (v(vPOLL), srd(SWD), sA))
    a.e("s_lshl_b32 s%d, s%d, 12" % (sA, sLO))
    a.e("v_add_u32 %s, s%d, %s" % (v(vXA), sA, v(vXA)))
    a.e("v_xor_b32 %s, 64, %s" % (v(vXA + 1), v(vXA)))
    a.e("v_add_u32 %s, 0x10000, %s" % (v(vXA + 2), v(vXA)))
    a.e("v_add_u32 %s, 0x10000, %s" % (v(vXA + 3), v(vXA + 1)))
    a.e("v_add_u32 %s, 0x%x, %s" % (v(vQA), LL_WQ, v(vQA)))
    a.e("s_waitcnt vmcnt(%d)" % (2 if Opt.touch & 2 else 0))
    a.e("s_barrier")
    def fr(k): return vFR + 12 * (k % 3)
    def reads(k):
        c, s = divmod(k, 2); f = fr(k)
        return [rd128(f + 4 * b, vXA + s + 2 * (c >> 2), (c & 3) * 16384 + b * 2048) for b in range(2)] + \
               [rdtr(f + 8, vQA, k * 2048), rdtr(f + 10, vQA, k * 2048 + 256)]
    for k in range(2):
        for r in reads(k): a.e(r)
    for k in range(16):
        a.e("s_waitcnt lgkmcnt(%d)" % (4 * min(1, 15 - k)))
        for b in range(2): a.e(mfma16(vAQ + 4 * b, fr(k) + 8, fr(k) + 4 * b, None if k == 0 else vAQ + 4 * b))
        if k + 2 < 16:
            for r in reads(k + 2): a.e(r)
    spin_counter(a, "kvl", False)
    a.e("s_barrier")
    for s, t in kv_first_loads(a): a.e(s)
    a.wait0()
    a.stamp(4)
    a.e("s_branch L_join")

def gelu_tile(a, ti, scalar=False):
    acc = vACC + 16 * ti
    t = vFR
    o = vFR + 8 + 4 * ti
    pk = lambda r: v(r, 2)
    if scalar:
        for i in range(8): a.e("v_mul_f32 %s, %s, %s" % (v(t + i), v(acc + i), v(acc + i)))
        for i in range(8): a.e("v_fma_f32 %s, %s, %s, %s" % (v(t + i), v(t + i), v(vC0 + 1), v(vC0)))
        for i in range(8): a.e("v_mul_f32 %s, %s, %s" % (v(t + i), v(t + i), v(acc + i)))
        for i in range(8): a.e("v_exp_f32 %s, %s" % (v(t + i), v(t + i)))
        for i in range(8): a.e("v_add_f32 %s, 1.0, %s" % (v(t + i), v(t + i)))
        for i in range(8): a.e("v_rcp_f32 %s, %s" % (v(t + i), v(t + i)))
        for i in range(8): a.e("v_mul_f32 %s, %s, %s" % (v(acc + i), v(acc + i), v(acc + 8 + i)))
        for i in range(8): a.e("v_mul_f32 %s, %s, %s" % (v(acc + i), v(acc + i), v(t + i)))
    R4, R8 = (range(0), range(0)) if scalar else (range(4), range(8))
    for i in R4: a.e("v_pk_mul_f32 %s, %s, %s" % (pk(t + 2 * i), pk(acc + 2 * i), pk(acc + 2 * i)))
    for i in R4: a.e("v_pk_fma_f32 %s, %s, %s, %s op_sel:[0,1,0] op_sel_hi:[1,1,0]" % (pk(t + 2 * i), pk(t + 2 * i), pk(vC0), pk(vC0)))
    for i in R4: a.e("v_pk_mul_f32 %s, %s, %s" % (pk(t + 2 * i), pk(t + 2 * i), pk(acc + 2 * i)))
    for i in R8: a.e("v_exp_f32 %s, %s" % (v(t + i), v(t + i)))
    for i in R4: a.e("v_pk_add_f32 %s, %s, 1.0 op_sel_hi:[1,0]" % (pk(t + 2 * i), pk(t + 2 * i)))
    for i in R8: a.e("v_rcp_f32 %s, %s" % (v(t + i), v(t + i)))
    for i in R4: a.e("v_pk_mul_f32 %s, %s, %s" % (pk(acc + 2 * i), pk(acc + 2 * i), pk(acc + 8 + 2 * i)))
    for i in R4: a.e("v_pk_mul_f32 %s, %s, %s" % (pk(acc + 2 * i), pk(acc + 2 * i), pk(t + 2 * i)))
    for i in range(4): a.e("v_cvt_pk_bf16_f32 %s, %s, %s" % (v(o + i), v(acc + 2 * i), v(acc + 2 * i + 1)))
    a.vmop("buffer_store_dwordx4 %s, %s, %s, s%d offen offset:%d sc1" % (v(o, 4), v(vHA), srd(SWS), sHST2 if ti >> 1 else sHST, (ti & 1) * 256), "hst")

def Yseg(hset, toggle=False, first=False, extra=False, last=False):
    out = []
    for t in range(2):
        pos = [int(x, 17) for x in (Opt.ypos0 if hset is None else Opt.ypos2 if extra else Opt.ypos1)]
        if last and t == 1: pos = [pos[0], 0, 11, pos[1]]
        S, Sn = vS + 16 * t, vS + 16 * (1 - t)
        K, V0, V1 = vKF + 4 * t, vV + 8 * t, vV + 8 * t + 4
        for e in range(1, 17):
            out.append("v_exp_f32 %s, %s" % (v(S + e - 1), v(S + e - 1)))
            if e == pos[0] and not (first and t == 0): out.append(smfmac(vO, V1, Sn + 8))
            if e == pos[1]: out.append(mfma(Sn, K, vQ, None))
            if e == pos[2]: out.append(smfmac(vO, V0, S))
            if hset is not None:
                if e == 13 and t == 1 and toggle:
                    out.append("v_xor_b32 %s, 0x4000, %s" % (v(vKVB), v(vKVB)))
                if e == pos[3]: out.append(mfma(vD + 16 * t, vWF + 4 * t, vH + 4 * hset, vD + 16 * t))
                if extra and e == pos[4]: out.append(mfma(vD + 16 * t, vFR + 16 + 4 * t, vH + 16 + 4 * hset, vD + 16 * t))
    return out

def kv_reads(off, vKVA=vKVA):
    r = [rd128(vKF, vKVA, off), rd128(vKF + 4, vKVA, off + 2048), "s_mov_b64 exec, %s" % sp(sVM)]
    for t in range(2):
        r += [rd128(vV + 8 * t, vKVA, off + 2048 * t + 1024), rd128(vV + 8 * t + 4, vKVA, off + 2048 * t + 1280)]
    r.append("s_mov_b64 exec, -1")
    return r
def wd_reads(dst, addr, off):
    r = []
    for c in range(2):
        r += [rdtr(dst + 4 * c, addr, off + 512 * c), rdtr(dst + 4 * c + 2, addr, off + 512 * c + 1024)]
    return r

def hord(): return [0, 2, 4, 6, 1, 3, 5, 7] if Opt.hord else list(range(8))
def wdrow(sg): return (32 * (sg >> 1) + 8 * (sg & 1)) * 1024

def attention(a, role, pre0=None):
    A = role == "A"
    def kvdma(u):
        a.vmop("s_add_u32 m0, s%d, 0x%x\ns_add_u32 s%d, s%d, 0x%x\nbuffer_load_dwordx4 %s, %s, s%d offen sc1 lds"
               % (sWK, L_KV + (u % 4) * 8192, sA, sWK, u * 8192, v(vL16), srd(SKV), sA), "kv%d" % u)
    def wddma(sg):
        a.vmop("s_add_u32 m0, s%d, 0x%x\ns_add_u32 s%d, s%d, 0x%x\nbuffer_load_dwordx4 %s, %s, s%d offen lds"
               % (sWK, L_WD + (sg % 4 if sg < 23 or sg == 27 else sg - 19) * 8192, sA, sWDOFF, wdrow(sg), v(vWDV), srd(SWD), sA), "wd%d" % sg)
    def wodma(j):
        a.vmop("s_add_u32 m0, s%d, 0x%x\ns_add_u32 s%d, s%d, 0x%x\nbuffer_load_dwordx4 %s, %s, s%d offen lds"
               % (sWK, L_WO + (7 - j) * 8192, sA, sB, hord()[j] * 16384, v(vWDV), srd(SWO), sA), "wo")
    def hload(sg, dst):
        a.vmop("s_add_u32 s%d, s%d, 0x%x\nbuffer_load_dwordx4 %s, %s, %s, s%d offen sc1"
               % (sA, sHOFF, sg * 1024, v(dst, 4), v(vL16), srd(SWS), sA), "h%d" % sg)
    for n in range(12):
        if not A and n == 0: a.e("s_barrier")
        if n % 2 == 1: astamp(a, 2 + n // 2)
        if n == Opt.pcyc: a.e("%s %s" % ("s_memrealtime" if Opt.prt else "s_memtime", sp(sSTAMP + 6)))
        tags = []
        if A and n % 2 == 1: tags.append("kv%d" % ((n + 1) // 2))
        if not A and n % 2 == 0: tags.append("kv%d" % ((n + 2) // 2))
        if n == Opt.hpub - (0 if A else 1): tags.append("hst")
        if n == 6: tags.append("wo")
        if n == 9: tags.append("wd27")
        if n == 11: tags.append("wd0")
        if n == 9 and A:
            a.e("s_cmp_lg_u32 s%d, 0" % sW)
            a.e("s_cbranch_scc1 L_hf_done")
            a.e("s_mov_b32 s%d, 0x4000" % sB)
            a.e("s_waitcnt vmcnt(0)")
            a.lab("L_hf_chk")
            a.e("v_cmp_ne_u32 vcc, 1, %s" % v(vPOLL))
            a.e("s_cbranch_vccz L_hf_done")
            a.e("s_sleep %d    ; back-off between two polls of the producers' flags" % Opt.hsl)
            a.e("buffer_load_dword %s, %s, %s, 0 offen sc1" % (v(vPOLL), v(vFLA), srd(SWS)))
            a.e("s_sub_u32 s%d, s%d, 1" % (sB, sB))
            a.e("s_cmp_lg_u32 s%d, 0" % sB)
            a.e("s_waitcnt vmcnt(0)")
            a.e("s_cbranch_scc1 L_hf_chk")
            a.lab("L_hf_done")
        a.waitvm(tags)
        if n == 5 and Opt.diag == 3 and A:
            a.e("v_mov_b32 v2, s%d" % sSTAMP)
            a.e("s_lshl_b32 s%d, s2, 3" % sA)
            a.e("s_add_u32 s%d, s%d, s%d" % (sA, sA, sW))
            a.e("s_lshl_b32 s%d, s%d, 7" % (sA, sA))
            a.e("s_add_u32 s%d, s%d, 0x%x" % (sA, sA, WS_STAMP))
            a.e("s_mov_b64 exec, 1")
            a.vmop("buffer_store_dword v2, off, %s, s%d offset:12 sc1" % (srd(SWS), sA), "st")
            a.e("s_mov_b64 exec, -1")
        if n == Opt.hpub and not A:
            a.e("s_cmp_ge_u32 s%d, 14" % sM)
            a.e("s_cbranch_scc1 L_nohf")
            a.e("s_cmp_lg_u32 s%d, 4" % sW)
            a.e("s_cbranch_scc1 L_nohf")
            a.e("s_lshl_b32 s%d, s%d, 4" % (sA, sG))
            a.e("s_add_u32 s%d, s%d, s%d" % (sA, sA, sM))
            a.e("s_lshl_b32 s%d, s%d, 7" % (sA, sA))
            a.e("s_add_u32 s%d, s%d, 0x%x" % (sA, sA, WS_HFLAG))
            a.e("s_mov_b64 exec, 1")
            a.e("buffer_store_dword %s, off, %s, s%d sc1" % (v(vONE), srd(SWS), sA))
            a.e("s_mov_b64 exec, -1")
            a.lab("L_nohf")
        for r in kv_reads((n % 8) * 4096): a.e(r)
        if n == 8 and A:
            a.e("s_cmp_lg_u32 s%d, 0" % sW)
            a.e("s_cbranch_scc1 L_hf_nol")
            a.e("buffer_load_dword %s, %s, %s, 0 offen sc1" % (v(vPOLL), v(vFLA), srd(SWS)))
            a.lab("L_hf_nol")
        if n == 0:
            if A or Opt.hpub == 3:
                kvdma(2); kvdma(3)
            a.e("s_mov_b32 s%d, s%d" % (sC, sKQ))
            a.e("s_mul_i32 s%d, s%d, %d" % (sWDOFF, sC, 448 * 1024))
            a.e("s_and_b32 s%d, s%d, 1" % (sB, sW))
            a.e("s_lshl_b32 s%d, s%d, 14" % (sA, sB))
            a.e("s_add_u32 s%d, s%d, s%d" % (sWDOFF, sWDOFF, sA))
            a.e("s_lshl_b32 s%d, s%d, 1" % (sA, sT))
            a.e("s_add_u32 s%d, s%d, s%d" % (sA, sA, sB))
            a.e("s_mul_i32 s%d, s%d, 112" % (sA, sA))
            a.e("s_mul_i32 s%d, s%d, 28" % (sB, sC))
            a.e("s_add_u32 s%d, s%d, s%d" % (sA, sA, sB))
            a.e("s_lshl_b32 s%d, s%d, 10" % (sA, sA))
            a.e("s_add_u32 s%d, s%d, 0x%x" % (sHOFF, sA, WS_HF))
        if (A and n % 2 == 1 and n >= 3): kvdma((n + 5) // 2)
        if (not A and n % 2 == 0 and n >= 2): kvdma((n + 6) // 2)
        if 1 <= n <= 4:
            a.e("s_lshl_b32 s%d, s%d, 17" % (sB, sKQ))
            a.e("s_and_b32 s%d, s%d, 1" % (sC, sW))
            a.e("s_lshl_b32 s%d, s%d, 13" % (sC, sC))
            a.e("s_add_u32 s%d, s%d, s%d" % (sB, sB, sC))
            for j in (2 * n - 2, 2 * n - 1): wodma(j)
        for sg in {5: (27, 23, 24), 6: (25, 26, 0), 7: (1, 2)}.get(n, ()): wddma(sg)
        if n == Opt.otn and Opt.otouch:
            one = Opt.otouch in (3, 5)
            if one: a.e("s_mov_b64 exec, 1")
            if Opt.otouch < 4: a.vmop("buffer_load_dword v5, %s, %s, s%d offen" % (v(vOUTA), srd(SOUT), sOUTO), "ot")
            else: a.vmop("buffer_store_dwordx4 %s, %s, %s, s%d offen %s" % (v(vD, 4), v(vOUTA), srd(SOUT), sOUTO, Opt.out_pol), "ot")
            if one: a.e("s_mov_b64 exec, -1")
        if n == 11 and Opt.ptouch & 1:
            a.e("s_mov_b64 exec, 1")
            a.vmop("buffer_load_dword v5, off, %s, s%d sc1" % (srd(SWS), sOLD), "ot")
            a.e("s_mov_b64 exec, -1")
        if n == 10:
            for r in wd_reads(vWX, vWDA, 3 * 8192): a.e(r)
        for j in ({7: (0,), 8: (1, 2), 9: (3, 4)} if A else {7: (0, 1), 8: (2, 3), 9: (4,)}).get(n, ()):
            for r in wd_reads(WOF[j], vWOA, (7 - j) * 8192): a.e(r)
        hs = {10: (0, 1, 23, 24), 11: (2, 25, 26, 27)} if A else {9: (0, 1, 23), 10: (2, 24), 11: (25, 26, 27)}
        if Opt.hlate: hs = {10: (0, 1), 11: (2,)} if A else {9: (0,), 10: (1,), 11: (2,)}
        for sg in hs.get(n, ()): hload(sg, vH + 4 * sg if sg < 4 else vHX if sg == 27 else vH + 4 * (sg - 19))
        if n == 11:
            a.e("s_add_u32 s%d, s%d, 0x%x" % (sHOFF, sHOFF, 3 * 1024))
            a.e("s_add_u32 s%d, s%d, 0x%x" % (sWDOFF, sWDOFF, wdrow(3)))
            a.e("s_add_u32 s%d, s%d, 0x%x" % (sKVOFF, sWK, 9 * 8192))
            a.e("s_mov_b32 s%d, 4" % sCNT)
            a.e("s_add_u32 s%d, s%d, 0x1000" % (sOLD2, sOLD))
            a.e("s_mov_b32 s%d, 0x%x" % (sLO_, f2u(2.0 ** -16)))
            a.e("s_mov_b32 s%d, 0x%x" % (sRNG, f2u(2.0 ** 100) - f2u(2.0 ** -16)))
        if n == 0 and pre0:
            pre0()
            a.stamp(5)
        a.e("s_waitcnt lgkmcnt(0)")
        if n == 0:
            if A: a.e("s_barrier")
            for x in Yseg(None, first=True): a.e(x)
            if not A: a.e("s_barrier")
            continue
        a.e("s_call_b64 %s, L_Y%s" % (sp(sRET), role))
        if n == 1:
            a.e("s_branch L_X1%s" % role)
            a.lab("L_Y%s" % role)
            if A: a.e("s_barrier")
            for x in Yseg(None): a.e(x)
            if not A: a.e("s_barrier")
            a.e("s_setpc_b64 %s" % sp(sRET))
            a.lab("L_X1%s" % role)
    assert not (Opt.hlate and Opt.nx)
    hl = {28: (27, 23), 29: (24, 25), 30: (26,)} if Opt.hlate else {}
    vm = list(a.vm); need = [63] * 8
    for n in range(12, 32):
        p = n % 4; q = p + (4 if n >= 28 else 0)
        tags = ["wd%d" % (n - 11), "h%d" % (n - 12)]
        if (p % 2 == 1) == A: tags.append("kv%d" % ((n + (1 if A else 2)) // 2))
        idx = [i for i, t in enumerate(vm) if t in tags]
        if idx: need[q] = min(need[q], len(vm) - 1 - max(idx))
        vm.append("wd%d" % (n - 9))
        vm.append("h%d" % (n - 9))
        if (p % 2 == 1) == A and n < 28: vm.append("kv%d" % ((n + (5 if A else 6)) // 2))
        vm += ["hx"] * len(hl.get(n, ()))
    a.lab("L_loop%s" % role)
    for q in range(8):
        p = q % 4; fin = q >= 4
        kv = (p % 2 == 1) == A and not fin
        if q == 0 and Opt.diag and Opt.kdiag == 2:
            a.e("s_cmp_lg_u32 s%d, 3" % sCNT)
            a.e("s_cbranch_scc1 L_nst%s" % role)
            astamp(a, 8)
            a.lab("L_nst%s" % role)
        a.e("s_waitcnt vmcnt(%d)" % need[q])
        for i, r in enumerate(kv_reads(p * 4096, vKVB)):
            if not (q == 7 and i == 1): a.e(r)
        if q <= 8 - Opt.nd:
            for r in wd_reads(vWF, vWDA, p * 8192): a.e(r)
        if fin and p < Opt.nx:
            for r in wd_reads(vFR + 16, vWDA, (4 + p) * 8192): a.e(r)
        if q == 7:
            for r in wd_reads(vFR, vWDA, (4 + Opt.nx) * 8192): a.e(r)
        a.e("s_add_u32 m0, s%d, 0x%x" % (sWK, L_WD + ((p + 3) % 4) * 8192))
        a.e("s_and_b32 s%d, s%d, 0x7fff" % (sA, sKVOFF))
        a.e("buffer_load_dwordx4 %s, %s, s%d offen lds" % (v(vWDV), srd(SWD), sWDOFF))
        a.e("s_add_u32 s%d, s%d, 0x%x" % (sWDOFF, sWDOFF, 0x2000 if p & 1 else 0x6000))
        a.e("buffer_load_dwordx4 %s, %s, %s, s%d offen sc1" % (v(vKF + 4 if q == 7 and Opt.nd == 2 else vH + 4 * ((p + 3) % 4), 4), v(vL16), srd(SWS), sHOFF))
        if kv: a.e("s_add_u32 m0, s%d, 0x%x" % (sA, L_KV))
        a.e("s_add_u32 s%d, s%d, 0x400" % (sHOFF, sHOFF))
        if kv:
            a.e("buffer_load_dwordx4 %s, %s, s%d offen sc1 lds" % (v(vL16), srd(SKV), sKVOFF))
            a.e("s_add_u32 s%d, s%d, 0x2000" % (sKVOFF, sKVOFF))
        for sg in (hl.get(24 + q, ()) if fin else ()):
            a.e("s_add_u32 s%d, s%d, 0x%x" % (sA, sHOFF, (sg - (16 + q)) * 1024))
            a.e("buffer_load_dwordx4 %s, %s, %s, s%d offen sc1" % (v(vHX if sg == 27 else vH + 4 * (sg - 19), 4), v(vL16), srd(SWS), sA))
        if q == 3:
            a.e("s_sub_u32 s%d, s%d, 1" % (sCNT, sCNT))
            a.e("s_cmp_lg_u32 s%d, 0" % sCNT)
        a.e("s_waitcnt lgkmcnt(0)")
        if A: a.e("s_barrier")
        for x in Yseg(p if q < 8 - Opt.nd else None, toggle=(q == 3), extra=(fin and p < Opt.nx), last=(q == 7)): a.e(x)
        if not A and q < 7: a.e("s_barrier")
        if q == 3: a.e("s_cbranch_scc1 L_loop%s" % role)
    a.e("s_nop 1")

def transition(a, role):
    A = role == "A"
    if A:
        a.vm = []
        a.lab("L_trA")
    else:
        a.lab("L_join")
        a.e("s_cmp_eq_u32 s%d, 0" % sHI)
        a.e("s_cbranch_scc1 L_trA")
        a.vmjoin = list(a.vm)
    def qfin():
        for i in range(4): a.e("v_cvt_pk_bf16_f32 %s, %s, %s" % (v(vQ + i), v(vAQ + 2 * i), v(vAQ + 2 * i + 1)))
        a.e("v_add_u32 %s, 0x%x, %s" % (v(vWOA), L_WO, v(vWDA)))
        a.e("v_permlane16_swap_b32 %s, %s" % (v(vQ), v(vQ + 2)))
        a.e("v_permlane16_swap_b32 %s, %s" % (v(vQ + 1), v(vQ + 3)))
    pre0 = None
    if A:
        a.e("s_setprio 1")
        a.e("s_cmp_ge_u32 s%d, 14" % sM)
        a.e("s_cbranch_scc1 L_nogA0")
        put(a, a.kvA[:1] + a.kvA[-1:])
        a.l.append(".p2align 3")
        for ti in range(Opt.gsc): gelu_tile(a, ti, True)
        a.lab("L_nogA0")
        qfin()
        a.waitvm(["k0", "kv0", "kv1"])
        a.e("s_setprio 0")
        a.e(mfma(vS, vK0, vQ, None))
        a.e("s_barrier")
        put(a, a.kvA[1:-1])
        def pre0():
            a.e("s_cmp_lt_u32 s%d, 14" % sM)
            a.e("s_cbranch_scc1 L_gA1")
            a.e("s_waitcnt vmcnt(0)")
            a.e("s_branch L_nogA1")
            a.l.append(".p2align 3")
            a.lab("L_gA1")
            for ti in range(Opt.gsc, 4): gelu_tile(a, ti)
            a.lab("L_nogA1")
            a.e("s_setprio 2")
    else:
        a.waitvm(["k0", "kv0", "kv1"])
        a.e("s_setprio 1")
        if Opt.hpub == 3:
            a.e("s_cmp_ge_u32 s%d, 14" % sM)
            a.l.append(".p2align 3")
            a.e("s_barrier")
            a.e("s_cbranch_scc1 L_nogB")
        else:
            a.e("s_barrier")
            for u in (2, 3):
                a.vmop("s_add_u32 m0, s%d, 0x%x\ns_add_u32 s%d, s%d, 0x%x\nbuffer_load_dwordx4 %s, %s, s%d offen sc1 lds"
                       % (sWK, L_KV + u * 8192, sA, sWK, u * 8192, v(vL16), srd(SKV), sA), "kv%d" % u)
            a.e("s_cmp_lt_u32 s%d, 14" % sM)
            a.e("s_cbranch_scc1 L_gB")
            a.e("s_waitcnt vmcnt(0)")
            a.e("s_branch L_nogB")
            a.l.append(".p2align 3")
            a.lab("L_gB")
        for ti in range(4): gelu_tile(a, ti)
        a.lab("L_nogB")
        qfin()
        a.e("s_nop 1")
        a.e(mfma(vS, vK0, vQ, None))
        a.stamp(5)
    attention(a, role, pre0)
    if A:
        a.stamp(6); astamp(a, 9); tstamp(a, 2)
        if Opt.diag and Opt.kdiag == 2: a.e("s_waitcnt lgkmcnt(0)")
        a.e(smfmac(vO, vV1L, vS + 24))
        a.e("s_setprio 0")
        a.e("s_cmp_eq_u32 s%d, 0" % sHI)
        a.e("s_nop 9")
        normalise(a, False)
        a.lab("L_fbretA")
        a.e("buffer_store_dwordx4 %s, %s, %s, s%d offen sc1" % (v(vPK, 4), v(vL16), srd(SWS), sOST))
        tstamp(a, 3)
        a.e("s_waitcnt vmcnt(1)")
        tstamp(a, 4)
        a.e("s_barrier")
        a.fetch(a, False)
        a.e("s_branch L_tl2")

def normalise(a, packed):
    t = vT0
    a.e("v_rcp_f32 %s, %s" % (v(t + 2), v(vO + 8)))
    a.e("s_nop 0")
    a.e("v_mul_f32_e64 %s, %s, %s" % (v(t + 2), v(t + 2), v(vGP)))
    if packed:
        for i in range(4): a.e("v_pk_mul_f32 %s, %s, %s op_sel_hi:[1,0]" % (v(vO + 2 * i, 2), v(vO + 2 * i, 2), v(t + 2, 2)))
        for i in range(4):
            a.e("v_pk_fma_f32 %s, %s, 0, %s op_sel_hi:[1,0,%d]" % (v(t, 2), v(vO + 2 * i, 2), v(t, 2) if i else v(vO + 8, 2), 1 if i else 0))
            a.e("v_cvt_pk_bf16_f32 %s, %s, %s" % (v(vPK + i), v(vO + 2 * i), v(vO + 2 * i + 1)))
        a.e("v_fmac_f32 %s, 0, %s" % (v(t), v(t + 1)))
    else:
        t = vO + 8
        for i in range(8): a.e("v_mul_f32 %s, %s, %s" % (v(vO + i), v(vT0 + 2), v(vO + i)))
        for i in range(4):
            a.e("v_fmac_f32 %s, 0, %s" % (v(t), v(vO + 2 * i)))
            a.e("v_cvt_pk_bf16_f32 %s, %s, %s" % (v(vPK + i), v(vO + 2 * i), v(vO + 2 * i + 1)))
            a.e("v_fmac_f32 %s, 0, %s" % (v(t), v(vO + 2 * i + 1)))
    a.e("v_subrev_u32 %s, s%d, %s" % (v(t), sLO_, v(t)))
    a.e("v_cmp_lt_u32 vcc, s%d, %s" % (sRNG, v(t)))
    a.e("s_branch L_fb" if Opt.force_fb else "s_cbranch_vccnz L_fb")

def tail(a):
    a.lab("L_tail")
    a.stamp(6)
    astamp(a, 9)
    if Opt.diag and Opt.kdiag == 2: a.e("s_waitcnt lgkmcnt(0)")
    tstamp(a, 2)
    a.e(smfmac(vO, vV1L, vS + 24))
    wf = [vFR, vFR + 8, vFR + 16]
    HORD = hord()
    def oload(j):
        return "buffer_load_dwordx4 %s, %s, %s, s%d offen offset:%d %s" % (
            v(vS + 4 * j, 4), v(vL16), srd(SWS), sOLD if HORD[j] < 4 else sOLD2, (HORD[j] % 4) * 1024, Opt.old_pol)
    a.oload = oload
    a.e("s_cmp_eq_u32 s%d, 0" % sHI)
    a.e("s_nop 10")
    a.l.append(".p2align 3")
    normalise(a, True)
    a.lab("L_fbret")
    a.e("buffer_store_dwordx4 %s, %s, %s, s%d offen sc1" % (v(vPK, 4), v(vL16), srd(SWS), sOST))
    tstamp(a, 3)
    aw = [vAW0, vWOA + 1, vWOA + 2, vWOA + 3]
    ar = [vAR0, vFLA]
    wo = WOF
    def fetch(o, scale):
        for j in range(8):
            o.e(oload(j))
            if j >= 5:
                for r in wd_reads(wo[j], vWOA, (7 - j) * 8192): o.e(r)
            if scale and j >= 4:
                for i in range(4 * j - 16, 4 * j - 12): o.e("v_mul_f32 %s, %s, %s" % (v(vD + i), v(vGC), v(vD + i)))
    def addrs(a):
        a.e("v_sub_f32 %s, 1.0, %s" % (v(vGC), v(vGC)))
        for j in range(1, 4): a.e("v_xor_b32 %s, %d, %s" % (v(aw[j]), 32 * j, v(aw[0])))
        a.e("v_xor_b32 %s, 16, %s" % (v(ar[1]), v(ar[0])))
        a.e("s_mov_b32 s%d, 0x2000" % sB)
    ol = Asm(); a.ool2 = ol.l
    a.e("s_waitcnt vmcnt(1)")
    tstamp(a, 4)
    a.e("s_barrier")
    a.lab("L_tl2")
    tstamp(a, 5)
    a.fetch = fetch
    fl = collect(addrs)
    slot = [4, 5, 6, 7, 0, 1, 2][Opt.nx:] + ([3] if Opt.nd == 2 else [])
    hreg = lambda sl: vKF + 4 if sl == 2 and Opt.nd == 2 else vH + 4 * sl
    inreg = [(vWX, vHX)] + ([(vWF, vH + 4 * (4 - Opt.nd))] if Opt.nd else [])
    rds = sum((wd_reads(wf[i % 3], vWDA, slot[i] * 8192) for i in range(len(slot))), [])
    done = 4
    for i in range(-len(inreg), len(slot)):
        for c in range(2):
            if i >= 1: a.e("s_waitcnt lgkmcnt(%d)" % (done - (4 * i + 2 * c + 2)))
            a.e(mfma(vD + 16 * c, inreg[i][0] + 4 * c, inreg[i][1], vD + 16 * c) if i < 0 else
                mfma(vD + 16 * c, wf[i % 3] + 4 * c, hreg(slot[i]), vD + 16 * c))
            if i < -1: continue
            if done < len(rds):
                for r in rds[done:done + 2]: a.e(r)
                done += 2
            else:
                put(a, fl[:2]); fl = fl[2:]
    assert not fl
    tstamp(a, 6)
    a.e("s_cbranch_scc0 L_tl3")
    a.l.append(".p2align 3")
    a.e("s_nop 7")
    a.e("s_nop 0")
    for i in range(16): a.e("v_pk_mul_f32 %s, %s, %s op_sel:[0,1] op_sel_hi:[1,1]" % (v(vD + 2 * i, 2), v(vD + 2 * i, 2), v(vGP, 2)))
    tstamp(a, 7)
    a.lab("L_tl4")
    tstamp(a, 8)
    ol.lab("L_tl3")
    ol.e("s_setprio 0")
    fetch(ol, False)
    tstamp(ol, 7)
    for i in range(32): ol.e("v_mul_f32 %s, %s, %s" % (v(vD + i), v(vGC), v(vD + i)))
    ol.e("s_waitcnt lgkmcnt(0)")
    def check(j):
        o = vS + 4 * j
        return ["s_waitcnt vmcnt(%d)" % (7 - j), "v_max3_u32 v2, %s, %s, %s" % (v(o), v(o + 1), v(o + 2)),
                "v_max_u32 v2, v2, %s" % v(o + 3), "v_cmp_eq_u32 vcc, -1, v2"]
    for j in range(Opt.bpre):
        for x in check(j): ol.e(x)
        ol.e("s_cbranch_vccnz L_bp%d" % j)
    ol.e("s_branch L_tl4")
    if Opt.bpre:
        for j in range(8):
            if j < Opt.bpre: ol.lab("L_bp%d" % j)
            ol.e(oload(j))
        ol.e("s_branch L_tl4")
    a.stamp(7)
    def check(j):
        o = vS + 4 * j
        return ["s_waitcnt vmcnt(%d)" % (7 - j), "v_max3_u32 v2, %s, %s, %s" % (v(o), v(o + 1), v(o + 2)),
                "v_max_u32 v2, v2, %s" % v(o + 3), "v_cmp_eq_u32 vcc, -1, v2"]
    a.check = check
    for x in check(0): a.e(x)
    for j in range(10):
        if j < 8:
            a.e("s_cbranch_vccnz L_ore%d" % j)
            a.lab("L_ook%d" % j)
            a.e(mfma(vD, wo[j], vS + 4 * j, vD))
        if j >= 2 and Opt.cfirst: a.e(mfma(vD + 16, wo[j - 2] + 4, vS + 4 * (j - 2), vD + 16))
        if j < 7:
            for x in check(j + 1): a.e(x)
        if j >= 2 and not Opt.cfirst: a.e(mfma(vD + 16, wo[j - 2] + 4, vS + 4 * (j - 2), vD + 16))
        if j in (7, 8): a.e("s_nop 4")
    wr = lambda c, j: "ds_write_b128 %s, %s offset:%d" % (v(aw[j]), v(vD + 16 * c + 4 * j, 4), 128 * c)
    a.stamp(8)
    tstamp(a, 9)
    for j in range(4): a.e(wr(0, j))
    a.e("s_nop 7")
    for j in range(4): a.e(wr(1, j))
    a.e("s_waitcnt lgkmcnt(0)")
    a.e("s_barrier")
    for p in range(4):
        for h in range(2): a.e(rd128(vS + 8 * p + 4 * h, ar[h], p * 8192))
    for p in range(1, 4):
        a.e("s_waitcnt lgkmcnt(%d)" % (6 - 2 * p))
        for i in range(4): a.e("v_pk_add_f32 %s, %s, %s" % (v(vS + 2 * i, 2), v(vS + 2 * i, 2), v(vS + 8 * p + 2 * i, 2)))
    for i in range(4): a.e("v_cvt_pk_bf16_f32 %s, %s, %s" % (v(vP + i), v(vS + 2 * i), v(vS + 2 * i + 1)))
    if Opt.pcyc == 99: a.e("s_memrealtime %s" % sp(sSTAMP + 6))
    a.e("buffer_store_dwordx4 %s, %s, %s, s%d offen %s" % (v(vP, 4), v(vOUTA), srd(SOUT), sOUTO, Opt.out_pol))
    if Opt.probe >= 0:
        a.e("s_waitcnt vmcnt(0)")
        a.stamp(9)
        if Opt.probe_g:
            for i, t_ in enumerate((3300, 4300)):
                a.lab("L_pg%d" % i)
                a.e("s_memrealtime s[0:1]")
                a.e("s_waitcnt lgkmcnt(0)")
                a.e("s_sub_u32 s0, s0, s%d" % sSTAMP)
                a.e("s_cmp_lt_u32 s0, %d" % t_)
                a.e("s_cbranch_scc1 L_pg%d" % i)
                if i == 0:
                    a.e("s_cmp_lg_u32 s%d, 0" % sW)
                    a.e("s_cbranch_scc1 L_npg")
                    a.e("v_not_b32 v2, s%d" % sSTAMP)
                    a.e("s_mov_b64 exec, 1")
                    a.e("buffer_atomic_umax v2, off, %s, 0 offset:128 sc1" % srd(SDBG))
                    a.e("s_mov_b64 exec, -1")
                    a.lab("L_npg")
        if Opt.probe != 9:
            a.e("s_cmp_ge_u32 s%d, 14" % sM)
            a.e("s_cbranch_scc%d L_end" % (0 if Opt.probe_l else 1))
        if Opt.probe_g:
            a.e("buffer_load_dword v2, off, %s, 0 offset:128 sc1" % srd(SDBG))
            a.e("s_waitcnt vmcnt(0)")
            a.e("v_readfirstlane_b32 s%d, v2" % sSTAMP)
            a.e("s_nop 3")
            a.e("s_not_b32 s%d, s%d" % (sSTAMP, sSTAMP))
        a.e("s_sub_u32 s%d, s%d, s%d" % (sA, sSTAMP + 4, sSTAMP))
        a.e("s_mul_i32 s%d, s%d, %d" % (sA, sA, Opt.probe_mul - 1))
        if Opt.pcyc >= 0:
            a.e("s_sub_u32 s%d, s%d, s%d" % (sA, sSTAMP + 8, sSTAMP + 6))
            if Opt.prt: a.e("s_mul_i32 s%d, s%d, %d" % (sA, sA, 10 * Opt.prt))
            a.e("s_mov_b32 s%d, s%d" % (sSTAMP + 4, sSTAMP))
        a.e("s_min_u32 s%d, s%d, 40000" % (sA, sA))
        a.e("s_add_u32 s%d, s%d, 3800" % (sA, sA))
        if Opt.probe_r >= 0:
            a.e("s_cmp_eq_u32 s%d, 0x2000" % sB)
            a.e("s_cbranch_scc%d L_end" % Opt.probe_r)
        if Opt.probe_w >= 0:
            a.e("s_cmp_lg_u32 s%d, %d" % (sHI, Opt.probe_w))
            a.e("s_cbranch_scc1 L_end")
        if Opt.probe_x >= 0:
            a.e("s_and_b32 s0, s2, 7")
            a.e("s_cmp_lg_u32 s0, %d" % Opt.probe_x)
            a.e("s_cbranch_scc1 L_end")
        a.lab("L_probe")
        a.e("s_memrealtime s[0:1]")
        a.e("s_waitcnt lgkmcnt(0)")
        a.e("s_sub_u32 s0, s0, s%d" % (sSTAMP + 4))
        a.e("s_cmp_lt_u32 s0, s%d" % sA)
        a.e("s_cbranch_scc1 L_probe")
    if Opt.pin == 9:
        a.e("s_waitcnt vmcnt(0)")
        a.stamp(9)
    if Opt.diag in (1, 2):
        a.e("s_waitcnt vmcnt(0)")
        a.stamp(9)
        a.e("s_mov_b32 s%d, s%d" % (sSTAMP + 3, sSTAMP))
        a.e("s_mov_b32 s%d, s%d" % (sSTAMP, sB))
        a.e("s_getreg_b32 s%d, hwreg(HW_REG_XCC_ID)" % (sSTAMP + 1))
        for i in range(20): a.e("v_mov_b32 %s, s%d" % (v(vS + i), sSTAMP + i))
        a.e("s_lshl_b32 s%d, s2, 3" % sA)
        a.e("s_add_u32 s%d, s%d, s%d" % (sA, sA, sW))
        a.e("s_lshl_b32 s%d, s%d, 7" % (sA, sA))
        a.e("s_add_u32 s%d, s%d, 0x%x" % (sA, sA, WS_STAMP))
        a.e("s_mov_b64 exec, 1")
        for i in range(5): a.e("buffer_store_dwordx4 %s, off, %s, s%d offset:%d" % (v(vS + 4 * i, 4), srd(SWS), sA, 16 * i))
    a.lab("L_end")
    a.e("s_endpgm")
    a.l += a.ool2
    for j in range(8):
        a.lab("L_ore%d" % j)
        a.e("s_sub_u32 s%d, s%d, 1" % (sB, sB))
        a.e("s_cbranch_scc1 L_ogive%d" % j)
        if Opt.rwait: a.e("s_waitcnt vmcnt(0)")
        if Opt.rwait > 1: a.e("s_sleep %d" % Opt.rwait)
        for i in range(j, 8): a.e(a.oload(i))
        for x in a.check(j): a.e(x)
        a.e("s_cbranch_vccnz L_ore%d" % j)
        a.e("s_branch L_ook%d" % j)
        a.lab("L_ogive%d" % j)
        a.e("s_mov_b32 s%d, 0" % sB)
        a.e("s_branch L_ook%d" % j)

def fallback(a):
    a.lab("L_fb")
    m = vT0
    a.e("v_mov_b32 %s, 0xff800000" % v(m))
    a.e("s_mov_b32 s%d, 0" % sA)
    a.lab("L_fb1")
    a.e("buffer_load_dwordx4 %s, %s, %s, s%d offen sc1" % (v(vKF, 4), v(vL16), srd(SKV), sA))
    a.e("s_waitcnt vmcnt(0)")
    a.e(mfma(vS, vKF, vQ, None))
    a.e("s_add_u32 s%d, s%d, 2048" % (sA, sA))
    a.e("s_nop 11")
    for i in range(8): a.e("v_max3_f32 %s, %s, %s, %s" % (v(m), v(m), v(vS + 2 * i), v(vS + 2 * i + 1)))
    a.e("s_cmp_lt_u32 s%d, 0x20000" % sA)
    a.e("s_cbranch_scc1 L_fb1")
    a.e("v_mov_b32 %s, %s" % (v(m + 1), v(m)))
    a.e("s_nop 1")
    a.e("v_permlane32_swap_b32 %s, %s" % (v(m), v(m + 1)))
    a.e("s_nop 1")
    a.e("v_max_f32 %s, %s, %s" % (v(m), v(m), v(m + 1)))
    for i in range(16): a.e("v_sub_f32 %s, 0, %s" % (v(vS + 16 + i), v(m)))
    for i in range(16): a.e("v_mov_b32 %s, 0" % v(vO + i))
    a.e("s_mov_b32 s%d, 0" % sA)
    a.lab("L_fb2")
    a.e("s_add_u32 s%d, s%d, 0x%x" % (sB, sA, 63 * 2048))
    a.e("s_and_b32 s%d, s%d, 0x1ffff" % (sB, sB))
    a.e("buffer_load_dwordx4 %s, %s, %s, s%d offen sc1" % (v(vKF, 4), v(vL16), srd(SKV), sB))
    a.e("s_add_u32 s%d, s%d, 2048" % (sB, sA))
    a.e("s_and_b32 s%d, s%d, 0x1ffff" % (sB, sB))
    a.e("s_mov_b64 exec, %s" % sp(sVM))
    a.e("buffer_load_dwordx4 %s, %s, %s, s%d offen offset:1024 sc1" % (v(vV, 4), v(vL16), srd(SKV), sA))
    a.e("buffer_load_dwordx4 %s, %s, %s, s%d offen offset:1280 sc1" % (v(vV + 4, 4), v(vL16), srd(SKV), sB))
    a.e("s_mov_b64 exec, -1")
    a.e("s_waitcnt vmcnt(0)")
    a.e(mfma(vS, vKF, vQ, vS + 16))
    a.e("s_add_u32 s%d, s%d, 2048" % (sA, sA))
    a.e("s_nop 11")
    for i in range(16): a.e("v_exp_f32 %s, %s" % (v(vS + i), v(vS + i)))
    a.e("s_nop 2")
    a.e(smfmac(vO, vV, vS))
    a.e(smfmac(vO, vV + 4, vS + 8))
    a.e("s_cmp_lt_u32 s%d, 0x20000" % sA)
    a.e("s_cbranch_scc1 L_fb2")
    a.e("s_nop 11")
    a.e("v_rcp_f32 %s, %s" % (v(vT0 + 2), v(vO + 8)))
    a.e("s_cmp_eq_u32 s%d, 0" % sHI)
    a.e("v_mul_f32 %s, %s, %s" % (v(vT0 + 2), v(vT0 + 2), v(vGP)))
    for i in range(8): a.e("v_mul_f32 %s, %s, %s" % (v(vO + i), v(vT0 + 2), v(vO + i)))
    for i in range(4): a.e("v_cvt_pk_bf16_f32 %s, %s, %s" % (v(vPK + i), v(vO + 2 * i), v(vO + 2 * i + 1)))
    for i in range(4): a.e("v_min_u32 %s, -2, %s" % (v(vPK + i), v(vPK + i)))
    a.e("s_cbranch_scc1 L_fbretA")
    a.e("s_branch L_fbret")

def build():
    a = Asm()
    prologue(a)
    phase1_F(a)
    transition(a, "B")
    tail(a)
    a.l += a.ool
    transition(a, "A")
    phase1_L(a)
    fallback(a)
    a.lab("L_codeend")
    for i, x in enumerate(a.l):
        if " sc1" in x and "sc0" not in x and ((Opt.allsc & 1 and "buffer_store" in x) or (Opt.allsc & 2 and "buffer_load" in x)):
            a.l[i] = x.replace(" sc1", " sc0 sc1")
    notes = {'L_k0': 'first GEMM: K loop over 8 chunks of 64, three-slot LDS ring, 16x16x32 MFMAs', 'L_join': 'waves 4-7: activation, then attention', 'L_trA': 'waves 0-3: activation, then attention', 'L_loopA': 'steady attention loop with one down-projection K step per two key tiles', 'L_loopB': 'steady attention loop with one down-projection K step per two key tiles', 'L_tail': 'normalise, hand over, remaining down steps, output projection, reduction, store', 'L_light': 'light workgroups: K, V, gate, own Q', 'L_fb': 'softmax with the true row maximum (two passes over the keys)', 'L_ore0': 'refetch attention outputs that still carry the not-yet-written mark', 'L_e2': 'out-of-line load blocks of the first GEMM'}
    for k_, t_ in notes.items():
        if k_ + ":" in a.l: a.l.insert(a.l.index(k_ + ":"), "; ---- " + t_)
    a.l = [x for x in a.l if x.strip() != "; later"]
    il = a.l.index("L_light:")
    for i, x in enumerate(a.l):
        if x.endswith(" lds") and "sc1" not in x and " nt" not in x:
            if (Opt.ntx & 4 and (srd(SWD) in x or srd(SWO) in x)) or (Opt.ntx & 8 and i > il):
                a.l[i] = x[:-4] + " nt lds"
    head = open("cdna_kernels/%s.s.ref" % NAME).read().split("\n")
    hdr = [l for l in head if l.startswith(";") and "@launch" not in l and "Override" not in l and "grid=" not in l]
    out = hdr + ["; @launch grid=(256,1,1) block=(512,1,1) lds=%d" % LDS_BYTES,
                 '.amdgcn_target "amdgcn-amd-amdhsa--gfx950"', ".text", ".globl %s_kernel" % NAME, ".p2align 8",
                 ".type %s_kernel,@function" % NAME,
                 ".set CODE_PF_MAX, L_codeend - L_nopf - 4" if Opt.code_pf else "",
                 "%s_kernel:" % NAME]
    if Opt.diag: out += ["; mapmode %d" % (1 + 3 * bool(Opt.oddl))]
    out += ["; " + x for x in """One persistent launch, one workgroup per CU (generated by a script), 8 waves = two quartets that alternate on each SIMD.
Stage 1: 14 of every 16 workgroups compute gelu(x Wg) * (x Wu) for 128 tokens x 128 columns plus Q for two heads;
         the other two compute K, V and the mixing gate, publish them (counter in d_debug) and then their own Q.
Stage 2: attention for 128 tokens x 2 heads over all keys, S^T = K Q^T, exp2 in place, P V through sparse MFMAs that
         read the high halves of the fp32 probabilities; a row of ones in the V operand gives the row sums.
         The stand-in maximum is 0: it is accepted only if the row sum lies in [2^-16, 2^100] and every accumulator is
         finite, otherwise the wave redoes its rows with the true maximum (L_fb).
         The down projection of a 64 x 64 output tile runs in the same loop once the producers' flags are seen.
Stage 3: attention outputs are handed over through d_ws (cleared to a mark earlier in this launch), projected,
         mixed with the FFN branch, reduced through LDS and stored.""".split("\n")]
    out += a.l
    out += ['.section .rodata,"a"', ".p2align 6", ".amdhsa_kernel %s_kernel" % NAME,
            "  .amdhsa_next_free_vgpr %d" % NV, "  .amdhsa_next_free_sgpr 102", "  .amdhsa_accum_offset 256",
            "  .amdhsa_group_segment_fixed_size 0", "  .amdhsa_kernarg_size 104", "  .amdhsa_user_sgpr_count 2",
            "  .amdhsa_user_sgpr_kernarg_segment_ptr 1", "  .amdhsa_system_sgpr_workgroup_id_x 1", ".end_amdhsa_kernel", ""]
    return "\n".join(out)

if __name__ == "__main__":
    path = sys.argv[1]
    for kv in sys.argv[2:]:
        k, val = kv.split("=")
        cur = getattr(Opt, k)
        setattr(Opt, k, val if isinstance(cur, str) else type(cur)(int(val)))
    open(path, "w").write(build())
```

```python
import sys, struct, math

NAME = "gated_mix__grouped_kv_mqa__geglu_ffn__prompt"

class Opt:
    diag = 0
    mapmode = 1
    force_fb = False
    allsc = 0
    out_pol = "sc0 sc1"
    code_pf = True
    xrot = 0
    pregap = 0
    kw0 = 1
    kb = 3
    kal = 1
    xodd = 43
    xeven = 32
    hsl = 2
    lthr = 0
    klate = 0
    bpre = 0
    oddl = 1
    hlate = 1
    hpub = 3
    rwait = 1
    aearly = 0
    bidle = 1
    old_pol = "sc1"
    ypos0 = "36g"
    ypos1 = "36bg"
    ypos2 = "36cg9"
    nd = 1
    nx = 0
    tpos = 1
    cfirst = 0
    tch = 12
    stch = 0
    spos = 1
    tlb = 6
    olate = 1
    hrot = 0
    tbar = 0
    hord = 1
    cmap = 1
    kqx = 2
    oearly = 8
    conc = 1
    ghx = 1
    qa = "077777"
    qb = "588888"
    npre = 8
    stagger = 1
    rper = 2
    dma1 = 17
    kprio = 0
    dma0 = 8
    npd = 4
    kdiag = 0
    fillpre = 0
    fillper = 5
    gsc = 2
    sched = 0
    xmask = 1
    ntx = 0
    touch = 2
    rotg = 0
    rotm = 0
    startbar = 1
    pvz = 1
    pin = -1
    pin_ns = 60000
    probe = -1
    probe_x = -1
    probe_mul = 10
    probe_w = -1
    probe_r = -1
    pcyc = -1
    prt = 0
    probe_g = 1
    probe_l = 0

def f2u(x): return struct.unpack("<I", struct.pack("<f", x))[0]

WS_KV = 0
WS_G = 128 * 1024
WS_HFLAG = 192 * 1024
WS_OF = 1 << 20
WS_HF = 4 << 20
WS_STAMP = 12 << 20
WS_SIZE = 16 << 20
K1 = 1024
L_G, L_U, L_X, L_WQ = 0, 48 * K1, 96 * K1, 144 * K1
L_QX = 32 * K1
L_WD, L_WO, L_KV = 0, 64 * K1, 128 * K1
L_RED = 96 * K1
LL_X, LL_W, LL_GATE, LL_WQ = 0, 128 * K1, 144 * K1, 128 * K1
LDS_BYTES = 160 * K1

SX, SWG, SWU, SWQ, SWS, SWD, SWO, SOUT, SDBG, SWKV, SGATE, SKV = 4, 8, 12, 16, 20, 24, 28, 32, 36, 40, 44, 64
SWV = 72
sTMPP = 48
sW, sHI, sLO, sG, sM, sT, sCB = 50, 51, 52, 53, 54, 55, 56
sWK = 57
sWH = 58
sVM = 60
sRET = 62
sA, sB, sC, sD = 68, 69, 70, 71
sOFFW, sOFFQ, sCH, sXP = 72, 73, 74, 75
sHOFF, sWDOFF, sKVOFF, sHXO, sCNT = 72, 73, 74, 75, 77
sOUTO, sLO_, sRNG = 59, 81, 75
sOLD2 = 58
sOST, sOLD, sHST = 78, 79, 80
sHST2 = 3
sRX, sRW, sM0B = 40, 41, 42
sKQ = 76
sHP = 81
sSTAMP = 82

def srd(b): return "s[%d:%d]" % (b, b + 3)
def sp(b): return "s[%d:%d]" % (b, b + 1)
def v(b, n=1): return "v%d" % b if n == 1 else "v[%d:%d]" % (b, b + n - 1)

vL16 = 1
vT0, vT1, vT2, vT3 = 2, 3, 4, 5
vGP, vGC = 6, 7
vKVA = 8
vWDA = 9
vWDV = 10
vONE = 11
vZERO = 12
vFLA = 13
vPOLL = 14
vGA = 15
vQ = 16
vK0 = 20
vV1L = 24
vIDX = 28
vAW0, vAR0, vOUTA = 30, 31, 12
vKVB = 29
vP = 32
vV = 40
vO = 56
vD = 72
vACC = 104
vS = 104
vH = 136
vAQ = vP
vF1 = 168
vKF = 168
vWF = 176
vWX = 224
vHX = 232
vPK = 20
WOF = [32, 208, 216, 240, 248, 40, 48, 56]
vWOA = 236
vFR = 184
vLX = 224
vXA = 240
vWA = 244
vQA = 248
vDX, vDG, vDQ = 249, 250, 251
vC0 = 252
vTID = 255
vHA = 254
NV = 256

class Asm:
    def __init__(self):
        self.l = []
        self.vm = []
        self.nstamp = 0
    def e(self, s):
        for x in s.split("\n"):
            x = x.strip()
            if x: self.l.append("    " + x)
    def lab(self, s): self.l.append(s + ":")
    def vmop(self, s, tag):
        self.e(s); self.vm.append(tag)
    def vmn(self, tags):
        if isinstance(tags, str): tags = [tags]
        last = -1
        for i, t in enumerate(self.vm):
            if t in tags: last = i
        return None if last < 0 else len(self.vm) - 1 - last
    def waitvm(self, tags, lgkm=False):
        n = self.vmn(tags)
        if n is None:
            if lgkm: self.e("s_waitcnt lgkmcnt(0)")
            return
        assert n < 64
        self.e("s_waitcnt vmcnt(%d)%s" % (n, " lgkmcnt(0)" if lgkm else ""))
        self.vm = self.vm[len(self.vm) - n:] if n else []
    def wait0(self, lgkm=False):
        self.e("s_waitcnt vmcnt(0)%s" % (" lgkmcnt(0)" if lgkm else "")); self.vm = []
    def stamp(self, i, real=False):
        if Opt.probe == i:
            self.e("s_waitcnt lgkmcnt(0)")
            self.e("s_memrealtime %s" % sp(sSTAMP + 4))
            if Opt.pcyc >= 0: self.e("%s %s" % ("s_memrealtime" if Opt.prt else "s_memtime", sp(sSTAMP + 8)))
            self.e("s_waitcnt lgkmcnt(0)")
        if Opt.pin == i:
            self.nstamp += 1
            self.e("s_waitcnt lgkmcnt(0)")
            self.e("s_cselect_b32 s%d, 1, 0" % (sSTAMP + 5))
            self.lab("L_pin%d" % self.nstamp)
            self.e("s_memrealtime s[0:1]")
            self.e("s_waitcnt lgkmcnt(0)")
            self.e("s_sub_u32 s0, s0, s%d" % sSTAMP)
            self.e("s_cmp_lt_u32 s0, %d" % (Opt.pin_ns // 10))
            self.e("s_cbranch_scc1 L_pin%d" % self.nstamp)
            self.e("s_cmp_lg_u32 s%d, 0" % (sSTAMP + 5))
        if Opt.diag and not Opt.kdiag and (Opt.diag == 1 or i == 9):
            self.e("s_waitcnt lgkmcnt(0)")
            self.e("s_memtime %s" % sp(sSTAMP + 2 * i))
            self.e("s_memrealtime %s" % sp(sRET))
            self.e("s_waitcnt lgkmcnt(0)")
            self.e("s_mov_b32 s%d, s%d" % (sSTAMP + 2 * i + 1, sRET))

def astamp(a, i):
    if Opt.diag and Opt.kdiag == 2: a.e("s_memtime %s" % sp(sSTAMP + 2 * i))

def tstamp(a, i):
    if Opt.diag and Opt.kdiag == 3: a.e("s_memtime %s" % sp(sSTAMP + 2 * i))

def kstamp(a, i):
    if Opt.probe == 18 + i: a.e("s_memrealtime %s" % sp(sSTAMP + 4))
    if Opt.diag and Opt.kdiag == 1: a.e("s_memtime %s" % sp(sSTAMP + 2 * i))

def mfma(d, a, b, c):
    return "v_mfma_f32_32x32x16_bf16 %s, %s, %s, %s" % (v(d, 16), v(a, 4), v(b, 4), "0" if c is None else v(c, 16))
def smfmac(d, a, b):
    return "v_smfmac_f32_32x32x32_bf16 %s, %s, %s, %s" % (v(d, 16), v(a, 4), v(b, 8), v(vIDX))
def mfma16(d, a, b, c):
    return "v_mfma_f32_16x16x32_bf16 %s, %s, %s, %s" % (v(d, 4), v(a, 4), v(b, 4), "0" if c is None else v(c, 4))
def rd128(d, a, off):
    assert 0 <= off < 65536
    return "ds_read_b128 %s, %s offset:%d" % (v(d, 4), v(a), off)
def rdtr(d, a, off):
    assert 0 <= off < 65536
    return "ds_read_b64_tr_b16 %s, %s offset:%d" % (v(d, 2), v(a), off)

def interleave(mf, fill, per=2):
    out = []
    fill = list(fill)
    for i, m in enumerate(mf):
        out.append(m)
        if i < len(mf) - 1:
            out += fill[:per]; fill = fill[per:]
    return out + fill

def srd_words(a, regs):
    sizes = {SX: 2048 * 1024, SWG: 512 * 3584, SWU: 512 * 3584, SWQ: 512 * 1024, SWS: WS_SIZE, SWKV: 16384, SWV: 16384,
             SGATE: 1024, SWD: 1792 * 1024, SWO: 512 * 1024, SOUT: 2048 * 1024, SDBG: 256, SKV: 128 * 1024}
    for reg in regs:
        a.e("s_mov_b32 s%d, 0x%x" % (reg + 2, sizes[reg]))
        a.e("s_mov_b32 s%d, 0x20000" % (reg + 3))

def ptr_loads(a, lst):
    for reg, off in lst: a.e("s_load_dwordx2 %s, s[0:1], %d" % (sp(reg), off))

def prologue(a):
    if Opt.diag or Opt.pin >= 0 or Opt.probe >= 0:
        a.e("s_memrealtime %s" % sp(sSTAMP))
        if Opt.diag in (1, 2): a.e("s_memtime %s" % sp(sSTAMP + 2))
    ptr_loads(a, ((SX, 0), (SWG, 48), (SWU, 56), (SWQ, 8)))
    if Opt.probe == 1: a.stamp(1)
    a.e("v_lshrrev_b32 v2, 6, v0")
    if Opt.code_pf:
        a.e("s_getpc_b64 %s" % sp(sRET))
        a.lab("L_nopf")
        a.e("s_and_b32 s%d, s2, -8" % sA)
        a.e("v_add_lshl_u32 v4, v2, s%d, 7" % sA)
        a.e("v_mov_b32 v5, 0")
        a.e("v_min_u32 v4, CODE_PF_MAX, v4")
        a.e("v_lshl_add_u64 v[4:5], v[4:5], 0, %s" % sp(sRET))
        a.e("global_load_dword %s, v[4:5], off" % v(vPOLL))
    if not Opt.klate: a.e("s_load_dwordx8 s[%d:%d], s[0:1], 64" % (SOUT, SOUT + 7))
    a.e("v_readfirstlane_b32 s%d, v2" % sW)
    if not Opt.klate: ptr_loads(a, ((SWS, 96),) if Opt.diag or Opt.probe >= 0 else ((SWS, 96), (SWO, 32)))
    a.e("s_cmpk_ge_u32 s2, 256")
    a.e("s_cbranch_scc1 L_end")
    if Opt.oddl:
        a.e("s_bfe_u32 s%d, s2, 0x10002" % sD)
        a.e("s_bfe_u32 s%d, s2, 0x30003" % sA)
        a.e("s_lshl3_add_u32 s%d, s%d, s%d" % (sG, sD, sA))
        a.e("s_and_b32 s%d, s2, 3" % sA)
        if Opt.oddl == 2: a.e("s_xor_b32 s%d, s%d, 1" % (sA, sA))
        a.e("s_lshr_b32 s%d, s2, 6" % sB)
        a.e("s_lshl2_add_u32 s%d, s%d, s%d" % (sHP, sA, sB))
        a.e("s_lshr_b32 s%d, s%d, 3" % (sB, sHP))
        a.e("s_sub_u32 s%d, s%d, s%d" % (sM, sHP, sB))
        a.e("s_lshl_b32 s%d, s%d, 10" % (sWK, sW))
        a.e("s_andn2_b32 s%d, 7, s%d" % (sA, sHP))
        a.e("s_cbranch_scc0 L_light")
    else:
        a.e("s_and_b32 s%d, s2, 1" % sD)
        a.e("s_bfe_u32 s%d, s2, 0x30003" % sA)
        a.e("s_lshl3_add_u32 s%d, s%d, s%d" % (sG, sD, sA))
        a.e("s_bfe_u32 s%d, s2, 0x20001" % sA)
        a.e("s_lshr_b32 s%d, s2, 6" % sB)
        a.e("s_lshl2_add_u32 s%d, s%d, s%d" % (sM, sA, sB))
        a.e("s_mov_b32 s%d, s%d" % (sHP, sM))
        a.e("s_lshl_b32 s%d, s%d, 10" % (sWK, sW))
        a.e("s_cmp_ge_u32 s%d, 14" % sM)
        a.e("s_cbranch_scc1 L_light")

def xvoff(a, t):
    a.e("v_lshrrev_b32 v2, 4, %s" % v(t))
    a.e("v_xor_b32 v2, v2, %s" % v(t))
    a.e("v_and_b32 v2, 7, v2")
    a.e("s_lshl_b32 s%d, s%d, 17" % (sA, sG))
    a.e("v_lshl_add_u32 v2, v2, 4, s%d" % sA)
    a.e("v_lshrrev_b32 v3, 3, %s" % v(t))
    a.e("v_lshl_add_u32 %s, v3, 10, v2" % v(vDX))

def setup_ids(a):
    if Opt.klate:
        ptr_loads(a, ((SWS, 96), (SKV, 96), (SDBG, 88), (SWD, 64), (SWO, 32), (SOUT, 80)))
    else:
        a.e("s_mov_b64 %s, %s" % (sp(SKV), sp(SWS)))
        a.e("s_mov_b64 %s, %s" % (sp(SWD), sp(SOUT)))
        a.e("s_mov_b64 %s, %s" % (sp(SOUT), sp(SOUT + 4)))
        a.e("s_mov_b64 %s, %s" % (sp(SDBG), sp(SOUT + 6)))
    a.e("v_and_b32 v0, 63, v0")
    a.e("v_lshlrev_b32 %s, 4, v0" % v(vL16))
    if Opt.oddl:
        a.e("s_and_b32 s%d, s2, 7" % sA)
        a.e("s_xor_b32 s%d, s%d, 4" % (sA, sA))
    else:
        a.e("s_andn2_b32 s%d, 1, s2" % sA)
        a.e("s_bfe_u32 s%d, s2, 0x20001" % sB)
        a.e("s_lshl2_add_u32 s%d, s%d, s%d" % (sA, sA, sB))
    a.e("s_bfe_u32 s%d, s2, 0x20003" % sB)
    a.e("s_lshl2_add_u32 s%d, s%d, s%d" % (sT, sA, sB))
    a.e("s_lshr_b32 s%d, s2, 5" % sCB)

def setup_rd(a):
    a.e("s_lshr_b32 s%d, s%d, 2" % (sHI, sW))
    a.e("s_and_b32 s%d, s%d, 3" % (sLO, sW))
    a.e("v_and_b32 v2, 15, v0")
    a.e("v_lshrrev_b32 v3, 4, v0")
    a.e("v_bfe_u32 v4, v0, 1, 3")
    a.e("v_xor_b32 v4, v4, v3")
    a.e("v_lshlrev_b32 v4, 4, v4")
    a.e("v_lshl_add_u32 %s, v2, 7, v4" % v(vXA))
    a.e("v_bfe_u32 v2, v0, 2, 2")
    a.e("v_and_b32 v4, 3, v0")
    a.e("v_lshl_add_u32 %s, v3, 3, v2" % v(vQA))
    a.e("v_lshlrev_b32 %s, 6, %s" % (v(vQA), v(vQA)))
    a.e("v_xor_b32 v5, s%d, v3" % sHI)
    a.e("v_and_b32 v5, 1, v5")
    a.e("v_lshl_add_u32 %s, v5, 5, %s" % (v(vQA), v(vQA)))
    a.e("v_lshl_add_u32 %s, v4, 3, %s" % (v(vQA), v(vQA)))

def setup_oclr(a):
    srd_words(a, [SWS, SKV, SDBG])
    a.e("s_mov_b32 s%d, 0xffff" % sVM)
    a.e("s_mov_b32 s%d, 0xffff" % (sVM + 1))
    a.e("s_lshl_b32 s%d, s%d, 2" % (sA, sG))
    a.e("s_add_u32 s%d, s%d, s%d" % (sA, sA, sLO))
    a.e("s_lshl_b32 s%d, s%d, 5" % (sB, sA))
    a.e("s_lshl_b32 s%d, s%d, 1" % (sC, sHP))
    a.e("s_add_u32 s%d, s%d, s%d" % (sB, sB, sC))
    a.e("s_add_u32 s%d, s%d, s%d" % (sB, sB, sHI))
    a.e("s_lshl_b32 s%d, s%d, 10" % (sB, sB))
    a.e("s_add_u32 s%d, s%d, 0x%x" % (sOST, sB, WS_OF))
    for i in range(4): a.e("v_mov_b32 %s, -1" % v(vQ + i))
    a.vmop("buffer_store_dwordx4 %s, %s, %s, s%d offen sc1" % (v(vQ, 4), v(vL16), srd(SWS), sOST), "oclr")
    a.e("v_mov_b32 %s, 1" % v(vONE))
    a.e("v_mov_b32 %s, 0" % v(vZERO))
    a.e("v_and_b32 %s, 31, v0" % v(vGA))
    a.e("v_lshlrev_b32 %s, 2, %s" % (v(vGA), v(vGA)))

def collect(fn):
    t = Asm(); t.marks = {}
    def vmop(s_, tag):
        t.e(s_); t.marks[len(t.l) - 1] = tag
    t.vmop = vmop
    fn(t)
    return [(x, t.marks.get(i)) for i, x in enumerate(t.l)]
def put(a, items):
    for x, tag in items:
        if tag: a.vmop(x, tag)
        else: a.e(x)

def setup_ones(a):
    a.e("s_mov_b32 s%d, 0x110000" % sA)
    a.e("s_mov_b32 s%d, 0x110000" % sB)
    a.e("v_mov_b32 v3, 0x3f803f80")
    a.e("v_cndmask_b32 %s, 0, v3, %s" % (v(vV1L), sp(sA)))
    for i in range(1, 4): a.e("v_mov_b32 %s, %s" % (v(vV1L + i), v(vV1L)))
    for i in range(16): a.e("v_mov_b32 %s, %s" % (v(vV + i), v(vV1L)))

def setup_attn(a):
    srd_words(a, [SWD, SWO, SOUT])
    a.e("s_lshl_b32 s%d, s%d, 2" % (sA, sG))
    a.e("s_add_u32 s%d, s%d, s%d" % (sA, sA, sLO))
    a.e("s_mul_i32 s%d, s%d, 112" % (sB, sA))
    a.e("s_lshl_b32 s%d, s%d, 3" % (sC, sM))
    a.e("s_add_u32 s%d, s%d, s%d" % (sB, sB, sC))
    a.e("s_lshl_b32 s%d, s%d, 2" % (sC, sHI))
    a.e("s_add_u32 s%d, s%d, s%d" % (sB, sB, sC))
    a.e("s_and_b32 s%d, s%d, 1" % (sC, sLO))
    a.e("s_lshl_b32 s%d, s%d, 1" % (sC, sC))
    a.e("s_add_u32 s%d, s%d, s%d" % (sB, sB, sC))
    a.e("s_lshl_b32 s%d, s%d, 10" % (sB, sB))
    a.e("s_add_u32 s%d, s%d, 0x%x" % (sHST, sB, WS_HF))
    a.e("s_mul_i32 s%d, s%d, %d" % (sC, sC, 112 * 1024))
    a.e("s_sub_u32 s%d, %d, s%d" % (sC, 112 * 1024, sC))
    a.e("s_add_u32 s%d, s%d, s%d" % (sHST2, sHST, sC))
    a.e("v_bfe_u32 v2, v0, 2, 2")
    a.e("v_lshrrev_b32 v3, 5, v0")
    a.e("v_lshl_add_u32 v2, v3, 2, v2")
    a.e("v_lshlrev_b32 v2, 6, v2")
    a.e("v_bfe_u32 v3, v0, 4, 1")
    a.e("v_lshl_add_u32 v2, v3, 5, v2")
    a.e("v_and_b32 v3, 3, v0")
    a.e("v_lshl_add_u32 v2, v3, 3, v2")
    a.e("s_lshr_b32 s%d, s%d, 1" % (sA, sW))
    a.e("s_lshl_b32 s%d, s%d, 11" % (sA, sA))
    a.e("v_add_u32 %s, s%d, v2" % (v(vWDA), sA))
    a.e("v_add_u32 %s, 0x%x, %s" % (v(vKVA), L_KV, v(vL16)))
    a.e("v_add_u32 %s, 0x%x, %s" % (v(vKVB), L_KV + 0x4000, v(vL16)))
    a.e("v_bfe_u32 v2, v0, 2, 3")
    a.e("v_lshlrev_b32 v2, 10, v2")
    a.e("v_lshrrev_b32 v3, 5, v0")
    a.e("v_lshl_add_u32 v2, v3, 6, v2")
    a.e("v_and_b32 v3, 3, v0")
    a.e("v_lshl_add_u32 v2, v3, 4, v2")
    a.e("s_lshl_b32 s%d, s%d, 7" % (sB, sCB))
    a.e("v_add_u32 %s, s%d, v2" % (v(vWDV), sB))
    a.e("v_min_u32 v2, 13, v0")
    a.e("v_lshlrev_b32 v2, 7, v2")
    a.e("s_lshr_b32 s%d, s%d, 1" % (sA, sT))
    a.e("s_lshl_b32 s%d, s%d, 11" % (sA, sA))
    a.e("s_add_u32 s%d, s%d, 0x%x" % (sA, sA, WS_HFLAG))
    a.e("v_add_u32 %s, s%d, v2" % (v(vFLA), sA))
    a.e("s_lshl_b32 s%d, s%d, 1" % (sA, sT))
    a.e("s_and_b32 s%d, s%d, 1" % (sB, sW))
    a.e("s_add_u32 s%d, s%d, s%d" % (sA, sA, sB))
    a.e("s_lshl_b32 s%d, s%d, 15" % (sB, sA))
    a.e("s_lshr_b32 s%d, s%d, 1" % (sKQ, sW))
    if Opt.kqx == 2:
        a.e("s_and_b32 s%d, s%d, 2" % (sKQ, sW))
        a.e("s_add_u32 s%d, s%d, s%d" % (sKQ, sKQ, sHI))
    if Opt.kqx == 1:
        a.e("s_lshl_b32 s%d, s%d, 1" % (sC, sCB))
        a.e("s_and_b32 s%d, s%d, 2" % (sC, sC))
        a.e("s_xor_b32 s%d, s%d, s%d" % (sKQ, sKQ, sC))
    a.e("s_lshl_b32 s%d, s%d, 13" % (sC, sKQ))
    a.e("s_add_u32 s%d, s%d, s%d" % (sB, sB, sC))
    a.e("s_add_u32 s%d, s%d, 0x%x" % (sOLD, sB, WS_OF))
    a.e("v_and_b32 v2, 31, v0")
    a.e("v_lshrrev_b32 v3, 5, v0")
    a.e("v_and_b32 v4, 7, v0")
    a.e("v_xor_b32 v3, v3, v4")
    a.e("v_lshlrev_b32 v3, 4, v3")
    a.e("v_lshl_add_u32 v3, v2, 8, v3")
    a.e("s_and_b32 s%d, s%d, 1" % (sB, sW))
    a.e("s_lshl_b32 s%d, s%d, 15" % (sB, sB))
    a.e("s_lshr_b32 s%d, s%d, 1" % (sC, sW))
    a.e("s_lshl_b32 s%d, s%d, 13" % (sD, sC))
    a.e("s_add_u32 s%d, s%d, s%d" % (sOUTO, sD, sB))
    a.e("s_add_u32 s%d, s%d, 0x%x" % (sD, sOUTO, L_RED))
    a.e("v_add_u32 %s, s%d, v3" % (v(vAW0), sD))
    a.e("v_lshrrev_b32 v2, 3, v0")
    a.e("v_lshlrev_b32 v3, 1, v4")
    a.e("v_xor_b32 v3, v3, v2")
    a.e("v_lshlrev_b32 v3, 4, v3")
    a.e("v_lshl_add_u32 v3, v2, 8, v3")
    a.e("s_lshl_b32 s%d, s%d, 11" % (sD, sC))
    a.e("s_add_u32 s%d, s%d, s%d" % (sD, sD, sB))
    a.e("s_add_u32 s%d, s%d, 0x%x" % (sD, sD, L_RED))
    a.e("v_add_u32 %s, s%d, v3" % (v(vAR0), sD))
    a.e("v_lshlrev_b32 v4, 4, v4")
    a.e("v_lshl_add_u32 %s, v2, 10, v4" % v(vOUTA))
    a.e("s_lshl_b32 s%d, s%d, 16" % (sC, sT))
    a.e("s_add_u32 s%d, s%d, s%d" % (sOUTO, sOUTO, sC))
    a.e("s_lshl_b32 s%d, s%d, 7" % (sC, sCB))
    a.e("s_add_u32 s%d, s%d, s%d" % (sOUTO, sOUTO, sC))
    a.e("v_mov_b32 %s, 0xdddd" % v(vIDX))
    a.e("v_lshrrev_b32 v2, 4, v0")
    a.e("v_lshl_add_u32 %s, v2, 8, %s" % (v(vHA), v(vL16)))
    for i in range(16): a.e("v_mov_b32 %s, 0" % v(vO + i))
    for i in range(32): a.e("v_mov_b32 %s, 0" % v(vD + i))
    c0 = -2.0 * math.sqrt(2.0 / math.pi) * math.log2(math.e)
    a.e("v_mov_b32 %s, 0x%x" % (v(vC0), f2u(c0)))
    a.e("v_mov_b32 %s, 0x%x" % (v(vC0 + 1), f2u(c0 * 0.044715)))

def kv_first_loads(a, quartet=False):
    it = []
    for o in (range(0, 16384, 4096) if quartet else range(0, 16384, 8192)):
        b = sWH if quartet else sWK
        it.append(("s_add_u32 m0, s%d, 0x%x\ns_add_u32 s%d, s%d, 0x%x\nbuffer_load_dwordx4 %s, %s, s%d offen sc1 lds"
                   % (b, L_KV + o, sA, b, o, v(vL16), srd(SKV), sA), "kv%d" % (o >> 13)))
    it.append(("s_mov_b32 s%d, 0x%x\nbuffer_load_dwordx4 %s, %s, %s, s%d offen sc1"
               % (sA, 63 * 2048, v(vK0, 4), v(vL16), srd(SKV), sA), "k0"))
    it.append(("s_mov_b64 exec, %s\nbuffer_load_dwordx4 %s, %s, %s, 0 offen offset:%d sc1\ns_mov_b64 exec, -1"
               % (sp(sVM), v(vV1L, 4), v(vL16), srd(SKV), 1024 + 256), "k0"))
    it.append(("s_lshl_b32 s%d, s%d, 2\ns_add_u32 s%d, s%d, s%d\ns_lshl_b32 s%d, s%d, 7\ns_add_u32 s%d, s%d, 0x%x\n"
               "buffer_load_dword %s, %s, %s, s%d offen sc1"
               % (sA, sG, sA, sA, sLO, sA, sA, sA, sA, WS_G, v(vGP), v(vGA), srd(SWS), sA), "k0"))
    it.append(("s_lshl_b32 s%d, s%d, 1\ns_and_b32 s%d, s%d, 1\ns_add_u32 s%d, s%d, s%d\ns_lshl_b32 s%d, s%d, 7\ns_add_u32 s%d, s%d, 0x%x\n"
               "buffer_load_dword %s, %s, %s, s%d offen sc1"
               % (sA, sT, sB, sW, sA, sA, sB, sA, sA, sA, sA, WS_G, v(vGC), v(vGA), srd(SWS), sA), "k0"))
    return it

def spin_counter(a, name, first_loaded, wave=0):
    a.e("s_cmp_lg_u32 s%d, %d" % (sW, wave))
    a.e("s_cbranch_scc1 L_%s_done" % name)
    a.e("s_mov_b32 s%d, 0x4000" % sB)
    if first_loaded: a.e("s_branch L_%s_chk" % name)
    a.lab("L_%s_re" % name)
    a.e("buffer_load_dword %s, off, %s, 0 sc1" % (v(vPOLL), srd(SDBG)))
    a.e("s_waitcnt vmcnt(0)")
    a.lab("L_%s_chk" % name)
    a.e("v_readfirstlane_b32 s%d, %s" % (sA, v(vPOLL)))
    a.e("s_cmp_ge_u32 s%d, 32" % sA)
    a.e("s_cbranch_scc1 L_%s_done" % name)
    a.e("s_sleep 4    ; back-off between two polls of the K/V counter")
    a.e("s_sub_u32 s%d, s%d, 1" % (sB, sB))
    a.e("s_cmp_lg_u32 s%d, 0" % sB)
    a.e("s_cbranch_scc1 L_%s_re" % name)
    a.lab("L_%s_done" % name)

def phase1_F(a):
    SCHED = {1: ["01423567", "10253467", "23016457", "32104756"],
             2: ["02134657", "01324576", "10243567", "10235467"],
             3: ["01324657", "01243576", "12035467", "20134567"],
             5: ["01243567", "10325467", "23014657", "32104576"],
             6: ["01243567", "10325467", "01234657", "10324576"],
             7: ["01234567", "10235476", "01234567", "10235476"],
             8: ["01234567", "10243657", "01234567", "10243657"],
             4: ["02143657", "10325476", "02143657", "10325476"]}
    tabs = SCHED[Opt.sched] if Opt.sched else ["".join(str(c ^ (p & Opt.xmask)) for c in range(8)) for p in range(4)]
    for t_ in tabs: assert sorted(t_) == list("01234567")
    num = [int(t_[::-1], 16) for t_ in tabs]
    def table(a):
        a.e("s_add_u32 s%d, s%d, s%d" % (sA, sG, sHP))
        a.e("s_mov_b32 s%d, 0x%x" % (sXP, num[0]))
        a.e("s_mov_b32 s%d, 0x%x" % (sB, num[2]))
        a.e("s_bitcmp1_b32 s%d, 0" % sA)
        a.e("s_cselect_b32 s%d, 0x%x, s%d" % (sXP, num[1], sXP))
        a.e("s_cselect_b32 s%d, 0x%x, s%d" % (sB, num[3], sB))
        a.e("s_bitcmp1_b32 s%d, 1" % sA)
        a.e("s_cselect_b32 s%d, s%d, s%d" % (sXP, sB, sXP))
        if Opt.ghx:
            a.e("s_bitcmp1_b32 s%d, 3" % sG)
            a.e("s_cselect_b32 s%d, 0x44444444, 0" % sB)
            a.e("s_xor_b32 s%d, s%d, s%d" % (sXP, sXP, sB))
    fo, fw = {"0000": (0, 0), "0101": (0, 1), "0011": (1, 1), "0123": (0, 2)}["".join(t_[0] for t_ in tabs)]
    a.e("s_add_u32 s%d, s%d, s%d" % (sA, sG, sHP))
    a.e("s_bfe_u32 s%d, s%d, 0x%x" % (sCH, sA, fw << 16 | fo))
    if Opt.ghx: a.e("s_lshl2_add_u32 s%d, s%d, s%d" % (sCH, sD, sCH))
    a.e("s_and_b32 s%d, s%d, 0xc00" % (sWH, sWK))
    a.e("v_and_b32 %s, 0xff, v0" % v(vTID))

    def wvoff(a):
        a.e("v_lshrrev_b32 v2, 4, %s" % v(vTID))
        a.e("v_lshrrev_b32 v3, 5, %s" % v(vTID))
        a.e("v_bfi_b32 v3, 3, v2, v3")
        a.e("v_lshlrev_b32 v3, 1, v3")
        a.e("v_xor_b32 v3, v3, %s" % v(vTID))
        a.e("v_and_b32 v3, 15, v3")
        a.e("s_lshl_b32 s%d, s%d, 8" % (sA, sM))
        a.e("v_lshl_add_u32 v3, v3, 4, s%d" % sA)
        a.e("v_mul_u32_u24 v2, 3584, v2")
        a.e("v_add_u32 %s, v2, v3" % v(vDG))
    def qvoff(a):
        a.e("v_lshrrev_b32 v2, 4, %s" % v(vTID))
        a.e("v_and_b32 v2, 2, v2")
        a.e("v_xor_b32 v2, v2, %s" % v(vTID))
        a.e("v_and_b32 v2, 3, v2")
        a.e("s_lshl_b32 s%d, s%d, 6" % (sA, sHP))
        a.e("v_lshl_add_u32 v2, v2, 4, s%d" % sA)
        a.e("v_lshrrev_b32 v3, 2, %s" % v(vTID))
        a.e("v_lshl_add_u32 %s, v3, 10, v2" % v(vDQ))
    def stouch(a):
        if (Opt.diag or Opt.probe >= 0) and not Opt.klate: a.e("s_load_dwordx2 %s, s[0:1], 32" % sp(SWO))
        if not Opt.stch: return
        a.e("s_lshr_b32 s%d, s%d, 2" % (sA, sW))
        if Opt.ghx: a.e("s_lshl2_add_u32 s%d, s%d, s%d" % (sA, sD, sA))
        a.e("s_lshl_b32 s%d, s%d, 6" % (sA, sA))
        a.e("s_and_b32 s%d, s%d, 7" % (sB, sG))
        a.e("s_add_u32 s%d, s%d, s%d" % (sA, sA, sB))
        a.e("s_mul_i32 s%d, s%d, 28" % (sA, sA))
        a.e("s_bfe_u32 s%d, s%d, 0x10001" % (sB, sW))
        a.e("s_lshl1_add_u32 s%d, s%d, s%d" % (sB, sM, sB))
        a.e("s_add_u32 s%d, s%d, s%d" % (sA, sA, sB))
        a.e("s_lshl_b32 s%d, s%d, 7" % (sA, sA))
        a.e("s_bitcmp1_b32 s%d, 0" % sW)
        a.e("s_cselect_b64 %s, %s, %s" % (sp(SWKV), sp(SWU), sp(SWG)))
        a.e("s_add_u32 s%d, s%d, s%d" % (SWKV, SWKV, sA))
        a.e("s_addc_u32 s%d, s%d, 0" % (SWKV + 1, SWKV + 1))
        for i in range(Opt.stch):
            a.e("s_load_dwordx2 %s, %s, 0x%x" % (sp(sTMPP), sp(SWKV), 128 * 3584 + i * 8 * 3584 + 60))
    def wsrd(a):
        srd_words(a, [SWG])
        a.e("s_mov_b64 %s, %s" % (sp(SWU + 2), sp(SWG + 2)))

    if Opt.hrot:
        ORDER = [("q", 0)] + [(t_, 2 * h_ + j) for h_ in range(2) for t_, j in (("x", 0), ("x", 1), ("g", 0), ("u", 0), ("g", 1), ("u", 1))]
    else:
        ORDER = [("q", 0)] + [("x", j) for j in range(4)] + [(t_, j) for j in range(4) for t_ in "gu"]
    def block(items):
        out = []; lastc = None; lastw = None
        for c, kind, j in items:
            s = c % 3; pre = []
            if c != lastc:
                if c: pre.append("s_bfe_u32 s%d, s%d, 0x%x" % (sCH, sXP, 0x30000 + 4 * c))
                lastc = c; lastw = None
            fam = "w" if kind in "gu" else kind
            rot = Opt.hrot and fam != "q"
            if lastw is None or lastw[0] != fam or (rot and lastw[1] >> 1 != j >> 1):
                pre.append({"q": "s_lshl_b32 s%d, s%d, 16" % (sOFFW, sCH), "x": "s_lshl_b32 s%d, s%d, 7" % (sOFFW, sCH),
                            "w": "s_mul_i32 s%d, s%d, %d" % (sOFFW, sCH, 64 * 3584)}[fam])
                if rot: pre.append("s_%s_u32 s%d, s%d, s%d" % ("sub" if j >> 1 else "add", sOFFW, sOFFW, sRX if fam == "x" else sRW))
                lastw = (fam, 0)
            if lastw[1] != j:
                pre.append("s_add_u32 s%d, s%d, 0x%x" % (sOFFW, sOFFW, (j - lastw[1]) * (0x8000 if fam == "x" else 16 * 3584)))
                lastw = (fam, j)
            m0c, vo, rs = {"q": (L_WQ + s * 4096, vDQ, SWQ), "x": (L_X + s * 16384 + j * 4096, vDX, SX),
                           "g": (L_G + s * 16384 + j * 4096, vDG, SWG), "u": (L_U + s * 16384 + j * 4096, vDG, SWU)}[kind]
            nt = " nt" if Opt.ntx & (1 if rs == SX else 2) else ""
            out.append(("s_add_u32 m0, s%d, 0x%x\n%s\nbuffer_load_dwordx4 %s, %s, s%d offen%s lds"
                        % ((sM0B + (j >> 1)) if rot else sWH, m0c, "\n".join(pre) or "s_nop 0", v(vo), srd(rs), sOFFW, nt), "c%d" % c))
        return out
    def part(c, role): return [(c, k_, j) for k_, j in ORDER if (k_ in "gu") == (role == "A")]

    def rdsetup(a):
        setup_rd(a)
        a.e("v_lshl_add_u32 %s, v3, 3, v2" % v(vWA))
        a.e("v_lshlrev_b32 %s, 8, %s" % (v(vWA), v(vWA)))
        a.e("v_lshl_add_u32 %s, v4, 3, %s" % (v(vWA), v(vWA)))
        a.e("v_and_b32 v5, 1, v3")
        a.e("v_lshl_add_u32 v2, v5, 2, v2")
        a.e("s_lshl_b32 s%d, s%d, 2" % (sA, sHI))
        a.e("s_and_b32 s%d, s%d, 1" % (sB, sLO))
        a.e("s_lshl_b32 s%d, s%d, 1" % (sB, sB))
        a.e("s_add_u32 s%d, s%d, s%d" % (sA, sA, sB))
        a.e("v_xor_b32 v2, s%d, v2" % sA)
        a.e("v_lshl_add_u32 %s, v2, 5, %s" % (v(vWA), v(vWA)))
        a.e("v_xor_b32 %s, 32, %s" % (v(vWA + 1), v(vWA)))
        a.e("v_add_u32 %s, 0x%x, %s" % (v(vWA + 2), L_U - L_G, v(vWA)))
        a.e("v_add_u32 %s, 0x%x, %s" % (v(vWA + 3), L_U - L_G, v(vWA + 1)))
        a.e("s_lshl_b32 s%d, s%d, 12" % (sA, sLO))
        a.e("s_add_u32 s%d, s%d, 0x%x" % (sA, sA, L_X))
        a.e("v_add_u32 %s, s%d, %s" % (v(vXA), sA, v(vXA)))
        a.e("v_xor_b32 %s, 0x1000, %s" % (v(vXA + 1), v(vXA)))
        a.e("v_xor_b32 %s, 64, %s" % (v(vXA + 2), v(vXA)))
        a.e("v_xor_b32 %s, 64, %s" % (v(vXA + 3), v(vXA + 1)))
        a.e("v_add_u32 %s, 0x%x, %s" % (v(vQA), L_WQ, v(vQA)))

    a.e("s_cmp_ge_u32 s%d, 4" % sW)
    a.e("s_cbranch_scc1 L_setB")
    late = collect(setup_oclr) + collect(setup_ones) + [("; later", None)] + collect(setup_attn)
    words = collect(lambda t: srd_words(t, [SWS, SKV, SDBG, SWD, SWO, SOUT]))
    late = [x for x in late if x not in words]
    oclr = [x for x in late if x[1] == "oclr"]
    if Opt.olate: late = [x for x in late if x[1] != "oclr"]
    else: oclr = []
    words += [("v_mov_b32 %s, 0" % v(r_), None) for r_ in (vGA, vWDV, vFLA, vHA, vOUTA)]
    st = collect(rdsetup) + words + late[:Opt.fillpre]
    cut = late.index(("; later", None)) if Opt.bidle else len(late)
    fills = {"A": late[Opt.fillpre:], "B": late[Opt.fillpre:max(cut, Opt.fillpre)]}
    idleB = late[max(cut, Opt.fillpre):]
    vms = {}
    wsrd(a); wvoff(a)
    a.e("s_waitcnt lgkmcnt(0)")
    a.stamp(2)
    if Opt.spos == 0: stouch(a)
    put(a, block(part(0, "A")))
    a.e("s_branch L_setA")
    vms["A"] = a.vm; a.vm = []
    a.lab("L_setB")
    srd_words(a, [SX]); xvoff(a, vTID)
    a.e("s_waitcnt lgkmcnt(0)")
    a.stamp(2)
    if Opt.spos == 0: stouch(a)
    put(a, block(part(0, "B")[1:]))
    srd_words(a, [SWQ]); qvoff(a)
    put(a, block(part(0, "B")[:1]))
    vms["B"] = a.vm
    for role in "BA":
        a.vm = vms[role]
        if role == "A": a.lab("L_setA")
        if Opt.spos == 1: stouch(a)
        table(a)
        setup_ids(a)
        if role == "A": srd_words(a, [SX, SWQ])
        else: wsrd(a)
        def touches():
            tm = sum(0xff << (8 * i) for i in range(4) if Opt.tch >> i & 1)
            setex = "s_bitcmp1_b32 s%d, 3\ns_cselect_b32 exec_lo, 0, 0x%x\ns_cselect_b32 exec_hi, 0x%x, 0" % (sG, tm, tm) if Opt.ghx \
                    else "s_mov_b32 exec_lo, 0x%x\ns_mov_b32 exec_hi, 0" % tm
            if Opt.tlb & 2 and role == "B":
                a.e("s_and_b32 s%d, s%d, 7" % (sA, sG))
                a.e("v_lshl_add_u32 v2, v0, 3, s%d" % sA)
                a.e("v_mul_u32_u24 v3, 3584, v2")
                a.e("s_and_b32 s%d, s%d, 1" % (sB, sW))
                a.e("s_lshl1_add_u32 s%d, s%d, s%d" % (sA, sM, sB))
                a.e("s_lshl_b32 s%d, s%d, 7" % (sA, sA))
                a.e(setex)
                a.e("s_cmp_ge_u32 s%d, 6" % sW)
                a.e("s_cbranch_scc1 L_tlbu")
                a.e("buffer_load_dword %s, v3, %s, s%d offen" % (v(vPOLL), srd(SWG), sA))
                a.e("s_branch L_tlbe")
                a.lab("L_tlbu")
                a.e("buffer_load_dword %s, v3, %s, s%d offen" % (v(vPOLL), srd(SWU), sA))
                a.lab("L_tlbe")
                a.e("s_mov_b64 exec, -1")
                a.vm.append("tlb")
            if Opt.tlb & 12 and role == "A":
                a.e("s_cmp_lg_u32 s%d, 0" % sW)
                a.e("s_cbranch_scc1 L_tlbx")
                a.e("s_and_b32 s%d, s%d, 7" % (sA, sG))
                a.e("v_lshl_add_u32 v2, v0, 3, s%d" % sA)
                a.e("v_lshlrev_b32 v3, 10, v2")
                a.e("s_lshl_b32 s%d, s%d, 6" % (sA, sHP))
                a.e(setex if Opt.tlb & 4 else "s_mov_b64 exec, 1")
                a.e("buffer_load_dword %s, v3, %s, s%d offen" % (v(vPOLL), srd(SWQ), sA))
                if not Opt.tlb & 8:
                    a.e("s_mov_b64 exec, -1")
                    a.lab("L_tlbx")
                    return
                a.e("s_branch L_tlby")
                a.lab("L_tlbx")
                a.e("s_bitcmp1_b32 s2, 0")
                a.e("s_cselect_b32 s%d, %d, %d" % (sB, Opt.xodd, Opt.xeven))
                a.e("s_and_b32 s%d, s%d, 3" % (sA, sHP))
                a.e("s_mul_i32 s%d, s%d, s%d" % (sA, sA, sB))
                a.e("s_lshl_b32 s%d, s%d, 7" % (sC, sG))
                a.e("s_add_u32 s%d, s%d, s%d" % (sA, sA, sC))
                a.e("v_add_lshl_u32 v3, v0, s%d, 10" % sA)
                a.e("s_lshr_b32 s%d, s%d, 3" % (sA, sG))
                a.e("s_lshl2_add_u32 s%d, s%d, s%d" % (sA, sA, sW) if Opt.ghx else "s_mov_b32 s%d, s%d" % (sA, sW))
                a.e("s_lshl_b32 s%d, s%d, 7" % (sA, sA))
                a.e("s_bitcmp1_b32 %d, s%d" % (Opt.tch if Opt.tlb & 8 else 0, sW))
                a.e("s_cselect_b32 s%d, s%d, 1" % (sB, sB))
                a.e("s_bfm_b64 exec, s%d, 0" % sB)
                a.e("buffer_load_dword %s, v3, %s, s%d offen" % (v(vPOLL), srd(SX), sA))
                a.lab("L_tlby")
                a.e("s_mov_b64 exec, -1")
                a.vm.append("tlb")
        if Opt.tpos == 0: touches()
        if Opt.startbar: a.e("s_barrier")
        npre = min(Opt.npre, 8) if role == "A" else 5
        pn = block(part(1, role)[:npre])
        rest = st + (collect(qvoff) + collect(lambda t: xvoff(t, vTID)) if role == "A" else collect(wvoff))
        gap = len(rest) // (npre + Opt.pregap) + 1
        if Opt.tpos == 2:
            put(a, pn); touches(); npre = 0
        if Opt.tpos == 3 and role == "B":
            put(a, pn); touches(); npre = 0
        for i in range(npre):
            put(a, pn[:1]); pn = pn[1:]
            put(a, rest[:gap]); rest = rest[gap:]
        put(a, rest)
        if Opt.tpos == 1 or (Opt.tpos == 3 and role == "A"): touches()
        a.e("s_mov_b64 vcc, %d" % (-1 if role == "A" else 0))
        if role == "A":
            a.waitvm("c0", lgkm=True)
        else:
            a.e("s_setprio 1")
            a.waitvm("c0", lgkm=True)
            a.e("s_branch L_k0")
        vms[role] = a.vm
    stream = part(1, "A")[min(Opt.npre, 8):] + [(c, k_, j) for c in range(2, 8) for k_, j in ORDER]
    qa = [int(x, 16) for x in Opt.qa]; qb = [int(x, 16) for x in Opt.qb]
    def take(n, cmax):
        m = 0
        while m < n and m < len(stream) and stream[m][0] <= cmax: m += 1
        r_ = stream[:m]; del stream[:m]
        return block(r_)
    a.lab("L_k0")
    a.vm = vms["A"]
    ool = Asm()
    def dmablock(name, role, items, wait=None):
        a.e("s_cbranch_vcc%s L_%s" % ("nz" if role == "A" else "z", name))
        if wait: a.waitvm(wait, lgkm=True)
        a.lab("L_%s_r" % name)
        ool.lab("L_%s" % name)
        ool.vm = a.vm if role == "A" else vms["B"]
        for it_ in items:
            put(ool, [it_])
            fp = Opt.fillper if role == "A" or not Opt.bidle else 2
            put(ool, fills[role][:fp]); fills[role] = fills[role][fp:]
        if name in ("d7", "e7"): put(ool, fills[role]); fills[role] = []
        if wait: ool.waitvm(wait, lgkm=True)
        if role == "B": vms["B"] = ool.vm
        ool.e("s_branch L_%s_r" % name)
    a.ool = ool.l

    def fr(k):
        b = vF1 + 36 * (k % 2)
        return dict(x=b, w=b + 16, q=b + 32)
    def reads(k):
        c, s = divmod(k, 2); f = fr(k); sl = c % 3
        wo = sl * 16384 + s * 8192
        W = lambda i: [rdtr(f['w'] + 4 * i, vWA + i, wo), rdtr(f['w'] + 4 * i + 2, vWA + i, wo + 1024)]
        X = [rd128(f['x'] + 4 * b, vXA + 2 * s + (b >> 1), sl * 16384 + (b & 1) * 2048) for b in range(4)]
        return W(0) + X + W(2) + W(1) + W(3) + [rdtr(f['q'], vQA, sl * 4096 + s * 2048), rdtr(f['q'] + 2, vQA, sl * 4096 + s * 2048 + 256)]
    a.e("s_barrier")
    a.stamp(3)
    if Opt.kdiag or Opt.probe >= 18:
        kstamp(a, 2)
        a.e("s_waitcnt lgkmcnt(0)")
    if Opt.kal: a.l.append(".p2align 3")
    if Opt.kal == 2: a.e("s_nop 0")
    al = (lambda: a.l.append(".p2align 3")) if Opt.kal == 3 else (lambda: None)
    for r in reads(0): a.e(r)
    if qa[0]: dmablock("d2", "A", take(qa[0], 2))
    for k in range(16):
        c, s = divmod(k, 2); f = fr(k)
        z = lambda x: None if k == 0 else x
        mf = []
        for n_, i in enumerate((0, 2, 1, 3)):
            for b in (range(4) if n_ % 2 == 0 else range(3, -1, -1)):
                d = vACC + 16 * b + 4 * i
                mf.append(mfma16(d, f['w'] + 4 * i, f['x'] + 4 * b, z(d)))
        for b in range(2): mf.append(mfma16(vAQ + 4 * b, f['q'], f['x'] + 4 * b, z(vAQ + 4 * b)))
        rds = reads(k + 1) if k < 15 else []
        if s == 0:
            a.e("s_waitcnt lgkmcnt(6)"); al()
            for i, m in enumerate(mf):
                if i == 8: a.e("s_waitcnt lgkmcnt(%d)" % (8 - Opt.kw0)); al()
                a.e(m)
                if Opt.kw0 and i == 7: continue
                ii = i - (1 if Opt.kw0 and i > 7 else 0)
                if ii < len(rds): a.e(rds[ii])
            continue
        a.e("s_waitcnt lgkmcnt(8)")
        for m in mf[:Opt.kb]: a.e(m)
        if c <= 5:
            dmablock("e%d" % (c + 2), "B", take(qb[c], c + 2), "c%d" % (c + 1))
            assert not any(x[0] <= c + 1 for x in stream)
        if c == 7:
            a.e("s_waitcnt lgkmcnt(0)")
        elif c == 6:
            a.e("s_waitcnt lgkmcnt(0)")
            a.e("s_cbranch_vccz L_st7")
            a.e("s_setprio 1")
            a.e("s_waitcnt vmcnt(0)")
            a.e("s_barrier")
            a.lab("L_st7")
        else:
            a.e("s_barrier")
        if c < 7 and ((Opt.kdiag == 1 and Opt.diag) or Opt.probe == 21 + c):
            kstamp(a, 3 + c)
            a.e("s_waitcnt lgkmcnt(0)")
        if c + 3 < 8:
            items = take(qa[c + 1], c + 3)
            dmablock("d%d" % (c + 3), "A", items)
        al()
        for i, m in enumerate(mf[Opt.kb:]):
            a.e(m)
            if i < len(rds): a.e(rds[i])
        if k == 11: assert not stream and not fills["A"] and not fills["B"]
        if k == 11:
            a.e("s_cbranch_vccnz L_st6")
            a.e("s_setprio 0")
            nm = next((i for i, x in enumerate(idleB) if "0xdddd" in x[0]), 0)
            a.e("s_cmp_lg_u32 s%d, 4" % sW)
            a.e("s_cbranch_scc1 L_nopoll")
            a.e("buffer_load_dword %s, off, %s, 0 sc1" % (v(vPOLL), srd(SDBG)))
            a.lab("L_nopoll")
            put(a, idleB[:nm]); idleB = idleB[nm:]
            a.wait0()
            spin_counter(a, "kvf", True, 4)
            a.e("s_barrier")
            put(a, kv_first_loads(a, True) + oclr + idleB)
            a.lab("L_st6")
    a.kvA = (kv_first_loads(a) + oclr)[2:]
    a.stamp(4)

def phase1_L(a):
    a.lab("L_light")
    a.vm = []
    if Opt.oddl: a.e("s_add_u32 s%d, s%d, 14" % (sM, sB))
    if Opt.klate:
        ptr_loads(a, ((SGATE, 72), (SWKV, 16), (SWV, 24)))
    else:
        a.e("s_waitcnt lgkmcnt(0)")
        ptr_loads(a, ((SWKV, 16), (SWV, 24), (SGATE, 72), (SWO, 32)))
    srd_words(a, [SWKV, SWV, SGATE, SX])
    xvoff(a, 0)
    a.e("v_and_b32 v2, 63, v0")
    a.e("v_lshlrev_b32 %s, 4, v2" % v(vL16))
    a.e("s_sub_u32 s%d, s%d, 14" % (sCNT, sM))
    a.e("s_lshl_b32 s%d, s%d, 16" % (sOLD, sCNT))
    a.e("s_lshl_b32 s%d, s%d, 13" % (sHST, sCNT))
    a.e("s_add_u32 s%d, s%d, s%d" % (sWH, sHST, sWK))
    a.e("s_xor_b32 s%d, s%d, 0x2000" % (sHST, sHST))
    a.e("s_add_u32 s%d, s%d, 0x2000" % (sA, sWK))
    a.e("s_waitcnt lgkmcnt(0)")
    a.stamp(2)
    def xdma(c, base, so):
        a.vmop("s_add_u32 m0, s%d, 0x%x\ns_nop 0\nbuffer_load_dwordx4 %s, %s, s%d offen offset:%d lds"
               % (base, LL_X + c * 16384 - c * 128, v(vDX), srd(SX), so, c * 128), "c%d" % c)
    def wdma(u):
        for t, rs in enumerate((SWKV, SWV)):
            a.vmop("s_add_u32 m0, s%d, 0x%x\ns_nop 0\nbuffer_load_dwordx4 %s, %s, s%d offen lds"
                   % (sWK, LL_W + t * 16384 + u * 8192, v(vL16), srd(rs), sA if u else sWK), "w")
    wdma(0)
    a.vmop("s_mov_b32 m0, s%d\ns_nop 0\nbuffer_load_dwordx4 %s, %s, 0 offen lds" % (sHST, v(vL16), srd(SGATE)), "w")
    for c in range(8):
        if c == 4: wdma(1)
        xdma(c, sWH, sOLD)
        if (c == 1 and Opt.lthr & 1) or (c == 3 and Opt.lthr & 2): a.e("s_waitcnt vmcnt(0)")
        if c in (1, 3, 5): a.e("s_barrier")
    setup_ids(a)
    srd_words(a, [SWQ])
    setup_rd(a)
    a.e("v_lshrrev_b32 v3, 5, v0")
    a.e("v_bfrev_b32 v5, v4")
    a.e("v_lshrrev_b32 v5, 30, v5")
    a.e("s_cmp_ge_u32 s%d, 2" % sLO)
    a.e("s_cselect_b64 vcc, -1, 0")
    a.e("v_cndmask_b32 v4, v5, v4, vcc")
    a.e("v_lshl_add_u32 %s, v3, 3, v2" % v(vWA))
    a.e("v_lshlrev_b32 %s, 5, %s" % (v(vWA), v(vWA)))
    a.e("v_lshl_add_u32 %s, v4, 3, %s" % (v(vWA), v(vWA)))
    a.e("s_lshr_b32 s%d, s%d, 1" % (sA, sLO))
    a.e("s_lshl_b32 s%d, s%d, 14" % (sA, sA))
    a.e("s_add_u32 s%d, s%d, 0x%x" % (sA, sA, LL_W))
    a.e("v_add_u32 %s, s%d, %s" % (v(vWA), sA, v(vWA)))
    a.e("v_lshl_add_u32 %s, v3, 4, s%d" % (v(vWA + 1), sHST))
    a.e("s_and_b32 s%d, s%d, 1" % (sA, sLO))
    a.e("s_lshl_b32 s%d, s%d, 1" % (sB, sCNT))
    a.e("s_add_u32 s%d, s%d, s%d" % (sCNT, sA, sB))
    a.e("s_lshl_b32 s%d, s%d, 12" % (sA, sCNT))
    a.e("v_and_b32 v2, 31, v0")
    a.e("v_lshrrev_b32 v4, 1, v0")
    a.e("v_lshlrev_b32 v5, 1, v0")
    a.e("v_bfi_b32 v4, 4, v4, v5")
    a.e("v_bfi_b32 v4, 12, v4, v2")
    a.e("v_cndmask_b32 v2, v2, v4, vcc")
    a.e("v_bfe_u32 v4, v2, 1, 3")
    a.e("v_xor_b32 v4, v4, v3")
    a.e("v_lshlrev_b32 v4, 4, v4")
    a.e("v_lshl_add_u32 v4, v2, 7, v4")
    a.e("v_add_u32 %s, s%d, v4" % (v(vLX), sA))
    for s in range(1, 4): a.e("v_xor_b32 %s, %d, %s" % (v(vLX + s), 32 * s, v(vLX)))
    for s in range(4): a.e("v_add_u32 %s, 0x10000, %s" % (v(vLX + 4 + s), v(vLX + s)))
    a.e("s_waitcnt lgkmcnt(0)")
    setup_oclr(a)
    vm0 = list(a.vm)
    a.e("s_cmp_lg_u32 s%d, 0" % sHI)
    a.e("s_cbranch_scc1 L_lB")
    a.e("s_not_b64 %s, %s" % (sp(sTMPP), sp(sVM)))
    a.e("s_cmp_ge_u32 s%d, 2" % sLO)
    a.e("s_cbranch_scc1 L_lV")
    def chain(kind):
        a.vm = list(vm0)
        def fr(k):
            b = vFR + 8 * (k % 4)
            return b, b + 4
        def reads(k):
            c, s = divmod(k, 4); x, w = fr(k)
            r = [rd128(x, vLX + s + 4 * (c >> 2), (c & 3) * 16384), rdtr(w, vWA, k * 512), rdtr(w + 2, vWA, k * 512 + 128)]
            if kind == "K":
                r += ["s_mov_b64 exec, %s" % sp(sTMPP), rd128(w, vWA + 1, k * 32), "s_mov_b64 exec, -1"]
            return r
        for q in range(4):
            a.waitvm("c%d" % (2 * q + 1))
            a.e("s_barrier")
            nr = 4 if kind == "K" else 3
            for k in range(8 * q, 8 * q + 2):
                for r in reads(k): a.e(r)
            for k in range(8 * q, 8 * q + 8):
                if k + 2 < 8 * q + 8:
                    for r in reads(k + 2): a.e(r)
                left = min(2, 8 * q + 7 - k)
                a.e("s_waitcnt lgkmcnt(%d)" % (left * nr))
                x, w = fr(k)
                cc = None if k == 0 else vACC
                a.e(mfma(vACC, w, x, cc) if kind == "K" else mfma(vACC, x, w, cc))
        a.e("s_lshl_b32 s%d, s%d, 2" % (sA, sG))
        a.e("s_add_u32 s%d, s%d, s%d" % (sA, sA, sCNT))
        a.e("s_nop 12")
        if kind == "K":
            a.e("s_mov_b32 s%d, 0x%x" % (sC, f2u(0.25 * math.log2(math.e))))
            for i in range(8): a.e("v_mul_f32 %s, s%d, %s" % (v(vACC + i), sC, v(vACC + i)))
            a.e("v_mul_f32 %s, 0x%x, %s" % (v(vACC + 8), f2u(-math.log2(math.e)), v(vACC + 8)))
            a.e("v_exp_f32 %s, %s" % (v(vACC + 8), v(vACC + 8)))
            for i in range(4): a.e("v_cvt_pk_bf16_f32 %s, %s, %s" % (v(vFR + i), v(vACC + 2 * i), v(vACC + 2 * i + 1)))
            a.e("v_add_f32 %s, 1.0, %s" % (v(vACC + 8), v(vACC + 8)))
            a.e("v_rcp_f32 %s, %s" % (v(vACC + 8), v(vACC + 8)))
            a.e("s_add_u32 s%d, s%d, 63" % (sB, sA))
            a.e("s_and_b32 s%d, s%d, 63" % (sB, sB))
            a.e("s_lshl_b32 s%d, s%d, 11" % (sB, sB))
            a.e("buffer_store_dwordx4 %s, %s, %s, s%d offen sc1" % (v(vFR, 4), v(vL16), srd(SKV), sB))
            a.e("s_lshl_b32 s%d, s%d, 7" % (sB, sA))
            a.e("s_add_u32 s%d, s%d, 0x%x" % (sB, sB, WS_G))
            a.e("s_mov_b32 exec_hi, 0")
            a.e("buffer_store_dword %s, %s, %s, s%d offen sc1" % (v(vACC + 8), v(vGA), srd(SWS), sB))
            a.e("s_mov_b64 exec, -1")
        else:
            for i in range(8): a.e("v_cvt_pk_bf16_f32 %s, %s, %s" % (v(vFR + i), v(vACC + 2 * i), v(vACC + 2 * i + 1)))
            a.e("v_bfe_u32 v2, v0, 4, 1")
            a.e("v_add_u32 v2, s%d, v2" % sA)
            a.e("v_and_b32 v2, 63, v2")
            a.e("v_lshl_add_u32 v2, v2, 11, %s" % v(vL16))
            for i in range(4): a.e("v_cndmask_b32 %s, %s, %s, %s" % (v(vFR + i), v(vFR + 4 + i), v(vFR + i), sp(sVM)))
            a.e("buffer_store_dwordx4 %s, v2, %s, 0 offen offset:1024 sc1" % (v(vFR, 4), srd(SKV)))
        a.e("s_branch L_lJ")
    chain("K")
    a.lab("L_lV")
    chain("V")
    a.lab("L_lB")
    a.vm = list(vm0)
    a.e("s_cmp_lg_u32 s%d, 14" % sM)
    a.e("s_cbranch_scc1 L_nozf")
    a.e("s_cmp_lg_u32 s%d, 4" % sW)
    a.e("s_cbranch_scc1 L_nozf")
    a.e("v_lshlrev_b32 v2, 7, v0")
    a.e("s_lshl_b32 s%d, s%d, 11" % (sA, sG))
    a.e("s_add_u32 s%d, s%d, 0x%x" % (sA, sA, WS_HFLAG))
    a.e("s_mov_b64 exec, 0xffff")
    a.e("buffer_store_dword %s, v2, %s, s%d offen sc1" % (v(vZERO), srd(SWS), sA))
    a.e("s_mov_b64 exec, -1")
    a.lab("L_nozf")
    for q in range(4):
        a.waitvm("c%d" % (2 * q + 1))
        a.e("s_barrier")
    a.lab("L_lJ")
    a.e("v_lshrrev_b32 v3, 2, v0")
    a.e("v_lshlrev_b32 v3, 10, v3")
    a.e("v_lshrrev_b32 v4, 5, v0")
    a.e("v_lshlrev_b32 v4, 1, v4")
    a.e("v_xor_b32 v4, v4, v0")
    a.e("v_and_b32 v4, 3, v4")
    a.e("v_lshl_add_u32 v3, v4, 4, v3")
    a.e("s_lshl_b32 s%d, s%d, 14" % (sA, sW))
    a.e("s_lshl_b32 s%d, s%d, 6" % (sB, sHP))
    a.e("s_add_u32 s%d, s%d, s%d" % (sA, sA, sB))
    a.e("v_add_u32 %s, s%d, v3" % (v(vDQ), sA))
    a.e("s_xor_b32 s%d, s%d, 0x2000" % (sWH, sWH))
    a.e("s_xor_b32 s%d, s%d, 0x10000" % (sOLD, sOLD))
    a.wait0(lgkm=True)
    a.e("s_barrier")
    a.e("s_cmp_lg_u32 s%d, 0" % sW)
    a.e("s_cbranch_scc1 L_noat")
    a.e("s_mov_b64 exec, 1")
    a.e("buffer_atomic_add %s, off, %s, 0 sc1" % (v(vONE), srd(SDBG)))
    a.e("s_mov_b64 exec, -1")
    a.lab("L_noat")
    a.stamp(3)
    for c in range(8): xdma(c, sWH, sOLD)
    for p in range(4):
        a.e("s_add_u32 m0, s%d, 0x%x" % (sWK, LL_WQ + p * 8192))
        a.e("s_mov_b32 s%d, 0x%x" % (sA, p * 128 * 1024))
        a.e("buffer_load_dwordx4 %s, %s, s%d offen lds" % (v(vDQ), srd(SWQ), sA))
    setup_ones(a)
    setup_attn(a)
    if Opt.touch & 2:
        a.e("s_lshl_b32 s%d, s%d, 1" % (sA, sG))
        a.e("s_add_u32 s%d, s%d, s%d" % (sA, sA, sM))
        a.e("s_sub_u32 s%d, s%d, 14" % (sA, sA))
        a.e("s_lshl_b32 s%d, s%d, 3" % (sA, sA))
        a.e("s_add_u32 s%d, s%d, s%d" % (sA, sA, sW))
        a.e("v_lshlrev_b32 v2, 15, v0")
        a.e("s_lshl_b32 s%d, s%d, 7" % (sA, sA))
        a.e("buffer_load_dword %s, v2, %s, s%d offen" % (v(vPOLL), srd(SWO), sA))
        a.e("buffer_load_dword %s, v2, %s, s%d offen" % (v(vPOLL), srd(SWD), sA))
    a.e("s_lshl_b32 s%d, s%d, 12" % (sA, sLO))
    a.e("v_add_u32 %s, s%d, %s" % (v(vXA), sA, v(vXA)))
    a.e("v_xor_b32 %s, 64, %s" % (v(vXA + 1), v(vXA)))
    a.e("v_add_u32 %s, 0x10000, %s" % (v(vXA + 2), v(vXA)))
    a.e("v_add_u32 %s, 0x10000, %s" % (v(vXA + 3), v(vXA + 1)))
    a.e("v_add_u32 %s, 0x%x, %s" % (v(vQA), LL_WQ, v(vQA)))
    a.e("s_waitcnt vmcnt(%d)" % (2 if Opt.touch & 2 else 0))
    a.e("s_barrier")
    def fr(k): return vFR + 12 * (k % 3)
    def reads(k):
        c, s = divmod(k, 2); f = fr(k)
        return [rd128(f + 4 * b, vXA + s + 2 * (c >> 2), (c & 3) * 16384 + b * 2048) for b in range(2)] + \
               [rdtr(f + 8, vQA, k * 2048), rdtr(f + 10, vQA, k * 2048 + 256)]
    for k in range(2):
        for r in reads(k): a.e(r)
    for k in range(16):
        a.e("s_waitcnt lgkmcnt(%d)" % (4 * min(1, 15 - k)))
        for b in range(2): a.e(mfma16(vAQ + 4 * b, fr(k) + 8, fr(k) + 4 * b, None if k == 0 else vAQ + 4 * b))
        if k + 2 < 16:
            for r in reads(k + 2): a.e(r)
    spin_counter(a, "kvl", False)
    a.e("s_barrier")
    for s, t in kv_first_loads(a): a.e(s)
    a.wait0()
    a.stamp(4)
    a.e("s_branch L_join")

def gelu_tile(a, ti, scalar=False):
    acc = vACC + 16 * ti
    t = vFR
    o = vFR + 8 + 4 * ti
    pk = lambda r: v(r, 2)
    if scalar:
        for i in range(8): a.e("v_mul_f32 %s, %s, %s" % (v(t + i), v(acc + i), v(acc + i)))
        for i in range(8): a.e("v_fma_f32 %s, %s, %s, %s" % (v(t + i), v(t + i), v(vC0 + 1), v(vC0)))
        for i in range(8): a.e("v_mul_f32 %s, %s, %s" % (v(t + i), v(t + i), v(acc + i)))
        for i in range(8): a.e("v_exp_f32 %s, %s" % (v(t + i), v(t + i)))
        for i in range(8): a.e("v_add_f32 %s, 1.0, %s" % (v(t + i), v(t + i)))
        for i in range(8): a.e("v_rcp_f32 %s, %s" % (v(t + i), v(t + i)))
        for i in range(8): a.e("v_mul_f32 %s, %s, %s" % (v(acc + i), v(acc + i), v(acc + 8 + i)))
        for i in range(8): a.e("v_mul_f32 %s, %s, %s" % (v(acc + i), v(acc + i), v(t + i)))
    R4, R8 = (range(0), range(0)) if scalar else (range(4), range(8))
    for i in R4: a.e("v_pk_mul_f32 %s, %s, %s" % (pk(t + 2 * i), pk(acc + 2 * i), pk(acc + 2 * i)))
    for i in R4: a.e("v_pk_fma_f32 %s, %s, %s, %s op_sel:[0,1,0] op_sel_hi:[1,1,0]" % (pk(t + 2 * i), pk(t + 2 * i), pk(vC0), pk(vC0)))
    for i in R4: a.e("v_pk_mul_f32 %s, %s, %s" % (pk(t + 2 * i), pk(t + 2 * i), pk(acc + 2 * i)))
    for i in R8: a.e("v_exp_f32 %s, %s" % (v(t + i), v(t + i)))
    for i in R4: a.e("v_pk_add_f32 %s, %s, 1.0 op_sel_hi:[1,0]" % (pk(t + 2 * i), pk(t + 2 * i)))
    for i in R8: a.e("v_rcp_f32 %s, %s" % (v(t + i), v(t + i)))
    for i in R4: a.e("v_pk_mul_f32 %s, %s, %s" % (pk(acc + 2 * i), pk(acc + 2 * i), pk(acc + 8 + 2 * i)))
    for i in R4: a.e("v_pk_mul_f32 %s, %s, %s" % (pk(acc + 2 * i), pk(acc + 2 * i), pk(t + 2 * i)))
    for i in range(4): a.e("v_cvt_pk_bf16_f32 %s, %s, %s" % (v(o + i), v(acc + 2 * i), v(acc + 2 * i + 1)))
    a.vmop("buffer_store_dwordx4 %s, %s, %s, s%d offen offset:%d sc1" % (v(o, 4), v(vHA), srd(SWS), sHST2 if ti >> 1 else sHST, (ti & 1) * 256), "hst")

def Yseg(hset, toggle=False, first=False, extra=False, last=False):
    out = []
    for t in range(2):
        pos = [int(x, 17) for x in (Opt.ypos0 if hset is None else Opt.ypos2 if extra else Opt.ypos1)]
        if last and t == 1: pos = [pos[0], 0, 11, pos[1]]
        S, Sn = vS + 16 * t, vS + 16 * (1 - t)
        K, V0, V1 = vKF + 4 * t, vV + 8 * t, vV + 8 * t + 4
        for e in range(1, 17):
            out.append("v_exp_f32 %s, %s" % (v(S + e - 1), v(S + e - 1)))
            if e == pos[0] and not (first and t == 0): out.append(smfmac(vO, V1, Sn + 8))
            if e == pos[1]: out.append(mfma(Sn, K, vQ, None))
            if e == pos[2]: out.append(smfmac(vO, V0, S))
            if hset is not None:
                if e == 13 and t == 1 and toggle:
                    out.append("v_xor_b32 %s, 0x4000, %s" % (v(vKVB), v(vKVB)))
                if e == pos[3]: out.append(mfma(vD + 16 * t, vWF + 4 * t, vH + 4 * hset, vD + 16 * t))
                if extra and e == pos[4]: out.append(mfma(vD + 16 * t, vFR + 16 + 4 * t, vH + 16 + 4 * hset, vD + 16 * t))
    return out

def kv_reads(off, vKVA=vKVA):
    r = [rd128(vKF, vKVA, off), rd128(vKF + 4, vKVA, off + 2048), "s_mov_b64 exec, %s" % sp(sVM)]
    for t in range(2):
        r += [rd128(vV + 8 * t, vKVA, off + 2048 * t + 1024), rd128(vV + 8 * t + 4, vKVA, off + 2048 * t + 1280)]
    r.append("s_mov_b64 exec, -1")
    return r
def wd_reads(dst, addr, off):
    r = []
    for c in range(2):
        r += [rdtr(dst + 4 * c, addr, off + 512 * c), rdtr(dst + 4 * c + 2, addr, off + 512 * c + 1024)]
    return r

def hord(): return [0, 2, 4, 6, 1, 3, 5, 7] if Opt.hord else list(range(8))
def wdrow(sg): return (32 * (sg >> 1) + 8 * (sg & 1)) * 1024

def attention(a, role, pre0=None):
    A = role == "A"
    def kvdma(u):
        a.vmop("s_add_u32 m0, s%d, 0x%x\ns_add_u32 s%d, s%d, 0x%x\nbuffer_load_dwordx4 %s, %s, s%d offen sc1 lds"
               % (sWK, L_KV + (u % 4) * 8192, sA, sWK, u * 8192, v(vL16), srd(SKV), sA), "kv%d" % u)
    def wddma(sg):
        a.vmop("s_add_u32 m0, s%d, 0x%x\ns_add_u32 s%d, s%d, 0x%x\nbuffer_load_dwordx4 %s, %s, s%d offen lds"
               % (sWK, L_WD + (sg % 4 if sg < 23 or sg == 27 else sg - 19) * 8192, sA, sWDOFF, wdrow(sg), v(vWDV), srd(SWD), sA), "wd%d" % sg)
    def wodma(j):
        a.vmop("s_add_u32 m0, s%d, 0x%x\ns_add_u32 s%d, s%d, 0x%x\nbuffer_load_dwordx4 %s, %s, s%d offen lds"
               % (sWK, L_WO + (7 - j) * 8192, sA, sB, hord()[j] * 16384, v(vWDV), srd(SWO), sA), "wo")
    def hload(sg, dst):
        a.vmop("s_add_u32 s%d, s%d, 0x%x\nbuffer_load_dwordx4 %s, %s, %s, s%d offen sc1"
               % (sA, sHOFF, sg * 1024, v(dst, 4), v(vL16), srd(SWS), sA), "h%d" % sg)
    for n in range(12):
        if not A and n == 0: a.e("s_barrier")
        if n % 2 == 1: astamp(a, 2 + n // 2)
        if n == Opt.pcyc: a.e("%s %s" % ("s_memrealtime" if Opt.prt else "s_memtime", sp(sSTAMP + 6)))
        tags = []
        if A and n % 2 == 1: tags.append("kv%d" % ((n + 1) // 2))
        if not A and n % 2 == 0: tags.append("kv%d" % ((n + 2) // 2))
        if n == Opt.hpub - (0 if A else 1): tags.append("hst")
        if n == 6: tags.append("wo")
        if n == 9: tags.append("wd27")
        if n == 11: tags.append("wd0")
        if n == 9 and A:
            a.e("s_cmp_lg_u32 s%d, 0" % sW)
            a.e("s_cbranch_scc1 L_hf_done")
            a.e("s_mov_b32 s%d, 0x4000" % sB)
            a.e("s_waitcnt vmcnt(0)")
            a.lab("L_hf_chk")
            a.e("v_cmp_ne_u32 vcc, 1, %s" % v(vPOLL))
            a.e("s_cbranch_vccz L_hf_done")
            a.e("s_sleep %d    ; back-off between two polls of the producers' flags" % Opt.hsl)
            a.e("buffer_load_dword %s, %s, %s, 0 offen sc1" % (v(vPOLL), v(vFLA), srd(SWS)))
            a.e("s_sub_u32 s%d, s%d, 1" % (sB, sB))
            a.e("s_cmp_lg_u32 s%d, 0" % sB)
            a.e("s_waitcnt vmcnt(0)")
            a.e("s_cbranch_scc1 L_hf_chk")
            a.lab("L_hf_done")
        a.waitvm(tags)
        if n == 5 and Opt.diag == 3 and A:
            a.e("v_mov_b32 v2, s%d" % sSTAMP)
            a.e("s_lshl_b32 s%d, s2, 3" % sA)
            a.e("s_add_u32 s%d, s%d, s%d" % (sA, sA, sW))
            a.e("s_lshl_b32 s%d, s%d, 7" % (sA, sA))
            a.e("s_add_u32 s%d, s%d, 0x%x" % (sA, sA, WS_STAMP))
            a.e("s_mov_b64 exec, 1")
            a.vmop("buffer_store_dword v2, off, %s, s%d offset:12 sc1" % (srd(SWS), sA), "st")
            a.e("s_mov_b64 exec, -1")
        if n == Opt.hpub and not A:
            a.e("s_cmp_ge_u32 s%d, 14" % sM)
            a.e("s_cbranch_scc1 L_nohf")
            a.e("s_cmp_lg_u32 s%d, 4" % sW)
            a.e("s_cbranch_scc1 L_nohf")
            a.e("s_lshl_b32 s%d, s%d, 4" % (sA, sG))
            a.e("s_add_u32 s%d, s%d, s%d" % (sA, sA, sM))
            a.e("s_lshl_b32 s%d, s%d, 7" % (sA, sA))
            a.e("s_add_u32 s%d, s%d, 0x%x" % (sA, sA, WS_HFLAG))
            a.e("s_mov_b64 exec, 1")
            a.e("buffer_store_dword %s, off, %s, s%d sc1" % (v(vONE), srd(SWS), sA))
            a.e("s_mov_b64 exec, -1")
            a.lab("L_nohf")
        for r in kv_reads((n % 8) * 4096): a.e(r)
        if n == 8 and A:
            a.e("s_cmp_lg_u32 s%d, 0" % sW)
            a.e("s_cbranch_scc1 L_hf_nol")
            a.e("buffer_load_dword %s, %s, %s, 0 offen sc1" % (v(vPOLL), v(vFLA), srd(SWS)))
            a.lab("L_hf_nol")
        if n == 0:
            if A or Opt.hpub == 3:
                kvdma(2); kvdma(3)
            a.e("s_mov_b32 s%d, s%d" % (sC, sKQ))
            a.e("s_mul_i32 s%d, s%d, %d" % (sWDOFF, sC, 448 * 1024))
            a.e("s_and_b32 s%d, s%d, 1" % (sB, sW))
            a.e("s_lshl_b32 s%d, s%d, 14" % (sA, sB))
            a.e("s_add_u32 s%d, s%d, s%d" % (sWDOFF, sWDOFF, sA))
            a.e("s_lshl_b32 s%d, s%d, 1" % (sA, sT))
            a.e("s_add_u32 s%d, s%d, s%d" % (sA, sA, sB))
            a.e("s_mul_i32 s%d, s%d, 112" % (sA, sA))
            a.e("s_mul_i32 s%d, s%d, 28" % (sB, sC))
            a.e("s_add_u32 s%d, s%d, s%d" % (sA, sA, sB))
            a.e("s_lshl_b32 s%d, s%d, 10" % (sA, sA))
            a.e("s_add_u32 s%d, s%d, 0x%x" % (sHOFF, sA, WS_HF))
        if (A and n % 2 == 1 and n >= 3): kvdma((n + 5) // 2)
        if (not A and n % 2 == 0 and n >= 2): kvdma((n + 6) // 2)
        if 1 <= n <= 4:
            a.e("s_lshl_b32 s%d, s%d, 17" % (sB, sKQ))
            a.e("s_and_b32 s%d, s%d, 1" % (sC, sW))
            a.e("s_lshl_b32 s%d, s%d, 13" % (sC, sC))
            a.e("s_add_u32 s%d, s%d, s%d" % (sB, sB, sC))
            for j in (2 * n - 2, 2 * n - 1): wodma(j)
        for sg in {5: (27, 23, 24), 6: (25, 26, 0), 7: (1, 2)}.get(n, ()): wddma(sg)
        if n == 10:
            for r in wd_reads(vWX, vWDA, 3 * 8192): a.e(r)
        for j in ({7: (0,), 8: (1, 2), 9: (3, 4)} if A else {7: (0, 1), 8: (2, 3), 9: (4,)}).get(n, ()):
            for r in wd_reads(WOF[j], vWOA, (7 - j) * 8192): a.e(r)
        hs = {10: (0, 1, 23, 24), 11: (2, 25, 26, 27)} if A else {9: (0, 1, 23), 10: (2, 24), 11: (25, 26, 27)}
        if Opt.hlate: hs = {10: (0, 1), 11: (2,)} if A else {9: (0,), 10: (1,), 11: (2,)}
        for sg in hs.get(n, ()): hload(sg, vH + 4 * sg if sg < 4 else vHX if sg == 27 else vH + 4 * (sg - 19))
        if n == 11:
            a.e("s_add_u32 s%d, s%d, 0x%x" % (sHOFF, sHOFF, 3 * 1024))
            a.e("s_add_u32 s%d, s%d, 0x%x" % (sWDOFF, sWDOFF, wdrow(3)))
            a.e("s_add_u32 s%d, s%d, 0x%x" % (sKVOFF, sWK, 9 * 8192))
            a.e("s_mov_b32 s%d, 4" % sCNT)
            a.e("s_add_u32 s%d, s%d, 0x1000" % (sOLD2, sOLD))
            a.e("s_mov_b32 s%d, 0x%x" % (sLO_, f2u(2.0 ** -16)))
            a.e("s_mov_b32 s%d, 0x%x" % (sRNG, f2u(2.0 ** 100) - f2u(2.0 ** -16)))
        if n == 0 and pre0:
            pre0()
            a.stamp(5)
        a.e("s_waitcnt lgkmcnt(0)")
        if n == 0:
            if A: a.e("s_barrier")
            for x in Yseg(None, first=True): a.e(x)
            if not A: a.e("s_barrier")
            continue
        a.e("s_call_b64 %s, L_Y%s" % (sp(sRET), role))
        if n == 1:
            a.e("s_branch L_X1%s" % role)
            a.lab("L_Y%s" % role)
            if A: a.e("s_barrier")
            for x in Yseg(None): a.e(x)
            if not A: a.e("s_barrier")
            a.e("s_setpc_b64 %s" % sp(sRET))
            a.lab("L_X1%s" % role)
    assert not (Opt.hlate and Opt.nx)
    hl = {28: (27, 23), 29: (24, 25), 30: (26,)} if Opt.hlate else {}
    vm = list(a.vm); need = [63] * 8
    for n in range(12, 32):
        p = n % 4; q = p + (4 if n >= 28 else 0)
        tags = ["wd%d" % (n - 11), "h%d" % (n - 12)]
        if (p % 2 == 1) == A: tags.append("kv%d" % ((n + (1 if A else 2)) // 2))
        idx = [i for i, t in enumerate(vm) if t in tags]
        if idx: need[q] = min(need[q], len(vm) - 1 - max(idx))
        vm.append("wd%d" % (n - 9))
        vm.append("h%d" % (n - 9))
        if (p % 2 == 1) == A and n < 28: vm.append("kv%d" % ((n + (5 if A else 6)) // 2))
        vm += ["hx"] * len(hl.get(n, ()))
    a.lab("L_loop%s" % role)
    for q in range(8):
        p = q % 4; fin = q >= 4
        kv = (p % 2 == 1) == A and not fin
        if q == 0 and Opt.diag and Opt.kdiag == 2:
            a.e("s_cmp_lg_u32 s%d, 3" % sCNT)
            a.e("s_cbranch_scc1 L_nst%s" % role)
            astamp(a, 8)
            a.lab("L_nst%s" % role)
        a.e("s_waitcnt vmcnt(%d)" % need[q])
        for i, r in enumerate(kv_reads(p * 4096, vKVB)):
            if not (q == 7 and i == 1): a.e(r)
        if q <= 8 - Opt.nd:
            for r in wd_reads(vWF, vWDA, p * 8192): a.e(r)
        if fin and p < Opt.nx:
            for r in wd_reads(vFR + 16, vWDA, (4 + p) * 8192): a.e(r)
        if q == 7:
            for r in wd_reads(vFR, vWDA, (4 + Opt.nx) * 8192): a.e(r)
        a.e("s_add_u32 m0, s%d, 0x%x" % (sWK, L_WD + ((p + 3) % 4) * 8192))
        a.e("s_and_b32 s%d, s%d, 0x7fff" % (sA, sKVOFF))
        a.e("buffer_load_dwordx4 %s, %s, s%d offen lds" % (v(vWDV), srd(SWD), sWDOFF))
        a.e("s_add_u32 s%d, s%d, 0x%x" % (sWDOFF, sWDOFF, 0x2000 if p & 1 else 0x6000))
        a.e("buffer_load_dwordx4 %s, %s, %s, s%d offen sc1" % (v(vKF + 4 if q == 7 and Opt.nd == 2 else vH + 4 * ((p + 3) % 4), 4), v(vL16), srd(SWS), sHOFF))
        if kv: a.e("s_add_u32 m0, s%d, 0x%x" % (sA, L_KV))
        a.e("s_add_u32 s%d, s%d, 0x400" % (sHOFF, sHOFF))
        if kv:
            a.e("buffer_load_dwordx4 %s, %s, s%d offen sc1 lds" % (v(vL16), srd(SKV), sKVOFF))
            a.e("s_add_u32 s%d, s%d, 0x2000" % (sKVOFF, sKVOFF))
        for sg in (hl.get(24 + q, ()) if fin else ()):
            a.e("s_add_u32 s%d, s%d, 0x%x" % (sA, sHOFF, (sg - (16 + q)) * 1024))
            a.e("buffer_load_dwordx4 %s, %s, %s, s%d offen sc1" % (v(vHX if sg == 27 else vH + 4 * (sg - 19), 4), v(vL16), srd(SWS), sA))
        if q == 3:
            a.e("s_sub_u32 s%d, s%d, 1" % (sCNT, sCNT))
            a.e("s_cmp_lg_u32 s%d, 0" % sCNT)
        a.e("s_waitcnt lgkmcnt(0)")
        if A: a.e("s_barrier")
        for x in Yseg(p if q < 8 - Opt.nd else None, toggle=(q == 3), extra=(fin and p < Opt.nx), last=(q == 7)): a.e(x)
        if not A and q < 7: a.e("s_barrier")
        if q == 3: a.e("s_cbranch_scc1 L_loop%s" % role)
    a.e("s_nop 1")

def transition(a, role):
    A = role == "A"
    if A:
        a.vm = []
        a.lab("L_trA")
    else:
        a.lab("L_join")
        a.e("s_cmp_eq_u32 s%d, 0" % sHI)
        a.e("s_cbranch_scc1 L_trA")
        a.vmjoin = list(a.vm)
    def qfin():
        for i in range(4): a.e("v_cvt_pk_bf16_f32 %s, %s, %s" % (v(vQ + i), v(vAQ + 2 * i), v(vAQ + 2 * i + 1)))
        a.e("v_add_u32 %s, 0x%x, %s" % (v(vWOA), L_WO, v(vWDA)))
        a.e("v_permlane16_swap_b32 %s, %s" % (v(vQ), v(vQ + 2)))
        a.e("v_permlane16_swap_b32 %s, %s" % (v(vQ + 1), v(vQ + 3)))
    pre0 = None
    if A:
        a.e("s_setprio 1")
        a.e("s_cmp_ge_u32 s%d, 14" % sM)
        a.e("s_cbranch_scc1 L_nogA0")
        put(a, a.kvA[:1] + a.kvA[-1:])
        a.l.append(".p2align 3")
        for ti in range(Opt.gsc): gelu_tile(a, ti, True)
        a.lab("L_nogA0")
        qfin()
        a.waitvm(["k0", "kv0", "kv1"])
        a.e("s_setprio 0")
        a.e(mfma(vS, vK0, vQ, None))
        a.e("s_barrier")
        put(a, a.kvA[1:-1])
        def pre0():
            a.e("s_cmp_lt_u32 s%d, 14" % sM)
            a.e("s_cbranch_scc1 L_gA1")
            a.e("s_waitcnt vmcnt(0)")
            a.e("s_branch L_nogA1")
            a.l.append(".p2align 3")
            a.lab("L_gA1")
            for ti in range(Opt.gsc, 4): gelu_tile(a, ti)
            a.lab("L_nogA1")
            a.e("s_setprio 2")
    else:
        a.waitvm(["k0", "kv0", "kv1"])
        a.e("s_setprio 1")
        if Opt.hpub == 3:
            a.e("s_cmp_ge_u32 s%d, 14" % sM)
            a.l.append(".p2align 3")
            a.e("s_barrier")
            a.e("s_cbranch_scc1 L_nogB")
        else:
            a.e("s_barrier")
            for u in (2, 3):
                a.vmop("s_add_u32 m0, s%d, 0x%x\ns_add_u32 s%d, s%d, 0x%x\nbuffer_load_dwordx4 %s, %s, s%d offen sc1 lds"
                       % (sWK, L_KV + u * 8192, sA, sWK, u * 8192, v(vL16), srd(SKV), sA), "kv%d" % u)
            a.e("s_cmp_lt_u32 s%d, 14" % sM)
            a.e("s_cbranch_scc1 L_gB")
            a.e("s_waitcnt vmcnt(0)")
            a.e("s_branch L_nogB")
            a.l.append(".p2align 3")
            a.lab("L_gB")
        for ti in range(4): gelu_tile(a, ti)
        a.lab("L_nogB")
        qfin()
        a.e("s_nop 1")
        a.e(mfma(vS, vK0, vQ, None))
        a.stamp(5)
    attention(a, role, pre0)
    if A:
        a.stamp(6); astamp(a, 9); tstamp(a, 2)
        if Opt.diag and Opt.kdiag == 2: a.e("s_waitcnt lgkmcnt(0)")
        a.e(smfmac(vO, vV1L, vS + 24))
        a.e("s_setprio 0")
        a.e("s_cmp_eq_u32 s%d, 0" % sHI)
        a.e("s_nop 9")
        normalise(a, False)
        a.lab("L_fbretA")
        a.e("buffer_store_dwordx4 %s, %s, %s, s%d offen sc1" % (v(vPK, 4), v(vL16), srd(SWS), sOST))
        tstamp(a, 3)
        a.e("s_waitcnt vmcnt(1)")
        tstamp(a, 4)
        a.e("s_barrier")
        a.fetch(a, False)
        a.e("s_branch L_tl2")

def normalise(a, packed):
    t = vT0
    a.e("v_rcp_f32 %s, %s" % (v(t + 2), v(vO + 8)))
    a.e("s_nop 0")
    a.e("v_mul_f32_e64 %s, %s, %s" % (v(t + 2), v(t + 2), v(vGP)))
    if packed:
        for i in range(4): a.e("v_pk_mul_f32 %s, %s, %s op_sel_hi:[1,0]" % (v(vO + 2 * i, 2), v(vO + 2 * i, 2), v(t + 2, 2)))
        for i in range(4):
            a.e("v_pk_fma_f32 %s, %s, 0, %s op_sel_hi:[1,0,%d]" % (v(t, 2), v(vO + 2 * i, 2), v(t, 2) if i else v(vO + 8, 2), 1 if i else 0))
            a.e("v_cvt_pk_bf16_f32 %s, %s, %s" % (v(vPK + i), v(vO + 2 * i), v(vO + 2 * i + 1)))
        a.e("v_fmac_f32 %s, 0, %s" % (v(t), v(t + 1)))
    else:
        t = vO + 8
        for i in range(8): a.e("v_mul_f32 %s, %s, %s" % (v(vO + i), v(vT0 + 2), v(vO + i)))
        for i in range(4):
            a.e("v_fmac_f32 %s, 0, %s" % (v(t), v(vO + 2 * i)))
            a.e("v_cvt_pk_bf16_f32 %s, %s, %s" % (v(vPK + i), v(vO + 2 * i), v(vO + 2 * i + 1)))
            a.e("v_fmac_f32 %s, 0, %s" % (v(t), v(vO + 2 * i + 1)))
    a.e("v_subrev_u32 %s, s%d, %s" % (v(t), sLO_, v(t)))
    a.e("v_cmp_lt_u32 vcc, s%d, %s" % (sRNG, v(t)))
    a.e("s_branch L_fb" if Opt.force_fb else "s_cbranch_vccnz L_fb")

def tail(a):
    a.lab("L_tail")
    a.stamp(6)
    astamp(a, 9)
    if Opt.diag and Opt.kdiag == 2: a.e("s_waitcnt lgkmcnt(0)")
    tstamp(a, 2)
    a.e(smfmac(vO, vV1L, vS + 24))
    wf = [vFR, vFR + 8, vFR + 16]
    HORD = hord()
    def oload(j):
        return "buffer_load_dwordx4 %s, %s, %s, s%d offen offset:%d %s" % (
            v(vS + 4 * j, 4), v(vL16), srd(SWS), sOLD if HORD[j] < 4 else sOLD2, (HORD[j] % 4) * 1024, Opt.old_pol)
    a.oload = oload
    a.e("s_cmp_eq_u32 s%d, 0" % sHI)
    a.e("s_nop 10")
    a.l.append(".p2align 3")
    normalise(a, True)
    a.lab("L_fbret")
    a.e("buffer_store_dwordx4 %s, %s, %s, s%d offen sc1" % (v(vPK, 4), v(vL16), srd(SWS), sOST))
    tstamp(a, 3)
    aw = [vAW0, vWOA + 1, vWOA + 2, vWOA + 3]
    ar = [vAR0, vFLA]
    wo = WOF
    def fetch(o, scale):
        for j in range(8):
            o.e(oload(j))
            if j >= 5:
                for r in wd_reads(wo[j], vWOA, (7 - j) * 8192): o.e(r)
            if scale and j >= 4:
                for i in range(4 * j - 16, 4 * j - 12): o.e("v_mul_f32 %s, %s, %s" % (v(vD + i), v(vGC), v(vD + i)))
    def addrs(a):
        a.e("v_sub_f32 %s, 1.0, %s" % (v(vGC), v(vGC)))
        for j in range(1, 4): a.e("v_xor_b32 %s, %d, %s" % (v(aw[j]), 32 * j, v(aw[0])))
        a.e("v_xor_b32 %s, 16, %s" % (v(ar[1]), v(ar[0])))
        a.e("s_mov_b32 s%d, 0x2000" % sB)
    ol = Asm(); a.ool2 = ol.l
    a.e("s_waitcnt vmcnt(1)")
    tstamp(a, 4)
    a.e("s_barrier")
    a.lab("L_tl2")
    tstamp(a, 5)
    a.fetch = fetch
    fl = collect(addrs)
    slot = [4, 5, 6, 7, 0, 1, 2][Opt.nx:] + ([3] if Opt.nd == 2 else [])
    hreg = lambda sl: vKF + 4 if sl == 2 and Opt.nd == 2 else vH + 4 * sl
    inreg = [(vWX, vHX)] + ([(vWF, vH + 4 * (4 - Opt.nd))] if Opt.nd else [])
    rds = sum((wd_reads(wf[i % 3], vWDA, slot[i] * 8192) for i in range(len(slot))), [])
    done = 4
    for i in range(-len(inreg), len(slot)):
        for c in range(2):
            if i >= 1: a.e("s_waitcnt lgkmcnt(%d)" % (done - (4 * i + 2 * c + 2)))
            a.e(mfma(vD + 16 * c, inreg[i][0] + 4 * c, inreg[i][1], vD + 16 * c) if i < 0 else
                mfma(vD + 16 * c, wf[i % 3] + 4 * c, hreg(slot[i]), vD + 16 * c))
            if i < -1: continue
            if done < len(rds):
                for r in rds[done:done + 2]: a.e(r)
                done += 2
            else:
                put(a, fl[:2]); fl = fl[2:]
    assert not fl
    tstamp(a, 6)
    a.e("s_cbranch_scc0 L_tl3")
    a.l.append(".p2align 3")
    a.e("s_nop 7")
    a.e("s_nop 0")
    for i in range(16): a.e("v_pk_mul_f32 %s, %s, %s op_sel:[0,1] op_sel_hi:[1,1]" % (v(vD + 2 * i, 2), v(vD + 2 * i, 2), v(vGP, 2)))
    tstamp(a, 7)
    a.lab("L_tl4")
    tstamp(a, 8)
    ol.lab("L_tl3")
    ol.e("s_setprio 0")
    fetch(ol, False)
    tstamp(ol, 7)
    for i in range(32): ol.e("v_mul_f32 %s, %s, %s" % (v(vD + i), v(vGC), v(vD + i)))
    ol.e("s_waitcnt lgkmcnt(0)")
    def check(j):
        o = vS + 4 * j
        return ["s_waitcnt vmcnt(%d)" % (7 - j), "v_max3_u32 v2, %s, %s, %s" % (v(o), v(o + 1), v(o + 2)),
                "v_max_u32 v2, v2, %s" % v(o + 3), "v_cmp_eq_u32 vcc, -1, v2"]
    for j in range(Opt.bpre):
        for x in check(j): ol.e(x)
        ol.e("s_cbranch_vccnz L_bp%d" % j)
    ol.e("s_branch L_tl4")
    if Opt.bpre:
        for j in range(8):
            if j < Opt.bpre: ol.lab("L_bp%d" % j)
            ol.e(oload(j))
        ol.e("s_branch L_tl4")
    a.stamp(7)
    def check(j):
        o = vS + 4 * j
        return ["s_waitcnt vmcnt(%d)" % (7 - j), "v_max3_u32 v2, %s, %s, %s" % (v(o), v(o + 1), v(o + 2)),
                "v_max_u32 v2, v2, %s" % v(o + 3), "v_cmp_eq_u32 vcc, -1, v2"]
    a.check = check
    for x in check(0): a.e(x)
    for j in range(10):
        if j < 8:
            a.e("s_cbranch_vccnz L_ore%d" % j)
            a.lab("L_ook%d" % j)
            a.e(mfma(vD, wo[j], vS + 4 * j, vD))
        if j >= 2 and Opt.cfirst: a.e(mfma(vD + 16, wo[j - 2] + 4, vS + 4 * (j - 2), vD + 16))
        if j < 7:
            for x in check(j + 1): a.e(x)
        if j >= 2 and not Opt.cfirst: a.e(mfma(vD + 16, wo[j - 2] + 4, vS + 4 * (j - 2), vD + 16))
        if j in (7, 8): a.e("s_nop 4")
    wr = lambda c, j: "ds_write_b128 %s, %s offset:%d" % (v(aw[j]), v(vD + 16 * c + 4 * j, 4), 128 * c)
    a.stamp(8)
    tstamp(a, 9)
    for j in range(4): a.e(wr(0, j))
    a.e("s_nop 7")
    for j in range(4): a.e(wr(1, j))
    a.e("s_waitcnt lgkmcnt(0)")
    a.e("s_barrier")
    for p in range(4):
        for h in range(2): a.e(rd128(vS + 8 * p + 4 * h, ar[h], p * 8192))
    for p in range(1, 4):
        a.e("s_waitcnt lgkmcnt(%d)" % (6 - 2 * p))
        for i in range(4): a.e("v_pk_add_f32 %s, %s, %s" % (v(vS + 2 * i, 2), v(vS + 2 * i, 2), v(vS + 8 * p + 2 * i, 2)))
    for i in range(4): a.e("v_cvt_pk_bf16_f32 %s, %s, %s" % (v(vP + i), v(vS + 2 * i), v(vS + 2 * i + 1)))
    a.e("buffer_store_dwordx4 %s, %s, %s, s%d offen %s" % (v(vP, 4), v(vOUTA), srd(SOUT), sOUTO, Opt.out_pol))
    if Opt.probe >= 0:
        a.e("s_waitcnt vmcnt(0)")
        a.stamp(9)
        if Opt.probe_g:
            for i, t_ in enumerate((3300, 4300)):
                a.lab("L_pg%d" % i)
                a.e("s_memrealtime s[0:1]")
                a.e("s_waitcnt lgkmcnt(0)")
                a.e("s_sub_u32 s0, s0, s%d" % sSTAMP)
                a.e("s_cmp_lt_u32 s0, %d" % t_)
                a.e("s_cbranch_scc1 L_pg%d" % i)
                if i == 0:
                    a.e("s_cmp_lg_u32 s%d, 0" % sW)
                    a.e("s_cbranch_scc1 L_npg")
                    a.e("v_not_b32 v2, s%d" % sSTAMP)
                    a.e("s_mov_b64 exec, 1")
                    a.e("buffer_atomic_umax v2, off, %s, 0 offset:128 sc1" % srd(SDBG))
                    a.e("s_mov_b64 exec, -1")
                    a.lab("L_npg")
        if Opt.probe != 9:
            a.e("s_cmp_ge_u32 s%d, 14" % sM)
            a.e("s_cbranch_scc%d L_end" % (0 if Opt.probe_l else 1))
        if Opt.probe_g:
            a.e("buffer_load_dword v2, off, %s, 0 offset:128 sc1" % srd(SDBG))
            a.e("s_waitcnt vmcnt(0)")
            a.e("v_readfirstlane_b32 s%d, v2" % sSTAMP)
            a.e("s_nop 3")
            a.e("s_not_b32 s%d, s%d" % (sSTAMP, sSTAMP))
        a.e("s_sub_u32 s%d, s%d, s%d" % (sA, sSTAMP + 4, sSTAMP))
        a.e("s_mul_i32 s%d, s%d, %d" % (sA, sA, Opt.probe_mul - 1))
        if Opt.pcyc >= 0:
            a.e("s_sub_u32 s%d, s%d, s%d" % (sA, sSTAMP + 8, sSTAMP + 6))
            if Opt.prt: a.e("s_mul_i32 s%d, s%d, 10" % (sA, sA))
            a.e("s_mov_b32 s%d, s%d" % (sSTAMP + 4, sSTAMP))
        a.e("s_min_u32 s%d, s%d, 40000" % (sA, sA))
        a.e("s_add_u32 s%d, s%d, 3800" % (sA, sA))
        if Opt.probe_r >= 0:
            a.e("s_cmp_eq_u32 s%d, 0x2000" % sB)
            a.e("s_cbranch_scc%d L_end" % Opt.probe_r)
        if Opt.probe_w >= 0:
            a.e("s_cmp_lg_u32 s%d, %d" % (sHI, Opt.probe_w))
            a.e("s_cbranch_scc1 L_end")
        if Opt.probe_x >= 0:
            a.e("s_and_b32 s0, s2, 7")
            a.e("s_cmp_lg_u32 s0, %d" % Opt.probe_x)
            a.e("s_cbranch_scc1 L_end")
        a.lab("L_probe")
        a.e("s_memrealtime s[0:1]")
        a.e("s_waitcnt lgkmcnt(0)")
        a.e("s_sub_u32 s0, s0, s%d" % (sSTAMP + 4))
        a.e("s_cmp_lt_u32 s0, s%d" % sA)
        a.e("s_cbranch_scc1 L_probe")
    if Opt.pin == 9:
        a.e("s_waitcnt vmcnt(0)")
        a.stamp(9)
    if Opt.diag in (1, 2):
        a.e("s_waitcnt vmcnt(0)")
        a.stamp(9)
        a.e("s_mov_b32 s%d, s%d" % (sSTAMP + 3, sSTAMP))
        a.e("s_mov_b32 s%d, s%d" % (sSTAMP, sB))
        a.e("s_getreg_b32 s%d, hwreg(HW_REG_XCC_ID)" % (sSTAMP + 1))
        for i in range(20): a.e("v_mov_b32 %s, s%d" % (v(vS + i), sSTAMP + i))
        a.e("s_lshl_b32 s%d, s2, 3" % sA)
        a.e("s_add_u32 s%d, s%d, s%d" % (sA, sA, sW))
        a.e("s_lshl_b32 s%d, s%d, 7" % (sA, sA))
        a.e("s_add_u32 s%d, s%d, 0x%x" % (sA, sA, WS_STAMP))
        a.e("s_mov_b64 exec, 1")
        for i in range(5): a.e("buffer_store_dwordx4 %s, off, %s, s%d offset:%d" % (v(vS + 4 * i, 4), srd(SWS), sA, 16 * i))
    a.lab("L_end")
    a.e("s_endpgm")
    a.l += a.ool2
    for j in range(8):
        a.lab("L_ore%d" % j)
        a.e("s_sub_u32 s%d, s%d, 1" % (sB, sB))
        a.e("s_cbranch_scc1 L_ogive%d" % j)
        if Opt.rwait: a.e("s_waitcnt vmcnt(0)")
        if Opt.rwait > 1: a.e("s_sleep %d" % Opt.rwait)
        for i in range(j, 8): a.e(a.oload(i))
        for x in a.check(j): a.e(x)
        a.e("s_cbranch_vccnz L_ore%d" % j)
        a.e("s_branch L_ook%d" % j)
        a.lab("L_ogive%d" % j)
        a.e("s_mov_b32 s%d, 0" % sB)
        a.e("s_branch L_ook%d" % j)

def fallback(a):
    a.lab("L_fb")
    m = vT0
    a.e("v_mov_b32 %s, 0xff800000" % v(m))
    a.e("s_mov_b32 s%d, 0" % sA)
    a.lab("L_fb1")
    a.e("buffer_load_dwordx4 %s, %s, %s, s%d offen sc1" % (v(vKF, 4), v(vL16), srd(SKV), sA))
    a.e("s_waitcnt vmcnt(0)")
    a.e(mfma(vS, vKF, vQ, None))
    a.e("s_add_u32 s%d, s%d, 2048" % (sA, sA))
    a.e("s_nop 11")
    for i in range(8): a.e("v_max3_f32 %s, %s, %s, %s" % (v(m), v(m), v(vS + 2 * i), v(vS + 2 * i + 1)))
    a.e("s_cmp_lt_u32 s%d, 0x20000" % sA)
    a.e("s_cbranch_scc1 L_fb1")
    a.e("v_mov_b32 %s, %s" % (v(m + 1), v(m)))
    a.e("s_nop 1")
    a.e("v_permlane32_swap_b32 %s, %s" % (v(m), v(m + 1)))
    a.e("s_nop 1")
    a.e("v_max_f32 %s, %s, %s" % (v(m), v(m), v(m + 1)))
    for i in range(16): a.e("v_sub_f32 %s, 0, %s" % (v(vS + 16 + i), v(m)))
    for i in range(16): a.e("v_mov_b32 %s, 0" % v(vO + i))
    a.e("s_mov_b32 s%d, 0" % sA)
    a.lab("L_fb2")
    a.e("s_add_u32 s%d, s%d, 0x%x" % (sB, sA, 63 * 2048))
    a.e("s_and_b32 s%d, s%d, 0x1ffff" % (sB, sB))
    a.e("buffer_load_dwordx4 %s, %s, %s, s%d offen sc1" % (v(vKF, 4), v(vL16), srd(SKV), sB))
    a.e("s_add_u32 s%d, s%d, 2048" % (sB, sA))
    a.e("s_and_b32 s%d, s%d, 0x1ffff" % (sB, sB))
    a.e("s_mov_b64 exec, %s" % sp(sVM))
    a.e("buffer_load_dwordx4 %s, %s, %s, s%d offen offset:1024 sc1" % (v(vV, 4), v(vL16), srd(SKV), sA))
    a.e("buffer_load_dwordx4 %s, %s, %s, s%d offen offset:1280 sc1" % (v(vV + 4, 4), v(vL16), srd(SKV), sB))
    a.e("s_mov_b64 exec, -1")
    a.e("s_waitcnt vmcnt(0)")
    a.e(mfma(vS, vKF, vQ, vS + 16))
    a.e("s_add_u32 s%d, s%d, 2048" % (sA, sA))
    a.e("s_nop 11")
    for i in range(16): a.e("v_exp_f32 %s, %s" % (v(vS + i), v(vS + i)))
    a.e("s_nop 2")
    a.e(smfmac(vO, vV, vS))
    a.e(smfmac(vO, vV + 4, vS + 8))
    a.e("s_cmp_lt_u32 s%d, 0x20000" % sA)
    a.e("s_cbranch_scc1 L_fb2")
    a.e("s_nop 11")
    a.e("v_rcp_f32 %s, %s" % (v(vT0 + 2), v(vO + 8)))
    a.e("s_cmp_eq_u32 s%d, 0" % sHI)
    a.e("v_mul_f32 %s, %s, %s" % (v(vT0 + 2), v(vT0 + 2), v(vGP)))
    for i in range(8): a.e("v_mul_f32 %s, %s, %s" % (v(vO + i), v(vT0 + 2), v(vO + i)))
    for i in range(4): a.e("v_cvt_pk_bf16_f32 %s, %s, %s" % (v(vPK + i), v(vO + 2 * i), v(vO + 2 * i + 1)))
    for i in range(4): a.e("v_min_u32 %s, -2, %s" % (v(vPK + i), v(vPK + i)))
    a.e("s_cbranch_scc1 L_fbretA")
    a.e("s_branch L_fbret")

def build():
    a = Asm()
    prologue(a)
    phase1_F(a)
    transition(a, "B")
    tail(a)
    a.l += a.ool
    transition(a, "A")
    phase1_L(a)
    fallback(a)
    a.lab("L_codeend")
    for i, x in enumerate(a.l):
        if " sc1" in x and "sc0" not in x and ((Opt.allsc & 1 and "buffer_store" in x) or (Opt.allsc & 2 and "buffer_load" in x)):
            a.l[i] = x.replace(" sc1", " sc0 sc1")
    notes = {'L_k0': 'first GEMM: K loop over 8 chunks of 64, three-slot LDS ring, 16x16x32 MFMAs', 'L_join': 'waves 4-7: activation, then attention', 'L_trA': 'waves 0-3: activation, then attention', 'L_loopA': 'steady attention loop with one down-projection K step per two key tiles', 'L_loopB': 'steady attention loop with one down-projection K step per two key tiles', 'L_tail': 'normalise, hand over, remaining down steps, output projection, reduction, store', 'L_light': 'light workgroups: K, V, gate, own Q', 'L_fb': 'softmax with the true row maximum (two passes over the keys)', 'L_ore0': 'refetch attention outputs that still carry the not-yet-written mark', 'L_e2': 'out-of-line load blocks of the first GEMM'}
    for k_, t_ in notes.items():
        if k_ + ":" in a.l: a.l.insert(a.l.index(k_ + ":"), "; ---- " + t_)
    a.l = [x for x in a.l if x.strip() != "; later"]
    il = a.l.index("L_light:")
    for i, x in enumerate(a.l):
        if x.endswith(" lds") and "sc1" not in x and " nt" not in x:
            if (Opt.ntx & 4 and (srd(SWD) in x or srd(SWO) in x)) or (Opt.ntx & 8 and i > il):
                a.l[i] = x[:-4] + " nt lds"
    head = open("cdna_kernels/%s.s.ref" % NAME).read().split("\n")
    hdr = [l for l in head if l.startswith(";") and "@launch" not in l and "Override" not in l and "grid=" not in l]
    out = hdr + ["; @launch grid=(256,1,1) block=(512,1,1) lds=%d" % LDS_BYTES,
                 '.amdgcn_target "amdgcn-amd-amdhsa--gfx950"', ".text", ".globl %s_kernel" % NAME, ".p2align 8",
                 ".type %s_kernel,@function" % NAME,
                 ".set CODE_PF_MAX, L_codeend - L_nopf - 4" if Opt.code_pf else "",
                 "%s_kernel:" % NAME]
    if Opt.diag: out += ["; mapmode %d" % (1 + 3 * bool(Opt.oddl))]
    out += ["; " + x for x in """One persistent launch, one workgroup per CU (generated by a script), 8 waves = two quartets that alternate on each SIMD.
Stage 1: 14 of every 16 workgroups compute gelu(x Wg) * (x Wu) for 128 tokens x 128 columns plus Q for two heads;
         the other two compute K, V and the mixing gate, publish them (counter in d_debug) and then their own Q.
Stage 2: attention for 128 tokens x 2 heads over all keys, S^T = K Q^T, exp2 in place, P V through sparse MFMAs that
         read the high halves of the fp32 probabilities; a row of ones in the V operand gives the row sums.
         The stand-in maximum is 0: it is accepted only if the row sum lies in [2^-16, 2^100] and every accumulator is
         finite, otherwise the wave redoes its rows with the true maximum (L_fb).
         The down projection of a 64 x 64 output tile runs in the same loop once the producers' flags are seen.
Stage 3: attention outputs are handed over through d_ws (cleared to a mark earlier in this launch), projected,
         mixed with the FFN branch, reduced through LDS and stored.""".split("\n")]
    out += a.l
    out += ['.section .rodata,"a"', ".p2align 6", ".amdhsa_kernel %s_kernel" % NAME,
            "  .amdhsa_next_free_vgpr %d" % NV, "  .amdhsa_next_free_sgpr 102", "  .amdhsa_accum_offset 256",
            "  .amdhsa_group_segment_fixed_size 0", "  .amdhsa_kernarg_size 104", "  .amdhsa_user_sgpr_count 2",
            "  .amdhsa_user_sgpr_kernarg_segment_ptr 1", "  .amdhsa_system_sgpr_workgroup_id_x 1", ".end_amdhsa_kernel", ""]
    return "\n".join(out)

if __name__ == "__main__":
    path = sys.argv[1]
    for kv in sys.argv[2:]:
        k, val = kv.split("=")
        cur = getattr(Opt, k)
        setattr(Opt, k, val if isinstance(cur, str) else type(cur)(int(val)))
    open(path, "w").write(build())
```
